```python
import torch

def _softmax(x, axis=-1):
    return torch.softmax(x, dim=axis)
def _gelu(x):
    return torch.nn.functional.gelu(x, approximate="tanh")
def _silu(x):
    return torch.nn.functional.silu(x)
def _sigmoid(x):
    return torch.sigmoid(x)
def _layernorm(x, axis=-1, eps=1e-5):
    m = x.mean(dim=axis, keepdim=True)
    v = x.var(dim=axis, keepdim=True, unbiased=False)
    return (x - m) / torch.sqrt(v + eps)
def _scatter_add(tgt, idx, src, axis=0):
    return tgt.clone().index_add_(axis, idx, src)
def _segment_sum(src, seg, n):
    out = torch.zeros((n,) + src.shape[1:], dtype=src.dtype)
    return out.index_add_(0, seg, src)
def _pad(x, pw):
    flat = tuple(v for pair in reversed(pw) for v in pair)
    return torch.nn.functional.pad(x, flat)

kernel_name = 'recurrent_scan__sliding_block_cached__dense_activation_silu__prompt'

def setup_inputs():

    _w = (lambda a: (lambda t: t.to(torch.bfloat16) if t.is_floating_point() else t)(torch.as_tensor(a)))
    def _A_setup():
        B, Sq, D = 1, 2048, 576
        Hq, Hkv, Sk, Dh = 32, 16, 2048, 128
        assert Hq % Hkv == 0, (Hq, Hkv)
        return {
            "x": _w((lambda *s: torch.randn(*s, dtype=torch.bfloat16) * 0.05)(B, Sq, D)),
            "k_cache": _w((lambda *s: torch.randn(*s, dtype=torch.bfloat16) * 1.6)(B, Hkv, Sk, Dh)),
            "v_cache": _w((lambda *s: torch.randn(*s, dtype=torch.bfloat16) * 0.8)(B, Hkv, Sk, Dh)),
            "wq": _w((lambda *s: torch.randn(*s, dtype=torch.bfloat16) * 1.6)(D, Hq * Dh) * (D ** -0.5)),
            "wo": _w((lambda *s: torch.randn(*s, dtype=torch.bfloat16) * 0.8)(Hq * Dh, D) * ((Hq * Dh) ** -0.5)),
        }
    _A_in = _A_setup()

    def _B_setup():
        B, S, D, F = 1, 2048, 576, 4608
        return {
            "x": _w((lambda *s: torch.randn(*s, dtype=torch.bfloat16) * 0.05)(B, S, D)),
            "w1": _w((lambda *s: torch.randn(*s, dtype=torch.bfloat16) * 1.6)(D, F) * (D ** -0.5)),
            "w2": _w((lambda *s: torch.randn(*s, dtype=torch.bfloat16) * 0.2)(F, D) * (F ** -0.5)),
        }
    _B_in = _B_setup()

    return {
        "A_x": _A_in["x"],
        "A_k_cache": _A_in["k_cache"],
        "A_v_cache": _A_in["v_cache"],
        "A_wq": _A_in["wq"],
        "A_wo": _A_in["wo"],
        "B_x": _B_in["x"],
        "B_w1": _B_in["w1"],
        "B_w2": _B_in["w2"],
    }

def reference(A_x, A_k_cache, A_v_cache, A_wq, A_wo, B_x, B_w1, B_w2):
    def _A_ref(x, k_cache, v_cache, wq, wo):
        B, Sq, D = x.shape
        Hq, Dh = 32, 128
        Hkv, Sk = k_cache.shape[1], k_cache.shape[2]
        W = min(4096, max(256, Sk // 4))
        rep = Hq // Hkv
        q = (lambda x, *d: x.permute(*d))((x @ wq).reshape(B, Sq, Hq, Dh), 0, 2, 1, 3)
        k = (lambda x, n, axis: torch.repeat_interleave(x, n, dim=axis))(k_cache[:, :, Sk - W:, :], rep, axis=1)
        v = (lambda x, n, axis: torch.repeat_interleave(x, n, dim=axis))(v_cache[:, :, Sk - W:, :], rep, axis=1)
        scores = torch.einsum("bhqd,bhkd->bhqk", q, k) * (Dh ** -0.5)
        p = _softmax(scores, axis=-1)
        o = torch.einsum("bhqk,bhkd->bhqd", p, v)
        return (lambda x, *d: x.permute(*d))(o, 0, 2, 1, 3).reshape(B, Sq, Hq * Dh) @ wo

    def _B_ref(x, w1, w2):
        h = torch.einsum("bsd,df->bsf", x, w1)
        h = _silu(h)
        out = torch.einsum("bsf,fd->bsd", h, w2)
        return out

    x = A_x
    xn = _layernorm(x, axis=-1)
    s = _A_ref(xn, A_k_cache, A_v_cache, A_wq, A_wo)
    g = _silu(_B_ref(xn, B_w1, B_w2))
    return x + s * g
```

```python
V0, A0, S0 = 0, 256, 1000
M0, VCC, SCC, EXEC = 2000, 2001, 2002, 2003

def vr(n, c=1): return list(range(V0 + n, V0 + n + c))
def ar(n, c=1): return list(range(A0 + n, A0 + n + c))
def sr(n, c=1): return list(range(S0 + n, S0 + n + c))

class R:
    __slots__ = ('k', 'n', 'c')
    def __init__(s, k, n, c=1): s.k, s.n, s.c = k, n, c
    def __str__(s):
        return f"{s.k}{s.n}" if s.c == 1 else f"{s.k}[{s.n}:{s.n+s.c-1}]"
    def regs(s):
        b = {'v': V0, 'a': A0, 's': S0}[s.k]
        return list(range(b + s.n, b + s.n + s.c))
    def sub(s, o, c=1):
        assert o + c <= s.c, (str(s), o, c)
        return R(s.k, s.n + o, c)
    def __getitem__(s, o): return s.sub(o, 1)
def v(n, c=1): return R('v', n, c)
def a(n, c=1): return R('a', n, c)
def s(n, c=1): return R('s', n, c)

def regs_of(x):
    if isinstance(x, R): return x.regs()
    if x == 'm0': return [M0]
    if x == 'vcc': return [VCC]
    if x == 'exec': return [EXEC]
    return []

class I:
    __slots__ = ('txt', 'kind', 'wr', 'rd', 'units', 'cin', 'tag', 'stdata')
    def __init__(s, txt, kind, wr=(), rd=(), units=1, cin=(), tag=None, stdata=()):
        s.txt, s.kind, s.units, s.tag = txt, kind, units, tag
        s.wr = frozenset(wr); s.rd = frozenset(rd); s.cin = frozenset(cin); s.stdata = frozenset(stdata)

def _rw(dsts, srcs):
    w = []; r = []
    for d in dsts: w += regs_of(d)
    for x in srcs: r += regs_of(x)
    return w, r

def fmt(x):
    if isinstance(x, float): return repr(x)
    if isinstance(x, int):
        return str(x) if -16 <= x <= 64 else hex(x & 0xffffffff)
    return str(x)

TRANS = ('v_exp_f32', 'v_rcp_f32', 'v_rsq_f32', 'v_log_f32', 'v_sqrt_f32')
def valu(op, dst, *src, mods='', extra_rd=(), extra_wr=(), rmw=False):
    w, r = _rw([dst] + list(extra_wr), list(src) + list(extra_rd) + ([dst] if rmw else []))
    kind = 'trans' if op in TRANS else ('dot' if op.startswith('v_dot') else ('perm' if op.startswith('v_permlane') else ('rdl' if op.startswith('v_readfirstlane') or op.startswith('v_readlane') else 'valu')))
    txt = f"{op} {fmt(dst)}, " + ", ".join(fmt(x) for x in src) + (" " + mods if mods else "")
    return I(txt, kind, w, r, units=2 if kind == 'trans' else 1)
def salu(op, dst, *src, scc_w=True, scc_r=False):
    w, r = _rw([dst] if dst is not None else [], src)
    if scc_w: w = w + [SCC]
    if scc_r: r = r + [SCC]
    ops = ([fmt(dst)] if dst is not None else []) + [fmt(x) for x in src]
    return I(f"{op} " + ", ".join(ops), 'salu', w, r)
def smov(dst, src): return salu('s_mov_b32', dst, src, scc_w=False)
def mfma(D, A, B, C):
    w, r = _rw([D], [A, B])
    cin = regs_of(C) if isinstance(C, R) else []
    op = "v_mfma_f32_32x32x16_bf16" if D.c == 16 else "v_mfma_f32_16x16x32_bf16"
    return I(f"{op} {D}, {A}, {B}, {fmt(C)}", 'mfma', w, list(r) + cin, units=2, cin=cin)
def ds_tr(dst, addr, off):
    assert 0 <= off < 65536, off
    w, r = _rw([dst], [addr])
    return I(f"ds_read_b64_tr_b16 {dst}, {addr} offset:{off}", 'ds', w, r)
def ds_b128(dst, addr, off):
    assert 0 <= off < 65536, off
    w, r = _rw([dst], [addr])
    return I(f"ds_read_b128 {dst}, {addr} offset:{off}", 'ds', w, r)
def dma(voff, srd, soff, imm, tag=None):
    assert 0 <= imm < 4096
    w, r = _rw([], [voff, srd, soff, 'm0'])
    o = f" offset:{imm}" if imm else ""
    return I(f"buffer_load_dwordx4 {voff}, {srd}, {fmt(soff)} offen{o} lds", 'dma', w, r, units=3, tag=tag)
def bload(op, dst, voff, srd, soff, imm=0, flags=''):
    w, r = _rw([dst], [voff, srd, soff])
    o = f" offset:{imm}" if imm else ""
    return I(f"{op} {dst}, {voff}, {srd}, {fmt(soff)} offen{o}{' ' + flags if flags else ''}", 'vload', w, r, units=3)
def bstore(op, data, voff, srd, soff, imm=0, flags=''):
    w, r = _rw([], [data, voff, srd, soff])
    o = f" offset:{imm}" if imm else ""
    return I(f"{op} {data}, {voff}, {srd}, {fmt(soff)} offen{o}{' ' + flags if flags else ''}", 'vstore', w, r, units=3,
             stdata=regs_of(data) if data.c >= 3 else ())
def raw(txt, kind='other', wr=(), rd=(), units=1):
    w = []; r = []
    for x in wr: w += regs_of(x)
    for x in rd: r += regs_of(x)
    return I(txt, kind, w, r, units=units)
def label(name): return I(name + ":", 'label', units=0)
def comment(t): return I("; " + t, 'label', units=0)

VALUK = ('valu', 'trans', 'dot', 'perm', 'rdl')
VMEMK = ('dma', 'vload', 'vstore')

def need_states(p, c):
    n = 0
    pk, ck = p.kind, c.kind
    if pk == 'mfma':
        big = len(p.wr) == 16
        RD, OV, WAR = (12, 10, 7) if big else (8, 6, 3)
        if ck == 'mfma':
            ab = c.rd - c.cin
            if p.wr & ab: n = max(n, RD)
            if p.wr & c.cin and p.wr != c.cin: n = max(n, OV)
            if p.wr & c.wr and not (p.wr & c.cin): n = max(n, OV)
        elif ck in VALUK:
            if p.wr & (c.rd | c.wr): n = max(n, RD)
            if p.cin & c.wr: n = max(n, WAR)
        elif ck in VMEMK or ck == 'ds':
            if p.wr & (c.rd | c.wr): n = max(n, RD)
    elif pk in VALUK:
        vw = {x for x in p.wr if x < S0}
        sw = {x for x in p.wr if x >= S0 and x != SCC}
        if ck == 'mfma' and vw & c.rd: n = max(n, 2)
        if pk == 'trans' and ck in VALUK and vw & c.rd: n = max(n, 1)
        if pk == 'dot' and ck in VALUK + VMEMK + ('ds', 'mfma'):
            if vw & (c.rd | c.wr):
                same_acc = (ck == 'dot' and c.txt.split()[0] == p.txt.split()[0] and c.wr == p.wr)
                if not same_acc: n = max(n, 3)
        if ck == 'rdl' and vw & c.rd: n = max(n, 1)
        if ck == 'perm' and vw & c.rd: n = max(n, 2)
        if sw:
            if ck in VALUK and sw & c.rd: n = max(n, 4 if ck == 'rdl' else 2)
            if ck in VMEMK and sw & c.rd: n = max(n, 5)
            if ck in ('salu', 'other') and sw & c.rd: n = max(n, 2)
            if EXEC in sw and ck == 'mfma': n = max(n, 4)
    elif pk == 'salu':
        if M0 in p.wr and ck == 'dma': n = max(n, 1)
    elif pk == 'vstore':
        if p.stdata & c.wr: n = max(n, 2)
    return n

class Prog:
    def __init__(s):
        s.ins = []
        s.npad = 0
        s.vm = []
        s.ds = 0
    def states(s, i):
        t = i.txt
        if i.kind == 'label': return 0
        if t.startswith('s_nop'): return int(t.split()[1]) + 1
        return 1
    def would_pad(s, i):
        dist = 0
        for p in reversed(s.ins[-40:]):
            if dist >= 12: break
            if need_states(p, i) > dist: return True
            dist += s.states(p)
        return False
    def emit(s, i):
        if isinstance(i, (list, tuple)):
            for x in i: s.emit(x)
            return
        if i.kind != 'label':
            dist = 0; need = 0
            for p in reversed(s.ins[-40:]):
                if dist >= 12: break
                n = need_states(p, i)
                if n > dist: need = max(need, n - dist)
                dist += s.states(p)
            while need > 0:
                k = min(need, 16)
                s.ins.append(I(f"s_nop {k-1}", 'other')); s.npad += k; need -= k
        s.ins.append(i)
        if i.kind in VMEMK: s.vm.append(i.tag)
        if i.kind == 'ds': s.ds += 1
    def vm_wait_for(s, pred):
        last = -1
        for k, t in enumerate(s.vm):
            if pred(t): last = k
        n = len(s.vm) - 1 - last
        return min(n, 63)
def waitvm(n): return raw(f"s_waitcnt vmcnt({n})")
def waitlg(n): return raw(f"s_waitcnt lgkmcnt({min(n,15)})")
def barrier(): return raw("s_barrier")
def nop(n): return raw(f"s_nop {n}")
```

```python
import sys, math, struct
from core import *

KN = "recurrent_scan__sliding_block_cached__dense_activation_silu__prompt_kernel"
RN = "reduce_kernel"
PP = 1088
SLOT = 36 * PP
XW = 36864
PWAVE = 36864
LOG2E = 1.4426950408889634
def f2u(f): return struct.unpack('<I', struct.pack('<f', f))[0]
CFG = dict(depth=8, wevery=4, dmastep=3, store_flags='sc1', fold=True, stamps=False, pf=2, xe=6, fused=False, shape='M')

sX, sK, sV, sWQ, sWO, sW1, sW2, sWS = [s(8 + 4 * i, 4) for i in range(8)]
sPFa, sPFb, sPFc = s(40), s(41), s(42)
sPF1, sPF1h, sPF2, sPF2h = s(44), s(45), s(46), s(47)
sOUT = s(48, 4); sDBG = s(52, 4)
sWAVE, sROLE, sRB = s(62), s(63), s(64)
sW8704, sWC, sW8192, sWCH, sW2176, sW4352, sWA2 = s(65), s(66), s(67), s(68), s(69), s(60), s(61)
sT = s(70)
sQA, sQC, sHA, sHC, sHH, sHHC = s(71), s(72), s(73), s(74), s(75), s(76)
sKb = [s(77), s(78), s(79)]; sVb = [s(80), s(81), s(82)]
sOA, sOB = s(83), s(58)
sFA, sFC, sFS = s(84), s(85), s(86)
sRd, sPrev, sWr = s(87), s(88), s(89)
sSt, sLC, sT2, sT3 = s(90), s(91), s(92), s(93)
sSt2 = s(5)
sPW = s(3)
sPC = s(94, 2)
sRET = s(56, 2)
sWrW = s(59)
sRdN = s(4)
sLN0 = s(96)
sSTAMP = s(98, 2); sT0 = s(100, 2)
s_ = s

vLANE16 = v(0)
vROWN, vROWP, vSWZ = v(1), v(41), v(2)
vOFFW = [v(3), v(4), v(5), v(6)]
vOFFH, vOFFK = v(7), v(8)
vRW = [[v(9), v(10)], [v(11), v(12)], [v(13), v(14)]]
vRH = [v(15), v(37)]
TMP0 = 16
vRK = [v(32), v(33), v(34)]
vTID, vPF, vPF2 = v(38), v(39), v(40)
vSTAMP = v(43)
vDP, vD0, vD1 = v(44), v(45), v(46)
vDK = v(35)
vCT = v(42)
vDK1 = v(34)
vSWZM = v(37)
vRKM = [v(32), v(33)]
vDUM = v(47)
ACC = [v(48, 32), v(80, 32)]
XB = 112
def X(t, g): return v(XB + 8 * t + 4 * g, 4)
def XM(t): return v(XB + 4 * t, 4)
Sreg = [v(112, 16), v(128, 16)]
Preg = [v(144, 8), v(152, 8)]
Oset = [v(160, 64), v(48, 64)]
Lacc = [v(230, 4), v(234, 4)]
Lsave = v(224, 6)
LM = [v(230, 8), v(16, 8)]
vONES = v(24, 4)
FT0 = 238
P2ACC = v(112, 32)
P2PK = [v(144, 8), v(152, 8)]

def f_fullcol(i): return 64 * 13 * i if i < 5 else 64 * 65
def f_halfcol(i): return 64 * 69 + 32 * i

def phantom(u=1): return I('; phantom', 'label', units=u)

class MF:
    __slots__ = ('m', 'reads', 'after', 'need', 'pre', 'extra')
    def __init__(s, m, reads, after=None, need=None):
        s.m, s.reads, s.after, s.need = m, reads, after, need or []; s.pre = None; s.extra = None
class Stage:
    def __init__(s, name, mf, dma, dyn=False, mark=None, pre_dma=None):
        s.name, s.mf, s.dma, s.dyn, s.mark, s.pre_dma = name, mf, dma, dyn, mark, pre_dma
        s.ring = None; s.half = False; s.post_bar = None; s.pa = False
class VQ:
    __slots__ = ('i', 'ready', 'dl', 'key')
    def __init__(s, i, ready, dl=None, key=None): s.i, s.ready, s.dl, s.key = i, ready, dl, key

def pair(acc, T, Bs, first, flip):
    gs = (1, 0) if flip else (0, 1)
    return [(acc.sub(8 * T + 4 * g, 4), Bs[g], 0 if first else acc.sub(8 * T + 4 * g, 4)) for g in gs]

def rd_w(T, kk, blockoff=0):
    def f(fr, st, k):
        out = []
        for e in range(2):
            off = blockoff + kk * 4 * PP + (T >> 1) * 64 + e * 512
            if st.dyn: reg, imm = (vD0, vD1)[T & 1], off
            else:
                ad = (k % 4) * SLOT + off
                reg, imm = vRW[ad >> 16][T & 1], ad & 0xffff
            out.append(ds_tr(fr.sub(2 * e, 2), reg, imm))
        return out
    return f
def rd_h(T, kk):
    def f(fr, st, k): return [ds_tr(fr.sub(2 * e, 2), vRH[T], kk * 2048 + e * 256) for e in range(2)]
    return f
KT = 8 * PP; VOFF = 2 * KT
def rd_k(pos, T, t):
    def f(fr, st, k):
        off = pos * KT + T * 4 * PP + t * 64
        if st.dyn: return [ds_b128(fr, vDK, off)]
        ad = (k % 4) * SLOT + off
        return [ds_b128(fr, vRK[ad >> 16], ad & 0xffff)]
    return f

def rd_wM(T, kk, blockoff=0):
    def f(fr, st, k):
        out = []
        for e in range(2):
            off = blockoff + kk * 2 * PP + e * 512
            if st.dyn: reg, imm = (vD0, vD1)[T], off
            else:
                ad = (k % 4) * SLOT + off
                reg, imm = vRW[ad >> 16][T], ad & 0xffff
            out.append(ds_tr(fr.sub(2 * e, 2), reg, imm))
        return out
    return f
def rd_hM(t):
    def f(fr, st, k): return [ds_tr(fr.sub(2 * e, 2), vRH[0], t * 1024 + e * 256) for e in range(2)]
    return f
def rd_kM(pos, t):
    def f(fr, st, k):
        assert st.dyn
        return [ds_b128(fr, (vDK, vDK1)[t & 1], pos * KT + (t >> 1) * 64)]
    return f

def m0_set(dyn, slot, wreg, extra):
    if dyn:
        assert extra == 0
        return salu('s_add_u32', 'm0', sWr, wreg)
    return salu('s_add_u32', 'm0', wreg, slot * SLOT + extra)
def dma_w(srd, sA, litA, pitch, sC=None, litC=None):
    def f(k, dyn):
        slot = k % 4; items = []
        for j in range(8):
            it = []
            if j % 4 == 0:
                it.append(m0_set(dyn, slot, sW8704, 0) if j == 0 else salu('s_add_u32', 'm0', 'm0', 4 * PP))
                it.append(salu('s_add_u32', sT, sA, litA + (j // 4) * 32 * pitch))
            it.append(dma(vOFFW[j % 4], srd, sT, (j % 4) * PP, tag=k))
            items.append(it)
        if sC is not None:
            items.append([m0_set(dyn, slot, sWC, 0), salu('s_add_u32', sT, sC, litC), dma(vOFFW[0], srd, sT, 0, tag=k)])
        return items
    return f
def dma_w192(srd, lit):
    def f(k, dyn):
        slot = k % 4; items = []
        for j in range(4):
            it = []
            if j == 0: it += [m0_set(dyn, slot, sW4352, 0), salu('s_add_u32', sT, sOA, lit)]
            it.append(dma(vOFFW[j], srd, sT, j * PP, tag=k)); items.append(it)
        for j in range(2):
            it = []
            if j == 0: it += [m0_set(dyn, slot, sWA2, 0), salu('s_add_u32', sT, sOB, lit)]
            it.append(dma(vOFFW[j], srd, sT, j * PP, tag=k)); items.append(it)
        return items
    return f
def dma_half(srd, pitch):
    def f(k, dyn):
        slot = k % 4; items = []
        for j in range(8):
            it = []
            if j % 4 == 0:
                it.append(m0_set(False, slot, sW8192, 0) if j == 0 else salu('s_add_u32', 'm0', 'm0', 4096))
            it.append(salu('s_add_u32', sT, sHH, j * 16 * pitch - (j % 4) * 1024))
            it.append(dma(vOFFH, srd, sT, (j % 4) * 1024, tag=k))
            items.append(it)
        items.append([m0_set(False, slot, sWCH, 0), dma(vOFFH, srd, sHHC, 0, tag=k)])
        return items
    return f
def dma_pa(ktiles, vpair):
    def f(k, dyn):
        slot = k % 4; items = []
        def m0(extra):
            if dyn: return salu('s_add_u32', 'm0', sWrW, extra)
            return salu('s_add_u32', 'm0', sW2176, slot * SLOT + extra)
        for (pos, sr_, lit) in ktiles:
            items.append([m0(pos * KT), salu('s_add_u32', sT, sr_, lit), dma(vOFFK, sK, sT, 0, tag=k)])
            items.append([salu('s_add_u32', 'm0', 'm0', 64), dma(vOFFK, sK, sT, 1024, tag=k)])
        if vpair is not None:
            sr_, lit = vpair
            for b in range(2):
                items.append([m0(VOFF + b * KT), salu('s_add_u32', sT, sr_, lit + b * 128), dma(vOFFW[0], sV, sT, 0, tag=k)])
                items.append([dma(vOFFW[1], sV, sT, PP, tag=k)])
        return items
    return f
def set_offw(pitch, mode):
    if mode is True: mode = 'pi'
    if mode is False: mode = 'S'
    swz = vSWZM if mode == 'M' else vSWZ
    out = [smov(sT2, pitch), valu('v_mad_u32_u24', vOFFW[0], vROWP if mode == 'pi' else vROWN, sT2, swz)]
    if mode == 'q16':
        for j, r in ((1, 16), (2, 8), (3, 24)): out.append(valu('v_add_u32', vOFFW[j], r * pitch - j * PP, vOFFW[0]))
        return out
    step = (4 if mode == 'pi' else 8) * pitch - PP
    if step < 0:
        out += [valu('v_mov_b32', vOFFW[1], vOFFW[0]), valu('v_add_u32', vOFFW[0], -step, vOFFW[0])]
    else:
        for j in range(1, 4): out.append(valu('v_add_u32', vOFFW[j], step, vOFFW[j - 1]))
    return out

class Role:
    def __init__(s, kind):
        s.kind = kind; s.p = Prog(); s.stages = []; s.stn = 0; s.q = []; s.q2 = []; s.tmpi = 0; s.pf = {}; s.regions = {}; s.phantoms = {}
    def tmp(s, n=1):
        r = v(TMP0 + s.tmpi, n); s.tmpi = (s.tmpi + n) % 16
        return r
    def push(s, items, G, dl, key=None, lag=1):
        for i in items: s.q.append(VQ(i, G + lag, dl))
        if key: s.q[-1].key = key
    def push_accw(s, acc, dst, G, dl, tail):
        it = [valu('v_accvgpr_write_b32', dst[4 * g + 2 * T + k], acc[8 * T + 4 * g + 2 * k]) for g in range(2) for T in range(2) for k in range(2)]
        if tail is None: s.push(it, G, dl, ('reg', dst.n))
        else:
            for i in it: s.q2.append(VQ(i, tail, dl))
            s.q2[-1].key = ('reg', dst.n)
    def epi_silu(s, acc, dst, G, dl, tail=None):
        items = []
        for g in range(2):
            for T in range(2):
                t = s.tmp(4); el = [(t[e], acc[8 * T + 4 * g + e]) for e in range(4)]
                for (tt, x) in el: items.append(valu('v_exp_f32', tt, x))
                for (tt, x) in el: items.append(valu('v_add_f32', tt, 1.0, tt))
                for (tt, x) in el: items.append(valu('v_rcp_f32', tt, tt))
                for (tt, x) in el: items.append(valu('v_mul_f32', tt, x, tt))
                for k in range(2): items.append(valu('v_cvt_pk_bf16_f32', acc[8 * T + 4 * g + 2 * k], t[2 * k], t[2 * k + 1]))
        s.push(items, G, ('tail', tail) if tail is not None else dl)
        s.push_accw(acc, dst, G, dl, tail)
    def epi_q(s, acc, dst, G, dl, tail=None):
        items = []
        for g in range(2):
            r = lambda T, e: acc[8 * T + 4 * g + e]
            for T in range(2):
                for e in range(4): items.append(valu('v_mul_f32', r(T, e), sLN0, r(T, e)))
            for T in range(2):
                for k in range(2): items.append(valu('v_cvt_pk_bf16_f32', r(T, 2 * k), r(T, 2 * k), r(T, 2 * k + 1)))
            for k in range(2): items.append(valu('v_permlane32_swap_b32', r(0, 2 * k), r(1, 2 * k), rmw=True, extra_wr=[r(1, 2 * k)]))
            for k in range(2): items.append(valu('v_permlane16_swap_b32', r(0, 2 * k), r(1, 2 * k), rmw=True, extra_wr=[r(1, 2 * k)]))
        s.push(items, G, ('tail', tail) if tail is not None else dl)
        s.push_accw(acc, dst, G, dl, tail)

    def add_p1_unit(s, uidx, srd, sA, sC, pitch, first, dst, epi, pre=None, last=False, key='P1', inreg=None):
        acc = ACC[uidx % 2]; TL = CFG.get('tail', 8)
        g0 = sum(len(st.mf) for st in s.stages)
        for b in range(2):
            mf = []
            order = [(kk, T) for kk in range(9) for T in range(4)]
            if b == 1:
                order = [(kk, T) for kk in range(9) for T in range(2)] + [(kk, T) for kk in range(9) for T in range(2, 4)]
            for (kk, T) in order:
                t = 9 * b + kk
                m = MF(pair(acc, T, [X(t, 0), X(t, 1)], t == 0, T & 1), rd_w(T, kk))
                if t == 0 and T % 2 == 0: m.need = [('acc', acc.n + 8 * T)]
                if t == 17 and T % 2 == 1:
                    h = T // 2
                    tail = None if last else g0 + 144 - TL
                    m.after = (lambda G, h=h, tail=tail: epi(acc.sub(16 * h, 16), dst.sub(8 * h, 8), G, ('acc', acc.n + 16 * h), tail))
                mf.append(m)
            def pre_(b=b):
                out = []
                if b == 0:
                    if pre: out += pre()
                    if not first: out += [salu('s_add_u32', sA, sA, 128), salu('s_add_u32', sC, sC, 128)]
                return out
            st = Stage(f"P1u{uidx}b{b}", mf, dma_w(srd, sA, b * 288 * pitch, pitch, sC, b * 288 * pitch), pre_dma=pre_ if (b == 0 and (pre or not first)) else None)
            s.stages.append(st)
        s.regions[g0] = ('begin', f"{key}{uidx % 2}")
        s.regions[g0 + 72 - TL] = ('end', None)
        s.stages[-1].mf[36 - TL].need.append(('tail', g0 + 72 - TL))
        if uidx == 0: s.phantoms[g0 + 72 - TL] = 16
        for j_, f_ in enumerate(inreg or []):
            if f_: s.pf.setdefault(len(s.stages) - 1 - j_, []).append(f_)
    def add_p1_half(s, uidx, dst):
        acc = ACC[uidx % 2]; mf = []
        for t in range(18):
            for T in range(2):
                m = MF(pair(acc, T, [X(t, 0), X(t, 1)], t == 0, T & 1), rd_h(T, t))
                if t == 0 and T == 0: m.need = [('acc', acc.n)]
                if t == 17 and T == 1: m.after = (lambda G: s.epi_silu(acc.sub(0, 16), dst, G, ('acc', acc.n)))
                mf.append(m)
        st = Stage("P1half", mf, dma_half(sW1, 9216)); st.half = True
        s.stages.append(st)

    def softmax_items(s, j, hd, G):
        S = Sreg[j % 2]; P = Preg[j % 2]; L = Lacc[hd % 2]
        A = []; Bq = []
        for g in range(2):
            for T in range(2):
                idx = [8 * T + 4 * g + e for e in range(4)]
                for i in idx: A.append(valu('v_exp_f32', S[i], S[i]))
                for k in range(2): A.append(valu('v_cvt_pk_bf16_f32', P[4 * g + 2 * T + k], S[idx[2 * k]], S[idx[2 * k + 1]]))
                adds = []
                for e, i in enumerate(idx if not CFG.get('msum') else []):
                    l = L[2 * g + (e & 1)]
                    if j == 0 and T == 0 and e < 2: adds.append(valu('v_mov_b32', l, S[i]))
                    else: adds.append(valu('v_add_f32', l, l, S[i]))
                if g == 1 and T == 1: Bq = adds
                else: A += adds
        s.push(A, G, ('P', hd, j))
        if Bq: s.push(Bq, G, ('S', hd, j))
    def finalize_items(s, hd, dst, G, dl):
        O = Oset[hd % 2]; L = Lacc[hd % 2]
        it = []
        inv = [v(FT0), v(FT0 + 1)]; t = [v(FT0 + 2), v(FT0 + 3)]
        if CFG.get('msum'):
            for g in range(2): it.append(valu('v_mov_b32', inv[g], LM[hd % 2][4 * g]))
        else:
            for g in range(2): it.append(valu('v_add_f32', inv[g], L[2 * g], L[2 * g + 1]))
        for op in (('v_permlane16_swap_b32', 'v_permlane32_swap_b32') if not CFG.get('msum') else ()):
            for g in range(2): it.append(valu('v_mov_b32', t[g], inv[g]))
            for g in range(2): it.append(valu(op, inv[g], t[g], rmw=True, extra_wr=[t[g]]))
            for g in range(2): it.append(valu('v_add_f32', inv[g], inv[g], t[g]))
        for g in range(2): it.append(valu('v_mov_b32', Lsave[2 * hd + g], inv[g]))
        for g in range(2): it.append(valu('v_rcp_f32', inv[g], inv[g]))
        k = 0
        for kk in range(4):
            for g in range(2):
                for T in range(2):
                    tt = v(FT0 + 4 + 4 * (k % 3), 4); k += 1
                    for e in range(4): it.append(valu('v_mul_f32', tt[e], O[8 * (2 * kk + T) + 4 * g + e], inv[g]))
                    for c in range(2): it.append(valu('v_cvt_pk_bf16_f32', tt[2 * c], tt[2 * c], tt[2 * c + 1]))
                    for c in range(2): it.append(valu('v_accvgpr_write_b32', dst[8 * kk + 4 * g + 2 * T + c], tt[2 * c]))
        s.push(it, G, dl)
    def qk(s, hd, j, Q, pos):
        mf = []; S = Sreg[j % 2]
        for t in range(4):
            for T in range(2):
                m = MF(pair(S, T, [Q.sub(8 * t, 4), Q.sub(8 * t + 4, 4)], t == 0, T & 1), rd_k(pos, T, t))
                if t == 0 and T == 0:
                    m.need = [('S', hd, j - 2) if j >= 2 else ('S', hd - 1, 14 + j)]
                    if j == 0: m.need += [('reg', Q.n + 8 * i) for i in range(4)]
                if t == 3 and T == 1: m.after = (lambda G, j=j, hd=hd: s.softmax_items(j, hd, G))
                mf.append(m)
        return mf
    def pv(s, hd, j, kk, Odst):
        mf = []; O = Oset[hd % 2]; P = Preg[j % 2]
        for tau in range(8):
            m = MF(pair(O, tau, [P.sub(0, 4), P.sub(4, 4)], j == 0, tau & 1), rd_w(tau % 4, kk, VOFF + (tau // 4) * KT))
            if tau == 0:
                m.need = [('P', hd, j)]
                if j == 0 and hd >= 1: m.need += [('fin', hd - 2)] + [('acc', 48 + 16 * i) for i in range(4)]
            if j == 15 and tau == 7: m.after = (lambda G, hd=hd: s.finalize_items(hd, Odst, G, ('fin', hd)))
            if CFG.get('msum') and tau in (2, 5):
                g_ = 0 if tau == 2 else 1
                Lm = LM[hd % 2].sub(4 * g_, 4)
                m.extra = mfma(Lm, vONES, P.sub(4 * g_, 4), 0 if j == 0 else Lm)
            mf.append(m)
        return mf
    def add_pa(s, Qs, Os):
        nh = len(Qs); dyn = CFG.get('pa_dyn', True)
        Msh = CFG['shape'] == 'M'
        qk, pv = (s.qkM, s.pvM) if Msh else (s.qk, s.pv)
        s.stages.append(Stage("PAmini", qk(0, 0, Qs[0], 0), dma_pa([(0, sKb[0], 0)], None), dyn=dyn, pre_dma=lambda: set_offw(256, 'M' if Msh else 'pi')))
        for hd in range(nh):
            for st in range(8):
                mf = qk(hd, 2 * st + 1, Qs[hd], 0) + pv(hd, 2 * st, 0, Os[hd])
                kt = [(0, sKb[hd], 8192)]
                if st < 7:
                    mf += qk(hd, 2 * st + 2, Qs[hd], 1); kt.append((1, sKb[hd], 16384))
                elif hd + 1 < nh:
                    mf += qk(hd + 1, 0, Qs[hd + 1], 1); kt.append((1, sKb[hd + 1], 0))
                mf += pv(hd, 2 * st + 1, 1, Os[hd])
                pre = None
                if st > 0: pre = (lambda hd=hd: [salu('s_add_u32', sKb[hd], sKb[hd], 16384), salu('s_add_u32', sVb[hd], sVb[hd], 16384)])
                x = Stage(f"PAh{hd}s{st}", mf, dma_pa(kt, (sVb[hd], 0)), dyn=dyn, mark=dyn, pre_dma=pre)
                x.pa = True
                s.stages.append(x)
        s.stages[-8 * nh - 1].pa = True
    def accwM(s, acc, dst, G, dl, tail):
        it = [valu('v_accvgpr_write_b32', dst[q], acc[2 * q]) for q in range(8)]
        if tail is None: s.push(it, G, dl, ('reg', dst.n), 2)
        else:
            for i in it: s.q2.append(VQ(i, tail, dl))
            s.q2[-1].key = ('reg', dst.n)
    def epi_siluM(s, acc, dst, G, dl, tail=None):
        items = []
        for j0 in (0, 4, 2, 6):
            t = s.tmp(4); el = [(t[e], acc[2 * j0 + e]) for e in range(4)]
            for (tt, x) in el: items.append(valu('v_exp_f32', tt, x))
            for (tt, x) in el: items.append(valu('v_add_f32', tt, 1.0, tt))
            for (tt, x) in el: items.append(valu('v_rcp_f32', tt, tt))
            for (tt, x) in el: items.append(valu('v_mul_f32', tt, x, tt))
            for k in range(2): items.append(valu('v_cvt_pk_bf16_f32', acc[2 * (j0 + k)], t[2 * k], t[2 * k + 1]))
            if j0 >= 4:
                sw = [valu('v_permlane16_swap_b32', acc[2 * (j0 - 4 + k)], acc[2 * (j0 + k)], rmw=True, extra_wr=[acc[2 * (j0 + k)]]) for k in range(2)]
                if j0 == 4: hold = sw
                else: items += hold + sw
        s.push(items, G, ('tail', tail) if tail is not None else dl, None, 2)
        s.accwM(acc, dst, G, dl, tail)
    def epi_qM(s, acc, dst, G, dl, tail=None):
        items = []
        for j0 in (0, 2, 4, 6):
            for e in range(4): items.append(valu('v_mul_f32', acc[2 * j0 + e], sLN0, acc[2 * j0 + e]))
            for k in range(2): items.append(valu('v_cvt_pk_bf16_f32', acc[2 * (j0 + k)], acc[2 * (j0 + k)], acc[2 * (j0 + k) + 1]))
        s.push(items, G, ('tail', tail) if tail is not None else dl, None, 2)
        s.accwM(acc, dst, G, dl, tail)
    def add_p1_unitM(s, uidx, srd, sA, sC, pitch, first, dst, epi, pre=None, last=False, key='P1', inreg=None):
        acc = ACC[uidx % 2]; TL = CFG.get('tail', 8)
        g0 = sum(len(st.mf) for st in s.stages)
        for b in range(2):
            mf = []
            for T in range(2):
                D = acc.sub(16 * T, 16)
                for kk in range(18):
                    t = 18 * b + kk
                    m = MF([(D, XM(t), 0 if t == 0 else D)], rd_wM(T, kk))
                    if t == 0: m.need = [('acc', D.n)]
                    if t == 35:
                        tail = None if last else g0 + 144 - TL
                        m.after = (lambda G, D=D, T=T, tail=tail: epi(D, dst.sub(8 * T, 8), G, ('acc', D.n), tail))
                    mf.append(m)
            def pre_(b=b):
                out = []
                if pre: out += pre()
                if not first: out += [salu('s_add_u32', sA, sA, 128), salu('s_add_u32', sC, sC, 128)]
                return out
            st = Stage(f"P1u{uidx}b{b}", mf, dma_w(srd, sA, b * 288 * pitch, pitch, sC, b * 288 * pitch), pre_dma=pre_ if (b == 0 and (pre or not first)) else None)
            s.stages.append(st)
        s.regions[g0] = ('begin', f"{key}{uidx % 2}")
        s.regions[g0 + 72 - TL] = ('end', None)
        s.stages[-1].mf[36 - TL].need.append(('tail', g0 + 72 - TL))
        if uidx == 0: s.phantoms[g0 + 72 - TL] = 16
        for j_, f_ in enumerate(inreg or []):
            if f_: s.pf.setdefault(len(s.stages) - 1 - j_, []).append(f_)
    def add_p1_halfM(s, uidx, dst):
        D = ACC[uidx % 2].sub(0, 16); mf = []
        for t in range(36):
            m = MF([(D, XM(t), 0 if t == 0 else D)], rd_hM(t))
            if t == 0: m.need = [('acc', D.n)]
            if t == 35: m.after = (lambda G: s.epi_siluM(D, dst, G, ('acc', D.n)))
            mf.append(m)
        st = Stage("P1half", mf, dma_half(sW1, 9216)); st.half = True
        s.stages.append(st)
    def softmaxM(s, j, hd, G):
        S = Sreg[j % 2]; P = Preg[j % 2]; L = Lacc[hd % 2]
        for u in range(2):
            items = []; adds = []
            for q0 in (0, 2):
                idx = [8 * u + 2 * q0 + e for e in range(4)]
                for i in idx: items.append(valu('v_exp_f32', S[i], S[i]))
                for k in range(2): items.append(valu('v_cvt_pk_bf16_f32', P[4 * u + q0 + k], S[idx[2 * k]], S[idx[2 * k + 1]]))
                a_ = [valu('v_mov_b32', L[e], S[i]) if (j == 0 and u == 0 and q0 == 0) else valu('v_add_f32', L[e], L[e], S[i]) for e, i in enumerate(idx)]
                if q0 == 0: items += a_
                else: adds = a_
            s.push(items, G, ('P', hd, j, u), None, 2); s.push(adds, G, ('S', hd, j), None, 2)
    def finalizeM(s, hd, dst, G, dl):
        O = Oset[hd % 2]; L = Lacc[hd % 2]
        t0, t1 = v(FT0), v(FT0 + 1)
        it = [valu('v_add_f32', L[0], L[0], L[1]), valu('v_add_f32', L[2], L[2], L[3]), valu('v_add_f32', t0, L[0], L[2]),
              valu('v_mov_b32', t1, t0), valu('v_permlane32_swap_b32', t0, t1, rmw=True, extra_wr=[t1]),
              valu('v_add_f32', Lsave[hd], t0, t1), valu('v_rcp_f32', t0, Lsave[hd])]
        for tau in range(4):
            A_ = O.sub(16 * tau, 16)
            for e in range(16): it.append(valu('v_mul_f32', A_[e], A_[e], t0))
            for q in range(8): it.append(valu('v_cvt_pk_bf16_f32', A_[2 * q], A_[2 * q], A_[2 * q + 1]))
            for q in range(4): it.append(valu('v_permlane16_swap_b32', A_[2 * q], A_[2 * q + 8], rmw=True, extra_wr=[A_[2 * q + 8]]))
            for q in range(8): it.append(valu('v_accvgpr_write_b32', dst[8 * tau + q], A_[2 * q]))
        s.push(it, G, dl, None, 2)
    def qkM(s, hd, j, Q, pos):
        mf = []; S = Sreg[j % 2]
        for t in range(8):
            m = MF([(S, Q.sub(4 * t, 4), 0 if t == 0 else S)], rd_kM(pos, t))
            if t == 0:
                m.need = [('S', hd, j - 2) if j >= 2 else ('S', hd - 1, 14 + j)]
                if j == 0: m.need += [('reg', Q.n + 8 * i) for i in range(4)]
            if t == 7: m.after = (lambda G, j=j, hd=hd: s.softmaxM(j, hd, G))
            mf.append(m)
        return mf
    def pvM(s, hd, j, kk, Odst):
        mf = []; O = Oset[hd % 2]; P = Preg[j % 2]
        for u in range(2):
            for tau in range(4):
                D = O.sub(16 * tau, 16)
                m = MF([(D, P.sub(4 * u, 4), 0 if (j == 0 and u == 0) else D)], rd_wM(tau % 2, 2 * kk + u, VOFF + (tau // 2) * KT))
                if tau == 0:
                    m.need = [('P', hd, j, u)]
                    if j == 0 and u == 0 and hd >= 1: m.need += [('fin', hd - 2)] + [('acc', 48 + 16 * i) for i in range(4)]
                if j == 15 and u == 1 and tau == 3: m.after = (lambda G, hd=hd: s.finalizeM(hd, Odst, G, ('fin', hd)))
                mf.append(m)
        return mf

    def p2_epi(s, h, G, sreg, c, lastg):
        acc = P2ACC.sub(16 * h, 16); pk = P2PK[h]; it = []
        for g in range(2):
            for T in range(2):
                for cc in range(2): it.append(valu('v_cvt_pk_bf16_f32', pk[4 * g + 2 * T + cc], acc[8 * T + 4 * g + 2 * cc], acc[8 * T + 4 * g + 2 * cc + 1]))
            st_ = bstore('buffer_store_dwordx4', pk.sub(4 * g, 4), vLANE16, sWS, sreg, h * 2048 + g * 1024, CFG['store_flags']); st_.tag = ('st', c)
            if not CFG.get('nostore'): it.append(st_)
        if h == 1: it.append(salu('s_add_u32', sreg, sreg, 4096))
        s.push(it, G, ('p2acc', h))
    def add_p2(s, gemms, bump, pre0=None):
        s.nst_chunk = 4 * len(gemms)
        for c in range(9):
            sub = 0
            for gi, (Bf, stage_rows, dmas, needs, sreg) in enumerate(gemms):
                nk = Bf.c // 8; k0 = 0
                for b, rows in enumerate(stage_rows):
                    n = rows // 32; mf = []
                    for h in range(2):
                        for kk in range(n):
                            t = k0 + kk
                            for T in (2 * h, 2 * h + 1):
                                m = MF(pair(P2ACC, T, [Bf.sub(8 * t, 4), Bf.sub(8 * t + 4, 4)], t == 0, T & 1), rd_w(T, kk))
                                if t == 0 and T % 2 == 0: m.need.append(('p2acc', h))
                                if c == 0 and T == 0 and needs.get(t): m.need += needs[t]
                                if t == nk - 1 and T % 2 == 1: m.after = (lambda G, h=h, sreg=sreg, c=c: s.p2_epi(h, G, sreg, c, None))
                                mf.append(m)
                    pre = (pre0 if c == 0 else (lambda: list(bump))) if sub == 0 else None
                    st = Stage(f"P2c{c}b{sub}", mf, dmas[b], dyn=True, mark=(sub == 0), pre_dma=pre)
                    st.chunk = c; st.sub = sub
                    s.stages.append(st); k0 += n; sub += 1

    def flush_need(s, need):
        if not need: return
        last = -1
        for k, it in enumerate(s.q):
            if it.dl in need or it.key in need: last = k
        for it in s.q[:last + 1]: s.p.emit(it.i); s.forced += it.i.units
        del s.q[:last + 1]
        last = -1
        for k, it in enumerate(s.q2):
            if it.dl in need or it.key in need: last = k
        for it in s.q2[:last + 1]: s.p.emit(it.i); s.forced += it.i.units
        del s.q2[:last + 1]
    def deadline(s, it, G):
        best = None
        for key in (it.dl, it.key):
            if key is None: continue
            for g in s.need_gap.get(key, ()):
                if g >= G:
                    if g >= it.ready and (best is None or g < best): best = g
                    break
        return best
    def fill(s, G, budget):
        p = s.p
        while s.q and budget > 0:
            h = s.q[0]
            if h.ready <= G and h.i.units <= budget + (1 if h.i.units == 3 else 0):
                it = s.q.pop(0)
                if CFG.get('latest') and ((it.i.kind == 'vstore' and any(x[-1].kind == 'dma' for x in s.side)) or
                                          (it.i.kind in ('salu', 'vstore') and any(x[-1].kind == 'vstore' and isinstance(x[-1].tag, tuple) for x in s.side))):
                    s.side.append([it.i]); continue
                p.emit(it.i); budget -= it.i.units
                continue
            if not CFG.get('ooo', True): break
            found = None; rd = set(); wr = set()
            for k, it in enumerate(s.q[:24]):
                if k and it.ready <= G and it.i.units == 1 and it.i.kind == 'valu' and not (it.i.rd & wr) and not (it.i.wr & (rd | wr)) \
                   and it.key is None and not p.would_pad(it.i):
                    found = k; break
                rd |= it.i.rd; wr |= it.i.wr
            if found is None: break
            it = s.q.pop(found); p.emit(it.i); budget -= 1
        return budget
    def run(s):
        p = s.p; D = getattr(s, 'depth', CFG['depth']); WE = CFG['wevery']
        flat = [(k, n, m) for k, st in enumerate(s.stages) for n, m in enumerate(st.mf)]
        N = len(flat)
        s.need_gap = {}
        for G, (k, n, m) in enumerate(flat):
            for x in m.need: s.need_gap.setdefault(x, []).append(G)
        def mkring(off0):
            fr = []; cur = None; g0 = 0
            for G, (k, n, m) in enumerate(flat):
                st = s.stages[k]
                spec = st.ring or s.ring
                if spec != cur: cur = spec; g0 = G - (off0 if len(spec) > 2 else 0)
                elif len(spec) > 2 and st.mark and n == 0: g0 = G
                fr.append(a(spec[0] + 4 * ((G - g0) % spec[1]), 4))
            ok = all(fr[G].n != fr[G2].n for G in range(N) for G2 in range(max(0, G - D), G))
            return fr, ok
        for off0 in range(16):
            fr_of, ok = mkring(off0)
            if ok: break
        assert ok
        dsidx = {}; side = []; s.side = side; s.forced = 0; dyn_started = [False]
        def open_stage(k):
            st = s.stages[k]
            if st.mark: p.emit(I(f"; MARK {st.name}", 'label', units=0, tag='mark'))
            p.emit(comment(st.name))
            if getattr(st, 'label', None): p.emit(label(st.label))
            for it in side: p.emit(it)
            side.clear()
            cover = getattr(st, 'cover_st', None)
            if cover is not None:
                assert sum(1 for t in p.vm if t == ('st', cover)) == s.nst_chunk, (st.name, cover)
            if not (CFG.get('nowait') and st.name.startswith('P2')): p.emit(waitvm(p.vm_wait_for(lambda t: t == k or (cover is not None and t == ('st', cover)) or (t is not None and t == getattr(st, 'cover_tag', None)))))
            if not (CFG.get('nobar') and st.name.startswith('P2')): p.emit(barrier())
            u = 2
            if CFG['stamps'] == 1 or (CFG['stamps'] == 2 and (k == 0 or st.name in ('P2c0b0', 'PAmini'))): s.stamp(k, CFG['stamps'] == 1)
            if st.dyn:
                first = [smov(sWr, sPrev), smov(sPrev, sRd), smov(sRd, sRdN)]
                if not dyn_started[0]:
                    dyn_started[0] = True
                    first = [smov(sWr, ((k - 2) % 4) * SLOT), smov(sPrev, ((k - 1) % 4) * SLOT), smov(sRd, (k % 4) * SLOT)]
                side.append(first[:2]); side.append(first[2:] + ([salu('s_add_u32', sWrW, sWr, sW2176)] if (k + 2 < len(s.stages) and s.stages[k + 2].pa) else []))
            if st.post_bar: side.append(st.post_bar())
            if k >= 1 and k + 2 < len(s.stages):
                nx = s.stages[k + 2]
                if nx.pre_dma: side.append(nx.pre_dma())
                side.extend(nx.dma(k + 2, st.dyn and nx.dyn))
            for f in s.pf.get(k, ()): side.append(f())
            if st.dyn and k + 1 < len(s.stages):
                side.insert(min(len(side), 5), [salu('s_add_u32', sRdN, sRd, SLOT), salu('s_cmp_lt_u32', None, sRdN, 4 * SLOT),
                                                salu('s_cselect_b32', sRdN, sRdN, 0, scc_w=False, scc_r=True)])
            return u
        def pre_switch(k):
            st = s.stages[k]; out = []
            if st.half: out += [valu('v_add_u32', vRH[T], (k % 4) * SLOT, vRH[T]) for T in range(1 if CFG['shape'] == 'M' else 2)]
            if st.dyn:
                for it in side: out += it
                side.clear()
                base = sRdN if dyn_started[0] else (k % 4) * SLOT
                if st.pa and CFG['shape'] == 'M':
                    out += [valu('v_add_u32', vD0, base, vRW[0][0]), valu('v_add_u32', vD1, base, vRW[0][1]),
                            valu('v_add_u32', vDK, base, vRKM[0]), valu('v_add_u32', vDK1, base, vRKM[1])]
                else:
                    out += [valu('v_add_u32', vD0, base, vDP), valu('v_xor_b32', vD1, 32, vD0)]
                    if st.pa: out.append(valu('v_add_u32', vDK, base, vRK[0]))
            return out
        def issue_reads(G):
            k, n, m = flat[G]; u = 0
            if n == 0: u += open_stage(k)
            r = m.reads(fr_of[G], s.stages[k], k)
            p.emit(r); dsidx[G] = p.ds
            return u + len(r)
        for G in range(min(D, N)): issue_reads(G)
        p.emit(waitlg(p.ds - dsidx[min(WE, N) - 1]))
        sidegap = 0
        for G in range(N):
            k, n, m = flat[G]
            s.flush_need(m.need)
            if m.pre: m.pre()
            big = len(m.m) == 1
            (D0, B0, C0) = m.m[0]
            cum = 0; boost = 0
            for it in s.q:
                cum += it.i.units
                g = s.deadline(it, G)
                if g is not None: boost = max(boost, cum / max(g - G, 1))
            p.emit(mfma(D0, fr_of[G], B0, C0))
            if G in s.regions:
                kind_, key_ = s.regions[G]
                p.emit(I(f"; REGION {kind_} {key_}", 'label', units=0, tag=('region', kind_, key_)))
            if G in s.phantoms:
                for _ in range(s.phantoms[G]): s.q2.insert(0, VQ(phantom(), G, None))
            wl = (G + 1) % WE == 0 and G + 1 < N
            if wl: p.emit(waitlg(p.ds - dsidx[min(G + WE, N - 1)]))
            u = 0
            if G + D < N:
                if flat[G + D][1] == 0: sidegap = 0
                u += issue_reads(G + D)
            used = 0
            if big:
                cap = 6; u += 1 if wl else 0
            else:
                cap = 2
                if u < 2:
                    b0 = 2 - u; used = b0 - s.fill(G, b0)
                (D1, B1, C1) = m.m[1]
                p.emit(mfma(D1, fr_of[G], B1, C1))
                u = 0
            if side and sidegap <= 0 and (not big or u <= 3):
                it = side.pop(0)
                tot = sum(x.units for x in it)
                if tot > (cap - u if big else 3) and len(it) > 1 and it[-1].kind in ('dma', 'vload', 'vstore'):
                    p.emit(it[:-1]); u += tot - it[-1].units; side.insert(0, [it[-1]])
                else:
                    p.emit(it); u += tot
                    if it[-1].kind in ('dma', 'vload'): sidegap = CFG['dmastep']
            sidegap -= 1
            if G + D + 1 < N and flat[G + D + 1][1] == 0:
                ps = pre_switch(flat[G + D + 1][0]); p.emit(ps); u += sum(x.units for x in ps)
            if m.after: m.after(G)
            budget = max(cap - u, 0)
            want = math.ceil(boost - used - 0.01) if boost > (CFG.get('boost_minM', 3.0) if big else CFG.get('boost_min', 1.4)) else 0
            budget = max(budget, want)
            n2 = 0
            while s.q2 and s.q2[0].ready <= G and n2 < 2:
                it = s.q2.pop(0); p.emit(it.i); n2 += 1; budget -= 1
            s.fill(G, max(budget, want - 1 if n2 else budget))
            if m.extra is not None:
                p.emit(m.extra); s.fill(G, 2)
            dg = CFG.get('diag', '')
            nm_ = s.stages[k].name
            if (dg == 'X' and s.kind == 'F' and nm_.startswith('P2')) or (dg == 'Y' and s.kind == 'A' and nm_.startswith('PA')) or (dg == 'W' and s.kind == 'A' and nm_.startswith('P2')):
                p.emit(nop(0)); p.emit(nop(0)); p.emit(nop(0))
            if dg == 'Z' and nm_.startswith('P2') and p.ins[-1].kind == 'mfma':
                p.emit(valu('v_exp_f32', v(200 + G % 8), v(112 + G % 32)))
            if p.ins[-1].kind == 'mfma' and not big:
                if CFG.get('splitr', True) and p.ins[-2].kind == 'ds' and p.ins[-3].kind == 'ds':
                    p.ins[-1], p.ins[-2] = p.ins[-2], p.ins[-1]
                else: p.emit(nop(0))
        for it in side: p.emit(it)
        if getattr(s, 'before_drain', None): s.before_drain()
        for it in s.q + s.q2: p.emit(it.i)
        s.q = []; s.q2 = []
    def stamp(s, k, run=False):
        p = s.p
        p.emit(raw(f"s_memtime {sSTAMP}", wr=[sSTAMP]))
        p.emit(raw("s_waitcnt lgkmcnt(0)"))
        p.emit(salu('s_sub_u32', s_(98), s_(98), s_(100)))
        if not run:
            p.emit(raw(f"v_writelane_b32 {vSTAMP}, s98, {k}", 'valu', wr=[vSTAMP], rd=[s_(98)]))
        else:
            p.emit(raw(f"v_cmp_eq_u32 vcc, s97, {vLANE16}", 'valu', wr=['vcc'], rd=[s_(97), vLANE16]))
            p.emit(valu('v_mov_b32', vDUM, s_(98)))
            p.emit(salu('s_add_u32', s_(97), s_(97), 16))
            p.emit(valu('v_cndmask_b32', vSTAMP, vSTAMP, vDUM, 'vcc'))
```

```python
import sys, re
from s1 import *

ROLE_TAB = [0, 1, 2, 11, 3, 4, 5, 12, 6, 7, 13, 14, 8, 9, 10, 15]
vPFR = v(36)
vPRG = v(36)
PART = 4 * PWAVE
NPART = 17
WSP_BYTES = NPART * 16 * PART
def PSTR(): return 16 * PART + (CFG.get('pskew', 0) if CFG['fused'] else 0)
STAMP_OFF = 0x3000000
CTRL = 0x2800000
OOB = 0x10000000

def srd(p, dst, lo, nbytes):
    p.emit([smov(dst[0], s(lo)), salu('s_and_b32', dst[1], s(lo + 1), 0xffff), smov(dst[2], nbytes), smov(dst[3], 0x20000)])
def xdma(j):
    return [salu('s_add_u32', 'm0', s(6), j * 4096), salu('s_add_u32', sT, s(7), j * 128)] + [dma(v(16 + q), sX, sT, q * 1024, tag=('x', j)) for q in range(4)]
def mul(d, a_, b_): return salu('s_mul_i32', d, a_, b_, scc_w=False)
def add(d, a_, b_): return salu('s_add_u32', d, a_, b_)
def shl(d, a_, b_): return salu('s_lshl_b32', d, a_, b_)
def shr(d, a_, b_): return salu('s_lshr_b32', d, a_, b_)
def csel(d, a_, b_): return salu('s_cselect_b32', d, a_, b_, scc_w=False, scc_r=True)

def common_prologue():
    if CFG.get('entry', 0) == 0: return common_prologue_old()
    assert CFG['xe'] == 9 and CFG.get('map', 4) == 4
    p = Prog(); E = p.emit
    E(raw("s_load_dwordx8 s[40:47], s[0:1], 0", wr=[s(40, 8)]))
    E(salu('s_cmp_ge_u32', None, s(2), 256))
    E(raw("s_cbranch_scc0 L_go")); E(raw("s_endpgm")); E(label("L_go"))
    if CFG['stamps']:
        E(raw(f"s_memtime {sT0}", wr=[sT0])); E(raw("s_memrealtime s[96:97]", wr=[s(96, 2)]))
    E(valu('v_lshrrev_b32', v(1), 6, v(0)))
    E(salu('s_and_b32', s(3), s(2), 1)); E(shl(s(3), s(3), 3))
    E(valu('v_readfirstlane_b32', sWAVE, v(1)))
    E(shr(sRB, s(2), 5)); E(salu('s_or_b32', sRB, sRB, s(3)))
    E(valu('v_and_b32', v(0), 63, v(0)))
    E(valu('v_lshrrev_b32', vROWN, 3, v(0)))
    E(valu('v_and_b32', v(20), 7, v(0))); E(valu('v_lshrrev_b32', v(21), 4, v(0)))
    E(valu('v_xor_b32', v(22), v(20), v(21))); E(valu('v_xor_b32', v(23), 4, v(22)))
    E(salu('s_movk_i32', s(3), 1152, scc_w=False)); E(valu('v_mul_u32_u24', v(24), s(3), vROWN))
    E(valu('v_lshl_add_u32', v(16), v(22), 4, v(24))); E(valu('v_lshl_add_u32', v(17), v(23), 4, v(24)))
    E(valu('v_add_u32', v(17), 8 * 1152 - 1024, v(17)))
    E(valu('v_add_u32', v(18), 2 * (8 * 1152 - 1024), v(16))); E(valu('v_add_u32', v(19), 2 * (8 * 1152 - 1024), v(17)))
    E(mul(s(6), sWAVE, XW)); E(raw("s_lshl2_add_u32 s7, s64, s62", 'salu', wr=[s(7)], rd=[sRB, sWAVE])); E(mul(sT, s(7), 32 * 1152))
    E(smov('m0', s(6))); E(add(s(7), sT, 9 * 128))
    E(smov(sX[2], 2359296)); E(smov(sX[3], 0x20000))
    E(raw("s_waitcnt lgkmcnt(0)"))
    E(smov(sX[0], s(40))); E(salu('s_and_b32', sX[1], s(41), 0xffff))
    E(label("L_xl"))
    n0 = len(p.vm)
    for q in range(4): E(dma(v(16 + q), sX, sT, q * 1024))
    del p.vm[n0:]
    for j in range(9): p.vm += [('x', j)] * 4
    E(add(sT, sT, 128)); E(add('m0', 'm0', 4096)); E(salu('s_cmp_lt_u32', None, sT, s(7))); E(raw("s_cbranch_scc1 L_xl"))
    return p
def common_prologue2(p):
    E = p.emit
    tab = ROLE_TAB
    lo = sum(tab[i] << (4 * i) for i in range(8)); hi = sum(tab[8 + i] << (4 * i) for i in range(8))
    E(salu('s_bfe_u32', s(3), s(2), (2 << 16) | 3)); E(salu('s_bfe_u32', s(4), s(2), (1 << 16) | 1))
    E(shl(s(4), s(4), 2)); E(salu('s_or_b32', s(3), s(3), s(4))); E(shl(s(3), s(3), 2))
    E(salu('s_bitcmp1_b32', None, s(2), 2))
    E(smov(s(4), lo)); E(csel(s(4), hi, s(4)))
    E(shr(s(4), s(4), s(3))); E(salu('s_and_b32', sROLE, s(4), 15))
    E(raw(f"s_getpc_b64 {sPC}", wr=[sPC])); E(label("L_pc"))
    E(smov(s(4), "L_roleA-L_pc")); E(smov(s(5), "L_roleA_end-L_pc-4"))
    E(salu('s_cmp_eq_u32', None, sROLE, 10)); E(csel(s(4), "L_roleM-L_pc", s(4))); E(csel(s(5), "L_roleM_end-L_pc-4", s(5)))
    E(salu('s_cmp_gt_u32', None, sROLE, 10)); E(csel(s(4), "L_roleF-L_pc", s(4))); E(csel(s(5), "L_roleF_end-L_pc-4", s(5)))
    n0 = CFG.get('code0', 16); NL = CFG.get('codelines', 24)
    if n0:
        E(mul(s(3), sWAVE, n0 * 128)); E(add(s(3), s(3), s(4)))
        E(valu('v_min_u32', v(2), n0 - 1, v(0))); E(valu('v_lshlrev_b32', v(2), 7, v(2))); E(valu('v_add_u32', v(2), s(3), v(2)))
        E(I(f"global_load_dword {vDUM}, v2, {sPC}", 'vload', wr=vDUM.regs(), rd=vr(2) + sPC.regs(), tag='pf'))
    E(salu('s_and_b32', s(3), sRB, 7)); E(shl(s(3), s(3), 2)); E(add(s(3), s(3), sWAVE))
    E(mul(s(3), s(3), NL * 128)); E(add(s(3), s(3), s(4)))
    E(valu('v_min_u32', v(2), NL - 1, v(0))); E(valu('v_lshlrev_b32', v(2), 7, v(2))); E(valu('v_add_u32', v(2), s(3), v(2)))
    E(valu('v_min_u32', v(3), s(5), v(2)))
    E(I(f"global_load_dword {vDUM}, v3, {sPC}", 'vload', wr=vDUM.regs(), rd=vr(3) + sPC.regs(), tag='pf'))
def common_prologue3(p):
    E = p.emit
    E(raw("s_load_dwordx2 s[48:49], s[0:1], 32", wr=[s(48, 2)]))
    E(raw("s_load_dwordx8 s[52:59], s[0:1], 48", wr=[s(52, 8)]))
    E(raw("s_load_dwordx2 s[50:51], s[0:1], 80", wr=[s(50, 2)]))
    srd(p, sK, 42, 8388608); srd(p, sV, 44, 8388608); srd(p, sWQ, 46, 4718592)
    E(mul(sW8704, sWAVE, 8 * PP)); E(mul(sWC, sWAVE, PP)); E(add(sWC, sWC, 32 * PP))
    E(shl(sW8192, sWAVE, 13)); E(shl(sWCH, sWAVE, 10)); E(add(sWCH, sWCH, 32768))
    E(mul(sW2176, sWAVE, 2 * PP)); E(mul(sW4352, sWAVE, 4 * PP)); E(add(sWA2, sW2176, 16 * PP))
    E(raw("s_waitcnt lgkmcnt(0)"))
    srd(p, sWO, 48, 4718592)
    srd(p, sW1, 52, 5308416); srd(p, sW2, 54, 5308416); srd(p, sWS, 50, 0x10000000 if (CFG['stamps'] or CFG['fused']) else WSP_BYTES)
    srd(p, sOUT, 56, 2359296); srd(p, sDBG, 58, 256)

def common_prologue_old():
    p = Prog(); E = p.emit
    E(salu('s_cmp_ge_u32', None, s(2), 256))
    E(raw("s_cbranch_scc0 L_go")); E(raw("s_endpgm")); E(label("L_go"))
    E(raw("s_load_dwordx8 s[40:47], s[0:1], 0", wr=[s(40, 8)]))
    E(raw("s_load_dwordx2 s[48:49], s[0:1], 32", wr=[s(48, 2)]))
    E(raw("s_load_dwordx8 s[52:59], s[0:1], 48", wr=[s(52, 8)]))
    E(raw("s_load_dwordx2 s[50:51], s[0:1], 80", wr=[s(50, 2)]))
    if CFG['stamps']:
        E(raw(f"s_memtime {sT0}", wr=[sT0])); E(raw("s_memrealtime s[96:97]", wr=[s(96, 2)]))
    tab = ROLE_TAB
    if CFG.get('map', 4) == 2:
        t2 = [0, 1, 2, 3, 4, 11, 5, 12, 6, 13, 7, 14, 8, 15, 9, 10]
        lo = sum(t2[i] << (4 * i) for i in range(8)); hi = sum(t2[8 + i] << (4 * i) for i in range(8))
        E(salu('s_bfe_u32', s(3), s(2), (1 << 16) | 3)); E(salu('s_and_b32', s(4), s(2), 3)); E(shl(s(4), s(4), 1)); E(salu('s_or_b32', s(3), s(3), s(4))); E(shl(s(3), s(3), 2))
        E(salu('s_bitcmp1_b32', None, s(2), 2)); E(smov(s(4), lo)); E(csel(s(4), hi, s(4)))
        E(shr(s(4), s(4), s(3))); E(salu('s_and_b32', sROLE, s(4), 15)); E(shr(sRB, s(2), 4))
    else:
        lo = sum(tab[i] << (4 * i) for i in range(8)); hi = sum(tab[8 + i] << (4 * i) for i in range(8))
        E(salu('s_bfe_u32', s(3), s(2), (2 << 16) | 3)); E(salu('s_bfe_u32', s(4), s(2), (1 << 16) | 1))
        E(shl(s(4), s(4), 2)); E(salu('s_or_b32', s(3), s(3), s(4))); E(shl(s(3), s(3), 2))
        E(salu('s_bitcmp1_b32', None, s(2), 2))
        E(smov(s(4), lo)); E(csel(s(4), hi, s(4)))
        E(shr(s(4), s(4), s(3))); E(salu('s_and_b32', sROLE, s(4), 15))
        E(salu('s_and_b32', s(3), s(2), 1)); E(shl(s(3), s(3), 3))
        E(shr(sRB, s(2), 5)); E(salu('s_or_b32', sRB, sRB, s(3)))
    E(valu('v_lshrrev_b32', v(1), 6, v(0)))
    E(valu('v_readfirstlane_b32', sWAVE, v(1)))
    E(valu('v_and_b32', v(0), 63, v(0)))
    E(valu('v_lshrrev_b32', vROWN, 3, v(0)))
    E(valu('v_and_b32', v(20), 7, v(0))); E(valu('v_lshrrev_b32', v(21), 4, v(0)))
    E(valu('v_xor_b32', v(22), v(20), v(21))); E(valu('v_xor_b32', v(23), 4, v(22)))
    E(smov(s(3), 1152)); E(valu('v_mul_u32_u24', v(24), s(3), vROWN))
    E(valu('v_lshl_add_u32', v(16), v(22), 4, v(24))); E(valu('v_lshl_add_u32', v(17), v(23), 4, v(24)))
    E(valu('v_add_u32', v(17), 8 * 1152 - 1024, v(17)))
    E(valu('v_add_u32', v(18), 2 * (8 * 1152 - 1024), v(16))); E(valu('v_add_u32', v(19), 2 * (8 * 1152 - 1024), v(17)))
    E(mul(s(6), sWAVE, XW))
    E(shl(s(7), sRB, 2)); E(add(s(7), s(7), sWAVE)); E(mul(s(7), s(7), 32 * 1152))
    E(raw(f"s_getpc_b64 {sPC}", wr=[sPC])); E(label("L_pc"))
    E(smov(s(4), "L_roleA-L_pc")); E(smov(s(5), "L_roleA_end-L_pc-4"))
    E(salu('s_cmp_eq_u32', None, sROLE, 10)); E(csel(s(4), "L_roleM-L_pc", s(4))); E(csel(s(5), "L_roleM_end-L_pc-4", s(5)))
    E(salu('s_cmp_gt_u32', None, sROLE, 10)); E(csel(s(4), "L_roleF-L_pc", s(4))); E(csel(s(5), "L_roleF_end-L_pc-4", s(5)))
    def code_pf():
        NL = CFG.get('codelines', 24)
        E(salu('s_and_b32', s(3), sRB, 7)); E(shl(s(3), s(3), 2)); E(add(s(3), s(3), sWAVE))
        E(mul(s(3), s(3), NL * 128)); E(add(s(3), s(3), s(4)))
        E(valu('v_min_u32', v(2), NL - 1, v(0))); E(valu('v_lshlrev_b32', v(2), 7, v(2))); E(valu('v_add_u32', v(2), s(3), v(2)))
        E(valu('v_min_u32', v(3), s(5), v(2)))
        E(I(f"global_load_dword {vDUM}, v3, {sPC}", 'vload', wr=vDUM.regs(), rd=vr(3) + sPC.regs(), tag='pf'))
    if CFG.get('codepf', 3) >= 3:
        n0 = CFG.get('code0', 16)
        if n0:
            E(mul(s(3), sWAVE, n0 * 128)); E(add(s(3), s(3), s(4)))
            E(valu('v_min_u32', v(2), n0 - 1, v(0))); E(valu('v_lshlrev_b32', v(2), 7, v(2))); E(valu('v_add_u32', v(2), s(3), v(2)))
            E(I(f"global_load_dword {vDUM}, v2, {sPC}", 'vload', wr=vDUM.regs(), rd=vr(2) + sPC.regs(), tag='pf'))
        code_pf()
    E(raw("s_waitcnt lgkmcnt(0)"))
    srd(p, sX, 40, 2359296)
    nx0 = CFG.get('tx', 2) if CFG.get('touch') else 0
    for j in range(nx0): E(xdma(j))
    if CFG.get('touch'):
        E(salu('s_cmp_gt_u32', None, sROLE, 10))
        E(raw("s_cselect_b64 s[60:61], s[52:53], s[46:47]", 'salu', wr=[s(60, 2)], rd=[s(52, 2), s(46, 2)]))
        E(raw("s_cselect_b64 s[66:67], s[54:55], s[48:49]", 'salu', wr=[s(66, 2)], rd=[s(54, 2), s(48, 2)]))
        E(salu('s_cmp_eq_u32', None, sWAVE, 1)); E(raw("s_cselect_b64 s[60:61], s[66:67], s[60:61]", 'salu', wr=[s(60, 2)], rd=[s(66, 2), s(60, 2)]))
        E(salu('s_cmp_eq_u32', None, sWAVE, 2)); E(raw("s_cselect_b64 s[60:61], s[42:43], s[60:61]", 'salu', wr=[s(60, 2)], rd=[s(42, 2), s(60, 2)]))
        E(salu('s_cmp_eq_u32', None, sWAVE, 3)); E(raw("s_cselect_b64 s[60:61], s[44:45], s[60:61]", 'salu', wr=[s(60, 2)], rd=[s(44, 2), s(60, 2)]))
        E(smov(s(3), 73728)); E(salu('s_cmp_ge_u32', None, sWAVE, 2)); E(csel(s(3), 131072, s(3)))
        E(valu('v_mul_u32_u24', v(2), s(3), v(0)))
        E(I(f"global_load_dword {vDUM}, v2, s[60:61]", 'vload', wr=vDUM.regs(), rd=vr(2) + sr(60, 2), tag='pf'))
    for j in range(nx0, CFG['xe']): E(xdma(j))
    if CFG.get('codepf', 3) == 1: code_pf()
    if CFG.get('codepf', 3) == 2:
        E(valu('v_mov_b32', v(46), v(3))); E(raw(f"s_mov_b64 s[100:101], {sPC}", 'salu', wr=[s(100, 2)], rd=[sPC]))
    srd(p, sK, 42, 8388608); srd(p, sV, 44, 8388608); srd(p, sWQ, 46, 4718592); srd(p, sWO, 48, 4718592)
    srd(p, sW1, 52, 5308416); srd(p, sW2, 54, 5308416); srd(p, sWS, 50, 0x10000000 if (CFG['stamps'] or CFG['fused']) else WSP_BYTES)
    srd(p, sOUT, 56, 2359296); srd(p, sDBG, 58, 256)
    E(mul(sW8704, sWAVE, 8 * PP)); E(mul(sWC, sWAVE, PP)); E(add(sWC, sWC, 32 * PP))
    E(shl(sW8192, sWAVE, 13)); E(shl(sWCH, sWAVE, 10)); E(add(sWCH, sWCH, 32768))
    E(mul(sW2176, sWAVE, 2 * PP)); E(mul(sW4352, sWAVE, 4 * PP)); E(add(sWA2, sW2176, 16 * PP))
    return p

def dispatch_text():
    return f""" s_cmp_gt_u32 {sROLE}, 10
 s_cbranch_scc1 L_roleF
 s_cmp_eq_u32 {sROLE}, 10
 s_getpc_b64 s[94:95]
L_pc2:
 s_cbranch_scc1 L_jM
 s_add_u32 s94, s94, L_roleA-L_pc2
 s_addc_u32 s95, s95, 0
 s_setpc_b64 s[94:95]
L_jM:
 s_add_u32 s94, s94, L_roleM-L_pc2
 s_addc_u32 s95, s95, 0
 s_setpc_b64 s[94:95]
"""

def pfload(srd_, base):
    ld = bload('buffer_load_dword', vDUM, vPF, srd_, base); ld.tag = 'pf'; return ld
def pf_lin(srd_, base_s, start, nbytes, nl=64):
    def f():
        return [valu('v_lshrrev_b32', vPF2, 16, vTID), valu('v_and_b32', vPF, 63, vTID), valu('v_min_u32', vPF, nl - 1, vPF),
                valu('v_mad_u32_u24', vPF, vPF2, nl, vPF), valu('v_lshlrev_b32', vPF, 7, vPF), valu('v_add_u32', vPF, start, vPF),
                valu('v_min_u32', vPF, nbytes - 128, vPF), pfload(srd_, base_s)]
    return f
def pf_run(srd_, base_s, nbytes, nl):
    def f():
        return [valu('v_min_u32', vPF, nbytes - 128, vPFR), valu('v_add_u32', vPFR, 64 * nl * 128, vPFR), pfload(srd_, base_s)]
    f.nl = nl
    return f
def vPFW(kind): return {'F': v(8), 'A': v(7), 'M': v(36)}[kind]
def pf_row(kind, srd_, step=128):
    def f():
        ld = bload('buffer_load_dword', vDUM, vPFW(kind), srd_, sPW); ld.tag = 'pf'
        return [add(sPW, sPW, step), ld]
    return f
def pf_row_setup(kind, pitch, nl, base, lit):
    r = vPFW(kind)
    return [valu('v_bfe_u32', vPF2, vTID, 16, 5), valu('v_and_b32', r, 63, vTID), valu('v_min_u32', r, nl - 1, r),
            valu('v_mad_u32_u24', r, vPF2, nl, r), smov(sT2, pitch), valu('v_mul_u32_u24', r, sT2, r), add(sPW, base, lit)]
def pf_code(la, lb, nl):
    def f():
        L = f"L_cp{pf_code.k}"; pf_code.k += 1
        ld = I(f"global_load_dword {vDUM}, {vPF}, {sPC}", 'vload', wr=vDUM.regs(), rd=vPF.regs() + sPC.regs(), units=3, tag='pf')
        return [raw(f"s_getpc_b64 {sPC}", 'salu', wr=[sPC]), label(L),
                salu('s_add_u32', sPC[0], sPC[0], f"{la}-{L}"), salu('s_addc_u32', sPC[1], sPC[1], 0, scc_r=True),
                valu('v_bfe_u32', vPF2, vTID, 16, 5), valu('v_and_b32', vPF, 63, vTID), valu('v_min_u32', vPF, nl - 1, vPF),
                valu('v_mad_u32_u24', vPF, vPF2, nl, vPF), valu('v_lshlrev_b32', vPF, 7, vPF), valu('v_min_u32', vPF, f"{lb}-{la}-4", vPF), ld]
    return f
pf_code.k = 0
def pf_sched(R, k0, srd_, base_s, nbytes, nl):
    per = 64 * nl * 128; k = k0
    for st in range(0, nbytes, per):
        R.pf.setdefault(k, []).append(pf_lin(srd_, base_s, st, nbytes, nl)); k += 1
    return k

def role_prologue(R, vm_before):
    p = R.p; E = p.emit; kind = R.kind
    p.vm = list(vm_before)
    MS = CFG['shape'] == 'M'
    def PS(k):
        if CFG['stamps'] == 1: R.stamp(k)
    PS(56)
    lane = v(0)
    E(shl(sT2, sRB, 2)); E(add(sT2, sT2, sWAVE)); E(shl(sT2, sT2, 16)); E(valu('v_or_b32', vTID, sT2, lane))
    if kind in 'AM':
        E(mul(sT3, sROLE, 3 * 256))
        E(mul(sQA, sWAVE, 64 * 8192)); E(add(sQA, sQA, sT3))
        E(shl(sQC, sWAVE, 16)); E(add(sQC, sQC, sT3)); E(add(sQC, sQC, 256 * 8192))
        E(shr(s(3), sWAVE, 1)); E(shl(s(3), s(3), 13)); E(salu('s_and_b32', s(4), sWAVE, 1)); E(shl(s(4), s(4), 11)); E(add(s(3), s(3), s(4)))
        E(salu('s_sub_u32', s(3), s(3), 64)); E(shl(s(4), sWAVE, 11))
        if MS: E(shl(s(3), sWAVE, 12))
        for e in range(3 if kind == 'A' else 2):
            E(mul(sT3, sROLE, 3)); E(add(sT3, sT3, e)); E(shr(sT3, sT3, 1)); E(shl(sT3, sT3, 19)); E(add(sT3, sT3, 1536 * 256))
            if e == 0: E(smov(sPFa, sT3))
            if e == (2 if kind == 'A' else 1): E(smov(sPFb, sT3))
            E(add(sKb[e], sT3, s(4))); E(add(sVb[e], sT3, s(3)))
        E(mul(sPFc, sROLE, 384 * 1152))
        if kind == 'A':
            E(mul(sOA, sWAVE, 32 * 1152)); E(add(sOA, sOA, sPFc))
            E(shr(s(3), sWAVE, 1)); E(shl(s(3), s(3), 2)); E(salu('s_and_b32', s(4), sWAVE, 1)); E(add(s(3), s(3), s(4)))
            E(mul(sOB, s(3), 8 * 1152)); E(add(sOB, sOB, sPFc)); E(add(sOB, sOB, 128 * 1152))
        else:
            E(mul(sOA, sWAVE, 64 * 1152)); E(add(sOA, sOA, sPFc))
    if kind in 'FM':
        if kind == 'F':
            E(salu('s_sub_u32', s(3), sROLE, 11)); E(mul(sPF1, s(3), 13 * 128)); E(shl(sPF1h, s(3), 6)); E(add(sPF1h, sPF1h, 69 * 128))
        else:
            E(smov(sPF1, f_fullcol(5) * 2)); E(smov(sPF1h, f_halfcol(5) * 2))
        E(mul(sHA, sWAVE, 64 * 9216)); E(add(sHA, sHA, sPF1))
        E(mul(sHC, sWAVE, 8 * 9216)); E(add(sHC, sHC, sPF1)); E(add(sHC, sHC, 256 * 9216))
        E(mul(sHH, sWAVE, 128 * 9216)); E(add(sHH, sHH, sPF1h))
        E(mul(sHHC, sWAVE, 16 * 9216)); E(add(sHHC, sHHC, sPF1h)); E(add(sHHC, sHHC, 512 * 9216))
        E(mul(sPF2, sPF1, 576)); E(mul(sPF2h, sPF1h, 576))
        E(mul(sFA, sWAVE, 64 * 1152)); E(add(sFA, sFA, sPF2))
        if MS:
            E(salu('s_and_b32', s(3), sWAVE, 1)); E(shl(s(3), s(3), 1)); E(shr(s(4), sWAVE, 1)); E(add(s(3), s(3), s(4))); E(mul(sFC, s(3), 8 * 1152))
        else: E(mul(sFC, sWAVE, 4 * 1152))
        E(add(sFS, sFC, sPF2h)); E(add(sFC, sFC, sPF2)); E(add(sFC, sFC, 256 * 1152))
    if CFG['pf'] >= 3:
        if kind in 'AM': E(mul(sT3, sROLE, 3 * 256))
        E(pf_row_setup(kind, 8192 if kind in 'AM' else 9216, 18, sT3 if kind in 'AM' else sPF1, 0))
        f_ = pf_row(kind, sWQ if kind in 'AM' else sW1)
        early_pf = [f_()[1]] + f_() + f_()
    E(add(sT3, sROLE, 1 if kind == 'F' else 0))
    E(mul(sSt, sT3, PSTR())); E(shl(sT3, sRB, 2)); E(add(sT3, sT3, sWAVE)); E(mul(sT3, sT3, PWAVE)); E(add(sSt, sSt, sT3))
    if kind == 'M': E(add(sSt2, sSt, PSTR()))
    if CFG['fused']:
        E(shl(sT2, sRB, 11)); E(add(sT2, sT2, CTRL))
        E(add(sT3, sROLE, 1 if kind == 'F' else 0)); E(shl(sT3, sT3, 2)); E(add(sT3, sT3, sT2))
        E(salu('s_cmp_eq_u32', None, sWAVE, 0)); E(csel(sT3, sT3, OOB)); E(csel(sT2, sT2, OOB))
        E(valu('v_and_b32', v(24), 15, lane)); E(valu('v_lshlrev_b32', v(25), 7, v(24))); E(valu('v_add_u32', v(25), 128, v(25)))
        E(raw("v_cmp_eq_u32 vcc, 0, v24", 'valu', wr=['vcc'], rd=[v(24)])); E(valu('v_cndmask_b32', v(25), v(25), 0, 'vcc') if False else raw("v_cndmask_b32 v25, v25, v24, vcc", 'valu', wr=[v(25)], rd=[v(25), v(24), 'vcc']))
        E(valu('v_lshrrev_b32', v(26), 4, lane)); E(valu('v_lshl_add_u32', v(25), v(26), 2, v(25))); E(valu('v_add_u32', v(25), sT3, v(25)))
        E(raw(f"s_mov_b64 vcc, {hex(0x07ff07ff if kind == 'M' else 0x7ff)}", 'salu', wr=['vcc'])); E(valu('v_mov_b32', vCT, OOB)); E(nop(1))
        E(raw(f"v_cndmask_b32 {vCT}, {vCT}, v25, vcc", 'valu', wr=[vCT], rd=[vCT, v(25), 'vcc']))
        E(valu('v_mov_b32', v(24), vCT))
        if kind == 'A':
            E(salu('s_cmp_eq_u32', None, sROLE, 0)); E(csel(sT2, sT2, OOB))
            E(valu('v_lshl_add_u32', v(25), lane, 2, sT2))
            E(raw("v_cmp_lt_u32 vcc, 16, v0", 'valu', wr=['vcc'], rd=[lane])); E(valu('v_cndmask_b32', v(24), v(24), v(25), 'vcc'))
        E(valu('v_mov_b32', v(25), 0))
        z = bstore('buffer_store_dword', v(25), v(24), sWS, 0, flags='sc1'); z.tag = 'zero'; E(z)
        E(shl(sT2, sRB, 4)); E(salu('s_cmp_eq_u32', None, sWAVE, 0)); E(csel(sT2, sT2, 256))
        E(valu('v_mov_b32', v(23), 256)); E(raw(f"v_writelane_b32 v23, {sT2}, 0", 'valu', wr=[v(23)], rd=[sT2, v(23)]))
    T_ = [v(24), v(25), v(26), v(27), v(28), v(29)]
    q, r, c4, rb1 = T_[0], T_[1], T_[2], T_[3]
    E(valu('v_lshrrev_b32', q, 4, lane)); E(valu('v_bfe_u32', r, lane, 2, 2)); E(valu('v_and_b32', c4, 3, lane)); E(valu('v_bfe_u32', rb1, lane, 3, 1))
    E(valu('v_and_b32', T_[4], 7, lane)); E(valu('v_bfe_u32', T_[5], lane, 4, 1)); E(valu('v_lshlrev_b32', T_[5], 1, T_[5]))
    E(valu('v_xor_b32', T_[4], T_[4], T_[5])); E(valu('v_lshlrev_b32', vSWZ, 4, T_[4]))
    E(valu('v_lshrrev_b32', T_[4], 5, lane)); E(valu('v_and_b32', T_[5], 3, vROWN)); E(valu('v_lshl_add_u32', vROWP, T_[4], 4, T_[5]))
    E(smov(sT2, PP)); E(valu('v_mul_u32_u24', T_[4], sT2, q)); E(valu('v_lshl_add_u32', T_[4], r, 7, T_[4]))
    E(valu('v_lshl_add_u32', T_[4], c4, 3, T_[4])); E(valu('v_lshl_add_u32', vRW[0][0], rb1, 5, T_[4]))
    E(valu('v_mov_b32', vDP, vRW[0][0]))
    if MS:
        E(valu('v_and_b32', T_[4], 7, lane)); E(valu('v_bfe_u32', T_[5], lane, 4, 1)); E(valu('v_lshlrev_b32', T_[5], 2, T_[5]))
        E(valu('v_xor_b32', T_[4], T_[4], T_[5])); E(valu('v_lshlrev_b32', vSWZM, 4, T_[4]))
        E(valu('v_bfe_u32', q, lane, 4, 1)); E(valu('v_lshlrev_b32', q, 5, q))
        E(valu('v_and_b32', T_[4], 1, lane)); E(valu('v_lshl_add_u32', q, T_[4], 4, q))
        E(valu('v_bfe_u32', T_[4], lane, 1, 1)); E(valu('v_lshl_add_u32', q, T_[4], 3, q))
        E(valu('v_lshrrev_b32', T_[5], 5, lane))
        E(smov(sT2, PP)); E(valu('v_mad_u32_u24', T_[4], T_[5], sT2, q)); E(valu('v_lshl_add_u32', T_[4], r, 7, T_[4]))
        E(valu('v_lshl_add_u32', vRW[0][0], rb1, 6, T_[4])); E(valu('v_xor_b32', rb1, 1, rb1)); E(valu('v_lshl_add_u32', vRW[0][1], rb1, 6, T_[4]))
        if kind in 'FM':
            E(valu('v_lshl_add_u32', vRH[0], T_[5], 9, q)); E(valu('v_lshl_add_u32', vRH[0], r, 6, vRH[0]))
            E(valu('v_lshlrev_b32', T_[4], 4, c4)); E(valu('v_lshrrev_b32', T_[5], 2, lane)); E(smov(sT2, 9216))
            E(valu('v_mad_u32_u24', vOFFH, T_[5], sT2, T_[4]))
        E(valu('v_lshrrev_b32', q, 4, lane))
    else:
        E(valu('v_xor_b32', vRW[0][1], 32, vRW[0][0]))
    for b in (1, 2):
        for T in range(2): E(valu('v_add_u32', vRW[b][T], 65536 * b, vRW[0][T]))
    if kind in 'FM' and not MS:
        E(valu('v_lshlrev_b32', T_[4], 9, q)); E(valu('v_lshl_add_u32', T_[4], r, 6, T_[4])); E(valu('v_lshl_add_u32', T_[4], c4, 3, T_[4]))
        E(valu('v_and_b32', T_[5], 1, q)); E(valu('v_lshl_add_u32', vRH[0], T_[5], 5, T_[4])); E(valu('v_xor_b32', vRH[1], 32, vRH[0]))
        E(valu('v_lshrrev_b32', T_[4], 5, lane)); E(valu('v_lshlrev_b32', T_[4], 1, T_[4])); E(valu('v_xor_b32', T_[4], T_[4], c4))
        E(valu('v_lshlrev_b32', T_[4], 4, T_[4])); E(valu('v_lshrrev_b32', T_[5], 2, lane)); E(smov(sT2, 9216))
        E(valu('v_mad_u32_u24', vOFFH, T_[5], sT2, T_[4]))
    if kind in 'AM':
        E(valu('v_and_b32', T_[4], 15, lane)); E(valu('v_xor_b32', T_[4], T_[4], q)); E(valu('v_lshlrev_b32', T_[4], 4, T_[4]))
        E(valu('v_lshl_add_u32', vOFFK, q, 8, T_[4]))
    E(set_offw(8192 if kind in 'AM' else 9216, 'M' if MS else 'S'))
    if MS:
        XA = [v(20), v(21), v(22), v(39)]
        E(valu('v_and_b32', T_[4], 31, lane)); E(valu('v_bfe_u32', T_[5], lane, 1, 3)); E(valu('v_lshrrev_b32', q, 5, lane)); E(valu('v_xor_b32', T_[5], T_[5], q))
        E(valu('v_lshlrev_b32', T_[4], 7, T_[4])); E(valu('v_add_u32', T_[4], s(6), T_[4]))
        E(valu('v_lshl_add_u32', XA[0], T_[5], 4, T_[4]))
        for tt in range(1, 4): E(valu('v_xor_b32', XA[tt], 32 * tt, XA[0]))
    else:
        E(valu('v_and_b32', T_[4], 15, lane)); E(valu('v_bfe_u32', T_[5], lane, 1, 3)); E(valu('v_xor_b32', T_[5], T_[5], q))
        E(valu('v_lshlrev_b32', T_[4], 7, T_[4])); E(valu('v_add_u32', T_[4], s(6), T_[4]))
        E(valu('v_lshl_add_u32', v(20), T_[5], 4, T_[4])); E(valu('v_xor_b32', v(21), 64, v(20)))
        if kind in 'AM':
            E(smov(sT2, PP)); E(valu('v_mul_u32_u24', v(22), sT2, r)); E(valu('v_lshl_add_u32', v(22), c4, 8, v(22)))
            E(valu('v_xor_b32', T_[4], q, c4)); E(valu('v_lshl_add_u32', v(22), T_[4], 4, v(22)))
    E(valu('v_lshlrev_b32', vLANE16, 4, lane))
    if CFG['stamps'] == 2: E(valu('v_mov_b32', vSTAMP, 0))
    SA = 28
    for i in range(8): E(valu('v_mov_b32', v(SA + i), 0))
    E(smov(sT2, 0x3f803f80))
    def stats(j):
        for tt in range(2):
            for g in range(2):
                for qd in range(4):
                    x = X(2 * j + tt, g)[qd]
                    E(valu('v_dot2c_f32_bf16', v(SA + 2 * g + (qd & 1)), sT2, x, rmw=True))
                    E(valu('v_dot2c_f32_bf16', v(SA + 4 + 2 * g + (qd & 1)), x, x, rmw=True))
    PS(57)
    for j in range(9):
        E(waitvm(p.vm_wait_for(lambda t: t == ('x', j))))
        if j == 0: PS(58)
        if MS:
            for tt in range(4): E(ds_b128(XM(4 * j + tt), XA[tt], j * 4096))
        else:
            for tt in range(2):
                for g in range(2): E(ds_b128(X(2 * j + tt, g), v(20 + tt), j * 4096 + g * 2048))
        if j + CFG['xe'] < 9: E(xdma(j + CFG['xe']))
        if CFG['pf'] >= 3 and CFG.get('epf', 1) == 1 and j == max(8 - CFG['xe'], 0): E(early_pf)
        if j >= 1:
            E(waitlg(4)); stats(j - 1)
    E(waitlg(0)); PS(59); E(barrier())
    if CFG.get('codepf', 3) == 2: E(I(f"global_load_dword {vDUM}, v46, s[100:101]", 'vload', wr=vDUM.regs(), rd=vr(46) + sr(100, 2), tag='pf'))
    if CFG['pf'] >= 3 and CFG.get('epf', 1) == 2: E(early_pf)
    pend = []
    for k in range(3):
        st = R.stages[k]
        if st.pre_dma: pend.append(st.pre_dma())
        pend += st.dma(k, False)
    d0 = CFG.get('d0', 9)
    for it in pend[:d0]: E(it)
    pend = pend[d0:]
    PS(60)
    stats(8)
    acc4 = [v(28), v(30), v(32), v(34)]
    for x in acc4: E(valu('v_add_f32', x, x, v(x.n + 1)))
    if MS:
        for b_ in (0, 2):
            E(valu('v_add_f32', acc4[b_], acc4[b_], acc4[b_ + 1]))
        for b_ in (0, 2): E(valu('v_mov_b32', acc4[b_ + 1], acc4[b_]))
    for op in (('v_permlane32_swap_b32',) if MS else ('v_permlane16_swap_b32', 'v_permlane32_swap_b32')):
        for x in acc4: E(valu('v_mov_b32', v(x.n + 1), x))
        for x in acc4: E(valu(op, x, v(x.n + 1), rmw=True, extra_wr=[v(x.n + 1)]))
        for x in acc4: E(valu('v_add_f32', x, x, v(x.n + 1)))
    for x in acc4: E(valu('v_mul_f32', x, f2u(1.0 / 576), x))
    for g in range(2): E(valu('v_fma_f32', acc4[2 + g], '-' + str(acc4[g]), acc4[g], acc4[2 + g]))
    for g in range(2): E(valu('v_max_f32', acc4[2 + g], 0, acc4[2 + g]))
    for g in range(2): E(valu('v_add_f32', acc4[2 + g], f2u(1e-5), acc4[2 + g]))
    for g in range(2): E(valu('v_rsq_f32', acc4[2 + g], acc4[2 + g]))
    for g in range(2): E(valu('v_mul_f32', acc4[2 + g], f2u(-LOG2E), acc4[2 + g]))
    for g in range(2): E(valu('v_mov_b32', v(20 + g), acc4[g]))
    for g in range(2): E(valu('v_mul_f32', acc4[g], '-' + str(acc4[g]), acc4[2 + g], extra_rd=[acc4[g]]))
    E(smov(sT2, 0xffff0000))
    if CFG.get('dotn'):
        cl = [v(29), v(31)]; ch = [v(33), v(35)]
        for g in range(2): E(valu('v_cvt_pk_bf16_f32', cl[g], acc4[2 + g], 0))
        for g in range(2): E(valu('v_lshlrev_b32', ch[g], 16, cl[g]))
        for g in range(2): E(valu('v_mul_f32', acc4[g], '-' + str(v(20 + g)), ch[g], extra_rd=[v(20 + g)]))
    PS(61)
    n = 0
    for t in range(18):
        for g in range(2):
            tps = [v(24, 2), v(26, 2), v(16, 2), v(18, 2)]
            x = X(t, g)
            if CFG.get('dotn'):
                for qd in range(4):
                    E(valu('v_dot2_f32_bf16', tps[qd][0], x[qd], cl[g], acc4[g])); E(valu('v_dot2_f32_bf16', tps[qd][1], x[qd], ch[g], acc4[g]))
            else:
                for qd in range(4):
                    E(valu('v_lshlrev_b32', tps[qd][0], 16, x[qd])); E(valu('v_and_b32', tps[qd][1], sT2, x[qd]))
                for qd in range(4): E(valu('v_pk_fma_f32', tps[qd], tps[qd], v(acc4[2 + g].n, 2), v(acc4[g].n, 2), mods='op_sel_hi:[1,0,0]'))
            for qd in range(4): E(valu('v_cvt_pk_bf16_f32', x[qd], tps[qd][0], tps[qd][1]))
            if pend and n % CFG.get('dn', 2) == 0: E(pend.pop(0))
            n += 1
    for it in pend: E(it)
    if CFG['fused']:
        E(valu('v_mov_b32', v(24), 1)); E(waitvm(p.vm_wait_for(lambda t: t == 'zero')))
        E(I(f"buffer_atomic_add v24, v23, {sDBG}, 0 offen sc1", 'vstore', rd=vr(23, 2) + sDBG.regs(), units=3, tag='init'))
    for _ in range(CFG.get('idle', 0)): E(raw("s_sleep 16"))
    PS(62)
    if kind in 'AM' and MS:
        ln, m_, key, t_ = v(16), v(17), v(18), v(19)
        E([valu('v_lshrrev_b32', ln, 4, vLANE16), valu('v_and_b32', key, 19, ln),
           valu('v_bfe_u32', t_, ln, 2, 1), valu('v_lshl_add_u32', key, t_, 3, key),
           valu('v_bfe_u32', t_, ln, 3, 1), valu('v_lshl_add_u32', key, t_, 2, key),
           valu('v_lshrrev_b32', m_, 2, key), smov(sT2, PP), valu('v_mul_u32_u24', m_, sT2, m_),
           valu('v_and_b32', key, 3, key), valu('v_lshl_add_u32', m_, key, 8, m_),
           valu('v_lshrrev_b32', t_, 5, ln), valu('v_xor_b32', t_, t_, key),
           valu('v_lshl_add_u32', vRKM[0], t_, 4, m_), valu('v_xor_b32', vRKM[1], 32, vRKM[0])])
    elif kind in 'AM':
        E(valu('v_mov_b32', vRK[0], v(22))); E(valu('v_add_u32', vRK[1], 65536, v(22))); E(valu('v_add_u32', vRK[2], 131072, v(22)))
    if CFG['stamps']: E(raw(f"v_writelane_b32 {vSTAMP}, s96, 55", 'valu', wr=[vSTAMP], rd=[s(96)])) if kind != 'A' else None
    if CFG['stamps']: E(smov(s(43), s(96)))
    nlr = {'F': 10, 'A': 11, 'M': 8}[kind]
    if kind != 'M': E([valu('v_lshrrev_b32', vPF2, 16, vTID), valu('v_and_b32', vPFR, 63, vTID), valu('v_min_u32', vPFR, nlr - 1, vPFR),
       valu('v_mad_u32_u24', vPFR, vPF2, nlr, vPFR), valu('v_lshlrev_b32', vPFR, 7, vPFR)])
    if CFG['stamps']: E(smov(s(97), 0))
    E(smov(sLN0, f2u(-1.0 / math.sqrt(128.0))))

def slow_check(R, heads, base2):
    def f():
        p = R.p; E = p.emit
        t = v(254); lo = v(255)
        E(valu('v_mov_b32', lo, f2u(2.0 ** -40))); E(smov(sT3, f2u(2.0 ** 40)))
        for (hd, Q, O) in heads:
            L = f"L_{R.kind}_slow{hd}"
            if CFG['shape'] == 'M':
                E(valu('v_med3_f32', t, Lsave[hd], sT3, lo))
                E(raw(f"v_cmp_neq_f32 vcc, {t}, {Lsave[hd]}", 'valu', wr=['vcc'], rd=[t, Lsave[hd]])); E(nop(4))
            else:
                E(valu('v_med3_f32', t, Lsave[2 * hd], sT3, lo))
                E(raw(f"v_cmp_neq_f32 s[98:99], {t}, {Lsave[2 * hd]}", 'valu', wr=[s(98, 2)], rd=[t, Lsave[2 * hd]]))
                E(valu('v_med3_f32', t, Lsave[2 * hd + 1], sT3, lo))
                E(raw(f"v_cmp_neq_f32 vcc, {t}, {Lsave[2 * hd + 1]}", 'valu', wr=['vcc'], rd=[t, Lsave[2 * hd + 1]])); E(nop(4))
                E(raw("s_or_b64 vcc, vcc, s[98:99]", 'salu', wr=['vcc'], rd=['vcc', s(98, 2)])); E(nop(1))
            if CFG.get('force_slow'): E(raw(f"s_mov_b64 vcc, -1", 'salu', wr=['vcc']))
            E(raw(f"s_cbranch_vccz {L}_ret"))
            E(raw(f"s_call_b64 {sRET}, {L}"))
            E(label(f"{L}_ret"))
            R.slow.append((slow_path if CFG['shape'] == 'M' else slow_pathS)(L, hd, Q, O, base2))
        E(nop(1))
    return f

def slow_path(L, hd, Q, Odst, b2):
    p = Prog(); E = p.emit
    O = v(48, 64); S = v(b2, 16); P = v(b2 + 16, 8); F = v(b2 + 24, 16)
    vK, vV, vM, vL, t0, t1 = [v(b2 + 40 + i) for i in range(6)]
    sB, sJ, sO = s(98), s(99), s(97)
    E(I(".p2align 2", 'label')); E(label(L))
    E(nop(7)); E(nop(7))
    E([valu('v_lshrrev_b32', t0, 4, vLANE16), valu('v_and_b32', vK, 19, t0), valu('v_bfe_u32', t1, t0, 2, 1), valu('v_lshl_add_u32', vK, t1, 3, vK),
       valu('v_bfe_u32', t1, t0, 3, 1), valu('v_lshl_add_u32', vK, t1, 2, vK), valu('v_lshrrev_b32', t1, 5, t0),
       valu('v_lshlrev_b32', vV, 1, vK), valu('v_lshl_add_u32', vV, t1, 11, vV),
       valu('v_lshlrev_b32', vK, 8, vK), valu('v_lshl_add_u32', vK, t1, 4, vK)])
    E([mul(sB, sROLE, 3), add(sB, sB, hd), shr(sB, sB, 1), shl(sB, sB, 19), add(sB, sB, 1536 * 256)])
    def qk():
        for half in range(2):
            for t in range(4): E(bload('buffer_load_dwordx4', F.sub(4 * t, 4), vK, sK, sO, (4 * half + t) * 32))
            E(waitvm(0))
            for t in range(4):
                tt = 4 * half + t
                E(mfma(S, F.sub(4 * t, 4), Q.sub(4 * tt, 4), 0 if tt == 0 else S))
            E(nop(7)); E(nop(7))
    E(valu('v_mov_b32', vM, 0xff800000)); E(smov(sJ, 0))
    E(label(L + "_a"))
    E(add(sO, sB, sJ)); qk()
    for i in range(0, 16, 2): E(valu('v_max3_f32', vM, vM, S[i], S[i + 1]))
    E(add(sJ, sJ, 8192)); E(salu('s_cmp_lt_u32', None, sJ, 16 * 8192)); E(raw(f"s_cbranch_scc1 {L}_a"))
    E(valu('v_mov_b32', t0, vM)); E(valu('v_permlane32_swap_b32', vM, t0, rmw=True, extra_wr=[t0])); E(valu('v_max_f32', vM, vM, t0))
    for i in range(64): E(valu('v_mov_b32', O[i], 0))
    E(valu('v_mov_b32', vL, 0)); E(smov(sJ, 0))
    E(label(L + "_b"))
    E(add(sO, sB, sJ)); qk()
    for i in range(16): E(valu('v_sub_f32', S[i], S[i], vM))
    for i in range(16): E(valu('v_exp_f32', S[i], S[i]))
    for i in range(16): E(valu('v_add_f32', vL, vL, S[i]))
    for q in range(8): E(valu('v_cvt_pk_bf16_f32', P[q], S[2 * q], S[2 * q + 1]))
    for u in range(2):
        for tp in range(2):
            for tq in range(2):
                for j in range(8):
                    E(bload('buffer_load_ushort', F[8 * (j & 1) + 4 * tq + j // 2], vV, sV, sO, j * 256 + (2 * tp + tq) * 64))
            E(waitvm(0))
            for i in range(8): E(valu('v_lshl_or_b32', F[i], F[8 + i], 16, F[i]))
            for tq in range(2):
                D_ = O.sub(16 * (2 * tp + tq), 16)
                E(mfma(D_, F.sub(4 * tq, 4), P.sub(4 * u, 4), D_))
            E(nop(7))
        if u == 0: E(add(sO, sO, 4096))
    E(add(sJ, sJ, 8192)); E(salu('s_cmp_lt_u32', None, sJ, 16 * 8192)); E(raw(f"s_cbranch_scc1 {L}_b"))
    E(nop(7)); E(nop(7))
    E(valu('v_mov_b32', t0, vL)); E(valu('v_permlane32_swap_b32', vL, t0, rmw=True, extra_wr=[t0])); E(valu('v_add_f32', vL, vL, t0))
    E(valu('v_rcp_f32', t0, vL))
    for tau in range(4):
        A_ = O.sub(16 * tau, 16)
        for e in range(16): E(valu('v_mul_f32', A_[e], A_[e], t0))
        for q in range(8): E(valu('v_cvt_pk_bf16_f32', A_[2 * q], A_[2 * q], A_[2 * q + 1]))
        for q in range(4): E(valu('v_permlane16_swap_b32', A_[2 * q], A_[2 * q + 8], rmw=True, extra_wr=[A_[2 * q + 8]]))
        for q in range(8): E(valu('v_accvgpr_write_b32', Odst[8 * tau + q], A_[2 * q]))
    E(nop(1)); E(raw(f"s_setpc_b64 {sRET}"))
    return p

def slow_pathS(L, hd, Q, Odst, b2):
    p = Prog(); E = p.emit
    O = v(48, 64); S = v(b2, 16); P = v(b2 + 16, 8); F = v(b2 + 24, 16)
    vK, vV, t0, t1 = [v(b2 + 40 + i) for i in range(4)]
    vM = [v(b2 + 44), v(b2 + 45)]; vL = [v(b2 + 46), v(b2 + 47)]
    sB, sJ, sO = s(98), s(99), s(97)
    E(I(".p2align 2", 'label')); E(label(L))
    E(nop(7)); E(nop(7))
    E([valu('v_lshrrev_b32', t0, 4, vLANE16), valu('v_and_b32', t1, 15, t0), valu('v_lshrrev_b32', t0, 4, t0),
       valu('v_lshlrev_b32', vK, 8, t1), valu('v_lshl_add_u32', vK, t0, 4, vK),
       valu('v_lshlrev_b32', vV, 1, t1), valu('v_lshl_add_u32', vV, t0, 10, vV)])
    E([mul(sB, sROLE, 3), add(sB, sB, hd), shr(sB, sB, 1), shl(sB, sB, 19), add(sB, sB, 1536 * 256)])
    def qk():
        for T in range(2):
            E(add(sO, sB, sJ)) if T == 0 else E(add(sO, sO, 4096))
            for t in range(4): E(bload('buffer_load_dwordx4', F.sub(4 * t, 4), vK, sK, sO, t * 64))
            E(waitvm(0))
            for t in range(4):
                for g_ in range(2):
                    D_ = S.sub(8 * T + 4 * g_, 4)
                    E(mfma(D_, F.sub(4 * t, 4), Q.sub(8 * t + 4 * g_, 4), 0 if t == 0 else D_))
            E(nop(7)); E(nop(3))
    def allq(x, op):
        for sw in ('v_permlane16_swap_b32', 'v_permlane32_swap_b32'):
            E(valu('v_mov_b32', t0, x)); E(valu(sw, x, t0, rmw=True, extra_wr=[t0])); E(valu(op, x, x, t0))
    for g_ in range(2): E(valu('v_mov_b32', vM[g_], 0xff800000))
    E(smov(sJ, 0))
    E(label(L + "_a"))
    qk()
    for T in range(2):
        for g_ in range(2):
            for i in (0, 2): E(valu('v_max3_f32', vM[g_], vM[g_], S[8 * T + 4 * g_ + i], S[8 * T + 4 * g_ + i + 1]))
    E(add(sJ, sJ, 8192)); E(salu('s_cmp_lt_u32', None, sJ, 16 * 8192)); E(raw(f"s_cbranch_scc1 {L}_a"))
    for g_ in range(2): allq(vM[g_], 'v_max_f32')
    for i in range(64): E(valu('v_mov_b32', O[i], 0))
    for g_ in range(2): E(valu('v_mov_b32', vL[g_], 0))
    E(smov(sJ, 0))
    E(label(L + "_b"))
    qk()
    for i in range(16): E(valu('v_sub_f32', S[i], S[i], vM[(i >> 2) & 1]))
    for i in range(16): E(valu('v_exp_f32', S[i], S[i]))
    for i in range(16): E(valu('v_add_f32', vL[(i >> 2) & 1], vL[(i >> 2) & 1], S[i]))
    for g_ in range(2):
        for T in range(2):
            for k in range(2): E(valu('v_cvt_pk_bf16_f32', P[4 * g_ + 2 * T + k], S[8 * T + 4 * g_ + 2 * k], S[8 * T + 4 * g_ + 2 * k + 1]))
    for tp in range(4):
        for jh in range(2):
            E(add(sO, sB, sJ)) if jh == 0 else E(add(sO, sO, 4096))
            for tq in range(2):
                for jl in range(4):
                    j = 4 * jh + jl
                    E(bload('buffer_load_ushort', F[8 * (j & 1) + 4 * tq + j // 2], vV, sV, sO, jl * 256 + (2 * tp + tq) * 32))
        E(waitvm(0))
        for i in range(8): E(valu('v_lshl_or_b32', F[i], F[8 + i], 16, F[i]))
        for tq in range(2):
            for g_ in range(2):
                D_ = O.sub(8 * (2 * tp + tq) + 4 * g_, 4)
                E(mfma(D_, F.sub(4 * tq, 4), P.sub(4 * g_, 4), D_))
        E(nop(7))
    E(add(sJ, sJ, 8192)); E(salu('s_cmp_lt_u32', None, sJ, 16 * 8192)); E(raw(f"s_cbranch_scc1 {L}_b"))
    E(nop(7)); E(nop(3))
    for g_ in range(2): allq(vL[g_], 'v_add_f32')
    for g_ in range(2): E(valu('v_rcp_f32', vL[g_], vL[g_]))
    for i in range(64): E(valu('v_mul_f32', O[i], O[i], vL[(i >> 2) & 1]))
    for kk in range(4):
        for g_ in range(2):
            for T in range(2):
                for c in range(2):
                    r = 8 * (2 * kk + T) + 4 * g_ + 2 * c
                    E(valu('v_cvt_pk_bf16_f32', O[r], O[r], O[r + 1])); E(valu('v_accvgpr_write_b32', Odst[8 * kk + 4 * g_ + 2 * T + c], O[r]))
    E(nop(1)); E(raw(f"s_setpc_b64 {sRET}"))
    return p

def add_signals(R):
    P2 = [k for k, st in enumerate(R.stages) if st.name.startswith('P2')]
    def sig(first):
        def f():
            out = [valu('v_add_u32', vPRG, 1, vPRG)]
            return out + [bstore('buffer_store_dword', vPRG, vCT, sWS, 0, flags='sc1')]
        return f
    def chain(stages, base):
        firsts = [k for k in stages if R.stages[k].sub == 0]
        for c in range(8):
            k = firsts[c + 1] + CFG.get('siglag', {}).get(R.kind, 2)
            if k > stages[-1]: break
            R.stages[k].cover_st = base + c; R.stages[k].post_bar = sig(c == 0)
    chain(P2, 0)
    R.stages[P2[0]].post_bar = lambda: [valu('v_mov_b32', vPRG, 0)]

LDSC = 4 * SLOT
sAB = s(72, 2); sRM = s(74, 2); sCD = s(76, 2)
sRS, sRF, sSP, sC, sI, sPB, sPART, sOK, sPAR, sXW, sPWv, sTO = s(78), s(79), s(71), s(80), s(81), s(82), s(47), s(40), s(41), s(59), s(3), s(58)
sIT = [s(42), s(44), s(45)]; sXP = [s(46), s(60), s(61)]
sRET2 = s(66, 2)
vP, vD, vA, vO, vXO, vL4, vDO, vLA, vIT, vLD, vSC = [v(16 + i) for i in range(11)]
vX4 = v(28)
def s64(op, d, *src, scc_r=False): return salu(op, d, *src, scc_r=scc_r)
sPV = s(85)
def red_setup(kind):
    o = [shl(sPB, sRB, 11), add(sPB, sPB, CTRL), salu('s_cmp_eq_u32', None, sWAVE, 0), csel(sT3, 0, OOB),
         valu('v_lshrrev_b32', vL4, 2, vLANE16), valu('v_add_u32', vL4, sT3, vL4),
         valu('v_mov_b32', vSC, OOB), add(sT2, sT3, 68), raw(f"v_writelane_b32 {vSC}, {sT2}, 0", 'valu', wr=[vSC], rd=[sT2, vSC]),
         valu('v_mov_b32', vS1, vSC), valu('v_min_u32', vL5, 17 * 16, vLANE16), valu('v_lshrrev_b32', vL5, 2, vL5), valu('v_add_u32', vL5, sT3, vL5),
         add(sT2, sT3, 252), raw(f"v_writelane_b32 {vSC}, {sT2}, 1", 'valu', wr=[vSC], rd=[sT2, vSC]),
         shl(sT2, sRB, 4), add(sT2, sT2, sT3), valu('v_mov_b32', vDO, 256), raw(f"v_writelane_b32 {vDO}, {sT2}, 0", 'valu', wr=[vDO], rd=[sT2, vDO])]
    if kind == 'A': o += [shl(sPV, sROLE, 7), add(sPV, sPV, 256), add(sPV, sPV, sPB)]
    return o
vS1, vL5 = v(29), v(30)
PRIV = [False]
def red_poll(shared=False):
    cnt = [valu('v_mov_b32', vD, 0), I(f"buffer_atomic_add {vD}, {vDO}, {sDBG}, 0 offen sc0 sc1", 'vload', wr=vD.regs(), rd=vD.regs() + vDO.regs() + sDBG.regs(), units=3)]
    if PRIV[0] and not shared:
        return [cnt, [bstore('buffer_store_dword', vS1, vS1, sWS, sPV, flags='sc1'), bload('buffer_load_dword', vP, vL5, sWS, sPV, flags='sc1')]]
    return [cnt, [bstore('buffer_store_dword', vSC, vSC, sWS, sPB, flags='sc1'), bload('buffer_load_dword', vP, vL4, sWS, sPB, flags='sc1')]]
vG = [v(28), v(29), v(30)]; vGA = v(31); vGP = v(27)
def l2pf_setup():
    return [valu('v_lshrrev_b32', vGP, 7, vLANE16), smov(sT2, PSTR()), valu('v_mul_lo_u32', vGA, vGP, sT2),
            valu('v_bfe_u32', vA, vLANE16, 4, 3), valu('v_lshl_add_u32', vGA, vA, 7, vGA), shl(sT2, sWAVE, 10), valu('v_add_u32', vGA, sT2, vGA),
            valu('v_lshlrev_b32', vGP, 2, vGP), valu('v_mov_b32', vA, OOB), smov(sT2, 68), raw(f"v_writelane_b32 {vA}, {sT2}, 0", 'valu', wr=[vA], rd=[vA, sT2])]
def l2pf_poll():
    st = bstore('buffer_store_dword', vA, vA, sWS, sPB, flags='sc1')
    out = [[st]]
    for i in range(3):
        ld = bload('buffer_load_dword', vG[i], vGP, sWS, sPB, 32 * i, flags='sc1'); ld.tag = 'gp'
        out.append([ld])
    return out
def l2pf_issue(R, dlt):
    out = [[add(sI, sROLE, dlt), salu('s_and_b32', sT2, sI, 3), shr(sC, sI, 2), shl(sT3, sRB, 2), add(sT2, sT2, sT3), mul(sSP, sT2, PWAVE),
            shl(sT3, sC, 12), add(sSP, sSP, sT3), valu('v_mov_b32', vO, OOB)]]
    for i in range(3):
        ld = bload('buffer_load_dword', vDUM, vG[i], sWS, sT2); ld.tag = 'pf'
        cmp_ = raw(f"v_cmp_lt_u32 vcc, {sC}, {vG[i]}", 'valu', wr=['vcc'], rd=[sC, vG[i]])
        pre = [cmp_]
        if i == 2: pre += [raw("s_and_b64 vcc, vcc, 0xff", 'salu', wr=['vcc'], rd=['vcc'])]
        out.append(pre + [add(sT2, sSP, 8 * i * PSTR()), valu('v_cndmask_b32', vG[i], vO, vGA, 'vcc'), ld])
    return out
def red_eval():
    o = [raw(f"v_cmp_ne_u32 vcc, 0, {vP}", 'valu', wr=['vcc'], rd=[vP]), nop(1),
         raw(f"s_lshr_b64 {sAB}, vcc, 18", 'salu', wr=[sAB], rd=['vcc']), salu('s_and_b32', sAB[1], sAB[1], 15), smov(sRS, 0), smov(sRF, 0)]
    for c in range(9):
        o += [raw(f"v_cmp_ge_u32 vcc, {c}, {vP}", 'valu', wr=['vcc'], rd=[vP]), nop(1),
              raw(f"s_and_b32 {sT2}, vcc_lo, 0x7ff", 'salu', wr=[sT2], rd=['vcc']), csel(sRS, sRS, 4 * (c + 1)),
              raw(f"s_and_b32 {sT2}, vcc_lo, 0x1f800", 'salu', wr=[sT2], rd=['vcc']), csel(sRF, sRF, 4 * (c + 1))]
    return o
def red_pub(par):
    return [shl(sT2, sRF, 8), salu('s_or_b32', sT2, sT2, sRS), shl(sT3, sTO, 16), salu('s_or_b32', sT2, sT2, sT3),
            valu('v_mov_b32', vIT, sT2), valu('v_mov_b32', vLA, par), raw(f"ds_write_b32 {vLA}, {vIT}", 'ds', rd=[vLA, vIT]), waitlg(0)]
def red_get(par):
    return [valu('v_mov_b32', vLA, par), raw(f"ds_read_b32 {vIT}, {vLA}", 'ds', wr=[vIT], rd=[vLA]), waitlg(0),
            valu('v_readfirstlane_b32', sT2, vIT), salu('s_and_b32', sRS, sT2, 255), salu('s_bfe_u32', sRF, sT2, (8 << 16) | 8), shr(sTO, sT2, 16)]
def red_early(p, n):
    E = p.emit
    E([smov(sRS, 0), smov(sRF, 0), smov(sOK, 0), smov(sTO, 0), smov(sPAR, LDSC + 4), nop(1)])
    E(salu('s_cmp_eq_u32', None, sWAVE, 0)); E(raw(f"s_cbranch_scc0 L_{n}_e2"))
    E(waitvm(p.vm_wait_for(lambda t: t == 'poll')))
    E(valu('v_readfirstlane_b32', sOK, vD))
    E(salu('s_cmp_ge_u32', None, sOK, 16)); E(raw(f"s_cbranch_scc0 L_{n}_e1"))
    E(red_eval())
    E(label(f"L_{n}_e1"))
    E(red_pub(LDSC))
    E(label(f"L_{n}_e2"))

def ld_part(L, ks, flags):
    out = []
    for k in ks:
        out.append([add(sT2, sPART, k * PSTR()), bload('buffer_load_dwordx4', v(L + 4 * k, 4), vLD, sWS, sT2, flags=flags)])
    return out
def ld_x(L, sXO_):
    if CFG.get('nox'): return [[valu('v_mov_b32', vA, OOB), bload('buffer_load_dwordx2', v(L + 68, 2), vA, sX, sXO_)], [bload('buffer_load_dwordx2', v(L + 70, 2), vA, sX, sXO_, 32)]]
    return [[bload('buffer_load_dwordx2', v(L + 68, 2), vXO, sX, sXO_)], [bload('buffer_load_dwordx2', v(L + 70, 2), vXO, sX, sXO_, 32)]]
RB_ = 48
sD0, sD1 = s(68), s(69)
def proc_sum(E, L, ks, after, loads):
    SA, FA, T = RB_, RB_ + 8, RB_ + 16
    issued = 0; ks = list(ks)
    E(smov(sT3, 0xffff0000))
    for j, k in enumerate(ks):
        if loads: E(loads.pop(0)); issued += 1
        E(waitvm(len(ks) - 1 - j + after + issued))
        acc = SA if k < 11 else FA
        for q in range(4):
            x = v(L + 4 * k + q)
            if k in (0, 11):
                E(valu('v_lshlrev_b32', v(acc + 2 * q), 16, x)); E(valu('v_and_b32', v(acc + 2 * q + 1), sT3, x))
            else:
                E(valu('v_dot2c_f32_bf16', v(acc + 2 * q), sD0, x, rmw=True)); E(valu('v_dot2c_f32_bf16', v(acc + 2 * q + 1), sD1, x, rmw=True))
    return issued
def proc_fin(E, L, sXO_, xwait, loads):
    SA, FA, T = RB_, RB_ + 8, RB_ + 16; XR = L + 68; issued = 0
    for e in range(8): E(valu('v_exp_f32', v(T + e), v(FA + e)))
    for e in range(8): E(valu('v_add_f32', v(T + e), 1.0, v(T + e)))
    while len(loads) > 1: E(loads.pop(0)); issued += 1
    for e in range(8): E(valu('v_rcp_f32', v(T + e), v(T + e)))
    for e in range(8): E(valu('v_mul_f32', v(FA + e), f2u(-math.log(2.0)), v(FA + e)))
    for e in range(8): E(valu('v_mul_f32', v(FA + e), v(FA + e), v(T + e)))
    while loads: E(loads.pop(0)); issued += 1
    if xwait is not None: E(waitvm(xwait + issued))
    for q in range(4):
        E(valu('v_lshlrev_b32', v(T + 2 * q), 16, v(XR + q))); E(valu('v_and_b32', v(T + 2 * q + 1), sT3, v(XR + q)))
    for e in range(8): E(valu('v_fma_f32', v(T + e), v(SA + e), v(FA + e), v(T + e)))
    for q in range(4): E(valu('v_cvt_pk_bf16_f32', v(XR + q), v(T + 2 * q), v(T + 2 * q + 1)))
    if CFG.get('out4', True):
        def dpp(d, src, bank): return I(f"v_mov_b32_dpp {d}, {src} row_ror:8 row_mask:0xf bank_mask:{bank}", 'perm', wr=d.regs(), rd=src.regs() + d.regs())
        for i in range(2): E(valu('v_permlane16_swap_b32', v(XR + i), v(XR + 2 + i), rmw=True, extra_wr=[v(XR + 2 + i)]))
        for i in range(2): E(valu('v_mov_b32', v(T + i), v(XR + i)))
        for i in range(2): E(dpp(v(XR + i), v(XR + 2 + i), '0xc'))
        for i in range(2): E(dpp(v(XR + 2 + i), v(T + i), '0x3'))
        E(bstore('buffer_store_dwordx4', v(XR, 4), vX4, sOUT, sXO_, flags=CFG.get('oflags', 'sc1')))
        E(valu('v_mov_b32', vO, OOB)); E(bstore('buffer_store_dword', vO, vO, sOUT, 0))
        return
    E(bstore('buffer_store_dwordx2', v(XR, 2), vXO, sOUT, sXO_)); E(bstore('buffer_store_dwordx2', v(XR + 2, 2), vXO, sOUT, sXO_, 32))
def proc_all(E, L, sXO_, pre, loads):
    loads = list(loads)
    n = proc_sum(E, L, range(NPART), 2 + pre, loads)
    proc_fin(E, L, sXO_, pre + n, loads)

def acc_part(E, L, k):
    acc = RB_ if k < 11 else RB_ + 8
    for q in range(4):
        x = v(L + 4 * k + q)
        if k in (0, 11):
            E(valu('v_lshlrev_b32', v(acc + 2 * q), 16, x)); E(valu('v_and_b32', v(acc + 2 * q + 1), sT3, x))
        else:
            E(valu('v_dot2c_f32_bf16', v(acc + 2 * q), sD0, x, rmw=True)); E(valu('v_dot2c_f32_bf16', v(acc + 2 * q + 1), sD1, x, rmw=True))
def stream(E, segs, hooks=None):
    W = CFG.get('rwin', 8); FL = CFG.get('fflags', 'sc1')
    seq = []
    for (L, sP, sX_, ks, wx, fin) in segs:
        if wx:
            for it in ld_x(L, sX_): seq.append((it, None))
        ks = list(ks)
        for j, k in enumerate(ks):
            it = [add(sT2, sP, k * PSTR()), bload('buffer_load_dwordx4', v(L + 4 * k, 4), vLD, sWS, sT2, flags=FL)]
            last = fin and j == len(ks) - 1
            seq.append((it, (lambda L=L, k=k, last=last, sX_=sX_: (acc_part(E, L, k), proc_fin(E, L, sX_, None, []) if last else None, last)[2])))
    E(smov(sT3, 0xffff0000))
    n = len(seq); issued = 0
    extra_at = []
    for c in range(n):
        while issued < min(n, c + W): E(seq[issued][0]); issued += 1
        if hooks and c in hooks:
            for _ in range(hooks[c](issued + sum(1 for e in extra_at))): extra_at.append(issued)
            E(smov(sT3, 0xffff0000))
        if seq[c][1] is None: continue
        E(waitvm(issued - 1 - c + sum(1 for e in extra_at if e > c)))
        if seq[c][1]():
            extra_at += [issued, issued]

def body_items(E, n, its, two, ni, ensure, refresh, done, ST, seg, final_flag, poll_hook, LATE, L0, L1, FOUR, sMID, offs, sPT):
    E(salu('s_min_u32', sT2, sRS, sRF)); E(salu('s_cmp_lt_u32', None, its[two - 1], sT2)); E(raw(f"s_cbranch_scc0 L_{n}_sl"))
    ST(its[0])
    hooks = {19 * two - CFG.get('pollat', 8): poll_hook}
    if LATE: hooks[CFG.get('flagat', 0)] = final_flag
    stream(E, [seg(0, L0), seg(1, L1)][:two], hooks)
    ST(51)
    E(raw(f"s_branch L_{n}_j"))
    E(label(f"L_{n}_sl"))
    if LATE: final_flag(0)
    for i in range(two):
        ensure(its[i], 1, 1)
        stream(E, [seg(i, L0)], {11: poll_hook} if i == two - 1 else None); done(its[i])
    E(label(f"L_{n}_j"))
    for i in range(two): done(its[i])
    if FOUR:
        E(salu('s_cmp_gt_u32', None, sMID, 35)); E(raw(f"s_cbranch_scc1 L_{n}_nm"))
        refresh(2)
        ensure(sMID, 1, 1); ST(sMID)
        E(offs(sMID, sXP[0]))
        stream(E, [seg(0, L1)], {13: poll_hook}); done(sMID)
        E(label(f"L_{n}_nm"))
    if ni == 3:
        assert not FOUR
        refresh(2)
        ensure(its[2], 1, 0); ST(its[2])
        E(salu('s_cmp_lt_u32', None, its[2], sRF)); E(raw(f"s_cbranch_scc1 L_{n}_f3"))
        stream(E, [seg(2, L0, range(11), True, False)], {6: poll_hook})
        refresh(0)
        ensure(its[2], 0, 1); ST(50)
        stream(E, [seg(2, L0, range(11, NPART), False, True)], {0: poll_hook.sh})
        E(raw(f"s_branch L_{n}_f4"))
        E(label(f"L_{n}_f3"))
        stream(E, [seg(2, L0)], {11: poll_hook.sh})
        E(label(f"L_{n}_f4"))
        done(its[2])


def reducer(kind):
    p = Prog(); E = p.emit; n = kind; FL = CFG.get('fflags', 'sc1')
    PRIV[0] = (kind == 'A')
    def ST(code):
        if CFG['stamps'] != 2: return
        E(raw(f"s_memtime {sSTAMP}", wr=[sSTAMP])); E(raw("s_waitcnt lgkmcnt(0)")); E(salu('s_sub_u32', s(98), s(98), s(100)))
        E(shl(s(98), s(98), 6)); E(salu('s_or_b32', s(98), s(98), code))
        E(add(s(97), s(97), 16)); E(salu('s_min_u32', s(97), s(97), 11 * 16))
        E(raw(f"v_cmp_eq_u32 vcc, s97, {vLANE16}", 'valu', wr=['vcc'], rd=[s(97), vLANE16])); E(valu('v_mov_b32', v(27), s(98)))
        E(valu('v_cndmask_b32', vSTAMP, vSTAMP, v(27), 'vcc'))
    def offs(item, sX_):
        return [salu('s_and_b32', sT2, item, 3), shr(sC, item, 2), shl(sT3, sRB, 2), add(sT2, sT2, sT3), mul(sPART, sT2, PWAVE), add(sX_, sPART, sXW),
                shl(sT3, sC, 12), add(sT3, sT3, sPWv), add(sPART, sPART, sT3), shl(sT3, sC, 7), add(sX_, sX_, sT3)]
    k_ = [0]
    def ensure(item, s_, f_):
        L = f"L_{n}_en{k_[0]}"; k_[0] += 1
        if s_ and f_: E(salu('s_min_u32', sT2, sRS, sRF)); r = sT2
        else: r = sRS if s_ else sRF
        E(salu('s_cmp_lt_u32', None, item, r)); E(raw(f"s_cbranch_scc1 {L}"))
        E(smov(sI, item)); E(smov(sC, (1 if s_ else 0) | (2 if f_ else 0)))
        E(raw(f"s_call_b64 {sRET2}, L_{n}_sync"))
        E(salu('s_cmp_eq_u32', None, sTO, 0)); E(raw(f"s_cbranch_scc0 L_{n}_fb"))
        E(label(L))
    def done(item): E(raw(f"s_bitset0_b64 {sRM}, {item}", 'salu', wr=[sRM], rd=[sRM, item]))
    E(label(f"L_{n}_red"))
    if CFG.get('rdelay'):
        if n == 'A': (E(waitvm(0)), E(barrier()), E(valu('v_mov_b32', vPRG, 9)), E(bstore('buffer_store_dword', vPRG, vCT, sWS, 0, flags='sc1')))
        for _ in range({'A': 30, 'M': 24, 'F': 14}[n]): E(raw("s_sleep 16"))
    E(red_get(LDSC))
    if CFG.get('rdelay'): E(smov(sRS, 36)); E(smov(sRF, 36))
    E(valu('v_lshrrev_b32', vO, 4, vLANE16)); E(valu('v_and_b32', vXO, 7, vO)); E(valu('v_lshlrev_b32', vLD, 4, vXO))
    E(smov(sT2, 1152)); E(valu('v_mul_u32_u24', vXO, sT2, vXO))
    E(valu('v_lshrrev_b32', vA, 3, vO)); E(valu('v_lshl_add_u32', vX4, vA, 4, vXO))
    E(valu('v_bfe_u32', vA, vO, 3, 2)); E(valu('v_lshl_add_u32', vXO, vA, 3, vXO)); E(valu('v_lshl_add_u32', vLD, vA, 8, vLD))
    E(valu('v_lshrrev_b32', vA, 5, vO)); E(valu('v_lshl_add_u32', vXO, vA, 6, vXO)); E(valu('v_lshl_add_u32', vLD, vA, 11, vLD))
    E(mul(sXW, sWAVE, 8 * 1152)); E(shr(sPWv, sWAVE, 1)); E(shl(sPWv, sPWv, 10)); E(salu('s_and_b32', sT2, sWAVE, 1)); E(shl(sT2, sT2, 7)); E(add(sPWv, sPWv, sT2))
    L0, L1 = 72, 144
    E(smov(sD0, 0x3f80)); E(smov(sD1, 0x3f800000))
    E(raw(f"s_mov_b64 {sRM}, 0", 'salu', wr=[sRM]))
    FOUR = CFG.get('four')
    sMID = s(48 + 0) if False else s(83)
    def nib(dst, tab, base):
        E(smov(sCD[0], sum(tab[i] << (4 * i) for i in range(8)))); E(smov(sCD[1], tab[8] | (tab[9] << 4)))
        E(shl(sT2, sROLE, 2)); E(s64('s_lshr_b64', sCD, sCD, sT2)); E(salu('s_and_b32', dst, sCD[0], 15))
        E(salu('s_cmp_eq_u32', None, dst, 15)); E(csel(dst, 63 - base, dst)); E(add(dst, dst, base))
    if n == 'A':
        E(smov(sIT[0], sROLE)); E(add(sIT[1], sROLE, 10))
        if FOUR:
            nib(sMID, [0, 15, 1, 2, 15, 3, 4, 5, 6, 7], 20); nib(sIT[2], [0, 1, 15, 2, 3, 15, 4, 5, 6, 7], 28)
            E(raw(f"s_bitset1_b64 {sRM}, {sMID}", 'salu', wr=[sRM], rd=[sRM, sMID]))
        else:
            nib(sIT[2], [0, 1, 15, 2, 3, 15, 4, 5, 6, 7], 28)
            E(salu('s_cmp_eq_u32', None, sROLE, 2)); E(csel(sIT[2], 22, sIT[2])); E(salu('s_cmp_eq_u32', None, sROLE, 5)); E(csel(sIT[2], 21, sIT[2]))
        its = sIT
    elif n == 'M': E(smov(sIT[0], 20)); its = sIT[:1]
    else:
        E(add(sIT[0], sROLE, 12)); its = sIT[:1]
    if FOUR and n != 'A':
        its = []
        E(waitvm(0)); E(red_poll()[1]); E(waitvm(0)); E(raw(f"s_branch L_{n}_fin"))
    for it in its: E(raw(f"s_bitset1_b64 {sRM}, {it}", 'salu', wr=[sRM], rd=[sRM, it]))
    E(salu('s_and_b32', sRM[1], sRM[1], 15))
    def refresh(wait):
        L = f"L_{n}_rf{k_[0]}"; k_[0] += 1
        E(salu('s_cmp_eq_u32', None, sWAVE, 0)); E(raw(f"s_cbranch_scc0 {L}"))
        E(waitvm(wait)); E(red_eval()); E(red_pub(sPAR))
        E(label(L)); E(barrier()); E(red_get(sPAR)); E(salu('s_xor_b32', sPAR, sPAR, 12))
    ALLD = lambda L, sx: ld_part(L, range(NPART), FL) + ld_x(L, sx)
    LATE = n in CFG.get('lateflag', 'A')
    sPT = [s(47), s(67 - 2), s(70)]
    def offs2(i): return offs(its[i], sXP[i]) + ([smov(sPT[i], sPART)] if i else [])
    def final_flag(wait):
        E(waitvm(wait)); E(barrier())
        E(valu('v_mov_b32', vPRG, 9)); E(bstore('buffer_store_dword', vPRG, vCT, sWS, 0, flags='sc1'))
        return 1
    def poll_hook(_): E(red_poll()[1]); return 2
    def poll_sh(_): E(red_poll(True)[1]); return 2
    poll_hook.sh = poll_sh
    seg = lambda i, L, ks=range(NPART), wx=True, fin=True: (L, sPT[i], sXP[i], ks, wx, fin)
    ni = len(its)
    for i in reversed(range(ni)): E(offs2(i))
    two = min(ni, 2)
    if ni: body_items(E, n, its, two, ni, ensure, refresh, done, ST, seg, final_flag, poll_hook, LATE, L0, L1, FOUR, sMID, offs, sPT)
    E(label(f"L_{n}_fin"))
    E(salu('s_cmp_eq_u32', None, sWAVE, 0)); E(raw(f"s_cbranch_scc0 L_{n}_b4"))
    E(waitvm(2))
    E(raw(f"v_cmp_ne_u32 vcc, 0, {vP}", 'valu', wr=['vcc'], rd=[vP])); E(nop(1))
    E(raw(f"s_lshr_b64 {sAB}, vcc, 18", 'salu', wr=[sAB], rd=['vcc'])); E(salu('s_and_b32', sAB[1], sAB[1], 15))
    E(salu('s_or_b32', sT2, sAB[0], sAB[1])); E(csel(sTO, 1, 0))
    E(salu('s_cmp_ge_u32', None, sOK, 16)); E(csel(sTO, sTO, 1)); E(red_pub(sPAR))
    E(label(f"L_{n}_b4")); E(barrier()); E(red_get(sPAR)); E(salu('s_xor_b32', sPAR, sPAR, 12))
    E(salu('s_cmp_eq_u32', None, sTO, 0)); E(raw(f"s_cbranch_scc1 L_{n}_exit"))
    E(label(f"L_{n}_fb"))
    E(waitvm(0))
    E(salu('s_cmp_eq_u32', None, sWAVE, 0)); E(raw(f"s_cbranch_scc0 L_{n}_fb2"))
    E(s64('s_lshl_b64', sCD, sRM, 18)); E(valu('v_mov_b32', vO, OOB)); E(valu('v_mov_b32', vA, 1))
    E(valu('v_cndmask_b32', vO, vO, vL4, sCD)); E(bstore('buffer_store_dword', vA, vO, sWS, sPB, flags='sc1')); E(waitvm(0))
    E(red_poll()[0]); E(waitvm(0)); E(red_poll(True)[1]); E(waitvm(0)); E(valu('v_readfirstlane_b32', sOK, vD)); E(red_eval())
    E(salu('s_min_u32', sT2, sRS, sRF)); E(salu('s_cmp_ge_u32', None, sOK, 16)); E(csel(sT2, sT2, 0))
    E(salu('s_bfm_b64', sCD, sT2, 0, scc_w=False)); E(s64('s_or_b64', sAB, sAB, sRM)); E(s64('s_and_b64', sAB, sAB, sCD))
    E(label(f"L_{n}_fb1"))
    E(raw(f"s_ff1_i32_b64 {sRS}, {sAB}", 'salu', wr=[sRS], rd=[sAB])); E(salu('s_and_b32', sRS, sRS, 255))
    E(raw(f"s_bitset0_b64 {sAB}, {sRS}", 'salu', wr=[sAB], rd=[sAB, sRS])); E(red_pub(sPAR))
    E(label(f"L_{n}_fb2")); E(barrier()); E(red_get(sPAR)); E(salu('s_xor_b32', sPAR, sPAR, 12))
    E(salu('s_cmp_ge_u32', None, sRS, 36)); E(raw(f"s_cbranch_scc1 L_{n}_exit"))
    E(offs(sRS, sXP[0])); E(ld_part(L0, range(NPART), FL) + ld_x(L0, sXP[0])); E(waitvm(0)); proc_all(E, L0, sXP[0], 0, [])
    E(salu('s_cmp_eq_u32', None, sWAVE, 0)); E(raw(f"s_cbranch_scc1 L_{n}_fb1")); E(raw(f"s_branch L_{n}_fb2"))
    E(label(f"L_{n}_exit"))
    ST(60)
    if CFG['stamps']: E(raw(f"s_setpc_b64 {sRET}"))
    else: E(raw("s_endpgm"))
    E(label(f"L_{n}_sync"))
    E(salu('s_cmp_eq_u32', None, sWAVE, 0)); E(raw(f"s_cbranch_scc0 L_{n}_sy2"))
    E(smov(sSP, 0)); E(red_poll()[1][0])
    E(label(f"L_{n}_sy0"))
    E(salu('s_cmp_ge_u32', None, sOK, 16)); E(raw(f"s_cbranch_scc1 L_{n}_sy1"))
    E(red_poll()[0]); E(waitvm(0)); E(valu('v_readfirstlane_b32', sOK, vD))
    E(salu('s_cmp_ge_u32', None, sOK, 16)); E(raw(f"s_cbranch_scc0 L_{n}_syw"))
    E(label(f"L_{n}_sy1"))
    E(red_poll()[1][1]); E(red_poll()[1][0]); E(waitvm(1)); E(red_eval())
    E(salu('s_bitcmp1_b32', None, sC, 0)); E(csel(sT2, sRS, 36)); E(salu('s_bitcmp1_b32', None, sC, 1)); E(csel(sT3, sRF, 36))
    E(salu('s_min_u32', sT2, sT2, sT3)); E(salu('s_cmp_lt_u32', None, sI, sT2)); E(raw(f"s_cbranch_scc1 L_{n}_syp"))
    E(label(f"L_{n}_syw"))
    E(add(sSP, sSP, 1)); E(salu('s_cmp_gt_u32', None, sSP, CFG.get('spin', 4000))); E(csel(sTO, 1, 0)); E(raw(f"s_cbranch_scc1 L_{n}_syp"))
    E(raw(f"s_sleep {CFG.get('sleep', 1)}")); E(raw(f"s_branch L_{n}_sy0"))
    E(label(f"L_{n}_syp"))
    E(red_pub(sPAR))
    E(label(f"L_{n}_sy2")); E(barrier()); E(red_get(sPAR)); E(salu('s_xor_b32', sPAR, sPAR, 12))
    E(raw(f"s_setpc_b64 {sRET2}"))
    return p

def reduce_items(p, ni, sPART_, sXO_, srdP, srdX, srdO, vL16, vXO_, base, flags, mid=None):
    E = p.emit
    SA = base; FA = base + 8; T = base + 16
    Ls = [base + 24 + 72 * i for i in range(ni)]
    for k in range(NPART):
        if k: E(add(sPART_, sPART_, 16 * PART - (PWAVE if ni == 2 else 0)))
        for i in range(ni):
            if i: E(add(sPART_, sPART_, PWAVE))
            E(bload('buffer_load_dwordx4', v(Ls[i] + 4 * k, 4), vL16, srdP, sPART_, flags=flags))
    for i in range(ni):
        XR = Ls[i] + 68
        if i: E(add(sT2, sXO_, 32 * 1152))
        so = sT2 if i else sXO_
        E(bload('buffer_load_dwordx2', v(XR, 2), vXO_, srdX, so)); E(bload('buffer_load_dwordx2', v(XR + 2, 2), vXO_, srdX, so, 32))
    ex = 0
    if mid: mid(); ex = 1
    E(smov(sT3, 0xffff0000))
    for i in range(ni):
        L = Ls[i]; XR = L + 68
        for k in range(NPART):
            if i == 0: E(waitvm((NPART - 1 - k) * ni + (ni - 1) + 2 * ni + ex))
            acc = SA if k < 11 else FA
            for q in range(4):
                x = v(L + 4 * k + q)
                if k in (0, 11):
                    E(valu('v_lshlrev_b32', v(acc + 2 * q), 16, x)); E(valu('v_and_b32', v(acc + 2 * q + 1), sT3, x))
                else:
                    tp = v(T + 2 * q, 2)
                    E(valu('v_lshlrev_b32', tp[0], 16, x)); E(valu('v_and_b32', tp[1], sT3, x))
            if k not in (0, 11):
                for q in range(4): E(valu('v_pk_add_f32', v(acc + 2 * q, 2), v(acc + 2 * q, 2), v(T + 2 * q, 2)))
        for e in range(8): E(valu('v_exp_f32', v(T + e), v(FA + e)))
        for e in range(8): E(valu('v_add_f32', v(T + e), 1.0, v(T + e)))
        for e in range(8): E(valu('v_rcp_f32', v(T + e), v(T + e)))
        for e in range(8): E(valu('v_mul_f32', v(FA + e), f2u(-math.log(2.0)), v(FA + e)))
        for e in range(8): E(valu('v_mul_f32', v(FA + e), v(FA + e), v(T + e)))
        if i == 0: E(waitvm(ex if ni == 1 else 0))
        for q in range(4):
            E(valu('v_lshlrev_b32', v(T + 2 * q), 16, v(XR + q))); E(valu('v_and_b32', v(T + 2 * q + 1), sT3, v(XR + q)))
        for e in range(8): E(valu('v_fma_f32', v(T + e), v(SA + e), v(FA + e), v(T + e)))
        for q in range(4): E(valu('v_cvt_pk_bf16_f32', v(XR + q), v(T + 2 * q), v(T + 2 * q + 1)))
        if i: E(add(sXO_, sXO_, 32 * 1152))
        E(bstore('buffer_store_dwordx2', v(XR, 2), vXO_, srdO, sXO_)); E(bstore('buffer_store_dwordx2', v(XR + 2, 2), vXO_, srdO, sXO_, 32))

def build_role(kind, vm_before):
    R = Role(kind)
    CFG['shape'] = CFG.get('shapes', {}).get(kind, CFG['shape0'])
    R.ring = {'F': (216, 9), 'A': (192, 16), 'M': (200, 8)}[kind]
    if kind == 'M': R.depth = 7
    nl = CFG.get('pfl', 16)
    MS = CFG['shape'] == 'M'
    if MS:
        R.add_p1_unit, R.add_p1_half, R.epi_silu, R.epi_q = R.add_p1_unitM, R.add_p1_halfM, R.epi_siluM, R.epi_qM
    P2M = 'q16' if MS else 'pi'
    if kind == 'F':
        for u in range(13): R.add_p1_unit(u, sW1, sHA, sHC, 9216, u == 0, a(16 * u, 16), R.epi_silu, last=(u == 12), inreg=[pf_run(sW2, sPF2, 832 * 1152, 10) if u >= 1 else None, pf_row('F', sW1) if CFG['pf'] >= 3 else None] if CFG['pf'] else None)
        R.add_p1_half(13, a(208, 8))
        needs = {t: [('reg', 8 * t)] for t in range(27)}
        dm = [dma_w(sW2, sFA, 0, 1152, sFC, 0), dma_w(sW2, sFA, 288 * 1152, 1152, sFC, 288 * 1152), dma_w(sW2, sFA, 576 * 1152, 1152, sFS, 0)]
        R.add_p2([(a(0, 216), [288, 288, 288], dm, needs, sSt)], [add(x, x, 128) for x in (sFA, sFC, sFS)], pre0=lambda: set_offw(1152, P2M))
        if CFG['pf']:
            pf_sched(R, 26, sW2, sPF2h, 32 * 1152, 8)
    elif kind == 'A':
        Q = [a(32 * e, 32) for e in range(3)]; O = [a(96 + 32 * e, 32) for e in range(3)]
        for u in range(6): R.add_p1_unit(u, sWQ, sQA, sQC, 8192, u == 0, a(16 * u, 16), R.epi_q, last=(u == 5), inreg=[pf_run(sWO, sPFc, 384 * 1152, 11) if u >= 1 else None, pf_row('A', sWQ) if CFG['pf'] >= 3 and u < 5 else None] if CFG['pf'] else None)
        R.add_pa(Q, O)
        needs = {4 * e: [('fin', e)] for e in range(3)}; needs[0].append(('S', 2, 15))
        dm = [dma_w192(sWO, b * 192 * 1152) for b in range(2)]
        R.add_p2([(a(96, 96), [192, 192], dm, needs, sSt)], [add(sOA, sOA, 128), add(sOB, sOB, 128)], pre0=lambda: set_offw(1152, P2M))
        if CFG['pf']:
            if CFG['pf'] >= 2:
                pf_sched(R, 10, sK, sPFa, 131072, 16); pf_sched(R, 10, sV, sPFa, 131072, 16)
                pf_sched(R, 12, sK, sPFb, 131072, 16); pf_sched(R, 12, sV, sPFb, 131072, 16)
    else:
        Q = [a(136 + 32 * e, 32) for e in range(2)]; O = [a(72 + 32 * e, 32) for e in range(2)]
        def mpf(u):
            if u == 0: return pf_row('M', sWQ)
            if u == 1: return lambda: pf_row_setup('M', 9216, 18, sPF1, 0) + [pf_row('M', sW1)()[1]]
            if u <= 4: return pf_row('M', sW1)
            if u == 5: return lambda: [smov(sPW, sPF1h), pf_row('M', sW1)()[1]]
            return None
        for u in range(4): R.add_p1_unit(u, sWQ, sQA, sQC, 8192, u == 0, a(136 + 16 * u, 16), R.epi_q, key='Q', inreg=[None, mpf(u)] if CFG['pf'] >= 3 else None)
        for u in range(4): R.add_p1_unit(4 + u, sW1, sHA, sHC, 9216, u == 0, a(16 * u, 16), R.epi_silu, pre=(lambda: set_offw(9216, 'M' if MS else 'S')) if u == 0 else None, last=(u == 3), key='H', inreg=[None, mpf(4 + u)] if CFG['pf'] >= 3 else None)
        R.add_p1_half(8, a(64, 8))
        R.add_pa(Q, O)
        nf = {t: [('reg', 8 * t)] for t in range(9)}; nf[0].append(('S', 1, 15))
        R.add_p2([(a(0, 72), [288], [dma_w(sW2, sFA, 0, 1152, sFS, 0)], nf, sSt2),
                  (a(72, 64), [256], [dma_w(sWO, sOA, 0, 1152)], {0: [('fin', 0)], 4: [('fin', 1)]}, sSt)],
                 [add(x, x, 128) for x in (sOA, sFA, sFS)], pre0=lambda: set_offw(1152, P2M))
        for st in R.stages[-18:]: st.ring = (200, 14, 'restart')
        if CFG['pf']:
            if CFG['pf'] >= 2:
                k = pf_sched(R, 14, sK, sPFa, 131072, 16); k = pf_sched(R, k, sV, sPFa, 131072, 16)
            pf_sched(R, 16, sWO, sPFc, 256 * 1152, 36); pf_sched(R, 23, sW2, sPF2, 256 * 1152, 36); pf_sched(R, 24, sW2, sPF2h, 32 * 1152, 8)
    if CFG.get('msum') and not MS and kind in 'AM':
        st0 = [st for st in R.stages if st.name == 'PAh0s0'][0]
        m0_ = st0.mf[8]
        m0_.need += [('acc', 48 + 16 * i) for i in range(4)]
        m0_.pre = lambda: R.p.emit([valu('v_mov_b32', vONES[i], 0x3f803f80) for i in range(4)])
    if CFG.get('recode') and CFG['fused']:
        names = [st.name for st in R.stages]
        nS = len(names)
        R.pf.setdefault(nS - 2, []).append(pf_code(f"L_{kind}_red", f"L_role{kind}_end", 4))
        p2 = names.index('P2c0b0')
        R.stages[p2].label = f"L_{kind}_p2"
        R.pf.setdefault(p2 - 2, []).append(pf_code(f"L_{kind}_p2", f"L_{kind}_p2+20480", 5))
        if kind in 'AM':
            pa = names.index('PAmini'); R.stages[pa].label = f"L_{kind}_pa"
            R.pf.setdefault(pa - 1, []).append(pf_code(f"L_{kind}_pa", f"L_{kind}_p2", 8))
    R.slow = []
    if kind in 'AM' and CFG.get('slow', True):
        P2s = [st for st in R.stages if st.name.startswith('P2c0')]
        if kind == 'A':
            P2s[0].mf[0].need += [('fin', 1)]
            P2s[0].mf[0].pre = slow_check(R, [(0, Q[0], O[0]), (1, Q[1], O[1])], 112)
            m_ = [m for m in P2s[1].mf if ('fin', 2) in m.need][0]
            m_.pre = slow_check(R, [(2, Q[2], O[2])], 160)
        else:
            P2s[1].mf[0].need += [('fin', 1)]
            P2s[1].mf[0].pre = slow_check(R, [(0, Q[0], O[0]), (1, Q[1], O[1])], 160)
    if CFG['fused']:
        add_signals(R)
        def early0():
            it = red_setup(kind) + red_poll()[0]
            it[-1].tag = 'cnt'
            return it
        def early():
            assert R.cnt_covered()
            PRIV[0] = (kind == 'A')
            it = red_poll()[1]
            it[-1].tag = 'poll'
            return it
        def covered():
            idx = max(i for i, x in enumerate(R.p.ins) if x.tag == 'cnt'); n = 0
            for x in R.p.ins[idx + 1:]:
                if x.kind in VMEMK: n += 1
                if x.txt.startswith('s_waitcnt vmcnt(') and int(x.txt[16:-1]) <= n: return True
            return False
        R.cnt_covered = covered
        if kind == 'A' and CFG.get('l2pf'):
            nm = [st.name for st in R.stages]
            R.pf.setdefault(nm.index('P2c1b0'), []).append(l2pf_setup)
            for (cw, dlt) in CFG['l2pf']:
                kp = nm.index(f'P2c{cw}b0')
                for j in range(4): R.pf.setdefault(kp, []).append(lambda j=j: l2pf_poll()[j])
                R.stages[kp + 2].cover_tag = 'gp'
                def gate(j, dlt=dlt):
                    def f():
                        it = l2pf_issue(R, dlt)[j]
                        if j == 0:
                            it = it + [valu('v_readfirstlane_b32', sOK, vD), salu('s_cmp_ge_u32', None, sOK, 16), csel(sC, sC, 15)]
                        return it
                    return f
                for j in range(4): R.pf.setdefault(kp + 2, []).append(gate(j))
        R.pf.setdefault([st.name for st in R.stages].index('P2c1b0' if kind == 'F' else 'P2c0b1'), []).append(early0)
        R.pf.setdefault(len(R.stages) - CFG.get('pollw', 1), []).append(early)
    role_prologue(R, vm_before)
    R.run()
    if CFG['fused']:
        p = R.p
        red_early(p, kind)
        if kind in CFG.get('lateflag', 'A'): p.emit(barrier())
        else:
            p.emit(waitvm(0)); p.emit(barrier())
            p.emit(valu('v_mov_b32', vPRG, 9)); p.emit(bstore('buffer_store_dword', vPRG, vCT, sWS, 0, flags='sc1'))
        if CFG['stamps']: R.stamp(len(R.stages) - 1)
        p.emit(raw(f"s_call_b64 {sRET}, L_{kind}_red"))
    if CFG['stamps']:
        p = R.p
        R.stamp(len(R.stages))
        p.emit(raw("s_memrealtime s[98:99]", wr=[s(98, 2)])); p.emit(raw("s_waitcnt lgkmcnt(0)"))
        p.emit(raw(f"v_writelane_b32 {vSTAMP}, s98, 63", 'valu', wr=[vSTAMP], rd=[s(98)]))
        if CFG.get('dbgstat'):
            n = len(R.stages)
            lanes = {'F': [0, 27, n - 1, n], 'A': [0, 37, n - 1, n], 'M': [0, 34, n - 1, n]}[kind]
            slots = {'F': [1, 2, 3, 5], 'A': [10, 11, 13, 14], 'M': [15, 15, 15, 15]}[kind]
            p.emit([valu('v_mov_b32', v(4), 256), valu('v_mov_b32', v(5), 0)])
            for i, (ln, sl) in enumerate(zip(lanes, slots)):
                p.emit(raw(f"v_readlane_b32 s92, {vSTAMP}, {ln}", 'rdl', wr=[sT2], rd=[vSTAMP])); p.emit(nop(3))
                p.emit(raw(f"v_writelane_b32 v5, s92, {i}", 'valu', wr=[v(5)], rd=[sT2])); p.emit(raw(f"v_writelane_b32 v4, {4 * sl}, {i}", 'valu', wr=[v(4)]))
            p.emit(raw(f"v_writelane_b32 v5, s98, 4", 'valu', wr=[v(5)], rd=[s(98)])); p.emit(raw(f"v_writelane_b32 v4, 28, 4", 'valu', wr=[v(4)]))
            p.emit(salu('s_not_b32', sT2, s(43))); p.emit(raw(f"v_writelane_b32 v5, s92, 5", 'valu', wr=[v(5)], rd=[sT2])); p.emit(raw(f"v_writelane_b32 v4, 36, 5", 'valu', wr=[v(4)]))
            p.emit(salu('s_sub_u32', sT2, s(98), s(43))); p.emit(raw(f"v_writelane_b32 v5, s92, 6", 'valu', wr=[v(5)], rd=[sT2])); p.emit(raw(f"v_writelane_b32 v4, 24, 6", 'valu', wr=[v(4)]))
            p.emit([salu('s_cmp_eq_u32', None, sRB, 9), csel(sT2, 0, sRB), salu('s_or_b32', sT2, sT2, sWAVE), salu('s_cmp_eq_u32', None, sT2, 0), csel(sT2, 0, 256),
                    valu('v_add_u32', v(4), sT2, v(4))])
            p.emit(I(f"buffer_atomic_umax v5, v4, {sDBG}, 0 offen sc1", 'vstore', rd=vr(4, 2) + sDBG.regs(), units=3))
        p.emit([shl(sT2, s(2), 2), add(sT2, sT2, sWAVE), shl(sT2, sT2, 8), add(sT2, sT2, STAMP_OFF),
                valu('v_lshrrev_b32', v(42), 2, vLANE16), bstore('buffer_store_dword', vSTAMP, v(42), sWS, sT2)])
    R.p.emit(raw("s_endpgm"))
    return R

def fold(ins, name):
    idx = [i for i, x in enumerate(ins) if x.tag == 'mark']
    def body(a_, b_): return [x.txt for x in ins[a_:b_] if x.kind != 'label']
    out = []; pos = 0; k = 0; nl = 0
    while k + 1 < len(idx):
        b0 = body(idx[k], idx[k + 1]); n = 1
        while k + n + 1 < len(idx) and body(idx[k + n], idx[k + n + 1]) == b0: n += 1
        if n >= 2:
            out += ins[pos:idx[k]]
            L = f"L_{name}_loop{nl}"; nl += 1
            out.append(smov(sLC, n)); out.append(I(".p2align 3", 'label')); out.append(label(L))
            out += ins[idx[k]:idx[k + 1]]
            out += [salu('s_sub_u32', sLC, sLC, 1), salu('s_cmp_lg_u32', None, sLC, 0), raw(f"s_cbranch_scc1 {L}")]
            pos = idx[k + n]; k += n
        else: k += 1
    out += ins[pos:]
    return out

def fold_regions(ins, name):
    regs = []; i = 0
    beg = None
    for i, x in enumerate(ins):
        if isinstance(x.tag, tuple) and x.tag and x.tag[0] == 'region':
            if x.tag[1] == 'begin': beg = (i, x.tag[2])
            elif beg: regs.append((beg[0], i, beg[1])); beg = None
    groups = {}
    for (a_, b_, key) in regs:
        groups.setdefault(tuple(x.txt for x in ins[a_:b_] if x.kind != 'label'), []).append((a_, b_))
    out = []; subs = []; repl = {}
    n = 0
    for body, lst in groups.items():
        if len(lst) >= 2:
            L = f"L_{name}_sub{n}"; n += 1
            a_, b_ = lst[0]
            subs += [I(".p2align 6", 'label'), label(L)] + ins[a_:b_] + [raw(f"s_setpc_b64 {sRET}")]
            for (a_, b_) in lst: repl[a_] = (b_, L)
    i = 0
    while i < len(ins):
        if i in repl:
            b_, L = repl[i]; out.append(raw(f"s_call_b64 {sRET}, {L}")); i = b_
        else:
            out.append(ins[i]); i += 1
    print(f"  regions: {[len(l) for l in groups.values()]}", file=sys.stderr)
    return out + subs

def reduce_body(p, sPART, sXO, srdP, srdX, srdO, vL16, vXO, base, flags, mid=None):
    E = p.emit
    L = base; XR = base + 68; SA = base + 72; FA = base + 80; T = base + 88
    for k in range(NPART):
        if k: E(add(sPART, sPART, 16 * PART))
        E(bload('buffer_load_dwordx4', v(L + 4 * k, 4), vL16, srdP, sPART, flags=flags))
    E(bload('buffer_load_dwordx2', v(XR, 2), vXO, srdX, sXO)); E(bload('buffer_load_dwordx2', v(XR + 2, 2), vXO, srdX, sXO, 32))
    ex = 0
    if mid: E(mid()); ex = 1
    E(smov(sT3, 0xffff0000))
    for k in range(NPART):
        E(waitvm(NPART + 1 - k + ex))
        acc = SA if k < 11 else FA
        for q in range(4):
            x = v(L + 4 * k + q)
            if k in (0, 11):
                E(valu('v_lshlrev_b32', v(acc + 2 * q), 16, x)); E(valu('v_and_b32', v(acc + 2 * q + 1), sT3, x))
            else:
                tp = v(T + 2 * q, 2)
                E(valu('v_lshlrev_b32', tp[0], 16, x)); E(valu('v_and_b32', tp[1], sT3, x))
        if k not in (0, 11):
            for q in range(4): E(valu('v_pk_add_f32', v(acc + 2 * q, 2), v(acc + 2 * q, 2), v(T + 2 * q, 2)))
    for e in range(8): E(valu('v_exp_f32', v(T + e), v(FA + e)))
    for e in range(8): E(valu('v_add_f32', v(T + e), 1.0, v(T + e)))
    for e in range(8): E(valu('v_rcp_f32', v(T + e), v(T + e)))
    for e in range(8): E(valu('v_mul_f32', v(FA + e), f2u(-math.log(2.0)), v(FA + e)))
    for e in range(8): E(valu('v_mul_f32', v(FA + e), v(FA + e), v(T + e)))
    E(waitvm(ex))
    for q in range(4):
        E(valu('v_lshlrev_b32', v(T + 2 * q), 16, v(XR + q))); E(valu('v_and_b32', v(T + 2 * q + 1), sT3, v(XR + q)))
    for e in range(8): E(valu('v_fma_f32', v(T + e), v(SA + e), v(FA + e), v(T + e)))
    for q in range(4): E(valu('v_cvt_pk_bf16_f32', v(XR + q), v(T + 2 * q), v(T + 2 * q + 1)))
    E(bstore('buffer_store_dwordx2', v(XR, 2), vXO, srdO, sXO)); E(bstore('buffer_store_dwordx2', v(XR + 2, 2), vXO, srdO, sXO, 32))

def reduce_kernel():
    p = Prog(); E = p.emit
    E(salu('s_cmp_ge_u32', None, s(2), 576)); E(raw("s_cbranch_scc0 L_rgo")); E(raw("s_endpgm")); E(label("L_rgo"))
    E(raw("s_load_dwordx2 s[4:5], s[0:1], 0", wr=[s(4, 2)])); E(raw("s_load_dwordx2 s[6:7], s[0:1], 64", wr=[s(6, 2)])); E(raw("s_load_dwordx2 s[8:9], s[0:1], 80", wr=[s(8, 2)]))
    E(valu('v_lshrrev_b32', v(1), 6, v(0))); E(valu('v_readfirstlane_b32', s(10), v(1)))
    E(shl(s(11), s(2), 2)); E(add(s(11), s(11), s(10)))
    E(salu('s_mul_hi_u32', s(24), s(11), -(-(1 << 32) // 36), scc_w=False))
    E(mul(s(25), s(24), 36)); E(salu('s_sub_u32', s(25), s(11), s(25)))
    E(shl(s(26), s(11), 10))
    E(valu('v_and_b32', v(0), 63, v(0))); E(valu('v_lshlrev_b32', v(1), 4, v(0)))
    E(valu('v_and_b32', v(2), 15, v(0))); E(smov(s(27), 1152)); E(valu('v_mul_u32_u24', v(2), s(27), v(2)))
    E(valu('v_lshrrev_b32', v(3), 4, v(0))); E(valu('v_lshl_add_u32', v(2), v(3), 3, v(2)))
    E(mul(s(28), s(24), 32 * 1152)); E(salu('s_and_b32', s(29), s(25), 1)); E(mul(s(29), s(29), 16 * 1152)); E(add(s(28), s(28), s(29)))
    E(shr(s(25), s(25), 1)); E(shl(s(25), s(25), 6)); E(add(s(28), s(28), s(25)))
    E(raw("s_waitcnt lgkmcnt(0)"))
    srd(p, s(12, 4), 8, WSP_BYTES); srd(p, s(16, 4), 4, 2359296); srd(p, s(20, 4), 6, 2359296)
    reduce_body(p, s(26), s(28), s(12, 4), s(16, 4), s(20, 4), v(1), v(2), 4, CFG.get('rflags', ''))
    E(raw("s_endpgm"))
    return p

def text(ins): return "\n".join((i.txt if i.kind == 'label' else " " + i.txt) for i in ins) + "\n"

def compress(t):
    t = re.sub(r" v_mfma_f32_16x16x32_bf16 v\[(\d+):\d+\], a\[(\d+):\d+\], v\[(\d+):\d+\], v\[\1:\d+\]", r" MV \1,\2,\3", t)
    t = re.sub(r" v_mfma_f32_16x16x32_bf16 v\[(\d+):\d+\], a\[(\d+):\d+\], a\[(\d+):\d+\], v\[\1:\d+\]", r" MA \1,\2,\3", t)
    t = re.sub(r" v_mfma_f32_32x32x16_bf16 v\[(\d+):\d+\], a\[(\d+):\d+\], v\[(\d+):\d+\], v\[\1:\d+\]", r" NV \1,\2,\3", t)
    t = re.sub(r" v_mfma_f32_32x32x16_bf16 v\[(\d+):\d+\], a\[(\d+):\d+\], a\[(\d+):\d+\], v\[\1:\d+\]", r" NA \1,\2,\3", t)
    t = re.sub(r" ds_read_b64_tr_b16 a\[(\d+):\d+\], v(\d+) offset:(\d+)", r" RT \1,\2,\3", t)
    t = re.sub(r" ds_read_b128 a\[(\d+):\d+\], v(\d+) offset:(\d+)", r" RB \1,\2,\3", t)
    t = re.sub(r" v_cvt_pk_bf16_f32 v(\d+), v(\d+), v(\d+)", r" CV \1,\2,\3", t)
    t = re.sub(r" v_accvgpr_write_b32 a(\d+), v(\d+)", r" AW \1,\2", t)
    t = re.sub(r" v_exp_f32 v(\d+), v(\d+)", r" EX \1,\2", t)
    t = re.sub(r" v_add_f32 v(\d+), v(\d+), v(\d+)", r" AD \1,\2,\3", t)
    t = re.sub(r" v_mul_f32 v(\d+), v(\d+), v(\d+)", r" ML \1,\2,\3", t)
    t = re.sub(r" s_waitcnt lgkmcnt\((\d+)\)", r" WL \1", t)
    mac = r""".macro NV d,a,b
 v_mfma_f32_32x32x16_bf16 v[\d:\d+15], a[\a:\a+3], v[\b:\b+3], v[\d:\d+15]
.endm
.macro NA d,a,b
 v_mfma_f32_32x32x16_bf16 v[\d:\d+15], a[\a:\a+3], a[\b:\b+3], v[\d:\d+15]
.endm
.macro MV d,a,b
 v_mfma_f32_16x16x32_bf16 v[\d:\d+3], a[\a:\a+3], v[\b:\b+3], v[\d:\d+3]
.endm
.macro MA d,a,b
 v_mfma_f32_16x16x32_bf16 v[\d:\d+3], a[\a:\a+3], a[\b:\b+3], v[\d:\d+3]
.endm
.macro RT d,a,o
 ds_read_b64_tr_b16 a[\d:\d+1], v\a offset:\o
.endm
.macro RB d,a,o
 ds_read_b128 a[\d:\d+3], v\a offset:\o
.endm
.macro CV d,a,b
 v_cvt_pk_bf16_f32 v\d, v\a, v\b
.endm
.macro AW d,a
 v_accvgpr_write_b32 a\d, v\a
.endm
.macro EX d,a
 v_exp_f32 v\d, v\a
.endm
.macro AD d,a,b
 v_add_f32 v\d, v\a, v\b
.endm
.macro ML d,a,b
 v_mul_f32 v\d, v\a, v\b
.endm
.macro WL n
 s_waitcnt lgkmcnt(\n)
.endm
"""
    return mac, t

HDR = open('recurrent_scan__sliding_block_cached__dense_activation_silu__prompt.s.ref').read().split('; Override launch')[0]
def kd(name, vgpr, acc, sgpr=102):
    return f""".amdhsa_kernel {name}
  .amdhsa_next_free_vgpr {vgpr}
  .amdhsa_next_free_sgpr {sgpr}
  .amdhsa_accum_offset {acc}
  .amdhsa_group_segment_fixed_size 0
  .amdhsa_kernarg_size 88
  .amdhsa_user_sgpr_count 2
  .amdhsa_user_sgpr_kernarg_segment_ptr 1
  .amdhsa_system_sgpr_workgroup_id_x 1
.end_amdhsa_kernel
"""
def est_cycles(ins):
    tot = 0; cur = None; n = 0
    for i in ins:
        if i.kind == 'label': continue
        if i.kind == 'mfma':
            if cur is not None: tot += max(cap, cur)
            cur = 2; n += 1; cap = 8 if len(i.wr) == 16 else 4
        elif cur is not None:
            if i.txt.startswith('s_waitcnt lgkm') and cap == 4: continue
            cur += i.units if not i.txt.startswith('s_nop') else (int(i.txt.split()[1]) + 1) * 0.5
    return tot * 4

def main(out, **kw):
    CFG.update(kw)
    CFG['shape0'] = CFG['shape']
    cp = common_prologue()
    if CFG.get('entry', 0):
        if CFG.get('entry', 1) == 1:
            k = next(i for i, x in enumerate(cp.ins) if x.txt == 's_waitcnt lgkmcnt(0)')
            tail = cp.ins[k:]; vmx = list(cp.vm); cp.ins = cp.ins[:k]; cp.vm = []
            common_prologue2(cp); cp.ins += tail; cp.vm += vmx
        else: common_prologue2(cp)
        common_prologue3(cp)
    body = text(cp.ins) + dispatch_text()
    for kind in 'FAM':
        R = build_role(kind, cp.vm)
        ins = fold_regions(fold(R.p.ins, kind), kind) if CFG['fold'] else R.p.ins
        nm = sum(1 for i in R.p.ins if i.kind == 'mfma')
        print(f"role {kind}: stages {len(R.stages)} mfma {nm} instrs {len([i for i in ins if i.kind!='label'])} (unrolled {len([i for i in R.p.ins if i.kind!='label'])}) pad {R.p.npad} forced {R.forced} est {est_cycles(R.p.ins)} ideal {sum(32 if len(i.wr) == 16 else 16 for i in R.p.ins if i.kind == 'mfma')}", file=sys.stderr)
        if CFG.get('abl_pair') and kind in 'AM':
            out_ = []; on = False
            for x in ins:
                if x.kind == 'label' and x.txt.startswith('; PAh'): on = x.txt.startswith('; PAh1')
                if x.kind == 'label' and x.txt.startswith('; P2'): on = False
                if on and (x.kind in ('dma', 'ds') or (x.kind == 'salu' and ('m0' in x.txt or 's70' in x.txt))): continue
                out_.append(x)
            ins = out_
        ab = CFG.get('ablate', '')
        if ab:
            st0 = next(i for i, x in enumerate(ins) if x.txt.startswith('; P1u1b0'))
            def keep(x):
                if 'd' in ab and x.kind == 'dma': return False
                if 'r' in ab and x.kind == 'ds': return False
                if 'v' in ab and x.kind in ('trans',): return False
                if 'V' in ab and x.kind in ('trans', 'valu', 'perm') and not x.txt.startswith(('v_add_u32', 'v_xor', 'v_writelane', 'v_cmp', 'v_cnd', 'v_mov', 'v_lsh', 'v_mad', 'v_min', 'v_and', 'v_bfe', 'v_mul_u32')): return False
                if 'm' in ab and x.kind == 'mfma': return False
                return True
            ins = ins[:st0] + [x for x in ins[st0:] if keep(x)]
        for sp in R.slow: ins = ins + sp.ins
        if CFG['fused']: ins = ins + reducer(kind).ins
        body += f".p2align 6\nL_role{kind}:\n" + text(ins) + f"L_role{kind}_end:\n"
    rk = reduce_kernel()
    mac, body = compress(body)
    if CFG['fused']:
        t = HDR + "; @launch grid=(256,1,1) block=(256,1,1) lds=163840\n"
        t += '.amdgcn_target "amdgcn-amd-amdhsa--gfx950"\n' + mac + f".text\n.globl {KN}\n.p2align 8\n.type {KN},@function\n{KN}:\n" + body
        t += '.section .rodata,"a"\n.p2align 6\n' + kd(KN, 512, 256)
        open(out, 'w').write(t); print("size", len(t), file=sys.stderr); return
    t = HDR + f"; @launch kernel={KN} grid=(256,1,1) block=(256,1,1) lds=163840\n; @launch kernel={RN} grid=(576,1,1) block=(256,1,1) lds=0\n"
    t += '.amdgcn_target "amdgcn-amd-amdhsa--gfx950"\n' + mac + f".text\n.globl {KN}\n.p2align 8\n.type {KN},@function\n{KN}:\n" + body
    t += f".globl {RN}\n.p2align 8\n.type {RN},@function\n{RN}:\n" + text(rk.ins)
    t += '.section .rodata,"a"\n.p2align 6\n' + kd(KN, 512, 256) + ".p2align 6\n" + kd(RN, 104, 104, 102)
    open(out, 'w').write(t)
    print("size", len(t), file=sys.stderr)

if __name__ == "__main__":
    kw = eval("dict(" + (sys.argv[2] if len(sys.argv) > 2 else "") + ")")
    main(sys.argv[1], **kw)
```

```python
import sys, math, struct
from core import *

KN = "recurrent_scan__sliding_block_cached__dense_activation_silu__prompt_kernel"
RN = "reduce_kernel"
PP = 1088
SLOT = 36 * PP
XW = 36864
PWAVE = 36864
LOG2E = 1.4426950408889634
def f2u(f): return struct.unpack('<I', struct.pack('<f', f))[0]
CFG = dict(depth=8, wevery=4, dmastep=3, store_flags='sc1', fold=True, stamps=False, pf=2, xe=6, fused=False, shape='M')

sX, sK, sV, sWQ, sWO, sW1, sW2, sWS = [s(8 + 4 * i, 4) for i in range(8)]
sPFa, sPFb, sPFc = s(40), s(41), s(42)
sPF1, sPF1h, sPF2, sPF2h = s(44), s(45), s(46), s(47)
sOUT = s(48, 4); sDBG = s(52, 4)
sWAVE, sROLE, sRB = s(62), s(63), s(64)
sW8704, sWC, sW8192, sWCH, sW2176, sW4352, sWA2 = s(65), s(66), s(67), s(68), s(69), s(60), s(61)
sT = s(70)
sQA, sQC, sHA, sHC, sHH, sHHC = s(71), s(72), s(73), s(74), s(75), s(76)
sKb = [s(77), s(78), s(79)]; sVb = [s(80), s(81), s(82)]
sOA, sOB = s(83), s(58)
sFA, sFC, sFS = s(84), s(85), s(86)
sRd, sPrev, sWr = s(87), s(88), s(89)
sSt, sLC, sT2, sT3 = s(90), s(91), s(92), s(93)
sSt2 = s(5)
sPW = s(3)
sPC = s(94, 2)
sRET = s(56, 2)
sWrW = s(59)
sRdN = s(4)
sLN0 = s(96)
sSTAMP = s(98, 2); sT0 = s(100, 2)
s_ = s

vLANE16 = v(0)
vROWN, vROWP, vSWZ = v(1), v(41), v(2)
vOFFW = [v(3), v(4), v(5), v(6)]
vOFFH, vOFFK = v(7), v(8)
vRW = [[v(9), v(10)], [v(11), v(12)], [v(13), v(14)]]
vRH = [v(15), v(37)]
TMP0 = 16
vRK = [v(32), v(33), v(34)]
vTID, vPF, vPF2 = v(38), v(39), v(40)
vSTAMP = v(43)
vDP, vD0, vD1 = v(44), v(45), v(46)
vDK = v(35)
vCT = v(42)
vDK1 = v(34)
vSWZM = v(37)
vRKM = [v(32), v(33)]
vDUM = v(47)
ACC = [v(48, 32), v(80, 32)]
XB = 112
def X(t, g): return v(XB + 8 * t + 4 * g, 4)
def XM(t): return v(XB + 4 * t, 4)
Sreg = [v(112, 16), v(128, 16)]
Preg = [v(144, 8), v(152, 8)]
Oset = [v(160, 64), v(48, 64)]
Lacc = [v(230, 4), v(234, 4)]
Lsave = v(224, 6)
LM = [v(230, 8), v(16, 8)]
vONES = v(24, 4)
FT0 = 238
P2ACC = v(112, 32)
P2PK = [v(144, 8), v(152, 8)]

def f_fullcol(i): return 64 * 13 * i if i < 5 else 64 * 65
def f_halfcol(i): return 64 * 69 + 32 * i

def phantom(u=1): return I('; phantom', 'label', units=u)

class MF:
    __slots__ = ('m', 'reads', 'after', 'need', 'pre', 'extra')
    def __init__(s, m, reads, after=None, need=None):
        s.m, s.reads, s.after, s.need = m, reads, after, need or []; s.pre = None; s.extra = None
class Stage:
    def __init__(s, name, mf, dma, dyn=False, mark=None, pre_dma=None):
        s.name, s.mf, s.dma, s.dyn, s.mark, s.pre_dma = name, mf, dma, dyn, mark, pre_dma
        s.ring = None; s.half = False; s.post_bar = None; s.pa = False
class VQ:
    __slots__ = ('i', 'ready', 'dl', 'key')
    def __init__(s, i, ready, dl=None, key=None): s.i, s.ready, s.dl, s.key = i, ready, dl, key

def pair(acc, T, Bs, first, flip):
    gs = (1, 0) if flip else (0, 1)
    return [(acc.sub(8 * T + 4 * g, 4), Bs[g], 0 if first else acc.sub(8 * T + 4 * g, 4)) for g in gs]

def rd_w(T, kk, blockoff=0):
    def f(fr, st, k):
        out = []
        for e in range(2):
            off = blockoff + kk * 4 * PP + (T >> 1) * 64 + e * 512
            if st.dyn: reg, imm = (vD0, vD1)[T & 1], off
            else:
                ad = (k % 4) * SLOT + off
                reg, imm = vRW[ad >> 16][T & 1], ad & 0xffff
            out.append(ds_tr(fr.sub(2 * e, 2), reg, imm))
        return out
    return f
def rd_h(T, kk):
    def f(fr, st, k): return [ds_tr(fr.sub(2 * e, 2), vRH[T], kk * 2048 + e * 256) for e in range(2)]
    return f
KT = 8 * PP; VOFF = 2 * KT
def rd_k(pos, T, t):
    def f(fr, st, k):
        off = pos * KT + T * 4 * PP + t * 64
        if st.dyn: return [ds_b128(fr, vDK, off)]
        ad = (k % 4) * SLOT + off
        return [ds_b128(fr, vRK[ad >> 16], ad & 0xffff)]
    return f

def rd_wM(T, kk, blockoff=0):
    def f(fr, st, k):
        out = []
        for e in range(2):
            off = blockoff + kk * 2 * PP + e * 512
            if st.dyn: reg, imm = (vD0, vD1)[T], off
            else:
                ad = (k % 4) * SLOT + off
                reg, imm = vRW[ad >> 16][T], ad & 0xffff
            out.append(ds_tr(fr.sub(2 * e, 2), reg, imm))
        return out
    return f
def rd_hM(t):
    def f(fr, st, k): return [ds_tr(fr.sub(2 * e, 2), vRH[0], t * 1024 + e * 256) for e in range(2)]
    return f
def rd_kM(pos, t):
    def f(fr, st, k):
        assert st.dyn
        return [ds_b128(fr, (vDK, vDK1)[t & 1], pos * KT + (t >> 1) * 64)]
    return f

def m0_set(dyn, slot, wreg, extra):
    if dyn:
        assert extra == 0
        return salu('s_add_u32', 'm0', sWr, wreg)
    return salu('s_add_u32', 'm0', wreg, slot * SLOT + extra)
def dma_w(srd, sA, litA, pitch, sC=None, litC=None):
    def f(k, dyn):
        slot = k % 4; items = []
        for j in range(8):
            it = []
            if j % 4 == 0:
                it.append(m0_set(dyn, slot, sW8704, 0) if j == 0 else salu('s_add_u32', 'm0', 'm0', 4 * PP))
                it.append(salu('s_add_u32', sT, sA, litA + (j // 4) * 32 * pitch))
            it.append(dma(vOFFW[j % 4], srd, sT, (j % 4) * PP, tag=k))
            items.append(it)
        if sC is not None:
            items.append([m0_set(dyn, slot, sWC, 0), salu('s_add_u32', sT, sC, litC), dma(vOFFW[0], srd, sT, 0, tag=k)])
        return items
    return f
def dma_w192(srd, lit, sOA=sOA, sOB=sOB):
    def f(k, dyn):
        slot = k % 4; items = []
        for j in range(4):
            it = []
            if j == 0: it += [m0_set(dyn, slot, sW4352, 0), salu('s_add_u32', sT, sOA, lit)]
            it.append(dma(vOFFW[j], srd, sT, j * PP, tag=k)); items.append(it)
        for j in range(2):
            it = []
            if j == 0: it += [m0_set(dyn, slot, sWA2, 0), salu('s_add_u32', sT, sOB, lit)]
            it.append(dma(vOFFW[j], srd, sT, j * PP, tag=k)); items.append(it)
        return items
    return f
def dma_half(srd, pitch):
    def f(k, dyn):
        slot = k % 4; items = []
        for j in range(8):
            it = []
            if j % 4 == 0:
                it.append(m0_set(False, slot, sW8192, 0) if j == 0 else salu('s_add_u32', 'm0', 'm0', 4096))
            it.append(salu('s_add_u32', sT, sHH, j * 16 * pitch - (j % 4) * 1024))
            it.append(dma(vOFFH, srd, sT, (j % 4) * 1024, tag=k))
            items.append(it)
        items.append([m0_set(False, slot, sWCH, 0), dma(vOFFH, srd, sHHC, 0, tag=k)])
        return items
    return f
def dma_pa(ktiles, vpair):
    def f(k, dyn):
        slot = k % 4; items = []
        def m0(extra):
            if dyn: return salu('s_add_u32', 'm0', sWrW, extra)
            return salu('s_add_u32', 'm0', sW2176, slot * SLOT + extra)
        for (pos, sr_, lit) in ktiles:
            items.append([m0(pos * KT), salu('s_add_u32', sT, sr_, lit), dma(vOFFK, sK, sT, 0, tag=k)])
            items.append([salu('s_add_u32', 'm0', 'm0', 64), dma(vOFFK, sK, sT, 1024, tag=k)])
        if vpair is not None:
            sr_, lit = vpair
            for b in range(2):
                items.append([m0(VOFF + b * KT), salu('s_add_u32', sT, sr_, lit + b * 128), dma(vOFFW[0], sV, sT, 0, tag=k)])
                items.append([dma(vOFFW[1], sV, sT, PP, tag=k)])
        return items
    return f
def set_offw(pitch, mode):
    if mode is True: mode = 'pi'
    if mode is False: mode = 'S'
    swz = vSWZM if mode == 'M' else vSWZ
    out = [smov(sT2, pitch), valu('v_mad_u32_u24', vOFFW[0], vROWP if mode == 'pi' else vROWN, sT2, swz)]
    if mode == 'q16':
        for j, r in ((1, 16), (2, 8), (3, 24)): out.append(valu('v_add_u32', vOFFW[j], r * pitch - j * PP, vOFFW[0]))
        return out
    step = (4 if mode == 'pi' else 8) * pitch - PP
    if step < 0:
        out += [valu('v_mov_b32', vOFFW[1], vOFFW[0]), valu('v_add_u32', vOFFW[0], -step, vOFFW[0])]
    else:
        for j in range(1, 4): out.append(valu('v_add_u32', vOFFW[j], step, vOFFW[j - 1]))
    return out

class Role:
    def __init__(s, kind):
        s.kind = kind; s.p = Prog(); s.stages = []; s.stn = 0; s.q = []; s.q2 = []; s.tmpi = 0; s.pf = {}; s.regions = {}; s.phantoms = {}
    def tmp(s, n=1):
        r = v(TMP0 + s.tmpi, n); s.tmpi = (s.tmpi + n) % 16
        return r
    def push(s, items, G, dl, key=None, lag=1):
        for i in items: s.q.append(VQ(i, G + lag, dl))
        if key: s.q[-1].key = key
    def push_accw(s, acc, dst, G, dl, tail):
        it = [valu('v_accvgpr_write_b32', dst[4 * g + 2 * T + k], acc[8 * T + 4 * g + 2 * k]) for g in range(2) for T in range(2) for k in range(2)]
        if tail is None: s.push(it, G, dl, ('reg', dst.n))
        else:
            for i in it: s.q2.append(VQ(i, tail, dl))
            s.q2[-1].key = ('reg', dst.n)
    def epi_silu(s, acc, dst, G, dl, tail=None):
        items = []
        for g in range(2):
            for T in range(2):
                t = s.tmp(4); el = [(t[e], acc[8 * T + 4 * g + e]) for e in range(4)]
                for (tt, x) in el: items.append(valu('v_exp_f32', tt, x))
                for (tt, x) in el: items.append(valu('v_add_f32', tt, 1.0, tt))
                for (tt, x) in el: items.append(valu('v_rcp_f32', tt, tt))
                for (tt, x) in el: items.append(valu('v_mul_f32', tt, x, tt))
                for k in range(2): items.append(valu('v_cvt_pk_bf16_f32', acc[8 * T + 4 * g + 2 * k], t[2 * k], t[2 * k + 1]))
        s.push(items, G, ('tail', tail) if tail is not None else dl)
        s.push_accw(acc, dst, G, dl, tail)
    def epi_q(s, acc, dst, G, dl, tail=None):
        items = []
        for g in range(2):
            r = lambda T, e: acc[8 * T + 4 * g + e]
            for T in range(2):
                for e in range(4): items.append(valu('v_mul_f32', r(T, e), sLN0, r(T, e)))
            for T in range(2):
                for k in range(2): items.append(valu('v_cvt_pk_bf16_f32', r(T, 2 * k), r(T, 2 * k), r(T, 2 * k + 1)))
            for k in range(2): items.append(valu('v_permlane32_swap_b32', r(0, 2 * k), r(1, 2 * k), rmw=True, extra_wr=[r(1, 2 * k)]))
            for k in range(2): items.append(valu('v_permlane16_swap_b32', r(0, 2 * k), r(1, 2 * k), rmw=True, extra_wr=[r(1, 2 * k)]))
        s.push(items, G, ('tail', tail) if tail is not None else dl)
        s.push_accw(acc, dst, G, dl, tail)

    def add_p1_unit(s, uidx, srd, sA, sC, pitch, first, dst, epi, pre=None, last=False, key='P1', inreg=None, step=128):
        acc = ACC[uidx % 2]; TL = CFG.get('tail', 8)
        g0 = sum(len(st.mf) for st in s.stages)
        for b in range(2):
            mf = []
            order = [(kk, T) for kk in range(9) for T in range(4)]
            if b == 1:
                order = [(kk, T) for kk in range(9) for T in range(2)] + [(kk, T) for kk in range(9) for T in range(2, 4)]
            for (kk, T) in order:
                t = 9 * b + kk
                m = MF(pair(acc, T, [X(t, 0), X(t, 1)], t == 0, T & 1), rd_w(T, kk))
                if t == 0 and T % 2 == 0: m.need = [('acc', acc.n + 8 * T)]
                if t == 17 and T % 2 == 1:
                    h = T // 2
                    tail = None if last else g0 + 144 - TL
                    m.after = (lambda G, h=h, tail=tail: epi(acc.sub(16 * h, 16), dst.sub(8 * h, 8), G, ('acc', acc.n + 16 * h), tail))
                mf.append(m)
            def pre_(b=b):
                out = []
                if b == 0:
                    if pre: out += pre()
                    if not first: out += [salu('s_add_u32', sA, sA, step), salu('s_add_u32', sC, sC, step)]
                return out
            st = Stage(f"P1u{uidx}b{b}", mf, dma_w(srd, sA, b * 288 * pitch, pitch, sC, b * 288 * pitch), pre_dma=pre_ if (b == 0 and (pre or not first)) else None)
            s.stages.append(st)
        s.regions[g0] = ('begin', f"{key}{uidx % 2}")
        s.regions[g0 + 72 - TL] = ('end', None)
        s.stages[-1].mf[36 - TL].need.append(('tail', g0 + 72 - TL))
        if uidx == 0: s.phantoms[g0 + 72 - TL] = 16
        for j_, f_ in enumerate(inreg or []):
            if f_: s.pf.setdefault(len(s.stages) - 1 - j_, []).append(f_)
    def add_p1_half(s, uidx, dst):
        acc = ACC[uidx % 2]; mf = []
        for t in range(18):
            for T in range(2):
                m = MF(pair(acc, T, [X(t, 0), X(t, 1)], t == 0, T & 1), rd_h(T, t))
                if t == 0 and T == 0: m.need = [('acc', acc.n)]
                if t == 17 and T == 1: m.after = (lambda G: s.epi_silu(acc.sub(0, 16), dst, G, ('acc', acc.n)))
                mf.append(m)
        st = Stage("P1half", mf, dma_half(sW1, 9216)); st.half = True
        s.stages.append(st)

    def softmax_items(s, j, hd, G):
        S = Sreg[j % 2]; P = Preg[j % 2]; L = Lacc[hd % 2]
        A = []; Bq = []
        for g in range(2):
            for T in range(2):
                idx = [8 * T + 4 * g + e for e in range(4)]
                for i in idx: A.append(valu('v_exp_f32', S[i], S[i]))
                for k in range(2): A.append(valu('v_cvt_pk_bf16_f32', P[4 * g + 2 * T + k], S[idx[2 * k]], S[idx[2 * k + 1]]))
                adds = []
                for e, i in enumerate(idx if not CFG.get('msum') else []):
                    l = L[2 * g + (e & 1)]
                    if j == 0 and T == 0 and e < 2: adds.append(valu('v_mov_b32', l, S[i]))
                    else: adds.append(valu('v_add_f32', l, l, S[i]))
                if g == 1 and T == 1: Bq = adds
                else: A += adds
        s.push(A, G, ('P', hd, j))
        if Bq: s.push(Bq, G, ('S', hd, j))
    def finalize_items(s, hd, dst, G, dl):
        O = Oset[hd % 2]; L = Lacc[hd % 2]
        it = []
        inv = [v(FT0), v(FT0 + 1)]; t = [v(FT0 + 2), v(FT0 + 3)]
        if CFG.get('msum'):
            for g in range(2): it.append(valu('v_mov_b32', inv[g], LM[hd % 2][4 * g]))
        else:
            for g in range(2): it.append(valu('v_add_f32', inv[g], L[2 * g], L[2 * g + 1]))
        for op in (('v_permlane16_swap_b32', 'v_permlane32_swap_b32') if not CFG.get('msum') else ()):
            for g in range(2): it.append(valu('v_mov_b32', t[g], inv[g]))
            for g in range(2): it.append(valu(op, inv[g], t[g], rmw=True, extra_wr=[t[g]]))
            for g in range(2): it.append(valu('v_add_f32', inv[g], inv[g], t[g]))
        for g in range(2): it.append(valu('v_mov_b32', Lsave[2 * hd + g], inv[g]))
        for g in range(2): it.append(valu('v_rcp_f32', inv[g], inv[g]))
        k = 0
        for kk in range(4):
            for g in range(2):
                for T in range(2):
                    tt = v(FT0 + 4 + 4 * (k % 3), 4); k += 1
                    for e in range(4): it.append(valu('v_mul_f32', tt[e], O[8 * (2 * kk + T) + 4 * g + e], inv[g]))
                    for c in range(2): it.append(valu('v_cvt_pk_bf16_f32', tt[2 * c], tt[2 * c], tt[2 * c + 1]))
                    for c in range(2): it.append(valu('v_accvgpr_write_b32', dst[8 * kk + 4 * g + 2 * T + c], tt[2 * c]))
        s.push(it, G, dl)
    def qk(s, hd, j, Q, pos):
        mf = []; S = Sreg[j % 2]
        for t in range(4):
            for T in range(2):
                m = MF(pair(S, T, [Q.sub(8 * t, 4), Q.sub(8 * t + 4, 4)], t == 0, T & 1), rd_k(pos, T, t))
                if t == 0 and T == 0:
                    m.need = [('S', hd, j - 2) if j >= 2 else ('S', hd - 1, 14 + j)]
                    if j == 0: m.need += [('reg', Q.n + 8 * i) for i in range(4)]
                if t == 3 and T == 1: m.after = (lambda G, j=j, hd=hd: s.softmax_items(j, hd, G))
                mf.append(m)
        return mf
    def pv(s, hd, j, kk, Odst):
        mf = []; O = Oset[hd % 2]; P = Preg[j % 2]
        for tau in range(8):
            m = MF(pair(O, tau, [P.sub(0, 4), P.sub(4, 4)], j == 0, tau & 1), rd_w(tau % 4, kk, VOFF + (tau // 4) * KT))
            if tau == 0:
                m.need = [('P', hd, j)]
                if j == 0 and hd >= 1: m.need += [('fin', hd - 2)] + [('acc', 48 + 16 * i) for i in range(4)]
            if j == 15 and tau == 7: m.after = (lambda G, hd=hd: s.finalize_items(hd, Odst, G, ('fin', hd)))
            if CFG.get('msum') and tau in (2, 5):
                g_ = 0 if tau == 2 else 1
                Lm = LM[hd % 2].sub(4 * g_, 4)
                m.extra = mfma(Lm, vONES, P.sub(4 * g_, 4), 0 if j == 0 else Lm)
            mf.append(m)
        return mf
    def add_pa(s, Qs, Os):
        nh = len(Qs); dyn = CFG.get('pa_dyn', True)
        Msh = CFG['shape'] == 'M'
        qk, pv = (s.qkM, s.pvM) if Msh else (s.qk, s.pv)
        s.stages.append(Stage("PAmini", qk(0, 0, Qs[0], 0), dma_pa([(0, sKb[0], 0)], None), dyn=dyn, pre_dma=lambda: set_offw(256, 'M' if Msh else 'pi')))
        for hd in range(nh):
            for st in range(8):
                mf = qk(hd, 2 * st + 1, Qs[hd], 0) + pv(hd, 2 * st, 0, Os[hd])
                kt = [(0, sKb[hd], 8192)]
                if st < 7:
                    mf += qk(hd, 2 * st + 2, Qs[hd], 1); kt.append((1, sKb[hd], 16384))
                elif hd + 1 < nh:
                    mf += qk(hd + 1, 0, Qs[hd + 1], 1); kt.append((1, sKb[hd + 1], 0))
                mf += pv(hd, 2 * st + 1, 1, Os[hd])
                pre = None
                if st > 0: pre = (lambda hd=hd: [salu('s_add_u32', sKb[hd], sKb[hd], 16384), salu('s_add_u32', sVb[hd], sVb[hd], 16384)])
                x = Stage(f"PAh{hd}s{st}", mf, dma_pa(kt, (sVb[hd], 0)), dyn=dyn, mark=dyn, pre_dma=pre)
                x.pa = True
                s.stages.append(x)
        s.stages[-8 * nh - 1].pa = True
    def softmax_h(s, j, H, G):
        S = H['S'][j % 2]; P = H['P'][j % 2]; A = []
        for g in range(2):
            for T in range(2):
                idx = [8 * T + 4 * g + e for e in range(4)]
                for i in idx: A.append(valu('v_exp_f32', S[i], S[i]))
                for k in range(2): A.append(valu('v_cvt_pk_bf16_f32', P[4 * g + 2 * T + k], S[idx[2 * k]], S[idx[2 * k + 1]]))
        s.push(A, G, ('P', H['i'], j))
    def finalize_g(s, grp, G):
        it = []; inv = {}
        for n, H in enumerate(grp):
            inv[H['i']] = [v(250 + 2 * n), v(251 + 2 * n)]
            for g in range(2): it.append(valu('v_mov_b32', Lsave[2 * H['i'] + g], H['LM'][4 * g]))
        for H in grp:
            for g in range(2): it.append(valu('v_rcp_f32', inv[H['i']][g], Lsave[2 * H['i'] + g]))
        s.push(it, G, ('lm', grp[0]['i']))
        for H in grp:
            it = []; O = H['O']; k = 0
            for kk in range(4):
                dst = H['OF'](kk)
                if O.k == 'a':
                    tt = v(230, 16)
                    for e in range(16): it.append(valu('v_accvgpr_read_b32', tt[e], O[16 * kk + e]))
                    for e in range(16): it.append(valu('v_mul_f32', tt[e], tt[e], inv[H['i']][(e >> 2) & 1]))
                    for e in range(0, 16, 2): it.append(valu('v_cvt_pk_bf16_f32', tt[e], tt[e], tt[e + 1]))
                    for g in range(2):
                        for T in range(2):
                            for c in range(2): it.append(valu('v_accvgpr_write_b32', dst[4 * g + 2 * T + c], tt[8 * T + 4 * g + 2 * c]))
                else:
                    for g in range(2):
                        for T in range(2):
                            tt = v(230 + 4 * (k % 4), 4); k += 1
                            for e in range(4): it.append(valu('v_mul_f32', tt[e], O[8 * (2 * kk + T) + 4 * g + e], inv[H['i']][g]))
                            for c in range(2): it.append(valu('v_cvt_pk_bf16_f32', tt[2 * c], tt[2 * c], tt[2 * c + 1]))
                            for c in range(2): it.append(valu('v_accvgpr_write_b32', dst[4 * g + 2 * T + c], tt[2 * c]))
            s.push(it, G, ('fin', H['i']))
    def qk_g(s, grp, j, pos):
        mf = []
        for t in range(4):
            for T in range(2):
                m = []
                for n, H in enumerate(grp):
                    Q = H['Q']
                    m += pair(H['S'][j % 2], T, [Q.sub(8 * t, 4), Q.sub(8 * t + 4, 4)], t == 0, (T + n) & 1)
                m = MF(m, rd_k(pos, T, t))
                if t == 0 and T == 0:
                    if j == 0:
                        for H in grp: m.need += [('reg', H['Q'].n + 8 * i) for i in range(4)]
                    if j <= 1: m.need += grp[0].get('need_qk', [])
                if t == 3 and T == 1: m.after = (lambda G, j=j: [s.softmax_h(j, H, G) for H in grp])
                mf.append(m)
        return mf
    def pv_g(s, grp, j, kk):
        mf = []
        ex = {1: (0, 0), 3: (0, 1), 5: (1, 0), 7: (1, 1)} if len(grp) == 2 else {2: (0, 0), 5: (0, 1)}
        for tau in range(8):
            m = []
            for n, H in enumerate(grp):
                P = H['P'][j % 2]
                m += pair(H['O'], tau, [P.sub(0, 4), P.sub(4, 4)], j == 0, (tau + n) & 1)
            m = MF(m, rd_w(tau % 4, kk, VOFF + (tau // 4) * KT))
            if tau == 0:
                m.need = [('P', H['i'], j) for H in grp]
                if j == 0: m.need += grp[0].get('need_pv', [])
            if j == 15 and tau == 7: m.after = (lambda G: s.finalize_g(grp, G))
            if tau in ex:
                n, g_ = ex[tau]; H = grp[n]; Lm = H['LM'].sub(4 * g_, 4)
                m.extra = mfma(Lm, vONES, H['P'][j % 2].sub(4 * g_, 4), 0 if j == 0 else Lm)
            mf.append(m)
        return mf
    def add_pa_g(s, groups):
        ng = len(groups)
        s.stages.append(Stage("PAmini", s.qk_g(groups[0], 0, 0), dma_pa([(0, sKb[0], 0)], None), dyn=True, pre_dma=lambda: set_offw(256, 'pi')))
        s.stages[-1].pa = True
        for gi, grp in enumerate(groups):
            for st in range(8):
                mf = s.qk_g(grp, 2 * st + 1, 0) + s.pv_g(grp, 2 * st, 0)
                kt = [(0, sKb[gi], 8192)]
                if st < 7:
                    mf += s.qk_g(grp, 2 * st + 2, 1); kt.append((1, sKb[gi], 16384))
                elif gi + 1 < ng:
                    mf += s.qk_g(groups[gi + 1], 0, 1); kt.append((1, sKb[gi + 1], 0))
                mf += s.pv_g(grp, 2 * st + 1, 1)
                pre = None
                if st > 0: pre = (lambda gi=gi: [salu('s_add_u32', sKb[gi], sKb[gi], 16384), salu('s_add_u32', sVb[gi], sVb[gi], 16384)])
                x = Stage(f"PAh{gi}s{st}", mf, dma_pa(kt, (sVb[gi], 0)), dyn=True, mark=True, pre_dma=pre)
                x.pa = True
                s.stages.append(x)

    def accwM(s, acc, dst, G, dl, tail):
        it = [valu('v_accvgpr_write_b32', dst[q], acc[2 * q]) for q in range(8)]
        if tail is None: s.push(it, G, dl, ('reg', dst.n), 2)
        else:
            for i in it: s.q2.append(VQ(i, tail, dl))
            s.q2[-1].key = ('reg', dst.n)
    def epi_siluM(s, acc, dst, G, dl, tail=None):
        items = []
        for j0 in (0, 4, 2, 6):
            t = s.tmp(4); el = [(t[e], acc[2 * j0 + e]) for e in range(4)]
            for (tt, x) in el: items.append(valu('v_exp_f32', tt, x))
            for (tt, x) in el: items.append(valu('v_add_f32', tt, 1.0, tt))
            for (tt, x) in el: items.append(valu('v_rcp_f32', tt, tt))
            for (tt, x) in el: items.append(valu('v_mul_f32', tt, x, tt))
            for k in range(2): items.append(valu('v_cvt_pk_bf16_f32', acc[2 * (j0 + k)], t[2 * k], t[2 * k + 1]))
            if j0 >= 4:
                sw = [valu('v_permlane16_swap_b32', acc[2 * (j0 - 4 + k)], acc[2 * (j0 + k)], rmw=True, extra_wr=[acc[2 * (j0 + k)]]) for k in range(2)]
                if j0 == 4: hold = sw
                else: items += hold + sw
        s.push(items, G, ('tail', tail) if tail is not None else dl, None, 2)
        s.accwM(acc, dst, G, dl, tail)
    def epi_qM(s, acc, dst, G, dl, tail=None):
        items = []
        for j0 in (0, 2, 4, 6):
            for e in range(4): items.append(valu('v_mul_f32', acc[2 * j0 + e], sLN0, acc[2 * j0 + e]))
            for k in range(2): items.append(valu('v_cvt_pk_bf16_f32', acc[2 * (j0 + k)], acc[2 * (j0 + k)], acc[2 * (j0 + k) + 1]))
        s.push(items, G, ('tail', tail) if tail is not None else dl, None, 2)
        s.accwM(acc, dst, G, dl, tail)
    def add_p1_unitM(s, uidx, srd, sA, sC, pitch, first, dst, epi, pre=None, last=False, key='P1', inreg=None):
        acc = ACC[uidx % 2]; TL = CFG.get('tail', 8)
        g0 = sum(len(st.mf) for st in s.stages)
        for b in range(2):
            mf = []
            for T in range(2):
                D = acc.sub(16 * T, 16)
                for kk in range(18):
                    t = 18 * b + kk
                    m = MF([(D, XM(t), 0 if t == 0 else D)], rd_wM(T, kk))
                    if t == 0: m.need = [('acc', D.n)]
                    if t == 35:
                        tail = None if last else g0 + 144 - TL
                        m.after = (lambda G, D=D, T=T, tail=tail: epi(D, dst.sub(8 * T, 8), G, ('acc', D.n), tail))
                    mf.append(m)
            def pre_(b=b):
                out = []
                if pre: out += pre()
                if not first: out += [salu('s_add_u32', sA, sA, 128), salu('s_add_u32', sC, sC, 128)]
                return out
            st = Stage(f"P1u{uidx}b{b}", mf, dma_w(srd, sA, b * 288 * pitch, pitch, sC, b * 288 * pitch), pre_dma=pre_ if (b == 0 and (pre or not first)) else None)
            s.stages.append(st)
        s.regions[g0] = ('begin', f"{key}{uidx % 2}")
        s.regions[g0 + 72 - TL] = ('end', None)
        s.stages[-1].mf[36 - TL].need.append(('tail', g0 + 72 - TL))
        if uidx == 0: s.phantoms[g0 + 72 - TL] = 16
        for j_, f_ in enumerate(inreg or []):
            if f_: s.pf.setdefault(len(s.stages) - 1 - j_, []).append(f_)
    def add_p1_halfM(s, uidx, dst):
        D = ACC[uidx % 2].sub(0, 16); mf = []
        for t in range(36):
            m = MF([(D, XM(t), 0 if t == 0 else D)], rd_hM(t))
            if t == 0: m.need = [('acc', D.n)]
            if t == 35: m.after = (lambda G: s.epi_siluM(D, dst, G, ('acc', D.n)))
            mf.append(m)
        st = Stage("P1half", mf, dma_half(sW1, 9216)); st.half = True
        s.stages.append(st)
    def softmaxM(s, j, hd, G):
        S = Sreg[j % 2]; P = Preg[j % 2]; L = Lacc[hd % 2]
        for u in range(2):
            items = []; adds = []
            for q0 in (0, 2):
                idx = [8 * u + 2 * q0 + e for e in range(4)]
                for i in idx: items.append(valu('v_exp_f32', S[i], S[i]))
                for k in range(2): items.append(valu('v_cvt_pk_bf16_f32', P[4 * u + q0 + k], S[idx[2 * k]], S[idx[2 * k + 1]]))
                a_ = [valu('v_mov_b32', L[e], S[i]) if (j == 0 and u == 0 and q0 == 0) else valu('v_add_f32', L[e], L[e], S[i]) for e, i in enumerate(idx)]
                if q0 == 0: items += a_
                else: adds = a_
            s.push(items, G, ('P', hd, j, u), None, 2); s.push(adds, G, ('S', hd, j), None, 2)
    def finalizeM(s, hd, dst, G, dl):
        O = Oset[hd % 2]; L = Lacc[hd % 2]
        t0, t1 = v(FT0), v(FT0 + 1)
        it = [valu('v_add_f32', L[0], L[0], L[1]), valu('v_add_f32', L[2], L[2], L[3]), valu('v_add_f32', t0, L[0], L[2]),
              valu('v_mov_b32', t1, t0), valu('v_permlane32_swap_b32', t0, t1, rmw=True, extra_wr=[t1]),
              valu('v_add_f32', Lsave[hd], t0, t1), valu('v_rcp_f32', t0, Lsave[hd])]
        for tau in range(4):
            A_ = O.sub(16 * tau, 16)
            for e in range(16): it.append(valu('v_mul_f32', A_[e], A_[e], t0))
            for q in range(8): it.append(valu('v_cvt_pk_bf16_f32', A_[2 * q], A_[2 * q], A_[2 * q + 1]))
            for q in range(4): it.append(valu('v_permlane16_swap_b32', A_[2 * q], A_[2 * q + 8], rmw=True, extra_wr=[A_[2 * q + 8]]))
            for q in range(8): it.append(valu('v_accvgpr_write_b32', dst[8 * tau + q], A_[2 * q]))
        s.push(it, G, dl, None, 2)
    def qkM(s, hd, j, Q, pos):
        mf = []; S = Sreg[j % 2]
        for t in range(8):
            m = MF([(S, Q.sub(4 * t, 4), 0 if t == 0 else S)], rd_kM(pos, t))
            if t == 0:
                m.need = [('S', hd, j - 2) if j >= 2 else ('S', hd - 1, 14 + j)]
                if j == 0: m.need += [('reg', Q.n + 8 * i) for i in range(4)]
            if t == 7: m.after = (lambda G, j=j, hd=hd: s.softmaxM(j, hd, G))
            mf.append(m)
        return mf
    def pvM(s, hd, j, kk, Odst):
        mf = []; O = Oset[hd % 2]; P = Preg[j % 2]
        for u in range(2):
            for tau in range(4):
                D = O.sub(16 * tau, 16)
                m = MF([(D, P.sub(4 * u, 4), 0 if (j == 0 and u == 0) else D)], rd_wM(tau % 2, 2 * kk + u, VOFF + (tau // 2) * KT))
                if tau == 0:
                    m.need = [('P', hd, j, u)]
                    if j == 0 and u == 0 and hd >= 1: m.need += [('fin', hd - 2)] + [('acc', 48 + 16 * i) for i in range(4)]
                if j == 15 and u == 1 and tau == 3: m.after = (lambda G, hd=hd: s.finalizeM(hd, Odst, G, ('fin', hd)))
                mf.append(m)
        return mf

    def p2_epi(s, h, G, sreg, c, lastg):
        acc = P2ACC.sub(16 * h, 16); pk = P2PK[h]; it = []
        for g in range(2):
            for T in range(2):
                for cc in range(2): it.append(valu('v_cvt_pk_bf16_f32', pk[4 * g + 2 * T + cc], acc[8 * T + 4 * g + 2 * cc], acc[8 * T + 4 * g + 2 * cc + 1]))
            st_ = bstore('buffer_store_dwordx4', pk.sub(4 * g, 4), vLANE16, sWS, sreg, h * 2048 + g * 1024, CFG['store_flags']); st_.tag = ('st', c)
            if not CFG.get('nostore'): it.append(st_)
        if h == 1: it.append(salu('s_add_u32', sreg, sreg, 4096))
        s.push(it, G, ('p2acc', h))
    def add_p2(s, gemms, bump, pre0=None):
        s.nst_chunk = 4 * len(gemms)
        for c in range(9):
            sub = 0
            for gi, (Bf, stage_rows, dmas, needs, sreg) in enumerate(gemms):
                if isinstance(Bf, R): Bf = [Bf.sub(8 * t_, 8) for t_ in range(Bf.c // 8)]
                nk = len(Bf); k0 = 0
                for b, rows in enumerate(stage_rows):
                    n = rows // 32; mf = []
                    for h in range(2):
                        for kk in range(n):
                            t = k0 + kk
                            for T in (2 * h, 2 * h + 1):
                                m = MF(pair(P2ACC, T, [Bf[t].sub(0, 4), Bf[t].sub(4, 4)], t == 0, T & 1), rd_w(T, kk))
                                if t == 0 and T % 2 == 0: m.need.append(('p2acc', h))
                                if c == 0 and T == 0 and needs.get(t): m.need += needs[t]
                                if t == nk - 1 and T % 2 == 1: m.after = (lambda G, h=h, sreg=sreg, c=c: s.p2_epi(h, G, sreg, c, None))
                                mf.append(m)
                    pre = (pre0 if c == 0 else (lambda: list(bump))) if sub == 0 else None
                    st = Stage(f"P2c{c}b{sub}", mf, dmas[b], dyn=True, mark=(sub == 0), pre_dma=pre)
                    st.chunk = c; st.sub = sub
                    s.stages.append(st); k0 += n; sub += 1

    def flush_need(s, need):
        if not need: return
        last = -1
        for k, it in enumerate(s.q):
            if it.dl in need or it.key in need: last = k
        for it in s.q[:last + 1]: s.p.emit(it.i); s.forced += it.i.units
        del s.q[:last + 1]
        last = -1
        for k, it in enumerate(s.q2):
            if it.dl in need or it.key in need: last = k
        for it in s.q2[:last + 1]: s.p.emit(it.i); s.forced += it.i.units
        del s.q2[:last + 1]
    def deadline(s, it, G):
        best = None
        for key in (it.dl, it.key):
            if key is None: continue
            for g in s.need_gap.get(key, ()):
                if g >= G:
                    if g >= it.ready and (best is None or g < best): best = g
                    break
        return best
    def fill(s, G, budget):
        p = s.p
        while s.q and budget > 0:
            h = s.q[0]
            if h.ready <= G and h.i.units <= budget + (1 if h.i.units == 3 else 0):
                it = s.q.pop(0)
                if CFG.get('latest') and ((it.i.kind == 'vstore' and any(x[-1].kind == 'dma' for x in s.side)) or
                                          (it.i.kind in ('salu', 'vstore') and any(x[-1].kind == 'vstore' and isinstance(x[-1].tag, tuple) for x in s.side))):
                    s.side.append([it.i]); continue
                p.emit(it.i); budget -= it.i.units
                continue
            if not CFG.get('ooo', True): break
            found = None; rd = set(); wr = set()
            for k, it in enumerate(s.q[:24]):
                if k and it.ready <= G and it.i.units == 1 and it.i.kind == 'valu' and not (it.i.rd & wr) and not (it.i.wr & (rd | wr)) \
                   and it.key is None and not p.would_pad(it.i):
                    found = k; break
                rd |= it.i.rd; wr |= it.i.wr
            if found is None: break
            it = s.q.pop(found); p.emit(it.i); budget -= 1
        return budget
    def run(s):
        p = s.p; D = getattr(s, 'depth', CFG['depth']); WE = CFG['wevery']
        flat = [(k, n, m) for k, st in enumerate(s.stages) for n, m in enumerate(st.mf)]
        N = len(flat)
        s.need_gap = {}
        for G, (k, n, m) in enumerate(flat):
            for x in m.need: s.need_gap.setdefault(x, []).append(G)
        def mkring(off0):
            fr = []; cur = None; g0 = 0
            for G, (k, n, m) in enumerate(flat):
                st = s.stages[k]
                spec = st.ring or s.ring
                if spec != cur: cur = spec; g0 = G - (off0 if len(spec) > 2 else 0)
                elif len(spec) > 2 and st.mark and n == 0: g0 = G
                fr.append(a(spec[0] + 4 * ((G - g0) % spec[1]), 4))
            ok = all(fr[G].n != fr[G2].n for G in range(N) for G2 in range(max(0, G - D), G))
            return fr, ok
        for off0 in range(16):
            fr_of, ok = mkring(off0)
            if ok: break
        assert ok
        dsidx = {}; side = []; s.side = side; s.forced = 0; dyn_started = [False]
        def open_stage(k):
            st = s.stages[k]
            if st.mark: p.emit(I(f"; MARK {st.name}", 'label', units=0, tag='mark'))
            p.emit(comment(st.name))
            if getattr(st, 'label', None): p.emit(label(st.label))
            for it in side: p.emit(it)
            side.clear()
            cover = getattr(st, 'cover_st', None)
            if cover is not None:
                assert sum(1 for t in p.vm if t == ('st', cover)) == s.nst_chunk, (st.name, cover)
            if not (CFG.get('nowait') and st.name.startswith('P2')): p.emit(waitvm(p.vm_wait_for(lambda t: t == k or (cover is not None and t == ('st', cover)) or (t is not None and t == getattr(st, 'cover_tag', None)))))
            if not (CFG.get('nobar') and st.name.startswith('P2')): p.emit(barrier())
            u = 2
            if CFG['stamps'] == 1 or (CFG['stamps'] == 2 and (k == 0 or st.name in ('P2c0b0', 'PAmini'))): s.stamp(k, CFG['stamps'] == 1)
            if st.dyn:
                first = [smov(sWr, sPrev), smov(sPrev, sRd), smov(sRd, sRdN)]
                if not dyn_started[0]:
                    dyn_started[0] = True
                    first = [smov(sWr, ((k - 2) % 4) * SLOT), smov(sPrev, ((k - 1) % 4) * SLOT), smov(sRd, (k % 4) * SLOT)]
                side.append(first[:2]); side.append(first[2:] + ([salu('s_add_u32', sWrW, sWr, sW2176)] if (k + 2 < len(s.stages) and s.stages[k + 2].pa) else []))
            if st.post_bar: side.append(st.post_bar())
            if k >= 1 and k + 2 < len(s.stages):
                nx = s.stages[k + 2]
                if nx.pre_dma: side.append(nx.pre_dma())
                side.extend(nx.dma(k + 2, st.dyn and nx.dyn))
            for f in s.pf.get(k, ()): side.append(f())
            if st.dyn and k + 1 < len(s.stages):
                side.insert(min(len(side), 5), [salu('s_add_u32', sRdN, sRd, SLOT), salu('s_cmp_lt_u32', None, sRdN, 4 * SLOT),
                                                salu('s_cselect_b32', sRdN, sRdN, 0, scc_w=False, scc_r=True)])
            return u
        def pre_switch(k):
            st = s.stages[k]; out = []
            if st.half: out += [valu('v_add_u32', vRH[T], (k % 4) * SLOT, vRH[T]) for T in range(1 if CFG['shape'] == 'M' else 2)]
            if st.dyn:
                for it in side: out += it
                side.clear()
                base = sRdN if dyn_started[0] else (k % 4) * SLOT
                if st.pa and CFG['shape'] == 'M':
                    out += [valu('v_add_u32', vD0, base, vRW[0][0]), valu('v_add_u32', vD1, base, vRW[0][1]),
                            valu('v_add_u32', vDK, base, vRKM[0]), valu('v_add_u32', vDK1, base, vRKM[1])]
                else:
                    out += [valu('v_add_u32', vD0, base, vDP), valu('v_xor_b32', vD1, 32, vD0)]
                    if st.pa: out.append(valu('v_add_u32', vDK, base, vRK[0]))
            return out
        def issue_reads(G):
            k, n, m = flat[G]; u = 0
            if n == 0: u += open_stage(k)
            r = m.reads(fr_of[G], s.stages[k], k)
            p.emit(r); dsidx[G] = p.ds
            return u + len(r)
        for G in range(min(D, N)): issue_reads(G)
        p.emit(waitlg(p.ds - dsidx[min(WE, N) - 1]))
        sidegap = 0
        for G in range(N):
            k, n, m = flat[G]
            s.flush_need(m.need)
            if m.pre: m.pre()
            big = len(m.m) == 1
            (D0, B0, C0) = m.m[0]
            cum = 0; boost = 0
            for it in s.q:
                cum += it.i.units
                g = s.deadline(it, G)
                if g is not None: boost = max(boost, cum / max(g - G, 1))
            p.emit(mfma(D0, fr_of[G], B0, C0))
            if G in s.regions:
                kind_, key_ = s.regions[G]
                p.emit(I(f"; REGION {kind_} {key_}", 'label', units=0, tag=('region', kind_, key_)))
            if G in s.phantoms:
                for _ in range(s.phantoms[G]): s.q2.insert(0, VQ(phantom(), G, None))
            wl = (G + 1) % WE == 0 and G + 1 < N
            if wl: p.emit(waitlg(p.ds - dsidx[min(G + WE, N - 1)]))
            u = 0
            if G + D < N:
                if flat[G + D][1] == 0: sidegap = 0
                u += issue_reads(G + D)
            used = 0
            if big:
                cap = 6; u += 1 if wl else 0
            else:
                cap = 2
                if u < 2:
                    b0 = 2 - u; used = b0 - s.fill(G, b0)
                (D1, B1, C1) = m.m[1]
                p.emit(mfma(D1, fr_of[G], B1, C1))
                u = 0
            if side and sidegap <= 0 and (not big or u <= 3):
                it = side.pop(0)
                tot = sum(x.units for x in it)
                if tot > (cap - u if big else 3) and len(it) > 1 and it[-1].kind in ('dma', 'vload', 'vstore'):
                    p.emit(it[:-1]); u += tot - it[-1].units; side.insert(0, [it[-1]])
                else:
                    p.emit(it); u += tot
                    if it[-1].kind in ('dma', 'vload'): sidegap = CFG['dmastep']
            sidegap -= 1
            if G + D + 1 < N and flat[G + D + 1][1] == 0:
                ps = pre_switch(flat[G + D + 1][0]); p.emit(ps); u += sum(x.units for x in ps)
            if m.after and len(m.m) <= 2: m.after(G)
            nh_ = max(len(m.m) - 1, 1)
            budget = max(cap - u, 0)
            thr = CFG.get('boost_minM', 3.0) if big else (CFG.get('boost_min', 1.4) if nh_ == 1 else CFG.get('boost_min4', 5.0))
            want = math.ceil(boost - used - 0.01) if boost > thr else 0
            if nh_ == 1:
                budget = max(budget, want)
                n2 = 0
                while s.q2 and s.q2[0].ready <= G and n2 < 2:
                    it = s.q2.pop(0); p.emit(it.i); n2 += 1; budget -= 1
                s.fill(G, max(budget, want - 1 if n2 else budget))
            else:
                for hh in range(nh_):
                    if hh:
                        if p.ins[-1].kind == 'mfma': p.emit(nop(0))
                        (Dx, Bx, Cx) = m.m[hh + 1]
                        p.emit(mfma(Dx, fr_of[G], Bx, Cx)); budget = 2
                    b_ = max(budget, math.ceil(want / (nh_ - hh)))
                    want -= b_ - s.fill(G, b_)
            if m.after and len(m.m) > 2: m.after(G)
            if m.extra is not None:
                p.emit(m.extra); s.fill(G, 2)
            dg = CFG.get('diag', '')
            nm_ = s.stages[k].name
            if (dg == 'X' and s.kind == 'F' and nm_.startswith('P2')) or (dg == 'Y' and s.kind == 'A' and nm_.startswith('PA')) or (dg == 'W' and s.kind == 'A' and nm_.startswith('P2')):
                p.emit(nop(0)); p.emit(nop(0)); p.emit(nop(0))
            if dg == 'Z' and nm_.startswith('P2') and p.ins[-1].kind == 'mfma':
                p.emit(valu('v_exp_f32', v(200 + G % 8), v(112 + G % 32)))
            if p.ins[-1].kind == 'mfma' and not big:
                if CFG.get('splitr', True) and p.ins[-2].kind == 'ds' and p.ins[-3].kind == 'ds':
                    p.ins[-1], p.ins[-2] = p.ins[-2], p.ins[-1]
                else: p.emit(nop(0))
        for it in side: p.emit(it)
        if getattr(s, 'before_drain', None): s.before_drain()
        for it in s.q + s.q2: p.emit(it.i)
        s.q = []; s.q2 = []
    def stamp(s, k, run=False):
        p = s.p
        p.emit(raw(f"s_memtime {sSTAMP}", wr=[sSTAMP]))
        p.emit(raw("s_waitcnt lgkmcnt(0)"))
        p.emit(salu('s_sub_u32', s_(98), s_(98), s_(100)))
        if not run:
            p.emit(raw(f"v_writelane_b32 {vSTAMP}, s98, {k}", 'valu', wr=[vSTAMP], rd=[s_(98)]))
        else:
            p.emit(raw(f"v_cmp_eq_u32 vcc, s97, {vLANE16}", 'valu', wr=['vcc'], rd=[s_(97), vLANE16]))
            p.emit(valu('v_mov_b32', vDUM, s_(98)))
            p.emit(salu('s_add_u32', s_(97), s_(97), 16))
            p.emit(valu('v_cndmask_b32', vSTAMP, vSTAMP, vDUM, 'vcc'))
```

```python
import sys, re
from s1 import *

ROLE_TAB = [0, 1, 2, 11, 3, 4, 5, 12, 6, 7, 13, 14, 8, 9, 10, 15]
vPFR = v(36)
vPRG = v(36)
PART = 4 * PWAVE
NPART = 17
WSP_BYTES = NPART * 16 * PART
def PSTR(): return 16 * PART + (CFG.get('pskew', 0) if CFG['fused'] else 0)
sJQ, sQ0, sOA1, sOB1 = s(73), s(59), s(74), s(75)
STAMP_OFF = 0x3000000
CTRL = 0x2800000
OOB = 0x10000000

def srd(p, dst, lo, nbytes):
    p.emit([smov(dst[0], s(lo)), salu('s_and_b32', dst[1], s(lo + 1), 0xffff), smov(dst[2], nbytes), smov(dst[3], 0x20000)])
def xdma(j):
    return [salu('s_add_u32', 'm0', s(6), j * 4096), salu('s_add_u32', sT, s(7), j * 128)] + [dma(v(16 + q), sX, sT, q * 1024, tag=('x', j)) for q in range(4)]
def mul(d, a_, b_): return salu('s_mul_i32', d, a_, b_, scc_w=False)
def add(d, a_, b_): return salu('s_add_u32', d, a_, b_)
def shl(d, a_, b_): return salu('s_lshl_b32', d, a_, b_)
def shr(d, a_, b_): return salu('s_lshr_b32', d, a_, b_)
def csel(d, a_, b_): return salu('s_cselect_b32', d, a_, b_, scc_w=False, scc_r=True)

def common_prologue():
    if CFG.get('entry', 0) == 0: return common_prologue_old()
    assert CFG['xe'] == 9 and CFG.get('map', 4) == 4
    p = Prog(); E = p.emit
    E(raw("s_load_dwordx8 s[40:47], s[0:1], 0", wr=[s(40, 8)]))
    E(salu('s_cmp_ge_u32', None, s(2), 256))
    E(raw("s_cbranch_scc0 L_go")); E(raw("s_endpgm")); E(label("L_go"))
    if CFG['stamps']:
        E(raw(f"s_memtime {sT0}", wr=[sT0])); E(raw("s_memrealtime s[96:97]", wr=[s(96, 2)]))
    E(valu('v_lshrrev_b32', v(1), 6, v(0)))
    E(salu('s_and_b32', s(3), s(2), 1)); E(shl(s(3), s(3), 3))
    E(valu('v_readfirstlane_b32', sWAVE, v(1)))
    E(shr(sRB, s(2), 5)); E(salu('s_or_b32', sRB, sRB, s(3)))
    E(valu('v_and_b32', v(0), 63, v(0)))
    E(valu('v_lshrrev_b32', vROWN, 3, v(0)))
    E(valu('v_and_b32', v(20), 7, v(0))); E(valu('v_lshrrev_b32', v(21), 4, v(0)))
    E(valu('v_xor_b32', v(22), v(20), v(21))); E(valu('v_xor_b32', v(23), 4, v(22)))
    E(salu('s_movk_i32', s(3), 1152, scc_w=False)); E(valu('v_mul_u32_u24', v(24), s(3), vROWN))
    E(valu('v_lshl_add_u32', v(16), v(22), 4, v(24))); E(valu('v_lshl_add_u32', v(17), v(23), 4, v(24)))
    E(valu('v_add_u32', v(17), 8 * 1152 - 1024, v(17)))
    E(valu('v_add_u32', v(18), 2 * (8 * 1152 - 1024), v(16))); E(valu('v_add_u32', v(19), 2 * (8 * 1152 - 1024), v(17)))
    E(mul(s(6), sWAVE, XW)); E(raw("s_lshl2_add_u32 s7, s64, s62", 'salu', wr=[s(7)], rd=[sRB, sWAVE])); E(mul(sT, s(7), 32 * 1152))
    E(smov('m0', s(6))); E(add(s(7), sT, 9 * 128))
    E(smov(sX[2], 2359296)); E(smov(sX[3], 0x20000))
    E(raw("s_waitcnt lgkmcnt(0)"))
    E(smov(sX[0], s(40))); E(salu('s_and_b32', sX[1], s(41), 0xffff))
    E(label("L_xl"))
    n0 = len(p.vm)
    for q in range(4): E(dma(v(16 + q), sX, sT, q * 1024))
    del p.vm[n0:]
    for j in range(9): p.vm += [('x', j)] * 4
    E(add(sT, sT, 128)); E(add('m0', 'm0', 4096)); E(salu('s_cmp_lt_u32', None, sT, s(7))); E(raw("s_cbranch_scc1 L_xl"))
    return p
def common_prologue2(p):
    E = p.emit
    tab = ROLE_TAB
    lo = sum(tab[i] << (4 * i) for i in range(8)); hi = sum(tab[8 + i] << (4 * i) for i in range(8))
    E(salu('s_bfe_u32', s(3), s(2), (2 << 16) | 3)); E(salu('s_bfe_u32', s(4), s(2), (1 << 16) | 1))
    E(shl(s(4), s(4), 2)); E(salu('s_or_b32', s(3), s(3), s(4))); E(shl(s(3), s(3), 2))
    E(salu('s_bitcmp1_b32', None, s(2), 2))
    E(smov(s(4), lo)); E(csel(s(4), hi, s(4)))
    E(shr(s(4), s(4), s(3))); E(salu('s_and_b32', sROLE, s(4), 15))
    E(raw(f"s_getpc_b64 {sPC}", wr=[sPC])); E(label("L_pc"))
    E(smov(s(4), "L_roleA-L_pc")); E(smov(s(5), "L_roleA_end-L_pc-4"))
    E(salu('s_cmp_eq_u32', None, sROLE, 10)); E(csel(s(4), "L_roleM-L_pc", s(4))); E(csel(s(5), "L_roleM_end-L_pc-4", s(5)))
    E(salu('s_cmp_gt_u32', None, sROLE, 10)); E(csel(s(4), "L_roleF-L_pc", s(4))); E(csel(s(5), "L_roleF_end-L_pc-4", s(5)))
    n0 = CFG.get('code0', 16); NL = CFG.get('codelines', 24)
    if n0:
        E(mul(s(3), sWAVE, n0 * 128)); E(add(s(3), s(3), s(4)))
        E(valu('v_min_u32', v(2), n0 - 1, v(0))); E(valu('v_lshlrev_b32', v(2), 7, v(2))); E(valu('v_add_u32', v(2), s(3), v(2)))
        E(I(f"global_load_dword {vDUM}, v2, {sPC}", 'vload', wr=vDUM.regs(), rd=vr(2) + sPC.regs(), tag='pf'))
    E(salu('s_and_b32', s(3), sRB, 7)); E(shl(s(3), s(3), 2)); E(add(s(3), s(3), sWAVE))
    E(mul(s(3), s(3), NL * 128)); E(add(s(3), s(3), s(4)))
    E(valu('v_min_u32', v(2), NL - 1, v(0))); E(valu('v_lshlrev_b32', v(2), 7, v(2))); E(valu('v_add_u32', v(2), s(3), v(2)))
    E(valu('v_min_u32', v(3), s(5), v(2)))
    E(I(f"global_load_dword {vDUM}, v3, {sPC}", 'vload', wr=vDUM.regs(), rd=vr(3) + sPC.regs(), tag='pf'))
def common_prologue3(p):
    E = p.emit
    E(raw("s_load_dwordx2 s[48:49], s[0:1], 32", wr=[s(48, 2)]))
    E(raw("s_load_dwordx8 s[52:59], s[0:1], 48", wr=[s(52, 8)]))
    E(raw("s_load_dwordx2 s[50:51], s[0:1], 80", wr=[s(50, 2)]))
    srd(p, sK, 42, 8388608); srd(p, sV, 44, 8388608); srd(p, sWQ, 46, 4718592)
    E(mul(sW8704, sWAVE, 8 * PP)); E(mul(sWC, sWAVE, PP)); E(add(sWC, sWC, 32 * PP))
    E(shl(sW8192, sWAVE, 13)); E(shl(sWCH, sWAVE, 10)); E(add(sWCH, sWCH, 32768))
    E(mul(sW2176, sWAVE, 2 * PP)); E(mul(sW4352, sWAVE, 4 * PP)); E(add(sWA2, sW2176, 16 * PP))
    E(raw("s_waitcnt lgkmcnt(0)"))
    srd(p, sWO, 48, 4718592)
    srd(p, sW1, 52, 5308416); srd(p, sW2, 54, 5308416); srd(p, sWS, 50, 0x10000000 if (CFG['stamps'] or CFG['fused']) else WSP_BYTES)
    srd(p, sOUT, 56, 2359296); srd(p, sDBG, 58, 256)

def common_prologue_old():
    p = Prog(); E = p.emit
    E(salu('s_cmp_ge_u32', None, s(2), 256))
    E(raw("s_cbranch_scc0 L_go")); E(raw("s_endpgm")); E(label("L_go"))
    E(raw("s_load_dwordx8 s[40:47], s[0:1], 0", wr=[s(40, 8)]))
    E(raw("s_load_dwordx2 s[48:49], s[0:1], 32", wr=[s(48, 2)]))
    E(raw("s_load_dwordx8 s[52:59], s[0:1], 48", wr=[s(52, 8)]))
    E(raw("s_load_dwordx2 s[50:51], s[0:1], 80", wr=[s(50, 2)]))
    if CFG['stamps']:
        E(raw(f"s_memtime {sT0}", wr=[sT0])); E(raw("s_memrealtime s[96:97]", wr=[s(96, 2)]))
    tab = ROLE_TAB
    if CFG.get('map', 4) == 2:
        t2 = [0, 1, 2, 3, 4, 11, 5, 12, 6, 13, 7, 14, 8, 15, 9, 10]
        lo = sum(t2[i] << (4 * i) for i in range(8)); hi = sum(t2[8 + i] << (4 * i) for i in range(8))
        E(salu('s_bfe_u32', s(3), s(2), (1 << 16) | 3)); E(salu('s_and_b32', s(4), s(2), 3)); E(shl(s(4), s(4), 1)); E(salu('s_or_b32', s(3), s(3), s(4))); E(shl(s(3), s(3), 2))
        E(salu('s_bitcmp1_b32', None, s(2), 2)); E(smov(s(4), lo)); E(csel(s(4), hi, s(4)))
        E(shr(s(4), s(4), s(3))); E(salu('s_and_b32', sROLE, s(4), 15)); E(shr(sRB, s(2), 4))
    else:
        lo = sum(tab[i] << (4 * i) for i in range(8)); hi = sum(tab[8 + i] << (4 * i) for i in range(8))
        E(salu('s_bfe_u32', s(3), s(2), (2 << 16) | 3)); E(salu('s_bfe_u32', s(4), s(2), (1 << 16) | 1))
        E(shl(s(4), s(4), 2)); E(salu('s_or_b32', s(3), s(3), s(4))); E(shl(s(3), s(3), 2))
        E(salu('s_bitcmp1_b32', None, s(2), 2))
        E(smov(s(4), lo)); E(csel(s(4), hi, s(4)))
        E(shr(s(4), s(4), s(3))); E(salu('s_and_b32', sROLE, s(4), 15))
        E(salu('s_and_b32', s(3), s(2), 1)); E(shl(s(3), s(3), 3))
        E(shr(sRB, s(2), 5)); E(salu('s_or_b32', sRB, sRB, s(3)))
    E(valu('v_lshrrev_b32', v(1), 6, v(0)))
    E(valu('v_readfirstlane_b32', sWAVE, v(1)))
    E(valu('v_and_b32', v(0), 63, v(0)))
    E(valu('v_lshrrev_b32', vROWN, 3, v(0)))
    E(valu('v_and_b32', v(20), 7, v(0))); E(valu('v_lshrrev_b32', v(21), 4, v(0)))
    E(valu('v_xor_b32', v(22), v(20), v(21))); E(valu('v_xor_b32', v(23), 4, v(22)))
    E(smov(s(3), 1152)); E(valu('v_mul_u32_u24', v(24), s(3), vROWN))
    E(valu('v_lshl_add_u32', v(16), v(22), 4, v(24))); E(valu('v_lshl_add_u32', v(17), v(23), 4, v(24)))
    E(valu('v_add_u32', v(17), 8 * 1152 - 1024, v(17)))
    E(valu('v_add_u32', v(18), 2 * (8 * 1152 - 1024), v(16))); E(valu('v_add_u32', v(19), 2 * (8 * 1152 - 1024), v(17)))
    E(mul(s(6), sWAVE, XW))
    E(shl(s(7), sRB, 2)); E(add(s(7), s(7), sWAVE)); E(mul(s(7), s(7), 32 * 1152))
    E(raw(f"s_getpc_b64 {sPC}", wr=[sPC])); E(label("L_pc"))
    E(smov(s(4), "L_roleA-L_pc")); E(smov(s(5), "L_roleA_end-L_pc-4"))
    E(salu('s_cmp_eq_u32', None, sROLE, 10)); E(csel(s(4), "L_roleM-L_pc", s(4))); E(csel(s(5), "L_roleM_end-L_pc-4", s(5)))
    E(salu('s_cmp_gt_u32', None, sROLE, 10)); E(csel(s(4), "L_roleF-L_pc", s(4))); E(csel(s(5), "L_roleF_end-L_pc-4", s(5)))
    def code_pf():
        NL = CFG.get('codelines', 24)
        E(salu('s_and_b32', s(3), sRB, 7)); E(shl(s(3), s(3), 2)); E(add(s(3), s(3), sWAVE))
        E(mul(s(3), s(3), NL * 128)); E(add(s(3), s(3), s(4)))
        E(valu('v_min_u32', v(2), NL - 1, v(0))); E(valu('v_lshlrev_b32', v(2), 7, v(2))); E(valu('v_add_u32', v(2), s(3), v(2)))
        E(valu('v_min_u32', v(3), s(5), v(2)))
        E(I(f"global_load_dword {vDUM}, v3, {sPC}", 'vload', wr=vDUM.regs(), rd=vr(3) + sPC.regs(), tag='pf'))
    if CFG.get('codepf', 3) >= 3:
        n0 = CFG.get('code0', 16)
        if n0:
            E(mul(s(3), sWAVE, n0 * 128)); E(add(s(3), s(3), s(4)))
            E(valu('v_min_u32', v(2), n0 - 1, v(0))); E(valu('v_lshlrev_b32', v(2), 7, v(2))); E(valu('v_add_u32', v(2), s(3), v(2)))
            E(I(f"global_load_dword {vDUM}, v2, {sPC}", 'vload', wr=vDUM.regs(), rd=vr(2) + sPC.regs(), tag='pf'))
        code_pf()
    E(raw("s_waitcnt lgkmcnt(0)"))
    srd(p, sX, 40, 2359296)
    nx0 = CFG.get('tx', 2) if CFG.get('touch') else 0
    for j in range(nx0): E(xdma(j))
    if CFG.get('touch'):
        E(salu('s_cmp_gt_u32', None, sROLE, 10))
        E(raw("s_cselect_b64 s[60:61], s[52:53], s[46:47]", 'salu', wr=[s(60, 2)], rd=[s(52, 2), s(46, 2)]))
        E(raw("s_cselect_b64 s[66:67], s[54:55], s[48:49]", 'salu', wr=[s(66, 2)], rd=[s(54, 2), s(48, 2)]))
        E(salu('s_cmp_eq_u32', None, sWAVE, 1)); E(raw("s_cselect_b64 s[60:61], s[66:67], s[60:61]", 'salu', wr=[s(60, 2)], rd=[s(66, 2), s(60, 2)]))
        E(salu('s_cmp_eq_u32', None, sWAVE, 2)); E(raw("s_cselect_b64 s[60:61], s[42:43], s[60:61]", 'salu', wr=[s(60, 2)], rd=[s(42, 2), s(60, 2)]))
        E(salu('s_cmp_eq_u32', None, sWAVE, 3)); E(raw("s_cselect_b64 s[60:61], s[44:45], s[60:61]", 'salu', wr=[s(60, 2)], rd=[s(44, 2), s(60, 2)]))
        E(smov(s(3), 73728)); E(salu('s_cmp_ge_u32', None, sWAVE, 2)); E(csel(s(3), 131072, s(3)))
        E(valu('v_mul_u32_u24', v(2), s(3), v(0)))
        E(I(f"global_load_dword {vDUM}, v2, s[60:61]", 'vload', wr=vDUM.regs(), rd=vr(2) + sr(60, 2), tag='pf'))
    for j in range(nx0, CFG['xe']): E(xdma(j))
    if CFG.get('codepf', 3) == 1: code_pf()
    if CFG.get('codepf', 3) == 2:
        E(valu('v_mov_b32', v(46), v(3))); E(raw(f"s_mov_b64 s[100:101], {sPC}", 'salu', wr=[s(100, 2)], rd=[sPC]))
    srd(p, sK, 42, 8388608); srd(p, sV, 44, 8388608); srd(p, sWQ, 46, 4718592); srd(p, sWO, 48, 4718592)
    srd(p, sW1, 52, 5308416); srd(p, sW2, 54, 5308416); srd(p, sWS, 50, 0x10000000 if (CFG['stamps'] or CFG['fused']) else WSP_BYTES)
    srd(p, sOUT, 56, 2359296); srd(p, sDBG, 58, 256)
    E(mul(sW8704, sWAVE, 8 * PP)); E(mul(sWC, sWAVE, PP)); E(add(sWC, sWC, 32 * PP))
    E(shl(sW8192, sWAVE, 13)); E(shl(sWCH, sWAVE, 10)); E(add(sWCH, sWCH, 32768))
    E(mul(sW2176, sWAVE, 2 * PP)); E(mul(sW4352, sWAVE, 4 * PP)); E(add(sWA2, sW2176, 16 * PP))
    return p

def dispatch_text():
    return f""" s_cmp_gt_u32 {sROLE}, 10
 s_cbranch_scc1 L_roleF
 s_cmp_eq_u32 {sROLE}, 10
 s_getpc_b64 s[94:95]
L_pc2:
 s_cbranch_scc1 L_jM
 s_add_u32 s94, s94, L_roleA-L_pc2
 s_addc_u32 s95, s95, 0
 s_setpc_b64 s[94:95]
L_jM:
 s_add_u32 s94, s94, L_roleM-L_pc2
 s_addc_u32 s95, s95, 0
 s_setpc_b64 s[94:95]
"""

def pfload(srd_, base):
    ld = bload('buffer_load_dword', vDUM, vPF, srd_, base); ld.tag = 'pf'; return ld
def pf_lin(srd_, base_s, start, nbytes, nl=64):
    def f():
        return [valu('v_lshrrev_b32', vPF2, 16, vTID), valu('v_and_b32', vPF, 63, vTID), valu('v_min_u32', vPF, nl - 1, vPF),
                valu('v_mad_u32_u24', vPF, vPF2, nl, vPF), valu('v_lshlrev_b32', vPF, 7, vPF), valu('v_add_u32', vPF, start, vPF),
                valu('v_min_u32', vPF, nbytes - 128, vPF), pfload(srd_, base_s)]
    return f
def pf_run(srd_, base_s, nbytes, nl):
    def f():
        return [valu('v_min_u32', vPF, nbytes - 128, vPFR), valu('v_add_u32', vPFR, 64 * nl * 128, vPFR), pfload(srd_, base_s)]
    f.nl = nl
    return f
def vPFW(kind): return {'F': v(8), 'A': v(7), 'M': v(36)}[kind]
def pf_row(kind, srd_, step=128):
    def f():
        ld = bload('buffer_load_dword', vDUM, vPFW(kind), srd_, sPW); ld.tag = 'pf'
        return [add(sPW, sPW, step), ld]
    return f
def pf_row_setup(kind, pitch, nl, base, lit):
    r = vPFW(kind)
    return [valu('v_bfe_u32', vPF2, vTID, 16, 5), valu('v_and_b32', r, 63, vTID), valu('v_min_u32', r, nl - 1, r),
            valu('v_mad_u32_u24', r, vPF2, nl, r), smov(sT2, pitch), valu('v_mul_u32_u24', r, sT2, r), add(sPW, base, lit)]
def pf_code(la, lb, nl):
    def f():
        L = f"L_cp{pf_code.k}"; pf_code.k += 1
        ld = I(f"global_load_dword {vDUM}, {vPF}, {sPC}", 'vload', wr=vDUM.regs(), rd=vPF.regs() + sPC.regs(), units=3, tag='pf')
        return [raw(f"s_getpc_b64 {sPC}", 'salu', wr=[sPC]), label(L),
                salu('s_add_u32', sPC[0], sPC[0], f"{la}-{L}"), salu('s_addc_u32', sPC[1], sPC[1], 0, scc_r=True),
                valu('v_bfe_u32', vPF2, vTID, 16, 5), valu('v_and_b32', vPF, 63, vTID), valu('v_min_u32', vPF, nl - 1, vPF),
                valu('v_mad_u32_u24', vPF, vPF2, nl, vPF), valu('v_lshlrev_b32', vPF, 7, vPF), valu('v_min_u32', vPF, f"{lb}-{la}-4", vPF), ld]
    return f
pf_code.k = 0
def pf_sched(R, k0, srd_, base_s, nbytes, nl):
    per = 64 * nl * 128; k = k0
    for st in range(0, nbytes, per):
        R.pf.setdefault(k, []).append(pf_lin(srd_, base_s, st, nbytes, nl)); k += 1
    return k

def role_prologue(R, vm_before):
    p = R.p; E = p.emit; kind = R.kind
    p.vm = list(vm_before)
    MS = CFG['shape'] == 'M'
    def PS(k):
        if CFG['stamps'] == 1: R.stamp(k)
    PS(56)
    lane = v(0)
    E(shl(sT2, sRB, 2)); E(add(sT2, sT2, sWAVE)); E(shl(sT2, sT2, 16)); E(valu('v_or_b32', vTID, sT2, lane))
    if kind in 'AM' and CFG.get('pair'):
        sHP_, sHS_ = s(86), s(85)
        E(mul(sHP_, sROLE, 3))
        if kind == 'A':
            sHP_, sHS_ = sFA, sFC
            E(mul(sHS_, sROLE, 3)); E(salu('s_and_b32', s(4), sROLE, 1)); E(add(sHP_, sHS_, s(4)))
            E(shl(s(4), s(4), 1)); E(add(sHS_, sHS_, 2)); E(salu('s_sub_u32', sHS_, sHS_, s(4)))
            E(salu('s_sub_u32', sJQ, sHS_, sHP_)); E(shl(sJQ, sJQ, 8)); E(salu('s_sub_u32', sJQ, sJQ, 3 * 128))
        E(shl(sQ0, sHP_, 8))
        E(mul(sQA, sWAVE, 64 * 8192)); E(add(sQA, sQA, sQ0))
        E(shl(sQC, sWAVE, 16)); E(add(sQC, sQC, sQ0)); E(add(sQC, sQC, 256 * 8192))
        E(shr(s(3), sWAVE, 1)); E(shl(s(3), s(3), 13)); E(salu('s_and_b32', s(4), sWAVE, 1)); E(shl(s(4), s(4), 11)); E(add(s(3), s(3), s(4)))
        E(salu('s_sub_u32', s(3), s(3), 64)); E(shl(s(4), sWAVE, 11))
        for e, (h_, pfr) in enumerate([(sHP_, sPFa), (sHS_, sPFb)][:2 if kind == 'A' else 1]):
            E(shr(pfr, h_, 1)); E(shl(pfr, pfr, 19)); E(add(pfr, pfr, 1536 * 256))
            E(add(sKb[e], pfr, s(4))); E(add(sVb[e], pfr, s(3)))
        E(mul(sPFc, sROLE, 384 * 1152))
        if kind == 'A':
            E(mul(sHP_, sHP_, 128 * 1152)); E(mul(sHS_, sHS_, 128 * 1152))
            E(mul(sOA, sWAVE, 32 * 1152)); E(add(sOA1, sOA, sHS_)); E(add(sOA, sOA, sHP_))
            E(salu('s_sub_u32', sOA1, sOA1, 64 * 1152)); E(add(sT3, sOA, 192 * 1152)); E(salu('s_cmp_lt_u32', None, sWAVE, 2)); E(csel(sOA1, sT3, sOA1))
            E(shr(s(3), sWAVE, 1)); E(shl(s(3), s(3), 2)); E(salu('s_and_b32', s(4), sWAVE, 1)); E(add(s(3), s(3), s(4)))
            E(mul(sOB, s(3), 8 * 1152)); E(add(sOB1, sOB, sHS_)); E(add(sOB1, sOB1, 64 * 1152)); E(add(sOB, sOB, sHP_)); E(add(sOB, sOB, 128 * 1152))
        else:
            E(mul(sOA, sWAVE, 64 * 1152)); E(add(sOA, sOA, sPFc))
    elif kind in 'AM':
        E(mul(sT3, sROLE, 3 * 256))
        E(mul(sQA, sWAVE, 64 * 8192)); E(add(sQA, sQA, sT3))
        E(shl(sQC, sWAVE, 16)); E(add(sQC, sQC, sT3)); E(add(sQC, sQC, 256 * 8192))
        E(shr(s(3), sWAVE, 1)); E(shl(s(3), s(3), 13)); E(salu('s_and_b32', s(4), sWAVE, 1)); E(shl(s(4), s(4), 11)); E(add(s(3), s(3), s(4)))
        E(salu('s_sub_u32', s(3), s(3), 64)); E(shl(s(4), sWAVE, 11))
        if MS: E(shl(s(3), sWAVE, 12))
        for e in range(3 if kind == 'A' else 2):
            E(mul(sT3, sROLE, 3)); E(add(sT3, sT3, e)); E(shr(sT3, sT3, 1)); E(shl(sT3, sT3, 19)); E(add(sT3, sT3, 1536 * 256))
            if e == 0: E(smov(sPFa, sT3))
            if e == (2 if kind == 'A' else 1): E(smov(sPFb, sT3))
            E(add(sKb[e], sT3, s(4))); E(add(sVb[e], sT3, s(3)))
        E(mul(sPFc, sROLE, 384 * 1152))
        if kind == 'A':
            E(mul(sOA, sWAVE, 32 * 1152)); E(add(sOA, sOA, sPFc))
            E(shr(s(3), sWAVE, 1)); E(shl(s(3), s(3), 2)); E(salu('s_and_b32', s(4), sWAVE, 1)); E(add(s(3), s(3), s(4)))
            E(mul(sOB, s(3), 8 * 1152)); E(add(sOB, sOB, sPFc)); E(add(sOB, sOB, 128 * 1152))
        else:
            E(mul(sOA, sWAVE, 64 * 1152)); E(add(sOA, sOA, sPFc))
    if kind in 'FM':
        if kind == 'F':
            E(salu('s_sub_u32', s(3), sROLE, 11)); E(mul(sPF1, s(3), 13 * 128)); E(shl(sPF1h, s(3), 6)); E(add(sPF1h, sPF1h, 69 * 128))
        else:
            E(smov(sPF1, f_fullcol(5) * 2)); E(smov(sPF1h, f_halfcol(5) * 2))
        E(mul(sHA, sWAVE, 64 * 9216)); E(add(sHA, sHA, sPF1))
        E(mul(sHC, sWAVE, 8 * 9216)); E(add(sHC, sHC, sPF1)); E(add(sHC, sHC, 256 * 9216))
        E(mul(sHH, sWAVE, 128 * 9216)); E(add(sHH, sHH, sPF1h))
        E(mul(sHHC, sWAVE, 16 * 9216)); E(add(sHHC, sHHC, sPF1h)); E(add(sHHC, sHHC, 512 * 9216))
        E(mul(sPF2, sPF1, 576)); E(mul(sPF2h, sPF1h, 576))
        E(mul(sFA, sWAVE, 64 * 1152)); E(add(sFA, sFA, sPF2))
        if MS:
            E(salu('s_and_b32', s(3), sWAVE, 1)); E(shl(s(3), s(3), 1)); E(shr(s(4), sWAVE, 1)); E(add(s(3), s(3), s(4))); E(mul(sFC, s(3), 8 * 1152))
        else: E(mul(sFC, sWAVE, 4 * 1152))
        E(add(sFS, sFC, sPF2h)); E(add(sFC, sFC, sPF2)); E(add(sFC, sFC, 256 * 1152))
    if CFG['pf'] >= 3:
        if kind in 'AM': E(mul(sT3, sROLE, 3 * 256) if not CFG.get('pair') else smov(sT3, sQ0))
        E(pf_row_setup(kind, 8192 if kind in 'AM' else 9216, 18, sT3 if kind in 'AM' else sPF1, 0))
        f_ = pf_row(kind, sWQ if kind in 'AM' else sW1)
        early_pf = [f_()[1]] + f_() + f_()
    E(add(sT3, sROLE, 1 if kind == 'F' else 0))
    E(mul(sSt, sT3, PSTR())); E(shl(sT3, sRB, 2)); E(add(sT3, sT3, sWAVE)); E(mul(sT3, sT3, PWAVE)); E(add(sSt, sSt, sT3))
    if kind == 'M': E(add(sSt2, sSt, PSTR()))
    if CFG['fused']:
        E(shl(sT2, sRB, 11)); E(add(sT2, sT2, CTRL))
        E(add(sT3, sROLE, 1 if kind == 'F' else 0)); E(shl(sT3, sT3, 2)); E(add(sT3, sT3, sT2))
        E(salu('s_cmp_eq_u32', None, sWAVE, 0)); E(csel(sT3, sT3, OOB)); E(csel(sT2, sT2, OOB))
        E(valu('v_and_b32', v(24), 15, lane)); E(valu('v_lshlrev_b32', v(25), 7, v(24))); E(valu('v_add_u32', v(25), 128, v(25)))
        E(raw("v_cmp_eq_u32 vcc, 0, v24", 'valu', wr=['vcc'], rd=[v(24)])); E(valu('v_cndmask_b32', v(25), v(25), 0, 'vcc') if False else raw("v_cndmask_b32 v25, v25, v24, vcc", 'valu', wr=[v(25)], rd=[v(25), v(24), 'vcc']))
        E(valu('v_lshrrev_b32', v(26), 4, lane)); E(valu('v_lshl_add_u32', v(25), v(26), 2, v(25))); E(valu('v_add_u32', v(25), sT3, v(25)))
        E(raw(f"s_mov_b64 vcc, {hex(0x07ff07ff if kind == 'M' else 0x7ff)}", 'salu', wr=['vcc'])); E(valu('v_mov_b32', vCT, OOB)); E(nop(1))
        E(raw(f"v_cndmask_b32 {vCT}, {vCT}, v25, vcc", 'valu', wr=[vCT], rd=[vCT, v(25), 'vcc']))
        E(valu('v_mov_b32', v(24), vCT))
        if kind == 'A':
            E(salu('s_cmp_eq_u32', None, sROLE, 0)); E(csel(sT2, sT2, OOB))
            E(valu('v_lshl_add_u32', v(25), lane, 2, sT2))
            E(raw("v_cmp_lt_u32 vcc, 16, v0", 'valu', wr=['vcc'], rd=[lane])); E(valu('v_cndmask_b32', v(24), v(24), v(25), 'vcc'))
        E(valu('v_mov_b32', v(25), 0))
        z = bstore('buffer_store_dword', v(25), v(24), sWS, 0, flags='sc1'); z.tag = 'zero'; E(z)
        E(shl(sT2, sRB, 4)); E(salu('s_cmp_eq_u32', None, sWAVE, 0)); E(csel(sT2, sT2, 256))
        E(valu('v_mov_b32', v(23), 256)); E(raw(f"v_writelane_b32 v23, {sT2}, 0", 'valu', wr=[v(23)], rd=[sT2, v(23)]))
    T_ = [v(24), v(25), v(26), v(27), v(28), v(29)]
    q, r, c4, rb1 = T_[0], T_[1], T_[2], T_[3]
    E(valu('v_lshrrev_b32', q, 4, lane)); E(valu('v_bfe_u32', r, lane, 2, 2)); E(valu('v_and_b32', c4, 3, lane)); E(valu('v_bfe_u32', rb1, lane, 3, 1))
    E(valu('v_and_b32', T_[4], 7, lane)); E(valu('v_bfe_u32', T_[5], lane, 4, 1)); E(valu('v_lshlrev_b32', T_[5], 1, T_[5]))
    E(valu('v_xor_b32', T_[4], T_[4], T_[5])); E(valu('v_lshlrev_b32', vSWZ, 4, T_[4]))
    E(valu('v_lshrrev_b32', T_[4], 5, lane)); E(valu('v_and_b32', T_[5], 3, vROWN)); E(valu('v_lshl_add_u32', vROWP, T_[4], 4, T_[5]))
    E(smov(sT2, PP)); E(valu('v_mul_u32_u24', T_[4], sT2, q)); E(valu('v_lshl_add_u32', T_[4], r, 7, T_[4]))
    E(valu('v_lshl_add_u32', T_[4], c4, 3, T_[4])); E(valu('v_lshl_add_u32', vRW[0][0], rb1, 5, T_[4]))
    E(valu('v_mov_b32', vDP, vRW[0][0]))
    if MS:
        E(valu('v_and_b32', T_[4], 7, lane)); E(valu('v_bfe_u32', T_[5], lane, 4, 1)); E(valu('v_lshlrev_b32', T_[5], 2, T_[5]))
        E(valu('v_xor_b32', T_[4], T_[4], T_[5])); E(valu('v_lshlrev_b32', vSWZM, 4, T_[4]))
        E(valu('v_bfe_u32', q, lane, 4, 1)); E(valu('v_lshlrev_b32', q, 5, q))
        E(valu('v_and_b32', T_[4], 1, lane)); E(valu('v_lshl_add_u32', q, T_[4], 4, q))
        E(valu('v_bfe_u32', T_[4], lane, 1, 1)); E(valu('v_lshl_add_u32', q, T_[4], 3, q))
        E(valu('v_lshrrev_b32', T_[5], 5, lane))
        E(smov(sT2, PP)); E(valu('v_mad_u32_u24', T_[4], T_[5], sT2, q)); E(valu('v_lshl_add_u32', T_[4], r, 7, T_[4]))
        E(valu('v_lshl_add_u32', vRW[0][0], rb1, 6, T_[4])); E(valu('v_xor_b32', rb1, 1, rb1)); E(valu('v_lshl_add_u32', vRW[0][1], rb1, 6, T_[4]))
        if kind in 'FM':
            E(valu('v_lshl_add_u32', vRH[0], T_[5], 9, q)); E(valu('v_lshl_add_u32', vRH[0], r, 6, vRH[0]))
            E(valu('v_lshlrev_b32', T_[4], 4, c4)); E(valu('v_lshrrev_b32', T_[5], 2, lane)); E(smov(sT2, 9216))
            E(valu('v_mad_u32_u24', vOFFH, T_[5], sT2, T_[4]))
        E(valu('v_lshrrev_b32', q, 4, lane))
    else:
        E(valu('v_xor_b32', vRW[0][1], 32, vRW[0][0]))
    for b in (1, 2):
        for T in range(2): E(valu('v_add_u32', vRW[b][T], 65536 * b, vRW[0][T]))
    if kind in 'FM' and not MS:
        E(valu('v_lshlrev_b32', T_[4], 9, q)); E(valu('v_lshl_add_u32', T_[4], r, 6, T_[4])); E(valu('v_lshl_add_u32', T_[4], c4, 3, T_[4]))
        E(valu('v_and_b32', T_[5], 1, q)); E(valu('v_lshl_add_u32', vRH[0], T_[5], 5, T_[4])); E(valu('v_xor_b32', vRH[1], 32, vRH[0]))
        E(valu('v_lshrrev_b32', T_[4], 5, lane)); E(valu('v_lshlrev_b32', T_[4], 1, T_[4])); E(valu('v_xor_b32', T_[4], T_[4], c4))
        E(valu('v_lshlrev_b32', T_[4], 4, T_[4])); E(valu('v_lshrrev_b32', T_[5], 2, lane)); E(smov(sT2, 9216))
        E(valu('v_mad_u32_u24', vOFFH, T_[5], sT2, T_[4]))
    if kind in 'AM':
        E(valu('v_and_b32', T_[4], 15, lane)); E(valu('v_xor_b32', T_[4], T_[4], q)); E(valu('v_lshlrev_b32', T_[4], 4, T_[4]))
        E(valu('v_lshl_add_u32', vOFFK, q, 8, T_[4]))
    E(set_offw(8192 if kind in 'AM' else 9216, 'M' if MS else 'S'))
    if MS:
        XA = [v(20), v(21), v(22), v(39)]
        E(valu('v_and_b32', T_[4], 31, lane)); E(valu('v_bfe_u32', T_[5], lane, 1, 3)); E(valu('v_lshrrev_b32', q, 5, lane)); E(valu('v_xor_b32', T_[5], T_[5], q))
        E(valu('v_lshlrev_b32', T_[4], 7, T_[4])); E(valu('v_add_u32', T_[4], s(6), T_[4]))
        E(valu('v_lshl_add_u32', XA[0], T_[5], 4, T_[4]))
        for tt in range(1, 4): E(valu('v_xor_b32', XA[tt], 32 * tt, XA[0]))
    else:
        E(valu('v_and_b32', T_[4], 15, lane)); E(valu('v_bfe_u32', T_[5], lane, 1, 3)); E(valu('v_xor_b32', T_[5], T_[5], q))
        E(valu('v_lshlrev_b32', T_[4], 7, T_[4])); E(valu('v_add_u32', T_[4], s(6), T_[4]))
        E(valu('v_lshl_add_u32', v(20), T_[5], 4, T_[4])); E(valu('v_xor_b32', v(21), 64, v(20)))
        if kind in 'AM':
            E(smov(sT2, PP)); E(valu('v_mul_u32_u24', v(22), sT2, r)); E(valu('v_lshl_add_u32', v(22), c4, 8, v(22)))
            E(valu('v_xor_b32', T_[4], q, c4)); E(valu('v_lshl_add_u32', v(22), T_[4], 4, v(22)))
    E(valu('v_lshlrev_b32', vLANE16, 4, lane))
    if CFG['stamps'] == 2: E(valu('v_mov_b32', vSTAMP, 0))
    SA = 28
    for i in range(8): E(valu('v_mov_b32', v(SA + i), 0))
    E(smov(sT2, 0x3f803f80))
    def stats(j):
        for tt in range(2):
            for g in range(2):
                for qd in range(4):
                    x = X(2 * j + tt, g)[qd]
                    E(valu('v_dot2c_f32_bf16', v(SA + 2 * g + (qd & 1)), sT2, x, rmw=True))
                    E(valu('v_dot2c_f32_bf16', v(SA + 4 + 2 * g + (qd & 1)), x, x, rmw=True))
    PS(57)
    for j in range(9):
        E(waitvm(p.vm_wait_for(lambda t: t == ('x', j))))
        if j == 0: PS(58)
        if MS:
            for tt in range(4): E(ds_b128(XM(4 * j + tt), XA[tt], j * 4096))
        else:
            for tt in range(2):
                for g in range(2): E(ds_b128(X(2 * j + tt, g), v(20 + tt), j * 4096 + g * 2048))
        if j + CFG['xe'] < 9: E(xdma(j + CFG['xe']))
        if CFG['pf'] >= 3 and CFG.get('epf', 1) == 1 and j == max(8 - CFG['xe'], 0): E(early_pf)
        if j >= 1:
            E(waitlg(4)); stats(j - 1)
    E(waitlg(0)); PS(59); E(barrier())
    if CFG.get('codepf', 3) == 2: E(I(f"global_load_dword {vDUM}, v46, s[100:101]", 'vload', wr=vDUM.regs(), rd=vr(46) + sr(100, 2), tag='pf'))
    if CFG['pf'] >= 3 and CFG.get('epf', 1) == 2: E(early_pf)
    pend = []
    for k in range(3):
        st = R.stages[k]
        if st.pre_dma: pend.append(st.pre_dma())
        pend += st.dma(k, False)
    d0 = CFG.get('d0', 9)
    for it in pend[:d0]: E(it)
    pend = pend[d0:]
    PS(60)
    stats(8)
    acc4 = [v(28), v(30), v(32), v(34)]
    for x in acc4: E(valu('v_add_f32', x, x, v(x.n + 1)))
    if MS:
        for b_ in (0, 2):
            E(valu('v_add_f32', acc4[b_], acc4[b_], acc4[b_ + 1]))
        for b_ in (0, 2): E(valu('v_mov_b32', acc4[b_ + 1], acc4[b_]))
    for op in (('v_permlane32_swap_b32',) if MS else ('v_permlane16_swap_b32', 'v_permlane32_swap_b32')):
        for x in acc4: E(valu('v_mov_b32', v(x.n + 1), x))
        for x in acc4: E(valu(op, x, v(x.n + 1), rmw=True, extra_wr=[v(x.n + 1)]))
        for x in acc4: E(valu('v_add_f32', x, x, v(x.n + 1)))
    for x in acc4: E(valu('v_mul_f32', x, f2u(1.0 / 576), x))
    for g in range(2): E(valu('v_fma_f32', acc4[2 + g], '-' + str(acc4[g]), acc4[g], acc4[2 + g]))
    for g in range(2): E(valu('v_max_f32', acc4[2 + g], 0, acc4[2 + g]))
    for g in range(2): E(valu('v_add_f32', acc4[2 + g], f2u(1e-5), acc4[2 + g]))
    for g in range(2): E(valu('v_rsq_f32', acc4[2 + g], acc4[2 + g]))
    for g in range(2): E(valu('v_mul_f32', acc4[2 + g], f2u(-LOG2E), acc4[2 + g]))
    for g in range(2): E(valu('v_mov_b32', v(20 + g), acc4[g]))
    for g in range(2): E(valu('v_mul_f32', acc4[g], '-' + str(acc4[g]), acc4[2 + g], extra_rd=[acc4[g]]))
    E(smov(sT2, 0xffff0000))
    if CFG.get('dotn'):
        cl = [v(29), v(31)]; ch = [v(33), v(35)]
        for g in range(2): E(valu('v_cvt_pk_bf16_f32', cl[g], acc4[2 + g], 0))
        for g in range(2): E(valu('v_lshlrev_b32', ch[g], 16, cl[g]))
        for g in range(2): E(valu('v_mul_f32', acc4[g], '-' + str(v(20 + g)), ch[g], extra_rd=[v(20 + g)]))
    PS(61)
    n = 0
    for t in range(18):
        for g in range(2):
            tps = [v(24, 2), v(26, 2), v(16, 2), v(18, 2)]
            x = X(t, g)
            if CFG.get('dotn'):
                for qd in range(4):
                    E(valu('v_dot2_f32_bf16', tps[qd][0], x[qd], cl[g], acc4[g])); E(valu('v_dot2_f32_bf16', tps[qd][1], x[qd], ch[g], acc4[g]))
            else:
                for qd in range(4):
                    E(valu('v_lshlrev_b32', tps[qd][0], 16, x[qd])); E(valu('v_and_b32', tps[qd][1], sT2, x[qd]))
                for qd in range(4): E(valu('v_pk_fma_f32', tps[qd], tps[qd], v(acc4[2 + g].n, 2), v(acc4[g].n, 2), mods='op_sel_hi:[1,0,0]'))
            for qd in range(4): E(valu('v_cvt_pk_bf16_f32', x[qd], tps[qd][0], tps[qd][1]))
            if pend and n % CFG.get('dn', 2) == 0: E(pend.pop(0))
            n += 1
    for it in pend: E(it)
    if CFG['fused']:
        E(valu('v_mov_b32', v(24), 1)); E(waitvm(p.vm_wait_for(lambda t: t == 'zero')))
        E(I(f"buffer_atomic_add v24, v23, {sDBG}, 0 offen sc1", 'vstore', rd=vr(23, 2) + sDBG.regs(), units=3, tag='init'))
    for _ in range(CFG.get('idle', 0)): E(raw("s_sleep 16"))
    PS(62)
    if kind in 'AM' and MS:
        ln, m_, key, t_ = v(16), v(17), v(18), v(19)
        E([valu('v_lshrrev_b32', ln, 4, vLANE16), valu('v_and_b32', key, 19, ln),
           valu('v_bfe_u32', t_, ln, 2, 1), valu('v_lshl_add_u32', key, t_, 3, key),
           valu('v_bfe_u32', t_, ln, 3, 1), valu('v_lshl_add_u32', key, t_, 2, key),
           valu('v_lshrrev_b32', m_, 2, key), smov(sT2, PP), valu('v_mul_u32_u24', m_, sT2, m_),
           valu('v_and_b32', key, 3, key), valu('v_lshl_add_u32', m_, key, 8, m_),
           valu('v_lshrrev_b32', t_, 5, ln), valu('v_xor_b32', t_, t_, key),
           valu('v_lshl_add_u32', vRKM[0], t_, 4, m_), valu('v_xor_b32', vRKM[1], 32, vRKM[0])])
    elif kind in 'AM':
        E(valu('v_mov_b32', vRK[0], v(22))); E(valu('v_add_u32', vRK[1], 65536, v(22))); E(valu('v_add_u32', vRK[2], 131072, v(22)))
    if CFG['stamps']: E(raw(f"v_writelane_b32 {vSTAMP}, s96, 55", 'valu', wr=[vSTAMP], rd=[s(96)])) if kind != 'A' else None
    if CFG['stamps']: E(smov(s(43), s(96)))
    nlr = {'F': 10, 'A': 11, 'M': 8}[kind]
    if kind != 'M': E([valu('v_lshrrev_b32', vPF2, 16, vTID), valu('v_and_b32', vPFR, 63, vTID), valu('v_min_u32', vPFR, nlr - 1, vPFR),
       valu('v_mad_u32_u24', vPFR, vPF2, nlr, vPFR), valu('v_lshlrev_b32', vPFR, 7, vPFR)])
    if CFG['stamps']: E(smov(s(97), 0))
    E(smov(sLN0, f2u(-1.0 / math.sqrt(128.0))))

def slow_check(R, heads, base2):
    def f():
        p = R.p; E = p.emit
        t = v(254); lo = v(255)
        E(valu('v_mov_b32', lo, f2u(2.0 ** -40))); E(smov(sT3, f2u(2.0 ** 40)))
        for (hd, Q, O) in heads:
            L = f"L_{R.kind}_slow{hd}"
            if CFG['shape'] == 'M':
                E(valu('v_med3_f32', t, Lsave[hd], sT3, lo))
                E(raw(f"v_cmp_neq_f32 vcc, {t}, {Lsave[hd]}", 'valu', wr=['vcc'], rd=[t, Lsave[hd]])); E(nop(4))
            else:
                E(valu('v_med3_f32', t, Lsave[2 * hd], sT3, lo))
                E(raw(f"v_cmp_neq_f32 s[98:99], {t}, {Lsave[2 * hd]}", 'valu', wr=[s(98, 2)], rd=[t, Lsave[2 * hd]]))
                E(valu('v_med3_f32', t, Lsave[2 * hd + 1], sT3, lo))
                E(raw(f"v_cmp_neq_f32 vcc, {t}, {Lsave[2 * hd + 1]}", 'valu', wr=['vcc'], rd=[t, Lsave[2 * hd + 1]])); E(nop(4))
                E(raw("s_or_b64 vcc, vcc, s[98:99]", 'salu', wr=['vcc'], rd=['vcc', s(98, 2)])); E(nop(1))
            if CFG.get('force_slow'): E(raw(f"s_mov_b64 vcc, -1", 'salu', wr=['vcc']))
            E(raw(f"s_cbranch_vccz {L}_ret"))
            E(raw(f"s_call_b64 {sRET}, {L}"))
            E(label(f"{L}_ret"))
            R.slow.append((slow_path if CFG['shape'] == 'M' else slow_pathS)(L, hd, Q, O, base2))
        E(nop(1))
    return f

def slow_path(L, hd, Q, Odst, b2):
    p = Prog(); E = p.emit
    O = v(48, 64); S = v(b2, 16); P = v(b2 + 16, 8); F = v(b2 + 24, 16)
    vK, vV, vM, vL, t0, t1 = [v(b2 + 40 + i) for i in range(6)]
    sB, sJ, sO = s(98), s(99), s(97)
    E(I(".p2align 2", 'label')); E(label(L))
    E(nop(7)); E(nop(7))
    E([valu('v_lshrrev_b32', t0, 4, vLANE16), valu('v_and_b32', vK, 19, t0), valu('v_bfe_u32', t1, t0, 2, 1), valu('v_lshl_add_u32', vK, t1, 3, vK),
       valu('v_bfe_u32', t1, t0, 3, 1), valu('v_lshl_add_u32', vK, t1, 2, vK), valu('v_lshrrev_b32', t1, 5, t0),
       valu('v_lshlrev_b32', vV, 1, vK), valu('v_lshl_add_u32', vV, t1, 11, vV),
       valu('v_lshlrev_b32', vK, 8, vK), valu('v_lshl_add_u32', vK, t1, 4, vK)])
    E([mul(sB, sROLE, 3), add(sB, sB, hd), shr(sB, sB, 1), shl(sB, sB, 19), add(sB, sB, 1536 * 256)])
    def qk():
        for half in range(2):
            for t in range(4): E(bload('buffer_load_dwordx4', F.sub(4 * t, 4), vK, sK, sO, (4 * half + t) * 32))
            E(waitvm(0))
            for t in range(4):
                tt = 4 * half + t
                E(mfma(S, F.sub(4 * t, 4), Q.sub(4 * tt, 4), 0 if tt == 0 else S))
            E(nop(7)); E(nop(7))
    E(valu('v_mov_b32', vM, 0xff800000)); E(smov(sJ, 0))
    E(label(L + "_a"))
    E(add(sO, sB, sJ)); qk()
    for i in range(0, 16, 2): E(valu('v_max3_f32', vM, vM, S[i], S[i + 1]))
    E(add(sJ, sJ, 8192)); E(salu('s_cmp_lt_u32', None, sJ, 16 * 8192)); E(raw(f"s_cbranch_scc1 {L}_a"))
    E(valu('v_mov_b32', t0, vM)); E(valu('v_permlane32_swap_b32', vM, t0, rmw=True, extra_wr=[t0])); E(valu('v_max_f32', vM, vM, t0))
    for i in range(64): E(valu('v_mov_b32', O[i], 0))
    E(valu('v_mov_b32', vL, 0)); E(smov(sJ, 0))
    E(label(L + "_b"))
    E(add(sO, sB, sJ)); qk()
    for i in range(16): E(valu('v_sub_f32', S[i], S[i], vM))
    for i in range(16): E(valu('v_exp_f32', S[i], S[i]))
    for i in range(16): E(valu('v_add_f32', vL, vL, S[i]))
    for q in range(8): E(valu('v_cvt_pk_bf16_f32', P[q], S[2 * q], S[2 * q + 1]))
    for u in range(2):
        for tp in range(2):
            for tq in range(2):
                for j in range(8):
                    E(bload('buffer_load_ushort', F[8 * (j & 1) + 4 * tq + j // 2], vV, sV, sO, j * 256 + (2 * tp + tq) * 64))
            E(waitvm(0))
            for i in range(8): E(valu('v_lshl_or_b32', F[i], F[8 + i], 16, F[i]))
            for tq in range(2):
                D_ = O.sub(16 * (2 * tp + tq), 16)
                E(mfma(D_, F.sub(4 * tq, 4), P.sub(4 * u, 4), D_))
            E(nop(7))
        if u == 0: E(add(sO, sO, 4096))
    E(add(sJ, sJ, 8192)); E(salu('s_cmp_lt_u32', None, sJ, 16 * 8192)); E(raw(f"s_cbranch_scc1 {L}_b"))
    E(nop(7)); E(nop(7))
    E(valu('v_mov_b32', t0, vL)); E(valu('v_permlane32_swap_b32', vL, t0, rmw=True, extra_wr=[t0])); E(valu('v_add_f32', vL, vL, t0))
    E(valu('v_rcp_f32', t0, vL))
    for tau in range(4):
        A_ = O.sub(16 * tau, 16)
        for e in range(16): E(valu('v_mul_f32', A_[e], A_[e], t0))
        for q in range(8): E(valu('v_cvt_pk_bf16_f32', A_[2 * q], A_[2 * q], A_[2 * q + 1]))
        for q in range(4): E(valu('v_permlane16_swap_b32', A_[2 * q], A_[2 * q + 8], rmw=True, extra_wr=[A_[2 * q + 8]]))
        for q in range(8): E(valu('v_accvgpr_write_b32', Odst[8 * tau + q], A_[2 * q]))
    E(nop(1)); E(raw(f"s_setpc_b64 {sRET}"))
    return p

def slow_pathS(L, hd, Q, Odst, b2):
    p = Prog(); E = p.emit
    ob = 48; kv = None
    if isinstance(b2, tuple): b2, ob = b2
    if isinstance(Odst, tuple):
        OFf, kv = Odst
        class _D:
            def __getitem__(s_, i): return OFf(i // 8)[i % 8]
        Odst = _D()
    O = v(ob, 64); S = v(b2, 16); P = v(b2 + 16, 8); F = v(b2 + 24, 16)
    vK, vV, t0, t1 = [v(b2 + 40 + i) for i in range(4)]
    vM = [v(b2 + 44), v(b2 + 45)]; vL = [v(b2 + 46), v(b2 + 47)]
    sB, sJ, sO = s(98), s(99), s(97)
    E(I(".p2align 2", 'label')); E(label(L))
    E(nop(7)); E(nop(7))
    E([valu('v_lshrrev_b32', t0, 4, vLANE16), valu('v_and_b32', t1, 15, t0), valu('v_lshrrev_b32', t0, 4, t0),
       valu('v_lshlrev_b32', vK, 8, t1), valu('v_lshl_add_u32', vK, t0, 4, vK),
       valu('v_lshlrev_b32', vV, 1, t1), valu('v_lshl_add_u32', vV, t0, 10, vV)])
    if kv is not None: E(smov(sB, kv))
    else: E([mul(sB, sROLE, 3), add(sB, sB, hd), shr(sB, sB, 1), shl(sB, sB, 19), add(sB, sB, 1536 * 256)])
    def qk():
        for T in range(2):
            E(add(sO, sB, sJ)) if T == 0 else E(add(sO, sO, 4096))
            for t in range(4): E(bload('buffer_load_dwordx4', F.sub(4 * t, 4), vK, sK, sO, t * 64))
            E(waitvm(0))
            for t in range(4):
                for g_ in range(2):
                    D_ = S.sub(8 * T + 4 * g_, 4)
                    E(mfma(D_, F.sub(4 * t, 4), Q.sub(8 * t + 4 * g_, 4), 0 if t == 0 else D_))
            E(nop(7)); E(nop(3))
    def allq(x, op):
        for sw in ('v_permlane16_swap_b32', 'v_permlane32_swap_b32'):
            E(valu('v_mov_b32', t0, x)); E(valu(sw, x, t0, rmw=True, extra_wr=[t0])); E(valu(op, x, x, t0))
    for g_ in range(2): E(valu('v_mov_b32', vM[g_], 0xff800000))
    E(smov(sJ, 0))
    E(label(L + "_a"))
    qk()
    for T in range(2):
        for g_ in range(2):
            for i in (0, 2): E(valu('v_max3_f32', vM[g_], vM[g_], S[8 * T + 4 * g_ + i], S[8 * T + 4 * g_ + i + 1]))
    E(add(sJ, sJ, 8192)); E(salu('s_cmp_lt_u32', None, sJ, 16 * 8192)); E(raw(f"s_cbranch_scc1 {L}_a"))
    for g_ in range(2): allq(vM[g_], 'v_max_f32')
    for i in range(64): E(valu('v_mov_b32', O[i], 0))
    for g_ in range(2): E(valu('v_mov_b32', vL[g_], 0))
    E(smov(sJ, 0))
    E(label(L + "_b"))
    qk()
    for i in range(16): E(valu('v_sub_f32', S[i], S[i], vM[(i >> 2) & 1]))
    for i in range(16): E(valu('v_exp_f32', S[i], S[i]))
    for i in range(16): E(valu('v_add_f32', vL[(i >> 2) & 1], vL[(i >> 2) & 1], S[i]))
    for g_ in range(2):
        for T in range(2):
            for k in range(2): E(valu('v_cvt_pk_bf16_f32', P[4 * g_ + 2 * T + k], S[8 * T + 4 * g_ + 2 * k], S[8 * T + 4 * g_ + 2 * k + 1]))
    for tp in range(4):
        for jh in range(2):
            E(add(sO, sB, sJ)) if jh == 0 else E(add(sO, sO, 4096))
            for tq in range(2):
                for jl in range(4):
                    j = 4 * jh + jl
                    E(bload('buffer_load_ushort', F[8 * (j & 1) + 4 * tq + j // 2], vV, sV, sO, jl * 256 + (2 * tp + tq) * 32))
        E(waitvm(0))
        for i in range(8): E(valu('v_lshl_or_b32', F[i], F[8 + i], 16, F[i]))
        for tq in range(2):
            for g_ in range(2):
                D_ = O.sub(8 * (2 * tp + tq) + 4 * g_, 4)
                E(mfma(D_, F.sub(4 * tq, 4), P.sub(4 * g_, 4), D_))
        E(nop(7))
    E(add(sJ, sJ, 8192)); E(salu('s_cmp_lt_u32', None, sJ, 16 * 8192)); E(raw(f"s_cbranch_scc1 {L}_b"))
    E(nop(7)); E(nop(3))
    for g_ in range(2): allq(vL[g_], 'v_add_f32')
    for g_ in range(2): E(valu('v_rcp_f32', vL[g_], vL[g_]))
    for i in range(64): E(valu('v_mul_f32', O[i], O[i], vL[(i >> 2) & 1]))
    for kk in range(4):
        for g_ in range(2):
            for T in range(2):
                for c in range(2):
                    r = 8 * (2 * kk + T) + 4 * g_ + 2 * c
                    E(valu('v_cvt_pk_bf16_f32', O[r], O[r], O[r + 1])); E(valu('v_accvgpr_write_b32', Odst[8 * kk + 4 * g_ + 2 * T + c], O[r]))
    E(nop(1)); E(raw(f"s_setpc_b64 {sRET}"))
    return p

def add_signals(R):
    P2 = [k for k, st in enumerate(R.stages) if st.name.startswith('P2')]
    def sig(first):
        def f():
            out = [valu('v_add_u32', vPRG, 1, vPRG)]
            return out + [bstore('buffer_store_dword', vPRG, vCT, sWS, 0, flags='sc1')]
        return f
    def chain(stages, base):
        firsts = [k for k in stages if R.stages[k].sub == 0]
        for c in range(8):
            k = firsts[c + 1] + CFG.get('siglag', {}).get(R.kind, 2)
            if k > stages[-1]: break
            R.stages[k].cover_st = base + c; R.stages[k].post_bar = sig(c == 0)
    chain(P2, 0)
    R.stages[P2[0]].post_bar = lambda: [valu('v_mov_b32', vPRG, 0)]

LDSC = 4 * SLOT
sAB = s(72, 2); sRM = s(74, 2); sCD = s(76, 2)
sRS, sRF, sSP, sC, sI, sPB, sPART, sOK, sPAR, sXW, sPWv, sTO = s(78), s(79), s(71), s(80), s(81), s(82), s(47), s(40), s(41), s(59), s(3), s(58)
sIT = [s(42), s(44), s(45)]; sXP = [s(46), s(60), s(61)]
sRET2 = s(66, 2)
vP, vD, vA, vO, vXO, vL4, vDO, vLA, vIT, vLD, vSC = [v(16 + i) for i in range(11)]
vX4 = v(28)
def s64(op, d, *src, scc_r=False): return salu(op, d, *src, scc_r=scc_r)
sPV = s(85)
def red_setup(kind):
    o = [shl(sPB, sRB, 11), add(sPB, sPB, CTRL), salu('s_cmp_eq_u32', None, sWAVE, 0), csel(sT3, 0, OOB),
         valu('v_lshrrev_b32', vL4, 2, vLANE16), valu('v_add_u32', vL4, sT3, vL4),
         valu('v_mov_b32', vSC, OOB), add(sT2, sT3, 68), raw(f"v_writelane_b32 {vSC}, {sT2}, 0", 'valu', wr=[vSC], rd=[sT2, vSC]),
         valu('v_mov_b32', vS1, vSC), valu('v_min_u32', vL5, 17 * 16, vLANE16), valu('v_lshrrev_b32', vL5, 2, vL5), valu('v_add_u32', vL5, sT3, vL5),
         add(sT2, sT3, 252), raw(f"v_writelane_b32 {vSC}, {sT2}, 1", 'valu', wr=[vSC], rd=[sT2, vSC]),
         shl(sT2, sRB, 4), add(sT2, sT2, sT3), valu('v_mov_b32', vDO, 256), raw(f"v_writelane_b32 {vDO}, {sT2}, 0", 'valu', wr=[vDO], rd=[sT2, vDO])]
    if kind == 'A': o += [shl(sPV, sROLE, 7), add(sPV, sPV, 256), add(sPV, sPV, sPB)]
    return o
vS1, vL5 = v(29), v(30)
PRIV = [False]
def red_poll(shared=False):
    cnt = [valu('v_mov_b32', vD, 0), I(f"buffer_atomic_add {vD}, {vDO}, {sDBG}, 0 offen sc0 sc1", 'vload', wr=vD.regs(), rd=vD.regs() + vDO.regs() + sDBG.regs(), units=3)]
    if PRIV[0] and not shared:
        return [cnt, [bstore('buffer_store_dword', vS1, vS1, sWS, sPV, flags='sc1'), bload('buffer_load_dword', vP, vL5, sWS, sPV, flags='sc1')]]
    return [cnt, [bstore('buffer_store_dword', vSC, vSC, sWS, sPB, flags='sc1'), bload('buffer_load_dword', vP, vL4, sWS, sPB, flags='sc1')]]
vG = [v(28), v(29), v(30)]; vGA = v(31); vGP = v(27)
def l2pf_setup():
    return [valu('v_lshrrev_b32', vGP, 7, vLANE16), smov(sT2, PSTR()), valu('v_mul_lo_u32', vGA, vGP, sT2),
            valu('v_bfe_u32', vA, vLANE16, 4, 3), valu('v_lshl_add_u32', vGA, vA, 7, vGA), shl(sT2, sWAVE, 10), valu('v_add_u32', vGA, sT2, vGA),
            valu('v_lshlrev_b32', vGP, 2, vGP), valu('v_mov_b32', vA, OOB), smov(sT2, 68), raw(f"v_writelane_b32 {vA}, {sT2}, 0", 'valu', wr=[vA], rd=[vA, sT2])]
def l2pf_poll():
    st = bstore('buffer_store_dword', vA, vA, sWS, sPB, flags='sc1')
    out = [[st]]
    for i in range(3):
        ld = bload('buffer_load_dword', vG[i], vGP, sWS, sPB, 32 * i, flags='sc1'); ld.tag = 'gp'
        out.append([ld])
    return out
def l2pf_issue(R, dlt):
    out = [[add(sI, sROLE, dlt), salu('s_and_b32', sT2, sI, 3), shr(sC, sI, 2), shl(sT3, sRB, 2), add(sT2, sT2, sT3), mul(sSP, sT2, PWAVE),
            shl(sT3, sC, 12), add(sSP, sSP, sT3), valu('v_mov_b32', vO, OOB)]]
    for i in range(3):
        ld = bload('buffer_load_dword', vDUM, vG[i], sWS, sT2); ld.tag = 'pf'
        cmp_ = raw(f"v_cmp_lt_u32 vcc, {sC}, {vG[i]}", 'valu', wr=['vcc'], rd=[sC, vG[i]])
        pre = [cmp_]
        if i == 2: pre += [raw("s_and_b64 vcc, vcc, 0xff", 'salu', wr=['vcc'], rd=['vcc'])]
        out.append(pre + [add(sT2, sSP, 8 * i * PSTR()), valu('v_cndmask_b32', vG[i], vO, vGA, 'vcc'), ld])
    return out
def red_eval():
    o = [raw(f"v_cmp_ne_u32 vcc, 0, {vP}", 'valu', wr=['vcc'], rd=[vP]), nop(1),
         raw(f"s_lshr_b64 {sAB}, vcc, 18", 'salu', wr=[sAB], rd=['vcc']), salu('s_and_b32', sAB[1], sAB[1], 15), smov(sRS, 0), smov(sRF, 0)]
    for c in range(9):
        o += [raw(f"v_cmp_ge_u32 vcc, {c}, {vP}", 'valu', wr=['vcc'], rd=[vP]), nop(1),
              raw(f"s_and_b32 {sT2}, vcc_lo, 0x7ff", 'salu', wr=[sT2], rd=['vcc']), csel(sRS, sRS, 4 * (c + 1)),
              raw(f"s_and_b32 {sT2}, vcc_lo, 0x1f800", 'salu', wr=[sT2], rd=['vcc']), csel(sRF, sRF, 4 * (c + 1))]
    return o
def red_pub(par):
    return [shl(sT2, sRF, 8), salu('s_or_b32', sT2, sT2, sRS), shl(sT3, sTO, 16), salu('s_or_b32', sT2, sT2, sT3),
            valu('v_mov_b32', vIT, sT2), valu('v_mov_b32', vLA, par), raw(f"ds_write_b32 {vLA}, {vIT}", 'ds', rd=[vLA, vIT]), waitlg(0)]
def red_get(par):
    return [valu('v_mov_b32', vLA, par), raw(f"ds_read_b32 {vIT}, {vLA}", 'ds', wr=[vIT], rd=[vLA]), waitlg(0),
            valu('v_readfirstlane_b32', sT2, vIT), salu('s_and_b32', sRS, sT2, 255), salu('s_bfe_u32', sRF, sT2, (8 << 16) | 8), shr(sTO, sT2, 16)]
def red_early(p, n):
    E = p.emit
    E([smov(sRS, 0), smov(sRF, 0), smov(sOK, 0), smov(sTO, 0), smov(sPAR, LDSC + 4), nop(1)])
    E(salu('s_cmp_eq_u32', None, sWAVE, 0)); E(raw(f"s_cbranch_scc0 L_{n}_e2"))
    E(waitvm(p.vm_wait_for(lambda t: t == 'poll')))
    E(valu('v_readfirstlane_b32', sOK, vD))
    E(salu('s_cmp_ge_u32', None, sOK, 16)); E(raw(f"s_cbranch_scc0 L_{n}_e1"))
    E(red_eval())
    E(label(f"L_{n}_e1"))
    E(red_pub(LDSC))
    E(label(f"L_{n}_e2"))

def ld_part(L, ks, flags):
    out = []
    for k in ks:
        out.append([add(sT2, sPART, k * PSTR()), bload('buffer_load_dwordx4', v(L + 4 * k, 4), vLD, sWS, sT2, flags=flags)])
    return out
def ld_x(L, sXO_):
    if CFG.get('nox'): return [[valu('v_mov_b32', vA, OOB), bload('buffer_load_dwordx2', v(L + 68, 2), vA, sX, sXO_)], [bload('buffer_load_dwordx2', v(L + 70, 2), vA, sX, sXO_, 32)]]
    return [[bload('buffer_load_dwordx2', v(L + 68, 2), vXO, sX, sXO_)], [bload('buffer_load_dwordx2', v(L + 70, 2), vXO, sX, sXO_, 32)]]
RB_ = 48
sD0, sD1 = s(68), s(69)
def proc_sum(E, L, ks, after, loads):
    SA, FA, T = RB_, RB_ + 8, RB_ + 16
    issued = 0; ks = list(ks)
    E(smov(sT3, 0xffff0000))
    for j, k in enumerate(ks):
        if loads: E(loads.pop(0)); issued += 1
        E(waitvm(len(ks) - 1 - j + after + issued))
        acc = SA if k < 11 else FA
        for q in range(4):
            x = v(L + 4 * k + q)
            if k in (0, 11):
                E(valu('v_lshlrev_b32', v(acc + 2 * q), 16, x)); E(valu('v_and_b32', v(acc + 2 * q + 1), sT3, x))
            else:
                E(valu('v_dot2c_f32_bf16', v(acc + 2 * q), sD0, x, rmw=True)); E(valu('v_dot2c_f32_bf16', v(acc + 2 * q + 1), sD1, x, rmw=True))
    return issued
def proc_fin(E, L, sXO_, xwait, loads):
    SA, FA, T = RB_, RB_ + 8, RB_ + 16; XR = L + 68; issued = 0
    for e in range(8): E(valu('v_exp_f32', v(T + e), v(FA + e)))
    for e in range(8): E(valu('v_add_f32', v(T + e), 1.0, v(T + e)))
    while len(loads) > 1: E(loads.pop(0)); issued += 1
    for e in range(8): E(valu('v_rcp_f32', v(T + e), v(T + e)))
    for e in range(8): E(valu('v_mul_f32', v(FA + e), f2u(-math.log(2.0)), v(FA + e)))
    for e in range(8): E(valu('v_mul_f32', v(FA + e), v(FA + e), v(T + e)))
    while loads: E(loads.pop(0)); issued += 1
    if xwait is not None: E(waitvm(xwait + issued))
    for q in range(4):
        E(valu('v_lshlrev_b32', v(T + 2 * q), 16, v(XR + q))); E(valu('v_and_b32', v(T + 2 * q + 1), sT3, v(XR + q)))
    for e in range(8): E(valu('v_fma_f32', v(T + e), v(SA + e), v(FA + e), v(T + e)))
    for q in range(4): E(valu('v_cvt_pk_bf16_f32', v(XR + q), v(T + 2 * q), v(T + 2 * q + 1)))
    if CFG.get('out4', True):
        def dpp(d, src, bank): return I(f"v_mov_b32_dpp {d}, {src} row_ror:8 row_mask:0xf bank_mask:{bank}", 'perm', wr=d.regs(), rd=src.regs() + d.regs())
        for i in range(2): E(valu('v_permlane16_swap_b32', v(XR + i), v(XR + 2 + i), rmw=True, extra_wr=[v(XR + 2 + i)]))
        for i in range(2): E(valu('v_mov_b32', v(T + i), v(XR + i)))
        for i in range(2): E(dpp(v(XR + i), v(XR + 2 + i), '0xc'))
        for i in range(2): E(dpp(v(XR + 2 + i), v(T + i), '0x3'))
        E(bstore('buffer_store_dwordx4', v(XR, 4), vX4, sOUT, sXO_, flags=CFG.get('oflags', 'sc1')))
        E(valu('v_mov_b32', vO, OOB)); E(bstore('buffer_store_dword', vO, vO, sOUT, 0))
        return
    E(bstore('buffer_store_dwordx2', v(XR, 2), vXO, sOUT, sXO_)); E(bstore('buffer_store_dwordx2', v(XR + 2, 2), vXO, sOUT, sXO_, 32))
def proc_all(E, L, sXO_, pre, loads):
    loads = list(loads)
    n = proc_sum(E, L, range(NPART), 2 + pre, loads)
    proc_fin(E, L, sXO_, pre + n, loads)

def acc_part(E, L, k):
    acc = RB_ if k < 11 else RB_ + 8
    for q in range(4):
        x = v(L + 4 * k + q)
        if k in (0, 11):
            E(valu('v_lshlrev_b32', v(acc + 2 * q), 16, x)); E(valu('v_and_b32', v(acc + 2 * q + 1), sT3, x))
        else:
            E(valu('v_dot2c_f32_bf16', v(acc + 2 * q), sD0, x, rmw=True)); E(valu('v_dot2c_f32_bf16', v(acc + 2 * q + 1), sD1, x, rmw=True))
def stream(E, segs, hooks=None):
    W = CFG.get('rwin', 8); FL = CFG.get('fflags', 'sc1')
    seq = []
    for (L, sP, sX_, ks, wx, fin) in segs:
        if wx:
            for it in ld_x(L, sX_): seq.append((it, None))
        ks = list(ks)
        for j, k in enumerate(ks):
            it = [add(sT2, sP, k * PSTR()), bload('buffer_load_dwordx4', v(L + 4 * k, 4), vLD, sWS, sT2, flags=FL)]
            last = fin and j == len(ks) - 1
            seq.append((it, (lambda L=L, k=k, last=last, sX_=sX_: (acc_part(E, L, k), proc_fin(E, L, sX_, None, []) if last else None, last)[2])))
    E(smov(sT3, 0xffff0000))
    n = len(seq); issued = 0
    extra_at = []
    for c in range(n):
        while issued < min(n, c + W): E(seq[issued][0]); issued += 1
        if hooks and c in hooks:
            for _ in range(hooks[c](issued + sum(1 for e in extra_at))): extra_at.append(issued)
            E(smov(sT3, 0xffff0000))
        if seq[c][1] is None: continue
        E(waitvm(issued - 1 - c + sum(1 for e in extra_at if e > c)))
        if seq[c][1]():
            extra_at += [issued, issued]

def body_items(E, n, its, two, ni, ensure, refresh, done, ST, seg, final_flag, poll_hook, LATE, L0, L1, FOUR, sMID, offs, sPT):
    E(salu('s_min_u32', sT2, sRS, sRF)); E(salu('s_cmp_lt_u32', None, its[two - 1], sT2)); E(raw(f"s_cbranch_scc0 L_{n}_sl"))
    ST(its[0])
    hooks = {19 * two - CFG.get('pollat', 8): poll_hook}
    if LATE: hooks[CFG.get('flagat', 3)] = final_flag
    stream(E, [seg(0, L0), seg(1, L1)][:two], hooks)
    ST(51)
    E(raw(f"s_branch L_{n}_j"))
    E(label(f"L_{n}_sl"))
    if LATE: final_flag(0)
    for i in range(two):
        ensure(its[i], 1, 1)
        stream(E, [seg(i, L0)], {11: poll_hook} if i == two - 1 else None); done(its[i])
    E(label(f"L_{n}_j"))
    for i in range(two): done(its[i])
    if FOUR:
        E(salu('s_cmp_gt_u32', None, sMID, 35)); E(raw(f"s_cbranch_scc1 L_{n}_nm"))
        refresh(2)
        ensure(sMID, 1, 1); ST(sMID)
        E(offs(sMID, sXP[0]))
        stream(E, [seg(0, L1)], {13: poll_hook}); done(sMID)
        E(label(f"L_{n}_nm"))
    if ni == 3:
        assert not FOUR
        refresh(2)
        ensure(its[2], 1, 0); ST(its[2])
        E(salu('s_cmp_lt_u32', None, its[2], sRF)); E(raw(f"s_cbranch_scc1 L_{n}_f3"))
        stream(E, [seg(2, L0, range(11), True, False)], {6: poll_hook})
        refresh(0)
        ensure(its[2], 0, 1); ST(50)
        stream(E, [seg(2, L0, range(11, NPART), False, True)], {0: poll_hook.sh})
        E(raw(f"s_branch L_{n}_f4"))
        E(label(f"L_{n}_f3"))
        stream(E, [seg(2, L0)], {11: poll_hook.sh})
        E(label(f"L_{n}_f4"))
        done(its[2])


def reducer(kind):
    p = Prog(); E = p.emit; n = kind; FL = CFG.get('fflags', 'sc1')
    PRIV[0] = (kind == 'A')
    def ST(code):
        if CFG['stamps'] != 2: return
        E(raw(f"s_memtime {sSTAMP}", wr=[sSTAMP])); E(raw("s_waitcnt lgkmcnt(0)")); E(salu('s_sub_u32', s(98), s(98), s(100)))
        E(shl(s(98), s(98), 6)); E(salu('s_or_b32', s(98), s(98), code))
        E(add(s(97), s(97), 16)); E(salu('s_min_u32', s(97), s(97), 11 * 16))
        E(raw(f"v_cmp_eq_u32 vcc, s97, {vLANE16}", 'valu', wr=['vcc'], rd=[s(97), vLANE16])); E(valu('v_mov_b32', v(27), s(98)))
        E(valu('v_cndmask_b32', vSTAMP, vSTAMP, v(27), 'vcc'))
    def offs(item, sX_):
        return [salu('s_and_b32', sT2, item, 3), shr(sC, item, 2), shl(sT3, sRB, 2), add(sT2, sT2, sT3), mul(sPART, sT2, PWAVE), add(sX_, sPART, sXW),
                shl(sT3, sC, 12), add(sT3, sT3, sPWv), add(sPART, sPART, sT3), shl(sT3, sC, 7), add(sX_, sX_, sT3)]
    k_ = [0]
    def ensure(item, s_, f_):
        L = f"L_{n}_en{k_[0]}"; k_[0] += 1
        if s_ and f_: E(salu('s_min_u32', sT2, sRS, sRF)); r = sT2
        else: r = sRS if s_ else sRF
        E(salu('s_cmp_lt_u32', None, item, r)); E(raw(f"s_cbranch_scc1 {L}"))
        E(smov(sI, item)); E(smov(sC, (1 if s_ else 0) | (2 if f_ else 0)))
        E(raw(f"s_call_b64 {sRET2}, L_{n}_sync"))
        E(salu('s_cmp_eq_u32', None, sTO, 0)); E(raw(f"s_cbranch_scc0 L_{n}_fb"))
        E(label(L))
    def done(item): E(raw(f"s_bitset0_b64 {sRM}, {item}", 'salu', wr=[sRM], rd=[sRM, item]))
    E(label(f"L_{n}_red"))
    if CFG.get('rdelay'):
        if n == 'A': (E(waitvm(0)), E(barrier()), E(valu('v_mov_b32', vPRG, 9)), E(bstore('buffer_store_dword', vPRG, vCT, sWS, 0, flags='sc1')))
        for _ in range({'A': 30, 'M': 24, 'F': 14}[n]): E(raw("s_sleep 16"))
    E(red_get(LDSC))
    if CFG.get('rdelay'): E(smov(sRS, 36)); E(smov(sRF, 36))
    E(valu('v_lshrrev_b32', vO, 4, vLANE16)); E(valu('v_and_b32', vXO, 7, vO)); E(valu('v_lshlrev_b32', vLD, 4, vXO))
    E(smov(sT2, 1152)); E(valu('v_mul_u32_u24', vXO, sT2, vXO))
    E(valu('v_lshrrev_b32', vA, 3, vO)); E(valu('v_lshl_add_u32', vX4, vA, 4, vXO))
    E(valu('v_bfe_u32', vA, vO, 3, 2)); E(valu('v_lshl_add_u32', vXO, vA, 3, vXO)); E(valu('v_lshl_add_u32', vLD, vA, 8, vLD))
    E(valu('v_lshrrev_b32', vA, 5, vO)); E(valu('v_lshl_add_u32', vXO, vA, 6, vXO)); E(valu('v_lshl_add_u32', vLD, vA, 11, vLD))
    E(mul(sXW, sWAVE, 8 * 1152)); E(shr(sPWv, sWAVE, 1)); E(shl(sPWv, sPWv, 10)); E(salu('s_and_b32', sT2, sWAVE, 1)); E(shl(sT2, sT2, 7)); E(add(sPWv, sPWv, sT2))
    L0, L1 = 72, 144
    E(smov(sD0, 0x3f80)); E(smov(sD1, 0x3f800000))
    E(raw(f"s_mov_b64 {sRM}, 0", 'salu', wr=[sRM]))
    FOUR = CFG.get('four')
    sMID = s(48 + 0) if False else s(83)
    def nib(dst, tab, base):
        E(smov(sCD[0], sum(tab[i] << (4 * i) for i in range(8)))); E(smov(sCD[1], tab[8] | (tab[9] << 4)))
        E(shl(sT2, sROLE, 2)); E(s64('s_lshr_b64', sCD, sCD, sT2)); E(salu('s_and_b32', dst, sCD[0], 15))
        E(salu('s_cmp_eq_u32', None, dst, 15)); E(csel(dst, 63 - base, dst)); E(add(dst, dst, base))
    if n == 'A':
        E(smov(sIT[0], sROLE)); E(add(sIT[1], sROLE, 10))
        if FOUR:
            nib(sMID, [0, 15, 1, 2, 15, 3, 4, 5, 6, 7], 20); nib(sIT[2], [0, 1, 15, 2, 3, 15, 4, 5, 6, 7], 28)
            E(raw(f"s_bitset1_b64 {sRM}, {sMID}", 'salu', wr=[sRM], rd=[sRM, sMID]))
        else:
            nib(sIT[2], [0, 1, 15, 2, 3, 15, 4, 5, 6, 7], 28)
            E(salu('s_cmp_eq_u32', None, sROLE, 2)); E(csel(sIT[2], 22, sIT[2])); E(salu('s_cmp_eq_u32', None, sROLE, 5)); E(csel(sIT[2], 21, sIT[2]))
        its = sIT
    elif n == 'M': E(smov(sIT[0], 20)); its = sIT[:1]
    else:
        E(add(sIT[0], sROLE, 12)); its = sIT[:1]
    if FOUR and n != 'A':
        its = []
        E(waitvm(0)); E(red_poll()[1]); E(waitvm(0)); E(raw(f"s_branch L_{n}_fin"))
    for it in its: E(raw(f"s_bitset1_b64 {sRM}, {it}", 'salu', wr=[sRM], rd=[sRM, it]))
    E(salu('s_and_b32', sRM[1], sRM[1], 15))
    def refresh(wait):
        L = f"L_{n}_rf{k_[0]}"; k_[0] += 1
        E(salu('s_cmp_eq_u32', None, sWAVE, 0)); E(raw(f"s_cbranch_scc0 {L}"))
        E(waitvm(wait)); E(red_eval()); E(red_pub(sPAR))
        E(label(L)); E(barrier()); E(red_get(sPAR)); E(salu('s_xor_b32', sPAR, sPAR, 12))
    ALLD = lambda L, sx: ld_part(L, range(NPART), FL) + ld_x(L, sx)
    LATE = n in CFG.get('lateflag', 'A')
    sPT = [s(47), s(67 - 2), s(70)]
    def offs2(i): return offs(its[i], sXP[i]) + ([smov(sPT[i], sPART)] if i else [])
    def final_flag(wait):
        E(waitvm(wait)); E(barrier())
        E(valu('v_mov_b32', vPRG, 9)); E(bstore('buffer_store_dword', vPRG, vCT, sWS, 0, flags='sc1'))
        return 1
    def poll_hook(_): E(red_poll()[1]); return 2
    def poll_sh(_): E(red_poll(True)[1]); return 2
    poll_hook.sh = poll_sh
    seg = lambda i, L, ks=range(NPART), wx=True, fin=True: (L, sPT[i], sXP[i], ks, wx, fin)
    ni = len(its)
    for i in reversed(range(ni)): E(offs2(i))
    two = min(ni, 2)
    if ni: body_items(E, n, its, two, ni, ensure, refresh, done, ST, seg, final_flag, poll_hook, LATE, L0, L1, FOUR, sMID, offs, sPT)
    E(label(f"L_{n}_fin"))
    E(salu('s_cmp_eq_u32', None, sWAVE, 0)); E(raw(f"s_cbranch_scc0 L_{n}_b4"))
    E(waitvm(2))
    E(raw(f"v_cmp_ne_u32 vcc, 0, {vP}", 'valu', wr=['vcc'], rd=[vP])); E(nop(1))
    E(raw(f"s_lshr_b64 {sAB}, vcc, 18", 'salu', wr=[sAB], rd=['vcc'])); E(salu('s_and_b32', sAB[1], sAB[1], 15))
    E(salu('s_or_b32', sT2, sAB[0], sAB[1])); E(csel(sTO, 1, 0))
    E(salu('s_cmp_ge_u32', None, sOK, 16)); E(csel(sTO, sTO, 1)); E(red_pub(sPAR))
    E(label(f"L_{n}_b4")); E(barrier()); E(red_get(sPAR)); E(salu('s_xor_b32', sPAR, sPAR, 12))
    E(salu('s_cmp_eq_u32', None, sTO, 0)); E(raw(f"s_cbranch_scc1 L_{n}_exit"))
    E(label(f"L_{n}_fb"))
    E(waitvm(0))
    E(salu('s_cmp_eq_u32', None, sWAVE, 0)); E(raw(f"s_cbranch_scc0 L_{n}_fb2"))
    E(s64('s_lshl_b64', sCD, sRM, 18)); E(valu('v_mov_b32', vO, OOB)); E(valu('v_mov_b32', vA, 1))
    E(valu('v_cndmask_b32', vO, vO, vL4, sCD)); E(bstore('buffer_store_dword', vA, vO, sWS, sPB, flags='sc1')); E(waitvm(0))
    E(red_poll()[0]); E(waitvm(0)); E(red_poll(True)[1]); E(waitvm(0)); E(valu('v_readfirstlane_b32', sOK, vD)); E(red_eval())
    E(salu('s_min_u32', sT2, sRS, sRF)); E(salu('s_cmp_ge_u32', None, sOK, 16)); E(csel(sT2, sT2, 0))
    E(salu('s_bfm_b64', sCD, sT2, 0, scc_w=False)); E(s64('s_or_b64', sAB, sAB, sRM)); E(s64('s_and_b64', sAB, sAB, sCD))
    E(label(f"L_{n}_fb1"))
    E(raw(f"s_ff1_i32_b64 {sRS}, {sAB}", 'salu', wr=[sRS], rd=[sAB])); E(salu('s_and_b32', sRS, sRS, 255))
    E(raw(f"s_bitset0_b64 {sAB}, {sRS}", 'salu', wr=[sAB], rd=[sAB, sRS])); E(red_pub(sPAR))
    E(label(f"L_{n}_fb2")); E(barrier()); E(red_get(sPAR)); E(salu('s_xor_b32', sPAR, sPAR, 12))
    E(salu('s_cmp_ge_u32', None, sRS, 36)); E(raw(f"s_cbranch_scc1 L_{n}_exit"))
    E(offs(sRS, sXP[0])); E(ld_part(L0, range(NPART), FL) + ld_x(L0, sXP[0])); E(waitvm(0)); proc_all(E, L0, sXP[0], 0, [])
    E(salu('s_cmp_eq_u32', None, sWAVE, 0)); E(raw(f"s_cbranch_scc1 L_{n}_fb1")); E(raw(f"s_branch L_{n}_fb2"))
    E(label(f"L_{n}_exit"))
    ST(60)
    if CFG['stamps']: E(raw(f"s_setpc_b64 {sRET}"))
    else: E(raw("s_endpgm"))
    E(label(f"L_{n}_sync"))
    E(salu('s_cmp_eq_u32', None, sWAVE, 0)); E(raw(f"s_cbranch_scc0 L_{n}_sy2"))
    E(smov(sSP, 0)); E(red_poll()[1][0])
    E(label(f"L_{n}_sy0"))
    E(salu('s_cmp_ge_u32', None, sOK, 16)); E(raw(f"s_cbranch_scc1 L_{n}_sy1"))
    E(red_poll()[0]); E(waitvm(0)); E(valu('v_readfirstlane_b32', sOK, vD))
    E(salu('s_cmp_ge_u32', None, sOK, 16)); E(raw(f"s_cbranch_scc0 L_{n}_syw"))
    E(label(f"L_{n}_sy1"))
    E(red_poll()[1][1]); E(red_poll()[1][0]); E(waitvm(1)); E(red_eval())
    E(salu('s_bitcmp1_b32', None, sC, 0)); E(csel(sT2, sRS, 36)); E(salu('s_bitcmp1_b32', None, sC, 1)); E(csel(sT3, sRF, 36))
    E(salu('s_min_u32', sT2, sT2, sT3)); E(salu('s_cmp_lt_u32', None, sI, sT2)); E(raw(f"s_cbranch_scc1 L_{n}_syp"))
    E(label(f"L_{n}_syw"))
    E(add(sSP, sSP, 1)); E(salu('s_cmp_gt_u32', None, sSP, CFG.get('spin', 4000))); E(csel(sTO, 1, 0)); E(raw(f"s_cbranch_scc1 L_{n}_syp"))
    E(raw(f"s_sleep {CFG.get('sleep', 1)}")); E(raw(f"s_branch L_{n}_sy0"))
    E(label(f"L_{n}_syp"))
    E(red_pub(sPAR))
    E(label(f"L_{n}_sy2")); E(barrier()); E(red_get(sPAR)); E(salu('s_xor_b32', sPAR, sPAR, 12))
    E(raw(f"s_setpc_b64 {sRET2}"))
    return p

def reduce_items(p, ni, sPART_, sXO_, srdP, srdX, srdO, vL16, vXO_, base, flags, mid=None):
    E = p.emit
    SA = base; FA = base + 8; T = base + 16
    Ls = [base + 24 + 72 * i for i in range(ni)]
    for k in range(NPART):
        if k: E(add(sPART_, sPART_, 16 * PART - (PWAVE if ni == 2 else 0)))
        for i in range(ni):
            if i: E(add(sPART_, sPART_, PWAVE))
            E(bload('buffer_load_dwordx4', v(Ls[i] + 4 * k, 4), vL16, srdP, sPART_, flags=flags))
    for i in range(ni):
        XR = Ls[i] + 68
        if i: E(add(sT2, sXO_, 32 * 1152))
        so = sT2 if i else sXO_
        E(bload('buffer_load_dwordx2', v(XR, 2), vXO_, srdX, so)); E(bload('buffer_load_dwordx2', v(XR + 2, 2), vXO_, srdX, so, 32))
    ex = 0
    if mid: mid(); ex = 1
    E(smov(sT3, 0xffff0000))
    for i in range(ni):
        L = Ls[i]; XR = L + 68
        for k in range(NPART):
            if i == 0: E(waitvm((NPART - 1 - k) * ni + (ni - 1) + 2 * ni + ex))
            acc = SA if k < 11 else FA
            for q in range(4):
                x = v(L + 4 * k + q)
                if k in (0, 11):
                    E(valu('v_lshlrev_b32', v(acc + 2 * q), 16, x)); E(valu('v_and_b32', v(acc + 2 * q + 1), sT3, x))
                else:
                    tp = v(T + 2 * q, 2)
                    E(valu('v_lshlrev_b32', tp[0], 16, x)); E(valu('v_and_b32', tp[1], sT3, x))
            if k not in (0, 11):
                for q in range(4): E(valu('v_pk_add_f32', v(acc + 2 * q, 2), v(acc + 2 * q, 2), v(T + 2 * q, 2)))
        for e in range(8): E(valu('v_exp_f32', v(T + e), v(FA + e)))
        for e in range(8): E(valu('v_add_f32', v(T + e), 1.0, v(T + e)))
        for e in range(8): E(valu('v_rcp_f32', v(T + e), v(T + e)))
        for e in range(8): E(valu('v_mul_f32', v(FA + e), f2u(-math.log(2.0)), v(FA + e)))
        for e in range(8): E(valu('v_mul_f32', v(FA + e), v(FA + e), v(T + e)))
        if i == 0: E(waitvm(ex if ni == 1 else 0))
        for q in range(4):
            E(valu('v_lshlrev_b32', v(T + 2 * q), 16, v(XR + q))); E(valu('v_and_b32', v(T + 2 * q + 1), sT3, v(XR + q)))
        for e in range(8): E(valu('v_fma_f32', v(T + e), v(SA + e), v(FA + e), v(T + e)))
        for q in range(4): E(valu('v_cvt_pk_bf16_f32', v(XR + q), v(T + 2 * q), v(T + 2 * q + 1)))
        if i: E(add(sXO_, sXO_, 32 * 1152))
        E(bstore('buffer_store_dwordx2', v(XR, 2), vXO_, srdO, sXO_)); E(bstore('buffer_store_dwordx2', v(XR + 2, 2), vXO_, srdO, sXO_, 32))

def build_role(kind, vm_before):
    R = Role(kind)
    CFG['shape'] = CFG.get('shapes', {}).get(kind, CFG['shape0'])
    R.ring = {'F': (216, 9), 'A': (192, 16), 'M': (200, 8)}[kind]
    if kind == 'M': R.depth = 7
    nl = CFG.get('pfl', 16)
    MS = CFG['shape'] == 'M'
    if MS:
        R.add_p1_unit, R.add_p1_half, R.epi_silu, R.epi_q = R.add_p1_unitM, R.add_p1_halfM, R.epi_siluM, R.epi_qM
    P2M = 'q16' if MS else 'pi'
    if kind == 'F':
        for u in range(13): R.add_p1_unit(u, sW1, sHA, sHC, 9216, u == 0, a(16 * u, 16), R.epi_silu, last=(u == 12), inreg=[pf_run(sW2, sPF2, 832 * 1152, 10) if u >= 1 else None, pf_row('F', sW1) if CFG['pf'] >= 3 else None] if CFG['pf'] else None)
        R.add_p1_half(13, a(208, 8))
        needs = {t: [('reg', 8 * t)] for t in range(27)}
        dm = [dma_w(sW2, sFA, 0, 1152, sFC, 0), dma_w(sW2, sFA, 288 * 1152, 1152, sFC, 288 * 1152), dma_w(sW2, sFA, 576 * 1152, 1152, sFS, 0)]
        R.add_p2([(a(0, 216), [288, 288, 288], dm, needs, sSt)], [add(x, x, 128) for x in (sFA, sFC, sFS)], pre0=lambda: set_offw(1152, P2M))
        if CFG['pf']:
            pf_sched(R, 26, sW2, sPF2h, 32 * 1152, 8)
    elif kind == 'A' and CFG.get('pair'):
        OA = a(96, 64)
        Ha = dict(i=0, Q=a(0, 32), S=Sreg, P=Preg, O=OA, LM=v(230, 8), OF=lambda kk: OA.sub(16 * kk, 8),
                  need_qk=[('acc', 48), ('acc', 64)], need_pv=[('acc', 48 + 16 * i) for i in range(4)])
        Hb = dict(i=1, Q=a(32, 32), S=[v(48, 16), v(64, 16)], P=[v(80, 8), v(88, 8)], O=v(160, 64), LM=v(96, 8), OF=lambda kk: OA.sub(16 * kk + 8, 8))
        Hc = dict(i=2, Q=a(64, 32), S=Sreg, P=Preg, O=v(48, 64), LM=v(16, 8), OF=lambda kk: a(160 + 8 * kk, 8), need_pv=[('lm', 0)])
        Ha['need_qk'] += [('acc', 80)]
        pj = {1: sJQ}
        for u in range(6):
            R.add_p1_unit(u, sWQ, sQA, sQC, 8192, u == 0, a(16 * u, 16), R.epi_q, last=(u == 5), step=sJQ if u == 4 else 128,
                          inreg=[pf_run(sWO, sPFc, 384 * 1152, 11) if u >= 1 else None, pf_row('A', sWQ, pj.get(u, 128)) if CFG['pf'] >= 3 and u < 3 else None] if CFG['pf'] else None)
        R.add_pa_g([[Ha, Hb], [Hc]])
        Bf = [H['OF'](kk) for H in (Ha, Hb, Hc) for kk in range(4)]
        needs = {0: [('fin', 0), ('fin', 1)], 8: [('fin', 2)]}
        dm = [dma_w192(sWO, 0), dma_w192(sWO, 0, sOA1, sOB1)]
        R.add_p2([(Bf, [192, 192], dm, needs, sSt)], [add(x, x, 128) for x in (sOA, sOB, sOA1, sOB1)], pre0=lambda: set_offw(1152, P2M))
        R.heads = [(Ha, sPFa), (Hb, sPFa), (Hc, sPFb)]
        if CFG['pf'] >= 2:
            pf_sched(R, 10, sK, sPFa, 131072, 16); pf_sched(R, 10, sV, sPFa, 131072, 16)
            pf_sched(R, 12, sK, sPFb, 131072, 16); pf_sched(R, 12, sV, sPFb, 131072, 16)
    elif kind == 'A':
        Q = [a(32 * e, 32) for e in range(3)]; O = [a(96 + 32 * e, 32) for e in range(3)]
        for u in range(6): R.add_p1_unit(u, sWQ, sQA, sQC, 8192, u == 0, a(16 * u, 16), R.epi_q, last=(u == 5), inreg=[pf_run(sWO, sPFc, 384 * 1152, 11) if u >= 1 else None, pf_row('A', sWQ) if CFG['pf'] >= 3 and u < 5 else None] if CFG['pf'] else None)
        R.add_pa(Q, O)
        needs = {4 * e: [('fin', e)] for e in range(3)}; needs[0].append(('S', 2, 15))
        dm = [dma_w192(sWO, b * 192 * 1152) for b in range(2)]
        R.add_p2([(a(96, 96), [192, 192], dm, needs, sSt)], [add(sOA, sOA, 128), add(sOB, sOB, 128)], pre0=lambda: set_offw(1152, P2M))
        if CFG['pf']:
            if CFG['pf'] >= 2:
                pf_sched(R, 10, sK, sPFa, 131072, 16); pf_sched(R, 10, sV, sPFa, 131072, 16)
                pf_sched(R, 12, sK, sPFb, 131072, 16); pf_sched(R, 12, sV, sPFb, 131072, 16)
    else:
        Q = [a(136 + 32 * e, 32) for e in range(2)]; O = [a(72 + 32 * e, 32) for e in range(2)]
        def mpf(u):
            if u == 0: return pf_row('M', sWQ)
            if u == 1: return lambda: pf_row_setup('M', 9216, 18, sPF1, 0) + [pf_row('M', sW1)()[1]]
            if u <= 4: return pf_row('M', sW1)
            if u == 5: return lambda: [smov(sPW, sPF1h), pf_row('M', sW1)()[1]]
            return None
        for u in range(4): R.add_p1_unit(u, sWQ, sQA, sQC, 8192, u == 0, a(136 + 16 * u, 16), R.epi_q, key='Q', inreg=[None, mpf(u)] if CFG['pf'] >= 3 else None)
        for u in range(4): R.add_p1_unit(4 + u, sW1, sHA, sHC, 9216, u == 0, a(16 * u, 16), R.epi_silu, pre=(lambda: set_offw(9216, 'M' if MS else 'S')) if u == 0 else None, last=(u == 3), key='H', inreg=[None, mpf(4 + u)] if CFG['pf'] >= 3 else None)
        R.add_p1_half(8, a(64, 8))
        BO = a(72, 64)
        if CFG.get('pair'):
            Ha = dict(i=0, Q=Q[0], S=Sreg, P=Preg, O=BO, LM=v(230, 8), OF=lambda kk: BO_.sub(16 * kk, 8),
                      need_qk=[('acc', 48 + 16 * i) for i in range(3)], need_pv=[('acc', 48 + 16 * i) for i in range(4)])
            Hb = dict(i=1, Q=Q[1], S=[v(64, 16), v(48, 16)], P=[v(80, 8), v(88, 8)], O=v(160, 64), LM=v(96, 8), OF=lambda kk: BO_.sub(16 * kk + 8, 8))
            BO_ = BO
            R.add_pa_g([[Ha, Hb]])
            BO = [H['OF'](kk) for H in (Ha, Hb) for kk in range(4)]
            R.heads = [(Ha, sPFa), (Hb, sPFa)]
        else: R.add_pa(Q, O)
        nf = {t: [('reg', 8 * t)] for t in range(9)}; nf[0].append(('S', 1, 15))
        R.add_p2([(a(0, 72), [288], [dma_w(sW2, sFA, 0, 1152, sFS, 0)], nf, sSt2),
                  (BO, [256], [dma_w(sWO, sOA, 0, 1152)], {0: [('fin', 0)], 4: [('fin', 1)]}, sSt)],
                 [add(x, x, 128) for x in (sOA, sFA, sFS)], pre0=lambda: set_offw(1152, P2M))
        for st in R.stages[-18:]: st.ring = (200, 14, 'restart')
        if CFG['pf']:
            if CFG['pf'] >= 2:
                k = pf_sched(R, 14, sK, sPFa, 131072, 16); k = pf_sched(R, k, sV, sPFa, 131072, 16)
            pf_sched(R, 16, sWO, sPFc, 256 * 1152, 36); pf_sched(R, 23 if not CFG.get('pair') else 17, sW2, sPF2, 256 * 1152, 36); pf_sched(R, 24 if not CFG.get('pair') else 17, sW2, sPF2h, 32 * 1152, 8)
    if CFG.get('msum') and not MS and kind in 'AM':
        st0 = [st for st in R.stages if st.name == 'PAh0s0'][0]
        m0_ = st0.mf[8]
        m0_.need += [('acc', 48 + 16 * i) for i in range(4)]
        m0_.pre = lambda: R.p.emit([valu('v_mov_b32', vONES[i], 0x3f803f80) for i in range(4)])
    if CFG.get('recode') and CFG['fused']:
        names = [st.name for st in R.stages]
        nS = len(names)
        R.pf.setdefault(nS - 2, []).append(pf_code(f"L_{kind}_red", f"L_role{kind}_end", 4))
        p2 = names.index('P2c0b0')
        R.stages[p2].label = f"L_{kind}_p2"
        R.pf.setdefault(p2 - 2, []).append(pf_code(f"L_{kind}_p2", f"L_{kind}_p2+20480", 5))
        if kind in 'AM':
            pa = names.index('PAmini'); R.stages[pa].label = f"L_{kind}_pa"
            R.pf.setdefault(pa - 1, []).append(pf_code(f"L_{kind}_pa", f"L_{kind}_p2", 8))
    if CFG.get('hot') and CFG['fused'] and kind in CFG['hot']:
        names = [st.name for st in R.stages]
        last = names.index('P2c8b0'); R.stages[last].label = f"L_{kind}_c8"
        def setup():
            o = [raw(f"s_getpc_b64 {sPC}", 'salu', wr=[sPC]), label(f"L_{kind}_hp"),
                 salu('s_add_u32', sPC[0], sPC[0], f"L_{kind}_c8-L_{kind}_hp"), salu('s_addc_u32', sPC[1], sPC[1], 0, scc_r=True),
                 valu('v_bfe_u32', vPF2, vTID, 16, 5), valu('v_and_b32', vPF, 63, vTID), valu('v_min_u32', vPF, 1, vPF),
                 valu('v_lshl_add_u32', vPF, vPF2, 1, vPF), valu('v_lshlrev_b32', vPF, 7, vPF)]
            if kind == 'F': o += pf_row_setup(kind, 1152, 26, sPF2, 2 * 128)
            return o
        def rep_code():
            return [I(f"global_load_dword {vDUM}, {vPF}, {sPC}", 'vload', wr=vDUM.regs(), rd=vPF.regs() + sPC.regs(), units=3, tag='pf')]
        R.pf.setdefault(names.index('P2c1b0'), []).append(setup)
        for c in range(2, 8):
            k0 = names.index(f'P2c{c}b0')
            R.pf.setdefault(k0, []).append(rep_code)
            if kind == 'F': R.pf.setdefault(k0 + 1, []).append(pf_row(kind, sW2))
    R.slow = []
    if kind in 'AM' and CFG.get('slow', True) and CFG.get('pair'):
        P2s = [st for st in R.stages if st.name.startswith('P2c0')]
        hl = [(H['i'], H['Q'], (H['OF'], kv)) for (H, kv) in R.heads]
        if kind == 'A':
            P2s[0].mf[0].pre = slow_check(R, hl[:2], (112, 160))
            [m for m in P2s[1].mf if ('fin', 2) in m.need][0].pre = slow_check(R, hl[2:], (160, 48))
        else:
            P2s[1].mf[0].need += [('fin', 1)]
            P2s[1].mf[0].pre = slow_check(R, hl, (160, 48))
    elif kind in 'AM' and CFG.get('slow', True):
        P2s = [st for st in R.stages if st.name.startswith('P2c0')]
        if kind == 'A':
            P2s[0].mf[0].need += [('fin', 1)]
            P2s[0].mf[0].pre = slow_check(R, [(0, Q[0], O[0]), (1, Q[1], O[1])], 112)
            m_ = [m for m in P2s[1].mf if ('fin', 2) in m.need][0]
            m_.pre = slow_check(R, [(2, Q[2], O[2])], 160)
        else:
            P2s[1].mf[0].need += [('fin', 1)]
            P2s[1].mf[0].pre = slow_check(R, [(0, Q[0], O[0]), (1, Q[1], O[1])], 160)
    if CFG['fused']:
        add_signals(R)
        def early0():
            it = red_setup(kind) + red_poll()[0]
            it[-1].tag = 'cnt'
            return it
        def early():
            assert R.cnt_covered()
            PRIV[0] = (kind == 'A')
            it = red_poll()[1]
            it[-1].tag = 'poll'
            return it
        def covered():
            idx = max(i for i, x in enumerate(R.p.ins) if x.tag == 'cnt'); n = 0
            for x in R.p.ins[idx + 1:]:
                if x.kind in VMEMK: n += 1
                if x.txt.startswith('s_waitcnt vmcnt(') and int(x.txt[16:-1]) <= n: return True
            return False
        R.cnt_covered = covered
        if kind == 'A' and CFG.get('l2pf'):
            nm = [st.name for st in R.stages]
            R.pf.setdefault(nm.index('P2c1b0'), []).append(l2pf_setup)
            for (cw, dlt) in CFG['l2pf']:
                kp = nm.index(f'P2c{cw}b0')
                for j in range(4): R.pf.setdefault(kp, []).append(lambda j=j: l2pf_poll()[j])
                R.stages[kp + 2].cover_tag = 'gp'
                def gate(j, dlt=dlt):
                    def f():
                        it = l2pf_issue(R, dlt)[j]
                        if j == 0:
                            it = it + [valu('v_readfirstlane_b32', sOK, vD), salu('s_cmp_ge_u32', None, sOK, 16), csel(sC, sC, 15)]
                        return it
                    return f
                for j in range(4): R.pf.setdefault(kp + 2, []).append(gate(j))
        R.pf.setdefault([st.name for st in R.stages].index('P2c1b0' if kind == 'F' else 'P2c0b1'), []).append(early0)
        R.pf.setdefault(len(R.stages) - CFG.get('pollw', 1), []).append(early)
    role_prologue(R, vm_before)
    R.run()
    if CFG['fused']:
        p = R.p
        red_early(p, kind)
        if kind in CFG.get('lateflag', 'A'): p.emit(barrier())
        else:
            p.emit(waitvm(0)); p.emit(barrier())
            p.emit(valu('v_mov_b32', vPRG, 9)); p.emit(bstore('buffer_store_dword', vPRG, vCT, sWS, 0, flags='sc1'))
        if CFG['stamps']: R.stamp(len(R.stages) - 1)
        p.emit(raw(f"s_call_b64 {sRET}, L_{kind}_red"))
    if CFG['stamps']:
        p = R.p
        R.stamp(len(R.stages))
        p.emit(raw("s_memrealtime s[98:99]", wr=[s(98, 2)])); p.emit(raw("s_waitcnt lgkmcnt(0)"))
        p.emit(raw(f"v_writelane_b32 {vSTAMP}, s98, 63", 'valu', wr=[vSTAMP], rd=[s(98)]))
        if CFG.get('dbgstat'):
            n = len(R.stages)
            lanes = {'F': [0, 27, n - 1, n], 'A': [0, 37, n - 1, n], 'M': [0, 34, n - 1, n]}[kind]
            slots = {'F': [1, 2, 3, 5], 'A': [10, 11, 13, 14], 'M': [15, 15, 15, 15]}[kind]
            p.emit([valu('v_mov_b32', v(4), 256), valu('v_mov_b32', v(5), 0)])
            for i, (ln, sl) in enumerate(zip(lanes, slots)):
                p.emit(raw(f"v_readlane_b32 s92, {vSTAMP}, {ln}", 'rdl', wr=[sT2], rd=[vSTAMP])); p.emit(nop(3))
                p.emit(raw(f"v_writelane_b32 v5, s92, {i}", 'valu', wr=[v(5)], rd=[sT2])); p.emit(raw(f"v_writelane_b32 v4, {4 * sl}, {i}", 'valu', wr=[v(4)]))
            p.emit(raw(f"v_writelane_b32 v5, s98, 4", 'valu', wr=[v(5)], rd=[s(98)])); p.emit(raw(f"v_writelane_b32 v4, 28, 4", 'valu', wr=[v(4)]))
            p.emit(salu('s_not_b32', sT2, s(43))); p.emit(raw(f"v_writelane_b32 v5, s92, 5", 'valu', wr=[v(5)], rd=[sT2])); p.emit(raw(f"v_writelane_b32 v4, 36, 5", 'valu', wr=[v(4)]))
            p.emit(salu('s_sub_u32', sT2, s(98), s(43))); p.emit(raw(f"v_writelane_b32 v5, s92, 6", 'valu', wr=[v(5)], rd=[sT2])); p.emit(raw(f"v_writelane_b32 v4, 24, 6", 'valu', wr=[v(4)]))
            p.emit([salu('s_cmp_eq_u32', None, sRB, 9), csel(sT2, 0, sRB), salu('s_or_b32', sT2, sT2, sWAVE), salu('s_cmp_eq_u32', None, sT2, 0), csel(sT2, 0, 256),
                    valu('v_add_u32', v(4), sT2, v(4))])
            p.emit(I(f"buffer_atomic_umax v5, v4, {sDBG}, 0 offen sc1", 'vstore', rd=vr(4, 2) + sDBG.regs(), units=3))
        p.emit([shl(sT2, s(2), 2), add(sT2, sT2, sWAVE), shl(sT2, sT2, 8), add(sT2, sT2, STAMP_OFF),
                valu('v_lshrrev_b32', v(42), 2, vLANE16), bstore('buffer_store_dword', vSTAMP, v(42), sWS, sT2)])
    R.p.emit(raw("s_endpgm"))
    return R

def fold(ins, name):
    idx = [i for i, x in enumerate(ins) if x.tag == 'mark']
    def body(a_, b_): return [x.txt for x in ins[a_:b_] if x.kind != 'label']
    out = []; pos = 0; k = 0; nl = 0
    while k + 1 < len(idx):
        b0 = body(idx[k], idx[k + 1]); n = 1
        while k + n + 1 < len(idx) and body(idx[k + n], idx[k + n + 1]) == b0: n += 1
        if n >= 2:
            out += ins[pos:idx[k]]
            L = f"L_{name}_loop{nl}"; nl += 1
            out.append(smov(sLC, n)); out.append(I(".p2align 3", 'label')); out.append(label(L))
            out += ins[idx[k]:idx[k + 1]]
            out += [salu('s_sub_u32', sLC, sLC, 1), salu('s_cmp_lg_u32', None, sLC, 0), raw(f"s_cbranch_scc1 {L}")]
            pos = idx[k + n]; k += n
        else: k += 1
    out += ins[pos:]
    return out

def fold_regions(ins, name):
    regs = []; i = 0
    beg = None
    for i, x in enumerate(ins):
        if isinstance(x.tag, tuple) and x.tag and x.tag[0] == 'region':
            if x.tag[1] == 'begin': beg = (i, x.tag[2])
            elif beg: regs.append((beg[0], i, beg[1])); beg = None
    groups = {}
    for (a_, b_, key) in regs:
        groups.setdefault(tuple(x.txt for x in ins[a_:b_] if x.kind != 'label'), []).append((a_, b_))
    out = []; subs = []; repl = {}
    n = 0
    for body, lst in groups.items():
        if len(lst) >= 2:
            L = f"L_{name}_sub{n}"; n += 1
            a_, b_ = lst[0]
            subs += [I(".p2align 6", 'label'), label(L)] + ins[a_:b_] + [raw(f"s_setpc_b64 {sRET}")]
            for (a_, b_) in lst: repl[a_] = (b_, L)
    i = 0
    while i < len(ins):
        if i in repl:
            b_, L = repl[i]; out.append(raw(f"s_call_b64 {sRET}, {L}")); i = b_
        else:
            out.append(ins[i]); i += 1
    print(f"  regions: {[len(l) for l in groups.values()]}", file=sys.stderr)
    return out + subs

def reduce_body(p, sPART, sXO, srdP, srdX, srdO, vL16, vXO, base, flags, mid=None):
    E = p.emit
    L = base; XR = base + 68; SA = base + 72; FA = base + 80; T = base + 88
    for k in range(NPART):
        if k: E(add(sPART, sPART, 16 * PART))
        E(bload('buffer_load_dwordx4', v(L + 4 * k, 4), vL16, srdP, sPART, flags=flags))
    E(bload('buffer_load_dwordx2', v(XR, 2), vXO, srdX, sXO)); E(bload('buffer_load_dwordx2', v(XR + 2, 2), vXO, srdX, sXO, 32))
    ex = 0
    if mid: E(mid()); ex = 1
    E(smov(sT3, 0xffff0000))
    for k in range(NPART):
        E(waitvm(NPART + 1 - k + ex))
        acc = SA if k < 11 else FA
        for q in range(4):
            x = v(L + 4 * k + q)
            if k in (0, 11):
                E(valu('v_lshlrev_b32', v(acc + 2 * q), 16, x)); E(valu('v_and_b32', v(acc + 2 * q + 1), sT3, x))
            else:
                tp = v(T + 2 * q, 2)
                E(valu('v_lshlrev_b32', tp[0], 16, x)); E(valu('v_and_b32', tp[1], sT3, x))
        if k not in (0, 11):
            for q in range(4): E(valu('v_pk_add_f32', v(acc + 2 * q, 2), v(acc + 2 * q, 2), v(T + 2 * q, 2)))
    for e in range(8): E(valu('v_exp_f32', v(T + e), v(FA + e)))
    for e in range(8): E(valu('v_add_f32', v(T + e), 1.0, v(T + e)))
    for e in range(8): E(valu('v_rcp_f32', v(T + e), v(T + e)))
    for e in range(8): E(valu('v_mul_f32', v(FA + e), f2u(-math.log(2.0)), v(FA + e)))
    for e in range(8): E(valu('v_mul_f32', v(FA + e), v(FA + e), v(T + e)))
    E(waitvm(ex))
    for q in range(4):
        E(valu('v_lshlrev_b32', v(T + 2 * q), 16, v(XR + q))); E(valu('v_and_b32', v(T + 2 * q + 1), sT3, v(XR + q)))
    for e in range(8): E(valu('v_fma_f32', v(T + e), v(SA + e), v(FA + e), v(T + e)))
    for q in range(4): E(valu('v_cvt_pk_bf16_f32', v(XR + q), v(T + 2 * q), v(T + 2 * q + 1)))
    E(bstore('buffer_store_dwordx2', v(XR, 2), vXO, srdO, sXO)); E(bstore('buffer_store_dwordx2', v(XR + 2, 2), vXO, srdO, sXO, 32))

def reduce_kernel():
    p = Prog(); E = p.emit
    E(salu('s_cmp_ge_u32', None, s(2), 576)); E(raw("s_cbranch_scc0 L_rgo")); E(raw("s_endpgm")); E(label("L_rgo"))
    E(raw("s_load_dwordx2 s[4:5], s[0:1], 0", wr=[s(4, 2)])); E(raw("s_load_dwordx2 s[6:7], s[0:1], 64", wr=[s(6, 2)])); E(raw("s_load_dwordx2 s[8:9], s[0:1], 80", wr=[s(8, 2)]))
    E(valu('v_lshrrev_b32', v(1), 6, v(0))); E(valu('v_readfirstlane_b32', s(10), v(1)))
    E(shl(s(11), s(2), 2)); E(add(s(11), s(11), s(10)))
    E(salu('s_mul_hi_u32', s(24), s(11), -(-(1 << 32) // 36), scc_w=False))
    E(mul(s(25), s(24), 36)); E(salu('s_sub_u32', s(25), s(11), s(25)))
    E(shl(s(26), s(11), 10))
    E(valu('v_and_b32', v(0), 63, v(0))); E(valu('v_lshlrev_b32', v(1), 4, v(0)))
    E(valu('v_and_b32', v(2), 15, v(0))); E(smov(s(27), 1152)); E(valu('v_mul_u32_u24', v(2), s(27), v(2)))
    E(valu('v_lshrrev_b32', v(3), 4, v(0))); E(valu('v_lshl_add_u32', v(2), v(3), 3, v(2)))
    E(mul(s(28), s(24), 32 * 1152)); E(salu('s_and_b32', s(29), s(25), 1)); E(mul(s(29), s(29), 16 * 1152)); E(add(s(28), s(28), s(29)))
    E(shr(s(25), s(25), 1)); E(shl(s(25), s(25), 6)); E(add(s(28), s(28), s(25)))
    E(raw("s_waitcnt lgkmcnt(0)"))
    srd(p, s(12, 4), 8, WSP_BYTES); srd(p, s(16, 4), 4, 2359296); srd(p, s(20, 4), 6, 2359296)
    reduce_body(p, s(26), s(28), s(12, 4), s(16, 4), s(20, 4), v(1), v(2), 4, CFG.get('rflags', ''))
    E(raw("s_endpgm"))
    return p

def text(ins): return "\n".join((i.txt if i.kind == 'label' else " " + i.txt) for i in ins) + "\n"

def compress(t):
    t = re.sub(r" v_mfma_f32_16x16x32_bf16 v\[(\d+):\d+\], a\[(\d+):\d+\], v\[(\d+):\d+\], v\[\1:\d+\]", r" MV \1,\2,\3", t)
    t = re.sub(r" v_mfma_f32_16x16x32_bf16 v\[(\d+):\d+\], a\[(\d+):\d+\], a\[(\d+):\d+\], v\[\1:\d+\]", r" MA \1,\2,\3", t)
    t = re.sub(r" v_mfma_f32_32x32x16_bf16 v\[(\d+):\d+\], a\[(\d+):\d+\], v\[(\d+):\d+\], v\[\1:\d+\]", r" NV \1,\2,\3", t)
    t = re.sub(r" v_mfma_f32_32x32x16_bf16 v\[(\d+):\d+\], a\[(\d+):\d+\], a\[(\d+):\d+\], v\[\1:\d+\]", r" NA \1,\2,\3", t)
    t = re.sub(r" v_mfma_f32_16x16x32_bf16 a\[(\d+):\d+\], a\[(\d+):\d+\], v\[(\d+):\d+\], a\[\1:\d+\]", r" MC \1,\2,\3", t)
    t = re.sub(r" ds_read_b64_tr_b16 a\[(\d+):\d+\], v(\d+) offset:(\d+)", r" RT \1,\2,\3", t)
    t = re.sub(r" ds_read_b128 a\[(\d+):\d+\], v(\d+) offset:(\d+)", r" RB \1,\2,\3", t)
    t = re.sub(r" v_cvt_pk_bf16_f32 v(\d+), v(\d+), v(\d+)", r" CV \1,\2,\3", t)
    t = re.sub(r" v_accvgpr_write_b32 a(\d+), v(\d+)", r" AW \1,\2", t)
    t = re.sub(r" v_exp_f32 v(\d+), v(\d+)", r" EX \1,\2", t)
    t = re.sub(r" v_add_f32 v(\d+), v(\d+), v(\d+)", r" AD \1,\2,\3", t)
    t = re.sub(r" v_mul_f32 v(\d+), v(\d+), v(\d+)", r" ML \1,\2,\3", t)
    t = re.sub(r" s_waitcnt lgkmcnt\((\d+)\)", r" WL \1", t)
    mac = r""".macro MC d,a,b
 v_mfma_f32_16x16x32_bf16 a[\d:\d+3], a[\a:\a+3], v[\b:\b+3], a[\d:\d+3]
.endm
.macro NV d,a,b
 v_mfma_f32_32x32x16_bf16 v[\d:\d+15], a[\a:\a+3], v[\b:\b+3], v[\d:\d+15]
.endm
.macro NA d,a,b
 v_mfma_f32_32x32x16_bf16 v[\d:\d+15], a[\a:\a+3], a[\b:\b+3], v[\d:\d+15]
.endm
.macro MV d,a,b
 v_mfma_f32_16x16x32_bf16 v[\d:\d+3], a[\a:\a+3], v[\b:\b+3], v[\d:\d+3]
.endm
.macro MA d,a,b
 v_mfma_f32_16x16x32_bf16 v[\d:\d+3], a[\a:\a+3], a[\b:\b+3], v[\d:\d+3]
.endm
.macro RT d,a,o
 ds_read_b64_tr_b16 a[\d:\d+1], v\a offset:\o
.endm
.macro RB d,a,o
 ds_read_b128 a[\d:\d+3], v\a offset:\o
.endm
.macro CV d,a,b
 v_cvt_pk_bf16_f32 v\d, v\a, v\b
.endm
.macro AW d,a
 v_accvgpr_write_b32 a\d, v\a
.endm
.macro EX d,a
 v_exp_f32 v\d, v\a
.endm
.macro AD d,a,b
 v_add_f32 v\d, v\a, v\b
.endm
.macro ML d,a,b
 v_mul_f32 v\d, v\a, v\b
.endm
.macro WL n
 s_waitcnt lgkmcnt(\n)
.endm
"""
    return mac, t

HDR = open('recurrent_scan__sliding_block_cached__dense_activation_silu__prompt.s.ref').read().split('; Override launch')[0]
def kd(name, vgpr, acc, sgpr=102):
    return f""".amdhsa_kernel {name}
  .amdhsa_next_free_vgpr {vgpr}
  .amdhsa_next_free_sgpr {sgpr}
  .amdhsa_accum_offset {acc}
  .amdhsa_group_segment_fixed_size 0
  .amdhsa_kernarg_size 88
  .amdhsa_user_sgpr_count 2
  .amdhsa_user_sgpr_kernarg_segment_ptr 1
  .amdhsa_system_sgpr_workgroup_id_x 1
.end_amdhsa_kernel
"""
def est_cycles(ins):
    tot = 0; cur = None; n = 0
    for i in ins:
        if i.kind == 'label': continue
        if i.kind == 'mfma':
            if cur is not None: tot += max(cap, cur)
            cur = 2; n += 1; cap = 8 if len(i.wr) == 16 else 4
        elif cur is not None:
            if i.txt.startswith('s_waitcnt lgkm') and cap == 4: continue
            cur += i.units if not i.txt.startswith('s_nop') else (int(i.txt.split()[1]) + 1) * 0.5
    return tot * 4

def main(out, **kw):
    CFG.update(kw)
    CFG['shape0'] = CFG['shape']
    cp = common_prologue()
    if CFG.get('entry', 0):
        if CFG.get('entry', 1) == 1:
            k = next(i for i, x in enumerate(cp.ins) if x.txt == 's_waitcnt lgkmcnt(0)')
            tail = cp.ins[k:]; vmx = list(cp.vm); cp.ins = cp.ins[:k]; cp.vm = []
            common_prologue2(cp); cp.ins += tail; cp.vm += vmx
        else: common_prologue2(cp)
        common_prologue3(cp)
    body = text(cp.ins) + dispatch_text()
    for kind in 'FAM':
        R = build_role(kind, cp.vm)
        ins = fold_regions(fold(R.p.ins, kind), kind) if CFG['fold'] else R.p.ins
        nm = sum(1 for i in R.p.ins if i.kind == 'mfma')
        print(f"role {kind}: stages {len(R.stages)} mfma {nm} instrs {len([i for i in ins if i.kind!='label'])} (unrolled {len([i for i in R.p.ins if i.kind!='label'])}) pad {R.p.npad} forced {R.forced} est {est_cycles(R.p.ins)} ideal {sum(32 if len(i.wr) == 16 else 16 for i in R.p.ins if i.kind == 'mfma')}", file=sys.stderr)
        if CFG.get('abl_pair') and kind in 'AM':
            out_ = []; on = False
            for x in ins:
                if x.kind == 'label' and x.txt.startswith('; PAh'): on = x.txt.startswith('; PAh1')
                if x.kind == 'label' and x.txt.startswith('; P2'): on = False
                if on and (x.kind in ('dma', 'ds') or (x.kind == 'salu' and ('m0' in x.txt or 's70' in x.txt))): continue
                out_.append(x)
            ins = out_
        ab = CFG.get('ablate', '')
        if ab:
            st0 = next(i for i, x in enumerate(ins) if x.txt.startswith('; P1u1b0'))
            def keep(x):
                if 'd' in ab and x.kind == 'dma': return False
                if 'r' in ab and x.kind == 'ds': return False
                if 'v' in ab and x.kind in ('trans',): return False
                if 'V' in ab and x.kind in ('trans', 'valu', 'perm') and not x.txt.startswith(('v_add_u32', 'v_xor', 'v_writelane', 'v_cmp', 'v_cnd', 'v_mov', 'v_lsh', 'v_mad', 'v_min', 'v_and', 'v_bfe', 'v_mul_u32')): return False
                if 'm' in ab and x.kind == 'mfma': return False
                return True
            ins = ins[:st0] + [x for x in ins[st0:] if keep(x)]
        for sp in R.slow: ins = ins + sp.ins
        if CFG['fused']: ins = ins + reducer(kind).ins
        body += f".p2align 6\nL_role{kind}:\n" + text(ins) + f"L_role{kind}_end:\n"
    rk = reduce_kernel()
    mac, body = compress(body)
    if CFG['fused']:
        t = HDR + "; @launch grid=(256,1,1) block=(256,1,1) lds=163840\n"
        t += '.amdgcn_target "amdgcn-amd-amdhsa--gfx950"\n' + mac + f".text\n.globl {KN}\n.p2align 8\n.type {KN},@function\n{KN}:\n" + body
        t += '.section .rodata,"a"\n.p2align 6\n' + kd(KN, 512, 256)
        open(out, 'w').write(t); print("size", len(t), file=sys.stderr); return
    t = HDR + f"; @launch kernel={KN} grid=(256,1,1) block=(256,1,1) lds=163840\n; @launch kernel={RN} grid=(576,1,1) block=(256,1,1) lds=0\n"
    t += '.amdgcn_target "amdgcn-amd-amdhsa--gfx950"\n' + mac + f".text\n.globl {KN}\n.p2align 8\n.type {KN},@function\n{KN}:\n" + body
    t += f".globl {RN}\n.p2align 8\n.type {RN},@function\n{RN}:\n" + text(rk.ins)
    t += '.section .rodata,"a"\n.p2align 6\n' + kd(KN, 512, 256) + ".p2align 6\n" + kd(RN, 104, 104, 102)
    open(out, 'w').write(t)
    print("size", len(t), file=sys.stderr)

if __name__ == "__main__":
    kw = eval("dict(" + (sys.argv[2] if len(sys.argv) > 2 else "") + ")")
    main(sys.argv[1], **kw)
```

```python
import sys, math, struct
from core import *

KN = "recurrent_scan__sliding_block_cached__dense_activation_silu__prompt_kernel"
RN = "reduce_kernel"
PP = 1088
SLOT = 36 * PP
XW = 36864
PWAVE = 36864
LOG2E = 1.4426950408889634
def f2u(f): return struct.unpack('<I', struct.pack('<f', f))[0]
CFG = dict(depth=8, wevery=4, dmastep=3, store_flags='sc1', fold=True, stamps=False, pf=2, xe=6, fused=False, shape='M')

sX, sK, sV, sWQ, sWO, sW1, sW2, sWS = [s(8 + 4 * i, 4) for i in range(8)]
sPFa, sPFb, sPFc = s(40), s(41), s(42)
sPF1, sPF1h, sPF2, sPF2h = s(44), s(45), s(46), s(47)
sOUT = s(48, 4); sDBG = s(52, 4)
sWAVE, sROLE, sRB = s(62), s(63), s(64)
sW8704, sWC, sW8192, sWCH, sW2176, sW4352, sWA2 = s(65), s(66), s(67), s(68), s(69), s(60), s(61)
sT = s(70)
sQA, sQC, sHA, sHC, sHH, sHHC = s(71), s(72), s(73), s(74), s(75), s(76)
sKb = [s(77), s(78), s(79)]; sVb = [s(80), s(81), s(82)]
sOA, sOB = s(83), s(58)
sFA, sFC, sFS = s(84), s(85), s(86)
sRd, sPrev, sWr = s(87), s(88), s(89)
sSt, sLC, sT2, sT3 = s(90), s(91), s(92), s(93)
sSt2 = s(5)
sPW = s(3)
sPC = s(94, 2)
sRET = s(56, 2)
sWrW = s(59)
sRdN = s(4)
sLN0 = s(96)
sSTAMP = s(98, 2); sT0 = s(100, 2)
s_ = s

vLANE16 = v(0)
vROWN, vROWP, vSWZ = v(1), v(41), v(2)
vOFFW = [v(3), v(4), v(5), v(6)]
vOFFH, vOFFK = v(7), v(8)
vRW = [[v(9), v(10)], [v(11), v(12)], [v(13), v(14)]]
vRH = [v(15), v(37)]
TMP0 = 16
vRK = [v(32), v(33), v(34)]
vTID, vPF, vPF2 = v(38), v(39), v(40)
vSTAMP = v(43)
vDP, vD0, vD1 = v(44), v(45), v(46)
vDK = v(35)
vCT = v(42)
vDK1 = v(34)
vSWZM = v(37)
vRKM = [v(32), v(33)]
vDUM = v(47)
ACC = [v(48, 32), v(80, 32)]
XB = 112
def X(t, g): return v(XB + 8 * t + 4 * g, 4)
def XM(t): return v(XB + 4 * t, 4)
Sreg = [v(112, 16), v(128, 16)]
Preg = [v(144, 8), v(152, 8)]
Oset = [v(160, 64), v(48, 64)]
Lacc = [v(230, 4), v(234, 4)]
Lsave = v(224, 6)
LM = [v(230, 8), v(16, 8)]
vONES = v(24, 4)
FT0 = 238
P2ACC = v(112, 32)
P2PK = [v(144, 8), v(152, 8)]

def f_fullcol(i): return 64 * 13 * i if i < 5 else 64 * 65
def f_halfcol(i): return 64 * 69 + 32 * i

def phantom(u=1): return I('; phantom', 'label', units=u)

class MF:
    __slots__ = ('m', 'reads', 'after', 'need', 'pre', 'extra')
    def __init__(s, m, reads, after=None, need=None):
        s.m, s.reads, s.after, s.need = m, reads, after, need or []; s.pre = None; s.extra = None
class Stage:
    def __init__(s, name, mf, dma, dyn=False, mark=None, pre_dma=None):
        s.name, s.mf, s.dma, s.dyn, s.mark, s.pre_dma = name, mf, dma, dyn, mark, pre_dma
        s.ring = None; s.half = False; s.post_bar = None; s.pa = False
class VQ:
    __slots__ = ('i', 'ready', 'dl', 'key')
    def __init__(s, i, ready, dl=None, key=None): s.i, s.ready, s.dl, s.key = i, ready, dl, key

def pair(acc, T, Bs, first, flip):
    gs = (1, 0) if flip else (0, 1)
    return [(acc.sub(8 * T + 4 * g, 4), Bs[g], 0 if first else acc.sub(8 * T + 4 * g, 4)) for g in gs]

def rd_w(T, kk, blockoff=0):
    def f(fr, st, k):
        out = []
        for e in range(2):
            off = blockoff + kk * 4 * PP + (T >> 1) * 64 + e * 512
            if st.dyn: reg, imm = (vD0, vD1)[T & 1], off
            else:
                ad = (k % 4) * SLOT + off
                reg, imm = vRW[ad >> 16][T & 1], ad & 0xffff
            out.append(ds_tr(fr.sub(2 * e, 2), reg, imm))
        return out
    return f
def rd_h(T, kk):
    def f(fr, st, k): return [ds_tr(fr.sub(2 * e, 2), vRH[T], kk * 2048 + e * 256) for e in range(2)]
    return f
KT = 8 * PP; VOFF = 2 * KT
def rd_k(pos, T, t):
    def f(fr, st, k):
        off = pos * KT + T * 4 * PP + t * 64
        if st.dyn: return [ds_b128(fr, vDK, off)]
        ad = (k % 4) * SLOT + off
        return [ds_b128(fr, vRK[ad >> 16], ad & 0xffff)]
    return f

def rd_wM(T, kk, blockoff=0):
    def f(fr, st, k):
        out = []
        for e in range(2):
            off = blockoff + kk * 2 * PP + e * 512
            if st.dyn: reg, imm = (vD0, vD1)[T], off
            else:
                ad = (k % 4) * SLOT + off
                reg, imm = vRW[ad >> 16][T], ad & 0xffff
            out.append(ds_tr(fr.sub(2 * e, 2), reg, imm))
        return out
    return f
def rd_hM(t):
    def f(fr, st, k): return [ds_tr(fr.sub(2 * e, 2), vRH[0], t * 1024 + e * 256) for e in range(2)]
    return f
def rd_kM(pos, t):
    def f(fr, st, k):
        assert st.dyn
        return [ds_b128(fr, (vDK, vDK1)[t & 1], pos * KT + (t >> 1) * 64)]
    return f

def m0_set(dyn, slot, wreg, extra):
    if dyn:
        assert extra == 0
        return salu('s_add_u32', 'm0', sWr, wreg)
    return salu('s_add_u32', 'm0', wreg, slot * SLOT + extra)
def dma_w(srd, sA, litA, pitch, sC=None, litC=None, srdC=None):
    def f(k, dyn):
        slot = k % 4; items = []
        for j in range(8):
            it = []
            if j % 4 == 0:
                it.append(m0_set(dyn, slot, sW8704, 0) if j == 0 else salu('s_add_u32', 'm0', 'm0', 4 * PP))
                it.append(salu('s_add_u32', sT, sA, litA + (j // 4) * 32 * pitch))
            it.append(dma(vOFFW[j % 4], srd, sT, (j % 4) * PP, tag=k))
            items.append(it)
        if sC is not None:
            items.append([m0_set(dyn, slot, sWC, 0), salu('s_add_u32', sT, sC, litC), dma(vOFFW[0], srdC or srd, sT, 0, tag=k)])
        return items
    return f
def dma_w192(srd, lit, sOA=sOA, sOB=sOB):
    def f(k, dyn):
        slot = k % 4; items = []
        for j in range(4):
            it = []
            if j == 0: it += [m0_set(dyn, slot, sW4352, 0), salu('s_add_u32', sT, sOA, lit)]
            it.append(dma(vOFFW[j], srd, sT, j * PP, tag=k)); items.append(it)
        for j in range(2):
            it = []
            if j == 0: it += [m0_set(dyn, slot, sWA2, 0), salu('s_add_u32', sT, sOB, lit)]
            it.append(dma(vOFFW[j], srd, sT, j * PP, tag=k)); items.append(it)
        return items
    return f
def dma_half(srd, pitch):
    def f(k, dyn):
        slot = k % 4; items = []
        for j in range(8):
            it = []
            if j % 4 == 0:
                it.append(m0_set(False, slot, sW8192, 0) if j == 0 else salu('s_add_u32', 'm0', 'm0', 4096))
            it.append(salu('s_add_u32', sT, sHH, j * 16 * pitch - (j % 4) * 1024))
            it.append(dma(vOFFH, srd, sT, (j % 4) * 1024, tag=k))
            items.append(it)
        items.append([m0_set(False, slot, sWCH, 0), dma(vOFFH, srd, sHHC, 0, tag=k)])
        return items
    return f
def dma_pa(ktiles, vpair):
    def f(k, dyn):
        slot = k % 4; items = []
        def m0(extra):
            if dyn: return salu('s_add_u32', 'm0', sWrW, extra)
            return salu('s_add_u32', 'm0', sW2176, slot * SLOT + extra)
        for (pos, sr_, lit) in ktiles:
            items.append([m0(pos * KT), salu('s_add_u32', sT, sr_, lit), dma(vOFFK, sK, sT, 0, tag=k)])
            items.append([salu('s_add_u32', 'm0', 'm0', 64), dma(vOFFK, sK, sT, 1024, tag=k)])
        if vpair is not None:
            sr_, lit = vpair
            for b in range(2):
                items.append([m0(VOFF + b * KT), salu('s_add_u32', sT, sr_, lit + b * 128), dma(vOFFW[0], sV, sT, 0, tag=k)])
                items.append([dma(vOFFW[1], sV, sT, PP, tag=k)])
        return items
    return f
def set_offw(pitch, mode):
    if mode is True: mode = 'pi'
    if mode is False: mode = 'S'
    swz = vSWZM if mode == 'M' else vSWZ
    out = [smov(sT2, pitch), valu('v_mad_u32_u24', vOFFW[0], vROWP if mode == 'pi' else vROWN, sT2, swz)]
    if mode == 'q16':
        for j, r in ((1, 16), (2, 8), (3, 24)): out.append(valu('v_add_u32', vOFFW[j], r * pitch - j * PP, vOFFW[0]))
        return out
    step = (4 if mode == 'pi' else 8) * pitch - PP
    if step < 0:
        out += [valu('v_mov_b32', vOFFW[1], vOFFW[0]), valu('v_add_u32', vOFFW[0], -step, vOFFW[0])]
    else:
        for j in range(1, 4): out.append(valu('v_add_u32', vOFFW[j], step, vOFFW[j - 1]))
    return out

class Role:
    def __init__(s, kind):
        s.kind = kind; s.p = Prog(); s.stages = []; s.stn = 0; s.q = []; s.q2 = []; s.tmpi = 0; s.pf = {}; s.regions = {}; s.phantoms = {}
    def tmp(s, n=1):
        r = v(TMP0 + s.tmpi, n); s.tmpi = (s.tmpi + n) % 16
        return r
    def push(s, items, G, dl, key=None, lag=1):
        for i in items: s.q.append(VQ(i, G + lag, dl))
        if key: s.q[-1].key = key
    def push_accw(s, acc, dst, G, dl, tail):
        it = [valu('v_accvgpr_write_b32', dst[4 * g + 2 * T + k], acc[8 * T + 4 * g + 2 * k]) for g in range(2) for T in range(2) for k in range(2)]
        if tail is None: s.push(it, G, dl, ('reg', dst.n))
        else:
            for i in it: s.q2.append(VQ(i, tail, dl))
            s.q2[-1].key = ('reg', dst.n)
    def epi_silu(s, acc, dst, G, dl, tail=None):
        items = []
        for g in range(2):
            for T in range(2):
                t = s.tmp(4); el = [(t[e], acc[8 * T + 4 * g + e]) for e in range(4)]
                for (tt, x) in el: items.append(valu('v_exp_f32', tt, x))
                for (tt, x) in el: items.append(valu('v_add_f32', tt, 1.0, tt))
                for (tt, x) in el: items.append(valu('v_rcp_f32', tt, tt))
                for (tt, x) in el: items.append(valu('v_mul_f32', tt, x, tt))
                for k in range(2): items.append(valu('v_cvt_pk_bf16_f32', acc[8 * T + 4 * g + 2 * k], t[2 * k], t[2 * k + 1]))
        s.push(items, G, ('tail', tail) if tail is not None else dl)
        s.push_accw(acc, dst, G, dl, tail)
    def epi_q(s, acc, dst, G, dl, tail=None):
        items = []
        for g in range(2):
            r = lambda T, e: acc[8 * T + 4 * g + e]
            for T in range(2):
                for e in range(4): items.append(valu('v_mul_f32', r(T, e), sLN0, r(T, e)))
            for T in range(2):
                for k in range(2): items.append(valu('v_cvt_pk_bf16_f32', r(T, 2 * k), r(T, 2 * k), r(T, 2 * k + 1)))
            for k in range(2): items.append(valu('v_permlane32_swap_b32', r(0, 2 * k), r(1, 2 * k), rmw=True, extra_wr=[r(1, 2 * k)]))
            for k in range(2): items.append(valu('v_permlane16_swap_b32', r(0, 2 * k), r(1, 2 * k), rmw=True, extra_wr=[r(1, 2 * k)]))
        s.push(items, G, ('tail', tail) if tail is not None else dl)
        s.push_accw(acc, dst, G, dl, tail)

    def add_p1_unit(s, uidx, srd, sA, sC, pitch, first, dst, epi, pre=None, last=False, key='P1', inreg=None, step=128):
        acc = ACC[uidx % 2]; TL = CFG.get('tail', 8)
        g0 = sum(len(st.mf) for st in s.stages)
        for b in range(2):
            mf = []
            order = [(kk, T) for kk in range(9) for T in range(4)]
            if b == 1:
                order = [(kk, T) for kk in range(9) for T in range(2)] + [(kk, T) for kk in range(9) for T in range(2, 4)]
            for (kk, T) in order:
                t = 9 * b + kk
                m = MF(pair(acc, T, [X(t, 0), X(t, 1)], t == 0, T & 1), rd_w(T, kk))
                if t == 0 and T % 2 == 0: m.need = [('acc', acc.n + 8 * T)]
                if t == 17 and T % 2 == 1:
                    h = T // 2
                    tail = None if last else g0 + 144 - TL
                    m.after = (lambda G, h=h, tail=tail: epi(acc.sub(16 * h, 16), dst.sub(8 * h, 8), G, ('acc', acc.n + 16 * h), tail))
                mf.append(m)
            def pre_(b=b):
                out = []
                if b == 0:
                    if pre: out += pre()
                    if not first: out += [salu('s_add_u32', sA, sA, step), salu('s_add_u32', sC, sC, step)]
                return out
            st = Stage(f"P1u{uidx}b{b}", mf, dma_w(srd, sA, b * 288 * pitch, pitch, sC, b * 288 * pitch), pre_dma=pre_ if (b == 0 and (pre or not first)) else None)
            s.stages.append(st)
        s.regions[g0] = ('begin', f"{key}{uidx % 2}")
        s.regions[g0 + 72 - TL] = ('end', None)
        s.stages[-1].mf[36 - TL].need.append(('tail', g0 + 72 - TL))
        if uidx == 0: s.phantoms[g0 + 72 - TL] = 16
        for j_, f_ in enumerate(inreg or []):
            if f_: s.pf.setdefault(len(s.stages) - 1 - j_, []).append(f_)
    def add_p1_half(s, uidx, dst):
        acc = ACC[uidx % 2]; mf = []
        for t in range(18):
            for T in range(2):
                m = MF(pair(acc, T, [X(t, 0), X(t, 1)], t == 0, T & 1), rd_h(T, t))
                if t == 0 and T == 0: m.need = [('acc', acc.n)]
                if t == 17 and T == 1: m.after = (lambda G: s.epi_silu(acc.sub(0, 16), dst, G, ('acc', acc.n)))
                mf.append(m)
        st = Stage("P1half", mf, dma_half(sW1, 9216)); st.half = True
        s.stages.append(st)

    def softmax_items(s, j, hd, G):
        S = Sreg[j % 2]; P = Preg[j % 2]; L = Lacc[hd % 2]
        A = []; Bq = []
        for g in range(2):
            for T in range(2):
                idx = [8 * T + 4 * g + e for e in range(4)]
                for i in idx: A.append(valu('v_exp_f32', S[i], S[i]))
                for k in range(2): A.append(valu('v_cvt_pk_bf16_f32', P[4 * g + 2 * T + k], S[idx[2 * k]], S[idx[2 * k + 1]]))
                adds = []
                for e, i in enumerate(idx if not CFG.get('msum') else []):
                    l = L[2 * g + (e & 1)]
                    if j == 0 and T == 0 and e < 2: adds.append(valu('v_mov_b32', l, S[i]))
                    else: adds.append(valu('v_add_f32', l, l, S[i]))
                if g == 1 and T == 1: Bq = adds
                else: A += adds
        s.push(A, G, ('P', hd, j))
        if Bq: s.push(Bq, G, ('S', hd, j))
    def finalize_items(s, hd, dst, G, dl):
        O = Oset[hd % 2]; L = Lacc[hd % 2]
        it = []
        inv = [v(FT0), v(FT0 + 1)]; t = [v(FT0 + 2), v(FT0 + 3)]
        if CFG.get('msum'):
            for g in range(2): it.append(valu('v_mov_b32', inv[g], LM[hd % 2][4 * g]))
        else:
            for g in range(2): it.append(valu('v_add_f32', inv[g], L[2 * g], L[2 * g + 1]))
        for op in (('v_permlane16_swap_b32', 'v_permlane32_swap_b32') if not CFG.get('msum') else ()):
            for g in range(2): it.append(valu('v_mov_b32', t[g], inv[g]))
            for g in range(2): it.append(valu(op, inv[g], t[g], rmw=True, extra_wr=[t[g]]))
            for g in range(2): it.append(valu('v_add_f32', inv[g], inv[g], t[g]))
        for g in range(2): it.append(valu('v_mov_b32', Lsave[2 * hd + g], inv[g]))
        for g in range(2): it.append(valu('v_rcp_f32', inv[g], inv[g]))
        k = 0
        for kk in range(4):
            for g in range(2):
                for T in range(2):
                    tt = v(FT0 + 4 + 4 * (k % 3), 4); k += 1
                    for e in range(4): it.append(valu('v_mul_f32', tt[e], O[8 * (2 * kk + T) + 4 * g + e], inv[g]))
                    for c in range(2): it.append(valu('v_cvt_pk_bf16_f32', tt[2 * c], tt[2 * c], tt[2 * c + 1]))
                    for c in range(2): it.append(valu('v_accvgpr_write_b32', dst[8 * kk + 4 * g + 2 * T + c], tt[2 * c]))
        s.push(it, G, dl)
    def qk(s, hd, j, Q, pos):
        mf = []; S = Sreg[j % 2]
        for t in range(4):
            for T in range(2):
                m = MF(pair(S, T, [Q.sub(8 * t, 4), Q.sub(8 * t + 4, 4)], t == 0, T & 1), rd_k(pos, T, t))
                if t == 0 and T == 0:
                    m.need = [('S', hd, j - 2) if j >= 2 else ('S', hd - 1, 14 + j)]
                    if j == 0: m.need += [('reg', Q.n + 8 * i) for i in range(4)]
                if t == 3 and T == 1: m.after = (lambda G, j=j, hd=hd: s.softmax_items(j, hd, G))
                mf.append(m)
        return mf
    def pv(s, hd, j, kk, Odst):
        mf = []; O = Oset[hd % 2]; P = Preg[j % 2]
        for tau in range(8):
            m = MF(pair(O, tau, [P.sub(0, 4), P.sub(4, 4)], j == 0, tau & 1), rd_w(tau % 4, kk, VOFF + (tau // 4) * KT))
            if tau == 0:
                m.need = [('P', hd, j)]
                if j == 0 and hd >= 1: m.need += [('fin', hd - 2)] + [('acc', 48 + 16 * i) for i in range(4)]
            if j == 15 and tau == 7: m.after = (lambda G, hd=hd: s.finalize_items(hd, Odst, G, ('fin', hd)))
            if CFG.get('msum') and tau in (2, 5):
                g_ = 0 if tau == 2 else 1
                Lm = LM[hd % 2].sub(4 * g_, 4)
                m.extra = mfma(Lm, vONES, P.sub(4 * g_, 4), 0 if j == 0 else Lm)
            mf.append(m)
        return mf
    def add_pa(s, Qs, Os):
        nh = len(Qs); dyn = CFG.get('pa_dyn', True)
        Msh = CFG['shape'] == 'M'
        qk, pv = (s.qkM, s.pvM) if Msh else (s.qk, s.pv)
        s.stages.append(Stage("PAmini", qk(0, 0, Qs[0], 0), dma_pa([(0, sKb[0], 0)], None), dyn=dyn, pre_dma=lambda: set_offw(256, 'M' if Msh else 'pi')))
        for hd in range(nh):
            for st in range(8):
                mf = qk(hd, 2 * st + 1, Qs[hd], 0) + pv(hd, 2 * st, 0, Os[hd])
                kt = [(0, sKb[hd], 8192)]
                if st < 7:
                    mf += qk(hd, 2 * st + 2, Qs[hd], 1); kt.append((1, sKb[hd], 16384))
                elif hd + 1 < nh:
                    mf += qk(hd + 1, 0, Qs[hd + 1], 1); kt.append((1, sKb[hd + 1], 0))
                mf += pv(hd, 2 * st + 1, 1, Os[hd])
                pre = None
                if st > 0: pre = (lambda hd=hd: [salu('s_add_u32', sKb[hd], sKb[hd], 16384), salu('s_add_u32', sVb[hd], sVb[hd], 16384)])
                x = Stage(f"PAh{hd}s{st}", mf, dma_pa(kt, (sVb[hd], 0)), dyn=dyn, mark=dyn, pre_dma=pre)
                x.pa = True
                s.stages.append(x)
        s.stages[-8 * nh - 1].pa = True
    def softmax_h(s, j, H, G):
        S = H['S'][j % 2]; P = H['P'][j % 2]; A = []
        for g in range(2):
            for T in range(2):
                idx = [8 * T + 4 * g + e for e in range(4)]
                for i in idx: A.append(valu('v_exp_f32', S[i], S[i]))
                for k in range(2): A.append(valu('v_cvt_pk_bf16_f32', P[4 * g + 2 * T + k], S[idx[2 * k]], S[idx[2 * k + 1]]))
        s.push(A, G, ('P', H['i'], j))
    def finalize_g(s, grp, G):
        it = []; inv = {}
        for n, H in enumerate(grp):
            inv[H['i']] = [v(250 + 2 * n), v(251 + 2 * n)]
            for g in range(2): it.append(valu('v_mov_b32', Lsave[2 * H['i'] + g], H['LM'][4 * g]))
        for H in grp:
            for g in range(2): it.append(valu('v_rcp_f32', inv[H['i']][g], Lsave[2 * H['i'] + g]))
        s.push(it, G, ('lm', grp[0]['i']))
        for H in grp:
            it = []; O = H['O']; k = 0
            for kk in range(4):
                dst = H['OF'](kk)
                if O.k == 'a':
                    tt = v(230, 16)
                    for e in range(16): it.append(valu('v_accvgpr_read_b32', tt[e], O[16 * kk + e]))
                    for e in range(16): it.append(valu('v_mul_f32', tt[e], tt[e], inv[H['i']][(e >> 2) & 1]))
                    for e in range(0, 16, 2): it.append(valu('v_cvt_pk_bf16_f32', tt[e], tt[e], tt[e + 1]))
                    for g in range(2):
                        for T in range(2):
                            for c in range(2): it.append(valu('v_accvgpr_write_b32', dst[4 * g + 2 * T + c], tt[8 * T + 4 * g + 2 * c]))
                else:
                    for g in range(2):
                        for T in range(2):
                            tt = v(230 + 4 * (k % 4), 4); k += 1
                            for e in range(4): it.append(valu('v_mul_f32', tt[e], O[8 * (2 * kk + T) + 4 * g + e], inv[H['i']][g]))
                            for c in range(2): it.append(valu('v_cvt_pk_bf16_f32', tt[2 * c], tt[2 * c], tt[2 * c + 1]))
                            for c in range(2): it.append(valu('v_accvgpr_write_b32', dst[4 * g + 2 * T + c], tt[2 * c]))
            s.push(it, G, ('fin', H['i']))
    def qk_g(s, grp, j, pos):
        mf = []
        for t in range(4):
            for T in range(2):
                m = []
                for n, H in enumerate(grp):
                    Q = H['Q']
                    m += pair(H['S'][j % 2], T, [Q.sub(8 * t, 4), Q.sub(8 * t + 4, 4)], t == 0, (T + n) & 1)
                m = MF(m, rd_k(pos, T, t))
                if t == 0 and T == 0:
                    if j == 0:
                        for H in grp: m.need += [('reg', H['Q'].n + 8 * i) for i in range(4)]
                    if j <= 1: m.need += grp[0].get('need_qk', [])
                if t == 3 and T == 1: m.after = (lambda G, j=j: [s.softmax_h(j, H, G) for H in grp])
                mf.append(m)
        return mf
    def pv_g(s, grp, j, kk):
        mf = []
        ex = {1: (0, 0), 3: (0, 1), 5: (1, 0), 7: (1, 1)} if len(grp) == 2 else {2: (0, 0), 5: (0, 1)}
        for tau in range(8):
            m = []
            for n, H in enumerate(grp):
                P = H['P'][j % 2]
                m += pair(H['O'], tau, [P.sub(0, 4), P.sub(4, 4)], j == 0, (tau + n) & 1)
            m = MF(m, rd_w(tau % 4, kk, VOFF + (tau // 4) * KT))
            if tau == 0:
                m.need = [('P', H['i'], j) for H in grp]
                if j == 0: m.need += grp[0].get('need_pv', [])
            if j == 15 and tau == 7: m.after = (lambda G: s.finalize_g(grp, G))
            if tau in ex:
                n, g_ = ex[tau]; H = grp[n]; Lm = H['LM'].sub(4 * g_, 4)
                m.extra = mfma(Lm, vONES, H['P'][j % 2].sub(4 * g_, 4), 0 if j == 0 else Lm)
            mf.append(m)
        return mf
    def add_pa_g(s, groups):
        ng = len(groups)
        s.stages.append(Stage("PAmini", s.qk_g(groups[0], 0, 0), dma_pa([(0, sKb[0], 0)], None), dyn=True, pre_dma=lambda: set_offw(256, 'pi')))
        s.stages[-1].pa = True
        for gi, grp in enumerate(groups):
            for st in range(8):
                mf = s.qk_g(grp, 2 * st + 1, 0) + s.pv_g(grp, 2 * st, 0)
                kt = [(0, sKb[gi], 8192)]
                if st < 7:
                    mf += s.qk_g(grp, 2 * st + 2, 1); kt.append((1, sKb[gi], 16384))
                elif gi + 1 < ng:
                    mf += s.qk_g(groups[gi + 1], 0, 1); kt.append((1, sKb[gi + 1], 0))
                mf += s.pv_g(grp, 2 * st + 1, 1)
                pre = None
                if st > 0: pre = (lambda gi=gi: [salu('s_add_u32', sKb[gi], sKb[gi], 16384), salu('s_add_u32', sVb[gi], sVb[gi], 16384)])
                x = Stage(f"PAh{gi}s{st}", mf, dma_pa(kt, (sVb[gi], 0)), dyn=True, mark=True, pre_dma=pre)
                x.pa = True
                s.stages.append(x)

    def accwM(s, acc, dst, G, dl, tail):
        it = [valu('v_accvgpr_write_b32', dst[q], acc[2 * q]) for q in range(8)]
        if tail is None: s.push(it, G, dl, ('reg', dst.n), 2)
        else:
            for i in it: s.q2.append(VQ(i, tail, dl))
            s.q2[-1].key = ('reg', dst.n)
    def epi_siluM(s, acc, dst, G, dl, tail=None):
        items = []
        for j0 in (0, 4, 2, 6):
            t = s.tmp(4); el = [(t[e], acc[2 * j0 + e]) for e in range(4)]
            for (tt, x) in el: items.append(valu('v_exp_f32', tt, x))
            for (tt, x) in el: items.append(valu('v_add_f32', tt, 1.0, tt))
            for (tt, x) in el: items.append(valu('v_rcp_f32', tt, tt))
            for (tt, x) in el: items.append(valu('v_mul_f32', tt, x, tt))
            for k in range(2): items.append(valu('v_cvt_pk_bf16_f32', acc[2 * (j0 + k)], t[2 * k], t[2 * k + 1]))
            if j0 >= 4:
                sw = [valu('v_permlane16_swap_b32', acc[2 * (j0 - 4 + k)], acc[2 * (j0 + k)], rmw=True, extra_wr=[acc[2 * (j0 + k)]]) for k in range(2)]
                if j0 == 4: hold = sw
                else: items += hold + sw
        s.push(items, G, ('tail', tail) if tail is not None else dl, None, 2)
        s.accwM(acc, dst, G, dl, tail)
    def epi_qM(s, acc, dst, G, dl, tail=None):
        items = []
        for j0 in (0, 2, 4, 6):
            for e in range(4): items.append(valu('v_mul_f32', acc[2 * j0 + e], sLN0, acc[2 * j0 + e]))
            for k in range(2): items.append(valu('v_cvt_pk_bf16_f32', acc[2 * (j0 + k)], acc[2 * (j0 + k)], acc[2 * (j0 + k) + 1]))
        s.push(items, G, ('tail', tail) if tail is not None else dl, None, 2)
        s.accwM(acc, dst, G, dl, tail)
    def add_p1_unitM(s, uidx, srd, sA, sC, pitch, first, dst, epi, pre=None, last=False, key='P1', inreg=None):
        acc = ACC[uidx % 2]; TL = CFG.get('tail', 8)
        g0 = sum(len(st.mf) for st in s.stages)
        for b in range(2):
            mf = []
            for T in range(2):
                D = acc.sub(16 * T, 16)
                for kk in range(18):
                    t = 18 * b + kk
                    m = MF([(D, XM(t), 0 if t == 0 else D)], rd_wM(T, kk))
                    if t == 0: m.need = [('acc', D.n)]
                    if t == 35:
                        tail = None if last else g0 + 144 - TL
                        m.after = (lambda G, D=D, T=T, tail=tail: epi(D, dst.sub(8 * T, 8), G, ('acc', D.n), tail))
                    mf.append(m)
            def pre_(b=b):
                out = []
                if pre: out += pre()
                if not first: out += [salu('s_add_u32', sA, sA, 128), salu('s_add_u32', sC, sC, 128)]
                return out
            st = Stage(f"P1u{uidx}b{b}", mf, dma_w(srd, sA, b * 288 * pitch, pitch, sC, b * 288 * pitch), pre_dma=pre_ if (b == 0 and (pre or not first)) else None)
            s.stages.append(st)
        s.regions[g0] = ('begin', f"{key}{uidx % 2}")
        s.regions[g0 + 72 - TL] = ('end', None)
        s.stages[-1].mf[36 - TL].need.append(('tail', g0 + 72 - TL))
        if uidx == 0: s.phantoms[g0 + 72 - TL] = 16
        for j_, f_ in enumerate(inreg or []):
            if f_: s.pf.setdefault(len(s.stages) - 1 - j_, []).append(f_)
    def add_p1_halfM(s, uidx, dst):
        D = ACC[uidx % 2].sub(0, 16); mf = []
        for t in range(36):
            m = MF([(D, XM(t), 0 if t == 0 else D)], rd_hM(t))
            if t == 0: m.need = [('acc', D.n)]
            if t == 35: m.after = (lambda G: s.epi_siluM(D, dst, G, ('acc', D.n)))
            mf.append(m)
        st = Stage("P1half", mf, dma_half(sW1, 9216)); st.half = True
        s.stages.append(st)
    def softmaxM(s, j, hd, G):
        S = Sreg[j % 2]; P = Preg[j % 2]; L = Lacc[hd % 2]
        for u in range(2):
            items = []; adds = []
            for q0 in (0, 2):
                idx = [8 * u + 2 * q0 + e for e in range(4)]
                for i in idx: items.append(valu('v_exp_f32', S[i], S[i]))
                for k in range(2): items.append(valu('v_cvt_pk_bf16_f32', P[4 * u + q0 + k], S[idx[2 * k]], S[idx[2 * k + 1]]))
                a_ = [valu('v_mov_b32', L[e], S[i]) if (j == 0 and u == 0 and q0 == 0) else valu('v_add_f32', L[e], L[e], S[i]) for e, i in enumerate(idx)]
                if q0 == 0: items += a_
                else: adds = a_
            s.push(items, G, ('P', hd, j, u), None, 2); s.push(adds, G, ('S', hd, j), None, 2)
    def finalizeM(s, hd, dst, G, dl):
        O = Oset[hd % 2]; L = Lacc[hd % 2]
        t0, t1 = v(FT0), v(FT0 + 1)
        it = [valu('v_add_f32', L[0], L[0], L[1]), valu('v_add_f32', L[2], L[2], L[3]), valu('v_add_f32', t0, L[0], L[2]),
              valu('v_mov_b32', t1, t0), valu('v_permlane32_swap_b32', t0, t1, rmw=True, extra_wr=[t1]),
              valu('v_add_f32', Lsave[hd], t0, t1), valu('v_rcp_f32', t0, Lsave[hd])]
        for tau in range(4):
            A_ = O.sub(16 * tau, 16)
            for e in range(16): it.append(valu('v_mul_f32', A_[e], A_[e], t0))
            for q in range(8): it.append(valu('v_cvt_pk_bf16_f32', A_[2 * q], A_[2 * q], A_[2 * q + 1]))
            for q in range(4): it.append(valu('v_permlane16_swap_b32', A_[2 * q], A_[2 * q + 8], rmw=True, extra_wr=[A_[2 * q + 8]]))
            for q in range(8): it.append(valu('v_accvgpr_write_b32', dst[8 * tau + q], A_[2 * q]))
        s.push(it, G, dl, None, 2)
    def qkM(s, hd, j, Q, pos):
        mf = []; S = Sreg[j % 2]
        for t in range(8):
            m = MF([(S, Q.sub(4 * t, 4), 0 if t == 0 else S)], rd_kM(pos, t))
            if t == 0:
                m.need = [('S', hd, j - 2) if j >= 2 else ('S', hd - 1, 14 + j)]
                if j == 0: m.need += [('reg', Q.n + 8 * i) for i in range(4)]
            if t == 7: m.after = (lambda G, j=j, hd=hd: s.softmaxM(j, hd, G))
            mf.append(m)
        return mf
    def pvM(s, hd, j, kk, Odst):
        mf = []; O = Oset[hd % 2]; P = Preg[j % 2]
        for u in range(2):
            for tau in range(4):
                D = O.sub(16 * tau, 16)
                m = MF([(D, P.sub(4 * u, 4), 0 if (j == 0 and u == 0) else D)], rd_wM(tau % 2, 2 * kk + u, VOFF + (tau // 2) * KT))
                if tau == 0:
                    m.need = [('P', hd, j, u)]
                    if j == 0 and u == 0 and hd >= 1: m.need += [('fin', hd - 2)] + [('acc', 48 + 16 * i) for i in range(4)]
                if j == 15 and u == 1 and tau == 3: m.after = (lambda G, hd=hd: s.finalizeM(hd, Odst, G, ('fin', hd)))
                mf.append(m)
        return mf

    def p2_epi(s, h, G, sreg, c, lastg, ACC_=None, key='p2acc'):
        acc = (ACC_ or P2ACC).sub(16 * h, 16); pk = P2PK[h]; it = []
        for g in range(2):
            for T in range(2):
                for cc in range(2): it.append(valu('v_cvt_pk_bf16_f32', pk[4 * g + 2 * T + cc], acc[8 * T + 4 * g + 2 * cc], acc[8 * T + 4 * g + 2 * cc + 1]))
            st_ = bstore('buffer_store_dwordx4', pk.sub(4 * g, 4), vLANE16, sWS, sreg, h * 2048 + g * 1024, CFG['store_flags']); st_.tag = ('st', c)
            if not CFG.get('nostore'): it.append(st_)
        if h == 1: it.append(salu('s_add_u32', sreg, sreg, 4096))
        s.push(it, G, (key, h))
    def add_p2m(s, Hf, Bo, dmas, bump, pre0):
        s.nst_chunk = 8; AC2 = v(160, 32)
        def mk(ACC_, key, T, B8, t, nk, kk, c, sreg, need=()):
            m = MF(pair(ACC_, T, [B8.sub(0, 4), B8.sub(4, 4)], t == 0, T & 1), rd_w(T, kk))
            if t == 0 and T % 2 == 0: m.need.append((key, T // 2))
            m.need += list(need)
            if t == nk - 1 and T % 2 == 1: m.after = (lambda G, h=T // 2: s.p2_epi(h, G, sreg, c, None, ACC_, key))
            return m
        for c in range(9):
            mf = [mk(P2ACC, 'p2acc', T, Hf.sub(8 * t, 8), t, 10, t, c, sSt2, [('reg', 8 * t)] if (c == 0 and T == 0) else [])
                  for h in range(2) for t in range(9) for T in (2 * h, 2 * h + 1)]
            st = Stage(f"P2c{c}b0", mf, dmas[0], dyn=True, mark=True, pre_dma=pre0 if c == 0 else (lambda: list(bump)))
            st.chunk = c; st.sub = 0; s.stages.append(st)
            mf = [mk(P2ACC, 'p2acc', T, Hf.sub(72, 8), 9, 10, 8, c, sSt2, [('reg', 72)] if (c == 0 and T == 0) else []) for T in range(4)]
            mf += [mk(AC2, 'p2acc2', T, Bo[t], t, 8, t, c, sSt) for h in range(2) for t in range(8) for T in (2 * h, 2 * h + 1)]
            st = Stage(f"P2c{c}b1", mf, dmas[1], dyn=True)
            st.chunk = c; st.sub = 1; s.stages.append(st)
    def add_p2(s, gemms, bump, pre0=None):
        s.nst_chunk = 4 * len(gemms)
        for c in range(9):
            sub = 0
            for gi, (Bf, stage_rows, dmas, needs, sreg) in enumerate(gemms):
                if isinstance(Bf, R): Bf = [Bf.sub(8 * t_, 8) for t_ in range(Bf.c // 8)]
                nk = len(Bf); k0 = 0
                for b, rows in enumerate(stage_rows):
                    n = rows // 32; mf = []
                    for h in range(2):
                        for kk in range(n):
                            t = k0 + kk
                            for T in (2 * h, 2 * h + 1):
                                m = MF(pair(P2ACC, T, [Bf[t].sub(0, 4), Bf[t].sub(4, 4)], t == 0, T & 1), rd_w(T, kk))
                                if t == 0 and T % 2 == 0: m.need.append(('p2acc', h))
                                if c == 0 and T == 0 and needs.get(t): m.need += needs[t]
                                if t == nk - 1 and T % 2 == 1: m.after = (lambda G, h=h, sreg=sreg, c=c: s.p2_epi(h, G, sreg, c, None))
                                mf.append(m)
                    pre = (pre0 if c == 0 else (lambda: list(bump))) if sub == 0 else None
                    st = Stage(f"P2c{c}b{sub}", mf, dmas[b], dyn=True, mark=(sub == 0), pre_dma=pre)
                    st.chunk = c; st.sub = sub
                    s.stages.append(st); k0 += n; sub += 1

    def flush_need(s, need):
        if not need: return
        last = -1
        for k, it in enumerate(s.q):
            if it.dl in need or it.key in need: last = k
        for it in s.q[:last + 1]: s.p.emit(it.i); s.forced += it.i.units
        del s.q[:last + 1]
        last = -1
        for k, it in enumerate(s.q2):
            if it.dl in need or it.key in need: last = k
        for it in s.q2[:last + 1]: s.p.emit(it.i); s.forced += it.i.units
        del s.q2[:last + 1]
    def deadline(s, it, G):
        best = None
        for key in (it.dl, it.key):
            if key is None: continue
            for g in s.need_gap.get(key, ()):
                if g >= G:
                    if g >= it.ready and (best is None or g < best): best = g
                    break
        return best
    def fill(s, G, budget):
        p = s.p
        while s.q and budget > 0:
            h = s.q[0]
            if h.ready <= G and h.i.units <= budget + (1 if h.i.units == 3 else 0):
                it = s.q.pop(0)
                if CFG.get('latest') and ((it.i.kind == 'vstore' and any(x[-1].kind == 'dma' for x in s.side)) or
                                          (it.i.kind in ('salu', 'vstore') and any(x[-1].kind == 'vstore' and isinstance(x[-1].tag, tuple) for x in s.side))):
                    s.side.append([it.i]); continue
                p.emit(it.i); budget -= it.i.units
                continue
            if not CFG.get('ooo', True): break
            found = None; rd = set(); wr = set()
            for k, it in enumerate(s.q[:24]):
                if k and it.ready <= G and it.i.units == 1 and it.i.kind == 'valu' and not (it.i.rd & wr) and not (it.i.wr & (rd | wr)) \
                   and it.key is None and not p.would_pad(it.i):
                    found = k; break
                rd |= it.i.rd; wr |= it.i.wr
            if found is None: break
            it = s.q.pop(found); p.emit(it.i); budget -= 1
        return budget
    def run(s):
        p = s.p; D = getattr(s, 'depth', CFG['depth']); WE = CFG['wevery']
        flat = [(k, n, m) for k, st in enumerate(s.stages) for n, m in enumerate(st.mf)]
        N = len(flat)
        s.need_gap = {}
        for G, (k, n, m) in enumerate(flat):
            for x in m.need: s.need_gap.setdefault(x, []).append(G)
        def mkring(off0):
            fr = []; cur = None; g0 = 0
            for G, (k, n, m) in enumerate(flat):
                st = s.stages[k]
                spec = st.ring or s.ring
                if spec != cur: cur = spec; g0 = G - (off0 if len(spec) > 2 else 0)
                elif len(spec) > 2 and st.mark and n == 0: g0 = G
                fr.append(a(spec[0] + 4 * ((G - g0) % spec[1]), 4))
            ok = all(fr[G].n != fr[G2].n for G in range(N) for G2 in range(max(0, G - D), G))
            return fr, ok
        for off0 in range(16):
            fr_of, ok = mkring(off0)
            if ok: break
        assert ok
        dsidx = {}; side = []; s.side = side; s.forced = 0; dyn_started = [False]
        def open_stage(k):
            st = s.stages[k]
            if st.mark: p.emit(I(f"; MARK {st.name}", 'label', units=0, tag='mark'))
            p.emit(comment(st.name))
            if getattr(st, 'label', None): p.emit(label(st.label))
            for it in side: p.emit(it)
            side.clear()
            if getattr(st, 'pre_bar', None): st.pre_bar()
            cover = getattr(st, 'cover_st', None)
            if cover is not None:
                assert sum(1 for t in p.vm if t == ('st', cover)) == s.nst_chunk, (st.name, cover)
            if not (CFG.get('nowait') and st.name.startswith('P2')): p.emit(waitvm(p.vm_wait_for(lambda t: t == k or (cover is not None and t == ('st', cover)) or (t is not None and t == getattr(st, 'cover_tag', None)))))
            if not (CFG.get('nobar') and st.name.startswith('P2')): p.emit(barrier())
            u = 2
            if CFG['stamps'] == 1 or (CFG['stamps'] == 2 and (k == 0 or st.name in ('P2c0b0', 'PAmini'))): s.stamp(k, CFG['stamps'] == 1)
            if st.dyn:
                first = [smov(sWr, sPrev), smov(sPrev, sRd), smov(sRd, sRdN)]
                if not dyn_started[0]:
                    dyn_started[0] = True
                    first = [smov(sWr, ((k - 2) % 4) * SLOT), smov(sPrev, ((k - 1) % 4) * SLOT), smov(sRd, (k % 4) * SLOT)]
                side.append(first[:2]); side.append(first[2:] + ([salu('s_add_u32', sWrW, sWr, sW2176)] if (k + 2 < len(s.stages) and s.stages[k + 2].pa) else []))
            NEWO = CFG.get('sideord', 0)
            if st.post_bar and not NEWO: side.append(st.post_bar())
            if k >= 1 and k + 2 < len(s.stages):
                nx = s.stages[k + 2]
                if nx.pre_dma:
                    pd = nx.pre_dma()
                    if NEWO and all(x.kind == 'salu' for x in pd):
                        for i_ in range(0, len(pd), 2): side.append(pd[i_:i_ + 2])
                    else: side.append(pd)
                side.extend(nx.dma(k + 2, st.dyn and nx.dyn))
            if st.post_bar and NEWO: side.append(st.post_bar())
            s.dstep = CFG['dmastep'] if (len(st.mf) >= 30 or not NEWO) else 2
            for f in s.pf.get(k, ()): side.append(f())
            if st.dyn and k + 1 < len(s.stages):
                side.insert(min(len(side), 5) if not CFG.get('sideord', 0) else len(side), [salu('s_add_u32', sRdN, sRd, SLOT), salu('s_cmp_lt_u32', None, sRdN, 4 * SLOT),
                                                salu('s_cselect_b32', sRdN, sRdN, 0, scc_w=False, scc_r=True)])
            return u
        def pre_switch(k):
            st = s.stages[k]; out = []
            if st.half: out += [valu('v_add_u32', vRH[T], (k % 4) * SLOT, vRH[T]) for T in range(1 if CFG['shape'] == 'M' else 2)]
            if st.dyn:
                for it in side: out += it
                side.clear()
                base = sRdN if dyn_started[0] else (k % 4) * SLOT
                if st.pa and CFG['shape'] == 'M':
                    out += [valu('v_add_u32', vD0, base, vRW[0][0]), valu('v_add_u32', vD1, base, vRW[0][1]),
                            valu('v_add_u32', vDK, base, vRKM[0]), valu('v_add_u32', vDK1, base, vRKM[1])]
                else:
                    out += [valu('v_add_u32', vD0, base, vDP), valu('v_xor_b32', vD1, 32, vD0)]
                    if st.pa: out.append(valu('v_add_u32', vDK, base, vRK[0]))
            return out
        def issue_reads(G):
            k, n, m = flat[G]; u = 0
            if n == 0: u += open_stage(k)
            r = m.reads(fr_of[G], s.stages[k], k)
            p.emit(r); dsidx[G] = p.ds
            return u + len(r)
        for G in range(min(D, N)): issue_reads(G)
        p.emit(waitlg(p.ds - dsidx[min(WE, N) - 1]))
        sidegap = 0
        for G in range(N):
            k, n, m = flat[G]
            s.flush_need(m.need)
            if m.pre: m.pre()
            big = len(m.m) == 1
            (D0, B0, C0) = m.m[0]
            cum = 0; boost = 0
            for it in s.q:
                cum += it.i.units
                g = s.deadline(it, G)
                if g is not None: boost = max(boost, cum / max(g - G, 1))
            p.emit(mfma(D0, fr_of[G], B0, C0))
            if G in s.regions:
                kind_, key_ = s.regions[G]
                p.emit(I(f"; REGION {kind_} {key_}", 'label', units=0, tag=('region', kind_, key_)))
            if G in s.phantoms:
                for _ in range(s.phantoms[G]): s.q2.insert(0, VQ(phantom(), G, None))
            wl = (G + 1) % WE == 0 and G + 1 < N
            if wl: p.emit(waitlg(p.ds - dsidx[min(G + WE, N - 1)]))
            u = 0
            if G + D < N:
                if flat[G + D][1] == 0: sidegap = 0
                u += issue_reads(G + D)
            used = 0
            if big:
                cap = 6; u += 1 if wl else 0
            else:
                cap = 2
                if u < 2:
                    b0 = 2 - u; used = b0 - s.fill(G, b0)
                (D1, B1, C1) = m.m[1]
                p.emit(mfma(D1, fr_of[G], B1, C1))
                u = 0
            if side and sidegap <= 0 and (not big or u <= 3):
                it = side.pop(0)
                tot = sum(x.units for x in it)
                if tot > (cap - u if big else 3) and len(it) > 1 and it[-1].kind in ('dma', 'vload', 'vstore'):
                    p.emit(it[:-1]); u += tot - it[-1].units; side.insert(0, [it[-1]])
                else:
                    p.emit(it); u += tot
                    if it[-1].kind in ('dma', 'vload'): sidegap = getattr(s, 'dstep', CFG['dmastep'])
            sidegap -= 1
            if G + D + 1 < N and flat[G + D + 1][1] == 0:
                ps = pre_switch(flat[G + D + 1][0]); p.emit(ps); u += sum(x.units for x in ps)
            if m.after and len(m.m) <= 2: m.after(G)
            nh_ = max(len(m.m) - 1, 1)
            budget = max(cap - u, 0)
            thr = CFG.get('boost_minM', 3.0) if big else (CFG.get('boost_min', 1.4) if nh_ == 1 else CFG.get('boost_min4', 5.0))
            want = math.ceil(boost - used - 0.01) if boost > thr else 0
            if nh_ == 1:
                budget = max(budget, want)
                n2 = 0
                while s.q2 and s.q2[0].ready <= G and n2 < 2:
                    it = s.q2.pop(0); p.emit(it.i); n2 += 1; budget -= 1
                s.fill(G, max(budget, want - 1 if n2 else budget))
            else:
                for hh in range(nh_):
                    if hh:
                        if p.ins[-1].kind == 'mfma': p.emit(nop(0))
                        (Dx, Bx, Cx) = m.m[hh + 1]
                        p.emit(mfma(Dx, fr_of[G], Bx, Cx)); budget = 2
                    b_ = max(budget, math.ceil(want / (nh_ - hh)))
                    want -= b_ - s.fill(G, b_)
            if m.after and len(m.m) > 2: m.after(G)
            if m.extra is not None:
                p.emit(m.extra); s.fill(G, 2)
            dg = CFG.get('diag', '')
            nm_ = s.stages[k].name
            if (dg == 'X' and s.kind == 'F' and nm_.startswith('P2')) or (dg == 'Y' and s.kind == 'A' and nm_.startswith('PA')) or (dg == 'W' and s.kind == 'A' and nm_.startswith('P2')):
                p.emit(nop(0)); p.emit(nop(0)); p.emit(nop(0))
            if dg == 'Z' and nm_.startswith('P2') and p.ins[-1].kind == 'mfma':
                p.emit(valu('v_exp_f32', v(200 + G % 8), v(112 + G % 32)))
            if p.ins[-1].kind == 'mfma' and not big:
                if CFG.get('splitr', True) and p.ins[-2].kind == 'ds' and p.ins[-3].kind == 'ds':
                    p.ins[-1], p.ins[-2] = p.ins[-2], p.ins[-1]
                else: p.emit(nop(0))
        for it in side: p.emit(it)
        if getattr(s, 'before_drain', None): s.before_drain()
        for it in s.q + s.q2: p.emit(it.i)
        s.q = []; s.q2 = []
    def stamp(s, k, run=False):
        p = s.p
        p.emit(raw(f"s_memtime {sSTAMP}", wr=[sSTAMP]))
        p.emit(raw("s_waitcnt lgkmcnt(0)"))
        p.emit(salu('s_sub_u32', s_(98), s_(98), s_(100)))
        if not run:
            p.emit(raw(f"v_writelane_b32 {vSTAMP}, s98, {k}", 'valu', wr=[vSTAMP], rd=[s_(98)]))
        else:
            p.emit(raw(f"v_cmp_eq_u32 vcc, s97, {vLANE16}", 'valu', wr=['vcc'], rd=[s_(97), vLANE16]))
            p.emit(valu('v_mov_b32', vDUM, s_(98)))
            p.emit(salu('s_add_u32', s_(97), s_(97), 16))
            p.emit(valu('v_cndmask_b32', vSTAMP, vSTAMP, vDUM, 'vcc'))
```

```python
import sys, re
from s1 import *

ROLE_TAB = [0, 1, 2, 11, 3, 4, 5, 12, 6, 7, 13, 14, 8, 9, 10, 15]
vPFR = v(36)
vPRG = v(36)
PART = 4 * PWAVE
NPART = 17
NA, NM, NS = 10, 1, 11
def set_layout(new):
    global NPART, NA, NM, NS, ROLE_TAB
    if new:
        NPART, NA, NM, NS = 20, 8, 4, 12
        ROLE_TAB = [0, 1, 8, 12, 2, 3, 9, 13, 4, 5, 10, 14, 6, 7, 11, 15]
WSP_BYTES = NPART * 16 * PART
def PSTR(): return 16 * PART + (CFG.get('pskew', 0) if CFG['fused'] else 0)
sJQ, sQ0, sOA1, sOB1 = s(73), s(59), s(74), s(75)
STAMP_OFF = 0x3000000
CTRL = 0x2F00000
OOB = 0x10000000

def srd(p, dst, lo, nbytes):
    p.emit([smov(dst[0], s(lo)), salu('s_and_b32', dst[1], s(lo + 1), 0xffff), smov(dst[2], nbytes), smov(dst[3], 0x20000)])
def xdma(j):
    return [salu('s_add_u32', 'm0', s(6), j * 4096), salu('s_add_u32', sT, s(7), j * 128)] + [dma(v(16 + q), sX, sT, q * 1024, tag=('x', j)) for q in range(4)]
def mul(d, a_, b_): return salu('s_mul_i32', d, a_, b_, scc_w=False)
def add(d, a_, b_): return salu('s_add_u32', d, a_, b_)
def shl(d, a_, b_): return salu('s_lshl_b32', d, a_, b_)
def shr(d, a_, b_): return salu('s_lshr_b32', d, a_, b_)
def csel(d, a_, b_): return salu('s_cselect_b32', d, a_, b_, scc_w=False, scc_r=True)

def common_prologue():
    if CFG.get('entry', 0) == 0: return common_prologue_old()
    assert CFG['xe'] == 9 and CFG.get('map', 4) == 4
    p = Prog(); E = p.emit
    E(raw("s_load_dwordx8 s[40:47], s[0:1], 0", wr=[s(40, 8)]))
    E(salu('s_cmp_ge_u32', None, s(2), 256))
    E(raw("s_cbranch_scc0 L_go")); E(raw("s_endpgm")); E(label("L_go"))
    if CFG['stamps']:
        E(raw(f"s_memtime {sT0}", wr=[sT0])); E(raw("s_memrealtime s[96:97]", wr=[s(96, 2)]))
    E(valu('v_lshrrev_b32', v(1), 6, v(0)))
    E(salu('s_and_b32', s(3), s(2), 1)); E(shl(s(3), s(3), 3))
    E(valu('v_readfirstlane_b32', sWAVE, v(1)))
    E(shr(sRB, s(2), 5)); E(salu('s_or_b32', sRB, sRB, s(3)))
    E(valu('v_and_b32', v(0), 63, v(0)))
    E(valu('v_lshrrev_b32', vROWN, 3, v(0)))
    E(valu('v_and_b32', v(20), 7, v(0))); E(valu('v_lshrrev_b32', v(21), 4, v(0)))
    E(valu('v_xor_b32', v(22), v(20), v(21))); E(valu('v_xor_b32', v(23), 4, v(22)))
    E(salu('s_movk_i32', s(3), 1152, scc_w=False)); E(valu('v_mul_u32_u24', v(24), s(3), vROWN))
    E(valu('v_lshl_add_u32', v(16), v(22), 4, v(24))); E(valu('v_lshl_add_u32', v(17), v(23), 4, v(24)))
    E(valu('v_add_u32', v(17), 8 * 1152 - 1024, v(17)))
    E(valu('v_add_u32', v(18), 2 * (8 * 1152 - 1024), v(16))); E(valu('v_add_u32', v(19), 2 * (8 * 1152 - 1024), v(17)))
    E(mul(s(6), sWAVE, XW)); E(raw("s_lshl2_add_u32 s7, s64, s62", 'salu', wr=[s(7)], rd=[sRB, sWAVE])); E(mul(sT, s(7), 32 * 1152))
    E(smov('m0', s(6))); E(add(s(7), sT, 9 * 128))
    E(smov(sX[2], 2359296)); E(smov(sX[3], 0x20000))
    E(raw("s_waitcnt lgkmcnt(0)"))
    E(smov(sX[0], s(40))); E(salu('s_and_b32', sX[1], s(41), 0xffff))
    E(label("L_xl"))
    n0 = len(p.vm)
    for q in range(4): E(dma(v(16 + q), sX, sT, q * 1024))
    del p.vm[n0:]
    for j in range(9): p.vm += [('x', j)] * 4
    E(add(sT, sT, 128)); E(add('m0', 'm0', 4096)); E(salu('s_cmp_lt_u32', None, sT, s(7))); E(raw("s_cbranch_scc1 L_xl"))
    return p
def common_prologue2(p):
    E = p.emit
    tab = ROLE_TAB
    lo = sum(tab[i] << (4 * i) for i in range(8)); hi = sum(tab[8 + i] << (4 * i) for i in range(8))
    E(salu('s_bfe_u32', s(3), s(2), (2 << 16) | 3)); E(salu('s_bfe_u32', s(4), s(2), (1 << 16) | 1))
    E(shl(s(4), s(4), 2)); E(salu('s_or_b32', s(3), s(3), s(4))); E(shl(s(3), s(3), 2))
    E(salu('s_bitcmp1_b32', None, s(2), 2))
    E(smov(s(4), lo)); E(csel(s(4), hi, s(4)))
    E(shr(s(4), s(4), s(3))); E(salu('s_and_b32', sROLE, s(4), 15))
    E(raw(f"s_getpc_b64 {sPC}", wr=[sPC])); E(label("L_pc"))
    E(smov(s(4), "L_roleA-L_pc")); E(smov(s(5), "L_roleA_end-L_pc-4"))
    E(salu('s_cmp_ge_u32', None, sROLE, NA)); E(csel(s(4), "L_roleM-L_pc", s(4))); E(csel(s(5), "L_roleM_end-L_pc-4", s(5)))
    E(salu('s_cmp_ge_u32', None, sROLE, NA + NM)); E(csel(s(4), "L_roleF-L_pc", s(4))); E(csel(s(5), "L_roleF_end-L_pc-4", s(5)))
    n0 = CFG.get('code0', 16); NL = CFG.get('codelines', 24)
    if n0:
        E(mul(s(3), sWAVE, n0 * 128)); E(add(s(3), s(3), s(4)))
        E(valu('v_min_u32', v(2), n0 - 1, v(0))); E(valu('v_lshlrev_b32', v(2), 7, v(2))); E(valu('v_add_u32', v(2), s(3), v(2)))
        E(I(f"global_load_dword {vDUM}, v2, {sPC}", 'vload', wr=vDUM.regs(), rd=vr(2) + sPC.regs(), tag='pf'))
    E(salu('s_and_b32', s(3), sRB, 7)); E(shl(s(3), s(3), 2)); E(add(s(3), s(3), sWAVE))
    E(mul(s(3), s(3), NL * 128)); E(add(s(3), s(3), s(4)))
    E(valu('v_min_u32', v(2), NL - 1, v(0))); E(valu('v_lshlrev_b32', v(2), 7, v(2))); E(valu('v_add_u32', v(2), s(3), v(2)))
    E(valu('v_min_u32', v(3), s(5), v(2)))
    E(I(f"global_load_dword {vDUM}, v3, {sPC}", 'vload', wr=vDUM.regs(), rd=vr(3) + sPC.regs(), tag='pf'))
def common_prologue3(p):
    E = p.emit
    E(raw("s_load_dwordx2 s[48:49], s[0:1], 32", wr=[s(48, 2)]))
    E(raw("s_load_dwordx8 s[52:59], s[0:1], 48", wr=[s(52, 8)]))
    E(raw("s_load_dwordx2 s[50:51], s[0:1], 80", wr=[s(50, 2)]))
    srd(p, sK, 42, 8388608); srd(p, sV, 44, 8388608); srd(p, sWQ, 46, 4718592)
    E(mul(sW8704, sWAVE, 8 * PP)); E(mul(sWC, sWAVE, PP)); E(add(sWC, sWC, 32 * PP))
    E(shl(sW8192, sWAVE, 13)); E(shl(sWCH, sWAVE, 10)); E(add(sWCH, sWCH, 32768))
    E(mul(sW2176, sWAVE, 2 * PP)); E(mul(sW4352, sWAVE, 4 * PP)); E(add(sWA2, sW2176, 16 * PP))
    E(raw("s_waitcnt lgkmcnt(0)"))
    srd(p, sWO, 48, 4718592)
    srd(p, sW1, 52, 5308416); srd(p, sW2, 54, 5308416); srd(p, sWS, 50, 0x10000000 if (CFG['stamps'] or CFG['fused']) else WSP_BYTES)
    srd(p, sOUT, 56, 2359296); srd(p, sDBG, 58, 256)

def common_prologue_old():
    p = Prog(); E = p.emit
    E(salu('s_cmp_ge_u32', None, s(2), 256))
    E(raw("s_cbranch_scc0 L_go")); E(raw("s_endpgm")); E(label("L_go"))
    E(raw("s_load_dwordx8 s[40:47], s[0:1], 0", wr=[s(40, 8)]))
    E(raw("s_load_dwordx2 s[48:49], s[0:1], 32", wr=[s(48, 2)]))
    E(raw("s_load_dwordx8 s[52:59], s[0:1], 48", wr=[s(52, 8)]))
    E(raw("s_load_dwordx2 s[50:51], s[0:1], 80", wr=[s(50, 2)]))
    if CFG['stamps']:
        E(raw(f"s_memtime {sT0}", wr=[sT0])); E(raw("s_memrealtime s[96:97]", wr=[s(96, 2)]))
    tab = ROLE_TAB
    if CFG.get('map', 4) == 2:
        t2 = [0, 1, 2, 3, 4, 11, 5, 12, 6, 13, 7, 14, 8, 15, 9, 10]
        lo = sum(t2[i] << (4 * i) for i in range(8)); hi = sum(t2[8 + i] << (4 * i) for i in range(8))
        E(salu('s_bfe_u32', s(3), s(2), (1 << 16) | 3)); E(salu('s_and_b32', s(4), s(2), 3)); E(shl(s(4), s(4), 1)); E(salu('s_or_b32', s(3), s(3), s(4))); E(shl(s(3), s(3), 2))
        E(salu('s_bitcmp1_b32', None, s(2), 2)); E(smov(s(4), lo)); E(csel(s(4), hi, s(4)))
        E(shr(s(4), s(4), s(3))); E(salu('s_and_b32', sROLE, s(4), 15)); E(shr(sRB, s(2), 4))
    else:
        lo = sum(tab[i] << (4 * i) for i in range(8)); hi = sum(tab[8 + i] << (4 * i) for i in range(8))
        E(salu('s_bfe_u32', s(3), s(2), (2 << 16) | 3)); E(salu('s_bfe_u32', s(4), s(2), (1 << 16) | 1))
        E(shl(s(4), s(4), 2)); E(salu('s_or_b32', s(3), s(3), s(4))); E(shl(s(3), s(3), 2))
        E(salu('s_bitcmp1_b32', None, s(2), 2))
        E(smov(s(4), lo)); E(csel(s(4), hi, s(4)))
        E(shr(s(4), s(4), s(3))); E(salu('s_and_b32', sROLE, s(4), 15))
        E(salu('s_and_b32', s(3), s(2), 1)); E(shl(s(3), s(3), 3))
        E(shr(sRB, s(2), 5)); E(salu('s_or_b32', sRB, sRB, s(3)))
    E(valu('v_lshrrev_b32', v(1), 6, v(0)))
    E(valu('v_readfirstlane_b32', sWAVE, v(1)))
    E(valu('v_and_b32', v(0), 63, v(0)))
    E(valu('v_lshrrev_b32', vROWN, 3, v(0)))
    E(valu('v_and_b32', v(20), 7, v(0))); E(valu('v_lshrrev_b32', v(21), 4, v(0)))
    E(valu('v_xor_b32', v(22), v(20), v(21))); E(valu('v_xor_b32', v(23), 4, v(22)))
    E(smov(s(3), 1152)); E(valu('v_mul_u32_u24', v(24), s(3), vROWN))
    E(valu('v_lshl_add_u32', v(16), v(22), 4, v(24))); E(valu('v_lshl_add_u32', v(17), v(23), 4, v(24)))
    E(valu('v_add_u32', v(17), 8 * 1152 - 1024, v(17)))
    E(valu('v_add_u32', v(18), 2 * (8 * 1152 - 1024), v(16))); E(valu('v_add_u32', v(19), 2 * (8 * 1152 - 1024), v(17)))
    E(mul(s(6), sWAVE, XW))
    E(shl(s(7), sRB, 2)); E(add(s(7), s(7), sWAVE)); E(mul(s(7), s(7), 32 * 1152))
    E(raw(f"s_getpc_b64 {sPC}", wr=[sPC])); E(label("L_pc"))
    E(smov(s(4), "L_roleA-L_pc")); E(smov(s(5), "L_roleA_end-L_pc-4"))
    E(salu('s_cmp_ge_u32', None, sROLE, NA)); E(csel(s(4), "L_roleM-L_pc", s(4))); E(csel(s(5), "L_roleM_end-L_pc-4", s(5)))
    E(salu('s_cmp_ge_u32', None, sROLE, NA + NM)); E(csel(s(4), "L_roleF-L_pc", s(4))); E(csel(s(5), "L_roleF_end-L_pc-4", s(5)))
    def code_pf():
        NL = CFG.get('codelines', 24)
        E(salu('s_and_b32', s(3), sRB, 7)); E(shl(s(3), s(3), 2)); E(add(s(3), s(3), sWAVE))
        E(mul(s(3), s(3), NL * 128)); E(add(s(3), s(3), s(4)))
        E(valu('v_min_u32', v(2), NL - 1, v(0))); E(valu('v_lshlrev_b32', v(2), 7, v(2))); E(valu('v_add_u32', v(2), s(3), v(2)))
        E(valu('v_min_u32', v(3), s(5), v(2)))
        E(I(f"global_load_dword {vDUM}, v3, {sPC}", 'vload', wr=vDUM.regs(), rd=vr(3) + sPC.regs(), tag='pf'))
    if CFG.get('codepf', 3) >= 3:
        n0 = CFG.get('code0', 16)
        if n0:
            E(mul(s(3), sWAVE, n0 * 128)); E(add(s(3), s(3), s(4)))
            E(valu('v_min_u32', v(2), n0 - 1, v(0))); E(valu('v_lshlrev_b32', v(2), 7, v(2))); E(valu('v_add_u32', v(2), s(3), v(2)))
            E(I(f"global_load_dword {vDUM}, v2, {sPC}", 'vload', wr=vDUM.regs(), rd=vr(2) + sPC.regs(), tag='pf'))
        code_pf()
    E(raw("s_waitcnt lgkmcnt(0)"))
    srd(p, sX, 40, 2359296)
    nx0 = CFG.get('tx', 2) if CFG.get('touch') else 0
    for j in range(nx0): E(xdma(j))
    if CFG.get('touch'):
        E(salu('s_cmp_gt_u32', None, sROLE, 10))
        E(raw("s_cselect_b64 s[60:61], s[52:53], s[46:47]", 'salu', wr=[s(60, 2)], rd=[s(52, 2), s(46, 2)]))
        E(raw("s_cselect_b64 s[66:67], s[54:55], s[48:49]", 'salu', wr=[s(66, 2)], rd=[s(54, 2), s(48, 2)]))
        E(salu('s_cmp_eq_u32', None, sWAVE, 1)); E(raw("s_cselect_b64 s[60:61], s[66:67], s[60:61]", 'salu', wr=[s(60, 2)], rd=[s(66, 2), s(60, 2)]))
        E(salu('s_cmp_eq_u32', None, sWAVE, 2)); E(raw("s_cselect_b64 s[60:61], s[42:43], s[60:61]", 'salu', wr=[s(60, 2)], rd=[s(42, 2), s(60, 2)]))
        E(salu('s_cmp_eq_u32', None, sWAVE, 3)); E(raw("s_cselect_b64 s[60:61], s[44:45], s[60:61]", 'salu', wr=[s(60, 2)], rd=[s(44, 2), s(60, 2)]))
        E(smov(s(3), 73728)); E(salu('s_cmp_ge_u32', None, sWAVE, 2)); E(csel(s(3), 131072, s(3)))
        E(valu('v_mul_u32_u24', v(2), s(3), v(0)))
        E(I(f"global_load_dword {vDUM}, v2, s[60:61]", 'vload', wr=vDUM.regs(), rd=vr(2) + sr(60, 2), tag='pf'))
    for j in range(nx0, CFG['xe']): E(xdma(j))
    if CFG.get('codepf', 3) == 1: code_pf()
    if CFG.get('codepf', 3) == 2:
        E(valu('v_mov_b32', v(46), v(3))); E(raw(f"s_mov_b64 s[100:101], {sPC}", 'salu', wr=[s(100, 2)], rd=[sPC]))
    srd(p, sK, 42, 8388608); srd(p, sV, 44, 8388608); srd(p, sWQ, 46, 4718592); srd(p, sWO, 48, 4718592)
    srd(p, sW1, 52, 5308416); srd(p, sW2, 54, 5308416); srd(p, sWS, 50, 0x10000000 if (CFG['stamps'] or CFG['fused']) else WSP_BYTES)
    srd(p, sOUT, 56, 2359296); srd(p, sDBG, 58, 256)
    E(mul(sW8704, sWAVE, 8 * PP)); E(mul(sWC, sWAVE, PP)); E(add(sWC, sWC, 32 * PP))
    E(shl(sW8192, sWAVE, 13)); E(shl(sWCH, sWAVE, 10)); E(add(sWCH, sWCH, 32768))
    E(mul(sW2176, sWAVE, 2 * PP)); E(mul(sW4352, sWAVE, 4 * PP)); E(add(sWA2, sW2176, 16 * PP))
    return p

def dispatch_text():
    return f""" s_cmp_ge_u32 {sROLE}, {NA + NM}
 s_cbranch_scc1 L_roleF
 s_cmp_ge_u32 {sROLE}, {NA}
 s_getpc_b64 s[94:95]
L_pc2:
 s_cbranch_scc1 L_jM
 s_add_u32 s94, s94, L_roleA-L_pc2
 s_addc_u32 s95, s95, 0
 s_setpc_b64 s[94:95]
L_jM:
 s_add_u32 s94, s94, L_roleM-L_pc2
 s_addc_u32 s95, s95, 0
 s_setpc_b64 s[94:95]
"""

def pfload(srd_, base):
    ld = bload('buffer_load_dword', vDUM, vPF, srd_, base); ld.tag = 'pf'; return ld
def pf_lin(srd_, base_s, start, nbytes, nl=64):
    def f():
        return [valu('v_lshrrev_b32', vPF2, 16, vTID), valu('v_and_b32', vPF, 63, vTID), valu('v_min_u32', vPF, nl - 1, vPF),
                valu('v_mad_u32_u24', vPF, vPF2, nl, vPF), valu('v_lshlrev_b32', vPF, 7, vPF), valu('v_add_u32', vPF, start, vPF),
                valu('v_min_u32', vPF, nbytes - 128, vPF), pfload(srd_, base_s)]
    return f
def pf_run(srd_, base_s, nbytes, nl):
    def f():
        return [valu('v_min_u32', vPF, nbytes - 128, vPFR), valu('v_add_u32', vPFR, 64 * nl * 128, vPFR), pfload(srd_, base_s)]
    f.nl = nl
    return f
def vPFW(kind): return {'F': v(8), 'A': v(7), 'M': v(36)}[kind]
def pf_row(kind, srd_, step=128):
    def f():
        ld = bload('buffer_load_dword', vDUM, vPFW(kind), srd_, sPW); ld.tag = 'pf'
        return [add(sPW, sPW, step), ld]
    return f
def pf_row_setup(kind, pitch, nl, base, lit):
    r = vPFW(kind)
    return [valu('v_bfe_u32', vPF2, vTID, 16, 5), valu('v_and_b32', r, 63, vTID), valu('v_min_u32', r, nl - 1, r),
            valu('v_mad_u32_u24', r, vPF2, nl, r), smov(sT2, pitch), valu('v_mul_u32_u24', r, sT2, r), add(sPW, base, lit)]
def pf_code(la, lb, nl):
    def f():
        L = f"L_cp{pf_code.k}"; pf_code.k += 1
        ld = I(f"global_load_dword {vDUM}, {vPF}, {sPC}", 'vload', wr=vDUM.regs(), rd=vPF.regs() + sPC.regs(), units=3, tag='pf')
        return [raw(f"s_getpc_b64 {sPC}", 'salu', wr=[sPC]), label(L),
                salu('s_add_u32', sPC[0], sPC[0], f"{la}-{L}"), salu('s_addc_u32', sPC[1], sPC[1], 0, scc_r=True),
                valu('v_bfe_u32', vPF2, vTID, 16, 5), valu('v_and_b32', vPF, 63, vTID), valu('v_min_u32', vPF, nl - 1, vPF),
                valu('v_mad_u32_u24', vPF, vPF2, nl, vPF), valu('v_lshlrev_b32', vPF, 7, vPF), valu('v_min_u32', vPF, f"{lb}-{la}-4", vPF), ld]
    return f
pf_code.k = 0
def pf_sched(R, k0, srd_, base_s, nbytes, nl):
    per = 64 * nl * 128; k = k0
    for st in range(0, nbytes, per):
        R.pf.setdefault(k, []).append(pf_lin(srd_, base_s, st, nbytes, nl)); k += 1
    return k

def role_prologue(R, vm_before):
    p = R.p; E = p.emit; kind = R.kind
    p.vm = list(vm_before)
    MS = CFG['shape'] == 'M'
    def PS(k):
        if CFG['stamps'] == 1: R.stamp(k)
    PS(56)
    lane = v(0)
    E(shl(sT2, sRB, 2)); E(add(sT2, sT2, sWAVE)); E(shl(sT2, sT2, 16)); E(valu('v_or_b32', vTID, sT2, lane))
    if kind in 'AM' and CFG.get('pair'):
        sHP_, sHS_ = s(86), s(85)
        if CFG.get('l844'): E(shl(sHP_, sROLE, 1)); E(add(sHP_, sHP_, 8))
        else: E(mul(sHP_, sROLE, 3))
        if kind == 'A':
            sHP_, sHS_ = sFA, sFC
            E(mul(sHS_, sROLE, 3)); E(salu('s_and_b32', s(4), sROLE, 1)); E(add(sHP_, sHS_, s(4)))
            E(shl(s(4), s(4), 1)); E(add(sHS_, sHS_, 2)); E(salu('s_sub_u32', sHS_, sHS_, s(4)))
            E(salu('s_sub_u32', sJQ, sHS_, sHP_)); E(shl(sJQ, sJQ, 8)); E(salu('s_sub_u32', sJQ, sJQ, 3 * 128))
        E(shl(sQ0, sHP_, 8))
        E(mul(sQA, sWAVE, 64 * 8192)); E(add(sQA, sQA, sQ0))
        E(shl(sQC, sWAVE, 16)); E(add(sQC, sQC, sQ0)); E(add(sQC, sQC, 256 * 8192))
        E(shr(s(3), sWAVE, 1)); E(shl(s(3), s(3), 13)); E(salu('s_and_b32', s(4), sWAVE, 1)); E(shl(s(4), s(4), 11)); E(add(s(3), s(3), s(4)))
        E(salu('s_sub_u32', s(3), s(3), 64)); E(shl(s(4), sWAVE, 11))
        for e, (h_, pfr) in enumerate([(sHP_, sPFa), (sHS_, sPFb)][:2 if kind == 'A' else 1]):
            E(shr(pfr, h_, 1)); E(shl(pfr, pfr, 19)); E(add(pfr, pfr, 1536 * 256))
            E(add(sKb[e], pfr, s(4))); E(add(sVb[e], pfr, s(3)))
        E(mul(sPFc, sROLE, 384 * 1152) if kind == 'A' else mul(sPFc, sHP_, 128 * 1152))
        if kind == 'A':
            E(mul(sHP_, sHP_, 128 * 1152)); E(mul(sHS_, sHS_, 128 * 1152))
            E(mul(sOA, sWAVE, 32 * 1152)); E(add(sOA1, sOA, sHS_)); E(add(sOA, sOA, sHP_))
            E(salu('s_sub_u32', sOA1, sOA1, 64 * 1152)); E(add(sT3, sOA, 192 * 1152)); E(salu('s_cmp_lt_u32', None, sWAVE, 2)); E(csel(sOA1, sT3, sOA1))
            E(shr(s(3), sWAVE, 1)); E(shl(s(3), s(3), 2)); E(salu('s_and_b32', s(4), sWAVE, 1)); E(add(s(3), s(3), s(4)))
            E(mul(sOB, s(3), 8 * 1152)); E(add(sOB1, sOB, sHS_)); E(add(sOB1, sOB1, 64 * 1152)); E(add(sOB, sOB, sHP_)); E(add(sOB, sOB, 128 * 1152))
        else:
            E(mul(sOA, sWAVE, 64 * 1152)); E(add(sOA, sOA, sPFc))
    elif kind in 'AM':
        E(mul(sT3, sROLE, 3 * 256))
        E(mul(sQA, sWAVE, 64 * 8192)); E(add(sQA, sQA, sT3))
        E(shl(sQC, sWAVE, 16)); E(add(sQC, sQC, sT3)); E(add(sQC, sQC, 256 * 8192))
        E(shr(s(3), sWAVE, 1)); E(shl(s(3), s(3), 13)); E(salu('s_and_b32', s(4), sWAVE, 1)); E(shl(s(4), s(4), 11)); E(add(s(3), s(3), s(4)))
        E(salu('s_sub_u32', s(3), s(3), 64)); E(shl(s(4), sWAVE, 11))
        if MS: E(shl(s(3), sWAVE, 12))
        for e in range(3 if kind == 'A' else 2):
            E(mul(sT3, sROLE, 3)); E(add(sT3, sT3, e)); E(shr(sT3, sT3, 1)); E(shl(sT3, sT3, 19)); E(add(sT3, sT3, 1536 * 256))
            if e == 0: E(smov(sPFa, sT3))
            if e == (2 if kind == 'A' else 1): E(smov(sPFb, sT3))
            E(add(sKb[e], sT3, s(4))); E(add(sVb[e], sT3, s(3)))
        E(mul(sPFc, sROLE, 384 * 1152))
        if kind == 'A':
            E(mul(sOA, sWAVE, 32 * 1152)); E(add(sOA, sOA, sPFc))
            E(shr(s(3), sWAVE, 1)); E(shl(s(3), s(3), 2)); E(salu('s_and_b32', s(4), sWAVE, 1)); E(add(s(3), s(3), s(4)))
            E(mul(sOB, s(3), 8 * 1152)); E(add(sOB, sOB, sPFc)); E(add(sOB, sOB, 128 * 1152))
        else:
            E(mul(sOA, sWAVE, 64 * 1152)); E(add(sOA, sOA, sPFc))
    if kind in 'FM':
        if kind == 'F':
            E(salu('s_sub_u32', s(3), sROLE, NA + NM)); E(mul(sPF1, s(3), 13 * 128)); E(shl(sPF1h, s(3), 6)); E(add(sPF1h, sPF1h, 69 * 128))
        elif CFG.get('l844'):
            E(mul(sPF1, sROLE, 5 * 128)); E(add(sPF1, sPF1, (52 - 40) * 128)); E(smov(sPF1h, sPF1))
        else:
            E(smov(sPF1, f_fullcol(5) * 2)); E(smov(sPF1h, f_halfcol(5) * 2))
        E(mul(sHA, sWAVE, 64 * 9216)); E(add(sHA, sHA, sPF1))
        E(mul(sHC, sWAVE, 8 * 9216)); E(add(sHC, sHC, sPF1)); E(add(sHC, sHC, 256 * 9216))
        E(mul(sHH, sWAVE, 128 * 9216)); E(add(sHH, sHH, sPF1h))
        E(mul(sHHC, sWAVE, 16 * 9216)); E(add(sHHC, sHHC, sPF1h)); E(add(sHHC, sHHC, 512 * 9216))
        E(mul(sPF2, sPF1, 576)); E(mul(sPF2h, sPF1h, 576))
        E(mul(sFA, sWAVE, 64 * 1152)); E(add(sFA, sFA, sPF2))
        if MS:
            E(salu('s_and_b32', s(3), sWAVE, 1)); E(shl(s(3), s(3), 1)); E(shr(s(4), sWAVE, 1)); E(add(s(3), s(3), s(4))); E(mul(sFC, s(3), 8 * 1152))
        else: E(mul(sFC, sWAVE, 4 * 1152))
        E(add(sFS, sFC, sPF2h)); E(add(sFC, sFC, sPF2)); E(add(sFC, sFC, 256 * 1152))
    if CFG['pf'] >= 3:
        if kind in 'AM': E(mul(sT3, sROLE, 3 * 256) if not CFG.get('pair') else smov(sT3, sQ0))
        E(pf_row_setup(kind, 8192 if kind in 'AM' else 9216, 18, sT3 if kind in 'AM' else sPF1, 0))
        f_ = pf_row(kind, sWQ if kind in 'AM' else sW1)
        early_pf = [f_()[1]] + f_() + f_()
    E(add(sT3, sROLE, NS - NA if kind == 'F' else 0))
    E(mul(sSt, sT3, PSTR())); E(shl(sT3, sRB, 2)); E(add(sT3, sT3, sWAVE)); E(mul(sT3, sT3, PWAVE)); E(add(sSt, sSt, sT3))
    if kind == 'M': E(add(sSt2, sSt, (NS - NA) * PSTR()))
    if CFG['fused']:
        E(shl(sT2, sRB, 11)); E(add(sT2, sT2, CTRL))
        E(add(sT3, sROLE, NS - NA if kind == 'F' else 0)); E(shl(sT3, sT3, 2)); E(add(sT3, sT3, sT2))
        E(salu('s_cmp_eq_u32', None, sWAVE, 0)); E(csel(sT3, sT3, OOB)); E(csel(sT2, sT2, OOB))
        E(valu('v_and_b32', v(24), 15, lane)); E(valu('v_lshlrev_b32', v(25), 7, v(24))); E(valu('v_add_u32', v(25), 128, v(25)))
        E(raw("v_cmp_eq_u32 vcc, 0, v24", 'valu', wr=['vcc'], rd=[v(24)])); E(valu('v_cndmask_b32', v(25), v(25), 0, 'vcc') if False else raw("v_cndmask_b32 v25, v25, v24, vcc", 'valu', wr=[v(25)], rd=[v(25), v(24), 'vcc']))
        E(valu('v_lshrrev_b32', v(26), 4, lane)); E(valu('v_lshl_add_u32', v(25), v(26), 2 + (NS - NA).bit_length() - 1, v(25))); E(valu('v_add_u32', v(25), sT3, v(25)))
        E(raw(f"s_mov_b64 vcc, {hex(((1 << (NA + 1)) - 1) * (0x10001 if kind == 'M' else 1))}", 'salu', wr=['vcc'])); E(valu('v_mov_b32', vCT, OOB)); E(nop(1))
        E(raw(f"v_cndmask_b32 {vCT}, {vCT}, v25, vcc", 'valu', wr=[vCT], rd=[vCT, v(25), 'vcc']))
        E(valu('v_mov_b32', v(24), vCT))
        if kind == 'A':
            E(salu('s_cmp_eq_u32', None, sROLE, 0)); E(csel(sT2, sT2, OOB))
            E(valu('v_lshl_add_u32', v(25), lane, 2, sT2))
            E(raw(f"v_cmp_lt_u32 vcc, {NPART - 1}, v0", 'valu', wr=['vcc'], rd=[lane])); E(valu('v_cndmask_b32', v(24), v(24), v(25), 'vcc'))
        E(valu('v_mov_b32', v(25), 0))
        z = bstore('buffer_store_dword', v(25), v(24), sWS, 0, flags='sc1'); z.tag = 'zero'; E(z)
        E(shl(sT2, sRB, 4)); E(salu('s_cmp_eq_u32', None, sWAVE, 0)); E(csel(sT2, sT2, 256))
        E(valu('v_mov_b32', v(23), 256)); E(raw(f"v_writelane_b32 v23, {sT2}, 0", 'valu', wr=[v(23)], rd=[sT2, v(23)]))
    T_ = [v(24), v(25), v(26), v(27), v(28), v(29)]
    q, r, c4, rb1 = T_[0], T_[1], T_[2], T_[3]
    E(valu('v_lshrrev_b32', q, 4, lane)); E(valu('v_bfe_u32', r, lane, 2, 2)); E(valu('v_and_b32', c4, 3, lane)); E(valu('v_bfe_u32', rb1, lane, 3, 1))
    E(valu('v_and_b32', T_[4], 7, lane)); E(valu('v_bfe_u32', T_[5], lane, 4, 1)); E(valu('v_lshlrev_b32', T_[5], 1, T_[5]))
    E(valu('v_xor_b32', T_[4], T_[4], T_[5])); E(valu('v_lshlrev_b32', vSWZ, 4, T_[4]))
    E(valu('v_lshrrev_b32', T_[4], 5, lane)); E(valu('v_and_b32', T_[5], 3, vROWN)); E(valu('v_lshl_add_u32', vROWP, T_[4], 4, T_[5]))
    E(smov(sT2, PP)); E(valu('v_mul_u32_u24', T_[4], sT2, q)); E(valu('v_lshl_add_u32', T_[4], r, 7, T_[4]))
    E(valu('v_lshl_add_u32', T_[4], c4, 3, T_[4])); E(valu('v_lshl_add_u32', vRW[0][0], rb1, 5, T_[4]))
    E(valu('v_mov_b32', vDP, vRW[0][0]))
    if MS:
        E(valu('v_and_b32', T_[4], 7, lane)); E(valu('v_bfe_u32', T_[5], lane, 4, 1)); E(valu('v_lshlrev_b32', T_[5], 2, T_[5]))
        E(valu('v_xor_b32', T_[4], T_[4], T_[5])); E(valu('v_lshlrev_b32', vSWZM, 4, T_[4]))
        E(valu('v_bfe_u32', q, lane, 4, 1)); E(valu('v_lshlrev_b32', q, 5, q))
        E(valu('v_and_b32', T_[4], 1, lane)); E(valu('v_lshl_add_u32', q, T_[4], 4, q))
        E(valu('v_bfe_u32', T_[4], lane, 1, 1)); E(valu('v_lshl_add_u32', q, T_[4], 3, q))
        E(valu('v_lshrrev_b32', T_[5], 5, lane))
        E(smov(sT2, PP)); E(valu('v_mad_u32_u24', T_[4], T_[5], sT2, q)); E(valu('v_lshl_add_u32', T_[4], r, 7, T_[4]))
        E(valu('v_lshl_add_u32', vRW[0][0], rb1, 6, T_[4])); E(valu('v_xor_b32', rb1, 1, rb1)); E(valu('v_lshl_add_u32', vRW[0][1], rb1, 6, T_[4]))
        if kind in 'FM':
            E(valu('v_lshl_add_u32', vRH[0], T_[5], 9, q)); E(valu('v_lshl_add_u32', vRH[0], r, 6, vRH[0]))
            E(valu('v_lshlrev_b32', T_[4], 4, c4)); E(valu('v_lshrrev_b32', T_[5], 2, lane)); E(smov(sT2, 9216))
            E(valu('v_mad_u32_u24', vOFFH, T_[5], sT2, T_[4]))
        E(valu('v_lshrrev_b32', q, 4, lane))
    else:
        E(valu('v_xor_b32', vRW[0][1], 32, vRW[0][0]))
    for b in (1, 2):
        for T in range(2): E(valu('v_add_u32', vRW[b][T], 65536 * b, vRW[0][T]))
    if kind in 'FM' and not MS:
        E(valu('v_lshlrev_b32', T_[4], 9, q)); E(valu('v_lshl_add_u32', T_[4], r, 6, T_[4])); E(valu('v_lshl_add_u32', T_[4], c4, 3, T_[4]))
        E(valu('v_and_b32', T_[5], 1, q)); E(valu('v_lshl_add_u32', vRH[0], T_[5], 5, T_[4])); E(valu('v_xor_b32', vRH[1], 32, vRH[0]))
        E(valu('v_lshrrev_b32', T_[4], 5, lane)); E(valu('v_lshlrev_b32', T_[4], 1, T_[4])); E(valu('v_xor_b32', T_[4], T_[4], c4))
        E(valu('v_lshlrev_b32', T_[4], 4, T_[4])); E(valu('v_lshrrev_b32', T_[5], 2, lane)); E(smov(sT2, 9216))
        E(valu('v_mad_u32_u24', vOFFH, T_[5], sT2, T_[4]))
    if kind in 'AM':
        E(valu('v_and_b32', T_[4], 15, lane)); E(valu('v_xor_b32', T_[4], T_[4], q)); E(valu('v_lshlrev_b32', T_[4], 4, T_[4]))
        E(valu('v_lshl_add_u32', vOFFK, q, 8, T_[4]))
    E(set_offw(8192 if kind in 'AM' else 9216, 'M' if MS else 'S'))
    if MS:
        XA = [v(20), v(21), v(22), v(39)]
        E(valu('v_and_b32', T_[4], 31, lane)); E(valu('v_bfe_u32', T_[5], lane, 1, 3)); E(valu('v_lshrrev_b32', q, 5, lane)); E(valu('v_xor_b32', T_[5], T_[5], q))
        E(valu('v_lshlrev_b32', T_[4], 7, T_[4])); E(valu('v_add_u32', T_[4], s(6), T_[4]))
        E(valu('v_lshl_add_u32', XA[0], T_[5], 4, T_[4]))
        for tt in range(1, 4): E(valu('v_xor_b32', XA[tt], 32 * tt, XA[0]))
    else:
        E(valu('v_and_b32', T_[4], 15, lane)); E(valu('v_bfe_u32', T_[5], lane, 1, 3)); E(valu('v_xor_b32', T_[5], T_[5], q))
        E(valu('v_lshlrev_b32', T_[4], 7, T_[4])); E(valu('v_add_u32', T_[4], s(6), T_[4]))
        E(valu('v_lshl_add_u32', v(20), T_[5], 4, T_[4])); E(valu('v_xor_b32', v(21), 64, v(20)))
        if kind in 'AM':
            E(smov(sT2, PP)); E(valu('v_mul_u32_u24', v(22), sT2, r)); E(valu('v_lshl_add_u32', v(22), c4, 8, v(22)))
            E(valu('v_xor_b32', T_[4], q, c4)); E(valu('v_lshl_add_u32', v(22), T_[4], 4, v(22)))
    E(valu('v_lshlrev_b32', vLANE16, 4, lane))
    if CFG['stamps'] == 2: E(valu('v_mov_b32', vSTAMP, 0))
    SA = 28
    for i in range(8): E(valu('v_mov_b32', v(SA + i), 0))
    E(smov(sT2, 0x3f803f80))
    def stats(j):
        for tt in range(2):
            for g in range(2):
                for qd in range(4):
                    x = X(2 * j + tt, g)[qd]
                    E(valu('v_dot2c_f32_bf16', v(SA + 2 * g + (qd & 1)), sT2, x, rmw=True))
                    E(valu('v_dot2c_f32_bf16', v(SA + 4 + 2 * g + (qd & 1)), x, x, rmw=True))
    PS(57)
    for j in range(9):
        E(waitvm(p.vm_wait_for(lambda t: t == ('x', j))))
        if j == 0: PS(58)
        if MS:
            for tt in range(4): E(ds_b128(XM(4 * j + tt), XA[tt], j * 4096))
        else:
            for tt in range(2):
                for g in range(2): E(ds_b128(X(2 * j + tt, g), v(20 + tt), j * 4096 + g * 2048))
        if j + CFG['xe'] < 9: E(xdma(j + CFG['xe']))
        if CFG['pf'] >= 3 and CFG.get('epf', 1) == 1 and j == max(8 - CFG['xe'], 0): E(early_pf)
        if j >= 1:
            E(waitlg(4)); stats(j - 1)
    E(waitlg(0)); PS(59); E(barrier())
    if CFG.get('codepf', 3) == 2: E(I(f"global_load_dword {vDUM}, v46, s[100:101]", 'vload', wr=vDUM.regs(), rd=vr(46) + sr(100, 2), tag='pf'))
    if CFG['pf'] >= 3 and CFG.get('epf', 1) == 2: E(early_pf)
    pend = []
    for k in range(3):
        st = R.stages[k]
        if st.pre_dma: pend.append(st.pre_dma())
        pend += st.dma(k, False)
    d0 = CFG.get('d0', 9)
    for it in pend[:d0]: E(it)
    pend = pend[d0:]
    PS(60)
    stats(8)
    acc4 = [v(28), v(30), v(32), v(34)]
    for x in acc4: E(valu('v_add_f32', x, x, v(x.n + 1)))
    if MS:
        for b_ in (0, 2):
            E(valu('v_add_f32', acc4[b_], acc4[b_], acc4[b_ + 1]))
        for b_ in (0, 2): E(valu('v_mov_b32', acc4[b_ + 1], acc4[b_]))
    for op in (('v_permlane32_swap_b32',) if MS else ('v_permlane16_swap_b32', 'v_permlane32_swap_b32')):
        for x in acc4: E(valu('v_mov_b32', v(x.n + 1), x))
        for x in acc4: E(valu(op, x, v(x.n + 1), rmw=True, extra_wr=[v(x.n + 1)]))
        for x in acc4: E(valu('v_add_f32', x, x, v(x.n + 1)))
    for x in acc4: E(valu('v_mul_f32', x, f2u(1.0 / 576), x))
    for g in range(2): E(valu('v_fma_f32', acc4[2 + g], '-' + str(acc4[g]), acc4[g], acc4[2 + g]))
    for g in range(2): E(valu('v_max_f32', acc4[2 + g], 0, acc4[2 + g]))
    for g in range(2): E(valu('v_add_f32', acc4[2 + g], f2u(1e-5), acc4[2 + g]))
    for g in range(2): E(valu('v_rsq_f32', acc4[2 + g], acc4[2 + g]))
    for g in range(2): E(valu('v_mul_f32', acc4[2 + g], f2u(-LOG2E), acc4[2 + g]))
    for g in range(2): E(valu('v_mov_b32', v(20 + g), acc4[g]))
    for g in range(2): E(valu('v_mul_f32', acc4[g], '-' + str(acc4[g]), acc4[2 + g], extra_rd=[acc4[g]]))
    E(smov(sT2, 0xffff0000))
    if CFG.get('dotn'):
        cl = [v(29), v(31)]; ch = [v(33), v(35)]
        for g in range(2): E(valu('v_cvt_pk_bf16_f32', cl[g], acc4[2 + g], 0))
        for g in range(2): E(valu('v_lshlrev_b32', ch[g], 16, cl[g]))
        for g in range(2): E(valu('v_mul_f32', acc4[g], '-' + str(v(20 + g)), ch[g], extra_rd=[v(20 + g)]))
    PS(61)
    n = 0
    for t in range(18):
        for g in range(2):
            tps = [v(24, 2), v(26, 2), v(16, 2), v(18, 2)]
            x = X(t, g)
            if CFG.get('dotn'):
                for qd in range(4):
                    E(valu('v_dot2_f32_bf16', tps[qd][0], x[qd], cl[g], acc4[g])); E(valu('v_dot2_f32_bf16', tps[qd][1], x[qd], ch[g], acc4[g]))
            else:
                for qd in range(4):
                    E(valu('v_lshlrev_b32', tps[qd][0], 16, x[qd])); E(valu('v_and_b32', tps[qd][1], sT2, x[qd]))
                for qd in range(4): E(valu('v_pk_fma_f32', tps[qd], tps[qd], v(acc4[2 + g].n, 2), v(acc4[g].n, 2), mods='op_sel_hi:[1,0,0]'))
            for qd in range(4): E(valu('v_cvt_pk_bf16_f32', x[qd], tps[qd][0], tps[qd][1]))
            if pend and n % CFG.get('dn', 2) == 0: E(pend.pop(0))
            n += 1
    for it in pend: E(it)
    if CFG['fused']:
        E(valu('v_mov_b32', v(24), 1)); E(waitvm(p.vm_wait_for(lambda t: t == 'zero')))
        E(I(f"buffer_atomic_add v24, v23, {sDBG}, 0 offen sc1", 'vstore', rd=vr(23, 2) + sDBG.regs(), units=3, tag='init'))
    for _ in range(CFG.get('idle', 0)): E(raw("s_sleep 16"))
    PS(62)
    if kind in 'AM' and MS:
        ln, m_, key, t_ = v(16), v(17), v(18), v(19)
        E([valu('v_lshrrev_b32', ln, 4, vLANE16), valu('v_and_b32', key, 19, ln),
           valu('v_bfe_u32', t_, ln, 2, 1), valu('v_lshl_add_u32', key, t_, 3, key),
           valu('v_bfe_u32', t_, ln, 3, 1), valu('v_lshl_add_u32', key, t_, 2, key),
           valu('v_lshrrev_b32', m_, 2, key), smov(sT2, PP), valu('v_mul_u32_u24', m_, sT2, m_),
           valu('v_and_b32', key, 3, key), valu('v_lshl_add_u32', m_, key, 8, m_),
           valu('v_lshrrev_b32', t_, 5, ln), valu('v_xor_b32', t_, t_, key),
           valu('v_lshl_add_u32', vRKM[0], t_, 4, m_), valu('v_xor_b32', vRKM[1], 32, vRKM[0])])
    elif kind in 'AM':
        E(valu('v_mov_b32', vRK[0], v(22))); E(valu('v_add_u32', vRK[1], 65536, v(22))); E(valu('v_add_u32', vRK[2], 131072, v(22)))
    if CFG['stamps']: E(raw(f"v_writelane_b32 {vSTAMP}, s96, 55", 'valu', wr=[vSTAMP], rd=[s(96)])) if kind != 'A' else None
    if CFG['stamps']: E(smov(s(43), s(96)))
    nlr = {'F': 10, 'A': 11, 'M': 8}[kind]
    if kind != 'M': E([valu('v_lshrrev_b32', vPF2, 16, vTID), valu('v_and_b32', vPFR, 63, vTID), valu('v_min_u32', vPFR, nlr - 1, vPFR),
       valu('v_mad_u32_u24', vPFR, vPF2, nlr, vPFR), valu('v_lshlrev_b32', vPFR, 7, vPFR)])
    if CFG['stamps']: E(smov(s(97), 0))
    E(smov(sLN0, f2u(-1.0 / math.sqrt(128.0))))

def slow_check(R, heads, base2):
    def f():
        p = R.p; E = p.emit
        t = v(254); lo = v(255)
        E(valu('v_mov_b32', lo, f2u(2.0 ** -40))); E(smov(sT3, f2u(2.0 ** 40)))
        for (hd, Q, O) in heads:
            L = f"L_{R.kind}_slow{hd}"
            if CFG['shape'] == 'M':
                E(valu('v_med3_f32', t, Lsave[hd], sT3, lo))
                E(raw(f"v_cmp_neq_f32 vcc, {t}, {Lsave[hd]}", 'valu', wr=['vcc'], rd=[t, Lsave[hd]])); E(nop(4))
            else:
                E(valu('v_med3_f32', t, Lsave[2 * hd], sT3, lo))
                E(raw(f"v_cmp_neq_f32 s[98:99], {t}, {Lsave[2 * hd]}", 'valu', wr=[s(98, 2)], rd=[t, Lsave[2 * hd]]))
                E(valu('v_med3_f32', t, Lsave[2 * hd + 1], sT3, lo))
                E(raw(f"v_cmp_neq_f32 vcc, {t}, {Lsave[2 * hd + 1]}", 'valu', wr=['vcc'], rd=[t, Lsave[2 * hd + 1]])); E(nop(4))
                E(raw("s_or_b64 vcc, vcc, s[98:99]", 'salu', wr=['vcc'], rd=['vcc', s(98, 2)])); E(nop(1))
            if CFG.get('force_slow'): E(raw(f"s_mov_b64 vcc, -1", 'salu', wr=['vcc']))
            E(raw(f"s_cbranch_vccz {L}_ret"))
            E(raw(f"s_call_b64 {sRET}, {L}"))
            E(label(f"{L}_ret"))
            R.slow.append((slow_path if CFG['shape'] == 'M' else slow_pathS)(L, hd, Q, O, base2))
        E(nop(1))
    return f

def slow_path(L, hd, Q, Odst, b2):
    p = Prog(); E = p.emit
    O = v(48, 64); S = v(b2, 16); P = v(b2 + 16, 8); F = v(b2 + 24, 16)
    vK, vV, vM, vL, t0, t1 = [v(b2 + 40 + i) for i in range(6)]
    sB, sJ, sO = s(98), s(99), s(97)
    E(I(".p2align 2", 'label')); E(label(L))
    E(nop(7)); E(nop(7))
    E([valu('v_lshrrev_b32', t0, 4, vLANE16), valu('v_and_b32', vK, 19, t0), valu('v_bfe_u32', t1, t0, 2, 1), valu('v_lshl_add_u32', vK, t1, 3, vK),
       valu('v_bfe_u32', t1, t0, 3, 1), valu('v_lshl_add_u32', vK, t1, 2, vK), valu('v_lshrrev_b32', t1, 5, t0),
       valu('v_lshlrev_b32', vV, 1, vK), valu('v_lshl_add_u32', vV, t1, 11, vV),
       valu('v_lshlrev_b32', vK, 8, vK), valu('v_lshl_add_u32', vK, t1, 4, vK)])
    E([mul(sB, sROLE, 3), add(sB, sB, hd), shr(sB, sB, 1), shl(sB, sB, 19), add(sB, sB, 1536 * 256)])
    def qk():
        for half in range(2):
            for t in range(4): E(bload('buffer_load_dwordx4', F.sub(4 * t, 4), vK, sK, sO, (4 * half + t) * 32))
            E(waitvm(0))
            for t in range(4):
                tt = 4 * half + t
                E(mfma(S, F.sub(4 * t, 4), Q.sub(4 * tt, 4), 0 if tt == 0 else S))
            E(nop(7)); E(nop(7))
    E(valu('v_mov_b32', vM, 0xff800000)); E(smov(sJ, 0))
    E(label(L + "_a"))
    E(add(sO, sB, sJ)); qk()
    for i in range(0, 16, 2): E(valu('v_max3_f32', vM, vM, S[i], S[i + 1]))
    E(add(sJ, sJ, 8192)); E(salu('s_cmp_lt_u32', None, sJ, 16 * 8192)); E(raw(f"s_cbranch_scc1 {L}_a"))
    E(valu('v_mov_b32', t0, vM)); E(valu('v_permlane32_swap_b32', vM, t0, rmw=True, extra_wr=[t0])); E(valu('v_max_f32', vM, vM, t0))
    for i in range(64): E(valu('v_mov_b32', O[i], 0))
    E(valu('v_mov_b32', vL, 0)); E(smov(sJ, 0))
    E(label(L + "_b"))
    E(add(sO, sB, sJ)); qk()
    for i in range(16): E(valu('v_sub_f32', S[i], S[i], vM))
    for i in range(16): E(valu('v_exp_f32', S[i], S[i]))
    for i in range(16): E(valu('v_add_f32', vL, vL, S[i]))
    for q in range(8): E(valu('v_cvt_pk_bf16_f32', P[q], S[2 * q], S[2 * q + 1]))
    for u in range(2):
        for tp in range(2):
            for tq in range(2):
                for j in range(8):
                    E(bload('buffer_load_ushort', F[8 * (j & 1) + 4 * tq + j // 2], vV, sV, sO, j * 256 + (2 * tp + tq) * 64))
            E(waitvm(0))
            for i in range(8): E(valu('v_lshl_or_b32', F[i], F[8 + i], 16, F[i]))
            for tq in range(2):
                D_ = O.sub(16 * (2 * tp + tq), 16)
                E(mfma(D_, F.sub(4 * tq, 4), P.sub(4 * u, 4), D_))
            E(nop(7))
        if u == 0: E(add(sO, sO, 4096))
    E(add(sJ, sJ, 8192)); E(salu('s_cmp_lt_u32', None, sJ, 16 * 8192)); E(raw(f"s_cbranch_scc1 {L}_b"))
    E(nop(7)); E(nop(7))
    E(valu('v_mov_b32', t0, vL)); E(valu('v_permlane32_swap_b32', vL, t0, rmw=True, extra_wr=[t0])); E(valu('v_add_f32', vL, vL, t0))
    E(valu('v_rcp_f32', t0, vL))
    for tau in range(4):
        A_ = O.sub(16 * tau, 16)
        for e in range(16): E(valu('v_mul_f32', A_[e], A_[e], t0))
        for q in range(8): E(valu('v_cvt_pk_bf16_f32', A_[2 * q], A_[2 * q], A_[2 * q + 1]))
        for q in range(4): E(valu('v_permlane16_swap_b32', A_[2 * q], A_[2 * q + 8], rmw=True, extra_wr=[A_[2 * q + 8]]))
        for q in range(8): E(valu('v_accvgpr_write_b32', Odst[8 * tau + q], A_[2 * q]))
    E(nop(1)); E(raw(f"s_setpc_b64 {sRET}"))
    return p

def slow_pathS(L, hd, Q, Odst, b2):
    p = Prog(); E = p.emit
    ob = 48; kv = None
    if isinstance(b2, tuple): b2, ob = b2
    if isinstance(Odst, tuple):
        OFf, kv = Odst
        class _D:
            def __getitem__(s_, i): return OFf(i // 8)[i % 8]
        Odst = _D()
    O = v(ob, 64); S = v(b2, 16); P = v(b2 + 16, 8); F = v(b2 + 24, 16)
    vK, vV, t0, t1 = [v(b2 + 40 + i) for i in range(4)]
    vM = [v(b2 + 44), v(b2 + 45)]; vL = [v(b2 + 46), v(b2 + 47)]
    sB, sJ, sO = s(98), s(99), s(97)
    E(I(".p2align 2", 'label')); E(label(L))
    E(nop(7)); E(nop(7))
    E([valu('v_lshrrev_b32', t0, 4, vLANE16), valu('v_and_b32', t1, 15, t0), valu('v_lshrrev_b32', t0, 4, t0),
       valu('v_lshlrev_b32', vK, 8, t1), valu('v_lshl_add_u32', vK, t0, 4, vK),
       valu('v_lshlrev_b32', vV, 1, t1), valu('v_lshl_add_u32', vV, t0, 10, vV)])
    if kv is not None: E(smov(sB, kv))
    else: E([mul(sB, sROLE, 3), add(sB, sB, hd), shr(sB, sB, 1), shl(sB, sB, 19), add(sB, sB, 1536 * 256)])
    def qk():
        for T in range(2):
            E(add(sO, sB, sJ)) if T == 0 else E(add(sO, sO, 4096))
            for t in range(4): E(bload('buffer_load_dwordx4', F.sub(4 * t, 4), vK, sK, sO, t * 64))
            E(waitvm(0))
            for t in range(4):
                for g_ in range(2):
                    D_ = S.sub(8 * T + 4 * g_, 4)
                    E(mfma(D_, F.sub(4 * t, 4), Q.sub(8 * t + 4 * g_, 4), 0 if t == 0 else D_))
            E(nop(7)); E(nop(3))
    def allq(x, op):
        for sw in ('v_permlane16_swap_b32', 'v_permlane32_swap_b32'):
            E(valu('v_mov_b32', t0, x)); E(valu(sw, x, t0, rmw=True, extra_wr=[t0])); E(valu(op, x, x, t0))
    for g_ in range(2): E(valu('v_mov_b32', vM[g_], 0xff800000))
    E(smov(sJ, 0))
    E(label(L + "_a"))
    qk()
    for T in range(2):
        for g_ in range(2):
            for i in (0, 2): E(valu('v_max3_f32', vM[g_], vM[g_], S[8 * T + 4 * g_ + i], S[8 * T + 4 * g_ + i + 1]))
    E(add(sJ, sJ, 8192)); E(salu('s_cmp_lt_u32', None, sJ, 16 * 8192)); E(raw(f"s_cbranch_scc1 {L}_a"))
    for g_ in range(2): allq(vM[g_], 'v_max_f32')
    for i in range(64): E(valu('v_mov_b32', O[i], 0))
    for g_ in range(2): E(valu('v_mov_b32', vL[g_], 0))
    E(smov(sJ, 0))
    E(label(L + "_b"))
    qk()
    for i in range(16): E(valu('v_sub_f32', S[i], S[i], vM[(i >> 2) & 1]))
    for i in range(16): E(valu('v_exp_f32', S[i], S[i]))
    for i in range(16): E(valu('v_add_f32', vL[(i >> 2) & 1], vL[(i >> 2) & 1], S[i]))
    for g_ in range(2):
        for T in range(2):
            for k in range(2): E(valu('v_cvt_pk_bf16_f32', P[4 * g_ + 2 * T + k], S[8 * T + 4 * g_ + 2 * k], S[8 * T + 4 * g_ + 2 * k + 1]))
    for tp in range(4):
        for jh in range(2):
            E(add(sO, sB, sJ)) if jh == 0 else E(add(sO, sO, 4096))
            for tq in range(2):
                for jl in range(4):
                    j = 4 * jh + jl
                    E(bload('buffer_load_ushort', F[8 * (j & 1) + 4 * tq + j // 2], vV, sV, sO, jl * 256 + (2 * tp + tq) * 32))
        E(waitvm(0))
        for i in range(8): E(valu('v_lshl_or_b32', F[i], F[8 + i], 16, F[i]))
        for tq in range(2):
            for g_ in range(2):
                D_ = O.sub(8 * (2 * tp + tq) + 4 * g_, 4)
                E(mfma(D_, F.sub(4 * tq, 4), P.sub(4 * g_, 4), D_))
        E(nop(7))
    E(add(sJ, sJ, 8192)); E(salu('s_cmp_lt_u32', None, sJ, 16 * 8192)); E(raw(f"s_cbranch_scc1 {L}_b"))
    E(nop(7)); E(nop(3))
    for g_ in range(2): allq(vL[g_], 'v_add_f32')
    for g_ in range(2): E(valu('v_rcp_f32', vL[g_], vL[g_]))
    for i in range(64): E(valu('v_mul_f32', O[i], O[i], vL[(i >> 2) & 1]))
    for kk in range(4):
        for g_ in range(2):
            for T in range(2):
                for c in range(2):
                    r = 8 * (2 * kk + T) + 4 * g_ + 2 * c
                    E(valu('v_cvt_pk_bf16_f32', O[r], O[r], O[r + 1])); E(valu('v_accvgpr_write_b32', Odst[8 * kk + 4 * g_ + 2 * T + c], O[r]))
    E(nop(1)); E(raw(f"s_setpc_b64 {sRET}"))
    return p

def add_signals(R):
    P2 = [k for k, st in enumerate(R.stages) if st.name.startswith('P2')]
    def sig(first):
        def f():
            out = [valu('v_add_u32', vPRG, 1, vPRG)]
            return out + [bstore('buffer_store_dword', vPRG, vCT, sWS, 0, flags='sc1')]
        return f
    def chain(stages, base):
        firsts = [k for k in stages if R.stages[k].sub == 0]
        for c in range(8):
            k = firsts[c + 1] + CFG.get('siglag', {}).get(R.kind, 2)
            if k > stages[-1]: break
            R.stages[k].cover_st = base + c; R.stages[k].post_bar = sig(c == 0)
    chain(P2, 0)
    R.stages[P2[0]].post_bar = lambda: [valu('v_mov_b32', vPRG, 0)]

LDSC = 4 * SLOT
sAB = s(72, 2); sRM = s(74, 2); sCD = s(76, 2)
sRS, sRF, sSP, sC, sI, sPB, sPART, sOK, sPAR, sXW, sPWv, sTO = s(78), s(79), s(71), s(80), s(81), s(82), s(47), s(40), s(41), s(59), s(3), s(58)
sIT = [s(42), s(44), s(45)]; sXP = [s(46), s(60), s(61)]
sRET2 = s(66, 2)
vP, vD, vA, vO, vXO, vL4, vDO, vLA, vIT, vLD, vSC = [v(16 + i) for i in range(11)]
vX4 = v(28)
def s64(op, d, *src, scc_r=False): return salu(op, d, *src, scc_r=scc_r)
sPV = s(85)
def red_setup(kind):
    o = [shl(sPB, sRB, 11), add(sPB, sPB, CTRL), salu('s_cmp_eq_u32', None, sWAVE, 0), csel(sT3, 0, OOB),
         valu('v_lshrrev_b32', vL4, 2, vLANE16), valu('v_add_u32', vL4, sT3, vL4),
         valu('v_mov_b32', vSC, OOB), add(sT2, sT3, 4 * NPART), raw(f"v_writelane_b32 {vSC}, {sT2}, 0", 'valu', wr=[vSC], rd=[sT2, vSC]),
         valu('v_mov_b32', vS1, vSC), valu('v_min_u32', vL5, NPART * 16, vLANE16), valu('v_lshrrev_b32', vL5, 2, vL5), valu('v_add_u32', vL5, sT3, vL5),
         add(sT2, sT3, 252), raw(f"v_writelane_b32 {vSC}, {sT2}, 1", 'valu', wr=[vSC], rd=[sT2, vSC]),
         shl(sT2, sRB, 4), add(sT2, sT2, sT3), valu('v_mov_b32', vDO, 256), raw(f"v_writelane_b32 {vDO}, {sT2}, 0", 'valu', wr=[vDO], rd=[sT2, vDO])]
    if kind == 'A': o += [shl(sPV, sROLE, 7), add(sPV, sPV, 256), add(sPV, sPV, sPB)]
    return o
vS1, vL5 = v(29), v(30)
PRIV = [False]
def red_poll(shared=False):
    cnt = [valu('v_mov_b32', vD, 0), I(f"buffer_atomic_add {vD}, {vDO}, {sDBG}, 0 offen sc0 sc1", 'vload', wr=vD.regs(), rd=vD.regs() + vDO.regs() + sDBG.regs(), units=3)]
    if PRIV[0] and not shared:
        return [cnt, [bstore('buffer_store_dword', vS1, vS1, sWS, sPV, flags='sc1'), bload('buffer_load_dword', vP, vL5, sWS, sPV, flags='sc1')]]
    return [cnt, [bstore('buffer_store_dword', vSC, vSC, sWS, sPB, flags='sc1'), bload('buffer_load_dword', vP, vL4, sWS, sPB, flags='sc1')]]
vG = [v(28), v(29), v(30)]; vGA = v(31); vGP = v(27)
def l2pf_setup():
    return [valu('v_lshrrev_b32', vGP, 7, vLANE16), smov(sT2, PSTR()), valu('v_mul_lo_u32', vGA, vGP, sT2),
            valu('v_bfe_u32', vA, vLANE16, 4, 3), valu('v_lshl_add_u32', vGA, vA, 7, vGA), shl(sT2, sWAVE, 10), valu('v_add_u32', vGA, sT2, vGA),
            valu('v_lshlrev_b32', vGP, 2, vGP), valu('v_mov_b32', vA, OOB), smov(sT2, 68), raw(f"v_writelane_b32 {vA}, {sT2}, 0", 'valu', wr=[vA], rd=[vA, sT2])]
def l2pf_poll():
    st = bstore('buffer_store_dword', vA, vA, sWS, sPB, flags='sc1')
    out = [[st]]
    for i in range(3):
        ld = bload('buffer_load_dword', vG[i], vGP, sWS, sPB, 32 * i, flags='sc1'); ld.tag = 'gp'
        out.append([ld])
    return out
def l2pf_issue(R, dlt):
    out = [[add(sI, sROLE, dlt), salu('s_and_b32', sT2, sI, 3), shr(sC, sI, 2), shl(sT3, sRB, 2), add(sT2, sT2, sT3), mul(sSP, sT2, PWAVE),
            shl(sT3, sC, 12), add(sSP, sSP, sT3), valu('v_mov_b32', vO, OOB)]]
    for i in range(3):
        ld = bload('buffer_load_dword', vDUM, vG[i], sWS, sT2); ld.tag = 'pf'
        cmp_ = raw(f"v_cmp_lt_u32 vcc, {sC}, {vG[i]}", 'valu', wr=['vcc'], rd=[sC, vG[i]])
        pre = [cmp_]
        if i == 2: pre += [raw("s_and_b64 vcc, vcc, 0xff", 'salu', wr=['vcc'], rd=['vcc'])]
        out.append(pre + [add(sT2, sSP, 8 * i * PSTR()), valu('v_cndmask_b32', vG[i], vO, vGA, 'vcc'), ld])
    return out
def red_eval():
    o = [raw(f"v_cmp_ne_u32 vcc, 0, {vP}", 'valu', wr=['vcc'], rd=[vP]), nop(1),
         raw(f"s_lshr_b64 {sAB}, vcc, {NPART + 1}", 'salu', wr=[sAB], rd=['vcc']), salu('s_and_b32', sAB[1], sAB[1], 15), smov(sRS, 0), smov(sRF, 0)]
    for c in range(9):
        o += [raw(f"v_cmp_ge_u32 vcc, {c}, {vP}", 'valu', wr=['vcc'], rd=[vP]), nop(1),
              raw(f"s_and_b32 {sT2}, vcc_lo, {hex((1 << NS) - 1)}", 'salu', wr=[sT2], rd=['vcc']), csel(sRS, sRS, 4 * (c + 1)),
              raw(f"s_and_b32 {sT2}, vcc_lo, {hex((1 << NPART) - (1 << NS))}", 'salu', wr=[sT2], rd=['vcc']), csel(sRF, sRF, 4 * (c + 1))]
    return o
def red_pub(par):
    return [shl(sT2, sRF, 8), salu('s_or_b32', sT2, sT2, sRS), shl(sT3, sTO, 16), salu('s_or_b32', sT2, sT2, sT3),
            valu('v_mov_b32', vIT, sT2), valu('v_mov_b32', vLA, par), raw(f"ds_write_b32 {vLA}, {vIT}", 'ds', rd=[vLA, vIT]), waitlg(0)]
def red_get(par):
    return [valu('v_mov_b32', vLA, par), raw(f"ds_read_b32 {vIT}, {vLA}", 'ds', wr=[vIT], rd=[vLA]), waitlg(0),
            valu('v_readfirstlane_b32', sT2, vIT), salu('s_and_b32', sRS, sT2, 255), salu('s_bfe_u32', sRF, sT2, (8 << 16) | 8), shr(sTO, sT2, 16)]
def red_early(p, n):
    E = p.emit
    E([smov(sRS, 0), smov(sRF, 0), smov(sOK, 0), smov(sTO, 0), smov(sPAR, LDSC + 4), nop(1)])
    E(salu('s_cmp_eq_u32', None, sWAVE, 0)); E(raw(f"s_cbranch_scc0 L_{n}_e2"))
    E(waitvm(p.vm_wait_for(lambda t: t == 'poll')))
    E(valu('v_readfirstlane_b32', sOK, vD))
    E(salu('s_cmp_ge_u32', None, sOK, 16)); E(raw(f"s_cbranch_scc0 L_{n}_e1"))
    E(red_eval())
    E(label(f"L_{n}_e1"))
    E(red_pub(LDSC))
    E(label(f"L_{n}_e2"))

def ld_part(L, ks, flags):
    out = []
    for k in ks:
        out.append([add(sT2, sPART, k * PSTR()), bload('buffer_load_dwordx4', v(L + 4 * k, 4), vLD, sWS, sT2, flags=flags)])
    return out
def ld_x(L, sXO_):
    if CFG.get('nox'): return [[valu('v_mov_b32', vA, OOB), bload('buffer_load_dwordx2', v(L + 4 * NPART, 2), vA, sX, sXO_)], [bload('buffer_load_dwordx2', v(L + 4 * NPART + 2, 2), vA, sX, sXO_, 32)]]
    return [[bload('buffer_load_dwordx2', v(L + 4 * NPART, 2), vXO, sX, sXO_)], [bload('buffer_load_dwordx2', v(L + 4 * NPART + 2, 2), vXO, sX, sXO_, 32)]]
RB_ = 48
sD0, sD1 = s(68), s(69)
def proc_sum(E, L, ks, after, loads):
    SA, FA, T = RB_, RB_ + 8, RB_ + 16
    issued = 0; ks = list(ks)
    E(smov(sT3, 0xffff0000))
    for j, k in enumerate(ks):
        if loads: E(loads.pop(0)); issued += 1
        E(waitvm(len(ks) - 1 - j + after + issued))
        acc = SA if k < NS else FA
        for q in range(4):
            x = v(L + 4 * k + q)
            if k in (0, NS):
                E(valu('v_lshlrev_b32', v(acc + 2 * q), 16, x)); E(valu('v_and_b32', v(acc + 2 * q + 1), sT3, x))
            else:
                E(valu('v_dot2c_f32_bf16', v(acc + 2 * q), sD0, x, rmw=True)); E(valu('v_dot2c_f32_bf16', v(acc + 2 * q + 1), sD1, x, rmw=True))
    return issued
def proc_fin(E, L, sXO_, xwait, loads):
    SA, FA, T = RB_, RB_ + 8, RB_ + 16; XR = L + 4 * NPART; issued = 0
    for e in range(8): E(valu('v_exp_f32', v(T + e), v(FA + e)))
    for e in range(8): E(valu('v_add_f32', v(T + e), 1.0, v(T + e)))
    while len(loads) > 1: E(loads.pop(0)); issued += 1
    for e in range(8): E(valu('v_rcp_f32', v(T + e), v(T + e)))
    for e in range(8): E(valu('v_mul_f32', v(FA + e), f2u(-math.log(2.0)), v(FA + e)))
    for e in range(8): E(valu('v_mul_f32', v(FA + e), v(FA + e), v(T + e)))
    while loads: E(loads.pop(0)); issued += 1
    if xwait is not None: E(waitvm(xwait + issued))
    for q in range(4):
        E(valu('v_lshlrev_b32', v(T + 2 * q), 16, v(XR + q))); E(valu('v_and_b32', v(T + 2 * q + 1), sT3, v(XR + q)))
    for e in range(8): E(valu('v_fma_f32', v(T + e), v(SA + e), v(FA + e), v(T + e)))
    for q in range(4): E(valu('v_cvt_pk_bf16_f32', v(XR + q), v(T + 2 * q), v(T + 2 * q + 1)))
    if CFG.get('out4', True):
        def dpp(d, src, bank): return I(f"v_mov_b32_dpp {d}, {src} row_ror:8 row_mask:0xf bank_mask:{bank}", 'perm', wr=d.regs(), rd=src.regs() + d.regs())
        for i in range(2): E(valu('v_permlane16_swap_b32', v(XR + i), v(XR + 2 + i), rmw=True, extra_wr=[v(XR + 2 + i)]))
        for i in range(2): E(valu('v_mov_b32', v(T + i), v(XR + i)))
        for i in range(2): E(dpp(v(XR + i), v(XR + 2 + i), '0xc'))
        for i in range(2): E(dpp(v(XR + 2 + i), v(T + i), '0x3'))
        E(bstore('buffer_store_dwordx4', v(XR, 4), vX4, sOUT, sXO_, flags=CFG.get('oflags', 'sc1')))
        E(valu('v_mov_b32', vO, OOB)); E(bstore('buffer_store_dword', vO, vO, sOUT, 0))
        return
    E(bstore('buffer_store_dwordx2', v(XR, 2), vXO, sOUT, sXO_)); E(bstore('buffer_store_dwordx2', v(XR + 2, 2), vXO, sOUT, sXO_, 32))
def proc_all(E, L, sXO_, pre, loads):
    loads = list(loads)
    n = proc_sum(E, L, range(NPART), 2 + pre, loads)
    proc_fin(E, L, sXO_, pre + n, loads)

def acc_part(E, L, k):
    acc = RB_ if k < NS else RB_ + 8
    for q in range(4):
        x = v(L + 4 * k + q)
        if k in (0, NS):
            E(valu('v_lshlrev_b32', v(acc + 2 * q), 16, x)); E(valu('v_and_b32', v(acc + 2 * q + 1), sT3, x))
        else:
            E(valu('v_dot2c_f32_bf16', v(acc + 2 * q), sD0, x, rmw=True)); E(valu('v_dot2c_f32_bf16', v(acc + 2 * q + 1), sD1, x, rmw=True))
def stream(E, segs, hooks=None):
    W = CFG.get('rwin', 8); FL = CFG.get('fflags', 'sc1')
    seq = []
    for (L, sP, sX_, ks, wx, fin) in segs:
        if wx:
            for it in ld_x(L, sX_): seq.append((it, None))
        ks = list(ks)
        for j, k in enumerate(ks):
            it = [add(sT2, sP, k * PSTR()), bload('buffer_load_dwordx4', v(L + 4 * k, 4), vLD, sWS, sT2, flags=FL)]
            last = fin and j == len(ks) - 1
            seq.append((it, (lambda L=L, k=k, last=last, sX_=sX_: (acc_part(E, L, k), proc_fin(E, L, sX_, None, []) if last else None, last)[2])))
    E(smov(sT3, 0xffff0000))
    n = len(seq); issued = 0
    extra_at = []
    for c in range(n):
        while issued < min(n, c + W): E(seq[issued][0]); issued += 1
        if hooks and c in hooks:
            for _ in range(hooks[c](issued + sum(1 for e in extra_at))): extra_at.append(issued)
            E(smov(sT3, 0xffff0000))
        if seq[c][1] is None: continue
        E(waitvm(issued - 1 - c + sum(1 for e in extra_at if e > c)))
        if seq[c][1]():
            extra_at += [issued, issued]

def body_items(E, n, its, two, ni, ensure, refresh, done, ST, seg, final_flag, poll_hook, LATE, L0, L1, FOUR, sMID, offs, sPT):
    E(salu('s_min_u32', sT2, sRS, sRF)); E(salu('s_cmp_lt_u32', None, its[two - 1], sT2)); E(raw(f"s_cbranch_scc0 L_{n}_sl"))
    ST(its[0])
    hooks = {(NPART + 2) * two - CFG.get('pollat', 8): poll_hook}
    if LATE: hooks[CFG.get('flagat', 3)] = final_flag
    stream(E, [seg(0, L0), seg(1, L1)][:two], hooks)
    ST(51)
    E(raw(f"s_branch L_{n}_j"))
    E(label(f"L_{n}_sl"))
    if LATE and two == 2 and CFG.get('mid1', 1):
        E(salu('s_min_u32', sT2, sRS, sRF)); E(salu('s_cmp_lt_u32', None, its[0], sT2)); E(raw(f"s_cbranch_scc0 L_{n}_s0"))
        ST(52)
        stream(E, [seg(0, L0)], {CFG.get('flagat', 3): final_flag, 12: poll_hook}); done(its[0])
        refresh(2); ensure(its[1], 1, 1)
        stream(E, [seg(1, L1)], {11: poll_hook})
        E(raw(f"s_branch L_{n}_j"))
        E(label(f"L_{n}_s0"))
    if LATE: final_flag(0)
    for i in range(two):
        ensure(its[i], 1, 1)
        stream(E, [seg(i, L0)], {11: poll_hook} if i == two - 1 else None); done(its[i])
    E(label(f"L_{n}_j"))
    for i in range(two): done(its[i])
    if FOUR or (CFG.get('asg') == 3 and n == 'A'):
        E(salu('s_cmp_gt_u32', None, sMID, 35)); E(raw(f"s_cbranch_scc1 L_{n}_nm"))
        refresh(2)
        ensure(sMID, 1, 1); ST(sMID)
        E(offs(sMID, sXP[0]))
        stream(E, [seg(0, L1)], {13: poll_hook}); done(sMID)
        E(label(f"L_{n}_nm"))
    if ni == 3:
        if CFG.get('asg') == 3:
            E(salu('s_cmp_lt_u32', None, its[2], 36)); E(raw(f"s_cbranch_scc1 L_{n}_h3"))
            E(red_poll(True)[1]); E(waitvm(0)); E(raw(f"s_branch L_{n}_fin")); E(label(f"L_{n}_h3"))
        refresh(2)
        ensure(its[2], 1, 0); ST(its[2])
        E(salu('s_cmp_lt_u32', None, its[2], sRF)); E(raw(f"s_cbranch_scc1 L_{n}_f3"))
        stream(E, [seg(2, L0, range(NS), True, False)], {6: poll_hook})
        refresh(0)
        ensure(its[2], 0, 1); ST(50)
        stream(E, [seg(2, L0, range(NS, NPART), False, True)], {0: poll_hook.sh})
        E(raw(f"s_branch L_{n}_f4"))
        E(label(f"L_{n}_f3"))
        stream(E, [seg(2, L0)], {11: poll_hook.sh})
        E(label(f"L_{n}_f4"))
        done(its[2])


def reducer(kind):
    p = Prog(); E = p.emit; n = kind; FL = CFG.get('fflags', 'sc1')
    PRIV[0] = (kind == 'A')
    def ST(code):
        if CFG['stamps'] != 2: return
        E(raw(f"s_memtime {sSTAMP}", wr=[sSTAMP])); E(raw("s_waitcnt lgkmcnt(0)")); E(salu('s_sub_u32', s(98), s(98), s(100)))
        E(shl(s(98), s(98), 6)); E(salu('s_or_b32', s(98), s(98), code))
        E(add(s(97), s(97), 16)); E(salu('s_min_u32', s(97), s(97), 11 * 16))
        E(raw(f"v_cmp_eq_u32 vcc, s97, {vLANE16}", 'valu', wr=['vcc'], rd=[s(97), vLANE16])); E(valu('v_mov_b32', v(27), s(98)))
        E(valu('v_cndmask_b32', vSTAMP, vSTAMP, v(27), 'vcc'))
    def offs(item, sX_):
        return [salu('s_and_b32', sT2, item, 3), shr(sC, item, 2), shl(sT3, sRB, 2), add(sT2, sT2, sT3), mul(sPART, sT2, PWAVE), add(sX_, sPART, sXW),
                shl(sT3, sC, 12), add(sT3, sT3, sPWv), add(sPART, sPART, sT3), shl(sT3, sC, 7), add(sX_, sX_, sT3)]
    k_ = [0]
    def ensure(item, s_, f_):
        L = f"L_{n}_en{k_[0]}"; k_[0] += 1
        if s_ and f_: E(salu('s_min_u32', sT2, sRS, sRF)); r = sT2
        else: r = sRS if s_ else sRF
        E(salu('s_cmp_lt_u32', None, item, r)); E(raw(f"s_cbranch_scc1 {L}"))
        E(smov(sI, item)); E(smov(sC, (1 if s_ else 0) | (2 if f_ else 0)))
        E(raw(f"s_call_b64 {sRET2}, L_{n}_sync"))
        E(salu('s_cmp_eq_u32', None, sTO, 0)); E(raw(f"s_cbranch_scc0 L_{n}_fb"))
        E(label(L))
    def done(item): E(raw(f"s_bitset0_b64 {sRM}, {item}", 'salu', wr=[sRM], rd=[sRM, item]))
    E(label(f"L_{n}_red"))
    if CFG.get('rdelay'):
        if n == 'A': (E(waitvm(0)), E(barrier()), E(valu('v_mov_b32', vPRG, 9)), E(bstore('buffer_store_dword', vPRG, vCT, sWS, 0, flags='sc1')))
        for _ in range({'A': 30, 'M': 24, 'F': 14}[n]): E(raw("s_sleep 16"))
    E(red_get(LDSC))
    if CFG.get('rdelay'): E(smov(sRS, 36)); E(smov(sRF, 36))
    E(valu('v_lshrrev_b32', vO, 4, vLANE16)); E(valu('v_and_b32', vXO, 7, vO)); E(valu('v_lshlrev_b32', vLD, 4, vXO))
    E(smov(sT2, 1152)); E(valu('v_mul_u32_u24', vXO, sT2, vXO))
    E(valu('v_lshrrev_b32', vA, 3, vO)); E(valu('v_lshl_add_u32', vX4, vA, 4, vXO))
    E(valu('v_bfe_u32', vA, vO, 3, 2)); E(valu('v_lshl_add_u32', vXO, vA, 3, vXO)); E(valu('v_lshl_add_u32', vLD, vA, 8, vLD))
    E(valu('v_lshrrev_b32', vA, 5, vO)); E(valu('v_lshl_add_u32', vXO, vA, 6, vXO)); E(valu('v_lshl_add_u32', vLD, vA, 11, vLD))
    E(mul(sXW, sWAVE, 8 * 1152)); E(shr(sPWv, sWAVE, 1)); E(shl(sPWv, sPWv, 10)); E(salu('s_and_b32', sT2, sWAVE, 1)); E(shl(sT2, sT2, 7)); E(add(sPWv, sPWv, sT2))
    L0, L1 = 72, 76 + 4 * NPART
    E(smov(sD0, 0x3f80)); E(smov(sD1, 0x3f800000))
    E(raw(f"s_mov_b64 {sRM}, 0", 'salu', wr=[sRM]))
    FOUR = CFG.get('four')
    sMID = s(48 + 0) if False else s(83)
    def nib(dst, tab, base):
        E(smov(sCD[0], sum(tab[i] << (4 * i) for i in range(8)))); E(smov(sCD[1], tab[8] | (tab[9] << 4)))
        E(shl(sT2, sROLE, 2)); E(s64('s_lshr_b64', sCD, sCD, sT2)); E(salu('s_and_b32', dst, sCD[0], 15))
        E(salu('s_cmp_eq_u32', None, dst, 15)); E(csel(dst, 63 - base, dst)); E(add(dst, dst, base))
    if n == 'A':
        E(smov(sIT[0], sROLE)); E(add(sIT[1], sROLE, NA))
        if CFG.get('asg') == 2: E(add(sIT[2], sROLE, 16))
        elif CFG.get('asg') == 3:
            E(add(sMID, sROLE, 16)); E(raw(f"s_bitset1_b64 {sRM}, {sMID}", 'salu', wr=[sRM], rd=[sRM, sMID]))
            E(salu('s_and_b32', sT2, sROLE, 1)); E(shr(sIT[2], sROLE, 1)); E(add(sIT[2], sIT[2], 24)); E(salu('s_cmp_eq_u32', None, sT2, 0)); E(csel(sIT[2], sIT[2], 63))
        elif CFG.get('l844'): E(add(sIT[2], sROLE, 28))
        elif FOUR:
            nib(sMID, [0, 15, 1, 2, 15, 3, 4, 5, 6, 7], 20); nib(sIT[2], [0, 1, 15, 2, 3, 15, 4, 5, 6, 7], 28)
            E(raw(f"s_bitset1_b64 {sRM}, {sMID}", 'salu', wr=[sRM], rd=[sRM, sMID]))
        else:
            nib(sIT[2], [0, 1, 15, 2, 3, 15, 4, 5, 6, 7], 28)
            E(salu('s_cmp_eq_u32', None, sROLE, 2)); E(csel(sIT[2], 22, sIT[2])); E(salu('s_cmp_eq_u32', None, sROLE, 5)); E(csel(sIT[2], 21, sIT[2]))
        its = sIT
    elif CFG.get('asg') == 2:
        if n == 'M': E(add(sIT[0], sROLE, 16)); E(add(sIT[1], sROLE, 20)); its = sIT[:2]
        else: E(add(sIT[0], sROLE, 20)); its = sIT[:1]
    elif CFG.get('asg') == 3:
        E(add(sIT[0], sROLE, 20)); its = sIT[:1]
    elif CFG.get('l844'):
        if n == 'M': E(add(sIT[0], sROLE, 8)); E(add(sIT[1], sROLE, 12)); its = sIT[:2]
        else: E(add(sIT[0], sROLE, 12)); its = sIT[:1]
    elif n == 'M': E(smov(sIT[0], 20)); its = sIT[:1]
    else:
        E(add(sIT[0], sROLE, 12)); its = sIT[:1]
    if FOUR and n != 'A':
        its = []
        E(waitvm(0)); E(red_poll()[1]); E(waitvm(0)); E(raw(f"s_branch L_{n}_fin"))
    for it in its: E(raw(f"s_bitset1_b64 {sRM}, {it}", 'salu', wr=[sRM], rd=[sRM, it]))
    E(salu('s_and_b32', sRM[1], sRM[1], 15))
    def refresh(wait):
        L = f"L_{n}_rf{k_[0]}"; k_[0] += 1
        E(salu('s_cmp_eq_u32', None, sWAVE, 0)); E(raw(f"s_cbranch_scc0 {L}"))
        E(waitvm(wait)); E(red_eval()); E(red_pub(sPAR))
        E(label(L)); E(barrier()); E(red_get(sPAR)); E(salu('s_xor_b32', sPAR, sPAR, 12))
    ALLD = lambda L, sx: ld_part(L, range(NPART), FL) + ld_x(L, sx)
    LATE = n in CFG.get('lateflag', 'A')
    sPT = [s(47), s(67 - 2), s(70)]
    def offs2(i): return offs(its[i], sXP[i]) + ([smov(sPT[i], sPART)] if i else [])
    def final_flag(wait):
        E(waitvm(wait)); E(barrier())
        E(valu('v_mov_b32', vPRG, 9)); E(bstore('buffer_store_dword', vPRG, vCT, sWS, 0, flags='sc1'))
        return 1
    def poll_hook(_): E(red_poll()[1]); return 2
    def poll_sh(_): E(red_poll(True)[1]); return 2
    poll_hook.sh = poll_sh
    seg = lambda i, L, ks=range(NPART), wx=True, fin=True: (L, sPT[i], sXP[i], ks, wx, fin)
    ni = len(its)
    for i in reversed(range(ni)): E(offs2(i))
    two = min(ni, 2)
    if ni: body_items(E, n, its, two, ni, ensure, refresh, done, ST, seg, final_flag, poll_hook, LATE, L0, L1, FOUR, sMID, offs, sPT)
    E(label(f"L_{n}_fin"))
    E(salu('s_cmp_eq_u32', None, sWAVE, 0)); E(raw(f"s_cbranch_scc0 L_{n}_b4"))
    E(waitvm(2))
    E(raw(f"v_cmp_ne_u32 vcc, 0, {vP}", 'valu', wr=['vcc'], rd=[vP])); E(nop(1))
    E(raw(f"s_lshr_b64 {sAB}, vcc, {NPART + 1}", 'salu', wr=[sAB], rd=['vcc'])); E(salu('s_and_b32', sAB[1], sAB[1], 15))
    E(salu('s_or_b32', sT2, sAB[0], sAB[1])); E(csel(sTO, 1, 0))
    E(salu('s_cmp_ge_u32', None, sOK, 16)); E(csel(sTO, sTO, 1)); E(red_pub(sPAR))
    E(label(f"L_{n}_b4")); E(barrier()); E(red_get(sPAR)); E(salu('s_xor_b32', sPAR, sPAR, 12))
    E(salu('s_cmp_eq_u32', None, sTO, 0)); E(raw(f"s_cbranch_scc1 L_{n}_exit"))
    E(label(f"L_{n}_fb"))
    E(waitvm(0))
    E(salu('s_cmp_eq_u32', None, sWAVE, 0)); E(raw(f"s_cbranch_scc0 L_{n}_fb2"))
    E(s64('s_lshl_b64', sCD, sRM, NPART + 1)); E(valu('v_mov_b32', vO, OOB)); E(valu('v_mov_b32', vA, 1))
    E(valu('v_cndmask_b32', vO, vO, vL4, sCD)); E(bstore('buffer_store_dword', vA, vO, sWS, sPB, flags='sc1')); E(waitvm(0))
    E(red_poll()[0]); E(waitvm(0)); E(red_poll(True)[1]); E(waitvm(0)); E(valu('v_readfirstlane_b32', sOK, vD)); E(red_eval())
    E(salu('s_min_u32', sT2, sRS, sRF)); E(salu('s_cmp_ge_u32', None, sOK, 16)); E(csel(sT2, sT2, 0))
    E(salu('s_bfm_b64', sCD, sT2, 0, scc_w=False)); E(s64('s_or_b64', sAB, sAB, sRM)); E(s64('s_and_b64', sAB, sAB, sCD))
    E(label(f"L_{n}_fb1"))
    E(raw(f"s_ff1_i32_b64 {sRS}, {sAB}", 'salu', wr=[sRS], rd=[sAB])); E(salu('s_and_b32', sRS, sRS, 255))
    E(raw(f"s_bitset0_b64 {sAB}, {sRS}", 'salu', wr=[sAB], rd=[sAB, sRS])); E(red_pub(sPAR))
    E(label(f"L_{n}_fb2")); E(barrier()); E(red_get(sPAR)); E(salu('s_xor_b32', sPAR, sPAR, 12))
    E(salu('s_cmp_ge_u32', None, sRS, 36)); E(raw(f"s_cbranch_scc1 L_{n}_exit"))
    E(offs(sRS, sXP[0])); E(ld_part(L0, range(NPART), FL) + ld_x(L0, sXP[0])); E(waitvm(0)); proc_all(E, L0, sXP[0], 0, [])
    E(salu('s_cmp_eq_u32', None, sWAVE, 0)); E(raw(f"s_cbranch_scc1 L_{n}_fb1")); E(raw(f"s_branch L_{n}_fb2"))
    E(label(f"L_{n}_exit"))
    ST(60)
    if CFG['stamps']: E(raw(f"s_setpc_b64 {sRET}"))
    else: E(raw("s_endpgm"))
    E(label(f"L_{n}_sync"))
    E(salu('s_cmp_eq_u32', None, sWAVE, 0)); E(raw(f"s_cbranch_scc0 L_{n}_sy2"))
    E(smov(sSP, 0)); E(red_poll()[1][0])
    E(label(f"L_{n}_sy0"))
    E(salu('s_cmp_ge_u32', None, sOK, 16)); E(raw(f"s_cbranch_scc1 L_{n}_sy1"))
    E(red_poll()[0]); E(waitvm(0)); E(valu('v_readfirstlane_b32', sOK, vD))
    E(salu('s_cmp_ge_u32', None, sOK, 16)); E(raw(f"s_cbranch_scc0 L_{n}_syw"))
    E(label(f"L_{n}_sy1"))
    E(red_poll()[1][1]); E(red_poll()[1][0]); E(waitvm(1)); E(red_eval())
    E(salu('s_bitcmp1_b32', None, sC, 0)); E(csel(sT2, sRS, 36)); E(salu('s_bitcmp1_b32', None, sC, 1)); E(csel(sT3, sRF, 36))
    E(salu('s_min_u32', sT2, sT2, sT3)); E(salu('s_cmp_lt_u32', None, sI, sT2)); E(raw(f"s_cbranch_scc1 L_{n}_syp"))
    E(label(f"L_{n}_syw"))
    E(add(sSP, sSP, 1)); E(salu('s_cmp_gt_u32', None, sSP, CFG.get('spin', 4000))); E(csel(sTO, 1, 0)); E(raw(f"s_cbranch_scc1 L_{n}_syp"))
    E(raw(f"s_sleep {CFG.get('sleep', 1)}")); E(raw(f"s_branch L_{n}_sy0"))
    E(label(f"L_{n}_syp"))
    E(red_pub(sPAR))
    E(label(f"L_{n}_sy2")); E(barrier()); E(red_get(sPAR)); E(salu('s_xor_b32', sPAR, sPAR, 12))
    E(raw(f"s_setpc_b64 {sRET2}"))
    return p

def reduce_items(p, ni, sPART_, sXO_, srdP, srdX, srdO, vL16, vXO_, base, flags, mid=None):
    E = p.emit
    SA = base; FA = base + 8; T = base + 16
    Ls = [base + 24 + 72 * i for i in range(ni)]
    for k in range(NPART):
        if k: E(add(sPART_, sPART_, 16 * PART - (PWAVE if ni == 2 else 0)))
        for i in range(ni):
            if i: E(add(sPART_, sPART_, PWAVE))
            E(bload('buffer_load_dwordx4', v(Ls[i] + 4 * k, 4), vL16, srdP, sPART_, flags=flags))
    for i in range(ni):
        XR = Ls[i] + 68
        if i: E(add(sT2, sXO_, 32 * 1152))
        so = sT2 if i else sXO_
        E(bload('buffer_load_dwordx2', v(XR, 2), vXO_, srdX, so)); E(bload('buffer_load_dwordx2', v(XR + 2, 2), vXO_, srdX, so, 32))
    ex = 0
    if mid: mid(); ex = 1
    E(smov(sT3, 0xffff0000))
    for i in range(ni):
        L = Ls[i]; XR = L + 68
        for k in range(NPART):
            if i == 0: E(waitvm((NPART - 1 - k) * ni + (ni - 1) + 2 * ni + ex))
            acc = SA if k < 11 else FA
            for q in range(4):
                x = v(L + 4 * k + q)
                if k in (0, 11):
                    E(valu('v_lshlrev_b32', v(acc + 2 * q), 16, x)); E(valu('v_and_b32', v(acc + 2 * q + 1), sT3, x))
                else:
                    tp = v(T + 2 * q, 2)
                    E(valu('v_lshlrev_b32', tp[0], 16, x)); E(valu('v_and_b32', tp[1], sT3, x))
            if k not in (0, 11):
                for q in range(4): E(valu('v_pk_add_f32', v(acc + 2 * q, 2), v(acc + 2 * q, 2), v(T + 2 * q, 2)))
        for e in range(8): E(valu('v_exp_f32', v(T + e), v(FA + e)))
        for e in range(8): E(valu('v_add_f32', v(T + e), 1.0, v(T + e)))
        for e in range(8): E(valu('v_rcp_f32', v(T + e), v(T + e)))
        for e in range(8): E(valu('v_mul_f32', v(FA + e), f2u(-math.log(2.0)), v(FA + e)))
        for e in range(8): E(valu('v_mul_f32', v(FA + e), v(FA + e), v(T + e)))
        if i == 0: E(waitvm(ex if ni == 1 else 0))
        for q in range(4):
            E(valu('v_lshlrev_b32', v(T + 2 * q), 16, v(XR + q))); E(valu('v_and_b32', v(T + 2 * q + 1), sT3, v(XR + q)))
        for e in range(8): E(valu('v_fma_f32', v(T + e), v(SA + e), v(FA + e), v(T + e)))
        for q in range(4): E(valu('v_cvt_pk_bf16_f32', v(XR + q), v(T + 2 * q), v(T + 2 * q + 1)))
        if i: E(add(sXO_, sXO_, 32 * 1152))
        E(bstore('buffer_store_dwordx2', v(XR, 2), vXO_, srdO, sXO_)); E(bstore('buffer_store_dwordx2', v(XR + 2, 2), vXO_, srdO, sXO_, 32))

def build_role(kind, vm_before):
    R = Role(kind)
    CFG['shape'] = CFG.get('shapes', {}).get(kind, CFG['shape0'])
    R.ring = {'F': (216, 9), 'A': (192, 16), 'M': (200, 8)}[kind]
    if kind == 'M': R.depth = 7
    nl = CFG.get('pfl', 16)
    MS = CFG['shape'] == 'M'
    if MS:
        R.add_p1_unit, R.add_p1_half, R.epi_silu, R.epi_q = R.add_p1_unitM, R.add_p1_halfM, R.epi_siluM, R.epi_qM
    P2M = 'q16' if MS else 'pi'
    if kind == 'F' and CFG.get('l844'):
        R.ring = (208, 12); R.depth = 7
        for u in range(13): R.add_p1_unit(u, sW1, sHA, sHC, 9216, u == 0, a(16 * u, 16), R.epi_silu, last=(u == 12),
                                          inreg=[pf_run(sW2, sPF2, 832 * 1152, 10) if u >= 1 else None, pf_row('F', sW1)])
        needs = {t: [('reg', 8 * t)] for t in range(26)}
        dm = [dma_w(sW2, sFA, 0, 1152, sFC, 0), dma_w(sW2, sFA, 288 * 1152, 1152, sFC, 288 * 1152), dma_w(sW2, sFA, 576 * 1152, 1152)]
        R.add_p2([(a(0, 208), [288, 288, 256], dm, needs, sSt)], [add(x, x, 128) for x in (sFA, sFC)], pre0=lambda: set_offw(1152, P2M))
        for st in R.stages[-27:]: st.ring = (208, 12, 'restart')
    elif kind == 'M' and CFG.get('l844'):
        R.ring = (208, 8); R.depth = 7
        Q = [a(80, 32), a(112, 32)]; OA = a(144, 64)
        def mpf(u):
            if u == 0: return pf_row('M', sWQ)
            if u == 1: return lambda: pf_row_setup('M', 9216, 18, sPF1, 0) + [pf_row('M', sW1)()[1]]
            if u <= 5: return pf_row('M', sW1)
            return None
        for u in range(4): R.add_p1_unit(u, sWQ, sQA, sQC, 8192, u == 0, a(80 + 16 * u, 16), R.epi_q, key='Q', inreg=[None, mpf(u)])
        for u in range(5): R.add_p1_unit(4 + u, sW1, sHA, sHC, 9216, u == 0, a(16 * u, 16), R.epi_silu, pre=(lambda: set_offw(9216, 'S')) if u == 0 else None,
                                         last=(u == 4), key='H', inreg=[None, mpf(4 + u)])
        Ha = dict(i=0, Q=Q[0], S=Sreg, P=Preg, O=OA, LM=v(230, 8), OF=lambda kk: OA.sub(16 * kk, 8),
                  need_qk=[('acc', 80), ('acc', 96)], need_pv=[('acc', 48 + 16 * i) for i in range(4)])
        Hb = dict(i=1, Q=Q[1], S=[v(80, 16), v(96, 16)], P=[v(48, 8), v(56, 8)], O=v(160, 64), LM=v(64, 8), OF=lambda kk: OA.sub(16 * kk + 8, 8))
        R.add_pa_g([[Ha, Hb]])
        R.stages[-9].mf[-1].need.append(('acc', 48))
        R.heads = [(Ha, sPFa), (Hb, sPFa)]
        R.add_p2m(a(0, 80), [H['OF'](kk) for H in (Ha, Hb) for kk in range(4)],
                  [dma_w(sW2, sFA, 0, 1152, sFC, 0), dma_w(sWO, sOA, 0, 1152, sFC, 32 * 1152, srdC=sW2)],
                  [add(x, x, 128) for x in (sOA, sFA, sFC)], pre0=lambda: set_offw(1152, P2M))
        for st in R.stages[-18:]: st.ring = (208, 12, 'restart')
        k = pf_sched(R, 15, sK, sPFa, 131072, 16); k = pf_sched(R, k, sV, sPFa, 131072, 16)
        pf_sched(R, 17, sWO, sPFc, 256 * 1152, 36); pf_sched(R, 18, sW2, sPF2, 320 * 1152, 45)
    elif kind == 'F':
        for u in range(13): R.add_p1_unit(u, sW1, sHA, sHC, 9216, u == 0, a(16 * u, 16), R.epi_silu, last=(u == 12), inreg=[pf_run(sW2, sPF2, 832 * 1152, 10) if u >= 1 else None, pf_row('F', sW1) if CFG['pf'] >= 3 else None] if CFG['pf'] else None)
        R.add_p1_half(13, a(208, 8))
        needs = {t: [('reg', 8 * t)] for t in range(27)}
        dm = [dma_w(sW2, sFA, 0, 1152, sFC, 0), dma_w(sW2, sFA, 288 * 1152, 1152, sFC, 288 * 1152), dma_w(sW2, sFA, 576 * 1152, 1152, sFS, 0)]
        R.add_p2([(a(0, 216), [288, 288, 288], dm, needs, sSt)], [add(x, x, 128) for x in (sFA, sFC, sFS)], pre0=lambda: set_offw(1152, P2M))
        if CFG['pf']:
            pf_sched(R, 26, sW2, sPF2h, 32 * 1152, 8)
    elif kind == 'A' and CFG.get('pair'):
        OA = a(96, 64)
        Ha = dict(i=0, Q=a(0, 32), S=Sreg, P=Preg, O=OA, LM=v(230, 8), OF=lambda kk: OA.sub(16 * kk, 8),
                  need_qk=[('acc', 48), ('acc', 64)], need_pv=[('acc', 48 + 16 * i) for i in range(4)])
        Hb = dict(i=1, Q=a(32, 32), S=[v(48, 16), v(64, 16)], P=[v(80, 8), v(88, 8)], O=v(160, 64), LM=v(96, 8), OF=lambda kk: OA.sub(16 * kk + 8, 8))
        Hc = dict(i=2, Q=a(64, 32), S=Sreg, P=Preg, O=v(48, 64), LM=v(16, 8), OF=lambda kk: a(160 + 8 * kk, 8), need_pv=[('lm', 0)])
        Ha['need_qk'] += [('acc', 80)]
        pj = {1: sJQ}
        for u in range(6):
            R.add_p1_unit(u, sWQ, sQA, sQC, 8192, u == 0, a(16 * u, 16), R.epi_q, last=(u == 5), step=sJQ if u == 4 else 128,
                          inreg=[pf_run(sWO, sPFc, 384 * 1152, 11) if u >= 1 else None, pf_row('A', sWQ, pj.get(u, 128)) if CFG['pf'] >= 3 and u < 3 else None] if CFG['pf'] else None)
        R.add_pa_g([[Ha, Hb], [Hc]])
        Bf = [H['OF'](kk) for H in (Ha, Hb, Hc) for kk in range(4)]
        needs = {0: [('fin', 0), ('fin', 1)], 8: [('fin', 2)]}
        dm = [dma_w192(sWO, 0), dma_w192(sWO, 0, sOA1, sOB1)]
        R.add_p2([(Bf, [192, 192], dm, needs, sSt)], [add(x, x, 128) for x in (sOA, sOB, sOA1, sOB1)], pre0=lambda: set_offw(1152, P2M))
        R.heads = [(Ha, sPFa), (Hb, sPFa), (Hc, sPFb)]
        if CFG['pf'] >= 2:
            pf_sched(R, 10, sK, sPFa, 131072, 16); pf_sched(R, 10, sV, sPFa, 131072, 16)
            pf_sched(R, 12, sK, sPFb, 131072, 16); pf_sched(R, 12, sV, sPFb, 131072, 16)
    elif kind == 'A':
        Q = [a(32 * e, 32) for e in range(3)]; O = [a(96 + 32 * e, 32) for e in range(3)]
        for u in range(6): R.add_p1_unit(u, sWQ, sQA, sQC, 8192, u == 0, a(16 * u, 16), R.epi_q, last=(u == 5), inreg=[pf_run(sWO, sPFc, 384 * 1152, 11) if u >= 1 else None, pf_row('A', sWQ) if CFG['pf'] >= 3 and u < 5 else None] if CFG['pf'] else None)
        R.add_pa(Q, O)
        needs = {4 * e: [('fin', e)] for e in range(3)}; needs[0].append(('S', 2, 15))
        dm = [dma_w192(sWO, b * 192 * 1152) for b in range(2)]
        R.add_p2([(a(96, 96), [192, 192], dm, needs, sSt)], [add(sOA, sOA, 128), add(sOB, sOB, 128)], pre0=lambda: set_offw(1152, P2M))
        if CFG['pf']:
            if CFG['pf'] >= 2:
                pf_sched(R, 10, sK, sPFa, 131072, 16); pf_sched(R, 10, sV, sPFa, 131072, 16)
                pf_sched(R, 12, sK, sPFb, 131072, 16); pf_sched(R, 12, sV, sPFb, 131072, 16)
    else:
        Q = [a(136 + 32 * e, 32) for e in range(2)]; O = [a(72 + 32 * e, 32) for e in range(2)]
        def mpf(u):
            if u == 0: return pf_row('M', sWQ)
            if u == 1: return lambda: pf_row_setup('M', 9216, 18, sPF1, 0) + [pf_row('M', sW1)()[1]]
            if u <= 4: return pf_row('M', sW1)
            if u == 5: return lambda: [smov(sPW, sPF1h), pf_row('M', sW1)()[1]]
            return None
        for u in range(4): R.add_p1_unit(u, sWQ, sQA, sQC, 8192, u == 0, a(136 + 16 * u, 16), R.epi_q, key='Q', inreg=[None, mpf(u)] if CFG['pf'] >= 3 else None)
        for u in range(4): R.add_p1_unit(4 + u, sW1, sHA, sHC, 9216, u == 0, a(16 * u, 16), R.epi_silu, pre=(lambda: set_offw(9216, 'M' if MS else 'S')) if u == 0 else None, last=(u == 3), key='H', inreg=[None, mpf(4 + u)] if CFG['pf'] >= 3 else None)
        R.add_p1_half(8, a(64, 8))
        BO = a(72, 64)
        if CFG.get('pair'):
            Ha = dict(i=0, Q=Q[0], S=Sreg, P=Preg, O=BO, LM=v(230, 8), OF=lambda kk: BO_.sub(16 * kk, 8),
                      need_qk=[('acc', 48 + 16 * i) for i in range(3)], need_pv=[('acc', 48 + 16 * i) for i in range(4)])
            Hb = dict(i=1, Q=Q[1], S=[v(64, 16), v(48, 16)], P=[v(80, 8), v(88, 8)], O=v(160, 64), LM=v(96, 8), OF=lambda kk: BO_.sub(16 * kk + 8, 8))
            BO_ = BO
            R.add_pa_g([[Ha, Hb]])
            BO = [H['OF'](kk) for H in (Ha, Hb) for kk in range(4)]
            R.heads = [(Ha, sPFa), (Hb, sPFa)]
        else: R.add_pa(Q, O)
        nf = {t: [('reg', 8 * t)] for t in range(9)}; nf[0].append(('S', 1, 15))
        R.add_p2([(a(0, 72), [288], [dma_w(sW2, sFA, 0, 1152, sFS, 0)], nf, sSt2),
                  (BO, [256], [dma_w(sWO, sOA, 0, 1152)], {0: [('fin', 0)], 4: [('fin', 1)]}, sSt)],
                 [add(x, x, 128) for x in (sOA, sFA, sFS)], pre0=lambda: set_offw(1152, P2M))
        for st in R.stages[-18:]: st.ring = (200, 14, 'restart')
        if CFG['pf']:
            if CFG['pf'] >= 2:
                k = pf_sched(R, 14, sK, sPFa, 131072, 16); k = pf_sched(R, k, sV, sPFa, 131072, 16)
            pf_sched(R, 16, sWO, sPFc, 256 * 1152, 36); pf_sched(R, 23 if not CFG.get('pair') else 17, sW2, sPF2, 256 * 1152, 36); pf_sched(R, 24 if not CFG.get('pair') else 17, sW2, sPF2h, 32 * 1152, 8)
    if CFG.get('msum') and not MS and kind in 'AM':
        st0 = [st for st in R.stages if st.name == 'PAh0s0'][0]
        m0_ = st0.mf[8]
        m0_.need += [('acc', 48 + 16 * i) for i in range(4)]
        m0_.pre = lambda: R.p.emit([valu('v_mov_b32', vONES[i], 0x3f803f80) for i in range(4)])
    if CFG.get('recode') and CFG['fused']:
        names = [st.name for st in R.stages]
        nS = len(names)
        R.pf.setdefault(nS - 2, []).append(pf_code(f"L_{kind}_red", f"L_role{kind}_end", 4))
        p2 = names.index('P2c0b0')
        R.stages[p2].label = f"L_{kind}_p2"
        R.pf.setdefault(p2 - 2, []).append(pf_code(f"L_{kind}_p2", f"L_{kind}_p2+20480", 5))
        if kind in 'AM':
            pa = names.index('PAmini'); R.stages[pa].label = f"L_{kind}_pa"
            R.pf.setdefault(pa - 1, []).append(pf_code(f"L_{kind}_pa", f"L_{kind}_p2", 8))
    if CFG.get('hot') and CFG['fused'] and kind in CFG['hot']:
        names = [st.name for st in R.stages]
        last = names.index('P2c8b0'); R.stages[last].label = f"L_{kind}_c8"
        def setup():
            o = [raw(f"s_getpc_b64 {sPC}", 'salu', wr=[sPC]), label(f"L_{kind}_hp"),
                 salu('s_add_u32', sPC[0], sPC[0], f"L_{kind}_c8-L_{kind}_hp"), salu('s_addc_u32', sPC[1], sPC[1], 0, scc_r=True),
                 valu('v_bfe_u32', vPF2, vTID, 16, 5), valu('v_and_b32', vPF, 63, vTID), valu('v_min_u32', vPF, 1, vPF),
                 valu('v_lshl_add_u32', vPF, vPF2, 1, vPF), valu('v_lshlrev_b32', vPF, 7, vPF)]
            if kind == 'F': o += pf_row_setup(kind, 1152, 26, sPF2, 2 * 128)
            return o
        def rep_code():
            return [I(f"global_load_dword {vDUM}, {vPF}, {sPC}", 'vload', wr=vDUM.regs(), rd=vPF.regs() + sPC.regs(), units=3, tag='pf')]
        R.pf.setdefault(names.index('P2c1b0'), []).append(setup)
        for c in range(2, 8):
            k0 = names.index(f'P2c{c}b0')
            R.pf.setdefault(k0, []).append(rep_code)
            if kind == 'F': R.pf.setdefault(k0 + 1, []).append(pf_row(kind, sW2))
    R.slow = []
    if kind in 'AM' and CFG.get('slow', True) and CFG.get('pair'):
        P2s = [st for st in R.stages if st.name.startswith('P2c0')]
        hl = [(H['i'], H['Q'], (H['OF'], kv)) for (H, kv) in R.heads]
        if kind == 'A':
            P2s[0].mf[0].pre = slow_check(R, hl[:2], (112, 160))
            [m for m in P2s[1].mf if ('fin', 2) in m.need][0].pre = slow_check(R, hl[2:], (160, 48))
        else:
            m_ = P2s[1].mf[4 if CFG.get('l844') else 0]
            m_.need += [('fin', 0), ('fin', 1)]
            m_.pre = slow_check(R, hl, (160, 48))
    elif kind in 'AM' and CFG.get('slow', True):
        P2s = [st for st in R.stages if st.name.startswith('P2c0')]
        if kind == 'A':
            P2s[0].mf[0].need += [('fin', 1)]
            P2s[0].mf[0].pre = slow_check(R, [(0, Q[0], O[0]), (1, Q[1], O[1])], 112)
            m_ = [m for m in P2s[1].mf if ('fin', 2) in m.need][0]
            m_.pre = slow_check(R, [(2, Q[2], O[2])], 160)
        else:
            P2s[1].mf[0].need += [('fin', 1)]
            P2s[1].mf[0].pre = slow_check(R, [(0, Q[0], O[0]), (1, Q[1], O[1])], 160)
    if CFG['fused']:
        add_signals(R)
        def early0():
            it = red_setup(kind) + red_poll()[0]
            it[-1].tag = 'cnt'
            return it
        def early():
            assert R.cnt_covered()
            PRIV[0] = (kind == 'A')
            it = red_poll()[1]
            it[-1].tag = 'poll'
            return it
        def covered():
            idx = max(i for i, x in enumerate(R.p.ins) if x.tag == 'cnt'); n = 0
            for x in R.p.ins[idx + 1:]:
                if x.kind in VMEMK: n += 1
                if x.txt.startswith('s_waitcnt vmcnt(') and int(x.txt[16:-1]) <= n: return True
            return False
        R.cnt_covered = covered
        if kind == 'A' and CFG.get('l2pf'):
            nm = [st.name for st in R.stages]
            R.pf.setdefault(nm.index('P2c1b0'), []).append(l2pf_setup)
            for (cw, dlt) in CFG['l2pf']:
                kp = nm.index(f'P2c{cw}b0')
                for j in range(4): R.pf.setdefault(kp, []).append(lambda j=j: l2pf_poll()[j])
                R.stages[kp + 2].cover_tag = 'gp'
                def gate(j, dlt=dlt):
                    def f():
                        it = l2pf_issue(R, dlt)[j]
                        if j == 0:
                            it = it + [valu('v_readfirstlane_b32', sOK, vD), salu('s_cmp_ge_u32', None, sOK, 16), csel(sC, sC, 15)]
                        return it
                    return f
                for j in range(4): R.pf.setdefault(kp + 2, []).append(gate(j))
        R.pf.setdefault([st.name for st in R.stages].index('P2c1b0' if kind == 'F' else 'P2c0b1'), []).append(early0)
        R.pf.setdefault(len(R.stages) - CFG.get('pollw', 1), []).append(early)
    role_prologue(R, vm_before)
    R.run()
    if CFG['fused']:
        p = R.p
        red_early(p, kind)
        if kind in CFG.get('lateflag', 'A'): p.emit(barrier())
        else:
            p.emit(waitvm(0)); p.emit(barrier())
            p.emit(valu('v_mov_b32', vPRG, 9)); p.emit(bstore('buffer_store_dword', vPRG, vCT, sWS, 0, flags='sc1'))
        if CFG['stamps']: R.stamp(len(R.stages) - 1)
        p.emit(raw(f"s_call_b64 {sRET}, L_{kind}_red"))
    if CFG['stamps']:
        p = R.p
        R.stamp(len(R.stages))
        p.emit(raw("s_memrealtime s[98:99]", wr=[s(98, 2)])); p.emit(raw("s_waitcnt lgkmcnt(0)"))
        p.emit(raw(f"v_writelane_b32 {vSTAMP}, s98, 63", 'valu', wr=[vSTAMP], rd=[s(98)]))
        if CFG.get('dbgstat'):
            n = len(R.stages)
            lanes = {'F': [0, 27, n - 1, n], 'A': [0, 37, n - 1, n], 'M': [0, 34, n - 1, n]}[kind]
            slots = {'F': [1, 2, 3, 5], 'A': [10, 11, 13, 14], 'M': [15, 15, 15, 15]}[kind]
            p.emit([valu('v_mov_b32', v(4), 256), valu('v_mov_b32', v(5), 0)])
            for i, (ln, sl) in enumerate(zip(lanes, slots)):
                p.emit(raw(f"v_readlane_b32 s92, {vSTAMP}, {ln}", 'rdl', wr=[sT2], rd=[vSTAMP])); p.emit(nop(3))
                p.emit(raw(f"v_writelane_b32 v5, s92, {i}", 'valu', wr=[v(5)], rd=[sT2])); p.emit(raw(f"v_writelane_b32 v4, {4 * sl}, {i}", 'valu', wr=[v(4)]))
            p.emit(raw(f"v_writelane_b32 v5, s98, 4", 'valu', wr=[v(5)], rd=[s(98)])); p.emit(raw(f"v_writelane_b32 v4, 28, 4", 'valu', wr=[v(4)]))
            p.emit(salu('s_not_b32', sT2, s(43))); p.emit(raw(f"v_writelane_b32 v5, s92, 5", 'valu', wr=[v(5)], rd=[sT2])); p.emit(raw(f"v_writelane_b32 v4, 36, 5", 'valu', wr=[v(4)]))
            p.emit(salu('s_sub_u32', sT2, s(98), s(43))); p.emit(raw(f"v_writelane_b32 v5, s92, 6", 'valu', wr=[v(5)], rd=[sT2])); p.emit(raw(f"v_writelane_b32 v4, 24, 6", 'valu', wr=[v(4)]))
            p.emit([salu('s_cmp_eq_u32', None, sRB, 9), csel(sT2, 0, sRB), salu('s_or_b32', sT2, sT2, sWAVE), salu('s_cmp_eq_u32', None, sT2, 0), csel(sT2, 0, 256),
                    valu('v_add_u32', v(4), sT2, v(4))])
            p.emit(I(f"buffer_atomic_umax v5, v4, {sDBG}, 0 offen sc1", 'vstore', rd=vr(4, 2) + sDBG.regs(), units=3))
        p.emit([shl(sT2, s(2), 2), add(sT2, sT2, sWAVE), shl(sT2, sT2, 8), add(sT2, sT2, STAMP_OFF),
                valu('v_lshrrev_b32', v(42), 2, vLANE16), bstore('buffer_store_dword', vSTAMP, v(42), sWS, sT2)])
    R.p.emit(raw("s_endpgm"))
    return R

def fold(ins, name):
    idx = [i for i, x in enumerate(ins) if x.tag == 'mark']
    def body(a_, b_): return [x.txt for x in ins[a_:b_] if x.kind != 'label']
    out = []; pos = 0; k = 0; nl = 0
    while k + 1 < len(idx):
        b0 = body(idx[k], idx[k + 1]); n = 1
        while k + n + 1 < len(idx) and body(idx[k + n], idx[k + n + 1]) == b0: n += 1
        if n >= 2:
            out += ins[pos:idx[k]]
            L = f"L_{name}_loop{nl}"; nl += 1
            out.append(smov(sLC, n)); out.append(I(".p2align 3", 'label')); out.append(label(L))
            out += ins[idx[k]:idx[k + 1]]
            out += [salu('s_sub_u32', sLC, sLC, 1), salu('s_cmp_lg_u32', None, sLC, 0), raw(f"s_cbranch_scc1 {L}")]
            pos = idx[k + n]; k += n
        else: k += 1
    out += ins[pos:]
    return out

def fold_regions(ins, name):
    regs = []; i = 0
    beg = None
    for i, x in enumerate(ins):
        if isinstance(x.tag, tuple) and x.tag and x.tag[0] == 'region':
            if x.tag[1] == 'begin': beg = (i, x.tag[2])
            elif beg: regs.append((beg[0], i, beg[1])); beg = None
    groups = {}
    for (a_, b_, key) in regs:
        groups.setdefault(tuple(x.txt for x in ins[a_:b_] if x.kind != 'label'), []).append((a_, b_))
    out = []; subs = []; repl = {}
    n = 0
    for body, lst in groups.items():
        if len(lst) >= 2:
            L = f"L_{name}_sub{n}"; n += 1
            a_, b_ = lst[0]
            subs += [I(".p2align 6", 'label'), label(L)] + ins[a_:b_] + [raw(f"s_setpc_b64 {sRET}")]
            for (a_, b_) in lst: repl[a_] = (b_, L)
    i = 0
    while i < len(ins):
        if i in repl:
            b_, L = repl[i]; out.append(raw(f"s_call_b64 {sRET}, {L}")); i = b_
        else:
            out.append(ins[i]); i += 1
    print(f"  regions: {[len(l) for l in groups.values()]}", file=sys.stderr)
    return out + subs

def reduce_body(p, sPART, sXO, srdP, srdX, srdO, vL16, vXO, base, flags, mid=None):
    E = p.emit
    L = base; XR = base + 68; SA = base + 72; FA = base + 80; T = base + 88
    for k in range(NPART):
        if k: E(add(sPART, sPART, 16 * PART))
        E(bload('buffer_load_dwordx4', v(L + 4 * k, 4), vL16, srdP, sPART, flags=flags))
    E(bload('buffer_load_dwordx2', v(XR, 2), vXO, srdX, sXO)); E(bload('buffer_load_dwordx2', v(XR + 2, 2), vXO, srdX, sXO, 32))
    ex = 0
    if mid: E(mid()); ex = 1
    E(smov(sT3, 0xffff0000))
    for k in range(NPART):
        E(waitvm(NPART + 1 - k + ex))
        acc = SA if k < 11 else FA
        for q in range(4):
            x = v(L + 4 * k + q)
            if k in (0, 11):
                E(valu('v_lshlrev_b32', v(acc + 2 * q), 16, x)); E(valu('v_and_b32', v(acc + 2 * q + 1), sT3, x))
            else:
                tp = v(T + 2 * q, 2)
                E(valu('v_lshlrev_b32', tp[0], 16, x)); E(valu('v_and_b32', tp[1], sT3, x))
        if k not in (0, 11):
            for q in range(4): E(valu('v_pk_add_f32', v(acc + 2 * q, 2), v(acc + 2 * q, 2), v(T + 2 * q, 2)))
    for e in range(8): E(valu('v_exp_f32', v(T + e), v(FA + e)))
    for e in range(8): E(valu('v_add_f32', v(T + e), 1.0, v(T + e)))
    for e in range(8): E(valu('v_rcp_f32', v(T + e), v(T + e)))
    for e in range(8): E(valu('v_mul_f32', v(FA + e), f2u(-math.log(2.0)), v(FA + e)))
    for e in range(8): E(valu('v_mul_f32', v(FA + e), v(FA + e), v(T + e)))
    E(waitvm(ex))
    for q in range(4):
        E(valu('v_lshlrev_b32', v(T + 2 * q), 16, v(XR + q))); E(valu('v_and_b32', v(T + 2 * q + 1), sT3, v(XR + q)))
    for e in range(8): E(valu('v_fma_f32', v(T + e), v(SA + e), v(FA + e), v(T + e)))
    for q in range(4): E(valu('v_cvt_pk_bf16_f32', v(XR + q), v(T + 2 * q), v(T + 2 * q + 1)))
    E(bstore('buffer_store_dwordx2', v(XR, 2), vXO, srdO, sXO)); E(bstore('buffer_store_dwordx2', v(XR + 2, 2), vXO, srdO, sXO, 32))

def reduce_kernel():
    p = Prog(); E = p.emit
    E(salu('s_cmp_ge_u32', None, s(2), 576)); E(raw("s_cbranch_scc0 L_rgo")); E(raw("s_endpgm")); E(label("L_rgo"))
    E(raw("s_load_dwordx2 s[4:5], s[0:1], 0", wr=[s(4, 2)])); E(raw("s_load_dwordx2 s[6:7], s[0:1], 64", wr=[s(6, 2)])); E(raw("s_load_dwordx2 s[8:9], s[0:1], 80", wr=[s(8, 2)]))
    E(valu('v_lshrrev_b32', v(1), 6, v(0))); E(valu('v_readfirstlane_b32', s(10), v(1)))
    E(shl(s(11), s(2), 2)); E(add(s(11), s(11), s(10)))
    E(salu('s_mul_hi_u32', s(24), s(11), -(-(1 << 32) // 36), scc_w=False))
    E(mul(s(25), s(24), 36)); E(salu('s_sub_u32', s(25), s(11), s(25)))
    E(shl(s(26), s(11), 10))
    E(valu('v_and_b32', v(0), 63, v(0))); E(valu('v_lshlrev_b32', v(1), 4, v(0)))
    E(valu('v_and_b32', v(2), 15, v(0))); E(smov(s(27), 1152)); E(valu('v_mul_u32_u24', v(2), s(27), v(2)))
    E(valu('v_lshrrev_b32', v(3), 4, v(0))); E(valu('v_lshl_add_u32', v(2), v(3), 3, v(2)))
    E(mul(s(28), s(24), 32 * 1152)); E(salu('s_and_b32', s(29), s(25), 1)); E(mul(s(29), s(29), 16 * 1152)); E(add(s(28), s(28), s(29)))
    E(shr(s(25), s(25), 1)); E(shl(s(25), s(25), 6)); E(add(s(28), s(28), s(25)))
    E(raw("s_waitcnt lgkmcnt(0)"))
    srd(p, s(12, 4), 8, WSP_BYTES); srd(p, s(16, 4), 4, 2359296); srd(p, s(20, 4), 6, 2359296)
    reduce_body(p, s(26), s(28), s(12, 4), s(16, 4), s(20, 4), v(1), v(2), 4, CFG.get('rflags', ''))
    E(raw("s_endpgm"))
    return p

def text(ins): return "\n".join((i.txt if i.kind == 'label' else " " + i.txt) for i in ins) + "\n"

def compress(t):
    t = re.sub(r" v_mfma_f32_16x16x32_bf16 v\[(\d+):\d+\], a\[(\d+):\d+\], v\[(\d+):\d+\], v\[\1:\d+\]", r" MV \1,\2,\3", t)
    t = re.sub(r" v_mfma_f32_16x16x32_bf16 v\[(\d+):\d+\], a\[(\d+):\d+\], a\[(\d+):\d+\], v\[\1:\d+\]", r" MA \1,\2,\3", t)
    t = re.sub(r" v_mfma_f32_32x32x16_bf16 v\[(\d+):\d+\], a\[(\d+):\d+\], v\[(\d+):\d+\], v\[\1:\d+\]", r" NV \1,\2,\3", t)
    t = re.sub(r" v_mfma_f32_32x32x16_bf16 v\[(\d+):\d+\], a\[(\d+):\d+\], a\[(\d+):\d+\], v\[\1:\d+\]", r" NA \1,\2,\3", t)
    t = re.sub(r" v_mfma_f32_16x16x32_bf16 a\[(\d+):\d+\], a\[(\d+):\d+\], v\[(\d+):\d+\], a\[\1:\d+\]", r" MC \1,\2,\3", t)
    t = re.sub(r" ds_read_b64_tr_b16 a\[(\d+):\d+\], v(\d+) offset:(\d+)", r" RT \1,\2,\3", t)
    t = re.sub(r" ds_read_b128 a\[(\d+):\d+\], v(\d+) offset:(\d+)", r" RB \1,\2,\3", t)
    t = re.sub(r" v_cvt_pk_bf16_f32 v(\d+), v(\d+), v(\d+)", r" CV \1,\2,\3", t)
    t = re.sub(r" v_accvgpr_write_b32 a(\d+), v(\d+)", r" AW \1,\2", t)
    t = re.sub(r" v_exp_f32 v(\d+), v(\d+)", r" EX \1,\2", t)
    t = re.sub(r" v_add_f32 v(\d+), v(\d+), v(\d+)", r" AD \1,\2,\3", t)
    t = re.sub(r" v_mul_f32 v(\d+), v(\d+), v(\d+)", r" ML \1,\2,\3", t)
    t = re.sub(r" s_waitcnt lgkmcnt\((\d+)\)", r" WL \1", t)
    mac = r""".macro MC d,a,b
 v_mfma_f32_16x16x32_bf16 a[\d:\d+3], a[\a:\a+3], v[\b:\b+3], a[\d:\d+3]
.endm
.macro NV d,a,b
 v_mfma_f32_32x32x16_bf16 v[\d:\d+15], a[\a:\a+3], v[\b:\b+3], v[\d:\d+15]
.endm
.macro NA d,a,b
 v_mfma_f32_32x32x16_bf16 v[\d:\d+15], a[\a:\a+3], a[\b:\b+3], v[\d:\d+15]
.endm
.macro MV d,a,b
 v_mfma_f32_16x16x32_bf16 v[\d:\d+3], a[\a:\a+3], v[\b:\b+3], v[\d:\d+3]
.endm
.macro MA d,a,b
 v_mfma_f32_16x16x32_bf16 v[\d:\d+3], a[\a:\a+3], a[\b:\b+3], v[\d:\d+3]
.endm
.macro RT d,a,o
 ds_read_b64_tr_b16 a[\d:\d+1], v\a offset:\o
.endm
.macro RB d,a,o
 ds_read_b128 a[\d:\d+3], v\a offset:\o
.endm
.macro CV d,a,b
 v_cvt_pk_bf16_f32 v\d, v\a, v\b
.endm
.macro AW d,a
 v_accvgpr_write_b32 a\d, v\a
.endm
.macro EX d,a
 v_exp_f32 v\d, v\a
.endm
.macro AD d,a,b
 v_add_f32 v\d, v\a, v\b
.endm
.macro ML d,a,b
 v_mul_f32 v\d, v\a, v\b
.endm
.macro WL n
 s_waitcnt lgkmcnt(\n)
.endm
"""
    return mac, t

HDR = open('recurrent_scan__sliding_block_cached__dense_activation_silu__prompt.s.ref').read().split('; Override launch')[0]
def kd(name, vgpr, acc, sgpr=102):
    return f""".amdhsa_kernel {name}
  .amdhsa_next_free_vgpr {vgpr}
  .amdhsa_next_free_sgpr {sgpr}
  .amdhsa_accum_offset {acc}
  .amdhsa_group_segment_fixed_size 0
  .amdhsa_kernarg_size 88
  .amdhsa_user_sgpr_count 2
  .amdhsa_user_sgpr_kernarg_segment_ptr 1
  .amdhsa_system_sgpr_workgroup_id_x 1
.end_amdhsa_kernel
"""
def est_cycles(ins):
    tot = 0; cur = None; n = 0
    for i in ins:
        if i.kind == 'label': continue
        if i.kind == 'mfma':
            if cur is not None: tot += max(cap, cur)
            cur = 2; n += 1; cap = 8 if len(i.wr) == 16 else 4
        elif cur is not None:
            if i.txt.startswith('s_waitcnt lgkm') and cap == 4: continue
            cur += i.units if not i.txt.startswith('s_nop') else (int(i.txt.split()[1]) + 1) * 0.5
    return tot * 4

def main(out, **kw):
    CFG.update(kw)
    set_layout(CFG.get('l844'))
    CFG['shape0'] = CFG['shape']
    cp = common_prologue()
    if CFG.get('entry', 0):
        if CFG.get('entry', 1) == 1:
            k = next(i for i, x in enumerate(cp.ins) if x.txt == 's_waitcnt lgkmcnt(0)')
            tail = cp.ins[k:]; vmx = list(cp.vm); cp.ins = cp.ins[:k]; cp.vm = []
            common_prologue2(cp); cp.ins += tail; cp.vm += vmx
        else: common_prologue2(cp)
        common_prologue3(cp)
    body = text(cp.ins) + dispatch_text()
    for kind in 'FAM':
        R = build_role(kind, cp.vm)
        ins = fold_regions(fold(R.p.ins, kind), kind) if CFG['fold'] else R.p.ins
        nm = sum(1 for i in R.p.ins if i.kind == 'mfma')
        print(f"role {kind}: stages {len(R.stages)} mfma {nm} instrs {len([i for i in ins if i.kind!='label'])} (unrolled {len([i for i in R.p.ins if i.kind!='label'])}) pad {R.p.npad} forced {R.forced} est {est_cycles(R.p.ins)} ideal {sum(32 if len(i.wr) == 16 else 16 for i in R.p.ins if i.kind == 'mfma')}", file=sys.stderr)
        if CFG.get('abl_pair') and kind in 'AM':
            out_ = []; on = False
            for x in ins:
                if x.kind == 'label' and x.txt.startswith('; PAh'): on = x.txt.startswith('; PAh1')
                if x.kind == 'label' and x.txt.startswith('; P2'): on = False
                if on and (x.kind in ('dma', 'ds') or (x.kind == 'salu' and ('m0' in x.txt or 's70' in x.txt))): continue
                out_.append(x)
            ins = out_
        ab = CFG.get('ablate', '')
        if ab:
            st0 = next(i for i, x in enumerate(ins) if x.txt.startswith('; P1u1b0'))
            def keep(x):
                if 'd' in ab and x.kind == 'dma': return False
                if 'r' in ab and x.kind == 'ds': return False
                if 'v' in ab and x.kind in ('trans',): return False
                if 'V' in ab and x.kind in ('trans', 'valu', 'perm') and not x.txt.startswith(('v_add_u32', 'v_xor', 'v_writelane', 'v_cmp', 'v_cnd', 'v_mov', 'v_lsh', 'v_mad', 'v_min', 'v_and', 'v_bfe', 'v_mul_u32')): return False
                if 'm' in ab and x.kind == 'mfma': return False
                return True
            ins = ins[:st0] + [x for x in ins[st0:] if keep(x)]
        for sp in R.slow: ins = ins + sp.ins
        if CFG['fused']: ins = ins + reducer(kind).ins
        body += f".p2align 6\nL_role{kind}:\n" + text(ins) + f"L_role{kind}_end:\n"
    rk = reduce_kernel()
    mac, body = compress(body)
    if CFG['fused']:
        t = HDR + "; @launch grid=(256,1,1) block=(256,1,1) lds=163840\n"
        t += '.amdgcn_target "amdgcn-amd-amdhsa--gfx950"\n' + mac + f".text\n.globl {KN}\n.p2align 8\n.type {KN},@function\n{KN}:\n" + body
        t += '.section .rodata,"a"\n.p2align 6\n' + kd(KN, 512, 256)
        open(out, 'w').write(t); print("size", len(t), file=sys.stderr); return
    t = HDR + f"; @launch kernel={KN} grid=(256,1,1) block=(256,1,1) lds=163840\n; @launch kernel={RN} grid=(576,1,1) block=(256,1,1) lds=0\n"
    t += '.amdgcn_target "amdgcn-amd-amdhsa--gfx950"\n' + mac + f".text\n.globl {KN}\n.p2align 8\n.type {KN},@function\n{KN}:\n" + body
    t += f".globl {RN}\n.p2align 8\n.type {RN},@function\n{RN}:\n" + text(rk.ins)
    t += '.section .rodata,"a"\n.p2align 6\n' + kd(KN, 512, 256) + ".p2align 6\n" + kd(RN, 104, 104, 102)
    open(out, 'w').write(t)
    print("size", len(t), file=sys.stderr)

if __name__ == "__main__":
    kw = eval("dict(" + (sys.argv[2] if len(sys.argv) > 2 else "") + ")")
    main(sys.argv[1], **kw)
```

```python
import sys, re
from s1 import *

ROLE_TAB = [0, 1, 2, 11, 3, 4, 5, 12, 6, 7, 13, 14, 8, 9, 10, 15]
vPFR = v(36)
vPRG = v(36)
PART = 4 * PWAVE
NPART = 17
NA, NM, NS = 10, 1, 11
def set_layout(new):
    global NPART, NA, NM, NS, ROLE_TAB
    if new:
        NPART, NA, NM, NS = 20, 8, 4, 12
        ROLE_TAB = [0, 1, 8, 12, 2, 3, 9, 13, 4, 5, 10, 14, 6, 7, 11, 15]
WSP_BYTES = NPART * 16 * PART
def PSTR(): return 16 * PART + (CFG.get('pskew', 0) if CFG['fused'] else 0)
sJQ, sQ0, sOA1, sOB1 = s(73), s(59), s(74), s(75)
STAMP_OFF = 0x3000000
CTRL = 0x2F00000
OOB = 0x10000000

def srd(p, dst, lo, nbytes):
    p.emit([smov(dst[0], s(lo)), salu('s_and_b32', dst[1], s(lo + 1), 0xffff), smov(dst[2], nbytes), smov(dst[3], 0x20000)])
def xdma(j):
    return [salu('s_add_u32', 'm0', s(6), j * 4096), salu('s_add_u32', sT, s(7), j * 128)] + [dma(v(16 + q), sX, sT, q * 1024, tag=('x', j)) for q in range(4)]
def mul(d, a_, b_): return salu('s_mul_i32', d, a_, b_, scc_w=False)
def add(d, a_, b_): return salu('s_add_u32', d, a_, b_)
def shl(d, a_, b_): return salu('s_lshl_b32', d, a_, b_)
def shr(d, a_, b_): return salu('s_lshr_b32', d, a_, b_)
def csel(d, a_, b_): return salu('s_cselect_b32', d, a_, b_, scc_w=False, scc_r=True)

def common_prologue():
    if CFG.get('entry', 0) == 0: return common_prologue_old()
    assert CFG['xe'] == 9 and CFG.get('map', 4) == 4
    p = Prog(); E = p.emit
    E(raw("s_load_dwordx8 s[40:47], s[0:1], 0", wr=[s(40, 8)]))
    E(salu('s_cmp_ge_u32', None, s(2), 256))
    E(raw("s_cbranch_scc0 L_go")); E(raw("s_endpgm")); E(label("L_go"))
    if CFG['stamps']:
        E(raw(f"s_memtime {sT0}", wr=[sT0])); E(raw("s_memrealtime s[96:97]", wr=[s(96, 2)]))
    E(valu('v_lshrrev_b32', v(1), 6, v(0)))
    E(salu('s_and_b32', s(3), s(2), 1)); E(shl(s(3), s(3), 3))
    E(valu('v_readfirstlane_b32', sWAVE, v(1)))
    E(shr(sRB, s(2), 5)); E(salu('s_or_b32', sRB, sRB, s(3)))
    E(valu('v_and_b32', v(0), 63, v(0)))
    E(valu('v_lshrrev_b32', vROWN, 3, v(0)))
    E(valu('v_and_b32', v(20), 7, v(0))); E(valu('v_lshrrev_b32', v(21), 4, v(0)))
    E(valu('v_xor_b32', v(22), v(20), v(21))); E(valu('v_xor_b32', v(23), 4, v(22)))
    E(salu('s_movk_i32', s(3), 1152, scc_w=False)); E(valu('v_mul_u32_u24', v(24), s(3), vROWN))
    E(valu('v_lshl_add_u32', v(16), v(22), 4, v(24))); E(valu('v_lshl_add_u32', v(17), v(23), 4, v(24)))
    E(valu('v_add_u32', v(17), 8 * 1152 - 1024, v(17)))
    E(valu('v_add_u32', v(18), 2 * (8 * 1152 - 1024), v(16))); E(valu('v_add_u32', v(19), 2 * (8 * 1152 - 1024), v(17)))
    E(mul(s(6), sWAVE, XW)); E(raw("s_lshl2_add_u32 s7, s64, s62", 'salu', wr=[s(7)], rd=[sRB, sWAVE])); E(mul(sT, s(7), 32 * 1152))
    E(smov('m0', s(6))); E(add(s(7), sT, 9 * 128))
    E(smov(sX[2], 2359296)); E(smov(sX[3], 0x20000))
    E(raw("s_waitcnt lgkmcnt(0)"))
    E(smov(sX[0], s(40))); E(salu('s_and_b32', sX[1], s(41), 0xffff))
    E(label("L_xl"))
    n0 = len(p.vm)
    for q in range(4): E(dma(v(16 + q), sX, sT, q * 1024))
    del p.vm[n0:]
    for j in range(9): p.vm += [('x', j)] * 4
    E(add(sT, sT, 128)); E(add('m0', 'm0', 4096)); E(salu('s_cmp_lt_u32', None, sT, s(7))); E(raw("s_cbranch_scc1 L_xl"))
    return p
def common_prologue2(p):
    E = p.emit
    tab = ROLE_TAB
    lo = sum(tab[i] << (4 * i) for i in range(8)); hi = sum(tab[8 + i] << (4 * i) for i in range(8))
    E(salu('s_bfe_u32', s(3), s(2), (2 << 16) | 3)); E(salu('s_bfe_u32', s(4), s(2), (1 << 16) | 1))
    E(shl(s(4), s(4), 2)); E(salu('s_or_b32', s(3), s(3), s(4))); E(shl(s(3), s(3), 2))
    E(salu('s_bitcmp1_b32', None, s(2), 2))
    E(smov(s(4), lo)); E(csel(s(4), hi, s(4)))
    E(shr(s(4), s(4), s(3))); E(salu('s_and_b32', sROLE, s(4), 15))
    E(raw(f"s_getpc_b64 {sPC}", wr=[sPC])); E(label("L_pc"))
    E(smov(s(4), "L_roleA-L_pc")); E(smov(s(5), "L_roleA_end-L_pc-4"))
    E(salu('s_cmp_ge_u32', None, sROLE, NA)); E(csel(s(4), "L_roleM-L_pc", s(4))); E(csel(s(5), "L_roleM_end-L_pc-4", s(5)))
    E(salu('s_cmp_ge_u32', None, sROLE, NA + NM)); E(csel(s(4), "L_roleF-L_pc", s(4))); E(csel(s(5), "L_roleF_end-L_pc-4", s(5)))
    n0 = CFG.get('code0', 16); NL = CFG.get('codelines', 24)
    if n0:
        E(mul(s(3), sWAVE, n0 * 128)); E(add(s(3), s(3), s(4)))
        E(valu('v_min_u32', v(2), n0 - 1, v(0))); E(valu('v_lshlrev_b32', v(2), 7, v(2))); E(valu('v_add_u32', v(2), s(3), v(2)))
        E(I(f"global_load_dword {vDUM}, v2, {sPC}", 'vload', wr=vDUM.regs(), rd=vr(2) + sPC.regs(), tag='pf'))
    E(salu('s_and_b32', s(3), sRB, 7)); E(shl(s(3), s(3), 2)); E(add(s(3), s(3), sWAVE))
    E(mul(s(3), s(3), NL * 128)); E(add(s(3), s(3), s(4)))
    E(valu('v_min_u32', v(2), NL - 1, v(0))); E(valu('v_lshlrev_b32', v(2), 7, v(2))); E(valu('v_add_u32', v(2), s(3), v(2)))
    E(valu('v_min_u32', v(3), s(5), v(2)))
    E(I(f"global_load_dword {vDUM}, v3, {sPC}", 'vload', wr=vDUM.regs(), rd=vr(3) + sPC.regs(), tag='pf'))
def common_prologue3(p):
    E = p.emit
    E(raw("s_load_dwordx2 s[48:49], s[0:1], 32", wr=[s(48, 2)]))
    E(raw("s_load_dwordx8 s[52:59], s[0:1], 48", wr=[s(52, 8)]))
    E(raw("s_load_dwordx2 s[50:51], s[0:1], 80", wr=[s(50, 2)]))
    srd(p, sK, 42, 8388608); srd(p, sV, 44, 8388608); srd(p, sWQ, 46, 4718592)
    E(mul(sW8704, sWAVE, 8 * PP)); E(mul(sWC, sWAVE, PP)); E(add(sWC, sWC, 32 * PP))
    E(shl(sW8192, sWAVE, 13)); E(shl(sWCH, sWAVE, 10)); E(add(sWCH, sWCH, 32768))
    E(mul(sW2176, sWAVE, 2 * PP)); E(mul(sW4352, sWAVE, 4 * PP)); E(add(sWA2, sW2176, 16 * PP))
    E(raw("s_waitcnt lgkmcnt(0)"))
    srd(p, sWO, 48, 4718592)
    srd(p, sW1, 52, 5308416); srd(p, sW2, 54, 5308416); srd(p, sWS, 50, 0x10000000 if (CFG['stamps'] or CFG['fused']) else WSP_BYTES)
    srd(p, sOUT, 56, 2359296); srd(p, sDBG, 58, 256)

def common_prologue_old():
    p = Prog(); E = p.emit
    E(salu('s_cmp_ge_u32', None, s(2), 256))
    E(raw("s_cbranch_scc0 L_go")); E(raw("s_endpgm")); E(label("L_go"))
    E(raw("s_load_dwordx8 s[40:47], s[0:1], 0", wr=[s(40, 8)]))
    E(raw("s_load_dwordx2 s[48:49], s[0:1], 32", wr=[s(48, 2)]))
    E(raw("s_load_dwordx8 s[52:59], s[0:1], 48", wr=[s(52, 8)]))
    E(raw("s_load_dwordx2 s[50:51], s[0:1], 80", wr=[s(50, 2)]))
    if CFG['stamps']:
        E(raw(f"s_memtime {sT0}", wr=[sT0])); E(raw("s_memrealtime s[96:97]", wr=[s(96, 2)]))
    tab = ROLE_TAB
    if CFG.get('map', 4) == 2:
        t2 = [0, 1, 2, 3, 4, 11, 5, 12, 6, 13, 7, 14, 8, 15, 9, 10]
        lo = sum(t2[i] << (4 * i) for i in range(8)); hi = sum(t2[8 + i] << (4 * i) for i in range(8))
        E(salu('s_bfe_u32', s(3), s(2), (1 << 16) | 3)); E(salu('s_and_b32', s(4), s(2), 3)); E(shl(s(4), s(4), 1)); E(salu('s_or_b32', s(3), s(3), s(4))); E(shl(s(3), s(3), 2))
        E(salu('s_bitcmp1_b32', None, s(2), 2)); E(smov(s(4), lo)); E(csel(s(4), hi, s(4)))
        E(shr(s(4), s(4), s(3))); E(salu('s_and_b32', sROLE, s(4), 15)); E(shr(sRB, s(2), 4))
    else:
        lo = sum(tab[i] << (4 * i) for i in range(8)); hi = sum(tab[8 + i] << (4 * i) for i in range(8))
        E(salu('s_bfe_u32', s(3), s(2), (2 << 16) | 3)); E(salu('s_bfe_u32', s(4), s(2), (1 << 16) | 1))
        E(shl(s(4), s(4), 2)); E(salu('s_or_b32', s(3), s(3), s(4))); E(shl(s(3), s(3), 2))
        E(salu('s_bitcmp1_b32', None, s(2), 2))
        E(smov(s(4), lo)); E(csel(s(4), hi, s(4)))
        E(shr(s(4), s(4), s(3))); E(salu('s_and_b32', sROLE, s(4), 15))
        E(salu('s_and_b32', s(3), s(2), 1)); E(shl(s(3), s(3), 3))
        E(shr(sRB, s(2), 5)); E(salu('s_or_b32', sRB, sRB, s(3)))
    E(valu('v_lshrrev_b32', v(1), 6, v(0)))
    E(valu('v_readfirstlane_b32', sWAVE, v(1)))
    E(valu('v_and_b32', v(0), 63, v(0)))
    E(valu('v_lshrrev_b32', vROWN, 3, v(0)))
    E(valu('v_and_b32', v(20), 7, v(0))); E(valu('v_lshrrev_b32', v(21), 4, v(0)))
    E(valu('v_xor_b32', v(22), v(20), v(21))); E(valu('v_xor_b32', v(23), 4, v(22)))
    E(smov(s(3), 1152)); E(valu('v_mul_u32_u24', v(24), s(3), vROWN))
    E(valu('v_lshl_add_u32', v(16), v(22), 4, v(24))); E(valu('v_lshl_add_u32', v(17), v(23), 4, v(24)))
    E(valu('v_add_u32', v(17), 8 * 1152 - 1024, v(17)))
    E(valu('v_add_u32', v(18), 2 * (8 * 1152 - 1024), v(16))); E(valu('v_add_u32', v(19), 2 * (8 * 1152 - 1024), v(17)))
    E(mul(s(6), sWAVE, XW))
    E(shl(s(7), sRB, 2)); E(add(s(7), s(7), sWAVE)); E(mul(s(7), s(7), 32 * 1152))
    E(raw(f"s_getpc_b64 {sPC}", wr=[sPC])); E(label("L_pc"))
    E(smov(s(4), "L_roleA-L_pc")); E(smov(s(5), "L_roleA_end-L_pc-4"))
    E(salu('s_cmp_ge_u32', None, sROLE, NA)); E(csel(s(4), "L_roleM-L_pc", s(4))); E(csel(s(5), "L_roleM_end-L_pc-4", s(5)))
    E(salu('s_cmp_ge_u32', None, sROLE, NA + NM)); E(csel(s(4), "L_roleF-L_pc", s(4))); E(csel(s(5), "L_roleF_end-L_pc-4", s(5)))
    def code_pf():
        NL = CFG.get('codelines', 24)
        E(salu('s_and_b32', s(3), sRB, 7)); E(shl(s(3), s(3), 2)); E(add(s(3), s(3), sWAVE))
        E(mul(s(3), s(3), NL * 128)); E(add(s(3), s(3), s(4)))
        E(valu('v_min_u32', v(2), NL - 1, v(0))); E(valu('v_lshlrev_b32', v(2), 7, v(2))); E(valu('v_add_u32', v(2), s(3), v(2)))
        E(valu('v_min_u32', v(3), s(5), v(2)))
        E(I(f"global_load_dword {vDUM}, v3, {sPC}", 'vload', wr=vDUM.regs(), rd=vr(3) + sPC.regs(), tag='pf'))
    if CFG.get('codepf', 3) >= 3:
        n0 = CFG.get('code0', 16)
        if n0:
            E(mul(s(3), sWAVE, n0 * 128)); E(add(s(3), s(3), s(4)))
            E(valu('v_min_u32', v(2), n0 - 1, v(0))); E(valu('v_lshlrev_b32', v(2), 7, v(2))); E(valu('v_add_u32', v(2), s(3), v(2)))
            E(I(f"global_load_dword {vDUM}, v2, {sPC}", 'vload', wr=vDUM.regs(), rd=vr(2) + sPC.regs(), tag='pf'))
        code_pf()
    E(raw("s_waitcnt lgkmcnt(0)"))
    srd(p, sX, 40, 2359296)
    nx0 = CFG.get('tx', 2) if CFG.get('touch') else 0
    for j in range(nx0): E(xdma(j))
    if CFG.get('touch'):
        E(salu('s_cmp_gt_u32', None, sROLE, 10))
        E(raw("s_cselect_b64 s[60:61], s[52:53], s[46:47]", 'salu', wr=[s(60, 2)], rd=[s(52, 2), s(46, 2)]))
        E(raw("s_cselect_b64 s[66:67], s[54:55], s[48:49]", 'salu', wr=[s(66, 2)], rd=[s(54, 2), s(48, 2)]))
        E(salu('s_cmp_eq_u32', None, sWAVE, 1)); E(raw("s_cselect_b64 s[60:61], s[66:67], s[60:61]", 'salu', wr=[s(60, 2)], rd=[s(66, 2), s(60, 2)]))
        E(salu('s_cmp_eq_u32', None, sWAVE, 2)); E(raw("s_cselect_b64 s[60:61], s[42:43], s[60:61]", 'salu', wr=[s(60, 2)], rd=[s(42, 2), s(60, 2)]))
        E(salu('s_cmp_eq_u32', None, sWAVE, 3)); E(raw("s_cselect_b64 s[60:61], s[44:45], s[60:61]", 'salu', wr=[s(60, 2)], rd=[s(44, 2), s(60, 2)]))
        E(smov(s(3), 73728)); E(salu('s_cmp_ge_u32', None, sWAVE, 2)); E(csel(s(3), 131072, s(3)))
        E(valu('v_mul_u32_u24', v(2), s(3), v(0)))
        E(I(f"global_load_dword {vDUM}, v2, s[60:61]", 'vload', wr=vDUM.regs(), rd=vr(2) + sr(60, 2), tag='pf'))
    for j in range(nx0, CFG['xe']): E(xdma(j))
    if CFG.get('codepf', 3) == 1: code_pf()
    if CFG.get('codepf', 3) == 2:
        E(valu('v_mov_b32', v(46), v(3))); E(raw(f"s_mov_b64 s[100:101], {sPC}", 'salu', wr=[s(100, 2)], rd=[sPC]))
    srd(p, sK, 42, 8388608); srd(p, sV, 44, 8388608); srd(p, sWQ, 46, 4718592); srd(p, sWO, 48, 4718592)
    srd(p, sW1, 52, 5308416); srd(p, sW2, 54, 5308416); srd(p, sWS, 50, 0x10000000 if (CFG['stamps'] or CFG['fused']) else WSP_BYTES)
    srd(p, sOUT, 56, 2359296); srd(p, sDBG, 58, 256)
    E(mul(sW8704, sWAVE, 8 * PP)); E(mul(sWC, sWAVE, PP)); E(add(sWC, sWC, 32 * PP))
    E(shl(sW8192, sWAVE, 13)); E(shl(sWCH, sWAVE, 10)); E(add(sWCH, sWCH, 32768))
    E(mul(sW2176, sWAVE, 2 * PP)); E(mul(sW4352, sWAVE, 4 * PP)); E(add(sWA2, sW2176, 16 * PP))
    return p

def dispatch_text():
    return f""" s_cmp_ge_u32 {sROLE}, {NA + NM}
 s_cbranch_scc1 L_roleF
 s_cmp_ge_u32 {sROLE}, {NA}
 s_getpc_b64 s[94:95]
L_pc2:
 s_cbranch_scc1 L_jM
 s_add_u32 s94, s94, L_roleA-L_pc2
 s_addc_u32 s95, s95, 0
 s_setpc_b64 s[94:95]
L_jM:
 s_add_u32 s94, s94, L_roleM-L_pc2
 s_addc_u32 s95, s95, 0
 s_setpc_b64 s[94:95]
"""

def pfload(srd_, base):
    ld = bload('buffer_load_dword', vDUM, vPF, srd_, base); ld.tag = 'pf'; return ld
def pf_lin(srd_, base_s, start, nbytes, nl=64):
    def f():
        return [valu('v_lshrrev_b32', vPF2, 16, vTID), valu('v_and_b32', vPF, 63, vTID), valu('v_min_u32', vPF, nl - 1, vPF),
                valu('v_mad_u32_u24', vPF, vPF2, nl, vPF), valu('v_lshlrev_b32', vPF, 7, vPF), valu('v_add_u32', vPF, start, vPF),
                valu('v_min_u32', vPF, nbytes - 128, vPF), pfload(srd_, base_s)]
    return f
def pf_run(srd_, base_s, nbytes, nl):
    def f():
        return [valu('v_min_u32', vPF, nbytes - 128, vPFR), valu('v_add_u32', vPFR, 64 * nl * 128, vPFR), pfload(srd_, base_s)]
    f.nl = nl
    return f
def vPFW(kind): return {'F': v(8), 'A': v(7), 'M': v(36)}[kind]
def pf_row(kind, srd_, step=128):
    def f():
        ld = bload('buffer_load_dword', vDUM, vPFW(kind), srd_, sPW); ld.tag = 'pf'
        return [add(sPW, sPW, step), ld]
    return f
def pf_row_setup(kind, pitch, nl, base, lit):
    r = vPFW(kind)
    return [valu('v_bfe_u32', vPF2, vTID, 16, 5), valu('v_and_b32', r, 63, vTID), valu('v_min_u32', r, nl - 1, r),
            valu('v_mad_u32_u24', r, vPF2, nl, r), smov(sT2, pitch), valu('v_mul_u32_u24', r, sT2, r), add(sPW, base, lit)]
def pf_code(la, lb, nl):
    def f():
        L = f"L_cp{pf_code.k}"; pf_code.k += 1
        ld = I(f"global_load_dword {vDUM}, {vPF}, {sPC}", 'vload', wr=vDUM.regs(), rd=vPF.regs() + sPC.regs(), units=3, tag='pf')
        return [raw(f"s_getpc_b64 {sPC}", 'salu', wr=[sPC]), label(L),
                salu('s_add_u32', sPC[0], sPC[0], f"{la}-{L}"), salu('s_addc_u32', sPC[1], sPC[1], 0, scc_r=True),
                valu('v_bfe_u32', vPF2, vTID, 16, 5), valu('v_and_b32', vPF, 63, vTID), valu('v_min_u32', vPF, nl - 1, vPF),
                valu('v_mad_u32_u24', vPF, vPF2, nl, vPF), valu('v_lshlrev_b32', vPF, 7, vPF), valu('v_min_u32', vPF, f"{lb}-{la}-4", vPF), ld]
    return f
pf_code.k = 0
def pf_sched(R, k0, srd_, base_s, nbytes, nl):
    per = 64 * nl * 128; k = k0
    for st in range(0, nbytes, per):
        R.pf.setdefault(k, []).append(pf_lin(srd_, base_s, st, nbytes, nl)); k += 1
    return k

def role_prologue(R, vm_before):
    p = R.p; E = p.emit; kind = R.kind
    p.vm = list(vm_before)
    MS = CFG['shape'] == 'M'
    def PS(k):
        if CFG['stamps'] == 1: R.stamp(k)
    PS(56)
    lane = v(0)
    E(shl(sT2, sRB, 2)); E(add(sT2, sT2, sWAVE)); E(shl(sT2, sT2, 16)); E(valu('v_or_b32', vTID, sT2, lane))
    if kind in 'AM' and CFG.get('pair'):
        sHP_, sHS_ = s(86), s(85)
        if CFG.get('l844'): E(shl(sHP_, sROLE, 1)); E(add(sHP_, sHP_, 8))
        else: E(mul(sHP_, sROLE, 3))
        if kind == 'A':
            sHP_, sHS_ = sFA, sFC
            E(mul(sHS_, sROLE, 3)); E(salu('s_and_b32', s(4), sROLE, 1)); E(add(sHP_, sHS_, s(4)))
            E(shl(s(4), s(4), 1)); E(add(sHS_, sHS_, 2)); E(salu('s_sub_u32', sHS_, sHS_, s(4)))
            E(salu('s_sub_u32', sJQ, sHS_, sHP_)); E(shl(sJQ, sJQ, 8)); E(salu('s_sub_u32', sJQ, sJQ, 3 * 128))
        E(shl(sQ0, sHP_, 8))
        E(mul(sQA, sWAVE, 64 * 8192)); E(add(sQA, sQA, sQ0))
        E(shl(sQC, sWAVE, 16)); E(add(sQC, sQC, sQ0)); E(add(sQC, sQC, 256 * 8192))
        E(shr(s(3), sWAVE, 1)); E(shl(s(3), s(3), 13)); E(salu('s_and_b32', s(4), sWAVE, 1)); E(shl(s(4), s(4), 11)); E(add(s(3), s(3), s(4)))
        E(salu('s_sub_u32', s(3), s(3), 64)); E(shl(s(4), sWAVE, 11))
        for e, (h_, pfr) in enumerate([(sHP_, sPFa), (sHS_, sPFb)][:2 if kind == 'A' else 1]):
            E(shr(pfr, h_, 1)); E(shl(pfr, pfr, 19)); E(add(pfr, pfr, 1536 * 256))
            E(add(sKb[e], pfr, s(4))); E(add(sVb[e], pfr, s(3)))
        E(mul(sPFc, sROLE, 384 * 1152) if kind == 'A' else mul(sPFc, sHP_, 128 * 1152))
        if kind == 'A':
            E(mul(sHP_, sHP_, 128 * 1152)); E(mul(sHS_, sHS_, 128 * 1152))
            E(mul(sOA, sWAVE, 32 * 1152)); E(add(sOA1, sOA, sHS_)); E(add(sOA, sOA, sHP_))
            E(salu('s_sub_u32', sOA1, sOA1, 64 * 1152)); E(add(sT3, sOA, 192 * 1152)); E(salu('s_cmp_lt_u32', None, sWAVE, 2)); E(csel(sOA1, sT3, sOA1))
            E(shr(s(3), sWAVE, 1)); E(shl(s(3), s(3), 2)); E(salu('s_and_b32', s(4), sWAVE, 1)); E(add(s(3), s(3), s(4)))
            E(mul(sOB, s(3), 8 * 1152)); E(add(sOB1, sOB, sHS_)); E(add(sOB1, sOB1, 64 * 1152)); E(add(sOB, sOB, sHP_)); E(add(sOB, sOB, 128 * 1152))
        else:
            E(mul(sOA, sWAVE, 64 * 1152)); E(add(sOA, sOA, sPFc))
    elif kind in 'AM':
        E(mul(sT3, sROLE, 3 * 256))
        E(mul(sQA, sWAVE, 64 * 8192)); E(add(sQA, sQA, sT3))
        E(shl(sQC, sWAVE, 16)); E(add(sQC, sQC, sT3)); E(add(sQC, sQC, 256 * 8192))
        E(shr(s(3), sWAVE, 1)); E(shl(s(3), s(3), 13)); E(salu('s_and_b32', s(4), sWAVE, 1)); E(shl(s(4), s(4), 11)); E(add(s(3), s(3), s(4)))
        E(salu('s_sub_u32', s(3), s(3), 64)); E(shl(s(4), sWAVE, 11))
        if MS: E(shl(s(3), sWAVE, 12))
        for e in range(3 if kind == 'A' else 2):
            E(mul(sT3, sROLE, 3)); E(add(sT3, sT3, e)); E(shr(sT3, sT3, 1)); E(shl(sT3, sT3, 19)); E(add(sT3, sT3, 1536 * 256))
            if e == 0: E(smov(sPFa, sT3))
            if e == (2 if kind == 'A' else 1): E(smov(sPFb, sT3))
            E(add(sKb[e], sT3, s(4))); E(add(sVb[e], sT3, s(3)))
        E(mul(sPFc, sROLE, 384 * 1152))
        if kind == 'A':
            E(mul(sOA, sWAVE, 32 * 1152)); E(add(sOA, sOA, sPFc))
            E(shr(s(3), sWAVE, 1)); E(shl(s(3), s(3), 2)); E(salu('s_and_b32', s(4), sWAVE, 1)); E(add(s(3), s(3), s(4)))
            E(mul(sOB, s(3), 8 * 1152)); E(add(sOB, sOB, sPFc)); E(add(sOB, sOB, 128 * 1152))
        else:
            E(mul(sOA, sWAVE, 64 * 1152)); E(add(sOA, sOA, sPFc))
    if kind in 'FM':
        if kind == 'F':
            E(salu('s_sub_u32', s(3), sROLE, NA + NM)); E(mul(sPF1, s(3), 13 * 128)); E(shl(sPF1h, s(3), 6)); E(add(sPF1h, sPF1h, 69 * 128))
        elif CFG.get('l844'):
            E(mul(sPF1, sROLE, 5 * 128)); E(add(sPF1, sPF1, (52 - 40) * 128)); E(smov(sPF1h, sPF1))
        else:
            E(smov(sPF1, f_fullcol(5) * 2)); E(smov(sPF1h, f_halfcol(5) * 2))
        E(mul(sHA, sWAVE, 64 * 9216)); E(add(sHA, sHA, sPF1))
        E(mul(sHC, sWAVE, 8 * 9216)); E(add(sHC, sHC, sPF1)); E(add(sHC, sHC, 256 * 9216))
        E(mul(sHH, sWAVE, 128 * 9216)); E(add(sHH, sHH, sPF1h))
        E(mul(sHHC, sWAVE, 16 * 9216)); E(add(sHHC, sHHC, sPF1h)); E(add(sHHC, sHHC, 512 * 9216))
        E(mul(sPF2, sPF1, 576)); E(mul(sPF2h, sPF1h, 576))
        E(mul(sFA, sWAVE, 64 * 1152)); E(add(sFA, sFA, sPF2))
        if MS:
            E(salu('s_and_b32', s(3), sWAVE, 1)); E(shl(s(3), s(3), 1)); E(shr(s(4), sWAVE, 1)); E(add(s(3), s(3), s(4))); E(mul(sFC, s(3), 8 * 1152))
        else: E(mul(sFC, sWAVE, 4 * 1152))
        E(add(sFS, sFC, sPF2h)); E(add(sFC, sFC, sPF2)); E(add(sFC, sFC, 256 * 1152))
    if CFG['pf'] >= 3:
        if kind in 'AM': E(mul(sT3, sROLE, 3 * 256) if not CFG.get('pair') else smov(sT3, sQ0))
        E(pf_row_setup(kind, 8192 if kind in 'AM' else 9216, 18, sT3 if kind in 'AM' else sPF1, 0))
        f_ = pf_row(kind, sWQ if kind in 'AM' else sW1)
        early_pf = [f_()[1]] + f_() + f_()
    E(add(sT3, sROLE, NS - NA if kind == 'F' else 0))
    E(mul(sSt, sT3, PSTR())); E(shl(sT3, sRB, 2)); E(add(sT3, sT3, sWAVE)); E(mul(sT3, sT3, PWAVE)); E(add(sSt, sSt, sT3))
    if kind == 'M': E(add(sSt2, sSt, (NS - NA) * PSTR()))
    if CFG['fused']:
        E(shl(sT2, sRB, 14)); E(add(sT2, sT2, CTRL))
        E(add(sT3, sROLE, NS - NA if kind == 'F' else 0)); E(shl(sT3, sT3, 2)); E(add(sT3, sT3, sT2))
        E(salu('s_cmp_eq_u32', None, sWAVE, 0)); E(csel(sT3, sT3, OOB)); E(csel(sT2, sT2, OOB))
        E(valu('v_and_b32', v(24), 15, lane)); E(valu('v_lshlrev_b32', v(25), 7, v(24))); E(valu('v_add_u32', v(25), 128, v(25)))
        E(raw("v_cmp_eq_u32 vcc, 0, v24", 'valu', wr=['vcc'], rd=[v(24)])); E(valu('v_cndmask_b32', v(25), v(25), 0, 'vcc') if False else raw("v_cndmask_b32 v25, v25, v24, vcc", 'valu', wr=[v(25)], rd=[v(25), v(24), 'vcc']))
        E(valu('v_lshrrev_b32', v(26), 4, lane)); E(valu('v_lshl_add_u32', v(25), v(26), 2 + (NS - NA).bit_length() - 1, v(25))); E(valu('v_add_u32', v(25), sT3, v(25)))
        E(raw(f"s_mov_b64 vcc, {hex(((1 << (NA + 1)) - 1) * (0x10001 if kind == 'M' else 1))}", 'salu', wr=['vcc'])); E(valu('v_mov_b32', vCT, OOB)); E(nop(1))
        E(raw(f"v_cndmask_b32 {vCT}, {vCT}, v25, vcc", 'valu', wr=[vCT], rd=[vCT, v(25), 'vcc']))
        E(valu('v_mov_b32', v(24), vCT))
        if kind == 'A':
            E(salu('s_cmp_eq_u32', None, sROLE, 0)); E(csel(sT2, sT2, OOB))
            E(valu('v_lshl_add_u32', v(25), lane, 2, sT2))
            E(raw(f"v_cmp_lt_u32 vcc, {NPART - 1}, v0", 'valu', wr=['vcc'], rd=[lane])); E(valu('v_cndmask_b32', v(24), v(24), v(25), 'vcc'))
        E(valu('v_mov_b32', v(25), 0))
        z = bstore('buffer_store_dword', v(25), v(24), sWS, 0, flags='sc1'); z.tag = 'zero'; E(z)
        E(shl(sT2, sRB, 4)); E(salu('s_cmp_eq_u32', None, sWAVE, 0)); E(csel(sT2, sT2, 256))
        E(valu('v_mov_b32', v(23), 256)); E(raw(f"v_writelane_b32 v23, {sT2}, 0", 'valu', wr=[v(23)], rd=[sT2, v(23)]))
    T_ = [v(24), v(25), v(26), v(27), v(28), v(29)]
    q, r, c4, rb1 = T_[0], T_[1], T_[2], T_[3]
    E(valu('v_lshrrev_b32', q, 4, lane)); E(valu('v_bfe_u32', r, lane, 2, 2)); E(valu('v_and_b32', c4, 3, lane)); E(valu('v_bfe_u32', rb1, lane, 3, 1))
    E(valu('v_and_b32', T_[4], 7, lane)); E(valu('v_bfe_u32', T_[5], lane, 4, 1)); E(valu('v_lshlrev_b32', T_[5], 1, T_[5]))
    E(valu('v_xor_b32', T_[4], T_[4], T_[5])); E(valu('v_lshlrev_b32', vSWZ, 4, T_[4]))
    E(valu('v_lshrrev_b32', T_[4], 5, lane)); E(valu('v_and_b32', T_[5], 3, vROWN)); E(valu('v_lshl_add_u32', vROWP, T_[4], 4, T_[5]))
    E(smov(sT2, PP)); E(valu('v_mul_u32_u24', T_[4], sT2, q)); E(valu('v_lshl_add_u32', T_[4], r, 7, T_[4]))
    E(valu('v_lshl_add_u32', T_[4], c4, 3, T_[4])); E(valu('v_lshl_add_u32', vRW[0][0], rb1, 5, T_[4]))
    E(valu('v_mov_b32', vDP, vRW[0][0]))
    if MS:
        E(valu('v_and_b32', T_[4], 7, lane)); E(valu('v_bfe_u32', T_[5], lane, 4, 1)); E(valu('v_lshlrev_b32', T_[5], 2, T_[5]))
        E(valu('v_xor_b32', T_[4], T_[4], T_[5])); E(valu('v_lshlrev_b32', vSWZM, 4, T_[4]))
        E(valu('v_bfe_u32', q, lane, 4, 1)); E(valu('v_lshlrev_b32', q, 5, q))
        E(valu('v_and_b32', T_[4], 1, lane)); E(valu('v_lshl_add_u32', q, T_[4], 4, q))
        E(valu('v_bfe_u32', T_[4], lane, 1, 1)); E(valu('v_lshl_add_u32', q, T_[4], 3, q))
        E(valu('v_lshrrev_b32', T_[5], 5, lane))
        E(smov(sT2, PP)); E(valu('v_mad_u32_u24', T_[4], T_[5], sT2, q)); E(valu('v_lshl_add_u32', T_[4], r, 7, T_[4]))
        E(valu('v_lshl_add_u32', vRW[0][0], rb1, 6, T_[4])); E(valu('v_xor_b32', rb1, 1, rb1)); E(valu('v_lshl_add_u32', vRW[0][1], rb1, 6, T_[4]))
        if kind in 'FM':
            E(valu('v_lshl_add_u32', vRH[0], T_[5], 9, q)); E(valu('v_lshl_add_u32', vRH[0], r, 6, vRH[0]))
            E(valu('v_lshlrev_b32', T_[4], 4, c4)); E(valu('v_lshrrev_b32', T_[5], 2, lane)); E(smov(sT2, 9216))
            E(valu('v_mad_u32_u24', vOFFH, T_[5], sT2, T_[4]))
        E(valu('v_lshrrev_b32', q, 4, lane))
    else:
        E(valu('v_xor_b32', vRW[0][1], 32, vRW[0][0]))
    for b in (1, 2):
        for T in range(2): E(valu('v_add_u32', vRW[b][T], 65536 * b, vRW[0][T]))
    if kind in 'FM' and not MS:
        E(valu('v_lshlrev_b32', T_[4], 9, q)); E(valu('v_lshl_add_u32', T_[4], r, 6, T_[4])); E(valu('v_lshl_add_u32', T_[4], c4, 3, T_[4]))
        E(valu('v_and_b32', T_[5], 1, q)); E(valu('v_lshl_add_u32', vRH[0], T_[5], 5, T_[4])); E(valu('v_xor_b32', vRH[1], 32, vRH[0]))
        E(valu('v_lshrrev_b32', T_[4], 5, lane)); E(valu('v_lshlrev_b32', T_[4], 1, T_[4])); E(valu('v_xor_b32', T_[4], T_[4], c4))
        E(valu('v_lshlrev_b32', T_[4], 4, T_[4])); E(valu('v_lshrrev_b32', T_[5], 2, lane)); E(smov(sT2, 9216))
        E(valu('v_mad_u32_u24', vOFFH, T_[5], sT2, T_[4]))
    if kind in 'AM':
        E(valu('v_and_b32', T_[4], 15, lane)); E(valu('v_xor_b32', T_[4], T_[4], q)); E(valu('v_lshlrev_b32', T_[4], 4, T_[4]))
        E(valu('v_lshl_add_u32', vOFFK, q, 8, T_[4]))
    E(set_offw(8192 if kind in 'AM' else 9216, 'M' if MS else 'S'))
    if MS:
        XA = [v(20), v(21), v(22), v(39)]
        E(valu('v_and_b32', T_[4], 31, lane)); E(valu('v_bfe_u32', T_[5], lane, 1, 3)); E(valu('v_lshrrev_b32', q, 5, lane)); E(valu('v_xor_b32', T_[5], T_[5], q))
        E(valu('v_lshlrev_b32', T_[4], 7, T_[4])); E(valu('v_add_u32', T_[4], s(6), T_[4]))
        E(valu('v_lshl_add_u32', XA[0], T_[5], 4, T_[4]))
        for tt in range(1, 4): E(valu('v_xor_b32', XA[tt], 32 * tt, XA[0]))
    else:
        E(valu('v_and_b32', T_[4], 15, lane)); E(valu('v_bfe_u32', T_[5], lane, 1, 3)); E(valu('v_xor_b32', T_[5], T_[5], q))
        E(valu('v_lshlrev_b32', T_[4], 7, T_[4])); E(valu('v_add_u32', T_[4], s(6), T_[4]))
        E(valu('v_lshl_add_u32', v(20), T_[5], 4, T_[4])); E(valu('v_xor_b32', v(21), 64, v(20)))
        if kind in 'AM':
            E(smov(sT2, PP)); E(valu('v_mul_u32_u24', v(22), sT2, r)); E(valu('v_lshl_add_u32', v(22), c4, 8, v(22)))
            E(valu('v_xor_b32', T_[4], q, c4)); E(valu('v_lshl_add_u32', v(22), T_[4], 4, v(22)))
    E(valu('v_lshlrev_b32', vLANE16, 4, lane))
    if CFG['stamps'] == 2: E(valu('v_mov_b32', vSTAMP, 0))
    if CFG['fused'] and CFG.get('rep') and kind in 'FM':
        E(rep_addr(kind, v(24), v(25))); E(valu('v_mov_b32', v(25), 0))
        z = bstore('buffer_store_dword', v(25), v(24), sWS, 0, flags='sc1'); z.tag = 'zero'; E(z)
    SA = 28
    for i in range(8): E(valu('v_mov_b32', v(SA + i), 0))
    E(smov(sT2, 0x3f803f80))
    def stats(j):
        for tt in range(2):
            for g in range(2):
                for qd in range(4):
                    x = X(2 * j + tt, g)[qd]
                    E(valu('v_dot2c_f32_bf16', v(SA + 2 * g + (qd & 1)), sT2, x, rmw=True))
                    E(valu('v_dot2c_f32_bf16', v(SA + 4 + 2 * g + (qd & 1)), x, x, rmw=True))
    PS(57)
    for j in range(9):
        E(waitvm(p.vm_wait_for(lambda t: t == ('x', j))))
        if j == 0: PS(58)
        if MS:
            for tt in range(4): E(ds_b128(XM(4 * j + tt), XA[tt], j * 4096))
        else:
            for tt in range(2):
                for g in range(2): E(ds_b128(X(2 * j + tt, g), v(20 + tt), j * 4096 + g * 2048))
        if j + CFG['xe'] < 9: E(xdma(j + CFG['xe']))
        if CFG['pf'] >= 3 and CFG.get('epf', 1) == 1 and j == max(8 - CFG['xe'], 0): E(early_pf)
        if j >= 1:
            E(waitlg(4)); stats(j - 1)
    E(waitlg(0)); PS(59); E(barrier())
    if CFG.get('codepf', 3) == 2: E(I(f"global_load_dword {vDUM}, v46, s[100:101]", 'vload', wr=vDUM.regs(), rd=vr(46) + sr(100, 2), tag='pf'))
    if CFG['pf'] >= 3 and CFG.get('epf', 1) == 2: E(early_pf)
    pend = []
    for k in range(3):
        st = R.stages[k]
        if st.pre_dma: pend.append(st.pre_dma())
        pend += st.dma(k, False)
    d0 = CFG.get('d0', 9)
    for it in pend[:d0]: E(it)
    pend = pend[d0:]
    PS(60)
    stats(8)
    acc4 = [v(28), v(30), v(32), v(34)]
    for x in acc4: E(valu('v_add_f32', x, x, v(x.n + 1)))
    if MS:
        for b_ in (0, 2):
            E(valu('v_add_f32', acc4[b_], acc4[b_], acc4[b_ + 1]))
        for b_ in (0, 2): E(valu('v_mov_b32', acc4[b_ + 1], acc4[b_]))
    for op in (('v_permlane32_swap_b32',) if MS else ('v_permlane16_swap_b32', 'v_permlane32_swap_b32')):
        for x in acc4: E(valu('v_mov_b32', v(x.n + 1), x))
        for x in acc4: E(valu(op, x, v(x.n + 1), rmw=True, extra_wr=[v(x.n + 1)]))
        for x in acc4: E(valu('v_add_f32', x, x, v(x.n + 1)))
    for x in acc4: E(valu('v_mul_f32', x, f2u(1.0 / 576), x))
    for g in range(2): E(valu('v_fma_f32', acc4[2 + g], '-' + str(acc4[g]), acc4[g], acc4[2 + g]))
    for g in range(2): E(valu('v_max_f32', acc4[2 + g], 0, acc4[2 + g]))
    for g in range(2): E(valu('v_add_f32', acc4[2 + g], f2u(1e-5), acc4[2 + g]))
    for g in range(2): E(valu('v_rsq_f32', acc4[2 + g], acc4[2 + g]))
    for g in range(2): E(valu('v_mul_f32', acc4[2 + g], f2u(-LOG2E), acc4[2 + g]))
    for g in range(2): E(valu('v_mov_b32', v(20 + g), acc4[g]))
    for g in range(2): E(valu('v_mul_f32', acc4[g], '-' + str(acc4[g]), acc4[2 + g], extra_rd=[acc4[g]]))
    E(smov(sT2, 0xffff0000))
    if CFG.get('dotn'):
        cl = [v(29), v(31)]; ch = [v(33), v(35)]
        for g in range(2): E(valu('v_cvt_pk_bf16_f32', cl[g], acc4[2 + g], 0))
        for g in range(2): E(valu('v_lshlrev_b32', ch[g], 16, cl[g]))
        for g in range(2): E(valu('v_mul_f32', acc4[g], '-' + str(v(20 + g)), ch[g], extra_rd=[v(20 + g)]))
    PS(61)
    n = 0
    for t in range(18):
        for g in range(2):
            tps = [v(24, 2), v(26, 2), v(16, 2), v(18, 2)]
            x = X(t, g)
            if CFG.get('dotn'):
                for qd in range(4):
                    E(valu('v_dot2_f32_bf16', tps[qd][0], x[qd], cl[g], acc4[g])); E(valu('v_dot2_f32_bf16', tps[qd][1], x[qd], ch[g], acc4[g]))
            else:
                for qd in range(4):
                    E(valu('v_lshlrev_b32', tps[qd][0], 16, x[qd])); E(valu('v_and_b32', tps[qd][1], sT2, x[qd]))
                for qd in range(4): E(valu('v_pk_fma_f32', tps[qd], tps[qd], v(acc4[2 + g].n, 2), v(acc4[g].n, 2), mods='op_sel_hi:[1,0,0]'))
            for qd in range(4): E(valu('v_cvt_pk_bf16_f32', x[qd], tps[qd][0], tps[qd][1]))
            if pend and n % CFG.get('dn', 2) == 0: E(pend.pop(0))
            n += 1
    for it in pend: E(it)
    if CFG['fused']:
        E(valu('v_mov_b32', v(24), 1)); E(waitvm(p.vm_wait_for(lambda t: t == 'zero')))
        E(I(f"buffer_atomic_add v24, v23, {sDBG}, 0 offen sc1", 'vstore', rd=vr(23, 2) + sDBG.regs(), units=3, tag='init'))
    for _ in range(CFG.get('idle', 0)): E(raw("s_sleep 16"))
    PS(62)
    if kind in 'AM' and MS:
        ln, m_, key, t_ = v(16), v(17), v(18), v(19)
        E([valu('v_lshrrev_b32', ln, 4, vLANE16), valu('v_and_b32', key, 19, ln),
           valu('v_bfe_u32', t_, ln, 2, 1), valu('v_lshl_add_u32', key, t_, 3, key),
           valu('v_bfe_u32', t_, ln, 3, 1), valu('v_lshl_add_u32', key, t_, 2, key),
           valu('v_lshrrev_b32', m_, 2, key), smov(sT2, PP), valu('v_mul_u32_u24', m_, sT2, m_),
           valu('v_and_b32', key, 3, key), valu('v_lshl_add_u32', m_, key, 8, m_),
           valu('v_lshrrev_b32', t_, 5, ln), valu('v_xor_b32', t_, t_, key),
           valu('v_lshl_add_u32', vRKM[0], t_, 4, m_), valu('v_xor_b32', vRKM[1], 32, vRKM[0])])
    elif kind in 'AM':
        E(valu('v_mov_b32', vRK[0], v(22))); E(valu('v_add_u32', vRK[1], 65536, v(22))); E(valu('v_add_u32', vRK[2], 131072, v(22)))
    if CFG['stamps']: E(raw(f"v_writelane_b32 {vSTAMP}, s96, 55", 'valu', wr=[vSTAMP], rd=[s(96)])) if kind != 'A' else None
    if CFG['stamps']: E(smov(s(43), s(96)))
    nlr = {'F': 10, 'A': 11, 'M': 8}[kind]
    if kind != 'M': E([valu('v_lshrrev_b32', vPF2, 16, vTID), valu('v_and_b32', vPFR, 63, vTID), valu('v_min_u32', vPFR, nlr - 1, vPFR),
       valu('v_mad_u32_u24', vPFR, vPF2, nlr, vPFR), valu('v_lshlrev_b32', vPFR, 7, vPFR)])
    if CFG['stamps']: E(smov(s(97), 0))
    E(smov(sLN0, f2u(-1.0 / math.sqrt(128.0))))

def slow_check(R, heads, base2):
    def f():
        p = R.p; E = p.emit
        t = v(254); lo = v(255)
        E(valu('v_mov_b32', lo, f2u(2.0 ** -40))); E(smov(sT3, f2u(2.0 ** 40)))
        for (hd, Q, O) in heads:
            L = f"L_{R.kind}_slow{hd}"
            if CFG['shape'] == 'M':
                E(valu('v_med3_f32', t, Lsave[hd], sT3, lo))
                E(raw(f"v_cmp_neq_f32 vcc, {t}, {Lsave[hd]}", 'valu', wr=['vcc'], rd=[t, Lsave[hd]])); E(nop(4))
            else:
                E(valu('v_med3_f32', t, Lsave[2 * hd], sT3, lo))
                E(raw(f"v_cmp_neq_f32 s[98:99], {t}, {Lsave[2 * hd]}", 'valu', wr=[s(98, 2)], rd=[t, Lsave[2 * hd]]))
                E(valu('v_med3_f32', t, Lsave[2 * hd + 1], sT3, lo))
                E(raw(f"v_cmp_neq_f32 vcc, {t}, {Lsave[2 * hd + 1]}", 'valu', wr=['vcc'], rd=[t, Lsave[2 * hd + 1]])); E(nop(4))
                E(raw("s_or_b64 vcc, vcc, s[98:99]", 'salu', wr=['vcc'], rd=['vcc', s(98, 2)])); E(nop(1))
            if CFG.get('force_slow'): E(raw(f"s_mov_b64 vcc, -1", 'salu', wr=['vcc']))
            E(raw(f"s_cbranch_vccz {L}_ret"))
            E(raw(f"s_call_b64 {sRET}, {L}"))
            E(label(f"{L}_ret"))
            R.slow.append((slow_path if CFG['shape'] == 'M' else slow_pathS)(L, hd, Q, O, base2))
        E(nop(1))
    return f

def slow_path(L, hd, Q, Odst, b2):
    p = Prog(); E = p.emit
    O = v(48, 64); S = v(b2, 16); P = v(b2 + 16, 8); F = v(b2 + 24, 16)
    vK, vV, vM, vL, t0, t1 = [v(b2 + 40 + i) for i in range(6)]
    sB, sJ, sO = s(98), s(99), s(97)
    E(I(".p2align 2", 'label')); E(label(L))
    E(nop(7)); E(nop(7))
    E([valu('v_lshrrev_b32', t0, 4, vLANE16), valu('v_and_b32', vK, 19, t0), valu('v_bfe_u32', t1, t0, 2, 1), valu('v_lshl_add_u32', vK, t1, 3, vK),
       valu('v_bfe_u32', t1, t0, 3, 1), valu('v_lshl_add_u32', vK, t1, 2, vK), valu('v_lshrrev_b32', t1, 5, t0),
       valu('v_lshlrev_b32', vV, 1, vK), valu('v_lshl_add_u32', vV, t1, 11, vV),
       valu('v_lshlrev_b32', vK, 8, vK), valu('v_lshl_add_u32', vK, t1, 4, vK)])
    E([mul(sB, sROLE, 3), add(sB, sB, hd), shr(sB, sB, 1), shl(sB, sB, 19), add(sB, sB, 1536 * 256)])
    def qk():
        for half in range(2):
            for t in range(4): E(bload('buffer_load_dwordx4', F.sub(4 * t, 4), vK, sK, sO, (4 * half + t) * 32))
            E(waitvm(0))
            for t in range(4):
                tt = 4 * half + t
                E(mfma(S, F.sub(4 * t, 4), Q.sub(4 * tt, 4), 0 if tt == 0 else S))
            E(nop(7)); E(nop(7))
    E(valu('v_mov_b32', vM, 0xff800000)); E(smov(sJ, 0))
    E(label(L + "_a"))
    E(add(sO, sB, sJ)); qk()
    for i in range(0, 16, 2): E(valu('v_max3_f32', vM, vM, S[i], S[i + 1]))
    E(add(sJ, sJ, 8192)); E(salu('s_cmp_lt_u32', None, sJ, 16 * 8192)); E(raw(f"s_cbranch_scc1 {L}_a"))
    E(valu('v_mov_b32', t0, vM)); E(valu('v_permlane32_swap_b32', vM, t0, rmw=True, extra_wr=[t0])); E(valu('v_max_f32', vM, vM, t0))
    for i in range(64): E(valu('v_mov_b32', O[i], 0))
    E(valu('v_mov_b32', vL, 0)); E(smov(sJ, 0))
    E(label(L + "_b"))
    E(add(sO, sB, sJ)); qk()
    for i in range(16): E(valu('v_sub_f32', S[i], S[i], vM))
    for i in range(16): E(valu('v_exp_f32', S[i], S[i]))
    for i in range(16): E(valu('v_add_f32', vL, vL, S[i]))
    for q in range(8): E(valu('v_cvt_pk_bf16_f32', P[q], S[2 * q], S[2 * q + 1]))
    for u in range(2):
        for tp in range(2):
            for tq in range(2):
                for j in range(8):
                    E(bload('buffer_load_ushort', F[8 * (j & 1) + 4 * tq + j // 2], vV, sV, sO, j * 256 + (2 * tp + tq) * 64))
            E(waitvm(0))
            for i in range(8): E(valu('v_lshl_or_b32', F[i], F[8 + i], 16, F[i]))
            for tq in range(2):
                D_ = O.sub(16 * (2 * tp + tq), 16)
                E(mfma(D_, F.sub(4 * tq, 4), P.sub(4 * u, 4), D_))
            E(nop(7))
        if u == 0: E(add(sO, sO, 4096))
    E(add(sJ, sJ, 8192)); E(salu('s_cmp_lt_u32', None, sJ, 16 * 8192)); E(raw(f"s_cbranch_scc1 {L}_b"))
    E(nop(7)); E(nop(7))
    E(valu('v_mov_b32', t0, vL)); E(valu('v_permlane32_swap_b32', vL, t0, rmw=True, extra_wr=[t0])); E(valu('v_add_f32', vL, vL, t0))
    E(valu('v_rcp_f32', t0, vL))
    for tau in range(4):
        A_ = O.sub(16 * tau, 16)
        for e in range(16): E(valu('v_mul_f32', A_[e], A_[e], t0))
        for q in range(8): E(valu('v_cvt_pk_bf16_f32', A_[2 * q], A_[2 * q], A_[2 * q + 1]))
        for q in range(4): E(valu('v_permlane16_swap_b32', A_[2 * q], A_[2 * q + 8], rmw=True, extra_wr=[A_[2 * q + 8]]))
        for q in range(8): E(valu('v_accvgpr_write_b32', Odst[8 * tau + q], A_[2 * q]))
    E(nop(1)); E(raw(f"s_setpc_b64 {sRET}"))
    return p

def slow_pathS(L, hd, Q, Odst, b2):
    p = Prog(); E = p.emit
    ob = 48; kv = None
    if isinstance(b2, tuple): b2, ob = b2
    if isinstance(Odst, tuple):
        OFf, kv = Odst
        class _D:
            def __getitem__(s_, i): return OFf(i // 8)[i % 8]
        Odst = _D()
    O = v(ob, 64); S = v(b2, 16); P = v(b2 + 16, 8); F = v(b2 + 24, 16)
    vK, vV, t0, t1 = [v(b2 + 40 + i) for i in range(4)]
    vM = [v(b2 + 44), v(b2 + 45)]; vL = [v(b2 + 46), v(b2 + 47)]
    sB, sJ, sO = s(98), s(99), s(97)
    E(I(".p2align 2", 'label')); E(label(L))
    E(nop(7)); E(nop(7))
    E([valu('v_lshrrev_b32', t0, 4, vLANE16), valu('v_and_b32', t1, 15, t0), valu('v_lshrrev_b32', t0, 4, t0),
       valu('v_lshlrev_b32', vK, 8, t1), valu('v_lshl_add_u32', vK, t0, 4, vK),
       valu('v_lshlrev_b32', vV, 1, t1), valu('v_lshl_add_u32', vV, t0, 10, vV)])
    if kv is not None: E(smov(sB, kv))
    else: E([mul(sB, sROLE, 3), add(sB, sB, hd), shr(sB, sB, 1), shl(sB, sB, 19), add(sB, sB, 1536 * 256)])
    def qk():
        for T in range(2):
            E(add(sO, sB, sJ)) if T == 0 else E(add(sO, sO, 4096))
            for t in range(4): E(bload('buffer_load_dwordx4', F.sub(4 * t, 4), vK, sK, sO, t * 64))
            E(waitvm(0))
            for t in range(4):
                for g_ in range(2):
                    D_ = S.sub(8 * T + 4 * g_, 4)
                    E(mfma(D_, F.sub(4 * t, 4), Q.sub(8 * t + 4 * g_, 4), 0 if t == 0 else D_))
            E(nop(7)); E(nop(3))
    def allq(x, op):
        for sw in ('v_permlane16_swap_b32', 'v_permlane32_swap_b32'):
            E(valu('v_mov_b32', t0, x)); E(valu(sw, x, t0, rmw=True, extra_wr=[t0])); E(valu(op, x, x, t0))
    for g_ in range(2): E(valu('v_mov_b32', vM[g_], 0xff800000))
    E(smov(sJ, 0))
    E(label(L + "_a"))
    qk()
    for T in range(2):
        for g_ in range(2):
            for i in (0, 2): E(valu('v_max3_f32', vM[g_], vM[g_], S[8 * T + 4 * g_ + i], S[8 * T + 4 * g_ + i + 1]))
    E(add(sJ, sJ, 8192)); E(salu('s_cmp_lt_u32', None, sJ, 16 * 8192)); E(raw(f"s_cbranch_scc1 {L}_a"))
    for g_ in range(2): allq(vM[g_], 'v_max_f32')
    for i in range(64): E(valu('v_mov_b32', O[i], 0))
    for g_ in range(2): E(valu('v_mov_b32', vL[g_], 0))
    E(smov(sJ, 0))
    E(label(L + "_b"))
    qk()
    for i in range(16): E(valu('v_sub_f32', S[i], S[i], vM[(i >> 2) & 1]))
    for i in range(16): E(valu('v_exp_f32', S[i], S[i]))
    for i in range(16): E(valu('v_add_f32', vL[(i >> 2) & 1], vL[(i >> 2) & 1], S[i]))
    for g_ in range(2):
        for T in range(2):
            for k in range(2): E(valu('v_cvt_pk_bf16_f32', P[4 * g_ + 2 * T + k], S[8 * T + 4 * g_ + 2 * k], S[8 * T + 4 * g_ + 2 * k + 1]))
    for tp in range(4):
        for jh in range(2):
            E(add(sO, sB, sJ)) if jh == 0 else E(add(sO, sO, 4096))
            for tq in range(2):
                for jl in range(4):
                    j = 4 * jh + jl
                    E(bload('buffer_load_ushort', F[8 * (j & 1) + 4 * tq + j // 2], vV, sV, sO, jl * 256 + (2 * tp + tq) * 32))
        E(waitvm(0))
        for i in range(8): E(valu('v_lshl_or_b32', F[i], F[8 + i], 16, F[i]))
        for tq in range(2):
            for g_ in range(2):
                D_ = O.sub(8 * (2 * tp + tq) + 4 * g_, 4)
                E(mfma(D_, F.sub(4 * tq, 4), P.sub(4 * g_, 4), D_))
        E(nop(7))
    E(add(sJ, sJ, 8192)); E(salu('s_cmp_lt_u32', None, sJ, 16 * 8192)); E(raw(f"s_cbranch_scc1 {L}_b"))
    E(nop(7)); E(nop(3))
    for g_ in range(2): allq(vL[g_], 'v_add_f32')
    for g_ in range(2): E(valu('v_rcp_f32', vL[g_], vL[g_]))
    for i in range(64): E(valu('v_mul_f32', O[i], O[i], vL[(i >> 2) & 1]))
    for kk in range(4):
        for g_ in range(2):
            for T in range(2):
                for c in range(2):
                    r = 8 * (2 * kk + T) + 4 * g_ + 2 * c
                    E(valu('v_cvt_pk_bf16_f32', O[r], O[r], O[r + 1])); E(valu('v_accvgpr_write_b32', Odst[8 * kk + 4 * g_ + 2 * T + c], O[r]))
    E(nop(1)); E(raw(f"s_setpc_b64 {sRET}"))
    return p

NREP = 6
sMD2 = s(84)
def rep_addr(kind, dst, t):
    return [shl(sT2, sRB, 14), add(sT2, sT2, CTRL + 2048), add(sT3, sROLE, NS - NA), shl(sT3, sT3, 2), add(sT2, sT2, sT3),
            salu('s_cmp_eq_u32', None, sWAVE, 0), csel(sT2, sT2, OOB),
            valu('v_lshlrev_b32', dst, 3, vLANE16), valu('v_add_u32', dst, sT2, dst), valu('v_mov_b32', t, OOB),
            raw(f"v_cmp_gt_u32 vcc, {hex(NA * NREP * 16)}, {vLANE16}", 'valu', wr=['vcc'], rd=[vLANE16]), valu('v_cndmask_b32', dst, t, dst, 'vcc')]
vCR = v(31)
def add_signals(R):
    P2 = [k for k, st in enumerate(R.stages) if st.name.startswith('P2')]
    def sig(first):
        def f():
            out = [valu('v_add_u32', vPRG, 1, vPRG)]
            return out + [bstore('buffer_store_dword', vPRG, vCT, sWS, 0, flags='sc1')]
        return f
    def sig7():
        return [valu('v_add_u32', vPRG, 1, vPRG), bstore('buffer_store_dword', vPRG, vCR, sWS, 0, flags='sc1'), bstore('buffer_store_dword', vPRG, vCT, sWS, 0, flags='sc1')]
    def chain(stages, base):
        firsts = [k for k in stages if R.stages[k].sub == 0]
        for c in range(8):
            k = firsts[c + 1] + CFG.get('siglag', {}).get(R.kind, 2)
            if k > stages[-1]: break
            R.stages[k].cover_st = base + c; R.stages[k].post_bar = sig(c == 0)
            if c == 7 and CFG.get('rep') and R.kind in 'FM': R.stages[k].post_bar = sig7
        if CFG.get('rep') and R.kind in 'FM': R.pf.setdefault(firsts[1], []).append(lambda: rep_addr(R.kind, vCR, vPF))
    chain(P2, 0)
    R.stages[P2[0]].post_bar = lambda: [valu('v_mov_b32', vPRG, 0)]

LDSC = 4 * SLOT
sAB = s(72, 2); sRM = s(74, 2); sCD = s(76, 2)
sRS, sRF, sSP, sC, sI, sPB, sPART, sOK, sPAR, sXW, sPWv, sTO = s(78), s(79), s(71), s(80), s(81), s(82), s(47), s(40), s(41), s(59), s(3), s(58)
sIT = [s(42), s(44), s(45)]; sXP = [s(46), s(60), s(61)]
sRET2 = s(66, 2)
vP, vD, vA, vO, vXO, vL4, vDO, vLA, vIT, vLD, vSC = [v(16 + i) for i in range(11)]
vX4 = v(28)
def s64(op, d, *src, scc_r=False): return salu(op, d, *src, scc_r=scc_r)
sPV = s(85)
def red_setup(kind):
    o = [shl(sPB, sRB, 14), add(sPB, sPB, CTRL), salu('s_cmp_eq_u32', None, sWAVE, 0), csel(sT3, 0, OOB),
         valu('v_lshrrev_b32', vL4, 2, vLANE16), valu('v_add_u32', vL4, sT3, vL4),
         valu('v_mov_b32', vSC, OOB), add(sT2, sT3, 4 * NPART), raw(f"v_writelane_b32 {vSC}, {sT2}, 0", 'valu', wr=[vSC], rd=[sT2, vSC]),
         valu('v_mov_b32', vS1, vSC), valu('v_min_u32', vL5, NPART * 16, vLANE16), valu('v_lshrrev_b32', vL5, 2, vL5), valu('v_add_u32', vL5, sT3, vL5),
         add(sT2, sT3, 252), raw(f"v_writelane_b32 {vSC}, {sT2}, 1", 'valu', wr=[vSC], rd=[sT2, vSC]),
         shl(sT2, sRB, 4), add(sT2, sT2, sT3), valu('v_mov_b32', vDO, 256), raw(f"v_writelane_b32 {vDO}, {sT2}, 0", 'valu', wr=[vDO], rd=[sT2, vDO])]
    if kind == 'A': o += [shl(sPV, sROLE, 7), add(sPV, sPV, 256), add(sPV, sPV, sPB)]
    return o
vS1, vL5 = v(29), v(30)
PRIV = [False]
def red_poll(shared=False):
    cnt = [valu('v_mov_b32', vD, 0), I(f"buffer_atomic_add {vD}, {vDO}, {sDBG}, 0 offen sc0 sc1", 'vload', wr=vD.regs(), rd=vD.regs() + vDO.regs() + sDBG.regs(), units=3)]
    if PRIV[0] and not shared:
        return [cnt, [bstore('buffer_store_dword', vS1, vS1, sWS, sPV, flags='sc1'), bload('buffer_load_dword', vP, vL5, sWS, sPV, flags='sc1')]]
    return [cnt, [bstore('buffer_store_dword', vSC, vSC, sWS, sPB, flags='sc1'), bload('buffer_load_dword', vP, vL4, sWS, sPB, flags='sc1')]]
vG = [v(28), v(29), v(30)]; vGA = v(31); vGP = v(27)
def l2pf_setup():
    return [valu('v_lshrrev_b32', vGP, 7, vLANE16), smov(sT2, PSTR()), valu('v_mul_lo_u32', vGA, vGP, sT2),
            valu('v_bfe_u32', vA, vLANE16, 4, 3), valu('v_lshl_add_u32', vGA, vA, 7, vGA), shl(sT2, sWAVE, 10), valu('v_add_u32', vGA, sT2, vGA),
            valu('v_lshlrev_b32', vGP, 2, vGP), valu('v_mov_b32', vA, OOB), smov(sT2, 68), raw(f"v_writelane_b32 {vA}, {sT2}, 0", 'valu', wr=[vA], rd=[vA, sT2])]
def l2pf_poll():
    st = bstore('buffer_store_dword', vA, vA, sWS, sPB, flags='sc1')
    out = [[st]]
    for i in range(3):
        ld = bload('buffer_load_dword', vG[i], vGP, sWS, sPB, 32 * i, flags='sc1'); ld.tag = 'gp'
        out.append([ld])
    return out
def l2pf_issue(R, dlt):
    out = [[add(sI, sROLE, dlt), salu('s_and_b32', sT2, sI, 3), shr(sC, sI, 2), shl(sT3, sRB, 2), add(sT2, sT2, sT3), mul(sSP, sT2, PWAVE),
            shl(sT3, sC, 12), add(sSP, sSP, sT3), valu('v_mov_b32', vO, OOB)]]
    for i in range(3):
        ld = bload('buffer_load_dword', vDUM, vG[i], sWS, sT2); ld.tag = 'pf'
        cmp_ = raw(f"v_cmp_lt_u32 vcc, {sC}, {vG[i]}", 'valu', wr=['vcc'], rd=[sC, vG[i]])
        pre = [cmp_]
        if i == 2: pre += [raw("s_and_b64 vcc, vcc, 0xff", 'salu', wr=['vcc'], rd=['vcc'])]
        out.append(pre + [add(sT2, sSP, 8 * i * PSTR()), valu('v_cndmask_b32', vG[i], vO, vGA, 'vcc'), ld])
    return out
def red_eval():
    o = [raw(f"v_cmp_ne_u32 vcc, 0, {vP}", 'valu', wr=['vcc'], rd=[vP]), nop(1),
         raw(f"s_lshr_b64 {sAB}, vcc, {NPART + 1}", 'salu', wr=[sAB], rd=['vcc']), salu('s_and_b32', sAB[1], sAB[1], 15), smov(sRS, 0), smov(sRF, 0)]
    for c in range(9):
        o += [raw(f"v_cmp_ge_u32 vcc, {c}, {vP}", 'valu', wr=['vcc'], rd=[vP]), nop(1),
              raw(f"s_and_b32 {sT2}, vcc_lo, {hex((1 << NS) - 1)}", 'salu', wr=[sT2], rd=['vcc']), csel(sRS, sRS, 4 * (c + 1)),
              raw(f"s_and_b32 {sT2}, vcc_lo, {hex((1 << NPART) - (1 << NS))}", 'salu', wr=[sT2], rd=['vcc']), csel(sRF, sRF, 4 * (c + 1))]
    return o
def red_pub(par):
    return [shl(sT2, sRF, 8), salu('s_or_b32', sT2, sT2, sRS), shl(sT3, sTO, 16), salu('s_or_b32', sT2, sT2, sT3),
            valu('v_mov_b32', vIT, sT2), valu('v_mov_b32', vLA, par), raw(f"ds_write_b32 {vLA}, {vIT}", 'other', rd=[vLA, vIT]), waitlg(0)]
def red_get(par):
    return [valu('v_mov_b32', vLA, par), raw(f"ds_read_b32 {vIT}, {vLA}", 'ds', wr=[vIT], rd=[vLA]), waitlg(0),
            valu('v_readfirstlane_b32', sT2, vIT), salu('s_and_b32', sRS, sT2, 255), salu('s_bfe_u32', sRF, sT2, (8 << 16) | 8), shr(sTO, sT2, 16)]
def red_early(p, n):
    E = p.emit
    E([smov(sRS, 0), smov(sRF, 0), smov(sOK, 0), smov(sTO, 0), smov(sPAR, LDSC + 4), nop(1)])
    E(salu('s_cmp_eq_u32', None, sWAVE, 0)); E(raw(f"s_cbranch_scc0 L_{n}_e2"))
    E(waitvm(p.vm_wait_for(lambda t: t == 'poll')))
    E(valu('v_readfirstlane_b32', sOK, vD))
    E(salu('s_cmp_ge_u32', None, sOK, 16)); E(raw(f"s_cbranch_scc0 L_{n}_e1"))
    E(red_eval())
    E(label(f"L_{n}_e1"))
    E(red_pub(LDSC))
    E(label(f"L_{n}_e2"))

def ld_part(L, ks, flags):
    out = []
    for k in ks:
        out.append([add(sT2, sPART, k * PSTR()), bload('buffer_load_dwordx4', v(L + 4 * k, 4), vLD, sWS, sT2, flags=flags)])
    return out
def ld_x(L, sXO_):
    if CFG.get('nox'): return [[valu('v_mov_b32', vA, OOB), bload('buffer_load_dwordx2', v(L + 4 * NPART, 2), vA, sX, sXO_)], [bload('buffer_load_dwordx2', v(L + 4 * NPART + 2, 2), vA, sX, sXO_, 32)]]
    return [[bload('buffer_load_dwordx2', v(L + 4 * NPART, 2), vXO, sX, sXO_)], [bload('buffer_load_dwordx2', v(L + 4 * NPART + 2, 2), vXO, sX, sXO_, 32)]]
RB_ = 48
sD0, sD1 = s(68), s(69)
def proc_sum(E, L, ks, after, loads):
    SA, FA, T = RB_, RB_ + 8, RB_ + 16
    issued = 0; ks = list(ks)
    E(smov(sT3, 0xffff0000))
    for j, k in enumerate(ks):
        if loads: E(loads.pop(0)); issued += 1
        E(waitvm(len(ks) - 1 - j + after + issued))
        acc = SA if k < NS else FA
        for q in range(4):
            x = v(L + 4 * k + q)
            if k in (0, NS):
                E(valu('v_lshlrev_b32', v(acc + 2 * q), 16, x)); E(valu('v_and_b32', v(acc + 2 * q + 1), sT3, x))
            else:
                E(valu('v_dot2c_f32_bf16', v(acc + 2 * q), sD0, x, rmw=True)); E(valu('v_dot2c_f32_bf16', v(acc + 2 * q + 1), sD1, x, rmw=True))
    return issued
def proc_fin(E, L, sXO_, xwait, loads):
    SA, FA, T = RB_, RB_ + 8, RB_ + 16; XR = L + 4 * NPART; issued = 0
    for e in range(8): E(valu('v_exp_f32', v(T + e), v(FA + e)))
    for e in range(8): E(valu('v_add_f32', v(T + e), 1.0, v(T + e)))
    while len(loads) > 1: E(loads.pop(0)); issued += 1
    for e in range(8): E(valu('v_rcp_f32', v(T + e), v(T + e)))
    for e in range(8): E(valu('v_mul_f32', v(FA + e), f2u(-math.log(2.0)), v(FA + e)))
    for e in range(8): E(valu('v_mul_f32', v(FA + e), v(FA + e), v(T + e)))
    while loads: E(loads.pop(0)); issued += 1
    if xwait is not None: E(waitvm(xwait + issued))
    for q in range(4):
        E(valu('v_lshlrev_b32', v(T + 2 * q), 16, v(XR + q))); E(valu('v_and_b32', v(T + 2 * q + 1), sT3, v(XR + q)))
    for e in range(8): E(valu('v_fma_f32', v(T + e), v(SA + e), v(FA + e), v(T + e)))
    for q in range(4): E(valu('v_cvt_pk_bf16_f32', v(XR + q), v(T + 2 * q), v(T + 2 * q + 1)))
    if CFG.get('out4', True):
        def dpp(d, src, bank): return I(f"v_mov_b32_dpp {d}, {src} row_ror:8 row_mask:0xf bank_mask:{bank}", 'perm', wr=d.regs(), rd=src.regs() + d.regs())
        for i in range(2): E(valu('v_permlane16_swap_b32', v(XR + i), v(XR + 2 + i), rmw=True, extra_wr=[v(XR + 2 + i)]))
        for i in range(2): E(valu('v_mov_b32', v(T + i), v(XR + i)))
        for i in range(2): E(dpp(v(XR + i), v(XR + 2 + i), '0xc'))
        for i in range(2): E(dpp(v(XR + 2 + i), v(T + i), '0x3'))
        E(bstore('buffer_store_dwordx4', v(XR, 4), vX4, sOUT, sXO_, flags=CFG.get('oflags', 'sc1')))
        E(valu('v_mov_b32', vO, OOB)); E(bstore('buffer_store_dword', vO, vO, sOUT, 0))
        return
    E(bstore('buffer_store_dwordx2', v(XR, 2), vXO, sOUT, sXO_)); E(bstore('buffer_store_dwordx2', v(XR + 2, 2), vXO, sOUT, sXO_, 32))
def proc_all(E, L, sXO_, pre, loads):
    loads = list(loads)
    n = proc_sum(E, L, range(NPART), 2 + pre, loads)
    proc_fin(E, L, sXO_, pre + n, loads)

def acc_part(E, L, k):
    acc = RB_ if k < NS else RB_ + 8
    for q in range(4):
        x = v(L + 4 * k + q)
        if k in (0, NS):
            E(valu('v_lshlrev_b32', v(acc + 2 * q), 16, x)); E(valu('v_and_b32', v(acc + 2 * q + 1), sT3, x))
        else:
            E(valu('v_dot2c_f32_bf16', v(acc + 2 * q), sD0, x, rmw=True)); E(valu('v_dot2c_f32_bf16', v(acc + 2 * q + 1), sD1, x, rmw=True))
def stream(E, segs, hooks=None):
    W = CFG.get('rwin', 8); FL = CFG.get('fflags', 'sc1')
    seq = []
    for (L, sP, sX_, ks, wx, fin) in segs:
        if wx:
            for it in ld_x(L, sX_): seq.append((it, None))
        ks = list(ks)
        for j, k in enumerate(ks):
            it = [add(sT2, sP, k * PSTR()), bload('buffer_load_dwordx4', v(L + 4 * k, 4), vLD, sWS, sT2, flags=FL)]
            last = fin and j == len(ks) - 1
            seq.append((it, (lambda L=L, k=k, last=last, sX_=sX_: (acc_part(E, L, k), proc_fin(E, L, sX_, None, []) if last else None, last)[2])))
    E(smov(sT3, 0xffff0000))
    n = len(seq); issued = 0
    extra_at = []
    for c in range(n):
        while issued < min(n, c + W): E(seq[issued][0]); issued += 1
        if hooks and c in hooks:
            for _ in range(hooks[c](issued + sum(1 for e in extra_at))): extra_at.append(issued)
            E(smov(sT3, 0xffff0000))
        if seq[c][1] is None: continue
        E(waitvm(issued - 1 - c + sum(1 for e in extra_at if e > c)))
        if seq[c][1]():
            extra_at += [issued, issued]

def body_items(E, n, its, two, ni, ensure, refresh, done, ST, seg, final_flag, poll_hook, LATE, L0, L1, FOUR, sMID, offs, sPT):
    E(salu('s_min_u32', sT2, sRS, sRF)); E(salu('s_cmp_lt_u32', None, its[two - 1], sT2)); E(raw(f"s_cbranch_scc0 L_{n}_sl"))
    ST(its[0])
    hooks = {(NPART + 2) * two - CFG.get('pollat', 8): poll_hook}
    if LATE: hooks[CFG.get('flagat', 3) if n == 'A' else 0] = final_flag
    stream(E, [seg(0, L0), seg(1, L1)][:two], hooks)
    ST(51)
    E(raw(f"s_branch L_{n}_j"))
    E(label(f"L_{n}_sl"))
    if LATE and two == 2 and CFG.get('mid1', 1):
        E(salu('s_min_u32', sT2, sRS, sRF)); E(salu('s_cmp_lt_u32', None, its[0], sT2)); E(raw(f"s_cbranch_scc0 L_{n}_s0"))
        ST(52)
        stream(E, [seg(0, L0)], {CFG.get('flagat', 3): final_flag, 12: poll_hook}); done(its[0])
        refresh(2); ensure(its[1], 1, 1)
        stream(E, [seg(1, L1)], {11: poll_hook})
        E(raw(f"s_branch L_{n}_j"))
        E(label(f"L_{n}_s0"))
    if LATE: final_flag(0)
    for i in range(two):
        ensure(its[i], 1, 1)
        stream(E, [seg(i, L0)], {11: poll_hook} if i == two - 1 else None); done(its[i])
    E(label(f"L_{n}_j"))
    for i in range(two): done(its[i])
    if FOUR or (CFG.get('asg') == 3 and n == 'A'):
        E(salu('s_cmp_gt_u32', None, sMID, 35)); E(raw(f"s_cbranch_scc1 L_{n}_nm"))
        refresh(2)
        ensure(sMID, 1, 1); ST(sMID)
        E(offs(sMID, sXP[0]))
        stream(E, [seg(0, L1)], {13: poll_hook}); done(sMID)
        E(label(f"L_{n}_nm"))
    def warm():
        if not CFG.get('warm', 1): return
        E(valu('v_mov_b32', v(240), vLD)); E(valu('v_mov_b32', v(241), vX4)); E(valu('v_mov_b32', vLD, OOB)); E(valu('v_mov_b32', vX4, OOB))
        E(raw(f"s_call_b64 {sRET2}, L_{n}_ft"))
        E(valu('v_mov_b32', vLD, v(240))); E(valu('v_mov_b32', vX4, v(241)))
    if ni == 3:
        if CFG.get('asg') == 3:
            E(salu('s_cmp_lt_u32', None, its[2], 36)); E(raw(f"s_cbranch_scc1 L_{n}_h3"))
            E(red_poll(True)[1]); E(waitvm(0)); E(raw(f"s_branch L_{n}_fin")); E(label(f"L_{n}_h3"))
        refresh(2)
        if CFG.get('nof'):
            E(salu('s_cmp_gt_u32', None, sMD2, 35)); E(raw(f"s_cbranch_scc1 L_{n}_k1"))
            ensure(sMD2, 1, 1); E(offs(sMD2, sXP[0])); ST(sMD2)
            E(salu('s_cmp_lt_u32', None, its[2], sRS)); E(raw(f"s_cbranch_scc0 L_{n}_k0"))
            E(salu('s_cmp_lt_u32', None, its[2], sRF)); E(raw(f"s_cbranch_scc1 L_{n}_k0"))
            warm()
            stream(E, [seg(0, L1), seg(2, L0, range(NS), True, False)], {20: poll_hook.sh}); done(sMD2)
            E(raw(f"s_branch L_{n}_k2"))
            E(label(f"L_{n}_k0"))
            stream(E, [seg(0, L1)], {11: poll_hook}); done(sMD2)
            refresh(2)
            E(label(f"L_{n}_k1"))
        ensure(its[2], 1, 0); ST(its[2])
        E(salu('s_cmp_lt_u32', None, its[2], sRF)); E(raw(f"s_cbranch_scc1 L_{n}_f3"))
        if CFG.get('rep') and n == 'A':
            warm()
            stream(E, [seg(2, L0, range(NS), True, False)], {4: poll_hook.sh})
            E(label(f"L_{n}_k2"))
            E(salu('s_cmp_eq_u32', None, sWAVE, 0)); E(raw(f"s_cbranch_scc0 L_{n}_w2"))
            E(waitvm(0))
            E(raw(f"v_cmp_ne_u32 vcc, 0, {vP}", 'valu', wr=['vcc'], rd=[vP])); E(nop(1))
            E(raw(f"s_lshr_b64 {sAB}, vcc, {NPART + 1}", 'salu', wr=[sAB], rd=['vcc'])); E(salu('s_and_b32', sAB[1], sAB[1], 15))
            E(salu('s_or_b32', sT2, sAB[0], sAB[1])); E(csel(sRS, 1, 0))
            E(shr(sC, its[2], 2)); E(mul(sI, sROLE, NREP * 128)); E(add(sI, sI, sPB)); E(add(sI, sI, 2048)); E(add(sSP, sI, NREP * 128))
            E(label(f"L_{n}_w0"))
            E(bload('buffer_load_dword', vP, vL5, sWS, sI, flags='sc1')); E(waitvm(0))
            E(raw(f"v_cmp_ge_u32 vcc, {sC}, {vP}", 'valu', wr=['vcc'], rd=[vP, sC])); E(nop(1))
            E(raw(f"s_and_b32 {sT2}, vcc_lo, {hex((1 << NPART) - (1 << NS))}", 'salu', wr=[sT2], rd=['vcc'])); E(csel(sRF, 0, 36))
            E(raw(f"s_cbranch_scc0 L_{n}_w1"))
            E(add(sI, sI, 128)); E(salu('s_cmp_lt_u32', None, sI, sSP)); E(raw(f"s_cbranch_scc0 L_{n}_w1"))
            E(raw(f"s_sleep {CFG.get('rsleep', 6)}")); E(raw(f"s_branch L_{n}_w0"))
            E(label(f"L_{n}_w1")); E(red_pub(sPAR))
            E(label(f"L_{n}_w2")); E(barrier()); E(red_get(sPAR)); E(salu('s_xor_b32', sPAR, sPAR, 12))
            E(smov(sMID, sRS))
            ensure(its[2], 0, 1); ST(50)
            E(raw(f"s_call_b64 {sRET2}, L_{n}_ft")); done(its[2])
            E(salu('s_cmp_eq_u32', None, sMID, 0)); E(raw(f"s_cbranch_scc1 L_{n}_exit")); E(raw(f"s_branch L_{n}_fb"))
            E(label(f"L_{n}_ft"))
            stream(E, [seg(2, L0, range(NS, NPART), False, True)])
            E(raw(f"s_setpc_b64 {sRET2}"))
        else:
            stream(E, [seg(2, L0, range(NS), True, False)], {6: poll_hook})
            refresh(0)
            ensure(its[2], 0, 1); ST(50)
            stream(E, [seg(2, L0, range(NS, NPART), False, True)], {0: poll_hook.sh})
            E(raw(f"s_branch L_{n}_f4"))
        E(label(f"L_{n}_f3"))
        stream(E, [seg(2, L0)], {11: poll_hook.sh})
        E(label(f"L_{n}_f4"))
        done(its[2])


def reducer(kind):
    p = Prog(); E = p.emit; n = kind; FL = CFG.get('fflags', 'sc1')
    PRIV[0] = (kind == 'A')
    def ST(code):
        if CFG['stamps'] != 2: return
        E(raw(f"s_memtime {sSTAMP}", wr=[sSTAMP])); E(raw("s_waitcnt lgkmcnt(0)")); E(salu('s_sub_u32', s(98), s(98), s(100)))
        E(shl(s(98), s(98), 6)); E(salu('s_or_b32', s(98), s(98), code))
        E(add(s(97), s(97), 16)); E(salu('s_min_u32', s(97), s(97), 11 * 16))
        E(raw(f"v_cmp_eq_u32 vcc, s97, {vLANE16}", 'valu', wr=['vcc'], rd=[s(97), vLANE16])); E(valu('v_mov_b32', v(27), s(98)))
        E(valu('v_cndmask_b32', vSTAMP, vSTAMP, v(27), 'vcc'))
    def offs(item, sX_):
        return [salu('s_and_b32', sT2, item, 3), shr(sC, item, 2), shl(sT3, sRB, 2), add(sT2, sT2, sT3), mul(sPART, sT2, PWAVE), add(sX_, sPART, sXW),
                shl(sT3, sC, 12), add(sT3, sT3, sPWv), add(sPART, sPART, sT3), shl(sT3, sC, 7), add(sX_, sX_, sT3)]
    k_ = [0]
    def ensure(item, s_, f_):
        L = f"L_{n}_en{k_[0]}"; k_[0] += 1
        if s_ and f_: E(salu('s_min_u32', sT2, sRS, sRF)); r = sT2
        else: r = sRS if s_ else sRF
        E(salu('s_cmp_lt_u32', None, item, r)); E(raw(f"s_cbranch_scc1 {L}"))
        E(smov(sI, item)); E(smov(sC, (1 if s_ else 0) | (2 if f_ else 0)))
        E(raw(f"s_call_b64 {sRET2}, L_{n}_sync"))
        E(salu('s_cmp_eq_u32', None, sTO, 0)); E(raw(f"s_cbranch_scc0 L_{n}_fb"))
        E(label(L))
    def done(item): E(raw(f"s_bitset0_b64 {sRM}, {item}", 'salu', wr=[sRM], rd=[sRM, item]))
    E(label(f"L_{n}_red"))
    if CFG.get('rdelay'):
        if n == 'A': (E(waitvm(0)), E(barrier()), E(valu('v_mov_b32', vPRG, 9)), E(bstore('buffer_store_dword', vPRG, vCT, sWS, 0, flags='sc1')))
        for _ in range({'A': 30, 'M': 24, 'F': 14}[n]): E(raw("s_sleep 16"))
    E(red_get(LDSC))
    if CFG.get('rdelay'): E(smov(sRS, 36)); E(smov(sRF, 36))
    E(valu('v_lshrrev_b32', vO, 4, vLANE16)); E(valu('v_and_b32', vXO, 7, vO)); E(valu('v_lshlrev_b32', vLD, 4, vXO))
    E(smov(sT2, 1152)); E(valu('v_mul_u32_u24', vXO, sT2, vXO))
    E(valu('v_lshrrev_b32', vA, 3, vO)); E(valu('v_lshl_add_u32', vX4, vA, 4, vXO))
    E(valu('v_bfe_u32', vA, vO, 3, 2)); E(valu('v_lshl_add_u32', vXO, vA, 3, vXO)); E(valu('v_lshl_add_u32', vLD, vA, 8, vLD))
    E(valu('v_lshrrev_b32', vA, 5, vO)); E(valu('v_lshl_add_u32', vXO, vA, 6, vXO)); E(valu('v_lshl_add_u32', vLD, vA, 11, vLD))
    E(mul(sXW, sWAVE, 8 * 1152)); E(shr(sPWv, sWAVE, 1)); E(shl(sPWv, sPWv, 10)); E(salu('s_and_b32', sT2, sWAVE, 1)); E(shl(sT2, sT2, 7)); E(add(sPWv, sPWv, sT2))
    L0, L1 = 72, 76 + 4 * NPART
    E(smov(sD0, 0x3f80)); E(smov(sD1, 0x3f800000))
    E(raw(f"s_mov_b64 {sRM}, 0", 'salu', wr=[sRM]))
    FOUR = CFG.get('four')
    sMID = s(48 + 0) if False else s(83)
    def nib(dst, tab, base):
        E(smov(sCD[0], sum(tab[i] << (4 * i) for i in range(8)))); E(smov(sCD[1], tab[8] | (tab[9] << 4)))
        E(shl(sT2, sROLE, 2)); E(s64('s_lshr_b64', sCD, sCD, sT2)); E(salu('s_and_b32', dst, sCD[0], 15))
        E(salu('s_cmp_eq_u32', None, dst, 15)); E(csel(dst, 63 - base, dst)); E(add(dst, dst, base))
    if n == 'A':
        E(smov(sIT[0], sROLE)); E(add(sIT[1], sROLE, NA))
        if CFG.get('asg') == 2: E(add(sIT[2], sROLE, 16))
        elif CFG.get('asg') == 3:
            E(add(sMID, sROLE, 16)); E(raw(f"s_bitset1_b64 {sRM}, {sMID}", 'salu', wr=[sRM], rd=[sRM, sMID]))
            E(salu('s_and_b32', sT2, sROLE, 1)); E(shr(sIT[2], sROLE, 1)); E(add(sIT[2], sIT[2], 24)); E(salu('s_cmp_eq_u32', None, sT2, 0)); E(csel(sIT[2], sIT[2], 63))
        elif CFG.get('l844'): E(add(sIT[2], sROLE, 28))
        elif FOUR:
            nib(sMID, [0, 15, 1, 2, 15, 3, 4, 5, 6, 7], 20); nib(sIT[2], [0, 1, 15, 2, 3, 15, 4, 5, 6, 7], 28)
            E(raw(f"s_bitset1_b64 {sRM}, {sMID}", 'salu', wr=[sRM], rd=[sRM, sMID]))
        else:
            nib(sIT[2], [0, 1, 15, 2, 3, 15, 4, 5, 6, 7], 28)
            E(salu('s_cmp_eq_u32', None, sROLE, 2)); E(csel(sIT[2], 22, sIT[2])); E(salu('s_cmp_eq_u32', None, sROLE, 5)); E(csel(sIT[2], 21, sIT[2]))
            if CFG.get('nof'):
                nib(sMD2, CFG['nof'], 23)
                E(raw(f"s_bitset1_b64 {sRM}, {sMD2}", 'salu', wr=[sRM], rd=[sRM, sMD2]))
        its = sIT
    elif CFG.get('asg') == 2:
        if n == 'M': E(add(sIT[0], sROLE, 16)); E(add(sIT[1], sROLE, 20)); its = sIT[:2]
        else: E(add(sIT[0], sROLE, 20)); its = sIT[:1]
    elif CFG.get('asg') == 3:
        E(add(sIT[0], sROLE, 20)); its = sIT[:1]
    elif CFG.get('l844'):
        if n == 'M': E(add(sIT[0], sROLE, 8)); E(add(sIT[1], sROLE, 12)); its = sIT[:2]
        else: E(add(sIT[0], sROLE, 12)); its = sIT[:1]
    elif n == 'M': E(smov(sIT[0], 20)); its = sIT[:1]
    else:
        E(add(sIT[0], sROLE, 12)); its = sIT[:1]
    if (FOUR and n != 'A') or (CFG.get('nof') and n == 'F'):
        its = []
        E(waitvm(0)); E(red_poll()[1]); E(waitvm(0)); E(raw(f"s_branch L_{n}_fin"))
    for it in its: E(raw(f"s_bitset1_b64 {sRM}, {it}", 'salu', wr=[sRM], rd=[sRM, it]))
    E(salu('s_and_b32', sRM[1], sRM[1], 15))
    def refresh(wait):
        L = f"L_{n}_rf{k_[0]}"; k_[0] += 1
        E(salu('s_cmp_eq_u32', None, sWAVE, 0)); E(raw(f"s_cbranch_scc0 {L}"))
        E(waitvm(wait)); E(red_eval()); E(red_pub(sPAR))
        E(label(L)); E(barrier()); E(red_get(sPAR)); E(salu('s_xor_b32', sPAR, sPAR, 12))
    ALLD = lambda L, sx: ld_part(L, range(NPART), FL) + ld_x(L, sx)
    LATE = n in CFG.get('lateflag', 'A') + CFG.get('pre', '')
    sPT = [s(47), s(67 - 2), s(70)]
    def offs2(i): return offs(its[i], sXP[i]) + ([smov(sPT[i], sPART)] if i else [])
    def final_flag(wait):
        E(waitvm(wait)); E(barrier())
        E(valu('v_mov_b32', vPRG, 9))
        if CFG.get('rep') and n in 'FM': E(bstore('buffer_store_dword', vPRG, vCR, sWS, 0, flags='sc1'))
        E(bstore('buffer_store_dword', vPRG, vCT, sWS, 0, flags='sc1'))
        return 2 if (CFG.get('rep') and n in 'FM') else 1
    def poll_hook(_): E(red_poll()[1]); return 2
    def poll_sh(_): E(red_poll(True)[1]); return 2
    poll_hook.sh = poll_sh
    seg = lambda i, L, ks=range(NPART), wx=True, fin=True: (L, sPT[i], sXP[i], ks, wx, fin)
    ni = len(its)
    for i in reversed(range(ni)): E(offs2(i))
    two = min(ni, 2)
    if ni: body_items(E, n, its, two, ni, ensure, refresh, done, ST, seg, final_flag, poll_hook, LATE, L0, L1, FOUR, sMID, offs, sPT)
    E(label(f"L_{n}_fin"))
    E(salu('s_cmp_eq_u32', None, sWAVE, 0)); E(raw(f"s_cbranch_scc0 L_{n}_b4"))
    E(waitvm(2))
    E(raw(f"v_cmp_ne_u32 vcc, 0, {vP}", 'valu', wr=['vcc'], rd=[vP])); E(nop(1))
    E(raw(f"s_lshr_b64 {sAB}, vcc, {NPART + 1}", 'salu', wr=[sAB], rd=['vcc'])); E(salu('s_and_b32', sAB[1], sAB[1], 15))
    E(salu('s_or_b32', sT2, sAB[0], sAB[1])); E(csel(sTO, 1, 0))
    E(salu('s_cmp_ge_u32', None, sOK, 16)); E(csel(sTO, sTO, 1)); E(red_pub(sPAR))
    E(label(f"L_{n}_b4")); E(barrier()); E(red_get(sPAR)); E(salu('s_xor_b32', sPAR, sPAR, 12))
    E(salu('s_cmp_eq_u32', None, sTO, 0)); E(raw(f"s_cbranch_scc1 L_{n}_exit"))
    E(label(f"L_{n}_fb"))
    E(waitvm(0))
    E(salu('s_cmp_eq_u32', None, sWAVE, 0)); E(raw(f"s_cbranch_scc0 L_{n}_fb2"))
    E(s64('s_lshl_b64', sCD, sRM, NPART + 1)); E(valu('v_mov_b32', vO, OOB)); E(valu('v_mov_b32', vA, 1))
    E(valu('v_cndmask_b32', vO, vO, vL4, sCD)); E(bstore('buffer_store_dword', vA, vO, sWS, sPB, flags='sc1')); E(waitvm(0))
    E(red_poll()[0]); E(waitvm(0)); E(red_poll(True)[1]); E(waitvm(0)); E(valu('v_readfirstlane_b32', sOK, vD)); E(red_eval())
    E(salu('s_min_u32', sT2, sRS, sRF)); E(salu('s_cmp_ge_u32', None, sOK, 16)); E(csel(sT2, sT2, 0))
    E(salu('s_bfm_b64', sCD, sT2, 0, scc_w=False)); E(s64('s_or_b64', sAB, sAB, sRM)); E(s64('s_and_b64', sAB, sAB, sCD))
    E(label(f"L_{n}_fb1"))
    E(raw(f"s_ff1_i32_b64 {sRS}, {sAB}", 'salu', wr=[sRS], rd=[sAB])); E(salu('s_and_b32', sRS, sRS, 255))
    E(raw(f"s_bitset0_b64 {sAB}, {sRS}", 'salu', wr=[sAB], rd=[sAB, sRS])); E(red_pub(sPAR))
    E(label(f"L_{n}_fb2")); E(barrier()); E(red_get(sPAR)); E(salu('s_xor_b32', sPAR, sPAR, 12))
    E(salu('s_cmp_ge_u32', None, sRS, 36)); E(raw(f"s_cbranch_scc1 L_{n}_exit"))
    E(offs(sRS, sXP[0])); E(ld_part(L0, range(NPART), FL) + ld_x(L0, sXP[0])); E(waitvm(0)); proc_all(E, L0, sXP[0], 0, [])
    E(salu('s_cmp_eq_u32', None, sWAVE, 0)); E(raw(f"s_cbranch_scc1 L_{n}_fb1")); E(raw(f"s_branch L_{n}_fb2"))
    E(label(f"L_{n}_exit"))
    ST(60)
    if CFG['stamps']: E(raw(f"s_setpc_b64 {sRET}"))
    else: E(raw("s_endpgm"))
    E(label(f"L_{n}_sync"))
    E(salu('s_cmp_eq_u32', None, sWAVE, 0)); E(raw(f"s_cbranch_scc0 L_{n}_sy2"))
    E(smov(sSP, 0)); E(red_poll()[1][0])
    E(label(f"L_{n}_sy0"))
    E(salu('s_cmp_ge_u32', None, sOK, 16)); E(raw(f"s_cbranch_scc1 L_{n}_sy1"))
    E(red_poll()[0]); E(waitvm(0)); E(valu('v_readfirstlane_b32', sOK, vD))
    E(salu('s_cmp_ge_u32', None, sOK, 16)); E(raw(f"s_cbranch_scc0 L_{n}_syw"))
    E(label(f"L_{n}_sy1"))
    E(red_poll()[1][1]); E(red_poll()[1][0]); E(waitvm(1)); E(red_eval())
    E(salu('s_bitcmp1_b32', None, sC, 0)); E(csel(sT2, sRS, 36)); E(salu('s_bitcmp1_b32', None, sC, 1)); E(csel(sT3, sRF, 36))
    E(salu('s_min_u32', sT2, sT2, sT3)); E(salu('s_cmp_lt_u32', None, sI, sT2)); E(raw(f"s_cbranch_scc1 L_{n}_syp"))
    E(label(f"L_{n}_syw"))
    E(add(sSP, sSP, 1)); E(salu('s_cmp_gt_u32', None, sSP, CFG.get('spin', 4000))); E(csel(sTO, 1, 0)); E(raw(f"s_cbranch_scc1 L_{n}_syp"))
    E(raw(f"s_sleep {CFG.get('sleep', 1)}")); E(raw(f"s_branch L_{n}_sy0"))
    E(label(f"L_{n}_syp"))
    E(red_pub(sPAR))
    E(label(f"L_{n}_sy2")); E(barrier()); E(red_get(sPAR)); E(salu('s_xor_b32', sPAR, sPAR, 12))
    E(raw(f"s_setpc_b64 {sRET2}"))
    return p

def reduce_items(p, ni, sPART_, sXO_, srdP, srdX, srdO, vL16, vXO_, base, flags, mid=None):
    E = p.emit
    SA = base; FA = base + 8; T = base + 16
    Ls = [base + 24 + 72 * i for i in range(ni)]
    for k in range(NPART):
        if k: E(add(sPART_, sPART_, 16 * PART - (PWAVE if ni == 2 else 0)))
        for i in range(ni):
            if i: E(add(sPART_, sPART_, PWAVE))
            E(bload('buffer_load_dwordx4', v(Ls[i] + 4 * k, 4), vL16, srdP, sPART_, flags=flags))
    for i in range(ni):
        XR = Ls[i] + 68
        if i: E(add(sT2, sXO_, 32 * 1152))
        so = sT2 if i else sXO_
        E(bload('buffer_load_dwordx2', v(XR, 2), vXO_, srdX, so)); E(bload('buffer_load_dwordx2', v(XR + 2, 2), vXO_, srdX, so, 32))
    ex = 0
    if mid: mid(); ex = 1
    E(smov(sT3, 0xffff0000))
    for i in range(ni):
        L = Ls[i]; XR = L + 68
        for k in range(NPART):
            if i == 0: E(waitvm((NPART - 1 - k) * ni + (ni - 1) + 2 * ni + ex))
            acc = SA if k < 11 else FA
            for q in range(4):
                x = v(L + 4 * k + q)
                if k in (0, 11):
                    E(valu('v_lshlrev_b32', v(acc + 2 * q), 16, x)); E(valu('v_and_b32', v(acc + 2 * q + 1), sT3, x))
                else:
                    tp = v(T + 2 * q, 2)
                    E(valu('v_lshlrev_b32', tp[0], 16, x)); E(valu('v_and_b32', tp[1], sT3, x))
            if k not in (0, 11):
                for q in range(4): E(valu('v_pk_add_f32', v(acc + 2 * q, 2), v(acc + 2 * q, 2), v(T + 2 * q, 2)))
        for e in range(8): E(valu('v_exp_f32', v(T + e), v(FA + e)))
        for e in range(8): E(valu('v_add_f32', v(T + e), 1.0, v(T + e)))
        for e in range(8): E(valu('v_rcp_f32', v(T + e), v(T + e)))
        for e in range(8): E(valu('v_mul_f32', v(FA + e), f2u(-math.log(2.0)), v(FA + e)))
        for e in range(8): E(valu('v_mul_f32', v(FA + e), v(FA + e), v(T + e)))
        if i == 0: E(waitvm(ex if ni == 1 else 0))
        for q in range(4):
            E(valu('v_lshlrev_b32', v(T + 2 * q), 16, v(XR + q))); E(valu('v_and_b32', v(T + 2 * q + 1), sT3, v(XR + q)))
        for e in range(8): E(valu('v_fma_f32', v(T + e), v(SA + e), v(FA + e), v(T + e)))
        for q in range(4): E(valu('v_cvt_pk_bf16_f32', v(XR + q), v(T + 2 * q), v(T + 2 * q + 1)))
        if i: E(add(sXO_, sXO_, 32 * 1152))
        E(bstore('buffer_store_dwordx2', v(XR, 2), vXO_, srdO, sXO_)); E(bstore('buffer_store_dwordx2', v(XR + 2, 2), vXO_, srdO, sXO_, 32))

def build_role(kind, vm_before):
    R = Role(kind)
    CFG['shape'] = CFG.get('shapes', {}).get(kind, CFG['shape0'])
    R.ring = {'F': (216, 9), 'A': (192, 16), 'M': (200, 8)}[kind]
    if kind == 'M': R.depth = 7
    nl = CFG.get('pfl', 16)
    MS = CFG['shape'] == 'M'
    if MS:
        R.add_p1_unit, R.add_p1_half, R.epi_silu, R.epi_q = R.add_p1_unitM, R.add_p1_halfM, R.epi_siluM, R.epi_qM
    P2M = 'q16' if MS else 'pi'
    if kind == 'F' and CFG.get('l844'):
        R.ring = (208, 12); R.depth = 7
        for u in range(13): R.add_p1_unit(u, sW1, sHA, sHC, 9216, u == 0, a(16 * u, 16), R.epi_silu, last=(u == 12),
                                          inreg=[pf_run(sW2, sPF2, 832 * 1152, 10) if u >= 1 else None, pf_row('F', sW1)])
        needs = {t: [('reg', 8 * t)] for t in range(26)}
        dm = [dma_w(sW2, sFA, 0, 1152, sFC, 0), dma_w(sW2, sFA, 288 * 1152, 1152, sFC, 288 * 1152), dma_w(sW2, sFA, 576 * 1152, 1152)]
        R.add_p2([(a(0, 208), [288, 288, 256], dm, needs, sSt)], [add(x, x, 128) for x in (sFA, sFC)], pre0=lambda: set_offw(1152, P2M))
        for st in R.stages[-27:]: st.ring = (208, 12, 'restart')
    elif kind == 'M' and CFG.get('l844'):
        R.ring = (208, 8); R.depth = 7
        Q = [a(80, 32), a(112, 32)]; OA = a(144, 64)
        def mpf(u):
            if u == 0: return pf_row('M', sWQ)
            if u == 1: return lambda: pf_row_setup('M', 9216, 18, sPF1, 0) + [pf_row('M', sW1)()[1]]
            if u <= 5: return pf_row('M', sW1)
            return None
        for u in range(4): R.add_p1_unit(u, sWQ, sQA, sQC, 8192, u == 0, a(80 + 16 * u, 16), R.epi_q, key='Q', inreg=[None, mpf(u)])
        for u in range(5): R.add_p1_unit(4 + u, sW1, sHA, sHC, 9216, u == 0, a(16 * u, 16), R.epi_silu, pre=(lambda: set_offw(9216, 'S')) if u == 0 else None,
                                         last=(u == 4), key='H', inreg=[None, mpf(4 + u)])
        Ha = dict(i=0, Q=Q[0], S=Sreg, P=Preg, O=OA, LM=v(230, 8), OF=lambda kk: OA.sub(16 * kk, 8),
                  need_qk=[('acc', 80), ('acc', 96)], need_pv=[('acc', 48 + 16 * i) for i in range(4)])
        Hb = dict(i=1, Q=Q[1], S=[v(80, 16), v(96, 16)], P=[v(48, 8), v(56, 8)], O=v(160, 64), LM=v(64, 8), OF=lambda kk: OA.sub(16 * kk + 8, 8))
        R.add_pa_g([[Ha, Hb]])
        R.stages[-9].mf[-1].need.append(('acc', 48))
        R.heads = [(Ha, sPFa), (Hb, sPFa)]
        R.add_p2m(a(0, 80), [H['OF'](kk) for H in (Ha, Hb) for kk in range(4)],
                  [dma_w(sW2, sFA, 0, 1152, sFC, 0), dma_w(sWO, sOA, 0, 1152, sFC, 32 * 1152, srdC=sW2)],
                  [add(x, x, 128) for x in (sOA, sFA, sFC)], pre0=lambda: set_offw(1152, P2M))
        for st in R.stages[-18:]: st.ring = (208, 12, 'restart')
        k = pf_sched(R, 15, sK, sPFa, 131072, 16); k = pf_sched(R, k, sV, sPFa, 131072, 16)
        pf_sched(R, 17, sWO, sPFc, 256 * 1152, 36); pf_sched(R, 18, sW2, sPF2, 320 * 1152, 45)
    elif kind == 'F':
        for u in range(13): R.add_p1_unit(u, sW1, sHA, sHC, 9216, u == 0, a(16 * u, 16), R.epi_silu, last=(u == 12), inreg=[pf_run(sW2, sPF2, 832 * 1152, 10) if u >= 1 else None, pf_row('F', sW1) if CFG['pf'] >= 3 else None] if CFG['pf'] else None)
        R.add_p1_half(13, a(208, 8))
        needs = {t: [('reg', 8 * t)] for t in range(27)}
        dm = [dma_w(sW2, sFA, 0, 1152, sFC, 0), dma_w(sW2, sFA, 288 * 1152, 1152, sFC, 288 * 1152), dma_w(sW2, sFA, 576 * 1152, 1152, sFS, 0)]
        R.add_p2([(a(0, 216), [288, 288, 288], dm, needs, sSt)], [add(x, x, 128) for x in (sFA, sFC, sFS)], pre0=lambda: set_offw(1152, P2M))
        if CFG['pf']:
            pf_sched(R, 26, sW2, sPF2h, 32 * 1152, 8)
    elif kind == 'A' and CFG.get('pair'):
        OA = a(96, 64)
        Ha = dict(i=0, Q=a(0, 32), S=Sreg, P=Preg, O=OA, LM=v(230, 8), OF=lambda kk: OA.sub(16 * kk, 8),
                  need_qk=[('acc', 48), ('acc', 64)], need_pv=[('acc', 48 + 16 * i) for i in range(4)])
        Hb = dict(i=1, Q=a(32, 32), S=[v(48, 16), v(64, 16)], P=[v(80, 8), v(88, 8)], O=v(160, 64), LM=v(96, 8), OF=lambda kk: OA.sub(16 * kk + 8, 8))
        Hc = dict(i=2, Q=a(64, 32), S=Sreg, P=Preg, O=v(48, 64), LM=v(16, 8), OF=lambda kk: a(160 + 8 * kk, 8), need_pv=[('lm', 0)])
        Ha['need_qk'] += [('acc', 80)]
        pj = {1: sJQ}
        for u in range(6):
            R.add_p1_unit(u, sWQ, sQA, sQC, 8192, u == 0, a(16 * u, 16), R.epi_q, last=(u == 5), step=sJQ if u == 4 else 128,
                          inreg=[pf_run(sWO, sPFc, 384 * 1152, 11) if u >= 1 else None, pf_row('A', sWQ, pj.get(u, 128)) if CFG['pf'] >= 3 and u < 3 else None] if CFG['pf'] else None)
        R.add_pa_g([[Ha, Hb], [Hc]])
        Bf = [H['OF'](kk) for H in (Ha, Hb, Hc) for kk in range(4)]
        needs = {0: [('fin', 0), ('fin', 1)], 8: [('fin', 2)]}
        dm = [dma_w192(sWO, 0), dma_w192(sWO, 0, sOA1, sOB1)]
        R.add_p2([(Bf, [192, 192], dm, needs, sSt)], [add(x, x, 128) for x in (sOA, sOB, sOA1, sOB1)], pre0=lambda: set_offw(1152, P2M))
        R.heads = [(Ha, sPFa), (Hb, sPFa), (Hc, sPFb)]
        if CFG['pf'] >= 2:
            pf_sched(R, 10, sK, sPFa, 131072, 16); pf_sched(R, 10, sV, sPFa, 131072, 16)
            pf_sched(R, 12, sK, sPFb, 131072, 16); pf_sched(R, 12, sV, sPFb, 131072, 16)
    elif kind == 'A':
        Q = [a(32 * e, 32) for e in range(3)]; O = [a(96 + 32 * e, 32) for e in range(3)]
        for u in range(6): R.add_p1_unit(u, sWQ, sQA, sQC, 8192, u == 0, a(16 * u, 16), R.epi_q, last=(u == 5), inreg=[pf_run(sWO, sPFc, 384 * 1152, 11) if u >= 1 else None, pf_row('A', sWQ) if CFG['pf'] >= 3 and u < 5 else None] if CFG['pf'] else None)
        R.add_pa(Q, O)
        needs = {4 * e: [('fin', e)] for e in range(3)}; needs[0].append(('S', 2, 15))
        dm = [dma_w192(sWO, b * 192 * 1152) for b in range(2)]
        R.add_p2([(a(96, 96), [192, 192], dm, needs, sSt)], [add(sOA, sOA, 128), add(sOB, sOB, 128)], pre0=lambda: set_offw(1152, P2M))
        if CFG['pf']:
            if CFG['pf'] >= 2:
                pf_sched(R, 10, sK, sPFa, 131072, 16); pf_sched(R, 10, sV, sPFa, 131072, 16)
                pf_sched(R, 12, sK, sPFb, 131072, 16); pf_sched(R, 12, sV, sPFb, 131072, 16)
    else:
        Q = [a(136 + 32 * e, 32) for e in range(2)]; O = [a(72 + 32 * e, 32) for e in range(2)]
        def mpf(u):
            if u == 0: return pf_row('M', sWQ)
            if u == 1: return lambda: pf_row_setup('M', 9216, 18, sPF1, 0) + [pf_row('M', sW1)()[1]]
            if u <= 4: return pf_row('M', sW1)
            if u == 5: return lambda: [smov(sPW, sPF1h), pf_row('M', sW1)()[1]]
            return None
        for u in range(4): R.add_p1_unit(u, sWQ, sQA, sQC, 8192, u == 0, a(136 + 16 * u, 16), R.epi_q, key='Q', inreg=[None, mpf(u)] if CFG['pf'] >= 3 else None)
        for u in range(4): R.add_p1_unit(4 + u, sW1, sHA, sHC, 9216, u == 0, a(16 * u, 16), R.epi_silu, pre=(lambda: set_offw(9216, 'M' if MS else 'S')) if u == 0 else None, last=(u == 3), key='H', inreg=[None, mpf(4 + u)] if CFG['pf'] >= 3 else None)
        R.add_p1_half(8, a(64, 8))
        BO = a(72, 64)
        if CFG.get('pair'):
            Ha = dict(i=0, Q=Q[0], S=Sreg, P=Preg, O=BO, LM=v(230, 8), OF=lambda kk: BO_.sub(16 * kk, 8),
                      need_qk=[('acc', 48 + 16 * i) for i in range(3)], need_pv=[('acc', 48 + 16 * i) for i in range(4)])
            Hb = dict(i=1, Q=Q[1], S=[v(64, 16), v(48, 16)], P=[v(80, 8), v(88, 8)], O=v(160, 64), LM=v(96, 8), OF=lambda kk: BO_.sub(16 * kk + 8, 8))
            BO_ = BO
            R.add_pa_g([[Ha, Hb]])
            BO = [H['OF'](kk) for H in (Ha, Hb) for kk in range(4)]
            R.heads = [(Ha, sPFa), (Hb, sPFa)]
        else: R.add_pa(Q, O)
        nf = {t: [('reg', 8 * t)] for t in range(9)}; nf[0].append(('S', 1, 15))
        R.add_p2([(a(0, 72), [288], [dma_w(sW2, sFA, 0, 1152, sFS, 0)], nf, sSt2),
                  (BO, [256], [dma_w(sWO, sOA, 0, 1152)], {0: [('fin', 0)], 4: [('fin', 1)]}, sSt)],
                 [add(x, x, 128) for x in (sOA, sFA, sFS)], pre0=lambda: set_offw(1152, P2M))
        for st in R.stages[-18:]: st.ring = (200, 14, 'restart')
        if CFG['pf']:
            if CFG['pf'] >= 2:
                k = pf_sched(R, 14, sK, sPFa, 131072, 16); k = pf_sched(R, k, sV, sPFa, 131072, 16)
            pf_sched(R, 16, sWO, sPFc, 256 * 1152, 36); pf_sched(R, 23 if not CFG.get('pair') else 17, sW2, sPF2, 256 * 1152, 36); pf_sched(R, 24 if not CFG.get('pair') else 17, sW2, sPF2h, 32 * 1152, 8)
    if CFG.get('msum') and not MS and kind in 'AM':
        st0 = [st for st in R.stages if st.name == 'PAh0s0'][0]
        m0_ = st0.mf[8]
        m0_.need += [('acc', 48 + 16 * i) for i in range(4)]
        m0_.pre = lambda: R.p.emit([valu('v_mov_b32', vONES[i], 0x3f803f80) for i in range(4)])
    if CFG.get('recode') and CFG['fused']:
        names = [st.name for st in R.stages]
        nS = len(names)
        R.pf.setdefault(nS - 2, []).append(pf_code(f"L_{kind}_red", f"L_role{kind}_end", 4))
        p2 = names.index('P2c0b0')
        R.stages[p2].label = f"L_{kind}_p2"
        R.pf.setdefault(p2 - 2, []).append(pf_code(f"L_{kind}_p2", f"L_{kind}_p2+20480", 5))
        if kind in 'AM':
            pa = names.index('PAmini'); R.stages[pa].label = f"L_{kind}_pa"
            R.pf.setdefault(pa - 1, []).append(pf_code(f"L_{kind}_pa", f"L_{kind}_p2", 8))
    if CFG.get('hot') and CFG['fused'] and kind in CFG['hot']:
        names = [st.name for st in R.stages]
        last = names.index('P2c8b0'); R.stages[last].label = f"L_{kind}_c8"
        def setup():
            o = [raw(f"s_getpc_b64 {sPC}", 'salu', wr=[sPC]), label(f"L_{kind}_hp"),
                 salu('s_add_u32', sPC[0], sPC[0], f"L_{kind}_c8-L_{kind}_hp"), salu('s_addc_u32', sPC[1], sPC[1], 0, scc_r=True),
                 valu('v_bfe_u32', vPF2, vTID, 16, 5), valu('v_and_b32', vPF, 63, vTID), valu('v_min_u32', vPF, 1, vPF),
                 valu('v_lshl_add_u32', vPF, vPF2, 1, vPF), valu('v_lshlrev_b32', vPF, 7, vPF)]
            if kind == 'F': o += pf_row_setup(kind, 1152, 26, sPF2, 2 * 128)
            return o
        def rep_code():
            return [I(f"global_load_dword {vDUM}, {vPF}, {sPC}", 'vload', wr=vDUM.regs(), rd=vPF.regs() + sPC.regs(), units=3, tag='pf')]
        R.pf.setdefault(names.index('P2c1b0'), []).append(setup)
        for c in range(2, 8):
            k0 = names.index(f'P2c{c}b0')
            R.pf.setdefault(k0, []).append(rep_code)
            if kind == 'F': R.pf.setdefault(k0 + 1, []).append(pf_row(kind, sW2))
    R.slow = []
    if kind in 'AM' and CFG.get('slow', True) and CFG.get('pair'):
        P2s = [st for st in R.stages if st.name.startswith('P2c0')]
        hl = [(H['i'], H['Q'], (H['OF'], kv)) for (H, kv) in R.heads]
        if kind == 'A':
            P2s[0].mf[0].pre = slow_check(R, hl[:2], (112, 160))
            [m for m in P2s[1].mf if ('fin', 2) in m.need][0].pre = slow_check(R, hl[2:], (160, 48))
        else:
            m_ = P2s[1].mf[4 if CFG.get('l844') else 0]
            m_.need += [('fin', 0), ('fin', 1)]
            m_.pre = slow_check(R, hl, (160, 48))
    elif kind in 'AM' and CFG.get('slow', True):
        P2s = [st for st in R.stages if st.name.startswith('P2c0')]
        if kind == 'A':
            P2s[0].mf[0].need += [('fin', 1)]
            P2s[0].mf[0].pre = slow_check(R, [(0, Q[0], O[0]), (1, Q[1], O[1])], 112)
            m_ = [m for m in P2s[1].mf if ('fin', 2) in m.need][0]
            m_.pre = slow_check(R, [(2, Q[2], O[2])], 160)
        else:
            P2s[1].mf[0].need += [('fin', 1)]
            P2s[1].mf[0].pre = slow_check(R, [(0, Q[0], O[0]), (1, Q[1], O[1])], 160)
    if CFG['fused']:
        add_signals(R)
        def early0():
            it = red_setup(kind) + red_poll()[0]
            it[-1].tag = 'cnt'
            return it
        def early():
            assert R.cnt_covered()
            PRIV[0] = (kind == 'A')
            it = red_poll()[1]
            it[-1].tag = 'poll'
            return it
        def covered():
            idx = max(i for i, x in enumerate(R.p.ins) if x.tag == 'cnt'); n = 0
            for x in R.p.ins[idx + 1:]:
                if x.kind in VMEMK: n += 1
                if x.txt.startswith('s_waitcnt vmcnt(') and int(x.txt[16:-1]) <= n: return True
            return False
        R.cnt_covered = covered
        if kind == 'A' and CFG.get('l2pf'):
            nm = [st.name for st in R.stages]
            R.pf.setdefault(nm.index('P2c1b0'), []).append(l2pf_setup)
            for (cw, dlt) in CFG['l2pf']:
                kp = nm.index(f'P2c{cw}b0')
                for j in range(4): R.pf.setdefault(kp, []).append(lambda j=j: l2pf_poll()[j])
                R.stages[kp + 2].cover_tag = 'gp'
                def gate(j, dlt=dlt):
                    def f():
                        it = l2pf_issue(R, dlt)[j]
                        if j == 0:
                            it = it + [valu('v_readfirstlane_b32', sOK, vD), salu('s_cmp_ge_u32', None, sOK, 16), csel(sC, sC, 15)]
                        return it
                    return f
                for j in range(4): R.pf.setdefault(kp + 2, []).append(gate(j))
        R.pf.setdefault([st.name for st in R.stages].index('P2c1b0' if kind == 'F' else 'P2c0b1'), []).append(early0)
        if kind in CFG.get('pre', ''):
            R.pf.setdefault(len(R.stages) - 3, []).append(early)
            R.stages[-1].pre_bar = lambda: red_early(R.p, kind)
        else: R.pf.setdefault(len(R.stages) - CFG.get('pollw', 1), []).append(early)
    role_prologue(R, vm_before)
    R.run()
    if CFG['fused']:
        p = R.p
        if kind not in CFG.get('pre', ''): red_early(p, kind)
        if kind in CFG.get('pre', ''): pass
        elif kind in CFG.get('lateflag', 'A'): p.emit(barrier())
        else:
            p.emit(waitvm(0)); p.emit(barrier())
            p.emit(valu('v_mov_b32', vPRG, 9))
            if CFG.get('rep'): p.emit(bstore('buffer_store_dword', vPRG, vCR, sWS, 0, flags='sc1'))
            p.emit(bstore('buffer_store_dword', vPRG, vCT, sWS, 0, flags='sc1'))
        if CFG['stamps']: R.stamp(len(R.stages) - 1)
        p.emit(raw(f"s_call_b64 {sRET}, L_{kind}_red"))
    if CFG['stamps']:
        p = R.p
        R.stamp(len(R.stages))
        p.emit(raw("s_memrealtime s[98:99]", wr=[s(98, 2)])); p.emit(raw("s_waitcnt lgkmcnt(0)"))
        p.emit(raw(f"v_writelane_b32 {vSTAMP}, s98, 63", 'valu', wr=[vSTAMP], rd=[s(98)]))
        if CFG.get('dbgstat'):
            n = len(R.stages)
            lanes = {'F': [0, 27, n - 1, n], 'A': [0, 37, n - 1, n], 'M': [0, 34, n - 1, n]}[kind]
            slots = {'F': [1, 2, 3, 5], 'A': [10, 11, 13, 14], 'M': [15, 15, 15, 15]}[kind]
            p.emit([valu('v_mov_b32', v(4), 256), valu('v_mov_b32', v(5), 0)])
            for i, (ln, sl) in enumerate(zip(lanes, slots)):
                p.emit(raw(f"v_readlane_b32 s92, {vSTAMP}, {ln}", 'rdl', wr=[sT2], rd=[vSTAMP])); p.emit(nop(3))
                p.emit(raw(f"v_writelane_b32 v5, s92, {i}", 'valu', wr=[v(5)], rd=[sT2])); p.emit(raw(f"v_writelane_b32 v4, {4 * sl}, {i}", 'valu', wr=[v(4)]))
            p.emit(raw(f"v_writelane_b32 v5, s98, 4", 'valu', wr=[v(5)], rd=[s(98)])); p.emit(raw(f"v_writelane_b32 v4, 28, 4", 'valu', wr=[v(4)]))
            p.emit(salu('s_not_b32', sT2, s(43))); p.emit(raw(f"v_writelane_b32 v5, s92, 5", 'valu', wr=[v(5)], rd=[sT2])); p.emit(raw(f"v_writelane_b32 v4, 36, 5", 'valu', wr=[v(4)]))
            p.emit(salu('s_sub_u32', sT2, s(98), s(43))); p.emit(raw(f"v_writelane_b32 v5, s92, 6", 'valu', wr=[v(5)], rd=[sT2])); p.emit(raw(f"v_writelane_b32 v4, 24, 6", 'valu', wr=[v(4)]))
            p.emit([salu('s_cmp_eq_u32', None, sRB, 9), csel(sT2, 0, sRB), salu('s_or_b32', sT2, sT2, sWAVE), salu('s_cmp_eq_u32', None, sT2, 0), csel(sT2, 0, 256),
                    valu('v_add_u32', v(4), sT2, v(4))])
            p.emit(I(f"buffer_atomic_umax v5, v4, {sDBG}, 0 offen sc1", 'vstore', rd=vr(4, 2) + sDBG.regs(), units=3))
        p.emit([shl(sT2, s(2), 2), add(sT2, sT2, sWAVE), shl(sT2, sT2, 8), add(sT2, sT2, STAMP_OFF),
                valu('v_lshrrev_b32', v(42), 2, vLANE16), bstore('buffer_store_dword', vSTAMP, v(42), sWS, sT2)])
    R.p.emit(raw("s_endpgm"))
    return R

def fold(ins, name):
    idx = [i for i, x in enumerate(ins) if x.tag == 'mark']
    def body(a_, b_): return [x.txt for x in ins[a_:b_] if x.kind != 'label']
    out = []; pos = 0; k = 0; nl = 0
    while k + 1 < len(idx):
        b0 = body(idx[k], idx[k + 1]); n = 1
        while k + n + 1 < len(idx) and body(idx[k + n], idx[k + n + 1]) == b0: n += 1
        if n >= 2:
            out += ins[pos:idx[k]]
            L = f"L_{name}_loop{nl}"; nl += 1
            out.append(smov(sLC, n)); out.append(I(".p2align 3", 'label')); out.append(label(L))
            out += ins[idx[k]:idx[k + 1]]
            out += [salu('s_sub_u32', sLC, sLC, 1), salu('s_cmp_lg_u32', None, sLC, 0), raw(f"s_cbranch_scc1 {L}")]
            pos = idx[k + n]; k += n
        else: k += 1
    out += ins[pos:]
    return out

def fold_regions(ins, name):
    regs = []; i = 0
    beg = None
    for i, x in enumerate(ins):
        if isinstance(x.tag, tuple) and x.tag and x.tag[0] == 'region':
            if x.tag[1] == 'begin': beg = (i, x.tag[2])
            elif beg: regs.append((beg[0], i, beg[1])); beg = None
    groups = {}
    for (a_, b_, key) in regs:
        groups.setdefault(tuple(x.txt for x in ins[a_:b_] if x.kind != 'label'), []).append((a_, b_))
    out = []; subs = []; repl = {}
    n = 0
    for body, lst in groups.items():
        if len(lst) >= 2:
            L = f"L_{name}_sub{n}"; n += 1
            a_, b_ = lst[0]
            subs += [I(".p2align 6", 'label'), label(L)] + ins[a_:b_] + [raw(f"s_setpc_b64 {sRET}")]
            for (a_, b_) in lst: repl[a_] = (b_, L)
    i = 0
    while i < len(ins):
        if i in repl:
            b_, L = repl[i]; out.append(raw(f"s_call_b64 {sRET}, {L}")); i = b_
        else:
            out.append(ins[i]); i += 1
    print(f"  regions: {[len(l) for l in groups.values()]}", file=sys.stderr)
    return out + subs

def reduce_body(p, sPART, sXO, srdP, srdX, srdO, vL16, vXO, base, flags, mid=None):
    E = p.emit
    L = base; XR = base + 68; SA = base + 72; FA = base + 80; T = base + 88
    for k in range(NPART):
        if k: E(add(sPART, sPART, 16 * PART))
        E(bload('buffer_load_dwordx4', v(L + 4 * k, 4), vL16, srdP, sPART, flags=flags))
    E(bload('buffer_load_dwordx2', v(XR, 2), vXO, srdX, sXO)); E(bload('buffer_load_dwordx2', v(XR + 2, 2), vXO, srdX, sXO, 32))
    ex = 0
    if mid: E(mid()); ex = 1
    E(smov(sT3, 0xffff0000))
    for k in range(NPART):
        E(waitvm(NPART + 1 - k + ex))
        acc = SA if k < 11 else FA
        for q in range(4):
            x = v(L + 4 * k + q)
            if k in (0, 11):
                E(valu('v_lshlrev_b32', v(acc + 2 * q), 16, x)); E(valu('v_and_b32', v(acc + 2 * q + 1), sT3, x))
            else:
                tp = v(T + 2 * q, 2)
                E(valu('v_lshlrev_b32', tp[0], 16, x)); E(valu('v_and_b32', tp[1], sT3, x))
        if k not in (0, 11):
            for q in range(4): E(valu('v_pk_add_f32', v(acc + 2 * q, 2), v(acc + 2 * q, 2), v(T + 2 * q, 2)))
    for e in range(8): E(valu('v_exp_f32', v(T + e), v(FA + e)))
    for e in range(8): E(valu('v_add_f32', v(T + e), 1.0, v(T + e)))
    for e in range(8): E(valu('v_rcp_f32', v(T + e), v(T + e)))
    for e in range(8): E(valu('v_mul_f32', v(FA + e), f2u(-math.log(2.0)), v(FA + e)))
    for e in range(8): E(valu('v_mul_f32', v(FA + e), v(FA + e), v(T + e)))
    E(waitvm(ex))
    for q in range(4):
        E(valu('v_lshlrev_b32', v(T + 2 * q), 16, v(XR + q))); E(valu('v_and_b32', v(T + 2 * q + 1), sT3, v(XR + q)))
    for e in range(8): E(valu('v_fma_f32', v(T + e), v(SA + e), v(FA + e), v(T + e)))
    for q in range(4): E(valu('v_cvt_pk_bf16_f32', v(XR + q), v(T + 2 * q), v(T + 2 * q + 1)))
    E(bstore('buffer_store_dwordx2', v(XR, 2), vXO, srdO, sXO)); E(bstore('buffer_store_dwordx2', v(XR + 2, 2), vXO, srdO, sXO, 32))

def reduce_kernel():
    p = Prog(); E = p.emit
    E(salu('s_cmp_ge_u32', None, s(2), 576)); E(raw("s_cbranch_scc0 L_rgo")); E(raw("s_endpgm")); E(label("L_rgo"))
    E(raw("s_load_dwordx2 s[4:5], s[0:1], 0", wr=[s(4, 2)])); E(raw("s_load_dwordx2 s[6:7], s[0:1], 64", wr=[s(6, 2)])); E(raw("s_load_dwordx2 s[8:9], s[0:1], 80", wr=[s(8, 2)]))
    E(valu('v_lshrrev_b32', v(1), 6, v(0))); E(valu('v_readfirstlane_b32', s(10), v(1)))
    E(shl(s(11), s(2), 2)); E(add(s(11), s(11), s(10)))
    E(salu('s_mul_hi_u32', s(24), s(11), -(-(1 << 32) // 36), scc_w=False))
    E(mul(s(25), s(24), 36)); E(salu('s_sub_u32', s(25), s(11), s(25)))
    E(shl(s(26), s(11), 10))
    E(valu('v_and_b32', v(0), 63, v(0))); E(valu('v_lshlrev_b32', v(1), 4, v(0)))
    E(valu('v_and_b32', v(2), 15, v(0))); E(smov(s(27), 1152)); E(valu('v_mul_u32_u24', v(2), s(27), v(2)))
    E(valu('v_lshrrev_b32', v(3), 4, v(0))); E(valu('v_lshl_add_u32', v(2), v(3), 3, v(2)))
    E(mul(s(28), s(24), 32 * 1152)); E(salu('s_and_b32', s(29), s(25), 1)); E(mul(s(29), s(29), 16 * 1152)); E(add(s(28), s(28), s(29)))
    E(shr(s(25), s(25), 1)); E(shl(s(25), s(25), 6)); E(add(s(28), s(28), s(25)))
    E(raw("s_waitcnt lgkmcnt(0)"))
    srd(p, s(12, 4), 8, WSP_BYTES); srd(p, s(16, 4), 4, 2359296); srd(p, s(20, 4), 6, 2359296)
    reduce_body(p, s(26), s(28), s(12, 4), s(16, 4), s(20, 4), v(1), v(2), 4, CFG.get('rflags', ''))
    E(raw("s_endpgm"))
    return p

def text(ins): return "\n".join((i.txt if i.kind == 'label' else " " + i.txt) for i in ins) + "\n"

def compress(t):
    t = re.sub(r" v_mfma_f32_16x16x32_bf16 v\[(\d+):\d+\], a\[(\d+):\d+\], v\[(\d+):\d+\], v\[\1:\d+\]", r" MV \1,\2,\3", t)
    t = re.sub(r" v_mfma_f32_16x16x32_bf16 v\[(\d+):\d+\], a\[(\d+):\d+\], a\[(\d+):\d+\], v\[\1:\d+\]", r" MA \1,\2,\3", t)
    t = re.sub(r" v_mfma_f32_32x32x16_bf16 v\[(\d+):\d+\], a\[(\d+):\d+\], v\[(\d+):\d+\], v\[\1:\d+\]", r" NV \1,\2,\3", t)
    t = re.sub(r" v_mfma_f32_32x32x16_bf16 v\[(\d+):\d+\], a\[(\d+):\d+\], a\[(\d+):\d+\], v\[\1:\d+\]", r" NA \1,\2,\3", t)
    t = re.sub(r" v_mfma_f32_16x16x32_bf16 a\[(\d+):\d+\], a\[(\d+):\d+\], v\[(\d+):\d+\], a\[\1:\d+\]", r" MC \1,\2,\3", t)
    t = re.sub(r" ds_read_b64_tr_b16 a\[(\d+):\d+\], v(\d+) offset:(\d+)", r" RT \1,\2,\3", t)
    t = re.sub(r" ds_read_b128 a\[(\d+):\d+\], v(\d+) offset:(\d+)", r" RB \1,\2,\3", t)
    t = re.sub(r" v_cvt_pk_bf16_f32 v(\d+), v(\d+), v(\d+)", r" CV \1,\2,\3", t)
    t = re.sub(r" v_accvgpr_write_b32 a(\d+), v(\d+)", r" AW \1,\2", t)
    t = re.sub(r" v_exp_f32 v(\d+), v(\d+)", r" EX \1,\2", t)
    t = re.sub(r" v_add_f32 v(\d+), v(\d+), v(\d+)", r" AD \1,\2,\3", t)
    t = re.sub(r" v_mul_f32 v(\d+), v(\d+), v(\d+)", r" ML \1,\2,\3", t)
    t = re.sub(r" s_waitcnt lgkmcnt\((\d+)\)", r" WL \1", t)
    mac = r""".macro MC d,a,b
 v_mfma_f32_16x16x32_bf16 a[\d:\d+3], a[\a:\a+3], v[\b:\b+3], a[\d:\d+3]
.endm
.macro NV d,a,b
 v_mfma_f32_32x32x16_bf16 v[\d:\d+15], a[\a:\a+3], v[\b:\b+3], v[\d:\d+15]
.endm
.macro NA d,a,b
 v_mfma_f32_32x32x16_bf16 v[\d:\d+15], a[\a:\a+3], a[\b:\b+3], v[\d:\d+15]
.endm
.macro MV d,a,b
 v_mfma_f32_16x16x32_bf16 v[\d:\d+3], a[\a:\a+3], v[\b:\b+3], v[\d:\d+3]
.endm
.macro MA d,a,b
 v_mfma_f32_16x16x32_bf16 v[\d:\d+3], a[\a:\a+3], a[\b:\b+3], v[\d:\d+3]
.endm
.macro RT d,a,o
 ds_read_b64_tr_b16 a[\d:\d+1], v\a offset:\o
.endm
.macro RB d,a,o
 ds_read_b128 a[\d:\d+3], v\a offset:\o
.endm
.macro CV d,a,b
 v_cvt_pk_bf16_f32 v\d, v\a, v\b
.endm
.macro AW d,a
 v_accvgpr_write_b32 a\d, v\a
.endm
.macro EX d,a
 v_exp_f32 v\d, v\a
.endm
.macro AD d,a,b
 v_add_f32 v\d, v\a, v\b
.endm
.macro ML d,a,b
 v_mul_f32 v\d, v\a, v\b
.endm
.macro WL n
 s_waitcnt lgkmcnt(\n)
.endm
"""
    return mac, t

HDR = open('recurrent_scan__sliding_block_cached__dense_activation_silu__prompt.s.ref').read().split('; Override launch')[0]
def kd(name, vgpr, acc, sgpr=102):
    return f""".amdhsa_kernel {name}
  .amdhsa_next_free_vgpr {vgpr}
  .amdhsa_next_free_sgpr {sgpr}
  .amdhsa_accum_offset {acc}
  .amdhsa_group_segment_fixed_size 0
  .amdhsa_kernarg_size 88
  .amdhsa_user_sgpr_count 2
  .amdhsa_user_sgpr_kernarg_segment_ptr 1
  .amdhsa_system_sgpr_workgroup_id_x 1
.end_amdhsa_kernel
"""
def est_cycles(ins):
    tot = 0; cur = None; n = 0
    for i in ins:
        if i.kind == 'label': continue
        if i.kind == 'mfma':
            if cur is not None: tot += max(cap, cur)
            cur = 2; n += 1; cap = 8 if len(i.wr) == 16 else 4
        elif cur is not None:
            if i.txt.startswith('s_waitcnt lgkm') and cap == 4: continue
            cur += i.units if not i.txt.startswith('s_nop') else (int(i.txt.split()[1]) + 1) * 0.5
    return tot * 4

def main(out, **kw):
    CFG.update(kw)
    set_layout(CFG.get('l844'))
    if CFG.get('tab'):
        global ROLE_TAB
        ROLE_TAB = CFG['tab']
    CFG['shape0'] = CFG['shape']
    cp = common_prologue()
    if CFG.get('entry', 0):
        if CFG.get('entry', 1) == 1:
            k = next(i for i, x in enumerate(cp.ins) if x.txt == 's_waitcnt lgkmcnt(0)')
            tail = cp.ins[k:]; vmx = list(cp.vm); cp.ins = cp.ins[:k]; cp.vm = []
            common_prologue2(cp); cp.ins += tail; cp.vm += vmx
        else: common_prologue2(cp)
        common_prologue3(cp)
    body = text(cp.ins) + dispatch_text()
    for kind in 'FAM':
        R = build_role(kind, cp.vm)
        ins = fold_regions(fold(R.p.ins, kind), kind) if CFG['fold'] else R.p.ins
        nm = sum(1 for i in R.p.ins if i.kind == 'mfma')
        print(f"role {kind}: stages {len(R.stages)} mfma {nm} instrs {len([i for i in ins if i.kind!='label'])} (unrolled {len([i for i in R.p.ins if i.kind!='label'])}) pad {R.p.npad} forced {R.forced} est {est_cycles(R.p.ins)} ideal {sum(32 if len(i.wr) == 16 else 16 for i in R.p.ins if i.kind == 'mfma')}", file=sys.stderr)
        if CFG.get('abl_pair') and kind in 'AM':
            out_ = []; on = False
            for x in ins:
                if x.kind == 'label' and x.txt.startswith('; PAh'): on = x.txt.startswith('; PAh1')
                if x.kind == 'label' and x.txt.startswith('; P2'): on = False
                if on and (x.kind in ('dma', 'ds') or (x.kind == 'salu' and ('m0' in x.txt or 's70' in x.txt))): continue
                out_.append(x)
            ins = out_
        ab = CFG.get('ablate', '')
        if ab:
            st0 = next(i for i, x in enumerate(ins) if x.txt.startswith('; P1u1b0'))
            def keep(x):
                if 'd' in ab and x.kind == 'dma': return False
                if 'r' in ab and x.kind == 'ds': return False
                if 'v' in ab and x.kind in ('trans',): return False
                if 'V' in ab and x.kind in ('trans', 'valu', 'perm') and not x.txt.startswith(('v_add_u32', 'v_xor', 'v_writelane', 'v_cmp', 'v_cnd', 'v_mov', 'v_lsh', 'v_mad', 'v_min', 'v_and', 'v_bfe', 'v_mul_u32')): return False
                if 'm' in ab and x.kind == 'mfma': return False
                return True
            ins = ins[:st0] + [x for x in ins[st0:] if keep(x)]
        for sp in R.slow: ins = ins + sp.ins
        if CFG['fused']: ins = ins + reducer(kind).ins
        body += f".p2align 6\nL_role{kind}:\n" + text(ins) + f"L_role{kind}_end:\n"
    rk = reduce_kernel()
    mac, body = compress(body)
    if CFG['fused']:
        t = HDR + "; @launch grid=(256,1,1) block=(256,1,1) lds=163840\n"
        t += '.amdgcn_target "amdgcn-amd-amdhsa--gfx950"\n' + mac + f".text\n.globl {KN}\n.p2align 8\n.type {KN},@function\n{KN}:\n" + body
        t += '.section .rodata,"a"\n.p2align 6\n' + kd(KN, 512, 256)
        open(out, 'w').write(t); print("size", len(t), file=sys.stderr); return
    t = HDR + f"; @launch kernel={KN} grid=(256,1,1) block=(256,1,1) lds=163840\n; @launch kernel={RN} grid=(576,1,1) block=(256,1,1) lds=0\n"
    t += '.amdgcn_target "amdgcn-amd-amdhsa--gfx950"\n' + mac + f".text\n.globl {KN}\n.p2align 8\n.type {KN},@function\n{KN}:\n" + body
    t += f".globl {RN}\n.p2align 8\n.type {RN},@function\n{RN}:\n" + text(rk.ins)
    t += '.section .rodata,"a"\n.p2align 6\n' + kd(KN, 512, 256) + ".p2align 6\n" + kd(RN, 104, 104, 102)
    open(out, 'w').write(t)
    print("size", len(t), file=sys.stderr)

if __name__ == "__main__":
    kw = eval("dict(" + (sys.argv[2] if len(sys.argv) > 2 else "") + ")")
    main(sys.argv[1], **kw)
```

```python
import sys, re
from s1 import *

ROLE_TAB = [0, 1, 2, 11, 3, 4, 5, 12, 6, 7, 13, 14, 8, 9, 10, 15]
vPFR = v(36)
vPRG = v(36)
PART = 4 * PWAVE
NPART = 17
NA, NM, NS = 10, 1, 11
def set_layout(new):
    global NPART, NA, NM, NS, ROLE_TAB
    if new:
        NPART, NA, NM, NS = 20, 8, 4, 12
        ROLE_TAB = [0, 1, 8, 12, 2, 3, 9, 13, 4, 5, 10, 14, 6, 7, 11, 15]
WSP_BYTES = NPART * 16 * PART
def PSTR(): return 16 * PART + (CFG.get('pskew', 0) if CFG['fused'] else 0)
sJQ, sQ0, sOA1, sOB1 = s(73), s(59), s(74), s(75)
STAMP_OFF = 0x3000000
CTRL = 0x2F00000
OOB = 0x10000000

def srd(p, dst, lo, nbytes):
    p.emit([smov(dst[0], s(lo)), salu('s_and_b32', dst[1], s(lo + 1), 0xffff), smov(dst[2], nbytes), smov(dst[3], 0x20000)])
def xdma(j):
    return [salu('s_add_u32', 'm0', s(6), j * 4096), salu('s_add_u32', sT, s(7), j * 128)] + [dma(v(16 + q), sX, sT, q * 1024, tag=('x', j)) for q in range(4)]
def mul(d, a_, b_): return salu('s_mul_i32', d, a_, b_, scc_w=False)
def add(d, a_, b_): return salu('s_add_u32', d, a_, b_)
def shl(d, a_, b_): return salu('s_lshl_b32', d, a_, b_)
def shr(d, a_, b_): return salu('s_lshr_b32', d, a_, b_)
def csel(d, a_, b_): return salu('s_cselect_b32', d, a_, b_, scc_w=False, scc_r=True)

def common_prologue():
    if CFG.get('entry', 0) == 0: return common_prologue_old()
    assert CFG['xe'] == 9 and CFG.get('map', 4) == 4
    p = Prog(); E = p.emit
    E(raw("s_load_dwordx8 s[40:47], s[0:1], 0", wr=[s(40, 8)]))
    E(salu('s_cmp_ge_u32', None, s(2), 256))
    E(raw("s_cbranch_scc0 L_go")); E(raw("s_endpgm")); E(label("L_go"))
    if CFG['stamps']:
        E(raw(f"s_memtime {sT0}", wr=[sT0])); E(raw("s_memrealtime s[96:97]", wr=[s(96, 2)]))
    E(valu('v_lshrrev_b32', v(1), 6, v(0)))
    E(salu('s_and_b32', s(3), s(2), 1)); E(shl(s(3), s(3), 3))
    E(valu('v_readfirstlane_b32', sWAVE, v(1)))
    E(shr(sRB, s(2), 5)); E(salu('s_or_b32', sRB, sRB, s(3)))
    E(valu('v_and_b32', v(0), 63, v(0)))
    E(valu('v_lshrrev_b32', vROWN, 3, v(0)))
    E(valu('v_and_b32', v(20), 7, v(0))); E(valu('v_lshrrev_b32', v(21), 4, v(0)))
    E(valu('v_xor_b32', v(22), v(20), v(21))); E(valu('v_xor_b32', v(23), 4, v(22)))
    E(salu('s_movk_i32', s(3), 1152, scc_w=False)); E(valu('v_mul_u32_u24', v(24), s(3), vROWN))
    E(valu('v_lshl_add_u32', v(16), v(22), 4, v(24))); E(valu('v_lshl_add_u32', v(17), v(23), 4, v(24)))
    E(valu('v_add_u32', v(17), 8 * 1152 - 1024, v(17)))
    E(valu('v_add_u32', v(18), 2 * (8 * 1152 - 1024), v(16))); E(valu('v_add_u32', v(19), 2 * (8 * 1152 - 1024), v(17)))
    E(mul(s(6), sWAVE, XW)); E(raw("s_lshl2_add_u32 s7, s64, s62", 'salu', wr=[s(7)], rd=[sRB, sWAVE])); E(mul(sT, s(7), 32 * 1152))
    E(smov('m0', s(6))); E(add(s(7), sT, 9 * 128))
    E(smov(sX[2], 2359296)); E(smov(sX[3], 0x20000))
    E(raw("s_waitcnt lgkmcnt(0)"))
    E(smov(sX[0], s(40))); E(salu('s_and_b32', sX[1], s(41), 0xffff))
    E(label("L_xl"))
    n0 = len(p.vm)
    for q in range(4): E(dma(v(16 + q), sX, sT, q * 1024))
    del p.vm[n0:]
    for j in range(9): p.vm += [('x', j)] * 4
    E(add(sT, sT, 128)); E(add('m0', 'm0', 4096)); E(salu('s_cmp_lt_u32', None, sT, s(7))); E(raw("s_cbranch_scc1 L_xl"))
    return p
def common_prologue2(p):
    E = p.emit
    tab = ROLE_TAB
    lo = sum(tab[i] << (4 * i) for i in range(8)); hi = sum(tab[8 + i] << (4 * i) for i in range(8))
    E(salu('s_bfe_u32', s(3), s(2), (2 << 16) | 3)); E(salu('s_bfe_u32', s(4), s(2), (1 << 16) | 1))
    E(shl(s(4), s(4), 2)); E(salu('s_or_b32', s(3), s(3), s(4))); E(shl(s(3), s(3), 2))
    E(salu('s_bitcmp1_b32', None, s(2), 2))
    E(smov(s(4), lo)); E(csel(s(4), hi, s(4)))
    E(shr(s(4), s(4), s(3))); E(salu('s_and_b32', sROLE, s(4), 15))
    E(raw(f"s_getpc_b64 {sPC}", wr=[sPC])); E(label("L_pc"))
    E(smov(s(4), "L_roleA-L_pc")); E(smov(s(5), "L_roleA_end-L_pc-4"))
    E(salu('s_cmp_ge_u32', None, sROLE, NA)); E(csel(s(4), "L_roleM-L_pc", s(4))); E(csel(s(5), "L_roleM_end-L_pc-4", s(5)))
    E(salu('s_cmp_ge_u32', None, sROLE, NA + NM)); E(csel(s(4), "L_roleF-L_pc", s(4))); E(csel(s(5), "L_roleF_end-L_pc-4", s(5)))
    n0 = CFG.get('code0', 16); NL = CFG.get('codelines', 24)
    if n0:
        E(mul(s(3), sWAVE, n0 * 128)); E(add(s(3), s(3), s(4)))
        E(valu('v_min_u32', v(2), n0 - 1, v(0))); E(valu('v_lshlrev_b32', v(2), 7, v(2))); E(valu('v_add_u32', v(2), s(3), v(2)))
        E(I(f"global_load_dword {vDUM}, v2, {sPC}", 'vload', wr=vDUM.regs(), rd=vr(2) + sPC.regs(), tag='pf'))
    E(salu('s_and_b32', s(3), sRB, 7)); E(shl(s(3), s(3), 2)); E(add(s(3), s(3), sWAVE))
    E(mul(s(3), s(3), NL * 128)); E(add(s(3), s(3), s(4)))
    E(valu('v_min_u32', v(2), NL - 1, v(0))); E(valu('v_lshlrev_b32', v(2), 7, v(2))); E(valu('v_add_u32', v(2), s(3), v(2)))
    E(valu('v_min_u32', v(3), s(5), v(2)))
    E(I(f"global_load_dword {vDUM}, v3, {sPC}", 'vload', wr=vDUM.regs(), rd=vr(3) + sPC.regs(), tag='pf'))
def common_prologue3(p):
    E = p.emit
    E(raw("s_load_dwordx2 s[48:49], s[0:1], 32", wr=[s(48, 2)]))
    E(raw("s_load_dwordx8 s[52:59], s[0:1], 48", wr=[s(52, 8)]))
    E(raw("s_load_dwordx2 s[50:51], s[0:1], 80", wr=[s(50, 2)]))
    srd(p, sK, 42, 8388608); srd(p, sV, 44, 8388608); srd(p, sWQ, 46, 4718592)
    E(mul(sW8704, sWAVE, 8 * PP)); E(mul(sWC, sWAVE, PP)); E(add(sWC, sWC, 32 * PP))
    E(shl(sW8192, sWAVE, 13)); E(shl(sWCH, sWAVE, 10)); E(add(sWCH, sWCH, 32768))
    E(mul(sW2176, sWAVE, 2 * PP)); E(mul(sW4352, sWAVE, 4 * PP)); E(add(sWA2, sW2176, 16 * PP))
    E(raw("s_waitcnt lgkmcnt(0)"))
    srd(p, sWO, 48, 4718592)
    srd(p, sW1, 52, 5308416); srd(p, sW2, 54, 5308416); srd(p, sWS, 50, 0x10000000 if (CFG['stamps'] or CFG['fused']) else WSP_BYTES)
    srd(p, sOUT, 56, 2359296); srd(p, sDBG, 58, 256)

def common_prologue_old():
    p = Prog(); E = p.emit
    E(salu('s_cmp_ge_u32', None, s(2), 256))
    E(raw("s_cbranch_scc0 L_go")); E(raw("s_endpgm")); E(label("L_go"))
    E(raw("s_load_dwordx8 s[40:47], s[0:1], 0", wr=[s(40, 8)]))
    E(raw("s_load_dwordx2 s[48:49], s[0:1], 32", wr=[s(48, 2)]))
    E(raw("s_load_dwordx8 s[52:59], s[0:1], 48", wr=[s(52, 8)]))
    E(raw("s_load_dwordx2 s[50:51], s[0:1], 80", wr=[s(50, 2)]))
    if CFG['stamps']:
        E(raw(f"s_memtime {sT0}", wr=[sT0])); E(raw("s_memrealtime s[96:97]", wr=[s(96, 2)]))
    tab = ROLE_TAB
    if CFG.get('map', 4) == 8:
        t8 = [0, 1, 2, 3, 4, 10, 11, 12, 5, 6, 7, 8, 9, 13, 14, 15]
        lo = sum(t8[i] << (4 * i) for i in range(8)); hi = sum(t8[8 + i] << (4 * i) for i in range(8))
        E(salu('s_bfe_u32', s(3), s(2), (3 << 16) | 3)); E(shl(s(3), s(3), 2))
        E(salu('s_bitcmp1_b32', None, s(2), 2)); E(smov(s(4), lo)); E(csel(s(4), hi, s(4)))
        E(shr(s(4), s(4), s(3))); E(salu('s_and_b32', sROLE, s(4), 15))
        E(salu('s_and_b32', s(3), s(2), 1)); E(shl(s(3), s(3), 3)); E(salu('s_and_b32', s(4), s(2), 2)); E(shl(s(4), s(4), 1))
        E(shr(sRB, s(2), 6)); E(salu('s_or_b32', sRB, sRB, s(3))); E(salu('s_or_b32', sRB, sRB, s(4)))
    elif CFG.get('map', 4) == 2:
        t2 = [0, 1, 2, 3, 4, 11, 5, 12, 6, 13, 7, 14, 8, 15, 9, 10]
        lo = sum(t2[i] << (4 * i) for i in range(8)); hi = sum(t2[8 + i] << (4 * i) for i in range(8))
        E(salu('s_bfe_u32', s(3), s(2), (1 << 16) | 3)); E(salu('s_and_b32', s(4), s(2), 3)); E(shl(s(4), s(4), 1)); E(salu('s_or_b32', s(3), s(3), s(4))); E(shl(s(3), s(3), 2))
        E(salu('s_bitcmp1_b32', None, s(2), 2)); E(smov(s(4), lo)); E(csel(s(4), hi, s(4)))
        E(shr(s(4), s(4), s(3))); E(salu('s_and_b32', sROLE, s(4), 15)); E(shr(sRB, s(2), 4))
    else:
        lo = sum(tab[i] << (4 * i) for i in range(8)); hi = sum(tab[8 + i] << (4 * i) for i in range(8))
        E(salu('s_bfe_u32', s(3), s(2), (2 << 16) | 3)); E(salu('s_bfe_u32', s(4), s(2), (1 << 16) | 1))
        E(shl(s(4), s(4), 2)); E(salu('s_or_b32', s(3), s(3), s(4))); E(shl(s(3), s(3), 2))
        E(salu('s_bitcmp1_b32', None, s(2), 2))
        E(smov(s(4), lo)); E(csel(s(4), hi, s(4)))
        E(shr(s(4), s(4), s(3))); E(salu('s_and_b32', sROLE, s(4), 15))
        E(salu('s_and_b32', s(3), s(2), 1)); E(shl(s(3), s(3), 3))
        E(shr(sRB, s(2), 5)); E(salu('s_or_b32', sRB, sRB, s(3)))
    E(valu('v_lshrrev_b32', v(1), 6, v(0)))
    E(valu('v_readfirstlane_b32', sWAVE, v(1)))
    E(valu('v_and_b32', v(0), 63, v(0)))
    E(valu('v_lshrrev_b32', vROWN, 3, v(0)))
    E(valu('v_and_b32', v(20), 7, v(0))); E(valu('v_lshrrev_b32', v(21), 4, v(0)))
    E(valu('v_xor_b32', v(22), v(20), v(21))); E(valu('v_xor_b32', v(23), 4, v(22)))
    E(smov(s(3), 1152)); E(valu('v_mul_u32_u24', v(24), s(3), vROWN))
    E(valu('v_lshl_add_u32', v(16), v(22), 4, v(24))); E(valu('v_lshl_add_u32', v(17), v(23), 4, v(24)))
    E(valu('v_add_u32', v(17), 8 * 1152 - 1024, v(17)))
    E(valu('v_add_u32', v(18), 2 * (8 * 1152 - 1024), v(16))); E(valu('v_add_u32', v(19), 2 * (8 * 1152 - 1024), v(17)))
    E(mul(s(6), sWAVE, XW))
    E(shl(s(7), sRB, 2)); E(add(s(7), s(7), sWAVE)); E(mul(s(7), s(7), 32 * 1152))
    E(raw(f"s_getpc_b64 {sPC}", wr=[sPC])); E(label("L_pc"))
    E(smov(s(4), "L_roleA-L_pc")); E(smov(s(5), "L_roleA_end-L_pc-4"))
    E(salu('s_cmp_ge_u32', None, sROLE, NA)); E(csel(s(4), "L_roleM-L_pc", s(4))); E(csel(s(5), "L_roleM_end-L_pc-4", s(5)))
    E(salu('s_cmp_ge_u32', None, sROLE, NA + NM)); E(csel(s(4), "L_roleF-L_pc", s(4))); E(csel(s(5), "L_roleF_end-L_pc-4", s(5)))
    def code_pf():
        NL = CFG.get('codelines', 24)
        E(salu('s_and_b32', s(3), sRB, 7)); E(shl(s(3), s(3), 2)); E(add(s(3), s(3), sWAVE))
        E(mul(s(3), s(3), NL * 128)); E(add(s(3), s(3), s(4)))
        E(valu('v_min_u32', v(2), NL - 1, v(0))); E(valu('v_lshlrev_b32', v(2), 7, v(2))); E(valu('v_add_u32', v(2), s(3), v(2)))
        E(valu('v_min_u32', v(3), s(5), v(2)))
        E(I(f"global_load_dword {vDUM}, v3, {sPC}", 'vload', wr=vDUM.regs(), rd=vr(3) + sPC.regs(), tag='pf'))
    if CFG.get('codepf', 3) >= 3:
        n0 = CFG.get('code0', 16)
        if n0:
            E(mul(s(3), sWAVE, n0 * 128)); E(add(s(3), s(3), s(4)))
            E(valu('v_min_u32', v(2), n0 - 1, v(0))); E(valu('v_lshlrev_b32', v(2), 7, v(2))); E(valu('v_add_u32', v(2), s(3), v(2)))
            E(I(f"global_load_dword {vDUM}, v2, {sPC}", 'vload', wr=vDUM.regs(), rd=vr(2) + sPC.regs(), tag='pf'))
        code_pf()
    E(raw("s_waitcnt lgkmcnt(0)"))
    srd(p, sX, 40, 2359296)
    nx0 = CFG.get('tx', 2) if CFG.get('touch') else 0
    for j in range(nx0): E(xdma(j))
    if CFG.get('touch'):
        E(salu('s_cmp_gt_u32', None, sROLE, 10))
        E(raw("s_cselect_b64 s[60:61], s[52:53], s[46:47]", 'salu', wr=[s(60, 2)], rd=[s(52, 2), s(46, 2)]))
        E(raw("s_cselect_b64 s[66:67], s[54:55], s[48:49]", 'salu', wr=[s(66, 2)], rd=[s(54, 2), s(48, 2)]))
        E(salu('s_cmp_eq_u32', None, sWAVE, 1)); E(raw("s_cselect_b64 s[60:61], s[66:67], s[60:61]", 'salu', wr=[s(60, 2)], rd=[s(66, 2), s(60, 2)]))
        E(salu('s_cmp_eq_u32', None, sWAVE, 2)); E(raw("s_cselect_b64 s[60:61], s[42:43], s[60:61]", 'salu', wr=[s(60, 2)], rd=[s(42, 2), s(60, 2)]))
        E(salu('s_cmp_eq_u32', None, sWAVE, 3)); E(raw("s_cselect_b64 s[60:61], s[44:45], s[60:61]", 'salu', wr=[s(60, 2)], rd=[s(44, 2), s(60, 2)]))
        E(smov(s(3), 73728)); E(salu('s_cmp_ge_u32', None, sWAVE, 2)); E(csel(s(3), 131072, s(3)))
        E(valu('v_mul_u32_u24', v(2), s(3), v(0)))
        E(I(f"global_load_dword {vDUM}, v2, s[60:61]", 'vload', wr=vDUM.regs(), rd=vr(2) + sr(60, 2), tag='pf'))
    for j in range(nx0, CFG['xe']): E(xdma(j))
    if CFG.get('codepf', 3) == 1: code_pf()
    if CFG.get('codepf', 3) == 2:
        E(valu('v_mov_b32', v(46), v(3))); E(raw(f"s_mov_b64 s[100:101], {sPC}", 'salu', wr=[s(100, 2)], rd=[sPC]))
    srd(p, sK, 42, 8388608); srd(p, sV, 44, 8388608); srd(p, sWQ, 46, 4718592); srd(p, sWO, 48, 4718592)
    srd(p, sW1, 52, 5308416); srd(p, sW2, 54, 5308416); srd(p, sWS, 50, 0x10000000 if (CFG['stamps'] or CFG['fused']) else WSP_BYTES)
    srd(p, sOUT, 56, 2359296); srd(p, sDBG, 58, 256)
    E(mul(sW8704, sWAVE, 8 * PP)); E(mul(sWC, sWAVE, PP)); E(add(sWC, sWC, 32 * PP))
    E(shl(sW8192, sWAVE, 13)); E(shl(sWCH, sWAVE, 10)); E(add(sWCH, sWCH, 32768))
    E(mul(sW2176, sWAVE, 2 * PP)); E(mul(sW4352, sWAVE, 4 * PP)); E(add(sWA2, sW2176, 16 * PP))
    return p

def dispatch_text():
    return f""" s_cmp_ge_u32 {sROLE}, {NA + NM}
 s_cbranch_scc1 L_roleF
 s_cmp_ge_u32 {sROLE}, {NA}
 s_getpc_b64 s[94:95]
L_pc2:
 s_cbranch_scc1 L_jM
 s_add_u32 s94, s94, L_roleA-L_pc2
 s_addc_u32 s95, s95, 0
 s_setpc_b64 s[94:95]
L_jM:
 s_add_u32 s94, s94, L_roleM-L_pc2
 s_addc_u32 s95, s95, 0
 s_setpc_b64 s[94:95]
"""

def pfload(srd_, base):
    ld = bload('buffer_load_dword', vDUM, vPF, srd_, base); ld.tag = 'pf'; return ld
def pf_lin(srd_, base_s, start, nbytes, nl=64):
    def f():
        return [valu('v_lshrrev_b32', vPF2, 16, vTID), valu('v_and_b32', vPF, 63, vTID), valu('v_min_u32', vPF, nl - 1, vPF),
                valu('v_mad_u32_u24', vPF, vPF2, nl, vPF), valu('v_lshlrev_b32', vPF, 7, vPF), valu('v_add_u32', vPF, start, vPF),
                valu('v_min_u32', vPF, nbytes - 128, vPF), pfload(srd_, base_s)]
    return f
def pf_run(srd_, base_s, nbytes, nl):
    def f():
        return [valu('v_min_u32', vPF, nbytes - 128, vPFR), valu('v_add_u32', vPFR, 64 * nl * 128, vPFR), pfload(srd_, base_s)]
    f.nl = nl
    return f
def vPFW(kind): return {'F': v(8), 'A': v(7), 'M': v(36)}[kind]
def pf_row(kind, srd_, step=128):
    def f():
        ld = bload('buffer_load_dword', vDUM, vPFW(kind), srd_, sPW); ld.tag = 'pf'
        return [add(sPW, sPW, step), ld]
    return f
def pf_row_setup(kind, pitch, nl, base, lit):
    r = vPFW(kind)
    return [valu('v_bfe_u32', vPF2, vTID, 16, 5), valu('v_and_b32', r, 63, vTID), valu('v_min_u32', r, nl - 1, r),
            valu('v_mad_u32_u24', r, vPF2, nl, r), smov(sT2, pitch), valu('v_mul_u32_u24', r, sT2, r), add(sPW, base, lit)]
def pf_code(la, lb, nl):
    def f():
        L = f"L_cp{pf_code.k}"; pf_code.k += 1
        ld = I(f"global_load_dword {vDUM}, {vPF}, {sPC}", 'vload', wr=vDUM.regs(), rd=vPF.regs() + sPC.regs(), units=3, tag='pf')
        return [raw(f"s_getpc_b64 {sPC}", 'salu', wr=[sPC]), label(L),
                salu('s_add_u32', sPC[0], sPC[0], f"{la}-{L}"), salu('s_addc_u32', sPC[1], sPC[1], 0, scc_r=True),
                valu('v_bfe_u32', vPF2, vTID, 16, 5), valu('v_and_b32', vPF, 63, vTID), valu('v_min_u32', vPF, nl - 1, vPF),
                valu('v_mad_u32_u24', vPF, vPF2, nl, vPF), valu('v_lshlrev_b32', vPF, 7, vPF), valu('v_min_u32', vPF, f"{lb}-{la}-4", vPF), ld]
    return f
pf_code.k = 0
def pf_sched(R, k0, srd_, base_s, nbytes, nl):
    per = 64 * nl * 128; k = k0
    for st in range(0, nbytes, per):
        R.pf.setdefault(k, []).append(pf_lin(srd_, base_s, st, nbytes, nl)); k += 1
    return k

def role_prologue(R, vm_before):
    p = R.p; E = p.emit; kind = R.kind
    p.vm = list(vm_before)
    MS = CFG['shape'] == 'M'
    def PS(k):
        if CFG['stamps'] == 1: R.stamp(k)
    PS(56)
    lane = v(0)
    E(shl(sT2, sRB, 2)); E(add(sT2, sT2, sWAVE)); E(shl(sT2, sT2, 16)); E(valu('v_or_b32', vTID, sT2, lane))
    if kind in 'AM' and CFG.get('pair'):
        sHP_, sHS_ = s(86), s(85)
        if CFG.get('l844'): E(shl(sHP_, sROLE, 1)); E(add(sHP_, sHP_, 8))
        else: E(mul(sHP_, sROLE, 3))
        if kind == 'A':
            sHP_, sHS_ = sFA, sFC
            E(mul(sHS_, sROLE, 3)); E(salu('s_and_b32', s(4), sROLE, 1)); E(add(sHP_, sHS_, s(4)))
            E(shl(s(4), s(4), 1)); E(add(sHS_, sHS_, 2)); E(salu('s_sub_u32', sHS_, sHS_, s(4)))
            E(salu('s_sub_u32', sJQ, sHS_, sHP_)); E(shl(sJQ, sJQ, 8)); E(salu('s_sub_u32', sJQ, sJQ, 3 * 128))
        E(shl(sQ0, sHP_, 8))
        E(mul(sQA, sWAVE, 64 * 8192)); E(add(sQA, sQA, sQ0))
        E(shl(sQC, sWAVE, 16)); E(add(sQC, sQC, sQ0)); E(add(sQC, sQC, 256 * 8192))
        E(shr(s(3), sWAVE, 1)); E(shl(s(3), s(3), 13)); E(salu('s_and_b32', s(4), sWAVE, 1)); E(shl(s(4), s(4), 11)); E(add(s(3), s(3), s(4)))
        E(salu('s_sub_u32', s(3), s(3), 64)); E(shl(s(4), sWAVE, 11))
        for e, (h_, pfr) in enumerate([(sHP_, sPFa), (sHS_, sPFb)][:2 if kind == 'A' else 1]):
            E(shr(pfr, h_, 1)); E(shl(pfr, pfr, 19)); E(add(pfr, pfr, 1536 * 256))
            E(add(sKb[e], pfr, s(4))); E(add(sVb[e], pfr, s(3)))
        E(mul(sPFc, sROLE, 384 * 1152) if kind == 'A' else mul(sPFc, sHP_, 128 * 1152))
        if kind == 'A':
            E(mul(sHP_, sHP_, 128 * 1152)); E(mul(sHS_, sHS_, 128 * 1152))
            E(mul(sOA, sWAVE, 32 * 1152)); E(add(sOA1, sOA, sHS_)); E(add(sOA, sOA, sHP_))
            E(salu('s_sub_u32', sOA1, sOA1, 64 * 1152)); E(add(sT3, sOA, 192 * 1152)); E(salu('s_cmp_lt_u32', None, sWAVE, 2)); E(csel(sOA1, sT3, sOA1))
            E(shr(s(3), sWAVE, 1)); E(shl(s(3), s(3), 2)); E(salu('s_and_b32', s(4), sWAVE, 1)); E(add(s(3), s(3), s(4)))
            E(mul(sOB, s(3), 8 * 1152)); E(add(sOB1, sOB, sHS_)); E(add(sOB1, sOB1, 64 * 1152)); E(add(sOB, sOB, sHP_)); E(add(sOB, sOB, 128 * 1152))
        else:
            E(mul(sOA, sWAVE, 64 * 1152)); E(add(sOA, sOA, sPFc))
    elif kind in 'AM':
        E(mul(sT3, sROLE, 3 * 256))
        E(mul(sQA, sWAVE, 64 * 8192)); E(add(sQA, sQA, sT3))
        E(shl(sQC, sWAVE, 16)); E(add(sQC, sQC, sT3)); E(add(sQC, sQC, 256 * 8192))
        E(shr(s(3), sWAVE, 1)); E(shl(s(3), s(3), 13)); E(salu('s_and_b32', s(4), sWAVE, 1)); E(shl(s(4), s(4), 11)); E(add(s(3), s(3), s(4)))
        E(salu('s_sub_u32', s(3), s(3), 64)); E(shl(s(4), sWAVE, 11))
        if MS: E(shl(s(3), sWAVE, 12))
        for e in range(3 if kind == 'A' else 2):
            E(mul(sT3, sROLE, 3)); E(add(sT3, sT3, e)); E(shr(sT3, sT3, 1)); E(shl(sT3, sT3, 19)); E(add(sT3, sT3, 1536 * 256))
            if e == 0: E(smov(sPFa, sT3))
            if e == (2 if kind == 'A' else 1): E(smov(sPFb, sT3))
            E(add(sKb[e], sT3, s(4))); E(add(sVb[e], sT3, s(3)))
        E(mul(sPFc, sROLE, 384 * 1152))
        if kind == 'A':
            E(mul(sOA, sWAVE, 32 * 1152)); E(add(sOA, sOA, sPFc))
            E(shr(s(3), sWAVE, 1)); E(shl(s(3), s(3), 2)); E(salu('s_and_b32', s(4), sWAVE, 1)); E(add(s(3), s(3), s(4)))
            E(mul(sOB, s(3), 8 * 1152)); E(add(sOB, sOB, sPFc)); E(add(sOB, sOB, 128 * 1152))
        else:
            E(mul(sOA, sWAVE, 64 * 1152)); E(add(sOA, sOA, sPFc))
    if kind in 'FM':
        if kind == 'F':
            E(salu('s_sub_u32', s(3), sROLE, NA + NM)); E(mul(sPF1, s(3), 13 * 128)); E(shl(sPF1h, s(3), 6)); E(add(sPF1h, sPF1h, 69 * 128))
        elif CFG.get('l844'):
            E(mul(sPF1, sROLE, 5 * 128)); E(add(sPF1, sPF1, (52 - 40) * 128)); E(smov(sPF1h, sPF1))
        else:
            E(smov(sPF1, f_fullcol(5) * 2)); E(smov(sPF1h, f_halfcol(5) * 2))
        E(mul(sHA, sWAVE, 64 * 9216)); E(add(sHA, sHA, sPF1))
        E(mul(sHC, sWAVE, 8 * 9216)); E(add(sHC, sHC, sPF1)); E(add(sHC, sHC, 256 * 9216))
        E(mul(sHH, sWAVE, 128 * 9216)); E(add(sHH, sHH, sPF1h))
        E(mul(sHHC, sWAVE, 16 * 9216)); E(add(sHHC, sHHC, sPF1h)); E(add(sHHC, sHHC, 512 * 9216))
        E(mul(sPF2, sPF1, 576)); E(mul(sPF2h, sPF1h, 576))
        E(mul(sFA, sWAVE, 64 * 1152)); E(add(sFA, sFA, sPF2))
        if MS:
            E(salu('s_and_b32', s(3), sWAVE, 1)); E(shl(s(3), s(3), 1)); E(shr(s(4), sWAVE, 1)); E(add(s(3), s(3), s(4))); E(mul(sFC, s(3), 8 * 1152))
        else: E(mul(sFC, sWAVE, 4 * 1152))
        E(add(sFS, sFC, sPF2h)); E(add(sFC, sFC, sPF2)); E(add(sFC, sFC, 256 * 1152))
    if CFG['pf'] >= 3:
        if kind in 'AM': E(mul(sT3, sROLE, 3 * 256) if not CFG.get('pair') else smov(sT3, sQ0))
        E(pf_row_setup(kind, 8192 if kind in 'AM' else 9216, 18, sT3 if kind in 'AM' else sPF1, 0))
        f_ = pf_row(kind, sWQ if kind in 'AM' else sW1)
        early_pf = [f_()[1]] + f_() + f_()
    E(add(sT3, sROLE, NS - NA if kind == 'F' else 0))
    E(mul(sSt, sT3, PSTR())); E(shl(sT3, sRB, 2)); E(add(sT3, sT3, sWAVE)); E(mul(sT3, sT3, PWAVE)); E(add(sSt, sSt, sT3))
    if kind == 'M': E(add(sSt2, sSt, (NS - NA) * PSTR()))
    if CFG['fused']:
        E(shl(sT2, sRB, 14)); E(add(sT2, sT2, CTRL))
        E(add(sT3, sROLE, NS - NA if kind == 'F' else 0)); E(shl(sT3, sT3, 2)); E(add(sT3, sT3, sT2))
        E(salu('s_cmp_eq_u32', None, sWAVE, 0)); E(csel(sT3, sT3, OOB)); E(csel(sT2, sT2, OOB))
        E(valu('v_and_b32', v(24), 15, lane)); E(valu('v_lshlrev_b32', v(25), 7, v(24))); E(valu('v_add_u32', v(25), 128, v(25)))
        E(raw("v_cmp_eq_u32 vcc, 0, v24", 'valu', wr=['vcc'], rd=[v(24)])); E(valu('v_cndmask_b32', v(25), v(25), 0, 'vcc') if False else raw("v_cndmask_b32 v25, v25, v24, vcc", 'valu', wr=[v(25)], rd=[v(25), v(24), 'vcc']))
        E(valu('v_lshrrev_b32', v(26), 4, lane)); E(valu('v_lshl_add_u32', v(25), v(26), 2 + (NS - NA).bit_length() - 1, v(25))); E(valu('v_add_u32', v(25), sT3, v(25)))
        E(raw(f"s_mov_b64 vcc, {hex(((1 << (NA + 1)) - 1) * (0x10001 if kind == 'M' else 1))}", 'salu', wr=['vcc'])); E(valu('v_mov_b32', vCT, OOB)); E(nop(1))
        E(raw(f"v_cndmask_b32 {vCT}, {vCT}, v25, vcc", 'valu', wr=[vCT], rd=[vCT, v(25), 'vcc']))
        E(valu('v_mov_b32', v(24), vCT))
        assert not (CFG.get('l844') or CFG.get('four') or CFG.get('nof'))
        E(add(sT2, sT2, 4 * (NPART + 1)))
        def flag(lane_, item):
            E(raw(f"s_lshl2_add_u32 {sT3}, {item}, {sT2}", 'salu', wr=[sT3], rd=[item, sT2]))
            E(raw(f"v_writelane_b32 v24, {sT3}, {lane_}", 'valu', wr=[v(24)], rd=[sT3, v(24)]))
        if kind == 'A':
            tab3 = [28, 29, 22, 30, 31, 21, 32, 33, 34, 35]
            flag(32, sROLE); E(add(s(4), sROLE, 10)); flag(33, s(4))
            E(smov(s(98), sum((tab3[i] - 20) << (4 * i) for i in range(8)))); E(smov(s(99), (tab3[8] - 20) | ((tab3[9] - 20) << 4)))
            E(shl(s(4), sROLE, 2)); E(salu('s_lshr_b64', s(98, 2), s(98, 2), s(4))); E(salu('s_and_b32', s(4), s(98), 15)); E(add(s(4), s(4), 20)); flag(34, s(4))
        else:
            E(smov(s(4), 20) if kind == 'M' else add(s(4), sROLE, 12)); flag(32, s(4))
        E(valu('v_mov_b32', v(25), 0))
        z = bstore('buffer_store_dword', v(25), v(24), sWS, 0, flags='sc1'); z.tag = 'zero'; E(z)
        E(shl(sT2, sRB, 4)); E(salu('s_cmp_eq_u32', None, sWAVE, 0)); E(csel(sT2, sT2, 256))
        E(valu('v_mov_b32', v(23), 256)); E(raw(f"v_writelane_b32 v23, {sT2}, 0", 'valu', wr=[v(23)], rd=[sT2, v(23)]))
    T_ = [v(24), v(25), v(26), v(27), v(28), v(29)]
    q, r, c4, rb1 = T_[0], T_[1], T_[2], T_[3]
    E(valu('v_lshrrev_b32', q, 4, lane)); E(valu('v_bfe_u32', r, lane, 2, 2)); E(valu('v_and_b32', c4, 3, lane)); E(valu('v_bfe_u32', rb1, lane, 3, 1))
    E(valu('v_and_b32', T_[4], 7, lane)); E(valu('v_bfe_u32', T_[5], lane, 4, 1)); E(valu('v_lshlrev_b32', T_[5], 1, T_[5]))
    E(valu('v_xor_b32', T_[4], T_[4], T_[5])); E(valu('v_lshlrev_b32', vSWZ, 4, T_[4]))
    E(valu('v_lshrrev_b32', T_[4], 5, lane)); E(valu('v_and_b32', T_[5], 3, vROWN)); E(valu('v_lshl_add_u32', vROWP, T_[4], 4, T_[5]))
    E(smov(sT2, PP)); E(valu('v_mul_u32_u24', T_[4], sT2, q)); E(valu('v_lshl_add_u32', T_[4], r, 7, T_[4]))
    E(valu('v_lshl_add_u32', T_[4], c4, 3, T_[4])); E(valu('v_lshl_add_u32', vRW[0][0], rb1, 5, T_[4]))
    E(valu('v_mov_b32', vDP, vRW[0][0]))
    if MS:
        E(valu('v_and_b32', T_[4], 7, lane)); E(valu('v_bfe_u32', T_[5], lane, 4, 1)); E(valu('v_lshlrev_b32', T_[5], 2, T_[5]))
        E(valu('v_xor_b32', T_[4], T_[4], T_[5])); E(valu('v_lshlrev_b32', vSWZM, 4, T_[4]))
        E(valu('v_bfe_u32', q, lane, 4, 1)); E(valu('v_lshlrev_b32', q, 5, q))
        E(valu('v_and_b32', T_[4], 1, lane)); E(valu('v_lshl_add_u32', q, T_[4], 4, q))
        E(valu('v_bfe_u32', T_[4], lane, 1, 1)); E(valu('v_lshl_add_u32', q, T_[4], 3, q))
        E(valu('v_lshrrev_b32', T_[5], 5, lane))
        E(smov(sT2, PP)); E(valu('v_mad_u32_u24', T_[4], T_[5], sT2, q)); E(valu('v_lshl_add_u32', T_[4], r, 7, T_[4]))
        E(valu('v_lshl_add_u32', vRW[0][0], rb1, 6, T_[4])); E(valu('v_xor_b32', rb1, 1, rb1)); E(valu('v_lshl_add_u32', vRW[0][1], rb1, 6, T_[4]))
        if kind in 'FM':
            E(valu('v_lshl_add_u32', vRH[0], T_[5], 9, q)); E(valu('v_lshl_add_u32', vRH[0], r, 6, vRH[0]))
            E(valu('v_lshlrev_b32', T_[4], 4, c4)); E(valu('v_lshrrev_b32', T_[5], 2, lane)); E(smov(sT2, 9216))
            E(valu('v_mad_u32_u24', vOFFH, T_[5], sT2, T_[4]))
        E(valu('v_lshrrev_b32', q, 4, lane))
    else:
        E(valu('v_xor_b32', vRW[0][1], 32, vRW[0][0]))
    for b in (1, 2):
        for T in range(2): E(valu('v_add_u32', vRW[b][T], 65536 * b, vRW[0][T]))
    if kind in 'FM' and not MS:
        E(valu('v_lshlrev_b32', T_[4], 9, q)); E(valu('v_lshl_add_u32', T_[4], r, 6, T_[4])); E(valu('v_lshl_add_u32', T_[4], c4, 3, T_[4]))
        E(valu('v_and_b32', T_[5], 1, q)); E(valu('v_lshl_add_u32', vRH[0], T_[5], 5, T_[4])); E(valu('v_xor_b32', vRH[1], 32, vRH[0]))
        E(valu('v_lshrrev_b32', T_[4], 5, lane)); E(valu('v_lshlrev_b32', T_[4], 1, T_[4])); E(valu('v_xor_b32', T_[4], T_[4], c4))
        E(valu('v_lshlrev_b32', T_[4], 4, T_[4])); E(valu('v_lshrrev_b32', T_[5], 2, lane)); E(smov(sT2, 9216))
        E(valu('v_mad_u32_u24', vOFFH, T_[5], sT2, T_[4]))
    if kind in 'AM':
        E(valu('v_and_b32', T_[4], 15, lane)); E(valu('v_xor_b32', T_[4], T_[4], q)); E(valu('v_lshlrev_b32', T_[4], 4, T_[4]))
        E(valu('v_lshl_add_u32', vOFFK, q, 8, T_[4]))
    E(set_offw(8192 if kind in 'AM' else 9216, 'M' if MS else 'S'))
    if MS:
        XA = [v(20), v(21), v(22), v(39)]
        E(valu('v_and_b32', T_[4], 31, lane)); E(valu('v_bfe_u32', T_[5], lane, 1, 3)); E(valu('v_lshrrev_b32', q, 5, lane)); E(valu('v_xor_b32', T_[5], T_[5], q))
        E(valu('v_lshlrev_b32', T_[4], 7, T_[4])); E(valu('v_add_u32', T_[4], s(6), T_[4]))
        E(valu('v_lshl_add_u32', XA[0], T_[5], 4, T_[4]))
        for tt in range(1, 4): E(valu('v_xor_b32', XA[tt], 32 * tt, XA[0]))
    else:
        E(valu('v_and_b32', T_[4], 15, lane)); E(valu('v_bfe_u32', T_[5], lane, 1, 3)); E(valu('v_xor_b32', T_[5], T_[5], q))
        E(valu('v_lshlrev_b32', T_[4], 7, T_[4])); E(valu('v_add_u32', T_[4], s(6), T_[4]))
        E(valu('v_lshl_add_u32', v(20), T_[5], 4, T_[4])); E(valu('v_xor_b32', v(21), 64, v(20)))
        if kind in 'AM':
            E(smov(sT2, PP)); E(valu('v_mul_u32_u24', v(22), sT2, r)); E(valu('v_lshl_add_u32', v(22), c4, 8, v(22)))
            E(valu('v_xor_b32', T_[4], q, c4)); E(valu('v_lshl_add_u32', v(22), T_[4], 4, v(22)))
    E(valu('v_lshlrev_b32', vLANE16, 4, lane))
    if CFG['stamps'] == 2: E(valu('v_mov_b32', vSTAMP, 0))
    if CFG['fused'] and CFG.get('rep') and kind in 'FM':
        E(rep_addr(kind, v(24), v(25))); E(valu('v_mov_b32', v(25), 0))
        z = bstore('buffer_store_dword', v(25), v(24), sWS, 0, flags='sc1'); z.tag = 'zero'; E(z)
    SA = 28
    for i in range(8): E(valu('v_mov_b32', v(SA + i), 0))
    E(smov(sT2, 0x3f803f80))
    def stats(j):
        for tt in range(2):
            for g in range(2):
                for qd in range(4):
                    x = X(2 * j + tt, g)[qd]
                    E(valu('v_dot2c_f32_bf16', v(SA + 2 * g + (qd & 1)), sT2, x, rmw=True))
                    E(valu('v_dot2c_f32_bf16', v(SA + 4 + 2 * g + (qd & 1)), x, x, rmw=True))
    PS(57)
    for j in range(9):
        E(waitvm(p.vm_wait_for(lambda t: t == ('x', j))))
        if j == 0: PS(58)
        if MS:
            for tt in range(4): E(ds_b128(XM(4 * j + tt), XA[tt], j * 4096))
        else:
            for tt in range(2):
                for g in range(2): E(ds_b128(X(2 * j + tt, g), v(20 + tt), j * 4096 + g * 2048))
        if j + CFG['xe'] < 9: E(xdma(j + CFG['xe']))
        if CFG['pf'] >= 3 and CFG.get('epf', 1) == 1 and j == max(8 - CFG['xe'], 0): E(early_pf)
        if j >= 1:
            E(waitlg(4)); stats(j - 1)
    E(waitlg(0)); PS(59); E(barrier())
    if CFG.get('codepf', 3) == 2: E(I(f"global_load_dword {vDUM}, v46, s[100:101]", 'vload', wr=vDUM.regs(), rd=vr(46) + sr(100, 2), tag='pf'))
    if CFG['pf'] >= 3 and CFG.get('epf', 1) == 2: E(early_pf)
    pend = []
    for k in range(3):
        st = R.stages[k]
        if st.pre_dma: pend.append(st.pre_dma())
        pend += st.dma(k, False)
    d0 = CFG.get('d0', 9)
    for it in pend[:d0]: E(it)
    pend = pend[d0:]
    PS(60)
    stats(8)
    acc4 = [v(28), v(30), v(32), v(34)]
    for x in acc4: E(valu('v_add_f32', x, x, v(x.n + 1)))
    if MS:
        for b_ in (0, 2):
            E(valu('v_add_f32', acc4[b_], acc4[b_], acc4[b_ + 1]))
        for b_ in (0, 2): E(valu('v_mov_b32', acc4[b_ + 1], acc4[b_]))
    for op in (('v_permlane32_swap_b32',) if MS else ('v_permlane16_swap_b32', 'v_permlane32_swap_b32')):
        for x in acc4: E(valu('v_mov_b32', v(x.n + 1), x))
        for x in acc4: E(valu(op, x, v(x.n + 1), rmw=True, extra_wr=[v(x.n + 1)]))
        for x in acc4: E(valu('v_add_f32', x, x, v(x.n + 1)))
    for x in acc4: E(valu('v_mul_f32', x, f2u(1.0 / 576), x))
    for g in range(2): E(valu('v_fma_f32', acc4[2 + g], '-' + str(acc4[g]), acc4[g], acc4[2 + g]))
    for g in range(2): E(valu('v_max_f32', acc4[2 + g], 0, acc4[2 + g]))
    for g in range(2): E(valu('v_add_f32', acc4[2 + g], f2u(1e-5), acc4[2 + g]))
    for g in range(2): E(valu('v_rsq_f32', acc4[2 + g], acc4[2 + g]))
    for g in range(2): E(valu('v_mul_f32', acc4[2 + g], f2u(-LOG2E), acc4[2 + g]))
    for g in range(2): E(valu('v_mov_b32', v(20 + g), acc4[g]))
    for g in range(2): E(valu('v_mul_f32', acc4[g], '-' + str(acc4[g]), acc4[2 + g], extra_rd=[acc4[g]]))
    E(smov(sT2, 0xffff0000))
    if CFG.get('dotn'):
        cl = [v(29), v(31)]; ch = [v(33), v(35)]
        for g in range(2): E(valu('v_cvt_pk_bf16_f32', cl[g], acc4[2 + g], 0))
        for g in range(2): E(valu('v_lshlrev_b32', ch[g], 16, cl[g]))
        for g in range(2): E(valu('v_mul_f32', acc4[g], '-' + str(v(20 + g)), ch[g], extra_rd=[v(20 + g)]))
    PS(61)
    n = 0
    for t in range(18):
        for g in range(2):
            tps = [v(24, 2), v(26, 2), v(16, 2), v(18, 2)]
            x = X(t, g)
            if CFG.get('dotn'):
                for qd in range(4):
                    E(valu('v_dot2_f32_bf16', tps[qd][0], x[qd], cl[g], acc4[g])); E(valu('v_dot2_f32_bf16', tps[qd][1], x[qd], ch[g], acc4[g]))
            else:
                for qd in range(4):
                    E(valu('v_lshlrev_b32', tps[qd][0], 16, x[qd])); E(valu('v_and_b32', tps[qd][1], sT2, x[qd]))
                for qd in range(4): E(valu('v_pk_fma_f32', tps[qd], tps[qd], v(acc4[2 + g].n, 2), v(acc4[g].n, 2), mods='op_sel_hi:[1,0,0]'))
            for qd in range(4): E(valu('v_cvt_pk_bf16_f32', x[qd], tps[qd][0], tps[qd][1]))
            if pend and n % CFG.get('dn', 2) == 0: E(pend.pop(0))
            n += 1
    for it in pend: E(it)
    if CFG['fused']:
        E(valu('v_mov_b32', v(24), 1)); E(waitvm(p.vm_wait_for(lambda t: t == 'zero')))
        E(I(f"buffer_atomic_add v24, v23, {sDBG}, 0 offen sc1", 'vstore', rd=vr(23, 2) + sDBG.regs(), units=3, tag='init'))
    for _ in range(CFG.get('idle', 0)): E(raw("s_sleep 16"))
    PS(62)
    if kind in 'AM' and MS:
        ln, m_, key, t_ = v(16), v(17), v(18), v(19)
        E([valu('v_lshrrev_b32', ln, 4, vLANE16), valu('v_and_b32', key, 19, ln),
           valu('v_bfe_u32', t_, ln, 2, 1), valu('v_lshl_add_u32', key, t_, 3, key),
           valu('v_bfe_u32', t_, ln, 3, 1), valu('v_lshl_add_u32', key, t_, 2, key),
           valu('v_lshrrev_b32', m_, 2, key), smov(sT2, PP), valu('v_mul_u32_u24', m_, sT2, m_),
           valu('v_and_b32', key, 3, key), valu('v_lshl_add_u32', m_, key, 8, m_),
           valu('v_lshrrev_b32', t_, 5, ln), valu('v_xor_b32', t_, t_, key),
           valu('v_lshl_add_u32', vRKM[0], t_, 4, m_), valu('v_xor_b32', vRKM[1], 32, vRKM[0])])
    elif kind in 'AM':
        E(valu('v_mov_b32', vRK[0], v(22))); E(valu('v_add_u32', vRK[1], 65536, v(22))); E(valu('v_add_u32', vRK[2], 131072, v(22)))
    if CFG['stamps']: E(raw(f"v_writelane_b32 {vSTAMP}, s96, 55", 'valu', wr=[vSTAMP], rd=[s(96)])) if kind != 'A' else None
    if CFG['stamps']: E(smov(s(43), s(96)))
    nlr = {'F': 10, 'A': 11, 'M': 8}[kind]
    if kind != 'M': E([valu('v_lshrrev_b32', vPF2, 16, vTID), valu('v_and_b32', vPFR, 63, vTID), valu('v_min_u32', vPFR, nlr - 1, vPFR),
       valu('v_mad_u32_u24', vPFR, vPF2, nlr, vPFR), valu('v_lshlrev_b32', vPFR, 7, vPFR)])
    if CFG['stamps']: E(smov(s(97), 0))
    E(smov(sLN0, f2u(-1.0 / math.sqrt(128.0))))

def slow_check(R, heads, base2):
    def f():
        p = R.p; E = p.emit
        t = v(254); lo = v(255)
        E(valu('v_mov_b32', lo, f2u(2.0 ** -40))); E(smov(sT3, f2u(2.0 ** 40)))
        for (hd, Q, O) in heads:
            L = f"L_{R.kind}_slow{hd}"
            if CFG['shape'] == 'M':
                E(valu('v_med3_f32', t, Lsave[hd], sT3, lo))
                E(raw(f"v_cmp_neq_f32 vcc, {t}, {Lsave[hd]}", 'valu', wr=['vcc'], rd=[t, Lsave[hd]])); E(nop(4))
            else:
                E(valu('v_med3_f32', t, Lsave[2 * hd], sT3, lo))
                E(raw(f"v_cmp_neq_f32 s[98:99], {t}, {Lsave[2 * hd]}", 'valu', wr=[s(98, 2)], rd=[t, Lsave[2 * hd]]))
                E(valu('v_med3_f32', t, Lsave[2 * hd + 1], sT3, lo))
                E(raw(f"v_cmp_neq_f32 vcc, {t}, {Lsave[2 * hd + 1]}", 'valu', wr=['vcc'], rd=[t, Lsave[2 * hd + 1]])); E(nop(4))
                E(raw("s_or_b64 vcc, vcc, s[98:99]", 'salu', wr=['vcc'], rd=['vcc', s(98, 2)])); E(nop(1))
            if CFG.get('force_slow'): E(raw(f"s_mov_b64 vcc, -1", 'salu', wr=['vcc']))
            E(raw(f"s_cbranch_vccz {L}_ret"))
            E(raw(f"s_call_b64 {sRET}, {L}"))
            E(label(f"{L}_ret"))
            R.slow.append((slow_path if CFG['shape'] == 'M' else slow_pathS)(L, hd, Q, O, base2))
        E(nop(1))
    return f

def slow_path(L, hd, Q, Odst, b2):
    p = Prog(); E = p.emit
    O = v(48, 64); S = v(b2, 16); P = v(b2 + 16, 8); F = v(b2 + 24, 16)
    vK, vV, vM, vL, t0, t1 = [v(b2 + 40 + i) for i in range(6)]
    sB, sJ, sO = s(98), s(99), s(97)
    E(I(".p2align 2", 'label')); E(label(L))
    E(nop(7)); E(nop(7))
    E([valu('v_lshrrev_b32', t0, 4, vLANE16), valu('v_and_b32', vK, 19, t0), valu('v_bfe_u32', t1, t0, 2, 1), valu('v_lshl_add_u32', vK, t1, 3, vK),
       valu('v_bfe_u32', t1, t0, 3, 1), valu('v_lshl_add_u32', vK, t1, 2, vK), valu('v_lshrrev_b32', t1, 5, t0),
       valu('v_lshlrev_b32', vV, 1, vK), valu('v_lshl_add_u32', vV, t1, 11, vV),
       valu('v_lshlrev_b32', vK, 8, vK), valu('v_lshl_add_u32', vK, t1, 4, vK)])
    E([mul(sB, sROLE, 3), add(sB, sB, hd), shr(sB, sB, 1), shl(sB, sB, 19), add(sB, sB, 1536 * 256)])
    def qk():
        for half in range(2):
            for t in range(4): E(bload('buffer_load_dwordx4', F.sub(4 * t, 4), vK, sK, sO, (4 * half + t) * 32))
            E(waitvm(0))
            for t in range(4):
                tt = 4 * half + t
                E(mfma(S, F.sub(4 * t, 4), Q.sub(4 * tt, 4), 0 if tt == 0 else S))
            E(nop(7)); E(nop(7))
    E(valu('v_mov_b32', vM, 0xff800000)); E(smov(sJ, 0))
    E(label(L + "_a"))
    E(add(sO, sB, sJ)); qk()
    for i in range(0, 16, 2): E(valu('v_max3_f32', vM, vM, S[i], S[i + 1]))
    E(add(sJ, sJ, 8192)); E(salu('s_cmp_lt_u32', None, sJ, 16 * 8192)); E(raw(f"s_cbranch_scc1 {L}_a"))
    E(valu('v_mov_b32', t0, vM)); E(valu('v_permlane32_swap_b32', vM, t0, rmw=True, extra_wr=[t0])); E(valu('v_max_f32', vM, vM, t0))
    for i in range(64): E(valu('v_mov_b32', O[i], 0))
    E(valu('v_mov_b32', vL, 0)); E(smov(sJ, 0))
    E(label(L + "_b"))
    E(add(sO, sB, sJ)); qk()
    for i in range(16): E(valu('v_sub_f32', S[i], S[i], vM))
    for i in range(16): E(valu('v_exp_f32', S[i], S[i]))
    for i in range(16): E(valu('v_add_f32', vL, vL, S[i]))
    for q in range(8): E(valu('v_cvt_pk_bf16_f32', P[q], S[2 * q], S[2 * q + 1]))
    for u in range(2):
        for tp in range(2):
            for tq in range(2):
                for j in range(8):
                    E(bload('buffer_load_ushort', F[8 * (j & 1) + 4 * tq + j // 2], vV, sV, sO, j * 256 + (2 * tp + tq) * 64))
            E(waitvm(0))
            for i in range(8): E(valu('v_lshl_or_b32', F[i], F[8 + i], 16, F[i]))
            for tq in range(2):
                D_ = O.sub(16 * (2 * tp + tq), 16)
                E(mfma(D_, F.sub(4 * tq, 4), P.sub(4 * u, 4), D_))
            E(nop(7))
        if u == 0: E(add(sO, sO, 4096))
    E(add(sJ, sJ, 8192)); E(salu('s_cmp_lt_u32', None, sJ, 16 * 8192)); E(raw(f"s_cbranch_scc1 {L}_b"))
    E(nop(7)); E(nop(7))
    E(valu('v_mov_b32', t0, vL)); E(valu('v_permlane32_swap_b32', vL, t0, rmw=True, extra_wr=[t0])); E(valu('v_add_f32', vL, vL, t0))
    E(valu('v_rcp_f32', t0, vL))
    for tau in range(4):
        A_ = O.sub(16 * tau, 16)
        for e in range(16): E(valu('v_mul_f32', A_[e], A_[e], t0))
        for q in range(8): E(valu('v_cvt_pk_bf16_f32', A_[2 * q], A_[2 * q], A_[2 * q + 1]))
        for q in range(4): E(valu('v_permlane16_swap_b32', A_[2 * q], A_[2 * q + 8], rmw=True, extra_wr=[A_[2 * q + 8]]))
        for q in range(8): E(valu('v_accvgpr_write_b32', Odst[8 * tau + q], A_[2 * q]))
    E(nop(1)); E(raw(f"s_setpc_b64 {sRET}"))
    return p

def slow_pathS(L, hd, Q, Odst, b2):
    p = Prog(); E = p.emit
    ob = 48; kv = None
    if isinstance(b2, tuple): b2, ob = b2
    if isinstance(Odst, tuple):
        OFf, kv = Odst
        class _D:
            def __getitem__(s_, i): return OFf(i // 8)[i % 8]
        Odst = _D()
    O = v(ob, 64); S = v(b2, 16); P = v(b2 + 16, 8); F = v(b2 + 24, 16)
    vK, vV, t0, t1 = [v(b2 + 40 + i) for i in range(4)]
    vM = [v(b2 + 44), v(b2 + 45)]; vL = [v(b2 + 46), v(b2 + 47)]
    sB, sJ, sO = s(98), s(99), s(97)
    E(I(".p2align 2", 'label')); E(label(L))
    E(nop(7)); E(nop(7))
    E([valu('v_lshrrev_b32', t0, 4, vLANE16), valu('v_and_b32', t1, 15, t0), valu('v_lshrrev_b32', t0, 4, t0),
       valu('v_lshlrev_b32', vK, 8, t1), valu('v_lshl_add_u32', vK, t0, 4, vK),
       valu('v_lshlrev_b32', vV, 1, t1), valu('v_lshl_add_u32', vV, t0, 10, vV)])
    if kv is not None: E(smov(sB, kv))
    else: E([mul(sB, sROLE, 3), add(sB, sB, hd), shr(sB, sB, 1), shl(sB, sB, 19), add(sB, sB, 1536 * 256)])
    def qk():
        for T in range(2):
            E(add(sO, sB, sJ)) if T == 0 else E(add(sO, sO, 4096))
            for t in range(4): E(bload('buffer_load_dwordx4', F.sub(4 * t, 4), vK, sK, sO, t * 64))
            E(waitvm(0))
            for t in range(4):
                for g_ in range(2):
                    D_ = S.sub(8 * T + 4 * g_, 4)
                    E(mfma(D_, F.sub(4 * t, 4), Q.sub(8 * t + 4 * g_, 4), 0 if t == 0 else D_))
            E(nop(7)); E(nop(3))
    def allq(x, op):
        for sw in ('v_permlane16_swap_b32', 'v_permlane32_swap_b32'):
            E(valu('v_mov_b32', t0, x)); E(valu(sw, x, t0, rmw=True, extra_wr=[t0])); E(valu(op, x, x, t0))
    for g_ in range(2): E(valu('v_mov_b32', vM[g_], 0xff800000))
    E(smov(sJ, 0))
    E(label(L + "_a"))
    qk()
    for T in range(2):
        for g_ in range(2):
            for i in (0, 2): E(valu('v_max3_f32', vM[g_], vM[g_], S[8 * T + 4 * g_ + i], S[8 * T + 4 * g_ + i + 1]))
    E(add(sJ, sJ, 8192)); E(salu('s_cmp_lt_u32', None, sJ, 16 * 8192)); E(raw(f"s_cbranch_scc1 {L}_a"))
    for g_ in range(2): allq(vM[g_], 'v_max_f32')
    for i in range(64): E(valu('v_mov_b32', O[i], 0))
    for g_ in range(2): E(valu('v_mov_b32', vL[g_], 0))
    E(smov(sJ, 0))
    E(label(L + "_b"))
    qk()
    for i in range(16): E(valu('v_sub_f32', S[i], S[i], vM[(i >> 2) & 1]))
    for i in range(16): E(valu('v_exp_f32', S[i], S[i]))
    for i in range(16): E(valu('v_add_f32', vL[(i >> 2) & 1], vL[(i >> 2) & 1], S[i]))
    for g_ in range(2):
        for T in range(2):
            for k in range(2): E(valu('v_cvt_pk_bf16_f32', P[4 * g_ + 2 * T + k], S[8 * T + 4 * g_ + 2 * k], S[8 * T + 4 * g_ + 2 * k + 1]))
    for tp in range(4):
        for jh in range(2):
            E(add(sO, sB, sJ)) if jh == 0 else E(add(sO, sO, 4096))
            for tq in range(2):
                for jl in range(4):
                    j = 4 * jh + jl
                    E(bload('buffer_load_ushort', F[8 * (j & 1) + 4 * tq + j // 2], vV, sV, sO, jl * 256 + (2 * tp + tq) * 32))
        E(waitvm(0))
        for i in range(8): E(valu('v_lshl_or_b32', F[i], F[8 + i], 16, F[i]))
        for tq in range(2):
            for g_ in range(2):
                D_ = O.sub(8 * (2 * tp + tq) + 4 * g_, 4)
                E(mfma(D_, F.sub(4 * tq, 4), P.sub(4 * g_, 4), D_))
        E(nop(7))
    E(add(sJ, sJ, 8192)); E(salu('s_cmp_lt_u32', None, sJ, 16 * 8192)); E(raw(f"s_cbranch_scc1 {L}_b"))
    E(nop(7)); E(nop(3))
    for g_ in range(2): allq(vL[g_], 'v_add_f32')
    for g_ in range(2): E(valu('v_rcp_f32', vL[g_], vL[g_]))
    for i in range(64): E(valu('v_mul_f32', O[i], O[i], vL[(i >> 2) & 1]))
    for kk in range(4):
        for g_ in range(2):
            for T in range(2):
                for c in range(2):
                    r = 8 * (2 * kk + T) + 4 * g_ + 2 * c
                    E(valu('v_cvt_pk_bf16_f32', O[r], O[r], O[r + 1])); E(valu('v_accvgpr_write_b32', Odst[8 * kk + 4 * g_ + 2 * T + c], O[r]))
    E(nop(1)); E(raw(f"s_setpc_b64 {sRET}"))
    return p

NREP = 6
sMD2 = s(84)
def rep_addr(kind, dst, t):
    return [shl(sT2, sRB, 14), add(sT2, sT2, CTRL + 2048), add(sT3, sROLE, NS - NA), shl(sT3, sT3, 2), add(sT2, sT2, sT3),
            salu('s_cmp_eq_u32', None, sWAVE, 0), csel(sT2, sT2, OOB),
            valu('v_lshlrev_b32', dst, 3, vLANE16), valu('v_add_u32', dst, sT2, dst), valu('v_mov_b32', t, OOB),
            raw(f"v_cmp_gt_u32 vcc, {hex(NA * NREP * 16)}, {vLANE16}", 'valu', wr=['vcc'], rd=[vLANE16]), valu('v_cndmask_b32', dst, t, dst, 'vcc')]
vCR = v(31)
def add_signals(R):
    P2 = [k for k, st in enumerate(R.stages) if st.name.startswith('P2')]
    def sig(first):
        def f():
            out = [valu('v_add_u32', vPRG, 1, vPRG)]
            return out + [bstore('buffer_store_dword', vPRG, vCT, sWS, 0, flags='sc1')]
        return f
    def sig7():
        return [valu('v_add_u32', vPRG, 1, vPRG), bstore('buffer_store_dword', vPRG, vCR, sWS, 0, flags='sc1'), bstore('buffer_store_dword', vPRG, vCT, sWS, 0, flags='sc1')]
    def chain(stages, base):
        firsts = [k for k in stages if R.stages[k].sub == 0]
        for c in range(8):
            k = firsts[c + 1] + CFG.get('siglag', {}).get(R.kind, 2)
            if k > stages[-1]: break
            R.stages[k].cover_st = base + c; R.stages[k].post_bar = sig(c == 0)
            if c == 7 and CFG.get('rep') and R.kind in 'FM': R.stages[k].post_bar = sig7
        if CFG.get('rep') and R.kind in 'FM': R.pf.setdefault(firsts[1], []).append(lambda: rep_addr(R.kind, vCR, vPF))
    chain(P2, 0)
    R.stages[P2[0]].post_bar = lambda: [valu('v_mov_b32', vPRG, 0)]

LDSC = 4 * SLOT
sAB = s(72, 2); sRM = s(74, 2); sCD = s(76, 2)
sRS, sRF, sSP, sC, sI, sPB, sPART, sOK, sPAR, sXW, sPWv, sTO = s(78), s(79), s(71), s(80), s(81), s(82), s(47), s(40), s(41), s(59), s(3), s(58)
sIT = [s(42), s(44), s(45)]; sXP = [s(46), s(60), s(61)]
sRET2 = s(66, 2)
vP, vD, vA, vO, vXO, vL4, vDO, vLA, vIT, vLD, vSC = [v(16 + i) for i in range(11)]
vX4 = v(28)
def s64(op, d, *src, scc_r=False): return salu(op, d, *src, scc_r=scc_r)
sPV = s(85)
def red_setup(kind):
    o = [shl(sPB, sRB, 14), add(sPB, sPB, CTRL), salu('s_cmp_eq_u32', None, sWAVE, 0), csel(sT3, 0, OOB),
         valu('v_lshrrev_b32', vL4, 2, vLANE16), valu('v_add_u32', vL4, sT3, vL4),
         valu('v_mov_b32', vSC, OOB), add(sT2, sT3, 4 * NPART), raw(f"v_writelane_b32 {vSC}, {sT2}, 0", 'valu', wr=[vSC], rd=[sT2, vSC]),
         valu('v_mov_b32', vS1, vSC), valu('v_min_u32', vL5, NPART * 16, vLANE16), valu('v_lshrrev_b32', vL5, 2, vL5), valu('v_add_u32', vL5, sT3, vL5),
         add(sT2, sT3, 252), raw(f"v_writelane_b32 {vSC}, {sT2}, 1", 'valu', wr=[vSC], rd=[sT2, vSC]),
         shl(sT2, sRB, 4), add(sT2, sT2, sT3), valu('v_mov_b32', vDO, 256), raw(f"v_writelane_b32 {vDO}, {sT2}, 0", 'valu', wr=[vDO], rd=[sT2, vDO])]
    if kind == 'A': o += [shl(sPV, sROLE, 7), add(sPV, sPV, 256), add(sPV, sPV, sPB)]
    return o
vS1, vL5 = v(29), v(30)
PRIV = [False]
def red_poll(shared=False):
    cnt = [valu('v_mov_b32', vD, 0), I(f"buffer_atomic_add {vD}, {vDO}, {sDBG}, 0 offen sc0 sc1", 'vload', wr=vD.regs(), rd=vD.regs() + vDO.regs() + sDBG.regs(), units=3)]
    if PRIV[0] and not shared:
        return [cnt, [bstore('buffer_store_dword', vS1, vS1, sWS, sPV, flags='sc1'), bload('buffer_load_dword', vP, vL5, sWS, sPV, flags='sc1')]]
    return [cnt, [bstore('buffer_store_dword', vSC, vSC, sWS, sPB, flags='sc1'), bload('buffer_load_dword', vP, vL4, sWS, sPB, flags='sc1')]]
vG = [v(28), v(29), v(30)]; vGA = v(31); vGP = v(27)
def l2pf_setup():
    return [valu('v_lshrrev_b32', vGP, 7, vLANE16), smov(sT2, PSTR()), valu('v_mul_lo_u32', vGA, vGP, sT2),
            valu('v_bfe_u32', vA, vLANE16, 4, 3), valu('v_lshl_add_u32', vGA, vA, 7, vGA), shl(sT2, sWAVE, 10), valu('v_add_u32', vGA, sT2, vGA),
            valu('v_lshlrev_b32', vGP, 2, vGP), valu('v_mov_b32', vA, OOB), smov(sT2, 68), raw(f"v_writelane_b32 {vA}, {sT2}, 0", 'valu', wr=[vA], rd=[vA, sT2])]
def l2pf_poll():
    st = bstore('buffer_store_dword', vA, vA, sWS, sPB, flags='sc1')
    out = [[st]]
    for i in range(3):
        ld = bload('buffer_load_dword', vG[i], vGP, sWS, sPB, 32 * i, flags='sc1'); ld.tag = 'gp'
        out.append([ld])
    return out
def l2pf_issue(R, dlt):
    out = [[add(sI, sROLE, dlt), salu('s_and_b32', sT2, sI, 3), shr(sC, sI, 2), shl(sT3, sRB, 2), add(sT2, sT2, sT3), mul(sSP, sT2, PWAVE),
            shl(sT3, sC, 12), add(sSP, sSP, sT3), valu('v_mov_b32', vO, OOB)]]
    for i in range(3):
        ld = bload('buffer_load_dword', vDUM, vG[i], sWS, sT2); ld.tag = 'pf'
        cmp_ = raw(f"v_cmp_lt_u32 vcc, {sC}, {vG[i]}", 'valu', wr=['vcc'], rd=[sC, vG[i]])
        pre = [cmp_]
        if i == 2: pre += [raw("s_and_b64 vcc, vcc, 0xff", 'salu', wr=['vcc'], rd=['vcc'])]
        out.append(pre + [add(sT2, sSP, 8 * i * PSTR()), valu('v_cndmask_b32', vG[i], vO, vGA, 'vcc'), ld])
    return out
def red_eval():
    o = [raw(f"v_cmp_ne_u32 vcc, 0, {vP}", 'valu', wr=['vcc'], rd=[vP]), nop(1),
         raw(f"s_lshr_b64 {sAB}, vcc, {NPART + 1}", 'salu', wr=[sAB], rd=['vcc']), salu('s_and_b32', sAB[1], sAB[1], 15), smov(sRS, 0), smov(sRF, 0)]
    for c in range(9):
        o += [raw(f"v_cmp_ge_u32 vcc, {c}, {vP}", 'valu', wr=['vcc'], rd=[vP]), nop(1),
              raw(f"s_and_b32 {sT2}, vcc_lo, {hex((1 << NS) - 1)}", 'salu', wr=[sT2], rd=['vcc']), csel(sRS, sRS, 4 * (c + 1)),
              raw(f"s_and_b32 {sT2}, vcc_lo, {hex((1 << NPART) - (1 << NS))}", 'salu', wr=[sT2], rd=['vcc']), csel(sRF, sRF, 4 * (c + 1))]
    return o
def red_pub(par):
    return [shl(sT2, sRF, 8), salu('s_or_b32', sT2, sT2, sRS), shl(sT3, sTO, 16), salu('s_or_b32', sT2, sT2, sT3),
            valu('v_mov_b32', vIT, sT2), valu('v_mov_b32', vLA, par), raw(f"ds_write_b32 {vLA}, {vIT}", 'other', rd=[vLA, vIT]), waitlg(0)]
def red_get(par):
    return [valu('v_mov_b32', vLA, par), raw(f"ds_read_b32 {vIT}, {vLA}", 'ds', wr=[vIT], rd=[vLA]), waitlg(0),
            valu('v_readfirstlane_b32', sT2, vIT), salu('s_and_b32', sRS, sT2, 255), salu('s_bfe_u32', sRF, sT2, (8 << 16) | 8), shr(sTO, sT2, 16)]
def red_early(p, n):
    E = p.emit
    E([smov(sRS, 0), smov(sRF, 0), smov(sOK, 0), smov(sTO, 0), smov(sPAR, LDSC + 4), nop(1)])
    E(salu('s_cmp_eq_u32', None, sWAVE, 0)); E(raw(f"s_cbranch_scc0 L_{n}_e2"))
    E(waitvm(p.vm_wait_for(lambda t: t == 'poll')))
    E(valu('v_readfirstlane_b32', sOK, vD))
    E(salu('s_cmp_ge_u32', None, sOK, 16)); E(raw(f"s_cbranch_scc0 L_{n}_e1"))
    E(red_eval())
    E(label(f"L_{n}_e1"))
    E(red_pub(LDSC))
    E(label(f"L_{n}_e2"))

def ld_part(L, ks, flags):
    out = []
    for k in ks:
        out.append([add(sT2, sPART, k * PSTR()), bload('buffer_load_dwordx4', v(L + 4 * k, 4), vLD, sWS, sT2, flags=flags)])
    return out
def ld_x(L, sXO_):
    if CFG.get('nox'): return [[valu('v_mov_b32', vA, OOB), bload('buffer_load_dwordx2', v(L + 4 * NPART, 2), vA, sX, sXO_)], [bload('buffer_load_dwordx2', v(L + 4 * NPART + 2, 2), vA, sX, sXO_, 32)]]
    return [[bload('buffer_load_dwordx2', v(L + 4 * NPART, 2), vXO, sX, sXO_)], [bload('buffer_load_dwordx2', v(L + 4 * NPART + 2, 2), vXO, sX, sXO_, 32)]]
RB_ = 48
sD0, sD1 = s(68), s(69)
def proc_sum(E, L, ks, after, loads):
    SA, FA, T = RB_, RB_ + 8, RB_ + 16
    issued = 0; ks = list(ks)
    E(smov(sT3, 0xffff0000))
    for j, k in enumerate(ks):
        if loads: E(loads.pop(0)); issued += 1
        E(waitvm(len(ks) - 1 - j + after + issued))
        acc = SA if k < NS else FA
        for q in range(4):
            x = v(L + 4 * k + q)
            if k in (0, NS):
                E(valu('v_lshlrev_b32', v(acc + 2 * q), 16, x)); E(valu('v_and_b32', v(acc + 2 * q + 1), sT3, x))
            else:
                E(valu('v_dot2c_f32_bf16', v(acc + 2 * q), sD0, x, rmw=True)); E(valu('v_dot2c_f32_bf16', v(acc + 2 * q + 1), sD1, x, rmw=True))
    return issued
def proc_fin(E, L, sXO_, xwait, loads):
    SA, FA, T = RB_, RB_ + 8, RB_ + 16; XR = L + 4 * NPART; issued = 0
    for e in range(8): E(valu('v_exp_f32', v(T + e), v(FA + e)))
    for e in range(8): E(valu('v_add_f32', v(T + e), 1.0, v(T + e)))
    while len(loads) > 1: E(loads.pop(0)); issued += 1
    for e in range(8): E(valu('v_rcp_f32', v(T + e), v(T + e)))
    for e in range(8): E(valu('v_mul_f32', v(FA + e), f2u(-math.log(2.0)), v(FA + e)))
    for e in range(8): E(valu('v_mul_f32', v(FA + e), v(FA + e), v(T + e)))
    while loads: E(loads.pop(0)); issued += 1
    if xwait is not None: E(waitvm(xwait + issued))
    for q in range(4):
        E(valu('v_lshlrev_b32', v(T + 2 * q), 16, v(XR + q))); E(valu('v_and_b32', v(T + 2 * q + 1), sT3, v(XR + q)))
    for e in range(8): E(valu('v_fma_f32', v(T + e), v(SA + e), v(FA + e), v(T + e)))
    for q in range(4): E(valu('v_cvt_pk_bf16_f32', v(XR + q), v(T + 2 * q), v(T + 2 * q + 1)))
    if CFG.get('out4', True):
        def dpp(d, src, bank): return I(f"v_mov_b32_dpp {d}, {src} row_ror:8 row_mask:0xf bank_mask:{bank}", 'perm', wr=d.regs(), rd=src.regs() + d.regs())
        for i in range(2): E(valu('v_permlane16_swap_b32', v(XR + i), v(XR + 2 + i), rmw=True, extra_wr=[v(XR + 2 + i)]))
        for i in range(2): E(valu('v_mov_b32', v(T + i), v(XR + i)))
        for i in range(2): E(dpp(v(XR + i), v(XR + 2 + i), '0xc'))
        for i in range(2): E(dpp(v(XR + 2 + i), v(T + i), '0x3'))
        E(bstore('buffer_store_dwordx4', v(XR, 4), vX4, sOUT, sXO_, flags=CFG.get('oflags', 'sc1')))
        E(valu('v_mov_b32', vO, OOB)); E(bstore('buffer_store_dword', vO, vO, sOUT, 0))
        return
    E(bstore('buffer_store_dwordx2', v(XR, 2), vXO, sOUT, sXO_)); E(bstore('buffer_store_dwordx2', v(XR + 2, 2), vXO, sOUT, sXO_, 32))
def proc_all(E, L, sXO_, pre, loads):
    loads = list(loads)
    n = proc_sum(E, L, range(NPART), 2 + pre, loads)
    proc_fin(E, L, sXO_, pre + n, loads)

def acc_part(E, L, k):
    acc = RB_ if k < NS else RB_ + 8
    for q in range(4):
        x = v(L + 4 * k + q)
        if k in (0, NS):
            E(valu('v_lshlrev_b32', v(acc + 2 * q), 16, x)); E(valu('v_and_b32', v(acc + 2 * q + 1), sT3, x))
        else:
            E(valu('v_dot2c_f32_bf16', v(acc + 2 * q), sD0, x, rmw=True)); E(valu('v_dot2c_f32_bf16', v(acc + 2 * q + 1), sD1, x, rmw=True))
def stream(E, segs, hooks=None):
    W = CFG.get('rwin', 8); FL = CFG.get('fflags', 'sc1')
    seq = []
    for (L, sP, sX_, ks, wx, fin) in segs:
        if wx:
            for it in ld_x(L, sX_): seq.append((it, None))
        ks = list(ks)
        for j, k in enumerate(ks):
            it = [add(sT2, sP, k * PSTR()), bload('buffer_load_dwordx4', v(L + 4 * k, 4), vLD, sWS, sT2, flags=FL)]
            last = fin and j == len(ks) - 1
            seq.append((it, (lambda L=L, k=k, last=last, sX_=sX_: (acc_part(E, L, k), proc_fin(E, L, sX_, None, []) if last else None, last)[2])))
    E(smov(sT3, 0xffff0000))
    n = len(seq); issued = 0
    extra_at = []
    for c in range(n):
        while issued < min(n, c + W): E(seq[issued][0]); issued += 1
        if hooks and c in hooks:
            for _ in range(hooks[c](issued + sum(1 for e in extra_at))): extra_at.append(issued)
            E(smov(sT3, 0xffff0000))
        if seq[c][1] is None: continue
        E(waitvm(issued - 1 - c + sum(1 for e in extra_at if e > c)))
        if seq[c][1]():
            extra_at += [issued, issued]

def body_items(E, n, its, two, ni, ensure, refresh, done, ST, seg, final_flag, poll_hook, LATE, L0, L1, FOUR, sMID, offs, sPT):
    E(salu('s_min_u32', sT2, sRS, sRF)); E(salu('s_cmp_lt_u32', None, its[two - 1], sT2)); E(raw(f"s_cbranch_scc0 L_{n}_sl"))
    ST(its[0])
    hooks = {(NPART + 2) * two - CFG.get('pollat', 8): poll_hook}
    if LATE: hooks[CFG.get('flagat', 3) if n == 'A' else 0] = final_flag
    stream(E, [seg(0, L0), seg(1, L1)][:two], hooks)
    ST(51)
    E(raw(f"s_branch L_{n}_j"))
    E(label(f"L_{n}_sl"))
    if LATE and two == 2 and CFG.get('mid1', 1):
        E(salu('s_min_u32', sT2, sRS, sRF)); E(salu('s_cmp_lt_u32', None, its[0], sT2)); E(raw(f"s_cbranch_scc0 L_{n}_s0"))
        ST(52)
        stream(E, [seg(0, L0)], {CFG.get('flagat', 3): final_flag, 12: poll_hook}); done(its[0])
        refresh(2); ensure(its[1], 1, 1)
        stream(E, [seg(1, L1)], {11: poll_hook})
        E(raw(f"s_branch L_{n}_j"))
        E(label(f"L_{n}_s0"))
    if LATE: final_flag(0)
    for i in range(two):
        ensure(its[i], 1, 1)
        stream(E, [seg(i, L0)], {11: poll_hook} if i == two - 1 else None); done(its[i])
    E(label(f"L_{n}_j"))
    for i in range(two): done(its[i])
    if FOUR or (CFG.get('asg') == 3 and n == 'A'):
        E(salu('s_cmp_gt_u32', None, sMID, 35)); E(raw(f"s_cbranch_scc1 L_{n}_nm"))
        refresh(2)
        ensure(sMID, 1, 1); ST(sMID)
        E(offs(sMID, sXP[0]))
        stream(E, [seg(0, L1)], {13: poll_hook}); done(sMID)
        E(label(f"L_{n}_nm"))
    def warm():
        if not CFG.get('warm', 1): return
        E(valu('v_mov_b32', v(240), vLD)); E(valu('v_mov_b32', v(241), vX4)); E(valu('v_mov_b32', vLD, OOB)); E(valu('v_mov_b32', vX4, OOB))
        E(raw(f"s_call_b64 {sRET2}, L_{n}_ft"))
        E(valu('v_mov_b32', vLD, v(240))); E(valu('v_mov_b32', vX4, v(241)))
    if ni == 3:
        if CFG.get('asg') == 3:
            E(salu('s_cmp_lt_u32', None, its[2], 36)); E(raw(f"s_cbranch_scc1 L_{n}_h3"))
            E(red_poll(True)[1]); E(waitvm(0)); E(raw(f"s_branch L_{n}_fin")); E(label(f"L_{n}_h3"))
        refresh(2)
        if CFG.get('nof'):
            E(salu('s_cmp_gt_u32', None, sMD2, 35)); E(raw(f"s_cbranch_scc1 L_{n}_k1"))
            ensure(sMD2, 1, 1); E(offs(sMD2, sXP[0])); ST(sMD2)
            E(salu('s_cmp_lt_u32', None, its[2], sRS)); E(raw(f"s_cbranch_scc0 L_{n}_k0"))
            E(salu('s_cmp_lt_u32', None, its[2], sRF)); E(raw(f"s_cbranch_scc1 L_{n}_k0"))
            warm()
            stream(E, [seg(0, L1), seg(2, L0, range(NS), True, False)], {20: poll_hook.sh}); done(sMD2)
            E(raw(f"s_branch L_{n}_k2"))
            E(label(f"L_{n}_k0"))
            stream(E, [seg(0, L1)], {11: poll_hook}); done(sMD2)
            refresh(2)
            E(label(f"L_{n}_k1"))
        ensure(its[2], 1, 0); ST(its[2])
        E(salu('s_cmp_lt_u32', None, its[2], sRF)); E(raw(f"s_cbranch_scc1 L_{n}_f3"))
        if CFG.get('rep') and n == 'A':
            warm()
            stream(E, [seg(2, L0, range(NS), True, False)], {4: poll_hook.sh})
            E(label(f"L_{n}_k2"))
            E(salu('s_cmp_eq_u32', None, sWAVE, 0)); E(raw(f"s_cbranch_scc0 L_{n}_w2"))
            E(waitvm(0))
            E(raw(f"v_cmp_ne_u32 vcc, 0, {vP}", 'valu', wr=['vcc'], rd=[vP])); E(nop(1))
            E(raw(f"s_lshr_b64 {sAB}, vcc, {NPART + 1}", 'salu', wr=[sAB], rd=['vcc'])); E(salu('s_and_b32', sAB[1], sAB[1], 15))
            E(salu('s_or_b32', sT2, sAB[0], sAB[1])); E(csel(sRS, 1, 0))
            E(shr(sC, its[2], 2)); E(mul(sI, sROLE, NREP * 128)); E(add(sI, sI, sPB)); E(add(sI, sI, 2048)); E(add(sSP, sI, NREP * 128))
            E(label(f"L_{n}_w0"))
            E(bload('buffer_load_dword', vP, vL5, sWS, sI, flags='sc1')); E(waitvm(0))
            E(raw(f"v_cmp_ge_u32 vcc, {sC}, {vP}", 'valu', wr=['vcc'], rd=[vP, sC])); E(nop(1))
            E(raw(f"s_and_b32 {sT2}, vcc_lo, {hex((1 << NPART) - (1 << NS))}", 'salu', wr=[sT2], rd=['vcc'])); E(csel(sRF, 0, 36))
            E(raw(f"s_cbranch_scc0 L_{n}_w1"))
            E(add(sI, sI, 128)); E(salu('s_cmp_lt_u32', None, sI, sSP)); E(raw(f"s_cbranch_scc0 L_{n}_w1"))
            E(raw(f"s_sleep {CFG.get('rsleep', 6)}")); E(raw(f"s_branch L_{n}_w0"))
            E(label(f"L_{n}_w1")); E(red_pub(sPAR))
            E(label(f"L_{n}_w2")); E(barrier()); E(red_get(sPAR)); E(salu('s_xor_b32', sPAR, sPAR, 12))
            E(smov(sMID, sRS))
            ensure(its[2], 0, 1); ST(50)
            E(raw(f"s_call_b64 {sRET2}, L_{n}_ft")); done(its[2])
            E(salu('s_cmp_eq_u32', None, sMID, 0)); E(raw(f"s_cbranch_scc1 L_{n}_exit")); E(raw(f"s_branch L_{n}_fb"))
            E(label(f"L_{n}_ft"))
            stream(E, [seg(2, L0, range(NS, NPART), False, True)])
            E(raw(f"s_setpc_b64 {sRET2}"))
        else:
            stream(E, [seg(2, L0, range(NS), True, False)], {6: poll_hook})
            refresh(0)
            ensure(its[2], 0, 1); ST(50)
            stream(E, [seg(2, L0, range(NS, NPART), False, True)], {0: poll_hook.sh})
            E(raw(f"s_branch L_{n}_f4"))
        E(label(f"L_{n}_f3"))
        stream(E, [seg(2, L0)], {11: poll_hook.sh})
        E(label(f"L_{n}_f4"))
        done(its[2])


def reducer(kind):
    p = Prog(); E = p.emit; n = kind; FL = CFG.get('fflags', 'sc1')
    PRIV[0] = (kind == 'A')
    def ST(code):
        if CFG['stamps'] != 2: return
        E(raw(f"s_memtime {sSTAMP}", wr=[sSTAMP])); E(raw("s_waitcnt lgkmcnt(0)")); E(salu('s_sub_u32', s(98), s(98), s(100)))
        E(shl(s(98), s(98), 6)); E(salu('s_or_b32', s(98), s(98), code))
        E(add(s(97), s(97), 16)); E(salu('s_min_u32', s(97), s(97), 11 * 16))
        E(raw(f"v_cmp_eq_u32 vcc, s97, {vLANE16}", 'valu', wr=['vcc'], rd=[s(97), vLANE16])); E(valu('v_mov_b32', v(27), s(98)))
        E(valu('v_cndmask_b32', vSTAMP, vSTAMP, v(27), 'vcc'))
    def offs(item, sX_):
        return [salu('s_and_b32', sT2, item, 3), shr(sC, item, 2), shl(sT3, sRB, 2), add(sT2, sT2, sT3), mul(sPART, sT2, PWAVE), add(sX_, sPART, sXW),
                shl(sT3, sC, 12), add(sT3, sT3, sPWv), add(sPART, sPART, sT3), shl(sT3, sC, 7), add(sX_, sX_, sT3)]
    k_ = [0]
    def ensure(item, s_, f_):
        L = f"L_{n}_en{k_[0]}"; k_[0] += 1
        if s_ and f_: E(salu('s_min_u32', sT2, sRS, sRF)); r = sT2
        else: r = sRS if s_ else sRF
        E(salu('s_cmp_lt_u32', None, item, r)); E(raw(f"s_cbranch_scc1 {L}"))
        E(smov(sI, item)); E(smov(sC, (1 if s_ else 0) | (2 if f_ else 0)))
        E(raw(f"s_call_b64 {sRET2}, L_{n}_sync"))
        E(salu('s_cmp_eq_u32', None, sTO, 0)); E(raw(f"s_cbranch_scc0 L_{n}_fb"))
        E(label(L))
    def done(item): E(raw(f"s_bitset0_b64 {sRM}, {item}", 'salu', wr=[sRM], rd=[sRM, item]))
    E(label(f"L_{n}_red"))
    if CFG.get('rdelay'):
        if n == 'A': (E(waitvm(0)), E(barrier()), E(valu('v_mov_b32', vPRG, 9)), E(bstore('buffer_store_dword', vPRG, vCT, sWS, 0, flags='sc1')))
        for _ in range({'A': 30, 'M': 24, 'F': 14}[n]): E(raw("s_sleep 16"))
    E(red_get(LDSC))
    if CFG.get('rdelay'): E(smov(sRS, 36)); E(smov(sRF, 36))
    E(valu('v_lshrrev_b32', vO, 4, vLANE16)); E(valu('v_and_b32', vXO, 7, vO)); E(valu('v_lshlrev_b32', vLD, 4, vXO))
    E(smov(sT2, 1152)); E(valu('v_mul_u32_u24', vXO, sT2, vXO))
    E(valu('v_lshrrev_b32', vA, 3, vO)); E(valu('v_lshl_add_u32', vX4, vA, 4, vXO))
    E(valu('v_bfe_u32', vA, vO, 3, 2)); E(valu('v_lshl_add_u32', vXO, vA, 3, vXO)); E(valu('v_lshl_add_u32', vLD, vA, 8, vLD))
    E(valu('v_lshrrev_b32', vA, 5, vO)); E(valu('v_lshl_add_u32', vXO, vA, 6, vXO)); E(valu('v_lshl_add_u32', vLD, vA, 11, vLD))
    E(mul(sXW, sWAVE, 8 * 1152)); E(shr(sPWv, sWAVE, 1)); E(shl(sPWv, sPWv, 10)); E(salu('s_and_b32', sT2, sWAVE, 1)); E(shl(sT2, sT2, 7)); E(add(sPWv, sPWv, sT2))
    L0, L1 = 72, 76 + 4 * NPART
    E(smov(sD0, 0x3f80)); E(smov(sD1, 0x3f800000))
    E(raw(f"s_mov_b64 {sRM}, 0", 'salu', wr=[sRM]))
    FOUR = CFG.get('four')
    sMID = s(48 + 0) if False else s(83)
    def nib(dst, tab, base):
        E(smov(sCD[0], sum(tab[i] << (4 * i) for i in range(8)))); E(smov(sCD[1], tab[8] | (tab[9] << 4)))
        E(shl(sT2, sROLE, 2)); E(s64('s_lshr_b64', sCD, sCD, sT2)); E(salu('s_and_b32', dst, sCD[0], 15))
        E(salu('s_cmp_eq_u32', None, dst, 15)); E(csel(dst, 63 - base, dst)); E(add(dst, dst, base))
    if n == 'A':
        E(smov(sIT[0], sROLE)); E(add(sIT[1], sROLE, NA))
        if CFG.get('asg') == 2: E(add(sIT[2], sROLE, 16))
        elif CFG.get('asg') == 3:
            E(add(sMID, sROLE, 16)); E(raw(f"s_bitset1_b64 {sRM}, {sMID}", 'salu', wr=[sRM], rd=[sRM, sMID]))
            E(salu('s_and_b32', sT2, sROLE, 1)); E(shr(sIT[2], sROLE, 1)); E(add(sIT[2], sIT[2], 24)); E(salu('s_cmp_eq_u32', None, sT2, 0)); E(csel(sIT[2], sIT[2], 63))
        elif CFG.get('l844'): E(add(sIT[2], sROLE, 28))
        elif FOUR:
            nib(sMID, [0, 15, 1, 2, 15, 3, 4, 5, 6, 7], 20); nib(sIT[2], [0, 1, 15, 2, 3, 15, 4, 5, 6, 7], 28)
            E(raw(f"s_bitset1_b64 {sRM}, {sMID}", 'salu', wr=[sRM], rd=[sRM, sMID]))
        else:
            nib(sIT[2], [0, 1, 15, 2, 3, 15, 4, 5, 6, 7], 28)
            E(salu('s_cmp_eq_u32', None, sROLE, 2)); E(csel(sIT[2], 22, sIT[2])); E(salu('s_cmp_eq_u32', None, sROLE, 5)); E(csel(sIT[2], 21, sIT[2]))
            if CFG.get('nof'):
                nib(sMD2, CFG['nof'], 23)
                E(raw(f"s_bitset1_b64 {sRM}, {sMD2}", 'salu', wr=[sRM], rd=[sRM, sMD2]))
        its = sIT
    elif CFG.get('asg') == 2:
        if n == 'M': E(add(sIT[0], sROLE, 16)); E(add(sIT[1], sROLE, 20)); its = sIT[:2]
        else: E(add(sIT[0], sROLE, 20)); its = sIT[:1]
    elif CFG.get('asg') == 3:
        E(add(sIT[0], sROLE, 20)); its = sIT[:1]
    elif CFG.get('l844'):
        if n == 'M': E(add(sIT[0], sROLE, 8)); E(add(sIT[1], sROLE, 12)); its = sIT[:2]
        else: E(add(sIT[0], sROLE, 12)); its = sIT[:1]
    elif n == 'M': E(smov(sIT[0], 20)); its = sIT[:1]
    else:
        E(add(sIT[0], sROLE, 12)); its = sIT[:1]
    if (FOUR and n != 'A') or (CFG.get('nof') and n == 'F'):
        its = []
        E(waitvm(0)); E(red_poll()[1]); E(waitvm(0)); E(raw(f"s_branch L_{n}_fin"))
    for it in its: E(raw(f"s_bitset1_b64 {sRM}, {it}", 'salu', wr=[sRM], rd=[sRM, it]))
    E(salu('s_and_b32', sRM[1], sRM[1], 15))
    def refresh(wait):
        L = f"L_{n}_rf{k_[0]}"; k_[0] += 1
        E(salu('s_cmp_eq_u32', None, sWAVE, 0)); E(raw(f"s_cbranch_scc0 {L}"))
        E(waitvm(wait)); E(red_eval()); E(red_pub(sPAR))
        E(label(L)); E(barrier()); E(red_get(sPAR)); E(salu('s_xor_b32', sPAR, sPAR, 12))
    ALLD = lambda L, sx: ld_part(L, range(NPART), FL) + ld_x(L, sx)
    LATE = n in CFG.get('lateflag', 'A') + CFG.get('pre', '')
    sPT = [s(47), s(67 - 2), s(70)]
    def offs2(i): return offs(its[i], sXP[i]) + ([smov(sPT[i], sPART)] if i else [])
    def final_flag(wait):
        E(waitvm(wait)); E(barrier())
        E(valu('v_mov_b32', vPRG, 9))
        if CFG.get('rep') and n in 'FM': E(bstore('buffer_store_dword', vPRG, vCR, sWS, 0, flags='sc1'))
        E(bstore('buffer_store_dword', vPRG, vCT, sWS, 0, flags='sc1'))
        return 2 if (CFG.get('rep') and n in 'FM') else 1
    def poll_hook(_): E(red_poll()[1]); return 2
    def poll_sh(_): E(red_poll(True)[1]); return 2
    poll_hook.sh = poll_sh
    seg = lambda i, L, ks=range(NPART), wx=True, fin=True: (L, sPT[i], sXP[i], ks, wx, fin)
    ni = len(its)
    for i in reversed(range(ni)): E(offs2(i))
    two = min(ni, 2)
    if ni: body_items(E, n, its, two, ni, ensure, refresh, done, ST, seg, final_flag, poll_hook, LATE, L0, L1, FOUR, sMID, offs, sPT)
    E(label(f"L_{n}_fin"))
    E(salu('s_cmp_eq_u32', None, sWAVE, 0)); E(raw(f"s_cbranch_scc0 L_{n}_b4"))
    E(waitvm(2))
    E(raw(f"v_cmp_ne_u32 vcc, 0, {vP}", 'valu', wr=['vcc'], rd=[vP])); E(nop(1))
    E(raw(f"s_lshr_b64 {sAB}, vcc, {NPART + 1}", 'salu', wr=[sAB], rd=['vcc'])); E(salu('s_and_b32', sAB[1], sAB[1], 15))
    E(salu('s_or_b32', sT2, sAB[0], sAB[1])); E(csel(sTO, 1, 0))
    E(salu('s_cmp_ge_u32', None, sOK, 16)); E(csel(sTO, sTO, 1)); E(red_pub(sPAR))
    E(label(f"L_{n}_b4")); E(barrier()); E(red_get(sPAR)); E(salu('s_xor_b32', sPAR, sPAR, 12))
    E(salu('s_cmp_eq_u32', None, sTO, 0)); E(raw(f"s_cbranch_scc1 L_{n}_exit"))
    E(label(f"L_{n}_fb"))
    E(waitvm(0))
    E(salu('s_cmp_eq_u32', None, sWAVE, 0)); E(raw(f"s_cbranch_scc0 L_{n}_fb2"))
    E(s64('s_lshl_b64', sCD, sRM, NPART + 1)); E(valu('v_mov_b32', vO, OOB)); E(valu('v_mov_b32', vA, 1))
    E(valu('v_cndmask_b32', vO, vO, vL4, sCD)); E(bstore('buffer_store_dword', vA, vO, sWS, sPB, flags='sc1')); E(waitvm(0))
    E(red_poll()[0]); E(waitvm(0)); E(red_poll(True)[1]); E(waitvm(0)); E(valu('v_readfirstlane_b32', sOK, vD)); E(red_eval())
    E(salu('s_min_u32', sT2, sRS, sRF)); E(salu('s_cmp_ge_u32', None, sOK, 16)); E(csel(sT2, sT2, 0))
    E(salu('s_bfm_b64', sCD, sT2, 0, scc_w=False)); E(s64('s_or_b64', sAB, sAB, sRM)); E(s64('s_and_b64', sAB, sAB, sCD))
    E(label(f"L_{n}_fb1"))
    E(raw(f"s_ff1_i32_b64 {sRS}, {sAB}", 'salu', wr=[sRS], rd=[sAB])); E(salu('s_and_b32', sRS, sRS, 255))
    E(raw(f"s_bitset0_b64 {sAB}, {sRS}", 'salu', wr=[sAB], rd=[sAB, sRS])); E(red_pub(sPAR))
    E(label(f"L_{n}_fb2")); E(barrier()); E(red_get(sPAR)); E(salu('s_xor_b32', sPAR, sPAR, 12))
    E(salu('s_cmp_ge_u32', None, sRS, 36)); E(raw(f"s_cbranch_scc1 L_{n}_exit"))
    E(offs(sRS, sXP[0])); E(ld_part(L0, range(NPART), FL) + ld_x(L0, sXP[0])); E(waitvm(0)); proc_all(E, L0, sXP[0], 0, [])
    E(salu('s_cmp_eq_u32', None, sWAVE, 0)); E(raw(f"s_cbranch_scc1 L_{n}_fb1")); E(raw(f"s_branch L_{n}_fb2"))
    E(label(f"L_{n}_exit"))
    ST(60)
    if CFG['stamps']: E(raw(f"s_setpc_b64 {sRET}"))
    else: E(raw("s_endpgm"))
    E(label(f"L_{n}_sync"))
    E(salu('s_cmp_eq_u32', None, sWAVE, 0)); E(raw(f"s_cbranch_scc0 L_{n}_sy2"))
    E(smov(sSP, 0)); E(red_poll()[1][0])
    E(label(f"L_{n}_sy0"))
    E(salu('s_cmp_ge_u32', None, sOK, 16)); E(raw(f"s_cbranch_scc1 L_{n}_sy1"))
    E(red_poll()[0]); E(waitvm(0)); E(valu('v_readfirstlane_b32', sOK, vD))
    E(salu('s_cmp_ge_u32', None, sOK, 16)); E(raw(f"s_cbranch_scc0 L_{n}_syw"))
    E(label(f"L_{n}_sy1"))
    E(red_poll()[1][1]); E(red_poll()[1][0]); E(waitvm(1)); E(red_eval())
    E(salu('s_bitcmp1_b32', None, sC, 0)); E(csel(sT2, sRS, 36)); E(salu('s_bitcmp1_b32', None, sC, 1)); E(csel(sT3, sRF, 36))
    E(salu('s_min_u32', sT2, sT2, sT3)); E(salu('s_cmp_lt_u32', None, sI, sT2)); E(raw(f"s_cbranch_scc1 L_{n}_syp"))
    E(label(f"L_{n}_syw"))
    E(add(sSP, sSP, 1)); E(salu('s_cmp_gt_u32', None, sSP, CFG.get('spin', 4000))); E(csel(sTO, 1, 0)); E(raw(f"s_cbranch_scc1 L_{n}_syp"))
    E(raw(f"s_sleep {CFG.get('sleep', 1)}")); E(raw(f"s_branch L_{n}_sy0"))
    E(label(f"L_{n}_syp"))
    E(red_pub(sPAR))
    E(label(f"L_{n}_sy2")); E(barrier()); E(red_get(sPAR)); E(salu('s_xor_b32', sPAR, sPAR, 12))
    E(raw(f"s_setpc_b64 {sRET2}"))
    return p

def reduce_items(p, ni, sPART_, sXO_, srdP, srdX, srdO, vL16, vXO_, base, flags, mid=None):
    E = p.emit
    SA = base; FA = base + 8; T = base + 16
    Ls = [base + 24 + 72 * i for i in range(ni)]
    for k in range(NPART):
        if k: E(add(sPART_, sPART_, 16 * PART - (PWAVE if ni == 2 else 0)))
        for i in range(ni):
            if i: E(add(sPART_, sPART_, PWAVE))
            E(bload('buffer_load_dwordx4', v(Ls[i] + 4 * k, 4), vL16, srdP, sPART_, flags=flags))
    for i in range(ni):
        XR = Ls[i] + 68
        if i: E(add(sT2, sXO_, 32 * 1152))
        so = sT2 if i else sXO_
        E(bload('buffer_load_dwordx2', v(XR, 2), vXO_, srdX, so)); E(bload('buffer_load_dwordx2', v(XR + 2, 2), vXO_, srdX, so, 32))
    ex = 0
    if mid: mid(); ex = 1
    E(smov(sT3, 0xffff0000))
    for i in range(ni):
        L = Ls[i]; XR = L + 68
        for k in range(NPART):
            if i == 0: E(waitvm((NPART - 1 - k) * ni + (ni - 1) + 2 * ni + ex))
            acc = SA if k < 11 else FA
            for q in range(4):
                x = v(L + 4 * k + q)
                if k in (0, 11):
                    E(valu('v_lshlrev_b32', v(acc + 2 * q), 16, x)); E(valu('v_and_b32', v(acc + 2 * q + 1), sT3, x))
                else:
                    tp = v(T + 2 * q, 2)
                    E(valu('v_lshlrev_b32', tp[0], 16, x)); E(valu('v_and_b32', tp[1], sT3, x))
            if k not in (0, 11):
                for q in range(4): E(valu('v_pk_add_f32', v(acc + 2 * q, 2), v(acc + 2 * q, 2), v(T + 2 * q, 2)))
        for e in range(8): E(valu('v_exp_f32', v(T + e), v(FA + e)))
        for e in range(8): E(valu('v_add_f32', v(T + e), 1.0, v(T + e)))
        for e in range(8): E(valu('v_rcp_f32', v(T + e), v(T + e)))
        for e in range(8): E(valu('v_mul_f32', v(FA + e), f2u(-math.log(2.0)), v(FA + e)))
        for e in range(8): E(valu('v_mul_f32', v(FA + e), v(FA + e), v(T + e)))
        if i == 0: E(waitvm(ex if ni == 1 else 0))
        for q in range(4):
            E(valu('v_lshlrev_b32', v(T + 2 * q), 16, v(XR + q))); E(valu('v_and_b32', v(T + 2 * q + 1), sT3, v(XR + q)))
        for e in range(8): E(valu('v_fma_f32', v(T + e), v(SA + e), v(FA + e), v(T + e)))
        for q in range(4): E(valu('v_cvt_pk_bf16_f32', v(XR + q), v(T + 2 * q), v(T + 2 * q + 1)))
        if i: E(add(sXO_, sXO_, 32 * 1152))
        E(bstore('buffer_store_dwordx2', v(XR, 2), vXO_, srdO, sXO_)); E(bstore('buffer_store_dwordx2', v(XR + 2, 2), vXO_, srdO, sXO_, 32))

def build_role(kind, vm_before):
    R = Role(kind)
    CFG['shape'] = CFG.get('shapes', {}).get(kind, CFG['shape0'])
    R.ring = {'F': (216, 9), 'A': (192, 16), 'M': (200, 8)}[kind]
    if kind == 'M': R.depth = 7
    nl = CFG.get('pfl', 16)
    MS = CFG['shape'] == 'M'
    if MS:
        R.add_p1_unit, R.add_p1_half, R.epi_silu, R.epi_q = R.add_p1_unitM, R.add_p1_halfM, R.epi_siluM, R.epi_qM
    P2M = 'q16' if MS else 'pi'
    if kind == 'F' and CFG.get('l844'):
        R.ring = (208, 12); R.depth = 7
        for u in range(13): R.add_p1_unit(u, sW1, sHA, sHC, 9216, u == 0, a(16 * u, 16), R.epi_silu, last=(u == 12),
                                          inreg=[pf_run(sW2, sPF2, 832 * 1152, 10) if u >= 1 else None, pf_row('F', sW1)])
        needs = {t: [('reg', 8 * t)] for t in range(26)}
        dm = [dma_w(sW2, sFA, 0, 1152, sFC, 0), dma_w(sW2, sFA, 288 * 1152, 1152, sFC, 288 * 1152), dma_w(sW2, sFA, 576 * 1152, 1152)]
        R.add_p2([(a(0, 208), [288, 288, 256], dm, needs, sSt)], [add(x, x, 128) for x in (sFA, sFC)], pre0=lambda: set_offw(1152, P2M))
        for st in R.stages[-27:]: st.ring = (208, 12, 'restart')
    elif kind == 'M' and CFG.get('l844'):
        R.ring = (208, 8); R.depth = 7
        Q = [a(80, 32), a(112, 32)]; OA = a(144, 64)
        def mpf(u):
            if u == 0: return pf_row('M', sWQ)
            if u == 1: return lambda: pf_row_setup('M', 9216, 18, sPF1, 0) + [pf_row('M', sW1)()[1]]
            if u <= 5: return pf_row('M', sW1)
            return None
        for u in range(4): R.add_p1_unit(u, sWQ, sQA, sQC, 8192, u == 0, a(80 + 16 * u, 16), R.epi_q, key='Q', inreg=[None, mpf(u)])
        for u in range(5): R.add_p1_unit(4 + u, sW1, sHA, sHC, 9216, u == 0, a(16 * u, 16), R.epi_silu, pre=(lambda: set_offw(9216, 'S')) if u == 0 else None,
                                         last=(u == 4), key='H', inreg=[None, mpf(4 + u)])
        Ha = dict(i=0, Q=Q[0], S=Sreg, P=Preg, O=OA, LM=v(230, 8), OF=lambda kk: OA.sub(16 * kk, 8),
                  need_qk=[('acc', 80), ('acc', 96)], need_pv=[('acc', 48 + 16 * i) for i in range(4)])
        Hb = dict(i=1, Q=Q[1], S=[v(80, 16), v(96, 16)], P=[v(48, 8), v(56, 8)], O=v(160, 64), LM=v(64, 8), OF=lambda kk: OA.sub(16 * kk + 8, 8))
        R.add_pa_g([[Ha, Hb]])
        R.stages[-9].mf[-1].need.append(('acc', 48))
        R.heads = [(Ha, sPFa), (Hb, sPFa)]
        R.add_p2m(a(0, 80), [H['OF'](kk) for H in (Ha, Hb) for kk in range(4)],
                  [dma_w(sW2, sFA, 0, 1152, sFC, 0), dma_w(sWO, sOA, 0, 1152, sFC, 32 * 1152, srdC=sW2)],
                  [add(x, x, 128) for x in (sOA, sFA, sFC)], pre0=lambda: set_offw(1152, P2M))
        for st in R.stages[-18:]: st.ring = (208, 12, 'restart')
        k = pf_sched(R, 15, sK, sPFa, 131072, 16); k = pf_sched(R, k, sV, sPFa, 131072, 16)
        pf_sched(R, 17, sWO, sPFc, 256 * 1152, 36); pf_sched(R, 18, sW2, sPF2, 320 * 1152, 45)
    elif kind == 'F':
        for u in range(13): R.add_p1_unit(u, sW1, sHA, sHC, 9216, u == 0, a(16 * u, 16), R.epi_silu, last=(u == 12), inreg=[pf_run(sW2, sPF2, 832 * 1152, 10) if u >= 1 else None, pf_row('F', sW1) if CFG['pf'] >= 3 else None] if CFG['pf'] else None)
        R.add_p1_half(13, a(208, 8))
        needs = {t: [('reg', 8 * t)] for t in range(27)}
        dm = [dma_w(sW2, sFA, 0, 1152, sFC, 0), dma_w(sW2, sFA, 288 * 1152, 1152, sFC, 288 * 1152), dma_w(sW2, sFA, 576 * 1152, 1152, sFS, 0)]
        R.add_p2([(a(0, 216), [288, 288, 288], dm, needs, sSt)], [add(x, x, 128) for x in (sFA, sFC, sFS)], pre0=lambda: set_offw(1152, P2M))
        if CFG['pf']:
            pf_sched(R, 26, sW2, sPF2h, 32 * 1152, 8)
    elif kind == 'A' and CFG.get('pair'):
        OA = a(96, 64)
        Ha = dict(i=0, Q=a(0, 32), S=Sreg, P=Preg, O=OA, LM=v(230, 8), OF=lambda kk: OA.sub(16 * kk, 8),
                  need_qk=[('acc', 48), ('acc', 64)], need_pv=[('acc', 48 + 16 * i) for i in range(4)])
        Hb = dict(i=1, Q=a(32, 32), S=[v(48, 16), v(64, 16)], P=[v(80, 8), v(88, 8)], O=v(160, 64), LM=v(96, 8), OF=lambda kk: OA.sub(16 * kk + 8, 8))
        Hc = dict(i=2, Q=a(64, 32), S=Sreg, P=Preg, O=v(48, 64), LM=v(16, 8), OF=lambda kk: a(160 + 8 * kk, 8), need_pv=[('lm', 0)])
        Ha['need_qk'] += [('acc', 80)]
        pj = {1: sJQ}
        for u in range(6):
            R.add_p1_unit(u, sWQ, sQA, sQC, 8192, u == 0, a(16 * u, 16), R.epi_q, last=(u == 5), step=sJQ if u == 4 else 128,
                          inreg=[pf_run(sWO, sPFc, 384 * 1152, 11) if u >= 1 else None, pf_row('A', sWQ, pj.get(u, 128)) if CFG['pf'] >= 3 and u < 3 else None] if CFG['pf'] else None)
        R.add_pa_g([[Ha, Hb], [Hc]])
        Bf = [H['OF'](kk) for H in (Ha, Hb, Hc) for kk in range(4)]
        needs = {0: [('fin', 0), ('fin', 1)], 8: [('fin', 2)]}
        dm = [dma_w192(sWO, 0), dma_w192(sWO, 0, sOA1, sOB1)]
        R.add_p2([(Bf, [192, 192], dm, needs, sSt)], [add(x, x, 128) for x in (sOA, sOB, sOA1, sOB1)], pre0=lambda: set_offw(1152, P2M))
        R.heads = [(Ha, sPFa), (Hb, sPFa), (Hc, sPFb)]
        if CFG['pf'] >= 2:
            pf_sched(R, 10, sK, sPFa, 131072, 16); pf_sched(R, 10, sV, sPFa, 131072, 16)
            pf_sched(R, 12, sK, sPFb, 131072, 16); pf_sched(R, 12, sV, sPFb, 131072, 16)
    elif kind == 'A':
        Q = [a(32 * e, 32) for e in range(3)]; O = [a(96 + 32 * e, 32) for e in range(3)]
        for u in range(6): R.add_p1_unit(u, sWQ, sQA, sQC, 8192, u == 0, a(16 * u, 16), R.epi_q, last=(u == 5), inreg=[pf_run(sWO, sPFc, 384 * 1152, 11) if u >= 1 else None, pf_row('A', sWQ) if CFG['pf'] >= 3 and u < 5 else None] if CFG['pf'] else None)
        R.add_pa(Q, O)
        needs = {4 * e: [('fin', e)] for e in range(3)}; needs[0].append(('S', 2, 15))
        dm = [dma_w192(sWO, b * 192 * 1152) for b in range(2)]
        R.add_p2([(a(96, 96), [192, 192], dm, needs, sSt)], [add(sOA, sOA, 128), add(sOB, sOB, 128)], pre0=lambda: set_offw(1152, P2M))
        if CFG['pf']:
            if CFG['pf'] >= 2:
                pf_sched(R, 10, sK, sPFa, 131072, 16); pf_sched(R, 10, sV, sPFa, 131072, 16)
                pf_sched(R, 12, sK, sPFb, 131072, 16); pf_sched(R, 12, sV, sPFb, 131072, 16)
    else:
        Q = [a(136 + 32 * e, 32) for e in range(2)]; O = [a(72 + 32 * e, 32) for e in range(2)]
        def mpf(u):
            if u == 0: return pf_row('M', sWQ)
            if u == 1: return lambda: pf_row_setup('M', 9216, 18, sPF1, 0) + [pf_row('M', sW1)()[1]]
            if u <= 4: return pf_row('M', sW1)
            if u == 5: return lambda: [smov(sPW, sPF1h), pf_row('M', sW1)()[1]]
            return None
        for u in range(4): R.add_p1_unit(u, sWQ, sQA, sQC, 8192, u == 0, a(136 + 16 * u, 16), R.epi_q, key='Q', inreg=[None, mpf(u)] if CFG['pf'] >= 3 else None)
        for u in range(4): R.add_p1_unit(4 + u, sW1, sHA, sHC, 9216, u == 0, a(16 * u, 16), R.epi_silu, pre=(lambda: set_offw(9216, 'M' if MS else 'S')) if u == 0 else None, last=(u == 3), key='H', inreg=[None, mpf(4 + u)] if CFG['pf'] >= 3 else None)
        R.add_p1_half(8, a(64, 8))
        BO = a(72, 64)
        if CFG.get('pair'):
            Ha = dict(i=0, Q=Q[0], S=Sreg, P=Preg, O=BO, LM=v(230, 8), OF=lambda kk: BO_.sub(16 * kk, 8),
                      need_qk=[('acc', 48 + 16 * i) for i in range(3)], need_pv=[('acc', 48 + 16 * i) for i in range(4)])
            Hb = dict(i=1, Q=Q[1], S=[v(64, 16), v(48, 16)], P=[v(80, 8), v(88, 8)], O=v(160, 64), LM=v(96, 8), OF=lambda kk: BO_.sub(16 * kk + 8, 8))
            BO_ = BO
            R.add_pa_g([[Ha, Hb]])
            BO = [H['OF'](kk) for H in (Ha, Hb) for kk in range(4)]
            R.heads = [(Ha, sPFa), (Hb, sPFa)]
        else: R.add_pa(Q, O)
        nf = {t: [('reg', 8 * t)] for t in range(9)}; nf[0].append(('S', 1, 15))
        R.add_p2([(a(0, 72), [288], [dma_w(sW2, sFA, 0, 1152, sFS, 0)], nf, sSt2),
                  (BO, [256], [dma_w(sWO, sOA, 0, 1152)], {0: [('fin', 0)], 4: [('fin', 1)]}, sSt)],
                 [add(x, x, 128) for x in (sOA, sFA, sFS)], pre0=lambda: set_offw(1152, P2M))
        for st in R.stages[-18:]: st.ring = (200, 14, 'restart')
        if CFG['pf']:
            if CFG['pf'] >= 2:
                k = pf_sched(R, 14, sK, sPFa, 131072, 16); k = pf_sched(R, k, sV, sPFa, 131072, 16)
            pf_sched(R, 16, sWO, sPFc, 256 * 1152, 36); pf_sched(R, 23 if not CFG.get('pair') else 17, sW2, sPF2, 256 * 1152, 36); pf_sched(R, 24 if not CFG.get('pair') else 17, sW2, sPF2h, 32 * 1152, 8)
    if CFG.get('msum') and not MS and kind in 'AM':
        st0 = [st for st in R.stages if st.name == 'PAh0s0'][0]
        m0_ = st0.mf[8]
        m0_.need += [('acc', 48 + 16 * i) for i in range(4)]
        m0_.pre = lambda: R.p.emit([valu('v_mov_b32', vONES[i], 0x3f803f80) for i in range(4)])
    if CFG.get('recode') and CFG['fused']:
        names = [st.name for st in R.stages]
        nS = len(names)
        R.pf.setdefault(nS - 2, []).append(pf_code(f"L_{kind}_red", f"L_role{kind}_end", 4))
        p2 = names.index('P2c0b0')
        R.stages[p2].label = f"L_{kind}_p2"
        R.pf.setdefault(p2 - 2, []).append(pf_code(f"L_{kind}_p2", f"L_{kind}_p2+20480", 5))
        if kind in 'AM':
            pa = names.index('PAmini'); R.stages[pa].label = f"L_{kind}_pa"
            R.pf.setdefault(pa - 1, []).append(pf_code(f"L_{kind}_pa", f"L_{kind}_p2", 8))
    if CFG.get('hot') and CFG['fused'] and kind in CFG['hot']:
        names = [st.name for st in R.stages]
        last = names.index('P2c8b0'); R.stages[last].label = f"L_{kind}_c8"
        def setup():
            o = [raw(f"s_getpc_b64 {sPC}", 'salu', wr=[sPC]), label(f"L_{kind}_hp"),
                 salu('s_add_u32', sPC[0], sPC[0], f"L_{kind}_c8-L_{kind}_hp"), salu('s_addc_u32', sPC[1], sPC[1], 0, scc_r=True),
                 valu('v_bfe_u32', vPF2, vTID, 16, 5), valu('v_and_b32', vPF, 63, vTID), valu('v_min_u32', vPF, 1, vPF),
                 valu('v_lshl_add_u32', vPF, vPF2, 1, vPF), valu('v_lshlrev_b32', vPF, 7, vPF)]
            if kind == 'F': o += pf_row_setup(kind, 1152, 26, sPF2, 2 * 128)
            return o
        def rep_code():
            return [I(f"global_load_dword {vDUM}, {vPF}, {sPC}", 'vload', wr=vDUM.regs(), rd=vPF.regs() + sPC.regs(), units=3, tag='pf')]
        R.pf.setdefault(names.index('P2c1b0'), []).append(setup)
        for c in range(2, 8):
            k0 = names.index(f'P2c{c}b0')
            R.pf.setdefault(k0, []).append(rep_code)
            if kind == 'F': R.pf.setdefault(k0 + 1, []).append(pf_row(kind, sW2))
    R.slow = []
    if kind in 'AM' and CFG.get('slow', True) and CFG.get('pair'):
        P2s = [st for st in R.stages if st.name.startswith('P2c0')]
        hl = [(H['i'], H['Q'], (H['OF'], kv)) for (H, kv) in R.heads]
        if kind == 'A':
            P2s[0].mf[0].pre = slow_check(R, hl[:2], (112, 160))
            [m for m in P2s[1].mf if ('fin', 2) in m.need][0].pre = slow_check(R, hl[2:], (160, 48))
        else:
            m_ = P2s[1].mf[4 if CFG.get('l844') else 0]
            m_.need += [('fin', 0), ('fin', 1)]
            m_.pre = slow_check(R, hl, (160, 48))
    elif kind in 'AM' and CFG.get('slow', True):
        P2s = [st for st in R.stages if st.name.startswith('P2c0')]
        if kind == 'A':
            P2s[0].mf[0].need += [('fin', 1)]
            P2s[0].mf[0].pre = slow_check(R, [(0, Q[0], O[0]), (1, Q[1], O[1])], 112)
            m_ = [m for m in P2s[1].mf if ('fin', 2) in m.need][0]
            m_.pre = slow_check(R, [(2, Q[2], O[2])], 160)
        else:
            P2s[1].mf[0].need += [('fin', 1)]
            P2s[1].mf[0].pre = slow_check(R, [(0, Q[0], O[0]), (1, Q[1], O[1])], 160)
    if CFG['fused']:
        add_signals(R)
        def early0():
            it = red_setup(kind) + red_poll()[0]
            it[-1].tag = 'cnt'
            return it
        def early():
            assert R.cnt_covered()
            PRIV[0] = (kind == 'A')
            it = red_poll()[1]
            it[-1].tag = 'poll'
            return it
        def covered():
            idx = max(i for i, x in enumerate(R.p.ins) if x.tag == 'cnt'); n = 0
            for x in R.p.ins[idx + 1:]:
                if x.kind in VMEMK: n += 1
                if x.txt.startswith('s_waitcnt vmcnt(') and int(x.txt[16:-1]) <= n: return True
            return False
        R.cnt_covered = covered
        if kind == 'A' and CFG.get('l2pf'):
            nm = [st.name for st in R.stages]
            R.pf.setdefault(nm.index('P2c1b0'), []).append(l2pf_setup)
            for (cw, dlt) in CFG['l2pf']:
                kp = nm.index(f'P2c{cw}b0')
                for j in range(4): R.pf.setdefault(kp, []).append(lambda j=j: l2pf_poll()[j])
                R.stages[kp + 2].cover_tag = 'gp'
                def gate(j, dlt=dlt):
                    def f():
                        it = l2pf_issue(R, dlt)[j]
                        if j == 0:
                            it = it + [valu('v_readfirstlane_b32', sOK, vD), salu('s_cmp_ge_u32', None, sOK, 16), csel(sC, sC, 15)]
                        return it
                    return f
                for j in range(4): R.pf.setdefault(kp + 2, []).append(gate(j))
        R.pf.setdefault([st.name for st in R.stages].index('P2c1b0' if kind == 'F' else 'P2c0b1'), []).append(early0)
        if kind in CFG.get('pre', ''):
            R.pf.setdefault(len(R.stages) - 3, []).append(early)
            R.stages[-1].pre_bar = lambda: red_early(R.p, kind)
        else: R.pf.setdefault(len(R.stages) - CFG.get('pollw', 1), []).append(early)
    role_prologue(R, vm_before)
    R.run()
    if CFG['fused']:
        p = R.p
        if kind not in CFG.get('pre', ''): red_early(p, kind)
        if kind in CFG.get('pre', ''): pass
        elif kind in CFG.get('lateflag', 'A'): p.emit(barrier())
        else:
            p.emit(waitvm(0)); p.emit(barrier())
            p.emit(valu('v_mov_b32', vPRG, 9))
            if CFG.get('rep'): p.emit(bstore('buffer_store_dword', vPRG, vCR, sWS, 0, flags='sc1'))
            p.emit(bstore('buffer_store_dword', vPRG, vCT, sWS, 0, flags='sc1'))
        if CFG['stamps']: R.stamp(len(R.stages) - 1)
        p.emit(raw(f"s_call_b64 {sRET}, L_{kind}_red"))
    if CFG['stamps']:
        p = R.p
        R.stamp(len(R.stages))
        p.emit(raw("s_memrealtime s[98:99]", wr=[s(98, 2)])); p.emit(raw("s_waitcnt lgkmcnt(0)"))
        p.emit(raw(f"v_writelane_b32 {vSTAMP}, s98, 63", 'valu', wr=[vSTAMP], rd=[s(98)]))
        if CFG.get('dbgstat'):
            n = len(R.stages)
            lanes = {'F': [0, 27, n - 1, n], 'A': [0, 37, n - 1, n], 'M': [0, 34, n - 1, n]}[kind]
            slots = {'F': [1, 2, 3, 5], 'A': [10, 11, 13, 14], 'M': [15, 15, 15, 15]}[kind]
            p.emit([valu('v_mov_b32', v(4), 256), valu('v_mov_b32', v(5), 0)])
            for i, (ln, sl) in enumerate(zip(lanes, slots)):
                p.emit(raw(f"v_readlane_b32 s92, {vSTAMP}, {ln}", 'rdl', wr=[sT2], rd=[vSTAMP])); p.emit(nop(3))
                p.emit(raw(f"v_writelane_b32 v5, s92, {i}", 'valu', wr=[v(5)], rd=[sT2])); p.emit(raw(f"v_writelane_b32 v4, {4 * sl}, {i}", 'valu', wr=[v(4)]))
            p.emit(raw(f"v_writelane_b32 v5, s98, 4", 'valu', wr=[v(5)], rd=[s(98)])); p.emit(raw(f"v_writelane_b32 v4, 28, 4", 'valu', wr=[v(4)]))
            p.emit(salu('s_not_b32', sT2, s(43))); p.emit(raw(f"v_writelane_b32 v5, s92, 5", 'valu', wr=[v(5)], rd=[sT2])); p.emit(raw(f"v_writelane_b32 v4, 36, 5", 'valu', wr=[v(4)]))
            p.emit(salu('s_sub_u32', sT2, s(98), s(43))); p.emit(raw(f"v_writelane_b32 v5, s92, 6", 'valu', wr=[v(5)], rd=[sT2])); p.emit(raw(f"v_writelane_b32 v4, 24, 6", 'valu', wr=[v(4)]))
            p.emit([salu('s_cmp_eq_u32', None, sRB, 9), csel(sT2, 0, sRB), salu('s_or_b32', sT2, sT2, sWAVE), salu('s_cmp_eq_u32', None, sT2, 0), csel(sT2, 0, 256),
                    valu('v_add_u32', v(4), sT2, v(4))])
            p.emit(I(f"buffer_atomic_umax v5, v4, {sDBG}, 0 offen sc1", 'vstore', rd=vr(4, 2) + sDBG.regs(), units=3))
        p.emit([shl(sT2, s(2), 2), add(sT2, sT2, sWAVE), shl(sT2, sT2, 8), add(sT2, sT2, STAMP_OFF),
                valu('v_lshrrev_b32', v(42), 2, vLANE16), bstore('buffer_store_dword', vSTAMP, v(42), sWS, sT2)])
    R.p.emit(raw("s_endpgm"))
    return R

def fold(ins, name):
    idx = [i for i, x in enumerate(ins) if x.tag == 'mark']
    def body(a_, b_): return [x.txt for x in ins[a_:b_] if x.kind != 'label']
    out = []; pos = 0; k = 0; nl = 0
    while k + 1 < len(idx):
        b0 = body(idx[k], idx[k + 1]); n = 1
        while k + n + 1 < len(idx) and body(idx[k + n], idx[k + n + 1]) == b0: n += 1
        if n >= 2:
            out += ins[pos:idx[k]]
            L = f"L_{name}_loop{nl}"; nl += 1
            out.append(smov(sLC, n)); out.append(I(".p2align 3", 'label')); out.append(label(L))
            out += ins[idx[k]:idx[k + 1]]
            out += [salu('s_sub_u32', sLC, sLC, 1), salu('s_cmp_lg_u32', None, sLC, 0), raw(f"s_cbranch_scc1 {L}")]
            pos = idx[k + n]; k += n
        else: k += 1
    out += ins[pos:]
    return out

def fold_regions(ins, name):
    regs = []; i = 0
    beg = None
    for i, x in enumerate(ins):
        if isinstance(x.tag, tuple) and x.tag and x.tag[0] == 'region':
            if x.tag[1] == 'begin': beg = (i, x.tag[2])
            elif beg: regs.append((beg[0], i, beg[1])); beg = None
    groups = {}
    for (a_, b_, key) in regs:
        groups.setdefault(tuple(x.txt for x in ins[a_:b_] if x.kind != 'label'), []).append((a_, b_))
    out = []; subs = []; repl = {}
    n = 0
    for body, lst in groups.items():
        if len(lst) >= 2:
            L = f"L_{name}_sub{n}"; n += 1
            a_, b_ = lst[0]
            subs += [I(".p2align 6", 'label'), label(L)] + ins[a_:b_] + [raw(f"s_setpc_b64 {sRET}")]
            for (a_, b_) in lst: repl[a_] = (b_, L)
    i = 0
    while i < len(ins):
        if i in repl:
            b_, L = repl[i]; out.append(raw(f"s_call_b64 {sRET}, {L}")); i = b_
        else:
            out.append(ins[i]); i += 1
    print(f"  regions: {[len(l) for l in groups.values()]}", file=sys.stderr)
    return out + subs

def reduce_body(p, sPART, sXO, srdP, srdX, srdO, vL16, vXO, base, flags, mid=None):
    E = p.emit
    L = base; XR = base + 68; SA = base + 72; FA = base + 80; T = base + 88
    for k in range(NPART):
        if k: E(add(sPART, sPART, 16 * PART))
        E(bload('buffer_load_dwordx4', v(L + 4 * k, 4), vL16, srdP, sPART, flags=flags))
    E(bload('buffer_load_dwordx2', v(XR, 2), vXO, srdX, sXO)); E(bload('buffer_load_dwordx2', v(XR + 2, 2), vXO, srdX, sXO, 32))
    ex = 0
    if mid: E(mid()); ex = 1
    E(smov(sT3, 0xffff0000))
    for k in range(NPART):
        E(waitvm(NPART + 1 - k + ex))
        acc = SA if k < 11 else FA
        for q in range(4):
            x = v(L + 4 * k + q)
            if k in (0, 11):
                E(valu('v_lshlrev_b32', v(acc + 2 * q), 16, x)); E(valu('v_and_b32', v(acc + 2 * q + 1), sT3, x))
            else:
                tp = v(T + 2 * q, 2)
                E(valu('v_lshlrev_b32', tp[0], 16, x)); E(valu('v_and_b32', tp[1], sT3, x))
        if k not in (0, 11):
            for q in range(4): E(valu('v_pk_add_f32', v(acc + 2 * q, 2), v(acc + 2 * q, 2), v(T + 2 * q, 2)))
    for e in range(8): E(valu('v_exp_f32', v(T + e), v(FA + e)))
    for e in range(8): E(valu('v_add_f32', v(T + e), 1.0, v(T + e)))
    for e in range(8): E(valu('v_rcp_f32', v(T + e), v(T + e)))
    for e in range(8): E(valu('v_mul_f32', v(FA + e), f2u(-math.log(2.0)), v(FA + e)))
    for e in range(8): E(valu('v_mul_f32', v(FA + e), v(FA + e), v(T + e)))
    E(waitvm(ex))
    for q in range(4):
        E(valu('v_lshlrev_b32', v(T + 2 * q), 16, v(XR + q))); E(valu('v_and_b32', v(T + 2 * q + 1), sT3, v(XR + q)))
    for e in range(8): E(valu('v_fma_f32', v(T + e), v(SA + e), v(FA + e), v(T + e)))
    for q in range(4): E(valu('v_cvt_pk_bf16_f32', v(XR + q), v(T + 2 * q), v(T + 2 * q + 1)))
    E(bstore('buffer_store_dwordx2', v(XR, 2), vXO, srdO, sXO)); E(bstore('buffer_store_dwordx2', v(XR + 2, 2), vXO, srdO, sXO, 32))

def reduce_kernel():
    p = Prog(); E = p.emit
    E(salu('s_cmp_ge_u32', None, s(2), 576)); E(raw("s_cbranch_scc0 L_rgo")); E(raw("s_endpgm")); E(label("L_rgo"))
    E(raw("s_load_dwordx2 s[4:5], s[0:1], 0", wr=[s(4, 2)])); E(raw("s_load_dwordx2 s[6:7], s[0:1], 64", wr=[s(6, 2)])); E(raw("s_load_dwordx2 s[8:9], s[0:1], 80", wr=[s(8, 2)]))
    E(valu('v_lshrrev_b32', v(1), 6, v(0))); E(valu('v_readfirstlane_b32', s(10), v(1)))
    E(shl(s(11), s(2), 2)); E(add(s(11), s(11), s(10)))
    E(salu('s_mul_hi_u32', s(24), s(11), -(-(1 << 32) // 36), scc_w=False))
    E(mul(s(25), s(24), 36)); E(salu('s_sub_u32', s(25), s(11), s(25)))
    E(shl(s(26), s(11), 10))
    E(valu('v_and_b32', v(0), 63, v(0))); E(valu('v_lshlrev_b32', v(1), 4, v(0)))
    E(valu('v_and_b32', v(2), 15, v(0))); E(smov(s(27), 1152)); E(valu('v_mul_u32_u24', v(2), s(27), v(2)))
    E(valu('v_lshrrev_b32', v(3), 4, v(0))); E(valu('v_lshl_add_u32', v(2), v(3), 3, v(2)))
    E(mul(s(28), s(24), 32 * 1152)); E(salu('s_and_b32', s(29), s(25), 1)); E(mul(s(29), s(29), 16 * 1152)); E(add(s(28), s(28), s(29)))
    E(shr(s(25), s(25), 1)); E(shl(s(25), s(25), 6)); E(add(s(28), s(28), s(25)))
    E(raw("s_waitcnt lgkmcnt(0)"))
    srd(p, s(12, 4), 8, WSP_BYTES); srd(p, s(16, 4), 4, 2359296); srd(p, s(20, 4), 6, 2359296)
    reduce_body(p, s(26), s(28), s(12, 4), s(16, 4), s(20, 4), v(1), v(2), 4, CFG.get('rflags', ''))
    E(raw("s_endpgm"))
    return p

def text(ins): return "\n".join((i.txt if i.kind == 'label' else " " + i.txt) for i in ins) + "\n"

def compress(t):
    t = re.sub(r" v_mfma_f32_16x16x32_bf16 v\[(\d+):\d+\], a\[(\d+):\d+\], v\[(\d+):\d+\], v\[\1:\d+\]", r" MV \1,\2,\3", t)
    t = re.sub(r" v_mfma_f32_16x16x32_bf16 v\[(\d+):\d+\], a\[(\d+):\d+\], a\[(\d+):\d+\], v\[\1:\d+\]", r" MA \1,\2,\3", t)
    t = re.sub(r" v_mfma_f32_32x32x16_bf16 v\[(\d+):\d+\], a\[(\d+):\d+\], v\[(\d+):\d+\], v\[\1:\d+\]", r" NV \1,\2,\3", t)
    t = re.sub(r" v_mfma_f32_32x32x16_bf16 v\[(\d+):\d+\], a\[(\d+):\d+\], a\[(\d+):\d+\], v\[\1:\d+\]", r" NA \1,\2,\3", t)
    t = re.sub(r" v_mfma_f32_16x16x32_bf16 a\[(\d+):\d+\], a\[(\d+):\d+\], v\[(\d+):\d+\], a\[\1:\d+\]", r" MC \1,\2,\3", t)
    t = re.sub(r" ds_read_b64_tr_b16 a\[(\d+):\d+\], v(\d+) offset:(\d+)", r" RT \1,\2,\3", t)
    t = re.sub(r" ds_read_b128 a\[(\d+):\d+\], v(\d+) offset:(\d+)", r" RB \1,\2,\3", t)
    t = re.sub(r" v_cvt_pk_bf16_f32 v(\d+), v(\d+), v(\d+)", r" CV \1,\2,\3", t)
    t = re.sub(r" v_accvgpr_write_b32 a(\d+), v(\d+)", r" AW \1,\2", t)
    t = re.sub(r" v_exp_f32 v(\d+), v(\d+)", r" EX \1,\2", t)
    t = re.sub(r" v_add_f32 v(\d+), v(\d+), v(\d+)", r" AD \1,\2,\3", t)
    t = re.sub(r" v_mul_f32 v(\d+), v(\d+), v(\d+)", r" ML \1,\2,\3", t)
    t = re.sub(r" s_waitcnt lgkmcnt\((\d+)\)", r" WL \1", t)
    mac = r""".macro MC d,a,b
 v_mfma_f32_16x16x32_bf16 a[\d:\d+3], a[\a:\a+3], v[\b:\b+3], a[\d:\d+3]
.endm
.macro NV d,a,b
 v_mfma_f32_32x32x16_bf16 v[\d:\d+15], a[\a:\a+3], v[\b:\b+3], v[\d:\d+15]
.endm
.macro NA d,a,b
 v_mfma_f32_32x32x16_bf16 v[\d:\d+15], a[\a:\a+3], a[\b:\b+3], v[\d:\d+15]
.endm
.macro MV d,a,b
 v_mfma_f32_16x16x32_bf16 v[\d:\d+3], a[\a:\a+3], v[\b:\b+3], v[\d:\d+3]
.endm
.macro MA d,a,b
 v_mfma_f32_16x16x32_bf16 v[\d:\d+3], a[\a:\a+3], a[\b:\b+3], v[\d:\d+3]
.endm
.macro RT d,a,o
 ds_read_b64_tr_b16 a[\d:\d+1], v\a offset:\o
.endm
.macro RB d,a,o
 ds_read_b128 a[\d:\d+3], v\a offset:\o
.endm
.macro CV d,a,b
 v_cvt_pk_bf16_f32 v\d, v\a, v\b
.endm
.macro AW d,a
 v_accvgpr_write_b32 a\d, v\a
.endm
.macro EX d,a
 v_exp_f32 v\d, v\a
.endm
.macro AD d,a,b
 v_add_f32 v\d, v\a, v\b
.endm
.macro ML d,a,b
 v_mul_f32 v\d, v\a, v\b
.endm
.macro WL n
 s_waitcnt lgkmcnt(\n)
.endm
"""
    return mac, t

HDR = open('recurrent_scan__sliding_block_cached__dense_activation_silu__prompt.s.ref').read().split('; Override launch')[0]
DOC = """; Generated by my own scheduler scripts (hand-designed instruction streams, hazards padded by the script).
; registers as MFMA B operands (transposed formulation), weights / K / V stream through a 4-slot LDS ring (LDS-DMA).
;   role A (10): layernorm, Q projection, attention for 3 heads (one GQA pair shares K/V fragments), partial of o@wo
; The bf16 partials go to d_ws with write-through stores; progress words (reset per launch, guarded by a counter in
"""
def kd(name, vgpr, acc, sgpr=102):
    return f""".amdhsa_kernel {name}
  .amdhsa_next_free_vgpr {vgpr}
  .amdhsa_next_free_sgpr {sgpr}
  .amdhsa_accum_offset {acc}
  .amdhsa_group_segment_fixed_size 0
  .amdhsa_kernarg_size 88
  .amdhsa_user_sgpr_count 2
  .amdhsa_user_sgpr_kernarg_segment_ptr 1
  .amdhsa_system_sgpr_workgroup_id_x 1
.end_amdhsa_kernel
"""
def est_cycles(ins):
    tot = 0; cur = None; n = 0
    for i in ins:
        if i.kind == 'label': continue
        if i.kind == 'mfma':
            if cur is not None: tot += max(cap, cur)
            cur = 2; n += 1; cap = 8 if len(i.wr) == 16 else 4
        elif cur is not None:
            if i.txt.startswith('s_waitcnt lgkm') and cap == 4: continue
            cur += i.units if not i.txt.startswith('s_nop') else (int(i.txt.split()[1]) + 1) * 0.5
    return tot * 4

def main(out, **kw):
    CFG.update(kw)
    set_layout(CFG.get('l844'))
    if CFG.get('tab'):
        global ROLE_TAB
        ROLE_TAB = CFG['tab']
    CFG['shape0'] = CFG['shape']
    cp = common_prologue()
    if CFG.get('entry', 0):
        if CFG.get('entry', 1) == 1:
            k = next(i for i, x in enumerate(cp.ins) if x.txt == 's_waitcnt lgkmcnt(0)')
            tail = cp.ins[k:]; vmx = list(cp.vm); cp.ins = cp.ins[:k]; cp.vm = []
            common_prologue2(cp); cp.ins += tail; cp.vm += vmx
        else: common_prologue2(cp)
        common_prologue3(cp)
    body = text(cp.ins) + dispatch_text()
    for kind in 'FAM':
        R = build_role(kind, cp.vm)
        ins = fold_regions(fold(R.p.ins, kind), kind) if CFG['fold'] else R.p.ins
        nm = sum(1 for i in R.p.ins if i.kind == 'mfma')
        print(f"role {kind}: stages {len(R.stages)} mfma {nm} instrs {len([i for i in ins if i.kind!='label'])} (unrolled {len([i for i in R.p.ins if i.kind!='label'])}) pad {R.p.npad} forced {R.forced} est {est_cycles(R.p.ins)} ideal {sum(32 if len(i.wr) == 16 else 16 for i in R.p.ins if i.kind == 'mfma')}", file=sys.stderr)
        if CFG.get('abl_pair') and kind in 'AM':
            out_ = []; on = False
            for x in ins:
                if x.kind == 'label' and x.txt.startswith('; PAh'): on = x.txt.startswith('; PAh1')
                if x.kind == 'label' and x.txt.startswith('; P2'): on = False
                if on and (x.kind in ('dma', 'ds') or (x.kind == 'salu' and ('m0' in x.txt or 's70' in x.txt))): continue
                out_.append(x)
            ins = out_
        ab = CFG.get('ablate', '')
        if ab:
            st0 = next(i for i, x in enumerate(ins) if x.txt.startswith('; P1u1b0'))
            def keep(x):
                if 'd' in ab and x.kind == 'dma': return False
                if 'r' in ab and x.kind == 'ds': return False
                if 'v' in ab and x.kind in ('trans',): return False
                if 'V' in ab and x.kind in ('trans', 'valu', 'perm') and not x.txt.startswith(('v_add_u32', 'v_xor', 'v_writelane', 'v_cmp', 'v_cnd', 'v_mov', 'v_lsh', 'v_mad', 'v_min', 'v_and', 'v_bfe', 'v_mul_u32')): return False
                if 'm' in ab and x.kind == 'mfma': return False
                return True
            ins = ins[:st0] + [x for x in ins[st0:] if keep(x)]
        for sp in R.slow: ins = ins + sp.ins
        if CFG['fused']: ins = ins + reducer(kind).ins
        body += f".p2align 6\nL_role{kind}:\n" + text(ins) + f"L_role{kind}_end:\n"
    rk = reduce_kernel()
    mac, body = compress(body)
    if CFG['fused']:
        t = HDR + "; @launch grid=(256,1,1) block=(256,1,1) lds=163840\n" + DOC
        t += '.amdgcn_target "amdgcn-amd-amdhsa--gfx950"\n' + mac + f".text\n.globl {KN}\n.p2align 8\n.type {KN},@function\n{KN}:\n" + body
        t += '.section .rodata,"a"\n.p2align 6\n' + kd(KN, 512, 256)
        open(out, 'w').write(t); print("size", len(t), file=sys.stderr); return
    t = HDR + f"; @launch kernel={KN} grid=(256,1,1) block=(256,1,1) lds=163840\n; @launch kernel={RN} grid=(576,1,1) block=(256,1,1) lds=0\n"
    t += '.amdgcn_target "amdgcn-amd-amdhsa--gfx950"\n' + mac + f".text\n.globl {KN}\n.p2align 8\n.type {KN},@function\n{KN}:\n" + body
    t += f".globl {RN}\n.p2align 8\n.type {RN},@function\n{RN}:\n" + text(rk.ins)
    t += '.section .rodata,"a"\n.p2align 6\n' + kd(KN, 512, 256) + ".p2align 6\n" + kd(RN, 104, 104, 102)
    open(out, 'w').write(t)
    print("size", len(t), file=sys.stderr)

if __name__ == "__main__":
    kw = eval("dict(" + (sys.argv[2] if len(sys.argv) > 2 else "") + ")")
    main(sys.argv[1], **kw)
```

```python
import sys, math, struct
from core import *

KN = "recurrent_scan__sliding_block_cached__dense_activation_silu__prompt_kernel"
RN = "reduce_kernel"
PP = 1088
SLOT = 36 * PP
XW = 36864
PWAVE = 36864
LOG2E = 1.4426950408889634
def f2u(f): return struct.unpack('<I', struct.pack('<f', f))[0]
CFG = dict(depth=8, wevery=4, dmastep=3, store_flags='sc1', fold=True, stamps=False, pf=2, xe=6, fused=False, shape='M')

sX, sK, sV, sWQ, sWO, sW1, sW2, sWS = [s(8 + 4 * i, 4) for i in range(8)]
sPFa, sPFb, sPFc = s(40), s(41), s(42)
sPF1, sPF1h, sPF2, sPF2h = s(44), s(45), s(46), s(47)
sOUT = s(48, 4); sDBG = s(52, 4)
sWAVE, sROLE, sRB = s(62), s(63), s(64)
sW8704, sWC, sW8192, sWCH, sW2176, sW4352, sWA2 = s(65), s(66), s(67), s(68), s(69), s(60), s(61)
sT = s(70)
sQA, sQC, sHA, sHC, sHH, sHHC = s(71), s(72), s(73), s(74), s(75), s(76)
sKb = [s(77), s(78), s(79)]; sVb = [s(80), s(81), s(82)]
sOA, sOB = s(83), s(58)
sFA, sFC, sFS = s(84), s(85), s(86)
sRd, sPrev, sWr = s(87), s(88), s(89)
sSt, sLC, sT2, sT3 = s(90), s(91), s(92), s(93)
sSt2 = s(5)
sPW = s(3)
sPC = s(94, 2)
sRET = s(56, 2)
sWrW = s(59)
sRdN = s(4)
sLN0 = s(96)
sSTAMP = s(98, 2); sT0 = s(100, 2)
s_ = s

vLANE16 = v(0)
vROWN, vROWP, vSWZ = v(1), v(41), v(2)
vOFFW = [v(3), v(4), v(5), v(6)]
vOFFH, vOFFK = v(7), v(8)
vRW = [[v(9), v(10)], [v(11), v(12)], [v(13), v(14)]]
vRH = [v(15), v(37)]
TMP0 = 16
vRK = [v(32), v(33), v(34)]
vTID, vPF, vPF2 = v(38), v(39), v(40)
vSTAMP = v(43)
vDP, vD0, vD1 = v(44), v(45), v(46)
vDK = v(35)
vCT = v(42)
vDK1 = v(34)
vSWZM = v(37)
vRKM = [v(32), v(33)]
vDUM = v(47)
ACC = [v(48, 32), v(80, 32)]
XB = 112
def X(t, g): return v(XB + 8 * t + 4 * g, 4)
def XM(t): return v(XB + 4 * t, 4)
Sreg = [v(112, 16), v(128, 16)]
Preg = [v(144, 8), v(152, 8)]
Oset = [v(160, 64), v(48, 64)]
Lacc = [v(230, 4), v(234, 4)]
Lsave = v(224, 6)
LM = [v(230, 8), v(16, 8)]
vONES = v(24, 4)
FT0 = 238
P2ACC = v(112, 32)
P2PK = [v(144, 8), v(152, 8)]

def f_fullcol(i): return 64 * 13 * i if i < 5 else 64 * 65
def f_halfcol(i): return 64 * 69 + 32 * i

def phantom(u=1): return I('; phantom', 'label', units=u)

class MF:
    __slots__ = ('m', 'reads', 'after', 'need', 'pre', 'extra')
    def __init__(s, m, reads, after=None, need=None):
        s.m, s.reads, s.after, s.need = m, reads, after, need or []; s.pre = None; s.extra = None
class Stage:
    def __init__(s, name, mf, dma, dyn=False, mark=None, pre_dma=None):
        s.name, s.mf, s.dma, s.dyn, s.mark, s.pre_dma = name, mf, dma, dyn, mark, pre_dma
        s.ring = None; s.half = False; s.post_bar = None; s.pa = False
class VQ:
    __slots__ = ('i', 'ready', 'dl', 'key')
    def __init__(s, i, ready, dl=None, key=None): s.i, s.ready, s.dl, s.key = i, ready, dl, key

def pair(acc, T, Bs, first, flip):
    gs = (1, 0) if flip else (0, 1)
    return [(acc.sub(8 * T + 4 * g, 4), Bs[g], 0 if first else acc.sub(8 * T + 4 * g, 4)) for g in gs]

def rd_w(T, kk, blockoff=0):
    def f(fr, st, k):
        out = []
        for e in range(2):
            off = blockoff + kk * 4 * PP + (T >> 1) * 64 + e * 512
            if st.dyn: reg, imm = (vD0, vD1)[T & 1], off
            else:
                ad = (k % 4) * SLOT + off
                reg, imm = vRW[ad >> 16][T & 1], ad & 0xffff
            out.append(ds_tr(fr.sub(2 * e, 2), reg, imm))
        return out
    return f
def rd_h(T, kk):
    def f(fr, st, k): return [ds_tr(fr.sub(2 * e, 2), vRH[T], kk * 2048 + e * 256) for e in range(2)]
    return f
KT = 8 * PP; VOFF = 2 * KT
def rd_k(pos, T, t):
    def f(fr, st, k):
        off = pos * KT + T * 4 * PP + t * 64
        if st.dyn: return [ds_b128(fr, vDK, off)]
        ad = (k % 4) * SLOT + off
        return [ds_b128(fr, vRK[ad >> 16], ad & 0xffff)]
    return f

def rd_wM(T, kk, blockoff=0):
    def f(fr, st, k):
        out = []
        for e in range(2):
            off = blockoff + kk * 2 * PP + e * 512
            if st.dyn: reg, imm = (vD0, vD1)[T], off
            else:
                ad = (k % 4) * SLOT + off
                reg, imm = vRW[ad >> 16][T], ad & 0xffff
            out.append(ds_tr(fr.sub(2 * e, 2), reg, imm))
        return out
    return f
def rd_hM(t):
    def f(fr, st, k): return [ds_tr(fr.sub(2 * e, 2), vRH[0], t * 1024 + e * 256) for e in range(2)]
    return f
def rd_kM(pos, t):
    def f(fr, st, k):
        assert st.dyn
        return [ds_b128(fr, (vDK, vDK1)[t & 1], pos * KT + (t >> 1) * 64)]
    return f

def m0_set(dyn, slot, wreg, extra):
    if dyn:
        assert extra == 0
        return salu('s_add_u32', 'm0', sWr, wreg)
    return salu('s_add_u32', 'm0', wreg, slot * SLOT + extra)
def dma_w(srd, sA, litA, pitch, sC=None, litC=None, srdC=None):
    def f(k, dyn):
        slot = k % 4; items = []
        for j in range(8):
            it = []
            if j % 4 == 0:
                it.append(m0_set(dyn, slot, sW8704, 0) if j == 0 else salu('s_add_u32', 'm0', 'm0', 4 * PP))
                it.append(salu('s_add_u32', sT, sA, litA + (j // 4) * 32 * pitch))
            it.append(dma(vOFFW[j % 4], srd, sT, (j % 4) * PP, tag=k))
            items.append(it)
        if sC is not None:
            items.append([m0_set(dyn, slot, sWC, 0), salu('s_add_u32', sT, sC, litC), dma(vOFFW[0], srdC or srd, sT, 0, tag=k)])
        return items
    return f
def dma_w192(srd, lit, sOA=sOA, sOB=sOB):
    def f(k, dyn):
        slot = k % 4; items = []
        for j in range(4):
            it = []
            if j == 0: it += [m0_set(dyn, slot, sW4352, 0), salu('s_add_u32', sT, sOA, lit)]
            it.append(dma(vOFFW[j], srd, sT, j * PP, tag=k)); items.append(it)
        for j in range(2):
            it = []
            if j == 0: it += [m0_set(dyn, slot, sWA2, 0), salu('s_add_u32', sT, sOB, lit)]
            it.append(dma(vOFFW[j], srd, sT, j * PP, tag=k)); items.append(it)
        return items
    return f
def dma_half(srd, pitch):
    def f(k, dyn):
        slot = k % 4; items = []
        for j in range(8):
            it = []
            if j % 4 == 0:
                it.append(m0_set(False, slot, sW8192, 0) if j == 0 else salu('s_add_u32', 'm0', 'm0', 4096))
            it.append(salu('s_add_u32', sT, sHH, j * 16 * pitch - (j % 4) * 1024))
            it.append(dma(vOFFH, srd, sT, (j % 4) * 1024, tag=k))
            items.append(it)
        items.append([m0_set(False, slot, sWCH, 0), dma(vOFFH, srd, sHHC, 0, tag=k)])
        return items
    return f
def dma_pa(ktiles, vpair):
    def f(k, dyn):
        slot = k % 4; items = []
        def m0(extra):
            if dyn: return salu('s_add_u32', 'm0', sWrW, extra)
            return salu('s_add_u32', 'm0', sW2176, slot * SLOT + extra)
        for (pos, sr_, lit) in ktiles:
            items.append([m0(pos * KT), salu('s_add_u32', sT, sr_, lit), dma(vOFFK, sK, sT, 0, tag=k)])
            items.append([salu('s_add_u32', 'm0', 'm0', 64), dma(vOFFK, sK, sT, 1024, tag=k)])
        if vpair is not None:
            sr_, lit = vpair
            for b in range(2):
                items.append([m0(VOFF + b * KT), salu('s_add_u32', sT, sr_, lit + b * 128), dma(vOFFW[0], sV, sT, 0, tag=k)])
                items.append([dma(vOFFW[1], sV, sT, PP, tag=k)])
        return items
    return f
def set_offw(pitch, mode):
    if mode is True: mode = 'pi'
    if mode is False: mode = 'S'
    swz = vSWZM if mode == 'M' else vSWZ
    out = [smov(sT2, pitch), valu('v_mad_u32_u24', vOFFW[0], vROWP if mode == 'pi' else vROWN, sT2, swz)]
    if mode == 'q16':
        for j, r in ((1, 16), (2, 8), (3, 24)): out.append(valu('v_add_u32', vOFFW[j], r * pitch - j * PP, vOFFW[0]))
        return out
    step = (4 if mode == 'pi' else 8) * pitch - PP
    if step < 0:
        out += [valu('v_mov_b32', vOFFW[1], vOFFW[0]), valu('v_add_u32', vOFFW[0], -step, vOFFW[0])]
    else:
        for j in range(1, 4): out.append(valu('v_add_u32', vOFFW[j], step, vOFFW[j - 1]))
    return out

class Role:
    def __init__(s, kind):
        s.kind = kind; s.p = Prog(); s.stages = []; s.stn = 0; s.q = []; s.q2 = []; s.q3 = []; s.low = False; s.tmpi = 0; s.pf = {}; s.regions = {}; s.phantoms = {}
    def tmp(s, n=1):
        r = v(TMP0 + s.tmpi, n); s.tmpi = (s.tmpi + n) % getattr(s, 'ntmp', 16)
        return r
    def push(s, items, G, dl, key=None, lag=1):
        q = s.q3 if s.low else s.q
        for i in items: q.append(VQ(i, G + lag, dl))
        if key: q[-1].key = key
    def push_accw(s, acc, dst, G, dl, tail):
        it = [valu('v_accvgpr_write_b32', dst[4 * g + 2 * T + k], acc[8 * T + 4 * g + 2 * k]) for g in range(2) for T in range(2) for k in range(2)]
        if tail is None: s.push(it, G, dl, ('reg', dst.n))
        else:
            for i in it: s.q2.append(VQ(i, tail, dl))
            s.q2[-1].key = ('reg', dst.n)
    def epi_silu(s, acc, dst, G, dl, tail=None):
        items = []
        for g in range(2):
            for T in range(2):
                t = s.tmp(4); el = [(t[e], acc[8 * T + 4 * g + e]) for e in range(4)]
                for (tt, x) in el: items.append(valu('v_exp_f32', tt, x))
                for (tt, x) in el: items.append(valu('v_add_f32', tt, 1.0, tt))
                for (tt, x) in el: items.append(valu('v_rcp_f32', tt, tt))
                for (tt, x) in el: items.append(valu('v_mul_f32', tt, x, tt))
                for k in range(2): items.append(valu('v_cvt_pk_bf16_f32', acc[8 * T + 4 * g + 2 * k], t[2 * k], t[2 * k + 1]))
        s.push(items, G, ('tail', tail) if tail is not None else dl)
        s.push_accw(acc, dst, G, dl, tail)
    def epi_q(s, acc, dst, G, dl, tail=None):
        items = []
        for g in range(2):
            r = lambda T, e: acc[8 * T + 4 * g + e]
            for T in range(2):
                for e in range(4): items.append(valu('v_mul_f32', r(T, e), sLN0, r(T, e)))
            for T in range(2):
                for k in range(2): items.append(valu('v_cvt_pk_bf16_f32', r(T, 2 * k), r(T, 2 * k), r(T, 2 * k + 1)))
            for k in range(2): items.append(valu('v_permlane32_swap_b32', r(0, 2 * k), r(1, 2 * k), rmw=True, extra_wr=[r(1, 2 * k)]))
            for k in range(2): items.append(valu('v_permlane16_swap_b32', r(0, 2 * k), r(1, 2 * k), rmw=True, extra_wr=[r(1, 2 * k)]))
        s.push(items, G, ('tail', tail) if tail is not None else dl)
        s.push_accw(acc, dst, G, dl, tail)

    def add_p1_unit(s, uidx, srd, sA, sC, pitch, first, dst, epi, pre=None, last=False, key='P1', inreg=None, step=128):
        acc = ACC[uidx % 2]; TL = CFG.get('tail', 8)
        g0 = sum(len(st.mf) for st in s.stages)
        for b in range(2):
            mf = []
            order = [(kk, T) for kk in range(9) for T in range(4)]
            if b == 1:
                order = [(kk, T) for kk in range(9) for T in range(2)] + [(kk, T) for kk in range(9) for T in range(2, 4)]
            for (kk, T) in order:
                t = 9 * b + kk
                m = MF(pair(acc, T, [X(t, 0), X(t, 1)], t == 0, T & 1), rd_w(T, kk))
                if t == 0 and T % 2 == 0: m.need = [('acc', acc.n + 8 * T)]
                if t == 17 and T % 2 == 1:
                    h = T // 2
                    tail = None if last else g0 + 144 - TL
                    m.after = (lambda G, h=h, tail=tail: epi(acc.sub(16 * h, 16), dst.sub(8 * h, 8), G, ('acc', acc.n + 16 * h), tail))
                mf.append(m)
            def pre_(b=b):
                out = []
                if b == 0:
                    if pre: out += pre()
                    if not first: out += [salu('s_add_u32', sA, sA, step), salu('s_add_u32', sC, sC, step)]
                return out
            st = Stage(f"P1u{uidx}b{b}", mf, dma_w(srd, sA, b * 288 * pitch, pitch, sC, b * 288 * pitch), pre_dma=pre_ if (b == 0 and (pre or not first)) else None)
            s.stages.append(st)
        s.regions[g0] = ('begin', f"{key}{uidx % 2}")
        s.regions[g0 + 72 - TL] = ('end', None)
        s.stages[-1].mf[36 - TL].need.append(('tail', g0 + 72 - TL))
        if uidx == 0: s.phantoms[g0 + 72 - TL] = 16
        for j_, f_ in enumerate(inreg or []):
            if f_: s.pf.setdefault(len(s.stages) - 1 - j_, []).append(f_)
    def add_p1_half(s, uidx, dst):
        acc = ACC[uidx % 2]; mf = []
        for t in range(18):
            for T in range(2):
                m = MF(pair(acc, T, [X(t, 0), X(t, 1)], t == 0, T & 1), rd_h(T, t))
                if t == 0 and T == 0: m.need = [('acc', acc.n)]
                if t == 17 and T == 1: m.after = (lambda G: s.epi_silu(acc.sub(0, 16), dst, G, ('acc', acc.n)))
                mf.append(m)
        st = Stage("P1half", mf, dma_half(sW1, 9216)); st.half = True
        s.stages.append(st)

    def softmax_items(s, j, hd, G):
        S = Sreg[j % 2]; P = Preg[j % 2]; L = Lacc[hd % 2]
        A = []; Bq = []
        for g in range(2):
            for T in range(2):
                idx = [8 * T + 4 * g + e for e in range(4)]
                for i in idx: A.append(valu('v_exp_f32', S[i], S[i]))
                for k in range(2): A.append(valu('v_cvt_pk_bf16_f32', P[4 * g + 2 * T + k], S[idx[2 * k]], S[idx[2 * k + 1]]))
                adds = []
                for e, i in enumerate(idx if not CFG.get('msum') else []):
                    l = L[2 * g + (e & 1)]
                    if j == 0 and T == 0 and e < 2: adds.append(valu('v_mov_b32', l, S[i]))
                    else: adds.append(valu('v_add_f32', l, l, S[i]))
                if g == 1 and T == 1: Bq = adds
                else: A += adds
        s.push(A, G, ('P', hd, j))
        if Bq: s.push(Bq, G, ('S', hd, j))
    def finalize_items(s, hd, dst, G, dl):
        O = Oset[hd % 2]; L = Lacc[hd % 2]
        it = []
        inv = [v(FT0), v(FT0 + 1)]; t = [v(FT0 + 2), v(FT0 + 3)]
        if CFG.get('msum'):
            for g in range(2): it.append(valu('v_mov_b32', inv[g], LM[hd % 2][4 * g]))
        else:
            for g in range(2): it.append(valu('v_add_f32', inv[g], L[2 * g], L[2 * g + 1]))
        for op in (('v_permlane16_swap_b32', 'v_permlane32_swap_b32') if not CFG.get('msum') else ()):
            for g in range(2): it.append(valu('v_mov_b32', t[g], inv[g]))
            for g in range(2): it.append(valu(op, inv[g], t[g], rmw=True, extra_wr=[t[g]]))
            for g in range(2): it.append(valu('v_add_f32', inv[g], inv[g], t[g]))
        for g in range(2): it.append(valu('v_mov_b32', Lsave[2 * hd + g], inv[g]))
        for g in range(2): it.append(valu('v_rcp_f32', inv[g], inv[g]))
        k = 0
        for kk in range(4):
            for g in range(2):
                for T in range(2):
                    tt = v(FT0 + 4 + 4 * (k % 3), 4); k += 1
                    for e in range(4): it.append(valu('v_mul_f32', tt[e], O[8 * (2 * kk + T) + 4 * g + e], inv[g]))
                    for c in range(2): it.append(valu('v_cvt_pk_bf16_f32', tt[2 * c], tt[2 * c], tt[2 * c + 1]))
                    for c in range(2): it.append(valu('v_accvgpr_write_b32', dst[8 * kk + 4 * g + 2 * T + c], tt[2 * c]))
        s.push(it, G, dl)
    def qk(s, hd, j, Q, pos):
        mf = []; S = Sreg[j % 2]
        for t in range(4):
            for T in range(2):
                m = MF(pair(S, T, [Q.sub(8 * t, 4), Q.sub(8 * t + 4, 4)], t == 0, T & 1), rd_k(pos, T, t))
                if t == 0 and T == 0:
                    m.need = [('S', hd, j - 2) if j >= 2 else ('S', hd - 1, 14 + j)]
                    if j == 0: m.need += [('reg', Q.n + 8 * i) for i in range(4)]
                if t == 3 and T == 1: m.after = (lambda G, j=j, hd=hd: s.softmax_items(j, hd, G))
                mf.append(m)
        return mf
    def pv(s, hd, j, kk, Odst):
        mf = []; O = Oset[hd % 2]; P = Preg[j % 2]
        for tau in range(8):
            m = MF(pair(O, tau, [P.sub(0, 4), P.sub(4, 4)], j == 0, tau & 1), rd_w(tau % 4, kk, VOFF + (tau // 4) * KT))
            if tau == 0:
                m.need = [('P', hd, j)]
                if j == 0 and hd >= 1: m.need += [('fin', hd - 2)] + [('acc', 48 + 16 * i) for i in range(4)]
            if j == 15 and tau == 7: m.after = (lambda G, hd=hd: s.finalize_items(hd, Odst, G, ('fin', hd)))
            if CFG.get('msum') and tau in (2, 5):
                g_ = 0 if tau == 2 else 1
                Lm = LM[hd % 2].sub(4 * g_, 4)
                m.extra = mfma(Lm, vONES, P.sub(4 * g_, 4), 0 if j == 0 else Lm)
            mf.append(m)
        return mf
    def add_pa(s, Qs, Os):
        nh = len(Qs); dyn = CFG.get('pa_dyn', True)
        Msh = CFG['shape'] == 'M'
        qk, pv = (s.qkM, s.pvM) if Msh else (s.qk, s.pv)
        s.stages.append(Stage("PAmini", qk(0, 0, Qs[0], 0), dma_pa([(0, sKb[0], 0)], None), dyn=dyn, pre_dma=lambda: set_offw(256, 'M' if Msh else 'pi')))
        for hd in range(nh):
            for st in range(8):
                mf = qk(hd, 2 * st + 1, Qs[hd], 0) + pv(hd, 2 * st, 0, Os[hd])
                kt = [(0, sKb[hd], 8192)]
                if st < 7:
                    mf += qk(hd, 2 * st + 2, Qs[hd], 1); kt.append((1, sKb[hd], 16384))
                elif hd + 1 < nh:
                    mf += qk(hd + 1, 0, Qs[hd + 1], 1); kt.append((1, sKb[hd + 1], 0))
                mf += pv(hd, 2 * st + 1, 1, Os[hd])
                pre = None
                if st > 0: pre = (lambda hd=hd: [salu('s_add_u32', sKb[hd], sKb[hd], 16384), salu('s_add_u32', sVb[hd], sVb[hd], 16384)])
                x = Stage(f"PAh{hd}s{st}", mf, dma_pa(kt, (sVb[hd], 0)), dyn=dyn, mark=dyn, pre_dma=pre)
                x.pa = True
                s.stages.append(x)
        s.stages[-8 * nh - 1].pa = True
    def softmax_h(s, j, H, G):
        S = H['S'][j % 2]; P = H['P'][j % 2]; A = []
        for g in range(2):
            for T in range(2):
                idx = [8 * T + 4 * g + e for e in range(4)]
                for i in idx: A.append(valu('v_exp_f32', S[i], S[i]))
                for k in range(2): A.append(valu('v_cvt_pk_bf16_f32', P[4 * g + 2 * T + k], S[idx[2 * k]], S[idx[2 * k + 1]]))
        s.push(A, G, ('P', H['i'], j))
    def finalize_g(s, grp, G):
        s.low = bool(CFG.get('lowfin', 0))
        s.finalize_g2(grp, G)
        s.low = False
    def finalize_g2(s, grp, G):
        it = []; inv = {}
        for n, H in enumerate(grp):
            inv[H['i']] = [v(250 + 2 * n), v(251 + 2 * n)]
            for g in range(2): it.append(valu('v_mov_b32', Lsave[2 * H['i'] + g], H['LM'][4 * g]))
        for H in grp:
            for g in range(2): it.append(valu('v_rcp_f32', inv[H['i']][g], Lsave[2 * H['i'] + g]))
        s.push(it, G, ('lm', grp[0]['i']))
        for H in grp:
            it = []; O = H['O']; k = 0
            for kk in range(4):
                dst = H['OF'](kk)
                if O.k == 'a':
                    tt = v(230, 16)
                    for e in range(16): it.append(valu('v_accvgpr_read_b32', tt[e], O[16 * kk + e]))
                    for e in range(16): it.append(valu('v_mul_f32', tt[e], tt[e], inv[H['i']][(e >> 2) & 1]))
                    for e in range(0, 16, 2): it.append(valu('v_cvt_pk_bf16_f32', tt[e], tt[e], tt[e + 1]))
                    for g in range(2):
                        for T in range(2):
                            for c in range(2): it.append(valu('v_accvgpr_write_b32', dst[4 * g + 2 * T + c], tt[8 * T + 4 * g + 2 * c]))
                else:
                    for g in range(2):
                        for T in range(2):
                            tt = v(230 + 4 * (k % 4), 4); k += 1
                            for e in range(4): it.append(valu('v_mul_f32', tt[e], O[8 * (2 * kk + T) + 4 * g + e], inv[H['i']][g]))
                            for c in range(2): it.append(valu('v_cvt_pk_bf16_f32', tt[2 * c], tt[2 * c], tt[2 * c + 1]))
                            for c in range(2): it.append(valu('v_accvgpr_write_b32', dst[4 * g + 2 * T + c], tt[2 * c]))
            s.push(it, G, ('fin', H['i']))
    def qk_g(s, grp, j, pos):
        mf = []
        for t in range(4):
            for T in range(2):
                m = []
                for n, H in enumerate(grp):
                    Q = H['Q']
                    m += pair(H['S'][j % 2], T, [Q.sub(8 * t, 4), Q.sub(8 * t + 4, 4)], t == 0, (T + n) & 1)
                m = MF(m, rd_k(pos, T, t))
                if t == 0 and T == 0:
                    if j == 0:
                        for H in grp: m.need += [('reg', H['Q'].n + 8 * i) for i in range(4)]
                    if j <= 1: m.need += grp[0].get('need_qk', [])
                if t == 3 and T == 1: m.after = (lambda G, j=j: [s.softmax_h(j, H, G) for H in grp])
                mf.append(m)
        return mf
    def pv_g(s, grp, j, kk):
        mf = []
        ex = {1: (0, 0), 3: (0, 1), 5: (1, 0), 7: (1, 1)} if len(grp) == 2 else {2: (0, 0), 5: (0, 1)}
        for tau in range(8):
            m = []
            for n, H in enumerate(grp):
                P = H['P'][j % 2]
                m += pair(H['O'], tau, [P.sub(0, 4), P.sub(4, 4)], j == 0, (tau + n) & 1)
            m = MF(m, rd_w(tau % 4, kk, VOFF + (tau // 4) * KT))
            if tau == 0:
                m.need = [('P', H['i'], j) for H in grp]
                if j == 0: m.need += grp[0].get('need_pv', [])
            if j == 15 and tau == 7: m.after = (lambda G: s.finalize_g(grp, G))
            if tau in ex:
                n, g_ = ex[tau]; H = grp[n]; Lm = H['LM'].sub(4 * g_, 4)
                m.extra = mfma(Lm, getattr(s, 'ones', vONES), H['P'][j % 2].sub(4 * g_, 4), 0 if j == 0 else Lm)
            mf.append(m)
        return mf
    def add_pa_g(s, groups):
        ng = len(groups)
        s.stages.append(Stage("PAmini", s.qk_g(groups[0], 0, 0), dma_pa([(0, sKb[0], 0)], None), dyn=True, pre_dma=lambda: set_offw(256, 'pi')))
        s.stages[-1].pa = True
        for gi, grp in enumerate(groups):
            for st in range(8):
                mf = s.qk_g(grp, 2 * st + 1, 0) + s.pv_g(grp, 2 * st, 0)
                kt = [(0, sKb[gi], 8192)]
                if st < 7:
                    mf += s.qk_g(grp, 2 * st + 2, 1); kt.append((1, sKb[gi], 16384))
                elif gi + 1 < ng:
                    mf += s.qk_g(groups[gi + 1], 0, 1); kt.append((1, sKb[gi + 1], 0))
                mf += s.pv_g(grp, 2 * st + 1, 1)
                pre = None
                if st > 0: pre = (lambda gi=gi: [salu('s_add_u32', sKb[gi], sKb[gi], 16384), salu('s_add_u32', sVb[gi], sVb[gi], 16384)])
                x = Stage(f"PAh{gi}s{st}", mf, dma_pa(kt, (sVb[gi], 0)), dyn=True, mark=True, pre_dma=pre)
                x.pa = True
                s.stages.append(x)

    def accwM(s, acc, dst, G, dl, tail):
        it = [valu('v_accvgpr_write_b32', dst[q], acc[2 * q]) for q in range(8)]
        if tail is None: s.push(it, G, dl, ('reg', dst.n), 2)
        else:
            for i in it: s.q2.append(VQ(i, tail, dl))
            s.q2[-1].key = ('reg', dst.n)
    def epi_siluM(s, acc, dst, G, dl, tail=None):
        items = []
        for j0 in (0, 4, 2, 6):
            t = s.tmp(4); el = [(t[e], acc[2 * j0 + e]) for e in range(4)]
            for (tt, x) in el: items.append(valu('v_exp_f32', tt, x))
            for (tt, x) in el: items.append(valu('v_add_f32', tt, 1.0, tt))
            for (tt, x) in el: items.append(valu('v_rcp_f32', tt, tt))
            for (tt, x) in el: items.append(valu('v_mul_f32', tt, x, tt))
            for k in range(2): items.append(valu('v_cvt_pk_bf16_f32', acc[2 * (j0 + k)], t[2 * k], t[2 * k + 1]))
            if j0 >= 4:
                sw = [valu('v_permlane16_swap_b32', acc[2 * (j0 - 4 + k)], acc[2 * (j0 + k)], rmw=True, extra_wr=[acc[2 * (j0 + k)]]) for k in range(2)]
                if j0 == 4: hold = sw
                else: items += hold + sw
        s.push(items, G, ('tail', tail) if tail is not None else dl, None, 2)
        s.accwM(acc, dst, G, dl, tail)
    def epi_qM(s, acc, dst, G, dl, tail=None):
        items = []
        for j0 in (0, 2, 4, 6):
            for e in range(4): items.append(valu('v_mul_f32', acc[2 * j0 + e], sLN0, acc[2 * j0 + e]))
            for k in range(2): items.append(valu('v_cvt_pk_bf16_f32', acc[2 * (j0 + k)], acc[2 * (j0 + k)], acc[2 * (j0 + k) + 1]))
        s.push(items, G, ('tail', tail) if tail is not None else dl, None, 2)
        s.accwM(acc, dst, G, dl, tail)
    def add_p1_unitM(s, uidx, srd, sA, sC, pitch, first, dst, epi, pre=None, last=False, key='P1', inreg=None):
        acc = ACC[uidx % 2]; TL = CFG.get('tail', 8)
        g0 = sum(len(st.mf) for st in s.stages)
        for b in range(2):
            mf = []
            for T in range(2):
                D = acc.sub(16 * T, 16)
                for kk in range(18):
                    t = 18 * b + kk
                    m = MF([(D, XM(t), 0 if t == 0 else D)], rd_wM(T, kk))
                    if t == 0: m.need = [('acc', D.n)]
                    if t == 35:
                        tail = None if last else g0 + 144 - TL
                        m.after = (lambda G, D=D, T=T, tail=tail: epi(D, dst.sub(8 * T, 8), G, ('acc', D.n), tail))
                    mf.append(m)
            def pre_(b=b):
                out = []
                if pre: out += pre()
                if not first: out += [salu('s_add_u32', sA, sA, 128), salu('s_add_u32', sC, sC, 128)]
                return out
            st = Stage(f"P1u{uidx}b{b}", mf, dma_w(srd, sA, b * 288 * pitch, pitch, sC, b * 288 * pitch), pre_dma=pre_ if (b == 0 and (pre or not first)) else None)
            s.stages.append(st)
        s.regions[g0] = ('begin', f"{key}{uidx % 2}")
        s.regions[g0 + 72 - TL] = ('end', None)
        s.stages[-1].mf[36 - TL].need.append(('tail', g0 + 72 - TL))
        if uidx == 0: s.phantoms[g0 + 72 - TL] = 16
        for j_, f_ in enumerate(inreg or []):
            if f_: s.pf.setdefault(len(s.stages) - 1 - j_, []).append(f_)
    def add_p1_halfM(s, uidx, dst):
        D = ACC[uidx % 2].sub(0, 16); mf = []
        for t in range(36):
            m = MF([(D, XM(t), 0 if t == 0 else D)], rd_hM(t))
            if t == 0: m.need = [('acc', D.n)]
            if t == 35: m.after = (lambda G: s.epi_siluM(D, dst, G, ('acc', D.n)))
            mf.append(m)
        st = Stage("P1half", mf, dma_half(sW1, 9216)); st.half = True
        s.stages.append(st)
    def softmaxM(s, j, hd, G):
        S = Sreg[j % 2]; P = Preg[j % 2]; L = Lacc[hd % 2]
        for u in range(2):
            items = []; adds = []
            for q0 in (0, 2):
                idx = [8 * u + 2 * q0 + e for e in range(4)]
                for i in idx: items.append(valu('v_exp_f32', S[i], S[i]))
                for k in range(2): items.append(valu('v_cvt_pk_bf16_f32', P[4 * u + q0 + k], S[idx[2 * k]], S[idx[2 * k + 1]]))
                a_ = [valu('v_mov_b32', L[e], S[i]) if (j == 0 and u == 0 and q0 == 0) else valu('v_add_f32', L[e], L[e], S[i]) for e, i in enumerate(idx)]
                if q0 == 0: items += a_
                else: adds = a_
            s.push(items, G, ('P', hd, j, u), None, 2); s.push(adds, G, ('S', hd, j), None, 2)
    def finalizeM(s, hd, dst, G, dl):
        O = Oset[hd % 2]; L = Lacc[hd % 2]
        t0, t1 = v(FT0), v(FT0 + 1)
        it = [valu('v_add_f32', L[0], L[0], L[1]), valu('v_add_f32', L[2], L[2], L[3]), valu('v_add_f32', t0, L[0], L[2]),
              valu('v_mov_b32', t1, t0), valu('v_permlane32_swap_b32', t0, t1, rmw=True, extra_wr=[t1]),
              valu('v_add_f32', Lsave[hd], t0, t1), valu('v_rcp_f32', t0, Lsave[hd])]
        for tau in range(4):
            A_ = O.sub(16 * tau, 16)
            for e in range(16): it.append(valu('v_mul_f32', A_[e], A_[e], t0))
            for q in range(8): it.append(valu('v_cvt_pk_bf16_f32', A_[2 * q], A_[2 * q], A_[2 * q + 1]))
            for q in range(4): it.append(valu('v_permlane16_swap_b32', A_[2 * q], A_[2 * q + 8], rmw=True, extra_wr=[A_[2 * q + 8]]))
            for q in range(8): it.append(valu('v_accvgpr_write_b32', dst[8 * tau + q], A_[2 * q]))
        s.push(it, G, dl, None, 2)
    def qkM(s, hd, j, Q, pos):
        mf = []; S = Sreg[j % 2]
        for t in range(8):
            m = MF([(S, Q.sub(4 * t, 4), 0 if t == 0 else S)], rd_kM(pos, t))
            if t == 0:
                m.need = [('S', hd, j - 2) if j >= 2 else ('S', hd - 1, 14 + j)]
                if j == 0: m.need += [('reg', Q.n + 8 * i) for i in range(4)]
            if t == 7: m.after = (lambda G, j=j, hd=hd: s.softmaxM(j, hd, G))
            mf.append(m)
        return mf
    def pvM(s, hd, j, kk, Odst):
        mf = []; O = Oset[hd % 2]; P = Preg[j % 2]
        for u in range(2):
            for tau in range(4):
                D = O.sub(16 * tau, 16)
                m = MF([(D, P.sub(4 * u, 4), 0 if (j == 0 and u == 0) else D)], rd_wM(tau % 2, 2 * kk + u, VOFF + (tau // 2) * KT))
                if tau == 0:
                    m.need = [('P', hd, j, u)]
                    if j == 0 and u == 0 and hd >= 1: m.need += [('fin', hd - 2)] + [('acc', 48 + 16 * i) for i in range(4)]
                if j == 15 and u == 1 and tau == 3: m.after = (lambda G, hd=hd: s.finalizeM(hd, Odst, G, ('fin', hd)))
                mf.append(m)
        return mf

    def p2_epi(s, h, G, sreg, c, lastg, ACC_=None, key='p2acc'):
        acc = (ACC_ or P2ACC).sub(16 * h, 16); pk = P2PK[h]; it = []
        for g in range(2):
            for T in range(2):
                for cc in range(2): it.append(valu('v_cvt_pk_bf16_f32', pk[4 * g + 2 * T + cc], acc[8 * T + 4 * g + 2 * cc], acc[8 * T + 4 * g + 2 * cc + 1]))
            st_ = bstore('buffer_store_dwordx4', pk.sub(4 * g, 4), vLANE16, sWS, sreg, h * 2048 + g * 1024, CFG['store_flags']); st_.tag = ('st', c)
            if not CFG.get('nostore'): it.append(st_)
        if h == 1: it.append(salu('s_add_u32', sreg, sreg, 4096))
        s.push(it, G, (key, h))
    def add_p2m(s, Hf, Bo, dmas, bump, pre0):
        s.nst_chunk = 8; AC2 = v(160, 32)
        def mk(ACC_, key, T, B8, t, nk, kk, c, sreg, need=()):
            m = MF(pair(ACC_, T, [B8.sub(0, 4), B8.sub(4, 4)], t == 0, T & 1), rd_w(T, kk))
            if t == 0 and T % 2 == 0: m.need.append((key, T // 2))
            m.need += list(need)
            if t == nk - 1 and T % 2 == 1: m.after = (lambda G, h=T // 2: s.p2_epi(h, G, sreg, c, None, ACC_, key))
            return m
        for c in range(9):
            mf = [mk(P2ACC, 'p2acc', T, Hf.sub(8 * t, 8), t, 10, t, c, sSt2, [('reg', 8 * t)] if (c == 0 and T == 0) else [])
                  for h in range(2) for t in range(9) for T in (2 * h, 2 * h + 1)]
            st = Stage(f"P2c{c}b0", mf, dmas[0], dyn=True, mark=True, pre_dma=pre0 if c == 0 else (lambda: list(bump)))
            st.chunk = c; st.sub = 0; s.stages.append(st)
            mf = [mk(P2ACC, 'p2acc', T, Hf.sub(72, 8), 9, 10, 8, c, sSt2, [('reg', 72)] if (c == 0 and T == 0) else []) for T in range(4)]
            mf += [mk(AC2, 'p2acc2', T, Bo[t], t, 8, t, c, sSt) for h in range(2) for t in range(8) for T in (2 * h, 2 * h + 1)]
            st = Stage(f"P2c{c}b1", mf, dmas[1], dyn=True)
            st.chunk = c; st.sub = 1; s.stages.append(st)
    def add_p2(s, gemms, bump, pre0=None):
        s.nst_chunk = 4 * len(gemms)
        for c in range(9):
            sub = 0
            for gi, (Bf, stage_rows, dmas, needs, sreg) in enumerate(gemms):
                if isinstance(Bf, R): Bf = [Bf.sub(8 * t_, 8) for t_ in range(Bf.c // 8)]
                nk = len(Bf); k0 = 0
                for b, rows in enumerate(stage_rows):
                    n = rows // 32; mf = []
                    for h in range(2):
                        for kk in range(n):
                            t = k0 + kk
                            for T in (2 * h, 2 * h + 1):
                                m = MF(pair(P2ACC, T, [Bf[t].sub(0, 4), Bf[t].sub(4, 4)], t == 0, T & 1), rd_w(T, kk))
                                if t == 0 and T % 2 == 0: m.need.append(('p2acc', h))
                                if c == 0 and T == 0 and needs.get(t): m.need += needs[t]
                                if t == nk - 1 and T % 2 == 1: m.after = (lambda G, h=h, sreg=sreg, c=c: s.p2_epi(h, G, sreg, c, None))
                                mf.append(m)
                    pre = (pre0 if c == 0 else (lambda: list(bump))) if sub == 0 else None
                    st = Stage(f"P2c{c}b{sub}", mf, dmas[b], dyn=True, mark=(sub == 0), pre_dma=pre)
                    st.chunk = c; st.sub = sub
                    s.stages.append(st); k0 += n; sub += 1

    def flush_need(s, need):
        if not need: return
        last = -1
        for k, it in enumerate(s.q):
            if it.dl in need or it.key in need: last = k
        for it in s.q[:last + 1]: s.p.emit(it.i); s.forced += it.i.units
        del s.q[:last + 1]
        last = -1
        for k, it in enumerate(s.q2):
            if it.dl in need or it.key in need: last = k
        for it in s.q2[:last + 1]: s.p.emit(it.i); s.forced += it.i.units
        del s.q2[:last + 1]
        last = -1
        for k, it in enumerate(s.q3):
            if it.dl in need or it.key in need: last = k
        for it in s.q3[:last + 1]: s.p.emit(it.i); s.forced += it.i.units
        del s.q3[:last + 1]
    def deadline(s, it, G):
        best = None
        for key in (it.dl, it.key):
            if key is None: continue
            for g in s.need_gap.get(key, ()):
                if g >= G:
                    if g >= it.ready and (best is None or g < best): best = g
                    break
        return best
    def fill(s, G, budget):
        budget = s.fill1(G, budget)
        force = s.force3;
        while s.q3 and s.q3[0].ready <= G and (s.q3[0].i.units <= budget or force > 0):
            it = s.q3.pop(0); s.p.emit(it.i); budget -= it.i.units; force -= it.i.units; s.force3 = max(force, 0)
        return budget
    def fill1(s, G, budget):
        p = s.p
        while s.q and budget > 0:
            h = s.q[0]
            if h.ready <= G and h.i.units <= budget + (1 if h.i.units == 3 else 0):
                it = s.q.pop(0)
                if CFG.get('latest') and ((it.i.kind == 'vstore' and any(x[-1].kind == 'dma' for x in s.side)) or
                                          (it.i.kind in ('salu', 'vstore') and any(x[-1].kind == 'vstore' and isinstance(x[-1].tag, tuple) for x in s.side))):
                    s.side.append([it.i]); continue
                p.emit(it.i); budget -= it.i.units
                continue
            if not CFG.get('ooo', True): break
            found = None; rd = set(); wr = set()
            for k, it in enumerate(s.q[:24]):
                if k and it.ready <= G and it.i.units == 1 and it.i.kind == 'valu' and not (it.i.rd & wr) and not (it.i.wr & (rd | wr)) \
                   and it.key is None and not p.would_pad(it.i):
                    found = k; break
                rd |= it.i.rd; wr |= it.i.wr
            if found is None: break
            it = s.q.pop(found); p.emit(it.i); budget -= 1
        return budget
    def run(s):
        p = s.p; D = getattr(s, 'depth', CFG['depth']); WE = CFG['wevery']
        flat = [(k, n, m) for k, st in enumerate(s.stages) for n, m in enumerate(st.mf)]
        N = len(flat)
        s.need_gap = {}
        for G, (k, n, m) in enumerate(flat):
            for x in m.need: s.need_gap.setdefault(x, []).append(G)
        def mkring(off0):
            fr = []; cur = None; g0 = 0
            for G, (k, n, m) in enumerate(flat):
                st = s.stages[k]
                spec = st.ring or s.ring
                if spec != cur: cur = spec; g0 = G - (off0 if len(spec) > 2 else 0)
                elif len(spec) > 2 and st.mark and n == 0: g0 = G
                fr.append(a(spec[0] + 4 * ((G - g0) % spec[1]), 4))
            ok = all(fr[G].n != fr[G2].n for G in range(N) for G2 in range(max(0, G - D), G))
            return fr, ok
        for off0 in range(16):
            fr_of, ok = mkring(off0)
            if ok: break
        assert ok
        dsidx = {}; side = []; s.side = side; s.forced = 0; dyn_started = [False]
        def open_stage(k):
            st = s.stages[k]
            if st.mark: p.emit(I(f"; MARK {st.name}", 'label', units=0, tag='mark'))
            p.emit(comment(st.name))
            if getattr(st, 'label', None): p.emit(label(st.label))
            for it in side: p.emit(it)
            side.clear()
            if getattr(st, 'pre_bar', None): st.pre_bar()
            cover = getattr(st, 'cover_st', None)
            if cover is not None:
                assert sum(1 for t in p.vm if t == ('st', cover)) == s.nst_chunk, (st.name, cover)
            if not (CFG.get('nowait') and st.name.startswith('P2')): p.emit(waitvm(p.vm_wait_for(lambda t: t == k or (cover is not None and t == ('st', cover)) or (t is not None and t == getattr(st, 'cover_tag', None)))))
            if not (CFG.get('nobar') and st.name.startswith('P2')): p.emit(barrier())
            u = 2
            if CFG['stamps'] == 1 or (CFG['stamps'] == 2 and (k == 0 or st.name in ('P2c0b0', 'PAmini'))): s.stamp(k, CFG['stamps'] == 1)
            if st.dyn:
                first = [smov(sWr, sPrev), smov(sPrev, sRd), smov(sRd, sRdN)]
                if not dyn_started[0]:
                    dyn_started[0] = True
                    first = [smov(sWr, ((k - 2) % 4) * SLOT), smov(sPrev, ((k - 1) % 4) * SLOT), smov(sRd, (k % 4) * SLOT)]
                side.append(first[:2]); side.append(first[2:] + ([salu('s_add_u32', sWrW, sWr, sW2176)] if (k + 2 < len(s.stages) and s.stages[k + 2].pa) else []))
            NEWO = CFG.get('sideord', 0)
            if st.post_bar and not NEWO: side.append(st.post_bar())
            if k >= (0 if CFG.get('pro2') else 1) and k + 2 < len(s.stages):
                nx = s.stages[k + 2]
                if nx.pre_dma:
                    pd = nx.pre_dma()
                    if NEWO and all(x.kind == 'salu' for x in pd):
                        for i_ in range(0, len(pd), 2): side.append(pd[i_:i_ + 2])
                    else: side.append(pd)
                side.extend(nx.dma(k + 2, st.dyn and nx.dyn))
            if st.post_bar and NEWO: side.append(st.post_bar())
            s.dstep = CFG['dmastep'] if (len(st.mf) >= 30 or not NEWO) else 2
            for f in s.pf.get(k, ()): side.append(f())
            if st.dyn and k + 1 < len(s.stages):
                side.insert(min(len(side), 5) if not CFG.get('sideord', 0) else len(side), [salu('s_add_u32', sRdN, sRd, SLOT), salu('s_cmp_lt_u32', None, sRdN, 4 * SLOT),
                                                salu('s_cselect_b32', sRdN, sRdN, 0, scc_w=False, scc_r=True)])
            return u
        def pre_switch(k):
            st = s.stages[k]; out = []
            if st.half: out += [valu('v_add_u32', vRH[T], (k % 4) * SLOT, vRH[T]) for T in range(1 if CFG['shape'] == 'M' else 2)]
            if st.dyn:
                for it in side: out += it
                side.clear()
                base = sRdN if dyn_started[0] else (k % 4) * SLOT
                if st.pa and CFG['shape'] == 'M':
                    out += [valu('v_add_u32', vD0, base, vRW[0][0]), valu('v_add_u32', vD1, base, vRW[0][1]),
                            valu('v_add_u32', vDK, base, vRKM[0]), valu('v_add_u32', vDK1, base, vRKM[1])]
                else:
                    out += [valu('v_add_u32', vD0, base, vDP), valu('v_xor_b32', vD1, 32, vD0)]
                    if st.pa: out.append(valu('v_add_u32', vDK, base, vRK[0]))
            return out
        def issue_reads(G):
            k, n, m = flat[G]; u = 0
            if n == 0: u += open_stage(k)
            r = m.reads(fr_of[G], s.stages[k], k)
            p.emit(r); dsidx[G] = p.ds
            return u + len(r)
        for G in range(min(D, N)): issue_reads(G)
        p.emit(waitlg(p.ds - dsidx[min(WE, N) - 1]))
        sidegap = 0
        for G in range(N):
            k, n, m = flat[G]
            s.flush_need(m.need)
            if m.pre: m.pre()
            big = len(m.m) == 1
            (D0, B0, C0) = m.m[0]
            cum = 0; boost = 0
            for it in s.q:
                cum += it.i.units
                g = s.deadline(it, G)
                if g is not None: boost = max(boost, cum / max(g - G, 1))
            cum = 0; s.force3 = 0
            for it in s.q3:
                cum += it.i.units
                g = s.deadline(it, G)
                if g is not None:
                    r_ = cum / max(g - G, 1)
                    if r_ > CFG.get('low_rate', 2.0): s.force3 = max(s.force3, math.ceil(r_))
            f3_ = s.force3; s.force3 = 0
            p.emit(mfma(D0, fr_of[G], B0, C0))
            if G in s.regions:
                kind_, key_ = s.regions[G]
                p.emit(I(f"; REGION {kind_} {key_}", 'label', units=0, tag=('region', kind_, key_)))
            if G in s.phantoms:
                for _ in range(s.phantoms[G]): s.q2.insert(0, VQ(phantom(), G, None))
            wl = (G + 1) % WE == 0 and G + 1 < N
            if wl: p.emit(waitlg(p.ds - dsidx[min(G + WE, N - 1)]))
            u = 0
            if G + D < N:
                if flat[G + D][1] == 0: sidegap = 0
                u += issue_reads(G + D)
            used = 0
            if big:
                cap = 6; u += 1 if wl else 0
            else:
                cap = 2
                if u < 2:
                    b0 = 2 - u; used = b0 - s.fill(G, b0)
                (D1, B1, C1) = m.m[1]
                p.emit(mfma(D1, fr_of[G], B1, C1))
                u = 0
            if side and sidegap <= 0 and (not big or u <= 3):
                it = side.pop(0)
                tot = sum(x.units for x in it)
                if tot > (cap - u if big else 3) and len(it) > 1 and it[-1].kind in ('dma', 'vload', 'vstore'):
                    p.emit(it[:-1]); u += tot - it[-1].units; side.insert(0, [it[-1]])
                else:
                    p.emit(it); u += tot
                    if it[-1].kind in ('dma', 'vload'): sidegap = getattr(s, 'dstep', CFG['dmastep'])
            sidegap -= 1
            if G + D + 1 < N and flat[G + D + 1][1] == 0:
                ps = pre_switch(flat[G + D + 1][0]); p.emit(ps); u += sum(x.units for x in ps)
            if m.after and len(m.m) <= 2: m.after(G)
            nh_ = max(len(m.m) - 1, 1)
            s.force3 = f3_
            budget = max(cap - u, 0)
            thr = CFG.get('boost_minM', 3.0) if big else (CFG.get('boost_min', 1.4) if nh_ == 1 else CFG.get('boost_min4', 5.0))
            want = math.ceil(boost - used - 0.01) if boost > thr else 0
            if nh_ == 1:
                budget = max(budget, want)
                n2 = 0
                while s.q2 and s.q2[0].ready <= G and n2 < 2:
                    it = s.q2.pop(0); p.emit(it.i); n2 += 1; budget -= 1
                s.fill(G, max(budget, want - 1 if n2 else budget))
            else:
                for hh in range(nh_):
                    if hh:
                        if p.ins[-1].kind == 'mfma': p.emit(nop(0))
                        (Dx, Bx, Cx) = m.m[hh + 1]
                        p.emit(mfma(Dx, fr_of[G], Bx, Cx)); budget = 2
                    b_ = max(budget, math.ceil(want / (nh_ - hh)))
                    want -= b_ - s.fill(G, b_)
            if m.after and len(m.m) > 2: m.after(G)
            if m.extra is not None:
                p.emit(m.extra); s.fill(G, 2)
            dg = CFG.get('diag', '')
            nm_ = s.stages[k].name
            if (dg == 'X' and s.kind == 'F' and nm_.startswith('P2')) or (dg == 'Y' and s.kind == 'A' and nm_.startswith('PA')) or (dg == 'W' and s.kind == 'A' and nm_.startswith('P2')):
                p.emit(nop(0)); p.emit(nop(0)); p.emit(nop(0))
            if dg == 'Z' and nm_.startswith('P2') and p.ins[-1].kind == 'mfma':
                p.emit(valu('v_exp_f32', v(200 + G % 8), v(112 + G % 32)))
            if p.ins[-1].kind == 'mfma' and not big:
                if CFG.get('splitr', True) and p.ins[-2].kind == 'ds' and p.ins[-3].kind == 'ds':
                    p.ins[-1], p.ins[-2] = p.ins[-2], p.ins[-1]
                else: p.emit(nop(0))
        for it in side: p.emit(it)
        if getattr(s, 'before_drain', None): s.before_drain()
        for it in s.q + s.q2 + s.q3: p.emit(it.i)
        s.q = []; s.q2 = []
    def stamp(s, k, run=False):
        p = s.p
        p.emit(raw(f"s_memtime {sSTAMP}", wr=[sSTAMP]))
        p.emit(raw("s_waitcnt lgkmcnt(0)"))
        p.emit(salu('s_sub_u32', s_(98), s_(98), s_(100)))
        if CFG.get('rt'):
            p.emit(raw(f"s_memrealtime {sSTAMP}", wr=[sSTAMP])); p.emit(raw("s_waitcnt lgkmcnt(0)")); p.emit(salu('s_sub_u32', s_(98), s_(98), s_(43)))
        if not run:
            p.emit(raw(f"v_writelane_b32 {vSTAMP}, s98, {k}", 'valu', wr=[vSTAMP], rd=[s_(98)]))
        else:
            p.emit(raw(f"v_cmp_eq_u32 vcc, s97, {vLANE16}", 'valu', wr=['vcc'], rd=[s_(97), vLANE16]))
            p.emit(valu('v_mov_b32', vDUM, s_(98)))
            p.emit(salu('s_add_u32', s_(97), s_(97), 16))
            p.emit(valu('v_cndmask_b32', vSTAMP, vSTAMP, vDUM, 'vcc'))
```

```python
import sys, re
from s1 import *

ROLE_TAB = [0, 1, 2, 11, 3, 4, 5, 12, 6, 7, 13, 14, 8, 9, 10, 15]
vPFR = v(36)
vPRG = v(36)
PART = 4 * PWAVE
NPART = 17
NA, NM, NS = 10, 1, 11
def set_layout(new):
    global NPART, NA, NM, NS, ROLE_TAB
    if new:
        NPART, NA, NM, NS = 20, 8, 4, 12
        ROLE_TAB = [0, 1, 8, 12, 2, 3, 9, 13, 4, 5, 10, 14, 6, 7, 11, 15]
WSP_BYTES = NPART * 16 * PART
def PSTR(): return 16 * PART + (CFG.get('pskew', 0) if CFG['fused'] else 0)
sJQ, sQ0, sOA1, sOB1 = s(73), s(59), s(74), s(75)
STAMP_OFF = 0x3000000
CTRL = 0x2F00000
OOB = 0x10000000

def srd(p, dst, lo, nbytes):
    p.emit([smov(dst[0], s(lo)), salu('s_and_b32', dst[1], s(lo + 1), 0xffff), smov(dst[2], nbytes), smov(dst[3], 0x20000)])
def xdma(j):
    return [salu('s_add_u32', 'm0', s(6), j * 4096), salu('s_add_u32', sT, s(7), j * 128)] + [dma(v(16 + q), sX, sT, q * 1024, tag=('x', j)) for q in range(4)]
def mul(d, a_, b_): return salu('s_mul_i32', d, a_, b_, scc_w=False)
def add(d, a_, b_): return salu('s_add_u32', d, a_, b_)
def shl(d, a_, b_): return salu('s_lshl_b32', d, a_, b_)
def shr(d, a_, b_): return salu('s_lshr_b32', d, a_, b_)
def csel(d, a_, b_): return salu('s_cselect_b32', d, a_, b_, scc_w=False, scc_r=True)

def common_prologue():
    if CFG.get('entry', 0) == 0: return common_prologue_old()
    assert CFG['xe'] == 9 and CFG.get('map', 4) == 4
    p = Prog(); E = p.emit
    E(raw("s_load_dwordx8 s[40:47], s[0:1], 0", wr=[s(40, 8)]))
    E(salu('s_cmp_ge_u32', None, s(2), 256))
    E(raw("s_cbranch_scc0 L_go")); E(raw("s_endpgm")); E(label("L_go"))
    if CFG['stamps']:
        E(raw(f"s_memtime {sT0}", wr=[sT0])); E(raw("s_memrealtime s[96:97]", wr=[s(96, 2)]))
    E(valu('v_lshrrev_b32', v(1), 6, v(0)))
    E(salu('s_and_b32', s(3), s(2), 1)); E(shl(s(3), s(3), 3))
    E(valu('v_readfirstlane_b32', sWAVE, v(1)))
    E(shr(sRB, s(2), 5)); E(salu('s_or_b32', sRB, sRB, s(3)))
    E(valu('v_and_b32', v(0), 63, v(0)))
    E(valu('v_lshrrev_b32', vROWN, 3, v(0)))
    E(valu('v_and_b32', v(20), 7, v(0))); E(valu('v_lshrrev_b32', v(21), 4, v(0)))
    E(valu('v_xor_b32', v(22), v(20), v(21))); E(valu('v_xor_b32', v(23), 4, v(22)))
    E(salu('s_movk_i32', s(3), 1152, scc_w=False)); E(valu('v_mul_u32_u24', v(24), s(3), vROWN))
    E(valu('v_lshl_add_u32', v(16), v(22), 4, v(24))); E(valu('v_lshl_add_u32', v(17), v(23), 4, v(24)))
    E(valu('v_add_u32', v(17), 8 * 1152 - 1024, v(17)))
    E(valu('v_add_u32', v(18), 2 * (8 * 1152 - 1024), v(16))); E(valu('v_add_u32', v(19), 2 * (8 * 1152 - 1024), v(17)))
    E(mul(s(6), sWAVE, XW)); E(raw("s_lshl2_add_u32 s7, s64, s62", 'salu', wr=[s(7)], rd=[sRB, sWAVE])); E(mul(sT, s(7), 32 * 1152))
    E(smov('m0', s(6))); E(add(s(7), sT, 9 * 128))
    E(smov(sX[2], 2359296)); E(smov(sX[3], 0x20000))
    E(raw("s_waitcnt lgkmcnt(0)"))
    E(smov(sX[0], s(40))); E(salu('s_and_b32', sX[1], s(41), 0xffff))
    E(label("L_xl"))
    n0 = len(p.vm)
    for q in range(4): E(dma(v(16 + q), sX, sT, q * 1024))
    del p.vm[n0:]
    for j in range(9): p.vm += [('x', j)] * 4
    E(add(sT, sT, 128)); E(add('m0', 'm0', 4096)); E(salu('s_cmp_lt_u32', None, sT, s(7))); E(raw("s_cbranch_scc1 L_xl"))
    return p
def common_prologue2(p):
    E = p.emit
    tab = ROLE_TAB
    lo = sum(tab[i] << (4 * i) for i in range(8)); hi = sum(tab[8 + i] << (4 * i) for i in range(8))
    E(salu('s_bfe_u32', s(3), s(2), (2 << 16) | 3)); E(salu('s_bfe_u32', s(4), s(2), (1 << 16) | 1))
    E(shl(s(4), s(4), 2)); E(salu('s_or_b32', s(3), s(3), s(4))); E(shl(s(3), s(3), 2))
    E(salu('s_bitcmp1_b32', None, s(2), 2))
    E(smov(s(4), lo)); E(csel(s(4), hi, s(4)))
    E(shr(s(4), s(4), s(3))); E(salu('s_and_b32', sROLE, s(4), 15))
    E(raw(f"s_getpc_b64 {sPC}", wr=[sPC])); E(label("L_pc"))
    E(smov(s(4), "L_roleA-L_pc")); E(smov(s(5), "L_roleA_end-L_pc-4"))
    E(salu('s_cmp_ge_u32', None, sROLE, NA)); E(csel(s(4), "L_roleM-L_pc", s(4))); E(csel(s(5), "L_roleM_end-L_pc-4", s(5)))
    E(salu('s_cmp_ge_u32', None, sROLE, NA + NM)); E(csel(s(4), "L_roleF-L_pc", s(4))); E(csel(s(5), "L_roleF_end-L_pc-4", s(5)))
    n0 = CFG.get('code0', 16); NL = CFG.get('codelines', 24)
    if n0:
        E(mul(s(3), sWAVE, n0 * 128)); E(add(s(3), s(3), s(4)))
        E(valu('v_min_u32', v(2), n0 - 1, v(0))); E(valu('v_lshlrev_b32', v(2), 7, v(2))); E(valu('v_add_u32', v(2), s(3), v(2)))
        E(I(f"global_load_dword {vDUM}, v2, {sPC}", 'vload', wr=vDUM.regs(), rd=vr(2) + sPC.regs(), tag='pf'))
    E(salu('s_and_b32', s(3), sRB, 7)); E(shl(s(3), s(3), 2)); E(add(s(3), s(3), sWAVE))
    E(mul(s(3), s(3), NL * 128)); E(add(s(3), s(3), s(4)))
    E(valu('v_min_u32', v(2), NL - 1, v(0))); E(valu('v_lshlrev_b32', v(2), 7, v(2))); E(valu('v_add_u32', v(2), s(3), v(2)))
    E(valu('v_min_u32', v(3), s(5), v(2)))
    E(I(f"global_load_dword {vDUM}, v3, {sPC}", 'vload', wr=vDUM.regs(), rd=vr(3) + sPC.regs(), tag='pf'))
def common_prologue3(p):
    E = p.emit
    E(raw("s_load_dwordx2 s[48:49], s[0:1], 32", wr=[s(48, 2)]))
    E(raw("s_load_dwordx8 s[52:59], s[0:1], 48", wr=[s(52, 8)]))
    E(raw("s_load_dwordx2 s[50:51], s[0:1], 80", wr=[s(50, 2)]))
    srd(p, sK, 42, 8388608); srd(p, sV, 44, 8388608); srd(p, sWQ, 46, 4718592)
    E(mul(sW8704, sWAVE, 8 * PP)); E(mul(sWC, sWAVE, PP)); E(add(sWC, sWC, 32 * PP))
    E(shl(sW8192, sWAVE, 13)); E(shl(sWCH, sWAVE, 10)); E(add(sWCH, sWCH, 32768))
    E(mul(sW2176, sWAVE, 2 * PP)); E(mul(sW4352, sWAVE, 4 * PP)); E(add(sWA2, sW2176, 16 * PP))
    E(raw("s_waitcnt lgkmcnt(0)"))
    srd(p, sWO, 48, 4718592)
    srd(p, sW1, 52, 5308416); srd(p, sW2, 54, 5308416); srd(p, sWS, 50, 0x10000000 if (CFG['stamps'] or CFG['fused']) else WSP_BYTES)
    srd(p, sOUT, 56, 2359296); srd(p, sDBG, 58, 256)

def common_prologue_old():
    p = Prog(); E = p.emit
    E(salu('s_cmp_ge_u32', None, s(2), 256))
    E(raw("s_cbranch_scc0 L_go")); E(raw("s_endpgm")); E(label("L_go"))
    E(raw("s_load_dwordx8 s[40:47], s[0:1], 0", wr=[s(40, 8)]))
    E(raw("s_load_dwordx2 s[48:49], s[0:1], 32", wr=[s(48, 2)]))
    E(raw("s_load_dwordx8 s[52:59], s[0:1], 48", wr=[s(52, 8)]))
    E(raw("s_load_dwordx2 s[50:51], s[0:1], 80", wr=[s(50, 2)]))
    if CFG['stamps']:
        E(raw(f"s_memtime {sT0}", wr=[sT0])); E(raw("s_memrealtime s[96:97]", wr=[s(96, 2)]))
    tab = ROLE_TAB
    if CFG.get('map', 4) == 8:
        t8 = [0, 1, 2, 3, 4, 10, 11, 12, 5, 6, 7, 8, 9, 13, 14, 15]
        lo = sum(t8[i] << (4 * i) for i in range(8)); hi = sum(t8[8 + i] << (4 * i) for i in range(8))
        E(salu('s_bfe_u32', s(3), s(2), (3 << 16) | 3)); E(shl(s(3), s(3), 2))
        E(salu('s_bitcmp1_b32', None, s(2), 2)); E(smov(s(4), lo)); E(csel(s(4), hi, s(4)))
        E(shr(s(4), s(4), s(3))); E(salu('s_and_b32', sROLE, s(4), 15))
        E(salu('s_and_b32', s(3), s(2), 1)); E(shl(s(3), s(3), 3)); E(salu('s_and_b32', s(4), s(2), 2)); E(shl(s(4), s(4), 1))
        E(shr(sRB, s(2), 6)); E(salu('s_or_b32', sRB, sRB, s(3))); E(salu('s_or_b32', sRB, sRB, s(4)))
    elif CFG.get('map', 4) == 2:
        t2 = [0, 1, 2, 3, 4, 11, 5, 12, 6, 13, 7, 14, 8, 15, 9, 10]
        lo = sum(t2[i] << (4 * i) for i in range(8)); hi = sum(t2[8 + i] << (4 * i) for i in range(8))
        E(salu('s_bfe_u32', s(3), s(2), (1 << 16) | 3)); E(salu('s_and_b32', s(4), s(2), 3)); E(shl(s(4), s(4), 1)); E(salu('s_or_b32', s(3), s(3), s(4))); E(shl(s(3), s(3), 2))
        E(salu('s_bitcmp1_b32', None, s(2), 2)); E(smov(s(4), lo)); E(csel(s(4), hi, s(4)))
        E(shr(s(4), s(4), s(3))); E(salu('s_and_b32', sROLE, s(4), 15)); E(shr(sRB, s(2), 4))
    else:
        lo = sum(tab[i] << (4 * i) for i in range(8)); hi = sum(tab[8 + i] << (4 * i) for i in range(8))
        E(salu('s_bfe_u32', s(3), s(2), (2 << 16) | 3)); E(salu('s_bfe_u32', s(4), s(2), (1 << 16) | 1))
        E(shl(s(4), s(4), 2)); E(salu('s_or_b32', s(3), s(3), s(4))); E(shl(s(3), s(3), 2))
        E(salu('s_bitcmp1_b32', None, s(2), 2))
        E(smov(s(4), lo)); E(csel(s(4), hi, s(4)))
        E(shr(s(4), s(4), s(3))); E(salu('s_and_b32', sROLE, s(4), 15))
        E(salu('s_and_b32', s(3), s(2), 1)); E(shl(s(3), s(3), 3))
        E(shr(sRB, s(2), 5)); E(salu('s_or_b32', sRB, sRB, s(3)))
    E(valu('v_lshrrev_b32', v(1), 6, v(0)))
    E(valu('v_readfirstlane_b32', sWAVE, v(1)))
    E(valu('v_and_b32', v(0), 63, v(0)))
    E(valu('v_lshrrev_b32', vROWN, 3, v(0)))
    E(valu('v_and_b32', v(20), 7, v(0))); E(valu('v_lshrrev_b32', v(21), 4, v(0)))
    E(valu('v_xor_b32', v(22), v(20), v(21))); E(valu('v_xor_b32', v(23), 4, v(22)))
    E(smov(s(3), 1152)); E(valu('v_mul_u32_u24', v(24), s(3), vROWN))
    E(valu('v_lshl_add_u32', v(16), v(22), 4, v(24))); E(valu('v_lshl_add_u32', v(17), v(23), 4, v(24)))
    E(valu('v_add_u32', v(17), 8 * 1152 - 1024, v(17)))
    E(valu('v_add_u32', v(18), 2 * (8 * 1152 - 1024), v(16))); E(valu('v_add_u32', v(19), 2 * (8 * 1152 - 1024), v(17)))
    E(mul(s(6), sWAVE, XW))
    E(shl(s(7), sRB, 2)); E(add(s(7), s(7), sWAVE)); E(mul(s(7), s(7), 32 * 1152))
    E(raw(f"s_getpc_b64 {sPC}", wr=[sPC])); E(label("L_pc"))
    E(smov(s(4), "L_roleA-L_pc")); E(smov(s(5), "L_roleA_end-L_pc-4"))
    E(salu('s_cmp_ge_u32', None, sROLE, NA)); E(csel(s(4), "L_roleM-L_pc", s(4))); E(csel(s(5), "L_roleM_end-L_pc-4", s(5)))
    E(salu('s_cmp_ge_u32', None, sROLE, NA + NM)); E(csel(s(4), "L_roleF-L_pc", s(4))); E(csel(s(5), "L_roleF_end-L_pc-4", s(5)))
    def code_pf():
        NL = CFG.get('codelines', 24)
        E(salu('s_and_b32', s(3), sRB, 7)); E(shl(s(3), s(3), 2)); E(add(s(3), s(3), sWAVE))
        E(mul(s(3), s(3), NL * 128)); E(add(s(3), s(3), s(4)))
        E(valu('v_min_u32', v(2), NL - 1, v(0))); E(valu('v_lshlrev_b32', v(2), 7, v(2))); E(valu('v_add_u32', v(2), s(3), v(2)))
        E(valu('v_min_u32', v(3), s(5), v(2)))
        E(I(f"global_load_dword {vDUM}, v3, {sPC}", 'vload', wr=vDUM.regs(), rd=vr(3) + sPC.regs(), tag='pf'))
    if CFG.get('codepf', 3) >= 3:
        n0 = CFG.get('code0', 16)
        if n0:
            E(mul(s(3), sWAVE, n0 * 128)); E(add(s(3), s(3), s(4)))
            E(valu('v_min_u32', v(2), n0 - 1, v(0))); E(valu('v_lshlrev_b32', v(2), 7, v(2))); E(valu('v_add_u32', v(2), s(3), v(2)))
            E(I(f"global_load_dword {vDUM}, v2, {sPC}", 'vload', wr=vDUM.regs(), rd=vr(2) + sPC.regs(), tag='pf'))
        code_pf()
    E(raw("s_waitcnt lgkmcnt(0)"))
    srd(p, sX, 40, 2359296)
    nx0 = CFG.get('tx', 2) if CFG.get('touch') else 0
    for j in range(nx0): E(xdma(j))
    if CFG.get('touch'):
        E(salu('s_cmp_gt_u32', None, sROLE, 10))
        E(raw("s_cselect_b64 s[60:61], s[52:53], s[46:47]", 'salu', wr=[s(60, 2)], rd=[s(52, 2), s(46, 2)]))
        E(raw("s_cselect_b64 s[66:67], s[54:55], s[48:49]", 'salu', wr=[s(66, 2)], rd=[s(54, 2), s(48, 2)]))
        E(salu('s_cmp_eq_u32', None, sWAVE, 1)); E(raw("s_cselect_b64 s[60:61], s[66:67], s[60:61]", 'salu', wr=[s(60, 2)], rd=[s(66, 2), s(60, 2)]))
        E(salu('s_cmp_eq_u32', None, sWAVE, 2)); E(raw("s_cselect_b64 s[60:61], s[42:43], s[60:61]", 'salu', wr=[s(60, 2)], rd=[s(42, 2), s(60, 2)]))
        E(salu('s_cmp_eq_u32', None, sWAVE, 3)); E(raw("s_cselect_b64 s[60:61], s[44:45], s[60:61]", 'salu', wr=[s(60, 2)], rd=[s(44, 2), s(60, 2)]))
        E(smov(s(3), 73728)); E(salu('s_cmp_ge_u32', None, sWAVE, 2)); E(csel(s(3), 131072, s(3)))
        E(valu('v_mul_u32_u24', v(2), s(3), v(0)))
        E(I(f"global_load_dword {vDUM}, v2, s[60:61]", 'vload', wr=vDUM.regs(), rd=vr(2) + sr(60, 2), tag='pf'))
    for j in range(nx0, CFG['xe']): E(xdma(j))
    if CFG.get('codepf', 3) == 1: code_pf()
    if CFG.get('codepf', 3) == 2:
        E(valu('v_mov_b32', v(46), v(3))); E(raw(f"s_mov_b64 s[100:101], {sPC}", 'salu', wr=[s(100, 2)], rd=[sPC]))
    srd(p, sK, 42, 8388608); srd(p, sV, 44, 8388608); srd(p, sWQ, 46, 4718592); srd(p, sWO, 48, 4718592)
    srd(p, sW1, 52, 5308416); srd(p, sW2, 54, 5308416); srd(p, sWS, 50, 0x10000000 if (CFG['stamps'] or CFG['fused']) else WSP_BYTES)
    srd(p, sOUT, 56, 2359296); srd(p, sDBG, 58, 256)
    E(mul(sW8704, sWAVE, 8 * PP)); E(mul(sWC, sWAVE, PP)); E(add(sWC, sWC, 32 * PP))
    E(shl(sW8192, sWAVE, 13)); E(shl(sWCH, sWAVE, 10)); E(add(sWCH, sWCH, 32768))
    E(mul(sW2176, sWAVE, 2 * PP)); E(mul(sW4352, sWAVE, 4 * PP)); E(add(sWA2, sW2176, 16 * PP))
    return p

def dispatch_text():
    return f""" s_cmp_ge_u32 {sROLE}, {NA + NM}
 s_cbranch_scc1 L_roleF
 s_cmp_ge_u32 {sROLE}, {NA}
 s_getpc_b64 s[94:95]
L_pc2:
 s_cbranch_scc1 L_jM
 s_add_u32 s94, s94, L_roleA-L_pc2
 s_addc_u32 s95, s95, 0
 s_setpc_b64 s[94:95]
L_jM:
 s_add_u32 s94, s94, L_roleM-L_pc2
 s_addc_u32 s95, s95, 0
 s_setpc_b64 s[94:95]
"""

def pfload(srd_, base):
    ld = bload('buffer_load_dword', vDUM, vPF, srd_, base); ld.tag = 'pf'; return ld
def pf_lin(srd_, base_s, start, nbytes, nl=64):
    def f():
        return [valu('v_lshrrev_b32', vPF2, 16, vTID), valu('v_and_b32', vPF, 63, vTID), valu('v_min_u32', vPF, nl - 1, vPF),
                valu('v_mad_u32_u24', vPF, vPF2, nl, vPF), valu('v_lshlrev_b32', vPF, 7, vPF), valu('v_add_u32', vPF, start, vPF),
                valu('v_min_u32', vPF, nbytes - 128, vPF), pfload(srd_, base_s)]
    return f
def pf_run(srd_, base_s, nbytes, nl):
    def f():
        return [valu('v_min_u32', vPF, nbytes - 128, vPFR), valu('v_add_u32', vPFR, 64 * nl * 128, vPFR), pfload(srd_, base_s)]
    f.nl = nl
    return f
def vPFW(kind): return {'F': v(8), 'A': v(7), 'M': v(36)}[kind]
def pf_row(kind, srd_, step=128):
    def f():
        ld = bload('buffer_load_dword', vDUM, vPFW(kind), srd_, sPW); ld.tag = 'pf'
        return [add(sPW, sPW, step), ld]
    return f
def pf_row_setup(kind, pitch, nl, base, lit):
    r = vPFW(kind)
    return [valu('v_bfe_u32', vPF2, vTID, 16, 5), valu('v_and_b32', r, 63, vTID), valu('v_min_u32', r, nl - 1, r),
            valu('v_mad_u32_u24', r, vPF2, nl, r), smov(sT2, pitch), valu('v_mul_u32_u24', r, sT2, r), add(sPW, base, lit)]
def pf_code(la, lb, nl):
    def f():
        L = f"L_cp{pf_code.k}"; pf_code.k += 1
        ld = I(f"global_load_dword {vDUM}, {vPF}, {sPC}", 'vload', wr=vDUM.regs(), rd=vPF.regs() + sPC.regs(), units=3, tag='pf')
        return [raw(f"s_getpc_b64 {sPC}", 'salu', wr=[sPC]), label(L),
                salu('s_add_u32', sPC[0], sPC[0], f"{la}-{L}"), salu('s_addc_u32', sPC[1], sPC[1], 0, scc_r=True),
                valu('v_bfe_u32', vPF2, vTID, 16, 5), valu('v_and_b32', vPF, 63, vTID), valu('v_min_u32', vPF, nl - 1, vPF),
                valu('v_mad_u32_u24', vPF, vPF2, nl, vPF), valu('v_lshlrev_b32', vPF, 7, vPF), valu('v_min_u32', vPF, f"{lb}-{la}-4", vPF), ld]
    return f
pf_code.k = 0
def pf_sched(R, k0, srd_, base_s, nbytes, nl):
    per = 64 * nl * 128; k = k0
    for st in range(0, nbytes, per):
        R.pf.setdefault(k, []).append(pf_lin(srd_, base_s, st, nbytes, nl)); k += 1
    return k

def role_prologue(R, vm_before):
    p = R.p; E = p.emit; kind = R.kind
    p.vm = list(vm_before)
    MS = CFG['shape'] == 'M'
    def PS(k):
        if CFG['stamps'] == 1: R.stamp(k)
    if CFG.get('delayrole') is not None:
        for r_ in CFG['delayrole']:
            E(salu('s_cmp_eq_u32', None, sROLE, r_[0])); E(raw(f"s_cbranch_scc0 L_{kind}_nd{r_[0]}"))
            E(smov(sLC, r_[1])); E(label(f"L_{kind}_dl{r_[0]}")); E(raw("s_sleep 127")); E(salu('s_sub_u32', sLC, sLC, 1)); E(salu('s_cmp_lg_u32', None, sLC, 0)); E(raw(f"s_cbranch_scc1 L_{kind}_dl{r_[0]}"))
            E(label(f"L_{kind}_nd{r_[0]}"))
    PS(56)
    lane = v(0)
    E(shl(sT2, sRB, 2)); E(add(sT2, sT2, sWAVE)); E(shl(sT2, sT2, 16)); E(valu('v_or_b32', vTID, sT2, lane))
    if kind in 'AM' and CFG.get('pair'):
        sHP_, sHS_ = s(86), s(85)
        if CFG.get('l844'): E(shl(sHP_, sROLE, 1)); E(add(sHP_, sHP_, 8))
        else: E(mul(sHP_, sROLE, 3))
        if kind == 'A':
            sHP_, sHS_ = sFA, sFC
            E(mul(sHS_, sROLE, 3)); E(salu('s_and_b32', s(4), sROLE, 1)); E(add(sHP_, sHS_, s(4)))
            E(shl(s(4), s(4), 1)); E(add(sHS_, sHS_, 2)); E(salu('s_sub_u32', sHS_, sHS_, s(4)))
            E(salu('s_sub_u32', sJQ, sHS_, sHP_)); E(shl(sJQ, sJQ, 8)); E(salu('s_sub_u32', sJQ, sJQ, 3 * 128))
        E(shl(sQ0, sHP_, 8))
        E(mul(sQA, sWAVE, 64 * 8192)); E(add(sQA, sQA, sQ0))
        E(shl(sQC, sWAVE, 16)); E(add(sQC, sQC, sQ0)); E(add(sQC, sQC, 256 * 8192))
        E(shr(s(3), sWAVE, 1)); E(shl(s(3), s(3), 13)); E(salu('s_and_b32', s(4), sWAVE, 1)); E(shl(s(4), s(4), 11)); E(add(s(3), s(3), s(4)))
        E(salu('s_sub_u32', s(3), s(3), 64)); E(shl(s(4), sWAVE, 11))
        for e, (h_, pfr) in enumerate([(sHP_, sPFa), (sHS_, sPFb)][:2 if kind == 'A' else 1]):
            E(shr(pfr, h_, 1)); E(shl(pfr, pfr, 19)); E(add(pfr, pfr, 1536 * 256))
            E(add(sKb[e], pfr, s(4))); E(add(sVb[e], pfr, s(3)))
        E(mul(sPFc, sROLE, 384 * 1152) if kind == 'A' else mul(sPFc, sHP_, 128 * 1152))
        if kind == 'A':
            E(mul(sHP_, sHP_, 128 * 1152)); E(mul(sHS_, sHS_, 128 * 1152))
            E(mul(sOA, sWAVE, 32 * 1152)); E(add(sOA1, sOA, sHS_)); E(add(sOA, sOA, sHP_))
            E(salu('s_sub_u32', sOA1, sOA1, 64 * 1152)); E(add(sT3, sOA, 192 * 1152)); E(salu('s_cmp_lt_u32', None, sWAVE, 2)); E(csel(sOA1, sT3, sOA1))
            E(shr(s(3), sWAVE, 1)); E(shl(s(3), s(3), 2)); E(salu('s_and_b32', s(4), sWAVE, 1)); E(add(s(3), s(3), s(4)))
            E(mul(sOB, s(3), 8 * 1152)); E(add(sOB1, sOB, sHS_)); E(add(sOB1, sOB1, 64 * 1152)); E(add(sOB, sOB, sHP_)); E(add(sOB, sOB, 128 * 1152))
        else:
            E(mul(sOA, sWAVE, 64 * 1152)); E(add(sOA, sOA, sPFc))
    elif kind in 'AM':
        E(mul(sT3, sROLE, 3 * 256))
        E(mul(sQA, sWAVE, 64 * 8192)); E(add(sQA, sQA, sT3))
        E(shl(sQC, sWAVE, 16)); E(add(sQC, sQC, sT3)); E(add(sQC, sQC, 256 * 8192))
        E(shr(s(3), sWAVE, 1)); E(shl(s(3), s(3), 13)); E(salu('s_and_b32', s(4), sWAVE, 1)); E(shl(s(4), s(4), 11)); E(add(s(3), s(3), s(4)))
        E(salu('s_sub_u32', s(3), s(3), 64)); E(shl(s(4), sWAVE, 11))
        if MS: E(shl(s(3), sWAVE, 12))
        for e in range(3 if kind == 'A' else 2):
            E(mul(sT3, sROLE, 3)); E(add(sT3, sT3, e)); E(shr(sT3, sT3, 1)); E(shl(sT3, sT3, 19)); E(add(sT3, sT3, 1536 * 256))
            if e == 0: E(smov(sPFa, sT3))
            if e == (2 if kind == 'A' else 1): E(smov(sPFb, sT3))
            E(add(sKb[e], sT3, s(4))); E(add(sVb[e], sT3, s(3)))
        E(mul(sPFc, sROLE, 384 * 1152))
        if kind == 'A':
            E(mul(sOA, sWAVE, 32 * 1152)); E(add(sOA, sOA, sPFc))
            E(shr(s(3), sWAVE, 1)); E(shl(s(3), s(3), 2)); E(salu('s_and_b32', s(4), sWAVE, 1)); E(add(s(3), s(3), s(4)))
            E(mul(sOB, s(3), 8 * 1152)); E(add(sOB, sOB, sPFc)); E(add(sOB, sOB, 128 * 1152))
        else:
            E(mul(sOA, sWAVE, 64 * 1152)); E(add(sOA, sOA, sPFc))
    if kind in 'FM':
        if kind == 'F':
            E(salu('s_sub_u32', s(3), sROLE, NA + NM)); E(mul(sPF1, s(3), 13 * 128)); E(shl(sPF1h, s(3), 6)); E(add(sPF1h, sPF1h, 69 * 128))
        elif CFG.get('l844'):
            E(mul(sPF1, sROLE, 5 * 128)); E(add(sPF1, sPF1, (52 - 40) * 128)); E(smov(sPF1h, sPF1))
        else:
            E(smov(sPF1, f_fullcol(5) * 2)); E(smov(sPF1h, f_halfcol(5) * 2))
        E(mul(sHA, sWAVE, 64 * 9216)); E(add(sHA, sHA, sPF1))
        E(mul(sHC, sWAVE, 8 * 9216)); E(add(sHC, sHC, sPF1)); E(add(sHC, sHC, 256 * 9216))
        E(mul(sHH, sWAVE, 128 * 9216)); E(add(sHH, sHH, sPF1h))
        E(mul(sHHC, sWAVE, 16 * 9216)); E(add(sHHC, sHHC, sPF1h)); E(add(sHHC, sHHC, 512 * 9216))
        E(mul(sPF2, sPF1, 576)); E(mul(sPF2h, sPF1h, 576))
        E(mul(sFA, sWAVE, 64 * 1152)); E(add(sFA, sFA, sPF2))
        if MS:
            E(salu('s_and_b32', s(3), sWAVE, 1)); E(shl(s(3), s(3), 1)); E(shr(s(4), sWAVE, 1)); E(add(s(3), s(3), s(4))); E(mul(sFC, s(3), 8 * 1152))
        else: E(mul(sFC, sWAVE, 4 * 1152))
        E(add(sFS, sFC, sPF2h)); E(add(sFC, sFC, sPF2)); E(add(sFC, sFC, 256 * 1152))
    if CFG['pf'] >= 3:
        if kind in 'AM': E(mul(sT3, sROLE, 3 * 256) if not CFG.get('pair') else smov(sT3, sQ0))
        E(pf_row_setup(kind, 8192 if kind in 'AM' else 9216, 18, sT3 if kind in 'AM' else sPF1, 0))
        f_ = pf_row(kind, sWQ if kind in 'AM' else sW1)
        early_pf = [f_()[1]] + f_() + f_()
    E(add(sT3, sROLE, NS - NA if kind == 'F' else 0))
    E(mul(sSt, sT3, PSTR())); E(shl(sT3, sRB, 2)); E(add(sT3, sT3, sWAVE)); E(mul(sT3, sT3, PWAVE)); E(add(sSt, sSt, sT3))
    if kind == 'M': E(add(sSt2, sSt, (NS - NA) * PSTR()))
    if CFG['fused']:
        E(shl(sT2, sRB, 14)); E(add(sT2, sT2, CTRL))
        E(add(sT3, sROLE, NS - NA if kind == 'F' else 0)); E(shl(sT3, sT3, 2)); E(add(sT3, sT3, sT2))
        E(salu('s_cmp_eq_u32', None, sWAVE, 0)); E(csel(sT3, sT3, OOB)); E(csel(sT2, sT2, OOB))
        E(valu('v_and_b32', v(24), 15, lane)); E(valu('v_lshlrev_b32', v(25), 7, v(24))); E(valu('v_add_u32', v(25), 128, v(25)))
        E(raw("v_cmp_eq_u32 vcc, 0, v24", 'valu', wr=['vcc'], rd=[v(24)])); E(valu('v_cndmask_b32', v(25), v(25), 0, 'vcc') if False else raw("v_cndmask_b32 v25, v25, v24, vcc", 'valu', wr=[v(25)], rd=[v(25), v(24), 'vcc']))
        E(valu('v_lshrrev_b32', v(26), 4, lane)); E(valu('v_lshl_add_u32', v(25), v(26), 2 + (NS - NA).bit_length() - 1, v(25))); E(valu('v_add_u32', v(25), sT3, v(25)))
        E(raw(f"s_mov_b64 vcc, {hex(((1 << (NA + 1)) - 1) * (0x10001 if kind == 'M' else 1))}", 'salu', wr=['vcc'])); E(valu('v_mov_b32', vCT, OOB)); E(nop(1))
        E(raw(f"v_cndmask_b32 {vCT}, {vCT}, v25, vcc", 'valu', wr=[vCT], rd=[vCT, v(25), 'vcc']))
        E(valu('v_mov_b32', v(24), vCT))
        assert not (CFG.get('l844') or CFG.get('four') or CFG.get('nof'))
        E(add(sT2, sT2, 4 * (NPART + 1)))
        def flag(lane_, item):
            E(raw(f"s_lshl2_add_u32 {sT3}, {item}, {sT2}", 'salu', wr=[sT3], rd=[item, sT2]))
            E(raw(f"v_writelane_b32 v24, {sT3}, {lane_}", 'valu', wr=[v(24)], rd=[sT3, v(24)]))
        if kind == 'A':
            tab3 = [28, 29, 22, 30, 31, 21, 32, 33, 34, 35]
            flag(32, sROLE); E(add(s(4), sROLE, 10)); flag(33, s(4))
            E(smov(s(98), sum((tab3[i] - 20) << (4 * i) for i in range(8)))); E(smov(s(99), (tab3[8] - 20) | ((tab3[9] - 20) << 4)))
            E(shl(s(4), sROLE, 2)); E(salu('s_lshr_b64', s(98, 2), s(98, 2), s(4))); E(salu('s_and_b32', s(4), s(98), 15)); E(add(s(4), s(4), 20)); flag(34, s(4))
        else:
            E(smov(s(4), 20) if kind == 'M' else add(s(4), sROLE, 12)); flag(32, s(4))
        E(valu('v_mov_b32', v(25), 0))
        z = bstore('buffer_store_dword', v(25), v(24), sWS, 0, flags='sc1'); z.tag = 'zero'; E(z)
        E(shl(sT2, sRB, 4)); E(salu('s_cmp_eq_u32', None, sWAVE, 0)); E(csel(sT2, sT2, 256))
        E(valu('v_mov_b32', v(23), 256)); E(raw(f"v_writelane_b32 v23, {sT2}, 0", 'valu', wr=[v(23)], rd=[sT2, v(23)]))
    T_ = [v(24), v(25), v(26), v(27), v(28), v(29)]
    q, r, c4, rb1 = T_[0], T_[1], T_[2], T_[3]
    E(valu('v_lshrrev_b32', q, 4, lane)); E(valu('v_bfe_u32', r, lane, 2, 2)); E(valu('v_and_b32', c4, 3, lane)); E(valu('v_bfe_u32', rb1, lane, 3, 1))
    E(valu('v_and_b32', T_[4], 7, lane)); E(valu('v_bfe_u32', T_[5], lane, 4, 1)); E(valu('v_lshlrev_b32', T_[5], 1, T_[5]))
    E(valu('v_xor_b32', T_[4], T_[4], T_[5])); E(valu('v_lshlrev_b32', vSWZ, 4, T_[4]))
    E(valu('v_lshrrev_b32', T_[4], 5, lane)); E(valu('v_and_b32', T_[5], 3, vROWN)); E(valu('v_lshl_add_u32', vROWP, T_[4], 4, T_[5]))
    E(smov(sT2, PP)); E(valu('v_mul_u32_u24', T_[4], sT2, q)); E(valu('v_lshl_add_u32', T_[4], r, 7, T_[4]))
    E(valu('v_lshl_add_u32', T_[4], c4, 3, T_[4])); E(valu('v_lshl_add_u32', vRW[0][0], rb1, 5, T_[4]))
    E(valu('v_mov_b32', vDP, vRW[0][0]))
    if MS:
        E(valu('v_and_b32', T_[4], 7, lane)); E(valu('v_bfe_u32', T_[5], lane, 4, 1)); E(valu('v_lshlrev_b32', T_[5], 2, T_[5]))
        E(valu('v_xor_b32', T_[4], T_[4], T_[5])); E(valu('v_lshlrev_b32', vSWZM, 4, T_[4]))
        E(valu('v_bfe_u32', q, lane, 4, 1)); E(valu('v_lshlrev_b32', q, 5, q))
        E(valu('v_and_b32', T_[4], 1, lane)); E(valu('v_lshl_add_u32', q, T_[4], 4, q))
        E(valu('v_bfe_u32', T_[4], lane, 1, 1)); E(valu('v_lshl_add_u32', q, T_[4], 3, q))
        E(valu('v_lshrrev_b32', T_[5], 5, lane))
        E(smov(sT2, PP)); E(valu('v_mad_u32_u24', T_[4], T_[5], sT2, q)); E(valu('v_lshl_add_u32', T_[4], r, 7, T_[4]))
        E(valu('v_lshl_add_u32', vRW[0][0], rb1, 6, T_[4])); E(valu('v_xor_b32', rb1, 1, rb1)); E(valu('v_lshl_add_u32', vRW[0][1], rb1, 6, T_[4]))
        if kind in 'FM':
            E(valu('v_lshl_add_u32', vRH[0], T_[5], 9, q)); E(valu('v_lshl_add_u32', vRH[0], r, 6, vRH[0]))
            E(valu('v_lshlrev_b32', T_[4], 4, c4)); E(valu('v_lshrrev_b32', T_[5], 2, lane)); E(smov(sT2, 9216))
            E(valu('v_mad_u32_u24', vOFFH, T_[5], sT2, T_[4]))
        E(valu('v_lshrrev_b32', q, 4, lane))
    else:
        E(valu('v_xor_b32', vRW[0][1], 32, vRW[0][0]))
    for b in (1, 2):
        for T in range(2): E(valu('v_add_u32', vRW[b][T], 65536 * b, vRW[0][T]))
    if kind in 'FM' and not MS:
        E(valu('v_lshlrev_b32', T_[4], 9, q)); E(valu('v_lshl_add_u32', T_[4], r, 6, T_[4])); E(valu('v_lshl_add_u32', T_[4], c4, 3, T_[4]))
        E(valu('v_and_b32', T_[5], 1, q)); E(valu('v_lshl_add_u32', vRH[0], T_[5], 5, T_[4])); E(valu('v_xor_b32', vRH[1], 32, vRH[0]))
        E(valu('v_lshrrev_b32', T_[4], 5, lane)); E(valu('v_lshlrev_b32', T_[4], 1, T_[4])); E(valu('v_xor_b32', T_[4], T_[4], c4))
        E(valu('v_lshlrev_b32', T_[4], 4, T_[4])); E(valu('v_lshrrev_b32', T_[5], 2, lane)); E(smov(sT2, 9216))
        E(valu('v_mad_u32_u24', vOFFH, T_[5], sT2, T_[4]))
    if kind in 'AM':
        E(valu('v_and_b32', T_[4], 15, lane)); E(valu('v_xor_b32', T_[4], T_[4], q)); E(valu('v_lshlrev_b32', T_[4], 4, T_[4]))
        E(valu('v_lshl_add_u32', vOFFK, q, 8, T_[4]))
    E(set_offw(8192 if kind in 'AM' else 9216, 'M' if MS else 'S'))
    if MS:
        XA = [v(20), v(21), v(22), v(39)]
        E(valu('v_and_b32', T_[4], 31, lane)); E(valu('v_bfe_u32', T_[5], lane, 1, 3)); E(valu('v_lshrrev_b32', q, 5, lane)); E(valu('v_xor_b32', T_[5], T_[5], q))
        E(valu('v_lshlrev_b32', T_[4], 7, T_[4])); E(valu('v_add_u32', T_[4], s(6), T_[4]))
        E(valu('v_lshl_add_u32', XA[0], T_[5], 4, T_[4]))
        for tt in range(1, 4): E(valu('v_xor_b32', XA[tt], 32 * tt, XA[0]))
    else:
        E(valu('v_and_b32', T_[4], 15, lane)); E(valu('v_bfe_u32', T_[5], lane, 1, 3)); E(valu('v_xor_b32', T_[5], T_[5], q))
        E(valu('v_lshlrev_b32', T_[4], 7, T_[4])); E(valu('v_add_u32', T_[4], s(6), T_[4]))
        E(valu('v_lshl_add_u32', v(20), T_[5], 4, T_[4])); E(valu('v_xor_b32', v(21), 64, v(20)))
        if kind in 'AM':
            E(smov(sT2, PP)); E(valu('v_mul_u32_u24', v(22), sT2, r)); E(valu('v_lshl_add_u32', v(22), c4, 8, v(22)))
            E(valu('v_xor_b32', T_[4], q, c4)); E(valu('v_lshl_add_u32', v(22), T_[4], 4, v(22)))
    E(valu('v_lshlrev_b32', vLANE16, 4, lane))
    if CFG['stamps'] == 2: E(valu('v_mov_b32', vSTAMP, 0))
    if CFG['fused'] and CFG.get('rep') and kind in 'FM':
        E(rep_addr(kind, v(24), v(25))); E(valu('v_mov_b32', v(25), 0))
        z = bstore('buffer_store_dword', v(25), v(24), sWS, 0, flags='sc1'); z.tag = 'zero'; E(z)
    SA = 28
    for i in range(8): E(valu('v_mov_b32', v(SA + i), 0))
    E(smov(sT2, 0x3f803f80))
    def stats(j):
        for tt in range(2):
            for g in range(2):
                for qd in range(4):
                    x = X(2 * j + tt, g)[qd]
                    E(valu('v_dot2c_f32_bf16', v(SA + 2 * g + (qd & 1)), sT2, x, rmw=True))
                    E(valu('v_dot2c_f32_bf16', v(SA + 4 + 2 * g + (qd & 1)), x, x, rmw=True))
    PS(57)
    for j in range(9):
        E(waitvm(p.vm_wait_for(lambda t: t == ('x', j))))
        if j == 0: PS(58)
        if MS:
            for tt in range(4): E(ds_b128(XM(4 * j + tt), XA[tt], j * 4096))
        else:
            for tt in range(2):
                for g in range(2): E(ds_b128(X(2 * j + tt, g), v(20 + tt), j * 4096 + g * 2048))
        if j + CFG['xe'] < 9: E(xdma(j + CFG['xe']))
        if CFG['pf'] >= 3 and CFG.get('epf', 1) == 1 and j == max(8 - CFG['xe'], 0): E(early_pf)
        if j >= 1:
            E(waitlg(4)); stats(j - 1)
    E(waitlg(0)); PS(59); E(barrier())
    if CFG.get('codepf', 3) == 2: E(I(f"global_load_dword {vDUM}, v46, s[100:101]", 'vload', wr=vDUM.regs(), rd=vr(46) + sr(100, 2), tag='pf'))
    if CFG['pf'] >= 3 and CFG.get('epf', 1) == 2: E(early_pf)
    pend = []
    for k in range(3):
        st = R.stages[k]
        if st.pre_dma: pend.append(st.pre_dma())
        pend += st.dma(k, False)
    d0 = CFG.get('d0', 9)
    for it in pend[:d0]: E(it)
    pend = pend[d0:]
    PS(60)
    stats(8)
    acc4 = [v(28), v(30), v(32), v(34)]
    for x in acc4: E(valu('v_add_f32', x, x, v(x.n + 1)))
    if MS:
        for b_ in (0, 2):
            E(valu('v_add_f32', acc4[b_], acc4[b_], acc4[b_ + 1]))
        for b_ in (0, 2): E(valu('v_mov_b32', acc4[b_ + 1], acc4[b_]))
    for op in (('v_permlane32_swap_b32',) if MS else ('v_permlane16_swap_b32', 'v_permlane32_swap_b32')):
        for x in acc4: E(valu('v_mov_b32', v(x.n + 1), x))
        for x in acc4: E(valu(op, x, v(x.n + 1), rmw=True, extra_wr=[v(x.n + 1)]))
        for x in acc4: E(valu('v_add_f32', x, x, v(x.n + 1)))
    for x in acc4: E(valu('v_mul_f32', x, f2u(1.0 / 576), x))
    for g in range(2): E(valu('v_fma_f32', acc4[2 + g], '-' + str(acc4[g]), acc4[g], acc4[2 + g]))
    for g in range(2): E(valu('v_max_f32', acc4[2 + g], 0, acc4[2 + g]))
    for g in range(2): E(valu('v_add_f32', acc4[2 + g], f2u(1e-5), acc4[2 + g]))
    for g in range(2): E(valu('v_rsq_f32', acc4[2 + g], acc4[2 + g]))
    for g in range(2): E(valu('v_mul_f32', acc4[2 + g], f2u(-LOG2E), acc4[2 + g]))
    for g in range(2): E(valu('v_mov_b32', v(20 + g), acc4[g]))
    for g in range(2): E(valu('v_mul_f32', acc4[g], '-' + str(acc4[g]), acc4[2 + g], extra_rd=[acc4[g]]))
    E(smov(sT2, 0xffff0000))
    if CFG.get('dotn'):
        cl = [v(29), v(31)]; ch = [v(33), v(35)]
        for g in range(2): E(valu('v_cvt_pk_bf16_f32', cl[g], acc4[2 + g], 0))
        for g in range(2): E(valu('v_lshlrev_b32', ch[g], 16, cl[g]))
        for g in range(2): E(valu('v_mul_f32', acc4[g], '-' + str(v(20 + g)), ch[g], extra_rd=[v(20 + g)]))
    PS(61)
    n = 0
    for t in range(18):
        for g in range(2):
            tps = [v(24, 2), v(26, 2), v(16, 2), v(18, 2)]
            x = X(t, g)
            if CFG.get('dotn'):
                for qd in range(4):
                    E(valu('v_dot2_f32_bf16', tps[qd][0], x[qd], cl[g], acc4[g])); E(valu('v_dot2_f32_bf16', tps[qd][1], x[qd], ch[g], acc4[g]))
            else:
                for qd in range(4):
                    E(valu('v_lshlrev_b32', tps[qd][0], 16, x[qd])); E(valu('v_and_b32', tps[qd][1], sT2, x[qd]))
                for qd in range(4): E(valu('v_pk_fma_f32', tps[qd], tps[qd], v(acc4[2 + g].n, 2), v(acc4[g].n, 2), mods='op_sel_hi:[1,0,0]'))
            for qd in range(4): E(valu('v_cvt_pk_bf16_f32', x[qd], tps[qd][0], tps[qd][1]))
            if pend and n % CFG.get('dn', 2) == 0: E(pend.pop(0))
            n += 1
    for it in pend: E(it)
    if CFG['fused']:
        E(valu('v_mov_b32', v(24), 1)); E(waitvm(p.vm_wait_for(lambda t: t == 'zero')))
        E(I(f"buffer_atomic_add v24, v23, {sDBG}, 0 offen sc1", 'vstore', rd=vr(23, 2) + sDBG.regs(), units=3, tag='init'))
    for _ in range(CFG.get('idle', 0)): E(raw("s_sleep 16"))
    PS(62)
    if kind in 'AM' and MS:
        ln, m_, key, t_ = v(16), v(17), v(18), v(19)
        E([valu('v_lshrrev_b32', ln, 4, vLANE16), valu('v_and_b32', key, 19, ln),
           valu('v_bfe_u32', t_, ln, 2, 1), valu('v_lshl_add_u32', key, t_, 3, key),
           valu('v_bfe_u32', t_, ln, 3, 1), valu('v_lshl_add_u32', key, t_, 2, key),
           valu('v_lshrrev_b32', m_, 2, key), smov(sT2, PP), valu('v_mul_u32_u24', m_, sT2, m_),
           valu('v_and_b32', key, 3, key), valu('v_lshl_add_u32', m_, key, 8, m_),
           valu('v_lshrrev_b32', t_, 5, ln), valu('v_xor_b32', t_, t_, key),
           valu('v_lshl_add_u32', vRKM[0], t_, 4, m_), valu('v_xor_b32', vRKM[1], 32, vRKM[0])])
    elif kind in 'AM':
        E(valu('v_mov_b32', vRK[0], v(22))); E(valu('v_add_u32', vRK[1], 65536, v(22))); E(valu('v_add_u32', vRK[2], 131072, v(22)))
    if CFG['stamps']: E(raw(f"v_writelane_b32 {vSTAMP}, s96, 55", 'valu', wr=[vSTAMP], rd=[s(96)])) if kind != 'A' else None
    if CFG['stamps']: E(smov(s(43), s(96)))
    nlr = {'F': 10, 'A': 11, 'M': 8}[kind]
    if kind != 'M': E([valu('v_lshrrev_b32', vPF2, 16, vTID), valu('v_and_b32', vPFR, 63, vTID), valu('v_min_u32', vPFR, nlr - 1, vPFR),
       valu('v_mad_u32_u24', vPFR, vPF2, nlr, vPFR), valu('v_lshlrev_b32', vPFR, 7, vPFR)])
    if CFG['stamps']: E(smov(s(97), 0))
    E(smov(sLN0, f2u(-1.0 / math.sqrt(128.0))))

def slow_check(R, heads, base2):
    def f():
        p = R.p; E = p.emit
        t = v(254); lo = v(255)
        E(valu('v_mov_b32', lo, f2u(2.0 ** -40))); E(smov(sT3, f2u(2.0 ** 40)))
        for (hd, Q, O) in heads:
            L = f"L_{R.kind}_slow{hd}"
            if CFG['shape'] == 'M':
                E(valu('v_med3_f32', t, Lsave[hd], sT3, lo))
                E(raw(f"v_cmp_neq_f32 vcc, {t}, {Lsave[hd]}", 'valu', wr=['vcc'], rd=[t, Lsave[hd]])); E(nop(4))
            else:
                E(valu('v_med3_f32', t, Lsave[2 * hd], sT3, lo))
                E(raw(f"v_cmp_neq_f32 s[98:99], {t}, {Lsave[2 * hd]}", 'valu', wr=[s(98, 2)], rd=[t, Lsave[2 * hd]]))
                E(valu('v_med3_f32', t, Lsave[2 * hd + 1], sT3, lo))
                E(raw(f"v_cmp_neq_f32 vcc, {t}, {Lsave[2 * hd + 1]}", 'valu', wr=['vcc'], rd=[t, Lsave[2 * hd + 1]])); E(nop(4))
                E(raw("s_or_b64 vcc, vcc, s[98:99]", 'salu', wr=['vcc'], rd=['vcc', s(98, 2)])); E(nop(1))
            if CFG.get('force_slow'): E(raw(f"s_mov_b64 vcc, -1", 'salu', wr=['vcc']))
            E(raw(f"s_cbranch_vccz {L}_ret"))
            E(raw(f"s_call_b64 {sRET}, {L}"))
            E(label(f"{L}_ret"))
            R.slow.append((slow_path if CFG['shape'] == 'M' else slow_pathS)(L, hd, Q, O, base2))
        E(nop(1))
    return f

def slow_path(L, hd, Q, Odst, b2):
    p = Prog(); E = p.emit
    O = v(48, 64); S = v(b2, 16); P = v(b2 + 16, 8); F = v(b2 + 24, 16)
    vK, vV, vM, vL, t0, t1 = [v(b2 + 40 + i) for i in range(6)]
    sB, sJ, sO = s(98), s(99), s(97)
    E(I(".p2align 2", 'label')); E(label(L))
    E(nop(7)); E(nop(7))
    E([valu('v_lshrrev_b32', t0, 4, vLANE16), valu('v_and_b32', vK, 19, t0), valu('v_bfe_u32', t1, t0, 2, 1), valu('v_lshl_add_u32', vK, t1, 3, vK),
       valu('v_bfe_u32', t1, t0, 3, 1), valu('v_lshl_add_u32', vK, t1, 2, vK), valu('v_lshrrev_b32', t1, 5, t0),
       valu('v_lshlrev_b32', vV, 1, vK), valu('v_lshl_add_u32', vV, t1, 11, vV),
       valu('v_lshlrev_b32', vK, 8, vK), valu('v_lshl_add_u32', vK, t1, 4, vK)])
    E([mul(sB, sROLE, 3), add(sB, sB, hd), shr(sB, sB, 1), shl(sB, sB, 19), add(sB, sB, 1536 * 256)])
    def qk():
        for half in range(2):
            for t in range(4): E(bload('buffer_load_dwordx4', F.sub(4 * t, 4), vK, sK, sO, (4 * half + t) * 32))
            E(waitvm(0))
            for t in range(4):
                tt = 4 * half + t
                E(mfma(S, F.sub(4 * t, 4), Q.sub(4 * tt, 4), 0 if tt == 0 else S))
            E(nop(7)); E(nop(7))
    E(valu('v_mov_b32', vM, 0xff800000)); E(smov(sJ, 0))
    E(label(L + "_a"))
    E(add(sO, sB, sJ)); qk()
    for i in range(0, 16, 2): E(valu('v_max3_f32', vM, vM, S[i], S[i + 1]))
    E(add(sJ, sJ, 8192)); E(salu('s_cmp_lt_u32', None, sJ, 16 * 8192)); E(raw(f"s_cbranch_scc1 {L}_a"))
    E(valu('v_mov_b32', t0, vM)); E(valu('v_permlane32_swap_b32', vM, t0, rmw=True, extra_wr=[t0])); E(valu('v_max_f32', vM, vM, t0))
    for i in range(64): E(valu('v_mov_b32', O[i], 0))
    E(valu('v_mov_b32', vL, 0)); E(smov(sJ, 0))
    E(label(L + "_b"))
    E(add(sO, sB, sJ)); qk()
    for i in range(16): E(valu('v_sub_f32', S[i], S[i], vM))
    for i in range(16): E(valu('v_exp_f32', S[i], S[i]))
    for i in range(16): E(valu('v_add_f32', vL, vL, S[i]))
    for q in range(8): E(valu('v_cvt_pk_bf16_f32', P[q], S[2 * q], S[2 * q + 1]))
    for u in range(2):
        for tp in range(2):
            for tq in range(2):
                for j in range(8):
                    E(bload('buffer_load_ushort', F[8 * (j & 1) + 4 * tq + j // 2], vV, sV, sO, j * 256 + (2 * tp + tq) * 64))
            E(waitvm(0))
            for i in range(8): E(valu('v_lshl_or_b32', F[i], F[8 + i], 16, F[i]))
            for tq in range(2):
                D_ = O.sub(16 * (2 * tp + tq), 16)
                E(mfma(D_, F.sub(4 * tq, 4), P.sub(4 * u, 4), D_))
            E(nop(7))
        if u == 0: E(add(sO, sO, 4096))
    E(add(sJ, sJ, 8192)); E(salu('s_cmp_lt_u32', None, sJ, 16 * 8192)); E(raw(f"s_cbranch_scc1 {L}_b"))
    E(nop(7)); E(nop(7))
    E(valu('v_mov_b32', t0, vL)); E(valu('v_permlane32_swap_b32', vL, t0, rmw=True, extra_wr=[t0])); E(valu('v_add_f32', vL, vL, t0))
    E(valu('v_rcp_f32', t0, vL))
    for tau in range(4):
        A_ = O.sub(16 * tau, 16)
        for e in range(16): E(valu('v_mul_f32', A_[e], A_[e], t0))
        for q in range(8): E(valu('v_cvt_pk_bf16_f32', A_[2 * q], A_[2 * q], A_[2 * q + 1]))
        for q in range(4): E(valu('v_permlane16_swap_b32', A_[2 * q], A_[2 * q + 8], rmw=True, extra_wr=[A_[2 * q + 8]]))
        for q in range(8): E(valu('v_accvgpr_write_b32', Odst[8 * tau + q], A_[2 * q]))
    E(nop(1)); E(raw(f"s_setpc_b64 {sRET}"))
    return p

def slow_pathS(L, hd, Q, Odst, b2):
    p = Prog(); E = p.emit
    ob = 48; kv = None
    if isinstance(b2, tuple): b2, ob = b2
    if isinstance(Odst, tuple):
        OFf, kv = Odst
        class _D:
            def __getitem__(s_, i): return OFf(i // 8)[i % 8]
        Odst = _D()
    O = v(ob, 64); S = v(b2, 16); P = v(b2 + 16, 8); F = v(b2 + 24, 16)
    vK, vV, t0, t1 = [v(b2 + 40 + i) for i in range(4)]
    vM = [v(b2 + 44), v(b2 + 45)]; vL = [v(b2 + 46), v(b2 + 47)]
    sB, sJ, sO = s(98), s(99), s(97)
    E(I(".p2align 2", 'label')); E(label(L))
    E(nop(7)); E(nop(7))
    E([valu('v_lshrrev_b32', t0, 4, vLANE16), valu('v_and_b32', t1, 15, t0), valu('v_lshrrev_b32', t0, 4, t0),
       valu('v_lshlrev_b32', vK, 8, t1), valu('v_lshl_add_u32', vK, t0, 4, vK),
       valu('v_lshlrev_b32', vV, 1, t1), valu('v_lshl_add_u32', vV, t0, 10, vV)])
    if kv is not None: E(smov(sB, kv))
    else: E([mul(sB, sROLE, 3), add(sB, sB, hd), shr(sB, sB, 1), shl(sB, sB, 19), add(sB, sB, 1536 * 256)])
    def qk():
        for T in range(2):
            E(add(sO, sB, sJ)) if T == 0 else E(add(sO, sO, 4096))
            for t in range(4): E(bload('buffer_load_dwordx4', F.sub(4 * t, 4), vK, sK, sO, t * 64))
            E(waitvm(0))
            for t in range(4):
                for g_ in range(2):
                    D_ = S.sub(8 * T + 4 * g_, 4)
                    E(mfma(D_, F.sub(4 * t, 4), Q.sub(8 * t + 4 * g_, 4), 0 if t == 0 else D_))
            E(nop(7)); E(nop(3))
    def allq(x, op):
        for sw in ('v_permlane16_swap_b32', 'v_permlane32_swap_b32'):
            E(valu('v_mov_b32', t0, x)); E(valu(sw, x, t0, rmw=True, extra_wr=[t0])); E(valu(op, x, x, t0))
    for g_ in range(2): E(valu('v_mov_b32', vM[g_], 0xff800000))
    E(smov(sJ, 0))
    E(label(L + "_a"))
    qk()
    for T in range(2):
        for g_ in range(2):
            for i in (0, 2): E(valu('v_max3_f32', vM[g_], vM[g_], S[8 * T + 4 * g_ + i], S[8 * T + 4 * g_ + i + 1]))
    E(add(sJ, sJ, 8192)); E(salu('s_cmp_lt_u32', None, sJ, 16 * 8192)); E(raw(f"s_cbranch_scc1 {L}_a"))
    for g_ in range(2): allq(vM[g_], 'v_max_f32')
    for i in range(64): E(valu('v_mov_b32', O[i], 0))
    for g_ in range(2): E(valu('v_mov_b32', vL[g_], 0))
    E(smov(sJ, 0))
    E(label(L + "_b"))
    qk()
    for i in range(16): E(valu('v_sub_f32', S[i], S[i], vM[(i >> 2) & 1]))
    for i in range(16): E(valu('v_exp_f32', S[i], S[i]))
    for i in range(16): E(valu('v_add_f32', vL[(i >> 2) & 1], vL[(i >> 2) & 1], S[i]))
    for g_ in range(2):
        for T in range(2):
            for k in range(2): E(valu('v_cvt_pk_bf16_f32', P[4 * g_ + 2 * T + k], S[8 * T + 4 * g_ + 2 * k], S[8 * T + 4 * g_ + 2 * k + 1]))
    for tp in range(4):
        for jh in range(2):
            E(add(sO, sB, sJ)) if jh == 0 else E(add(sO, sO, 4096))
            for tq in range(2):
                for jl in range(4):
                    j = 4 * jh + jl
                    E(bload('buffer_load_ushort', F[8 * (j & 1) + 4 * tq + j // 2], vV, sV, sO, jl * 256 + (2 * tp + tq) * 32))
        E(waitvm(0))
        for i in range(8): E(valu('v_lshl_or_b32', F[i], F[8 + i], 16, F[i]))
        for tq in range(2):
            for g_ in range(2):
                D_ = O.sub(8 * (2 * tp + tq) + 4 * g_, 4)
                E(mfma(D_, F.sub(4 * tq, 4), P.sub(4 * g_, 4), D_))
        E(nop(7))
    E(add(sJ, sJ, 8192)); E(salu('s_cmp_lt_u32', None, sJ, 16 * 8192)); E(raw(f"s_cbranch_scc1 {L}_b"))
    E(nop(7)); E(nop(3))
    for g_ in range(2): allq(vL[g_], 'v_add_f32')
    for g_ in range(2): E(valu('v_rcp_f32', vL[g_], vL[g_]))
    for i in range(64): E(valu('v_mul_f32', O[i], O[i], vL[(i >> 2) & 1]))
    for kk in range(4):
        for g_ in range(2):
            for T in range(2):
                for c in range(2):
                    r = 8 * (2 * kk + T) + 4 * g_ + 2 * c
                    E(valu('v_cvt_pk_bf16_f32', O[r], O[r], O[r + 1])); E(valu('v_accvgpr_write_b32', Odst[8 * kk + 4 * g_ + 2 * T + c], O[r]))
    E(nop(1)); E(raw(f"s_setpc_b64 {sRET}"))
    return p

NREP = 6
sMD2 = s(84)
def rep_addr(kind, dst, t):
    return [shl(sT2, sRB, 14), add(sT2, sT2, CTRL + 2048), add(sT3, sROLE, NS - NA), shl(sT3, sT3, 2), add(sT2, sT2, sT3),
            salu('s_cmp_eq_u32', None, sWAVE, 0), csel(sT2, sT2, OOB),
            valu('v_lshlrev_b32', dst, 3, vLANE16), valu('v_add_u32', dst, sT2, dst), valu('v_mov_b32', t, OOB),
            raw(f"v_cmp_gt_u32 vcc, {hex(NA * NREP * 16)}, {vLANE16}", 'valu', wr=['vcc'], rd=[vLANE16]), valu('v_cndmask_b32', dst, t, dst, 'vcc')]
vCR = v(31)
def add_signals(R):
    P2 = [k for k, st in enumerate(R.stages) if st.name.startswith('P2')]
    def sig(first):
        def f():
            out = [valu('v_add_u32', vPRG, 1, vPRG)]
            return out + [bstore('buffer_store_dword', vPRG, vCT, sWS, 0, flags='sc1')]
        return f
    def sig7():
        return [valu('v_add_u32', vPRG, 1, vPRG), bstore('buffer_store_dword', vPRG, vCR, sWS, 0, flags='sc1'), bstore('buffer_store_dword', vPRG, vCT, sWS, 0, flags='sc1')]
    def chain(stages, base):
        firsts = [k for k in stages if R.stages[k].sub == 0]
        for c in range(8):
            k = firsts[c + 1] + CFG.get('siglag', {}).get(R.kind, 2)
            if k > stages[-1]: break
            R.stages[k].cover_st = base + c; R.stages[k].post_bar = sig(c == 0)
            if c == 7 and CFG.get('rep') and R.kind in 'FM': R.stages[k].post_bar = sig7
        if CFG.get('rep') and R.kind in 'FM': R.pf.setdefault(firsts[1], []).append(lambda: rep_addr(R.kind, vCR, vPF))
    chain(P2, 0)
    R.stages[P2[0]].post_bar = lambda: [valu('v_mov_b32', vPRG, 0)]

LDSC = 4 * SLOT
sAB = s(72, 2); sRM = s(74, 2); sCD = s(76, 2)
sRS, sRF, sSP, sC, sI, sPB, sPART, sOK, sPAR, sXW, sPWv, sTO = s(78), s(79), s(71), s(80), s(81), s(82), s(47), s(40), s(41), s(59), s(3), s(58)
sIT = [s(42), s(44), s(45)]; sXP = [s(46), s(60), s(61)]
sRET2 = s(66, 2)
vP, vD, vA, vO, vXO, vL4, vDO, vLA, vIT, vLD, vSC = [v(16 + i) for i in range(11)]
vX4 = v(28)
def s64(op, d, *src, scc_r=False): return salu(op, d, *src, scc_r=scc_r)
sPV = s(85)
def red_setup(kind):
    o = [shl(sPB, sRB, 14), add(sPB, sPB, CTRL), salu('s_cmp_eq_u32', None, sWAVE, 0), csel(sT3, 0, OOB),
         valu('v_lshrrev_b32', vL4, 2, vLANE16), valu('v_add_u32', vL4, sT3, vL4),
         valu('v_mov_b32', vSC, OOB), add(sT2, sT3, 4 * NPART), raw(f"v_writelane_b32 {vSC}, {sT2}, 0", 'valu', wr=[vSC], rd=[sT2, vSC]),
         valu('v_mov_b32', vS1, vSC), valu('v_min_u32', vL5, NPART * 16, vLANE16), valu('v_lshrrev_b32', vL5, 2, vL5), valu('v_add_u32', vL5, sT3, vL5),
         add(sT2, sT3, 252), raw(f"v_writelane_b32 {vSC}, {sT2}, 1", 'valu', wr=[vSC], rd=[sT2, vSC]),
         shl(sT2, sRB, 4), add(sT2, sT2, sT3), valu('v_mov_b32', vDO, 256), raw(f"v_writelane_b32 {vDO}, {sT2}, 0", 'valu', wr=[vDO], rd=[sT2, vDO])]
    if kind == 'A': o += [shl(sPV, sROLE, 7), add(sPV, sPV, 256), add(sPV, sPV, sPB)]
    return o
vS1, vL5 = v(29), v(30)
PRIV = [False]
def red_poll(shared=False):
    cnt = [valu('v_mov_b32', vD, 0), I(f"buffer_atomic_add {vD}, {vDO}, {sDBG}, 0 offen sc0 sc1", 'vload', wr=vD.regs(), rd=vD.regs() + vDO.regs() + sDBG.regs(), units=3)]
    if PRIV[0] and not shared:
        return [cnt, [bstore('buffer_store_dword', vS1, vS1, sWS, sPV, flags='sc1'), bload('buffer_load_dword', vP, vL5, sWS, sPV, flags='sc1')]]
    return [cnt, [bstore('buffer_store_dword', vSC, vSC, sWS, sPB, flags='sc1'), bload('buffer_load_dword', vP, vL4, sWS, sPB, flags='sc1')]]
vG = [v(28), v(29), v(30)]; vGA = v(31); vGP = v(27)
def l2pf_setup():
    return [valu('v_lshrrev_b32', vGP, 7, vLANE16), smov(sT2, PSTR()), valu('v_mul_lo_u32', vGA, vGP, sT2),
            valu('v_bfe_u32', vA, vLANE16, 4, 3), valu('v_lshl_add_u32', vGA, vA, 7, vGA), shl(sT2, sWAVE, 10), valu('v_add_u32', vGA, sT2, vGA),
            valu('v_lshlrev_b32', vGP, 2, vGP), valu('v_mov_b32', vA, OOB), smov(sT2, 68), raw(f"v_writelane_b32 {vA}, {sT2}, 0", 'valu', wr=[vA], rd=[vA, sT2])]
def l2pf_poll():
    st = bstore('buffer_store_dword', vA, vA, sWS, sPB, flags='sc1')
    out = [[st]]
    for i in range(3):
        ld = bload('buffer_load_dword', vG[i], vGP, sWS, sPB, 32 * i, flags='sc1'); ld.tag = 'gp'
        out.append([ld])
    return out
def l2pf_issue(R, dlt):
    out = [[add(sI, sROLE, dlt), salu('s_and_b32', sT2, sI, 3), shr(sC, sI, 2), shl(sT3, sRB, 2), add(sT2, sT2, sT3), mul(sSP, sT2, PWAVE),
            shl(sT3, sC, 12), add(sSP, sSP, sT3), valu('v_mov_b32', vO, OOB)]]
    for i in range(3):
        ld = bload('buffer_load_dword', vDUM, vG[i], sWS, sT2); ld.tag = 'pf'
        cmp_ = raw(f"v_cmp_lt_u32 vcc, {sC}, {vG[i]}", 'valu', wr=['vcc'], rd=[sC, vG[i]])
        pre = [cmp_]
        if i == 2: pre += [raw("s_and_b64 vcc, vcc, 0xff", 'salu', wr=['vcc'], rd=['vcc'])]
        out.append(pre + [add(sT2, sSP, 8 * i * PSTR()), valu('v_cndmask_b32', vG[i], vO, vGA, 'vcc'), ld])
    return out
def red_eval():
    o = [raw(f"v_cmp_ne_u32 vcc, 0, {vP}", 'valu', wr=['vcc'], rd=[vP]), nop(1),
         raw(f"s_lshr_b64 {sAB}, vcc, {NPART + 1}", 'salu', wr=[sAB], rd=['vcc']), salu('s_and_b32', sAB[1], sAB[1], 15), smov(sRS, 0), smov(sRF, 0)]
    for c in range(9):
        o += [raw(f"v_cmp_ge_u32 vcc, {c}, {vP}", 'valu', wr=['vcc'], rd=[vP]), nop(1),
              raw(f"s_and_b32 {sT2}, vcc_lo, {hex((1 << NS) - 1)}", 'salu', wr=[sT2], rd=['vcc']), csel(sRS, sRS, 4 * (c + 1)),
              raw(f"s_and_b32 {sT2}, vcc_lo, {hex((1 << NPART) - (1 << NS))}", 'salu', wr=[sT2], rd=['vcc']), csel(sRF, sRF, 4 * (c + 1))]
    return o
def red_pub(par):
    return [shl(sT2, sRF, 8), salu('s_or_b32', sT2, sT2, sRS), shl(sT3, sTO, 16), salu('s_or_b32', sT2, sT2, sT3),
            valu('v_mov_b32', vIT, sT2), valu('v_mov_b32', vLA, par), raw(f"ds_write_b32 {vLA}, {vIT}", 'other', rd=[vLA, vIT]), waitlg(0)]
def red_get(par):
    return [valu('v_mov_b32', vLA, par), raw(f"ds_read_b32 {vIT}, {vLA}", 'ds', wr=[vIT], rd=[vLA]), waitlg(0),
            valu('v_readfirstlane_b32', sT2, vIT), salu('s_and_b32', sRS, sT2, 255), salu('s_bfe_u32', sRF, sT2, (8 << 16) | 8), shr(sTO, sT2, 16)]
def red_early(p, n):
    E = p.emit
    E([smov(sRS, 0), smov(sRF, 0), smov(sOK, 0), smov(sTO, 0), smov(sPAR, LDSC + 4), nop(1)])
    E(salu('s_cmp_eq_u32', None, sWAVE, 0)); E(raw(f"s_cbranch_scc0 L_{n}_e2"))
    E(waitvm(p.vm_wait_for(lambda t: t == 'poll')))
    E(valu('v_readfirstlane_b32', sOK, vD))
    E(salu('s_cmp_ge_u32', None, sOK, 16)); E(raw(f"s_cbranch_scc0 L_{n}_e1"))
    E(red_eval())
    E(label(f"L_{n}_e1"))
    E(red_pub(LDSC))
    E(label(f"L_{n}_e2"))

def ld_part(L, ks, flags):
    out = []
    for k in ks:
        out.append([add(sT2, sPART, k * PSTR()), bload('buffer_load_dwordx4', v(L + 4 * k, 4), vLD, sWS, sT2, flags=flags)])
    return out
def ld_x(L, sXO_):
    if CFG.get('nox'): return [[valu('v_mov_b32', vA, OOB), bload('buffer_load_dwordx2', v(L + 4 * NPART, 2), vA, sX, sXO_)], [bload('buffer_load_dwordx2', v(L + 4 * NPART + 2, 2), vA, sX, sXO_, 32)]]
    return [[bload('buffer_load_dwordx2', v(L + 4 * NPART, 2), vXO, sX, sXO_)], [bload('buffer_load_dwordx2', v(L + 4 * NPART + 2, 2), vXO, sX, sXO_, 32)]]
RB_ = 48
sD0, sD1 = s(68), s(69)
def proc_sum(E, L, ks, after, loads):
    SA, FA, T = RB_, RB_ + 8, RB_ + 16
    issued = 0; ks = list(ks)
    E(smov(sT3, 0xffff0000))
    for j, k in enumerate(ks):
        if loads: E(loads.pop(0)); issued += 1
        E(waitvm(len(ks) - 1 - j + after + issued))
        acc = SA if k < NS else FA
        for q in range(4):
            x = v(L + 4 * k + q)
            if k in (0, NS):
                E(valu('v_lshlrev_b32', v(acc + 2 * q), 16, x)); E(valu('v_and_b32', v(acc + 2 * q + 1), sT3, x))
            else:
                E(valu('v_dot2c_f32_bf16', v(acc + 2 * q), sD0, x, rmw=True)); E(valu('v_dot2c_f32_bf16', v(acc + 2 * q + 1), sD1, x, rmw=True))
    return issued
def proc_fin(E, L, sXO_, xwait, loads):
    SA, FA, T = RB_, RB_ + 8, RB_ + 16; XR = L + 4 * NPART; issued = 0
    for e in range(8): E(valu('v_exp_f32', v(T + e), v(FA + e)))
    for e in range(8): E(valu('v_add_f32', v(T + e), 1.0, v(T + e)))
    while len(loads) > 1: E(loads.pop(0)); issued += 1
    for e in range(8): E(valu('v_rcp_f32', v(T + e), v(T + e)))
    for e in range(8): E(valu('v_mul_f32', v(FA + e), f2u(-math.log(2.0)), v(FA + e)))
    for e in range(8): E(valu('v_mul_f32', v(FA + e), v(FA + e), v(T + e)))
    while loads: E(loads.pop(0)); issued += 1
    if xwait is not None: E(waitvm(xwait + issued))
    for q in range(4):
        E(valu('v_lshlrev_b32', v(T + 2 * q), 16, v(XR + q))); E(valu('v_and_b32', v(T + 2 * q + 1), sT3, v(XR + q)))
    for e in range(8): E(valu('v_fma_f32', v(T + e), v(SA + e), v(FA + e), v(T + e)))
    for q in range(4): E(valu('v_cvt_pk_bf16_f32', v(XR + q), v(T + 2 * q), v(T + 2 * q + 1)))
    if CFG.get('out4', True):
        def dpp(d, src, bank): return I(f"v_mov_b32_dpp {d}, {src} row_ror:8 row_mask:0xf bank_mask:{bank}", 'perm', wr=d.regs(), rd=src.regs() + d.regs())
        for i in range(2): E(valu('v_permlane16_swap_b32', v(XR + i), v(XR + 2 + i), rmw=True, extra_wr=[v(XR + 2 + i)]))
        for i in range(2): E(valu('v_mov_b32', v(T + i), v(XR + i)))
        for i in range(2): E(dpp(v(XR + i), v(XR + 2 + i), '0xc'))
        for i in range(2): E(dpp(v(XR + 2 + i), v(T + i), '0x3'))
        E(bstore('buffer_store_dwordx4', v(XR, 4), vX4, sOUT, sXO_, flags=CFG.get('oflags', 'sc1')))
        E(valu('v_mov_b32', vO, OOB)); E(bstore('buffer_store_dword', vO, vO, sOUT, 0))
        return
    E(bstore('buffer_store_dwordx2', v(XR, 2), vXO, sOUT, sXO_)); E(bstore('buffer_store_dwordx2', v(XR + 2, 2), vXO, sOUT, sXO_, 32))
def proc_all(E, L, sXO_, pre, loads):
    loads = list(loads)
    n = proc_sum(E, L, range(NPART), 2 + pre, loads)
    proc_fin(E, L, sXO_, pre + n, loads)

def acc_part(E, L, k):
    acc = RB_ if k < NS else RB_ + 8
    for q in range(4):
        x = v(L + 4 * k + q)
        if k in (0, NS):
            E(valu('v_lshlrev_b32', v(acc + 2 * q), 16, x)); E(valu('v_and_b32', v(acc + 2 * q + 1), sT3, x))
        else:
            E(valu('v_dot2c_f32_bf16', v(acc + 2 * q), sD0, x, rmw=True)); E(valu('v_dot2c_f32_bf16', v(acc + 2 * q + 1), sD1, x, rmw=True))
def stream(E, segs, hooks=None):
    W = CFG.get('rwin', 8); FL = CFG.get('fflags', 'sc1')
    seq = []
    for (L, sP, sX_, ks, wx, fin) in segs:
        if wx:
            for it in ld_x(L, sX_): seq.append((it, None))
        ks = list(ks)
        for j, k in enumerate(ks):
            it = [add(sT2, sP, k * PSTR()), bload('buffer_load_dwordx4', v(L + 4 * k, 4), vLD, sWS, sT2, flags=FL)]
            last = fin and j == len(ks) - 1
            seq.append((it, (lambda L=L, k=k, last=last, sX_=sX_: (acc_part(E, L, k), proc_fin(E, L, sX_, None, []) if last else None, last)[2])))
    E(smov(sT3, 0xffff0000))
    n = len(seq); issued = 0
    extra_at = []
    for c in range(n):
        while issued < min(n, c + W): E(seq[issued][0]); issued += 1
        if hooks and c in hooks:
            for _ in range(hooks[c](issued + sum(1 for e in extra_at))): extra_at.append(issued)
            E(smov(sT3, 0xffff0000))
        if seq[c][1] is None: continue
        E(waitvm(issued - 1 - c + sum(1 for e in extra_at if e > c)))
        if seq[c][1]():
            extra_at += [issued, issued]

def body_items(E, n, its, two, ni, ensure, refresh, done, ST, seg, final_flag, poll_hook, LATE, L0, L1, FOUR, sMID, offs, sPT):
    E(salu('s_min_u32', sT2, sRS, sRF)); E(salu('s_cmp_lt_u32', None, its[two - 1], sT2)); E(raw(f"s_cbranch_scc0 L_{n}_sl"))
    ST(its[0])
    hooks = {(NPART + 2) * two - CFG.get('pollat', 8): poll_hook}
    if LATE: hooks[CFG.get('flagat', 3) if n == 'A' else 0] = final_flag
    stream(E, [seg(0, L0), seg(1, L1)][:two], hooks)
    ST(51)
    E(raw(f"s_branch L_{n}_j"))
    E(label(f"L_{n}_sl"))
    if LATE and two == 2 and CFG.get('mid1', 1):
        E(salu('s_min_u32', sT2, sRS, sRF)); E(salu('s_cmp_lt_u32', None, its[0], sT2)); E(raw(f"s_cbranch_scc0 L_{n}_s0"))
        ST(52)
        stream(E, [seg(0, L0)], {CFG.get('flagat', 3): final_flag, 12: poll_hook}); done(its[0])
        refresh(2); ensure(its[1], 1, 1)
        stream(E, [seg(1, L1)], {11: poll_hook})
        E(raw(f"s_branch L_{n}_j"))
        E(label(f"L_{n}_s0"))
    if LATE: final_flag(0)
    for i in range(two):
        ensure(its[i], 1, 1)
        stream(E, [seg(i, L0)], {11: poll_hook} if i == two - 1 else None); done(its[i])
    E(label(f"L_{n}_j"))
    for i in range(two): done(its[i])
    if FOUR or (CFG.get('asg') == 3 and n == 'A'):
        E(salu('s_cmp_gt_u32', None, sMID, 35)); E(raw(f"s_cbranch_scc1 L_{n}_nm"))
        refresh(2)
        ensure(sMID, 1, 1); ST(sMID)
        E(offs(sMID, sXP[0]))
        stream(E, [seg(0, L1)], {13: poll_hook}); done(sMID)
        E(label(f"L_{n}_nm"))
    def warm():
        if not CFG.get('warm', 1): return
        E(valu('v_mov_b32', v(240), vLD)); E(valu('v_mov_b32', v(241), vX4)); E(valu('v_mov_b32', vLD, OOB)); E(valu('v_mov_b32', vX4, OOB))
        E(raw(f"s_call_b64 {sRET2}, L_{n}_ft"))
        E(valu('v_mov_b32', vLD, v(240))); E(valu('v_mov_b32', vX4, v(241)))
    if ni == 3:
        if CFG.get('asg') == 3:
            E(salu('s_cmp_lt_u32', None, its[2], 36)); E(raw(f"s_cbranch_scc1 L_{n}_h3"))
            E(red_poll(True)[1]); E(waitvm(0)); E(raw(f"s_branch L_{n}_fin")); E(label(f"L_{n}_h3"))
        refresh(2)
        if CFG.get('nof'):
            E(salu('s_cmp_gt_u32', None, sMD2, 35)); E(raw(f"s_cbranch_scc1 L_{n}_k1"))
            ensure(sMD2, 1, 1); E(offs(sMD2, sXP[0])); ST(sMD2)
            E(salu('s_cmp_lt_u32', None, its[2], sRS)); E(raw(f"s_cbranch_scc0 L_{n}_k0"))
            E(salu('s_cmp_lt_u32', None, its[2], sRF)); E(raw(f"s_cbranch_scc1 L_{n}_k0"))
            warm()
            stream(E, [seg(0, L1), seg(2, L0, range(NS), True, False)], {20: poll_hook.sh}); done(sMD2)
            E(raw(f"s_branch L_{n}_k2"))
            E(label(f"L_{n}_k0"))
            stream(E, [seg(0, L1)], {11: poll_hook}); done(sMD2)
            refresh(2)
            E(label(f"L_{n}_k1"))
        ensure(its[2], 1, 0); ST(its[2])
        E(salu('s_cmp_lt_u32', None, its[2], sRF)); E(raw(f"s_cbranch_scc1 L_{n}_f3"))
        if CFG.get('rep') and n == 'A':
            warm()
            stream(E, [seg(2, L0, range(NS), True, False)], {4: poll_hook.sh})
            E(label(f"L_{n}_k2"))
            E(salu('s_cmp_eq_u32', None, sWAVE, 0)); E(raw(f"s_cbranch_scc0 L_{n}_w2"))
            E(waitvm(0))
            E(raw(f"v_cmp_ne_u32 vcc, 0, {vP}", 'valu', wr=['vcc'], rd=[vP])); E(nop(1))
            E(raw(f"s_lshr_b64 {sAB}, vcc, {NPART + 1}", 'salu', wr=[sAB], rd=['vcc'])); E(salu('s_and_b32', sAB[1], sAB[1], 15))
            E(salu('s_or_b32', sT2, sAB[0], sAB[1])); E(csel(sRS, 1, 0))
            E(shr(sC, its[2], 2)); E(mul(sI, sROLE, NREP * 128)); E(add(sI, sI, sPB)); E(add(sI, sI, 2048)); E(add(sSP, sI, NREP * 128))
            E(label(f"L_{n}_w0"))
            E(bload('buffer_load_dword', vP, vL5, sWS, sI, flags='sc1')); E(waitvm(0))
            E(raw(f"v_cmp_ge_u32 vcc, {sC}, {vP}", 'valu', wr=['vcc'], rd=[vP, sC])); E(nop(1))
            E(raw(f"s_and_b32 {sT2}, vcc_lo, {hex((1 << NPART) - (1 << NS))}", 'salu', wr=[sT2], rd=['vcc'])); E(csel(sRF, 0, 36))
            E(raw(f"s_cbranch_scc0 L_{n}_w1"))
            E(add(sI, sI, 128)); E(salu('s_cmp_lt_u32', None, sI, sSP)); E(raw(f"s_cbranch_scc0 L_{n}_w1"))
            E(raw(f"s_sleep {CFG.get('rsleep', 6)}")); E(raw(f"s_branch L_{n}_w0"))
            E(label(f"L_{n}_w1")); E(red_pub(sPAR))
            E(label(f"L_{n}_w2")); E(barrier()); E(red_get(sPAR)); E(salu('s_xor_b32', sPAR, sPAR, 12))
            E(smov(sMID, sRS))
            ensure(its[2], 0, 1); ST(50)
            E(raw(f"s_call_b64 {sRET2}, L_{n}_ft")); done(its[2])
            E(salu('s_cmp_eq_u32', None, sMID, 0)); E(raw(f"s_cbranch_scc1 L_{n}_exit")); E(raw(f"s_branch L_{n}_fb"))
            E(label(f"L_{n}_ft"))
            stream(E, [seg(2, L0, range(NS, NPART), False, True)])
            E(raw(f"s_setpc_b64 {sRET2}"))
        else:
            stream(E, [seg(2, L0, range(NS), True, False)], {6: poll_hook})
            refresh(0)
            ensure(its[2], 0, 1); ST(50)
            stream(E, [seg(2, L0, range(NS, NPART), False, True)], {0: poll_hook.sh})
            E(raw(f"s_branch L_{n}_f4"))
        E(label(f"L_{n}_f3"))
        stream(E, [seg(2, L0)], {11: poll_hook.sh})
        E(label(f"L_{n}_f4"))
        done(its[2])


def reducer(kind):
    p = Prog(); E = p.emit; n = kind; FL = CFG.get('fflags', 'sc1')
    PRIV[0] = (kind == 'A')
    def ST(code):
        if CFG['stamps'] != 2: return
        E(raw(f"s_memtime {sSTAMP}", wr=[sSTAMP])); E(raw("s_waitcnt lgkmcnt(0)")); E(salu('s_sub_u32', s(98), s(98), s(100)))
        E(shl(s(98), s(98), 6)); E(salu('s_or_b32', s(98), s(98), code))
        E(add(s(97), s(97), 16)); E(salu('s_min_u32', s(97), s(97), 11 * 16))
        E(raw(f"v_cmp_eq_u32 vcc, s97, {vLANE16}", 'valu', wr=['vcc'], rd=[s(97), vLANE16])); E(valu('v_mov_b32', v(27), s(98)))
        E(valu('v_cndmask_b32', vSTAMP, vSTAMP, v(27), 'vcc'))
    def offs(item, sX_):
        return [salu('s_and_b32', sT2, item, 3), shr(sC, item, 2), shl(sT3, sRB, 2), add(sT2, sT2, sT3), mul(sPART, sT2, PWAVE), add(sX_, sPART, sXW),
                shl(sT3, sC, 12), add(sT3, sT3, sPWv), add(sPART, sPART, sT3), shl(sT3, sC, 7), add(sX_, sX_, sT3)]
    k_ = [0]
    def ensure(item, s_, f_):
        L = f"L_{n}_en{k_[0]}"; k_[0] += 1
        if s_ and f_: E(salu('s_min_u32', sT2, sRS, sRF)); r = sT2
        else: r = sRS if s_ else sRF
        E(salu('s_cmp_lt_u32', None, item, r)); E(raw(f"s_cbranch_scc1 {L}"))
        E(smov(sI, item)); E(smov(sC, (1 if s_ else 0) | (2 if f_ else 0)))
        E(raw(f"s_call_b64 {sRET2}, L_{n}_sync"))
        E(salu('s_cmp_eq_u32', None, sTO, 0)); E(raw(f"s_cbranch_scc0 L_{n}_fb"))
        E(label(L))
    def done(item): E(raw(f"s_bitset0_b64 {sRM}, {item}", 'salu', wr=[sRM], rd=[sRM, item]))
    E(label(f"L_{n}_red"))
    if CFG.get('rdelay'):
        if n == 'A': (E(waitvm(0)), E(barrier()), E(valu('v_mov_b32', vPRG, 9)), E(bstore('buffer_store_dword', vPRG, vCT, sWS, 0, flags='sc1')))
        for _ in range({'A': 30, 'M': 24, 'F': 14}[n]): E(raw("s_sleep 16"))
    E(red_get(LDSC))
    if CFG.get('rdelay'): E(smov(sRS, 36)); E(smov(sRF, 36))
    E(valu('v_lshrrev_b32', vO, 4, vLANE16)); E(valu('v_and_b32', vXO, 7, vO)); E(valu('v_lshlrev_b32', vLD, 4, vXO))
    E(smov(sT2, 1152)); E(valu('v_mul_u32_u24', vXO, sT2, vXO))
    E(valu('v_lshrrev_b32', vA, 3, vO)); E(valu('v_lshl_add_u32', vX4, vA, 4, vXO))
    E(valu('v_bfe_u32', vA, vO, 3, 2)); E(valu('v_lshl_add_u32', vXO, vA, 3, vXO)); E(valu('v_lshl_add_u32', vLD, vA, 8, vLD))
    E(valu('v_lshrrev_b32', vA, 5, vO)); E(valu('v_lshl_add_u32', vXO, vA, 6, vXO)); E(valu('v_lshl_add_u32', vLD, vA, 11, vLD))
    E(mul(sXW, sWAVE, 8 * 1152)); E(shr(sPWv, sWAVE, 1)); E(shl(sPWv, sPWv, 10)); E(salu('s_and_b32', sT2, sWAVE, 1)); E(shl(sT2, sT2, 7)); E(add(sPWv, sPWv, sT2))
    L0, L1 = 72, 76 + 4 * NPART
    E(smov(sD0, 0x3f80)); E(smov(sD1, 0x3f800000))
    E(raw(f"s_mov_b64 {sRM}, 0", 'salu', wr=[sRM]))
    FOUR = CFG.get('four')
    sMID = s(48 + 0) if False else s(83)
    def nib(dst, tab, base):
        E(smov(sCD[0], sum(tab[i] << (4 * i) for i in range(8)))); E(smov(sCD[1], tab[8] | (tab[9] << 4)))
        E(shl(sT2, sROLE, 2)); E(s64('s_lshr_b64', sCD, sCD, sT2)); E(salu('s_and_b32', dst, sCD[0], 15))
        E(salu('s_cmp_eq_u32', None, dst, 15)); E(csel(dst, 63 - base, dst)); E(add(dst, dst, base))
    if n == 'A':
        E(smov(sIT[0], sROLE)); E(add(sIT[1], sROLE, NA))
        if CFG.get('asg') == 2: E(add(sIT[2], sROLE, 16))
        elif CFG.get('asg') == 3:
            E(add(sMID, sROLE, 16)); E(raw(f"s_bitset1_b64 {sRM}, {sMID}", 'salu', wr=[sRM], rd=[sRM, sMID]))
            E(salu('s_and_b32', sT2, sROLE, 1)); E(shr(sIT[2], sROLE, 1)); E(add(sIT[2], sIT[2], 24)); E(salu('s_cmp_eq_u32', None, sT2, 0)); E(csel(sIT[2], sIT[2], 63))
        elif CFG.get('l844'): E(add(sIT[2], sROLE, 28))
        elif FOUR:
            nib(sMID, [0, 15, 1, 2, 15, 3, 4, 5, 6, 7], 20); nib(sIT[2], [0, 1, 15, 2, 3, 15, 4, 5, 6, 7], 28)
            E(raw(f"s_bitset1_b64 {sRM}, {sMID}", 'salu', wr=[sRM], rd=[sRM, sMID]))
        else:
            nib(sIT[2], [0, 1, 15, 2, 3, 15, 4, 5, 6, 7], 28)
            E(salu('s_cmp_eq_u32', None, sROLE, 2)); E(csel(sIT[2], 22, sIT[2])); E(salu('s_cmp_eq_u32', None, sROLE, 5)); E(csel(sIT[2], 21, sIT[2]))
            if CFG.get('nof'):
                nib(sMD2, CFG['nof'], 23)
                E(raw(f"s_bitset1_b64 {sRM}, {sMD2}", 'salu', wr=[sRM], rd=[sRM, sMD2]))
        its = sIT
    elif CFG.get('asg') == 2:
        if n == 'M': E(add(sIT[0], sROLE, 16)); E(add(sIT[1], sROLE, 20)); its = sIT[:2]
        else: E(add(sIT[0], sROLE, 20)); its = sIT[:1]
    elif CFG.get('asg') == 3:
        E(add(sIT[0], sROLE, 20)); its = sIT[:1]
    elif CFG.get('l844'):
        if n == 'M': E(add(sIT[0], sROLE, 8)); E(add(sIT[1], sROLE, 12)); its = sIT[:2]
        else: E(add(sIT[0], sROLE, 12)); its = sIT[:1]
    elif n == 'M': E(smov(sIT[0], 20)); its = sIT[:1]
    else:
        E(add(sIT[0], sROLE, 12)); its = sIT[:1]
    if (FOUR and n != 'A') or (CFG.get('nof') and n == 'F'):
        its = []
        E(waitvm(0)); E(red_poll()[1]); E(waitvm(0)); E(raw(f"s_branch L_{n}_fin"))
    for it in its: E(raw(f"s_bitset1_b64 {sRM}, {it}", 'salu', wr=[sRM], rd=[sRM, it]))
    E(salu('s_and_b32', sRM[1], sRM[1], 15))
    def refresh(wait):
        L = f"L_{n}_rf{k_[0]}"; k_[0] += 1
        E(salu('s_cmp_eq_u32', None, sWAVE, 0)); E(raw(f"s_cbranch_scc0 {L}"))
        E(waitvm(wait)); E(red_eval()); E(red_pub(sPAR))
        E(label(L)); E(barrier()); E(red_get(sPAR)); E(salu('s_xor_b32', sPAR, sPAR, 12))
    ALLD = lambda L, sx: ld_part(L, range(NPART), FL) + ld_x(L, sx)
    LATE = n in CFG.get('lateflag', 'A') + CFG.get('pre', '')
    sPT = [s(47), s(67 - 2), s(70)]
    def offs2(i): return offs(its[i], sXP[i]) + ([smov(sPT[i], sPART)] if i else [])
    def final_flag(wait):
        E(waitvm(wait)); E(barrier())
        E(valu('v_mov_b32', vPRG, 9))
        if CFG.get('rep') and n in 'FM': E(bstore('buffer_store_dword', vPRG, vCR, sWS, 0, flags='sc1'))
        E(bstore('buffer_store_dword', vPRG, vCT, sWS, 0, flags='sc1'))
        return 2 if (CFG.get('rep') and n in 'FM') else 1
    def poll_hook(_): E(red_poll()[1]); return 2
    def poll_sh(_): E(red_poll(True)[1]); return 2
    poll_hook.sh = poll_sh
    seg = lambda i, L, ks=range(NPART), wx=True, fin=True: (L, sPT[i], sXP[i], ks, wx, fin)
    ni = len(its)
    for i in reversed(range(ni)): E(offs2(i))
    two = min(ni, 2)
    if ni: body_items(E, n, its, two, ni, ensure, refresh, done, ST, seg, final_flag, poll_hook, LATE, L0, L1, FOUR, sMID, offs, sPT)
    E(label(f"L_{n}_fin"))
    E(salu('s_cmp_eq_u32', None, sWAVE, 0)); E(raw(f"s_cbranch_scc0 L_{n}_b4"))
    E(waitvm(2))
    E(raw(f"v_cmp_ne_u32 vcc, 0, {vP}", 'valu', wr=['vcc'], rd=[vP])); E(nop(1))
    E(raw(f"s_lshr_b64 {sAB}, vcc, {NPART + 1}", 'salu', wr=[sAB], rd=['vcc'])); E(salu('s_and_b32', sAB[1], sAB[1], 15))
    E(salu('s_or_b32', sT2, sAB[0], sAB[1])); E(csel(sTO, 1, 0))
    E(salu('s_cmp_ge_u32', None, sOK, 16)); E(csel(sTO, sTO, 1)); E(red_pub(sPAR))
    E(label(f"L_{n}_b4")); E(barrier()); E(red_get(sPAR)); E(salu('s_xor_b32', sPAR, sPAR, 12))
    E(salu('s_cmp_eq_u32', None, sTO, 0)); E(raw(f"s_cbranch_scc1 L_{n}_exit"))
    E(label(f"L_{n}_fb"))
    E(waitvm(0))
    E(salu('s_cmp_eq_u32', None, sWAVE, 0)); E(raw(f"s_cbranch_scc0 L_{n}_fb2"))
    E(s64('s_lshl_b64', sCD, sRM, NPART + 1)); E(valu('v_mov_b32', vO, OOB)); E(valu('v_mov_b32', vA, 1))
    E(valu('v_cndmask_b32', vO, vO, vL4, sCD)); E(bstore('buffer_store_dword', vA, vO, sWS, sPB, flags='sc1')); E(waitvm(0))
    E(red_poll()[0]); E(waitvm(0)); E(red_poll(True)[1]); E(waitvm(0)); E(valu('v_readfirstlane_b32', sOK, vD)); E(red_eval())
    E(salu('s_min_u32', sT2, sRS, sRF)); E(salu('s_cmp_ge_u32', None, sOK, 16)); E(csel(sT2, sT2, 0))
    E(salu('s_bfm_b64', sCD, sT2, 0, scc_w=False)); E(s64('s_or_b64', sAB, sAB, sRM)); E(s64('s_and_b64', sAB, sAB, sCD))
    E(label(f"L_{n}_fb1"))
    E(raw(f"s_ff1_i32_b64 {sRS}, {sAB}", 'salu', wr=[sRS], rd=[sAB])); E(salu('s_and_b32', sRS, sRS, 255))
    E(raw(f"s_bitset0_b64 {sAB}, {sRS}", 'salu', wr=[sAB], rd=[sAB, sRS])); E(red_pub(sPAR))
    E(label(f"L_{n}_fb2")); E(barrier()); E(red_get(sPAR)); E(salu('s_xor_b32', sPAR, sPAR, 12))
    E(salu('s_cmp_ge_u32', None, sRS, 36)); E(raw(f"s_cbranch_scc1 L_{n}_exit"))
    E(offs(sRS, sXP[0])); E(ld_part(L0, range(NPART), FL) + ld_x(L0, sXP[0])); E(waitvm(0)); proc_all(E, L0, sXP[0], 0, [])
    E(salu('s_cmp_eq_u32', None, sWAVE, 0)); E(raw(f"s_cbranch_scc1 L_{n}_fb1")); E(raw(f"s_branch L_{n}_fb2"))
    E(label(f"L_{n}_exit"))
    ST(60)
    if CFG['stamps']: E(raw(f"s_setpc_b64 {sRET}"))
    else: E(raw("s_endpgm"))
    E(label(f"L_{n}_sync"))
    E(salu('s_cmp_eq_u32', None, sWAVE, 0)); E(raw(f"s_cbranch_scc0 L_{n}_sy2"))
    E(smov(sSP, 0)); E(red_poll()[1][0])
    E(label(f"L_{n}_sy0"))
    E(salu('s_cmp_ge_u32', None, sOK, 16)); E(raw(f"s_cbranch_scc1 L_{n}_sy1"))
    E(red_poll()[0]); E(waitvm(0)); E(valu('v_readfirstlane_b32', sOK, vD))
    E(salu('s_cmp_ge_u32', None, sOK, 16)); E(raw(f"s_cbranch_scc0 L_{n}_syw"))
    E(label(f"L_{n}_sy1"))
    E(red_poll()[1][1]); E(red_poll()[1][0]); E(waitvm(1)); E(red_eval())
    E(salu('s_bitcmp1_b32', None, sC, 0)); E(csel(sT2, sRS, 36)); E(salu('s_bitcmp1_b32', None, sC, 1)); E(csel(sT3, sRF, 36))
    E(salu('s_min_u32', sT2, sT2, sT3)); E(salu('s_cmp_lt_u32', None, sI, sT2)); E(raw(f"s_cbranch_scc1 L_{n}_syp"))
    E(label(f"L_{n}_syw"))
    E(add(sSP, sSP, 1)); E(salu('s_cmp_gt_u32', None, sSP, CFG.get('spin', 4000))); E(csel(sTO, 1, 0)); E(raw(f"s_cbranch_scc1 L_{n}_syp"))
    E(raw(f"s_sleep {CFG.get('sleep', 1)}")); E(raw(f"s_branch L_{n}_sy0"))
    E(label(f"L_{n}_syp"))
    E(red_pub(sPAR))
    E(label(f"L_{n}_sy2")); E(barrier()); E(red_get(sPAR)); E(salu('s_xor_b32', sPAR, sPAR, 12))
    E(raw(f"s_setpc_b64 {sRET2}"))
    return p

def reduce_items(p, ni, sPART_, sXO_, srdP, srdX, srdO, vL16, vXO_, base, flags, mid=None):
    E = p.emit
    SA = base; FA = base + 8; T = base + 16
    Ls = [base + 24 + 72 * i for i in range(ni)]
    for k in range(NPART):
        if k: E(add(sPART_, sPART_, 16 * PART - (PWAVE if ni == 2 else 0)))
        for i in range(ni):
            if i: E(add(sPART_, sPART_, PWAVE))
            E(bload('buffer_load_dwordx4', v(Ls[i] + 4 * k, 4), vL16, srdP, sPART_, flags=flags))
    for i in range(ni):
        XR = Ls[i] + 68
        if i: E(add(sT2, sXO_, 32 * 1152))
        so = sT2 if i else sXO_
        E(bload('buffer_load_dwordx2', v(XR, 2), vXO_, srdX, so)); E(bload('buffer_load_dwordx2', v(XR + 2, 2), vXO_, srdX, so, 32))
    ex = 0
    if mid: mid(); ex = 1
    E(smov(sT3, 0xffff0000))
    for i in range(ni):
        L = Ls[i]; XR = L + 68
        for k in range(NPART):
            if i == 0: E(waitvm((NPART - 1 - k) * ni + (ni - 1) + 2 * ni + ex))
            acc = SA if k < 11 else FA
            for q in range(4):
                x = v(L + 4 * k + q)
                if k in (0, 11):
                    E(valu('v_lshlrev_b32', v(acc + 2 * q), 16, x)); E(valu('v_and_b32', v(acc + 2 * q + 1), sT3, x))
                else:
                    tp = v(T + 2 * q, 2)
                    E(valu('v_lshlrev_b32', tp[0], 16, x)); E(valu('v_and_b32', tp[1], sT3, x))
            if k not in (0, 11):
                for q in range(4): E(valu('v_pk_add_f32', v(acc + 2 * q, 2), v(acc + 2 * q, 2), v(T + 2 * q, 2)))
        for e in range(8): E(valu('v_exp_f32', v(T + e), v(FA + e)))
        for e in range(8): E(valu('v_add_f32', v(T + e), 1.0, v(T + e)))
        for e in range(8): E(valu('v_rcp_f32', v(T + e), v(T + e)))
        for e in range(8): E(valu('v_mul_f32', v(FA + e), f2u(-math.log(2.0)), v(FA + e)))
        for e in range(8): E(valu('v_mul_f32', v(FA + e), v(FA + e), v(T + e)))
        if i == 0: E(waitvm(ex if ni == 1 else 0))
        for q in range(4):
            E(valu('v_lshlrev_b32', v(T + 2 * q), 16, v(XR + q))); E(valu('v_and_b32', v(T + 2 * q + 1), sT3, v(XR + q)))
        for e in range(8): E(valu('v_fma_f32', v(T + e), v(SA + e), v(FA + e), v(T + e)))
        for q in range(4): E(valu('v_cvt_pk_bf16_f32', v(XR + q), v(T + 2 * q), v(T + 2 * q + 1)))
        if i: E(add(sXO_, sXO_, 32 * 1152))
        E(bstore('buffer_store_dwordx2', v(XR, 2), vXO_, srdO, sXO_)); E(bstore('buffer_store_dwordx2', v(XR + 2, 2), vXO_, srdO, sXO_, 32))

def build_role(kind, vm_before):
    R = Role(kind)
    CFG['shape'] = CFG.get('shapes', {}).get(kind, CFG['shape0'])
    R.ring = {'F': (216, 9), 'A': (192, 16), 'M': (200, 8)}[kind]
    if kind == 'M': R.depth = 7
    nl = CFG.get('pfl', 16)
    MS = CFG['shape'] == 'M'
    if MS:
        R.add_p1_unit, R.add_p1_half, R.epi_silu, R.epi_q = R.add_p1_unitM, R.add_p1_halfM, R.epi_siluM, R.epi_qM
    P2M = 'q16' if MS else 'pi'
    if kind == 'F' and CFG.get('l844'):
        R.ring = (208, 12); R.depth = 7
        for u in range(13): R.add_p1_unit(u, sW1, sHA, sHC, 9216, u == 0, a(16 * u, 16), R.epi_silu, last=(u == 12),
                                          inreg=[pf_run(sW2, sPF2, 832 * 1152, 10) if u >= 1 else None, pf_row('F', sW1)])
        needs = {t: [('reg', 8 * t)] for t in range(26)}
        dm = [dma_w(sW2, sFA, 0, 1152, sFC, 0), dma_w(sW2, sFA, 288 * 1152, 1152, sFC, 288 * 1152), dma_w(sW2, sFA, 576 * 1152, 1152)]
        R.add_p2([(a(0, 208), [288, 288, 256], dm, needs, sSt)], [add(x, x, 128) for x in (sFA, sFC)], pre0=lambda: set_offw(1152, P2M))
        for st in R.stages[-27:]: st.ring = (208, 12, 'restart')
    elif kind == 'M' and CFG.get('l844'):
        R.ring = (208, 8); R.depth = 7
        Q = [a(80, 32), a(112, 32)]; OA = a(144, 64)
        def mpf(u):
            if u == 0: return pf_row('M', sWQ)
            if u == 1: return lambda: pf_row_setup('M', 9216, 18, sPF1, 0) + [pf_row('M', sW1)()[1]]
            if u <= 5: return pf_row('M', sW1)
            return None
        for u in range(4): R.add_p1_unit(u, sWQ, sQA, sQC, 8192, u == 0, a(80 + 16 * u, 16), R.epi_q, key='Q', inreg=[None, mpf(u)])
        for u in range(5): R.add_p1_unit(4 + u, sW1, sHA, sHC, 9216, u == 0, a(16 * u, 16), R.epi_silu, pre=(lambda: set_offw(9216, 'S')) if u == 0 else None,
                                         last=(u == 4), key='H', inreg=[None, mpf(4 + u)])
        Ha = dict(i=0, Q=Q[0], S=Sreg, P=Preg, O=OA, LM=v(230, 8), OF=lambda kk: OA.sub(16 * kk, 8),
                  need_qk=[('acc', 80), ('acc', 96)], need_pv=[('acc', 48 + 16 * i) for i in range(4)])
        Hb = dict(i=1, Q=Q[1], S=[v(80, 16), v(96, 16)], P=[v(48, 8), v(56, 8)], O=v(160, 64), LM=v(64, 8), OF=lambda kk: OA.sub(16 * kk + 8, 8))
        R.add_pa_g([[Ha, Hb]])
        R.stages[-9].mf[-1].need.append(('acc', 48))
        R.heads = [(Ha, sPFa), (Hb, sPFa)]
        R.add_p2m(a(0, 80), [H['OF'](kk) for H in (Ha, Hb) for kk in range(4)],
                  [dma_w(sW2, sFA, 0, 1152, sFC, 0), dma_w(sWO, sOA, 0, 1152, sFC, 32 * 1152, srdC=sW2)],
                  [add(x, x, 128) for x in (sOA, sFA, sFC)], pre0=lambda: set_offw(1152, P2M))
        for st in R.stages[-18:]: st.ring = (208, 12, 'restart')
        k = pf_sched(R, 15, sK, sPFa, 131072, 16); k = pf_sched(R, k, sV, sPFa, 131072, 16)
        pf_sched(R, 17, sWO, sPFc, 256 * 1152, 36); pf_sched(R, 18, sW2, sPF2, 320 * 1152, 45)
    elif kind == 'F':
        for u in range(13): R.add_p1_unit(u, sW1, sHA, sHC, 9216, u == 0, a(16 * u, 16), R.epi_silu, last=(u == 12), inreg=[pf_run(sW2, sPF2, 832 * 1152, 10) if u >= 1 else None, pf_row('F', sW1) if CFG['pf'] >= 3 else None] if CFG['pf'] else None)
        R.add_p1_half(13, a(208, 8))
        needs = {t: [('reg', 8 * t)] for t in range(27)}
        dm = [dma_w(sW2, sFA, 0, 1152, sFC, 0), dma_w(sW2, sFA, 288 * 1152, 1152, sFC, 288 * 1152), dma_w(sW2, sFA, 576 * 1152, 1152, sFS, 0)]
        R.add_p2([(a(0, 216), [288, 288, 288], dm, needs, sSt)], [add(x, x, 128) for x in (sFA, sFC, sFS)], pre0=lambda: set_offw(1152, P2M))
        if CFG['pf']:
            pf_sched(R, 26, sW2, sPF2h, 32 * 1152, 8)
    elif kind == 'A' and CFG.get('pair'):
        OA = a(96, 64)
        Ha = dict(i=0, Q=a(0, 32), S=Sreg, P=Preg, O=OA, LM=v(230, 8), OF=lambda kk: OA.sub(16 * kk, 8),
                  need_qk=[('acc', 48), ('acc', 64)], need_pv=[('acc', 48 + 16 * i) for i in range(4)])
        Hb = dict(i=1, Q=a(32, 32), S=[v(48, 16), v(64, 16)], P=[v(80, 8), v(88, 8)], O=v(160, 64), LM=v(96, 8), OF=lambda kk: OA.sub(16 * kk + 8, 8))
        Hc = dict(i=2, Q=a(64, 32), S=Sreg, P=Preg, O=v(48, 64), LM=v(16, 8), OF=lambda kk: a(160 + 8 * kk, 8), need_pv=[('lm', 0)])
        Ha['need_qk'] += [('acc', 80)]
        pj = {1: sJQ}
        for u in range(6):
            R.add_p1_unit(u, sWQ, sQA, sQC, 8192, u == 0, a(16 * u, 16), R.epi_q, last=(u == 5), step=sJQ if u == 4 else 128,
                          inreg=[pf_run(sWO, sPFc, 384 * 1152, 11) if u >= 1 else None, pf_row('A', sWQ, pj.get(u, 128)) if CFG['pf'] >= 3 and u < 3 else None] if CFG['pf'] else None)
        R.add_pa_g([[Ha, Hb], [Hc]])
        Bf = [H['OF'](kk) for H in (Ha, Hb, Hc) for kk in range(4)]
        needs = {0: [('fin', 0), ('fin', 1)], 8: [('fin', 2)]}
        dm = [dma_w192(sWO, 0), dma_w192(sWO, 0, sOA1, sOB1)]
        R.add_p2([(Bf, [192, 192], dm, needs, sSt)], [add(x, x, 128) for x in (sOA, sOB, sOA1, sOB1)], pre0=lambda: set_offw(1152, P2M))
        R.heads = [(Ha, sPFa), (Hb, sPFa), (Hc, sPFb)]
        if CFG['pf'] >= 2:
            pf_sched(R, 10, sK, sPFa, 131072, 16); pf_sched(R, 10, sV, sPFa, 131072, 16)
            pf_sched(R, 12, sK, sPFb, 131072, 16); pf_sched(R, 12, sV, sPFb, 131072, 16)
    elif kind == 'A':
        Q = [a(32 * e, 32) for e in range(3)]; O = [a(96 + 32 * e, 32) for e in range(3)]
        for u in range(6): R.add_p1_unit(u, sWQ, sQA, sQC, 8192, u == 0, a(16 * u, 16), R.epi_q, last=(u == 5), inreg=[pf_run(sWO, sPFc, 384 * 1152, 11) if u >= 1 else None, pf_row('A', sWQ) if CFG['pf'] >= 3 and u < 5 else None] if CFG['pf'] else None)
        R.add_pa(Q, O)
        needs = {4 * e: [('fin', e)] for e in range(3)}; needs[0].append(('S', 2, 15))
        dm = [dma_w192(sWO, b * 192 * 1152) for b in range(2)]
        R.add_p2([(a(96, 96), [192, 192], dm, needs, sSt)], [add(sOA, sOA, 128), add(sOB, sOB, 128)], pre0=lambda: set_offw(1152, P2M))
        if CFG['pf']:
            if CFG['pf'] >= 2:
                pf_sched(R, 10, sK, sPFa, 131072, 16); pf_sched(R, 10, sV, sPFa, 131072, 16)
                pf_sched(R, 12, sK, sPFb, 131072, 16); pf_sched(R, 12, sV, sPFb, 131072, 16)
    else:
        Q = [a(136 + 32 * e, 32) for e in range(2)]; O = [a(72 + 32 * e, 32) for e in range(2)]
        def mpf(u):
            if u == 0: return pf_row('M', sWQ)
            if u == 1: return lambda: pf_row_setup('M', 9216, 18, sPF1, 0) + [pf_row('M', sW1)()[1]]
            if u <= 4: return pf_row('M', sW1)
            if u == 5: return lambda: [smov(sPW, sPF1h), pf_row('M', sW1)()[1]]
            return None
        for u in range(4): R.add_p1_unit(u, sWQ, sQA, sQC, 8192, u == 0, a(136 + 16 * u, 16), R.epi_q, key='Q', inreg=[None, mpf(u)] if CFG['pf'] >= 3 else None)
        for u in range(4): R.add_p1_unit(4 + u, sW1, sHA, sHC, 9216, u == 0, a(16 * u, 16), R.epi_silu, pre=(lambda: set_offw(9216, 'M' if MS else 'S')) if u == 0 else None, last=(u == 3), key='H', inreg=[None, mpf(4 + u)] if CFG['pf'] >= 3 else None)
        R.add_p1_half(8, a(64, 8))
        BO = a(72, 64)
        if CFG.get('pair'):
            Ha = dict(i=0, Q=Q[0], S=Sreg, P=Preg, O=BO, LM=v(230, 8), OF=lambda kk: BO_.sub(16 * kk, 8),
                      need_qk=[('acc', 48 + 16 * i) for i in range(3)], need_pv=[('acc', 48 + 16 * i) for i in range(4)])
            Hb = dict(i=1, Q=Q[1], S=[v(64, 16), v(48, 16)], P=[v(80, 8), v(88, 8)], O=v(160, 64), LM=v(96, 8), OF=lambda kk: BO_.sub(16 * kk + 8, 8))
            BO_ = BO
            if CFG.get('mfree', 0):
                Hb['S'] = [v(64, 16), v(238, 16)]; Ha['need_qk'] = [('acc', 64), ('acc', 80)]; Ha['need_pv'] = [('acc', 96)]
                R.ntmp = 12; R.ones = v(28, 4)
                for st_, idx in ((R.stages[-2], -1), (R.stages[-1], -1)):
                    m_ = st_.mf[idx]; f_ = m_.after
                    m_.after = (lambda G, f_=f_: (setattr(R, 'low', True), f_(G), setattr(R, 'low', False)))
            R.add_pa_g([[Ha, Hb]])
            BO = [H['OF'](kk) for H in (Ha, Hb) for kk in range(4)]
            R.heads = [(Ha, sPFa), (Hb, sPFa)]
        else: R.add_pa(Q, O)
        nf = {t: [('reg', 8 * t)] for t in range(9)}; nf[0].append(('S', 1, 15))
        R.add_p2([(a(0, 72), [288], [dma_w(sW2, sFA, 0, 1152, sFS, 0)], nf, sSt2),
                  (BO, [256], [dma_w(sWO, sOA, 0, 1152)], {0: [('fin', 0)], 4: [('fin', 1)]}, sSt)],
                 [add(x, x, 128) for x in (sOA, sFA, sFS)], pre0=lambda: set_offw(1152, P2M))
        for st in R.stages[-18:]: st.ring = (200, 14, 'restart')
        if CFG['pf']:
            if CFG['pf'] >= 2:
                k = pf_sched(R, 14, sK, sPFa, 131072, 16); k = pf_sched(R, k, sV, sPFa, 131072, 16)
            pf_sched(R, 16, sWO, sPFc, 256 * 1152, 36); pf_sched(R, 23 if not CFG.get('pair') else 17, sW2, sPF2, 256 * 1152, 36); pf_sched(R, 24 if not CFG.get('pair') else 17, sW2, sPF2h, 32 * 1152, 8)
    if CFG.get('msum') and not MS and kind in 'AM':
        st0 = [st for st in R.stages if st.name == 'PAh0s0'][0]
        m0_ = st0.mf[8]
        if not hasattr(R, 'ones'): m0_.need += [('acc', 48 + 16 * i) for i in range(4)]
        m0_.pre = lambda: R.p.emit([valu('v_mov_b32', getattr(R, 'ones', vONES)[i], 0x3f803f80) for i in range(4)])
    if CFG.get('recode') and CFG['fused']:
        names = [st.name for st in R.stages]
        nS = len(names)
        R.pf.setdefault(nS - 2, []).append(pf_code(f"L_{kind}_red", f"L_role{kind}_end", 4))
        p2 = names.index('P2c0b0')
        R.stages[p2].label = f"L_{kind}_p2"
        R.pf.setdefault(p2 - 2, []).append(pf_code(f"L_{kind}_p2", f"L_{kind}_p2+20480", 5))
        if kind in 'AM':
            pa = names.index('PAmini'); R.stages[pa].label = f"L_{kind}_pa"
            R.pf.setdefault(pa - 1, []).append(pf_code(f"L_{kind}_pa", f"L_{kind}_p2", 8))
    if CFG.get('hot') and CFG['fused'] and kind in CFG['hot']:
        names = [st.name for st in R.stages]
        last = names.index('P2c8b0'); R.stages[last].label = f"L_{kind}_c8"
        def setup():
            o = [raw(f"s_getpc_b64 {sPC}", 'salu', wr=[sPC]), label(f"L_{kind}_hp"),
                 salu('s_add_u32', sPC[0], sPC[0], f"L_{kind}_c8-L_{kind}_hp"), salu('s_addc_u32', sPC[1], sPC[1], 0, scc_r=True),
                 valu('v_bfe_u32', vPF2, vTID, 16, 5), valu('v_and_b32', vPF, 63, vTID), valu('v_min_u32', vPF, 1, vPF),
                 valu('v_lshl_add_u32', vPF, vPF2, 1, vPF), valu('v_lshlrev_b32', vPF, 7, vPF)]
            if kind == 'F': o += pf_row_setup(kind, 1152, 26, sPF2, 2 * 128)
            return o
        def rep_code():
            return [I(f"global_load_dword {vDUM}, {vPF}, {sPC}", 'vload', wr=vDUM.regs(), rd=vPF.regs() + sPC.regs(), units=3, tag='pf')]
        R.pf.setdefault(names.index('P2c1b0'), []).append(setup)
        for c in range(2, 8):
            k0 = names.index(f'P2c{c}b0')
            R.pf.setdefault(k0, []).append(rep_code)
            if kind == 'F': R.pf.setdefault(k0 + 1, []).append(pf_row(kind, sW2))
    R.slow = []
    if kind in 'AM' and CFG.get('slow', True) and CFG.get('pair'):
        P2s = [st for st in R.stages if st.name.startswith('P2c0')]
        hl = [(H['i'], H['Q'], (H['OF'], kv)) for (H, kv) in R.heads]
        if kind == 'A':
            P2s[0].mf[0].pre = slow_check(R, hl[:2], (112, 160))
            [m for m in P2s[1].mf if ('fin', 2) in m.need][0].pre = slow_check(R, hl[2:], (160, 48))
        else:
            m_ = P2s[1].mf[4 if CFG.get('l844') else 0]
            m_.need += [('fin', 0), ('fin', 1)]
            m_.pre = slow_check(R, hl, (160, 48))
    elif kind in 'AM' and CFG.get('slow', True):
        P2s = [st for st in R.stages if st.name.startswith('P2c0')]
        if kind == 'A':
            P2s[0].mf[0].need += [('fin', 1)]
            P2s[0].mf[0].pre = slow_check(R, [(0, Q[0], O[0]), (1, Q[1], O[1])], 112)
            m_ = [m for m in P2s[1].mf if ('fin', 2) in m.need][0]
            m_.pre = slow_check(R, [(2, Q[2], O[2])], 160)
        else:
            P2s[1].mf[0].need += [('fin', 1)]
            P2s[1].mf[0].pre = slow_check(R, [(0, Q[0], O[0]), (1, Q[1], O[1])], 160)
    if CFG['fused']:
        add_signals(R)
        def early0():
            it = red_setup(kind) + red_poll()[0]
            it[-1].tag = 'cnt'
            return it
        def early():
            assert R.cnt_covered()
            PRIV[0] = (kind == 'A')
            it = red_poll()[1]
            it[-1].tag = 'poll'
            return it
        def covered():
            idx = max(i for i, x in enumerate(R.p.ins) if x.tag == 'cnt'); n = 0
            for x in R.p.ins[idx + 1:]:
                if x.kind in VMEMK: n += 1
                if x.txt.startswith('s_waitcnt vmcnt(') and int(x.txt[16:-1]) <= n: return True
            return False
        R.cnt_covered = covered
        if kind == 'A' and CFG.get('l2pf'):
            nm = [st.name for st in R.stages]
            R.pf.setdefault(nm.index('P2c1b0'), []).append(l2pf_setup)
            for (cw, dlt) in CFG['l2pf']:
                kp = nm.index(f'P2c{cw}b0')
                for j in range(4): R.pf.setdefault(kp, []).append(lambda j=j: l2pf_poll()[j])
                R.stages[kp + 2].cover_tag = 'gp'
                def gate(j, dlt=dlt):
                    def f():
                        it = l2pf_issue(R, dlt)[j]
                        if j == 0:
                            it = it + [valu('v_readfirstlane_b32', sOK, vD), salu('s_cmp_ge_u32', None, sOK, 16), csel(sC, sC, 15)]
                        return it
                    return f
                for j in range(4): R.pf.setdefault(kp + 2, []).append(gate(j))
        R.pf.setdefault([st.name for st in R.stages].index('P2c1b0' if kind == 'F' else 'P2c0b1'), []).append(early0)
        if kind in CFG.get('pre', ''):
            R.pf.setdefault(len(R.stages) - 3, []).append(early)
            R.stages[-1].pre_bar = lambda: red_early(R.p, kind)
        else: R.pf.setdefault(len(R.stages) - CFG.get('pollw', 1), []).append(early)
    role_prologue(R, vm_before)
    R.run()
    if CFG['fused']:
        p = R.p
        if kind not in CFG.get('pre', ''): red_early(p, kind)
        if kind in CFG.get('pre', ''): pass
        elif kind in CFG.get('lateflag', 'A'): p.emit(barrier())
        else:
            p.emit(waitvm(0)); p.emit(barrier())
            p.emit(valu('v_mov_b32', vPRG, 9))
            if CFG.get('rep'): p.emit(bstore('buffer_store_dword', vPRG, vCR, sWS, 0, flags='sc1'))
            p.emit(bstore('buffer_store_dword', vPRG, vCT, sWS, 0, flags='sc1'))
        if CFG['stamps']: R.stamp(len(R.stages) - 1)
        p.emit(raw(f"s_call_b64 {sRET}, L_{kind}_red"))
    if CFG['stamps']:
        p = R.p
        R.stamp(len(R.stages))
        p.emit(raw("s_memrealtime s[98:99]", wr=[s(98, 2)])); p.emit(raw("s_waitcnt lgkmcnt(0)"))
        p.emit(raw(f"v_writelane_b32 {vSTAMP}, s98, 63", 'valu', wr=[vSTAMP], rd=[s(98)]))
        if CFG.get('dbgstat'):
            n = len(R.stages)
            lanes = {'F': [0, 27, n - 1, n], 'A': [0, 37, n - 1, n], 'M': [0, 34, n - 1, n]}[kind]
            slots = {'F': [1, 2, 3, 5], 'A': [10, 11, 13, 14], 'M': [15, 15, 15, 15]}[kind]
            p.emit([valu('v_mov_b32', v(4), 256), valu('v_mov_b32', v(5), 0)])
            for i, (ln, sl) in enumerate(zip(lanes, slots)):
                p.emit(raw(f"v_readlane_b32 s92, {vSTAMP}, {ln}", 'rdl', wr=[sT2], rd=[vSTAMP])); p.emit(nop(3))
                p.emit(raw(f"v_writelane_b32 v5, s92, {i}", 'valu', wr=[v(5)], rd=[sT2])); p.emit(raw(f"v_writelane_b32 v4, {4 * sl}, {i}", 'valu', wr=[v(4)]))
            p.emit(raw(f"v_writelane_b32 v5, s98, 4", 'valu', wr=[v(5)], rd=[s(98)])); p.emit(raw(f"v_writelane_b32 v4, 28, 4", 'valu', wr=[v(4)]))
            p.emit(salu('s_not_b32', sT2, s(43))); p.emit(raw(f"v_writelane_b32 v5, s92, 5", 'valu', wr=[v(5)], rd=[sT2])); p.emit(raw(f"v_writelane_b32 v4, 36, 5", 'valu', wr=[v(4)]))
            p.emit(salu('s_sub_u32', sT2, s(98), s(43))); p.emit(raw(f"v_writelane_b32 v5, s92, 6", 'valu', wr=[v(5)], rd=[sT2])); p.emit(raw(f"v_writelane_b32 v4, 24, 6", 'valu', wr=[v(4)]))
            p.emit([salu('s_cmp_eq_u32', None, sRB, 9), csel(sT2, 0, sRB), salu('s_or_b32', sT2, sT2, sWAVE), salu('s_cmp_eq_u32', None, sT2, 0), csel(sT2, 0, 256),
                    valu('v_add_u32', v(4), sT2, v(4))])
            p.emit(I(f"buffer_atomic_umax v5, v4, {sDBG}, 0 offen sc1", 'vstore', rd=vr(4, 2) + sDBG.regs(), units=3))
        p.emit([shl(sT2, s(2), 2), add(sT2, sT2, sWAVE), shl(sT2, sT2, 8), add(sT2, sT2, STAMP_OFF),
                valu('v_lshrrev_b32', v(42), 2, vLANE16), bstore('buffer_store_dword', vSTAMP, v(42), sWS, sT2)])
    R.p.emit(raw("s_endpgm"))
    return R

def fold(ins, name):
    idx = [i for i, x in enumerate(ins) if x.tag == 'mark']
    def body(a_, b_): return [x.txt for x in ins[a_:b_] if x.kind != 'label']
    out = []; pos = 0; k = 0; nl = 0
    while k + 1 < len(idx):
        b0 = body(idx[k], idx[k + 1]); n = 1
        while k + n + 1 < len(idx) and body(idx[k + n], idx[k + n + 1]) == b0: n += 1
        if n >= 2:
            out += ins[pos:idx[k]]
            L = f"L_{name}_loop{nl}"; nl += 1
            out.append(smov(sLC, n)); out.append(I(".p2align 3", 'label')); out.append(label(L))
            out += ins[idx[k]:idx[k + 1]]
            out += [salu('s_sub_u32', sLC, sLC, 1), salu('s_cmp_lg_u32', None, sLC, 0), raw(f"s_cbranch_scc1 {L}")]
            pos = idx[k + n]; k += n
        else: k += 1
    out += ins[pos:]
    return out

def fold_regions(ins, name):
    regs = []; i = 0
    beg = None
    for i, x in enumerate(ins):
        if isinstance(x.tag, tuple) and x.tag and x.tag[0] == 'region':
            if x.tag[1] == 'begin': beg = (i, x.tag[2])
            elif beg: regs.append((beg[0], i, beg[1])); beg = None
    groups = {}
    for (a_, b_, key) in regs:
        groups.setdefault(tuple(x.txt for x in ins[a_:b_] if x.kind != 'label'), []).append((a_, b_))
    out = []; subs = []; repl = {}
    n = 0
    for body, lst in groups.items():
        if len(lst) >= 2:
            L = f"L_{name}_sub{n}"; n += 1
            a_, b_ = lst[0]
            subs += [I(".p2align 6", 'label'), label(L)] + ins[a_:b_] + [raw(f"s_setpc_b64 {sRET}")]
            for (a_, b_) in lst: repl[a_] = (b_, L)
    i = 0
    while i < len(ins):
        if i in repl:
            b_, L = repl[i]; out.append(raw(f"s_call_b64 {sRET}, {L}")); i = b_
        else:
            out.append(ins[i]); i += 1
    print(f"  regions: {[len(l) for l in groups.values()]}", file=sys.stderr)
    return out + subs

def reduce_body(p, sPART, sXO, srdP, srdX, srdO, vL16, vXO, base, flags, mid=None):
    E = p.emit
    L = base; XR = base + 68; SA = base + 72; FA = base + 80; T = base + 88
    for k in range(NPART):
        if k: E(add(sPART, sPART, 16 * PART))
        E(bload('buffer_load_dwordx4', v(L + 4 * k, 4), vL16, srdP, sPART, flags=flags))
    E(bload('buffer_load_dwordx2', v(XR, 2), vXO, srdX, sXO)); E(bload('buffer_load_dwordx2', v(XR + 2, 2), vXO, srdX, sXO, 32))
    ex = 0
    if mid: E(mid()); ex = 1
    E(smov(sT3, 0xffff0000))
    for k in range(NPART):
        E(waitvm(NPART + 1 - k + ex))
        acc = SA if k < 11 else FA
        for q in range(4):
            x = v(L + 4 * k + q)
            if k in (0, 11):
                E(valu('v_lshlrev_b32', v(acc + 2 * q), 16, x)); E(valu('v_and_b32', v(acc + 2 * q + 1), sT3, x))
            else:
                tp = v(T + 2 * q, 2)
                E(valu('v_lshlrev_b32', tp[0], 16, x)); E(valu('v_and_b32', tp[1], sT3, x))
        if k not in (0, 11):
            for q in range(4): E(valu('v_pk_add_f32', v(acc + 2 * q, 2), v(acc + 2 * q, 2), v(T + 2 * q, 2)))
    for e in range(8): E(valu('v_exp_f32', v(T + e), v(FA + e)))
    for e in range(8): E(valu('v_add_f32', v(T + e), 1.0, v(T + e)))
    for e in range(8): E(valu('v_rcp_f32', v(T + e), v(T + e)))
    for e in range(8): E(valu('v_mul_f32', v(FA + e), f2u(-math.log(2.0)), v(FA + e)))
    for e in range(8): E(valu('v_mul_f32', v(FA + e), v(FA + e), v(T + e)))
    E(waitvm(ex))
    for q in range(4):
        E(valu('v_lshlrev_b32', v(T + 2 * q), 16, v(XR + q))); E(valu('v_and_b32', v(T + 2 * q + 1), sT3, v(XR + q)))
    for e in range(8): E(valu('v_fma_f32', v(T + e), v(SA + e), v(FA + e), v(T + e)))
    for q in range(4): E(valu('v_cvt_pk_bf16_f32', v(XR + q), v(T + 2 * q), v(T + 2 * q + 1)))
    E(bstore('buffer_store_dwordx2', v(XR, 2), vXO, srdO, sXO)); E(bstore('buffer_store_dwordx2', v(XR + 2, 2), vXO, srdO, sXO, 32))

def reduce_kernel():
    p = Prog(); E = p.emit
    E(salu('s_cmp_ge_u32', None, s(2), 576)); E(raw("s_cbranch_scc0 L_rgo")); E(raw("s_endpgm")); E(label("L_rgo"))
    E(raw("s_load_dwordx2 s[4:5], s[0:1], 0", wr=[s(4, 2)])); E(raw("s_load_dwordx2 s[6:7], s[0:1], 64", wr=[s(6, 2)])); E(raw("s_load_dwordx2 s[8:9], s[0:1], 80", wr=[s(8, 2)]))
    E(valu('v_lshrrev_b32', v(1), 6, v(0))); E(valu('v_readfirstlane_b32', s(10), v(1)))
    E(shl(s(11), s(2), 2)); E(add(s(11), s(11), s(10)))
    E(salu('s_mul_hi_u32', s(24), s(11), -(-(1 << 32) // 36), scc_w=False))
    E(mul(s(25), s(24), 36)); E(salu('s_sub_u32', s(25), s(11), s(25)))
    E(shl(s(26), s(11), 10))
    E(valu('v_and_b32', v(0), 63, v(0))); E(valu('v_lshlrev_b32', v(1), 4, v(0)))
    E(valu('v_and_b32', v(2), 15, v(0))); E(smov(s(27), 1152)); E(valu('v_mul_u32_u24', v(2), s(27), v(2)))
    E(valu('v_lshrrev_b32', v(3), 4, v(0))); E(valu('v_lshl_add_u32', v(2), v(3), 3, v(2)))
    E(mul(s(28), s(24), 32 * 1152)); E(salu('s_and_b32', s(29), s(25), 1)); E(mul(s(29), s(29), 16 * 1152)); E(add(s(28), s(28), s(29)))
    E(shr(s(25), s(25), 1)); E(shl(s(25), s(25), 6)); E(add(s(28), s(28), s(25)))
    E(raw("s_waitcnt lgkmcnt(0)"))
    srd(p, s(12, 4), 8, WSP_BYTES); srd(p, s(16, 4), 4, 2359296); srd(p, s(20, 4), 6, 2359296)
    reduce_body(p, s(26), s(28), s(12, 4), s(16, 4), s(20, 4), v(1), v(2), 4, CFG.get('rflags', ''))
    E(raw("s_endpgm"))
    return p

def text(ins): return "\n".join((i.txt if i.kind == 'label' else " " + i.txt) for i in ins) + "\n"

def compress(t):
    t = re.sub(r" v_mfma_f32_16x16x32_bf16 v\[(\d+):\d+\], a\[(\d+):\d+\], v\[(\d+):\d+\], v\[\1:\d+\]", r" MV \1,\2,\3", t)
    t = re.sub(r" v_mfma_f32_16x16x32_bf16 v\[(\d+):\d+\], a\[(\d+):\d+\], a\[(\d+):\d+\], v\[\1:\d+\]", r" MA \1,\2,\3", t)
    t = re.sub(r" v_mfma_f32_32x32x16_bf16 v\[(\d+):\d+\], a\[(\d+):\d+\], v\[(\d+):\d+\], v\[\1:\d+\]", r" NV \1,\2,\3", t)
    t = re.sub(r" v_mfma_f32_32x32x16_bf16 v\[(\d+):\d+\], a\[(\d+):\d+\], a\[(\d+):\d+\], v\[\1:\d+\]", r" NA \1,\2,\3", t)
    t = re.sub(r" v_mfma_f32_16x16x32_bf16 a\[(\d+):\d+\], a\[(\d+):\d+\], v\[(\d+):\d+\], a\[\1:\d+\]", r" MC \1,\2,\3", t)
    t = re.sub(r" ds_read_b64_tr_b16 a\[(\d+):\d+\], v(\d+) offset:(\d+)", r" RT \1,\2,\3", t)
    t = re.sub(r" ds_read_b128 a\[(\d+):\d+\], v(\d+) offset:(\d+)", r" RB \1,\2,\3", t)
    t = re.sub(r" v_cvt_pk_bf16_f32 v(\d+), v(\d+), v(\d+)", r" CV \1,\2,\3", t)
    t = re.sub(r" v_accvgpr_write_b32 a(\d+), v(\d+)", r" AW \1,\2", t)
    t = re.sub(r" v_exp_f32 v(\d+), v(\d+)", r" EX \1,\2", t)
    t = re.sub(r" v_add_f32 v(\d+), v(\d+), v(\d+)", r" AD \1,\2,\3", t)
    t = re.sub(r" v_mul_f32 v(\d+), v(\d+), v(\d+)", r" ML \1,\2,\3", t)
    t = re.sub(r" s_waitcnt lgkmcnt\((\d+)\)", r" WL \1", t)
    mac = r""".macro MC d,a,b
 v_mfma_f32_16x16x32_bf16 a[\d:\d+3], a[\a:\a+3], v[\b:\b+3], a[\d:\d+3]
.endm
.macro NV d,a,b
 v_mfma_f32_32x32x16_bf16 v[\d:\d+15], a[\a:\a+3], v[\b:\b+3], v[\d:\d+15]
.endm
.macro NA d,a,b
 v_mfma_f32_32x32x16_bf16 v[\d:\d+15], a[\a:\a+3], a[\b:\b+3], v[\d:\d+15]
.endm
.macro MV d,a,b
 v_mfma_f32_16x16x32_bf16 v[\d:\d+3], a[\a:\a+3], v[\b:\b+3], v[\d:\d+3]
.endm
.macro MA d,a,b
 v_mfma_f32_16x16x32_bf16 v[\d:\d+3], a[\a:\a+3], a[\b:\b+3], v[\d:\d+3]
.endm
.macro RT d,a,o
 ds_read_b64_tr_b16 a[\d:\d+1], v\a offset:\o
.endm
.macro RB d,a,o
 ds_read_b128 a[\d:\d+3], v\a offset:\o
.endm
.macro CV d,a,b
 v_cvt_pk_bf16_f32 v\d, v\a, v\b
.endm
.macro AW d,a
 v_accvgpr_write_b32 a\d, v\a
.endm
.macro EX d,a
 v_exp_f32 v\d, v\a
.endm
.macro AD d,a,b
 v_add_f32 v\d, v\a, v\b
.endm
.macro ML d,a,b
 v_mul_f32 v\d, v\a, v\b
.endm
.macro WL n
 s_waitcnt lgkmcnt(\n)
.endm
"""
    return mac, t

HDR = open('recurrent_scan__sliding_block_cached__dense_activation_silu__prompt.s.ref').read().split('; Override launch')[0]
DOC = """; Generated by my own scheduler scripts (hand-designed instruction streams, hazards padded by the script).
; registers as MFMA B operands (transposed formulation), weights / K / V stream through a 4-slot LDS ring (LDS-DMA).
;   role A (10): layernorm, Q projection, attention for 3 heads (one GQA pair shares K/V fragments), partial of o@wo
; The bf16 partials go to d_ws with write-through stores; progress words (reset per launch, guarded by a counter in
"""
def kd(name, vgpr, acc, sgpr=102):
    return f""".amdhsa_kernel {name}
  .amdhsa_next_free_vgpr {vgpr}
  .amdhsa_next_free_sgpr {sgpr}
  .amdhsa_accum_offset {acc}
  .amdhsa_group_segment_fixed_size 0
  .amdhsa_kernarg_size 88
  .amdhsa_user_sgpr_count 2
  .amdhsa_user_sgpr_kernarg_segment_ptr 1
  .amdhsa_system_sgpr_workgroup_id_x 1
.end_amdhsa_kernel
"""
def est_cycles(ins):
    tot = 0; cur = None; n = 0
    for i in ins:
        if i.kind == 'label': continue
        if i.kind == 'mfma':
            if cur is not None: tot += max(cap, cur)
            cur = 2; n += 1; cap = 8 if len(i.wr) == 16 else 4
        elif cur is not None:
            if i.txt.startswith('s_waitcnt lgkm') and cap == 4: continue
            cur += i.units if not i.txt.startswith('s_nop') else (int(i.txt.split()[1]) + 1) * 0.5
    return tot * 4

def main(out, **kw):
    CFG.update(kw)
    set_layout(CFG.get('l844'))
    if CFG.get('tab'):
        global ROLE_TAB
        ROLE_TAB = CFG['tab']
    CFG['shape0'] = CFG['shape']
    cp = common_prologue()
    if CFG.get('entry', 0):
        if CFG.get('entry', 1) == 1:
            k = next(i for i, x in enumerate(cp.ins) if x.txt == 's_waitcnt lgkmcnt(0)')
            tail = cp.ins[k:]; vmx = list(cp.vm); cp.ins = cp.ins[:k]; cp.vm = []
            common_prologue2(cp); cp.ins += tail; cp.vm += vmx
        else: common_prologue2(cp)
        common_prologue3(cp)
    body = text(cp.ins) + dispatch_text()
    for kind in 'FAM':
        R = build_role(kind, cp.vm)
        ins = fold_regions(fold(R.p.ins, kind), kind) if CFG['fold'] else R.p.ins
        nm = sum(1 for i in R.p.ins if i.kind == 'mfma')
        print(f"role {kind}: stages {len(R.stages)} mfma {nm} instrs {len([i for i in ins if i.kind!='label'])} (unrolled {len([i for i in R.p.ins if i.kind!='label'])}) pad {R.p.npad} forced {R.forced} est {est_cycles(R.p.ins)} ideal {sum(32 if len(i.wr) == 16 else 16 for i in R.p.ins if i.kind == 'mfma')}", file=sys.stderr)
        if CFG.get('abl_pair') and kind in 'AM':
            out_ = []; on = False
            for x in ins:
                if x.kind == 'label' and x.txt.startswith('; PAh'): on = x.txt.startswith('; PAh1')
                if x.kind == 'label' and x.txt.startswith('; P2'): on = False
                if on and (x.kind in ('dma', 'ds') or (x.kind == 'salu' and ('m0' in x.txt or 's70' in x.txt))): continue
                out_.append(x)
            ins = out_
        ab = CFG.get('ablate', '')
        if ab:
            st0 = next(i for i, x in enumerate(ins) if x.txt.startswith('; P1u1b0'))
            def keep(x):
                if 'd' in ab and x.kind == 'dma': return False
                if 'r' in ab and x.kind == 'ds': return False
                if 'v' in ab and x.kind in ('trans',): return False
                if 'V' in ab and x.kind in ('trans', 'valu', 'perm') and not x.txt.startswith(('v_add_u32', 'v_xor', 'v_writelane', 'v_cmp', 'v_cnd', 'v_mov', 'v_lsh', 'v_mad', 'v_min', 'v_and', 'v_bfe', 'v_mul_u32')): return False
                if 'm' in ab and x.kind == 'mfma': return False
                return True
            ins = ins[:st0] + [x for x in ins[st0:] if keep(x)]
        for sp in R.slow: ins = ins + sp.ins
        if CFG['fused']: ins = ins + reducer(kind).ins
        body += f".p2align 6\nL_role{kind}:\n" + text(ins) + f"L_role{kind}_end:\n"
    rk = reduce_kernel()
    mac, body = compress(body)
    if CFG['fused']:
        t = HDR + "; @launch grid=(256,1,1) block=(256,1,1) lds=163840\n" + DOC
        t += '.amdgcn_target "amdgcn-amd-amdhsa--gfx950"\n' + mac + f".text\n.globl {KN}\n.p2align 8\n.type {KN},@function\n{KN}:\n" + body
        t += '.section .rodata,"a"\n.p2align 6\n' + kd(KN, 512, 256)
        open(out, 'w').write(t); print("size", len(t), file=sys.stderr); return
    t = HDR + f"; @launch kernel={KN} grid=(256,1,1) block=(256,1,1) lds=163840\n; @launch kernel={RN} grid=(576,1,1) block=(256,1,1) lds=0\n"
    t += '.amdgcn_target "amdgcn-amd-amdhsa--gfx950"\n' + mac + f".text\n.globl {KN}\n.p2align 8\n.type {KN},@function\n{KN}:\n" + body
    t += f".globl {RN}\n.p2align 8\n.type {RN},@function\n{RN}:\n" + text(rk.ins)
    t += '.section .rodata,"a"\n.p2align 6\n' + kd(KN, 512, 256) + ".p2align 6\n" + kd(RN, 104, 104, 102)
    open(out, 'w').write(t)
    print("size", len(t), file=sys.stderr)

if __name__ == "__main__":
    kw = eval("dict(" + (sys.argv[2] if len(sys.argv) > 2 else "") + ")")
    main(sys.argv[1], **kw)
```

```python
import sys, re
from s1 import *

ROLE_TAB = [0, 1, 2, 11, 3, 4, 5, 12, 6, 7, 13, 14, 8, 9, 10, 15]
vPFR = v(36)
vPRG = v(36)
PART = 4 * PWAVE
NPART = 17
NA, NM, NS = 10, 1, 11
def set_layout(new):
    global NPART, NA, NM, NS, ROLE_TAB
    if new:
        NPART, NA, NM, NS = 20, 8, 4, 12
        ROLE_TAB = [0, 1, 8, 12, 2, 3, 9, 13, 4, 5, 10, 14, 6, 7, 11, 15]
WSP_BYTES = NPART * 16 * PART
def PSTR(): return 16 * PART + (CFG.get('pskew', 0) if CFG['fused'] else 0)
sJQ, sQ0, sOA1, sOB1 = s(73), s(59), s(74), s(75)
STAMP_OFF = 0x3000000
CTRL = 0x2F00000
OOB = 0x10000000

def srd(p, dst, lo, nbytes):
    p.emit([smov(dst[0], s(lo)), salu('s_and_b32', dst[1], s(lo + 1), 0xffff), smov(dst[2], nbytes), smov(dst[3], 0x20000)])
def xdma(j):
    return [salu('s_add_u32', 'm0', s(6), j * 4096), salu('s_add_u32', sT, s(7), j * 128)] + [dma(v(16 + q), sX, sT, q * 1024, tag=('x', j)) for q in range(4)]
def mul(d, a_, b_): return salu('s_mul_i32', d, a_, b_, scc_w=False)
def add(d, a_, b_): return salu('s_add_u32', d, a_, b_)
def shl(d, a_, b_): return salu('s_lshl_b32', d, a_, b_)
def shr(d, a_, b_): return salu('s_lshr_b32', d, a_, b_)
def csel(d, a_, b_): return salu('s_cselect_b32', d, a_, b_, scc_w=False, scc_r=True)

def common_prologue():
    if CFG.get('entry', 0) == 0: return common_prologue_old()
    assert CFG['xe'] == 9 and CFG.get('map', 4) == 4
    p = Prog(); E = p.emit
    E(raw("s_load_dwordx8 s[40:47], s[0:1], 0", wr=[s(40, 8)]))
    E(salu('s_cmp_ge_u32', None, s(2), 256))
    E(raw("s_cbranch_scc0 L_go")); E(raw("s_endpgm")); E(label("L_go"))
    if CFG['stamps']:
        E(raw(f"s_memtime {sT0}", wr=[sT0])); E(raw("s_memrealtime s[96:97]", wr=[s(96, 2)]))
    E(valu('v_lshrrev_b32', v(1), 6, v(0)))
    E(salu('s_and_b32', s(3), s(2), 1)); E(shl(s(3), s(3), 3))
    E(valu('v_readfirstlane_b32', sWAVE, v(1)))
    E(shr(sRB, s(2), 5)); E(salu('s_or_b32', sRB, sRB, s(3)))
    E(valu('v_and_b32', v(0), 63, v(0)))
    E(valu('v_lshrrev_b32', vROWN, 3, v(0)))
    E(valu('v_and_b32', v(20), 7, v(0))); E(valu('v_lshrrev_b32', v(21), 4, v(0)))
    E(valu('v_xor_b32', v(22), v(20), v(21))); E(valu('v_xor_b32', v(23), 4, v(22)))
    E(salu('s_movk_i32', s(3), 1152, scc_w=False)); E(valu('v_mul_u32_u24', v(24), s(3), vROWN))
    E(valu('v_lshl_add_u32', v(16), v(22), 4, v(24))); E(valu('v_lshl_add_u32', v(17), v(23), 4, v(24)))
    E(valu('v_add_u32', v(17), 8 * 1152 - 1024, v(17)))
    E(valu('v_add_u32', v(18), 2 * (8 * 1152 - 1024), v(16))); E(valu('v_add_u32', v(19), 2 * (8 * 1152 - 1024), v(17)))
    E(mul(s(6), sWAVE, XW)); E(raw("s_lshl2_add_u32 s7, s64, s62", 'salu', wr=[s(7)], rd=[sRB, sWAVE])); E(mul(sT, s(7), 32 * 1152))
    E(smov('m0', s(6))); E(add(s(7), sT, 9 * 128))
    E(smov(sX[2], 2359296)); E(smov(sX[3], 0x20000))
    E(raw("s_waitcnt lgkmcnt(0)"))
    E(smov(sX[0], s(40))); E(salu('s_and_b32', sX[1], s(41), 0xffff))
    E(label("L_xl"))
    n0 = len(p.vm)
    for q in range(4): E(dma(v(16 + q), sX, sT, q * 1024))
    del p.vm[n0:]
    for j in range(9): p.vm += [('x', j)] * 4
    E(add(sT, sT, 128)); E(add('m0', 'm0', 4096)); E(salu('s_cmp_lt_u32', None, sT, s(7))); E(raw("s_cbranch_scc1 L_xl"))
    return p
def common_prologue2(p):
    E = p.emit
    tab = ROLE_TAB
    lo = sum(tab[i] << (4 * i) for i in range(8)); hi = sum(tab[8 + i] << (4 * i) for i in range(8))
    E(salu('s_bfe_u32', s(3), s(2), (2 << 16) | 3)); E(salu('s_bfe_u32', s(4), s(2), (1 << 16) | 1))
    E(shl(s(4), s(4), 2)); E(salu('s_or_b32', s(3), s(3), s(4))); E(shl(s(3), s(3), 2))
    E(salu('s_bitcmp1_b32', None, s(2), 2))
    E(smov(s(4), lo)); E(csel(s(4), hi, s(4)))
    E(shr(s(4), s(4), s(3))); E(salu('s_and_b32', sROLE, s(4), 15))
    E(raw(f"s_getpc_b64 {sPC}", wr=[sPC])); E(label("L_pc"))
    E(smov(s(4), "L_roleA-L_pc")); E(smov(s(5), "L_roleA_end-L_pc-4"))
    E(salu('s_cmp_ge_u32', None, sROLE, NA)); E(csel(s(4), "L_roleM-L_pc", s(4))); E(csel(s(5), "L_roleM_end-L_pc-4", s(5)))
    E(salu('s_cmp_ge_u32', None, sROLE, NA + NM)); E(csel(s(4), "L_roleF-L_pc", s(4))); E(csel(s(5), "L_roleF_end-L_pc-4", s(5)))
    n0 = CFG.get('code0', 16); NL = CFG.get('codelines', 24)
    if n0:
        E(mul(s(3), sWAVE, n0 * 128)); E(add(s(3), s(3), s(4)))
        E(valu('v_min_u32', v(2), n0 - 1, v(0))); E(valu('v_lshlrev_b32', v(2), 7, v(2))); E(valu('v_add_u32', v(2), s(3), v(2)))
        E(I(f"global_load_dword {vDUM}, v2, {sPC}", 'vload', wr=vDUM.regs(), rd=vr(2) + sPC.regs(), tag='pf'))
    E(salu('s_and_b32', s(3), sRB, 7)); E(shl(s(3), s(3), 2)); E(add(s(3), s(3), sWAVE))
    E(mul(s(3), s(3), NL * 128)); E(add(s(3), s(3), s(4)))
    E(valu('v_min_u32', v(2), NL - 1, v(0))); E(valu('v_lshlrev_b32', v(2), 7, v(2))); E(valu('v_add_u32', v(2), s(3), v(2)))
    E(valu('v_min_u32', v(3), s(5), v(2)))
    E(I(f"global_load_dword {vDUM}, v3, {sPC}", 'vload', wr=vDUM.regs(), rd=vr(3) + sPC.regs(), tag='pf'))
def common_prologue3(p):
    E = p.emit
    E(raw("s_load_dwordx2 s[48:49], s[0:1], 32", wr=[s(48, 2)]))
    E(raw("s_load_dwordx8 s[52:59], s[0:1], 48", wr=[s(52, 8)]))
    E(raw("s_load_dwordx2 s[50:51], s[0:1], 80", wr=[s(50, 2)]))
    srd(p, sK, 42, 8388608); srd(p, sV, 44, 8388608); srd(p, sWQ, 46, 4718592)
    E(mul(sW8704, sWAVE, 8 * PP)); E(mul(sWC, sWAVE, PP)); E(add(sWC, sWC, 32 * PP))
    E(shl(sW8192, sWAVE, 13)); E(shl(sWCH, sWAVE, 10)); E(add(sWCH, sWCH, 32768))
    E(mul(sW2176, sWAVE, 2 * PP)); E(mul(sW4352, sWAVE, 4 * PP)); E(add(sWA2, sW2176, 16 * PP))
    E(raw("s_waitcnt lgkmcnt(0)"))
    srd(p, sWO, 48, 4718592)
    srd(p, sW1, 52, 5308416); srd(p, sW2, 54, 5308416); srd(p, sWS, 50, 0x10000000 if (CFG['stamps'] or CFG['fused']) else WSP_BYTES)
    srd(p, sOUT, 56, 2359296); srd(p, sDBG, 58, 256)

def common_prologue_old():
    p = Prog(); E = p.emit
    E(salu('s_cmp_ge_u32', None, s(2), 256))
    E(raw("s_cbranch_scc0 L_go")); E(raw("s_endpgm")); E(label("L_go"))
    E(raw("s_load_dwordx8 s[40:47], s[0:1], 0", wr=[s(40, 8)]))
    E(raw("s_load_dwordx2 s[48:49], s[0:1], 32", wr=[s(48, 2)]))
    E(raw("s_load_dwordx8 s[52:59], s[0:1], 48", wr=[s(52, 8)]))
    E(raw("s_load_dwordx2 s[50:51], s[0:1], 80", wr=[s(50, 2)]))
    if CFG['stamps']:
        E(raw(f"s_memtime {sT0}", wr=[sT0])); E(raw("s_memrealtime s[96:97]", wr=[s(96, 2)]))
    tab = ROLE_TAB
    if CFG.get('map', 4) == 41:
        t4 = CFG.get('t41', [11, 0, 1, 2, 12, 3, 4, 5, 13, 14, 6, 7, 15, 10, 8, 9])
        lo = sum(t4[i] << (4 * i) for i in range(8)); hi = sum(t4[8 + i] << (4 * i) for i in range(8))
        E(shr(s(3), s(2), 6)); E(salu('s_bfe_u32', s(4), s(2), (1 << 16) | 1))
        E(shl(s(4), s(4), 2)); E(salu('s_or_b32', s(3), s(3), s(4))); E(shl(s(3), s(3), 2))
        E(salu('s_bitcmp1_b32', None, s(2), 2)); E(smov(s(4), lo)); E(csel(s(4), hi, s(4)))
        E(shr(s(4), s(4), s(3))); E(salu('s_and_b32', sROLE, s(4), 15))
        E(salu('s_and_b32', s(3), s(2), 1)); E(shl(s(3), s(3), 3))
        E(salu('s_bfe_u32', sRB, s(2), (3 << 16) | 3)); E(salu('s_or_b32', sRB, sRB, s(3)))
    elif CFG.get('map', 4) == 8:
        t8 = [0, 1, 2, 3, 4, 10, 11, 12, 5, 6, 7, 8, 9, 13, 14, 15]
        lo = sum(t8[i] << (4 * i) for i in range(8)); hi = sum(t8[8 + i] << (4 * i) for i in range(8))
        E(salu('s_bfe_u32', s(3), s(2), (3 << 16) | 3)); E(shl(s(3), s(3), 2))
        E(salu('s_bitcmp1_b32', None, s(2), 2)); E(smov(s(4), lo)); E(csel(s(4), hi, s(4)))
        E(shr(s(4), s(4), s(3))); E(salu('s_and_b32', sROLE, s(4), 15))
        E(salu('s_and_b32', s(3), s(2), 1)); E(shl(s(3), s(3), 3)); E(salu('s_and_b32', s(4), s(2), 2)); E(shl(s(4), s(4), 1))
        E(shr(sRB, s(2), 6)); E(salu('s_or_b32', sRB, sRB, s(3))); E(salu('s_or_b32', sRB, sRB, s(4)))
    elif CFG.get('map', 4) == 2:
        t2 = [0, 1, 2, 3, 4, 11, 5, 12, 6, 13, 7, 14, 8, 15, 9, 10]
        lo = sum(t2[i] << (4 * i) for i in range(8)); hi = sum(t2[8 + i] << (4 * i) for i in range(8))
        E(salu('s_bfe_u32', s(3), s(2), (1 << 16) | 3)); E(salu('s_and_b32', s(4), s(2), 3)); E(shl(s(4), s(4), 1)); E(salu('s_or_b32', s(3), s(3), s(4))); E(shl(s(3), s(3), 2))
        E(salu('s_bitcmp1_b32', None, s(2), 2)); E(smov(s(4), lo)); E(csel(s(4), hi, s(4)))
        E(shr(s(4), s(4), s(3))); E(salu('s_and_b32', sROLE, s(4), 15)); E(shr(sRB, s(2), 4))
    else:
        lo = sum(tab[i] << (4 * i) for i in range(8)); hi = sum(tab[8 + i] << (4 * i) for i in range(8))
        E(salu('s_bfe_u32', s(3), s(2), (2 << 16) | 3)); E(salu('s_bfe_u32', s(4), s(2), (1 << 16) | 1))
        E(shl(s(4), s(4), 2)); E(salu('s_or_b32', s(3), s(3), s(4))); E(shl(s(3), s(3), 2))
        E(salu('s_bitcmp1_b32', None, s(2), 2))
        E(smov(s(4), lo)); E(csel(s(4), hi, s(4)))
        E(shr(s(4), s(4), s(3))); E(salu('s_and_b32', sROLE, s(4), 15))
        E(salu('s_and_b32', s(3), s(2), 1)); E(shl(s(3), s(3), 3))
        E(shr(sRB, s(2), 5)); E(salu('s_or_b32', sRB, sRB, s(3)))
    E(valu('v_lshrrev_b32', v(1), 6, v(0)))
    E(valu('v_readfirstlane_b32', sWAVE, v(1)))
    E(valu('v_and_b32', v(0), 63, v(0)))
    E(valu('v_lshrrev_b32', vROWN, 3, v(0)))
    E(valu('v_and_b32', v(20), 7, v(0))); E(valu('v_lshrrev_b32', v(21), 4, v(0)))
    E(valu('v_xor_b32', v(22), v(20), v(21))); E(valu('v_xor_b32', v(23), 4, v(22)))
    E(smov(s(3), 1152)); E(valu('v_mul_u32_u24', v(24), s(3), vROWN))
    E(valu('v_lshl_add_u32', v(16), v(22), 4, v(24))); E(valu('v_lshl_add_u32', v(17), v(23), 4, v(24)))
    E(valu('v_add_u32', v(17), 8 * 1152 - 1024, v(17)))
    E(valu('v_add_u32', v(18), 2 * (8 * 1152 - 1024), v(16))); E(valu('v_add_u32', v(19), 2 * (8 * 1152 - 1024), v(17)))
    E(mul(s(6), sWAVE, XW))
    E(shl(s(7), sRB, 2)); E(add(s(7), s(7), sWAVE)); E(mul(s(7), s(7), 32 * 1152))
    E(raw(f"s_getpc_b64 {sPC}", wr=[sPC])); E(label("L_pc"))
    E(smov(s(4), "L_roleA-L_pc")); E(smov(s(5), "L_roleA_end-L_pc-4"))
    E(salu('s_cmp_ge_u32', None, sROLE, NA)); E(csel(s(4), "L_roleM-L_pc", s(4))); E(csel(s(5), "L_roleM_end-L_pc-4", s(5)))
    E(salu('s_cmp_ge_u32', None, sROLE, NA + NM)); E(csel(s(4), "L_roleF-L_pc", s(4))); E(csel(s(5), "L_roleF_end-L_pc-4", s(5)))
    def code_pf():
        NL = CFG.get('codelines', 24)
        E(salu('s_and_b32', s(3), sRB, 7)); E(shl(s(3), s(3), 2)); E(add(s(3), s(3), sWAVE))
        E(mul(s(3), s(3), NL * 128)); E(add(s(3), s(3), s(4)))
        E(valu('v_min_u32', v(2), NL - 1, v(0))); E(valu('v_lshlrev_b32', v(2), 7, v(2))); E(valu('v_add_u32', v(2), s(3), v(2)))
        E(valu('v_min_u32', v(3), s(5), v(2)))
        E(I(f"global_load_dword {vDUM}, v3, {sPC}", 'vload', wr=vDUM.regs(), rd=vr(3) + sPC.regs(), tag='pf'))
    if CFG.get('codepf', 3) >= 3:
        n0 = CFG.get('code0', 16)
        if n0:
            E(mul(s(3), sWAVE, n0 * 128)); E(add(s(3), s(3), s(4)))
            E(valu('v_min_u32', v(2), n0 - 1, v(0))); E(valu('v_lshlrev_b32', v(2), 7, v(2))); E(valu('v_add_u32', v(2), s(3), v(2)))
            E(I(f"global_load_dword {vDUM}, v2, {sPC}", 'vload', wr=vDUM.regs(), rd=vr(2) + sPC.regs(), tag='pf'))
        code_pf()
    E(raw("s_waitcnt lgkmcnt(0)"))
    srd(p, sX, 40, 2359296)
    nx0 = CFG.get('tx', 2) if CFG.get('touch') else 0
    for j in range(nx0): E(xdma(j))
    if CFG.get('touch'):
        E(salu('s_cmp_gt_u32', None, sROLE, 10))
        E(raw("s_cselect_b64 s[60:61], s[52:53], s[46:47]", 'salu', wr=[s(60, 2)], rd=[s(52, 2), s(46, 2)]))
        E(raw("s_cselect_b64 s[66:67], s[54:55], s[48:49]", 'salu', wr=[s(66, 2)], rd=[s(54, 2), s(48, 2)]))
        E(salu('s_cmp_eq_u32', None, sWAVE, 1)); E(raw("s_cselect_b64 s[60:61], s[66:67], s[60:61]", 'salu', wr=[s(60, 2)], rd=[s(66, 2), s(60, 2)]))
        E(salu('s_cmp_eq_u32', None, sWAVE, 2)); E(raw("s_cselect_b64 s[60:61], s[42:43], s[60:61]", 'salu', wr=[s(60, 2)], rd=[s(42, 2), s(60, 2)]))
        E(salu('s_cmp_eq_u32', None, sWAVE, 3)); E(raw("s_cselect_b64 s[60:61], s[44:45], s[60:61]", 'salu', wr=[s(60, 2)], rd=[s(44, 2), s(60, 2)]))
        E(smov(s(3), 73728)); E(salu('s_cmp_ge_u32', None, sWAVE, 2)); E(csel(s(3), 131072, s(3)))
        E(valu('v_mul_u32_u24', v(2), s(3), v(0)))
        E(I(f"global_load_dword {vDUM}, v2, s[60:61]", 'vload', wr=vDUM.regs(), rd=vr(2) + sr(60, 2), tag='pf'))
    for j in range(nx0, CFG['xe']): E(xdma(j))
    if CFG.get('codepf', 3) == 1: code_pf()
    if CFG.get('codepf', 3) == 2:
        E(valu('v_mov_b32', v(46), v(3))); E(raw(f"s_mov_b64 s[100:101], {sPC}", 'salu', wr=[s(100, 2)], rd=[sPC]))
    srd(p, sK, 42, 8388608); srd(p, sV, 44, 8388608); srd(p, sWQ, 46, 4718592); srd(p, sWO, 48, 4718592)
    srd(p, sW1, 52, 5308416); srd(p, sW2, 54, 5308416); srd(p, sWS, 50, 0x10000000 if (CFG['stamps'] or CFG['fused']) else WSP_BYTES)
    srd(p, sOUT, 56, 2359296); srd(p, sDBG, 58, 256)
    E(mul(sW8704, sWAVE, 8 * PP)); E(mul(sWC, sWAVE, PP)); E(add(sWC, sWC, 32 * PP))
    E(shl(sW8192, sWAVE, 13)); E(shl(sWCH, sWAVE, 10)); E(add(sWCH, sWCH, 32768))
    E(mul(sW2176, sWAVE, 2 * PP)); E(mul(sW4352, sWAVE, 4 * PP)); E(add(sWA2, sW2176, 16 * PP))
    return p

def dispatch_text():
    return f""" s_cmp_ge_u32 {sROLE}, {NA + NM}
 s_cbranch_scc1 L_roleF
 s_cmp_ge_u32 {sROLE}, {NA}
 s_getpc_b64 s[94:95]
L_pc2:
 s_cbranch_scc1 L_jM
 s_add_u32 s94, s94, L_roleA-L_pc2
 s_addc_u32 s95, s95, 0
 s_setpc_b64 s[94:95]
L_jM:
 s_add_u32 s94, s94, L_roleM-L_pc2
 s_addc_u32 s95, s95, 0
 s_setpc_b64 s[94:95]
"""

def pfload(srd_, base):
    ld = bload('buffer_load_dword', vDUM, vPF, srd_, base); ld.tag = 'pf'; return ld
def pf_lin(srd_, base_s, start, nbytes, nl=64):
    def f():
        return [valu('v_lshrrev_b32', vPF2, 16, vTID), valu('v_and_b32', vPF, 63, vTID), valu('v_min_u32', vPF, nl - 1, vPF),
                valu('v_mad_u32_u24', vPF, vPF2, nl, vPF), valu('v_lshlrev_b32', vPF, 7, vPF), valu('v_add_u32', vPF, start, vPF),
                valu('v_min_u32', vPF, nbytes - 128, vPF), pfload(srd_, base_s)]
    return f
def pf_run(srd_, base_s, nbytes, nl):
    def f():
        return [valu('v_min_u32', vPF, nbytes - 128, vPFR), valu('v_add_u32', vPFR, 64 * nl * 128, vPFR), pfload(srd_, base_s)]
    f.nl = nl
    return f
def vPFW(kind): return {'F': v(8), 'A': v(7), 'M': v(36)}[kind]
def pf_row(kind, srd_, step=128):
    def f():
        ld = bload('buffer_load_dword', vDUM, vPFW(kind), srd_, sPW); ld.tag = 'pf'
        return [add(sPW, sPW, step), ld]
    return f
def pf_row_setup(kind, pitch, nl, base, lit):
    r = vPFW(kind)
    return [valu('v_bfe_u32', vPF2, vTID, 16, 5), valu('v_and_b32', r, 63, vTID), valu('v_min_u32', r, nl - 1, r),
            valu('v_mad_u32_u24', r, vPF2, nl, r), smov(sT2, pitch), valu('v_mul_u32_u24', r, sT2, r), add(sPW, base, lit)]
def pf_code(la, lb, nl):
    def f():
        L = f"L_cp{pf_code.k}"; pf_code.k += 1
        ld = I(f"global_load_dword {vDUM}, {vPF}, {sPC}", 'vload', wr=vDUM.regs(), rd=vPF.regs() + sPC.regs(), units=3, tag='pf')
        return [raw(f"s_getpc_b64 {sPC}", 'salu', wr=[sPC]), label(L),
                salu('s_add_u32', sPC[0], sPC[0], f"{la}-{L}"), salu('s_addc_u32', sPC[1], sPC[1], 0, scc_r=True),
                valu('v_bfe_u32', vPF2, vTID, 16, 5), valu('v_and_b32', vPF, 63, vTID), valu('v_min_u32', vPF, nl - 1, vPF),
                valu('v_mad_u32_u24', vPF, vPF2, nl, vPF), valu('v_lshlrev_b32', vPF, 7, vPF), valu('v_min_u32', vPF, f"{lb}-{la}-4", vPF), ld]
    return f
pf_code.k = 0
def pf_sched(R, k0, srd_, base_s, nbytes, nl):
    per = 64 * nl * 128; k = k0
    for st in range(0, nbytes, per):
        R.pf.setdefault(k, []).append(pf_lin(srd_, base_s, st, nbytes, nl)); k += 1
    return k

def role_prologue(R, vm_before):
    p = R.p; E = p.emit; kind = R.kind
    p.vm = list(vm_before)
    MS = CFG['shape'] == 'M'
    def PS(k):
        if CFG['stamps'] == 1: R.stamp(k)
    if CFG.get('delayrole') is not None:
        for r_ in CFG['delayrole']:
            E(salu('s_cmp_eq_u32', None, sROLE, r_[0])); E(raw(f"s_cbranch_scc0 L_{kind}_nd{r_[0]}"))
            E(smov(sLC, r_[1])); E(label(f"L_{kind}_dl{r_[0]}")); E(raw("s_sleep 127")); E(salu('s_sub_u32', sLC, sLC, 1)); E(salu('s_cmp_lg_u32', None, sLC, 0)); E(raw(f"s_cbranch_scc1 L_{kind}_dl{r_[0]}"))
            E(label(f"L_{kind}_nd{r_[0]}"))
    PS(56)
    lane = v(0)
    E(shl(sT2, sRB, 2)); E(add(sT2, sT2, sWAVE)); E(shl(sT2, sT2, 16)); E(valu('v_or_b32', vTID, sT2, lane))
    if kind in 'AM' and CFG.get('pair'):
        sHP_, sHS_ = s(86), s(85)
        if CFG.get('l844'): E(shl(sHP_, sROLE, 1)); E(add(sHP_, sHP_, 8))
        else: E(mul(sHP_, sROLE, 3))
        if kind == 'A':
            sHP_, sHS_ = sFA, sFC
            E(mul(sHS_, sROLE, 3)); E(salu('s_and_b32', s(4), sROLE, 1)); E(add(sHP_, sHS_, s(4)))
            E(shl(s(4), s(4), 1)); E(add(sHS_, sHS_, 2)); E(salu('s_sub_u32', sHS_, sHS_, s(4)))
            E(salu('s_sub_u32', sJQ, sHS_, sHP_)); E(shl(sJQ, sJQ, 8)); E(salu('s_sub_u32', sJQ, sJQ, 3 * 128))
        E(shl(sQ0, sHP_, 8))
        E(mul(sQA, sWAVE, 64 * 8192)); E(add(sQA, sQA, sQ0))
        E(shl(sQC, sWAVE, 16)); E(add(sQC, sQC, sQ0)); E(add(sQC, sQC, 256 * 8192))
        E(shr(s(3), sWAVE, 1)); E(shl(s(3), s(3), 13)); E(salu('s_and_b32', s(4), sWAVE, 1)); E(shl(s(4), s(4), 11)); E(add(s(3), s(3), s(4)))
        E(salu('s_sub_u32', s(3), s(3), 64)); E(shl(s(4), sWAVE, 11))
        for e, (h_, pfr) in enumerate([(sHP_, sPFa), (sHS_, sPFb)][:2 if kind == 'A' else 1]):
            E(shr(pfr, h_, 1)); E(shl(pfr, pfr, 19)); E(add(pfr, pfr, 1536 * 256))
            E(add(sKb[e], pfr, s(4))); E(add(sVb[e], pfr, s(3)))
        E(mul(sPFc, sROLE, 384 * 1152) if kind == 'A' else mul(sPFc, sHP_, 128 * 1152))
        if kind == 'A':
            E(mul(sHP_, sHP_, 128 * 1152)); E(mul(sHS_, sHS_, 128 * 1152))
            E(mul(sOA, sWAVE, 32 * 1152)); E(add(sOA1, sOA, sHS_)); E(add(sOA, sOA, sHP_))
            E(salu('s_sub_u32', sOA1, sOA1, 64 * 1152)); E(add(sT3, sOA, 192 * 1152)); E(salu('s_cmp_lt_u32', None, sWAVE, 2)); E(csel(sOA1, sT3, sOA1))
            E(shr(s(3), sWAVE, 1)); E(shl(s(3), s(3), 2)); E(salu('s_and_b32', s(4), sWAVE, 1)); E(add(s(3), s(3), s(4)))
            E(mul(sOB, s(3), 8 * 1152)); E(add(sOB1, sOB, sHS_)); E(add(sOB1, sOB1, 64 * 1152)); E(add(sOB, sOB, sHP_)); E(add(sOB, sOB, 128 * 1152))
        else:
            E(mul(sOA, sWAVE, 64 * 1152)); E(add(sOA, sOA, sPFc))
    elif kind in 'AM':
        E(mul(sT3, sROLE, 3 * 256))
        E(mul(sQA, sWAVE, 64 * 8192)); E(add(sQA, sQA, sT3))
        E(shl(sQC, sWAVE, 16)); E(add(sQC, sQC, sT3)); E(add(sQC, sQC, 256 * 8192))
        E(shr(s(3), sWAVE, 1)); E(shl(s(3), s(3), 13)); E(salu('s_and_b32', s(4), sWAVE, 1)); E(shl(s(4), s(4), 11)); E(add(s(3), s(3), s(4)))
        E(salu('s_sub_u32', s(3), s(3), 64)); E(shl(s(4), sWAVE, 11))
        if MS: E(shl(s(3), sWAVE, 12))
        for e in range(3 if kind == 'A' else 2):
            E(mul(sT3, sROLE, 3)); E(add(sT3, sT3, e)); E(shr(sT3, sT3, 1)); E(shl(sT3, sT3, 19)); E(add(sT3, sT3, 1536 * 256))
            if e == 0: E(smov(sPFa, sT3))
            if e == (2 if kind == 'A' else 1): E(smov(sPFb, sT3))
            E(add(sKb[e], sT3, s(4))); E(add(sVb[e], sT3, s(3)))
        E(mul(sPFc, sROLE, 384 * 1152))
        if kind == 'A':
            E(mul(sOA, sWAVE, 32 * 1152)); E(add(sOA, sOA, sPFc))
            E(shr(s(3), sWAVE, 1)); E(shl(s(3), s(3), 2)); E(salu('s_and_b32', s(4), sWAVE, 1)); E(add(s(3), s(3), s(4)))
            E(mul(sOB, s(3), 8 * 1152)); E(add(sOB, sOB, sPFc)); E(add(sOB, sOB, 128 * 1152))
        else:
            E(mul(sOA, sWAVE, 64 * 1152)); E(add(sOA, sOA, sPFc))
    if kind in 'FM':
        if kind == 'F':
            E(salu('s_sub_u32', s(3), sROLE, NA + NM)); E(mul(sPF1, s(3), 13 * 128)); E(shl(sPF1h, s(3), 6)); E(add(sPF1h, sPF1h, 69 * 128))
        elif CFG.get('l844'):
            E(mul(sPF1, sROLE, 5 * 128)); E(add(sPF1, sPF1, (52 - 40) * 128)); E(smov(sPF1h, sPF1))
        else:
            E(smov(sPF1, f_fullcol(5) * 2)); E(smov(sPF1h, f_halfcol(5) * 2))
        E(mul(sHA, sWAVE, 64 * 9216)); E(add(sHA, sHA, sPF1))
        E(mul(sHC, sWAVE, 8 * 9216)); E(add(sHC, sHC, sPF1)); E(add(sHC, sHC, 256 * 9216))
        E(mul(sHH, sWAVE, 128 * 9216)); E(add(sHH, sHH, sPF1h))
        E(mul(sHHC, sWAVE, 16 * 9216)); E(add(sHHC, sHHC, sPF1h)); E(add(sHHC, sHHC, 512 * 9216))
        E(mul(sPF2, sPF1, 576)); E(mul(sPF2h, sPF1h, 576))
        E(mul(sFA, sWAVE, 64 * 1152)); E(add(sFA, sFA, sPF2))
        if MS:
            E(salu('s_and_b32', s(3), sWAVE, 1)); E(shl(s(3), s(3), 1)); E(shr(s(4), sWAVE, 1)); E(add(s(3), s(3), s(4))); E(mul(sFC, s(3), 8 * 1152))
        else: E(mul(sFC, sWAVE, 4 * 1152))
        E(add(sFS, sFC, sPF2h)); E(add(sFC, sFC, sPF2)); E(add(sFC, sFC, 256 * 1152))
    if CFG['pf'] >= 3:
        if kind in 'AM': E(mul(sT3, sROLE, 3 * 256) if not CFG.get('pair') else smov(sT3, sQ0))
        E(pf_row_setup(kind, 8192 if kind in 'AM' else 9216, 18, sT3 if kind in 'AM' else sPF1, 0))
        f_ = pf_row(kind, sWQ if kind in 'AM' else sW1)
        early_pf = [f_()[1]] + f_() + f_()
    E(add(sT3, sROLE, NS - NA if kind == 'F' else 0))
    E(mul(sSt, sT3, PSTR())); E(shl(sT3, sRB, 2)); E(add(sT3, sT3, sWAVE)); E(mul(sT3, sT3, PWAVE)); E(add(sSt, sSt, sT3))
    if kind == 'M': E(add(sSt2, sSt, (NS - NA) * PSTR()))
    if CFG['fused']:
        E(shl(sT2, sRB, 14)); E(add(sT2, sT2, CTRL))
        E(add(sT3, sROLE, NS - NA if kind == 'F' else 0)); E(shl(sT3, sT3, 2)); E(add(sT3, sT3, sT2))
        E(salu('s_cmp_eq_u32', None, sWAVE, 0)); E(csel(sT3, sT3, OOB)); E(csel(sT2, sT2, OOB))
        E(valu('v_and_b32', v(24), 15, lane)); E(valu('v_lshlrev_b32', v(25), 7, v(24))); E(valu('v_add_u32', v(25), 128, v(25)))
        E(raw("v_cmp_eq_u32 vcc, 0, v24", 'valu', wr=['vcc'], rd=[v(24)])); E(valu('v_cndmask_b32', v(25), v(25), 0, 'vcc') if False else raw("v_cndmask_b32 v25, v25, v24, vcc", 'valu', wr=[v(25)], rd=[v(25), v(24), 'vcc']))
        E(valu('v_lshrrev_b32', v(26), 4, lane)); E(valu('v_lshl_add_u32', v(25), v(26), 2 + (NS - NA).bit_length() - 1, v(25))); E(valu('v_add_u32', v(25), sT3, v(25)))
        E(raw(f"s_mov_b64 vcc, {hex(((1 << (NA + 1)) - 1) * (0x10001 if kind == 'M' else 1))}", 'salu', wr=['vcc'])); E(valu('v_mov_b32', vCT, OOB)); E(nop(1))
        E(raw(f"v_cndmask_b32 {vCT}, {vCT}, v25, vcc", 'valu', wr=[vCT], rd=[vCT, v(25), 'vcc']))
        E(valu('v_mov_b32', v(24), vCT))
        assert not (CFG.get('l844') or CFG.get('four') or CFG.get('nof'))
        E(add(sT2, sT2, 4 * (NPART + 1)))
        def flag(lane_, item):
            E(raw(f"s_lshl2_add_u32 {sT3}, {item}, {sT2}", 'salu', wr=[sT3], rd=[item, sT2]))
            E(raw(f"v_writelane_b32 v24, {sT3}, {lane_}", 'valu', wr=[v(24)], rd=[sT3, v(24)]))
        if kind == 'A':
            tab3 = [28, 29, 22, 30, 31, 21, 32, 33, 34, 35]
            flag(32, sROLE); E(add(s(4), sROLE, 10)); flag(33, s(4))
            E(smov(s(98), sum((tab3[i] - 20) << (4 * i) for i in range(8)))); E(smov(s(99), (tab3[8] - 20) | ((tab3[9] - 20) << 4)))
            E(shl(s(4), sROLE, 2)); E(salu('s_lshr_b64', s(98, 2), s(98, 2), s(4))); E(salu('s_and_b32', s(4), s(98), 15)); E(add(s(4), s(4), 20)); flag(34, s(4))
        else:
            E(smov(s(4), 20) if kind == 'M' else add(s(4), sROLE, 12)); flag(32, s(4))
        E(valu('v_mov_b32', v(25), 0))
        z = bstore('buffer_store_dword', v(25), v(24), sWS, 0, flags='sc1'); z.tag = 'zero'; E(z)
        E(shl(sT2, sRB, 4)); E(salu('s_cmp_eq_u32', None, sWAVE, 0)); E(csel(sT2, sT2, 256))
        E(valu('v_mov_b32', v(23), 256)); E(raw(f"v_writelane_b32 v23, {sT2}, 0", 'valu', wr=[v(23)], rd=[sT2, v(23)]))
    T_ = [v(24), v(25), v(26), v(27), v(28), v(29)]
    q, r, c4, rb1 = T_[0], T_[1], T_[2], T_[3]
    E(valu('v_lshrrev_b32', q, 4, lane)); E(valu('v_bfe_u32', r, lane, 2, 2)); E(valu('v_and_b32', c4, 3, lane)); E(valu('v_bfe_u32', rb1, lane, 3, 1))
    E(valu('v_and_b32', T_[4], 7, lane)); E(valu('v_bfe_u32', T_[5], lane, 4, 1)); E(valu('v_lshlrev_b32', T_[5], 1, T_[5]))
    E(valu('v_xor_b32', T_[4], T_[4], T_[5])); E(valu('v_lshlrev_b32', vSWZ, 4, T_[4]))
    E(valu('v_lshrrev_b32', T_[4], 5, lane)); E(valu('v_and_b32', T_[5], 3, vROWN)); E(valu('v_lshl_add_u32', vROWP, T_[4], 4, T_[5]))
    E(smov(sT2, PP)); E(valu('v_mul_u32_u24', T_[4], sT2, q)); E(valu('v_lshl_add_u32', T_[4], r, 7, T_[4]))
    E(valu('v_lshl_add_u32', T_[4], c4, 3, T_[4])); E(valu('v_lshl_add_u32', vRW[0][0], rb1, 5, T_[4]))
    E(valu('v_mov_b32', vDP, vRW[0][0]))
    if MS:
        E(valu('v_and_b32', T_[4], 7, lane)); E(valu('v_bfe_u32', T_[5], lane, 4, 1)); E(valu('v_lshlrev_b32', T_[5], 2, T_[5]))
        E(valu('v_xor_b32', T_[4], T_[4], T_[5])); E(valu('v_lshlrev_b32', vSWZM, 4, T_[4]))
        E(valu('v_bfe_u32', q, lane, 4, 1)); E(valu('v_lshlrev_b32', q, 5, q))
        E(valu('v_and_b32', T_[4], 1, lane)); E(valu('v_lshl_add_u32', q, T_[4], 4, q))
        E(valu('v_bfe_u32', T_[4], lane, 1, 1)); E(valu('v_lshl_add_u32', q, T_[4], 3, q))
        E(valu('v_lshrrev_b32', T_[5], 5, lane))
        E(smov(sT2, PP)); E(valu('v_mad_u32_u24', T_[4], T_[5], sT2, q)); E(valu('v_lshl_add_u32', T_[4], r, 7, T_[4]))
        E(valu('v_lshl_add_u32', vRW[0][0], rb1, 6, T_[4])); E(valu('v_xor_b32', rb1, 1, rb1)); E(valu('v_lshl_add_u32', vRW[0][1], rb1, 6, T_[4]))
        if kind in 'FM':
            E(valu('v_lshl_add_u32', vRH[0], T_[5], 9, q)); E(valu('v_lshl_add_u32', vRH[0], r, 6, vRH[0]))
            E(valu('v_lshlrev_b32', T_[4], 4, c4)); E(valu('v_lshrrev_b32', T_[5], 2, lane)); E(smov(sT2, 9216))
            E(valu('v_mad_u32_u24', vOFFH, T_[5], sT2, T_[4]))
        E(valu('v_lshrrev_b32', q, 4, lane))
    else:
        E(valu('v_xor_b32', vRW[0][1], 32, vRW[0][0]))
    for b in (1, 2):
        for T in range(2): E(valu('v_add_u32', vRW[b][T], 65536 * b, vRW[0][T]))
    if kind in 'FM' and not MS:
        E(valu('v_lshlrev_b32', T_[4], 9, q)); E(valu('v_lshl_add_u32', T_[4], r, 6, T_[4])); E(valu('v_lshl_add_u32', T_[4], c4, 3, T_[4]))
        E(valu('v_and_b32', T_[5], 1, q)); E(valu('v_lshl_add_u32', vRH[0], T_[5], 5, T_[4])); E(valu('v_xor_b32', vRH[1], 32, vRH[0]))
        E(valu('v_lshrrev_b32', T_[4], 5, lane)); E(valu('v_lshlrev_b32', T_[4], 1, T_[4])); E(valu('v_xor_b32', T_[4], T_[4], c4))
        E(valu('v_lshlrev_b32', T_[4], 4, T_[4])); E(valu('v_lshrrev_b32', T_[5], 2, lane)); E(smov(sT2, 9216))
        E(valu('v_mad_u32_u24', vOFFH, T_[5], sT2, T_[4]))
    if kind in 'AM':
        E(valu('v_and_b32', T_[4], 15, lane)); E(valu('v_xor_b32', T_[4], T_[4], q)); E(valu('v_lshlrev_b32', T_[4], 4, T_[4]))
        E(valu('v_lshl_add_u32', vOFFK, q, 8, T_[4]))
    E(set_offw(8192 if kind in 'AM' else 9216, 'M' if MS else 'S'))
    if MS:
        XA = [v(20), v(21), v(22), v(39)]
        E(valu('v_and_b32', T_[4], 31, lane)); E(valu('v_bfe_u32', T_[5], lane, 1, 3)); E(valu('v_lshrrev_b32', q, 5, lane)); E(valu('v_xor_b32', T_[5], T_[5], q))
        E(valu('v_lshlrev_b32', T_[4], 7, T_[4])); E(valu('v_add_u32', T_[4], s(6), T_[4]))
        E(valu('v_lshl_add_u32', XA[0], T_[5], 4, T_[4]))
        for tt in range(1, 4): E(valu('v_xor_b32', XA[tt], 32 * tt, XA[0]))
    else:
        E(valu('v_and_b32', T_[4], 15, lane)); E(valu('v_bfe_u32', T_[5], lane, 1, 3)); E(valu('v_xor_b32', T_[5], T_[5], q))
        E(valu('v_lshlrev_b32', T_[4], 7, T_[4])); E(valu('v_add_u32', T_[4], s(6), T_[4]))
        E(valu('v_lshl_add_u32', v(20), T_[5], 4, T_[4])); E(valu('v_xor_b32', v(21), 64, v(20)))
        if kind in 'AM':
            E(smov(sT2, PP)); E(valu('v_mul_u32_u24', v(22), sT2, r)); E(valu('v_lshl_add_u32', v(22), c4, 8, v(22)))
            E(valu('v_xor_b32', T_[4], q, c4)); E(valu('v_lshl_add_u32', v(22), T_[4], 4, v(22)))
    E(valu('v_lshlrev_b32', vLANE16, 4, lane))
    if CFG['stamps'] == 2: E(valu('v_mov_b32', vSTAMP, 0))
    if CFG['fused'] and CFG.get('rep') and kind in 'FM':
        E(rep_addr(kind, v(24), v(25))); E(valu('v_mov_b32', v(25), 0))
        z = bstore('buffer_store_dword', v(25), v(24), sWS, 0, flags='sc1'); z.tag = 'zero'; E(z)
    SA = 28
    for i in range(8): E(valu('v_mov_b32', v(SA + i), 0))
    E(smov(sT2, 0x3f803f80))
    def stats(j):
        for tt in range(2):
            for g in range(2):
                for qd in range(4):
                    x = X(2 * j + tt, g)[qd]
                    E(valu('v_dot2c_f32_bf16', v(SA + 2 * g + (qd & 1)), sT2, x, rmw=True))
                    E(valu('v_dot2c_f32_bf16', v(SA + 4 + 2 * g + (qd & 1)), x, x, rmw=True))
    PS(57)
    for j in range(9):
        E(waitvm(p.vm_wait_for(lambda t: t == ('x', j))))
        if j == 0: PS(58)
        if MS:
            for tt in range(4): E(ds_b128(XM(4 * j + tt), XA[tt], j * 4096))
        else:
            for tt in range(2):
                for g in range(2): E(ds_b128(X(2 * j + tt, g), v(20 + tt), j * 4096 + g * 2048))
        if j + CFG['xe'] < 9: E(xdma(j + CFG['xe']))
        if CFG['pf'] >= 3 and CFG.get('epf', 1) == 1 and j == max(8 - CFG['xe'], 0): E(early_pf)
        if j >= 1:
            E(waitlg(4)); stats(j - 1)
    E(waitlg(0)); PS(59); E(barrier())
    if CFG.get('codepf', 3) == 2: E(I(f"global_load_dword {vDUM}, v46, s[100:101]", 'vload', wr=vDUM.regs(), rd=vr(46) + sr(100, 2), tag='pf'))
    if CFG['pf'] >= 3 and CFG.get('epf', 1) == 2: E(early_pf)
    pend = []
    for k in range(3):
        st = R.stages[k]
        if st.pre_dma: pend.append(st.pre_dma())
        pend += st.dma(k, False)
    d0 = CFG.get('d0', 9)
    for it in pend[:d0]: E(it)
    pend = pend[d0:]
    PS(60)
    stats(8)
    acc4 = [v(28), v(30), v(32), v(34)]
    for x in acc4: E(valu('v_add_f32', x, x, v(x.n + 1)))
    if MS:
        for b_ in (0, 2):
            E(valu('v_add_f32', acc4[b_], acc4[b_], acc4[b_ + 1]))
        for b_ in (0, 2): E(valu('v_mov_b32', acc4[b_ + 1], acc4[b_]))
    for op in (('v_permlane32_swap_b32',) if MS else ('v_permlane16_swap_b32', 'v_permlane32_swap_b32')):
        for x in acc4: E(valu('v_mov_b32', v(x.n + 1), x))
        for x in acc4: E(valu(op, x, v(x.n + 1), rmw=True, extra_wr=[v(x.n + 1)]))
        for x in acc4: E(valu('v_add_f32', x, x, v(x.n + 1)))
    for x in acc4: E(valu('v_mul_f32', x, f2u(1.0 / 576), x))
    for g in range(2): E(valu('v_fma_f32', acc4[2 + g], '-' + str(acc4[g]), acc4[g], acc4[2 + g]))
    for g in range(2): E(valu('v_max_f32', acc4[2 + g], 0, acc4[2 + g]))
    for g in range(2): E(valu('v_add_f32', acc4[2 + g], f2u(1e-5), acc4[2 + g]))
    for g in range(2): E(valu('v_rsq_f32', acc4[2 + g], acc4[2 + g]))
    for g in range(2): E(valu('v_mul_f32', acc4[2 + g], f2u(-LOG2E), acc4[2 + g]))
    for g in range(2): E(valu('v_mov_b32', v(20 + g), acc4[g]))
    for g in range(2): E(valu('v_mul_f32', acc4[g], '-' + str(acc4[g]), acc4[2 + g], extra_rd=[acc4[g]]))
    E(smov(sT2, 0xffff0000))
    if CFG.get('dotn'):
        cl = [v(29), v(31)]; ch = [v(33), v(35)]
        for g in range(2): E(valu('v_cvt_pk_bf16_f32', cl[g], acc4[2 + g], 0))
        for g in range(2): E(valu('v_lshlrev_b32', ch[g], 16, cl[g]))
        for g in range(2): E(valu('v_mul_f32', acc4[g], '-' + str(v(20 + g)), ch[g], extra_rd=[v(20 + g)]))
    PS(61)
    n = 0
    for t in range(18):
        for g in range(2):
            tps = [v(24, 2), v(26, 2), v(16, 2), v(18, 2)]
            x = X(t, g)
            if CFG.get('dotn'):
                for qd in range(4):
                    E(valu('v_dot2_f32_bf16', tps[qd][0], x[qd], cl[g], acc4[g])); E(valu('v_dot2_f32_bf16', tps[qd][1], x[qd], ch[g], acc4[g]))
            else:
                for qd in range(4):
                    E(valu('v_lshlrev_b32', tps[qd][0], 16, x[qd])); E(valu('v_and_b32', tps[qd][1], sT2, x[qd]))
                for qd in range(4): E(valu('v_pk_fma_f32', tps[qd], tps[qd], v(acc4[2 + g].n, 2), v(acc4[g].n, 2), mods='op_sel_hi:[1,0,0]'))
            for qd in range(4): E(valu('v_cvt_pk_bf16_f32', x[qd], tps[qd][0], tps[qd][1]))
            if pend and n % CFG.get('dn', 2) == 0: E(pend.pop(0))
            n += 1
    for it in pend: E(it)
    if CFG['fused']:
        E(valu('v_mov_b32', v(24), 1)); E(waitvm(p.vm_wait_for(lambda t: t == 'zero')))
        E(I(f"buffer_atomic_add v24, v23, {sDBG}, 0 offen sc1", 'vstore', rd=vr(23, 2) + sDBG.regs(), units=3, tag='init'))
    for _ in range(CFG.get('idle', 0)): E(raw("s_sleep 16"))
    PS(62)
    if kind in 'AM' and MS:
        ln, m_, key, t_ = v(16), v(17), v(18), v(19)
        E([valu('v_lshrrev_b32', ln, 4, vLANE16), valu('v_and_b32', key, 19, ln),
           valu('v_bfe_u32', t_, ln, 2, 1), valu('v_lshl_add_u32', key, t_, 3, key),
           valu('v_bfe_u32', t_, ln, 3, 1), valu('v_lshl_add_u32', key, t_, 2, key),
           valu('v_lshrrev_b32', m_, 2, key), smov(sT2, PP), valu('v_mul_u32_u24', m_, sT2, m_),
           valu('v_and_b32', key, 3, key), valu('v_lshl_add_u32', m_, key, 8, m_),
           valu('v_lshrrev_b32', t_, 5, ln), valu('v_xor_b32', t_, t_, key),
           valu('v_lshl_add_u32', vRKM[0], t_, 4, m_), valu('v_xor_b32', vRKM[1], 32, vRKM[0])])
    elif kind in 'AM':
        E(valu('v_mov_b32', vRK[0], v(22))); E(valu('v_add_u32', vRK[1], 65536, v(22))); E(valu('v_add_u32', vRK[2], 131072, v(22)))
    if CFG['stamps']: E(raw(f"v_writelane_b32 {vSTAMP}, s96, 55", 'valu', wr=[vSTAMP], rd=[s(96)])) if kind != 'A' else None
    if CFG['stamps']: E(smov(s(43), s(96)))
    nlr = {'F': 10, 'A': 11, 'M': 8}[kind]
    if kind != 'M': E([valu('v_lshrrev_b32', vPF2, 16, vTID), valu('v_and_b32', vPFR, 63, vTID), valu('v_min_u32', vPFR, nlr - 1, vPFR),
       valu('v_mad_u32_u24', vPFR, vPF2, nlr, vPFR), valu('v_lshlrev_b32', vPFR, 7, vPFR)])
    if CFG['stamps']: E(smov(s(97), 0))
    E(smov(sLN0, f2u(-1.0 / math.sqrt(128.0))))

def slow_check(R, heads, base2):
    def f():
        p = R.p; E = p.emit
        t = v(254); lo = v(255)
        E(valu('v_mov_b32', lo, f2u(2.0 ** -40))); E(smov(sT3, f2u(2.0 ** 40)))
        for (hd, Q, O) in heads:
            L = f"L_{R.kind}_slow{hd}"
            if CFG['shape'] == 'M':
                E(valu('v_med3_f32', t, Lsave[hd], sT3, lo))
                E(raw(f"v_cmp_neq_f32 vcc, {t}, {Lsave[hd]}", 'valu', wr=['vcc'], rd=[t, Lsave[hd]])); E(nop(4))
            else:
                E(valu('v_med3_f32', t, Lsave[2 * hd], sT3, lo))
                E(raw(f"v_cmp_neq_f32 s[98:99], {t}, {Lsave[2 * hd]}", 'valu', wr=[s(98, 2)], rd=[t, Lsave[2 * hd]]))
                E(valu('v_med3_f32', t, Lsave[2 * hd + 1], sT3, lo))
                E(raw(f"v_cmp_neq_f32 vcc, {t}, {Lsave[2 * hd + 1]}", 'valu', wr=['vcc'], rd=[t, Lsave[2 * hd + 1]])); E(nop(4))
                E(raw("s_or_b64 vcc, vcc, s[98:99]", 'salu', wr=['vcc'], rd=['vcc', s(98, 2)])); E(nop(1))
            if CFG.get('force_slow'): E(raw(f"s_mov_b64 vcc, -1", 'salu', wr=['vcc']))
            E(raw(f"s_cbranch_vccz {L}_ret"))
            E(raw(f"s_call_b64 {sRET}, {L}"))
            E(label(f"{L}_ret"))
            R.slow.append((slow_path if CFG['shape'] == 'M' else slow_pathS)(L, hd, Q, O, base2))
        E(nop(1))
    return f

def slow_path(L, hd, Q, Odst, b2):
    p = Prog(); E = p.emit
    O = v(48, 64); S = v(b2, 16); P = v(b2 + 16, 8); F = v(b2 + 24, 16)
    vK, vV, vM, vL, t0, t1 = [v(b2 + 40 + i) for i in range(6)]
    sB, sJ, sO = s(98), s(99), s(97)
    E(I(".p2align 2", 'label')); E(label(L))
    E(nop(7)); E(nop(7))
    E([valu('v_lshrrev_b32', t0, 4, vLANE16), valu('v_and_b32', vK, 19, t0), valu('v_bfe_u32', t1, t0, 2, 1), valu('v_lshl_add_u32', vK, t1, 3, vK),
       valu('v_bfe_u32', t1, t0, 3, 1), valu('v_lshl_add_u32', vK, t1, 2, vK), valu('v_lshrrev_b32', t1, 5, t0),
       valu('v_lshlrev_b32', vV, 1, vK), valu('v_lshl_add_u32', vV, t1, 11, vV),
       valu('v_lshlrev_b32', vK, 8, vK), valu('v_lshl_add_u32', vK, t1, 4, vK)])
    E([mul(sB, sROLE, 3), add(sB, sB, hd), shr(sB, sB, 1), shl(sB, sB, 19), add(sB, sB, 1536 * 256)])
    def qk():
        for half in range(2):
            for t in range(4): E(bload('buffer_load_dwordx4', F.sub(4 * t, 4), vK, sK, sO, (4 * half + t) * 32))
            E(waitvm(0))
            for t in range(4):
                tt = 4 * half + t
                E(mfma(S, F.sub(4 * t, 4), Q.sub(4 * tt, 4), 0 if tt == 0 else S))
            E(nop(7)); E(nop(7))
    E(valu('v_mov_b32', vM, 0xff800000)); E(smov(sJ, 0))
    E(label(L + "_a"))
    E(add(sO, sB, sJ)); qk()
    for i in range(0, 16, 2): E(valu('v_max3_f32', vM, vM, S[i], S[i + 1]))
    E(add(sJ, sJ, 8192)); E(salu('s_cmp_lt_u32', None, sJ, 16 * 8192)); E(raw(f"s_cbranch_scc1 {L}_a"))
    E(valu('v_mov_b32', t0, vM)); E(valu('v_permlane32_swap_b32', vM, t0, rmw=True, extra_wr=[t0])); E(valu('v_max_f32', vM, vM, t0))
    for i in range(64): E(valu('v_mov_b32', O[i], 0))
    E(valu('v_mov_b32', vL, 0)); E(smov(sJ, 0))
    E(label(L + "_b"))
    E(add(sO, sB, sJ)); qk()
    for i in range(16): E(valu('v_sub_f32', S[i], S[i], vM))
    for i in range(16): E(valu('v_exp_f32', S[i], S[i]))
    for i in range(16): E(valu('v_add_f32', vL, vL, S[i]))
    for q in range(8): E(valu('v_cvt_pk_bf16_f32', P[q], S[2 * q], S[2 * q + 1]))
    for u in range(2):
        for tp in range(2):
            for tq in range(2):
                for j in range(8):
                    E(bload('buffer_load_ushort', F[8 * (j & 1) + 4 * tq + j // 2], vV, sV, sO, j * 256 + (2 * tp + tq) * 64))
            E(waitvm(0))
            for i in range(8): E(valu('v_lshl_or_b32', F[i], F[8 + i], 16, F[i]))
            for tq in range(2):
                D_ = O.sub(16 * (2 * tp + tq), 16)
                E(mfma(D_, F.sub(4 * tq, 4), P.sub(4 * u, 4), D_))
            E(nop(7))
        if u == 0: E(add(sO, sO, 4096))
    E(add(sJ, sJ, 8192)); E(salu('s_cmp_lt_u32', None, sJ, 16 * 8192)); E(raw(f"s_cbranch_scc1 {L}_b"))
    E(nop(7)); E(nop(7))
    E(valu('v_mov_b32', t0, vL)); E(valu('v_permlane32_swap_b32', vL, t0, rmw=True, extra_wr=[t0])); E(valu('v_add_f32', vL, vL, t0))
    E(valu('v_rcp_f32', t0, vL))
    for tau in range(4):
        A_ = O.sub(16 * tau, 16)
        for e in range(16): E(valu('v_mul_f32', A_[e], A_[e], t0))
        for q in range(8): E(valu('v_cvt_pk_bf16_f32', A_[2 * q], A_[2 * q], A_[2 * q + 1]))
        for q in range(4): E(valu('v_permlane16_swap_b32', A_[2 * q], A_[2 * q + 8], rmw=True, extra_wr=[A_[2 * q + 8]]))
        for q in range(8): E(valu('v_accvgpr_write_b32', Odst[8 * tau + q], A_[2 * q]))
    E(nop(1)); E(raw(f"s_setpc_b64 {sRET}"))
    return p

def slow_pathS(L, hd, Q, Odst, b2):
    p = Prog(); E = p.emit
    ob = 48; kv = None
    if isinstance(b2, tuple): b2, ob = b2
    if isinstance(Odst, tuple):
        OFf, kv = Odst
        class _D:
            def __getitem__(s_, i): return OFf(i // 8)[i % 8]
        Odst = _D()
    O = v(ob, 64); S = v(b2, 16); P = v(b2 + 16, 8); F = v(b2 + 24, 16)
    vK, vV, t0, t1 = [v(b2 + 40 + i) for i in range(4)]
    vM = [v(b2 + 44), v(b2 + 45)]; vL = [v(b2 + 46), v(b2 + 47)]
    sB, sJ, sO = s(98), s(99), s(97)
    E(I(".p2align 2", 'label')); E(label(L))
    E(nop(7)); E(nop(7))
    E([valu('v_lshrrev_b32', t0, 4, vLANE16), valu('v_and_b32', t1, 15, t0), valu('v_lshrrev_b32', t0, 4, t0),
       valu('v_lshlrev_b32', vK, 8, t1), valu('v_lshl_add_u32', vK, t0, 4, vK),
       valu('v_lshlrev_b32', vV, 1, t1), valu('v_lshl_add_u32', vV, t0, 10, vV)])
    if kv is not None: E(smov(sB, kv))
    else: E([mul(sB, sROLE, 3), add(sB, sB, hd), shr(sB, sB, 1), shl(sB, sB, 19), add(sB, sB, 1536 * 256)])
    def qk():
        for T in range(2):
            E(add(sO, sB, sJ)) if T == 0 else E(add(sO, sO, 4096))
            for t in range(4): E(bload('buffer_load_dwordx4', F.sub(4 * t, 4), vK, sK, sO, t * 64))
            E(waitvm(0))
            for t in range(4):
                for g_ in range(2):
                    D_ = S.sub(8 * T + 4 * g_, 4)
                    E(mfma(D_, F.sub(4 * t, 4), Q.sub(8 * t + 4 * g_, 4), 0 if t == 0 else D_))
            E(nop(7)); E(nop(3))
    def allq(x, op):
        for sw in ('v_permlane16_swap_b32', 'v_permlane32_swap_b32'):
            E(valu('v_mov_b32', t0, x)); E(valu(sw, x, t0, rmw=True, extra_wr=[t0])); E(valu(op, x, x, t0))
    for g_ in range(2): E(valu('v_mov_b32', vM[g_], 0xff800000))
    E(smov(sJ, 0))
    E(label(L + "_a"))
    qk()
    for T in range(2):
        for g_ in range(2):
            for i in (0, 2): E(valu('v_max3_f32', vM[g_], vM[g_], S[8 * T + 4 * g_ + i], S[8 * T + 4 * g_ + i + 1]))
    E(add(sJ, sJ, 8192)); E(salu('s_cmp_lt_u32', None, sJ, 16 * 8192)); E(raw(f"s_cbranch_scc1 {L}_a"))
    for g_ in range(2): allq(vM[g_], 'v_max_f32')
    for i in range(64): E(valu('v_mov_b32', O[i], 0))
    for g_ in range(2): E(valu('v_mov_b32', vL[g_], 0))
    E(smov(sJ, 0))
    E(label(L + "_b"))
    qk()
    for i in range(16): E(valu('v_sub_f32', S[i], S[i], vM[(i >> 2) & 1]))
    for i in range(16): E(valu('v_exp_f32', S[i], S[i]))
    for i in range(16): E(valu('v_add_f32', vL[(i >> 2) & 1], vL[(i >> 2) & 1], S[i]))
    for g_ in range(2):
        for T in range(2):
            for k in range(2): E(valu('v_cvt_pk_bf16_f32', P[4 * g_ + 2 * T + k], S[8 * T + 4 * g_ + 2 * k], S[8 * T + 4 * g_ + 2 * k + 1]))
    for tp in range(4):
        for jh in range(2):
            E(add(sO, sB, sJ)) if jh == 0 else E(add(sO, sO, 4096))
            for tq in range(2):
                for jl in range(4):
                    j = 4 * jh + jl
                    E(bload('buffer_load_ushort', F[8 * (j & 1) + 4 * tq + j // 2], vV, sV, sO, jl * 256 + (2 * tp + tq) * 32))
        E(waitvm(0))
        for i in range(8): E(valu('v_lshl_or_b32', F[i], F[8 + i], 16, F[i]))
        for tq in range(2):
            for g_ in range(2):
                D_ = O.sub(8 * (2 * tp + tq) + 4 * g_, 4)
                E(mfma(D_, F.sub(4 * tq, 4), P.sub(4 * g_, 4), D_))
        E(nop(7))
    E(add(sJ, sJ, 8192)); E(salu('s_cmp_lt_u32', None, sJ, 16 * 8192)); E(raw(f"s_cbranch_scc1 {L}_b"))
    E(nop(7)); E(nop(3))
    for g_ in range(2): allq(vL[g_], 'v_add_f32')
    for g_ in range(2): E(valu('v_rcp_f32', vL[g_], vL[g_]))
    for i in range(64): E(valu('v_mul_f32', O[i], O[i], vL[(i >> 2) & 1]))
    for kk in range(4):
        for g_ in range(2):
            for T in range(2):
                for c in range(2):
                    r = 8 * (2 * kk + T) + 4 * g_ + 2 * c
                    E(valu('v_cvt_pk_bf16_f32', O[r], O[r], O[r + 1])); E(valu('v_accvgpr_write_b32', Odst[8 * kk + 4 * g_ + 2 * T + c], O[r]))
    E(nop(1)); E(raw(f"s_setpc_b64 {sRET}"))
    return p

NREP = 6
sMD2 = s(84)
def rep_addr(kind, dst, t):
    return [shl(sT2, sRB, 14), add(sT2, sT2, CTRL + 2048), add(sT3, sROLE, NS - NA), shl(sT3, sT3, 2), add(sT2, sT2, sT3),
            salu('s_cmp_eq_u32', None, sWAVE, 0), csel(sT2, sT2, OOB),
            valu('v_lshlrev_b32', dst, 3, vLANE16), valu('v_add_u32', dst, sT2, dst), valu('v_mov_b32', t, OOB),
            raw(f"v_cmp_gt_u32 vcc, {hex(NA * NREP * 16)}, {vLANE16}", 'valu', wr=['vcc'], rd=[vLANE16]), valu('v_cndmask_b32', dst, t, dst, 'vcc')]
vCR = v(31)
def add_signals(R):
    P2 = [k for k, st in enumerate(R.stages) if st.name.startswith('P2')]
    def sig(first):
        def f():
            out = [valu('v_add_u32', vPRG, 1, vPRG)]
            return out + [bstore('buffer_store_dword', vPRG, vCT, sWS, 0, flags='sc1')]
        return f
    def sig7():
        return [valu('v_add_u32', vPRG, 1, vPRG), bstore('buffer_store_dword', vPRG, vCR, sWS, 0, flags='sc1'), bstore('buffer_store_dword', vPRG, vCT, sWS, 0, flags='sc1')]
    def chain(stages, base):
        firsts = [k for k in stages if R.stages[k].sub == 0]
        for c in range(8):
            k = firsts[c + 1] + CFG.get('siglag', {}).get(R.kind, 2)
            if k > stages[-1]: break
            R.stages[k].cover_st = base + c; R.stages[k].post_bar = sig(c == 0)
            if c == 7 and CFG.get('rep') and R.kind in 'FM': R.stages[k].post_bar = sig7
        if CFG.get('rep') and R.kind in 'FM': R.pf.setdefault(firsts[1], []).append(lambda: rep_addr(R.kind, vCR, vPF))
    chain(P2, 0)
    R.stages[P2[0]].post_bar = lambda: [valu('v_mov_b32', vPRG, 0)]

LDSC = 4 * SLOT
sAB = s(72, 2); sRM = s(74, 2); sCD = s(76, 2)
sRS, sRF, sSP, sC, sI, sPB, sPART, sOK, sPAR, sXW, sPWv, sTO = s(78), s(79), s(71), s(80), s(81), s(82), s(47), s(40), s(41), s(59), s(3), s(58)
sIT = [s(42), s(44), s(45)]; sXP = [s(46), s(60), s(61)]
sRET2 = s(66, 2)
vP, vD, vA, vO, vXO, vL4, vDO, vLA, vIT, vLD, vSC = [v(16 + i) for i in range(11)]
vX4 = v(28)
def s64(op, d, *src, scc_r=False): return salu(op, d, *src, scc_r=scc_r)
sPV = s(85)
def red_setup(kind):
    o = [shl(sPB, sRB, 14), add(sPB, sPB, CTRL), salu('s_cmp_eq_u32', None, sWAVE, 0), csel(sT3, 0, OOB),
         valu('v_lshrrev_b32', vL4, 2, vLANE16), valu('v_add_u32', vL4, sT3, vL4),
         valu('v_mov_b32', vSC, OOB), add(sT2, sT3, 4 * NPART), raw(f"v_writelane_b32 {vSC}, {sT2}, 0", 'valu', wr=[vSC], rd=[sT2, vSC]),
         valu('v_mov_b32', vS1, vSC), valu('v_min_u32', vL5, NPART * 16, vLANE16), valu('v_lshrrev_b32', vL5, 2, vL5), valu('v_add_u32', vL5, sT3, vL5),
         add(sT2, sT3, 252), raw(f"v_writelane_b32 {vSC}, {sT2}, 1", 'valu', wr=[vSC], rd=[sT2, vSC]),
         shl(sT2, sRB, 4), add(sT2, sT2, sT3), valu('v_mov_b32', vDO, 256), raw(f"v_writelane_b32 {vDO}, {sT2}, 0", 'valu', wr=[vDO], rd=[sT2, vDO])]
    if kind == 'A': o += [shl(sPV, sROLE, 7), add(sPV, sPV, 256), add(sPV, sPV, sPB)]
    return o
vS1, vL5 = v(29), v(30)
PRIV = [False]
def red_poll(shared=False):
    cnt = [valu('v_mov_b32', vD, 0), I(f"buffer_atomic_add {vD}, {vDO}, {sDBG}, 0 offen sc0 sc1", 'vload', wr=vD.regs(), rd=vD.regs() + vDO.regs() + sDBG.regs(), units=3)]
    if PRIV[0] and not shared:
        return [cnt, [bstore('buffer_store_dword', vS1, vS1, sWS, sPV, flags='sc1'), bload('buffer_load_dword', vP, vL5, sWS, sPV, flags='sc1')]]
    return [cnt, [bstore('buffer_store_dword', vSC, vSC, sWS, sPB, flags='sc1'), bload('buffer_load_dword', vP, vL4, sWS, sPB, flags='sc1')]]
vG = [v(28), v(29), v(30)]; vGA = v(31); vGP = v(27)
def l2pf_setup():
    return [valu('v_lshrrev_b32', vGP, 7, vLANE16), smov(sT2, PSTR()), valu('v_mul_lo_u32', vGA, vGP, sT2),
            valu('v_bfe_u32', vA, vLANE16, 4, 3), valu('v_lshl_add_u32', vGA, vA, 7, vGA), shl(sT2, sWAVE, 10), valu('v_add_u32', vGA, sT2, vGA),
            valu('v_lshlrev_b32', vGP, 2, vGP), valu('v_mov_b32', vA, OOB), smov(sT2, 68), raw(f"v_writelane_b32 {vA}, {sT2}, 0", 'valu', wr=[vA], rd=[vA, sT2])]
def l2pf_poll():
    st = bstore('buffer_store_dword', vA, vA, sWS, sPB, flags='sc1')
    out = [[st]]
    for i in range(3):
        ld = bload('buffer_load_dword', vG[i], vGP, sWS, sPB, 32 * i, flags='sc1'); ld.tag = 'gp'
        out.append([ld])
    return out
def l2pf_issue(R, dlt):
    out = [[add(sI, sROLE, dlt), salu('s_and_b32', sT2, sI, 3), shr(sC, sI, 2), shl(sT3, sRB, 2), add(sT2, sT2, sT3), mul(sSP, sT2, PWAVE),
            shl(sT3, sC, 12), add(sSP, sSP, sT3), valu('v_mov_b32', vO, OOB)]]
    for i in range(3):
        ld = bload('buffer_load_dword', vDUM, vG[i], sWS, sT2); ld.tag = 'pf'
        cmp_ = raw(f"v_cmp_lt_u32 vcc, {sC}, {vG[i]}", 'valu', wr=['vcc'], rd=[sC, vG[i]])
        pre = [cmp_]
        if i == 2: pre += [raw("s_and_b64 vcc, vcc, 0xff", 'salu', wr=['vcc'], rd=['vcc'])]
        out.append(pre + [add(sT2, sSP, 8 * i * PSTR()), valu('v_cndmask_b32', vG[i], vO, vGA, 'vcc'), ld])
    return out
def red_eval():
    o = [raw(f"v_cmp_ne_u32 vcc, 0, {vP}", 'valu', wr=['vcc'], rd=[vP]), nop(1),
         raw(f"s_lshr_b64 {sAB}, vcc, {NPART + 1}", 'salu', wr=[sAB], rd=['vcc']), salu('s_and_b32', sAB[1], sAB[1], 15), smov(sRS, 0), smov(sRF, 0)]
    for c in range(9):
        o += [raw(f"v_cmp_ge_u32 vcc, {c}, {vP}", 'valu', wr=['vcc'], rd=[vP]), nop(1),
              raw(f"s_and_b32 {sT2}, vcc_lo, {hex((1 << NS) - 1)}", 'salu', wr=[sT2], rd=['vcc']), csel(sRS, sRS, 4 * (c + 1)),
              raw(f"s_and_b32 {sT2}, vcc_lo, {hex((1 << NPART) - (1 << NS))}", 'salu', wr=[sT2], rd=['vcc']), csel(sRF, sRF, 4 * (c + 1))]
    return o
def red_pub(par):
    return [shl(sT2, sRF, 8), salu('s_or_b32', sT2, sT2, sRS), shl(sT3, sTO, 16), salu('s_or_b32', sT2, sT2, sT3),
            valu('v_mov_b32', vIT, sT2), valu('v_mov_b32', vLA, par), raw(f"ds_write_b32 {vLA}, {vIT}", 'other', rd=[vLA, vIT]), waitlg(0)]
def red_get(par):
    return [valu('v_mov_b32', vLA, par), raw(f"ds_read_b32 {vIT}, {vLA}", 'ds', wr=[vIT], rd=[vLA]), waitlg(0),
            valu('v_readfirstlane_b32', sT2, vIT), salu('s_and_b32', sRS, sT2, 255), salu('s_bfe_u32', sRF, sT2, (8 << 16) | 8), shr(sTO, sT2, 16)]
def red_early(p, n):
    E = p.emit
    E([smov(sRS, 0), smov(sRF, 0), smov(sOK, 0), smov(sTO, 0), smov(sPAR, LDSC + 4), nop(1)])
    E(salu('s_cmp_eq_u32', None, sWAVE, 0)); E(raw(f"s_cbranch_scc0 L_{n}_e2"))
    E(waitvm(p.vm_wait_for(lambda t: t == 'poll')))
    E(valu('v_readfirstlane_b32', sOK, vD))
    E(salu('s_cmp_ge_u32', None, sOK, 16)); E(raw(f"s_cbranch_scc0 L_{n}_e1"))
    E(red_eval())
    E(label(f"L_{n}_e1"))
    E(red_pub(LDSC))
    E(label(f"L_{n}_e2"))

def ld_part(L, ks, flags):
    out = []
    for k in ks:
        out.append([add(sT2, sPART, k * PSTR()), bload('buffer_load_dwordx4', v(L + 4 * k, 4), vLD, sWS, sT2, flags=flags)])
    return out
def ld_x(L, sXO_):
    if CFG.get('nox'): return [[valu('v_mov_b32', vA, OOB), bload('buffer_load_dwordx2', v(L + 4 * NPART, 2), vA, sX, sXO_)], [bload('buffer_load_dwordx2', v(L + 4 * NPART + 2, 2), vA, sX, sXO_, 32)]]
    return [[bload('buffer_load_dwordx2', v(L + 4 * NPART, 2), vXO, sX, sXO_)], [bload('buffer_load_dwordx2', v(L + 4 * NPART + 2, 2), vXO, sX, sXO_, 32)]]
RB_ = 48
sD0, sD1 = s(68), s(69)
def proc_sum(E, L, ks, after, loads):
    SA, FA, T = RB_, RB_ + 8, RB_ + 16
    issued = 0; ks = list(ks)
    E(smov(sT3, 0xffff0000))
    for j, k in enumerate(ks):
        if loads: E(loads.pop(0)); issued += 1
        E(waitvm(len(ks) - 1 - j + after + issued))
        acc = SA if k < NS else FA
        for q in range(4):
            x = v(L + 4 * k + q)
            if k in (0, NS):
                E(valu('v_lshlrev_b32', v(acc + 2 * q), 16, x)); E(valu('v_and_b32', v(acc + 2 * q + 1), sT3, x))
            else:
                E(valu('v_dot2c_f32_bf16', v(acc + 2 * q), sD0, x, rmw=True)); E(valu('v_dot2c_f32_bf16', v(acc + 2 * q + 1), sD1, x, rmw=True))
    return issued
def proc_fin(E, L, sXO_, xwait, loads):
    SA, FA, T = RB_, RB_ + 8, RB_ + 16; XR = L + 4 * NPART; issued = 0
    for e in range(8): E(valu('v_exp_f32', v(T + e), v(FA + e)))
    for e in range(8): E(valu('v_add_f32', v(T + e), 1.0, v(T + e)))
    while len(loads) > 1: E(loads.pop(0)); issued += 1
    for e in range(8): E(valu('v_rcp_f32', v(T + e), v(T + e)))
    for e in range(8): E(valu('v_mul_f32', v(FA + e), f2u(-math.log(2.0)), v(FA + e)))
    for e in range(8): E(valu('v_mul_f32', v(FA + e), v(FA + e), v(T + e)))
    while loads: E(loads.pop(0)); issued += 1
    if xwait is not None: E(waitvm(xwait + issued))
    for q in range(4):
        E(valu('v_lshlrev_b32', v(T + 2 * q), 16, v(XR + q))); E(valu('v_and_b32', v(T + 2 * q + 1), sT3, v(XR + q)))
    for e in range(8): E(valu('v_fma_f32', v(T + e), v(SA + e), v(FA + e), v(T + e)))
    for q in range(4): E(valu('v_cvt_pk_bf16_f32', v(XR + q), v(T + 2 * q), v(T + 2 * q + 1)))
    if CFG.get('out4', True):
        def dpp(d, src, bank): return I(f"v_mov_b32_dpp {d}, {src} row_ror:8 row_mask:0xf bank_mask:{bank}", 'perm', wr=d.regs(), rd=src.regs() + d.regs())
        for i in range(2): E(valu('v_permlane16_swap_b32', v(XR + i), v(XR + 2 + i), rmw=True, extra_wr=[v(XR + 2 + i)]))
        for i in range(2): E(valu('v_mov_b32', v(T + i), v(XR + i)))
        for i in range(2): E(dpp(v(XR + i), v(XR + 2 + i), '0xc'))
        for i in range(2): E(dpp(v(XR + 2 + i), v(T + i), '0x3'))
        E(bstore('buffer_store_dwordx4', v(XR, 4), vX4, sOUT, sXO_, flags=CFG.get('oflags', 'sc1')))
        E(valu('v_mov_b32', vO, OOB)); E(bstore('buffer_store_dword', vO, vO, sOUT, 0))
        return
    E(bstore('buffer_store_dwordx2', v(XR, 2), vXO, sOUT, sXO_)); E(bstore('buffer_store_dwordx2', v(XR + 2, 2), vXO, sOUT, sXO_, 32))
def proc_all(E, L, sXO_, pre, loads):
    loads = list(loads)
    n = proc_sum(E, L, range(NPART), 2 + pre, loads)
    proc_fin(E, L, sXO_, pre + n, loads)

def acc_part(E, L, k):
    acc = RB_ if k < NS else RB_ + 8
    for q in range(4):
        x = v(L + 4 * k + q)
        if k in (0, NS):
            E(valu('v_lshlrev_b32', v(acc + 2 * q), 16, x)); E(valu('v_and_b32', v(acc + 2 * q + 1), sT3, x))
        else:
            E(valu('v_dot2c_f32_bf16', v(acc + 2 * q), sD0, x, rmw=True)); E(valu('v_dot2c_f32_bf16', v(acc + 2 * q + 1), sD1, x, rmw=True))
def stream(E, segs, hooks=None):
    W = CFG.get('rwin', 8); FL = CFG.get('fflags', 'sc1')
    seq = []
    for (L, sP, sX_, ks, wx, fin) in segs:
        if wx:
            for it in ld_x(L, sX_): seq.append((it, None))
        ks = list(ks)
        for j, k in enumerate(ks):
            it = [add(sT2, sP, k * PSTR()), bload('buffer_load_dwordx4', v(L + 4 * k, 4), vLD, sWS, sT2, flags=FL)]
            last = fin and j == len(ks) - 1
            seq.append((it, (lambda L=L, k=k, last=last, sX_=sX_: (acc_part(E, L, k), proc_fin(E, L, sX_, None, []) if last else None, last)[2])))
    E(smov(sT3, 0xffff0000))
    n = len(seq); issued = 0
    extra_at = []
    for c in range(n):
        while issued < min(n, c + W): E(seq[issued][0]); issued += 1
        if hooks and c in hooks:
            for _ in range(hooks[c](issued + sum(1 for e in extra_at))): extra_at.append(issued)
            E(smov(sT3, 0xffff0000))
        if seq[c][1] is None: continue
        E(waitvm(issued - 1 - c + sum(1 for e in extra_at if e > c)))
        if seq[c][1]():
            extra_at += [issued, issued]

def body_items(E, n, its, two, ni, ensure, refresh, done, ST, seg, final_flag, poll_hook, LATE, L0, L1, FOUR, sMID, offs, sPT):
    E(salu('s_min_u32', sT2, sRS, sRF)); E(salu('s_cmp_lt_u32', None, its[two - 1], sT2)); E(raw(f"s_cbranch_scc0 L_{n}_sl"))
    ST(its[0])
    hooks = {(NPART + 2) * two - CFG.get('pollat', 8): poll_hook}
    if LATE: hooks[CFG.get('flagat', 3) if n == 'A' else 0] = final_flag
    stream(E, [seg(0, L0), seg(1, L1)][:two], hooks)
    ST(51)
    E(raw(f"s_branch L_{n}_j"))
    E(label(f"L_{n}_sl"))
    if LATE and two == 2 and CFG.get('mid1', 1):
        E(salu('s_min_u32', sT2, sRS, sRF)); E(salu('s_cmp_lt_u32', None, its[0], sT2)); E(raw(f"s_cbranch_scc0 L_{n}_s0"))
        ST(52)
        stream(E, [seg(0, L0)], {CFG.get('flagat', 3): final_flag, 12: poll_hook}); done(its[0])
        refresh(2); ensure(its[1], 1, 1)
        stream(E, [seg(1, L1)], {11: poll_hook})
        E(raw(f"s_branch L_{n}_j"))
        E(label(f"L_{n}_s0"))
    if LATE: final_flag(0)
    for i in range(two):
        ensure(its[i], 1, 1)
        stream(E, [seg(i, L0)], {11: poll_hook} if i == two - 1 else None); done(its[i])
    E(label(f"L_{n}_j"))
    for i in range(two): done(its[i])
    if FOUR or (CFG.get('asg') == 3 and n == 'A'):
        E(salu('s_cmp_gt_u32', None, sMID, 35)); E(raw(f"s_cbranch_scc1 L_{n}_nm"))
        refresh(2)
        ensure(sMID, 1, 1); ST(sMID)
        E(offs(sMID, sXP[0]))
        stream(E, [seg(0, L1)], {13: poll_hook}); done(sMID)
        E(label(f"L_{n}_nm"))
    def warm():
        if not CFG.get('warm', 1): return
        E(valu('v_mov_b32', v(240), vLD)); E(valu('v_mov_b32', v(241), vX4)); E(valu('v_mov_b32', vLD, OOB)); E(valu('v_mov_b32', vX4, OOB))
        E(raw(f"s_call_b64 {sRET2}, L_{n}_ft"))
        E(valu('v_mov_b32', vLD, v(240))); E(valu('v_mov_b32', vX4, v(241)))
    if ni == 3:
        if CFG.get('asg') == 3:
            E(salu('s_cmp_lt_u32', None, its[2], 36)); E(raw(f"s_cbranch_scc1 L_{n}_h3"))
            E(red_poll(True)[1]); E(waitvm(0)); E(raw(f"s_branch L_{n}_fin")); E(label(f"L_{n}_h3"))
        refresh(2)
        if CFG.get('nof'):
            E(salu('s_cmp_gt_u32', None, sMD2, 35)); E(raw(f"s_cbranch_scc1 L_{n}_k1"))
            ensure(sMD2, 1, 1); E(offs(sMD2, sXP[0])); ST(sMD2)
            E(salu('s_cmp_lt_u32', None, its[2], sRS)); E(raw(f"s_cbranch_scc0 L_{n}_k0"))
            E(salu('s_cmp_lt_u32', None, its[2], sRF)); E(raw(f"s_cbranch_scc1 L_{n}_k0"))
            warm()
            stream(E, [seg(0, L1), seg(2, L0, range(NS), True, False)], {20: poll_hook.sh}); done(sMD2)
            E(raw(f"s_branch L_{n}_k2"))
            E(label(f"L_{n}_k0"))
            stream(E, [seg(0, L1)], {11: poll_hook}); done(sMD2)
            refresh(2)
            E(label(f"L_{n}_k1"))
        ensure(its[2], 1, 0); ST(its[2])
        E(salu('s_cmp_lt_u32', None, its[2], sRF)); E(raw(f"s_cbranch_scc1 L_{n}_f3"))
        if CFG.get('rep') and n == 'A':
            warm()
            stream(E, [seg(2, L0, range(NS), True, False)], {4: poll_hook.sh})
            E(label(f"L_{n}_k2"))
            E(salu('s_cmp_eq_u32', None, sWAVE, 0)); E(raw(f"s_cbranch_scc0 L_{n}_w2"))
            E(waitvm(0))
            E(raw(f"v_cmp_ne_u32 vcc, 0, {vP}", 'valu', wr=['vcc'], rd=[vP])); E(nop(1))
            E(raw(f"s_lshr_b64 {sAB}, vcc, {NPART + 1}", 'salu', wr=[sAB], rd=['vcc'])); E(salu('s_and_b32', sAB[1], sAB[1], 15))
            E(salu('s_or_b32', sT2, sAB[0], sAB[1])); E(csel(sRS, 1, 0))
            E(shr(sC, its[2], 2)); E(mul(sI, sROLE, NREP * 128)); E(add(sI, sI, sPB)); E(add(sI, sI, 2048)); E(add(sSP, sI, NREP * 128))
            E(label(f"L_{n}_w0"))
            E(bload('buffer_load_dword', vP, vL5, sWS, sI, flags='sc1')); E(waitvm(0))
            E(raw(f"v_cmp_ge_u32 vcc, {sC}, {vP}", 'valu', wr=['vcc'], rd=[vP, sC])); E(nop(1))
            E(raw(f"s_and_b32 {sT2}, vcc_lo, {hex((1 << NPART) - (1 << NS))}", 'salu', wr=[sT2], rd=['vcc'])); E(csel(sRF, 0, 36))
            E(raw(f"s_cbranch_scc0 L_{n}_w1"))
            E(add(sI, sI, 128)); E(salu('s_cmp_lt_u32', None, sI, sSP)); E(raw(f"s_cbranch_scc0 L_{n}_w1"))
            E(raw(f"s_sleep {CFG.get('rsleep', 6)}")); E(raw(f"s_branch L_{n}_w0"))
            E(label(f"L_{n}_w1")); E(red_pub(sPAR))
            E(label(f"L_{n}_w2")); E(barrier()); E(red_get(sPAR)); E(salu('s_xor_b32', sPAR, sPAR, 12))
            E(smov(sMID, sRS))
            ensure(its[2], 0, 1); ST(50)
            E(raw(f"s_call_b64 {sRET2}, L_{n}_ft")); done(its[2])
            E(salu('s_cmp_eq_u32', None, sMID, 0)); E(raw(f"s_cbranch_scc1 L_{n}_exit")); E(raw(f"s_branch L_{n}_fb"))
            E(label(f"L_{n}_ft"))
            stream(E, [seg(2, L0, range(NS, NPART), False, True)])
            E(raw(f"s_setpc_b64 {sRET2}"))
        else:
            stream(E, [seg(2, L0, range(NS), True, False)], {6: poll_hook})
            refresh(0)
            ensure(its[2], 0, 1); ST(50)
            stream(E, [seg(2, L0, range(NS, NPART), False, True)], {0: poll_hook.sh})
            E(raw(f"s_branch L_{n}_f4"))
        E(label(f"L_{n}_f3"))
        stream(E, [seg(2, L0)], {11: poll_hook.sh})
        E(label(f"L_{n}_f4"))
        done(its[2])


def reducer(kind):
    p = Prog(); E = p.emit; n = kind; FL = CFG.get('fflags', 'sc1')
    PRIV[0] = (kind == 'A')
    def ST(code):
        if CFG['stamps'] != 2: return
        E(raw(f"s_memtime {sSTAMP}", wr=[sSTAMP])); E(raw("s_waitcnt lgkmcnt(0)")); E(salu('s_sub_u32', s(98), s(98), s(100)))
        E(shl(s(98), s(98), 6)); E(salu('s_or_b32', s(98), s(98), code))
        E(add(s(97), s(97), 16)); E(salu('s_min_u32', s(97), s(97), 11 * 16))
        E(raw(f"v_cmp_eq_u32 vcc, s97, {vLANE16}", 'valu', wr=['vcc'], rd=[s(97), vLANE16])); E(valu('v_mov_b32', v(27), s(98)))
        E(valu('v_cndmask_b32', vSTAMP, vSTAMP, v(27), 'vcc'))
    def offs(item, sX_):
        return [salu('s_and_b32', sT2, item, 3), shr(sC, item, 2), shl(sT3, sRB, 2), add(sT2, sT2, sT3), mul(sPART, sT2, PWAVE), add(sX_, sPART, sXW),
                shl(sT3, sC, 12), add(sT3, sT3, sPWv), add(sPART, sPART, sT3), shl(sT3, sC, 7), add(sX_, sX_, sT3)]
    k_ = [0]
    def ensure(item, s_, f_):
        L = f"L_{n}_en{k_[0]}"; k_[0] += 1
        if s_ and f_: E(salu('s_min_u32', sT2, sRS, sRF)); r = sT2
        else: r = sRS if s_ else sRF
        E(salu('s_cmp_lt_u32', None, item, r)); E(raw(f"s_cbranch_scc1 {L}"))
        E(smov(sI, item)); E(smov(sC, (1 if s_ else 0) | (2 if f_ else 0)))
        E(raw(f"s_call_b64 {sRET2}, L_{n}_sync"))
        E(salu('s_cmp_eq_u32', None, sTO, 0)); E(raw(f"s_cbranch_scc0 L_{n}_fb"))
        E(label(L))
    def done(item): E(raw(f"s_bitset0_b64 {sRM}, {item}", 'salu', wr=[sRM], rd=[sRM, item]))
    E(label(f"L_{n}_red"))
    if CFG.get('rdelay'):
        if n == 'A': (E(waitvm(0)), E(barrier()), E(valu('v_mov_b32', vPRG, 9)), E(bstore('buffer_store_dword', vPRG, vCT, sWS, 0, flags='sc1')))
        for _ in range({'A': 30, 'M': 24, 'F': 14}[n]): E(raw("s_sleep 16"))
    E(red_get(LDSC))
    if CFG.get('rdelay'): E(smov(sRS, 36)); E(smov(sRF, 36))
    E(valu('v_lshrrev_b32', vO, 4, vLANE16)); E(valu('v_and_b32', vXO, 7, vO)); E(valu('v_lshlrev_b32', vLD, 4, vXO))
    E(smov(sT2, 1152)); E(valu('v_mul_u32_u24', vXO, sT2, vXO))
    E(valu('v_lshrrev_b32', vA, 3, vO)); E(valu('v_lshl_add_u32', vX4, vA, 4, vXO))
    E(valu('v_bfe_u32', vA, vO, 3, 2)); E(valu('v_lshl_add_u32', vXO, vA, 3, vXO)); E(valu('v_lshl_add_u32', vLD, vA, 8, vLD))
    E(valu('v_lshrrev_b32', vA, 5, vO)); E(valu('v_lshl_add_u32', vXO, vA, 6, vXO)); E(valu('v_lshl_add_u32', vLD, vA, 11, vLD))
    E(mul(sXW, sWAVE, 8 * 1152)); E(shr(sPWv, sWAVE, 1)); E(shl(sPWv, sPWv, 10)); E(salu('s_and_b32', sT2, sWAVE, 1)); E(shl(sT2, sT2, 7)); E(add(sPWv, sPWv, sT2))
    L0, L1 = 72, 76 + 4 * NPART
    E(smov(sD0, 0x3f80)); E(smov(sD1, 0x3f800000))
    E(raw(f"s_mov_b64 {sRM}, 0", 'salu', wr=[sRM]))
    FOUR = CFG.get('four')
    sMID = s(48 + 0) if False else s(83)
    def nib(dst, tab, base):
        E(smov(sCD[0], sum(tab[i] << (4 * i) for i in range(8)))); E(smov(sCD[1], tab[8] | (tab[9] << 4)))
        E(shl(sT2, sROLE, 2)); E(s64('s_lshr_b64', sCD, sCD, sT2)); E(salu('s_and_b32', dst, sCD[0], 15))
        E(salu('s_cmp_eq_u32', None, dst, 15)); E(csel(dst, 63 - base, dst)); E(add(dst, dst, base))
    if n == 'A':
        E(smov(sIT[0], sROLE)); E(add(sIT[1], sROLE, NA))
        if CFG.get('asg') == 2: E(add(sIT[2], sROLE, 16))
        elif CFG.get('asg') == 3:
            E(add(sMID, sROLE, 16)); E(raw(f"s_bitset1_b64 {sRM}, {sMID}", 'salu', wr=[sRM], rd=[sRM, sMID]))
            E(salu('s_and_b32', sT2, sROLE, 1)); E(shr(sIT[2], sROLE, 1)); E(add(sIT[2], sIT[2], 24)); E(salu('s_cmp_eq_u32', None, sT2, 0)); E(csel(sIT[2], sIT[2], 63))
        elif CFG.get('l844'): E(add(sIT[2], sROLE, 28))
        elif FOUR:
            nib(sMID, [0, 15, 1, 2, 15, 3, 4, 5, 6, 7], 20); nib(sIT[2], [0, 1, 15, 2, 3, 15, 4, 5, 6, 7], 28)
            E(raw(f"s_bitset1_b64 {sRM}, {sMID}", 'salu', wr=[sRM], rd=[sRM, sMID]))
        else:
            nib(sIT[2], [0, 1, 15, 2, 3, 15, 4, 5, 6, 7], 28)
            E(salu('s_cmp_eq_u32', None, sROLE, 2)); E(csel(sIT[2], 22, sIT[2])); E(salu('s_cmp_eq_u32', None, sROLE, 5)); E(csel(sIT[2], 21, sIT[2]))
            if CFG.get('nof'):
                nib(sMD2, CFG['nof'], 23)
                E(raw(f"s_bitset1_b64 {sRM}, {sMD2}", 'salu', wr=[sRM], rd=[sRM, sMD2]))
        its = sIT
    elif CFG.get('asg') == 2:
        if n == 'M': E(add(sIT[0], sROLE, 16)); E(add(sIT[1], sROLE, 20)); its = sIT[:2]
        else: E(add(sIT[0], sROLE, 20)); its = sIT[:1]
    elif CFG.get('asg') == 3:
        E(add(sIT[0], sROLE, 20)); its = sIT[:1]
    elif CFG.get('l844'):
        if n == 'M': E(add(sIT[0], sROLE, 8)); E(add(sIT[1], sROLE, 12)); its = sIT[:2]
        else: E(add(sIT[0], sROLE, 12)); its = sIT[:1]
    elif n == 'M': E(smov(sIT[0], 20)); its = sIT[:1]
    else:
        E(add(sIT[0], sROLE, 12)); its = sIT[:1]
    if (FOUR and n != 'A') or (CFG.get('nof') and n == 'F'):
        its = []
        E(waitvm(0)); E(red_poll()[1]); E(waitvm(0)); E(raw(f"s_branch L_{n}_fin"))
    for it in its: E(raw(f"s_bitset1_b64 {sRM}, {it}", 'salu', wr=[sRM], rd=[sRM, it]))
    E(salu('s_and_b32', sRM[1], sRM[1], 15))
    def refresh(wait):
        L = f"L_{n}_rf{k_[0]}"; k_[0] += 1
        E(salu('s_cmp_eq_u32', None, sWAVE, 0)); E(raw(f"s_cbranch_scc0 {L}"))
        E(waitvm(wait)); E(red_eval()); E(red_pub(sPAR))
        E(label(L)); E(barrier()); E(red_get(sPAR)); E(salu('s_xor_b32', sPAR, sPAR, 12))
    ALLD = lambda L, sx: ld_part(L, range(NPART), FL) + ld_x(L, sx)
    LATE = n in CFG.get('lateflag', 'A') + CFG.get('pre', '')
    sPT = [s(47), s(67 - 2), s(70)]
    def offs2(i): return offs(its[i], sXP[i]) + ([smov(sPT[i], sPART)] if i else [])
    def final_flag(wait):
        E(waitvm(wait)); E(barrier())
        E(valu('v_mov_b32', vPRG, 9))
        if CFG.get('rep') and n in 'FM': E(bstore('buffer_store_dword', vPRG, vCR, sWS, 0, flags='sc1'))
        E(bstore('buffer_store_dword', vPRG, vCT, sWS, 0, flags='sc1'))
        return 2 if (CFG.get('rep') and n in 'FM') else 1
    def poll_hook(_): E(red_poll()[1]); return 2
    def poll_sh(_): E(red_poll(True)[1]); return 2
    poll_hook.sh = poll_sh
    seg = lambda i, L, ks=range(NPART), wx=True, fin=True: (L, sPT[i], sXP[i], ks, wx, fin)
    ni = len(its)
    for i in reversed(range(ni)): E(offs2(i))
    two = min(ni, 2)
    if ni: body_items(E, n, its, two, ni, ensure, refresh, done, ST, seg, final_flag, poll_hook, LATE, L0, L1, FOUR, sMID, offs, sPT)
    E(label(f"L_{n}_fin"))
    E(salu('s_cmp_eq_u32', None, sWAVE, 0)); E(raw(f"s_cbranch_scc0 L_{n}_b4"))
    E(waitvm(2))
    E(raw(f"v_cmp_ne_u32 vcc, 0, {vP}", 'valu', wr=['vcc'], rd=[vP])); E(nop(1))
    E(raw(f"s_lshr_b64 {sAB}, vcc, {NPART + 1}", 'salu', wr=[sAB], rd=['vcc'])); E(salu('s_and_b32', sAB[1], sAB[1], 15))
    E(salu('s_or_b32', sT2, sAB[0], sAB[1])); E(csel(sTO, 1, 0))
    E(salu('s_cmp_ge_u32', None, sOK, 16)); E(csel(sTO, sTO, 1)); E(red_pub(sPAR))
    E(label(f"L_{n}_b4")); E(barrier()); E(red_get(sPAR)); E(salu('s_xor_b32', sPAR, sPAR, 12))
    E(salu('s_cmp_eq_u32', None, sTO, 0)); E(raw(f"s_cbranch_scc1 L_{n}_exit"))
    E(label(f"L_{n}_fb"))
    E(waitvm(0))
    E(salu('s_cmp_eq_u32', None, sWAVE, 0)); E(raw(f"s_cbranch_scc0 L_{n}_fb2"))
    E(s64('s_lshl_b64', sCD, sRM, NPART + 1)); E(valu('v_mov_b32', vO, OOB)); E(valu('v_mov_b32', vA, 1))
    E(valu('v_cndmask_b32', vO, vO, vL4, sCD)); E(bstore('buffer_store_dword', vA, vO, sWS, sPB, flags='sc1')); E(waitvm(0))
    E(red_poll()[0]); E(waitvm(0)); E(red_poll(True)[1]); E(waitvm(0)); E(valu('v_readfirstlane_b32', sOK, vD)); E(red_eval())
    E(salu('s_min_u32', sT2, sRS, sRF)); E(salu('s_cmp_ge_u32', None, sOK, 16)); E(csel(sT2, sT2, 0))
    E(salu('s_bfm_b64', sCD, sT2, 0, scc_w=False)); E(s64('s_or_b64', sAB, sAB, sRM)); E(s64('s_and_b64', sAB, sAB, sCD))
    E(label(f"L_{n}_fb1"))
    E(raw(f"s_ff1_i32_b64 {sRS}, {sAB}", 'salu', wr=[sRS], rd=[sAB])); E(salu('s_and_b32', sRS, sRS, 255))
    E(raw(f"s_bitset0_b64 {sAB}, {sRS}", 'salu', wr=[sAB], rd=[sAB, sRS])); E(red_pub(sPAR))
    E(label(f"L_{n}_fb2")); E(barrier()); E(red_get(sPAR)); E(salu('s_xor_b32', sPAR, sPAR, 12))
    E(salu('s_cmp_ge_u32', None, sRS, 36)); E(raw(f"s_cbranch_scc1 L_{n}_exit"))
    E(offs(sRS, sXP[0])); E(ld_part(L0, range(NPART), FL) + ld_x(L0, sXP[0])); E(waitvm(0)); proc_all(E, L0, sXP[0], 0, [])
    E(salu('s_cmp_eq_u32', None, sWAVE, 0)); E(raw(f"s_cbranch_scc1 L_{n}_fb1")); E(raw(f"s_branch L_{n}_fb2"))
    E(label(f"L_{n}_exit"))
    ST(60)
    if CFG['stamps']: E(raw(f"s_setpc_b64 {sRET}"))
    else: E(raw("s_endpgm"))
    E(label(f"L_{n}_sync"))
    E(salu('s_cmp_eq_u32', None, sWAVE, 0)); E(raw(f"s_cbranch_scc0 L_{n}_sy2"))
    E(smov(sSP, 0)); E(red_poll()[1][0])
    E(label(f"L_{n}_sy0"))
    E(salu('s_cmp_ge_u32', None, sOK, 16)); E(raw(f"s_cbranch_scc1 L_{n}_sy1"))
    E(red_poll()[0]); E(waitvm(0)); E(valu('v_readfirstlane_b32', sOK, vD))
    E(salu('s_cmp_ge_u32', None, sOK, 16)); E(raw(f"s_cbranch_scc0 L_{n}_syw"))
    E(label(f"L_{n}_sy1"))
    E(red_poll()[1][1]); E(red_poll()[1][0]); E(waitvm(1)); E(red_eval())
    E(salu('s_bitcmp1_b32', None, sC, 0)); E(csel(sT2, sRS, 36)); E(salu('s_bitcmp1_b32', None, sC, 1)); E(csel(sT3, sRF, 36))
    E(salu('s_min_u32', sT2, sT2, sT3)); E(salu('s_cmp_lt_u32', None, sI, sT2)); E(raw(f"s_cbranch_scc1 L_{n}_syp"))
    E(label(f"L_{n}_syw"))
    E(add(sSP, sSP, 1)); E(salu('s_cmp_gt_u32', None, sSP, CFG.get('spin', 4000))); E(csel(sTO, 1, 0)); E(raw(f"s_cbranch_scc1 L_{n}_syp"))
    E(raw(f"s_sleep {CFG.get('sleep', 1)}")); E(raw(f"s_branch L_{n}_sy0"))
    E(label(f"L_{n}_syp"))
    E(red_pub(sPAR))
    E(label(f"L_{n}_sy2")); E(barrier()); E(red_get(sPAR)); E(salu('s_xor_b32', sPAR, sPAR, 12))
    E(raw(f"s_setpc_b64 {sRET2}"))
    return p

def reduce_items(p, ni, sPART_, sXO_, srdP, srdX, srdO, vL16, vXO_, base, flags, mid=None):
    E = p.emit
    SA = base; FA = base + 8; T = base + 16
    Ls = [base + 24 + 72 * i for i in range(ni)]
    for k in range(NPART):
        if k: E(add(sPART_, sPART_, 16 * PART - (PWAVE if ni == 2 else 0)))
        for i in range(ni):
            if i: E(add(sPART_, sPART_, PWAVE))
            E(bload('buffer_load_dwordx4', v(Ls[i] + 4 * k, 4), vL16, srdP, sPART_, flags=flags))
    for i in range(ni):
        XR = Ls[i] + 68
        if i: E(add(sT2, sXO_, 32 * 1152))
        so = sT2 if i else sXO_
        E(bload('buffer_load_dwordx2', v(XR, 2), vXO_, srdX, so)); E(bload('buffer_load_dwordx2', v(XR + 2, 2), vXO_, srdX, so, 32))
    ex = 0
    if mid: mid(); ex = 1
    E(smov(sT3, 0xffff0000))
    for i in range(ni):
        L = Ls[i]; XR = L + 68
        for k in range(NPART):
            if i == 0: E(waitvm((NPART - 1 - k) * ni + (ni - 1) + 2 * ni + ex))
            acc = SA if k < 11 else FA
            for q in range(4):
                x = v(L + 4 * k + q)
                if k in (0, 11):
                    E(valu('v_lshlrev_b32', v(acc + 2 * q), 16, x)); E(valu('v_and_b32', v(acc + 2 * q + 1), sT3, x))
                else:
                    tp = v(T + 2 * q, 2)
                    E(valu('v_lshlrev_b32', tp[0], 16, x)); E(valu('v_and_b32', tp[1], sT3, x))
            if k not in (0, 11):
                for q in range(4): E(valu('v_pk_add_f32', v(acc + 2 * q, 2), v(acc + 2 * q, 2), v(T + 2 * q, 2)))
        for e in range(8): E(valu('v_exp_f32', v(T + e), v(FA + e)))
        for e in range(8): E(valu('v_add_f32', v(T + e), 1.0, v(T + e)))
        for e in range(8): E(valu('v_rcp_f32', v(T + e), v(T + e)))
        for e in range(8): E(valu('v_mul_f32', v(FA + e), f2u(-math.log(2.0)), v(FA + e)))
        for e in range(8): E(valu('v_mul_f32', v(FA + e), v(FA + e), v(T + e)))
        if i == 0: E(waitvm(ex if ni == 1 else 0))
        for q in range(4):
            E(valu('v_lshlrev_b32', v(T + 2 * q), 16, v(XR + q))); E(valu('v_and_b32', v(T + 2 * q + 1), sT3, v(XR + q)))
        for e in range(8): E(valu('v_fma_f32', v(T + e), v(SA + e), v(FA + e), v(T + e)))
        for q in range(4): E(valu('v_cvt_pk_bf16_f32', v(XR + q), v(T + 2 * q), v(T + 2 * q + 1)))
        if i: E(add(sXO_, sXO_, 32 * 1152))
        E(bstore('buffer_store_dwordx2', v(XR, 2), vXO_, srdO, sXO_)); E(bstore('buffer_store_dwordx2', v(XR + 2, 2), vXO_, srdO, sXO_, 32))

def build_role(kind, vm_before):
    R = Role(kind)
    CFG['shape'] = CFG.get('shapes', {}).get(kind, CFG['shape0'])
    R.ring = {'F': (216, 9), 'A': (192, 16), 'M': (200, 8)}[kind]
    if kind == 'M': R.depth = 7
    nl = CFG.get('pfl', 16)
    MS = CFG['shape'] == 'M'
    if MS:
        R.add_p1_unit, R.add_p1_half, R.epi_silu, R.epi_q = R.add_p1_unitM, R.add_p1_halfM, R.epi_siluM, R.epi_qM
    P2M = 'q16' if MS else 'pi'
    if kind == 'F' and CFG.get('l844'):
        R.ring = (208, 12); R.depth = 7
        for u in range(13): R.add_p1_unit(u, sW1, sHA, sHC, 9216, u == 0, a(16 * u, 16), R.epi_silu, last=(u == 12),
                                          inreg=[pf_run(sW2, sPF2, 832 * 1152, 10) if u >= 1 else None, pf_row('F', sW1)])
        needs = {t: [('reg', 8 * t)] for t in range(26)}
        dm = [dma_w(sW2, sFA, 0, 1152, sFC, 0), dma_w(sW2, sFA, 288 * 1152, 1152, sFC, 288 * 1152), dma_w(sW2, sFA, 576 * 1152, 1152)]
        R.add_p2([(a(0, 208), [288, 288, 256], dm, needs, sSt)], [add(x, x, 128) for x in (sFA, sFC)], pre0=lambda: set_offw(1152, P2M))
        for st in R.stages[-27:]: st.ring = (208, 12, 'restart')
    elif kind == 'M' and CFG.get('l844'):
        R.ring = (208, 8); R.depth = 7
        Q = [a(80, 32), a(112, 32)]; OA = a(144, 64)
        def mpf(u):
            if u == 0: return pf_row('M', sWQ)
            if u == 1: return lambda: pf_row_setup('M', 9216, 18, sPF1, 0) + [pf_row('M', sW1)()[1]]
            if u <= 5: return pf_row('M', sW1)
            return None
        for u in range(4): R.add_p1_unit(u, sWQ, sQA, sQC, 8192, u == 0, a(80 + 16 * u, 16), R.epi_q, key='Q', inreg=[None, mpf(u)])
        for u in range(5): R.add_p1_unit(4 + u, sW1, sHA, sHC, 9216, u == 0, a(16 * u, 16), R.epi_silu, pre=(lambda: set_offw(9216, 'S')) if u == 0 else None,
                                         last=(u == 4), key='H', inreg=[None, mpf(4 + u)])
        Ha = dict(i=0, Q=Q[0], S=Sreg, P=Preg, O=OA, LM=v(230, 8), OF=lambda kk: OA.sub(16 * kk, 8),
                  need_qk=[('acc', 80), ('acc', 96)], need_pv=[('acc', 48 + 16 * i) for i in range(4)])
        Hb = dict(i=1, Q=Q[1], S=[v(80, 16), v(96, 16)], P=[v(48, 8), v(56, 8)], O=v(160, 64), LM=v(64, 8), OF=lambda kk: OA.sub(16 * kk + 8, 8))
        R.add_pa_g([[Ha, Hb]])
        R.stages[-9].mf[-1].need.append(('acc', 48))
        R.heads = [(Ha, sPFa), (Hb, sPFa)]
        R.add_p2m(a(0, 80), [H['OF'](kk) for H in (Ha, Hb) for kk in range(4)],
                  [dma_w(sW2, sFA, 0, 1152, sFC, 0), dma_w(sWO, sOA, 0, 1152, sFC, 32 * 1152, srdC=sW2)],
                  [add(x, x, 128) for x in (sOA, sFA, sFC)], pre0=lambda: set_offw(1152, P2M))
        for st in R.stages[-18:]: st.ring = (208, 12, 'restart')
        k = pf_sched(R, 15, sK, sPFa, 131072, 16); k = pf_sched(R, k, sV, sPFa, 131072, 16)
        pf_sched(R, 17, sWO, sPFc, 256 * 1152, 36); pf_sched(R, 18, sW2, sPF2, 320 * 1152, 45)
    elif kind == 'F':
        for u in range(13): R.add_p1_unit(u, sW1, sHA, sHC, 9216, u == 0, a(16 * u, 16), R.epi_silu, last=(u == 12), inreg=[pf_run(sW2, sPF2, 832 * 1152, 10) if u >= 1 else None, pf_row('F', sW1) if CFG['pf'] >= 3 else None] if CFG['pf'] else None)
        R.add_p1_half(13, a(208, 8))
        needs = {t: [('reg', 8 * t)] for t in range(27)}
        dm = [dma_w(sW2, sFA, 0, 1152, sFC, 0), dma_w(sW2, sFA, 288 * 1152, 1152, sFC, 288 * 1152), dma_w(sW2, sFA, 576 * 1152, 1152, sFS, 0)]
        R.add_p2([(a(0, 216), [288, 288, 288], dm, needs, sSt)], [add(x, x, 128) for x in (sFA, sFC, sFS)], pre0=lambda: set_offw(1152, P2M))
        if CFG['pf']:
            pf_sched(R, 26, sW2, sPF2h, 32 * 1152, 8)
    elif kind == 'A' and CFG.get('pair'):
        OA = a(96, 64)
        Ha = dict(i=0, Q=a(0, 32), S=Sreg, P=Preg, O=OA, LM=v(230, 8), OF=lambda kk: OA.sub(16 * kk, 8),
                  need_qk=[('acc', 48), ('acc', 64)], need_pv=[('acc', 48 + 16 * i) for i in range(4)])
        Hb = dict(i=1, Q=a(32, 32), S=[v(48, 16), v(64, 16)], P=[v(80, 8), v(88, 8)], O=v(160, 64), LM=v(96, 8), OF=lambda kk: OA.sub(16 * kk + 8, 8))
        Hc = dict(i=2, Q=a(64, 32), S=Sreg, P=Preg, O=v(48, 64), LM=v(16, 8), OF=lambda kk: a(160 + 8 * kk, 8), need_pv=[('lm', 0)])
        Ha['need_qk'] += [('acc', 80)]
        pj = {1: sJQ}
        for u in range(6):
            R.add_p1_unit(u, sWQ, sQA, sQC, 8192, u == 0, a(16 * u, 16), R.epi_q, last=(u == 5), step=sJQ if u == 4 else 128,
                          inreg=[pf_run(sWO, sPFc, 384 * 1152, 11) if u >= 1 else None, pf_row('A', sWQ, pj.get(u, 128)) if CFG['pf'] >= 3 and u < 3 else None] if CFG['pf'] else None)
        R.add_pa_g([[Ha, Hb], [Hc]])
        Bf = [H['OF'](kk) for H in (Ha, Hb, Hc) for kk in range(4)]
        needs = {0: [('fin', 0), ('fin', 1)], 8: [('fin', 2)]}
        dm = [dma_w192(sWO, 0), dma_w192(sWO, 0, sOA1, sOB1)]
        R.add_p2([(Bf, [192, 192], dm, needs, sSt)], [add(x, x, 128) for x in (sOA, sOB, sOA1, sOB1)], pre0=lambda: set_offw(1152, P2M))
        R.heads = [(Ha, sPFa), (Hb, sPFa), (Hc, sPFb)]
        if CFG['pf'] >= 2:
            pf_sched(R, 10, sK, sPFa, 131072, 16); pf_sched(R, 10, sV, sPFa, 131072, 16)
            pf_sched(R, 12, sK, sPFb, 131072, 16); pf_sched(R, 12, sV, sPFb, 131072, 16)
    elif kind == 'A':
        Q = [a(32 * e, 32) for e in range(3)]; O = [a(96 + 32 * e, 32) for e in range(3)]
        for u in range(6): R.add_p1_unit(u, sWQ, sQA, sQC, 8192, u == 0, a(16 * u, 16), R.epi_q, last=(u == 5), inreg=[pf_run(sWO, sPFc, 384 * 1152, 11) if u >= 1 else None, pf_row('A', sWQ) if CFG['pf'] >= 3 and u < 5 else None] if CFG['pf'] else None)
        R.add_pa(Q, O)
        needs = {4 * e: [('fin', e)] for e in range(3)}; needs[0].append(('S', 2, 15))
        dm = [dma_w192(sWO, b * 192 * 1152) for b in range(2)]
        R.add_p2([(a(96, 96), [192, 192], dm, needs, sSt)], [add(sOA, sOA, 128), add(sOB, sOB, 128)], pre0=lambda: set_offw(1152, P2M))
        if CFG['pf']:
            if CFG['pf'] >= 2:
                pf_sched(R, 10, sK, sPFa, 131072, 16); pf_sched(R, 10, sV, sPFa, 131072, 16)
                pf_sched(R, 12, sK, sPFb, 131072, 16); pf_sched(R, 12, sV, sPFb, 131072, 16)
    else:
        Q = [a(136 + 32 * e, 32) for e in range(2)]; O = [a(72 + 32 * e, 32) for e in range(2)]
        def mpf(u):
            if u == 0: return pf_row('M', sWQ)
            if u == 1: return lambda: pf_row_setup('M', 9216, 18, sPF1, 0) + [pf_row('M', sW1)()[1]]
            if u <= 4: return pf_row('M', sW1)
            if u == 5: return lambda: [smov(sPW, sPF1h), pf_row('M', sW1)()[1]]
            return None
        for u in range(4): R.add_p1_unit(u, sWQ, sQA, sQC, 8192, u == 0, a(136 + 16 * u, 16), R.epi_q, key='Q', inreg=[None, mpf(u)] if CFG['pf'] >= 3 else None)
        for u in range(4): R.add_p1_unit(4 + u, sW1, sHA, sHC, 9216, u == 0, a(16 * u, 16), R.epi_silu, pre=(lambda: set_offw(9216, 'M' if MS else 'S')) if u == 0 else None, last=(u == 3), key='H', inreg=[None, mpf(4 + u)] if CFG['pf'] >= 3 else None)
        R.add_p1_half(8, a(64, 8))
        BO = a(72, 64)
        if CFG.get('pair'):
            Ha = dict(i=0, Q=Q[0], S=Sreg, P=Preg, O=BO, LM=v(230, 8), OF=lambda kk: BO_.sub(16 * kk, 8),
                      need_qk=[('acc', 48 + 16 * i) for i in range(3)], need_pv=[('acc', 48 + 16 * i) for i in range(4)])
            Hb = dict(i=1, Q=Q[1], S=[v(64, 16), v(48, 16)], P=[v(80, 8), v(88, 8)], O=v(160, 64), LM=v(96, 8), OF=lambda kk: BO_.sub(16 * kk + 8, 8))
            BO_ = BO
            if CFG.get('mfree', 0):
                Hb['S'] = [v(64, 16), v(238, 16)]; Ha['need_qk'] = [('acc', 64), ('acc', 80)]; Ha['need_pv'] = [('acc', 96)]
                R.ntmp = 12; R.ones = v(28, 4)
                for st_, idx in ((R.stages[-2], -1), (R.stages[-1], -1)):
                    m_ = st_.mf[idx]; f_ = m_.after
                    m_.after = (lambda G, f_=f_: (setattr(R, 'low', True), f_(G), setattr(R, 'low', False)))
            R.add_pa_g([[Ha, Hb]])
            BO = [H['OF'](kk) for H in (Ha, Hb) for kk in range(4)]
            R.heads = [(Ha, sPFa), (Hb, sPFa)]
        else: R.add_pa(Q, O)
        nf = {t: [('reg', 8 * t)] for t in range(9)}; nf[0].append(('S', 1, 15))
        R.add_p2([(a(0, 72), [288], [dma_w(sW2, sFA, 0, 1152, sFS, 0)], nf, sSt2),
                  (BO, [256], [dma_w(sWO, sOA, 0, 1152)], {0: [('fin', 0)], 4: [('fin', 1)]}, sSt)],
                 [add(x, x, 128) for x in (sOA, sFA, sFS)], pre0=lambda: set_offw(1152, P2M))
        for st in R.stages[-18:]: st.ring = (200, 14, 'restart')
        if CFG['pf']:
            if CFG['pf'] >= 2:
                k = pf_sched(R, 14, sK, sPFa, 131072, 16); k = pf_sched(R, k, sV, sPFa, 131072, 16)
            pf_sched(R, 16, sWO, sPFc, 256 * 1152, 36); pf_sched(R, 23 if not CFG.get('pair') else 17, sW2, sPF2, 256 * 1152, 36); pf_sched(R, 24 if not CFG.get('pair') else 17, sW2, sPF2h, 32 * 1152, 8)
    if CFG.get('msum') and not MS and kind in 'AM':
        st0 = [st for st in R.stages if st.name == 'PAh0s0'][0]
        m0_ = st0.mf[8]
        if not hasattr(R, 'ones'): m0_.need += [('acc', 48 + 16 * i) for i in range(4)]
        m0_.pre = lambda: R.p.emit([valu('v_mov_b32', getattr(R, 'ones', vONES)[i], 0x3f803f80) for i in range(4)])
    if CFG.get('recode') and CFG['fused']:
        names = [st.name for st in R.stages]
        nS = len(names)
        R.pf.setdefault(nS - 2, []).append(pf_code(f"L_{kind}_red", f"L_role{kind}_end", 4))
        p2 = names.index('P2c0b0')
        R.stages[p2].label = f"L_{kind}_p2"
        R.pf.setdefault(p2 - 2, []).append(pf_code(f"L_{kind}_p2", f"L_{kind}_p2+20480", 5))
        if kind in 'AM':
            pa = names.index('PAmini'); R.stages[pa].label = f"L_{kind}_pa"
            R.pf.setdefault(pa - 1, []).append(pf_code(f"L_{kind}_pa", f"L_{kind}_p2", 8))
    if CFG.get('hot') and CFG['fused'] and kind in CFG['hot']:
        names = [st.name for st in R.stages]
        last = names.index('P2c8b0'); R.stages[last].label = f"L_{kind}_c8"
        def setup():
            o = [raw(f"s_getpc_b64 {sPC}", 'salu', wr=[sPC]), label(f"L_{kind}_hp"),
                 salu('s_add_u32', sPC[0], sPC[0], f"L_{kind}_c8-L_{kind}_hp"), salu('s_addc_u32', sPC[1], sPC[1], 0, scc_r=True),
                 valu('v_bfe_u32', vPF2, vTID, 16, 5), valu('v_and_b32', vPF, 63, vTID), valu('v_min_u32', vPF, 1, vPF),
                 valu('v_lshl_add_u32', vPF, vPF2, 1, vPF), valu('v_lshlrev_b32', vPF, 7, vPF)]
            if kind == 'F': o += pf_row_setup(kind, 1152, 26, sPF2, 2 * 128)
            return o
        def rep_code():
            return [I(f"global_load_dword {vDUM}, {vPF}, {sPC}", 'vload', wr=vDUM.regs(), rd=vPF.regs() + sPC.regs(), units=3, tag='pf')]
        R.pf.setdefault(names.index('P2c1b0'), []).append(setup)
        for c in range(2, 8):
            k0 = names.index(f'P2c{c}b0')
            R.pf.setdefault(k0, []).append(rep_code)
            if kind == 'F': R.pf.setdefault(k0 + 1, []).append(pf_row(kind, sW2))
    R.slow = []
    if kind in 'AM' and CFG.get('slow', True) and CFG.get('pair'):
        P2s = [st for st in R.stages if st.name.startswith('P2c0')]
        hl = [(H['i'], H['Q'], (H['OF'], kv)) for (H, kv) in R.heads]
        if kind == 'A':
            P2s[0].mf[0].pre = slow_check(R, hl[:2], (112, 160))
            [m for m in P2s[1].mf if ('fin', 2) in m.need][0].pre = slow_check(R, hl[2:], (160, 48))
        else:
            m_ = P2s[1].mf[4 if CFG.get('l844') else 0]
            m_.need += [('fin', 0), ('fin', 1)]
            m_.pre = slow_check(R, hl, (160, 48))
    elif kind in 'AM' and CFG.get('slow', True):
        P2s = [st for st in R.stages if st.name.startswith('P2c0')]
        if kind == 'A':
            P2s[0].mf[0].need += [('fin', 1)]
            P2s[0].mf[0].pre = slow_check(R, [(0, Q[0], O[0]), (1, Q[1], O[1])], 112)
            m_ = [m for m in P2s[1].mf if ('fin', 2) in m.need][0]
            m_.pre = slow_check(R, [(2, Q[2], O[2])], 160)
        else:
            P2s[1].mf[0].need += [('fin', 1)]
            P2s[1].mf[0].pre = slow_check(R, [(0, Q[0], O[0]), (1, Q[1], O[1])], 160)
    if CFG['fused']:
        add_signals(R)
        def early0():
            it = red_setup(kind) + red_poll()[0]
            it[-1].tag = 'cnt'
            return it
        def early():
            assert R.cnt_covered()
            PRIV[0] = (kind == 'A')
            it = red_poll()[1]
            it[-1].tag = 'poll'
            return it
        def covered():
            idx = max(i for i, x in enumerate(R.p.ins) if x.tag == 'cnt'); n = 0
            for x in R.p.ins[idx + 1:]:
                if x.kind in VMEMK: n += 1
                if x.txt.startswith('s_waitcnt vmcnt(') and int(x.txt[16:-1]) <= n: return True
            return False
        R.cnt_covered = covered
        if kind == 'A' and CFG.get('l2pf'):
            nm = [st.name for st in R.stages]
            R.pf.setdefault(nm.index('P2c1b0'), []).append(l2pf_setup)
            for (cw, dlt) in CFG['l2pf']:
                kp = nm.index(f'P2c{cw}b0')
                for j in range(4): R.pf.setdefault(kp, []).append(lambda j=j: l2pf_poll()[j])
                R.stages[kp + 2].cover_tag = 'gp'
                def gate(j, dlt=dlt):
                    def f():
                        it = l2pf_issue(R, dlt)[j]
                        if j == 0:
                            it = it + [valu('v_readfirstlane_b32', sOK, vD), salu('s_cmp_ge_u32', None, sOK, 16), csel(sC, sC, 15)]
                        return it
                    return f
                for j in range(4): R.pf.setdefault(kp + 2, []).append(gate(j))
        R.pf.setdefault([st.name for st in R.stages].index('P2c1b0' if kind == 'F' else 'P2c0b1'), []).append(early0)
        if kind in CFG.get('pre', ''):
            R.pf.setdefault(len(R.stages) - 3, []).append(early)
            R.stages[-1].pre_bar = lambda: red_early(R.p, kind)
        else: R.pf.setdefault(len(R.stages) - CFG.get('pollw', 1), []).append(early)
    role_prologue(R, vm_before)
    R.run()
    if CFG['fused']:
        p = R.p
        if kind not in CFG.get('pre', ''): red_early(p, kind)
        if kind in CFG.get('pre', ''): pass
        elif kind in CFG.get('lateflag', 'A'): p.emit(barrier())
        else:
            p.emit(waitvm(0)); p.emit(barrier())
            p.emit(valu('v_mov_b32', vPRG, 9))
            if CFG.get('rep'): p.emit(bstore('buffer_store_dword', vPRG, vCR, sWS, 0, flags='sc1'))
            p.emit(bstore('buffer_store_dword', vPRG, vCT, sWS, 0, flags='sc1'))
        if CFG['stamps']: R.stamp(len(R.stages) - 1)
        p.emit(raw(f"s_call_b64 {sRET}, L_{kind}_red"))
    if CFG['stamps']:
        p = R.p
        R.stamp(len(R.stages))
        p.emit(raw("s_memrealtime s[98:99]", wr=[s(98, 2)])); p.emit(raw("s_waitcnt lgkmcnt(0)"))
        p.emit(raw(f"v_writelane_b32 {vSTAMP}, s98, 63", 'valu', wr=[vSTAMP], rd=[s(98)]))
        if CFG.get('dbgstat'):
            n = len(R.stages)
            lanes = {'F': [0, 27, n - 1, n], 'A': [0, 37, n - 1, n], 'M': [0, 34, n - 1, n]}[kind]
            slots = {'F': [1, 2, 3, 5], 'A': [10, 11, 13, 14], 'M': [15, 15, 15, 15]}[kind]
            p.emit([valu('v_mov_b32', v(4), 256), valu('v_mov_b32', v(5), 0)])
            for i, (ln, sl) in enumerate(zip(lanes, slots)):
                p.emit(raw(f"v_readlane_b32 s92, {vSTAMP}, {ln}", 'rdl', wr=[sT2], rd=[vSTAMP])); p.emit(nop(3))
                p.emit(raw(f"v_writelane_b32 v5, s92, {i}", 'valu', wr=[v(5)], rd=[sT2])); p.emit(raw(f"v_writelane_b32 v4, {4 * sl}, {i}", 'valu', wr=[v(4)]))
            p.emit(raw(f"v_writelane_b32 v5, s98, 4", 'valu', wr=[v(5)], rd=[s(98)])); p.emit(raw(f"v_writelane_b32 v4, 28, 4", 'valu', wr=[v(4)]))
            p.emit(salu('s_not_b32', sT2, s(43))); p.emit(raw(f"v_writelane_b32 v5, s92, 5", 'valu', wr=[v(5)], rd=[sT2])); p.emit(raw(f"v_writelane_b32 v4, 36, 5", 'valu', wr=[v(4)]))
            p.emit(salu('s_sub_u32', sT2, s(98), s(43))); p.emit(raw(f"v_writelane_b32 v5, s92, 6", 'valu', wr=[v(5)], rd=[sT2])); p.emit(raw(f"v_writelane_b32 v4, 24, 6", 'valu', wr=[v(4)]))
            p.emit([salu('s_cmp_eq_u32', None, sRB, 9), csel(sT2, 0, sRB), salu('s_or_b32', sT2, sT2, sWAVE), salu('s_cmp_eq_u32', None, sT2, 0), csel(sT2, 0, 256),
                    valu('v_add_u32', v(4), sT2, v(4))])
            p.emit(I(f"buffer_atomic_umax v5, v4, {sDBG}, 0 offen sc1", 'vstore', rd=vr(4, 2) + sDBG.regs(), units=3))
        p.emit([shl(sT2, s(2), 2), add(sT2, sT2, sWAVE), shl(sT2, sT2, 8), add(sT2, sT2, STAMP_OFF),
                valu('v_lshrrev_b32', v(42), 2, vLANE16), bstore('buffer_store_dword', vSTAMP, v(42), sWS, sT2)])
    R.p.emit(raw("s_endpgm"))
    return R

def fold(ins, name):
    idx = [i for i, x in enumerate(ins) if x.tag == 'mark']
    def body(a_, b_): return [x.txt for x in ins[a_:b_] if x.kind != 'label']
    out = []; pos = 0; k = 0; nl = 0
    while k + 1 < len(idx):
        b0 = body(idx[k], idx[k + 1]); n = 1
        while k + n + 1 < len(idx) and body(idx[k + n], idx[k + n + 1]) == b0: n += 1
        if n >= 2:
            out += ins[pos:idx[k]]
            L = f"L_{name}_loop{nl}"; nl += 1
            out.append(smov(sLC, n)); out.append(I(".p2align 3", 'label')); out.append(label(L))
            out += ins[idx[k]:idx[k + 1]]
            out += [salu('s_sub_u32', sLC, sLC, 1), salu('s_cmp_lg_u32', None, sLC, 0), raw(f"s_cbranch_scc1 {L}")]
            pos = idx[k + n]; k += n
        else: k += 1
    out += ins[pos:]
    return out

def fold_regions(ins, name):
    regs = []; i = 0
    beg = None
    for i, x in enumerate(ins):
        if isinstance(x.tag, tuple) and x.tag and x.tag[0] == 'region':
            if x.tag[1] == 'begin': beg = (i, x.tag[2])
            elif beg: regs.append((beg[0], i, beg[1])); beg = None
    groups = {}
    for (a_, b_, key) in regs:
        groups.setdefault(tuple(x.txt for x in ins[a_:b_] if x.kind != 'label'), []).append((a_, b_))
    out = []; subs = []; repl = {}
    n = 0
    for body, lst in groups.items():
        if len(lst) >= 2:
            L = f"L_{name}_sub{n}"; n += 1
            a_, b_ = lst[0]
            subs += [I(".p2align 6", 'label'), label(L)] + ins[a_:b_] + [raw(f"s_setpc_b64 {sRET}")]
            for (a_, b_) in lst: repl[a_] = (b_, L)
    i = 0
    while i < len(ins):
        if i in repl:
            b_, L = repl[i]; out.append(raw(f"s_call_b64 {sRET}, {L}")); i = b_
        else:
            out.append(ins[i]); i += 1
    print(f"  regions: {[len(l) for l in groups.values()]}", file=sys.stderr)
    return out + subs

def reduce_body(p, sPART, sXO, srdP, srdX, srdO, vL16, vXO, base, flags, mid=None):
    E = p.emit
    L = base; XR = base + 68; SA = base + 72; FA = base + 80; T = base + 88
    for k in range(NPART):
        if k: E(add(sPART, sPART, 16 * PART))
        E(bload('buffer_load_dwordx4', v(L + 4 * k, 4), vL16, srdP, sPART, flags=flags))
    E(bload('buffer_load_dwordx2', v(XR, 2), vXO, srdX, sXO)); E(bload('buffer_load_dwordx2', v(XR + 2, 2), vXO, srdX, sXO, 32))
    ex = 0
    if mid: E(mid()); ex = 1
    E(smov(sT3, 0xffff0000))
    for k in range(NPART):
        E(waitvm(NPART + 1 - k + ex))
        acc = SA if k < 11 else FA
        for q in range(4):
            x = v(L + 4 * k + q)
            if k in (0, 11):
                E(valu('v_lshlrev_b32', v(acc + 2 * q), 16, x)); E(valu('v_and_b32', v(acc + 2 * q + 1), sT3, x))
            else:
                tp = v(T + 2 * q, 2)
                E(valu('v_lshlrev_b32', tp[0], 16, x)); E(valu('v_and_b32', tp[1], sT3, x))
        if k not in (0, 11):
            for q in range(4): E(valu('v_pk_add_f32', v(acc + 2 * q, 2), v(acc + 2 * q, 2), v(T + 2 * q, 2)))
    for e in range(8): E(valu('v_exp_f32', v(T + e), v(FA + e)))
    for e in range(8): E(valu('v_add_f32', v(T + e), 1.0, v(T + e)))
    for e in range(8): E(valu('v_rcp_f32', v(T + e), v(T + e)))
    for e in range(8): E(valu('v_mul_f32', v(FA + e), f2u(-math.log(2.0)), v(FA + e)))
    for e in range(8): E(valu('v_mul_f32', v(FA + e), v(FA + e), v(T + e)))
    E(waitvm(ex))
    for q in range(4):
        E(valu('v_lshlrev_b32', v(T + 2 * q), 16, v(XR + q))); E(valu('v_and_b32', v(T + 2 * q + 1), sT3, v(XR + q)))
    for e in range(8): E(valu('v_fma_f32', v(T + e), v(SA + e), v(FA + e), v(T + e)))
    for q in range(4): E(valu('v_cvt_pk_bf16_f32', v(XR + q), v(T + 2 * q), v(T + 2 * q + 1)))
    E(bstore('buffer_store_dwordx2', v(XR, 2), vXO, srdO, sXO)); E(bstore('buffer_store_dwordx2', v(XR + 2, 2), vXO, srdO, sXO, 32))

def reduce_kernel():
    p = Prog(); E = p.emit
    E(salu('s_cmp_ge_u32', None, s(2), 576)); E(raw("s_cbranch_scc0 L_rgo")); E(raw("s_endpgm")); E(label("L_rgo"))
    E(raw("s_load_dwordx2 s[4:5], s[0:1], 0", wr=[s(4, 2)])); E(raw("s_load_dwordx2 s[6:7], s[0:1], 64", wr=[s(6, 2)])); E(raw("s_load_dwordx2 s[8:9], s[0:1], 80", wr=[s(8, 2)]))
    E(valu('v_lshrrev_b32', v(1), 6, v(0))); E(valu('v_readfirstlane_b32', s(10), v(1)))
    E(shl(s(11), s(2), 2)); E(add(s(11), s(11), s(10)))
    E(salu('s_mul_hi_u32', s(24), s(11), -(-(1 << 32) // 36), scc_w=False))
    E(mul(s(25), s(24), 36)); E(salu('s_sub_u32', s(25), s(11), s(25)))
    E(shl(s(26), s(11), 10))
    E(valu('v_and_b32', v(0), 63, v(0))); E(valu('v_lshlrev_b32', v(1), 4, v(0)))
    E(valu('v_and_b32', v(2), 15, v(0))); E(smov(s(27), 1152)); E(valu('v_mul_u32_u24', v(2), s(27), v(2)))
    E(valu('v_lshrrev_b32', v(3), 4, v(0))); E(valu('v_lshl_add_u32', v(2), v(3), 3, v(2)))
    E(mul(s(28), s(24), 32 * 1152)); E(salu('s_and_b32', s(29), s(25), 1)); E(mul(s(29), s(29), 16 * 1152)); E(add(s(28), s(28), s(29)))
    E(shr(s(25), s(25), 1)); E(shl(s(25), s(25), 6)); E(add(s(28), s(28), s(25)))
    E(raw("s_waitcnt lgkmcnt(0)"))
    srd(p, s(12, 4), 8, WSP_BYTES); srd(p, s(16, 4), 4, 2359296); srd(p, s(20, 4), 6, 2359296)
    reduce_body(p, s(26), s(28), s(12, 4), s(16, 4), s(20, 4), v(1), v(2), 4, CFG.get('rflags', ''))
    E(raw("s_endpgm"))
    return p

def text(ins): return "\n".join((i.txt if i.kind == 'label' else " " + i.txt) for i in ins) + "\n"

def compress(t):
    t = re.sub(r" v_mfma_f32_16x16x32_bf16 v\[(\d+):\d+\], a\[(\d+):\d+\], v\[(\d+):\d+\], v\[\1:\d+\]", r" MV \1,\2,\3", t)
    t = re.sub(r" v_mfma_f32_16x16x32_bf16 v\[(\d+):\d+\], a\[(\d+):\d+\], a\[(\d+):\d+\], v\[\1:\d+\]", r" MA \1,\2,\3", t)
    t = re.sub(r" v_mfma_f32_32x32x16_bf16 v\[(\d+):\d+\], a\[(\d+):\d+\], v\[(\d+):\d+\], v\[\1:\d+\]", r" NV \1,\2,\3", t)
    t = re.sub(r" v_mfma_f32_32x32x16_bf16 v\[(\d+):\d+\], a\[(\d+):\d+\], a\[(\d+):\d+\], v\[\1:\d+\]", r" NA \1,\2,\3", t)
    t = re.sub(r" v_mfma_f32_16x16x32_bf16 a\[(\d+):\d+\], a\[(\d+):\d+\], v\[(\d+):\d+\], a\[\1:\d+\]", r" MC \1,\2,\3", t)
    t = re.sub(r" ds_read_b64_tr_b16 a\[(\d+):\d+\], v(\d+) offset:(\d+)", r" RT \1,\2,\3", t)
    t = re.sub(r" ds_read_b128 a\[(\d+):\d+\], v(\d+) offset:(\d+)", r" RB \1,\2,\3", t)
    t = re.sub(r" v_cvt_pk_bf16_f32 v(\d+), v(\d+), v(\d+)", r" CV \1,\2,\3", t)
    t = re.sub(r" v_accvgpr_write_b32 a(\d+), v(\d+)", r" AW \1,\2", t)
    t = re.sub(r" v_exp_f32 v(\d+), v(\d+)", r" EX \1,\2", t)
    t = re.sub(r" v_add_f32 v(\d+), v(\d+), v(\d+)", r" AD \1,\2,\3", t)
    t = re.sub(r" v_mul_f32 v(\d+), v(\d+), v(\d+)", r" ML \1,\2,\3", t)
    t = re.sub(r" s_waitcnt lgkmcnt\((\d+)\)", r" WL \1", t)
    mac = r""".macro MC d,a,b
 v_mfma_f32_16x16x32_bf16 a[\d:\d+3], a[\a:\a+3], v[\b:\b+3], a[\d:\d+3]
.endm
.macro NV d,a,b
 v_mfma_f32_32x32x16_bf16 v[\d:\d+15], a[\a:\a+3], v[\b:\b+3], v[\d:\d+15]
.endm
.macro NA d,a,b
 v_mfma_f32_32x32x16_bf16 v[\d:\d+15], a[\a:\a+3], a[\b:\b+3], v[\d:\d+15]
.endm
.macro MV d,a,b
 v_mfma_f32_16x16x32_bf16 v[\d:\d+3], a[\a:\a+3], v[\b:\b+3], v[\d:\d+3]
.endm
.macro MA d,a,b
 v_mfma_f32_16x16x32_bf16 v[\d:\d+3], a[\a:\a+3], a[\b:\b+3], v[\d:\d+3]
.endm
.macro RT d,a,o
 ds_read_b64_tr_b16 a[\d:\d+1], v\a offset:\o
.endm
.macro RB d,a,o
 ds_read_b128 a[\d:\d+3], v\a offset:\o
.endm
.macro CV d,a,b
 v_cvt_pk_bf16_f32 v\d, v\a, v\b
.endm
.macro AW d,a
 v_accvgpr_write_b32 a\d, v\a
.endm
.macro EX d,a
 v_exp_f32 v\d, v\a
.endm
.macro AD d,a,b
 v_add_f32 v\d, v\a, v\b
.endm
.macro ML d,a,b
 v_mul_f32 v\d, v\a, v\b
.endm
.macro WL n
 s_waitcnt lgkmcnt(\n)
.endm
"""
    return mac, t

HDR = open('recurrent_scan__sliding_block_cached__dense_activation_silu__prompt.s.ref').read().split('; Override launch')[0]
DOC = """; Generated by my own scheduler scripts (hand-designed instruction streams, hazards padded by the script).
; registers as MFMA B operands (transposed formulation), weights / K / V stream through a 4-slot LDS ring (LDS-DMA).
;   role A (10): layernorm, Q projection, attention for 3 heads (one GQA pair shares K/V fragments), partial of o@wo
; The bf16 partials go to d_ws with write-through stores; progress words (reset per launch, guarded by a counter in
"""
def kd(name, vgpr, acc, sgpr=102):
    return f""".amdhsa_kernel {name}
  .amdhsa_next_free_vgpr {vgpr}
  .amdhsa_next_free_sgpr {sgpr}
  .amdhsa_accum_offset {acc}
  .amdhsa_group_segment_fixed_size 0
  .amdhsa_kernarg_size 88
  .amdhsa_user_sgpr_count 2
  .amdhsa_user_sgpr_kernarg_segment_ptr 1
  .amdhsa_system_sgpr_workgroup_id_x 1
.end_amdhsa_kernel
"""
def est_cycles(ins):
    tot = 0; cur = None; n = 0
    for i in ins:
        if i.kind == 'label': continue
        if i.kind == 'mfma':
            if cur is not None: tot += max(cap, cur)
            cur = 2; n += 1; cap = 8 if len(i.wr) == 16 else 4
        elif cur is not None:
            if i.txt.startswith('s_waitcnt lgkm') and cap == 4: continue
            cur += i.units if not i.txt.startswith('s_nop') else (int(i.txt.split()[1]) + 1) * 0.5
    return tot * 4

def main(out, **kw):
    CFG.update(kw)
    set_layout(CFG.get('l844'))
    if CFG.get('tab'):
        global ROLE_TAB
        ROLE_TAB = CFG['tab']
    CFG['shape0'] = CFG['shape']
    cp = common_prologue()
    if CFG.get('entry', 0):
        if CFG.get('entry', 1) == 1:
            k = next(i for i, x in enumerate(cp.ins) if x.txt == 's_waitcnt lgkmcnt(0)')
            tail = cp.ins[k:]; vmx = list(cp.vm); cp.ins = cp.ins[:k]; cp.vm = []
            common_prologue2(cp); cp.ins += tail; cp.vm += vmx
        else: common_prologue2(cp)
        common_prologue3(cp)
    body = text(cp.ins) + dispatch_text()
    for kind in 'FAM':
        R = build_role(kind, cp.vm)
        ins = fold_regions(fold(R.p.ins, kind), kind) if CFG['fold'] else R.p.ins
        nm = sum(1 for i in R.p.ins if i.kind == 'mfma')
        print(f"role {kind}: stages {len(R.stages)} mfma {nm} instrs {len([i for i in ins if i.kind!='label'])} (unrolled {len([i for i in R.p.ins if i.kind!='label'])}) pad {R.p.npad} forced {R.forced} est {est_cycles(R.p.ins)} ideal {sum(32 if len(i.wr) == 16 else 16 for i in R.p.ins if i.kind == 'mfma')}", file=sys.stderr)
        if CFG.get('abl_pair') and kind in 'AM':
            out_ = []; on = False
            for x in ins:
                if x.kind == 'label' and x.txt.startswith('; PAh'): on = x.txt.startswith('; PAh1')
                if x.kind == 'label' and x.txt.startswith('; P2'): on = False
                if on and (x.kind in ('dma', 'ds') or (x.kind == 'salu' and ('m0' in x.txt or 's70' in x.txt))): continue
                out_.append(x)
            ins = out_
        if CFG.get('abl_half'):
            out_ = []; on = False; cnt = 0
            for x in ins:
                if x.kind == 'label' and x.txt.startswith('; P'): on = x.txt.startswith(('; P1', '; P2'))
                if x.kind == 'label' and x.txt.startswith('; REGION begin'): on = True
                if on and x.kind == 'ds':
                    cnt += 1
                    if (cnt >> 1) & 1: continue
                out_.append(x)
            ins = out_
        ab = CFG.get('ablate', '')
        if ab:
            st0 = next(i for i, x in enumerate(ins) if x.txt.startswith('; P1u1b0'))
            def keep(x):
                if 'd' in ab and x.kind == 'dma': return False
                if 'r' in ab and x.kind == 'ds': return False
                if 'v' in ab and x.kind in ('trans',): return False
                if 'V' in ab and x.kind in ('trans', 'valu', 'perm') and not x.txt.startswith(('v_add_u32', 'v_xor', 'v_writelane', 'v_cmp', 'v_cnd', 'v_mov', 'v_lsh', 'v_mad', 'v_min', 'v_and', 'v_bfe', 'v_mul_u32')): return False
                if 'm' in ab and x.kind == 'mfma': return False
                return True
            ins = ins[:st0] + [x for x in ins[st0:] if keep(x)]
        for sp in R.slow: ins = ins + sp.ins
        if CFG['fused']: ins = ins + reducer(kind).ins
        body += f".p2align 6\nL_role{kind}:\n" + text(ins) + f"L_role{kind}_end:\n"
    rk = reduce_kernel()
    mac, body = compress(body)
    if CFG['fused']:
        t = HDR + "; @launch grid=(256,1,1) block=(256,1,1) lds=163840\n" + DOC
        t += '.amdgcn_target "amdgcn-amd-amdhsa--gfx950"\n' + mac + f".text\n.globl {KN}\n.p2align 8\n.type {KN},@function\n{KN}:\n" + body
        t += '.section .rodata,"a"\n.p2align 6\n' + kd(KN, 512, 256)
        open(out, 'w').write(t); print("size", len(t), file=sys.stderr); return
    t = HDR + f"; @launch kernel={KN} grid=(256,1,1) block=(256,1,1) lds=163840\n; @launch kernel={RN} grid=(576,1,1) block=(256,1,1) lds=0\n"
    t += '.amdgcn_target "amdgcn-amd-amdhsa--gfx950"\n' + mac + f".text\n.globl {KN}\n.p2align 8\n.type {KN},@function\n{KN}:\n" + body
    t += f".globl {RN}\n.p2align 8\n.type {RN},@function\n{RN}:\n" + text(rk.ins)
    t += '.section .rodata,"a"\n.p2align 6\n' + kd(KN, 512, 256) + ".p2align 6\n" + kd(RN, 104, 104, 102)
    open(out, 'w').write(t)
    print("size", len(t), file=sys.stderr)

if __name__ == "__main__":
    kw = eval("dict(" + (sys.argv[2] if len(sys.argv) > 2 else "") + ")")
    main(sys.argv[1], **kw)
```

```python
import sys, re
from s1 import *

ROLE_TAB = [0, 1, 2, 11, 3, 4, 5, 12, 6, 7, 13, 14, 8, 9, 10, 15]
vPFR = v(36)
vPRG = v(36)
PART = 4 * PWAVE
NPART = 17
NA, NM, NS = 10, 1, 11
def set_layout(new):
    global NPART, NA, NM, NS, ROLE_TAB
    if new:
        NPART, NA, NM, NS = 20, 8, 4, 12
        ROLE_TAB = [0, 1, 8, 12, 2, 3, 9, 13, 4, 5, 10, 14, 6, 7, 11, 15]
WSP_BYTES = NPART * 16 * PART
def PSTR(): return 16 * PART + (CFG.get('pskew', 0) if CFG['fused'] else 0)
sJQ, sQ0, sOA1, sOB1 = s(73), s(59), s(74), s(75)
STAMP_OFF = 0x3000000
CTRL = 0x2F00000
OOB = 0x10000000

def srd(p, dst, lo, nbytes):
    p.emit([smov(dst[0], s(lo)), salu('s_and_b32', dst[1], s(lo + 1), 0xffff), smov(dst[2], nbytes), smov(dst[3], 0x20000)])
def xdma(j):
    return [salu('s_add_u32', 'm0', s(6), j * 4096), salu('s_add_u32', sT, s(7), j * 128)] + [dma(v(16 + q), sX, sT, q * 1024, tag=('x', j)) for q in range(4)]
def mul(d, a_, b_): return salu('s_mul_i32', d, a_, b_, scc_w=False)
def add(d, a_, b_): return salu('s_add_u32', d, a_, b_)
def shl(d, a_, b_): return salu('s_lshl_b32', d, a_, b_)
def shr(d, a_, b_): return salu('s_lshr_b32', d, a_, b_)
def csel(d, a_, b_): return salu('s_cselect_b32', d, a_, b_, scc_w=False, scc_r=True)

def common_prologue():
    if CFG.get('entry', 0) == 0: return common_prologue_old()
    assert CFG['xe'] == 9 and CFG.get('map', 4) == 4
    p = Prog(); E = p.emit
    E(raw("s_load_dwordx8 s[40:47], s[0:1], 0", wr=[s(40, 8)]))
    E(salu('s_cmp_ge_u32', None, s(2), 256))
    E(raw("s_cbranch_scc0 L_go")); E(raw("s_endpgm")); E(label("L_go"))
    if CFG['stamps']:
        E(raw(f"s_memtime {sT0}", wr=[sT0])); E(raw("s_memrealtime s[96:97]", wr=[s(96, 2)]))
    E(valu('v_lshrrev_b32', v(1), 6, v(0)))
    E(salu('s_and_b32', s(3), s(2), 1)); E(shl(s(3), s(3), 3))
    E(valu('v_readfirstlane_b32', sWAVE, v(1)))
    E(shr(sRB, s(2), 5)); E(salu('s_or_b32', sRB, sRB, s(3)))
    E(valu('v_and_b32', v(0), 63, v(0)))
    E(valu('v_lshrrev_b32', vROWN, 3, v(0)))
    E(valu('v_and_b32', v(20), 7, v(0))); E(valu('v_lshrrev_b32', v(21), 4, v(0)))
    E(valu('v_xor_b32', v(22), v(20), v(21))); E(valu('v_xor_b32', v(23), 4, v(22)))
    E(salu('s_movk_i32', s(3), 1152, scc_w=False)); E(valu('v_mul_u32_u24', v(24), s(3), vROWN))
    E(valu('v_lshl_add_u32', v(16), v(22), 4, v(24))); E(valu('v_lshl_add_u32', v(17), v(23), 4, v(24)))
    E(valu('v_add_u32', v(17), 8 * 1152 - 1024, v(17)))
    E(valu('v_add_u32', v(18), 2 * (8 * 1152 - 1024), v(16))); E(valu('v_add_u32', v(19), 2 * (8 * 1152 - 1024), v(17)))
    E(mul(s(6), sWAVE, XW)); E(raw("s_lshl2_add_u32 s7, s64, s62", 'salu', wr=[s(7)], rd=[sRB, sWAVE])); E(mul(sT, s(7), 32 * 1152))
    E(smov('m0', s(6))); E(add(s(7), sT, 9 * 128))
    E(smov(sX[2], 2359296)); E(smov(sX[3], 0x20000))
    E(raw("s_waitcnt lgkmcnt(0)"))
    E(smov(sX[0], s(40))); E(salu('s_and_b32', sX[1], s(41), 0xffff))
    E(label("L_xl"))
    n0 = len(p.vm)
    for q in range(4): E(dma(v(16 + q), sX, sT, q * 1024))
    del p.vm[n0:]
    for j in range(9): p.vm += [('x', j)] * 4
    E(add(sT, sT, 128)); E(add('m0', 'm0', 4096)); E(salu('s_cmp_lt_u32', None, sT, s(7))); E(raw("s_cbranch_scc1 L_xl"))
    return p
def common_prologue2(p):
    E = p.emit
    tab = ROLE_TAB
    lo = sum(tab[i] << (4 * i) for i in range(8)); hi = sum(tab[8 + i] << (4 * i) for i in range(8))
    E(salu('s_bfe_u32', s(3), s(2), (2 << 16) | 3)); E(salu('s_bfe_u32', s(4), s(2), (1 << 16) | 1))
    E(shl(s(4), s(4), 2)); E(salu('s_or_b32', s(3), s(3), s(4))); E(shl(s(3), s(3), 2))
    E(salu('s_bitcmp1_b32', None, s(2), 2))
    E(smov(s(4), lo)); E(csel(s(4), hi, s(4)))
    E(shr(s(4), s(4), s(3))); E(salu('s_and_b32', sROLE, s(4), 15))
    E(raw(f"s_getpc_b64 {sPC}", wr=[sPC])); E(label("L_pc"))
    E(smov(s(4), "L_roleA-L_pc")); E(smov(s(5), "L_roleA_end-L_pc-4"))
    E(salu('s_cmp_ge_u32', None, sROLE, NA)); E(csel(s(4), "L_roleM-L_pc", s(4))); E(csel(s(5), "L_roleM_end-L_pc-4", s(5)))
    E(salu('s_cmp_ge_u32', None, sROLE, NA + NM)); E(csel(s(4), "L_roleF-L_pc", s(4))); E(csel(s(5), "L_roleF_end-L_pc-4", s(5)))
    n0 = CFG.get('code0', 16); NL = CFG.get('codelines', 24)
    if n0:
        E(mul(s(3), sWAVE, n0 * 128)); E(add(s(3), s(3), s(4)))
        E(valu('v_min_u32', v(2), n0 - 1, v(0))); E(valu('v_lshlrev_b32', v(2), 7, v(2))); E(valu('v_add_u32', v(2), s(3), v(2)))
        E(I(f"global_load_dword {vDUM}, v2, {sPC}", 'vload', wr=vDUM.regs(), rd=vr(2) + sPC.regs(), tag='pf'))
    E(salu('s_and_b32', s(3), sRB, 7)); E(shl(s(3), s(3), 2)); E(add(s(3), s(3), sWAVE))
    E(mul(s(3), s(3), NL * 128)); E(add(s(3), s(3), s(4)))
    E(valu('v_min_u32', v(2), NL - 1, v(0))); E(valu('v_lshlrev_b32', v(2), 7, v(2))); E(valu('v_add_u32', v(2), s(3), v(2)))
    E(valu('v_min_u32', v(3), s(5), v(2)))
    E(I(f"global_load_dword {vDUM}, v3, {sPC}", 'vload', wr=vDUM.regs(), rd=vr(3) + sPC.regs(), tag='pf'))
def common_prologue3(p):
    E = p.emit
    E(raw("s_load_dwordx2 s[48:49], s[0:1], 32", wr=[s(48, 2)]))
    E(raw("s_load_dwordx8 s[52:59], s[0:1], 48", wr=[s(52, 8)]))
    E(raw("s_load_dwordx2 s[50:51], s[0:1], 80", wr=[s(50, 2)]))
    srd(p, sK, 42, 8388608); srd(p, sV, 44, 8388608); srd(p, sWQ, 46, 4718592)
    E(mul(sW8704, sWAVE, 8 * PP)); E(mul(sWC, sWAVE, PP)); E(add(sWC, sWC, 32 * PP))
    E(shl(sW8192, sWAVE, 13)); E(shl(sWCH, sWAVE, 10)); E(add(sWCH, sWCH, 32768))
    E(mul(sW2176, sWAVE, 2 * PP)); E(mul(sW4352, sWAVE, 4 * PP)); E(add(sWA2, sW2176, 16 * PP))
    E(raw("s_waitcnt lgkmcnt(0)"))
    srd(p, sWO, 48, 4718592)
    srd(p, sW1, 52, 5308416); srd(p, sW2, 54, 5308416); srd(p, sWS, 50, 0x10000000 if (CFG['stamps'] or CFG['fused']) else WSP_BYTES)
    srd(p, sOUT, 56, 2359296); srd(p, sDBG, 58, 256)

def common_prologue_old():
    p = Prog(); E = p.emit
    E(salu('s_cmp_ge_u32', None, s(2), 256))
    E(raw("s_cbranch_scc0 L_go")); E(raw("s_endpgm")); E(label("L_go"))
    E(raw("s_load_dwordx8 s[40:47], s[0:1], 0", wr=[s(40, 8)]))
    E(raw("s_load_dwordx2 s[48:49], s[0:1], 32", wr=[s(48, 2)]))
    E(raw("s_load_dwordx8 s[52:59], s[0:1], 48", wr=[s(52, 8)]))
    E(raw("s_load_dwordx2 s[50:51], s[0:1], 80", wr=[s(50, 2)]))
    if CFG['stamps']:
        E(raw(f"s_memtime {sT0}", wr=[sT0])); E(raw("s_memrealtime s[96:97]", wr=[s(96, 2)]))
    tab = ROLE_TAB
    if CFG.get('map', 4) == 41:
        t4 = CFG.get('t41', [11, 0, 1, 2, 12, 3, 4, 5, 13, 14, 6, 7, 15, 10, 8, 9])
        lo = sum(t4[i] << (4 * i) for i in range(8)); hi = sum(t4[8 + i] << (4 * i) for i in range(8))
        E(shr(s(3), s(2), 6)); E(salu('s_bfe_u32', s(4), s(2), (1 << 16) | 1))
        E(shl(s(4), s(4), 2)); E(salu('s_or_b32', s(3), s(3), s(4))); E(shl(s(3), s(3), 2))
        E(salu('s_bitcmp1_b32', None, s(2), 2)); E(smov(s(4), lo)); E(csel(s(4), hi, s(4)))
        E(shr(s(4), s(4), s(3))); E(salu('s_and_b32', sROLE, s(4), 15))
        E(salu('s_and_b32', s(3), s(2), 1)); E(shl(s(3), s(3), 3))
        E(salu('s_bfe_u32', sRB, s(2), (3 << 16) | 3)); E(salu('s_or_b32', sRB, sRB, s(3)))
    elif CFG.get('map', 4) == 8:
        t8 = [0, 1, 2, 3, 4, 10, 11, 12, 5, 6, 7, 8, 9, 13, 14, 15]
        lo = sum(t8[i] << (4 * i) for i in range(8)); hi = sum(t8[8 + i] << (4 * i) for i in range(8))
        E(salu('s_bfe_u32', s(3), s(2), (3 << 16) | 3)); E(shl(s(3), s(3), 2))
        E(salu('s_bitcmp1_b32', None, s(2), 2)); E(smov(s(4), lo)); E(csel(s(4), hi, s(4)))
        E(shr(s(4), s(4), s(3))); E(salu('s_and_b32', sROLE, s(4), 15))
        E(salu('s_and_b32', s(3), s(2), 1)); E(shl(s(3), s(3), 3)); E(salu('s_and_b32', s(4), s(2), 2)); E(shl(s(4), s(4), 1))
        E(shr(sRB, s(2), 6)); E(salu('s_or_b32', sRB, sRB, s(3))); E(salu('s_or_b32', sRB, sRB, s(4)))
    elif CFG.get('map', 4) == 2:
        t2 = [0, 1, 2, 3, 4, 11, 5, 12, 6, 13, 7, 14, 8, 15, 9, 10]
        lo = sum(t2[i] << (4 * i) for i in range(8)); hi = sum(t2[8 + i] << (4 * i) for i in range(8))
        E(salu('s_bfe_u32', s(3), s(2), (1 << 16) | 3)); E(salu('s_and_b32', s(4), s(2), 3)); E(shl(s(4), s(4), 1)); E(salu('s_or_b32', s(3), s(3), s(4))); E(shl(s(3), s(3), 2))
        E(salu('s_bitcmp1_b32', None, s(2), 2)); E(smov(s(4), lo)); E(csel(s(4), hi, s(4)))
        E(shr(s(4), s(4), s(3))); E(salu('s_and_b32', sROLE, s(4), 15)); E(shr(sRB, s(2), 4))
    else:
        lo = sum(tab[i] << (4 * i) for i in range(8)); hi = sum(tab[8 + i] << (4 * i) for i in range(8))
        E(salu('s_bfe_u32', s(3), s(2), (2 << 16) | 3)); E(salu('s_bfe_u32', s(4), s(2), (1 << 16) | 1))
        E(shl(s(4), s(4), 2)); E(salu('s_or_b32', s(3), s(3), s(4))); E(shl(s(3), s(3), 2))
        E(salu('s_bitcmp1_b32', None, s(2), 2))
        E(smov(s(4), lo)); E(csel(s(4), hi, s(4)))
        E(shr(s(4), s(4), s(3))); E(salu('s_and_b32', sROLE, s(4), 15))
        E(salu('s_and_b32', s(3), s(2), 1)); E(shl(s(3), s(3), 3))
        E(shr(sRB, s(2), 5)); E(salu('s_or_b32', sRB, sRB, s(3)))
    E(valu('v_lshrrev_b32', v(1), 6, v(0)))
    E(valu('v_readfirstlane_b32', sWAVE, v(1)))
    E(valu('v_and_b32', v(0), 63, v(0)))
    E(valu('v_lshrrev_b32', vROWN, 3, v(0)))
    E(valu('v_and_b32', v(20), 7, v(0))); E(valu('v_lshrrev_b32', v(21), 4, v(0)))
    E(valu('v_xor_b32', v(22), v(20), v(21))); E(valu('v_xor_b32', v(23), 4, v(22)))
    E(smov(s(3), 1152)); E(valu('v_mul_u32_u24', v(24), s(3), vROWN))
    E(valu('v_lshl_add_u32', v(16), v(22), 4, v(24))); E(valu('v_lshl_add_u32', v(17), v(23), 4, v(24)))
    E(valu('v_add_u32', v(17), 8 * 1152 - 1024, v(17)))
    E(valu('v_add_u32', v(18), 2 * (8 * 1152 - 1024), v(16))); E(valu('v_add_u32', v(19), 2 * (8 * 1152 - 1024), v(17)))
    E(mul(s(6), sWAVE, XW))
    E(shl(s(7), sRB, 2)); E(add(s(7), s(7), sWAVE)); E(mul(s(7), s(7), 32 * 1152))
    E(raw(f"s_getpc_b64 {sPC}", wr=[sPC])); E(label("L_pc"))
    E(smov(s(4), "L_roleA-L_pc")); E(smov(s(5), "L_roleA_end-L_pc-4"))
    E(salu('s_cmp_ge_u32', None, sROLE, NA)); E(csel(s(4), "L_roleM-L_pc", s(4))); E(csel(s(5), "L_roleM_end-L_pc-4", s(5)))
    E(salu('s_cmp_ge_u32', None, sROLE, NA + NM)); E(csel(s(4), "L_roleF-L_pc", s(4))); E(csel(s(5), "L_roleF_end-L_pc-4", s(5)))
    def code_pf():
        NL = CFG.get('codelines', 24)
        E(salu('s_and_b32', s(3), sRB, 7)); E(shl(s(3), s(3), 2)); E(add(s(3), s(3), sWAVE))
        E(mul(s(3), s(3), NL * 128)); E(add(s(3), s(3), s(4)))
        E(valu('v_min_u32', v(2), NL - 1, v(0))); E(valu('v_lshlrev_b32', v(2), 7, v(2))); E(valu('v_add_u32', v(2), s(3), v(2)))
        E(valu('v_min_u32', v(3), s(5), v(2)))
        E(I(f"global_load_dword {vDUM}, v3, {sPC}", 'vload', wr=vDUM.regs(), rd=vr(3) + sPC.regs(), tag='pf'))
    if CFG.get('codepf', 3) >= 3:
        n0 = CFG.get('code0', 16)
        if n0:
            E(mul(s(3), sWAVE, n0 * 128)); E(add(s(3), s(3), s(4)))
            E(valu('v_min_u32', v(2), n0 - 1, v(0))); E(valu('v_lshlrev_b32', v(2), 7, v(2))); E(valu('v_add_u32', v(2), s(3), v(2)))
            E(I(f"global_load_dword {vDUM}, v2, {sPC}", 'vload', wr=vDUM.regs(), rd=vr(2) + sPC.regs(), tag='pf'))
        code_pf()
    E(raw("s_waitcnt lgkmcnt(0)"))
    srd(p, sX, 40, 2359296)
    if CFG.get('xt'):
        nch = CFG['xt']
        E(salu('s_bfe_u32', s(3), s(2), (2 << 16) | 3)); E(mul(s(3), s(3), 128 * nch)); E(add(s(3), s(3), 128 * (9 - 4 * nch))); E(add(s(3), s(3), s(7)))
        E(valu('v_and_b32', v(2), 31, v(0))); E(valu('v_mul_u32_u24', v(2), 1152, v(2)))
        if nch == 2:
            E(valu('v_lshrrev_b32', v(3), 5, v(0))); E(valu('v_lshl_add_u32', v(2), v(3), 7, v(2)))
        ld = bload('buffer_load_dword', vDUM, v(2), sX, s(3)); ld.tag = 'pf'; E(ld)
    nx0 = CFG.get('tx', 2) if CFG.get('touch') else 0
    for j in range(nx0): E(xdma(j))
    if CFG.get('touch'):
        E(salu('s_cmp_gt_u32', None, sROLE, 10))
        E(raw("s_cselect_b64 s[60:61], s[52:53], s[46:47]", 'salu', wr=[s(60, 2)], rd=[s(52, 2), s(46, 2)]))
        E(raw("s_cselect_b64 s[66:67], s[54:55], s[48:49]", 'salu', wr=[s(66, 2)], rd=[s(54, 2), s(48, 2)]))
        E(salu('s_cmp_eq_u32', None, sWAVE, 1)); E(raw("s_cselect_b64 s[60:61], s[66:67], s[60:61]", 'salu', wr=[s(60, 2)], rd=[s(66, 2), s(60, 2)]))
        E(salu('s_cmp_eq_u32', None, sWAVE, 2)); E(raw("s_cselect_b64 s[60:61], s[42:43], s[60:61]", 'salu', wr=[s(60, 2)], rd=[s(42, 2), s(60, 2)]))
        E(salu('s_cmp_eq_u32', None, sWAVE, 3)); E(raw("s_cselect_b64 s[60:61], s[44:45], s[60:61]", 'salu', wr=[s(60, 2)], rd=[s(44, 2), s(60, 2)]))
        E(smov(s(3), 73728)); E(salu('s_cmp_ge_u32', None, sWAVE, 2)); E(csel(s(3), 131072, s(3)))
        E(valu('v_mul_u32_u24', v(2), s(3), v(0)))
        E(I(f"global_load_dword {vDUM}, v2, s[60:61]", 'vload', wr=vDUM.regs(), rd=vr(2) + sr(60, 2), tag='pf'))
    for j in range(nx0, CFG['xe']): E(xdma(j))
    if CFG.get('codepf', 3) == 1: code_pf()
    if CFG.get('codepf', 3) == 2:
        E(valu('v_mov_b32', v(46), v(3))); E(raw(f"s_mov_b64 s[100:101], {sPC}", 'salu', wr=[s(100, 2)], rd=[sPC]))
    srd(p, sK, 42, 8388608); srd(p, sV, 44, 8388608); srd(p, sWQ, 46, 4718592); srd(p, sWO, 48, 4718592)
    srd(p, sW1, 52, 5308416); srd(p, sW2, 54, 5308416); srd(p, sWS, 50, 0x10000000 if (CFG['stamps'] or CFG['fused']) else WSP_BYTES)
    srd(p, sOUT, 56, 2359296); srd(p, sDBG, 58, 256)
    E(mul(sW8704, sWAVE, 8 * PP)); E(mul(sWC, sWAVE, PP)); E(add(sWC, sWC, 32 * PP))
    E(shl(sW8192, sWAVE, 13)); E(shl(sWCH, sWAVE, 10)); E(add(sWCH, sWCH, 32768))
    E(mul(sW2176, sWAVE, 2 * PP)); E(mul(sW4352, sWAVE, 4 * PP)); E(add(sWA2, sW2176, 16 * PP))
    return p

def dispatch_text():
    return f""" s_cmp_ge_u32 {sROLE}, {NA + NM}
 s_cbranch_scc1 L_roleF
 s_cmp_ge_u32 {sROLE}, {NA}
 s_getpc_b64 s[94:95]
L_pc2:
 s_cbranch_scc1 L_jM
 s_add_u32 s94, s94, L_roleA-L_pc2
 s_addc_u32 s95, s95, 0
 s_setpc_b64 s[94:95]
L_jM:
 s_add_u32 s94, s94, L_roleM-L_pc2
 s_addc_u32 s95, s95, 0
 s_setpc_b64 s[94:95]
"""

def pfload(srd_, base):
    ld = bload('buffer_load_dword', vDUM, vPF, srd_, base); ld.tag = 'pf'; return ld
def pf_lin(srd_, base_s, start, nbytes, nl=64):
    def f():
        return [valu('v_lshrrev_b32', vPF2, 16, vTID), valu('v_and_b32', vPF, 63, vTID), valu('v_min_u32', vPF, nl - 1, vPF),
                valu('v_mad_u32_u24', vPF, vPF2, nl, vPF), valu('v_lshlrev_b32', vPF, 7, vPF), valu('v_add_u32', vPF, start, vPF),
                valu('v_min_u32', vPF, nbytes - 128, vPF), pfload(srd_, base_s)]
    return f
def pf_run(srd_, base_s, nbytes, nl):
    def f():
        return [valu('v_min_u32', vPF, nbytes - 128, vPFR), valu('v_add_u32', vPFR, 64 * nl * 128, vPFR), pfload(srd_, base_s)]
    f.nl = nl
    return f
def vPFW(kind): return {'F': v(8), 'A': v(7), 'M': v(36)}[kind]
def pf_row(kind, srd_, step=128):
    def f():
        ld = bload('buffer_load_dword', vDUM, vPFW(kind), srd_, sPW); ld.tag = 'pf'
        return [add(sPW, sPW, step), ld]
    return f
def pf_row_setup(kind, pitch, nl, base, lit):
    r = vPFW(kind)
    return [valu('v_bfe_u32', vPF2, vTID, 16, 5), valu('v_and_b32', r, 63, vTID), valu('v_min_u32', r, nl - 1, r),
            valu('v_mad_u32_u24', r, vPF2, nl, r), smov(sT2, pitch), valu('v_mul_u32_u24', r, sT2, r), add(sPW, base, lit)]
def pf_code(la, lb, nl):
    def f():
        L = f"L_cp{pf_code.k}"; pf_code.k += 1
        ld = I(f"global_load_dword {vDUM}, {vPF}, {sPC}", 'vload', wr=vDUM.regs(), rd=vPF.regs() + sPC.regs(), units=3, tag='pf')
        return [raw(f"s_getpc_b64 {sPC}", 'salu', wr=[sPC]), label(L),
                salu('s_add_u32', sPC[0], sPC[0], f"{la}-{L}"), salu('s_addc_u32', sPC[1], sPC[1], 0, scc_r=True),
                valu('v_bfe_u32', vPF2, vTID, 16, 5), valu('v_and_b32', vPF, 63, vTID), valu('v_min_u32', vPF, nl - 1, vPF),
                valu('v_mad_u32_u24', vPF, vPF2, nl, vPF), valu('v_lshlrev_b32', vPF, 7, vPF), valu('v_min_u32', vPF, f"{lb}-{la}-4", vPF), ld]
    return f
pf_code.k = 0
def pf_sched(R, k0, srd_, base_s, nbytes, nl):
    per = 64 * nl * 128; k = k0
    for st in range(0, nbytes, per):
        R.pf.setdefault(k, []).append(pf_lin(srd_, base_s, st, nbytes, nl)); k += 1
    return k

def role_prologue(R, vm_before):
    p = R.p; E = p.emit; kind = R.kind
    p.vm = list(vm_before)
    MS = CFG['shape'] == 'M'
    def PS(k):
        if CFG['stamps'] == 1: R.stamp(k)
    if CFG.get('delayrole') is not None:
        for r_ in CFG['delayrole']:
            E(salu('s_cmp_eq_u32', None, sROLE, r_[0])); E(raw(f"s_cbranch_scc0 L_{kind}_nd{r_[0]}"))
            E(smov(sLC, r_[1])); E(label(f"L_{kind}_dl{r_[0]}")); E(raw("s_sleep 127")); E(salu('s_sub_u32', sLC, sLC, 1)); E(salu('s_cmp_lg_u32', None, sLC, 0)); E(raw(f"s_cbranch_scc1 L_{kind}_dl{r_[0]}"))
            E(label(f"L_{kind}_nd{r_[0]}"))
    PS(56)
    lane = v(0)
    E(shl(sT2, sRB, 2)); E(add(sT2, sT2, sWAVE)); E(shl(sT2, sT2, 16)); E(valu('v_or_b32', vTID, sT2, lane))
    if kind in 'AM' and CFG.get('pair'):
        sHP_, sHS_ = s(86), s(85)
        if CFG.get('l844'): E(shl(sHP_, sROLE, 1)); E(add(sHP_, sHP_, 8))
        else: E(mul(sHP_, sROLE, 3))
        if kind == 'A':
            sHP_, sHS_ = sFA, sFC
            E(mul(sHS_, sROLE, 3)); E(salu('s_and_b32', s(4), sROLE, 1)); E(add(sHP_, sHS_, s(4)))
            E(shl(s(4), s(4), 1)); E(add(sHS_, sHS_, 2)); E(salu('s_sub_u32', sHS_, sHS_, s(4)))
            E(salu('s_sub_u32', sJQ, sHS_, sHP_)); E(shl(sJQ, sJQ, 8)); E(salu('s_sub_u32', sJQ, sJQ, 3 * 128))
        E(shl(sQ0, sHP_, 8))
        E(mul(sQA, sWAVE, 64 * 8192)); E(add(sQA, sQA, sQ0))
        E(shl(sQC, sWAVE, 16)); E(add(sQC, sQC, sQ0)); E(add(sQC, sQC, 256 * 8192))
        E(shr(s(3), sWAVE, 1)); E(shl(s(3), s(3), 13)); E(salu('s_and_b32', s(4), sWAVE, 1)); E(shl(s(4), s(4), 11)); E(add(s(3), s(3), s(4)))
        E(salu('s_sub_u32', s(3), s(3), 64)); E(shl(s(4), sWAVE, 11))
        for e, (h_, pfr) in enumerate([(sHP_, sPFa), (sHS_, sPFb)][:2 if kind == 'A' else 1]):
            E(shr(pfr, h_, 1)); E(shl(pfr, pfr, 19)); E(add(pfr, pfr, 1536 * 256))
            E(add(sKb[e], pfr, s(4))); E(add(sVb[e], pfr, s(3)))
        E(mul(sPFc, sROLE, 384 * 1152) if kind == 'A' else mul(sPFc, sHP_, 128 * 1152))
        if kind == 'A':
            E(mul(sHP_, sHP_, 128 * 1152)); E(mul(sHS_, sHS_, 128 * 1152))
            E(mul(sOA, sWAVE, 32 * 1152)); E(add(sOA1, sOA, sHS_)); E(add(sOA, sOA, sHP_))
            E(salu('s_sub_u32', sOA1, sOA1, 64 * 1152)); E(add(sT3, sOA, 192 * 1152)); E(salu('s_cmp_lt_u32', None, sWAVE, 2)); E(csel(sOA1, sT3, sOA1))
            E(shr(s(3), sWAVE, 1)); E(shl(s(3), s(3), 2)); E(salu('s_and_b32', s(4), sWAVE, 1)); E(add(s(3), s(3), s(4)))
            E(mul(sOB, s(3), 8 * 1152)); E(add(sOB1, sOB, sHS_)); E(add(sOB1, sOB1, 64 * 1152)); E(add(sOB, sOB, sHP_)); E(add(sOB, sOB, 128 * 1152))
        else:
            E(mul(sOA, sWAVE, 64 * 1152)); E(add(sOA, sOA, sPFc))
    elif kind in 'AM':
        E(mul(sT3, sROLE, 3 * 256))
        E(mul(sQA, sWAVE, 64 * 8192)); E(add(sQA, sQA, sT3))
        E(shl(sQC, sWAVE, 16)); E(add(sQC, sQC, sT3)); E(add(sQC, sQC, 256 * 8192))
        E(shr(s(3), sWAVE, 1)); E(shl(s(3), s(3), 13)); E(salu('s_and_b32', s(4), sWAVE, 1)); E(shl(s(4), s(4), 11)); E(add(s(3), s(3), s(4)))
        E(salu('s_sub_u32', s(3), s(3), 64)); E(shl(s(4), sWAVE, 11))
        if MS: E(shl(s(3), sWAVE, 12))
        for e in range(3 if kind == 'A' else 2):
            E(mul(sT3, sROLE, 3)); E(add(sT3, sT3, e)); E(shr(sT3, sT3, 1)); E(shl(sT3, sT3, 19)); E(add(sT3, sT3, 1536 * 256))
            if e == 0: E(smov(sPFa, sT3))
            if e == (2 if kind == 'A' else 1): E(smov(sPFb, sT3))
            E(add(sKb[e], sT3, s(4))); E(add(sVb[e], sT3, s(3)))
        E(mul(sPFc, sROLE, 384 * 1152))
        if kind == 'A':
            E(mul(sOA, sWAVE, 32 * 1152)); E(add(sOA, sOA, sPFc))
            E(shr(s(3), sWAVE, 1)); E(shl(s(3), s(3), 2)); E(salu('s_and_b32', s(4), sWAVE, 1)); E(add(s(3), s(3), s(4)))
            E(mul(sOB, s(3), 8 * 1152)); E(add(sOB, sOB, sPFc)); E(add(sOB, sOB, 128 * 1152))
        else:
            E(mul(sOA, sWAVE, 64 * 1152)); E(add(sOA, sOA, sPFc))
    if kind in 'FM':
        if kind == 'F':
            E(salu('s_sub_u32', s(3), sROLE, NA + NM)); E(mul(sPF1, s(3), 13 * 128)); E(shl(sPF1h, s(3), 6)); E(add(sPF1h, sPF1h, 69 * 128))
        elif CFG.get('l844'):
            E(mul(sPF1, sROLE, 5 * 128)); E(add(sPF1, sPF1, (52 - 40) * 128)); E(smov(sPF1h, sPF1))
        else:
            E(smov(sPF1, f_fullcol(5) * 2)); E(smov(sPF1h, f_halfcol(5) * 2))
        E(mul(sHA, sWAVE, 64 * 9216)); E(add(sHA, sHA, sPF1))
        E(mul(sHC, sWAVE, 8 * 9216)); E(add(sHC, sHC, sPF1)); E(add(sHC, sHC, 256 * 9216))
        E(mul(sHH, sWAVE, 128 * 9216)); E(add(sHH, sHH, sPF1h))
        E(mul(sHHC, sWAVE, 16 * 9216)); E(add(sHHC, sHHC, sPF1h)); E(add(sHHC, sHHC, 512 * 9216))
        E(mul(sPF2, sPF1, 576)); E(mul(sPF2h, sPF1h, 576))
        E(mul(sFA, sWAVE, 64 * 1152)); E(add(sFA, sFA, sPF2))
        if MS:
            E(salu('s_and_b32', s(3), sWAVE, 1)); E(shl(s(3), s(3), 1)); E(shr(s(4), sWAVE, 1)); E(add(s(3), s(3), s(4))); E(mul(sFC, s(3), 8 * 1152))
        else: E(mul(sFC, sWAVE, 4 * 1152))
        E(add(sFS, sFC, sPF2h)); E(add(sFC, sFC, sPF2)); E(add(sFC, sFC, 256 * 1152))
    if CFG['pf'] >= 3:
        if kind in 'AM': E(mul(sT3, sROLE, 3 * 256) if not CFG.get('pair') else smov(sT3, sQ0))
        E(pf_row_setup(kind, 8192 if kind in 'AM' else 9216, 18, sT3 if kind in 'AM' else sPF1, 0))
        f_ = pf_row(kind, sWQ if kind in 'AM' else sW1)
        early_pf = [f_()[1]] + f_() + f_()
        if CFG.get('ez'): E(early_pf[0])
        if CFG.get('epf', 1) == 3:
            R.pf.setdefault(0, [])[:0] = [f_, f_]
    E(add(sT3, sROLE, NS - NA if kind == 'F' else 0))
    E(mul(sSt, sT3, PSTR())); E(shl(sT3, sRB, 2)); E(add(sT3, sT3, sWAVE)); E(mul(sT3, sT3, PWAVE)); E(add(sSt, sSt, sT3))
    if kind == 'M': E(add(sSt2, sSt, (NS - NA) * PSTR()))
    if CFG['fused']:
        E(shl(sT2, sRB, 14)); E(add(sT2, sT2, CTRL))
        E(add(sT3, sROLE, NS - NA if kind == 'F' else 0)); E(shl(sT3, sT3, 2)); E(add(sT3, sT3, sT2))
        E(salu('s_cmp_eq_u32', None, sWAVE, 0)); E(csel(sT3, sT3, OOB)); E(csel(sT2, sT2, OOB))
        E(valu('v_and_b32', v(24), 15, lane)); E(valu('v_lshlrev_b32', v(25), 7, v(24))); E(valu('v_add_u32', v(25), 128, v(25)))
        E(raw("v_cmp_eq_u32 vcc, 0, v24", 'valu', wr=['vcc'], rd=[v(24)])); E(valu('v_cndmask_b32', v(25), v(25), 0, 'vcc') if False else raw("v_cndmask_b32 v25, v25, v24, vcc", 'valu', wr=[v(25)], rd=[v(25), v(24), 'vcc']))
        E(valu('v_lshrrev_b32', v(26), 4, lane)); E(valu('v_lshl_add_u32', v(25), v(26), 2 + (NS - NA).bit_length() - 1, v(25))); E(valu('v_add_u32', v(25), sT3, v(25)))
        E(raw(f"s_mov_b64 vcc, {hex(((1 << (NA + 1)) - 1) * (0x10001 if kind == 'M' else 1))}", 'salu', wr=['vcc'])); E(valu('v_mov_b32', vCT, OOB)); E(nop(1))
        E(raw(f"v_cndmask_b32 {vCT}, {vCT}, v25, vcc", 'valu', wr=[vCT], rd=[vCT, v(25), 'vcc']))
        E(valu('v_mov_b32', v(24), vCT))
        assert not (CFG.get('l844') or CFG.get('four') or CFG.get('nof'))
        E(add(sT2, sT2, 4 * (NPART + 1)))
        def flag(lane_, item):
            E(raw(f"s_lshl2_add_u32 {sT3}, {item}, {sT2}", 'salu', wr=[sT3], rd=[item, sT2]))
            E(raw(f"v_writelane_b32 v24, {sT3}, {lane_}", 'valu', wr=[v(24)], rd=[sT3, v(24)]))
        if kind == 'A':
            tab3 = [28, 29, 22, 30, 31, 21, 32, 33, 34, 35]
            flag(32, sROLE); E(add(s(4), sROLE, 10)); flag(33, s(4))
            E(smov(s(98), sum((tab3[i] - 20) << (4 * i) for i in range(8)))); E(smov(s(99), (tab3[8] - 20) | ((tab3[9] - 20) << 4)))
            E(shl(s(4), sROLE, 2)); E(salu('s_lshr_b64', s(98, 2), s(98, 2), s(4))); E(salu('s_and_b32', s(4), s(98), 15)); E(add(s(4), s(4), 20)); flag(34, s(4))
        else:
            E(smov(s(4), 20) if kind == 'M' else add(s(4), sROLE, 12)); flag(32, s(4))
        E(valu('v_mov_b32', v(25), 0))
        z = bstore('buffer_store_dword', v(25), v(24), sWS, 0, flags='sc1'); z.tag = 'zero'; E(z)
        E(shl(sT2, sRB, 4)); E(salu('s_cmp_eq_u32', None, sWAVE, 0)); E(csel(sT2, sT2, 256))
        E(valu('v_mov_b32', v(23), 256)); E(raw(f"v_writelane_b32 v23, {sT2}, 0", 'valu', wr=[v(23)], rd=[sT2, v(23)]))
    T_ = [v(24), v(25), v(26), v(27), v(28), v(29)]
    q, r, c4, rb1 = T_[0], T_[1], T_[2], T_[3]
    E(valu('v_lshrrev_b32', q, 4, lane)); E(valu('v_bfe_u32', r, lane, 2, 2)); E(valu('v_and_b32', c4, 3, lane)); E(valu('v_bfe_u32', rb1, lane, 3, 1))
    E(valu('v_and_b32', T_[4], 7, lane)); E(valu('v_bfe_u32', T_[5], lane, 4, 1)); E(valu('v_lshlrev_b32', T_[5], 1, T_[5]))
    E(valu('v_xor_b32', T_[4], T_[4], T_[5])); E(valu('v_lshlrev_b32', vSWZ, 4, T_[4]))
    E(valu('v_lshrrev_b32', T_[4], 5, lane)); E(valu('v_and_b32', T_[5], 3, vROWN)); E(valu('v_lshl_add_u32', vROWP, T_[4], 4, T_[5]))
    E(smov(sT2, PP)); E(valu('v_mul_u32_u24', T_[4], sT2, q)); E(valu('v_lshl_add_u32', T_[4], r, 7, T_[4]))
    E(valu('v_lshl_add_u32', T_[4], c4, 3, T_[4])); E(valu('v_lshl_add_u32', vRW[0][0], rb1, 5, T_[4]))
    E(valu('v_mov_b32', vDP, vRW[0][0]))
    if MS:
        E(valu('v_and_b32', T_[4], 7, lane)); E(valu('v_bfe_u32', T_[5], lane, 4, 1)); E(valu('v_lshlrev_b32', T_[5], 2, T_[5]))
        E(valu('v_xor_b32', T_[4], T_[4], T_[5])); E(valu('v_lshlrev_b32', vSWZM, 4, T_[4]))
        E(valu('v_bfe_u32', q, lane, 4, 1)); E(valu('v_lshlrev_b32', q, 5, q))
        E(valu('v_and_b32', T_[4], 1, lane)); E(valu('v_lshl_add_u32', q, T_[4], 4, q))
        E(valu('v_bfe_u32', T_[4], lane, 1, 1)); E(valu('v_lshl_add_u32', q, T_[4], 3, q))
        E(valu('v_lshrrev_b32', T_[5], 5, lane))
        E(smov(sT2, PP)); E(valu('v_mad_u32_u24', T_[4], T_[5], sT2, q)); E(valu('v_lshl_add_u32', T_[4], r, 7, T_[4]))
        E(valu('v_lshl_add_u32', vRW[0][0], rb1, 6, T_[4])); E(valu('v_xor_b32', rb1, 1, rb1)); E(valu('v_lshl_add_u32', vRW[0][1], rb1, 6, T_[4]))
        if kind in 'FM':
            E(valu('v_lshl_add_u32', vRH[0], T_[5], 9, q)); E(valu('v_lshl_add_u32', vRH[0], r, 6, vRH[0]))
            E(valu('v_lshlrev_b32', T_[4], 4, c4)); E(valu('v_lshrrev_b32', T_[5], 2, lane)); E(smov(sT2, 9216))
            E(valu('v_mad_u32_u24', vOFFH, T_[5], sT2, T_[4]))
        E(valu('v_lshrrev_b32', q, 4, lane))
    else:
        E(valu('v_xor_b32', vRW[0][1], 32, vRW[0][0]))
    for b in (1, 2):
        for T in range(2): E(valu('v_add_u32', vRW[b][T], 65536 * b, vRW[0][T]))
    if kind in 'FM' and not MS:
        E(valu('v_lshlrev_b32', T_[4], 9, q)); E(valu('v_lshl_add_u32', T_[4], r, 6, T_[4])); E(valu('v_lshl_add_u32', T_[4], c4, 3, T_[4]))
        E(valu('v_and_b32', T_[5], 1, q)); E(valu('v_lshl_add_u32', vRH[0], T_[5], 5, T_[4])); E(valu('v_xor_b32', vRH[1], 32, vRH[0]))
        E(valu('v_lshrrev_b32', T_[4], 5, lane)); E(valu('v_lshlrev_b32', T_[4], 1, T_[4])); E(valu('v_xor_b32', T_[4], T_[4], c4))
        E(valu('v_lshlrev_b32', T_[4], 4, T_[4])); E(valu('v_lshrrev_b32', T_[5], 2, lane)); E(smov(sT2, 9216))
        E(valu('v_mad_u32_u24', vOFFH, T_[5], sT2, T_[4]))
    if kind in 'AM':
        E(valu('v_and_b32', T_[4], 15, lane)); E(valu('v_xor_b32', T_[4], T_[4], q)); E(valu('v_lshlrev_b32', T_[4], 4, T_[4]))
        E(valu('v_lshl_add_u32', vOFFK, q, 8, T_[4]))
    E(set_offw(8192 if kind in 'AM' else 9216, 'M' if MS else 'S'))
    if MS:
        XA = [v(20), v(21), v(22), v(39)]
        E(valu('v_and_b32', T_[4], 31, lane)); E(valu('v_bfe_u32', T_[5], lane, 1, 3)); E(valu('v_lshrrev_b32', q, 5, lane)); E(valu('v_xor_b32', T_[5], T_[5], q))
        E(valu('v_lshlrev_b32', T_[4], 7, T_[4])); E(valu('v_add_u32', T_[4], s(6), T_[4]))
        E(valu('v_lshl_add_u32', XA[0], T_[5], 4, T_[4]))
        for tt in range(1, 4): E(valu('v_xor_b32', XA[tt], 32 * tt, XA[0]))
    else:
        E(valu('v_and_b32', T_[4], 15, lane)); E(valu('v_bfe_u32', T_[5], lane, 1, 3)); E(valu('v_xor_b32', T_[5], T_[5], q))
        E(valu('v_lshlrev_b32', T_[4], 7, T_[4])); E(valu('v_add_u32', T_[4], s(6), T_[4]))
        E(valu('v_lshl_add_u32', v(20), T_[5], 4, T_[4])); E(valu('v_xor_b32', v(21), 64, v(20)))
        if kind in 'AM':
            E(smov(sT2, PP)); E(valu('v_mul_u32_u24', v(22), sT2, r)); E(valu('v_lshl_add_u32', v(22), c4, 8, v(22)))
            E(valu('v_xor_b32', T_[4], q, c4)); E(valu('v_lshl_add_u32', v(22), T_[4], 4, v(22)))
    E(valu('v_lshlrev_b32', vLANE16, 4, lane))
    if CFG['stamps'] == 2: E(valu('v_mov_b32', vSTAMP, 0))
    if CFG['fused'] and CFG.get('rep') and kind in 'FM':
        E(rep_addr(kind, v(24), v(25))); E(valu('v_mov_b32', v(25), 0))
        z = bstore('buffer_store_dword', v(25), v(24), sWS, 0, flags='sc1'); z.tag = 'zero'; E(z)
    SA = 28
    for i in range(8): E(valu('v_mov_b32', v(SA + i), 0))
    E(smov(sT2, 0x3f803f80))
    def stats(j):
        for tt in range(2):
            for g in range(2):
                for qd in range(4):
                    x = X(2 * j + tt, g)[qd]
                    E(valu('v_dot2c_f32_bf16', v(SA + 2 * g + (qd & 1)), sT2, x, rmw=True))
                    E(valu('v_dot2c_f32_bf16', v(SA + 4 + 2 * g + (qd & 1)), x, x, rmw=True))
    PS(57)
    for j in range(9):
        E(waitvm(p.vm_wait_for(lambda t: t == ('x', j))))
        if j == 0: PS(58)
        if MS:
            for tt in range(4): E(ds_b128(XM(4 * j + tt), XA[tt], j * 4096))
        else:
            for tt in range(2):
                for g in range(2): E(ds_b128(X(2 * j + tt, g), v(20 + tt), j * 4096 + g * 2048))
        if j + CFG['xe'] < 9: E(xdma(j + CFG['xe']))
        if CFG['pf'] >= 3 and CFG.get('epf', 1) == 1 and j == max(8 - CFG['xe'], 0): E(early_pf)
        if j >= 1:
            E(waitlg(4)); stats(j - 1)
    E(waitlg(0)); PS(59); E(barrier())
    if CFG.get('codepf', 3) == 2: E(I(f"global_load_dword {vDUM}, v46, s[100:101]", 'vload', wr=vDUM.regs(), rd=vr(46) + sr(100, 2), tag='pf'))
    if CFG['pf'] >= 3 and CFG.get('epf', 1) == 2: E(early_pf)
    pend = []
    for k in range(2 if CFG.get('pro2') else 3):
        st = R.stages[k]
        if st.pre_dma: pend.append(st.pre_dma())
        pend += st.dma(k, False)
    if CFG.get('epf', 1) == 4: pend[CFG.get('epos', 9):CFG.get('epos', 9)] = [early_pf[1:3], early_pf[3:5]]
    d0 = CFG.get('d0', 9)
    for it in pend[:d0]: E(it)
    pend = pend[d0:]
    PS(60)
    stats(8)
    acc4 = [v(28), v(30), v(32), v(34)]
    for x in acc4: E(valu('v_add_f32', x, x, v(x.n + 1)))
    if MS:
        for b_ in (0, 2):
            E(valu('v_add_f32', acc4[b_], acc4[b_], acc4[b_ + 1]))
        for b_ in (0, 2): E(valu('v_mov_b32', acc4[b_ + 1], acc4[b_]))
    for op in (('v_permlane32_swap_b32',) if MS else ('v_permlane16_swap_b32', 'v_permlane32_swap_b32')):
        for x in acc4: E(valu('v_mov_b32', v(x.n + 1), x))
        for x in acc4: E(valu(op, x, v(x.n + 1), rmw=True, extra_wr=[v(x.n + 1)]))
        for x in acc4: E(valu('v_add_f32', x, x, v(x.n + 1)))
    for x in acc4: E(valu('v_mul_f32', x, f2u(1.0 / 576), x))
    for g in range(2): E(valu('v_fma_f32', acc4[2 + g], '-' + str(acc4[g]), acc4[g], acc4[2 + g]))
    for g in range(2): E(valu('v_max_f32', acc4[2 + g], 0, acc4[2 + g]))
    for g in range(2): E(valu('v_add_f32', acc4[2 + g], f2u(1e-5), acc4[2 + g]))
    for g in range(2): E(valu('v_rsq_f32', acc4[2 + g], acc4[2 + g]))
    for g in range(2): E(valu('v_mul_f32', acc4[2 + g], f2u(-LOG2E), acc4[2 + g]))
    for g in range(2): E(valu('v_mov_b32', v(20 + g), acc4[g]))
    for g in range(2): E(valu('v_mul_f32', acc4[g], '-' + str(acc4[g]), acc4[2 + g], extra_rd=[acc4[g]]))
    E(smov(sT2, 0xffff0000))
    if CFG.get('dotn'):
        cl = [v(29), v(31)]; ch = [v(33), v(35)]
        for g in range(2): E(valu('v_cvt_pk_bf16_f32', cl[g], acc4[2 + g], 0))
        for g in range(2): E(valu('v_lshlrev_b32', ch[g], 16, cl[g]))
        for g in range(2): E(valu('v_mul_f32', acc4[g], '-' + str(v(20 + g)), ch[g], extra_rd=[v(20 + g)]))
    PS(61)
    n = 0
    for t in range(18):
        for g in range(2):
            tps = [v(24, 2), v(26, 2), v(16, 2), v(18, 2)]
            x = X(t, g)
            if CFG.get('dotn'):
                for qd in range(4):
                    E(valu('v_dot2_f32_bf16', tps[qd][0], x[qd], cl[g], acc4[g])); E(valu('v_dot2_f32_bf16', tps[qd][1], x[qd], ch[g], acc4[g]))
            else:
                for qd in range(4):
                    E(valu('v_lshlrev_b32', tps[qd][0], 16, x[qd])); E(valu('v_and_b32', tps[qd][1], sT2, x[qd]))
                for qd in range(4): E(valu('v_pk_fma_f32', tps[qd], tps[qd], v(acc4[2 + g].n, 2), v(acc4[g].n, 2), mods='op_sel_hi:[1,0,0]'))
            for qd in range(4): E(valu('v_cvt_pk_bf16_f32', x[qd], tps[qd][0], tps[qd][1]))
            if pend and n % CFG.get('dn', 2) == 0: E(pend.pop(0))
            n += 1
    for it in pend: E(it)
    if CFG['fused']:
        E(valu('v_mov_b32', v(24), 1)); E(waitvm(p.vm_wait_for(lambda t: t == 'zero')))
        E(I(f"buffer_atomic_add v24, v23, {sDBG}, 0 offen sc1", 'vstore', rd=vr(23, 2) + sDBG.regs(), units=3, tag='init'))
    for _ in range(CFG.get('idle', 0)): E(raw("s_sleep 16"))
    PS(62)
    if kind in 'AM' and MS:
        ln, m_, key, t_ = v(16), v(17), v(18), v(19)
        E([valu('v_lshrrev_b32', ln, 4, vLANE16), valu('v_and_b32', key, 19, ln),
           valu('v_bfe_u32', t_, ln, 2, 1), valu('v_lshl_add_u32', key, t_, 3, key),
           valu('v_bfe_u32', t_, ln, 3, 1), valu('v_lshl_add_u32', key, t_, 2, key),
           valu('v_lshrrev_b32', m_, 2, key), smov(sT2, PP), valu('v_mul_u32_u24', m_, sT2, m_),
           valu('v_and_b32', key, 3, key), valu('v_lshl_add_u32', m_, key, 8, m_),
           valu('v_lshrrev_b32', t_, 5, ln), valu('v_xor_b32', t_, t_, key),
           valu('v_lshl_add_u32', vRKM[0], t_, 4, m_), valu('v_xor_b32', vRKM[1], 32, vRKM[0])])
    elif kind in 'AM':
        E(valu('v_mov_b32', vRK[0], v(22))); E(valu('v_add_u32', vRK[1], 65536, v(22))); E(valu('v_add_u32', vRK[2], 131072, v(22)))
    if CFG['stamps']: E(raw(f"v_writelane_b32 {vSTAMP}, s96, 55", 'valu', wr=[vSTAMP], rd=[s(96)])) if kind != 'A' else None
    if CFG['stamps']: E(smov(s(43), s(96)))
    nlr = {'F': 10, 'A': 11, 'M': 8}[kind]
    if kind != 'M': E([valu('v_lshrrev_b32', vPF2, 16, vTID), valu('v_and_b32', vPFR, 63, vTID), valu('v_min_u32', vPFR, nlr - 1, vPFR),
       valu('v_mad_u32_u24', vPFR, vPF2, nlr, vPFR), valu('v_lshlrev_b32', vPFR, 7, vPFR)])
    if CFG['stamps']: E(smov(s(97), 0))
    E(smov(sLN0, f2u(-1.0 / math.sqrt(128.0))))

def slow_check(R, heads, base2):
    def f():
        p = R.p; E = p.emit
        t = v(254); lo = v(255)
        E(valu('v_mov_b32', lo, f2u(2.0 ** -40))); E(smov(sT3, f2u(2.0 ** 40)))
        for (hd, Q, O) in heads:
            L = f"L_{R.kind}_slow{hd}"
            if CFG['shape'] == 'M':
                E(valu('v_med3_f32', t, Lsave[hd], sT3, lo))
                E(raw(f"v_cmp_neq_f32 vcc, {t}, {Lsave[hd]}", 'valu', wr=['vcc'], rd=[t, Lsave[hd]])); E(nop(4))
            else:
                E(valu('v_med3_f32', t, Lsave[2 * hd], sT3, lo))
                E(raw(f"v_cmp_neq_f32 s[98:99], {t}, {Lsave[2 * hd]}", 'valu', wr=[s(98, 2)], rd=[t, Lsave[2 * hd]]))
                E(valu('v_med3_f32', t, Lsave[2 * hd + 1], sT3, lo))
                E(raw(f"v_cmp_neq_f32 vcc, {t}, {Lsave[2 * hd + 1]}", 'valu', wr=['vcc'], rd=[t, Lsave[2 * hd + 1]])); E(nop(4))
                E(raw("s_or_b64 vcc, vcc, s[98:99]", 'salu', wr=['vcc'], rd=['vcc', s(98, 2)])); E(nop(1))
            if CFG.get('force_slow'): E(raw(f"s_mov_b64 vcc, -1", 'salu', wr=['vcc']))
            E(raw(f"s_cbranch_vccz {L}_ret"))
            E(raw(f"s_call_b64 {sRET}, {L}"))
            E(label(f"{L}_ret"))
            R.slow.append((slow_path if CFG['shape'] == 'M' else slow_pathS)(L, hd, Q, O, base2))
        E(nop(1))
    return f

def slow_path(L, hd, Q, Odst, b2):
    p = Prog(); E = p.emit
    O = v(48, 64); S = v(b2, 16); P = v(b2 + 16, 8); F = v(b2 + 24, 16)
    vK, vV, vM, vL, t0, t1 = [v(b2 + 40 + i) for i in range(6)]
    sB, sJ, sO = s(98), s(99), s(97)
    E(I(".p2align 2", 'label')); E(label(L))
    E(nop(7)); E(nop(7))
    E([valu('v_lshrrev_b32', t0, 4, vLANE16), valu('v_and_b32', vK, 19, t0), valu('v_bfe_u32', t1, t0, 2, 1), valu('v_lshl_add_u32', vK, t1, 3, vK),
       valu('v_bfe_u32', t1, t0, 3, 1), valu('v_lshl_add_u32', vK, t1, 2, vK), valu('v_lshrrev_b32', t1, 5, t0),
       valu('v_lshlrev_b32', vV, 1, vK), valu('v_lshl_add_u32', vV, t1, 11, vV),
       valu('v_lshlrev_b32', vK, 8, vK), valu('v_lshl_add_u32', vK, t1, 4, vK)])
    E([mul(sB, sROLE, 3), add(sB, sB, hd), shr(sB, sB, 1), shl(sB, sB, 19), add(sB, sB, 1536 * 256)])
    def qk():
        for half in range(2):
            for t in range(4): E(bload('buffer_load_dwordx4', F.sub(4 * t, 4), vK, sK, sO, (4 * half + t) * 32))
            E(waitvm(0))
            for t in range(4):
                tt = 4 * half + t
                E(mfma(S, F.sub(4 * t, 4), Q.sub(4 * tt, 4), 0 if tt == 0 else S))
            E(nop(7)); E(nop(7))
    E(valu('v_mov_b32', vM, 0xff800000)); E(smov(sJ, 0))
    E(label(L + "_a"))
    E(add(sO, sB, sJ)); qk()
    for i in range(0, 16, 2): E(valu('v_max3_f32', vM, vM, S[i], S[i + 1]))
    E(add(sJ, sJ, 8192)); E(salu('s_cmp_lt_u32', None, sJ, 16 * 8192)); E(raw(f"s_cbranch_scc1 {L}_a"))
    E(valu('v_mov_b32', t0, vM)); E(valu('v_permlane32_swap_b32', vM, t0, rmw=True, extra_wr=[t0])); E(valu('v_max_f32', vM, vM, t0))
    for i in range(64): E(valu('v_mov_b32', O[i], 0))
    E(valu('v_mov_b32', vL, 0)); E(smov(sJ, 0))
    E(label(L + "_b"))
    E(add(sO, sB, sJ)); qk()
    for i in range(16): E(valu('v_sub_f32', S[i], S[i], vM))
    for i in range(16): E(valu('v_exp_f32', S[i], S[i]))
    for i in range(16): E(valu('v_add_f32', vL, vL, S[i]))
    for q in range(8): E(valu('v_cvt_pk_bf16_f32', P[q], S[2 * q], S[2 * q + 1]))
    for u in range(2):
        for tp in range(2):
            for tq in range(2):
                for j in range(8):
                    E(bload('buffer_load_ushort', F[8 * (j & 1) + 4 * tq + j // 2], vV, sV, sO, j * 256 + (2 * tp + tq) * 64))
            E(waitvm(0))
            for i in range(8): E(valu('v_lshl_or_b32', F[i], F[8 + i], 16, F[i]))
            for tq in range(2):
                D_ = O.sub(16 * (2 * tp + tq), 16)
                E(mfma(D_, F.sub(4 * tq, 4), P.sub(4 * u, 4), D_))
            E(nop(7))
        if u == 0: E(add(sO, sO, 4096))
    E(add(sJ, sJ, 8192)); E(salu('s_cmp_lt_u32', None, sJ, 16 * 8192)); E(raw(f"s_cbranch_scc1 {L}_b"))
    E(nop(7)); E(nop(7))
    E(valu('v_mov_b32', t0, vL)); E(valu('v_permlane32_swap_b32', vL, t0, rmw=True, extra_wr=[t0])); E(valu('v_add_f32', vL, vL, t0))
    E(valu('v_rcp_f32', t0, vL))
    for tau in range(4):
        A_ = O.sub(16 * tau, 16)
        for e in range(16): E(valu('v_mul_f32', A_[e], A_[e], t0))
        for q in range(8): E(valu('v_cvt_pk_bf16_f32', A_[2 * q], A_[2 * q], A_[2 * q + 1]))
        for q in range(4): E(valu('v_permlane16_swap_b32', A_[2 * q], A_[2 * q + 8], rmw=True, extra_wr=[A_[2 * q + 8]]))
        for q in range(8): E(valu('v_accvgpr_write_b32', Odst[8 * tau + q], A_[2 * q]))
    E(nop(1)); E(raw(f"s_setpc_b64 {sRET}"))
    return p

def slow_pathS(L, hd, Q, Odst, b2):
    p = Prog(); E = p.emit
    ob = 48; kv = None
    if isinstance(b2, tuple): b2, ob = b2
    if isinstance(Odst, tuple):
        OFf, kv = Odst
        class _D:
            def __getitem__(s_, i): return OFf(i // 8)[i % 8]
        Odst = _D()
    O = v(ob, 64); S = v(b2, 16); P = v(b2 + 16, 8); F = v(b2 + 24, 16)
    vK, vV, t0, t1 = [v(b2 + 40 + i) for i in range(4)]
    vM = [v(b2 + 44), v(b2 + 45)]; vL = [v(b2 + 46), v(b2 + 47)]
    sB, sJ, sO = s(98), s(99), s(97)
    E(I(".p2align 2", 'label')); E(label(L))
    E(nop(7)); E(nop(7))
    E([valu('v_lshrrev_b32', t0, 4, vLANE16), valu('v_and_b32', t1, 15, t0), valu('v_lshrrev_b32', t0, 4, t0),
       valu('v_lshlrev_b32', vK, 8, t1), valu('v_lshl_add_u32', vK, t0, 4, vK),
       valu('v_lshlrev_b32', vV, 1, t1), valu('v_lshl_add_u32', vV, t0, 10, vV)])
    if kv is not None: E(smov(sB, kv))
    else: E([mul(sB, sROLE, 3), add(sB, sB, hd), shr(sB, sB, 1), shl(sB, sB, 19), add(sB, sB, 1536 * 256)])
    def qk():
        for T in range(2):
            E(add(sO, sB, sJ)) if T == 0 else E(add(sO, sO, 4096))
            for t in range(4): E(bload('buffer_load_dwordx4', F.sub(4 * t, 4), vK, sK, sO, t * 64))
            E(waitvm(0))
            for t in range(4):
                for g_ in range(2):
                    D_ = S.sub(8 * T + 4 * g_, 4)
                    E(mfma(D_, F.sub(4 * t, 4), Q.sub(8 * t + 4 * g_, 4), 0 if t == 0 else D_))
            E(nop(7)); E(nop(3))
    def allq(x, op):
        for sw in ('v_permlane16_swap_b32', 'v_permlane32_swap_b32'):
            E(valu('v_mov_b32', t0, x)); E(valu(sw, x, t0, rmw=True, extra_wr=[t0])); E(valu(op, x, x, t0))
    for g_ in range(2): E(valu('v_mov_b32', vM[g_], 0xff800000))
    E(smov(sJ, 0))
    E(label(L + "_a"))
    qk()
    for T in range(2):
        for g_ in range(2):
            for i in (0, 2): E(valu('v_max3_f32', vM[g_], vM[g_], S[8 * T + 4 * g_ + i], S[8 * T + 4 * g_ + i + 1]))
    E(add(sJ, sJ, 8192)); E(salu('s_cmp_lt_u32', None, sJ, 16 * 8192)); E(raw(f"s_cbranch_scc1 {L}_a"))
    for g_ in range(2): allq(vM[g_], 'v_max_f32')
    for i in range(64): E(valu('v_mov_b32', O[i], 0))
    for g_ in range(2): E(valu('v_mov_b32', vL[g_], 0))
    E(smov(sJ, 0))
    E(label(L + "_b"))
    qk()
    for i in range(16): E(valu('v_sub_f32', S[i], S[i], vM[(i >> 2) & 1]))
    for i in range(16): E(valu('v_exp_f32', S[i], S[i]))
    for i in range(16): E(valu('v_add_f32', vL[(i >> 2) & 1], vL[(i >> 2) & 1], S[i]))
    for g_ in range(2):
        for T in range(2):
            for k in range(2): E(valu('v_cvt_pk_bf16_f32', P[4 * g_ + 2 * T + k], S[8 * T + 4 * g_ + 2 * k], S[8 * T + 4 * g_ + 2 * k + 1]))
    for tp in range(4):
        for jh in range(2):
            E(add(sO, sB, sJ)) if jh == 0 else E(add(sO, sO, 4096))
            for tq in range(2):
                for jl in range(4):
                    j = 4 * jh + jl
                    E(bload('buffer_load_ushort', F[8 * (j & 1) + 4 * tq + j // 2], vV, sV, sO, jl * 256 + (2 * tp + tq) * 32))
        E(waitvm(0))
        for i in range(8): E(valu('v_lshl_or_b32', F[i], F[8 + i], 16, F[i]))
        for tq in range(2):
            for g_ in range(2):
                D_ = O.sub(8 * (2 * tp + tq) + 4 * g_, 4)
                E(mfma(D_, F.sub(4 * tq, 4), P.sub(4 * g_, 4), D_))
        E(nop(7))
    E(add(sJ, sJ, 8192)); E(salu('s_cmp_lt_u32', None, sJ, 16 * 8192)); E(raw(f"s_cbranch_scc1 {L}_b"))
    E(nop(7)); E(nop(3))
    for g_ in range(2): allq(vL[g_], 'v_add_f32')
    for g_ in range(2): E(valu('v_rcp_f32', vL[g_], vL[g_]))
    for i in range(64): E(valu('v_mul_f32', O[i], O[i], vL[(i >> 2) & 1]))
    for kk in range(4):
        for g_ in range(2):
            for T in range(2):
                for c in range(2):
                    r = 8 * (2 * kk + T) + 4 * g_ + 2 * c
                    E(valu('v_cvt_pk_bf16_f32', O[r], O[r], O[r + 1])); E(valu('v_accvgpr_write_b32', Odst[8 * kk + 4 * g_ + 2 * T + c], O[r]))
    E(nop(1)); E(raw(f"s_setpc_b64 {sRET}"))
    return p

NREP = 6
sMD2 = s(84)
def rep_addr(kind, dst, t):
    return [shl(sT2, sRB, 14), add(sT2, sT2, CTRL + 2048), add(sT3, sROLE, NS - NA), shl(sT3, sT3, 2), add(sT2, sT2, sT3),
            salu('s_cmp_eq_u32', None, sWAVE, 0), csel(sT2, sT2, OOB),
            valu('v_lshlrev_b32', dst, 3, vLANE16), valu('v_add_u32', dst, sT2, dst), valu('v_mov_b32', t, OOB),
            raw(f"v_cmp_gt_u32 vcc, {hex(NA * NREP * 16)}, {vLANE16}", 'valu', wr=['vcc'], rd=[vLANE16]), valu('v_cndmask_b32', dst, t, dst, 'vcc')]
vCR = v(31)
def add_signals(R):
    P2 = [k for k, st in enumerate(R.stages) if st.name.startswith('P2')]
    def sig(first):
        def f():
            out = [valu('v_add_u32', vPRG, 1, vPRG)]
            return out + [bstore('buffer_store_dword', vPRG, vCT, sWS, 0, flags='sc1')]
        return f
    def sig7():
        return [valu('v_add_u32', vPRG, 1, vPRG), bstore('buffer_store_dword', vPRG, vCR, sWS, 0, flags='sc1'), bstore('buffer_store_dword', vPRG, vCT, sWS, 0, flags='sc1')]
    def chain(stages, base):
        firsts = [k for k in stages if R.stages[k].sub == 0]
        for c in range(8):
            k = firsts[c + 1] + CFG.get('siglag', {}).get(R.kind, 2)
            if k > stages[-1]: break
            R.stages[k].cover_st = base + c; R.stages[k].post_bar = sig(c == 0)
            if c == 7 and CFG.get('rep') and R.kind in 'FM': R.stages[k].post_bar = sig7
        if CFG.get('rep') and R.kind in 'FM': R.pf.setdefault(firsts[1], []).append(lambda: rep_addr(R.kind, vCR, vPF))
    chain(P2, 0)
    R.stages[P2[0]].post_bar = lambda: [valu('v_mov_b32', vPRG, 0)]

LDSC = 4 * SLOT
sAB = s(72, 2); sRM = s(74, 2); sCD = s(76, 2)
sRS, sRF, sSP, sC, sI, sPB, sPART, sOK, sPAR, sXW, sPWv, sTO = s(78), s(79), s(71), s(80), s(81), s(82), s(47), s(40), s(41), s(59), s(3), s(58)
sIT = [s(42), s(44), s(45)]; sXP = [s(46), s(60), s(61)]
sRET2 = s(66, 2)
vP, vD, vA, vO, vXO, vL4, vDO, vLA, vIT, vLD, vSC = [v(16 + i) for i in range(11)]
vX4 = v(28)
def s64(op, d, *src, scc_r=False): return salu(op, d, *src, scc_r=scc_r)
sPV = s(85)
def red_setup(kind):
    o = [shl(sPB, sRB, 14), add(sPB, sPB, CTRL), salu('s_cmp_eq_u32', None, sWAVE, 0), csel(sT3, 0, OOB),
         valu('v_lshrrev_b32', vL4, 2, vLANE16), valu('v_add_u32', vL4, sT3, vL4),
         valu('v_mov_b32', vSC, OOB), add(sT2, sT3, 4 * NPART), raw(f"v_writelane_b32 {vSC}, {sT2}, 0", 'valu', wr=[vSC], rd=[sT2, vSC]),
         valu('v_mov_b32', vS1, vSC), valu('v_min_u32', vL5, NPART * 16, vLANE16), valu('v_lshrrev_b32', vL5, 2, vL5), valu('v_add_u32', vL5, sT3, vL5),
         add(sT2, sT3, 252), raw(f"v_writelane_b32 {vSC}, {sT2}, 1", 'valu', wr=[vSC], rd=[sT2, vSC]),
         shl(sT2, sRB, 4), add(sT2, sT2, sT3), valu('v_mov_b32', vDO, 256), raw(f"v_writelane_b32 {vDO}, {sT2}, 0", 'valu', wr=[vDO], rd=[sT2, vDO])]
    if kind == 'A': o += [shl(sPV, sROLE, 7), add(sPV, sPV, 256), add(sPV, sPV, sPB)]
    return o
vS1, vL5 = v(29), v(30)
PRIV = [False]
def red_poll(shared=False):
    cnt = [valu('v_mov_b32', vD, 0), I(f"buffer_atomic_add {vD}, {vDO}, {sDBG}, 0 offen sc0 sc1", 'vload', wr=vD.regs(), rd=vD.regs() + vDO.regs() + sDBG.regs(), units=3)]
    if PRIV[0] and not shared:
        return [cnt, [bstore('buffer_store_dword', vS1, vS1, sWS, sPV, flags='sc1'), bload('buffer_load_dword', vP, vL5, sWS, sPV, flags='sc1')]]
    return [cnt, [bstore('buffer_store_dword', vSC, vSC, sWS, sPB, flags='sc1'), bload('buffer_load_dword', vP, vL4, sWS, sPB, flags='sc1')]]
vG = [v(28), v(29), v(30)]; vGA = v(31); vGP = v(27)
def l2pf_setup():
    return [valu('v_lshrrev_b32', vGP, 7, vLANE16), smov(sT2, PSTR()), valu('v_mul_lo_u32', vGA, vGP, sT2),
            valu('v_bfe_u32', vA, vLANE16, 4, 3), valu('v_lshl_add_u32', vGA, vA, 7, vGA), shl(sT2, sWAVE, 10), valu('v_add_u32', vGA, sT2, vGA),
            valu('v_lshlrev_b32', vGP, 2, vGP), valu('v_mov_b32', vA, OOB), smov(sT2, 68), raw(f"v_writelane_b32 {vA}, {sT2}, 0", 'valu', wr=[vA], rd=[vA, sT2])]
def l2pf_poll():
    st = bstore('buffer_store_dword', vA, vA, sWS, sPB, flags='sc1')
    out = [[st]]
    for i in range(3):
        ld = bload('buffer_load_dword', vG[i], vGP, sWS, sPB, 32 * i, flags='sc1'); ld.tag = 'gp'
        out.append([ld])
    return out
def l2pf_issue(R, dlt):
    out = [[add(sI, sROLE, dlt), salu('s_and_b32', sT2, sI, 3), shr(sC, sI, 2), shl(sT3, sRB, 2), add(sT2, sT2, sT3), mul(sSP, sT2, PWAVE),
            shl(sT3, sC, 12), add(sSP, sSP, sT3), valu('v_mov_b32', vO, OOB)]]
    for i in range(3):
        ld = bload('buffer_load_dword', vDUM, vG[i], sWS, sT2); ld.tag = 'pf'
        cmp_ = raw(f"v_cmp_lt_u32 vcc, {sC}, {vG[i]}", 'valu', wr=['vcc'], rd=[sC, vG[i]])
        pre = [cmp_]
        if i == 2: pre += [raw("s_and_b64 vcc, vcc, 0xff", 'salu', wr=['vcc'], rd=['vcc'])]
        out.append(pre + [add(sT2, sSP, 8 * i * PSTR()), valu('v_cndmask_b32', vG[i], vO, vGA, 'vcc'), ld])
    return out
def red_eval():
    o = [raw(f"v_cmp_ne_u32 vcc, 0, {vP}", 'valu', wr=['vcc'], rd=[vP]), nop(1),
         raw(f"s_lshr_b64 {sAB}, vcc, {NPART + 1}", 'salu', wr=[sAB], rd=['vcc']), salu('s_and_b32', sAB[1], sAB[1], 15), smov(sRS, 0), smov(sRF, 0)]
    for c in range(9):
        o += [raw(f"v_cmp_ge_u32 vcc, {c}, {vP}", 'valu', wr=['vcc'], rd=[vP]), nop(1),
              raw(f"s_and_b32 {sT2}, vcc_lo, {hex((1 << NS) - 1)}", 'salu', wr=[sT2], rd=['vcc']), csel(sRS, sRS, 4 * (c + 1)),
              raw(f"s_and_b32 {sT2}, vcc_lo, {hex((1 << NPART) - (1 << NS))}", 'salu', wr=[sT2], rd=['vcc']), csel(sRF, sRF, 4 * (c + 1))]
    return o
def red_pub(par):
    return [shl(sT2, sRF, 8), salu('s_or_b32', sT2, sT2, sRS), shl(sT3, sTO, 16), salu('s_or_b32', sT2, sT2, sT3),
            valu('v_mov_b32', vIT, sT2), valu('v_mov_b32', vLA, par), raw(f"ds_write_b32 {vLA}, {vIT}", 'other', rd=[vLA, vIT]), waitlg(0)]
def red_get(par):
    return [valu('v_mov_b32', vLA, par), raw(f"ds_read_b32 {vIT}, {vLA}", 'ds', wr=[vIT], rd=[vLA]), waitlg(0),
            valu('v_readfirstlane_b32', sT2, vIT), salu('s_and_b32', sRS, sT2, 255), salu('s_bfe_u32', sRF, sT2, (8 << 16) | 8), shr(sTO, sT2, 16)]
def red_early(p, n):
    E = p.emit
    E([smov(sRS, 0), smov(sRF, 0), smov(sOK, 0), smov(sTO, 0), smov(sPAR, LDSC + 4), nop(1)])
    E(salu('s_cmp_eq_u32', None, sWAVE, 0)); E(raw(f"s_cbranch_scc0 L_{n}_e2"))
    E(waitvm(p.vm_wait_for(lambda t: t == 'poll')))
    E(valu('v_readfirstlane_b32', sOK, vD))
    E(salu('s_cmp_ge_u32', None, sOK, 16)); E(raw(f"s_cbranch_scc0 L_{n}_e1"))
    E(red_eval())
    E(label(f"L_{n}_e1"))
    E(red_pub(LDSC))
    E(label(f"L_{n}_e2"))

def ld_part(L, ks, flags):
    out = []
    for k in ks:
        out.append([add(sT2, sPART, k * PSTR()), bload('buffer_load_dwordx4', v(L + 4 * k, 4), vLD, sWS, sT2, flags=flags)])
    return out
def ld_x(L, sXO_):
    if CFG.get('nox'): return [[valu('v_mov_b32', vA, OOB), bload('buffer_load_dwordx2', v(L + 4 * NPART, 2), vA, sX, sXO_)], [bload('buffer_load_dwordx2', v(L + 4 * NPART + 2, 2), vA, sX, sXO_, 32)]]
    return [[bload('buffer_load_dwordx2', v(L + 4 * NPART, 2), vXO, sX, sXO_)], [bload('buffer_load_dwordx2', v(L + 4 * NPART + 2, 2), vXO, sX, sXO_, 32)]]
RB_ = 48
sD0, sD1 = s(68), s(69)
def proc_sum(E, L, ks, after, loads):
    SA, FA, T = RB_, RB_ + 8, RB_ + 16
    issued = 0; ks = list(ks)
    E(smov(sT3, 0xffff0000))
    for j, k in enumerate(ks):
        if loads: E(loads.pop(0)); issued += 1
        E(waitvm(len(ks) - 1 - j + after + issued))
        acc = SA if k < NS else FA
        for q in range(4):
            x = v(L + 4 * k + q)
            if k in (0, NS):
                E(valu('v_lshlrev_b32', v(acc + 2 * q), 16, x)); E(valu('v_and_b32', v(acc + 2 * q + 1), sT3, x))
            else:
                E(valu('v_dot2c_f32_bf16', v(acc + 2 * q), sD0, x, rmw=True)); E(valu('v_dot2c_f32_bf16', v(acc + 2 * q + 1), sD1, x, rmw=True))
    return issued
def proc_fin(E, L, sXO_, xwait, loads):
    SA, FA, T = RB_, RB_ + 8, RB_ + 16; XR = L + 4 * NPART; issued = 0
    for e in range(8): E(valu('v_exp_f32', v(T + e), v(FA + e)))
    for e in range(8): E(valu('v_add_f32', v(T + e), 1.0, v(T + e)))
    while len(loads) > 1: E(loads.pop(0)); issued += 1
    for e in range(8): E(valu('v_rcp_f32', v(T + e), v(T + e)))
    for e in range(8): E(valu('v_mul_f32', v(FA + e), f2u(-math.log(2.0)), v(FA + e)))
    for e in range(8): E(valu('v_mul_f32', v(FA + e), v(FA + e), v(T + e)))
    while loads: E(loads.pop(0)); issued += 1
    if xwait is not None: E(waitvm(xwait + issued))
    for q in range(4):
        E(valu('v_lshlrev_b32', v(T + 2 * q), 16, v(XR + q))); E(valu('v_and_b32', v(T + 2 * q + 1), sT3, v(XR + q)))
    for e in range(8): E(valu('v_fma_f32', v(T + e), v(SA + e), v(FA + e), v(T + e)))
    for q in range(4): E(valu('v_cvt_pk_bf16_f32', v(XR + q), v(T + 2 * q), v(T + 2 * q + 1)))
    if CFG.get('out4', True):
        def dpp(d, src, bank): return I(f"v_mov_b32_dpp {d}, {src} row_ror:8 row_mask:0xf bank_mask:{bank}", 'perm', wr=d.regs(), rd=src.regs() + d.regs())
        for i in range(2): E(valu('v_permlane16_swap_b32', v(XR + i), v(XR + 2 + i), rmw=True, extra_wr=[v(XR + 2 + i)]))
        for i in range(2): E(valu('v_mov_b32', v(T + i), v(XR + i)))
        for i in range(2): E(dpp(v(XR + i), v(XR + 2 + i), '0xc'))
        for i in range(2): E(dpp(v(XR + 2 + i), v(T + i), '0x3'))
        E(bstore('buffer_store_dwordx4', v(XR, 4), vX4, sOUT, sXO_, flags=CFG.get('oflags', 'sc1')))
        E(valu('v_mov_b32', vO, OOB)); E(bstore('buffer_store_dword', vO, vO, sOUT, 0))
        return
    E(bstore('buffer_store_dwordx2', v(XR, 2), vXO, sOUT, sXO_)); E(bstore('buffer_store_dwordx2', v(XR + 2, 2), vXO, sOUT, sXO_, 32))
def proc_all(E, L, sXO_, pre, loads):
    loads = list(loads)
    n = proc_sum(E, L, range(NPART), 2 + pre, loads)
    proc_fin(E, L, sXO_, pre + n, loads)

def acc_part(E, L, k):
    acc = RB_ if k < NS else RB_ + 8
    for q in range(4):
        x = v(L + 4 * k + q)
        if k in (0, NS):
            E(valu('v_lshlrev_b32', v(acc + 2 * q), 16, x)); E(valu('v_and_b32', v(acc + 2 * q + 1), sT3, x))
        else:
            E(valu('v_dot2c_f32_bf16', v(acc + 2 * q), sD0, x, rmw=True)); E(valu('v_dot2c_f32_bf16', v(acc + 2 * q + 1), sD1, x, rmw=True))
def stream(E, segs, hooks=None):
    W = CFG.get('rwin', 8); FL = CFG.get('fflags', 'sc1')
    seq = []
    for (L, sP, sX_, ks, wx, fin) in segs:
        if wx:
            for it in ld_x(L, sX_): seq.append((it, None))
        ks = list(ks)
        for j, k in enumerate(ks):
            it = [add(sT2, sP, k * PSTR()), bload('buffer_load_dwordx4', v(L + 4 * k, 4), vLD, sWS, sT2, flags=FL)]
            last = fin and j == len(ks) - 1
            seq.append((it, (lambda L=L, k=k, last=last, sX_=sX_: (acc_part(E, L, k), proc_fin(E, L, sX_, None, []) if last else None, last)[2])))
    E(smov(sT3, 0xffff0000))
    n = len(seq); issued = 0
    extra_at = []
    for c in range(n):
        while issued < min(n, c + W): E(seq[issued][0]); issued += 1
        if hooks and c in hooks:
            for _ in range(hooks[c](issued + sum(1 for e in extra_at))): extra_at.append(issued)
            E(smov(sT3, 0xffff0000))
        if seq[c][1] is None: continue
        E(waitvm(issued - 1 - c + sum(1 for e in extra_at if e > c)))
        if seq[c][1]():
            extra_at += [issued, issued]

def body_items(E, n, its, two, ni, ensure, refresh, done, ST, seg, final_flag, poll_hook, LATE, L0, L1, FOUR, sMID, offs, sPT):
    E(salu('s_min_u32', sT2, sRS, sRF)); E(salu('s_cmp_lt_u32', None, its[two - 1], sT2)); E(raw(f"s_cbranch_scc0 L_{n}_sl"))
    ST(its[0])
    hooks = {(NPART + 2) * two - CFG.get('pollat', 8): poll_hook}
    if LATE: hooks[CFG.get('flagat', 3) if n == 'A' else 0] = final_flag
    stream(E, [seg(0, L0), seg(1, L1)][:two], hooks)
    ST(51)
    E(raw(f"s_branch L_{n}_j"))
    E(label(f"L_{n}_sl"))
    if LATE and two == 2 and CFG.get('mid1', 1):
        E(salu('s_min_u32', sT2, sRS, sRF)); E(salu('s_cmp_lt_u32', None, its[0], sT2)); E(raw(f"s_cbranch_scc0 L_{n}_s0"))
        ST(52)
        stream(E, [seg(0, L0)], {CFG.get('flagat', 3): final_flag, 12: poll_hook}); done(its[0])
        refresh(2); ensure(its[1], 1, 1)
        stream(E, [seg(1, L1)], {11: poll_hook})
        E(raw(f"s_branch L_{n}_j"))
        E(label(f"L_{n}_s0"))
    if LATE: final_flag(0)
    for i in range(two):
        ensure(its[i], 1, 1)
        stream(E, [seg(i, L0)], {11: poll_hook} if i == two - 1 else None); done(its[i])
    E(label(f"L_{n}_j"))
    for i in range(two): done(its[i])
    if FOUR or (CFG.get('asg') == 3 and n == 'A'):
        E(salu('s_cmp_gt_u32', None, sMID, 35)); E(raw(f"s_cbranch_scc1 L_{n}_nm"))
        refresh(2)
        ensure(sMID, 1, 1); ST(sMID)
        E(offs(sMID, sXP[0]))
        stream(E, [seg(0, L1)], {13: poll_hook}); done(sMID)
        E(label(f"L_{n}_nm"))
    def warm():
        if not CFG.get('warm', 1): return
        E(valu('v_mov_b32', v(240), vLD)); E(valu('v_mov_b32', v(241), vX4)); E(valu('v_mov_b32', vLD, OOB)); E(valu('v_mov_b32', vX4, OOB))
        E(raw(f"s_call_b64 {sRET2}, L_{n}_ft"))
        E(valu('v_mov_b32', vLD, v(240))); E(valu('v_mov_b32', vX4, v(241)))
    if ni == 3:
        if CFG.get('asg') == 3:
            E(salu('s_cmp_lt_u32', None, its[2], 36)); E(raw(f"s_cbranch_scc1 L_{n}_h3"))
            E(red_poll(True)[1]); E(waitvm(0)); E(raw(f"s_branch L_{n}_fin")); E(label(f"L_{n}_h3"))
        refresh(2)
        if CFG.get('nof'):
            E(salu('s_cmp_gt_u32', None, sMD2, 35)); E(raw(f"s_cbranch_scc1 L_{n}_k1"))
            ensure(sMD2, 1, 1); E(offs(sMD2, sXP[0])); ST(sMD2)
            E(salu('s_cmp_lt_u32', None, its[2], sRS)); E(raw(f"s_cbranch_scc0 L_{n}_k0"))
            E(salu('s_cmp_lt_u32', None, its[2], sRF)); E(raw(f"s_cbranch_scc1 L_{n}_k0"))
            warm()
            stream(E, [seg(0, L1), seg(2, L0, range(NS), True, False)], {20: poll_hook.sh}); done(sMD2)
            E(raw(f"s_branch L_{n}_k2"))
            E(label(f"L_{n}_k0"))
            stream(E, [seg(0, L1)], {11: poll_hook}); done(sMD2)
            refresh(2)
            E(label(f"L_{n}_k1"))
        ensure(its[2], 1, 0); ST(its[2])
        E(salu('s_cmp_lt_u32', None, its[2], sRF)); E(raw(f"s_cbranch_scc1 L_{n}_f3"))
        if CFG.get('rep') and n == 'A':
            warm()
            stream(E, [seg(2, L0, range(NS), True, False)], {4: poll_hook.sh})
            E(label(f"L_{n}_k2"))
            E(salu('s_cmp_eq_u32', None, sWAVE, 0)); E(raw(f"s_cbranch_scc0 L_{n}_w2"))
            E(waitvm(0))
            E(raw(f"v_cmp_ne_u32 vcc, 0, {vP}", 'valu', wr=['vcc'], rd=[vP])); E(nop(1))
            E(raw(f"s_lshr_b64 {sAB}, vcc, {NPART + 1}", 'salu', wr=[sAB], rd=['vcc'])); E(salu('s_and_b32', sAB[1], sAB[1], 15))
            E(salu('s_or_b32', sT2, sAB[0], sAB[1])); E(csel(sRS, 1, 0))
            E(shr(sC, its[2], 2)); E(mul(sI, sROLE, NREP * 128)); E(add(sI, sI, sPB)); E(add(sI, sI, 2048)); E(add(sSP, sI, NREP * 128))
            E(label(f"L_{n}_w0"))
            E(bload('buffer_load_dword', vP, vL5, sWS, sI, flags='sc1')); E(waitvm(0))
            E(raw(f"v_cmp_ge_u32 vcc, {sC}, {vP}", 'valu', wr=['vcc'], rd=[vP, sC])); E(nop(1))
            E(raw(f"s_and_b32 {sT2}, vcc_lo, {hex((1 << NPART) - (1 << NS))}", 'salu', wr=[sT2], rd=['vcc'])); E(csel(sRF, 0, 36))
            E(raw(f"s_cbranch_scc0 L_{n}_w1"))
            E(add(sI, sI, 128)); E(salu('s_cmp_lt_u32', None, sI, sSP)); E(raw(f"s_cbranch_scc0 L_{n}_w1"))
            E(raw(f"s_sleep {CFG.get('rsleep', 6)}")); E(raw(f"s_branch L_{n}_w0"))
            E(label(f"L_{n}_w1")); E(red_pub(sPAR))
            E(label(f"L_{n}_w2")); E(barrier()); E(red_get(sPAR)); E(salu('s_xor_b32', sPAR, sPAR, 12))
            E(smov(sMID, sRS))
            ensure(its[2], 0, 1); ST(50)
            E(raw(f"s_call_b64 {sRET2}, L_{n}_ft")); done(its[2])
            E(salu('s_cmp_eq_u32', None, sMID, 0)); E(raw(f"s_cbranch_scc1 L_{n}_exit")); E(raw(f"s_branch L_{n}_fb"))
            E(label(f"L_{n}_ft"))
            stream(E, [seg(2, L0, range(NS, NPART), False, True)])
            E(raw(f"s_setpc_b64 {sRET2}"))
        else:
            stream(E, [seg(2, L0, range(NS), True, False)], {6: poll_hook})
            refresh(0)
            ensure(its[2], 0, 1); ST(50)
            stream(E, [seg(2, L0, range(NS, NPART), False, True)], {0: poll_hook.sh})
            E(raw(f"s_branch L_{n}_f4"))
        E(label(f"L_{n}_f3"))
        stream(E, [seg(2, L0)], {11: poll_hook.sh})
        E(label(f"L_{n}_f4"))
        done(its[2])


def reducer(kind):
    p = Prog(); E = p.emit; n = kind; FL = CFG.get('fflags', 'sc1')
    PRIV[0] = (kind == 'A')
    def ST(code):
        if CFG['stamps'] != 2: return
        E(raw(f"s_memtime {sSTAMP}", wr=[sSTAMP])); E(raw("s_waitcnt lgkmcnt(0)")); E(salu('s_sub_u32', s(98), s(98), s(100)))
        E(shl(s(98), s(98), 6)); E(salu('s_or_b32', s(98), s(98), code))
        E(add(s(97), s(97), 16)); E(salu('s_min_u32', s(97), s(97), 11 * 16))
        E(raw(f"v_cmp_eq_u32 vcc, s97, {vLANE16}", 'valu', wr=['vcc'], rd=[s(97), vLANE16])); E(valu('v_mov_b32', v(27), s(98)))
        E(valu('v_cndmask_b32', vSTAMP, vSTAMP, v(27), 'vcc'))
    def offs(item, sX_):
        return [salu('s_and_b32', sT2, item, 3), shr(sC, item, 2), shl(sT3, sRB, 2), add(sT2, sT2, sT3), mul(sPART, sT2, PWAVE), add(sX_, sPART, sXW),
                shl(sT3, sC, 12), add(sT3, sT3, sPWv), add(sPART, sPART, sT3), shl(sT3, sC, 7), add(sX_, sX_, sT3)]
    k_ = [0]
    def ensure(item, s_, f_):
        L = f"L_{n}_en{k_[0]}"; k_[0] += 1
        if s_ and f_: E(salu('s_min_u32', sT2, sRS, sRF)); r = sT2
        else: r = sRS if s_ else sRF
        E(salu('s_cmp_lt_u32', None, item, r)); E(raw(f"s_cbranch_scc1 {L}"))
        E(smov(sI, item)); E(smov(sC, (1 if s_ else 0) | (2 if f_ else 0)))
        E(raw(f"s_call_b64 {sRET2}, L_{n}_sync"))
        E(salu('s_cmp_eq_u32', None, sTO, 0)); E(raw(f"s_cbranch_scc0 L_{n}_fb"))
        E(label(L))
    def done(item): E(raw(f"s_bitset0_b64 {sRM}, {item}", 'salu', wr=[sRM], rd=[sRM, item]))
    E(label(f"L_{n}_red"))
    if CFG.get('rdelay'):
        if n == 'A': (E(waitvm(0)), E(barrier()), E(valu('v_mov_b32', vPRG, 9)), E(bstore('buffer_store_dword', vPRG, vCT, sWS, 0, flags='sc1')))
        for _ in range({'A': 30, 'M': 24, 'F': 14}[n]): E(raw("s_sleep 16"))
    E(red_get(LDSC))
    if CFG.get('rdelay'): E(smov(sRS, 36)); E(smov(sRF, 36))
    E(valu('v_lshrrev_b32', vO, 4, vLANE16)); E(valu('v_and_b32', vXO, 7, vO)); E(valu('v_lshlrev_b32', vLD, 4, vXO))
    E(smov(sT2, 1152)); E(valu('v_mul_u32_u24', vXO, sT2, vXO))
    E(valu('v_lshrrev_b32', vA, 3, vO)); E(valu('v_lshl_add_u32', vX4, vA, 4, vXO))
    E(valu('v_bfe_u32', vA, vO, 3, 2)); E(valu('v_lshl_add_u32', vXO, vA, 3, vXO)); E(valu('v_lshl_add_u32', vLD, vA, 8, vLD))
    E(valu('v_lshrrev_b32', vA, 5, vO)); E(valu('v_lshl_add_u32', vXO, vA, 6, vXO)); E(valu('v_lshl_add_u32', vLD, vA, 11, vLD))
    E(mul(sXW, sWAVE, 8 * 1152)); E(shr(sPWv, sWAVE, 1)); E(shl(sPWv, sPWv, 10)); E(salu('s_and_b32', sT2, sWAVE, 1)); E(shl(sT2, sT2, 7)); E(add(sPWv, sPWv, sT2))
    L0, L1 = 72, 76 + 4 * NPART
    E(smov(sD0, 0x3f80)); E(smov(sD1, 0x3f800000))
    E(raw(f"s_mov_b64 {sRM}, 0", 'salu', wr=[sRM]))
    FOUR = CFG.get('four')
    sMID = s(48 + 0) if False else s(83)
    def nib(dst, tab, base):
        E(smov(sCD[0], sum(tab[i] << (4 * i) for i in range(8)))); E(smov(sCD[1], tab[8] | (tab[9] << 4)))
        E(shl(sT2, sROLE, 2)); E(s64('s_lshr_b64', sCD, sCD, sT2)); E(salu('s_and_b32', dst, sCD[0], 15))
        E(salu('s_cmp_eq_u32', None, dst, 15)); E(csel(dst, 63 - base, dst)); E(add(dst, dst, base))
    if n == 'A':
        E(smov(sIT[0], sROLE)); E(add(sIT[1], sROLE, NA))
        if CFG.get('asg') == 2: E(add(sIT[2], sROLE, 16))
        elif CFG.get('asg') == 3:
            E(add(sMID, sROLE, 16)); E(raw(f"s_bitset1_b64 {sRM}, {sMID}", 'salu', wr=[sRM], rd=[sRM, sMID]))
            E(salu('s_and_b32', sT2, sROLE, 1)); E(shr(sIT[2], sROLE, 1)); E(add(sIT[2], sIT[2], 24)); E(salu('s_cmp_eq_u32', None, sT2, 0)); E(csel(sIT[2], sIT[2], 63))
        elif CFG.get('l844'): E(add(sIT[2], sROLE, 28))
        elif FOUR:
            nib(sMID, [0, 15, 1, 2, 15, 3, 4, 5, 6, 7], 20); nib(sIT[2], [0, 1, 15, 2, 3, 15, 4, 5, 6, 7], 28)
            E(raw(f"s_bitset1_b64 {sRM}, {sMID}", 'salu', wr=[sRM], rd=[sRM, sMID]))
        else:
            nib(sIT[2], [0, 1, 15, 2, 3, 15, 4, 5, 6, 7], 28)
            E(salu('s_cmp_eq_u32', None, sROLE, 2)); E(csel(sIT[2], 22, sIT[2])); E(salu('s_cmp_eq_u32', None, sROLE, 5)); E(csel(sIT[2], 21, sIT[2]))
            if CFG.get('nof'):
                nib(sMD2, CFG['nof'], 23)
                E(raw(f"s_bitset1_b64 {sRM}, {sMD2}", 'salu', wr=[sRM], rd=[sRM, sMD2]))
        its = sIT
    elif CFG.get('asg') == 2:
        if n == 'M': E(add(sIT[0], sROLE, 16)); E(add(sIT[1], sROLE, 20)); its = sIT[:2]
        else: E(add(sIT[0], sROLE, 20)); its = sIT[:1]
    elif CFG.get('asg') == 3:
        E(add(sIT[0], sROLE, 20)); its = sIT[:1]
    elif CFG.get('l844'):
        if n == 'M': E(add(sIT[0], sROLE, 8)); E(add(sIT[1], sROLE, 12)); its = sIT[:2]
        else: E(add(sIT[0], sROLE, 12)); its = sIT[:1]
    elif n == 'M': E(smov(sIT[0], 20)); its = sIT[:1]
    else:
        E(add(sIT[0], sROLE, 12)); its = sIT[:1]
    if (FOUR and n != 'A') or (CFG.get('nof') and n == 'F'):
        its = []
        E(waitvm(0)); E(red_poll()[1]); E(waitvm(0)); E(raw(f"s_branch L_{n}_fin"))
    for it in its: E(raw(f"s_bitset1_b64 {sRM}, {it}", 'salu', wr=[sRM], rd=[sRM, it]))
    E(salu('s_and_b32', sRM[1], sRM[1], 15))
    def refresh(wait):
        L = f"L_{n}_rf{k_[0]}"; k_[0] += 1
        E(salu('s_cmp_eq_u32', None, sWAVE, 0)); E(raw(f"s_cbranch_scc0 {L}"))
        E(waitvm(wait)); E(red_eval()); E(red_pub(sPAR))
        E(label(L)); E(barrier()); E(red_get(sPAR)); E(salu('s_xor_b32', sPAR, sPAR, 12))
    ALLD = lambda L, sx: ld_part(L, range(NPART), FL) + ld_x(L, sx)
    LATE = n in CFG.get('lateflag', 'A') + CFG.get('pre', '')
    sPT = [s(47), s(67 - 2), s(70)]
    def offs2(i): return offs(its[i], sXP[i]) + ([smov(sPT[i], sPART)] if i else [])
    def final_flag(wait):
        E(waitvm(wait)); E(barrier())
        E(valu('v_mov_b32', vPRG, 9))
        if CFG.get('rep') and n in 'FM': E(bstore('buffer_store_dword', vPRG, vCR, sWS, 0, flags='sc1'))
        E(bstore('buffer_store_dword', vPRG, vCT, sWS, 0, flags='sc1'))
        return 2 if (CFG.get('rep') and n in 'FM') else 1
    def poll_hook(_): E(red_poll()[1]); return 2
    def poll_sh(_): E(red_poll(True)[1]); return 2
    poll_hook.sh = poll_sh
    seg = lambda i, L, ks=range(NPART), wx=True, fin=True: (L, sPT[i], sXP[i], ks, wx, fin)
    ni = len(its)
    for i in reversed(range(ni)): E(offs2(i))
    two = min(ni, 2)
    if ni: body_items(E, n, its, two, ni, ensure, refresh, done, ST, seg, final_flag, poll_hook, LATE, L0, L1, FOUR, sMID, offs, sPT)
    E(label(f"L_{n}_fin"))
    E(salu('s_cmp_eq_u32', None, sWAVE, 0)); E(raw(f"s_cbranch_scc0 L_{n}_b4"))
    E(waitvm(2))
    E(raw(f"v_cmp_ne_u32 vcc, 0, {vP}", 'valu', wr=['vcc'], rd=[vP])); E(nop(1))
    E(raw(f"s_lshr_b64 {sAB}, vcc, {NPART + 1}", 'salu', wr=[sAB], rd=['vcc'])); E(salu('s_and_b32', sAB[1], sAB[1], 15))
    E(salu('s_or_b32', sT2, sAB[0], sAB[1])); E(csel(sTO, 1, 0))
    E(salu('s_cmp_ge_u32', None, sOK, 16)); E(csel(sTO, sTO, 1)); E(red_pub(sPAR))
    E(label(f"L_{n}_b4")); E(barrier()); E(red_get(sPAR)); E(salu('s_xor_b32', sPAR, sPAR, 12))
    E(salu('s_cmp_eq_u32', None, sTO, 0)); E(raw(f"s_cbranch_scc1 L_{n}_exit"))
    E(label(f"L_{n}_fb"))
    E(waitvm(0))
    E(salu('s_cmp_eq_u32', None, sWAVE, 0)); E(raw(f"s_cbranch_scc0 L_{n}_fb2"))
    E(s64('s_lshl_b64', sCD, sRM, NPART + 1)); E(valu('v_mov_b32', vO, OOB)); E(valu('v_mov_b32', vA, 1))
    E(valu('v_cndmask_b32', vO, vO, vL4, sCD)); E(bstore('buffer_store_dword', vA, vO, sWS, sPB, flags='sc1')); E(waitvm(0))
    E(red_poll()[0]); E(waitvm(0)); E(red_poll(True)[1]); E(waitvm(0)); E(valu('v_readfirstlane_b32', sOK, vD)); E(red_eval())
    E(salu('s_min_u32', sT2, sRS, sRF)); E(salu('s_cmp_ge_u32', None, sOK, 16)); E(csel(sT2, sT2, 0))
    E(salu('s_bfm_b64', sCD, sT2, 0, scc_w=False)); E(s64('s_or_b64', sAB, sAB, sRM)); E(s64('s_and_b64', sAB, sAB, sCD))
    E(label(f"L_{n}_fb1"))
    E(raw(f"s_ff1_i32_b64 {sRS}, {sAB}", 'salu', wr=[sRS], rd=[sAB])); E(salu('s_and_b32', sRS, sRS, 255))
    E(raw(f"s_bitset0_b64 {sAB}, {sRS}", 'salu', wr=[sAB], rd=[sAB, sRS])); E(red_pub(sPAR))
    E(label(f"L_{n}_fb2")); E(barrier()); E(red_get(sPAR)); E(salu('s_xor_b32', sPAR, sPAR, 12))
    E(salu('s_cmp_ge_u32', None, sRS, 36)); E(raw(f"s_cbranch_scc1 L_{n}_exit"))
    E(offs(sRS, sXP[0])); E(ld_part(L0, range(NPART), FL) + ld_x(L0, sXP[0])); E(waitvm(0)); proc_all(E, L0, sXP[0], 0, [])
    E(salu('s_cmp_eq_u32', None, sWAVE, 0)); E(raw(f"s_cbranch_scc1 L_{n}_fb1")); E(raw(f"s_branch L_{n}_fb2"))
    E(label(f"L_{n}_exit"))
    ST(60)
    if CFG['stamps']: E(raw(f"s_setpc_b64 {sRET}"))
    else: E(raw("s_endpgm"))
    E(label(f"L_{n}_sync"))
    E(salu('s_cmp_eq_u32', None, sWAVE, 0)); E(raw(f"s_cbranch_scc0 L_{n}_sy2"))
    E(smov(sSP, 0)); E(red_poll()[1][0])
    E(label(f"L_{n}_sy0"))
    E(salu('s_cmp_ge_u32', None, sOK, 16)); E(raw(f"s_cbranch_scc1 L_{n}_sy1"))
    E(red_poll()[0]); E(waitvm(0)); E(valu('v_readfirstlane_b32', sOK, vD))
    E(salu('s_cmp_ge_u32', None, sOK, 16)); E(raw(f"s_cbranch_scc0 L_{n}_syw"))
    E(label(f"L_{n}_sy1"))
    E(red_poll()[1][1]); E(red_poll()[1][0]); E(waitvm(1)); E(red_eval())
    E(salu('s_bitcmp1_b32', None, sC, 0)); E(csel(sT2, sRS, 36)); E(salu('s_bitcmp1_b32', None, sC, 1)); E(csel(sT3, sRF, 36))
    E(salu('s_min_u32', sT2, sT2, sT3)); E(salu('s_cmp_lt_u32', None, sI, sT2)); E(raw(f"s_cbranch_scc1 L_{n}_syp"))
    E(label(f"L_{n}_syw"))
    E(add(sSP, sSP, 1)); E(salu('s_cmp_gt_u32', None, sSP, CFG.get('spin', 4000))); E(csel(sTO, 1, 0)); E(raw(f"s_cbranch_scc1 L_{n}_syp"))
    E(raw(f"s_sleep {CFG.get('sleep', 1)}")); E(raw(f"s_branch L_{n}_sy0"))
    E(label(f"L_{n}_syp"))
    E(red_pub(sPAR))
    E(label(f"L_{n}_sy2")); E(barrier()); E(red_get(sPAR)); E(salu('s_xor_b32', sPAR, sPAR, 12))
    E(raw(f"s_setpc_b64 {sRET2}"))
    return p

def reduce_items(p, ni, sPART_, sXO_, srdP, srdX, srdO, vL16, vXO_, base, flags, mid=None):
    E = p.emit
    SA = base; FA = base + 8; T = base + 16
    Ls = [base + 24 + 72 * i for i in range(ni)]
    for k in range(NPART):
        if k: E(add(sPART_, sPART_, 16 * PART - (PWAVE if ni == 2 else 0)))
        for i in range(ni):
            if i: E(add(sPART_, sPART_, PWAVE))
            E(bload('buffer_load_dwordx4', v(Ls[i] + 4 * k, 4), vL16, srdP, sPART_, flags=flags))
    for i in range(ni):
        XR = Ls[i] + 68
        if i: E(add(sT2, sXO_, 32 * 1152))
        so = sT2 if i else sXO_
        E(bload('buffer_load_dwordx2', v(XR, 2), vXO_, srdX, so)); E(bload('buffer_load_dwordx2', v(XR + 2, 2), vXO_, srdX, so, 32))
    ex = 0
    if mid: mid(); ex = 1
    E(smov(sT3, 0xffff0000))
    for i in range(ni):
        L = Ls[i]; XR = L + 68
        for k in range(NPART):
            if i == 0: E(waitvm((NPART - 1 - k) * ni + (ni - 1) + 2 * ni + ex))
            acc = SA if k < 11 else FA
            for q in range(4):
                x = v(L + 4 * k + q)
                if k in (0, 11):
                    E(valu('v_lshlrev_b32', v(acc + 2 * q), 16, x)); E(valu('v_and_b32', v(acc + 2 * q + 1), sT3, x))
                else:
                    tp = v(T + 2 * q, 2)
                    E(valu('v_lshlrev_b32', tp[0], 16, x)); E(valu('v_and_b32', tp[1], sT3, x))
            if k not in (0, 11):
                for q in range(4): E(valu('v_pk_add_f32', v(acc + 2 * q, 2), v(acc + 2 * q, 2), v(T + 2 * q, 2)))
        for e in range(8): E(valu('v_exp_f32', v(T + e), v(FA + e)))
        for e in range(8): E(valu('v_add_f32', v(T + e), 1.0, v(T + e)))
        for e in range(8): E(valu('v_rcp_f32', v(T + e), v(T + e)))
        for e in range(8): E(valu('v_mul_f32', v(FA + e), f2u(-math.log(2.0)), v(FA + e)))
        for e in range(8): E(valu('v_mul_f32', v(FA + e), v(FA + e), v(T + e)))
        if i == 0: E(waitvm(ex if ni == 1 else 0))
        for q in range(4):
            E(valu('v_lshlrev_b32', v(T + 2 * q), 16, v(XR + q))); E(valu('v_and_b32', v(T + 2 * q + 1), sT3, v(XR + q)))
        for e in range(8): E(valu('v_fma_f32', v(T + e), v(SA + e), v(FA + e), v(T + e)))
        for q in range(4): E(valu('v_cvt_pk_bf16_f32', v(XR + q), v(T + 2 * q), v(T + 2 * q + 1)))
        if i: E(add(sXO_, sXO_, 32 * 1152))
        E(bstore('buffer_store_dwordx2', v(XR, 2), vXO_, srdO, sXO_)); E(bstore('buffer_store_dwordx2', v(XR + 2, 2), vXO_, srdO, sXO_, 32))

def build_role(kind, vm_before):
    R = Role(kind)
    CFG['shape'] = CFG.get('shapes', {}).get(kind, CFG['shape0'])
    R.ring = {'F': (216, 9), 'A': (192, 16), 'M': (200, 8)}[kind]
    if kind == 'M': R.depth = 7
    nl = CFG.get('pfl', 16)
    MS = CFG['shape'] == 'M'
    if MS:
        R.add_p1_unit, R.add_p1_half, R.epi_silu, R.epi_q = R.add_p1_unitM, R.add_p1_halfM, R.epi_siluM, R.epi_qM
    P2M = 'q16' if MS else 'pi'
    if kind == 'F' and CFG.get('l844'):
        R.ring = (208, 12); R.depth = 7
        for u in range(13): R.add_p1_unit(u, sW1, sHA, sHC, 9216, u == 0, a(16 * u, 16), R.epi_silu, last=(u == 12),
                                          inreg=[pf_run(sW2, sPF2, 832 * 1152, 10) if u >= 1 else None, pf_row('F', sW1)])
        needs = {t: [('reg', 8 * t)] for t in range(26)}
        dm = [dma_w(sW2, sFA, 0, 1152, sFC, 0), dma_w(sW2, sFA, 288 * 1152, 1152, sFC, 288 * 1152), dma_w(sW2, sFA, 576 * 1152, 1152)]
        R.add_p2([(a(0, 208), [288, 288, 256], dm, needs, sSt)], [add(x, x, 128) for x in (sFA, sFC)], pre0=lambda: set_offw(1152, P2M))
        for st in R.stages[-27:]: st.ring = (208, 12, 'restart')
    elif kind == 'M' and CFG.get('l844'):
        R.ring = (208, 8); R.depth = 7
        Q = [a(80, 32), a(112, 32)]; OA = a(144, 64)
        def mpf(u):
            if u == 0: return pf_row('M', sWQ)
            if u == 1: return lambda: pf_row_setup('M', 9216, 18, sPF1, 0) + [pf_row('M', sW1)()[1]]
            if u <= 5: return pf_row('M', sW1)
            return None
        for u in range(4): R.add_p1_unit(u, sWQ, sQA, sQC, 8192, u == 0, a(80 + 16 * u, 16), R.epi_q, key='Q', inreg=[None, mpf(u)])
        for u in range(5): R.add_p1_unit(4 + u, sW1, sHA, sHC, 9216, u == 0, a(16 * u, 16), R.epi_silu, pre=(lambda: set_offw(9216, 'S')) if u == 0 else None,
                                         last=(u == 4), key='H', inreg=[None, mpf(4 + u)])
        Ha = dict(i=0, Q=Q[0], S=Sreg, P=Preg, O=OA, LM=v(230, 8), OF=lambda kk: OA.sub(16 * kk, 8),
                  need_qk=[('acc', 80), ('acc', 96)], need_pv=[('acc', 48 + 16 * i) for i in range(4)])
        Hb = dict(i=1, Q=Q[1], S=[v(80, 16), v(96, 16)], P=[v(48, 8), v(56, 8)], O=v(160, 64), LM=v(64, 8), OF=lambda kk: OA.sub(16 * kk + 8, 8))
        R.add_pa_g([[Ha, Hb]])
        R.stages[-9].mf[-1].need.append(('acc', 48))
        R.heads = [(Ha, sPFa), (Hb, sPFa)]
        R.add_p2m(a(0, 80), [H['OF'](kk) for H in (Ha, Hb) for kk in range(4)],
                  [dma_w(sW2, sFA, 0, 1152, sFC, 0), dma_w(sWO, sOA, 0, 1152, sFC, 32 * 1152, srdC=sW2)],
                  [add(x, x, 128) for x in (sOA, sFA, sFC)], pre0=lambda: set_offw(1152, P2M))
        for st in R.stages[-18:]: st.ring = (208, 12, 'restart')
        k = pf_sched(R, 15, sK, sPFa, 131072, 16); k = pf_sched(R, k, sV, sPFa, 131072, 16)
        pf_sched(R, 17, sWO, sPFc, 256 * 1152, 36); pf_sched(R, 18, sW2, sPF2, 320 * 1152, 45)
    elif kind == 'F':
        for u in range(13): R.add_p1_unit(u, sW1, sHA, sHC, 9216, u == 0, a(16 * u, 16), R.epi_silu, last=(u == 12), inreg=[pf_run(sW2, sPF2, 832 * 1152, 10) if u >= 1 else None, pf_row('F', sW1) if CFG['pf'] >= 3 else None] if CFG['pf'] else None)
        R.add_p1_half(13, a(208, 8))
        needs = {t: [('reg', 8 * t)] for t in range(27)}
        dm = [dma_w(sW2, sFA, 0, 1152, sFC, 0), dma_w(sW2, sFA, 288 * 1152, 1152, sFC, 288 * 1152), dma_w(sW2, sFA, 576 * 1152, 1152, sFS, 0)]
        R.add_p2([(a(0, 216), [288, 288, 288], dm, needs, sSt)], [add(x, x, 128) for x in (sFA, sFC, sFS)], pre0=lambda: set_offw(1152, P2M))
        if CFG['pf']:
            pf_sched(R, 26, sW2, sPF2h, 32 * 1152, 8)
    elif kind == 'A' and CFG.get('pair'):
        OA = a(96, 64)
        Ha = dict(i=0, Q=a(0, 32), S=Sreg, P=Preg, O=OA, LM=v(230, 8), OF=lambda kk: OA.sub(16 * kk, 8),
                  need_qk=[('acc', 48), ('acc', 64)], need_pv=[('acc', 48 + 16 * i) for i in range(4)])
        Hb = dict(i=1, Q=a(32, 32), S=[v(48, 16), v(64, 16)], P=[v(80, 8), v(88, 8)], O=v(160, 64), LM=v(96, 8), OF=lambda kk: OA.sub(16 * kk + 8, 8))
        Hc = dict(i=2, Q=a(64, 32), S=Sreg, P=Preg, O=v(48, 64), LM=v(16, 8), OF=lambda kk: a(160 + 8 * kk, 8), need_pv=[('lm', 0)])
        Ha['need_qk'] += [('acc', 80)]
        pj = {1: sJQ}
        for u in range(6):
            R.add_p1_unit(u, sWQ, sQA, sQC, 8192, u == 0, a(16 * u, 16), R.epi_q, last=(u == 5), step=sJQ if u == 4 else 128,
                          inreg=[pf_run(sWO, sPFc, 384 * 1152, 11) if u >= 1 else None, pf_row('A', sWQ, pj.get(u, 128)) if CFG['pf'] >= 3 and u < 3 else None] if CFG['pf'] else None)
        R.add_pa_g([[Ha, Hb], [Hc]])
        Bf = [H['OF'](kk) for H in (Ha, Hb, Hc) for kk in range(4)]
        needs = {0: [('fin', 0), ('fin', 1)], 8: [('fin', 2)]}
        dm = [dma_w192(sWO, 0), dma_w192(sWO, 0, sOA1, sOB1)]
        R.add_p2([(Bf, [192, 192], dm, needs, sSt)], [add(x, x, 128) for x in (sOA, sOB, sOA1, sOB1)], pre0=lambda: set_offw(1152, P2M))
        R.heads = [(Ha, sPFa), (Hb, sPFa), (Hc, sPFb)]
        if CFG['pf'] >= 2:
            pf_sched(R, 10, sK, sPFa, 131072, 16); pf_sched(R, 10, sV, sPFa, 131072, 16)
            pf_sched(R, 12, sK, sPFb, 131072, 16); pf_sched(R, 12, sV, sPFb, 131072, 16)
    elif kind == 'A':
        Q = [a(32 * e, 32) for e in range(3)]; O = [a(96 + 32 * e, 32) for e in range(3)]
        for u in range(6): R.add_p1_unit(u, sWQ, sQA, sQC, 8192, u == 0, a(16 * u, 16), R.epi_q, last=(u == 5), inreg=[pf_run(sWO, sPFc, 384 * 1152, 11) if u >= 1 else None, pf_row('A', sWQ) if CFG['pf'] >= 3 and u < 5 else None] if CFG['pf'] else None)
        R.add_pa(Q, O)
        needs = {4 * e: [('fin', e)] for e in range(3)}; needs[0].append(('S', 2, 15))
        dm = [dma_w192(sWO, b * 192 * 1152) for b in range(2)]
        R.add_p2([(a(96, 96), [192, 192], dm, needs, sSt)], [add(sOA, sOA, 128), add(sOB, sOB, 128)], pre0=lambda: set_offw(1152, P2M))
        if CFG['pf']:
            if CFG['pf'] >= 2:
                pf_sched(R, 10, sK, sPFa, 131072, 16); pf_sched(R, 10, sV, sPFa, 131072, 16)
                pf_sched(R, 12, sK, sPFb, 131072, 16); pf_sched(R, 12, sV, sPFb, 131072, 16)
    else:
        Q = [a(136 + 32 * e, 32) for e in range(2)]; O = [a(72 + 32 * e, 32) for e in range(2)]
        def mpf(u):
            if u == 0: return pf_row('M', sWQ)
            if u == 1: return lambda: pf_row_setup('M', 9216, 18, sPF1, 0) + [pf_row('M', sW1)()[1]]
            if u <= 4: return pf_row('M', sW1)
            if u == 5: return lambda: [smov(sPW, sPF1h), pf_row('M', sW1)()[1]]
            return None
        for u in range(4): R.add_p1_unit(u, sWQ, sQA, sQC, 8192, u == 0, a(136 + 16 * u, 16), R.epi_q, key='Q', inreg=[None, mpf(u)] if CFG['pf'] >= 3 else None)
        for u in range(4): R.add_p1_unit(4 + u, sW1, sHA, sHC, 9216, u == 0, a(16 * u, 16), R.epi_silu, pre=(lambda: set_offw(9216, 'M' if MS else 'S')) if u == 0 else None, last=(u == 3), key='H', inreg=[None, mpf(4 + u)] if CFG['pf'] >= 3 else None)
        R.add_p1_half(8, a(64, 8))
        BO = a(72, 64)
        if CFG.get('pair'):
            Ha = dict(i=0, Q=Q[0], S=Sreg, P=Preg, O=BO, LM=v(230, 8), OF=lambda kk: BO_.sub(16 * kk, 8),
                      need_qk=[('acc', 48 + 16 * i) for i in range(3)], need_pv=[('acc', 48 + 16 * i) for i in range(4)])
            Hb = dict(i=1, Q=Q[1], S=[v(64, 16), v(48, 16)], P=[v(80, 8), v(88, 8)], O=v(160, 64), LM=v(96, 8), OF=lambda kk: BO_.sub(16 * kk + 8, 8))
            BO_ = BO
            if CFG.get('mfree', 0):
                Hb['S'] = [v(64, 16), v(238, 16)]; Ha['need_qk'] = [('acc', 64), ('acc', 80)]; Ha['need_pv'] = [('acc', 96)]
                R.ntmp = 12; R.ones = v(28, 4)
                for st_, idx in ((R.stages[-2], -1), (R.stages[-1], -1)):
                    m_ = st_.mf[idx]; f_ = m_.after
                    m_.after = (lambda G, f_=f_: (setattr(R, 'low', True), f_(G), setattr(R, 'low', False)))
            R.add_pa_g([[Ha, Hb]])
            BO = [H['OF'](kk) for H in (Ha, Hb) for kk in range(4)]
            R.heads = [(Ha, sPFa), (Hb, sPFa)]
        else: R.add_pa(Q, O)
        nf = {t: [('reg', 8 * t)] for t in range(9)}; nf[0].append(('S', 1, 15))
        R.add_p2([(a(0, 72), [288], [dma_w(sW2, sFA, 0, 1152, sFS, 0)], nf, sSt2),
                  (BO, [256], [dma_w(sWO, sOA, 0, 1152)], {0: [('fin', 0)], 4: [('fin', 1)]}, sSt)],
                 [add(x, x, 128) for x in (sOA, sFA, sFS)], pre0=lambda: set_offw(1152, P2M))
        for st in R.stages[-18:]: st.ring = (200, 14, 'restart')
        if CFG['pf']:
            if CFG['pf'] >= 2:
                k = pf_sched(R, 14, sK, sPFa, 131072, 16); k = pf_sched(R, k, sV, sPFa, 131072, 16)
            pf_sched(R, 16, sWO, sPFc, 256 * 1152, 36); pf_sched(R, 23 if not CFG.get('pair') else 17, sW2, sPF2, 256 * 1152, 36); pf_sched(R, 24 if not CFG.get('pair') else 17, sW2, sPF2h, 32 * 1152, 8)
    if CFG.get('msum') and not MS and kind in 'AM':
        st0 = [st for st in R.stages if st.name == 'PAh0s0'][0]
        m0_ = st0.mf[8]
        if not hasattr(R, 'ones'): m0_.need += [('acc', 48 + 16 * i) for i in range(4)]
        m0_.pre = lambda: R.p.emit([valu('v_mov_b32', getattr(R, 'ones', vONES)[i], 0x3f803f80) for i in range(4)])
    if CFG.get('recode') and CFG['fused']:
        names = [st.name for st in R.stages]
        nS = len(names)
        R.pf.setdefault(nS - 2, []).append(pf_code(f"L_{kind}_red", f"L_role{kind}_end", 4))
        p2 = names.index('P2c0b0')
        R.stages[p2].label = f"L_{kind}_p2"
        R.pf.setdefault(p2 - 2, []).append(pf_code(f"L_{kind}_p2", f"L_{kind}_p2+20480", 5))
        if kind in 'AM':
            pa = names.index('PAmini'); R.stages[pa].label = f"L_{kind}_pa"
            R.pf.setdefault(pa - 1, []).append(pf_code(f"L_{kind}_pa", f"L_{kind}_p2", 8))
    if CFG.get('hot') and CFG['fused'] and kind in CFG['hot']:
        names = [st.name for st in R.stages]
        last = names.index('P2c8b0'); R.stages[last].label = f"L_{kind}_c8"
        def setup():
            o = [raw(f"s_getpc_b64 {sPC}", 'salu', wr=[sPC]), label(f"L_{kind}_hp"),
                 salu('s_add_u32', sPC[0], sPC[0], f"L_{kind}_c8-L_{kind}_hp"), salu('s_addc_u32', sPC[1], sPC[1], 0, scc_r=True),
                 valu('v_bfe_u32', vPF2, vTID, 16, 5), valu('v_and_b32', vPF, 63, vTID), valu('v_min_u32', vPF, 1, vPF),
                 valu('v_lshl_add_u32', vPF, vPF2, 1, vPF), valu('v_lshlrev_b32', vPF, 7, vPF)]
            if kind == 'F': o += pf_row_setup(kind, 1152, 26, sPF2, 2 * 128)
            return o
        def rep_code():
            return [I(f"global_load_dword {vDUM}, {vPF}, {sPC}", 'vload', wr=vDUM.regs(), rd=vPF.regs() + sPC.regs(), units=3, tag='pf')]
        R.pf.setdefault(names.index('P2c1b0'), []).append(setup)
        for c in range(2, 8):
            k0 = names.index(f'P2c{c}b0')
            R.pf.setdefault(k0, []).append(rep_code)
            if kind == 'F': R.pf.setdefault(k0 + 1, []).append(pf_row(kind, sW2))
    R.slow = []
    if kind in 'AM' and CFG.get('slow', True) and CFG.get('pair'):
        P2s = [st for st in R.stages if st.name.startswith('P2c0')]
        hl = [(H['i'], H['Q'], (H['OF'], kv)) for (H, kv) in R.heads]
        if kind == 'A':
            P2s[0].mf[0].pre = slow_check(R, hl[:2], (112, 160))
            [m for m in P2s[1].mf if ('fin', 2) in m.need][0].pre = slow_check(R, hl[2:], (160, 48))
        else:
            m_ = P2s[1].mf[4 if CFG.get('l844') else 0]
            m_.need += [('fin', 0), ('fin', 1)]
            m_.pre = slow_check(R, hl, (160, 48))
    elif kind in 'AM' and CFG.get('slow', True):
        P2s = [st for st in R.stages if st.name.startswith('P2c0')]
        if kind == 'A':
            P2s[0].mf[0].need += [('fin', 1)]
            P2s[0].mf[0].pre = slow_check(R, [(0, Q[0], O[0]), (1, Q[1], O[1])], 112)
            m_ = [m for m in P2s[1].mf if ('fin', 2) in m.need][0]
            m_.pre = slow_check(R, [(2, Q[2], O[2])], 160)
        else:
            P2s[1].mf[0].need += [('fin', 1)]
            P2s[1].mf[0].pre = slow_check(R, [(0, Q[0], O[0]), (1, Q[1], O[1])], 160)
    if CFG['fused']:
        add_signals(R)
        def early0():
            it = red_setup(kind) + red_poll()[0]
            it[-1].tag = 'cnt'
            return it
        def early():
            assert R.cnt_covered()
            PRIV[0] = (kind == 'A')
            it = red_poll()[1]
            it[-1].tag = 'poll'
            return it
        def covered():
            idx = max(i for i, x in enumerate(R.p.ins) if x.tag == 'cnt'); n = 0
            for x in R.p.ins[idx + 1:]:
                if x.kind in VMEMK: n += 1
                if x.txt.startswith('s_waitcnt vmcnt(') and int(x.txt[16:-1]) <= n: return True
            return False
        R.cnt_covered = covered
        if kind == 'A' and CFG.get('l2pf'):
            nm = [st.name for st in R.stages]
            R.pf.setdefault(nm.index('P2c1b0'), []).append(l2pf_setup)
            for (cw, dlt) in CFG['l2pf']:
                kp = nm.index(f'P2c{cw}b0')
                for j in range(4): R.pf.setdefault(kp, []).append(lambda j=j: l2pf_poll()[j])
                R.stages[kp + 2].cover_tag = 'gp'
                def gate(j, dlt=dlt):
                    def f():
                        it = l2pf_issue(R, dlt)[j]
                        if j == 0:
                            it = it + [valu('v_readfirstlane_b32', sOK, vD), salu('s_cmp_ge_u32', None, sOK, 16), csel(sC, sC, 15)]
                        return it
                    return f
                for j in range(4): R.pf.setdefault(kp + 2, []).append(gate(j))
        R.pf.setdefault([st.name for st in R.stages].index('P2c1b0' if kind == 'F' else 'P2c0b1'), []).append(early0)
        if kind in CFG.get('pre', ''):
            R.pf.setdefault(len(R.stages) - 3, []).append(early)
            R.stages[-1].pre_bar = lambda: red_early(R.p, kind)
        else: R.pf.setdefault(len(R.stages) - CFG.get('pollw', 1), []).append(early)
    role_prologue(R, vm_before)
    R.run()
    if CFG['fused']:
        p = R.p
        if kind not in CFG.get('pre', ''): red_early(p, kind)
        if kind in CFG.get('pre', ''): pass
        elif kind in CFG.get('lateflag', 'A'): p.emit(barrier())
        else:
            p.emit(waitvm(0)); p.emit(barrier())
            p.emit(valu('v_mov_b32', vPRG, 9))
            if CFG.get('rep'): p.emit(bstore('buffer_store_dword', vPRG, vCR, sWS, 0, flags='sc1'))
            p.emit(bstore('buffer_store_dword', vPRG, vCT, sWS, 0, flags='sc1'))
        if CFG['stamps']: R.stamp(len(R.stages) - 1)
        p.emit(raw(f"s_call_b64 {sRET}, L_{kind}_red"))
    if CFG['stamps']:
        p = R.p
        R.stamp(len(R.stages))
        p.emit(raw("s_memrealtime s[98:99]", wr=[s(98, 2)])); p.emit(raw("s_waitcnt lgkmcnt(0)"))
        p.emit(raw(f"v_writelane_b32 {vSTAMP}, s98, 63", 'valu', wr=[vSTAMP], rd=[s(98)]))
        if CFG.get('dbgstat'):
            n = len(R.stages)
            lanes = {'F': [0, 27, n - 1, n], 'A': [0, 37, n - 1, n], 'M': [0, 34, n - 1, n]}[kind]
            slots = {'F': [1, 2, 3, 5], 'A': [10, 11, 13, 14], 'M': [15, 15, 15, 15]}[kind]
            p.emit([valu('v_mov_b32', v(4), 256), valu('v_mov_b32', v(5), 0)])
            for i, (ln, sl) in enumerate(zip(lanes, slots)):
                p.emit(raw(f"v_readlane_b32 s92, {vSTAMP}, {ln}", 'rdl', wr=[sT2], rd=[vSTAMP])); p.emit(nop(3))
                p.emit(raw(f"v_writelane_b32 v5, s92, {i}", 'valu', wr=[v(5)], rd=[sT2])); p.emit(raw(f"v_writelane_b32 v4, {4 * sl}, {i}", 'valu', wr=[v(4)]))
            p.emit(raw(f"v_writelane_b32 v5, s98, 4", 'valu', wr=[v(5)], rd=[s(98)])); p.emit(raw(f"v_writelane_b32 v4, 28, 4", 'valu', wr=[v(4)]))
            p.emit(salu('s_not_b32', sT2, s(43))); p.emit(raw(f"v_writelane_b32 v5, s92, 5", 'valu', wr=[v(5)], rd=[sT2])); p.emit(raw(f"v_writelane_b32 v4, 36, 5", 'valu', wr=[v(4)]))
            p.emit(salu('s_sub_u32', sT2, s(98), s(43))); p.emit(raw(f"v_writelane_b32 v5, s92, 6", 'valu', wr=[v(5)], rd=[sT2])); p.emit(raw(f"v_writelane_b32 v4, 24, 6", 'valu', wr=[v(4)]))
            p.emit([salu('s_cmp_eq_u32', None, sRB, 9), csel(sT2, 0, sRB), salu('s_or_b32', sT2, sT2, sWAVE), salu('s_cmp_eq_u32', None, sT2, 0), csel(sT2, 0, 256),
                    valu('v_add_u32', v(4), sT2, v(4))])
            p.emit(I(f"buffer_atomic_umax v5, v4, {sDBG}, 0 offen sc1", 'vstore', rd=vr(4, 2) + sDBG.regs(), units=3))
        p.emit([shl(sT2, s(2), 2), add(sT2, sT2, sWAVE), shl(sT2, sT2, 8), add(sT2, sT2, STAMP_OFF),
                valu('v_lshrrev_b32', v(42), 2, vLANE16), bstore('buffer_store_dword', vSTAMP, v(42), sWS, sT2)])
    R.p.emit(raw("s_endpgm"))
    return R

def fold(ins, name):
    idx = [i for i, x in enumerate(ins) if x.tag == 'mark']
    def body(a_, b_): return [x.txt for x in ins[a_:b_] if x.kind != 'label']
    out = []; pos = 0; k = 0; nl = 0
    while k + 1 < len(idx):
        b0 = body(idx[k], idx[k + 1]); n = 1
        while k + n + 1 < len(idx) and body(idx[k + n], idx[k + n + 1]) == b0: n += 1
        if n >= 2:
            out += ins[pos:idx[k]]
            L = f"L_{name}_loop{nl}"; nl += 1
            out.append(smov(sLC, n)); out.append(I(".p2align 3", 'label')); out.append(label(L))
            out += ins[idx[k]:idx[k + 1]]
            out += [salu('s_sub_u32', sLC, sLC, 1), salu('s_cmp_lg_u32', None, sLC, 0), raw(f"s_cbranch_scc1 {L}")]
            pos = idx[k + n]; k += n
        else: k += 1
    out += ins[pos:]
    return out

def fold_regions(ins, name):
    regs = []; i = 0
    beg = None
    for i, x in enumerate(ins):
        if isinstance(x.tag, tuple) and x.tag and x.tag[0] == 'region':
            if x.tag[1] == 'begin': beg = (i, x.tag[2])
            elif beg: regs.append((beg[0], i, beg[1])); beg = None
    groups = {}
    for (a_, b_, key) in regs:
        groups.setdefault(tuple(x.txt for x in ins[a_:b_] if x.kind != 'label'), []).append((a_, b_))
    out = []; subs = []; repl = {}
    n = 0
    for body, lst in groups.items():
        if len(lst) >= 2:
            L = f"L_{name}_sub{n}"; n += 1
            a_, b_ = lst[0]
            subs += [I(".p2align 6", 'label'), label(L)] + ins[a_:b_] + [raw(f"s_setpc_b64 {sRET}")]
            for (a_, b_) in lst: repl[a_] = (b_, L)
    i = 0
    while i < len(ins):
        if i in repl:
            b_, L = repl[i]; out.append(raw(f"s_call_b64 {sRET}, {L}")); i = b_
        else:
            out.append(ins[i]); i += 1
    print(f"  regions: {[len(l) for l in groups.values()]}", file=sys.stderr)
    return out + subs

def reduce_body(p, sPART, sXO, srdP, srdX, srdO, vL16, vXO, base, flags, mid=None):
    E = p.emit
    L = base; XR = base + 68; SA = base + 72; FA = base + 80; T = base + 88
    for k in range(NPART):
        if k: E(add(sPART, sPART, 16 * PART))
        E(bload('buffer_load_dwordx4', v(L + 4 * k, 4), vL16, srdP, sPART, flags=flags))
    E(bload('buffer_load_dwordx2', v(XR, 2), vXO, srdX, sXO)); E(bload('buffer_load_dwordx2', v(XR + 2, 2), vXO, srdX, sXO, 32))
    ex = 0
    if mid: E(mid()); ex = 1
    E(smov(sT3, 0xffff0000))
    for k in range(NPART):
        E(waitvm(NPART + 1 - k + ex))
        acc = SA if k < 11 else FA
        for q in range(4):
            x = v(L + 4 * k + q)
            if k in (0, 11):
                E(valu('v_lshlrev_b32', v(acc + 2 * q), 16, x)); E(valu('v_and_b32', v(acc + 2 * q + 1), sT3, x))
            else:
                tp = v(T + 2 * q, 2)
                E(valu('v_lshlrev_b32', tp[0], 16, x)); E(valu('v_and_b32', tp[1], sT3, x))
        if k not in (0, 11):
            for q in range(4): E(valu('v_pk_add_f32', v(acc + 2 * q, 2), v(acc + 2 * q, 2), v(T + 2 * q, 2)))
    for e in range(8): E(valu('v_exp_f32', v(T + e), v(FA + e)))
    for e in range(8): E(valu('v_add_f32', v(T + e), 1.0, v(T + e)))
    for e in range(8): E(valu('v_rcp_f32', v(T + e), v(T + e)))
    for e in range(8): E(valu('v_mul_f32', v(FA + e), f2u(-math.log(2.0)), v(FA + e)))
    for e in range(8): E(valu('v_mul_f32', v(FA + e), v(FA + e), v(T + e)))
    E(waitvm(ex))
    for q in range(4):
        E(valu('v_lshlrev_b32', v(T + 2 * q), 16, v(XR + q))); E(valu('v_and_b32', v(T + 2 * q + 1), sT3, v(XR + q)))
    for e in range(8): E(valu('v_fma_f32', v(T + e), v(SA + e), v(FA + e), v(T + e)))
    for q in range(4): E(valu('v_cvt_pk_bf16_f32', v(XR + q), v(T + 2 * q), v(T + 2 * q + 1)))
    E(bstore('buffer_store_dwordx2', v(XR, 2), vXO, srdO, sXO)); E(bstore('buffer_store_dwordx2', v(XR + 2, 2), vXO, srdO, sXO, 32))

def reduce_kernel():
    p = Prog(); E = p.emit
    E(salu('s_cmp_ge_u32', None, s(2), 576)); E(raw("s_cbranch_scc0 L_rgo")); E(raw("s_endpgm")); E(label("L_rgo"))
    E(raw("s_load_dwordx2 s[4:5], s[0:1], 0", wr=[s(4, 2)])); E(raw("s_load_dwordx2 s[6:7], s[0:1], 64", wr=[s(6, 2)])); E(raw("s_load_dwordx2 s[8:9], s[0:1], 80", wr=[s(8, 2)]))
    E(valu('v_lshrrev_b32', v(1), 6, v(0))); E(valu('v_readfirstlane_b32', s(10), v(1)))
    E(shl(s(11), s(2), 2)); E(add(s(11), s(11), s(10)))
    E(salu('s_mul_hi_u32', s(24), s(11), -(-(1 << 32) // 36), scc_w=False))
    E(mul(s(25), s(24), 36)); E(salu('s_sub_u32', s(25), s(11), s(25)))
    E(shl(s(26), s(11), 10))
    E(valu('v_and_b32', v(0), 63, v(0))); E(valu('v_lshlrev_b32', v(1), 4, v(0)))
    E(valu('v_and_b32', v(2), 15, v(0))); E(smov(s(27), 1152)); E(valu('v_mul_u32_u24', v(2), s(27), v(2)))
    E(valu('v_lshrrev_b32', v(3), 4, v(0))); E(valu('v_lshl_add_u32', v(2), v(3), 3, v(2)))
    E(mul(s(28), s(24), 32 * 1152)); E(salu('s_and_b32', s(29), s(25), 1)); E(mul(s(29), s(29), 16 * 1152)); E(add(s(28), s(28), s(29)))
    E(shr(s(25), s(25), 1)); E(shl(s(25), s(25), 6)); E(add(s(28), s(28), s(25)))
    E(raw("s_waitcnt lgkmcnt(0)"))
    srd(p, s(12, 4), 8, WSP_BYTES); srd(p, s(16, 4), 4, 2359296); srd(p, s(20, 4), 6, 2359296)
    reduce_body(p, s(26), s(28), s(12, 4), s(16, 4), s(20, 4), v(1), v(2), 4, CFG.get('rflags', ''))
    E(raw("s_endpgm"))
    return p

def text(ins): return "\n".join((i.txt if i.kind == 'label' else " " + i.txt) for i in ins) + "\n"

def compress(t):
    t = re.sub(r" v_mfma_f32_16x16x32_bf16 v\[(\d+):\d+\], a\[(\d+):\d+\], v\[(\d+):\d+\], v\[\1:\d+\]", r" MV \1,\2,\3", t)
    t = re.sub(r" v_mfma_f32_16x16x32_bf16 v\[(\d+):\d+\], a\[(\d+):\d+\], a\[(\d+):\d+\], v\[\1:\d+\]", r" MA \1,\2,\3", t)
    t = re.sub(r" v_mfma_f32_32x32x16_bf16 v\[(\d+):\d+\], a\[(\d+):\d+\], v\[(\d+):\d+\], v\[\1:\d+\]", r" NV \1,\2,\3", t)
    t = re.sub(r" v_mfma_f32_32x32x16_bf16 v\[(\d+):\d+\], a\[(\d+):\d+\], a\[(\d+):\d+\], v\[\1:\d+\]", r" NA \1,\2,\3", t)
    t = re.sub(r" v_mfma_f32_16x16x32_bf16 a\[(\d+):\d+\], a\[(\d+):\d+\], v\[(\d+):\d+\], a\[\1:\d+\]", r" MC \1,\2,\3", t)
    t = re.sub(r" ds_read_b64_tr_b16 a\[(\d+):\d+\], v(\d+) offset:(\d+)", r" RT \1,\2,\3", t)
    t = re.sub(r" ds_read_b128 a\[(\d+):\d+\], v(\d+) offset:(\d+)", r" RB \1,\2,\3", t)
    t = re.sub(r" v_cvt_pk_bf16_f32 v(\d+), v(\d+), v(\d+)", r" CV \1,\2,\3", t)
    t = re.sub(r" v_accvgpr_write_b32 a(\d+), v(\d+)", r" AW \1,\2", t)
    t = re.sub(r" v_exp_f32 v(\d+), v(\d+)", r" EX \1,\2", t)
    t = re.sub(r" v_add_f32 v(\d+), v(\d+), v(\d+)", r" AD \1,\2,\3", t)
    t = re.sub(r" v_mul_f32 v(\d+), v(\d+), v(\d+)", r" ML \1,\2,\3", t)
    t = re.sub(r" s_waitcnt lgkmcnt\((\d+)\)", r" WL \1", t)
    mac = r""".macro MC d,a,b
 v_mfma_f32_16x16x32_bf16 a[\d:\d+3], a[\a:\a+3], v[\b:\b+3], a[\d:\d+3]
.endm
.macro NV d,a,b
 v_mfma_f32_32x32x16_bf16 v[\d:\d+15], a[\a:\a+3], v[\b:\b+3], v[\d:\d+15]
.endm
.macro NA d,a,b
 v_mfma_f32_32x32x16_bf16 v[\d:\d+15], a[\a:\a+3], a[\b:\b+3], v[\d:\d+15]
.endm
.macro MV d,a,b
 v_mfma_f32_16x16x32_bf16 v[\d:\d+3], a[\a:\a+3], v[\b:\b+3], v[\d:\d+3]
.endm
.macro MA d,a,b
 v_mfma_f32_16x16x32_bf16 v[\d:\d+3], a[\a:\a+3], a[\b:\b+3], v[\d:\d+3]
.endm
.macro RT d,a,o
 ds_read_b64_tr_b16 a[\d:\d+1], v\a offset:\o
.endm
.macro RB d,a,o
 ds_read_b128 a[\d:\d+3], v\a offset:\o
.endm
.macro CV d,a,b
 v_cvt_pk_bf16_f32 v\d, v\a, v\b
.endm
.macro AW d,a
 v_accvgpr_write_b32 a\d, v\a
.endm
.macro EX d,a
 v_exp_f32 v\d, v\a
.endm
.macro AD d,a,b
 v_add_f32 v\d, v\a, v\b
.endm
.macro ML d,a,b
 v_mul_f32 v\d, v\a, v\b
.endm
.macro WL n
 s_waitcnt lgkmcnt(\n)
.endm
"""
    return mac, t

HDR = open('recurrent_scan__sliding_block_cached__dense_activation_silu__prompt.s.ref').read().split('; Override launch')[0]
DOC = """; Generated by my own scheduler scripts (hand-designed instruction streams, hazards padded by the script).
; registers as MFMA B operands (transposed formulation), weights / K / V stream through a 4-slot LDS ring (LDS-DMA).
;   role A (10): layernorm, Q projection, attention for 3 heads (one GQA pair shares K/V fragments), partial of o@wo
; The bf16 partials go to d_ws with write-through stores; progress words (reset per launch, guarded by a counter in
"""
def kd(name, vgpr, acc, sgpr=102):
    return f""".amdhsa_kernel {name}
  .amdhsa_next_free_vgpr {vgpr}
  .amdhsa_next_free_sgpr {sgpr}
  .amdhsa_accum_offset {acc}
  .amdhsa_group_segment_fixed_size 0
  .amdhsa_kernarg_size 88
  .amdhsa_user_sgpr_count 2
  .amdhsa_user_sgpr_kernarg_segment_ptr 1
  .amdhsa_system_sgpr_workgroup_id_x 1
.end_amdhsa_kernel
"""
def est_cycles(ins):
    tot = 0; cur = None; n = 0
    for i in ins:
        if i.kind == 'label': continue
        if i.kind == 'mfma':
            if cur is not None: tot += max(cap, cur)
            cur = 2; n += 1; cap = 8 if len(i.wr) == 16 else 4
        elif cur is not None:
            if i.txt.startswith('s_waitcnt lgkm') and cap == 4: continue
            cur += i.units if not i.txt.startswith('s_nop') else (int(i.txt.split()[1]) + 1) * 0.5
    return tot * 4

def main(out, **kw):
    CFG.update(kw)
    set_layout(CFG.get('l844'))
    if CFG.get('tab'):
        global ROLE_TAB
        ROLE_TAB = CFG['tab']
    CFG['shape0'] = CFG['shape']
    cp = common_prologue()
    if CFG.get('entry', 0):
        if CFG.get('entry', 1) == 1:
            k = next(i for i, x in enumerate(cp.ins) if x.txt == 's_waitcnt lgkmcnt(0)')
            tail = cp.ins[k:]; vmx = list(cp.vm); cp.ins = cp.ins[:k]; cp.vm = []
            common_prologue2(cp); cp.ins += tail; cp.vm += vmx
        else: common_prologue2(cp)
        common_prologue3(cp)
    body = text(cp.ins) + dispatch_text()
    for kind in 'FAM':
        R = build_role(kind, cp.vm)
        ins = fold_regions(fold(R.p.ins, kind), kind) if CFG['fold'] else R.p.ins
        nm = sum(1 for i in R.p.ins if i.kind == 'mfma')
        print(f"role {kind}: stages {len(R.stages)} mfma {nm} instrs {len([i for i in ins if i.kind!='label'])} (unrolled {len([i for i in R.p.ins if i.kind!='label'])}) pad {R.p.npad} forced {R.forced} est {est_cycles(R.p.ins)} ideal {sum(32 if len(i.wr) == 16 else 16 for i in R.p.ins if i.kind == 'mfma')}", file=sys.stderr)
        if CFG.get('abl_pair') and kind in 'AM':
            out_ = []; on = False
            for x in ins:
                if x.kind == 'label' and x.txt.startswith('; PAh'): on = x.txt.startswith('; PAh1')
                if x.kind == 'label' and x.txt.startswith('; P2'): on = False
                if on and (x.kind in ('dma', 'ds') or (x.kind == 'salu' and ('m0' in x.txt or 's70' in x.txt))): continue
                out_.append(x)
            ins = out_
        if CFG.get('abl_half'):
            out_ = []; on = False; cnt = 0
            for x in ins:
                if x.kind == 'label' and x.txt.startswith('; P'): on = x.txt.startswith(('; P1', '; P2'))
                if x.kind == 'label' and x.txt.startswith('; REGION begin'): on = True
                if on and x.kind == 'ds':
                    cnt += 1
                    if (cnt >> 1) & 1: continue
                out_.append(x)
            ins = out_
        ab = CFG.get('ablate', '')
        if ab:
            st0 = next(i for i, x in enumerate(ins) if x.txt.startswith('; P1u1b0'))
            def keep(x):
                if 'd' in ab and x.kind == 'dma': return False
                if 'r' in ab and x.kind == 'ds': return False
                if 'v' in ab and x.kind in ('trans',): return False
                if 'V' in ab and x.kind in ('trans', 'valu', 'perm') and not x.txt.startswith(('v_add_u32', 'v_xor', 'v_writelane', 'v_cmp', 'v_cnd', 'v_mov', 'v_lsh', 'v_mad', 'v_min', 'v_and', 'v_bfe', 'v_mul_u32')): return False
                if 'm' in ab and x.kind == 'mfma': return False
                return True
            ins = ins[:st0] + [x for x in ins[st0:] if keep(x)]
        for sp in R.slow: ins = ins + sp.ins
        if CFG['fused']: ins = ins + reducer(kind).ins
        body += f".p2align 6\nL_role{kind}:\n" + text(ins) + f"L_role{kind}_end:\n"
    rk = reduce_kernel()
    mac, body = compress(body)
    if CFG['fused']:
        t = HDR + "; @launch grid=(256,1,1) block=(256,1,1) lds=163840\n" + DOC
        t += '.amdgcn_target "amdgcn-amd-amdhsa--gfx950"\n' + mac + f".text\n.globl {KN}\n.p2align 8\n.type {KN},@function\n{KN}:\n" + body
        t += '.section .rodata,"a"\n.p2align 6\n' + kd(KN, 512, 256)
        open(out, 'w').write(t); print("size", len(t), file=sys.stderr); return
    t = HDR + f"; @launch kernel={KN} grid=(256,1,1) block=(256,1,1) lds=163840\n; @launch kernel={RN} grid=(576,1,1) block=(256,1,1) lds=0\n"
    t += '.amdgcn_target "amdgcn-amd-amdhsa--gfx950"\n' + mac + f".text\n.globl {KN}\n.p2align 8\n.type {KN},@function\n{KN}:\n" + body
    t += f".globl {RN}\n.p2align 8\n.type {RN},@function\n{RN}:\n" + text(rk.ins)
    t += '.section .rodata,"a"\n.p2align 6\n' + kd(KN, 512, 256) + ".p2align 6\n" + kd(RN, 104, 104, 102)
    open(out, 'w').write(t)
    print("size", len(t), file=sys.stderr)

if __name__ == "__main__":
    kw = eval("dict(" + (sys.argv[2] if len(sys.argv) > 2 else "") + ")")
    main(sys.argv[1], **kw)
```

```python
import sys, re
from s1 import *

ROLE_TAB = [0, 1, 2, 11, 3, 4, 5, 12, 6, 7, 13, 14, 8, 9, 10, 15]
vPFR = v(36)
vPRG = v(36)
PART = 4 * PWAVE
NPART = 17
NA, NM, NS = 10, 1, 11
def set_layout(new):
    global NPART, NA, NM, NS, ROLE_TAB
    if new:
        NPART, NA, NM, NS = 20, 8, 4, 12
        ROLE_TAB = [0, 1, 8, 12, 2, 3, 9, 13, 4, 5, 10, 14, 6, 7, 11, 15]
WSP_BYTES = NPART * 16 * PART
def PSTR(): return 16 * PART + (CFG.get('pskew', 0) if CFG['fused'] else 0)
sJQ, sQ0, sOA1, sOB1 = s(73), s(59), s(74), s(75)
STAMP_OFF = 0x3000000
CTRL = 0x2F00000
OOB = 0x10000000

def srd(p, dst, lo, nbytes):
    p.emit([smov(dst[0], s(lo)), salu('s_and_b32', dst[1], s(lo + 1), 0xffff), smov(dst[2], nbytes), smov(dst[3], 0x20000)])
def xdma(j):
    return [salu('s_add_u32', 'm0', s(6), j * 4096), salu('s_add_u32', sT, s(7), j * 128)] + [dma(v(16 + q), sX, sT, q * 1024, tag=('x', j)) for q in range(4)]
def mul(d, a_, b_): return salu('s_mul_i32', d, a_, b_, scc_w=False)
def add(d, a_, b_): return salu('s_add_u32', d, a_, b_)
def shl(d, a_, b_): return salu('s_lshl_b32', d, a_, b_)
def shr(d, a_, b_): return salu('s_lshr_b32', d, a_, b_)
def csel(d, a_, b_): return salu('s_cselect_b32', d, a_, b_, scc_w=False, scc_r=True)

def common_prologue():
    if CFG.get('entry', 0) == 0: return common_prologue_old()
    assert CFG['xe'] == 9 and CFG.get('map', 4) == 4
    p = Prog(); E = p.emit
    E(raw("s_load_dwordx8 s[40:47], s[0:1], 0", wr=[s(40, 8)]))
    E(salu('s_cmp_ge_u32', None, s(2), 256))
    E(raw("s_cbranch_scc0 L_go")); E(raw("s_endpgm")); E(label("L_go"))
    if CFG['stamps']:
        E(raw(f"s_memtime {sT0}", wr=[sT0])); E(raw("s_memrealtime s[96:97]", wr=[s(96, 2)]))
    E(valu('v_lshrrev_b32', v(1), 6, v(0)))
    E(salu('s_and_b32', s(3), s(2), 1)); E(shl(s(3), s(3), 3))
    E(valu('v_readfirstlane_b32', sWAVE, v(1)))
    E(shr(sRB, s(2), 5)); E(salu('s_or_b32', sRB, sRB, s(3)))
    E(valu('v_and_b32', v(0), 63, v(0)))
    E(valu('v_lshrrev_b32', vROWN, 3, v(0)))
    E(valu('v_and_b32', v(20), 7, v(0))); E(valu('v_lshrrev_b32', v(21), 4, v(0)))
    E(valu('v_xor_b32', v(22), v(20), v(21))); E(valu('v_xor_b32', v(23), 4, v(22)))
    E(salu('s_movk_i32', s(3), 1152, scc_w=False)); E(valu('v_mul_u32_u24', v(24), s(3), vROWN))
    E(valu('v_lshl_add_u32', v(16), v(22), 4, v(24))); E(valu('v_lshl_add_u32', v(17), v(23), 4, v(24)))
    E(valu('v_add_u32', v(17), 8 * 1152 - 1024, v(17)))
    E(valu('v_add_u32', v(18), 2 * (8 * 1152 - 1024), v(16))); E(valu('v_add_u32', v(19), 2 * (8 * 1152 - 1024), v(17)))
    E(mul(s(6), sWAVE, XW)); E(raw("s_lshl2_add_u32 s7, s64, s62", 'salu', wr=[s(7)], rd=[sRB, sWAVE])); E(mul(sT, s(7), 32 * 1152))
    E(smov('m0', s(6))); E(add(s(7), sT, 9 * 128))
    E(smov(sX[2], 2359296)); E(smov(sX[3], 0x20000))
    E(raw("s_waitcnt lgkmcnt(0)"))
    E(smov(sX[0], s(40))); E(salu('s_and_b32', sX[1], s(41), 0xffff))
    E(label("L_xl"))
    n0 = len(p.vm)
    for q in range(4): E(dma(v(16 + q), sX, sT, q * 1024))
    del p.vm[n0:]
    for j in range(9): p.vm += [('x', j)] * 4
    E(add(sT, sT, 128)); E(add('m0', 'm0', 4096)); E(salu('s_cmp_lt_u32', None, sT, s(7))); E(raw("s_cbranch_scc1 L_xl"))
    return p
def common_prologue2(p):
    E = p.emit
    tab = ROLE_TAB
    lo = sum(tab[i] << (4 * i) for i in range(8)); hi = sum(tab[8 + i] << (4 * i) for i in range(8))
    E(salu('s_bfe_u32', s(3), s(2), (2 << 16) | 3)); E(salu('s_bfe_u32', s(4), s(2), (1 << 16) | 1))
    E(shl(s(4), s(4), 2)); E(salu('s_or_b32', s(3), s(3), s(4))); E(shl(s(3), s(3), 2))
    E(salu('s_bitcmp1_b32', None, s(2), 2))
    E(smov(s(4), lo)); E(csel(s(4), hi, s(4)))
    E(shr(s(4), s(4), s(3))); E(salu('s_and_b32', sROLE, s(4), 15))
    E(raw(f"s_getpc_b64 {sPC}", wr=[sPC])); E(label("L_pc"))
    E(smov(s(4), "L_roleA-L_pc")); E(smov(s(5), "L_roleA_end-L_pc-4"))
    E(salu('s_cmp_ge_u32', None, sROLE, NA)); E(csel(s(4), "L_roleM-L_pc", s(4))); E(csel(s(5), "L_roleM_end-L_pc-4", s(5)))
    E(salu('s_cmp_ge_u32', None, sROLE, NA + NM)); E(csel(s(4), "L_roleF-L_pc", s(4))); E(csel(s(5), "L_roleF_end-L_pc-4", s(5)))
    n0 = CFG.get('code0', 16); NL = CFG.get('codelines', 24)
    if n0:
        E(mul(s(3), sWAVE, n0 * 128)); E(add(s(3), s(3), s(4)))
        E(valu('v_min_u32', v(2), n0 - 1, v(0))); E(valu('v_lshlrev_b32', v(2), 7, v(2))); E(valu('v_add_u32', v(2), s(3), v(2)))
        E(I(f"global_load_dword {vDUM}, v2, {sPC}", 'vload', wr=vDUM.regs(), rd=vr(2) + sPC.regs(), tag='pf'))
    E(salu('s_and_b32', s(3), sRB, 7)); E(shl(s(3), s(3), 2)); E(add(s(3), s(3), sWAVE))
    E(mul(s(3), s(3), NL * 128)); E(add(s(3), s(3), s(4)))
    E(valu('v_min_u32', v(2), NL - 1, v(0))); E(valu('v_lshlrev_b32', v(2), 7, v(2))); E(valu('v_add_u32', v(2), s(3), v(2)))
    E(valu('v_min_u32', v(3), s(5), v(2)))
    E(I(f"global_load_dword {vDUM}, v3, {sPC}", 'vload', wr=vDUM.regs(), rd=vr(3) + sPC.regs(), tag='pf'))
def common_prologue3(p):
    E = p.emit
    E(raw("s_load_dwordx2 s[48:49], s[0:1], 32", wr=[s(48, 2)]))
    E(raw("s_load_dwordx8 s[52:59], s[0:1], 48", wr=[s(52, 8)]))
    E(raw("s_load_dwordx2 s[50:51], s[0:1], 80", wr=[s(50, 2)]))
    srd(p, sK, 42, 8388608); srd(p, sV, 44, 8388608); srd(p, sWQ, 46, 4718592)
    E(mul(sW8704, sWAVE, 8 * PP)); E(mul(sWC, sWAVE, PP)); E(add(sWC, sWC, 32 * PP))
    E(shl(sW8192, sWAVE, 13)); E(shl(sWCH, sWAVE, 10)); E(add(sWCH, sWCH, 32768))
    E(mul(sW2176, sWAVE, 2 * PP)); E(mul(sW4352, sWAVE, 4 * PP)); E(add(sWA2, sW2176, 16 * PP))
    E(raw("s_waitcnt lgkmcnt(0)"))
    srd(p, sWO, 48, 4718592)
    srd(p, sW1, 52, 5308416); srd(p, sW2, 54, 5308416); srd(p, sWS, 50, 0x10000000 if (CFG['stamps'] or CFG['fused']) else WSP_BYTES)
    srd(p, sOUT, 56, 2359296); srd(p, sDBG, 58, 256)

def common_prologue_old():
    p = Prog(); E = p.emit
    E(salu('s_cmp_ge_u32', None, s(2), 256))
    E(raw("s_cbranch_scc0 L_go")); E(raw("s_endpgm")); E(label("L_go"))
    E(raw("s_load_dwordx8 s[40:47], s[0:1], 0", wr=[s(40, 8)]))
    E(raw("s_load_dwordx2 s[48:49], s[0:1], 32", wr=[s(48, 2)]))
    E(raw("s_load_dwordx8 s[52:59], s[0:1], 48", wr=[s(52, 8)]))
    E(raw("s_load_dwordx2 s[50:51], s[0:1], 80", wr=[s(50, 2)]))
    if CFG['stamps']:
        E(raw(f"s_memtime {sT0}", wr=[sT0])); E(raw("s_memrealtime s[96:97]", wr=[s(96, 2)]))
    tab = ROLE_TAB
    if CFG.get('map', 4) == 41:
        t4 = CFG.get('t41', [11, 0, 1, 2, 12, 3, 4, 5, 13, 14, 6, 7, 15, 10, 8, 9])
        lo = sum(t4[i] << (4 * i) for i in range(8)); hi = sum(t4[8 + i] << (4 * i) for i in range(8))
        E(shr(s(3), s(2), 6)); E(salu('s_bfe_u32', s(4), s(2), (1 << 16) | 1))
        E(shl(s(4), s(4), 2)); E(salu('s_or_b32', s(3), s(3), s(4))); E(shl(s(3), s(3), 2))
        E(salu('s_bitcmp1_b32', None, s(2), 2)); E(smov(s(4), lo)); E(csel(s(4), hi, s(4)))
        E(shr(s(4), s(4), s(3))); E(salu('s_and_b32', sROLE, s(4), 15))
        E(salu('s_and_b32', s(3), s(2), 1)); E(shl(s(3), s(3), 3))
        E(salu('s_bfe_u32', sRB, s(2), (3 << 16) | 3)); E(salu('s_or_b32', sRB, sRB, s(3)))
    elif CFG.get('map', 4) == 8:
        t8 = [0, 1, 2, 3, 4, 10, 11, 12, 5, 6, 7, 8, 9, 13, 14, 15]
        lo = sum(t8[i] << (4 * i) for i in range(8)); hi = sum(t8[8 + i] << (4 * i) for i in range(8))
        E(salu('s_bfe_u32', s(3), s(2), (3 << 16) | 3)); E(shl(s(3), s(3), 2))
        E(salu('s_bitcmp1_b32', None, s(2), 2)); E(smov(s(4), lo)); E(csel(s(4), hi, s(4)))
        E(shr(s(4), s(4), s(3))); E(salu('s_and_b32', sROLE, s(4), 15))
        E(salu('s_and_b32', s(3), s(2), 1)); E(shl(s(3), s(3), 3)); E(salu('s_and_b32', s(4), s(2), 2)); E(shl(s(4), s(4), 1))
        E(shr(sRB, s(2), 6)); E(salu('s_or_b32', sRB, sRB, s(3))); E(salu('s_or_b32', sRB, sRB, s(4)))
    elif CFG.get('map', 4) == 2:
        t2 = [0, 1, 2, 3, 4, 11, 5, 12, 6, 13, 7, 14, 8, 15, 9, 10]
        lo = sum(t2[i] << (4 * i) for i in range(8)); hi = sum(t2[8 + i] << (4 * i) for i in range(8))
        E(salu('s_bfe_u32', s(3), s(2), (1 << 16) | 3)); E(salu('s_and_b32', s(4), s(2), 3)); E(shl(s(4), s(4), 1)); E(salu('s_or_b32', s(3), s(3), s(4))); E(shl(s(3), s(3), 2))
        E(salu('s_bitcmp1_b32', None, s(2), 2)); E(smov(s(4), lo)); E(csel(s(4), hi, s(4)))
        E(shr(s(4), s(4), s(3))); E(salu('s_and_b32', sROLE, s(4), 15)); E(shr(sRB, s(2), 4))
    else:
        lo = sum(tab[i] << (4 * i) for i in range(8)); hi = sum(tab[8 + i] << (4 * i) for i in range(8))
        E(salu('s_bfe_u32', s(3), s(2), (2 << 16) | 3)); E(salu('s_bfe_u32', s(4), s(2), (1 << 16) | 1))
        E(shl(s(4), s(4), 2)); E(salu('s_or_b32', s(3), s(3), s(4))); E(shl(s(3), s(3), 2))
        E(salu('s_bitcmp1_b32', None, s(2), 2))
        E(smov(s(4), lo)); E(csel(s(4), hi, s(4)))
        E(shr(s(4), s(4), s(3))); E(salu('s_and_b32', sROLE, s(4), 15))
        E(salu('s_and_b32', s(3), s(2), 1)); E(shl(s(3), s(3), 3))
        E(shr(sRB, s(2), 5)); E(salu('s_or_b32', sRB, sRB, s(3)))
    E(valu('v_lshrrev_b32', v(1), 6, v(0)))
    E(valu('v_readfirstlane_b32', sWAVE, v(1)))
    E(valu('v_and_b32', v(0), 63, v(0)))
    E(valu('v_lshrrev_b32', vROWN, 3, v(0)))
    E(valu('v_and_b32', v(20), 7, v(0))); E(valu('v_lshrrev_b32', v(21), 4, v(0)))
    E(valu('v_xor_b32', v(22), v(20), v(21))); E(valu('v_xor_b32', v(23), 4, v(22)))
    E(smov(s(3), 1152)); E(valu('v_mul_u32_u24', v(24), s(3), vROWN))
    E(valu('v_lshl_add_u32', v(16), v(22), 4, v(24))); E(valu('v_lshl_add_u32', v(17), v(23), 4, v(24)))
    E(valu('v_add_u32', v(17), 8 * 1152 - 1024, v(17)))
    E(valu('v_add_u32', v(18), 2 * (8 * 1152 - 1024), v(16))); E(valu('v_add_u32', v(19), 2 * (8 * 1152 - 1024), v(17)))
    E(mul(s(6), sWAVE, XW))
    E(shl(s(7), sRB, 2)); E(add(s(7), s(7), sWAVE)); E(mul(s(7), s(7), 32 * 1152))
    E(raw(f"s_getpc_b64 {sPC}", wr=[sPC])); E(label("L_pc"))
    E(smov(s(4), "L_roleA-L_pc")); E(smov(s(5), "L_roleA_end-L_pc-4"))
    E(salu('s_cmp_ge_u32', None, sROLE, NA)); E(csel(s(4), "L_roleM-L_pc", s(4))); E(csel(s(5), "L_roleM_end-L_pc-4", s(5)))
    E(salu('s_cmp_ge_u32', None, sROLE, NA + NM)); E(csel(s(4), "L_roleF-L_pc", s(4))); E(csel(s(5), "L_roleF_end-L_pc-4", s(5)))
    def code_pf():
        NL = CFG.get('codelines', 24)
        E(salu('s_and_b32', s(3), sRB, 7)); E(shl(s(3), s(3), 2)); E(add(s(3), s(3), sWAVE))
        E(mul(s(3), s(3), NL * 128)); E(add(s(3), s(3), s(4)))
        E(valu('v_min_u32', v(2), NL - 1, v(0))); E(valu('v_lshlrev_b32', v(2), 7, v(2))); E(valu('v_add_u32', v(2), s(3), v(2)))
        E(valu('v_min_u32', v(3), s(5), v(2)))
        E(I(f"global_load_dword {vDUM}, v3, {sPC}", 'vload', wr=vDUM.regs(), rd=vr(3) + sPC.regs(), tag='pf'))
    if CFG.get('codepf', 3) >= 3:
        n0 = CFG.get('code0', 16)
        if n0:
            E(mul(s(3), sWAVE, n0 * 128)); E(add(s(3), s(3), s(4)))
            E(valu('v_min_u32', v(2), n0 - 1, v(0))); E(valu('v_lshlrev_b32', v(2), 7, v(2))); E(valu('v_add_u32', v(2), s(3), v(2)))
            E(I(f"global_load_dword {vDUM}, v2, {sPC}", 'vload', wr=vDUM.regs(), rd=vr(2) + sPC.regs(), tag='pf'))
        code_pf()
    E(raw("s_waitcnt lgkmcnt(0)"))
    srd(p, sX, 40, 2359296)
    if CFG.get('xt'):
        nch = CFG['xt']
        E(salu('s_bfe_u32', s(3), s(2), (2 << 16) | 3)); E(mul(s(3), s(3), 128 * nch)); E(add(s(3), s(3), 128 * (9 - 4 * nch))); E(add(s(3), s(3), s(7)))
        E(valu('v_and_b32', v(2), 31, v(0))); E(valu('v_mul_u32_u24', v(2), 1152, v(2)))
        if nch == 2:
            E(valu('v_lshrrev_b32', v(3), 5, v(0))); E(valu('v_lshl_add_u32', v(2), v(3), 7, v(2)))
        ld = bload('buffer_load_dword', vDUM, v(2), sX, s(3)); ld.tag = 'pf'; E(ld)
    nx0 = CFG.get('tx', 2) if CFG.get('touch') else 0
    for j in range(nx0): E(xdma(j))
    if CFG.get('touch'):
        E(salu('s_cmp_gt_u32', None, sROLE, 10))
        E(raw("s_cselect_b64 s[60:61], s[52:53], s[46:47]", 'salu', wr=[s(60, 2)], rd=[s(52, 2), s(46, 2)]))
        E(raw("s_cselect_b64 s[66:67], s[54:55], s[48:49]", 'salu', wr=[s(66, 2)], rd=[s(54, 2), s(48, 2)]))
        E(salu('s_cmp_eq_u32', None, sWAVE, 1)); E(raw("s_cselect_b64 s[60:61], s[66:67], s[60:61]", 'salu', wr=[s(60, 2)], rd=[s(66, 2), s(60, 2)]))
        E(salu('s_cmp_eq_u32', None, sWAVE, 2)); E(raw("s_cselect_b64 s[60:61], s[42:43], s[60:61]", 'salu', wr=[s(60, 2)], rd=[s(42, 2), s(60, 2)]))
        E(salu('s_cmp_eq_u32', None, sWAVE, 3)); E(raw("s_cselect_b64 s[60:61], s[44:45], s[60:61]", 'salu', wr=[s(60, 2)], rd=[s(44, 2), s(60, 2)]))
        E(smov(s(3), 73728)); E(salu('s_cmp_ge_u32', None, sWAVE, 2)); E(csel(s(3), 131072, s(3)))
        E(valu('v_mul_u32_u24', v(2), s(3), v(0)))
        E(I(f"global_load_dword {vDUM}, v2, s[60:61]", 'vload', wr=vDUM.regs(), rd=vr(2) + sr(60, 2), tag='pf'))
    for j in range(nx0, CFG['xe']): E(xdma(j))
    if CFG.get('codepf', 3) == 1: code_pf()
    if CFG.get('codepf', 3) == 2:
        E(valu('v_mov_b32', v(46), v(3))); E(raw(f"s_mov_b64 s[100:101], {sPC}", 'salu', wr=[s(100, 2)], rd=[sPC]))
    srd(p, sK, 42, 8388608); srd(p, sV, 44, 8388608); srd(p, sWQ, 46, 4718592); srd(p, sWO, 48, 4718592)
    srd(p, sW1, 52, 5308416); srd(p, sW2, 54, 5308416); srd(p, sWS, 50, 0x10000000 if (CFG['stamps'] or CFG['fused']) else WSP_BYTES)
    srd(p, sOUT, 56, 2359296); srd(p, sDBG, 58, 256)
    E(mul(sW8704, sWAVE, 8 * PP)); E(mul(sWC, sWAVE, PP)); E(add(sWC, sWC, 32 * PP))
    E(shl(sW8192, sWAVE, 13)); E(shl(sWCH, sWAVE, 10)); E(add(sWCH, sWCH, 32768))
    E(mul(sW2176, sWAVE, 2 * PP)); E(mul(sW4352, sWAVE, 4 * PP)); E(add(sWA2, sW2176, 16 * PP))
    return p

def dispatch_text():
    return f""" s_cmp_ge_u32 {sROLE}, {NA + NM}
 s_cbranch_scc1 L_roleF
 s_cmp_ge_u32 {sROLE}, {NA}
 s_getpc_b64 s[94:95]
L_pc2:
 s_cbranch_scc1 L_jM
 s_add_u32 s94, s94, L_roleA-L_pc2
 s_addc_u32 s95, s95, 0
 s_setpc_b64 s[94:95]
L_jM:
 s_add_u32 s94, s94, L_roleM-L_pc2
 s_addc_u32 s95, s95, 0
 s_setpc_b64 s[94:95]
"""

def pfload(srd_, base):
    ld = bload('buffer_load_dword', vDUM, vPF, srd_, base); ld.tag = 'pf'; return ld
def pf_lin(srd_, base_s, start, nbytes, nl=64):
    def f():
        return [valu('v_lshrrev_b32', vPF2, 16, vTID), valu('v_and_b32', vPF, 63, vTID), valu('v_min_u32', vPF, nl - 1, vPF),
                valu('v_mad_u32_u24', vPF, vPF2, nl, vPF), valu('v_lshlrev_b32', vPF, 7, vPF), valu('v_add_u32', vPF, start, vPF),
                valu('v_min_u32', vPF, nbytes - 128, vPF), pfload(srd_, base_s)]
    return f
def pf_run(srd_, base_s, nbytes, nl):
    def f():
        return [valu('v_min_u32', vPF, nbytes - 128, vPFR), valu('v_add_u32', vPFR, 64 * nl * 128, vPFR), pfload(srd_, base_s)]
    f.nl = nl
    return f
def vPFW(kind): return {'F': v(8), 'A': v(7), 'M': v(36)}[kind]
def pf_row(kind, srd_, step=128):
    def f():
        ld = bload('buffer_load_dword', vDUM, vPFW(kind), srd_, sPW); ld.tag = 'pf'
        return [add(sPW, sPW, step), ld]
    return f
def pf_row_setup(kind, pitch, nl, base, lit):
    r = vPFW(kind)
    return [valu('v_bfe_u32', vPF2, vTID, 16, 5), valu('v_and_b32', r, 63, vTID), valu('v_min_u32', r, nl - 1, r),
            valu('v_mad_u32_u24', r, vPF2, nl, r), smov(sT2, pitch), valu('v_mul_u32_u24', r, sT2, r), add(sPW, base, lit)]
def pf_code(la, lb, nl):
    def f():
        L = f"L_cp{pf_code.k}"; pf_code.k += 1
        ld = I(f"global_load_dword {vDUM}, {vPF}, {sPC}", 'vload', wr=vDUM.regs(), rd=vPF.regs() + sPC.regs(), units=3, tag='pf')
        return [raw(f"s_getpc_b64 {sPC}", 'salu', wr=[sPC]), label(L),
                salu('s_add_u32', sPC[0], sPC[0], f"{la}-{L}"), salu('s_addc_u32', sPC[1], sPC[1], 0, scc_r=True),
                valu('v_bfe_u32', vPF2, vTID, 16, 5), valu('v_and_b32', vPF, 63, vTID), valu('v_min_u32', vPF, nl - 1, vPF),
                valu('v_mad_u32_u24', vPF, vPF2, nl, vPF), valu('v_lshlrev_b32', vPF, 7, vPF), valu('v_min_u32', vPF, f"{lb}-{la}-4", vPF), ld]
    return f
pf_code.k = 0
def pf_sched(R, k0, srd_, base_s, nbytes, nl):
    per = 64 * nl * 128; k = k0
    for st in range(0, nbytes, per):
        R.pf.setdefault(k, []).append(pf_lin(srd_, base_s, st, nbytes, nl)); k += 1
    return k

def role_prologue(R, vm_before):
    p = R.p; E = p.emit; kind = R.kind
    p.vm = list(vm_before)
    MS = CFG['shape'] == 'M'
    def PS(k):
        if CFG['stamps'] == 1: R.stamp(k)
    if CFG.get('delayrole') is not None:
        for r_ in CFG['delayrole']:
            E(salu('s_cmp_eq_u32', None, sROLE, r_[0])); E(raw(f"s_cbranch_scc0 L_{kind}_nd{r_[0]}"))
            E(smov(sLC, r_[1])); E(label(f"L_{kind}_dl{r_[0]}")); E(raw("s_sleep 127")); E(salu('s_sub_u32', sLC, sLC, 1)); E(salu('s_cmp_lg_u32', None, sLC, 0)); E(raw(f"s_cbranch_scc1 L_{kind}_dl{r_[0]}"))
            E(label(f"L_{kind}_nd{r_[0]}"))
    PS(56)
    lane = v(0)
    ILV = CFG.get('ilv') and not MS
    setup = []
    if ILV:
        E(valu('v_lshrrev_b32', v(48), 4, lane)); E(valu('v_and_b32', v(49), 15, lane)); E(valu('v_bfe_u32', v(50), lane, 1, 3)); E(valu('v_xor_b32', v(50), v(50), v(48)))
        E(valu('v_lshlrev_b32', v(49), 7, v(49))); E(valu('v_add_u32', v(49), s(6), v(49)))
        E(valu('v_lshl_add_u32', v(20), v(50), 4, v(49))); E(valu('v_xor_b32', v(21), 64, v(20)))
        def E(i):
            if isinstance(i, (list, tuple)):
                for x in i: E(x)
            else: setup.append(i)
    E(shl(sT2, sRB, 2)); E(add(sT2, sT2, sWAVE)); E(shl(sT2, sT2, 16)); E(valu('v_or_b32', vTID, sT2, lane))
    if kind in 'AM' and CFG.get('pair'):
        sHP_, sHS_ = s(86), s(85)
        if CFG.get('l844'): E(shl(sHP_, sROLE, 1)); E(add(sHP_, sHP_, 8))
        else: E(mul(sHP_, sROLE, 3))
        if kind == 'A':
            sHP_, sHS_ = sFA, sFC
            E(mul(sHS_, sROLE, 3)); E(salu('s_and_b32', s(4), sROLE, 1)); E(add(sHP_, sHS_, s(4)))
            E(shl(s(4), s(4), 1)); E(add(sHS_, sHS_, 2)); E(salu('s_sub_u32', sHS_, sHS_, s(4)))
            E(salu('s_sub_u32', sJQ, sHS_, sHP_)); E(shl(sJQ, sJQ, 8)); E(salu('s_sub_u32', sJQ, sJQ, 3 * 128))
        E(shl(sQ0, sHP_, 8))
        E(mul(sQA, sWAVE, 64 * 8192)); E(add(sQA, sQA, sQ0))
        E(shl(sQC, sWAVE, 16)); E(add(sQC, sQC, sQ0)); E(add(sQC, sQC, 256 * 8192))
        E(shr(s(3), sWAVE, 1)); E(shl(s(3), s(3), 13)); E(salu('s_and_b32', s(4), sWAVE, 1)); E(shl(s(4), s(4), 11)); E(add(s(3), s(3), s(4)))
        E(salu('s_sub_u32', s(3), s(3), 64)); E(shl(s(4), sWAVE, 11))
        for e, (h_, pfr) in enumerate([(sHP_, sPFa), (sHS_, sPFb)][:2 if kind == 'A' else 1]):
            E(shr(pfr, h_, 1)); E(shl(pfr, pfr, 19)); E(add(pfr, pfr, 1536 * 256))
            E(add(sKb[e], pfr, s(4))); E(add(sVb[e], pfr, s(3)))
        E(mul(sPFc, sROLE, 384 * 1152) if kind == 'A' else mul(sPFc, sHP_, 128 * 1152))
        if kind == 'A':
            E(mul(sHP_, sHP_, 128 * 1152)); E(mul(sHS_, sHS_, 128 * 1152))
            E(mul(sOA, sWAVE, 32 * 1152)); E(add(sOA1, sOA, sHS_)); E(add(sOA, sOA, sHP_))
            E(salu('s_sub_u32', sOA1, sOA1, 64 * 1152)); E(add(sT3, sOA, 192 * 1152)); E(salu('s_cmp_lt_u32', None, sWAVE, 2)); E(csel(sOA1, sT3, sOA1))
            E(shr(s(3), sWAVE, 1)); E(shl(s(3), s(3), 2)); E(salu('s_and_b32', s(4), sWAVE, 1)); E(add(s(3), s(3), s(4)))
            E(mul(sOB, s(3), 8 * 1152)); E(add(sOB1, sOB, sHS_)); E(add(sOB1, sOB1, 64 * 1152)); E(add(sOB, sOB, sHP_)); E(add(sOB, sOB, 128 * 1152))
        else:
            E(mul(sOA, sWAVE, 64 * 1152)); E(add(sOA, sOA, sPFc))
    elif kind in 'AM':
        E(mul(sT3, sROLE, 3 * 256))
        E(mul(sQA, sWAVE, 64 * 8192)); E(add(sQA, sQA, sT3))
        E(shl(sQC, sWAVE, 16)); E(add(sQC, sQC, sT3)); E(add(sQC, sQC, 256 * 8192))
        E(shr(s(3), sWAVE, 1)); E(shl(s(3), s(3), 13)); E(salu('s_and_b32', s(4), sWAVE, 1)); E(shl(s(4), s(4), 11)); E(add(s(3), s(3), s(4)))
        E(salu('s_sub_u32', s(3), s(3), 64)); E(shl(s(4), sWAVE, 11))
        if MS: E(shl(s(3), sWAVE, 12))
        for e in range(3 if kind == 'A' else 2):
            E(mul(sT3, sROLE, 3)); E(add(sT3, sT3, e)); E(shr(sT3, sT3, 1)); E(shl(sT3, sT3, 19)); E(add(sT3, sT3, 1536 * 256))
            if e == 0: E(smov(sPFa, sT3))
            if e == (2 if kind == 'A' else 1): E(smov(sPFb, sT3))
            E(add(sKb[e], sT3, s(4))); E(add(sVb[e], sT3, s(3)))
        E(mul(sPFc, sROLE, 384 * 1152))
        if kind == 'A':
            E(mul(sOA, sWAVE, 32 * 1152)); E(add(sOA, sOA, sPFc))
            E(shr(s(3), sWAVE, 1)); E(shl(s(3), s(3), 2)); E(salu('s_and_b32', s(4), sWAVE, 1)); E(add(s(3), s(3), s(4)))
            E(mul(sOB, s(3), 8 * 1152)); E(add(sOB, sOB, sPFc)); E(add(sOB, sOB, 128 * 1152))
        else:
            E(mul(sOA, sWAVE, 64 * 1152)); E(add(sOA, sOA, sPFc))
    if kind in 'FM':
        if kind == 'F':
            E(salu('s_sub_u32', s(3), sROLE, NA + NM)); E(mul(sPF1, s(3), 13 * 128)); E(shl(sPF1h, s(3), 6)); E(add(sPF1h, sPF1h, 69 * 128))
        elif CFG.get('l844'):
            E(mul(sPF1, sROLE, 5 * 128)); E(add(sPF1, sPF1, (52 - 40) * 128)); E(smov(sPF1h, sPF1))
        else:
            E(smov(sPF1, f_fullcol(5) * 2)); E(smov(sPF1h, f_halfcol(5) * 2))
        E(mul(sHA, sWAVE, 64 * 9216)); E(add(sHA, sHA, sPF1))
        E(mul(sHC, sWAVE, 8 * 9216)); E(add(sHC, sHC, sPF1)); E(add(sHC, sHC, 256 * 9216))
        E(mul(sHH, sWAVE, 128 * 9216)); E(add(sHH, sHH, sPF1h))
        E(mul(sHHC, sWAVE, 16 * 9216)); E(add(sHHC, sHHC, sPF1h)); E(add(sHHC, sHHC, 512 * 9216))
        E(mul(sPF2, sPF1, 576)); E(mul(sPF2h, sPF1h, 576))
        E(mul(sFA, sWAVE, 64 * 1152)); E(add(sFA, sFA, sPF2))
        if MS:
            E(salu('s_and_b32', s(3), sWAVE, 1)); E(shl(s(3), s(3), 1)); E(shr(s(4), sWAVE, 1)); E(add(s(3), s(3), s(4))); E(mul(sFC, s(3), 8 * 1152))
        else: E(mul(sFC, sWAVE, 4 * 1152))
        E(add(sFS, sFC, sPF2h)); E(add(sFC, sFC, sPF2)); E(add(sFC, sFC, 256 * 1152))
    if CFG['pf'] >= 3:
        if kind in 'AM': E(mul(sT3, sROLE, 3 * 256) if not CFG.get('pair') else smov(sT3, sQ0))
        E(pf_row_setup(kind, 8192 if kind in 'AM' else 9216, 18, sT3 if kind in 'AM' else sPF1, 0))
        f_ = pf_row(kind, sWQ if kind in 'AM' else sW1)
        early_pf = [f_()[1]] + f_() + f_()
        if CFG.get('ez'): E(early_pf[0])
        if CFG.get('epf', 1) == 3:
            R.pf.setdefault(0, [])[:0] = [f_, f_]
    E(add(sT3, sROLE, NS - NA if kind == 'F' else 0))
    E(mul(sSt, sT3, PSTR())); E(shl(sT3, sRB, 2)); E(add(sT3, sT3, sWAVE)); E(mul(sT3, sT3, PWAVE)); E(add(sSt, sSt, sT3))
    if kind == 'M': E(add(sSt2, sSt, (NS - NA) * PSTR()))
    if CFG['fused']:
        E(shl(sT2, sRB, 14)); E(add(sT2, sT2, CTRL))
        E(add(sT3, sROLE, NS - NA if kind == 'F' else 0)); E(shl(sT3, sT3, 2)); E(add(sT3, sT3, sT2))
        E(salu('s_cmp_eq_u32', None, sWAVE, 0)); E(csel(sT3, sT3, OOB)); E(csel(sT2, sT2, OOB))
        E(valu('v_and_b32', v(24), 15, lane)); E(valu('v_lshlrev_b32', v(25), 7, v(24))); E(valu('v_add_u32', v(25), 128, v(25)))
        E(raw("v_cmp_eq_u32 vcc, 0, v24", 'valu', wr=['vcc'], rd=[v(24)])); E(valu('v_cndmask_b32', v(25), v(25), 0, 'vcc') if False else raw("v_cndmask_b32 v25, v25, v24, vcc", 'valu', wr=[v(25)], rd=[v(25), v(24), 'vcc']))
        E(valu('v_lshrrev_b32', v(26), 4, lane)); E(valu('v_lshl_add_u32', v(25), v(26), 2 + (NS - NA).bit_length() - 1, v(25))); E(valu('v_add_u32', v(25), sT3, v(25)))
        E(raw(f"s_mov_b64 vcc, {hex(((1 << (NA + 1)) - 1) * (0x10001 if kind == 'M' else 1))}", 'salu', wr=['vcc'])); E(valu('v_mov_b32', vCT, OOB)); E(nop(1))
        E(raw(f"v_cndmask_b32 {vCT}, {vCT}, v25, vcc", 'valu', wr=[vCT], rd=[vCT, v(25), 'vcc']))
        E(valu('v_mov_b32', v(24), vCT))
        assert not (CFG.get('l844') or CFG.get('four') or CFG.get('nof'))
        E(add(sT2, sT2, 4 * (NPART + 1)))
        def flag(lane_, item):
            E(raw(f"s_lshl2_add_u32 {sT3}, {item}, {sT2}", 'salu', wr=[sT3], rd=[item, sT2]))
            E(raw(f"v_writelane_b32 v24, {sT3}, {lane_}", 'valu', wr=[v(24)], rd=[sT3, v(24)]))
        if kind == 'A':
            tab3 = [28, 29, 22, 30, 31, 21, 32, 33, 34, 35]
            flag(32, sROLE); E(add(s(4), sROLE, 10)); flag(33, s(4))
            E(smov(s(98), sum((tab3[i] - 20) << (4 * i) for i in range(8)))); E(smov(s(99), (tab3[8] - 20) | ((tab3[9] - 20) << 4)))
            E(shl(s(4), sROLE, 2)); E(salu('s_lshr_b64', s(98, 2), s(98, 2), s(4))); E(salu('s_and_b32', s(4), s(98), 15)); E(add(s(4), s(4), 20)); flag(34, s(4))
        else:
            E(smov(s(4), 20) if kind == 'M' else add(s(4), sROLE, 12)); flag(32, s(4))
        E(valu('v_mov_b32', v(25), 0))
        z = bstore('buffer_store_dword', v(25), v(24), sWS, 0, flags='sc1'); z.tag = 'zero'; E(z)
        E(shl(sT2, sRB, 4)); E(salu('s_cmp_eq_u32', None, sWAVE, 0)); E(csel(sT2, sT2, 256))
        E(valu('v_mov_b32', v(23), 256)); E(raw(f"v_writelane_b32 v23, {sT2}, 0", 'valu', wr=[v(23)], rd=[sT2, v(23)]))
    T_ = [v(24), v(25), v(26), v(27), v(28), v(29)]
    q, r, c4, rb1 = T_[0], T_[1], T_[2], T_[3]
    E(valu('v_lshrrev_b32', q, 4, lane)); E(valu('v_bfe_u32', r, lane, 2, 2)); E(valu('v_and_b32', c4, 3, lane)); E(valu('v_bfe_u32', rb1, lane, 3, 1))
    E(valu('v_and_b32', T_[4], 7, lane)); E(valu('v_bfe_u32', T_[5], lane, 4, 1)); E(valu('v_lshlrev_b32', T_[5], 1, T_[5]))
    E(valu('v_xor_b32', T_[4], T_[4], T_[5])); E(valu('v_lshlrev_b32', vSWZ, 4, T_[4]))
    E(valu('v_lshrrev_b32', T_[4], 5, lane)); E(valu('v_and_b32', T_[5], 3, vROWN)); E(valu('v_lshl_add_u32', vROWP, T_[4], 4, T_[5]))
    E(smov(sT2, PP)); E(valu('v_mul_u32_u24', T_[4], sT2, q)); E(valu('v_lshl_add_u32', T_[4], r, 7, T_[4]))
    E(valu('v_lshl_add_u32', T_[4], c4, 3, T_[4])); E(valu('v_lshl_add_u32', vRW[0][0], rb1, 5, T_[4]))
    E(valu('v_mov_b32', vDP, vRW[0][0]))
    if MS:
        E(valu('v_and_b32', T_[4], 7, lane)); E(valu('v_bfe_u32', T_[5], lane, 4, 1)); E(valu('v_lshlrev_b32', T_[5], 2, T_[5]))
        E(valu('v_xor_b32', T_[4], T_[4], T_[5])); E(valu('v_lshlrev_b32', vSWZM, 4, T_[4]))
        E(valu('v_bfe_u32', q, lane, 4, 1)); E(valu('v_lshlrev_b32', q, 5, q))
        E(valu('v_and_b32', T_[4], 1, lane)); E(valu('v_lshl_add_u32', q, T_[4], 4, q))
        E(valu('v_bfe_u32', T_[4], lane, 1, 1)); E(valu('v_lshl_add_u32', q, T_[4], 3, q))
        E(valu('v_lshrrev_b32', T_[5], 5, lane))
        E(smov(sT2, PP)); E(valu('v_mad_u32_u24', T_[4], T_[5], sT2, q)); E(valu('v_lshl_add_u32', T_[4], r, 7, T_[4]))
        E(valu('v_lshl_add_u32', vRW[0][0], rb1, 6, T_[4])); E(valu('v_xor_b32', rb1, 1, rb1)); E(valu('v_lshl_add_u32', vRW[0][1], rb1, 6, T_[4]))
        if kind in 'FM':
            E(valu('v_lshl_add_u32', vRH[0], T_[5], 9, q)); E(valu('v_lshl_add_u32', vRH[0], r, 6, vRH[0]))
            E(valu('v_lshlrev_b32', T_[4], 4, c4)); E(valu('v_lshrrev_b32', T_[5], 2, lane)); E(smov(sT2, 9216))
            E(valu('v_mad_u32_u24', vOFFH, T_[5], sT2, T_[4]))
        E(valu('v_lshrrev_b32', q, 4, lane))
    else:
        E(valu('v_xor_b32', vRW[0][1], 32, vRW[0][0]))
    for b in (1, 2):
        for T in range(2): E(valu('v_add_u32', vRW[b][T], 65536 * b, vRW[0][T]))
    if kind in 'FM' and not MS:
        E(valu('v_lshlrev_b32', T_[4], 9, q)); E(valu('v_lshl_add_u32', T_[4], r, 6, T_[4])); E(valu('v_lshl_add_u32', T_[4], c4, 3, T_[4]))
        E(valu('v_and_b32', T_[5], 1, q)); E(valu('v_lshl_add_u32', vRH[0], T_[5], 5, T_[4])); E(valu('v_xor_b32', vRH[1], 32, vRH[0]))
        E(valu('v_lshrrev_b32', T_[4], 5, lane)); E(valu('v_lshlrev_b32', T_[4], 1, T_[4])); E(valu('v_xor_b32', T_[4], T_[4], c4))
        E(valu('v_lshlrev_b32', T_[4], 4, T_[4])); E(valu('v_lshrrev_b32', T_[5], 2, lane)); E(smov(sT2, 9216))
        E(valu('v_mad_u32_u24', vOFFH, T_[5], sT2, T_[4]))
    if kind in 'AM':
        E(valu('v_and_b32', T_[4], 15, lane)); E(valu('v_xor_b32', T_[4], T_[4], q)); E(valu('v_lshlrev_b32', T_[4], 4, T_[4]))
        E(valu('v_lshl_add_u32', vOFFK, q, 8, T_[4]))
    E(set_offw(8192 if kind in 'AM' else 9216, 'M' if MS else 'S'))
    if MS:
        XA = [v(20), v(21), v(22), v(39)]
        E(valu('v_and_b32', T_[4], 31, lane)); E(valu('v_bfe_u32', T_[5], lane, 1, 3)); E(valu('v_lshrrev_b32', q, 5, lane)); E(valu('v_xor_b32', T_[5], T_[5], q))
        E(valu('v_lshlrev_b32', T_[4], 7, T_[4])); E(valu('v_add_u32', T_[4], s(6), T_[4]))
        E(valu('v_lshl_add_u32', XA[0], T_[5], 4, T_[4]))
        for tt in range(1, 4): E(valu('v_xor_b32', XA[tt], 32 * tt, XA[0]))
    else:
        E(valu('v_and_b32', T_[4], 15, lane)); E(valu('v_bfe_u32', T_[5], lane, 1, 3)); E(valu('v_xor_b32', T_[5], T_[5], q))
        E(valu('v_lshlrev_b32', T_[4], 7, T_[4])); E(valu('v_add_u32', T_[4], s(6), T_[4]))
        E(valu('v_lshl_add_u32', v(20), T_[5], 4, T_[4])); E(valu('v_xor_b32', v(21), 64, v(20)))
        if kind in 'AM':
            E(smov(sT2, PP)); E(valu('v_mul_u32_u24', v(22), sT2, r)); E(valu('v_lshl_add_u32', v(22), c4, 8, v(22)))
            E(valu('v_xor_b32', T_[4], q, c4)); E(valu('v_lshl_add_u32', v(22), T_[4], 4, v(22)))
    E(valu('v_lshlrev_b32', vLANE16, 4, lane))
    if CFG['stamps'] == 2: E(valu('v_mov_b32', vSTAMP, 0))
    if CFG['fused'] and CFG.get('rep') and kind in 'FM':
        E(rep_addr(kind, v(24), v(25))); E(valu('v_mov_b32', v(25), 0))
        z = bstore('buffer_store_dword', v(25), v(24), sWS, 0, flags='sc1'); z.tag = 'zero'; E(z)
    E = p.emit
    sONE = s(97) if ILV else sT2
    SA = 56 if ILV else 28
    for i in range(8): E(valu('v_mov_b32', v(SA + i), 0))
    E(smov(sONE, 0x3f803f80))
    def stats(j):
        for tt in range(2):
            for g in range(2):
                for qd in range(4):
                    x = X(2 * j + tt, g)[qd]
                    E(valu('v_dot2c_f32_bf16', v(SA + 2 * g + (qd & 1)), sONE, x, rmw=True))
                    E(valu('v_dot2c_f32_bf16', v(SA + 4 + 2 * g + (qd & 1)), x, x, rmw=True))
    PS(57)
    for j in range(9):
        E(waitvm(p.vm_wait_for(lambda t: t == ('x', j))))
        if j == 0: PS(58)
        if MS:
            for tt in range(4): E(ds_b128(XM(4 * j + tt), XA[tt], j * 4096))
        else:
            for tt in range(2):
                for g in range(2): E(ds_b128(X(2 * j + tt, g), v(20 + tt), j * 4096 + g * 2048))
        if j + CFG['xe'] < 9: E(xdma(j + CFG['xe']))
        if CFG['pf'] >= 3 and CFG.get('epf', 1) == 1 and j == max(8 - CFG['xe'], 0): E(early_pf)
        if ILV:
            nper = -(-len(setup) // max(CFG['ilv'] - j, 1))
            while nper < len(setup) and (SCC in setup[nper].rd or setup[nper].txt.startswith('s_cselect') or VCC in setup[nper].rd): nper += 1
            E(setup[:nper]); del setup[:nper]
        if j >= 1:
            E(waitlg(4)); stats(j - 1)
    E(waitlg(0)); PS(59); E(barrier())
    if CFG.get('codepf', 3) == 2: E(I(f"global_load_dword {vDUM}, v46, s[100:101]", 'vload', wr=vDUM.regs(), rd=vr(46) + sr(100, 2), tag='pf'))
    if CFG['pf'] >= 3 and CFG.get('epf', 1) == 2: E(early_pf)
    pend = []
    for k in range(2 if CFG.get('pro2') else 3):
        st = R.stages[k]
        if st.pre_dma: pend.append(st.pre_dma())
        pend += st.dma(k, False)
    if CFG.get('epf', 1) == 4: pend[CFG.get('epos', 9):CFG.get('epos', 9)] = [early_pf[1:3], early_pf[3:5]]
    d0 = CFG.get('d0', 9)
    for it in pend[:d0]: E(it)
    pend = pend[d0:]
    PS(60)
    stats(8)
    acc4 = [v(SA), v(SA + 2), v(SA + 4), v(SA + 6)]
    for x in acc4: E(valu('v_add_f32', x, x, v(x.n + 1)))
    if MS:
        for b_ in (0, 2):
            E(valu('v_add_f32', acc4[b_], acc4[b_], acc4[b_ + 1]))
        for b_ in (0, 2): E(valu('v_mov_b32', acc4[b_ + 1], acc4[b_]))
    for op in (('v_permlane32_swap_b32',) if MS else ('v_permlane16_swap_b32', 'v_permlane32_swap_b32')):
        for x in acc4: E(valu('v_mov_b32', v(x.n + 1), x))
        for x in acc4: E(valu(op, x, v(x.n + 1), rmw=True, extra_wr=[v(x.n + 1)]))
        for x in acc4: E(valu('v_add_f32', x, x, v(x.n + 1)))
    for x in acc4: E(valu('v_mul_f32', x, f2u(1.0 / 576), x))
    for g in range(2): E(valu('v_fma_f32', acc4[2 + g], '-' + str(acc4[g]), acc4[g], acc4[2 + g]))
    for g in range(2): E(valu('v_max_f32', acc4[2 + g], 0, acc4[2 + g]))
    for g in range(2): E(valu('v_add_f32', acc4[2 + g], f2u(1e-5), acc4[2 + g]))
    for g in range(2): E(valu('v_rsq_f32', acc4[2 + g], acc4[2 + g]))
    for g in range(2): E(valu('v_mul_f32', acc4[2 + g], f2u(-LOG2E), acc4[2 + g]))
    for g in range(2): E(valu('v_mov_b32', v(20 + g), acc4[g]))
    for g in range(2): E(valu('v_mul_f32', acc4[g], '-' + str(acc4[g]), acc4[2 + g], extra_rd=[acc4[g]]))
    E(smov(sT2, 0xffff0000))
    if CFG.get('dotn'):
        cl = [v(SA + 1), v(SA + 3)]; ch = [v(SA + 5), v(SA + 7)]
        for g in range(2): E(valu('v_cvt_pk_bf16_f32', cl[g], acc4[2 + g], 0))
        for g in range(2): E(valu('v_lshlrev_b32', ch[g], 16, cl[g]))
        for g in range(2): E(valu('v_mul_f32', acc4[g], '-' + str(v(20 + g)), ch[g], extra_rd=[v(20 + g)]))
    PS(61)
    n = 0
    for t in range(18):
        for g in range(2):
            tps = [v(24, 2), v(26, 2), v(16, 2), v(18, 2)]
            x = X(t, g)
            if CFG.get('dotn'):
                for qd in range(4):
                    E(valu('v_dot2_f32_bf16', tps[qd][0], x[qd], cl[g], acc4[g])); E(valu('v_dot2_f32_bf16', tps[qd][1], x[qd], ch[g], acc4[g]))
            else:
                for qd in range(4):
                    E(valu('v_lshlrev_b32', tps[qd][0], 16, x[qd])); E(valu('v_and_b32', tps[qd][1], sT2, x[qd]))
                for qd in range(4): E(valu('v_pk_fma_f32', tps[qd], tps[qd], v(acc4[2 + g].n, 2), v(acc4[g].n, 2), mods='op_sel_hi:[1,0,0]'))
            for qd in range(4): E(valu('v_cvt_pk_bf16_f32', x[qd], tps[qd][0], tps[qd][1]))
            if pend and n % CFG.get('dn', 2) == 0: E(pend.pop(0))
            n += 1
    for it in pend: E(it)
    if CFG['fused']:
        E(valu('v_mov_b32', v(24), 1)); E(waitvm(p.vm_wait_for(lambda t: t == 'zero')))
        E(I(f"buffer_atomic_add v24, v23, {sDBG}, 0 offen sc1", 'vstore', rd=vr(23, 2) + sDBG.regs(), units=3, tag='init'))
    for _ in range(CFG.get('idle', 0)): E(raw("s_sleep 16"))
    PS(62)
    if kind in 'AM' and MS:
        ln, m_, key, t_ = v(16), v(17), v(18), v(19)
        E([valu('v_lshrrev_b32', ln, 4, vLANE16), valu('v_and_b32', key, 19, ln),
           valu('v_bfe_u32', t_, ln, 2, 1), valu('v_lshl_add_u32', key, t_, 3, key),
           valu('v_bfe_u32', t_, ln, 3, 1), valu('v_lshl_add_u32', key, t_, 2, key),
           valu('v_lshrrev_b32', m_, 2, key), smov(sT2, PP), valu('v_mul_u32_u24', m_, sT2, m_),
           valu('v_and_b32', key, 3, key), valu('v_lshl_add_u32', m_, key, 8, m_),
           valu('v_lshrrev_b32', t_, 5, ln), valu('v_xor_b32', t_, t_, key),
           valu('v_lshl_add_u32', vRKM[0], t_, 4, m_), valu('v_xor_b32', vRKM[1], 32, vRKM[0])])
    elif kind in 'AM':
        E(valu('v_mov_b32', vRK[0], v(22))); E(valu('v_add_u32', vRK[1], 65536, v(22))); E(valu('v_add_u32', vRK[2], 131072, v(22)))
    if CFG['stamps']: E(raw(f"v_writelane_b32 {vSTAMP}, s96, 55", 'valu', wr=[vSTAMP], rd=[s(96)])) if kind != 'A' else None
    if CFG['stamps']: E(smov(s(43), s(96)))
    nlr = {'F': 10, 'A': 11, 'M': 8}[kind]
    if kind != 'M': E([valu('v_lshrrev_b32', vPF2, 16, vTID), valu('v_and_b32', vPFR, 63, vTID), valu('v_min_u32', vPFR, nlr - 1, vPFR),
       valu('v_mad_u32_u24', vPFR, vPF2, nlr, vPFR), valu('v_lshlrev_b32', vPFR, 7, vPFR)])
    if CFG['stamps']: E(smov(s(97), 0))
    E(smov(sLN0, f2u(-1.0 / math.sqrt(128.0))))

def slow_check(R, heads, base2):
    def f():
        p = R.p; E = p.emit
        t = v(254); lo = v(255)
        E(valu('v_mov_b32', lo, f2u(2.0 ** -40))); E(smov(sT3, f2u(2.0 ** 40)))
        for (hd, Q, O) in heads:
            L = f"L_{R.kind}_slow{hd}"
            if CFG['shape'] == 'M':
                E(valu('v_med3_f32', t, Lsave[hd], sT3, lo))
                E(raw(f"v_cmp_neq_f32 vcc, {t}, {Lsave[hd]}", 'valu', wr=['vcc'], rd=[t, Lsave[hd]])); E(nop(4))
            else:
                E(valu('v_med3_f32', t, Lsave[2 * hd], sT3, lo))
                E(raw(f"v_cmp_neq_f32 s[98:99], {t}, {Lsave[2 * hd]}", 'valu', wr=[s(98, 2)], rd=[t, Lsave[2 * hd]]))
                E(valu('v_med3_f32', t, Lsave[2 * hd + 1], sT3, lo))
                E(raw(f"v_cmp_neq_f32 vcc, {t}, {Lsave[2 * hd + 1]}", 'valu', wr=['vcc'], rd=[t, Lsave[2 * hd + 1]])); E(nop(4))
                E(raw("s_or_b64 vcc, vcc, s[98:99]", 'salu', wr=['vcc'], rd=['vcc', s(98, 2)])); E(nop(1))
            if CFG.get('force_slow'): E(raw(f"s_mov_b64 vcc, -1", 'salu', wr=['vcc']))
            E(raw(f"s_cbranch_vccz {L}_ret"))
            E(raw(f"s_call_b64 {sRET}, {L}"))
            E(label(f"{L}_ret"))
            R.slow.append((slow_path if CFG['shape'] == 'M' else slow_pathS)(L, hd, Q, O, base2))
        E(nop(1))
    return f

def slow_path(L, hd, Q, Odst, b2):
    p = Prog(); E = p.emit
    O = v(48, 64); S = v(b2, 16); P = v(b2 + 16, 8); F = v(b2 + 24, 16)
    vK, vV, vM, vL, t0, t1 = [v(b2 + 40 + i) for i in range(6)]
    sB, sJ, sO = s(98), s(99), s(97)
    E(I(".p2align 2", 'label')); E(label(L))
    E(nop(7)); E(nop(7))
    E([valu('v_lshrrev_b32', t0, 4, vLANE16), valu('v_and_b32', vK, 19, t0), valu('v_bfe_u32', t1, t0, 2, 1), valu('v_lshl_add_u32', vK, t1, 3, vK),
       valu('v_bfe_u32', t1, t0, 3, 1), valu('v_lshl_add_u32', vK, t1, 2, vK), valu('v_lshrrev_b32', t1, 5, t0),
       valu('v_lshlrev_b32', vV, 1, vK), valu('v_lshl_add_u32', vV, t1, 11, vV),
       valu('v_lshlrev_b32', vK, 8, vK), valu('v_lshl_add_u32', vK, t1, 4, vK)])
    E([mul(sB, sROLE, 3), add(sB, sB, hd), shr(sB, sB, 1), shl(sB, sB, 19), add(sB, sB, 1536 * 256)])
    def qk():
        for half in range(2):
            for t in range(4): E(bload('buffer_load_dwordx4', F.sub(4 * t, 4), vK, sK, sO, (4 * half + t) * 32))
            E(waitvm(0))
            for t in range(4):
                tt = 4 * half + t
                E(mfma(S, F.sub(4 * t, 4), Q.sub(4 * tt, 4), 0 if tt == 0 else S))
            E(nop(7)); E(nop(7))
    E(valu('v_mov_b32', vM, 0xff800000)); E(smov(sJ, 0))
    E(label(L + "_a"))
    E(add(sO, sB, sJ)); qk()
    for i in range(0, 16, 2): E(valu('v_max3_f32', vM, vM, S[i], S[i + 1]))
    E(add(sJ, sJ, 8192)); E(salu('s_cmp_lt_u32', None, sJ, 16 * 8192)); E(raw(f"s_cbranch_scc1 {L}_a"))
    E(valu('v_mov_b32', t0, vM)); E(valu('v_permlane32_swap_b32', vM, t0, rmw=True, extra_wr=[t0])); E(valu('v_max_f32', vM, vM, t0))
    for i in range(64): E(valu('v_mov_b32', O[i], 0))
    E(valu('v_mov_b32', vL, 0)); E(smov(sJ, 0))
    E(label(L + "_b"))
    E(add(sO, sB, sJ)); qk()
    for i in range(16): E(valu('v_sub_f32', S[i], S[i], vM))
    for i in range(16): E(valu('v_exp_f32', S[i], S[i]))
    for i in range(16): E(valu('v_add_f32', vL, vL, S[i]))
    for q in range(8): E(valu('v_cvt_pk_bf16_f32', P[q], S[2 * q], S[2 * q + 1]))
    for u in range(2):
        for tp in range(2):
            for tq in range(2):
                for j in range(8):
                    E(bload('buffer_load_ushort', F[8 * (j & 1) + 4 * tq + j // 2], vV, sV, sO, j * 256 + (2 * tp + tq) * 64))
            E(waitvm(0))
            for i in range(8): E(valu('v_lshl_or_b32', F[i], F[8 + i], 16, F[i]))
            for tq in range(2):
                D_ = O.sub(16 * (2 * tp + tq), 16)
                E(mfma(D_, F.sub(4 * tq, 4), P.sub(4 * u, 4), D_))
            E(nop(7))
        if u == 0: E(add(sO, sO, 4096))
    E(add(sJ, sJ, 8192)); E(salu('s_cmp_lt_u32', None, sJ, 16 * 8192)); E(raw(f"s_cbranch_scc1 {L}_b"))
    E(nop(7)); E(nop(7))
    E(valu('v_mov_b32', t0, vL)); E(valu('v_permlane32_swap_b32', vL, t0, rmw=True, extra_wr=[t0])); E(valu('v_add_f32', vL, vL, t0))
    E(valu('v_rcp_f32', t0, vL))
    for tau in range(4):
        A_ = O.sub(16 * tau, 16)
        for e in range(16): E(valu('v_mul_f32', A_[e], A_[e], t0))
        for q in range(8): E(valu('v_cvt_pk_bf16_f32', A_[2 * q], A_[2 * q], A_[2 * q + 1]))
        for q in range(4): E(valu('v_permlane16_swap_b32', A_[2 * q], A_[2 * q + 8], rmw=True, extra_wr=[A_[2 * q + 8]]))
        for q in range(8): E(valu('v_accvgpr_write_b32', Odst[8 * tau + q], A_[2 * q]))
    E(nop(1)); E(raw(f"s_setpc_b64 {sRET}"))
    return p

def slow_pathS(L, hd, Q, Odst, b2):
    p = Prog(); E = p.emit
    ob = 48; kv = None
    if isinstance(b2, tuple): b2, ob = b2
    if isinstance(Odst, tuple):
        OFf, kv = Odst
        class _D:
            def __getitem__(s_, i): return OFf(i // 8)[i % 8]
        Odst = _D()
    O = v(ob, 64); S = v(b2, 16); P = v(b2 + 16, 8); F = v(b2 + 24, 16)
    vK, vV, t0, t1 = [v(b2 + 40 + i) for i in range(4)]
    vM = [v(b2 + 44), v(b2 + 45)]; vL = [v(b2 + 46), v(b2 + 47)]
    sB, sJ, sO = s(98), s(99), s(97)
    E(I(".p2align 2", 'label')); E(label(L))
    E(nop(7)); E(nop(7))
    E([valu('v_lshrrev_b32', t0, 4, vLANE16), valu('v_and_b32', t1, 15, t0), valu('v_lshrrev_b32', t0, 4, t0),
       valu('v_lshlrev_b32', vK, 8, t1), valu('v_lshl_add_u32', vK, t0, 4, vK),
       valu('v_lshlrev_b32', vV, 1, t1), valu('v_lshl_add_u32', vV, t0, 10, vV)])
    if kv is not None: E(smov(sB, kv))
    else: E([mul(sB, sROLE, 3), add(sB, sB, hd), shr(sB, sB, 1), shl(sB, sB, 19), add(sB, sB, 1536 * 256)])
    def qk():
        for T in range(2):
            E(add(sO, sB, sJ)) if T == 0 else E(add(sO, sO, 4096))
            for t in range(4): E(bload('buffer_load_dwordx4', F.sub(4 * t, 4), vK, sK, sO, t * 64))
            E(waitvm(0))
            for t in range(4):
                for g_ in range(2):
                    D_ = S.sub(8 * T + 4 * g_, 4)
                    E(mfma(D_, F.sub(4 * t, 4), Q.sub(8 * t + 4 * g_, 4), 0 if t == 0 else D_))
            E(nop(7)); E(nop(3))
    def allq(x, op):
        for sw in ('v_permlane16_swap_b32', 'v_permlane32_swap_b32'):
            E(valu('v_mov_b32', t0, x)); E(valu(sw, x, t0, rmw=True, extra_wr=[t0])); E(valu(op, x, x, t0))
    for g_ in range(2): E(valu('v_mov_b32', vM[g_], 0xff800000))
    E(smov(sJ, 0))
    E(label(L + "_a"))
    qk()
    for T in range(2):
        for g_ in range(2):
            for i in (0, 2): E(valu('v_max3_f32', vM[g_], vM[g_], S[8 * T + 4 * g_ + i], S[8 * T + 4 * g_ + i + 1]))
    E(add(sJ, sJ, 8192)); E(salu('s_cmp_lt_u32', None, sJ, 16 * 8192)); E(raw(f"s_cbranch_scc1 {L}_a"))
    for g_ in range(2): allq(vM[g_], 'v_max_f32')
    for i in range(64): E(valu('v_mov_b32', O[i], 0))
    for g_ in range(2): E(valu('v_mov_b32', vL[g_], 0))
    E(smov(sJ, 0))
    E(label(L + "_b"))
    qk()
    for i in range(16): E(valu('v_sub_f32', S[i], S[i], vM[(i >> 2) & 1]))
    for i in range(16): E(valu('v_exp_f32', S[i], S[i]))
    for i in range(16): E(valu('v_add_f32', vL[(i >> 2) & 1], vL[(i >> 2) & 1], S[i]))
    for g_ in range(2):
        for T in range(2):
            for k in range(2): E(valu('v_cvt_pk_bf16_f32', P[4 * g_ + 2 * T + k], S[8 * T + 4 * g_ + 2 * k], S[8 * T + 4 * g_ + 2 * k + 1]))
    for tp in range(4):
        for jh in range(2):
            E(add(sO, sB, sJ)) if jh == 0 else E(add(sO, sO, 4096))
            for tq in range(2):
                for jl in range(4):
                    j = 4 * jh + jl
                    E(bload('buffer_load_ushort', F[8 * (j & 1) + 4 * tq + j // 2], vV, sV, sO, jl * 256 + (2 * tp + tq) * 32))
        E(waitvm(0))
        for i in range(8): E(valu('v_lshl_or_b32', F[i], F[8 + i], 16, F[i]))
        for tq in range(2):
            for g_ in range(2):
                D_ = O.sub(8 * (2 * tp + tq) + 4 * g_, 4)
                E(mfma(D_, F.sub(4 * tq, 4), P.sub(4 * g_, 4), D_))
        E(nop(7))
    E(add(sJ, sJ, 8192)); E(salu('s_cmp_lt_u32', None, sJ, 16 * 8192)); E(raw(f"s_cbranch_scc1 {L}_b"))
    E(nop(7)); E(nop(3))
    for g_ in range(2): allq(vL[g_], 'v_add_f32')
    for g_ in range(2): E(valu('v_rcp_f32', vL[g_], vL[g_]))
    for i in range(64): E(valu('v_mul_f32', O[i], O[i], vL[(i >> 2) & 1]))
    for kk in range(4):
        for g_ in range(2):
            for T in range(2):
                for c in range(2):
                    r = 8 * (2 * kk + T) + 4 * g_ + 2 * c
                    E(valu('v_cvt_pk_bf16_f32', O[r], O[r], O[r + 1])); E(valu('v_accvgpr_write_b32', Odst[8 * kk + 4 * g_ + 2 * T + c], O[r]))
    E(nop(1)); E(raw(f"s_setpc_b64 {sRET}"))
    return p

NREP = 6
sMD2 = s(84)
def rep_addr(kind, dst, t):
    return [shl(sT2, sRB, 14), add(sT2, sT2, CTRL + 2048), add(sT3, sROLE, NS - NA), shl(sT3, sT3, 2), add(sT2, sT2, sT3),
            salu('s_cmp_eq_u32', None, sWAVE, 0), csel(sT2, sT2, OOB),
            valu('v_lshlrev_b32', dst, 3, vLANE16), valu('v_add_u32', dst, sT2, dst), valu('v_mov_b32', t, OOB),
            raw(f"v_cmp_gt_u32 vcc, {hex(NA * NREP * 16)}, {vLANE16}", 'valu', wr=['vcc'], rd=[vLANE16]), valu('v_cndmask_b32', dst, t, dst, 'vcc')]
vCR = v(31)
def add_signals(R):
    P2 = [k for k, st in enumerate(R.stages) if st.name.startswith('P2')]
    def sig(first):
        def f():
            out = [valu('v_add_u32', vPRG, 1, vPRG)]
            return out + [bstore('buffer_store_dword', vPRG, vCT, sWS, 0, flags='sc1')]
        return f
    def sig7():
        return [valu('v_add_u32', vPRG, 1, vPRG), bstore('buffer_store_dword', vPRG, vCR, sWS, 0, flags='sc1'), bstore('buffer_store_dword', vPRG, vCT, sWS, 0, flags='sc1')]
    def chain(stages, base):
        firsts = [k for k in stages if R.stages[k].sub == 0]
        for c in range(8):
            k = firsts[c + 1] + CFG.get('siglag', {}).get(R.kind, 2)
            if k > stages[-1]: break
            R.stages[k].cover_st = base + c; R.stages[k].post_bar = sig(c == 0)
            if c == 7 and CFG.get('rep') and R.kind in 'FM': R.stages[k].post_bar = sig7
        if CFG.get('rep') and R.kind in 'FM': R.pf.setdefault(firsts[1], []).append(lambda: rep_addr(R.kind, vCR, vPF))
    chain(P2, 0)
    R.stages[P2[0]].post_bar = lambda: [valu('v_mov_b32', vPRG, 0)]

LDSC = 4 * SLOT
sAB = s(72, 2); sRM = s(74, 2); sCD = s(76, 2)
sRS, sRF, sSP, sC, sI, sPB, sPART, sOK, sPAR, sXW, sPWv, sTO = s(78), s(79), s(71), s(80), s(81), s(82), s(47), s(40), s(41), s(59), s(3), s(58)
sIT = [s(42), s(44), s(45)]; sXP = [s(46), s(60), s(61)]
sRET2 = s(66, 2)
vP, vD, vA, vO, vXO, vL4, vDO, vLA, vIT, vLD, vSC = [v(16 + i) for i in range(11)]
vX4 = v(28)
def s64(op, d, *src, scc_r=False): return salu(op, d, *src, scc_r=scc_r)
sPV = s(85)
def red_setup(kind):
    o = [shl(sPB, sRB, 14), add(sPB, sPB, CTRL), salu('s_cmp_eq_u32', None, sWAVE, 0), csel(sT3, 0, OOB),
         valu('v_lshrrev_b32', vL4, 2, vLANE16), valu('v_add_u32', vL4, sT3, vL4),
         valu('v_mov_b32', vSC, OOB), add(sT2, sT3, 4 * NPART), raw(f"v_writelane_b32 {vSC}, {sT2}, 0", 'valu', wr=[vSC], rd=[sT2, vSC]),
         valu('v_mov_b32', vS1, vSC), valu('v_min_u32', vL5, NPART * 16, vLANE16), valu('v_lshrrev_b32', vL5, 2, vL5), valu('v_add_u32', vL5, sT3, vL5),
         add(sT2, sT3, 252), raw(f"v_writelane_b32 {vSC}, {sT2}, 1", 'valu', wr=[vSC], rd=[sT2, vSC]),
         shl(sT2, sRB, 4), add(sT2, sT2, sT3), valu('v_mov_b32', vDO, 256), raw(f"v_writelane_b32 {vDO}, {sT2}, 0", 'valu', wr=[vDO], rd=[sT2, vDO])]
    if kind == 'A': o += [shl(sPV, sROLE, 7), add(sPV, sPV, 256), add(sPV, sPV, sPB)]
    return o
vS1, vL5 = v(29), v(30)
PRIV = [False]
def red_poll(shared=False):
    cnt = [valu('v_mov_b32', vD, 0), I(f"buffer_atomic_add {vD}, {vDO}, {sDBG}, 0 offen sc0 sc1", 'vload', wr=vD.regs(), rd=vD.regs() + vDO.regs() + sDBG.regs(), units=3)]
    if PRIV[0] and not shared:
        return [cnt, [bstore('buffer_store_dword', vS1, vS1, sWS, sPV, flags='sc1'), bload('buffer_load_dword', vP, vL5, sWS, sPV, flags='sc1')]]
    return [cnt, [bstore('buffer_store_dword', vSC, vSC, sWS, sPB, flags='sc1'), bload('buffer_load_dword', vP, vL4, sWS, sPB, flags='sc1')]]
vG = [v(28), v(29), v(30)]; vGA = v(31); vGP = v(27)
def l2pf_setup():
    return [valu('v_lshrrev_b32', vGP, 7, vLANE16), smov(sT2, PSTR()), valu('v_mul_lo_u32', vGA, vGP, sT2),
            valu('v_bfe_u32', vA, vLANE16, 4, 3), valu('v_lshl_add_u32', vGA, vA, 7, vGA), shl(sT2, sWAVE, 10), valu('v_add_u32', vGA, sT2, vGA),
            valu('v_lshlrev_b32', vGP, 2, vGP), valu('v_mov_b32', vA, OOB), smov(sT2, 68), raw(f"v_writelane_b32 {vA}, {sT2}, 0", 'valu', wr=[vA], rd=[vA, sT2])]
def l2pf_poll():
    st = bstore('buffer_store_dword', vA, vA, sWS, sPB, flags='sc1')
    out = [[st]]
    for i in range(3):
        ld = bload('buffer_load_dword', vG[i], vGP, sWS, sPB, 32 * i, flags='sc1'); ld.tag = 'gp'
        out.append([ld])
    return out
def l2pf_issue(R, dlt):
    out = [[add(sI, sROLE, dlt), salu('s_and_b32', sT2, sI, 3), shr(sC, sI, 2), shl(sT3, sRB, 2), add(sT2, sT2, sT3), mul(sSP, sT2, PWAVE),
            shl(sT3, sC, 12), add(sSP, sSP, sT3), valu('v_mov_b32', vO, OOB)]]
    for i in range(3):
        ld = bload('buffer_load_dword', vDUM, vG[i], sWS, sT2); ld.tag = 'pf'
        cmp_ = raw(f"v_cmp_lt_u32 vcc, {sC}, {vG[i]}", 'valu', wr=['vcc'], rd=[sC, vG[i]])
        pre = [cmp_]
        if i == 2: pre += [raw("s_and_b64 vcc, vcc, 0xff", 'salu', wr=['vcc'], rd=['vcc'])]
        out.append(pre + [add(sT2, sSP, 8 * i * PSTR()), valu('v_cndmask_b32', vG[i], vO, vGA, 'vcc'), ld])
    return out
def red_eval():
    o = [raw(f"v_cmp_ne_u32 vcc, 0, {vP}", 'valu', wr=['vcc'], rd=[vP]), nop(1),
         raw(f"s_lshr_b64 {sAB}, vcc, {NPART + 1}", 'salu', wr=[sAB], rd=['vcc']), salu('s_and_b32', sAB[1], sAB[1], 15), smov(sRS, 0), smov(sRF, 0)]
    for c in range(9):
        o += [raw(f"v_cmp_ge_u32 vcc, {c}, {vP}", 'valu', wr=['vcc'], rd=[vP]), nop(1),
              raw(f"s_and_b32 {sT2}, vcc_lo, {hex((1 << NS) - 1)}", 'salu', wr=[sT2], rd=['vcc']), csel(sRS, sRS, 4 * (c + 1)),
              raw(f"s_and_b32 {sT2}, vcc_lo, {hex((1 << NPART) - (1 << NS))}", 'salu', wr=[sT2], rd=['vcc']), csel(sRF, sRF, 4 * (c + 1))]
    return o
def red_pub(par):
    return [shl(sT2, sRF, 8), salu('s_or_b32', sT2, sT2, sRS), shl(sT3, sTO, 16), salu('s_or_b32', sT2, sT2, sT3),
            valu('v_mov_b32', vIT, sT2), valu('v_mov_b32', vLA, par), raw(f"ds_write_b32 {vLA}, {vIT}", 'other', rd=[vLA, vIT]), waitlg(0)]
def red_get(par):
    return [valu('v_mov_b32', vLA, par), raw(f"ds_read_b32 {vIT}, {vLA}", 'ds', wr=[vIT], rd=[vLA]), waitlg(0),
            valu('v_readfirstlane_b32', sT2, vIT), salu('s_and_b32', sRS, sT2, 255), salu('s_bfe_u32', sRF, sT2, (8 << 16) | 8), shr(sTO, sT2, 16)]
def red_early(p, n):
    E = p.emit
    E([smov(sRS, 0), smov(sRF, 0), smov(sOK, 0), smov(sTO, 0), smov(sPAR, LDSC + 4), nop(1)])
    E(salu('s_cmp_eq_u32', None, sWAVE, 0)); E(raw(f"s_cbranch_scc0 L_{n}_e2"))
    E(waitvm(p.vm_wait_for(lambda t: t == 'poll')))
    E(valu('v_readfirstlane_b32', sOK, vD))
    E(salu('s_cmp_ge_u32', None, sOK, 16)); E(raw(f"s_cbranch_scc0 L_{n}_e1"))
    E(red_eval())
    E(label(f"L_{n}_e1"))
    E(red_pub(LDSC))
    E(label(f"L_{n}_e2"))

def ld_part(L, ks, flags):
    out = []
    for k in ks:
        out.append([add(sT2, sPART, k * PSTR()), bload('buffer_load_dwordx4', v(L + 4 * k, 4), vLD, sWS, sT2, flags=flags)])
    return out
def ld_x(L, sXO_):
    if CFG.get('nox'): return [[valu('v_mov_b32', vA, OOB), bload('buffer_load_dwordx2', v(L + 4 * NPART, 2), vA, sX, sXO_)], [bload('buffer_load_dwordx2', v(L + 4 * NPART + 2, 2), vA, sX, sXO_, 32)]]
    return [[bload('buffer_load_dwordx2', v(L + 4 * NPART, 2), vXO, sX, sXO_)], [bload('buffer_load_dwordx2', v(L + 4 * NPART + 2, 2), vXO, sX, sXO_, 32)]]
RB_ = 48
sD0, sD1 = s(68), s(69)
def proc_sum(E, L, ks, after, loads):
    SA, FA, T = RB_, RB_ + 8, RB_ + 16
    issued = 0; ks = list(ks)
    E(smov(sT3, 0xffff0000))
    for j, k in enumerate(ks):
        if loads: E(loads.pop(0)); issued += 1
        E(waitvm(len(ks) - 1 - j + after + issued))
        acc = SA if k < NS else FA
        for q in range(4):
            x = v(L + 4 * k + q)
            if k in (0, NS):
                E(valu('v_lshlrev_b32', v(acc + 2 * q), 16, x)); E(valu('v_and_b32', v(acc + 2 * q + 1), sT3, x))
            else:
                E(valu('v_dot2c_f32_bf16', v(acc + 2 * q), sD0, x, rmw=True)); E(valu('v_dot2c_f32_bf16', v(acc + 2 * q + 1), sD1, x, rmw=True))
    return issued
def proc_fin(E, L, sXO_, xwait, loads):
    SA, FA, T = RB_, RB_ + 8, RB_ + 16; XR = L + 4 * NPART; issued = 0
    for e in range(8): E(valu('v_exp_f32', v(T + e), v(FA + e)))
    for e in range(8): E(valu('v_add_f32', v(T + e), 1.0, v(T + e)))
    while len(loads) > 1: E(loads.pop(0)); issued += 1
    for e in range(8): E(valu('v_rcp_f32', v(T + e), v(T + e)))
    for e in range(8): E(valu('v_mul_f32', v(FA + e), f2u(-math.log(2.0)), v(FA + e)))
    for e in range(8): E(valu('v_mul_f32', v(FA + e), v(FA + e), v(T + e)))
    while loads: E(loads.pop(0)); issued += 1
    if xwait is not None: E(waitvm(xwait + issued))
    for q in range(4):
        E(valu('v_lshlrev_b32', v(T + 2 * q), 16, v(XR + q))); E(valu('v_and_b32', v(T + 2 * q + 1), sT3, v(XR + q)))
    for e in range(8): E(valu('v_fma_f32', v(T + e), v(SA + e), v(FA + e), v(T + e)))
    for q in range(4): E(valu('v_cvt_pk_bf16_f32', v(XR + q), v(T + 2 * q), v(T + 2 * q + 1)))
    if CFG.get('out4', True):
        def dpp(d, src, bank): return I(f"v_mov_b32_dpp {d}, {src} row_ror:8 row_mask:0xf bank_mask:{bank}", 'perm', wr=d.regs(), rd=src.regs() + d.regs())
        for i in range(2): E(valu('v_permlane16_swap_b32', v(XR + i), v(XR + 2 + i), rmw=True, extra_wr=[v(XR + 2 + i)]))
        for i in range(2): E(valu('v_mov_b32', v(T + i), v(XR + i)))
        for i in range(2): E(dpp(v(XR + i), v(XR + 2 + i), '0xc'))
        for i in range(2): E(dpp(v(XR + 2 + i), v(T + i), '0x3'))
        E(bstore('buffer_store_dwordx4', v(XR, 4), vX4, sOUT, sXO_, flags=CFG.get('oflags', 'sc1')))
        E(valu('v_mov_b32', vO, OOB)); E(bstore('buffer_store_dword', vO, vO, sOUT, 0))
        return
    E(bstore('buffer_store_dwordx2', v(XR, 2), vXO, sOUT, sXO_)); E(bstore('buffer_store_dwordx2', v(XR + 2, 2), vXO, sOUT, sXO_, 32))
def proc_all(E, L, sXO_, pre, loads):
    loads = list(loads)
    n = proc_sum(E, L, range(NPART), 2 + pre, loads)
    proc_fin(E, L, sXO_, pre + n, loads)

def acc_part(E, L, k):
    acc = RB_ if k < NS else RB_ + 8
    for q in range(4):
        x = v(L + 4 * k + q)
        if k in (0, NS):
            E(valu('v_lshlrev_b32', v(acc + 2 * q), 16, x)); E(valu('v_and_b32', v(acc + 2 * q + 1), sT3, x))
        else:
            E(valu('v_dot2c_f32_bf16', v(acc + 2 * q), sD0, x, rmw=True)); E(valu('v_dot2c_f32_bf16', v(acc + 2 * q + 1), sD1, x, rmw=True))
def stream(E, segs, hooks=None):
    W = CFG.get('rwin', 8); FL = CFG.get('fflags', 'sc1')
    seq = []
    for (L, sP, sX_, ks, wx, fin) in segs:
        if wx:
            for it in ld_x(L, sX_): seq.append((it, None))
        ks = list(ks)
        for j, k in enumerate(ks):
            it = [add(sT2, sP, k * PSTR()), bload('buffer_load_dwordx4', v(L + 4 * k, 4), vLD, sWS, sT2, flags=FL)]
            last = fin and j == len(ks) - 1
            seq.append((it, (lambda L=L, k=k, last=last, sX_=sX_: (acc_part(E, L, k), proc_fin(E, L, sX_, None, []) if last else None, last)[2])))
    E(smov(sT3, 0xffff0000))
    n = len(seq); issued = 0
    extra_at = []
    for c in range(n):
        while issued < min(n, c + W): E(seq[issued][0]); issued += 1
        if hooks and c in hooks:
            for _ in range(hooks[c](issued + sum(1 for e in extra_at))): extra_at.append(issued)
            E(smov(sT3, 0xffff0000))
        if seq[c][1] is None: continue
        E(waitvm(issued - 1 - c + sum(1 for e in extra_at if e > c)))
        if seq[c][1]():
            extra_at += [issued, issued]

def body_items(E, n, its, two, ni, ensure, refresh, done, ST, seg, final_flag, poll_hook, LATE, L0, L1, FOUR, sMID, offs, sPT):
    E(salu('s_min_u32', sT2, sRS, sRF)); E(salu('s_cmp_lt_u32', None, its[two - 1], sT2)); E(raw(f"s_cbranch_scc0 L_{n}_sl"))
    ST(its[0])
    hooks = {(NPART + 2) * two - CFG.get('pollat', 8): poll_hook}
    if LATE: hooks[CFG.get('flagat', 3) if n == 'A' else 0] = final_flag
    stream(E, [seg(0, L0), seg(1, L1)][:two], hooks)
    ST(51)
    E(raw(f"s_branch L_{n}_j"))
    E(label(f"L_{n}_sl"))
    if LATE and two == 2 and CFG.get('mid1', 1):
        E(salu('s_min_u32', sT2, sRS, sRF)); E(salu('s_cmp_lt_u32', None, its[0], sT2)); E(raw(f"s_cbranch_scc0 L_{n}_s0"))
        ST(52)
        stream(E, [seg(0, L0)], {CFG.get('flagat', 3): final_flag, 12: poll_hook}); done(its[0])
        refresh(2); ensure(its[1], 1, 1)
        stream(E, [seg(1, L1)], {11: poll_hook})
        E(raw(f"s_branch L_{n}_j"))
        E(label(f"L_{n}_s0"))
    if LATE: final_flag(0)
    for i in range(two):
        ensure(its[i], 1, 1)
        stream(E, [seg(i, L0)], {11: poll_hook} if i == two - 1 else None); done(its[i])
    E(label(f"L_{n}_j"))
    for i in range(two): done(its[i])
    if FOUR or (CFG.get('asg') == 3 and n == 'A'):
        E(salu('s_cmp_gt_u32', None, sMID, 35)); E(raw(f"s_cbranch_scc1 L_{n}_nm"))
        refresh(2)
        ensure(sMID, 1, 1); ST(sMID)
        E(offs(sMID, sXP[0]))
        stream(E, [seg(0, L1)], {13: poll_hook}); done(sMID)
        E(label(f"L_{n}_nm"))
    def warm():
        if not CFG.get('warm', 1): return
        E(valu('v_mov_b32', v(240), vLD)); E(valu('v_mov_b32', v(241), vX4)); E(valu('v_mov_b32', vLD, OOB)); E(valu('v_mov_b32', vX4, OOB))
        E(raw(f"s_call_b64 {sRET2}, L_{n}_ft"))
        E(valu('v_mov_b32', vLD, v(240))); E(valu('v_mov_b32', vX4, v(241)))
    if ni == 3:
        if CFG.get('asg') == 3:
            E(salu('s_cmp_lt_u32', None, its[2], 36)); E(raw(f"s_cbranch_scc1 L_{n}_h3"))
            E(red_poll(True)[1]); E(waitvm(0)); E(raw(f"s_branch L_{n}_fin")); E(label(f"L_{n}_h3"))
        refresh(2)
        if CFG.get('nof'):
            E(salu('s_cmp_gt_u32', None, sMD2, 35)); E(raw(f"s_cbranch_scc1 L_{n}_k1"))
            ensure(sMD2, 1, 1); E(offs(sMD2, sXP[0])); ST(sMD2)
            E(salu('s_cmp_lt_u32', None, its[2], sRS)); E(raw(f"s_cbranch_scc0 L_{n}_k0"))
            E(salu('s_cmp_lt_u32', None, its[2], sRF)); E(raw(f"s_cbranch_scc1 L_{n}_k0"))
            warm()
            stream(E, [seg(0, L1), seg(2, L0, range(NS), True, False)], {20: poll_hook.sh}); done(sMD2)
            E(raw(f"s_branch L_{n}_k2"))
            E(label(f"L_{n}_k0"))
            stream(E, [seg(0, L1)], {11: poll_hook}); done(sMD2)
            refresh(2)
            E(label(f"L_{n}_k1"))
        ensure(its[2], 1, 0); ST(its[2])
        E(salu('s_cmp_lt_u32', None, its[2], sRF)); E(raw(f"s_cbranch_scc1 L_{n}_f3"))
        if CFG.get('rep') and n == 'A':
            warm()
            stream(E, [seg(2, L0, range(NS), True, False)], {4: poll_hook.sh})
            E(label(f"L_{n}_k2"))
            E(salu('s_cmp_eq_u32', None, sWAVE, 0)); E(raw(f"s_cbranch_scc0 L_{n}_w2"))
            E(waitvm(0))
            E(raw(f"v_cmp_ne_u32 vcc, 0, {vP}", 'valu', wr=['vcc'], rd=[vP])); E(nop(1))
            E(raw(f"s_lshr_b64 {sAB}, vcc, {NPART + 1}", 'salu', wr=[sAB], rd=['vcc'])); E(salu('s_and_b32', sAB[1], sAB[1], 15))
            E(salu('s_or_b32', sT2, sAB[0], sAB[1])); E(csel(sRS, 1, 0))
            E(shr(sC, its[2], 2)); E(mul(sI, sROLE, NREP * 128)); E(add(sI, sI, sPB)); E(add(sI, sI, 2048)); E(add(sSP, sI, NREP * 128))
            E(label(f"L_{n}_w0"))
            E(bload('buffer_load_dword', vP, vL5, sWS, sI, flags='sc1')); E(waitvm(0))
            E(raw(f"v_cmp_ge_u32 vcc, {sC}, {vP}", 'valu', wr=['vcc'], rd=[vP, sC])); E(nop(1))
            E(raw(f"s_and_b32 {sT2}, vcc_lo, {hex((1 << NPART) - (1 << NS))}", 'salu', wr=[sT2], rd=['vcc'])); E(csel(sRF, 0, 36))
            E(raw(f"s_cbranch_scc0 L_{n}_w1"))
            E(add(sI, sI, 128)); E(salu('s_cmp_lt_u32', None, sI, sSP)); E(raw(f"s_cbranch_scc0 L_{n}_w1"))
            E(raw(f"s_sleep {CFG.get('rsleep', 6)}")); E(raw(f"s_branch L_{n}_w0"))
            E(label(f"L_{n}_w1")); E(red_pub(sPAR))
            E(label(f"L_{n}_w2")); E(barrier()); E(red_get(sPAR)); E(salu('s_xor_b32', sPAR, sPAR, 12))
            E(smov(sMID, sRS))
            ensure(its[2], 0, 1); ST(50)
            E(raw(f"s_call_b64 {sRET2}, L_{n}_ft")); done(its[2])
            E(salu('s_cmp_eq_u32', None, sMID, 0)); E(raw(f"s_cbranch_scc1 L_{n}_exit")); E(raw(f"s_branch L_{n}_fb"))
            E(label(f"L_{n}_ft"))
            stream(E, [seg(2, L0, range(NS, NPART), False, True)])
            E(raw(f"s_setpc_b64 {sRET2}"))
        else:
            stream(E, [seg(2, L0, range(NS), True, False)], {6: poll_hook})
            refresh(0)
            ensure(its[2], 0, 1); ST(50)
            stream(E, [seg(2, L0, range(NS, NPART), False, True)], {0: poll_hook.sh})
            E(raw(f"s_branch L_{n}_f4"))
        E(label(f"L_{n}_f3"))
        stream(E, [seg(2, L0)], {11: poll_hook.sh})
        E(label(f"L_{n}_f4"))
        done(its[2])


def reducer(kind):
    p = Prog(); E = p.emit; n = kind; FL = CFG.get('fflags', 'sc1')
    PRIV[0] = (kind == 'A')
    def ST(code):
        if CFG['stamps'] != 2: return
        E(raw(f"s_memtime {sSTAMP}", wr=[sSTAMP])); E(raw("s_waitcnt lgkmcnt(0)")); E(salu('s_sub_u32', s(98), s(98), s(100)))
        E(shl(s(98), s(98), 6)); E(salu('s_or_b32', s(98), s(98), code))
        E(add(s(97), s(97), 16)); E(salu('s_min_u32', s(97), s(97), 11 * 16))
        E(raw(f"v_cmp_eq_u32 vcc, s97, {vLANE16}", 'valu', wr=['vcc'], rd=[s(97), vLANE16])); E(valu('v_mov_b32', v(27), s(98)))
        E(valu('v_cndmask_b32', vSTAMP, vSTAMP, v(27), 'vcc'))
    def offs(item, sX_):
        return [salu('s_and_b32', sT2, item, 3), shr(sC, item, 2), shl(sT3, sRB, 2), add(sT2, sT2, sT3), mul(sPART, sT2, PWAVE), add(sX_, sPART, sXW),
                shl(sT3, sC, 12), add(sT3, sT3, sPWv), add(sPART, sPART, sT3), shl(sT3, sC, 7), add(sX_, sX_, sT3)]
    k_ = [0]
    def ensure(item, s_, f_):
        L = f"L_{n}_en{k_[0]}"; k_[0] += 1
        if s_ and f_: E(salu('s_min_u32', sT2, sRS, sRF)); r = sT2
        else: r = sRS if s_ else sRF
        E(salu('s_cmp_lt_u32', None, item, r)); E(raw(f"s_cbranch_scc1 {L}"))
        E(smov(sI, item)); E(smov(sC, (1 if s_ else 0) | (2 if f_ else 0)))
        E(raw(f"s_call_b64 {sRET2}, L_{n}_sync"))
        E(salu('s_cmp_eq_u32', None, sTO, 0)); E(raw(f"s_cbranch_scc0 L_{n}_fb"))
        E(label(L))
    def done(item): E(raw(f"s_bitset0_b64 {sRM}, {item}", 'salu', wr=[sRM], rd=[sRM, item]))
    E(label(f"L_{n}_red"))
    if CFG.get('rdelay'):
        if n == 'A': (E(waitvm(0)), E(barrier()), E(valu('v_mov_b32', vPRG, 9)), E(bstore('buffer_store_dword', vPRG, vCT, sWS, 0, flags='sc1')))
        for _ in range({'A': 30, 'M': 24, 'F': 14}[n]): E(raw("s_sleep 16"))
    E(red_get(LDSC))
    if CFG.get('rdelay'): E(smov(sRS, 36)); E(smov(sRF, 36))
    E(valu('v_lshrrev_b32', vO, 4, vLANE16)); E(valu('v_and_b32', vXO, 7, vO)); E(valu('v_lshlrev_b32', vLD, 4, vXO))
    E(smov(sT2, 1152)); E(valu('v_mul_u32_u24', vXO, sT2, vXO))
    E(valu('v_lshrrev_b32', vA, 3, vO)); E(valu('v_lshl_add_u32', vX4, vA, 4, vXO))
    E(valu('v_bfe_u32', vA, vO, 3, 2)); E(valu('v_lshl_add_u32', vXO, vA, 3, vXO)); E(valu('v_lshl_add_u32', vLD, vA, 8, vLD))
    E(valu('v_lshrrev_b32', vA, 5, vO)); E(valu('v_lshl_add_u32', vXO, vA, 6, vXO)); E(valu('v_lshl_add_u32', vLD, vA, 11, vLD))
    E(mul(sXW, sWAVE, 8 * 1152)); E(shr(sPWv, sWAVE, 1)); E(shl(sPWv, sPWv, 10)); E(salu('s_and_b32', sT2, sWAVE, 1)); E(shl(sT2, sT2, 7)); E(add(sPWv, sPWv, sT2))
    L0, L1 = 72, 76 + 4 * NPART
    E(smov(sD0, 0x3f80)); E(smov(sD1, 0x3f800000))
    E(raw(f"s_mov_b64 {sRM}, 0", 'salu', wr=[sRM]))
    FOUR = CFG.get('four')
    sMID = s(48 + 0) if False else s(83)
    def nib(dst, tab, base):
        E(smov(sCD[0], sum(tab[i] << (4 * i) for i in range(8)))); E(smov(sCD[1], tab[8] | (tab[9] << 4)))
        E(shl(sT2, sROLE, 2)); E(s64('s_lshr_b64', sCD, sCD, sT2)); E(salu('s_and_b32', dst, sCD[0], 15))
        E(salu('s_cmp_eq_u32', None, dst, 15)); E(csel(dst, 63 - base, dst)); E(add(dst, dst, base))
    if n == 'A':
        E(smov(sIT[0], sROLE)); E(add(sIT[1], sROLE, NA))
        if CFG.get('asg') == 2: E(add(sIT[2], sROLE, 16))
        elif CFG.get('asg') == 3:
            E(add(sMID, sROLE, 16)); E(raw(f"s_bitset1_b64 {sRM}, {sMID}", 'salu', wr=[sRM], rd=[sRM, sMID]))
            E(salu('s_and_b32', sT2, sROLE, 1)); E(shr(sIT[2], sROLE, 1)); E(add(sIT[2], sIT[2], 24)); E(salu('s_cmp_eq_u32', None, sT2, 0)); E(csel(sIT[2], sIT[2], 63))
        elif CFG.get('l844'): E(add(sIT[2], sROLE, 28))
        elif FOUR:
            nib(sMID, [0, 15, 1, 2, 15, 3, 4, 5, 6, 7], 20); nib(sIT[2], [0, 1, 15, 2, 3, 15, 4, 5, 6, 7], 28)
            E(raw(f"s_bitset1_b64 {sRM}, {sMID}", 'salu', wr=[sRM], rd=[sRM, sMID]))
        else:
            nib(sIT[2], [0, 1, 15, 2, 3, 15, 4, 5, 6, 7], 28)
            E(salu('s_cmp_eq_u32', None, sROLE, 2)); E(csel(sIT[2], 22, sIT[2])); E(salu('s_cmp_eq_u32', None, sROLE, 5)); E(csel(sIT[2], 21, sIT[2]))
            if CFG.get('nof'):
                nib(sMD2, CFG['nof'], 23)
                E(raw(f"s_bitset1_b64 {sRM}, {sMD2}", 'salu', wr=[sRM], rd=[sRM, sMD2]))
        its = sIT
    elif CFG.get('asg') == 2:
        if n == 'M': E(add(sIT[0], sROLE, 16)); E(add(sIT[1], sROLE, 20)); its = sIT[:2]
        else: E(add(sIT[0], sROLE, 20)); its = sIT[:1]
    elif CFG.get('asg') == 3:
        E(add(sIT[0], sROLE, 20)); its = sIT[:1]
    elif CFG.get('l844'):
        if n == 'M': E(add(sIT[0], sROLE, 8)); E(add(sIT[1], sROLE, 12)); its = sIT[:2]
        else: E(add(sIT[0], sROLE, 12)); its = sIT[:1]
    elif n == 'M': E(smov(sIT[0], 20)); its = sIT[:1]
    else:
        E(add(sIT[0], sROLE, 12)); its = sIT[:1]
    if (FOUR and n != 'A') or (CFG.get('nof') and n == 'F'):
        its = []
        E(waitvm(0)); E(red_poll()[1]); E(waitvm(0)); E(raw(f"s_branch L_{n}_fin"))
    for it in its: E(raw(f"s_bitset1_b64 {sRM}, {it}", 'salu', wr=[sRM], rd=[sRM, it]))
    E(salu('s_and_b32', sRM[1], sRM[1], 15))
    def refresh(wait):
        L = f"L_{n}_rf{k_[0]}"; k_[0] += 1
        E(salu('s_cmp_eq_u32', None, sWAVE, 0)); E(raw(f"s_cbranch_scc0 {L}"))
        E(waitvm(wait)); E(red_eval()); E(red_pub(sPAR))
        E(label(L)); E(barrier()); E(red_get(sPAR)); E(salu('s_xor_b32', sPAR, sPAR, 12))
    ALLD = lambda L, sx: ld_part(L, range(NPART), FL) + ld_x(L, sx)
    LATE = n in CFG.get('lateflag', 'A') + CFG.get('pre', '')
    sPT = [s(47), s(67 - 2), s(70)]
    def offs2(i): return offs(its[i], sXP[i]) + ([smov(sPT[i], sPART)] if i else [])
    def final_flag(wait):
        E(waitvm(wait)); E(barrier())
        E(valu('v_mov_b32', vPRG, 9))
        if CFG.get('rep') and n in 'FM': E(bstore('buffer_store_dword', vPRG, vCR, sWS, 0, flags='sc1'))
        E(bstore('buffer_store_dword', vPRG, vCT, sWS, 0, flags='sc1'))
        return 2 if (CFG.get('rep') and n in 'FM') else 1
    def poll_hook(_): E(red_poll()[1]); return 2
    def poll_sh(_): E(red_poll(True)[1]); return 2
    poll_hook.sh = poll_sh
    seg = lambda i, L, ks=range(NPART), wx=True, fin=True: (L, sPT[i], sXP[i], ks, wx, fin)
    ni = len(its)
    for i in reversed(range(ni)): E(offs2(i))
    two = min(ni, 2)
    if ni: body_items(E, n, its, two, ni, ensure, refresh, done, ST, seg, final_flag, poll_hook, LATE, L0, L1, FOUR, sMID, offs, sPT)
    E(label(f"L_{n}_fin"))
    E(salu('s_cmp_eq_u32', None, sWAVE, 0)); E(raw(f"s_cbranch_scc0 L_{n}_b4"))
    E(waitvm(2))
    E(raw(f"v_cmp_ne_u32 vcc, 0, {vP}", 'valu', wr=['vcc'], rd=[vP])); E(nop(1))
    E(raw(f"s_lshr_b64 {sAB}, vcc, {NPART + 1}", 'salu', wr=[sAB], rd=['vcc'])); E(salu('s_and_b32', sAB[1], sAB[1], 15))
    E(salu('s_or_b32', sT2, sAB[0], sAB[1])); E(csel(sTO, 1, 0))
    E(salu('s_cmp_ge_u32', None, sOK, 16)); E(csel(sTO, sTO, 1)); E(red_pub(sPAR))
    E(label(f"L_{n}_b4")); E(barrier()); E(red_get(sPAR)); E(salu('s_xor_b32', sPAR, sPAR, 12))
    E(salu('s_cmp_eq_u32', None, sTO, 0)); E(raw(f"s_cbranch_scc1 L_{n}_exit"))
    E(label(f"L_{n}_fb"))
    E(waitvm(0))
    E(salu('s_cmp_eq_u32', None, sWAVE, 0)); E(raw(f"s_cbranch_scc0 L_{n}_fb2"))
    E(s64('s_lshl_b64', sCD, sRM, NPART + 1)); E(valu('v_mov_b32', vO, OOB)); E(valu('v_mov_b32', vA, 1))
    E(valu('v_cndmask_b32', vO, vO, vL4, sCD)); E(bstore('buffer_store_dword', vA, vO, sWS, sPB, flags='sc1')); E(waitvm(0))
    E(red_poll()[0]); E(waitvm(0)); E(red_poll(True)[1]); E(waitvm(0)); E(valu('v_readfirstlane_b32', sOK, vD)); E(red_eval())
    E(salu('s_min_u32', sT2, sRS, sRF)); E(salu('s_cmp_ge_u32', None, sOK, 16)); E(csel(sT2, sT2, 0))
    E(salu('s_bfm_b64', sCD, sT2, 0, scc_w=False)); E(s64('s_or_b64', sAB, sAB, sRM)); E(s64('s_and_b64', sAB, sAB, sCD))
    E(label(f"L_{n}_fb1"))
    E(raw(f"s_ff1_i32_b64 {sRS}, {sAB}", 'salu', wr=[sRS], rd=[sAB])); E(salu('s_and_b32', sRS, sRS, 255))
    E(raw(f"s_bitset0_b64 {sAB}, {sRS}", 'salu', wr=[sAB], rd=[sAB, sRS])); E(red_pub(sPAR))
    E(label(f"L_{n}_fb2")); E(barrier()); E(red_get(sPAR)); E(salu('s_xor_b32', sPAR, sPAR, 12))
    E(salu('s_cmp_ge_u32', None, sRS, 36)); E(raw(f"s_cbranch_scc1 L_{n}_exit"))
    E(offs(sRS, sXP[0])); E(ld_part(L0, range(NPART), FL) + ld_x(L0, sXP[0])); E(waitvm(0)); proc_all(E, L0, sXP[0], 0, [])
    E(salu('s_cmp_eq_u32', None, sWAVE, 0)); E(raw(f"s_cbranch_scc1 L_{n}_fb1")); E(raw(f"s_branch L_{n}_fb2"))
    E(label(f"L_{n}_exit"))
    ST(60)
    if CFG['stamps']: E(raw(f"s_setpc_b64 {sRET}"))
    else: E(raw("s_endpgm"))
    E(label(f"L_{n}_sync"))
    E(salu('s_cmp_eq_u32', None, sWAVE, 0)); E(raw(f"s_cbranch_scc0 L_{n}_sy2"))
    E(smov(sSP, 0)); E(red_poll()[1][0])
    E(label(f"L_{n}_sy0"))
    E(salu('s_cmp_ge_u32', None, sOK, 16)); E(raw(f"s_cbranch_scc1 L_{n}_sy1"))
    E(red_poll()[0]); E(waitvm(0)); E(valu('v_readfirstlane_b32', sOK, vD))
    E(salu('s_cmp_ge_u32', None, sOK, 16)); E(raw(f"s_cbranch_scc0 L_{n}_syw"))
    E(label(f"L_{n}_sy1"))
    E(red_poll()[1][1]); E(red_poll()[1][0]); E(waitvm(1)); E(red_eval())
    E(salu('s_bitcmp1_b32', None, sC, 0)); E(csel(sT2, sRS, 36)); E(salu('s_bitcmp1_b32', None, sC, 1)); E(csel(sT3, sRF, 36))
    E(salu('s_min_u32', sT2, sT2, sT3)); E(salu('s_cmp_lt_u32', None, sI, sT2)); E(raw(f"s_cbranch_scc1 L_{n}_syp"))
    E(label(f"L_{n}_syw"))
    E(add(sSP, sSP, 1)); E(salu('s_cmp_gt_u32', None, sSP, CFG.get('spin', 4000))); E(csel(sTO, 1, 0)); E(raw(f"s_cbranch_scc1 L_{n}_syp"))
    E(raw(f"s_sleep {CFG.get('sleep', 1)}")); E(raw(f"s_branch L_{n}_sy0"))
    E(label(f"L_{n}_syp"))
    E(red_pub(sPAR))
    E(label(f"L_{n}_sy2")); E(barrier()); E(red_get(sPAR)); E(salu('s_xor_b32', sPAR, sPAR, 12))
    E(raw(f"s_setpc_b64 {sRET2}"))
    return p

def reduce_items(p, ni, sPART_, sXO_, srdP, srdX, srdO, vL16, vXO_, base, flags, mid=None):
    E = p.emit
    SA = base; FA = base + 8; T = base + 16
    Ls = [base + 24 + 72 * i for i in range(ni)]
    for k in range(NPART):
        if k: E(add(sPART_, sPART_, 16 * PART - (PWAVE if ni == 2 else 0)))
        for i in range(ni):
            if i: E(add(sPART_, sPART_, PWAVE))
            E(bload('buffer_load_dwordx4', v(Ls[i] + 4 * k, 4), vL16, srdP, sPART_, flags=flags))
    for i in range(ni):
        XR = Ls[i] + 68
        if i: E(add(sT2, sXO_, 32 * 1152))
        so = sT2 if i else sXO_
        E(bload('buffer_load_dwordx2', v(XR, 2), vXO_, srdX, so)); E(bload('buffer_load_dwordx2', v(XR + 2, 2), vXO_, srdX, so, 32))
    ex = 0
    if mid: mid(); ex = 1
    E(smov(sT3, 0xffff0000))
    for i in range(ni):
        L = Ls[i]; XR = L + 68
        for k in range(NPART):
            if i == 0: E(waitvm((NPART - 1 - k) * ni + (ni - 1) + 2 * ni + ex))
            acc = SA if k < 11 else FA
            for q in range(4):
                x = v(L + 4 * k + q)
                if k in (0, 11):
                    E(valu('v_lshlrev_b32', v(acc + 2 * q), 16, x)); E(valu('v_and_b32', v(acc + 2 * q + 1), sT3, x))
                else:
                    tp = v(T + 2 * q, 2)
                    E(valu('v_lshlrev_b32', tp[0], 16, x)); E(valu('v_and_b32', tp[1], sT3, x))
            if k not in (0, 11):
                for q in range(4): E(valu('v_pk_add_f32', v(acc + 2 * q, 2), v(acc + 2 * q, 2), v(T + 2 * q, 2)))
        for e in range(8): E(valu('v_exp_f32', v(T + e), v(FA + e)))
        for e in range(8): E(valu('v_add_f32', v(T + e), 1.0, v(T + e)))
        for e in range(8): E(valu('v_rcp_f32', v(T + e), v(T + e)))
        for e in range(8): E(valu('v_mul_f32', v(FA + e), f2u(-math.log(2.0)), v(FA + e)))
        for e in range(8): E(valu('v_mul_f32', v(FA + e), v(FA + e), v(T + e)))
        if i == 0: E(waitvm(ex if ni == 1 else 0))
        for q in range(4):
            E(valu('v_lshlrev_b32', v(T + 2 * q), 16, v(XR + q))); E(valu('v_and_b32', v(T + 2 * q + 1), sT3, v(XR + q)))
        for e in range(8): E(valu('v_fma_f32', v(T + e), v(SA + e), v(FA + e), v(T + e)))
        for q in range(4): E(valu('v_cvt_pk_bf16_f32', v(XR + q), v(T + 2 * q), v(T + 2 * q + 1)))
        if i: E(add(sXO_, sXO_, 32 * 1152))
        E(bstore('buffer_store_dwordx2', v(XR, 2), vXO_, srdO, sXO_)); E(bstore('buffer_store_dwordx2', v(XR + 2, 2), vXO_, srdO, sXO_, 32))

def build_role(kind, vm_before):
    R = Role(kind)
    CFG['shape'] = CFG.get('shapes', {}).get(kind, CFG['shape0'])
    R.ring = {'F': (216, 9), 'A': (192, 16), 'M': (200, 8)}[kind]
    if kind == 'M': R.depth = 7
    nl = CFG.get('pfl', 16)
    MS = CFG['shape'] == 'M'
    if MS:
        R.add_p1_unit, R.add_p1_half, R.epi_silu, R.epi_q = R.add_p1_unitM, R.add_p1_halfM, R.epi_siluM, R.epi_qM
    P2M = 'q16' if MS else 'pi'
    if kind == 'F' and CFG.get('l844'):
        R.ring = (208, 12); R.depth = 7
        for u in range(13): R.add_p1_unit(u, sW1, sHA, sHC, 9216, u == 0, a(16 * u, 16), R.epi_silu, last=(u == 12),
                                          inreg=[pf_run(sW2, sPF2, 832 * 1152, 10) if u >= 1 else None, pf_row('F', sW1)])
        needs = {t: [('reg', 8 * t)] for t in range(26)}
        dm = [dma_w(sW2, sFA, 0, 1152, sFC, 0), dma_w(sW2, sFA, 288 * 1152, 1152, sFC, 288 * 1152), dma_w(sW2, sFA, 576 * 1152, 1152)]
        R.add_p2([(a(0, 208), [288, 288, 256], dm, needs, sSt)], [add(x, x, 128) for x in (sFA, sFC)], pre0=lambda: set_offw(1152, P2M))
        for st in R.stages[-27:]: st.ring = (208, 12, 'restart')
    elif kind == 'M' and CFG.get('l844'):
        R.ring = (208, 8); R.depth = 7
        Q = [a(80, 32), a(112, 32)]; OA = a(144, 64)
        def mpf(u):
            if u == 0: return pf_row('M', sWQ)
            if u == 1: return lambda: pf_row_setup('M', 9216, 18, sPF1, 0) + [pf_row('M', sW1)()[1]]
            if u <= 5: return pf_row('M', sW1)
            return None
        for u in range(4): R.add_p1_unit(u, sWQ, sQA, sQC, 8192, u == 0, a(80 + 16 * u, 16), R.epi_q, key='Q', inreg=[None, mpf(u)])
        for u in range(5): R.add_p1_unit(4 + u, sW1, sHA, sHC, 9216, u == 0, a(16 * u, 16), R.epi_silu, pre=(lambda: set_offw(9216, 'S')) if u == 0 else None,
                                         last=(u == 4), key='H', inreg=[None, mpf(4 + u)])
        Ha = dict(i=0, Q=Q[0], S=Sreg, P=Preg, O=OA, LM=v(230, 8), OF=lambda kk: OA.sub(16 * kk, 8),
                  need_qk=[('acc', 80), ('acc', 96)], need_pv=[('acc', 48 + 16 * i) for i in range(4)])
        Hb = dict(i=1, Q=Q[1], S=[v(80, 16), v(96, 16)], P=[v(48, 8), v(56, 8)], O=v(160, 64), LM=v(64, 8), OF=lambda kk: OA.sub(16 * kk + 8, 8))
        R.add_pa_g([[Ha, Hb]])
        R.stages[-9].mf[-1].need.append(('acc', 48))
        R.heads = [(Ha, sPFa), (Hb, sPFa)]
        R.add_p2m(a(0, 80), [H['OF'](kk) for H in (Ha, Hb) for kk in range(4)],
                  [dma_w(sW2, sFA, 0, 1152, sFC, 0), dma_w(sWO, sOA, 0, 1152, sFC, 32 * 1152, srdC=sW2)],
                  [add(x, x, 128) for x in (sOA, sFA, sFC)], pre0=lambda: set_offw(1152, P2M))
        for st in R.stages[-18:]: st.ring = (208, 12, 'restart')
        k = pf_sched(R, 15, sK, sPFa, 131072, 16); k = pf_sched(R, k, sV, sPFa, 131072, 16)
        pf_sched(R, 17, sWO, sPFc, 256 * 1152, 36); pf_sched(R, 18, sW2, sPF2, 320 * 1152, 45)
    elif kind == 'F':
        for u in range(13): R.add_p1_unit(u, sW1, sHA, sHC, 9216, u == 0, a(16 * u, 16), R.epi_silu, last=(u == 12), inreg=[pf_run(sW2, sPF2, 832 * 1152, 10) if u >= 1 else None, pf_row('F', sW1) if CFG['pf'] >= 3 else None] if CFG['pf'] else None)
        R.add_p1_half(13, a(208, 8))
        needs = {t: [('reg', 8 * t)] for t in range(27)}
        dm = [dma_w(sW2, sFA, 0, 1152, sFC, 0), dma_w(sW2, sFA, 288 * 1152, 1152, sFC, 288 * 1152), dma_w(sW2, sFA, 576 * 1152, 1152, sFS, 0)]
        R.add_p2([(a(0, 216), [288, 288, 288], dm, needs, sSt)], [add(x, x, 128) for x in (sFA, sFC, sFS)], pre0=lambda: set_offw(1152, P2M))
        if CFG['pf']:
            pf_sched(R, 26, sW2, sPF2h, 32 * 1152, 8)
    elif kind == 'A' and CFG.get('pair'):
        OA = a(96, 64)
        Ha = dict(i=0, Q=a(0, 32), S=Sreg, P=Preg, O=OA, LM=v(230, 8), OF=lambda kk: OA.sub(16 * kk, 8),
                  need_qk=[('acc', 48), ('acc', 64)], need_pv=[('acc', 48 + 16 * i) for i in range(4)])
        Hb = dict(i=1, Q=a(32, 32), S=[v(48, 16), v(64, 16)], P=[v(80, 8), v(88, 8)], O=v(160, 64), LM=v(96, 8), OF=lambda kk: OA.sub(16 * kk + 8, 8))
        Hc = dict(i=2, Q=a(64, 32), S=Sreg, P=Preg, O=v(48, 64), LM=v(16, 8), OF=lambda kk: a(160 + 8 * kk, 8), need_pv=[('lm', 0)])
        Ha['need_qk'] += [('acc', 80)]
        pj = {1: sJQ}
        for u in range(6):
            R.add_p1_unit(u, sWQ, sQA, sQC, 8192, u == 0, a(16 * u, 16), R.epi_q, last=(u == 5), step=sJQ if u == 4 else 128,
                          inreg=[pf_run(sWO, sPFc, 384 * 1152, 11) if u >= 1 else None, pf_row('A', sWQ, pj.get(u, 128)) if CFG['pf'] >= 3 and u < 3 else None] if CFG['pf'] else None)
        R.add_pa_g([[Ha, Hb], [Hc]])
        Bf = [H['OF'](kk) for H in (Ha, Hb, Hc) for kk in range(4)]
        needs = {0: [('fin', 0), ('fin', 1)], 8: [('fin', 2)]}
        dm = [dma_w192(sWO, 0), dma_w192(sWO, 0, sOA1, sOB1)]
        R.add_p2([(Bf, [192, 192], dm, needs, sSt)], [add(x, x, 128) for x in (sOA, sOB, sOA1, sOB1)], pre0=lambda: set_offw(1152, P2M))
        R.heads = [(Ha, sPFa), (Hb, sPFa), (Hc, sPFb)]
        if CFG['pf'] >= 2:
            pf_sched(R, 10, sK, sPFa, 131072, 16); pf_sched(R, 10, sV, sPFa, 131072, 16)
            pf_sched(R, 12, sK, sPFb, 131072, 16); pf_sched(R, 12, sV, sPFb, 131072, 16)
    elif kind == 'A':
        Q = [a(32 * e, 32) for e in range(3)]; O = [a(96 + 32 * e, 32) for e in range(3)]
        for u in range(6): R.add_p1_unit(u, sWQ, sQA, sQC, 8192, u == 0, a(16 * u, 16), R.epi_q, last=(u == 5), inreg=[pf_run(sWO, sPFc, 384 * 1152, 11) if u >= 1 else None, pf_row('A', sWQ) if CFG['pf'] >= 3 and u < 5 else None] if CFG['pf'] else None)
        R.add_pa(Q, O)
        needs = {4 * e: [('fin', e)] for e in range(3)}; needs[0].append(('S', 2, 15))
        dm = [dma_w192(sWO, b * 192 * 1152) for b in range(2)]
        R.add_p2([(a(96, 96), [192, 192], dm, needs, sSt)], [add(sOA, sOA, 128), add(sOB, sOB, 128)], pre0=lambda: set_offw(1152, P2M))
        if CFG['pf']:
            if CFG['pf'] >= 2:
                pf_sched(R, 10, sK, sPFa, 131072, 16); pf_sched(R, 10, sV, sPFa, 131072, 16)
                pf_sched(R, 12, sK, sPFb, 131072, 16); pf_sched(R, 12, sV, sPFb, 131072, 16)
    else:
        Q = [a(136 + 32 * e, 32) for e in range(2)]; O = [a(72 + 32 * e, 32) for e in range(2)]
        def mpf(u):
            if u == 0: return pf_row('M', sWQ)
            if u == 1: return lambda: pf_row_setup('M', 9216, 18, sPF1, 0) + [pf_row('M', sW1)()[1]]
            if u <= 4: return pf_row('M', sW1)
            if u == 5: return lambda: [smov(sPW, sPF1h), pf_row('M', sW1)()[1]]
            return None
        for u in range(4): R.add_p1_unit(u, sWQ, sQA, sQC, 8192, u == 0, a(136 + 16 * u, 16), R.epi_q, key='Q', inreg=[None, mpf(u)] if CFG['pf'] >= 3 else None)
        for u in range(4): R.add_p1_unit(4 + u, sW1, sHA, sHC, 9216, u == 0, a(16 * u, 16), R.epi_silu, pre=(lambda: set_offw(9216, 'M' if MS else 'S')) if u == 0 else None, last=(u == 3), key='H', inreg=[None, mpf(4 + u)] if CFG['pf'] >= 3 else None)
        R.add_p1_half(8, a(64, 8))
        BO = a(72, 64)
        if CFG.get('pair'):
            Ha = dict(i=0, Q=Q[0], S=Sreg, P=Preg, O=BO, LM=v(230, 8), OF=lambda kk: BO_.sub(16 * kk, 8),
                      need_qk=[('acc', 48 + 16 * i) for i in range(3)], need_pv=[('acc', 48 + 16 * i) for i in range(4)])
            Hb = dict(i=1, Q=Q[1], S=[v(64, 16), v(48, 16)], P=[v(80, 8), v(88, 8)], O=v(160, 64), LM=v(96, 8), OF=lambda kk: BO_.sub(16 * kk + 8, 8))
            BO_ = BO
            if CFG.get('mfree', 0):
                Hb['S'] = [v(64, 16), v(238, 16)]; Ha['need_qk'] = [('acc', 64), ('acc', 80)]; Ha['need_pv'] = [('acc', 96)]
                R.ntmp = 12; R.ones = v(28, 4)
                for st_, idx in ((R.stages[-2], -1), (R.stages[-1], -1)):
                    m_ = st_.mf[idx]; f_ = m_.after
                    m_.after = (lambda G, f_=f_: (setattr(R, 'low', True), f_(G), setattr(R, 'low', False)))
            R.add_pa_g([[Ha, Hb]])
            BO = [H['OF'](kk) for H in (Ha, Hb) for kk in range(4)]
            R.heads = [(Ha, sPFa), (Hb, sPFa)]
        else: R.add_pa(Q, O)
        nf = {t: [('reg', 8 * t)] for t in range(9)}; nf[0].append(('S', 1, 15))
        R.add_p2([(a(0, 72), [288], [dma_w(sW2, sFA, 0, 1152, sFS, 0)], nf, sSt2),
                  (BO, [256], [dma_w(sWO, sOA, 0, 1152)], {0: [('fin', 0)], 4: [('fin', 1)]}, sSt)],
                 [add(x, x, 128) for x in (sOA, sFA, sFS)], pre0=lambda: set_offw(1152, P2M))
        for st in R.stages[-18:]: st.ring = (200, 14, 'restart')
        if CFG['pf']:
            if CFG['pf'] >= 2:
                k = pf_sched(R, 14, sK, sPFa, 131072, 16); k = pf_sched(R, k, sV, sPFa, 131072, 16)
            pf_sched(R, 16, sWO, sPFc, 256 * 1152, 36); pf_sched(R, 23 if not CFG.get('pair') else 17, sW2, sPF2, 256 * 1152, 36); pf_sched(R, 24 if not CFG.get('pair') else 17, sW2, sPF2h, 32 * 1152, 8)
    if CFG.get('msum') and not MS and kind in 'AM':
        st0 = [st for st in R.stages if st.name == 'PAh0s0'][0]
        m0_ = st0.mf[8]
        if not hasattr(R, 'ones'): m0_.need += [('acc', 48 + 16 * i) for i in range(4)]
        m0_.pre = lambda: R.p.emit([valu('v_mov_b32', getattr(R, 'ones', vONES)[i], 0x3f803f80) for i in range(4)])
    if CFG.get('recode') and CFG['fused']:
        names = [st.name for st in R.stages]
        nS = len(names)
        R.pf.setdefault(nS - 2, []).append(pf_code(f"L_{kind}_red", f"L_role{kind}_end", 4))
        p2 = names.index('P2c0b0')
        R.stages[p2].label = f"L_{kind}_p2"
        R.pf.setdefault(p2 - 2, []).append(pf_code(f"L_{kind}_p2", f"L_{kind}_p2+20480", 5))
        if kind in 'AM':
            pa = names.index('PAmini'); R.stages[pa].label = f"L_{kind}_pa"
            R.pf.setdefault(pa - 1, []).append(pf_code(f"L_{kind}_pa", f"L_{kind}_p2", 8))
    if CFG.get('hot') and CFG['fused'] and kind in CFG['hot']:
        names = [st.name for st in R.stages]
        last = names.index('P2c8b0'); R.stages[last].label = f"L_{kind}_c8"
        def setup():
            o = [raw(f"s_getpc_b64 {sPC}", 'salu', wr=[sPC]), label(f"L_{kind}_hp"),
                 salu('s_add_u32', sPC[0], sPC[0], f"L_{kind}_c8-L_{kind}_hp"), salu('s_addc_u32', sPC[1], sPC[1], 0, scc_r=True),
                 valu('v_bfe_u32', vPF2, vTID, 16, 5), valu('v_and_b32', vPF, 63, vTID), valu('v_min_u32', vPF, 1, vPF),
                 valu('v_lshl_add_u32', vPF, vPF2, 1, vPF), valu('v_lshlrev_b32', vPF, 7, vPF)]
            if kind == 'F': o += pf_row_setup(kind, 1152, 26, sPF2, 2 * 128)
            return o
        def rep_code():
            return [I(f"global_load_dword {vDUM}, {vPF}, {sPC}", 'vload', wr=vDUM.regs(), rd=vPF.regs() + sPC.regs(), units=3, tag='pf')]
        R.pf.setdefault(names.index('P2c1b0'), []).append(setup)
        for c in range(2, 8):
            k0 = names.index(f'P2c{c}b0')
            R.pf.setdefault(k0, []).append(rep_code)
            if kind == 'F': R.pf.setdefault(k0 + 1, []).append(pf_row(kind, sW2))
    R.slow = []
    if kind in 'AM' and CFG.get('slow', True) and CFG.get('pair'):
        P2s = [st for st in R.stages if st.name.startswith('P2c0')]
        hl = [(H['i'], H['Q'], (H['OF'], kv)) for (H, kv) in R.heads]
        if kind == 'A':
            P2s[0].mf[0].pre = slow_check(R, hl[:2], (112, 160))
            [m for m in P2s[1].mf if ('fin', 2) in m.need][0].pre = slow_check(R, hl[2:], (160, 48))
        else:
            m_ = P2s[1].mf[4 if CFG.get('l844') else 0]
            m_.need += [('fin', 0), ('fin', 1)]
            m_.pre = slow_check(R, hl, (160, 48))
    elif kind in 'AM' and CFG.get('slow', True):
        P2s = [st for st in R.stages if st.name.startswith('P2c0')]
        if kind == 'A':
            P2s[0].mf[0].need += [('fin', 1)]
            P2s[0].mf[0].pre = slow_check(R, [(0, Q[0], O[0]), (1, Q[1], O[1])], 112)
            m_ = [m for m in P2s[1].mf if ('fin', 2) in m.need][0]
            m_.pre = slow_check(R, [(2, Q[2], O[2])], 160)
        else:
            P2s[1].mf[0].need += [('fin', 1)]
            P2s[1].mf[0].pre = slow_check(R, [(0, Q[0], O[0]), (1, Q[1], O[1])], 160)
    if CFG['fused']:
        add_signals(R)
        def early0():
            it = red_setup(kind) + red_poll()[0]
            it[-1].tag = 'cnt'
            return it
        def early():
            assert R.cnt_covered()
            PRIV[0] = (kind == 'A')
            it = red_poll()[1]
            it[-1].tag = 'poll'
            return it
        def covered():
            idx = max(i for i, x in enumerate(R.p.ins) if x.tag == 'cnt'); n = 0
            for x in R.p.ins[idx + 1:]:
                if x.kind in VMEMK: n += 1
                if x.txt.startswith('s_waitcnt vmcnt(') and int(x.txt[16:-1]) <= n: return True
            return False
        R.cnt_covered = covered
        if kind == 'A' and CFG.get('l2pf'):
            nm = [st.name for st in R.stages]
            R.pf.setdefault(nm.index('P2c1b0'), []).append(l2pf_setup)
            for (cw, dlt) in CFG['l2pf']:
                kp = nm.index(f'P2c{cw}b0')
                for j in range(4): R.pf.setdefault(kp, []).append(lambda j=j: l2pf_poll()[j])
                R.stages[kp + 2].cover_tag = 'gp'
                def gate(j, dlt=dlt):
                    def f():
                        it = l2pf_issue(R, dlt)[j]
                        if j == 0:
                            it = it + [valu('v_readfirstlane_b32', sOK, vD), salu('s_cmp_ge_u32', None, sOK, 16), csel(sC, sC, 15)]
                        return it
                    return f
                for j in range(4): R.pf.setdefault(kp + 2, []).append(gate(j))
        R.pf.setdefault([st.name for st in R.stages].index('P2c1b0' if kind == 'F' else 'P2c0b1'), []).append(early0)
        if kind in CFG.get('pre', ''):
            R.pf.setdefault(len(R.stages) - 3, []).append(early)
            R.stages[-1].pre_bar = lambda: red_early(R.p, kind)
        else: R.pf.setdefault(len(R.stages) - CFG.get('pollw', 1), []).append(early)
    role_prologue(R, vm_before)
    R.run()
    if CFG['fused']:
        p = R.p
        if kind not in CFG.get('pre', ''): red_early(p, kind)
        if kind in CFG.get('pre', ''): pass
        elif kind in CFG.get('lateflag', 'A'): p.emit(barrier())
        else:
            p.emit(waitvm(0)); p.emit(barrier())
            p.emit(valu('v_mov_b32', vPRG, 9))
            if CFG.get('rep'): p.emit(bstore('buffer_store_dword', vPRG, vCR, sWS, 0, flags='sc1'))
            p.emit(bstore('buffer_store_dword', vPRG, vCT, sWS, 0, flags='sc1'))
        if CFG['stamps']: R.stamp(len(R.stages) - 1)
        p.emit(raw(f"s_call_b64 {sRET}, L_{kind}_red"))
    if CFG['stamps']:
        p = R.p
        R.stamp(len(R.stages))
        p.emit(raw("s_memrealtime s[98:99]", wr=[s(98, 2)])); p.emit(raw("s_waitcnt lgkmcnt(0)"))
        p.emit(raw(f"v_writelane_b32 {vSTAMP}, s98, 63", 'valu', wr=[vSTAMP], rd=[s(98)]))
        if CFG.get('dbgstat'):
            n = len(R.stages)
            lanes = {'F': [0, 27, n - 1, n], 'A': [0, 37, n - 1, n], 'M': [0, 34, n - 1, n]}[kind]
            slots = {'F': [1, 2, 3, 5], 'A': [10, 11, 13, 14], 'M': [15, 15, 15, 15]}[kind]
            p.emit([valu('v_mov_b32', v(4), 256), valu('v_mov_b32', v(5), 0)])
            for i, (ln, sl) in enumerate(zip(lanes, slots)):
                p.emit(raw(f"v_readlane_b32 s92, {vSTAMP}, {ln}", 'rdl', wr=[sT2], rd=[vSTAMP])); p.emit(nop(3))
                p.emit(raw(f"v_writelane_b32 v5, s92, {i}", 'valu', wr=[v(5)], rd=[sT2])); p.emit(raw(f"v_writelane_b32 v4, {4 * sl}, {i}", 'valu', wr=[v(4)]))
            p.emit(raw(f"v_writelane_b32 v5, s98, 4", 'valu', wr=[v(5)], rd=[s(98)])); p.emit(raw(f"v_writelane_b32 v4, 28, 4", 'valu', wr=[v(4)]))
            p.emit(salu('s_not_b32', sT2, s(43))); p.emit(raw(f"v_writelane_b32 v5, s92, 5", 'valu', wr=[v(5)], rd=[sT2])); p.emit(raw(f"v_writelane_b32 v4, 36, 5", 'valu', wr=[v(4)]))
            p.emit(salu('s_sub_u32', sT2, s(98), s(43))); p.emit(raw(f"v_writelane_b32 v5, s92, 6", 'valu', wr=[v(5)], rd=[sT2])); p.emit(raw(f"v_writelane_b32 v4, 24, 6", 'valu', wr=[v(4)]))
            p.emit([salu('s_cmp_eq_u32', None, sRB, 9), csel(sT2, 0, sRB), salu('s_or_b32', sT2, sT2, sWAVE), salu('s_cmp_eq_u32', None, sT2, 0), csel(sT2, 0, 256),
                    valu('v_add_u32', v(4), sT2, v(4))])
            p.emit(I(f"buffer_atomic_umax v5, v4, {sDBG}, 0 offen sc1", 'vstore', rd=vr(4, 2) + sDBG.regs(), units=3))
        p.emit([shl(sT2, s(2), 2), add(sT2, sT2, sWAVE), shl(sT2, sT2, 8), add(sT2, sT2, STAMP_OFF),
                valu('v_lshrrev_b32', v(42), 2, vLANE16), bstore('buffer_store_dword', vSTAMP, v(42), sWS, sT2)])
    R.p.emit(raw("s_endpgm"))
    return R

def fold(ins, name):
    idx = [i for i, x in enumerate(ins) if x.tag == 'mark']
    def body(a_, b_): return [x.txt for x in ins[a_:b_] if x.kind != 'label']
    out = []; pos = 0; k = 0; nl = 0
    while k + 1 < len(idx):
        b0 = body(idx[k], idx[k + 1]); n = 1
        while k + n + 1 < len(idx) and body(idx[k + n], idx[k + n + 1]) == b0: n += 1
        if n >= 2:
            out += ins[pos:idx[k]]
            L = f"L_{name}_loop{nl}"; nl += 1
            out.append(smov(sLC, n)); out.append(I(".p2align 3", 'label')); out.append(label(L))
            out += ins[idx[k]:idx[k + 1]]
            out += [salu('s_sub_u32', sLC, sLC, 1), salu('s_cmp_lg_u32', None, sLC, 0), raw(f"s_cbranch_scc1 {L}")]
            pos = idx[k + n]; k += n
        else: k += 1
    out += ins[pos:]
    return out

def fold_regions(ins, name):
    regs = []; i = 0
    beg = None
    for i, x in enumerate(ins):
        if isinstance(x.tag, tuple) and x.tag and x.tag[0] == 'region':
            if x.tag[1] == 'begin': beg = (i, x.tag[2])
            elif beg: regs.append((beg[0], i, beg[1])); beg = None
    groups = {}
    for (a_, b_, key) in regs:
        groups.setdefault(tuple(x.txt for x in ins[a_:b_] if x.kind != 'label'), []).append((a_, b_))
    out = []; subs = []; repl = {}
    n = 0
    for body, lst in groups.items():
        if len(lst) >= 2:
            L = f"L_{name}_sub{n}"; n += 1
            a_, b_ = lst[0]
            subs += [I(".p2align 6", 'label'), label(L)] + ins[a_:b_] + [raw(f"s_setpc_b64 {sRET}")]
            for (a_, b_) in lst: repl[a_] = (b_, L)
    i = 0
    while i < len(ins):
        if i in repl:
            b_, L = repl[i]; out.append(raw(f"s_call_b64 {sRET}, {L}")); i = b_
        else:
            out.append(ins[i]); i += 1
    print(f"  regions: {[len(l) for l in groups.values()]}", file=sys.stderr)
    return out + subs

def reduce_body(p, sPART, sXO, srdP, srdX, srdO, vL16, vXO, base, flags, mid=None):
    E = p.emit
    L = base; XR = base + 68; SA = base + 72; FA = base + 80; T = base + 88
    for k in range(NPART):
        if k: E(add(sPART, sPART, 16 * PART))
        E(bload('buffer_load_dwordx4', v(L + 4 * k, 4), vL16, srdP, sPART, flags=flags))
    E(bload('buffer_load_dwordx2', v(XR, 2), vXO, srdX, sXO)); E(bload('buffer_load_dwordx2', v(XR + 2, 2), vXO, srdX, sXO, 32))
    ex = 0
    if mid: E(mid()); ex = 1
    E(smov(sT3, 0xffff0000))
    for k in range(NPART):
        E(waitvm(NPART + 1 - k + ex))
        acc = SA if k < 11 else FA
        for q in range(4):
            x = v(L + 4 * k + q)
            if k in (0, 11):
                E(valu('v_lshlrev_b32', v(acc + 2 * q), 16, x)); E(valu('v_and_b32', v(acc + 2 * q + 1), sT3, x))
            else:
                tp = v(T + 2 * q, 2)
                E(valu('v_lshlrev_b32', tp[0], 16, x)); E(valu('v_and_b32', tp[1], sT3, x))
        if k not in (0, 11):
            for q in range(4): E(valu('v_pk_add_f32', v(acc + 2 * q, 2), v(acc + 2 * q, 2), v(T + 2 * q, 2)))
    for e in range(8): E(valu('v_exp_f32', v(T + e), v(FA + e)))
    for e in range(8): E(valu('v_add_f32', v(T + e), 1.0, v(T + e)))
    for e in range(8): E(valu('v_rcp_f32', v(T + e), v(T + e)))
    for e in range(8): E(valu('v_mul_f32', v(FA + e), f2u(-math.log(2.0)), v(FA + e)))
    for e in range(8): E(valu('v_mul_f32', v(FA + e), v(FA + e), v(T + e)))
    E(waitvm(ex))
    for q in range(4):
        E(valu('v_lshlrev_b32', v(T + 2 * q), 16, v(XR + q))); E(valu('v_and_b32', v(T + 2 * q + 1), sT3, v(XR + q)))
    for e in range(8): E(valu('v_fma_f32', v(T + e), v(SA + e), v(FA + e), v(T + e)))
    for q in range(4): E(valu('v_cvt_pk_bf16_f32', v(XR + q), v(T + 2 * q), v(T + 2 * q + 1)))
    E(bstore('buffer_store_dwordx2', v(XR, 2), vXO, srdO, sXO)); E(bstore('buffer_store_dwordx2', v(XR + 2, 2), vXO, srdO, sXO, 32))

def reduce_kernel():
    p = Prog(); E = p.emit
    E(salu('s_cmp_ge_u32', None, s(2), 576)); E(raw("s_cbranch_scc0 L_rgo")); E(raw("s_endpgm")); E(label("L_rgo"))
    E(raw("s_load_dwordx2 s[4:5], s[0:1], 0", wr=[s(4, 2)])); E(raw("s_load_dwordx2 s[6:7], s[0:1], 64", wr=[s(6, 2)])); E(raw("s_load_dwordx2 s[8:9], s[0:1], 80", wr=[s(8, 2)]))
    E(valu('v_lshrrev_b32', v(1), 6, v(0))); E(valu('v_readfirstlane_b32', s(10), v(1)))
    E(shl(s(11), s(2), 2)); E(add(s(11), s(11), s(10)))
    E(salu('s_mul_hi_u32', s(24), s(11), -(-(1 << 32) // 36), scc_w=False))
    E(mul(s(25), s(24), 36)); E(salu('s_sub_u32', s(25), s(11), s(25)))
    E(shl(s(26), s(11), 10))
    E(valu('v_and_b32', v(0), 63, v(0))); E(valu('v_lshlrev_b32', v(1), 4, v(0)))
    E(valu('v_and_b32', v(2), 15, v(0))); E(smov(s(27), 1152)); E(valu('v_mul_u32_u24', v(2), s(27), v(2)))
    E(valu('v_lshrrev_b32', v(3), 4, v(0))); E(valu('v_lshl_add_u32', v(2), v(3), 3, v(2)))
    E(mul(s(28), s(24), 32 * 1152)); E(salu('s_and_b32', s(29), s(25), 1)); E(mul(s(29), s(29), 16 * 1152)); E(add(s(28), s(28), s(29)))
    E(shr(s(25), s(25), 1)); E(shl(s(25), s(25), 6)); E(add(s(28), s(28), s(25)))
    E(raw("s_waitcnt lgkmcnt(0)"))
    srd(p, s(12, 4), 8, WSP_BYTES); srd(p, s(16, 4), 4, 2359296); srd(p, s(20, 4), 6, 2359296)
    reduce_body(p, s(26), s(28), s(12, 4), s(16, 4), s(20, 4), v(1), v(2), 4, CFG.get('rflags', ''))
    E(raw("s_endpgm"))
    return p

def text(ins): return "\n".join((i.txt if i.kind == 'label' else " " + i.txt) for i in ins) + "\n"

def compress(t):
    t = re.sub(r" v_mfma_f32_16x16x32_bf16 v\[(\d+):\d+\], a\[(\d+):\d+\], v\[(\d+):\d+\], v\[\1:\d+\]", r" MV \1,\2,\3", t)
    t = re.sub(r" v_mfma_f32_16x16x32_bf16 v\[(\d+):\d+\], a\[(\d+):\d+\], a\[(\d+):\d+\], v\[\1:\d+\]", r" MA \1,\2,\3", t)
    t = re.sub(r" v_mfma_f32_32x32x16_bf16 v\[(\d+):\d+\], a\[(\d+):\d+\], v\[(\d+):\d+\], v\[\1:\d+\]", r" NV \1,\2,\3", t)
    t = re.sub(r" v_mfma_f32_32x32x16_bf16 v\[(\d+):\d+\], a\[(\d+):\d+\], a\[(\d+):\d+\], v\[\1:\d+\]", r" NA \1,\2,\3", t)
    t = re.sub(r" v_mfma_f32_16x16x32_bf16 a\[(\d+):\d+\], a\[(\d+):\d+\], v\[(\d+):\d+\], a\[\1:\d+\]", r" MC \1,\2,\3", t)
    t = re.sub(r" ds_read_b64_tr_b16 a\[(\d+):\d+\], v(\d+) offset:(\d+)", r" RT \1,\2,\3", t)
    t = re.sub(r" ds_read_b128 a\[(\d+):\d+\], v(\d+) offset:(\d+)", r" RB \1,\2,\3", t)
    t = re.sub(r" v_cvt_pk_bf16_f32 v(\d+), v(\d+), v(\d+)", r" CV \1,\2,\3", t)
    t = re.sub(r" v_accvgpr_write_b32 a(\d+), v(\d+)", r" AW \1,\2", t)
    t = re.sub(r" v_exp_f32 v(\d+), v(\d+)", r" EX \1,\2", t)
    t = re.sub(r" v_add_f32 v(\d+), v(\d+), v(\d+)", r" AD \1,\2,\3", t)
    t = re.sub(r" v_mul_f32 v(\d+), v(\d+), v(\d+)", r" ML \1,\2,\3", t)
    t = re.sub(r" s_waitcnt lgkmcnt\((\d+)\)", r" WL \1", t)
    mac = r""".macro MC d,a,b
 v_mfma_f32_16x16x32_bf16 a[\d:\d+3], a[\a:\a+3], v[\b:\b+3], a[\d:\d+3]
.endm
.macro NV d,a,b
 v_mfma_f32_32x32x16_bf16 v[\d:\d+15], a[\a:\a+3], v[\b:\b+3], v[\d:\d+15]
.endm
.macro NA d,a,b
 v_mfma_f32_32x32x16_bf16 v[\d:\d+15], a[\a:\a+3], a[\b:\b+3], v[\d:\d+15]
.endm
.macro MV d,a,b
 v_mfma_f32_16x16x32_bf16 v[\d:\d+3], a[\a:\a+3], v[\b:\b+3], v[\d:\d+3]
.endm
.macro MA d,a,b
 v_mfma_f32_16x16x32_bf16 v[\d:\d+3], a[\a:\a+3], a[\b:\b+3], v[\d:\d+3]
.endm
.macro RT d,a,o
 ds_read_b64_tr_b16 a[\d:\d+1], v\a offset:\o
.endm
.macro RB d,a,o
 ds_read_b128 a[\d:\d+3], v\a offset:\o
.endm
.macro CV d,a,b
 v_cvt_pk_bf16_f32 v\d, v\a, v\b
.endm
.macro AW d,a
 v_accvgpr_write_b32 a\d, v\a
.endm
.macro EX d,a
 v_exp_f32 v\d, v\a
.endm
.macro AD d,a,b
 v_add_f32 v\d, v\a, v\b
.endm
.macro ML d,a,b
 v_mul_f32 v\d, v\a, v\b
.endm
.macro WL n
 s_waitcnt lgkmcnt(\n)
.endm
"""
    return mac, t

HDR = open('recurrent_scan__sliding_block_cached__dense_activation_silu__prompt.s.ref').read().split('; Override launch')[0]
DOC = """; Generated by my own scheduler scripts (hand-designed instruction streams, hazards padded by the script).
; registers as MFMA B operands (transposed formulation), weights / K / V stream through a 4-slot LDS ring (LDS-DMA).
;   role A (10): layernorm, Q projection, attention for 3 heads (one GQA pair shares K/V fragments), partial of o@wo
; The bf16 partials go to d_ws with write-through stores; progress words (reset per launch, guarded by a counter in
"""
def kd(name, vgpr, acc, sgpr=102):
    return f""".amdhsa_kernel {name}
  .amdhsa_next_free_vgpr {vgpr}
  .amdhsa_next_free_sgpr {sgpr}
  .amdhsa_accum_offset {acc}
  .amdhsa_group_segment_fixed_size 0
  .amdhsa_kernarg_size 88
  .amdhsa_user_sgpr_count 2
  .amdhsa_user_sgpr_kernarg_segment_ptr 1
  .amdhsa_system_sgpr_workgroup_id_x 1
.end_amdhsa_kernel
"""
def est_cycles(ins):
    tot = 0; cur = None; n = 0
    for i in ins:
        if i.kind == 'label': continue
        if i.kind == 'mfma':
            if cur is not None: tot += max(cap, cur)
            cur = 2; n += 1; cap = 8 if len(i.wr) == 16 else 4
        elif cur is not None:
            if i.txt.startswith('s_waitcnt lgkm') and cap == 4: continue
            cur += i.units if not i.txt.startswith('s_nop') else (int(i.txt.split()[1]) + 1) * 0.5
    return tot * 4

def main(out, **kw):
    CFG.update(kw)
    set_layout(CFG.get('l844'))
    if CFG.get('tab'):
        global ROLE_TAB
        ROLE_TAB = CFG['tab']
    CFG['shape0'] = CFG['shape']
    cp = common_prologue()
    if CFG.get('entry', 0):
        if CFG.get('entry', 1) == 1:
            k = next(i for i, x in enumerate(cp.ins) if x.txt == 's_waitcnt lgkmcnt(0)')
            tail = cp.ins[k:]; vmx = list(cp.vm); cp.ins = cp.ins[:k]; cp.vm = []
            common_prologue2(cp); cp.ins += tail; cp.vm += vmx
        else: common_prologue2(cp)
        common_prologue3(cp)
    body = text(cp.ins) + dispatch_text()
    for kind in 'FAM':
        R = build_role(kind, cp.vm)
        ins = fold_regions(fold(R.p.ins, kind), kind) if CFG['fold'] else R.p.ins
        nm = sum(1 for i in R.p.ins if i.kind == 'mfma')
        print(f"role {kind}: stages {len(R.stages)} mfma {nm} instrs {len([i for i in ins if i.kind!='label'])} (unrolled {len([i for i in R.p.ins if i.kind!='label'])}) pad {R.p.npad} forced {R.forced} est {est_cycles(R.p.ins)} ideal {sum(32 if len(i.wr) == 16 else 16 for i in R.p.ins if i.kind == 'mfma')}", file=sys.stderr)
        if CFG.get('abl_pair') and kind in 'AM':
            out_ = []; on = False
            for x in ins:
                if x.kind == 'label' and x.txt.startswith('; PAh'): on = x.txt.startswith('; PAh1')
                if x.kind == 'label' and x.txt.startswith('; P2'): on = False
                if on and (x.kind in ('dma', 'ds') or (x.kind == 'salu' and ('m0' in x.txt or 's70' in x.txt))): continue
                out_.append(x)
            ins = out_
        if CFG.get('abl_half'):
            out_ = []; on = False; cnt = 0
            for x in ins:
                if x.kind == 'label' and x.txt.startswith('; P'): on = x.txt.startswith(('; P1', '; P2'))
                if x.kind == 'label' and x.txt.startswith('; REGION begin'): on = True
                if on and x.kind == 'ds':
                    cnt += 1
                    if (cnt >> 1) & 1: continue
                out_.append(x)
            ins = out_
        ab = CFG.get('ablate', '')
        if ab:
            st0 = next(i for i, x in enumerate(ins) if x.txt.startswith('; P1u1b0'))
            def keep(x):
                if 'd' in ab and x.kind == 'dma': return False
                if 'r' in ab and x.kind == 'ds': return False
                if 'v' in ab and x.kind in ('trans',): return False
                if 'V' in ab and x.kind in ('trans', 'valu', 'perm') and not x.txt.startswith(('v_add_u32', 'v_xor', 'v_writelane', 'v_cmp', 'v_cnd', 'v_mov', 'v_lsh', 'v_mad', 'v_min', 'v_and', 'v_bfe', 'v_mul_u32')): return False
                if 'm' in ab and x.kind == 'mfma': return False
                return True
            ins = ins[:st0] + [x for x in ins[st0:] if keep(x)]
        for sp in R.slow: ins = ins + sp.ins
        if CFG['fused']: ins = ins + reducer(kind).ins
        body += f".p2align 6\nL_role{kind}:\n" + text(ins) + f"L_role{kind}_end:\n"
    rk = reduce_kernel()
    mac, body = compress(body)
    if CFG['fused']:
        t = HDR + "; @launch grid=(256,1,1) block=(256,1,1) lds=163840\n" + DOC
        t += '.amdgcn_target "amdgcn-amd-amdhsa--gfx950"\n' + mac + f".text\n.globl {KN}\n.p2align 8\n.type {KN},@function\n{KN}:\n" + body
        t += '.section .rodata,"a"\n.p2align 6\n' + kd(KN, 512, 256)
        open(out, 'w').write(t); print("size", len(t), file=sys.stderr); return
    t = HDR + f"; @launch kernel={KN} grid=(256,1,1) block=(256,1,1) lds=163840\n; @launch kernel={RN} grid=(576,1,1) block=(256,1,1) lds=0\n"
    t += '.amdgcn_target "amdgcn-amd-amdhsa--gfx950"\n' + mac + f".text\n.globl {KN}\n.p2align 8\n.type {KN},@function\n{KN}:\n" + body
    t += f".globl {RN}\n.p2align 8\n.type {RN},@function\n{RN}:\n" + text(rk.ins)
    t += '.section .rodata,"a"\n.p2align 6\n' + kd(KN, 512, 256) + ".p2align 6\n" + kd(RN, 104, 104, 102)
    open(out, 'w').write(t)
    print("size", len(t), file=sys.stderr)

if __name__ == "__main__":
    kw = eval("dict(" + (sys.argv[2] if len(sys.argv) > 2 else "") + ")")
    main(sys.argv[1], **kw)
```

```python
import sys, re
from s1 import *

ROLE_TAB = [0, 1, 2, 11, 3, 4, 5, 12, 6, 7, 13, 14, 8, 9, 10, 15]
vPFR = v(36)
vPRG = v(36)
PART = 4 * PWAVE
NPART = 17
NA, NM, NS = 10, 1, 11
def set_layout(new):
    global NPART, NA, NM, NS, ROLE_TAB
    if new:
        NPART, NA, NM, NS = 20, 8, 4, 12
        ROLE_TAB = [0, 1, 8, 12, 2, 3, 9, 13, 4, 5, 10, 14, 6, 7, 11, 15]
WSP_BYTES = NPART * 16 * PART
def PSTR(): return 16 * PART + (CFG.get('pskew', 0) if CFG['fused'] else 0)
sJQ, sQ0, sOA1, sOB1 = s(73), s(59), s(74), s(75)
STAMP_OFF = 0x3000000
CTRL = 0x2F00000
OOB = 0x10000000

def srd(p, dst, lo, nbytes):
    p.emit([smov(dst[0], s(lo)), salu('s_and_b32', dst[1], s(lo + 1), 0xffff), smov(dst[2], nbytes), smov(dst[3], 0x20000)])
def xdma(j):
    return [salu('s_add_u32', 'm0', s(6), j * 4096), salu('s_add_u32', sT, s(7), j * 128)] + [dma(v(16 + q), sX, sT, q * 1024, tag=('x', j)) for q in range(4)]
def mul(d, a_, b_): return salu('s_mul_i32', d, a_, b_, scc_w=False)
def add(d, a_, b_): return salu('s_add_u32', d, a_, b_)
def shl(d, a_, b_): return salu('s_lshl_b32', d, a_, b_)
def shr(d, a_, b_): return salu('s_lshr_b32', d, a_, b_)
def csel(d, a_, b_): return salu('s_cselect_b32', d, a_, b_, scc_w=False, scc_r=True)

def common_prologue():
    if CFG.get('entry', 0) == 0: return common_prologue_old()
    assert CFG['xe'] == 9 and CFG.get('map', 4) == 4
    p = Prog(); E = p.emit
    E(raw("s_load_dwordx8 s[40:47], s[0:1], 0", wr=[s(40, 8)]))
    E(salu('s_cmp_ge_u32', None, s(2), 256))
    E(raw("s_cbranch_scc0 L_go")); E(raw("s_endpgm")); E(label("L_go"))
    if CFG['stamps']:
        E(raw(f"s_memtime {sT0}", wr=[sT0])); E(raw("s_memrealtime s[96:97]", wr=[s(96, 2)]))
    E(valu('v_lshrrev_b32', v(1), 6, v(0)))
    E(salu('s_and_b32', s(3), s(2), 1)); E(shl(s(3), s(3), 3))
    E(valu('v_readfirstlane_b32', sWAVE, v(1)))
    E(shr(sRB, s(2), 5)); E(salu('s_or_b32', sRB, sRB, s(3)))
    E(valu('v_and_b32', v(0), 63, v(0)))
    E(valu('v_lshrrev_b32', vROWN, 3, v(0)))
    E(valu('v_and_b32', v(20), 7, v(0))); E(valu('v_lshrrev_b32', v(21), 4, v(0)))
    E(valu('v_xor_b32', v(22), v(20), v(21))); E(valu('v_xor_b32', v(23), 4, v(22)))
    E(salu('s_movk_i32', s(3), 1152, scc_w=False)); E(valu('v_mul_u32_u24', v(24), s(3), vROWN))
    E(valu('v_lshl_add_u32', v(16), v(22), 4, v(24))); E(valu('v_lshl_add_u32', v(17), v(23), 4, v(24)))
    E(valu('v_add_u32', v(17), 8 * 1152 - 1024, v(17)))
    E(valu('v_add_u32', v(18), 2 * (8 * 1152 - 1024), v(16))); E(valu('v_add_u32', v(19), 2 * (8 * 1152 - 1024), v(17)))
    E(mul(s(6), sWAVE, XW)); E(raw("s_lshl2_add_u32 s7, s64, s62", 'salu', wr=[s(7)], rd=[sRB, sWAVE])); E(mul(sT, s(7), 32 * 1152))
    E(smov('m0', s(6))); E(add(s(7), sT, 9 * 128))
    E(smov(sX[2], 2359296)); E(smov(sX[3], 0x20000))
    E(raw("s_waitcnt lgkmcnt(0)"))
    E(smov(sX[0], s(40))); E(salu('s_and_b32', sX[1], s(41), 0xffff))
    E(label("L_xl"))
    n0 = len(p.vm)
    for q in range(4): E(dma(v(16 + q), sX, sT, q * 1024))
    del p.vm[n0:]
    for j in range(9): p.vm += [('x', j)] * 4
    E(add(sT, sT, 128)); E(add('m0', 'm0', 4096)); E(salu('s_cmp_lt_u32', None, sT, s(7))); E(raw("s_cbranch_scc1 L_xl"))
    return p
def common_prologue2(p):
    E = p.emit
    tab = ROLE_TAB
    lo = sum(tab[i] << (4 * i) for i in range(8)); hi = sum(tab[8 + i] << (4 * i) for i in range(8))
    E(salu('s_bfe_u32', s(3), s(2), (2 << 16) | 3)); E(salu('s_bfe_u32', s(4), s(2), (1 << 16) | 1))
    E(shl(s(4), s(4), 2)); E(salu('s_or_b32', s(3), s(3), s(4))); E(shl(s(3), s(3), 2))
    E(salu('s_bitcmp1_b32', None, s(2), 2))
    E(smov(s(4), lo)); E(csel(s(4), hi, s(4)))
    E(shr(s(4), s(4), s(3))); E(salu('s_and_b32', sROLE, s(4), 15))
    E(raw(f"s_getpc_b64 {sPC}", wr=[sPC])); E(label("L_pc"))
    E(smov(s(4), "L_roleA-L_pc")); E(smov(s(5), "L_roleA_end-L_pc-4"))
    E(salu('s_cmp_ge_u32', None, sROLE, NA)); E(csel(s(4), "L_roleM-L_pc", s(4))); E(csel(s(5), "L_roleM_end-L_pc-4", s(5)))
    E(salu('s_cmp_ge_u32', None, sROLE, NA + NM)); E(csel(s(4), "L_roleF-L_pc", s(4))); E(csel(s(5), "L_roleF_end-L_pc-4", s(5)))
    n0 = CFG.get('code0', 16); NL = CFG.get('codelines', 24)
    if n0:
        E(mul(s(3), sWAVE, n0 * 128)); E(add(s(3), s(3), s(4)))
        E(valu('v_min_u32', v(2), n0 - 1, v(0))); E(valu('v_lshlrev_b32', v(2), 7, v(2))); E(valu('v_add_u32', v(2), s(3), v(2)))
        E(I(f"global_load_dword {vDUM}, v2, {sPC}", 'vload', wr=vDUM.regs(), rd=vr(2) + sPC.regs(), tag='pf'))
    E(salu('s_and_b32', s(3), sRB, 7)); E(shl(s(3), s(3), 2)); E(add(s(3), s(3), sWAVE))
    E(mul(s(3), s(3), NL * 128)); E(add(s(3), s(3), s(4)))
    E(valu('v_min_u32', v(2), NL - 1, v(0))); E(valu('v_lshlrev_b32', v(2), 7, v(2))); E(valu('v_add_u32', v(2), s(3), v(2)))
    E(valu('v_min_u32', v(3), s(5), v(2)))
    E(I(f"global_load_dword {vDUM}, v3, {sPC}", 'vload', wr=vDUM.regs(), rd=vr(3) + sPC.regs(), tag='pf'))
def common_prologue3(p):
    E = p.emit
    E(raw("s_load_dwordx2 s[48:49], s[0:1], 32", wr=[s(48, 2)]))
    E(raw("s_load_dwordx8 s[52:59], s[0:1], 48", wr=[s(52, 8)]))
    E(raw("s_load_dwordx2 s[50:51], s[0:1], 80", wr=[s(50, 2)]))
    srd(p, sK, 42, 8388608); srd(p, sV, 44, 8388608); srd(p, sWQ, 46, 4718592)
    E(mul(sW8704, sWAVE, 8 * PP)); E(mul(sWC, sWAVE, PP)); E(add(sWC, sWC, 32 * PP))
    E(shl(sW8192, sWAVE, 13)); E(shl(sWCH, sWAVE, 10)); E(add(sWCH, sWCH, 32768))
    E(mul(sW2176, sWAVE, 2 * PP)); E(mul(sW4352, sWAVE, 4 * PP)); E(add(sWA2, sW2176, 16 * PP))
    E(raw("s_waitcnt lgkmcnt(0)"))
    srd(p, sWO, 48, 4718592)
    srd(p, sW1, 52, 5308416); srd(p, sW2, 54, 5308416); srd(p, sWS, 50, 0x10000000 if (CFG['stamps'] or CFG['fused']) else WSP_BYTES)
    srd(p, sOUT, 56, 2359296); srd(p, sDBG, 58, 256)

def common_prologue_old():
    p = Prog(); E = p.emit
    E(salu('s_cmp_ge_u32', None, s(2), 256))
    E(raw("s_cbranch_scc0 L_go")); E(raw("s_endpgm")); E(label("L_go"))
    E(raw("s_load_dwordx8 s[40:47], s[0:1], 0", wr=[s(40, 8)]))
    E(raw("s_load_dwordx2 s[48:49], s[0:1], 32", wr=[s(48, 2)]))
    E(raw("s_load_dwordx8 s[52:59], s[0:1], 48", wr=[s(52, 8)]))
    E(raw("s_load_dwordx2 s[50:51], s[0:1], 80", wr=[s(50, 2)]))
    if CFG['stamps']:
        E(raw(f"s_memtime {sT0}", wr=[sT0])); E(raw("s_memrealtime s[96:97]", wr=[s(96, 2)]))
    tab = ROLE_TAB
    if CFG.get('map', 4) == 41:
        t4 = CFG.get('t41', [11, 0, 1, 2, 12, 3, 4, 5, 13, 14, 6, 7, 15, 10, 8, 9])
        lo = sum(t4[i] << (4 * i) for i in range(8)); hi = sum(t4[8 + i] << (4 * i) for i in range(8))
        E(shr(s(3), s(2), 6)); E(salu('s_bfe_u32', s(4), s(2), (1 << 16) | 1))
        E(shl(s(4), s(4), 2)); E(salu('s_or_b32', s(3), s(3), s(4))); E(shl(s(3), s(3), 2))
        E(salu('s_bitcmp1_b32', None, s(2), 2)); E(smov(s(4), lo)); E(csel(s(4), hi, s(4)))
        E(shr(s(4), s(4), s(3))); E(salu('s_and_b32', sROLE, s(4), 15))
        E(salu('s_and_b32', s(3), s(2), 1)); E(shl(s(3), s(3), 3))
        E(salu('s_bfe_u32', sRB, s(2), (3 << 16) | 3)); E(salu('s_or_b32', sRB, sRB, s(3)))
    elif CFG.get('map', 4) == 8:
        t8 = [0, 1, 2, 3, 4, 10, 11, 12, 5, 6, 7, 8, 9, 13, 14, 15]
        lo = sum(t8[i] << (4 * i) for i in range(8)); hi = sum(t8[8 + i] << (4 * i) for i in range(8))
        E(salu('s_bfe_u32', s(3), s(2), (3 << 16) | 3)); E(shl(s(3), s(3), 2))
        E(salu('s_bitcmp1_b32', None, s(2), 2)); E(smov(s(4), lo)); E(csel(s(4), hi, s(4)))
        E(shr(s(4), s(4), s(3))); E(salu('s_and_b32', sROLE, s(4), 15))
        E(salu('s_and_b32', s(3), s(2), 1)); E(shl(s(3), s(3), 3)); E(salu('s_and_b32', s(4), s(2), 2)); E(shl(s(4), s(4), 1))
        E(shr(sRB, s(2), 6)); E(salu('s_or_b32', sRB, sRB, s(3))); E(salu('s_or_b32', sRB, sRB, s(4)))
    elif CFG.get('map', 4) == 2:
        t2 = [0, 1, 2, 3, 4, 11, 5, 12, 6, 13, 7, 14, 8, 15, 9, 10]
        lo = sum(t2[i] << (4 * i) for i in range(8)); hi = sum(t2[8 + i] << (4 * i) for i in range(8))
        E(salu('s_bfe_u32', s(3), s(2), (1 << 16) | 3)); E(salu('s_and_b32', s(4), s(2), 3)); E(shl(s(4), s(4), 1)); E(salu('s_or_b32', s(3), s(3), s(4))); E(shl(s(3), s(3), 2))
        E(salu('s_bitcmp1_b32', None, s(2), 2)); E(smov(s(4), lo)); E(csel(s(4), hi, s(4)))
        E(shr(s(4), s(4), s(3))); E(salu('s_and_b32', sROLE, s(4), 15)); E(shr(sRB, s(2), 4))
    else:
        lo = sum(tab[i] << (4 * i) for i in range(8)); hi = sum(tab[8 + i] << (4 * i) for i in range(8))
        E(salu('s_bfe_u32', s(3), s(2), (2 << 16) | 3)); E(salu('s_bfe_u32', s(4), s(2), (1 << 16) | 1))
        E(shl(s(4), s(4), 2)); E(salu('s_or_b32', s(3), s(3), s(4))); E(shl(s(3), s(3), 2))
        E(salu('s_bitcmp1_b32', None, s(2), 2))
        E(smov(s(4), lo)); E(csel(s(4), hi, s(4)))
        E(shr(s(4), s(4), s(3))); E(salu('s_and_b32', sROLE, s(4), 15))
        E(salu('s_and_b32', s(3), s(2), 1)); E(shl(s(3), s(3), 3))
        E(shr(sRB, s(2), 5)); E(salu('s_or_b32', sRB, sRB, s(3)))
    E(valu('v_lshrrev_b32', v(1), 6, v(0)))
    E(valu('v_readfirstlane_b32', sWAVE, v(1)))
    E(valu('v_and_b32', v(0), 63, v(0)))
    E(valu('v_lshrrev_b32', vROWN, 3, v(0)))
    E(valu('v_and_b32', v(20), 7, v(0))); E(valu('v_lshrrev_b32', v(21), 4, v(0)))
    E(valu('v_xor_b32', v(22), v(20), v(21))); E(valu('v_xor_b32', v(23), 4, v(22)))
    E(smov(s(3), 1152)); E(valu('v_mul_u32_u24', v(24), s(3), vROWN))
    E(valu('v_lshl_add_u32', v(16), v(22), 4, v(24))); E(valu('v_lshl_add_u32', v(17), v(23), 4, v(24)))
    E(valu('v_add_u32', v(17), 8 * 1152 - 1024, v(17)))
    E(valu('v_add_u32', v(18), 2 * (8 * 1152 - 1024), v(16))); E(valu('v_add_u32', v(19), 2 * (8 * 1152 - 1024), v(17)))
    E(mul(s(6), sWAVE, XW))
    E(shl(s(7), sRB, 2)); E(add(s(7), s(7), sWAVE)); E(mul(s(7), s(7), 32 * 1152))
    E(raw(f"s_getpc_b64 {sPC}", wr=[sPC])); E(label("L_pc"))
    E(smov(s(4), "L_roleA-L_pc")); E(smov(s(5), "L_roleA_end-L_pc-4"))
    E(salu('s_cmp_ge_u32', None, sROLE, NA)); E(csel(s(4), "L_roleM-L_pc", s(4))); E(csel(s(5), "L_roleM_end-L_pc-4", s(5)))
    E(salu('s_cmp_ge_u32', None, sROLE, NA + NM)); E(csel(s(4), "L_roleF-L_pc", s(4))); E(csel(s(5), "L_roleF_end-L_pc-4", s(5)))
    def code_pf():
        NL = CFG.get('codelines', 24)
        E(salu('s_and_b32', s(3), sRB, 7)); E(shl(s(3), s(3), 2)); E(add(s(3), s(3), sWAVE))
        E(mul(s(3), s(3), NL * 128)); E(add(s(3), s(3), s(4)))
        E(valu('v_min_u32', v(2), NL - 1, v(0))); E(valu('v_lshlrev_b32', v(2), 7, v(2))); E(valu('v_add_u32', v(2), s(3), v(2)))
        E(valu('v_min_u32', v(3), s(5), v(2)))
        E(I(f"global_load_dword {vDUM}, v3, {sPC}", 'vload', wr=vDUM.regs(), rd=vr(3) + sPC.regs(), tag='pf'))
    if CFG.get('codepf', 3) >= 3:
        n0 = CFG.get('code0', 16)
        if n0:
            E(mul(s(3), sWAVE, n0 * 128)); E(add(s(3), s(3), s(4)))
            E(valu('v_min_u32', v(2), n0 - 1, v(0))); E(valu('v_lshlrev_b32', v(2), 7, v(2))); E(valu('v_add_u32', v(2), s(3), v(2)))
            E(I(f"global_load_dword {vDUM}, v2, {sPC}", 'vload', wr=vDUM.regs(), rd=vr(2) + sPC.regs(), tag='pf'))
        code_pf()
    E(raw("s_waitcnt lgkmcnt(0)"))
    srd(p, sX, 40, 2359296)
    if CFG.get('xt'):
        nch = CFG['xt']
        E(salu('s_bfe_u32', s(3), s(2), (2 << 16) | 3)); E(mul(s(3), s(3), 128 * nch)); E(add(s(3), s(3), 128 * (9 - 4 * nch))); E(add(s(3), s(3), s(7)))
        E(valu('v_and_b32', v(2), 31, v(0))); E(valu('v_mul_u32_u24', v(2), 1152, v(2)))
        if nch == 2:
            E(valu('v_lshrrev_b32', v(3), 5, v(0))); E(valu('v_lshl_add_u32', v(2), v(3), 7, v(2)))
        ld = bload('buffer_load_dword', vDUM, v(2), sX, s(3)); ld.tag = 'pf'; E(ld)
    nx0 = CFG.get('tx', 2) if CFG.get('touch') else 0
    for j in range(nx0): E(xdma(j))
    if CFG.get('touch'):
        E(salu('s_cmp_gt_u32', None, sROLE, 10))
        E(raw("s_cselect_b64 s[60:61], s[52:53], s[46:47]", 'salu', wr=[s(60, 2)], rd=[s(52, 2), s(46, 2)]))
        E(raw("s_cselect_b64 s[66:67], s[54:55], s[48:49]", 'salu', wr=[s(66, 2)], rd=[s(54, 2), s(48, 2)]))
        E(salu('s_cmp_eq_u32', None, sWAVE, 1)); E(raw("s_cselect_b64 s[60:61], s[66:67], s[60:61]", 'salu', wr=[s(60, 2)], rd=[s(66, 2), s(60, 2)]))
        E(salu('s_cmp_eq_u32', None, sWAVE, 2)); E(raw("s_cselect_b64 s[60:61], s[42:43], s[60:61]", 'salu', wr=[s(60, 2)], rd=[s(42, 2), s(60, 2)]))
        E(salu('s_cmp_eq_u32', None, sWAVE, 3)); E(raw("s_cselect_b64 s[60:61], s[44:45], s[60:61]", 'salu', wr=[s(60, 2)], rd=[s(44, 2), s(60, 2)]))
        E(smov(s(3), 73728)); E(salu('s_cmp_ge_u32', None, sWAVE, 2)); E(csel(s(3), 131072, s(3)))
        E(valu('v_mul_u32_u24', v(2), s(3), v(0)))
        E(I(f"global_load_dword {vDUM}, v2, s[60:61]", 'vload', wr=vDUM.regs(), rd=vr(2) + sr(60, 2), tag='pf'))
    for j in range(nx0, CFG['xe']): E(xdma(j))
    if CFG.get('codepf', 3) == 1: code_pf()
    if CFG.get('codepf', 3) == 2:
        E(valu('v_mov_b32', v(46), v(3))); E(raw(f"s_mov_b64 s[100:101], {sPC}", 'salu', wr=[s(100, 2)], rd=[sPC]))
    srd(p, sK, 42, 8388608); srd(p, sV, 44, 8388608); srd(p, sWQ, 46, 4718592); srd(p, sWO, 48, 4718592)
    srd(p, sW1, 52, 5308416); srd(p, sW2, 54, 5308416); srd(p, sWS, 50, 0x10000000 if (CFG['stamps'] or CFG['fused']) else WSP_BYTES)
    srd(p, sOUT, 56, 2359296); srd(p, sDBG, 58, 256)
    E(mul(sW8704, sWAVE, 8 * PP)); E(mul(sWC, sWAVE, PP)); E(add(sWC, sWC, 32 * PP))
    E(shl(sW8192, sWAVE, 13)); E(shl(sWCH, sWAVE, 10)); E(add(sWCH, sWCH, 32768))
    E(mul(sW2176, sWAVE, 2 * PP)); E(mul(sW4352, sWAVE, 4 * PP)); E(add(sWA2, sW2176, 16 * PP))
    return p

def dispatch_text():
    return f""" s_cmp_ge_u32 {sROLE}, {NA + NM}
 s_cbranch_scc1 L_roleF
 s_cmp_ge_u32 {sROLE}, {NA}
 s_getpc_b64 s[94:95]
L_pc2:
 s_cbranch_scc1 L_jM
 s_add_u32 s94, s94, L_roleA-L_pc2
 s_addc_u32 s95, s95, 0
 s_setpc_b64 s[94:95]
L_jM:
 s_add_u32 s94, s94, L_roleM-L_pc2
 s_addc_u32 s95, s95, 0
 s_setpc_b64 s[94:95]
"""

def pfload(srd_, base):
    ld = bload('buffer_load_dword', vDUM, vPF, srd_, base); ld.tag = 'pf'; return ld
def pf_lin(srd_, base_s, start, nbytes, nl=64):
    def f():
        return [valu('v_lshrrev_b32', vPF2, 16, vTID), valu('v_and_b32', vPF, 63, vTID), valu('v_min_u32', vPF, nl - 1, vPF),
                valu('v_mad_u32_u24', vPF, vPF2, nl, vPF), valu('v_lshlrev_b32', vPF, 7, vPF), valu('v_add_u32', vPF, start, vPF),
                valu('v_min_u32', vPF, nbytes - 128, vPF), pfload(srd_, base_s)]
    return f
def pf_run(srd_, base_s, nbytes, nl):
    def f():
        return [valu('v_min_u32', vPF, nbytes - 128, vPFR), valu('v_add_u32', vPFR, 64 * nl * 128, vPFR), pfload(srd_, base_s)]
    f.nl = nl
    return f
def vPFW(kind): return {'F': v(8), 'A': v(7), 'M': v(36)}[kind]
def pf_row(kind, srd_, step=128):
    def f():
        ld = bload('buffer_load_dword', vDUM, vPFW(kind), srd_, sPW); ld.tag = 'pf'
        return [add(sPW, sPW, step), ld]
    return f
def pf_row_setup(kind, pitch, nl, base, lit):
    r = vPFW(kind)
    return [valu('v_bfe_u32', vPF2, vTID, 16, 5), valu('v_and_b32', r, 63, vTID), valu('v_min_u32', r, nl - 1, r),
            valu('v_mad_u32_u24', r, vPF2, nl, r), smov(sT2, pitch), valu('v_mul_u32_u24', r, sT2, r), add(sPW, base, lit)]
def pf_code(la, lb, nl):
    def f():
        L = f"L_cp{pf_code.k}"; pf_code.k += 1
        ld = I(f"global_load_dword {vDUM}, {vPF}, {sPC}", 'vload', wr=vDUM.regs(), rd=vPF.regs() + sPC.regs(), units=3, tag='pf')
        return [raw(f"s_getpc_b64 {sPC}", 'salu', wr=[sPC]), label(L),
                salu('s_add_u32', sPC[0], sPC[0], f"{la}-{L}"), salu('s_addc_u32', sPC[1], sPC[1], 0, scc_r=True),
                valu('v_bfe_u32', vPF2, vTID, 16, 5), valu('v_and_b32', vPF, 63, vTID), valu('v_min_u32', vPF, nl - 1, vPF),
                valu('v_mad_u32_u24', vPF, vPF2, nl, vPF), valu('v_lshlrev_b32', vPF, 7, vPF), valu('v_min_u32', vPF, f"{lb}-{la}-4", vPF), ld]
    return f
pf_code.k = 0
def pf_sched(R, k0, srd_, base_s, nbytes, nl):
    per = 64 * nl * 128; k = k0
    for st in range(0, nbytes, per):
        R.pf.setdefault(k, []).append(pf_lin(srd_, base_s, st, nbytes, nl)); k += 1
    return k

def role_prologue(R, vm_before):
    p = R.p; E = p.emit; kind = R.kind
    p.vm = list(vm_before)
    MS = CFG['shape'] == 'M'
    def PS(k):
        if CFG['stamps'] == 1: R.stamp(k)
    if CFG.get('delayrole') is not None:
        for r_ in CFG['delayrole']:
            E(salu('s_cmp_eq_u32', None, sROLE, r_[0])); E(raw(f"s_cbranch_scc0 L_{kind}_nd{r_[0]}"))
            E(smov(sLC, r_[1])); E(label(f"L_{kind}_dl{r_[0]}")); E(raw("s_sleep 127")); E(salu('s_sub_u32', sLC, sLC, 1)); E(salu('s_cmp_lg_u32', None, sLC, 0)); E(raw(f"s_cbranch_scc1 L_{kind}_dl{r_[0]}"))
            E(label(f"L_{kind}_nd{r_[0]}"))
    PS(56)
    lane = v(0)
    ILV = CFG.get('ilv') and not MS
    setup = []
    if ILV:
        E(valu('v_lshrrev_b32', v(48), 4, lane)); E(valu('v_and_b32', v(49), 15, lane)); E(valu('v_bfe_u32', v(50), lane, 1, 3)); E(valu('v_xor_b32', v(50), v(50), v(48)))
        E(valu('v_lshlrev_b32', v(49), 7, v(49))); E(valu('v_add_u32', v(49), s(6), v(49)))
        E(valu('v_lshl_add_u32', v(20), v(50), 4, v(49))); E(valu('v_xor_b32', v(21), 64, v(20)))
        def E(i):
            if isinstance(i, (list, tuple)):
                for x in i: E(x)
            else: setup.append(i)
    E(shl(sT2, sRB, 2)); E(add(sT2, sT2, sWAVE)); E(shl(sT2, sT2, 16)); E(valu('v_or_b32', vTID, sT2, lane))
    if kind in 'AM' and CFG.get('pair'):
        sHP_, sHS_ = s(86), s(85)
        if CFG.get('l844'): E(shl(sHP_, sROLE, 1)); E(add(sHP_, sHP_, 8))
        else: E(mul(sHP_, sROLE, 3))
        if kind == 'A':
            sHP_, sHS_ = sFA, sFC
            E(mul(sHS_, sROLE, 3)); E(salu('s_and_b32', s(4), sROLE, 1)); E(add(sHP_, sHS_, s(4)))
            E(shl(s(4), s(4), 1)); E(add(sHS_, sHS_, 2)); E(salu('s_sub_u32', sHS_, sHS_, s(4)))
            E(salu('s_sub_u32', sJQ, sHS_, sHP_)); E(shl(sJQ, sJQ, 8)); E(salu('s_sub_u32', sJQ, sJQ, 3 * 128))
        E(shl(sQ0, sHP_, 8))
        E(mul(sQA, sWAVE, 64 * 8192)); E(add(sQA, sQA, sQ0))
        E(shl(sQC, sWAVE, 16)); E(add(sQC, sQC, sQ0)); E(add(sQC, sQC, 256 * 8192))
        E(shr(s(3), sWAVE, 1)); E(shl(s(3), s(3), 13)); E(salu('s_and_b32', s(4), sWAVE, 1)); E(shl(s(4), s(4), 11)); E(add(s(3), s(3), s(4)))
        E(salu('s_sub_u32', s(3), s(3), 64)); E(shl(s(4), sWAVE, 11))
        for e, (h_, pfr) in enumerate([(sHP_, sPFa), (sHS_, sPFb)][:2 if kind == 'A' else 1]):
            E(shr(pfr, h_, 1)); E(shl(pfr, pfr, 19)); E(add(pfr, pfr, 1536 * 256))
            E(add(sKb[e], pfr, s(4))); E(add(sVb[e], pfr, s(3)))
        E(mul(sPFc, sROLE, 384 * 1152) if kind == 'A' else mul(sPFc, sHP_, 128 * 1152))
        if kind == 'A':
            E(mul(sHP_, sHP_, 128 * 1152)); E(mul(sHS_, sHS_, 128 * 1152))
            E(mul(sOA, sWAVE, 32 * 1152)); E(add(sOA1, sOA, sHS_)); E(add(sOA, sOA, sHP_))
            E(salu('s_sub_u32', sOA1, sOA1, 64 * 1152)); E(add(sT3, sOA, 192 * 1152)); E(salu('s_cmp_lt_u32', None, sWAVE, 2)); E(csel(sOA1, sT3, sOA1))
            E(shr(s(3), sWAVE, 1)); E(shl(s(3), s(3), 2)); E(salu('s_and_b32', s(4), sWAVE, 1)); E(add(s(3), s(3), s(4)))
            E(mul(sOB, s(3), 8 * 1152)); E(add(sOB1, sOB, sHS_)); E(add(sOB1, sOB1, 64 * 1152)); E(add(sOB, sOB, sHP_)); E(add(sOB, sOB, 128 * 1152))
        else:
            E(mul(sOA, sWAVE, 64 * 1152)); E(add(sOA, sOA, sPFc))
    elif kind in 'AM':
        E(mul(sT3, sROLE, 3 * 256))
        E(mul(sQA, sWAVE, 64 * 8192)); E(add(sQA, sQA, sT3))
        E(shl(sQC, sWAVE, 16)); E(add(sQC, sQC, sT3)); E(add(sQC, sQC, 256 * 8192))
        E(shr(s(3), sWAVE, 1)); E(shl(s(3), s(3), 13)); E(salu('s_and_b32', s(4), sWAVE, 1)); E(shl(s(4), s(4), 11)); E(add(s(3), s(3), s(4)))
        E(salu('s_sub_u32', s(3), s(3), 64)); E(shl(s(4), sWAVE, 11))
        if MS: E(shl(s(3), sWAVE, 12))
        for e in range(3 if kind == 'A' else 2):
            E(mul(sT3, sROLE, 3)); E(add(sT3, sT3, e)); E(shr(sT3, sT3, 1)); E(shl(sT3, sT3, 19)); E(add(sT3, sT3, 1536 * 256))
            if e == 0: E(smov(sPFa, sT3))
            if e == (2 if kind == 'A' else 1): E(smov(sPFb, sT3))
            E(add(sKb[e], sT3, s(4))); E(add(sVb[e], sT3, s(3)))
        E(mul(sPFc, sROLE, 384 * 1152))
        if kind == 'A':
            E(mul(sOA, sWAVE, 32 * 1152)); E(add(sOA, sOA, sPFc))
            E(shr(s(3), sWAVE, 1)); E(shl(s(3), s(3), 2)); E(salu('s_and_b32', s(4), sWAVE, 1)); E(add(s(3), s(3), s(4)))
            E(mul(sOB, s(3), 8 * 1152)); E(add(sOB, sOB, sPFc)); E(add(sOB, sOB, 128 * 1152))
        else:
            E(mul(sOA, sWAVE, 64 * 1152)); E(add(sOA, sOA, sPFc))
    if kind in 'FM':
        if kind == 'F':
            E(salu('s_sub_u32', s(3), sROLE, NA + NM)); E(mul(sPF1, s(3), 13 * 128)); E(shl(sPF1h, s(3), 6)); E(add(sPF1h, sPF1h, 69 * 128))
        elif CFG.get('l844'):
            E(mul(sPF1, sROLE, 5 * 128)); E(add(sPF1, sPF1, (52 - 40) * 128)); E(smov(sPF1h, sPF1))
        else:
            E(smov(sPF1, f_fullcol(5) * 2)); E(smov(sPF1h, f_halfcol(5) * 2))
        E(mul(sHA, sWAVE, 64 * 9216)); E(add(sHA, sHA, sPF1))
        E(mul(sHC, sWAVE, 8 * 9216)); E(add(sHC, sHC, sPF1)); E(add(sHC, sHC, 256 * 9216))
        E(mul(sHH, sWAVE, 128 * 9216)); E(add(sHH, sHH, sPF1h))
        E(mul(sHHC, sWAVE, 16 * 9216)); E(add(sHHC, sHHC, sPF1h)); E(add(sHHC, sHHC, 512 * 9216))
        E(mul(sPF2, sPF1, 576)); E(mul(sPF2h, sPF1h, 576))
        E(mul(sFA, sWAVE, 64 * 1152)); E(add(sFA, sFA, sPF2))
        if MS:
            E(salu('s_and_b32', s(3), sWAVE, 1)); E(shl(s(3), s(3), 1)); E(shr(s(4), sWAVE, 1)); E(add(s(3), s(3), s(4))); E(mul(sFC, s(3), 8 * 1152))
        else: E(mul(sFC, sWAVE, 4 * 1152))
        E(add(sFS, sFC, sPF2h)); E(add(sFC, sFC, sPF2)); E(add(sFC, sFC, 256 * 1152))
    if CFG['pf'] >= 3:
        if kind in 'AM': E(mul(sT3, sROLE, 3 * 256) if not CFG.get('pair') else smov(sT3, sQ0))
        E(pf_row_setup(kind, 8192 if kind in 'AM' else 9216, 18, sT3 if kind in 'AM' else sPF1, 0))
        f_ = pf_row(kind, sWQ if kind in 'AM' else sW1)
        early_pf = [f_()[1]] + f_() + f_()
        if CFG.get('ez'): E(early_pf[0])
        if CFG.get('epf', 1) == 3:
            R.pf.setdefault(0, [])[:0] = [f_, f_]
    E(add(sT3, sROLE, NS - NA if kind == 'F' else 0))
    E(mul(sSt, sT3, PSTR())); E(shl(sT3, sRB, 2)); E(add(sT3, sT3, sWAVE)); E(mul(sT3, sT3, PWAVE)); E(add(sSt, sSt, sT3))
    if kind == 'M': E(add(sSt2, sSt, (NS - NA) * PSTR()))
    if CFG['fused']:
        E(shl(sT2, sRB, 14)); E(add(sT2, sT2, CTRL))
        E(add(sT3, sROLE, NS - NA if kind == 'F' else 0)); E(shl(sT3, sT3, 2)); E(add(sT3, sT3, sT2))
        E(salu('s_cmp_eq_u32', None, sWAVE, 0)); E(csel(sT3, sT3, OOB)); E(csel(sT2, sT2, OOB))
        E(valu('v_and_b32', v(24), 15, lane)); E(valu('v_lshlrev_b32', v(25), 7, v(24))); E(valu('v_add_u32', v(25), 128, v(25)))
        E(raw("v_cmp_eq_u32 vcc, 0, v24", 'valu', wr=['vcc'], rd=[v(24)])); E(valu('v_cndmask_b32', v(25), v(25), 0, 'vcc') if False else raw("v_cndmask_b32 v25, v25, v24, vcc", 'valu', wr=[v(25)], rd=[v(25), v(24), 'vcc']))
        E(valu('v_lshrrev_b32', v(26), 4, lane)); E(valu('v_lshl_add_u32', v(25), v(26), 2 + (NS - NA).bit_length() - 1, v(25))); E(valu('v_add_u32', v(25), sT3, v(25)))
        E(raw(f"s_mov_b64 vcc, {hex(((1 << (NA + 1)) - 1) * (0x10001 if kind == 'M' else 1))}", 'salu', wr=['vcc'])); E(valu('v_mov_b32', vCT, OOB)); E(nop(1))
        E(raw(f"v_cndmask_b32 {vCT}, {vCT}, v25, vcc", 'valu', wr=[vCT], rd=[vCT, v(25), 'vcc']))
        E(valu('v_mov_b32', v(24), vCT))
        assert not (CFG.get('l844') or CFG.get('four') or CFG.get('nof'))
        E(add(sT2, sT2, 4 * (NPART + 1)))
        def flag(lane_, item):
            E(raw(f"s_lshl2_add_u32 {sT3}, {item}, {sT2}", 'salu', wr=[sT3], rd=[item, sT2]))
            E(raw(f"v_writelane_b32 v24, {sT3}, {lane_}", 'valu', wr=[v(24)], rd=[sT3, v(24)]))
        def tflag(lane_, tab, base):
            t_ = [min(x - base, 15) for x in tab]
            E(smov(s(98), sum(t_[i] << (4 * i) for i in range(8)))); E(smov(s(99), t_[8] | (t_[9] << 4)))
            E(shl(s(4), sROLE, 2)); E(salu('s_lshr_b64', s(98, 2), s(98, 2), s(4))); E(salu('s_and_b32', s(4), s(98), 15)); E(add(s(4), s(4), base)); flag(lane_, s(4))
        if kind == 'A' and CFG.get('bal'):
            flag(32, sROLE); tflag(33, BAL2, 10); tflag(34, BAL3, 21)
            tflag(35, [x if x < 36 else i for i, x in enumerate(BALM)][:0] + [(BALM[i] if BALM[i] < 36 else BAL2[i]) for i in range(10)], 10)
        elif kind == 'A':
            flag(32, sROLE); E(add(s(4), sROLE, 10)); flag(33, s(4)); tflag(34, [28, 29, 22, 30, 31, 21, 32, 33, 34, 35], 20)
        elif kind == 'F' and CFG.get('bal'):
            E(add(s(4), sROLE, 12)); E(salu('s_cmp_lt_u32', None, sROLE, 13)); E(csel(s(4), 41, s(4))); flag(32, s(4))
        else:
            E(smov(s(4), 20) if kind == 'M' else add(s(4), sROLE, 12)); flag(32, s(4))
        E(valu('v_mov_b32', v(25), 0))
        z = bstore('buffer_store_dword', v(25), v(24), sWS, 0, flags='sc1'); z.tag = 'zero'; E(z)
        E(shl(sT2, sRB, 4)); E(salu('s_cmp_eq_u32', None, sWAVE, 0)); E(csel(sT2, sT2, 256))
        E(valu('v_mov_b32', v(23), 256)); E(raw(f"v_writelane_b32 v23, {sT2}, 0", 'valu', wr=[v(23)], rd=[sT2, v(23)]))
    T_ = [v(24), v(25), v(26), v(27), v(28), v(29)]
    q, r, c4, rb1 = T_[0], T_[1], T_[2], T_[3]
    E(valu('v_lshrrev_b32', q, 4, lane)); E(valu('v_bfe_u32', r, lane, 2, 2)); E(valu('v_and_b32', c4, 3, lane)); E(valu('v_bfe_u32', rb1, lane, 3, 1))
    E(valu('v_and_b32', T_[4], 7, lane)); E(valu('v_bfe_u32', T_[5], lane, 4, 1)); E(valu('v_lshlrev_b32', T_[5], 1, T_[5]))
    E(valu('v_xor_b32', T_[4], T_[4], T_[5])); E(valu('v_lshlrev_b32', vSWZ, 4, T_[4]))
    E(valu('v_lshrrev_b32', T_[4], 5, lane)); E(valu('v_and_b32', T_[5], 3, vROWN)); E(valu('v_lshl_add_u32', vROWP, T_[4], 4, T_[5]))
    E(smov(sT2, PP)); E(valu('v_mul_u32_u24', T_[4], sT2, q)); E(valu('v_lshl_add_u32', T_[4], r, 7, T_[4]))
    E(valu('v_lshl_add_u32', T_[4], c4, 3, T_[4])); E(valu('v_lshl_add_u32', vRW[0][0], rb1, 5, T_[4]))
    E(valu('v_mov_b32', vDP, vRW[0][0]))
    if MS:
        E(valu('v_and_b32', T_[4], 7, lane)); E(valu('v_bfe_u32', T_[5], lane, 4, 1)); E(valu('v_lshlrev_b32', T_[5], 2, T_[5]))
        E(valu('v_xor_b32', T_[4], T_[4], T_[5])); E(valu('v_lshlrev_b32', vSWZM, 4, T_[4]))
        E(valu('v_bfe_u32', q, lane, 4, 1)); E(valu('v_lshlrev_b32', q, 5, q))
        E(valu('v_and_b32', T_[4], 1, lane)); E(valu('v_lshl_add_u32', q, T_[4], 4, q))
        E(valu('v_bfe_u32', T_[4], lane, 1, 1)); E(valu('v_lshl_add_u32', q, T_[4], 3, q))
        E(valu('v_lshrrev_b32', T_[5], 5, lane))
        E(smov(sT2, PP)); E(valu('v_mad_u32_u24', T_[4], T_[5], sT2, q)); E(valu('v_lshl_add_u32', T_[4], r, 7, T_[4]))
        E(valu('v_lshl_add_u32', vRW[0][0], rb1, 6, T_[4])); E(valu('v_xor_b32', rb1, 1, rb1)); E(valu('v_lshl_add_u32', vRW[0][1], rb1, 6, T_[4]))
        if kind in 'FM':
            E(valu('v_lshl_add_u32', vRH[0], T_[5], 9, q)); E(valu('v_lshl_add_u32', vRH[0], r, 6, vRH[0]))
            E(valu('v_lshlrev_b32', T_[4], 4, c4)); E(valu('v_lshrrev_b32', T_[5], 2, lane)); E(smov(sT2, 9216))
            E(valu('v_mad_u32_u24', vOFFH, T_[5], sT2, T_[4]))
        E(valu('v_lshrrev_b32', q, 4, lane))
    else:
        E(valu('v_xor_b32', vRW[0][1], 32, vRW[0][0]))
    for b in (1, 2):
        for T in range(2): E(valu('v_add_u32', vRW[b][T], 65536 * b, vRW[0][T]))
    if kind in 'FM' and not MS:
        E(valu('v_lshlrev_b32', T_[4], 9, q)); E(valu('v_lshl_add_u32', T_[4], r, 6, T_[4])); E(valu('v_lshl_add_u32', T_[4], c4, 3, T_[4]))
        E(valu('v_and_b32', T_[5], 1, q)); E(valu('v_lshl_add_u32', vRH[0], T_[5], 5, T_[4])); E(valu('v_xor_b32', vRH[1], 32, vRH[0]))
        E(valu('v_lshrrev_b32', T_[4], 5, lane)); E(valu('v_lshlrev_b32', T_[4], 1, T_[4])); E(valu('v_xor_b32', T_[4], T_[4], c4))
        E(valu('v_lshlrev_b32', T_[4], 4, T_[4])); E(valu('v_lshrrev_b32', T_[5], 2, lane)); E(smov(sT2, 9216))
        E(valu('v_mad_u32_u24', vOFFH, T_[5], sT2, T_[4]))
    if kind in 'AM':
        E(valu('v_and_b32', T_[4], 15, lane)); E(valu('v_xor_b32', T_[4], T_[4], q)); E(valu('v_lshlrev_b32', T_[4], 4, T_[4]))
        E(valu('v_lshl_add_u32', vOFFK, q, 8, T_[4]))
    E(set_offw(8192 if kind in 'AM' else 9216, 'M' if MS else 'S'))
    if MS:
        XA = [v(20), v(21), v(22), v(39)]
        E(valu('v_and_b32', T_[4], 31, lane)); E(valu('v_bfe_u32', T_[5], lane, 1, 3)); E(valu('v_lshrrev_b32', q, 5, lane)); E(valu('v_xor_b32', T_[5], T_[5], q))
        E(valu('v_lshlrev_b32', T_[4], 7, T_[4])); E(valu('v_add_u32', T_[4], s(6), T_[4]))
        E(valu('v_lshl_add_u32', XA[0], T_[5], 4, T_[4]))
        for tt in range(1, 4): E(valu('v_xor_b32', XA[tt], 32 * tt, XA[0]))
    else:
        E(valu('v_and_b32', T_[4], 15, lane)); E(valu('v_bfe_u32', T_[5], lane, 1, 3)); E(valu('v_xor_b32', T_[5], T_[5], q))
        E(valu('v_lshlrev_b32', T_[4], 7, T_[4])); E(valu('v_add_u32', T_[4], s(6), T_[4]))
        E(valu('v_lshl_add_u32', v(20), T_[5], 4, T_[4])); E(valu('v_xor_b32', v(21), 64, v(20)))
        if kind in 'AM':
            E(smov(sT2, PP)); E(valu('v_mul_u32_u24', v(22), sT2, r)); E(valu('v_lshl_add_u32', v(22), c4, 8, v(22)))
            E(valu('v_xor_b32', T_[4], q, c4)); E(valu('v_lshl_add_u32', v(22), T_[4], 4, v(22)))
    E(valu('v_lshlrev_b32', vLANE16, 4, lane))
    if CFG['stamps'] == 2: E(valu('v_mov_b32', vSTAMP, 0))
    if CFG['fused'] and CFG.get('rep') and kind in 'FM':
        E(rep_addr(kind, v(24), v(25))); E(valu('v_mov_b32', v(25), 0))
        z = bstore('buffer_store_dword', v(25), v(24), sWS, 0, flags='sc1'); z.tag = 'zero'; E(z)
    E = p.emit
    sONE = s(97) if ILV else sT2
    SA = 56 if ILV else 28
    for i in range(8): E(valu('v_mov_b32', v(SA + i), 0))
    E(smov(sONE, 0x3f803f80))
    def stats(j):
        for tt in range(2):
            for g in range(2):
                for qd in range(4):
                    x = X(2 * j + tt, g)[qd]
                    E(valu('v_dot2c_f32_bf16', v(SA + 2 * g + (qd & 1)), sONE, x, rmw=True))
                    E(valu('v_dot2c_f32_bf16', v(SA + 4 + 2 * g + (qd & 1)), x, x, rmw=True))
    PS(57)
    for j in range(9):
        E(waitvm(p.vm_wait_for(lambda t: t == ('x', j))))
        if j == 0: PS(58)
        if MS:
            for tt in range(4): E(ds_b128(XM(4 * j + tt), XA[tt], j * 4096))
        else:
            for tt in range(2):
                for g in range(2): E(ds_b128(X(2 * j + tt, g), v(20 + tt), j * 4096 + g * 2048))
        if j + CFG['xe'] < 9: E(xdma(j + CFG['xe']))
        if CFG['pf'] >= 3 and CFG.get('epf', 1) == 1 and j == max(8 - CFG['xe'], 0): E(early_pf)
        if ILV:
            nper = -(-len(setup) // max(CFG['ilv'] - j, 1))
            while nper < len(setup) and (SCC in setup[nper].rd or setup[nper].txt.startswith('s_cselect') or VCC in setup[nper].rd): nper += 1
            E(setup[:nper]); del setup[:nper]
        if j >= 1:
            E(waitlg(4)); stats(j - 1)
    E(waitlg(0)); PS(59); E(barrier())
    if CFG.get('codepf', 3) == 2: E(I(f"global_load_dword {vDUM}, v46, s[100:101]", 'vload', wr=vDUM.regs(), rd=vr(46) + sr(100, 2), tag='pf'))
    if CFG['pf'] >= 3 and CFG.get('epf', 1) == 2: E(early_pf)
    pend = []
    for k in range(2 if CFG.get('pro2') else 3):
        st = R.stages[k]
        if st.pre_dma: pend.append(st.pre_dma())
        pend += st.dma(k, False)
    if CFG.get('epf', 1) == 4: pend[CFG.get('epos', 9):CFG.get('epos', 9)] = [early_pf[1:3], early_pf[3:5]]
    d0 = CFG.get('d0', 9)
    for it in pend[:d0]: E(it)
    pend = pend[d0:]
    PS(60)
    stats(8)
    acc4 = [v(SA), v(SA + 2), v(SA + 4), v(SA + 6)]
    for x in acc4: E(valu('v_add_f32', x, x, v(x.n + 1)))
    if MS:
        for b_ in (0, 2):
            E(valu('v_add_f32', acc4[b_], acc4[b_], acc4[b_ + 1]))
        for b_ in (0, 2): E(valu('v_mov_b32', acc4[b_ + 1], acc4[b_]))
    for op in (('v_permlane32_swap_b32',) if MS else ('v_permlane16_swap_b32', 'v_permlane32_swap_b32')):
        for x in acc4: E(valu('v_mov_b32', v(x.n + 1), x))
        for x in acc4: E(valu(op, x, v(x.n + 1), rmw=True, extra_wr=[v(x.n + 1)]))
        for x in acc4: E(valu('v_add_f32', x, x, v(x.n + 1)))
    for x in acc4: E(valu('v_mul_f32', x, f2u(1.0 / 576), x))
    for g in range(2): E(valu('v_fma_f32', acc4[2 + g], '-' + str(acc4[g]), acc4[g], acc4[2 + g]))
    for g in range(2): E(valu('v_max_f32', acc4[2 + g], 0, acc4[2 + g]))
    for g in range(2): E(valu('v_add_f32', acc4[2 + g], f2u(1e-5), acc4[2 + g]))
    for g in range(2): E(valu('v_rsq_f32', acc4[2 + g], acc4[2 + g]))
    for g in range(2): E(valu('v_mul_f32', acc4[2 + g], f2u(-LOG2E), acc4[2 + g]))
    for g in range(2): E(valu('v_mov_b32', v(20 + g), acc4[g]))
    for g in range(2): E(valu('v_mul_f32', acc4[g], '-' + str(acc4[g]), acc4[2 + g], extra_rd=[acc4[g]]))
    E(smov(sT2, 0xffff0000))
    if CFG.get('dotn'):
        cl = [v(SA + 1), v(SA + 3)]; ch = [v(SA + 5), v(SA + 7)]
        for g in range(2): E(valu('v_cvt_pk_bf16_f32', cl[g], acc4[2 + g], 0))
        for g in range(2): E(valu('v_lshlrev_b32', ch[g], 16, cl[g]))
        for g in range(2): E(valu('v_mul_f32', acc4[g], '-' + str(v(20 + g)), ch[g], extra_rd=[v(20 + g)]))
    PS(61)
    n = 0
    for t in range(18):
        for g in range(2):
            tps = [v(24, 2), v(26, 2), v(16, 2), v(18, 2)]
            x = X(t, g)
            if CFG.get('dotn'):
                for qd in range(4):
                    E(valu('v_dot2_f32_bf16', tps[qd][0], x[qd], cl[g], acc4[g])); E(valu('v_dot2_f32_bf16', tps[qd][1], x[qd], ch[g], acc4[g]))
            else:
                for qd in range(4):
                    E(valu('v_lshlrev_b32', tps[qd][0], 16, x[qd])); E(valu('v_and_b32', tps[qd][1], sT2, x[qd]))
                for qd in range(4): E(valu('v_pk_fma_f32', tps[qd], tps[qd], v(acc4[2 + g].n, 2), v(acc4[g].n, 2), mods='op_sel_hi:[1,0,0]'))
            for qd in range(4): E(valu('v_cvt_pk_bf16_f32', x[qd], tps[qd][0], tps[qd][1]))
            if pend and n % CFG.get('dn', 2) == 0: E(pend.pop(0))
            n += 1
    for it in pend: E(it)
    if CFG['fused']:
        E(valu('v_mov_b32', v(24), 1)); E(waitvm(p.vm_wait_for(lambda t: t == 'zero')))
        E(I(f"buffer_atomic_add v24, v23, {sDBG}, 0 offen sc1", 'vstore', rd=vr(23, 2) + sDBG.regs(), units=3, tag='init'))
    for _ in range(CFG.get('idle', 0)): E(raw("s_sleep 16"))
    PS(62)
    if kind in 'AM' and MS:
        ln, m_, key, t_ = v(16), v(17), v(18), v(19)
        E([valu('v_lshrrev_b32', ln, 4, vLANE16), valu('v_and_b32', key, 19, ln),
           valu('v_bfe_u32', t_, ln, 2, 1), valu('v_lshl_add_u32', key, t_, 3, key),
           valu('v_bfe_u32', t_, ln, 3, 1), valu('v_lshl_add_u32', key, t_, 2, key),
           valu('v_lshrrev_b32', m_, 2, key), smov(sT2, PP), valu('v_mul_u32_u24', m_, sT2, m_),
           valu('v_and_b32', key, 3, key), valu('v_lshl_add_u32', m_, key, 8, m_),
           valu('v_lshrrev_b32', t_, 5, ln), valu('v_xor_b32', t_, t_, key),
           valu('v_lshl_add_u32', vRKM[0], t_, 4, m_), valu('v_xor_b32', vRKM[1], 32, vRKM[0])])
    elif kind in 'AM':
        E(valu('v_mov_b32', vRK[0], v(22))); E(valu('v_add_u32', vRK[1], 65536, v(22))); E(valu('v_add_u32', vRK[2], 131072, v(22)))
    if CFG['stamps']: E(raw(f"v_writelane_b32 {vSTAMP}, s96, 55", 'valu', wr=[vSTAMP], rd=[s(96)])) if kind != 'A' else None
    if CFG['stamps']: E(smov(s(43), s(96)))
    nlr = {'F': 10, 'A': 11, 'M': 8}[kind]
    if kind != 'M': E([valu('v_lshrrev_b32', vPF2, 16, vTID), valu('v_and_b32', vPFR, 63, vTID), valu('v_min_u32', vPFR, nlr - 1, vPFR),
       valu('v_mad_u32_u24', vPFR, vPF2, nlr, vPFR), valu('v_lshlrev_b32', vPFR, 7, vPFR)])
    if CFG['stamps']: E(smov(s(97), 0))
    E(smov(sLN0, f2u(-1.0 / math.sqrt(128.0))))

def slow_check(R, heads, base2):
    def f():
        p = R.p; E = p.emit
        t = v(254); lo = v(255)
        E(valu('v_mov_b32', lo, f2u(2.0 ** -40))); E(smov(sT3, f2u(2.0 ** 40)))
        for (hd, Q, O) in heads:
            L = f"L_{R.kind}_slow{hd}"
            if CFG['shape'] == 'M':
                E(valu('v_med3_f32', t, Lsave[hd], sT3, lo))
                E(raw(f"v_cmp_neq_f32 vcc, {t}, {Lsave[hd]}", 'valu', wr=['vcc'], rd=[t, Lsave[hd]])); E(nop(4))
            else:
                E(valu('v_med3_f32', t, Lsave[2 * hd], sT3, lo))
                E(raw(f"v_cmp_neq_f32 s[98:99], {t}, {Lsave[2 * hd]}", 'valu', wr=[s(98, 2)], rd=[t, Lsave[2 * hd]]))
                E(valu('v_med3_f32', t, Lsave[2 * hd + 1], sT3, lo))
                E(raw(f"v_cmp_neq_f32 vcc, {t}, {Lsave[2 * hd + 1]}", 'valu', wr=['vcc'], rd=[t, Lsave[2 * hd + 1]])); E(nop(4))
                E(raw("s_or_b64 vcc, vcc, s[98:99]", 'salu', wr=['vcc'], rd=['vcc', s(98, 2)])); E(nop(1))
            if CFG.get('force_slow'): E(raw(f"s_mov_b64 vcc, -1", 'salu', wr=['vcc']))
            E(raw(f"s_cbranch_vccz {L}_ret"))
            E(raw(f"s_call_b64 {sRET}, {L}"))
            E(label(f"{L}_ret"))
            R.slow.append((slow_path if CFG['shape'] == 'M' else slow_pathS)(L, hd, Q, O, base2))
        E(nop(1))
    return f

def slow_path(L, hd, Q, Odst, b2):
    p = Prog(); E = p.emit
    O = v(48, 64); S = v(b2, 16); P = v(b2 + 16, 8); F = v(b2 + 24, 16)
    vK, vV, vM, vL, t0, t1 = [v(b2 + 40 + i) for i in range(6)]
    sB, sJ, sO = s(98), s(99), s(97)
    E(I(".p2align 2", 'label')); E(label(L))
    E(nop(7)); E(nop(7))
    E([valu('v_lshrrev_b32', t0, 4, vLANE16), valu('v_and_b32', vK, 19, t0), valu('v_bfe_u32', t1, t0, 2, 1), valu('v_lshl_add_u32', vK, t1, 3, vK),
       valu('v_bfe_u32', t1, t0, 3, 1), valu('v_lshl_add_u32', vK, t1, 2, vK), valu('v_lshrrev_b32', t1, 5, t0),
       valu('v_lshlrev_b32', vV, 1, vK), valu('v_lshl_add_u32', vV, t1, 11, vV),
       valu('v_lshlrev_b32', vK, 8, vK), valu('v_lshl_add_u32', vK, t1, 4, vK)])
    E([mul(sB, sROLE, 3), add(sB, sB, hd), shr(sB, sB, 1), shl(sB, sB, 19), add(sB, sB, 1536 * 256)])
    def qk():
        for half in range(2):
            for t in range(4): E(bload('buffer_load_dwordx4', F.sub(4 * t, 4), vK, sK, sO, (4 * half + t) * 32))
            E(waitvm(0))
            for t in range(4):
                tt = 4 * half + t
                E(mfma(S, F.sub(4 * t, 4), Q.sub(4 * tt, 4), 0 if tt == 0 else S))
            E(nop(7)); E(nop(7))
    E(valu('v_mov_b32', vM, 0xff800000)); E(smov(sJ, 0))
    E(label(L + "_a"))
    E(add(sO, sB, sJ)); qk()
    for i in range(0, 16, 2): E(valu('v_max3_f32', vM, vM, S[i], S[i + 1]))
    E(add(sJ, sJ, 8192)); E(salu('s_cmp_lt_u32', None, sJ, 16 * 8192)); E(raw(f"s_cbranch_scc1 {L}_a"))
    E(valu('v_mov_b32', t0, vM)); E(valu('v_permlane32_swap_b32', vM, t0, rmw=True, extra_wr=[t0])); E(valu('v_max_f32', vM, vM, t0))
    for i in range(64): E(valu('v_mov_b32', O[i], 0))
    E(valu('v_mov_b32', vL, 0)); E(smov(sJ, 0))
    E(label(L + "_b"))
    E(add(sO, sB, sJ)); qk()
    for i in range(16): E(valu('v_sub_f32', S[i], S[i], vM))
    for i in range(16): E(valu('v_exp_f32', S[i], S[i]))
    for i in range(16): E(valu('v_add_f32', vL, vL, S[i]))
    for q in range(8): E(valu('v_cvt_pk_bf16_f32', P[q], S[2 * q], S[2 * q + 1]))
    for u in range(2):
        for tp in range(2):
            for tq in range(2):
                for j in range(8):
                    E(bload('buffer_load_ushort', F[8 * (j & 1) + 4 * tq + j // 2], vV, sV, sO, j * 256 + (2 * tp + tq) * 64))
            E(waitvm(0))
            for i in range(8): E(valu('v_lshl_or_b32', F[i], F[8 + i], 16, F[i]))
            for tq in range(2):
                D_ = O.sub(16 * (2 * tp + tq), 16)
                E(mfma(D_, F.sub(4 * tq, 4), P.sub(4 * u, 4), D_))
            E(nop(7))
        if u == 0: E(add(sO, sO, 4096))
    E(add(sJ, sJ, 8192)); E(salu('s_cmp_lt_u32', None, sJ, 16 * 8192)); E(raw(f"s_cbranch_scc1 {L}_b"))
    E(nop(7)); E(nop(7))
    E(valu('v_mov_b32', t0, vL)); E(valu('v_permlane32_swap_b32', vL, t0, rmw=True, extra_wr=[t0])); E(valu('v_add_f32', vL, vL, t0))
    E(valu('v_rcp_f32', t0, vL))
    for tau in range(4):
        A_ = O.sub(16 * tau, 16)
        for e in range(16): E(valu('v_mul_f32', A_[e], A_[e], t0))
        for q in range(8): E(valu('v_cvt_pk_bf16_f32', A_[2 * q], A_[2 * q], A_[2 * q + 1]))
        for q in range(4): E(valu('v_permlane16_swap_b32', A_[2 * q], A_[2 * q + 8], rmw=True, extra_wr=[A_[2 * q + 8]]))
        for q in range(8): E(valu('v_accvgpr_write_b32', Odst[8 * tau + q], A_[2 * q]))
    E(nop(1)); E(raw(f"s_setpc_b64 {sRET}"))
    return p

def slow_pathS(L, hd, Q, Odst, b2):
    p = Prog(); E = p.emit
    ob = 48; kv = None
    if isinstance(b2, tuple): b2, ob = b2
    if isinstance(Odst, tuple):
        OFf, kv = Odst
        class _D:
            def __getitem__(s_, i): return OFf(i // 8)[i % 8]
        Odst = _D()
    O = v(ob, 64); S = v(b2, 16); P = v(b2 + 16, 8); F = v(b2 + 24, 16)
    vK, vV, t0, t1 = [v(b2 + 40 + i) for i in range(4)]
    vM = [v(b2 + 44), v(b2 + 45)]; vL = [v(b2 + 46), v(b2 + 47)]
    sB, sJ, sO = s(98), s(99), s(97)
    E(I(".p2align 2", 'label')); E(label(L))
    E(nop(7)); E(nop(7))
    E([valu('v_lshrrev_b32', t0, 4, vLANE16), valu('v_and_b32', t1, 15, t0), valu('v_lshrrev_b32', t0, 4, t0),
       valu('v_lshlrev_b32', vK, 8, t1), valu('v_lshl_add_u32', vK, t0, 4, vK),
       valu('v_lshlrev_b32', vV, 1, t1), valu('v_lshl_add_u32', vV, t0, 10, vV)])
    if kv is not None: E(smov(sB, kv))
    else: E([mul(sB, sROLE, 3), add(sB, sB, hd), shr(sB, sB, 1), shl(sB, sB, 19), add(sB, sB, 1536 * 256)])
    def qk():
        for T in range(2):
            E(add(sO, sB, sJ)) if T == 0 else E(add(sO, sO, 4096))
            for t in range(4): E(bload('buffer_load_dwordx4', F.sub(4 * t, 4), vK, sK, sO, t * 64))
            E(waitvm(0))
            for t in range(4):
                for g_ in range(2):
                    D_ = S.sub(8 * T + 4 * g_, 4)
                    E(mfma(D_, F.sub(4 * t, 4), Q.sub(8 * t + 4 * g_, 4), 0 if t == 0 else D_))
            E(nop(7)); E(nop(3))
    def allq(x, op):
        for sw in ('v_permlane16_swap_b32', 'v_permlane32_swap_b32'):
            E(valu('v_mov_b32', t0, x)); E(valu(sw, x, t0, rmw=True, extra_wr=[t0])); E(valu(op, x, x, t0))
    for g_ in range(2): E(valu('v_mov_b32', vM[g_], 0xff800000))
    E(smov(sJ, 0))
    E(label(L + "_a"))
    qk()
    for T in range(2):
        for g_ in range(2):
            for i in (0, 2): E(valu('v_max3_f32', vM[g_], vM[g_], S[8 * T + 4 * g_ + i], S[8 * T + 4 * g_ + i + 1]))
    E(add(sJ, sJ, 8192)); E(salu('s_cmp_lt_u32', None, sJ, 16 * 8192)); E(raw(f"s_cbranch_scc1 {L}_a"))
    for g_ in range(2): allq(vM[g_], 'v_max_f32')
    for i in range(64): E(valu('v_mov_b32', O[i], 0))
    for g_ in range(2): E(valu('v_mov_b32', vL[g_], 0))
    E(smov(sJ, 0))
    E(label(L + "_b"))
    qk()
    for i in range(16): E(valu('v_sub_f32', S[i], S[i], vM[(i >> 2) & 1]))
    for i in range(16): E(valu('v_exp_f32', S[i], S[i]))
    for i in range(16): E(valu('v_add_f32', vL[(i >> 2) & 1], vL[(i >> 2) & 1], S[i]))
    for g_ in range(2):
        for T in range(2):
            for k in range(2): E(valu('v_cvt_pk_bf16_f32', P[4 * g_ + 2 * T + k], S[8 * T + 4 * g_ + 2 * k], S[8 * T + 4 * g_ + 2 * k + 1]))
    for tp in range(4):
        for jh in range(2):
            E(add(sO, sB, sJ)) if jh == 0 else E(add(sO, sO, 4096))
            for tq in range(2):
                for jl in range(4):
                    j = 4 * jh + jl
                    E(bload('buffer_load_ushort', F[8 * (j & 1) + 4 * tq + j // 2], vV, sV, sO, jl * 256 + (2 * tp + tq) * 32))
        E(waitvm(0))
        for i in range(8): E(valu('v_lshl_or_b32', F[i], F[8 + i], 16, F[i]))
        for tq in range(2):
            for g_ in range(2):
                D_ = O.sub(8 * (2 * tp + tq) + 4 * g_, 4)
                E(mfma(D_, F.sub(4 * tq, 4), P.sub(4 * g_, 4), D_))
        E(nop(7))
    E(add(sJ, sJ, 8192)); E(salu('s_cmp_lt_u32', None, sJ, 16 * 8192)); E(raw(f"s_cbranch_scc1 {L}_b"))
    E(nop(7)); E(nop(3))
    for g_ in range(2): allq(vL[g_], 'v_add_f32')
    for g_ in range(2): E(valu('v_rcp_f32', vL[g_], vL[g_]))
    for i in range(64): E(valu('v_mul_f32', O[i], O[i], vL[(i >> 2) & 1]))
    for kk in range(4):
        for g_ in range(2):
            for T in range(2):
                for c in range(2):
                    r = 8 * (2 * kk + T) + 4 * g_ + 2 * c
                    E(valu('v_cvt_pk_bf16_f32', O[r], O[r], O[r + 1])); E(valu('v_accvgpr_write_b32', Odst[8 * kk + 4 * g_ + 2 * T + c], O[r]))
    E(nop(1)); E(raw(f"s_setpc_b64 {sRET}"))
    return p

NREP = 6
BAL2 = [10, 11, 22, 13, 14, 21, 12, 17, 15, 19]; BALM = [63, 63, 63, 63, 63, 63, 16, 63, 18, 63]; BAL3 = [28, 29, 23, 30, 31, 24, 32, 33, 34, 35]
sMD2 = s(84)
def rep_addr(kind, dst, t):
    return [shl(sT2, sRB, 14), add(sT2, sT2, CTRL + 2048), add(sT3, sROLE, NS - NA), shl(sT3, sT3, 2), add(sT2, sT2, sT3),
            salu('s_cmp_eq_u32', None, sWAVE, 0), csel(sT2, sT2, OOB),
            valu('v_lshlrev_b32', dst, 3, vLANE16), valu('v_add_u32', dst, sT2, dst), valu('v_mov_b32', t, OOB),
            raw(f"v_cmp_gt_u32 vcc, {hex(NA * NREP * 16)}, {vLANE16}", 'valu', wr=['vcc'], rd=[vLANE16]), valu('v_cndmask_b32', dst, t, dst, 'vcc')]
vCR = v(31)
def add_signals(R):
    P2 = [k for k, st in enumerate(R.stages) if st.name.startswith('P2')]
    def sig(first):
        def f():
            out = [valu('v_add_u32', vPRG, 1, vPRG)]
            return out + [bstore('buffer_store_dword', vPRG, vCT, sWS, 0, flags='sc1')]
        return f
    def sig7():
        return [valu('v_add_u32', vPRG, 1, vPRG), bstore('buffer_store_dword', vPRG, vCR, sWS, 0, flags='sc1'), bstore('buffer_store_dword', vPRG, vCT, sWS, 0, flags='sc1')]
    def chain(stages, base):
        firsts = [k for k in stages if R.stages[k].sub == 0]
        for c in range(8):
            k = firsts[c + 1] + CFG.get('siglag', {}).get(R.kind, 2)
            if k > stages[-1]: break
            R.stages[k].cover_st = base + c; R.stages[k].post_bar = sig(c == 0)
            if c == 7 and CFG.get('rep') and R.kind in 'FM': R.stages[k].post_bar = sig7
        if CFG.get('rep') and R.kind in 'FM': R.pf.setdefault(firsts[1], []).append(lambda: rep_addr(R.kind, vCR, vPF))
    chain(P2, 0)
    R.stages[P2[0]].post_bar = lambda: [valu('v_mov_b32', vPRG, 0)]

LDSC = 4 * SLOT
sAB = s(72, 2); sRM = s(74, 2); sCD = s(76, 2)
sRS, sRF, sSP, sC, sI, sPB, sPART, sOK, sPAR, sXW, sPWv, sTO = s(78), s(79), s(71), s(80), s(81), s(82), s(47), s(40), s(41), s(59), s(3), s(58)
sIT = [s(42), s(44), s(45)]; sXP = [s(46), s(60), s(61)]
sRET2 = s(66, 2)
vP, vD, vA, vO, vXO, vL4, vDO, vLA, vIT, vLD, vSC = [v(16 + i) for i in range(11)]
vX4 = v(28)
def s64(op, d, *src, scc_r=False): return salu(op, d, *src, scc_r=scc_r)
sPV = s(85)
def red_setup(kind):
    o = [shl(sPB, sRB, 14), add(sPB, sPB, CTRL), salu('s_cmp_eq_u32', None, sWAVE, 0), csel(sT3, 0, OOB),
         valu('v_lshrrev_b32', vL4, 2, vLANE16), valu('v_add_u32', vL4, sT3, vL4),
         valu('v_mov_b32', vSC, OOB), add(sT2, sT3, 4 * NPART), raw(f"v_writelane_b32 {vSC}, {sT2}, 0", 'valu', wr=[vSC], rd=[sT2, vSC]),
         valu('v_mov_b32', vS1, vSC), valu('v_min_u32', vL5, NPART * 16, vLANE16), valu('v_lshrrev_b32', vL5, 2, vL5), valu('v_add_u32', vL5, sT3, vL5),
         add(sT2, sT3, 252), raw(f"v_writelane_b32 {vSC}, {sT2}, 1", 'valu', wr=[vSC], rd=[sT2, vSC]),
         shl(sT2, sRB, 4), add(sT2, sT2, sT3), valu('v_mov_b32', vDO, 256), raw(f"v_writelane_b32 {vDO}, {sT2}, 0", 'valu', wr=[vDO], rd=[sT2, vDO])]
    if kind == 'A': o += [shl(sPV, sROLE, 7), add(sPV, sPV, 256), add(sPV, sPV, sPB)]
    return o
vS1, vL5 = v(29), v(30)
PRIV = [False]
def red_poll(shared=False):
    cnt = [valu('v_mov_b32', vD, 0), I(f"buffer_atomic_add {vD}, {vDO}, {sDBG}, 0 offen sc0 sc1", 'vload', wr=vD.regs(), rd=vD.regs() + vDO.regs() + sDBG.regs(), units=3)]
    if PRIV[0] and not shared:
        return [cnt, [bstore('buffer_store_dword', vS1, vS1, sWS, sPV, flags='sc1'), bload('buffer_load_dword', vP, vL5, sWS, sPV, flags='sc1')]]
    return [cnt, [bstore('buffer_store_dword', vSC, vSC, sWS, sPB, flags='sc1'), bload('buffer_load_dword', vP, vL4, sWS, sPB, flags='sc1')]]
vG = [v(28), v(29), v(30)]; vGA = v(31); vGP = v(27)
def l2pf_setup():
    return [valu('v_lshrrev_b32', vGP, 7, vLANE16), smov(sT2, PSTR()), valu('v_mul_lo_u32', vGA, vGP, sT2),
            valu('v_bfe_u32', vA, vLANE16, 4, 3), valu('v_lshl_add_u32', vGA, vA, 7, vGA), shl(sT2, sWAVE, 10), valu('v_add_u32', vGA, sT2, vGA),
            valu('v_lshlrev_b32', vGP, 2, vGP), valu('v_mov_b32', vA, OOB), smov(sT2, 68), raw(f"v_writelane_b32 {vA}, {sT2}, 0", 'valu', wr=[vA], rd=[vA, sT2])]
def l2pf_poll():
    st = bstore('buffer_store_dword', vA, vA, sWS, sPB, flags='sc1')
    out = [[st]]
    for i in range(3):
        ld = bload('buffer_load_dword', vG[i], vGP, sWS, sPB, 32 * i, flags='sc1'); ld.tag = 'gp'
        out.append([ld])
    return out
def l2pf_issue(R, dlt):
    out = [[add(sI, sROLE, dlt), salu('s_and_b32', sT2, sI, 3), shr(sC, sI, 2), shl(sT3, sRB, 2), add(sT2, sT2, sT3), mul(sSP, sT2, PWAVE),
            shl(sT3, sC, 12), add(sSP, sSP, sT3), valu('v_mov_b32', vO, OOB)]]
    for i in range(3):
        ld = bload('buffer_load_dword', vDUM, vG[i], sWS, sT2); ld.tag = 'pf'
        cmp_ = raw(f"v_cmp_lt_u32 vcc, {sC}, {vG[i]}", 'valu', wr=['vcc'], rd=[sC, vG[i]])
        pre = [cmp_]
        if i == 2: pre += [raw("s_and_b64 vcc, vcc, 0xff", 'salu', wr=['vcc'], rd=['vcc'])]
        out.append(pre + [add(sT2, sSP, 8 * i * PSTR()), valu('v_cndmask_b32', vG[i], vO, vGA, 'vcc'), ld])
    return out
def red_eval():
    o = [raw(f"v_cmp_ne_u32 vcc, 0, {vP}", 'valu', wr=['vcc'], rd=[vP]), nop(1),
         raw(f"s_lshr_b64 {sAB}, vcc, {NPART + 1}", 'salu', wr=[sAB], rd=['vcc']), salu('s_and_b32', sAB[1], sAB[1], 15), smov(sRS, 0), smov(sRF, 0)]
    for c in range(9):
        o += [raw(f"v_cmp_ge_u32 vcc, {c}, {vP}", 'valu', wr=['vcc'], rd=[vP]), nop(1),
              raw(f"s_and_b32 {sT2}, vcc_lo, {hex((1 << NS) - 1)}", 'salu', wr=[sT2], rd=['vcc']), csel(sRS, sRS, 4 * (c + 1)),
              raw(f"s_and_b32 {sT2}, vcc_lo, {hex((1 << NPART) - (1 << NS))}", 'salu', wr=[sT2], rd=['vcc']), csel(sRF, sRF, 4 * (c + 1))]
    return o
def red_pub(par):
    return [shl(sT2, sRF, 8), salu('s_or_b32', sT2, sT2, sRS), shl(sT3, sTO, 16), salu('s_or_b32', sT2, sT2, sT3),
            valu('v_mov_b32', vIT, sT2), valu('v_mov_b32', vLA, par), raw(f"ds_write_b32 {vLA}, {vIT}", 'other', rd=[vLA, vIT]), waitlg(0)]
def red_get(par):
    return [valu('v_mov_b32', vLA, par), raw(f"ds_read_b32 {vIT}, {vLA}", 'ds', wr=[vIT], rd=[vLA]), waitlg(0),
            valu('v_readfirstlane_b32', sT2, vIT), salu('s_and_b32', sRS, sT2, 255), salu('s_bfe_u32', sRF, sT2, (8 << 16) | 8), shr(sTO, sT2, 16)]
def red_early(p, n):
    E = p.emit
    E([smov(sRS, 0), smov(sRF, 0), smov(sOK, 0), smov(sTO, 0), smov(sPAR, LDSC + 4), nop(1)])
    E(salu('s_cmp_eq_u32', None, sWAVE, 0)); E(raw(f"s_cbranch_scc0 L_{n}_e2"))
    E(waitvm(p.vm_wait_for(lambda t: t == 'poll')))
    E(valu('v_readfirstlane_b32', sOK, vD))
    E(salu('s_cmp_ge_u32', None, sOK, 16)); E(raw(f"s_cbranch_scc0 L_{n}_e1"))
    E(red_eval())
    E(label(f"L_{n}_e1"))
    E(red_pub(LDSC))
    E(label(f"L_{n}_e2"))

def ld_part(L, ks, flags):
    out = []
    for k in ks:
        out.append([add(sT2, sPART, k * PSTR()), bload('buffer_load_dwordx4', v(L + 4 * k, 4), vLD, sWS, sT2, flags=flags)])
    return out
def ld_x(L, sXO_):
    if CFG.get('nox'): return [[valu('v_mov_b32', vA, OOB), bload('buffer_load_dwordx2', v(L + 4 * NPART, 2), vA, sX, sXO_)], [bload('buffer_load_dwordx2', v(L + 4 * NPART + 2, 2), vA, sX, sXO_, 32)]]
    return [[bload('buffer_load_dwordx2', v(L + 4 * NPART, 2), vXO, sX, sXO_)], [bload('buffer_load_dwordx2', v(L + 4 * NPART + 2, 2), vXO, sX, sXO_, 32)]]
RB_ = 48
sD0, sD1 = s(68), s(69)
def proc_sum(E, L, ks, after, loads):
    SA, FA, T = RB_, RB_ + 8, RB_ + 16
    issued = 0; ks = list(ks)
    E(smov(sT3, 0xffff0000))
    for j, k in enumerate(ks):
        if loads: E(loads.pop(0)); issued += 1
        E(waitvm(len(ks) - 1 - j + after + issued))
        acc = SA if k < NS else FA
        for q in range(4):
            x = v(L + 4 * k + q)
            if k in (0, NS):
                E(valu('v_lshlrev_b32', v(acc + 2 * q), 16, x)); E(valu('v_and_b32', v(acc + 2 * q + 1), sT3, x))
            else:
                E(valu('v_dot2c_f32_bf16', v(acc + 2 * q), sD0, x, rmw=True)); E(valu('v_dot2c_f32_bf16', v(acc + 2 * q + 1), sD1, x, rmw=True))
    return issued
def proc_fin(E, L, sXO_, xwait, loads):
    SA, FA, T = RB_, RB_ + 8, RB_ + 16; XR = L + 4 * NPART; issued = 0
    for e in range(8): E(valu('v_exp_f32', v(T + e), v(FA + e)))
    for e in range(8): E(valu('v_add_f32', v(T + e), 1.0, v(T + e)))
    while len(loads) > 1: E(loads.pop(0)); issued += 1
    for e in range(8): E(valu('v_rcp_f32', v(T + e), v(T + e)))
    for e in range(8): E(valu('v_mul_f32', v(FA + e), f2u(-math.log(2.0)), v(FA + e)))
    for e in range(8): E(valu('v_mul_f32', v(FA + e), v(FA + e), v(T + e)))
    while loads: E(loads.pop(0)); issued += 1
    if xwait is not None: E(waitvm(xwait + issued))
    for q in range(4):
        E(valu('v_lshlrev_b32', v(T + 2 * q), 16, v(XR + q))); E(valu('v_and_b32', v(T + 2 * q + 1), sT3, v(XR + q)))
    for e in range(8): E(valu('v_fma_f32', v(T + e), v(SA + e), v(FA + e), v(T + e)))
    for q in range(4): E(valu('v_cvt_pk_bf16_f32', v(XR + q), v(T + 2 * q), v(T + 2 * q + 1)))
    if CFG.get('out4', True):
        def dpp(d, src, bank): return I(f"v_mov_b32_dpp {d}, {src} row_ror:8 row_mask:0xf bank_mask:{bank}", 'perm', wr=d.regs(), rd=src.regs() + d.regs())
        for i in range(2): E(valu('v_permlane16_swap_b32', v(XR + i), v(XR + 2 + i), rmw=True, extra_wr=[v(XR + 2 + i)]))
        for i in range(2): E(valu('v_mov_b32', v(T + i), v(XR + i)))
        for i in range(2): E(dpp(v(XR + i), v(XR + 2 + i), '0xc'))
        for i in range(2): E(dpp(v(XR + 2 + i), v(T + i), '0x3'))
        E(bstore('buffer_store_dwordx4', v(XR, 4), vX4, sOUT, sXO_, flags=CFG.get('oflags', 'sc1')))
        E(valu('v_mov_b32', vO, OOB)); E(bstore('buffer_store_dword', vO, vO, sOUT, 0))
        return
    E(bstore('buffer_store_dwordx2', v(XR, 2), vXO, sOUT, sXO_)); E(bstore('buffer_store_dwordx2', v(XR + 2, 2), vXO, sOUT, sXO_, 32))
def proc_all(E, L, sXO_, pre, loads):
    loads = list(loads)
    n = proc_sum(E, L, range(NPART), 2 + pre, loads)
    proc_fin(E, L, sXO_, pre + n, loads)

def acc_part(E, L, k):
    acc = RB_ if k < NS else RB_ + 8
    for q in range(4):
        x = v(L + 4 * k + q)
        if k in (0, NS):
            E(valu('v_lshlrev_b32', v(acc + 2 * q), 16, x)); E(valu('v_and_b32', v(acc + 2 * q + 1), sT3, x))
        else:
            E(valu('v_dot2c_f32_bf16', v(acc + 2 * q), sD0, x, rmw=True)); E(valu('v_dot2c_f32_bf16', v(acc + 2 * q + 1), sD1, x, rmw=True))
def stream(E, segs, hooks=None):
    W = CFG.get('rwin', 8); FL = CFG.get('fflags', 'sc1')
    seq = []
    for (L, sP, sX_, ks, wx, fin) in segs:
        if wx:
            for it in ld_x(L, sX_): seq.append((it, None))
        ks = list(ks)
        for j, k in enumerate(ks):
            it = [add(sT2, sP, k * PSTR()), bload('buffer_load_dwordx4', v(L + 4 * k, 4), vLD, sWS, sT2, flags=FL)]
            last = fin and j == len(ks) - 1
            seq.append((it, (lambda L=L, k=k, last=last, sX_=sX_: (acc_part(E, L, k), proc_fin(E, L, sX_, None, []) if last else None, last)[2])))
    E(smov(sT3, 0xffff0000))
    n = len(seq); issued = 0
    extra_at = []
    for c in range(n):
        while issued < min(n, c + W): E(seq[issued][0]); issued += 1
        if hooks and c in hooks:
            for _ in range(hooks[c](issued + sum(1 for e in extra_at))): extra_at.append(issued)
            E(smov(sT3, 0xffff0000))
        if seq[c][1] is None: continue
        E(waitvm(issued - 1 - c + sum(1 for e in extra_at if e > c)))
        if seq[c][1]():
            extra_at += [issued, issued]

def body_items(E, n, its, two, ni, ensure, refresh, done, ST, seg, final_flag, poll_hook, LATE, L0, L1, FOUR, sMID, offs, sPT):
    E(salu('s_min_u32', sT2, sRS, sRF)); E(salu('s_cmp_lt_u32', None, its[two - 1], sT2)); E(raw(f"s_cbranch_scc0 L_{n}_sl"))
    ST(its[0])
    hooks = {(NPART + 2) * two - CFG.get('pollat', 8): poll_hook}
    if LATE: hooks[CFG.get('flagat', 3) if n == 'A' else 0] = final_flag
    stream(E, [seg(0, L0), seg(1, L1)][:two], hooks)
    ST(51)
    E(raw(f"s_branch L_{n}_j"))
    E(label(f"L_{n}_sl"))
    if LATE and two == 2 and CFG.get('mid1', 1):
        E(salu('s_min_u32', sT2, sRS, sRF)); E(salu('s_cmp_lt_u32', None, its[0], sT2)); E(raw(f"s_cbranch_scc0 L_{n}_s0"))
        ST(52)
        stream(E, [seg(0, L0)], {CFG.get('flagat', 3): final_flag, 12: poll_hook}); done(its[0])
        refresh(2); ensure(its[1], 1, 1)
        stream(E, [seg(1, L1)], {11: poll_hook})
        E(raw(f"s_branch L_{n}_j"))
        E(label(f"L_{n}_s0"))
    if LATE: final_flag(0)
    for i in range(two):
        ensure(its[i], 1, 1)
        stream(E, [seg(i, L0)], {11: poll_hook} if i == two - 1 else None); done(its[i])
    E(label(f"L_{n}_j"))
    for i in range(two): done(its[i])
    if FOUR or ((CFG.get('asg') == 3 or CFG.get('bal')) and n == 'A'):
        E(salu('s_cmp_gt_u32', None, sMID, 35)); E(raw(f"s_cbranch_scc1 L_{n}_nm"))
        refresh(2)
        ensure(sMID, 1, 1); ST(sMID)
        E(offs(sMID, sXP[0]))
        stream(E, [seg(0, L1)], {13: poll_hook}); done(sMID)
        E(label(f"L_{n}_nm"))
    def warm():
        if not CFG.get('warm', 1): return
        E(valu('v_mov_b32', v(240), vLD)); E(valu('v_mov_b32', v(241), vX4)); E(valu('v_mov_b32', vLD, OOB)); E(valu('v_mov_b32', vX4, OOB))
        E(raw(f"s_call_b64 {sRET2}, L_{n}_ft"))
        E(valu('v_mov_b32', vLD, v(240))); E(valu('v_mov_b32', vX4, v(241)))
    if ni == 3:
        if CFG.get('asg') == 3:
            E(salu('s_cmp_lt_u32', None, its[2], 36)); E(raw(f"s_cbranch_scc1 L_{n}_h3"))
            E(red_poll(True)[1]); E(waitvm(0)); E(raw(f"s_branch L_{n}_fin")); E(label(f"L_{n}_h3"))
        refresh(2)
        if CFG.get('nof'):
            E(salu('s_cmp_gt_u32', None, sMD2, 35)); E(raw(f"s_cbranch_scc1 L_{n}_k1"))
            ensure(sMD2, 1, 1); E(offs(sMD2, sXP[0])); ST(sMD2)
            E(salu('s_cmp_lt_u32', None, its[2], sRS)); E(raw(f"s_cbranch_scc0 L_{n}_k0"))
            E(salu('s_cmp_lt_u32', None, its[2], sRF)); E(raw(f"s_cbranch_scc1 L_{n}_k0"))
            warm()
            stream(E, [seg(0, L1), seg(2, L0, range(NS), True, False)], {20: poll_hook.sh}); done(sMD2)
            E(raw(f"s_branch L_{n}_k2"))
            E(label(f"L_{n}_k0"))
            stream(E, [seg(0, L1)], {11: poll_hook}); done(sMD2)
            refresh(2)
            E(label(f"L_{n}_k1"))
        ensure(its[2], 1, 0); ST(its[2])
        E(salu('s_cmp_lt_u32', None, its[2], sRF)); E(raw(f"s_cbranch_scc1 L_{n}_f3"))
        if CFG.get('rep') and n == 'A':
            warm()
            stream(E, [seg(2, L0, range(NS), True, False)], {4: poll_hook.sh})
            E(label(f"L_{n}_k2"))
            E(salu('s_cmp_eq_u32', None, sWAVE, 0)); E(raw(f"s_cbranch_scc0 L_{n}_w2"))
            E(waitvm(0))
            E(raw(f"v_cmp_ne_u32 vcc, 0, {vP}", 'valu', wr=['vcc'], rd=[vP])); E(nop(1))
            E(raw(f"s_lshr_b64 {sAB}, vcc, {NPART + 1}", 'salu', wr=[sAB], rd=['vcc'])); E(salu('s_and_b32', sAB[1], sAB[1], 15))
            E(salu('s_or_b32', sT2, sAB[0], sAB[1])); E(csel(sRS, 1, 0))
            E(shr(sC, its[2], 2)); E(mul(sI, sROLE, NREP * 128)); E(add(sI, sI, sPB)); E(add(sI, sI, 2048)); E(add(sSP, sI, NREP * 128))
            E(label(f"L_{n}_w0"))
            E(bload('buffer_load_dword', vP, vL5, sWS, sI, flags='sc1')); E(waitvm(0))
            E(raw(f"v_cmp_ge_u32 vcc, {sC}, {vP}", 'valu', wr=['vcc'], rd=[vP, sC])); E(nop(1))
            E(raw(f"s_and_b32 {sT2}, vcc_lo, {hex((1 << NPART) - (1 << NS))}", 'salu', wr=[sT2], rd=['vcc'])); E(csel(sRF, 0, 36))
            E(raw(f"s_cbranch_scc0 L_{n}_w1"))
            E(add(sI, sI, 128)); E(salu('s_cmp_lt_u32', None, sI, sSP)); E(raw(f"s_cbranch_scc0 L_{n}_w1"))
            E(raw(f"s_sleep {CFG.get('rsleep', 6)}")); E(raw(f"s_branch L_{n}_w0"))
            E(label(f"L_{n}_w1")); E(red_pub(sPAR))
            E(label(f"L_{n}_w2")); E(barrier()); E(red_get(sPAR)); E(salu('s_xor_b32', sPAR, sPAR, 12))
            E(smov(sMID, sRS))
            ensure(its[2], 0, 1); ST(50)
            E(raw(f"s_call_b64 {sRET2}, L_{n}_ft")); done(its[2])
            E(salu('s_cmp_eq_u32', None, sMID, 0)); E(raw(f"s_cbranch_scc1 L_{n}_exit")); E(raw(f"s_branch L_{n}_fb"))
            E(label(f"L_{n}_ft"))
            stream(E, [seg(2, L0, range(NS, NPART), False, True)])
            E(raw(f"s_setpc_b64 {sRET2}"))
        else:
            stream(E, [seg(2, L0, range(NS), True, False)], {6: poll_hook})
            refresh(0)
            ensure(its[2], 0, 1); ST(50)
            stream(E, [seg(2, L0, range(NS, NPART), False, True)], {0: poll_hook.sh})
            E(raw(f"s_branch L_{n}_f4"))
        E(label(f"L_{n}_f3"))
        stream(E, [seg(2, L0)], {11: poll_hook.sh})
        E(label(f"L_{n}_f4"))
        done(its[2])


def reducer(kind):
    p = Prog(); E = p.emit; n = kind; FL = CFG.get('fflags', 'sc1')
    PRIV[0] = (kind == 'A')
    def ST(code):
        if CFG['stamps'] != 2: return
        E(raw(f"s_memtime {sSTAMP}", wr=[sSTAMP])); E(raw("s_waitcnt lgkmcnt(0)")); E(salu('s_sub_u32', s(98), s(98), s(100)))
        E(shl(s(98), s(98), 6)); E(salu('s_or_b32', s(98), s(98), code))
        E(add(s(97), s(97), 16)); E(salu('s_min_u32', s(97), s(97), 11 * 16))
        E(raw(f"v_cmp_eq_u32 vcc, s97, {vLANE16}", 'valu', wr=['vcc'], rd=[s(97), vLANE16])); E(valu('v_mov_b32', v(27), s(98)))
        E(valu('v_cndmask_b32', vSTAMP, vSTAMP, v(27), 'vcc'))
    def offs(item, sX_):
        return [salu('s_and_b32', sT2, item, 3), shr(sC, item, 2), shl(sT3, sRB, 2), add(sT2, sT2, sT3), mul(sPART, sT2, PWAVE), add(sX_, sPART, sXW),
                shl(sT3, sC, 12), add(sT3, sT3, sPWv), add(sPART, sPART, sT3), shl(sT3, sC, 7), add(sX_, sX_, sT3)]
    k_ = [0]
    def ensure(item, s_, f_):
        L = f"L_{n}_en{k_[0]}"; k_[0] += 1
        if s_ and f_: E(salu('s_min_u32', sT2, sRS, sRF)); r = sT2
        else: r = sRS if s_ else sRF
        E(salu('s_cmp_lt_u32', None, item, r)); E(raw(f"s_cbranch_scc1 {L}"))
        E(smov(sI, item)); E(smov(sC, (1 if s_ else 0) | (2 if f_ else 0)))
        E(raw(f"s_call_b64 {sRET2}, L_{n}_sync"))
        E(salu('s_cmp_eq_u32', None, sTO, 0)); E(raw(f"s_cbranch_scc0 L_{n}_fb"))
        E(label(L))
    def done(item): E(raw(f"s_bitset0_b64 {sRM}, {item}", 'salu', wr=[sRM], rd=[sRM, item]))
    E(label(f"L_{n}_red"))
    if CFG.get('rdelay'):
        if n == 'A': (E(waitvm(0)), E(barrier()), E(valu('v_mov_b32', vPRG, 9)), E(bstore('buffer_store_dword', vPRG, vCT, sWS, 0, flags='sc1')))
        for _ in range({'A': 30, 'M': 24, 'F': 14}[n]): E(raw("s_sleep 16"))
    E(red_get(LDSC))
    if CFG.get('rdelay'): E(smov(sRS, 36)); E(smov(sRF, 36))
    E(valu('v_lshrrev_b32', vO, 4, vLANE16)); E(valu('v_and_b32', vXO, 7, vO)); E(valu('v_lshlrev_b32', vLD, 4, vXO))
    E(smov(sT2, 1152)); E(valu('v_mul_u32_u24', vXO, sT2, vXO))
    E(valu('v_lshrrev_b32', vA, 3, vO)); E(valu('v_lshl_add_u32', vX4, vA, 4, vXO))
    E(valu('v_bfe_u32', vA, vO, 3, 2)); E(valu('v_lshl_add_u32', vXO, vA, 3, vXO)); E(valu('v_lshl_add_u32', vLD, vA, 8, vLD))
    E(valu('v_lshrrev_b32', vA, 5, vO)); E(valu('v_lshl_add_u32', vXO, vA, 6, vXO)); E(valu('v_lshl_add_u32', vLD, vA, 11, vLD))
    E(mul(sXW, sWAVE, 8 * 1152)); E(shr(sPWv, sWAVE, 1)); E(shl(sPWv, sPWv, 10)); E(salu('s_and_b32', sT2, sWAVE, 1)); E(shl(sT2, sT2, 7)); E(add(sPWv, sPWv, sT2))
    L0, L1 = 72, 76 + 4 * NPART
    E(smov(sD0, 0x3f80)); E(smov(sD1, 0x3f800000))
    E(raw(f"s_mov_b64 {sRM}, 0", 'salu', wr=[sRM]))
    FOUR = CFG.get('four')
    sMID = s(48 + 0) if False else s(83)
    def nib(dst, tab, base):
        E(smov(sCD[0], sum(tab[i] << (4 * i) for i in range(8)))); E(smov(sCD[1], tab[8] | (tab[9] << 4)))
        E(shl(sT2, sROLE, 2)); E(s64('s_lshr_b64', sCD, sCD, sT2)); E(salu('s_and_b32', dst, sCD[0], 15))
        E(salu('s_cmp_eq_u32', None, dst, 15)); E(csel(dst, 63 - base, dst)); E(add(dst, dst, base))
    if n == 'A':
        E(smov(sIT[0], sROLE)); E(add(sIT[1], sROLE, NA))
        if CFG.get('bal'):
            nib(sIT[1], [x - 10 for x in BAL2], 10); nib(sIT[2], [x - 21 for x in BAL3], 21); nib(sMID, [min(x - 16, 15) for x in BALM], 16)
            E(raw(f"s_bitset1_b64 {sRM}, {sMID}", 'salu', wr=[sRM], rd=[sRM, sMID]))
        elif CFG.get('asg') == 2: E(add(sIT[2], sROLE, 16))
        elif CFG.get('asg') == 3:
            E(add(sMID, sROLE, 16)); E(raw(f"s_bitset1_b64 {sRM}, {sMID}", 'salu', wr=[sRM], rd=[sRM, sMID]))
            E(salu('s_and_b32', sT2, sROLE, 1)); E(shr(sIT[2], sROLE, 1)); E(add(sIT[2], sIT[2], 24)); E(salu('s_cmp_eq_u32', None, sT2, 0)); E(csel(sIT[2], sIT[2], 63))
        elif CFG.get('l844'): E(add(sIT[2], sROLE, 28))
        elif FOUR:
            nib(sMID, [0, 15, 1, 2, 15, 3, 4, 5, 6, 7], 20); nib(sIT[2], [0, 1, 15, 2, 3, 15, 4, 5, 6, 7], 28)
            E(raw(f"s_bitset1_b64 {sRM}, {sMID}", 'salu', wr=[sRM], rd=[sRM, sMID]))
        else:
            nib(sIT[2], [0, 1, 15, 2, 3, 15, 4, 5, 6, 7], 28)
            E(salu('s_cmp_eq_u32', None, sROLE, 2)); E(csel(sIT[2], 22, sIT[2])); E(salu('s_cmp_eq_u32', None, sROLE, 5)); E(csel(sIT[2], 21, sIT[2]))
            if CFG.get('nof'):
                nib(sMD2, CFG['nof'], 23)
                E(raw(f"s_bitset1_b64 {sRM}, {sMD2}", 'salu', wr=[sRM], rd=[sRM, sMD2]))
        its = sIT
    elif CFG.get('asg') == 2:
        if n == 'M': E(add(sIT[0], sROLE, 16)); E(add(sIT[1], sROLE, 20)); its = sIT[:2]
        else: E(add(sIT[0], sROLE, 20)); its = sIT[:1]
    elif CFG.get('asg') == 3:
        E(add(sIT[0], sROLE, 20)); its = sIT[:1]
    elif CFG.get('l844'):
        if n == 'M': E(add(sIT[0], sROLE, 8)); E(add(sIT[1], sROLE, 12)); its = sIT[:2]
        else: E(add(sIT[0], sROLE, 12)); its = sIT[:1]
    elif n == 'M': E(smov(sIT[0], 20)); its = sIT[:1]
    else:
        E(add(sIT[0], sROLE, 12)); its = sIT[:1]
    if (FOUR and n != 'A') or (CFG.get('nof') and n == 'F'):
        its = []
        E(waitvm(0)); E(red_poll()[1]); E(waitvm(0)); E(raw(f"s_branch L_{n}_fin"))
    if CFG.get('bal') and n == 'F':
        E(salu('s_cmp_ge_u32', None, sROLE, 13)); E(raw(f"s_cbranch_scc1 L_{n}_hi"))
        E(waitvm(0)); E(red_poll()[1]); E(waitvm(0)); E(raw(f"s_branch L_{n}_fin")); E(label(f"L_{n}_hi"))
    for it in its: E(raw(f"s_bitset1_b64 {sRM}, {it}", 'salu', wr=[sRM], rd=[sRM, it]))
    E(salu('s_and_b32', sRM[1], sRM[1], 15))
    def refresh(wait):
        L = f"L_{n}_rf{k_[0]}"; k_[0] += 1
        E(salu('s_cmp_eq_u32', None, sWAVE, 0)); E(raw(f"s_cbranch_scc0 {L}"))
        E(waitvm(wait)); E(red_eval()); E(red_pub(sPAR))
        E(label(L)); E(barrier()); E(red_get(sPAR)); E(salu('s_xor_b32', sPAR, sPAR, 12))
    ALLD = lambda L, sx: ld_part(L, range(NPART), FL) + ld_x(L, sx)
    LATE = n in CFG.get('lateflag', 'A') + CFG.get('pre', '')
    sPT = [s(47), s(67 - 2), s(70)]
    def offs2(i): return offs(its[i], sXP[i]) + ([smov(sPT[i], sPART)] if i else [])
    def final_flag(wait):
        E(waitvm(wait)); E(barrier())
        E(valu('v_mov_b32', vPRG, 9))
        if CFG.get('rep') and n in 'FM': E(bstore('buffer_store_dword', vPRG, vCR, sWS, 0, flags='sc1'))
        E(bstore('buffer_store_dword', vPRG, vCT, sWS, 0, flags='sc1'))
        return 2 if (CFG.get('rep') and n in 'FM') else 1
    def poll_hook(_): E(red_poll()[1]); return 2
    def poll_sh(_): E(red_poll(True)[1]); return 2
    poll_hook.sh = poll_sh
    seg = lambda i, L, ks=range(NPART), wx=True, fin=True: (L, sPT[i], sXP[i], ks, wx, fin)
    ni = len(its)
    for i in reversed(range(ni)): E(offs2(i))
    two = min(ni, 2)
    if ni: body_items(E, n, its, two, ni, ensure, refresh, done, ST, seg, final_flag, poll_hook, LATE, L0, L1, FOUR, sMID, offs, sPT)
    E(label(f"L_{n}_fin"))
    E(salu('s_cmp_eq_u32', None, sWAVE, 0)); E(raw(f"s_cbranch_scc0 L_{n}_b4"))
    E(waitvm(2))
    E(raw(f"v_cmp_ne_u32 vcc, 0, {vP}", 'valu', wr=['vcc'], rd=[vP])); E(nop(1))
    E(raw(f"s_lshr_b64 {sAB}, vcc, {NPART + 1}", 'salu', wr=[sAB], rd=['vcc'])); E(salu('s_and_b32', sAB[1], sAB[1], 15))
    E(salu('s_or_b32', sT2, sAB[0], sAB[1])); E(csel(sTO, 1, 0))
    E(salu('s_cmp_ge_u32', None, sOK, 16)); E(csel(sTO, sTO, 1)); E(red_pub(sPAR))
    E(label(f"L_{n}_b4")); E(barrier()); E(red_get(sPAR)); E(salu('s_xor_b32', sPAR, sPAR, 12))
    E(salu('s_cmp_eq_u32', None, sTO, 0)); E(raw(f"s_cbranch_scc1 L_{n}_exit"))
    E(label(f"L_{n}_fb"))
    E(waitvm(0))
    E(salu('s_cmp_eq_u32', None, sWAVE, 0)); E(raw(f"s_cbranch_scc0 L_{n}_fb2"))
    E(s64('s_lshl_b64', sCD, sRM, NPART + 1)); E(valu('v_mov_b32', vO, OOB)); E(valu('v_mov_b32', vA, 1))
    E(valu('v_cndmask_b32', vO, vO, vL4, sCD)); E(bstore('buffer_store_dword', vA, vO, sWS, sPB, flags='sc1')); E(waitvm(0))
    E(red_poll()[0]); E(waitvm(0)); E(red_poll(True)[1]); E(waitvm(0)); E(valu('v_readfirstlane_b32', sOK, vD)); E(red_eval())
    E(salu('s_min_u32', sT2, sRS, sRF)); E(salu('s_cmp_ge_u32', None, sOK, 16)); E(csel(sT2, sT2, 0))
    E(salu('s_bfm_b64', sCD, sT2, 0, scc_w=False)); E(s64('s_or_b64', sAB, sAB, sRM)); E(s64('s_and_b64', sAB, sAB, sCD))
    E(label(f"L_{n}_fb1"))
    E(raw(f"s_ff1_i32_b64 {sRS}, {sAB}", 'salu', wr=[sRS], rd=[sAB])); E(salu('s_and_b32', sRS, sRS, 255))
    E(raw(f"s_bitset0_b64 {sAB}, {sRS}", 'salu', wr=[sAB], rd=[sAB, sRS])); E(red_pub(sPAR))
    E(label(f"L_{n}_fb2")); E(barrier()); E(red_get(sPAR)); E(salu('s_xor_b32', sPAR, sPAR, 12))
    E(salu('s_cmp_ge_u32', None, sRS, 36)); E(raw(f"s_cbranch_scc1 L_{n}_exit"))
    E(offs(sRS, sXP[0])); E(ld_part(L0, range(NPART), FL) + ld_x(L0, sXP[0])); E(waitvm(0)); proc_all(E, L0, sXP[0], 0, [])
    E(salu('s_cmp_eq_u32', None, sWAVE, 0)); E(raw(f"s_cbranch_scc1 L_{n}_fb1")); E(raw(f"s_branch L_{n}_fb2"))
    E(label(f"L_{n}_exit"))
    ST(60)
    if CFG['stamps']: E(raw(f"s_setpc_b64 {sRET}"))
    else: E(raw("s_endpgm"))
    E(label(f"L_{n}_sync"))
    E(salu('s_cmp_eq_u32', None, sWAVE, 0)); E(raw(f"s_cbranch_scc0 L_{n}_sy2"))
    E(smov(sSP, 0)); E(red_poll()[1][0])
    E(label(f"L_{n}_sy0"))
    E(salu('s_cmp_ge_u32', None, sOK, 16)); E(raw(f"s_cbranch_scc1 L_{n}_sy1"))
    E(red_poll()[0]); E(waitvm(0)); E(valu('v_readfirstlane_b32', sOK, vD))
    E(salu('s_cmp_ge_u32', None, sOK, 16)); E(raw(f"s_cbranch_scc0 L_{n}_syw"))
    E(label(f"L_{n}_sy1"))
    E(red_poll()[1][1]); E(red_poll()[1][0]); E(waitvm(1)); E(red_eval())
    E(salu('s_bitcmp1_b32', None, sC, 0)); E(csel(sT2, sRS, 36)); E(salu('s_bitcmp1_b32', None, sC, 1)); E(csel(sT3, sRF, 36))
    E(salu('s_min_u32', sT2, sT2, sT3)); E(salu('s_cmp_lt_u32', None, sI, sT2)); E(raw(f"s_cbranch_scc1 L_{n}_syp"))
    E(label(f"L_{n}_syw"))
    E(add(sSP, sSP, 1)); E(salu('s_cmp_gt_u32', None, sSP, CFG.get('spin', 4000))); E(csel(sTO, 1, 0)); E(raw(f"s_cbranch_scc1 L_{n}_syp"))
    E(raw(f"s_sleep {CFG.get('sleep', 1)}")); E(raw(f"s_branch L_{n}_sy0"))
    E(label(f"L_{n}_syp"))
    E(red_pub(sPAR))
    E(label(f"L_{n}_sy2")); E(barrier()); E(red_get(sPAR)); E(salu('s_xor_b32', sPAR, sPAR, 12))
    E(raw(f"s_setpc_b64 {sRET2}"))
    return p

def reduce_items(p, ni, sPART_, sXO_, srdP, srdX, srdO, vL16, vXO_, base, flags, mid=None):
    E = p.emit
    SA = base; FA = base + 8; T = base + 16
    Ls = [base + 24 + 72 * i for i in range(ni)]
    for k in range(NPART):
        if k: E(add(sPART_, sPART_, 16 * PART - (PWAVE if ni == 2 else 0)))
        for i in range(ni):
            if i: E(add(sPART_, sPART_, PWAVE))
            E(bload('buffer_load_dwordx4', v(Ls[i] + 4 * k, 4), vL16, srdP, sPART_, flags=flags))
    for i in range(ni):
        XR = Ls[i] + 68
        if i: E(add(sT2, sXO_, 32 * 1152))
        so = sT2 if i else sXO_
        E(bload('buffer_load_dwordx2', v(XR, 2), vXO_, srdX, so)); E(bload('buffer_load_dwordx2', v(XR + 2, 2), vXO_, srdX, so, 32))
    ex = 0
    if mid: mid(); ex = 1
    E(smov(sT3, 0xffff0000))
    for i in range(ni):
        L = Ls[i]; XR = L + 68
        for k in range(NPART):
            if i == 0: E(waitvm((NPART - 1 - k) * ni + (ni - 1) + 2 * ni + ex))
            acc = SA if k < 11 else FA
            for q in range(4):
                x = v(L + 4 * k + q)
                if k in (0, 11):
                    E(valu('v_lshlrev_b32', v(acc + 2 * q), 16, x)); E(valu('v_and_b32', v(acc + 2 * q + 1), sT3, x))
                else:
                    tp = v(T + 2 * q, 2)
                    E(valu('v_lshlrev_b32', tp[0], 16, x)); E(valu('v_and_b32', tp[1], sT3, x))
            if k not in (0, 11):
                for q in range(4): E(valu('v_pk_add_f32', v(acc + 2 * q, 2), v(acc + 2 * q, 2), v(T + 2 * q, 2)))
        for e in range(8): E(valu('v_exp_f32', v(T + e), v(FA + e)))
        for e in range(8): E(valu('v_add_f32', v(T + e), 1.0, v(T + e)))
        for e in range(8): E(valu('v_rcp_f32', v(T + e), v(T + e)))
        for e in range(8): E(valu('v_mul_f32', v(FA + e), f2u(-math.log(2.0)), v(FA + e)))
        for e in range(8): E(valu('v_mul_f32', v(FA + e), v(FA + e), v(T + e)))
        if i == 0: E(waitvm(ex if ni == 1 else 0))
        for q in range(4):
            E(valu('v_lshlrev_b32', v(T + 2 * q), 16, v(XR + q))); E(valu('v_and_b32', v(T + 2 * q + 1), sT3, v(XR + q)))
        for e in range(8): E(valu('v_fma_f32', v(T + e), v(SA + e), v(FA + e), v(T + e)))
        for q in range(4): E(valu('v_cvt_pk_bf16_f32', v(XR + q), v(T + 2 * q), v(T + 2 * q + 1)))
        if i: E(add(sXO_, sXO_, 32 * 1152))
        E(bstore('buffer_store_dwordx2', v(XR, 2), vXO_, srdO, sXO_)); E(bstore('buffer_store_dwordx2', v(XR + 2, 2), vXO_, srdO, sXO_, 32))

def build_role(kind, vm_before):
    R = Role(kind)
    CFG['shape'] = CFG.get('shapes', {}).get(kind, CFG['shape0'])
    R.ring = {'F': (216, 9), 'A': (192, 16), 'M': (200, 8)}[kind]
    if kind == 'M': R.depth = 7
    nl = CFG.get('pfl', 16)
    MS = CFG['shape'] == 'M'
    if MS:
        R.add_p1_unit, R.add_p1_half, R.epi_silu, R.epi_q = R.add_p1_unitM, R.add_p1_halfM, R.epi_siluM, R.epi_qM
    P2M = 'q16' if MS else 'pi'
    if kind == 'F' and CFG.get('l844'):
        R.ring = (208, 12); R.depth = 7
        for u in range(13): R.add_p1_unit(u, sW1, sHA, sHC, 9216, u == 0, a(16 * u, 16), R.epi_silu, last=(u == 12),
                                          inreg=[pf_run(sW2, sPF2, 832 * 1152, 10) if u >= 1 else None, pf_row('F', sW1)])
        needs = {t: [('reg', 8 * t)] for t in range(26)}
        dm = [dma_w(sW2, sFA, 0, 1152, sFC, 0), dma_w(sW2, sFA, 288 * 1152, 1152, sFC, 288 * 1152), dma_w(sW2, sFA, 576 * 1152, 1152)]
        R.add_p2([(a(0, 208), [288, 288, 256], dm, needs, sSt)], [add(x, x, 128) for x in (sFA, sFC)], pre0=lambda: set_offw(1152, P2M))
        for st in R.stages[-27:]: st.ring = (208, 12, 'restart')
    elif kind == 'M' and CFG.get('l844'):
        R.ring = (208, 8); R.depth = 7
        Q = [a(80, 32), a(112, 32)]; OA = a(144, 64)
        def mpf(u):
            if u == 0: return pf_row('M', sWQ)
            if u == 1: return lambda: pf_row_setup('M', 9216, 18, sPF1, 0) + [pf_row('M', sW1)()[1]]
            if u <= 5: return pf_row('M', sW1)
            return None
        for u in range(4): R.add_p1_unit(u, sWQ, sQA, sQC, 8192, u == 0, a(80 + 16 * u, 16), R.epi_q, key='Q', inreg=[None, mpf(u)])
        for u in range(5): R.add_p1_unit(4 + u, sW1, sHA, sHC, 9216, u == 0, a(16 * u, 16), R.epi_silu, pre=(lambda: set_offw(9216, 'S')) if u == 0 else None,
                                         last=(u == 4), key='H', inreg=[None, mpf(4 + u)])
        Ha = dict(i=0, Q=Q[0], S=Sreg, P=Preg, O=OA, LM=v(230, 8), OF=lambda kk: OA.sub(16 * kk, 8),
                  need_qk=[('acc', 80), ('acc', 96)], need_pv=[('acc', 48 + 16 * i) for i in range(4)])
        Hb = dict(i=1, Q=Q[1], S=[v(80, 16), v(96, 16)], P=[v(48, 8), v(56, 8)], O=v(160, 64), LM=v(64, 8), OF=lambda kk: OA.sub(16 * kk + 8, 8))
        R.add_pa_g([[Ha, Hb]])
        R.stages[-9].mf[-1].need.append(('acc', 48))
        R.heads = [(Ha, sPFa), (Hb, sPFa)]
        R.add_p2m(a(0, 80), [H['OF'](kk) for H in (Ha, Hb) for kk in range(4)],
                  [dma_w(sW2, sFA, 0, 1152, sFC, 0), dma_w(sWO, sOA, 0, 1152, sFC, 32 * 1152, srdC=sW2)],
                  [add(x, x, 128) for x in (sOA, sFA, sFC)], pre0=lambda: set_offw(1152, P2M))
        for st in R.stages[-18:]: st.ring = (208, 12, 'restart')
        k = pf_sched(R, 15, sK, sPFa, 131072, 16); k = pf_sched(R, k, sV, sPFa, 131072, 16)
        pf_sched(R, 17, sWO, sPFc, 256 * 1152, 36); pf_sched(R, 18, sW2, sPF2, 320 * 1152, 45)
    elif kind == 'F':
        for u in range(13): R.add_p1_unit(u, sW1, sHA, sHC, 9216, u == 0, a(16 * u, 16), R.epi_silu, last=(u == 12), inreg=[pf_run(sW2, sPF2, 832 * 1152, 10) if u >= 1 else None, pf_row('F', sW1) if CFG['pf'] >= 3 else None] if CFG['pf'] else None)
        R.add_p1_half(13, a(208, 8))
        needs = {t: [('reg', 8 * t)] for t in range(27)}
        dm = [dma_w(sW2, sFA, 0, 1152, sFC, 0), dma_w(sW2, sFA, 288 * 1152, 1152, sFC, 288 * 1152), dma_w(sW2, sFA, 576 * 1152, 1152, sFS, 0)]
        R.add_p2([(a(0, 216), [288, 288, 288], dm, needs, sSt)], [add(x, x, 128) for x in (sFA, sFC, sFS)], pre0=lambda: set_offw(1152, P2M))
        if CFG['pf']:
            pf_sched(R, 26, sW2, sPF2h, 32 * 1152, 8)
    elif kind == 'A' and CFG.get('pair'):
        OA = a(96, 64)
        Ha = dict(i=0, Q=a(0, 32), S=Sreg, P=Preg, O=OA, LM=v(230, 8), OF=lambda kk: OA.sub(16 * kk, 8),
                  need_qk=[('acc', 48), ('acc', 64)], need_pv=[('acc', 48 + 16 * i) for i in range(4)])
        Hb = dict(i=1, Q=a(32, 32), S=[v(48, 16), v(64, 16)], P=[v(80, 8), v(88, 8)], O=v(160, 64), LM=v(96, 8), OF=lambda kk: OA.sub(16 * kk + 8, 8))
        Hc = dict(i=2, Q=a(64, 32), S=Sreg, P=Preg, O=v(48, 64), LM=v(16, 8), OF=lambda kk: a(160 + 8 * kk, 8), need_pv=[('lm', 0)])
        Ha['need_qk'] += [('acc', 80)]
        pj = {1: sJQ}
        for u in range(6):
            R.add_p1_unit(u, sWQ, sQA, sQC, 8192, u == 0, a(16 * u, 16), R.epi_q, last=(u == 5), step=sJQ if u == 4 else 128,
                          inreg=[pf_run(sWO, sPFc, 384 * 1152, 11) if u >= 1 else None, pf_row('A', sWQ, pj.get(u, 128)) if CFG['pf'] >= 3 and u < 3 else None] if CFG['pf'] else None)
        R.add_pa_g([[Ha, Hb], [Hc]])
        Bf = [H['OF'](kk) for H in (Ha, Hb, Hc) for kk in range(4)]
        needs = {0: [('fin', 0), ('fin', 1)], 8: [('fin', 2)]}
        dm = [dma_w192(sWO, 0), dma_w192(sWO, 0, sOA1, sOB1)]
        R.add_p2([(Bf, [192, 192], dm, needs, sSt)], [add(x, x, 128) for x in (sOA, sOB, sOA1, sOB1)], pre0=lambda: set_offw(1152, P2M))
        R.heads = [(Ha, sPFa), (Hb, sPFa), (Hc, sPFb)]
        if CFG['pf'] >= 2:
            pf_sched(R, 10, sK, sPFa, 131072, 16); pf_sched(R, 10, sV, sPFa, 131072, 16)
            pf_sched(R, 12, sK, sPFb, 131072, 16); pf_sched(R, 12, sV, sPFb, 131072, 16)
    elif kind == 'A':
        Q = [a(32 * e, 32) for e in range(3)]; O = [a(96 + 32 * e, 32) for e in range(3)]
        for u in range(6): R.add_p1_unit(u, sWQ, sQA, sQC, 8192, u == 0, a(16 * u, 16), R.epi_q, last=(u == 5), inreg=[pf_run(sWO, sPFc, 384 * 1152, 11) if u >= 1 else None, pf_row('A', sWQ) if CFG['pf'] >= 3 and u < 5 else None] if CFG['pf'] else None)
        R.add_pa(Q, O)
        needs = {4 * e: [('fin', e)] for e in range(3)}; needs[0].append(('S', 2, 15))
        dm = [dma_w192(sWO, b * 192 * 1152) for b in range(2)]
        R.add_p2([(a(96, 96), [192, 192], dm, needs, sSt)], [add(sOA, sOA, 128), add(sOB, sOB, 128)], pre0=lambda: set_offw(1152, P2M))
        if CFG['pf']:
            if CFG['pf'] >= 2:
                pf_sched(R, 10, sK, sPFa, 131072, 16); pf_sched(R, 10, sV, sPFa, 131072, 16)
                pf_sched(R, 12, sK, sPFb, 131072, 16); pf_sched(R, 12, sV, sPFb, 131072, 16)
    else:
        Q = [a(136 + 32 * e, 32) for e in range(2)]; O = [a(72 + 32 * e, 32) for e in range(2)]
        def mpf(u):
            if u == 0: return pf_row('M', sWQ)
            if u == 1: return lambda: pf_row_setup('M', 9216, 18, sPF1, 0) + [pf_row('M', sW1)()[1]]
            if u <= 4: return pf_row('M', sW1)
            if u == 5: return lambda: [smov(sPW, sPF1h), pf_row('M', sW1)()[1]]
            return None
        for u in range(4): R.add_p1_unit(u, sWQ, sQA, sQC, 8192, u == 0, a(136 + 16 * u, 16), R.epi_q, key='Q', inreg=[None, mpf(u)] if CFG['pf'] >= 3 else None)
        for u in range(4): R.add_p1_unit(4 + u, sW1, sHA, sHC, 9216, u == 0, a(16 * u, 16), R.epi_silu, pre=(lambda: set_offw(9216, 'M' if MS else 'S')) if u == 0 else None, last=(u == 3), key='H', inreg=[None, mpf(4 + u)] if CFG['pf'] >= 3 else None)
        R.add_p1_half(8, a(64, 8))
        BO = a(72, 64)
        if CFG.get('pair'):
            Ha = dict(i=0, Q=Q[0], S=Sreg, P=Preg, O=BO, LM=v(230, 8), OF=lambda kk: BO_.sub(16 * kk, 8),
                      need_qk=[('acc', 48 + 16 * i) for i in range(3)], need_pv=[('acc', 48 + 16 * i) for i in range(4)])
            Hb = dict(i=1, Q=Q[1], S=[v(64, 16), v(48, 16)], P=[v(80, 8), v(88, 8)], O=v(160, 64), LM=v(96, 8), OF=lambda kk: BO_.sub(16 * kk + 8, 8))
            BO_ = BO
            if CFG.get('mfree', 0):
                Hb['S'] = [v(64, 16), v(238, 16)]; Ha['need_qk'] = [('acc', 64), ('acc', 80)]; Ha['need_pv'] = [('acc', 96)]
                R.ntmp = 12; R.ones = v(28, 4)
                for st_, idx in ((R.stages[-2], -1), (R.stages[-1], -1)):
                    m_ = st_.mf[idx]; f_ = m_.after
                    m_.after = (lambda G, f_=f_: (setattr(R, 'low', True), f_(G), setattr(R, 'low', False)))
            R.add_pa_g([[Ha, Hb]])
            BO = [H['OF'](kk) for H in (Ha, Hb) for kk in range(4)]
            R.heads = [(Ha, sPFa), (Hb, sPFa)]
        else: R.add_pa(Q, O)
        nf = {t: [('reg', 8 * t)] for t in range(9)}; nf[0].append(('S', 1, 15))
        R.add_p2([(a(0, 72), [288], [dma_w(sW2, sFA, 0, 1152, sFS, 0)], nf, sSt2),
                  (BO, [256], [dma_w(sWO, sOA, 0, 1152)], {0: [('fin', 0)], 4: [('fin', 1)]}, sSt)],
                 [add(x, x, 128) for x in (sOA, sFA, sFS)], pre0=lambda: set_offw(1152, P2M))
        for st in R.stages[-18:]: st.ring = (200, 14, 'restart')
        if CFG['pf']:
            if CFG['pf'] >= 2:
                k = pf_sched(R, 14, sK, sPFa, 131072, 16); k = pf_sched(R, k, sV, sPFa, 131072, 16)
            pf_sched(R, 16, sWO, sPFc, 256 * 1152, 36); pf_sched(R, 23 if not CFG.get('pair') else 17, sW2, sPF2, 256 * 1152, 36); pf_sched(R, 24 if not CFG.get('pair') else 17, sW2, sPF2h, 32 * 1152, 8)
    if CFG.get('msum') and not MS and kind in 'AM':
        st0 = [st for st in R.stages if st.name == 'PAh0s0'][0]
        m0_ = st0.mf[8]
        if not hasattr(R, 'ones'): m0_.need += [('acc', 48 + 16 * i) for i in range(4)]
        m0_.pre = lambda: R.p.emit([valu('v_mov_b32', getattr(R, 'ones', vONES)[i], 0x3f803f80) for i in range(4)])
    if CFG.get('recode') and CFG['fused']:
        names = [st.name for st in R.stages]
        nS = len(names)
        R.pf.setdefault(nS - 2, []).append(pf_code(f"L_{kind}_red", f"L_role{kind}_end", 4))
        p2 = names.index('P2c0b0')
        R.stages[p2].label = f"L_{kind}_p2"
        R.pf.setdefault(p2 - 2, []).append(pf_code(f"L_{kind}_p2", f"L_{kind}_p2+20480", 5))
        if kind in 'AM':
            pa = names.index('PAmini'); R.stages[pa].label = f"L_{kind}_pa"
            R.pf.setdefault(pa - 1, []).append(pf_code(f"L_{kind}_pa", f"L_{kind}_p2", 8))
    if CFG.get('hot') and CFG['fused'] and kind in CFG['hot']:
        names = [st.name for st in R.stages]
        last = names.index('P2c8b0'); R.stages[last].label = f"L_{kind}_c8"
        def setup():
            o = [raw(f"s_getpc_b64 {sPC}", 'salu', wr=[sPC]), label(f"L_{kind}_hp"),
                 salu('s_add_u32', sPC[0], sPC[0], f"L_{kind}_c8-L_{kind}_hp"), salu('s_addc_u32', sPC[1], sPC[1], 0, scc_r=True),
                 valu('v_bfe_u32', vPF2, vTID, 16, 5), valu('v_and_b32', vPF, 63, vTID), valu('v_min_u32', vPF, 1, vPF),
                 valu('v_lshl_add_u32', vPF, vPF2, 1, vPF), valu('v_lshlrev_b32', vPF, 7, vPF)]
            if kind == 'F': o += pf_row_setup(kind, 1152, 26, sPF2, 2 * 128)
            return o
        def rep_code():
            return [I(f"global_load_dword {vDUM}, {vPF}, {sPC}", 'vload', wr=vDUM.regs(), rd=vPF.regs() + sPC.regs(), units=3, tag='pf')]
        R.pf.setdefault(names.index('P2c1b0'), []).append(setup)
        for c in range(2, 8):
            k0 = names.index(f'P2c{c}b0')
            R.pf.setdefault(k0, []).append(rep_code)
            if kind == 'F': R.pf.setdefault(k0 + 1, []).append(pf_row(kind, sW2))
    R.slow = []
    if kind in 'AM' and CFG.get('slow', True) and CFG.get('pair'):
        P2s = [st for st in R.stages if st.name.startswith('P2c0')]
        hl = [(H['i'], H['Q'], (H['OF'], kv)) for (H, kv) in R.heads]
        if kind == 'A':
            P2s[0].mf[0].pre = slow_check(R, hl[:2], (112, 160))
            [m for m in P2s[1].mf if ('fin', 2) in m.need][0].pre = slow_check(R, hl[2:], (160, 48))
        else:
            m_ = P2s[1].mf[4 if CFG.get('l844') else 0]
            m_.need += [('fin', 0), ('fin', 1)]
            m_.pre = slow_check(R, hl, (160, 48))
    elif kind in 'AM' and CFG.get('slow', True):
        P2s = [st for st in R.stages if st.name.startswith('P2c0')]
        if kind == 'A':
            P2s[0].mf[0].need += [('fin', 1)]
            P2s[0].mf[0].pre = slow_check(R, [(0, Q[0], O[0]), (1, Q[1], O[1])], 112)
            m_ = [m for m in P2s[1].mf if ('fin', 2) in m.need][0]
            m_.pre = slow_check(R, [(2, Q[2], O[2])], 160)
        else:
            P2s[1].mf[0].need += [('fin', 1)]
            P2s[1].mf[0].pre = slow_check(R, [(0, Q[0], O[0]), (1, Q[1], O[1])], 160)
    if CFG['fused']:
        add_signals(R)
        def early0():
            it = red_setup(kind) + red_poll()[0]
            it[-1].tag = 'cnt'
            return it
        def early():
            assert R.cnt_covered()
            PRIV[0] = (kind == 'A')
            it = red_poll()[1]
            it[-1].tag = 'poll'
            return it
        def covered():
            idx = max(i for i, x in enumerate(R.p.ins) if x.tag == 'cnt'); n = 0
            for x in R.p.ins[idx + 1:]:
                if x.kind in VMEMK: n += 1
                if x.txt.startswith('s_waitcnt vmcnt(') and int(x.txt[16:-1]) <= n: return True
            return False
        R.cnt_covered = covered
        if kind == 'A' and CFG.get('l2pf'):
            nm = [st.name for st in R.stages]
            R.pf.setdefault(nm.index('P2c1b0'), []).append(l2pf_setup)
            for (cw, dlt) in CFG['l2pf']:
                kp = nm.index(f'P2c{cw}b0')
                for j in range(4): R.pf.setdefault(kp, []).append(lambda j=j: l2pf_poll()[j])
                R.stages[kp + 2].cover_tag = 'gp'
                def gate(j, dlt=dlt):
                    def f():
                        it = l2pf_issue(R, dlt)[j]
                        if j == 0:
                            it = it + [valu('v_readfirstlane_b32', sOK, vD), salu('s_cmp_ge_u32', None, sOK, 16), csel(sC, sC, 15)]
                        return it
                    return f
                for j in range(4): R.pf.setdefault(kp + 2, []).append(gate(j))
        R.pf.setdefault([st.name for st in R.stages].index('P2c1b0' if kind == 'F' else 'P2c0b1'), []).append(early0)
        if kind in CFG.get('pre', ''):
            R.pf.setdefault(len(R.stages) - 3, []).append(early)
            R.stages[-1].pre_bar = lambda: red_early(R.p, kind)
        else: R.pf.setdefault(len(R.stages) - CFG.get('pollw', 1), []).append(early)
    role_prologue(R, vm_before)
    R.run()
    if CFG['fused']:
        p = R.p
        if kind not in CFG.get('pre', ''): red_early(p, kind)
        if kind in CFG.get('pre', ''): pass
        elif kind in CFG.get('lateflag', 'A'): p.emit(barrier())
        else:
            p.emit(waitvm(0)); p.emit(barrier())
            p.emit(valu('v_mov_b32', vPRG, 9))
            if CFG.get('rep'): p.emit(bstore('buffer_store_dword', vPRG, vCR, sWS, 0, flags='sc1'))
            p.emit(bstore('buffer_store_dword', vPRG, vCT, sWS, 0, flags='sc1'))
        if CFG['stamps']: R.stamp(len(R.stages) - 1)
        p.emit(raw(f"s_call_b64 {sRET}, L_{kind}_red"))
    if CFG['stamps']:
        p = R.p
        R.stamp(len(R.stages))
        p.emit(raw("s_memrealtime s[98:99]", wr=[s(98, 2)])); p.emit(raw("s_waitcnt lgkmcnt(0)"))
        p.emit(raw(f"v_writelane_b32 {vSTAMP}, s98, 63", 'valu', wr=[vSTAMP], rd=[s(98)]))
        if CFG.get('dbgstat'):
            n = len(R.stages)
            lanes = {'F': [0, 27, n - 1, n], 'A': [0, 37, n - 1, n], 'M': [0, 34, n - 1, n]}[kind]
            slots = {'F': [1, 2, 3, 5], 'A': [10, 11, 13, 14], 'M': [15, 15, 15, 15]}[kind]
            p.emit([valu('v_mov_b32', v(4), 256), valu('v_mov_b32', v(5), 0)])
            for i, (ln, sl) in enumerate(zip(lanes, slots)):
                p.emit(raw(f"v_readlane_b32 s92, {vSTAMP}, {ln}", 'rdl', wr=[sT2], rd=[vSTAMP])); p.emit(nop(3))
                p.emit(raw(f"v_writelane_b32 v5, s92, {i}", 'valu', wr=[v(5)], rd=[sT2])); p.emit(raw(f"v_writelane_b32 v4, {4 * sl}, {i}", 'valu', wr=[v(4)]))
            p.emit(raw(f"v_writelane_b32 v5, s98, 4", 'valu', wr=[v(5)], rd=[s(98)])); p.emit(raw(f"v_writelane_b32 v4, 28, 4", 'valu', wr=[v(4)]))
            p.emit(salu('s_not_b32', sT2, s(43))); p.emit(raw(f"v_writelane_b32 v5, s92, 5", 'valu', wr=[v(5)], rd=[sT2])); p.emit(raw(f"v_writelane_b32 v4, 36, 5", 'valu', wr=[v(4)]))
            p.emit(salu('s_sub_u32', sT2, s(98), s(43))); p.emit(raw(f"v_writelane_b32 v5, s92, 6", 'valu', wr=[v(5)], rd=[sT2])); p.emit(raw(f"v_writelane_b32 v4, 24, 6", 'valu', wr=[v(4)]))
            p.emit([salu('s_cmp_eq_u32', None, sRB, 9), csel(sT2, 0, sRB), salu('s_or_b32', sT2, sT2, sWAVE), salu('s_cmp_eq_u32', None, sT2, 0), csel(sT2, 0, 256),
                    valu('v_add_u32', v(4), sT2, v(4))])
            p.emit(I(f"buffer_atomic_umax v5, v4, {sDBG}, 0 offen sc1", 'vstore', rd=vr(4, 2) + sDBG.regs(), units=3))
        p.emit([shl(sT2, s(2), 2), add(sT2, sT2, sWAVE), shl(sT2, sT2, 8), add(sT2, sT2, STAMP_OFF),
                valu('v_lshrrev_b32', v(42), 2, vLANE16), bstore('buffer_store_dword', vSTAMP, v(42), sWS, sT2)])
    R.p.emit(raw("s_endpgm"))
    return R

def fold(ins, name):
    idx = [i for i, x in enumerate(ins) if x.tag == 'mark']
    def body(a_, b_): return [x.txt for x in ins[a_:b_] if x.kind != 'label']
    out = []; pos = 0; k = 0; nl = 0
    while k + 1 < len(idx):
        b0 = body(idx[k], idx[k + 1]); n = 1
        while k + n + 1 < len(idx) and body(idx[k + n], idx[k + n + 1]) == b0: n += 1
        if n >= 2:
            out += ins[pos:idx[k]]
            L = f"L_{name}_loop{nl}"; nl += 1
            out.append(smov(sLC, n)); out.append(I(".p2align 3", 'label')); out.append(label(L))
            out += ins[idx[k]:idx[k + 1]]
            out += [salu('s_sub_u32', sLC, sLC, 1), salu('s_cmp_lg_u32', None, sLC, 0), raw(f"s_cbranch_scc1 {L}")]
            pos = idx[k + n]; k += n
        else: k += 1
    out += ins[pos:]
    return out

def fold_regions(ins, name):
    regs = []; i = 0
    beg = None
    for i, x in enumerate(ins):
        if isinstance(x.tag, tuple) and x.tag and x.tag[0] == 'region':
            if x.tag[1] == 'begin': beg = (i, x.tag[2])
            elif beg: regs.append((beg[0], i, beg[1])); beg = None
    groups = {}
    for (a_, b_, key) in regs:
        groups.setdefault(tuple(x.txt for x in ins[a_:b_] if x.kind != 'label'), []).append((a_, b_))
    out = []; subs = []; repl = {}
    n = 0
    for body, lst in groups.items():
        if len(lst) >= 2:
            L = f"L_{name}_sub{n}"; n += 1
            a_, b_ = lst[0]
            subs += [I(".p2align 6", 'label'), label(L)] + ins[a_:b_] + [raw(f"s_setpc_b64 {sRET}")]
            for (a_, b_) in lst: repl[a_] = (b_, L)
    i = 0
    while i < len(ins):
        if i in repl:
            b_, L = repl[i]; out.append(raw(f"s_call_b64 {sRET}, {L}")); i = b_
        else:
            out.append(ins[i]); i += 1
    print(f"  regions: {[len(l) for l in groups.values()]}", file=sys.stderr)
    return out + subs

def reduce_body(p, sPART, sXO, srdP, srdX, srdO, vL16, vXO, base, flags, mid=None):
    E = p.emit
    L = base; XR = base + 68; SA = base + 72; FA = base + 80; T = base + 88
    for k in range(NPART):
        if k: E(add(sPART, sPART, 16 * PART))
        E(bload('buffer_load_dwordx4', v(L + 4 * k, 4), vL16, srdP, sPART, flags=flags))
    E(bload('buffer_load_dwordx2', v(XR, 2), vXO, srdX, sXO)); E(bload('buffer_load_dwordx2', v(XR + 2, 2), vXO, srdX, sXO, 32))
    ex = 0
    if mid: E(mid()); ex = 1
    E(smov(sT3, 0xffff0000))
    for k in range(NPART):
        E(waitvm(NPART + 1 - k + ex))
        acc = SA if k < 11 else FA
        for q in range(4):
            x = v(L + 4 * k + q)
            if k in (0, 11):
                E(valu('v_lshlrev_b32', v(acc + 2 * q), 16, x)); E(valu('v_and_b32', v(acc + 2 * q + 1), sT3, x))
            else:
                tp = v(T + 2 * q, 2)
                E(valu('v_lshlrev_b32', tp[0], 16, x)); E(valu('v_and_b32', tp[1], sT3, x))
        if k not in (0, 11):
            for q in range(4): E(valu('v_pk_add_f32', v(acc + 2 * q, 2), v(acc + 2 * q, 2), v(T + 2 * q, 2)))
    for e in range(8): E(valu('v_exp_f32', v(T + e), v(FA + e)))
    for e in range(8): E(valu('v_add_f32', v(T + e), 1.0, v(T + e)))
    for e in range(8): E(valu('v_rcp_f32', v(T + e), v(T + e)))
    for e in range(8): E(valu('v_mul_f32', v(FA + e), f2u(-math.log(2.0)), v(FA + e)))
    for e in range(8): E(valu('v_mul_f32', v(FA + e), v(FA + e), v(T + e)))
    E(waitvm(ex))
    for q in range(4):
        E(valu('v_lshlrev_b32', v(T + 2 * q), 16, v(XR + q))); E(valu('v_and_b32', v(T + 2 * q + 1), sT3, v(XR + q)))
    for e in range(8): E(valu('v_fma_f32', v(T + e), v(SA + e), v(FA + e), v(T + e)))
    for q in range(4): E(valu('v_cvt_pk_bf16_f32', v(XR + q), v(T + 2 * q), v(T + 2 * q + 1)))
    E(bstore('buffer_store_dwordx2', v(XR, 2), vXO, srdO, sXO)); E(bstore('buffer_store_dwordx2', v(XR + 2, 2), vXO, srdO, sXO, 32))

def reduce_kernel():
    p = Prog(); E = p.emit
    E(salu('s_cmp_ge_u32', None, s(2), 576)); E(raw("s_cbranch_scc0 L_rgo")); E(raw("s_endpgm")); E(label("L_rgo"))
    E(raw("s_load_dwordx2 s[4:5], s[0:1], 0", wr=[s(4, 2)])); E(raw("s_load_dwordx2 s[6:7], s[0:1], 64", wr=[s(6, 2)])); E(raw("s_load_dwordx2 s[8:9], s[0:1], 80", wr=[s(8, 2)]))
    E(valu('v_lshrrev_b32', v(1), 6, v(0))); E(valu('v_readfirstlane_b32', s(10), v(1)))
    E(shl(s(11), s(2), 2)); E(add(s(11), s(11), s(10)))
    E(salu('s_mul_hi_u32', s(24), s(11), -(-(1 << 32) // 36), scc_w=False))
    E(mul(s(25), s(24), 36)); E(salu('s_sub_u32', s(25), s(11), s(25)))
    E(shl(s(26), s(11), 10))
    E(valu('v_and_b32', v(0), 63, v(0))); E(valu('v_lshlrev_b32', v(1), 4, v(0)))
    E(valu('v_and_b32', v(2), 15, v(0))); E(smov(s(27), 1152)); E(valu('v_mul_u32_u24', v(2), s(27), v(2)))
    E(valu('v_lshrrev_b32', v(3), 4, v(0))); E(valu('v_lshl_add_u32', v(2), v(3), 3, v(2)))
    E(mul(s(28), s(24), 32 * 1152)); E(salu('s_and_b32', s(29), s(25), 1)); E(mul(s(29), s(29), 16 * 1152)); E(add(s(28), s(28), s(29)))
    E(shr(s(25), s(25), 1)); E(shl(s(25), s(25), 6)); E(add(s(28), s(28), s(25)))
    E(raw("s_waitcnt lgkmcnt(0)"))
    srd(p, s(12, 4), 8, WSP_BYTES); srd(p, s(16, 4), 4, 2359296); srd(p, s(20, 4), 6, 2359296)
    reduce_body(p, s(26), s(28), s(12, 4), s(16, 4), s(20, 4), v(1), v(2), 4, CFG.get('rflags', ''))
    E(raw("s_endpgm"))
    return p

def text(ins): return "\n".join((i.txt if i.kind == 'label' else " " + i.txt) for i in ins) + "\n"

def compress(t):
    t = re.sub(r" v_mfma_f32_16x16x32_bf16 v\[(\d+):\d+\], a\[(\d+):\d+\], v\[(\d+):\d+\], v\[\1:\d+\]", r" MV \1,\2,\3", t)
    t = re.sub(r" v_mfma_f32_16x16x32_bf16 v\[(\d+):\d+\], a\[(\d+):\d+\], a\[(\d+):\d+\], v\[\1:\d+\]", r" MA \1,\2,\3", t)
    t = re.sub(r" v_mfma_f32_32x32x16_bf16 v\[(\d+):\d+\], a\[(\d+):\d+\], v\[(\d+):\d+\], v\[\1:\d+\]", r" NV \1,\2,\3", t)
    t = re.sub(r" v_mfma_f32_32x32x16_bf16 v\[(\d+):\d+\], a\[(\d+):\d+\], a\[(\d+):\d+\], v\[\1:\d+\]", r" NA \1,\2,\3", t)
    t = re.sub(r" v_mfma_f32_16x16x32_bf16 a\[(\d+):\d+\], a\[(\d+):\d+\], v\[(\d+):\d+\], a\[\1:\d+\]", r" MC \1,\2,\3", t)
    t = re.sub(r" ds_read_b64_tr_b16 a\[(\d+):\d+\], v(\d+) offset:(\d+)", r" RT \1,\2,\3", t)
    t = re.sub(r" ds_read_b128 a\[(\d+):\d+\], v(\d+) offset:(\d+)", r" RB \1,\2,\3", t)
    t = re.sub(r" v_cvt_pk_bf16_f32 v(\d+), v(\d+), v(\d+)", r" CV \1,\2,\3", t)
    t = re.sub(r" v_accvgpr_write_b32 a(\d+), v(\d+)", r" AW \1,\2", t)
    t = re.sub(r" v_exp_f32 v(\d+), v(\d+)", r" EX \1,\2", t)
    t = re.sub(r" v_add_f32 v(\d+), v(\d+), v(\d+)", r" AD \1,\2,\3", t)
    t = re.sub(r" v_mul_f32 v(\d+), v(\d+), v(\d+)", r" ML \1,\2,\3", t)
    t = re.sub(r" s_waitcnt lgkmcnt\((\d+)\)", r" WL \1", t)
    mac = r""".macro MC d,a,b
 v_mfma_f32_16x16x32_bf16 a[\d:\d+3], a[\a:\a+3], v[\b:\b+3], a[\d:\d+3]
.endm
.macro NV d,a,b
 v_mfma_f32_32x32x16_bf16 v[\d:\d+15], a[\a:\a+3], v[\b:\b+3], v[\d:\d+15]
.endm
.macro NA d,a,b
 v_mfma_f32_32x32x16_bf16 v[\d:\d+15], a[\a:\a+3], a[\b:\b+3], v[\d:\d+15]
.endm
.macro MV d,a,b
 v_mfma_f32_16x16x32_bf16 v[\d:\d+3], a[\a:\a+3], v[\b:\b+3], v[\d:\d+3]
.endm
.macro MA d,a,b
 v_mfma_f32_16x16x32_bf16 v[\d:\d+3], a[\a:\a+3], a[\b:\b+3], v[\d:\d+3]
.endm
.macro RT d,a,o
 ds_read_b64_tr_b16 a[\d:\d+1], v\a offset:\o
.endm
.macro RB d,a,o
 ds_read_b128 a[\d:\d+3], v\a offset:\o
.endm
.macro CV d,a,b
 v_cvt_pk_bf16_f32 v\d, v\a, v\b
.endm
.macro AW d,a
 v_accvgpr_write_b32 a\d, v\a
.endm
.macro EX d,a
 v_exp_f32 v\d, v\a
.endm
.macro AD d,a,b
 v_add_f32 v\d, v\a, v\b
.endm
.macro ML d,a,b
 v_mul_f32 v\d, v\a, v\b
.endm
.macro WL n
 s_waitcnt lgkmcnt(\n)
.endm
"""
    return mac, t

HDR = open('recurrent_scan__sliding_block_cached__dense_activation_silu__prompt.s.ref').read().split('; Override launch')[0]
DOC = """; Generated by my own scheduler scripts (hand-designed instruction streams, hazards padded by the script).
; registers as MFMA B operands (transposed formulation), weights / K / V stream through a 4-slot LDS ring (LDS-DMA).
;   role A (10): layernorm, Q projection, attention for 3 heads (one GQA pair shares K/V fragments), partial of o@wo
; The bf16 partials go to d_ws with write-through stores; progress words (reset per launch, guarded by a counter in
"""
def kd(name, vgpr, acc, sgpr=102):
    return f""".amdhsa_kernel {name}
  .amdhsa_next_free_vgpr {vgpr}
  .amdhsa_next_free_sgpr {sgpr}
  .amdhsa_accum_offset {acc}
  .amdhsa_group_segment_fixed_size 0
  .amdhsa_kernarg_size 88
  .amdhsa_user_sgpr_count 2
  .amdhsa_user_sgpr_kernarg_segment_ptr 1
  .amdhsa_system_sgpr_workgroup_id_x 1
.end_amdhsa_kernel
"""
def est_cycles(ins):
    tot = 0; cur = None; n = 0
    for i in ins:
        if i.kind == 'label': continue
        if i.kind == 'mfma':
            if cur is not None: tot += max(cap, cur)
            cur = 2; n += 1; cap = 8 if len(i.wr) == 16 else 4
        elif cur is not None:
            if i.txt.startswith('s_waitcnt lgkm') and cap == 4: continue
            cur += i.units if not i.txt.startswith('s_nop') else (int(i.txt.split()[1]) + 1) * 0.5
    return tot * 4

def main(out, **kw):
    CFG.update(kw)
    set_layout(CFG.get('l844'))
    if CFG.get('tab'):
        global ROLE_TAB
        ROLE_TAB = CFG['tab']
    CFG['shape0'] = CFG['shape']
    cp = common_prologue()
    if CFG.get('entry', 0):
        if CFG.get('entry', 1) == 1:
            k = next(i for i, x in enumerate(cp.ins) if x.txt == 's_waitcnt lgkmcnt(0)')
            tail = cp.ins[k:]; vmx = list(cp.vm); cp.ins = cp.ins[:k]; cp.vm = []
            common_prologue2(cp); cp.ins += tail; cp.vm += vmx
        else: common_prologue2(cp)
        common_prologue3(cp)
    body = text(cp.ins) + dispatch_text()
    for kind in 'FAM':
        R = build_role(kind, cp.vm)
        ins = fold_regions(fold(R.p.ins, kind), kind) if CFG['fold'] else R.p.ins
        nm = sum(1 for i in R.p.ins if i.kind == 'mfma')
        print(f"role {kind}: stages {len(R.stages)} mfma {nm} instrs {len([i for i in ins if i.kind!='label'])} (unrolled {len([i for i in R.p.ins if i.kind!='label'])}) pad {R.p.npad} forced {R.forced} est {est_cycles(R.p.ins)} ideal {sum(32 if len(i.wr) == 16 else 16 for i in R.p.ins if i.kind == 'mfma')}", file=sys.stderr)
        if CFG.get('abl_pair') and kind in 'AM':
            out_ = []; on = False
            for x in ins:
                if x.kind == 'label' and x.txt.startswith('; PAh'): on = x.txt.startswith('; PAh1')
                if x.kind == 'label' and x.txt.startswith('; P2'): on = False
                if on and (x.kind in ('dma', 'ds') or (x.kind == 'salu' and ('m0' in x.txt or 's70' in x.txt))): continue
                out_.append(x)
            ins = out_
        if CFG.get('abl_half'):
            out_ = []; on = False; cnt = 0
            for x in ins:
                if x.kind == 'label' and x.txt.startswith('; P'): on = x.txt.startswith(('; P1', '; P2'))
                if x.kind == 'label' and x.txt.startswith('; REGION begin'): on = True
                if on and x.kind == 'ds':
                    cnt += 1
                    if (cnt >> 1) & 1: continue
                out_.append(x)
            ins = out_
        ab = CFG.get('ablate', '')
        if ab:
            st0 = next(i for i, x in enumerate(ins) if x.txt.startswith('; P1u1b0'))
            def keep(x):
                if 'd' in ab and x.kind == 'dma': return False
                if 'r' in ab and x.kind == 'ds': return False
                if 'v' in ab and x.kind in ('trans',): return False
                if 'V' in ab and x.kind in ('trans', 'valu', 'perm') and not x.txt.startswith(('v_add_u32', 'v_xor', 'v_writelane', 'v_cmp', 'v_cnd', 'v_mov', 'v_lsh', 'v_mad', 'v_min', 'v_and', 'v_bfe', 'v_mul_u32')): return False
                if 'm' in ab and x.kind == 'mfma': return False
                return True
            ins = ins[:st0] + [x for x in ins[st0:] if keep(x)]
        for sp in R.slow: ins = ins + sp.ins
        if CFG['fused']: ins = ins + reducer(kind).ins
        body += f".p2align 6\nL_role{kind}:\n" + text(ins) + f"L_role{kind}_end:\n"
    rk = reduce_kernel()
    mac, body = compress(body)
    if CFG['fused']:
        t = HDR + "; @launch grid=(256,1,1) block=(256,1,1) lds=163840\n" + DOC
        t += '.amdgcn_target "amdgcn-amd-amdhsa--gfx950"\n' + mac + f".text\n.globl {KN}\n.p2align 8\n.type {KN},@function\n{KN}:\n" + body
        t += '.section .rodata,"a"\n.p2align 6\n' + kd(KN, 512, 256)
        open(out, 'w').write(t); print("size", len(t), file=sys.stderr); return
    t = HDR + f"; @launch kernel={KN} grid=(256,1,1) block=(256,1,1) lds=163840\n; @launch kernel={RN} grid=(576,1,1) block=(256,1,1) lds=0\n"
    t += '.amdgcn_target "amdgcn-amd-amdhsa--gfx950"\n' + mac + f".text\n.globl {KN}\n.p2align 8\n.type {KN},@function\n{KN}:\n" + body
    t += f".globl {RN}\n.p2align 8\n.type {RN},@function\n{RN}:\n" + text(rk.ins)
    t += '.section .rodata,"a"\n.p2align 6\n' + kd(KN, 512, 256) + ".p2align 6\n" + kd(RN, 104, 104, 102)
    open(out, 'w').write(t)
    print("size", len(t), file=sys.stderr)

if __name__ == "__main__":
    kw = eval("dict(" + (sys.argv[2] if len(sys.argv) > 2 else "") + ")")
    main(sys.argv[1], **kw)
```

```python
import sys, re
from s1 import *

ROLE_TAB = [0, 1, 2, 11, 3, 4, 5, 12, 6, 7, 13, 14, 8, 9, 10, 15]
vPFR = v(36)
vPRG = v(36)
PART = 4 * PWAVE
NPART = 17
NA, NM, NS = 10, 1, 11
def set_layout(new):
    global NPART, NA, NM, NS, ROLE_TAB
    if new:
        NPART, NA, NM, NS = 20, 8, 4, 12
        ROLE_TAB = [0, 1, 8, 12, 2, 3, 9, 13, 4, 5, 10, 14, 6, 7, 11, 15]
WSP_BYTES = NPART * 16 * PART
def PSTR(): return 16 * PART + (CFG.get('pskew', 0) if CFG['fused'] else 0)
sJQ, sQ0, sOA1, sOB1 = s(73), s(59), s(74), s(75)
ABN = 4096
STAMP_OFF = 0x3000000
CTRL = 0x2F00000
OOB = 0x10000000

def srd(p, dst, lo, nbytes):
    p.emit([smov(dst[0], s(lo)), salu('s_and_b32', dst[1], s(lo + 1), 0xffff), smov(dst[2], nbytes), smov(dst[3], 0x20000)])
def xdma(j):
    return [salu('s_add_u32', 'm0', s(6), j * 4096), salu('s_add_u32', sT, s(7), j * 128)] + [dma(v(16 + q), sX, sT, q * 1024, tag=('x', j)) for q in range(4)]
def mul(d, a_, b_): return salu('s_mul_i32', d, a_, b_, scc_w=False)
def add(d, a_, b_): return salu('s_add_u32', d, a_, b_)
def shl(d, a_, b_): return salu('s_lshl_b32', d, a_, b_)
def shr(d, a_, b_): return salu('s_lshr_b32', d, a_, b_)
def csel(d, a_, b_): return salu('s_cselect_b32', d, a_, b_, scc_w=False, scc_r=True)

def common_prologue():
    if CFG.get('entry', 0) == 0: return common_prologue_old()
    assert CFG['xe'] == 9 and CFG.get('map', 4) == 4
    p = Prog(); E = p.emit
    E(raw("s_load_dwordx8 s[40:47], s[0:1], 0", wr=[s(40, 8)]))
    E(salu('s_cmp_ge_u32', None, s(2), 256))
    E(raw("s_cbranch_scc0 L_go")); E(raw("s_endpgm")); E(label("L_go"))
    if CFG['stamps']:
        E(raw(f"s_memtime {sT0}", wr=[sT0])); E(raw("s_memrealtime s[96:97]", wr=[s(96, 2)]))
    E(valu('v_lshrrev_b32', v(1), 6, v(0)))
    E(salu('s_and_b32', s(3), s(2), 1)); E(shl(s(3), s(3), 3))
    E(valu('v_readfirstlane_b32', sWAVE, v(1)))
    E(shr(sRB, s(2), 5)); E(salu('s_or_b32', sRB, sRB, s(3)))
    E(valu('v_and_b32', v(0), 63, v(0)))
    E(valu('v_lshrrev_b32', vROWN, 3, v(0)))
    E(valu('v_and_b32', v(20), 7, v(0))); E(valu('v_lshrrev_b32', v(21), 4, v(0)))
    E(valu('v_xor_b32', v(22), v(20), v(21))); E(valu('v_xor_b32', v(23), 4, v(22)))
    E(salu('s_movk_i32', s(3), 1152, scc_w=False)); E(valu('v_mul_u32_u24', v(24), s(3), vROWN))
    E(valu('v_lshl_add_u32', v(16), v(22), 4, v(24))); E(valu('v_lshl_add_u32', v(17), v(23), 4, v(24)))
    E(valu('v_add_u32', v(17), 8 * 1152 - 1024, v(17)))
    E(valu('v_add_u32', v(18), 2 * (8 * 1152 - 1024), v(16))); E(valu('v_add_u32', v(19), 2 * (8 * 1152 - 1024), v(17)))
    E(mul(s(6), sWAVE, XW)); E(raw("s_lshl2_add_u32 s7, s64, s62", 'salu', wr=[s(7)], rd=[sRB, sWAVE])); E(mul(sT, s(7), 32 * 1152))
    E(smov('m0', s(6))); E(add(s(7), sT, 9 * 128))
    E(smov(sX[2], 2359296)); E(smov(sX[3], 0x20000))
    E(raw("s_waitcnt lgkmcnt(0)"))
    E(smov(sX[0], s(40))); E(salu('s_and_b32', sX[1], s(41), 0xffff))
    E(label("L_xl"))
    n0 = len(p.vm)
    for q in range(4): E(dma(v(16 + q), sX, sT, q * 1024))
    del p.vm[n0:]
    for j in range(9): p.vm += [('x', j)] * 4
    E(add(sT, sT, 128)); E(add('m0', 'm0', 4096)); E(salu('s_cmp_lt_u32', None, sT, s(7))); E(raw("s_cbranch_scc1 L_xl"))
    return p
def common_prologue2(p):
    E = p.emit
    tab = ROLE_TAB
    lo = sum(tab[i] << (4 * i) for i in range(8)); hi = sum(tab[8 + i] << (4 * i) for i in range(8))
    E(salu('s_bfe_u32', s(3), s(2), (2 << 16) | 3)); E(salu('s_bfe_u32', s(4), s(2), (1 << 16) | 1))
    E(shl(s(4), s(4), 2)); E(salu('s_or_b32', s(3), s(3), s(4))); E(shl(s(3), s(3), 2))
    E(salu('s_bitcmp1_b32', None, s(2), 2))
    E(smov(s(4), lo)); E(csel(s(4), hi, s(4)))
    E(shr(s(4), s(4), s(3))); E(salu('s_and_b32', sROLE, s(4), 15))
    E(raw(f"s_getpc_b64 {sPC}", wr=[sPC])); E(label("L_pc"))
    E(smov(s(4), "L_roleA-L_pc")); E(smov(s(5), "L_roleA_end-L_pc-4"))
    E(salu('s_cmp_ge_u32', None, sROLE, NA)); E(csel(s(4), "L_roleM-L_pc", s(4))); E(csel(s(5), "L_roleM_end-L_pc-4", s(5)))
    E(salu('s_cmp_ge_u32', None, sROLE, NA + NM)); E(csel(s(4), "L_roleF-L_pc", s(4))); E(csel(s(5), "L_roleF_end-L_pc-4", s(5)))
    n0 = CFG.get('code0', 16); NL = CFG.get('codelines', 24)
    if n0:
        E(mul(s(3), sWAVE, n0 * 128)); E(add(s(3), s(3), s(4)))
        E(valu('v_min_u32', v(2), n0 - 1, v(0))); E(valu('v_lshlrev_b32', v(2), 7, v(2))); E(valu('v_add_u32', v(2), s(3), v(2)))
        E(I(f"global_load_dword {vDUM}, v2, {sPC}", 'vload', wr=vDUM.regs(), rd=vr(2) + sPC.regs(), tag='pf'))
    E(salu('s_and_b32', s(3), sRB, 7)); E(shl(s(3), s(3), 2)); E(add(s(3), s(3), sWAVE))
    E(mul(s(3), s(3), NL * 128)); E(add(s(3), s(3), s(4)))
    E(valu('v_min_u32', v(2), NL - 1, v(0))); E(valu('v_lshlrev_b32', v(2), 7, v(2))); E(valu('v_add_u32', v(2), s(3), v(2)))
    E(valu('v_min_u32', v(3), s(5), v(2)))
    E(I(f"global_load_dword {vDUM}, v3, {sPC}", 'vload', wr=vDUM.regs(), rd=vr(3) + sPC.regs(), tag='pf'))
def common_prologue3(p):
    E = p.emit
    E(raw("s_load_dwordx2 s[48:49], s[0:1], 32", wr=[s(48, 2)]))
    E(raw("s_load_dwordx8 s[52:59], s[0:1], 48", wr=[s(52, 8)]))
    E(raw("s_load_dwordx2 s[50:51], s[0:1], 80", wr=[s(50, 2)]))
    srd(p, sK, 42, 8388608); srd(p, sV, 44, 8388608); srd(p, sWQ, 46, 4718592)
    E(mul(sW8704, sWAVE, 8 * PP)); E(mul(sWC, sWAVE, PP)); E(add(sWC, sWC, 32 * PP))
    E(shl(sW8192, sWAVE, 13)); E(shl(sWCH, sWAVE, 10)); E(add(sWCH, sWCH, 32768))
    E(mul(sW2176, sWAVE, 2 * PP)); E(mul(sW4352, sWAVE, 4 * PP)); E(add(sWA2, sW2176, 16 * PP))
    E(raw("s_waitcnt lgkmcnt(0)"))
    srd(p, sWO, 48, 4718592)
    srd(p, sW1, 52, 5308416); srd(p, sW2, 54, 5308416); srd(p, sWS, 50, 0x10000000 if (CFG['stamps'] or CFG['fused']) else WSP_BYTES)
    srd(p, sOUT, 56, 2359296); srd(p, sDBG, 58, 256)

def common_prologue_old():
    p = Prog(); E = p.emit
    E(salu('s_cmp_ge_u32', None, s(2), 256))
    E(raw("s_cbranch_scc0 L_go")); E(raw("s_endpgm")); E(label("L_go"))
    E(raw("s_load_dwordx8 s[40:47], s[0:1], 0", wr=[s(40, 8)]))
    E(raw("s_load_dwordx2 s[48:49], s[0:1], 32", wr=[s(48, 2)]))
    E(raw("s_load_dwordx8 s[52:59], s[0:1], 48", wr=[s(52, 8)]))
    E(raw("s_load_dwordx2 s[50:51], s[0:1], 80", wr=[s(50, 2)]))
    if CFG['stamps']:
        E(raw(f"s_memtime {sT0}", wr=[sT0])); E(raw("s_memrealtime s[96:97]", wr=[s(96, 2)]))
    tab = ROLE_TAB
    if CFG.get('map', 4) == 41:
        t4 = CFG.get('t41', [11, 0, 1, 2, 12, 3, 4, 5, 13, 14, 6, 7, 15, 10, 8, 9])
        lo = sum(t4[i] << (4 * i) for i in range(8)); hi = sum(t4[8 + i] << (4 * i) for i in range(8))
        E(shr(s(3), s(2), 6)); E(salu('s_bfe_u32', s(4), s(2), (1 << 16) | 1))
        E(shl(s(4), s(4), 2)); E(salu('s_or_b32', s(3), s(3), s(4))); E(shl(s(3), s(3), 2))
        E(salu('s_bitcmp1_b32', None, s(2), 2)); E(smov(s(4), lo)); E(csel(s(4), hi, s(4)))
        E(shr(s(4), s(4), s(3))); E(salu('s_and_b32', sROLE, s(4), 15))
        E(salu('s_and_b32', s(3), s(2), 1)); E(shl(s(3), s(3), 3))
        E(salu('s_bfe_u32', sRB, s(2), (3 << 16) | 3)); E(salu('s_or_b32', sRB, sRB, s(3)))
    elif CFG.get('map', 4) == 8:
        t8 = [0, 1, 2, 3, 4, 10, 11, 12, 5, 6, 7, 8, 9, 13, 14, 15]
        lo = sum(t8[i] << (4 * i) for i in range(8)); hi = sum(t8[8 + i] << (4 * i) for i in range(8))
        E(salu('s_bfe_u32', s(3), s(2), (3 << 16) | 3)); E(shl(s(3), s(3), 2))
        E(salu('s_bitcmp1_b32', None, s(2), 2)); E(smov(s(4), lo)); E(csel(s(4), hi, s(4)))
        E(shr(s(4), s(4), s(3))); E(salu('s_and_b32', sROLE, s(4), 15))
        E(salu('s_and_b32', s(3), s(2), 1)); E(shl(s(3), s(3), 3)); E(salu('s_and_b32', s(4), s(2), 2)); E(shl(s(4), s(4), 1))
        E(shr(sRB, s(2), 6)); E(salu('s_or_b32', sRB, sRB, s(3))); E(salu('s_or_b32', sRB, sRB, s(4)))
    elif CFG.get('map', 4) == 2:
        t2 = [0, 1, 2, 3, 4, 11, 5, 12, 6, 13, 7, 14, 8, 15, 9, 10]
        lo = sum(t2[i] << (4 * i) for i in range(8)); hi = sum(t2[8 + i] << (4 * i) for i in range(8))
        E(salu('s_bfe_u32', s(3), s(2), (1 << 16) | 3)); E(salu('s_and_b32', s(4), s(2), 3)); E(shl(s(4), s(4), 1)); E(salu('s_or_b32', s(3), s(3), s(4))); E(shl(s(3), s(3), 2))
        E(salu('s_bitcmp1_b32', None, s(2), 2)); E(smov(s(4), lo)); E(csel(s(4), hi, s(4)))
        E(shr(s(4), s(4), s(3))); E(salu('s_and_b32', sROLE, s(4), 15)); E(shr(sRB, s(2), 4))
    else:
        lo = sum(tab[i] << (4 * i) for i in range(8)); hi = sum(tab[8 + i] << (4 * i) for i in range(8))
        E(salu('s_bfe_u32', s(3), s(2), (2 << 16) | 3)); E(salu('s_bfe_u32', s(4), s(2), (1 << 16) | 1))
        E(shl(s(4), s(4), 2)); E(salu('s_or_b32', s(3), s(3), s(4))); E(shl(s(3), s(3), 2))
        E(salu('s_bitcmp1_b32', None, s(2), 2))
        E(smov(s(4), lo)); E(csel(s(4), hi, s(4)))
        E(shr(s(4), s(4), s(3))); E(salu('s_and_b32', sROLE, s(4), 15))
        E(salu('s_and_b32', s(3), s(2), 1)); E(shl(s(3), s(3), 3))
        E(shr(sRB, s(2), 5)); E(salu('s_or_b32', sRB, sRB, s(3)))
    E(valu('v_lshrrev_b32', v(1), 6, v(0)))
    E(valu('v_readfirstlane_b32', sWAVE, v(1)))
    E(valu('v_and_b32', v(0), 63, v(0)))
    E(valu('v_lshrrev_b32', vROWN, 3, v(0)))
    E(valu('v_and_b32', v(20), 7, v(0))); E(valu('v_lshrrev_b32', v(21), 4, v(0)))
    E(valu('v_xor_b32', v(22), v(20), v(21))); E(valu('v_xor_b32', v(23), 4, v(22)))
    E(smov(s(3), 1152)); E(valu('v_mul_u32_u24', v(24), s(3), vROWN))
    E(valu('v_lshl_add_u32', v(16), v(22), 4, v(24))); E(valu('v_lshl_add_u32', v(17), v(23), 4, v(24)))
    E(valu('v_add_u32', v(17), 8 * 1152 - 1024, v(17)))
    E(valu('v_add_u32', v(18), 2 * (8 * 1152 - 1024), v(16))); E(valu('v_add_u32', v(19), 2 * (8 * 1152 - 1024), v(17)))
    E(mul(s(6), sWAVE, XW))
    E(shl(s(7), sRB, 2)); E(add(s(7), s(7), sWAVE)); E(mul(s(7), s(7), 32 * 1152))
    E(raw(f"s_getpc_b64 {sPC}", wr=[sPC])); E(label("L_pc"))
    E(smov(s(4), "L_roleA-L_pc")); E(smov(s(5), "L_roleA_end-L_pc-4"))
    E(salu('s_cmp_ge_u32', None, sROLE, NA)); E(csel(s(4), "L_roleM-L_pc", s(4))); E(csel(s(5), "L_roleM_end-L_pc-4", s(5)))
    E(salu('s_cmp_ge_u32', None, sROLE, NA + NM)); E(csel(s(4), "L_roleF-L_pc", s(4))); E(csel(s(5), "L_roleF_end-L_pc-4", s(5)))
    def code_pf():
        NL = CFG.get('codelines', 24)
        E(salu('s_and_b32', s(3), sRB, 7)); E(shl(s(3), s(3), 2)); E(add(s(3), s(3), sWAVE))
        E(mul(s(3), s(3), NL * 128)); E(add(s(3), s(3), s(4)))
        E(valu('v_min_u32', v(2), NL - 1, v(0))); E(valu('v_lshlrev_b32', v(2), 7, v(2))); E(valu('v_add_u32', v(2), s(3), v(2)))
        E(valu('v_min_u32', v(3), s(5), v(2)))
        E(I(f"global_load_dword {vDUM}, v3, {sPC}", 'vload', wr=vDUM.regs(), rd=vr(3) + sPC.regs(), tag='pf'))
    if CFG.get('codepf', 3) >= 3:
        n0 = CFG.get('code0', 16)
        if n0:
            E(mul(s(3), sWAVE, n0 * 128)); E(add(s(3), s(3), s(4)))
            E(valu('v_min_u32', v(2), n0 - 1, v(0))); E(valu('v_lshlrev_b32', v(2), 7, v(2))); E(valu('v_add_u32', v(2), s(3), v(2)))
            E(I(f"global_load_dword {vDUM}, v2, {sPC}", 'vload', wr=vDUM.regs(), rd=vr(2) + sPC.regs(), tag='pf'))
        code_pf()
    E(raw("s_waitcnt lgkmcnt(0)"))
    srd(p, sX, 40, 2359296)
    if CFG.get('xt'):
        nch = CFG['xt']
        E(salu('s_bfe_u32', s(3), s(2), (2 << 16) | 3)); E(mul(s(3), s(3), 128 * nch)); E(add(s(3), s(3), 128 * (9 - 4 * nch))); E(add(s(3), s(3), s(7)))
        E(valu('v_and_b32', v(2), 31, v(0))); E(valu('v_mul_u32_u24', v(2), 1152, v(2)))
        if nch == 2:
            E(valu('v_lshrrev_b32', v(3), 5, v(0))); E(valu('v_lshl_add_u32', v(2), v(3), 7, v(2)))
        ld = bload('buffer_load_dword', vDUM, v(2), sX, s(3)); ld.tag = 'pf'; E(ld)
    nx0 = CFG.get('tx', 2) if CFG.get('touch') else 0
    for j in range(nx0): E(xdma(j))
    if CFG.get('touch'):
        E(salu('s_cmp_gt_u32', None, sROLE, 10))
        E(raw("s_cselect_b64 s[60:61], s[52:53], s[46:47]", 'salu', wr=[s(60, 2)], rd=[s(52, 2), s(46, 2)]))
        E(raw("s_cselect_b64 s[66:67], s[54:55], s[48:49]", 'salu', wr=[s(66, 2)], rd=[s(54, 2), s(48, 2)]))
        E(salu('s_cmp_eq_u32', None, sWAVE, 1)); E(raw("s_cselect_b64 s[60:61], s[66:67], s[60:61]", 'salu', wr=[s(60, 2)], rd=[s(66, 2), s(60, 2)]))
        E(salu('s_cmp_eq_u32', None, sWAVE, 2)); E(raw("s_cselect_b64 s[60:61], s[42:43], s[60:61]", 'salu', wr=[s(60, 2)], rd=[s(42, 2), s(60, 2)]))
        E(salu('s_cmp_eq_u32', None, sWAVE, 3)); E(raw("s_cselect_b64 s[60:61], s[44:45], s[60:61]", 'salu', wr=[s(60, 2)], rd=[s(44, 2), s(60, 2)]))
        E(smov(s(3), 73728)); E(salu('s_cmp_ge_u32', None, sWAVE, 2)); E(csel(s(3), 131072, s(3)))
        E(valu('v_mul_u32_u24', v(2), s(3), v(0)))
        E(I(f"global_load_dword {vDUM}, v2, s[60:61]", 'vload', wr=vDUM.regs(), rd=vr(2) + sr(60, 2), tag='pf'))
    for j in range(nx0, CFG['xe']): E(xdma(j))
    if CFG.get('codepf', 3) == 1: code_pf()
    if CFG.get('codepf', 3) == 2:
        E(valu('v_mov_b32', v(46), v(3))); E(raw(f"s_mov_b64 s[100:101], {sPC}", 'salu', wr=[s(100, 2)], rd=[sPC]))
    srd(p, sK, 42, 8388608); srd(p, sV, 44, 8388608); srd(p, sWQ, 46, 4718592); srd(p, sWO, 48, 4718592)
    srd(p, sW1, 52, 5308416); srd(p, sW2, 54, 5308416); srd(p, sWS, 50, 0x10000000 if (CFG['stamps'] or CFG['fused']) else WSP_BYTES)
    srd(p, sOUT, 56, 2359296); srd(p, sDBG, 58, 256)
    E(mul(sW8704, sWAVE, 8 * PP)); E(mul(sWC, sWAVE, PP)); E(add(sWC, sWC, 32 * PP))
    E(shl(sW8192, sWAVE, 13)); E(shl(sWCH, sWAVE, 10)); E(add(sWCH, sWCH, 32768))
    E(mul(sW2176, sWAVE, 2 * PP)); E(mul(sW4352, sWAVE, 4 * PP)); E(add(sWA2, sW2176, 16 * PP))
    return p

def dispatch_text():
    return f""" s_cmp_ge_u32 {sROLE}, {NA + NM}
 s_cbranch_scc1 L_roleF
 s_cmp_ge_u32 {sROLE}, {NA}
 s_getpc_b64 s[94:95]
L_pc2:
 s_cbranch_scc1 L_jM
 s_add_u32 s94, s94, L_roleA-L_pc2
 s_addc_u32 s95, s95, 0
 s_setpc_b64 s[94:95]
L_jM:
 s_add_u32 s94, s94, L_roleM-L_pc2
 s_addc_u32 s95, s95, 0
 s_setpc_b64 s[94:95]
"""

def pfload(srd_, base):
    ld = bload('buffer_load_dword', vDUM, vPF, srd_, base); ld.tag = 'pf'; return ld
def pf_lin(srd_, base_s, start, nbytes, nl=64):
    def f():
        return [valu('v_lshrrev_b32', vPF2, 16, vTID), valu('v_and_b32', vPF, 63, vTID), valu('v_min_u32', vPF, nl - 1, vPF),
                valu('v_mad_u32_u24', vPF, vPF2, nl, vPF), valu('v_lshlrev_b32', vPF, 7, vPF), valu('v_add_u32', vPF, start, vPF),
                valu('v_min_u32', vPF, nbytes - 128, vPF), pfload(srd_, base_s)]
    return f
def pf_run(srd_, base_s, nbytes, nl):
    def f():
        return [valu('v_min_u32', vPF, nbytes - 128, vPFR), valu('v_add_u32', vPFR, 64 * nl * 128, vPFR), pfload(srd_, base_s)]
    f.nl = nl
    return f
def vPFW(kind): return {'F': v(8), 'A': v(7), 'M': v(36)}[kind]
def pf_row(kind, srd_, step=128):
    def f():
        ld = bload('buffer_load_dword', vDUM, vPFW(kind), srd_, sPW); ld.tag = 'pf'
        return [add(sPW, sPW, step), ld]
    return f
def pf_row_setup(kind, pitch, nl, base, lit):
    r = vPFW(kind)
    return [valu('v_bfe_u32', vPF2, vTID, 16, 5), valu('v_and_b32', r, 63, vTID), valu('v_min_u32', r, nl - 1, r),
            valu('v_mad_u32_u24', r, vPF2, nl, r), smov(sT2, pitch), valu('v_mul_u32_u24', r, sT2, r), add(sPW, base, lit)]
def pf_code(la, lb, nl):
    def f():
        L = f"L_cp{pf_code.k}"; pf_code.k += 1
        ld = I(f"global_load_dword {vDUM}, {vPF}, {sPC}", 'vload', wr=vDUM.regs(), rd=vPF.regs() + sPC.regs(), units=3, tag='pf')
        return [raw(f"s_getpc_b64 {sPC}", 'salu', wr=[sPC]), label(L),
                salu('s_add_u32', sPC[0], sPC[0], f"{la}-{L}"), salu('s_addc_u32', sPC[1], sPC[1], 0, scc_r=True),
                valu('v_bfe_u32', vPF2, vTID, 16, 5), valu('v_and_b32', vPF, 63, vTID), valu('v_min_u32', vPF, nl - 1, vPF),
                valu('v_mad_u32_u24', vPF, vPF2, nl, vPF), valu('v_lshlrev_b32', vPF, 7, vPF), valu('v_min_u32', vPF, f"{lb}-{la}-4", vPF), ld]
    return f
pf_code.k = 0
def pf_sched(R, k0, srd_, base_s, nbytes, nl):
    per = 64 * nl * 128; k = k0
    for st in range(0, nbytes, per):
        R.pf.setdefault(k, []).append(pf_lin(srd_, base_s, st, nbytes, nl)); k += 1
    return k

def role_prologue(R, vm_before):
    p = R.p; E = p.emit; kind = R.kind
    p.vm = list(vm_before)
    MS = CFG['shape'] == 'M'
    def PS(k):
        if CFG['stamps'] == 1: R.stamp(k)
    if CFG.get('delayrole') is not None:
        for r_ in CFG['delayrole']:
            E(salu('s_cmp_eq_u32', None, sROLE, r_[0])); E(raw(f"s_cbranch_scc0 L_{kind}_nd{r_[0]}"))
            E(smov(sLC, r_[1])); E(label(f"L_{kind}_dl{r_[0]}")); E(raw("s_sleep 127")); E(salu('s_sub_u32', sLC, sLC, 1)); E(salu('s_cmp_lg_u32', None, sLC, 0)); E(raw(f"s_cbranch_scc1 L_{kind}_dl{r_[0]}"))
            E(label(f"L_{kind}_nd{r_[0]}"))
    PS(56)
    lane = v(0)
    ILV = CFG.get('ilv') and not MS
    setup = []
    if ILV:
        E(valu('v_lshrrev_b32', v(48), 4, lane)); E(valu('v_and_b32', v(49), 15, lane)); E(valu('v_bfe_u32', v(50), lane, 1, 3)); E(valu('v_xor_b32', v(50), v(50), v(48)))
        E(valu('v_lshlrev_b32', v(49), 7, v(49))); E(valu('v_add_u32', v(49), s(6), v(49)))
        E(valu('v_lshl_add_u32', v(20), v(50), 4, v(49))); E(valu('v_xor_b32', v(21), 64, v(20)))
        def E(i):
            if isinstance(i, (list, tuple)):
                for x in i: E(x)
            else: setup.append(i)
    E(shl(sT2, sRB, 2)); E(add(sT2, sT2, sWAVE)); E(shl(sT2, sT2, 16)); E(valu('v_or_b32', vTID, sT2, lane))
    if kind in 'AM' and CFG.get('pair'):
        sHP_, sHS_ = s(86), s(85)
        if CFG.get('l844'): E(shl(sHP_, sROLE, 1)); E(add(sHP_, sHP_, 8))
        else: E(mul(sHP_, sROLE, 3))
        if kind == 'A':
            sHP_, sHS_ = sFA, sFC
            E(mul(sHS_, sROLE, 3)); E(salu('s_and_b32', s(4), sROLE, 1)); E(add(sHP_, sHS_, s(4)))
            E(shl(s(4), s(4), 1)); E(add(sHS_, sHS_, 2)); E(salu('s_sub_u32', sHS_, sHS_, s(4)))
            E(salu('s_sub_u32', sJQ, sHS_, sHP_)); E(shl(sJQ, sJQ, 8)); E(salu('s_sub_u32', sJQ, sJQ, 3 * 128))
        E(shl(sQ0, sHP_, 8))
        E(mul(sQA, sWAVE, 64 * 8192)); E(add(sQA, sQA, sQ0))
        E(shl(sQC, sWAVE, 16)); E(add(sQC, sQC, sQ0)); E(add(sQC, sQC, 256 * 8192))
        E(shr(s(3), sWAVE, 1)); E(shl(s(3), s(3), 13)); E(salu('s_and_b32', s(4), sWAVE, 1)); E(shl(s(4), s(4), 11)); E(add(s(3), s(3), s(4)))
        E(salu('s_sub_u32', s(3), s(3), 64)); E(shl(s(4), sWAVE, 11))
        for e, (h_, pfr) in enumerate([(sHP_, sPFa), (sHS_, sPFb)][:2 if kind == 'A' else 1]):
            E(shr(pfr, h_, 1)); E(shl(pfr, pfr, 19)); E(add(pfr, pfr, 1536 * 256))
            E(add(sKb[e], pfr, s(4))); E(add(sVb[e], pfr, s(3)))
        E(mul(sPFc, sROLE, 384 * 1152) if kind == 'A' else mul(sPFc, sHP_, 128 * 1152))
        if kind == 'A':
            E(mul(sHP_, sHP_, 128 * 1152)); E(mul(sHS_, sHS_, 128 * 1152))
            E(mul(sOA, sWAVE, 32 * 1152)); E(add(sOA1, sOA, sHS_)); E(add(sOA, sOA, sHP_))
            E(salu('s_sub_u32', sOA1, sOA1, 64 * 1152)); E(add(sT3, sOA, 192 * 1152)); E(salu('s_cmp_lt_u32', None, sWAVE, 2)); E(csel(sOA1, sT3, sOA1))
            E(shr(s(3), sWAVE, 1)); E(shl(s(3), s(3), 2)); E(salu('s_and_b32', s(4), sWAVE, 1)); E(add(s(3), s(3), s(4)))
            E(mul(sOB, s(3), 8 * 1152)); E(add(sOB1, sOB, sHS_)); E(add(sOB1, sOB1, 64 * 1152)); E(add(sOB, sOB, sHP_)); E(add(sOB, sOB, 128 * 1152))
        else:
            E(mul(sOA, sWAVE, 64 * 1152)); E(add(sOA, sOA, sPFc))
    elif kind in 'AM':
        E(mul(sT3, sROLE, 3 * 256))
        E(mul(sQA, sWAVE, 64 * 8192)); E(add(sQA, sQA, sT3))
        E(shl(sQC, sWAVE, 16)); E(add(sQC, sQC, sT3)); E(add(sQC, sQC, 256 * 8192))
        E(shr(s(3), sWAVE, 1)); E(shl(s(3), s(3), 13)); E(salu('s_and_b32', s(4), sWAVE, 1)); E(shl(s(4), s(4), 11)); E(add(s(3), s(3), s(4)))
        E(salu('s_sub_u32', s(3), s(3), 64)); E(shl(s(4), sWAVE, 11))
        if MS: E(shl(s(3), sWAVE, 12))
        for e in range(3 if kind == 'A' else 2):
            E(mul(sT3, sROLE, 3)); E(add(sT3, sT3, e)); E(shr(sT3, sT3, 1)); E(shl(sT3, sT3, 19)); E(add(sT3, sT3, 1536 * 256))
            if e == 0: E(smov(sPFa, sT3))
            if e == (2 if kind == 'A' else 1): E(smov(sPFb, sT3))
            E(add(sKb[e], sT3, s(4))); E(add(sVb[e], sT3, s(3)))
        E(mul(sPFc, sROLE, 384 * 1152))
        if kind == 'A':
            E(mul(sOA, sWAVE, 32 * 1152)); E(add(sOA, sOA, sPFc))
            E(shr(s(3), sWAVE, 1)); E(shl(s(3), s(3), 2)); E(salu('s_and_b32', s(4), sWAVE, 1)); E(add(s(3), s(3), s(4)))
            E(mul(sOB, s(3), 8 * 1152)); E(add(sOB, sOB, sPFc)); E(add(sOB, sOB, 128 * 1152))
        else:
            E(mul(sOA, sWAVE, 64 * 1152)); E(add(sOA, sOA, sPFc))
    if kind in 'FM':
        if kind == 'F':
            E(salu('s_sub_u32', s(3), sROLE, NA + NM)); E(mul(sPF1, s(3), 13 * 128)); E(shl(sPF1h, s(3), 6)); E(add(sPF1h, sPF1h, 69 * 128))
        elif CFG.get('l844'):
            E(mul(sPF1, sROLE, 5 * 128)); E(add(sPF1, sPF1, (52 - 40) * 128)); E(smov(sPF1h, sPF1))
        else:
            E(smov(sPF1, f_fullcol(5) * 2)); E(smov(sPF1h, f_halfcol(5) * 2))
        E(mul(sHA, sWAVE, 64 * 9216)); E(add(sHA, sHA, sPF1))
        E(mul(sHC, sWAVE, 8 * 9216)); E(add(sHC, sHC, sPF1)); E(add(sHC, sHC, 256 * 9216))
        E(mul(sHH, sWAVE, 128 * 9216)); E(add(sHH, sHH, sPF1h))
        E(mul(sHHC, sWAVE, 16 * 9216)); E(add(sHHC, sHHC, sPF1h)); E(add(sHHC, sHHC, 512 * 9216))
        E(mul(sPF2, sPF1, 576)); E(mul(sPF2h, sPF1h, 576))
        E(mul(sFA, sWAVE, 64 * 1152)); E(add(sFA, sFA, sPF2))
        if MS:
            E(salu('s_and_b32', s(3), sWAVE, 1)); E(shl(s(3), s(3), 1)); E(shr(s(4), sWAVE, 1)); E(add(s(3), s(3), s(4))); E(mul(sFC, s(3), 8 * 1152))
        else: E(mul(sFC, sWAVE, 4 * 1152))
        E(add(sFS, sFC, sPF2h)); E(add(sFC, sFC, sPF2)); E(add(sFC, sFC, 256 * 1152))
    if CFG['pf'] >= 3:
        if kind in 'AM': E(mul(sT3, sROLE, 3 * 256) if not CFG.get('pair') else smov(sT3, sQ0))
        E(pf_row_setup(kind, 8192 if kind in 'AM' else 9216, 18, sT3 if kind in 'AM' else sPF1, 0))
        f_ = pf_row(kind, sWQ if kind in 'AM' else sW1)
        early_pf = [f_()[1]] + f_() + f_()
        if CFG.get('ez'): E(early_pf[0])
        if CFG.get('epf', 1) == 3:
            R.pf.setdefault(0, [])[:0] = [f_, f_]
    E(add(sT3, sROLE, NS - NA if kind == 'F' else 0))
    E(mul(sSt, sT3, PSTR())); E(shl(sT3, sRB, 2)); E(add(sT3, sT3, sWAVE)); E(mul(sT3, sT3, PWAVE)); E(add(sSt, sSt, sT3))
    if kind == 'M': E(add(sSt2, sSt, (NS - NA) * PSTR()))
    if CFG['fused']:
        E(shl(sT2, sRB, 14)); E(add(sT2, sT2, CTRL))
        E(add(sT3, sROLE, NS - NA if kind == 'F' else 0)); E(shl(sT3, sT3, 2)); E(add(sT3, sT3, sT2))
        E(salu('s_cmp_eq_u32', None, sWAVE, 0)); E(csel(sT3, sT3, OOB)); E(csel(sT2, sT2, OOB))
        E(valu('v_and_b32', v(24), 15, lane)); E(valu('v_lshlrev_b32', v(25), 7, v(24))); E(valu('v_add_u32', v(25), 128, v(25)))
        E(raw("v_cmp_eq_u32 vcc, 0, v24", 'valu', wr=['vcc'], rd=[v(24)])); E(valu('v_cndmask_b32', v(25), v(25), 0, 'vcc') if False else raw("v_cndmask_b32 v25, v25, v24, vcc", 'valu', wr=[v(25)], rd=[v(25), v(24), 'vcc']))
        E(valu('v_lshrrev_b32', v(26), 4, lane)); E(valu('v_lshl_add_u32', v(25), v(26), 2 + (NS - NA).bit_length() - 1, v(25))); E(valu('v_add_u32', v(25), sT3, v(25)))
        E(raw(f"s_mov_b64 vcc, {hex(((1 << (NA + 1)) - 1) * (0x10001 if kind == 'M' else 1))}", 'salu', wr=['vcc'])); E(valu('v_mov_b32', vCT, OOB)); E(nop(1))
        E(raw(f"v_cndmask_b32 {vCT}, {vCT}, v25, vcc", 'valu', wr=[vCT], rd=[vCT, v(25), 'vcc']))
        E(valu('v_mov_b32', v(24), vCT))
        if CFG.get('abn'):
            assert not CFG.get('bal')
            E(valu('v_and_b32', v(26), 15, lane)); E(valu('v_lshlrev_b32', v(26), 8, v(26))); E(add(sT2, sT2, ABN)); E(valu('v_add_u32', v(26), sT2, v(26)))
            if kind == 'A':
                t_ = [x - 20 for x in [28, 29, 22, 30, 31, 21, 32, 33, 34, 35]]
                E(smov(s(98), sum(t_[i] << (4 * i) for i in range(8)))); E(smov(s(99), t_[8] | (t_[9] << 4)))
                E(shl(s(4), sROLE, 2)); E(salu('s_lshr_b64', s(98, 2), s(98, 2), s(4))); E(salu('s_and_b32', s(4), s(98), 15)); E(add(s(4), s(4), 20))
                E(valu('v_mov_b32', v(27), s(4))); E(add(s(4), sROLE, 10)); E(valu('v_mov_b32', v(25), s(4)))
                E(raw("v_cmp_gt_u32 vcc, 32, v0", 'valu', wr=['vcc'], rd=[lane])); E(raw("v_cndmask_b32 v27, v27, v25, vcc", 'valu', wr=[v(27)], rd=[v(27), v(25), 'vcc']))
                E(valu('v_mov_b32', v(25), sROLE))
                E(raw("v_cmp_gt_u32 vcc, 16, v0", 'valu', wr=['vcc'], rd=[lane])); E(raw("v_cndmask_b32 v27, v27, v25, vcc", 'valu', wr=[v(27)], rd=[v(27), v(25), 'vcc']))
            else:
                E(smov(s(4), 20) if kind == 'M' else add(s(4), sROLE, 12)); E(valu('v_mov_b32', v(27), s(4)))
            E(valu('v_lshl_add_u32', v(26), v(27), 2, v(26))); E(valu('v_mov_b32', v(25), 0))
            z = bstore('buffer_store_dword', v(25), v(26), sWS, 0, flags='sc1'); z.tag = 'zero'; E(z)
        else:
            assert not (CFG.get('l844') or CFG.get('four') or CFG.get('nof'))
            E(add(sT2, sT2, 4 * (NPART + 1)))
            def flag(lane_, item):
                E(raw(f"s_lshl2_add_u32 {sT3}, {item}, {sT2}", 'salu', wr=[sT3], rd=[item, sT2]))
                E(raw(f"v_writelane_b32 v24, {sT3}, {lane_}", 'valu', wr=[v(24)], rd=[sT3, v(24)]))
            def tflag(lane_, tab, base):
                t_ = [min(x - base, 15) for x in tab]
                E(smov(s(98), sum(t_[i] << (4 * i) for i in range(8)))); E(smov(s(99), t_[8] | (t_[9] << 4)))
                E(shl(s(4), sROLE, 2)); E(salu('s_lshr_b64', s(98, 2), s(98, 2), s(4))); E(salu('s_and_b32', s(4), s(98), 15)); E(add(s(4), s(4), base)); flag(lane_, s(4))
            if kind == 'A' and CFG.get('bal'):
                flag(32, sROLE); tflag(33, BAL2, 10); tflag(34, BAL3, 21)
                tflag(35, [x if x < 36 else i for i, x in enumerate(BALM)][:0] + [(BALM[i] if BALM[i] < 36 else BAL2[i]) for i in range(10)], 10)
            elif kind == 'A':
                flag(32, sROLE); E(add(s(4), sROLE, 10)); flag(33, s(4)); tflag(34, [28, 29, 22, 30, 31, 21, 32, 33, 34, 35], 20)
            elif kind == 'F' and CFG.get('bal'):
                E(add(s(4), sROLE, 12)); E(salu('s_cmp_lt_u32', None, sROLE, 13)); E(csel(s(4), 41, s(4))); flag(32, s(4))
            else:
                E(smov(s(4), 20) if kind == 'M' else add(s(4), sROLE, 12)); flag(32, s(4))
        E(valu('v_mov_b32', v(25), 0))
        z = bstore('buffer_store_dword', v(25), v(24), sWS, 0, flags='sc1'); z.tag = 'zero'; E(z)
        E(shl(sT2, sRB, 4)); E(salu('s_cmp_eq_u32', None, sWAVE, 0)); E(csel(sT2, sT2, 256))
        E(valu('v_mov_b32', v(23), 256)); E(raw(f"v_writelane_b32 v23, {sT2}, 0", 'valu', wr=[v(23)], rd=[sT2, v(23)]))
    T_ = [v(24), v(25), v(26), v(27), v(28), v(29)]
    q, r, c4, rb1 = T_[0], T_[1], T_[2], T_[3]
    E(valu('v_lshrrev_b32', q, 4, lane)); E(valu('v_bfe_u32', r, lane, 2, 2)); E(valu('v_and_b32', c4, 3, lane)); E(valu('v_bfe_u32', rb1, lane, 3, 1))
    E(valu('v_and_b32', T_[4], 7, lane)); E(valu('v_bfe_u32', T_[5], lane, 4, 1)); E(valu('v_lshlrev_b32', T_[5], 1, T_[5]))
    E(valu('v_xor_b32', T_[4], T_[4], T_[5])); E(valu('v_lshlrev_b32', vSWZ, 4, T_[4]))
    E(valu('v_lshrrev_b32', T_[4], 5, lane)); E(valu('v_and_b32', T_[5], 3, vROWN)); E(valu('v_lshl_add_u32', vROWP, T_[4], 4, T_[5]))
    E(smov(sT2, PP)); E(valu('v_mul_u32_u24', T_[4], sT2, q)); E(valu('v_lshl_add_u32', T_[4], r, 7, T_[4]))
    E(valu('v_lshl_add_u32', T_[4], c4, 3, T_[4])); E(valu('v_lshl_add_u32', vRW[0][0], rb1, 5, T_[4]))
    E(valu('v_mov_b32', vDP, vRW[0][0]))
    if MS:
        E(valu('v_and_b32', T_[4], 7, lane)); E(valu('v_bfe_u32', T_[5], lane, 4, 1)); E(valu('v_lshlrev_b32', T_[5], 2, T_[5]))
        E(valu('v_xor_b32', T_[4], T_[4], T_[5])); E(valu('v_lshlrev_b32', vSWZM, 4, T_[4]))
        E(valu('v_bfe_u32', q, lane, 4, 1)); E(valu('v_lshlrev_b32', q, 5, q))
        E(valu('v_and_b32', T_[4], 1, lane)); E(valu('v_lshl_add_u32', q, T_[4], 4, q))
        E(valu('v_bfe_u32', T_[4], lane, 1, 1)); E(valu('v_lshl_add_u32', q, T_[4], 3, q))
        E(valu('v_lshrrev_b32', T_[5], 5, lane))
        E(smov(sT2, PP)); E(valu('v_mad_u32_u24', T_[4], T_[5], sT2, q)); E(valu('v_lshl_add_u32', T_[4], r, 7, T_[4]))
        E(valu('v_lshl_add_u32', vRW[0][0], rb1, 6, T_[4])); E(valu('v_xor_b32', rb1, 1, rb1)); E(valu('v_lshl_add_u32', vRW[0][1], rb1, 6, T_[4]))
        if kind in 'FM':
            E(valu('v_lshl_add_u32', vRH[0], T_[5], 9, q)); E(valu('v_lshl_add_u32', vRH[0], r, 6, vRH[0]))
            E(valu('v_lshlrev_b32', T_[4], 4, c4)); E(valu('v_lshrrev_b32', T_[5], 2, lane)); E(smov(sT2, 9216))
            E(valu('v_mad_u32_u24', vOFFH, T_[5], sT2, T_[4]))
        E(valu('v_lshrrev_b32', q, 4, lane))
    else:
        E(valu('v_xor_b32', vRW[0][1], 32, vRW[0][0]))
    for b in (1, 2):
        for T in range(2): E(valu('v_add_u32', vRW[b][T], 65536 * b, vRW[0][T]))
    if kind in 'FM' and not MS:
        E(valu('v_lshlrev_b32', T_[4], 9, q)); E(valu('v_lshl_add_u32', T_[4], r, 6, T_[4])); E(valu('v_lshl_add_u32', T_[4], c4, 3, T_[4]))
        E(valu('v_and_b32', T_[5], 1, q)); E(valu('v_lshl_add_u32', vRH[0], T_[5], 5, T_[4])); E(valu('v_xor_b32', vRH[1], 32, vRH[0]))
        E(valu('v_lshrrev_b32', T_[4], 5, lane)); E(valu('v_lshlrev_b32', T_[4], 1, T_[4])); E(valu('v_xor_b32', T_[4], T_[4], c4))
        E(valu('v_lshlrev_b32', T_[4], 4, T_[4])); E(valu('v_lshrrev_b32', T_[5], 2, lane)); E(smov(sT2, 9216))
        E(valu('v_mad_u32_u24', vOFFH, T_[5], sT2, T_[4]))
    if kind in 'AM':
        E(valu('v_and_b32', T_[4], 15, lane)); E(valu('v_xor_b32', T_[4], T_[4], q)); E(valu('v_lshlrev_b32', T_[4], 4, T_[4]))
        E(valu('v_lshl_add_u32', vOFFK, q, 8, T_[4]))
    E(set_offw(8192 if kind in 'AM' else 9216, 'M' if MS else 'S'))
    if MS:
        XA = [v(20), v(21), v(22), v(39)]
        E(valu('v_and_b32', T_[4], 31, lane)); E(valu('v_bfe_u32', T_[5], lane, 1, 3)); E(valu('v_lshrrev_b32', q, 5, lane)); E(valu('v_xor_b32', T_[5], T_[5], q))
        E(valu('v_lshlrev_b32', T_[4], 7, T_[4])); E(valu('v_add_u32', T_[4], s(6), T_[4]))
        E(valu('v_lshl_add_u32', XA[0], T_[5], 4, T_[4]))
        for tt in range(1, 4): E(valu('v_xor_b32', XA[tt], 32 * tt, XA[0]))
    else:
        E(valu('v_and_b32', T_[4], 15, lane)); E(valu('v_bfe_u32', T_[5], lane, 1, 3)); E(valu('v_xor_b32', T_[5], T_[5], q))
        E(valu('v_lshlrev_b32', T_[4], 7, T_[4])); E(valu('v_add_u32', T_[4], s(6), T_[4]))
        E(valu('v_lshl_add_u32', v(20), T_[5], 4, T_[4])); E(valu('v_xor_b32', v(21), 64, v(20)))
        if kind in 'AM':
            E(smov(sT2, PP)); E(valu('v_mul_u32_u24', v(22), sT2, r)); E(valu('v_lshl_add_u32', v(22), c4, 8, v(22)))
            E(valu('v_xor_b32', T_[4], q, c4)); E(valu('v_lshl_add_u32', v(22), T_[4], 4, v(22)))
    E(valu('v_lshlrev_b32', vLANE16, 4, lane))
    if CFG['stamps'] == 2: E(valu('v_mov_b32', vSTAMP, 0))
    if CFG['fused'] and CFG.get('rep') and kind in 'FM':
        E(rep_addr(kind, v(24), v(25))); E(valu('v_mov_b32', v(25), 0))
        z = bstore('buffer_store_dword', v(25), v(24), sWS, 0, flags='sc1'); z.tag = 'zero'; E(z)
    E = p.emit
    sONE = s(97) if ILV else sT2
    SA = 56 if ILV else 28
    for i in range(8): E(valu('v_mov_b32', v(SA + i), 0))
    E(smov(sONE, 0x3f803f80))
    def stats(j):
        for tt in range(2):
            for g in range(2):
                for qd in range(4):
                    x = X(2 * j + tt, g)[qd]
                    E(valu('v_dot2c_f32_bf16', v(SA + 2 * g + (qd & 1)), sONE, x, rmw=True))
                    E(valu('v_dot2c_f32_bf16', v(SA + 4 + 2 * g + (qd & 1)), x, x, rmw=True))
    PS(57)
    for j in range(9):
        E(waitvm(p.vm_wait_for(lambda t: t == ('x', j))))
        if j == 0: PS(58)
        if MS:
            for tt in range(4): E(ds_b128(XM(4 * j + tt), XA[tt], j * 4096))
        else:
            for tt in range(2):
                for g in range(2): E(ds_b128(X(2 * j + tt, g), v(20 + tt), j * 4096 + g * 2048))
        if j + CFG['xe'] < 9: E(xdma(j + CFG['xe']))
        if CFG['pf'] >= 3 and CFG.get('epf', 1) == 1 and j == max(8 - CFG['xe'], 0): E(early_pf)
        if ILV:
            nper = -(-len(setup) // max(CFG['ilv'] - j, 1))
            while nper < len(setup) and (SCC in setup[nper].rd or setup[nper].txt.startswith('s_cselect') or VCC in setup[nper].rd): nper += 1
            E(setup[:nper]); del setup[:nper]
        if j >= 1:
            E(waitlg(4)); stats(j - 1)
    E(waitlg(0)); PS(59); E(barrier())
    if CFG.get('codepf', 3) == 2: E(I(f"global_load_dword {vDUM}, v46, s[100:101]", 'vload', wr=vDUM.regs(), rd=vr(46) + sr(100, 2), tag='pf'))
    if CFG['pf'] >= 3 and CFG.get('epf', 1) == 2: E(early_pf)
    pend = []
    for k in range(2 if CFG.get('pro2') else 3):
        st = R.stages[k]
        if st.pre_dma: pend.append(st.pre_dma())
        pend += st.dma(k, False)
    if CFG.get('epf', 1) == 4: pend[CFG.get('epos', 9):CFG.get('epos', 9)] = [early_pf[1:3], early_pf[3:5]]
    d0 = CFG.get('d0', 9)
    for it in pend[:d0]: E(it)
    pend = pend[d0:]
    PS(60)
    stats(8)
    acc4 = [v(SA), v(SA + 2), v(SA + 4), v(SA + 6)]
    for x in acc4: E(valu('v_add_f32', x, x, v(x.n + 1)))
    if MS:
        for b_ in (0, 2):
            E(valu('v_add_f32', acc4[b_], acc4[b_], acc4[b_ + 1]))
        for b_ in (0, 2): E(valu('v_mov_b32', acc4[b_ + 1], acc4[b_]))
    for op in (('v_permlane32_swap_b32',) if MS else ('v_permlane16_swap_b32', 'v_permlane32_swap_b32')):
        for x in acc4: E(valu('v_mov_b32', v(x.n + 1), x))
        for x in acc4: E(valu(op, x, v(x.n + 1), rmw=True, extra_wr=[v(x.n + 1)]))
        for x in acc4: E(valu('v_add_f32', x, x, v(x.n + 1)))
    for x in acc4: E(valu('v_mul_f32', x, f2u(1.0 / 576), x))
    for g in range(2): E(valu('v_fma_f32', acc4[2 + g], '-' + str(acc4[g]), acc4[g], acc4[2 + g]))
    for g in range(2): E(valu('v_max_f32', acc4[2 + g], 0, acc4[2 + g]))
    for g in range(2): E(valu('v_add_f32', acc4[2 + g], f2u(1e-5), acc4[2 + g]))
    for g in range(2): E(valu('v_rsq_f32', acc4[2 + g], acc4[2 + g]))
    for g in range(2): E(valu('v_mul_f32', acc4[2 + g], f2u(-LOG2E), acc4[2 + g]))
    for g in range(2): E(valu('v_mov_b32', v(20 + g), acc4[g]))
    for g in range(2): E(valu('v_mul_f32', acc4[g], '-' + str(acc4[g]), acc4[2 + g], extra_rd=[acc4[g]]))
    E(smov(sT2, 0xffff0000))
    if CFG.get('dotn'):
        cl = [v(SA + 1), v(SA + 3)]; ch = [v(SA + 5), v(SA + 7)]
        for g in range(2): E(valu('v_cvt_pk_bf16_f32', cl[g], acc4[2 + g], 0))
        for g in range(2): E(valu('v_lshlrev_b32', ch[g], 16, cl[g]))
        for g in range(2): E(valu('v_mul_f32', acc4[g], '-' + str(v(20 + g)), ch[g], extra_rd=[v(20 + g)]))
    PS(61)
    n = 0
    for t in range(18):
        for g in range(2):
            tps = [v(24, 2), v(26, 2), v(16, 2), v(18, 2)]
            x = X(t, g)
            if CFG.get('dotn'):
                for qd in range(4):
                    E(valu('v_dot2_f32_bf16', tps[qd][0], x[qd], cl[g], acc4[g])); E(valu('v_dot2_f32_bf16', tps[qd][1], x[qd], ch[g], acc4[g]))
            else:
                for qd in range(4):
                    E(valu('v_lshlrev_b32', tps[qd][0], 16, x[qd])); E(valu('v_and_b32', tps[qd][1], sT2, x[qd]))
                for qd in range(4): E(valu('v_pk_fma_f32', tps[qd], tps[qd], v(acc4[2 + g].n, 2), v(acc4[g].n, 2), mods='op_sel_hi:[1,0,0]'))
            for qd in range(4): E(valu('v_cvt_pk_bf16_f32', x[qd], tps[qd][0], tps[qd][1]))
            if pend and n % CFG.get('dn', 2) == 0: E(pend.pop(0))
            n += 1
    for it in pend: E(it)
    if CFG['fused']:
        E(valu('v_mov_b32', v(24), 1)); E(waitvm(p.vm_wait_for(lambda t: t == 'zero')))
        E(I(f"buffer_atomic_add v24, v23, {sDBG}, 0 offen sc1", 'vstore', rd=vr(23, 2) + sDBG.regs(), units=3, tag='init'))
    for _ in range(CFG.get('idle', 0)): E(raw("s_sleep 16"))
    PS(62)
    if kind in 'AM' and MS:
        ln, m_, key, t_ = v(16), v(17), v(18), v(19)
        E([valu('v_lshrrev_b32', ln, 4, vLANE16), valu('v_and_b32', key, 19, ln),
           valu('v_bfe_u32', t_, ln, 2, 1), valu('v_lshl_add_u32', key, t_, 3, key),
           valu('v_bfe_u32', t_, ln, 3, 1), valu('v_lshl_add_u32', key, t_, 2, key),
           valu('v_lshrrev_b32', m_, 2, key), smov(sT2, PP), valu('v_mul_u32_u24', m_, sT2, m_),
           valu('v_and_b32', key, 3, key), valu('v_lshl_add_u32', m_, key, 8, m_),
           valu('v_lshrrev_b32', t_, 5, ln), valu('v_xor_b32', t_, t_, key),
           valu('v_lshl_add_u32', vRKM[0], t_, 4, m_), valu('v_xor_b32', vRKM[1], 32, vRKM[0])])
    elif kind in 'AM':
        E(valu('v_mov_b32', vRK[0], v(22))); E(valu('v_add_u32', vRK[1], 65536, v(22))); E(valu('v_add_u32', vRK[2], 131072, v(22)))
    if CFG['stamps']: E(raw(f"v_writelane_b32 {vSTAMP}, s96, 55", 'valu', wr=[vSTAMP], rd=[s(96)])) if kind != 'A' else None
    if CFG['stamps']: E(smov(s(43), s(96)))
    nlr = {'F': 10, 'A': 11, 'M': 8}[kind]
    if kind != 'M': E([valu('v_lshrrev_b32', vPF2, 16, vTID), valu('v_and_b32', vPFR, 63, vTID), valu('v_min_u32', vPFR, nlr - 1, vPFR),
       valu('v_mad_u32_u24', vPFR, vPF2, nlr, vPFR), valu('v_lshlrev_b32', vPFR, 7, vPFR)])
    if CFG['stamps']: E(smov(s(97), 0))
    E(smov(sLN0, f2u(-1.0 / math.sqrt(128.0))))

def slow_check(R, heads, base2):
    def f():
        p = R.p; E = p.emit
        t = v(254); lo = v(255)
        E(valu('v_mov_b32', lo, f2u(2.0 ** -40))); E(smov(sT3, f2u(2.0 ** 40)))
        for (hd, Q, O) in heads:
            L = f"L_{R.kind}_slow{hd}"
            if CFG['shape'] == 'M':
                E(valu('v_med3_f32', t, Lsave[hd], sT3, lo))
                E(raw(f"v_cmp_neq_f32 vcc, {t}, {Lsave[hd]}", 'valu', wr=['vcc'], rd=[t, Lsave[hd]])); E(nop(4))
            else:
                E(valu('v_med3_f32', t, Lsave[2 * hd], sT3, lo))
                E(raw(f"v_cmp_neq_f32 s[98:99], {t}, {Lsave[2 * hd]}", 'valu', wr=[s(98, 2)], rd=[t, Lsave[2 * hd]]))
                E(valu('v_med3_f32', t, Lsave[2 * hd + 1], sT3, lo))
                E(raw(f"v_cmp_neq_f32 vcc, {t}, {Lsave[2 * hd + 1]}", 'valu', wr=['vcc'], rd=[t, Lsave[2 * hd + 1]])); E(nop(4))
                E(raw("s_or_b64 vcc, vcc, s[98:99]", 'salu', wr=['vcc'], rd=['vcc', s(98, 2)])); E(nop(1))
            if CFG.get('force_slow'): E(raw(f"s_mov_b64 vcc, -1", 'salu', wr=['vcc']))
            E(raw(f"s_cbranch_vccz {L}_ret"))
            E(raw(f"s_call_b64 {sRET}, {L}"))
            E(label(f"{L}_ret"))
            R.slow.append((slow_path if CFG['shape'] == 'M' else slow_pathS)(L, hd, Q, O, base2))
        E(nop(1))
    return f

def slow_path(L, hd, Q, Odst, b2):
    p = Prog(); E = p.emit
    O = v(48, 64); S = v(b2, 16); P = v(b2 + 16, 8); F = v(b2 + 24, 16)
    vK, vV, vM, vL, t0, t1 = [v(b2 + 40 + i) for i in range(6)]
    sB, sJ, sO = s(98), s(99), s(97)
    E(I(".p2align 2", 'label')); E(label(L))
    E(nop(7)); E(nop(7))
    E([valu('v_lshrrev_b32', t0, 4, vLANE16), valu('v_and_b32', vK, 19, t0), valu('v_bfe_u32', t1, t0, 2, 1), valu('v_lshl_add_u32', vK, t1, 3, vK),
       valu('v_bfe_u32', t1, t0, 3, 1), valu('v_lshl_add_u32', vK, t1, 2, vK), valu('v_lshrrev_b32', t1, 5, t0),
       valu('v_lshlrev_b32', vV, 1, vK), valu('v_lshl_add_u32', vV, t1, 11, vV),
       valu('v_lshlrev_b32', vK, 8, vK), valu('v_lshl_add_u32', vK, t1, 4, vK)])
    E([mul(sB, sROLE, 3), add(sB, sB, hd), shr(sB, sB, 1), shl(sB, sB, 19), add(sB, sB, 1536 * 256)])
    def qk():
        for half in range(2):
            for t in range(4): E(bload('buffer_load_dwordx4', F.sub(4 * t, 4), vK, sK, sO, (4 * half + t) * 32))
            E(waitvm(0))
            for t in range(4):
                tt = 4 * half + t
                E(mfma(S, F.sub(4 * t, 4), Q.sub(4 * tt, 4), 0 if tt == 0 else S))
            E(nop(7)); E(nop(7))
    E(valu('v_mov_b32', vM, 0xff800000)); E(smov(sJ, 0))
    E(label(L + "_a"))
    E(add(sO, sB, sJ)); qk()
    for i in range(0, 16, 2): E(valu('v_max3_f32', vM, vM, S[i], S[i + 1]))
    E(add(sJ, sJ, 8192)); E(salu('s_cmp_lt_u32', None, sJ, 16 * 8192)); E(raw(f"s_cbranch_scc1 {L}_a"))
    E(valu('v_mov_b32', t0, vM)); E(valu('v_permlane32_swap_b32', vM, t0, rmw=True, extra_wr=[t0])); E(valu('v_max_f32', vM, vM, t0))
    for i in range(64): E(valu('v_mov_b32', O[i], 0))
    E(valu('v_mov_b32', vL, 0)); E(smov(sJ, 0))
    E(label(L + "_b"))
    E(add(sO, sB, sJ)); qk()
    for i in range(16): E(valu('v_sub_f32', S[i], S[i], vM))
    for i in range(16): E(valu('v_exp_f32', S[i], S[i]))
    for i in range(16): E(valu('v_add_f32', vL, vL, S[i]))
    for q in range(8): E(valu('v_cvt_pk_bf16_f32', P[q], S[2 * q], S[2 * q + 1]))
    for u in range(2):
        for tp in range(2):
            for tq in range(2):
                for j in range(8):
                    E(bload('buffer_load_ushort', F[8 * (j & 1) + 4 * tq + j // 2], vV, sV, sO, j * 256 + (2 * tp + tq) * 64))
            E(waitvm(0))
            for i in range(8): E(valu('v_lshl_or_b32', F[i], F[8 + i], 16, F[i]))
            for tq in range(2):
                D_ = O.sub(16 * (2 * tp + tq), 16)
                E(mfma(D_, F.sub(4 * tq, 4), P.sub(4 * u, 4), D_))
            E(nop(7))
        if u == 0: E(add(sO, sO, 4096))
    E(add(sJ, sJ, 8192)); E(salu('s_cmp_lt_u32', None, sJ, 16 * 8192)); E(raw(f"s_cbranch_scc1 {L}_b"))
    E(nop(7)); E(nop(7))
    E(valu('v_mov_b32', t0, vL)); E(valu('v_permlane32_swap_b32', vL, t0, rmw=True, extra_wr=[t0])); E(valu('v_add_f32', vL, vL, t0))
    E(valu('v_rcp_f32', t0, vL))
    for tau in range(4):
        A_ = O.sub(16 * tau, 16)
        for e in range(16): E(valu('v_mul_f32', A_[e], A_[e], t0))
        for q in range(8): E(valu('v_cvt_pk_bf16_f32', A_[2 * q], A_[2 * q], A_[2 * q + 1]))
        for q in range(4): E(valu('v_permlane16_swap_b32', A_[2 * q], A_[2 * q + 8], rmw=True, extra_wr=[A_[2 * q + 8]]))
        for q in range(8): E(valu('v_accvgpr_write_b32', Odst[8 * tau + q], A_[2 * q]))
    E(nop(1)); E(raw(f"s_setpc_b64 {sRET}"))
    return p

def slow_pathS(L, hd, Q, Odst, b2):
    p = Prog(); E = p.emit
    ob = 48; kv = None
    if isinstance(b2, tuple): b2, ob = b2
    if isinstance(Odst, tuple):
        OFf, kv = Odst
        class _D:
            def __getitem__(s_, i): return OFf(i // 8)[i % 8]
        Odst = _D()
    O = v(ob, 64); S = v(b2, 16); P = v(b2 + 16, 8); F = v(b2 + 24, 16)
    vK, vV, t0, t1 = [v(b2 + 40 + i) for i in range(4)]
    vM = [v(b2 + 44), v(b2 + 45)]; vL = [v(b2 + 46), v(b2 + 47)]
    sB, sJ, sO = s(98), s(99), s(97)
    E(I(".p2align 2", 'label')); E(label(L))
    E(nop(7)); E(nop(7))
    E([valu('v_lshrrev_b32', t0, 4, vLANE16), valu('v_and_b32', t1, 15, t0), valu('v_lshrrev_b32', t0, 4, t0),
       valu('v_lshlrev_b32', vK, 8, t1), valu('v_lshl_add_u32', vK, t0, 4, vK),
       valu('v_lshlrev_b32', vV, 1, t1), valu('v_lshl_add_u32', vV, t0, 10, vV)])
    if kv is not None: E(smov(sB, kv))
    else: E([mul(sB, sROLE, 3), add(sB, sB, hd), shr(sB, sB, 1), shl(sB, sB, 19), add(sB, sB, 1536 * 256)])
    def qk():
        for T in range(2):
            E(add(sO, sB, sJ)) if T == 0 else E(add(sO, sO, 4096))
            for t in range(4): E(bload('buffer_load_dwordx4', F.sub(4 * t, 4), vK, sK, sO, t * 64))
            E(waitvm(0))
            for t in range(4):
                for g_ in range(2):
                    D_ = S.sub(8 * T + 4 * g_, 4)
                    E(mfma(D_, F.sub(4 * t, 4), Q.sub(8 * t + 4 * g_, 4), 0 if t == 0 else D_))
            E(nop(7)); E(nop(3))
    def allq(x, op):
        for sw in ('v_permlane16_swap_b32', 'v_permlane32_swap_b32'):
            E(valu('v_mov_b32', t0, x)); E(valu(sw, x, t0, rmw=True, extra_wr=[t0])); E(valu(op, x, x, t0))
    for g_ in range(2): E(valu('v_mov_b32', vM[g_], 0xff800000))
    E(smov(sJ, 0))
    E(label(L + "_a"))
    qk()
    for T in range(2):
        for g_ in range(2):
            for i in (0, 2): E(valu('v_max3_f32', vM[g_], vM[g_], S[8 * T + 4 * g_ + i], S[8 * T + 4 * g_ + i + 1]))
    E(add(sJ, sJ, 8192)); E(salu('s_cmp_lt_u32', None, sJ, 16 * 8192)); E(raw(f"s_cbranch_scc1 {L}_a"))
    for g_ in range(2): allq(vM[g_], 'v_max_f32')
    for i in range(64): E(valu('v_mov_b32', O[i], 0))
    for g_ in range(2): E(valu('v_mov_b32', vL[g_], 0))
    E(smov(sJ, 0))
    E(label(L + "_b"))
    qk()
    for i in range(16): E(valu('v_sub_f32', S[i], S[i], vM[(i >> 2) & 1]))
    for i in range(16): E(valu('v_exp_f32', S[i], S[i]))
    for i in range(16): E(valu('v_add_f32', vL[(i >> 2) & 1], vL[(i >> 2) & 1], S[i]))
    for g_ in range(2):
        for T in range(2):
            for k in range(2): E(valu('v_cvt_pk_bf16_f32', P[4 * g_ + 2 * T + k], S[8 * T + 4 * g_ + 2 * k], S[8 * T + 4 * g_ + 2 * k + 1]))
    for tp in range(4):
        for jh in range(2):
            E(add(sO, sB, sJ)) if jh == 0 else E(add(sO, sO, 4096))
            for tq in range(2):
                for jl in range(4):
                    j = 4 * jh + jl
                    E(bload('buffer_load_ushort', F[8 * (j & 1) + 4 * tq + j // 2], vV, sV, sO, jl * 256 + (2 * tp + tq) * 32))
        E(waitvm(0))
        for i in range(8): E(valu('v_lshl_or_b32', F[i], F[8 + i], 16, F[i]))
        for tq in range(2):
            for g_ in range(2):
                D_ = O.sub(8 * (2 * tp + tq) + 4 * g_, 4)
                E(mfma(D_, F.sub(4 * tq, 4), P.sub(4 * g_, 4), D_))
        E(nop(7))
    E(add(sJ, sJ, 8192)); E(salu('s_cmp_lt_u32', None, sJ, 16 * 8192)); E(raw(f"s_cbranch_scc1 {L}_b"))
    E(nop(7)); E(nop(3))
    for g_ in range(2): allq(vL[g_], 'v_add_f32')
    for g_ in range(2): E(valu('v_rcp_f32', vL[g_], vL[g_]))
    for i in range(64): E(valu('v_mul_f32', O[i], O[i], vL[(i >> 2) & 1]))
    for kk in range(4):
        for g_ in range(2):
            for T in range(2):
                for c in range(2):
                    r = 8 * (2 * kk + T) + 4 * g_ + 2 * c
                    E(valu('v_cvt_pk_bf16_f32', O[r], O[r], O[r + 1])); E(valu('v_accvgpr_write_b32', Odst[8 * kk + 4 * g_ + 2 * T + c], O[r]))
    E(nop(1)); E(raw(f"s_setpc_b64 {sRET}"))
    return p

NREP = 6
ABN = 4096
BAL2 = [10, 11, 22, 13, 14, 21, 12, 17, 15, 19]; BALM = [63, 63, 63, 63, 63, 63, 16, 63, 18, 63]; BAL3 = [28, 29, 23, 30, 31, 24, 32, 33, 34, 35]
sMD2 = s(84)
def rep_addr(kind, dst, t):
    return [shl(sT2, sRB, 14), add(sT2, sT2, CTRL + 2048), add(sT3, sROLE, NS - NA), shl(sT3, sT3, 2), add(sT2, sT2, sT3),
            salu('s_cmp_eq_u32', None, sWAVE, 0), csel(sT2, sT2, OOB),
            valu('v_lshlrev_b32', dst, 3, vLANE16), valu('v_add_u32', dst, sT2, dst), valu('v_mov_b32', t, OOB),
            raw(f"v_cmp_gt_u32 vcc, {hex(NA * NREP * 16)}, {vLANE16}", 'valu', wr=['vcc'], rd=[vLANE16]), valu('v_cndmask_b32', dst, t, dst, 'vcc')]
vCR = v(31)
def add_signals(R):
    P2 = [k for k, st in enumerate(R.stages) if st.name.startswith('P2')]
    def sig(first):
        def f():
            out = [valu('v_add_u32', vPRG, 1, vPRG)]
            return out + [bstore('buffer_store_dword', vPRG, vCT, sWS, 0, flags='sc1')]
        return f
    def sig7():
        return [valu('v_add_u32', vPRG, 1, vPRG), bstore('buffer_store_dword', vPRG, vCR, sWS, 0, flags='sc1'), bstore('buffer_store_dword', vPRG, vCT, sWS, 0, flags='sc1')]
    def chain(stages, base):
        firsts = [k for k in stages if R.stages[k].sub == 0]
        for c in range(8):
            k = firsts[c + 1] + CFG.get('siglag', {}).get(R.kind, 2)
            if k > stages[-1]: break
            R.stages[k].cover_st = base + c; R.stages[k].post_bar = sig(c == 0)
            if c == 7 and CFG.get('rep') and R.kind in 'FM': R.stages[k].post_bar = sig7
        if CFG.get('rep') and R.kind in 'FM': R.pf.setdefault(firsts[1], []).append(lambda: rep_addr(R.kind, vCR, vPF))
    chain(P2, 0)
    R.stages[P2[0]].post_bar = lambda: [valu('v_mov_b32', vPRG, 0)]

LDSC = 4 * SLOT
sAB = s(72, 2); sRM = s(74, 2); sCD = s(98, 2)
sRS, sRF, sSP, sC, sI, sPB, sPART, sOK, sPAR, sXW, sPWv, sTO = s(78), s(79), s(71), s(80), s(81), s(82), s(47), s(40), s(41), s(59), s(3), s(58)
sIT = [s(42), s(44), s(45)]; sXP = [s(46), s(60), s(61)]
sRET2 = s(66, 2)
vP, vD, vA, vO, vXO, vL4, vDO, vLA, vIT, vLD, vSC = [v(16 + i) for i in range(11)]
vX4 = v(28)
def s64(op, d, *src, scc_r=False): return salu(op, d, *src, scc_r=scc_r)
sPV = s(85)
def red_setup(kind):
    o = [shl(sPB, sRB, 14), add(sPB, sPB, CTRL), salu('s_cmp_eq_u32', None, sWAVE, 0), csel(sT3, 0, OOB),
         valu('v_lshrrev_b32', vL4, 2, vLANE16), valu('v_add_u32', vL4, sT3, vL4),
         valu('v_mov_b32', vSC, OOB), add(sT2, sT3, 4 * NPART), raw(f"v_writelane_b32 {vSC}, {sT2}, 0", 'valu', wr=[vSC], rd=[sT2, vSC]),
         valu('v_mov_b32', vS1, vSC), valu('v_min_u32', vL5, NPART * 16, vLANE16), valu('v_lshrrev_b32', vL5, 2, vL5), valu('v_add_u32', vL5, sT3, vL5),
         add(sT2, sT3, 252), raw(f"v_writelane_b32 {vSC}, {sT2}, 1", 'valu', wr=[vSC], rd=[sT2, vSC]),
         shl(sT2, sRB, 4), add(sT2, sT2, sT3), valu('v_mov_b32', vDO, 256), raw(f"v_writelane_b32 {vDO}, {sT2}, 0", 'valu', wr=[vDO], rd=[sT2, vDO])]
    if kind == 'A': o += [shl(sPV, sROLE, 7), add(sPV, sPV, 256), add(sPV, sPV, sPB)]
    if CFG.get('abn'): o += [shl(sAV_, sROLE, 8), add(sAV_, sAV_, ABN), add(sAV_, sAV_, sPB)]
    return o
vS1, vL5 = v(29), v(30)
sAV_ = s(76 + 1); vP2 = v(31)
def ab_load(): return bload('buffer_load_dword', vP2, vL4, sWS, sAV_, flags='sc1')
def ab_eval():
    return [raw(f"v_cmp_ne_u32 vcc, 0, {vP2}", 'valu', wr=['vcc'], rd=[vP2]), nop(1), raw(f"s_mov_b32 {sAB[0]}, vcc_lo", 'salu', wr=[sAB[0]], rd=['vcc']), raw(f"s_and_b32 {sAB[1]}, vcc_hi, 15", 'salu', wr=[sAB[1]], rd=['vcc'])]
PRIV = [False]
def red_poll(shared=False):
    cnt = [valu('v_mov_b32', vD, 0), I(f"buffer_atomic_add {vD}, {vDO}, {sDBG}, 0 offen sc0 sc1", 'vload', wr=vD.regs(), rd=vD.regs() + vDO.regs() + sDBG.regs(), units=3)]
    if PRIV[0] and not shared:
        return [cnt, [bstore('buffer_store_dword', vS1, vS1, sWS, sPV, flags='sc1'), bload('buffer_load_dword', vP, vL5, sWS, sPV, flags='sc1')]]
    return [cnt, [bstore('buffer_store_dword', vSC, vSC, sWS, sPB, flags='sc1'), bload('buffer_load_dword', vP, vL4, sWS, sPB, flags='sc1')]]
vG = [v(28), v(29), v(30)]; vGA = v(31); vGP = v(27)
def l2pf_setup():
    return [valu('v_lshrrev_b32', vGP, 7, vLANE16), smov(sT2, PSTR()), valu('v_mul_lo_u32', vGA, vGP, sT2),
            valu('v_bfe_u32', vA, vLANE16, 4, 3), valu('v_lshl_add_u32', vGA, vA, 7, vGA), shl(sT2, sWAVE, 10), valu('v_add_u32', vGA, sT2, vGA),
            valu('v_lshlrev_b32', vGP, 2, vGP), valu('v_mov_b32', vA, OOB), smov(sT2, 68), raw(f"v_writelane_b32 {vA}, {sT2}, 0", 'valu', wr=[vA], rd=[vA, sT2])]
def l2pf_poll():
    st = bstore('buffer_store_dword', vA, vA, sWS, sPB, flags='sc1')
    out = [[st]]
    for i in range(3):
        ld = bload('buffer_load_dword', vG[i], vGP, sWS, sPB, 32 * i, flags='sc1'); ld.tag = 'gp'
        out.append([ld])
    return out
def l2pf_issue(R, dlt):
    out = [[add(sI, sROLE, dlt), salu('s_and_b32', sT2, sI, 3), shr(sC, sI, 2), shl(sT3, sRB, 2), add(sT2, sT2, sT3), mul(sSP, sT2, PWAVE),
            shl(sT3, sC, 12), add(sSP, sSP, sT3), valu('v_mov_b32', vO, OOB)]]
    for i in range(3):
        ld = bload('buffer_load_dword', vDUM, vG[i], sWS, sT2); ld.tag = 'pf'
        cmp_ = raw(f"v_cmp_lt_u32 vcc, {sC}, {vG[i]}", 'valu', wr=['vcc'], rd=[sC, vG[i]])
        pre = [cmp_]
        if i == 2: pre += [raw("s_and_b64 vcc, vcc, 0xff", 'salu', wr=['vcc'], rd=['vcc'])]
        out.append(pre + [add(sT2, sSP, 8 * i * PSTR()), valu('v_cndmask_b32', vG[i], vO, vGA, 'vcc'), ld])
    return out
def red_eval():
    o = [raw(f"v_cmp_ne_u32 vcc, 0, {vP}", 'valu', wr=['vcc'], rd=[vP]), nop(1),
         raw(f"s_lshr_b64 {sAB}, vcc, {NPART + 1}", 'salu', wr=[sAB], rd=['vcc']), salu('s_and_b32', sAB[1], sAB[1], 15), smov(sRS, 0), smov(sRF, 0)]
    for c in range(9):
        o += [raw(f"v_cmp_ge_u32 vcc, {c}, {vP}", 'valu', wr=['vcc'], rd=[vP]), nop(1),
              raw(f"s_and_b32 {sT2}, vcc_lo, {hex((1 << NS) - 1)}", 'salu', wr=[sT2], rd=['vcc']), csel(sRS, sRS, 4 * (c + 1)),
              raw(f"s_and_b32 {sT2}, vcc_lo, {hex((1 << NPART) - (1 << NS))}", 'salu', wr=[sT2], rd=['vcc']), csel(sRF, sRF, 4 * (c + 1))]
    return o
def red_pub(par):
    return [shl(sT2, sRF, 8), salu('s_or_b32', sT2, sT2, sRS), shl(sT3, sTO, 16), salu('s_or_b32', sT2, sT2, sT3),
            valu('v_mov_b32', vIT, sT2), valu('v_mov_b32', vLA, par), raw(f"ds_write_b32 {vLA}, {vIT}", 'other', rd=[vLA, vIT]), waitlg(0)]
def red_get(par):
    return [valu('v_mov_b32', vLA, par), raw(f"ds_read_b32 {vIT}, {vLA}", 'ds', wr=[vIT], rd=[vLA]), waitlg(0),
            valu('v_readfirstlane_b32', sT2, vIT), salu('s_and_b32', sRS, sT2, 255), salu('s_bfe_u32', sRF, sT2, (8 << 16) | 8), shr(sTO, sT2, 16)]
def red_early(p, n):
    E = p.emit
    E([smov(sRS, 0), smov(sRF, 0), smov(sOK, 0), smov(sTO, 0), smov(sPAR, LDSC + 4), nop(1)])
    E(salu('s_cmp_eq_u32', None, sWAVE, 0)); E(raw(f"s_cbranch_scc0 L_{n}_e2"))
    E(waitvm(p.vm_wait_for(lambda t: t == 'poll')))
    E(valu('v_readfirstlane_b32', sOK, vD))
    E(salu('s_cmp_ge_u32', None, sOK, 16)); E(raw(f"s_cbranch_scc0 L_{n}_e1"))
    E(red_eval())
    E(label(f"L_{n}_e1"))
    E(red_pub(LDSC))
    E(label(f"L_{n}_e2"))

def ld_part(L, ks, flags):
    out = []
    for k in ks:
        out.append([add(sT2, sPART, k * PSTR()), bload('buffer_load_dwordx4', v(L + 4 * k, 4), vLD, sWS, sT2, flags=flags)])
    return out
def ld_x(L, sXO_):
    if CFG.get('nox'): return [[valu('v_mov_b32', vA, OOB), bload('buffer_load_dwordx2', v(L + 4 * NPART, 2), vA, sX, sXO_)], [bload('buffer_load_dwordx2', v(L + 4 * NPART + 2, 2), vA, sX, sXO_, 32)]]
    return [[bload('buffer_load_dwordx2', v(L + 4 * NPART, 2), vXO, sX, sXO_)], [bload('buffer_load_dwordx2', v(L + 4 * NPART + 2, 2), vXO, sX, sXO_, 32)]]
RB_ = 48
sD0, sD1 = s(68), s(69)
def proc_sum(E, L, ks, after, loads):
    SA, FA, T = RB_, RB_ + 8, RB_ + 16
    issued = 0; ks = list(ks)
    E(smov(sT3, 0xffff0000))
    for j, k in enumerate(ks):
        if loads: E(loads.pop(0)); issued += 1
        E(waitvm(len(ks) - 1 - j + after + issued))
        acc = SA if k < NS else FA
        for q in range(4):
            x = v(L + 4 * k + q)
            if k in (0, NS):
                E(valu('v_lshlrev_b32', v(acc + 2 * q), 16, x)); E(valu('v_and_b32', v(acc + 2 * q + 1), sT3, x))
            else:
                E(valu('v_dot2c_f32_bf16', v(acc + 2 * q), sD0, x, rmw=True)); E(valu('v_dot2c_f32_bf16', v(acc + 2 * q + 1), sD1, x, rmw=True))
    return issued
def proc_fin(E, L, sXO_, xwait, loads):
    SA, FA, T = RB_, RB_ + 8, RB_ + 16; XR = L + 4 * NPART; issued = 0
    for e in range(8): E(valu('v_exp_f32', v(T + e), v(FA + e)))
    for e in range(8): E(valu('v_add_f32', v(T + e), 1.0, v(T + e)))
    while len(loads) > 1: E(loads.pop(0)); issued += 1
    for e in range(8): E(valu('v_rcp_f32', v(T + e), v(T + e)))
    for e in range(8): E(valu('v_mul_f32', v(FA + e), f2u(-math.log(2.0)), v(FA + e)))
    for e in range(8): E(valu('v_mul_f32', v(FA + e), v(FA + e), v(T + e)))
    while loads: E(loads.pop(0)); issued += 1
    if xwait is not None: E(waitvm(xwait + issued))
    for q in range(4):
        E(valu('v_lshlrev_b32', v(T + 2 * q), 16, v(XR + q))); E(valu('v_and_b32', v(T + 2 * q + 1), sT3, v(XR + q)))
    for e in range(8): E(valu('v_fma_f32', v(T + e), v(SA + e), v(FA + e), v(T + e)))
    for q in range(4): E(valu('v_cvt_pk_bf16_f32', v(XR + q), v(T + 2 * q), v(T + 2 * q + 1)))
    if CFG.get('out4', True):
        def dpp(d, src, bank): return I(f"v_mov_b32_dpp {d}, {src} row_ror:8 row_mask:0xf bank_mask:{bank}", 'perm', wr=d.regs(), rd=src.regs() + d.regs())
        for i in range(2): E(valu('v_permlane16_swap_b32', v(XR + i), v(XR + 2 + i), rmw=True, extra_wr=[v(XR + 2 + i)]))
        for i in range(2): E(valu('v_mov_b32', v(T + i), v(XR + i)))
        for i in range(2): E(dpp(v(XR + i), v(XR + 2 + i), '0xc'))
        for i in range(2): E(dpp(v(XR + 2 + i), v(T + i), '0x3'))
        E(bstore('buffer_store_dwordx4', v(XR, 4), vX4, sOUT, sXO_, flags=CFG.get('oflags', 'sc1')))
        E(valu('v_mov_b32', vO, OOB)); E(bstore('buffer_store_dword', vO, vO, sOUT, 0))
        return
    E(bstore('buffer_store_dwordx2', v(XR, 2), vXO, sOUT, sXO_)); E(bstore('buffer_store_dwordx2', v(XR + 2, 2), vXO, sOUT, sXO_, 32))
def proc_all(E, L, sXO_, pre, loads):
    loads = list(loads)
    n = proc_sum(E, L, range(NPART), 2 + pre, loads)
    proc_fin(E, L, sXO_, pre + n, loads)

def acc_part(E, L, k):
    acc = RB_ if k < NS else RB_ + 8
    for q in range(4):
        x = v(L + 4 * k + q)
        if k in (0, NS):
            E(valu('v_lshlrev_b32', v(acc + 2 * q), 16, x)); E(valu('v_and_b32', v(acc + 2 * q + 1), sT3, x))
        else:
            E(valu('v_dot2c_f32_bf16', v(acc + 2 * q), sD0, x, rmw=True)); E(valu('v_dot2c_f32_bf16', v(acc + 2 * q + 1), sD1, x, rmw=True))
def stream(E, segs, hooks=None):
    W = CFG.get('rwin', 8); FL = CFG.get('fflags', 'sc1')
    seq = []
    for (L, sP, sX_, ks, wx, fin) in segs:
        if wx:
            for it in ld_x(L, sX_): seq.append((it, None))
        ks = list(ks)
        for j, k in enumerate(ks):
            it = [add(sT2, sP, k * PSTR()), bload('buffer_load_dwordx4', v(L + 4 * k, 4), vLD, sWS, sT2, flags=FL)]
            last = fin and j == len(ks) - 1
            seq.append((it, (lambda L=L, k=k, last=last, sX_=sX_: (acc_part(E, L, k), proc_fin(E, L, sX_, None, []) if last else None, last)[2])))
    E(smov(sT3, 0xffff0000))
    n = len(seq); issued = 0
    extra_at = []
    for c in range(n):
        while issued < min(n, c + W): E(seq[issued][0]); issued += 1
        if hooks and c in hooks:
            for _ in range(hooks[c](issued + sum(1 for e in extra_at))): extra_at.append(issued)
            E(smov(sT3, 0xffff0000))
        if seq[c][1] is None: continue
        E(waitvm(issued - 1 - c + sum(1 for e in extra_at if e > c)))
        if seq[c][1]():
            extra_at += [issued, issued]

def body_items(E, n, its, two, ni, ensure, refresh, done, ST, seg, final_flag, poll_hook, LATE, L0, L1, FOUR, sMID, offs, sPT):
    E(salu('s_min_u32', sT2, sRS, sRF)); E(salu('s_cmp_lt_u32', None, its[two - 1], sT2)); E(raw(f"s_cbranch_scc0 L_{n}_sl"))
    ST(its[0])
    AB = CFG.get('abn')
    def ab_hook(_): E(ab_load()); return 1
    hooks = {(NPART + 2) * two - CFG.get('pollat', 8): poll_hook}
    if AB:
        if ni < 3: hooks = {}
        hooks[14 if LATE else 4] = ab_hook
    if LATE: hooks[CFG.get('flagat', 3) if n == 'A' else 0] = final_flag
    stream(E, [seg(0, L0), seg(1, L1)][:two], hooks)
    ST(51)
    E(raw(f"s_branch L_{n}_j"))
    E(label(f"L_{n}_sl"))
    if LATE and two == 2 and CFG.get('mid1', 1):
        E(salu('s_min_u32', sT2, sRS, sRF)); E(salu('s_cmp_lt_u32', None, its[0], sT2)); E(raw(f"s_cbranch_scc0 L_{n}_s0"))
        ST(52)
        stream(E, [seg(0, L0)], {CFG.get('flagat', 3): final_flag, 12: poll_hook}); done(its[0])
        refresh(2); ensure(its[1], 1, 1)
        stream(E, [seg(1, L1)], {11: poll_hook, 3: ab_hook} if AB else {11: poll_hook})
        E(raw(f"s_branch L_{n}_j"))
        E(label(f"L_{n}_s0"))
    if LATE: final_flag(0)
    for i in range(two):
        ensure(its[i], 1, 1)
        hk = {11: poll_hook} if (i == two - 1 and not (AB and ni < 3)) else {}
        if AB and i == two - 1: hk[4] = ab_hook
        stream(E, [seg(i, L0)], hk); done(its[i])
    E(label(f"L_{n}_j"))
    for i in range(two): done(its[i])
    if FOUR or ((CFG.get('asg') == 3 or CFG.get('bal')) and n == 'A'):
        E(salu('s_cmp_gt_u32', None, sMID, 35)); E(raw(f"s_cbranch_scc1 L_{n}_nm"))
        refresh(2)
        ensure(sMID, 1, 1); ST(sMID)
        E(offs(sMID, sXP[0]))
        stream(E, [seg(0, L1)], {13: poll_hook}); done(sMID)
        E(label(f"L_{n}_nm"))
    def warm():
        if not CFG.get('warm', 1): return
        E(valu('v_mov_b32', v(240), vLD)); E(valu('v_mov_b32', v(241), vX4)); E(valu('v_mov_b32', vLD, OOB)); E(valu('v_mov_b32', vX4, OOB))
        E(raw(f"s_call_b64 {sRET2}, L_{n}_ft"))
        E(valu('v_mov_b32', vLD, v(240))); E(valu('v_mov_b32', vX4, v(241)))
    if ni == 3:
        if CFG.get('asg') == 3:
            E(salu('s_cmp_lt_u32', None, its[2], 36)); E(raw(f"s_cbranch_scc1 L_{n}_h3"))
            E(red_poll(True)[1]); E(waitvm(0)); E(raw(f"s_branch L_{n}_fin")); E(label(f"L_{n}_h3"))
        refresh(2, AB and CFG.get('abx', 1))
        if CFG.get('nof'):
            E(salu('s_cmp_gt_u32', None, sMD2, 35)); E(raw(f"s_cbranch_scc1 L_{n}_k1"))
            ensure(sMD2, 1, 1); E(offs(sMD2, sXP[0])); ST(sMD2)
            E(salu('s_cmp_lt_u32', None, its[2], sRS)); E(raw(f"s_cbranch_scc0 L_{n}_k0"))
            E(salu('s_cmp_lt_u32', None, its[2], sRF)); E(raw(f"s_cbranch_scc1 L_{n}_k0"))
            warm()
            stream(E, [seg(0, L1), seg(2, L0, range(NS), True, False)], {20: poll_hook.sh}); done(sMD2)
            E(raw(f"s_branch L_{n}_k2"))
            E(label(f"L_{n}_k0"))
            stream(E, [seg(0, L1)], {11: poll_hook}); done(sMD2)
            refresh(2)
            E(label(f"L_{n}_k1"))
        ensure(its[2], 1, 0); ST(its[2])
        E(salu('s_cmp_lt_u32', None, its[2], sRF)); E(raw(f"s_cbranch_scc1 L_{n}_f3"))
        if CFG.get('rep') and n == 'A':
            warm()
            stream(E, [seg(2, L0, range(NS), True, False)], {4: poll_hook.sh})
            E(label(f"L_{n}_k2"))
            E(salu('s_cmp_eq_u32', None, sWAVE, 0)); E(raw(f"s_cbranch_scc0 L_{n}_w2"))
            E(waitvm(0))
            E(raw(f"v_cmp_ne_u32 vcc, 0, {vP}", 'valu', wr=['vcc'], rd=[vP])); E(nop(1))
            E(raw(f"s_lshr_b64 {sAB}, vcc, {NPART + 1}", 'salu', wr=[sAB], rd=['vcc'])); E(salu('s_and_b32', sAB[1], sAB[1], 15))
            E(salu('s_or_b32', sT2, sAB[0], sAB[1])); E(csel(sRS, 1, 0))
            E(shr(sC, its[2], 2)); E(mul(sI, sROLE, NREP * 128)); E(add(sI, sI, sPB)); E(add(sI, sI, 2048)); E(add(sSP, sI, NREP * 128))
            E(label(f"L_{n}_w0"))
            E(bload('buffer_load_dword', vP, vL5, sWS, sI, flags='sc1')); E(waitvm(0))
            E(raw(f"v_cmp_ge_u32 vcc, {sC}, {vP}", 'valu', wr=['vcc'], rd=[vP, sC])); E(nop(1))
            E(raw(f"s_and_b32 {sT2}, vcc_lo, {hex((1 << NPART) - (1 << NS))}", 'salu', wr=[sT2], rd=['vcc'])); E(csel(sRF, 0, 36))
            E(raw(f"s_cbranch_scc0 L_{n}_w1"))
            E(add(sI, sI, 128)); E(salu('s_cmp_lt_u32', None, sI, sSP)); E(raw(f"s_cbranch_scc0 L_{n}_w1"))
            E(raw(f"s_sleep {CFG.get('rsleep', 6)}")); E(raw(f"s_branch L_{n}_w0"))
            E(label(f"L_{n}_w1")); E(red_pub(sPAR))
            E(label(f"L_{n}_w2")); E(barrier()); E(red_get(sPAR)); E(salu('s_xor_b32', sPAR, sPAR, 12))
            E(smov(sMID, sRS))
            ensure(its[2], 0, 1); ST(50)
            E(raw(f"s_call_b64 {sRET2}, L_{n}_ft")); done(its[2])
            E(salu('s_cmp_eq_u32', None, sMID, 0)); E(raw(f"s_cbranch_scc1 L_{n}_exit")); E(raw(f"s_branch L_{n}_fb"))
            E(label(f"L_{n}_ft"))
            stream(E, [seg(2, L0, range(NS, NPART), False, True)])
            E(raw(f"s_setpc_b64 {sRET2}"))
        else:
            stream(E, [seg(2, L0, range(NS), True, False)], {6: poll_hook})
            refresh(0)
            ensure(its[2], 0, 1); ST(50)
            stream(E, [seg(2, L0, range(NS, NPART), False, True)], {0: poll_hook.sh} if not AB else None)
            E(raw(f"s_branch L_{n}_f4"))
        E(label(f"L_{n}_f3"))
        stream(E, [seg(2, L0)], {11: poll_hook.sh} if not AB else None)
        E(label(f"L_{n}_f4"))
        done(its[2])
        if AB and CFG.get('abx', 1):
            E(salu('s_cmp_eq_u32', None, sMD2, 0)); E(raw(f"s_cbranch_scc1 L_{n}_exit")); E(raw(f"s_branch L_{n}_fb"))


def reducer(kind):
    p = Prog(); E = p.emit; n = kind; FL = CFG.get('fflags', 'sc1')
    PRIV[0] = (kind == 'A')
    def ST(code):
        if CFG['stamps'] != 2: return
        E(raw(f"s_memtime {sSTAMP}", wr=[sSTAMP])); E(raw("s_waitcnt lgkmcnt(0)")); E(salu('s_sub_u32', s(98), s(98), s(100)))
        E(shl(s(98), s(98), 6)); E(salu('s_or_b32', s(98), s(98), code))
        E(add(s(97), s(97), 16)); E(salu('s_min_u32', s(97), s(97), 11 * 16))
        E(raw(f"v_cmp_eq_u32 vcc, s97, {vLANE16}", 'valu', wr=['vcc'], rd=[s(97), vLANE16])); E(valu('v_mov_b32', v(27), s(98)))
        E(valu('v_cndmask_b32', vSTAMP, vSTAMP, v(27), 'vcc'))
    def offs(item, sX_):
        return [salu('s_and_b32', sT2, item, 3), shr(sC, item, 2), shl(sT3, sRB, 2), add(sT2, sT2, sT3), mul(sPART, sT2, PWAVE), add(sX_, sPART, sXW),
                shl(sT3, sC, 12), add(sT3, sT3, sPWv), add(sPART, sPART, sT3), shl(sT3, sC, 7), add(sX_, sX_, sT3)]
    k_ = [0]
    def ensure(item, s_, f_):
        L = f"L_{n}_en{k_[0]}"; k_[0] += 1
        if s_ and f_: E(salu('s_min_u32', sT2, sRS, sRF)); r = sT2
        else: r = sRS if s_ else sRF
        E(salu('s_cmp_lt_u32', None, item, r)); E(raw(f"s_cbranch_scc1 {L}"))
        E(smov(sI, item)); E(smov(sC, (1 if s_ else 0) | (2 if f_ else 0)))
        E(raw(f"s_call_b64 {sRET2}, L_{n}_sync"))
        E(salu('s_cmp_eq_u32', None, sTO, 0)); E(raw(f"s_cbranch_scc0 L_{n}_fb"))
        E(label(L))
    def done(item): E(raw(f"s_bitset0_b64 {sRM}, {item}", 'salu', wr=[sRM], rd=[sRM, item]))
    E(label(f"L_{n}_red"))
    if CFG.get('rdelay'):
        if n == 'A': (E(waitvm(0)), E(barrier()), E(valu('v_mov_b32', vPRG, 9)), E(bstore('buffer_store_dword', vPRG, vCT, sWS, 0, flags='sc1')))
        for _ in range({'A': 30, 'M': 24, 'F': 14}[n]): E(raw("s_sleep 16"))
    E(red_get(LDSC))
    if CFG.get('rdelay'): E(smov(sRS, 36)); E(smov(sRF, 36))
    E(valu('v_lshrrev_b32', vO, 4, vLANE16)); E(valu('v_and_b32', vXO, 7, vO)); E(valu('v_lshlrev_b32', vLD, 4, vXO))
    E(smov(sT2, 1152)); E(valu('v_mul_u32_u24', vXO, sT2, vXO))
    E(valu('v_lshrrev_b32', vA, 3, vO)); E(valu('v_lshl_add_u32', vX4, vA, 4, vXO))
    E(valu('v_bfe_u32', vA, vO, 3, 2)); E(valu('v_lshl_add_u32', vXO, vA, 3, vXO)); E(valu('v_lshl_add_u32', vLD, vA, 8, vLD))
    E(valu('v_lshrrev_b32', vA, 5, vO)); E(valu('v_lshl_add_u32', vXO, vA, 6, vXO)); E(valu('v_lshl_add_u32', vLD, vA, 11, vLD))
    E(mul(sXW, sWAVE, 8 * 1152)); E(shr(sPWv, sWAVE, 1)); E(shl(sPWv, sPWv, 10)); E(salu('s_and_b32', sT2, sWAVE, 1)); E(shl(sT2, sT2, 7)); E(add(sPWv, sPWv, sT2))
    L0, L1 = 72, 76 + 4 * NPART
    E(smov(sD0, 0x3f80)); E(smov(sD1, 0x3f800000))
    E(raw(f"s_mov_b64 {sRM}, 0", 'salu', wr=[sRM]))
    FOUR = CFG.get('four')
    sMID = s(48 + 0) if False else s(83)
    def nib(dst, tab, base):
        E(smov(sCD[0], sum(tab[i] << (4 * i) for i in range(8)))); E(smov(sCD[1], tab[8] | (tab[9] << 4)))
        E(shl(sT2, sROLE, 2)); E(s64('s_lshr_b64', sCD, sCD, sT2)); E(salu('s_and_b32', dst, sCD[0], 15))
        E(salu('s_cmp_eq_u32', None, dst, 15)); E(csel(dst, 63 - base, dst)); E(add(dst, dst, base))
    if n == 'A':
        E(smov(sIT[0], sROLE)); E(add(sIT[1], sROLE, NA))
        if CFG.get('bal'):
            nib(sIT[1], [x - 10 for x in BAL2], 10); nib(sIT[2], [x - 21 for x in BAL3], 21); nib(sMID, [min(x - 16, 15) for x in BALM], 16)
            E(raw(f"s_bitset1_b64 {sRM}, {sMID}", 'salu', wr=[sRM], rd=[sRM, sMID]))
        elif CFG.get('asg') == 2: E(add(sIT[2], sROLE, 16))
        elif CFG.get('asg') == 3:
            E(add(sMID, sROLE, 16)); E(raw(f"s_bitset1_b64 {sRM}, {sMID}", 'salu', wr=[sRM], rd=[sRM, sMID]))
            E(salu('s_and_b32', sT2, sROLE, 1)); E(shr(sIT[2], sROLE, 1)); E(add(sIT[2], sIT[2], 24)); E(salu('s_cmp_eq_u32', None, sT2, 0)); E(csel(sIT[2], sIT[2], 63))
        elif CFG.get('l844'): E(add(sIT[2], sROLE, 28))
        elif FOUR:
            nib(sMID, [0, 15, 1, 2, 15, 3, 4, 5, 6, 7], 20); nib(sIT[2], [0, 1, 15, 2, 3, 15, 4, 5, 6, 7], 28)
            E(raw(f"s_bitset1_b64 {sRM}, {sMID}", 'salu', wr=[sRM], rd=[sRM, sMID]))
        else:
            nib(sIT[2], [0, 1, 15, 2, 3, 15, 4, 5, 6, 7], 28)
            E(salu('s_cmp_eq_u32', None, sROLE, 2)); E(csel(sIT[2], 22, sIT[2])); E(salu('s_cmp_eq_u32', None, sROLE, 5)); E(csel(sIT[2], 21, sIT[2]))
            if CFG.get('nof'):
                nib(sMD2, CFG['nof'], 23)
                E(raw(f"s_bitset1_b64 {sRM}, {sMD2}", 'salu', wr=[sRM], rd=[sRM, sMD2]))
        its = sIT
    elif CFG.get('asg') == 2:
        if n == 'M': E(add(sIT[0], sROLE, 16)); E(add(sIT[1], sROLE, 20)); its = sIT[:2]
        else: E(add(sIT[0], sROLE, 20)); its = sIT[:1]
    elif CFG.get('asg') == 3:
        E(add(sIT[0], sROLE, 20)); its = sIT[:1]
    elif CFG.get('l844'):
        if n == 'M': E(add(sIT[0], sROLE, 8)); E(add(sIT[1], sROLE, 12)); its = sIT[:2]
        else: E(add(sIT[0], sROLE, 12)); its = sIT[:1]
    elif n == 'M': E(smov(sIT[0], 20)); its = sIT[:1]
    else:
        E(add(sIT[0], sROLE, 12)); its = sIT[:1]
    if (FOUR and n != 'A') or (CFG.get('nof') and n == 'F'):
        its = []
        E(waitvm(0)); E(red_poll()[1]); E(waitvm(0)); E(raw(f"s_branch L_{n}_fin"))
    if CFG.get('bal') and n == 'F':
        E(salu('s_cmp_ge_u32', None, sROLE, 13)); E(raw(f"s_cbranch_scc1 L_{n}_hi"))
        E(waitvm(0)); E(red_poll()[1]); E(waitvm(0)); E(raw(f"s_branch L_{n}_fin")); E(label(f"L_{n}_hi"))
    for it in its: E(raw(f"s_bitset1_b64 {sRM}, {it}", 'salu', wr=[sRM], rd=[sRM, it]))
    E(salu('s_and_b32', sRM[1], sRM[1], 15))
    def refresh(wait, ab=False):
        L = f"L_{n}_rf{k_[0]}"; k_[0] += 1
        E(salu('s_cmp_eq_u32', None, sWAVE, 0)); E(raw(f"s_cbranch_scc0 {L}"))
        E(waitvm(wait)); E(red_eval())
        if ab: E(ab_eval()); E(salu('s_or_b32', sT2, sAB[0], sAB[1])); E(csel(sTO, 1, 0))
        E(red_pub(sPAR))
        E(label(L)); E(barrier()); E(red_get(sPAR)); E(salu('s_xor_b32', sPAR, sPAR, 12))
        if ab: E(smov(sMD2, sTO)); E(smov(sTO, 0))
    ALLD = lambda L, sx: ld_part(L, range(NPART), FL) + ld_x(L, sx)
    LATE = n in CFG.get('lateflag', 'A') + CFG.get('pre', '')
    sPT = [s(47), s(67 - 2), s(70)]
    def offs2(i): return offs(its[i], sXP[i]) + ([smov(sPT[i], sPART)] if i else [])
    def final_flag(wait):
        E(waitvm(wait)); E(barrier())
        E(valu('v_mov_b32', vPRG, 9))
        if CFG.get('rep') and n in 'FM': E(bstore('buffer_store_dword', vPRG, vCR, sWS, 0, flags='sc1'))
        E(bstore('buffer_store_dword', vPRG, vCT, sWS, 0, flags='sc1'))
        return 2 if (CFG.get('rep') and n in 'FM') else 1
    def poll_hook(_): E(red_poll()[1]); return 2
    def poll_sh(_): E(red_poll(True)[1]); return 2
    poll_hook.sh = poll_sh
    seg = lambda i, L, ks=range(NPART), wx=True, fin=True: (L, sPT[i], sXP[i], ks, wx, fin)
    ni = len(its)
    for i in reversed(range(ni)): E(offs2(i))
    two = min(ni, 2)
    if ni: body_items(E, n, its, two, ni, ensure, refresh, done, ST, seg, final_flag, poll_hook, LATE, L0, L1, FOUR, sMID, offs, sPT)
    E(label(f"L_{n}_fin"))
    E(salu('s_cmp_eq_u32', None, sWAVE, 0)); E(raw(f"s_cbranch_scc0 L_{n}_b4"))
    if CFG.get('abn'): E(ab_eval())
    else:
        E(waitvm(2))
        E(raw(f"v_cmp_ne_u32 vcc, 0, {vP}", 'valu', wr=['vcc'], rd=[vP])); E(nop(1))
        E(raw(f"s_lshr_b64 {sAB}, vcc, {NPART + 1}", 'salu', wr=[sAB], rd=['vcc'])); E(salu('s_and_b32', sAB[1], sAB[1], 15))
    E(salu('s_or_b32', sT2, sAB[0], sAB[1])); E(csel(sTO, 1, 0))
    E(salu('s_cmp_ge_u32', None, sOK, 16)); E(csel(sTO, sTO, 1)); E(red_pub(sPAR))
    E(label(f"L_{n}_b4")); E(barrier()); E(red_get(sPAR)); E(salu('s_xor_b32', sPAR, sPAR, 12))
    E(salu('s_cmp_eq_u32', None, sTO, 0)); E(raw(f"s_cbranch_scc1 L_{n}_exit"))
    E(label(f"L_{n}_fb"))
    E(waitvm(0))
    E(salu('s_cmp_eq_u32', None, sWAVE, 0)); E(raw(f"s_cbranch_scc0 L_{n}_fb2"))
    if CFG.get('abn'):
        E(raw(f"s_mov_b64 {sCD}, {sRM}", 'salu', wr=[sCD], rd=[sRM])); E(valu('v_mov_b32', vA, 1))
        E(valu('v_lshlrev_b32', vO, 4, vLANE16)); E(valu('v_mov_b32', vIT, OOB))
        E(raw(f"v_cmp_gt_u32 vcc, 0x100, {vLANE16}", 'valu', wr=['vcc'], rd=[vLANE16])); E(valu('v_cndmask_b32', vO, vIT, vO, 'vcc'))
        E(label(f"L_{n}_mk"))
        E(raw(f"s_cmp_eq_u64 {sCD}, 0", 'salu', rd=[sCD])); E(raw(f"s_cbranch_scc1 L_{n}_mk1"))
        E(raw(f"s_ff1_i32_b64 {sT2}, {sCD}", 'salu', wr=[sT2], rd=[sCD])); E(raw(f"s_bitset0_b64 {sCD}, {sT2}", 'salu', wr=[sCD], rd=[sCD, sT2]))
        E(raw(f"s_lshl2_add_u32 {sT2}, {sT2}, {sPB}", 'salu', wr=[sT2], rd=[sT2, sPB])); E(add(sT2, sT2, ABN))
        E(bstore('buffer_store_dword', vA, vO, sWS, sT2, flags='sc1')); E(raw(f"s_branch L_{n}_mk"))
        E(label(f"L_{n}_mk1")); E(waitvm(0))
        E(red_poll()[0]); E(waitvm(0))
        E(valu('v_mov_b32', vO, OOB)); E(smov(sT2, 36 * 4)); E(raw(f"v_writelane_b32 {vO}, {sT2}, 1", 'valu', wr=[vO], rd=[sT2, vO]))
        E(bstore('buffer_store_dword', vA, vO, sWS, sAV_, flags='sc1'))
        E(valu('v_mov_b32', vIT, 0)); E(valu('v_mov_b32', vO, OOB)); E(raw(f"v_writelane_b32 {vO}, 0, 0", 'valu', wr=[vO], rd=[vO]))
        E(I(f"buffer_atomic_add {vIT}, {vO}, {sWS}, {sAV_} offen sc1", 'vstore', rd=vIT.regs() + vO.regs() + sWS.regs() + sAV_.regs(), units=3))
        E(waitvm(0)); E(ab_load()); E(red_poll(True)[1]); E(waitvm(0)); E(valu('v_readfirstlane_b32', sOK, vD)); E(red_eval()); E(ab_eval())
    else:
        E(s64('s_lshl_b64', sCD, sRM, NPART + 1)); E(valu('v_mov_b32', vO, OOB)); E(valu('v_mov_b32', vA, 1))
        E(valu('v_cndmask_b32', vO, vO, vL4, sCD)); E(bstore('buffer_store_dword', vA, vO, sWS, sPB, flags='sc1')); E(waitvm(0))
        E(red_poll()[0]); E(waitvm(0)); E(red_poll(True)[1]); E(waitvm(0)); E(valu('v_readfirstlane_b32', sOK, vD)); E(red_eval())
    E(salu('s_min_u32', sT2, sRS, sRF)); E(salu('s_cmp_ge_u32', None, sOK, 16)); E(csel(sT2, sT2, 0))
    E(salu('s_bfm_b64', sCD, sT2, 0, scc_w=False)); E(s64('s_or_b64', sAB, sAB, sRM)); E(s64('s_and_b64', sAB, sAB, sCD))
    E(label(f"L_{n}_fb1"))
    E(raw(f"s_ff1_i32_b64 {sRS}, {sAB}", 'salu', wr=[sRS], rd=[sAB])); E(salu('s_and_b32', sRS, sRS, 255))
    E(raw(f"s_bitset0_b64 {sAB}, {sRS}", 'salu', wr=[sAB], rd=[sAB, sRS])); E(red_pub(sPAR))
    E(label(f"L_{n}_fb2")); E(barrier()); E(red_get(sPAR)); E(salu('s_xor_b32', sPAR, sPAR, 12))
    E(salu('s_cmp_ge_u32', None, sRS, 36)); E(raw(f"s_cbranch_scc1 L_{n}_exit"))
    E(offs(sRS, sXP[0])); E(ld_part(L0, range(NPART), FL) + ld_x(L0, sXP[0])); E(waitvm(0)); proc_all(E, L0, sXP[0], 0, [])
    E(salu('s_cmp_eq_u32', None, sWAVE, 0)); E(raw(f"s_cbranch_scc1 L_{n}_fb1")); E(raw(f"s_branch L_{n}_fb2"))
    E(label(f"L_{n}_exit"))
    ST(60)
    if CFG['stamps']: E(raw(f"s_setpc_b64 {sRET}"))
    else: E(raw("s_endpgm"))
    E(label(f"L_{n}_sync"))
    E(salu('s_cmp_eq_u32', None, sWAVE, 0)); E(raw(f"s_cbranch_scc0 L_{n}_sy2"))
    E(smov(sSP, 0)); E(red_poll()[1][0])
    E(label(f"L_{n}_sy0"))
    E(salu('s_cmp_ge_u32', None, sOK, 16)); E(raw(f"s_cbranch_scc1 L_{n}_sy1"))
    E(red_poll()[0]); E(waitvm(0)); E(valu('v_readfirstlane_b32', sOK, vD))
    E(salu('s_cmp_ge_u32', None, sOK, 16)); E(raw(f"s_cbranch_scc0 L_{n}_syw"))
    E(label(f"L_{n}_sy1"))
    E(red_poll()[1][1]); E(red_poll()[1][0]); E(waitvm(1)); E(red_eval())
    E(salu('s_bitcmp1_b32', None, sC, 0)); E(csel(sT2, sRS, 36)); E(salu('s_bitcmp1_b32', None, sC, 1)); E(csel(sT3, sRF, 36))
    E(salu('s_min_u32', sT2, sT2, sT3)); E(salu('s_cmp_lt_u32', None, sI, sT2)); E(raw(f"s_cbranch_scc1 L_{n}_syp"))
    E(label(f"L_{n}_syw"))
    E(add(sSP, sSP, 1)); E(salu('s_cmp_gt_u32', None, sSP, CFG.get('spin', 4000))); E(csel(sTO, 1, 0)); E(raw(f"s_cbranch_scc1 L_{n}_syp"))
    E(raw(f"s_sleep {CFG.get('sleep', 1)}")); E(raw(f"s_branch L_{n}_sy0"))
    E(label(f"L_{n}_syp"))
    E(red_pub(sPAR))
    E(label(f"L_{n}_sy2")); E(barrier()); E(red_get(sPAR)); E(salu('s_xor_b32', sPAR, sPAR, 12))
    E(raw(f"s_setpc_b64 {sRET2}"))
    return p

def reduce_items(p, ni, sPART_, sXO_, srdP, srdX, srdO, vL16, vXO_, base, flags, mid=None):
    E = p.emit
    SA = base; FA = base + 8; T = base + 16
    Ls = [base + 24 + 72 * i for i in range(ni)]
    for k in range(NPART):
        if k: E(add(sPART_, sPART_, 16 * PART - (PWAVE if ni == 2 else 0)))
        for i in range(ni):
            if i: E(add(sPART_, sPART_, PWAVE))
            E(bload('buffer_load_dwordx4', v(Ls[i] + 4 * k, 4), vL16, srdP, sPART_, flags=flags))
    for i in range(ni):
        XR = Ls[i] + 68
        if i: E(add(sT2, sXO_, 32 * 1152))
        so = sT2 if i else sXO_
        E(bload('buffer_load_dwordx2', v(XR, 2), vXO_, srdX, so)); E(bload('buffer_load_dwordx2', v(XR + 2, 2), vXO_, srdX, so, 32))
    ex = 0
    if mid: mid(); ex = 1
    E(smov(sT3, 0xffff0000))
    for i in range(ni):
        L = Ls[i]; XR = L + 68
        for k in range(NPART):
            if i == 0: E(waitvm((NPART - 1 - k) * ni + (ni - 1) + 2 * ni + ex))
            acc = SA if k < 11 else FA
            for q in range(4):
                x = v(L + 4 * k + q)
                if k in (0, 11):
                    E(valu('v_lshlrev_b32', v(acc + 2 * q), 16, x)); E(valu('v_and_b32', v(acc + 2 * q + 1), sT3, x))
                else:
                    tp = v(T + 2 * q, 2)
                    E(valu('v_lshlrev_b32', tp[0], 16, x)); E(valu('v_and_b32', tp[1], sT3, x))
            if k not in (0, 11):
                for q in range(4): E(valu('v_pk_add_f32', v(acc + 2 * q, 2), v(acc + 2 * q, 2), v(T + 2 * q, 2)))
        for e in range(8): E(valu('v_exp_f32', v(T + e), v(FA + e)))
        for e in range(8): E(valu('v_add_f32', v(T + e), 1.0, v(T + e)))
        for e in range(8): E(valu('v_rcp_f32', v(T + e), v(T + e)))
        for e in range(8): E(valu('v_mul_f32', v(FA + e), f2u(-math.log(2.0)), v(FA + e)))
        for e in range(8): E(valu('v_mul_f32', v(FA + e), v(FA + e), v(T + e)))
        if i == 0: E(waitvm(ex if ni == 1 else 0))
        for q in range(4):
            E(valu('v_lshlrev_b32', v(T + 2 * q), 16, v(XR + q))); E(valu('v_and_b32', v(T + 2 * q + 1), sT3, v(XR + q)))
        for e in range(8): E(valu('v_fma_f32', v(T + e), v(SA + e), v(FA + e), v(T + e)))
        for q in range(4): E(valu('v_cvt_pk_bf16_f32', v(XR + q), v(T + 2 * q), v(T + 2 * q + 1)))
        if i: E(add(sXO_, sXO_, 32 * 1152))
        E(bstore('buffer_store_dwordx2', v(XR, 2), vXO_, srdO, sXO_)); E(bstore('buffer_store_dwordx2', v(XR + 2, 2), vXO_, srdO, sXO_, 32))

def build_role(kind, vm_before):
    R = Role(kind)
    CFG['shape'] = CFG.get('shapes', {}).get(kind, CFG['shape0'])
    R.ring = {'F': (216, 9), 'A': (192, 16), 'M': (200, 8)}[kind]
    if kind == 'M': R.depth = 7
    nl = CFG.get('pfl', 16)
    MS = CFG['shape'] == 'M'
    if MS:
        R.add_p1_unit, R.add_p1_half, R.epi_silu, R.epi_q = R.add_p1_unitM, R.add_p1_halfM, R.epi_siluM, R.epi_qM
    P2M = 'q16' if MS else 'pi'
    if kind == 'F' and CFG.get('l844'):
        R.ring = (208, 12); R.depth = 7
        for u in range(13): R.add_p1_unit(u, sW1, sHA, sHC, 9216, u == 0, a(16 * u, 16), R.epi_silu, last=(u == 12),
                                          inreg=[pf_run(sW2, sPF2, 832 * 1152, 10) if u >= 1 else None, pf_row('F', sW1)])
        needs = {t: [('reg', 8 * t)] for t in range(26)}
        dm = [dma_w(sW2, sFA, 0, 1152, sFC, 0), dma_w(sW2, sFA, 288 * 1152, 1152, sFC, 288 * 1152), dma_w(sW2, sFA, 576 * 1152, 1152)]
        R.add_p2([(a(0, 208), [288, 288, 256], dm, needs, sSt)], [add(x, x, 128) for x in (sFA, sFC)], pre0=lambda: set_offw(1152, P2M))
        for st in R.stages[-27:]: st.ring = (208, 12, 'restart')
    elif kind == 'M' and CFG.get('l844'):
        R.ring = (208, 8); R.depth = 7
        Q = [a(80, 32), a(112, 32)]; OA = a(144, 64)
        def mpf(u):
            if u == 0: return pf_row('M', sWQ)
            if u == 1: return lambda: pf_row_setup('M', 9216, 18, sPF1, 0) + [pf_row('M', sW1)()[1]]
            if u <= 5: return pf_row('M', sW1)
            return None
        for u in range(4): R.add_p1_unit(u, sWQ, sQA, sQC, 8192, u == 0, a(80 + 16 * u, 16), R.epi_q, key='Q', inreg=[None, mpf(u)])
        for u in range(5): R.add_p1_unit(4 + u, sW1, sHA, sHC, 9216, u == 0, a(16 * u, 16), R.epi_silu, pre=(lambda: set_offw(9216, 'S')) if u == 0 else None,
                                         last=(u == 4), key='H', inreg=[None, mpf(4 + u)])
        Ha = dict(i=0, Q=Q[0], S=Sreg, P=Preg, O=OA, LM=v(230, 8), OF=lambda kk: OA.sub(16 * kk, 8),
                  need_qk=[('acc', 80), ('acc', 96)], need_pv=[('acc', 48 + 16 * i) for i in range(4)])
        Hb = dict(i=1, Q=Q[1], S=[v(80, 16), v(96, 16)], P=[v(48, 8), v(56, 8)], O=v(160, 64), LM=v(64, 8), OF=lambda kk: OA.sub(16 * kk + 8, 8))
        R.add_pa_g([[Ha, Hb]])
        R.stages[-9].mf[-1].need.append(('acc', 48))
        R.heads = [(Ha, sPFa), (Hb, sPFa)]
        R.add_p2m(a(0, 80), [H['OF'](kk) for H in (Ha, Hb) for kk in range(4)],
                  [dma_w(sW2, sFA, 0, 1152, sFC, 0), dma_w(sWO, sOA, 0, 1152, sFC, 32 * 1152, srdC=sW2)],
                  [add(x, x, 128) for x in (sOA, sFA, sFC)], pre0=lambda: set_offw(1152, P2M))
        for st in R.stages[-18:]: st.ring = (208, 12, 'restart')
        k = pf_sched(R, 15, sK, sPFa, 131072, 16); k = pf_sched(R, k, sV, sPFa, 131072, 16)
        pf_sched(R, 17, sWO, sPFc, 256 * 1152, 36); pf_sched(R, 18, sW2, sPF2, 320 * 1152, 45)
    elif kind == 'F':
        for u in range(13): R.add_p1_unit(u, sW1, sHA, sHC, 9216, u == 0, a(16 * u, 16), R.epi_silu, last=(u == 12), inreg=[pf_run(sW2, sPF2, 832 * 1152, 10) if u >= 1 else None, pf_row('F', sW1) if CFG['pf'] >= 3 else None] if CFG['pf'] else None)
        R.add_p1_half(13, a(208, 8))
        needs = {t: [('reg', 8 * t)] for t in range(27)}
        dm = [dma_w(sW2, sFA, 0, 1152, sFC, 0), dma_w(sW2, sFA, 288 * 1152, 1152, sFC, 288 * 1152), dma_w(sW2, sFA, 576 * 1152, 1152, sFS, 0)]
        R.add_p2([(a(0, 216), [288, 288, 288], dm, needs, sSt)], [add(x, x, 128) for x in (sFA, sFC, sFS)], pre0=lambda: set_offw(1152, P2M))
        if CFG['pf']:
            pf_sched(R, 26, sW2, sPF2h, 32 * 1152, 8)
    elif kind == 'A' and CFG.get('pair'):
        OA = a(96, 64)
        Ha = dict(i=0, Q=a(0, 32), S=Sreg, P=Preg, O=OA, LM=v(230, 8), OF=lambda kk: OA.sub(16 * kk, 8),
                  need_qk=[('acc', 48), ('acc', 64)], need_pv=[('acc', 48 + 16 * i) for i in range(4)])
        Hb = dict(i=1, Q=a(32, 32), S=[v(48, 16), v(64, 16)], P=[v(80, 8), v(88, 8)], O=v(160, 64), LM=v(96, 8), OF=lambda kk: OA.sub(16 * kk + 8, 8))
        Hc = dict(i=2, Q=a(64, 32), S=Sreg, P=Preg, O=v(48, 64), LM=v(16, 8), OF=lambda kk: a(160 + 8 * kk, 8), need_pv=[('lm', 0)])
        Ha['need_qk'] += [('acc', 80)]
        pj = {1: sJQ}
        for u in range(6):
            R.add_p1_unit(u, sWQ, sQA, sQC, 8192, u == 0, a(16 * u, 16), R.epi_q, last=(u == 5), step=sJQ if u == 4 else 128,
                          inreg=[pf_run(sWO, sPFc, 384 * 1152, 11) if u >= 1 else None, pf_row('A', sWQ, pj.get(u, 128)) if CFG['pf'] >= 3 and u < 3 else None] if CFG['pf'] else None)
        R.add_pa_g([[Ha, Hb], [Hc]])
        Bf = [H['OF'](kk) for H in (Ha, Hb, Hc) for kk in range(4)]
        needs = {0: [('fin', 0), ('fin', 1)], 8: [('fin', 2)]}
        dm = [dma_w192(sWO, 0), dma_w192(sWO, 0, sOA1, sOB1)]
        R.add_p2([(Bf, [192, 192], dm, needs, sSt)], [add(x, x, 128) for x in (sOA, sOB, sOA1, sOB1)], pre0=lambda: set_offw(1152, P2M))
        R.heads = [(Ha, sPFa), (Hb, sPFa), (Hc, sPFb)]
        if CFG['pf'] >= 2:
            pf_sched(R, 10, sK, sPFa, 131072, 16); pf_sched(R, 10, sV, sPFa, 131072, 16)
            pf_sched(R, 12, sK, sPFb, 131072, 16); pf_sched(R, 12, sV, sPFb, 131072, 16)
    elif kind == 'A':
        Q = [a(32 * e, 32) for e in range(3)]; O = [a(96 + 32 * e, 32) for e in range(3)]
        for u in range(6): R.add_p1_unit(u, sWQ, sQA, sQC, 8192, u == 0, a(16 * u, 16), R.epi_q, last=(u == 5), inreg=[pf_run(sWO, sPFc, 384 * 1152, 11) if u >= 1 else None, pf_row('A', sWQ) if CFG['pf'] >= 3 and u < 5 else None] if CFG['pf'] else None)
        R.add_pa(Q, O)
        needs = {4 * e: [('fin', e)] for e in range(3)}; needs[0].append(('S', 2, 15))
        dm = [dma_w192(sWO, b * 192 * 1152) for b in range(2)]
        R.add_p2([(a(96, 96), [192, 192], dm, needs, sSt)], [add(sOA, sOA, 128), add(sOB, sOB, 128)], pre0=lambda: set_offw(1152, P2M))
        if CFG['pf']:
            if CFG['pf'] >= 2:
                pf_sched(R, 10, sK, sPFa, 131072, 16); pf_sched(R, 10, sV, sPFa, 131072, 16)
                pf_sched(R, 12, sK, sPFb, 131072, 16); pf_sched(R, 12, sV, sPFb, 131072, 16)
    else:
        Q = [a(136 + 32 * e, 32) for e in range(2)]; O = [a(72 + 32 * e, 32) for e in range(2)]
        def mpf(u):
            if u == 0: return pf_row('M', sWQ)
            if u == 1: return lambda: pf_row_setup('M', 9216, 18, sPF1, 0) + [pf_row('M', sW1)()[1]]
            if u <= 4: return pf_row('M', sW1)
            if u == 5: return lambda: [smov(sPW, sPF1h), pf_row('M', sW1)()[1]]
            return None
        for u in range(4): R.add_p1_unit(u, sWQ, sQA, sQC, 8192, u == 0, a(136 + 16 * u, 16), R.epi_q, key='Q', inreg=[None, mpf(u)] if CFG['pf'] >= 3 else None)
        for u in range(4): R.add_p1_unit(4 + u, sW1, sHA, sHC, 9216, u == 0, a(16 * u, 16), R.epi_silu, pre=(lambda: set_offw(9216, 'M' if MS else 'S')) if u == 0 else None, last=(u == 3), key='H', inreg=[None, mpf(4 + u)] if CFG['pf'] >= 3 else None)
        R.add_p1_half(8, a(64, 8))
        BO = a(72, 64)
        if CFG.get('pair'):
            Ha = dict(i=0, Q=Q[0], S=Sreg, P=Preg, O=BO, LM=v(230, 8), OF=lambda kk: BO_.sub(16 * kk, 8),
                      need_qk=[('acc', 48 + 16 * i) for i in range(3)], need_pv=[('acc', 48 + 16 * i) for i in range(4)])
            Hb = dict(i=1, Q=Q[1], S=[v(64, 16), v(48, 16)], P=[v(80, 8), v(88, 8)], O=v(160, 64), LM=v(96, 8), OF=lambda kk: BO_.sub(16 * kk + 8, 8))
            BO_ = BO
            if CFG.get('mfree', 0):
                Hb['S'] = [v(64, 16), v(238, 16)]; Ha['need_qk'] = [('acc', 64), ('acc', 80)]; Ha['need_pv'] = [('acc', 96)]
                R.ntmp = 12; R.ones = v(28, 4)
                for st_, idx in ((R.stages[-2], -1), (R.stages[-1], -1)):
                    m_ = st_.mf[idx]; f_ = m_.after
                    m_.after = (lambda G, f_=f_: (setattr(R, 'low', True), f_(G), setattr(R, 'low', False)))
            R.add_pa_g([[Ha, Hb]])
            BO = [H['OF'](kk) for H in (Ha, Hb) for kk in range(4)]
            R.heads = [(Ha, sPFa), (Hb, sPFa)]
        else: R.add_pa(Q, O)
        nf = {t: [('reg', 8 * t)] for t in range(9)}; nf[0].append(('S', 1, 15))
        R.add_p2([(a(0, 72), [288], [dma_w(sW2, sFA, 0, 1152, sFS, 0)], nf, sSt2),
                  (BO, [256], [dma_w(sWO, sOA, 0, 1152)], {0: [('fin', 0)], 4: [('fin', 1)]}, sSt)],
                 [add(x, x, 128) for x in (sOA, sFA, sFS)], pre0=lambda: set_offw(1152, P2M))
        for st in R.stages[-18:]: st.ring = (200, 14, 'restart')
        if CFG['pf']:
            if CFG['pf'] >= 2:
                k = pf_sched(R, 14, sK, sPFa, 131072, 16); k = pf_sched(R, k, sV, sPFa, 131072, 16)
            pf_sched(R, 16, sWO, sPFc, 256 * 1152, 36); pf_sched(R, 23 if not CFG.get('pair') else 17, sW2, sPF2, 256 * 1152, 36); pf_sched(R, 24 if not CFG.get('pair') else 17, sW2, sPF2h, 32 * 1152, 8)
    if CFG.get('msum') and not MS and kind in 'AM':
        st0 = [st for st in R.stages if st.name == 'PAh0s0'][0]
        m0_ = st0.mf[8]
        if not hasattr(R, 'ones'): m0_.need += [('acc', 48 + 16 * i) for i in range(4)]
        m0_.pre = lambda: R.p.emit([valu('v_mov_b32', getattr(R, 'ones', vONES)[i], 0x3f803f80) for i in range(4)])
    if CFG.get('recode') and CFG['fused']:
        names = [st.name for st in R.stages]
        nS = len(names)
        R.pf.setdefault(nS - 2, []).append(pf_code(f"L_{kind}_red", f"L_role{kind}_end", 4))
        p2 = names.index('P2c0b0')
        R.stages[p2].label = f"L_{kind}_p2"
        R.pf.setdefault(p2 - 2, []).append(pf_code(f"L_{kind}_p2", f"L_{kind}_p2+20480", 5))
        if kind in 'AM':
            pa = names.index('PAmini'); R.stages[pa].label = f"L_{kind}_pa"
            R.pf.setdefault(pa - 1, []).append(pf_code(f"L_{kind}_pa", f"L_{kind}_p2", 8))
    if CFG.get('hot') and CFG['fused'] and kind in CFG['hot']:
        names = [st.name for st in R.stages]
        last = names.index('P2c8b0'); R.stages[last].label = f"L_{kind}_c8"
        def setup():
            o = [raw(f"s_getpc_b64 {sPC}", 'salu', wr=[sPC]), label(f"L_{kind}_hp"),
                 salu('s_add_u32', sPC[0], sPC[0], f"L_{kind}_c8-L_{kind}_hp"), salu('s_addc_u32', sPC[1], sPC[1], 0, scc_r=True),
                 valu('v_bfe_u32', vPF2, vTID, 16, 5), valu('v_and_b32', vPF, 63, vTID), valu('v_min_u32', vPF, 1, vPF),
                 valu('v_lshl_add_u32', vPF, vPF2, 1, vPF), valu('v_lshlrev_b32', vPF, 7, vPF)]
            if kind == 'F': o += pf_row_setup(kind, 1152, 26, sPF2, 2 * 128)
            return o
        def rep_code():
            return [I(f"global_load_dword {vDUM}, {vPF}, {sPC}", 'vload', wr=vDUM.regs(), rd=vPF.regs() + sPC.regs(), units=3, tag='pf')]
        R.pf.setdefault(names.index('P2c1b0'), []).append(setup)
        for c in range(2, 8):
            k0 = names.index(f'P2c{c}b0')
            R.pf.setdefault(k0, []).append(rep_code)
            if kind == 'F': R.pf.setdefault(k0 + 1, []).append(pf_row(kind, sW2))
    R.slow = []
    if kind in 'AM' and CFG.get('slow', True) and CFG.get('pair'):
        P2s = [st for st in R.stages if st.name.startswith('P2c0')]
        hl = [(H['i'], H['Q'], (H['OF'], kv)) for (H, kv) in R.heads]
        if kind == 'A':
            P2s[0].mf[0].pre = slow_check(R, hl[:2], (112, 160))
            [m for m in P2s[1].mf if ('fin', 2) in m.need][0].pre = slow_check(R, hl[2:], (160, 48))
        else:
            m_ = P2s[1].mf[4 if CFG.get('l844') else 0]
            m_.need += [('fin', 0), ('fin', 1)]
            m_.pre = slow_check(R, hl, (160, 48))
    elif kind in 'AM' and CFG.get('slow', True):
        P2s = [st for st in R.stages if st.name.startswith('P2c0')]
        if kind == 'A':
            P2s[0].mf[0].need += [('fin', 1)]
            P2s[0].mf[0].pre = slow_check(R, [(0, Q[0], O[0]), (1, Q[1], O[1])], 112)
            m_ = [m for m in P2s[1].mf if ('fin', 2) in m.need][0]
            m_.pre = slow_check(R, [(2, Q[2], O[2])], 160)
        else:
            P2s[1].mf[0].need += [('fin', 1)]
            P2s[1].mf[0].pre = slow_check(R, [(0, Q[0], O[0]), (1, Q[1], O[1])], 160)
    if CFG['fused']:
        add_signals(R)
        def early0():
            it = red_setup(kind) + red_poll()[0]
            it[-1].tag = 'cnt'
            return it
        def early():
            assert R.cnt_covered()
            PRIV[0] = (kind == 'A')
            it = red_poll()[1]
            it[-1].tag = 'poll'
            return it
        def covered():
            idx = max(i for i, x in enumerate(R.p.ins) if x.tag == 'cnt'); n = 0
            for x in R.p.ins[idx + 1:]:
                if x.kind in VMEMK: n += 1
                if x.txt.startswith('s_waitcnt vmcnt(') and int(x.txt[16:-1]) <= n: return True
            return False
        R.cnt_covered = covered
        if kind == 'A' and CFG.get('l2pf'):
            nm = [st.name for st in R.stages]
            R.pf.setdefault(nm.index('P2c1b0'), []).append(l2pf_setup)
            for (cw, dlt) in CFG['l2pf']:
                kp = nm.index(f'P2c{cw}b0')
                for j in range(4): R.pf.setdefault(kp, []).append(lambda j=j: l2pf_poll()[j])
                R.stages[kp + 2].cover_tag = 'gp'
                def gate(j, dlt=dlt):
                    def f():
                        it = l2pf_issue(R, dlt)[j]
                        if j == 0:
                            it = it + [valu('v_readfirstlane_b32', sOK, vD), salu('s_cmp_ge_u32', None, sOK, 16), csel(sC, sC, 15)]
                        return it
                    return f
                for j in range(4): R.pf.setdefault(kp + 2, []).append(gate(j))
        R.pf.setdefault([st.name for st in R.stages].index('P2c1b0' if kind == 'F' else 'P2c0b1'), []).append(early0)
        if kind in CFG.get('pre', ''):
            R.pf.setdefault(len(R.stages) - 3, []).append(early)
            R.stages[-1].pre_bar = lambda: red_early(R.p, kind)
        else: R.pf.setdefault(len(R.stages) - CFG.get('pollw', 1), []).append(early)
    role_prologue(R, vm_before)
    R.run()
    if CFG['fused']:
        p = R.p
        if kind not in CFG.get('pre', ''): red_early(p, kind)
        if kind in CFG.get('pre', ''): pass
        elif kind in CFG.get('lateflag', 'A'): p.emit(barrier())
        else:
            p.emit(waitvm(0)); p.emit(barrier())
            p.emit(valu('v_mov_b32', vPRG, 9))
            if CFG.get('rep'): p.emit(bstore('buffer_store_dword', vPRG, vCR, sWS, 0, flags='sc1'))
            p.emit(bstore('buffer_store_dword', vPRG, vCT, sWS, 0, flags='sc1'))
        if CFG['stamps']: R.stamp(len(R.stages) - 1)
        p.emit(raw(f"s_call_b64 {sRET}, L_{kind}_red"))
    if CFG['stamps']:
        p = R.p
        R.stamp(len(R.stages))
        p.emit(raw("s_memrealtime s[98:99]", wr=[s(98, 2)])); p.emit(raw("s_waitcnt lgkmcnt(0)"))
        p.emit(raw(f"v_writelane_b32 {vSTAMP}, s98, 63", 'valu', wr=[vSTAMP], rd=[s(98)]))
        if CFG.get('dbgstat'):
            n = len(R.stages)
            lanes = {'F': [0, 27, n - 1, n], 'A': [0, 37, n - 1, n], 'M': [0, 34, n - 1, n]}[kind]
            slots = {'F': [1, 2, 3, 5], 'A': [10, 11, 13, 14], 'M': [15, 15, 15, 15]}[kind]
            p.emit([valu('v_mov_b32', v(4), 256), valu('v_mov_b32', v(5), 0)])
            for i, (ln, sl) in enumerate(zip(lanes, slots)):
                p.emit(raw(f"v_readlane_b32 s92, {vSTAMP}, {ln}", 'rdl', wr=[sT2], rd=[vSTAMP])); p.emit(nop(3))
                p.emit(raw(f"v_writelane_b32 v5, s92, {i}", 'valu', wr=[v(5)], rd=[sT2])); p.emit(raw(f"v_writelane_b32 v4, {4 * sl}, {i}", 'valu', wr=[v(4)]))
            p.emit(raw(f"v_writelane_b32 v5, s98, 4", 'valu', wr=[v(5)], rd=[s(98)])); p.emit(raw(f"v_writelane_b32 v4, 28, 4", 'valu', wr=[v(4)]))
            p.emit(salu('s_not_b32', sT2, s(43))); p.emit(raw(f"v_writelane_b32 v5, s92, 5", 'valu', wr=[v(5)], rd=[sT2])); p.emit(raw(f"v_writelane_b32 v4, 36, 5", 'valu', wr=[v(4)]))
            p.emit(salu('s_sub_u32', sT2, s(98), s(43))); p.emit(raw(f"v_writelane_b32 v5, s92, 6", 'valu', wr=[v(5)], rd=[sT2])); p.emit(raw(f"v_writelane_b32 v4, 24, 6", 'valu', wr=[v(4)]))
            p.emit([salu('s_cmp_eq_u32', None, sRB, 9), csel(sT2, 0, sRB), salu('s_or_b32', sT2, sT2, sWAVE), salu('s_cmp_eq_u32', None, sT2, 0), csel(sT2, 0, 256),
                    valu('v_add_u32', v(4), sT2, v(4))])
            p.emit(I(f"buffer_atomic_umax v5, v4, {sDBG}, 0 offen sc1", 'vstore', rd=vr(4, 2) + sDBG.regs(), units=3))
        p.emit([shl(sT2, s(2), 2), add(sT2, sT2, sWAVE), shl(sT2, sT2, 8), add(sT2, sT2, STAMP_OFF),
                valu('v_lshrrev_b32', v(42), 2, vLANE16), bstore('buffer_store_dword', vSTAMP, v(42), sWS, sT2)])
    R.p.emit(raw("s_endpgm"))
    return R

def fold(ins, name):
    idx = [i for i, x in enumerate(ins) if x.tag == 'mark']
    def body(a_, b_): return [x.txt for x in ins[a_:b_] if x.kind != 'label']
    out = []; pos = 0; k = 0; nl = 0
    while k + 1 < len(idx):
        b0 = body(idx[k], idx[k + 1]); n = 1
        while k + n + 1 < len(idx) and body(idx[k + n], idx[k + n + 1]) == b0: n += 1
        if n >= 2:
            out += ins[pos:idx[k]]
            L = f"L_{name}_loop{nl}"; nl += 1
            out.append(smov(sLC, n)); out.append(I(".p2align 3", 'label')); out.append(label(L))
            out += ins[idx[k]:idx[k + 1]]
            out += [salu('s_sub_u32', sLC, sLC, 1), salu('s_cmp_lg_u32', None, sLC, 0), raw(f"s_cbranch_scc1 {L}")]
            pos = idx[k + n]; k += n
        else: k += 1
    out += ins[pos:]
    return out

def fold_regions(ins, name):
    regs = []; i = 0
    beg = None
    for i, x in enumerate(ins):
        if isinstance(x.tag, tuple) and x.tag and x.tag[0] == 'region':
            if x.tag[1] == 'begin': beg = (i, x.tag[2])
            elif beg: regs.append((beg[0], i, beg[1])); beg = None
    groups = {}
    for (a_, b_, key) in regs:
        groups.setdefault(tuple(x.txt for x in ins[a_:b_] if x.kind != 'label'), []).append((a_, b_))
    out = []; subs = []; repl = {}
    n = 0
    for body, lst in groups.items():
        if len(lst) >= 2:
            L = f"L_{name}_sub{n}"; n += 1
            a_, b_ = lst[0]
            subs += [I(".p2align 6", 'label'), label(L)] + ins[a_:b_] + [raw(f"s_setpc_b64 {sRET}")]
            for (a_, b_) in lst: repl[a_] = (b_, L)
    i = 0
    while i < len(ins):
        if i in repl:
            b_, L = repl[i]; out.append(raw(f"s_call_b64 {sRET}, {L}")); i = b_
        else:
            out.append(ins[i]); i += 1
    print(f"  regions: {[len(l) for l in groups.values()]}", file=sys.stderr)
    return out + subs

def reduce_body(p, sPART, sXO, srdP, srdX, srdO, vL16, vXO, base, flags, mid=None):
    E = p.emit
    L = base; XR = base + 68; SA = base + 72; FA = base + 80; T = base + 88
    for k in range(NPART):
        if k: E(add(sPART, sPART, 16 * PART))
        E(bload('buffer_load_dwordx4', v(L + 4 * k, 4), vL16, srdP, sPART, flags=flags))
    E(bload('buffer_load_dwordx2', v(XR, 2), vXO, srdX, sXO)); E(bload('buffer_load_dwordx2', v(XR + 2, 2), vXO, srdX, sXO, 32))
    ex = 0
    if mid: E(mid()); ex = 1
    E(smov(sT3, 0xffff0000))
    for k in range(NPART):
        E(waitvm(NPART + 1 - k + ex))
        acc = SA if k < 11 else FA
        for q in range(4):
            x = v(L + 4 * k + q)
            if k in (0, 11):
                E(valu('v_lshlrev_b32', v(acc + 2 * q), 16, x)); E(valu('v_and_b32', v(acc + 2 * q + 1), sT3, x))
            else:
                tp = v(T + 2 * q, 2)
                E(valu('v_lshlrev_b32', tp[0], 16, x)); E(valu('v_and_b32', tp[1], sT3, x))
        if k not in (0, 11):
            for q in range(4): E(valu('v_pk_add_f32', v(acc + 2 * q, 2), v(acc + 2 * q, 2), v(T + 2 * q, 2)))
    for e in range(8): E(valu('v_exp_f32', v(T + e), v(FA + e)))
    for e in range(8): E(valu('v_add_f32', v(T + e), 1.0, v(T + e)))
    for e in range(8): E(valu('v_rcp_f32', v(T + e), v(T + e)))
    for e in range(8): E(valu('v_mul_f32', v(FA + e), f2u(-math.log(2.0)), v(FA + e)))
    for e in range(8): E(valu('v_mul_f32', v(FA + e), v(FA + e), v(T + e)))
    E(waitvm(ex))
    for q in range(4):
        E(valu('v_lshlrev_b32', v(T + 2 * q), 16, v(XR + q))); E(valu('v_and_b32', v(T + 2 * q + 1), sT3, v(XR + q)))
    for e in range(8): E(valu('v_fma_f32', v(T + e), v(SA + e), v(FA + e), v(T + e)))
    for q in range(4): E(valu('v_cvt_pk_bf16_f32', v(XR + q), v(T + 2 * q), v(T + 2 * q + 1)))
    E(bstore('buffer_store_dwordx2', v(XR, 2), vXO, srdO, sXO)); E(bstore('buffer_store_dwordx2', v(XR + 2, 2), vXO, srdO, sXO, 32))

def reduce_kernel():
    p = Prog(); E = p.emit
    E(salu('s_cmp_ge_u32', None, s(2), 576)); E(raw("s_cbranch_scc0 L_rgo")); E(raw("s_endpgm")); E(label("L_rgo"))
    E(raw("s_load_dwordx2 s[4:5], s[0:1], 0", wr=[s(4, 2)])); E(raw("s_load_dwordx2 s[6:7], s[0:1], 64", wr=[s(6, 2)])); E(raw("s_load_dwordx2 s[8:9], s[0:1], 80", wr=[s(8, 2)]))
    E(valu('v_lshrrev_b32', v(1), 6, v(0))); E(valu('v_readfirstlane_b32', s(10), v(1)))
    E(shl(s(11), s(2), 2)); E(add(s(11), s(11), s(10)))
    E(salu('s_mul_hi_u32', s(24), s(11), -(-(1 << 32) // 36), scc_w=False))
    E(mul(s(25), s(24), 36)); E(salu('s_sub_u32', s(25), s(11), s(25)))
    E(shl(s(26), s(11), 10))
    E(valu('v_and_b32', v(0), 63, v(0))); E(valu('v_lshlrev_b32', v(1), 4, v(0)))
    E(valu('v_and_b32', v(2), 15, v(0))); E(smov(s(27), 1152)); E(valu('v_mul_u32_u24', v(2), s(27), v(2)))
    E(valu('v_lshrrev_b32', v(3), 4, v(0))); E(valu('v_lshl_add_u32', v(2), v(3), 3, v(2)))
    E(mul(s(28), s(24), 32 * 1152)); E(salu('s_and_b32', s(29), s(25), 1)); E(mul(s(29), s(29), 16 * 1152)); E(add(s(28), s(28), s(29)))
    E(shr(s(25), s(25), 1)); E(shl(s(25), s(25), 6)); E(add(s(28), s(28), s(25)))
    E(raw("s_waitcnt lgkmcnt(0)"))
    srd(p, s(12, 4), 8, WSP_BYTES); srd(p, s(16, 4), 4, 2359296); srd(p, s(20, 4), 6, 2359296)
    reduce_body(p, s(26), s(28), s(12, 4), s(16, 4), s(20, 4), v(1), v(2), 4, CFG.get('rflags', ''))
    E(raw("s_endpgm"))
    return p

def text(ins): return "\n".join((i.txt if i.kind == 'label' else " " + i.txt) for i in ins) + "\n"

def compress(t):
    t = re.sub(r" v_mfma_f32_16x16x32_bf16 v\[(\d+):\d+\], a\[(\d+):\d+\], v\[(\d+):\d+\], v\[\1:\d+\]", r" MV \1,\2,\3", t)
    t = re.sub(r" v_mfma_f32_16x16x32_bf16 v\[(\d+):\d+\], a\[(\d+):\d+\], a\[(\d+):\d+\], v\[\1:\d+\]", r" MA \1,\2,\3", t)
    t = re.sub(r" v_mfma_f32_32x32x16_bf16 v\[(\d+):\d+\], a\[(\d+):\d+\], v\[(\d+):\d+\], v\[\1:\d+\]", r" NV \1,\2,\3", t)
    t = re.sub(r" v_mfma_f32_32x32x16_bf16 v\[(\d+):\d+\], a\[(\d+):\d+\], a\[(\d+):\d+\], v\[\1:\d+\]", r" NA \1,\2,\3", t)
    t = re.sub(r" v_mfma_f32_16x16x32_bf16 a\[(\d+):\d+\], a\[(\d+):\d+\], v\[(\d+):\d+\], a\[\1:\d+\]", r" MC \1,\2,\3", t)
    t = re.sub(r" ds_read_b64_tr_b16 a\[(\d+):\d+\], v(\d+) offset:(\d+)", r" RT \1,\2,\3", t)
    t = re.sub(r" ds_read_b128 a\[(\d+):\d+\], v(\d+) offset:(\d+)", r" RB \1,\2,\3", t)
    t = re.sub(r" v_cvt_pk_bf16_f32 v(\d+), v(\d+), v(\d+)", r" CV \1,\2,\3", t)
    t = re.sub(r" v_accvgpr_write_b32 a(\d+), v(\d+)", r" AW \1,\2", t)
    t = re.sub(r" v_exp_f32 v(\d+), v(\d+)", r" EX \1,\2", t)
    t = re.sub(r" v_add_f32 v(\d+), v(\d+), v(\d+)", r" AD \1,\2,\3", t)
    t = re.sub(r" v_mul_f32 v(\d+), v(\d+), v(\d+)", r" ML \1,\2,\3", t)
    t = re.sub(r" s_waitcnt lgkmcnt\((\d+)\)", r" WL \1", t)
    mac = r""".macro MC d,a,b
 v_mfma_f32_16x16x32_bf16 a[\d:\d+3], a[\a:\a+3], v[\b:\b+3], a[\d:\d+3]
.endm
.macro NV d,a,b
 v_mfma_f32_32x32x16_bf16 v[\d:\d+15], a[\a:\a+3], v[\b:\b+3], v[\d:\d+15]
.endm
.macro NA d,a,b
 v_mfma_f32_32x32x16_bf16 v[\d:\d+15], a[\a:\a+3], a[\b:\b+3], v[\d:\d+15]
.endm
.macro MV d,a,b
 v_mfma_f32_16x16x32_bf16 v[\d:\d+3], a[\a:\a+3], v[\b:\b+3], v[\d:\d+3]
.endm
.macro MA d,a,b
 v_mfma_f32_16x16x32_bf16 v[\d:\d+3], a[\a:\a+3], a[\b:\b+3], v[\d:\d+3]
.endm
.macro RT d,a,o
 ds_read_b64_tr_b16 a[\d:\d+1], v\a offset:\o
.endm
.macro RB d,a,o
 ds_read_b128 a[\d:\d+3], v\a offset:\o
.endm
.macro CV d,a,b
 v_cvt_pk_bf16_f32 v\d, v\a, v\b
.endm
.macro AW d,a
 v_accvgpr_write_b32 a\d, v\a
.endm
.macro EX d,a
 v_exp_f32 v\d, v\a
.endm
.macro AD d,a,b
 v_add_f32 v\d, v\a, v\b
.endm
.macro ML d,a,b
 v_mul_f32 v\d, v\a, v\b
.endm
.macro WL n
 s_waitcnt lgkmcnt(\n)
.endm
"""
    return mac, t

HDR = open('recurrent_scan__sliding_block_cached__dense_activation_silu__prompt.s.ref').read().split('; Override launch')[0]
DOC = """; Generated by my own scheduler scripts (hand-designed instruction streams, hazards padded by the script).
; registers as MFMA B operands (transposed formulation), weights / K / V stream through a 4-slot LDS ring (LDS-DMA).
;   role A (10): layernorm, Q projection, attention for 3 heads (one GQA pair shares K/V fragments), partial of o@wo
; The bf16 partials go to d_ws with write-through stores; progress words (reset per launch, guarded by a counter in
"""
def kd(name, vgpr, acc, sgpr=102):
    return f""".amdhsa_kernel {name}
  .amdhsa_next_free_vgpr {vgpr}
  .amdhsa_next_free_sgpr {sgpr}
  .amdhsa_accum_offset {acc}
  .amdhsa_group_segment_fixed_size 0
  .amdhsa_kernarg_size 88
  .amdhsa_user_sgpr_count 2
  .amdhsa_user_sgpr_kernarg_segment_ptr 1
  .amdhsa_system_sgpr_workgroup_id_x 1
.end_amdhsa_kernel
"""
def est_cycles(ins):
    tot = 0; cur = None; n = 0
    for i in ins:
        if i.kind == 'label': continue
        if i.kind == 'mfma':
            if cur is not None: tot += max(cap, cur)
            cur = 2; n += 1; cap = 8 if len(i.wr) == 16 else 4
        elif cur is not None:
            if i.txt.startswith('s_waitcnt lgkm') and cap == 4: continue
            cur += i.units if not i.txt.startswith('s_nop') else (int(i.txt.split()[1]) + 1) * 0.5
    return tot * 4

def main(out, **kw):
    CFG.update(kw)
    set_layout(CFG.get('l844'))
    if CFG.get('tab'):
        global ROLE_TAB
        ROLE_TAB = CFG['tab']
    CFG['shape0'] = CFG['shape']
    cp = common_prologue()
    if CFG.get('entry', 0):
        if CFG.get('entry', 1) == 1:
            k = next(i for i, x in enumerate(cp.ins) if x.txt == 's_waitcnt lgkmcnt(0)')
            tail = cp.ins[k:]; vmx = list(cp.vm); cp.ins = cp.ins[:k]; cp.vm = []
            common_prologue2(cp); cp.ins += tail; cp.vm += vmx
        else: common_prologue2(cp)
        common_prologue3(cp)
    body = text(cp.ins) + dispatch_text()
    for kind in 'FAM':
        R = build_role(kind, cp.vm)
        ins = fold_regions(fold(R.p.ins, kind), kind) if CFG['fold'] else R.p.ins
        nm = sum(1 for i in R.p.ins if i.kind == 'mfma')
        print(f"role {kind}: stages {len(R.stages)} mfma {nm} instrs {len([i for i in ins if i.kind!='label'])} (unrolled {len([i for i in R.p.ins if i.kind!='label'])}) pad {R.p.npad} forced {R.forced} est {est_cycles(R.p.ins)} ideal {sum(32 if len(i.wr) == 16 else 16 for i in R.p.ins if i.kind == 'mfma')}", file=sys.stderr)
        if CFG.get('abl_pair') and kind in 'AM':
            out_ = []; on = False
            for x in ins:
                if x.kind == 'label' and x.txt.startswith('; PAh'): on = x.txt.startswith('; PAh1')
                if x.kind == 'label' and x.txt.startswith('; P2'): on = False
                if on and (x.kind in ('dma', 'ds') or (x.kind == 'salu' and ('m0' in x.txt or 's70' in x.txt))): continue
                out_.append(x)
            ins = out_
        if CFG.get('abl_half'):
            out_ = []; on = False; cnt = 0
            for x in ins:
                if x.kind == 'label' and x.txt.startswith('; P'): on = x.txt.startswith(('; P1', '; P2'))
                if x.kind == 'label' and x.txt.startswith('; REGION begin'): on = True
                if on and x.kind == 'ds':
                    cnt += 1
                    if (cnt >> 1) & 1: continue
                out_.append(x)
            ins = out_
        ab = CFG.get('ablate', '')
        if ab:
            st0 = next(i for i, x in enumerate(ins) if x.txt.startswith('; P1u1b0'))
            def keep(x):
                if 'd' in ab and x.kind == 'dma': return False
                if 'r' in ab and x.kind == 'ds': return False
                if 'v' in ab and x.kind in ('trans',): return False
                if 'V' in ab and x.kind in ('trans', 'valu', 'perm') and not x.txt.startswith(('v_add_u32', 'v_xor', 'v_writelane', 'v_cmp', 'v_cnd', 'v_mov', 'v_lsh', 'v_mad', 'v_min', 'v_and', 'v_bfe', 'v_mul_u32')): return False
                if 'm' in ab and x.kind == 'mfma': return False
                return True
            ins = ins[:st0] + [x for x in ins[st0:] if keep(x)]
        for sp in R.slow: ins = ins + sp.ins
        if CFG['fused']: ins = ins + reducer(kind).ins
        body += f".p2align 6\nL_role{kind}:\n" + text(ins) + f"L_role{kind}_end:\n"
    rk = reduce_kernel()
    mac, body = compress(body)
    if CFG['fused']:
        t = HDR + "; @launch grid=(256,1,1) block=(256,1,1) lds=163840\n" + DOC
        t += '.amdgcn_target "amdgcn-amd-amdhsa--gfx950"\n' + mac + f".text\n.globl {KN}\n.p2align 8\n.type {KN},@function\n{KN}:\n" + body
        t += '.section .rodata,"a"\n.p2align 6\n' + kd(KN, 512, 256)
        open(out, 'w').write(t); print("size", len(t), file=sys.stderr); return
    t = HDR + f"; @launch kernel={KN} grid=(256,1,1) block=(256,1,1) lds=163840\n; @launch kernel={RN} grid=(576,1,1) block=(256,1,1) lds=0\n"
    t += '.amdgcn_target "amdgcn-amd-amdhsa--gfx950"\n' + mac + f".text\n.globl {KN}\n.p2align 8\n.type {KN},@function\n{KN}:\n" + body
    t += f".globl {RN}\n.p2align 8\n.type {RN},@function\n{RN}:\n" + text(rk.ins)
    t += '.section .rodata,"a"\n.p2align 6\n' + kd(KN, 512, 256) + ".p2align 6\n" + kd(RN, 104, 104, 102)
    open(out, 'w').write(t)
    print("size", len(t), file=sys.stderr)

if __name__ == "__main__":
    kw = eval("dict(" + (sys.argv[2] if len(sys.argv) > 2 else "") + ")")
    main(sys.argv[1], **kw)
```

```python
import sys, re
from s1 import *

ROLE_TAB = [0, 1, 2, 11, 3, 4, 5, 12, 6, 7, 13, 14, 8, 9, 10, 15]
vPFR = v(36)
vPRG = v(36)
PART = 4 * PWAVE
NPART = 17
NA, NM, NS = 10, 1, 11
def set_layout(new):
    global NPART, NA, NM, NS, ROLE_TAB
    if new:
        NPART, NA, NM, NS = 20, 8, 4, 12
        ROLE_TAB = [0, 1, 8, 12, 2, 3, 9, 13, 4, 5, 10, 14, 6, 7, 11, 15]
WSP_BYTES = NPART * 16 * PART
def PSTR(): return 16 * PART + (CFG.get('pskew', 0) if CFG['fused'] else 0)
sJQ, sQ0, sOA1, sOB1 = s(73), s(59), s(74), s(75)
ABN = 4096
STAMP_OFF = 0x3000000
CTRL = 0x2F00000
OOB = 0x10000000

def srd(p, dst, lo, nbytes):
    p.emit([smov(dst[0], s(lo)), salu('s_and_b32', dst[1], s(lo + 1), 0xffff), smov(dst[2], nbytes), smov(dst[3], 0x20000)])
def xdma(j):
    return [salu('s_add_u32', 'm0', s(6), j * 4096), salu('s_add_u32', sT, s(7), j * 128)] + [dma(v(16 + q), sX, sT, q * 1024, tag=('x', j)) for q in range(4)]
def mul(d, a_, b_): return salu('s_mul_i32', d, a_, b_, scc_w=False)
def add(d, a_, b_): return salu('s_add_u32', d, a_, b_)
def shl(d, a_, b_): return salu('s_lshl_b32', d, a_, b_)
def shr(d, a_, b_): return salu('s_lshr_b32', d, a_, b_)
def csel(d, a_, b_): return salu('s_cselect_b32', d, a_, b_, scc_w=False, scc_r=True)

def common_prologue():
    if CFG.get('entry', 0) == 0: return common_prologue_old()
    assert CFG['xe'] == 9 and CFG.get('map', 4) == 4
    p = Prog(); E = p.emit
    E(raw("s_load_dwordx8 s[40:47], s[0:1], 0", wr=[s(40, 8)]))
    E(salu('s_cmp_ge_u32', None, s(2), 256))
    E(raw("s_cbranch_scc0 L_go")); E(raw("s_endpgm")); E(label("L_go"))
    if CFG['stamps']:
        E(raw(f"s_memtime {sT0}", wr=[sT0])); E(raw("s_memrealtime s[96:97]", wr=[s(96, 2)]))
    E(valu('v_lshrrev_b32', v(1), 6, v(0)))
    E(salu('s_and_b32', s(3), s(2), 1)); E(shl(s(3), s(3), 3))
    E(valu('v_readfirstlane_b32', sWAVE, v(1)))
    E(shr(sRB, s(2), 5)); E(salu('s_or_b32', sRB, sRB, s(3)))
    E(valu('v_and_b32', v(0), 63, v(0)))
    E(valu('v_lshrrev_b32', vROWN, 3, v(0)))
    E(valu('v_and_b32', v(20), 7, v(0))); E(valu('v_lshrrev_b32', v(21), 4, v(0)))
    E(valu('v_xor_b32', v(22), v(20), v(21))); E(valu('v_xor_b32', v(23), 4, v(22)))
    E(salu('s_movk_i32', s(3), 1152, scc_w=False)); E(valu('v_mul_u32_u24', v(24), s(3), vROWN))
    E(valu('v_lshl_add_u32', v(16), v(22), 4, v(24))); E(valu('v_lshl_add_u32', v(17), v(23), 4, v(24)))
    E(valu('v_add_u32', v(17), 8 * 1152 - 1024, v(17)))
    E(valu('v_add_u32', v(18), 2 * (8 * 1152 - 1024), v(16))); E(valu('v_add_u32', v(19), 2 * (8 * 1152 - 1024), v(17)))
    E(mul(s(6), sWAVE, XW)); E(raw("s_lshl2_add_u32 s7, s64, s62", 'salu', wr=[s(7)], rd=[sRB, sWAVE])); E(mul(sT, s(7), 32 * 1152))
    E(smov('m0', s(6))); E(add(s(7), sT, 9 * 128))
    E(smov(sX[2], 2359296)); E(smov(sX[3], 0x20000))
    E(raw("s_waitcnt lgkmcnt(0)"))
    E(smov(sX[0], s(40))); E(salu('s_and_b32', sX[1], s(41), 0xffff))
    E(label("L_xl"))
    n0 = len(p.vm)
    for q in range(4): E(dma(v(16 + q), sX, sT, q * 1024))
    del p.vm[n0:]
    for j in range(9): p.vm += [('x', j)] * 4
    E(add(sT, sT, 128)); E(add('m0', 'm0', 4096)); E(salu('s_cmp_lt_u32', None, sT, s(7))); E(raw("s_cbranch_scc1 L_xl"))
    return p
def common_prologue2(p):
    E = p.emit
    tab = ROLE_TAB
    lo = sum(tab[i] << (4 * i) for i in range(8)); hi = sum(tab[8 + i] << (4 * i) for i in range(8))
    E(salu('s_bfe_u32', s(3), s(2), (2 << 16) | 3)); E(salu('s_bfe_u32', s(4), s(2), (1 << 16) | 1))
    E(shl(s(4), s(4), 2)); E(salu('s_or_b32', s(3), s(3), s(4))); E(shl(s(3), s(3), 2))
    E(salu('s_bitcmp1_b32', None, s(2), 2))
    E(smov(s(4), lo)); E(csel(s(4), hi, s(4)))
    E(shr(s(4), s(4), s(3))); E(salu('s_and_b32', sROLE, s(4), 15))
    E(raw(f"s_getpc_b64 {sPC}", wr=[sPC])); E(label("L_pc"))
    E(smov(s(4), "L_roleA-L_pc")); E(smov(s(5), "L_roleA_end-L_pc-4"))
    E(salu('s_cmp_ge_u32', None, sROLE, NA)); E(csel(s(4), "L_roleM-L_pc", s(4))); E(csel(s(5), "L_roleM_end-L_pc-4", s(5)))
    E(salu('s_cmp_ge_u32', None, sROLE, NA + NM)); E(csel(s(4), "L_roleF-L_pc", s(4))); E(csel(s(5), "L_roleF_end-L_pc-4", s(5)))
    n0 = CFG.get('code0', 16); NL = CFG.get('codelines', 24)
    if n0:
        E(mul(s(3), sWAVE, n0 * 128)); E(add(s(3), s(3), s(4)))
        E(valu('v_min_u32', v(2), n0 - 1, v(0))); E(valu('v_lshlrev_b32', v(2), 7, v(2))); E(valu('v_add_u32', v(2), s(3), v(2)))
        E(I(f"global_load_dword {vDUM}, v2, {sPC}", 'vload', wr=vDUM.regs(), rd=vr(2) + sPC.regs(), tag='pf'))
    E(salu('s_and_b32', s(3), sRB, 7)); E(shl(s(3), s(3), 2)); E(add(s(3), s(3), sWAVE))
    E(mul(s(3), s(3), NL * 128)); E(add(s(3), s(3), s(4)))
    E(valu('v_min_u32', v(2), NL - 1, v(0))); E(valu('v_lshlrev_b32', v(2), 7, v(2))); E(valu('v_add_u32', v(2), s(3), v(2)))
    E(valu('v_min_u32', v(3), s(5), v(2)))
    E(I(f"global_load_dword {vDUM}, v3, {sPC}", 'vload', wr=vDUM.regs(), rd=vr(3) + sPC.regs(), tag='pf'))
def common_prologue3(p):
    E = p.emit
    E(raw("s_load_dwordx2 s[48:49], s[0:1], 32", wr=[s(48, 2)]))
    E(raw("s_load_dwordx8 s[52:59], s[0:1], 48", wr=[s(52, 8)]))
    E(raw("s_load_dwordx2 s[50:51], s[0:1], 80", wr=[s(50, 2)]))
    srd(p, sK, 42, 8388608); srd(p, sV, 44, 8388608); srd(p, sWQ, 46, 4718592)
    E(mul(sW8704, sWAVE, 8 * PP)); E(mul(sWC, sWAVE, PP)); E(add(sWC, sWC, 32 * PP))
    E(shl(sW8192, sWAVE, 13)); E(shl(sWCH, sWAVE, 10)); E(add(sWCH, sWCH, 32768))
    E(mul(sW2176, sWAVE, 2 * PP)); E(mul(sW4352, sWAVE, 4 * PP)); E(add(sWA2, sW2176, 16 * PP))
    E(raw("s_waitcnt lgkmcnt(0)"))
    srd(p, sWO, 48, 4718592)
    srd(p, sW1, 52, 5308416); srd(p, sW2, 54, 5308416); srd(p, sWS, 50, 0x10000000 if (CFG['stamps'] or CFG['fused']) else WSP_BYTES)
    srd(p, sOUT, 56, 2359296); srd(p, sDBG, 58, 256)

def common_prologue_old():
    p = Prog(); E = p.emit
    E(salu('s_cmp_ge_u32', None, s(2), 256))
    E(raw("s_cbranch_scc0 L_go")); E(raw("s_endpgm")); E(label("L_go"))
    E(raw("s_load_dwordx8 s[40:47], s[0:1], 0", wr=[s(40, 8)]))
    E(raw("s_load_dwordx2 s[48:49], s[0:1], 32", wr=[s(48, 2)]))
    E(raw("s_load_dwordx8 s[52:59], s[0:1], 48", wr=[s(52, 8)]))
    E(raw("s_load_dwordx2 s[50:51], s[0:1], 80", wr=[s(50, 2)]))
    if CFG['stamps']:
        E(raw(f"s_memtime {sT0}", wr=[sT0])); E(raw("s_memrealtime s[96:97]", wr=[s(96, 2)]))
    tab = ROLE_TAB
    if CFG.get('map', 4) == 41:
        t4 = CFG.get('t41', [11, 0, 1, 2, 12, 3, 4, 5, 13, 14, 6, 7, 15, 10, 8, 9])
        lo = sum(t4[i] << (4 * i) for i in range(8)); hi = sum(t4[8 + i] << (4 * i) for i in range(8))
        E(shr(s(3), s(2), 6)); E(salu('s_bfe_u32', s(4), s(2), (1 << 16) | 1))
        E(shl(s(4), s(4), 2)); E(salu('s_or_b32', s(3), s(3), s(4))); E(shl(s(3), s(3), 2))
        E(salu('s_bitcmp1_b32', None, s(2), 2)); E(smov(s(4), lo)); E(csel(s(4), hi, s(4)))
        E(shr(s(4), s(4), s(3))); E(salu('s_and_b32', sROLE, s(4), 15))
        E(salu('s_and_b32', s(3), s(2), 1)); E(shl(s(3), s(3), 3))
        E(salu('s_bfe_u32', sRB, s(2), (3 << 16) | 3)); E(salu('s_or_b32', sRB, sRB, s(3)))
    elif CFG.get('map', 4) == 8:
        t8 = [0, 1, 2, 3, 4, 10, 11, 12, 5, 6, 7, 8, 9, 13, 14, 15]
        lo = sum(t8[i] << (4 * i) for i in range(8)); hi = sum(t8[8 + i] << (4 * i) for i in range(8))
        E(salu('s_bfe_u32', s(3), s(2), (3 << 16) | 3)); E(shl(s(3), s(3), 2))
        E(salu('s_bitcmp1_b32', None, s(2), 2)); E(smov(s(4), lo)); E(csel(s(4), hi, s(4)))
        E(shr(s(4), s(4), s(3))); E(salu('s_and_b32', sROLE, s(4), 15))
        E(salu('s_and_b32', s(3), s(2), 1)); E(shl(s(3), s(3), 3)); E(salu('s_and_b32', s(4), s(2), 2)); E(shl(s(4), s(4), 1))
        E(shr(sRB, s(2), 6)); E(salu('s_or_b32', sRB, sRB, s(3))); E(salu('s_or_b32', sRB, sRB, s(4)))
    elif CFG.get('map', 4) == 2:
        t2 = [0, 1, 2, 3, 4, 11, 5, 12, 6, 13, 7, 14, 8, 15, 9, 10]
        lo = sum(t2[i] << (4 * i) for i in range(8)); hi = sum(t2[8 + i] << (4 * i) for i in range(8))
        E(salu('s_bfe_u32', s(3), s(2), (1 << 16) | 3)); E(salu('s_and_b32', s(4), s(2), 3)); E(shl(s(4), s(4), 1)); E(salu('s_or_b32', s(3), s(3), s(4))); E(shl(s(3), s(3), 2))
        E(salu('s_bitcmp1_b32', None, s(2), 2)); E(smov(s(4), lo)); E(csel(s(4), hi, s(4)))
        E(shr(s(4), s(4), s(3))); E(salu('s_and_b32', sROLE, s(4), 15)); E(shr(sRB, s(2), 4))
    else:
        lo = sum(tab[i] << (4 * i) for i in range(8)); hi = sum(tab[8 + i] << (4 * i) for i in range(8))
        E(salu('s_bfe_u32', s(3), s(2), (2 << 16) | 3)); E(salu('s_bfe_u32', s(4), s(2), (1 << 16) | 1))
        E(shl(s(4), s(4), 2)); E(salu('s_or_b32', s(3), s(3), s(4))); E(shl(s(3), s(3), 2))
        E(salu('s_bitcmp1_b32', None, s(2), 2))
        E(smov(s(4), lo)); E(csel(s(4), hi, s(4)))
        E(shr(s(4), s(4), s(3))); E(salu('s_and_b32', sROLE, s(4), 15))
        E(salu('s_and_b32', s(3), s(2), 1)); E(shl(s(3), s(3), 3))
        E(shr(sRB, s(2), 5)); E(salu('s_or_b32', sRB, sRB, s(3)))
    E(valu('v_lshrrev_b32', v(1), 6, v(0)))
    E(valu('v_readfirstlane_b32', sWAVE, v(1)))
    E(valu('v_and_b32', v(0), 63, v(0)))
    E(valu('v_lshrrev_b32', vROWN, 3, v(0)))
    E(valu('v_and_b32', v(20), 7, v(0))); E(valu('v_lshrrev_b32', v(21), 4, v(0)))
    E(valu('v_xor_b32', v(22), v(20), v(21))); E(valu('v_xor_b32', v(23), 4, v(22)))
    E(smov(s(3), 1152)); E(valu('v_mul_u32_u24', v(24), s(3), vROWN))
    E(valu('v_lshl_add_u32', v(16), v(22), 4, v(24))); E(valu('v_lshl_add_u32', v(17), v(23), 4, v(24)))
    E(valu('v_add_u32', v(17), 8 * 1152 - 1024, v(17)))
    E(valu('v_add_u32', v(18), 2 * (8 * 1152 - 1024), v(16))); E(valu('v_add_u32', v(19), 2 * (8 * 1152 - 1024), v(17)))
    E(mul(s(6), sWAVE, XW))
    E(shl(s(7), sRB, 2)); E(add(s(7), s(7), sWAVE)); E(mul(s(7), s(7), 32 * 1152))
    E(raw(f"s_getpc_b64 {sPC}", wr=[sPC])); E(label("L_pc"))
    E(smov(s(4), "L_roleA-L_pc")); E(smov(s(5), "L_roleA_end-L_pc-4"))
    E(salu('s_cmp_ge_u32', None, sROLE, NA)); E(csel(s(4), "L_roleM-L_pc", s(4))); E(csel(s(5), "L_roleM_end-L_pc-4", s(5)))
    E(salu('s_cmp_ge_u32', None, sROLE, NA + NM)); E(csel(s(4), "L_roleF-L_pc", s(4))); E(csel(s(5), "L_roleF_end-L_pc-4", s(5)))
    def code_pf():
        NL = CFG.get('codelines', 24)
        E(salu('s_and_b32', s(3), sRB, 7)); E(shl(s(3), s(3), 2)); E(add(s(3), s(3), sWAVE))
        E(mul(s(3), s(3), NL * 128)); E(add(s(3), s(3), s(4)))
        E(valu('v_min_u32', v(2), NL - 1, v(0))); E(valu('v_lshlrev_b32', v(2), 7, v(2))); E(valu('v_add_u32', v(2), s(3), v(2)))
        E(valu('v_min_u32', v(3), s(5), v(2)))
        E(I(f"global_load_dword {vDUM}, v3, {sPC}", 'vload', wr=vDUM.regs(), rd=vr(3) + sPC.regs(), tag='pf'))
    if CFG.get('codepf', 3) >= 3:
        n0 = CFG.get('code0', 16)
        if n0:
            E(mul(s(3), sWAVE, n0 * 128)); E(add(s(3), s(3), s(4)))
            E(valu('v_min_u32', v(2), n0 - 1, v(0))); E(valu('v_lshlrev_b32', v(2), 7, v(2))); E(valu('v_add_u32', v(2), s(3), v(2)))
            E(I(f"global_load_dword {vDUM}, v2, {sPC}", 'vload', wr=vDUM.regs(), rd=vr(2) + sPC.regs(), tag='pf'))
        code_pf()
    E(raw("s_waitcnt lgkmcnt(0)"))
    srd(p, sX, 40, 2359296)
    if CFG.get('xt'):
        nch = CFG['xt']
        E(salu('s_bfe_u32', s(3), s(2), (2 << 16) | 3)); E(mul(s(3), s(3), 128 * nch)); E(add(s(3), s(3), 128 * (9 - 4 * nch))); E(add(s(3), s(3), s(7)))
        E(valu('v_and_b32', v(2), 31, v(0))); E(valu('v_mul_u32_u24', v(2), 1152, v(2)))
        if nch == 2:
            E(valu('v_lshrrev_b32', v(3), 5, v(0))); E(valu('v_lshl_add_u32', v(2), v(3), 7, v(2)))
        ld = bload('buffer_load_dword', vDUM, v(2), sX, s(3)); ld.tag = 'pf'; E(ld)
    nx0 = CFG.get('tx', 2) if CFG.get('touch') else 0
    for j in range(nx0): E(xdma(j))
    if CFG.get('touch'):
        E(salu('s_cmp_gt_u32', None, sROLE, 10))
        E(raw("s_cselect_b64 s[60:61], s[52:53], s[46:47]", 'salu', wr=[s(60, 2)], rd=[s(52, 2), s(46, 2)]))
        E(raw("s_cselect_b64 s[66:67], s[54:55], s[48:49]", 'salu', wr=[s(66, 2)], rd=[s(54, 2), s(48, 2)]))
        E(salu('s_cmp_eq_u32', None, sWAVE, 1)); E(raw("s_cselect_b64 s[60:61], s[66:67], s[60:61]", 'salu', wr=[s(60, 2)], rd=[s(66, 2), s(60, 2)]))
        E(salu('s_cmp_eq_u32', None, sWAVE, 2)); E(raw("s_cselect_b64 s[60:61], s[42:43], s[60:61]", 'salu', wr=[s(60, 2)], rd=[s(42, 2), s(60, 2)]))
        E(salu('s_cmp_eq_u32', None, sWAVE, 3)); E(raw("s_cselect_b64 s[60:61], s[44:45], s[60:61]", 'salu', wr=[s(60, 2)], rd=[s(44, 2), s(60, 2)]))
        E(smov(s(3), 73728)); E(salu('s_cmp_ge_u32', None, sWAVE, 2)); E(csel(s(3), 131072, s(3)))
        E(valu('v_mul_u32_u24', v(2), s(3), v(0)))
        E(I(f"global_load_dword {vDUM}, v2, s[60:61]", 'vload', wr=vDUM.regs(), rd=vr(2) + sr(60, 2), tag='pf'))
    for j in range(nx0, CFG['xe']): E(xdma(j))
    if CFG.get('codepf', 3) == 1: code_pf()
    if CFG.get('codepf', 3) == 2:
        E(valu('v_mov_b32', v(46), v(3))); E(raw(f"s_mov_b64 s[100:101], {sPC}", 'salu', wr=[s(100, 2)], rd=[sPC]))
    srd(p, sK, 42, 8388608); srd(p, sV, 44, 8388608); srd(p, sWQ, 46, 4718592); srd(p, sWO, 48, 4718592)
    srd(p, sW1, 52, 5308416); srd(p, sW2, 54, 5308416); srd(p, sWS, 50, 0x10000000 if (CFG['stamps'] or CFG['fused']) else WSP_BYTES)
    srd(p, sOUT, 56, 2359296); srd(p, sDBG, 58, 256)
    E(mul(sW8704, sWAVE, 8 * PP)); E(mul(sWC, sWAVE, PP)); E(add(sWC, sWC, 32 * PP))
    E(shl(sW8192, sWAVE, 13)); E(shl(sWCH, sWAVE, 10)); E(add(sWCH, sWCH, 32768))
    E(mul(sW2176, sWAVE, 2 * PP)); E(mul(sW4352, sWAVE, 4 * PP)); E(add(sWA2, sW2176, 16 * PP))
    return p

def dispatch_text():
    return f""" s_cmp_ge_u32 {sROLE}, {NA + NM}
 s_cbranch_scc1 L_roleF
 s_cmp_ge_u32 {sROLE}, {NA}
 s_getpc_b64 s[94:95]
L_pc2:
 s_cbranch_scc1 L_jM
 s_add_u32 s94, s94, L_roleA-L_pc2
 s_addc_u32 s95, s95, 0
 s_setpc_b64 s[94:95]
L_jM:
 s_add_u32 s94, s94, L_roleM-L_pc2
 s_addc_u32 s95, s95, 0
 s_setpc_b64 s[94:95]
"""

def pfload(srd_, base):
    ld = bload('buffer_load_dword', vDUM, vPF, srd_, base); ld.tag = 'pf'; return ld
def pf_lin(srd_, base_s, start, nbytes, nl=64):
    def f():
        return [valu('v_lshrrev_b32', vPF2, 16, vTID), valu('v_and_b32', vPF, 63, vTID), valu('v_min_u32', vPF, nl - 1, vPF),
                valu('v_mad_u32_u24', vPF, vPF2, nl, vPF), valu('v_lshlrev_b32', vPF, 7, vPF), valu('v_add_u32', vPF, start, vPF),
                valu('v_min_u32', vPF, nbytes - 128, vPF), pfload(srd_, base_s)]
    return f
def pf_run(srd_, base_s, nbytes, nl):
    def f():
        return [valu('v_min_u32', vPF, nbytes - 128, vPFR), valu('v_add_u32', vPFR, 64 * nl * 128, vPFR), pfload(srd_, base_s)]
    f.nl = nl
    return f
def vPFW(kind): return {'F': v(8), 'A': v(7), 'M': v(36)}[kind]
def pf_row(kind, srd_, step=128):
    def f():
        ld = bload('buffer_load_dword', vDUM, vPFW(kind), srd_, sPW); ld.tag = 'pf'
        return [add(sPW, sPW, step), ld]
    return f
def pf_row_setup(kind, pitch, nl, base, lit):
    r = vPFW(kind)
    return [valu('v_bfe_u32', vPF2, vTID, 16, 5), valu('v_and_b32', r, 63, vTID), valu('v_min_u32', r, nl - 1, r),
            valu('v_mad_u32_u24', r, vPF2, nl, r), smov(sT2, pitch), valu('v_mul_u32_u24', r, sT2, r), add(sPW, base, lit)]
def pf_code(la, lb, nl):
    def f():
        L = f"L_cp{pf_code.k}"; pf_code.k += 1
        ld = I(f"global_load_dword {vDUM}, {vPF}, {sPC}", 'vload', wr=vDUM.regs(), rd=vPF.regs() + sPC.regs(), units=3, tag='pf')
        return [raw(f"s_getpc_b64 {sPC}", 'salu', wr=[sPC]), label(L),
                salu('s_add_u32', sPC[0], sPC[0], f"{la}-{L}"), salu('s_addc_u32', sPC[1], sPC[1], 0, scc_r=True),
                valu('v_bfe_u32', vPF2, vTID, 16, 5), valu('v_and_b32', vPF, 63, vTID), valu('v_min_u32', vPF, nl - 1, vPF),
                valu('v_mad_u32_u24', vPF, vPF2, nl, vPF), valu('v_lshlrev_b32', vPF, 7, vPF), valu('v_min_u32', vPF, f"{lb}-{la}-4", vPF), ld]
    return f
pf_code.k = 0
def pf_sched(R, k0, srd_, base_s, nbytes, nl):
    per = 64 * nl * 128; k = k0
    for st in range(0, nbytes, per):
        R.pf.setdefault(k, []).append(pf_lin(srd_, base_s, st, nbytes, nl)); k += 1
    return k

def role_prologue(R, vm_before):
    p = R.p; E = p.emit; kind = R.kind
    p.vm = list(vm_before)
    MS = CFG['shape'] == 'M'
    def PS(k):
        if CFG['stamps'] == 1: R.stamp(k)
    if CFG.get('delayrole') is not None:
        for r_ in CFG['delayrole']:
            E(salu('s_cmp_eq_u32', None, sROLE, r_[0])); E(raw(f"s_cbranch_scc0 L_{kind}_nd{r_[0]}"))
            E(smov(sLC, r_[1])); E(label(f"L_{kind}_dl{r_[0]}")); E(raw("s_sleep 127")); E(salu('s_sub_u32', sLC, sLC, 1)); E(salu('s_cmp_lg_u32', None, sLC, 0)); E(raw(f"s_cbranch_scc1 L_{kind}_dl{r_[0]}"))
            E(label(f"L_{kind}_nd{r_[0]}"))
    PS(56)
    lane = v(0)
    ILV = CFG.get('ilv') and not MS
    setup = []
    if ILV:
        E(valu('v_lshrrev_b32', v(48), 4, lane)); E(valu('v_and_b32', v(49), 15, lane)); E(valu('v_bfe_u32', v(50), lane, 1, 3)); E(valu('v_xor_b32', v(50), v(50), v(48)))
        E(valu('v_lshlrev_b32', v(49), 7, v(49))); E(valu('v_add_u32', v(49), s(6), v(49)))
        E(valu('v_lshl_add_u32', v(20), v(50), 4, v(49))); E(valu('v_xor_b32', v(21), 64, v(20)))
        def E(i):
            if isinstance(i, (list, tuple)):
                for x in i: E(x)
            else: setup.append(i)
    E(shl(sT2, sRB, 2)); E(add(sT2, sT2, sWAVE)); E(shl(sT2, sT2, 16)); E(valu('v_or_b32', vTID, sT2, lane))
    if kind in 'AM' and CFG.get('pair'):
        sHP_, sHS_ = s(86), s(85)
        if CFG.get('l844'): E(shl(sHP_, sROLE, 1)); E(add(sHP_, sHP_, 8))
        else: E(mul(sHP_, sROLE, 3))
        if kind == 'A':
            sHP_, sHS_ = sFA, sFC
            E(mul(sHS_, sROLE, 3)); E(salu('s_and_b32', s(4), sROLE, 1)); E(add(sHP_, sHS_, s(4)))
            E(shl(s(4), s(4), 1)); E(add(sHS_, sHS_, 2)); E(salu('s_sub_u32', sHS_, sHS_, s(4)))
            E(salu('s_sub_u32', sJQ, sHS_, sHP_)); E(shl(sJQ, sJQ, 8)); E(salu('s_sub_u32', sJQ, sJQ, 3 * 128))
        E(shl(sQ0, sHP_, 8))
        E(mul(sQA, sWAVE, 64 * 8192)); E(add(sQA, sQA, sQ0))
        E(shl(sQC, sWAVE, 16)); E(add(sQC, sQC, sQ0)); E(add(sQC, sQC, 256 * 8192))
        E(shr(s(3), sWAVE, 1)); E(shl(s(3), s(3), 13)); E(salu('s_and_b32', s(4), sWAVE, 1)); E(shl(s(4), s(4), 11)); E(add(s(3), s(3), s(4)))
        E(salu('s_sub_u32', s(3), s(3), 64)); E(shl(s(4), sWAVE, 11))
        for e, (h_, pfr) in enumerate([(sHP_, sPFa), (sHS_, sPFb)][:2 if kind == 'A' else 1]):
            E(shr(pfr, h_, 1)); E(shl(pfr, pfr, 19)); E(add(pfr, pfr, 1536 * 256))
            E(add(sKb[e], pfr, s(4))); E(add(sVb[e], pfr, s(3)))
        E(mul(sPFc, sROLE, 384 * 1152) if kind == 'A' else mul(sPFc, sHP_, 128 * 1152))
        if kind == 'A':
            E(mul(sHP_, sHP_, 128 * 1152)); E(mul(sHS_, sHS_, 128 * 1152))
            E(mul(sOA, sWAVE, 32 * 1152)); E(add(sOA1, sOA, sHS_)); E(add(sOA, sOA, sHP_))
            E(salu('s_sub_u32', sOA1, sOA1, 64 * 1152)); E(add(sT3, sOA, 192 * 1152)); E(salu('s_cmp_lt_u32', None, sWAVE, 2)); E(csel(sOA1, sT3, sOA1))
            E(shr(s(3), sWAVE, 1)); E(shl(s(3), s(3), 2)); E(salu('s_and_b32', s(4), sWAVE, 1)); E(add(s(3), s(3), s(4)))
            E(mul(sOB, s(3), 8 * 1152)); E(add(sOB1, sOB, sHS_)); E(add(sOB1, sOB1, 64 * 1152)); E(add(sOB, sOB, sHP_)); E(add(sOB, sOB, 128 * 1152))
        else:
            E(mul(sOA, sWAVE, 64 * 1152)); E(add(sOA, sOA, sPFc))
    elif kind in 'AM':
        E(mul(sT3, sROLE, 3 * 256))
        E(mul(sQA, sWAVE, 64 * 8192)); E(add(sQA, sQA, sT3))
        E(shl(sQC, sWAVE, 16)); E(add(sQC, sQC, sT3)); E(add(sQC, sQC, 256 * 8192))
        E(shr(s(3), sWAVE, 1)); E(shl(s(3), s(3), 13)); E(salu('s_and_b32', s(4), sWAVE, 1)); E(shl(s(4), s(4), 11)); E(add(s(3), s(3), s(4)))
        E(salu('s_sub_u32', s(3), s(3), 64)); E(shl(s(4), sWAVE, 11))
        if MS: E(shl(s(3), sWAVE, 12))
        for e in range(3 if kind == 'A' else 2):
            E(mul(sT3, sROLE, 3)); E(add(sT3, sT3, e)); E(shr(sT3, sT3, 1)); E(shl(sT3, sT3, 19)); E(add(sT3, sT3, 1536 * 256))
            if e == 0: E(smov(sPFa, sT3))
            if e == (2 if kind == 'A' else 1): E(smov(sPFb, sT3))
            E(add(sKb[e], sT3, s(4))); E(add(sVb[e], sT3, s(3)))
        E(mul(sPFc, sROLE, 384 * 1152))
        if kind == 'A':
            E(mul(sOA, sWAVE, 32 * 1152)); E(add(sOA, sOA, sPFc))
            E(shr(s(3), sWAVE, 1)); E(shl(s(3), s(3), 2)); E(salu('s_and_b32', s(4), sWAVE, 1)); E(add(s(3), s(3), s(4)))
            E(mul(sOB, s(3), 8 * 1152)); E(add(sOB, sOB, sPFc)); E(add(sOB, sOB, 128 * 1152))
        else:
            E(mul(sOA, sWAVE, 64 * 1152)); E(add(sOA, sOA, sPFc))
    if kind in 'FM':
        if kind == 'F':
            E(salu('s_sub_u32', s(3), sROLE, NA + NM)); E(mul(sPF1, s(3), 13 * 128)); E(shl(sPF1h, s(3), 6)); E(add(sPF1h, sPF1h, 69 * 128))
        elif CFG.get('l844'):
            E(mul(sPF1, sROLE, 5 * 128)); E(add(sPF1, sPF1, (52 - 40) * 128)); E(smov(sPF1h, sPF1))
        else:
            E(smov(sPF1, f_fullcol(5) * 2)); E(smov(sPF1h, f_halfcol(5) * 2))
        E(mul(sHA, sWAVE, 64 * 9216)); E(add(sHA, sHA, sPF1))
        E(mul(sHC, sWAVE, 8 * 9216)); E(add(sHC, sHC, sPF1)); E(add(sHC, sHC, 256 * 9216))
        E(mul(sHH, sWAVE, 128 * 9216)); E(add(sHH, sHH, sPF1h))
        E(mul(sHHC, sWAVE, 16 * 9216)); E(add(sHHC, sHHC, sPF1h)); E(add(sHHC, sHHC, 512 * 9216))
        E(mul(sPF2, sPF1, 576)); E(mul(sPF2h, sPF1h, 576))
        E(mul(sFA, sWAVE, 64 * 1152)); E(add(sFA, sFA, sPF2))
        if MS:
            E(salu('s_and_b32', s(3), sWAVE, 1)); E(shl(s(3), s(3), 1)); E(shr(s(4), sWAVE, 1)); E(add(s(3), s(3), s(4))); E(mul(sFC, s(3), 8 * 1152))
        else: E(mul(sFC, sWAVE, 4 * 1152))
        E(add(sFS, sFC, sPF2h)); E(add(sFC, sFC, sPF2)); E(add(sFC, sFC, 256 * 1152))
    if CFG['pf'] >= 3:
        if kind in 'AM': E(mul(sT3, sROLE, 3 * 256) if not CFG.get('pair') else smov(sT3, sQ0))
        E(pf_row_setup(kind, 8192 if kind in 'AM' else 9216, 18, sT3 if kind in 'AM' else sPF1, 0))
        f_ = pf_row(kind, sWQ if kind in 'AM' else sW1)
        early_pf = [f_()[1]] + f_() + f_()
        if CFG.get('ez'): E(early_pf[0])
        if CFG.get('epf', 1) == 3:
            R.pf.setdefault(0, [])[:0] = [f_, f_]
    E(add(sT3, sROLE, NS - NA if kind == 'F' else 0))
    E(mul(sSt, sT3, PSTR())); E(shl(sT3, sRB, 2)); E(add(sT3, sT3, sWAVE)); E(mul(sT3, sT3, PWAVE)); E(add(sSt, sSt, sT3))
    if kind == 'M': E(add(sSt2, sSt, (NS - NA) * PSTR()))
    if CFG['fused']:
        E(shl(sT2, sRB, 14)); E(add(sT2, sT2, CTRL))
        E(add(sT3, sROLE, NS - NA if kind == 'F' else 0)); E(shl(sT3, sT3, 2)); E(add(sT3, sT3, sT2))
        E(salu('s_cmp_eq_u32', None, sWAVE, 0)); E(csel(sT3, sT3, OOB)); E(csel(sT2, sT2, OOB))
        E(valu('v_and_b32', v(24), 15, lane)); E(valu('v_lshlrev_b32', v(25), 7, v(24))); E(valu('v_add_u32', v(25), 128, v(25)))
        E(raw("v_cmp_eq_u32 vcc, 0, v24", 'valu', wr=['vcc'], rd=[v(24)])); E(valu('v_cndmask_b32', v(25), v(25), 0, 'vcc') if False else raw("v_cndmask_b32 v25, v25, v24, vcc", 'valu', wr=[v(25)], rd=[v(25), v(24), 'vcc']))
        E(valu('v_lshrrev_b32', v(26), 4, lane)); E(valu('v_lshl_add_u32', v(25), v(26), 2 + (NS - NA).bit_length() - 1, v(25))); E(valu('v_add_u32', v(25), sT3, v(25)))
        E(raw(f"s_mov_b64 vcc, {hex(((1 << (NA + 1)) - 1) * (0x10001 if kind == 'M' else 1))}", 'salu', wr=['vcc'])); E(valu('v_mov_b32', vCT, OOB)); E(nop(1))
        E(raw(f"v_cndmask_b32 {vCT}, {vCT}, v25, vcc", 'valu', wr=[vCT], rd=[vCT, v(25), 'vcc']))
        E(valu('v_mov_b32', v(24), vCT))
        if CFG.get('abn'):
            assert not CFG.get('bal')
            E(valu('v_and_b32', v(26), 15, lane)); E(valu('v_lshlrev_b32', v(26), 8, v(26))); E(add(sT2, sT2, ABN)); E(valu('v_add_u32', v(26), sT2, v(26)))
            if kind == 'A':
                t_ = [x - 20 for x in [28, 29, 22, 30, 31, 21, 32, 33, 34, 35]]
                E(smov(s(98), sum(t_[i] << (4 * i) for i in range(8)))); E(smov(s(99), t_[8] | (t_[9] << 4)))
                E(shl(s(4), sROLE, 2)); E(salu('s_lshr_b64', s(98, 2), s(98, 2), s(4))); E(salu('s_and_b32', s(4), s(98), 15)); E(add(s(4), s(4), 20))
                E(valu('v_mov_b32', v(27), s(4))); E(add(s(4), sROLE, 10)); E(valu('v_mov_b32', v(25), s(4)))
                E(raw("v_cmp_gt_u32 vcc, 32, v0", 'valu', wr=['vcc'], rd=[lane])); E(raw("v_cndmask_b32 v27, v27, v25, vcc", 'valu', wr=[v(27)], rd=[v(27), v(25), 'vcc']))
                E(valu('v_mov_b32', v(25), sROLE))
                E(raw("v_cmp_gt_u32 vcc, 16, v0", 'valu', wr=['vcc'], rd=[lane])); E(raw("v_cndmask_b32 v27, v27, v25, vcc", 'valu', wr=[v(27)], rd=[v(27), v(25), 'vcc']))
            else:
                E(smov(s(4), 20) if kind == 'M' else add(s(4), sROLE, 12)); E(valu('v_mov_b32', v(27), s(4)))
            E(valu('v_lshl_add_u32', v(26), v(27), 2, v(26))); E(valu('v_mov_b32', v(25), 0))
            z = bstore('buffer_store_dword', v(25), v(26), sWS, 0, flags='sc1'); z.tag = 'zero'; E(z)
        else:
            assert not (CFG.get('l844') or CFG.get('four') or CFG.get('nof'))
            E(add(sT2, sT2, 4 * (NPART + 1)))
            def flag(lane_, item):
                E(raw(f"s_lshl2_add_u32 {sT3}, {item}, {sT2}", 'salu', wr=[sT3], rd=[item, sT2]))
                E(raw(f"v_writelane_b32 v24, {sT3}, {lane_}", 'valu', wr=[v(24)], rd=[sT3, v(24)]))
            def tflag(lane_, tab, base):
                t_ = [min(x - base, 15) for x in tab]
                E(smov(s(98), sum(t_[i] << (4 * i) for i in range(8)))); E(smov(s(99), t_[8] | (t_[9] << 4)))
                E(shl(s(4), sROLE, 2)); E(salu('s_lshr_b64', s(98, 2), s(98, 2), s(4))); E(salu('s_and_b32', s(4), s(98), 15)); E(add(s(4), s(4), base)); flag(lane_, s(4))
            if kind == 'A' and CFG.get('bal'):
                flag(32, sROLE); tflag(33, BAL2, 10); tflag(34, BAL3, 21)
                tflag(35, [x if x < 36 else i for i, x in enumerate(BALM)][:0] + [(BALM[i] if BALM[i] < 36 else BAL2[i]) for i in range(10)], 10)
            elif kind == 'A':
                flag(32, sROLE); E(add(s(4), sROLE, 10)); flag(33, s(4)); tflag(34, [28, 29, 22, 30, 31, 21, 32, 33, 34, 35], 20)
            elif kind == 'F' and CFG.get('bal'):
                E(add(s(4), sROLE, 12)); E(salu('s_cmp_lt_u32', None, sROLE, 13)); E(csel(s(4), 41, s(4))); flag(32, s(4))
            else:
                E(smov(s(4), 20) if kind == 'M' else add(s(4), sROLE, 12)); flag(32, s(4))
        E(valu('v_mov_b32', v(25), 0))
        z = bstore('buffer_store_dword', v(25), v(24), sWS, 0, flags='sc1'); z.tag = 'zero'; E(z)
        E(shl(sT2, sRB, 4)); E(salu('s_cmp_eq_u32', None, sWAVE, 0)); E(csel(sT2, sT2, 256))
        E(valu('v_mov_b32', v(23), 256)); E(raw(f"v_writelane_b32 v23, {sT2}, 0", 'valu', wr=[v(23)], rd=[sT2, v(23)]))
    T_ = [v(24), v(25), v(26), v(27), v(28), v(29)]
    q, r, c4, rb1 = T_[0], T_[1], T_[2], T_[3]
    E(valu('v_lshrrev_b32', q, 4, lane)); E(valu('v_bfe_u32', r, lane, 2, 2)); E(valu('v_and_b32', c4, 3, lane)); E(valu('v_bfe_u32', rb1, lane, 3, 1))
    E(valu('v_and_b32', T_[4], 7, lane)); E(valu('v_bfe_u32', T_[5], lane, 4, 1)); E(valu('v_lshlrev_b32', T_[5], 1, T_[5]))
    E(valu('v_xor_b32', T_[4], T_[4], T_[5])); E(valu('v_lshlrev_b32', vSWZ, 4, T_[4]))
    E(valu('v_lshrrev_b32', T_[4], 5, lane)); E(valu('v_and_b32', T_[5], 3, vROWN)); E(valu('v_lshl_add_u32', vROWP, T_[4], 4, T_[5]))
    E(smov(sT2, PP)); E(valu('v_mul_u32_u24', T_[4], sT2, q)); E(valu('v_lshl_add_u32', T_[4], r, 7, T_[4]))
    E(valu('v_lshl_add_u32', T_[4], c4, 3, T_[4])); E(valu('v_lshl_add_u32', vRW[0][0], rb1, 5, T_[4]))
    E(valu('v_mov_b32', vDP, vRW[0][0]))
    if MS:
        E(valu('v_and_b32', T_[4], 7, lane)); E(valu('v_bfe_u32', T_[5], lane, 4, 1)); E(valu('v_lshlrev_b32', T_[5], 2, T_[5]))
        E(valu('v_xor_b32', T_[4], T_[4], T_[5])); E(valu('v_lshlrev_b32', vSWZM, 4, T_[4]))
        E(valu('v_bfe_u32', q, lane, 4, 1)); E(valu('v_lshlrev_b32', q, 5, q))
        E(valu('v_and_b32', T_[4], 1, lane)); E(valu('v_lshl_add_u32', q, T_[4], 4, q))
        E(valu('v_bfe_u32', T_[4], lane, 1, 1)); E(valu('v_lshl_add_u32', q, T_[4], 3, q))
        E(valu('v_lshrrev_b32', T_[5], 5, lane))
        E(smov(sT2, PP)); E(valu('v_mad_u32_u24', T_[4], T_[5], sT2, q)); E(valu('v_lshl_add_u32', T_[4], r, 7, T_[4]))
        E(valu('v_lshl_add_u32', vRW[0][0], rb1, 6, T_[4])); E(valu('v_xor_b32', rb1, 1, rb1)); E(valu('v_lshl_add_u32', vRW[0][1], rb1, 6, T_[4]))
        if kind in 'FM':
            E(valu('v_lshl_add_u32', vRH[0], T_[5], 9, q)); E(valu('v_lshl_add_u32', vRH[0], r, 6, vRH[0]))
            E(valu('v_lshlrev_b32', T_[4], 4, c4)); E(valu('v_lshrrev_b32', T_[5], 2, lane)); E(smov(sT2, 9216))
            E(valu('v_mad_u32_u24', vOFFH, T_[5], sT2, T_[4]))
        E(valu('v_lshrrev_b32', q, 4, lane))
    else:
        E(valu('v_xor_b32', vRW[0][1], 32, vRW[0][0]))
    for b in (1, 2):
        for T in range(2): E(valu('v_add_u32', vRW[b][T], 65536 * b, vRW[0][T]))
    if kind in 'FM' and not MS:
        E(valu('v_lshlrev_b32', T_[4], 9, q)); E(valu('v_lshl_add_u32', T_[4], r, 6, T_[4])); E(valu('v_lshl_add_u32', T_[4], c4, 3, T_[4]))
        E(valu('v_and_b32', T_[5], 1, q)); E(valu('v_lshl_add_u32', vRH[0], T_[5], 5, T_[4])); E(valu('v_xor_b32', vRH[1], 32, vRH[0]))
        E(valu('v_lshrrev_b32', T_[4], 5, lane)); E(valu('v_lshlrev_b32', T_[4], 1, T_[4])); E(valu('v_xor_b32', T_[4], T_[4], c4))
        E(valu('v_lshlrev_b32', T_[4], 4, T_[4])); E(valu('v_lshrrev_b32', T_[5], 2, lane)); E(smov(sT2, 9216))
        E(valu('v_mad_u32_u24', vOFFH, T_[5], sT2, T_[4]))
    if kind in 'AM':
        E(valu('v_and_b32', T_[4], 15, lane)); E(valu('v_xor_b32', T_[4], T_[4], q)); E(valu('v_lshlrev_b32', T_[4], 4, T_[4]))
        E(valu('v_lshl_add_u32', vOFFK, q, 8, T_[4]))
    E(set_offw(8192 if kind in 'AM' else 9216, 'M' if MS else 'S'))
    if MS:
        XA = [v(20), v(21), v(22), v(39)]
        E(valu('v_and_b32', T_[4], 31, lane)); E(valu('v_bfe_u32', T_[5], lane, 1, 3)); E(valu('v_lshrrev_b32', q, 5, lane)); E(valu('v_xor_b32', T_[5], T_[5], q))
        E(valu('v_lshlrev_b32', T_[4], 7, T_[4])); E(valu('v_add_u32', T_[4], s(6), T_[4]))
        E(valu('v_lshl_add_u32', XA[0], T_[5], 4, T_[4]))
        for tt in range(1, 4): E(valu('v_xor_b32', XA[tt], 32 * tt, XA[0]))
    else:
        E(valu('v_and_b32', T_[4], 15, lane)); E(valu('v_bfe_u32', T_[5], lane, 1, 3)); E(valu('v_xor_b32', T_[5], T_[5], q))
        E(valu('v_lshlrev_b32', T_[4], 7, T_[4])); E(valu('v_add_u32', T_[4], s(6), T_[4]))
        E(valu('v_lshl_add_u32', v(20), T_[5], 4, T_[4])); E(valu('v_xor_b32', v(21), 64, v(20)))
        if kind in 'AM':
            E(smov(sT2, PP)); E(valu('v_mul_u32_u24', v(22), sT2, r)); E(valu('v_lshl_add_u32', v(22), c4, 8, v(22)))
            E(valu('v_xor_b32', T_[4], q, c4)); E(valu('v_lshl_add_u32', v(22), T_[4], 4, v(22)))
    E(valu('v_lshlrev_b32', vLANE16, 4, lane))
    if CFG['stamps'] == 2: E(valu('v_mov_b32', vSTAMP, 0))
    if CFG['fused'] and CFG.get('rep') and kind in 'FM':
        E(rep_addr(kind, v(24), v(25))); E(valu('v_mov_b32', v(25), 0))
        z = bstore('buffer_store_dword', v(25), v(24), sWS, 0, flags='sc1'); z.tag = 'zero'; E(z)
    E = p.emit
    sONE = s(97) if ILV else sT2
    SA = 56 if ILV else 28
    for i in range(8): E(valu('v_mov_b32', v(SA + i), 0))
    E(smov(sONE, 0x3f803f80))
    def stats(j):
        for tt in range(2):
            for g in range(2):
                for qd in range(4):
                    x = X(2 * j + tt, g)[qd]
                    E(valu('v_dot2c_f32_bf16', v(SA + 2 * g + (qd & 1)), sONE, x, rmw=True))
                    E(valu('v_dot2c_f32_bf16', v(SA + 4 + 2 * g + (qd & 1)), x, x, rmw=True))
    PS(57)
    for j in range(9):
        E(waitvm(p.vm_wait_for(lambda t: t == ('x', j))))
        if j == 0: PS(58)
        if MS:
            for tt in range(4): E(ds_b128(XM(4 * j + tt), XA[tt], j * 4096))
        else:
            for tt in range(2):
                for g in range(2): E(ds_b128(X(2 * j + tt, g), v(20 + tt), j * 4096 + g * 2048))
        if j + CFG['xe'] < 9: E(xdma(j + CFG['xe']))
        if CFG['pf'] >= 3 and CFG.get('epf', 1) == 1 and j == max(8 - CFG['xe'], 0): E(early_pf)
        if ILV:
            nper = -(-len(setup) // max(CFG['ilv'] - j, 1))
            while nper < len(setup) and (SCC in setup[nper].rd or setup[nper].txt.startswith('s_cselect') or VCC in setup[nper].rd): nper += 1
            E(setup[:nper]); del setup[:nper]
        if j >= 1:
            E(waitlg(4)); stats(j - 1)
    E(waitlg(0)); PS(59); E(barrier())
    if CFG.get('codepf', 3) == 2: E(I(f"global_load_dword {vDUM}, v46, s[100:101]", 'vload', wr=vDUM.regs(), rd=vr(46) + sr(100, 2), tag='pf'))
    if CFG['pf'] >= 3 and CFG.get('epf', 1) == 2: E(early_pf)
    pend = []
    for k in range(2 if CFG.get('pro2') else 3):
        st = R.stages[k]
        if st.pre_dma: pend.append(st.pre_dma())
        pend += st.dma(k, False)
    if CFG.get('epf', 1) == 4: pend[CFG.get('epos', 9):CFG.get('epos', 9)] = [early_pf[1:3], early_pf[3:5]]
    d0 = CFG.get('d0', 9)
    for it in pend[:d0]: E(it)
    pend = pend[d0:]
    PS(60)
    stats(8)
    acc4 = [v(SA), v(SA + 2), v(SA + 4), v(SA + 6)]
    for x in acc4: E(valu('v_add_f32', x, x, v(x.n + 1)))
    if MS:
        for b_ in (0, 2):
            E(valu('v_add_f32', acc4[b_], acc4[b_], acc4[b_ + 1]))
        for b_ in (0, 2): E(valu('v_mov_b32', acc4[b_ + 1], acc4[b_]))
    for op in (('v_permlane32_swap_b32',) if MS else ('v_permlane16_swap_b32', 'v_permlane32_swap_b32')):
        for x in acc4: E(valu('v_mov_b32', v(x.n + 1), x))
        for x in acc4: E(valu(op, x, v(x.n + 1), rmw=True, extra_wr=[v(x.n + 1)]))
        for x in acc4: E(valu('v_add_f32', x, x, v(x.n + 1)))
    for x in acc4: E(valu('v_mul_f32', x, f2u(1.0 / 576), x))
    for g in range(2): E(valu('v_fma_f32', acc4[2 + g], '-' + str(acc4[g]), acc4[g], acc4[2 + g]))
    for g in range(2): E(valu('v_max_f32', acc4[2 + g], 0, acc4[2 + g]))
    for g in range(2): E(valu('v_add_f32', acc4[2 + g], f2u(1e-5), acc4[2 + g]))
    for g in range(2): E(valu('v_rsq_f32', acc4[2 + g], acc4[2 + g]))
    for g in range(2): E(valu('v_mul_f32', acc4[2 + g], f2u(-LOG2E), acc4[2 + g]))
    for g in range(2): E(valu('v_mov_b32', v(20 + g), acc4[g]))
    for g in range(2): E(valu('v_mul_f32', acc4[g], '-' + str(acc4[g]), acc4[2 + g], extra_rd=[acc4[g]]))
    E(smov(sT2, 0xffff0000))
    if CFG.get('dotn'):
        cl = [v(SA + 1), v(SA + 3)]; ch = [v(SA + 5), v(SA + 7)]
        for g in range(2): E(valu('v_cvt_pk_bf16_f32', cl[g], acc4[2 + g], 0))
        for g in range(2): E(valu('v_lshlrev_b32', ch[g], 16, cl[g]))
        for g in range(2): E(valu('v_mul_f32', acc4[g], '-' + str(v(20 + g)), ch[g], extra_rd=[v(20 + g)]))
    PS(61)
    n = 0
    for t in range(18):
        for g in range(2):
            tps = [v(24, 2), v(26, 2), v(16, 2), v(18, 2)]
            x = X(t, g)
            if CFG.get('dotn'):
                for qd in range(4):
                    E(valu('v_dot2_f32_bf16', tps[qd][0], x[qd], cl[g], acc4[g])); E(valu('v_dot2_f32_bf16', tps[qd][1], x[qd], ch[g], acc4[g]))
            else:
                for qd in range(4):
                    E(valu('v_lshlrev_b32', tps[qd][0], 16, x[qd])); E(valu('v_and_b32', tps[qd][1], sT2, x[qd]))
                for qd in range(4): E(valu('v_pk_fma_f32', tps[qd], tps[qd], v(acc4[2 + g].n, 2), v(acc4[g].n, 2), mods='op_sel_hi:[1,0,0]'))
            for qd in range(4): E(valu('v_cvt_pk_bf16_f32', x[qd], tps[qd][0], tps[qd][1]))
            if pend and n % CFG.get('dn', 2) == 0: E(pend.pop(0))
            n += 1
    for it in pend: E(it)
    if CFG['fused']:
        E(valu('v_mov_b32', v(24), 1)); E(waitvm(p.vm_wait_for(lambda t: t == 'zero')))
        E(I(f"buffer_atomic_add v24, v23, {sDBG}, 0 offen sc1", 'vstore', rd=vr(23, 2) + sDBG.regs(), units=3, tag='init'))
    for _ in range(CFG.get('idle', 0)): E(raw("s_sleep 16"))
    PS(62)
    if kind in 'AM' and MS:
        ln, m_, key, t_ = v(16), v(17), v(18), v(19)
        E([valu('v_lshrrev_b32', ln, 4, vLANE16), valu('v_and_b32', key, 19, ln),
           valu('v_bfe_u32', t_, ln, 2, 1), valu('v_lshl_add_u32', key, t_, 3, key),
           valu('v_bfe_u32', t_, ln, 3, 1), valu('v_lshl_add_u32', key, t_, 2, key),
           valu('v_lshrrev_b32', m_, 2, key), smov(sT2, PP), valu('v_mul_u32_u24', m_, sT2, m_),
           valu('v_and_b32', key, 3, key), valu('v_lshl_add_u32', m_, key, 8, m_),
           valu('v_lshrrev_b32', t_, 5, ln), valu('v_xor_b32', t_, t_, key),
           valu('v_lshl_add_u32', vRKM[0], t_, 4, m_), valu('v_xor_b32', vRKM[1], 32, vRKM[0])])
    elif kind in 'AM':
        E(valu('v_mov_b32', vRK[0], v(22))); E(valu('v_add_u32', vRK[1], 65536, v(22))); E(valu('v_add_u32', vRK[2], 131072, v(22)))
    if CFG['stamps']: E(raw(f"v_writelane_b32 {vSTAMP}, s96, 55", 'valu', wr=[vSTAMP], rd=[s(96)])) if kind != 'A' else None
    if CFG['stamps']: E(smov(s(43), s(96)))
    nlr = {'F': 10, 'A': 11, 'M': 8}[kind]
    if kind != 'M': E([valu('v_lshrrev_b32', vPF2, 16, vTID), valu('v_and_b32', vPFR, 63, vTID), valu('v_min_u32', vPFR, nlr - 1, vPFR),
       valu('v_mad_u32_u24', vPFR, vPF2, nlr, vPFR), valu('v_lshlrev_b32', vPFR, 7, vPFR)])
    if CFG['stamps']: E(smov(s(97), 0))
    E(smov(sLN0, f2u(-1.0 / math.sqrt(128.0))))

def slow_check(R, heads, base2):
    def f():
        p = R.p; E = p.emit
        t = v(254); lo = v(255)
        E(valu('v_mov_b32', lo, f2u(2.0 ** -40))); E(smov(sT3, f2u(2.0 ** 40)))
        for (hd, Q, O) in heads:
            L = f"L_{R.kind}_slow{hd}"
            if CFG['shape'] == 'M':
                E(valu('v_med3_f32', t, Lsave[hd], sT3, lo))
                E(raw(f"v_cmp_neq_f32 vcc, {t}, {Lsave[hd]}", 'valu', wr=['vcc'], rd=[t, Lsave[hd]])); E(nop(4))
            else:
                E(valu('v_med3_f32', t, Lsave[2 * hd], sT3, lo))
                E(raw(f"v_cmp_neq_f32 s[98:99], {t}, {Lsave[2 * hd]}", 'valu', wr=[s(98, 2)], rd=[t, Lsave[2 * hd]]))
                E(valu('v_med3_f32', t, Lsave[2 * hd + 1], sT3, lo))
                E(raw(f"v_cmp_neq_f32 vcc, {t}, {Lsave[2 * hd + 1]}", 'valu', wr=['vcc'], rd=[t, Lsave[2 * hd + 1]])); E(nop(4))
                E(raw("s_or_b64 vcc, vcc, s[98:99]", 'salu', wr=['vcc'], rd=['vcc', s(98, 2)])); E(nop(1))
            if CFG.get('force_slow'): E(raw(f"s_mov_b64 vcc, -1", 'salu', wr=['vcc']))
            E(raw(f"s_cbranch_vccz {L}_ret"))
            E(raw(f"s_call_b64 {sRET}, {L}"))
            E(label(f"{L}_ret"))
            R.slow.append((slow_path if CFG['shape'] == 'M' else slow_pathS)(L, hd, Q, O, base2))
        E(nop(1))
    return f

def slow_path(L, hd, Q, Odst, b2):
    p = Prog(); E = p.emit
    O = v(48, 64); S = v(b2, 16); P = v(b2 + 16, 8); F = v(b2 + 24, 16)
    vK, vV, vM, vL, t0, t1 = [v(b2 + 40 + i) for i in range(6)]
    sB, sJ, sO = s(98), s(99), s(97)
    E(I(".p2align 2", 'label')); E(label(L))
    E(nop(7)); E(nop(7))
    E([valu('v_lshrrev_b32', t0, 4, vLANE16), valu('v_and_b32', vK, 19, t0), valu('v_bfe_u32', t1, t0, 2, 1), valu('v_lshl_add_u32', vK, t1, 3, vK),
       valu('v_bfe_u32', t1, t0, 3, 1), valu('v_lshl_add_u32', vK, t1, 2, vK), valu('v_lshrrev_b32', t1, 5, t0),
       valu('v_lshlrev_b32', vV, 1, vK), valu('v_lshl_add_u32', vV, t1, 11, vV),
       valu('v_lshlrev_b32', vK, 8, vK), valu('v_lshl_add_u32', vK, t1, 4, vK)])
    E([mul(sB, sROLE, 3), add(sB, sB, hd), shr(sB, sB, 1), shl(sB, sB, 19), add(sB, sB, 1536 * 256)])
    def qk():
        for half in range(2):
            for t in range(4): E(bload('buffer_load_dwordx4', F.sub(4 * t, 4), vK, sK, sO, (4 * half + t) * 32))
            E(waitvm(0))
            for t in range(4):
                tt = 4 * half + t
                E(mfma(S, F.sub(4 * t, 4), Q.sub(4 * tt, 4), 0 if tt == 0 else S))
            E(nop(7)); E(nop(7))
    E(valu('v_mov_b32', vM, 0xff800000)); E(smov(sJ, 0))
    E(label(L + "_a"))
    E(add(sO, sB, sJ)); qk()
    for i in range(0, 16, 2): E(valu('v_max3_f32', vM, vM, S[i], S[i + 1]))
    E(add(sJ, sJ, 8192)); E(salu('s_cmp_lt_u32', None, sJ, 16 * 8192)); E(raw(f"s_cbranch_scc1 {L}_a"))
    E(valu('v_mov_b32', t0, vM)); E(valu('v_permlane32_swap_b32', vM, t0, rmw=True, extra_wr=[t0])); E(valu('v_max_f32', vM, vM, t0))
    for i in range(64): E(valu('v_mov_b32', O[i], 0))
    E(valu('v_mov_b32', vL, 0)); E(smov(sJ, 0))
    E(label(L + "_b"))
    E(add(sO, sB, sJ)); qk()
    for i in range(16): E(valu('v_sub_f32', S[i], S[i], vM))
    for i in range(16): E(valu('v_exp_f32', S[i], S[i]))
    for i in range(16): E(valu('v_add_f32', vL, vL, S[i]))
    for q in range(8): E(valu('v_cvt_pk_bf16_f32', P[q], S[2 * q], S[2 * q + 1]))
    for u in range(2):
        for tp in range(2):
            for tq in range(2):
                for j in range(8):
                    E(bload('buffer_load_ushort', F[8 * (j & 1) + 4 * tq + j // 2], vV, sV, sO, j * 256 + (2 * tp + tq) * 64))
            E(waitvm(0))
            for i in range(8): E(valu('v_lshl_or_b32', F[i], F[8 + i], 16, F[i]))
            for tq in range(2):
                D_ = O.sub(16 * (2 * tp + tq), 16)
                E(mfma(D_, F.sub(4 * tq, 4), P.sub(4 * u, 4), D_))
            E(nop(7))
        if u == 0: E(add(sO, sO, 4096))
    E(add(sJ, sJ, 8192)); E(salu('s_cmp_lt_u32', None, sJ, 16 * 8192)); E(raw(f"s_cbranch_scc1 {L}_b"))
    E(nop(7)); E(nop(7))
    E(valu('v_mov_b32', t0, vL)); E(valu('v_permlane32_swap_b32', vL, t0, rmw=True, extra_wr=[t0])); E(valu('v_add_f32', vL, vL, t0))
    E(valu('v_rcp_f32', t0, vL))
    for tau in range(4):
        A_ = O.sub(16 * tau, 16)
        for e in range(16): E(valu('v_mul_f32', A_[e], A_[e], t0))
        for q in range(8): E(valu('v_cvt_pk_bf16_f32', A_[2 * q], A_[2 * q], A_[2 * q + 1]))
        for q in range(4): E(valu('v_permlane16_swap_b32', A_[2 * q], A_[2 * q + 8], rmw=True, extra_wr=[A_[2 * q + 8]]))
        for q in range(8): E(valu('v_accvgpr_write_b32', Odst[8 * tau + q], A_[2 * q]))
    E(nop(1)); E(raw(f"s_setpc_b64 {sRET}"))
    return p

def slow_pathS(L, hd, Q, Odst, b2):
    p = Prog(); E = p.emit
    ob = 48; kv = None
    if isinstance(b2, tuple): b2, ob = b2
    if isinstance(Odst, tuple):
        OFf, kv = Odst
        class _D:
            def __getitem__(s_, i): return OFf(i // 8)[i % 8]
        Odst = _D()
    O = v(ob, 64); S = v(b2, 16); P = v(b2 + 16, 8); F = v(b2 + 24, 16)
    vK, vV, t0, t1 = [v(b2 + 40 + i) for i in range(4)]
    vM = [v(b2 + 44), v(b2 + 45)]; vL = [v(b2 + 46), v(b2 + 47)]
    sB, sJ, sO = s(98), s(99), s(97)
    E(I(".p2align 2", 'label')); E(label(L))
    E(nop(7)); E(nop(7))
    E([valu('v_lshrrev_b32', t0, 4, vLANE16), valu('v_and_b32', t1, 15, t0), valu('v_lshrrev_b32', t0, 4, t0),
       valu('v_lshlrev_b32', vK, 8, t1), valu('v_lshl_add_u32', vK, t0, 4, vK),
       valu('v_lshlrev_b32', vV, 1, t1), valu('v_lshl_add_u32', vV, t0, 10, vV)])
    if kv is not None: E(smov(sB, kv))
    else: E([mul(sB, sROLE, 3), add(sB, sB, hd), shr(sB, sB, 1), shl(sB, sB, 19), add(sB, sB, 1536 * 256)])
    def qk():
        for T in range(2):
            E(add(sO, sB, sJ)) if T == 0 else E(add(sO, sO, 4096))
            for t in range(4): E(bload('buffer_load_dwordx4', F.sub(4 * t, 4), vK, sK, sO, t * 64))
            E(waitvm(0))
            for t in range(4):
                for g_ in range(2):
                    D_ = S.sub(8 * T + 4 * g_, 4)
                    E(mfma(D_, F.sub(4 * t, 4), Q.sub(8 * t + 4 * g_, 4), 0 if t == 0 else D_))
            E(nop(7)); E(nop(3))
    def allq(x, op):
        for sw in ('v_permlane16_swap_b32', 'v_permlane32_swap_b32'):
            E(valu('v_mov_b32', t0, x)); E(valu(sw, x, t0, rmw=True, extra_wr=[t0])); E(valu(op, x, x, t0))
    for g_ in range(2): E(valu('v_mov_b32', vM[g_], 0xff800000))
    E(smov(sJ, 0))
    E(label(L + "_a"))
    qk()
    for T in range(2):
        for g_ in range(2):
            for i in (0, 2): E(valu('v_max3_f32', vM[g_], vM[g_], S[8 * T + 4 * g_ + i], S[8 * T + 4 * g_ + i + 1]))
    E(add(sJ, sJ, 8192)); E(salu('s_cmp_lt_u32', None, sJ, 16 * 8192)); E(raw(f"s_cbranch_scc1 {L}_a"))
    for g_ in range(2): allq(vM[g_], 'v_max_f32')
    for i in range(64): E(valu('v_mov_b32', O[i], 0))
    for g_ in range(2): E(valu('v_mov_b32', vL[g_], 0))
    E(smov(sJ, 0))
    E(label(L + "_b"))
    qk()
    for i in range(16): E(valu('v_sub_f32', S[i], S[i], vM[(i >> 2) & 1]))
    for i in range(16): E(valu('v_exp_f32', S[i], S[i]))
    for i in range(16): E(valu('v_add_f32', vL[(i >> 2) & 1], vL[(i >> 2) & 1], S[i]))
    for g_ in range(2):
        for T in range(2):
            for k in range(2): E(valu('v_cvt_pk_bf16_f32', P[4 * g_ + 2 * T + k], S[8 * T + 4 * g_ + 2 * k], S[8 * T + 4 * g_ + 2 * k + 1]))
    for tp in range(4):
        for jh in range(2):
            E(add(sO, sB, sJ)) if jh == 0 else E(add(sO, sO, 4096))
            for tq in range(2):
                for jl in range(4):
                    j = 4 * jh + jl
                    E(bload('buffer_load_ushort', F[8 * (j & 1) + 4 * tq + j // 2], vV, sV, sO, jl * 256 + (2 * tp + tq) * 32))
        E(waitvm(0))
        for i in range(8): E(valu('v_lshl_or_b32', F[i], F[8 + i], 16, F[i]))
        for tq in range(2):
            for g_ in range(2):
                D_ = O.sub(8 * (2 * tp + tq) + 4 * g_, 4)
                E(mfma(D_, F.sub(4 * tq, 4), P.sub(4 * g_, 4), D_))
        E(nop(7))
    E(add(sJ, sJ, 8192)); E(salu('s_cmp_lt_u32', None, sJ, 16 * 8192)); E(raw(f"s_cbranch_scc1 {L}_b"))
    E(nop(7)); E(nop(3))
    for g_ in range(2): allq(vL[g_], 'v_add_f32')
    for g_ in range(2): E(valu('v_rcp_f32', vL[g_], vL[g_]))
    for i in range(64): E(valu('v_mul_f32', O[i], O[i], vL[(i >> 2) & 1]))
    for kk in range(4):
        for g_ in range(2):
            for T in range(2):
                for c in range(2):
                    r = 8 * (2 * kk + T) + 4 * g_ + 2 * c
                    E(valu('v_cvt_pk_bf16_f32', O[r], O[r], O[r + 1])); E(valu('v_accvgpr_write_b32', Odst[8 * kk + 4 * g_ + 2 * T + c], O[r]))
    E(nop(1)); E(raw(f"s_setpc_b64 {sRET}"))
    return p

NREP = 6
ABN = 4096
BAL2 = [10, 11, 22, 13, 14, 21, 12, 17, 15, 19]; BALM = [63, 63, 63, 63, 63, 63, 16, 63, 18, 63]; BAL3 = [28, 29, 23, 30, 31, 24, 32, 33, 34, 35]
sMD2 = s(84)
def rep_addr(kind, dst, t):
    return [shl(sT2, sRB, 14), add(sT2, sT2, CTRL + 2048), add(sT3, sROLE, NS - NA), shl(sT3, sT3, 2), add(sT2, sT2, sT3),
            salu('s_cmp_eq_u32', None, sWAVE, 0), csel(sT2, sT2, OOB),
            valu('v_lshlrev_b32', dst, 3, vLANE16), valu('v_add_u32', dst, sT2, dst), valu('v_mov_b32', t, OOB),
            raw(f"v_cmp_gt_u32 vcc, {hex(NA * NREP * 16)}, {vLANE16}", 'valu', wr=['vcc'], rd=[vLANE16]), valu('v_cndmask_b32', dst, t, dst, 'vcc')]
vCR = v(31)
def add_signals(R):
    P2 = [k for k, st in enumerate(R.stages) if st.name.startswith('P2')]
    def sig(first):
        def f():
            out = [valu('v_add_u32', vPRG, 1, vPRG)]
            return out + [bstore('buffer_store_dword', vPRG, vCT, sWS, 0, flags='sc1')]
        return f
    def sig7():
        return [valu('v_add_u32', vPRG, 1, vPRG), bstore('buffer_store_dword', vPRG, vCR, sWS, 0, flags='sc1'), bstore('buffer_store_dword', vPRG, vCT, sWS, 0, flags='sc1')]
    def chain(stages, base):
        firsts = [k for k in stages if R.stages[k].sub == 0]
        for c in range(8):
            k = firsts[c + 1] + CFG.get('siglag', {}).get(R.kind, 2)
            if k > stages[-1]: break
            R.stages[k].cover_st = base + c; R.stages[k].post_bar = sig(c == 0)
            if c == 7 and CFG.get('rep') and R.kind in 'FM': R.stages[k].post_bar = sig7
        if CFG.get('rep') and R.kind in 'FM': R.pf.setdefault(firsts[1], []).append(lambda: rep_addr(R.kind, vCR, vPF))
    chain(P2, 0)
    R.stages[P2[0]].post_bar = lambda: [valu('v_mov_b32', vPRG, 0)]

LDSC = 4 * SLOT
sAB = s(72, 2); sRM = s(74, 2); sCD = s(98, 2)
sRS, sRF, sSP, sC, sI, sPB, sPART, sOK, sPAR, sXW, sPWv, sTO = s(78), s(79), s(71), s(80), s(81), s(82), s(47), s(40), s(41), s(59), s(3), s(58)
sIT = [s(42), s(44), s(45)]; sXP = [s(46), s(60), s(61)]
sRET2 = s(66, 2)
vP, vD, vA, vO, vXO, vL4, vDO, vLA, vIT, vLD, vSC = [v(16 + i) for i in range(11)]
vX4 = v(28)
def s64(op, d, *src, scc_r=False): return salu(op, d, *src, scc_r=scc_r)
sPV = s(85)
def red_setup(kind):
    o = [shl(sPB, sRB, 14), add(sPB, sPB, CTRL), salu('s_cmp_eq_u32', None, sWAVE, 0), csel(sT3, 0, OOB),
         valu('v_lshrrev_b32', vL4, 2, vLANE16), valu('v_add_u32', vL4, sT3, vL4),
         valu('v_mov_b32', vSC, OOB), add(sT2, sT3, 4 * NPART), raw(f"v_writelane_b32 {vSC}, {sT2}, 0", 'valu', wr=[vSC], rd=[sT2, vSC]),
         valu('v_mov_b32', vS1, vSC), valu('v_min_u32', vL5, NPART * 16, vLANE16), valu('v_lshrrev_b32', vL5, 2, vL5), valu('v_add_u32', vL5, sT3, vL5),
         add(sT2, sT3, 252), raw(f"v_writelane_b32 {vSC}, {sT2}, 1", 'valu', wr=[vSC], rd=[sT2, vSC]),
         shl(sT2, sRB, 4), add(sT2, sT2, sT3), valu('v_mov_b32', vDO, 256), raw(f"v_writelane_b32 {vDO}, {sT2}, 0", 'valu', wr=[vDO], rd=[sT2, vDO])]
    if kind == 'A': o += [shl(sPV, sROLE, 7), add(sPV, sPV, 256), add(sPV, sPV, sPB)]
    if CFG.get('abn'): o += [shl(sAV_, sROLE, 8), add(sAV_, sAV_, ABN), add(sAV_, sAV_, sPB)]
    return o
vS1, vL5 = v(29), v(30)
sAV_ = s(76 + 1); vP2 = v(31)
def ab_load(): return bload('buffer_load_dword', vP2, vL4, sWS, sAV_, flags='sc1')
def ab_eval():
    return [raw(f"v_cmp_ne_u32 vcc, 0, {vP2}", 'valu', wr=['vcc'], rd=[vP2]), nop(1), raw(f"s_mov_b32 {sAB[0]}, vcc_lo", 'salu', wr=[sAB[0]], rd=['vcc']), raw(f"s_and_b32 {sAB[1]}, vcc_hi, 15", 'salu', wr=[sAB[1]], rd=['vcc'])]
PRIV = [False]
def red_poll(shared=False):
    cnt = [valu('v_mov_b32', vD, 0), I(f"buffer_atomic_add {vD}, {vDO}, {sDBG}, 0 offen sc0 sc1", 'vload', wr=vD.regs(), rd=vD.regs() + vDO.regs() + sDBG.regs(), units=3)]
    if PRIV[0] and not shared:
        return [cnt, [bstore('buffer_store_dword', vS1, vS1, sWS, sPV, flags='sc1'), bload('buffer_load_dword', vP, vL5, sWS, sPV, flags='sc1')]]
    return [cnt, [bstore('buffer_store_dword', vSC, vSC, sWS, sPB, flags='sc1'), bload('buffer_load_dword', vP, vL4, sWS, sPB, flags='sc1')]]
vG = [v(28), v(29), v(30)]; vGA = v(31); vGP = v(27)
def l2pf_setup():
    return [valu('v_lshrrev_b32', vGP, 7, vLANE16), smov(sT2, PSTR()), valu('v_mul_lo_u32', vGA, vGP, sT2),
            valu('v_bfe_u32', vA, vLANE16, 4, 3), valu('v_lshl_add_u32', vGA, vA, 7, vGA), shl(sT2, sWAVE, 10), valu('v_add_u32', vGA, sT2, vGA),
            valu('v_lshlrev_b32', vGP, 2, vGP), valu('v_mov_b32', vA, OOB), smov(sT2, 68), raw(f"v_writelane_b32 {vA}, {sT2}, 0", 'valu', wr=[vA], rd=[vA, sT2])]
def l2pf_poll():
    st = bstore('buffer_store_dword', vA, vA, sWS, sPB, flags='sc1')
    out = [[st]]
    for i in range(3):
        ld = bload('buffer_load_dword', vG[i], vGP, sWS, sPB, 32 * i, flags='sc1'); ld.tag = 'gp'
        out.append([ld])
    return out
def l2pf_issue(R, dlt):
    out = [[add(sI, sROLE, dlt), salu('s_and_b32', sT2, sI, 3), shr(sC, sI, 2), shl(sT3, sRB, 2), add(sT2, sT2, sT3), mul(sSP, sT2, PWAVE),
            shl(sT3, sC, 12), add(sSP, sSP, sT3), valu('v_mov_b32', vO, OOB)]]
    for i in range(3):
        ld = bload('buffer_load_dword', vDUM, vG[i], sWS, sT2); ld.tag = 'pf'
        cmp_ = raw(f"v_cmp_lt_u32 vcc, {sC}, {vG[i]}", 'valu', wr=['vcc'], rd=[sC, vG[i]])
        pre = [cmp_]
        if i == 2: pre += [raw("s_and_b64 vcc, vcc, 0xff", 'salu', wr=['vcc'], rd=['vcc'])]
        out.append(pre + [add(sT2, sSP, 8 * i * PSTR()), valu('v_cndmask_b32', vG[i], vO, vGA, 'vcc'), ld])
    return out
def red_eval():
    o = [raw(f"v_cmp_ne_u32 vcc, 0, {vP}", 'valu', wr=['vcc'], rd=[vP]), nop(1),
         raw(f"s_lshr_b64 {sAB}, vcc, {NPART + 1}", 'salu', wr=[sAB], rd=['vcc']), salu('s_and_b32', sAB[1], sAB[1], 15), smov(sRS, 0), smov(sRF, 0)]
    for c in range(9):
        o += [raw(f"v_cmp_ge_u32 vcc, {c}, {vP}", 'valu', wr=['vcc'], rd=[vP]), nop(1),
              raw(f"s_and_b32 {sT2}, vcc_lo, {hex((1 << NS) - 1)}", 'salu', wr=[sT2], rd=['vcc']), csel(sRS, sRS, 4 * (c + 1)),
              raw(f"s_and_b32 {sT2}, vcc_lo, {hex((1 << NPART) - (1 << NS))}", 'salu', wr=[sT2], rd=['vcc']), csel(sRF, sRF, 4 * (c + 1))]
    return o
def red_pub(par):
    return [shl(sT2, sRF, 8), salu('s_or_b32', sT2, sT2, sRS), shl(sT3, sTO, 16), salu('s_or_b32', sT2, sT2, sT3),
            valu('v_mov_b32', vIT, sT2), valu('v_mov_b32', vLA, par), raw(f"ds_write_b32 {vLA}, {vIT}", 'other', rd=[vLA, vIT]), waitlg(0)]
def red_get(par):
    return [valu('v_mov_b32', vLA, par), raw(f"ds_read_b32 {vIT}, {vLA}", 'ds', wr=[vIT], rd=[vLA]), waitlg(0),
            valu('v_readfirstlane_b32', sT2, vIT), salu('s_and_b32', sRS, sT2, 255), salu('s_bfe_u32', sRF, sT2, (8 << 16) | 8), shr(sTO, sT2, 16)]
def red_early(p, n):
    E = p.emit
    E([smov(sRS, 0), smov(sRF, 0), smov(sOK, 0), smov(sTO, 0), smov(sPAR, LDSC + 4), nop(1)])
    E(salu('s_cmp_eq_u32', None, sWAVE, 0)); E(raw(f"s_cbranch_scc0 L_{n}_e2"))
    E(waitvm(p.vm_wait_for(lambda t: t == 'poll')))
    E(valu('v_readfirstlane_b32', sOK, vD))
    E(salu('s_cmp_ge_u32', None, sOK, 16)); E(raw(f"s_cbranch_scc0 L_{n}_e1"))
    E(red_eval())
    E(label(f"L_{n}_e1"))
    E(red_pub(LDSC))
    E(label(f"L_{n}_e2"))

def ld_part(L, ks, flags):
    out = []
    for k in ks:
        out.append([add(sT2, sPART, k * PSTR()), bload('buffer_load_dwordx4', v(L + 4 * k, 4), vLD, sWS, sT2, flags=flags)])
    return out
def ld_x(L, sXO_):
    if CFG.get('nox'): return [[valu('v_mov_b32', vA, OOB), bload('buffer_load_dwordx2', v(L + 4 * NPART, 2), vA, sX, sXO_)], [bload('buffer_load_dwordx2', v(L + 4 * NPART + 2, 2), vA, sX, sXO_, 32)]]
    return [[bload('buffer_load_dwordx2', v(L + 4 * NPART, 2), vXO, sX, sXO_)], [bload('buffer_load_dwordx2', v(L + 4 * NPART + 2, 2), vXO, sX, sXO_, 32)]]
RB_ = 48
sD0, sD1 = s(68), s(69)
def proc_sum(E, L, ks, after, loads):
    SA, FA, T = RB_, RB_ + 8, RB_ + 16
    issued = 0; ks = list(ks)
    E(smov(sT3, 0xffff0000))
    for j, k in enumerate(ks):
        if loads: E(loads.pop(0)); issued += 1
        E(waitvm(len(ks) - 1 - j + after + issued))
        acc = SA if k < NS else FA
        for q in range(4):
            x = v(L + 4 * k + q)
            if k in (0, NS):
                E(valu('v_lshlrev_b32', v(acc + 2 * q), 16, x)); E(valu('v_and_b32', v(acc + 2 * q + 1), sT3, x))
            else:
                E(valu('v_dot2c_f32_bf16', v(acc + 2 * q), sD0, x, rmw=True)); E(valu('v_dot2c_f32_bf16', v(acc + 2 * q + 1), sD1, x, rmw=True))
    return issued
def proc_fin(E, L, sXO_, xwait, loads):
    SA, FA, T = RB_, RB_ + 8, RB_ + 16; XR = L + 4 * NPART; issued = 0
    for e in range(8): E(valu('v_exp_f32', v(T + e), v(FA + e)))
    for e in range(8): E(valu('v_add_f32', v(T + e), 1.0, v(T + e)))
    while len(loads) > 1: E(loads.pop(0)); issued += 1
    for e in range(8): E(valu('v_rcp_f32', v(T + e), v(T + e)))
    for e in range(8): E(valu('v_mul_f32', v(FA + e), f2u(-math.log(2.0)), v(FA + e)))
    for e in range(8): E(valu('v_mul_f32', v(FA + e), v(FA + e), v(T + e)))
    while loads: E(loads.pop(0)); issued += 1
    if xwait is not None: E(waitvm(xwait + issued))
    for q in range(4):
        E(valu('v_lshlrev_b32', v(T + 2 * q), 16, v(XR + q))); E(valu('v_and_b32', v(T + 2 * q + 1), sT3, v(XR + q)))
    for e in range(8): E(valu('v_fma_f32', v(T + e), v(SA + e), v(FA + e), v(T + e)))
    for q in range(4): E(valu('v_cvt_pk_bf16_f32', v(XR + q), v(T + 2 * q), v(T + 2 * q + 1)))
    if CFG.get('out4', True):
        def dpp(d, src, bank): return I(f"v_mov_b32_dpp {d}, {src} row_ror:8 row_mask:0xf bank_mask:{bank}", 'perm', wr=d.regs(), rd=src.regs() + d.regs())
        for i in range(2): E(valu('v_permlane16_swap_b32', v(XR + i), v(XR + 2 + i), rmw=True, extra_wr=[v(XR + 2 + i)]))
        for i in range(2): E(valu('v_mov_b32', v(T + i), v(XR + i)))
        for i in range(2): E(dpp(v(XR + i), v(XR + 2 + i), '0xc'))
        for i in range(2): E(dpp(v(XR + 2 + i), v(T + i), '0x3'))
        E(bstore('buffer_store_dwordx4', v(XR, 4), vX4, sOUT, sXO_, flags=CFG.get('oflags', 'sc1')))
        E(valu('v_mov_b32', vO, OOB)); E(bstore('buffer_store_dword', vO, vO, sOUT, 0))
        return
    E(bstore('buffer_store_dwordx2', v(XR, 2), vXO, sOUT, sXO_)); E(bstore('buffer_store_dwordx2', v(XR + 2, 2), vXO, sOUT, sXO_, 32))
def proc_all(E, L, sXO_, pre, loads):
    loads = list(loads)
    n = proc_sum(E, L, range(NPART), 2 + pre, loads)
    proc_fin(E, L, sXO_, pre + n, loads)

def acc_part(E, L, k):
    acc = RB_ if k < NS else RB_ + 8
    for q in range(4):
        x = v(L + 4 * k + q)
        if k in (0, NS):
            E(valu('v_lshlrev_b32', v(acc + 2 * q), 16, x)); E(valu('v_and_b32', v(acc + 2 * q + 1), sT3, x))
        else:
            E(valu('v_dot2c_f32_bf16', v(acc + 2 * q), sD0, x, rmw=True)); E(valu('v_dot2c_f32_bf16', v(acc + 2 * q + 1), sD1, x, rmw=True))
def stream(E, segs, hooks=None):
    W = CFG.get('rwin', 8); FL = CFG.get('fflags', 'sc1')
    seq = []
    for (L, sP, sX_, ks, wx, fin) in segs:
        if wx:
            for it in ld_x(L, sX_): seq.append((it, None))
        ks = list(ks)
        for j, k in enumerate(ks):
            it = [add(sT2, sP, k * PSTR()), bload('buffer_load_dwordx4', v(L + 4 * k, 4), vLD, sWS, sT2, flags=FL)]
            last = fin and j == len(ks) - 1
            seq.append((it, (lambda L=L, k=k, last=last, sX_=sX_: (acc_part(E, L, k), proc_fin(E, L, sX_, None, []) if last else None, last)[2])))
    E(smov(sT3, 0xffff0000))
    n = len(seq); issued = 0
    extra_at = []
    for c in range(n):
        while issued < min(n, c + W): E(seq[issued][0]); issued += 1
        if hooks and c in hooks:
            for _ in range(hooks[c](issued + sum(1 for e in extra_at))): extra_at.append(issued)
            E(smov(sT3, 0xffff0000))
        if seq[c][1] is None: continue
        E(waitvm(issued - 1 - c + sum(1 for e in extra_at if e > c)))
        if seq[c][1]():
            extra_at += [issued, issued]

def body_items(E, n, its, two, ni, ensure, refresh, done, ST, seg, final_flag, poll_hook, LATE, L0, L1, FOUR, sMID, offs, sPT):
    E(salu('s_min_u32', sT2, sRS, sRF)); E(salu('s_cmp_lt_u32', None, its[two - 1], sT2)); E(raw(f"s_cbranch_scc0 L_{n}_sl"))
    ST(its[0])
    AB = CFG.get('abn')
    def ab_hook(_): E(ab_load()); return 1
    hooks = {(NPART + 2) * two - CFG.get('pollat', 8): poll_hook}
    if AB:
        if ni < 3: hooks = {}
        hooks[14 if LATE else 4] = ab_hook
    if LATE: hooks[CFG.get('flagat', 3) if n == 'A' else 0] = final_flag
    stream(E, [seg(0, L0), seg(1, L1)][:two], hooks)
    ST(51)
    E(raw(f"s_branch L_{n}_j"))
    E(label(f"L_{n}_sl"))
    if LATE and two == 2 and CFG.get('mid1', 1):
        E(salu('s_min_u32', sT2, sRS, sRF)); E(salu('s_cmp_lt_u32', None, its[0], sT2)); E(raw(f"s_cbranch_scc0 L_{n}_s0"))
        ST(52)
        stream(E, [seg(0, L0)], {CFG.get('flagat', 3): final_flag, 12: poll_hook}); done(its[0])
        refresh(2); ensure(its[1], 1, 1)
        stream(E, [seg(1, L1)], {11: poll_hook, 3: ab_hook} if AB else {11: poll_hook})
        E(raw(f"s_branch L_{n}_j"))
        E(label(f"L_{n}_s0"))
    if LATE: final_flag(0)
    for i in range(two):
        ensure(its[i], 1, 1)
        hk = {11: poll_hook} if (i == two - 1 and not (AB and ni < 3)) else {}
        if AB and i == two - 1: hk[4] = ab_hook
        stream(E, [seg(i, L0)], hk); done(its[i])
    E(label(f"L_{n}_j"))
    for i in range(two): done(its[i])
    if FOUR or ((CFG.get('asg') == 3 or CFG.get('bal')) and n == 'A'):
        E(salu('s_cmp_gt_u32', None, sMID, 35)); E(raw(f"s_cbranch_scc1 L_{n}_nm"))
        refresh(2)
        ensure(sMID, 1, 1); ST(sMID)
        E(offs(sMID, sXP[0]))
        stream(E, [seg(0, L1)], {13: poll_hook}); done(sMID)
        E(label(f"L_{n}_nm"))
    def warm():
        if not CFG.get('warm', 1): return
        E(valu('v_mov_b32', v(240), vLD)); E(valu('v_mov_b32', v(241), vX4)); E(valu('v_mov_b32', vLD, OOB)); E(valu('v_mov_b32', vX4, OOB))
        E(raw(f"s_call_b64 {sRET2}, L_{n}_ft"))
        E(valu('v_mov_b32', vLD, v(240))); E(valu('v_mov_b32', vX4, v(241)))
    if ni == 3:
        if CFG.get('asg') == 3:
            E(salu('s_cmp_lt_u32', None, its[2], 36)); E(raw(f"s_cbranch_scc1 L_{n}_h3"))
            E(red_poll(True)[1]); E(waitvm(0)); E(raw(f"s_branch L_{n}_fin")); E(label(f"L_{n}_h3"))
        refresh(2, AB and CFG.get('abx', 1))
        if CFG.get('nof'):
            E(salu('s_cmp_gt_u32', None, sMD2, 35)); E(raw(f"s_cbranch_scc1 L_{n}_k1"))
            ensure(sMD2, 1, 1); E(offs(sMD2, sXP[0])); ST(sMD2)
            E(salu('s_cmp_lt_u32', None, its[2], sRS)); E(raw(f"s_cbranch_scc0 L_{n}_k0"))
            E(salu('s_cmp_lt_u32', None, its[2], sRF)); E(raw(f"s_cbranch_scc1 L_{n}_k0"))
            warm()
            stream(E, [seg(0, L1), seg(2, L0, range(NS), True, False)], {20: poll_hook.sh}); done(sMD2)
            E(raw(f"s_branch L_{n}_k2"))
            E(label(f"L_{n}_k0"))
            stream(E, [seg(0, L1)], {11: poll_hook}); done(sMD2)
            refresh(2)
            E(label(f"L_{n}_k1"))
        ensure(its[2], 1, 0); ST(its[2])
        E(salu('s_cmp_lt_u32', None, its[2], sRF)); E(raw(f"s_cbranch_scc1 L_{n}_f3"))
        if CFG.get('rep') and n == 'A':
            warm()
            stream(E, [seg(2, L0, range(NS), True, False)], {4: poll_hook.sh})
            E(label(f"L_{n}_k2"))
            E(salu('s_cmp_eq_u32', None, sWAVE, 0)); E(raw(f"s_cbranch_scc0 L_{n}_w2"))
            E(waitvm(0))
            E(raw(f"v_cmp_ne_u32 vcc, 0, {vP}", 'valu', wr=['vcc'], rd=[vP])); E(nop(1))
            E(raw(f"s_lshr_b64 {sAB}, vcc, {NPART + 1}", 'salu', wr=[sAB], rd=['vcc'])); E(salu('s_and_b32', sAB[1], sAB[1], 15))
            E(salu('s_or_b32', sT2, sAB[0], sAB[1])); E(csel(sRS, 1, 0))
            E(shr(sC, its[2], 2)); E(mul(sI, sROLE, NREP * 128)); E(add(sI, sI, sPB)); E(add(sI, sI, 2048)); E(add(sSP, sI, NREP * 128))
            E(label(f"L_{n}_w0"))
            E(bload('buffer_load_dword', vP, vL5, sWS, sI, flags='sc1')); E(waitvm(0))
            E(raw(f"v_cmp_ge_u32 vcc, {sC}, {vP}", 'valu', wr=['vcc'], rd=[vP, sC])); E(nop(1))
            E(raw(f"s_and_b32 {sT2}, vcc_lo, {hex((1 << NPART) - (1 << NS))}", 'salu', wr=[sT2], rd=['vcc'])); E(csel(sRF, 0, 36))
            E(raw(f"s_cbranch_scc0 L_{n}_w1"))
            E(add(sI, sI, 128)); E(salu('s_cmp_lt_u32', None, sI, sSP)); E(raw(f"s_cbranch_scc0 L_{n}_w1"))
            E(raw(f"s_sleep {CFG.get('rsleep', 6)}")); E(raw(f"s_branch L_{n}_w0"))
            E(label(f"L_{n}_w1")); E(red_pub(sPAR))
            E(label(f"L_{n}_w2")); E(barrier()); E(red_get(sPAR)); E(salu('s_xor_b32', sPAR, sPAR, 12))
            E(smov(sMID, sRS))
            ensure(its[2], 0, 1); ST(50)
            E(raw(f"s_call_b64 {sRET2}, L_{n}_ft")); done(its[2])
            E(salu('s_cmp_eq_u32', None, sMID, 0)); E(raw(f"s_cbranch_scc1 L_{n}_exit")); E(raw(f"s_branch L_{n}_fb"))
            E(label(f"L_{n}_ft"))
            stream(E, [seg(2, L0, range(NS, NPART), False, True)])
            E(raw(f"s_setpc_b64 {sRET2}"))
        elif CFG.get('pw') and n == 'A':
            E(salu('s_cmp_eq_u32', None, sMD2, 0)); E(raw(f"s_cbranch_scc0 L_{n}_old"))
            warm()
            vQ, vZ = v(242), v(243)
            E(valu('v_min_u32', vQ, NPART * 16, vLANE16)); E(valu('v_lshrrev_b32', vQ, 2, vQ))
            E(valu('v_mov_b32', vZ, OOB)); E(smov(sT2, 4 * NPART)); E(raw(f"v_writelane_b32 {vZ}, {sT2}, 0", 'valu', wr=[vZ], rd=[sT2, vZ]))
            def drop_hook(_): E(bstore('buffer_store_dword', vZ, vZ, sWS, sPV, flags='sc1')); return 1
            stream(E, [seg(2, L0, range(NS), True, False)], {5: drop_hook})
            E(shr(sC, its[2], 2)); E(smov(sSP, 0))
            E(label(f"L_{n}_pw0"))
            E(bload('buffer_load_dword', vP, vQ, sWS, sPV, flags='sc1'))
            E(salu('s_and_b32', sT2, sSP, 3)); E(salu('s_cmp_eq_u32', None, sT2, sWAVE)); E(raw(f"s_cbranch_scc0 L_{n}_pw1"))
            E(bstore('buffer_store_dword', vZ, vZ, sWS, sPV, flags='sc1')); E(waitvm(1)); E(raw(f"s_branch L_{n}_pw2"))
            E(label(f"L_{n}_pw1")); E(waitvm(0))
            E(label(f"L_{n}_pw2"))
            E(raw(f"v_cmp_ge_u32 vcc, {sC}, {vP}", 'valu', wr=['vcc'], rd=[vP, sC])); E(nop(1))
            E(raw(f"s_and_b32 {sT2}, vcc_lo, {hex((1 << NPART) - (1 << NS))}", 'salu', wr=[sT2], rd=['vcc'])); E(raw(f"s_cbranch_scc0 L_{n}_pw3"))
            E(add(sSP, sSP, 1)); E(salu('s_cmp_gt_u32', None, sSP, 4 * CFG.get('spin', 4000))); E(raw(f"s_cbranch_scc1 L_{n}_pw4"))
            E(raw(f"s_sleep {CFG.get('pwsleep', 2)}")); E(raw(f"s_branch L_{n}_pw0"))
            E(label(f"L_{n}_pw4"))
            E(valu('v_lshlrev_b32', vO, 4, vLANE16)); E(valu('v_mov_b32', vIT, OOB)); E(valu('v_mov_b32', vA, 1))
            E(raw(f"v_cmp_gt_u32 vcc, 0x100, {vLANE16}", 'valu', wr=['vcc'], rd=[vLANE16])); E(valu('v_cndmask_b32', vO, vIT, vO, 'vcc'))
            E(raw(f"s_lshl2_add_u32 {sT2}, {its[2]}, {sPB}", 'salu', wr=[sT2], rd=[its[2], sPB])); E(add(sT2, sT2, ABN))
            E(bstore('buffer_store_dword', vA, vO, sWS, sT2, flags='sc1')); E(waitvm(0))
            E(bstore('buffer_store_dword', vZ, vZ, sWS, sPV, flags='sc1')); E(waitvm(0))
            E(bload('buffer_load_dword', vP, vQ, sWS, sPV, flags='sc1')); E(waitvm(0))
            E(raw(f"v_cmp_ge_u32 vcc, {sC}, {vP}", 'valu', wr=['vcc'], rd=[vP, sC])); E(nop(1))
            E(raw(f"s_and_b32 {sT2}, vcc_lo, {hex((1 << NPART) - (1 << NS))}", 'salu', wr=[sT2], rd=['vcc'])); E(raw(f"s_cbranch_scc1 L_{n}_exit"))
            E(label(f"L_{n}_pw3")); ST(50)
            E(raw(f"s_call_b64 {sRET2}, L_{n}_ft")); E(raw(f"s_branch L_{n}_exit"))
            E(label(f"L_{n}_ft"))
            stream(E, [seg(2, L0, range(NS, NPART), False, True)])
            E(raw(f"s_setpc_b64 {sRET2}"))
            E(label(f"L_{n}_old"))
            stream(E, [seg(2, L0, range(NS), True, False)])
            ensure(its[2], 0, 1)
            E(raw(f"s_call_b64 {sRET2}, L_{n}_ft")); E(raw(f"s_branch L_{n}_f4"))
        else:
            stream(E, [seg(2, L0, range(NS), True, False)], {6: poll_hook})
            refresh(0)
            ensure(its[2], 0, 1); ST(50)
            stream(E, [seg(2, L0, range(NS, NPART), False, True)], {0: poll_hook.sh} if not AB else None)
            E(raw(f"s_branch L_{n}_f4"))
        E(label(f"L_{n}_f3"))
        stream(E, [seg(2, L0)], {11: poll_hook.sh} if not AB else None)
        E(label(f"L_{n}_f4"))
        done(its[2])
        if AB and CFG.get('abx', 1):
            E(salu('s_cmp_eq_u32', None, sMD2, 0)); E(raw(f"s_cbranch_scc1 L_{n}_exit")); E(raw(f"s_branch L_{n}_fb"))


def reducer(kind):
    p = Prog(); E = p.emit; n = kind; FL = CFG.get('fflags', 'sc1')
    PRIV[0] = (kind == 'A')
    def ST(code):
        if CFG['stamps'] != 2: return
        E(raw(f"s_memtime {sSTAMP}", wr=[sSTAMP])); E(raw("s_waitcnt lgkmcnt(0)")); E(salu('s_sub_u32', s(98), s(98), s(100)))
        E(shl(s(98), s(98), 6)); E(salu('s_or_b32', s(98), s(98), code))
        E(add(s(97), s(97), 16)); E(salu('s_min_u32', s(97), s(97), 11 * 16))
        E(raw(f"v_cmp_eq_u32 vcc, s97, {vLANE16}", 'valu', wr=['vcc'], rd=[s(97), vLANE16])); E(valu('v_mov_b32', v(27), s(98)))
        E(valu('v_cndmask_b32', vSTAMP, vSTAMP, v(27), 'vcc'))
    def offs(item, sX_):
        return [salu('s_and_b32', sT2, item, 3), shr(sC, item, 2), shl(sT3, sRB, 2), add(sT2, sT2, sT3), mul(sPART, sT2, PWAVE), add(sX_, sPART, sXW),
                shl(sT3, sC, 12), add(sT3, sT3, sPWv), add(sPART, sPART, sT3), shl(sT3, sC, 7), add(sX_, sX_, sT3)]
    k_ = [0]
    def ensure(item, s_, f_):
        L = f"L_{n}_en{k_[0]}"; k_[0] += 1
        if s_ and f_: E(salu('s_min_u32', sT2, sRS, sRF)); r = sT2
        else: r = sRS if s_ else sRF
        E(salu('s_cmp_lt_u32', None, item, r)); E(raw(f"s_cbranch_scc1 {L}"))
        E(smov(sI, item)); E(smov(sC, (1 if s_ else 0) | (2 if f_ else 0)))
        E(raw(f"s_call_b64 {sRET2}, L_{n}_sync"))
        E(salu('s_cmp_eq_u32', None, sTO, 0)); E(raw(f"s_cbranch_scc0 L_{n}_fb"))
        E(label(L))
    def done(item): E(raw(f"s_bitset0_b64 {sRM}, {item}", 'salu', wr=[sRM], rd=[sRM, item]))
    E(label(f"L_{n}_red"))
    if CFG.get('rdelay'):
        if n == 'A': (E(waitvm(0)), E(barrier()), E(valu('v_mov_b32', vPRG, 9)), E(bstore('buffer_store_dword', vPRG, vCT, sWS, 0, flags='sc1')))
        for _ in range({'A': 30, 'M': 24, 'F': 14}[n]): E(raw("s_sleep 16"))
    E(red_get(LDSC))
    if CFG.get('rdelay'): E(smov(sRS, 36)); E(smov(sRF, 36))
    E(valu('v_lshrrev_b32', vO, 4, vLANE16)); E(valu('v_and_b32', vXO, 7, vO)); E(valu('v_lshlrev_b32', vLD, 4, vXO))
    E(smov(sT2, 1152)); E(valu('v_mul_u32_u24', vXO, sT2, vXO))
    E(valu('v_lshrrev_b32', vA, 3, vO)); E(valu('v_lshl_add_u32', vX4, vA, 4, vXO))
    E(valu('v_bfe_u32', vA, vO, 3, 2)); E(valu('v_lshl_add_u32', vXO, vA, 3, vXO)); E(valu('v_lshl_add_u32', vLD, vA, 8, vLD))
    E(valu('v_lshrrev_b32', vA, 5, vO)); E(valu('v_lshl_add_u32', vXO, vA, 6, vXO)); E(valu('v_lshl_add_u32', vLD, vA, 11, vLD))
    E(mul(sXW, sWAVE, 8 * 1152)); E(shr(sPWv, sWAVE, 1)); E(shl(sPWv, sPWv, 10)); E(salu('s_and_b32', sT2, sWAVE, 1)); E(shl(sT2, sT2, 7)); E(add(sPWv, sPWv, sT2))
    L0, L1 = 72, 76 + 4 * NPART
    E(smov(sD0, 0x3f80)); E(smov(sD1, 0x3f800000))
    E(raw(f"s_mov_b64 {sRM}, 0", 'salu', wr=[sRM]))
    FOUR = CFG.get('four')
    sMID = s(48 + 0) if False else s(83)
    def nib(dst, tab, base):
        E(smov(sCD[0], sum(tab[i] << (4 * i) for i in range(8)))); E(smov(sCD[1], tab[8] | (tab[9] << 4)))
        E(shl(sT2, sROLE, 2)); E(s64('s_lshr_b64', sCD, sCD, sT2)); E(salu('s_and_b32', dst, sCD[0], 15))
        E(salu('s_cmp_eq_u32', None, dst, 15)); E(csel(dst, 63 - base, dst)); E(add(dst, dst, base))
    if n == 'A':
        E(smov(sIT[0], sROLE)); E(add(sIT[1], sROLE, NA))
        if CFG.get('bal'):
            nib(sIT[1], [x - 10 for x in BAL2], 10); nib(sIT[2], [x - 21 for x in BAL3], 21); nib(sMID, [min(x - 16, 15) for x in BALM], 16)
            E(raw(f"s_bitset1_b64 {sRM}, {sMID}", 'salu', wr=[sRM], rd=[sRM, sMID]))
        elif CFG.get('asg') == 2: E(add(sIT[2], sROLE, 16))
        elif CFG.get('asg') == 3:
            E(add(sMID, sROLE, 16)); E(raw(f"s_bitset1_b64 {sRM}, {sMID}", 'salu', wr=[sRM], rd=[sRM, sMID]))
            E(salu('s_and_b32', sT2, sROLE, 1)); E(shr(sIT[2], sROLE, 1)); E(add(sIT[2], sIT[2], 24)); E(salu('s_cmp_eq_u32', None, sT2, 0)); E(csel(sIT[2], sIT[2], 63))
        elif CFG.get('l844'): E(add(sIT[2], sROLE, 28))
        elif FOUR:
            nib(sMID, [0, 15, 1, 2, 15, 3, 4, 5, 6, 7], 20); nib(sIT[2], [0, 1, 15, 2, 3, 15, 4, 5, 6, 7], 28)
            E(raw(f"s_bitset1_b64 {sRM}, {sMID}", 'salu', wr=[sRM], rd=[sRM, sMID]))
        else:
            nib(sIT[2], [0, 1, 15, 2, 3, 15, 4, 5, 6, 7], 28)
            E(salu('s_cmp_eq_u32', None, sROLE, 2)); E(csel(sIT[2], 22, sIT[2])); E(salu('s_cmp_eq_u32', None, sROLE, 5)); E(csel(sIT[2], 21, sIT[2]))
            if CFG.get('nof'):
                nib(sMD2, CFG['nof'], 23)
                E(raw(f"s_bitset1_b64 {sRM}, {sMD2}", 'salu', wr=[sRM], rd=[sRM, sMD2]))
        its = sIT
    elif CFG.get('asg') == 2:
        if n == 'M': E(add(sIT[0], sROLE, 16)); E(add(sIT[1], sROLE, 20)); its = sIT[:2]
        else: E(add(sIT[0], sROLE, 20)); its = sIT[:1]
    elif CFG.get('asg') == 3:
        E(add(sIT[0], sROLE, 20)); its = sIT[:1]
    elif CFG.get('l844'):
        if n == 'M': E(add(sIT[0], sROLE, 8)); E(add(sIT[1], sROLE, 12)); its = sIT[:2]
        else: E(add(sIT[0], sROLE, 12)); its = sIT[:1]
    elif n == 'M': E(smov(sIT[0], 20)); its = sIT[:1]
    else:
        E(add(sIT[0], sROLE, 12)); its = sIT[:1]
    if (FOUR and n != 'A') or (CFG.get('nof') and n == 'F'):
        its = []
        E(waitvm(0)); E(red_poll()[1]); E(waitvm(0)); E(raw(f"s_branch L_{n}_fin"))
    if CFG.get('bal') and n == 'F':
        E(salu('s_cmp_ge_u32', None, sROLE, 13)); E(raw(f"s_cbranch_scc1 L_{n}_hi"))
        E(waitvm(0)); E(red_poll()[1]); E(waitvm(0)); E(raw(f"s_branch L_{n}_fin")); E(label(f"L_{n}_hi"))
    for it in its: E(raw(f"s_bitset1_b64 {sRM}, {it}", 'salu', wr=[sRM], rd=[sRM, it]))
    E(salu('s_and_b32', sRM[1], sRM[1], 15))
    def refresh(wait, ab=False):
        L = f"L_{n}_rf{k_[0]}"; k_[0] += 1
        E(salu('s_cmp_eq_u32', None, sWAVE, 0)); E(raw(f"s_cbranch_scc0 {L}"))
        E(waitvm(wait)); E(red_eval())
        if ab: E(ab_eval()); E(salu('s_or_b32', sT2, sAB[0], sAB[1])); E(csel(sTO, 1, 0))
        E(red_pub(sPAR))
        E(label(L)); E(barrier()); E(red_get(sPAR)); E(salu('s_xor_b32', sPAR, sPAR, 12))
        if ab: E(smov(sMD2, sTO)); E(smov(sTO, 0))
    ALLD = lambda L, sx: ld_part(L, range(NPART), FL) + ld_x(L, sx)
    LATE = n in CFG.get('lateflag', 'A') + CFG.get('pre', '')
    sPT = [s(47), s(67 - 2), s(70)]
    def offs2(i): return offs(its[i], sXP[i]) + ([smov(sPT[i], sPART)] if i else [])
    def final_flag(wait):
        E(waitvm(wait)); E(barrier())
        E(valu('v_mov_b32', vPRG, 9))
        if CFG.get('rep') and n in 'FM': E(bstore('buffer_store_dword', vPRG, vCR, sWS, 0, flags='sc1'))
        E(bstore('buffer_store_dword', vPRG, vCT, sWS, 0, flags='sc1'))
        return 2 if (CFG.get('rep') and n in 'FM') else 1
    def poll_hook(_): E(red_poll()[1]); return 2
    def poll_sh(_): E(red_poll(True)[1]); return 2
    poll_hook.sh = poll_sh
    seg = lambda i, L, ks=range(NPART), wx=True, fin=True: (L, sPT[i], sXP[i], ks, wx, fin)
    ni = len(its)
    for i in reversed(range(ni)): E(offs2(i))
    two = min(ni, 2)
    if ni: body_items(E, n, its, two, ni, ensure, refresh, done, ST, seg, final_flag, poll_hook, LATE, L0, L1, FOUR, sMID, offs, sPT)
    E(label(f"L_{n}_fin"))
    E(salu('s_cmp_eq_u32', None, sWAVE, 0)); E(raw(f"s_cbranch_scc0 L_{n}_b4"))
    if CFG.get('abn'): E(ab_eval())
    else:
        E(waitvm(2))
        E(raw(f"v_cmp_ne_u32 vcc, 0, {vP}", 'valu', wr=['vcc'], rd=[vP])); E(nop(1))
        E(raw(f"s_lshr_b64 {sAB}, vcc, {NPART + 1}", 'salu', wr=[sAB], rd=['vcc'])); E(salu('s_and_b32', sAB[1], sAB[1], 15))
    E(salu('s_or_b32', sT2, sAB[0], sAB[1])); E(csel(sTO, 1, 0))
    E(salu('s_cmp_ge_u32', None, sOK, 16)); E(csel(sTO, sTO, 1)); E(red_pub(sPAR))
    E(label(f"L_{n}_b4")); E(barrier()); E(red_get(sPAR)); E(salu('s_xor_b32', sPAR, sPAR, 12))
    E(salu('s_cmp_eq_u32', None, sTO, 0)); E(raw(f"s_cbranch_scc1 L_{n}_exit"))
    E(label(f"L_{n}_fb"))
    E(waitvm(0))
    E(salu('s_cmp_eq_u32', None, sWAVE, 0)); E(raw(f"s_cbranch_scc0 L_{n}_fb2"))
    if CFG.get('abn'):
        E(raw(f"s_mov_b64 {sCD}, {sRM}", 'salu', wr=[sCD], rd=[sRM])); E(valu('v_mov_b32', vA, 1))
        E(valu('v_lshlrev_b32', vO, 4, vLANE16)); E(valu('v_mov_b32', vIT, OOB))
        E(raw(f"v_cmp_gt_u32 vcc, 0x100, {vLANE16}", 'valu', wr=['vcc'], rd=[vLANE16])); E(valu('v_cndmask_b32', vO, vIT, vO, 'vcc'))
        E(label(f"L_{n}_mk"))
        E(raw(f"s_cmp_eq_u64 {sCD}, 0", 'salu', rd=[sCD])); E(raw(f"s_cbranch_scc1 L_{n}_mk1"))
        E(raw(f"s_ff1_i32_b64 {sT2}, {sCD}", 'salu', wr=[sT2], rd=[sCD])); E(raw(f"s_bitset0_b64 {sCD}, {sT2}", 'salu', wr=[sCD], rd=[sCD, sT2]))
        E(raw(f"s_lshl2_add_u32 {sT2}, {sT2}, {sPB}", 'salu', wr=[sT2], rd=[sT2, sPB])); E(add(sT2, sT2, ABN))
        E(bstore('buffer_store_dword', vA, vO, sWS, sT2, flags='sc1')); E(raw(f"s_branch L_{n}_mk"))
        E(label(f"L_{n}_mk1")); E(waitvm(0))
        E(red_poll()[0]); E(waitvm(0))
        E(valu('v_mov_b32', vO, OOB)); E(smov(sT2, 36 * 4)); E(raw(f"v_writelane_b32 {vO}, {sT2}, 1", 'valu', wr=[vO], rd=[sT2, vO]))
        E(bstore('buffer_store_dword', vA, vO, sWS, sAV_, flags='sc1'))
        E(valu('v_mov_b32', vIT, 0)); E(valu('v_mov_b32', vO, OOB)); E(raw(f"v_writelane_b32 {vO}, 0, 0", 'valu', wr=[vO], rd=[vO]))
        E(I(f"buffer_atomic_add {vIT}, {vO}, {sWS}, {sAV_} offen sc1", 'vstore', rd=vIT.regs() + vO.regs() + sWS.regs() + sAV_.regs(), units=3))
        E(waitvm(0)); E(ab_load()); E(red_poll(True)[1]); E(waitvm(0)); E(valu('v_readfirstlane_b32', sOK, vD)); E(red_eval()); E(ab_eval())
    else:
        E(s64('s_lshl_b64', sCD, sRM, NPART + 1)); E(valu('v_mov_b32', vO, OOB)); E(valu('v_mov_b32', vA, 1))
        E(valu('v_cndmask_b32', vO, vO, vL4, sCD)); E(bstore('buffer_store_dword', vA, vO, sWS, sPB, flags='sc1')); E(waitvm(0))
        E(red_poll()[0]); E(waitvm(0)); E(red_poll(True)[1]); E(waitvm(0)); E(valu('v_readfirstlane_b32', sOK, vD)); E(red_eval())
    E(salu('s_min_u32', sT2, sRS, sRF)); E(salu('s_cmp_ge_u32', None, sOK, 16)); E(csel(sT2, sT2, 0))
    E(salu('s_bfm_b64', sCD, sT2, 0, scc_w=False)); E(s64('s_or_b64', sAB, sAB, sRM)); E(s64('s_and_b64', sAB, sAB, sCD))
    E(label(f"L_{n}_fb1"))
    E(raw(f"s_ff1_i32_b64 {sRS}, {sAB}", 'salu', wr=[sRS], rd=[sAB])); E(salu('s_and_b32', sRS, sRS, 255))
    E(raw(f"s_bitset0_b64 {sAB}, {sRS}", 'salu', wr=[sAB], rd=[sAB, sRS])); E(red_pub(sPAR))
    E(label(f"L_{n}_fb2")); E(barrier()); E(red_get(sPAR)); E(salu('s_xor_b32', sPAR, sPAR, 12))
    E(salu('s_cmp_ge_u32', None, sRS, 36)); E(raw(f"s_cbranch_scc1 L_{n}_exit"))
    E(offs(sRS, sXP[0])); E(ld_part(L0, range(NPART), FL) + ld_x(L0, sXP[0])); E(waitvm(0)); proc_all(E, L0, sXP[0], 0, [])
    E(salu('s_cmp_eq_u32', None, sWAVE, 0)); E(raw(f"s_cbranch_scc1 L_{n}_fb1")); E(raw(f"s_branch L_{n}_fb2"))
    E(label(f"L_{n}_exit"))
    ST(60)
    if CFG['stamps']: E(raw(f"s_setpc_b64 {sRET}"))
    else: E(raw("s_endpgm"))
    E(label(f"L_{n}_sync"))
    E(salu('s_cmp_eq_u32', None, sWAVE, 0)); E(raw(f"s_cbranch_scc0 L_{n}_sy2"))
    E(smov(sSP, 0)); E(red_poll()[1][0])
    E(label(f"L_{n}_sy0"))
    E(salu('s_cmp_ge_u32', None, sOK, 16)); E(raw(f"s_cbranch_scc1 L_{n}_sy1"))
    E(red_poll()[0]); E(waitvm(0)); E(valu('v_readfirstlane_b32', sOK, vD))
    E(salu('s_cmp_ge_u32', None, sOK, 16)); E(raw(f"s_cbranch_scc0 L_{n}_syw"))
    E(label(f"L_{n}_sy1"))
    E(red_poll()[1][1]); E(red_poll()[1][0]); E(waitvm(1)); E(red_eval())
    E(salu('s_bitcmp1_b32', None, sC, 0)); E(csel(sT2, sRS, 36)); E(salu('s_bitcmp1_b32', None, sC, 1)); E(csel(sT3, sRF, 36))
    E(salu('s_min_u32', sT2, sT2, sT3)); E(salu('s_cmp_lt_u32', None, sI, sT2)); E(raw(f"s_cbranch_scc1 L_{n}_syp"))
    E(label(f"L_{n}_syw"))
    E(add(sSP, sSP, 1)); E(salu('s_cmp_gt_u32', None, sSP, CFG.get('spin', 4000))); E(csel(sTO, 1, 0)); E(raw(f"s_cbranch_scc1 L_{n}_syp"))
    E(raw(f"s_sleep {CFG.get('sleep', 1)}")); E(raw(f"s_branch L_{n}_sy0"))
    E(label(f"L_{n}_syp"))
    E(red_pub(sPAR))
    E(label(f"L_{n}_sy2")); E(barrier()); E(red_get(sPAR)); E(salu('s_xor_b32', sPAR, sPAR, 12))
    E(raw(f"s_setpc_b64 {sRET2}"))
    return p

def reduce_items(p, ni, sPART_, sXO_, srdP, srdX, srdO, vL16, vXO_, base, flags, mid=None):
    E = p.emit
    SA = base; FA = base + 8; T = base + 16
    Ls = [base + 24 + 72 * i for i in range(ni)]
    for k in range(NPART):
        if k: E(add(sPART_, sPART_, 16 * PART - (PWAVE if ni == 2 else 0)))
        for i in range(ni):
            if i: E(add(sPART_, sPART_, PWAVE))
            E(bload('buffer_load_dwordx4', v(Ls[i] + 4 * k, 4), vL16, srdP, sPART_, flags=flags))
    for i in range(ni):
        XR = Ls[i] + 68
        if i: E(add(sT2, sXO_, 32 * 1152))
        so = sT2 if i else sXO_
        E(bload('buffer_load_dwordx2', v(XR, 2), vXO_, srdX, so)); E(bload('buffer_load_dwordx2', v(XR + 2, 2), vXO_, srdX, so, 32))
    ex = 0
    if mid: mid(); ex = 1
    E(smov(sT3, 0xffff0000))
    for i in range(ni):
        L = Ls[i]; XR = L + 68
        for k in range(NPART):
            if i == 0: E(waitvm((NPART - 1 - k) * ni + (ni - 1) + 2 * ni + ex))
            acc = SA if k < 11 else FA
            for q in range(4):
                x = v(L + 4 * k + q)
                if k in (0, 11):
                    E(valu('v_lshlrev_b32', v(acc + 2 * q), 16, x)); E(valu('v_and_b32', v(acc + 2 * q + 1), sT3, x))
                else:
                    tp = v(T + 2 * q, 2)
                    E(valu('v_lshlrev_b32', tp[0], 16, x)); E(valu('v_and_b32', tp[1], sT3, x))
            if k not in (0, 11):
                for q in range(4): E(valu('v_pk_add_f32', v(acc + 2 * q, 2), v(acc + 2 * q, 2), v(T + 2 * q, 2)))
        for e in range(8): E(valu('v_exp_f32', v(T + e), v(FA + e)))
        for e in range(8): E(valu('v_add_f32', v(T + e), 1.0, v(T + e)))
        for e in range(8): E(valu('v_rcp_f32', v(T + e), v(T + e)))
        for e in range(8): E(valu('v_mul_f32', v(FA + e), f2u(-math.log(2.0)), v(FA + e)))
        for e in range(8): E(valu('v_mul_f32', v(FA + e), v(FA + e), v(T + e)))
        if i == 0: E(waitvm(ex if ni == 1 else 0))
        for q in range(4):
            E(valu('v_lshlrev_b32', v(T + 2 * q), 16, v(XR + q))); E(valu('v_and_b32', v(T + 2 * q + 1), sT3, v(XR + q)))
        for e in range(8): E(valu('v_fma_f32', v(T + e), v(SA + e), v(FA + e), v(T + e)))
        for q in range(4): E(valu('v_cvt_pk_bf16_f32', v(XR + q), v(T + 2 * q), v(T + 2 * q + 1)))
        if i: E(add(sXO_, sXO_, 32 * 1152))
        E(bstore('buffer_store_dwordx2', v(XR, 2), vXO_, srdO, sXO_)); E(bstore('buffer_store_dwordx2', v(XR + 2, 2), vXO_, srdO, sXO_, 32))

def build_role(kind, vm_before):
    R = Role(kind)
    CFG['shape'] = CFG.get('shapes', {}).get(kind, CFG['shape0'])
    R.ring = {'F': (216, 9), 'A': (192, 16), 'M': (200, 8)}[kind]
    if kind == 'M': R.depth = 7
    nl = CFG.get('pfl', 16)
    MS = CFG['shape'] == 'M'
    if MS:
        R.add_p1_unit, R.add_p1_half, R.epi_silu, R.epi_q = R.add_p1_unitM, R.add_p1_halfM, R.epi_siluM, R.epi_qM
    P2M = 'q16' if MS else 'pi'
    if kind == 'F' and CFG.get('l844'):
        R.ring = (208, 12); R.depth = 7
        for u in range(13): R.add_p1_unit(u, sW1, sHA, sHC, 9216, u == 0, a(16 * u, 16), R.epi_silu, last=(u == 12),
                                          inreg=[pf_run(sW2, sPF2, 832 * 1152, 10) if u >= 1 else None, pf_row('F', sW1)])
        needs = {t: [('reg', 8 * t)] for t in range(26)}
        dm = [dma_w(sW2, sFA, 0, 1152, sFC, 0), dma_w(sW2, sFA, 288 * 1152, 1152, sFC, 288 * 1152), dma_w(sW2, sFA, 576 * 1152, 1152)]
        R.add_p2([(a(0, 208), [288, 288, 256], dm, needs, sSt)], [add(x, x, 128) for x in (sFA, sFC)], pre0=lambda: set_offw(1152, P2M))
        for st in R.stages[-27:]: st.ring = (208, 12, 'restart')
    elif kind == 'M' and CFG.get('l844'):
        R.ring = (208, 8); R.depth = 7
        Q = [a(80, 32), a(112, 32)]; OA = a(144, 64)
        def mpf(u):
            if u == 0: return pf_row('M', sWQ)
            if u == 1: return lambda: pf_row_setup('M', 9216, 18, sPF1, 0) + [pf_row('M', sW1)()[1]]
            if u <= 5: return pf_row('M', sW1)
            return None
        for u in range(4): R.add_p1_unit(u, sWQ, sQA, sQC, 8192, u == 0, a(80 + 16 * u, 16), R.epi_q, key='Q', inreg=[None, mpf(u)])
        for u in range(5): R.add_p1_unit(4 + u, sW1, sHA, sHC, 9216, u == 0, a(16 * u, 16), R.epi_silu, pre=(lambda: set_offw(9216, 'S')) if u == 0 else None,
                                         last=(u == 4), key='H', inreg=[None, mpf(4 + u)])
        Ha = dict(i=0, Q=Q[0], S=Sreg, P=Preg, O=OA, LM=v(230, 8), OF=lambda kk: OA.sub(16 * kk, 8),
                  need_qk=[('acc', 80), ('acc', 96)], need_pv=[('acc', 48 + 16 * i) for i in range(4)])
        Hb = dict(i=1, Q=Q[1], S=[v(80, 16), v(96, 16)], P=[v(48, 8), v(56, 8)], O=v(160, 64), LM=v(64, 8), OF=lambda kk: OA.sub(16 * kk + 8, 8))
        R.add_pa_g([[Ha, Hb]])
        R.stages[-9].mf[-1].need.append(('acc', 48))
        R.heads = [(Ha, sPFa), (Hb, sPFa)]
        R.add_p2m(a(0, 80), [H['OF'](kk) for H in (Ha, Hb) for kk in range(4)],
                  [dma_w(sW2, sFA, 0, 1152, sFC, 0), dma_w(sWO, sOA, 0, 1152, sFC, 32 * 1152, srdC=sW2)],
                  [add(x, x, 128) for x in (sOA, sFA, sFC)], pre0=lambda: set_offw(1152, P2M))
        for st in R.stages[-18:]: st.ring = (208, 12, 'restart')
        k = pf_sched(R, 15, sK, sPFa, 131072, 16); k = pf_sched(R, k, sV, sPFa, 131072, 16)
        pf_sched(R, 17, sWO, sPFc, 256 * 1152, 36); pf_sched(R, 18, sW2, sPF2, 320 * 1152, 45)
    elif kind == 'F':
        for u in range(13): R.add_p1_unit(u, sW1, sHA, sHC, 9216, u == 0, a(16 * u, 16), R.epi_silu, last=(u == 12), inreg=[pf_run(sW2, sPF2, 832 * 1152, 10) if u >= 1 else None, pf_row('F', sW1) if CFG['pf'] >= 3 else None] if CFG['pf'] else None)
        R.add_p1_half(13, a(208, 8))
        needs = {t: [('reg', 8 * t)] for t in range(27)}
        dm = [dma_w(sW2, sFA, 0, 1152, sFC, 0), dma_w(sW2, sFA, 288 * 1152, 1152, sFC, 288 * 1152), dma_w(sW2, sFA, 576 * 1152, 1152, sFS, 0)]
        R.add_p2([(a(0, 216), [288, 288, 288], dm, needs, sSt)], [add(x, x, 128) for x in (sFA, sFC, sFS)], pre0=lambda: set_offw(1152, P2M))
        if CFG['pf']:
            pf_sched(R, 26, sW2, sPF2h, 32 * 1152, 8)
    elif kind == 'A' and CFG.get('pair'):
        OA = a(96, 64)
        Ha = dict(i=0, Q=a(0, 32), S=Sreg, P=Preg, O=OA, LM=v(230, 8), OF=lambda kk: OA.sub(16 * kk, 8),
                  need_qk=[('acc', 48), ('acc', 64)], need_pv=[('acc', 48 + 16 * i) for i in range(4)])
        Hb = dict(i=1, Q=a(32, 32), S=[v(48, 16), v(64, 16)], P=[v(80, 8), v(88, 8)], O=v(160, 64), LM=v(96, 8), OF=lambda kk: OA.sub(16 * kk + 8, 8))
        Hc = dict(i=2, Q=a(64, 32), S=Sreg, P=Preg, O=v(48, 64), LM=v(16, 8), OF=lambda kk: a(160 + 8 * kk, 8), need_pv=[('lm', 0)])
        Ha['need_qk'] += [('acc', 80)]
        pj = {1: sJQ}
        for u in range(6):
            R.add_p1_unit(u, sWQ, sQA, sQC, 8192, u == 0, a(16 * u, 16), R.epi_q, last=(u == 5), step=sJQ if u == 4 else 128,
                          inreg=[pf_run(sWO, sPFc, 384 * 1152, 11) if u >= 1 else None, pf_row('A', sWQ, pj.get(u, 128)) if CFG['pf'] >= 3 and u < 3 else None] if CFG['pf'] else None)
        R.add_pa_g([[Ha, Hb], [Hc]])
        Bf = [H['OF'](kk) for H in (Ha, Hb, Hc) for kk in range(4)]
        needs = {0: [('fin', 0), ('fin', 1)], 8: [('fin', 2)]}
        dm = [dma_w192(sWO, 0), dma_w192(sWO, 0, sOA1, sOB1)]
        R.add_p2([(Bf, [192, 192], dm, needs, sSt)], [add(x, x, 128) for x in (sOA, sOB, sOA1, sOB1)], pre0=lambda: set_offw(1152, P2M))
        R.heads = [(Ha, sPFa), (Hb, sPFa), (Hc, sPFb)]
        if CFG['pf'] >= 2:
            pf_sched(R, 10, sK, sPFa, 131072, 16); pf_sched(R, 10, sV, sPFa, 131072, 16)
            pf_sched(R, 12, sK, sPFb, 131072, 16); pf_sched(R, 12, sV, sPFb, 131072, 16)
    elif kind == 'A':
        Q = [a(32 * e, 32) for e in range(3)]; O = [a(96 + 32 * e, 32) for e in range(3)]
        for u in range(6): R.add_p1_unit(u, sWQ, sQA, sQC, 8192, u == 0, a(16 * u, 16), R.epi_q, last=(u == 5), inreg=[pf_run(sWO, sPFc, 384 * 1152, 11) if u >= 1 else None, pf_row('A', sWQ) if CFG['pf'] >= 3 and u < 5 else None] if CFG['pf'] else None)
        R.add_pa(Q, O)
        needs = {4 * e: [('fin', e)] for e in range(3)}; needs[0].append(('S', 2, 15))
        dm = [dma_w192(sWO, b * 192 * 1152) for b in range(2)]
        R.add_p2([(a(96, 96), [192, 192], dm, needs, sSt)], [add(sOA, sOA, 128), add(sOB, sOB, 128)], pre0=lambda: set_offw(1152, P2M))
        if CFG['pf']:
            if CFG['pf'] >= 2:
                pf_sched(R, 10, sK, sPFa, 131072, 16); pf_sched(R, 10, sV, sPFa, 131072, 16)
                pf_sched(R, 12, sK, sPFb, 131072, 16); pf_sched(R, 12, sV, sPFb, 131072, 16)
    else:
        Q = [a(136 + 32 * e, 32) for e in range(2)]; O = [a(72 + 32 * e, 32) for e in range(2)]
        def mpf(u):
            if u == 0: return pf_row('M', sWQ)
            if u == 1: return lambda: pf_row_setup('M', 9216, 18, sPF1, 0) + [pf_row('M', sW1)()[1]]
            if u <= 4: return pf_row('M', sW1)
            if u == 5: return lambda: [smov(sPW, sPF1h), pf_row('M', sW1)()[1]]
            return None
        for u in range(4): R.add_p1_unit(u, sWQ, sQA, sQC, 8192, u == 0, a(136 + 16 * u, 16), R.epi_q, key='Q', inreg=[None, mpf(u)] if CFG['pf'] >= 3 else None)
        for u in range(4): R.add_p1_unit(4 + u, sW1, sHA, sHC, 9216, u == 0, a(16 * u, 16), R.epi_silu, pre=(lambda: set_offw(9216, 'M' if MS else 'S')) if u == 0 else None, last=(u == 3), key='H', inreg=[None, mpf(4 + u)] if CFG['pf'] >= 3 else None)
        R.add_p1_half(8, a(64, 8))
        BO = a(72, 64)
        if CFG.get('pair'):
            Ha = dict(i=0, Q=Q[0], S=Sreg, P=Preg, O=BO, LM=v(230, 8), OF=lambda kk: BO_.sub(16 * kk, 8),
                      need_qk=[('acc', 48 + 16 * i) for i in range(3)], need_pv=[('acc', 48 + 16 * i) for i in range(4)])
            Hb = dict(i=1, Q=Q[1], S=[v(64, 16), v(48, 16)], P=[v(80, 8), v(88, 8)], O=v(160, 64), LM=v(96, 8), OF=lambda kk: BO_.sub(16 * kk + 8, 8))
            BO_ = BO
            if CFG.get('mfree', 0):
                Hb['S'] = [v(64, 16), v(238, 16)]; Ha['need_qk'] = [('acc', 64), ('acc', 80)]; Ha['need_pv'] = [('acc', 96)]
                R.ntmp = 12; R.ones = v(28, 4)
                for st_, idx in ((R.stages[-2], -1), (R.stages[-1], -1)):
                    m_ = st_.mf[idx]; f_ = m_.after
                    m_.after = (lambda G, f_=f_: (setattr(R, 'low', True), f_(G), setattr(R, 'low', False)))
            R.add_pa_g([[Ha, Hb]])
            BO = [H['OF'](kk) for H in (Ha, Hb) for kk in range(4)]
            R.heads = [(Ha, sPFa), (Hb, sPFa)]
        else: R.add_pa(Q, O)
        nf = {t: [('reg', 8 * t)] for t in range(9)}; nf[0].append(('S', 1, 15))
        R.add_p2([(a(0, 72), [288], [dma_w(sW2, sFA, 0, 1152, sFS, 0)], nf, sSt2),
                  (BO, [256], [dma_w(sWO, sOA, 0, 1152)], {0: [('fin', 0)], 4: [('fin', 1)]}, sSt)],
                 [add(x, x, 128) for x in (sOA, sFA, sFS)], pre0=lambda: set_offw(1152, P2M))
        for st in R.stages[-18:]: st.ring = (200, 14, 'restart')
        if CFG['pf']:
            if CFG['pf'] >= 2:
                k = pf_sched(R, 14, sK, sPFa, 131072, 16); k = pf_sched(R, k, sV, sPFa, 131072, 16)
            pf_sched(R, 16, sWO, sPFc, 256 * 1152, 36); pf_sched(R, 23 if not CFG.get('pair') else 17, sW2, sPF2, 256 * 1152, 36); pf_sched(R, 24 if not CFG.get('pair') else 17, sW2, sPF2h, 32 * 1152, 8)
    if CFG.get('msum') and not MS and kind in 'AM':
        st0 = [st for st in R.stages if st.name == 'PAh0s0'][0]
        m0_ = st0.mf[8]
        if not hasattr(R, 'ones'): m0_.need += [('acc', 48 + 16 * i) for i in range(4)]
        m0_.pre = lambda: R.p.emit([valu('v_mov_b32', getattr(R, 'ones', vONES)[i], 0x3f803f80) for i in range(4)])
    if CFG.get('recode') and CFG['fused']:
        names = [st.name for st in R.stages]
        nS = len(names)
        R.pf.setdefault(nS - 2, []).append(pf_code(f"L_{kind}_red", f"L_role{kind}_end", 4))
        p2 = names.index('P2c0b0')
        R.stages[p2].label = f"L_{kind}_p2"
        R.pf.setdefault(p2 - 2, []).append(pf_code(f"L_{kind}_p2", f"L_{kind}_p2+20480", 5))
        if kind in 'AM':
            pa = names.index('PAmini'); R.stages[pa].label = f"L_{kind}_pa"
            R.pf.setdefault(pa - 1, []).append(pf_code(f"L_{kind}_pa", f"L_{kind}_p2", 8))
    if CFG.get('hot') and CFG['fused'] and kind in CFG['hot']:
        names = [st.name for st in R.stages]
        last = names.index('P2c8b0'); R.stages[last].label = f"L_{kind}_c8"
        def setup():
            o = [raw(f"s_getpc_b64 {sPC}", 'salu', wr=[sPC]), label(f"L_{kind}_hp"),
                 salu('s_add_u32', sPC[0], sPC[0], f"L_{kind}_c8-L_{kind}_hp"), salu('s_addc_u32', sPC[1], sPC[1], 0, scc_r=True),
                 valu('v_bfe_u32', vPF2, vTID, 16, 5), valu('v_and_b32', vPF, 63, vTID), valu('v_min_u32', vPF, 1, vPF),
                 valu('v_lshl_add_u32', vPF, vPF2, 1, vPF), valu('v_lshlrev_b32', vPF, 7, vPF)]
            if kind == 'F': o += pf_row_setup(kind, 1152, 26, sPF2, 2 * 128)
            return o
        def rep_code():
            return [I(f"global_load_dword {vDUM}, {vPF}, {sPC}", 'vload', wr=vDUM.regs(), rd=vPF.regs() + sPC.regs(), units=3, tag='pf')]
        R.pf.setdefault(names.index('P2c1b0'), []).append(setup)
        for c in range(2, 8):
            k0 = names.index(f'P2c{c}b0')
            R.pf.setdefault(k0, []).append(rep_code)
            if kind == 'F': R.pf.setdefault(k0 + 1, []).append(pf_row(kind, sW2))
    R.slow = []
    if kind in 'AM' and CFG.get('slow', True) and CFG.get('pair'):
        P2s = [st for st in R.stages if st.name.startswith('P2c0')]
        hl = [(H['i'], H['Q'], (H['OF'], kv)) for (H, kv) in R.heads]
        if kind == 'A':
            P2s[0].mf[0].pre = slow_check(R, hl[:2], (112, 160))
            [m for m in P2s[1].mf if ('fin', 2) in m.need][0].pre = slow_check(R, hl[2:], (160, 48))
        else:
            m_ = P2s[1].mf[4 if CFG.get('l844') else 0]
            m_.need += [('fin', 0), ('fin', 1)]
            m_.pre = slow_check(R, hl, (160, 48))
    elif kind in 'AM' and CFG.get('slow', True):
        P2s = [st for st in R.stages if st.name.startswith('P2c0')]
        if kind == 'A':
            P2s[0].mf[0].need += [('fin', 1)]
            P2s[0].mf[0].pre = slow_check(R, [(0, Q[0], O[0]), (1, Q[1], O[1])], 112)
            m_ = [m for m in P2s[1].mf if ('fin', 2) in m.need][0]
            m_.pre = slow_check(R, [(2, Q[2], O[2])], 160)
        else:
            P2s[1].mf[0].need += [('fin', 1)]
            P2s[1].mf[0].pre = slow_check(R, [(0, Q[0], O[0]), (1, Q[1], O[1])], 160)
    if CFG['fused']:
        add_signals(R)
        def early0():
            it = red_setup(kind) + red_poll()[0]
            it[-1].tag = 'cnt'
            return it
        def early():
            assert R.cnt_covered()
            PRIV[0] = (kind == 'A')
            it = red_poll()[1]
            it[-1].tag = 'poll'
            return it
        def covered():
            idx = max(i for i, x in enumerate(R.p.ins) if x.tag == 'cnt'); n = 0
            for x in R.p.ins[idx + 1:]:
                if x.kind in VMEMK: n += 1
                if x.txt.startswith('s_waitcnt vmcnt(') and int(x.txt[16:-1]) <= n: return True
            return False
        R.cnt_covered = covered
        if kind == 'A' and CFG.get('l2pf'):
            nm = [st.name for st in R.stages]
            R.pf.setdefault(nm.index('P2c1b0'), []).append(l2pf_setup)
            for (cw, dlt) in CFG['l2pf']:
                kp = nm.index(f'P2c{cw}b0')
                for j in range(4): R.pf.setdefault(kp, []).append(lambda j=j: l2pf_poll()[j])
                R.stages[kp + 2].cover_tag = 'gp'
                def gate(j, dlt=dlt):
                    def f():
                        it = l2pf_issue(R, dlt)[j]
                        if j == 0:
                            it = it + [valu('v_readfirstlane_b32', sOK, vD), salu('s_cmp_ge_u32', None, sOK, 16), csel(sC, sC, 15)]
                        return it
                    return f
                for j in range(4): R.pf.setdefault(kp + 2, []).append(gate(j))
        R.pf.setdefault([st.name for st in R.stages].index('P2c1b0' if kind == 'F' else 'P2c0b1'), []).append(early0)
        if kind in CFG.get('pre', ''):
            R.pf.setdefault(len(R.stages) - 3, []).append(early)
            R.stages[-1].pre_bar = lambda: red_early(R.p, kind)
        else: R.pf.setdefault(len(R.stages) - CFG.get('pollw', 1), []).append(early)
    role_prologue(R, vm_before)
    R.run()
    if CFG['fused']:
        p = R.p
        if kind not in CFG.get('pre', ''): red_early(p, kind)
        if kind in CFG.get('pre', ''): pass
        elif kind in CFG.get('lateflag', 'A'): p.emit(barrier())
        else:
            p.emit(waitvm(0)); p.emit(barrier())
            p.emit(valu('v_mov_b32', vPRG, 9))
            if CFG.get('rep'): p.emit(bstore('buffer_store_dword', vPRG, vCR, sWS, 0, flags='sc1'))
            p.emit(bstore('buffer_store_dword', vPRG, vCT, sWS, 0, flags='sc1'))
        if CFG['stamps']: R.stamp(len(R.stages) - 1)
        p.emit(raw(f"s_call_b64 {sRET}, L_{kind}_red"))
    if CFG['stamps']:
        p = R.p
        R.stamp(len(R.stages))
        p.emit(raw("s_memrealtime s[98:99]", wr=[s(98, 2)])); p.emit(raw("s_waitcnt lgkmcnt(0)"))
        p.emit(raw(f"v_writelane_b32 {vSTAMP}, s98, 63", 'valu', wr=[vSTAMP], rd=[s(98)]))
        if CFG.get('dbgstat'):
            n = len(R.stages)
            lanes = {'F': [0, 27, n - 1, n], 'A': [0, 37, n - 1, n], 'M': [0, 34, n - 1, n]}[kind]
            slots = {'F': [1, 2, 3, 5], 'A': [10, 11, 13, 14], 'M': [15, 15, 15, 15]}[kind]
            p.emit([valu('v_mov_b32', v(4), 256), valu('v_mov_b32', v(5), 0)])
            for i, (ln, sl) in enumerate(zip(lanes, slots)):
                p.emit(raw(f"v_readlane_b32 s92, {vSTAMP}, {ln}", 'rdl', wr=[sT2], rd=[vSTAMP])); p.emit(nop(3))
                p.emit(raw(f"v_writelane_b32 v5, s92, {i}", 'valu', wr=[v(5)], rd=[sT2])); p.emit(raw(f"v_writelane_b32 v4, {4 * sl}, {i}", 'valu', wr=[v(4)]))
            p.emit(raw(f"v_writelane_b32 v5, s98, 4", 'valu', wr=[v(5)], rd=[s(98)])); p.emit(raw(f"v_writelane_b32 v4, 28, 4", 'valu', wr=[v(4)]))
            p.emit(salu('s_not_b32', sT2, s(43))); p.emit(raw(f"v_writelane_b32 v5, s92, 5", 'valu', wr=[v(5)], rd=[sT2])); p.emit(raw(f"v_writelane_b32 v4, 36, 5", 'valu', wr=[v(4)]))
            p.emit(salu('s_sub_u32', sT2, s(98), s(43))); p.emit(raw(f"v_writelane_b32 v5, s92, 6", 'valu', wr=[v(5)], rd=[sT2])); p.emit(raw(f"v_writelane_b32 v4, 24, 6", 'valu', wr=[v(4)]))
            p.emit([salu('s_cmp_eq_u32', None, sRB, 9), csel(sT2, 0, sRB), salu('s_or_b32', sT2, sT2, sWAVE), salu('s_cmp_eq_u32', None, sT2, 0), csel(sT2, 0, 256),
                    valu('v_add_u32', v(4), sT2, v(4))])
            p.emit(I(f"buffer_atomic_umax v5, v4, {sDBG}, 0 offen sc1", 'vstore', rd=vr(4, 2) + sDBG.regs(), units=3))
        p.emit([shl(sT2, s(2), 2), add(sT2, sT2, sWAVE), shl(sT2, sT2, 8), add(sT2, sT2, STAMP_OFF),
                valu('v_lshrrev_b32', v(42), 2, vLANE16), bstore('buffer_store_dword', vSTAMP, v(42), sWS, sT2)])
    R.p.emit(raw("s_endpgm"))
    return R

def fold(ins, name):
    idx = [i for i, x in enumerate(ins) if x.tag == 'mark']
    def body(a_, b_): return [x.txt for x in ins[a_:b_] if x.kind != 'label']
    out = []; pos = 0; k = 0; nl = 0
    while k + 1 < len(idx):
        b0 = body(idx[k], idx[k + 1]); n = 1
        while k + n + 1 < len(idx) and body(idx[k + n], idx[k + n + 1]) == b0: n += 1
        if n >= 2:
            out += ins[pos:idx[k]]
            L = f"L_{name}_loop{nl}"; nl += 1
            out.append(smov(sLC, n)); out.append(I(".p2align 3", 'label')); out.append(label(L))
            out += ins[idx[k]:idx[k + 1]]
            out += [salu('s_sub_u32', sLC, sLC, 1), salu('s_cmp_lg_u32', None, sLC, 0), raw(f"s_cbranch_scc1 {L}")]
            pos = idx[k + n]; k += n
        else: k += 1
    out += ins[pos:]
    return out

def fold_regions(ins, name):
    regs = []; i = 0
    beg = None
    for i, x in enumerate(ins):
        if isinstance(x.tag, tuple) and x.tag and x.tag[0] == 'region':
            if x.tag[1] == 'begin': beg = (i, x.tag[2])
            elif beg: regs.append((beg[0], i, beg[1])); beg = None
    groups = {}
    for (a_, b_, key) in regs:
        groups.setdefault(tuple(x.txt for x in ins[a_:b_] if x.kind != 'label'), []).append((a_, b_))
    out = []; subs = []; repl = {}
    n = 0
    for body, lst in groups.items():
        if len(lst) >= 2:
            L = f"L_{name}_sub{n}"; n += 1
            a_, b_ = lst[0]
            subs += [I(".p2align 6", 'label'), label(L)] + ins[a_:b_] + [raw(f"s_setpc_b64 {sRET}")]
            for (a_, b_) in lst: repl[a_] = (b_, L)
    i = 0
    while i < len(ins):
        if i in repl:
            b_, L = repl[i]; out.append(raw(f"s_call_b64 {sRET}, {L}")); i = b_
        else:
            out.append(ins[i]); i += 1
    print(f"  regions: {[len(l) for l in groups.values()]}", file=sys.stderr)
    return out + subs

def reduce_body(p, sPART, sXO, srdP, srdX, srdO, vL16, vXO, base, flags, mid=None):
    E = p.emit
    L = base; XR = base + 68; SA = base + 72; FA = base + 80; T = base + 88
    for k in range(NPART):
        if k: E(add(sPART, sPART, 16 * PART))
        E(bload('buffer_load_dwordx4', v(L + 4 * k, 4), vL16, srdP, sPART, flags=flags))
    E(bload('buffer_load_dwordx2', v(XR, 2), vXO, srdX, sXO)); E(bload('buffer_load_dwordx2', v(XR + 2, 2), vXO, srdX, sXO, 32))
    ex = 0
    if mid: E(mid()); ex = 1
    E(smov(sT3, 0xffff0000))
    for k in range(NPART):
        E(waitvm(NPART + 1 - k + ex))
        acc = SA if k < 11 else FA
        for q in range(4):
            x = v(L + 4 * k + q)
            if k in (0, 11):
                E(valu('v_lshlrev_b32', v(acc + 2 * q), 16, x)); E(valu('v_and_b32', v(acc + 2 * q + 1), sT3, x))
            else:
                tp = v(T + 2 * q, 2)
                E(valu('v_lshlrev_b32', tp[0], 16, x)); E(valu('v_and_b32', tp[1], sT3, x))
        if k not in (0, 11):
            for q in range(4): E(valu('v_pk_add_f32', v(acc + 2 * q, 2), v(acc + 2 * q, 2), v(T + 2 * q, 2)))
    for e in range(8): E(valu('v_exp_f32', v(T + e), v(FA + e)))
    for e in range(8): E(valu('v_add_f32', v(T + e), 1.0, v(T + e)))
    for e in range(8): E(valu('v_rcp_f32', v(T + e), v(T + e)))
    for e in range(8): E(valu('v_mul_f32', v(FA + e), f2u(-math.log(2.0)), v(FA + e)))
    for e in range(8): E(valu('v_mul_f32', v(FA + e), v(FA + e), v(T + e)))
    E(waitvm(ex))
    for q in range(4):
        E(valu('v_lshlrev_b32', v(T + 2 * q), 16, v(XR + q))); E(valu('v_and_b32', v(T + 2 * q + 1), sT3, v(XR + q)))
    for e in range(8): E(valu('v_fma_f32', v(T + e), v(SA + e), v(FA + e), v(T + e)))
    for q in range(4): E(valu('v_cvt_pk_bf16_f32', v(XR + q), v(T + 2 * q), v(T + 2 * q + 1)))
    E(bstore('buffer_store_dwordx2', v(XR, 2), vXO, srdO, sXO)); E(bstore('buffer_store_dwordx2', v(XR + 2, 2), vXO, srdO, sXO, 32))

def reduce_kernel():
    p = Prog(); E = p.emit
    E(salu('s_cmp_ge_u32', None, s(2), 576)); E(raw("s_cbranch_scc0 L_rgo")); E(raw("s_endpgm")); E(label("L_rgo"))
    E(raw("s_load_dwordx2 s[4:5], s[0:1], 0", wr=[s(4, 2)])); E(raw("s_load_dwordx2 s[6:7], s[0:1], 64", wr=[s(6, 2)])); E(raw("s_load_dwordx2 s[8:9], s[0:1], 80", wr=[s(8, 2)]))
    E(valu('v_lshrrev_b32', v(1), 6, v(0))); E(valu('v_readfirstlane_b32', s(10), v(1)))
    E(shl(s(11), s(2), 2)); E(add(s(11), s(11), s(10)))
    E(salu('s_mul_hi_u32', s(24), s(11), -(-(1 << 32) // 36), scc_w=False))
    E(mul(s(25), s(24), 36)); E(salu('s_sub_u32', s(25), s(11), s(25)))
    E(shl(s(26), s(11), 10))
    E(valu('v_and_b32', v(0), 63, v(0))); E(valu('v_lshlrev_b32', v(1), 4, v(0)))
    E(valu('v_and_b32', v(2), 15, v(0))); E(smov(s(27), 1152)); E(valu('v_mul_u32_u24', v(2), s(27), v(2)))
    E(valu('v_lshrrev_b32', v(3), 4, v(0))); E(valu('v_lshl_add_u32', v(2), v(3), 3, v(2)))
    E(mul(s(28), s(24), 32 * 1152)); E(salu('s_and_b32', s(29), s(25), 1)); E(mul(s(29), s(29), 16 * 1152)); E(add(s(28), s(28), s(29)))
    E(shr(s(25), s(25), 1)); E(shl(s(25), s(25), 6)); E(add(s(28), s(28), s(25)))
    E(raw("s_waitcnt lgkmcnt(0)"))
    srd(p, s(12, 4), 8, WSP_BYTES); srd(p, s(16, 4), 4, 2359296); srd(p, s(20, 4), 6, 2359296)
    reduce_body(p, s(26), s(28), s(12, 4), s(16, 4), s(20, 4), v(1), v(2), 4, CFG.get('rflags', ''))
    E(raw("s_endpgm"))
    return p

def text(ins): return "\n".join((i.txt if i.kind == 'label' else " " + i.txt) for i in ins) + "\n"

def compress(t):
    t = re.sub(r" v_mfma_f32_16x16x32_bf16 v\[(\d+):\d+\], a\[(\d+):\d+\], v\[(\d+):\d+\], v\[\1:\d+\]", r" MV \1,\2,\3", t)
    t = re.sub(r" v_mfma_f32_16x16x32_bf16 v\[(\d+):\d+\], a\[(\d+):\d+\], a\[(\d+):\d+\], v\[\1:\d+\]", r" MA \1,\2,\3", t)
    t = re.sub(r" v_mfma_f32_32x32x16_bf16 v\[(\d+):\d+\], a\[(\d+):\d+\], v\[(\d+):\d+\], v\[\1:\d+\]", r" NV \1,\2,\3", t)
    t = re.sub(r" v_mfma_f32_32x32x16_bf16 v\[(\d+):\d+\], a\[(\d+):\d+\], a\[(\d+):\d+\], v\[\1:\d+\]", r" NA \1,\2,\3", t)
    t = re.sub(r" v_mfma_f32_16x16x32_bf16 a\[(\d+):\d+\], a\[(\d+):\d+\], v\[(\d+):\d+\], a\[\1:\d+\]", r" MC \1,\2,\3", t)
    t = re.sub(r" ds_read_b64_tr_b16 a\[(\d+):\d+\], v(\d+) offset:(\d+)", r" RT \1,\2,\3", t)
    t = re.sub(r" ds_read_b128 a\[(\d+):\d+\], v(\d+) offset:(\d+)", r" RB \1,\2,\3", t)
    t = re.sub(r" v_cvt_pk_bf16_f32 v(\d+), v(\d+), v(\d+)", r" CV \1,\2,\3", t)
    t = re.sub(r" v_accvgpr_write_b32 a(\d+), v(\d+)", r" AW \1,\2", t)
    t = re.sub(r" v_exp_f32 v(\d+), v(\d+)", r" EX \1,\2", t)
    t = re.sub(r" v_add_f32 v(\d+), v(\d+), v(\d+)", r" AD \1,\2,\3", t)
    t = re.sub(r" v_mul_f32 v(\d+), v(\d+), v(\d+)", r" ML \1,\2,\3", t)
    t = re.sub(r" s_waitcnt lgkmcnt\((\d+)\)", r" WL \1", t)
    mac = r""".macro MC d,a,b
 v_mfma_f32_16x16x32_bf16 a[\d:\d+3], a[\a:\a+3], v[\b:\b+3], a[\d:\d+3]
.endm
.macro NV d,a,b
 v_mfma_f32_32x32x16_bf16 v[\d:\d+15], a[\a:\a+3], v[\b:\b+3], v[\d:\d+15]
.endm
.macro NA d,a,b
 v_mfma_f32_32x32x16_bf16 v[\d:\d+15], a[\a:\a+3], a[\b:\b+3], v[\d:\d+15]
.endm
.macro MV d,a,b
 v_mfma_f32_16x16x32_bf16 v[\d:\d+3], a[\a:\a+3], v[\b:\b+3], v[\d:\d+3]
.endm
.macro MA d,a,b
 v_mfma_f32_16x16x32_bf16 v[\d:\d+3], a[\a:\a+3], a[\b:\b+3], v[\d:\d+3]
.endm
.macro RT d,a,o
 ds_read_b64_tr_b16 a[\d:\d+1], v\a offset:\o
.endm
.macro RB d,a,o
 ds_read_b128 a[\d:\d+3], v\a offset:\o
.endm
.macro CV d,a,b
 v_cvt_pk_bf16_f32 v\d, v\a, v\b
.endm
.macro AW d,a
 v_accvgpr_write_b32 a\d, v\a
.endm
.macro EX d,a
 v_exp_f32 v\d, v\a
.endm
.macro AD d,a,b
 v_add_f32 v\d, v\a, v\b
.endm
.macro ML d,a,b
 v_mul_f32 v\d, v\a, v\b
.endm
.macro WL n
 s_waitcnt lgkmcnt(\n)
.endm
"""
    return mac, t

HDR = open('recurrent_scan__sliding_block_cached__dense_activation_silu__prompt.s.ref').read().split('; Override launch')[0]
DOC = """; Generated by my own scheduler scripts (hand-designed instruction streams, hazards padded by the script).
; registers as MFMA B operands (transposed formulation), weights / K / V stream through a 4-slot LDS ring (LDS-DMA).
;   role A (10): layernorm, Q projection, attention for 3 heads (one GQA pair shares K/V fragments), partial of o@wo
; The bf16 partials go to d_ws with write-through stores; progress words (reset per launch, guarded by a counter in
"""
def kd(name, vgpr, acc, sgpr=102):
    return f""".amdhsa_kernel {name}
  .amdhsa_next_free_vgpr {vgpr}
  .amdhsa_next_free_sgpr {sgpr}
  .amdhsa_accum_offset {acc}
  .amdhsa_group_segment_fixed_size 0
  .amdhsa_kernarg_size 88
  .amdhsa_user_sgpr_count 2
  .amdhsa_user_sgpr_kernarg_segment_ptr 1
  .amdhsa_system_sgpr_workgroup_id_x 1
.end_amdhsa_kernel
"""
def est_cycles(ins):
    tot = 0; cur = None; n = 0
    for i in ins:
        if i.kind == 'label': continue
        if i.kind == 'mfma':
            if cur is not None: tot += max(cap, cur)
            cur = 2; n += 1; cap = 8 if len(i.wr) == 16 else 4
        elif cur is not None:
            if i.txt.startswith('s_waitcnt lgkm') and cap == 4: continue
            cur += i.units if not i.txt.startswith('s_nop') else (int(i.txt.split()[1]) + 1) * 0.5
    return tot * 4

def main(out, **kw):
    CFG.update(kw)
    set_layout(CFG.get('l844'))
    if CFG.get('tab'):
        global ROLE_TAB
        ROLE_TAB = CFG['tab']
    CFG['shape0'] = CFG['shape']
    cp = common_prologue()
    if CFG.get('entry', 0):
        if CFG.get('entry', 1) == 1:
            k = next(i for i, x in enumerate(cp.ins) if x.txt == 's_waitcnt lgkmcnt(0)')
            tail = cp.ins[k:]; vmx = list(cp.vm); cp.ins = cp.ins[:k]; cp.vm = []
            common_prologue2(cp); cp.ins += tail; cp.vm += vmx
        else: common_prologue2(cp)
        common_prologue3(cp)
    body = text(cp.ins) + dispatch_text()
    for kind in 'FAM':
        R = build_role(kind, cp.vm)
        ins = fold_regions(fold(R.p.ins, kind), kind) if CFG['fold'] else R.p.ins
        nm = sum(1 for i in R.p.ins if i.kind == 'mfma')
        print(f"role {kind}: stages {len(R.stages)} mfma {nm} instrs {len([i for i in ins if i.kind!='label'])} (unrolled {len([i for i in R.p.ins if i.kind!='label'])}) pad {R.p.npad} forced {R.forced} est {est_cycles(R.p.ins)} ideal {sum(32 if len(i.wr) == 16 else 16 for i in R.p.ins if i.kind == 'mfma')}", file=sys.stderr)
        if CFG.get('abl_pair') and kind in 'AM':
            out_ = []; on = False
            for x in ins:
                if x.kind == 'label' and x.txt.startswith('; PAh'): on = x.txt.startswith('; PAh1')
                if x.kind == 'label' and x.txt.startswith('; P2'): on = False
                if on and (x.kind in ('dma', 'ds') or (x.kind == 'salu' and ('m0' in x.txt or 's70' in x.txt))): continue
                out_.append(x)
            ins = out_
        if CFG.get('abl_half'):
            out_ = []; on = False; cnt = 0
            for x in ins:
                if x.kind == 'label' and x.txt.startswith('; P'): on = x.txt.startswith(('; P1', '; P2'))
                if x.kind == 'label' and x.txt.startswith('; REGION begin'): on = True
                if on and x.kind == 'ds':
                    cnt += 1
                    if (cnt >> 1) & 1: continue
                out_.append(x)
            ins = out_
        ab = CFG.get('ablate', '')
        if ab:
            st0 = next(i for i, x in enumerate(ins) if x.txt.startswith('; P1u1b0'))
            def keep(x):
                if 'd' in ab and x.kind == 'dma': return False
                if 'r' in ab and x.kind == 'ds': return False
                if 'v' in ab and x.kind in ('trans',): return False
                if 'V' in ab and x.kind in ('trans', 'valu', 'perm') and not x.txt.startswith(('v_add_u32', 'v_xor', 'v_writelane', 'v_cmp', 'v_cnd', 'v_mov', 'v_lsh', 'v_mad', 'v_min', 'v_and', 'v_bfe', 'v_mul_u32')): return False
                if 'm' in ab and x.kind == 'mfma': return False
                return True
            ins = ins[:st0] + [x for x in ins[st0:] if keep(x)]
        for sp in R.slow: ins = ins + sp.ins
        if CFG['fused']: ins = ins + reducer(kind).ins
        body += f".p2align 6\nL_role{kind}:\n" + text(ins) + f"L_role{kind}_end:\n"
    rk = reduce_kernel()
    mac, body = compress(body)
    if CFG['fused']:
        t = HDR + "; @launch grid=(256,1,1) block=(256,1,1) lds=163840\n" + DOC
        t += '.amdgcn_target "amdgcn-amd-amdhsa--gfx950"\n' + mac + f".text\n.globl {KN}\n.p2align 8\n.type {KN},@function\n{KN}:\n" + body
        t += '.section .rodata,"a"\n.p2align 6\n' + kd(KN, 512, 256)
        open(out, 'w').write(t); print("size", len(t), file=sys.stderr); return
    t = HDR + f"; @launch kernel={KN} grid=(256,1,1) block=(256,1,1) lds=163840\n; @launch kernel={RN} grid=(576,1,1) block=(256,1,1) lds=0\n"
    t += '.amdgcn_target "amdgcn-amd-amdhsa--gfx950"\n' + mac + f".text\n.globl {KN}\n.p2align 8\n.type {KN},@function\n{KN}:\n" + body
    t += f".globl {RN}\n.p2align 8\n.type {RN},@function\n{RN}:\n" + text(rk.ins)
    t += '.section .rodata,"a"\n.p2align 6\n' + kd(KN, 512, 256) + ".p2align 6\n" + kd(RN, 104, 104, 102)
    open(out, 'w').write(t)
    print("size", len(t), file=sys.stderr)

if __name__ == "__main__":
    kw = eval("dict(" + (sys.argv[2] if len(sys.argv) > 2 else "") + ")")
    main(sys.argv[1], **kw)
```

```python
import sys, re
from s1 import *

ROLE_TAB = [0, 1, 2, 11, 3, 4, 5, 12, 6, 7, 13, 14, 8, 9, 10, 15]
vPFR = v(36)
vPRG = v(36)
PART = 4 * PWAVE
NPART = 17
NA, NM, NS = 10, 1, 11
def set_layout(new):
    global NPART, NA, NM, NS, ROLE_TAB
    if new:
        NPART, NA, NM, NS = 20, 8, 4, 12
        ROLE_TAB = [0, 1, 8, 12, 2, 3, 9, 13, 4, 5, 10, 14, 6, 7, 11, 15]
WSP_BYTES = NPART * 16 * PART
def PSTR(): return 16 * PART + (CFG.get('pskew', 0) if CFG['fused'] else 0)
sJQ, sQ0, sOA1, sOB1 = s(73), s(59), s(74), s(75)
ABN = 4096
STAMP_OFF = 0x3000000
CTRL = 0x2F00000
OOB = 0x10000000

def srd(p, dst, lo, nbytes):
    p.emit([smov(dst[0], s(lo)), salu('s_and_b32', dst[1], s(lo + 1), 0xffff), smov(dst[2], nbytes), smov(dst[3], 0x20000)])
def xdma(j):
    return [salu('s_add_u32', 'm0', s(6), j * 4096), salu('s_add_u32', sT, s(7), j * 128)] + [dma(v(16 + q), sX, sT, q * 1024, tag=('x', j)) for q in range(4)]
def mul(d, a_, b_): return salu('s_mul_i32', d, a_, b_, scc_w=False)
def add(d, a_, b_): return salu('s_add_u32', d, a_, b_)
def shl(d, a_, b_): return salu('s_lshl_b32', d, a_, b_)
def shr(d, a_, b_): return salu('s_lshr_b32', d, a_, b_)
def csel(d, a_, b_): return salu('s_cselect_b32', d, a_, b_, scc_w=False, scc_r=True)

def common_prologue():
    if CFG.get('entry', 0) == 0: return common_prologue_old()
    assert CFG['xe'] == 9 and CFG.get('map', 4) == 4
    p = Prog(); E = p.emit
    E(raw("s_load_dwordx8 s[40:47], s[0:1], 0", wr=[s(40, 8)]))
    E(salu('s_cmp_ge_u32', None, s(2), 256))
    E(raw("s_cbranch_scc0 L_go")); E(raw("s_endpgm")); E(label("L_go"))
    if CFG['stamps']:
        E(raw(f"s_memtime {sT0}", wr=[sT0])); E(raw("s_memrealtime s[96:97]", wr=[s(96, 2)]))
    E(valu('v_lshrrev_b32', v(1), 6, v(0)))
    E(salu('s_and_b32', s(3), s(2), 1)); E(shl(s(3), s(3), 3))
    E(valu('v_readfirstlane_b32', sWAVE, v(1)))
    E(shr(sRB, s(2), 5)); E(salu('s_or_b32', sRB, sRB, s(3)))
    E(valu('v_and_b32', v(0), 63, v(0)))
    E(valu('v_lshrrev_b32', vROWN, 3, v(0)))
    E(valu('v_and_b32', v(20), 7, v(0))); E(valu('v_lshrrev_b32', v(21), 4, v(0)))
    E(valu('v_xor_b32', v(22), v(20), v(21))); E(valu('v_xor_b32', v(23), 4, v(22)))
    E(salu('s_movk_i32', s(3), 1152, scc_w=False)); E(valu('v_mul_u32_u24', v(24), s(3), vROWN))
    E(valu('v_lshl_add_u32', v(16), v(22), 4, v(24))); E(valu('v_lshl_add_u32', v(17), v(23), 4, v(24)))
    E(valu('v_add_u32', v(17), 8 * 1152 - 1024, v(17)))
    E(valu('v_add_u32', v(18), 2 * (8 * 1152 - 1024), v(16))); E(valu('v_add_u32', v(19), 2 * (8 * 1152 - 1024), v(17)))
    E(mul(s(6), sWAVE, XW)); E(raw("s_lshl2_add_u32 s7, s64, s62", 'salu', wr=[s(7)], rd=[sRB, sWAVE])); E(mul(sT, s(7), 32 * 1152))
    E(smov('m0', s(6))); E(add(s(7), sT, 9 * 128))
    E(smov(sX[2], 2359296)); E(smov(sX[3], 0x20000))
    E(raw("s_waitcnt lgkmcnt(0)"))
    E(smov(sX[0], s(40))); E(salu('s_and_b32', sX[1], s(41), 0xffff))
    E(label("L_xl"))
    n0 = len(p.vm)
    for q in range(4): E(dma(v(16 + q), sX, sT, q * 1024))
    del p.vm[n0:]
    for j in range(9): p.vm += [('x', j)] * 4
    E(add(sT, sT, 128)); E(add('m0', 'm0', 4096)); E(salu('s_cmp_lt_u32', None, sT, s(7))); E(raw("s_cbranch_scc1 L_xl"))
    return p
def common_prologue2(p):
    E = p.emit
    tab = ROLE_TAB
    lo = sum(tab[i] << (4 * i) for i in range(8)); hi = sum(tab[8 + i] << (4 * i) for i in range(8))
    E(salu('s_bfe_u32', s(3), s(2), (2 << 16) | 3)); E(salu('s_bfe_u32', s(4), s(2), (1 << 16) | 1))
    E(shl(s(4), s(4), 2)); E(salu('s_or_b32', s(3), s(3), s(4))); E(shl(s(3), s(3), 2))
    E(salu('s_bitcmp1_b32', None, s(2), 2))
    E(smov(s(4), lo)); E(csel(s(4), hi, s(4)))
    E(shr(s(4), s(4), s(3))); E(salu('s_and_b32', sROLE, s(4), 15))
    E(raw(f"s_getpc_b64 {sPC}", wr=[sPC])); E(label("L_pc"))
    E(smov(s(4), "L_roleA-L_pc")); E(smov(s(5), "L_roleA_end-L_pc-4"))
    E(salu('s_cmp_ge_u32', None, sROLE, NA)); E(csel(s(4), "L_roleM-L_pc", s(4))); E(csel(s(5), "L_roleM_end-L_pc-4", s(5)))
    E(salu('s_cmp_ge_u32', None, sROLE, NA + NM)); E(csel(s(4), "L_roleF-L_pc", s(4))); E(csel(s(5), "L_roleF_end-L_pc-4", s(5)))
    n0 = CFG.get('code0', 16); NL = CFG.get('codelines', 24)
    if n0:
        E(mul(s(3), sWAVE, n0 * 128)); E(add(s(3), s(3), s(4)))
        E(valu('v_min_u32', v(2), n0 - 1, v(0))); E(valu('v_lshlrev_b32', v(2), 7, v(2))); E(valu('v_add_u32', v(2), s(3), v(2)))
        E(I(f"global_load_dword {vDUM}, v2, {sPC}", 'vload', wr=vDUM.regs(), rd=vr(2) + sPC.regs(), tag='pf'))
    E(salu('s_and_b32', s(3), sRB, 7)); E(shl(s(3), s(3), 2)); E(add(s(3), s(3), sWAVE))
    E(mul(s(3), s(3), NL * 128)); E(add(s(3), s(3), s(4)))
    E(valu('v_min_u32', v(2), NL - 1, v(0))); E(valu('v_lshlrev_b32', v(2), 7, v(2))); E(valu('v_add_u32', v(2), s(3), v(2)))
    E(valu('v_min_u32', v(3), s(5), v(2)))
    E(I(f"global_load_dword {vDUM}, v3, {sPC}", 'vload', wr=vDUM.regs(), rd=vr(3) + sPC.regs(), tag='pf'))
def common_prologue3(p):
    E = p.emit
    E(raw("s_load_dwordx2 s[48:49], s[0:1], 32", wr=[s(48, 2)]))
    E(raw("s_load_dwordx8 s[52:59], s[0:1], 48", wr=[s(52, 8)]))
    E(raw("s_load_dwordx2 s[50:51], s[0:1], 80", wr=[s(50, 2)]))
    srd(p, sK, 42, 8388608); srd(p, sV, 44, 8388608); srd(p, sWQ, 46, 4718592)
    E(mul(sW8704, sWAVE, 8 * PP)); E(mul(sWC, sWAVE, PP)); E(add(sWC, sWC, 32 * PP))
    E(shl(sW8192, sWAVE, 13)); E(shl(sWCH, sWAVE, 10)); E(add(sWCH, sWCH, 32768))
    E(mul(sW2176, sWAVE, 2 * PP)); E(mul(sW4352, sWAVE, 4 * PP)); E(add(sWA2, sW2176, 16 * PP))
    E(raw("s_waitcnt lgkmcnt(0)"))
    srd(p, sWO, 48, 4718592)
    srd(p, sW1, 52, 5308416); srd(p, sW2, 54, 5308416); srd(p, sWS, 50, 0x10000000 if (CFG['stamps'] or CFG['fused']) else WSP_BYTES)
    srd(p, sOUT, 56, 2359296); srd(p, sDBG, 58, 256)

def common_prologue_old():
    p = Prog(); E = p.emit
    E(salu('s_cmp_ge_u32', None, s(2), 256))
    E(raw("s_cbranch_scc0 L_go")); E(raw("s_endpgm")); E(label("L_go"))
    E(raw("s_load_dwordx8 s[40:47], s[0:1], 0", wr=[s(40, 8)]))
    E(raw("s_load_dwordx2 s[48:49], s[0:1], 32", wr=[s(48, 2)]))
    E(raw("s_load_dwordx8 s[52:59], s[0:1], 48", wr=[s(52, 8)]))
    E(raw("s_load_dwordx2 s[50:51], s[0:1], 80", wr=[s(50, 2)]))
    if CFG['stamps']:
        E(raw(f"s_memtime {sT0}", wr=[sT0])); E(raw("s_memrealtime s[96:97]", wr=[s(96, 2)]))
    tab = ROLE_TAB
    if CFG.get('map', 4) == 41:
        t4 = CFG.get('t41', [11, 0, 1, 2, 12, 3, 4, 5, 13, 14, 6, 7, 15, 10, 8, 9])
        lo = sum(t4[i] << (4 * i) for i in range(8)); hi = sum(t4[8 + i] << (4 * i) for i in range(8))
        E(shr(s(3), s(2), 6)); E(salu('s_bfe_u32', s(4), s(2), (1 << 16) | 1))
        E(shl(s(4), s(4), 2)); E(salu('s_or_b32', s(3), s(3), s(4))); E(shl(s(3), s(3), 2))
        E(salu('s_bitcmp1_b32', None, s(2), 2)); E(smov(s(4), lo)); E(csel(s(4), hi, s(4)))
        E(shr(s(4), s(4), s(3))); E(salu('s_and_b32', sROLE, s(4), 15))
        E(salu('s_and_b32', s(3), s(2), 1)); E(shl(s(3), s(3), 3))
        E(salu('s_bfe_u32', sRB, s(2), (3 << 16) | 3)); E(salu('s_or_b32', sRB, sRB, s(3)))
    elif CFG.get('map', 4) == 8:
        t8 = [0, 1, 2, 3, 4, 10, 11, 12, 5, 6, 7, 8, 9, 13, 14, 15]
        lo = sum(t8[i] << (4 * i) for i in range(8)); hi = sum(t8[8 + i] << (4 * i) for i in range(8))
        E(salu('s_bfe_u32', s(3), s(2), (3 << 16) | 3)); E(shl(s(3), s(3), 2))
        E(salu('s_bitcmp1_b32', None, s(2), 2)); E(smov(s(4), lo)); E(csel(s(4), hi, s(4)))
        E(shr(s(4), s(4), s(3))); E(salu('s_and_b32', sROLE, s(4), 15))
        E(salu('s_and_b32', s(3), s(2), 1)); E(shl(s(3), s(3), 3)); E(salu('s_and_b32', s(4), s(2), 2)); E(shl(s(4), s(4), 1))
        E(shr(sRB, s(2), 6)); E(salu('s_or_b32', sRB, sRB, s(3))); E(salu('s_or_b32', sRB, sRB, s(4)))
    elif CFG.get('map', 4) == 2:
        t2 = [0, 1, 2, 3, 4, 11, 5, 12, 6, 13, 7, 14, 8, 15, 9, 10]
        lo = sum(t2[i] << (4 * i) for i in range(8)); hi = sum(t2[8 + i] << (4 * i) for i in range(8))
        E(salu('s_bfe_u32', s(3), s(2), (1 << 16) | 3)); E(salu('s_and_b32', s(4), s(2), 3)); E(shl(s(4), s(4), 1)); E(salu('s_or_b32', s(3), s(3), s(4))); E(shl(s(3), s(3), 2))
        E(salu('s_bitcmp1_b32', None, s(2), 2)); E(smov(s(4), lo)); E(csel(s(4), hi, s(4)))
        E(shr(s(4), s(4), s(3))); E(salu('s_and_b32', sROLE, s(4), 15)); E(shr(sRB, s(2), 4))
    else:
        lo = sum(tab[i] << (4 * i) for i in range(8)); hi = sum(tab[8 + i] << (4 * i) for i in range(8))
        E(salu('s_bfe_u32', s(3), s(2), (2 << 16) | 3)); E(salu('s_bfe_u32', s(4), s(2), (1 << 16) | 1))
        E(shl(s(4), s(4), 2)); E(salu('s_or_b32', s(3), s(3), s(4))); E(shl(s(3), s(3), 2))
        E(salu('s_bitcmp1_b32', None, s(2), 2))
        E(smov(s(4), lo)); E(csel(s(4), hi, s(4)))
        E(shr(s(4), s(4), s(3))); E(salu('s_and_b32', sROLE, s(4), 15))
        E(salu('s_and_b32', s(3), s(2), 1)); E(shl(s(3), s(3), 3))
        E(shr(sRB, s(2), 5)); E(salu('s_or_b32', sRB, sRB, s(3)))
    E(valu('v_lshrrev_b32', v(1), 6, v(0)))
    E(valu('v_readfirstlane_b32', sWAVE, v(1)))
    E(valu('v_and_b32', v(0), 63, v(0)))
    E(valu('v_lshrrev_b32', vROWN, 3, v(0)))
    E(valu('v_and_b32', v(20), 7, v(0))); E(valu('v_lshrrev_b32', v(21), 4, v(0)))
    E(valu('v_xor_b32', v(22), v(20), v(21))); E(valu('v_xor_b32', v(23), 4, v(22)))
    E(smov(s(3), 1152)); E(valu('v_mul_u32_u24', v(24), s(3), vROWN))
    E(valu('v_lshl_add_u32', v(16), v(22), 4, v(24))); E(valu('v_lshl_add_u32', v(17), v(23), 4, v(24)))
    E(valu('v_add_u32', v(17), 8 * 1152 - 1024, v(17)))
    E(valu('v_add_u32', v(18), 2 * (8 * 1152 - 1024), v(16))); E(valu('v_add_u32', v(19), 2 * (8 * 1152 - 1024), v(17)))
    E(mul(s(6), sWAVE, XW))
    E(shl(s(7), sRB, 2)); E(add(s(7), s(7), sWAVE)); E(mul(s(7), s(7), 32 * 1152))
    E(raw(f"s_getpc_b64 {sPC}", wr=[sPC])); E(label("L_pc"))
    E(smov(s(4), "L_roleA-L_pc")); E(smov(s(5), "L_roleA_end-L_pc-4"))
    E(salu('s_cmp_ge_u32', None, sROLE, NA)); E(csel(s(4), "L_roleM-L_pc", s(4))); E(csel(s(5), "L_roleM_end-L_pc-4", s(5)))
    E(salu('s_cmp_ge_u32', None, sROLE, NA + NM)); E(csel(s(4), "L_roleF-L_pc", s(4))); E(csel(s(5), "L_roleF_end-L_pc-4", s(5)))
    def code_pf():
        NL = CFG.get('codelines', 24)
        E(salu('s_and_b32', s(3), sRB, 7)); E(shl(s(3), s(3), 2)); E(add(s(3), s(3), sWAVE))
        E(mul(s(3), s(3), NL * 128)); E(add(s(3), s(3), s(4)))
        E(valu('v_min_u32', v(2), NL - 1, v(0))); E(valu('v_lshlrev_b32', v(2), 7, v(2))); E(valu('v_add_u32', v(2), s(3), v(2)))
        E(valu('v_min_u32', v(3), s(5), v(2)))
        E(I(f"global_load_dword {vDUM}, v3, {sPC}", 'vload', wr=vDUM.regs(), rd=vr(3) + sPC.regs(), tag='pf'))
    if CFG.get('codepf', 3) >= 3:
        n0 = CFG.get('code0', 16)
        if n0:
            E(mul(s(3), sWAVE, n0 * 128)); E(add(s(3), s(3), s(4)))
            E(valu('v_min_u32', v(2), n0 - 1, v(0))); E(valu('v_lshlrev_b32', v(2), 7, v(2))); E(valu('v_add_u32', v(2), s(3), v(2)))
            E(I(f"global_load_dword {vDUM}, v2, {sPC}", 'vload', wr=vDUM.regs(), rd=vr(2) + sPC.regs(), tag='pf'))
        code_pf()
    E(raw("s_waitcnt lgkmcnt(0)"))
    srd(p, sX, 40, 2359296)
    if CFG.get('xt'):
        nch = CFG['xt']
        E(salu('s_bfe_u32', s(3), s(2), (2 << 16) | 3)); E(mul(s(3), s(3), 128 * nch)); E(add(s(3), s(3), 128 * (9 - 4 * nch))); E(add(s(3), s(3), s(7)))
        E(valu('v_and_b32', v(2), 31, v(0))); E(valu('v_mul_u32_u24', v(2), 1152, v(2)))
        if nch == 2:
            E(valu('v_lshrrev_b32', v(3), 5, v(0))); E(valu('v_lshl_add_u32', v(2), v(3), 7, v(2)))
        ld = bload('buffer_load_dword', vDUM, v(2), sX, s(3)); ld.tag = 'pf'; E(ld)
    nx0 = CFG.get('tx', 2) if CFG.get('touch') else 0
    for j in range(nx0): E(xdma(j))
    if CFG.get('touch'):
        E(salu('s_cmp_gt_u32', None, sROLE, 10))
        E(raw("s_cselect_b64 s[60:61], s[52:53], s[46:47]", 'salu', wr=[s(60, 2)], rd=[s(52, 2), s(46, 2)]))
        E(raw("s_cselect_b64 s[66:67], s[54:55], s[48:49]", 'salu', wr=[s(66, 2)], rd=[s(54, 2), s(48, 2)]))
        E(salu('s_cmp_eq_u32', None, sWAVE, 1)); E(raw("s_cselect_b64 s[60:61], s[66:67], s[60:61]", 'salu', wr=[s(60, 2)], rd=[s(66, 2), s(60, 2)]))
        E(salu('s_cmp_eq_u32', None, sWAVE, 2)); E(raw("s_cselect_b64 s[60:61], s[42:43], s[60:61]", 'salu', wr=[s(60, 2)], rd=[s(42, 2), s(60, 2)]))
        E(salu('s_cmp_eq_u32', None, sWAVE, 3)); E(raw("s_cselect_b64 s[60:61], s[44:45], s[60:61]", 'salu', wr=[s(60, 2)], rd=[s(44, 2), s(60, 2)]))
        E(smov(s(3), 73728)); E(salu('s_cmp_ge_u32', None, sWAVE, 2)); E(csel(s(3), 131072, s(3)))
        E(valu('v_mul_u32_u24', v(2), s(3), v(0)))
        E(I(f"global_load_dword {vDUM}, v2, s[60:61]", 'vload', wr=vDUM.regs(), rd=vr(2) + sr(60, 2), tag='pf'))
    for j in range(nx0, CFG['xe']): E(xdma(j))
    if CFG.get('codepf', 3) == 1: code_pf()
    if CFG.get('codepf', 3) == 2:
        E(valu('v_mov_b32', v(46), v(3))); E(raw(f"s_mov_b64 s[100:101], {sPC}", 'salu', wr=[s(100, 2)], rd=[sPC]))
    srd(p, sK, 42, 8388608); srd(p, sV, 44, 8388608); srd(p, sWQ, 46, 4718592); srd(p, sWO, 48, 4718592)
    srd(p, sW1, 52, 5308416); srd(p, sW2, 54, 5308416); srd(p, sWS, 50, 0x10000000 if (CFG['stamps'] or CFG['fused']) else WSP_BYTES)
    srd(p, sOUT, 56, 2359296); srd(p, sDBG, 58, 256)
    E(mul(sW8704, sWAVE, 8 * PP)); E(mul(sWC, sWAVE, PP)); E(add(sWC, sWC, 32 * PP))
    E(shl(sW8192, sWAVE, 13)); E(shl(sWCH, sWAVE, 10)); E(add(sWCH, sWCH, 32768))
    E(mul(sW2176, sWAVE, 2 * PP)); E(mul(sW4352, sWAVE, 4 * PP)); E(add(sWA2, sW2176, 16 * PP))
    return p

def dispatch_text():
    return f""" s_cmp_ge_u32 {sROLE}, {NA + NM}
 s_cbranch_scc1 L_roleF
 s_cmp_ge_u32 {sROLE}, {NA}
 s_getpc_b64 s[94:95]
L_pc2:
 s_cbranch_scc1 L_jM
 s_add_u32 s94, s94, L_roleA-L_pc2
 s_addc_u32 s95, s95, 0
 s_setpc_b64 s[94:95]
L_jM:
 s_add_u32 s94, s94, L_roleM-L_pc2
 s_addc_u32 s95, s95, 0
 s_setpc_b64 s[94:95]
"""

def pfload(srd_, base):
    ld = bload('buffer_load_dword', vDUM, vPF, srd_, base); ld.tag = 'pf'; return ld
def pf_lin(srd_, base_s, start, nbytes, nl=64):
    def f():
        return [valu('v_lshrrev_b32', vPF2, 16, vTID), valu('v_and_b32', vPF, 63, vTID), valu('v_min_u32', vPF, nl - 1, vPF),
                valu('v_mad_u32_u24', vPF, vPF2, nl, vPF), valu('v_lshlrev_b32', vPF, 7, vPF), valu('v_add_u32', vPF, start, vPF),
                valu('v_min_u32', vPF, nbytes - 128, vPF), pfload(srd_, base_s)]
    return f
def pf_run(srd_, base_s, nbytes, nl):
    def f():
        return [valu('v_min_u32', vPF, nbytes - 128, vPFR), valu('v_add_u32', vPFR, 64 * nl * 128, vPFR), pfload(srd_, base_s)]
    f.nl = nl
    return f
def vPFW(kind): return {'F': v(8), 'A': v(7), 'M': v(36)}[kind]
def pf_row(kind, srd_, step=128):
    def f():
        ld = bload('buffer_load_dword', vDUM, vPFW(kind), srd_, sPW); ld.tag = 'pf'
        return [add(sPW, sPW, step), ld]
    return f
def pf_row_setup(kind, pitch, nl, base, lit):
    r = vPFW(kind)
    return [valu('v_bfe_u32', vPF2, vTID, 16, 5), valu('v_and_b32', r, 63, vTID), valu('v_min_u32', r, nl - 1, r),
            valu('v_mad_u32_u24', r, vPF2, nl, r), smov(sT2, pitch), valu('v_mul_u32_u24', r, sT2, r), add(sPW, base, lit)]
def pf_code(la, lb, nl):
    def f():
        L = f"L_cp{pf_code.k}"; pf_code.k += 1
        ld = I(f"global_load_dword {vDUM}, {vPF}, {sPC}", 'vload', wr=vDUM.regs(), rd=vPF.regs() + sPC.regs(), units=3, tag='pf')
        return [raw(f"s_getpc_b64 {sPC}", 'salu', wr=[sPC]), label(L),
                salu('s_add_u32', sPC[0], sPC[0], f"{la}-{L}"), salu('s_addc_u32', sPC[1], sPC[1], 0, scc_r=True),
                valu('v_bfe_u32', vPF2, vTID, 16, 5), valu('v_and_b32', vPF, 63, vTID), valu('v_min_u32', vPF, nl - 1, vPF),
                valu('v_mad_u32_u24', vPF, vPF2, nl, vPF), valu('v_lshlrev_b32', vPF, 7, vPF), valu('v_min_u32', vPF, f"{lb}-{la}-4", vPF), ld]
    return f
pf_code.k = 0
def pf_sched(R, k0, srd_, base_s, nbytes, nl):
    per = 64 * nl * 128; k = k0
    for st in range(0, nbytes, per):
        R.pf.setdefault(k, []).append(pf_lin(srd_, base_s, st, nbytes, nl)); k += 1
    return k

def role_prologue(R, vm_before):
    p = R.p; E = p.emit; kind = R.kind
    p.vm = list(vm_before)
    MS = CFG['shape'] == 'M'
    def PS(k):
        if CFG['stamps'] == 1: R.stamp(k)
    if CFG.get('delayrole') is not None:
        for r_ in CFG['delayrole']:
            E(salu('s_cmp_eq_u32', None, sROLE, r_[0])); E(raw(f"s_cbranch_scc0 L_{kind}_nd{r_[0]}"))
            E(smov(sLC, r_[1])); E(label(f"L_{kind}_dl{r_[0]}")); E(raw("s_sleep 127")); E(salu('s_sub_u32', sLC, sLC, 1)); E(salu('s_cmp_lg_u32', None, sLC, 0)); E(raw(f"s_cbranch_scc1 L_{kind}_dl{r_[0]}"))
            E(label(f"L_{kind}_nd{r_[0]}"))
    PS(56)
    lane = v(0)
    ILV = CFG.get('ilv') and not MS
    setup = []
    if ILV:
        E(valu('v_lshrrev_b32', v(48), 4, lane)); E(valu('v_and_b32', v(49), 15, lane)); E(valu('v_bfe_u32', v(50), lane, 1, 3)); E(valu('v_xor_b32', v(50), v(50), v(48)))
        E(valu('v_lshlrev_b32', v(49), 7, v(49))); E(valu('v_add_u32', v(49), s(6), v(49)))
        E(valu('v_lshl_add_u32', v(20), v(50), 4, v(49))); E(valu('v_xor_b32', v(21), 64, v(20)))
        def E(i):
            if isinstance(i, (list, tuple)):
                for x in i: E(x)
            else: setup.append(i)
    E(shl(sT2, sRB, 2)); E(add(sT2, sT2, sWAVE)); E(shl(sT2, sT2, 16)); E(valu('v_or_b32', vTID, sT2, lane))
    if kind in 'AM' and CFG.get('pair'):
        sHP_, sHS_ = s(86), s(85)
        if CFG.get('l844'): E(shl(sHP_, sROLE, 1)); E(add(sHP_, sHP_, 8))
        else: E(mul(sHP_, sROLE, 3))
        if kind == 'A':
            sHP_, sHS_ = sFA, sFC
            E(mul(sHS_, sROLE, 3)); E(salu('s_and_b32', s(4), sROLE, 1)); E(add(sHP_, sHS_, s(4)))
            E(shl(s(4), s(4), 1)); E(add(sHS_, sHS_, 2)); E(salu('s_sub_u32', sHS_, sHS_, s(4)))
            E(salu('s_sub_u32', sJQ, sHS_, sHP_)); E(shl(sJQ, sJQ, 8)); E(salu('s_sub_u32', sJQ, sJQ, 3 * 128))
        E(shl(sQ0, sHP_, 8))
        E(mul(sQA, sWAVE, 64 * 8192)); E(add(sQA, sQA, sQ0))
        E(shl(sQC, sWAVE, 16)); E(add(sQC, sQC, sQ0)); E(add(sQC, sQC, 256 * 8192))
        E(shr(s(3), sWAVE, 1)); E(shl(s(3), s(3), 13)); E(salu('s_and_b32', s(4), sWAVE, 1)); E(shl(s(4), s(4), 11)); E(add(s(3), s(3), s(4)))
        E(salu('s_sub_u32', s(3), s(3), 64)); E(shl(s(4), sWAVE, 11))
        for e, (h_, pfr) in enumerate([(sHP_, sPFa), (sHS_, sPFb)][:2 if kind == 'A' else 1]):
            E(shr(pfr, h_, 1)); E(shl(pfr, pfr, 19)); E(add(pfr, pfr, 1536 * 256))
            E(add(sKb[e], pfr, s(4))); E(add(sVb[e], pfr, s(3)))
        E(mul(sPFc, sROLE, 384 * 1152) if kind == 'A' else mul(sPFc, sHP_, 128 * 1152))
        if kind == 'A':
            E(mul(sHP_, sHP_, 128 * 1152)); E(mul(sHS_, sHS_, 128 * 1152))
            E(mul(sOA, sWAVE, 32 * 1152)); E(add(sOA1, sOA, sHS_)); E(add(sOA, sOA, sHP_))
            E(salu('s_sub_u32', sOA1, sOA1, 64 * 1152)); E(add(sT3, sOA, 192 * 1152)); E(salu('s_cmp_lt_u32', None, sWAVE, 2)); E(csel(sOA1, sT3, sOA1))
            E(shr(s(3), sWAVE, 1)); E(shl(s(3), s(3), 2)); E(salu('s_and_b32', s(4), sWAVE, 1)); E(add(s(3), s(3), s(4)))
            E(mul(sOB, s(3), 8 * 1152)); E(add(sOB1, sOB, sHS_)); E(add(sOB1, sOB1, 64 * 1152)); E(add(sOB, sOB, sHP_)); E(add(sOB, sOB, 128 * 1152))
        else:
            E(mul(sOA, sWAVE, 64 * 1152)); E(add(sOA, sOA, sPFc))
    elif kind in 'AM':
        E(mul(sT3, sROLE, 3 * 256))
        E(mul(sQA, sWAVE, 64 * 8192)); E(add(sQA, sQA, sT3))
        E(shl(sQC, sWAVE, 16)); E(add(sQC, sQC, sT3)); E(add(sQC, sQC, 256 * 8192))
        E(shr(s(3), sWAVE, 1)); E(shl(s(3), s(3), 13)); E(salu('s_and_b32', s(4), sWAVE, 1)); E(shl(s(4), s(4), 11)); E(add(s(3), s(3), s(4)))
        E(salu('s_sub_u32', s(3), s(3), 64)); E(shl(s(4), sWAVE, 11))
        if MS: E(shl(s(3), sWAVE, 12))
        for e in range(3 if kind == 'A' else 2):
            E(mul(sT3, sROLE, 3)); E(add(sT3, sT3, e)); E(shr(sT3, sT3, 1)); E(shl(sT3, sT3, 19)); E(add(sT3, sT3, 1536 * 256))
            if e == 0: E(smov(sPFa, sT3))
            if e == (2 if kind == 'A' else 1): E(smov(sPFb, sT3))
            E(add(sKb[e], sT3, s(4))); E(add(sVb[e], sT3, s(3)))
        E(mul(sPFc, sROLE, 384 * 1152))
        if kind == 'A':
            E(mul(sOA, sWAVE, 32 * 1152)); E(add(sOA, sOA, sPFc))
            E(shr(s(3), sWAVE, 1)); E(shl(s(3), s(3), 2)); E(salu('s_and_b32', s(4), sWAVE, 1)); E(add(s(3), s(3), s(4)))
            E(mul(sOB, s(3), 8 * 1152)); E(add(sOB, sOB, sPFc)); E(add(sOB, sOB, 128 * 1152))
        else:
            E(mul(sOA, sWAVE, 64 * 1152)); E(add(sOA, sOA, sPFc))
    if kind in 'FM':
        if kind == 'F':
            E(salu('s_sub_u32', s(3), sROLE, NA + NM)); E(mul(sPF1, s(3), 13 * 128)); E(shl(sPF1h, s(3), 6)); E(add(sPF1h, sPF1h, 69 * 128))
        elif CFG.get('l844'):
            E(mul(sPF1, sROLE, 5 * 128)); E(add(sPF1, sPF1, (52 - 40) * 128)); E(smov(sPF1h, sPF1))
        else:
            E(smov(sPF1, f_fullcol(5) * 2)); E(smov(sPF1h, f_halfcol(5) * 2))
        E(mul(sHA, sWAVE, 64 * 9216)); E(add(sHA, sHA, sPF1))
        E(mul(sHC, sWAVE, 8 * 9216)); E(add(sHC, sHC, sPF1)); E(add(sHC, sHC, 256 * 9216))
        E(mul(sHH, sWAVE, 128 * 9216)); E(add(sHH, sHH, sPF1h))
        E(mul(sHHC, sWAVE, 16 * 9216)); E(add(sHHC, sHHC, sPF1h)); E(add(sHHC, sHHC, 512 * 9216))
        E(mul(sPF2, sPF1, 576)); E(mul(sPF2h, sPF1h, 576))
        E(mul(sFA, sWAVE, 64 * 1152)); E(add(sFA, sFA, sPF2))
        if MS:
            E(salu('s_and_b32', s(3), sWAVE, 1)); E(shl(s(3), s(3), 1)); E(shr(s(4), sWAVE, 1)); E(add(s(3), s(3), s(4))); E(mul(sFC, s(3), 8 * 1152))
        else: E(mul(sFC, sWAVE, 4 * 1152))
        E(add(sFS, sFC, sPF2h)); E(add(sFC, sFC, sPF2)); E(add(sFC, sFC, 256 * 1152))
    if CFG['pf'] >= 3:
        if kind in 'AM': E(mul(sT3, sROLE, 3 * 256) if not CFG.get('pair') else smov(sT3, sQ0))
        E(pf_row_setup(kind, 8192 if kind in 'AM' else 9216, 18, sT3 if kind in 'AM' else sPF1, 0))
        f_ = pf_row(kind, sWQ if kind in 'AM' else sW1)
        early_pf = [f_()[1]] + f_() + f_()
        if CFG.get('ez'): E(early_pf[0])
        if CFG.get('epf', 1) == 3:
            R.pf.setdefault(0, [])[:0] = [f_, f_]
    E(add(sT3, sROLE, NS - NA if kind == 'F' else 0))
    E(mul(sSt, sT3, PSTR())); E(shl(sT3, sRB, 2)); E(add(sT3, sT3, sWAVE)); E(mul(sT3, sT3, PWAVE)); E(add(sSt, sSt, sT3))
    if kind == 'M': E(add(sSt2, sSt, (NS - NA) * PSTR()))
    if CFG['fused']:
        E(shl(sT2, sRB, 14)); E(add(sT2, sT2, CTRL))
        E(add(sT3, sROLE, NS - NA if kind == 'F' else 0)); E(shl(sT3, sT3, 2)); E(add(sT3, sT3, sT2))
        E(salu('s_cmp_eq_u32', None, sWAVE, 0)); E(csel(sT3, sT3, OOB)); E(csel(sT2, sT2, OOB))
        E(valu('v_and_b32', v(24), 15, lane)); E(valu('v_lshlrev_b32', v(25), 7, v(24))); E(valu('v_add_u32', v(25), 128, v(25)))
        E(raw("v_cmp_eq_u32 vcc, 0, v24", 'valu', wr=['vcc'], rd=[v(24)])); E(valu('v_cndmask_b32', v(25), v(25), 0, 'vcc') if False else raw("v_cndmask_b32 v25, v25, v24, vcc", 'valu', wr=[v(25)], rd=[v(25), v(24), 'vcc']))
        E(valu('v_lshrrev_b32', v(26), 4, lane)); E(valu('v_lshl_add_u32', v(25), v(26), 2 + (NS - NA).bit_length() - 1, v(25))); E(valu('v_add_u32', v(25), sT3, v(25)))
        E(raw(f"s_mov_b64 vcc, {hex(((1 << (NA + 1)) - 1) * (0x10001 if kind == 'M' else 1))}", 'salu', wr=['vcc'])); E(valu('v_mov_b32', vCT, OOB)); E(nop(1))
        E(raw(f"v_cndmask_b32 {vCT}, {vCT}, v25, vcc", 'valu', wr=[vCT], rd=[vCT, v(25), 'vcc']))
        E(valu('v_mov_b32', v(24), vCT))
        if CFG.get('abn'):
            assert not CFG.get('bal')
            E(valu('v_and_b32', v(26), 15, lane)); E(valu('v_lshlrev_b32', v(26), 8, v(26))); E(add(sT2, sT2, ABN)); E(valu('v_add_u32', v(26), sT2, v(26)))
            if kind == 'A':
                t_ = [x - 20 for x in ([28, 29, 23, 30, 31, 24, 32, 33, 34, 35] if CFG.get('m3') else [28, 29, 22, 30, 31, 21, 32, 33, 34, 35])]
                E(smov(s(98), sum(t_[i] << (4 * i) for i in range(8)))); E(smov(s(99), t_[8] | (t_[9] << 4)))
                E(shl(s(4), sROLE, 2)); E(salu('s_lshr_b64', s(98, 2), s(98, 2), s(4))); E(salu('s_and_b32', s(4), s(98), 15)); E(add(s(4), s(4), 20))
                E(valu('v_mov_b32', v(27), s(4))); E(add(s(4), sROLE, 10)); E(valu('v_mov_b32', v(25), s(4)))
                E(raw("v_cmp_gt_u32 vcc, 32, v0", 'valu', wr=['vcc'], rd=[lane])); E(raw("v_cndmask_b32 v27, v27, v25, vcc", 'valu', wr=[v(27)], rd=[v(27), v(25), 'vcc']))
                E(valu('v_mov_b32', v(25), sROLE))
                E(raw("v_cmp_gt_u32 vcc, 16, v0", 'valu', wr=['vcc'], rd=[lane])); E(raw("v_cndmask_b32 v27, v27, v25, vcc", 'valu', wr=[v(27)], rd=[v(27), v(25), 'vcc']))
            elif CFG.get('m3') and kind == 'M':
                E(valu('v_lshrrev_b32', v(27), 4, lane)); E(valu('v_min_u32', v(27), 2, v(27))); E(valu('v_add_u32', v(27), 20, v(27)))
            elif CFG.get('m3'):
                E(add(s(4), sROLE, 12)); E(salu('s_cmp_lt_u32', None, sROLE, 13)); E(csel(s(4), 40, s(4))); E(valu('v_mov_b32', v(27), s(4)))
            else:
                E(smov(s(4), 20) if kind == 'M' else add(s(4), sROLE, 12)); E(valu('v_mov_b32', v(27), s(4)))
            E(valu('v_lshl_add_u32', v(26), v(27), 2, v(26))); E(valu('v_mov_b32', v(25), 0))
            z = bstore('buffer_store_dword', v(25), v(26), sWS, 0, flags='sc1'); z.tag = 'zero'; E(z)
        else:
            assert not (CFG.get('l844') or CFG.get('four') or CFG.get('nof'))
            E(add(sT2, sT2, 4 * (NPART + 1)))
            def flag(lane_, item):
                E(raw(f"s_lshl2_add_u32 {sT3}, {item}, {sT2}", 'salu', wr=[sT3], rd=[item, sT2]))
                E(raw(f"v_writelane_b32 v24, {sT3}, {lane_}", 'valu', wr=[v(24)], rd=[sT3, v(24)]))
            def tflag(lane_, tab, base):
                t_ = [min(x - base, 15) for x in tab]
                E(smov(s(98), sum(t_[i] << (4 * i) for i in range(8)))); E(smov(s(99), t_[8] | (t_[9] << 4)))
                E(shl(s(4), sROLE, 2)); E(salu('s_lshr_b64', s(98, 2), s(98, 2), s(4))); E(salu('s_and_b32', s(4), s(98), 15)); E(add(s(4), s(4), base)); flag(lane_, s(4))
            if kind == 'A' and CFG.get('bal'):
                flag(32, sROLE); tflag(33, BAL2, 10); tflag(34, BAL3, 21)
                tflag(35, [x if x < 36 else i for i, x in enumerate(BALM)][:0] + [(BALM[i] if BALM[i] < 36 else BAL2[i]) for i in range(10)], 10)
            elif kind == 'A':
                flag(32, sROLE); E(add(s(4), sROLE, 10)); flag(33, s(4)); tflag(34, [28, 29, 22, 30, 31, 21, 32, 33, 34, 35], 20)
            elif kind == 'F' and CFG.get('bal'):
                E(add(s(4), sROLE, 12)); E(salu('s_cmp_lt_u32', None, sROLE, 13)); E(csel(s(4), 41, s(4))); flag(32, s(4))
            else:
                E(smov(s(4), 20) if kind == 'M' else add(s(4), sROLE, 12)); flag(32, s(4))
        E(valu('v_mov_b32', v(25), 0))
        z = bstore('buffer_store_dword', v(25), v(24), sWS, 0, flags='sc1'); z.tag = 'zero'; E(z)
        E(shl(sT2, sRB, 4)); E(salu('s_cmp_eq_u32', None, sWAVE, 0)); E(csel(sT2, sT2, 256))
        E(valu('v_mov_b32', v(23), 256)); E(raw(f"v_writelane_b32 v23, {sT2}, 0", 'valu', wr=[v(23)], rd=[sT2, v(23)]))
    T_ = [v(24), v(25), v(26), v(27), v(28), v(29)]
    q, r, c4, rb1 = T_[0], T_[1], T_[2], T_[3]
    E(valu('v_lshrrev_b32', q, 4, lane)); E(valu('v_bfe_u32', r, lane, 2, 2)); E(valu('v_and_b32', c4, 3, lane)); E(valu('v_bfe_u32', rb1, lane, 3, 1))
    E(valu('v_and_b32', T_[4], 7, lane)); E(valu('v_bfe_u32', T_[5], lane, 4, 1)); E(valu('v_lshlrev_b32', T_[5], 1, T_[5]))
    E(valu('v_xor_b32', T_[4], T_[4], T_[5])); E(valu('v_lshlrev_b32', vSWZ, 4, T_[4]))
    E(valu('v_lshrrev_b32', T_[4], 5, lane)); E(valu('v_and_b32', T_[5], 3, vROWN)); E(valu('v_lshl_add_u32', vROWP, T_[4], 4, T_[5]))
    E(smov(sT2, PP)); E(valu('v_mul_u32_u24', T_[4], sT2, q)); E(valu('v_lshl_add_u32', T_[4], r, 7, T_[4]))
    E(valu('v_lshl_add_u32', T_[4], c4, 3, T_[4])); E(valu('v_lshl_add_u32', vRW[0][0], rb1, 5, T_[4]))
    E(valu('v_mov_b32', vDP, vRW[0][0]))
    if MS:
        E(valu('v_and_b32', T_[4], 7, lane)); E(valu('v_bfe_u32', T_[5], lane, 4, 1)); E(valu('v_lshlrev_b32', T_[5], 2, T_[5]))
        E(valu('v_xor_b32', T_[4], T_[4], T_[5])); E(valu('v_lshlrev_b32', vSWZM, 4, T_[4]))
        E(valu('v_bfe_u32', q, lane, 4, 1)); E(valu('v_lshlrev_b32', q, 5, q))
        E(valu('v_and_b32', T_[4], 1, lane)); E(valu('v_lshl_add_u32', q, T_[4], 4, q))
        E(valu('v_bfe_u32', T_[4], lane, 1, 1)); E(valu('v_lshl_add_u32', q, T_[4], 3, q))
        E(valu('v_lshrrev_b32', T_[5], 5, lane))
        E(smov(sT2, PP)); E(valu('v_mad_u32_u24', T_[4], T_[5], sT2, q)); E(valu('v_lshl_add_u32', T_[4], r, 7, T_[4]))
        E(valu('v_lshl_add_u32', vRW[0][0], rb1, 6, T_[4])); E(valu('v_xor_b32', rb1, 1, rb1)); E(valu('v_lshl_add_u32', vRW[0][1], rb1, 6, T_[4]))
        if kind in 'FM':
            E(valu('v_lshl_add_u32', vRH[0], T_[5], 9, q)); E(valu('v_lshl_add_u32', vRH[0], r, 6, vRH[0]))
            E(valu('v_lshlrev_b32', T_[4], 4, c4)); E(valu('v_lshrrev_b32', T_[5], 2, lane)); E(smov(sT2, 9216))
            E(valu('v_mad_u32_u24', vOFFH, T_[5], sT2, T_[4]))
        E(valu('v_lshrrev_b32', q, 4, lane))
    else:
        E(valu('v_xor_b32', vRW[0][1], 32, vRW[0][0]))
    for b in (1, 2):
        for T in range(2): E(valu('v_add_u32', vRW[b][T], 65536 * b, vRW[0][T]))
    if kind in 'FM' and not MS:
        E(valu('v_lshlrev_b32', T_[4], 9, q)); E(valu('v_lshl_add_u32', T_[4], r, 6, T_[4])); E(valu('v_lshl_add_u32', T_[4], c4, 3, T_[4]))
        E(valu('v_and_b32', T_[5], 1, q)); E(valu('v_lshl_add_u32', vRH[0], T_[5], 5, T_[4])); E(valu('v_xor_b32', vRH[1], 32, vRH[0]))
        E(valu('v_lshrrev_b32', T_[4], 5, lane)); E(valu('v_lshlrev_b32', T_[4], 1, T_[4])); E(valu('v_xor_b32', T_[4], T_[4], c4))
        E(valu('v_lshlrev_b32', T_[4], 4, T_[4])); E(valu('v_lshrrev_b32', T_[5], 2, lane)); E(smov(sT2, 9216))
        E(valu('v_mad_u32_u24', vOFFH, T_[5], sT2, T_[4]))
    if kind in 'AM':
        E(valu('v_and_b32', T_[4], 15, lane)); E(valu('v_xor_b32', T_[4], T_[4], q)); E(valu('v_lshlrev_b32', T_[4], 4, T_[4]))
        E(valu('v_lshl_add_u32', vOFFK, q, 8, T_[4]))
    E(set_offw(8192 if kind in 'AM' else 9216, 'M' if MS else 'S'))
    if MS:
        XA = [v(20), v(21), v(22), v(39)]
        E(valu('v_and_b32', T_[4], 31, lane)); E(valu('v_bfe_u32', T_[5], lane, 1, 3)); E(valu('v_lshrrev_b32', q, 5, lane)); E(valu('v_xor_b32', T_[5], T_[5], q))
        E(valu('v_lshlrev_b32', T_[4], 7, T_[4])); E(valu('v_add_u32', T_[4], s(6), T_[4]))
        E(valu('v_lshl_add_u32', XA[0], T_[5], 4, T_[4]))
        for tt in range(1, 4): E(valu('v_xor_b32', XA[tt], 32 * tt, XA[0]))
    else:
        E(valu('v_and_b32', T_[4], 15, lane)); E(valu('v_bfe_u32', T_[5], lane, 1, 3)); E(valu('v_xor_b32', T_[5], T_[5], q))
        E(valu('v_lshlrev_b32', T_[4], 7, T_[4])); E(valu('v_add_u32', T_[4], s(6), T_[4]))
        E(valu('v_lshl_add_u32', v(20), T_[5], 4, T_[4])); E(valu('v_xor_b32', v(21), 64, v(20)))
        if kind in 'AM':
            E(smov(sT2, PP)); E(valu('v_mul_u32_u24', v(22), sT2, r)); E(valu('v_lshl_add_u32', v(22), c4, 8, v(22)))
            E(valu('v_xor_b32', T_[4], q, c4)); E(valu('v_lshl_add_u32', v(22), T_[4], 4, v(22)))
    E(valu('v_lshlrev_b32', vLANE16, 4, lane))
    if CFG['stamps'] == 2: E(valu('v_mov_b32', vSTAMP, 0))
    if CFG['fused'] and CFG.get('rep') and kind in 'FM':
        E(rep_addr(kind, v(24), v(25))); E(valu('v_mov_b32', v(25), 0))
        z = bstore('buffer_store_dword', v(25), v(24), sWS, 0, flags='sc1'); z.tag = 'zero'; E(z)
    E = p.emit
    sONE = s(97) if ILV else sT2
    SA = 56 if ILV else 28
    for i in range(8): E(valu('v_mov_b32', v(SA + i), 0))
    E(smov(sONE, 0x3f803f80))
    def stats(j):
        for tt in range(2):
            for g in range(2):
                for qd in range(4):
                    x = X(2 * j + tt, g)[qd]
                    E(valu('v_dot2c_f32_bf16', v(SA + 2 * g + (qd & 1)), sONE, x, rmw=True))
                    E(valu('v_dot2c_f32_bf16', v(SA + 4 + 2 * g + (qd & 1)), x, x, rmw=True))
    PS(57)
    for j in range(9):
        E(waitvm(p.vm_wait_for(lambda t: t == ('x', j))))
        if j == 0: PS(58)
        if MS:
            for tt in range(4): E(ds_b128(XM(4 * j + tt), XA[tt], j * 4096))
        else:
            for tt in range(2):
                for g in range(2): E(ds_b128(X(2 * j + tt, g), v(20 + tt), j * 4096 + g * 2048))
        if j + CFG['xe'] < 9: E(xdma(j + CFG['xe']))
        if CFG['pf'] >= 3 and CFG.get('epf', 1) == 1 and j == max(8 - CFG['xe'], 0): E(early_pf)
        if ILV:
            nper = -(-len(setup) // max(CFG['ilv'] - j, 1))
            while nper < len(setup) and (SCC in setup[nper].rd or setup[nper].txt.startswith('s_cselect') or VCC in setup[nper].rd): nper += 1
            E(setup[:nper]); del setup[:nper]
        if j >= 1:
            E(waitlg(4)); stats(j - 1)
    E(waitlg(0)); PS(59); E(barrier())
    if CFG.get('codepf', 3) == 2: E(I(f"global_load_dword {vDUM}, v46, s[100:101]", 'vload', wr=vDUM.regs(), rd=vr(46) + sr(100, 2), tag='pf'))
    if CFG['pf'] >= 3 and CFG.get('epf', 1) == 2: E(early_pf)
    pend = []
    for k in range(2 if CFG.get('pro2') else 3):
        st = R.stages[k]
        if st.pre_dma: pend.append(st.pre_dma())
        pend += st.dma(k, False)
    if CFG.get('epf', 1) == 4: pend[CFG.get('epos', 9):CFG.get('epos', 9)] = [early_pf[1:3], early_pf[3:5]]
    d0 = CFG.get('d0', 9)
    for it in pend[:d0]: E(it)
    pend = pend[d0:]
    PS(60)
    stats(8)
    acc4 = [v(SA), v(SA + 2), v(SA + 4), v(SA + 6)]
    for x in acc4: E(valu('v_add_f32', x, x, v(x.n + 1)))
    if MS:
        for b_ in (0, 2):
            E(valu('v_add_f32', acc4[b_], acc4[b_], acc4[b_ + 1]))
        for b_ in (0, 2): E(valu('v_mov_b32', acc4[b_ + 1], acc4[b_]))
    for op in (('v_permlane32_swap_b32',) if MS else ('v_permlane16_swap_b32', 'v_permlane32_swap_b32')):
        for x in acc4: E(valu('v_mov_b32', v(x.n + 1), x))
        for x in acc4: E(valu(op, x, v(x.n + 1), rmw=True, extra_wr=[v(x.n + 1)]))
        for x in acc4: E(valu('v_add_f32', x, x, v(x.n + 1)))
    for x in acc4: E(valu('v_mul_f32', x, f2u(1.0 / 576), x))
    for g in range(2): E(valu('v_fma_f32', acc4[2 + g], '-' + str(acc4[g]), acc4[g], acc4[2 + g]))
    for g in range(2): E(valu('v_max_f32', acc4[2 + g], 0, acc4[2 + g]))
    for g in range(2): E(valu('v_add_f32', acc4[2 + g], f2u(1e-5), acc4[2 + g]))
    for g in range(2): E(valu('v_rsq_f32', acc4[2 + g], acc4[2 + g]))
    for g in range(2): E(valu('v_mul_f32', acc4[2 + g], f2u(-LOG2E), acc4[2 + g]))
    for g in range(2): E(valu('v_mov_b32', v(20 + g), acc4[g]))
    for g in range(2): E(valu('v_mul_f32', acc4[g], '-' + str(acc4[g]), acc4[2 + g], extra_rd=[acc4[g]]))
    E(smov(sT2, 0xffff0000))
    if CFG.get('dotn'):
        cl = [v(SA + 1), v(SA + 3)]; ch = [v(SA + 5), v(SA + 7)]
        for g in range(2): E(valu('v_cvt_pk_bf16_f32', cl[g], acc4[2 + g], 0))
        for g in range(2): E(valu('v_lshlrev_b32', ch[g], 16, cl[g]))
        for g in range(2): E(valu('v_mul_f32', acc4[g], '-' + str(v(20 + g)), ch[g], extra_rd=[v(20 + g)]))
    PS(61)
    n = 0
    for t in range(18):
        for g in range(2):
            tps = [v(24, 2), v(26, 2), v(16, 2), v(18, 2)]
            x = X(t, g)
            if CFG.get('dotn'):
                for qd in range(4):
                    E(valu('v_dot2_f32_bf16', tps[qd][0], x[qd], cl[g], acc4[g])); E(valu('v_dot2_f32_bf16', tps[qd][1], x[qd], ch[g], acc4[g]))
            else:
                for qd in range(4):
                    E(valu('v_lshlrev_b32', tps[qd][0], 16, x[qd])); E(valu('v_and_b32', tps[qd][1], sT2, x[qd]))
                for qd in range(4): E(valu('v_pk_fma_f32', tps[qd], tps[qd], v(acc4[2 + g].n, 2), v(acc4[g].n, 2), mods='op_sel_hi:[1,0,0]'))
            for qd in range(4): E(valu('v_cvt_pk_bf16_f32', x[qd], tps[qd][0], tps[qd][1]))
            if pend and n % CFG.get('dn', 2) == 0: E(pend.pop(0))
            n += 1
    for it in pend: E(it)
    if CFG['fused']:
        E(valu('v_mov_b32', v(24), 1)); E(waitvm(p.vm_wait_for(lambda t: t == 'zero')))
        E(I(f"buffer_atomic_add v24, v23, {sDBG}, 0 offen sc1", 'vstore', rd=vr(23, 2) + sDBG.regs(), units=3, tag='init'))
    for _ in range(CFG.get('idle', 0)): E(raw("s_sleep 16"))
    PS(62)
    if kind in 'AM' and MS:
        ln, m_, key, t_ = v(16), v(17), v(18), v(19)
        E([valu('v_lshrrev_b32', ln, 4, vLANE16), valu('v_and_b32', key, 19, ln),
           valu('v_bfe_u32', t_, ln, 2, 1), valu('v_lshl_add_u32', key, t_, 3, key),
           valu('v_bfe_u32', t_, ln, 3, 1), valu('v_lshl_add_u32', key, t_, 2, key),
           valu('v_lshrrev_b32', m_, 2, key), smov(sT2, PP), valu('v_mul_u32_u24', m_, sT2, m_),
           valu('v_and_b32', key, 3, key), valu('v_lshl_add_u32', m_, key, 8, m_),
           valu('v_lshrrev_b32', t_, 5, ln), valu('v_xor_b32', t_, t_, key),
           valu('v_lshl_add_u32', vRKM[0], t_, 4, m_), valu('v_xor_b32', vRKM[1], 32, vRKM[0])])
    elif kind in 'AM':
        E(valu('v_mov_b32', vRK[0], v(22))); E(valu('v_add_u32', vRK[1], 65536, v(22))); E(valu('v_add_u32', vRK[2], 131072, v(22)))
    if CFG['stamps']: E(raw(f"v_writelane_b32 {vSTAMP}, s96, 55", 'valu', wr=[vSTAMP], rd=[s(96)])) if kind != 'A' else None
    if CFG['stamps']: E(smov(s(43), s(96)))
    nlr = {'F': 10, 'A': 11, 'M': 8}[kind]
    if kind != 'M': E([valu('v_lshrrev_b32', vPF2, 16, vTID), valu('v_and_b32', vPFR, 63, vTID), valu('v_min_u32', vPFR, nlr - 1, vPFR),
       valu('v_mad_u32_u24', vPFR, vPF2, nlr, vPFR), valu('v_lshlrev_b32', vPFR, 7, vPFR)])
    if CFG['stamps']: E(smov(s(97), 0))
    E(smov(sLN0, f2u(-1.0 / math.sqrt(128.0))))

def slow_check(R, heads, base2):
    def f():
        p = R.p; E = p.emit
        t = v(254); lo = v(255)
        E(valu('v_mov_b32', lo, f2u(2.0 ** -40))); E(smov(sT3, f2u(2.0 ** 40)))
        for (hd, Q, O) in heads:
            L = f"L_{R.kind}_slow{hd}"
            if CFG['shape'] == 'M':
                E(valu('v_med3_f32', t, Lsave[hd], sT3, lo))
                E(raw(f"v_cmp_neq_f32 vcc, {t}, {Lsave[hd]}", 'valu', wr=['vcc'], rd=[t, Lsave[hd]])); E(nop(4))
            else:
                E(valu('v_med3_f32', t, Lsave[2 * hd], sT3, lo))
                E(raw(f"v_cmp_neq_f32 s[98:99], {t}, {Lsave[2 * hd]}", 'valu', wr=[s(98, 2)], rd=[t, Lsave[2 * hd]]))
                E(valu('v_med3_f32', t, Lsave[2 * hd + 1], sT3, lo))
                E(raw(f"v_cmp_neq_f32 vcc, {t}, {Lsave[2 * hd + 1]}", 'valu', wr=['vcc'], rd=[t, Lsave[2 * hd + 1]])); E(nop(4))
                E(raw("s_or_b64 vcc, vcc, s[98:99]", 'salu', wr=['vcc'], rd=['vcc', s(98, 2)])); E(nop(1))
            if CFG.get('force_slow'): E(raw(f"s_mov_b64 vcc, -1", 'salu', wr=['vcc']))
            E(raw(f"s_cbranch_vccz {L}_ret"))
            E(raw(f"s_call_b64 {sRET}, {L}"))
            E(label(f"{L}_ret"))
            R.slow.append((slow_path if CFG['shape'] == 'M' else slow_pathS)(L, hd, Q, O, base2))
        E(nop(1))
    return f

def slow_path(L, hd, Q, Odst, b2):
    p = Prog(); E = p.emit
    O = v(48, 64); S = v(b2, 16); P = v(b2 + 16, 8); F = v(b2 + 24, 16)
    vK, vV, vM, vL, t0, t1 = [v(b2 + 40 + i) for i in range(6)]
    sB, sJ, sO = s(98), s(99), s(97)
    E(I(".p2align 2", 'label')); E(label(L))
    E(nop(7)); E(nop(7))
    E([valu('v_lshrrev_b32', t0, 4, vLANE16), valu('v_and_b32', vK, 19, t0), valu('v_bfe_u32', t1, t0, 2, 1), valu('v_lshl_add_u32', vK, t1, 3, vK),
       valu('v_bfe_u32', t1, t0, 3, 1), valu('v_lshl_add_u32', vK, t1, 2, vK), valu('v_lshrrev_b32', t1, 5, t0),
       valu('v_lshlrev_b32', vV, 1, vK), valu('v_lshl_add_u32', vV, t1, 11, vV),
       valu('v_lshlrev_b32', vK, 8, vK), valu('v_lshl_add_u32', vK, t1, 4, vK)])
    E([mul(sB, sROLE, 3), add(sB, sB, hd), shr(sB, sB, 1), shl(sB, sB, 19), add(sB, sB, 1536 * 256)])
    def qk():
        for half in range(2):
            for t in range(4): E(bload('buffer_load_dwordx4', F.sub(4 * t, 4), vK, sK, sO, (4 * half + t) * 32))
            E(waitvm(0))
            for t in range(4):
                tt = 4 * half + t
                E(mfma(S, F.sub(4 * t, 4), Q.sub(4 * tt, 4), 0 if tt == 0 else S))
            E(nop(7)); E(nop(7))
    E(valu('v_mov_b32', vM, 0xff800000)); E(smov(sJ, 0))
    E(label(L + "_a"))
    E(add(sO, sB, sJ)); qk()
    for i in range(0, 16, 2): E(valu('v_max3_f32', vM, vM, S[i], S[i + 1]))
    E(add(sJ, sJ, 8192)); E(salu('s_cmp_lt_u32', None, sJ, 16 * 8192)); E(raw(f"s_cbranch_scc1 {L}_a"))
    E(valu('v_mov_b32', t0, vM)); E(valu('v_permlane32_swap_b32', vM, t0, rmw=True, extra_wr=[t0])); E(valu('v_max_f32', vM, vM, t0))
    for i in range(64): E(valu('v_mov_b32', O[i], 0))
    E(valu('v_mov_b32', vL, 0)); E(smov(sJ, 0))
    E(label(L + "_b"))
    E(add(sO, sB, sJ)); qk()
    for i in range(16): E(valu('v_sub_f32', S[i], S[i], vM))
    for i in range(16): E(valu('v_exp_f32', S[i], S[i]))
    for i in range(16): E(valu('v_add_f32', vL, vL, S[i]))
    for q in range(8): E(valu('v_cvt_pk_bf16_f32', P[q], S[2 * q], S[2 * q + 1]))
    for u in range(2):
        for tp in range(2):
            for tq in range(2):
                for j in range(8):
                    E(bload('buffer_load_ushort', F[8 * (j & 1) + 4 * tq + j // 2], vV, sV, sO, j * 256 + (2 * tp + tq) * 64))
            E(waitvm(0))
            for i in range(8): E(valu('v_lshl_or_b32', F[i], F[8 + i], 16, F[i]))
            for tq in range(2):
                D_ = O.sub(16 * (2 * tp + tq), 16)
                E(mfma(D_, F.sub(4 * tq, 4), P.sub(4 * u, 4), D_))
            E(nop(7))
        if u == 0: E(add(sO, sO, 4096))
    E(add(sJ, sJ, 8192)); E(salu('s_cmp_lt_u32', None, sJ, 16 * 8192)); E(raw(f"s_cbranch_scc1 {L}_b"))
    E(nop(7)); E(nop(7))
    E(valu('v_mov_b32', t0, vL)); E(valu('v_permlane32_swap_b32', vL, t0, rmw=True, extra_wr=[t0])); E(valu('v_add_f32', vL, vL, t0))
    E(valu('v_rcp_f32', t0, vL))
    for tau in range(4):
        A_ = O.sub(16 * tau, 16)
        for e in range(16): E(valu('v_mul_f32', A_[e], A_[e], t0))
        for q in range(8): E(valu('v_cvt_pk_bf16_f32', A_[2 * q], A_[2 * q], A_[2 * q + 1]))
        for q in range(4): E(valu('v_permlane16_swap_b32', A_[2 * q], A_[2 * q + 8], rmw=True, extra_wr=[A_[2 * q + 8]]))
        for q in range(8): E(valu('v_accvgpr_write_b32', Odst[8 * tau + q], A_[2 * q]))
    E(nop(1)); E(raw(f"s_setpc_b64 {sRET}"))
    return p

def slow_pathS(L, hd, Q, Odst, b2):
    p = Prog(); E = p.emit
    ob = 48; kv = None
    if isinstance(b2, tuple): b2, ob = b2
    if isinstance(Odst, tuple):
        OFf, kv = Odst
        class _D:
            def __getitem__(s_, i): return OFf(i // 8)[i % 8]
        Odst = _D()
    O = v(ob, 64); S = v(b2, 16); P = v(b2 + 16, 8); F = v(b2 + 24, 16)
    vK, vV, t0, t1 = [v(b2 + 40 + i) for i in range(4)]
    vM = [v(b2 + 44), v(b2 + 45)]; vL = [v(b2 + 46), v(b2 + 47)]
    sB, sJ, sO = s(98), s(99), s(97)
    E(I(".p2align 2", 'label')); E(label(L))
    E(nop(7)); E(nop(7))
    E([valu('v_lshrrev_b32', t0, 4, vLANE16), valu('v_and_b32', t1, 15, t0), valu('v_lshrrev_b32', t0, 4, t0),
       valu('v_lshlrev_b32', vK, 8, t1), valu('v_lshl_add_u32', vK, t0, 4, vK),
       valu('v_lshlrev_b32', vV, 1, t1), valu('v_lshl_add_u32', vV, t0, 10, vV)])
    if kv is not None: E(smov(sB, kv))
    else: E([mul(sB, sROLE, 3), add(sB, sB, hd), shr(sB, sB, 1), shl(sB, sB, 19), add(sB, sB, 1536 * 256)])
    def qk():
        for T in range(2):
            E(add(sO, sB, sJ)) if T == 0 else E(add(sO, sO, 4096))
            for t in range(4): E(bload('buffer_load_dwordx4', F.sub(4 * t, 4), vK, sK, sO, t * 64))
            E(waitvm(0))
            for t in range(4):
                for g_ in range(2):
                    D_ = S.sub(8 * T + 4 * g_, 4)
                    E(mfma(D_, F.sub(4 * t, 4), Q.sub(8 * t + 4 * g_, 4), 0 if t == 0 else D_))
            E(nop(7)); E(nop(3))
    def allq(x, op):
        for sw in ('v_permlane16_swap_b32', 'v_permlane32_swap_b32'):
            E(valu('v_mov_b32', t0, x)); E(valu(sw, x, t0, rmw=True, extra_wr=[t0])); E(valu(op, x, x, t0))
    for g_ in range(2): E(valu('v_mov_b32', vM[g_], 0xff800000))
    E(smov(sJ, 0))
    E(label(L + "_a"))
    qk()
    for T in range(2):
        for g_ in range(2):
            for i in (0, 2): E(valu('v_max3_f32', vM[g_], vM[g_], S[8 * T + 4 * g_ + i], S[8 * T + 4 * g_ + i + 1]))
    E(add(sJ, sJ, 8192)); E(salu('s_cmp_lt_u32', None, sJ, 16 * 8192)); E(raw(f"s_cbranch_scc1 {L}_a"))
    for g_ in range(2): allq(vM[g_], 'v_max_f32')
    for i in range(64): E(valu('v_mov_b32', O[i], 0))
    for g_ in range(2): E(valu('v_mov_b32', vL[g_], 0))
    E(smov(sJ, 0))
    E(label(L + "_b"))
    qk()
    for i in range(16): E(valu('v_sub_f32', S[i], S[i], vM[(i >> 2) & 1]))
    for i in range(16): E(valu('v_exp_f32', S[i], S[i]))
    for i in range(16): E(valu('v_add_f32', vL[(i >> 2) & 1], vL[(i >> 2) & 1], S[i]))
    for g_ in range(2):
        for T in range(2):
            for k in range(2): E(valu('v_cvt_pk_bf16_f32', P[4 * g_ + 2 * T + k], S[8 * T + 4 * g_ + 2 * k], S[8 * T + 4 * g_ + 2 * k + 1]))
    for tp in range(4):
        for jh in range(2):
            E(add(sO, sB, sJ)) if jh == 0 else E(add(sO, sO, 4096))
            for tq in range(2):
                for jl in range(4):
                    j = 4 * jh + jl
                    E(bload('buffer_load_ushort', F[8 * (j & 1) + 4 * tq + j // 2], vV, sV, sO, jl * 256 + (2 * tp + tq) * 32))
        E(waitvm(0))
        for i in range(8): E(valu('v_lshl_or_b32', F[i], F[8 + i], 16, F[i]))
        for tq in range(2):
            for g_ in range(2):
                D_ = O.sub(8 * (2 * tp + tq) + 4 * g_, 4)
                E(mfma(D_, F.sub(4 * tq, 4), P.sub(4 * g_, 4), D_))
        E(nop(7))
    E(add(sJ, sJ, 8192)); E(salu('s_cmp_lt_u32', None, sJ, 16 * 8192)); E(raw(f"s_cbranch_scc1 {L}_b"))
    E(nop(7)); E(nop(3))
    for g_ in range(2): allq(vL[g_], 'v_add_f32')
    for g_ in range(2): E(valu('v_rcp_f32', vL[g_], vL[g_]))
    for i in range(64): E(valu('v_mul_f32', O[i], O[i], vL[(i >> 2) & 1]))
    for kk in range(4):
        for g_ in range(2):
            for T in range(2):
                for c in range(2):
                    r = 8 * (2 * kk + T) + 4 * g_ + 2 * c
                    E(valu('v_cvt_pk_bf16_f32', O[r], O[r], O[r + 1])); E(valu('v_accvgpr_write_b32', Odst[8 * kk + 4 * g_ + 2 * T + c], O[r]))
    E(nop(1)); E(raw(f"s_setpc_b64 {sRET}"))
    return p

NREP = 6
ABN = 4096
BAL2 = [10, 11, 22, 13, 14, 21, 12, 17, 15, 19]; BALM = [63, 63, 63, 63, 63, 63, 16, 63, 18, 63]; BAL3 = [28, 29, 23, 30, 31, 24, 32, 33, 34, 35]
sMD2 = s(84)
def rep_addr(kind, dst, t):
    return [shl(sT2, sRB, 14), add(sT2, sT2, CTRL + 2048), add(sT3, sROLE, NS - NA), shl(sT3, sT3, 2), add(sT2, sT2, sT3),
            salu('s_cmp_eq_u32', None, sWAVE, 0), csel(sT2, sT2, OOB),
            valu('v_lshlrev_b32', dst, 3, vLANE16), valu('v_add_u32', dst, sT2, dst), valu('v_mov_b32', t, OOB),
            raw(f"v_cmp_gt_u32 vcc, {hex(NA * NREP * 16)}, {vLANE16}", 'valu', wr=['vcc'], rd=[vLANE16]), valu('v_cndmask_b32', dst, t, dst, 'vcc')]
vCR = v(31)
def add_signals(R):
    P2 = [k for k, st in enumerate(R.stages) if st.name.startswith('P2')]
    def sig(first):
        def f():
            out = [valu('v_add_u32', vPRG, 1, vPRG)]
            return out + [bstore('buffer_store_dword', vPRG, vCT, sWS, 0, flags='sc1')]
        return f
    def sig7():
        return [valu('v_add_u32', vPRG, 1, vPRG), bstore('buffer_store_dword', vPRG, vCR, sWS, 0, flags='sc1'), bstore('buffer_store_dword', vPRG, vCT, sWS, 0, flags='sc1')]
    def chain(stages, base):
        firsts = [k for k in stages if R.stages[k].sub == 0]
        for c in range(8):
            k = firsts[c + 1] + CFG.get('siglag', {}).get(R.kind, 2)
            if k > stages[-1]: break
            R.stages[k].cover_st = base + c; R.stages[k].post_bar = sig(c == 0)
            if c == 7 and CFG.get('rep') and R.kind in 'FM': R.stages[k].post_bar = sig7
        if CFG.get('rep') and R.kind in 'FM': R.pf.setdefault(firsts[1], []).append(lambda: rep_addr(R.kind, vCR, vPF))
    chain(P2, 0)
    R.stages[P2[0]].post_bar = lambda: [valu('v_mov_b32', vPRG, 0)]

LDSC = 4 * SLOT
sAB = s(72, 2); sRM = s(74, 2); sCD = s(98, 2)
sRS, sRF, sSP, sC, sI, sPB, sPART, sOK, sPAR, sXW, sPWv, sTO = s(78), s(79), s(71), s(80), s(81), s(82), s(47), s(40), s(41), s(59), s(3), s(58)
sIT = [s(42), s(44), s(45)]; sXP = [s(46), s(60), s(61)]
sRET2 = s(66, 2)
vP, vD, vA, vO, vXO, vL4, vDO, vLA, vIT, vLD, vSC = [v(16 + i) for i in range(11)]
vX4 = v(28)
def s64(op, d, *src, scc_r=False): return salu(op, d, *src, scc_r=scc_r)
sPV = s(85)
def red_setup(kind):
    o = [shl(sPB, sRB, 14), add(sPB, sPB, CTRL), salu('s_cmp_eq_u32', None, sWAVE, 0), csel(sT3, 0, OOB),
         valu('v_lshrrev_b32', vL4, 2, vLANE16), valu('v_add_u32', vL4, sT3, vL4),
         valu('v_mov_b32', vSC, OOB), add(sT2, sT3, 4 * NPART), raw(f"v_writelane_b32 {vSC}, {sT2}, 0", 'valu', wr=[vSC], rd=[sT2, vSC]),
         valu('v_mov_b32', vS1, vSC), valu('v_min_u32', vL5, NPART * 16, vLANE16), valu('v_lshrrev_b32', vL5, 2, vL5), valu('v_add_u32', vL5, sT3, vL5),
         add(sT2, sT3, 252), raw(f"v_writelane_b32 {vSC}, {sT2}, 1", 'valu', wr=[vSC], rd=[sT2, vSC]),
         shl(sT2, sRB, 4), add(sT2, sT2, sT3), valu('v_mov_b32', vDO, 256), raw(f"v_writelane_b32 {vDO}, {sT2}, 0", 'valu', wr=[vDO], rd=[sT2, vDO])]
    if kind == 'A': o += [shl(sPV, sROLE, 7), add(sPV, sPV, 256), add(sPV, sPV, sPB)]
    if CFG.get('abn'): o += [shl(sAV_, sROLE, 8), add(sAV_, sAV_, ABN), add(sAV_, sAV_, sPB)]
    return o
vS1, vL5 = v(29), v(30)
sAV_ = s(76 + 1); vP2 = v(31)
def ab_load(): return bload('buffer_load_dword', vP2, vL4, sWS, sAV_, flags='sc1')
def ab_eval():
    return [raw(f"v_cmp_ne_u32 vcc, 0, {vP2}", 'valu', wr=['vcc'], rd=[vP2]), nop(1), raw(f"s_mov_b32 {sAB[0]}, vcc_lo", 'salu', wr=[sAB[0]], rd=['vcc']), raw(f"s_and_b32 {sAB[1]}, vcc_hi, 15", 'salu', wr=[sAB[1]], rd=['vcc'])]
PRIV = [False]
def red_poll(shared=False):
    cnt = [valu('v_mov_b32', vD, 0), I(f"buffer_atomic_add {vD}, {vDO}, {sDBG}, 0 offen sc0 sc1", 'vload', wr=vD.regs(), rd=vD.regs() + vDO.regs() + sDBG.regs(), units=3)]
    if PRIV[0] and not shared:
        return [cnt, [bstore('buffer_store_dword', vS1, vS1, sWS, sPV, flags='sc1'), bload('buffer_load_dword', vP, vL5, sWS, sPV, flags='sc1')]]
    return [cnt, [bstore('buffer_store_dword', vSC, vSC, sWS, sPB, flags='sc1'), bload('buffer_load_dword', vP, vL4, sWS, sPB, flags='sc1')]]
vG = [v(28), v(29), v(30)]; vGA = v(31); vGP = v(27)
def l2pf_setup():
    return [valu('v_lshrrev_b32', vGP, 7, vLANE16), smov(sT2, PSTR()), valu('v_mul_lo_u32', vGA, vGP, sT2),
            valu('v_bfe_u32', vA, vLANE16, 4, 3), valu('v_lshl_add_u32', vGA, vA, 7, vGA), shl(sT2, sWAVE, 10), valu('v_add_u32', vGA, sT2, vGA),
            valu('v_lshlrev_b32', vGP, 2, vGP), valu('v_mov_b32', vA, OOB), smov(sT2, 68), raw(f"v_writelane_b32 {vA}, {sT2}, 0", 'valu', wr=[vA], rd=[vA, sT2])]
def l2pf_poll():
    st = bstore('buffer_store_dword', vA, vA, sWS, sPB, flags='sc1')
    out = [[st]]
    for i in range(3):
        ld = bload('buffer_load_dword', vG[i], vGP, sWS, sPB, 32 * i, flags='sc1'); ld.tag = 'gp'
        out.append([ld])
    return out
def l2pf_issue(R, dlt):
    out = [[add(sI, sROLE, dlt), salu('s_and_b32', sT2, sI, 3), shr(sC, sI, 2), shl(sT3, sRB, 2), add(sT2, sT2, sT3), mul(sSP, sT2, PWAVE),
            shl(sT3, sC, 12), add(sSP, sSP, sT3), valu('v_mov_b32', vO, OOB)]]
    for i in range(3):
        ld = bload('buffer_load_dword', vDUM, vG[i], sWS, sT2); ld.tag = 'pf'
        cmp_ = raw(f"v_cmp_lt_u32 vcc, {sC}, {vG[i]}", 'valu', wr=['vcc'], rd=[sC, vG[i]])
        pre = [cmp_]
        if i == 2: pre += [raw("s_and_b64 vcc, vcc, 0xff", 'salu', wr=['vcc'], rd=['vcc'])]
        out.append(pre + [add(sT2, sSP, 8 * i * PSTR()), valu('v_cndmask_b32', vG[i], vO, vGA, 'vcc'), ld])
    return out
def red_eval():
    o = [raw(f"v_cmp_ne_u32 vcc, 0, {vP}", 'valu', wr=['vcc'], rd=[vP]), nop(1),
         raw(f"s_lshr_b64 {sAB}, vcc, {NPART + 1}", 'salu', wr=[sAB], rd=['vcc']), salu('s_and_b32', sAB[1], sAB[1], 15), smov(sRS, 0), smov(sRF, 0)]
    for c in range(9):
        o += [raw(f"v_cmp_ge_u32 vcc, {c}, {vP}", 'valu', wr=['vcc'], rd=[vP]), nop(1),
              raw(f"s_and_b32 {sT2}, vcc_lo, {hex((1 << NS) - 1)}", 'salu', wr=[sT2], rd=['vcc']), csel(sRS, sRS, 4 * (c + 1)),
              raw(f"s_and_b32 {sT2}, vcc_lo, {hex((1 << NPART) - (1 << NS))}", 'salu', wr=[sT2], rd=['vcc']), csel(sRF, sRF, 4 * (c + 1))]
    return o
def red_pub(par):
    return [shl(sT2, sRF, 8), salu('s_or_b32', sT2, sT2, sRS), shl(sT3, sTO, 16), salu('s_or_b32', sT2, sT2, sT3),
            valu('v_mov_b32', vIT, sT2), valu('v_mov_b32', vLA, par), raw(f"ds_write_b32 {vLA}, {vIT}", 'other', rd=[vLA, vIT]), waitlg(0)]
def red_get(par):
    return [valu('v_mov_b32', vLA, par), raw(f"ds_read_b32 {vIT}, {vLA}", 'ds', wr=[vIT], rd=[vLA]), waitlg(0),
            valu('v_readfirstlane_b32', sT2, vIT), salu('s_and_b32', sRS, sT2, 255), salu('s_bfe_u32', sRF, sT2, (8 << 16) | 8), shr(sTO, sT2, 16)]
def red_early(p, n):
    E = p.emit
    E([smov(sRS, 0), smov(sRF, 0), smov(sOK, 0), smov(sTO, 0), smov(sPAR, LDSC + 4), nop(1)])
    E(salu('s_cmp_eq_u32', None, sWAVE, 0)); E(raw(f"s_cbranch_scc0 L_{n}_e2"))
    E(waitvm(p.vm_wait_for(lambda t: t == 'poll')))
    E(valu('v_readfirstlane_b32', sOK, vD))
    E(salu('s_cmp_ge_u32', None, sOK, 16)); E(raw(f"s_cbranch_scc0 L_{n}_e1"))
    E(red_eval())
    E(label(f"L_{n}_e1"))
    E(red_pub(LDSC))
    E(label(f"L_{n}_e2"))

def ld_part(L, ks, flags):
    out = []
    for k in ks:
        out.append([add(sT2, sPART, k * PSTR()), bload('buffer_load_dwordx4', v(L + 4 * k, 4), vLD, sWS, sT2, flags=flags)])
    return out
def ld_x(L, sXO_):
    if CFG.get('nox'): return [[valu('v_mov_b32', vA, OOB), bload('buffer_load_dwordx2', v(L + 4 * NPART, 2), vA, sX, sXO_)], [bload('buffer_load_dwordx2', v(L + 4 * NPART + 2, 2), vA, sX, sXO_, 32)]]
    return [[bload('buffer_load_dwordx2', v(L + 4 * NPART, 2), vXO, sX, sXO_)], [bload('buffer_load_dwordx2', v(L + 4 * NPART + 2, 2), vXO, sX, sXO_, 32)]]
RB_ = 48
sD0, sD1 = s(68), s(69)
def proc_sum(E, L, ks, after, loads):
    SA, FA, T = RB_, RB_ + 8, RB_ + 16
    issued = 0; ks = list(ks)
    E(smov(sT3, 0xffff0000))
    for j, k in enumerate(ks):
        if loads: E(loads.pop(0)); issued += 1
        E(waitvm(len(ks) - 1 - j + after + issued))
        acc = SA if k < NS else FA
        for q in range(4):
            x = v(L + 4 * k + q)
            if k in (0, NS):
                E(valu('v_lshlrev_b32', v(acc + 2 * q), 16, x)); E(valu('v_and_b32', v(acc + 2 * q + 1), sT3, x))
            else:
                E(valu('v_dot2c_f32_bf16', v(acc + 2 * q), sD0, x, rmw=True)); E(valu('v_dot2c_f32_bf16', v(acc + 2 * q + 1), sD1, x, rmw=True))
    return issued
def proc_fin(E, L, sXO_, xwait, loads):
    SA, FA, T = RB_, RB_ + 8, RB_ + 16; XR = L + 4 * NPART; issued = 0
    for e in range(8): E(valu('v_exp_f32', v(T + e), v(FA + e)))
    for e in range(8): E(valu('v_add_f32', v(T + e), 1.0, v(T + e)))
    while len(loads) > 1: E(loads.pop(0)); issued += 1
    for e in range(8): E(valu('v_rcp_f32', v(T + e), v(T + e)))
    for e in range(8): E(valu('v_mul_f32', v(FA + e), f2u(-math.log(2.0)), v(FA + e)))
    for e in range(8): E(valu('v_mul_f32', v(FA + e), v(FA + e), v(T + e)))
    while loads: E(loads.pop(0)); issued += 1
    if xwait is not None: E(waitvm(xwait + issued))
    for q in range(4):
        E(valu('v_lshlrev_b32', v(T + 2 * q), 16, v(XR + q))); E(valu('v_and_b32', v(T + 2 * q + 1), sT3, v(XR + q)))
    for e in range(8): E(valu('v_fma_f32', v(T + e), v(SA + e), v(FA + e), v(T + e)))
    for q in range(4): E(valu('v_cvt_pk_bf16_f32', v(XR + q), v(T + 2 * q), v(T + 2 * q + 1)))
    if CFG.get('out4', True):
        def dpp(d, src, bank): return I(f"v_mov_b32_dpp {d}, {src} row_ror:8 row_mask:0xf bank_mask:{bank}", 'perm', wr=d.regs(), rd=src.regs() + d.regs())
        for i in range(2): E(valu('v_permlane16_swap_b32', v(XR + i), v(XR + 2 + i), rmw=True, extra_wr=[v(XR + 2 + i)]))
        for i in range(2): E(valu('v_mov_b32', v(T + i), v(XR + i)))
        for i in range(2): E(dpp(v(XR + i), v(XR + 2 + i), '0xc'))
        for i in range(2): E(dpp(v(XR + 2 + i), v(T + i), '0x3'))
        E(bstore('buffer_store_dwordx4', v(XR, 4), vX4, sOUT, sXO_, flags=CFG.get('oflags', 'sc1')))
        E(valu('v_mov_b32', vO, OOB)); E(bstore('buffer_store_dword', vO, vO, sOUT, 0))
        return
    E(bstore('buffer_store_dwordx2', v(XR, 2), vXO, sOUT, sXO_)); E(bstore('buffer_store_dwordx2', v(XR + 2, 2), vXO, sOUT, sXO_, 32))
def proc_all(E, L, sXO_, pre, loads):
    loads = list(loads)
    n = proc_sum(E, L, range(NPART), 2 + pre, loads)
    proc_fin(E, L, sXO_, pre + n, loads)

def acc_part(E, L, k):
    acc = RB_ if k < NS else RB_ + 8
    for q in range(4):
        x = v(L + 4 * k + q)
        if k in (0, NS):
            E(valu('v_lshlrev_b32', v(acc + 2 * q), 16, x)); E(valu('v_and_b32', v(acc + 2 * q + 1), sT3, x))
        else:
            E(valu('v_dot2c_f32_bf16', v(acc + 2 * q), sD0, x, rmw=True)); E(valu('v_dot2c_f32_bf16', v(acc + 2 * q + 1), sD1, x, rmw=True))
def stream(E, segs, hooks=None):
    W = CFG.get('rwin', 8); FL = CFG.get('fflags', 'sc1')
    seq = []
    for (L, sP, sX_, ks, wx, fin) in segs:
        if wx:
            for it in ld_x(L, sX_): seq.append((it, None))
        ks = list(ks)
        for j, k in enumerate(ks):
            it = [add(sT2, sP, k * PSTR()), bload('buffer_load_dwordx4', v(L + 4 * k, 4), vLD, sWS, sT2, flags=FL)]
            last = fin and j == len(ks) - 1
            seq.append((it, (lambda L=L, k=k, last=last, sX_=sX_: (acc_part(E, L, k), proc_fin(E, L, sX_, None, []) if last else None, last)[2])))
    E(smov(sT3, 0xffff0000))
    n = len(seq); issued = 0
    extra_at = []
    for c in range(n):
        while issued < min(n, c + W): E(seq[issued][0]); issued += 1
        if hooks and c in hooks:
            for _ in range(hooks[c](issued + sum(1 for e in extra_at))): extra_at.append(issued)
            E(smov(sT3, 0xffff0000))
        if seq[c][1] is None: continue
        E(waitvm(issued - 1 - c + sum(1 for e in extra_at if e > c)))
        if seq[c][1]():
            extra_at += [issued, issued]

def body_items(E, n, its, two, ni, ensure, refresh, done, ST, seg, final_flag, poll_hook, LATE, L0, L1, FOUR, sMID, offs, sPT):
    if n == 'M' and CFG.get('m3'):
        ensure(its[2], 1, 1); ST(its[0])
        stream(E, [seg(0, L0), seg(1, L1), seg(2, L0)], {4: (lambda _: (E(ab_load()), 1)[1])})
        for i in range(3): done(its[i])
        return
    E(salu('s_min_u32', sT2, sRS, sRF)); E(salu('s_cmp_lt_u32', None, its[two - 1], sT2)); E(raw(f"s_cbranch_scc0 L_{n}_sl"))
    ST(its[0])
    AB = CFG.get('abn')
    def ab_hook(_): E(ab_load()); return 1
    hooks = {(NPART + 2) * two - CFG.get('pollat', 8): poll_hook}
    if AB:
        if ni < 3: hooks = {}
        hooks[14 if LATE else 4] = ab_hook
    if LATE: hooks[CFG.get('flagat', 3) if n == 'A' else 0] = final_flag
    stream(E, [seg(0, L0), seg(1, L1)][:two], hooks)
    ST(51)
    E(raw(f"s_branch L_{n}_j"))
    E(label(f"L_{n}_sl"))
    if LATE and two == 2 and CFG.get('mid1', 1):
        E(salu('s_min_u32', sT2, sRS, sRF)); E(salu('s_cmp_lt_u32', None, its[0], sT2)); E(raw(f"s_cbranch_scc0 L_{n}_s0"))
        ST(52)
        stream(E, [seg(0, L0)], {CFG.get('flagat', 3): final_flag, 12: poll_hook}); done(its[0])
        refresh(2); ensure(its[1], 1, 1)
        stream(E, [seg(1, L1)], {11: poll_hook, 3: ab_hook} if AB else {11: poll_hook})
        E(raw(f"s_branch L_{n}_j"))
        E(label(f"L_{n}_s0"))
    if LATE: final_flag(0)
    for i in range(two):
        ensure(its[i], 1, 1)
        hk = {11: poll_hook} if (i == two - 1 and not (AB and ni < 3)) else {}
        if AB and i == two - 1: hk[4] = ab_hook
        stream(E, [seg(i, L0)], hk); done(its[i])
    E(label(f"L_{n}_j"))
    for i in range(two): done(its[i])
    if FOUR or ((CFG.get('asg') == 3 or CFG.get('bal')) and n == 'A'):
        E(salu('s_cmp_gt_u32', None, sMID, 35)); E(raw(f"s_cbranch_scc1 L_{n}_nm"))
        refresh(2)
        ensure(sMID, 1, 1); ST(sMID)
        E(offs(sMID, sXP[0]))
        stream(E, [seg(0, L1)], {13: poll_hook}); done(sMID)
        E(label(f"L_{n}_nm"))
    def warm():
        if not CFG.get('warm', 1): return
        E(valu('v_mov_b32', v(240), vLD)); E(valu('v_mov_b32', v(241), vX4)); E(valu('v_mov_b32', vLD, OOB)); E(valu('v_mov_b32', vX4, OOB))
        E(raw(f"s_call_b64 {sRET2}, L_{n}_ft"))
        E(valu('v_mov_b32', vLD, v(240))); E(valu('v_mov_b32', vX4, v(241)))
    if ni == 3:
        if CFG.get('asg') == 3:
            E(salu('s_cmp_lt_u32', None, its[2], 36)); E(raw(f"s_cbranch_scc1 L_{n}_h3"))
            E(red_poll(True)[1]); E(waitvm(0)); E(raw(f"s_branch L_{n}_fin")); E(label(f"L_{n}_h3"))
        refresh(2, AB and CFG.get('abx', 1))
        if CFG.get('nof'):
            E(salu('s_cmp_gt_u32', None, sMD2, 35)); E(raw(f"s_cbranch_scc1 L_{n}_k1"))
            ensure(sMD2, 1, 1); E(offs(sMD2, sXP[0])); ST(sMD2)
            E(salu('s_cmp_lt_u32', None, its[2], sRS)); E(raw(f"s_cbranch_scc0 L_{n}_k0"))
            E(salu('s_cmp_lt_u32', None, its[2], sRF)); E(raw(f"s_cbranch_scc1 L_{n}_k0"))
            warm()
            stream(E, [seg(0, L1), seg(2, L0, range(NS), True, False)], {20: poll_hook.sh}); done(sMD2)
            E(raw(f"s_branch L_{n}_k2"))
            E(label(f"L_{n}_k0"))
            stream(E, [seg(0, L1)], {11: poll_hook}); done(sMD2)
            refresh(2)
            E(label(f"L_{n}_k1"))
        ensure(its[2], 1, 0); ST(its[2])
        E(salu('s_cmp_lt_u32', None, its[2], sRF)); E(raw(f"s_cbranch_scc1 L_{n}_f3"))
        if CFG.get('rep') and n == 'A':
            warm()
            stream(E, [seg(2, L0, range(NS), True, False)], {4: poll_hook.sh})
            E(label(f"L_{n}_k2"))
            E(salu('s_cmp_eq_u32', None, sWAVE, 0)); E(raw(f"s_cbranch_scc0 L_{n}_w2"))
            E(waitvm(0))
            E(raw(f"v_cmp_ne_u32 vcc, 0, {vP}", 'valu', wr=['vcc'], rd=[vP])); E(nop(1))
            E(raw(f"s_lshr_b64 {sAB}, vcc, {NPART + 1}", 'salu', wr=[sAB], rd=['vcc'])); E(salu('s_and_b32', sAB[1], sAB[1], 15))
            E(salu('s_or_b32', sT2, sAB[0], sAB[1])); E(csel(sRS, 1, 0))
            E(shr(sC, its[2], 2)); E(mul(sI, sROLE, NREP * 128)); E(add(sI, sI, sPB)); E(add(sI, sI, 2048)); E(add(sSP, sI, NREP * 128))
            E(label(f"L_{n}_w0"))
            E(bload('buffer_load_dword', vP, vL5, sWS, sI, flags='sc1')); E(waitvm(0))
            E(raw(f"v_cmp_ge_u32 vcc, {sC}, {vP}", 'valu', wr=['vcc'], rd=[vP, sC])); E(nop(1))
            E(raw(f"s_and_b32 {sT2}, vcc_lo, {hex((1 << NPART) - (1 << NS))}", 'salu', wr=[sT2], rd=['vcc'])); E(csel(sRF, 0, 36))
            E(raw(f"s_cbranch_scc0 L_{n}_w1"))
            E(add(sI, sI, 128)); E(salu('s_cmp_lt_u32', None, sI, sSP)); E(raw(f"s_cbranch_scc0 L_{n}_w1"))
            E(raw(f"s_sleep {CFG.get('rsleep', 6)}")); E(raw(f"s_branch L_{n}_w0"))
            E(label(f"L_{n}_w1")); E(red_pub(sPAR))
            E(label(f"L_{n}_w2")); E(barrier()); E(red_get(sPAR)); E(salu('s_xor_b32', sPAR, sPAR, 12))
            E(smov(sMID, sRS))
            ensure(its[2], 0, 1); ST(50)
            E(raw(f"s_call_b64 {sRET2}, L_{n}_ft")); done(its[2])
            E(salu('s_cmp_eq_u32', None, sMID, 0)); E(raw(f"s_cbranch_scc1 L_{n}_exit")); E(raw(f"s_branch L_{n}_fb"))
            E(label(f"L_{n}_ft"))
            stream(E, [seg(2, L0, range(NS, NPART), False, True)])
            E(raw(f"s_setpc_b64 {sRET2}"))
        elif CFG.get('pw') and n == 'A':
            E(salu('s_cmp_eq_u32', None, sMD2, 0)); E(raw(f"s_cbranch_scc0 L_{n}_old"))
            warm()
            vQ, vZ = v(242), v(243)
            E(valu('v_min_u32', vQ, NPART * 16, vLANE16)); E(valu('v_lshrrev_b32', vQ, 2, vQ))
            E(valu('v_mov_b32', vZ, OOB)); E(smov(sT2, 4 * NPART)); E(raw(f"v_writelane_b32 {vZ}, {sT2}, 0", 'valu', wr=[vZ], rd=[sT2, vZ]))
            def drop_hook(_): E(bstore('buffer_store_dword', vZ, vZ, sWS, sPV, flags='sc1')); return 1
            stream(E, [seg(2, L0, range(NS), True, False)], {5: drop_hook})
            E(shr(sC, its[2], 2)); E(smov(sSP, 0))
            E(label(f"L_{n}_pw0"))
            E(bload('buffer_load_dword', vP, vQ, sWS, sPV, flags='sc1'))
            E(salu('s_and_b32', sT2, sSP, 3)); E(salu('s_cmp_eq_u32', None, sT2, sWAVE)); E(raw(f"s_cbranch_scc0 L_{n}_pw1"))
            E(bstore('buffer_store_dword', vZ, vZ, sWS, sPV, flags='sc1')); E(waitvm(1)); E(raw(f"s_branch L_{n}_pw2"))
            E(label(f"L_{n}_pw1")); E(waitvm(0))
            E(label(f"L_{n}_pw2"))
            E(raw(f"v_cmp_ge_u32 vcc, {sC}, {vP}", 'valu', wr=['vcc'], rd=[vP, sC])); E(nop(1))
            E(raw(f"s_and_b32 {sT2}, vcc_lo, {hex((1 << NPART) - (1 << NS))}", 'salu', wr=[sT2], rd=['vcc'])); E(raw(f"s_cbranch_scc0 L_{n}_pw3"))
            E(add(sSP, sSP, 1)); E(salu('s_cmp_gt_u32', None, sSP, 4 * CFG.get('spin', 4000))); E(raw(f"s_cbranch_scc1 L_{n}_pw4"))
            E(raw(f"s_sleep {CFG.get('pwsleep', 2)}")); E(raw(f"s_branch L_{n}_pw0"))
            E(label(f"L_{n}_pw4"))
            E(valu('v_lshlrev_b32', vO, 4, vLANE16)); E(valu('v_mov_b32', vIT, OOB)); E(valu('v_mov_b32', vA, 1))
            E(raw(f"v_cmp_gt_u32 vcc, 0x100, {vLANE16}", 'valu', wr=['vcc'], rd=[vLANE16])); E(valu('v_cndmask_b32', vO, vIT, vO, 'vcc'))
            E(raw(f"s_lshl2_add_u32 {sT2}, {its[2]}, {sPB}", 'salu', wr=[sT2], rd=[its[2], sPB])); E(add(sT2, sT2, ABN))
            E(bstore('buffer_store_dword', vA, vO, sWS, sT2, flags='sc1')); E(waitvm(0))
            E(bstore('buffer_store_dword', vZ, vZ, sWS, sPV, flags='sc1')); E(waitvm(0))
            E(bload('buffer_load_dword', vP, vQ, sWS, sPV, flags='sc1')); E(waitvm(0))
            E(raw(f"v_cmp_ge_u32 vcc, {sC}, {vP}", 'valu', wr=['vcc'], rd=[vP, sC])); E(nop(1))
            E(raw(f"s_and_b32 {sT2}, vcc_lo, {hex((1 << NPART) - (1 << NS))}", 'salu', wr=[sT2], rd=['vcc'])); E(raw(f"s_cbranch_scc1 L_{n}_exit"))
            E(label(f"L_{n}_pw3")); ST(50)
            E(raw(f"s_call_b64 {sRET2}, L_{n}_ft")); E(raw(f"s_branch L_{n}_exit"))
            E(label(f"L_{n}_ft"))
            stream(E, [seg(2, L0, range(NS, NPART), False, True)])
            E(raw(f"s_setpc_b64 {sRET2}"))
            E(label(f"L_{n}_old"))
            stream(E, [seg(2, L0, range(NS), True, False)])
            ensure(its[2], 0, 1)
            E(raw(f"s_call_b64 {sRET2}, L_{n}_ft")); E(raw(f"s_branch L_{n}_f4"))
        else:
            stream(E, [seg(2, L0, range(NS), True, False)], {6: poll_hook})
            refresh(0)
            ensure(its[2], 0, 1); ST(50)
            stream(E, [seg(2, L0, range(NS, NPART), False, True)], {0: poll_hook.sh} if not AB else None)
            E(raw(f"s_branch L_{n}_f4"))
        E(label(f"L_{n}_f3"))
        stream(E, [seg(2, L0)], {11: poll_hook.sh} if not AB else None)
        E(label(f"L_{n}_f4"))
        done(its[2])
        if AB and CFG.get('abx', 1):
            E(salu('s_cmp_eq_u32', None, sMD2, 0)); E(raw(f"s_cbranch_scc1 L_{n}_exit")); E(raw(f"s_branch L_{n}_fb"))


def reducer(kind):
    p = Prog(); E = p.emit; n = kind; FL = CFG.get('fflags', 'sc1')
    PRIV[0] = (kind == 'A')
    def ST(code):
        if CFG['stamps'] != 2: return
        E(raw(f"s_memtime {sSTAMP}", wr=[sSTAMP])); E(raw("s_waitcnt lgkmcnt(0)")); E(salu('s_sub_u32', s(98), s(98), s(100)))
        E(shl(s(98), s(98), 6)); E(salu('s_or_b32', s(98), s(98), code))
        E(add(s(97), s(97), 16)); E(salu('s_min_u32', s(97), s(97), 11 * 16))
        E(raw(f"v_cmp_eq_u32 vcc, s97, {vLANE16}", 'valu', wr=['vcc'], rd=[s(97), vLANE16])); E(valu('v_mov_b32', v(27), s(98)))
        E(valu('v_cndmask_b32', vSTAMP, vSTAMP, v(27), 'vcc'))
    def offs(item, sX_):
        return [salu('s_and_b32', sT2, item, 3), shr(sC, item, 2), shl(sT3, sRB, 2), add(sT2, sT2, sT3), mul(sPART, sT2, PWAVE), add(sX_, sPART, sXW),
                shl(sT3, sC, 12), add(sT3, sT3, sPWv), add(sPART, sPART, sT3), shl(sT3, sC, 7), add(sX_, sX_, sT3)]
    k_ = [0]
    def ensure(item, s_, f_):
        L = f"L_{n}_en{k_[0]}"; k_[0] += 1
        if s_ and f_: E(salu('s_min_u32', sT2, sRS, sRF)); r = sT2
        else: r = sRS if s_ else sRF
        E(salu('s_cmp_lt_u32', None, item, r)); E(raw(f"s_cbranch_scc1 {L}"))
        E(smov(sI, item)); E(smov(sC, (1 if s_ else 0) | (2 if f_ else 0)))
        E(raw(f"s_call_b64 {sRET2}, L_{n}_sync"))
        E(salu('s_cmp_eq_u32', None, sTO, 0)); E(raw(f"s_cbranch_scc0 L_{n}_fb"))
        E(label(L))
    def done(item): E(raw(f"s_bitset0_b64 {sRM}, {item}", 'salu', wr=[sRM], rd=[sRM, item]))
    E(label(f"L_{n}_red"))
    if CFG.get('rdelay'):
        if n == 'A': (E(waitvm(0)), E(barrier()), E(valu('v_mov_b32', vPRG, 9)), E(bstore('buffer_store_dword', vPRG, vCT, sWS, 0, flags='sc1')))
        for _ in range({'A': 30, 'M': 24, 'F': 14}[n]): E(raw("s_sleep 16"))
    E(red_get(LDSC))
    if CFG.get('rdelay'): E(smov(sRS, 36)); E(smov(sRF, 36))
    E(valu('v_lshrrev_b32', vO, 4, vLANE16)); E(valu('v_and_b32', vXO, 7, vO)); E(valu('v_lshlrev_b32', vLD, 4, vXO))
    E(smov(sT2, 1152)); E(valu('v_mul_u32_u24', vXO, sT2, vXO))
    E(valu('v_lshrrev_b32', vA, 3, vO)); E(valu('v_lshl_add_u32', vX4, vA, 4, vXO))
    E(valu('v_bfe_u32', vA, vO, 3, 2)); E(valu('v_lshl_add_u32', vXO, vA, 3, vXO)); E(valu('v_lshl_add_u32', vLD, vA, 8, vLD))
    E(valu('v_lshrrev_b32', vA, 5, vO)); E(valu('v_lshl_add_u32', vXO, vA, 6, vXO)); E(valu('v_lshl_add_u32', vLD, vA, 11, vLD))
    E(mul(sXW, sWAVE, 8 * 1152)); E(shr(sPWv, sWAVE, 1)); E(shl(sPWv, sPWv, 10)); E(salu('s_and_b32', sT2, sWAVE, 1)); E(shl(sT2, sT2, 7)); E(add(sPWv, sPWv, sT2))
    L0, L1 = 72, 76 + 4 * NPART
    E(smov(sD0, 0x3f80)); E(smov(sD1, 0x3f800000))
    E(raw(f"s_mov_b64 {sRM}, 0", 'salu', wr=[sRM]))
    FOUR = CFG.get('four')
    sMID = s(48 + 0) if False else s(83)
    def nib(dst, tab, base):
        E(smov(sCD[0], sum(tab[i] << (4 * i) for i in range(8)))); E(smov(sCD[1], tab[8] | (tab[9] << 4)))
        E(shl(sT2, sROLE, 2)); E(s64('s_lshr_b64', sCD, sCD, sT2)); E(salu('s_and_b32', dst, sCD[0], 15))
        E(salu('s_cmp_eq_u32', None, dst, 15)); E(csel(dst, 63 - base, dst)); E(add(dst, dst, base))
    if n == 'A':
        E(smov(sIT[0], sROLE)); E(add(sIT[1], sROLE, NA))
        if CFG.get('bal'):
            nib(sIT[1], [x - 10 for x in BAL2], 10); nib(sIT[2], [x - 21 for x in BAL3], 21); nib(sMID, [min(x - 16, 15) for x in BALM], 16)
            E(raw(f"s_bitset1_b64 {sRM}, {sMID}", 'salu', wr=[sRM], rd=[sRM, sMID]))
        elif CFG.get('asg') == 2: E(add(sIT[2], sROLE, 16))
        elif CFG.get('asg') == 3:
            E(add(sMID, sROLE, 16)); E(raw(f"s_bitset1_b64 {sRM}, {sMID}", 'salu', wr=[sRM], rd=[sRM, sMID]))
            E(salu('s_and_b32', sT2, sROLE, 1)); E(shr(sIT[2], sROLE, 1)); E(add(sIT[2], sIT[2], 24)); E(salu('s_cmp_eq_u32', None, sT2, 0)); E(csel(sIT[2], sIT[2], 63))
        elif CFG.get('l844'): E(add(sIT[2], sROLE, 28))
        elif FOUR:
            nib(sMID, [0, 15, 1, 2, 15, 3, 4, 5, 6, 7], 20); nib(sIT[2], [0, 1, 15, 2, 3, 15, 4, 5, 6, 7], 28)
            E(raw(f"s_bitset1_b64 {sRM}, {sMID}", 'salu', wr=[sRM], rd=[sRM, sMID]))
        else:
            nib(sIT[2], [0, 1, 15, 2, 3, 15, 4, 5, 6, 7], 28)
            E(salu('s_cmp_eq_u32', None, sROLE, 2)); E(csel(sIT[2], 23 if CFG.get('m3') else 22, sIT[2])); E(salu('s_cmp_eq_u32', None, sROLE, 5)); E(csel(sIT[2], 24 if CFG.get('m3') else 21, sIT[2]))
            if CFG.get('nof'):
                nib(sMD2, CFG['nof'], 23)
                E(raw(f"s_bitset1_b64 {sRM}, {sMD2}", 'salu', wr=[sRM], rd=[sRM, sMD2]))
        its = sIT
    elif CFG.get('asg') == 2:
        if n == 'M': E(add(sIT[0], sROLE, 16)); E(add(sIT[1], sROLE, 20)); its = sIT[:2]
        else: E(add(sIT[0], sROLE, 20)); its = sIT[:1]
    elif CFG.get('asg') == 3:
        E(add(sIT[0], sROLE, 20)); its = sIT[:1]
    elif CFG.get('l844'):
        if n == 'M': E(add(sIT[0], sROLE, 8)); E(add(sIT[1], sROLE, 12)); its = sIT[:2]
        else: E(add(sIT[0], sROLE, 12)); its = sIT[:1]
    elif n == 'M' and CFG.get('m3'): E(smov(sIT[0], 20)); E(smov(sIT[1], 21)); E(smov(sIT[2], 22)); its = sIT
    elif n == 'M': E(smov(sIT[0], 20)); its = sIT[:1]
    else:
        E(add(sIT[0], sROLE, 12)); its = sIT[:1]
    if (FOUR and n != 'A') or (CFG.get('nof') and n == 'F'):
        its = []
        E(waitvm(0)); E(red_poll()[1]); E(waitvm(0)); E(raw(f"s_branch L_{n}_fin"))
    if (CFG.get('bal') or CFG.get('m3')) and n == 'F':
        E(salu('s_cmp_ge_u32', None, sROLE, 13)); E(raw(f"s_cbranch_scc1 L_{n}_hi"))
        E(waitvm(0)); E(ab_load() if CFG.get('abn') else red_poll()[1]); E(waitvm(0)); E(raw(f"s_branch L_{n}_fin")); E(label(f"L_{n}_hi"))
    for it in its: E(raw(f"s_bitset1_b64 {sRM}, {it}", 'salu', wr=[sRM], rd=[sRM, it]))
    E(salu('s_and_b32', sRM[1], sRM[1], 15))
    def refresh(wait, ab=False):
        L = f"L_{n}_rf{k_[0]}"; k_[0] += 1
        E(salu('s_cmp_eq_u32', None, sWAVE, 0)); E(raw(f"s_cbranch_scc0 {L}"))
        E(waitvm(wait)); E(red_eval())
        if ab: E(ab_eval()); E(salu('s_or_b32', sT2, sAB[0], sAB[1])); E(csel(sTO, 1, 0))
        E(red_pub(sPAR))
        E(label(L)); E(barrier()); E(red_get(sPAR)); E(salu('s_xor_b32', sPAR, sPAR, 12))
        if ab: E(smov(sMD2, sTO)); E(smov(sTO, 0))
    ALLD = lambda L, sx: ld_part(L, range(NPART), FL) + ld_x(L, sx)
    LATE = n in CFG.get('lateflag', 'A') + CFG.get('pre', '')
    sPT = [s(47), s(67 - 2), s(70)]
    def offs2(i): return offs(its[i], sXP[i]) + ([smov(sPT[i], sPART)] if i else [])
    def final_flag(wait):
        E(waitvm(wait)); E(barrier())
        E(valu('v_mov_b32', vPRG, 9))
        if CFG.get('rep') and n in 'FM': E(bstore('buffer_store_dword', vPRG, vCR, sWS, 0, flags='sc1'))
        E(bstore('buffer_store_dword', vPRG, vCT, sWS, 0, flags='sc1'))
        return 2 if (CFG.get('rep') and n in 'FM') else 1
    def poll_hook(_): E(red_poll()[1]); return 2
    def poll_sh(_): E(red_poll(True)[1]); return 2
    poll_hook.sh = poll_sh
    seg = lambda i, L, ks=range(NPART), wx=True, fin=True: (L, sPT[i], sXP[i], ks, wx, fin)
    ni = len(its)
    for i in reversed(range(ni)): E(offs2(i))
    two = min(ni, 2)
    if ni: body_items(E, n, its, two, ni, ensure, refresh, done, ST, seg, final_flag, poll_hook, LATE, L0, L1, FOUR, sMID, offs, sPT)
    E(label(f"L_{n}_fin"))
    E(salu('s_cmp_eq_u32', None, sWAVE, 0)); E(raw(f"s_cbranch_scc0 L_{n}_b4"))
    if CFG.get('abn'): E(ab_eval())
    else:
        E(waitvm(2))
        E(raw(f"v_cmp_ne_u32 vcc, 0, {vP}", 'valu', wr=['vcc'], rd=[vP])); E(nop(1))
        E(raw(f"s_lshr_b64 {sAB}, vcc, {NPART + 1}", 'salu', wr=[sAB], rd=['vcc'])); E(salu('s_and_b32', sAB[1], sAB[1], 15))
    E(salu('s_or_b32', sT2, sAB[0], sAB[1])); E(csel(sTO, 1, 0))
    E(salu('s_cmp_ge_u32', None, sOK, 16)); E(csel(sTO, sTO, 1)); E(red_pub(sPAR))
    E(label(f"L_{n}_b4")); E(barrier()); E(red_get(sPAR)); E(salu('s_xor_b32', sPAR, sPAR, 12))
    E(salu('s_cmp_eq_u32', None, sTO, 0)); E(raw(f"s_cbranch_scc1 L_{n}_exit"))
    E(label(f"L_{n}_fb"))
    E(waitvm(0))
    E(salu('s_cmp_eq_u32', None, sWAVE, 0)); E(raw(f"s_cbranch_scc0 L_{n}_fb2"))
    if CFG.get('abn'):
        E(raw(f"s_mov_b64 {sCD}, {sRM}", 'salu', wr=[sCD], rd=[sRM])); E(valu('v_mov_b32', vA, 1))
        E(valu('v_lshlrev_b32', vO, 4, vLANE16)); E(valu('v_mov_b32', vIT, OOB))
        E(raw(f"v_cmp_gt_u32 vcc, 0x100, {vLANE16}", 'valu', wr=['vcc'], rd=[vLANE16])); E(valu('v_cndmask_b32', vO, vIT, vO, 'vcc'))
        E(label(f"L_{n}_mk"))
        E(raw(f"s_cmp_eq_u64 {sCD}, 0", 'salu', rd=[sCD])); E(raw(f"s_cbranch_scc1 L_{n}_mk1"))
        E(raw(f"s_ff1_i32_b64 {sT2}, {sCD}", 'salu', wr=[sT2], rd=[sCD])); E(raw(f"s_bitset0_b64 {sCD}, {sT2}", 'salu', wr=[sCD], rd=[sCD, sT2]))
        E(raw(f"s_lshl2_add_u32 {sT2}, {sT2}, {sPB}", 'salu', wr=[sT2], rd=[sT2, sPB])); E(add(sT2, sT2, ABN))
        E(bstore('buffer_store_dword', vA, vO, sWS, sT2, flags='sc1')); E(raw(f"s_branch L_{n}_mk"))
        E(label(f"L_{n}_mk1")); E(waitvm(0))
        E(red_poll()[0]); E(waitvm(0))
        E(valu('v_mov_b32', vO, OOB)); E(smov(sT2, 36 * 4)); E(raw(f"v_writelane_b32 {vO}, {sT2}, 1", 'valu', wr=[vO], rd=[sT2, vO]))
        E(bstore('buffer_store_dword', vA, vO, sWS, sAV_, flags='sc1'))
        E(valu('v_mov_b32', vIT, 0)); E(valu('v_mov_b32', vO, OOB)); E(raw(f"v_writelane_b32 {vO}, 0, 0", 'valu', wr=[vO], rd=[vO]))
        E(I(f"buffer_atomic_add {vIT}, {vO}, {sWS}, {sAV_} offen sc1", 'vstore', rd=vIT.regs() + vO.regs() + sWS.regs() + sAV_.regs(), units=3))
        E(waitvm(0)); E(ab_load()); E(red_poll(True)[1]); E(waitvm(0)); E(valu('v_readfirstlane_b32', sOK, vD)); E(red_eval()); E(ab_eval())
    else:
        E(s64('s_lshl_b64', sCD, sRM, NPART + 1)); E(valu('v_mov_b32', vO, OOB)); E(valu('v_mov_b32', vA, 1))
        E(valu('v_cndmask_b32', vO, vO, vL4, sCD)); E(bstore('buffer_store_dword', vA, vO, sWS, sPB, flags='sc1')); E(waitvm(0))
        E(red_poll()[0]); E(waitvm(0)); E(red_poll(True)[1]); E(waitvm(0)); E(valu('v_readfirstlane_b32', sOK, vD)); E(red_eval())
    E(salu('s_min_u32', sT2, sRS, sRF)); E(salu('s_cmp_ge_u32', None, sOK, 16)); E(csel(sT2, sT2, 0))
    E(salu('s_bfm_b64', sCD, sT2, 0, scc_w=False)); E(s64('s_or_b64', sAB, sAB, sRM)); E(s64('s_and_b64', sAB, sAB, sCD))
    E(label(f"L_{n}_fb1"))
    E(raw(f"s_ff1_i32_b64 {sRS}, {sAB}", 'salu', wr=[sRS], rd=[sAB])); E(salu('s_and_b32', sRS, sRS, 255))
    E(raw(f"s_bitset0_b64 {sAB}, {sRS}", 'salu', wr=[sAB], rd=[sAB, sRS])); E(red_pub(sPAR))
    E(label(f"L_{n}_fb2")); E(barrier()); E(red_get(sPAR)); E(salu('s_xor_b32', sPAR, sPAR, 12))
    E(salu('s_cmp_ge_u32', None, sRS, 36)); E(raw(f"s_cbranch_scc1 L_{n}_exit"))
    E(offs(sRS, sXP[0])); E(ld_part(L0, range(NPART), FL) + ld_x(L0, sXP[0])); E(waitvm(0)); proc_all(E, L0, sXP[0], 0, [])
    E(salu('s_cmp_eq_u32', None, sWAVE, 0)); E(raw(f"s_cbranch_scc1 L_{n}_fb1")); E(raw(f"s_branch L_{n}_fb2"))
    E(label(f"L_{n}_exit"))
    ST(60)
    if CFG['stamps']: E(raw(f"s_setpc_b64 {sRET}"))
    else: E(raw("s_endpgm"))
    E(label(f"L_{n}_sync"))
    E(salu('s_cmp_eq_u32', None, sWAVE, 0)); E(raw(f"s_cbranch_scc0 L_{n}_sy2"))
    E(smov(sSP, 0)); E(red_poll()[1][0])
    E(label(f"L_{n}_sy0"))
    E(salu('s_cmp_ge_u32', None, sOK, 16)); E(raw(f"s_cbranch_scc1 L_{n}_sy1"))
    E(red_poll()[0]); E(waitvm(0)); E(valu('v_readfirstlane_b32', sOK, vD))
    E(salu('s_cmp_ge_u32', None, sOK, 16)); E(raw(f"s_cbranch_scc0 L_{n}_syw"))
    E(label(f"L_{n}_sy1"))
    E(red_poll()[1][1]); E(red_poll()[1][0]); E(waitvm(1)); E(red_eval())
    E(salu('s_bitcmp1_b32', None, sC, 0)); E(csel(sT2, sRS, 36)); E(salu('s_bitcmp1_b32', None, sC, 1)); E(csel(sT3, sRF, 36))
    E(salu('s_min_u32', sT2, sT2, sT3)); E(salu('s_cmp_lt_u32', None, sI, sT2)); E(raw(f"s_cbranch_scc1 L_{n}_syp"))
    E(label(f"L_{n}_syw"))
    E(add(sSP, sSP, 1)); E(salu('s_cmp_gt_u32', None, sSP, CFG.get('spin', 4000))); E(csel(sTO, 1, 0)); E(raw(f"s_cbranch_scc1 L_{n}_syp"))
    E(raw(f"s_sleep {CFG.get('sleep', 1)}")); E(raw(f"s_branch L_{n}_sy0"))
    E(label(f"L_{n}_syp"))
    E(red_pub(sPAR))
    E(label(f"L_{n}_sy2")); E(barrier()); E(red_get(sPAR)); E(salu('s_xor_b32', sPAR, sPAR, 12))
    E(raw(f"s_setpc_b64 {sRET2}"))
    return p

def reduce_items(p, ni, sPART_, sXO_, srdP, srdX, srdO, vL16, vXO_, base, flags, mid=None):
    E = p.emit
    SA = base; FA = base + 8; T = base + 16
    Ls = [base + 24 + 72 * i for i in range(ni)]
    for k in range(NPART):
        if k: E(add(sPART_, sPART_, 16 * PART - (PWAVE if ni == 2 else 0)))
        for i in range(ni):
            if i: E(add(sPART_, sPART_, PWAVE))
            E(bload('buffer_load_dwordx4', v(Ls[i] + 4 * k, 4), vL16, srdP, sPART_, flags=flags))
    for i in range(ni):
        XR = Ls[i] + 68
        if i: E(add(sT2, sXO_, 32 * 1152))
        so = sT2 if i else sXO_
        E(bload('buffer_load_dwordx2', v(XR, 2), vXO_, srdX, so)); E(bload('buffer_load_dwordx2', v(XR + 2, 2), vXO_, srdX, so, 32))
    ex = 0
    if mid: mid(); ex = 1
    E(smov(sT3, 0xffff0000))
    for i in range(ni):
        L = Ls[i]; XR = L + 68
        for k in range(NPART):
            if i == 0: E(waitvm((NPART - 1 - k) * ni + (ni - 1) + 2 * ni + ex))
            acc = SA if k < 11 else FA
            for q in range(4):
                x = v(L + 4 * k + q)
                if k in (0, 11):
                    E(valu('v_lshlrev_b32', v(acc + 2 * q), 16, x)); E(valu('v_and_b32', v(acc + 2 * q + 1), sT3, x))
                else:
                    tp = v(T + 2 * q, 2)
                    E(valu('v_lshlrev_b32', tp[0], 16, x)); E(valu('v_and_b32', tp[1], sT3, x))
            if k not in (0, 11):
                for q in range(4): E(valu('v_pk_add_f32', v(acc + 2 * q, 2), v(acc + 2 * q, 2), v(T + 2 * q, 2)))
        for e in range(8): E(valu('v_exp_f32', v(T + e), v(FA + e)))
        for e in range(8): E(valu('v_add_f32', v(T + e), 1.0, v(T + e)))
        for e in range(8): E(valu('v_rcp_f32', v(T + e), v(T + e)))
        for e in range(8): E(valu('v_mul_f32', v(FA + e), f2u(-math.log(2.0)), v(FA + e)))
        for e in range(8): E(valu('v_mul_f32', v(FA + e), v(FA + e), v(T + e)))
        if i == 0: E(waitvm(ex if ni == 1 else 0))
        for q in range(4):
            E(valu('v_lshlrev_b32', v(T + 2 * q), 16, v(XR + q))); E(valu('v_and_b32', v(T + 2 * q + 1), sT3, v(XR + q)))
        for e in range(8): E(valu('v_fma_f32', v(T + e), v(SA + e), v(FA + e), v(T + e)))
        for q in range(4): E(valu('v_cvt_pk_bf16_f32', v(XR + q), v(T + 2 * q), v(T + 2 * q + 1)))
        if i: E(add(sXO_, sXO_, 32 * 1152))
        E(bstore('buffer_store_dwordx2', v(XR, 2), vXO_, srdO, sXO_)); E(bstore('buffer_store_dwordx2', v(XR + 2, 2), vXO_, srdO, sXO_, 32))

def build_role(kind, vm_before):
    R = Role(kind)
    CFG['shape'] = CFG.get('shapes', {}).get(kind, CFG['shape0'])
    R.ring = {'F': (216, 9), 'A': (192, 16), 'M': (200, 8)}[kind]
    if kind == 'M': R.depth = 7
    nl = CFG.get('pfl', 16)
    MS = CFG['shape'] == 'M'
    if MS:
        R.add_p1_unit, R.add_p1_half, R.epi_silu, R.epi_q = R.add_p1_unitM, R.add_p1_halfM, R.epi_siluM, R.epi_qM
    P2M = 'q16' if MS else 'pi'
    if kind == 'F' and CFG.get('l844'):
        R.ring = (208, 12); R.depth = 7
        for u in range(13): R.add_p1_unit(u, sW1, sHA, sHC, 9216, u == 0, a(16 * u, 16), R.epi_silu, last=(u == 12),
                                          inreg=[pf_run(sW2, sPF2, 832 * 1152, 10) if u >= 1 else None, pf_row('F', sW1)])
        needs = {t: [('reg', 8 * t)] for t in range(26)}
        dm = [dma_w(sW2, sFA, 0, 1152, sFC, 0), dma_w(sW2, sFA, 288 * 1152, 1152, sFC, 288 * 1152), dma_w(sW2, sFA, 576 * 1152, 1152)]
        R.add_p2([(a(0, 208), [288, 288, 256], dm, needs, sSt)], [add(x, x, 128) for x in (sFA, sFC)], pre0=lambda: set_offw(1152, P2M))
        for st in R.stages[-27:]: st.ring = (208, 12, 'restart')
    elif kind == 'M' and CFG.get('l844'):
        R.ring = (208, 8); R.depth = 7
        Q = [a(80, 32), a(112, 32)]; OA = a(144, 64)
        def mpf(u):
            if u == 0: return pf_row('M', sWQ)
            if u == 1: return lambda: pf_row_setup('M', 9216, 18, sPF1, 0) + [pf_row('M', sW1)()[1]]
            if u <= 5: return pf_row('M', sW1)
            return None
        for u in range(4): R.add_p1_unit(u, sWQ, sQA, sQC, 8192, u == 0, a(80 + 16 * u, 16), R.epi_q, key='Q', inreg=[None, mpf(u)])
        for u in range(5): R.add_p1_unit(4 + u, sW1, sHA, sHC, 9216, u == 0, a(16 * u, 16), R.epi_silu, pre=(lambda: set_offw(9216, 'S')) if u == 0 else None,
                                         last=(u == 4), key='H', inreg=[None, mpf(4 + u)])
        Ha = dict(i=0, Q=Q[0], S=Sreg, P=Preg, O=OA, LM=v(230, 8), OF=lambda kk: OA.sub(16 * kk, 8),
                  need_qk=[('acc', 80), ('acc', 96)], need_pv=[('acc', 48 + 16 * i) for i in range(4)])
        Hb = dict(i=1, Q=Q[1], S=[v(80, 16), v(96, 16)], P=[v(48, 8), v(56, 8)], O=v(160, 64), LM=v(64, 8), OF=lambda kk: OA.sub(16 * kk + 8, 8))
        R.add_pa_g([[Ha, Hb]])
        R.stages[-9].mf[-1].need.append(('acc', 48))
        R.heads = [(Ha, sPFa), (Hb, sPFa)]
        R.add_p2m(a(0, 80), [H['OF'](kk) for H in (Ha, Hb) for kk in range(4)],
                  [dma_w(sW2, sFA, 0, 1152, sFC, 0), dma_w(sWO, sOA, 0, 1152, sFC, 32 * 1152, srdC=sW2)],
                  [add(x, x, 128) for x in (sOA, sFA, sFC)], pre0=lambda: set_offw(1152, P2M))
        for st in R.stages[-18:]: st.ring = (208, 12, 'restart')
        k = pf_sched(R, 15, sK, sPFa, 131072, 16); k = pf_sched(R, k, sV, sPFa, 131072, 16)
        pf_sched(R, 17, sWO, sPFc, 256 * 1152, 36); pf_sched(R, 18, sW2, sPF2, 320 * 1152, 45)
    elif kind == 'F':
        for u in range(13): R.add_p1_unit(u, sW1, sHA, sHC, 9216, u == 0, a(16 * u, 16), R.epi_silu, last=(u == 12), inreg=[pf_run(sW2, sPF2, 832 * 1152, 10) if u >= 1 else None, pf_row('F', sW1) if CFG['pf'] >= 3 else None] if CFG['pf'] else None)
        R.add_p1_half(13, a(208, 8))
        needs = {t: [('reg', 8 * t)] for t in range(27)}
        dm = [dma_w(sW2, sFA, 0, 1152, sFC, 0), dma_w(sW2, sFA, 288 * 1152, 1152, sFC, 288 * 1152), dma_w(sW2, sFA, 576 * 1152, 1152, sFS, 0)]
        R.add_p2([(a(0, 216), [288, 288, 288], dm, needs, sSt)], [add(x, x, 128) for x in (sFA, sFC, sFS)], pre0=lambda: set_offw(1152, P2M))
        if CFG['pf']:
            pf_sched(R, 26, sW2, sPF2h, 32 * 1152, 8)
    elif kind == 'A' and CFG.get('pair'):
        OA = a(96, 64)
        Ha = dict(i=0, Q=a(0, 32), S=Sreg, P=Preg, O=OA, LM=v(230, 8), OF=lambda kk: OA.sub(16 * kk, 8),
                  need_qk=[('acc', 48), ('acc', 64)], need_pv=[('acc', 48 + 16 * i) for i in range(4)])
        Hb = dict(i=1, Q=a(32, 32), S=[v(48, 16), v(64, 16)], P=[v(80, 8), v(88, 8)], O=v(160, 64), LM=v(96, 8), OF=lambda kk: OA.sub(16 * kk + 8, 8))
        Hc = dict(i=2, Q=a(64, 32), S=Sreg, P=Preg, O=v(48, 64), LM=v(16, 8), OF=lambda kk: a(160 + 8 * kk, 8), need_pv=[('lm', 0)])
        Ha['need_qk'] += [('acc', 80)]
        pj = {1: sJQ}
        for u in range(6):
            R.add_p1_unit(u, sWQ, sQA, sQC, 8192, u == 0, a(16 * u, 16), R.epi_q, last=(u == 5), step=sJQ if u == 4 else 128,
                          inreg=[pf_run(sWO, sPFc, 384 * 1152, 11) if u >= 1 else None, pf_row('A', sWQ, pj.get(u, 128)) if CFG['pf'] >= 3 and u < 3 else None] if CFG['pf'] else None)
        R.add_pa_g([[Ha, Hb], [Hc]])
        Bf = [H['OF'](kk) for H in (Ha, Hb, Hc) for kk in range(4)]
        needs = {0: [('fin', 0), ('fin', 1)], 8: [('fin', 2)]}
        dm = [dma_w192(sWO, 0), dma_w192(sWO, 0, sOA1, sOB1)]
        R.add_p2([(Bf, [192, 192], dm, needs, sSt)], [add(x, x, 128) for x in (sOA, sOB, sOA1, sOB1)], pre0=lambda: set_offw(1152, P2M))
        R.heads = [(Ha, sPFa), (Hb, sPFa), (Hc, sPFb)]
        if CFG['pf'] >= 2:
            pf_sched(R, 10, sK, sPFa, 131072, 16); pf_sched(R, 10, sV, sPFa, 131072, 16)
            pf_sched(R, 12, sK, sPFb, 131072, 16); pf_sched(R, 12, sV, sPFb, 131072, 16)
    elif kind == 'A':
        Q = [a(32 * e, 32) for e in range(3)]; O = [a(96 + 32 * e, 32) for e in range(3)]
        for u in range(6): R.add_p1_unit(u, sWQ, sQA, sQC, 8192, u == 0, a(16 * u, 16), R.epi_q, last=(u == 5), inreg=[pf_run(sWO, sPFc, 384 * 1152, 11) if u >= 1 else None, pf_row('A', sWQ) if CFG['pf'] >= 3 and u < 5 else None] if CFG['pf'] else None)
        R.add_pa(Q, O)
        needs = {4 * e: [('fin', e)] for e in range(3)}; needs[0].append(('S', 2, 15))
        dm = [dma_w192(sWO, b * 192 * 1152) for b in range(2)]
        R.add_p2([(a(96, 96), [192, 192], dm, needs, sSt)], [add(sOA, sOA, 128), add(sOB, sOB, 128)], pre0=lambda: set_offw(1152, P2M))
        if CFG['pf']:
            if CFG['pf'] >= 2:
                pf_sched(R, 10, sK, sPFa, 131072, 16); pf_sched(R, 10, sV, sPFa, 131072, 16)
                pf_sched(R, 12, sK, sPFb, 131072, 16); pf_sched(R, 12, sV, sPFb, 131072, 16)
    else:
        Q = [a(136 + 32 * e, 32) for e in range(2)]; O = [a(72 + 32 * e, 32) for e in range(2)]
        def mpf(u):
            if u == 0: return pf_row('M', sWQ)
            if u == 1: return lambda: pf_row_setup('M', 9216, 18, sPF1, 0) + [pf_row('M', sW1)()[1]]
            if u <= 4: return pf_row('M', sW1)
            if u == 5: return lambda: [smov(sPW, sPF1h), pf_row('M', sW1)()[1]]
            return None
        for u in range(4): R.add_p1_unit(u, sWQ, sQA, sQC, 8192, u == 0, a(136 + 16 * u, 16), R.epi_q, key='Q', inreg=[None, mpf(u)] if CFG['pf'] >= 3 else None)
        for u in range(4): R.add_p1_unit(4 + u, sW1, sHA, sHC, 9216, u == 0, a(16 * u, 16), R.epi_silu, pre=(lambda: set_offw(9216, 'M' if MS else 'S')) if u == 0 else None, last=(u == 3), key='H', inreg=[None, mpf(4 + u)] if CFG['pf'] >= 3 else None)
        R.add_p1_half(8, a(64, 8))
        BO = a(72, 64)
        if CFG.get('pair'):
            Ha = dict(i=0, Q=Q[0], S=Sreg, P=Preg, O=BO, LM=v(230, 8), OF=lambda kk: BO_.sub(16 * kk, 8),
                      need_qk=[('acc', 48 + 16 * i) for i in range(3)], need_pv=[('acc', 48 + 16 * i) for i in range(4)])
            Hb = dict(i=1, Q=Q[1], S=[v(64, 16), v(48, 16)], P=[v(80, 8), v(88, 8)], O=v(160, 64), LM=v(96, 8), OF=lambda kk: BO_.sub(16 * kk + 8, 8))
            BO_ = BO
            if CFG.get('mfree', 0):
                Hb['S'] = [v(64, 16), v(238, 16)]; Ha['need_qk'] = [('acc', 64), ('acc', 80)]; Ha['need_pv'] = [('acc', 96)]
                R.ntmp = 12; R.ones = v(28, 4)
                for st_, idx in ((R.stages[-2], -1), (R.stages[-1], -1)):
                    m_ = st_.mf[idx]; f_ = m_.after
                    m_.after = (lambda G, f_=f_: (setattr(R, 'low', True), f_(G), setattr(R, 'low', False)))
            R.add_pa_g([[Ha, Hb]])
            BO = [H['OF'](kk) for H in (Ha, Hb) for kk in range(4)]
            R.heads = [(Ha, sPFa), (Hb, sPFa)]
        else: R.add_pa(Q, O)
        nf = {t: [('reg', 8 * t)] for t in range(9)}; nf[0].append(('S', 1, 15))
        R.add_p2([(a(0, 72), [288], [dma_w(sW2, sFA, 0, 1152, sFS, 0)], nf, sSt2),
                  (BO, [256], [dma_w(sWO, sOA, 0, 1152)], {0: [('fin', 0)], 4: [('fin', 1)]}, sSt)],
                 [add(x, x, 128) for x in (sOA, sFA, sFS)], pre0=lambda: set_offw(1152, P2M))
        for st in R.stages[-18:]: st.ring = (200, 14, 'restart')
        if CFG['pf']:
            if CFG['pf'] >= 2:
                k = pf_sched(R, 14, sK, sPFa, 131072, 16); k = pf_sched(R, k, sV, sPFa, 131072, 16)
            pf_sched(R, 16, sWO, sPFc, 256 * 1152, 36); pf_sched(R, 23 if not CFG.get('pair') else 17, sW2, sPF2, 256 * 1152, 36); pf_sched(R, 24 if not CFG.get('pair') else 17, sW2, sPF2h, 32 * 1152, 8)
    if CFG.get('msum') and not MS and kind in 'AM':
        st0 = [st for st in R.stages if st.name == 'PAh0s0'][0]
        m0_ = st0.mf[8]
        if not hasattr(R, 'ones'): m0_.need += [('acc', 48 + 16 * i) for i in range(4)]
        m0_.pre = lambda: R.p.emit([valu('v_mov_b32', getattr(R, 'ones', vONES)[i], 0x3f803f80) for i in range(4)])
    if CFG.get('recode') and CFG['fused']:
        names = [st.name for st in R.stages]
        nS = len(names)
        R.pf.setdefault(nS - 2, []).append(pf_code(f"L_{kind}_red", f"L_role{kind}_end", 4))
        p2 = names.index('P2c0b0')
        R.stages[p2].label = f"L_{kind}_p2"
        R.pf.setdefault(p2 - 2, []).append(pf_code(f"L_{kind}_p2", f"L_{kind}_p2+20480", 5))
        if kind in 'AM':
            pa = names.index('PAmini'); R.stages[pa].label = f"L_{kind}_pa"
            R.pf.setdefault(pa - 1, []).append(pf_code(f"L_{kind}_pa", f"L_{kind}_p2", 8))
    if CFG.get('hot') and CFG['fused'] and kind in CFG['hot']:
        names = [st.name for st in R.stages]
        last = names.index('P2c8b0'); R.stages[last].label = f"L_{kind}_c8"
        def setup():
            o = [raw(f"s_getpc_b64 {sPC}", 'salu', wr=[sPC]), label(f"L_{kind}_hp"),
                 salu('s_add_u32', sPC[0], sPC[0], f"L_{kind}_c8-L_{kind}_hp"), salu('s_addc_u32', sPC[1], sPC[1], 0, scc_r=True),
                 valu('v_bfe_u32', vPF2, vTID, 16, 5), valu('v_and_b32', vPF, 63, vTID), valu('v_min_u32', vPF, 1, vPF),
                 valu('v_lshl_add_u32', vPF, vPF2, 1, vPF), valu('v_lshlrev_b32', vPF, 7, vPF)]
            if kind == 'F': o += pf_row_setup(kind, 1152, 26, sPF2, 2 * 128)
            return o
        def rep_code():
            return [I(f"global_load_dword {vDUM}, {vPF}, {sPC}", 'vload', wr=vDUM.regs(), rd=vPF.regs() + sPC.regs(), units=3, tag='pf')]
        R.pf.setdefault(names.index('P2c1b0'), []).append(setup)
        for c in range(2, 8):
            k0 = names.index(f'P2c{c}b0')
            R.pf.setdefault(k0, []).append(rep_code)
            if kind == 'F': R.pf.setdefault(k0 + 1, []).append(pf_row(kind, sW2))
    R.slow = []
    if kind in 'AM' and CFG.get('slow', True) and CFG.get('pair'):
        P2s = [st for st in R.stages if st.name.startswith('P2c0')]
        hl = [(H['i'], H['Q'], (H['OF'], kv)) for (H, kv) in R.heads]
        if kind == 'A':
            P2s[0].mf[0].pre = slow_check(R, hl[:2], (112, 160))
            [m for m in P2s[1].mf if ('fin', 2) in m.need][0].pre = slow_check(R, hl[2:], (160, 48))
        else:
            m_ = P2s[1].mf[4 if CFG.get('l844') else 0]
            m_.need += [('fin', 0), ('fin', 1)]
            m_.pre = slow_check(R, hl, (160, 48))
    elif kind in 'AM' and CFG.get('slow', True):
        P2s = [st for st in R.stages if st.name.startswith('P2c0')]
        if kind == 'A':
            P2s[0].mf[0].need += [('fin', 1)]
            P2s[0].mf[0].pre = slow_check(R, [(0, Q[0], O[0]), (1, Q[1], O[1])], 112)
            m_ = [m for m in P2s[1].mf if ('fin', 2) in m.need][0]
            m_.pre = slow_check(R, [(2, Q[2], O[2])], 160)
        else:
            P2s[1].mf[0].need += [('fin', 1)]
            P2s[1].mf[0].pre = slow_check(R, [(0, Q[0], O[0]), (1, Q[1], O[1])], 160)
    if CFG['fused']:
        add_signals(R)
        def early0():
            it = red_setup(kind) + red_poll()[0]
            it[-1].tag = 'cnt'
            return it
        def early():
            assert R.cnt_covered()
            PRIV[0] = (kind == 'A')
            it = red_poll()[1]
            it[-1].tag = 'poll'
            return it
        def covered():
            idx = max(i for i, x in enumerate(R.p.ins) if x.tag == 'cnt'); n = 0
            for x in R.p.ins[idx + 1:]:
                if x.kind in VMEMK: n += 1
                if x.txt.startswith('s_waitcnt vmcnt(') and int(x.txt[16:-1]) <= n: return True
            return False
        R.cnt_covered = covered
        if kind == 'A' and CFG.get('l2pf'):
            nm = [st.name for st in R.stages]
            R.pf.setdefault(nm.index('P2c1b0'), []).append(l2pf_setup)
            for (cw, dlt) in CFG['l2pf']:
                kp = nm.index(f'P2c{cw}b0')
                for j in range(4): R.pf.setdefault(kp, []).append(lambda j=j: l2pf_poll()[j])
                R.stages[kp + 2].cover_tag = 'gp'
                def gate(j, dlt=dlt):
                    def f():
                        it = l2pf_issue(R, dlt)[j]
                        if j == 0:
                            it = it + [valu('v_readfirstlane_b32', sOK, vD), salu('s_cmp_ge_u32', None, sOK, 16), csel(sC, sC, 15)]
                        return it
                    return f
                for j in range(4): R.pf.setdefault(kp + 2, []).append(gate(j))
        R.pf.setdefault([st.name for st in R.stages].index('P2c1b0' if kind == 'F' else 'P2c0b1'), []).append(early0)
        if kind in CFG.get('pre', ''):
            R.pf.setdefault(len(R.stages) - 3, []).append(early)
            R.stages[-1].pre_bar = lambda: red_early(R.p, kind)
        else: R.pf.setdefault(len(R.stages) - CFG.get('pollw', 1), []).append(early)
    role_prologue(R, vm_before)
    R.run()
    if CFG['fused']:
        p = R.p
        if kind not in CFG.get('pre', ''): red_early(p, kind)
        if kind in CFG.get('pre', ''): pass
        elif kind in CFG.get('lateflag', 'A'): p.emit(barrier())
        else:
            p.emit(waitvm(0)); p.emit(barrier())
            p.emit(valu('v_mov_b32', vPRG, 9))
            if CFG.get('rep'): p.emit(bstore('buffer_store_dword', vPRG, vCR, sWS, 0, flags='sc1'))
            p.emit(bstore('buffer_store_dword', vPRG, vCT, sWS, 0, flags='sc1'))
        if CFG['stamps']: R.stamp(len(R.stages) - 1)
        p.emit(raw(f"s_call_b64 {sRET}, L_{kind}_red"))
    if CFG['stamps']:
        p = R.p
        R.stamp(len(R.stages))
        p.emit(raw("s_memrealtime s[98:99]", wr=[s(98, 2)])); p.emit(raw("s_waitcnt lgkmcnt(0)"))
        p.emit(raw(f"v_writelane_b32 {vSTAMP}, s98, 63", 'valu', wr=[vSTAMP], rd=[s(98)]))
        if CFG.get('dbgstat'):
            n = len(R.stages)
            lanes = {'F': [0, 27, n - 1, n], 'A': [0, 37, n - 1, n], 'M': [0, 34, n - 1, n]}[kind]
            slots = {'F': [1, 2, 3, 5], 'A': [10, 11, 13, 14], 'M': [15, 15, 15, 15]}[kind]
            p.emit([valu('v_mov_b32', v(4), 256), valu('v_mov_b32', v(5), 0)])
            for i, (ln, sl) in enumerate(zip(lanes, slots)):
                p.emit(raw(f"v_readlane_b32 s92, {vSTAMP}, {ln}", 'rdl', wr=[sT2], rd=[vSTAMP])); p.emit(nop(3))
                p.emit(raw(f"v_writelane_b32 v5, s92, {i}", 'valu', wr=[v(5)], rd=[sT2])); p.emit(raw(f"v_writelane_b32 v4, {4 * sl}, {i}", 'valu', wr=[v(4)]))
            p.emit(raw(f"v_writelane_b32 v5, s98, 4", 'valu', wr=[v(5)], rd=[s(98)])); p.emit(raw(f"v_writelane_b32 v4, 28, 4", 'valu', wr=[v(4)]))
            p.emit(salu('s_not_b32', sT2, s(43))); p.emit(raw(f"v_writelane_b32 v5, s92, 5", 'valu', wr=[v(5)], rd=[sT2])); p.emit(raw(f"v_writelane_b32 v4, 36, 5", 'valu', wr=[v(4)]))
            p.emit(salu('s_sub_u32', sT2, s(98), s(43))); p.emit(raw(f"v_writelane_b32 v5, s92, 6", 'valu', wr=[v(5)], rd=[sT2])); p.emit(raw(f"v_writelane_b32 v4, 24, 6", 'valu', wr=[v(4)]))
            p.emit([salu('s_cmp_eq_u32', None, sRB, 9), csel(sT2, 0, sRB), salu('s_or_b32', sT2, sT2, sWAVE), salu('s_cmp_eq_u32', None, sT2, 0), csel(sT2, 0, 256),
                    valu('v_add_u32', v(4), sT2, v(4))])
            p.emit(I(f"buffer_atomic_umax v5, v4, {sDBG}, 0 offen sc1", 'vstore', rd=vr(4, 2) + sDBG.regs(), units=3))
        p.emit([shl(sT2, s(2), 2), add(sT2, sT2, sWAVE), shl(sT2, sT2, 8), add(sT2, sT2, STAMP_OFF),
                valu('v_lshrrev_b32', v(42), 2, vLANE16), bstore('buffer_store_dword', vSTAMP, v(42), sWS, sT2)])
    R.p.emit(raw("s_endpgm"))
    return R

def fold(ins, name):
    idx = [i for i, x in enumerate(ins) if x.tag == 'mark']
    def body(a_, b_): return [x.txt for x in ins[a_:b_] if x.kind != 'label']
    out = []; pos = 0; k = 0; nl = 0
    while k + 1 < len(idx):
        b0 = body(idx[k], idx[k + 1]); n = 1
        while k + n + 1 < len(idx) and body(idx[k + n], idx[k + n + 1]) == b0: n += 1
        if n >= 2:
            out += ins[pos:idx[k]]
            L = f"L_{name}_loop{nl}"; nl += 1
            out.append(smov(sLC, n)); out.append(I(".p2align 3", 'label')); out.append(label(L))
            out += ins[idx[k]:idx[k + 1]]
            out += [salu('s_sub_u32', sLC, sLC, 1), salu('s_cmp_lg_u32', None, sLC, 0), raw(f"s_cbranch_scc1 {L}")]
            pos = idx[k + n]; k += n
        else: k += 1
    out += ins[pos:]
    return out

def fold_regions(ins, name):
    regs = []; i = 0
    beg = None
    for i, x in enumerate(ins):
        if isinstance(x.tag, tuple) and x.tag and x.tag[0] == 'region':
            if x.tag[1] == 'begin': beg = (i, x.tag[2])
            elif beg: regs.append((beg[0], i, beg[1])); beg = None
    groups = {}
    for (a_, b_, key) in regs:
        groups.setdefault(tuple(x.txt for x in ins[a_:b_] if x.kind != 'label'), []).append((a_, b_))
    out = []; subs = []; repl = {}
    n = 0
    for body, lst in groups.items():
        if len(lst) >= 2:
            L = f"L_{name}_sub{n}"; n += 1
            a_, b_ = lst[0]
            subs += [I(".p2align 6", 'label'), label(L)] + ins[a_:b_] + [raw(f"s_setpc_b64 {sRET}")]
            for (a_, b_) in lst: repl[a_] = (b_, L)
    i = 0
    while i < len(ins):
        if i in repl:
            b_, L = repl[i]; out.append(raw(f"s_call_b64 {sRET}, {L}")); i = b_
        else:
            out.append(ins[i]); i += 1
    print(f"  regions: {[len(l) for l in groups.values()]}", file=sys.stderr)
    return out + subs

def reduce_body(p, sPART, sXO, srdP, srdX, srdO, vL16, vXO, base, flags, mid=None):
    E = p.emit
    L = base; XR = base + 68; SA = base + 72; FA = base + 80; T = base + 88
    for k in range(NPART):
        if k: E(add(sPART, sPART, 16 * PART))
        E(bload('buffer_load_dwordx4', v(L + 4 * k, 4), vL16, srdP, sPART, flags=flags))
    E(bload('buffer_load_dwordx2', v(XR, 2), vXO, srdX, sXO)); E(bload('buffer_load_dwordx2', v(XR + 2, 2), vXO, srdX, sXO, 32))
    ex = 0
    if mid: E(mid()); ex = 1
    E(smov(sT3, 0xffff0000))
    for k in range(NPART):
        E(waitvm(NPART + 1 - k + ex))
        acc = SA if k < 11 else FA
        for q in range(4):
            x = v(L + 4 * k + q)
            if k in (0, 11):
                E(valu('v_lshlrev_b32', v(acc + 2 * q), 16, x)); E(valu('v_and_b32', v(acc + 2 * q + 1), sT3, x))
            else:
                tp = v(T + 2 * q, 2)
                E(valu('v_lshlrev_b32', tp[0], 16, x)); E(valu('v_and_b32', tp[1], sT3, x))
        if k not in (0, 11):
            for q in range(4): E(valu('v_pk_add_f32', v(acc + 2 * q, 2), v(acc + 2 * q, 2), v(T + 2 * q, 2)))
    for e in range(8): E(valu('v_exp_f32', v(T + e), v(FA + e)))
    for e in range(8): E(valu('v_add_f32', v(T + e), 1.0, v(T + e)))
    for e in range(8): E(valu('v_rcp_f32', v(T + e), v(T + e)))
    for e in range(8): E(valu('v_mul_f32', v(FA + e), f2u(-math.log(2.0)), v(FA + e)))
    for e in range(8): E(valu('v_mul_f32', v(FA + e), v(FA + e), v(T + e)))
    E(waitvm(ex))
    for q in range(4):
        E(valu('v_lshlrev_b32', v(T + 2 * q), 16, v(XR + q))); E(valu('v_and_b32', v(T + 2 * q + 1), sT3, v(XR + q)))
    for e in range(8): E(valu('v_fma_f32', v(T + e), v(SA + e), v(FA + e), v(T + e)))
    for q in range(4): E(valu('v_cvt_pk_bf16_f32', v(XR + q), v(T + 2 * q), v(T + 2 * q + 1)))
    E(bstore('buffer_store_dwordx2', v(XR, 2), vXO, srdO, sXO)); E(bstore('buffer_store_dwordx2', v(XR + 2, 2), vXO, srdO, sXO, 32))

def reduce_kernel():
    p = Prog(); E = p.emit
    E(salu('s_cmp_ge_u32', None, s(2), 576)); E(raw("s_cbranch_scc0 L_rgo")); E(raw("s_endpgm")); E(label("L_rgo"))
    E(raw("s_load_dwordx2 s[4:5], s[0:1], 0", wr=[s(4, 2)])); E(raw("s_load_dwordx2 s[6:7], s[0:1], 64", wr=[s(6, 2)])); E(raw("s_load_dwordx2 s[8:9], s[0:1], 80", wr=[s(8, 2)]))
    E(valu('v_lshrrev_b32', v(1), 6, v(0))); E(valu('v_readfirstlane_b32', s(10), v(1)))
    E(shl(s(11), s(2), 2)); E(add(s(11), s(11), s(10)))
    E(salu('s_mul_hi_u32', s(24), s(11), -(-(1 << 32) // 36), scc_w=False))
    E(mul(s(25), s(24), 36)); E(salu('s_sub_u32', s(25), s(11), s(25)))
    E(shl(s(26), s(11), 10))
    E(valu('v_and_b32', v(0), 63, v(0))); E(valu('v_lshlrev_b32', v(1), 4, v(0)))
    E(valu('v_and_b32', v(2), 15, v(0))); E(smov(s(27), 1152)); E(valu('v_mul_u32_u24', v(2), s(27), v(2)))
    E(valu('v_lshrrev_b32', v(3), 4, v(0))); E(valu('v_lshl_add_u32', v(2), v(3), 3, v(2)))
    E(mul(s(28), s(24), 32 * 1152)); E(salu('s_and_b32', s(29), s(25), 1)); E(mul(s(29), s(29), 16 * 1152)); E(add(s(28), s(28), s(29)))
    E(shr(s(25), s(25), 1)); E(shl(s(25), s(25), 6)); E(add(s(28), s(28), s(25)))
    E(raw("s_waitcnt lgkmcnt(0)"))
    srd(p, s(12, 4), 8, WSP_BYTES); srd(p, s(16, 4), 4, 2359296); srd(p, s(20, 4), 6, 2359296)
    reduce_body(p, s(26), s(28), s(12, 4), s(16, 4), s(20, 4), v(1), v(2), 4, CFG.get('rflags', ''))
    E(raw("s_endpgm"))
    return p

def text(ins): return "\n".join((i.txt if i.kind == 'label' else " " + i.txt) for i in ins) + "\n"

def compress(t):
    t = re.sub(r" v_mfma_f32_16x16x32_bf16 v\[(\d+):\d+\], a\[(\d+):\d+\], v\[(\d+):\d+\], v\[\1:\d+\]", r" MV \1,\2,\3", t)
    t = re.sub(r" v_mfma_f32_16x16x32_bf16 v\[(\d+):\d+\], a\[(\d+):\d+\], a\[(\d+):\d+\], v\[\1:\d+\]", r" MA \1,\2,\3", t)
    t = re.sub(r" v_mfma_f32_32x32x16_bf16 v\[(\d+):\d+\], a\[(\d+):\d+\], v\[(\d+):\d+\], v\[\1:\d+\]", r" NV \1,\2,\3", t)
    t = re.sub(r" v_mfma_f32_32x32x16_bf16 v\[(\d+):\d+\], a\[(\d+):\d+\], a\[(\d+):\d+\], v\[\1:\d+\]", r" NA \1,\2,\3", t)
    t = re.sub(r" v_mfma_f32_16x16x32_bf16 a\[(\d+):\d+\], a\[(\d+):\d+\], v\[(\d+):\d+\], a\[\1:\d+\]", r" MC \1,\2,\3", t)
    t = re.sub(r" ds_read_b64_tr_b16 a\[(\d+):\d+\], v(\d+) offset:(\d+)", r" RT \1,\2,\3", t)
    t = re.sub(r" ds_read_b128 a\[(\d+):\d+\], v(\d+) offset:(\d+)", r" RB \1,\2,\3", t)
    t = re.sub(r" v_cvt_pk_bf16_f32 v(\d+), v(\d+), v(\d+)", r" CV \1,\2,\3", t)
    t = re.sub(r" v_accvgpr_write_b32 a(\d+), v(\d+)", r" AW \1,\2", t)
    t = re.sub(r" v_exp_f32 v(\d+), v(\d+)", r" EX \1,\2", t)
    t = re.sub(r" v_add_f32 v(\d+), v(\d+), v(\d+)", r" AD \1,\2,\3", t)
    t = re.sub(r" v_mul_f32 v(\d+), v(\d+), v(\d+)", r" ML \1,\2,\3", t)
    t = re.sub(r" s_waitcnt lgkmcnt\((\d+)\)", r" WL \1", t)
    mac = r""".macro MC d,a,b
 v_mfma_f32_16x16x32_bf16 a[\d:\d+3], a[\a:\a+3], v[\b:\b+3], a[\d:\d+3]
.endm
.macro NV d,a,b
 v_mfma_f32_32x32x16_bf16 v[\d:\d+15], a[\a:\a+3], v[\b:\b+3], v[\d:\d+15]
.endm
.macro NA d,a,b
 v_mfma_f32_32x32x16_bf16 v[\d:\d+15], a[\a:\a+3], a[\b:\b+3], v[\d:\d+15]
.endm
.macro MV d,a,b
 v_mfma_f32_16x16x32_bf16 v[\d:\d+3], a[\a:\a+3], v[\b:\b+3], v[\d:\d+3]
.endm
.macro MA d,a,b
 v_mfma_f32_16x16x32_bf16 v[\d:\d+3], a[\a:\a+3], a[\b:\b+3], v[\d:\d+3]
.endm
.macro RT d,a,o
 ds_read_b64_tr_b16 a[\d:\d+1], v\a offset:\o
.endm
.macro RB d,a,o
 ds_read_b128 a[\d:\d+3], v\a offset:\o
.endm
.macro CV d,a,b
 v_cvt_pk_bf16_f32 v\d, v\a, v\b
.endm
.macro AW d,a
 v_accvgpr_write_b32 a\d, v\a
.endm
.macro EX d,a
 v_exp_f32 v\d, v\a
.endm
.macro AD d,a,b
 v_add_f32 v\d, v\a, v\b
.endm
.macro ML d,a,b
 v_mul_f32 v\d, v\a, v\b
.endm
.macro WL n
 s_waitcnt lgkmcnt(\n)
.endm
"""
    return mac, t

HDR = open('recurrent_scan__sliding_block_cached__dense_activation_silu__prompt.s.ref').read().split('; Override launch')[0]
DOC = """; Generated by my own scheduler scripts (hand-designed instruction streams, hazards padded by the script).
; registers as MFMA B operands (transposed formulation), weights / K / V stream through a 4-slot LDS ring (LDS-DMA).
;   role A (10): layernorm, Q projection, attention for 3 heads (one GQA pair shares K/V fragments), partial of o@wo
; The bf16 partials go to d_ws with write-through stores; progress words (reset per launch, guarded by a counter in
"""
def kd(name, vgpr, acc, sgpr=102):
    return f""".amdhsa_kernel {name}
  .amdhsa_next_free_vgpr {vgpr}
  .amdhsa_next_free_sgpr {sgpr}
  .amdhsa_accum_offset {acc}
  .amdhsa_group_segment_fixed_size 0
  .amdhsa_kernarg_size 88
  .amdhsa_user_sgpr_count 2
  .amdhsa_user_sgpr_kernarg_segment_ptr 1
  .amdhsa_system_sgpr_workgroup_id_x 1
.end_amdhsa_kernel
"""
def est_cycles(ins):
    tot = 0; cur = None; n = 0
    for i in ins:
        if i.kind == 'label': continue
        if i.kind == 'mfma':
            if cur is not None: tot += max(cap, cur)
            cur = 2; n += 1; cap = 8 if len(i.wr) == 16 else 4
        elif cur is not None:
            if i.txt.startswith('s_waitcnt lgkm') and cap == 4: continue
            cur += i.units if not i.txt.startswith('s_nop') else (int(i.txt.split()[1]) + 1) * 0.5
    return tot * 4

def main(out, **kw):
    CFG.update(kw)
    set_layout(CFG.get('l844'))
    if CFG.get('tab'):
        global ROLE_TAB
        ROLE_TAB = CFG['tab']
    CFG['shape0'] = CFG['shape']
    cp = common_prologue()
    if CFG.get('entry', 0):
        if CFG.get('entry', 1) == 1:
            k = next(i for i, x in enumerate(cp.ins) if x.txt == 's_waitcnt lgkmcnt(0)')
            tail = cp.ins[k:]; vmx = list(cp.vm); cp.ins = cp.ins[:k]; cp.vm = []
            common_prologue2(cp); cp.ins += tail; cp.vm += vmx
        else: common_prologue2(cp)
        common_prologue3(cp)
    body = text(cp.ins) + dispatch_text()
    for kind in 'FAM':
        R = build_role(kind, cp.vm)
        ins = fold_regions(fold(R.p.ins, kind), kind) if CFG['fold'] else R.p.ins
        nm = sum(1 for i in R.p.ins if i.kind == 'mfma')
        print(f"role {kind}: stages {len(R.stages)} mfma {nm} instrs {len([i for i in ins if i.kind!='label'])} (unrolled {len([i for i in R.p.ins if i.kind!='label'])}) pad {R.p.npad} forced {R.forced} est {est_cycles(R.p.ins)} ideal {sum(32 if len(i.wr) == 16 else 16 for i in R.p.ins if i.kind == 'mfma')}", file=sys.stderr)
        if CFG.get('abl_pair') and kind in 'AM':
            out_ = []; on = False
            for x in ins:
                if x.kind == 'label' and x.txt.startswith('; PAh'): on = x.txt.startswith('; PAh1')
                if x.kind == 'label' and x.txt.startswith('; P2'): on = False
                if on and (x.kind in ('dma', 'ds') or (x.kind == 'salu' and ('m0' in x.txt or 's70' in x.txt))): continue
                out_.append(x)
            ins = out_
        if CFG.get('abl_half'):
            out_ = []; on = False; cnt = 0
            for x in ins:
                if x.kind == 'label' and x.txt.startswith('; P'): on = x.txt.startswith(('; P1', '; P2'))
                if x.kind == 'label' and x.txt.startswith('; REGION begin'): on = True
                if on and x.kind == 'ds':
                    cnt += 1
                    if (cnt >> 1) & 1: continue
                out_.append(x)
            ins = out_
        ab = CFG.get('ablate', '')
        if ab:
            st0 = next(i for i, x in enumerate(ins) if x.txt.startswith('; P1u1b0'))
            def keep(x):
                if 'd' in ab and x.kind == 'dma': return False
                if 'r' in ab and x.kind == 'ds': return False
                if 'v' in ab and x.kind in ('trans',): return False
                if 'V' in ab and x.kind in ('trans', 'valu', 'perm') and not x.txt.startswith(('v_add_u32', 'v_xor', 'v_writelane', 'v_cmp', 'v_cnd', 'v_mov', 'v_lsh', 'v_mad', 'v_min', 'v_and', 'v_bfe', 'v_mul_u32')): return False
                if 'm' in ab and x.kind == 'mfma': return False
                return True
            ins = ins[:st0] + [x for x in ins[st0:] if keep(x)]
        for sp in R.slow: ins = ins + sp.ins
        if CFG['fused']: ins = ins + reducer(kind).ins
        body += f".p2align 6\nL_role{kind}:\n" + text(ins) + f"L_role{kind}_end:\n"
    rk = reduce_kernel()
    mac, body = compress(body)
    if CFG['fused']:
        t = HDR + "; @launch grid=(256,1,1) block=(256,1,1) lds=163840\n" + DOC
        t += '.amdgcn_target "amdgcn-amd-amdhsa--gfx950"\n' + mac + f".text\n.globl {KN}\n.p2align 8\n.type {KN},@function\n{KN}:\n" + body
        t += '.section .rodata,"a"\n.p2align 6\n' + kd(KN, 512, 256)
        open(out, 'w').write(t); print("size", len(t), file=sys.stderr); return
    t = HDR + f"; @launch kernel={KN} grid=(256,1,1) block=(256,1,1) lds=163840\n; @launch kernel={RN} grid=(576,1,1) block=(256,1,1) lds=0\n"
    t += '.amdgcn_target "amdgcn-amd-amdhsa--gfx950"\n' + mac + f".text\n.globl {KN}\n.p2align 8\n.type {KN},@function\n{KN}:\n" + body
    t += f".globl {RN}\n.p2align 8\n.type {RN},@function\n{RN}:\n" + text(rk.ins)
    t += '.section .rodata,"a"\n.p2align 6\n' + kd(KN, 512, 256) + ".p2align 6\n" + kd(RN, 104, 104, 102)
    open(out, 'w').write(t)
    print("size", len(t), file=sys.stderr)

if __name__ == "__main__":
    kw = eval("dict(" + (sys.argv[2] if len(sys.argv) > 2 else "") + ")")
    main(sys.argv[1], **kw)
```

```python
import sys, re
from s1 import *

ROLE_TAB = [0, 1, 2, 11, 3, 4, 5, 12, 6, 7, 13, 14, 8, 9, 10, 15]
vPFR = v(36)
vPRG = v(36)
PART = 4 * PWAVE
NPART = 17
NA, NM, NS = 10, 1, 11
def set_layout(new):
    global NPART, NA, NM, NS, ROLE_TAB
    if new:
        NPART, NA, NM, NS = 20, 8, 4, 12
        ROLE_TAB = [0, 1, 8, 12, 2, 3, 9, 13, 4, 5, 10, 14, 6, 7, 11, 15]
WSP_BYTES = NPART * 16 * PART
def PSTR(): return 16 * PART + (CFG.get('pskew', 0) if CFG['fused'] else 0)
sJQ, sQ0, sOA1, sOB1 = s(73), s(59), s(74), s(75)
ABN = 4096
STAMP_OFF = 0x3000000
CTRL = 0x2F00000
OOB = 0x10000000

def srd(p, dst, lo, nbytes):
    p.emit([smov(dst[0], s(lo)), salu('s_and_b32', dst[1], s(lo + 1), 0xffff), smov(dst[2], nbytes), smov(dst[3], 0x20000)])
def xdma(j):
    return [salu('s_add_u32', 'm0', s(6), j * 4096), salu('s_add_u32', sT, s(7), j * 128)] + [dma(v(16 + q), sX, sT, q * 1024, tag=('x', j)) for q in range(4)]
def mul(d, a_, b_): return salu('s_mul_i32', d, a_, b_, scc_w=False)
def add(d, a_, b_): return salu('s_add_u32', d, a_, b_)
def shl(d, a_, b_): return salu('s_lshl_b32', d, a_, b_)
def shr(d, a_, b_): return salu('s_lshr_b32', d, a_, b_)
def csel(d, a_, b_): return salu('s_cselect_b32', d, a_, b_, scc_w=False, scc_r=True)

def common_prologue():
    if CFG.get('entry', 0) == 0: return common_prologue_old()
    assert CFG['xe'] == 9 and CFG.get('map', 4) == 4
    p = Prog(); E = p.emit
    E(raw("s_load_dwordx8 s[40:47], s[0:1], 0", wr=[s(40, 8)]))
    E(salu('s_cmp_ge_u32', None, s(2), 256))
    E(raw("s_cbranch_scc0 L_go")); E(raw("s_endpgm")); E(label("L_go"))
    if CFG['stamps']:
        E(raw(f"s_memtime {sT0}", wr=[sT0])); E(raw("s_memrealtime s[96:97]", wr=[s(96, 2)]))
    E(valu('v_lshrrev_b32', v(1), 6, v(0)))
    E(salu('s_and_b32', s(3), s(2), 1)); E(shl(s(3), s(3), 3))
    E(valu('v_readfirstlane_b32', sWAVE, v(1)))
    E(shr(sRB, s(2), 5)); E(salu('s_or_b32', sRB, sRB, s(3)))
    E(valu('v_and_b32', v(0), 63, v(0)))
    E(valu('v_lshrrev_b32', vROWN, 3, v(0)))
    E(valu('v_and_b32', v(20), 7, v(0))); E(valu('v_lshrrev_b32', v(21), 4, v(0)))
    E(valu('v_xor_b32', v(22), v(20), v(21))); E(valu('v_xor_b32', v(23), 4, v(22)))
    E(salu('s_movk_i32', s(3), 1152, scc_w=False)); E(valu('v_mul_u32_u24', v(24), s(3), vROWN))
    E(valu('v_lshl_add_u32', v(16), v(22), 4, v(24))); E(valu('v_lshl_add_u32', v(17), v(23), 4, v(24)))
    E(valu('v_add_u32', v(17), 8 * 1152 - 1024, v(17)))
    E(valu('v_add_u32', v(18), 2 * (8 * 1152 - 1024), v(16))); E(valu('v_add_u32', v(19), 2 * (8 * 1152 - 1024), v(17)))
    E(mul(s(6), sWAVE, XW)); E(raw("s_lshl2_add_u32 s7, s64, s62", 'salu', wr=[s(7)], rd=[sRB, sWAVE])); E(mul(sT, s(7), 32 * 1152))
    E(smov('m0', s(6))); E(add(s(7), sT, 9 * 128))
    E(smov(sX[2], 2359296)); E(smov(sX[3], 0x20000))
    E(raw("s_waitcnt lgkmcnt(0)"))
    E(smov(sX[0], s(40))); E(salu('s_and_b32', sX[1], s(41), 0xffff))
    E(label("L_xl"))
    n0 = len(p.vm)
    for q in range(4): E(dma(v(16 + q), sX, sT, q * 1024))
    del p.vm[n0:]
    for j in range(9): p.vm += [('x', j)] * 4
    E(add(sT, sT, 128)); E(add('m0', 'm0', 4096)); E(salu('s_cmp_lt_u32', None, sT, s(7))); E(raw("s_cbranch_scc1 L_xl"))
    return p
def common_prologue2(p):
    E = p.emit
    tab = ROLE_TAB
    lo = sum(tab[i] << (4 * i) for i in range(8)); hi = sum(tab[8 + i] << (4 * i) for i in range(8))
    E(salu('s_bfe_u32', s(3), s(2), (2 << 16) | 3)); E(salu('s_bfe_u32', s(4), s(2), (1 << 16) | 1))
    E(shl(s(4), s(4), 2)); E(salu('s_or_b32', s(3), s(3), s(4))); E(shl(s(3), s(3), 2))
    E(salu('s_bitcmp1_b32', None, s(2), 2))
    E(smov(s(4), lo)); E(csel(s(4), hi, s(4)))
    E(shr(s(4), s(4), s(3))); E(salu('s_and_b32', sROLE, s(4), 15))
    E(raw(f"s_getpc_b64 {sPC}", wr=[sPC])); E(label("L_pc"))
    E(smov(s(4), "L_roleA-L_pc")); E(smov(s(5), "L_roleA_end-L_pc-4"))
    E(salu('s_cmp_ge_u32', None, sROLE, NA)); E(csel(s(4), "L_roleM-L_pc", s(4))); E(csel(s(5), "L_roleM_end-L_pc-4", s(5)))
    E(salu('s_cmp_ge_u32', None, sROLE, NA + NM)); E(csel(s(4), "L_roleF-L_pc", s(4))); E(csel(s(5), "L_roleF_end-L_pc-4", s(5)))
    n0 = CFG.get('code0', 16); NL = CFG.get('codelines', 24)
    if n0:
        E(mul(s(3), sWAVE, n0 * 128)); E(add(s(3), s(3), s(4)))
        E(valu('v_min_u32', v(2), n0 - 1, v(0))); E(valu('v_lshlrev_b32', v(2), 7, v(2))); E(valu('v_add_u32', v(2), s(3), v(2)))
        E(I(f"global_load_dword {vDUM}, v2, {sPC}", 'vload', wr=vDUM.regs(), rd=vr(2) + sPC.regs(), tag='pf'))
    E(salu('s_and_b32', s(3), sRB, 7)); E(shl(s(3), s(3), 2)); E(add(s(3), s(3), sWAVE))
    E(mul(s(3), s(3), NL * 128)); E(add(s(3), s(3), s(4)))
    E(valu('v_min_u32', v(2), NL - 1, v(0))); E(valu('v_lshlrev_b32', v(2), 7, v(2))); E(valu('v_add_u32', v(2), s(3), v(2)))
    E(valu('v_min_u32', v(3), s(5), v(2)))
    E(I(f"global_load_dword {vDUM}, v3, {sPC}", 'vload', wr=vDUM.regs(), rd=vr(3) + sPC.regs(), tag='pf'))
def common_prologue3(p):
    E = p.emit
    E(raw("s_load_dwordx2 s[48:49], s[0:1], 32", wr=[s(48, 2)]))
    E(raw("s_load_dwordx8 s[52:59], s[0:1], 48", wr=[s(52, 8)]))
    E(raw("s_load_dwordx2 s[50:51], s[0:1], 80", wr=[s(50, 2)]))
    srd(p, sK, 42, 8388608); srd(p, sV, 44, 8388608); srd(p, sWQ, 46, 4718592)
    E(mul(sW8704, sWAVE, 8 * PP)); E(mul(sWC, sWAVE, PP)); E(add(sWC, sWC, 32 * PP))
    E(shl(sW8192, sWAVE, 13)); E(shl(sWCH, sWAVE, 10)); E(add(sWCH, sWCH, 32768))
    E(mul(sW2176, sWAVE, 2 * PP)); E(mul(sW4352, sWAVE, 4 * PP)); E(add(sWA2, sW2176, 16 * PP))
    E(raw("s_waitcnt lgkmcnt(0)"))
    srd(p, sWO, 48, 4718592)
    srd(p, sW1, 52, 5308416); srd(p, sW2, 54, 5308416); srd(p, sWS, 50, 0x10000000 if (CFG['stamps'] or CFG['fused']) else WSP_BYTES)
    srd(p, sOUT, 56, 2359296); srd(p, sDBG, 58, 256)

def common_prologue_old():
    p = Prog(); E = p.emit
    E(salu('s_cmp_ge_u32', None, s(2), 256))
    E(raw("s_cbranch_scc0 L_go")); E(raw("s_endpgm")); E(label("L_go"))
    E(raw("s_load_dwordx8 s[40:47], s[0:1], 0", wr=[s(40, 8)]))
    E(raw("s_load_dwordx2 s[48:49], s[0:1], 32", wr=[s(48, 2)]))
    E(raw("s_load_dwordx8 s[52:59], s[0:1], 48", wr=[s(52, 8)]))
    E(raw("s_load_dwordx2 s[50:51], s[0:1], 80", wr=[s(50, 2)]))
    if CFG['stamps']:
        E(raw(f"s_memtime {sT0}", wr=[sT0])); E(raw("s_memrealtime s[96:97]", wr=[s(96, 2)]))
    tab = ROLE_TAB
    if CFG.get('map', 4) == 41:
        t4 = CFG.get('t41', [11, 0, 1, 2, 12, 3, 4, 5, 13, 14, 6, 7, 15, 10, 8, 9])
        lo = sum(t4[i] << (4 * i) for i in range(8)); hi = sum(t4[8 + i] << (4 * i) for i in range(8))
        E(shr(s(3), s(2), 6)); E(salu('s_bfe_u32', s(4), s(2), (1 << 16) | 1))
        E(shl(s(4), s(4), 2)); E(salu('s_or_b32', s(3), s(3), s(4))); E(shl(s(3), s(3), 2))
        E(salu('s_bitcmp1_b32', None, s(2), 2)); E(smov(s(4), lo)); E(csel(s(4), hi, s(4)))
        E(shr(s(4), s(4), s(3))); E(salu('s_and_b32', sROLE, s(4), 15))
        E(salu('s_and_b32', s(3), s(2), 1)); E(shl(s(3), s(3), 3))
        E(salu('s_bfe_u32', sRB, s(2), (3 << 16) | 3)); E(salu('s_or_b32', sRB, sRB, s(3)))
    elif CFG.get('map', 4) == 8:
        t8 = [0, 1, 2, 3, 4, 10, 11, 12, 5, 6, 7, 8, 9, 13, 14, 15]
        lo = sum(t8[i] << (4 * i) for i in range(8)); hi = sum(t8[8 + i] << (4 * i) for i in range(8))
        E(salu('s_bfe_u32', s(3), s(2), (3 << 16) | 3)); E(shl(s(3), s(3), 2))
        E(salu('s_bitcmp1_b32', None, s(2), 2)); E(smov(s(4), lo)); E(csel(s(4), hi, s(4)))
        E(shr(s(4), s(4), s(3))); E(salu('s_and_b32', sROLE, s(4), 15))
        E(salu('s_and_b32', s(3), s(2), 1)); E(shl(s(3), s(3), 3)); E(salu('s_and_b32', s(4), s(2), 2)); E(shl(s(4), s(4), 1))
        E(shr(sRB, s(2), 6)); E(salu('s_or_b32', sRB, sRB, s(3))); E(salu('s_or_b32', sRB, sRB, s(4)))
    elif CFG.get('map', 4) == 2:
        t2 = [0, 1, 2, 3, 4, 11, 5, 12, 6, 13, 7, 14, 8, 15, 9, 10]
        lo = sum(t2[i] << (4 * i) for i in range(8)); hi = sum(t2[8 + i] << (4 * i) for i in range(8))
        E(salu('s_bfe_u32', s(3), s(2), (1 << 16) | 3)); E(salu('s_and_b32', s(4), s(2), 3)); E(shl(s(4), s(4), 1)); E(salu('s_or_b32', s(3), s(3), s(4))); E(shl(s(3), s(3), 2))
        E(salu('s_bitcmp1_b32', None, s(2), 2)); E(smov(s(4), lo)); E(csel(s(4), hi, s(4)))
        E(shr(s(4), s(4), s(3))); E(salu('s_and_b32', sROLE, s(4), 15)); E(shr(sRB, s(2), 4))
    else:
        lo = sum(tab[i] << (4 * i) for i in range(8)); hi = sum(tab[8 + i] << (4 * i) for i in range(8))
        E(salu('s_bfe_u32', s(3), s(2), (2 << 16) | 3)); E(salu('s_bfe_u32', s(4), s(2), (1 << 16) | 1))
        E(shl(s(4), s(4), 2)); E(salu('s_or_b32', s(3), s(3), s(4))); E(shl(s(3), s(3), 2))
        E(salu('s_bitcmp1_b32', None, s(2), 2))
        E(smov(s(4), lo)); E(csel(s(4), hi, s(4)))
        E(shr(s(4), s(4), s(3))); E(salu('s_and_b32', sROLE, s(4), 15))
        E(salu('s_and_b32', s(3), s(2), 1)); E(shl(s(3), s(3), 3))
        E(shr(sRB, s(2), 5)); E(salu('s_or_b32', sRB, sRB, s(3)))
    E(valu('v_lshrrev_b32', v(1), 6, v(0)))
    E(valu('v_readfirstlane_b32', sWAVE, v(1)))
    E(valu('v_and_b32', v(0), 63, v(0)))
    E(valu('v_lshrrev_b32', vROWN, 3, v(0)))
    E(valu('v_and_b32', v(20), 7, v(0))); E(valu('v_lshrrev_b32', v(21), 4, v(0)))
    E(valu('v_xor_b32', v(22), v(20), v(21))); E(valu('v_xor_b32', v(23), 4, v(22)))
    E(smov(s(3), 1152)); E(valu('v_mul_u32_u24', v(24), s(3), vROWN))
    E(valu('v_lshl_add_u32', v(16), v(22), 4, v(24))); E(valu('v_lshl_add_u32', v(17), v(23), 4, v(24)))
    E(valu('v_add_u32', v(17), 8 * 1152 - 1024, v(17)))
    E(valu('v_add_u32', v(18), 2 * (8 * 1152 - 1024), v(16))); E(valu('v_add_u32', v(19), 2 * (8 * 1152 - 1024), v(17)))
    E(mul(s(6), sWAVE, XW))
    E(shl(s(7), sRB, 2)); E(add(s(7), s(7), sWAVE)); E(mul(s(7), s(7), 32 * 1152))
    E(raw(f"s_getpc_b64 {sPC}", wr=[sPC])); E(label("L_pc"))
    E(smov(s(4), "L_roleA-L_pc")); E(smov(s(5), "L_roleA_end-L_pc-4"))
    E(salu('s_cmp_ge_u32', None, sROLE, NA)); E(csel(s(4), "L_roleM-L_pc", s(4))); E(csel(s(5), "L_roleM_end-L_pc-4", s(5)))
    E(salu('s_cmp_ge_u32', None, sROLE, NA + NM)); E(csel(s(4), "L_roleF-L_pc", s(4))); E(csel(s(5), "L_roleF_end-L_pc-4", s(5)))
    def code_pf():
        NL = CFG.get('codelines', 24)
        E(salu('s_and_b32', s(3), sRB, 7)); E(shl(s(3), s(3), 2)); E(add(s(3), s(3), sWAVE))
        E(mul(s(3), s(3), NL * 128)); E(add(s(3), s(3), s(4)))
        E(valu('v_min_u32', v(2), NL - 1, v(0))); E(valu('v_lshlrev_b32', v(2), 7, v(2))); E(valu('v_add_u32', v(2), s(3), v(2)))
        E(valu('v_min_u32', v(3), s(5), v(2)))
        E(I(f"global_load_dword {vDUM}, v3, {sPC}", 'vload', wr=vDUM.regs(), rd=vr(3) + sPC.regs(), tag='pf'))
    if CFG.get('codepf', 3) >= 3:
        n0 = CFG.get('code0', 16)
        if n0:
            E(mul(s(3), sWAVE, n0 * 128)); E(add(s(3), s(3), s(4)))
            E(valu('v_min_u32', v(2), n0 - 1, v(0))); E(valu('v_lshlrev_b32', v(2), 7, v(2))); E(valu('v_add_u32', v(2), s(3), v(2)))
            E(I(f"global_load_dword {vDUM}, v2, {sPC}", 'vload', wr=vDUM.regs(), rd=vr(2) + sPC.regs(), tag='pf'))
        code_pf()
    E(raw("s_waitcnt lgkmcnt(0)"))
    srd(p, sX, 40, 2359296)
    if CFG.get('xt'):
        nch = CFG['xt']
        E(salu('s_bfe_u32', s(3), s(2), (2 << 16) | 3)); E(mul(s(3), s(3), 128 * nch)); E(add(s(3), s(3), 128 * (9 - 4 * nch))); E(add(s(3), s(3), s(7)))
        E(valu('v_and_b32', v(2), 31, v(0))); E(valu('v_mul_u32_u24', v(2), 1152, v(2)))
        if nch == 2:
            E(valu('v_lshrrev_b32', v(3), 5, v(0))); E(valu('v_lshl_add_u32', v(2), v(3), 7, v(2)))
        ld = bload('buffer_load_dword', vDUM, v(2), sX, s(3)); ld.tag = 'pf'; E(ld)
    nx0 = CFG.get('tx', 2) if CFG.get('touch') else 0
    for j in range(nx0): E(xdma(j))
    if CFG.get('touch'):
        E(salu('s_cmp_gt_u32', None, sROLE, 10))
        E(raw("s_cselect_b64 s[60:61], s[52:53], s[46:47]", 'salu', wr=[s(60, 2)], rd=[s(52, 2), s(46, 2)]))
        E(raw("s_cselect_b64 s[66:67], s[54:55], s[48:49]", 'salu', wr=[s(66, 2)], rd=[s(54, 2), s(48, 2)]))
        E(salu('s_cmp_eq_u32', None, sWAVE, 1)); E(raw("s_cselect_b64 s[60:61], s[66:67], s[60:61]", 'salu', wr=[s(60, 2)], rd=[s(66, 2), s(60, 2)]))
        E(salu('s_cmp_eq_u32', None, sWAVE, 2)); E(raw("s_cselect_b64 s[60:61], s[42:43], s[60:61]", 'salu', wr=[s(60, 2)], rd=[s(42, 2), s(60, 2)]))
        E(salu('s_cmp_eq_u32', None, sWAVE, 3)); E(raw("s_cselect_b64 s[60:61], s[44:45], s[60:61]", 'salu', wr=[s(60, 2)], rd=[s(44, 2), s(60, 2)]))
        E(smov(s(3), 73728)); E(salu('s_cmp_ge_u32', None, sWAVE, 2)); E(csel(s(3), 131072, s(3)))
        E(valu('v_mul_u32_u24', v(2), s(3), v(0)))
        E(I(f"global_load_dword {vDUM}, v2, s[60:61]", 'vload', wr=vDUM.regs(), rd=vr(2) + sr(60, 2), tag='pf'))
    for j in range(nx0, CFG['xe']): E(xdma(j))
    if CFG.get('codepf', 3) == 1: code_pf()
    if CFG.get('codepf', 3) == 2:
        E(valu('v_mov_b32', v(46), v(3))); E(raw(f"s_mov_b64 s[100:101], {sPC}", 'salu', wr=[s(100, 2)], rd=[sPC]))
    srd(p, sK, 42, 8388608); srd(p, sV, 44, 8388608); srd(p, sWQ, 46, 4718592); srd(p, sWO, 48, 4718592)
    srd(p, sW1, 52, 5308416); srd(p, sW2, 54, 5308416); srd(p, sWS, 50, 0x10000000 if (CFG['stamps'] or CFG['fused']) else WSP_BYTES)
    srd(p, sOUT, 56, 2359296); srd(p, sDBG, 58, 256)
    E(mul(sW8704, sWAVE, 8 * PP)); E(mul(sWC, sWAVE, PP)); E(add(sWC, sWC, 32 * PP))
    E(shl(sW8192, sWAVE, 13)); E(shl(sWCH, sWAVE, 10)); E(add(sWCH, sWCH, 32768))
    E(mul(sW2176, sWAVE, 2 * PP)); E(mul(sW4352, sWAVE, 4 * PP)); E(add(sWA2, sW2176, 16 * PP))
    return p

def dispatch_text():
    return f""" s_cmp_ge_u32 {sROLE}, {NA + NM}
 s_cbranch_scc1 L_roleF
 s_cmp_ge_u32 {sROLE}, {NA}
 s_getpc_b64 s[94:95]
L_pc2:
 s_cbranch_scc1 L_jM
 s_add_u32 s94, s94, L_roleA-L_pc2
 s_addc_u32 s95, s95, 0
 s_setpc_b64 s[94:95]
L_jM:
 s_add_u32 s94, s94, L_roleM-L_pc2
 s_addc_u32 s95, s95, 0
 s_setpc_b64 s[94:95]
"""

def pfload(srd_, base):
    ld = bload('buffer_load_dword', vDUM, vPF, srd_, base); ld.tag = 'pf'; return ld
def pf_lin(srd_, base_s, start, nbytes, nl=64):
    def f():
        return [valu('v_lshrrev_b32', vPF2, 16, vTID), valu('v_and_b32', vPF, 63, vTID), valu('v_min_u32', vPF, nl - 1, vPF),
                valu('v_mad_u32_u24', vPF, vPF2, nl, vPF), valu('v_lshlrev_b32', vPF, 7, vPF), valu('v_add_u32', vPF, start, vPF),
                valu('v_min_u32', vPF, nbytes - 128, vPF), pfload(srd_, base_s)]
    return f
def pf_run(srd_, base_s, nbytes, nl):
    def f():
        return [valu('v_min_u32', vPF, nbytes - 128, vPFR), valu('v_add_u32', vPFR, 64 * nl * 128, vPFR), pfload(srd_, base_s)]
    f.nl = nl
    return f
def vPFW(kind): return {'F': v(8), 'A': v(7), 'M': v(36)}[kind]
def pf_row(kind, srd_, step=128):
    def f():
        ld = bload('buffer_load_dword', vDUM, vPFW(kind), srd_, sPW); ld.tag = 'pf'
        return [add(sPW, sPW, step), ld]
    return f
def pf_row_setup(kind, pitch, nl, base, lit):
    r = vPFW(kind)
    return [valu('v_bfe_u32', vPF2, vTID, 16, 5), valu('v_and_b32', r, 63, vTID), valu('v_min_u32', r, nl - 1, r),
            valu('v_mad_u32_u24', r, vPF2, nl, r), smov(sT2, pitch), valu('v_mul_u32_u24', r, sT2, r), add(sPW, base, lit)]
def pf_code(la, lb, nl):
    def f():
        L = f"L_cp{pf_code.k}"; pf_code.k += 1
        ld = I(f"global_load_dword {vDUM}, {vPF}, {sPC}", 'vload', wr=vDUM.regs(), rd=vPF.regs() + sPC.regs(), units=3, tag='pf')
        return [raw(f"s_getpc_b64 {sPC}", 'salu', wr=[sPC]), label(L),
                salu('s_add_u32', sPC[0], sPC[0], f"{la}-{L}"), salu('s_addc_u32', sPC[1], sPC[1], 0, scc_r=True),
                valu('v_bfe_u32', vPF2, vTID, 16, 5), valu('v_and_b32', vPF, 63, vTID), valu('v_min_u32', vPF, nl - 1, vPF),
                valu('v_mad_u32_u24', vPF, vPF2, nl, vPF), valu('v_lshlrev_b32', vPF, 7, vPF), valu('v_min_u32', vPF, f"{lb}-{la}-4", vPF), ld]
    return f
pf_code.k = 0
def pf_sched(R, k0, srd_, base_s, nbytes, nl):
    per = 64 * nl * 128; k = k0
    for st in range(0, nbytes, per):
        R.pf.setdefault(k, []).append(pf_lin(srd_, base_s, st, nbytes, nl)); k += 1
    return k

def role_prologue(R, vm_before):
    p = R.p; E = p.emit; kind = R.kind
    p.vm = list(vm_before)
    MS = CFG['shape'] == 'M'
    def PS(k):
        if CFG['stamps'] == 1: R.stamp(k)
    if CFG.get('delayrole') is not None:
        for r_ in CFG['delayrole']:
            E(salu('s_cmp_eq_u32', None, sROLE, r_[0])); E(raw(f"s_cbranch_scc0 L_{kind}_nd{r_[0]}"))
            E(smov(sLC, r_[1])); E(label(f"L_{kind}_dl{r_[0]}")); E(raw("s_sleep 127")); E(salu('s_sub_u32', sLC, sLC, 1)); E(salu('s_cmp_lg_u32', None, sLC, 0)); E(raw(f"s_cbranch_scc1 L_{kind}_dl{r_[0]}"))
            E(label(f"L_{kind}_nd{r_[0]}"))
    PS(56)
    lane = v(0)
    ILV = CFG.get('ilv') and not MS
    setup = []
    if ILV:
        E(valu('v_lshrrev_b32', v(48), 4, lane)); E(valu('v_and_b32', v(49), 15, lane)); E(valu('v_bfe_u32', v(50), lane, 1, 3)); E(valu('v_xor_b32', v(50), v(50), v(48)))
        E(valu('v_lshlrev_b32', v(49), 7, v(49))); E(valu('v_add_u32', v(49), s(6), v(49)))
        E(valu('v_lshl_add_u32', v(20), v(50), 4, v(49))); E(valu('v_xor_b32', v(21), 64, v(20)))
        def E(i):
            if isinstance(i, (list, tuple)):
                for x in i: E(x)
            else: setup.append(i)
    E(shl(sT2, sRB, 2)); E(add(sT2, sT2, sWAVE)); E(shl(sT2, sT2, 16)); E(valu('v_or_b32', vTID, sT2, lane))
    if kind in 'AM' and CFG.get('pair'):
        sHP_, sHS_ = s(86), s(85)
        if CFG.get('l844'): E(shl(sHP_, sROLE, 1)); E(add(sHP_, sHP_, 8))
        else: E(mul(sHP_, sROLE, 3))
        if kind == 'A':
            sHP_, sHS_ = sFA, sFC
            E(mul(sHS_, sROLE, 3)); E(salu('s_and_b32', s(4), sROLE, 1)); E(add(sHP_, sHS_, s(4)))
            E(shl(s(4), s(4), 1)); E(add(sHS_, sHS_, 2)); E(salu('s_sub_u32', sHS_, sHS_, s(4)))
            E(salu('s_sub_u32', sJQ, sHS_, sHP_)); E(shl(sJQ, sJQ, 8)); E(salu('s_sub_u32', sJQ, sJQ, 3 * 128))
        E(shl(sQ0, sHP_, 8))
        E(mul(sQA, sWAVE, 64 * 8192)); E(add(sQA, sQA, sQ0))
        E(shl(sQC, sWAVE, 16)); E(add(sQC, sQC, sQ0)); E(add(sQC, sQC, 256 * 8192))
        E(shr(s(3), sWAVE, 1)); E(shl(s(3), s(3), 13)); E(salu('s_and_b32', s(4), sWAVE, 1)); E(shl(s(4), s(4), 11)); E(add(s(3), s(3), s(4)))
        E(salu('s_sub_u32', s(3), s(3), 64)); E(shl(s(4), sWAVE, 11))
        for e, (h_, pfr) in enumerate([(sHP_, sPFa), (sHS_, sPFb)][:2 if kind == 'A' else 1]):
            E(shr(pfr, h_, 1)); E(shl(pfr, pfr, 19)); E(add(pfr, pfr, 1536 * 256))
            E(add(sKb[e], pfr, s(4))); E(add(sVb[e], pfr, s(3)))
        E(mul(sPFc, sROLE, 384 * 1152) if kind == 'A' else mul(sPFc, sHP_, 128 * 1152))
        if kind == 'A':
            E(mul(sHP_, sHP_, 128 * 1152)); E(mul(sHS_, sHS_, 128 * 1152))
            E(mul(sOA, sWAVE, 32 * 1152)); E(add(sOA1, sOA, sHS_)); E(add(sOA, sOA, sHP_))
            E(salu('s_sub_u32', sOA1, sOA1, 64 * 1152)); E(add(sT3, sOA, 192 * 1152)); E(salu('s_cmp_lt_u32', None, sWAVE, 2)); E(csel(sOA1, sT3, sOA1))
            E(shr(s(3), sWAVE, 1)); E(shl(s(3), s(3), 2)); E(salu('s_and_b32', s(4), sWAVE, 1)); E(add(s(3), s(3), s(4)))
            E(mul(sOB, s(3), 8 * 1152)); E(add(sOB1, sOB, sHS_)); E(add(sOB1, sOB1, 64 * 1152)); E(add(sOB, sOB, sHP_)); E(add(sOB, sOB, 128 * 1152))
        else:
            E(mul(sOA, sWAVE, 64 * 1152)); E(add(sOA, sOA, sPFc))
    elif kind in 'AM':
        E(mul(sT3, sROLE, 3 * 256))
        E(mul(sQA, sWAVE, 64 * 8192)); E(add(sQA, sQA, sT3))
        E(shl(sQC, sWAVE, 16)); E(add(sQC, sQC, sT3)); E(add(sQC, sQC, 256 * 8192))
        E(shr(s(3), sWAVE, 1)); E(shl(s(3), s(3), 13)); E(salu('s_and_b32', s(4), sWAVE, 1)); E(shl(s(4), s(4), 11)); E(add(s(3), s(3), s(4)))
        E(salu('s_sub_u32', s(3), s(3), 64)); E(shl(s(4), sWAVE, 11))
        if MS: E(shl(s(3), sWAVE, 12))
        for e in range(3 if kind == 'A' else 2):
            E(mul(sT3, sROLE, 3)); E(add(sT3, sT3, e)); E(shr(sT3, sT3, 1)); E(shl(sT3, sT3, 19)); E(add(sT3, sT3, 1536 * 256))
            if e == 0: E(smov(sPFa, sT3))
            if e == (2 if kind == 'A' else 1): E(smov(sPFb, sT3))
            E(add(sKb[e], sT3, s(4))); E(add(sVb[e], sT3, s(3)))
        E(mul(sPFc, sROLE, 384 * 1152))
        if kind == 'A':
            E(mul(sOA, sWAVE, 32 * 1152)); E(add(sOA, sOA, sPFc))
            E(shr(s(3), sWAVE, 1)); E(shl(s(3), s(3), 2)); E(salu('s_and_b32', s(4), sWAVE, 1)); E(add(s(3), s(3), s(4)))
            E(mul(sOB, s(3), 8 * 1152)); E(add(sOB, sOB, sPFc)); E(add(sOB, sOB, 128 * 1152))
        else:
            E(mul(sOA, sWAVE, 64 * 1152)); E(add(sOA, sOA, sPFc))
    if kind in 'FM':
        if kind == 'F':
            E(salu('s_sub_u32', s(3), sROLE, NA + NM)); E(mul(sPF1, s(3), 13 * 128)); E(shl(sPF1h, s(3), 6)); E(add(sPF1h, sPF1h, 69 * 128))
        elif CFG.get('l844'):
            E(mul(sPF1, sROLE, 5 * 128)); E(add(sPF1, sPF1, (52 - 40) * 128)); E(smov(sPF1h, sPF1))
        else:
            E(smov(sPF1, f_fullcol(5) * 2)); E(smov(sPF1h, f_halfcol(5) * 2))
        E(mul(sHA, sWAVE, 64 * 9216)); E(add(sHA, sHA, sPF1))
        E(mul(sHC, sWAVE, 8 * 9216)); E(add(sHC, sHC, sPF1)); E(add(sHC, sHC, 256 * 9216))
        E(mul(sHH, sWAVE, 128 * 9216)); E(add(sHH, sHH, sPF1h))
        E(mul(sHHC, sWAVE, 16 * 9216)); E(add(sHHC, sHHC, sPF1h)); E(add(sHHC, sHHC, 512 * 9216))
        E(mul(sPF2, sPF1, 576)); E(mul(sPF2h, sPF1h, 576))
        E(mul(sFA, sWAVE, 64 * 1152)); E(add(sFA, sFA, sPF2))
        if MS:
            E(salu('s_and_b32', s(3), sWAVE, 1)); E(shl(s(3), s(3), 1)); E(shr(s(4), sWAVE, 1)); E(add(s(3), s(3), s(4))); E(mul(sFC, s(3), 8 * 1152))
        else: E(mul(sFC, sWAVE, 4 * 1152))
        E(add(sFS, sFC, sPF2h)); E(add(sFC, sFC, sPF2)); E(add(sFC, sFC, 256 * 1152))
    if CFG['pf'] >= 3:
        if kind in 'AM': E(mul(sT3, sROLE, 3 * 256) if not CFG.get('pair') else smov(sT3, sQ0))
        E(pf_row_setup(kind, 8192 if kind in 'AM' else 9216, 18, sT3 if kind in 'AM' else sPF1, 0))
        f_ = pf_row(kind, sWQ if kind in 'AM' else sW1)
        early_pf = [f_()[1]] + f_() + f_()
        if CFG.get('ez'): E(early_pf[0])
        if CFG.get('epf', 1) == 3:
            R.pf.setdefault(0, [])[:0] = [f_, f_]
    E(add(sT3, sROLE, NS - NA if kind == 'F' else 0))
    E(mul(sSt, sT3, PSTR())); E(shl(sT3, sRB, 2)); E(add(sT3, sT3, sWAVE)); E(mul(sT3, sT3, PWAVE)); E(add(sSt, sSt, sT3))
    if kind == 'M': E(add(sSt2, sSt, (NS - NA) * PSTR()))
    if CFG['fused']:
        E(shl(sT2, sRB, 14)); E(add(sT2, sT2, CTRL))
        E(add(sT3, sROLE, NS - NA if kind == 'F' else 0)); E(shl(sT3, sT3, 2)); E(add(sT3, sT3, sT2))
        E(salu('s_cmp_eq_u32', None, sWAVE, 0)); E(csel(sT3, sT3, OOB)); E(csel(sT2, sT2, OOB))
        E(valu('v_and_b32', v(24), 15, lane)); E(valu('v_lshlrev_b32', v(25), 7, v(24))); E(valu('v_add_u32', v(25), 128, v(25)))
        E(raw("v_cmp_eq_u32 vcc, 0, v24", 'valu', wr=['vcc'], rd=[v(24)])); E(valu('v_cndmask_b32', v(25), v(25), 0, 'vcc') if False else raw("v_cndmask_b32 v25, v25, v24, vcc", 'valu', wr=[v(25)], rd=[v(25), v(24), 'vcc']))
        E(valu('v_lshrrev_b32', v(26), 4, lane)); E(valu('v_lshl_add_u32', v(25), v(26), 2 + (NS - NA).bit_length() - 1, v(25))); E(valu('v_add_u32', v(25), sT3, v(25)))
        E(raw(f"s_mov_b64 vcc, {hex(((1 << (NA + 1)) - 1) * (0x10001 if kind == 'M' else 1))}", 'salu', wr=['vcc'])); E(valu('v_mov_b32', vCT, OOB)); E(nop(1))
        E(raw(f"v_cndmask_b32 {vCT}, {vCT}, v25, vcc", 'valu', wr=[vCT], rd=[vCT, v(25), 'vcc']))
        E(valu('v_mov_b32', v(24), vCT))
        if CFG.get('abn'):
            assert not CFG.get('bal')
            E(valu('v_and_b32', v(26), 15, lane)); E(valu('v_lshlrev_b32', v(26), 8, v(26))); E(add(sT2, sT2, ABN)); E(valu('v_add_u32', v(26), sT2, v(26)))
            if kind == 'A':
                t_ = [x - 20 for x in ([28, 29, 23, 30, 31, 24, 32, 33, 34, 35] if CFG.get('m3') else [28, 29, 22, 30, 31, 21, 32, 33, 34, 35])]
                E(smov(s(98), sum(t_[i] << (4 * i) for i in range(8)))); E(smov(s(99), t_[8] | (t_[9] << 4)))
                E(shl(s(4), sROLE, 2)); E(salu('s_lshr_b64', s(98, 2), s(98, 2), s(4))); E(salu('s_and_b32', s(4), s(98), 15)); E(add(s(4), s(4), 20))
                E(valu('v_mov_b32', v(27), s(4))); E(add(s(4), sROLE, 10)); E(valu('v_mov_b32', v(25), s(4)))
                E(raw("v_cmp_gt_u32 vcc, 32, v0", 'valu', wr=['vcc'], rd=[lane])); E(raw("v_cndmask_b32 v27, v27, v25, vcc", 'valu', wr=[v(27)], rd=[v(27), v(25), 'vcc']))
                E(valu('v_mov_b32', v(25), sROLE))
                E(raw("v_cmp_gt_u32 vcc, 16, v0", 'valu', wr=['vcc'], rd=[lane])); E(raw("v_cndmask_b32 v27, v27, v25, vcc", 'valu', wr=[v(27)], rd=[v(27), v(25), 'vcc']))
            elif CFG.get('m3') and kind == 'M':
                E(valu('v_lshrrev_b32', v(27), 4, lane)); E(valu('v_min_u32', v(27), 2, v(27))); E(valu('v_add_u32', v(27), 20, v(27)))
            elif CFG.get('m3'):
                E(add(s(4), sROLE, 12)); E(salu('s_cmp_lt_u32', None, sROLE, 13)); E(csel(s(4), 40, s(4))); E(valu('v_mov_b32', v(27), s(4)))
            else:
                E(smov(s(4), 20) if kind == 'M' else add(s(4), sROLE, 12)); E(valu('v_mov_b32', v(27), s(4)))
            E(valu('v_lshl_add_u32', v(26), v(27), 2, v(26))); E(valu('v_mov_b32', v(25), 0))
            z = bstore('buffer_store_dword', v(25), v(26), sWS, 0, flags='sc1'); z.tag = 'zero'; E(z)
        else:
            assert not (CFG.get('l844') or CFG.get('four') or CFG.get('nof'))
            E(add(sT2, sT2, 4 * (NPART + 1)))
            def flag(lane_, item):
                E(raw(f"s_lshl2_add_u32 {sT3}, {item}, {sT2}", 'salu', wr=[sT3], rd=[item, sT2]))
                E(raw(f"v_writelane_b32 v24, {sT3}, {lane_}", 'valu', wr=[v(24)], rd=[sT3, v(24)]))
            def tflag(lane_, tab, base):
                t_ = [min(x - base, 15) for x in tab]
                E(smov(s(98), sum(t_[i] << (4 * i) for i in range(8)))); E(smov(s(99), t_[8] | (t_[9] << 4)))
                E(shl(s(4), sROLE, 2)); E(salu('s_lshr_b64', s(98, 2), s(98, 2), s(4))); E(salu('s_and_b32', s(4), s(98), 15)); E(add(s(4), s(4), base)); flag(lane_, s(4))
            if kind == 'A' and CFG.get('bal'):
                flag(32, sROLE); tflag(33, BAL2, 10); tflag(34, BAL3, 21)
                tflag(35, [x if x < 36 else i for i, x in enumerate(BALM)][:0] + [(BALM[i] if BALM[i] < 36 else BAL2[i]) for i in range(10)], 10)
            elif kind == 'A':
                flag(32, sROLE); E(add(s(4), sROLE, 10)); flag(33, s(4)); tflag(34, [28, 29, 22, 30, 31, 21, 32, 33, 34, 35], 20)
            elif kind == 'F' and CFG.get('bal'):
                E(add(s(4), sROLE, 12)); E(salu('s_cmp_lt_u32', None, sROLE, 13)); E(csel(s(4), 41, s(4))); flag(32, s(4))
            else:
                E(smov(s(4), 20) if kind == 'M' else add(s(4), sROLE, 12)); flag(32, s(4))
        E(valu('v_mov_b32', v(25), 0))
        z = bstore('buffer_store_dword', v(25), v(24), sWS, 0, flags='sc1'); z.tag = 'zero'; E(z)
        E(shl(sT2, sRB, 4)); E(salu('s_cmp_eq_u32', None, sWAVE, 0)); E(csel(sT2, sT2, 256))
        E(valu('v_mov_b32', v(23), 256)); E(raw(f"v_writelane_b32 v23, {sT2}, 0", 'valu', wr=[v(23)], rd=[sT2, v(23)]))
    T_ = [v(24), v(25), v(26), v(27), v(28), v(29)]
    q, r, c4, rb1 = T_[0], T_[1], T_[2], T_[3]
    E(valu('v_lshrrev_b32', q, 4, lane)); E(valu('v_bfe_u32', r, lane, 2, 2)); E(valu('v_and_b32', c4, 3, lane)); E(valu('v_bfe_u32', rb1, lane, 3, 1))
    E(valu('v_and_b32', T_[4], 7, lane)); E(valu('v_bfe_u32', T_[5], lane, 4, 1)); E(valu('v_lshlrev_b32', T_[5], 1, T_[5]))
    E(valu('v_xor_b32', T_[4], T_[4], T_[5])); E(valu('v_lshlrev_b32', vSWZ, 4, T_[4]))
    E(valu('v_lshrrev_b32', T_[4], 5, lane)); E(valu('v_and_b32', T_[5], 3, vROWN)); E(valu('v_lshl_add_u32', vROWP, T_[4], 4, T_[5]))
    E(smov(sT2, PP)); E(valu('v_mul_u32_u24', T_[4], sT2, q)); E(valu('v_lshl_add_u32', T_[4], r, 7, T_[4]))
    E(valu('v_lshl_add_u32', T_[4], c4, 3, T_[4])); E(valu('v_lshl_add_u32', vRW[0][0], rb1, 5, T_[4]))
    E(valu('v_mov_b32', vDP, vRW[0][0]))
    if MS:
        E(valu('v_and_b32', T_[4], 7, lane)); E(valu('v_bfe_u32', T_[5], lane, 4, 1)); E(valu('v_lshlrev_b32', T_[5], 2, T_[5]))
        E(valu('v_xor_b32', T_[4], T_[4], T_[5])); E(valu('v_lshlrev_b32', vSWZM, 4, T_[4]))
        E(valu('v_bfe_u32', q, lane, 4, 1)); E(valu('v_lshlrev_b32', q, 5, q))
        E(valu('v_and_b32', T_[4], 1, lane)); E(valu('v_lshl_add_u32', q, T_[4], 4, q))
        E(valu('v_bfe_u32', T_[4], lane, 1, 1)); E(valu('v_lshl_add_u32', q, T_[4], 3, q))
        E(valu('v_lshrrev_b32', T_[5], 5, lane))
        E(smov(sT2, PP)); E(valu('v_mad_u32_u24', T_[4], T_[5], sT2, q)); E(valu('v_lshl_add_u32', T_[4], r, 7, T_[4]))
        E(valu('v_lshl_add_u32', vRW[0][0], rb1, 6, T_[4])); E(valu('v_xor_b32', rb1, 1, rb1)); E(valu('v_lshl_add_u32', vRW[0][1], rb1, 6, T_[4]))
        if kind in 'FM':
            E(valu('v_lshl_add_u32', vRH[0], T_[5], 9, q)); E(valu('v_lshl_add_u32', vRH[0], r, 6, vRH[0]))
            E(valu('v_lshlrev_b32', T_[4], 4, c4)); E(valu('v_lshrrev_b32', T_[5], 2, lane)); E(smov(sT2, 9216))
            E(valu('v_mad_u32_u24', vOFFH, T_[5], sT2, T_[4]))
        E(valu('v_lshrrev_b32', q, 4, lane))
    else:
        E(valu('v_xor_b32', vRW[0][1], 32, vRW[0][0]))
    for b in (1, 2):
        for T in range(2): E(valu('v_add_u32', vRW[b][T], 65536 * b, vRW[0][T]))
    if kind in 'FM' and not MS:
        E(valu('v_lshlrev_b32', T_[4], 9, q)); E(valu('v_lshl_add_u32', T_[4], r, 6, T_[4])); E(valu('v_lshl_add_u32', T_[4], c4, 3, T_[4]))
        E(valu('v_and_b32', T_[5], 1, q)); E(valu('v_lshl_add_u32', vRH[0], T_[5], 5, T_[4])); E(valu('v_xor_b32', vRH[1], 32, vRH[0]))
        E(valu('v_lshrrev_b32', T_[4], 5, lane)); E(valu('v_lshlrev_b32', T_[4], 1, T_[4])); E(valu('v_xor_b32', T_[4], T_[4], c4))
        E(valu('v_lshlrev_b32', T_[4], 4, T_[4])); E(valu('v_lshrrev_b32', T_[5], 2, lane)); E(smov(sT2, 9216))
        E(valu('v_mad_u32_u24', vOFFH, T_[5], sT2, T_[4]))
    if kind in 'AM':
        E(valu('v_and_b32', T_[4], 15, lane)); E(valu('v_xor_b32', T_[4], T_[4], q)); E(valu('v_lshlrev_b32', T_[4], 4, T_[4]))
        E(valu('v_lshl_add_u32', vOFFK, q, 8, T_[4]))
    E(set_offw(8192 if kind in 'AM' else 9216, 'M' if MS else 'S'))
    if MS:
        XA = [v(20), v(21), v(22), v(39)]
        E(valu('v_and_b32', T_[4], 31, lane)); E(valu('v_bfe_u32', T_[5], lane, 1, 3)); E(valu('v_lshrrev_b32', q, 5, lane)); E(valu('v_xor_b32', T_[5], T_[5], q))
        E(valu('v_lshlrev_b32', T_[4], 7, T_[4])); E(valu('v_add_u32', T_[4], s(6), T_[4]))
        E(valu('v_lshl_add_u32', XA[0], T_[5], 4, T_[4]))
        for tt in range(1, 4): E(valu('v_xor_b32', XA[tt], 32 * tt, XA[0]))
    else:
        E(valu('v_and_b32', T_[4], 15, lane)); E(valu('v_bfe_u32', T_[5], lane, 1, 3)); E(valu('v_xor_b32', T_[5], T_[5], q))
        E(valu('v_lshlrev_b32', T_[4], 7, T_[4])); E(valu('v_add_u32', T_[4], s(6), T_[4]))
        E(valu('v_lshl_add_u32', v(20), T_[5], 4, T_[4])); E(valu('v_xor_b32', v(21), 64, v(20)))
        if kind in 'AM':
            E(smov(sT2, PP)); E(valu('v_mul_u32_u24', v(22), sT2, r)); E(valu('v_lshl_add_u32', v(22), c4, 8, v(22)))
            E(valu('v_xor_b32', T_[4], q, c4)); E(valu('v_lshl_add_u32', v(22), T_[4], 4, v(22)))
    E(valu('v_lshlrev_b32', vLANE16, 4, lane))
    if CFG['stamps'] == 2: E(valu('v_mov_b32', vSTAMP, 0))
    if CFG['fused'] and CFG.get('rep') and kind in 'FM':
        E(rep_addr(kind, v(24), v(25))); E(valu('v_mov_b32', v(25), 0))
        z = bstore('buffer_store_dword', v(25), v(24), sWS, 0, flags='sc1'); z.tag = 'zero'; E(z)
    E = p.emit
    sONE = s(97) if ILV else sT2
    SA = 56 if ILV else 28
    for i in range(8): E(valu('v_mov_b32', v(SA + i), 0))
    E(smov(sONE, 0x3f803f80))
    def stats(j):
        for tt in range(2):
            for g in range(2):
                for qd in range(4):
                    x = X(2 * j + tt, g)[qd]
                    E(valu('v_dot2c_f32_bf16', v(SA + 2 * g + (qd & 1)), sONE, x, rmw=True))
                    E(valu('v_dot2c_f32_bf16', v(SA + 4 + 2 * g + (qd & 1)), x, x, rmw=True))
    PS(57)
    for j in range(9):
        E(waitvm(p.vm_wait_for(lambda t: t == ('x', j))))
        if j == 0: PS(58)
        if MS:
            for tt in range(4): E(ds_b128(XM(4 * j + tt), XA[tt], j * 4096))
        else:
            for tt in range(2):
                for g in range(2): E(ds_b128(X(2 * j + tt, g), v(20 + tt), j * 4096 + g * 2048))
        if j + CFG['xe'] < 9: E(xdma(j + CFG['xe']))
        if CFG['pf'] >= 3 and CFG.get('epf', 1) == 1 and j == max(8 - CFG['xe'], 0): E(early_pf)
        if ILV:
            nper = -(-len(setup) // max(CFG['ilv'] - j, 1))
            while nper < len(setup) and (SCC in setup[nper].rd or setup[nper].txt.startswith('s_cselect') or VCC in setup[nper].rd): nper += 1
            E(setup[:nper]); del setup[:nper]
        if j >= 1:
            E(waitlg(4)); stats(j - 1)
    E(waitlg(0)); PS(59); E(barrier())
    if CFG.get('codepf', 3) == 2: E(I(f"global_load_dword {vDUM}, v46, s[100:101]", 'vload', wr=vDUM.regs(), rd=vr(46) + sr(100, 2), tag='pf'))
    if CFG['pf'] >= 3 and CFG.get('epf', 1) == 2: E(early_pf)
    pend = []
    for k in range(2 if CFG.get('pro2') else 3):
        st = R.stages[k]
        if st.pre_dma: pend.append(st.pre_dma())
        pend += st.dma(k, False)
    if CFG.get('epf', 1) == 4: pend[CFG.get('epos', 9):CFG.get('epos', 9)] = [early_pf[1:3], early_pf[3:5]]
    d0 = CFG.get('d0', 9)
    for it in pend[:d0]: E(it)
    pend = pend[d0:]
    PS(60)
    stats(8)
    acc4 = [v(SA), v(SA + 2), v(SA + 4), v(SA + 6)]
    for x in acc4: E(valu('v_add_f32', x, x, v(x.n + 1)))
    if MS:
        for b_ in (0, 2):
            E(valu('v_add_f32', acc4[b_], acc4[b_], acc4[b_ + 1]))
        for b_ in (0, 2): E(valu('v_mov_b32', acc4[b_ + 1], acc4[b_]))
    for op in (('v_permlane32_swap_b32',) if MS else ('v_permlane16_swap_b32', 'v_permlane32_swap_b32')):
        for x in acc4: E(valu('v_mov_b32', v(x.n + 1), x))
        for x in acc4: E(valu(op, x, v(x.n + 1), rmw=True, extra_wr=[v(x.n + 1)]))
        for x in acc4: E(valu('v_add_f32', x, x, v(x.n + 1)))
    for x in acc4: E(valu('v_mul_f32', x, f2u(1.0 / 576), x))
    for g in range(2): E(valu('v_fma_f32', acc4[2 + g], '-' + str(acc4[g]), acc4[g], acc4[2 + g]))
    for g in range(2): E(valu('v_max_f32', acc4[2 + g], 0, acc4[2 + g]))
    for g in range(2): E(valu('v_add_f32', acc4[2 + g], f2u(1e-5), acc4[2 + g]))
    for g in range(2): E(valu('v_rsq_f32', acc4[2 + g], acc4[2 + g]))
    for g in range(2): E(valu('v_mul_f32', acc4[2 + g], f2u(-LOG2E), acc4[2 + g]))
    for g in range(2): E(valu('v_mov_b32', v(20 + g), acc4[g]))
    for g in range(2): E(valu('v_mul_f32', acc4[g], '-' + str(acc4[g]), acc4[2 + g], extra_rd=[acc4[g]]))
    E(smov(sT2, 0xffff0000))
    if CFG.get('dotn'):
        cl = [v(SA + 1), v(SA + 3)]; ch = [v(SA + 5), v(SA + 7)]
        for g in range(2): E(valu('v_cvt_pk_bf16_f32', cl[g], acc4[2 + g], 0))
        for g in range(2): E(valu('v_lshlrev_b32', ch[g], 16, cl[g]))
        for g in range(2): E(valu('v_mul_f32', acc4[g], '-' + str(v(20 + g)), ch[g], extra_rd=[v(20 + g)]))
    PS(61)
    n = 0
    for t in range(18):
        for g in range(2):
            tps = [v(24, 2), v(26, 2), v(16, 2), v(18, 2)]
            x = X(t, g)
            if CFG.get('dotn'):
                for qd in range(4):
                    E(valu('v_dot2_f32_bf16', tps[qd][0], x[qd], cl[g], acc4[g])); E(valu('v_dot2_f32_bf16', tps[qd][1], x[qd], ch[g], acc4[g]))
            else:
                for qd in range(4):
                    E(valu('v_lshlrev_b32', tps[qd][0], 16, x[qd])); E(valu('v_and_b32', tps[qd][1], sT2, x[qd]))
                for qd in range(4): E(valu('v_pk_fma_f32', tps[qd], tps[qd], v(acc4[2 + g].n, 2), v(acc4[g].n, 2), mods='op_sel_hi:[1,0,0]'))
            for qd in range(4): E(valu('v_cvt_pk_bf16_f32', x[qd], tps[qd][0], tps[qd][1]))
            if pend and n % CFG.get('dn', 2) == 0: E(pend.pop(0))
            n += 1
    for it in pend: E(it)
    if CFG['fused']:
        E(valu('v_mov_b32', v(24), 1)); E(waitvm(p.vm_wait_for(lambda t: t == 'zero')))
        E(I(f"buffer_atomic_add v24, v23, {sDBG}, 0 offen sc1", 'vstore', rd=vr(23, 2) + sDBG.regs(), units=3, tag='init'))
    for _ in range(CFG.get('idle', 0)): E(raw("s_sleep 16"))
    PS(62)
    if kind in 'AM' and MS:
        ln, m_, key, t_ = v(16), v(17), v(18), v(19)
        E([valu('v_lshrrev_b32', ln, 4, vLANE16), valu('v_and_b32', key, 19, ln),
           valu('v_bfe_u32', t_, ln, 2, 1), valu('v_lshl_add_u32', key, t_, 3, key),
           valu('v_bfe_u32', t_, ln, 3, 1), valu('v_lshl_add_u32', key, t_, 2, key),
           valu('v_lshrrev_b32', m_, 2, key), smov(sT2, PP), valu('v_mul_u32_u24', m_, sT2, m_),
           valu('v_and_b32', key, 3, key), valu('v_lshl_add_u32', m_, key, 8, m_),
           valu('v_lshrrev_b32', t_, 5, ln), valu('v_xor_b32', t_, t_, key),
           valu('v_lshl_add_u32', vRKM[0], t_, 4, m_), valu('v_xor_b32', vRKM[1], 32, vRKM[0])])
    elif kind in 'AM':
        E(valu('v_mov_b32', vRK[0], v(22))); E(valu('v_add_u32', vRK[1], 65536, v(22))); E(valu('v_add_u32', vRK[2], 131072, v(22)))
    if CFG['stamps']: E(raw(f"v_writelane_b32 {vSTAMP}, s96, 55", 'valu', wr=[vSTAMP], rd=[s(96)])) if kind != 'A' else None
    if CFG['stamps']: E(smov(s(43), s(96)))
    nlr = {'F': 10, 'A': 11, 'M': 8}[kind]
    if kind != 'M': E([valu('v_lshrrev_b32', vPF2, 16, vTID), valu('v_and_b32', vPFR, 63, vTID), valu('v_min_u32', vPFR, nlr - 1, vPFR),
       valu('v_mad_u32_u24', vPFR, vPF2, nlr, vPFR), valu('v_lshlrev_b32', vPFR, 7, vPFR)])
    if CFG['stamps']: E(smov(s(97), 0))
    E(smov(sLN0, f2u(-1.0 / math.sqrt(128.0))))

def slow_check(R, heads, base2):
    def f():
        p = R.p; E = p.emit
        t = v(254); lo = v(255)
        E(valu('v_mov_b32', lo, f2u(2.0 ** -40))); E(smov(sT3, f2u(2.0 ** 40)))
        for (hd, Q, O) in heads:
            L = f"L_{R.kind}_slow{hd}"
            if CFG['shape'] == 'M':
                E(valu('v_med3_f32', t, Lsave[hd], sT3, lo))
                E(raw(f"v_cmp_neq_f32 vcc, {t}, {Lsave[hd]}", 'valu', wr=['vcc'], rd=[t, Lsave[hd]])); E(nop(4))
            else:
                E(valu('v_med3_f32', t, Lsave[2 * hd], sT3, lo))
                E(raw(f"v_cmp_neq_f32 s[98:99], {t}, {Lsave[2 * hd]}", 'valu', wr=[s(98, 2)], rd=[t, Lsave[2 * hd]]))
                E(valu('v_med3_f32', t, Lsave[2 * hd + 1], sT3, lo))
                E(raw(f"v_cmp_neq_f32 vcc, {t}, {Lsave[2 * hd + 1]}", 'valu', wr=['vcc'], rd=[t, Lsave[2 * hd + 1]])); E(nop(4))
                E(raw("s_or_b64 vcc, vcc, s[98:99]", 'salu', wr=['vcc'], rd=['vcc', s(98, 2)])); E(nop(1))
            if CFG.get('force_slow'): E(raw(f"s_mov_b64 vcc, -1", 'salu', wr=['vcc']))
            E(raw(f"s_cbranch_vccz {L}_ret"))
            E(raw(f"s_call_b64 {sRET}, {L}"))
            E(label(f"{L}_ret"))
            R.slow.append((slow_path if CFG['shape'] == 'M' else slow_pathS)(L, hd, Q, O, base2))
        E(nop(1))
    return f

def slow_path(L, hd, Q, Odst, b2):
    p = Prog(); E = p.emit
    O = v(48, 64); S = v(b2, 16); P = v(b2 + 16, 8); F = v(b2 + 24, 16)
    vK, vV, vM, vL, t0, t1 = [v(b2 + 40 + i) for i in range(6)]
    sB, sJ, sO = s(98), s(99), s(97)
    E(I(".p2align 2", 'label')); E(label(L))
    E(nop(7)); E(nop(7))
    E([valu('v_lshrrev_b32', t0, 4, vLANE16), valu('v_and_b32', vK, 19, t0), valu('v_bfe_u32', t1, t0, 2, 1), valu('v_lshl_add_u32', vK, t1, 3, vK),
       valu('v_bfe_u32', t1, t0, 3, 1), valu('v_lshl_add_u32', vK, t1, 2, vK), valu('v_lshrrev_b32', t1, 5, t0),
       valu('v_lshlrev_b32', vV, 1, vK), valu('v_lshl_add_u32', vV, t1, 11, vV),
       valu('v_lshlrev_b32', vK, 8, vK), valu('v_lshl_add_u32', vK, t1, 4, vK)])
    E([mul(sB, sROLE, 3), add(sB, sB, hd), shr(sB, sB, 1), shl(sB, sB, 19), add(sB, sB, 1536 * 256)])
    def qk():
        for half in range(2):
            for t in range(4): E(bload('buffer_load_dwordx4', F.sub(4 * t, 4), vK, sK, sO, (4 * half + t) * 32))
            E(waitvm(0))
            for t in range(4):
                tt = 4 * half + t
                E(mfma(S, F.sub(4 * t, 4), Q.sub(4 * tt, 4), 0 if tt == 0 else S))
            E(nop(7)); E(nop(7))
    E(valu('v_mov_b32', vM, 0xff800000)); E(smov(sJ, 0))
    E(label(L + "_a"))
    E(add(sO, sB, sJ)); qk()
    for i in range(0, 16, 2): E(valu('v_max3_f32', vM, vM, S[i], S[i + 1]))
    E(add(sJ, sJ, 8192)); E(salu('s_cmp_lt_u32', None, sJ, 16 * 8192)); E(raw(f"s_cbranch_scc1 {L}_a"))
    E(valu('v_mov_b32', t0, vM)); E(valu('v_permlane32_swap_b32', vM, t0, rmw=True, extra_wr=[t0])); E(valu('v_max_f32', vM, vM, t0))
    for i in range(64): E(valu('v_mov_b32', O[i], 0))
    E(valu('v_mov_b32', vL, 0)); E(smov(sJ, 0))
    E(label(L + "_b"))
    E(add(sO, sB, sJ)); qk()
    for i in range(16): E(valu('v_sub_f32', S[i], S[i], vM))
    for i in range(16): E(valu('v_exp_f32', S[i], S[i]))
    for i in range(16): E(valu('v_add_f32', vL, vL, S[i]))
    for q in range(8): E(valu('v_cvt_pk_bf16_f32', P[q], S[2 * q], S[2 * q + 1]))
    for u in range(2):
        for tp in range(2):
            for tq in range(2):
                for j in range(8):
                    E(bload('buffer_load_ushort', F[8 * (j & 1) + 4 * tq + j // 2], vV, sV, sO, j * 256 + (2 * tp + tq) * 64))
            E(waitvm(0))
            for i in range(8): E(valu('v_lshl_or_b32', F[i], F[8 + i], 16, F[i]))
            for tq in range(2):
                D_ = O.sub(16 * (2 * tp + tq), 16)
                E(mfma(D_, F.sub(4 * tq, 4), P.sub(4 * u, 4), D_))
            E(nop(7))
        if u == 0: E(add(sO, sO, 4096))
    E(add(sJ, sJ, 8192)); E(salu('s_cmp_lt_u32', None, sJ, 16 * 8192)); E(raw(f"s_cbranch_scc1 {L}_b"))
    E(nop(7)); E(nop(7))
    E(valu('v_mov_b32', t0, vL)); E(valu('v_permlane32_swap_b32', vL, t0, rmw=True, extra_wr=[t0])); E(valu('v_add_f32', vL, vL, t0))
    E(valu('v_rcp_f32', t0, vL))
    for tau in range(4):
        A_ = O.sub(16 * tau, 16)
        for e in range(16): E(valu('v_mul_f32', A_[e], A_[e], t0))
        for q in range(8): E(valu('v_cvt_pk_bf16_f32', A_[2 * q], A_[2 * q], A_[2 * q + 1]))
        for q in range(4): E(valu('v_permlane16_swap_b32', A_[2 * q], A_[2 * q + 8], rmw=True, extra_wr=[A_[2 * q + 8]]))
        for q in range(8): E(valu('v_accvgpr_write_b32', Odst[8 * tau + q], A_[2 * q]))
    E(nop(1)); E(raw(f"s_setpc_b64 {sRET}"))
    return p

def slow_pathS(L, hd, Q, Odst, b2):
    p = Prog(); E = p.emit
    ob = 48; kv = None
    if isinstance(b2, tuple): b2, ob = b2
    if isinstance(Odst, tuple):
        OFf, kv = Odst
        class _D:
            def __getitem__(s_, i): return OFf(i // 8)[i % 8]
        Odst = _D()
    O = v(ob, 64); S = v(b2, 16); P = v(b2 + 16, 8); F = v(b2 + 24, 16)
    vK, vV, t0, t1 = [v(b2 + 40 + i) for i in range(4)]
    vM = [v(b2 + 44), v(b2 + 45)]; vL = [v(b2 + 46), v(b2 + 47)]
    sB, sJ, sO = s(98), s(99), s(97)
    E(I(".p2align 2", 'label')); E(label(L))
    E(nop(7)); E(nop(7))
    E([valu('v_lshrrev_b32', t0, 4, vLANE16), valu('v_and_b32', t1, 15, t0), valu('v_lshrrev_b32', t0, 4, t0),
       valu('v_lshlrev_b32', vK, 8, t1), valu('v_lshl_add_u32', vK, t0, 4, vK),
       valu('v_lshlrev_b32', vV, 1, t1), valu('v_lshl_add_u32', vV, t0, 10, vV)])
    if kv is not None: E(smov(sB, kv))
    else: E([mul(sB, sROLE, 3), add(sB, sB, hd), shr(sB, sB, 1), shl(sB, sB, 19), add(sB, sB, 1536 * 256)])
    def qk():
        for T in range(2):
            E(add(sO, sB, sJ)) if T == 0 else E(add(sO, sO, 4096))
            for t in range(4): E(bload('buffer_load_dwordx4', F.sub(4 * t, 4), vK, sK, sO, t * 64))
            E(waitvm(0))
            for t in range(4):
                for g_ in range(2):
                    D_ = S.sub(8 * T + 4 * g_, 4)
                    E(mfma(D_, F.sub(4 * t, 4), Q.sub(8 * t + 4 * g_, 4), 0 if t == 0 else D_))
            E(nop(7)); E(nop(3))
    def allq(x, op):
        for sw in ('v_permlane16_swap_b32', 'v_permlane32_swap_b32'):
            E(valu('v_mov_b32', t0, x)); E(valu(sw, x, t0, rmw=True, extra_wr=[t0])); E(valu(op, x, x, t0))
    for g_ in range(2): E(valu('v_mov_b32', vM[g_], 0xff800000))
    E(smov(sJ, 0))
    E(label(L + "_a"))
    qk()
    for T in range(2):
        for g_ in range(2):
            for i in (0, 2): E(valu('v_max3_f32', vM[g_], vM[g_], S[8 * T + 4 * g_ + i], S[8 * T + 4 * g_ + i + 1]))
    E(add(sJ, sJ, 8192)); E(salu('s_cmp_lt_u32', None, sJ, 16 * 8192)); E(raw(f"s_cbranch_scc1 {L}_a"))
    for g_ in range(2): allq(vM[g_], 'v_max_f32')
    for i in range(64): E(valu('v_mov_b32', O[i], 0))
    for g_ in range(2): E(valu('v_mov_b32', vL[g_], 0))
    E(smov(sJ, 0))
    E(label(L + "_b"))
    qk()
    for i in range(16): E(valu('v_sub_f32', S[i], S[i], vM[(i >> 2) & 1]))
    for i in range(16): E(valu('v_exp_f32', S[i], S[i]))
    for i in range(16): E(valu('v_add_f32', vL[(i >> 2) & 1], vL[(i >> 2) & 1], S[i]))
    for g_ in range(2):
        for T in range(2):
            for k in range(2): E(valu('v_cvt_pk_bf16_f32', P[4 * g_ + 2 * T + k], S[8 * T + 4 * g_ + 2 * k], S[8 * T + 4 * g_ + 2 * k + 1]))
    for tp in range(4):
        for jh in range(2):
            E(add(sO, sB, sJ)) if jh == 0 else E(add(sO, sO, 4096))
            for tq in range(2):
                for jl in range(4):
                    j = 4 * jh + jl
                    E(bload('buffer_load_ushort', F[8 * (j & 1) + 4 * tq + j // 2], vV, sV, sO, jl * 256 + (2 * tp + tq) * 32))
        E(waitvm(0))
        for i in range(8): E(valu('v_lshl_or_b32', F[i], F[8 + i], 16, F[i]))
        for tq in range(2):
            for g_ in range(2):
                D_ = O.sub(8 * (2 * tp + tq) + 4 * g_, 4)
                E(mfma(D_, F.sub(4 * tq, 4), P.sub(4 * g_, 4), D_))
        E(nop(7))
    E(add(sJ, sJ, 8192)); E(salu('s_cmp_lt_u32', None, sJ, 16 * 8192)); E(raw(f"s_cbranch_scc1 {L}_b"))
    E(nop(7)); E(nop(3))
    for g_ in range(2): allq(vL[g_], 'v_add_f32')
    for g_ in range(2): E(valu('v_rcp_f32', vL[g_], vL[g_]))
    for i in range(64): E(valu('v_mul_f32', O[i], O[i], vL[(i >> 2) & 1]))
    for kk in range(4):
        for g_ in range(2):
            for T in range(2):
                for c in range(2):
                    r = 8 * (2 * kk + T) + 4 * g_ + 2 * c
                    E(valu('v_cvt_pk_bf16_f32', O[r], O[r], O[r + 1])); E(valu('v_accvgpr_write_b32', Odst[8 * kk + 4 * g_ + 2 * T + c], O[r]))
    E(nop(1)); E(raw(f"s_setpc_b64 {sRET}"))
    return p

NREP = 6
ABN = 4096
BAL2 = [10, 11, 22, 13, 14, 21, 12, 17, 15, 19]; BALM = [63, 63, 63, 63, 63, 63, 16, 63, 18, 63]; BAL3 = [28, 29, 23, 30, 31, 24, 32, 33, 34, 35]
sMD2 = s(84)
def rep_addr(kind, dst, t):
    return [shl(sT2, sRB, 14), add(sT2, sT2, CTRL + 2048), add(sT3, sROLE, NS - NA), shl(sT3, sT3, 2), add(sT2, sT2, sT3),
            salu('s_cmp_eq_u32', None, sWAVE, 0), csel(sT2, sT2, OOB),
            valu('v_lshlrev_b32', dst, 3, vLANE16), valu('v_add_u32', dst, sT2, dst), valu('v_mov_b32', t, OOB),
            raw(f"v_cmp_gt_u32 vcc, {hex(NA * NREP * 16)}, {vLANE16}", 'valu', wr=['vcc'], rd=[vLANE16]), valu('v_cndmask_b32', dst, t, dst, 'vcc')]
vCR = v(31)
def add_signals(R):
    P2 = [k for k, st in enumerate(R.stages) if st.name.startswith('P2')]
    def sig(first):
        def f():
            out = [valu('v_add_u32', vPRG, 1, vPRG)]
            return out + [bstore('buffer_store_dword', vPRG, vCT, sWS, 0, flags='sc1')]
        return f
    def sig7():
        return [valu('v_add_u32', vPRG, 1, vPRG), bstore('buffer_store_dword', vPRG, vCR, sWS, 0, flags='sc1'), bstore('buffer_store_dword', vPRG, vCT, sWS, 0, flags='sc1')]
    def chain(stages, base):
        firsts = [k for k in stages if R.stages[k].sub == 0]
        for c in range(8):
            k = firsts[c + 1] + CFG.get('siglag', {}).get(R.kind, 2)
            if k > stages[-1]: break
            R.stages[k].cover_st = base + c; R.stages[k].post_bar = sig(c == 0)
            if c == 7 and CFG.get('rep') and R.kind in 'FM': R.stages[k].post_bar = sig7
        if CFG.get('rep') and R.kind in 'FM': R.pf.setdefault(firsts[1], []).append(lambda: rep_addr(R.kind, vCR, vPF))
    chain(P2, 0)
    R.stages[P2[0]].post_bar = lambda: [valu('v_mov_b32', vPRG, 0)]

LDSC = 4 * SLOT
sAB = s(72, 2); sRM = s(74, 2); sCD = s(98, 2)
sRS, sRF, sSP, sC, sI, sPB, sPART, sOK, sPAR, sXW, sPWv, sTO = s(78), s(79), s(71), s(80), s(81), s(82), s(47), s(40), s(41), s(59), s(3), s(58)
sIT = [s(42), s(44), s(45)]; sXP = [s(46), s(60), s(61)]
sRET2 = s(66, 2)
vP, vD, vA, vO, vXO, vL4, vDO, vLA, vIT, vLD, vSC = [v(16 + i) for i in range(11)]
vX4 = v(28)
def s64(op, d, *src, scc_r=False): return salu(op, d, *src, scc_r=scc_r)
sPV = s(85)
def red_setup(kind):
    o = [shl(sPB, sRB, 14), add(sPB, sPB, CTRL), salu('s_cmp_eq_u32', None, sWAVE, 0), csel(sT3, 0, OOB),
         valu('v_lshrrev_b32', vL4, 2, vLANE16), valu('v_add_u32', vL4, sT3, vL4),
         valu('v_mov_b32', vSC, OOB), add(sT2, sT3, 4 * NPART), raw(f"v_writelane_b32 {vSC}, {sT2}, 0", 'valu', wr=[vSC], rd=[sT2, vSC]),
         valu('v_mov_b32', vS1, vSC), valu('v_min_u32', vL5, NPART * 16, vLANE16), valu('v_lshrrev_b32', vL5, 2, vL5), valu('v_add_u32', vL5, sT3, vL5),
         add(sT2, sT3, 252), raw(f"v_writelane_b32 {vSC}, {sT2}, 1", 'valu', wr=[vSC], rd=[sT2, vSC]),
         shl(sT2, sRB, 4), add(sT2, sT2, sT3), valu('v_mov_b32', vDO, 256), raw(f"v_writelane_b32 {vDO}, {sT2}, 0", 'valu', wr=[vDO], rd=[sT2, vDO])]
    if kind == 'A': o += [shl(sPV, sROLE, 7), add(sPV, sPV, 256), add(sPV, sPV, sPB)]
    if CFG.get('abn'): o += [shl(sAV_, sROLE, 8), add(sAV_, sAV_, ABN), add(sAV_, sAV_, sPB)]
    return o
vS1, vL5 = v(29), v(30)
sAV_ = s(76 + 1); vP2 = v(31)
def ab_load(): return bload('buffer_load_dword', vP2, vL4, sWS, sAV_, flags='sc1')
def ab_eval():
    return [raw(f"v_cmp_ne_u32 vcc, 0, {vP2}", 'valu', wr=['vcc'], rd=[vP2]), nop(1), raw(f"s_mov_b32 {sAB[0]}, vcc_lo", 'salu', wr=[sAB[0]], rd=['vcc']), raw(f"s_and_b32 {sAB[1]}, vcc_hi, 15", 'salu', wr=[sAB[1]], rd=['vcc'])]
PRIV = [False]
def red_poll(shared=False):
    cnt = [valu('v_mov_b32', vD, 0), I(f"buffer_atomic_add {vD}, {vDO}, {sDBG}, 0 offen sc0 sc1", 'vload', wr=vD.regs(), rd=vD.regs() + vDO.regs() + sDBG.regs(), units=3)]
    if PRIV[0] and not shared:
        return [cnt, [bstore('buffer_store_dword', vS1, vS1, sWS, sPV, flags='sc1'), bload('buffer_load_dword', vP, vL5, sWS, sPV, flags='sc1')]]
    return [cnt, [bstore('buffer_store_dword', vSC, vSC, sWS, sPB, flags='sc1'), bload('buffer_load_dword', vP, vL4, sWS, sPB, flags='sc1')]]
vG = [v(28), v(29), v(30)]; vGA = v(31); vGP = v(27)
def l2pf_setup():
    return [valu('v_lshrrev_b32', vGP, 7, vLANE16), smov(sT2, PSTR()), valu('v_mul_lo_u32', vGA, vGP, sT2),
            valu('v_bfe_u32', vA, vLANE16, 4, 3), valu('v_lshl_add_u32', vGA, vA, 7, vGA), shl(sT2, sWAVE, 10), valu('v_add_u32', vGA, sT2, vGA),
            valu('v_lshlrev_b32', vGP, 2, vGP), valu('v_mov_b32', vA, OOB), smov(sT2, 68), raw(f"v_writelane_b32 {vA}, {sT2}, 0", 'valu', wr=[vA], rd=[vA, sT2])]
def l2pf_poll():
    st = bstore('buffer_store_dword', vA, vA, sWS, sPB, flags='sc1')
    out = [[st]]
    for i in range(3):
        ld = bload('buffer_load_dword', vG[i], vGP, sWS, sPB, 32 * i, flags='sc1'); ld.tag = 'gp'
        out.append([ld])
    return out
def l2pf_issue(R, dlt):
    out = [[add(sI, sROLE, dlt), salu('s_and_b32', sT2, sI, 3), shr(sC, sI, 2), shl(sT3, sRB, 2), add(sT2, sT2, sT3), mul(sSP, sT2, PWAVE),
            shl(sT3, sC, 12), add(sSP, sSP, sT3), valu('v_mov_b32', vO, OOB)]]
    for i in range(3):
        ld = bload('buffer_load_dword', vDUM, vG[i], sWS, sT2); ld.tag = 'pf'
        cmp_ = raw(f"v_cmp_lt_u32 vcc, {sC}, {vG[i]}", 'valu', wr=['vcc'], rd=[sC, vG[i]])
        pre = [cmp_]
        if i == 2: pre += [raw("s_and_b64 vcc, vcc, 0xff", 'salu', wr=['vcc'], rd=['vcc'])]
        out.append(pre + [add(sT2, sSP, 8 * i * PSTR()), valu('v_cndmask_b32', vG[i], vO, vGA, 'vcc'), ld])
    return out
def red_eval():
    o = [raw(f"v_cmp_ne_u32 vcc, 0, {vP}", 'valu', wr=['vcc'], rd=[vP]), nop(1),
         raw(f"s_lshr_b64 {sAB}, vcc, {NPART + 1}", 'salu', wr=[sAB], rd=['vcc']), salu('s_and_b32', sAB[1], sAB[1], 15), smov(sRS, 0), smov(sRF, 0)]
    for c in range(9):
        o += [raw(f"v_cmp_ge_u32 vcc, {c}, {vP}", 'valu', wr=['vcc'], rd=[vP]), nop(1),
              raw(f"s_and_b32 {sT2}, vcc_lo, {hex((1 << NS) - 1)}", 'salu', wr=[sT2], rd=['vcc']), csel(sRS, sRS, 4 * (c + 1)),
              raw(f"s_and_b32 {sT2}, vcc_lo, {hex((1 << NPART) - (1 << NS))}", 'salu', wr=[sT2], rd=['vcc']), csel(sRF, sRF, 4 * (c + 1))]
    return o
def red_pub(par):
    return [shl(sT2, sRF, 8), salu('s_or_b32', sT2, sT2, sRS), shl(sT3, sTO, 16), salu('s_or_b32', sT2, sT2, sT3),
            valu('v_mov_b32', vIT, sT2), valu('v_mov_b32', vLA, par), raw(f"ds_write_b32 {vLA}, {vIT}", 'other', rd=[vLA, vIT]), waitlg(0)]
def red_get(par):
    return [valu('v_mov_b32', vLA, par), raw(f"ds_read_b32 {vIT}, {vLA}", 'ds', wr=[vIT], rd=[vLA]), waitlg(0),
            valu('v_readfirstlane_b32', sT2, vIT), salu('s_and_b32', sRS, sT2, 255), salu('s_bfe_u32', sRF, sT2, (8 << 16) | 8), shr(sTO, sT2, 16)]
def red_early(p, n):
    E = p.emit
    E([smov(sRS, 0), smov(sRF, 0), smov(sOK, 0), smov(sTO, 0), smov(sPAR, LDSC + 4), nop(1)])
    E(salu('s_cmp_eq_u32', None, sWAVE, 0)); E(raw(f"s_cbranch_scc0 L_{n}_e2"))
    E(waitvm(p.vm_wait_for(lambda t: t == 'poll')))
    E(valu('v_readfirstlane_b32', sOK, vD))
    E(salu('s_cmp_ge_u32', None, sOK, 16)); E(raw(f"s_cbranch_scc0 L_{n}_e1"))
    E(red_eval())
    E(label(f"L_{n}_e1"))
    E(red_pub(LDSC))
    E(label(f"L_{n}_e2"))

def ld_part(L, ks, flags):
    out = []
    for k in ks:
        out.append([add(sT2, sPART, k * PSTR()), bload('buffer_load_dwordx4', v(L + 4 * k, 4), vLD, sWS, sT2, flags=flags)])
    return out
def ld_x(L, sXO_):
    if CFG.get('nox'): return [[valu('v_mov_b32', vA, OOB), bload('buffer_load_dwordx2', v(L + 4 * NPART, 2), vA, sX, sXO_)], [bload('buffer_load_dwordx2', v(L + 4 * NPART + 2, 2), vA, sX, sXO_, 32)]]
    return [[bload('buffer_load_dwordx2', v(L + 4 * NPART, 2), vXO, sX, sXO_)], [bload('buffer_load_dwordx2', v(L + 4 * NPART + 2, 2), vXO, sX, sXO_, 32)]]
RB_ = 48
sD0, sD1 = s(68), s(69)
def proc_sum(E, L, ks, after, loads):
    SA, FA, T = RB_, RB_ + 8, RB_ + 16
    issued = 0; ks = list(ks)
    E(smov(sT3, 0xffff0000))
    for j, k in enumerate(ks):
        if loads: E(loads.pop(0)); issued += 1
        E(waitvm(len(ks) - 1 - j + after + issued))
        acc = SA if k < NS else FA
        for q in range(4):
            x = v(L + 4 * k + q)
            if k in (0, NS):
                E(valu('v_lshlrev_b32', v(acc + 2 * q), 16, x)); E(valu('v_and_b32', v(acc + 2 * q + 1), sT3, x))
            else:
                E(valu('v_dot2c_f32_bf16', v(acc + 2 * q), sD0, x, rmw=True)); E(valu('v_dot2c_f32_bf16', v(acc + 2 * q + 1), sD1, x, rmw=True))
    return issued
def proc_fin(E, L, sXO_, xwait, loads):
    SA, FA, T = RB_, RB_ + 8, RB_ + 16; XR = L + 4 * NPART; issued = 0
    for e in range(8): E(valu('v_exp_f32', v(T + e), v(FA + e)))
    for e in range(8): E(valu('v_add_f32', v(T + e), 1.0, v(T + e)))
    while len(loads) > 1: E(loads.pop(0)); issued += 1
    for e in range(8): E(valu('v_rcp_f32', v(T + e), v(T + e)))
    for e in range(8): E(valu('v_mul_f32', v(FA + e), f2u(-math.log(2.0)), v(FA + e)))
    for e in range(8): E(valu('v_mul_f32', v(FA + e), v(FA + e), v(T + e)))
    while loads: E(loads.pop(0)); issued += 1
    if xwait is not None: E(waitvm(xwait + issued))
    for q in range(4):
        E(valu('v_lshlrev_b32', v(T + 2 * q), 16, v(XR + q))); E(valu('v_and_b32', v(T + 2 * q + 1), sT3, v(XR + q)))
    for e in range(8): E(valu('v_fma_f32', v(T + e), v(SA + e), v(FA + e), v(T + e)))
    for q in range(4): E(valu('v_cvt_pk_bf16_f32', v(XR + q), v(T + 2 * q), v(T + 2 * q + 1)))
    if CFG.get('out4', True):
        def dpp(d, src, bank): return I(f"v_mov_b32_dpp {d}, {src} row_ror:8 row_mask:0xf bank_mask:{bank}", 'perm', wr=d.regs(), rd=src.regs() + d.regs())
        for i in range(2): E(valu('v_permlane16_swap_b32', v(XR + i), v(XR + 2 + i), rmw=True, extra_wr=[v(XR + 2 + i)]))
        for i in range(2): E(valu('v_mov_b32', v(T + i), v(XR + i)))
        for i in range(2): E(dpp(v(XR + i), v(XR + 2 + i), '0xc'))
        for i in range(2): E(dpp(v(XR + 2 + i), v(T + i), '0x3'))
        E(bstore('buffer_store_dwordx4', v(XR, 4), vX4, sOUT, sXO_, flags=CFG.get('oflags', 'sc1')))
        E(valu('v_mov_b32', vO, OOB)); E(bstore('buffer_store_dword', vO, vO, sOUT, 0))
        return
    E(bstore('buffer_store_dwordx2', v(XR, 2), vXO, sOUT, sXO_)); E(bstore('buffer_store_dwordx2', v(XR + 2, 2), vXO, sOUT, sXO_, 32))
def proc_all(E, L, sXO_, pre, loads):
    loads = list(loads)
    n = proc_sum(E, L, range(NPART), 2 + pre, loads)
    proc_fin(E, L, sXO_, pre + n, loads)

def acc_part(E, L, k):
    acc = RB_ if k < NS else RB_ + 8
    for q in range(4):
        x = v(L + 4 * k + q)
        if k in (0, NS):
            E(valu('v_lshlrev_b32', v(acc + 2 * q), 16, x)); E(valu('v_and_b32', v(acc + 2 * q + 1), sT3, x))
        else:
            E(valu('v_dot2c_f32_bf16', v(acc + 2 * q), sD0, x, rmw=True)); E(valu('v_dot2c_f32_bf16', v(acc + 2 * q + 1), sD1, x, rmw=True))
def stream(E, segs, hooks=None):
    W = CFG.get('rwin', 8); FL = CFG.get('fflags', 'sc1')
    seq = []
    for (L, sP, sX_, ks, wx, fin) in segs:
        if wx:
            for it in ld_x(L, sX_): seq.append((it, None))
        ks = list(ks)
        for j, k in enumerate(ks):
            it = [add(sT2, sP, k * PSTR()), bload('buffer_load_dwordx4', v(L + 4 * k, 4), vLD, sWS, sT2, flags=FL)]
            last = fin and j == len(ks) - 1
            seq.append((it, (lambda L=L, k=k, last=last, sX_=sX_: (acc_part(E, L, k), proc_fin(E, L, sX_, None, []) if last else None, last)[2])))
    E(smov(sT3, 0xffff0000))
    n = len(seq); issued = 0
    extra_at = []
    for c in range(n):
        while issued < min(n, c + W): E(seq[issued][0]); issued += 1
        if hooks and c in hooks:
            for _ in range(hooks[c](issued + sum(1 for e in extra_at))): extra_at.append(issued)
            E(smov(sT3, 0xffff0000))
        if seq[c][1] is None: continue
        E(waitvm(issued - 1 - c + sum(1 for e in extra_at if e > c)))
        if seq[c][1]():
            extra_at += [issued, issued]

def body_items(E, n, its, two, ni, ensure, refresh, done, ST, seg, final_flag, poll_hook, LATE, L0, L1, FOUR, sMID, offs, sPT):
    if n == 'M' and CFG.get('m3'):
        ensure(its[2], 1, 1); ST(its[0])
        stream(E, [seg(0, L0), seg(1, L1), seg(2, L0)], {4: (lambda _: (E(ab_load()), 1)[1])})
        for i in range(3): done(its[i])
        return
    E(salu('s_min_u32', sT2, sRS, sRF)); E(salu('s_cmp_lt_u32', None, its[two - 1], sT2)); E(raw(f"s_cbranch_scc0 L_{n}_sl"))
    ST(its[0])
    AB = CFG.get('abn')
    def ab_hook(_): E(ab_load()); return 1
    hooks = {(NPART + 2) * two - CFG.get('pollat', 8): poll_hook}
    if AB:
        if ni < 3: hooks = {}
        hooks[14 if LATE else 4] = ab_hook
    if LATE: hooks[CFG.get('flagat', 3) if n == 'A' else 0] = final_flag
    stream(E, [seg(0, L0), seg(1, L1)][:two], hooks)
    ST(51)
    E(raw(f"s_branch L_{n}_j"))
    E(label(f"L_{n}_sl"))
    if LATE and two == 2 and CFG.get('mid1', 1):
        E(salu('s_min_u32', sT2, sRS, sRF)); E(salu('s_cmp_lt_u32', None, its[0], sT2)); E(raw(f"s_cbranch_scc0 L_{n}_s0"))
        ST(52)
        stream(E, [seg(0, L0)], {CFG.get('flagat', 3): final_flag, 12: poll_hook}); done(its[0])
        refresh(2); ensure(its[1], 1, 1)
        stream(E, [seg(1, L1)], {11: poll_hook, 3: ab_hook} if AB else {11: poll_hook})
        E(raw(f"s_branch L_{n}_j"))
        E(label(f"L_{n}_s0"))
    if LATE: final_flag(0)
    for i in range(two):
        ensure(its[i], 1, 1)
        hk = {11: poll_hook} if (i == two - 1 and not (AB and ni < 3)) else {}
        if AB and i == two - 1: hk[4] = ab_hook
        stream(E, [seg(i, L0)], hk); done(its[i])
    E(label(f"L_{n}_j"))
    for i in range(two): done(its[i])
    if FOUR or ((CFG.get('asg') == 3 or CFG.get('bal')) and n == 'A'):
        E(salu('s_cmp_gt_u32', None, sMID, 35)); E(raw(f"s_cbranch_scc1 L_{n}_nm"))
        refresh(2)
        ensure(sMID, 1, 1); ST(sMID)
        E(offs(sMID, sXP[0]))
        stream(E, [seg(0, L1)], {13: poll_hook}); done(sMID)
        E(label(f"L_{n}_nm"))
    def warm():
        if not CFG.get('warm', 1): return
        E(valu('v_mov_b32', v(240), vLD)); E(valu('v_mov_b32', v(241), vX4)); E(valu('v_mov_b32', vLD, OOB)); E(valu('v_mov_b32', vX4, OOB))
        E(raw(f"s_call_b64 {sRET2}, L_{n}_ft"))
        E(valu('v_mov_b32', vLD, v(240))); E(valu('v_mov_b32', vX4, v(241)))
    if ni == 3:
        if CFG.get('asg') == 3:
            E(salu('s_cmp_lt_u32', None, its[2], 36)); E(raw(f"s_cbranch_scc1 L_{n}_h3"))
            E(red_poll(True)[1]); E(waitvm(0)); E(raw(f"s_branch L_{n}_fin")); E(label(f"L_{n}_h3"))
        refresh(2, AB and CFG.get('abx', 1))
        if CFG.get('nof'):
            E(salu('s_cmp_gt_u32', None, sMD2, 35)); E(raw(f"s_cbranch_scc1 L_{n}_k1"))
            ensure(sMD2, 1, 1); E(offs(sMD2, sXP[0])); ST(sMD2)
            E(salu('s_cmp_lt_u32', None, its[2], sRS)); E(raw(f"s_cbranch_scc0 L_{n}_k0"))
            E(salu('s_cmp_lt_u32', None, its[2], sRF)); E(raw(f"s_cbranch_scc1 L_{n}_k0"))
            warm()
            stream(E, [seg(0, L1), seg(2, L0, range(NS), True, False)], {20: poll_hook.sh}); done(sMD2)
            E(raw(f"s_branch L_{n}_k2"))
            E(label(f"L_{n}_k0"))
            stream(E, [seg(0, L1)], {11: poll_hook}); done(sMD2)
            refresh(2)
            E(label(f"L_{n}_k1"))
        if CFG.get('pw') == 2 and n == 'A':
            E(salu('s_cmp_eq_u32', None, sMD2, 0)); E(raw(f"s_cbranch_scc0 L_{n}_old"))
            vQ, vZ = v(242), v(243); FM_ = (1 << NPART) - (1 << NS); SM_ = (1 << NS) - 1
            E(valu('v_min_u32', vQ, NPART * 16, vLANE16)); E(valu('v_lshrrev_b32', vQ, 2, vQ))
            E(valu('v_mov_b32', vZ, OOB)); E(smov(sT2, 4 * NPART)); E(raw(f"v_writelane_b32 {vZ}, {sT2}, 0", 'valu', wr=[vZ], rd=[sT2, vZ]))
            E(shr(sC, its[2], 2))
            def drop(): return bstore('buffer_store_dword', vZ, vZ, sWS, sPV, flags='sc1')
            def test(mask):
                E(raw(f"v_cmp_ge_u32 vcc, {sC}, {vP}", 'valu', wr=['vcc'], rd=[vP, sC])); E(nop(1))
                E(raw(f"s_and_b32 {sI}, vcc_lo, {hex(FM_)}", 'salu', wr=[sI], rd=['vcc']))
                E(raw(f"s_and_b32 {sT2}, vcc_lo, {hex(mask)}", 'salu', wr=[sT2], rd=['vcc']))
            def waitpw(tag, mask):
                L = f"L_{n}_{tag}"
                E(smov(sSP, 0))
                E(label(L + "0"))
                E(bload('buffer_load_dword', vP, vQ, sWS, sPV, flags='sc1'))
                E(salu('s_and_b32', sT2, sSP, 3)); E(salu('s_cmp_eq_u32', None, sT2, sWAVE)); E(raw(f"s_cbranch_scc0 {L}1"))
                E(drop()); E(waitvm(1)); E(raw(f"s_branch {L}2"))
                E(label(L + "1")); E(waitvm(0))
                E(label(L + "2"))
                test(mask); E(raw(f"s_cbranch_scc0 {L}3"))
                E(add(sSP, sSP, 1)); E(salu('s_cmp_gt_u32', None, sSP, 4 * CFG.get('spin', 4000))); E(raw(f"s_cbranch_scc1 {L}4"))
                E(raw(f"s_sleep {CFG.get('pwsleep', 2)}")); E(raw(f"s_branch {L}0"))
                E(label(L + "4"))
                E(valu('v_lshlrev_b32', vO, 4, vLANE16)); E(valu('v_mov_b32', vIT, OOB)); E(valu('v_mov_b32', vA, 1))
                E(raw(f"v_cmp_gt_u32 vcc, 0x100, {vLANE16}", 'valu', wr=['vcc'], rd=[vLANE16])); E(valu('v_cndmask_b32', vO, vIT, vO, 'vcc'))
                E(raw(f"s_lshl2_add_u32 {sT2}, {its[2]}, {sPB}", 'salu', wr=[sT2], rd=[its[2], sPB])); E(add(sT2, sT2, ABN))
                E(bstore('buffer_store_dword', vA, vO, sWS, sT2, flags='sc1')); E(waitvm(0))
                E(drop()); E(waitvm(0))
                E(bload('buffer_load_dword', vP, vQ, sWS, sPV, flags='sc1')); E(waitvm(0))
                test(SM_ | FM_); E(raw(f"s_cbranch_scc1 L_{n}_exit"))
                E(label(L + "3"))
            E(salu('s_min_u32', sT2, sRS, sRF)); E(salu('s_cmp_lt_u32', None, its[2], sT2)); E(raw(f"s_cbranch_scc1 L_{n}_f3"))
            E(salu('s_cmp_lt_u32', None, its[2], sRS)); E(raw(f"s_cbranch_scc1 L_{n}_ps"))
            waitpw('ws', SM_)
            E(salu('s_cmp_eq_u32', None, sI, 0)); E(raw(f"s_cbranch_scc1 L_{n}_f3"))
            E(label(f"L_{n}_ps")); ST(its[2])
            warm()
            stream(E, [seg(2, L0, range(NS), True, False)], {5: (lambda _: (E(drop()), 1)[1])})
            waitpw('wf', FM_); ST(50)
            E(raw(f"s_call_b64 {sRET2}, L_{n}_ft")); E(raw(f"s_branch L_{n}_exit"))
            E(label(f"L_{n}_ft"))
            stream(E, [seg(2, L0, range(NS, NPART), False, True)])
            E(raw(f"s_setpc_b64 {sRET2}"))
            E(label(f"L_{n}_old"))
            ensure(its[2], 1, 1)
            E(label(f"L_{n}_f3"))
            stream(E, [seg(2, L0)])
            done(its[2])
            E(salu('s_cmp_eq_u32', None, sMD2, 0)); E(raw(f"s_cbranch_scc1 L_{n}_exit")); E(raw(f"s_branch L_{n}_fb"))
            return
        ensure(its[2], 1, 0); ST(its[2])
        E(salu('s_cmp_lt_u32', None, its[2], sRF)); E(raw(f"s_cbranch_scc1 L_{n}_f3"))
        if CFG.get('rep') and n == 'A':
            warm()
            stream(E, [seg(2, L0, range(NS), True, False)], {4: poll_hook.sh})
            E(label(f"L_{n}_k2"))
            E(salu('s_cmp_eq_u32', None, sWAVE, 0)); E(raw(f"s_cbranch_scc0 L_{n}_w2"))
            E(waitvm(0))
            E(raw(f"v_cmp_ne_u32 vcc, 0, {vP}", 'valu', wr=['vcc'], rd=[vP])); E(nop(1))
            E(raw(f"s_lshr_b64 {sAB}, vcc, {NPART + 1}", 'salu', wr=[sAB], rd=['vcc'])); E(salu('s_and_b32', sAB[1], sAB[1], 15))
            E(salu('s_or_b32', sT2, sAB[0], sAB[1])); E(csel(sRS, 1, 0))
            E(shr(sC, its[2], 2)); E(mul(sI, sROLE, NREP * 128)); E(add(sI, sI, sPB)); E(add(sI, sI, 2048)); E(add(sSP, sI, NREP * 128))
            E(label(f"L_{n}_w0"))
            E(bload('buffer_load_dword', vP, vL5, sWS, sI, flags='sc1')); E(waitvm(0))
            E(raw(f"v_cmp_ge_u32 vcc, {sC}, {vP}", 'valu', wr=['vcc'], rd=[vP, sC])); E(nop(1))
            E(raw(f"s_and_b32 {sT2}, vcc_lo, {hex((1 << NPART) - (1 << NS))}", 'salu', wr=[sT2], rd=['vcc'])); E(csel(sRF, 0, 36))
            E(raw(f"s_cbranch_scc0 L_{n}_w1"))
            E(add(sI, sI, 128)); E(salu('s_cmp_lt_u32', None, sI, sSP)); E(raw(f"s_cbranch_scc0 L_{n}_w1"))
            E(raw(f"s_sleep {CFG.get('rsleep', 6)}")); E(raw(f"s_branch L_{n}_w0"))
            E(label(f"L_{n}_w1")); E(red_pub(sPAR))
            E(label(f"L_{n}_w2")); E(barrier()); E(red_get(sPAR)); E(salu('s_xor_b32', sPAR, sPAR, 12))
            E(smov(sMID, sRS))
            ensure(its[2], 0, 1); ST(50)
            E(raw(f"s_call_b64 {sRET2}, L_{n}_ft")); done(its[2])
            E(salu('s_cmp_eq_u32', None, sMID, 0)); E(raw(f"s_cbranch_scc1 L_{n}_exit")); E(raw(f"s_branch L_{n}_fb"))
            E(label(f"L_{n}_ft"))
            stream(E, [seg(2, L0, range(NS, NPART), False, True)])
            E(raw(f"s_setpc_b64 {sRET2}"))
        elif CFG.get('pw') and n == 'A':
            E(salu('s_cmp_eq_u32', None, sMD2, 0)); E(raw(f"s_cbranch_scc0 L_{n}_old"))
            warm()
            vQ, vZ = v(242), v(243)
            E(valu('v_min_u32', vQ, NPART * 16, vLANE16)); E(valu('v_lshrrev_b32', vQ, 2, vQ))
            E(valu('v_mov_b32', vZ, OOB)); E(smov(sT2, 4 * NPART)); E(raw(f"v_writelane_b32 {vZ}, {sT2}, 0", 'valu', wr=[vZ], rd=[sT2, vZ]))
            def drop_hook(_): E(bstore('buffer_store_dword', vZ, vZ, sWS, sPV, flags='sc1')); return 1
            stream(E, [seg(2, L0, range(NS), True, False)], {5: drop_hook})
            E(shr(sC, its[2], 2)); E(smov(sSP, 0))
            E(label(f"L_{n}_pw0"))
            E(bload('buffer_load_dword', vP, vQ, sWS, sPV, flags='sc1'))
            E(salu('s_and_b32', sT2, sSP, 3)); E(salu('s_cmp_eq_u32', None, sT2, sWAVE)); E(raw(f"s_cbranch_scc0 L_{n}_pw1"))
            E(bstore('buffer_store_dword', vZ, vZ, sWS, sPV, flags='sc1')); E(waitvm(1)); E(raw(f"s_branch L_{n}_pw2"))
            E(label(f"L_{n}_pw1")); E(waitvm(0))
            E(label(f"L_{n}_pw2"))
            E(raw(f"v_cmp_ge_u32 vcc, {sC}, {vP}", 'valu', wr=['vcc'], rd=[vP, sC])); E(nop(1))
            E(raw(f"s_and_b32 {sT2}, vcc_lo, {hex((1 << NPART) - (1 << NS))}", 'salu', wr=[sT2], rd=['vcc'])); E(raw(f"s_cbranch_scc0 L_{n}_pw3"))
            E(add(sSP, sSP, 1)); E(salu('s_cmp_gt_u32', None, sSP, 4 * CFG.get('spin', 4000))); E(raw(f"s_cbranch_scc1 L_{n}_pw4"))
            E(raw(f"s_sleep {CFG.get('pwsleep', 2)}")); E(raw(f"s_branch L_{n}_pw0"))
            E(label(f"L_{n}_pw4"))
            E(valu('v_lshlrev_b32', vO, 4, vLANE16)); E(valu('v_mov_b32', vIT, OOB)); E(valu('v_mov_b32', vA, 1))
            E(raw(f"v_cmp_gt_u32 vcc, 0x100, {vLANE16}", 'valu', wr=['vcc'], rd=[vLANE16])); E(valu('v_cndmask_b32', vO, vIT, vO, 'vcc'))
            E(raw(f"s_lshl2_add_u32 {sT2}, {its[2]}, {sPB}", 'salu', wr=[sT2], rd=[its[2], sPB])); E(add(sT2, sT2, ABN))
            E(bstore('buffer_store_dword', vA, vO, sWS, sT2, flags='sc1')); E(waitvm(0))
            E(bstore('buffer_store_dword', vZ, vZ, sWS, sPV, flags='sc1')); E(waitvm(0))
            E(bload('buffer_load_dword', vP, vQ, sWS, sPV, flags='sc1')); E(waitvm(0))
            E(raw(f"v_cmp_ge_u32 vcc, {sC}, {vP}", 'valu', wr=['vcc'], rd=[vP, sC])); E(nop(1))
            E(raw(f"s_and_b32 {sT2}, vcc_lo, {hex((1 << NPART) - (1 << NS))}", 'salu', wr=[sT2], rd=['vcc'])); E(raw(f"s_cbranch_scc1 L_{n}_exit"))
            E(label(f"L_{n}_pw3")); ST(50)
            E(raw(f"s_call_b64 {sRET2}, L_{n}_ft")); E(raw(f"s_branch L_{n}_exit"))
            E(label(f"L_{n}_ft"))
            stream(E, [seg(2, L0, range(NS, NPART), False, True)])
            E(raw(f"s_setpc_b64 {sRET2}"))
            E(label(f"L_{n}_old"))
            stream(E, [seg(2, L0, range(NS), True, False)])
            ensure(its[2], 0, 1)
            E(raw(f"s_call_b64 {sRET2}, L_{n}_ft")); E(raw(f"s_branch L_{n}_f4"))
        else:
            stream(E, [seg(2, L0, range(NS), True, False)], {6: poll_hook})
            refresh(0)
            ensure(its[2], 0, 1); ST(50)
            stream(E, [seg(2, L0, range(NS, NPART), False, True)], {0: poll_hook.sh} if not AB else None)
            E(raw(f"s_branch L_{n}_f4"))
        E(label(f"L_{n}_f3"))
        stream(E, [seg(2, L0)], {11: poll_hook.sh} if not AB else None)
        E(label(f"L_{n}_f4"))
        done(its[2])
        if AB and CFG.get('abx', 1):
            E(salu('s_cmp_eq_u32', None, sMD2, 0)); E(raw(f"s_cbranch_scc1 L_{n}_exit")); E(raw(f"s_branch L_{n}_fb"))


def reducer(kind):
    p = Prog(); E = p.emit; n = kind; FL = CFG.get('fflags', 'sc1')
    PRIV[0] = (kind == 'A')
    def ST(code):
        if CFG['stamps'] != 2: return
        E(raw(f"s_memtime {sSTAMP}", wr=[sSTAMP])); E(raw("s_waitcnt lgkmcnt(0)")); E(salu('s_sub_u32', s(98), s(98), s(100)))
        E(shl(s(98), s(98), 6)); E(salu('s_or_b32', s(98), s(98), code))
        E(add(s(97), s(97), 16)); E(salu('s_min_u32', s(97), s(97), 11 * 16))
        E(raw(f"v_cmp_eq_u32 vcc, s97, {vLANE16}", 'valu', wr=['vcc'], rd=[s(97), vLANE16])); E(valu('v_mov_b32', v(27), s(98)))
        E(valu('v_cndmask_b32', vSTAMP, vSTAMP, v(27), 'vcc'))
    def offs(item, sX_):
        return [salu('s_and_b32', sT2, item, 3), shr(sC, item, 2), shl(sT3, sRB, 2), add(sT2, sT2, sT3), mul(sPART, sT2, PWAVE), add(sX_, sPART, sXW),
                shl(sT3, sC, 12), add(sT3, sT3, sPWv), add(sPART, sPART, sT3), shl(sT3, sC, 7), add(sX_, sX_, sT3)]
    k_ = [0]
    def ensure(item, s_, f_):
        L = f"L_{n}_en{k_[0]}"; k_[0] += 1
        if s_ and f_: E(salu('s_min_u32', sT2, sRS, sRF)); r = sT2
        else: r = sRS if s_ else sRF
        E(salu('s_cmp_lt_u32', None, item, r)); E(raw(f"s_cbranch_scc1 {L}"))
        E(smov(sI, item)); E(smov(sC, (1 if s_ else 0) | (2 if f_ else 0)))
        E(raw(f"s_call_b64 {sRET2}, L_{n}_sync"))
        E(salu('s_cmp_eq_u32', None, sTO, 0)); E(raw(f"s_cbranch_scc0 L_{n}_fb"))
        E(label(L))
    def done(item): E(raw(f"s_bitset0_b64 {sRM}, {item}", 'salu', wr=[sRM], rd=[sRM, item]))
    E(label(f"L_{n}_red"))
    if CFG.get('rdelay'):
        if n == 'A': (E(waitvm(0)), E(barrier()), E(valu('v_mov_b32', vPRG, 9)), E(bstore('buffer_store_dword', vPRG, vCT, sWS, 0, flags='sc1')))
        for _ in range({'A': 30, 'M': 24, 'F': 14}[n]): E(raw("s_sleep 16"))
    E(red_get(LDSC))
    if CFG.get('rdelay'): E(smov(sRS, 36)); E(smov(sRF, 36))
    E(valu('v_lshrrev_b32', vO, 4, vLANE16)); E(valu('v_and_b32', vXO, 7, vO)); E(valu('v_lshlrev_b32', vLD, 4, vXO))
    E(smov(sT2, 1152)); E(valu('v_mul_u32_u24', vXO, sT2, vXO))
    E(valu('v_lshrrev_b32', vA, 3, vO)); E(valu('v_lshl_add_u32', vX4, vA, 4, vXO))
    E(valu('v_bfe_u32', vA, vO, 3, 2)); E(valu('v_lshl_add_u32', vXO, vA, 3, vXO)); E(valu('v_lshl_add_u32', vLD, vA, 8, vLD))
    E(valu('v_lshrrev_b32', vA, 5, vO)); E(valu('v_lshl_add_u32', vXO, vA, 6, vXO)); E(valu('v_lshl_add_u32', vLD, vA, 11, vLD))
    E(mul(sXW, sWAVE, 8 * 1152)); E(shr(sPWv, sWAVE, 1)); E(shl(sPWv, sPWv, 10)); E(salu('s_and_b32', sT2, sWAVE, 1)); E(shl(sT2, sT2, 7)); E(add(sPWv, sPWv, sT2))
    L0, L1 = 72, 76 + 4 * NPART
    E(smov(sD0, 0x3f80)); E(smov(sD1, 0x3f800000))
    E(raw(f"s_mov_b64 {sRM}, 0", 'salu', wr=[sRM]))
    FOUR = CFG.get('four')
    sMID = s(48 + 0) if False else s(83)
    def nib(dst, tab, base):
        E(smov(sCD[0], sum(tab[i] << (4 * i) for i in range(8)))); E(smov(sCD[1], tab[8] | (tab[9] << 4)))
        E(shl(sT2, sROLE, 2)); E(s64('s_lshr_b64', sCD, sCD, sT2)); E(salu('s_and_b32', dst, sCD[0], 15))
        E(salu('s_cmp_eq_u32', None, dst, 15)); E(csel(dst, 63 - base, dst)); E(add(dst, dst, base))
    if n == 'A':
        E(smov(sIT[0], sROLE)); E(add(sIT[1], sROLE, NA))
        if CFG.get('bal'):
            nib(sIT[1], [x - 10 for x in BAL2], 10); nib(sIT[2], [x - 21 for x in BAL3], 21); nib(sMID, [min(x - 16, 15) for x in BALM], 16)
            E(raw(f"s_bitset1_b64 {sRM}, {sMID}", 'salu', wr=[sRM], rd=[sRM, sMID]))
        elif CFG.get('asg') == 2: E(add(sIT[2], sROLE, 16))
        elif CFG.get('asg') == 3:
            E(add(sMID, sROLE, 16)); E(raw(f"s_bitset1_b64 {sRM}, {sMID}", 'salu', wr=[sRM], rd=[sRM, sMID]))
            E(salu('s_and_b32', sT2, sROLE, 1)); E(shr(sIT[2], sROLE, 1)); E(add(sIT[2], sIT[2], 24)); E(salu('s_cmp_eq_u32', None, sT2, 0)); E(csel(sIT[2], sIT[2], 63))
        elif CFG.get('l844'): E(add(sIT[2], sROLE, 28))
        elif FOUR:
            nib(sMID, [0, 15, 1, 2, 15, 3, 4, 5, 6, 7], 20); nib(sIT[2], [0, 1, 15, 2, 3, 15, 4, 5, 6, 7], 28)
            E(raw(f"s_bitset1_b64 {sRM}, {sMID}", 'salu', wr=[sRM], rd=[sRM, sMID]))
        else:
            nib(sIT[2], [0, 1, 15, 2, 3, 15, 4, 5, 6, 7], 28)
            E(salu('s_cmp_eq_u32', None, sROLE, 2)); E(csel(sIT[2], 23 if CFG.get('m3') else 22, sIT[2])); E(salu('s_cmp_eq_u32', None, sROLE, 5)); E(csel(sIT[2], 24 if CFG.get('m3') else 21, sIT[2]))
            if CFG.get('nof'):
                nib(sMD2, CFG['nof'], 23)
                E(raw(f"s_bitset1_b64 {sRM}, {sMD2}", 'salu', wr=[sRM], rd=[sRM, sMD2]))
        its = sIT
    elif CFG.get('asg') == 2:
        if n == 'M': E(add(sIT[0], sROLE, 16)); E(add(sIT[1], sROLE, 20)); its = sIT[:2]
        else: E(add(sIT[0], sROLE, 20)); its = sIT[:1]
    elif CFG.get('asg') == 3:
        E(add(sIT[0], sROLE, 20)); its = sIT[:1]
    elif CFG.get('l844'):
        if n == 'M': E(add(sIT[0], sROLE, 8)); E(add(sIT[1], sROLE, 12)); its = sIT[:2]
        else: E(add(sIT[0], sROLE, 12)); its = sIT[:1]
    elif n == 'M' and CFG.get('m3'): E(smov(sIT[0], 20)); E(smov(sIT[1], 21)); E(smov(sIT[2], 22)); its = sIT
    elif n == 'M': E(smov(sIT[0], 20)); its = sIT[:1]
    else:
        E(add(sIT[0], sROLE, 12)); its = sIT[:1]
    if (FOUR and n != 'A') or (CFG.get('nof') and n == 'F'):
        its = []
        E(waitvm(0)); E(red_poll()[1]); E(waitvm(0)); E(raw(f"s_branch L_{n}_fin"))
    if (CFG.get('bal') or CFG.get('m3')) and n == 'F':
        E(salu('s_cmp_ge_u32', None, sROLE, 13)); E(raw(f"s_cbranch_scc1 L_{n}_hi"))
        E(waitvm(0)); E(ab_load() if CFG.get('abn') else red_poll()[1]); E(waitvm(0)); E(raw(f"s_branch L_{n}_fin")); E(label(f"L_{n}_hi"))
    for it in its: E(raw(f"s_bitset1_b64 {sRM}, {it}", 'salu', wr=[sRM], rd=[sRM, it]))
    E(salu('s_and_b32', sRM[1], sRM[1], 15))
    def refresh(wait, ab=False):
        L = f"L_{n}_rf{k_[0]}"; k_[0] += 1
        E(salu('s_cmp_eq_u32', None, sWAVE, 0)); E(raw(f"s_cbranch_scc0 {L}"))
        E(waitvm(wait)); E(red_eval())
        if ab: E(ab_eval()); E(salu('s_or_b32', sT2, sAB[0], sAB[1])); E(csel(sTO, 1, 0))
        E(red_pub(sPAR))
        E(label(L)); E(barrier()); E(red_get(sPAR)); E(salu('s_xor_b32', sPAR, sPAR, 12))
        if ab: E(smov(sMD2, sTO)); E(smov(sTO, 0))
    ALLD = lambda L, sx: ld_part(L, range(NPART), FL) + ld_x(L, sx)
    LATE = n in CFG.get('lateflag', 'A') + CFG.get('pre', '')
    sPT = [s(47), s(67 - 2), s(70)]
    def offs2(i): return offs(its[i], sXP[i]) + ([smov(sPT[i], sPART)] if i else [])
    def final_flag(wait):
        E(waitvm(wait)); E(barrier())
        E(valu('v_mov_b32', vPRG, 9))
        if CFG.get('rep') and n in 'FM': E(bstore('buffer_store_dword', vPRG, vCR, sWS, 0, flags='sc1'))
        E(bstore('buffer_store_dword', vPRG, vCT, sWS, 0, flags='sc1'))
        return 2 if (CFG.get('rep') and n in 'FM') else 1
    def poll_hook(_): E(red_poll()[1]); return 2
    def poll_sh(_): E(red_poll(True)[1]); return 2
    poll_hook.sh = poll_sh
    seg = lambda i, L, ks=range(NPART), wx=True, fin=True: (L, sPT[i], sXP[i], ks, wx, fin)
    ni = len(its)
    for i in reversed(range(ni)): E(offs2(i))
    two = min(ni, 2)
    if ni: body_items(E, n, its, two, ni, ensure, refresh, done, ST, seg, final_flag, poll_hook, LATE, L0, L1, FOUR, sMID, offs, sPT)
    E(label(f"L_{n}_fin"))
    E(salu('s_cmp_eq_u32', None, sWAVE, 0)); E(raw(f"s_cbranch_scc0 L_{n}_b4"))
    if CFG.get('abn'): E(ab_eval())
    else:
        E(waitvm(2))
        E(raw(f"v_cmp_ne_u32 vcc, 0, {vP}", 'valu', wr=['vcc'], rd=[vP])); E(nop(1))
        E(raw(f"s_lshr_b64 {sAB}, vcc, {NPART + 1}", 'salu', wr=[sAB], rd=['vcc'])); E(salu('s_and_b32', sAB[1], sAB[1], 15))
    E(salu('s_or_b32', sT2, sAB[0], sAB[1])); E(csel(sTO, 1, 0))
    E(salu('s_cmp_ge_u32', None, sOK, 16)); E(csel(sTO, sTO, 1)); E(red_pub(sPAR))
    E(label(f"L_{n}_b4")); E(barrier()); E(red_get(sPAR)); E(salu('s_xor_b32', sPAR, sPAR, 12))
    E(salu('s_cmp_eq_u32', None, sTO, 0)); E(raw(f"s_cbranch_scc1 L_{n}_exit"))
    E(label(f"L_{n}_fb"))
    E(waitvm(0))
    E(salu('s_cmp_eq_u32', None, sWAVE, 0)); E(raw(f"s_cbranch_scc0 L_{n}_fb2"))
    if CFG.get('abn'):
        E(raw(f"s_mov_b64 {sCD}, {sRM}", 'salu', wr=[sCD], rd=[sRM])); E(valu('v_mov_b32', vA, 1))
        E(valu('v_lshlrev_b32', vO, 4, vLANE16)); E(valu('v_mov_b32', vIT, OOB))
        E(raw(f"v_cmp_gt_u32 vcc, 0x100, {vLANE16}", 'valu', wr=['vcc'], rd=[vLANE16])); E(valu('v_cndmask_b32', vO, vIT, vO, 'vcc'))
        E(label(f"L_{n}_mk"))
        E(raw(f"s_cmp_eq_u64 {sCD}, 0", 'salu', rd=[sCD])); E(raw(f"s_cbranch_scc1 L_{n}_mk1"))
        E(raw(f"s_ff1_i32_b64 {sT2}, {sCD}", 'salu', wr=[sT2], rd=[sCD])); E(raw(f"s_bitset0_b64 {sCD}, {sT2}", 'salu', wr=[sCD], rd=[sCD, sT2]))
        E(raw(f"s_lshl2_add_u32 {sT2}, {sT2}, {sPB}", 'salu', wr=[sT2], rd=[sT2, sPB])); E(add(sT2, sT2, ABN))
        E(bstore('buffer_store_dword', vA, vO, sWS, sT2, flags='sc1')); E(raw(f"s_branch L_{n}_mk"))
        E(label(f"L_{n}_mk1")); E(waitvm(0))
        E(red_poll()[0]); E(waitvm(0))
        E(valu('v_mov_b32', vO, OOB)); E(smov(sT2, 36 * 4)); E(raw(f"v_writelane_b32 {vO}, {sT2}, 1", 'valu', wr=[vO], rd=[sT2, vO]))
        E(bstore('buffer_store_dword', vA, vO, sWS, sAV_, flags='sc1'))
        E(valu('v_mov_b32', vIT, 0)); E(valu('v_mov_b32', vO, OOB)); E(raw(f"v_writelane_b32 {vO}, 0, 0", 'valu', wr=[vO], rd=[vO]))
        E(I(f"buffer_atomic_add {vIT}, {vO}, {sWS}, {sAV_} offen sc1", 'vstore', rd=vIT.regs() + vO.regs() + sWS.regs() + sAV_.regs(), units=3))
        E(waitvm(0)); E(ab_load()); E(red_poll(True)[1]); E(waitvm(0)); E(valu('v_readfirstlane_b32', sOK, vD)); E(red_eval()); E(ab_eval())
    else:
        E(s64('s_lshl_b64', sCD, sRM, NPART + 1)); E(valu('v_mov_b32', vO, OOB)); E(valu('v_mov_b32', vA, 1))
        E(valu('v_cndmask_b32', vO, vO, vL4, sCD)); E(bstore('buffer_store_dword', vA, vO, sWS, sPB, flags='sc1')); E(waitvm(0))
        E(red_poll()[0]); E(waitvm(0)); E(red_poll(True)[1]); E(waitvm(0)); E(valu('v_readfirstlane_b32', sOK, vD)); E(red_eval())
    E(salu('s_min_u32', sT2, sRS, sRF)); E(salu('s_cmp_ge_u32', None, sOK, 16)); E(csel(sT2, sT2, 0))
    E(salu('s_bfm_b64', sCD, sT2, 0, scc_w=False)); E(s64('s_or_b64', sAB, sAB, sRM)); E(s64('s_and_b64', sAB, sAB, sCD))
    E(label(f"L_{n}_fb1"))
    E(raw(f"s_ff1_i32_b64 {sRS}, {sAB}", 'salu', wr=[sRS], rd=[sAB])); E(salu('s_and_b32', sRS, sRS, 255))
    E(raw(f"s_bitset0_b64 {sAB}, {sRS}", 'salu', wr=[sAB], rd=[sAB, sRS])); E(red_pub(sPAR))
    E(label(f"L_{n}_fb2")); E(barrier()); E(red_get(sPAR)); E(salu('s_xor_b32', sPAR, sPAR, 12))
    E(salu('s_cmp_ge_u32', None, sRS, 36)); E(raw(f"s_cbranch_scc1 L_{n}_exit"))
    E(offs(sRS, sXP[0])); E(ld_part(L0, range(NPART), FL) + ld_x(L0, sXP[0])); E(waitvm(0)); proc_all(E, L0, sXP[0], 0, [])
    E(salu('s_cmp_eq_u32', None, sWAVE, 0)); E(raw(f"s_cbranch_scc1 L_{n}_fb1")); E(raw(f"s_branch L_{n}_fb2"))
    E(label(f"L_{n}_exit"))
    ST(60)
    if CFG['stamps']: E(raw(f"s_setpc_b64 {sRET}"))
    else: E(raw("s_endpgm"))
    E(label(f"L_{n}_sync"))
    E(salu('s_cmp_eq_u32', None, sWAVE, 0)); E(raw(f"s_cbranch_scc0 L_{n}_sy2"))
    E(smov(sSP, 0)); E(red_poll()[1][0])
    E(label(f"L_{n}_sy0"))
    E(salu('s_cmp_ge_u32', None, sOK, 16)); E(raw(f"s_cbranch_scc1 L_{n}_sy1"))
    E(red_poll()[0]); E(waitvm(0)); E(valu('v_readfirstlane_b32', sOK, vD))
    E(salu('s_cmp_ge_u32', None, sOK, 16)); E(raw(f"s_cbranch_scc0 L_{n}_syw"))
    E(label(f"L_{n}_sy1"))
    E(red_poll()[1][1]); E(red_poll()[1][0]); E(waitvm(1)); E(red_eval())
    E(salu('s_bitcmp1_b32', None, sC, 0)); E(csel(sT2, sRS, 36)); E(salu('s_bitcmp1_b32', None, sC, 1)); E(csel(sT3, sRF, 36))
    E(salu('s_min_u32', sT2, sT2, sT3)); E(salu('s_cmp_lt_u32', None, sI, sT2)); E(raw(f"s_cbranch_scc1 L_{n}_syp"))
    E(label(f"L_{n}_syw"))
    E(add(sSP, sSP, 1)); E(salu('s_cmp_gt_u32', None, sSP, CFG.get('spin', 4000))); E(csel(sTO, 1, 0)); E(raw(f"s_cbranch_scc1 L_{n}_syp"))
    E(raw(f"s_sleep {CFG.get('sleep', 1)}")); E(raw(f"s_branch L_{n}_sy0"))
    E(label(f"L_{n}_syp"))
    E(red_pub(sPAR))
    E(label(f"L_{n}_sy2")); E(barrier()); E(red_get(sPAR)); E(salu('s_xor_b32', sPAR, sPAR, 12))
    E(raw(f"s_setpc_b64 {sRET2}"))
    return p

def reduce_items(p, ni, sPART_, sXO_, srdP, srdX, srdO, vL16, vXO_, base, flags, mid=None):
    E = p.emit
    SA = base; FA = base + 8; T = base + 16
    Ls = [base + 24 + 72 * i for i in range(ni)]
    for k in range(NPART):
        if k: E(add(sPART_, sPART_, 16 * PART - (PWAVE if ni == 2 else 0)))
        for i in range(ni):
            if i: E(add(sPART_, sPART_, PWAVE))
            E(bload('buffer_load_dwordx4', v(Ls[i] + 4 * k, 4), vL16, srdP, sPART_, flags=flags))
    for i in range(ni):
        XR = Ls[i] + 68
        if i: E(add(sT2, sXO_, 32 * 1152))
        so = sT2 if i else sXO_
        E(bload('buffer_load_dwordx2', v(XR, 2), vXO_, srdX, so)); E(bload('buffer_load_dwordx2', v(XR + 2, 2), vXO_, srdX, so, 32))
    ex = 0
    if mid: mid(); ex = 1
    E(smov(sT3, 0xffff0000))
    for i in range(ni):
        L = Ls[i]; XR = L + 68
        for k in range(NPART):
            if i == 0: E(waitvm((NPART - 1 - k) * ni + (ni - 1) + 2 * ni + ex))
            acc = SA if k < 11 else FA
            for q in range(4):
                x = v(L + 4 * k + q)
                if k in (0, 11):
                    E(valu('v_lshlrev_b32', v(acc + 2 * q), 16, x)); E(valu('v_and_b32', v(acc + 2 * q + 1), sT3, x))
                else:
                    tp = v(T + 2 * q, 2)
                    E(valu('v_lshlrev_b32', tp[0], 16, x)); E(valu('v_and_b32', tp[1], sT3, x))
            if k not in (0, 11):
                for q in range(4): E(valu('v_pk_add_f32', v(acc + 2 * q, 2), v(acc + 2 * q, 2), v(T + 2 * q, 2)))
        for e in range(8): E(valu('v_exp_f32', v(T + e), v(FA + e)))
        for e in range(8): E(valu('v_add_f32', v(T + e), 1.0, v(T + e)))
        for e in range(8): E(valu('v_rcp_f32', v(T + e), v(T + e)))
        for e in range(8): E(valu('v_mul_f32', v(FA + e), f2u(-math.log(2.0)), v(FA + e)))
        for e in range(8): E(valu('v_mul_f32', v(FA + e), v(FA + e), v(T + e)))
        if i == 0: E(waitvm(ex if ni == 1 else 0))
        for q in range(4):
            E(valu('v_lshlrev_b32', v(T + 2 * q), 16, v(XR + q))); E(valu('v_and_b32', v(T + 2 * q + 1), sT3, v(XR + q)))
        for e in range(8): E(valu('v_fma_f32', v(T + e), v(SA + e), v(FA + e), v(T + e)))
        for q in range(4): E(valu('v_cvt_pk_bf16_f32', v(XR + q), v(T + 2 * q), v(T + 2 * q + 1)))
        if i: E(add(sXO_, sXO_, 32 * 1152))
        E(bstore('buffer_store_dwordx2', v(XR, 2), vXO_, srdO, sXO_)); E(bstore('buffer_store_dwordx2', v(XR + 2, 2), vXO_, srdO, sXO_, 32))

def build_role(kind, vm_before):
    R = Role(kind)
    CFG['shape'] = CFG.get('shapes', {}).get(kind, CFG['shape0'])
    R.ring = {'F': (216, 9), 'A': (192, 16), 'M': (200, 8)}[kind]
    if kind == 'M': R.depth = 7
    nl = CFG.get('pfl', 16)
    MS = CFG['shape'] == 'M'
    if MS:
        R.add_p1_unit, R.add_p1_half, R.epi_silu, R.epi_q = R.add_p1_unitM, R.add_p1_halfM, R.epi_siluM, R.epi_qM
    P2M = 'q16' if MS else 'pi'
    if kind == 'F' and CFG.get('l844'):
        R.ring = (208, 12); R.depth = 7
        for u in range(13): R.add_p1_unit(u, sW1, sHA, sHC, 9216, u == 0, a(16 * u, 16), R.epi_silu, last=(u == 12),
                                          inreg=[pf_run(sW2, sPF2, 832 * 1152, 10) if u >= 1 else None, pf_row('F', sW1)])
        needs = {t: [('reg', 8 * t)] for t in range(26)}
        dm = [dma_w(sW2, sFA, 0, 1152, sFC, 0), dma_w(sW2, sFA, 288 * 1152, 1152, sFC, 288 * 1152), dma_w(sW2, sFA, 576 * 1152, 1152)]
        R.add_p2([(a(0, 208), [288, 288, 256], dm, needs, sSt)], [add(x, x, 128) for x in (sFA, sFC)], pre0=lambda: set_offw(1152, P2M))
        for st in R.stages[-27:]: st.ring = (208, 12, 'restart')
    elif kind == 'M' and CFG.get('l844'):
        R.ring = (208, 8); R.depth = 7
        Q = [a(80, 32), a(112, 32)]; OA = a(144, 64)
        def mpf(u):
            if u == 0: return pf_row('M', sWQ)
            if u == 1: return lambda: pf_row_setup('M', 9216, 18, sPF1, 0) + [pf_row('M', sW1)()[1]]
            if u <= 5: return pf_row('M', sW1)
            return None
        for u in range(4): R.add_p1_unit(u, sWQ, sQA, sQC, 8192, u == 0, a(80 + 16 * u, 16), R.epi_q, key='Q', inreg=[None, mpf(u)])
        for u in range(5): R.add_p1_unit(4 + u, sW1, sHA, sHC, 9216, u == 0, a(16 * u, 16), R.epi_silu, pre=(lambda: set_offw(9216, 'S')) if u == 0 else None,
                                         last=(u == 4), key='H', inreg=[None, mpf(4 + u)])
        Ha = dict(i=0, Q=Q[0], S=Sreg, P=Preg, O=OA, LM=v(230, 8), OF=lambda kk: OA.sub(16 * kk, 8),
                  need_qk=[('acc', 80), ('acc', 96)], need_pv=[('acc', 48 + 16 * i) for i in range(4)])
        Hb = dict(i=1, Q=Q[1], S=[v(80, 16), v(96, 16)], P=[v(48, 8), v(56, 8)], O=v(160, 64), LM=v(64, 8), OF=lambda kk: OA.sub(16 * kk + 8, 8))
        R.add_pa_g([[Ha, Hb]])
        R.stages[-9].mf[-1].need.append(('acc', 48))
        R.heads = [(Ha, sPFa), (Hb, sPFa)]
        R.add_p2m(a(0, 80), [H['OF'](kk) for H in (Ha, Hb) for kk in range(4)],
                  [dma_w(sW2, sFA, 0, 1152, sFC, 0), dma_w(sWO, sOA, 0, 1152, sFC, 32 * 1152, srdC=sW2)],
                  [add(x, x, 128) for x in (sOA, sFA, sFC)], pre0=lambda: set_offw(1152, P2M))
        for st in R.stages[-18:]: st.ring = (208, 12, 'restart')
        k = pf_sched(R, 15, sK, sPFa, 131072, 16); k = pf_sched(R, k, sV, sPFa, 131072, 16)
        pf_sched(R, 17, sWO, sPFc, 256 * 1152, 36); pf_sched(R, 18, sW2, sPF2, 320 * 1152, 45)
    elif kind == 'F':
        for u in range(13): R.add_p1_unit(u, sW1, sHA, sHC, 9216, u == 0, a(16 * u, 16), R.epi_silu, last=(u == 12), inreg=[pf_run(sW2, sPF2, 832 * 1152, 10) if u >= 1 else None, pf_row('F', sW1) if CFG['pf'] >= 3 else None] if CFG['pf'] else None)
        R.add_p1_half(13, a(208, 8))
        needs = {t: [('reg', 8 * t)] for t in range(27)}
        dm = [dma_w(sW2, sFA, 0, 1152, sFC, 0), dma_w(sW2, sFA, 288 * 1152, 1152, sFC, 288 * 1152), dma_w(sW2, sFA, 576 * 1152, 1152, sFS, 0)]
        R.add_p2([(a(0, 216), [288, 288, 288], dm, needs, sSt)], [add(x, x, 128) for x in (sFA, sFC, sFS)], pre0=lambda: set_offw(1152, P2M))
        if CFG['pf']:
            pf_sched(R, 26, sW2, sPF2h, 32 * 1152, 8)
    elif kind == 'A' and CFG.get('pair'):
        OA = a(96, 64)
        Ha = dict(i=0, Q=a(0, 32), S=Sreg, P=Preg, O=OA, LM=v(230, 8), OF=lambda kk: OA.sub(16 * kk, 8),
                  need_qk=[('acc', 48), ('acc', 64)], need_pv=[('acc', 48 + 16 * i) for i in range(4)])
        Hb = dict(i=1, Q=a(32, 32), S=[v(48, 16), v(64, 16)], P=[v(80, 8), v(88, 8)], O=v(160, 64), LM=v(96, 8), OF=lambda kk: OA.sub(16 * kk + 8, 8))
        Hc = dict(i=2, Q=a(64, 32), S=Sreg, P=Preg, O=v(48, 64), LM=v(16, 8), OF=lambda kk: a(160 + 8 * kk, 8), need_pv=[('lm', 0)])
        Ha['need_qk'] += [('acc', 80)]
        pj = {1: sJQ}
        for u in range(6):
            R.add_p1_unit(u, sWQ, sQA, sQC, 8192, u == 0, a(16 * u, 16), R.epi_q, last=(u == 5), step=sJQ if u == 4 else 128,
                          inreg=[pf_run(sWO, sPFc, 384 * 1152, 11) if u >= 1 else None, pf_row('A', sWQ, pj.get(u, 128)) if CFG['pf'] >= 3 and u < 3 else None] if CFG['pf'] else None)
        R.add_pa_g([[Ha, Hb], [Hc]])
        Bf = [H['OF'](kk) for H in (Ha, Hb, Hc) for kk in range(4)]
        needs = {0: [('fin', 0), ('fin', 1)], 8: [('fin', 2)]}
        dm = [dma_w192(sWO, 0), dma_w192(sWO, 0, sOA1, sOB1)]
        R.add_p2([(Bf, [192, 192], dm, needs, sSt)], [add(x, x, 128) for x in (sOA, sOB, sOA1, sOB1)], pre0=lambda: set_offw(1152, P2M))
        R.heads = [(Ha, sPFa), (Hb, sPFa), (Hc, sPFb)]
        if CFG['pf'] >= 2:
            pf_sched(R, 10, sK, sPFa, 131072, 16); pf_sched(R, 10, sV, sPFa, 131072, 16)
            pf_sched(R, 12, sK, sPFb, 131072, 16); pf_sched(R, 12, sV, sPFb, 131072, 16)
    elif kind == 'A':
        Q = [a(32 * e, 32) for e in range(3)]; O = [a(96 + 32 * e, 32) for e in range(3)]
        for u in range(6): R.add_p1_unit(u, sWQ, sQA, sQC, 8192, u == 0, a(16 * u, 16), R.epi_q, last=(u == 5), inreg=[pf_run(sWO, sPFc, 384 * 1152, 11) if u >= 1 else None, pf_row('A', sWQ) if CFG['pf'] >= 3 and u < 5 else None] if CFG['pf'] else None)
        R.add_pa(Q, O)
        needs = {4 * e: [('fin', e)] for e in range(3)}; needs[0].append(('S', 2, 15))
        dm = [dma_w192(sWO, b * 192 * 1152) for b in range(2)]
        R.add_p2([(a(96, 96), [192, 192], dm, needs, sSt)], [add(sOA, sOA, 128), add(sOB, sOB, 128)], pre0=lambda: set_offw(1152, P2M))
        if CFG['pf']:
            if CFG['pf'] >= 2:
                pf_sched(R, 10, sK, sPFa, 131072, 16); pf_sched(R, 10, sV, sPFa, 131072, 16)
                pf_sched(R, 12, sK, sPFb, 131072, 16); pf_sched(R, 12, sV, sPFb, 131072, 16)
    else:
        Q = [a(136 + 32 * e, 32) for e in range(2)]; O = [a(72 + 32 * e, 32) for e in range(2)]
        def mpf(u):
            if u == 0: return pf_row('M', sWQ)
            if u == 1: return lambda: pf_row_setup('M', 9216, 18, sPF1, 0) + [pf_row('M', sW1)()[1]]
            if u <= 4: return pf_row('M', sW1)
            if u == 5: return lambda: [smov(sPW, sPF1h), pf_row('M', sW1)()[1]]
            return None
        for u in range(4): R.add_p1_unit(u, sWQ, sQA, sQC, 8192, u == 0, a(136 + 16 * u, 16), R.epi_q, key='Q', inreg=[None, mpf(u)] if CFG['pf'] >= 3 else None)
        for u in range(4): R.add_p1_unit(4 + u, sW1, sHA, sHC, 9216, u == 0, a(16 * u, 16), R.epi_silu, pre=(lambda: set_offw(9216, 'M' if MS else 'S')) if u == 0 else None, last=(u == 3), key='H', inreg=[None, mpf(4 + u)] if CFG['pf'] >= 3 else None)
        R.add_p1_half(8, a(64, 8))
        BO = a(72, 64)
        if CFG.get('pair'):
            Ha = dict(i=0, Q=Q[0], S=Sreg, P=Preg, O=BO, LM=v(230, 8), OF=lambda kk: BO_.sub(16 * kk, 8),
                      need_qk=[('acc', 48 + 16 * i) for i in range(3)], need_pv=[('acc', 48 + 16 * i) for i in range(4)])
            Hb = dict(i=1, Q=Q[1], S=[v(64, 16), v(48, 16)], P=[v(80, 8), v(88, 8)], O=v(160, 64), LM=v(96, 8), OF=lambda kk: BO_.sub(16 * kk + 8, 8))
            BO_ = BO
            if CFG.get('mfree', 0):
                Hb['S'] = [v(64, 16), v(238, 16)]; Ha['need_qk'] = [('acc', 64), ('acc', 80)]; Ha['need_pv'] = [('acc', 96)]
                R.ntmp = 12; R.ones = v(28, 4)
                for st_, idx in ((R.stages[-2], -1), (R.stages[-1], -1)):
                    m_ = st_.mf[idx]; f_ = m_.after
                    m_.after = (lambda G, f_=f_: (setattr(R, 'low', True), f_(G), setattr(R, 'low', False)))
            R.add_pa_g([[Ha, Hb]])
            BO = [H['OF'](kk) for H in (Ha, Hb) for kk in range(4)]
            R.heads = [(Ha, sPFa), (Hb, sPFa)]
        else: R.add_pa(Q, O)
        nf = {t: [('reg', 8 * t)] for t in range(9)}; nf[0].append(('S', 1, 15))
        R.add_p2([(a(0, 72), [288], [dma_w(sW2, sFA, 0, 1152, sFS, 0)], nf, sSt2),
                  (BO, [256], [dma_w(sWO, sOA, 0, 1152)], {0: [('fin', 0)], 4: [('fin', 1)]}, sSt)],
                 [add(x, x, 128) for x in (sOA, sFA, sFS)], pre0=lambda: set_offw(1152, P2M))
        for st in R.stages[-18:]: st.ring = (200, 14, 'restart')
        if CFG['pf']:
            if CFG['pf'] >= 2:
                k = pf_sched(R, 14, sK, sPFa, 131072, 16); k = pf_sched(R, k, sV, sPFa, 131072, 16)
            pf_sched(R, 16, sWO, sPFc, 256 * 1152, 36); pf_sched(R, 23 if not CFG.get('pair') else 17, sW2, sPF2, 256 * 1152, 36); pf_sched(R, 24 if not CFG.get('pair') else 17, sW2, sPF2h, 32 * 1152, 8)
    if CFG.get('msum') and not MS and kind in 'AM':
        st0 = [st for st in R.stages if st.name == 'PAh0s0'][0]
        m0_ = st0.mf[8]
        if not hasattr(R, 'ones'): m0_.need += [('acc', 48 + 16 * i) for i in range(4)]
        m0_.pre = lambda: R.p.emit([valu('v_mov_b32', getattr(R, 'ones', vONES)[i], 0x3f803f80) for i in range(4)])
    if CFG.get('recode') and CFG['fused']:
        names = [st.name for st in R.stages]
        nS = len(names)
        R.pf.setdefault(nS - 2, []).append(pf_code(f"L_{kind}_red", f"L_role{kind}_end", 4))
        p2 = names.index('P2c0b0')
        R.stages[p2].label = f"L_{kind}_p2"
        R.pf.setdefault(p2 - 2, []).append(pf_code(f"L_{kind}_p2", f"L_{kind}_p2+20480", 5))
        if kind in 'AM':
            pa = names.index('PAmini'); R.stages[pa].label = f"L_{kind}_pa"
            R.pf.setdefault(pa - 1, []).append(pf_code(f"L_{kind}_pa", f"L_{kind}_p2", 8))
    if CFG.get('hot') and CFG['fused'] and kind in CFG['hot']:
        names = [st.name for st in R.stages]
        last = names.index('P2c8b0'); R.stages[last].label = f"L_{kind}_c8"
        def setup():
            o = [raw(f"s_getpc_b64 {sPC}", 'salu', wr=[sPC]), label(f"L_{kind}_hp"),
                 salu('s_add_u32', sPC[0], sPC[0], f"L_{kind}_c8-L_{kind}_hp"), salu('s_addc_u32', sPC[1], sPC[1], 0, scc_r=True),
                 valu('v_bfe_u32', vPF2, vTID, 16, 5), valu('v_and_b32', vPF, 63, vTID), valu('v_min_u32', vPF, 1, vPF),
                 valu('v_lshl_add_u32', vPF, vPF2, 1, vPF), valu('v_lshlrev_b32', vPF, 7, vPF)]
            if kind == 'F': o += pf_row_setup(kind, 1152, 26, sPF2, 2 * 128)
            return o
        def rep_code():
            return [I(f"global_load_dword {vDUM}, {vPF}, {sPC}", 'vload', wr=vDUM.regs(), rd=vPF.regs() + sPC.regs(), units=3, tag='pf')]
        R.pf.setdefault(names.index('P2c1b0'), []).append(setup)
        for c in range(2, 8):
            k0 = names.index(f'P2c{c}b0')
            R.pf.setdefault(k0, []).append(rep_code)
            if kind == 'F': R.pf.setdefault(k0 + 1, []).append(pf_row(kind, sW2))
    R.slow = []
    if kind in 'AM' and CFG.get('slow', True) and CFG.get('pair'):
        P2s = [st for st in R.stages if st.name.startswith('P2c0')]
        hl = [(H['i'], H['Q'], (H['OF'], kv)) for (H, kv) in R.heads]
        if kind == 'A':
            P2s[0].mf[0].pre = slow_check(R, hl[:2], (112, 160))
            [m for m in P2s[1].mf if ('fin', 2) in m.need][0].pre = slow_check(R, hl[2:], (160, 48))
        else:
            m_ = P2s[1].mf[4 if CFG.get('l844') else 0]
            m_.need += [('fin', 0), ('fin', 1)]
            m_.pre = slow_check(R, hl, (160, 48))
    elif kind in 'AM' and CFG.get('slow', True):
        P2s = [st for st in R.stages if st.name.startswith('P2c0')]
        if kind == 'A':
            P2s[0].mf[0].need += [('fin', 1)]
            P2s[0].mf[0].pre = slow_check(R, [(0, Q[0], O[0]), (1, Q[1], O[1])], 112)
            m_ = [m for m in P2s[1].mf if ('fin', 2) in m.need][0]
            m_.pre = slow_check(R, [(2, Q[2], O[2])], 160)
        else:
            P2s[1].mf[0].need += [('fin', 1)]
            P2s[1].mf[0].pre = slow_check(R, [(0, Q[0], O[0]), (1, Q[1], O[1])], 160)
    if CFG['fused']:
        add_signals(R)
        def early0():
            it = red_setup(kind) + red_poll()[0]
            it[-1].tag = 'cnt'
            return it
        def early():
            assert R.cnt_covered()
            PRIV[0] = (kind == 'A')
            it = red_poll()[1]
            it[-1].tag = 'poll'
            return it
        def covered():
            idx = max(i for i, x in enumerate(R.p.ins) if x.tag == 'cnt'); n = 0
            for x in R.p.ins[idx + 1:]:
                if x.kind in VMEMK: n += 1
                if x.txt.startswith('s_waitcnt vmcnt(') and int(x.txt[16:-1]) <= n: return True
            return False
        R.cnt_covered = covered
        if kind == 'A' and CFG.get('l2pf'):
            nm = [st.name for st in R.stages]
            R.pf.setdefault(nm.index('P2c1b0'), []).append(l2pf_setup)
            for (cw, dlt) in CFG['l2pf']:
                kp = nm.index(f'P2c{cw}b0')
                for j in range(4): R.pf.setdefault(kp, []).append(lambda j=j: l2pf_poll()[j])
                R.stages[kp + 2].cover_tag = 'gp'
                def gate(j, dlt=dlt):
                    def f():
                        it = l2pf_issue(R, dlt)[j]
                        if j == 0:
                            it = it + [valu('v_readfirstlane_b32', sOK, vD), salu('s_cmp_ge_u32', None, sOK, 16), csel(sC, sC, 15)]
                        return it
                    return f
                for j in range(4): R.pf.setdefault(kp + 2, []).append(gate(j))
        R.pf.setdefault([st.name for st in R.stages].index('P2c1b0' if kind == 'F' else 'P2c0b1'), []).append(early0)
        if kind in CFG.get('pre', ''):
            R.pf.setdefault(len(R.stages) - 3, []).append(early)
            R.stages[-1].pre_bar = lambda: red_early(R.p, kind)
        else: R.pf.setdefault(len(R.stages) - CFG.get('pollw', 1), []).append(early)
    role_prologue(R, vm_before)
    R.run()
    if CFG['fused']:
        p = R.p
        if kind not in CFG.get('pre', ''): red_early(p, kind)
        if kind in CFG.get('pre', ''): pass
        elif kind in CFG.get('lateflag', 'A'): p.emit(barrier())
        else:
            p.emit(waitvm(0)); p.emit(barrier())
            p.emit(valu('v_mov_b32', vPRG, 9))
            if CFG.get('rep'): p.emit(bstore('buffer_store_dword', vPRG, vCR, sWS, 0, flags='sc1'))
            p.emit(bstore('buffer_store_dword', vPRG, vCT, sWS, 0, flags='sc1'))
        if CFG['stamps']: R.stamp(len(R.stages) - 1)
        p.emit(raw(f"s_call_b64 {sRET}, L_{kind}_red"))
    if CFG['stamps']:
        p = R.p
        R.stamp(len(R.stages))
        p.emit(raw("s_memrealtime s[98:99]", wr=[s(98, 2)])); p.emit(raw("s_waitcnt lgkmcnt(0)"))
        p.emit(raw(f"v_writelane_b32 {vSTAMP}, s98, 63", 'valu', wr=[vSTAMP], rd=[s(98)]))
        if CFG.get('dbgstat'):
            n = len(R.stages)
            lanes = {'F': [0, 27, n - 1, n], 'A': [0, 37, n - 1, n], 'M': [0, 34, n - 1, n]}[kind]
            slots = {'F': [1, 2, 3, 5], 'A': [10, 11, 13, 14], 'M': [15, 15, 15, 15]}[kind]
            p.emit([valu('v_mov_b32', v(4), 256), valu('v_mov_b32', v(5), 0)])
            for i, (ln, sl) in enumerate(zip(lanes, slots)):
                p.emit(raw(f"v_readlane_b32 s92, {vSTAMP}, {ln}", 'rdl', wr=[sT2], rd=[vSTAMP])); p.emit(nop(3))
                p.emit(raw(f"v_writelane_b32 v5, s92, {i}", 'valu', wr=[v(5)], rd=[sT2])); p.emit(raw(f"v_writelane_b32 v4, {4 * sl}, {i}", 'valu', wr=[v(4)]))
            p.emit(raw(f"v_writelane_b32 v5, s98, 4", 'valu', wr=[v(5)], rd=[s(98)])); p.emit(raw(f"v_writelane_b32 v4, 28, 4", 'valu', wr=[v(4)]))
            p.emit(salu('s_not_b32', sT2, s(43))); p.emit(raw(f"v_writelane_b32 v5, s92, 5", 'valu', wr=[v(5)], rd=[sT2])); p.emit(raw(f"v_writelane_b32 v4, 36, 5", 'valu', wr=[v(4)]))
            p.emit(salu('s_sub_u32', sT2, s(98), s(43))); p.emit(raw(f"v_writelane_b32 v5, s92, 6", 'valu', wr=[v(5)], rd=[sT2])); p.emit(raw(f"v_writelane_b32 v4, 24, 6", 'valu', wr=[v(4)]))
            p.emit([salu('s_cmp_eq_u32', None, sRB, 9), csel(sT2, 0, sRB), salu('s_or_b32', sT2, sT2, sWAVE), salu('s_cmp_eq_u32', None, sT2, 0), csel(sT2, 0, 256),
                    valu('v_add_u32', v(4), sT2, v(4))])
            p.emit(I(f"buffer_atomic_umax v5, v4, {sDBG}, 0 offen sc1", 'vstore', rd=vr(4, 2) + sDBG.regs(), units=3))
        p.emit([shl(sT2, s(2), 2), add(sT2, sT2, sWAVE), shl(sT2, sT2, 8), add(sT2, sT2, STAMP_OFF),
                valu('v_lshrrev_b32', v(42), 2, vLANE16), bstore('buffer_store_dword', vSTAMP, v(42), sWS, sT2)])
    R.p.emit(raw("s_endpgm"))
    return R

def fold(ins, name):
    idx = [i for i, x in enumerate(ins) if x.tag == 'mark']
    def body(a_, b_): return [x.txt for x in ins[a_:b_] if x.kind != 'label']
    out = []; pos = 0; k = 0; nl = 0
    while k + 1 < len(idx):
        b0 = body(idx[k], idx[k + 1]); n = 1
        while k + n + 1 < len(idx) and body(idx[k + n], idx[k + n + 1]) == b0: n += 1
        if n >= 2:
            out += ins[pos:idx[k]]
            L = f"L_{name}_loop{nl}"; nl += 1
            out.append(smov(sLC, n)); out.append(I(".p2align 3", 'label')); out.append(label(L))
            out += ins[idx[k]:idx[k + 1]]
            out += [salu('s_sub_u32', sLC, sLC, 1), salu('s_cmp_lg_u32', None, sLC, 0), raw(f"s_cbranch_scc1 {L}")]
            pos = idx[k + n]; k += n
        else: k += 1
    out += ins[pos:]
    return out

def fold_regions(ins, name):
    regs = []; i = 0
    beg = None
    for i, x in enumerate(ins):
        if isinstance(x.tag, tuple) and x.tag and x.tag[0] == 'region':
            if x.tag[1] == 'begin': beg = (i, x.tag[2])
            elif beg: regs.append((beg[0], i, beg[1])); beg = None
    groups = {}
    for (a_, b_, key) in regs:
        groups.setdefault(tuple(x.txt for x in ins[a_:b_] if x.kind != 'label'), []).append((a_, b_))
    out = []; subs = []; repl = {}
    n = 0
    for body, lst in groups.items():
        if len(lst) >= 2:
            L = f"L_{name}_sub{n}"; n += 1
            a_, b_ = lst[0]
            subs += [I(".p2align 6", 'label'), label(L)] + ins[a_:b_] + [raw(f"s_setpc_b64 {sRET}")]
            for (a_, b_) in lst: repl[a_] = (b_, L)
    i = 0
    while i < len(ins):
        if i in repl:
            b_, L = repl[i]; out.append(raw(f"s_call_b64 {sRET}, {L}")); i = b_
        else:
            out.append(ins[i]); i += 1
    print(f"  regions: {[len(l) for l in groups.values()]}", file=sys.stderr)
    return out + subs

def reduce_body(p, sPART, sXO, srdP, srdX, srdO, vL16, vXO, base, flags, mid=None):
    E = p.emit
    L = base; XR = base + 68; SA = base + 72; FA = base + 80; T = base + 88
    for k in range(NPART):
        if k: E(add(sPART, sPART, 16 * PART))
        E(bload('buffer_load_dwordx4', v(L + 4 * k, 4), vL16, srdP, sPART, flags=flags))
    E(bload('buffer_load_dwordx2', v(XR, 2), vXO, srdX, sXO)); E(bload('buffer_load_dwordx2', v(XR + 2, 2), vXO, srdX, sXO, 32))
    ex = 0
    if mid: E(mid()); ex = 1
    E(smov(sT3, 0xffff0000))
    for k in range(NPART):
        E(waitvm(NPART + 1 - k + ex))
        acc = SA if k < 11 else FA
        for q in range(4):
            x = v(L + 4 * k + q)
            if k in (0, 11):
                E(valu('v_lshlrev_b32', v(acc + 2 * q), 16, x)); E(valu('v_and_b32', v(acc + 2 * q + 1), sT3, x))
            else:
                tp = v(T + 2 * q, 2)
                E(valu('v_lshlrev_b32', tp[0], 16, x)); E(valu('v_and_b32', tp[1], sT3, x))
        if k not in (0, 11):
            for q in range(4): E(valu('v_pk_add_f32', v(acc + 2 * q, 2), v(acc + 2 * q, 2), v(T + 2 * q, 2)))
    for e in range(8): E(valu('v_exp_f32', v(T + e), v(FA + e)))
    for e in range(8): E(valu('v_add_f32', v(T + e), 1.0, v(T + e)))
    for e in range(8): E(valu('v_rcp_f32', v(T + e), v(T + e)))
    for e in range(8): E(valu('v_mul_f32', v(FA + e), f2u(-math.log(2.0)), v(FA + e)))
    for e in range(8): E(valu('v_mul_f32', v(FA + e), v(FA + e), v(T + e)))
    E(waitvm(ex))
    for q in range(4):
        E(valu('v_lshlrev_b32', v(T + 2 * q), 16, v(XR + q))); E(valu('v_and_b32', v(T + 2 * q + 1), sT3, v(XR + q)))
    for e in range(8): E(valu('v_fma_f32', v(T + e), v(SA + e), v(FA + e), v(T + e)))
    for q in range(4): E(valu('v_cvt_pk_bf16_f32', v(XR + q), v(T + 2 * q), v(T + 2 * q + 1)))
    E(bstore('buffer_store_dwordx2', v(XR, 2), vXO, srdO, sXO)); E(bstore('buffer_store_dwordx2', v(XR + 2, 2), vXO, srdO, sXO, 32))

def reduce_kernel():
    p = Prog(); E = p.emit
    E(salu('s_cmp_ge_u32', None, s(2), 576)); E(raw("s_cbranch_scc0 L_rgo")); E(raw("s_endpgm")); E(label("L_rgo"))
    E(raw("s_load_dwordx2 s[4:5], s[0:1], 0", wr=[s(4, 2)])); E(raw("s_load_dwordx2 s[6:7], s[0:1], 64", wr=[s(6, 2)])); E(raw("s_load_dwordx2 s[8:9], s[0:1], 80", wr=[s(8, 2)]))
    E(valu('v_lshrrev_b32', v(1), 6, v(0))); E(valu('v_readfirstlane_b32', s(10), v(1)))
    E(shl(s(11), s(2), 2)); E(add(s(11), s(11), s(10)))
    E(salu('s_mul_hi_u32', s(24), s(11), -(-(1 << 32) // 36), scc_w=False))
    E(mul(s(25), s(24), 36)); E(salu('s_sub_u32', s(25), s(11), s(25)))
    E(shl(s(26), s(11), 10))
    E(valu('v_and_b32', v(0), 63, v(0))); E(valu('v_lshlrev_b32', v(1), 4, v(0)))
    E(valu('v_and_b32', v(2), 15, v(0))); E(smov(s(27), 1152)); E(valu('v_mul_u32_u24', v(2), s(27), v(2)))
    E(valu('v_lshrrev_b32', v(3), 4, v(0))); E(valu('v_lshl_add_u32', v(2), v(3), 3, v(2)))
    E(mul(s(28), s(24), 32 * 1152)); E(salu('s_and_b32', s(29), s(25), 1)); E(mul(s(29), s(29), 16 * 1152)); E(add(s(28), s(28), s(29)))
    E(shr(s(25), s(25), 1)); E(shl(s(25), s(25), 6)); E(add(s(28), s(28), s(25)))
    E(raw("s_waitcnt lgkmcnt(0)"))
    srd(p, s(12, 4), 8, WSP_BYTES); srd(p, s(16, 4), 4, 2359296); srd(p, s(20, 4), 6, 2359296)
    reduce_body(p, s(26), s(28), s(12, 4), s(16, 4), s(20, 4), v(1), v(2), 4, CFG.get('rflags', ''))
    E(raw("s_endpgm"))
    return p

def text(ins): return "\n".join((i.txt if i.kind == 'label' else " " + i.txt) for i in ins) + "\n"

def compress(t):
    t = re.sub(r" v_mfma_f32_16x16x32_bf16 v\[(\d+):\d+\], a\[(\d+):\d+\], v\[(\d+):\d+\], v\[\1:\d+\]", r" MV \1,\2,\3", t)
    t = re.sub(r" v_mfma_f32_16x16x32_bf16 v\[(\d+):\d+\], a\[(\d+):\d+\], a\[(\d+):\d+\], v\[\1:\d+\]", r" MA \1,\2,\3", t)
    t = re.sub(r" v_mfma_f32_32x32x16_bf16 v\[(\d+):\d+\], a\[(\d+):\d+\], v\[(\d+):\d+\], v\[\1:\d+\]", r" NV \1,\2,\3", t)
    t = re.sub(r" v_mfma_f32_32x32x16_bf16 v\[(\d+):\d+\], a\[(\d+):\d+\], a\[(\d+):\d+\], v\[\1:\d+\]", r" NA \1,\2,\3", t)
    t = re.sub(r" v_mfma_f32_16x16x32_bf16 a\[(\d+):\d+\], a\[(\d+):\d+\], v\[(\d+):\d+\], a\[\1:\d+\]", r" MC \1,\2,\3", t)
    t = re.sub(r" ds_read_b64_tr_b16 a\[(\d+):\d+\], v(\d+) offset:(\d+)", r" RT \1,\2,\3", t)
    t = re.sub(r" ds_read_b128 a\[(\d+):\d+\], v(\d+) offset:(\d+)", r" RB \1,\2,\3", t)
    t = re.sub(r" v_cvt_pk_bf16_f32 v(\d+), v(\d+), v(\d+)", r" CV \1,\2,\3", t)
    t = re.sub(r" v_accvgpr_write_b32 a(\d+), v(\d+)", r" AW \1,\2", t)
    t = re.sub(r" v_exp_f32 v(\d+), v(\d+)", r" EX \1,\2", t)
    t = re.sub(r" v_add_f32 v(\d+), v(\d+), v(\d+)", r" AD \1,\2,\3", t)
    t = re.sub(r" v_mul_f32 v(\d+), v(\d+), v(\d+)", r" ML \1,\2,\3", t)
    t = re.sub(r" s_waitcnt lgkmcnt\((\d+)\)", r" WL \1", t)
    mac = r""".macro MC d,a,b
 v_mfma_f32_16x16x32_bf16 a[\d:\d+3], a[\a:\a+3], v[\b:\b+3], a[\d:\d+3]
.endm
.macro NV d,a,b
 v_mfma_f32_32x32x16_bf16 v[\d:\d+15], a[\a:\a+3], v[\b:\b+3], v[\d:\d+15]
.endm
.macro NA d,a,b
 v_mfma_f32_32x32x16_bf16 v[\d:\d+15], a[\a:\a+3], a[\b:\b+3], v[\d:\d+15]
.endm
.macro MV d,a,b
 v_mfma_f32_16x16x32_bf16 v[\d:\d+3], a[\a:\a+3], v[\b:\b+3], v[\d:\d+3]
.endm
.macro MA d,a,b
 v_mfma_f32_16x16x32_bf16 v[\d:\d+3], a[\a:\a+3], a[\b:\b+3], v[\d:\d+3]
.endm
.macro RT d,a,o
 ds_read_b64_tr_b16 a[\d:\d+1], v\a offset:\o
.endm
.macro RB d,a,o
 ds_read_b128 a[\d:\d+3], v\a offset:\o
.endm
.macro CV d,a,b
 v_cvt_pk_bf16_f32 v\d, v\a, v\b
.endm
.macro AW d,a
 v_accvgpr_write_b32 a\d, v\a
.endm
.macro EX d,a
 v_exp_f32 v\d, v\a
.endm
.macro AD d,a,b
 v_add_f32 v\d, v\a, v\b
.endm
.macro ML d,a,b
 v_mul_f32 v\d, v\a, v\b
.endm
.macro WL n
 s_waitcnt lgkmcnt(\n)
.endm
"""
    return mac, t

HDR = open('recurrent_scan__sliding_block_cached__dense_activation_silu__prompt.s.ref').read().split('; Override launch')[0]
DOC = """; Generated by my own scheduler scripts (hand-designed instruction streams, hazards padded by the script).
; registers as MFMA B operands (transposed formulation), weights / K / V stream through a 4-slot LDS ring (LDS-DMA).
;   role A (10): layernorm, Q projection, attention for 3 heads (one GQA pair shares K/V fragments), partial of o@wo
; The bf16 partials go to d_ws with write-through stores; progress words (reset per launch, guarded by a counter in
"""
def kd(name, vgpr, acc, sgpr=102):
    return f""".amdhsa_kernel {name}
  .amdhsa_next_free_vgpr {vgpr}
  .amdhsa_next_free_sgpr {sgpr}
  .amdhsa_accum_offset {acc}
  .amdhsa_group_segment_fixed_size 0
  .amdhsa_kernarg_size 88
  .amdhsa_user_sgpr_count 2
  .amdhsa_user_sgpr_kernarg_segment_ptr 1
  .amdhsa_system_sgpr_workgroup_id_x 1
.end_amdhsa_kernel
"""
def est_cycles(ins):
    tot = 0; cur = None; n = 0
    for i in ins:
        if i.kind == 'label': continue
        if i.kind == 'mfma':
            if cur is not None: tot += max(cap, cur)
            cur = 2; n += 1; cap = 8 if len(i.wr) == 16 else 4
        elif cur is not None:
            if i.txt.startswith('s_waitcnt lgkm') and cap == 4: continue
            cur += i.units if not i.txt.startswith('s_nop') else (int(i.txt.split()[1]) + 1) * 0.5
    return tot * 4

def main(out, **kw):
    CFG.update(kw)
    set_layout(CFG.get('l844'))
    if CFG.get('tab'):
        global ROLE_TAB
        ROLE_TAB = CFG['tab']
    CFG['shape0'] = CFG['shape']
    cp = common_prologue()
    if CFG.get('entry', 0):
        if CFG.get('entry', 1) == 1:
            k = next(i for i, x in enumerate(cp.ins) if x.txt == 's_waitcnt lgkmcnt(0)')
            tail = cp.ins[k:]; vmx = list(cp.vm); cp.ins = cp.ins[:k]; cp.vm = []
            common_prologue2(cp); cp.ins += tail; cp.vm += vmx
        else: common_prologue2(cp)
        common_prologue3(cp)
    body = text(cp.ins) + dispatch_text()
    for kind in 'FAM':
        R = build_role(kind, cp.vm)
        ins = fold_regions(fold(R.p.ins, kind), kind) if CFG['fold'] else R.p.ins
        nm = sum(1 for i in R.p.ins if i.kind == 'mfma')
        print(f"role {kind}: stages {len(R.stages)} mfma {nm} instrs {len([i for i in ins if i.kind!='label'])} (unrolled {len([i for i in R.p.ins if i.kind!='label'])}) pad {R.p.npad} forced {R.forced} est {est_cycles(R.p.ins)} ideal {sum(32 if len(i.wr) == 16 else 16 for i in R.p.ins if i.kind == 'mfma')}", file=sys.stderr)
        if CFG.get('abl_pair') and kind in 'AM':
            out_ = []; on = False
            for x in ins:
                if x.kind == 'label' and x.txt.startswith('; PAh'): on = x.txt.startswith('; PAh1')
                if x.kind == 'label' and x.txt.startswith('; P2'): on = False
                if on and (x.kind in ('dma', 'ds') or (x.kind == 'salu' and ('m0' in x.txt or 's70' in x.txt))): continue
                out_.append(x)
            ins = out_
        if CFG.get('abl_half'):
            out_ = []; on = False; cnt = 0
            for x in ins:
                if x.kind == 'label' and x.txt.startswith('; P'): on = x.txt.startswith(('; P1', '; P2'))
                if x.kind == 'label' and x.txt.startswith('; REGION begin'): on = True
                if on and x.kind == 'ds':
                    cnt += 1
                    if (cnt >> 1) & 1: continue
                out_.append(x)
            ins = out_
        ab = CFG.get('ablate', '')
        if ab:
            st0 = next(i for i, x in enumerate(ins) if x.txt.startswith('; P1u1b0'))
            def keep(x):
                if 'd' in ab and x.kind == 'dma': return False
                if 'r' in ab and x.kind == 'ds': return False
                if 'v' in ab and x.kind in ('trans',): return False
                if 'V' in ab and x.kind in ('trans', 'valu', 'perm') and not x.txt.startswith(('v_add_u32', 'v_xor', 'v_writelane', 'v_cmp', 'v_cnd', 'v_mov', 'v_lsh', 'v_mad', 'v_min', 'v_and', 'v_bfe', 'v_mul_u32')): return False
                if 'm' in ab and x.kind == 'mfma': return False
                return True
            ins = ins[:st0] + [x for x in ins[st0:] if keep(x)]
        for sp in R.slow: ins = ins + sp.ins
        if CFG['fused']: ins = ins + reducer(kind).ins
        body += f".p2align 6\nL_role{kind}:\n" + text(ins) + f"L_role{kind}_end:\n"
    rk = reduce_kernel()
    mac, body = compress(body)
    if CFG['fused']:
        t = HDR + "; @launch grid=(256,1,1) block=(256,1,1) lds=163840\n" + DOC
        t += '.amdgcn_target "amdgcn-amd-amdhsa--gfx950"\n' + mac + f".text\n.globl {KN}\n.p2align 8\n.type {KN},@function\n{KN}:\n" + body
        t += '.section .rodata,"a"\n.p2align 6\n' + kd(KN, 512, 256)
        open(out, 'w').write(t); print("size", len(t), file=sys.stderr); return
    t = HDR + f"; @launch kernel={KN} grid=(256,1,1) block=(256,1,1) lds=163840\n; @launch kernel={RN} grid=(576,1,1) block=(256,1,1) lds=0\n"
    t += '.amdgcn_target "amdgcn-amd-amdhsa--gfx950"\n' + mac + f".text\n.globl {KN}\n.p2align 8\n.type {KN},@function\n{KN}:\n" + body
    t += f".globl {RN}\n.p2align 8\n.type {RN},@function\n{RN}:\n" + text(rk.ins)
    t += '.section .rodata,"a"\n.p2align 6\n' + kd(KN, 512, 256) + ".p2align 6\n" + kd(RN, 104, 104, 102)
    open(out, 'w').write(t)
    print("size", len(t), file=sys.stderr)

if __name__ == "__main__":
    kw = eval("dict(" + (sys.argv[2] if len(sys.argv) > 2 else "") + ")")
    main(sys.argv[1], **kw)
```

```python
import sys, re
from s1 import *

ROLE_TAB = [0, 1, 2, 11, 3, 4, 5, 12, 6, 7, 13, 14, 8, 9, 10, 15]
vPFR = v(36)
vPRG = v(36)
PART = 4 * PWAVE
NPART = 17
NA, NM, NS = 10, 1, 11
def set_layout(new):
    global NPART, NA, NM, NS, ROLE_TAB
    if new:
        NPART, NA, NM, NS = 20, 8, 4, 12
        ROLE_TAB = [0, 1, 8, 12, 2, 3, 9, 13, 4, 5, 10, 14, 6, 7, 11, 15]
WSP_BYTES = NPART * 16 * PART
def PSTR(): return 16 * PART + (CFG.get('pskew', 0) if CFG['fused'] else 0)
sJQ, sQ0, sOA1, sOB1 = s(73), s(59), s(74), s(75)
ABN = 4096
STAMP_OFF = 0x3000000
CTRL = 0x2F00000
OOB = 0x10000000

def srd(p, dst, lo, nbytes):
    p.emit([smov(dst[0], s(lo)), salu('s_and_b32', dst[1], s(lo + 1), 0xffff), smov(dst[2], nbytes), smov(dst[3], 0x20000)])
def xdma(j):
    return [salu('s_add_u32', 'm0', s(6), j * 4096), salu('s_add_u32', sT, s(7), j * 128)] + [dma(v(16 + q), sX, sT, q * 1024, tag=('x', j)) for q in range(4)]
def mul(d, a_, b_): return salu('s_mul_i32', d, a_, b_, scc_w=False)
def add(d, a_, b_): return salu('s_add_u32', d, a_, b_)
def shl(d, a_, b_): return salu('s_lshl_b32', d, a_, b_)
def shr(d, a_, b_): return salu('s_lshr_b32', d, a_, b_)
def csel(d, a_, b_): return salu('s_cselect_b32', d, a_, b_, scc_w=False, scc_r=True)

def common_prologue():
    if CFG.get('entry', 0) == 0: return common_prologue_old()
    assert CFG['xe'] == 9 and CFG.get('map', 4) == 4
    p = Prog(); E = p.emit
    E(raw("s_load_dwordx8 s[40:47], s[0:1], 0", wr=[s(40, 8)]))
    E(salu('s_cmp_ge_u32', None, s(2), 256))
    E(raw("s_cbranch_scc0 L_go")); E(raw("s_endpgm")); E(label("L_go"))
    if CFG['stamps']:
        E(raw(f"s_memtime {sT0}", wr=[sT0])); E(raw("s_memrealtime s[96:97]", wr=[s(96, 2)]))
    E(valu('v_lshrrev_b32', v(1), 6, v(0)))
    E(salu('s_and_b32', s(3), s(2), 1)); E(shl(s(3), s(3), 3))
    E(valu('v_readfirstlane_b32', sWAVE, v(1)))
    E(shr(sRB, s(2), 5)); E(salu('s_or_b32', sRB, sRB, s(3)))
    E(valu('v_and_b32', v(0), 63, v(0)))
    E(valu('v_lshrrev_b32', vROWN, 3, v(0)))
    E(valu('v_and_b32', v(20), 7, v(0))); E(valu('v_lshrrev_b32', v(21), 4, v(0)))
    E(valu('v_xor_b32', v(22), v(20), v(21))); E(valu('v_xor_b32', v(23), 4, v(22)))
    E(salu('s_movk_i32', s(3), 1152, scc_w=False)); E(valu('v_mul_u32_u24', v(24), s(3), vROWN))
    E(valu('v_lshl_add_u32', v(16), v(22), 4, v(24))); E(valu('v_lshl_add_u32', v(17), v(23), 4, v(24)))
    E(valu('v_add_u32', v(17), 8 * 1152 - 1024, v(17)))
    E(valu('v_add_u32', v(18), 2 * (8 * 1152 - 1024), v(16))); E(valu('v_add_u32', v(19), 2 * (8 * 1152 - 1024), v(17)))
    E(mul(s(6), sWAVE, XW)); E(raw("s_lshl2_add_u32 s7, s64, s62", 'salu', wr=[s(7)], rd=[sRB, sWAVE])); E(mul(sT, s(7), 32 * 1152))
    E(smov('m0', s(6))); E(add(s(7), sT, 9 * 128))
    E(smov(sX[2], 2359296)); E(smov(sX[3], 0x20000))
    E(raw("s_waitcnt lgkmcnt(0)"))
    E(smov(sX[0], s(40))); E(salu('s_and_b32', sX[1], s(41), 0xffff))
    E(label("L_xl"))
    n0 = len(p.vm)
    for q in range(4): E(dma(v(16 + q), sX, sT, q * 1024))
    del p.vm[n0:]
    for j in range(9): p.vm += [('x', j)] * 4
    E(add(sT, sT, 128)); E(add('m0', 'm0', 4096)); E(salu('s_cmp_lt_u32', None, sT, s(7))); E(raw("s_cbranch_scc1 L_xl"))
    return p
def common_prologue2(p):
    E = p.emit
    tab = ROLE_TAB
    lo = sum(tab[i] << (4 * i) for i in range(8)); hi = sum(tab[8 + i] << (4 * i) for i in range(8))
    E(salu('s_bfe_u32', s(3), s(2), (2 << 16) | 3)); E(salu('s_bfe_u32', s(4), s(2), (1 << 16) | 1))
    E(shl(s(4), s(4), 2)); E(salu('s_or_b32', s(3), s(3), s(4))); E(shl(s(3), s(3), 2))
    E(salu('s_bitcmp1_b32', None, s(2), 2))
    E(smov(s(4), lo)); E(csel(s(4), hi, s(4)))
    E(shr(s(4), s(4), s(3))); E(salu('s_and_b32', sROLE, s(4), 15))
    E(raw(f"s_getpc_b64 {sPC}", wr=[sPC])); E(label("L_pc"))
    E(smov(s(4), "L_roleA-L_pc")); E(smov(s(5), "L_roleA_end-L_pc-4"))
    E(salu('s_cmp_ge_u32', None, sROLE, NA)); E(csel(s(4), "L_roleM-L_pc", s(4))); E(csel(s(5), "L_roleM_end-L_pc-4", s(5)))
    E(salu('s_cmp_ge_u32', None, sROLE, NA + NM)); E(csel(s(4), "L_roleF-L_pc", s(4))); E(csel(s(5), "L_roleF_end-L_pc-4", s(5)))
    n0 = CFG.get('code0', 16); NL = CFG.get('codelines', 24)
    if n0:
        E(mul(s(3), sWAVE, n0 * 128)); E(add(s(3), s(3), s(4)))
        E(valu('v_min_u32', v(2), n0 - 1, v(0))); E(valu('v_lshlrev_b32', v(2), 7, v(2))); E(valu('v_add_u32', v(2), s(3), v(2)))
        E(I(f"global_load_dword {vDUM}, v2, {sPC}", 'vload', wr=vDUM.regs(), rd=vr(2) + sPC.regs(), tag='pf'))
    E(salu('s_and_b32', s(3), sRB, 7)); E(shl(s(3), s(3), 2)); E(add(s(3), s(3), sWAVE))
    E(mul(s(3), s(3), NL * 128)); E(add(s(3), s(3), s(4)))
    E(valu('v_min_u32', v(2), NL - 1, v(0))); E(valu('v_lshlrev_b32', v(2), 7, v(2))); E(valu('v_add_u32', v(2), s(3), v(2)))
    E(valu('v_min_u32', v(3), s(5), v(2)))
    E(I(f"global_load_dword {vDUM}, v3, {sPC}", 'vload', wr=vDUM.regs(), rd=vr(3) + sPC.regs(), tag='pf'))
def common_prologue3(p):
    E = p.emit
    E(raw("s_load_dwordx2 s[48:49], s[0:1], 32", wr=[s(48, 2)]))
    E(raw("s_load_dwordx8 s[52:59], s[0:1], 48", wr=[s(52, 8)]))
    E(raw("s_load_dwordx2 s[50:51], s[0:1], 80", wr=[s(50, 2)]))
    srd(p, sK, 42, 8388608); srd(p, sV, 44, 8388608); srd(p, sWQ, 46, 4718592)
    E(mul(sW8704, sWAVE, 8 * PP)); E(mul(sWC, sWAVE, PP)); E(add(sWC, sWC, 32 * PP))
    E(shl(sW8192, sWAVE, 13)); E(shl(sWCH, sWAVE, 10)); E(add(sWCH, sWCH, 32768))
    E(mul(sW2176, sWAVE, 2 * PP)); E(mul(sW4352, sWAVE, 4 * PP)); E(add(sWA2, sW2176, 16 * PP))
    E(raw("s_waitcnt lgkmcnt(0)"))
    srd(p, sWO, 48, 4718592)
    srd(p, sW1, 52, 5308416); srd(p, sW2, 54, 5308416); srd(p, sWS, 50, 0x10000000 if (CFG['stamps'] or CFG['fused']) else WSP_BYTES)
    srd(p, sOUT, 56, 2359296); srd(p, sDBG, 58, 256)

def common_prologue_old():
    p = Prog(); E = p.emit
    E(salu('s_cmp_ge_u32', None, s(2), 256))
    E(raw("s_cbranch_scc0 L_go")); E(raw("s_endpgm")); E(label("L_go"))
    E(raw("s_load_dwordx8 s[40:47], s[0:1], 0", wr=[s(40, 8)]))
    E(raw("s_load_dwordx2 s[48:49], s[0:1], 32", wr=[s(48, 2)]))
    E(raw("s_load_dwordx8 s[52:59], s[0:1], 48", wr=[s(52, 8)]))
    E(raw("s_load_dwordx2 s[50:51], s[0:1], 80", wr=[s(50, 2)]))
    if CFG['stamps']:
        E(raw(f"s_memtime {sT0}", wr=[sT0])); E(raw("s_memrealtime s[96:97]", wr=[s(96, 2)]))
    tab = ROLE_TAB
    if CFG.get('map', 4) == 41:
        t4 = CFG.get('t41', [11, 0, 1, 2, 12, 3, 4, 5, 13, 14, 6, 7, 15, 10, 8, 9])
        lo = sum(t4[i] << (4 * i) for i in range(8)); hi = sum(t4[8 + i] << (4 * i) for i in range(8))
        E(shr(s(3), s(2), 6)); E(salu('s_bfe_u32', s(4), s(2), (1 << 16) | 1))
        E(shl(s(4), s(4), 2)); E(salu('s_or_b32', s(3), s(3), s(4))); E(shl(s(3), s(3), 2))
        E(salu('s_bitcmp1_b32', None, s(2), 2)); E(smov(s(4), lo)); E(csel(s(4), hi, s(4)))
        E(shr(s(4), s(4), s(3))); E(salu('s_and_b32', sROLE, s(4), 15))
        E(salu('s_and_b32', s(3), s(2), 1)); E(shl(s(3), s(3), 3))
        E(salu('s_bfe_u32', sRB, s(2), (3 << 16) | 3)); E(salu('s_or_b32', sRB, sRB, s(3)))
    elif CFG.get('map', 4) == 8:
        t8 = [0, 1, 2, 3, 4, 10, 11, 12, 5, 6, 7, 8, 9, 13, 14, 15]
        lo = sum(t8[i] << (4 * i) for i in range(8)); hi = sum(t8[8 + i] << (4 * i) for i in range(8))
        E(salu('s_bfe_u32', s(3), s(2), (3 << 16) | 3)); E(shl(s(3), s(3), 2))
        E(salu('s_bitcmp1_b32', None, s(2), 2)); E(smov(s(4), lo)); E(csel(s(4), hi, s(4)))
        E(shr(s(4), s(4), s(3))); E(salu('s_and_b32', sROLE, s(4), 15))
        E(salu('s_and_b32', s(3), s(2), 1)); E(shl(s(3), s(3), 3)); E(salu('s_and_b32', s(4), s(2), 2)); E(shl(s(4), s(4), 1))
        E(shr(sRB, s(2), 6)); E(salu('s_or_b32', sRB, sRB, s(3))); E(salu('s_or_b32', sRB, sRB, s(4)))
    elif CFG.get('map', 4) == 2:
        t2 = [0, 1, 2, 3, 4, 11, 5, 12, 6, 13, 7, 14, 8, 15, 9, 10]
        lo = sum(t2[i] << (4 * i) for i in range(8)); hi = sum(t2[8 + i] << (4 * i) for i in range(8))
        E(salu('s_bfe_u32', s(3), s(2), (1 << 16) | 3)); E(salu('s_and_b32', s(4), s(2), 3)); E(shl(s(4), s(4), 1)); E(salu('s_or_b32', s(3), s(3), s(4))); E(shl(s(3), s(3), 2))
        E(salu('s_bitcmp1_b32', None, s(2), 2)); E(smov(s(4), lo)); E(csel(s(4), hi, s(4)))
        E(shr(s(4), s(4), s(3))); E(salu('s_and_b32', sROLE, s(4), 15)); E(shr(sRB, s(2), 4))
    else:
        lo = sum(tab[i] << (4 * i) for i in range(8)); hi = sum(tab[8 + i] << (4 * i) for i in range(8))
        E(salu('s_bfe_u32', s(3), s(2), (2 << 16) | 3)); E(salu('s_bfe_u32', s(4), s(2), (1 << 16) | 1))
        E(shl(s(4), s(4), 2)); E(salu('s_or_b32', s(3), s(3), s(4))); E(shl(s(3), s(3), 2))
        E(salu('s_bitcmp1_b32', None, s(2), 2))
        E(smov(s(4), lo)); E(csel(s(4), hi, s(4)))
        E(shr(s(4), s(4), s(3))); E(salu('s_and_b32', sROLE, s(4), 15))
        E(salu('s_and_b32', s(3), s(2), 1)); E(shl(s(3), s(3), 3))
        E(shr(sRB, s(2), 5)); E(salu('s_or_b32', sRB, sRB, s(3)))
    E(valu('v_lshrrev_b32', v(1), 6, v(0)))
    E(valu('v_readfirstlane_b32', sWAVE, v(1)))
    E(valu('v_and_b32', v(0), 63, v(0)))
    E(valu('v_lshrrev_b32', vROWN, 3, v(0)))
    E(valu('v_and_b32', v(20), 7, v(0))); E(valu('v_lshrrev_b32', v(21), 4, v(0)))
    E(valu('v_xor_b32', v(22), v(20), v(21))); E(valu('v_xor_b32', v(23), 4, v(22)))
    E(smov(s(3), 1152)); E(valu('v_mul_u32_u24', v(24), s(3), vROWN))
    E(valu('v_lshl_add_u32', v(16), v(22), 4, v(24))); E(valu('v_lshl_add_u32', v(17), v(23), 4, v(24)))
    E(valu('v_add_u32', v(17), 8 * 1152 - 1024, v(17)))
    E(valu('v_add_u32', v(18), 2 * (8 * 1152 - 1024), v(16))); E(valu('v_add_u32', v(19), 2 * (8 * 1152 - 1024), v(17)))
    E(mul(s(6), sWAVE, XW))
    E(shl(s(7), sRB, 2)); E(add(s(7), s(7), sWAVE)); E(mul(s(7), s(7), 32 * 1152))
    E(raw(f"s_getpc_b64 {sPC}", wr=[sPC])); E(label("L_pc"))
    E(smov(s(4), "L_roleA-L_pc")); E(smov(s(5), "L_roleA_end-L_pc-4"))
    E(salu('s_cmp_ge_u32', None, sROLE, NA)); E(csel(s(4), "L_roleM-L_pc", s(4))); E(csel(s(5), "L_roleM_end-L_pc-4", s(5)))
    E(salu('s_cmp_ge_u32', None, sROLE, NA + NM)); E(csel(s(4), "L_roleF-L_pc", s(4))); E(csel(s(5), "L_roleF_end-L_pc-4", s(5)))
    def code_pf():
        NL = CFG.get('codelines', 24)
        E(salu('s_and_b32', s(3), sRB, 7)); E(shl(s(3), s(3), 2)); E(add(s(3), s(3), sWAVE))
        E(mul(s(3), s(3), NL * 128)); E(add(s(3), s(3), s(4)))
        E(valu('v_min_u32', v(2), NL - 1, v(0))); E(valu('v_lshlrev_b32', v(2), 7, v(2))); E(valu('v_add_u32', v(2), s(3), v(2)))
        E(valu('v_min_u32', v(3), s(5), v(2)))
        E(I(f"global_load_dword {vDUM}, v3, {sPC}", 'vload', wr=vDUM.regs(), rd=vr(3) + sPC.regs(), tag='pf'))
    if CFG.get('codepf', 3) >= 3:
        n0 = CFG.get('code0', 16)
        if n0:
            E(mul(s(3), sWAVE, n0 * 128)); E(add(s(3), s(3), s(4)))
            E(valu('v_min_u32', v(2), n0 - 1, v(0))); E(valu('v_lshlrev_b32', v(2), 7, v(2))); E(valu('v_add_u32', v(2), s(3), v(2)))
            E(I(f"global_load_dword {vDUM}, v2, {sPC}", 'vload', wr=vDUM.regs(), rd=vr(2) + sPC.regs(), tag='pf'))
        code_pf()
    E(raw("s_waitcnt lgkmcnt(0)"))
    srd(p, sX, 40, 2359296)
    if CFG.get('xt'):
        nch = CFG['xt']
        E(salu('s_bfe_u32', s(3), s(2), (2 << 16) | 3)); E(mul(s(3), s(3), 128 * nch)); E(add(s(3), s(3), 128 * (9 - 4 * nch))); E(add(s(3), s(3), s(7)))
        E(valu('v_and_b32', v(2), 31, v(0))); E(valu('v_mul_u32_u24', v(2), 1152, v(2)))
        if nch == 2:
            E(valu('v_lshrrev_b32', v(3), 5, v(0))); E(valu('v_lshl_add_u32', v(2), v(3), 7, v(2)))
        ld = bload('buffer_load_dword', vDUM, v(2), sX, s(3)); ld.tag = 'pf'; E(ld)
    nx0 = CFG.get('tx', 2) if CFG.get('touch') else 0
    for j in range(nx0): E(xdma(j))
    if CFG.get('touch'):
        E(salu('s_cmp_gt_u32', None, sROLE, 10))
        E(raw("s_cselect_b64 s[60:61], s[52:53], s[46:47]", 'salu', wr=[s(60, 2)], rd=[s(52, 2), s(46, 2)]))
        E(raw("s_cselect_b64 s[66:67], s[54:55], s[48:49]", 'salu', wr=[s(66, 2)], rd=[s(54, 2), s(48, 2)]))
        E(salu('s_cmp_eq_u32', None, sWAVE, 1)); E(raw("s_cselect_b64 s[60:61], s[66:67], s[60:61]", 'salu', wr=[s(60, 2)], rd=[s(66, 2), s(60, 2)]))
        E(salu('s_cmp_eq_u32', None, sWAVE, 2)); E(raw("s_cselect_b64 s[60:61], s[42:43], s[60:61]", 'salu', wr=[s(60, 2)], rd=[s(42, 2), s(60, 2)]))
        E(salu('s_cmp_eq_u32', None, sWAVE, 3)); E(raw("s_cselect_b64 s[60:61], s[44:45], s[60:61]", 'salu', wr=[s(60, 2)], rd=[s(44, 2), s(60, 2)]))
        E(smov(s(3), 73728)); E(salu('s_cmp_ge_u32', None, sWAVE, 2)); E(csel(s(3), 131072, s(3)))
        E(valu('v_mul_u32_u24', v(2), s(3), v(0)))
        E(I(f"global_load_dword {vDUM}, v2, s[60:61]", 'vload', wr=vDUM.regs(), rd=vr(2) + sr(60, 2), tag='pf'))
    for j in range(nx0, CFG['xe']): E(xdma(j))
    if CFG.get('codepf', 3) == 1: code_pf()
    if CFG.get('codepf', 3) == 2:
        E(valu('v_mov_b32', v(46), v(3))); E(raw(f"s_mov_b64 s[100:101], {sPC}", 'salu', wr=[s(100, 2)], rd=[sPC]))
    srd(p, sK, 42, 8388608); srd(p, sV, 44, 8388608); srd(p, sWQ, 46, 4718592); srd(p, sWO, 48, 4718592)
    srd(p, sW1, 52, 5308416); srd(p, sW2, 54, 5308416); srd(p, sWS, 50, 0x10000000 if (CFG['stamps'] or CFG['fused']) else WSP_BYTES)
    srd(p, sOUT, 56, 2359296); srd(p, sDBG, 58, 256)
    E(mul(sW8704, sWAVE, 8 * PP)); E(mul(sWC, sWAVE, PP)); E(add(sWC, sWC, 32 * PP))
    E(shl(sW8192, sWAVE, 13)); E(shl(sWCH, sWAVE, 10)); E(add(sWCH, sWCH, 32768))
    E(mul(sW2176, sWAVE, 2 * PP)); E(mul(sW4352, sWAVE, 4 * PP)); E(add(sWA2, sW2176, 16 * PP))
    return p

def dispatch_text():
    return f""" s_cmp_ge_u32 {sROLE}, {NA + NM}
 s_cbranch_scc1 L_roleF
 s_cmp_ge_u32 {sROLE}, {NA}
 s_getpc_b64 s[94:95]
L_pc2:
 s_cbranch_scc1 L_jM
 s_add_u32 s94, s94, L_roleA-L_pc2
 s_addc_u32 s95, s95, 0
 s_setpc_b64 s[94:95]
L_jM:
 s_add_u32 s94, s94, L_roleM-L_pc2
 s_addc_u32 s95, s95, 0
 s_setpc_b64 s[94:95]
"""

def pfload(srd_, base):
    ld = bload('buffer_load_dword', vDUM, vPF, srd_, base); ld.tag = 'pf'; return ld
def pf_lin(srd_, base_s, start, nbytes, nl=64):
    def f():
        return [valu('v_lshrrev_b32', vPF2, 16, vTID), valu('v_and_b32', vPF, 63, vTID), valu('v_min_u32', vPF, nl - 1, vPF),
                valu('v_mad_u32_u24', vPF, vPF2, nl, vPF), valu('v_lshlrev_b32', vPF, 7, vPF), valu('v_add_u32', vPF, start, vPF),
                valu('v_min_u32', vPF, nbytes - 128, vPF), pfload(srd_, base_s)]
    return f
def pf_run(srd_, base_s, nbytes, nl):
    def f():
        return [valu('v_min_u32', vPF, nbytes - 128, vPFR), valu('v_add_u32', vPFR, 64 * nl * 128, vPFR), pfload(srd_, base_s)]
    f.nl = nl
    return f
def vPFW(kind): return {'F': v(8), 'A': v(7), 'M': v(36)}[kind]
def pf_row(kind, srd_, step=128):
    def f():
        ld = bload('buffer_load_dword', vDUM, vPFW(kind), srd_, sPW); ld.tag = 'pf'
        return [add(sPW, sPW, step), ld]
    return f
def pf_row_setup(kind, pitch, nl, base, lit):
    r = vPFW(kind)
    return [valu('v_bfe_u32', vPF2, vTID, 16, 5), valu('v_and_b32', r, 63, vTID), valu('v_min_u32', r, nl - 1, r),
            valu('v_mad_u32_u24', r, vPF2, nl, r), smov(sT2, pitch), valu('v_mul_u32_u24', r, sT2, r), add(sPW, base, lit)]
def pf_code(la, lb, nl):
    def f():
        L = f"L_cp{pf_code.k}"; pf_code.k += 1
        ld = I(f"global_load_dword {vDUM}, {vPF}, {sPC}", 'vload', wr=vDUM.regs(), rd=vPF.regs() + sPC.regs(), units=3, tag='pf')
        return [raw(f"s_getpc_b64 {sPC}", 'salu', wr=[sPC]), label(L),
                salu('s_add_u32', sPC[0], sPC[0], f"{la}-{L}"), salu('s_addc_u32', sPC[1], sPC[1], 0, scc_r=True),
                valu('v_bfe_u32', vPF2, vTID, 16, 5), valu('v_and_b32', vPF, 63, vTID), valu('v_min_u32', vPF, nl - 1, vPF),
                valu('v_mad_u32_u24', vPF, vPF2, nl, vPF), valu('v_lshlrev_b32', vPF, 7, vPF), valu('v_min_u32', vPF, f"{lb}-{la}-4", vPF), ld]
    return f
pf_code.k = 0
def pf_sched(R, k0, srd_, base_s, nbytes, nl):
    per = 64 * nl * 128; k = k0
    for st in range(0, nbytes, per):
        R.pf.setdefault(k, []).append(pf_lin(srd_, base_s, st, nbytes, nl)); k += 1
    return k

def role_prologue(R, vm_before):
    p = R.p; E = p.emit; kind = R.kind
    p.vm = list(vm_before)
    MS = CFG['shape'] == 'M'
    def PS(k):
        if CFG['stamps'] == 1: R.stamp(k)
    if CFG.get('delayrole') is not None:
        for r_ in CFG['delayrole']:
            E(salu('s_cmp_eq_u32', None, sROLE, r_[0])); E(raw(f"s_cbranch_scc0 L_{kind}_nd{r_[0]}"))
            E(smov(sLC, r_[1])); E(label(f"L_{kind}_dl{r_[0]}")); E(raw("s_sleep 127")); E(salu('s_sub_u32', sLC, sLC, 1)); E(salu('s_cmp_lg_u32', None, sLC, 0)); E(raw(f"s_cbranch_scc1 L_{kind}_dl{r_[0]}"))
            E(label(f"L_{kind}_nd{r_[0]}"))
    PS(56)
    lane = v(0)
    ILV = CFG.get('ilv') and not MS
    setup = []
    if ILV:
        E(valu('v_lshrrev_b32', v(48), 4, lane)); E(valu('v_and_b32', v(49), 15, lane)); E(valu('v_bfe_u32', v(50), lane, 1, 3)); E(valu('v_xor_b32', v(50), v(50), v(48)))
        E(valu('v_lshlrev_b32', v(49), 7, v(49))); E(valu('v_add_u32', v(49), s(6), v(49)))
        E(valu('v_lshl_add_u32', v(20), v(50), 4, v(49))); E(valu('v_xor_b32', v(21), 64, v(20)))
        def E(i):
            if isinstance(i, (list, tuple)):
                for x in i: E(x)
            else: setup.append(i)
    E(shl(sT2, sRB, 2)); E(add(sT2, sT2, sWAVE)); E(shl(sT2, sT2, 16)); E(valu('v_or_b32', vTID, sT2, lane))
    if kind in 'AM' and CFG.get('pair'):
        sHP_, sHS_ = s(86), s(85)
        if CFG.get('l844'): E(shl(sHP_, sROLE, 1)); E(add(sHP_, sHP_, 8))
        else: E(mul(sHP_, sROLE, 3))
        if kind == 'A':
            sHP_, sHS_ = sFA, sFC
            E(mul(sHS_, sROLE, 3)); E(salu('s_and_b32', s(4), sROLE, 1)); E(add(sHP_, sHS_, s(4)))
            E(shl(s(4), s(4), 1)); E(add(sHS_, sHS_, 2)); E(salu('s_sub_u32', sHS_, sHS_, s(4)))
            E(salu('s_sub_u32', sJQ, sHS_, sHP_)); E(shl(sJQ, sJQ, 8)); E(salu('s_sub_u32', sJQ, sJQ, 3 * 128))
        E(shl(sQ0, sHP_, 8))
        E(mul(sQA, sWAVE, 64 * 8192)); E(add(sQA, sQA, sQ0))
        E(shl(sQC, sWAVE, 16)); E(add(sQC, sQC, sQ0)); E(add(sQC, sQC, 256 * 8192))
        E(shr(s(3), sWAVE, 1)); E(shl(s(3), s(3), 13)); E(salu('s_and_b32', s(4), sWAVE, 1)); E(shl(s(4), s(4), 11)); E(add(s(3), s(3), s(4)))
        E(salu('s_sub_u32', s(3), s(3), 64)); E(shl(s(4), sWAVE, 11))
        for e, (h_, pfr) in enumerate([(sHP_, sPFa), (sHS_, sPFb)][:2 if kind == 'A' else 1]):
            E(shr(pfr, h_, 1)); E(shl(pfr, pfr, 19)); E(add(pfr, pfr, 1536 * 256))
            E(add(sKb[e], pfr, s(4))); E(add(sVb[e], pfr, s(3)))
        E(mul(sPFc, sROLE, 384 * 1152) if kind == 'A' else mul(sPFc, sHP_, 128 * 1152))
        if kind == 'A':
            E(mul(sHP_, sHP_, 128 * 1152)); E(mul(sHS_, sHS_, 128 * 1152))
            E(mul(sOA, sWAVE, 32 * 1152)); E(add(sOA1, sOA, sHS_)); E(add(sOA, sOA, sHP_))
            E(salu('s_sub_u32', sOA1, sOA1, 64 * 1152)); E(add(sT3, sOA, 192 * 1152)); E(salu('s_cmp_lt_u32', None, sWAVE, 2)); E(csel(sOA1, sT3, sOA1))
            E(shr(s(3), sWAVE, 1)); E(shl(s(3), s(3), 2)); E(salu('s_and_b32', s(4), sWAVE, 1)); E(add(s(3), s(3), s(4)))
            E(mul(sOB, s(3), 8 * 1152)); E(add(sOB1, sOB, sHS_)); E(add(sOB1, sOB1, 64 * 1152)); E(add(sOB, sOB, sHP_)); E(add(sOB, sOB, 128 * 1152))
        else:
            E(mul(sOA, sWAVE, 64 * 1152)); E(add(sOA, sOA, sPFc))
    elif kind in 'AM':
        E(mul(sT3, sROLE, 3 * 256))
        E(mul(sQA, sWAVE, 64 * 8192)); E(add(sQA, sQA, sT3))
        E(shl(sQC, sWAVE, 16)); E(add(sQC, sQC, sT3)); E(add(sQC, sQC, 256 * 8192))
        E(shr(s(3), sWAVE, 1)); E(shl(s(3), s(3), 13)); E(salu('s_and_b32', s(4), sWAVE, 1)); E(shl(s(4), s(4), 11)); E(add(s(3), s(3), s(4)))
        E(salu('s_sub_u32', s(3), s(3), 64)); E(shl(s(4), sWAVE, 11))
        if MS: E(shl(s(3), sWAVE, 12))
        for e in range(3 if kind == 'A' else 2):
            E(mul(sT3, sROLE, 3)); E(add(sT3, sT3, e)); E(shr(sT3, sT3, 1)); E(shl(sT3, sT3, 19)); E(add(sT3, sT3, 1536 * 256))
            if e == 0: E(smov(sPFa, sT3))
            if e == (2 if kind == 'A' else 1): E(smov(sPFb, sT3))
            E(add(sKb[e], sT3, s(4))); E(add(sVb[e], sT3, s(3)))
        E(mul(sPFc, sROLE, 384 * 1152))
        if kind == 'A':
            E(mul(sOA, sWAVE, 32 * 1152)); E(add(sOA, sOA, sPFc))
            E(shr(s(3), sWAVE, 1)); E(shl(s(3), s(3), 2)); E(salu('s_and_b32', s(4), sWAVE, 1)); E(add(s(3), s(3), s(4)))
            E(mul(sOB, s(3), 8 * 1152)); E(add(sOB, sOB, sPFc)); E(add(sOB, sOB, 128 * 1152))
        else:
            E(mul(sOA, sWAVE, 64 * 1152)); E(add(sOA, sOA, sPFc))
    if kind in 'FM':
        if kind == 'F':
            E(salu('s_sub_u32', s(3), sROLE, NA + NM)); E(mul(sPF1, s(3), 13 * 128)); E(shl(sPF1h, s(3), 6)); E(add(sPF1h, sPF1h, 69 * 128))
        elif CFG.get('l844'):
            E(mul(sPF1, sROLE, 5 * 128)); E(add(sPF1, sPF1, (52 - 40) * 128)); E(smov(sPF1h, sPF1))
        else:
            E(smov(sPF1, f_fullcol(5) * 2)); E(smov(sPF1h, f_halfcol(5) * 2))
        E(mul(sHA, sWAVE, 64 * 9216)); E(add(sHA, sHA, sPF1))
        E(mul(sHC, sWAVE, 8 * 9216)); E(add(sHC, sHC, sPF1)); E(add(sHC, sHC, 256 * 9216))
        E(mul(sHH, sWAVE, 128 * 9216)); E(add(sHH, sHH, sPF1h))
        E(mul(sHHC, sWAVE, 16 * 9216)); E(add(sHHC, sHHC, sPF1h)); E(add(sHHC, sHHC, 512 * 9216))
        E(mul(sPF2, sPF1, 576)); E(mul(sPF2h, sPF1h, 576))
        E(mul(sFA, sWAVE, 64 * 1152)); E(add(sFA, sFA, sPF2))
        if MS:
            E(salu('s_and_b32', s(3), sWAVE, 1)); E(shl(s(3), s(3), 1)); E(shr(s(4), sWAVE, 1)); E(add(s(3), s(3), s(4))); E(mul(sFC, s(3), 8 * 1152))
        else: E(mul(sFC, sWAVE, 4 * 1152))
        E(add(sFS, sFC, sPF2h)); E(add(sFC, sFC, sPF2)); E(add(sFC, sFC, 256 * 1152))
    if CFG['pf'] >= 3:
        if kind in 'AM': E(mul(sT3, sROLE, 3 * 256) if not CFG.get('pair') else smov(sT3, sQ0))
        E(pf_row_setup(kind, 8192 if kind in 'AM' else 9216, 18, sT3 if kind in 'AM' else sPF1, 0))
        f_ = pf_row(kind, sWQ if kind in 'AM' else sW1)
        early_pf = [f_()[1]] + f_() + f_()
        if CFG.get('ez'): E(early_pf[0])
        if CFG.get('epf', 1) == 3:
            R.pf.setdefault(0, [])[:0] = [f_, f_]
    E(add(sT3, sROLE, NS - NA if kind == 'F' else 0))
    E(mul(sSt, sT3, PSTR())); E(shl(sT3, sRB, 2)); E(add(sT3, sT3, sWAVE)); E(mul(sT3, sT3, PWAVE)); E(add(sSt, sSt, sT3))
    if kind == 'M': E(add(sSt2, sSt, (NS - NA) * PSTR()))
    if CFG['fused']:
        E(shl(sT2, sRB, 14)); E(add(sT2, sT2, CTRL))
        E(add(sT3, sROLE, NS - NA if kind == 'F' else 0)); E(shl(sT3, sT3, 2)); E(add(sT3, sT3, sT2))
        E(salu('s_cmp_eq_u32', None, sWAVE, 0)); E(csel(sT3, sT3, OOB)); E(csel(sT2, sT2, OOB))
        E(valu('v_and_b32', v(24), 15, lane)); E(valu('v_lshlrev_b32', v(25), 7, v(24))); E(valu('v_add_u32', v(25), 128, v(25)))
        E(raw("v_cmp_eq_u32 vcc, 0, v24", 'valu', wr=['vcc'], rd=[v(24)])); E(valu('v_cndmask_b32', v(25), v(25), 0, 'vcc') if False else raw("v_cndmask_b32 v25, v25, v24, vcc", 'valu', wr=[v(25)], rd=[v(25), v(24), 'vcc']))
        E(valu('v_lshrrev_b32', v(26), 4, lane)); E(valu('v_lshl_add_u32', v(25), v(26), 2 + (NS - NA).bit_length() - 1, v(25))); E(valu('v_add_u32', v(25), sT3, v(25)))
        E(raw(f"s_mov_b64 vcc, {hex(((1 << (NA + 1)) - 1) * (0x10001 if kind == 'M' else 1))}", 'salu', wr=['vcc'])); E(valu('v_mov_b32', vCT, OOB)); E(nop(1))
        E(raw(f"v_cndmask_b32 {vCT}, {vCT}, v25, vcc", 'valu', wr=[vCT], rd=[vCT, v(25), 'vcc']))
        E(valu('v_mov_b32', v(24), vCT))
        if CFG.get('abn'):
            E(valu('v_and_b32', v(26), 15, lane)); E(valu('v_lshlrev_b32', v(26), 8, v(26))); E(add(sT2, sT2, ABN)); E(valu('v_add_u32', v(26), sT2, v(26)))
            if kind == 'A' and CFG.get('bal') == 2:
                E(valu('v_mov_b32', v(27), sROLE))
                for lim, tab, base in ((15, BAL2, 10), (31, BAL3, 21), (47, [BALM[i] if BALM[i] < 36 else BAL3[i] for i in range(10)], 21)):
                    t_ = [x - base for x in tab]
                    E(smov(s(98), sum(t_[i] << (4 * i) for i in range(8)))); E(smov(s(99), t_[8] | (t_[9] << 4)))
                    E(shl(s(4), sROLE, 2)); E(salu('s_lshr_b64', s(98, 2), s(98, 2), s(4))); E(salu('s_and_b32', s(4), s(98), 15)); E(add(s(4), s(4), base))
                    E(valu('v_mov_b32', v(25), s(4)))
                    E(raw(f"v_cmp_lt_u32 vcc, {lim}, v0", 'valu', wr=['vcc'], rd=[lane])); E(raw("v_cndmask_b32 v27, v27, v25, vcc", 'valu', wr=[v(27)], rd=[v(27), v(25), 'vcc']))
            elif kind == 'F' and CFG.get('bal') == 2:
                E(valu('v_mov_b32', v(27), 40))
            elif kind == 'A':
                t_ = [x - 20 for x in ([28, 29, 23, 30, 31, 24, 32, 33, 34, 35] if CFG.get('m3') else [28, 29, 22, 30, 31, 21, 32, 33, 34, 35])]
                E(smov(s(98), sum(t_[i] << (4 * i) for i in range(8)))); E(smov(s(99), t_[8] | (t_[9] << 4)))
                E(shl(s(4), sROLE, 2)); E(salu('s_lshr_b64', s(98, 2), s(98, 2), s(4))); E(salu('s_and_b32', s(4), s(98), 15)); E(add(s(4), s(4), 20))
                E(valu('v_mov_b32', v(27), s(4))); E(add(s(4), sROLE, 10)); E(valu('v_mov_b32', v(25), s(4)))
                E(raw("v_cmp_gt_u32 vcc, 32, v0", 'valu', wr=['vcc'], rd=[lane])); E(raw("v_cndmask_b32 v27, v27, v25, vcc", 'valu', wr=[v(27)], rd=[v(27), v(25), 'vcc']))
                E(valu('v_mov_b32', v(25), sROLE))
                E(raw("v_cmp_gt_u32 vcc, 16, v0", 'valu', wr=['vcc'], rd=[lane])); E(raw("v_cndmask_b32 v27, v27, v25, vcc", 'valu', wr=[v(27)], rd=[v(27), v(25), 'vcc']))
            elif CFG.get('m3') and kind == 'M':
                E(valu('v_lshrrev_b32', v(27), 4, lane)); E(valu('v_min_u32', v(27), 2, v(27))); E(valu('v_add_u32', v(27), 20, v(27)))
            elif CFG.get('m3'):
                E(add(s(4), sROLE, 12)); E(salu('s_cmp_lt_u32', None, sROLE, 13)); E(csel(s(4), 40, s(4))); E(valu('v_mov_b32', v(27), s(4)))
            else:
                E(smov(s(4), 20) if kind == 'M' else add(s(4), sROLE, 12)); E(valu('v_mov_b32', v(27), s(4)))
            E(valu('v_lshl_add_u32', v(26), v(27), 2, v(26))); E(valu('v_mov_b32', v(25), 0))
            z = bstore('buffer_store_dword', v(25), v(26), sWS, 0, flags='sc1'); z.tag = 'zero'; E(z)
        else:
            assert not (CFG.get('l844') or CFG.get('four') or CFG.get('nof'))
            E(add(sT2, sT2, 4 * (NPART + 1)))
            def flag(lane_, item):
                E(raw(f"s_lshl2_add_u32 {sT3}, {item}, {sT2}", 'salu', wr=[sT3], rd=[item, sT2]))
                E(raw(f"v_writelane_b32 v24, {sT3}, {lane_}", 'valu', wr=[v(24)], rd=[sT3, v(24)]))
            def tflag(lane_, tab, base):
                t_ = [min(x - base, 15) for x in tab]
                E(smov(s(98), sum(t_[i] << (4 * i) for i in range(8)))); E(smov(s(99), t_[8] | (t_[9] << 4)))
                E(shl(s(4), sROLE, 2)); E(salu('s_lshr_b64', s(98, 2), s(98, 2), s(4))); E(salu('s_and_b32', s(4), s(98), 15)); E(add(s(4), s(4), base)); flag(lane_, s(4))
            if kind == 'A' and CFG.get('bal'):
                flag(32, sROLE); tflag(33, BAL2, 10); tflag(34, BAL3, 21)
                tflag(35, [x if x < 36 else i for i, x in enumerate(BALM)][:0] + [(BALM[i] if BALM[i] < 36 else BAL2[i]) for i in range(10)], 10)
            elif kind == 'A':
                flag(32, sROLE); E(add(s(4), sROLE, 10)); flag(33, s(4)); tflag(34, [28, 29, 22, 30, 31, 21, 32, 33, 34, 35], 20)
            elif kind == 'F' and CFG.get('bal'):
                E(add(s(4), sROLE, 12)); E(salu('s_cmp_lt_u32', None, sROLE, 13)); E(csel(s(4), 41, s(4))); flag(32, s(4))
            else:
                E(smov(s(4), 20) if kind == 'M' else add(s(4), sROLE, 12)); flag(32, s(4))
        E(valu('v_mov_b32', v(25), 0))
        z = bstore('buffer_store_dword', v(25), v(24), sWS, 0, flags='sc1'); z.tag = 'zero'; E(z)
        E(shl(sT2, sRB, 4)); E(salu('s_cmp_eq_u32', None, sWAVE, 0)); E(csel(sT2, sT2, 256))
        E(valu('v_mov_b32', v(23), 256)); E(raw(f"v_writelane_b32 v23, {sT2}, 0", 'valu', wr=[v(23)], rd=[sT2, v(23)]))
    T_ = [v(24), v(25), v(26), v(27), v(28), v(29)]
    q, r, c4, rb1 = T_[0], T_[1], T_[2], T_[3]
    E(valu('v_lshrrev_b32', q, 4, lane)); E(valu('v_bfe_u32', r, lane, 2, 2)); E(valu('v_and_b32', c4, 3, lane)); E(valu('v_bfe_u32', rb1, lane, 3, 1))
    E(valu('v_and_b32', T_[4], 7, lane)); E(valu('v_bfe_u32', T_[5], lane, 4, 1)); E(valu('v_lshlrev_b32', T_[5], 1, T_[5]))
    E(valu('v_xor_b32', T_[4], T_[4], T_[5])); E(valu('v_lshlrev_b32', vSWZ, 4, T_[4]))
    E(valu('v_lshrrev_b32', T_[4], 5, lane)); E(valu('v_and_b32', T_[5], 3, vROWN)); E(valu('v_lshl_add_u32', vROWP, T_[4], 4, T_[5]))
    E(smov(sT2, PP)); E(valu('v_mul_u32_u24', T_[4], sT2, q)); E(valu('v_lshl_add_u32', T_[4], r, 7, T_[4]))
    E(valu('v_lshl_add_u32', T_[4], c4, 3, T_[4])); E(valu('v_lshl_add_u32', vRW[0][0], rb1, 5, T_[4]))
    E(valu('v_mov_b32', vDP, vRW[0][0]))
    if MS:
        E(valu('v_and_b32', T_[4], 7, lane)); E(valu('v_bfe_u32', T_[5], lane, 4, 1)); E(valu('v_lshlrev_b32', T_[5], 2, T_[5]))
        E(valu('v_xor_b32', T_[4], T_[4], T_[5])); E(valu('v_lshlrev_b32', vSWZM, 4, T_[4]))
        E(valu('v_bfe_u32', q, lane, 4, 1)); E(valu('v_lshlrev_b32', q, 5, q))
        E(valu('v_and_b32', T_[4], 1, lane)); E(valu('v_lshl_add_u32', q, T_[4], 4, q))
        E(valu('v_bfe_u32', T_[4], lane, 1, 1)); E(valu('v_lshl_add_u32', q, T_[4], 3, q))
        E(valu('v_lshrrev_b32', T_[5], 5, lane))
        E(smov(sT2, PP)); E(valu('v_mad_u32_u24', T_[4], T_[5], sT2, q)); E(valu('v_lshl_add_u32', T_[4], r, 7, T_[4]))
        E(valu('v_lshl_add_u32', vRW[0][0], rb1, 6, T_[4])); E(valu('v_xor_b32', rb1, 1, rb1)); E(valu('v_lshl_add_u32', vRW[0][1], rb1, 6, T_[4]))
        if kind in 'FM':
            E(valu('v_lshl_add_u32', vRH[0], T_[5], 9, q)); E(valu('v_lshl_add_u32', vRH[0], r, 6, vRH[0]))
            E(valu('v_lshlrev_b32', T_[4], 4, c4)); E(valu('v_lshrrev_b32', T_[5], 2, lane)); E(smov(sT2, 9216))
            E(valu('v_mad_u32_u24', vOFFH, T_[5], sT2, T_[4]))
        E(valu('v_lshrrev_b32', q, 4, lane))
    else:
        E(valu('v_xor_b32', vRW[0][1], 32, vRW[0][0]))
    for b in (1, 2):
        for T in range(2): E(valu('v_add_u32', vRW[b][T], 65536 * b, vRW[0][T]))
    if kind in 'FM' and not MS:
        E(valu('v_lshlrev_b32', T_[4], 9, q)); E(valu('v_lshl_add_u32', T_[4], r, 6, T_[4])); E(valu('v_lshl_add_u32', T_[4], c4, 3, T_[4]))
        E(valu('v_and_b32', T_[5], 1, q)); E(valu('v_lshl_add_u32', vRH[0], T_[5], 5, T_[4])); E(valu('v_xor_b32', vRH[1], 32, vRH[0]))
        E(valu('v_lshrrev_b32', T_[4], 5, lane)); E(valu('v_lshlrev_b32', T_[4], 1, T_[4])); E(valu('v_xor_b32', T_[4], T_[4], c4))
        E(valu('v_lshlrev_b32', T_[4], 4, T_[4])); E(valu('v_lshrrev_b32', T_[5], 2, lane)); E(smov(sT2, 9216))
        E(valu('v_mad_u32_u24', vOFFH, T_[5], sT2, T_[4]))
    if kind in 'AM':
        E(valu('v_and_b32', T_[4], 15, lane)); E(valu('v_xor_b32', T_[4], T_[4], q)); E(valu('v_lshlrev_b32', T_[4], 4, T_[4]))
        E(valu('v_lshl_add_u32', vOFFK, q, 8, T_[4]))
    E(set_offw(8192 if kind in 'AM' else 9216, 'M' if MS else 'S'))
    if MS:
        XA = [v(20), v(21), v(22), v(39)]
        E(valu('v_and_b32', T_[4], 31, lane)); E(valu('v_bfe_u32', T_[5], lane, 1, 3)); E(valu('v_lshrrev_b32', q, 5, lane)); E(valu('v_xor_b32', T_[5], T_[5], q))
        E(valu('v_lshlrev_b32', T_[4], 7, T_[4])); E(valu('v_add_u32', T_[4], s(6), T_[4]))
        E(valu('v_lshl_add_u32', XA[0], T_[5], 4, T_[4]))
        for tt in range(1, 4): E(valu('v_xor_b32', XA[tt], 32 * tt, XA[0]))
    else:
        E(valu('v_and_b32', T_[4], 15, lane)); E(valu('v_bfe_u32', T_[5], lane, 1, 3)); E(valu('v_xor_b32', T_[5], T_[5], q))
        E(valu('v_lshlrev_b32', T_[4], 7, T_[4])); E(valu('v_add_u32', T_[4], s(6), T_[4]))
        E(valu('v_lshl_add_u32', v(20), T_[5], 4, T_[4])); E(valu('v_xor_b32', v(21), 64, v(20)))
        if kind in 'AM':
            E(smov(sT2, PP)); E(valu('v_mul_u32_u24', v(22), sT2, r)); E(valu('v_lshl_add_u32', v(22), c4, 8, v(22)))
            E(valu('v_xor_b32', T_[4], q, c4)); E(valu('v_lshl_add_u32', v(22), T_[4], 4, v(22)))
    E(valu('v_lshlrev_b32', vLANE16, 4, lane))
    if CFG['stamps'] == 2: E(valu('v_mov_b32', vSTAMP, 0))
    if CFG['fused'] and CFG.get('rep') and kind in 'FM':
        E(rep_addr(kind, v(24), v(25))); E(valu('v_mov_b32', v(25), 0))
        z = bstore('buffer_store_dword', v(25), v(24), sWS, 0, flags='sc1'); z.tag = 'zero'; E(z)
    E = p.emit
    sONE = s(97) if ILV else sT2
    SA = 56 if ILV else 28
    for i in range(8): E(valu('v_mov_b32', v(SA + i), 0))
    E(smov(sONE, 0x3f803f80))
    def stats(j):
        for tt in range(2):
            for g in range(2):
                for qd in range(4):
                    x = X(2 * j + tt, g)[qd]
                    E(valu('v_dot2c_f32_bf16', v(SA + 2 * g + (qd & 1)), sONE, x, rmw=True))
                    E(valu('v_dot2c_f32_bf16', v(SA + 4 + 2 * g + (qd & 1)), x, x, rmw=True))
    PS(57)
    for j in range(9):
        E(waitvm(p.vm_wait_for(lambda t: t == ('x', j))))
        if j == 0: PS(58)
        if MS:
            for tt in range(4): E(ds_b128(XM(4 * j + tt), XA[tt], j * 4096))
        else:
            for tt in range(2):
                for g in range(2): E(ds_b128(X(2 * j + tt, g), v(20 + tt), j * 4096 + g * 2048))
        if j + CFG['xe'] < 9: E(xdma(j + CFG['xe']))
        if CFG['pf'] >= 3 and CFG.get('epf', 1) == 1 and j == max(8 - CFG['xe'], 0): E(early_pf)
        if ILV:
            nper = -(-len(setup) // max(CFG['ilv'] - j, 1))
            while nper < len(setup) and (SCC in setup[nper].rd or setup[nper].txt.startswith('s_cselect') or VCC in setup[nper].rd): nper += 1
            E(setup[:nper]); del setup[:nper]
        if j >= 1:
            E(waitlg(4)); stats(j - 1)
    E(waitlg(0)); PS(59); E(barrier())
    if CFG.get('codepf', 3) == 2: E(I(f"global_load_dword {vDUM}, v46, s[100:101]", 'vload', wr=vDUM.regs(), rd=vr(46) + sr(100, 2), tag='pf'))
    if CFG['pf'] >= 3 and CFG.get('epf', 1) == 2: E(early_pf)
    pend = []
    for k in range(2 if CFG.get('pro2') else 3):
        st = R.stages[k]
        if st.pre_dma: pend.append(st.pre_dma())
        pend += st.dma(k, False)
    if CFG.get('epf', 1) == 4: pend[CFG.get('epos', 9):CFG.get('epos', 9)] = [early_pf[1:3], early_pf[3:5]]
    d0 = CFG.get('d0', 9)
    for it in pend[:d0]: E(it)
    pend = pend[d0:]
    PS(60)
    stats(8)
    acc4 = [v(SA), v(SA + 2), v(SA + 4), v(SA + 6)]
    for x in acc4: E(valu('v_add_f32', x, x, v(x.n + 1)))
    if MS:
        for b_ in (0, 2):
            E(valu('v_add_f32', acc4[b_], acc4[b_], acc4[b_ + 1]))
        for b_ in (0, 2): E(valu('v_mov_b32', acc4[b_ + 1], acc4[b_]))
    for op in (('v_permlane32_swap_b32',) if MS else ('v_permlane16_swap_b32', 'v_permlane32_swap_b32')):
        for x in acc4: E(valu('v_mov_b32', v(x.n + 1), x))
        for x in acc4: E(valu(op, x, v(x.n + 1), rmw=True, extra_wr=[v(x.n + 1)]))
        for x in acc4: E(valu('v_add_f32', x, x, v(x.n + 1)))
    for x in acc4: E(valu('v_mul_f32', x, f2u(1.0 / 576), x))
    for g in range(2): E(valu('v_fma_f32', acc4[2 + g], '-' + str(acc4[g]), acc4[g], acc4[2 + g]))
    for g in range(2): E(valu('v_max_f32', acc4[2 + g], 0, acc4[2 + g]))
    for g in range(2): E(valu('v_add_f32', acc4[2 + g], f2u(1e-5), acc4[2 + g]))
    for g in range(2): E(valu('v_rsq_f32', acc4[2 + g], acc4[2 + g]))
    for g in range(2): E(valu('v_mul_f32', acc4[2 + g], f2u(-LOG2E), acc4[2 + g]))
    for g in range(2): E(valu('v_mov_b32', v(20 + g), acc4[g]))
    for g in range(2): E(valu('v_mul_f32', acc4[g], '-' + str(acc4[g]), acc4[2 + g], extra_rd=[acc4[g]]))
    E(smov(sT2, 0xffff0000))
    if CFG.get('dotn'):
        cl = [v(SA + 1), v(SA + 3)]; ch = [v(SA + 5), v(SA + 7)]
        for g in range(2): E(valu('v_cvt_pk_bf16_f32', cl[g], acc4[2 + g], 0))
        for g in range(2): E(valu('v_lshlrev_b32', ch[g], 16, cl[g]))
        for g in range(2): E(valu('v_mul_f32', acc4[g], '-' + str(v(20 + g)), ch[g], extra_rd=[v(20 + g)]))
    PS(61)
    n = 0
    for t in range(18):
        for g in range(2):
            tps = [v(24, 2), v(26, 2), v(16, 2), v(18, 2)]
            x = X(t, g)
            if CFG.get('dotn'):
                for qd in range(4):
                    E(valu('v_dot2_f32_bf16', tps[qd][0], x[qd], cl[g], acc4[g])); E(valu('v_dot2_f32_bf16', tps[qd][1], x[qd], ch[g], acc4[g]))
            else:
                for qd in range(4):
                    E(valu('v_lshlrev_b32', tps[qd][0], 16, x[qd])); E(valu('v_and_b32', tps[qd][1], sT2, x[qd]))
                for qd in range(4): E(valu('v_pk_fma_f32', tps[qd], tps[qd], v(acc4[2 + g].n, 2), v(acc4[g].n, 2), mods='op_sel_hi:[1,0,0]'))
            for qd in range(4): E(valu('v_cvt_pk_bf16_f32', x[qd], tps[qd][0], tps[qd][1]))
            if pend and n % CFG.get('dn', 2) == 0: E(pend.pop(0))
            n += 1
    for it in pend: E(it)
    if CFG['fused']:
        E(valu('v_mov_b32', v(24), 1)); E(waitvm(p.vm_wait_for(lambda t: t == 'zero')))
        E(I(f"buffer_atomic_add v24, v23, {sDBG}, 0 offen sc1", 'vstore', rd=vr(23, 2) + sDBG.regs(), units=3, tag='init'))
    for _ in range(CFG.get('idle', 0)): E(raw("s_sleep 16"))
    PS(62)
    if kind in 'AM' and MS:
        ln, m_, key, t_ = v(16), v(17), v(18), v(19)
        E([valu('v_lshrrev_b32', ln, 4, vLANE16), valu('v_and_b32', key, 19, ln),
           valu('v_bfe_u32', t_, ln, 2, 1), valu('v_lshl_add_u32', key, t_, 3, key),
           valu('v_bfe_u32', t_, ln, 3, 1), valu('v_lshl_add_u32', key, t_, 2, key),
           valu('v_lshrrev_b32', m_, 2, key), smov(sT2, PP), valu('v_mul_u32_u24', m_, sT2, m_),
           valu('v_and_b32', key, 3, key), valu('v_lshl_add_u32', m_, key, 8, m_),
           valu('v_lshrrev_b32', t_, 5, ln), valu('v_xor_b32', t_, t_, key),
           valu('v_lshl_add_u32', vRKM[0], t_, 4, m_), valu('v_xor_b32', vRKM[1], 32, vRKM[0])])
    elif kind in 'AM':
        E(valu('v_mov_b32', vRK[0], v(22))); E(valu('v_add_u32', vRK[1], 65536, v(22))); E(valu('v_add_u32', vRK[2], 131072, v(22)))
    if CFG['stamps']: E(raw(f"v_writelane_b32 {vSTAMP}, s96, 55", 'valu', wr=[vSTAMP], rd=[s(96)])) if kind != 'A' else None
    if CFG['stamps']: E(smov(s(43), s(96)))
    nlr = {'F': 10, 'A': 11, 'M': 8}[kind]
    if kind != 'M': E([valu('v_lshrrev_b32', vPF2, 16, vTID), valu('v_and_b32', vPFR, 63, vTID), valu('v_min_u32', vPFR, nlr - 1, vPFR),
       valu('v_mad_u32_u24', vPFR, vPF2, nlr, vPFR), valu('v_lshlrev_b32', vPFR, 7, vPFR)])
    if CFG['stamps']: E(smov(s(97), 0))
    E(smov(sLN0, f2u(-1.0 / math.sqrt(128.0))))

def slow_check(R, heads, base2):
    def f():
        p = R.p; E = p.emit
        t = v(254); lo = v(255)
        E(valu('v_mov_b32', lo, f2u(2.0 ** -40))); E(smov(sT3, f2u(2.0 ** 40)))
        for (hd, Q, O) in heads:
            L = f"L_{R.kind}_slow{hd}"
            if CFG['shape'] == 'M':
                E(valu('v_med3_f32', t, Lsave[hd], sT3, lo))
                E(raw(f"v_cmp_neq_f32 vcc, {t}, {Lsave[hd]}", 'valu', wr=['vcc'], rd=[t, Lsave[hd]])); E(nop(4))
            else:
                E(valu('v_med3_f32', t, Lsave[2 * hd], sT3, lo))
                E(raw(f"v_cmp_neq_f32 s[98:99], {t}, {Lsave[2 * hd]}", 'valu', wr=[s(98, 2)], rd=[t, Lsave[2 * hd]]))
                E(valu('v_med3_f32', t, Lsave[2 * hd + 1], sT3, lo))
                E(raw(f"v_cmp_neq_f32 vcc, {t}, {Lsave[2 * hd + 1]}", 'valu', wr=['vcc'], rd=[t, Lsave[2 * hd + 1]])); E(nop(4))
                E(raw("s_or_b64 vcc, vcc, s[98:99]", 'salu', wr=['vcc'], rd=['vcc', s(98, 2)])); E(nop(1))
            if CFG.get('force_slow'): E(raw(f"s_mov_b64 vcc, -1", 'salu', wr=['vcc']))
            E(raw(f"s_cbranch_vccz {L}_ret"))
            E(raw(f"s_call_b64 {sRET}, {L}"))
            E(label(f"{L}_ret"))
            R.slow.append((slow_path if CFG['shape'] == 'M' else slow_pathS)(L, hd, Q, O, base2))
        E(nop(1))
    return f

def slow_path(L, hd, Q, Odst, b2):
    p = Prog(); E = p.emit
    O = v(48, 64); S = v(b2, 16); P = v(b2 + 16, 8); F = v(b2 + 24, 16)
    vK, vV, vM, vL, t0, t1 = [v(b2 + 40 + i) for i in range(6)]
    sB, sJ, sO = s(98), s(99), s(97)
    E(I(".p2align 2", 'label')); E(label(L))
    E(nop(7)); E(nop(7))
    E([valu('v_lshrrev_b32', t0, 4, vLANE16), valu('v_and_b32', vK, 19, t0), valu('v_bfe_u32', t1, t0, 2, 1), valu('v_lshl_add_u32', vK, t1, 3, vK),
       valu('v_bfe_u32', t1, t0, 3, 1), valu('v_lshl_add_u32', vK, t1, 2, vK), valu('v_lshrrev_b32', t1, 5, t0),
       valu('v_lshlrev_b32', vV, 1, vK), valu('v_lshl_add_u32', vV, t1, 11, vV),
       valu('v_lshlrev_b32', vK, 8, vK), valu('v_lshl_add_u32', vK, t1, 4, vK)])
    E([mul(sB, sROLE, 3), add(sB, sB, hd), shr(sB, sB, 1), shl(sB, sB, 19), add(sB, sB, 1536 * 256)])
    def qk():
        for half in range(2):
            for t in range(4): E(bload('buffer_load_dwordx4', F.sub(4 * t, 4), vK, sK, sO, (4 * half + t) * 32))
            E(waitvm(0))
            for t in range(4):
                tt = 4 * half + t
                E(mfma(S, F.sub(4 * t, 4), Q.sub(4 * tt, 4), 0 if tt == 0 else S))
            E(nop(7)); E(nop(7))
    E(valu('v_mov_b32', vM, 0xff800000)); E(smov(sJ, 0))
    E(label(L + "_a"))
    E(add(sO, sB, sJ)); qk()
    for i in range(0, 16, 2): E(valu('v_max3_f32', vM, vM, S[i], S[i + 1]))
    E(add(sJ, sJ, 8192)); E(salu('s_cmp_lt_u32', None, sJ, 16 * 8192)); E(raw(f"s_cbranch_scc1 {L}_a"))
    E(valu('v_mov_b32', t0, vM)); E(valu('v_permlane32_swap_b32', vM, t0, rmw=True, extra_wr=[t0])); E(valu('v_max_f32', vM, vM, t0))
    for i in range(64): E(valu('v_mov_b32', O[i], 0))
    E(valu('v_mov_b32', vL, 0)); E(smov(sJ, 0))
    E(label(L + "_b"))
    E(add(sO, sB, sJ)); qk()
    for i in range(16): E(valu('v_sub_f32', S[i], S[i], vM))
    for i in range(16): E(valu('v_exp_f32', S[i], S[i]))
    for i in range(16): E(valu('v_add_f32', vL, vL, S[i]))
    for q in range(8): E(valu('v_cvt_pk_bf16_f32', P[q], S[2 * q], S[2 * q + 1]))
    for u in range(2):
        for tp in range(2):
            for tq in range(2):
                for j in range(8):
                    E(bload('buffer_load_ushort', F[8 * (j & 1) + 4 * tq + j // 2], vV, sV, sO, j * 256 + (2 * tp + tq) * 64))
            E(waitvm(0))
            for i in range(8): E(valu('v_lshl_or_b32', F[i], F[8 + i], 16, F[i]))
            for tq in range(2):
                D_ = O.sub(16 * (2 * tp + tq), 16)
                E(mfma(D_, F.sub(4 * tq, 4), P.sub(4 * u, 4), D_))
            E(nop(7))
        if u == 0: E(add(sO, sO, 4096))
    E(add(sJ, sJ, 8192)); E(salu('s_cmp_lt_u32', None, sJ, 16 * 8192)); E(raw(f"s_cbranch_scc1 {L}_b"))
    E(nop(7)); E(nop(7))
    E(valu('v_mov_b32', t0, vL)); E(valu('v_permlane32_swap_b32', vL, t0, rmw=True, extra_wr=[t0])); E(valu('v_add_f32', vL, vL, t0))
    E(valu('v_rcp_f32', t0, vL))
    for tau in range(4):
        A_ = O.sub(16 * tau, 16)
        for e in range(16): E(valu('v_mul_f32', A_[e], A_[e], t0))
        for q in range(8): E(valu('v_cvt_pk_bf16_f32', A_[2 * q], A_[2 * q], A_[2 * q + 1]))
        for q in range(4): E(valu('v_permlane16_swap_b32', A_[2 * q], A_[2 * q + 8], rmw=True, extra_wr=[A_[2 * q + 8]]))
        for q in range(8): E(valu('v_accvgpr_write_b32', Odst[8 * tau + q], A_[2 * q]))
    E(nop(1)); E(raw(f"s_setpc_b64 {sRET}"))
    return p

def slow_pathS(L, hd, Q, Odst, b2):
    p = Prog(); E = p.emit
    ob = 48; kv = None
    if isinstance(b2, tuple): b2, ob = b2
    if isinstance(Odst, tuple):
        OFf, kv = Odst
        class _D:
            def __getitem__(s_, i): return OFf(i // 8)[i % 8]
        Odst = _D()
    O = v(ob, 64); S = v(b2, 16); P = v(b2 + 16, 8); F = v(b2 + 24, 16)
    vK, vV, t0, t1 = [v(b2 + 40 + i) for i in range(4)]
    vM = [v(b2 + 44), v(b2 + 45)]; vL = [v(b2 + 46), v(b2 + 47)]
    sB, sJ, sO = s(98), s(99), s(97)
    E(I(".p2align 2", 'label')); E(label(L))
    E(nop(7)); E(nop(7))
    E([valu('v_lshrrev_b32', t0, 4, vLANE16), valu('v_and_b32', t1, 15, t0), valu('v_lshrrev_b32', t0, 4, t0),
       valu('v_lshlrev_b32', vK, 8, t1), valu('v_lshl_add_u32', vK, t0, 4, vK),
       valu('v_lshlrev_b32', vV, 1, t1), valu('v_lshl_add_u32', vV, t0, 10, vV)])
    if kv is not None: E(smov(sB, kv))
    else: E([mul(sB, sROLE, 3), add(sB, sB, hd), shr(sB, sB, 1), shl(sB, sB, 19), add(sB, sB, 1536 * 256)])
    def qk():
        for T in range(2):
            E(add(sO, sB, sJ)) if T == 0 else E(add(sO, sO, 4096))
            for t in range(4): E(bload('buffer_load_dwordx4', F.sub(4 * t, 4), vK, sK, sO, t * 64))
            E(waitvm(0))
            for t in range(4):
                for g_ in range(2):
                    D_ = S.sub(8 * T + 4 * g_, 4)
                    E(mfma(D_, F.sub(4 * t, 4), Q.sub(8 * t + 4 * g_, 4), 0 if t == 0 else D_))
            E(nop(7)); E(nop(3))
    def allq(x, op):
        for sw in ('v_permlane16_swap_b32', 'v_permlane32_swap_b32'):
            E(valu('v_mov_b32', t0, x)); E(valu(sw, x, t0, rmw=True, extra_wr=[t0])); E(valu(op, x, x, t0))
    for g_ in range(2): E(valu('v_mov_b32', vM[g_], 0xff800000))
    E(smov(sJ, 0))
    E(label(L + "_a"))
    qk()
    for T in range(2):
        for g_ in range(2):
            for i in (0, 2): E(valu('v_max3_f32', vM[g_], vM[g_], S[8 * T + 4 * g_ + i], S[8 * T + 4 * g_ + i + 1]))
    E(add(sJ, sJ, 8192)); E(salu('s_cmp_lt_u32', None, sJ, 16 * 8192)); E(raw(f"s_cbranch_scc1 {L}_a"))
    for g_ in range(2): allq(vM[g_], 'v_max_f32')
    for i in range(64): E(valu('v_mov_b32', O[i], 0))
    for g_ in range(2): E(valu('v_mov_b32', vL[g_], 0))
    E(smov(sJ, 0))
    E(label(L + "_b"))
    qk()
    for i in range(16): E(valu('v_sub_f32', S[i], S[i], vM[(i >> 2) & 1]))
    for i in range(16): E(valu('v_exp_f32', S[i], S[i]))
    for i in range(16): E(valu('v_add_f32', vL[(i >> 2) & 1], vL[(i >> 2) & 1], S[i]))
    for g_ in range(2):
        for T in range(2):
            for k in range(2): E(valu('v_cvt_pk_bf16_f32', P[4 * g_ + 2 * T + k], S[8 * T + 4 * g_ + 2 * k], S[8 * T + 4 * g_ + 2 * k + 1]))
    for tp in range(4):
        for jh in range(2):
            E(add(sO, sB, sJ)) if jh == 0 else E(add(sO, sO, 4096))
            for tq in range(2):
                for jl in range(4):
                    j = 4 * jh + jl
                    E(bload('buffer_load_ushort', F[8 * (j & 1) + 4 * tq + j // 2], vV, sV, sO, jl * 256 + (2 * tp + tq) * 32))
        E(waitvm(0))
        for i in range(8): E(valu('v_lshl_or_b32', F[i], F[8 + i], 16, F[i]))
        for tq in range(2):
            for g_ in range(2):
                D_ = O.sub(8 * (2 * tp + tq) + 4 * g_, 4)
                E(mfma(D_, F.sub(4 * tq, 4), P.sub(4 * g_, 4), D_))
        E(nop(7))
    E(add(sJ, sJ, 8192)); E(salu('s_cmp_lt_u32', None, sJ, 16 * 8192)); E(raw(f"s_cbranch_scc1 {L}_b"))
    E(nop(7)); E(nop(3))
    for g_ in range(2): allq(vL[g_], 'v_add_f32')
    for g_ in range(2): E(valu('v_rcp_f32', vL[g_], vL[g_]))
    for i in range(64): E(valu('v_mul_f32', O[i], O[i], vL[(i >> 2) & 1]))
    for kk in range(4):
        for g_ in range(2):
            for T in range(2):
                for c in range(2):
                    r = 8 * (2 * kk + T) + 4 * g_ + 2 * c
                    E(valu('v_cvt_pk_bf16_f32', O[r], O[r], O[r + 1])); E(valu('v_accvgpr_write_b32', Odst[8 * kk + 4 * g_ + 2 * T + c], O[r]))
    E(nop(1)); E(raw(f"s_setpc_b64 {sRET}"))
    return p

NREP = 6
ABN = 4096
BAL2 = [10, 11, 22, 13, 14, 21, 12, 17, 15, 19]; BALM = [63, 63, 63, 63, 63, 63, 16, 63, 18, 63]; BAL3 = [28, 29, 23, 30, 31, 24, 32, 33, 34, 35]
sMD2 = s(84)
def BMB(): return 21 if CFG.get('bal') == 2 else 16
def rep_addr(kind, dst, t):
    return [shl(sT2, sRB, 14), add(sT2, sT2, CTRL + 2048), add(sT3, sROLE, NS - NA), shl(sT3, sT3, 2), add(sT2, sT2, sT3),
            salu('s_cmp_eq_u32', None, sWAVE, 0), csel(sT2, sT2, OOB),
            valu('v_lshlrev_b32', dst, 3, vLANE16), valu('v_add_u32', dst, sT2, dst), valu('v_mov_b32', t, OOB),
            raw(f"v_cmp_gt_u32 vcc, {hex(NA * NREP * 16)}, {vLANE16}", 'valu', wr=['vcc'], rd=[vLANE16]), valu('v_cndmask_b32', dst, t, dst, 'vcc')]
vCR = v(31)
def add_signals(R):
    P2 = [k for k, st in enumerate(R.stages) if st.name.startswith('P2')]
    def sig(first):
        def f():
            out = [valu('v_add_u32', vPRG, 1, vPRG)]
            return out + [bstore('buffer_store_dword', vPRG, vCT, sWS, 0, flags='sc1')]
        return f
    def sig7():
        return [valu('v_add_u32', vPRG, 1, vPRG), bstore('buffer_store_dword', vPRG, vCR, sWS, 0, flags='sc1'), bstore('buffer_store_dword', vPRG, vCT, sWS, 0, flags='sc1')]
    def chain(stages, base):
        firsts = [k for k in stages if R.stages[k].sub == 0]
        for c in range(8):
            k = firsts[c + 1] + CFG.get('siglag', {}).get(R.kind, 2)
            if k > stages[-1]: break
            R.stages[k].cover_st = base + c; R.stages[k].post_bar = sig(c == 0)
            if c == 7 and CFG.get('rep') and R.kind in 'FM': R.stages[k].post_bar = sig7
        if CFG.get('rep') and R.kind in 'FM': R.pf.setdefault(firsts[1], []).append(lambda: rep_addr(R.kind, vCR, vPF))
    chain(P2, 0)
    R.stages[P2[0]].post_bar = lambda: [valu('v_mov_b32', vPRG, 0)]

LDSC = 4 * SLOT
sAB = s(72, 2); sRM = s(74, 2); sCD = s(98, 2)
sRS, sRF, sSP, sC, sI, sPB, sPART, sOK, sPAR, sXW, sPWv, sTO = s(78), s(79), s(71), s(80), s(81), s(82), s(47), s(40), s(41), s(59), s(3), s(58)
sIT = [s(42), s(44), s(45)]; sXP = [s(46), s(60), s(61)]
sRET2 = s(66, 2)
vP, vD, vA, vO, vXO, vL4, vDO, vLA, vIT, vLD, vSC = [v(16 + i) for i in range(11)]
vX4 = v(28)
def s64(op, d, *src, scc_r=False): return salu(op, d, *src, scc_r=scc_r)
sPV = s(85)
def red_setup(kind):
    o = [shl(sPB, sRB, 14), add(sPB, sPB, CTRL), salu('s_cmp_eq_u32', None, sWAVE, 0), csel(sT3, 0, OOB),
         valu('v_lshrrev_b32', vL4, 2, vLANE16), valu('v_add_u32', vL4, sT3, vL4),
         valu('v_mov_b32', vSC, OOB), add(sT2, sT3, 4 * NPART), raw(f"v_writelane_b32 {vSC}, {sT2}, 0", 'valu', wr=[vSC], rd=[sT2, vSC]),
         valu('v_mov_b32', vS1, vSC), valu('v_min_u32', vL5, NPART * 16, vLANE16), valu('v_lshrrev_b32', vL5, 2, vL5), valu('v_add_u32', vL5, sT3, vL5),
         add(sT2, sT3, 252), raw(f"v_writelane_b32 {vSC}, {sT2}, 1", 'valu', wr=[vSC], rd=[sT2, vSC]),
         shl(sT2, sRB, 4), add(sT2, sT2, sT3), valu('v_mov_b32', vDO, 256), raw(f"v_writelane_b32 {vDO}, {sT2}, 0", 'valu', wr=[vDO], rd=[sT2, vDO])]
    if kind == 'A': o += [shl(sPV, sROLE, 7), add(sPV, sPV, 256), add(sPV, sPV, sPB)]
    if CFG.get('abn'): o += [shl(sAV_, sROLE, 8), add(sAV_, sAV_, ABN), add(sAV_, sAV_, sPB)]
    return o
vS1, vL5 = v(29), v(30)
sAV_ = s(76 + 1); vP2 = v(31)
def ab_load(): return bload('buffer_load_dword', vP2, vL4, sWS, sAV_, flags='sc1')
def ab_eval():
    return [raw(f"v_cmp_ne_u32 vcc, 0, {vP2}", 'valu', wr=['vcc'], rd=[vP2]), nop(1), raw(f"s_mov_b32 {sAB[0]}, vcc_lo", 'salu', wr=[sAB[0]], rd=['vcc']), raw(f"s_and_b32 {sAB[1]}, vcc_hi, 15", 'salu', wr=[sAB[1]], rd=['vcc'])]
PRIV = [False]
def red_poll(shared=False):
    cnt = [valu('v_mov_b32', vD, 0), I(f"buffer_atomic_add {vD}, {vDO}, {sDBG}, 0 offen sc0 sc1", 'vload', wr=vD.regs(), rd=vD.regs() + vDO.regs() + sDBG.regs(), units=3)]
    if PRIV[0] and not shared:
        return [cnt, [bstore('buffer_store_dword', vS1, vS1, sWS, sPV, flags='sc1'), bload('buffer_load_dword', vP, vL5, sWS, sPV, flags='sc1')]]
    return [cnt, [bstore('buffer_store_dword', vSC, vSC, sWS, sPB, flags='sc1'), bload('buffer_load_dword', vP, vL4, sWS, sPB, flags='sc1')]]
vG = [v(28), v(29), v(30)]; vGA = v(31); vGP = v(27)
def l2pf_setup():
    return [valu('v_lshrrev_b32', vGP, 7, vLANE16), smov(sT2, PSTR()), valu('v_mul_lo_u32', vGA, vGP, sT2),
            valu('v_bfe_u32', vA, vLANE16, 4, 3), valu('v_lshl_add_u32', vGA, vA, 7, vGA), shl(sT2, sWAVE, 10), valu('v_add_u32', vGA, sT2, vGA),
            valu('v_lshlrev_b32', vGP, 2, vGP), valu('v_mov_b32', vA, OOB), smov(sT2, 68), raw(f"v_writelane_b32 {vA}, {sT2}, 0", 'valu', wr=[vA], rd=[vA, sT2])]
def l2pf_poll():
    st = bstore('buffer_store_dword', vA, vA, sWS, sPB, flags='sc1')
    out = [[st]]
    for i in range(3):
        ld = bload('buffer_load_dword', vG[i], vGP, sWS, sPB, 32 * i, flags='sc1'); ld.tag = 'gp'
        out.append([ld])
    return out
def l2pf_issue(R, dlt):
    out = [[add(sI, sROLE, dlt), salu('s_and_b32', sT2, sI, 3), shr(sC, sI, 2), shl(sT3, sRB, 2), add(sT2, sT2, sT3), mul(sSP, sT2, PWAVE),
            shl(sT3, sC, 12), add(sSP, sSP, sT3), valu('v_mov_b32', vO, OOB)]]
    for i in range(3):
        ld = bload('buffer_load_dword', vDUM, vG[i], sWS, sT2); ld.tag = 'pf'
        cmp_ = raw(f"v_cmp_lt_u32 vcc, {sC}, {vG[i]}", 'valu', wr=['vcc'], rd=[sC, vG[i]])
        pre = [cmp_]
        if i == 2: pre += [raw("s_and_b64 vcc, vcc, 0xff", 'salu', wr=['vcc'], rd=['vcc'])]
        out.append(pre + [add(sT2, sSP, 8 * i * PSTR()), valu('v_cndmask_b32', vG[i], vO, vGA, 'vcc'), ld])
    return out
def red_eval():
    o = [raw(f"v_cmp_ne_u32 vcc, 0, {vP}", 'valu', wr=['vcc'], rd=[vP]), nop(1),
         raw(f"s_lshr_b64 {sAB}, vcc, {NPART + 1}", 'salu', wr=[sAB], rd=['vcc']), salu('s_and_b32', sAB[1], sAB[1], 15), smov(sRS, 0), smov(sRF, 0)]
    for c in range(9):
        o += [raw(f"v_cmp_ge_u32 vcc, {c}, {vP}", 'valu', wr=['vcc'], rd=[vP]), nop(1),
              raw(f"s_and_b32 {sT2}, vcc_lo, {hex((1 << NS) - 1)}", 'salu', wr=[sT2], rd=['vcc']), csel(sRS, sRS, 4 * (c + 1)),
              raw(f"s_and_b32 {sT2}, vcc_lo, {hex((1 << NPART) - (1 << NS))}", 'salu', wr=[sT2], rd=['vcc']), csel(sRF, sRF, 4 * (c + 1))]
    return o
def red_pub(par):
    return [shl(sT2, sRF, 8), salu('s_or_b32', sT2, sT2, sRS), shl(sT3, sTO, 16), salu('s_or_b32', sT2, sT2, sT3),
            valu('v_mov_b32', vIT, sT2), valu('v_mov_b32', vLA, par), raw(f"ds_write_b32 {vLA}, {vIT}", 'other', rd=[vLA, vIT]), waitlg(0)]
def red_get(par):
    return [valu('v_mov_b32', vLA, par), raw(f"ds_read_b32 {vIT}, {vLA}", 'ds', wr=[vIT], rd=[vLA]), waitlg(0),
            valu('v_readfirstlane_b32', sT2, vIT), salu('s_and_b32', sRS, sT2, 255), salu('s_bfe_u32', sRF, sT2, (8 << 16) | 8), shr(sTO, sT2, 16)]
def red_early(p, n):
    E = p.emit
    E([smov(sRS, 0), smov(sRF, 0), smov(sOK, 0), smov(sTO, 0), smov(sPAR, LDSC + 4), nop(1)])
    E(salu('s_cmp_eq_u32', None, sWAVE, 0)); E(raw(f"s_cbranch_scc0 L_{n}_e2"))
    E(waitvm(p.vm_wait_for(lambda t: t == 'poll')))
    E(valu('v_readfirstlane_b32', sOK, vD))
    E(salu('s_cmp_ge_u32', None, sOK, 16)); E(raw(f"s_cbranch_scc0 L_{n}_e1"))
    E(red_eval())
    E(label(f"L_{n}_e1"))
    E(red_pub(LDSC))
    E(label(f"L_{n}_e2"))

def ld_part(L, ks, flags):
    out = []
    for k in ks:
        out.append([add(sT2, sPART, k * PSTR()), bload('buffer_load_dwordx4', v(L + 4 * k, 4), vLD, sWS, sT2, flags=flags)])
    return out
def ld_x(L, sXO_):
    if CFG.get('nox'): return [[valu('v_mov_b32', vA, OOB), bload('buffer_load_dwordx2', v(L + 4 * NPART, 2), vA, sX, sXO_)], [bload('buffer_load_dwordx2', v(L + 4 * NPART + 2, 2), vA, sX, sXO_, 32)]]
    return [[bload('buffer_load_dwordx2', v(L + 4 * NPART, 2), vXO, sX, sXO_)], [bload('buffer_load_dwordx2', v(L + 4 * NPART + 2, 2), vXO, sX, sXO_, 32)]]
RB_ = 48
sD0, sD1 = s(68), s(69)
def proc_sum(E, L, ks, after, loads):
    SA, FA, T = RB_, RB_ + 8, RB_ + 16
    issued = 0; ks = list(ks)
    E(smov(sT3, 0xffff0000))
    for j, k in enumerate(ks):
        if loads: E(loads.pop(0)); issued += 1
        E(waitvm(len(ks) - 1 - j + after + issued))
        acc = SA if k < NS else FA
        for q in range(4):
            x = v(L + 4 * k + q)
            if k in (0, NS):
                E(valu('v_lshlrev_b32', v(acc + 2 * q), 16, x)); E(valu('v_and_b32', v(acc + 2 * q + 1), sT3, x))
            else:
                E(valu('v_dot2c_f32_bf16', v(acc + 2 * q), sD0, x, rmw=True)); E(valu('v_dot2c_f32_bf16', v(acc + 2 * q + 1), sD1, x, rmw=True))
    return issued
def proc_fin(E, L, sXO_, xwait, loads):
    SA, FA, T = RB_, RB_ + 8, RB_ + 16; XR = L + 4 * NPART; issued = 0
    for e in range(8): E(valu('v_exp_f32', v(T + e), v(FA + e)))
    for e in range(8): E(valu('v_add_f32', v(T + e), 1.0, v(T + e)))
    while len(loads) > 1: E(loads.pop(0)); issued += 1
    for e in range(8): E(valu('v_rcp_f32', v(T + e), v(T + e)))
    for e in range(8): E(valu('v_mul_f32', v(FA + e), f2u(-math.log(2.0)), v(FA + e)))
    for e in range(8): E(valu('v_mul_f32', v(FA + e), v(FA + e), v(T + e)))
    while loads: E(loads.pop(0)); issued += 1
    if xwait is not None: E(waitvm(xwait + issued))
    for q in range(4):
        E(valu('v_lshlrev_b32', v(T + 2 * q), 16, v(XR + q))); E(valu('v_and_b32', v(T + 2 * q + 1), sT3, v(XR + q)))
    for e in range(8): E(valu('v_fma_f32', v(T + e), v(SA + e), v(FA + e), v(T + e)))
    for q in range(4): E(valu('v_cvt_pk_bf16_f32', v(XR + q), v(T + 2 * q), v(T + 2 * q + 1)))
    if CFG.get('out4', True):
        def dpp(d, src, bank): return I(f"v_mov_b32_dpp {d}, {src} row_ror:8 row_mask:0xf bank_mask:{bank}", 'perm', wr=d.regs(), rd=src.regs() + d.regs())
        for i in range(2): E(valu('v_permlane16_swap_b32', v(XR + i), v(XR + 2 + i), rmw=True, extra_wr=[v(XR + 2 + i)]))
        for i in range(2): E(valu('v_mov_b32', v(T + i), v(XR + i)))
        for i in range(2): E(dpp(v(XR + i), v(XR + 2 + i), '0xc'))
        for i in range(2): E(dpp(v(XR + 2 + i), v(T + i), '0x3'))
        E(bstore('buffer_store_dwordx4', v(XR, 4), vX4, sOUT, sXO_, flags=CFG.get('oflags', 'sc1')))
        E(valu('v_mov_b32', vO, OOB)); E(bstore('buffer_store_dword', vO, vO, sOUT, 0))
        return
    E(bstore('buffer_store_dwordx2', v(XR, 2), vXO, sOUT, sXO_)); E(bstore('buffer_store_dwordx2', v(XR + 2, 2), vXO, sOUT, sXO_, 32))
def proc_all(E, L, sXO_, pre, loads):
    loads = list(loads)
    n = proc_sum(E, L, range(NPART), 2 + pre, loads)
    proc_fin(E, L, sXO_, pre + n, loads)

def acc_part(E, L, k):
    acc = RB_ if k < NS else RB_ + 8
    for q in range(4):
        x = v(L + 4 * k + q)
        if k in (0, NS):
            E(valu('v_lshlrev_b32', v(acc + 2 * q), 16, x)); E(valu('v_and_b32', v(acc + 2 * q + 1), sT3, x))
        else:
            E(valu('v_dot2c_f32_bf16', v(acc + 2 * q), sD0, x, rmw=True)); E(valu('v_dot2c_f32_bf16', v(acc + 2 * q + 1), sD1, x, rmw=True))
def stream(E, segs, hooks=None):
    W = CFG.get('rwin', 8); FL = CFG.get('fflags', 'sc1')
    seq = []
    for (L, sP, sX_, ks, wx, fin) in segs:
        if wx:
            for it in ld_x(L, sX_): seq.append((it, None))
        ks = list(ks)
        for j, k in enumerate(ks):
            it = [add(sT2, sP, k * PSTR()), bload('buffer_load_dwordx4', v(L + 4 * k, 4), vLD, sWS, sT2, flags=FL)]
            last = fin and j == len(ks) - 1
            seq.append((it, (lambda L=L, k=k, last=last, sX_=sX_: (acc_part(E, L, k), proc_fin(E, L, sX_, None, []) if last else None, last)[2])))
    E(smov(sT3, 0xffff0000))
    n = len(seq); issued = 0
    extra_at = []
    for c in range(n):
        while issued < min(n, c + W): E(seq[issued][0]); issued += 1
        if hooks and c in hooks:
            for _ in range(hooks[c](issued + sum(1 for e in extra_at))): extra_at.append(issued)
            E(smov(sT3, 0xffff0000))
        if seq[c][1] is None: continue
        E(waitvm(issued - 1 - c + sum(1 for e in extra_at if e > c)))
        if seq[c][1]():
            extra_at += [issued, issued]

def body_items(E, n, its, two, ni, ensure, refresh, done, ST, seg, final_flag, poll_hook, LATE, L0, L1, FOUR, sMID, offs, sPT):
    if n == 'M' and CFG.get('m3'):
        ensure(its[2], 1, 1); ST(its[0])
        stream(E, [seg(0, L0), seg(1, L1), seg(2, L0)], {4: (lambda _: (E(ab_load()), 1)[1])})
        for i in range(3): done(its[i])
        return
    E(salu('s_min_u32', sT2, sRS, sRF)); E(salu('s_cmp_lt_u32', None, its[two - 1], sT2)); E(raw(f"s_cbranch_scc0 L_{n}_sl"))
    ST(its[0])
    AB = CFG.get('abn')
    def ab_hook(_): E(ab_load()); return 1
    hooks = {(NPART + 2) * two - CFG.get('pollat', 8): poll_hook}
    if AB:
        if ni < 3: hooks = {}
        hooks[14 if LATE else 4] = ab_hook
    if LATE: hooks[CFG.get('flagat', 3) if n == 'A' else 0] = final_flag
    stream(E, [seg(0, L0), seg(1, L1)][:two], hooks)
    ST(51)
    E(raw(f"s_branch L_{n}_j"))
    E(label(f"L_{n}_sl"))
    if LATE and two == 2 and CFG.get('mid1', 1):
        E(salu('s_min_u32', sT2, sRS, sRF)); E(salu('s_cmp_lt_u32', None, its[0], sT2)); E(raw(f"s_cbranch_scc0 L_{n}_s0"))
        ST(52)
        stream(E, [seg(0, L0)], {CFG.get('flagat', 3): final_flag, 12: poll_hook}); done(its[0])
        refresh(2); ensure(its[1], 1, 1)
        stream(E, [seg(1, L1)], {11: poll_hook, 3: ab_hook} if AB else {11: poll_hook})
        E(raw(f"s_branch L_{n}_j"))
        E(label(f"L_{n}_s0"))
    if LATE: final_flag(0)
    for i in range(two):
        ensure(its[i], 1, 1)
        hk = {11: poll_hook} if (i == two - 1 and not (AB and ni < 3)) else {}
        if AB and i == two - 1: hk[4] = ab_hook
        stream(E, [seg(i, L0)], hk); done(its[i])
    E(label(f"L_{n}_j"))
    for i in range(two): done(its[i])
    if FOUR or ((CFG.get('asg') == 3 or CFG.get('bal')) and n == 'A'):
        E(salu('s_cmp_gt_u32', None, sMID, 35)); E(raw(f"s_cbranch_scc1 L_{n}_nm"))
        refresh(2)
        ensure(sMID, 1, 1); ST(sMID)
        E(offs(sMID, sXP[0]))
        stream(E, [seg(0, L1)], {13: poll_hook}); done(sMID)
        E(label(f"L_{n}_nm"))
    def warm():
        if not CFG.get('warm', 1): return
        E(valu('v_mov_b32', v(240), vLD)); E(valu('v_mov_b32', v(241), vX4)); E(valu('v_mov_b32', vLD, OOB)); E(valu('v_mov_b32', vX4, OOB))
        E(raw(f"s_call_b64 {sRET2}, L_{n}_ft"))
        E(valu('v_mov_b32', vLD, v(240))); E(valu('v_mov_b32', vX4, v(241)))
    if ni == 3:
        if CFG.get('asg') == 3:
            E(salu('s_cmp_lt_u32', None, its[2], 36)); E(raw(f"s_cbranch_scc1 L_{n}_h3"))
            E(red_poll(True)[1]); E(waitvm(0)); E(raw(f"s_branch L_{n}_fin")); E(label(f"L_{n}_h3"))
        refresh(2, AB and CFG.get('abx', 1))
        if CFG.get('nof'):
            E(salu('s_cmp_gt_u32', None, sMD2, 35)); E(raw(f"s_cbranch_scc1 L_{n}_k1"))
            ensure(sMD2, 1, 1); E(offs(sMD2, sXP[0])); ST(sMD2)
            E(salu('s_cmp_lt_u32', None, its[2], sRS)); E(raw(f"s_cbranch_scc0 L_{n}_k0"))
            E(salu('s_cmp_lt_u32', None, its[2], sRF)); E(raw(f"s_cbranch_scc1 L_{n}_k0"))
            warm()
            stream(E, [seg(0, L1), seg(2, L0, range(NS), True, False)], {20: poll_hook.sh}); done(sMD2)
            E(raw(f"s_branch L_{n}_k2"))
            E(label(f"L_{n}_k0"))
            stream(E, [seg(0, L1)], {11: poll_hook}); done(sMD2)
            refresh(2)
            E(label(f"L_{n}_k1"))
        if CFG.get('pw') == 2 and n == 'A':
            E(salu('s_cmp_eq_u32', None, sMD2, 0)); E(raw(f"s_cbranch_scc0 L_{n}_old"))
            vQ, vZ = v(242), v(243); FM_ = (1 << NPART) - (1 << NS); SM_ = (1 << NS) - 1
            E(valu('v_min_u32', vQ, NPART * 16, vLANE16)); E(valu('v_lshrrev_b32', vQ, 2, vQ))
            E(valu('v_mov_b32', vZ, OOB)); E(smov(sT2, 4 * NPART)); E(raw(f"v_writelane_b32 {vZ}, {sT2}, 0", 'valu', wr=[vZ], rd=[sT2, vZ]))
            E(shr(sC, its[2], 2))
            def drop(): return bstore('buffer_store_dword', vZ, vZ, sWS, sPV, flags='sc1')
            def test(mask):
                E(raw(f"v_cmp_ge_u32 vcc, {sC}, {vP}", 'valu', wr=['vcc'], rd=[vP, sC])); E(nop(1))
                E(raw(f"s_and_b32 {sI}, vcc_lo, {hex(FM_)}", 'salu', wr=[sI], rd=['vcc']))
                E(raw(f"s_and_b32 {sT2}, vcc_lo, {hex(mask)}", 'salu', wr=[sT2], rd=['vcc']))
            def waitpw(tag, mask):
                L = f"L_{n}_{tag}"
                E(smov(sSP, 0))
                E(label(L + "0"))
                E(bload('buffer_load_dword', vP, vQ, sWS, sPV, flags='sc1'))
                E(salu('s_and_b32', sT2, sSP, 3)); E(salu('s_cmp_eq_u32', None, sT2, sWAVE)); E(raw(f"s_cbranch_scc0 {L}1"))
                E(drop()); E(waitvm(1)); E(raw(f"s_branch {L}2"))
                E(label(L + "1")); E(waitvm(0))
                E(label(L + "2"))
                test(mask); E(raw(f"s_cbranch_scc0 {L}3"))
                E(add(sSP, sSP, 1)); E(salu('s_cmp_gt_u32', None, sSP, 4 * CFG.get('spin', 4000))); E(raw(f"s_cbranch_scc1 {L}4"))
                E(raw(f"s_sleep {CFG.get('pwsleep', 2)}")); E(raw(f"s_branch {L}0"))
                E(label(L + "4"))
                E(valu('v_lshlrev_b32', vO, 4, vLANE16)); E(valu('v_mov_b32', vIT, OOB)); E(valu('v_mov_b32', vA, 1))
                E(raw(f"v_cmp_gt_u32 vcc, 0x100, {vLANE16}", 'valu', wr=['vcc'], rd=[vLANE16])); E(valu('v_cndmask_b32', vO, vIT, vO, 'vcc'))
                E(raw(f"s_lshl2_add_u32 {sT2}, {its[2]}, {sPB}", 'salu', wr=[sT2], rd=[its[2], sPB])); E(add(sT2, sT2, ABN))
                E(bstore('buffer_store_dword', vA, vO, sWS, sT2, flags='sc1')); E(waitvm(0))
                E(drop()); E(waitvm(0))
                E(bload('buffer_load_dword', vP, vQ, sWS, sPV, flags='sc1')); E(waitvm(0))
                test(SM_ | FM_); E(raw(f"s_cbranch_scc1 L_{n}_exit"))
                E(label(L + "3"))
            E(salu('s_min_u32', sT2, sRS, sRF)); E(salu('s_cmp_lt_u32', None, its[2], sT2)); E(raw(f"s_cbranch_scc1 L_{n}_f3"))
            E(salu('s_cmp_lt_u32', None, its[2], sRS)); E(raw(f"s_cbranch_scc1 L_{n}_ps"))
            waitpw('ws', SM_)
            E(salu('s_cmp_eq_u32', None, sI, 0)); E(raw(f"s_cbranch_scc1 L_{n}_f3"))
            E(label(f"L_{n}_ps")); ST(its[2])
            warm()
            stream(E, [seg(2, L0, range(NS), True, False)], {5: (lambda _: (E(drop()), 1)[1])})
            waitpw('wf', FM_); ST(50)
            E(raw(f"s_call_b64 {sRET2}, L_{n}_ft")); E(raw(f"s_branch L_{n}_exit"))
            E(label(f"L_{n}_ft"))
            stream(E, [seg(2, L0, range(NS, NPART), False, True)])
            E(raw(f"s_setpc_b64 {sRET2}"))
            E(label(f"L_{n}_old"))
            ensure(its[2], 1, 1)
            E(label(f"L_{n}_f3"))
            stream(E, [seg(2, L0)])
            done(its[2])
            E(salu('s_cmp_eq_u32', None, sMD2, 0)); E(raw(f"s_cbranch_scc1 L_{n}_exit")); E(raw(f"s_branch L_{n}_fb"))
            return
        ensure(its[2], 1, 0); ST(its[2])
        E(salu('s_cmp_lt_u32', None, its[2], sRF)); E(raw(f"s_cbranch_scc1 L_{n}_f3"))
        if CFG.get('rep') and n == 'A':
            warm()
            stream(E, [seg(2, L0, range(NS), True, False)], {4: poll_hook.sh})
            E(label(f"L_{n}_k2"))
            E(salu('s_cmp_eq_u32', None, sWAVE, 0)); E(raw(f"s_cbranch_scc0 L_{n}_w2"))
            E(waitvm(0))
            E(raw(f"v_cmp_ne_u32 vcc, 0, {vP}", 'valu', wr=['vcc'], rd=[vP])); E(nop(1))
            E(raw(f"s_lshr_b64 {sAB}, vcc, {NPART + 1}", 'salu', wr=[sAB], rd=['vcc'])); E(salu('s_and_b32', sAB[1], sAB[1], 15))
            E(salu('s_or_b32', sT2, sAB[0], sAB[1])); E(csel(sRS, 1, 0))
            E(shr(sC, its[2], 2)); E(mul(sI, sROLE, NREP * 128)); E(add(sI, sI, sPB)); E(add(sI, sI, 2048)); E(add(sSP, sI, NREP * 128))
            E(label(f"L_{n}_w0"))
            E(bload('buffer_load_dword', vP, vL5, sWS, sI, flags='sc1')); E(waitvm(0))
            E(raw(f"v_cmp_ge_u32 vcc, {sC}, {vP}", 'valu', wr=['vcc'], rd=[vP, sC])); E(nop(1))
            E(raw(f"s_and_b32 {sT2}, vcc_lo, {hex((1 << NPART) - (1 << NS))}", 'salu', wr=[sT2], rd=['vcc'])); E(csel(sRF, 0, 36))
            E(raw(f"s_cbranch_scc0 L_{n}_w1"))
            E(add(sI, sI, 128)); E(salu('s_cmp_lt_u32', None, sI, sSP)); E(raw(f"s_cbranch_scc0 L_{n}_w1"))
            E(raw(f"s_sleep {CFG.get('rsleep', 6)}")); E(raw(f"s_branch L_{n}_w0"))
            E(label(f"L_{n}_w1")); E(red_pub(sPAR))
            E(label(f"L_{n}_w2")); E(barrier()); E(red_get(sPAR)); E(salu('s_xor_b32', sPAR, sPAR, 12))
            E(smov(sMID, sRS))
            ensure(its[2], 0, 1); ST(50)
            E(raw(f"s_call_b64 {sRET2}, L_{n}_ft")); done(its[2])
            E(salu('s_cmp_eq_u32', None, sMID, 0)); E(raw(f"s_cbranch_scc1 L_{n}_exit")); E(raw(f"s_branch L_{n}_fb"))
            E(label(f"L_{n}_ft"))
            stream(E, [seg(2, L0, range(NS, NPART), False, True)])
            E(raw(f"s_setpc_b64 {sRET2}"))
        elif CFG.get('pw') and n == 'A':
            E(salu('s_cmp_eq_u32', None, sMD2, 0)); E(raw(f"s_cbranch_scc0 L_{n}_old"))
            warm()
            vQ, vZ = v(242), v(243)
            E(valu('v_min_u32', vQ, NPART * 16, vLANE16)); E(valu('v_lshrrev_b32', vQ, 2, vQ))
            E(valu('v_mov_b32', vZ, OOB)); E(smov(sT2, 4 * NPART)); E(raw(f"v_writelane_b32 {vZ}, {sT2}, 0", 'valu', wr=[vZ], rd=[sT2, vZ]))
            def drop_hook(_): E(bstore('buffer_store_dword', vZ, vZ, sWS, sPV, flags='sc1')); return 1
            stream(E, [seg(2, L0, range(NS), True, False)], {5: drop_hook})
            E(shr(sC, its[2], 2)); E(smov(sSP, 0))
            E(label(f"L_{n}_pw0"))
            E(bload('buffer_load_dword', vP, vQ, sWS, sPV, flags='sc1'))
            E(salu('s_and_b32', sT2, sSP, 3)); E(salu('s_cmp_eq_u32', None, sT2, sWAVE)); E(raw(f"s_cbranch_scc0 L_{n}_pw1"))
            E(bstore('buffer_store_dword', vZ, vZ, sWS, sPV, flags='sc1')); E(waitvm(1)); E(raw(f"s_branch L_{n}_pw2"))
            E(label(f"L_{n}_pw1")); E(waitvm(0))
            E(label(f"L_{n}_pw2"))
            E(raw(f"v_cmp_ge_u32 vcc, {sC}, {vP}", 'valu', wr=['vcc'], rd=[vP, sC])); E(nop(1))
            E(raw(f"s_and_b32 {sT2}, vcc_lo, {hex((1 << NPART) - (1 << NS))}", 'salu', wr=[sT2], rd=['vcc'])); E(raw(f"s_cbranch_scc0 L_{n}_pw3"))
            E(add(sSP, sSP, 1)); E(salu('s_cmp_gt_u32', None, sSP, 4 * CFG.get('spin', 4000))); E(raw(f"s_cbranch_scc1 L_{n}_pw4"))
            E(raw(f"s_sleep {CFG.get('pwsleep', 2)}")); E(raw(f"s_branch L_{n}_pw0"))
            E(label(f"L_{n}_pw4"))
            E(valu('v_lshlrev_b32', vO, 4, vLANE16)); E(valu('v_mov_b32', vIT, OOB)); E(valu('v_mov_b32', vA, 1))
            E(raw(f"v_cmp_gt_u32 vcc, 0x100, {vLANE16}", 'valu', wr=['vcc'], rd=[vLANE16])); E(valu('v_cndmask_b32', vO, vIT, vO, 'vcc'))
            E(raw(f"s_lshl2_add_u32 {sT2}, {its[2]}, {sPB}", 'salu', wr=[sT2], rd=[its[2], sPB])); E(add(sT2, sT2, ABN))
            E(bstore('buffer_store_dword', vA, vO, sWS, sT2, flags='sc1')); E(waitvm(0))
            E(bstore('buffer_store_dword', vZ, vZ, sWS, sPV, flags='sc1')); E(waitvm(0))
            E(bload('buffer_load_dword', vP, vQ, sWS, sPV, flags='sc1')); E(waitvm(0))
            E(raw(f"v_cmp_ge_u32 vcc, {sC}, {vP}", 'valu', wr=['vcc'], rd=[vP, sC])); E(nop(1))
            E(raw(f"s_and_b32 {sT2}, vcc_lo, {hex((1 << NPART) - (1 << NS))}", 'salu', wr=[sT2], rd=['vcc'])); E(raw(f"s_cbranch_scc1 L_{n}_exit"))
            E(label(f"L_{n}_pw3")); ST(50)
            E(raw(f"s_call_b64 {sRET2}, L_{n}_ft")); E(raw(f"s_branch L_{n}_exit"))
            E(label(f"L_{n}_ft"))
            stream(E, [seg(2, L0, range(NS, NPART), False, True)])
            E(raw(f"s_setpc_b64 {sRET2}"))
            E(label(f"L_{n}_old"))
            stream(E, [seg(2, L0, range(NS), True, False)])
            ensure(its[2], 0, 1)
            E(raw(f"s_call_b64 {sRET2}, L_{n}_ft")); E(raw(f"s_branch L_{n}_f4"))
        else:
            stream(E, [seg(2, L0, range(NS), True, False)], {6: poll_hook})
            refresh(0)
            ensure(its[2], 0, 1); ST(50)
            stream(E, [seg(2, L0, range(NS, NPART), False, True)], {0: poll_hook.sh} if not AB else None)
            E(raw(f"s_branch L_{n}_f4"))
        E(label(f"L_{n}_f3"))
        stream(E, [seg(2, L0)], {11: poll_hook.sh} if not AB else None)
        E(label(f"L_{n}_f4"))
        done(its[2])
        if AB and CFG.get('abx', 1):
            E(salu('s_cmp_eq_u32', None, sMD2, 0)); E(raw(f"s_cbranch_scc1 L_{n}_exit")); E(raw(f"s_branch L_{n}_fb"))


def reducer(kind):
    p = Prog(); E = p.emit; n = kind; FL = CFG.get('fflags', 'sc1')
    PRIV[0] = (kind == 'A')
    def ST(code):
        if CFG['stamps'] != 2: return
        E(raw(f"s_memtime {sSTAMP}", wr=[sSTAMP])); E(raw("s_waitcnt lgkmcnt(0)")); E(salu('s_sub_u32', s(98), s(98), s(100)))
        E(shl(s(98), s(98), 6)); E(salu('s_or_b32', s(98), s(98), code))
        E(add(s(97), s(97), 16)); E(salu('s_min_u32', s(97), s(97), 11 * 16))
        E(raw(f"v_cmp_eq_u32 vcc, s97, {vLANE16}", 'valu', wr=['vcc'], rd=[s(97), vLANE16])); E(valu('v_mov_b32', v(27), s(98)))
        E(valu('v_cndmask_b32', vSTAMP, vSTAMP, v(27), 'vcc'))
    def offs(item, sX_):
        return [salu('s_and_b32', sT2, item, 3), shr(sC, item, 2), shl(sT3, sRB, 2), add(sT2, sT2, sT3), mul(sPART, sT2, PWAVE), add(sX_, sPART, sXW),
                shl(sT3, sC, 12), add(sT3, sT3, sPWv), add(sPART, sPART, sT3), shl(sT3, sC, 7), add(sX_, sX_, sT3)]
    k_ = [0]
    def ensure(item, s_, f_):
        L = f"L_{n}_en{k_[0]}"; k_[0] += 1
        if s_ and f_: E(salu('s_min_u32', sT2, sRS, sRF)); r = sT2
        else: r = sRS if s_ else sRF
        E(salu('s_cmp_lt_u32', None, item, r)); E(raw(f"s_cbranch_scc1 {L}"))
        E(smov(sI, item)); E(smov(sC, (1 if s_ else 0) | (2 if f_ else 0)))
        E(raw(f"s_call_b64 {sRET2}, L_{n}_sync"))
        E(salu('s_cmp_eq_u32', None, sTO, 0)); E(raw(f"s_cbranch_scc0 L_{n}_fb"))
        E(label(L))
    def done(item): E(raw(f"s_bitset0_b64 {sRM}, {item}", 'salu', wr=[sRM], rd=[sRM, item]))
    E(label(f"L_{n}_red"))
    if CFG.get('rdelay'):
        if n == 'A': (E(waitvm(0)), E(barrier()), E(valu('v_mov_b32', vPRG, 9)), E(bstore('buffer_store_dword', vPRG, vCT, sWS, 0, flags='sc1')))
        for _ in range({'A': 30, 'M': 24, 'F': 14}[n]): E(raw("s_sleep 16"))
    E(red_get(LDSC))
    if CFG.get('rdelay'): E(smov(sRS, 36)); E(smov(sRF, 36))
    E(valu('v_lshrrev_b32', vO, 4, vLANE16)); E(valu('v_and_b32', vXO, 7, vO)); E(valu('v_lshlrev_b32', vLD, 4, vXO))
    E(smov(sT2, 1152)); E(valu('v_mul_u32_u24', vXO, sT2, vXO))
    E(valu('v_lshrrev_b32', vA, 3, vO)); E(valu('v_lshl_add_u32', vX4, vA, 4, vXO))
    E(valu('v_bfe_u32', vA, vO, 3, 2)); E(valu('v_lshl_add_u32', vXO, vA, 3, vXO)); E(valu('v_lshl_add_u32', vLD, vA, 8, vLD))
    E(valu('v_lshrrev_b32', vA, 5, vO)); E(valu('v_lshl_add_u32', vXO, vA, 6, vXO)); E(valu('v_lshl_add_u32', vLD, vA, 11, vLD))
    E(mul(sXW, sWAVE, 8 * 1152)); E(shr(sPWv, sWAVE, 1)); E(shl(sPWv, sPWv, 10)); E(salu('s_and_b32', sT2, sWAVE, 1)); E(shl(sT2, sT2, 7)); E(add(sPWv, sPWv, sT2))
    L0, L1 = 72, 76 + 4 * NPART
    E(smov(sD0, 0x3f80)); E(smov(sD1, 0x3f800000))
    E(raw(f"s_mov_b64 {sRM}, 0", 'salu', wr=[sRM]))
    FOUR = CFG.get('four')
    sMID = s(48 + 0) if False else s(83)
    def nib(dst, tab, base):
        E(smov(sCD[0], sum(tab[i] << (4 * i) for i in range(8)))); E(smov(sCD[1], tab[8] | (tab[9] << 4)))
        E(shl(sT2, sROLE, 2)); E(s64('s_lshr_b64', sCD, sCD, sT2)); E(salu('s_and_b32', dst, sCD[0], 15))
        E(salu('s_cmp_eq_u32', None, dst, 15)); E(csel(dst, 63 - base, dst)); E(add(dst, dst, base))
    if n == 'A':
        E(smov(sIT[0], sROLE)); E(add(sIT[1], sROLE, NA))
        if CFG.get('bal'):
            nib(sIT[1], [x - 10 for x in BAL2], 10); nib(sIT[2], [x - 21 for x in BAL3], 21); nib(sMID, [min(x - BMB(), 15) for x in BALM], BMB())
            E(raw(f"s_bitset1_b64 {sRM}, {sMID}", 'salu', wr=[sRM], rd=[sRM, sMID]))
        elif CFG.get('asg') == 2: E(add(sIT[2], sROLE, 16))
        elif CFG.get('asg') == 3:
            E(add(sMID, sROLE, 16)); E(raw(f"s_bitset1_b64 {sRM}, {sMID}", 'salu', wr=[sRM], rd=[sRM, sMID]))
            E(salu('s_and_b32', sT2, sROLE, 1)); E(shr(sIT[2], sROLE, 1)); E(add(sIT[2], sIT[2], 24)); E(salu('s_cmp_eq_u32', None, sT2, 0)); E(csel(sIT[2], sIT[2], 63))
        elif CFG.get('l844'): E(add(sIT[2], sROLE, 28))
        elif FOUR:
            nib(sMID, [0, 15, 1, 2, 15, 3, 4, 5, 6, 7], 20); nib(sIT[2], [0, 1, 15, 2, 3, 15, 4, 5, 6, 7], 28)
            E(raw(f"s_bitset1_b64 {sRM}, {sMID}", 'salu', wr=[sRM], rd=[sRM, sMID]))
        else:
            nib(sIT[2], [0, 1, 15, 2, 3, 15, 4, 5, 6, 7], 28)
            E(salu('s_cmp_eq_u32', None, sROLE, 2)); E(csel(sIT[2], 23 if CFG.get('m3') else 22, sIT[2])); E(salu('s_cmp_eq_u32', None, sROLE, 5)); E(csel(sIT[2], 24 if CFG.get('m3') else 21, sIT[2]))
            if CFG.get('nof'):
                nib(sMD2, CFG['nof'], 23)
                E(raw(f"s_bitset1_b64 {sRM}, {sMD2}", 'salu', wr=[sRM], rd=[sRM, sMD2]))
        its = sIT
    elif CFG.get('asg') == 2:
        if n == 'M': E(add(sIT[0], sROLE, 16)); E(add(sIT[1], sROLE, 20)); its = sIT[:2]
        else: E(add(sIT[0], sROLE, 20)); its = sIT[:1]
    elif CFG.get('asg') == 3:
        E(add(sIT[0], sROLE, 20)); its = sIT[:1]
    elif CFG.get('l844'):
        if n == 'M': E(add(sIT[0], sROLE, 8)); E(add(sIT[1], sROLE, 12)); its = sIT[:2]
        else: E(add(sIT[0], sROLE, 12)); its = sIT[:1]
    elif n == 'M' and CFG.get('m3'): E(smov(sIT[0], 20)); E(smov(sIT[1], 21)); E(smov(sIT[2], 22)); its = sIT
    elif n == 'M': E(smov(sIT[0], 20)); its = sIT[:1]
    else:
        E(add(sIT[0], sROLE, 12)); its = sIT[:1]
    if (FOUR and n != 'A') or (CFG.get('nof') and n == 'F'):
        its = []
        E(waitvm(0)); E(red_poll()[1]); E(waitvm(0)); E(raw(f"s_branch L_{n}_fin"))
    if (CFG.get('bal') or CFG.get('m3')) and n == 'F':
        E(salu('s_cmp_ge_u32', None, sROLE, 13 if CFG.get('bal') != 2 else 16)); E(raw(f"s_cbranch_scc1 L_{n}_hi"))
        E(waitvm(0)); E(ab_load() if CFG.get('abn') else red_poll()[1]); E(waitvm(0)); E(raw(f"s_branch L_{n}_fin")); E(label(f"L_{n}_hi"))
    for it in its: E(raw(f"s_bitset1_b64 {sRM}, {it}", 'salu', wr=[sRM], rd=[sRM, it]))
    E(salu('s_and_b32', sRM[1], sRM[1], 15))
    def refresh(wait, ab=False):
        L = f"L_{n}_rf{k_[0]}"; k_[0] += 1
        E(salu('s_cmp_eq_u32', None, sWAVE, 0)); E(raw(f"s_cbranch_scc0 {L}"))
        E(waitvm(wait)); E(red_eval())
        if ab: E(ab_eval()); E(salu('s_or_b32', sT2, sAB[0], sAB[1])); E(csel(sTO, 1, 0))
        E(red_pub(sPAR))
        E(label(L)); E(barrier()); E(red_get(sPAR)); E(salu('s_xor_b32', sPAR, sPAR, 12))
        if ab: E(smov(sMD2, sTO)); E(smov(sTO, 0))
    ALLD = lambda L, sx: ld_part(L, range(NPART), FL) + ld_x(L, sx)
    LATE = n in CFG.get('lateflag', 'A') + CFG.get('pre', '')
    sPT = [s(47), s(67 - 2), s(70)]
    def offs2(i): return offs(its[i], sXP[i]) + ([smov(sPT[i], sPART)] if i else [])
    def final_flag(wait):
        E(waitvm(wait)); E(barrier())
        E(valu('v_mov_b32', vPRG, 9))
        if CFG.get('rep') and n in 'FM': E(bstore('buffer_store_dword', vPRG, vCR, sWS, 0, flags='sc1'))
        E(bstore('buffer_store_dword', vPRG, vCT, sWS, 0, flags='sc1'))
        return 2 if (CFG.get('rep') and n in 'FM') else 1
    def poll_hook(_): E(red_poll()[1]); return 2
    def poll_sh(_): E(red_poll(True)[1]); return 2
    poll_hook.sh = poll_sh
    seg = lambda i, L, ks=range(NPART), wx=True, fin=True: (L, sPT[i], sXP[i], ks, wx, fin)
    ni = len(its)
    for i in reversed(range(ni)): E(offs2(i))
    two = min(ni, 2)
    if ni: body_items(E, n, its, two, ni, ensure, refresh, done, ST, seg, final_flag, poll_hook, LATE, L0, L1, FOUR, sMID, offs, sPT)
    E(label(f"L_{n}_fin"))
    E(salu('s_cmp_eq_u32', None, sWAVE, 0)); E(raw(f"s_cbranch_scc0 L_{n}_b4"))
    if CFG.get('abn'): E(ab_eval())
    else:
        E(waitvm(2))
        E(raw(f"v_cmp_ne_u32 vcc, 0, {vP}", 'valu', wr=['vcc'], rd=[vP])); E(nop(1))
        E(raw(f"s_lshr_b64 {sAB}, vcc, {NPART + 1}", 'salu', wr=[sAB], rd=['vcc'])); E(salu('s_and_b32', sAB[1], sAB[1], 15))
    E(salu('s_or_b32', sT2, sAB[0], sAB[1])); E(csel(sTO, 1, 0))
    E(salu('s_cmp_ge_u32', None, sOK, 16)); E(csel(sTO, sTO, 1)); E(red_pub(sPAR))
    E(label(f"L_{n}_b4")); E(barrier()); E(red_get(sPAR)); E(salu('s_xor_b32', sPAR, sPAR, 12))
    E(salu('s_cmp_eq_u32', None, sTO, 0)); E(raw(f"s_cbranch_scc1 L_{n}_exit"))
    E(label(f"L_{n}_fb"))
    E(waitvm(0))
    E(salu('s_cmp_eq_u32', None, sWAVE, 0)); E(raw(f"s_cbranch_scc0 L_{n}_fb2"))
    if CFG.get('abn'):
        E(raw(f"s_mov_b64 {sCD}, {sRM}", 'salu', wr=[sCD], rd=[sRM])); E(valu('v_mov_b32', vA, 1))
        E(valu('v_lshlrev_b32', vO, 4, vLANE16)); E(valu('v_mov_b32', vIT, OOB))
        E(raw(f"v_cmp_gt_u32 vcc, 0x100, {vLANE16}", 'valu', wr=['vcc'], rd=[vLANE16])); E(valu('v_cndmask_b32', vO, vIT, vO, 'vcc'))
        E(label(f"L_{n}_mk"))
        E(raw(f"s_cmp_eq_u64 {sCD}, 0", 'salu', rd=[sCD])); E(raw(f"s_cbranch_scc1 L_{n}_mk1"))
        E(raw(f"s_ff1_i32_b64 {sT2}, {sCD}", 'salu', wr=[sT2], rd=[sCD])); E(raw(f"s_bitset0_b64 {sCD}, {sT2}", 'salu', wr=[sCD], rd=[sCD, sT2]))
        E(raw(f"s_lshl2_add_u32 {sT2}, {sT2}, {sPB}", 'salu', wr=[sT2], rd=[sT2, sPB])); E(add(sT2, sT2, ABN))
        E(bstore('buffer_store_dword', vA, vO, sWS, sT2, flags='sc1')); E(raw(f"s_branch L_{n}_mk"))
        E(label(f"L_{n}_mk1")); E(waitvm(0))
        E(red_poll()[0]); E(waitvm(0))
        E(valu('v_mov_b32', vO, OOB)); E(smov(sT2, 36 * 4)); E(raw(f"v_writelane_b32 {vO}, {sT2}, 1", 'valu', wr=[vO], rd=[sT2, vO]))
        E(bstore('buffer_store_dword', vA, vO, sWS, sAV_, flags='sc1'))
        E(valu('v_mov_b32', vIT, 0)); E(valu('v_mov_b32', vO, OOB)); E(raw(f"v_writelane_b32 {vO}, 0, 0", 'valu', wr=[vO], rd=[vO]))
        E(I(f"buffer_atomic_add {vIT}, {vO}, {sWS}, {sAV_} offen sc1", 'vstore', rd=vIT.regs() + vO.regs() + sWS.regs() + sAV_.regs(), units=3))
        E(waitvm(0)); E(ab_load()); E(red_poll(True)[1]); E(waitvm(0)); E(valu('v_readfirstlane_b32', sOK, vD)); E(red_eval()); E(ab_eval())
    else:
        E(s64('s_lshl_b64', sCD, sRM, NPART + 1)); E(valu('v_mov_b32', vO, OOB)); E(valu('v_mov_b32', vA, 1))
        E(valu('v_cndmask_b32', vO, vO, vL4, sCD)); E(bstore('buffer_store_dword', vA, vO, sWS, sPB, flags='sc1')); E(waitvm(0))
        E(red_poll()[0]); E(waitvm(0)); E(red_poll(True)[1]); E(waitvm(0)); E(valu('v_readfirstlane_b32', sOK, vD)); E(red_eval())
    E(salu('s_min_u32', sT2, sRS, sRF)); E(salu('s_cmp_ge_u32', None, sOK, 16)); E(csel(sT2, sT2, 0))
    E(salu('s_bfm_b64', sCD, sT2, 0, scc_w=False)); E(s64('s_or_b64', sAB, sAB, sRM)); E(s64('s_and_b64', sAB, sAB, sCD))
    E(label(f"L_{n}_fb1"))
    E(raw(f"s_ff1_i32_b64 {sRS}, {sAB}", 'salu', wr=[sRS], rd=[sAB])); E(salu('s_and_b32', sRS, sRS, 255))
    E(raw(f"s_bitset0_b64 {sAB}, {sRS}", 'salu', wr=[sAB], rd=[sAB, sRS])); E(red_pub(sPAR))
    E(label(f"L_{n}_fb2")); E(barrier()); E(red_get(sPAR)); E(salu('s_xor_b32', sPAR, sPAR, 12))
    E(salu('s_cmp_ge_u32', None, sRS, 36)); E(raw(f"s_cbranch_scc1 L_{n}_exit"))
    E(offs(sRS, sXP[0])); E(ld_part(L0, range(NPART), FL) + ld_x(L0, sXP[0])); E(waitvm(0)); proc_all(E, L0, sXP[0], 0, [])
    E(salu('s_cmp_eq_u32', None, sWAVE, 0)); E(raw(f"s_cbranch_scc1 L_{n}_fb1")); E(raw(f"s_branch L_{n}_fb2"))
    E(label(f"L_{n}_exit"))
    ST(60)
    if CFG['stamps']: E(raw(f"s_setpc_b64 {sRET}"))
    else: E(raw("s_endpgm"))
    E(label(f"L_{n}_sync"))
    E(salu('s_cmp_eq_u32', None, sWAVE, 0)); E(raw(f"s_cbranch_scc0 L_{n}_sy2"))
    E(smov(sSP, 0)); E(red_poll()[1][0])
    E(label(f"L_{n}_sy0"))
    E(salu('s_cmp_ge_u32', None, sOK, 16)); E(raw(f"s_cbranch_scc1 L_{n}_sy1"))
    E(red_poll()[0]); E(waitvm(0)); E(valu('v_readfirstlane_b32', sOK, vD))
    E(salu('s_cmp_ge_u32', None, sOK, 16)); E(raw(f"s_cbranch_scc0 L_{n}_syw"))
    E(label(f"L_{n}_sy1"))
    E(red_poll()[1][1]); E(red_poll()[1][0]); E(waitvm(1)); E(red_eval())
    E(salu('s_bitcmp1_b32', None, sC, 0)); E(csel(sT2, sRS, 36)); E(salu('s_bitcmp1_b32', None, sC, 1)); E(csel(sT3, sRF, 36))
    E(salu('s_min_u32', sT2, sT2, sT3)); E(salu('s_cmp_lt_u32', None, sI, sT2)); E(raw(f"s_cbranch_scc1 L_{n}_syp"))
    E(label(f"L_{n}_syw"))
    E(add(sSP, sSP, 1)); E(salu('s_cmp_gt_u32', None, sSP, CFG.get('spin', 4000))); E(csel(sTO, 1, 0)); E(raw(f"s_cbranch_scc1 L_{n}_syp"))
    E(raw(f"s_sleep {CFG.get('sleep', 1)}")); E(raw(f"s_branch L_{n}_sy0"))
    E(label(f"L_{n}_syp"))
    E(red_pub(sPAR))
    E(label(f"L_{n}_sy2")); E(barrier()); E(red_get(sPAR)); E(salu('s_xor_b32', sPAR, sPAR, 12))
    E(raw(f"s_setpc_b64 {sRET2}"))
    return p

def reduce_items(p, ni, sPART_, sXO_, srdP, srdX, srdO, vL16, vXO_, base, flags, mid=None):
    E = p.emit
    SA = base; FA = base + 8; T = base + 16
    Ls = [base + 24 + 72 * i for i in range(ni)]
    for k in range(NPART):
        if k: E(add(sPART_, sPART_, 16 * PART - (PWAVE if ni == 2 else 0)))
        for i in range(ni):
            if i: E(add(sPART_, sPART_, PWAVE))
            E(bload('buffer_load_dwordx4', v(Ls[i] + 4 * k, 4), vL16, srdP, sPART_, flags=flags))
    for i in range(ni):
        XR = Ls[i] + 68
        if i: E(add(sT2, sXO_, 32 * 1152))
        so = sT2 if i else sXO_
        E(bload('buffer_load_dwordx2', v(XR, 2), vXO_, srdX, so)); E(bload('buffer_load_dwordx2', v(XR + 2, 2), vXO_, srdX, so, 32))
    ex = 0
    if mid: mid(); ex = 1
    E(smov(sT3, 0xffff0000))
    for i in range(ni):
        L = Ls[i]; XR = L + 68
        for k in range(NPART):
            if i == 0: E(waitvm((NPART - 1 - k) * ni + (ni - 1) + 2 * ni + ex))
            acc = SA if k < 11 else FA
            for q in range(4):
                x = v(L + 4 * k + q)
                if k in (0, 11):
                    E(valu('v_lshlrev_b32', v(acc + 2 * q), 16, x)); E(valu('v_and_b32', v(acc + 2 * q + 1), sT3, x))
                else:
                    tp = v(T + 2 * q, 2)
                    E(valu('v_lshlrev_b32', tp[0], 16, x)); E(valu('v_and_b32', tp[1], sT3, x))
            if k not in (0, 11):
                for q in range(4): E(valu('v_pk_add_f32', v(acc + 2 * q, 2), v(acc + 2 * q, 2), v(T + 2 * q, 2)))
        for e in range(8): E(valu('v_exp_f32', v(T + e), v(FA + e)))
        for e in range(8): E(valu('v_add_f32', v(T + e), 1.0, v(T + e)))
        for e in range(8): E(valu('v_rcp_f32', v(T + e), v(T + e)))
        for e in range(8): E(valu('v_mul_f32', v(FA + e), f2u(-math.log(2.0)), v(FA + e)))
        for e in range(8): E(valu('v_mul_f32', v(FA + e), v(FA + e), v(T + e)))
        if i == 0: E(waitvm(ex if ni == 1 else 0))
        for q in range(4):
            E(valu('v_lshlrev_b32', v(T + 2 * q), 16, v(XR + q))); E(valu('v_and_b32', v(T + 2 * q + 1), sT3, v(XR + q)))
        for e in range(8): E(valu('v_fma_f32', v(T + e), v(SA + e), v(FA + e), v(T + e)))
        for q in range(4): E(valu('v_cvt_pk_bf16_f32', v(XR + q), v(T + 2 * q), v(T + 2 * q + 1)))
        if i: E(add(sXO_, sXO_, 32 * 1152))
        E(bstore('buffer_store_dwordx2', v(XR, 2), vXO_, srdO, sXO_)); E(bstore('buffer_store_dwordx2', v(XR + 2, 2), vXO_, srdO, sXO_, 32))

def build_role(kind, vm_before):
    R = Role(kind)
    CFG['shape'] = CFG.get('shapes', {}).get(kind, CFG['shape0'])
    R.ring = {'F': (216, 9), 'A': (192, 16), 'M': (200, 8)}[kind]
    if kind == 'M': R.depth = 7
    nl = CFG.get('pfl', 16)
    MS = CFG['shape'] == 'M'
    if MS:
        R.add_p1_unit, R.add_p1_half, R.epi_silu, R.epi_q = R.add_p1_unitM, R.add_p1_halfM, R.epi_siluM, R.epi_qM
    P2M = 'q16' if MS else 'pi'
    if kind == 'F' and CFG.get('l844'):
        R.ring = (208, 12); R.depth = 7
        for u in range(13): R.add_p1_unit(u, sW1, sHA, sHC, 9216, u == 0, a(16 * u, 16), R.epi_silu, last=(u == 12),
                                          inreg=[pf_run(sW2, sPF2, 832 * 1152, 10) if u >= 1 else None, pf_row('F', sW1)])
        needs = {t: [('reg', 8 * t)] for t in range(26)}
        dm = [dma_w(sW2, sFA, 0, 1152, sFC, 0), dma_w(sW2, sFA, 288 * 1152, 1152, sFC, 288 * 1152), dma_w(sW2, sFA, 576 * 1152, 1152)]
        R.add_p2([(a(0, 208), [288, 288, 256], dm, needs, sSt)], [add(x, x, 128) for x in (sFA, sFC)], pre0=lambda: set_offw(1152, P2M))
        for st in R.stages[-27:]: st.ring = (208, 12, 'restart')
    elif kind == 'M' and CFG.get('l844'):
        R.ring = (208, 8); R.depth = 7
        Q = [a(80, 32), a(112, 32)]; OA = a(144, 64)
        def mpf(u):
            if u == 0: return pf_row('M', sWQ)
            if u == 1: return lambda: pf_row_setup('M', 9216, 18, sPF1, 0) + [pf_row('M', sW1)()[1]]
            if u <= 5: return pf_row('M', sW1)
            return None
        for u in range(4): R.add_p1_unit(u, sWQ, sQA, sQC, 8192, u == 0, a(80 + 16 * u, 16), R.epi_q, key='Q', inreg=[None, mpf(u)])
        for u in range(5): R.add_p1_unit(4 + u, sW1, sHA, sHC, 9216, u == 0, a(16 * u, 16), R.epi_silu, pre=(lambda: set_offw(9216, 'S')) if u == 0 else None,
                                         last=(u == 4), key='H', inreg=[None, mpf(4 + u)])
        Ha = dict(i=0, Q=Q[0], S=Sreg, P=Preg, O=OA, LM=v(230, 8), OF=lambda kk: OA.sub(16 * kk, 8),
                  need_qk=[('acc', 80), ('acc', 96)], need_pv=[('acc', 48 + 16 * i) for i in range(4)])
        Hb = dict(i=1, Q=Q[1], S=[v(80, 16), v(96, 16)], P=[v(48, 8), v(56, 8)], O=v(160, 64), LM=v(64, 8), OF=lambda kk: OA.sub(16 * kk + 8, 8))
        R.add_pa_g([[Ha, Hb]])
        R.stages[-9].mf[-1].need.append(('acc', 48))
        R.heads = [(Ha, sPFa), (Hb, sPFa)]
        R.add_p2m(a(0, 80), [H['OF'](kk) for H in (Ha, Hb) for kk in range(4)],
                  [dma_w(sW2, sFA, 0, 1152, sFC, 0), dma_w(sWO, sOA, 0, 1152, sFC, 32 * 1152, srdC=sW2)],
                  [add(x, x, 128) for x in (sOA, sFA, sFC)], pre0=lambda: set_offw(1152, P2M))
        for st in R.stages[-18:]: st.ring = (208, 12, 'restart')
        k = pf_sched(R, 15, sK, sPFa, 131072, 16); k = pf_sched(R, k, sV, sPFa, 131072, 16)
        pf_sched(R, 17, sWO, sPFc, 256 * 1152, 36); pf_sched(R, 18, sW2, sPF2, 320 * 1152, 45)
    elif kind == 'F':
        for u in range(13): R.add_p1_unit(u, sW1, sHA, sHC, 9216, u == 0, a(16 * u, 16), R.epi_silu, last=(u == 12), inreg=[pf_run(sW2, sPF2, 832 * 1152, 10) if u >= 1 else None, pf_row('F', sW1) if CFG['pf'] >= 3 else None] if CFG['pf'] else None)
        R.add_p1_half(13, a(208, 8))
        needs = {t: [('reg', 8 * t)] for t in range(27)}
        dm = [dma_w(sW2, sFA, 0, 1152, sFC, 0), dma_w(sW2, sFA, 288 * 1152, 1152, sFC, 288 * 1152), dma_w(sW2, sFA, 576 * 1152, 1152, sFS, 0)]
        R.add_p2([(a(0, 216), [288, 288, 288], dm, needs, sSt)], [add(x, x, 128) for x in (sFA, sFC, sFS)], pre0=lambda: set_offw(1152, P2M))
        if CFG['pf']:
            pf_sched(R, 26, sW2, sPF2h, 32 * 1152, 8)
    elif kind == 'A' and CFG.get('pair'):
        OA = a(96, 64)
        Ha = dict(i=0, Q=a(0, 32), S=Sreg, P=Preg, O=OA, LM=v(230, 8), OF=lambda kk: OA.sub(16 * kk, 8),
                  need_qk=[('acc', 48), ('acc', 64)], need_pv=[('acc', 48 + 16 * i) for i in range(4)])
        Hb = dict(i=1, Q=a(32, 32), S=[v(48, 16), v(64, 16)], P=[v(80, 8), v(88, 8)], O=v(160, 64), LM=v(96, 8), OF=lambda kk: OA.sub(16 * kk + 8, 8))
        Hc = dict(i=2, Q=a(64, 32), S=Sreg, P=Preg, O=v(48, 64), LM=v(16, 8), OF=lambda kk: a(160 + 8 * kk, 8), need_pv=[('lm', 0)])
        Ha['need_qk'] += [('acc', 80)]
        pj = {1: sJQ}
        for u in range(6):
            R.add_p1_unit(u, sWQ, sQA, sQC, 8192, u == 0, a(16 * u, 16), R.epi_q, last=(u == 5), step=sJQ if u == 4 else 128,
                          inreg=[pf_run(sWO, sPFc, 384 * 1152, 11) if u >= 1 else None, pf_row('A', sWQ, pj.get(u, 128)) if CFG['pf'] >= 3 and u < 3 else None] if CFG['pf'] else None)
        R.add_pa_g([[Ha, Hb], [Hc]])
        Bf = [H['OF'](kk) for H in (Ha, Hb, Hc) for kk in range(4)]
        needs = {0: [('fin', 0), ('fin', 1)], 8: [('fin', 2)]}
        dm = [dma_w192(sWO, 0), dma_w192(sWO, 0, sOA1, sOB1)]
        R.add_p2([(Bf, [192, 192], dm, needs, sSt)], [add(x, x, 128) for x in (sOA, sOB, sOA1, sOB1)], pre0=lambda: set_offw(1152, P2M))
        R.heads = [(Ha, sPFa), (Hb, sPFa), (Hc, sPFb)]
        if CFG['pf'] >= 2:
            pf_sched(R, 10, sK, sPFa, 131072, 16); pf_sched(R, 10, sV, sPFa, 131072, 16)
            pf_sched(R, 12, sK, sPFb, 131072, 16); pf_sched(R, 12, sV, sPFb, 131072, 16)
    elif kind == 'A':
        Q = [a(32 * e, 32) for e in range(3)]; O = [a(96 + 32 * e, 32) for e in range(3)]
        for u in range(6): R.add_p1_unit(u, sWQ, sQA, sQC, 8192, u == 0, a(16 * u, 16), R.epi_q, last=(u == 5), inreg=[pf_run(sWO, sPFc, 384 * 1152, 11) if u >= 1 else None, pf_row('A', sWQ) if CFG['pf'] >= 3 and u < 5 else None] if CFG['pf'] else None)
        R.add_pa(Q, O)
        needs = {4 * e: [('fin', e)] for e in range(3)}; needs[0].append(('S', 2, 15))
        dm = [dma_w192(sWO, b * 192 * 1152) for b in range(2)]
        R.add_p2([(a(96, 96), [192, 192], dm, needs, sSt)], [add(sOA, sOA, 128), add(sOB, sOB, 128)], pre0=lambda: set_offw(1152, P2M))
        if CFG['pf']:
            if CFG['pf'] >= 2:
                pf_sched(R, 10, sK, sPFa, 131072, 16); pf_sched(R, 10, sV, sPFa, 131072, 16)
                pf_sched(R, 12, sK, sPFb, 131072, 16); pf_sched(R, 12, sV, sPFb, 131072, 16)
    else:
        Q = [a(136 + 32 * e, 32) for e in range(2)]; O = [a(72 + 32 * e, 32) for e in range(2)]
        def mpf(u):
            if u == 0: return pf_row('M', sWQ)
            if u == 1: return lambda: pf_row_setup('M', 9216, 18, sPF1, 0) + [pf_row('M', sW1)()[1]]
            if u <= 4: return pf_row('M', sW1)
            if u == 5: return lambda: [smov(sPW, sPF1h), pf_row('M', sW1)()[1]]
            return None
        for u in range(4): R.add_p1_unit(u, sWQ, sQA, sQC, 8192, u == 0, a(136 + 16 * u, 16), R.epi_q, key='Q', inreg=[None, mpf(u)] if CFG['pf'] >= 3 else None)
        for u in range(4): R.add_p1_unit(4 + u, sW1, sHA, sHC, 9216, u == 0, a(16 * u, 16), R.epi_silu, pre=(lambda: set_offw(9216, 'M' if MS else 'S')) if u == 0 else None, last=(u == 3), key='H', inreg=[None, mpf(4 + u)] if CFG['pf'] >= 3 else None)
        R.add_p1_half(8, a(64, 8))
        BO = a(72, 64)
        if CFG.get('pair'):
            Ha = dict(i=0, Q=Q[0], S=Sreg, P=Preg, O=BO, LM=v(230, 8), OF=lambda kk: BO_.sub(16 * kk, 8),
                      need_qk=[('acc', 48 + 16 * i) for i in range(3)], need_pv=[('acc', 48 + 16 * i) for i in range(4)])
            Hb = dict(i=1, Q=Q[1], S=[v(64, 16), v(48, 16)], P=[v(80, 8), v(88, 8)], O=v(160, 64), LM=v(96, 8), OF=lambda kk: BO_.sub(16 * kk + 8, 8))
            BO_ = BO
            if CFG.get('mfree', 0):
                Hb['S'] = [v(64, 16), v(238, 16)]; Ha['need_qk'] = [('acc', 64), ('acc', 80)]; Ha['need_pv'] = [('acc', 96)]
                R.ntmp = 12; R.ones = v(28, 4)
                for st_, idx in ((R.stages[-2], -1), (R.stages[-1], -1)):
                    m_ = st_.mf[idx]; f_ = m_.after
                    m_.after = (lambda G, f_=f_: (setattr(R, 'low', True), f_(G), setattr(R, 'low', False)))
            R.add_pa_g([[Ha, Hb]])
            BO = [H['OF'](kk) for H in (Ha, Hb) for kk in range(4)]
            R.heads = [(Ha, sPFa), (Hb, sPFa)]
        else: R.add_pa(Q, O)
        nf = {t: [('reg', 8 * t)] for t in range(9)}; nf[0].append(('S', 1, 15))
        R.add_p2([(a(0, 72), [288], [dma_w(sW2, sFA, 0, 1152, sFS, 0)], nf, sSt2),
                  (BO, [256], [dma_w(sWO, sOA, 0, 1152)], {0: [('fin', 0)], 4: [('fin', 1)]}, sSt)],
                 [add(x, x, 128) for x in (sOA, sFA, sFS)], pre0=lambda: set_offw(1152, P2M))
        for st in R.stages[-18:]: st.ring = (200, 14, 'restart')
        if CFG['pf']:
            if CFG['pf'] >= 2:
                k = pf_sched(R, 14, sK, sPFa, 131072, 16); k = pf_sched(R, k, sV, sPFa, 131072, 16)
            pf_sched(R, 16, sWO, sPFc, 256 * 1152, 36); pf_sched(R, 23 if not CFG.get('pair') else 17, sW2, sPF2, 256 * 1152, 36); pf_sched(R, 24 if not CFG.get('pair') else 17, sW2, sPF2h, 32 * 1152, 8)
    if CFG.get('msum') and not MS and kind in 'AM':
        st0 = [st for st in R.stages if st.name == 'PAh0s0'][0]
        m0_ = st0.mf[8]
        if not hasattr(R, 'ones'): m0_.need += [('acc', 48 + 16 * i) for i in range(4)]
        m0_.pre = lambda: R.p.emit([valu('v_mov_b32', getattr(R, 'ones', vONES)[i], 0x3f803f80) for i in range(4)])
    if CFG.get('recode') and CFG['fused']:
        names = [st.name for st in R.stages]
        nS = len(names)
        R.pf.setdefault(nS - 2, []).append(pf_code(f"L_{kind}_red", f"L_role{kind}_end", 4))
        p2 = names.index('P2c0b0')
        R.stages[p2].label = f"L_{kind}_p2"
        R.pf.setdefault(p2 - 2, []).append(pf_code(f"L_{kind}_p2", f"L_{kind}_p2+20480", 5))
        if kind in 'AM':
            pa = names.index('PAmini'); R.stages[pa].label = f"L_{kind}_pa"
            R.pf.setdefault(pa - 1, []).append(pf_code(f"L_{kind}_pa", f"L_{kind}_p2", 8))
    if CFG.get('hot') and CFG['fused'] and kind in CFG['hot']:
        names = [st.name for st in R.stages]
        last = names.index('P2c8b0'); R.stages[last].label = f"L_{kind}_c8"
        def setup():
            o = [raw(f"s_getpc_b64 {sPC}", 'salu', wr=[sPC]), label(f"L_{kind}_hp"),
                 salu('s_add_u32', sPC[0], sPC[0], f"L_{kind}_c8-L_{kind}_hp"), salu('s_addc_u32', sPC[1], sPC[1], 0, scc_r=True),
                 valu('v_bfe_u32', vPF2, vTID, 16, 5), valu('v_and_b32', vPF, 63, vTID), valu('v_min_u32', vPF, 1, vPF),
                 valu('v_lshl_add_u32', vPF, vPF2, 1, vPF), valu('v_lshlrev_b32', vPF, 7, vPF)]
            if kind == 'F': o += pf_row_setup(kind, 1152, 26, sPF2, 2 * 128)
            return o
        def rep_code():
            return [I(f"global_load_dword {vDUM}, {vPF}, {sPC}", 'vload', wr=vDUM.regs(), rd=vPF.regs() + sPC.regs(), units=3, tag='pf')]
        R.pf.setdefault(names.index('P2c1b0'), []).append(setup)
        for c in range(2, 8):
            k0 = names.index(f'P2c{c}b0')
            R.pf.setdefault(k0, []).append(rep_code)
            if kind == 'F': R.pf.setdefault(k0 + 1, []).append(pf_row(kind, sW2))
    R.slow = []
    if kind in 'AM' and CFG.get('slow', True) and CFG.get('pair'):
        P2s = [st for st in R.stages if st.name.startswith('P2c0')]
        hl = [(H['i'], H['Q'], (H['OF'], kv)) for (H, kv) in R.heads]
        if kind == 'A':
            P2s[0].mf[0].pre = slow_check(R, hl[:2], (112, 160))
            [m for m in P2s[1].mf if ('fin', 2) in m.need][0].pre = slow_check(R, hl[2:], (160, 48))
        else:
            m_ = P2s[1].mf[4 if CFG.get('l844') else 0]
            m_.need += [('fin', 0), ('fin', 1)]
            m_.pre = slow_check(R, hl, (160, 48))
    elif kind in 'AM' and CFG.get('slow', True):
        P2s = [st for st in R.stages if st.name.startswith('P2c0')]
        if kind == 'A':
            P2s[0].mf[0].need += [('fin', 1)]
            P2s[0].mf[0].pre = slow_check(R, [(0, Q[0], O[0]), (1, Q[1], O[1])], 112)
            m_ = [m for m in P2s[1].mf if ('fin', 2) in m.need][0]
            m_.pre = slow_check(R, [(2, Q[2], O[2])], 160)
        else:
            P2s[1].mf[0].need += [('fin', 1)]
            P2s[1].mf[0].pre = slow_check(R, [(0, Q[0], O[0]), (1, Q[1], O[1])], 160)
    if CFG['fused']:
        add_signals(R)
        def early0():
            it = red_setup(kind) + red_poll()[0]
            it[-1].tag = 'cnt'
            return it
        def early():
            assert R.cnt_covered()
            PRIV[0] = (kind == 'A')
            it = red_poll()[1]
            it[-1].tag = 'poll'
            return it
        def covered():
            idx = max(i for i, x in enumerate(R.p.ins) if x.tag == 'cnt'); n = 0
            for x in R.p.ins[idx + 1:]:
                if x.kind in VMEMK: n += 1
                if x.txt.startswith('s_waitcnt vmcnt(') and int(x.txt[16:-1]) <= n: return True
            return False
        R.cnt_covered = covered
        if kind == 'A' and CFG.get('l2pf'):
            nm = [st.name for st in R.stages]
            R.pf.setdefault(nm.index('P2c1b0'), []).append(l2pf_setup)
            for (cw, dlt) in CFG['l2pf']:
                kp = nm.index(f'P2c{cw}b0')
                for j in range(4): R.pf.setdefault(kp, []).append(lambda j=j: l2pf_poll()[j])
                R.stages[kp + 2].cover_tag = 'gp'
                def gate(j, dlt=dlt):
                    def f():
                        it = l2pf_issue(R, dlt)[j]
                        if j == 0:
                            it = it + [valu('v_readfirstlane_b32', sOK, vD), salu('s_cmp_ge_u32', None, sOK, 16), csel(sC, sC, 15)]
                        return it
                    return f
                for j in range(4): R.pf.setdefault(kp + 2, []).append(gate(j))
        R.pf.setdefault([st.name for st in R.stages].index('P2c1b0' if kind == 'F' else 'P2c0b1'), []).append(early0)
        if kind in CFG.get('pre', ''):
            R.pf.setdefault(len(R.stages) - 3, []).append(early)
            R.stages[-1].pre_bar = lambda: red_early(R.p, kind)
        else: R.pf.setdefault(len(R.stages) - CFG.get('pollw', 1), []).append(early)
    role_prologue(R, vm_before)
    R.run()
    if CFG['fused']:
        p = R.p
        if kind not in CFG.get('pre', ''): red_early(p, kind)
        if kind in CFG.get('pre', ''): pass
        elif kind in CFG.get('lateflag', 'A'): p.emit(barrier())
        else:
            p.emit(waitvm(0)); p.emit(barrier())
            p.emit(valu('v_mov_b32', vPRG, 9))
            if CFG.get('rep'): p.emit(bstore('buffer_store_dword', vPRG, vCR, sWS, 0, flags='sc1'))
            p.emit(bstore('buffer_store_dword', vPRG, vCT, sWS, 0, flags='sc1'))
        if CFG['stamps']: R.stamp(len(R.stages) - 1)
        p.emit(raw(f"s_call_b64 {sRET}, L_{kind}_red"))
    if CFG['stamps']:
        p = R.p
        R.stamp(len(R.stages))
        p.emit(raw("s_memrealtime s[98:99]", wr=[s(98, 2)])); p.emit(raw("s_waitcnt lgkmcnt(0)"))
        p.emit(raw(f"v_writelane_b32 {vSTAMP}, s98, 63", 'valu', wr=[vSTAMP], rd=[s(98)]))
        if CFG.get('dbgstat'):
            n = len(R.stages)
            lanes = {'F': [0, 27, n - 1, n], 'A': [0, 37, n - 1, n], 'M': [0, 34, n - 1, n]}[kind]
            slots = {'F': [1, 2, 3, 5], 'A': [10, 11, 13, 14], 'M': [15, 15, 15, 15]}[kind]
            p.emit([valu('v_mov_b32', v(4), 256), valu('v_mov_b32', v(5), 0)])
            for i, (ln, sl) in enumerate(zip(lanes, slots)):
                p.emit(raw(f"v_readlane_b32 s92, {vSTAMP}, {ln}", 'rdl', wr=[sT2], rd=[vSTAMP])); p.emit(nop(3))
                p.emit(raw(f"v_writelane_b32 v5, s92, {i}", 'valu', wr=[v(5)], rd=[sT2])); p.emit(raw(f"v_writelane_b32 v4, {4 * sl}, {i}", 'valu', wr=[v(4)]))
            p.emit(raw(f"v_writelane_b32 v5, s98, 4", 'valu', wr=[v(5)], rd=[s(98)])); p.emit(raw(f"v_writelane_b32 v4, 28, 4", 'valu', wr=[v(4)]))
            p.emit(salu('s_not_b32', sT2, s(43))); p.emit(raw(f"v_writelane_b32 v5, s92, 5", 'valu', wr=[v(5)], rd=[sT2])); p.emit(raw(f"v_writelane_b32 v4, 36, 5", 'valu', wr=[v(4)]))
            p.emit(salu('s_sub_u32', sT2, s(98), s(43))); p.emit(raw(f"v_writelane_b32 v5, s92, 6", 'valu', wr=[v(5)], rd=[sT2])); p.emit(raw(f"v_writelane_b32 v4, 24, 6", 'valu', wr=[v(4)]))
            p.emit([salu('s_cmp_eq_u32', None, sRB, 9), csel(sT2, 0, sRB), salu('s_or_b32', sT2, sT2, sWAVE), salu('s_cmp_eq_u32', None, sT2, 0), csel(sT2, 0, 256),
                    valu('v_add_u32', v(4), sT2, v(4))])
            p.emit(I(f"buffer_atomic_umax v5, v4, {sDBG}, 0 offen sc1", 'vstore', rd=vr(4, 2) + sDBG.regs(), units=3))
        p.emit([shl(sT2, s(2), 2), add(sT2, sT2, sWAVE), shl(sT2, sT2, 8), add(sT2, sT2, STAMP_OFF),
                valu('v_lshrrev_b32', v(42), 2, vLANE16), bstore('buffer_store_dword', vSTAMP, v(42), sWS, sT2)])
    R.p.emit(raw("s_endpgm"))
    return R

def fold(ins, name):
    idx = [i for i, x in enumerate(ins) if x.tag == 'mark']
    def body(a_, b_): return [x.txt for x in ins[a_:b_] if x.kind != 'label']
    out = []; pos = 0; k = 0; nl = 0
    while k + 1 < len(idx):
        b0 = body(idx[k], idx[k + 1]); n = 1
        while k + n + 1 < len(idx) and body(idx[k + n], idx[k + n + 1]) == b0: n += 1
        if n >= 2:
            out += ins[pos:idx[k]]
            L = f"L_{name}_loop{nl}"; nl += 1
            out.append(smov(sLC, n)); out.append(I(".p2align 3", 'label')); out.append(label(L))
            out += ins[idx[k]:idx[k + 1]]
            out += [salu('s_sub_u32', sLC, sLC, 1), salu('s_cmp_lg_u32', None, sLC, 0), raw(f"s_cbranch_scc1 {L}")]
            pos = idx[k + n]; k += n
        else: k += 1
    out += ins[pos:]
    return out

def fold_regions(ins, name):
    regs = []; i = 0
    beg = None
    for i, x in enumerate(ins):
        if isinstance(x.tag, tuple) and x.tag and x.tag[0] == 'region':
            if x.tag[1] == 'begin': beg = (i, x.tag[2])
            elif beg: regs.append((beg[0], i, beg[1])); beg = None
    groups = {}
    for (a_, b_, key) in regs:
        groups.setdefault(tuple(x.txt for x in ins[a_:b_] if x.kind != 'label'), []).append((a_, b_))
    out = []; subs = []; repl = {}
    n = 0
    for body, lst in groups.items():
        if len(lst) >= 2:
            L = f"L_{name}_sub{n}"; n += 1
            a_, b_ = lst[0]
            subs += [I(".p2align 6", 'label'), label(L)] + ins[a_:b_] + [raw(f"s_setpc_b64 {sRET}")]
            for (a_, b_) in lst: repl[a_] = (b_, L)
    i = 0
    while i < len(ins):
        if i in repl:
            b_, L = repl[i]; out.append(raw(f"s_call_b64 {sRET}, {L}")); i = b_
        else:
            out.append(ins[i]); i += 1
    print(f"  regions: {[len(l) for l in groups.values()]}", file=sys.stderr)
    return out + subs

def reduce_body(p, sPART, sXO, srdP, srdX, srdO, vL16, vXO, base, flags, mid=None):
    E = p.emit
    L = base; XR = base + 68; SA = base + 72; FA = base + 80; T = base + 88
    for k in range(NPART):
        if k: E(add(sPART, sPART, 16 * PART))
        E(bload('buffer_load_dwordx4', v(L + 4 * k, 4), vL16, srdP, sPART, flags=flags))
    E(bload('buffer_load_dwordx2', v(XR, 2), vXO, srdX, sXO)); E(bload('buffer_load_dwordx2', v(XR + 2, 2), vXO, srdX, sXO, 32))
    ex = 0
    if mid: E(mid()); ex = 1
    E(smov(sT3, 0xffff0000))
    for k in range(NPART):
        E(waitvm(NPART + 1 - k + ex))
        acc = SA if k < 11 else FA
        for q in range(4):
            x = v(L + 4 * k + q)
            if k in (0, 11):
                E(valu('v_lshlrev_b32', v(acc + 2 * q), 16, x)); E(valu('v_and_b32', v(acc + 2 * q + 1), sT3, x))
            else:
                tp = v(T + 2 * q, 2)
                E(valu('v_lshlrev_b32', tp[0], 16, x)); E(valu('v_and_b32', tp[1], sT3, x))
        if k not in (0, 11):
            for q in range(4): E(valu('v_pk_add_f32', v(acc + 2 * q, 2), v(acc + 2 * q, 2), v(T + 2 * q, 2)))
    for e in range(8): E(valu('v_exp_f32', v(T + e), v(FA + e)))
    for e in range(8): E(valu('v_add_f32', v(T + e), 1.0, v(T + e)))
    for e in range(8): E(valu('v_rcp_f32', v(T + e), v(T + e)))
    for e in range(8): E(valu('v_mul_f32', v(FA + e), f2u(-math.log(2.0)), v(FA + e)))
    for e in range(8): E(valu('v_mul_f32', v(FA + e), v(FA + e), v(T + e)))
    E(waitvm(ex))
    for q in range(4):
        E(valu('v_lshlrev_b32', v(T + 2 * q), 16, v(XR + q))); E(valu('v_and_b32', v(T + 2 * q + 1), sT3, v(XR + q)))
    for e in range(8): E(valu('v_fma_f32', v(T + e), v(SA + e), v(FA + e), v(T + e)))
    for q in range(4): E(valu('v_cvt_pk_bf16_f32', v(XR + q), v(T + 2 * q), v(T + 2 * q + 1)))
    E(bstore('buffer_store_dwordx2', v(XR, 2), vXO, srdO, sXO)); E(bstore('buffer_store_dwordx2', v(XR + 2, 2), vXO, srdO, sXO, 32))

def reduce_kernel():
    p = Prog(); E = p.emit
    E(salu('s_cmp_ge_u32', None, s(2), 576)); E(raw("s_cbranch_scc0 L_rgo")); E(raw("s_endpgm")); E(label("L_rgo"))
    E(raw("s_load_dwordx2 s[4:5], s[0:1], 0", wr=[s(4, 2)])); E(raw("s_load_dwordx2 s[6:7], s[0:1], 64", wr=[s(6, 2)])); E(raw("s_load_dwordx2 s[8:9], s[0:1], 80", wr=[s(8, 2)]))
    E(valu('v_lshrrev_b32', v(1), 6, v(0))); E(valu('v_readfirstlane_b32', s(10), v(1)))
    E(shl(s(11), s(2), 2)); E(add(s(11), s(11), s(10)))
    E(salu('s_mul_hi_u32', s(24), s(11), -(-(1 << 32) // 36), scc_w=False))
    E(mul(s(25), s(24), 36)); E(salu('s_sub_u32', s(25), s(11), s(25)))
    E(shl(s(26), s(11), 10))
    E(valu('v_and_b32', v(0), 63, v(0))); E(valu('v_lshlrev_b32', v(1), 4, v(0)))
    E(valu('v_and_b32', v(2), 15, v(0))); E(smov(s(27), 1152)); E(valu('v_mul_u32_u24', v(2), s(27), v(2)))
    E(valu('v_lshrrev_b32', v(3), 4, v(0))); E(valu('v_lshl_add_u32', v(2), v(3), 3, v(2)))
    E(mul(s(28), s(24), 32 * 1152)); E(salu('s_and_b32', s(29), s(25), 1)); E(mul(s(29), s(29), 16 * 1152)); E(add(s(28), s(28), s(29)))
    E(shr(s(25), s(25), 1)); E(shl(s(25), s(25), 6)); E(add(s(28), s(28), s(25)))
    E(raw("s_waitcnt lgkmcnt(0)"))
    srd(p, s(12, 4), 8, WSP_BYTES); srd(p, s(16, 4), 4, 2359296); srd(p, s(20, 4), 6, 2359296)
    reduce_body(p, s(26), s(28), s(12, 4), s(16, 4), s(20, 4), v(1), v(2), 4, CFG.get('rflags', ''))
    E(raw("s_endpgm"))
    return p

def text(ins): return "\n".join((i.txt if i.kind == 'label' else " " + i.txt) for i in ins) + "\n"

def compress(t):
    t = re.sub(r" v_mfma_f32_16x16x32_bf16 v\[(\d+):\d+\], a\[(\d+):\d+\], v\[(\d+):\d+\], v\[\1:\d+\]", r" MV \1,\2,\3", t)
    t = re.sub(r" v_mfma_f32_16x16x32_bf16 v\[(\d+):\d+\], a\[(\d+):\d+\], a\[(\d+):\d+\], v\[\1:\d+\]", r" MA \1,\2,\3", t)
    t = re.sub(r" v_mfma_f32_32x32x16_bf16 v\[(\d+):\d+\], a\[(\d+):\d+\], v\[(\d+):\d+\], v\[\1:\d+\]", r" NV \1,\2,\3", t)
    t = re.sub(r" v_mfma_f32_32x32x16_bf16 v\[(\d+):\d+\], a\[(\d+):\d+\], a\[(\d+):\d+\], v\[\1:\d+\]", r" NA \1,\2,\3", t)
    t = re.sub(r" v_mfma_f32_16x16x32_bf16 a\[(\d+):\d+\], a\[(\d+):\d+\], v\[(\d+):\d+\], a\[\1:\d+\]", r" MC \1,\2,\3", t)
    t = re.sub(r" ds_read_b64_tr_b16 a\[(\d+):\d+\], v(\d+) offset:(\d+)", r" RT \1,\2,\3", t)
    t = re.sub(r" ds_read_b128 a\[(\d+):\d+\], v(\d+) offset:(\d+)", r" RB \1,\2,\3", t)
    t = re.sub(r" v_cvt_pk_bf16_f32 v(\d+), v(\d+), v(\d+)", r" CV \1,\2,\3", t)
    t = re.sub(r" v_accvgpr_write_b32 a(\d+), v(\d+)", r" AW \1,\2", t)
    t = re.sub(r" v_exp_f32 v(\d+), v(\d+)", r" EX \1,\2", t)
    t = re.sub(r" v_add_f32 v(\d+), v(\d+), v(\d+)", r" AD \1,\2,\3", t)
    t = re.sub(r" v_mul_f32 v(\d+), v(\d+), v(\d+)", r" ML \1,\2,\3", t)
    t = re.sub(r" s_waitcnt lgkmcnt\((\d+)\)", r" WL \1", t)
    mac = r""".macro MC d,a,b
 v_mfma_f32_16x16x32_bf16 a[\d:\d+3], a[\a:\a+3], v[\b:\b+3], a[\d:\d+3]
.endm
.macro NV d,a,b
 v_mfma_f32_32x32x16_bf16 v[\d:\d+15], a[\a:\a+3], v[\b:\b+3], v[\d:\d+15]
.endm
.macro NA d,a,b
 v_mfma_f32_32x32x16_bf16 v[\d:\d+15], a[\a:\a+3], a[\b:\b+3], v[\d:\d+15]
.endm
.macro MV d,a,b
 v_mfma_f32_16x16x32_bf16 v[\d:\d+3], a[\a:\a+3], v[\b:\b+3], v[\d:\d+3]
.endm
.macro MA d,a,b
 v_mfma_f32_16x16x32_bf16 v[\d:\d+3], a[\a:\a+3], a[\b:\b+3], v[\d:\d+3]
.endm
.macro RT d,a,o
 ds_read_b64_tr_b16 a[\d:\d+1], v\a offset:\o
.endm
.macro RB d,a,o
 ds_read_b128 a[\d:\d+3], v\a offset:\o
.endm
.macro CV d,a,b
 v_cvt_pk_bf16_f32 v\d, v\a, v\b
.endm
.macro AW d,a
 v_accvgpr_write_b32 a\d, v\a
.endm
.macro EX d,a
 v_exp_f32 v\d, v\a
.endm
.macro AD d,a,b
 v_add_f32 v\d, v\a, v\b
.endm
.macro ML d,a,b
 v_mul_f32 v\d, v\a, v\b
.endm
.macro WL n
 s_waitcnt lgkmcnt(\n)
.endm
"""
    return mac, t

HDR = open('recurrent_scan__sliding_block_cached__dense_activation_silu__prompt.s.ref').read().split('; Override launch')[0]
DOC = """; Generated by my own scheduler scripts (hand-designed instruction streams, hazards padded by the script).
; registers as MFMA B operands (transposed formulation), weights / K / V stream through a 4-slot LDS ring (LDS-DMA).
;   role A (10): layernorm, Q projection, attention for 3 heads (one GQA pair shares K/V fragments), partial of o@wo
; The bf16 partials go to d_ws with write-through stores; progress words (reset per launch, guarded by a counter in
"""
def kd(name, vgpr, acc, sgpr=102):
    return f""".amdhsa_kernel {name}
  .amdhsa_next_free_vgpr {vgpr}
  .amdhsa_next_free_sgpr {sgpr}
  .amdhsa_accum_offset {acc}
  .amdhsa_group_segment_fixed_size 0
  .amdhsa_kernarg_size 88
  .amdhsa_user_sgpr_count 2
  .amdhsa_user_sgpr_kernarg_segment_ptr 1
  .amdhsa_system_sgpr_workgroup_id_x 1
.end_amdhsa_kernel
"""
def est_cycles(ins):
    tot = 0; cur = None; n = 0
    for i in ins:
        if i.kind == 'label': continue
        if i.kind == 'mfma':
            if cur is not None: tot += max(cap, cur)
            cur = 2; n += 1; cap = 8 if len(i.wr) == 16 else 4
        elif cur is not None:
            if i.txt.startswith('s_waitcnt lgkm') and cap == 4: continue
            cur += i.units if not i.txt.startswith('s_nop') else (int(i.txt.split()[1]) + 1) * 0.5
    return tot * 4

def main(out, **kw):
    CFG.update(kw)
    set_layout(CFG.get('l844'))
    if CFG.get('tabs'):
        BAL2[:], BALM[:], BAL3[:] = CFG['tabs']
        CFG['bal'] = 2
    if CFG.get('tab'):
        global ROLE_TAB
        ROLE_TAB = CFG['tab']
    CFG['shape0'] = CFG['shape']
    cp = common_prologue()
    if CFG.get('entry', 0):
        if CFG.get('entry', 1) == 1:
            k = next(i for i, x in enumerate(cp.ins) if x.txt == 's_waitcnt lgkmcnt(0)')
            tail = cp.ins[k:]; vmx = list(cp.vm); cp.ins = cp.ins[:k]; cp.vm = []
            common_prologue2(cp); cp.ins += tail; cp.vm += vmx
        else: common_prologue2(cp)
        common_prologue3(cp)
    body = text(cp.ins) + dispatch_text()
    for kind in 'FAM':
        R = build_role(kind, cp.vm)
        ins = fold_regions(fold(R.p.ins, kind), kind) if CFG['fold'] else R.p.ins
        nm = sum(1 for i in R.p.ins if i.kind == 'mfma')
        print(f"role {kind}: stages {len(R.stages)} mfma {nm} instrs {len([i for i in ins if i.kind!='label'])} (unrolled {len([i for i in R.p.ins if i.kind!='label'])}) pad {R.p.npad} forced {R.forced} est {est_cycles(R.p.ins)} ideal {sum(32 if len(i.wr) == 16 else 16 for i in R.p.ins if i.kind == 'mfma')}", file=sys.stderr)
        if CFG.get('abl_pair') and kind in 'AM':
            out_ = []; on = False
            for x in ins:
                if x.kind == 'label' and x.txt.startswith('; PAh'): on = x.txt.startswith('; PAh1')
                if x.kind == 'label' and x.txt.startswith('; P2'): on = False
                if on and (x.kind in ('dma', 'ds') or (x.kind == 'salu' and ('m0' in x.txt or 's70' in x.txt))): continue
                out_.append(x)
            ins = out_
        if CFG.get('abl_half'):
            out_ = []; on = False; cnt = 0
            for x in ins:
                if x.kind == 'label' and x.txt.startswith('; P'): on = x.txt.startswith(('; P1', '; P2'))
                if x.kind == 'label' and x.txt.startswith('; REGION begin'): on = True
                if on and x.kind == 'ds':
                    cnt += 1
                    if (cnt >> 1) & 1: continue
                out_.append(x)
            ins = out_
        ab = CFG.get('ablate', '')
        if ab:
            st0 = next(i for i, x in enumerate(ins) if x.txt.startswith('; P1u1b0'))
            def keep(x):
                if 'd' in ab and x.kind == 'dma': return False
                if 'r' in ab and x.kind == 'ds': return False
                if 'v' in ab and x.kind in ('trans',): return False
                if 'V' in ab and x.kind in ('trans', 'valu', 'perm') and not x.txt.startswith(('v_add_u32', 'v_xor', 'v_writelane', 'v_cmp', 'v_cnd', 'v_mov', 'v_lsh', 'v_mad', 'v_min', 'v_and', 'v_bfe', 'v_mul_u32')): return False
                if 'm' in ab and x.kind == 'mfma': return False
                return True
            ins = ins[:st0] + [x for x in ins[st0:] if keep(x)]
        for sp in R.slow: ins = ins + sp.ins
        if CFG['fused']: ins = ins + reducer(kind).ins
        body += f".p2align 6\nL_role{kind}:\n" + text(ins) + f"L_role{kind}_end:\n"
    rk = reduce_kernel()
    mac, body = compress(body)
    if CFG['fused']:
        t = HDR + "; @launch grid=(256,1,1) block=(256,1,1) lds=163840\n" + DOC
        t += '.amdgcn_target "amdgcn-amd-amdhsa--gfx950"\n' + mac + f".text\n.globl {KN}\n.p2align 8\n.type {KN},@function\n{KN}:\n" + body
        t += '.section .rodata,"a"\n.p2align 6\n' + kd(KN, 512, 256)
        open(out, 'w').write(t); print("size", len(t), file=sys.stderr); return
    t = HDR + f"; @launch kernel={KN} grid=(256,1,1) block=(256,1,1) lds=163840\n; @launch kernel={RN} grid=(576,1,1) block=(256,1,1) lds=0\n"
    t += '.amdgcn_target "amdgcn-amd-amdhsa--gfx950"\n' + mac + f".text\n.globl {KN}\n.p2align 8\n.type {KN},@function\n{KN}:\n" + body
    t += f".globl {RN}\n.p2align 8\n.type {RN},@function\n{RN}:\n" + text(rk.ins)
    t += '.section .rodata,"a"\n.p2align 6\n' + kd(KN, 512, 256) + ".p2align 6\n" + kd(RN, 104, 104, 102)
    open(out, 'w').write(t)
    print("size", len(t), file=sys.stderr)

if __name__ == "__main__":
    kw = eval("dict(" + (sys.argv[2] if len(sys.argv) > 2 else "") + ")")
    main(sys.argv[1], **kw)
```

```python
import sys, re
from s1 import *

ROLE_TAB = [0, 1, 2, 11, 3, 4, 5, 12, 6, 7, 13, 14, 8, 9, 10, 15]
vPFR = v(36)
vPRG = v(36)
PART = 4 * PWAVE
NPART = 17
NA, NM, NS = 10, 1, 11
def set_layout(new):
    global NPART, NA, NM, NS, ROLE_TAB
    if new:
        NPART, NA, NM, NS = 20, 8, 4, 12
        ROLE_TAB = [0, 1, 8, 12, 2, 3, 9, 13, 4, 5, 10, 14, 6, 7, 11, 15]
WSP_BYTES = NPART * 16 * PART
def PSTR(): return 16 * PART + (CFG.get('pskew', 0) if CFG['fused'] else 0)
sJQ, sQ0, sOA1, sOB1 = s(73), s(59), s(74), s(75)
ABN = 4096
STAMP_OFF = 0x3000000
CTRL = 0x2F00000
OOB = 0x10000000

def srd(p, dst, lo, nbytes):
    p.emit([smov(dst[0], s(lo)), salu('s_and_b32', dst[1], s(lo + 1), 0xffff), smov(dst[2], nbytes), smov(dst[3], 0x20000)])
def xdma(j):
    return [salu('s_add_u32', 'm0', s(6), j * 4096), salu('s_add_u32', sT, s(7), j * 128)] + [dma(v(16 + q), sX, sT, q * 1024, tag=('x', j)) for q in range(4)]
def mul(d, a_, b_): return salu('s_mul_i32', d, a_, b_, scc_w=False)
def add(d, a_, b_): return salu('s_add_u32', d, a_, b_)
def shl(d, a_, b_): return salu('s_lshl_b32', d, a_, b_)
def shr(d, a_, b_): return salu('s_lshr_b32', d, a_, b_)
def csel(d, a_, b_): return salu('s_cselect_b32', d, a_, b_, scc_w=False, scc_r=True)

def common_prologue():
    if CFG.get('entry', 0) == 0: return common_prologue_old()
    assert CFG['xe'] == 9 and CFG.get('map', 4) == 4
    p = Prog(); E = p.emit
    E(raw("s_load_dwordx8 s[40:47], s[0:1], 0", wr=[s(40, 8)]))
    E(salu('s_cmp_ge_u32', None, s(2), 256))
    E(raw("s_cbranch_scc0 L_go")); E(raw("s_endpgm")); E(label("L_go"))
    if CFG['stamps']:
        E(raw(f"s_memtime {sT0}", wr=[sT0])); E(raw("s_memrealtime s[96:97]", wr=[s(96, 2)]))
    E(valu('v_lshrrev_b32', v(1), 6, v(0)))
    E(salu('s_and_b32', s(3), s(2), 1)); E(shl(s(3), s(3), 3))
    E(valu('v_readfirstlane_b32', sWAVE, v(1)))
    E(shr(sRB, s(2), 5)); E(salu('s_or_b32', sRB, sRB, s(3)))
    E(valu('v_and_b32', v(0), 63, v(0)))
    E(valu('v_lshrrev_b32', vROWN, 3, v(0)))
    E(valu('v_and_b32', v(20), 7, v(0))); E(valu('v_lshrrev_b32', v(21), 4, v(0)))
    E(valu('v_xor_b32', v(22), v(20), v(21))); E(valu('v_xor_b32', v(23), 4, v(22)))
    E(salu('s_movk_i32', s(3), 1152, scc_w=False)); E(valu('v_mul_u32_u24', v(24), s(3), vROWN))
    E(valu('v_lshl_add_u32', v(16), v(22), 4, v(24))); E(valu('v_lshl_add_u32', v(17), v(23), 4, v(24)))
    E(valu('v_add_u32', v(17), 8 * 1152 - 1024, v(17)))
    E(valu('v_add_u32', v(18), 2 * (8 * 1152 - 1024), v(16))); E(valu('v_add_u32', v(19), 2 * (8 * 1152 - 1024), v(17)))
    E(mul(s(6), sWAVE, XW)); E(raw("s_lshl2_add_u32 s7, s64, s62", 'salu', wr=[s(7)], rd=[sRB, sWAVE])); E(mul(sT, s(7), 32 * 1152))
    E(smov('m0', s(6))); E(add(s(7), sT, 9 * 128))
    E(smov(sX[2], 2359296)); E(smov(sX[3], 0x20000))
    E(raw("s_waitcnt lgkmcnt(0)"))
    E(smov(sX[0], s(40))); E(salu('s_and_b32', sX[1], s(41), 0xffff))
    E(label("L_xl"))
    n0 = len(p.vm)
    for q in range(4): E(dma(v(16 + q), sX, sT, q * 1024))
    del p.vm[n0:]
    for j in range(9): p.vm += [('x', j)] * 4
    E(add(sT, sT, 128)); E(add('m0', 'm0', 4096)); E(salu('s_cmp_lt_u32', None, sT, s(7))); E(raw("s_cbranch_scc1 L_xl"))
    return p
def common_prologue2(p):
    E = p.emit
    tab = ROLE_TAB
    lo = sum(tab[i] << (4 * i) for i in range(8)); hi = sum(tab[8 + i] << (4 * i) for i in range(8))
    E(salu('s_bfe_u32', s(3), s(2), (2 << 16) | 3)); E(salu('s_bfe_u32', s(4), s(2), (1 << 16) | 1))
    E(shl(s(4), s(4), 2)); E(salu('s_or_b32', s(3), s(3), s(4))); E(shl(s(3), s(3), 2))
    E(salu('s_bitcmp1_b32', None, s(2), 2))
    E(smov(s(4), lo)); E(csel(s(4), hi, s(4)))
    E(shr(s(4), s(4), s(3))); E(salu('s_and_b32', sROLE, s(4), 15))
    E(raw(f"s_getpc_b64 {sPC}", wr=[sPC])); E(label("L_pc"))
    E(smov(s(4), "L_roleA-L_pc")); E(smov(s(5), "L_roleA_end-L_pc-4"))
    E(salu('s_cmp_ge_u32', None, sROLE, NA)); E(csel(s(4), "L_roleM-L_pc", s(4))); E(csel(s(5), "L_roleM_end-L_pc-4", s(5)))
    E(salu('s_cmp_ge_u32', None, sROLE, NA + NM)); E(csel(s(4), "L_roleF-L_pc", s(4))); E(csel(s(5), "L_roleF_end-L_pc-4", s(5)))
    n0 = CFG.get('code0', 16); NL = CFG.get('codelines', 24)
    if n0:
        E(mul(s(3), sWAVE, n0 * 128)); E(add(s(3), s(3), s(4)))
        E(valu('v_min_u32', v(2), n0 - 1, v(0))); E(valu('v_lshlrev_b32', v(2), 7, v(2))); E(valu('v_add_u32', v(2), s(3), v(2)))
        E(I(f"global_load_dword {vDUM}, v2, {sPC}", 'vload', wr=vDUM.regs(), rd=vr(2) + sPC.regs(), tag='pf'))
    E(salu('s_and_b32', s(3), sRB, 7)); E(shl(s(3), s(3), 2)); E(add(s(3), s(3), sWAVE))
    E(mul(s(3), s(3), NL * 128)); E(add(s(3), s(3), s(4)))
    E(valu('v_min_u32', v(2), NL - 1, v(0))); E(valu('v_lshlrev_b32', v(2), 7, v(2))); E(valu('v_add_u32', v(2), s(3), v(2)))
    E(valu('v_min_u32', v(3), s(5), v(2)))
    E(I(f"global_load_dword {vDUM}, v3, {sPC}", 'vload', wr=vDUM.regs(), rd=vr(3) + sPC.regs(), tag='pf'))
def common_prologue3(p):
    E = p.emit
    E(raw("s_load_dwordx2 s[48:49], s[0:1], 32", wr=[s(48, 2)]))
    E(raw("s_load_dwordx8 s[52:59], s[0:1], 48", wr=[s(52, 8)]))
    E(raw("s_load_dwordx2 s[50:51], s[0:1], 80", wr=[s(50, 2)]))
    srd(p, sK, 42, 8388608); srd(p, sV, 44, 8388608); srd(p, sWQ, 46, 4718592)
    E(mul(sW8704, sWAVE, 8 * PP)); E(mul(sWC, sWAVE, PP)); E(add(sWC, sWC, 32 * PP))
    E(shl(sW8192, sWAVE, 13)); E(shl(sWCH, sWAVE, 10)); E(add(sWCH, sWCH, 32768))
    E(mul(sW2176, sWAVE, 2 * PP)); E(mul(sW4352, sWAVE, 4 * PP)); E(add(sWA2, sW2176, 16 * PP))
    E(raw("s_waitcnt lgkmcnt(0)"))
    srd(p, sWO, 48, 4718592)
    srd(p, sW1, 52, 5308416); srd(p, sW2, 54, 5308416); srd(p, sWS, 50, 0x10000000 if (CFG['stamps'] or CFG['fused']) else WSP_BYTES)
    srd(p, sOUT, 56, 2359296); srd(p, sDBG, 58, 256)

def common_prologue_old():
    p = Prog(); E = p.emit
    E(salu('s_cmp_ge_u32', None, s(2), 256))
    E(raw("s_cbranch_scc0 L_go")); E(raw("s_endpgm")); E(label("L_go"))
    E(raw("s_load_dwordx8 s[40:47], s[0:1], 0", wr=[s(40, 8)]))
    E(raw("s_load_dwordx2 s[48:49], s[0:1], 32", wr=[s(48, 2)]))
    E(raw("s_load_dwordx8 s[52:59], s[0:1], 48", wr=[s(52, 8)]))
    E(raw("s_load_dwordx2 s[50:51], s[0:1], 80", wr=[s(50, 2)]))
    if CFG['stamps']:
        E(raw(f"s_memtime {sT0}", wr=[sT0])); E(raw("s_memrealtime s[96:97]", wr=[s(96, 2)]))
    tab = ROLE_TAB
    if CFG.get('map', 4) == 41:
        t4 = CFG.get('t41', [11, 0, 1, 2, 12, 3, 4, 5, 13, 14, 6, 7, 15, 10, 8, 9])
        lo = sum(t4[i] << (4 * i) for i in range(8)); hi = sum(t4[8 + i] << (4 * i) for i in range(8))
        E(shr(s(3), s(2), 6)); E(salu('s_bfe_u32', s(4), s(2), (1 << 16) | 1))
        E(shl(s(4), s(4), 2)); E(salu('s_or_b32', s(3), s(3), s(4))); E(shl(s(3), s(3), 2))
        E(salu('s_bitcmp1_b32', None, s(2), 2)); E(smov(s(4), lo)); E(csel(s(4), hi, s(4)))
        E(shr(s(4), s(4), s(3))); E(salu('s_and_b32', sROLE, s(4), 15))
        E(salu('s_and_b32', s(3), s(2), 1)); E(shl(s(3), s(3), 3))
        E(salu('s_bfe_u32', sRB, s(2), (3 << 16) | 3)); E(salu('s_or_b32', sRB, sRB, s(3)))
    elif CFG.get('map', 4) == 8:
        t8 = [0, 1, 2, 3, 4, 10, 11, 12, 5, 6, 7, 8, 9, 13, 14, 15]
        lo = sum(t8[i] << (4 * i) for i in range(8)); hi = sum(t8[8 + i] << (4 * i) for i in range(8))
        E(salu('s_bfe_u32', s(3), s(2), (3 << 16) | 3)); E(shl(s(3), s(3), 2))
        E(salu('s_bitcmp1_b32', None, s(2), 2)); E(smov(s(4), lo)); E(csel(s(4), hi, s(4)))
        E(shr(s(4), s(4), s(3))); E(salu('s_and_b32', sROLE, s(4), 15))
        E(salu('s_and_b32', s(3), s(2), 1)); E(shl(s(3), s(3), 3)); E(salu('s_and_b32', s(4), s(2), 2)); E(shl(s(4), s(4), 1))
        E(shr(sRB, s(2), 6)); E(salu('s_or_b32', sRB, sRB, s(3))); E(salu('s_or_b32', sRB, sRB, s(4)))
    elif CFG.get('map', 4) == 2:
        t2 = [0, 1, 2, 3, 4, 11, 5, 12, 6, 13, 7, 14, 8, 15, 9, 10]
        lo = sum(t2[i] << (4 * i) for i in range(8)); hi = sum(t2[8 + i] << (4 * i) for i in range(8))
        E(salu('s_bfe_u32', s(3), s(2), (1 << 16) | 3)); E(salu('s_and_b32', s(4), s(2), 3)); E(shl(s(4), s(4), 1)); E(salu('s_or_b32', s(3), s(3), s(4))); E(shl(s(3), s(3), 2))
        E(salu('s_bitcmp1_b32', None, s(2), 2)); E(smov(s(4), lo)); E(csel(s(4), hi, s(4)))
        E(shr(s(4), s(4), s(3))); E(salu('s_and_b32', sROLE, s(4), 15)); E(shr(sRB, s(2), 4))
    else:
        lo = sum(tab[i] << (4 * i) for i in range(8)); hi = sum(tab[8 + i] << (4 * i) for i in range(8))
        E(salu('s_bfe_u32', s(3), s(2), (2 << 16) | 3)); E(salu('s_bfe_u32', s(4), s(2), (1 << 16) | 1))
        E(shl(s(4), s(4), 2)); E(salu('s_or_b32', s(3), s(3), s(4))); E(shl(s(3), s(3), 2))
        E(salu('s_bitcmp1_b32', None, s(2), 2))
        E(smov(s(4), lo)); E(csel(s(4), hi, s(4)))
        E(shr(s(4), s(4), s(3))); E(salu('s_and_b32', sROLE, s(4), 15))
        E(salu('s_and_b32', s(3), s(2), 1)); E(shl(s(3), s(3), 3))
        E(shr(sRB, s(2), 5)); E(salu('s_or_b32', sRB, sRB, s(3)))
    E(valu('v_lshrrev_b32', v(1), 6, v(0)))
    E(valu('v_readfirstlane_b32', sWAVE, v(1)))
    E(valu('v_and_b32', v(0), 63, v(0)))
    E(valu('v_lshrrev_b32', vROWN, 3, v(0)))
    E(valu('v_and_b32', v(20), 7, v(0))); E(valu('v_lshrrev_b32', v(21), 4, v(0)))
    E(valu('v_xor_b32', v(22), v(20), v(21))); E(valu('v_xor_b32', v(23), 4, v(22)))
    E(smov(s(3), 1152)); E(valu('v_mul_u32_u24', v(24), s(3), vROWN))
    E(valu('v_lshl_add_u32', v(16), v(22), 4, v(24))); E(valu('v_lshl_add_u32', v(17), v(23), 4, v(24)))
    E(valu('v_add_u32', v(17), 8 * 1152 - 1024, v(17)))
    E(valu('v_add_u32', v(18), 2 * (8 * 1152 - 1024), v(16))); E(valu('v_add_u32', v(19), 2 * (8 * 1152 - 1024), v(17)))
    E(mul(s(6), sWAVE, XW))
    E(shl(s(7), sRB, 2)); E(add(s(7), s(7), sWAVE)); E(mul(s(7), s(7), 32 * 1152))
    E(raw(f"s_getpc_b64 {sPC}", wr=[sPC])); E(label("L_pc"))
    E(smov(s(4), "L_roleA-L_pc")); E(smov(s(5), "L_roleA_end-L_pc-4"))
    E(salu('s_cmp_ge_u32', None, sROLE, NA)); E(csel(s(4), "L_roleM-L_pc", s(4))); E(csel(s(5), "L_roleM_end-L_pc-4", s(5)))
    E(salu('s_cmp_ge_u32', None, sROLE, NA + NM)); E(csel(s(4), "L_roleF-L_pc", s(4))); E(csel(s(5), "L_roleF_end-L_pc-4", s(5)))
    def code_pf():
        NL = CFG.get('codelines', 24)
        E(salu('s_and_b32', s(3), sRB, 7)); E(shl(s(3), s(3), 2)); E(add(s(3), s(3), sWAVE))
        E(mul(s(3), s(3), NL * 128)); E(add(s(3), s(3), s(4)))
        E(valu('v_min_u32', v(2), NL - 1, v(0))); E(valu('v_lshlrev_b32', v(2), 7, v(2))); E(valu('v_add_u32', v(2), s(3), v(2)))
        E(valu('v_min_u32', v(3), s(5), v(2)))
        E(I(f"global_load_dword {vDUM}, v3, {sPC}", 'vload', wr=vDUM.regs(), rd=vr(3) + sPC.regs(), tag='pf'))
    if CFG.get('codepf', 3) >= 3:
        n0 = CFG.get('code0', 16)
        if n0:
            E(mul(s(3), sWAVE, n0 * 128)); E(add(s(3), s(3), s(4)))
            E(valu('v_min_u32', v(2), n0 - 1, v(0))); E(valu('v_lshlrev_b32', v(2), 7, v(2))); E(valu('v_add_u32', v(2), s(3), v(2)))
            E(I(f"global_load_dword {vDUM}, v2, {sPC}", 'vload', wr=vDUM.regs(), rd=vr(2) + sPC.regs(), tag='pf'))
        code_pf()
    E(raw("s_waitcnt lgkmcnt(0)"))
    srd(p, sX, 40, 2359296)
    if CFG.get('xt'):
        nch = CFG['xt']
        E(salu('s_bfe_u32', s(3), s(2), (2 << 16) | 3)); E(mul(s(3), s(3), 128 * nch)); E(add(s(3), s(3), 128 * (9 - 4 * nch))); E(add(s(3), s(3), s(7)))
        E(valu('v_and_b32', v(2), 31, v(0))); E(valu('v_mul_u32_u24', v(2), 1152, v(2)))
        if nch == 2:
            E(valu('v_lshrrev_b32', v(3), 5, v(0))); E(valu('v_lshl_add_u32', v(2), v(3), 7, v(2)))
        ld = bload('buffer_load_dword', vDUM, v(2), sX, s(3)); ld.tag = 'pf'; E(ld)
    nx0 = CFG.get('tx', 2) if CFG.get('touch') else 0
    for j in range(nx0): E(xdma(j))
    if CFG.get('touch'):
        E(salu('s_cmp_gt_u32', None, sROLE, 10))
        E(raw("s_cselect_b64 s[60:61], s[52:53], s[46:47]", 'salu', wr=[s(60, 2)], rd=[s(52, 2), s(46, 2)]))
        E(raw("s_cselect_b64 s[66:67], s[54:55], s[48:49]", 'salu', wr=[s(66, 2)], rd=[s(54, 2), s(48, 2)]))
        E(salu('s_cmp_eq_u32', None, sWAVE, 1)); E(raw("s_cselect_b64 s[60:61], s[66:67], s[60:61]", 'salu', wr=[s(60, 2)], rd=[s(66, 2), s(60, 2)]))
        E(salu('s_cmp_eq_u32', None, sWAVE, 2)); E(raw("s_cselect_b64 s[60:61], s[42:43], s[60:61]", 'salu', wr=[s(60, 2)], rd=[s(42, 2), s(60, 2)]))
        E(salu('s_cmp_eq_u32', None, sWAVE, 3)); E(raw("s_cselect_b64 s[60:61], s[44:45], s[60:61]", 'salu', wr=[s(60, 2)], rd=[s(44, 2), s(60, 2)]))
        E(smov(s(3), 73728)); E(salu('s_cmp_ge_u32', None, sWAVE, 2)); E(csel(s(3), 131072, s(3)))
        E(valu('v_mul_u32_u24', v(2), s(3), v(0)))
        E(I(f"global_load_dword {vDUM}, v2, s[60:61]", 'vload', wr=vDUM.regs(), rd=vr(2) + sr(60, 2), tag='pf'))
    for j in range(nx0, CFG['xe']): E(xdma(j))
    if CFG.get('codepf', 3) == 1: code_pf()
    if CFG.get('codepf', 3) == 2:
        E(valu('v_mov_b32', v(46), v(3))); E(raw(f"s_mov_b64 s[100:101], {sPC}", 'salu', wr=[s(100, 2)], rd=[sPC]))
    srd(p, sK, 42, 8388608); srd(p, sV, 44, 8388608); srd(p, sWQ, 46, 4718592); srd(p, sWO, 48, 4718592)
    srd(p, sW1, 52, 5308416); srd(p, sW2, 54, 5308416); srd(p, sWS, 50, 0x10000000 if (CFG['stamps'] or CFG['fused']) else WSP_BYTES)
    srd(p, sOUT, 56, 2359296); srd(p, sDBG, 58, 256)
    E(mul(sW8704, sWAVE, 8 * PP)); E(mul(sWC, sWAVE, PP)); E(add(sWC, sWC, 32 * PP))
    E(shl(sW8192, sWAVE, 13)); E(shl(sWCH, sWAVE, 10)); E(add(sWCH, sWCH, 32768))
    E(mul(sW2176, sWAVE, 2 * PP)); E(mul(sW4352, sWAVE, 4 * PP)); E(add(sWA2, sW2176, 16 * PP))
    return p

def dispatch_text():
    return f""" s_cmp_ge_u32 {sROLE}, {NA + NM}
 s_cbranch_scc1 L_roleF
 s_cmp_ge_u32 {sROLE}, {NA}
 s_getpc_b64 s[94:95]
L_pc2:
 s_cbranch_scc1 L_jM
 s_add_u32 s94, s94, L_roleA-L_pc2
 s_addc_u32 s95, s95, 0
 s_setpc_b64 s[94:95]
L_jM:
 s_add_u32 s94, s94, L_roleM-L_pc2
 s_addc_u32 s95, s95, 0
 s_setpc_b64 s[94:95]
"""

def pfload(srd_, base):
    ld = bload('buffer_load_dword', vDUM, vPF, srd_, base); ld.tag = 'pf'; return ld
def pf_lin(srd_, base_s, start, nbytes, nl=64):
    def f():
        return [valu('v_lshrrev_b32', vPF2, 16, vTID), valu('v_and_b32', vPF, 63, vTID), valu('v_min_u32', vPF, nl - 1, vPF),
                valu('v_mad_u32_u24', vPF, vPF2, nl, vPF), valu('v_lshlrev_b32', vPF, 7, vPF), valu('v_add_u32', vPF, start, vPF),
                valu('v_min_u32', vPF, nbytes - 128, vPF), pfload(srd_, base_s)]
    return f
def pf_run(srd_, base_s, nbytes, nl):
    def f():
        return [valu('v_min_u32', vPF, nbytes - 128, vPFR), valu('v_add_u32', vPFR, 64 * nl * 128, vPFR), pfload(srd_, base_s)]
    f.nl = nl
    return f
def vPFW(kind): return {'F': v(8), 'A': v(7), 'M': v(36)}[kind]
def pf_row(kind, srd_, step=128):
    def f():
        ld = bload('buffer_load_dword', vDUM, vPFW(kind), srd_, sPW); ld.tag = 'pf'
        return [add(sPW, sPW, step), ld]
    return f
def pf_row_setup(kind, pitch, nl, base, lit):
    r = vPFW(kind)
    return [valu('v_bfe_u32', vPF2, vTID, 16, 5), valu('v_and_b32', r, 63, vTID), valu('v_min_u32', r, nl - 1, r),
            valu('v_mad_u32_u24', r, vPF2, nl, r), smov(sT2, pitch), valu('v_mul_u32_u24', r, sT2, r), add(sPW, base, lit)]
def pf_code(la, lb, nl):
    def f():
        L = f"L_cp{pf_code.k}"; pf_code.k += 1
        ld = I(f"global_load_dword {vDUM}, {vPF}, {sPC}", 'vload', wr=vDUM.regs(), rd=vPF.regs() + sPC.regs(), units=3, tag='pf')
        return [raw(f"s_getpc_b64 {sPC}", 'salu', wr=[sPC]), label(L),
                salu('s_add_u32', sPC[0], sPC[0], f"{la}-{L}"), salu('s_addc_u32', sPC[1], sPC[1], 0, scc_r=True),
                valu('v_bfe_u32', vPF2, vTID, 16, 5), valu('v_and_b32', vPF, 63, vTID), valu('v_min_u32', vPF, nl - 1, vPF),
                valu('v_mad_u32_u24', vPF, vPF2, nl, vPF), valu('v_lshlrev_b32', vPF, 7, vPF), valu('v_min_u32', vPF, f"{lb}-{la}-4", vPF), ld]
    return f
pf_code.k = 0
def pf_sched(R, k0, srd_, base_s, nbytes, nl):
    per = 64 * nl * 128; k = k0
    for st in range(0, nbytes, per):
        R.pf.setdefault(k, []).append(pf_lin(srd_, base_s, st, nbytes, nl)); k += 1
    return k

def role_prologue(R, vm_before):
    p = R.p; E = p.emit; kind = R.kind
    p.vm = list(vm_before)
    MS = CFG['shape'] == 'M'
    def PS(k):
        if CFG['stamps'] == 1: R.stamp(k)
    if CFG.get('delayrole') is not None:
        for r_ in CFG['delayrole']:
            E(salu('s_cmp_eq_u32', None, sROLE, r_[0])); E(raw(f"s_cbranch_scc0 L_{kind}_nd{r_[0]}"))
            E(smov(sLC, r_[1])); E(label(f"L_{kind}_dl{r_[0]}")); E(raw("s_sleep 127")); E(salu('s_sub_u32', sLC, sLC, 1)); E(salu('s_cmp_lg_u32', None, sLC, 0)); E(raw(f"s_cbranch_scc1 L_{kind}_dl{r_[0]}"))
            E(label(f"L_{kind}_nd{r_[0]}"))
    PS(56)
    lane = v(0)
    ILV = CFG.get('ilv') and not MS
    setup = []
    if ILV:
        E(valu('v_lshrrev_b32', v(48), 4, lane)); E(valu('v_and_b32', v(49), 15, lane)); E(valu('v_bfe_u32', v(50), lane, 1, 3)); E(valu('v_xor_b32', v(50), v(50), v(48)))
        E(valu('v_lshlrev_b32', v(49), 7, v(49))); E(valu('v_add_u32', v(49), s(6), v(49)))
        E(valu('v_lshl_add_u32', v(20), v(50), 4, v(49))); E(valu('v_xor_b32', v(21), 64, v(20)))
        def E(i):
            if isinstance(i, (list, tuple)):
                for x in i: E(x)
            else: setup.append(i)
    E(shl(sT2, sRB, 2)); E(add(sT2, sT2, sWAVE)); E(shl(sT2, sT2, 16)); E(valu('v_or_b32', vTID, sT2, lane))
    if kind in 'AM' and CFG.get('pair'):
        sHP_, sHS_ = s(86), s(85)
        if CFG.get('l844'): E(shl(sHP_, sROLE, 1)); E(add(sHP_, sHP_, 8))
        else: E(mul(sHP_, sROLE, 3))
        if kind == 'A':
            sHP_, sHS_ = sFA, sFC
            E(mul(sHS_, sROLE, 3)); E(salu('s_and_b32', s(4), sROLE, 1)); E(add(sHP_, sHS_, s(4)))
            E(shl(s(4), s(4), 1)); E(add(sHS_, sHS_, 2)); E(salu('s_sub_u32', sHS_, sHS_, s(4)))
            E(salu('s_sub_u32', sJQ, sHS_, sHP_)); E(shl(sJQ, sJQ, 8)); E(salu('s_sub_u32', sJQ, sJQ, 3 * 128))
        E(shl(sQ0, sHP_, 8))
        E(mul(sQA, sWAVE, 64 * 8192)); E(add(sQA, sQA, sQ0))
        E(shl(sQC, sWAVE, 16)); E(add(sQC, sQC, sQ0)); E(add(sQC, sQC, 256 * 8192))
        E(shr(s(3), sWAVE, 1)); E(shl(s(3), s(3), 13)); E(salu('s_and_b32', s(4), sWAVE, 1)); E(shl(s(4), s(4), 11)); E(add(s(3), s(3), s(4)))
        E(salu('s_sub_u32', s(3), s(3), 64)); E(shl(s(4), sWAVE, 11))
        for e, (h_, pfr) in enumerate([(sHP_, sPFa), (sHS_, sPFb)][:2 if kind == 'A' else 1]):
            E(shr(pfr, h_, 1)); E(shl(pfr, pfr, 19)); E(add(pfr, pfr, 1536 * 256))
            E(add(sKb[e], pfr, s(4))); E(add(sVb[e], pfr, s(3)))
        E(mul(sPFc, sROLE, 384 * 1152) if kind == 'A' else mul(sPFc, sHP_, 128 * 1152))
        if kind == 'A':
            E(mul(sHP_, sHP_, 128 * 1152)); E(mul(sHS_, sHS_, 128 * 1152))
            E(mul(sOA, sWAVE, 32 * 1152)); E(add(sOA1, sOA, sHS_)); E(add(sOA, sOA, sHP_))
            E(salu('s_sub_u32', sOA1, sOA1, 64 * 1152)); E(add(sT3, sOA, 192 * 1152)); E(salu('s_cmp_lt_u32', None, sWAVE, 2)); E(csel(sOA1, sT3, sOA1))
            E(shr(s(3), sWAVE, 1)); E(shl(s(3), s(3), 2)); E(salu('s_and_b32', s(4), sWAVE, 1)); E(add(s(3), s(3), s(4)))
            E(mul(sOB, s(3), 8 * 1152)); E(add(sOB1, sOB, sHS_)); E(add(sOB1, sOB1, 64 * 1152)); E(add(sOB, sOB, sHP_)); E(add(sOB, sOB, 128 * 1152))
        else:
            E(mul(sOA, sWAVE, 64 * 1152)); E(add(sOA, sOA, sPFc))
    elif kind in 'AM':
        E(mul(sT3, sROLE, 3 * 256))
        E(mul(sQA, sWAVE, 64 * 8192)); E(add(sQA, sQA, sT3))
        E(shl(sQC, sWAVE, 16)); E(add(sQC, sQC, sT3)); E(add(sQC, sQC, 256 * 8192))
        E(shr(s(3), sWAVE, 1)); E(shl(s(3), s(3), 13)); E(salu('s_and_b32', s(4), sWAVE, 1)); E(shl(s(4), s(4), 11)); E(add(s(3), s(3), s(4)))
        E(salu('s_sub_u32', s(3), s(3), 64)); E(shl(s(4), sWAVE, 11))
        if MS: E(shl(s(3), sWAVE, 12))
        for e in range(3 if kind == 'A' else 2):
            E(mul(sT3, sROLE, 3)); E(add(sT3, sT3, e)); E(shr(sT3, sT3, 1)); E(shl(sT3, sT3, 19)); E(add(sT3, sT3, 1536 * 256))
            if e == 0: E(smov(sPFa, sT3))
            if e == (2 if kind == 'A' else 1): E(smov(sPFb, sT3))
            E(add(sKb[e], sT3, s(4))); E(add(sVb[e], sT3, s(3)))
        E(mul(sPFc, sROLE, 384 * 1152))
        if kind == 'A':
            E(mul(sOA, sWAVE, 32 * 1152)); E(add(sOA, sOA, sPFc))
            E(shr(s(3), sWAVE, 1)); E(shl(s(3), s(3), 2)); E(salu('s_and_b32', s(4), sWAVE, 1)); E(add(s(3), s(3), s(4)))
            E(mul(sOB, s(3), 8 * 1152)); E(add(sOB, sOB, sPFc)); E(add(sOB, sOB, 128 * 1152))
        else:
            E(mul(sOA, sWAVE, 64 * 1152)); E(add(sOA, sOA, sPFc))
    if kind in 'FM':
        if kind == 'F':
            E(salu('s_sub_u32', s(3), sROLE, NA + NM)); E(mul(sPF1, s(3), 13 * 128)); E(shl(sPF1h, s(3), 6)); E(add(sPF1h, sPF1h, 69 * 128))
        elif CFG.get('l844'):
            E(mul(sPF1, sROLE, 5 * 128)); E(add(sPF1, sPF1, (52 - 40) * 128)); E(smov(sPF1h, sPF1))
        else:
            E(smov(sPF1, f_fullcol(5) * 2)); E(smov(sPF1h, f_halfcol(5) * 2))
        E(mul(sHA, sWAVE, 64 * 9216)); E(add(sHA, sHA, sPF1))
        E(mul(sHC, sWAVE, 8 * 9216)); E(add(sHC, sHC, sPF1)); E(add(sHC, sHC, 256 * 9216))
        E(mul(sHH, sWAVE, 128 * 9216)); E(add(sHH, sHH, sPF1h))
        E(mul(sHHC, sWAVE, 16 * 9216)); E(add(sHHC, sHHC, sPF1h)); E(add(sHHC, sHHC, 512 * 9216))
        E(mul(sPF2, sPF1, 576)); E(mul(sPF2h, sPF1h, 576))
        E(mul(sFA, sWAVE, 64 * 1152)); E(add(sFA, sFA, sPF2))
        if MS:
            E(salu('s_and_b32', s(3), sWAVE, 1)); E(shl(s(3), s(3), 1)); E(shr(s(4), sWAVE, 1)); E(add(s(3), s(3), s(4))); E(mul(sFC, s(3), 8 * 1152))
        else: E(mul(sFC, sWAVE, 4 * 1152))
        E(add(sFS, sFC, sPF2h)); E(add(sFC, sFC, sPF2)); E(add(sFC, sFC, 256 * 1152))
    if CFG['pf'] >= 3:
        if kind in 'AM': E(mul(sT3, sROLE, 3 * 256) if not CFG.get('pair') else smov(sT3, sQ0))
        E(pf_row_setup(kind, 8192 if kind in 'AM' else 9216, 18, sT3 if kind in 'AM' else sPF1, 0))
        f_ = pf_row(kind, sWQ if kind in 'AM' else sW1)
        early_pf = [f_()[1]] + f_() + f_()
        if CFG.get('ez'): E(early_pf[0])
        if CFG.get('epf', 1) == 3:
            R.pf.setdefault(0, [])[:0] = [f_, f_]
    E(add(sT3, sROLE, NS - NA if kind == 'F' else 0))
    E(mul(sSt, sT3, PSTR())); E(shl(sT3, sRB, 2)); E(add(sT3, sT3, sWAVE)); E(mul(sT3, sT3, PWAVE)); E(add(sSt, sSt, sT3))
    if kind == 'M': E(add(sSt2, sSt, (NS - NA) * PSTR()))
    if CFG['fused']:
        E(shl(sT2, sRB, 14)); E(add(sT2, sT2, CTRL))
        E(add(sT3, sROLE, NS - NA if kind == 'F' else 0)); E(shl(sT3, sT3, 2)); E(add(sT3, sT3, sT2))
        E(salu('s_cmp_eq_u32', None, sWAVE, 0)); E(csel(sT3, sT3, OOB)); E(csel(sT2, sT2, OOB))
        E(valu('v_and_b32', v(24), 15, lane)); E(valu('v_lshlrev_b32', v(25), 7, v(24))); E(valu('v_add_u32', v(25), 128, v(25)))
        E(raw("v_cmp_eq_u32 vcc, 0, v24", 'valu', wr=['vcc'], rd=[v(24)])); E(valu('v_cndmask_b32', v(25), v(25), 0, 'vcc') if False else raw("v_cndmask_b32 v25, v25, v24, vcc", 'valu', wr=[v(25)], rd=[v(25), v(24), 'vcc']))
        E(valu('v_lshrrev_b32', v(26), 4, lane)); E(valu('v_lshl_add_u32', v(25), v(26), 2 + (NS - NA).bit_length() - 1, v(25))); E(valu('v_add_u32', v(25), sT3, v(25)))
        E(raw(f"s_mov_b64 vcc, {hex(((1 << (NA + 1 + CFG.get('mpriv', 0))) - 1) * (0x10001 if kind == 'M' else 1))}", 'salu', wr=['vcc'])); E(valu('v_mov_b32', vCT, OOB)); E(nop(1))
        E(raw(f"v_cndmask_b32 {vCT}, {vCT}, v25, vcc", 'valu', wr=[vCT], rd=[vCT, v(25), 'vcc']))
        E(valu('v_mov_b32', v(24), vCT))
        if CFG.get('abn'):
            E(valu('v_and_b32', v(26), 15, lane)); E(valu('v_lshlrev_b32', v(26), 8, v(26))); E(add(sT2, sT2, ABN)); E(valu('v_add_u32', v(26), sT2, v(26)))
            if kind == 'A' and CFG.get('bal') == 2:
                E(valu('v_mov_b32', v(27), sROLE))
                for lim, tab, base in ((15, BAL2, 10), (31, BAL3, 21), (47, [BALM[i] if BALM[i] < 36 else BAL3[i] for i in range(10)], 21)):
                    t_ = [x - base for x in tab]
                    E(smov(s(98), sum(t_[i] << (4 * i) for i in range(8)))); E(smov(s(99), t_[8] | (t_[9] << 4)))
                    E(shl(s(4), sROLE, 2)); E(salu('s_lshr_b64', s(98, 2), s(98, 2), s(4))); E(salu('s_and_b32', s(4), s(98), 15)); E(add(s(4), s(4), base))
                    E(valu('v_mov_b32', v(25), s(4)))
                    E(raw(f"v_cmp_lt_u32 vcc, {lim}, v0", 'valu', wr=['vcc'], rd=[lane])); E(raw("v_cndmask_b32 v27, v27, v25, vcc", 'valu', wr=[v(27)], rd=[v(27), v(25), 'vcc']))
            elif kind == 'F' and CFG.get('bal') == 2:
                E(valu('v_mov_b32', v(27), 40))
            elif kind == 'A':
                t_ = [x - 20 for x in ([28, 29, 23, 30, 31, 24, 32, 33, 34, 35] if CFG.get('m3') else [28, 29, 22, 30, 31, 21, 32, 33, 34, 35])]
                E(smov(s(98), sum(t_[i] << (4 * i) for i in range(8)))); E(smov(s(99), t_[8] | (t_[9] << 4)))
                E(shl(s(4), sROLE, 2)); E(salu('s_lshr_b64', s(98, 2), s(98, 2), s(4))); E(salu('s_and_b32', s(4), s(98), 15)); E(add(s(4), s(4), 20))
                E(valu('v_mov_b32', v(27), s(4))); E(add(s(4), sROLE, 10)); E(valu('v_mov_b32', v(25), s(4)))
                E(raw("v_cmp_gt_u32 vcc, 32, v0", 'valu', wr=['vcc'], rd=[lane])); E(raw("v_cndmask_b32 v27, v27, v25, vcc", 'valu', wr=[v(27)], rd=[v(27), v(25), 'vcc']))
                E(valu('v_mov_b32', v(25), sROLE))
                E(raw("v_cmp_gt_u32 vcc, 16, v0", 'valu', wr=['vcc'], rd=[lane])); E(raw("v_cndmask_b32 v27, v27, v25, vcc", 'valu', wr=[v(27)], rd=[v(27), v(25), 'vcc']))
            elif CFG.get('m3') and kind == 'M':
                E(valu('v_lshrrev_b32', v(27), 4, lane)); E(valu('v_min_u32', v(27), 2, v(27))); E(valu('v_add_u32', v(27), 20, v(27)))
            elif CFG.get('m3'):
                E(add(s(4), sROLE, 12)); E(salu('s_cmp_lt_u32', None, sROLE, 13)); E(csel(s(4), 40, s(4))); E(valu('v_mov_b32', v(27), s(4)))
            else:
                E(smov(s(4), 20) if kind == 'M' else add(s(4), sROLE, 12)); E(valu('v_mov_b32', v(27), s(4)))
            E(valu('v_lshl_add_u32', v(26), v(27), 2, v(26))); E(valu('v_mov_b32', v(25), 0))
            z = bstore('buffer_store_dword', v(25), v(26), sWS, 0, flags='sc1'); z.tag = 'zero'; E(z)
        else:
            assert not (CFG.get('l844') or CFG.get('four') or CFG.get('nof'))
            E(add(sT2, sT2, 4 * (NPART + 1)))
            def flag(lane_, item):
                E(raw(f"s_lshl2_add_u32 {sT3}, {item}, {sT2}", 'salu', wr=[sT3], rd=[item, sT2]))
                E(raw(f"v_writelane_b32 v24, {sT3}, {lane_}", 'valu', wr=[v(24)], rd=[sT3, v(24)]))
            def tflag(lane_, tab, base):
                t_ = [min(x - base, 15) for x in tab]
                E(smov(s(98), sum(t_[i] << (4 * i) for i in range(8)))); E(smov(s(99), t_[8] | (t_[9] << 4)))
                E(shl(s(4), sROLE, 2)); E(salu('s_lshr_b64', s(98, 2), s(98, 2), s(4))); E(salu('s_and_b32', s(4), s(98), 15)); E(add(s(4), s(4), base)); flag(lane_, s(4))
            if kind == 'A' and CFG.get('bal'):
                flag(32, sROLE); tflag(33, BAL2, 10); tflag(34, BAL3, 21)
                tflag(35, [x if x < 36 else i for i, x in enumerate(BALM)][:0] + [(BALM[i] if BALM[i] < 36 else BAL2[i]) for i in range(10)], 10)
            elif kind == 'A':
                flag(32, sROLE); E(add(s(4), sROLE, 10)); flag(33, s(4)); tflag(34, [28, 29, 22, 30, 31, 21, 32, 33, 34, 35], 20)
            elif kind == 'F' and CFG.get('bal'):
                E(add(s(4), sROLE, 12)); E(salu('s_cmp_lt_u32', None, sROLE, 13)); E(csel(s(4), 41, s(4))); flag(32, s(4))
            else:
                E(smov(s(4), 20) if kind == 'M' else add(s(4), sROLE, 12)); flag(32, s(4))
        E(valu('v_mov_b32', v(25), 0))
        z = bstore('buffer_store_dword', v(25), v(24), sWS, 0, flags='sc1'); z.tag = 'zero'; E(z)
        E(shl(sT2, sRB, 4)); E(salu('s_cmp_eq_u32', None, sWAVE, 0)); E(csel(sT2, sT2, 256))
        E(valu('v_mov_b32', v(23), 256)); E(raw(f"v_writelane_b32 v23, {sT2}, 0", 'valu', wr=[v(23)], rd=[sT2, v(23)]))
    T_ = [v(24), v(25), v(26), v(27), v(28), v(29)]
    q, r, c4, rb1 = T_[0], T_[1], T_[2], T_[3]
    E(valu('v_lshrrev_b32', q, 4, lane)); E(valu('v_bfe_u32', r, lane, 2, 2)); E(valu('v_and_b32', c4, 3, lane)); E(valu('v_bfe_u32', rb1, lane, 3, 1))
    E(valu('v_and_b32', T_[4], 7, lane)); E(valu('v_bfe_u32', T_[5], lane, 4, 1)); E(valu('v_lshlrev_b32', T_[5], 1, T_[5]))
    E(valu('v_xor_b32', T_[4], T_[4], T_[5])); E(valu('v_lshlrev_b32', vSWZ, 4, T_[4]))
    E(valu('v_lshrrev_b32', T_[4], 5, lane)); E(valu('v_and_b32', T_[5], 3, vROWN)); E(valu('v_lshl_add_u32', vROWP, T_[4], 4, T_[5]))
    E(smov(sT2, PP)); E(valu('v_mul_u32_u24', T_[4], sT2, q)); E(valu('v_lshl_add_u32', T_[4], r, 7, T_[4]))
    E(valu('v_lshl_add_u32', T_[4], c4, 3, T_[4])); E(valu('v_lshl_add_u32', vRW[0][0], rb1, 5, T_[4]))
    E(valu('v_mov_b32', vDP, vRW[0][0]))
    if MS:
        E(valu('v_and_b32', T_[4], 7, lane)); E(valu('v_bfe_u32', T_[5], lane, 4, 1)); E(valu('v_lshlrev_b32', T_[5], 2, T_[5]))
        E(valu('v_xor_b32', T_[4], T_[4], T_[5])); E(valu('v_lshlrev_b32', vSWZM, 4, T_[4]))
        E(valu('v_bfe_u32', q, lane, 4, 1)); E(valu('v_lshlrev_b32', q, 5, q))
        E(valu('v_and_b32', T_[4], 1, lane)); E(valu('v_lshl_add_u32', q, T_[4], 4, q))
        E(valu('v_bfe_u32', T_[4], lane, 1, 1)); E(valu('v_lshl_add_u32', q, T_[4], 3, q))
        E(valu('v_lshrrev_b32', T_[5], 5, lane))
        E(smov(sT2, PP)); E(valu('v_mad_u32_u24', T_[4], T_[5], sT2, q)); E(valu('v_lshl_add_u32', T_[4], r, 7, T_[4]))
        E(valu('v_lshl_add_u32', vRW[0][0], rb1, 6, T_[4])); E(valu('v_xor_b32', rb1, 1, rb1)); E(valu('v_lshl_add_u32', vRW[0][1], rb1, 6, T_[4]))
        if kind in 'FM':
            E(valu('v_lshl_add_u32', vRH[0], T_[5], 9, q)); E(valu('v_lshl_add_u32', vRH[0], r, 6, vRH[0]))
            E(valu('v_lshlrev_b32', T_[4], 4, c4)); E(valu('v_lshrrev_b32', T_[5], 2, lane)); E(smov(sT2, 9216))
            E(valu('v_mad_u32_u24', vOFFH, T_[5], sT2, T_[4]))
        E(valu('v_lshrrev_b32', q, 4, lane))
    else:
        E(valu('v_xor_b32', vRW[0][1], 32, vRW[0][0]))
    for b in (1, 2):
        for T in range(2): E(valu('v_add_u32', vRW[b][T], 65536 * b, vRW[0][T]))
    if kind in 'FM' and not MS:
        E(valu('v_lshlrev_b32', T_[4], 9, q)); E(valu('v_lshl_add_u32', T_[4], r, 6, T_[4])); E(valu('v_lshl_add_u32', T_[4], c4, 3, T_[4]))
        E(valu('v_and_b32', T_[5], 1, q)); E(valu('v_lshl_add_u32', vRH[0], T_[5], 5, T_[4])); E(valu('v_xor_b32', vRH[1], 32, vRH[0]))
        E(valu('v_lshrrev_b32', T_[4], 5, lane)); E(valu('v_lshlrev_b32', T_[4], 1, T_[4])); E(valu('v_xor_b32', T_[4], T_[4], c4))
        E(valu('v_lshlrev_b32', T_[4], 4, T_[4])); E(valu('v_lshrrev_b32', T_[5], 2, lane)); E(smov(sT2, 9216))
        E(valu('v_mad_u32_u24', vOFFH, T_[5], sT2, T_[4]))
    if kind in 'AM':
        E(valu('v_and_b32', T_[4], 15, lane)); E(valu('v_xor_b32', T_[4], T_[4], q)); E(valu('v_lshlrev_b32', T_[4], 4, T_[4]))
        E(valu('v_lshl_add_u32', vOFFK, q, 8, T_[4]))
    E(set_offw(8192 if kind in 'AM' else 9216, 'M' if MS else 'S'))
    if MS:
        XA = [v(20), v(21), v(22), v(39)]
        E(valu('v_and_b32', T_[4], 31, lane)); E(valu('v_bfe_u32', T_[5], lane, 1, 3)); E(valu('v_lshrrev_b32', q, 5, lane)); E(valu('v_xor_b32', T_[5], T_[5], q))
        E(valu('v_lshlrev_b32', T_[4], 7, T_[4])); E(valu('v_add_u32', T_[4], s(6), T_[4]))
        E(valu('v_lshl_add_u32', XA[0], T_[5], 4, T_[4]))
        for tt in range(1, 4): E(valu('v_xor_b32', XA[tt], 32 * tt, XA[0]))
    else:
        E(valu('v_and_b32', T_[4], 15, lane)); E(valu('v_bfe_u32', T_[5], lane, 1, 3)); E(valu('v_xor_b32', T_[5], T_[5], q))
        E(valu('v_lshlrev_b32', T_[4], 7, T_[4])); E(valu('v_add_u32', T_[4], s(6), T_[4]))
        E(valu('v_lshl_add_u32', v(20), T_[5], 4, T_[4])); E(valu('v_xor_b32', v(21), 64, v(20)))
        if kind in 'AM':
            E(smov(sT2, PP)); E(valu('v_mul_u32_u24', v(22), sT2, r)); E(valu('v_lshl_add_u32', v(22), c4, 8, v(22)))
            E(valu('v_xor_b32', T_[4], q, c4)); E(valu('v_lshl_add_u32', v(22), T_[4], 4, v(22)))
    E(valu('v_lshlrev_b32', vLANE16, 4, lane))
    if CFG['stamps'] == 2: E(valu('v_mov_b32', vSTAMP, 0))
    if CFG['fused'] and CFG.get('rep') and kind in 'FM':
        E(rep_addr(kind, v(24), v(25))); E(valu('v_mov_b32', v(25), 0))
        z = bstore('buffer_store_dword', v(25), v(24), sWS, 0, flags='sc1'); z.tag = 'zero'; E(z)
    E = p.emit
    sONE = s(97) if ILV else sT2
    SA = 56 if ILV else 28
    for i in range(8): E(valu('v_mov_b32', v(SA + i), 0))
    E(smov(sONE, 0x3f803f80))
    def stats(j):
        for tt in range(2):
            for g in range(2):
                for qd in range(4):
                    x = X(2 * j + tt, g)[qd]
                    E(valu('v_dot2c_f32_bf16', v(SA + 2 * g + (qd & 1)), sONE, x, rmw=True))
                    E(valu('v_dot2c_f32_bf16', v(SA + 4 + 2 * g + (qd & 1)), x, x, rmw=True))
    PS(57)
    for j in range(9):
        E(waitvm(p.vm_wait_for(lambda t: t == ('x', j))))
        if j == 0: PS(58)
        if MS:
            for tt in range(4): E(ds_b128(XM(4 * j + tt), XA[tt], j * 4096))
        else:
            for tt in range(2):
                for g in range(2): E(ds_b128(X(2 * j + tt, g), v(20 + tt), j * 4096 + g * 2048))
        if j + CFG['xe'] < 9: E(xdma(j + CFG['xe']))
        if CFG['pf'] >= 3 and CFG.get('epf', 1) == 1 and j == max(8 - CFG['xe'], 0): E(early_pf)
        if ILV:
            nper = -(-len(setup) // max(CFG['ilv'] - j, 1))
            while nper < len(setup) and (SCC in setup[nper].rd or setup[nper].txt.startswith('s_cselect') or VCC in setup[nper].rd): nper += 1
            E(setup[:nper]); del setup[:nper]
        if j >= 1:
            E(waitlg(4)); stats(j - 1)
    E(waitlg(0)); PS(59); E(barrier())
    if CFG.get('codepf', 3) == 2: E(I(f"global_load_dword {vDUM}, v46, s[100:101]", 'vload', wr=vDUM.regs(), rd=vr(46) + sr(100, 2), tag='pf'))
    if CFG['pf'] >= 3 and CFG.get('epf', 1) == 2: E(early_pf)
    pend = []
    for k in range(2 if CFG.get('pro2') else 3):
        st = R.stages[k]
        if st.pre_dma: pend.append(st.pre_dma())
        pend += st.dma(k, False)
    if CFG.get('epf', 1) == 4: pend[CFG.get('epos', 9):CFG.get('epos', 9)] = [early_pf[1:3], early_pf[3:5]]
    d0 = CFG.get('d0', 9)
    for it in pend[:d0]: E(it)
    pend = pend[d0:]
    PS(60)
    stats(8)
    acc4 = [v(SA), v(SA + 2), v(SA + 4), v(SA + 6)]
    for x in acc4: E(valu('v_add_f32', x, x, v(x.n + 1)))
    if MS:
        for b_ in (0, 2):
            E(valu('v_add_f32', acc4[b_], acc4[b_], acc4[b_ + 1]))
        for b_ in (0, 2): E(valu('v_mov_b32', acc4[b_ + 1], acc4[b_]))
    for op in (('v_permlane32_swap_b32',) if MS else ('v_permlane16_swap_b32', 'v_permlane32_swap_b32')):
        for x in acc4: E(valu('v_mov_b32', v(x.n + 1), x))
        for x in acc4: E(valu(op, x, v(x.n + 1), rmw=True, extra_wr=[v(x.n + 1)]))
        for x in acc4: E(valu('v_add_f32', x, x, v(x.n + 1)))
    for x in acc4: E(valu('v_mul_f32', x, f2u(1.0 / 576), x))
    for g in range(2): E(valu('v_fma_f32', acc4[2 + g], '-' + str(acc4[g]), acc4[g], acc4[2 + g]))
    for g in range(2): E(valu('v_max_f32', acc4[2 + g], 0, acc4[2 + g]))
    for g in range(2): E(valu('v_add_f32', acc4[2 + g], f2u(1e-5), acc4[2 + g]))
    for g in range(2): E(valu('v_rsq_f32', acc4[2 + g], acc4[2 + g]))
    for g in range(2): E(valu('v_mul_f32', acc4[2 + g], f2u(-LOG2E), acc4[2 + g]))
    for g in range(2): E(valu('v_mov_b32', v(20 + g), acc4[g]))
    for g in range(2): E(valu('v_mul_f32', acc4[g], '-' + str(acc4[g]), acc4[2 + g], extra_rd=[acc4[g]]))
    E(smov(sT2, 0xffff0000))
    if CFG.get('dotn'):
        cl = [v(SA + 1), v(SA + 3)]; ch = [v(SA + 5), v(SA + 7)]
        for g in range(2): E(valu('v_cvt_pk_bf16_f32', cl[g], acc4[2 + g], 0))
        for g in range(2): E(valu('v_lshlrev_b32', ch[g], 16, cl[g]))
        for g in range(2): E(valu('v_mul_f32', acc4[g], '-' + str(v(20 + g)), ch[g], extra_rd=[v(20 + g)]))
    PS(61)
    n = 0
    for t in range(18):
        for g in range(2):
            tps = [v(24, 2), v(26, 2), v(16, 2), v(18, 2)]
            x = X(t, g)
            if CFG.get('dotn'):
                for qd in range(4):
                    E(valu('v_dot2_f32_bf16', tps[qd][0], x[qd], cl[g], acc4[g])); E(valu('v_dot2_f32_bf16', tps[qd][1], x[qd], ch[g], acc4[g]))
            else:
                for qd in range(4):
                    E(valu('v_lshlrev_b32', tps[qd][0], 16, x[qd])); E(valu('v_and_b32', tps[qd][1], sT2, x[qd]))
                for qd in range(4): E(valu('v_pk_fma_f32', tps[qd], tps[qd], v(acc4[2 + g].n, 2), v(acc4[g].n, 2), mods='op_sel_hi:[1,0,0]'))
            for qd in range(4): E(valu('v_cvt_pk_bf16_f32', x[qd], tps[qd][0], tps[qd][1]))
            if pend and n % CFG.get('dn', 2) == 0: E(pend.pop(0))
            n += 1
    for it in pend: E(it)
    if CFG['fused']:
        E(valu('v_mov_b32', v(24), 1)); E(waitvm(p.vm_wait_for(lambda t: t == 'zero')))
        E(I(f"buffer_atomic_add v24, v23, {sDBG}, 0 offen sc1", 'vstore', rd=vr(23, 2) + sDBG.regs(), units=3, tag='init'))
    for _ in range(CFG.get('idle', 0)): E(raw("s_sleep 16"))
    PS(62)
    if kind in 'AM' and MS:
        ln, m_, key, t_ = v(16), v(17), v(18), v(19)
        E([valu('v_lshrrev_b32', ln, 4, vLANE16), valu('v_and_b32', key, 19, ln),
           valu('v_bfe_u32', t_, ln, 2, 1), valu('v_lshl_add_u32', key, t_, 3, key),
           valu('v_bfe_u32', t_, ln, 3, 1), valu('v_lshl_add_u32', key, t_, 2, key),
           valu('v_lshrrev_b32', m_, 2, key), smov(sT2, PP), valu('v_mul_u32_u24', m_, sT2, m_),
           valu('v_and_b32', key, 3, key), valu('v_lshl_add_u32', m_, key, 8, m_),
           valu('v_lshrrev_b32', t_, 5, ln), valu('v_xor_b32', t_, t_, key),
           valu('v_lshl_add_u32', vRKM[0], t_, 4, m_), valu('v_xor_b32', vRKM[1], 32, vRKM[0])])
    elif kind in 'AM':
        E(valu('v_mov_b32', vRK[0], v(22))); E(valu('v_add_u32', vRK[1], 65536, v(22))); E(valu('v_add_u32', vRK[2], 131072, v(22)))
    if CFG['stamps']: E(raw(f"v_writelane_b32 {vSTAMP}, s96, 55", 'valu', wr=[vSTAMP], rd=[s(96)])) if kind != 'A' else None
    if CFG['stamps']: E(smov(s(43), s(96)))
    nlr = {'F': 10, 'A': 11, 'M': 8}[kind]
    if kind != 'M': E([valu('v_lshrrev_b32', vPF2, 16, vTID), valu('v_and_b32', vPFR, 63, vTID), valu('v_min_u32', vPFR, nlr - 1, vPFR),
       valu('v_mad_u32_u24', vPFR, vPF2, nlr, vPFR), valu('v_lshlrev_b32', vPFR, 7, vPFR)])
    if CFG['stamps']: E(smov(s(97), 0))
    E(smov(sLN0, f2u(-1.0 / math.sqrt(128.0))))

def slow_check(R, heads, base2):
    def f():
        p = R.p; E = p.emit
        t = v(254); lo = v(255)
        E(valu('v_mov_b32', lo, f2u(2.0 ** -40))); E(smov(sT3, f2u(2.0 ** 40)))
        for (hd, Q, O) in heads:
            L = f"L_{R.kind}_slow{hd}"
            if CFG['shape'] == 'M':
                E(valu('v_med3_f32', t, Lsave[hd], sT3, lo))
                E(raw(f"v_cmp_neq_f32 vcc, {t}, {Lsave[hd]}", 'valu', wr=['vcc'], rd=[t, Lsave[hd]])); E(nop(4))
            else:
                E(valu('v_med3_f32', t, Lsave[2 * hd], sT3, lo))
                E(raw(f"v_cmp_neq_f32 s[98:99], {t}, {Lsave[2 * hd]}", 'valu', wr=[s(98, 2)], rd=[t, Lsave[2 * hd]]))
                E(valu('v_med3_f32', t, Lsave[2 * hd + 1], sT3, lo))
                E(raw(f"v_cmp_neq_f32 vcc, {t}, {Lsave[2 * hd + 1]}", 'valu', wr=['vcc'], rd=[t, Lsave[2 * hd + 1]])); E(nop(4))
                E(raw("s_or_b64 vcc, vcc, s[98:99]", 'salu', wr=['vcc'], rd=['vcc', s(98, 2)])); E(nop(1))
            if CFG.get('force_slow'): E(raw(f"s_mov_b64 vcc, -1", 'salu', wr=['vcc']))
            E(raw(f"s_cbranch_vccz {L}_ret"))
            E(raw(f"s_call_b64 {sRET}, {L}"))
            E(label(f"{L}_ret"))
            R.slow.append((slow_path if CFG['shape'] == 'M' else slow_pathS)(L, hd, Q, O, base2))
        E(nop(1))
    return f

def slow_path(L, hd, Q, Odst, b2):
    p = Prog(); E = p.emit
    O = v(48, 64); S = v(b2, 16); P = v(b2 + 16, 8); F = v(b2 + 24, 16)
    vK, vV, vM, vL, t0, t1 = [v(b2 + 40 + i) for i in range(6)]
    sB, sJ, sO = s(98), s(99), s(97)
    E(I(".p2align 2", 'label')); E(label(L))
    E(nop(7)); E(nop(7))
    E([valu('v_lshrrev_b32', t0, 4, vLANE16), valu('v_and_b32', vK, 19, t0), valu('v_bfe_u32', t1, t0, 2, 1), valu('v_lshl_add_u32', vK, t1, 3, vK),
       valu('v_bfe_u32', t1, t0, 3, 1), valu('v_lshl_add_u32', vK, t1, 2, vK), valu('v_lshrrev_b32', t1, 5, t0),
       valu('v_lshlrev_b32', vV, 1, vK), valu('v_lshl_add_u32', vV, t1, 11, vV),
       valu('v_lshlrev_b32', vK, 8, vK), valu('v_lshl_add_u32', vK, t1, 4, vK)])
    E([mul(sB, sROLE, 3), add(sB, sB, hd), shr(sB, sB, 1), shl(sB, sB, 19), add(sB, sB, 1536 * 256)])
    def qk():
        for half in range(2):
            for t in range(4): E(bload('buffer_load_dwordx4', F.sub(4 * t, 4), vK, sK, sO, (4 * half + t) * 32))
            E(waitvm(0))
            for t in range(4):
                tt = 4 * half + t
                E(mfma(S, F.sub(4 * t, 4), Q.sub(4 * tt, 4), 0 if tt == 0 else S))
            E(nop(7)); E(nop(7))
    E(valu('v_mov_b32', vM, 0xff800000)); E(smov(sJ, 0))
    E(label(L + "_a"))
    E(add(sO, sB, sJ)); qk()
    for i in range(0, 16, 2): E(valu('v_max3_f32', vM, vM, S[i], S[i + 1]))
    E(add(sJ, sJ, 8192)); E(salu('s_cmp_lt_u32', None, sJ, 16 * 8192)); E(raw(f"s_cbranch_scc1 {L}_a"))
    E(valu('v_mov_b32', t0, vM)); E(valu('v_permlane32_swap_b32', vM, t0, rmw=True, extra_wr=[t0])); E(valu('v_max_f32', vM, vM, t0))
    for i in range(64): E(valu('v_mov_b32', O[i], 0))
    E(valu('v_mov_b32', vL, 0)); E(smov(sJ, 0))
    E(label(L + "_b"))
    E(add(sO, sB, sJ)); qk()
    for i in range(16): E(valu('v_sub_f32', S[i], S[i], vM))
    for i in range(16): E(valu('v_exp_f32', S[i], S[i]))
    for i in range(16): E(valu('v_add_f32', vL, vL, S[i]))
    for q in range(8): E(valu('v_cvt_pk_bf16_f32', P[q], S[2 * q], S[2 * q + 1]))
    for u in range(2):
        for tp in range(2):
            for tq in range(2):
                for j in range(8):
                    E(bload('buffer_load_ushort', F[8 * (j & 1) + 4 * tq + j // 2], vV, sV, sO, j * 256 + (2 * tp + tq) * 64))
            E(waitvm(0))
            for i in range(8): E(valu('v_lshl_or_b32', F[i], F[8 + i], 16, F[i]))
            for tq in range(2):
                D_ = O.sub(16 * (2 * tp + tq), 16)
                E(mfma(D_, F.sub(4 * tq, 4), P.sub(4 * u, 4), D_))
            E(nop(7))
        if u == 0: E(add(sO, sO, 4096))
    E(add(sJ, sJ, 8192)); E(salu('s_cmp_lt_u32', None, sJ, 16 * 8192)); E(raw(f"s_cbranch_scc1 {L}_b"))
    E(nop(7)); E(nop(7))
    E(valu('v_mov_b32', t0, vL)); E(valu('v_permlane32_swap_b32', vL, t0, rmw=True, extra_wr=[t0])); E(valu('v_add_f32', vL, vL, t0))
    E(valu('v_rcp_f32', t0, vL))
    for tau in range(4):
        A_ = O.sub(16 * tau, 16)
        for e in range(16): E(valu('v_mul_f32', A_[e], A_[e], t0))
        for q in range(8): E(valu('v_cvt_pk_bf16_f32', A_[2 * q], A_[2 * q], A_[2 * q + 1]))
        for q in range(4): E(valu('v_permlane16_swap_b32', A_[2 * q], A_[2 * q + 8], rmw=True, extra_wr=[A_[2 * q + 8]]))
        for q in range(8): E(valu('v_accvgpr_write_b32', Odst[8 * tau + q], A_[2 * q]))
    E(nop(1)); E(raw(f"s_setpc_b64 {sRET}"))
    return p

def slow_pathS(L, hd, Q, Odst, b2):
    p = Prog(); E = p.emit
    ob = 48; kv = None
    if isinstance(b2, tuple): b2, ob = b2
    if isinstance(Odst, tuple):
        OFf, kv = Odst
        class _D:
            def __getitem__(s_, i): return OFf(i // 8)[i % 8]
        Odst = _D()
    O = v(ob, 64); S = v(b2, 16); P = v(b2 + 16, 8); F = v(b2 + 24, 16)
    vK, vV, t0, t1 = [v(b2 + 40 + i) for i in range(4)]
    vM = [v(b2 + 44), v(b2 + 45)]; vL = [v(b2 + 46), v(b2 + 47)]
    sB, sJ, sO = s(98), s(99), s(97)
    E(I(".p2align 2", 'label')); E(label(L))
    E(nop(7)); E(nop(7))
    E([valu('v_lshrrev_b32', t0, 4, vLANE16), valu('v_and_b32', t1, 15, t0), valu('v_lshrrev_b32', t0, 4, t0),
       valu('v_lshlrev_b32', vK, 8, t1), valu('v_lshl_add_u32', vK, t0, 4, vK),
       valu('v_lshlrev_b32', vV, 1, t1), valu('v_lshl_add_u32', vV, t0, 10, vV)])
    if kv is not None: E(smov(sB, kv))
    else: E([mul(sB, sROLE, 3), add(sB, sB, hd), shr(sB, sB, 1), shl(sB, sB, 19), add(sB, sB, 1536 * 256)])
    def qk():
        for T in range(2):
            E(add(sO, sB, sJ)) if T == 0 else E(add(sO, sO, 4096))
            for t in range(4): E(bload('buffer_load_dwordx4', F.sub(4 * t, 4), vK, sK, sO, t * 64))
            E(waitvm(0))
            for t in range(4):
                for g_ in range(2):
                    D_ = S.sub(8 * T + 4 * g_, 4)
                    E(mfma(D_, F.sub(4 * t, 4), Q.sub(8 * t + 4 * g_, 4), 0 if t == 0 else D_))
            E(nop(7)); E(nop(3))
    def allq(x, op):
        for sw in ('v_permlane16_swap_b32', 'v_permlane32_swap_b32'):
            E(valu('v_mov_b32', t0, x)); E(valu(sw, x, t0, rmw=True, extra_wr=[t0])); E(valu(op, x, x, t0))
    for g_ in range(2): E(valu('v_mov_b32', vM[g_], 0xff800000))
    E(smov(sJ, 0))
    E(label(L + "_a"))
    qk()
    for T in range(2):
        for g_ in range(2):
            for i in (0, 2): E(valu('v_max3_f32', vM[g_], vM[g_], S[8 * T + 4 * g_ + i], S[8 * T + 4 * g_ + i + 1]))
    E(add(sJ, sJ, 8192)); E(salu('s_cmp_lt_u32', None, sJ, 16 * 8192)); E(raw(f"s_cbranch_scc1 {L}_a"))
    for g_ in range(2): allq(vM[g_], 'v_max_f32')
    for i in range(64): E(valu('v_mov_b32', O[i], 0))
    for g_ in range(2): E(valu('v_mov_b32', vL[g_], 0))
    E(smov(sJ, 0))
    E(label(L + "_b"))
    qk()
    for i in range(16): E(valu('v_sub_f32', S[i], S[i], vM[(i >> 2) & 1]))
    for i in range(16): E(valu('v_exp_f32', S[i], S[i]))
    for i in range(16): E(valu('v_add_f32', vL[(i >> 2) & 1], vL[(i >> 2) & 1], S[i]))
    for g_ in range(2):
        for T in range(2):
            for k in range(2): E(valu('v_cvt_pk_bf16_f32', P[4 * g_ + 2 * T + k], S[8 * T + 4 * g_ + 2 * k], S[8 * T + 4 * g_ + 2 * k + 1]))
    for tp in range(4):
        for jh in range(2):
            E(add(sO, sB, sJ)) if jh == 0 else E(add(sO, sO, 4096))
            for tq in range(2):
                for jl in range(4):
                    j = 4 * jh + jl
                    E(bload('buffer_load_ushort', F[8 * (j & 1) + 4 * tq + j // 2], vV, sV, sO, jl * 256 + (2 * tp + tq) * 32))
        E(waitvm(0))
        for i in range(8): E(valu('v_lshl_or_b32', F[i], F[8 + i], 16, F[i]))
        for tq in range(2):
            for g_ in range(2):
                D_ = O.sub(8 * (2 * tp + tq) + 4 * g_, 4)
                E(mfma(D_, F.sub(4 * tq, 4), P.sub(4 * g_, 4), D_))
        E(nop(7))
    E(add(sJ, sJ, 8192)); E(salu('s_cmp_lt_u32', None, sJ, 16 * 8192)); E(raw(f"s_cbranch_scc1 {L}_b"))
    E(nop(7)); E(nop(3))
    for g_ in range(2): allq(vL[g_], 'v_add_f32')
    for g_ in range(2): E(valu('v_rcp_f32', vL[g_], vL[g_]))
    for i in range(64): E(valu('v_mul_f32', O[i], O[i], vL[(i >> 2) & 1]))
    for kk in range(4):
        for g_ in range(2):
            for T in range(2):
                for c in range(2):
                    r = 8 * (2 * kk + T) + 4 * g_ + 2 * c
                    E(valu('v_cvt_pk_bf16_f32', O[r], O[r], O[r + 1])); E(valu('v_accvgpr_write_b32', Odst[8 * kk + 4 * g_ + 2 * T + c], O[r]))
    E(nop(1)); E(raw(f"s_setpc_b64 {sRET}"))
    return p

NREP = 6
ABN = 4096
BAL2 = [10, 11, 22, 13, 14, 21, 12, 17, 15, 19]; BALM = [63, 63, 63, 63, 63, 63, 16, 63, 18, 63]; BAL3 = [28, 29, 23, 30, 31, 24, 32, 33, 34, 35]
sMD2 = s(84)
def BMB(): return 21 if CFG.get('bal') == 2 else 16
def rep_addr(kind, dst, t):
    return [shl(sT2, sRB, 14), add(sT2, sT2, CTRL + 2048), add(sT3, sROLE, NS - NA), shl(sT3, sT3, 2), add(sT2, sT2, sT3),
            salu('s_cmp_eq_u32', None, sWAVE, 0), csel(sT2, sT2, OOB),
            valu('v_lshlrev_b32', dst, 3, vLANE16), valu('v_add_u32', dst, sT2, dst), valu('v_mov_b32', t, OOB),
            raw(f"v_cmp_gt_u32 vcc, {hex(NA * NREP * 16)}, {vLANE16}", 'valu', wr=['vcc'], rd=[vLANE16]), valu('v_cndmask_b32', dst, t, dst, 'vcc')]
vCR = v(31)
def add_signals(R):
    P2 = [k for k, st in enumerate(R.stages) if st.name.startswith('P2')]
    def sig(first):
        def f():
            out = [valu('v_add_u32', vPRG, 1, vPRG)]
            return out + [bstore('buffer_store_dword', vPRG, vCT, sWS, 0, flags='sc1')]
        return f
    def sig7():
        return [valu('v_add_u32', vPRG, 1, vPRG), bstore('buffer_store_dword', vPRG, vCR, sWS, 0, flags='sc1'), bstore('buffer_store_dword', vPRG, vCT, sWS, 0, flags='sc1')]
    def chain(stages, base):
        firsts = [k for k in stages if R.stages[k].sub == 0]
        for c in range(8):
            k = firsts[c + 1] + CFG.get('siglag', {}).get(R.kind, 2)
            if k > stages[-1]: break
            R.stages[k].cover_st = base + c; R.stages[k].post_bar = sig(c == 0)
            if c == 7 and CFG.get('rep') and R.kind in 'FM': R.stages[k].post_bar = sig7
        if CFG.get('rep') and R.kind in 'FM': R.pf.setdefault(firsts[1], []).append(lambda: rep_addr(R.kind, vCR, vPF))
    chain(P2, 0)
    R.stages[P2[0]].post_bar = lambda: [valu('v_mov_b32', vPRG, 0)]

LDSC = 4 * SLOT
sAB = s(72, 2); sRM = s(74, 2); sCD = s(98, 2)
sRS, sRF, sSP, sC, sI, sPB, sPART, sOK, sPAR, sXW, sPWv, sTO = s(78), s(79), s(71), s(80), s(81), s(82), s(47), s(40), s(41), s(59), s(3), s(58)
sIT = [s(42), s(44), s(45)]; sXP = [s(46), s(60), s(61)]
sRET2 = s(66, 2)
vP, vD, vA, vO, vXO, vL4, vDO, vLA, vIT, vLD, vSC = [v(16 + i) for i in range(11)]
vX4 = v(28)
def s64(op, d, *src, scc_r=False): return salu(op, d, *src, scc_r=scc_r)
sPV = s(76)
def red_setup(kind):
    o = [shl(sPB, sRB, 14), add(sPB, sPB, CTRL), salu('s_cmp_eq_u32', None, sWAVE, 0), csel(sT3, 0, OOB),
         valu('v_lshrrev_b32', vL4, 2, vLANE16), valu('v_add_u32', vL4, sT3, vL4),
         valu('v_mov_b32', vSC, OOB), add(sT2, sT3, 4 * NPART), raw(f"v_writelane_b32 {vSC}, {sT2}, 0", 'valu', wr=[vSC], rd=[sT2, vSC]),
         valu('v_mov_b32', vS1, vSC), valu('v_min_u32', vL5, NPART * 16, vLANE16), valu('v_lshrrev_b32', vL5, 2, vL5), valu('v_add_u32', vL5, sT3, vL5),
         add(sT2, sT3, 252), raw(f"v_writelane_b32 {vSC}, {sT2}, 1", 'valu', wr=[vSC], rd=[sT2, vSC]),
         shl(sT2, sRB, 4), add(sT2, sT2, sT3), valu('v_mov_b32', vDO, 256), raw(f"v_writelane_b32 {vDO}, {sT2}, 0", 'valu', wr=[vDO], rd=[sT2, vDO])]
    if kind == 'A' or (kind == 'M' and CFG.get('mpriv')): o += [shl(sPV, sROLE, 7), add(sPV, sPV, 256), add(sPV, sPV, sPB)]
    if CFG.get('abn'): o += [shl(sAV_, sROLE, 8), add(sAV_, sAV_, ABN), add(sAV_, sAV_, sPB)]
    return o
vS1, vL5 = v(29), v(30)
sAV_ = s(76 + 1); vP2 = v(31)
def ab_load(): return bload('buffer_load_dword', vP2, vL4, sWS, sAV_, flags='sc1')
def ab_eval():
    return [raw(f"v_cmp_ne_u32 vcc, 0, {vP2}", 'valu', wr=['vcc'], rd=[vP2]), nop(1), raw(f"s_mov_b32 {sAB[0]}, vcc_lo", 'salu', wr=[sAB[0]], rd=['vcc']), raw(f"s_and_b32 {sAB[1]}, vcc_hi, 15", 'salu', wr=[sAB[1]], rd=['vcc'])]
PRIV = [False]
def red_poll(shared=False):
    cnt = [valu('v_mov_b32', vD, 0), I(f"buffer_atomic_add {vD}, {vDO}, {sDBG}, 0 offen sc0 sc1", 'vload', wr=vD.regs(), rd=vD.regs() + vDO.regs() + sDBG.regs(), units=3)]
    if PRIV[0] and not shared:
        return [cnt, [bstore('buffer_store_dword', vS1, vS1, sWS, sPV, flags='sc1'), bload('buffer_load_dword', vP, vL5, sWS, sPV, flags='sc1')]]
    return [cnt, [bstore('buffer_store_dword', vSC, vSC, sWS, sPB, flags='sc1'), bload('buffer_load_dword', vP, vL4, sWS, sPB, flags='sc1')]]
vG = [v(28), v(29), v(30)]; vGA = v(31); vGP = v(27)
def l2pf_setup():
    return [valu('v_lshrrev_b32', vGP, 7, vLANE16), smov(sT2, PSTR()), valu('v_mul_lo_u32', vGA, vGP, sT2),
            valu('v_bfe_u32', vA, vLANE16, 4, 3), valu('v_lshl_add_u32', vGA, vA, 7, vGA), shl(sT2, sWAVE, 10), valu('v_add_u32', vGA, sT2, vGA),
            valu('v_lshlrev_b32', vGP, 2, vGP), valu('v_mov_b32', vA, OOB), smov(sT2, 68), raw(f"v_writelane_b32 {vA}, {sT2}, 0", 'valu', wr=[vA], rd=[vA, sT2])]
def l2pf_poll():
    st = bstore('buffer_store_dword', vA, vA, sWS, sPB, flags='sc1')
    out = [[st]]
    for i in range(3):
        ld = bload('buffer_load_dword', vG[i], vGP, sWS, sPB, 32 * i, flags='sc1'); ld.tag = 'gp'
        out.append([ld])
    return out
def l2pf_issue(R, dlt):
    out = [[add(sI, sROLE, dlt), salu('s_and_b32', sT2, sI, 3), shr(sC, sI, 2), shl(sT3, sRB, 2), add(sT2, sT2, sT3), mul(sSP, sT2, PWAVE),
            shl(sT3, sC, 12), add(sSP, sSP, sT3), valu('v_mov_b32', vO, OOB)]]
    for i in range(3):
        ld = bload('buffer_load_dword', vDUM, vG[i], sWS, sT2); ld.tag = 'pf'
        cmp_ = raw(f"v_cmp_lt_u32 vcc, {sC}, {vG[i]}", 'valu', wr=['vcc'], rd=[sC, vG[i]])
        pre = [cmp_]
        if i == 2: pre += [raw("s_and_b64 vcc, vcc, 0xff", 'salu', wr=['vcc'], rd=['vcc'])]
        out.append(pre + [add(sT2, sSP, 8 * i * PSTR()), valu('v_cndmask_b32', vG[i], vO, vGA, 'vcc'), ld])
    return out
def red_eval():
    o = [raw(f"v_cmp_ne_u32 vcc, 0, {vP}", 'valu', wr=['vcc'], rd=[vP]), nop(1),
         raw(f"s_lshr_b64 {sAB}, vcc, {NPART + 1}", 'salu', wr=[sAB], rd=['vcc']), salu('s_and_b32', sAB[1], sAB[1], 15), smov(sRS, 0), smov(sRF, 0)]
    for c in range(9):
        o += [raw(f"v_cmp_ge_u32 vcc, {c}, {vP}", 'valu', wr=['vcc'], rd=[vP]), nop(1),
              raw(f"s_and_b32 {sT2}, vcc_lo, {hex((1 << NS) - 1)}", 'salu', wr=[sT2], rd=['vcc']), csel(sRS, sRS, 4 * (c + 1)),
              raw(f"s_and_b32 {sT2}, vcc_lo, {hex((1 << NPART) - (1 << NS))}", 'salu', wr=[sT2], rd=['vcc']), csel(sRF, sRF, 4 * (c + 1))]
    return o
def red_pub(par):
    return [shl(sT2, sRF, 8), salu('s_or_b32', sT2, sT2, sRS), shl(sT3, sTO, 16), salu('s_or_b32', sT2, sT2, sT3),
            valu('v_mov_b32', vIT, sT2), valu('v_mov_b32', vLA, par), raw(f"ds_write_b32 {vLA}, {vIT}", 'other', rd=[vLA, vIT]), waitlg(0)]
def red_get(par):
    return [valu('v_mov_b32', vLA, par), raw(f"ds_read_b32 {vIT}, {vLA}", 'ds', wr=[vIT], rd=[vLA]), waitlg(0),
            valu('v_readfirstlane_b32', sT2, vIT), salu('s_and_b32', sRS, sT2, 255), salu('s_bfe_u32', sRF, sT2, (8 << 16) | 8), shr(sTO, sT2, 16)]
def red_early(p, n):
    E = p.emit
    E([smov(sRS, 0), smov(sRF, 0), smov(sOK, 0), smov(sTO, 0), smov(sPAR, LDSC + 4), nop(1)])
    E(salu('s_cmp_eq_u32', None, sWAVE, 0)); E(raw(f"s_cbranch_scc0 L_{n}_e2"))
    E(waitvm(p.vm_wait_for(lambda t: t == 'poll')))
    E(valu('v_readfirstlane_b32', sOK, vD))
    E(salu('s_cmp_ge_u32', None, sOK, 16)); E(raw(f"s_cbranch_scc0 L_{n}_e1"))
    E(red_eval())
    E(label(f"L_{n}_e1"))
    E(red_pub(LDSC))
    E(label(f"L_{n}_e2"))

def ld_part(L, ks, flags):
    out = []
    for k in ks:
        out.append([add(sT2, sPART, k * PSTR()), bload('buffer_load_dwordx4', v(L + 4 * k, 4), vLD, sWS, sT2, flags=flags)])
    return out
def ld_x(L, sXO_):
    if CFG.get('nox'): return [[valu('v_mov_b32', vA, OOB), bload('buffer_load_dwordx2', v(L + 4 * NPART, 2), vA, sX, sXO_)], [bload('buffer_load_dwordx2', v(L + 4 * NPART + 2, 2), vA, sX, sXO_, 32)]]
    return [[bload('buffer_load_dwordx2', v(L + 4 * NPART, 2), vXO, sX, sXO_)], [bload('buffer_load_dwordx2', v(L + 4 * NPART + 2, 2), vXO, sX, sXO_, 32)]]
RB_ = 48
sD0, sD1 = s(68), s(69)
def proc_sum(E, L, ks, after, loads):
    SA, FA, T = RB_, RB_ + 8, RB_ + 16
    issued = 0; ks = list(ks)
    E(smov(sT3, 0xffff0000))
    for j, k in enumerate(ks):
        if loads: E(loads.pop(0)); issued += 1
        E(waitvm(len(ks) - 1 - j + after + issued))
        acc = SA if k < NS else FA
        for q in range(4):
            x = v(L + 4 * k + q)
            if k in (0, NS):
                E(valu('v_lshlrev_b32', v(acc + 2 * q), 16, x)); E(valu('v_and_b32', v(acc + 2 * q + 1), sT3, x))
            else:
                E(valu('v_dot2c_f32_bf16', v(acc + 2 * q), sD0, x, rmw=True)); E(valu('v_dot2c_f32_bf16', v(acc + 2 * q + 1), sD1, x, rmw=True))
    return issued
def proc_fin(E, L, sXO_, xwait, loads):
    SA, FA, T = RB_, RB_ + 8, RB_ + 16; XR = L + 4 * NPART; issued = 0
    for e in range(8): E(valu('v_exp_f32', v(T + e), v(FA + e)))
    for e in range(8): E(valu('v_add_f32', v(T + e), 1.0, v(T + e)))
    while len(loads) > 1: E(loads.pop(0)); issued += 1
    for e in range(8): E(valu('v_rcp_f32', v(T + e), v(T + e)))
    for e in range(8): E(valu('v_mul_f32', v(FA + e), f2u(-math.log(2.0)), v(FA + e)))
    for e in range(8): E(valu('v_mul_f32', v(FA + e), v(FA + e), v(T + e)))
    while loads: E(loads.pop(0)); issued += 1
    if xwait is not None: E(waitvm(xwait + issued))
    for q in range(4):
        E(valu('v_lshlrev_b32', v(T + 2 * q), 16, v(XR + q))); E(valu('v_and_b32', v(T + 2 * q + 1), sT3, v(XR + q)))
    for e in range(8): E(valu('v_fma_f32', v(T + e), v(SA + e), v(FA + e), v(T + e)))
    for q in range(4): E(valu('v_cvt_pk_bf16_f32', v(XR + q), v(T + 2 * q), v(T + 2 * q + 1)))
    if CFG.get('out4', True):
        def dpp(d, src, bank): return I(f"v_mov_b32_dpp {d}, {src} row_ror:8 row_mask:0xf bank_mask:{bank}", 'perm', wr=d.regs(), rd=src.regs() + d.regs())
        for i in range(2): E(valu('v_permlane16_swap_b32', v(XR + i), v(XR + 2 + i), rmw=True, extra_wr=[v(XR + 2 + i)]))
        for i in range(2): E(valu('v_mov_b32', v(T + i), v(XR + i)))
        for i in range(2): E(dpp(v(XR + i), v(XR + 2 + i), '0xc'))
        for i in range(2): E(dpp(v(XR + 2 + i), v(T + i), '0x3'))
        E(bstore('buffer_store_dwordx4', v(XR, 4), vX4, sOUT, sXO_, flags=CFG.get('oflags', 'sc1')))
        E(valu('v_mov_b32', vO, OOB)); E(bstore('buffer_store_dword', vO, vO, sOUT, 0))
        return
    E(bstore('buffer_store_dwordx2', v(XR, 2), vXO, sOUT, sXO_)); E(bstore('buffer_store_dwordx2', v(XR + 2, 2), vXO, sOUT, sXO_, 32))
def proc_all(E, L, sXO_, pre, loads):
    loads = list(loads)
    n = proc_sum(E, L, range(NPART), 2 + pre, loads)
    proc_fin(E, L, sXO_, pre + n, loads)

def acc_part(E, L, k):
    acc = RB_ if k < NS else RB_ + 8
    for q in range(4):
        x = v(L + 4 * k + q)
        if k in (0, NS):
            E(valu('v_lshlrev_b32', v(acc + 2 * q), 16, x)); E(valu('v_and_b32', v(acc + 2 * q + 1), sT3, x))
        else:
            E(valu('v_dot2c_f32_bf16', v(acc + 2 * q), sD0, x, rmw=True)); E(valu('v_dot2c_f32_bf16', v(acc + 2 * q + 1), sD1, x, rmw=True))
def stream(E, segs, hooks=None):
    W = CFG.get('rwin', 8); FL = CFG.get('fflags', 'sc1')
    seq = []
    for (L, sP, sX_, ks, wx, fin) in segs:
        if wx:
            for it in ld_x(L, sX_): seq.append((it, None))
        ks = list(ks)
        for j, k in enumerate(ks):
            it = [add(sT2, sP, k * PSTR()), bload('buffer_load_dwordx4', v(L + 4 * k, 4), vLD, sWS, sT2, flags=FL)]
            last = fin and j == len(ks) - 1
            seq.append((it, (lambda L=L, k=k, last=last, sX_=sX_: (acc_part(E, L, k), proc_fin(E, L, sX_, None, []) if last else None, last)[2])))
    E(smov(sT3, 0xffff0000))
    n = len(seq); issued = 0
    extra_at = []
    for c in range(n):
        while issued < min(n, c + W): E(seq[issued][0]); issued += 1
        if hooks and c in hooks:
            for _ in range(hooks[c](issued + sum(1 for e in extra_at))): extra_at.append(issued)
            E(smov(sT3, 0xffff0000))
        if seq[c][1] is None: continue
        E(waitvm(issued - 1 - c + sum(1 for e in extra_at if e > c)))
        if seq[c][1]():
            extra_at += [issued, issued]

def body_items(E, n, its, two, ni, ensure, refresh, done, ST, seg, final_flag, poll_hook, LATE, L0, L1, FOUR, sMID, offs, sPT):
    if n == 'M' and CFG.get('m3'):
        ensure(its[2], 1, 1); ST(its[0])
        stream(E, [seg(0, L0), seg(1, L1), seg(2, L0)], {4: (lambda _: (E(ab_load()), 1)[1])})
        for i in range(3): done(its[i])
        return
    E(salu('s_min_u32', sT2, sRS, sRF)); E(salu('s_cmp_lt_u32', None, its[two - 1], sT2)); E(raw(f"s_cbranch_scc0 L_{n}_sl"))
    ST(its[0])
    AB = CFG.get('abn')
    def ab_hook(_): E(ab_load()); return 1
    hooks = {(NPART + 2) * two - CFG.get('pollat', 8): poll_hook}
    if AB:
        if ni < 3: hooks = {}
        hooks[14 if LATE else 4] = ab_hook
    if LATE: hooks[CFG.get('flagat', 3) if n == 'A' else 0] = final_flag
    stream(E, [seg(0, L0), seg(1, L1)][:two], hooks)
    ST(51)
    E(raw(f"s_branch L_{n}_j"))
    E(label(f"L_{n}_sl"))
    if LATE and two == 2 and CFG.get('mid1', 1):
        E(salu('s_min_u32', sT2, sRS, sRF)); E(salu('s_cmp_lt_u32', None, its[0], sT2)); E(raw(f"s_cbranch_scc0 L_{n}_s0"))
        ST(52)
        stream(E, [seg(0, L0)], {CFG.get('flagat', 3): final_flag, 12: poll_hook}); done(its[0])
        refresh(2); ensure(its[1], 1, 1)
        stream(E, [seg(1, L1)], {11: poll_hook, 3: ab_hook} if AB else {11: poll_hook})
        E(raw(f"s_branch L_{n}_j"))
        E(label(f"L_{n}_s0"))
    if LATE: final_flag(0)
    for i in range(two):
        ensure(its[i], 1, 1)
        hk = {11: poll_hook} if (i == two - 1 and not (AB and ni < 3)) else {}
        if AB and i == two - 1: hk[4] = ab_hook
        stream(E, [seg(i, L0)], hk); done(its[i])
    E(label(f"L_{n}_j"))
    for i in range(two): done(its[i])
    if FOUR or ((CFG.get('asg') == 3 or CFG.get('bal')) and n == 'A'):
        E(salu('s_cmp_gt_u32', None, sMID, 35)); E(raw(f"s_cbranch_scc1 L_{n}_nm"))
        refresh(2)
        ensure(sMID, 1, 1); ST(sMID)
        E(offs(sMID, sXP[0]))
        stream(E, [seg(0, L1)], {13: poll_hook}); done(sMID)
        E(label(f"L_{n}_nm"))
    def warm():
        if not CFG.get('warm', 1): return
        E(valu('v_mov_b32', v(240), vLD)); E(valu('v_mov_b32', v(241), vX4)); E(valu('v_mov_b32', vLD, OOB)); E(valu('v_mov_b32', vX4, OOB))
        E(raw(f"s_call_b64 {sRET2}, L_{n}_ft"))
        E(valu('v_mov_b32', vLD, v(240))); E(valu('v_mov_b32', vX4, v(241)))
    if ni == 3:
        if CFG.get('asg') == 3:
            E(salu('s_cmp_lt_u32', None, its[2], 36)); E(raw(f"s_cbranch_scc1 L_{n}_h3"))
            E(red_poll(True)[1]); E(waitvm(0)); E(raw(f"s_branch L_{n}_fin")); E(label(f"L_{n}_h3"))
        refresh(2, AB and CFG.get('abx', 1))
        if CFG.get('nof'):
            E(salu('s_cmp_gt_u32', None, sMD2, 35)); E(raw(f"s_cbranch_scc1 L_{n}_k1"))
            ensure(sMD2, 1, 1); E(offs(sMD2, sXP[0])); ST(sMD2)
            E(salu('s_cmp_lt_u32', None, its[2], sRS)); E(raw(f"s_cbranch_scc0 L_{n}_k0"))
            E(salu('s_cmp_lt_u32', None, its[2], sRF)); E(raw(f"s_cbranch_scc1 L_{n}_k0"))
            warm()
            stream(E, [seg(0, L1), seg(2, L0, range(NS), True, False)], {20: poll_hook.sh}); done(sMD2)
            E(raw(f"s_branch L_{n}_k2"))
            E(label(f"L_{n}_k0"))
            stream(E, [seg(0, L1)], {11: poll_hook}); done(sMD2)
            refresh(2)
            E(label(f"L_{n}_k1"))
        if CFG.get('pw') == 2 and n == 'A':
            E(salu('s_cmp_eq_u32', None, sMD2, 0)); E(raw(f"s_cbranch_scc0 L_{n}_old"))
            vQ, vZ = v(242), v(243); FM_ = (1 << NPART) - (1 << NS); SM_ = (1 << NS) - 1
            E(valu('v_min_u32', vQ, NPART * 16, vLANE16)); E(valu('v_lshrrev_b32', vQ, 2, vQ))
            E(valu('v_mov_b32', vZ, OOB)); E(smov(sT2, 4 * NPART)); E(raw(f"v_writelane_b32 {vZ}, {sT2}, 0", 'valu', wr=[vZ], rd=[sT2, vZ]))
            E(shr(sC, its[2], 2))
            def drop(): return bstore('buffer_store_dword', vZ, vZ, sWS, sPV, flags='sc1')
            def test(mask):
                E(raw(f"v_cmp_ge_u32 vcc, {sC}, {vP}", 'valu', wr=['vcc'], rd=[vP, sC])); E(nop(1))
                E(raw(f"s_and_b32 {sI}, vcc_lo, {hex(FM_)}", 'salu', wr=[sI], rd=['vcc']))
                E(raw(f"s_and_b32 {sT2}, vcc_lo, {hex(mask)}", 'salu', wr=[sT2], rd=['vcc']))
            def waitpw(tag, mask):
                L = f"L_{n}_{tag}"
                E(smov(sSP, 0))
                E(label(L + "0"))
                E(bload('buffer_load_dword', vP, vQ, sWS, sPV, flags='sc1'))
                E(salu('s_and_b32', sT2, sSP, 4 * CFG.get('pwk', 1) - 1)); E(mul(sT3, sWAVE, CFG.get('pwk', 1))); E(salu('s_cmp_eq_u32', None, sT2, sT3)); E(raw(f"s_cbranch_scc0 {L}1"))
                E(drop()); E(waitvm(1)); E(raw(f"s_branch {L}2"))
                E(label(L + "1")); E(waitvm(0))
                E(label(L + "2"))
                test(mask); E(raw(f"s_cbranch_scc0 {L}3"))
                E(add(sSP, sSP, 1)); E(salu('s_cmp_gt_u32', None, sSP, 4 * CFG.get('spin', 4000))); E(raw(f"s_cbranch_scc1 {L}4"))
                E(raw(f"s_sleep {CFG.get('pwsleep', 2)}")); E(raw(f"s_branch {L}0"))
                E(label(L + "4"))
                E(valu('v_lshlrev_b32', vO, 4, vLANE16)); E(valu('v_mov_b32', vIT, OOB)); E(valu('v_mov_b32', vA, 1))
                E(raw(f"v_cmp_gt_u32 vcc, 0x100, {vLANE16}", 'valu', wr=['vcc'], rd=[vLANE16])); E(valu('v_cndmask_b32', vO, vIT, vO, 'vcc'))
                E(raw(f"s_lshl2_add_u32 {sT2}, {its[2]}, {sPB}", 'salu', wr=[sT2], rd=[its[2], sPB])); E(add(sT2, sT2, ABN))
                E(bstore('buffer_store_dword', vA, vO, sWS, sT2, flags='sc1')); E(waitvm(0))
                E(drop()); E(waitvm(0))
                E(bload('buffer_load_dword', vP, vQ, sWS, sPV, flags='sc1')); E(waitvm(0))
                test(SM_ | FM_); E(raw(f"s_cbranch_scc1 L_{n}_exit"))
                E(label(L + "3"))
            E(salu('s_min_u32', sT2, sRS, sRF)); E(salu('s_cmp_lt_u32', None, its[2], sT2)); E(raw(f"s_cbranch_scc1 L_{n}_f3"))
            E(salu('s_cmp_lt_u32', None, its[2], sRS)); E(raw(f"s_cbranch_scc1 L_{n}_ps"))
            waitpw('ws', SM_)
            E(salu('s_cmp_eq_u32', None, sI, 0)); E(raw(f"s_cbranch_scc1 L_{n}_f3"))
            E(label(f"L_{n}_ps")); ST(its[2])
            warm()
            stream(E, [seg(2, L0, range(NS), True, False)], {5: (lambda _: (E(drop()), 1)[1])})
            waitpw('wf', FM_); ST(50)
            E(raw(f"s_call_b64 {sRET2}, L_{n}_ft")); E(raw(f"s_branch L_{n}_exit"))
            E(label(f"L_{n}_ft"))
            stream(E, [seg(2, L0, range(NS, NPART), False, True)])
            E(raw(f"s_setpc_b64 {sRET2}"))
            E(label(f"L_{n}_old"))
            ensure(its[2], 1, 1)
            E(label(f"L_{n}_f3"))
            stream(E, [seg(2, L0)])
            done(its[2])
            E(salu('s_cmp_eq_u32', None, sMD2, 0)); E(raw(f"s_cbranch_scc1 L_{n}_exit")); E(raw(f"s_branch L_{n}_fb"))
            return
        ensure(its[2], 1, 0); ST(its[2])
        E(salu('s_cmp_lt_u32', None, its[2], sRF)); E(raw(f"s_cbranch_scc1 L_{n}_f3"))
        if CFG.get('rep') and n == 'A':
            warm()
            stream(E, [seg(2, L0, range(NS), True, False)], {4: poll_hook.sh})
            E(label(f"L_{n}_k2"))
            E(salu('s_cmp_eq_u32', None, sWAVE, 0)); E(raw(f"s_cbranch_scc0 L_{n}_w2"))
            E(waitvm(0))
            E(raw(f"v_cmp_ne_u32 vcc, 0, {vP}", 'valu', wr=['vcc'], rd=[vP])); E(nop(1))
            E(raw(f"s_lshr_b64 {sAB}, vcc, {NPART + 1}", 'salu', wr=[sAB], rd=['vcc'])); E(salu('s_and_b32', sAB[1], sAB[1], 15))
            E(salu('s_or_b32', sT2, sAB[0], sAB[1])); E(csel(sRS, 1, 0))
            E(shr(sC, its[2], 2)); E(mul(sI, sROLE, NREP * 128)); E(add(sI, sI, sPB)); E(add(sI, sI, 2048)); E(add(sSP, sI, NREP * 128))
            E(label(f"L_{n}_w0"))
            E(bload('buffer_load_dword', vP, vL5, sWS, sI, flags='sc1')); E(waitvm(0))
            E(raw(f"v_cmp_ge_u32 vcc, {sC}, {vP}", 'valu', wr=['vcc'], rd=[vP, sC])); E(nop(1))
            E(raw(f"s_and_b32 {sT2}, vcc_lo, {hex((1 << NPART) - (1 << NS))}", 'salu', wr=[sT2], rd=['vcc'])); E(csel(sRF, 0, 36))
            E(raw(f"s_cbranch_scc0 L_{n}_w1"))
            E(add(sI, sI, 128)); E(salu('s_cmp_lt_u32', None, sI, sSP)); E(raw(f"s_cbranch_scc0 L_{n}_w1"))
            E(raw(f"s_sleep {CFG.get('rsleep', 6)}")); E(raw(f"s_branch L_{n}_w0"))
            E(label(f"L_{n}_w1")); E(red_pub(sPAR))
            E(label(f"L_{n}_w2")); E(barrier()); E(red_get(sPAR)); E(salu('s_xor_b32', sPAR, sPAR, 12))
            E(smov(sMID, sRS))
            ensure(its[2], 0, 1); ST(50)
            E(raw(f"s_call_b64 {sRET2}, L_{n}_ft")); done(its[2])
            E(salu('s_cmp_eq_u32', None, sMID, 0)); E(raw(f"s_cbranch_scc1 L_{n}_exit")); E(raw(f"s_branch L_{n}_fb"))
            E(label(f"L_{n}_ft"))
            stream(E, [seg(2, L0, range(NS, NPART), False, True)])
            E(raw(f"s_setpc_b64 {sRET2}"))
        elif CFG.get('pw') and n == 'A':
            E(salu('s_cmp_eq_u32', None, sMD2, 0)); E(raw(f"s_cbranch_scc0 L_{n}_old"))
            warm()
            vQ, vZ = v(242), v(243)
            E(valu('v_min_u32', vQ, NPART * 16, vLANE16)); E(valu('v_lshrrev_b32', vQ, 2, vQ))
            E(valu('v_mov_b32', vZ, OOB)); E(smov(sT2, 4 * NPART)); E(raw(f"v_writelane_b32 {vZ}, {sT2}, 0", 'valu', wr=[vZ], rd=[sT2, vZ]))
            def drop_hook(_): E(bstore('buffer_store_dword', vZ, vZ, sWS, sPV, flags='sc1')); return 1
            stream(E, [seg(2, L0, range(NS), True, False)], {5: drop_hook})
            E(shr(sC, its[2], 2)); E(smov(sSP, 0))
            E(label(f"L_{n}_pw0"))
            E(bload('buffer_load_dword', vP, vQ, sWS, sPV, flags='sc1'))
            E(salu('s_and_b32', sT2, sSP, 3)); E(salu('s_cmp_eq_u32', None, sT2, sWAVE)); E(raw(f"s_cbranch_scc0 L_{n}_pw1"))
            E(bstore('buffer_store_dword', vZ, vZ, sWS, sPV, flags='sc1')); E(waitvm(1)); E(raw(f"s_branch L_{n}_pw2"))
            E(label(f"L_{n}_pw1")); E(waitvm(0))
            E(label(f"L_{n}_pw2"))
            E(raw(f"v_cmp_ge_u32 vcc, {sC}, {vP}", 'valu', wr=['vcc'], rd=[vP, sC])); E(nop(1))
            E(raw(f"s_and_b32 {sT2}, vcc_lo, {hex((1 << NPART) - (1 << NS))}", 'salu', wr=[sT2], rd=['vcc'])); E(raw(f"s_cbranch_scc0 L_{n}_pw3"))
            E(add(sSP, sSP, 1)); E(salu('s_cmp_gt_u32', None, sSP, 4 * CFG.get('spin', 4000))); E(raw(f"s_cbranch_scc1 L_{n}_pw4"))
            E(raw(f"s_sleep {CFG.get('pwsleep', 2)}")); E(raw(f"s_branch L_{n}_pw0"))
            E(label(f"L_{n}_pw4"))
            E(valu('v_lshlrev_b32', vO, 4, vLANE16)); E(valu('v_mov_b32', vIT, OOB)); E(valu('v_mov_b32', vA, 1))
            E(raw(f"v_cmp_gt_u32 vcc, 0x100, {vLANE16}", 'valu', wr=['vcc'], rd=[vLANE16])); E(valu('v_cndmask_b32', vO, vIT, vO, 'vcc'))
            E(raw(f"s_lshl2_add_u32 {sT2}, {its[2]}, {sPB}", 'salu', wr=[sT2], rd=[its[2], sPB])); E(add(sT2, sT2, ABN))
            E(bstore('buffer_store_dword', vA, vO, sWS, sT2, flags='sc1')); E(waitvm(0))
            E(bstore('buffer_store_dword', vZ, vZ, sWS, sPV, flags='sc1')); E(waitvm(0))
            E(bload('buffer_load_dword', vP, vQ, sWS, sPV, flags='sc1')); E(waitvm(0))
            E(raw(f"v_cmp_ge_u32 vcc, {sC}, {vP}", 'valu', wr=['vcc'], rd=[vP, sC])); E(nop(1))
            E(raw(f"s_and_b32 {sT2}, vcc_lo, {hex((1 << NPART) - (1 << NS))}", 'salu', wr=[sT2], rd=['vcc'])); E(raw(f"s_cbranch_scc1 L_{n}_exit"))
            E(label(f"L_{n}_pw3")); ST(50)
            E(raw(f"s_call_b64 {sRET2}, L_{n}_ft")); E(raw(f"s_branch L_{n}_exit"))
            E(label(f"L_{n}_ft"))
            stream(E, [seg(2, L0, range(NS, NPART), False, True)])
            E(raw(f"s_setpc_b64 {sRET2}"))
            E(label(f"L_{n}_old"))
            stream(E, [seg(2, L0, range(NS), True, False)])
            ensure(its[2], 0, 1)
            E(raw(f"s_call_b64 {sRET2}, L_{n}_ft")); E(raw(f"s_branch L_{n}_f4"))
        else:
            stream(E, [seg(2, L0, range(NS), True, False)], {6: poll_hook})
            refresh(0)
            ensure(its[2], 0, 1); ST(50)
            stream(E, [seg(2, L0, range(NS, NPART), False, True)], {0: poll_hook.sh} if not AB else None)
            E(raw(f"s_branch L_{n}_f4"))
        E(label(f"L_{n}_f3"))
        stream(E, [seg(2, L0)], {11: poll_hook.sh} if not AB else None)
        E(label(f"L_{n}_f4"))
        done(its[2])
        if AB and CFG.get('abx', 1):
            E(salu('s_cmp_eq_u32', None, sMD2, 0)); E(raw(f"s_cbranch_scc1 L_{n}_exit")); E(raw(f"s_branch L_{n}_fb"))


def reducer(kind):
    p = Prog(); E = p.emit; n = kind; FL = CFG.get('fflags', 'sc1')
    PRIV[0] = (kind == 'A' or (kind == 'M' and bool(CFG.get('mpriv'))))
    def ST(code):
        if CFG['stamps'] != 2: return
        E(raw(f"s_memtime {sSTAMP}", wr=[sSTAMP])); E(raw("s_waitcnt lgkmcnt(0)")); E(salu('s_sub_u32', s(98), s(98), s(100)))
        E(shl(s(98), s(98), 6)); E(salu('s_or_b32', s(98), s(98), code))
        E(add(s(97), s(97), 16)); E(salu('s_min_u32', s(97), s(97), 11 * 16))
        E(raw(f"v_cmp_eq_u32 vcc, s97, {vLANE16}", 'valu', wr=['vcc'], rd=[s(97), vLANE16])); E(valu('v_mov_b32', v(27), s(98)))
        E(valu('v_cndmask_b32', vSTAMP, vSTAMP, v(27), 'vcc'))
    def offs(item, sX_):
        return [salu('s_and_b32', sT2, item, 3), shr(sC, item, 2), shl(sT3, sRB, 2), add(sT2, sT2, sT3), mul(sPART, sT2, PWAVE), add(sX_, sPART, sXW),
                shl(sT3, sC, 12), add(sT3, sT3, sPWv), add(sPART, sPART, sT3), shl(sT3, sC, 7), add(sX_, sX_, sT3)]
    k_ = [0]
    def ensure(item, s_, f_):
        L = f"L_{n}_en{k_[0]}"; k_[0] += 1
        if s_ and f_: E(salu('s_min_u32', sT2, sRS, sRF)); r = sT2
        else: r = sRS if s_ else sRF
        E(salu('s_cmp_lt_u32', None, item, r)); E(raw(f"s_cbranch_scc1 {L}"))
        E(smov(sI, item)); E(smov(sC, (1 if s_ else 0) | (2 if f_ else 0)))
        E(raw(f"s_call_b64 {sRET2}, L_{n}_sync"))
        E(salu('s_cmp_eq_u32', None, sTO, 0)); E(raw(f"s_cbranch_scc0 L_{n}_fb"))
        E(label(L))
    def done(item): E(raw(f"s_bitset0_b64 {sRM}, {item}", 'salu', wr=[sRM], rd=[sRM, item]))
    E(label(f"L_{n}_red"))
    if CFG.get('rdelay'):
        if n == 'A': (E(waitvm(0)), E(barrier()), E(valu('v_mov_b32', vPRG, 9)), E(bstore('buffer_store_dword', vPRG, vCT, sWS, 0, flags='sc1')))
        for _ in range({'A': 30, 'M': 24, 'F': 14}[n]): E(raw("s_sleep 16"))
    E(red_get(LDSC))
    if CFG.get('rdelay'): E(smov(sRS, 36)); E(smov(sRF, 36))
    E(valu('v_lshrrev_b32', vO, 4, vLANE16)); E(valu('v_and_b32', vXO, 7, vO)); E(valu('v_lshlrev_b32', vLD, 4, vXO))
    E(smov(sT2, 1152)); E(valu('v_mul_u32_u24', vXO, sT2, vXO))
    E(valu('v_lshrrev_b32', vA, 3, vO)); E(valu('v_lshl_add_u32', vX4, vA, 4, vXO))
    E(valu('v_bfe_u32', vA, vO, 3, 2)); E(valu('v_lshl_add_u32', vXO, vA, 3, vXO)); E(valu('v_lshl_add_u32', vLD, vA, 8, vLD))
    E(valu('v_lshrrev_b32', vA, 5, vO)); E(valu('v_lshl_add_u32', vXO, vA, 6, vXO)); E(valu('v_lshl_add_u32', vLD, vA, 11, vLD))
    E(mul(sXW, sWAVE, 8 * 1152)); E(shr(sPWv, sWAVE, 1)); E(shl(sPWv, sPWv, 10)); E(salu('s_and_b32', sT2, sWAVE, 1)); E(shl(sT2, sT2, 7)); E(add(sPWv, sPWv, sT2))
    L0, L1 = 72, 76 + 4 * NPART
    E(smov(sD0, 0x3f80)); E(smov(sD1, 0x3f800000))
    E(raw(f"s_mov_b64 {sRM}, 0", 'salu', wr=[sRM]))
    FOUR = CFG.get('four')
    sMID = s(48 + 0) if False else s(83)
    def nib(dst, tab, base):
        E(smov(sCD[0], sum(tab[i] << (4 * i) for i in range(8)))); E(smov(sCD[1], tab[8] | (tab[9] << 4)))
        E(shl(sT2, sROLE, 2)); E(s64('s_lshr_b64', sCD, sCD, sT2)); E(salu('s_and_b32', dst, sCD[0], 15))
        E(salu('s_cmp_eq_u32', None, dst, 15)); E(csel(dst, 63 - base, dst)); E(add(dst, dst, base))
    if n == 'A':
        E(smov(sIT[0], sROLE)); E(add(sIT[1], sROLE, NA))
        if CFG.get('bal'):
            nib(sIT[1], [x - 10 for x in BAL2], 10); nib(sIT[2], [x - 21 for x in BAL3], 21); nib(sMID, [min(x - BMB(), 15) for x in BALM], BMB())
            E(raw(f"s_bitset1_b64 {sRM}, {sMID}", 'salu', wr=[sRM], rd=[sRM, sMID]))
        elif CFG.get('asg') == 2: E(add(sIT[2], sROLE, 16))
        elif CFG.get('asg') == 3:
            E(add(sMID, sROLE, 16)); E(raw(f"s_bitset1_b64 {sRM}, {sMID}", 'salu', wr=[sRM], rd=[sRM, sMID]))
            E(salu('s_and_b32', sT2, sROLE, 1)); E(shr(sIT[2], sROLE, 1)); E(add(sIT[2], sIT[2], 24)); E(salu('s_cmp_eq_u32', None, sT2, 0)); E(csel(sIT[2], sIT[2], 63))
        elif CFG.get('l844'): E(add(sIT[2], sROLE, 28))
        elif FOUR:
            nib(sMID, [0, 15, 1, 2, 15, 3, 4, 5, 6, 7], 20); nib(sIT[2], [0, 1, 15, 2, 3, 15, 4, 5, 6, 7], 28)
            E(raw(f"s_bitset1_b64 {sRM}, {sMID}", 'salu', wr=[sRM], rd=[sRM, sMID]))
        else:
            nib(sIT[2], [0, 1, 15, 2, 3, 15, 4, 5, 6, 7], 28)
            E(salu('s_cmp_eq_u32', None, sROLE, 2)); E(csel(sIT[2], 23 if CFG.get('m3') else 22, sIT[2])); E(salu('s_cmp_eq_u32', None, sROLE, 5)); E(csel(sIT[2], 24 if CFG.get('m3') else 21, sIT[2]))
            if CFG.get('nof'):
                nib(sMD2, CFG['nof'], 23)
                E(raw(f"s_bitset1_b64 {sRM}, {sMD2}", 'salu', wr=[sRM], rd=[sRM, sMD2]))
        its = sIT
    elif CFG.get('asg') == 2:
        if n == 'M': E(add(sIT[0], sROLE, 16)); E(add(sIT[1], sROLE, 20)); its = sIT[:2]
        else: E(add(sIT[0], sROLE, 20)); its = sIT[:1]
    elif CFG.get('asg') == 3:
        E(add(sIT[0], sROLE, 20)); its = sIT[:1]
    elif CFG.get('l844'):
        if n == 'M': E(add(sIT[0], sROLE, 8)); E(add(sIT[1], sROLE, 12)); its = sIT[:2]
        else: E(add(sIT[0], sROLE, 12)); its = sIT[:1]
    elif n == 'M' and CFG.get('m3'): E(smov(sIT[0], 20)); E(smov(sIT[1], 21)); E(smov(sIT[2], 22)); its = sIT
    elif n == 'M': E(smov(sIT[0], 20)); its = sIT[:1]
    else:
        E(add(sIT[0], sROLE, 12)); its = sIT[:1]
    if (FOUR and n != 'A') or (CFG.get('nof') and n == 'F'):
        its = []
        E(waitvm(0)); E(red_poll()[1]); E(waitvm(0)); E(raw(f"s_branch L_{n}_fin"))
    if (CFG.get('bal') or CFG.get('m3')) and n == 'F':
        E(salu('s_cmp_ge_u32', None, sROLE, 13 if CFG.get('bal') != 2 else 16)); E(raw(f"s_cbranch_scc1 L_{n}_hi"))
        E(waitvm(0)); E(ab_load() if CFG.get('abn') else red_poll()[1]); E(waitvm(0)); E(raw(f"s_branch L_{n}_fin")); E(label(f"L_{n}_hi"))
    for it in its: E(raw(f"s_bitset1_b64 {sRM}, {it}", 'salu', wr=[sRM], rd=[sRM, it]))
    E(salu('s_and_b32', sRM[1], sRM[1], 15))
    def refresh(wait, ab=False):
        L = f"L_{n}_rf{k_[0]}"; k_[0] += 1
        E(salu('s_cmp_eq_u32', None, sWAVE, 0)); E(raw(f"s_cbranch_scc0 {L}"))
        E(waitvm(wait)); E(red_eval())
        if ab: E(ab_eval()); E(salu('s_or_b32', sT2, sAB[0], sAB[1])); E(csel(sTO, 1, 0))
        E(red_pub(sPAR))
        E(label(L)); E(barrier()); E(red_get(sPAR)); E(salu('s_xor_b32', sPAR, sPAR, 12))
        if ab: E(smov(sMD2, sTO)); E(smov(sTO, 0))
    ALLD = lambda L, sx: ld_part(L, range(NPART), FL) + ld_x(L, sx)
    LATE = n in CFG.get('lateflag', 'A') + CFG.get('pre', '')
    sPT = [s(47), s(67 - 2), s(70)]
    def offs2(i): return offs(its[i], sXP[i]) + ([smov(sPT[i], sPART)] if i else [])
    def final_flag(wait):
        E(waitvm(wait)); E(barrier())
        E(valu('v_mov_b32', vPRG, 9))
        if CFG.get('rep') and n in 'FM': E(bstore('buffer_store_dword', vPRG, vCR, sWS, 0, flags='sc1'))
        E(bstore('buffer_store_dword', vPRG, vCT, sWS, 0, flags='sc1'))
        return 2 if (CFG.get('rep') and n in 'FM') else 1
    def poll_hook(_): E(red_poll()[1]); return 2
    def poll_sh(_): E(red_poll(True)[1]); return 2
    poll_hook.sh = poll_sh
    seg = lambda i, L, ks=range(NPART), wx=True, fin=True: (L, sPT[i], sXP[i], ks, wx, fin)
    ni = len(its)
    for i in reversed(range(ni)): E(offs2(i))
    two = min(ni, 2)
    if ni: body_items(E, n, its, two, ni, ensure, refresh, done, ST, seg, final_flag, poll_hook, LATE, L0, L1, FOUR, sMID, offs, sPT)
    E(label(f"L_{n}_fin"))
    E(salu('s_cmp_eq_u32', None, sWAVE, 0)); E(raw(f"s_cbranch_scc0 L_{n}_b4"))
    if CFG.get('abn'): E(ab_eval())
    else:
        E(waitvm(2))
        E(raw(f"v_cmp_ne_u32 vcc, 0, {vP}", 'valu', wr=['vcc'], rd=[vP])); E(nop(1))
        E(raw(f"s_lshr_b64 {sAB}, vcc, {NPART + 1}", 'salu', wr=[sAB], rd=['vcc'])); E(salu('s_and_b32', sAB[1], sAB[1], 15))
    E(salu('s_or_b32', sT2, sAB[0], sAB[1])); E(csel(sTO, 1, 0))
    E(salu('s_cmp_ge_u32', None, sOK, 16)); E(csel(sTO, sTO, 1)); E(red_pub(sPAR))
    E(label(f"L_{n}_b4")); E(barrier()); E(red_get(sPAR)); E(salu('s_xor_b32', sPAR, sPAR, 12))
    E(salu('s_cmp_eq_u32', None, sTO, 0)); E(raw(f"s_cbranch_scc1 L_{n}_exit"))
    E(label(f"L_{n}_fb"))
    E(waitvm(0))
    E(salu('s_cmp_eq_u32', None, sWAVE, 0)); E(raw(f"s_cbranch_scc0 L_{n}_fb2"))
    if CFG.get('abn'):
        E(raw(f"s_mov_b64 {sCD}, {sRM}", 'salu', wr=[sCD], rd=[sRM])); E(valu('v_mov_b32', vA, 1))
        E(valu('v_lshlrev_b32', vO, 4, vLANE16)); E(valu('v_mov_b32', vIT, OOB))
        E(raw(f"v_cmp_gt_u32 vcc, 0x100, {vLANE16}", 'valu', wr=['vcc'], rd=[vLANE16])); E(valu('v_cndmask_b32', vO, vIT, vO, 'vcc'))
        E(label(f"L_{n}_mk"))
        E(raw(f"s_cmp_eq_u64 {sCD}, 0", 'salu', rd=[sCD])); E(raw(f"s_cbranch_scc1 L_{n}_mk1"))
        E(raw(f"s_ff1_i32_b64 {sT2}, {sCD}", 'salu', wr=[sT2], rd=[sCD])); E(raw(f"s_bitset0_b64 {sCD}, {sT2}", 'salu', wr=[sCD], rd=[sCD, sT2]))
        E(raw(f"s_lshl2_add_u32 {sT2}, {sT2}, {sPB}", 'salu', wr=[sT2], rd=[sT2, sPB])); E(add(sT2, sT2, ABN))
        E(bstore('buffer_store_dword', vA, vO, sWS, sT2, flags='sc1')); E(raw(f"s_branch L_{n}_mk"))
        E(label(f"L_{n}_mk1")); E(waitvm(0))
        E(red_poll()[0]); E(waitvm(0))
        E(valu('v_mov_b32', vO, OOB)); E(smov(sT2, 36 * 4)); E(raw(f"v_writelane_b32 {vO}, {sT2}, 1", 'valu', wr=[vO], rd=[sT2, vO]))
        E(bstore('buffer_store_dword', vA, vO, sWS, sAV_, flags='sc1'))
        E(valu('v_mov_b32', vIT, 0)); E(valu('v_mov_b32', vO, OOB)); E(raw(f"v_writelane_b32 {vO}, 0, 0", 'valu', wr=[vO], rd=[vO]))
        E(I(f"buffer_atomic_add {vIT}, {vO}, {sWS}, {sAV_} offen sc1", 'vstore', rd=vIT.regs() + vO.regs() + sWS.regs() + sAV_.regs(), units=3))
        E(waitvm(0)); E(ab_load()); E(red_poll(True)[1]); E(waitvm(0)); E(valu('v_readfirstlane_b32', sOK, vD)); E(red_eval()); E(ab_eval())
    else:
        E(s64('s_lshl_b64', sCD, sRM, NPART + 1)); E(valu('v_mov_b32', vO, OOB)); E(valu('v_mov_b32', vA, 1))
        E(valu('v_cndmask_b32', vO, vO, vL4, sCD)); E(bstore('buffer_store_dword', vA, vO, sWS, sPB, flags='sc1')); E(waitvm(0))
        E(red_poll()[0]); E(waitvm(0)); E(red_poll(True)[1]); E(waitvm(0)); E(valu('v_readfirstlane_b32', sOK, vD)); E(red_eval())
    E(salu('s_min_u32', sT2, sRS, sRF)); E(salu('s_cmp_ge_u32', None, sOK, 16)); E(csel(sT2, sT2, 0))
    E(salu('s_bfm_b64', sCD, sT2, 0, scc_w=False)); E(s64('s_or_b64', sAB, sAB, sRM)); E(s64('s_and_b64', sAB, sAB, sCD))
    E(label(f"L_{n}_fb1"))
    E(raw(f"s_ff1_i32_b64 {sRS}, {sAB}", 'salu', wr=[sRS], rd=[sAB])); E(salu('s_and_b32', sRS, sRS, 255))
    E(raw(f"s_bitset0_b64 {sAB}, {sRS}", 'salu', wr=[sAB], rd=[sAB, sRS])); E(red_pub(sPAR))
    E(label(f"L_{n}_fb2")); E(barrier()); E(red_get(sPAR)); E(salu('s_xor_b32', sPAR, sPAR, 12))
    E(salu('s_cmp_ge_u32', None, sRS, 36)); E(raw(f"s_cbranch_scc1 L_{n}_exit"))
    E(offs(sRS, sXP[0])); E(ld_part(L0, range(NPART), FL) + ld_x(L0, sXP[0])); E(waitvm(0)); proc_all(E, L0, sXP[0], 0, [])
    E(salu('s_cmp_eq_u32', None, sWAVE, 0)); E(raw(f"s_cbranch_scc1 L_{n}_fb1")); E(raw(f"s_branch L_{n}_fb2"))
    E(label(f"L_{n}_exit"))
    ST(60)
    if CFG['stamps']: E(raw(f"s_setpc_b64 {sRET}"))
    else: E(raw("s_endpgm"))
    E(label(f"L_{n}_sync"))
    E(salu('s_cmp_eq_u32', None, sWAVE, 0)); E(raw(f"s_cbranch_scc0 L_{n}_sy2"))
    E(smov(sSP, 0)); E(red_poll()[1][0])
    E(label(f"L_{n}_sy0"))
    E(salu('s_cmp_ge_u32', None, sOK, 16)); E(raw(f"s_cbranch_scc1 L_{n}_sy1"))
    E(red_poll()[0]); E(waitvm(0)); E(valu('v_readfirstlane_b32', sOK, vD))
    E(salu('s_cmp_ge_u32', None, sOK, 16)); E(raw(f"s_cbranch_scc0 L_{n}_syw"))
    E(label(f"L_{n}_sy1"))
    E(red_poll()[1][1]); E(red_poll()[1][0]); E(waitvm(1)); E(red_eval())
    E(salu('s_bitcmp1_b32', None, sC, 0)); E(csel(sT2, sRS, 36)); E(salu('s_bitcmp1_b32', None, sC, 1)); E(csel(sT3, sRF, 36))
    E(salu('s_min_u32', sT2, sT2, sT3)); E(salu('s_cmp_lt_u32', None, sI, sT2)); E(raw(f"s_cbranch_scc1 L_{n}_syp"))
    E(label(f"L_{n}_syw"))
    E(add(sSP, sSP, 1)); E(salu('s_cmp_gt_u32', None, sSP, CFG.get('spin', 4000))); E(csel(sTO, 1, 0)); E(raw(f"s_cbranch_scc1 L_{n}_syp"))
    E(raw(f"s_sleep {CFG.get('sleep', 1)}")); E(raw(f"s_branch L_{n}_sy0"))
    E(label(f"L_{n}_syp"))
    E(red_pub(sPAR))
    E(label(f"L_{n}_sy2")); E(barrier()); E(red_get(sPAR)); E(salu('s_xor_b32', sPAR, sPAR, 12))
    E(raw(f"s_setpc_b64 {sRET2}"))
    return p

def reduce_items(p, ni, sPART_, sXO_, srdP, srdX, srdO, vL16, vXO_, base, flags, mid=None):
    E = p.emit
    SA = base; FA = base + 8; T = base + 16
    Ls = [base + 24 + 72 * i for i in range(ni)]
    for k in range(NPART):
        if k: E(add(sPART_, sPART_, 16 * PART - (PWAVE if ni == 2 else 0)))
        for i in range(ni):
            if i: E(add(sPART_, sPART_, PWAVE))
            E(bload('buffer_load_dwordx4', v(Ls[i] + 4 * k, 4), vL16, srdP, sPART_, flags=flags))
    for i in range(ni):
        XR = Ls[i] + 68
        if i: E(add(sT2, sXO_, 32 * 1152))
        so = sT2 if i else sXO_
        E(bload('buffer_load_dwordx2', v(XR, 2), vXO_, srdX, so)); E(bload('buffer_load_dwordx2', v(XR + 2, 2), vXO_, srdX, so, 32))
    ex = 0
    if mid: mid(); ex = 1
    E(smov(sT3, 0xffff0000))
    for i in range(ni):
        L = Ls[i]; XR = L + 68
        for k in range(NPART):
            if i == 0: E(waitvm((NPART - 1 - k) * ni + (ni - 1) + 2 * ni + ex))
            acc = SA if k < 11 else FA
            for q in range(4):
                x = v(L + 4 * k + q)
                if k in (0, 11):
                    E(valu('v_lshlrev_b32', v(acc + 2 * q), 16, x)); E(valu('v_and_b32', v(acc + 2 * q + 1), sT3, x))
                else:
                    tp = v(T + 2 * q, 2)
                    E(valu('v_lshlrev_b32', tp[0], 16, x)); E(valu('v_and_b32', tp[1], sT3, x))
            if k not in (0, 11):
                for q in range(4): E(valu('v_pk_add_f32', v(acc + 2 * q, 2), v(acc + 2 * q, 2), v(T + 2 * q, 2)))
        for e in range(8): E(valu('v_exp_f32', v(T + e), v(FA + e)))
        for e in range(8): E(valu('v_add_f32', v(T + e), 1.0, v(T + e)))
        for e in range(8): E(valu('v_rcp_f32', v(T + e), v(T + e)))
        for e in range(8): E(valu('v_mul_f32', v(FA + e), f2u(-math.log(2.0)), v(FA + e)))
        for e in range(8): E(valu('v_mul_f32', v(FA + e), v(FA + e), v(T + e)))
        if i == 0: E(waitvm(ex if ni == 1 else 0))
        for q in range(4):
            E(valu('v_lshlrev_b32', v(T + 2 * q), 16, v(XR + q))); E(valu('v_and_b32', v(T + 2 * q + 1), sT3, v(XR + q)))
        for e in range(8): E(valu('v_fma_f32', v(T + e), v(SA + e), v(FA + e), v(T + e)))
        for q in range(4): E(valu('v_cvt_pk_bf16_f32', v(XR + q), v(T + 2 * q), v(T + 2 * q + 1)))
        if i: E(add(sXO_, sXO_, 32 * 1152))
        E(bstore('buffer_store_dwordx2', v(XR, 2), vXO_, srdO, sXO_)); E(bstore('buffer_store_dwordx2', v(XR + 2, 2), vXO_, srdO, sXO_, 32))

def build_role(kind, vm_before):
    R = Role(kind)
    CFG['shape'] = CFG.get('shapes', {}).get(kind, CFG['shape0'])
    R.ring = {'F': (216, 9), 'A': (192, 16), 'M': (200, 8)}[kind]
    if kind == 'M': R.depth = 7
    nl = CFG.get('pfl', 16)
    MS = CFG['shape'] == 'M'
    if MS:
        R.add_p1_unit, R.add_p1_half, R.epi_silu, R.epi_q = R.add_p1_unitM, R.add_p1_halfM, R.epi_siluM, R.epi_qM
    P2M = 'q16' if MS else 'pi'
    if kind == 'F' and CFG.get('l844'):
        R.ring = (208, 12); R.depth = 7
        for u in range(13): R.add_p1_unit(u, sW1, sHA, sHC, 9216, u == 0, a(16 * u, 16), R.epi_silu, last=(u == 12),
                                          inreg=[pf_run(sW2, sPF2, 832 * 1152, 10) if u >= 1 else None, pf_row('F', sW1)])
        needs = {t: [('reg', 8 * t)] for t in range(26)}
        dm = [dma_w(sW2, sFA, 0, 1152, sFC, 0), dma_w(sW2, sFA, 288 * 1152, 1152, sFC, 288 * 1152), dma_w(sW2, sFA, 576 * 1152, 1152)]
        R.add_p2([(a(0, 208), [288, 288, 256], dm, needs, sSt)], [add(x, x, 128) for x in (sFA, sFC)], pre0=lambda: set_offw(1152, P2M))
        for st in R.stages[-27:]: st.ring = (208, 12, 'restart')
    elif kind == 'M' and CFG.get('l844'):
        R.ring = (208, 8); R.depth = 7
        Q = [a(80, 32), a(112, 32)]; OA = a(144, 64)
        def mpf(u):
            if u == 0: return pf_row('M', sWQ)
            if u == 1: return lambda: pf_row_setup('M', 9216, 18, sPF1, 0) + [pf_row('M', sW1)()[1]]
            if u <= 5: return pf_row('M', sW1)
            return None
        for u in range(4): R.add_p1_unit(u, sWQ, sQA, sQC, 8192, u == 0, a(80 + 16 * u, 16), R.epi_q, key='Q', inreg=[None, mpf(u)])
        for u in range(5): R.add_p1_unit(4 + u, sW1, sHA, sHC, 9216, u == 0, a(16 * u, 16), R.epi_silu, pre=(lambda: set_offw(9216, 'S')) if u == 0 else None,
                                         last=(u == 4), key='H', inreg=[None, mpf(4 + u)])
        Ha = dict(i=0, Q=Q[0], S=Sreg, P=Preg, O=OA, LM=v(230, 8), OF=lambda kk: OA.sub(16 * kk, 8),
                  need_qk=[('acc', 80), ('acc', 96)], need_pv=[('acc', 48 + 16 * i) for i in range(4)])
        Hb = dict(i=1, Q=Q[1], S=[v(80, 16), v(96, 16)], P=[v(48, 8), v(56, 8)], O=v(160, 64), LM=v(64, 8), OF=lambda kk: OA.sub(16 * kk + 8, 8))
        R.add_pa_g([[Ha, Hb]])
        R.stages[-9].mf[-1].need.append(('acc', 48))
        R.heads = [(Ha, sPFa), (Hb, sPFa)]
        R.add_p2m(a(0, 80), [H['OF'](kk) for H in (Ha, Hb) for kk in range(4)],
                  [dma_w(sW2, sFA, 0, 1152, sFC, 0), dma_w(sWO, sOA, 0, 1152, sFC, 32 * 1152, srdC=sW2)],
                  [add(x, x, 128) for x in (sOA, sFA, sFC)], pre0=lambda: set_offw(1152, P2M))
        for st in R.stages[-18:]: st.ring = (208, 12, 'restart')
        k = pf_sched(R, 15, sK, sPFa, 131072, 16); k = pf_sched(R, k, sV, sPFa, 131072, 16)
        pf_sched(R, 17, sWO, sPFc, 256 * 1152, 36); pf_sched(R, 18, sW2, sPF2, 320 * 1152, 45)
    elif kind == 'F':
        for u in range(13): R.add_p1_unit(u, sW1, sHA, sHC, 9216, u == 0, a(16 * u, 16), R.epi_silu, last=(u == 12), inreg=[pf_run(sW2, sPF2, 832 * 1152, 10) if u >= 1 else None, pf_row('F', sW1) if CFG['pf'] >= 3 else None] if CFG['pf'] else None)
        R.add_p1_half(13, a(208, 8))
        needs = {t: [('reg', 8 * t)] for t in range(27)}
        dm = [dma_w(sW2, sFA, 0, 1152, sFC, 0), dma_w(sW2, sFA, 288 * 1152, 1152, sFC, 288 * 1152), dma_w(sW2, sFA, 576 * 1152, 1152, sFS, 0)]
        R.add_p2([(a(0, 216), [288, 288, 288], dm, needs, sSt)], [add(x, x, 128) for x in (sFA, sFC, sFS)], pre0=lambda: set_offw(1152, P2M))
        if CFG['pf']:
            pf_sched(R, 26, sW2, sPF2h, 32 * 1152, 8)
    elif kind == 'A' and CFG.get('pair'):
        OA = a(96, 64)
        Ha = dict(i=0, Q=a(0, 32), S=Sreg, P=Preg, O=OA, LM=v(230, 8), OF=lambda kk: OA.sub(16 * kk, 8),
                  need_qk=[('acc', 48), ('acc', 64)], need_pv=[('acc', 48 + 16 * i) for i in range(4)])
        Hb = dict(i=1, Q=a(32, 32), S=[v(48, 16), v(64, 16)], P=[v(80, 8), v(88, 8)], O=v(160, 64), LM=v(96, 8), OF=lambda kk: OA.sub(16 * kk + 8, 8))
        Hc = dict(i=2, Q=a(64, 32), S=Sreg, P=Preg, O=v(48, 64), LM=v(16, 8), OF=lambda kk: a(160 + 8 * kk, 8), need_pv=[('lm', 0)])
        Ha['need_qk'] += [('acc', 80)]
        pj = {1: sJQ}
        for u in range(6):
            R.add_p1_unit(u, sWQ, sQA, sQC, 8192, u == 0, a(16 * u, 16), R.epi_q, last=(u == 5), step=sJQ if u == 4 else 128,
                          inreg=[pf_run(sWO, sPFc, 384 * 1152, 11) if u >= 1 else None, pf_row('A', sWQ, pj.get(u, 128)) if CFG['pf'] >= 3 and u < 3 else None] if CFG['pf'] else None)
        R.add_pa_g([[Ha, Hb], [Hc]])
        Bf = [H['OF'](kk) for H in (Ha, Hb, Hc) for kk in range(4)]
        needs = {0: [('fin', 0), ('fin', 1)], 8: [('fin', 2)]}
        dm = [dma_w192(sWO, 0), dma_w192(sWO, 0, sOA1, sOB1)]
        R.add_p2([(Bf, [192, 192], dm, needs, sSt)], [add(x, x, 128) for x in (sOA, sOB, sOA1, sOB1)], pre0=lambda: set_offw(1152, P2M))
        R.heads = [(Ha, sPFa), (Hb, sPFa), (Hc, sPFb)]
        if CFG['pf'] >= 2:
            pf_sched(R, 10, sK, sPFa, 131072, 16); pf_sched(R, 10, sV, sPFa, 131072, 16)
            pf_sched(R, 12, sK, sPFb, 131072, 16); pf_sched(R, 12, sV, sPFb, 131072, 16)
    elif kind == 'A':
        Q = [a(32 * e, 32) for e in range(3)]; O = [a(96 + 32 * e, 32) for e in range(3)]
        for u in range(6): R.add_p1_unit(u, sWQ, sQA, sQC, 8192, u == 0, a(16 * u, 16), R.epi_q, last=(u == 5), inreg=[pf_run(sWO, sPFc, 384 * 1152, 11) if u >= 1 else None, pf_row('A', sWQ) if CFG['pf'] >= 3 and u < 5 else None] if CFG['pf'] else None)
        R.add_pa(Q, O)
        needs = {4 * e: [('fin', e)] for e in range(3)}; needs[0].append(('S', 2, 15))
        dm = [dma_w192(sWO, b * 192 * 1152) for b in range(2)]
        R.add_p2([(a(96, 96), [192, 192], dm, needs, sSt)], [add(sOA, sOA, 128), add(sOB, sOB, 128)], pre0=lambda: set_offw(1152, P2M))
        if CFG['pf']:
            if CFG['pf'] >= 2:
                pf_sched(R, 10, sK, sPFa, 131072, 16); pf_sched(R, 10, sV, sPFa, 131072, 16)
                pf_sched(R, 12, sK, sPFb, 131072, 16); pf_sched(R, 12, sV, sPFb, 131072, 16)
    else:
        Q = [a(136 + 32 * e, 32) for e in range(2)]; O = [a(72 + 32 * e, 32) for e in range(2)]
        def mpf(u):
            if u == 0: return pf_row('M', sWQ)
            if u == 1: return lambda: pf_row_setup('M', 9216, 18, sPF1, 0) + [pf_row('M', sW1)()[1]]
            if u <= 4: return pf_row('M', sW1)
            if u == 5: return lambda: [smov(sPW, sPF1h), pf_row('M', sW1)()[1]]
            return None
        for u in range(4): R.add_p1_unit(u, sWQ, sQA, sQC, 8192, u == 0, a(136 + 16 * u, 16), R.epi_q, key='Q', inreg=[None, mpf(u)] if CFG['pf'] >= 3 else None)
        for u in range(4): R.add_p1_unit(4 + u, sW1, sHA, sHC, 9216, u == 0, a(16 * u, 16), R.epi_silu, pre=(lambda: set_offw(9216, 'M' if MS else 'S')) if u == 0 else None, last=(u == 3), key='H', inreg=[None, mpf(4 + u)] if CFG['pf'] >= 3 else None)
        R.add_p1_half(8, a(64, 8))
        BO = a(72, 64)
        if CFG.get('pair'):
            Ha = dict(i=0, Q=Q[0], S=Sreg, P=Preg, O=BO, LM=v(230, 8), OF=lambda kk: BO_.sub(16 * kk, 8),
                      need_qk=[('acc', 48 + 16 * i) for i in range(3)], need_pv=[('acc', 48 + 16 * i) for i in range(4)])
            Hb = dict(i=1, Q=Q[1], S=[v(64, 16), v(48, 16)], P=[v(80, 8), v(88, 8)], O=v(160, 64), LM=v(96, 8), OF=lambda kk: BO_.sub(16 * kk + 8, 8))
            BO_ = BO
            if CFG.get('mfree', 0):
                Hb['S'] = [v(64, 16), v(238, 16)]; Ha['need_qk'] = [('acc', 64), ('acc', 80)]; Ha['need_pv'] = [('acc', 96)]
                R.ntmp = 12; R.ones = v(28, 4)
                for st_, idx in ((R.stages[-2], -1), (R.stages[-1], -1)):
                    m_ = st_.mf[idx]; f_ = m_.after
                    m_.after = (lambda G, f_=f_: (setattr(R, 'low', True), f_(G), setattr(R, 'low', False)))
            R.add_pa_g([[Ha, Hb]])
            BO = [H['OF'](kk) for H in (Ha, Hb) for kk in range(4)]
            R.heads = [(Ha, sPFa), (Hb, sPFa)]
        else: R.add_pa(Q, O)
        nf = {t: [('reg', 8 * t)] for t in range(9)}; nf[0].append(('S', 1, 15))
        R.add_p2([(a(0, 72), [288], [dma_w(sW2, sFA, 0, 1152, sFS, 0)], nf, sSt2),
                  (BO, [256], [dma_w(sWO, sOA, 0, 1152)], {0: [('fin', 0)], 4: [('fin', 1)]}, sSt)],
                 [add(x, x, 128) for x in (sOA, sFA, sFS)], pre0=lambda: set_offw(1152, P2M))
        for st in R.stages[-18:]: st.ring = (200, 14, 'restart')
        if CFG['pf']:
            if CFG['pf'] >= 2:
                k = pf_sched(R, 14, sK, sPFa, 131072, 16); k = pf_sched(R, k, sV, sPFa, 131072, 16)
            pf_sched(R, 16, sWO, sPFc, 256 * 1152, 36); pf_sched(R, 23 if not CFG.get('pair') else 17, sW2, sPF2, 256 * 1152, 36); pf_sched(R, 24 if not CFG.get('pair') else 17, sW2, sPF2h, 32 * 1152, 8)
    if CFG.get('msum') and not MS and kind in 'AM':
        st0 = [st for st in R.stages if st.name == 'PAh0s0'][0]
        m0_ = st0.mf[8]
        if not hasattr(R, 'ones'): m0_.need += [('acc', 48 + 16 * i) for i in range(4)]
        m0_.pre = lambda: R.p.emit([valu('v_mov_b32', getattr(R, 'ones', vONES)[i], 0x3f803f80) for i in range(4)])
    if CFG.get('recode') and CFG['fused']:
        names = [st.name for st in R.stages]
        nS = len(names)
        R.pf.setdefault(nS - 2, []).append(pf_code(f"L_{kind}_red", f"L_role{kind}_end", 4))
        p2 = names.index('P2c0b0')
        R.stages[p2].label = f"L_{kind}_p2"
        R.pf.setdefault(p2 - 2, []).append(pf_code(f"L_{kind}_p2", f"L_{kind}_p2+20480", 5))
        if kind in 'AM':
            pa = names.index('PAmini'); R.stages[pa].label = f"L_{kind}_pa"
            R.pf.setdefault(pa - 1, []).append(pf_code(f"L_{kind}_pa", f"L_{kind}_p2", 8))
    if CFG.get('hot') and CFG['fused'] and kind in CFG['hot']:
        names = [st.name for st in R.stages]
        last = names.index('P2c8b0'); R.stages[last].label = f"L_{kind}_c8"
        def setup():
            o = [raw(f"s_getpc_b64 {sPC}", 'salu', wr=[sPC]), label(f"L_{kind}_hp"),
                 salu('s_add_u32', sPC[0], sPC[0], f"L_{kind}_c8-L_{kind}_hp"), salu('s_addc_u32', sPC[1], sPC[1], 0, scc_r=True),
                 valu('v_bfe_u32', vPF2, vTID, 16, 5), valu('v_and_b32', vPF, 63, vTID), valu('v_min_u32', vPF, 1, vPF),
                 valu('v_lshl_add_u32', vPF, vPF2, 1, vPF), valu('v_lshlrev_b32', vPF, 7, vPF)]
            if kind == 'F': o += pf_row_setup(kind, 1152, 26, sPF2, 2 * 128)
            return o
        def rep_code():
            return [I(f"global_load_dword {vDUM}, {vPF}, {sPC}", 'vload', wr=vDUM.regs(), rd=vPF.regs() + sPC.regs(), units=3, tag='pf')]
        R.pf.setdefault(names.index('P2c1b0'), []).append(setup)
        for c in range(2, 8):
            k0 = names.index(f'P2c{c}b0')
            R.pf.setdefault(k0, []).append(rep_code)
            if kind == 'F': R.pf.setdefault(k0 + 1, []).append(pf_row(kind, sW2))
    R.slow = []
    if kind in 'AM' and CFG.get('slow', True) and CFG.get('pair'):
        P2s = [st for st in R.stages if st.name.startswith('P2c0')]
        hl = [(H['i'], H['Q'], (H['OF'], kv)) for (H, kv) in R.heads]
        if kind == 'A':
            P2s[0].mf[0].pre = slow_check(R, hl[:2], (112, 160))
            [m for m in P2s[1].mf if ('fin', 2) in m.need][0].pre = slow_check(R, hl[2:], (160, 48))
        else:
            m_ = P2s[1].mf[4 if CFG.get('l844') else 0]
            m_.need += [('fin', 0), ('fin', 1)]
            m_.pre = slow_check(R, hl, (160, 48))
    elif kind in 'AM' and CFG.get('slow', True):
        P2s = [st for st in R.stages if st.name.startswith('P2c0')]
        if kind == 'A':
            P2s[0].mf[0].need += [('fin', 1)]
            P2s[0].mf[0].pre = slow_check(R, [(0, Q[0], O[0]), (1, Q[1], O[1])], 112)
            m_ = [m for m in P2s[1].mf if ('fin', 2) in m.need][0]
            m_.pre = slow_check(R, [(2, Q[2], O[2])], 160)
        else:
            P2s[1].mf[0].need += [('fin', 1)]
            P2s[1].mf[0].pre = slow_check(R, [(0, Q[0], O[0]), (1, Q[1], O[1])], 160)
    if CFG['fused']:
        add_signals(R)
        def early0():
            it = red_setup(kind) + red_poll()[0]
            it[-1].tag = 'cnt'
            return it
        def early():
            assert R.cnt_covered()
            PRIV[0] = (kind == 'A' or (kind == 'M' and bool(CFG.get('mpriv'))))
            it = red_poll()[1]
            it[-1].tag = 'poll'
            return it
        def covered():
            idx = max(i for i, x in enumerate(R.p.ins) if x.tag == 'cnt'); n = 0
            for x in R.p.ins[idx + 1:]:
                if x.kind in VMEMK: n += 1
                if x.txt.startswith('s_waitcnt vmcnt(') and int(x.txt[16:-1]) <= n: return True
            return False
        R.cnt_covered = covered
        if kind == 'A' and CFG.get('l2pf'):
            nm = [st.name for st in R.stages]
            R.pf.setdefault(nm.index('P2c1b0'), []).append(l2pf_setup)
            for (cw, dlt) in CFG['l2pf']:
                kp = nm.index(f'P2c{cw}b0')
                for j in range(4): R.pf.setdefault(kp, []).append(lambda j=j: l2pf_poll()[j])
                R.stages[kp + 2].cover_tag = 'gp'
                def gate(j, dlt=dlt):
                    def f():
                        it = l2pf_issue(R, dlt)[j]
                        if j == 0:
                            it = it + [valu('v_readfirstlane_b32', sOK, vD), salu('s_cmp_ge_u32', None, sOK, 16), csel(sC, sC, 15)]
                        return it
                    return f
                for j in range(4): R.pf.setdefault(kp + 2, []).append(gate(j))
        R.pf.setdefault([st.name for st in R.stages].index('P2c1b0' if kind == 'F' else 'P2c0b1'), []).append(early0)
        if kind in CFG.get('pre', ''):
            R.pf.setdefault(len(R.stages) - 3, []).append(early)
            R.stages[-1].pre_bar = lambda: red_early(R.p, kind)
        else: R.pf.setdefault(len(R.stages) - CFG.get('pollw', 1), []).append(early)
    role_prologue(R, vm_before)
    R.run()
    if CFG['fused']:
        p = R.p
        if kind not in CFG.get('pre', ''): red_early(p, kind)
        if kind in CFG.get('pre', ''): pass
        elif kind in CFG.get('lateflag', 'A'): p.emit(barrier())
        else:
            p.emit(waitvm(0)); p.emit(barrier())
            p.emit(valu('v_mov_b32', vPRG, 9))
            if CFG.get('rep'): p.emit(bstore('buffer_store_dword', vPRG, vCR, sWS, 0, flags='sc1'))
            p.emit(bstore('buffer_store_dword', vPRG, vCT, sWS, 0, flags='sc1'))
        if CFG['stamps']: R.stamp(len(R.stages) - 1)
        p.emit(raw(f"s_call_b64 {sRET}, L_{kind}_red"))
    if CFG['stamps']:
        p = R.p
        R.stamp(len(R.stages))
        p.emit(raw("s_memrealtime s[98:99]", wr=[s(98, 2)])); p.emit(raw("s_waitcnt lgkmcnt(0)"))
        p.emit(raw(f"v_writelane_b32 {vSTAMP}, s98, 63", 'valu', wr=[vSTAMP], rd=[s(98)]))
        if CFG.get('dbgstat'):
            n = len(R.stages)
            lanes = {'F': [0, 27, n - 1, n], 'A': [0, 37, n - 1, n], 'M': [0, 34, n - 1, n]}[kind]
            slots = {'F': [1, 2, 3, 5], 'A': [10, 11, 13, 14], 'M': [15, 15, 15, 15]}[kind]
            p.emit([valu('v_mov_b32', v(4), 256), valu('v_mov_b32', v(5), 0)])
            for i, (ln, sl) in enumerate(zip(lanes, slots)):
                p.emit(raw(f"v_readlane_b32 s92, {vSTAMP}, {ln}", 'rdl', wr=[sT2], rd=[vSTAMP])); p.emit(nop(3))
                p.emit(raw(f"v_writelane_b32 v5, s92, {i}", 'valu', wr=[v(5)], rd=[sT2])); p.emit(raw(f"v_writelane_b32 v4, {4 * sl}, {i}", 'valu', wr=[v(4)]))
            p.emit(raw(f"v_writelane_b32 v5, s98, 4", 'valu', wr=[v(5)], rd=[s(98)])); p.emit(raw(f"v_writelane_b32 v4, 28, 4", 'valu', wr=[v(4)]))
            p.emit(salu('s_not_b32', sT2, s(43))); p.emit(raw(f"v_writelane_b32 v5, s92, 5", 'valu', wr=[v(5)], rd=[sT2])); p.emit(raw(f"v_writelane_b32 v4, 36, 5", 'valu', wr=[v(4)]))
            p.emit(salu('s_sub_u32', sT2, s(98), s(43))); p.emit(raw(f"v_writelane_b32 v5, s92, 6", 'valu', wr=[v(5)], rd=[sT2])); p.emit(raw(f"v_writelane_b32 v4, 24, 6", 'valu', wr=[v(4)]))
            p.emit([salu('s_cmp_eq_u32', None, sRB, 9), csel(sT2, 0, sRB), salu('s_or_b32', sT2, sT2, sWAVE), salu('s_cmp_eq_u32', None, sT2, 0), csel(sT2, 0, 256),
                    valu('v_add_u32', v(4), sT2, v(4))])
            p.emit(I(f"buffer_atomic_umax v5, v4, {sDBG}, 0 offen sc1", 'vstore', rd=vr(4, 2) + sDBG.regs(), units=3))
        p.emit([shl(sT2, s(2), 2), add(sT2, sT2, sWAVE), shl(sT2, sT2, 8), add(sT2, sT2, STAMP_OFF),
                valu('v_lshrrev_b32', v(42), 2, vLANE16), bstore('buffer_store_dword', vSTAMP, v(42), sWS, sT2)])
    R.p.emit(raw("s_endpgm"))
    return R

def fold(ins, name):
    idx = [i for i, x in enumerate(ins) if x.tag == 'mark']
    def body(a_, b_): return [x.txt for x in ins[a_:b_] if x.kind != 'label']
    out = []; pos = 0; k = 0; nl = 0
    while k + 1 < len(idx):
        b0 = body(idx[k], idx[k + 1]); n = 1
        while k + n + 1 < len(idx) and body(idx[k + n], idx[k + n + 1]) == b0: n += 1
        if n >= 2:
            out += ins[pos:idx[k]]
            L = f"L_{name}_loop{nl}"; nl += 1
            out.append(smov(sLC, n)); out.append(I(".p2align 3", 'label')); out.append(label(L))
            out += ins[idx[k]:idx[k + 1]]
            out += [salu('s_sub_u32', sLC, sLC, 1), salu('s_cmp_lg_u32', None, sLC, 0), raw(f"s_cbranch_scc1 {L}")]
            pos = idx[k + n]; k += n
        else: k += 1
    out += ins[pos:]
    return out

def fold_regions(ins, name):
    regs = []; i = 0
    beg = None
    for i, x in enumerate(ins):
        if isinstance(x.tag, tuple) and x.tag and x.tag[0] == 'region':
            if x.tag[1] == 'begin': beg = (i, x.tag[2])
            elif beg: regs.append((beg[0], i, beg[1])); beg = None
    groups = {}
    for (a_, b_, key) in regs:
        groups.setdefault(tuple(x.txt for x in ins[a_:b_] if x.kind != 'label'), []).append((a_, b_))
    out = []; subs = []; repl = {}
    n = 0
    for body, lst in groups.items():
        if len(lst) >= 2:
            L = f"L_{name}_sub{n}"; n += 1
            a_, b_ = lst[0]
            subs += [I(".p2align 6", 'label'), label(L)] + ins[a_:b_] + [raw(f"s_setpc_b64 {sRET}")]
            for (a_, b_) in lst: repl[a_] = (b_, L)
    i = 0
    while i < len(ins):
        if i in repl:
            b_, L = repl[i]; out.append(raw(f"s_call_b64 {sRET}, {L}")); i = b_
        else:
            out.append(ins[i]); i += 1
    print(f"  regions: {[len(l) for l in groups.values()]}", file=sys.stderr)
    return out + subs

def reduce_body(p, sPART, sXO, srdP, srdX, srdO, vL16, vXO, base, flags, mid=None):
    E = p.emit
    L = base; XR = base + 68; SA = base + 72; FA = base + 80; T = base + 88
    for k in range(NPART):
        if k: E(add(sPART, sPART, 16 * PART))
        E(bload('buffer_load_dwordx4', v(L + 4 * k, 4), vL16, srdP, sPART, flags=flags))
    E(bload('buffer_load_dwordx2', v(XR, 2), vXO, srdX, sXO)); E(bload('buffer_load_dwordx2', v(XR + 2, 2), vXO, srdX, sXO, 32))
    ex = 0
    if mid: E(mid()); ex = 1
    E(smov(sT3, 0xffff0000))
    for k in range(NPART):
        E(waitvm(NPART + 1 - k + ex))
        acc = SA if k < 11 else FA
        for q in range(4):
            x = v(L + 4 * k + q)
            if k in (0, 11):
                E(valu('v_lshlrev_b32', v(acc + 2 * q), 16, x)); E(valu('v_and_b32', v(acc + 2 * q + 1), sT3, x))
            else:
                tp = v(T + 2 * q, 2)
                E(valu('v_lshlrev_b32', tp[0], 16, x)); E(valu('v_and_b32', tp[1], sT3, x))
        if k not in (0, 11):
            for q in range(4): E(valu('v_pk_add_f32', v(acc + 2 * q, 2), v(acc + 2 * q, 2), v(T + 2 * q, 2)))
    for e in range(8): E(valu('v_exp_f32', v(T + e), v(FA + e)))
    for e in range(8): E(valu('v_add_f32', v(T + e), 1.0, v(T + e)))
    for e in range(8): E(valu('v_rcp_f32', v(T + e), v(T + e)))
    for e in range(8): E(valu('v_mul_f32', v(FA + e), f2u(-math.log(2.0)), v(FA + e)))
    for e in range(8): E(valu('v_mul_f32', v(FA + e), v(FA + e), v(T + e)))
    E(waitvm(ex))
    for q in range(4):
        E(valu('v_lshlrev_b32', v(T + 2 * q), 16, v(XR + q))); E(valu('v_and_b32', v(T + 2 * q + 1), sT3, v(XR + q)))
    for e in range(8): E(valu('v_fma_f32', v(T + e), v(SA + e), v(FA + e), v(T + e)))
    for q in range(4): E(valu('v_cvt_pk_bf16_f32', v(XR + q), v(T + 2 * q), v(T + 2 * q + 1)))
    E(bstore('buffer_store_dwordx2', v(XR, 2), vXO, srdO, sXO)); E(bstore('buffer_store_dwordx2', v(XR + 2, 2), vXO, srdO, sXO, 32))

def reduce_kernel():
    p = Prog(); E = p.emit
    E(salu('s_cmp_ge_u32', None, s(2), 576)); E(raw("s_cbranch_scc0 L_rgo")); E(raw("s_endpgm")); E(label("L_rgo"))
    E(raw("s_load_dwordx2 s[4:5], s[0:1], 0", wr=[s(4, 2)])); E(raw("s_load_dwordx2 s[6:7], s[0:1], 64", wr=[s(6, 2)])); E(raw("s_load_dwordx2 s[8:9], s[0:1], 80", wr=[s(8, 2)]))
    E(valu('v_lshrrev_b32', v(1), 6, v(0))); E(valu('v_readfirstlane_b32', s(10), v(1)))
    E(shl(s(11), s(2), 2)); E(add(s(11), s(11), s(10)))
    E(salu('s_mul_hi_u32', s(24), s(11), -(-(1 << 32) // 36), scc_w=False))
    E(mul(s(25), s(24), 36)); E(salu('s_sub_u32', s(25), s(11), s(25)))
    E(shl(s(26), s(11), 10))
    E(valu('v_and_b32', v(0), 63, v(0))); E(valu('v_lshlrev_b32', v(1), 4, v(0)))
    E(valu('v_and_b32', v(2), 15, v(0))); E(smov(s(27), 1152)); E(valu('v_mul_u32_u24', v(2), s(27), v(2)))
    E(valu('v_lshrrev_b32', v(3), 4, v(0))); E(valu('v_lshl_add_u32', v(2), v(3), 3, v(2)))
    E(mul(s(28), s(24), 32 * 1152)); E(salu('s_and_b32', s(29), s(25), 1)); E(mul(s(29), s(29), 16 * 1152)); E(add(s(28), s(28), s(29)))
    E(shr(s(25), s(25), 1)); E(shl(s(25), s(25), 6)); E(add(s(28), s(28), s(25)))
    E(raw("s_waitcnt lgkmcnt(0)"))
    srd(p, s(12, 4), 8, WSP_BYTES); srd(p, s(16, 4), 4, 2359296); srd(p, s(20, 4), 6, 2359296)
    reduce_body(p, s(26), s(28), s(12, 4), s(16, 4), s(20, 4), v(1), v(2), 4, CFG.get('rflags', ''))
    E(raw("s_endpgm"))
    return p

def text(ins): return "\n".join((i.txt if i.kind == 'label' else " " + i.txt) for i in ins) + "\n"

def compress(t):
    t = re.sub(r" v_mfma_f32_16x16x32_bf16 v\[(\d+):\d+\], a\[(\d+):\d+\], v\[(\d+):\d+\], v\[\1:\d+\]", r" MV \1,\2,\3", t)
    t = re.sub(r" v_mfma_f32_16x16x32_bf16 v\[(\d+):\d+\], a\[(\d+):\d+\], a\[(\d+):\d+\], v\[\1:\d+\]", r" MA \1,\2,\3", t)
    t = re.sub(r" v_mfma_f32_32x32x16_bf16 v\[(\d+):\d+\], a\[(\d+):\d+\], v\[(\d+):\d+\], v\[\1:\d+\]", r" NV \1,\2,\3", t)
    t = re.sub(r" v_mfma_f32_32x32x16_bf16 v\[(\d+):\d+\], a\[(\d+):\d+\], a\[(\d+):\d+\], v\[\1:\d+\]", r" NA \1,\2,\3", t)
    t = re.sub(r" v_mfma_f32_16x16x32_bf16 a\[(\d+):\d+\], a\[(\d+):\d+\], v\[(\d+):\d+\], a\[\1:\d+\]", r" MC \1,\2,\3", t)
    t = re.sub(r" ds_read_b64_tr_b16 a\[(\d+):\d+\], v(\d+) offset:(\d+)", r" RT \1,\2,\3", t)
    t = re.sub(r" ds_read_b128 a\[(\d+):\d+\], v(\d+) offset:(\d+)", r" RB \1,\2,\3", t)
    t = re.sub(r" v_cvt_pk_bf16_f32 v(\d+), v(\d+), v(\d+)", r" CV \1,\2,\3", t)
    t = re.sub(r" v_accvgpr_write_b32 a(\d+), v(\d+)", r" AW \1,\2", t)
    t = re.sub(r" v_exp_f32 v(\d+), v(\d+)", r" EX \1,\2", t)
    t = re.sub(r" v_add_f32 v(\d+), v(\d+), v(\d+)", r" AD \1,\2,\3", t)
    t = re.sub(r" v_mul_f32 v(\d+), v(\d+), v(\d+)", r" ML \1,\2,\3", t)
    t = re.sub(r" s_waitcnt lgkmcnt\((\d+)\)", r" WL \1", t)
    mac = r""".macro MC d,a,b
 v_mfma_f32_16x16x32_bf16 a[\d:\d+3], a[\a:\a+3], v[\b:\b+3], a[\d:\d+3]
.endm
.macro NV d,a,b
 v_mfma_f32_32x32x16_bf16 v[\d:\d+15], a[\a:\a+3], v[\b:\b+3], v[\d:\d+15]
.endm
.macro NA d,a,b
 v_mfma_f32_32x32x16_bf16 v[\d:\d+15], a[\a:\a+3], a[\b:\b+3], v[\d:\d+15]
.endm
.macro MV d,a,b
 v_mfma_f32_16x16x32_bf16 v[\d:\d+3], a[\a:\a+3], v[\b:\b+3], v[\d:\d+3]
.endm
.macro MA d,a,b
 v_mfma_f32_16x16x32_bf16 v[\d:\d+3], a[\a:\a+3], a[\b:\b+3], v[\d:\d+3]
.endm
.macro RT d,a,o
 ds_read_b64_tr_b16 a[\d:\d+1], v\a offset:\o
.endm
.macro RB d,a,o
 ds_read_b128 a[\d:\d+3], v\a offset:\o
.endm
.macro CV d,a,b
 v_cvt_pk_bf16_f32 v\d, v\a, v\b
.endm
.macro AW d,a
 v_accvgpr_write_b32 a\d, v\a
.endm
.macro EX d,a
 v_exp_f32 v\d, v\a
.endm
.macro AD d,a,b
 v_add_f32 v\d, v\a, v\b
.endm
.macro ML d,a,b
 v_mul_f32 v\d, v\a, v\b
.endm
.macro WL n
 s_waitcnt lgkmcnt(\n)
.endm
"""
    return mac, t

HDR = open('recurrent_scan__sliding_block_cached__dense_activation_silu__prompt.s.ref').read().split('; Override launch')[0]
DOC = """; Generated by my own scheduler scripts (hand-designed instruction streams, hazards padded by the script).
; registers as MFMA B operands (transposed formulation), weights / K / V stream through a 4-slot LDS ring (LDS-DMA).
;   role A (10): layernorm, Q projection, attention for 3 heads (one GQA pair shares K/V fragments), partial of o@wo
; The bf16 partials go to d_ws with write-through stores; progress words (reset per launch, guarded by a counter in
"""
def kd(name, vgpr, acc, sgpr=102):
    return f""".amdhsa_kernel {name}
  .amdhsa_next_free_vgpr {vgpr}
  .amdhsa_next_free_sgpr {sgpr}
  .amdhsa_accum_offset {acc}
  .amdhsa_group_segment_fixed_size 0
  .amdhsa_kernarg_size 88
  .amdhsa_user_sgpr_count 2
  .amdhsa_user_sgpr_kernarg_segment_ptr 1
  .amdhsa_system_sgpr_workgroup_id_x 1
.end_amdhsa_kernel
"""
def est_cycles(ins):
    tot = 0; cur = None; n = 0
    for i in ins:
        if i.kind == 'label': continue
        if i.kind == 'mfma':
            if cur is not None: tot += max(cap, cur)
            cur = 2; n += 1; cap = 8 if len(i.wr) == 16 else 4
        elif cur is not None:
            if i.txt.startswith('s_waitcnt lgkm') and cap == 4: continue
            cur += i.units if not i.txt.startswith('s_nop') else (int(i.txt.split()[1]) + 1) * 0.5
    return tot * 4

def main(out, **kw):
    CFG.update(kw)
    set_layout(CFG.get('l844'))
    if CFG.get('tabs'):
        BAL2[:], BALM[:], BAL3[:] = CFG['tabs']
        CFG['bal'] = 2
    if CFG.get('tab'):
        global ROLE_TAB
        ROLE_TAB = CFG['tab']
    CFG['shape0'] = CFG['shape']
    cp = common_prologue()
    if CFG.get('entry', 0):
        if CFG.get('entry', 1) == 1:
            k = next(i for i, x in enumerate(cp.ins) if x.txt == 's_waitcnt lgkmcnt(0)')
            tail = cp.ins[k:]; vmx = list(cp.vm); cp.ins = cp.ins[:k]; cp.vm = []
            common_prologue2(cp); cp.ins += tail; cp.vm += vmx
        else: common_prologue2(cp)
        common_prologue3(cp)
    body = text(cp.ins) + dispatch_text()
    for kind in 'FAM':
        R = build_role(kind, cp.vm)
        ins = fold_regions(fold(R.p.ins, kind), kind) if CFG['fold'] else R.p.ins
        nm = sum(1 for i in R.p.ins if i.kind == 'mfma')
        print(f"role {kind}: stages {len(R.stages)} mfma {nm} instrs {len([i for i in ins if i.kind!='label'])} (unrolled {len([i for i in R.p.ins if i.kind!='label'])}) pad {R.p.npad} forced {R.forced} est {est_cycles(R.p.ins)} ideal {sum(32 if len(i.wr) == 16 else 16 for i in R.p.ins if i.kind == 'mfma')}", file=sys.stderr)
        if CFG.get('abl_pair') and kind in 'AM':
            out_ = []; on = False
            for x in ins:
                if x.kind == 'label' and x.txt.startswith('; PAh'): on = x.txt.startswith('; PAh1')
                if x.kind == 'label' and x.txt.startswith('; P2'): on = False
                if on and (x.kind in ('dma', 'ds') or (x.kind == 'salu' and ('m0' in x.txt or 's70' in x.txt))): continue
                out_.append(x)
            ins = out_
        if CFG.get('abl_half'):
            out_ = []; on = False; cnt = 0
            for x in ins:
                if x.kind == 'label' and x.txt.startswith('; P'): on = x.txt.startswith(('; P1', '; P2'))
                if x.kind == 'label' and x.txt.startswith('; REGION begin'): on = True
                if on and x.kind == 'ds':
                    cnt += 1
                    if (cnt >> 1) & 1: continue
                out_.append(x)
            ins = out_
        ab = CFG.get('ablate', '')
        if ab:
            st0 = next(i for i, x in enumerate(ins) if x.txt.startswith('; P1u1b0'))
            def keep(x):
                if 'd' in ab and x.kind == 'dma': return False
                if 'r' in ab and x.kind == 'ds': return False
                if 'v' in ab and x.kind in ('trans',): return False
                if 'V' in ab and x.kind in ('trans', 'valu', 'perm') and not x.txt.startswith(('v_add_u32', 'v_xor', 'v_writelane', 'v_cmp', 'v_cnd', 'v_mov', 'v_lsh', 'v_mad', 'v_min', 'v_and', 'v_bfe', 'v_mul_u32')): return False
                if 'm' in ab and x.kind == 'mfma': return False
                return True
            ins = ins[:st0] + [x for x in ins[st0:] if keep(x)]
        for sp in R.slow: ins = ins + sp.ins
        if CFG['fused']: ins = ins + reducer(kind).ins
        body += f".p2align 6\nL_role{kind}:\n" + text(ins) + f"L_role{kind}_end:\n"
    rk = reduce_kernel()
    mac, body = compress(body)
    if CFG['fused']:
        t = HDR + "; @launch grid=(256,1,1) block=(256,1,1) lds=163840\n" + DOC
        t += '.amdgcn_target "amdgcn-amd-amdhsa--gfx950"\n' + mac + f".text\n.globl {KN}\n.p2align 8\n.type {KN},@function\n{KN}:\n" + body
        t += '.section .rodata,"a"\n.p2align 6\n' + kd(KN, 512, 256)
        open(out, 'w').write(t); print("size", len(t), file=sys.stderr); return
    t = HDR + f"; @launch kernel={KN} grid=(256,1,1) block=(256,1,1) lds=163840\n; @launch kernel={RN} grid=(576,1,1) block=(256,1,1) lds=0\n"
    t += '.amdgcn_target "amdgcn-amd-amdhsa--gfx950"\n' + mac + f".text\n.globl {KN}\n.p2align 8\n.type {KN},@function\n{KN}:\n" + body
    t += f".globl {RN}\n.p2align 8\n.type {RN},@function\n{RN}:\n" + text(rk.ins)
    t += '.section .rodata,"a"\n.p2align 6\n' + kd(KN, 512, 256) + ".p2align 6\n" + kd(RN, 104, 104, 102)
    open(out, 'w').write(t)
    print("size", len(t), file=sys.stderr)

if __name__ == "__main__":
    kw = eval("dict(" + (sys.argv[2] if len(sys.argv) > 2 else "") + ")")
    main(sys.argv[1], **kw)
```

```python
import sys, re
from s1 import *

ROLE_TAB = [0, 1, 2, 11, 3, 4, 5, 12, 6, 7, 13, 14, 8, 9, 10, 15]
vPFR = v(36)
vPRG = v(36)
PART = 4 * PWAVE
NPART = 17
NA, NM, NS = 10, 1, 11
def set_layout(new):
    global NPART, NA, NM, NS, ROLE_TAB
    if new:
        NPART, NA, NM, NS = 20, 8, 4, 12
        ROLE_TAB = [0, 1, 8, 12, 2, 3, 9, 13, 4, 5, 10, 14, 6, 7, 11, 15]
WSP_BYTES = NPART * 16 * PART
def PSTR(): return 16 * PART + (CFG.get('pskew', 0) if CFG['fused'] else 0)
sJQ, sQ0, sOA1, sOB1 = s(73), s(59), s(74), s(75)
ABN = 4096
STAMP_OFF = 0x3000000
CTRL = 0x2F00000
OOB = 0x10000000

def srd(p, dst, lo, nbytes):
    p.emit([smov(dst[0], s(lo)), salu('s_and_b32', dst[1], s(lo + 1), 0xffff), smov(dst[2], nbytes), smov(dst[3], 0x20000)])
def xdma(j):
    return [salu('s_add_u32', 'm0', s(6), j * 4096), salu('s_add_u32', sT, s(7), j * 128)] + [dma(v(16 + q), sX, sT, q * 1024, tag=('x', j)) for q in range(4)]
def mul(d, a_, b_): return salu('s_mul_i32', d, a_, b_, scc_w=False)
def add(d, a_, b_): return salu('s_add_u32', d, a_, b_)
def shl(d, a_, b_): return salu('s_lshl_b32', d, a_, b_)
def shr(d, a_, b_): return salu('s_lshr_b32', d, a_, b_)
def csel(d, a_, b_): return salu('s_cselect_b32', d, a_, b_, scc_w=False, scc_r=True)

def common_prologue():
    if CFG.get('entry', 0) == 0: return common_prologue_old()
    assert CFG['xe'] == 9 and CFG.get('map', 4) == 4
    p = Prog(); E = p.emit
    E(raw("s_load_dwordx8 s[40:47], s[0:1], 0", wr=[s(40, 8)]))
    E(salu('s_cmp_ge_u32', None, s(2), 256))
    E(raw("s_cbranch_scc0 L_go")); E(raw("s_endpgm")); E(label("L_go"))
    if CFG['stamps']:
        E(raw(f"s_memtime {sT0}", wr=[sT0])); E(raw("s_memrealtime s[96:97]", wr=[s(96, 2)]))
    E(valu('v_lshrrev_b32', v(1), 6, v(0)))
    E(salu('s_and_b32', s(3), s(2), 1)); E(shl(s(3), s(3), 3))
    E(valu('v_readfirstlane_b32', sWAVE, v(1)))
    E(shr(sRB, s(2), 5)); E(salu('s_or_b32', sRB, sRB, s(3)))
    E(valu('v_and_b32', v(0), 63, v(0)))
    E(valu('v_lshrrev_b32', vROWN, 3, v(0)))
    E(valu('v_and_b32', v(20), 7, v(0))); E(valu('v_lshrrev_b32', v(21), 4, v(0)))
    E(valu('v_xor_b32', v(22), v(20), v(21))); E(valu('v_xor_b32', v(23), 4, v(22)))
    E(salu('s_movk_i32', s(3), 1152, scc_w=False)); E(valu('v_mul_u32_u24', v(24), s(3), vROWN))
    E(valu('v_lshl_add_u32', v(16), v(22), 4, v(24))); E(valu('v_lshl_add_u32', v(17), v(23), 4, v(24)))
    E(valu('v_add_u32', v(17), 8 * 1152 - 1024, v(17)))
    E(valu('v_add_u32', v(18), 2 * (8 * 1152 - 1024), v(16))); E(valu('v_add_u32', v(19), 2 * (8 * 1152 - 1024), v(17)))
    E(mul(s(6), sWAVE, XW)); E(raw("s_lshl2_add_u32 s7, s64, s62", 'salu', wr=[s(7)], rd=[sRB, sWAVE])); E(mul(sT, s(7), 32 * 1152))
    E(smov('m0', s(6))); E(add(s(7), sT, 9 * 128))
    E(smov(sX[2], 2359296)); E(smov(sX[3], 0x20000))
    E(raw("s_waitcnt lgkmcnt(0)"))
    E(smov(sX[0], s(40))); E(salu('s_and_b32', sX[1], s(41), 0xffff))
    E(label("L_xl"))
    n0 = len(p.vm)
    for q in range(4): E(dma(v(16 + q), sX, sT, q * 1024))
    del p.vm[n0:]
    for j in range(9): p.vm += [('x', j)] * 4
    E(add(sT, sT, 128)); E(add('m0', 'm0', 4096)); E(salu('s_cmp_lt_u32', None, sT, s(7))); E(raw("s_cbranch_scc1 L_xl"))
    return p
def common_prologue2(p):
    E = p.emit
    tab = ROLE_TAB
    lo = sum(tab[i] << (4 * i) for i in range(8)); hi = sum(tab[8 + i] << (4 * i) for i in range(8))
    E(salu('s_bfe_u32', s(3), s(2), (2 << 16) | 3)); E(salu('s_bfe_u32', s(4), s(2), (1 << 16) | 1))
    E(shl(s(4), s(4), 2)); E(salu('s_or_b32', s(3), s(3), s(4))); E(shl(s(3), s(3), 2))
    E(salu('s_bitcmp1_b32', None, s(2), 2))
    E(smov(s(4), lo)); E(csel(s(4), hi, s(4)))
    E(shr(s(4), s(4), s(3))); E(salu('s_and_b32', sROLE, s(4), 15))
    E(raw(f"s_getpc_b64 {sPC}", wr=[sPC])); E(label("L_pc"))
    E(smov(s(4), "L_roleA-L_pc")); E(smov(s(5), "L_roleA_end-L_pc-4"))
    E(salu('s_cmp_ge_u32', None, sROLE, NA)); E(csel(s(4), "L_roleM-L_pc", s(4))); E(csel(s(5), "L_roleM_end-L_pc-4", s(5)))
    E(salu('s_cmp_ge_u32', None, sROLE, NA + NM)); E(csel(s(4), "L_roleF-L_pc", s(4))); E(csel(s(5), "L_roleF_end-L_pc-4", s(5)))
    n0 = CFG.get('code0', 16); NL = CFG.get('codelines', 24)
    if n0:
        E(mul(s(3), sWAVE, n0 * 128)); E(add(s(3), s(3), s(4)))
        E(valu('v_min_u32', v(2), n0 - 1, v(0))); E(valu('v_lshlrev_b32', v(2), 7, v(2))); E(valu('v_add_u32', v(2), s(3), v(2)))
        E(I(f"global_load_dword {vDUM}, v2, {sPC}", 'vload', wr=vDUM.regs(), rd=vr(2) + sPC.regs(), tag='pf'))
    E(salu('s_and_b32', s(3), sRB, 7)); E(shl(s(3), s(3), 2)); E(add(s(3), s(3), sWAVE))
    E(mul(s(3), s(3), NL * 128)); E(add(s(3), s(3), s(4)))
    E(valu('v_min_u32', v(2), NL - 1, v(0))); E(valu('v_lshlrev_b32', v(2), 7, v(2))); E(valu('v_add_u32', v(2), s(3), v(2)))
    E(valu('v_min_u32', v(3), s(5), v(2)))
    E(I(f"global_load_dword {vDUM}, v3, {sPC}", 'vload', wr=vDUM.regs(), rd=vr(3) + sPC.regs(), tag='pf'))
def common_prologue3(p):
    E = p.emit
    E(raw("s_load_dwordx2 s[48:49], s[0:1], 32", wr=[s(48, 2)]))
    E(raw("s_load_dwordx8 s[52:59], s[0:1], 48", wr=[s(52, 8)]))
    E(raw("s_load_dwordx2 s[50:51], s[0:1], 80", wr=[s(50, 2)]))
    srd(p, sK, 42, 8388608); srd(p, sV, 44, 8388608); srd(p, sWQ, 46, 4718592)
    E(mul(sW8704, sWAVE, 8 * PP)); E(mul(sWC, sWAVE, PP)); E(add(sWC, sWC, 32 * PP))
    E(shl(sW8192, sWAVE, 13)); E(shl(sWCH, sWAVE, 10)); E(add(sWCH, sWCH, 32768))
    E(mul(sW2176, sWAVE, 2 * PP)); E(mul(sW4352, sWAVE, 4 * PP)); E(add(sWA2, sW2176, 16 * PP))
    E(raw("s_waitcnt lgkmcnt(0)"))
    srd(p, sWO, 48, 4718592)
    srd(p, sW1, 52, 5308416); srd(p, sW2, 54, 5308416); srd(p, sWS, 50, 0x10000000 if (CFG['stamps'] or CFG['fused']) else WSP_BYTES)
    srd(p, sOUT, 56, 2359296); srd(p, sDBG, 58, 256)

def common_prologue_old():
    p = Prog(); E = p.emit
    E(salu('s_cmp_ge_u32', None, s(2), 256))
    E(raw("s_cbranch_scc0 L_go")); E(raw("s_endpgm")); E(label("L_go"))
    E(raw("s_load_dwordx8 s[40:47], s[0:1], 0", wr=[s(40, 8)]))
    E(raw("s_load_dwordx2 s[48:49], s[0:1], 32", wr=[s(48, 2)]))
    E(raw("s_load_dwordx8 s[52:59], s[0:1], 48", wr=[s(52, 8)]))
    E(raw("s_load_dwordx2 s[50:51], s[0:1], 80", wr=[s(50, 2)]))
    if CFG['stamps']:
        E(raw(f"s_memtime {sT0}", wr=[sT0])); E(raw("s_memrealtime s[96:97]", wr=[s(96, 2)]))
    tab = ROLE_TAB
    if CFG.get('map', 4) == 41:
        t4 = CFG.get('t41', [11, 0, 1, 2, 12, 3, 4, 5, 13, 14, 6, 7, 15, 10, 8, 9])
        lo = sum(t4[i] << (4 * i) for i in range(8)); hi = sum(t4[8 + i] << (4 * i) for i in range(8))
        E(shr(s(3), s(2), 6)); E(salu('s_bfe_u32', s(4), s(2), (1 << 16) | 1))
        E(shl(s(4), s(4), 2)); E(salu('s_or_b32', s(3), s(3), s(4))); E(shl(s(3), s(3), 2))
        E(salu('s_bitcmp1_b32', None, s(2), 2)); E(smov(s(4), lo)); E(csel(s(4), hi, s(4)))
        E(shr(s(4), s(4), s(3))); E(salu('s_and_b32', sROLE, s(4), 15))
        E(salu('s_and_b32', s(3), s(2), 1)); E(shl(s(3), s(3), 3))
        E(salu('s_bfe_u32', sRB, s(2), (3 << 16) | 3)); E(salu('s_or_b32', sRB, sRB, s(3)))
    elif CFG.get('map', 4) == 8:
        t8 = [0, 1, 2, 3, 4, 10, 11, 12, 5, 6, 7, 8, 9, 13, 14, 15]
        lo = sum(t8[i] << (4 * i) for i in range(8)); hi = sum(t8[8 + i] << (4 * i) for i in range(8))
        E(salu('s_bfe_u32', s(3), s(2), (3 << 16) | 3)); E(shl(s(3), s(3), 2))
        E(salu('s_bitcmp1_b32', None, s(2), 2)); E(smov(s(4), lo)); E(csel(s(4), hi, s(4)))
        E(shr(s(4), s(4), s(3))); E(salu('s_and_b32', sROLE, s(4), 15))
        E(salu('s_and_b32', s(3), s(2), 1)); E(shl(s(3), s(3), 3)); E(salu('s_and_b32', s(4), s(2), 2)); E(shl(s(4), s(4), 1))
        E(shr(sRB, s(2), 6)); E(salu('s_or_b32', sRB, sRB, s(3))); E(salu('s_or_b32', sRB, sRB, s(4)))
    elif CFG.get('map', 4) == 2:
        t2 = [0, 1, 2, 3, 4, 11, 5, 12, 6, 13, 7, 14, 8, 15, 9, 10]
        lo = sum(t2[i] << (4 * i) for i in range(8)); hi = sum(t2[8 + i] << (4 * i) for i in range(8))
        E(salu('s_bfe_u32', s(3), s(2), (1 << 16) | 3)); E(salu('s_and_b32', s(4), s(2), 3)); E(shl(s(4), s(4), 1)); E(salu('s_or_b32', s(3), s(3), s(4))); E(shl(s(3), s(3), 2))
        E(salu('s_bitcmp1_b32', None, s(2), 2)); E(smov(s(4), lo)); E(csel(s(4), hi, s(4)))
        E(shr(s(4), s(4), s(3))); E(salu('s_and_b32', sROLE, s(4), 15)); E(shr(sRB, s(2), 4))
    else:
        lo = sum(tab[i] << (4 * i) for i in range(8)); hi = sum(tab[8 + i] << (4 * i) for i in range(8))
        E(salu('s_bfe_u32', s(3), s(2), (2 << 16) | 3)); E(salu('s_bfe_u32', s(4), s(2), (1 << 16) | 1))
        E(shl(s(4), s(4), 2)); E(salu('s_or_b32', s(3), s(3), s(4))); E(shl(s(3), s(3), 2))
        E(salu('s_bitcmp1_b32', None, s(2), 2))
        E(smov(s(4), lo)); E(csel(s(4), hi, s(4)))
        E(shr(s(4), s(4), s(3))); E(salu('s_and_b32', sROLE, s(4), 15))
        E(salu('s_and_b32', s(3), s(2), 1)); E(shl(s(3), s(3), 3))
        E(shr(sRB, s(2), 5)); E(salu('s_or_b32', sRB, sRB, s(3)))
    E(valu('v_lshrrev_b32', v(1), 6, v(0)))
    E(valu('v_readfirstlane_b32', sWAVE, v(1)))
    E(valu('v_and_b32', v(0), 63, v(0)))
    E(valu('v_lshrrev_b32', vROWN, 3, v(0)))
    E(valu('v_and_b32', v(20), 7, v(0))); E(valu('v_lshrrev_b32', v(21), 4, v(0)))
    E(valu('v_xor_b32', v(22), v(20), v(21))); E(valu('v_xor_b32', v(23), 4, v(22)))
    E(smov(s(3), 1152)); E(valu('v_mul_u32_u24', v(24), s(3), vROWN))
    E(valu('v_lshl_add_u32', v(16), v(22), 4, v(24))); E(valu('v_lshl_add_u32', v(17), v(23), 4, v(24)))
    E(valu('v_add_u32', v(17), 8 * 1152 - 1024, v(17)))
    E(valu('v_add_u32', v(18), 2 * (8 * 1152 - 1024), v(16))); E(valu('v_add_u32', v(19), 2 * (8 * 1152 - 1024), v(17)))
    E(mul(s(6), sWAVE, XW))
    E(shl(s(7), sRB, 2)); E(add(s(7), s(7), sWAVE)); E(mul(s(7), s(7), 32 * 1152))
    E(raw(f"s_getpc_b64 {sPC}", wr=[sPC])); E(label("L_pc"))
    E(smov(s(4), "L_roleA-L_pc")); E(smov(s(5), "L_roleA_end-L_pc-4"))
    E(salu('s_cmp_ge_u32', None, sROLE, NA)); E(csel(s(4), "L_roleM-L_pc", s(4))); E(csel(s(5), "L_roleM_end-L_pc-4", s(5)))
    E(salu('s_cmp_ge_u32', None, sROLE, NA + NM)); E(csel(s(4), "L_roleF-L_pc", s(4))); E(csel(s(5), "L_roleF_end-L_pc-4", s(5)))
    def code_pf():
        NL = CFG.get('codelines', 24)
        E(salu('s_and_b32', s(3), sRB, 7)); E(shl(s(3), s(3), 2)); E(add(s(3), s(3), sWAVE))
        E(mul(s(3), s(3), NL * 128)); E(add(s(3), s(3), s(4)))
        E(valu('v_min_u32', v(2), NL - 1, v(0))); E(valu('v_lshlrev_b32', v(2), 7, v(2))); E(valu('v_add_u32', v(2), s(3), v(2)))
        E(valu('v_min_u32', v(3), s(5), v(2)))
        E(I(f"global_load_dword {vDUM}, v3, {sPC}", 'vload', wr=vDUM.regs(), rd=vr(3) + sPC.regs(), tag='pf'))
    if CFG.get('codepf', 3) >= 3:
        n0 = CFG.get('code0', 16)
        if n0:
            E(mul(s(3), sWAVE, n0 * 128)); E(add(s(3), s(3), s(4)))
            E(valu('v_min_u32', v(2), n0 - 1, v(0))); E(valu('v_lshlrev_b32', v(2), 7, v(2))); E(valu('v_add_u32', v(2), s(3), v(2)))
            E(I(f"global_load_dword {vDUM}, v2, {sPC}", 'vload', wr=vDUM.regs(), rd=vr(2) + sPC.regs(), tag='pf'))
        code_pf()
    E(raw("s_waitcnt lgkmcnt(0)"))
    srd(p, sX, 40, 2359296)
    if CFG.get('xt'):
        nch = CFG['xt']
        E(salu('s_bfe_u32', s(3), s(2), (2 << 16) | 3)); E(mul(s(3), s(3), 128 * nch)); E(add(s(3), s(3), 128 * (9 - 4 * nch))); E(add(s(3), s(3), s(7)))
        E(valu('v_and_b32', v(2), 31, v(0))); E(valu('v_mul_u32_u24', v(2), 1152, v(2)))
        if nch == 2:
            E(valu('v_lshrrev_b32', v(3), 5, v(0))); E(valu('v_lshl_add_u32', v(2), v(3), 7, v(2)))
        ld = bload('buffer_load_dword', vDUM, v(2), sX, s(3)); ld.tag = 'pf'; E(ld)
    nx0 = CFG.get('tx', 2) if CFG.get('touch') else 0
    for j in range(nx0): E(xdma(j))
    if CFG.get('touch'):
        E(salu('s_cmp_gt_u32', None, sROLE, 10))
        E(raw("s_cselect_b64 s[60:61], s[52:53], s[46:47]", 'salu', wr=[s(60, 2)], rd=[s(52, 2), s(46, 2)]))
        E(raw("s_cselect_b64 s[66:67], s[54:55], s[48:49]", 'salu', wr=[s(66, 2)], rd=[s(54, 2), s(48, 2)]))
        E(salu('s_cmp_eq_u32', None, sWAVE, 1)); E(raw("s_cselect_b64 s[60:61], s[66:67], s[60:61]", 'salu', wr=[s(60, 2)], rd=[s(66, 2), s(60, 2)]))
        E(salu('s_cmp_eq_u32', None, sWAVE, 2)); E(raw("s_cselect_b64 s[60:61], s[42:43], s[60:61]", 'salu', wr=[s(60, 2)], rd=[s(42, 2), s(60, 2)]))
        E(salu('s_cmp_eq_u32', None, sWAVE, 3)); E(raw("s_cselect_b64 s[60:61], s[44:45], s[60:61]", 'salu', wr=[s(60, 2)], rd=[s(44, 2), s(60, 2)]))
        E(smov(s(3), 73728)); E(salu('s_cmp_ge_u32', None, sWAVE, 2)); E(csel(s(3), 131072, s(3)))
        E(valu('v_mul_u32_u24', v(2), s(3), v(0)))
        E(I(f"global_load_dword {vDUM}, v2, s[60:61]", 'vload', wr=vDUM.regs(), rd=vr(2) + sr(60, 2), tag='pf'))
    for j in range(nx0, CFG['xe']): E(xdma(j))
    if CFG.get('codepf', 3) == 1: code_pf()
    if CFG.get('codepf', 3) == 2:
        E(valu('v_mov_b32', v(46), v(3))); E(raw(f"s_mov_b64 s[100:101], {sPC}", 'salu', wr=[s(100, 2)], rd=[sPC]))
    srd(p, sK, 42, 8388608); srd(p, sV, 44, 8388608); srd(p, sWQ, 46, 4718592); srd(p, sWO, 48, 4718592)
    srd(p, sW1, 52, 5308416); srd(p, sW2, 54, 5308416); srd(p, sWS, 50, 0x10000000 if (CFG['stamps'] or CFG['fused']) else WSP_BYTES)
    srd(p, sOUT, 56, 2359296); srd(p, sDBG, 58, 256)
    E(mul(sW8704, sWAVE, 8 * PP)); E(mul(sWC, sWAVE, PP)); E(add(sWC, sWC, 32 * PP))
    E(shl(sW8192, sWAVE, 13)); E(shl(sWCH, sWAVE, 10)); E(add(sWCH, sWCH, 32768))
    E(mul(sW2176, sWAVE, 2 * PP)); E(mul(sW4352, sWAVE, 4 * PP)); E(add(sWA2, sW2176, 16 * PP))
    return p

def dispatch_text():
    return f""" s_cmp_ge_u32 {sROLE}, {NA + NM}
 s_cbranch_scc1 L_roleF
 s_cmp_ge_u32 {sROLE}, {NA}
 s_getpc_b64 s[94:95]
L_pc2:
 s_cbranch_scc1 L_jM
 s_add_u32 s94, s94, L_roleA-L_pc2
 s_addc_u32 s95, s95, 0
 s_setpc_b64 s[94:95]
L_jM:
 s_add_u32 s94, s94, L_roleM-L_pc2
 s_addc_u32 s95, s95, 0
 s_setpc_b64 s[94:95]
"""

def pfload(srd_, base):
    ld = bload('buffer_load_dword', vDUM, vPF, srd_, base); ld.tag = 'pf'; return ld
def pf_lin(srd_, base_s, start, nbytes, nl=64):
    def f():
        return [valu('v_lshrrev_b32', vPF2, 16, vTID), valu('v_and_b32', vPF, 63, vTID), valu('v_min_u32', vPF, nl - 1, vPF),
                valu('v_mad_u32_u24', vPF, vPF2, nl, vPF), valu('v_lshlrev_b32', vPF, 7, vPF), valu('v_add_u32', vPF, start, vPF),
                valu('v_min_u32', vPF, nbytes - 128, vPF), pfload(srd_, base_s)]
    return f
def pf_run(srd_, base_s, nbytes, nl):
    def f():
        return [valu('v_min_u32', vPF, nbytes - 128, vPFR), valu('v_add_u32', vPFR, 64 * nl * 128, vPFR), pfload(srd_, base_s)]
    f.nl = nl
    return f
def vPFW(kind): return {'F': v(8), 'A': v(7), 'M': v(36)}[kind]
def pf_row(kind, srd_, step=128):
    def f():
        ld = bload('buffer_load_dword', vDUM, vPFW(kind), srd_, sPW); ld.tag = 'pf'
        return [add(sPW, sPW, step), ld]
    return f
def pf_row_setup(kind, pitch, nl, base, lit):
    r = vPFW(kind)
    return [valu('v_bfe_u32', vPF2, vTID, 16, 5), valu('v_and_b32', r, 63, vTID), valu('v_min_u32', r, nl - 1, r),
            valu('v_mad_u32_u24', r, vPF2, nl, r), smov(sT2, pitch), valu('v_mul_u32_u24', r, sT2, r), add(sPW, base, lit)]
def pf_code(la, lb, nl):
    def f():
        L = f"L_cp{pf_code.k}"; pf_code.k += 1
        ld = I(f"global_load_dword {vDUM}, {vPF}, {sPC}", 'vload', wr=vDUM.regs(), rd=vPF.regs() + sPC.regs(), units=3, tag='pf')
        return [raw(f"s_getpc_b64 {sPC}", 'salu', wr=[sPC]), label(L),
                salu('s_add_u32', sPC[0], sPC[0], f"{la}-{L}"), salu('s_addc_u32', sPC[1], sPC[1], 0, scc_r=True),
                valu('v_bfe_u32', vPF2, vTID, 16, 5), valu('v_and_b32', vPF, 63, vTID), valu('v_min_u32', vPF, nl - 1, vPF),
                valu('v_mad_u32_u24', vPF, vPF2, nl, vPF), valu('v_lshlrev_b32', vPF, 7, vPF), valu('v_min_u32', vPF, f"{lb}-{la}-4", vPF), ld]
    return f
pf_code.k = 0
def pf_sched(R, k0, srd_, base_s, nbytes, nl):
    per = 64 * nl * 128; k = k0
    for st in range(0, nbytes, per):
        R.pf.setdefault(k, []).append(pf_lin(srd_, base_s, st, nbytes, nl)); k += 1
    return k

def role_prologue(R, vm_before):
    p = R.p; E = p.emit; kind = R.kind
    p.vm = list(vm_before)
    MS = CFG['shape'] == 'M'
    def PS(k):
        if CFG['stamps'] == 1: R.stamp(k)
    if CFG.get('delayrole') is not None:
        for r_ in CFG['delayrole']:
            E(salu('s_cmp_eq_u32', None, sROLE, r_[0])); E(raw(f"s_cbranch_scc0 L_{kind}_nd{r_[0]}"))
            E(smov(sLC, r_[1])); E(label(f"L_{kind}_dl{r_[0]}")); E(raw("s_sleep 127")); E(salu('s_sub_u32', sLC, sLC, 1)); E(salu('s_cmp_lg_u32', None, sLC, 0)); E(raw(f"s_cbranch_scc1 L_{kind}_dl{r_[0]}"))
            E(label(f"L_{kind}_nd{r_[0]}"))
    PS(56)
    lane = v(0)
    ILV = CFG.get('ilv') and not MS
    setup = []
    if ILV:
        E(valu('v_lshrrev_b32', v(48), 4, lane)); E(valu('v_and_b32', v(49), 15, lane)); E(valu('v_bfe_u32', v(50), lane, 1, 3)); E(valu('v_xor_b32', v(50), v(50), v(48)))
        E(valu('v_lshlrev_b32', v(49), 7, v(49))); E(valu('v_add_u32', v(49), s(6), v(49)))
        E(valu('v_lshl_add_u32', v(20), v(50), 4, v(49))); E(valu('v_xor_b32', v(21), 64, v(20)))
        def E(i):
            if isinstance(i, (list, tuple)):
                for x in i: E(x)
            else: setup.append(i)
    E(shl(sT2, sRB, 2)); E(add(sT2, sT2, sWAVE)); E(shl(sT2, sT2, 16)); E(valu('v_or_b32', vTID, sT2, lane))
    if kind in 'AM' and CFG.get('pair'):
        sHP_, sHS_ = s(86), s(85)
        if CFG.get('l844'): E(shl(sHP_, sROLE, 1)); E(add(sHP_, sHP_, 8))
        else: E(mul(sHP_, sROLE, 3))
        if kind == 'A':
            sHP_, sHS_ = sFA, sFC
            E(mul(sHS_, sROLE, 3)); E(salu('s_and_b32', s(4), sROLE, 1)); E(add(sHP_, sHS_, s(4)))
            E(shl(s(4), s(4), 1)); E(add(sHS_, sHS_, 2)); E(salu('s_sub_u32', sHS_, sHS_, s(4)))
            E(salu('s_sub_u32', sJQ, sHS_, sHP_)); E(shl(sJQ, sJQ, 8)); E(salu('s_sub_u32', sJQ, sJQ, 3 * 128))
        E(shl(sQ0, sHP_, 8))
        E(mul(sQA, sWAVE, 64 * 8192)); E(add(sQA, sQA, sQ0))
        E(shl(sQC, sWAVE, 16)); E(add(sQC, sQC, sQ0)); E(add(sQC, sQC, 256 * 8192))
        E(shr(s(3), sWAVE, 1)); E(shl(s(3), s(3), 13)); E(salu('s_and_b32', s(4), sWAVE, 1)); E(shl(s(4), s(4), 11)); E(add(s(3), s(3), s(4)))
        E(salu('s_sub_u32', s(3), s(3), 64)); E(shl(s(4), sWAVE, 11))
        for e, (h_, pfr) in enumerate([(sHP_, sPFa), (sHS_, sPFb)][:2 if kind == 'A' else 1]):
            E(shr(pfr, h_, 1)); E(shl(pfr, pfr, 19)); E(add(pfr, pfr, 1536 * 256))
            E(add(sKb[e], pfr, s(4))); E(add(sVb[e], pfr, s(3)))
        E(mul(sPFc, sROLE, 384 * 1152) if kind == 'A' else mul(sPFc, sHP_, 128 * 1152))
        if kind == 'A':
            E(mul(sHP_, sHP_, 128 * 1152)); E(mul(sHS_, sHS_, 128 * 1152))
            E(mul(sOA, sWAVE, 32 * 1152)); E(add(sOA1, sOA, sHS_)); E(add(sOA, sOA, sHP_))
            E(salu('s_sub_u32', sOA1, sOA1, 64 * 1152)); E(add(sT3, sOA, 192 * 1152)); E(salu('s_cmp_lt_u32', None, sWAVE, 2)); E(csel(sOA1, sT3, sOA1))
            E(shr(s(3), sWAVE, 1)); E(shl(s(3), s(3), 2)); E(salu('s_and_b32', s(4), sWAVE, 1)); E(add(s(3), s(3), s(4)))
            E(mul(sOB, s(3), 8 * 1152)); E(add(sOB1, sOB, sHS_)); E(add(sOB1, sOB1, 64 * 1152)); E(add(sOB, sOB, sHP_)); E(add(sOB, sOB, 128 * 1152))
        else:
            E(mul(sOA, sWAVE, 64 * 1152)); E(add(sOA, sOA, sPFc))
    elif kind in 'AM':
        E(mul(sT3, sROLE, 3 * 256))
        E(mul(sQA, sWAVE, 64 * 8192)); E(add(sQA, sQA, sT3))
        E(shl(sQC, sWAVE, 16)); E(add(sQC, sQC, sT3)); E(add(sQC, sQC, 256 * 8192))
        E(shr(s(3), sWAVE, 1)); E(shl(s(3), s(3), 13)); E(salu('s_and_b32', s(4), sWAVE, 1)); E(shl(s(4), s(4), 11)); E(add(s(3), s(3), s(4)))
        E(salu('s_sub_u32', s(3), s(3), 64)); E(shl(s(4), sWAVE, 11))
        if MS: E(shl(s(3), sWAVE, 12))
        for e in range(3 if kind == 'A' else 2):
            E(mul(sT3, sROLE, 3)); E(add(sT3, sT3, e)); E(shr(sT3, sT3, 1)); E(shl(sT3, sT3, 19)); E(add(sT3, sT3, 1536 * 256))
            if e == 0: E(smov(sPFa, sT3))
            if e == (2 if kind == 'A' else 1): E(smov(sPFb, sT3))
            E(add(sKb[e], sT3, s(4))); E(add(sVb[e], sT3, s(3)))
        E(mul(sPFc, sROLE, 384 * 1152))
        if kind == 'A':
            E(mul(sOA, sWAVE, 32 * 1152)); E(add(sOA, sOA, sPFc))
            E(shr(s(3), sWAVE, 1)); E(shl(s(3), s(3), 2)); E(salu('s_and_b32', s(4), sWAVE, 1)); E(add(s(3), s(3), s(4)))
            E(mul(sOB, s(3), 8 * 1152)); E(add(sOB, sOB, sPFc)); E(add(sOB, sOB, 128 * 1152))
        else:
            E(mul(sOA, sWAVE, 64 * 1152)); E(add(sOA, sOA, sPFc))
    if kind in 'FM':
        if kind == 'F':
            E(salu('s_sub_u32', s(3), sROLE, NA + NM)); E(mul(sPF1, s(3), 13 * 128)); E(shl(sPF1h, s(3), 6)); E(add(sPF1h, sPF1h, 69 * 128))
        elif CFG.get('l844'):
            E(mul(sPF1, sROLE, 5 * 128)); E(add(sPF1, sPF1, (52 - 40) * 128)); E(smov(sPF1h, sPF1))
        else:
            E(smov(sPF1, f_fullcol(5) * 2)); E(smov(sPF1h, f_halfcol(5) * 2))
        E(mul(sHA, sWAVE, 64 * 9216)); E(add(sHA, sHA, sPF1))
        E(mul(sHC, sWAVE, 8 * 9216)); E(add(sHC, sHC, sPF1)); E(add(sHC, sHC, 256 * 9216))
        E(mul(sHH, sWAVE, 128 * 9216)); E(add(sHH, sHH, sPF1h))
        E(mul(sHHC, sWAVE, 16 * 9216)); E(add(sHHC, sHHC, sPF1h)); E(add(sHHC, sHHC, 512 * 9216))
        E(mul(sPF2, sPF1, 576)); E(mul(sPF2h, sPF1h, 576))
        E(mul(sFA, sWAVE, 64 * 1152)); E(add(sFA, sFA, sPF2))
        if MS:
            E(salu('s_and_b32', s(3), sWAVE, 1)); E(shl(s(3), s(3), 1)); E(shr(s(4), sWAVE, 1)); E(add(s(3), s(3), s(4))); E(mul(sFC, s(3), 8 * 1152))
        else: E(mul(sFC, sWAVE, 4 * 1152))
        E(add(sFS, sFC, sPF2h)); E(add(sFC, sFC, sPF2)); E(add(sFC, sFC, 256 * 1152))
    if CFG['pf'] >= 3:
        if kind in 'AM': E(mul(sT3, sROLE, 3 * 256) if not CFG.get('pair') else smov(sT3, sQ0))
        E(pf_row_setup(kind, 8192 if kind in 'AM' else 9216, 18, sT3 if kind in 'AM' else sPF1, 0))
        f_ = pf_row(kind, sWQ if kind in 'AM' else sW1)
        early_pf = [f_()[1]] + f_() + f_()
        if CFG.get('ez'): E(early_pf[0])
        if CFG.get('epf', 1) == 3:
            R.pf.setdefault(0, [])[:0] = [f_, f_]
    E(add(sT3, sROLE, NS - NA if kind == 'F' else 0))
    E(mul(sSt, sT3, PSTR())); E(shl(sT3, sRB, 2)); E(add(sT3, sT3, sWAVE)); E(mul(sT3, sT3, PWAVE)); E(add(sSt, sSt, sT3))
    if kind == 'M': E(add(sSt2, sSt, (NS - NA) * PSTR()))
    if CFG['fused']:
        E(shl(sT2, sRB, 14)); E(add(sT2, sT2, CTRL))
        E(add(sT3, sROLE, NS - NA if kind == 'F' else 0)); E(shl(sT3, sT3, 2)); E(add(sT3, sT3, sT2))
        E(salu('s_cmp_eq_u32', None, sWAVE, 0)); E(csel(sT3, sT3, OOB)); E(csel(sT2, sT2, OOB))
        E(valu('v_and_b32', v(24), 15, lane)); E(valu('v_lshlrev_b32', v(25), 7, v(24))); E(valu('v_add_u32', v(25), 128, v(25)))
        E(raw("v_cmp_eq_u32 vcc, 0, v24", 'valu', wr=['vcc'], rd=[v(24)])); E(valu('v_cndmask_b32', v(25), v(25), 0, 'vcc') if False else raw("v_cndmask_b32 v25, v25, v24, vcc", 'valu', wr=[v(25)], rd=[v(25), v(24), 'vcc']))
        E(valu('v_lshrrev_b32', v(26), 4, lane)); E(valu('v_lshl_add_u32', v(25), v(26), 2 + (NS - NA).bit_length() - 1, v(25))); E(valu('v_add_u32', v(25), sT3, v(25)))
        E(raw(f"s_mov_b64 vcc, {hex(((1 << (NA + 1 + CFG.get('mpriv', 0))) - 1) * (0x10001 if kind == 'M' else 1))}", 'salu', wr=['vcc'])); E(valu('v_mov_b32', vCT, OOB)); E(nop(1))
        E(raw(f"v_cndmask_b32 {vCT}, {vCT}, v25, vcc", 'valu', wr=[vCT], rd=[vCT, v(25), 'vcc']))
        E(valu('v_mov_b32', v(24), vCT))
        if CFG.get('abn'):
            E(valu('v_and_b32', v(26), 15, lane)); E(valu('v_lshlrev_b32', v(26), 8, v(26))); E(add(sT2, sT2, ABN)); E(valu('v_add_u32', v(26), sT2, v(26)))
            if kind == 'A' and CFG.get('bal') == 2:
                E(valu('v_mov_b32', v(27), sROLE))
                for lim, tab, base in ((15, BAL2, 10), (31, BAL3, 21), (47, [BALM[i] if BALM[i] < 36 else BAL3[i] for i in range(10)], 20)):
                    t_ = [x - base for x in tab]
                    E(smov(s(98), sum(t_[i] << (4 * i) for i in range(8)))); E(smov(s(99), t_[8] | (t_[9] << 4)))
                    E(shl(s(4), sROLE, 2)); E(salu('s_lshr_b64', s(98, 2), s(98, 2), s(4))); E(salu('s_and_b32', s(4), s(98), 15)); E(add(s(4), s(4), base))
                    E(valu('v_mov_b32', v(25), s(4)))
                    E(raw(f"v_cmp_lt_u32 vcc, {lim}, v0", 'valu', wr=['vcc'], rd=[lane])); E(raw("v_cndmask_b32 v27, v27, v25, vcc", 'valu', wr=[v(27)], rd=[v(27), v(25), 'vcc']))
            elif kind == 'F' and CFG.get('bal') == 2:
                E(valu('v_mov_b32', v(27), 40))
            elif kind == 'A':
                t_ = [x - 20 for x in ([28, 29, 23, 30, 31, 24, 32, 33, 34, 35] if CFG.get('m3') else [28, 29, 22, 30, 31, 21, 32, 33, 34, 35])]
                E(smov(s(98), sum(t_[i] << (4 * i) for i in range(8)))); E(smov(s(99), t_[8] | (t_[9] << 4)))
                E(shl(s(4), sROLE, 2)); E(salu('s_lshr_b64', s(98, 2), s(98, 2), s(4))); E(salu('s_and_b32', s(4), s(98), 15)); E(add(s(4), s(4), 20))
                E(valu('v_mov_b32', v(27), s(4))); E(add(s(4), sROLE, 10)); E(valu('v_mov_b32', v(25), s(4)))
                E(raw("v_cmp_gt_u32 vcc, 32, v0", 'valu', wr=['vcc'], rd=[lane])); E(raw("v_cndmask_b32 v27, v27, v25, vcc", 'valu', wr=[v(27)], rd=[v(27), v(25), 'vcc']))
                E(valu('v_mov_b32', v(25), sROLE))
                E(raw("v_cmp_gt_u32 vcc, 16, v0", 'valu', wr=['vcc'], rd=[lane])); E(raw("v_cndmask_b32 v27, v27, v25, vcc", 'valu', wr=[v(27)], rd=[v(27), v(25), 'vcc']))
            elif CFG.get('m3') and kind == 'M':
                E(valu('v_lshrrev_b32', v(27), 4, lane)); E(valu('v_min_u32', v(27), 2 if CFG['m3'] == 1 else 1, v(27))); E(valu('v_add_u32', v(27), CFG.get('mb', 20), v(27)))
            elif CFG.get('m3'):
                E(add(s(4), sROLE, 12)); E(salu('s_cmp_lt_u32', None, sROLE, 13)); E(csel(s(4), 40, s(4))); E(valu('v_mov_b32', v(27), s(4)))
            else:
                E(smov(s(4), 20) if kind == 'M' else add(s(4), sROLE, 12)); E(valu('v_mov_b32', v(27), s(4)))
            E(valu('v_lshl_add_u32', v(26), v(27), 2, v(26))); E(valu('v_mov_b32', v(25), 0))
            z = bstore('buffer_store_dword', v(25), v(26), sWS, 0, flags='sc1'); z.tag = 'zero'; E(z)
        else:
            assert not (CFG.get('l844') or CFG.get('four') or CFG.get('nof'))
            E(add(sT2, sT2, 4 * (NPART + 1)))
            def flag(lane_, item):
                E(raw(f"s_lshl2_add_u32 {sT3}, {item}, {sT2}", 'salu', wr=[sT3], rd=[item, sT2]))
                E(raw(f"v_writelane_b32 v24, {sT3}, {lane_}", 'valu', wr=[v(24)], rd=[sT3, v(24)]))
            def tflag(lane_, tab, base):
                t_ = [min(x - base, 15) for x in tab]
                E(smov(s(98), sum(t_[i] << (4 * i) for i in range(8)))); E(smov(s(99), t_[8] | (t_[9] << 4)))
                E(shl(s(4), sROLE, 2)); E(salu('s_lshr_b64', s(98, 2), s(98, 2), s(4))); E(salu('s_and_b32', s(4), s(98), 15)); E(add(s(4), s(4), base)); flag(lane_, s(4))
            if kind == 'A' and CFG.get('bal'):
                flag(32, sROLE); tflag(33, BAL2, 10); tflag(34, BAL3, 21)
                tflag(35, [x if x < 36 else i for i, x in enumerate(BALM)][:0] + [(BALM[i] if BALM[i] < 36 else BAL2[i]) for i in range(10)], 10)
            elif kind == 'A':
                flag(32, sROLE); E(add(s(4), sROLE, 10)); flag(33, s(4)); tflag(34, [28, 29, 22, 30, 31, 21, 32, 33, 34, 35], 20)
            elif kind == 'F' and CFG.get('bal'):
                E(add(s(4), sROLE, 12)); E(salu('s_cmp_lt_u32', None, sROLE, 13)); E(csel(s(4), 41, s(4))); flag(32, s(4))
            else:
                E(smov(s(4), 20) if kind == 'M' else add(s(4), sROLE, 12)); flag(32, s(4))
        E(valu('v_mov_b32', v(25), 0))
        z = bstore('buffer_store_dword', v(25), v(24), sWS, 0, flags='sc1'); z.tag = 'zero'; E(z)
        E(shl(sT2, sRB, 4)); E(salu('s_cmp_eq_u32', None, sWAVE, 0)); E(csel(sT2, sT2, 256))
        E(valu('v_mov_b32', v(23), 256)); E(raw(f"v_writelane_b32 v23, {sT2}, 0", 'valu', wr=[v(23)], rd=[sT2, v(23)]))
    T_ = [v(24), v(25), v(26), v(27), v(28), v(29)]
    q, r, c4, rb1 = T_[0], T_[1], T_[2], T_[3]
    E(valu('v_lshrrev_b32', q, 4, lane)); E(valu('v_bfe_u32', r, lane, 2, 2)); E(valu('v_and_b32', c4, 3, lane)); E(valu('v_bfe_u32', rb1, lane, 3, 1))
    E(valu('v_and_b32', T_[4], 7, lane)); E(valu('v_bfe_u32', T_[5], lane, 4, 1)); E(valu('v_lshlrev_b32', T_[5], 1, T_[5]))
    E(valu('v_xor_b32', T_[4], T_[4], T_[5])); E(valu('v_lshlrev_b32', vSWZ, 4, T_[4]))
    E(valu('v_lshrrev_b32', T_[4], 5, lane)); E(valu('v_and_b32', T_[5], 3, vROWN)); E(valu('v_lshl_add_u32', vROWP, T_[4], 4, T_[5]))
    E(smov(sT2, PP)); E(valu('v_mul_u32_u24', T_[4], sT2, q)); E(valu('v_lshl_add_u32', T_[4], r, 7, T_[4]))
    E(valu('v_lshl_add_u32', T_[4], c4, 3, T_[4])); E(valu('v_lshl_add_u32', vRW[0][0], rb1, 5, T_[4]))
    E(valu('v_mov_b32', vDP, vRW[0][0]))
    if MS:
        E(valu('v_and_b32', T_[4], 7, lane)); E(valu('v_bfe_u32', T_[5], lane, 4, 1)); E(valu('v_lshlrev_b32', T_[5], 2, T_[5]))
        E(valu('v_xor_b32', T_[4], T_[4], T_[5])); E(valu('v_lshlrev_b32', vSWZM, 4, T_[4]))
        E(valu('v_bfe_u32', q, lane, 4, 1)); E(valu('v_lshlrev_b32', q, 5, q))
        E(valu('v_and_b32', T_[4], 1, lane)); E(valu('v_lshl_add_u32', q, T_[4], 4, q))
        E(valu('v_bfe_u32', T_[4], lane, 1, 1)); E(valu('v_lshl_add_u32', q, T_[4], 3, q))
        E(valu('v_lshrrev_b32', T_[5], 5, lane))
        E(smov(sT2, PP)); E(valu('v_mad_u32_u24', T_[4], T_[5], sT2, q)); E(valu('v_lshl_add_u32', T_[4], r, 7, T_[4]))
        E(valu('v_lshl_add_u32', vRW[0][0], rb1, 6, T_[4])); E(valu('v_xor_b32', rb1, 1, rb1)); E(valu('v_lshl_add_u32', vRW[0][1], rb1, 6, T_[4]))
        if kind in 'FM':
            E(valu('v_lshl_add_u32', vRH[0], T_[5], 9, q)); E(valu('v_lshl_add_u32', vRH[0], r, 6, vRH[0]))
            E(valu('v_lshlrev_b32', T_[4], 4, c4)); E(valu('v_lshrrev_b32', T_[5], 2, lane)); E(smov(sT2, 9216))
            E(valu('v_mad_u32_u24', vOFFH, T_[5], sT2, T_[4]))
        E(valu('v_lshrrev_b32', q, 4, lane))
    else:
        E(valu('v_xor_b32', vRW[0][1], 32, vRW[0][0]))
    for b in (1, 2):
        for T in range(2): E(valu('v_add_u32', vRW[b][T], 65536 * b, vRW[0][T]))
    if kind in 'FM' and not MS:
        E(valu('v_lshlrev_b32', T_[4], 9, q)); E(valu('v_lshl_add_u32', T_[4], r, 6, T_[4])); E(valu('v_lshl_add_u32', T_[4], c4, 3, T_[4]))
        E(valu('v_and_b32', T_[5], 1, q)); E(valu('v_lshl_add_u32', vRH[0], T_[5], 5, T_[4])); E(valu('v_xor_b32', vRH[1], 32, vRH[0]))
        E(valu('v_lshrrev_b32', T_[4], 5, lane)); E(valu('v_lshlrev_b32', T_[4], 1, T_[4])); E(valu('v_xor_b32', T_[4], T_[4], c4))
        E(valu('v_lshlrev_b32', T_[4], 4, T_[4])); E(valu('v_lshrrev_b32', T_[5], 2, lane)); E(smov(sT2, 9216))
        E(valu('v_mad_u32_u24', vOFFH, T_[5], sT2, T_[4]))
    if kind in 'AM':
        E(valu('v_and_b32', T_[4], 15, lane)); E(valu('v_xor_b32', T_[4], T_[4], q)); E(valu('v_lshlrev_b32', T_[4], 4, T_[4]))
        E(valu('v_lshl_add_u32', vOFFK, q, 8, T_[4]))
    E(set_offw(8192 if kind in 'AM' else 9216, 'M' if MS else 'S'))
    if MS:
        XA = [v(20), v(21), v(22), v(39)]
        E(valu('v_and_b32', T_[4], 31, lane)); E(valu('v_bfe_u32', T_[5], lane, 1, 3)); E(valu('v_lshrrev_b32', q, 5, lane)); E(valu('v_xor_b32', T_[5], T_[5], q))
        E(valu('v_lshlrev_b32', T_[4], 7, T_[4])); E(valu('v_add_u32', T_[4], s(6), T_[4]))
        E(valu('v_lshl_add_u32', XA[0], T_[5], 4, T_[4]))
        for tt in range(1, 4): E(valu('v_xor_b32', XA[tt], 32 * tt, XA[0]))
    else:
        E(valu('v_and_b32', T_[4], 15, lane)); E(valu('v_bfe_u32', T_[5], lane, 1, 3)); E(valu('v_xor_b32', T_[5], T_[5], q))
        E(valu('v_lshlrev_b32', T_[4], 7, T_[4])); E(valu('v_add_u32', T_[4], s(6), T_[4]))
        E(valu('v_lshl_add_u32', v(20), T_[5], 4, T_[4])); E(valu('v_xor_b32', v(21), 64, v(20)))
        if kind in 'AM':
            E(smov(sT2, PP)); E(valu('v_mul_u32_u24', v(22), sT2, r)); E(valu('v_lshl_add_u32', v(22), c4, 8, v(22)))
            E(valu('v_xor_b32', T_[4], q, c4)); E(valu('v_lshl_add_u32', v(22), T_[4], 4, v(22)))
    E(valu('v_lshlrev_b32', vLANE16, 4, lane))
    if CFG['stamps'] == 2: E(valu('v_mov_b32', vSTAMP, 0))
    if CFG['fused'] and CFG.get('rep') and kind in 'FM':
        E(rep_addr(kind, v(24), v(25))); E(valu('v_mov_b32', v(25), 0))
        z = bstore('buffer_store_dword', v(25), v(24), sWS, 0, flags='sc1'); z.tag = 'zero'; E(z)
    E = p.emit
    sONE = s(97) if ILV else sT2
    SA = 56 if ILV else 28
    for i in range(8): E(valu('v_mov_b32', v(SA + i), 0))
    E(smov(sONE, 0x3f803f80))
    def stats(j):
        for tt in range(2):
            for g in range(2):
                for qd in range(4):
                    x = X(2 * j + tt, g)[qd]
                    E(valu('v_dot2c_f32_bf16', v(SA + 2 * g + (qd & 1)), sONE, x, rmw=True))
                    E(valu('v_dot2c_f32_bf16', v(SA + 4 + 2 * g + (qd & 1)), x, x, rmw=True))
    PS(57)
    for j in range(9):
        E(waitvm(p.vm_wait_for(lambda t: t == ('x', j))))
        if j == 0: PS(58)
        if MS:
            for tt in range(4): E(ds_b128(XM(4 * j + tt), XA[tt], j * 4096))
        else:
            for tt in range(2):
                for g in range(2): E(ds_b128(X(2 * j + tt, g), v(20 + tt), j * 4096 + g * 2048))
        if j + CFG['xe'] < 9: E(xdma(j + CFG['xe']))
        if CFG['pf'] >= 3 and CFG.get('epf', 1) == 1 and j == max(8 - CFG['xe'], 0): E(early_pf)
        if ILV:
            nper = -(-len(setup) // max(CFG['ilv'] - j, 1))
            while nper < len(setup) and (SCC in setup[nper].rd or setup[nper].txt.startswith('s_cselect') or VCC in setup[nper].rd): nper += 1
            E(setup[:nper]); del setup[:nper]
        if j >= 1:
            E(waitlg(4)); stats(j - 1)
    E(waitlg(0)); PS(59); E(barrier())
    if CFG.get('codepf', 3) == 2: E(I(f"global_load_dword {vDUM}, v46, s[100:101]", 'vload', wr=vDUM.regs(), rd=vr(46) + sr(100, 2), tag='pf'))
    if CFG['pf'] >= 3 and CFG.get('epf', 1) == 2: E(early_pf)
    pend = []
    for k in range(2 if CFG.get('pro2') else 3):
        st = R.stages[k]
        if st.pre_dma: pend.append(st.pre_dma())
        pend += st.dma(k, False)
    if CFG.get('epf', 1) == 4: pend[CFG.get('epos', 9):CFG.get('epos', 9)] = [early_pf[1:3], early_pf[3:5]]
    d0 = CFG.get('d0', 9)
    for it in pend[:d0]: E(it)
    pend = pend[d0:]
    PS(60)
    stats(8)
    acc4 = [v(SA), v(SA + 2), v(SA + 4), v(SA + 6)]
    for x in acc4: E(valu('v_add_f32', x, x, v(x.n + 1)))
    if MS:
        for b_ in (0, 2):
            E(valu('v_add_f32', acc4[b_], acc4[b_], acc4[b_ + 1]))
        for b_ in (0, 2): E(valu('v_mov_b32', acc4[b_ + 1], acc4[b_]))
    for op in (('v_permlane32_swap_b32',) if MS else ('v_permlane16_swap_b32', 'v_permlane32_swap_b32')):
        for x in acc4: E(valu('v_mov_b32', v(x.n + 1), x))
        for x in acc4: E(valu(op, x, v(x.n + 1), rmw=True, extra_wr=[v(x.n + 1)]))
        for x in acc4: E(valu('v_add_f32', x, x, v(x.n + 1)))
    for x in acc4: E(valu('v_mul_f32', x, f2u(1.0 / 576), x))
    for g in range(2): E(valu('v_fma_f32', acc4[2 + g], '-' + str(acc4[g]), acc4[g], acc4[2 + g]))
    for g in range(2): E(valu('v_max_f32', acc4[2 + g], 0, acc4[2 + g]))
    for g in range(2): E(valu('v_add_f32', acc4[2 + g], f2u(1e-5), acc4[2 + g]))
    for g in range(2): E(valu('v_rsq_f32', acc4[2 + g], acc4[2 + g]))
    for g in range(2): E(valu('v_mul_f32', acc4[2 + g], f2u(-LOG2E), acc4[2 + g]))
    for g in range(2): E(valu('v_mov_b32', v(20 + g), acc4[g]))
    for g in range(2): E(valu('v_mul_f32', acc4[g], '-' + str(acc4[g]), acc4[2 + g], extra_rd=[acc4[g]]))
    E(smov(sT2, 0xffff0000))
    if CFG.get('dotn'):
        cl = [v(SA + 1), v(SA + 3)]; ch = [v(SA + 5), v(SA + 7)]
        for g in range(2): E(valu('v_cvt_pk_bf16_f32', cl[g], acc4[2 + g], 0))
        for g in range(2): E(valu('v_lshlrev_b32', ch[g], 16, cl[g]))
        for g in range(2): E(valu('v_mul_f32', acc4[g], '-' + str(v(20 + g)), ch[g], extra_rd=[v(20 + g)]))
    PS(61)
    n = 0
    for t in range(18):
        for g in range(2):
            tps = [v(24, 2), v(26, 2), v(16, 2), v(18, 2)]
            x = X(t, g)
            if CFG.get('dotn'):
                for qd in range(4):
                    E(valu('v_dot2_f32_bf16', tps[qd][0], x[qd], cl[g], acc4[g])); E(valu('v_dot2_f32_bf16', tps[qd][1], x[qd], ch[g], acc4[g]))
            else:
                for qd in range(4):
                    E(valu('v_lshlrev_b32', tps[qd][0], 16, x[qd])); E(valu('v_and_b32', tps[qd][1], sT2, x[qd]))
                for qd in range(4): E(valu('v_pk_fma_f32', tps[qd], tps[qd], v(acc4[2 + g].n, 2), v(acc4[g].n, 2), mods='op_sel_hi:[1,0,0]'))
            for qd in range(4): E(valu('v_cvt_pk_bf16_f32', x[qd], tps[qd][0], tps[qd][1]))
            if pend and n % CFG.get('dn', 2) == 0: E(pend.pop(0))
            n += 1
    for it in pend: E(it)
    if CFG['fused']:
        E(valu('v_mov_b32', v(24), 1)); E(waitvm(p.vm_wait_for(lambda t: t == 'zero')))
        E(I(f"buffer_atomic_add v24, v23, {sDBG}, 0 offen sc1", 'vstore', rd=vr(23, 2) + sDBG.regs(), units=3, tag='init'))
    for _ in range(CFG.get('idle', 0)): E(raw("s_sleep 16"))
    PS(62)
    if kind in 'AM' and MS:
        ln, m_, key, t_ = v(16), v(17), v(18), v(19)
        E([valu('v_lshrrev_b32', ln, 4, vLANE16), valu('v_and_b32', key, 19, ln),
           valu('v_bfe_u32', t_, ln, 2, 1), valu('v_lshl_add_u32', key, t_, 3, key),
           valu('v_bfe_u32', t_, ln, 3, 1), valu('v_lshl_add_u32', key, t_, 2, key),
           valu('v_lshrrev_b32', m_, 2, key), smov(sT2, PP), valu('v_mul_u32_u24', m_, sT2, m_),
           valu('v_and_b32', key, 3, key), valu('v_lshl_add_u32', m_, key, 8, m_),
           valu('v_lshrrev_b32', t_, 5, ln), valu('v_xor_b32', t_, t_, key),
           valu('v_lshl_add_u32', vRKM[0], t_, 4, m_), valu('v_xor_b32', vRKM[1], 32, vRKM[0])])
    elif kind in 'AM':
        E(valu('v_mov_b32', vRK[0], v(22))); E(valu('v_add_u32', vRK[1], 65536, v(22))); E(valu('v_add_u32', vRK[2], 131072, v(22)))
    if CFG['stamps']: E(raw(f"v_writelane_b32 {vSTAMP}, s96, 55", 'valu', wr=[vSTAMP], rd=[s(96)])) if kind != 'A' else None
    if CFG['stamps']: E(smov(s(43), s(96)))
    nlr = {'F': 10, 'A': 11, 'M': 8}[kind]
    if kind != 'M': E([valu('v_lshrrev_b32', vPF2, 16, vTID), valu('v_and_b32', vPFR, 63, vTID), valu('v_min_u32', vPFR, nlr - 1, vPFR),
       valu('v_mad_u32_u24', vPFR, vPF2, nlr, vPFR), valu('v_lshlrev_b32', vPFR, 7, vPFR)])
    if CFG['stamps']: E(smov(s(97), 0))
    E(smov(sLN0, f2u(-1.0 / math.sqrt(128.0))))

def slow_check(R, heads, base2):
    def f():
        p = R.p; E = p.emit
        t = v(254); lo = v(255)
        E(valu('v_mov_b32', lo, f2u(2.0 ** -40))); E(smov(sT3, f2u(2.0 ** 40)))
        for (hd, Q, O) in heads:
            L = f"L_{R.kind}_slow{hd}"
            if CFG['shape'] == 'M':
                E(valu('v_med3_f32', t, Lsave[hd], sT3, lo))
                E(raw(f"v_cmp_neq_f32 vcc, {t}, {Lsave[hd]}", 'valu', wr=['vcc'], rd=[t, Lsave[hd]])); E(nop(4))
            else:
                E(valu('v_med3_f32', t, Lsave[2 * hd], sT3, lo))
                E(raw(f"v_cmp_neq_f32 s[98:99], {t}, {Lsave[2 * hd]}", 'valu', wr=[s(98, 2)], rd=[t, Lsave[2 * hd]]))
                E(valu('v_med3_f32', t, Lsave[2 * hd + 1], sT3, lo))
                E(raw(f"v_cmp_neq_f32 vcc, {t}, {Lsave[2 * hd + 1]}", 'valu', wr=['vcc'], rd=[t, Lsave[2 * hd + 1]])); E(nop(4))
                E(raw("s_or_b64 vcc, vcc, s[98:99]", 'salu', wr=['vcc'], rd=['vcc', s(98, 2)])); E(nop(1))
            if CFG.get('force_slow'): E(raw(f"s_mov_b64 vcc, -1", 'salu', wr=['vcc']))
            E(raw(f"s_cbranch_vccz {L}_ret"))
            E(raw(f"s_call_b64 {sRET}, {L}"))
            E(label(f"{L}_ret"))
            R.slow.append((slow_path if CFG['shape'] == 'M' else slow_pathS)(L, hd, Q, O, base2))
        E(nop(1))
    return f

def slow_path(L, hd, Q, Odst, b2):
    p = Prog(); E = p.emit
    O = v(48, 64); S = v(b2, 16); P = v(b2 + 16, 8); F = v(b2 + 24, 16)
    vK, vV, vM, vL, t0, t1 = [v(b2 + 40 + i) for i in range(6)]
    sB, sJ, sO = s(98), s(99), s(97)
    E(I(".p2align 2", 'label')); E(label(L))
    E(nop(7)); E(nop(7))
    E([valu('v_lshrrev_b32', t0, 4, vLANE16), valu('v_and_b32', vK, 19, t0), valu('v_bfe_u32', t1, t0, 2, 1), valu('v_lshl_add_u32', vK, t1, 3, vK),
       valu('v_bfe_u32', t1, t0, 3, 1), valu('v_lshl_add_u32', vK, t1, 2, vK), valu('v_lshrrev_b32', t1, 5, t0),
       valu('v_lshlrev_b32', vV, 1, vK), valu('v_lshl_add_u32', vV, t1, 11, vV),
       valu('v_lshlrev_b32', vK, 8, vK), valu('v_lshl_add_u32', vK, t1, 4, vK)])
    E([mul(sB, sROLE, 3), add(sB, sB, hd), shr(sB, sB, 1), shl(sB, sB, 19), add(sB, sB, 1536 * 256)])
    def qk():
        for half in range(2):
            for t in range(4): E(bload('buffer_load_dwordx4', F.sub(4 * t, 4), vK, sK, sO, (4 * half + t) * 32))
            E(waitvm(0))
            for t in range(4):
                tt = 4 * half + t
                E(mfma(S, F.sub(4 * t, 4), Q.sub(4 * tt, 4), 0 if tt == 0 else S))
            E(nop(7)); E(nop(7))
    E(valu('v_mov_b32', vM, 0xff800000)); E(smov(sJ, 0))
    E(label(L + "_a"))
    E(add(sO, sB, sJ)); qk()
    for i in range(0, 16, 2): E(valu('v_max3_f32', vM, vM, S[i], S[i + 1]))
    E(add(sJ, sJ, 8192)); E(salu('s_cmp_lt_u32', None, sJ, 16 * 8192)); E(raw(f"s_cbranch_scc1 {L}_a"))
    E(valu('v_mov_b32', t0, vM)); E(valu('v_permlane32_swap_b32', vM, t0, rmw=True, extra_wr=[t0])); E(valu('v_max_f32', vM, vM, t0))
    for i in range(64): E(valu('v_mov_b32', O[i], 0))
    E(valu('v_mov_b32', vL, 0)); E(smov(sJ, 0))
    E(label(L + "_b"))
    E(add(sO, sB, sJ)); qk()
    for i in range(16): E(valu('v_sub_f32', S[i], S[i], vM))
    for i in range(16): E(valu('v_exp_f32', S[i], S[i]))
    for i in range(16): E(valu('v_add_f32', vL, vL, S[i]))
    for q in range(8): E(valu('v_cvt_pk_bf16_f32', P[q], S[2 * q], S[2 * q + 1]))
    for u in range(2):
        for tp in range(2):
            for tq in range(2):
                for j in range(8):
                    E(bload('buffer_load_ushort', F[8 * (j & 1) + 4 * tq + j // 2], vV, sV, sO, j * 256 + (2 * tp + tq) * 64))
            E(waitvm(0))
            for i in range(8): E(valu('v_lshl_or_b32', F[i], F[8 + i], 16, F[i]))
            for tq in range(2):
                D_ = O.sub(16 * (2 * tp + tq), 16)
                E(mfma(D_, F.sub(4 * tq, 4), P.sub(4 * u, 4), D_))
            E(nop(7))
        if u == 0: E(add(sO, sO, 4096))
    E(add(sJ, sJ, 8192)); E(salu('s_cmp_lt_u32', None, sJ, 16 * 8192)); E(raw(f"s_cbranch_scc1 {L}_b"))
    E(nop(7)); E(nop(7))
    E(valu('v_mov_b32', t0, vL)); E(valu('v_permlane32_swap_b32', vL, t0, rmw=True, extra_wr=[t0])); E(valu('v_add_f32', vL, vL, t0))
    E(valu('v_rcp_f32', t0, vL))
    for tau in range(4):
        A_ = O.sub(16 * tau, 16)
        for e in range(16): E(valu('v_mul_f32', A_[e], A_[e], t0))
        for q in range(8): E(valu('v_cvt_pk_bf16_f32', A_[2 * q], A_[2 * q], A_[2 * q + 1]))
        for q in range(4): E(valu('v_permlane16_swap_b32', A_[2 * q], A_[2 * q + 8], rmw=True, extra_wr=[A_[2 * q + 8]]))
        for q in range(8): E(valu('v_accvgpr_write_b32', Odst[8 * tau + q], A_[2 * q]))
    E(nop(1)); E(raw(f"s_setpc_b64 {sRET}"))
    return p

def slow_pathS(L, hd, Q, Odst, b2):
    p = Prog(); E = p.emit
    ob = 48; kv = None
    if isinstance(b2, tuple): b2, ob = b2
    if isinstance(Odst, tuple):
        OFf, kv = Odst
        class _D:
            def __getitem__(s_, i): return OFf(i // 8)[i % 8]
        Odst = _D()
    O = v(ob, 64); S = v(b2, 16); P = v(b2 + 16, 8); F = v(b2 + 24, 16)
    vK, vV, t0, t1 = [v(b2 + 40 + i) for i in range(4)]
    vM = [v(b2 + 44), v(b2 + 45)]; vL = [v(b2 + 46), v(b2 + 47)]
    sB, sJ, sO = s(98), s(99), s(97)
    E(I(".p2align 2", 'label')); E(label(L))
    E(nop(7)); E(nop(7))
    E([valu('v_lshrrev_b32', t0, 4, vLANE16), valu('v_and_b32', t1, 15, t0), valu('v_lshrrev_b32', t0, 4, t0),
       valu('v_lshlrev_b32', vK, 8, t1), valu('v_lshl_add_u32', vK, t0, 4, vK),
       valu('v_lshlrev_b32', vV, 1, t1), valu('v_lshl_add_u32', vV, t0, 10, vV)])
    if kv is not None: E(smov(sB, kv))
    else: E([mul(sB, sROLE, 3), add(sB, sB, hd), shr(sB, sB, 1), shl(sB, sB, 19), add(sB, sB, 1536 * 256)])
    def qk():
        for T in range(2):
            E(add(sO, sB, sJ)) if T == 0 else E(add(sO, sO, 4096))
            for t in range(4): E(bload('buffer_load_dwordx4', F.sub(4 * t, 4), vK, sK, sO, t * 64))
            E(waitvm(0))
            for t in range(4):
                for g_ in range(2):
                    D_ = S.sub(8 * T + 4 * g_, 4)
                    E(mfma(D_, F.sub(4 * t, 4), Q.sub(8 * t + 4 * g_, 4), 0 if t == 0 else D_))
            E(nop(7)); E(nop(3))
    def allq(x, op):
        for sw in ('v_permlane16_swap_b32', 'v_permlane32_swap_b32'):
            E(valu('v_mov_b32', t0, x)); E(valu(sw, x, t0, rmw=True, extra_wr=[t0])); E(valu(op, x, x, t0))
    for g_ in range(2): E(valu('v_mov_b32', vM[g_], 0xff800000))
    E(smov(sJ, 0))
    E(label(L + "_a"))
    qk()
    for T in range(2):
        for g_ in range(2):
            for i in (0, 2): E(valu('v_max3_f32', vM[g_], vM[g_], S[8 * T + 4 * g_ + i], S[8 * T + 4 * g_ + i + 1]))
    E(add(sJ, sJ, 8192)); E(salu('s_cmp_lt_u32', None, sJ, 16 * 8192)); E(raw(f"s_cbranch_scc1 {L}_a"))
    for g_ in range(2): allq(vM[g_], 'v_max_f32')
    for i in range(64): E(valu('v_mov_b32', O[i], 0))
    for g_ in range(2): E(valu('v_mov_b32', vL[g_], 0))
    E(smov(sJ, 0))
    E(label(L + "_b"))
    qk()
    for i in range(16): E(valu('v_sub_f32', S[i], S[i], vM[(i >> 2) & 1]))
    for i in range(16): E(valu('v_exp_f32', S[i], S[i]))
    for i in range(16): E(valu('v_add_f32', vL[(i >> 2) & 1], vL[(i >> 2) & 1], S[i]))
    for g_ in range(2):
        for T in range(2):
            for k in range(2): E(valu('v_cvt_pk_bf16_f32', P[4 * g_ + 2 * T + k], S[8 * T + 4 * g_ + 2 * k], S[8 * T + 4 * g_ + 2 * k + 1]))
    for tp in range(4):
        for jh in range(2):
            E(add(sO, sB, sJ)) if jh == 0 else E(add(sO, sO, 4096))
            for tq in range(2):
                for jl in range(4):
                    j = 4 * jh + jl
                    E(bload('buffer_load_ushort', F[8 * (j & 1) + 4 * tq + j // 2], vV, sV, sO, jl * 256 + (2 * tp + tq) * 32))
        E(waitvm(0))
        for i in range(8): E(valu('v_lshl_or_b32', F[i], F[8 + i], 16, F[i]))
        for tq in range(2):
            for g_ in range(2):
                D_ = O.sub(8 * (2 * tp + tq) + 4 * g_, 4)
                E(mfma(D_, F.sub(4 * tq, 4), P.sub(4 * g_, 4), D_))
        E(nop(7))
    E(add(sJ, sJ, 8192)); E(salu('s_cmp_lt_u32', None, sJ, 16 * 8192)); E(raw(f"s_cbranch_scc1 {L}_b"))
    E(nop(7)); E(nop(3))
    for g_ in range(2): allq(vL[g_], 'v_add_f32')
    for g_ in range(2): E(valu('v_rcp_f32', vL[g_], vL[g_]))
    for i in range(64): E(valu('v_mul_f32', O[i], O[i], vL[(i >> 2) & 1]))
    for kk in range(4):
        for g_ in range(2):
            for T in range(2):
                for c in range(2):
                    r = 8 * (2 * kk + T) + 4 * g_ + 2 * c
                    E(valu('v_cvt_pk_bf16_f32', O[r], O[r], O[r + 1])); E(valu('v_accvgpr_write_b32', Odst[8 * kk + 4 * g_ + 2 * T + c], O[r]))
    E(nop(1)); E(raw(f"s_setpc_b64 {sRET}"))
    return p

NREP = 6
ABN = 4096
BAL2 = [10, 11, 22, 13, 14, 21, 12, 17, 15, 19]; BALM = [63, 63, 63, 63, 63, 63, 16, 63, 18, 63]; BAL3 = [28, 29, 23, 30, 31, 24, 32, 33, 34, 35]
sMD2 = s(84)
def BMB(): return 20 if CFG.get('bal') == 2 else 16
def rep_addr(kind, dst, t):
    return [shl(sT2, sRB, 14), add(sT2, sT2, CTRL + 2048), add(sT3, sROLE, NS - NA), shl(sT3, sT3, 2), add(sT2, sT2, sT3),
            salu('s_cmp_eq_u32', None, sWAVE, 0), csel(sT2, sT2, OOB),
            valu('v_lshlrev_b32', dst, 3, vLANE16), valu('v_add_u32', dst, sT2, dst), valu('v_mov_b32', t, OOB),
            raw(f"v_cmp_gt_u32 vcc, {hex(NA * NREP * 16)}, {vLANE16}", 'valu', wr=['vcc'], rd=[vLANE16]), valu('v_cndmask_b32', dst, t, dst, 'vcc')]
vCR = v(31)
def add_signals(R):
    P2 = [k for k, st in enumerate(R.stages) if st.name.startswith('P2')]
    def sig(first):
        def f():
            out = [valu('v_add_u32', vPRG, 1, vPRG)]
            return out + [bstore('buffer_store_dword', vPRG, vCT, sWS, 0, flags='sc1')]
        return f
    def sig7():
        return [valu('v_add_u32', vPRG, 1, vPRG), bstore('buffer_store_dword', vPRG, vCR, sWS, 0, flags='sc1'), bstore('buffer_store_dword', vPRG, vCT, sWS, 0, flags='sc1')]
    def chain(stages, base):
        firsts = [k for k in stages if R.stages[k].sub == 0]
        for c in range(8):
            k = firsts[c + 1] + CFG.get('siglag', {}).get(R.kind, 2)
            if k > stages[-1]: break
            R.stages[k].cover_st = base + c; R.stages[k].post_bar = sig(c == 0)
            if c == 7 and CFG.get('rep') and R.kind in 'FM': R.stages[k].post_bar = sig7
        if CFG.get('rep') and R.kind in 'FM': R.pf.setdefault(firsts[1], []).append(lambda: rep_addr(R.kind, vCR, vPF))
    chain(P2, 0)
    R.stages[P2[0]].post_bar = lambda: [valu('v_mov_b32', vPRG, 0)]

LDSC = 4 * SLOT
sAB = s(72, 2); sRM = s(74, 2); sCD = s(98, 2)
sRS, sRF, sSP, sC, sI, sPB, sPART, sOK, sPAR, sXW, sPWv, sTO = s(78), s(79), s(71), s(80), s(81), s(82), s(47), s(40), s(41), s(59), s(3), s(58)
sIT = [s(42), s(44), s(45)]; sXP = [s(46), s(60), s(61)]
sRET2 = s(66, 2)
vP, vD, vA, vO, vXO, vL4, vDO, vLA, vIT, vLD, vSC = [v(16 + i) for i in range(11)]
vX4 = v(28)
def s64(op, d, *src, scc_r=False): return salu(op, d, *src, scc_r=scc_r)
sPV = s(76)
def red_setup(kind):
    o = [shl(sPB, sRB, 14), add(sPB, sPB, CTRL), salu('s_cmp_eq_u32', None, sWAVE, 0), csel(sT3, 0, OOB),
         valu('v_lshrrev_b32', vL4, 2, vLANE16), valu('v_add_u32', vL4, sT3, vL4),
         valu('v_mov_b32', vSC, OOB), add(sT2, sT3, 4 * NPART), raw(f"v_writelane_b32 {vSC}, {sT2}, 0", 'valu', wr=[vSC], rd=[sT2, vSC]),
         valu('v_mov_b32', vS1, vSC), valu('v_min_u32', vL5, NPART * 16, vLANE16), valu('v_lshrrev_b32', vL5, 2, vL5), valu('v_add_u32', vL5, sT3, vL5),
         add(sT2, sT3, 252), raw(f"v_writelane_b32 {vSC}, {sT2}, 1", 'valu', wr=[vSC], rd=[sT2, vSC]),
         shl(sT2, sRB, 4), add(sT2, sT2, sT3), valu('v_mov_b32', vDO, 256), raw(f"v_writelane_b32 {vDO}, {sT2}, 0", 'valu', wr=[vDO], rd=[sT2, vDO])]
    if kind == 'A' or (kind == 'M' and CFG.get('mpriv')): o += [shl(sPV, sROLE, 7), add(sPV, sPV, 256), add(sPV, sPV, sPB)]
    if CFG.get('abn'): o += [shl(sAV_, sROLE, 8), add(sAV_, sAV_, ABN), add(sAV_, sAV_, sPB)]
    return o
vS1, vL5 = v(29), v(30)
sAV_ = s(76 + 1); vP2 = v(31)
def ab_load(): return bload('buffer_load_dword', vP2, vL4, sWS, sAV_, flags='sc1')
def ab_eval():
    return [raw(f"v_cmp_ne_u32 vcc, 0, {vP2}", 'valu', wr=['vcc'], rd=[vP2]), nop(1), raw(f"s_mov_b32 {sAB[0]}, vcc_lo", 'salu', wr=[sAB[0]], rd=['vcc']), raw(f"s_and_b32 {sAB[1]}, vcc_hi, 15", 'salu', wr=[sAB[1]], rd=['vcc'])]
PRIV = [False]
def red_poll(shared=False):
    cnt = [valu('v_mov_b32', vD, 0), I(f"buffer_atomic_add {vD}, {vDO}, {sDBG}, 0 offen sc0 sc1", 'vload', wr=vD.regs(), rd=vD.regs() + vDO.regs() + sDBG.regs(), units=3)]
    if PRIV[0] and not shared:
        return [cnt, [bstore('buffer_store_dword', vS1, vS1, sWS, sPV, flags='sc1'), bload('buffer_load_dword', vP, vL5, sWS, sPV, flags='sc1')]]
    return [cnt, [bstore('buffer_store_dword', vSC, vSC, sWS, sPB, flags='sc1'), bload('buffer_load_dword', vP, vL4, sWS, sPB, flags='sc1')]]
vG = [v(28), v(29), v(30)]; vGA = v(31); vGP = v(27)
def l2pf_setup():
    return [valu('v_lshrrev_b32', vGP, 7, vLANE16), smov(sT2, PSTR()), valu('v_mul_lo_u32', vGA, vGP, sT2),
            valu('v_bfe_u32', vA, vLANE16, 4, 3), valu('v_lshl_add_u32', vGA, vA, 7, vGA), shl(sT2, sWAVE, 10), valu('v_add_u32', vGA, sT2, vGA),
            valu('v_lshlrev_b32', vGP, 2, vGP), valu('v_mov_b32', vA, OOB), smov(sT2, 68), raw(f"v_writelane_b32 {vA}, {sT2}, 0", 'valu', wr=[vA], rd=[vA, sT2])]
def l2pf_poll():
    st = bstore('buffer_store_dword', vA, vA, sWS, sPB, flags='sc1')
    out = [[st]]
    for i in range(3):
        ld = bload('buffer_load_dword', vG[i], vGP, sWS, sPB, 32 * i, flags='sc1'); ld.tag = 'gp'
        out.append([ld])
    return out
def l2pf_issue(R, dlt):
    out = [[add(sI, sROLE, dlt), salu('s_and_b32', sT2, sI, 3), shr(sC, sI, 2), shl(sT3, sRB, 2), add(sT2, sT2, sT3), mul(sSP, sT2, PWAVE),
            shl(sT3, sC, 12), add(sSP, sSP, sT3), valu('v_mov_b32', vO, OOB)]]
    for i in range(3):
        ld = bload('buffer_load_dword', vDUM, vG[i], sWS, sT2); ld.tag = 'pf'
        cmp_ = raw(f"v_cmp_lt_u32 vcc, {sC}, {vG[i]}", 'valu', wr=['vcc'], rd=[sC, vG[i]])
        pre = [cmp_]
        if i == 2: pre += [raw("s_and_b64 vcc, vcc, 0xff", 'salu', wr=['vcc'], rd=['vcc'])]
        out.append(pre + [add(sT2, sSP, 8 * i * PSTR()), valu('v_cndmask_b32', vG[i], vO, vGA, 'vcc'), ld])
    return out
def red_eval():
    o = [raw(f"v_cmp_ne_u32 vcc, 0, {vP}", 'valu', wr=['vcc'], rd=[vP]), nop(1),
         raw(f"s_lshr_b64 {sAB}, vcc, {NPART + 1}", 'salu', wr=[sAB], rd=['vcc']), salu('s_and_b32', sAB[1], sAB[1], 15), smov(sRS, 0), smov(sRF, 0)]
    for c in range(9):
        o += [raw(f"v_cmp_ge_u32 vcc, {c}, {vP}", 'valu', wr=['vcc'], rd=[vP]), nop(1),
              raw(f"s_and_b32 {sT2}, vcc_lo, {hex((1 << NS) - 1)}", 'salu', wr=[sT2], rd=['vcc']), csel(sRS, sRS, 4 * (c + 1)),
              raw(f"s_and_b32 {sT2}, vcc_lo, {hex((1 << NPART) - (1 << NS))}", 'salu', wr=[sT2], rd=['vcc']), csel(sRF, sRF, 4 * (c + 1))]
    return o
def red_pub(par):
    return [shl(sT2, sRF, 8), salu('s_or_b32', sT2, sT2, sRS), shl(sT3, sTO, 16), salu('s_or_b32', sT2, sT2, sT3),
            valu('v_mov_b32', vIT, sT2), valu('v_mov_b32', vLA, par), raw(f"ds_write_b32 {vLA}, {vIT}", 'other', rd=[vLA, vIT]), waitlg(0)]
def red_get(par):
    return [valu('v_mov_b32', vLA, par), raw(f"ds_read_b32 {vIT}, {vLA}", 'ds', wr=[vIT], rd=[vLA]), waitlg(0),
            valu('v_readfirstlane_b32', sT2, vIT), salu('s_and_b32', sRS, sT2, 255), salu('s_bfe_u32', sRF, sT2, (8 << 16) | 8), shr(sTO, sT2, 16)]
def red_early(p, n):
    E = p.emit
    E([smov(sRS, 0), smov(sRF, 0), smov(sOK, 0), smov(sTO, 0), smov(sPAR, LDSC + 4), nop(1)])
    E(salu('s_cmp_eq_u32', None, sWAVE, 0)); E(raw(f"s_cbranch_scc0 L_{n}_e2"))
    E(waitvm(p.vm_wait_for(lambda t: t == 'poll')))
    E(valu('v_readfirstlane_b32', sOK, vD))
    E(salu('s_cmp_ge_u32', None, sOK, 16)); E(raw(f"s_cbranch_scc0 L_{n}_e1"))
    E(red_eval())
    E(label(f"L_{n}_e1"))
    E(red_pub(LDSC))
    E(label(f"L_{n}_e2"))

def ld_part(L, ks, flags):
    out = []
    for k in ks:
        out.append([add(sT2, sPART, k * PSTR()), bload('buffer_load_dwordx4', v(L + 4 * k, 4), vLD, sWS, sT2, flags=flags)])
    return out
def ld_x(L, sXO_):
    if CFG.get('nox'): return [[valu('v_mov_b32', vA, OOB), bload('buffer_load_dwordx2', v(L + 4 * NPART, 2), vA, sX, sXO_)], [bload('buffer_load_dwordx2', v(L + 4 * NPART + 2, 2), vA, sX, sXO_, 32)]]
    return [[bload('buffer_load_dwordx2', v(L + 4 * NPART, 2), vXO, sX, sXO_)], [bload('buffer_load_dwordx2', v(L + 4 * NPART + 2, 2), vXO, sX, sXO_, 32)]]
RB_ = 48
sD0, sD1 = s(68), s(69)
def proc_sum(E, L, ks, after, loads):
    SA, FA, T = RB_, RB_ + 8, RB_ + 16
    issued = 0; ks = list(ks)
    E(smov(sT3, 0xffff0000))
    for j, k in enumerate(ks):
        if loads: E(loads.pop(0)); issued += 1
        E(waitvm(len(ks) - 1 - j + after + issued))
        acc = SA if k < NS else FA
        for q in range(4):
            x = v(L + 4 * k + q)
            if k in (0, NS):
                E(valu('v_lshlrev_b32', v(acc + 2 * q), 16, x)); E(valu('v_and_b32', v(acc + 2 * q + 1), sT3, x))
            else:
                E(valu('v_dot2c_f32_bf16', v(acc + 2 * q), sD0, x, rmw=True)); E(valu('v_dot2c_f32_bf16', v(acc + 2 * q + 1), sD1, x, rmw=True))
    return issued
def proc_fin(E, L, sXO_, xwait, loads):
    SA, FA, T = RB_, RB_ + 8, RB_ + 16; XR = L + 4 * NPART; issued = 0
    for e in range(8): E(valu('v_exp_f32', v(T + e), v(FA + e)))
    for e in range(8): E(valu('v_add_f32', v(T + e), 1.0, v(T + e)))
    while len(loads) > 1: E(loads.pop(0)); issued += 1
    for e in range(8): E(valu('v_rcp_f32', v(T + e), v(T + e)))
    for e in range(8): E(valu('v_mul_f32', v(FA + e), f2u(-math.log(2.0)), v(FA + e)))
    for e in range(8): E(valu('v_mul_f32', v(FA + e), v(FA + e), v(T + e)))
    while loads: E(loads.pop(0)); issued += 1
    if xwait is not None: E(waitvm(xwait + issued))
    for q in range(4):
        E(valu('v_lshlrev_b32', v(T + 2 * q), 16, v(XR + q))); E(valu('v_and_b32', v(T + 2 * q + 1), sT3, v(XR + q)))
    for e in range(8): E(valu('v_fma_f32', v(T + e), v(SA + e), v(FA + e), v(T + e)))
    for q in range(4): E(valu('v_cvt_pk_bf16_f32', v(XR + q), v(T + 2 * q), v(T + 2 * q + 1)))
    if CFG.get('out4', True):
        def dpp(d, src, bank): return I(f"v_mov_b32_dpp {d}, {src} row_ror:8 row_mask:0xf bank_mask:{bank}", 'perm', wr=d.regs(), rd=src.regs() + d.regs())
        for i in range(2): E(valu('v_permlane16_swap_b32', v(XR + i), v(XR + 2 + i), rmw=True, extra_wr=[v(XR + 2 + i)]))
        for i in range(2): E(valu('v_mov_b32', v(T + i), v(XR + i)))
        for i in range(2): E(dpp(v(XR + i), v(XR + 2 + i), '0xc'))
        for i in range(2): E(dpp(v(XR + 2 + i), v(T + i), '0x3'))
        E(bstore('buffer_store_dwordx4', v(XR, 4), vX4, sOUT, sXO_, flags=CFG.get('oflags', 'sc1')))
        E(valu('v_mov_b32', vO, OOB)); E(bstore('buffer_store_dword', vO, vO, sOUT, 0))
        return
    E(bstore('buffer_store_dwordx2', v(XR, 2), vXO, sOUT, sXO_)); E(bstore('buffer_store_dwordx2', v(XR + 2, 2), vXO, sOUT, sXO_, 32))
def proc_all(E, L, sXO_, pre, loads):
    loads = list(loads)
    n = proc_sum(E, L, range(NPART), 2 + pre, loads)
    proc_fin(E, L, sXO_, pre + n, loads)

def acc_part(E, L, k):
    acc = RB_ if k < NS else RB_ + 8
    for q in range(4):
        x = v(L + 4 * k + q)
        if k in (0, NS):
            E(valu('v_lshlrev_b32', v(acc + 2 * q), 16, x)); E(valu('v_and_b32', v(acc + 2 * q + 1), sT3, x))
        else:
            E(valu('v_dot2c_f32_bf16', v(acc + 2 * q), sD0, x, rmw=True)); E(valu('v_dot2c_f32_bf16', v(acc + 2 * q + 1), sD1, x, rmw=True))
def stream(E, segs, hooks=None):
    W = CFG.get('rwin', 8); FL = CFG.get('fflags', 'sc1')
    seq = []
    for (L, sP, sX_, ks, wx, fin) in segs:
        if wx:
            for it in ld_x(L, sX_): seq.append((it, None))
        ks = list(ks)
        for j, k in enumerate(ks):
            it = [add(sT2, sP, k * PSTR()), bload('buffer_load_dwordx4', v(L + 4 * k, 4), vLD, sWS, sT2, flags=FL)]
            last = fin and j == len(ks) - 1
            seq.append((it, (lambda L=L, k=k, last=last, sX_=sX_: (acc_part(E, L, k), proc_fin(E, L, sX_, None, []) if last else None, last)[2])))
    E(smov(sT3, 0xffff0000))
    n = len(seq); issued = 0
    extra_at = []
    for c in range(n):
        while issued < min(n, c + W): E(seq[issued][0]); issued += 1
        if hooks and c in hooks:
            for _ in range(hooks[c](issued + sum(1 for e in extra_at))): extra_at.append(issued)
            E(smov(sT3, 0xffff0000))
        if seq[c][1] is None: continue
        E(waitvm(issued - 1 - c + sum(1 for e in extra_at if e > c)))
        if seq[c][1]():
            extra_at += [issued, issued]

def body_items(E, n, its, two, ni, ensure, refresh, done, ST, seg, final_flag, poll_hook, LATE, L0, L1, FOUR, sMID, offs, sPT):
    if n == 'M' and CFG.get('m3') == 1:
        ensure(its[2], 1, 1); ST(its[0])
        stream(E, [seg(0, L0), seg(1, L1), seg(2, L0)], {4: (lambda _: (E(ab_load()), 1)[1])})
        for i in range(3): done(its[i])
        return
    E(salu('s_min_u32', sT2, sRS, sRF)); E(salu('s_cmp_lt_u32', None, its[two - 1], sT2)); E(raw(f"s_cbranch_scc0 L_{n}_sl"))
    ST(its[0])
    AB = CFG.get('abn')
    def ab_hook(_): E(ab_load()); return 1
    hooks = {(NPART + 2) * two - CFG.get('pollat', 8): poll_hook}
    if AB:
        if ni < 3: hooks = {}
        hooks[14 if LATE else 4] = ab_hook
    if LATE: hooks[CFG.get('flagat', 3) if n == 'A' else 0] = final_flag
    stream(E, [seg(0, L0), seg(1, L1)][:two], hooks)
    ST(51)
    E(raw(f"s_branch L_{n}_j"))
    E(label(f"L_{n}_sl"))
    if LATE and two == 2 and CFG.get('mid1', 1):
        E(salu('s_min_u32', sT2, sRS, sRF)); E(salu('s_cmp_lt_u32', None, its[0], sT2)); E(raw(f"s_cbranch_scc0 L_{n}_s0"))
        ST(52)
        stream(E, [seg(0, L0)], {CFG.get('flagat', 3): final_flag, 12: poll_hook}); done(its[0])
        refresh(2); ensure(its[1], 1, 1)
        stream(E, [seg(1, L1)], {11: poll_hook, 3: ab_hook} if AB else {11: poll_hook})
        E(raw(f"s_branch L_{n}_j"))
        E(label(f"L_{n}_s0"))
    if LATE: final_flag(0)
    for i in range(two):
        ensure(its[i], 1, 1)
        hk = {11: poll_hook} if (i == two - 1 and not (AB and ni < 3)) else {}
        if AB and i == two - 1: hk[4] = ab_hook
        stream(E, [seg(i, L0)], hk); done(its[i])
    E(label(f"L_{n}_j"))
    for i in range(two): done(its[i])
    if FOUR or ((CFG.get('asg') == 3 or CFG.get('bal')) and n == 'A'):
        E(salu('s_cmp_gt_u32', None, sMID, 35)); E(raw(f"s_cbranch_scc1 L_{n}_nm"))
        refresh(2)
        ensure(sMID, 1, 1); ST(sMID)
        E(offs(sMID, sXP[0]))
        stream(E, [seg(0, L1)], {13: poll_hook}); done(sMID)
        E(label(f"L_{n}_nm"))
    def warm():
        if not CFG.get('warm', 1): return
        E(valu('v_mov_b32', v(240), vLD)); E(valu('v_mov_b32', v(241), vX4)); E(valu('v_mov_b32', vLD, OOB)); E(valu('v_mov_b32', vX4, OOB))
        E(raw(f"s_call_b64 {sRET2}, L_{n}_ft"))
        E(valu('v_mov_b32', vLD, v(240))); E(valu('v_mov_b32', vX4, v(241)))
    if ni == 3:
        if CFG.get('asg') == 3:
            E(salu('s_cmp_lt_u32', None, its[2], 36)); E(raw(f"s_cbranch_scc1 L_{n}_h3"))
            E(red_poll(True)[1]); E(waitvm(0)); E(raw(f"s_branch L_{n}_fin")); E(label(f"L_{n}_h3"))
        refresh(2, AB and CFG.get('abx', 1))
        if CFG.get('nof'):
            E(salu('s_cmp_gt_u32', None, sMD2, 35)); E(raw(f"s_cbranch_scc1 L_{n}_k1"))
            ensure(sMD2, 1, 1); E(offs(sMD2, sXP[0])); ST(sMD2)
            E(salu('s_cmp_lt_u32', None, its[2], sRS)); E(raw(f"s_cbranch_scc0 L_{n}_k0"))
            E(salu('s_cmp_lt_u32', None, its[2], sRF)); E(raw(f"s_cbranch_scc1 L_{n}_k0"))
            warm()
            stream(E, [seg(0, L1), seg(2, L0, range(NS), True, False)], {20: poll_hook.sh}); done(sMD2)
            E(raw(f"s_branch L_{n}_k2"))
            E(label(f"L_{n}_k0"))
            stream(E, [seg(0, L1)], {11: poll_hook}); done(sMD2)
            refresh(2)
            E(label(f"L_{n}_k1"))
        if CFG.get('pw') == 2 and n == 'A':
            E(salu('s_cmp_eq_u32', None, sMD2, 0)); E(raw(f"s_cbranch_scc0 L_{n}_old"))
            vQ, vZ = v(242), v(243); FM_ = (1 << NPART) - (1 << NS); SM_ = (1 << NS) - 1
            E(valu('v_min_u32', vQ, NPART * 16, vLANE16)); E(valu('v_lshrrev_b32', vQ, 2, vQ))
            E(valu('v_mov_b32', vZ, OOB)); E(smov(sT2, 4 * NPART)); E(raw(f"v_writelane_b32 {vZ}, {sT2}, 0", 'valu', wr=[vZ], rd=[sT2, vZ]))
            E(shr(sC, its[2], 2))
            def drop(): return bstore('buffer_store_dword', vZ, vZ, sWS, sPV, flags='sc1')
            def test(mask):
                E(raw(f"v_cmp_ge_u32 vcc, {sC}, {vP}", 'valu', wr=['vcc'], rd=[vP, sC])); E(nop(1))
                E(raw(f"s_and_b32 {sI}, vcc_lo, {hex(FM_)}", 'salu', wr=[sI], rd=['vcc']))
                E(raw(f"s_and_b32 {sT2}, vcc_lo, {hex(mask)}", 'salu', wr=[sT2], rd=['vcc']))
            def waitpw(tag, mask):
                L = f"L_{n}_{tag}"
                E(smov(sSP, 0))
                E(label(L + "0"))
                E(bload('buffer_load_dword', vP, vQ, sWS, sPV, flags='sc1'))
                E(salu('s_and_b32', sT2, sSP, 4 * CFG.get('pwk', 1) - 1)); E(mul(sT3, sWAVE, CFG.get('pwk', 1))); E(salu('s_cmp_eq_u32', None, sT2, sT3)); E(raw(f"s_cbranch_scc0 {L}1"))
                E(drop()); E(waitvm(1)); E(raw(f"s_branch {L}2"))
                E(label(L + "1")); E(waitvm(0))
                E(label(L + "2"))
                test(mask); E(raw(f"s_cbranch_scc0 {L}3"))
                E(add(sSP, sSP, 1)); E(salu('s_cmp_gt_u32', None, sSP, 4 * CFG.get('spin', 4000))); E(raw(f"s_cbranch_scc1 {L}4"))
                E(raw(f"s_sleep {CFG.get('pwsleep', 2)}")); E(raw(f"s_branch {L}0"))
                E(label(L + "4"))
                E(valu('v_lshlrev_b32', vO, 4, vLANE16)); E(valu('v_mov_b32', vIT, OOB)); E(valu('v_mov_b32', vA, 1))
                E(raw(f"v_cmp_gt_u32 vcc, 0x100, {vLANE16}", 'valu', wr=['vcc'], rd=[vLANE16])); E(valu('v_cndmask_b32', vO, vIT, vO, 'vcc'))
                E(raw(f"s_lshl2_add_u32 {sT2}, {its[2]}, {sPB}", 'salu', wr=[sT2], rd=[its[2], sPB])); E(add(sT2, sT2, ABN))
                E(bstore('buffer_store_dword', vA, vO, sWS, sT2, flags='sc1')); E(waitvm(0))
                E(drop()); E(waitvm(0))
                E(bload('buffer_load_dword', vP, vQ, sWS, sPV, flags='sc1')); E(waitvm(0))
                test(SM_ | FM_); E(raw(f"s_cbranch_scc1 L_{n}_exit"))
                E(label(L + "3"))
            E(salu('s_min_u32', sT2, sRS, sRF)); E(salu('s_cmp_lt_u32', None, its[2], sT2)); E(raw(f"s_cbranch_scc1 L_{n}_f3"))
            E(salu('s_cmp_lt_u32', None, its[2], sRS)); E(raw(f"s_cbranch_scc1 L_{n}_ps"))
            waitpw('ws', SM_)
            E(salu('s_cmp_eq_u32', None, sI, 0)); E(raw(f"s_cbranch_scc1 L_{n}_f3"))
            E(label(f"L_{n}_ps")); ST(its[2])
            warm()
            stream(E, [seg(2, L0, range(NS), True, False)], {5: (lambda _: (E(drop()), 1)[1])})
            waitpw('wf', FM_); ST(50)
            E(raw(f"s_call_b64 {sRET2}, L_{n}_ft")); E(raw(f"s_branch L_{n}_exit"))
            E(label(f"L_{n}_ft"))
            stream(E, [seg(2, L0, range(NS, NPART), False, True)])
            E(raw(f"s_setpc_b64 {sRET2}"))
            E(label(f"L_{n}_old"))
            ensure(its[2], 1, 1)
            E(label(f"L_{n}_f3"))
            stream(E, [seg(2, L0)])
            done(its[2])
            E(salu('s_cmp_eq_u32', None, sMD2, 0)); E(raw(f"s_cbranch_scc1 L_{n}_exit")); E(raw(f"s_branch L_{n}_fb"))
            return
        ensure(its[2], 1, 0); ST(its[2])
        E(salu('s_cmp_lt_u32', None, its[2], sRF)); E(raw(f"s_cbranch_scc1 L_{n}_f3"))
        if CFG.get('rep') and n == 'A':
            warm()
            stream(E, [seg(2, L0, range(NS), True, False)], {4: poll_hook.sh})
            E(label(f"L_{n}_k2"))
            E(salu('s_cmp_eq_u32', None, sWAVE, 0)); E(raw(f"s_cbranch_scc0 L_{n}_w2"))
            E(waitvm(0))
            E(raw(f"v_cmp_ne_u32 vcc, 0, {vP}", 'valu', wr=['vcc'], rd=[vP])); E(nop(1))
            E(raw(f"s_lshr_b64 {sAB}, vcc, {NPART + 1}", 'salu', wr=[sAB], rd=['vcc'])); E(salu('s_and_b32', sAB[1], sAB[1], 15))
            E(salu('s_or_b32', sT2, sAB[0], sAB[1])); E(csel(sRS, 1, 0))
            E(shr(sC, its[2], 2)); E(mul(sI, sROLE, NREP * 128)); E(add(sI, sI, sPB)); E(add(sI, sI, 2048)); E(add(sSP, sI, NREP * 128))
            E(label(f"L_{n}_w0"))
            E(bload('buffer_load_dword', vP, vL5, sWS, sI, flags='sc1')); E(waitvm(0))
            E(raw(f"v_cmp_ge_u32 vcc, {sC}, {vP}", 'valu', wr=['vcc'], rd=[vP, sC])); E(nop(1))
            E(raw(f"s_and_b32 {sT2}, vcc_lo, {hex((1 << NPART) - (1 << NS))}", 'salu', wr=[sT2], rd=['vcc'])); E(csel(sRF, 0, 36))
            E(raw(f"s_cbranch_scc0 L_{n}_w1"))
            E(add(sI, sI, 128)); E(salu('s_cmp_lt_u32', None, sI, sSP)); E(raw(f"s_cbranch_scc0 L_{n}_w1"))
            E(raw(f"s_sleep {CFG.get('rsleep', 6)}")); E(raw(f"s_branch L_{n}_w0"))
            E(label(f"L_{n}_w1")); E(red_pub(sPAR))
            E(label(f"L_{n}_w2")); E(barrier()); E(red_get(sPAR)); E(salu('s_xor_b32', sPAR, sPAR, 12))
            E(smov(sMID, sRS))
            ensure(its[2], 0, 1); ST(50)
            E(raw(f"s_call_b64 {sRET2}, L_{n}_ft")); done(its[2])
            E(salu('s_cmp_eq_u32', None, sMID, 0)); E(raw(f"s_cbranch_scc1 L_{n}_exit")); E(raw(f"s_branch L_{n}_fb"))
            E(label(f"L_{n}_ft"))
            stream(E, [seg(2, L0, range(NS, NPART), False, True)])
            E(raw(f"s_setpc_b64 {sRET2}"))
        elif CFG.get('pw') and n == 'A':
            E(salu('s_cmp_eq_u32', None, sMD2, 0)); E(raw(f"s_cbranch_scc0 L_{n}_old"))
            warm()
            vQ, vZ = v(242), v(243)
            E(valu('v_min_u32', vQ, NPART * 16, vLANE16)); E(valu('v_lshrrev_b32', vQ, 2, vQ))
            E(valu('v_mov_b32', vZ, OOB)); E(smov(sT2, 4 * NPART)); E(raw(f"v_writelane_b32 {vZ}, {sT2}, 0", 'valu', wr=[vZ], rd=[sT2, vZ]))
            def drop_hook(_): E(bstore('buffer_store_dword', vZ, vZ, sWS, sPV, flags='sc1')); return 1
            stream(E, [seg(2, L0, range(NS), True, False)], {5: drop_hook})
            E(shr(sC, its[2], 2)); E(smov(sSP, 0))
            E(label(f"L_{n}_pw0"))
            E(bload('buffer_load_dword', vP, vQ, sWS, sPV, flags='sc1'))
            E(salu('s_and_b32', sT2, sSP, 3)); E(salu('s_cmp_eq_u32', None, sT2, sWAVE)); E(raw(f"s_cbranch_scc0 L_{n}_pw1"))
            E(bstore('buffer_store_dword', vZ, vZ, sWS, sPV, flags='sc1')); E(waitvm(1)); E(raw(f"s_branch L_{n}_pw2"))
            E(label(f"L_{n}_pw1")); E(waitvm(0))
            E(label(f"L_{n}_pw2"))
            E(raw(f"v_cmp_ge_u32 vcc, {sC}, {vP}", 'valu', wr=['vcc'], rd=[vP, sC])); E(nop(1))
            E(raw(f"s_and_b32 {sT2}, vcc_lo, {hex((1 << NPART) - (1 << NS))}", 'salu', wr=[sT2], rd=['vcc'])); E(raw(f"s_cbranch_scc0 L_{n}_pw3"))
            E(add(sSP, sSP, 1)); E(salu('s_cmp_gt_u32', None, sSP, 4 * CFG.get('spin', 4000))); E(raw(f"s_cbranch_scc1 L_{n}_pw4"))
            E(raw(f"s_sleep {CFG.get('pwsleep', 2)}")); E(raw(f"s_branch L_{n}_pw0"))
            E(label(f"L_{n}_pw4"))
            E(valu('v_lshlrev_b32', vO, 4, vLANE16)); E(valu('v_mov_b32', vIT, OOB)); E(valu('v_mov_b32', vA, 1))
            E(raw(f"v_cmp_gt_u32 vcc, 0x100, {vLANE16}", 'valu', wr=['vcc'], rd=[vLANE16])); E(valu('v_cndmask_b32', vO, vIT, vO, 'vcc'))
            E(raw(f"s_lshl2_add_u32 {sT2}, {its[2]}, {sPB}", 'salu', wr=[sT2], rd=[its[2], sPB])); E(add(sT2, sT2, ABN))
            E(bstore('buffer_store_dword', vA, vO, sWS, sT2, flags='sc1')); E(waitvm(0))
            E(bstore('buffer_store_dword', vZ, vZ, sWS, sPV, flags='sc1')); E(waitvm(0))
            E(bload('buffer_load_dword', vP, vQ, sWS, sPV, flags='sc1')); E(waitvm(0))
            E(raw(f"v_cmp_ge_u32 vcc, {sC}, {vP}", 'valu', wr=['vcc'], rd=[vP, sC])); E(nop(1))
            E(raw(f"s_and_b32 {sT2}, vcc_lo, {hex((1 << NPART) - (1 << NS))}", 'salu', wr=[sT2], rd=['vcc'])); E(raw(f"s_cbranch_scc1 L_{n}_exit"))
            E(label(f"L_{n}_pw3")); ST(50)
            E(raw(f"s_call_b64 {sRET2}, L_{n}_ft")); E(raw(f"s_branch L_{n}_exit"))
            E(label(f"L_{n}_ft"))
            stream(E, [seg(2, L0, range(NS, NPART), False, True)])
            E(raw(f"s_setpc_b64 {sRET2}"))
            E(label(f"L_{n}_old"))
            stream(E, [seg(2, L0, range(NS), True, False)])
            ensure(its[2], 0, 1)
            E(raw(f"s_call_b64 {sRET2}, L_{n}_ft")); E(raw(f"s_branch L_{n}_f4"))
        else:
            stream(E, [seg(2, L0, range(NS), True, False)], {6: poll_hook})
            refresh(0)
            ensure(its[2], 0, 1); ST(50)
            stream(E, [seg(2, L0, range(NS, NPART), False, True)], {0: poll_hook.sh} if not AB else None)
            E(raw(f"s_branch L_{n}_f4"))
        E(label(f"L_{n}_f3"))
        stream(E, [seg(2, L0)], {11: poll_hook.sh} if not AB else None)
        E(label(f"L_{n}_f4"))
        done(its[2])
        if AB and CFG.get('abx', 1):
            E(salu('s_cmp_eq_u32', None, sMD2, 0)); E(raw(f"s_cbranch_scc1 L_{n}_exit")); E(raw(f"s_branch L_{n}_fb"))


def reducer(kind):
    p = Prog(); E = p.emit; n = kind; FL = CFG.get('fflags', 'sc1')
    PRIV[0] = (kind == 'A' or (kind == 'M' and bool(CFG.get('mpriv'))))
    def ST(code):
        if CFG['stamps'] != 2: return
        E(raw(f"s_memtime {sSTAMP}", wr=[sSTAMP])); E(raw("s_waitcnt lgkmcnt(0)")); E(salu('s_sub_u32', s(98), s(98), s(100)))
        E(shl(s(98), s(98), 6)); E(salu('s_or_b32', s(98), s(98), code))
        E(add(s(97), s(97), 16)); E(salu('s_min_u32', s(97), s(97), 11 * 16))
        E(raw(f"v_cmp_eq_u32 vcc, s97, {vLANE16}", 'valu', wr=['vcc'], rd=[s(97), vLANE16])); E(valu('v_mov_b32', v(27), s(98)))
        E(valu('v_cndmask_b32', vSTAMP, vSTAMP, v(27), 'vcc'))
    def offs(item, sX_):
        return [salu('s_and_b32', sT2, item, 3), shr(sC, item, 2), shl(sT3, sRB, 2), add(sT2, sT2, sT3), mul(sPART, sT2, PWAVE), add(sX_, sPART, sXW),
                shl(sT3, sC, 12), add(sT3, sT3, sPWv), add(sPART, sPART, sT3), shl(sT3, sC, 7), add(sX_, sX_, sT3)]
    k_ = [0]
    def ensure(item, s_, f_):
        L = f"L_{n}_en{k_[0]}"; k_[0] += 1
        if s_ and f_: E(salu('s_min_u32', sT2, sRS, sRF)); r = sT2
        else: r = sRS if s_ else sRF
        E(salu('s_cmp_lt_u32', None, item, r)); E(raw(f"s_cbranch_scc1 {L}"))
        E(smov(sI, item)); E(smov(sC, (1 if s_ else 0) | (2 if f_ else 0)))
        E(raw(f"s_call_b64 {sRET2}, L_{n}_sync"))
        E(salu('s_cmp_eq_u32', None, sTO, 0)); E(raw(f"s_cbranch_scc0 L_{n}_fb"))
        E(label(L))
    def done(item): E(raw(f"s_bitset0_b64 {sRM}, {item}", 'salu', wr=[sRM], rd=[sRM, item]))
    E(label(f"L_{n}_red"))
    if CFG.get('rdelay'):
        if n == 'A': (E(waitvm(0)), E(barrier()), E(valu('v_mov_b32', vPRG, 9)), E(bstore('buffer_store_dword', vPRG, vCT, sWS, 0, flags='sc1')))
        for _ in range({'A': 30, 'M': 24, 'F': 14}[n]): E(raw("s_sleep 16"))
    E(red_get(LDSC))
    if CFG.get('rdelay'): E(smov(sRS, 36)); E(smov(sRF, 36))
    E(valu('v_lshrrev_b32', vO, 4, vLANE16)); E(valu('v_and_b32', vXO, 7, vO)); E(valu('v_lshlrev_b32', vLD, 4, vXO))
    E(smov(sT2, 1152)); E(valu('v_mul_u32_u24', vXO, sT2, vXO))
    E(valu('v_lshrrev_b32', vA, 3, vO)); E(valu('v_lshl_add_u32', vX4, vA, 4, vXO))
    E(valu('v_bfe_u32', vA, vO, 3, 2)); E(valu('v_lshl_add_u32', vXO, vA, 3, vXO)); E(valu('v_lshl_add_u32', vLD, vA, 8, vLD))
    E(valu('v_lshrrev_b32', vA, 5, vO)); E(valu('v_lshl_add_u32', vXO, vA, 6, vXO)); E(valu('v_lshl_add_u32', vLD, vA, 11, vLD))
    E(mul(sXW, sWAVE, 8 * 1152)); E(shr(sPWv, sWAVE, 1)); E(shl(sPWv, sPWv, 10)); E(salu('s_and_b32', sT2, sWAVE, 1)); E(shl(sT2, sT2, 7)); E(add(sPWv, sPWv, sT2))
    L0, L1 = 72, 76 + 4 * NPART
    E(smov(sD0, 0x3f80)); E(smov(sD1, 0x3f800000))
    E(raw(f"s_mov_b64 {sRM}, 0", 'salu', wr=[sRM]))
    FOUR = CFG.get('four')
    sMID = s(48 + 0) if False else s(83)
    def nib(dst, tab, base):
        E(smov(sCD[0], sum(tab[i] << (4 * i) for i in range(8)))); E(smov(sCD[1], tab[8] | (tab[9] << 4)))
        E(shl(sT2, sROLE, 2)); E(s64('s_lshr_b64', sCD, sCD, sT2)); E(salu('s_and_b32', dst, sCD[0], 15))
        E(salu('s_cmp_eq_u32', None, dst, 15)); E(csel(dst, 63 - base, dst)); E(add(dst, dst, base))
    if n == 'A':
        E(smov(sIT[0], sROLE)); E(add(sIT[1], sROLE, NA))
        if CFG.get('bal'):
            nib(sIT[1], [x - 10 for x in BAL2], 10); nib(sIT[2], [x - 21 for x in BAL3], 21); nib(sMID, [min(x - BMB(), 15) for x in BALM], BMB())
            E(raw(f"s_bitset1_b64 {sRM}, {sMID}", 'salu', wr=[sRM], rd=[sRM, sMID]))
        elif CFG.get('asg') == 2: E(add(sIT[2], sROLE, 16))
        elif CFG.get('asg') == 3:
            E(add(sMID, sROLE, 16)); E(raw(f"s_bitset1_b64 {sRM}, {sMID}", 'salu', wr=[sRM], rd=[sRM, sMID]))
            E(salu('s_and_b32', sT2, sROLE, 1)); E(shr(sIT[2], sROLE, 1)); E(add(sIT[2], sIT[2], 24)); E(salu('s_cmp_eq_u32', None, sT2, 0)); E(csel(sIT[2], sIT[2], 63))
        elif CFG.get('l844'): E(add(sIT[2], sROLE, 28))
        elif FOUR:
            nib(sMID, [0, 15, 1, 2, 15, 3, 4, 5, 6, 7], 20); nib(sIT[2], [0, 1, 15, 2, 3, 15, 4, 5, 6, 7], 28)
            E(raw(f"s_bitset1_b64 {sRM}, {sMID}", 'salu', wr=[sRM], rd=[sRM, sMID]))
        else:
            nib(sIT[2], [0, 1, 15, 2, 3, 15, 4, 5, 6, 7], 28)
            E(salu('s_cmp_eq_u32', None, sROLE, 2)); E(csel(sIT[2], 23 if CFG.get('m3') else 22, sIT[2])); E(salu('s_cmp_eq_u32', None, sROLE, 5)); E(csel(sIT[2], 24 if CFG.get('m3') else 21, sIT[2]))
            if CFG.get('nof'):
                nib(sMD2, CFG['nof'], 23)
                E(raw(f"s_bitset1_b64 {sRM}, {sMD2}", 'salu', wr=[sRM], rd=[sRM, sMD2]))
        its = sIT
    elif CFG.get('asg') == 2:
        if n == 'M': E(add(sIT[0], sROLE, 16)); E(add(sIT[1], sROLE, 20)); its = sIT[:2]
        else: E(add(sIT[0], sROLE, 20)); its = sIT[:1]
    elif CFG.get('asg') == 3:
        E(add(sIT[0], sROLE, 20)); its = sIT[:1]
    elif CFG.get('l844'):
        if n == 'M': E(add(sIT[0], sROLE, 8)); E(add(sIT[1], sROLE, 12)); its = sIT[:2]
        else: E(add(sIT[0], sROLE, 12)); its = sIT[:1]
    elif n == 'M' and CFG.get('m3') == 2: E(smov(sIT[0], 20)); E(smov(sIT[1], 21)); its = sIT[:2]
    elif n == 'M' and CFG.get('m3'): E(smov(sIT[0], CFG.get('mb', 20))); E(smov(sIT[1], CFG.get('mb', 20) + 1)); E(smov(sIT[2], CFG.get('mb', 20) + 2)); its = sIT
    elif n == 'M': E(smov(sIT[0], 20)); its = sIT[:1]
    else:
        E(add(sIT[0], sROLE, 12)); its = sIT[:1]
    if (FOUR and n != 'A') or (CFG.get('nof') and n == 'F'):
        its = []
        E(waitvm(0)); E(red_poll()[1]); E(waitvm(0)); E(raw(f"s_branch L_{n}_fin"))
    if (CFG.get('bal') or CFG.get('m3')) and n == 'F':
        E(salu('s_cmp_ge_u32', None, sROLE, 13 if CFG.get('bal') != 2 else 16)); E(raw(f"s_cbranch_scc1 L_{n}_hi"))
        E(waitvm(0)); E(ab_load() if CFG.get('abn') else red_poll()[1]); E(waitvm(0)); E(raw(f"s_branch L_{n}_fin")); E(label(f"L_{n}_hi"))
    for it in its: E(raw(f"s_bitset1_b64 {sRM}, {it}", 'salu', wr=[sRM], rd=[sRM, it]))
    E(salu('s_and_b32', sRM[1], sRM[1], 15))
    def refresh(wait, ab=False):
        L = f"L_{n}_rf{k_[0]}"; k_[0] += 1
        E(salu('s_cmp_eq_u32', None, sWAVE, 0)); E(raw(f"s_cbranch_scc0 {L}"))
        E(waitvm(wait)); E(red_eval())
        if ab: E(ab_eval()); E(salu('s_or_b32', sT2, sAB[0], sAB[1])); E(csel(sTO, 1, 0))
        E(red_pub(sPAR))
        E(label(L)); E(barrier()); E(red_get(sPAR)); E(salu('s_xor_b32', sPAR, sPAR, 12))
        if ab: E(smov(sMD2, sTO)); E(smov(sTO, 0))
    ALLD = lambda L, sx: ld_part(L, range(NPART), FL) + ld_x(L, sx)
    LATE = n in CFG.get('lateflag', 'A') + CFG.get('pre', '')
    sPT = [s(47), s(67 - 2), s(70)]
    def offs2(i): return offs(its[i], sXP[i]) + ([smov(sPT[i], sPART)] if i else [])
    def final_flag(wait):
        E(waitvm(wait)); E(barrier())
        E(valu('v_mov_b32', vPRG, 9))
        if CFG.get('rep') and n in 'FM': E(bstore('buffer_store_dword', vPRG, vCR, sWS, 0, flags='sc1'))
        E(bstore('buffer_store_dword', vPRG, vCT, sWS, 0, flags='sc1'))
        return 2 if (CFG.get('rep') and n in 'FM') else 1
    def poll_hook(_): E(red_poll()[1]); return 2
    def poll_sh(_): E(red_poll(True)[1]); return 2
    poll_hook.sh = poll_sh
    seg = lambda i, L, ks=range(NPART), wx=True, fin=True: (L, sPT[i], sXP[i], ks, wx, fin)
    ni = len(its)
    for i in reversed(range(ni)): E(offs2(i))
    two = min(ni, 2)
    if ni: body_items(E, n, its, two, ni, ensure, refresh, done, ST, seg, final_flag, poll_hook, LATE, L0, L1, FOUR, sMID, offs, sPT)
    E(label(f"L_{n}_fin"))
    E(salu('s_cmp_eq_u32', None, sWAVE, 0)); E(raw(f"s_cbranch_scc0 L_{n}_b4"))
    if CFG.get('abn'): E(ab_eval())
    else:
        E(waitvm(2))
        E(raw(f"v_cmp_ne_u32 vcc, 0, {vP}", 'valu', wr=['vcc'], rd=[vP])); E(nop(1))
        E(raw(f"s_lshr_b64 {sAB}, vcc, {NPART + 1}", 'salu', wr=[sAB], rd=['vcc'])); E(salu('s_and_b32', sAB[1], sAB[1], 15))
    E(salu('s_or_b32', sT2, sAB[0], sAB[1])); E(csel(sTO, 1, 0))
    E(salu('s_cmp_ge_u32', None, sOK, 16)); E(csel(sTO, sTO, 1)); E(red_pub(sPAR))
    E(label(f"L_{n}_b4")); E(barrier()); E(red_get(sPAR)); E(salu('s_xor_b32', sPAR, sPAR, 12))
    E(salu('s_cmp_eq_u32', None, sTO, 0)); E(raw(f"s_cbranch_scc1 L_{n}_exit"))
    E(label(f"L_{n}_fb"))
    E(waitvm(0))
    E(salu('s_cmp_eq_u32', None, sWAVE, 0)); E(raw(f"s_cbranch_scc0 L_{n}_fb2"))
    if CFG.get('abn'):
        E(raw(f"s_mov_b64 {sCD}, {sRM}", 'salu', wr=[sCD], rd=[sRM])); E(valu('v_mov_b32', vA, 1))
        E(valu('v_lshlrev_b32', vO, 4, vLANE16)); E(valu('v_mov_b32', vIT, OOB))
        E(raw(f"v_cmp_gt_u32 vcc, 0x100, {vLANE16}", 'valu', wr=['vcc'], rd=[vLANE16])); E(valu('v_cndmask_b32', vO, vIT, vO, 'vcc'))
        E(label(f"L_{n}_mk"))
        E(raw(f"s_cmp_eq_u64 {sCD}, 0", 'salu', rd=[sCD])); E(raw(f"s_cbranch_scc1 L_{n}_mk1"))
        E(raw(f"s_ff1_i32_b64 {sT2}, {sCD}", 'salu', wr=[sT2], rd=[sCD])); E(raw(f"s_bitset0_b64 {sCD}, {sT2}", 'salu', wr=[sCD], rd=[sCD, sT2]))
        E(raw(f"s_lshl2_add_u32 {sT2}, {sT2}, {sPB}", 'salu', wr=[sT2], rd=[sT2, sPB])); E(add(sT2, sT2, ABN))
        E(bstore('buffer_store_dword', vA, vO, sWS, sT2, flags='sc1')); E(raw(f"s_branch L_{n}_mk"))
        E(label(f"L_{n}_mk1")); E(waitvm(0))
        E(red_poll()[0]); E(waitvm(0))
        E(valu('v_mov_b32', vO, OOB)); E(smov(sT2, 36 * 4)); E(raw(f"v_writelane_b32 {vO}, {sT2}, 1", 'valu', wr=[vO], rd=[sT2, vO]))
        E(bstore('buffer_store_dword', vA, vO, sWS, sAV_, flags='sc1'))
        E(valu('v_mov_b32', vIT, 0)); E(valu('v_mov_b32', vO, OOB)); E(raw(f"v_writelane_b32 {vO}, 0, 0", 'valu', wr=[vO], rd=[vO]))
        E(I(f"buffer_atomic_add {vIT}, {vO}, {sWS}, {sAV_} offen sc1", 'vstore', rd=vIT.regs() + vO.regs() + sWS.regs() + sAV_.regs(), units=3))
        E(waitvm(0)); E(ab_load()); E(red_poll(True)[1]); E(waitvm(0)); E(valu('v_readfirstlane_b32', sOK, vD)); E(red_eval()); E(ab_eval())
    else:
        E(s64('s_lshl_b64', sCD, sRM, NPART + 1)); E(valu('v_mov_b32', vO, OOB)); E(valu('v_mov_b32', vA, 1))
        E(valu('v_cndmask_b32', vO, vO, vL4, sCD)); E(bstore('buffer_store_dword', vA, vO, sWS, sPB, flags='sc1')); E(waitvm(0))
        E(red_poll()[0]); E(waitvm(0)); E(red_poll(True)[1]); E(waitvm(0)); E(valu('v_readfirstlane_b32', sOK, vD)); E(red_eval())
    E(salu('s_min_u32', sT2, sRS, sRF)); E(salu('s_cmp_ge_u32', None, sOK, 16)); E(csel(sT2, sT2, 0))
    E(salu('s_bfm_b64', sCD, sT2, 0, scc_w=False)); E(s64('s_or_b64', sAB, sAB, sRM)); E(s64('s_and_b64', sAB, sAB, sCD))
    E(label(f"L_{n}_fb1"))
    E(raw(f"s_ff1_i32_b64 {sRS}, {sAB}", 'salu', wr=[sRS], rd=[sAB])); E(salu('s_and_b32', sRS, sRS, 255))
    E(raw(f"s_bitset0_b64 {sAB}, {sRS}", 'salu', wr=[sAB], rd=[sAB, sRS])); E(red_pub(sPAR))
    E(label(f"L_{n}_fb2")); E(barrier()); E(red_get(sPAR)); E(salu('s_xor_b32', sPAR, sPAR, 12))
    E(salu('s_cmp_ge_u32', None, sRS, 36)); E(raw(f"s_cbranch_scc1 L_{n}_exit"))
    E(offs(sRS, sXP[0])); E(ld_part(L0, range(NPART), FL) + ld_x(L0, sXP[0])); E(waitvm(0)); proc_all(E, L0, sXP[0], 0, [])
    E(salu('s_cmp_eq_u32', None, sWAVE, 0)); E(raw(f"s_cbranch_scc1 L_{n}_fb1")); E(raw(f"s_branch L_{n}_fb2"))
    E(label(f"L_{n}_exit"))
    ST(60)
    if CFG['stamps']: E(raw(f"s_setpc_b64 {sRET}"))
    else: E(raw("s_endpgm"))
    E(label(f"L_{n}_sync"))
    E(salu('s_cmp_eq_u32', None, sWAVE, 0)); E(raw(f"s_cbranch_scc0 L_{n}_sy2"))
    E(smov(sSP, 0)); E(red_poll()[1][0])
    E(label(f"L_{n}_sy0"))
    E(salu('s_cmp_ge_u32', None, sOK, 16)); E(raw(f"s_cbranch_scc1 L_{n}_sy1"))
    E(red_poll()[0]); E(waitvm(0)); E(valu('v_readfirstlane_b32', sOK, vD))
    E(salu('s_cmp_ge_u32', None, sOK, 16)); E(raw(f"s_cbranch_scc0 L_{n}_syw"))
    E(label(f"L_{n}_sy1"))
    E(red_poll()[1][1]); E(red_poll()[1][0]); E(waitvm(1)); E(red_eval())
    E(salu('s_bitcmp1_b32', None, sC, 0)); E(csel(sT2, sRS, 36)); E(salu('s_bitcmp1_b32', None, sC, 1)); E(csel(sT3, sRF, 36))
    E(salu('s_min_u32', sT2, sT2, sT3)); E(salu('s_cmp_lt_u32', None, sI, sT2)); E(raw(f"s_cbranch_scc1 L_{n}_syp"))
    E(label(f"L_{n}_syw"))
    E(add(sSP, sSP, 1)); E(salu('s_cmp_gt_u32', None, sSP, CFG.get('spin', 4000))); E(csel(sTO, 1, 0)); E(raw(f"s_cbranch_scc1 L_{n}_syp"))
    E(raw(f"s_sleep {CFG.get('sleep', 1)}")); E(raw(f"s_branch L_{n}_sy0"))
    E(label(f"L_{n}_syp"))
    E(red_pub(sPAR))
    E(label(f"L_{n}_sy2")); E(barrier()); E(red_get(sPAR)); E(salu('s_xor_b32', sPAR, sPAR, 12))
    E(raw(f"s_setpc_b64 {sRET2}"))
    return p

def reduce_items(p, ni, sPART_, sXO_, srdP, srdX, srdO, vL16, vXO_, base, flags, mid=None):
    E = p.emit
    SA = base; FA = base + 8; T = base + 16
    Ls = [base + 24 + 72 * i for i in range(ni)]
    for k in range(NPART):
        if k: E(add(sPART_, sPART_, 16 * PART - (PWAVE if ni == 2 else 0)))
        for i in range(ni):
            if i: E(add(sPART_, sPART_, PWAVE))
            E(bload('buffer_load_dwordx4', v(Ls[i] + 4 * k, 4), vL16, srdP, sPART_, flags=flags))
    for i in range(ni):
        XR = Ls[i] + 68
        if i: E(add(sT2, sXO_, 32 * 1152))
        so = sT2 if i else sXO_
        E(bload('buffer_load_dwordx2', v(XR, 2), vXO_, srdX, so)); E(bload('buffer_load_dwordx2', v(XR + 2, 2), vXO_, srdX, so, 32))
    ex = 0
    if mid: mid(); ex = 1
    E(smov(sT3, 0xffff0000))
    for i in range(ni):
        L = Ls[i]; XR = L + 68
        for k in range(NPART):
            if i == 0: E(waitvm((NPART - 1 - k) * ni + (ni - 1) + 2 * ni + ex))
            acc = SA if k < 11 else FA
            for q in range(4):
                x = v(L + 4 * k + q)
                if k in (0, 11):
                    E(valu('v_lshlrev_b32', v(acc + 2 * q), 16, x)); E(valu('v_and_b32', v(acc + 2 * q + 1), sT3, x))
                else:
                    tp = v(T + 2 * q, 2)
                    E(valu('v_lshlrev_b32', tp[0], 16, x)); E(valu('v_and_b32', tp[1], sT3, x))
            if k not in (0, 11):
                for q in range(4): E(valu('v_pk_add_f32', v(acc + 2 * q, 2), v(acc + 2 * q, 2), v(T + 2 * q, 2)))
        for e in range(8): E(valu('v_exp_f32', v(T + e), v(FA + e)))
        for e in range(8): E(valu('v_add_f32', v(T + e), 1.0, v(T + e)))
        for e in range(8): E(valu('v_rcp_f32', v(T + e), v(T + e)))
        for e in range(8): E(valu('v_mul_f32', v(FA + e), f2u(-math.log(2.0)), v(FA + e)))
        for e in range(8): E(valu('v_mul_f32', v(FA + e), v(FA + e), v(T + e)))
        if i == 0: E(waitvm(ex if ni == 1 else 0))
        for q in range(4):
            E(valu('v_lshlrev_b32', v(T + 2 * q), 16, v(XR + q))); E(valu('v_and_b32', v(T + 2 * q + 1), sT3, v(XR + q)))
        for e in range(8): E(valu('v_fma_f32', v(T + e), v(SA + e), v(FA + e), v(T + e)))
        for q in range(4): E(valu('v_cvt_pk_bf16_f32', v(XR + q), v(T + 2 * q), v(T + 2 * q + 1)))
        if i: E(add(sXO_, sXO_, 32 * 1152))
        E(bstore('buffer_store_dwordx2', v(XR, 2), vXO_, srdO, sXO_)); E(bstore('buffer_store_dwordx2', v(XR + 2, 2), vXO_, srdO, sXO_, 32))

def build_role(kind, vm_before):
    R = Role(kind)
    CFG['shape'] = CFG.get('shapes', {}).get(kind, CFG['shape0'])
    R.ring = {'F': (216, 9), 'A': (192, 16), 'M': (200, 8)}[kind]
    if kind == 'M': R.depth = 7
    nl = CFG.get('pfl', 16)
    MS = CFG['shape'] == 'M'
    if MS:
        R.add_p1_unit, R.add_p1_half, R.epi_silu, R.epi_q = R.add_p1_unitM, R.add_p1_halfM, R.epi_siluM, R.epi_qM
    P2M = 'q16' if MS else 'pi'
    if kind == 'F' and CFG.get('l844'):
        R.ring = (208, 12); R.depth = 7
        for u in range(13): R.add_p1_unit(u, sW1, sHA, sHC, 9216, u == 0, a(16 * u, 16), R.epi_silu, last=(u == 12),
                                          inreg=[pf_run(sW2, sPF2, 832 * 1152, 10) if u >= 1 else None, pf_row('F', sW1)])
        needs = {t: [('reg', 8 * t)] for t in range(26)}
        dm = [dma_w(sW2, sFA, 0, 1152, sFC, 0), dma_w(sW2, sFA, 288 * 1152, 1152, sFC, 288 * 1152), dma_w(sW2, sFA, 576 * 1152, 1152)]
        R.add_p2([(a(0, 208), [288, 288, 256], dm, needs, sSt)], [add(x, x, 128) for x in (sFA, sFC)], pre0=lambda: set_offw(1152, P2M))
        for st in R.stages[-27:]: st.ring = (208, 12, 'restart')
    elif kind == 'M' and CFG.get('l844'):
        R.ring = (208, 8); R.depth = 7
        Q = [a(80, 32), a(112, 32)]; OA = a(144, 64)
        def mpf(u):
            if u == 0: return pf_row('M', sWQ)
            if u == 1: return lambda: pf_row_setup('M', 9216, 18, sPF1, 0) + [pf_row('M', sW1)()[1]]
            if u <= 5: return pf_row('M', sW1)
            return None
        for u in range(4): R.add_p1_unit(u, sWQ, sQA, sQC, 8192, u == 0, a(80 + 16 * u, 16), R.epi_q, key='Q', inreg=[None, mpf(u)])
        for u in range(5): R.add_p1_unit(4 + u, sW1, sHA, sHC, 9216, u == 0, a(16 * u, 16), R.epi_silu, pre=(lambda: set_offw(9216, 'S')) if u == 0 else None,
                                         last=(u == 4), key='H', inreg=[None, mpf(4 + u)])
        Ha = dict(i=0, Q=Q[0], S=Sreg, P=Preg, O=OA, LM=v(230, 8), OF=lambda kk: OA.sub(16 * kk, 8),
                  need_qk=[('acc', 80), ('acc', 96)], need_pv=[('acc', 48 + 16 * i) for i in range(4)])
        Hb = dict(i=1, Q=Q[1], S=[v(80, 16), v(96, 16)], P=[v(48, 8), v(56, 8)], O=v(160, 64), LM=v(64, 8), OF=lambda kk: OA.sub(16 * kk + 8, 8))
        R.add_pa_g([[Ha, Hb]])
        R.stages[-9].mf[-1].need.append(('acc', 48))
        R.heads = [(Ha, sPFa), (Hb, sPFa)]
        R.add_p2m(a(0, 80), [H['OF'](kk) for H in (Ha, Hb) for kk in range(4)],
                  [dma_w(sW2, sFA, 0, 1152, sFC, 0), dma_w(sWO, sOA, 0, 1152, sFC, 32 * 1152, srdC=sW2)],
                  [add(x, x, 128) for x in (sOA, sFA, sFC)], pre0=lambda: set_offw(1152, P2M))
        for st in R.stages[-18:]: st.ring = (208, 12, 'restart')
        k = pf_sched(R, 15, sK, sPFa, 131072, 16); k = pf_sched(R, k, sV, sPFa, 131072, 16)
        pf_sched(R, 17, sWO, sPFc, 256 * 1152, 36); pf_sched(R, 18, sW2, sPF2, 320 * 1152, 45)
    elif kind == 'F':
        for u in range(13): R.add_p1_unit(u, sW1, sHA, sHC, 9216, u == 0, a(16 * u, 16), R.epi_silu, last=(u == 12), inreg=[pf_run(sW2, sPF2, 832 * 1152, 10) if u >= 1 else None, pf_row('F', sW1) if CFG['pf'] >= 3 else None] if CFG['pf'] else None)
        R.add_p1_half(13, a(208, 8))
        needs = {t: [('reg', 8 * t)] for t in range(27)}
        dm = [dma_w(sW2, sFA, 0, 1152, sFC, 0), dma_w(sW2, sFA, 288 * 1152, 1152, sFC, 288 * 1152), dma_w(sW2, sFA, 576 * 1152, 1152, sFS, 0)]
        R.add_p2([(a(0, 216), [288, 288, 288], dm, needs, sSt)], [add(x, x, 128) for x in (sFA, sFC, sFS)], pre0=lambda: set_offw(1152, P2M))
        if CFG['pf']:
            pf_sched(R, 26, sW2, sPF2h, 32 * 1152, 8)
    elif kind == 'A' and CFG.get('pair'):
        OA = a(96, 64)
        Ha = dict(i=0, Q=a(0, 32), S=Sreg, P=Preg, O=OA, LM=v(230, 8), OF=lambda kk: OA.sub(16 * kk, 8),
                  need_qk=[('acc', 48), ('acc', 64)], need_pv=[('acc', 48 + 16 * i) for i in range(4)])
        Hb = dict(i=1, Q=a(32, 32), S=[v(48, 16), v(64, 16)], P=[v(80, 8), v(88, 8)], O=v(160, 64), LM=v(96, 8), OF=lambda kk: OA.sub(16 * kk + 8, 8))
        Hc = dict(i=2, Q=a(64, 32), S=Sreg, P=Preg, O=v(48, 64), LM=v(16, 8), OF=lambda kk: a(160 + 8 * kk, 8), need_pv=[('lm', 0)])
        Ha['need_qk'] += [('acc', 80)]
        pj = {1: sJQ}
        for u in range(6):
            R.add_p1_unit(u, sWQ, sQA, sQC, 8192, u == 0, a(16 * u, 16), R.epi_q, last=(u == 5), step=sJQ if u == 4 else 128,
                          inreg=[pf_run(sWO, sPFc, 384 * 1152, 11) if u >= 1 else None, pf_row('A', sWQ, pj.get(u, 128)) if CFG['pf'] >= 3 and u < 3 else None] if CFG['pf'] else None)
        R.add_pa_g([[Ha, Hb], [Hc]])
        Bf = [H['OF'](kk) for H in (Ha, Hb, Hc) for kk in range(4)]
        needs = {0: [('fin', 0), ('fin', 1)], 8: [('fin', 2)]}
        dm = [dma_w192(sWO, 0), dma_w192(sWO, 0, sOA1, sOB1)]
        R.add_p2([(Bf, [192, 192], dm, needs, sSt)], [add(x, x, 128) for x in (sOA, sOB, sOA1, sOB1)], pre0=lambda: set_offw(1152, P2M))
        R.heads = [(Ha, sPFa), (Hb, sPFa), (Hc, sPFb)]
        if CFG['pf'] >= 2:
            pf_sched(R, 10, sK, sPFa, 131072, 16); pf_sched(R, 10, sV, sPFa, 131072, 16)
            pf_sched(R, 12, sK, sPFb, 131072, 16); pf_sched(R, 12, sV, sPFb, 131072, 16)
    elif kind == 'A':
        Q = [a(32 * e, 32) for e in range(3)]; O = [a(96 + 32 * e, 32) for e in range(3)]
        for u in range(6): R.add_p1_unit(u, sWQ, sQA, sQC, 8192, u == 0, a(16 * u, 16), R.epi_q, last=(u == 5), inreg=[pf_run(sWO, sPFc, 384 * 1152, 11) if u >= 1 else None, pf_row('A', sWQ) if CFG['pf'] >= 3 and u < 5 else None] if CFG['pf'] else None)
        R.add_pa(Q, O)
        needs = {4 * e: [('fin', e)] for e in range(3)}; needs[0].append(('S', 2, 15))
        dm = [dma_w192(sWO, b * 192 * 1152) for b in range(2)]
        R.add_p2([(a(96, 96), [192, 192], dm, needs, sSt)], [add(sOA, sOA, 128), add(sOB, sOB, 128)], pre0=lambda: set_offw(1152, P2M))
        if CFG['pf']:
            if CFG['pf'] >= 2:
                pf_sched(R, 10, sK, sPFa, 131072, 16); pf_sched(R, 10, sV, sPFa, 131072, 16)
                pf_sched(R, 12, sK, sPFb, 131072, 16); pf_sched(R, 12, sV, sPFb, 131072, 16)
    else:
        Q = [a(136 + 32 * e, 32) for e in range(2)]; O = [a(72 + 32 * e, 32) for e in range(2)]
        def mpf(u):
            if u == 0: return pf_row('M', sWQ)
            if u == 1: return lambda: pf_row_setup('M', 9216, 18, sPF1, 0) + [pf_row('M', sW1)()[1]]
            if u <= 4: return pf_row('M', sW1)
            if u == 5: return lambda: [smov(sPW, sPF1h), pf_row('M', sW1)()[1]]
            return None
        for u in range(4): R.add_p1_unit(u, sWQ, sQA, sQC, 8192, u == 0, a(136 + 16 * u, 16), R.epi_q, key='Q', inreg=[None, mpf(u)] if CFG['pf'] >= 3 else None)
        for u in range(4): R.add_p1_unit(4 + u, sW1, sHA, sHC, 9216, u == 0, a(16 * u, 16), R.epi_silu, pre=(lambda: set_offw(9216, 'M' if MS else 'S')) if u == 0 else None, last=(u == 3), key='H', inreg=[None, mpf(4 + u)] if CFG['pf'] >= 3 else None)
        R.add_p1_half(8, a(64, 8))
        BO = a(72, 64)
        if CFG.get('pair'):
            Ha = dict(i=0, Q=Q[0], S=Sreg, P=Preg, O=BO, LM=v(230, 8), OF=lambda kk: BO_.sub(16 * kk, 8),
                      need_qk=[('acc', 48 + 16 * i) for i in range(3)], need_pv=[('acc', 48 + 16 * i) for i in range(4)])
            Hb = dict(i=1, Q=Q[1], S=[v(64, 16), v(48, 16)], P=[v(80, 8), v(88, 8)], O=v(160, 64), LM=v(96, 8), OF=lambda kk: BO_.sub(16 * kk + 8, 8))
            BO_ = BO
            if CFG.get('mfree', 0):
                Hb['S'] = [v(64, 16), v(238, 16)]; Ha['need_qk'] = [('acc', 64), ('acc', 80)]; Ha['need_pv'] = [('acc', 96)]
                R.ntmp = 12; R.ones = v(28, 4)
                for st_, idx in ((R.stages[-2], -1), (R.stages[-1], -1)):
                    m_ = st_.mf[idx]; f_ = m_.after
                    m_.after = (lambda G, f_=f_: (setattr(R, 'low', True), f_(G), setattr(R, 'low', False)))
            R.add_pa_g([[Ha, Hb]])
            BO = [H['OF'](kk) for H in (Ha, Hb) for kk in range(4)]
            R.heads = [(Ha, sPFa), (Hb, sPFa)]
        else: R.add_pa(Q, O)
        nf = {t: [('reg', 8 * t)] for t in range(9)}; nf[0].append(('S', 1, 15))
        R.add_p2([(a(0, 72), [288], [dma_w(sW2, sFA, 0, 1152, sFS, 0)], nf, sSt2),
                  (BO, [256], [dma_w(sWO, sOA, 0, 1152)], {0: [('fin', 0)], 4: [('fin', 1)]}, sSt)],
                 [add(x, x, 128) for x in (sOA, sFA, sFS)], pre0=lambda: set_offw(1152, P2M))
        for st in R.stages[-18:]: st.ring = (200, 14, 'restart')
        if CFG['pf']:
            if CFG['pf'] >= 2:
                k = pf_sched(R, 14, sK, sPFa, 131072, 16); k = pf_sched(R, k, sV, sPFa, 131072, 16)
            pf_sched(R, 16, sWO, sPFc, 256 * 1152, 36); pf_sched(R, 23 if not CFG.get('pair') else 17, sW2, sPF2, 256 * 1152, 36); pf_sched(R, 24 if not CFG.get('pair') else 17, sW2, sPF2h, 32 * 1152, 8)
    if CFG.get('msum') and not MS and kind in 'AM':
        st0 = [st for st in R.stages if st.name == 'PAh0s0'][0]
        m0_ = st0.mf[8]
        if not hasattr(R, 'ones'): m0_.need += [('acc', 48 + 16 * i) for i in range(4)]
        m0_.pre = lambda: R.p.emit([valu('v_mov_b32', getattr(R, 'ones', vONES)[i], 0x3f803f80) for i in range(4)])
    if CFG.get('recode') and CFG['fused']:
        names = [st.name for st in R.stages]
        nS = len(names)
        R.pf.setdefault(nS - 2, []).append(pf_code(f"L_{kind}_red", f"L_role{kind}_end", 4))
        p2 = names.index('P2c0b0')
        R.stages[p2].label = f"L_{kind}_p2"
        R.pf.setdefault(p2 - 2, []).append(pf_code(f"L_{kind}_p2", f"L_{kind}_p2+20480", 5))
        if kind in 'AM':
            pa = names.index('PAmini'); R.stages[pa].label = f"L_{kind}_pa"
            R.pf.setdefault(pa - 1, []).append(pf_code(f"L_{kind}_pa", f"L_{kind}_p2", 8))
    if CFG.get('hot') and CFG['fused'] and kind in CFG['hot']:
        names = [st.name for st in R.stages]
        last = names.index('P2c8b0'); R.stages[last].label = f"L_{kind}_c8"
        def setup():
            o = [raw(f"s_getpc_b64 {sPC}", 'salu', wr=[sPC]), label(f"L_{kind}_hp"),
                 salu('s_add_u32', sPC[0], sPC[0], f"L_{kind}_c8-L_{kind}_hp"), salu('s_addc_u32', sPC[1], sPC[1], 0, scc_r=True),
                 valu('v_bfe_u32', vPF2, vTID, 16, 5), valu('v_and_b32', vPF, 63, vTID), valu('v_min_u32', vPF, 1, vPF),
                 valu('v_lshl_add_u32', vPF, vPF2, 1, vPF), valu('v_lshlrev_b32', vPF, 7, vPF)]
            if kind == 'F': o += pf_row_setup(kind, 1152, 26, sPF2, 2 * 128)
            return o
        def rep_code():
            return [I(f"global_load_dword {vDUM}, {vPF}, {sPC}", 'vload', wr=vDUM.regs(), rd=vPF.regs() + sPC.regs(), units=3, tag='pf')]
        R.pf.setdefault(names.index('P2c1b0'), []).append(setup)
        for c in range(2, 8):
            k0 = names.index(f'P2c{c}b0')
            R.pf.setdefault(k0, []).append(rep_code)
            if kind == 'F': R.pf.setdefault(k0 + 1, []).append(pf_row(kind, sW2))
    R.slow = []
    if kind in 'AM' and CFG.get('slow', True) and CFG.get('pair'):
        P2s = [st for st in R.stages if st.name.startswith('P2c0')]
        hl = [(H['i'], H['Q'], (H['OF'], kv)) for (H, kv) in R.heads]
        if kind == 'A':
            P2s[0].mf[0].pre = slow_check(R, hl[:2], (112, 160))
            [m for m in P2s[1].mf if ('fin', 2) in m.need][0].pre = slow_check(R, hl[2:], (160, 48))
        else:
            m_ = P2s[1].mf[4 if CFG.get('l844') else 0]
            m_.need += [('fin', 0), ('fin', 1)]
            m_.pre = slow_check(R, hl, (160, 48))
    elif kind in 'AM' and CFG.get('slow', True):
        P2s = [st for st in R.stages if st.name.startswith('P2c0')]
        if kind == 'A':
            P2s[0].mf[0].need += [('fin', 1)]
            P2s[0].mf[0].pre = slow_check(R, [(0, Q[0], O[0]), (1, Q[1], O[1])], 112)
            m_ = [m for m in P2s[1].mf if ('fin', 2) in m.need][0]
            m_.pre = slow_check(R, [(2, Q[2], O[2])], 160)
        else:
            P2s[1].mf[0].need += [('fin', 1)]
            P2s[1].mf[0].pre = slow_check(R, [(0, Q[0], O[0]), (1, Q[1], O[1])], 160)
    if CFG['fused']:
        add_signals(R)
        def early0():
            it = red_setup(kind) + red_poll()[0]
            it[-1].tag = 'cnt'
            return it
        def early():
            assert R.cnt_covered()
            PRIV[0] = (kind == 'A' or (kind == 'M' and bool(CFG.get('mpriv'))))
            it = red_poll()[1]
            it[-1].tag = 'poll'
            return it
        def covered():
            idx = max(i for i, x in enumerate(R.p.ins) if x.tag == 'cnt'); n = 0
            for x in R.p.ins[idx + 1:]:
                if x.kind in VMEMK: n += 1
                if x.txt.startswith('s_waitcnt vmcnt(') and int(x.txt[16:-1]) <= n: return True
            return False
        R.cnt_covered = covered
        if kind == 'A' and CFG.get('l2pf'):
            nm = [st.name for st in R.stages]
            R.pf.setdefault(nm.index('P2c1b0'), []).append(l2pf_setup)
            for (cw, dlt) in CFG['l2pf']:
                kp = nm.index(f'P2c{cw}b0')
                for j in range(4): R.pf.setdefault(kp, []).append(lambda j=j: l2pf_poll()[j])
                R.stages[kp + 2].cover_tag = 'gp'
                def gate(j, dlt=dlt):
                    def f():
                        it = l2pf_issue(R, dlt)[j]
                        if j == 0:
                            it = it + [valu('v_readfirstlane_b32', sOK, vD), salu('s_cmp_ge_u32', None, sOK, 16), csel(sC, sC, 15)]
                        return it
                    return f
                for j in range(4): R.pf.setdefault(kp + 2, []).append(gate(j))
        R.pf.setdefault([st.name for st in R.stages].index('P2c1b0' if kind == 'F' else 'P2c0b1'), []).append(early0)
        if kind in CFG.get('pre', ''):
            R.pf.setdefault(len(R.stages) - 3, []).append(early)
            R.stages[-1].pre_bar = lambda: red_early(R.p, kind)
        else: R.pf.setdefault(len(R.stages) - CFG.get('pollw', 1), []).append(early)
    role_prologue(R, vm_before)
    R.run()
    if CFG['fused']:
        p = R.p
        if kind not in CFG.get('pre', ''): red_early(p, kind)
        if kind in CFG.get('pre', ''): pass
        elif kind in CFG.get('lateflag', 'A'): p.emit(barrier())
        else:
            p.emit(waitvm(0)); p.emit(barrier())
            p.emit(valu('v_mov_b32', vPRG, 9))
            if CFG.get('rep'): p.emit(bstore('buffer_store_dword', vPRG, vCR, sWS, 0, flags='sc1'))
            p.emit(bstore('buffer_store_dword', vPRG, vCT, sWS, 0, flags='sc1'))
        if CFG['stamps']: R.stamp(len(R.stages) - 1)
        p.emit(raw(f"s_call_b64 {sRET}, L_{kind}_red"))
    if CFG['stamps']:
        p = R.p
        R.stamp(len(R.stages))
        p.emit(raw("s_memrealtime s[98:99]", wr=[s(98, 2)])); p.emit(raw("s_waitcnt lgkmcnt(0)"))
        p.emit(raw(f"v_writelane_b32 {vSTAMP}, s98, 63", 'valu', wr=[vSTAMP], rd=[s(98)]))
        if CFG.get('dbgstat'):
            n = len(R.stages)
            lanes = {'F': [0, 27, n - 1, n], 'A': [0, 37, n - 1, n], 'M': [0, 34, n - 1, n]}[kind]
            slots = {'F': [1, 2, 3, 5], 'A': [10, 11, 13, 14], 'M': [15, 15, 15, 15]}[kind]
            p.emit([valu('v_mov_b32', v(4), 256), valu('v_mov_b32', v(5), 0)])
            for i, (ln, sl) in enumerate(zip(lanes, slots)):
                p.emit(raw(f"v_readlane_b32 s92, {vSTAMP}, {ln}", 'rdl', wr=[sT2], rd=[vSTAMP])); p.emit(nop(3))
                p.emit(raw(f"v_writelane_b32 v5, s92, {i}", 'valu', wr=[v(5)], rd=[sT2])); p.emit(raw(f"v_writelane_b32 v4, {4 * sl}, {i}", 'valu', wr=[v(4)]))
            p.emit(raw(f"v_writelane_b32 v5, s98, 4", 'valu', wr=[v(5)], rd=[s(98)])); p.emit(raw(f"v_writelane_b32 v4, 28, 4", 'valu', wr=[v(4)]))
            p.emit(salu('s_not_b32', sT2, s(43))); p.emit(raw(f"v_writelane_b32 v5, s92, 5", 'valu', wr=[v(5)], rd=[sT2])); p.emit(raw(f"v_writelane_b32 v4, 36, 5", 'valu', wr=[v(4)]))
            p.emit(salu('s_sub_u32', sT2, s(98), s(43))); p.emit(raw(f"v_writelane_b32 v5, s92, 6", 'valu', wr=[v(5)], rd=[sT2])); p.emit(raw(f"v_writelane_b32 v4, 24, 6", 'valu', wr=[v(4)]))
            p.emit([salu('s_cmp_eq_u32', None, sRB, 9), csel(sT2, 0, sRB), salu('s_or_b32', sT2, sT2, sWAVE), salu('s_cmp_eq_u32', None, sT2, 0), csel(sT2, 0, 256),
                    valu('v_add_u32', v(4), sT2, v(4))])
            p.emit(I(f"buffer_atomic_umax v5, v4, {sDBG}, 0 offen sc1", 'vstore', rd=vr(4, 2) + sDBG.regs(), units=3))
        p.emit([shl(sT2, s(2), 2), add(sT2, sT2, sWAVE), shl(sT2, sT2, 8), add(sT2, sT2, STAMP_OFF),
                valu('v_lshrrev_b32', v(42), 2, vLANE16), bstore('buffer_store_dword', vSTAMP, v(42), sWS, sT2)])
    R.p.emit(raw("s_endpgm"))
    return R

def fold(ins, name):
    idx = [i for i, x in enumerate(ins) if x.tag == 'mark']
    def body(a_, b_): return [x.txt for x in ins[a_:b_] if x.kind != 'label']
    out = []; pos = 0; k = 0; nl = 0
    while k + 1 < len(idx):
        b0 = body(idx[k], idx[k + 1]); n = 1
        while k + n + 1 < len(idx) and body(idx[k + n], idx[k + n + 1]) == b0: n += 1
        if n >= 2:
            out += ins[pos:idx[k]]
            L = f"L_{name}_loop{nl}"; nl += 1
            out.append(smov(sLC, n)); out.append(I(".p2align 3", 'label')); out.append(label(L))
            out += ins[idx[k]:idx[k + 1]]
            out += [salu('s_sub_u32', sLC, sLC, 1), salu('s_cmp_lg_u32', None, sLC, 0), raw(f"s_cbranch_scc1 {L}")]
            pos = idx[k + n]; k += n
        else: k += 1
    out += ins[pos:]
    return out

def fold_regions(ins, name):
    regs = []; i = 0
    beg = None
    for i, x in enumerate(ins):
        if isinstance(x.tag, tuple) and x.tag and x.tag[0] == 'region':
            if x.tag[1] == 'begin': beg = (i, x.tag[2])
            elif beg: regs.append((beg[0], i, beg[1])); beg = None
    groups = {}
    for (a_, b_, key) in regs:
        groups.setdefault(tuple(x.txt for x in ins[a_:b_] if x.kind != 'label'), []).append((a_, b_))
    out = []; subs = []; repl = {}
    n = 0
    for body, lst in groups.items():
        if len(lst) >= 2:
            L = f"L_{name}_sub{n}"; n += 1
            a_, b_ = lst[0]
            subs += [I(".p2align 6", 'label'), label(L)] + ins[a_:b_] + [raw(f"s_setpc_b64 {sRET}")]
            for (a_, b_) in lst: repl[a_] = (b_, L)
    i = 0
    while i < len(ins):
        if i in repl:
            b_, L = repl[i]; out.append(raw(f"s_call_b64 {sRET}, {L}")); i = b_
        else:
            out.append(ins[i]); i += 1
    print(f"  regions: {[len(l) for l in groups.values()]}", file=sys.stderr)
    return out + subs

def reduce_body(p, sPART, sXO, srdP, srdX, srdO, vL16, vXO, base, flags, mid=None):
    E = p.emit
    L = base; XR = base + 68; SA = base + 72; FA = base + 80; T = base + 88
    for k in range(NPART):
        if k: E(add(sPART, sPART, 16 * PART))
        E(bload('buffer_load_dwordx4', v(L + 4 * k, 4), vL16, srdP, sPART, flags=flags))
    E(bload('buffer_load_dwordx2', v(XR, 2), vXO, srdX, sXO)); E(bload('buffer_load_dwordx2', v(XR + 2, 2), vXO, srdX, sXO, 32))
    ex = 0
    if mid: E(mid()); ex = 1
    E(smov(sT3, 0xffff0000))
    for k in range(NPART):
        E(waitvm(NPART + 1 - k + ex))
        acc = SA if k < 11 else FA
        for q in range(4):
            x = v(L + 4 * k + q)
            if k in (0, 11):
                E(valu('v_lshlrev_b32', v(acc + 2 * q), 16, x)); E(valu('v_and_b32', v(acc + 2 * q + 1), sT3, x))
            else:
                tp = v(T + 2 * q, 2)
                E(valu('v_lshlrev_b32', tp[0], 16, x)); E(valu('v_and_b32', tp[1], sT3, x))
        if k not in (0, 11):
            for q in range(4): E(valu('v_pk_add_f32', v(acc + 2 * q, 2), v(acc + 2 * q, 2), v(T + 2 * q, 2)))
    for e in range(8): E(valu('v_exp_f32', v(T + e), v(FA + e)))
    for e in range(8): E(valu('v_add_f32', v(T + e), 1.0, v(T + e)))
    for e in range(8): E(valu('v_rcp_f32', v(T + e), v(T + e)))
    for e in range(8): E(valu('v_mul_f32', v(FA + e), f2u(-math.log(2.0)), v(FA + e)))
    for e in range(8): E(valu('v_mul_f32', v(FA + e), v(FA + e), v(T + e)))
    E(waitvm(ex))
    for q in range(4):
        E(valu('v_lshlrev_b32', v(T + 2 * q), 16, v(XR + q))); E(valu('v_and_b32', v(T + 2 * q + 1), sT3, v(XR + q)))
    for e in range(8): E(valu('v_fma_f32', v(T + e), v(SA + e), v(FA + e), v(T + e)))
    for q in range(4): E(valu('v_cvt_pk_bf16_f32', v(XR + q), v(T + 2 * q), v(T + 2 * q + 1)))
    E(bstore('buffer_store_dwordx2', v(XR, 2), vXO, srdO, sXO)); E(bstore('buffer_store_dwordx2', v(XR + 2, 2), vXO, srdO, sXO, 32))

def reduce_kernel():
    p = Prog(); E = p.emit
    E(salu('s_cmp_ge_u32', None, s(2), 576)); E(raw("s_cbranch_scc0 L_rgo")); E(raw("s_endpgm")); E(label("L_rgo"))
    E(raw("s_load_dwordx2 s[4:5], s[0:1], 0", wr=[s(4, 2)])); E(raw("s_load_dwordx2 s[6:7], s[0:1], 64", wr=[s(6, 2)])); E(raw("s_load_dwordx2 s[8:9], s[0:1], 80", wr=[s(8, 2)]))
    E(valu('v_lshrrev_b32', v(1), 6, v(0))); E(valu('v_readfirstlane_b32', s(10), v(1)))
    E(shl(s(11), s(2), 2)); E(add(s(11), s(11), s(10)))
    E(salu('s_mul_hi_u32', s(24), s(11), -(-(1 << 32) // 36), scc_w=False))
    E(mul(s(25), s(24), 36)); E(salu('s_sub_u32', s(25), s(11), s(25)))
    E(shl(s(26), s(11), 10))
    E(valu('v_and_b32', v(0), 63, v(0))); E(valu('v_lshlrev_b32', v(1), 4, v(0)))
    E(valu('v_and_b32', v(2), 15, v(0))); E(smov(s(27), 1152)); E(valu('v_mul_u32_u24', v(2), s(27), v(2)))
    E(valu('v_lshrrev_b32', v(3), 4, v(0))); E(valu('v_lshl_add_u32', v(2), v(3), 3, v(2)))
    E(mul(s(28), s(24), 32 * 1152)); E(salu('s_and_b32', s(29), s(25), 1)); E(mul(s(29), s(29), 16 * 1152)); E(add(s(28), s(28), s(29)))
    E(shr(s(25), s(25), 1)); E(shl(s(25), s(25), 6)); E(add(s(28), s(28), s(25)))
    E(raw("s_waitcnt lgkmcnt(0)"))
    srd(p, s(12, 4), 8, WSP_BYTES); srd(p, s(16, 4), 4, 2359296); srd(p, s(20, 4), 6, 2359296)
    reduce_body(p, s(26), s(28), s(12, 4), s(16, 4), s(20, 4), v(1), v(2), 4, CFG.get('rflags', ''))
    E(raw("s_endpgm"))
    return p

def text(ins): return "\n".join((i.txt if i.kind == 'label' else " " + i.txt) for i in ins) + "\n"

def compress(t):
    t = re.sub(r" v_mfma_f32_16x16x32_bf16 v\[(\d+):\d+\], a\[(\d+):\d+\], v\[(\d+):\d+\], v\[\1:\d+\]", r" MV \1,\2,\3", t)
    t = re.sub(r" v_mfma_f32_16x16x32_bf16 v\[(\d+):\d+\], a\[(\d+):\d+\], a\[(\d+):\d+\], v\[\1:\d+\]", r" MA \1,\2,\3", t)
    t = re.sub(r" v_mfma_f32_32x32x16_bf16 v\[(\d+):\d+\], a\[(\d+):\d+\], v\[(\d+):\d+\], v\[\1:\d+\]", r" NV \1,\2,\3", t)
    t = re.sub(r" v_mfma_f32_32x32x16_bf16 v\[(\d+):\d+\], a\[(\d+):\d+\], a\[(\d+):\d+\], v\[\1:\d+\]", r" NA \1,\2,\3", t)
    t = re.sub(r" v_mfma_f32_16x16x32_bf16 a\[(\d+):\d+\], a\[(\d+):\d+\], v\[(\d+):\d+\], a\[\1:\d+\]", r" MC \1,\2,\3", t)
    t = re.sub(r" ds_read_b64_tr_b16 a\[(\d+):\d+\], v(\d+) offset:(\d+)", r" RT \1,\2,\3", t)
    t = re.sub(r" ds_read_b128 a\[(\d+):\d+\], v(\d+) offset:(\d+)", r" RB \1,\2,\3", t)
    t = re.sub(r" v_cvt_pk_bf16_f32 v(\d+), v(\d+), v(\d+)", r" CV \1,\2,\3", t)
    t = re.sub(r" v_accvgpr_write_b32 a(\d+), v(\d+)", r" AW \1,\2", t)
    t = re.sub(r" v_exp_f32 v(\d+), v(\d+)", r" EX \1,\2", t)
    t = re.sub(r" v_add_f32 v(\d+), v(\d+), v(\d+)", r" AD \1,\2,\3", t)
    t = re.sub(r" v_mul_f32 v(\d+), v(\d+), v(\d+)", r" ML \1,\2,\3", t)
    t = re.sub(r" s_waitcnt lgkmcnt\((\d+)\)", r" WL \1", t)
    mac = r""".macro MC d,a,b
 v_mfma_f32_16x16x32_bf16 a[\d:\d+3], a[\a:\a+3], v[\b:\b+3], a[\d:\d+3]
.endm
.macro NV d,a,b
 v_mfma_f32_32x32x16_bf16 v[\d:\d+15], a[\a:\a+3], v[\b:\b+3], v[\d:\d+15]
.endm
.macro NA d,a,b
 v_mfma_f32_32x32x16_bf16 v[\d:\d+15], a[\a:\a+3], a[\b:\b+3], v[\d:\d+15]
.endm
.macro MV d,a,b
 v_mfma_f32_16x16x32_bf16 v[\d:\d+3], a[\a:\a+3], v[\b:\b+3], v[\d:\d+3]
.endm
.macro MA d,a,b
 v_mfma_f32_16x16x32_bf16 v[\d:\d+3], a[\a:\a+3], a[\b:\b+3], v[\d:\d+3]
.endm
.macro RT d,a,o
 ds_read_b64_tr_b16 a[\d:\d+1], v\a offset:\o
.endm
.macro RB d,a,o
 ds_read_b128 a[\d:\d+3], v\a offset:\o
.endm
.macro CV d,a,b
 v_cvt_pk_bf16_f32 v\d, v\a, v\b
.endm
.macro AW d,a
 v_accvgpr_write_b32 a\d, v\a
.endm
.macro EX d,a
 v_exp_f32 v\d, v\a
.endm
.macro AD d,a,b
 v_add_f32 v\d, v\a, v\b
.endm
.macro ML d,a,b
 v_mul_f32 v\d, v\a, v\b
.endm
.macro WL n
 s_waitcnt lgkmcnt(\n)
.endm
"""
    return mac, t

HDR = open('recurrent_scan__sliding_block_cached__dense_activation_silu__prompt.s.ref').read().split('; Override launch')[0]
DOC = """; Generated by my own scheduler scripts (hand-designed instruction streams, hazards padded by the script).
; registers as MFMA B operands (transposed formulation), weights / K / V stream through a 4-slot LDS ring (LDS-DMA).
;   role A (10): layernorm, Q projection, attention for 3 heads (one GQA pair shares K/V fragments), partial of o@wo
; The bf16 partials go to d_ws with write-through stores; progress words (reset per launch, guarded by a counter in
"""
def kd(name, vgpr, acc, sgpr=102):
    return f""".amdhsa_kernel {name}
  .amdhsa_next_free_vgpr {vgpr}
  .amdhsa_next_free_sgpr {sgpr}
  .amdhsa_accum_offset {acc}
  .amdhsa_group_segment_fixed_size 0
  .amdhsa_kernarg_size 88
  .amdhsa_user_sgpr_count 2
  .amdhsa_user_sgpr_kernarg_segment_ptr 1
  .amdhsa_system_sgpr_workgroup_id_x 1
.end_amdhsa_kernel
"""
def est_cycles(ins):
    tot = 0; cur = None; n = 0
    for i in ins:
        if i.kind == 'label': continue
        if i.kind == 'mfma':
            if cur is not None: tot += max(cap, cur)
            cur = 2; n += 1; cap = 8 if len(i.wr) == 16 else 4
        elif cur is not None:
            if i.txt.startswith('s_waitcnt lgkm') and cap == 4: continue
            cur += i.units if not i.txt.startswith('s_nop') else (int(i.txt.split()[1]) + 1) * 0.5
    return tot * 4

def main(out, **kw):
    CFG.update(kw)
    set_layout(CFG.get('l844'))
    if CFG.get('tabs'):
        BAL2[:], BALM[:], BAL3[:] = CFG['tabs']
        CFG['bal'] = 2
    if CFG.get('tab'):
        global ROLE_TAB
        ROLE_TAB = CFG['tab']
    CFG['shape0'] = CFG['shape']
    cp = common_prologue()
    if CFG.get('entry', 0):
        if CFG.get('entry', 1) == 1:
            k = next(i for i, x in enumerate(cp.ins) if x.txt == 's_waitcnt lgkmcnt(0)')
            tail = cp.ins[k:]; vmx = list(cp.vm); cp.ins = cp.ins[:k]; cp.vm = []
            common_prologue2(cp); cp.ins += tail; cp.vm += vmx
        else: common_prologue2(cp)
        common_prologue3(cp)
    body = text(cp.ins) + dispatch_text()
    for kind in 'FAM':
        R = build_role(kind, cp.vm)
        ins = fold_regions(fold(R.p.ins, kind), kind) if CFG['fold'] else R.p.ins
        nm = sum(1 for i in R.p.ins if i.kind == 'mfma')
        print(f"role {kind}: stages {len(R.stages)} mfma {nm} instrs {len([i for i in ins if i.kind!='label'])} (unrolled {len([i for i in R.p.ins if i.kind!='label'])}) pad {R.p.npad} forced {R.forced} est {est_cycles(R.p.ins)} ideal {sum(32 if len(i.wr) == 16 else 16 for i in R.p.ins if i.kind == 'mfma')}", file=sys.stderr)
        if CFG.get('abl_pair') and kind in 'AM':
            out_ = []; on = False
            for x in ins:
                if x.kind == 'label' and x.txt.startswith('; PAh'): on = x.txt.startswith('; PAh1')
                if x.kind == 'label' and x.txt.startswith('; P2'): on = False
                if on and (x.kind in ('dma', 'ds') or (x.kind == 'salu' and ('m0' in x.txt or 's70' in x.txt))): continue
                out_.append(x)
            ins = out_
        if CFG.get('abl_half'):
            out_ = []; on = False; cnt = 0
            for x in ins:
                if x.kind == 'label' and x.txt.startswith('; P'): on = x.txt.startswith(('; P1', '; P2'))
                if x.kind == 'label' and x.txt.startswith('; REGION begin'): on = True
                if on and x.kind == 'ds':
                    cnt += 1
                    if (cnt >> 1) & 1: continue
                out_.append(x)
            ins = out_
        ab = CFG.get('ablate', '')
        if ab:
            st0 = next(i for i, x in enumerate(ins) if x.txt.startswith('; P1u1b0'))
            def keep(x):
                if 'd' in ab and x.kind == 'dma': return False
                if 'r' in ab and x.kind == 'ds': return False
                if 'v' in ab and x.kind in ('trans',): return False
                if 'V' in ab and x.kind in ('trans', 'valu', 'perm') and not x.txt.startswith(('v_add_u32', 'v_xor', 'v_writelane', 'v_cmp', 'v_cnd', 'v_mov', 'v_lsh', 'v_mad', 'v_min', 'v_and', 'v_bfe', 'v_mul_u32')): return False
                if 'm' in ab and x.kind == 'mfma': return False
                return True
            ins = ins[:st0] + [x for x in ins[st0:] if keep(x)]
        for sp in R.slow: ins = ins + sp.ins
        if CFG['fused']: ins = ins + reducer(kind).ins
        body += f".p2align 6\nL_role{kind}:\n" + text(ins) + f"L_role{kind}_end:\n"
    rk = reduce_kernel()
    mac, body = compress(body)
    if CFG['fused']:
        t = HDR + "; @launch grid=(256,1,1) block=(256,1,1) lds=163840\n" + DOC
        t += '.amdgcn_target "amdgcn-amd-amdhsa--gfx950"\n' + mac + f".text\n.globl {KN}\n.p2align 8\n.type {KN},@function\n{KN}:\n" + body
        t += '.section .rodata,"a"\n.p2align 6\n' + kd(KN, 512, 256)
        open(out, 'w').write(t); print("size", len(t), file=sys.stderr); return
    t = HDR + f"; @launch kernel={KN} grid=(256,1,1) block=(256,1,1) lds=163840\n; @launch kernel={RN} grid=(576,1,1) block=(256,1,1) lds=0\n"
    t += '.amdgcn_target "amdgcn-amd-amdhsa--gfx950"\n' + mac + f".text\n.globl {KN}\n.p2align 8\n.type {KN},@function\n{KN}:\n" + body
    t += f".globl {RN}\n.p2align 8\n.type {RN},@function\n{RN}:\n" + text(rk.ins)
    t += '.section .rodata,"a"\n.p2align 6\n' + kd(KN, 512, 256) + ".p2align 6\n" + kd(RN, 104, 104, 102)
    open(out, 'w').write(t)
    print("size", len(t), file=sys.stderr)

if __name__ == "__main__":
    kw = eval("dict(" + (sys.argv[2] if len(sys.argv) > 2 else "") + ")")
    main(sys.argv[1], **kw)
```

```python
import sys, re
from s1 import *

ROLE_TAB = [0, 1, 2, 11, 3, 4, 5, 12, 6, 7, 13, 14, 8, 9, 10, 15]
vPFR = v(36)
vPRG = v(36)
PART = 4 * PWAVE
NPART = 17
NA, NM, NS = 10, 1, 11
def set_layout(new):
    global NPART, NA, NM, NS, ROLE_TAB
    if new:
        NPART, NA, NM, NS = 20, 8, 4, 12
        ROLE_TAB = [0, 1, 8, 12, 2, 3, 9, 13, 4, 5, 10, 14, 6, 7, 11, 15]
WSP_BYTES = NPART * 16 * PART
def PSTR(): return 16 * PART + (CFG.get('pskew', 0) if CFG['fused'] else 0)
sJQ, sQ0, sOA1, sOB1 = s(73), s(59), s(74), s(75)
ABN = 4096
STAMP_OFF = 0x3000000
CTRL = 0x2F00000
OOB = 0x10000000

def srd(p, dst, lo, nbytes):
    p.emit([smov(dst[0], s(lo)), salu('s_and_b32', dst[1], s(lo + 1), 0xffff), smov(dst[2], nbytes), smov(dst[3], 0x20000)])
def xdma(j):
    return [salu('s_add_u32', 'm0', s(6), j * 4096), salu('s_add_u32', sT, s(7), j * 128)] + [dma(v(16 + q), sX, sT, q * 1024, tag=('x', j)) for q in range(4)]
def mul(d, a_, b_): return salu('s_mul_i32', d, a_, b_, scc_w=False)
def add(d, a_, b_): return salu('s_add_u32', d, a_, b_)
def shl(d, a_, b_): return salu('s_lshl_b32', d, a_, b_)
def shr(d, a_, b_): return salu('s_lshr_b32', d, a_, b_)
def csel(d, a_, b_): return salu('s_cselect_b32', d, a_, b_, scc_w=False, scc_r=True)

def common_prologue():
    if CFG.get('entry', 0) == 0: return common_prologue_old()
    assert CFG['xe'] == 9 and CFG.get('map', 4) == 4
    p = Prog(); E = p.emit
    E(raw("s_load_dwordx8 s[40:47], s[0:1], 0", wr=[s(40, 8)]))
    E(salu('s_cmp_ge_u32', None, s(2), 256))
    E(raw("s_cbranch_scc0 L_go")); E(raw("s_endpgm")); E(label("L_go"))
    if CFG['stamps']:
        E(raw(f"s_memtime {sT0}", wr=[sT0])); E(raw("s_memrealtime s[96:97]", wr=[s(96, 2)]))
    E(valu('v_lshrrev_b32', v(1), 6, v(0)))
    E(salu('s_and_b32', s(3), s(2), 1)); E(shl(s(3), s(3), 3))
    E(valu('v_readfirstlane_b32', sWAVE, v(1)))
    E(shr(sRB, s(2), 5)); E(salu('s_or_b32', sRB, sRB, s(3)))
    E(valu('v_and_b32', v(0), 63, v(0)))
    E(valu('v_lshrrev_b32', vROWN, 3, v(0)))
    E(valu('v_and_b32', v(20), 7, v(0))); E(valu('v_lshrrev_b32', v(21), 4, v(0)))
    E(valu('v_xor_b32', v(22), v(20), v(21))); E(valu('v_xor_b32', v(23), 4, v(22)))
    E(salu('s_movk_i32', s(3), 1152, scc_w=False)); E(valu('v_mul_u32_u24', v(24), s(3), vROWN))
    E(valu('v_lshl_add_u32', v(16), v(22), 4, v(24))); E(valu('v_lshl_add_u32', v(17), v(23), 4, v(24)))
    E(valu('v_add_u32', v(17), 8 * 1152 - 1024, v(17)))
    E(valu('v_add_u32', v(18), 2 * (8 * 1152 - 1024), v(16))); E(valu('v_add_u32', v(19), 2 * (8 * 1152 - 1024), v(17)))
    E(mul(s(6), sWAVE, XW)); E(raw("s_lshl2_add_u32 s7, s64, s62", 'salu', wr=[s(7)], rd=[sRB, sWAVE])); E(mul(sT, s(7), 32 * 1152))
    E(smov('m0', s(6))); E(add(s(7), sT, 9 * 128))
    E(smov(sX[2], 2359296)); E(smov(sX[3], 0x20000))
    E(raw("s_waitcnt lgkmcnt(0)"))
    E(smov(sX[0], s(40))); E(salu('s_and_b32', sX[1], s(41), 0xffff))
    E(label("L_xl"))
    n0 = len(p.vm)
    for q in range(4): E(dma(v(16 + q), sX, sT, q * 1024))
    del p.vm[n0:]
    for j in range(9): p.vm += [('x', j)] * 4
    E(add(sT, sT, 128)); E(add('m0', 'm0', 4096)); E(salu('s_cmp_lt_u32', None, sT, s(7))); E(raw("s_cbranch_scc1 L_xl"))
    return p
def common_prologue2(p):
    E = p.emit
    tab = ROLE_TAB
    lo = sum(tab[i] << (4 * i) for i in range(8)); hi = sum(tab[8 + i] << (4 * i) for i in range(8))
    E(salu('s_bfe_u32', s(3), s(2), (2 << 16) | 3)); E(salu('s_bfe_u32', s(4), s(2), (1 << 16) | 1))
    E(shl(s(4), s(4), 2)); E(salu('s_or_b32', s(3), s(3), s(4))); E(shl(s(3), s(3), 2))
    E(salu('s_bitcmp1_b32', None, s(2), 2))
    E(smov(s(4), lo)); E(csel(s(4), hi, s(4)))
    E(shr(s(4), s(4), s(3))); E(salu('s_and_b32', sROLE, s(4), 15))
    E(raw(f"s_getpc_b64 {sPC}", wr=[sPC])); E(label("L_pc"))
    E(smov(s(4), "L_roleA-L_pc")); E(smov(s(5), "L_roleA_end-L_pc-4"))
    E(salu('s_cmp_ge_u32', None, sROLE, NA)); E(csel(s(4), "L_roleM-L_pc", s(4))); E(csel(s(5), "L_roleM_end-L_pc-4", s(5)))
    E(salu('s_cmp_ge_u32', None, sROLE, NA + NM)); E(csel(s(4), "L_roleF-L_pc", s(4))); E(csel(s(5), "L_roleF_end-L_pc-4", s(5)))
    n0 = CFG.get('code0', 16); NL = CFG.get('codelines', 24)
    if n0:
        E(mul(s(3), sWAVE, n0 * 128)); E(add(s(3), s(3), s(4)))
        E(valu('v_min_u32', v(2), n0 - 1, v(0))); E(valu('v_lshlrev_b32', v(2), 7, v(2))); E(valu('v_add_u32', v(2), s(3), v(2)))
        E(I(f"global_load_dword {vDUM}, v2, {sPC}", 'vload', wr=vDUM.regs(), rd=vr(2) + sPC.regs(), tag='pf'))
    E(salu('s_and_b32', s(3), sRB, 7)); E(shl(s(3), s(3), 2)); E(add(s(3), s(3), sWAVE))
    E(mul(s(3), s(3), NL * 128)); E(add(s(3), s(3), s(4)))
    E(valu('v_min_u32', v(2), NL - 1, v(0))); E(valu('v_lshlrev_b32', v(2), 7, v(2))); E(valu('v_add_u32', v(2), s(3), v(2)))
    E(valu('v_min_u32', v(3), s(5), v(2)))
    E(I(f"global_load_dword {vDUM}, v3, {sPC}", 'vload', wr=vDUM.regs(), rd=vr(3) + sPC.regs(), tag='pf'))
def common_prologue3(p):
    E = p.emit
    E(raw("s_load_dwordx2 s[48:49], s[0:1], 32", wr=[s(48, 2)]))
    E(raw("s_load_dwordx8 s[52:59], s[0:1], 48", wr=[s(52, 8)]))
    E(raw("s_load_dwordx2 s[50:51], s[0:1], 80", wr=[s(50, 2)]))
    srd(p, sK, 42, 8388608); srd(p, sV, 44, 8388608); srd(p, sWQ, 46, 4718592)
    E(mul(sW8704, sWAVE, 8 * PP)); E(mul(sWC, sWAVE, PP)); E(add(sWC, sWC, 32 * PP))
    E(shl(sW8192, sWAVE, 13)); E(shl(sWCH, sWAVE, 10)); E(add(sWCH, sWCH, 32768))
    E(mul(sW2176, sWAVE, 2 * PP)); E(mul(sW4352, sWAVE, 4 * PP)); E(add(sWA2, sW2176, 16 * PP))
    E(raw("s_waitcnt lgkmcnt(0)"))
    srd(p, sWO, 48, 4718592)
    srd(p, sW1, 52, 5308416); srd(p, sW2, 54, 5308416); srd(p, sWS, 50, 0x10000000 if (CFG['stamps'] or CFG['fused']) else WSP_BYTES)
    srd(p, sOUT, 56, 2359296); srd(p, sDBG, 58, 256)

def common_prologue_old():
    p = Prog(); E = p.emit
    E(salu('s_cmp_ge_u32', None, s(2), 256))
    E(raw("s_cbranch_scc0 L_go")); E(raw("s_endpgm")); E(label("L_go"))
    E(raw("s_load_dwordx8 s[40:47], s[0:1], 0", wr=[s(40, 8)]))
    E(raw("s_load_dwordx2 s[48:49], s[0:1], 32", wr=[s(48, 2)]))
    E(raw("s_load_dwordx8 s[52:59], s[0:1], 48", wr=[s(52, 8)]))
    E(raw("s_load_dwordx2 s[50:51], s[0:1], 80", wr=[s(50, 2)]))
    if CFG['stamps']:
        E(raw(f"s_memtime {sT0}", wr=[sT0])); E(raw("s_memrealtime s[96:97]", wr=[s(96, 2)]))
    tab = ROLE_TAB
    if CFG.get('map', 4) == 41:
        t4 = CFG.get('t41', [11, 0, 1, 2, 12, 3, 4, 5, 13, 14, 6, 7, 15, 10, 8, 9])
        lo = sum(t4[i] << (4 * i) for i in range(8)); hi = sum(t4[8 + i] << (4 * i) for i in range(8))
        E(shr(s(3), s(2), 6)); E(salu('s_bfe_u32', s(4), s(2), (1 << 16) | 1))
        E(shl(s(4), s(4), 2)); E(salu('s_or_b32', s(3), s(3), s(4))); E(shl(s(3), s(3), 2))
        E(salu('s_bitcmp1_b32', None, s(2), 2)); E(smov(s(4), lo)); E(csel(s(4), hi, s(4)))
        E(shr(s(4), s(4), s(3))); E(salu('s_and_b32', sROLE, s(4), 15))
        E(salu('s_and_b32', s(3), s(2), 1)); E(shl(s(3), s(3), 3))
        E(salu('s_bfe_u32', sRB, s(2), (3 << 16) | 3)); E(salu('s_or_b32', sRB, sRB, s(3)))
    elif CFG.get('map', 4) == 8:
        t8 = [0, 1, 2, 3, 4, 10, 11, 12, 5, 6, 7, 8, 9, 13, 14, 15]
        lo = sum(t8[i] << (4 * i) for i in range(8)); hi = sum(t8[8 + i] << (4 * i) for i in range(8))
        E(salu('s_bfe_u32', s(3), s(2), (3 << 16) | 3)); E(shl(s(3), s(3), 2))
        E(salu('s_bitcmp1_b32', None, s(2), 2)); E(smov(s(4), lo)); E(csel(s(4), hi, s(4)))
        E(shr(s(4), s(4), s(3))); E(salu('s_and_b32', sROLE, s(4), 15))
        E(salu('s_and_b32', s(3), s(2), 1)); E(shl(s(3), s(3), 3)); E(salu('s_and_b32', s(4), s(2), 2)); E(shl(s(4), s(4), 1))
        E(shr(sRB, s(2), 6)); E(salu('s_or_b32', sRB, sRB, s(3))); E(salu('s_or_b32', sRB, sRB, s(4)))
    elif CFG.get('map', 4) == 2:
        t2 = [0, 1, 2, 3, 4, 11, 5, 12, 6, 13, 7, 14, 8, 15, 9, 10]
        lo = sum(t2[i] << (4 * i) for i in range(8)); hi = sum(t2[8 + i] << (4 * i) for i in range(8))
        E(salu('s_bfe_u32', s(3), s(2), (1 << 16) | 3)); E(salu('s_and_b32', s(4), s(2), 3)); E(shl(s(4), s(4), 1)); E(salu('s_or_b32', s(3), s(3), s(4))); E(shl(s(3), s(3), 2))
        E(salu('s_bitcmp1_b32', None, s(2), 2)); E(smov(s(4), lo)); E(csel(s(4), hi, s(4)))
        E(shr(s(4), s(4), s(3))); E(salu('s_and_b32', sROLE, s(4), 15)); E(shr(sRB, s(2), 4))
    else:
        lo = sum(tab[i] << (4 * i) for i in range(8)); hi = sum(tab[8 + i] << (4 * i) for i in range(8))
        E(salu('s_bfe_u32', s(3), s(2), (2 << 16) | 3)); E(salu('s_bfe_u32', s(4), s(2), (1 << 16) | 1))
        E(shl(s(4), s(4), 2)); E(salu('s_or_b32', s(3), s(3), s(4))); E(shl(s(3), s(3), 2))
        E(salu('s_bitcmp1_b32', None, s(2), 2))
        E(smov(s(4), lo)); E(csel(s(4), hi, s(4)))
        E(shr(s(4), s(4), s(3))); E(salu('s_and_b32', sROLE, s(4), 15))
        E(salu('s_and_b32', s(3), s(2), 1)); E(shl(s(3), s(3), 3))
        E(shr(sRB, s(2), 5)); E(salu('s_or_b32', sRB, sRB, s(3)))
    E(valu('v_lshrrev_b32', v(1), 6, v(0)))
    E(valu('v_readfirstlane_b32', sWAVE, v(1)))
    E(valu('v_and_b32', v(0), 63, v(0)))
    E(valu('v_lshrrev_b32', vROWN, 3, v(0)))
    E(valu('v_and_b32', v(20), 7, v(0))); E(valu('v_lshrrev_b32', v(21), 4, v(0)))
    E(valu('v_xor_b32', v(22), v(20), v(21))); E(valu('v_xor_b32', v(23), 4, v(22)))
    E(smov(s(3), 1152)); E(valu('v_mul_u32_u24', v(24), s(3), vROWN))
    E(valu('v_lshl_add_u32', v(16), v(22), 4, v(24))); E(valu('v_lshl_add_u32', v(17), v(23), 4, v(24)))
    E(valu('v_add_u32', v(17), 8 * 1152 - 1024, v(17)))
    E(valu('v_add_u32', v(18), 2 * (8 * 1152 - 1024), v(16))); E(valu('v_add_u32', v(19), 2 * (8 * 1152 - 1024), v(17)))
    E(mul(s(6), sWAVE, XW))
    E(shl(s(7), sRB, 2)); E(add(s(7), s(7), sWAVE)); E(mul(s(7), s(7), 32 * 1152))
    E(raw(f"s_getpc_b64 {sPC}", wr=[sPC])); E(label("L_pc"))
    E(smov(s(4), "L_roleA-L_pc")); E(smov(s(5), "L_roleA_end-L_pc-4"))
    E(salu('s_cmp_ge_u32', None, sROLE, NA)); E(csel(s(4), "L_roleM-L_pc", s(4))); E(csel(s(5), "L_roleM_end-L_pc-4", s(5)))
    E(salu('s_cmp_ge_u32', None, sROLE, NA + NM)); E(csel(s(4), "L_roleF-L_pc", s(4))); E(csel(s(5), "L_roleF_end-L_pc-4", s(5)))
    def code_pf():
        NL = CFG.get('codelines', 24)
        E(salu('s_and_b32', s(3), sRB, 7)); E(shl(s(3), s(3), 2)); E(add(s(3), s(3), sWAVE))
        E(mul(s(3), s(3), NL * 128)); E(add(s(3), s(3), s(4)))
        E(valu('v_min_u32', v(2), NL - 1, v(0))); E(valu('v_lshlrev_b32', v(2), 7, v(2))); E(valu('v_add_u32', v(2), s(3), v(2)))
        E(valu('v_min_u32', v(3), s(5), v(2)))
        E(I(f"global_load_dword {vDUM}, v3, {sPC}", 'vload', wr=vDUM.regs(), rd=vr(3) + sPC.regs(), tag='pf'))
    if CFG.get('codepf', 3) >= 3:
        n0 = CFG.get('code0', 16)
        if n0:
            E(mul(s(3), sWAVE, n0 * 128)); E(add(s(3), s(3), s(4)))
            E(valu('v_min_u32', v(2), n0 - 1, v(0))); E(valu('v_lshlrev_b32', v(2), 7, v(2))); E(valu('v_add_u32', v(2), s(3), v(2)))
            E(I(f"global_load_dword {vDUM}, v2, {sPC}", 'vload', wr=vDUM.regs(), rd=vr(2) + sPC.regs(), tag='pf'))
        code_pf()
    E(raw("s_waitcnt lgkmcnt(0)"))
    srd(p, sX, 40, 2359296)
    if CFG.get('xt'):
        nch = CFG['xt']
        E(salu('s_bfe_u32', s(3), s(2), (2 << 16) | 3)); E(mul(s(3), s(3), 128 * nch)); E(add(s(3), s(3), 128 * (9 - 4 * nch))); E(add(s(3), s(3), s(7)))
        E(valu('v_and_b32', v(2), 31, v(0))); E(valu('v_mul_u32_u24', v(2), 1152, v(2)))
        if nch == 2:
            E(valu('v_lshrrev_b32', v(3), 5, v(0))); E(valu('v_lshl_add_u32', v(2), v(3), 7, v(2)))
        ld = bload('buffer_load_dword', vDUM, v(2), sX, s(3)); ld.tag = 'pf'; E(ld)
    nx0 = CFG.get('tx', 2) if CFG.get('touch') else 0
    for j in range(nx0): E(xdma(j))
    if CFG.get('touch'):
        E(salu('s_cmp_gt_u32', None, sROLE, 10))
        E(raw("s_cselect_b64 s[60:61], s[52:53], s[46:47]", 'salu', wr=[s(60, 2)], rd=[s(52, 2), s(46, 2)]))
        E(raw("s_cselect_b64 s[66:67], s[54:55], s[48:49]", 'salu', wr=[s(66, 2)], rd=[s(54, 2), s(48, 2)]))
        E(salu('s_cmp_eq_u32', None, sWAVE, 1)); E(raw("s_cselect_b64 s[60:61], s[66:67], s[60:61]", 'salu', wr=[s(60, 2)], rd=[s(66, 2), s(60, 2)]))
        E(salu('s_cmp_eq_u32', None, sWAVE, 2)); E(raw("s_cselect_b64 s[60:61], s[42:43], s[60:61]", 'salu', wr=[s(60, 2)], rd=[s(42, 2), s(60, 2)]))
        E(salu('s_cmp_eq_u32', None, sWAVE, 3)); E(raw("s_cselect_b64 s[60:61], s[44:45], s[60:61]", 'salu', wr=[s(60, 2)], rd=[s(44, 2), s(60, 2)]))
        E(smov(s(3), 73728)); E(salu('s_cmp_ge_u32', None, sWAVE, 2)); E(csel(s(3), 131072, s(3)))
        E(valu('v_mul_u32_u24', v(2), s(3), v(0)))
        E(I(f"global_load_dword {vDUM}, v2, s[60:61]", 'vload', wr=vDUM.regs(), rd=vr(2) + sr(60, 2), tag='pf'))
    for j in range(nx0, CFG['xe']): E(xdma(j))
    if CFG.get('codepf', 3) == 1: code_pf()
    if CFG.get('codepf', 3) == 2:
        E(valu('v_mov_b32', v(46), v(3))); E(raw(f"s_mov_b64 s[100:101], {sPC}", 'salu', wr=[s(100, 2)], rd=[sPC]))
    srd(p, sK, 42, 8388608); srd(p, sV, 44, 8388608); srd(p, sWQ, 46, 4718592); srd(p, sWO, 48, 4718592)
    srd(p, sW1, 52, 5308416); srd(p, sW2, 54, 5308416); srd(p, sWS, 50, 0x10000000 if (CFG['stamps'] or CFG['fused']) else WSP_BYTES)
    srd(p, sOUT, 56, 2359296); srd(p, sDBG, 58, 256)
    E(mul(sW8704, sWAVE, 8 * PP)); E(mul(sWC, sWAVE, PP)); E(add(sWC, sWC, 32 * PP))
    E(shl(sW8192, sWAVE, 13)); E(shl(sWCH, sWAVE, 10)); E(add(sWCH, sWCH, 32768))
    E(mul(sW2176, sWAVE, 2 * PP)); E(mul(sW4352, sWAVE, 4 * PP)); E(add(sWA2, sW2176, 16 * PP))
    return p

def dispatch_text():
    return f""" s_cmp_ge_u32 {sROLE}, {NA + NM}
 s_cbranch_scc1 L_roleF
 s_cmp_ge_u32 {sROLE}, {NA}
 s_getpc_b64 s[94:95]
L_pc2:
 s_cbranch_scc1 L_jM
 s_add_u32 s94, s94, L_roleA-L_pc2
 s_addc_u32 s95, s95, 0
 s_setpc_b64 s[94:95]
L_jM:
 s_add_u32 s94, s94, L_roleM-L_pc2
 s_addc_u32 s95, s95, 0
 s_setpc_b64 s[94:95]
"""

def pfload(srd_, base):
    ld = bload('buffer_load_dword', vDUM, vPF, srd_, base); ld.tag = 'pf'; return ld
def pf_lin(srd_, base_s, start, nbytes, nl=64):
    def f():
        return [valu('v_lshrrev_b32', vPF2, 16, vTID), valu('v_and_b32', vPF, 63, vTID), valu('v_min_u32', vPF, nl - 1, vPF),
                valu('v_mad_u32_u24', vPF, vPF2, nl, vPF), valu('v_lshlrev_b32', vPF, 7, vPF), valu('v_add_u32', vPF, start, vPF),
                valu('v_min_u32', vPF, nbytes - 128, vPF), pfload(srd_, base_s)]
    return f
def pf_run(srd_, base_s, nbytes, nl):
    def f():
        return [valu('v_min_u32', vPF, nbytes - 128, vPFR), valu('v_add_u32', vPFR, 64 * nl * 128, vPFR), pfload(srd_, base_s)]
    f.nl = nl
    return f
def vPFW(kind): return {'F': v(8), 'A': v(7), 'M': v(36)}[kind]
def pf_row(kind, srd_, step=128):
    def f():
        ld = bload('buffer_load_dword', vDUM, vPFW(kind), srd_, sPW); ld.tag = 'pf'
        return [add(sPW, sPW, step), ld]
    return f
def pf_row_setup(kind, pitch, nl, base, lit):
    r = vPFW(kind)
    return [valu('v_bfe_u32', vPF2, vTID, 16, 5), valu('v_and_b32', r, 63, vTID), valu('v_min_u32', r, nl - 1, r),
            valu('v_mad_u32_u24', r, vPF2, nl, r), smov(sT2, pitch), valu('v_mul_u32_u24', r, sT2, r), add(sPW, base, lit)]
def pf_code(la, lb, nl):
    def f():
        L = f"L_cp{pf_code.k}"; pf_code.k += 1
        ld = I(f"global_load_dword {vDUM}, {vPF}, {sPC}", 'vload', wr=vDUM.regs(), rd=vPF.regs() + sPC.regs(), units=3, tag='pf')
        return [raw(f"s_getpc_b64 {sPC}", 'salu', wr=[sPC]), label(L),
                salu('s_add_u32', sPC[0], sPC[0], f"{la}-{L}"), salu('s_addc_u32', sPC[1], sPC[1], 0, scc_r=True),
                valu('v_bfe_u32', vPF2, vTID, 16, 5), valu('v_and_b32', vPF, 63, vTID), valu('v_min_u32', vPF, nl - 1, vPF),
                valu('v_mad_u32_u24', vPF, vPF2, nl, vPF), valu('v_lshlrev_b32', vPF, 7, vPF), valu('v_min_u32', vPF, f"{lb}-{la}-4", vPF), ld]
    return f
pf_code.k = 0
def pf_sched(R, k0, srd_, base_s, nbytes, nl):
    per = 64 * nl * 128; k = k0
    for st in range(0, nbytes, per):
        R.pf.setdefault(k, []).append(pf_lin(srd_, base_s, st, nbytes, nl)); k += 1
    return k

def role_prologue(R, vm_before):
    p = R.p; E = p.emit; kind = R.kind
    p.vm = list(vm_before)
    MS = CFG['shape'] == 'M'
    def PS(k):
        if CFG['stamps'] == 1: R.stamp(k)
    if CFG.get('delayrole') is not None:
        for r_ in CFG['delayrole']:
            E(salu('s_cmp_eq_u32', None, sROLE, r_[0])); E(raw(f"s_cbranch_scc0 L_{kind}_nd{r_[0]}"))
            E(smov(sLC, r_[1])); E(label(f"L_{kind}_dl{r_[0]}")); E(raw("s_sleep 127")); E(salu('s_sub_u32', sLC, sLC, 1)); E(salu('s_cmp_lg_u32', None, sLC, 0)); E(raw(f"s_cbranch_scc1 L_{kind}_dl{r_[0]}"))
            E(label(f"L_{kind}_nd{r_[0]}"))
    PS(56)
    lane = v(0)
    ILV = CFG.get('ilv') and not MS
    setup = []
    if ILV:
        E(valu('v_lshrrev_b32', v(48), 4, lane)); E(valu('v_and_b32', v(49), 15, lane)); E(valu('v_bfe_u32', v(50), lane, 1, 3)); E(valu('v_xor_b32', v(50), v(50), v(48)))
        E(valu('v_lshlrev_b32', v(49), 7, v(49))); E(valu('v_add_u32', v(49), s(6), v(49)))
        E(valu('v_lshl_add_u32', v(20), v(50), 4, v(49))); E(valu('v_xor_b32', v(21), 64, v(20)))
        def E(i):
            if isinstance(i, (list, tuple)):
                for x in i: E(x)
            else: setup.append(i)
    E(shl(sT2, sRB, 2)); E(add(sT2, sT2, sWAVE)); E(shl(sT2, sT2, 16)); E(valu('v_or_b32', vTID, sT2, lane))
    if kind in 'AM' and CFG.get('pair'):
        sHP_, sHS_ = s(86), s(85)
        if CFG.get('l844'): E(shl(sHP_, sROLE, 1)); E(add(sHP_, sHP_, 8))
        else: E(mul(sHP_, sROLE, 3))
        if kind == 'A':
            sHP_, sHS_ = sFA, sFC
            E(mul(sHS_, sROLE, 3)); E(salu('s_and_b32', s(4), sROLE, 1)); E(add(sHP_, sHS_, s(4)))
            E(shl(s(4), s(4), 1)); E(add(sHS_, sHS_, 2)); E(salu('s_sub_u32', sHS_, sHS_, s(4)))
            E(salu('s_sub_u32', sJQ, sHS_, sHP_)); E(shl(sJQ, sJQ, 8)); E(salu('s_sub_u32', sJQ, sJQ, 3 * 128))
        E(shl(sQ0, sHP_, 8))
        E(mul(sQA, sWAVE, 64 * 8192)); E(add(sQA, sQA, sQ0))
        E(shl(sQC, sWAVE, 16)); E(add(sQC, sQC, sQ0)); E(add(sQC, sQC, 256 * 8192))
        E(shr(s(3), sWAVE, 1)); E(shl(s(3), s(3), 13)); E(salu('s_and_b32', s(4), sWAVE, 1)); E(shl(s(4), s(4), 11)); E(add(s(3), s(3), s(4)))
        E(salu('s_sub_u32', s(3), s(3), 64)); E(shl(s(4), sWAVE, 11))
        for e, (h_, pfr) in enumerate([(sHP_, sPFa), (sHS_, sPFb)][:2 if kind == 'A' else 1]):
            E(shr(pfr, h_, 1)); E(shl(pfr, pfr, 19)); E(add(pfr, pfr, 1536 * 256))
            E(add(sKb[e], pfr, s(4))); E(add(sVb[e], pfr, s(3)))
        E(mul(sPFc, sROLE, 384 * 1152) if kind == 'A' else mul(sPFc, sHP_, 128 * 1152))
        if kind == 'A':
            E(mul(sHP_, sHP_, 128 * 1152)); E(mul(sHS_, sHS_, 128 * 1152))
            E(mul(sOA, sWAVE, 32 * 1152)); E(add(sOA1, sOA, sHS_)); E(add(sOA, sOA, sHP_))
            E(salu('s_sub_u32', sOA1, sOA1, 64 * 1152)); E(add(sT3, sOA, 192 * 1152)); E(salu('s_cmp_lt_u32', None, sWAVE, 2)); E(csel(sOA1, sT3, sOA1))
            E(shr(s(3), sWAVE, 1)); E(shl(s(3), s(3), 2)); E(salu('s_and_b32', s(4), sWAVE, 1)); E(add(s(3), s(3), s(4)))
            E(mul(sOB, s(3), 8 * 1152)); E(add(sOB1, sOB, sHS_)); E(add(sOB1, sOB1, 64 * 1152)); E(add(sOB, sOB, sHP_)); E(add(sOB, sOB, 128 * 1152))
        else:
            E(mul(sOA, sWAVE, 64 * 1152)); E(add(sOA, sOA, sPFc))
    elif kind in 'AM':
        E(mul(sT3, sROLE, 3 * 256))
        E(mul(sQA, sWAVE, 64 * 8192)); E(add(sQA, sQA, sT3))
        E(shl(sQC, sWAVE, 16)); E(add(sQC, sQC, sT3)); E(add(sQC, sQC, 256 * 8192))
        E(shr(s(3), sWAVE, 1)); E(shl(s(3), s(3), 13)); E(salu('s_and_b32', s(4), sWAVE, 1)); E(shl(s(4), s(4), 11)); E(add(s(3), s(3), s(4)))
        E(salu('s_sub_u32', s(3), s(3), 64)); E(shl(s(4), sWAVE, 11))
        if MS: E(shl(s(3), sWAVE, 12))
        for e in range(3 if kind == 'A' else 2):
            E(mul(sT3, sROLE, 3)); E(add(sT3, sT3, e)); E(shr(sT3, sT3, 1)); E(shl(sT3, sT3, 19)); E(add(sT3, sT3, 1536 * 256))
            if e == 0: E(smov(sPFa, sT3))
            if e == (2 if kind == 'A' else 1): E(smov(sPFb, sT3))
            E(add(sKb[e], sT3, s(4))); E(add(sVb[e], sT3, s(3)))
        E(mul(sPFc, sROLE, 384 * 1152))
        if kind == 'A':
            E(mul(sOA, sWAVE, 32 * 1152)); E(add(sOA, sOA, sPFc))
            E(shr(s(3), sWAVE, 1)); E(shl(s(3), s(3), 2)); E(salu('s_and_b32', s(4), sWAVE, 1)); E(add(s(3), s(3), s(4)))
            E(mul(sOB, s(3), 8 * 1152)); E(add(sOB, sOB, sPFc)); E(add(sOB, sOB, 128 * 1152))
        else:
            E(mul(sOA, sWAVE, 64 * 1152)); E(add(sOA, sOA, sPFc))
    if kind in 'FM':
        if kind == 'F':
            E(salu('s_sub_u32', s(3), sROLE, NA + NM)); E(mul(sPF1, s(3), 13 * 128)); E(shl(sPF1h, s(3), 6)); E(add(sPF1h, sPF1h, 69 * 128))
        elif CFG.get('l844'):
            E(mul(sPF1, sROLE, 5 * 128)); E(add(sPF1, sPF1, (52 - 40) * 128)); E(smov(sPF1h, sPF1))
        else:
            E(smov(sPF1, f_fullcol(5) * 2)); E(smov(sPF1h, f_halfcol(5) * 2))
        E(mul(sHA, sWAVE, 64 * 9216)); E(add(sHA, sHA, sPF1))
        E(mul(sHC, sWAVE, 8 * 9216)); E(add(sHC, sHC, sPF1)); E(add(sHC, sHC, 256 * 9216))
        E(mul(sHH, sWAVE, 128 * 9216)); E(add(sHH, sHH, sPF1h))
        E(mul(sHHC, sWAVE, 16 * 9216)); E(add(sHHC, sHHC, sPF1h)); E(add(sHHC, sHHC, 512 * 9216))
        E(mul(sPF2, sPF1, 576)); E(mul(sPF2h, sPF1h, 576))
        E(mul(sFA, sWAVE, 64 * 1152)); E(add(sFA, sFA, sPF2))
        if MS:
            E(salu('s_and_b32', s(3), sWAVE, 1)); E(shl(s(3), s(3), 1)); E(shr(s(4), sWAVE, 1)); E(add(s(3), s(3), s(4))); E(mul(sFC, s(3), 8 * 1152))
        else: E(mul(sFC, sWAVE, 4 * 1152))
        E(add(sFS, sFC, sPF2h)); E(add(sFC, sFC, sPF2)); E(add(sFC, sFC, 256 * 1152))
    if CFG['pf'] >= 3:
        if kind in 'AM': E(mul(sT3, sROLE, 3 * 256) if not CFG.get('pair') else smov(sT3, sQ0))
        E(pf_row_setup(kind, 8192 if kind in 'AM' else 9216, 18, sT3 if kind in 'AM' else sPF1, 0))
        f_ = pf_row(kind, sWQ if kind in 'AM' else sW1)
        early_pf = [f_()[1]] + f_() + f_()
        if CFG.get('ez'): E(early_pf[0])
        if CFG.get('epf', 1) == 3:
            R.pf.setdefault(0, [])[:0] = [f_, f_]
    E(add(sT3, sROLE, NS - NA if kind == 'F' else 0))
    E(mul(sSt, sT3, PSTR())); E(shl(sT3, sRB, 2)); E(add(sT3, sT3, sWAVE)); E(mul(sT3, sT3, PWAVE)); E(add(sSt, sSt, sT3))
    if kind == 'M': E(add(sSt2, sSt, (NS - NA) * PSTR()))
    if CFG['fused']:
        E(shl(sT2, sRB, 14)); E(add(sT2, sT2, CTRL))
        E(add(sT3, sROLE, NS - NA if kind == 'F' else 0)); E(shl(sT3, sT3, 2)); E(add(sT3, sT3, sT2))
        E(salu('s_cmp_eq_u32', None, sWAVE, 0)); E(csel(sT3, sT3, OOB)); E(csel(sT2, sT2, OOB))
        E(valu('v_and_b32', v(24), 15, lane)); E(valu('v_lshlrev_b32', v(25), 7, v(24))); E(valu('v_add_u32', v(25), 128, v(25)))
        E(raw("v_cmp_eq_u32 vcc, 0, v24", 'valu', wr=['vcc'], rd=[v(24)])); E(valu('v_cndmask_b32', v(25), v(25), 0, 'vcc') if False else raw("v_cndmask_b32 v25, v25, v24, vcc", 'valu', wr=[v(25)], rd=[v(25), v(24), 'vcc']))
        E(valu('v_lshrrev_b32', v(26), 4, lane)); E(valu('v_lshl_add_u32', v(25), v(26), 2 + (NS - NA).bit_length() - 1, v(25))); E(valu('v_add_u32', v(25), sT3, v(25)))
        E(raw(f"s_mov_b64 vcc, {hex(((1 << (NA + 1 + CFG.get('mpriv', 0))) - 1) * (0x10001 if kind == 'M' else 1))}", 'salu', wr=['vcc'])); E(valu('v_mov_b32', vCT, OOB)); E(nop(1))
        E(raw(f"v_cndmask_b32 {vCT}, {vCT}, v25, vcc", 'valu', wr=[vCT], rd=[vCT, v(25), 'vcc']))
        E(valu('v_mov_b32', v(24), vCT))
        if CFG.get('abn'):
            E(valu('v_and_b32', v(26), 15, lane)); E(valu('v_lshlrev_b32', v(26), 8, v(26))); E(add(sT2, sT2, ABN)); E(valu('v_add_u32', v(26), sT2, v(26)))
            if kind == 'A' and CFG.get('bal') == 2:
                E(valu('v_mov_b32', v(27), sROLE))
                for lim, tab, base in ((15, BAL2, 10), (31, BAL3, 21), (47, [BALM[i] if BALM[i] < 36 else BAL3[i] for i in range(10)], 20)):
                    t_ = [x - base for x in tab]
                    E(smov(s(98), sum(t_[i] << (4 * i) for i in range(8)))); E(smov(s(99), t_[8] | (t_[9] << 4)))
                    E(shl(s(4), sROLE, 2)); E(salu('s_lshr_b64', s(98, 2), s(98, 2), s(4))); E(salu('s_and_b32', s(4), s(98), 15)); E(add(s(4), s(4), base))
                    E(valu('v_mov_b32', v(25), s(4)))
                    E(raw(f"v_cmp_lt_u32 vcc, {lim}, v0", 'valu', wr=['vcc'], rd=[lane])); E(raw("v_cndmask_b32 v27, v27, v25, vcc", 'valu', wr=[v(27)], rd=[v(27), v(25), 'vcc']))
            elif kind == 'F' and CFG.get('bal') == 2:
                E(valu('v_mov_b32', v(27), 40))
            elif kind == 'A':
                t_ = [x - 20 for x in ([28, 29, 23, 30, 31, 24, 32, 33, 34, 35] if CFG.get('m3') else [28, 29, 22, 30, 31, 21, 32, 33, 34, 35])]
                E(smov(s(98), sum(t_[i] << (4 * i) for i in range(8)))); E(smov(s(99), t_[8] | (t_[9] << 4)))
                E(shl(s(4), sROLE, 2)); E(salu('s_lshr_b64', s(98, 2), s(98, 2), s(4))); E(salu('s_and_b32', s(4), s(98), 15)); E(add(s(4), s(4), 20))
                E(valu('v_mov_b32', v(27), s(4))); E(add(s(4), sROLE, 10)); E(valu('v_mov_b32', v(25), s(4)))
                E(raw("v_cmp_gt_u32 vcc, 32, v0", 'valu', wr=['vcc'], rd=[lane])); E(raw("v_cndmask_b32 v27, v27, v25, vcc", 'valu', wr=[v(27)], rd=[v(27), v(25), 'vcc']))
                E(valu('v_mov_b32', v(25), sROLE))
                E(raw("v_cmp_gt_u32 vcc, 16, v0", 'valu', wr=['vcc'], rd=[lane])); E(raw("v_cndmask_b32 v27, v27, v25, vcc", 'valu', wr=[v(27)], rd=[v(27), v(25), 'vcc']))
            elif CFG.get('m3') and kind == 'M':
                E(valu('v_lshrrev_b32', v(27), 4, lane)); E(valu('v_min_u32', v(27), 2 if CFG['m3'] == 1 else 1, v(27))); E(valu('v_add_u32', v(27), CFG.get('mb', 20), v(27)))
            elif CFG.get('m3'):
                E(add(s(4), sROLE, 12)); E(salu('s_cmp_lt_u32', None, sROLE, 13)); E(csel(s(4), 40, s(4))); E(valu('v_mov_b32', v(27), s(4)))
            else:
                E(smov(s(4), 20) if kind == 'M' else add(s(4), sROLE, 12)); E(valu('v_mov_b32', v(27), s(4)))
            E(valu('v_lshl_add_u32', v(26), v(27), 2, v(26))); E(valu('v_mov_b32', v(25), 0))
            z = bstore('buffer_store_dword', v(25), v(26), sWS, 0, flags='sc1'); z.tag = 'zero'; E(z)
        else:
            assert not (CFG.get('l844') or CFG.get('four') or CFG.get('nof'))
            E(add(sT2, sT2, 4 * (NPART + 1)))
            def flag(lane_, item):
                E(raw(f"s_lshl2_add_u32 {sT3}, {item}, {sT2}", 'salu', wr=[sT3], rd=[item, sT2]))
                E(raw(f"v_writelane_b32 v24, {sT3}, {lane_}", 'valu', wr=[v(24)], rd=[sT3, v(24)]))
            def tflag(lane_, tab, base):
                t_ = [min(x - base, 15) for x in tab]
                E(smov(s(98), sum(t_[i] << (4 * i) for i in range(8)))); E(smov(s(99), t_[8] | (t_[9] << 4)))
                E(shl(s(4), sROLE, 2)); E(salu('s_lshr_b64', s(98, 2), s(98, 2), s(4))); E(salu('s_and_b32', s(4), s(98), 15)); E(add(s(4), s(4), base)); flag(lane_, s(4))
            if kind == 'A' and CFG.get('bal'):
                flag(32, sROLE); tflag(33, BAL2, 10); tflag(34, BAL3, 21)
                tflag(35, [x if x < 36 else i for i, x in enumerate(BALM)][:0] + [(BALM[i] if BALM[i] < 36 else BAL2[i]) for i in range(10)], 10)
            elif kind == 'A':
                flag(32, sROLE); E(add(s(4), sROLE, 10)); flag(33, s(4)); tflag(34, [28, 29, 22, 30, 31, 21, 32, 33, 34, 35], 20)
            elif kind == 'F' and CFG.get('bal'):
                E(add(s(4), sROLE, 12)); E(salu('s_cmp_lt_u32', None, sROLE, 13)); E(csel(s(4), 41, s(4))); flag(32, s(4))
            else:
                E(smov(s(4), 20) if kind == 'M' else add(s(4), sROLE, 12)); flag(32, s(4))
        E(valu('v_mov_b32', v(25), 0))
        z = bstore('buffer_store_dword', v(25), v(24), sWS, 0, flags='sc1'); z.tag = 'zero'; E(z)
        E(shl(sT2, sRB, 4)); E(salu('s_cmp_eq_u32', None, sWAVE, 0)); E(csel(sT2, sT2, 256))
        E(valu('v_mov_b32', v(23), 256)); E(raw(f"v_writelane_b32 v23, {sT2}, 0", 'valu', wr=[v(23)], rd=[sT2, v(23)]))
    T_ = [v(24), v(25), v(26), v(27), v(28), v(29)]
    q, r, c4, rb1 = T_[0], T_[1], T_[2], T_[3]
    E(valu('v_lshrrev_b32', q, 4, lane)); E(valu('v_bfe_u32', r, lane, 2, 2)); E(valu('v_and_b32', c4, 3, lane)); E(valu('v_bfe_u32', rb1, lane, 3, 1))
    E(valu('v_and_b32', T_[4], 7, lane)); E(valu('v_bfe_u32', T_[5], lane, 4, 1)); E(valu('v_lshlrev_b32', T_[5], 1, T_[5]))
    E(valu('v_xor_b32', T_[4], T_[4], T_[5])); E(valu('v_lshlrev_b32', vSWZ, 4, T_[4]))
    E(valu('v_lshrrev_b32', T_[4], 5, lane)); E(valu('v_and_b32', T_[5], 3, vROWN)); E(valu('v_lshl_add_u32', vROWP, T_[4], 4, T_[5]))
    E(smov(sT2, PP)); E(valu('v_mul_u32_u24', T_[4], sT2, q)); E(valu('v_lshl_add_u32', T_[4], r, 7, T_[4]))
    E(valu('v_lshl_add_u32', T_[4], c4, 3, T_[4])); E(valu('v_lshl_add_u32', vRW[0][0], rb1, 5, T_[4]))
    E(valu('v_mov_b32', vDP, vRW[0][0]))
    if MS:
        E(valu('v_and_b32', T_[4], 7, lane)); E(valu('v_bfe_u32', T_[5], lane, 4, 1)); E(valu('v_lshlrev_b32', T_[5], 2, T_[5]))
        E(valu('v_xor_b32', T_[4], T_[4], T_[5])); E(valu('v_lshlrev_b32', vSWZM, 4, T_[4]))
        E(valu('v_bfe_u32', q, lane, 4, 1)); E(valu('v_lshlrev_b32', q, 5, q))
        E(valu('v_and_b32', T_[4], 1, lane)); E(valu('v_lshl_add_u32', q, T_[4], 4, q))
        E(valu('v_bfe_u32', T_[4], lane, 1, 1)); E(valu('v_lshl_add_u32', q, T_[4], 3, q))
        E(valu('v_lshrrev_b32', T_[5], 5, lane))
        E(smov(sT2, PP)); E(valu('v_mad_u32_u24', T_[4], T_[5], sT2, q)); E(valu('v_lshl_add_u32', T_[4], r, 7, T_[4]))
        E(valu('v_lshl_add_u32', vRW[0][0], rb1, 6, T_[4])); E(valu('v_xor_b32', rb1, 1, rb1)); E(valu('v_lshl_add_u32', vRW[0][1], rb1, 6, T_[4]))
        if kind in 'FM':
            E(valu('v_lshl_add_u32', vRH[0], T_[5], 9, q)); E(valu('v_lshl_add_u32', vRH[0], r, 6, vRH[0]))
            E(valu('v_lshlrev_b32', T_[4], 4, c4)); E(valu('v_lshrrev_b32', T_[5], 2, lane)); E(smov(sT2, 9216))
            E(valu('v_mad_u32_u24', vOFFH, T_[5], sT2, T_[4]))
        E(valu('v_lshrrev_b32', q, 4, lane))
    else:
        E(valu('v_xor_b32', vRW[0][1], 32, vRW[0][0]))
    for b in (1, 2):
        for T in range(2): E(valu('v_add_u32', vRW[b][T], 65536 * b, vRW[0][T]))
    if kind in 'FM' and not MS:
        E(valu('v_lshlrev_b32', T_[4], 9, q)); E(valu('v_lshl_add_u32', T_[4], r, 6, T_[4])); E(valu('v_lshl_add_u32', T_[4], c4, 3, T_[4]))
        E(valu('v_and_b32', T_[5], 1, q)); E(valu('v_lshl_add_u32', vRH[0], T_[5], 5, T_[4])); E(valu('v_xor_b32', vRH[1], 32, vRH[0]))
        E(valu('v_lshrrev_b32', T_[4], 5, lane)); E(valu('v_lshlrev_b32', T_[4], 1, T_[4])); E(valu('v_xor_b32', T_[4], T_[4], c4))
        E(valu('v_lshlrev_b32', T_[4], 4, T_[4])); E(valu('v_lshrrev_b32', T_[5], 2, lane)); E(smov(sT2, 9216))
        E(valu('v_mad_u32_u24', vOFFH, T_[5], sT2, T_[4]))
    if kind in 'AM':
        E(valu('v_and_b32', T_[4], 15, lane)); E(valu('v_xor_b32', T_[4], T_[4], q)); E(valu('v_lshlrev_b32', T_[4], 4, T_[4]))
        E(valu('v_lshl_add_u32', vOFFK, q, 8, T_[4]))
    E(set_offw(8192 if kind in 'AM' else 9216, 'M' if MS else 'S'))
    if MS:
        XA = [v(20), v(21), v(22), v(39)]
        E(valu('v_and_b32', T_[4], 31, lane)); E(valu('v_bfe_u32', T_[5], lane, 1, 3)); E(valu('v_lshrrev_b32', q, 5, lane)); E(valu('v_xor_b32', T_[5], T_[5], q))
        E(valu('v_lshlrev_b32', T_[4], 7, T_[4])); E(valu('v_add_u32', T_[4], s(6), T_[4]))
        E(valu('v_lshl_add_u32', XA[0], T_[5], 4, T_[4]))
        for tt in range(1, 4): E(valu('v_xor_b32', XA[tt], 32 * tt, XA[0]))
    else:
        E(valu('v_and_b32', T_[4], 15, lane)); E(valu('v_bfe_u32', T_[5], lane, 1, 3)); E(valu('v_xor_b32', T_[5], T_[5], q))
        E(valu('v_lshlrev_b32', T_[4], 7, T_[4])); E(valu('v_add_u32', T_[4], s(6), T_[4]))
        E(valu('v_lshl_add_u32', v(20), T_[5], 4, T_[4])); E(valu('v_xor_b32', v(21), 64, v(20)))
        if kind in 'AM':
            E(smov(sT2, PP)); E(valu('v_mul_u32_u24', v(22), sT2, r)); E(valu('v_lshl_add_u32', v(22), c4, 8, v(22)))
            E(valu('v_xor_b32', T_[4], q, c4)); E(valu('v_lshl_add_u32', v(22), T_[4], 4, v(22)))
    E(valu('v_lshlrev_b32', vLANE16, 4, lane))
    if CFG['stamps'] == 2: E(valu('v_mov_b32', vSTAMP, 0))
    if CFG['fused'] and CFG.get('rep') and kind in 'FM':
        E(rep_addr(kind, v(24), v(25))); E(valu('v_mov_b32', v(25), 0))
        z = bstore('buffer_store_dword', v(25), v(24), sWS, 0, flags='sc1'); z.tag = 'zero'; E(z)
    E = p.emit
    sONE = s(97) if ILV else sT2
    SA = 56 if ILV else 28
    for i in range(8): E(valu('v_mov_b32', v(SA + i), 0))
    E(smov(sONE, 0x3f803f80))
    def stats(j):
        for tt in range(2):
            for g in range(2):
                for qd in range(4):
                    x = X(2 * j + tt, g)[qd]
                    E(valu('v_dot2c_f32_bf16', v(SA + 2 * g + (qd & 1)), sONE, x, rmw=True))
                    E(valu('v_dot2c_f32_bf16', v(SA + 4 + 2 * g + (qd & 1)), x, x, rmw=True))
    PS(57)
    for j in range(9):
        E(waitvm(p.vm_wait_for(lambda t: t == ('x', j))))
        if j == 0: PS(58)
        if MS:
            for tt in range(4): E(ds_b128(XM(4 * j + tt), XA[tt], j * 4096))
        else:
            for tt in range(2):
                for g in range(2): E(ds_b128(X(2 * j + tt, g), v(20 + tt), j * 4096 + g * 2048))
        if j + CFG['xe'] < 9: E(xdma(j + CFG['xe']))
        if CFG['pf'] >= 3 and CFG.get('epf', 1) == 1 and j == max(8 - CFG['xe'], 0): E(early_pf)
        if ILV:
            nper = -(-len(setup) // max(CFG['ilv'] - j, 1))
            while nper < len(setup) and (SCC in setup[nper].rd or setup[nper].txt.startswith('s_cselect') or VCC in setup[nper].rd): nper += 1
            E(setup[:nper]); del setup[:nper]
        if j >= 1:
            E(waitlg(4)); stats(j - 1)
    E(waitlg(0)); PS(59); E(barrier())
    if CFG.get('codepf', 3) == 2: E(I(f"global_load_dword {vDUM}, v46, s[100:101]", 'vload', wr=vDUM.regs(), rd=vr(46) + sr(100, 2), tag='pf'))
    if CFG['pf'] >= 3 and CFG.get('epf', 1) == 2: E(early_pf)
    pend = []
    for k in range(2 if CFG.get('pro2') else 3):
        st = R.stages[k]
        if st.pre_dma: pend.append(st.pre_dma())
        pend += st.dma(k, False)
    if CFG.get('epf', 1) == 4: pend[CFG.get('epos', 9):CFG.get('epos', 9)] = [early_pf[1:3], early_pf[3:5]]
    d0 = CFG.get('d0', 9)
    for it in pend[:d0]: E(it)
    pend = pend[d0:]
    PS(60)
    stats(8)
    acc4 = [v(SA), v(SA + 2), v(SA + 4), v(SA + 6)]
    for x in acc4: E(valu('v_add_f32', x, x, v(x.n + 1)))
    if MS:
        for b_ in (0, 2):
            E(valu('v_add_f32', acc4[b_], acc4[b_], acc4[b_ + 1]))
        for b_ in (0, 2): E(valu('v_mov_b32', acc4[b_ + 1], acc4[b_]))
    for op in (('v_permlane32_swap_b32',) if MS else ('v_permlane16_swap_b32', 'v_permlane32_swap_b32')):
        for x in acc4: E(valu('v_mov_b32', v(x.n + 1), x))
        for x in acc4: E(valu(op, x, v(x.n + 1), rmw=True, extra_wr=[v(x.n + 1)]))
        for x in acc4: E(valu('v_add_f32', x, x, v(x.n + 1)))
    for x in acc4: E(valu('v_mul_f32', x, f2u(1.0 / 576), x))
    for g in range(2): E(valu('v_fma_f32', acc4[2 + g], '-' + str(acc4[g]), acc4[g], acc4[2 + g]))
    for g in range(2): E(valu('v_max_f32', acc4[2 + g], 0, acc4[2 + g]))
    for g in range(2): E(valu('v_add_f32', acc4[2 + g], f2u(1e-5), acc4[2 + g]))
    for g in range(2): E(valu('v_rsq_f32', acc4[2 + g], acc4[2 + g]))
    for g in range(2): E(valu('v_mul_f32', acc4[2 + g], f2u(-LOG2E), acc4[2 + g]))
    for g in range(2): E(valu('v_mov_b32', v(20 + g), acc4[g]))
    for g in range(2): E(valu('v_mul_f32', acc4[g], '-' + str(acc4[g]), acc4[2 + g], extra_rd=[acc4[g]]))
    E(smov(sT2, 0xffff0000))
    if CFG.get('dotn'):
        cl = [v(SA + 1), v(SA + 3)]; ch = [v(SA + 5), v(SA + 7)]
        for g in range(2): E(valu('v_cvt_pk_bf16_f32', cl[g], acc4[2 + g], 0))
        for g in range(2): E(valu('v_lshlrev_b32', ch[g], 16, cl[g]))
        for g in range(2): E(valu('v_mul_f32', acc4[g], '-' + str(v(20 + g)), ch[g], extra_rd=[v(20 + g)]))
    PS(61)
    n = 0
    for t in range(18):
        for g in range(2):
            tps = [v(24, 2), v(26, 2), v(16, 2), v(18, 2)]
            x = X(t, g)
            if CFG.get('dotn'):
                for qd in range(4):
                    E(valu('v_dot2_f32_bf16', tps[qd][0], x[qd], cl[g], acc4[g])); E(valu('v_dot2_f32_bf16', tps[qd][1], x[qd], ch[g], acc4[g]))
            else:
                for qd in range(4):
                    E(valu('v_lshlrev_b32', tps[qd][0], 16, x[qd])); E(valu('v_and_b32', tps[qd][1], sT2, x[qd]))
                for qd in range(4): E(valu('v_pk_fma_f32', tps[qd], tps[qd], v(acc4[2 + g].n, 2), v(acc4[g].n, 2), mods='op_sel_hi:[1,0,0]'))
            for qd in range(4): E(valu('v_cvt_pk_bf16_f32', x[qd], tps[qd][0], tps[qd][1]))
            if pend and n % CFG.get('dn', 2) == 0: E(pend.pop(0))
            n += 1
    for it in pend: E(it)
    if CFG['fused']:
        E(valu('v_mov_b32', v(24), 1)); E(waitvm(p.vm_wait_for(lambda t: t == 'zero')))
        E(I(f"buffer_atomic_add v24, v23, {sDBG}, 0 offen sc1", 'vstore', rd=vr(23, 2) + sDBG.regs(), units=3, tag='init'))
    for _ in range(CFG.get('idle', 0)): E(raw("s_sleep 16"))
    PS(62)
    if kind in 'AM' and MS:
        ln, m_, key, t_ = v(16), v(17), v(18), v(19)
        E([valu('v_lshrrev_b32', ln, 4, vLANE16), valu('v_and_b32', key, 19, ln),
           valu('v_bfe_u32', t_, ln, 2, 1), valu('v_lshl_add_u32', key, t_, 3, key),
           valu('v_bfe_u32', t_, ln, 3, 1), valu('v_lshl_add_u32', key, t_, 2, key),
           valu('v_lshrrev_b32', m_, 2, key), smov(sT2, PP), valu('v_mul_u32_u24', m_, sT2, m_),
           valu('v_and_b32', key, 3, key), valu('v_lshl_add_u32', m_, key, 8, m_),
           valu('v_lshrrev_b32', t_, 5, ln), valu('v_xor_b32', t_, t_, key),
           valu('v_lshl_add_u32', vRKM[0], t_, 4, m_), valu('v_xor_b32', vRKM[1], 32, vRKM[0])])
    elif kind in 'AM':
        E(valu('v_mov_b32', vRK[0], v(22))); E(valu('v_add_u32', vRK[1], 65536, v(22))); E(valu('v_add_u32', vRK[2], 131072, v(22)))
    if CFG['stamps']: E(raw(f"v_writelane_b32 {vSTAMP}, s96, 55", 'valu', wr=[vSTAMP], rd=[s(96)])) if kind != 'A' else None
    if CFG['stamps']: E(smov(s(43), s(96)))
    nlr = {'F': 10, 'A': 11, 'M': 8}[kind]
    if kind != 'M': E([valu('v_lshrrev_b32', vPF2, 16, vTID), valu('v_and_b32', vPFR, 63, vTID), valu('v_min_u32', vPFR, nlr - 1, vPFR),
       valu('v_mad_u32_u24', vPFR, vPF2, nlr, vPFR), valu('v_lshlrev_b32', vPFR, 7, vPFR)])
    if CFG['stamps']: E(smov(s(97), 0))
    E(smov(sLN0, f2u(-1.0 / math.sqrt(128.0))))

def slow_check(R, heads, base2):
    def f():
        p = R.p; E = p.emit
        t = v(254); lo = v(255)
        E(valu('v_mov_b32', lo, f2u(2.0 ** -40))); E(smov(sT3, f2u(2.0 ** 40)))
        for (hd, Q, O) in heads:
            L = f"L_{R.kind}_slow{hd}"
            if CFG['shape'] == 'M':
                E(valu('v_med3_f32', t, Lsave[hd], sT3, lo))
                E(raw(f"v_cmp_neq_f32 vcc, {t}, {Lsave[hd]}", 'valu', wr=['vcc'], rd=[t, Lsave[hd]])); E(nop(4))
            else:
                E(valu('v_med3_f32', t, Lsave[2 * hd], sT3, lo))
                E(raw(f"v_cmp_neq_f32 s[98:99], {t}, {Lsave[2 * hd]}", 'valu', wr=[s(98, 2)], rd=[t, Lsave[2 * hd]]))
                E(valu('v_med3_f32', t, Lsave[2 * hd + 1], sT3, lo))
                E(raw(f"v_cmp_neq_f32 vcc, {t}, {Lsave[2 * hd + 1]}", 'valu', wr=['vcc'], rd=[t, Lsave[2 * hd + 1]])); E(nop(4))
                E(raw("s_or_b64 vcc, vcc, s[98:99]", 'salu', wr=['vcc'], rd=['vcc', s(98, 2)])); E(nop(1))
            if CFG.get('force_slow'): E(raw(f"s_mov_b64 vcc, -1", 'salu', wr=['vcc']))
            E(raw(f"s_cbranch_vccz {L}_ret"))
            E(raw(f"s_call_b64 {sRET}, {L}"))
            E(label(f"{L}_ret"))
            R.slow.append((slow_path if CFG['shape'] == 'M' else slow_pathS)(L, hd, Q, O, base2))
        E(nop(1))
    return f

def slow_path(L, hd, Q, Odst, b2):
    p = Prog(); E = p.emit
    O = v(48, 64); S = v(b2, 16); P = v(b2 + 16, 8); F = v(b2 + 24, 16)
    vK, vV, vM, vL, t0, t1 = [v(b2 + 40 + i) for i in range(6)]
    sB, sJ, sO = s(98), s(99), s(97)
    E(I(".p2align 2", 'label')); E(label(L))
    E(nop(7)); E(nop(7))
    E([valu('v_lshrrev_b32', t0, 4, vLANE16), valu('v_and_b32', vK, 19, t0), valu('v_bfe_u32', t1, t0, 2, 1), valu('v_lshl_add_u32', vK, t1, 3, vK),
       valu('v_bfe_u32', t1, t0, 3, 1), valu('v_lshl_add_u32', vK, t1, 2, vK), valu('v_lshrrev_b32', t1, 5, t0),
       valu('v_lshlrev_b32', vV, 1, vK), valu('v_lshl_add_u32', vV, t1, 11, vV),
       valu('v_lshlrev_b32', vK, 8, vK), valu('v_lshl_add_u32', vK, t1, 4, vK)])
    E([mul(sB, sROLE, 3), add(sB, sB, hd), shr(sB, sB, 1), shl(sB, sB, 19), add(sB, sB, 1536 * 256)])
    def qk():
        for half in range(2):
            for t in range(4): E(bload('buffer_load_dwordx4', F.sub(4 * t, 4), vK, sK, sO, (4 * half + t) * 32))
            E(waitvm(0))
            for t in range(4):
                tt = 4 * half + t
                E(mfma(S, F.sub(4 * t, 4), Q.sub(4 * tt, 4), 0 if tt == 0 else S))
            E(nop(7)); E(nop(7))
    E(valu('v_mov_b32', vM, 0xff800000)); E(smov(sJ, 0))
    E(label(L + "_a"))
    E(add(sO, sB, sJ)); qk()
    for i in range(0, 16, 2): E(valu('v_max3_f32', vM, vM, S[i], S[i + 1]))
    E(add(sJ, sJ, 8192)); E(salu('s_cmp_lt_u32', None, sJ, 16 * 8192)); E(raw(f"s_cbranch_scc1 {L}_a"))
    E(valu('v_mov_b32', t0, vM)); E(valu('v_permlane32_swap_b32', vM, t0, rmw=True, extra_wr=[t0])); E(valu('v_max_f32', vM, vM, t0))
    for i in range(64): E(valu('v_mov_b32', O[i], 0))
    E(valu('v_mov_b32', vL, 0)); E(smov(sJ, 0))
    E(label(L + "_b"))
    E(add(sO, sB, sJ)); qk()
    for i in range(16): E(valu('v_sub_f32', S[i], S[i], vM))
    for i in range(16): E(valu('v_exp_f32', S[i], S[i]))
    for i in range(16): E(valu('v_add_f32', vL, vL, S[i]))
    for q in range(8): E(valu('v_cvt_pk_bf16_f32', P[q], S[2 * q], S[2 * q + 1]))
    for u in range(2):
        for tp in range(2):
            for tq in range(2):
                for j in range(8):
                    E(bload('buffer_load_ushort', F[8 * (j & 1) + 4 * tq + j // 2], vV, sV, sO, j * 256 + (2 * tp + tq) * 64))
            E(waitvm(0))
            for i in range(8): E(valu('v_lshl_or_b32', F[i], F[8 + i], 16, F[i]))
            for tq in range(2):
                D_ = O.sub(16 * (2 * tp + tq), 16)
                E(mfma(D_, F.sub(4 * tq, 4), P.sub(4 * u, 4), D_))
            E(nop(7))
        if u == 0: E(add(sO, sO, 4096))
    E(add(sJ, sJ, 8192)); E(salu('s_cmp_lt_u32', None, sJ, 16 * 8192)); E(raw(f"s_cbranch_scc1 {L}_b"))
    E(nop(7)); E(nop(7))
    E(valu('v_mov_b32', t0, vL)); E(valu('v_permlane32_swap_b32', vL, t0, rmw=True, extra_wr=[t0])); E(valu('v_add_f32', vL, vL, t0))
    E(valu('v_rcp_f32', t0, vL))
    for tau in range(4):
        A_ = O.sub(16 * tau, 16)
        for e in range(16): E(valu('v_mul_f32', A_[e], A_[e], t0))
        for q in range(8): E(valu('v_cvt_pk_bf16_f32', A_[2 * q], A_[2 * q], A_[2 * q + 1]))
        for q in range(4): E(valu('v_permlane16_swap_b32', A_[2 * q], A_[2 * q + 8], rmw=True, extra_wr=[A_[2 * q + 8]]))
        for q in range(8): E(valu('v_accvgpr_write_b32', Odst[8 * tau + q], A_[2 * q]))
    E(nop(1)); E(raw(f"s_setpc_b64 {sRET}"))
    return p

def slow_pathS(L, hd, Q, Odst, b2):
    p = Prog(); E = p.emit
    ob = 48; kv = None
    if isinstance(b2, tuple): b2, ob = b2
    if isinstance(Odst, tuple):
        OFf, kv = Odst
        class _D:
            def __getitem__(s_, i): return OFf(i // 8)[i % 8]
        Odst = _D()
    O = v(ob, 64); S = v(b2, 16); P = v(b2 + 16, 8); F = v(b2 + 24, 16)
    vK, vV, t0, t1 = [v(b2 + 40 + i) for i in range(4)]
    vM = [v(b2 + 44), v(b2 + 45)]; vL = [v(b2 + 46), v(b2 + 47)]
    sB, sJ, sO = s(98), s(99), s(97)
    E(I(".p2align 2", 'label')); E(label(L))
    E(nop(7)); E(nop(7))
    E([valu('v_lshrrev_b32', t0, 4, vLANE16), valu('v_and_b32', t1, 15, t0), valu('v_lshrrev_b32', t0, 4, t0),
       valu('v_lshlrev_b32', vK, 8, t1), valu('v_lshl_add_u32', vK, t0, 4, vK),
       valu('v_lshlrev_b32', vV, 1, t1), valu('v_lshl_add_u32', vV, t0, 10, vV)])
    if kv is not None: E(smov(sB, kv))
    else: E([mul(sB, sROLE, 3), add(sB, sB, hd), shr(sB, sB, 1), shl(sB, sB, 19), add(sB, sB, 1536 * 256)])
    def qk():
        for T in range(2):
            E(add(sO, sB, sJ)) if T == 0 else E(add(sO, sO, 4096))
            for t in range(4): E(bload('buffer_load_dwordx4', F.sub(4 * t, 4), vK, sK, sO, t * 64))
            E(waitvm(0))
            for t in range(4):
                for g_ in range(2):
                    D_ = S.sub(8 * T + 4 * g_, 4)
                    E(mfma(D_, F.sub(4 * t, 4), Q.sub(8 * t + 4 * g_, 4), 0 if t == 0 else D_))
            E(nop(7)); E(nop(3))
    def allq(x, op):
        for sw in ('v_permlane16_swap_b32', 'v_permlane32_swap_b32'):
            E(valu('v_mov_b32', t0, x)); E(valu(sw, x, t0, rmw=True, extra_wr=[t0])); E(valu(op, x, x, t0))
    for g_ in range(2): E(valu('v_mov_b32', vM[g_], 0xff800000))
    E(smov(sJ, 0))
    E(label(L + "_a"))
    qk()
    for T in range(2):
        for g_ in range(2):
            for i in (0, 2): E(valu('v_max3_f32', vM[g_], vM[g_], S[8 * T + 4 * g_ + i], S[8 * T + 4 * g_ + i + 1]))
    E(add(sJ, sJ, 8192)); E(salu('s_cmp_lt_u32', None, sJ, 16 * 8192)); E(raw(f"s_cbranch_scc1 {L}_a"))
    for g_ in range(2): allq(vM[g_], 'v_max_f32')
    for i in range(64): E(valu('v_mov_b32', O[i], 0))
    for g_ in range(2): E(valu('v_mov_b32', vL[g_], 0))
    E(smov(sJ, 0))
    E(label(L + "_b"))
    qk()
    for i in range(16): E(valu('v_sub_f32', S[i], S[i], vM[(i >> 2) & 1]))
    for i in range(16): E(valu('v_exp_f32', S[i], S[i]))
    for i in range(16): E(valu('v_add_f32', vL[(i >> 2) & 1], vL[(i >> 2) & 1], S[i]))
    for g_ in range(2):
        for T in range(2):
            for k in range(2): E(valu('v_cvt_pk_bf16_f32', P[4 * g_ + 2 * T + k], S[8 * T + 4 * g_ + 2 * k], S[8 * T + 4 * g_ + 2 * k + 1]))
    for tp in range(4):
        for jh in range(2):
            E(add(sO, sB, sJ)) if jh == 0 else E(add(sO, sO, 4096))
            for tq in range(2):
                for jl in range(4):
                    j = 4 * jh + jl
                    E(bload('buffer_load_ushort', F[8 * (j & 1) + 4 * tq + j // 2], vV, sV, sO, jl * 256 + (2 * tp + tq) * 32))
        E(waitvm(0))
        for i in range(8): E(valu('v_lshl_or_b32', F[i], F[8 + i], 16, F[i]))
        for tq in range(2):
            for g_ in range(2):
                D_ = O.sub(8 * (2 * tp + tq) + 4 * g_, 4)
                E(mfma(D_, F.sub(4 * tq, 4), P.sub(4 * g_, 4), D_))
        E(nop(7))
    E(add(sJ, sJ, 8192)); E(salu('s_cmp_lt_u32', None, sJ, 16 * 8192)); E(raw(f"s_cbranch_scc1 {L}_b"))
    E(nop(7)); E(nop(3))
    for g_ in range(2): allq(vL[g_], 'v_add_f32')
    for g_ in range(2): E(valu('v_rcp_f32', vL[g_], vL[g_]))
    for i in range(64): E(valu('v_mul_f32', O[i], O[i], vL[(i >> 2) & 1]))
    for kk in range(4):
        for g_ in range(2):
            for T in range(2):
                for c in range(2):
                    r = 8 * (2 * kk + T) + 4 * g_ + 2 * c
                    E(valu('v_cvt_pk_bf16_f32', O[r], O[r], O[r + 1])); E(valu('v_accvgpr_write_b32', Odst[8 * kk + 4 * g_ + 2 * T + c], O[r]))
    E(nop(1)); E(raw(f"s_setpc_b64 {sRET}"))
    return p

NREP = 6
ABN = 4096
BAL2 = [10, 11, 22, 13, 14, 21, 12, 17, 15, 19]; BALM = [63, 63, 63, 63, 63, 63, 16, 63, 18, 63]; BAL3 = [28, 29, 23, 30, 31, 24, 32, 33, 34, 35]
sMD2 = s(84)
def BMB(): return 20 if CFG.get('bal') == 2 else 16
def rep_addr(kind, dst, t):
    return [shl(sT2, sRB, 14), add(sT2, sT2, CTRL + 2048), add(sT3, sROLE, NS - NA), shl(sT3, sT3, 2), add(sT2, sT2, sT3),
            salu('s_cmp_eq_u32', None, sWAVE, 0), csel(sT2, sT2, OOB),
            valu('v_lshlrev_b32', dst, 3, vLANE16), valu('v_add_u32', dst, sT2, dst), valu('v_mov_b32', t, OOB),
            raw(f"v_cmp_gt_u32 vcc, {hex(NA * NREP * 16)}, {vLANE16}", 'valu', wr=['vcc'], rd=[vLANE16]), valu('v_cndmask_b32', dst, t, dst, 'vcc')]
vCR = v(31)
def add_signals(R):
    P2 = [k for k, st in enumerate(R.stages) if st.name.startswith('P2')]
    def sig(first):
        def f():
            out = [valu('v_add_u32', vPRG, 1, vPRG)]
            return out + [bstore('buffer_store_dword', vPRG, vCT, sWS, 0, flags='sc1')]
        return f
    def sig7():
        return [valu('v_add_u32', vPRG, 1, vPRG), bstore('buffer_store_dword', vPRG, vCR, sWS, 0, flags='sc1'), bstore('buffer_store_dword', vPRG, vCT, sWS, 0, flags='sc1')]
    def chain(stages, base):
        firsts = [k for k in stages if R.stages[k].sub == 0]
        for c in range(8):
            k = firsts[c + 1] + CFG.get('siglag', {}).get(R.kind, 2)
            if k > stages[-1]: break
            R.stages[k].cover_st = base + c; R.stages[k].post_bar = sig(c == 0)
            if c == 7 and CFG.get('rep') and R.kind in 'FM': R.stages[k].post_bar = sig7
        if CFG.get('rep') and R.kind in 'FM': R.pf.setdefault(firsts[1], []).append(lambda: rep_addr(R.kind, vCR, vPF))
    chain(P2, 0)
    R.stages[P2[0]].post_bar = lambda: [valu('v_mov_b32', vPRG, 0)]

LDSC = 4 * SLOT
sAB = s(72, 2); sRM = s(74, 2); sCD = s(98, 2)
sRS, sRF, sSP, sC, sI, sPB, sPART, sOK, sPAR, sXW, sPWv, sTO = s(78), s(79), s(71), s(80), s(81), s(82), s(47), s(40), s(41), s(59), s(3), s(58)
sIT = [s(42), s(44), s(45)]; sXP = [s(46), s(60), s(61)]
sRET2 = s(66, 2)
vP, vD, vA, vO, vXO, vL4, vDO, vLA, vIT, vLD, vSC = [v(16 + i) for i in range(11)]
vX4 = v(28)
def s64(op, d, *src, scc_r=False): return salu(op, d, *src, scc_r=scc_r)
sPV = s(76)
def red_setup(kind):
    o = [shl(sPB, sRB, 14), add(sPB, sPB, CTRL), salu('s_cmp_eq_u32', None, sWAVE, 0), csel(sT3, 0, OOB),
         valu('v_lshrrev_b32', vL4, 2, vLANE16), valu('v_add_u32', vL4, sT3, vL4),
         valu('v_mov_b32', vSC, OOB), add(sT2, sT3, 4 * NPART), raw(f"v_writelane_b32 {vSC}, {sT2}, 0", 'valu', wr=[vSC], rd=[sT2, vSC]),
         valu('v_mov_b32', vS1, vSC), valu('v_min_u32', vL5, NPART * 16, vLANE16), valu('v_lshrrev_b32', vL5, 2, vL5), valu('v_add_u32', vL5, sT3, vL5),
         add(sT2, sT3, 252), raw(f"v_writelane_b32 {vSC}, {sT2}, 1", 'valu', wr=[vSC], rd=[sT2, vSC]),
         shl(sT2, sRB, 4), add(sT2, sT2, sT3), valu('v_mov_b32', vDO, 256), raw(f"v_writelane_b32 {vDO}, {sT2}, 0", 'valu', wr=[vDO], rd=[sT2, vDO])]
    if kind == 'A' or (kind == 'M' and CFG.get('mpriv')): o += [shl(sPV, sROLE, 7), add(sPV, sPV, 256), add(sPV, sPV, sPB)]
    if CFG.get('abn'): o += [shl(sAV_, sROLE, 8), add(sAV_, sAV_, ABN), add(sAV_, sAV_, sPB)]
    return o
vS1, vL5 = v(29), v(30)
sAV_ = s(76 + 1); vP2 = v(31)
def ab_load(): return bload('buffer_load_dword', vP2, vL4, sWS, sAV_, flags='sc1')
def ab_eval():
    return [raw(f"v_cmp_ne_u32 vcc, 0, {vP2}", 'valu', wr=['vcc'], rd=[vP2]), nop(1), raw(f"s_mov_b32 {sAB[0]}, vcc_lo", 'salu', wr=[sAB[0]], rd=['vcc']), raw(f"s_and_b32 {sAB[1]}, vcc_hi, 15", 'salu', wr=[sAB[1]], rd=['vcc'])]
PRIV = [False]
def red_poll(shared=False):
    cnt = [valu('v_mov_b32', vD, 0), I(f"buffer_atomic_add {vD}, {vDO}, {sDBG}, 0 offen sc0 sc1", 'vload', wr=vD.regs(), rd=vD.regs() + vDO.regs() + sDBG.regs(), units=3)]
    if PRIV[0] and not shared:
        return [cnt, [bstore('buffer_store_dword', vS1, vS1, sWS, sPV, flags='sc1'), bload('buffer_load_dword', vP, vL5, sWS, sPV, flags='sc1')]]
    return [cnt, [bstore('buffer_store_dword', vSC, vSC, sWS, sPB, flags='sc1'), bload('buffer_load_dword', vP, vL4, sWS, sPB, flags='sc1')]]
vG = [v(28), v(29), v(30)]; vGA = v(31); vGP = v(27)
def l2pf_setup():
    return [valu('v_lshrrev_b32', vGP, 7, vLANE16), smov(sT2, PSTR()), valu('v_mul_lo_u32', vGA, vGP, sT2),
            valu('v_bfe_u32', vA, vLANE16, 4, 3), valu('v_lshl_add_u32', vGA, vA, 7, vGA), shl(sT2, sWAVE, 10), valu('v_add_u32', vGA, sT2, vGA),
            valu('v_lshlrev_b32', vGP, 2, vGP), valu('v_mov_b32', vA, OOB), smov(sT2, 68), raw(f"v_writelane_b32 {vA}, {sT2}, 0", 'valu', wr=[vA], rd=[vA, sT2])]
def l2pf_poll():
    st = bstore('buffer_store_dword', vA, vA, sWS, sPB, flags='sc1')
    out = [[st]]
    for i in range(3):
        ld = bload('buffer_load_dword', vG[i], vGP, sWS, sPB, 32 * i, flags='sc1'); ld.tag = 'gp'
        out.append([ld])
    return out
def l2pf_issue(R, dlt):
    out = [[add(sI, sROLE, dlt), salu('s_and_b32', sT2, sI, 3), shr(sC, sI, 2), shl(sT3, sRB, 2), add(sT2, sT2, sT3), mul(sSP, sT2, PWAVE),
            shl(sT3, sC, 12), add(sSP, sSP, sT3), valu('v_mov_b32', vO, OOB)]]
    for i in range(3):
        ld = bload('buffer_load_dword', vDUM, vG[i], sWS, sT2); ld.tag = 'pf'
        cmp_ = raw(f"v_cmp_lt_u32 vcc, {sC}, {vG[i]}", 'valu', wr=['vcc'], rd=[sC, vG[i]])
        pre = [cmp_]
        if i == 2: pre += [raw("s_and_b64 vcc, vcc, 0xff", 'salu', wr=['vcc'], rd=['vcc'])]
        out.append(pre + [add(sT2, sSP, 8 * i * PSTR()), valu('v_cndmask_b32', vG[i], vO, vGA, 'vcc'), ld])
    return out
def red_eval():
    o = [raw(f"v_cmp_ne_u32 vcc, 0, {vP}", 'valu', wr=['vcc'], rd=[vP]), nop(1),
         raw(f"s_lshr_b64 {sAB}, vcc, {NPART + 1}", 'salu', wr=[sAB], rd=['vcc']), salu('s_and_b32', sAB[1], sAB[1], 15), smov(sRS, 0), smov(sRF, 0)]
    for c in range(9):
        o += [raw(f"v_cmp_ge_u32 vcc, {c}, {vP}", 'valu', wr=['vcc'], rd=[vP]), nop(1),
              raw(f"s_and_b32 {sT2}, vcc_lo, {hex((1 << NS) - 1)}", 'salu', wr=[sT2], rd=['vcc']), csel(sRS, sRS, 4 * (c + 1)),
              raw(f"s_and_b32 {sT2}, vcc_lo, {hex((1 << NPART) - (1 << NS))}", 'salu', wr=[sT2], rd=['vcc']), csel(sRF, sRF, 4 * (c + 1))]
    return o
def red_pub(par):
    return [shl(sT2, sRF, 8), salu('s_or_b32', sT2, sT2, sRS), shl(sT3, sTO, 16), salu('s_or_b32', sT2, sT2, sT3),
            valu('v_mov_b32', vIT, sT2), valu('v_mov_b32', vLA, par), raw(f"ds_write_b32 {vLA}, {vIT}", 'other', rd=[vLA, vIT]), waitlg(0)]
def red_get(par):
    return [valu('v_mov_b32', vLA, par), raw(f"ds_read_b32 {vIT}, {vLA}", 'ds', wr=[vIT], rd=[vLA]), waitlg(0),
            valu('v_readfirstlane_b32', sT2, vIT), salu('s_and_b32', sRS, sT2, 255), salu('s_bfe_u32', sRF, sT2, (8 << 16) | 8), shr(sTO, sT2, 16)]
def red_early(p, n):
    E = p.emit
    E([smov(sRS, 0), smov(sRF, 0), smov(sOK, 0), smov(sTO, 0), smov(sPAR, LDSC + 4), nop(1)])
    E(salu('s_cmp_eq_u32', None, sWAVE, 0)); E(raw(f"s_cbranch_scc0 L_{n}_e2"))
    E(waitvm(p.vm_wait_for(lambda t: t == 'poll')))
    E(valu('v_readfirstlane_b32', sOK, vD))
    E(salu('s_cmp_ge_u32', None, sOK, 16)); E(raw(f"s_cbranch_scc0 L_{n}_e1"))
    E(red_eval())
    E(label(f"L_{n}_e1"))
    E(red_pub(LDSC))
    E(label(f"L_{n}_e2"))

def ld_part(L, ks, flags):
    out = []
    for k in ks:
        out.append([add(sT2, sPART, k * PSTR()), bload('buffer_load_dwordx4', v(L + 4 * k, 4), vLD, sWS, sT2, flags=flags)])
    return out
def ld_x(L, sXO_):
    if CFG.get('nox'): return [[valu('v_mov_b32', vA, OOB), bload('buffer_load_dwordx2', v(L + 4 * NPART, 2), vA, sX, sXO_)], [bload('buffer_load_dwordx2', v(L + 4 * NPART + 2, 2), vA, sX, sXO_, 32)]]
    return [[bload('buffer_load_dwordx2', v(L + 4 * NPART, 2), vXO, sX, sXO_)], [bload('buffer_load_dwordx2', v(L + 4 * NPART + 2, 2), vXO, sX, sXO_, 32)]]
RB_ = 48
sD0, sD1 = s(68), s(69)
def proc_sum(E, L, ks, after, loads):
    SA, FA, T = RB_, RB_ + 8, RB_ + 16
    issued = 0; ks = list(ks)
    E(smov(sT3, 0xffff0000))
    for j, k in enumerate(ks):
        if loads: E(loads.pop(0)); issued += 1
        E(waitvm(len(ks) - 1 - j + after + issued))
        acc = SA if k < NS else FA
        for q in range(4):
            x = v(L + 4 * k + q)
            if k in (0, NS):
                E(valu('v_lshlrev_b32', v(acc + 2 * q), 16, x)); E(valu('v_and_b32', v(acc + 2 * q + 1), sT3, x))
            else:
                E(valu('v_dot2c_f32_bf16', v(acc + 2 * q), sD0, x, rmw=True)); E(valu('v_dot2c_f32_bf16', v(acc + 2 * q + 1), sD1, x, rmw=True))
    return issued
def proc_fin(E, L, sXO_, xwait, loads):
    SA, FA, T = RB_, RB_ + 8, RB_ + 16; XR = L + 4 * NPART; issued = 0
    for e in range(8): E(valu('v_exp_f32', v(T + e), v(FA + e)))
    for e in range(8): E(valu('v_add_f32', v(T + e), 1.0, v(T + e)))
    while len(loads) > 1: E(loads.pop(0)); issued += 1
    for e in range(8): E(valu('v_rcp_f32', v(T + e), v(T + e)))
    for e in range(8): E(valu('v_mul_f32', v(FA + e), f2u(-math.log(2.0)), v(FA + e)))
    for e in range(8): E(valu('v_mul_f32', v(FA + e), v(FA + e), v(T + e)))
    while loads: E(loads.pop(0)); issued += 1
    if xwait is not None: E(waitvm(xwait + issued))
    for q in range(4):
        E(valu('v_lshlrev_b32', v(T + 2 * q), 16, v(XR + q))); E(valu('v_and_b32', v(T + 2 * q + 1), sT3, v(XR + q)))
    for e in range(8): E(valu('v_fma_f32', v(T + e), v(SA + e), v(FA + e), v(T + e)))
    for q in range(4): E(valu('v_cvt_pk_bf16_f32', v(XR + q), v(T + 2 * q), v(T + 2 * q + 1)))
    if CFG.get('out4', True):
        def dpp(d, src, bank): return I(f"v_mov_b32_dpp {d}, {src} row_ror:8 row_mask:0xf bank_mask:{bank}", 'perm', wr=d.regs(), rd=src.regs() + d.regs())
        for i in range(2): E(valu('v_permlane16_swap_b32', v(XR + i), v(XR + 2 + i), rmw=True, extra_wr=[v(XR + 2 + i)]))
        for i in range(2): E(valu('v_mov_b32', v(T + i), v(XR + i)))
        for i in range(2): E(dpp(v(XR + i), v(XR + 2 + i), '0xc'))
        for i in range(2): E(dpp(v(XR + 2 + i), v(T + i), '0x3'))
        E(bstore('buffer_store_dwordx4', v(XR, 4), vX4, sOUT, sXO_, flags=CFG.get('oflags', 'sc1')))
        E(valu('v_mov_b32', vO, OOB)); E(bstore('buffer_store_dword', vO, vO, sOUT, 0))
        return
    E(bstore('buffer_store_dwordx2', v(XR, 2), vXO, sOUT, sXO_)); E(bstore('buffer_store_dwordx2', v(XR + 2, 2), vXO, sOUT, sXO_, 32))
def proc_all(E, L, sXO_, pre, loads):
    loads = list(loads)
    n = proc_sum(E, L, range(NPART), 2 + pre, loads)
    proc_fin(E, L, sXO_, pre + n, loads)

def acc_part(E, L, k):
    acc = RB_ if k < NS else RB_ + 8
    for q in range(4):
        x = v(L + 4 * k + q)
        if k in (0, NS):
            E(valu('v_lshlrev_b32', v(acc + 2 * q), 16, x)); E(valu('v_and_b32', v(acc + 2 * q + 1), sT3, x))
        else:
            E(valu('v_dot2c_f32_bf16', v(acc + 2 * q), sD0, x, rmw=True)); E(valu('v_dot2c_f32_bf16', v(acc + 2 * q + 1), sD1, x, rmw=True))
def stream(E, segs, hooks=None):
    W = CFG.get('rwin', 8); FL = CFG.get('fflags', 'sc1')
    seq = []
    for (L, sP, sX_, ks, wx, fin) in segs:
        if wx:
            for it in ld_x(L, sX_): seq.append((it, None))
        ks = list(ks)
        for j, k in enumerate(ks):
            it = [add(sT2, sP, k * PSTR()), bload('buffer_load_dwordx4', v(L + 4 * k, 4), vLD, sWS, sT2, flags=FL)]
            last = fin and j == len(ks) - 1
            seq.append((it, (lambda L=L, k=k, last=last, sX_=sX_: (acc_part(E, L, k), proc_fin(E, L, sX_, None, []) if last else None, last)[2])))
    E(smov(sT3, 0xffff0000))
    n = len(seq); issued = 0
    extra_at = []
    for c in range(n):
        while issued < min(n, c + W): E(seq[issued][0]); issued += 1
        if hooks and c in hooks:
            for _ in range(hooks[c](issued + sum(1 for e in extra_at))): extra_at.append(issued)
            E(smov(sT3, 0xffff0000))
        if seq[c][1] is None: continue
        E(waitvm(issued - 1 - c + sum(1 for e in extra_at if e > c)))
        if seq[c][1]():
            extra_at += [issued, issued]

def body_items(E, n, its, two, ni, ensure, refresh, done, ST, seg, final_flag, poll_hook, LATE, L0, L1, FOUR, sMID, offs, sPT):
    if n == 'M' and CFG.get('m3') == 1:
        ensure(its[2], 1, 1); ST(its[0])
        stream(E, [seg(0, L0), seg(1, L1), seg(2, L0)], {4: (lambda _: (E(ab_load()), 1)[1])})
        for i in range(3): done(its[i])
        return
    E(salu('s_min_u32', sT2, sRS, sRF)); E(salu('s_cmp_lt_u32', None, its[two - 1], sT2)); E(raw(f"s_cbranch_scc0 L_{n}_sl"))
    ST(its[0])
    AB = CFG.get('abn')
    def ab_hook(_): E(ab_load()); return 1
    hooks = {(NPART + 2) * two - CFG.get('pollat', 8): poll_hook}
    if AB:
        if ni < 3: hooks = {}
        hooks[14 if LATE else 4] = ab_hook
    if LATE: hooks[CFG.get('flagat', 3) if n == 'A' else 0] = final_flag
    stream(E, [seg(0, L0), seg(1, L1)][:two], hooks)
    ST(51)
    E(raw(f"s_branch L_{n}_j"))
    E(label(f"L_{n}_sl"))
    if LATE and two == 2 and CFG.get('mid1', 1):
        E(salu('s_min_u32', sT2, sRS, sRF)); E(salu('s_cmp_lt_u32', None, its[0], sT2)); E(raw(f"s_cbranch_scc0 L_{n}_s0"))
        ST(52)
        stream(E, [seg(0, L0)], {CFG.get('flagat', 3): final_flag, 12: poll_hook}); done(its[0])
        refresh(2); ensure(its[1], 1, 1)
        stream(E, [seg(1, L1)], {11: poll_hook, 3: ab_hook} if AB else {11: poll_hook})
        E(raw(f"s_branch L_{n}_j"))
        E(label(f"L_{n}_s0"))
    if LATE: final_flag(0)
    for i in range(two):
        ensure(its[i], 1, 1)
        hk = {11: poll_hook} if (i == two - 1 and not (AB and ni < 3)) else {}
        if AB and i == two - 1: hk[4] = ab_hook
        stream(E, [seg(i, L0)], hk); done(its[i])
    E(label(f"L_{n}_j"))
    for i in range(two): done(its[i])
    if FOUR or ((CFG.get('asg') == 3 or CFG.get('bal')) and n == 'A'):
        E(salu('s_cmp_gt_u32', None, sMID, 35)); E(raw(f"s_cbranch_scc1 L_{n}_nm"))
        refresh(2)
        ensure(sMID, 1, 1); ST(sMID)
        E(offs(sMID, sXP[0]))
        stream(E, [seg(0, L1)], {13: poll_hook}); done(sMID)
        E(label(f"L_{n}_nm"))
    def warm():
        if not CFG.get('warm', 1): return
        E(valu('v_mov_b32', v(240), vLD)); E(valu('v_mov_b32', v(241), vX4)); E(valu('v_mov_b32', vLD, OOB)); E(valu('v_mov_b32', vX4, OOB))
        E(raw(f"s_call_b64 {sRET2}, L_{n}_ft"))
        E(valu('v_mov_b32', vLD, v(240))); E(valu('v_mov_b32', vX4, v(241)))
    if ni == 3:
        if CFG.get('asg') == 3:
            E(salu('s_cmp_lt_u32', None, its[2], 36)); E(raw(f"s_cbranch_scc1 L_{n}_h3"))
            E(red_poll(True)[1]); E(waitvm(0)); E(raw(f"s_branch L_{n}_fin")); E(label(f"L_{n}_h3"))
        refresh(2, AB and CFG.get('abx', 1))
        if CFG.get('nof'):
            E(salu('s_cmp_gt_u32', None, sMD2, 35)); E(raw(f"s_cbranch_scc1 L_{n}_k1"))
            ensure(sMD2, 1, 1); E(offs(sMD2, sXP[0])); ST(sMD2)
            E(salu('s_cmp_lt_u32', None, its[2], sRS)); E(raw(f"s_cbranch_scc0 L_{n}_k0"))
            E(salu('s_cmp_lt_u32', None, its[2], sRF)); E(raw(f"s_cbranch_scc1 L_{n}_k0"))
            warm()
            stream(E, [seg(0, L1), seg(2, L0, range(NS), True, False)], {20: poll_hook.sh}); done(sMD2)
            E(raw(f"s_branch L_{n}_k2"))
            E(label(f"L_{n}_k0"))
            stream(E, [seg(0, L1)], {11: poll_hook}); done(sMD2)
            refresh(2)
            E(label(f"L_{n}_k1"))
        if CFG.get('pw') == 2 and n == 'A':
            E(salu('s_cmp_eq_u32', None, sMD2, 0)); E(raw(f"s_cbranch_scc0 L_{n}_old"))
            vQ, vZ = v(242), v(243); FM_ = (1 << NPART) - (1 << NS); SM_ = (1 << NS) - 1
            E(valu('v_min_u32', vQ, NPART * 16, vLANE16)); E(valu('v_lshrrev_b32', vQ, 2, vQ))
            E(valu('v_mov_b32', vZ, OOB)); E(smov(sT2, 4 * NPART)); E(raw(f"v_writelane_b32 {vZ}, {sT2}, 0", 'valu', wr=[vZ], rd=[sT2, vZ]))
            E(shr(sC, its[2], 2))
            def drop(): return bstore('buffer_store_dword', vZ, vZ, sWS, sPV, flags='sc1')
            def test(mask):
                E(raw(f"v_cmp_ge_u32 vcc, {sC}, {vP}", 'valu', wr=['vcc'], rd=[vP, sC])); E(nop(1))
                E(raw(f"s_and_b32 {sI}, vcc_lo, {hex(FM_)}", 'salu', wr=[sI], rd=['vcc']))
                E(raw(f"s_and_b32 {sT2}, vcc_lo, {hex(mask)}", 'salu', wr=[sT2], rd=['vcc']))
            def waitpw(tag, mask):
                L = f"L_{n}_{tag}"
                E(smov(sSP, 0))
                E(label(L + "0"))
                E(bload('buffer_load_dword', vP, vQ, sWS, sPV, flags='sc1'))
                E(salu('s_and_b32', sT2, sSP, 4 * CFG.get('pwk', 1) - 1)); E(mul(sT3, sWAVE, CFG.get('pwk', 1))); E(salu('s_cmp_eq_u32', None, sT2, sT3)); E(raw(f"s_cbranch_scc0 {L}1"))
                E(drop()); E(waitvm(1)); E(raw(f"s_branch {L}2"))
                E(label(L + "1")); E(waitvm(0))
                E(label(L + "2"))
                test(mask); E(raw(f"s_cbranch_scc0 {L}3"))
                E(add(sSP, sSP, 1)); E(salu('s_cmp_gt_u32', None, sSP, 4 * CFG.get('spin', 4000))); E(raw(f"s_cbranch_scc1 {L}4"))
                E(raw(f"s_sleep {CFG.get('pwsleep', 2)}")); E(raw(f"s_branch {L}0"))
                E(label(L + "4"))
                E(valu('v_lshlrev_b32', vO, 4, vLANE16)); E(valu('v_mov_b32', vIT, OOB)); E(valu('v_mov_b32', vA, 1))
                E(raw(f"v_cmp_gt_u32 vcc, 0x100, {vLANE16}", 'valu', wr=['vcc'], rd=[vLANE16])); E(valu('v_cndmask_b32', vO, vIT, vO, 'vcc'))
                E(raw(f"s_lshl2_add_u32 {sT2}, {its[2]}, {sPB}", 'salu', wr=[sT2], rd=[its[2], sPB])); E(add(sT2, sT2, ABN))
                E(bstore('buffer_store_dword', vA, vO, sWS, sT2, flags='sc1')); E(waitvm(0))
                E(drop()); E(waitvm(0))
                E(bload('buffer_load_dword', vP, vQ, sWS, sPV, flags='sc1')); E(waitvm(0))
                test(SM_ | FM_); E(raw(f"s_cbranch_scc1 L_{n}_exit"))
                E(label(L + "3"))
            E(salu('s_min_u32', sT2, sRS, sRF)); E(salu('s_cmp_lt_u32', None, its[2], sT2)); E(raw(f"s_cbranch_scc1 L_{n}_f3"))
            E(salu('s_cmp_lt_u32', None, its[2], sRS)); E(raw(f"s_cbranch_scc1 L_{n}_ps"))
            waitpw('ws', SM_)
            E(salu('s_cmp_eq_u32', None, sI, 0)); E(raw(f"s_cbranch_scc1 L_{n}_f3"))
            E(label(f"L_{n}_ps")); ST(its[2])
            warm()
            stream(E, [seg(2, L0, range(NS), True, False)], {5: (lambda _: (E(drop()), 1)[1])})
            waitpw('wf', FM_); ST(50)
            E(raw(f"s_call_b64 {sRET2}, L_{n}_ft")); E(raw(f"s_branch L_{n}_exit"))
            E(label(f"L_{n}_ft"))
            stream(E, [seg(2, L0, range(NS, NPART), False, True)])
            E(raw(f"s_setpc_b64 {sRET2}"))
            E(label(f"L_{n}_old"))
            ensure(its[2], 1, 1)
            E(label(f"L_{n}_f3"))
            stream(E, [seg(2, L0)])
            done(its[2])
            E(salu('s_cmp_eq_u32', None, sMD2, 0)); E(raw(f"s_cbranch_scc1 L_{n}_exit")); E(raw(f"s_branch L_{n}_fb"))
            return
        ensure(its[2], 1, 0); ST(its[2])
        E(salu('s_cmp_lt_u32', None, its[2], sRF)); E(raw(f"s_cbranch_scc1 L_{n}_f3"))
        if CFG.get('rep') and n == 'A':
            warm()
            stream(E, [seg(2, L0, range(NS), True, False)], {4: poll_hook.sh})
            E(label(f"L_{n}_k2"))
            E(salu('s_cmp_eq_u32', None, sWAVE, 0)); E(raw(f"s_cbranch_scc0 L_{n}_w2"))
            E(waitvm(0))
            E(raw(f"v_cmp_ne_u32 vcc, 0, {vP}", 'valu', wr=['vcc'], rd=[vP])); E(nop(1))
            E(raw(f"s_lshr_b64 {sAB}, vcc, {NPART + 1}", 'salu', wr=[sAB], rd=['vcc'])); E(salu('s_and_b32', sAB[1], sAB[1], 15))
            E(salu('s_or_b32', sT2, sAB[0], sAB[1])); E(csel(sRS, 1, 0))
            E(shr(sC, its[2], 2)); E(mul(sI, sROLE, NREP * 128)); E(add(sI, sI, sPB)); E(add(sI, sI, 2048)); E(add(sSP, sI, NREP * 128))
            E(label(f"L_{n}_w0"))
            E(bload('buffer_load_dword', vP, vL5, sWS, sI, flags='sc1')); E(waitvm(0))
            E(raw(f"v_cmp_ge_u32 vcc, {sC}, {vP}", 'valu', wr=['vcc'], rd=[vP, sC])); E(nop(1))
            E(raw(f"s_and_b32 {sT2}, vcc_lo, {hex((1 << NPART) - (1 << NS))}", 'salu', wr=[sT2], rd=['vcc'])); E(csel(sRF, 0, 36))
            E(raw(f"s_cbranch_scc0 L_{n}_w1"))
            E(add(sI, sI, 128)); E(salu('s_cmp_lt_u32', None, sI, sSP)); E(raw(f"s_cbranch_scc0 L_{n}_w1"))
            E(raw(f"s_sleep {CFG.get('rsleep', 6)}")); E(raw(f"s_branch L_{n}_w0"))
            E(label(f"L_{n}_w1")); E(red_pub(sPAR))
            E(label(f"L_{n}_w2")); E(barrier()); E(red_get(sPAR)); E(salu('s_xor_b32', sPAR, sPAR, 12))
            E(smov(sMID, sRS))
            ensure(its[2], 0, 1); ST(50)
            E(raw(f"s_call_b64 {sRET2}, L_{n}_ft")); done(its[2])
            E(salu('s_cmp_eq_u32', None, sMID, 0)); E(raw(f"s_cbranch_scc1 L_{n}_exit")); E(raw(f"s_branch L_{n}_fb"))
            E(label(f"L_{n}_ft"))
            stream(E, [seg(2, L0, range(NS, NPART), False, True)])
            E(raw(f"s_setpc_b64 {sRET2}"))
        elif CFG.get('pw') and n == 'A':
            E(salu('s_cmp_eq_u32', None, sMD2, 0)); E(raw(f"s_cbranch_scc0 L_{n}_old"))
            warm()
            vQ, vZ = v(242), v(243)
            E(valu('v_min_u32', vQ, NPART * 16, vLANE16)); E(valu('v_lshrrev_b32', vQ, 2, vQ))
            E(valu('v_mov_b32', vZ, OOB)); E(smov(sT2, 4 * NPART)); E(raw(f"v_writelane_b32 {vZ}, {sT2}, 0", 'valu', wr=[vZ], rd=[sT2, vZ]))
            def drop_hook(_): E(bstore('buffer_store_dword', vZ, vZ, sWS, sPV, flags='sc1')); return 1
            stream(E, [seg(2, L0, range(NS), True, False)], {5: drop_hook})
            E(shr(sC, its[2], 2)); E(smov(sSP, 0))
            E(label(f"L_{n}_pw0"))
            E(bload('buffer_load_dword', vP, vQ, sWS, sPV, flags='sc1'))
            E(salu('s_and_b32', sT2, sSP, 3)); E(salu('s_cmp_eq_u32', None, sT2, sWAVE)); E(raw(f"s_cbranch_scc0 L_{n}_pw1"))
            E(bstore('buffer_store_dword', vZ, vZ, sWS, sPV, flags='sc1')); E(waitvm(1)); E(raw(f"s_branch L_{n}_pw2"))
            E(label(f"L_{n}_pw1")); E(waitvm(0))
            E(label(f"L_{n}_pw2"))
            E(raw(f"v_cmp_ge_u32 vcc, {sC}, {vP}", 'valu', wr=['vcc'], rd=[vP, sC])); E(nop(1))
            E(raw(f"s_and_b32 {sT2}, vcc_lo, {hex((1 << NPART) - (1 << NS))}", 'salu', wr=[sT2], rd=['vcc'])); E(raw(f"s_cbranch_scc0 L_{n}_pw3"))
            E(add(sSP, sSP, 1)); E(salu('s_cmp_gt_u32', None, sSP, 4 * CFG.get('spin', 4000))); E(raw(f"s_cbranch_scc1 L_{n}_pw4"))
            E(raw(f"s_sleep {CFG.get('pwsleep', 2)}")); E(raw(f"s_branch L_{n}_pw0"))
            E(label(f"L_{n}_pw4"))
            E(valu('v_lshlrev_b32', vO, 4, vLANE16)); E(valu('v_mov_b32', vIT, OOB)); E(valu('v_mov_b32', vA, 1))
            E(raw(f"v_cmp_gt_u32 vcc, 0x100, {vLANE16}", 'valu', wr=['vcc'], rd=[vLANE16])); E(valu('v_cndmask_b32', vO, vIT, vO, 'vcc'))
            E(raw(f"s_lshl2_add_u32 {sT2}, {its[2]}, {sPB}", 'salu', wr=[sT2], rd=[its[2], sPB])); E(add(sT2, sT2, ABN))
            E(bstore('buffer_store_dword', vA, vO, sWS, sT2, flags='sc1')); E(waitvm(0))
            E(bstore('buffer_store_dword', vZ, vZ, sWS, sPV, flags='sc1')); E(waitvm(0))
            E(bload('buffer_load_dword', vP, vQ, sWS, sPV, flags='sc1')); E(waitvm(0))
            E(raw(f"v_cmp_ge_u32 vcc, {sC}, {vP}", 'valu', wr=['vcc'], rd=[vP, sC])); E(nop(1))
            E(raw(f"s_and_b32 {sT2}, vcc_lo, {hex((1 << NPART) - (1 << NS))}", 'salu', wr=[sT2], rd=['vcc'])); E(raw(f"s_cbranch_scc1 L_{n}_exit"))
            E(label(f"L_{n}_pw3")); ST(50)
            E(raw(f"s_call_b64 {sRET2}, L_{n}_ft")); E(raw(f"s_branch L_{n}_exit"))
            E(label(f"L_{n}_ft"))
            stream(E, [seg(2, L0, range(NS, NPART), False, True)])
            E(raw(f"s_setpc_b64 {sRET2}"))
            E(label(f"L_{n}_old"))
            stream(E, [seg(2, L0, range(NS), True, False)])
            ensure(its[2], 0, 1)
            E(raw(f"s_call_b64 {sRET2}, L_{n}_ft")); E(raw(f"s_branch L_{n}_f4"))
        else:
            stream(E, [seg(2, L0, range(NS), True, False)], {6: poll_hook})
            refresh(0)
            ensure(its[2], 0, 1); ST(50)
            stream(E, [seg(2, L0, range(NS, NPART), False, True)], {0: poll_hook.sh} if not AB else None)
            E(raw(f"s_branch L_{n}_f4"))
        E(label(f"L_{n}_f3"))
        stream(E, [seg(2, L0)], {11: poll_hook.sh} if not AB else None)
        E(label(f"L_{n}_f4"))
        done(its[2])
        if AB and CFG.get('abx', 1):
            E(salu('s_cmp_eq_u32', None, sMD2, 0)); E(raw(f"s_cbranch_scc1 L_{n}_exit")); E(raw(f"s_branch L_{n}_fb"))


def reducer(kind):
    p = Prog(); E = p.emit; n = kind; FL = CFG.get('fflags', 'sc1')
    PRIV[0] = (kind == 'A' or (kind == 'M' and bool(CFG.get('mpriv'))))
    def ST(code):
        if CFG['stamps'] != 2: return
        E(raw(f"s_memtime {sSTAMP}", wr=[sSTAMP])); E(raw("s_waitcnt lgkmcnt(0)")); E(salu('s_sub_u32', s(98), s(98), s(100)))
        E(shl(s(98), s(98), 6)); E(salu('s_or_b32', s(98), s(98), code))
        E(add(s(97), s(97), 16)); E(salu('s_min_u32', s(97), s(97), 11 * 16))
        E(raw(f"v_cmp_eq_u32 vcc, s97, {vLANE16}", 'valu', wr=['vcc'], rd=[s(97), vLANE16])); E(valu('v_mov_b32', v(27), s(98)))
        E(valu('v_cndmask_b32', vSTAMP, vSTAMP, v(27), 'vcc'))
    def offs(item, sX_):
        return [salu('s_and_b32', sT2, item, 3), shr(sC, item, 2), shl(sT3, sRB, 2), add(sT2, sT2, sT3), mul(sPART, sT2, PWAVE), add(sX_, sPART, sXW),
                shl(sT3, sC, 12), add(sT3, sT3, sPWv), add(sPART, sPART, sT3), shl(sT3, sC, 7), add(sX_, sX_, sT3)]
    k_ = [0]
    def ensure(item, s_, f_):
        L = f"L_{n}_en{k_[0]}"; k_[0] += 1
        if s_ and f_: E(salu('s_min_u32', sT2, sRS, sRF)); r = sT2
        else: r = sRS if s_ else sRF
        E(salu('s_cmp_lt_u32', None, item, r)); E(raw(f"s_cbranch_scc1 {L}"))
        E(smov(sI, item)); E(smov(sC, (1 if s_ else 0) | (2 if f_ else 0)))
        E(raw(f"s_call_b64 {sRET2}, L_{n}_sync"))
        E(salu('s_cmp_eq_u32', None, sTO, 0)); E(raw(f"s_cbranch_scc0 L_{n}_fb"))
        E(label(L))
    def done(item): E(raw(f"s_bitset0_b64 {sRM}, {item}", 'salu', wr=[sRM], rd=[sRM, item]))
    E(label(f"L_{n}_red"))
    if CFG.get('rdelay'):
        if n == 'A': (E(waitvm(0)), E(barrier()), E(valu('v_mov_b32', vPRG, 9)), E(bstore('buffer_store_dword', vPRG, vCT, sWS, 0, flags='sc1')))
        for _ in range({'A': 30, 'M': 24, 'F': 14}[n]): E(raw("s_sleep 16"))
    if not (n == 'F' and CFG.get('bal') == 2 and CFG.get('fq', 1)): E(red_get(LDSC))
    if CFG.get('rdelay'): E(smov(sRS, 36)); E(smov(sRF, 36))
    E(valu('v_lshrrev_b32', vO, 4, vLANE16)); E(valu('v_and_b32', vXO, 7, vO)); E(valu('v_lshlrev_b32', vLD, 4, vXO))
    E(smov(sT2, 1152)); E(valu('v_mul_u32_u24', vXO, sT2, vXO))
    E(valu('v_lshrrev_b32', vA, 3, vO)); E(valu('v_lshl_add_u32', vX4, vA, 4, vXO))
    E(valu('v_bfe_u32', vA, vO, 3, 2)); E(valu('v_lshl_add_u32', vXO, vA, 3, vXO)); E(valu('v_lshl_add_u32', vLD, vA, 8, vLD))
    E(valu('v_lshrrev_b32', vA, 5, vO)); E(valu('v_lshl_add_u32', vXO, vA, 6, vXO)); E(valu('v_lshl_add_u32', vLD, vA, 11, vLD))
    E(mul(sXW, sWAVE, 8 * 1152)); E(shr(sPWv, sWAVE, 1)); E(shl(sPWv, sPWv, 10)); E(salu('s_and_b32', sT2, sWAVE, 1)); E(shl(sT2, sT2, 7)); E(add(sPWv, sPWv, sT2))
    L0, L1 = 72, 76 + 4 * NPART
    E(smov(sD0, 0x3f80)); E(smov(sD1, 0x3f800000))
    E(raw(f"s_mov_b64 {sRM}, 0", 'salu', wr=[sRM]))
    FOUR = CFG.get('four')
    sMID = s(48 + 0) if False else s(83)
    def nib(dst, tab, base):
        E(smov(sCD[0], sum(tab[i] << (4 * i) for i in range(8)))); E(smov(sCD[1], tab[8] | (tab[9] << 4)))
        E(shl(sT2, sROLE, 2)); E(s64('s_lshr_b64', sCD, sCD, sT2)); E(salu('s_and_b32', dst, sCD[0], 15))
        E(salu('s_cmp_eq_u32', None, dst, 15)); E(csel(dst, 63 - base, dst)); E(add(dst, dst, base))
    if n == 'A':
        E(smov(sIT[0], sROLE)); E(add(sIT[1], sROLE, NA))
        if CFG.get('bal'):
            nib(sIT[1], [x - 10 for x in BAL2], 10); nib(sIT[2], [x - 21 for x in BAL3], 21); nib(sMID, [min(x - BMB(), 15) for x in BALM], BMB())
            E(raw(f"s_bitset1_b64 {sRM}, {sMID}", 'salu', wr=[sRM], rd=[sRM, sMID]))
        elif CFG.get('asg') == 2: E(add(sIT[2], sROLE, 16))
        elif CFG.get('asg') == 3:
            E(add(sMID, sROLE, 16)); E(raw(f"s_bitset1_b64 {sRM}, {sMID}", 'salu', wr=[sRM], rd=[sRM, sMID]))
            E(salu('s_and_b32', sT2, sROLE, 1)); E(shr(sIT[2], sROLE, 1)); E(add(sIT[2], sIT[2], 24)); E(salu('s_cmp_eq_u32', None, sT2, 0)); E(csel(sIT[2], sIT[2], 63))
        elif CFG.get('l844'): E(add(sIT[2], sROLE, 28))
        elif FOUR:
            nib(sMID, [0, 15, 1, 2, 15, 3, 4, 5, 6, 7], 20); nib(sIT[2], [0, 1, 15, 2, 3, 15, 4, 5, 6, 7], 28)
            E(raw(f"s_bitset1_b64 {sRM}, {sMID}", 'salu', wr=[sRM], rd=[sRM, sMID]))
        else:
            nib(sIT[2], [0, 1, 15, 2, 3, 15, 4, 5, 6, 7], 28)
            E(salu('s_cmp_eq_u32', None, sROLE, 2)); E(csel(sIT[2], 23 if CFG.get('m3') else 22, sIT[2])); E(salu('s_cmp_eq_u32', None, sROLE, 5)); E(csel(sIT[2], 24 if CFG.get('m3') else 21, sIT[2]))
            if CFG.get('nof'):
                nib(sMD2, CFG['nof'], 23)
                E(raw(f"s_bitset1_b64 {sRM}, {sMD2}", 'salu', wr=[sRM], rd=[sRM, sMD2]))
        its = sIT
    elif CFG.get('asg') == 2:
        if n == 'M': E(add(sIT[0], sROLE, 16)); E(add(sIT[1], sROLE, 20)); its = sIT[:2]
        else: E(add(sIT[0], sROLE, 20)); its = sIT[:1]
    elif CFG.get('asg') == 3:
        E(add(sIT[0], sROLE, 20)); its = sIT[:1]
    elif CFG.get('l844'):
        if n == 'M': E(add(sIT[0], sROLE, 8)); E(add(sIT[1], sROLE, 12)); its = sIT[:2]
        else: E(add(sIT[0], sROLE, 12)); its = sIT[:1]
    elif n == 'M' and CFG.get('m3') == 2: E(smov(sIT[0], 20)); E(smov(sIT[1], 21)); its = sIT[:2]
    elif n == 'M' and CFG.get('m3'): E(smov(sIT[0], CFG.get('mb', 20))); E(smov(sIT[1], CFG.get('mb', 20) + 1)); E(smov(sIT[2], CFG.get('mb', 20) + 2)); its = sIT
    elif n == 'M': E(smov(sIT[0], 20)); its = sIT[:1]
    else:
        E(add(sIT[0], sROLE, 12)); its = sIT[:1]
    if (FOUR and n != 'A') or (CFG.get('nof') and n == 'F'):
        its = []
        E(waitvm(0)); E(red_poll()[1]); E(waitvm(0)); E(raw(f"s_branch L_{n}_fin"))
    if (CFG.get('bal') or CFG.get('m3')) and n == 'F':
        E(salu('s_cmp_ge_u32', None, sROLE, 13 if CFG.get('bal') != 2 else 16)); E(raw(f"s_cbranch_scc1 L_{n}_hi"))
        E(waitvm(0)); E(ab_load() if CFG.get('abn') else red_poll()[1]); E(waitvm(0)); E(raw(f"s_branch L_{n}_fin")); E(label(f"L_{n}_hi"))
    for it in its: E(raw(f"s_bitset1_b64 {sRM}, {it}", 'salu', wr=[sRM], rd=[sRM, it]))
    E(salu('s_and_b32', sRM[1], sRM[1], 15))
    def refresh(wait, ab=False):
        L = f"L_{n}_rf{k_[0]}"; k_[0] += 1
        E(salu('s_cmp_eq_u32', None, sWAVE, 0)); E(raw(f"s_cbranch_scc0 {L}"))
        E(waitvm(wait)); E(red_eval())
        if ab: E(ab_eval()); E(salu('s_or_b32', sT2, sAB[0], sAB[1])); E(csel(sTO, 1, 0))
        E(red_pub(sPAR))
        E(label(L)); E(barrier()); E(red_get(sPAR)); E(salu('s_xor_b32', sPAR, sPAR, 12))
        if ab: E(smov(sMD2, sTO)); E(smov(sTO, 0))
    ALLD = lambda L, sx: ld_part(L, range(NPART), FL) + ld_x(L, sx)
    LATE = n in CFG.get('lateflag', 'A') + CFG.get('pre', '')
    sPT = [s(47), s(67 - 2), s(70)]
    def offs2(i): return offs(its[i], sXP[i]) + ([smov(sPT[i], sPART)] if i else [])
    def final_flag(wait):
        E(waitvm(wait)); E(barrier())
        E(valu('v_mov_b32', vPRG, 9))
        if CFG.get('rep') and n in 'FM': E(bstore('buffer_store_dword', vPRG, vCR, sWS, 0, flags='sc1'))
        E(bstore('buffer_store_dword', vPRG, vCT, sWS, 0, flags='sc1'))
        return 2 if (CFG.get('rep') and n in 'FM') else 1
    def poll_hook(_): E(red_poll()[1]); return 2
    def poll_sh(_): E(red_poll(True)[1]); return 2
    poll_hook.sh = poll_sh
    seg = lambda i, L, ks=range(NPART), wx=True, fin=True: (L, sPT[i], sXP[i], ks, wx, fin)
    ni = len(its)
    for i in reversed(range(ni)): E(offs2(i))
    two = min(ni, 2)
    if ni: body_items(E, n, its, two, ni, ensure, refresh, done, ST, seg, final_flag, poll_hook, LATE, L0, L1, FOUR, sMID, offs, sPT)
    E(label(f"L_{n}_fin"))
    E(salu('s_cmp_eq_u32', None, sWAVE, 0)); E(raw(f"s_cbranch_scc0 L_{n}_b4"))
    if CFG.get('abn'): E(ab_eval())
    else:
        E(waitvm(2))
        E(raw(f"v_cmp_ne_u32 vcc, 0, {vP}", 'valu', wr=['vcc'], rd=[vP])); E(nop(1))
        E(raw(f"s_lshr_b64 {sAB}, vcc, {NPART + 1}", 'salu', wr=[sAB], rd=['vcc'])); E(salu('s_and_b32', sAB[1], sAB[1], 15))
    E(salu('s_or_b32', sT2, sAB[0], sAB[1])); E(csel(sTO, 1, 0))
    E(salu('s_cmp_ge_u32', None, sOK, 16)); E(csel(sTO, sTO, 1)); E(red_pub(sPAR))
    E(label(f"L_{n}_b4")); E(barrier()); E(red_get(sPAR)); E(salu('s_xor_b32', sPAR, sPAR, 12))
    E(salu('s_cmp_eq_u32', None, sTO, 0)); E(raw(f"s_cbranch_scc1 L_{n}_exit"))
    E(label(f"L_{n}_fb"))
    E(waitvm(0))
    E(salu('s_cmp_eq_u32', None, sWAVE, 0)); E(raw(f"s_cbranch_scc0 L_{n}_fb2"))
    if CFG.get('abn'):
        E(raw(f"s_mov_b64 {sCD}, {sRM}", 'salu', wr=[sCD], rd=[sRM])); E(valu('v_mov_b32', vA, 1))
        E(valu('v_lshlrev_b32', vO, 4, vLANE16)); E(valu('v_mov_b32', vIT, OOB))
        E(raw(f"v_cmp_gt_u32 vcc, 0x100, {vLANE16}", 'valu', wr=['vcc'], rd=[vLANE16])); E(valu('v_cndmask_b32', vO, vIT, vO, 'vcc'))
        E(label(f"L_{n}_mk"))
        E(raw(f"s_cmp_eq_u64 {sCD}, 0", 'salu', rd=[sCD])); E(raw(f"s_cbranch_scc1 L_{n}_mk1"))
        E(raw(f"s_ff1_i32_b64 {sT2}, {sCD}", 'salu', wr=[sT2], rd=[sCD])); E(raw(f"s_bitset0_b64 {sCD}, {sT2}", 'salu', wr=[sCD], rd=[sCD, sT2]))
        E(raw(f"s_lshl2_add_u32 {sT2}, {sT2}, {sPB}", 'salu', wr=[sT2], rd=[sT2, sPB])); E(add(sT2, sT2, ABN))
        E(bstore('buffer_store_dword', vA, vO, sWS, sT2, flags='sc1')); E(raw(f"s_branch L_{n}_mk"))
        E(label(f"L_{n}_mk1")); E(waitvm(0))
        E(red_poll()[0]); E(waitvm(0))
        E(valu('v_mov_b32', vO, OOB)); E(smov(sT2, 36 * 4)); E(raw(f"v_writelane_b32 {vO}, {sT2}, 1", 'valu', wr=[vO], rd=[sT2, vO]))
        E(bstore('buffer_store_dword', vA, vO, sWS, sAV_, flags='sc1'))
        E(valu('v_mov_b32', vIT, 0)); E(valu('v_mov_b32', vO, OOB)); E(raw(f"v_writelane_b32 {vO}, 0, 0", 'valu', wr=[vO], rd=[vO]))
        E(I(f"buffer_atomic_add {vIT}, {vO}, {sWS}, {sAV_} offen sc1", 'vstore', rd=vIT.regs() + vO.regs() + sWS.regs() + sAV_.regs(), units=3))
        E(waitvm(0)); E(ab_load()); E(red_poll(True)[1]); E(waitvm(0)); E(valu('v_readfirstlane_b32', sOK, vD)); E(red_eval()); E(ab_eval())
    else:
        E(s64('s_lshl_b64', sCD, sRM, NPART + 1)); E(valu('v_mov_b32', vO, OOB)); E(valu('v_mov_b32', vA, 1))
        E(valu('v_cndmask_b32', vO, vO, vL4, sCD)); E(bstore('buffer_store_dword', vA, vO, sWS, sPB, flags='sc1')); E(waitvm(0))
        E(red_poll()[0]); E(waitvm(0)); E(red_poll(True)[1]); E(waitvm(0)); E(valu('v_readfirstlane_b32', sOK, vD)); E(red_eval())
    E(salu('s_min_u32', sT2, sRS, sRF)); E(salu('s_cmp_ge_u32', None, sOK, 16)); E(csel(sT2, sT2, 0))
    E(salu('s_bfm_b64', sCD, sT2, 0, scc_w=False)); E(s64('s_or_b64', sAB, sAB, sRM)); E(s64('s_and_b64', sAB, sAB, sCD))
    E(label(f"L_{n}_fb1"))
    E(raw(f"s_ff1_i32_b64 {sRS}, {sAB}", 'salu', wr=[sRS], rd=[sAB])); E(salu('s_and_b32', sRS, sRS, 255))
    E(raw(f"s_bitset0_b64 {sAB}, {sRS}", 'salu', wr=[sAB], rd=[sAB, sRS])); E(red_pub(sPAR))
    E(label(f"L_{n}_fb2")); E(barrier()); E(red_get(sPAR)); E(salu('s_xor_b32', sPAR, sPAR, 12))
    E(salu('s_cmp_ge_u32', None, sRS, 36)); E(raw(f"s_cbranch_scc1 L_{n}_exit"))
    E(offs(sRS, sXP[0])); E(ld_part(L0, range(NPART), FL) + ld_x(L0, sXP[0])); E(waitvm(0)); proc_all(E, L0, sXP[0], 0, [])
    E(salu('s_cmp_eq_u32', None, sWAVE, 0)); E(raw(f"s_cbranch_scc1 L_{n}_fb1")); E(raw(f"s_branch L_{n}_fb2"))
    E(label(f"L_{n}_exit"))
    ST(60)
    if CFG['stamps']: E(raw(f"s_setpc_b64 {sRET}"))
    else: E(raw("s_endpgm"))
    E(label(f"L_{n}_sync"))
    E(salu('s_cmp_eq_u32', None, sWAVE, 0)); E(raw(f"s_cbranch_scc0 L_{n}_sy2"))
    E(smov(sSP, 0)); E(red_poll()[1][0])
    E(label(f"L_{n}_sy0"))
    E(salu('s_cmp_ge_u32', None, sOK, 16)); E(raw(f"s_cbranch_scc1 L_{n}_sy1"))
    E(red_poll()[0]); E(waitvm(0)); E(valu('v_readfirstlane_b32', sOK, vD))
    E(salu('s_cmp_ge_u32', None, sOK, 16)); E(raw(f"s_cbranch_scc0 L_{n}_syw"))
    E(label(f"L_{n}_sy1"))
    E(red_poll()[1][1]); E(red_poll()[1][0]); E(waitvm(1)); E(red_eval())
    E(salu('s_bitcmp1_b32', None, sC, 0)); E(csel(sT2, sRS, 36)); E(salu('s_bitcmp1_b32', None, sC, 1)); E(csel(sT3, sRF, 36))
    E(salu('s_min_u32', sT2, sT2, sT3)); E(salu('s_cmp_lt_u32', None, sI, sT2)); E(raw(f"s_cbranch_scc1 L_{n}_syp"))
    E(label(f"L_{n}_syw"))
    E(add(sSP, sSP, 1)); E(salu('s_cmp_gt_u32', None, sSP, CFG.get('spin', 4000))); E(csel(sTO, 1, 0)); E(raw(f"s_cbranch_scc1 L_{n}_syp"))
    E(raw(f"s_sleep {CFG.get('sleep', 1)}")); E(raw(f"s_branch L_{n}_sy0"))
    E(label(f"L_{n}_syp"))
    E(red_pub(sPAR))
    E(label(f"L_{n}_sy2")); E(barrier()); E(red_get(sPAR)); E(salu('s_xor_b32', sPAR, sPAR, 12))
    E(raw(f"s_setpc_b64 {sRET2}"))
    return p

def reduce_items(p, ni, sPART_, sXO_, srdP, srdX, srdO, vL16, vXO_, base, flags, mid=None):
    E = p.emit
    SA = base; FA = base + 8; T = base + 16
    Ls = [base + 24 + 72 * i for i in range(ni)]
    for k in range(NPART):
        if k: E(add(sPART_, sPART_, 16 * PART - (PWAVE if ni == 2 else 0)))
        for i in range(ni):
            if i: E(add(sPART_, sPART_, PWAVE))
            E(bload('buffer_load_dwordx4', v(Ls[i] + 4 * k, 4), vL16, srdP, sPART_, flags=flags))
    for i in range(ni):
        XR = Ls[i] + 68
        if i: E(add(sT2, sXO_, 32 * 1152))
        so = sT2 if i else sXO_
        E(bload('buffer_load_dwordx2', v(XR, 2), vXO_, srdX, so)); E(bload('buffer_load_dwordx2', v(XR + 2, 2), vXO_, srdX, so, 32))
    ex = 0
    if mid: mid(); ex = 1
    E(smov(sT3, 0xffff0000))
    for i in range(ni):
        L = Ls[i]; XR = L + 68
        for k in range(NPART):
            if i == 0: E(waitvm((NPART - 1 - k) * ni + (ni - 1) + 2 * ni + ex))
            acc = SA if k < 11 else FA
            for q in range(4):
                x = v(L + 4 * k + q)
                if k in (0, 11):
                    E(valu('v_lshlrev_b32', v(acc + 2 * q), 16, x)); E(valu('v_and_b32', v(acc + 2 * q + 1), sT3, x))
                else:
                    tp = v(T + 2 * q, 2)
                    E(valu('v_lshlrev_b32', tp[0], 16, x)); E(valu('v_and_b32', tp[1], sT3, x))
            if k not in (0, 11):
                for q in range(4): E(valu('v_pk_add_f32', v(acc + 2 * q, 2), v(acc + 2 * q, 2), v(T + 2 * q, 2)))
        for e in range(8): E(valu('v_exp_f32', v(T + e), v(FA + e)))
        for e in range(8): E(valu('v_add_f32', v(T + e), 1.0, v(T + e)))
        for e in range(8): E(valu('v_rcp_f32', v(T + e), v(T + e)))
        for e in range(8): E(valu('v_mul_f32', v(FA + e), f2u(-math.log(2.0)), v(FA + e)))
        for e in range(8): E(valu('v_mul_f32', v(FA + e), v(FA + e), v(T + e)))
        if i == 0: E(waitvm(ex if ni == 1 else 0))
        for q in range(4):
            E(valu('v_lshlrev_b32', v(T + 2 * q), 16, v(XR + q))); E(valu('v_and_b32', v(T + 2 * q + 1), sT3, v(XR + q)))
        for e in range(8): E(valu('v_fma_f32', v(T + e), v(SA + e), v(FA + e), v(T + e)))
        for q in range(4): E(valu('v_cvt_pk_bf16_f32', v(XR + q), v(T + 2 * q), v(T + 2 * q + 1)))
        if i: E(add(sXO_, sXO_, 32 * 1152))
        E(bstore('buffer_store_dwordx2', v(XR, 2), vXO_, srdO, sXO_)); E(bstore('buffer_store_dwordx2', v(XR + 2, 2), vXO_, srdO, sXO_, 32))

def build_role(kind, vm_before):
    R = Role(kind)
    CFG['shape'] = CFG.get('shapes', {}).get(kind, CFG['shape0'])
    R.ring = {'F': (216, 9), 'A': (192, 16), 'M': (200, 8)}[kind]
    if kind == 'M': R.depth = 7
    nl = CFG.get('pfl', 16)
    MS = CFG['shape'] == 'M'
    if MS:
        R.add_p1_unit, R.add_p1_half, R.epi_silu, R.epi_q = R.add_p1_unitM, R.add_p1_halfM, R.epi_siluM, R.epi_qM
    P2M = 'q16' if MS else 'pi'
    if kind == 'F' and CFG.get('l844'):
        R.ring = (208, 12); R.depth = 7
        for u in range(13): R.add_p1_unit(u, sW1, sHA, sHC, 9216, u == 0, a(16 * u, 16), R.epi_silu, last=(u == 12),
                                          inreg=[pf_run(sW2, sPF2, 832 * 1152, 10) if u >= 1 else None, pf_row('F', sW1)])
        needs = {t: [('reg', 8 * t)] for t in range(26)}
        dm = [dma_w(sW2, sFA, 0, 1152, sFC, 0), dma_w(sW2, sFA, 288 * 1152, 1152, sFC, 288 * 1152), dma_w(sW2, sFA, 576 * 1152, 1152)]
        R.add_p2([(a(0, 208), [288, 288, 256], dm, needs, sSt)], [add(x, x, 128) for x in (sFA, sFC)], pre0=lambda: set_offw(1152, P2M))
        for st in R.stages[-27:]: st.ring = (208, 12, 'restart')
    elif kind == 'M' and CFG.get('l844'):
        R.ring = (208, 8); R.depth = 7
        Q = [a(80, 32), a(112, 32)]; OA = a(144, 64)
        def mpf(u):
            if u == 0: return pf_row('M', sWQ)
            if u == 1: return lambda: pf_row_setup('M', 9216, 18, sPF1, 0) + [pf_row('M', sW1)()[1]]
            if u <= 5: return pf_row('M', sW1)
            return None
        for u in range(4): R.add_p1_unit(u, sWQ, sQA, sQC, 8192, u == 0, a(80 + 16 * u, 16), R.epi_q, key='Q', inreg=[None, mpf(u)])
        for u in range(5): R.add_p1_unit(4 + u, sW1, sHA, sHC, 9216, u == 0, a(16 * u, 16), R.epi_silu, pre=(lambda: set_offw(9216, 'S')) if u == 0 else None,
                                         last=(u == 4), key='H', inreg=[None, mpf(4 + u)])
        Ha = dict(i=0, Q=Q[0], S=Sreg, P=Preg, O=OA, LM=v(230, 8), OF=lambda kk: OA.sub(16 * kk, 8),
                  need_qk=[('acc', 80), ('acc', 96)], need_pv=[('acc', 48 + 16 * i) for i in range(4)])
        Hb = dict(i=1, Q=Q[1], S=[v(80, 16), v(96, 16)], P=[v(48, 8), v(56, 8)], O=v(160, 64), LM=v(64, 8), OF=lambda kk: OA.sub(16 * kk + 8, 8))
        R.add_pa_g([[Ha, Hb]])
        R.stages[-9].mf[-1].need.append(('acc', 48))
        R.heads = [(Ha, sPFa), (Hb, sPFa)]
        R.add_p2m(a(0, 80), [H['OF'](kk) for H in (Ha, Hb) for kk in range(4)],
                  [dma_w(sW2, sFA, 0, 1152, sFC, 0), dma_w(sWO, sOA, 0, 1152, sFC, 32 * 1152, srdC=sW2)],
                  [add(x, x, 128) for x in (sOA, sFA, sFC)], pre0=lambda: set_offw(1152, P2M))
        for st in R.stages[-18:]: st.ring = (208, 12, 'restart')
        k = pf_sched(R, 15, sK, sPFa, 131072, 16); k = pf_sched(R, k, sV, sPFa, 131072, 16)
        pf_sched(R, 17, sWO, sPFc, 256 * 1152, 36); pf_sched(R, 18, sW2, sPF2, 320 * 1152, 45)
    elif kind == 'F':
        for u in range(13): R.add_p1_unit(u, sW1, sHA, sHC, 9216, u == 0, a(16 * u, 16), R.epi_silu, last=(u == 12), inreg=[pf_run(sW2, sPF2, 832 * 1152, 10) if u >= 1 else None, pf_row('F', sW1) if CFG['pf'] >= 3 else None] if CFG['pf'] else None)
        R.add_p1_half(13, a(208, 8))
        needs = {t: [('reg', 8 * t)] for t in range(27)}
        dm = [dma_w(sW2, sFA, 0, 1152, sFC, 0), dma_w(sW2, sFA, 288 * 1152, 1152, sFC, 288 * 1152), dma_w(sW2, sFA, 576 * 1152, 1152, sFS, 0)]
        R.add_p2([(a(0, 216), [288, 288, 288], dm, needs, sSt)], [add(x, x, 128) for x in (sFA, sFC, sFS)], pre0=lambda: set_offw(1152, P2M))
        if CFG['pf']:
            pf_sched(R, 26, sW2, sPF2h, 32 * 1152, 8)
    elif kind == 'A' and CFG.get('pair'):
        OA = a(96, 64)
        Ha = dict(i=0, Q=a(0, 32), S=Sreg, P=Preg, O=OA, LM=v(230, 8), OF=lambda kk: OA.sub(16 * kk, 8),
                  need_qk=[('acc', 48), ('acc', 64)], need_pv=[('acc', 48 + 16 * i) for i in range(4)])
        Hb = dict(i=1, Q=a(32, 32), S=[v(48, 16), v(64, 16)], P=[v(80, 8), v(88, 8)], O=v(160, 64), LM=v(96, 8), OF=lambda kk: OA.sub(16 * kk + 8, 8))
        Hc = dict(i=2, Q=a(64, 32), S=Sreg, P=Preg, O=v(48, 64), LM=v(16, 8), OF=lambda kk: a(160 + 8 * kk, 8), need_pv=[('lm', 0)])
        Ha['need_qk'] += [('acc', 80)]
        pj = {1: sJQ}
        for u in range(6):
            R.add_p1_unit(u, sWQ, sQA, sQC, 8192, u == 0, a(16 * u, 16), R.epi_q, last=(u == 5), step=sJQ if u == 4 else 128,
                          inreg=[pf_run(sWO, sPFc, 384 * 1152, 11) if u >= 1 else None, pf_row('A', sWQ, pj.get(u, 128)) if CFG['pf'] >= 3 and u < 3 else None] if CFG['pf'] else None)
        R.add_pa_g([[Ha, Hb], [Hc]])
        Bf = [H['OF'](kk) for H in (Ha, Hb, Hc) for kk in range(4)]
        needs = {0: [('fin', 0), ('fin', 1)], 8: [('fin', 2)]}
        dm = [dma_w192(sWO, 0), dma_w192(sWO, 0, sOA1, sOB1)]
        R.add_p2([(Bf, [192, 192], dm, needs, sSt)], [add(x, x, 128) for x in (sOA, sOB, sOA1, sOB1)], pre0=lambda: set_offw(1152, P2M))
        R.heads = [(Ha, sPFa), (Hb, sPFa), (Hc, sPFb)]
        if CFG['pf'] >= 2:
            pf_sched(R, 10, sK, sPFa, 131072, 16); pf_sched(R, 10, sV, sPFa, 131072, 16)
            pf_sched(R, 12, sK, sPFb, 131072, 16); pf_sched(R, 12, sV, sPFb, 131072, 16)
    elif kind == 'A':
        Q = [a(32 * e, 32) for e in range(3)]; O = [a(96 + 32 * e, 32) for e in range(3)]
        for u in range(6): R.add_p1_unit(u, sWQ, sQA, sQC, 8192, u == 0, a(16 * u, 16), R.epi_q, last=(u == 5), inreg=[pf_run(sWO, sPFc, 384 * 1152, 11) if u >= 1 else None, pf_row('A', sWQ) if CFG['pf'] >= 3 and u < 5 else None] if CFG['pf'] else None)
        R.add_pa(Q, O)
        needs = {4 * e: [('fin', e)] for e in range(3)}; needs[0].append(('S', 2, 15))
        dm = [dma_w192(sWO, b * 192 * 1152) for b in range(2)]
        R.add_p2([(a(96, 96), [192, 192], dm, needs, sSt)], [add(sOA, sOA, 128), add(sOB, sOB, 128)], pre0=lambda: set_offw(1152, P2M))
        if CFG['pf']:
            if CFG['pf'] >= 2:
                pf_sched(R, 10, sK, sPFa, 131072, 16); pf_sched(R, 10, sV, sPFa, 131072, 16)
                pf_sched(R, 12, sK, sPFb, 131072, 16); pf_sched(R, 12, sV, sPFb, 131072, 16)
    else:
        Q = [a(136 + 32 * e, 32) for e in range(2)]; O = [a(72 + 32 * e, 32) for e in range(2)]
        def mpf(u):
            if u == 0: return pf_row('M', sWQ)
            if u == 1: return lambda: pf_row_setup('M', 9216, 18, sPF1, 0) + [pf_row('M', sW1)()[1]]
            if u <= 4: return pf_row('M', sW1)
            if u == 5: return lambda: [smov(sPW, sPF1h), pf_row('M', sW1)()[1]]
            return None
        for u in range(4): R.add_p1_unit(u, sWQ, sQA, sQC, 8192, u == 0, a(136 + 16 * u, 16), R.epi_q, key='Q', inreg=[None, mpf(u)] if CFG['pf'] >= 3 else None)
        for u in range(4): R.add_p1_unit(4 + u, sW1, sHA, sHC, 9216, u == 0, a(16 * u, 16), R.epi_silu, pre=(lambda: set_offw(9216, 'M' if MS else 'S')) if u == 0 else None, last=(u == 3), key='H', inreg=[None, mpf(4 + u)] if CFG['pf'] >= 3 else None)
        R.add_p1_half(8, a(64, 8))
        BO = a(72, 64)
        if CFG.get('pair'):
            Ha = dict(i=0, Q=Q[0], S=Sreg, P=Preg, O=BO, LM=v(230, 8), OF=lambda kk: BO_.sub(16 * kk, 8),
                      need_qk=[('acc', 48 + 16 * i) for i in range(3)], need_pv=[('acc', 48 + 16 * i) for i in range(4)])
            Hb = dict(i=1, Q=Q[1], S=[v(64, 16), v(48, 16)], P=[v(80, 8), v(88, 8)], O=v(160, 64), LM=v(96, 8), OF=lambda kk: BO_.sub(16 * kk + 8, 8))
            BO_ = BO
            if CFG.get('mfree', 0):
                Hb['S'] = [v(64, 16), v(238, 16)]; Ha['need_qk'] = [('acc', 64), ('acc', 80)]; Ha['need_pv'] = [('acc', 96)]
                R.ntmp = 12; R.ones = v(28, 4)
                for st_, idx in ((R.stages[-2], -1), (R.stages[-1], -1)):
                    m_ = st_.mf[idx]; f_ = m_.after
                    m_.after = (lambda G, f_=f_: (setattr(R, 'low', True), f_(G), setattr(R, 'low', False)))
            R.add_pa_g([[Ha, Hb]])
            BO = [H['OF'](kk) for H in (Ha, Hb) for kk in range(4)]
            R.heads = [(Ha, sPFa), (Hb, sPFa)]
        else: R.add_pa(Q, O)
        nf = {t: [('reg', 8 * t)] for t in range(9)}; nf[0].append(('S', 1, 15))
        R.add_p2([(a(0, 72), [288], [dma_w(sW2, sFA, 0, 1152, sFS, 0)], nf, sSt2),
                  (BO, [256], [dma_w(sWO, sOA, 0, 1152)], {0: [('fin', 0)], 4: [('fin', 1)]}, sSt)],
                 [add(x, x, 128) for x in (sOA, sFA, sFS)], pre0=lambda: set_offw(1152, P2M))
        for st in R.stages[-18:]: st.ring = (200, 14, 'restart')
        if CFG['pf']:
            if CFG['pf'] >= 2:
                k = pf_sched(R, 14, sK, sPFa, 131072, 16); k = pf_sched(R, k, sV, sPFa, 131072, 16)
            pf_sched(R, 16, sWO, sPFc, 256 * 1152, 36); pf_sched(R, 23 if not CFG.get('pair') else 17, sW2, sPF2, 256 * 1152, 36); pf_sched(R, 24 if not CFG.get('pair') else 17, sW2, sPF2h, 32 * 1152, 8)
    if CFG.get('msum') and not MS and kind in 'AM':
        st0 = [st for st in R.stages if st.name == 'PAh0s0'][0]
        m0_ = st0.mf[8]
        if not hasattr(R, 'ones'): m0_.need += [('acc', 48 + 16 * i) for i in range(4)]
        m0_.pre = lambda: R.p.emit([valu('v_mov_b32', getattr(R, 'ones', vONES)[i], 0x3f803f80) for i in range(4)])
    if CFG.get('recode') and CFG['fused']:
        names = [st.name for st in R.stages]
        nS = len(names)
        R.pf.setdefault(nS - 2, []).append(pf_code(f"L_{kind}_red", f"L_role{kind}_end", 4))
        p2 = names.index('P2c0b0')
        R.stages[p2].label = f"L_{kind}_p2"
        R.pf.setdefault(p2 - 2, []).append(pf_code(f"L_{kind}_p2", f"L_{kind}_p2+20480", 5))
        if kind in 'AM':
            pa = names.index('PAmini'); R.stages[pa].label = f"L_{kind}_pa"
            R.pf.setdefault(pa - 1, []).append(pf_code(f"L_{kind}_pa", f"L_{kind}_p2", 8))
    if CFG.get('hot') and CFG['fused'] and kind in CFG['hot']:
        names = [st.name for st in R.stages]
        last = names.index('P2c8b0'); R.stages[last].label = f"L_{kind}_c8"
        def setup():
            o = [raw(f"s_getpc_b64 {sPC}", 'salu', wr=[sPC]), label(f"L_{kind}_hp"),
                 salu('s_add_u32', sPC[0], sPC[0], f"L_{kind}_c8-L_{kind}_hp"), salu('s_addc_u32', sPC[1], sPC[1], 0, scc_r=True),
                 valu('v_bfe_u32', vPF2, vTID, 16, 5), valu('v_and_b32', vPF, 63, vTID), valu('v_min_u32', vPF, 1, vPF),
                 valu('v_lshl_add_u32', vPF, vPF2, 1, vPF), valu('v_lshlrev_b32', vPF, 7, vPF)]
            if kind == 'F': o += pf_row_setup(kind, 1152, 26, sPF2, 2 * 128)
            return o
        def rep_code():
            return [I(f"global_load_dword {vDUM}, {vPF}, {sPC}", 'vload', wr=vDUM.regs(), rd=vPF.regs() + sPC.regs(), units=3, tag='pf')]
        R.pf.setdefault(names.index('P2c1b0'), []).append(setup)
        for c in range(2, 8):
            k0 = names.index(f'P2c{c}b0')
            R.pf.setdefault(k0, []).append(rep_code)
            if kind == 'F': R.pf.setdefault(k0 + 1, []).append(pf_row(kind, sW2))
    R.slow = []
    if kind in 'AM' and CFG.get('slow', True) and CFG.get('pair'):
        P2s = [st for st in R.stages if st.name.startswith('P2c0')]
        hl = [(H['i'], H['Q'], (H['OF'], kv)) for (H, kv) in R.heads]
        if kind == 'A':
            P2s[0].mf[0].pre = slow_check(R, hl[:2], (112, 160))
            [m for m in P2s[1].mf if ('fin', 2) in m.need][0].pre = slow_check(R, hl[2:], (160, 48))
        else:
            m_ = P2s[1].mf[4 if CFG.get('l844') else 0]
            m_.need += [('fin', 0), ('fin', 1)]
            m_.pre = slow_check(R, hl, (160, 48))
    elif kind in 'AM' and CFG.get('slow', True):
        P2s = [st for st in R.stages if st.name.startswith('P2c0')]
        if kind == 'A':
            P2s[0].mf[0].need += [('fin', 1)]
            P2s[0].mf[0].pre = slow_check(R, [(0, Q[0], O[0]), (1, Q[1], O[1])], 112)
            m_ = [m for m in P2s[1].mf if ('fin', 2) in m.need][0]
            m_.pre = slow_check(R, [(2, Q[2], O[2])], 160)
        else:
            P2s[1].mf[0].need += [('fin', 1)]
            P2s[1].mf[0].pre = slow_check(R, [(0, Q[0], O[0]), (1, Q[1], O[1])], 160)
    if CFG['fused']:
        add_signals(R)
        def early0():
            it = red_setup(kind) + red_poll()[0]
            it[-1].tag = 'cnt'
            return it
        def early():
            assert R.cnt_covered()
            PRIV[0] = (kind == 'A' or (kind == 'M' and bool(CFG.get('mpriv'))))
            it = red_poll()[1]
            it[-1].tag = 'poll'
            return it
        def covered():
            idx = max(i for i, x in enumerate(R.p.ins) if x.tag == 'cnt'); n = 0
            for x in R.p.ins[idx + 1:]:
                if x.kind in VMEMK: n += 1
                if x.txt.startswith('s_waitcnt vmcnt(') and int(x.txt[16:-1]) <= n: return True
            return False
        R.cnt_covered = covered
        if kind == 'A' and CFG.get('l2pf'):
            nm = [st.name for st in R.stages]
            R.pf.setdefault(nm.index('P2c1b0'), []).append(l2pf_setup)
            for (cw, dlt) in CFG['l2pf']:
                kp = nm.index(f'P2c{cw}b0')
                for j in range(4): R.pf.setdefault(kp, []).append(lambda j=j: l2pf_poll()[j])
                R.stages[kp + 2].cover_tag = 'gp'
                def gate(j, dlt=dlt):
                    def f():
                        it = l2pf_issue(R, dlt)[j]
                        if j == 0:
                            it = it + [valu('v_readfirstlane_b32', sOK, vD), salu('s_cmp_ge_u32', None, sOK, 16), csel(sC, sC, 15)]
                        return it
                    return f
                for j in range(4): R.pf.setdefault(kp + 2, []).append(gate(j))
        R.pf.setdefault([st.name for st in R.stages].index('P2c1b0' if kind == 'F' else 'P2c0b1'), []).append(early0)
        if kind in CFG.get('pre', ''):
            R.pf.setdefault(len(R.stages) - 3, []).append(early)
            R.stages[-1].pre_bar = lambda: red_early(R.p, kind)
        elif not (kind == 'F' and CFG.get('bal') == 2 and CFG.get('fq', 1)): R.pf.setdefault(len(R.stages) - CFG.get('pollw', 1), []).append(early)
    role_prologue(R, vm_before)
    R.run()
    if CFG['fused']:
        p = R.p
        if kind == 'F' and CFG.get('bal') == 2 and CFG.get('fq', 1):
            p.emit([smov(sRS, 0), smov(sRF, 0), smov(sTO, 0), smov(sPAR, LDSC + 4), valu('v_readfirstlane_b32', sOK, vD)])
        elif kind not in CFG.get('pre', ''): red_early(p, kind)
        if kind in CFG.get('pre', ''): pass
        elif kind in CFG.get('lateflag', 'A'): p.emit(barrier())
        else:
            p.emit(waitvm(0)); p.emit(barrier())
            p.emit(valu('v_mov_b32', vPRG, 9))
            if CFG.get('rep'): p.emit(bstore('buffer_store_dword', vPRG, vCR, sWS, 0, flags='sc1'))
            p.emit(bstore('buffer_store_dword', vPRG, vCT, sWS, 0, flags='sc1'))
        if CFG['stamps']: R.stamp(len(R.stages) - 1)
        p.emit(raw(f"s_call_b64 {sRET}, L_{kind}_red"))
    if CFG['stamps']:
        p = R.p
        R.stamp(len(R.stages))
        p.emit(raw("s_memrealtime s[98:99]", wr=[s(98, 2)])); p.emit(raw("s_waitcnt lgkmcnt(0)"))
        p.emit(raw(f"v_writelane_b32 {vSTAMP}, s98, 63", 'valu', wr=[vSTAMP], rd=[s(98)]))
        if CFG.get('dbgstat'):
            n = len(R.stages)
            lanes = {'F': [0, 27, n - 1, n], 'A': [0, 37, n - 1, n], 'M': [0, 34, n - 1, n]}[kind]
            slots = {'F': [1, 2, 3, 5], 'A': [10, 11, 13, 14], 'M': [15, 15, 15, 15]}[kind]
            p.emit([valu('v_mov_b32', v(4), 256), valu('v_mov_b32', v(5), 0)])
            for i, (ln, sl) in enumerate(zip(lanes, slots)):
                p.emit(raw(f"v_readlane_b32 s92, {vSTAMP}, {ln}", 'rdl', wr=[sT2], rd=[vSTAMP])); p.emit(nop(3))
                p.emit(raw(f"v_writelane_b32 v5, s92, {i}", 'valu', wr=[v(5)], rd=[sT2])); p.emit(raw(f"v_writelane_b32 v4, {4 * sl}, {i}", 'valu', wr=[v(4)]))
            p.emit(raw(f"v_writelane_b32 v5, s98, 4", 'valu', wr=[v(5)], rd=[s(98)])); p.emit(raw(f"v_writelane_b32 v4, 28, 4", 'valu', wr=[v(4)]))
            p.emit(salu('s_not_b32', sT2, s(43))); p.emit(raw(f"v_writelane_b32 v5, s92, 5", 'valu', wr=[v(5)], rd=[sT2])); p.emit(raw(f"v_writelane_b32 v4, 36, 5", 'valu', wr=[v(4)]))
            p.emit(salu('s_sub_u32', sT2, s(98), s(43))); p.emit(raw(f"v_writelane_b32 v5, s92, 6", 'valu', wr=[v(5)], rd=[sT2])); p.emit(raw(f"v_writelane_b32 v4, 24, 6", 'valu', wr=[v(4)]))
            p.emit([salu('s_cmp_eq_u32', None, sRB, 9), csel(sT2, 0, sRB), salu('s_or_b32', sT2, sT2, sWAVE), salu('s_cmp_eq_u32', None, sT2, 0), csel(sT2, 0, 256),
                    valu('v_add_u32', v(4), sT2, v(4))])
            p.emit(I(f"buffer_atomic_umax v5, v4, {sDBG}, 0 offen sc1", 'vstore', rd=vr(4, 2) + sDBG.regs(), units=3))
        p.emit([shl(sT2, s(2), 2), add(sT2, sT2, sWAVE), shl(sT2, sT2, 8), add(sT2, sT2, STAMP_OFF),
                valu('v_lshrrev_b32', v(42), 2, vLANE16), bstore('buffer_store_dword', vSTAMP, v(42), sWS, sT2)])
    R.p.emit(raw("s_endpgm"))
    return R

def fold(ins, name):
    idx = [i for i, x in enumerate(ins) if x.tag == 'mark']
    def body(a_, b_): return [x.txt for x in ins[a_:b_] if x.kind != 'label']
    out = []; pos = 0; k = 0; nl = 0
    while k + 1 < len(idx):
        b0 = body(idx[k], idx[k + 1]); n = 1
        while k + n + 1 < len(idx) and body(idx[k + n], idx[k + n + 1]) == b0: n += 1
        if n >= 2:
            out += ins[pos:idx[k]]
            L = f"L_{name}_loop{nl}"; nl += 1
            out.append(smov(sLC, n)); out.append(I(".p2align 3", 'label')); out.append(label(L))
            out += ins[idx[k]:idx[k + 1]]
            out += [salu('s_sub_u32', sLC, sLC, 1), salu('s_cmp_lg_u32', None, sLC, 0), raw(f"s_cbranch_scc1 {L}")]
            pos = idx[k + n]; k += n
        else: k += 1
    out += ins[pos:]
    return out

def fold_regions(ins, name):
    regs = []; i = 0
    beg = None
    for i, x in enumerate(ins):
        if isinstance(x.tag, tuple) and x.tag and x.tag[0] == 'region':
            if x.tag[1] == 'begin': beg = (i, x.tag[2])
            elif beg: regs.append((beg[0], i, beg[1])); beg = None
    groups = {}
    for (a_, b_, key) in regs:
        groups.setdefault(tuple(x.txt for x in ins[a_:b_] if x.kind != 'label'), []).append((a_, b_))
    out = []; subs = []; repl = {}
    n = 0
    for body, lst in groups.items():
        if len(lst) >= 2:
            L = f"L_{name}_sub{n}"; n += 1
            a_, b_ = lst[0]
            subs += [I(".p2align 6", 'label'), label(L)] + ins[a_:b_] + [raw(f"s_setpc_b64 {sRET}")]
            for (a_, b_) in lst: repl[a_] = (b_, L)
    i = 0
    while i < len(ins):
        if i in repl:
            b_, L = repl[i]; out.append(raw(f"s_call_b64 {sRET}, {L}")); i = b_
        else:
            out.append(ins[i]); i += 1
    print(f"  regions: {[len(l) for l in groups.values()]}", file=sys.stderr)
    return out + subs

def reduce_body(p, sPART, sXO, srdP, srdX, srdO, vL16, vXO, base, flags, mid=None):
    E = p.emit
    L = base; XR = base + 68; SA = base + 72; FA = base + 80; T = base + 88
    for k in range(NPART):
        if k: E(add(sPART, sPART, 16 * PART))
        E(bload('buffer_load_dwordx4', v(L + 4 * k, 4), vL16, srdP, sPART, flags=flags))
    E(bload('buffer_load_dwordx2', v(XR, 2), vXO, srdX, sXO)); E(bload('buffer_load_dwordx2', v(XR + 2, 2), vXO, srdX, sXO, 32))
    ex = 0
    if mid: E(mid()); ex = 1
    E(smov(sT3, 0xffff0000))
    for k in range(NPART):
        E(waitvm(NPART + 1 - k + ex))
        acc = SA if k < 11 else FA
        for q in range(4):
            x = v(L + 4 * k + q)
            if k in (0, 11):
                E(valu('v_lshlrev_b32', v(acc + 2 * q), 16, x)); E(valu('v_and_b32', v(acc + 2 * q + 1), sT3, x))
            else:
                tp = v(T + 2 * q, 2)
                E(valu('v_lshlrev_b32', tp[0], 16, x)); E(valu('v_and_b32', tp[1], sT3, x))
        if k not in (0, 11):
            for q in range(4): E(valu('v_pk_add_f32', v(acc + 2 * q, 2), v(acc + 2 * q, 2), v(T + 2 * q, 2)))
    for e in range(8): E(valu('v_exp_f32', v(T + e), v(FA + e)))
    for e in range(8): E(valu('v_add_f32', v(T + e), 1.0, v(T + e)))
    for e in range(8): E(valu('v_rcp_f32', v(T + e), v(T + e)))
    for e in range(8): E(valu('v_mul_f32', v(FA + e), f2u(-math.log(2.0)), v(FA + e)))
    for e in range(8): E(valu('v_mul_f32', v(FA + e), v(FA + e), v(T + e)))
    E(waitvm(ex))
    for q in range(4):
        E(valu('v_lshlrev_b32', v(T + 2 * q), 16, v(XR + q))); E(valu('v_and_b32', v(T + 2 * q + 1), sT3, v(XR + q)))
    for e in range(8): E(valu('v_fma_f32', v(T + e), v(SA + e), v(FA + e), v(T + e)))
    for q in range(4): E(valu('v_cvt_pk_bf16_f32', v(XR + q), v(T + 2 * q), v(T + 2 * q + 1)))
    E(bstore('buffer_store_dwordx2', v(XR, 2), vXO, srdO, sXO)); E(bstore('buffer_store_dwordx2', v(XR + 2, 2), vXO, srdO, sXO, 32))

def reduce_kernel():
    p = Prog(); E = p.emit
    E(salu('s_cmp_ge_u32', None, s(2), 576)); E(raw("s_cbranch_scc0 L_rgo")); E(raw("s_endpgm")); E(label("L_rgo"))
    E(raw("s_load_dwordx2 s[4:5], s[0:1], 0", wr=[s(4, 2)])); E(raw("s_load_dwordx2 s[6:7], s[0:1], 64", wr=[s(6, 2)])); E(raw("s_load_dwordx2 s[8:9], s[0:1], 80", wr=[s(8, 2)]))
    E(valu('v_lshrrev_b32', v(1), 6, v(0))); E(valu('v_readfirstlane_b32', s(10), v(1)))
    E(shl(s(11), s(2), 2)); E(add(s(11), s(11), s(10)))
    E(salu('s_mul_hi_u32', s(24), s(11), -(-(1 << 32) // 36), scc_w=False))
    E(mul(s(25), s(24), 36)); E(salu('s_sub_u32', s(25), s(11), s(25)))
    E(shl(s(26), s(11), 10))
    E(valu('v_and_b32', v(0), 63, v(0))); E(valu('v_lshlrev_b32', v(1), 4, v(0)))
    E(valu('v_and_b32', v(2), 15, v(0))); E(smov(s(27), 1152)); E(valu('v_mul_u32_u24', v(2), s(27), v(2)))
    E(valu('v_lshrrev_b32', v(3), 4, v(0))); E(valu('v_lshl_add_u32', v(2), v(3), 3, v(2)))
    E(mul(s(28), s(24), 32 * 1152)); E(salu('s_and_b32', s(29), s(25), 1)); E(mul(s(29), s(29), 16 * 1152)); E(add(s(28), s(28), s(29)))
    E(shr(s(25), s(25), 1)); E(shl(s(25), s(25), 6)); E(add(s(28), s(28), s(25)))
    E(raw("s_waitcnt lgkmcnt(0)"))
    srd(p, s(12, 4), 8, WSP_BYTES); srd(p, s(16, 4), 4, 2359296); srd(p, s(20, 4), 6, 2359296)
    reduce_body(p, s(26), s(28), s(12, 4), s(16, 4), s(20, 4), v(1), v(2), 4, CFG.get('rflags', ''))
    E(raw("s_endpgm"))
    return p

def text(ins): return "\n".join((i.txt if i.kind == 'label' else " " + i.txt) for i in ins) + "\n"

def compress(t):
    t = re.sub(r" v_mfma_f32_16x16x32_bf16 v\[(\d+):\d+\], a\[(\d+):\d+\], v\[(\d+):\d+\], v\[\1:\d+\]", r" MV \1,\2,\3", t)
    t = re.sub(r" v_mfma_f32_16x16x32_bf16 v\[(\d+):\d+\], a\[(\d+):\d+\], a\[(\d+):\d+\], v\[\1:\d+\]", r" MA \1,\2,\3", t)
    t = re.sub(r" v_mfma_f32_32x32x16_bf16 v\[(\d+):\d+\], a\[(\d+):\d+\], v\[(\d+):\d+\], v\[\1:\d+\]", r" NV \1,\2,\3", t)
    t = re.sub(r" v_mfma_f32_32x32x16_bf16 v\[(\d+):\d+\], a\[(\d+):\d+\], a\[(\d+):\d+\], v\[\1:\d+\]", r" NA \1,\2,\3", t)
    t = re.sub(r" v_mfma_f32_16x16x32_bf16 a\[(\d+):\d+\], a\[(\d+):\d+\], v\[(\d+):\d+\], a\[\1:\d+\]", r" MC \1,\2,\3", t)
    t = re.sub(r" ds_read_b64_tr_b16 a\[(\d+):\d+\], v(\d+) offset:(\d+)", r" RT \1,\2,\3", t)
    t = re.sub(r" ds_read_b128 a\[(\d+):\d+\], v(\d+) offset:(\d+)", r" RB \1,\2,\3", t)
    t = re.sub(r" v_cvt_pk_bf16_f32 v(\d+), v(\d+), v(\d+)", r" CV \1,\2,\3", t)
    t = re.sub(r" v_accvgpr_write_b32 a(\d+), v(\d+)", r" AW \1,\2", t)
    t = re.sub(r" v_exp_f32 v(\d+), v(\d+)", r" EX \1,\2", t)
    t = re.sub(r" v_add_f32 v(\d+), v(\d+), v(\d+)", r" AD \1,\2,\3", t)
    t = re.sub(r" v_mul_f32 v(\d+), v(\d+), v(\d+)", r" ML \1,\2,\3", t)
    t = re.sub(r" s_waitcnt lgkmcnt\((\d+)\)", r" WL \1", t)
    mac = r""".macro MC d,a,b
 v_mfma_f32_16x16x32_bf16 a[\d:\d+3], a[\a:\a+3], v[\b:\b+3], a[\d:\d+3]
.endm
.macro NV d,a,b
 v_mfma_f32_32x32x16_bf16 v[\d:\d+15], a[\a:\a+3], v[\b:\b+3], v[\d:\d+15]
.endm
.macro NA d,a,b
 v_mfma_f32_32x32x16_bf16 v[\d:\d+15], a[\a:\a+3], a[\b:\b+3], v[\d:\d+15]
.endm
.macro MV d,a,b
 v_mfma_f32_16x16x32_bf16 v[\d:\d+3], a[\a:\a+3], v[\b:\b+3], v[\d:\d+3]
.endm
.macro MA d,a,b
 v_mfma_f32_16x16x32_bf16 v[\d:\d+3], a[\a:\a+3], a[\b:\b+3], v[\d:\d+3]
.endm
.macro RT d,a,o
 ds_read_b64_tr_b16 a[\d:\d+1], v\a offset:\o
.endm
.macro RB d,a,o
 ds_read_b128 a[\d:\d+3], v\a offset:\o
.endm
.macro CV d,a,b
 v_cvt_pk_bf16_f32 v\d, v\a, v\b
.endm
.macro AW d,a
 v_accvgpr_write_b32 a\d, v\a
.endm
.macro EX d,a
 v_exp_f32 v\d, v\a
.endm
.macro AD d,a,b
 v_add_f32 v\d, v\a, v\b
.endm
.macro ML d,a,b
 v_mul_f32 v\d, v\a, v\b
.endm
.macro WL n
 s_waitcnt lgkmcnt(\n)
.endm
"""
    return mac, t

HDR = open('recurrent_scan__sliding_block_cached__dense_activation_silu__prompt.s.ref').read().split('; Override launch')[0]
DOC = """; Generated by my own scheduler scripts (hand-designed instruction streams, hazards padded by the script).
; registers as MFMA B operands (transposed formulation), weights / K / V stream through a 4-slot LDS ring (LDS-DMA).
;   role A (10): layernorm, Q projection, attention for 3 heads (one GQA pair shares K/V fragments), partial of o@wo
; The bf16 partials go to d_ws with write-through stores; progress words (reset per launch, guarded by a counter in
"""
def kd(name, vgpr, acc, sgpr=102):
    return f""".amdhsa_kernel {name}
  .amdhsa_next_free_vgpr {vgpr}
  .amdhsa_next_free_sgpr {sgpr}
  .amdhsa_accum_offset {acc}
  .amdhsa_group_segment_fixed_size 0
  .amdhsa_kernarg_size 88
  .amdhsa_user_sgpr_count 2
  .amdhsa_user_sgpr_kernarg_segment_ptr 1
  .amdhsa_system_sgpr_workgroup_id_x 1
.end_amdhsa_kernel
"""
def est_cycles(ins):
    tot = 0; cur = None; n = 0
    for i in ins:
        if i.kind == 'label': continue
        if i.kind == 'mfma':
            if cur is not None: tot += max(cap, cur)
            cur = 2; n += 1; cap = 8 if len(i.wr) == 16 else 4
        elif cur is not None:
            if i.txt.startswith('s_waitcnt lgkm') and cap == 4: continue
            cur += i.units if not i.txt.startswith('s_nop') else (int(i.txt.split()[1]) + 1) * 0.5
    return tot * 4

def main(out, **kw):
    CFG.update(kw)
    set_layout(CFG.get('l844'))
    if CFG.get('tabs'):
        BAL2[:], BALM[:], BAL3[:] = CFG['tabs']
        CFG['bal'] = 2
    if CFG.get('tab'):
        global ROLE_TAB
        ROLE_TAB = CFG['tab']
    CFG['shape0'] = CFG['shape']
    cp = common_prologue()
    if CFG.get('entry', 0):
        if CFG.get('entry', 1) == 1:
            k = next(i for i, x in enumerate(cp.ins) if x.txt == 's_waitcnt lgkmcnt(0)')
            tail = cp.ins[k:]; vmx = list(cp.vm); cp.ins = cp.ins[:k]; cp.vm = []
            common_prologue2(cp); cp.ins += tail; cp.vm += vmx
        else: common_prologue2(cp)
        common_prologue3(cp)
    body = text(cp.ins) + dispatch_text()
    for kind in 'FAM':
        R = build_role(kind, cp.vm)
        ins = fold_regions(fold(R.p.ins, kind), kind) if CFG['fold'] else R.p.ins
        nm = sum(1 for i in R.p.ins if i.kind == 'mfma')
        print(f"role {kind}: stages {len(R.stages)} mfma {nm} instrs {len([i for i in ins if i.kind!='label'])} (unrolled {len([i for i in R.p.ins if i.kind!='label'])}) pad {R.p.npad} forced {R.forced} est {est_cycles(R.p.ins)} ideal {sum(32 if len(i.wr) == 16 else 16 for i in R.p.ins if i.kind == 'mfma')}", file=sys.stderr)
        if CFG.get('abl_pair') and kind in 'AM':
            out_ = []; on = False
            for x in ins:
                if x.kind == 'label' and x.txt.startswith('; PAh'): on = x.txt.startswith('; PAh1')
                if x.kind == 'label' and x.txt.startswith('; P2'): on = False
                if on and (x.kind in ('dma', 'ds') or (x.kind == 'salu' and ('m0' in x.txt or 's70' in x.txt))): continue
                out_.append(x)
            ins = out_
        if CFG.get('abl_half'):
            out_ = []; on = False; cnt = 0
            for x in ins:
                if x.kind == 'label' and x.txt.startswith('; P'): on = x.txt.startswith(('; P1', '; P2'))
                if x.kind == 'label' and x.txt.startswith('; REGION begin'): on = True
                if on and x.kind == 'ds':
                    cnt += 1
                    if (cnt >> 1) & 1: continue
                out_.append(x)
            ins = out_
        ab = CFG.get('ablate', '')
        if ab:
            st0 = next(i for i, x in enumerate(ins) if x.txt.startswith('; P1u1b0'))
            def keep(x):
                if 'd' in ab and x.kind == 'dma': return False
                if 'r' in ab and x.kind == 'ds': return False
                if 'v' in ab and x.kind in ('trans',): return False
                if 'V' in ab and x.kind in ('trans', 'valu', 'perm') and not x.txt.startswith(('v_add_u32', 'v_xor', 'v_writelane', 'v_cmp', 'v_cnd', 'v_mov', 'v_lsh', 'v_mad', 'v_min', 'v_and', 'v_bfe', 'v_mul_u32')): return False
                if 'm' in ab and x.kind == 'mfma': return False
                return True
            ins = ins[:st0] + [x for x in ins[st0:] if keep(x)]
        for sp in R.slow: ins = ins + sp.ins
        if CFG['fused']: ins = ins + reducer(kind).ins
        body += f".p2align 6\nL_role{kind}:\n" + text(ins) + f"L_role{kind}_end:\n"
    rk = reduce_kernel()
    mac, body = compress(body)
    if CFG['fused']:
        t = HDR + "; @launch grid=(256,1,1) block=(256,1,1) lds=163840\n" + DOC
        t += '.amdgcn_target "amdgcn-amd-amdhsa--gfx950"\n' + mac + f".text\n.globl {KN}\n.p2align 8\n.type {KN},@function\n{KN}:\n" + body
        t += '.section .rodata,"a"\n.p2align 6\n' + kd(KN, 512, 256)
        open(out, 'w').write(t); print("size", len(t), file=sys.stderr); return
    t = HDR + f"; @launch kernel={KN} grid=(256,1,1) block=(256,1,1) lds=163840\n; @launch kernel={RN} grid=(576,1,1) block=(256,1,1) lds=0\n"
    t += '.amdgcn_target "amdgcn-amd-amdhsa--gfx950"\n' + mac + f".text\n.globl {KN}\n.p2align 8\n.type {KN},@function\n{KN}:\n" + body
    t += f".globl {RN}\n.p2align 8\n.type {RN},@function\n{RN}:\n" + text(rk.ins)
    t += '.section .rodata,"a"\n.p2align 6\n' + kd(KN, 512, 256) + ".p2align 6\n" + kd(RN, 104, 104, 102)
    open(out, 'w').write(t)
    print("size", len(t), file=sys.stderr)

if __name__ == "__main__":
    kw = eval("dict(" + (sys.argv[2] if len(sys.argv) > 2 else "") + ")")
    main(sys.argv[1], **kw)
```

```python
import sys, re
from s1 import *

ROLE_TAB = [0, 1, 2, 11, 3, 4, 5, 12, 6, 7, 13, 14, 8, 9, 10, 15]
vPFR = v(36)
vPRG = v(36)
PART = 4 * PWAVE
NPART = 17
NA, NM, NS = 10, 1, 11
def set_layout(new):
    global NPART, NA, NM, NS, ROLE_TAB
    if new:
        NPART, NA, NM, NS = 20, 8, 4, 12
        ROLE_TAB = [0, 1, 8, 12, 2, 3, 9, 13, 4, 5, 10, 14, 6, 7, 11, 15]
WSP_BYTES = NPART * 16 * PART
def PSTR(): return 16 * PART + (CFG.get('pskew', 0) if CFG['fused'] else 0)
sJQ, sQ0, sOA1, sOB1 = s(73), s(59), s(74), s(75)
ABN = 4096
STAMP_OFF = 0x3000000
CTRL = 0x2F00000
OOB = 0x10000000

def srd(p, dst, lo, nbytes):
    p.emit([smov(dst[0], s(lo)), salu('s_and_b32', dst[1], s(lo + 1), 0xffff), smov(dst[2], nbytes), smov(dst[3], 0x20000)])
def xdma(j):
    return [salu('s_add_u32', 'm0', s(6), j * 4096), salu('s_add_u32', sT, s(7), j * 128)] + [dma(v(16 + q), sX, sT, q * 1024, tag=('x', j)) for q in range(4)]
def mul(d, a_, b_): return salu('s_mul_i32', d, a_, b_, scc_w=False)
def add(d, a_, b_): return salu('s_add_u32', d, a_, b_)
def shl(d, a_, b_): return salu('s_lshl_b32', d, a_, b_)
def shr(d, a_, b_): return salu('s_lshr_b32', d, a_, b_)
def csel(d, a_, b_): return salu('s_cselect_b32', d, a_, b_, scc_w=False, scc_r=True)

def common_prologue():
    if CFG.get('entry', 0) == 0: return common_prologue_old()
    assert CFG['xe'] == 9 and CFG.get('map', 4) == 4
    p = Prog(); E = p.emit
    E(raw("s_load_dwordx8 s[40:47], s[0:1], 0", wr=[s(40, 8)]))
    E(salu('s_cmp_ge_u32', None, s(2), 256))
    E(raw("s_cbranch_scc0 L_go")); E(raw("s_endpgm")); E(label("L_go"))
    if CFG['stamps']:
        E(raw(f"s_memtime {sT0}", wr=[sT0])); E(raw("s_memrealtime s[96:97]", wr=[s(96, 2)]))
    E(valu('v_lshrrev_b32', v(1), 6, v(0)))
    E(salu('s_and_b32', s(3), s(2), 1)); E(shl(s(3), s(3), 3))
    E(valu('v_readfirstlane_b32', sWAVE, v(1)))
    E(shr(sRB, s(2), 5)); E(salu('s_or_b32', sRB, sRB, s(3)))
    E(valu('v_and_b32', v(0), 63, v(0)))
    E(valu('v_lshrrev_b32', vROWN, 3, v(0)))
    E(valu('v_and_b32', v(20), 7, v(0))); E(valu('v_lshrrev_b32', v(21), 4, v(0)))
    E(valu('v_xor_b32', v(22), v(20), v(21))); E(valu('v_xor_b32', v(23), 4, v(22)))
    E(salu('s_movk_i32', s(3), 1152, scc_w=False)); E(valu('v_mul_u32_u24', v(24), s(3), vROWN))
    E(valu('v_lshl_add_u32', v(16), v(22), 4, v(24))); E(valu('v_lshl_add_u32', v(17), v(23), 4, v(24)))
    E(valu('v_add_u32', v(17), 8 * 1152 - 1024, v(17)))
    E(valu('v_add_u32', v(18), 2 * (8 * 1152 - 1024), v(16))); E(valu('v_add_u32', v(19), 2 * (8 * 1152 - 1024), v(17)))
    E(mul(s(6), sWAVE, XW)); E(raw("s_lshl2_add_u32 s7, s64, s62", 'salu', wr=[s(7)], rd=[sRB, sWAVE])); E(mul(sT, s(7), 32 * 1152))
    E(smov('m0', s(6))); E(add(s(7), sT, 9 * 128))
    E(smov(sX[2], 2359296)); E(smov(sX[3], 0x20000))
    E(raw("s_waitcnt lgkmcnt(0)"))
    E(smov(sX[0], s(40))); E(salu('s_and_b32', sX[1], s(41), 0xffff))
    E(label("L_xl"))
    n0 = len(p.vm)
    for q in range(4): E(dma(v(16 + q), sX, sT, q * 1024))
    del p.vm[n0:]
    for j in range(9): p.vm += [('x', j)] * 4
    E(add(sT, sT, 128)); E(add('m0', 'm0', 4096)); E(salu('s_cmp_lt_u32', None, sT, s(7))); E(raw("s_cbranch_scc1 L_xl"))
    return p
def common_prologue2(p):
    E = p.emit
    tab = ROLE_TAB
    lo = sum(tab[i] << (4 * i) for i in range(8)); hi = sum(tab[8 + i] << (4 * i) for i in range(8))
    E(salu('s_bfe_u32', s(3), s(2), (2 << 16) | 3)); E(salu('s_bfe_u32', s(4), s(2), (1 << 16) | 1))
    E(shl(s(4), s(4), 2)); E(salu('s_or_b32', s(3), s(3), s(4))); E(shl(s(3), s(3), 2))
    E(salu('s_bitcmp1_b32', None, s(2), 2))
    E(smov(s(4), lo)); E(csel(s(4), hi, s(4)))
    E(shr(s(4), s(4), s(3))); E(salu('s_and_b32', sROLE, s(4), 15))
    E(raw(f"s_getpc_b64 {sPC}", wr=[sPC])); E(label("L_pc"))
    E(smov(s(4), "L_roleA-L_pc")); E(smov(s(5), "L_roleA_end-L_pc-4"))
    E(salu('s_cmp_ge_u32', None, sROLE, NA)); E(csel(s(4), "L_roleM-L_pc", s(4))); E(csel(s(5), "L_roleM_end-L_pc-4", s(5)))
    E(salu('s_cmp_ge_u32', None, sROLE, NA + NM)); E(csel(s(4), "L_roleF-L_pc", s(4))); E(csel(s(5), "L_roleF_end-L_pc-4", s(5)))
    n0 = CFG.get('code0', 16); NL = CFG.get('codelines', 24)
    if n0:
        E(mul(s(3), sWAVE, n0 * 128)); E(add(s(3), s(3), s(4)))
        E(valu('v_min_u32', v(2), n0 - 1, v(0))); E(valu('v_lshlrev_b32', v(2), 7, v(2))); E(valu('v_add_u32', v(2), s(3), v(2)))
        E(I(f"global_load_dword {vDUM}, v2, {sPC}", 'vload', wr=vDUM.regs(), rd=vr(2) + sPC.regs(), tag='pf'))
    E(salu('s_and_b32', s(3), sRB, 7)); E(shl(s(3), s(3), 2)); E(add(s(3), s(3), sWAVE))
    E(mul(s(3), s(3), NL * 128)); E(add(s(3), s(3), s(4)))
    E(valu('v_min_u32', v(2), NL - 1, v(0))); E(valu('v_lshlrev_b32', v(2), 7, v(2))); E(valu('v_add_u32', v(2), s(3), v(2)))
    E(valu('v_min_u32', v(3), s(5), v(2)))
    E(I(f"global_load_dword {vDUM}, v3, {sPC}", 'vload', wr=vDUM.regs(), rd=vr(3) + sPC.regs(), tag='pf'))
def common_prologue3(p):
    E = p.emit
    E(raw("s_load_dwordx2 s[48:49], s[0:1], 32", wr=[s(48, 2)]))
    E(raw("s_load_dwordx8 s[52:59], s[0:1], 48", wr=[s(52, 8)]))
    E(raw("s_load_dwordx2 s[50:51], s[0:1], 80", wr=[s(50, 2)]))
    srd(p, sK, 42, 8388608); srd(p, sV, 44, 8388608); srd(p, sWQ, 46, 4718592)
    E(mul(sW8704, sWAVE, 8 * PP)); E(mul(sWC, sWAVE, PP)); E(add(sWC, sWC, 32 * PP))
    E(shl(sW8192, sWAVE, 13)); E(shl(sWCH, sWAVE, 10)); E(add(sWCH, sWCH, 32768))
    E(mul(sW2176, sWAVE, 2 * PP)); E(mul(sW4352, sWAVE, 4 * PP)); E(add(sWA2, sW2176, 16 * PP))
    E(raw("s_waitcnt lgkmcnt(0)"))
    srd(p, sWO, 48, 4718592)
    srd(p, sW1, 52, 5308416); srd(p, sW2, 54, 5308416); srd(p, sWS, 50, 0x10000000 if (CFG['stamps'] or CFG['fused']) else WSP_BYTES)
    srd(p, sOUT, 56, 2359296); srd(p, sDBG, 58, 256)

def common_prologue_old():
    p = Prog(); E = p.emit
    E(salu('s_cmp_ge_u32', None, s(2), 256))
    E(raw("s_cbranch_scc0 L_go")); E(raw("s_endpgm")); E(label("L_go"))
    E(raw("s_load_dwordx8 s[40:47], s[0:1], 0", wr=[s(40, 8)]))
    E(raw("s_load_dwordx2 s[48:49], s[0:1], 32", wr=[s(48, 2)]))
    E(raw("s_load_dwordx8 s[52:59], s[0:1], 48", wr=[s(52, 8)]))
    E(raw("s_load_dwordx2 s[50:51], s[0:1], 80", wr=[s(50, 2)]))
    if CFG['stamps']:
        E(raw(f"s_memtime {sT0}", wr=[sT0])); E(raw("s_memrealtime s[96:97]", wr=[s(96, 2)]))
    tab = ROLE_TAB
    if CFG.get('map', 4) == 41:
        t4 = CFG.get('t41', [11, 0, 1, 2, 12, 3, 4, 5, 13, 14, 6, 7, 15, 10, 8, 9])
        lo = sum(t4[i] << (4 * i) for i in range(8)); hi = sum(t4[8 + i] << (4 * i) for i in range(8))
        E(shr(s(3), s(2), 6)); E(salu('s_bfe_u32', s(4), s(2), (1 << 16) | 1))
        E(shl(s(4), s(4), 2)); E(salu('s_or_b32', s(3), s(3), s(4))); E(shl(s(3), s(3), 2))
        E(salu('s_bitcmp1_b32', None, s(2), 2)); E(smov(s(4), lo)); E(csel(s(4), hi, s(4)))
        E(shr(s(4), s(4), s(3))); E(salu('s_and_b32', sROLE, s(4), 15))
        E(salu('s_and_b32', s(3), s(2), 1)); E(shl(s(3), s(3), 3))
        E(salu('s_bfe_u32', sRB, s(2), (3 << 16) | 3)); E(salu('s_or_b32', sRB, sRB, s(3)))
    elif CFG.get('map', 4) == 8:
        t8 = [0, 1, 2, 3, 4, 10, 11, 12, 5, 6, 7, 8, 9, 13, 14, 15]
        lo = sum(t8[i] << (4 * i) for i in range(8)); hi = sum(t8[8 + i] << (4 * i) for i in range(8))
        E(salu('s_bfe_u32', s(3), s(2), (3 << 16) | 3)); E(shl(s(3), s(3), 2))
        E(salu('s_bitcmp1_b32', None, s(2), 2)); E(smov(s(4), lo)); E(csel(s(4), hi, s(4)))
        E(shr(s(4), s(4), s(3))); E(salu('s_and_b32', sROLE, s(4), 15))
        E(salu('s_and_b32', s(3), s(2), 1)); E(shl(s(3), s(3), 3)); E(salu('s_and_b32', s(4), s(2), 2)); E(shl(s(4), s(4), 1))
        E(shr(sRB, s(2), 6)); E(salu('s_or_b32', sRB, sRB, s(3))); E(salu('s_or_b32', sRB, sRB, s(4)))
    elif CFG.get('map', 4) == 2:
        t2 = [0, 1, 2, 3, 4, 11, 5, 12, 6, 13, 7, 14, 8, 15, 9, 10]
        lo = sum(t2[i] << (4 * i) for i in range(8)); hi = sum(t2[8 + i] << (4 * i) for i in range(8))
        E(salu('s_bfe_u32', s(3), s(2), (1 << 16) | 3)); E(salu('s_and_b32', s(4), s(2), 3)); E(shl(s(4), s(4), 1)); E(salu('s_or_b32', s(3), s(3), s(4))); E(shl(s(3), s(3), 2))
        E(salu('s_bitcmp1_b32', None, s(2), 2)); E(smov(s(4), lo)); E(csel(s(4), hi, s(4)))
        E(shr(s(4), s(4), s(3))); E(salu('s_and_b32', sROLE, s(4), 15)); E(shr(sRB, s(2), 4))
    else:
        lo = sum(tab[i] << (4 * i) for i in range(8)); hi = sum(tab[8 + i] << (4 * i) for i in range(8))
        E(salu('s_bfe_u32', s(3), s(2), (2 << 16) | 3)); E(salu('s_bfe_u32', s(4), s(2), (1 << 16) | 1))
        E(shl(s(4), s(4), 2)); E(salu('s_or_b32', s(3), s(3), s(4))); E(shl(s(3), s(3), 2))
        E(salu('s_bitcmp1_b32', None, s(2), 2))
        E(smov(s(4), lo)); E(csel(s(4), hi, s(4)))
        E(shr(s(4), s(4), s(3))); E(salu('s_and_b32', sROLE, s(4), 15))
        E(salu('s_and_b32', s(3), s(2), 1)); E(shl(s(3), s(3), 3))
        E(shr(sRB, s(2), 5)); E(salu('s_or_b32', sRB, sRB, s(3)))
    E(valu('v_lshrrev_b32', v(1), 6, v(0)))
    E(valu('v_readfirstlane_b32', sWAVE, v(1)))
    E(valu('v_and_b32', v(0), 63, v(0)))
    E(valu('v_lshrrev_b32', vROWN, 3, v(0)))
    E(valu('v_and_b32', v(20), 7, v(0))); E(valu('v_lshrrev_b32', v(21), 4, v(0)))
    E(valu('v_xor_b32', v(22), v(20), v(21))); E(valu('v_xor_b32', v(23), 4, v(22)))
    E(smov(s(3), 1152)); E(valu('v_mul_u32_u24', v(24), s(3), vROWN))
    E(valu('v_lshl_add_u32', v(16), v(22), 4, v(24))); E(valu('v_lshl_add_u32', v(17), v(23), 4, v(24)))
    E(valu('v_add_u32', v(17), 8 * 1152 - 1024, v(17)))
    E(valu('v_add_u32', v(18), 2 * (8 * 1152 - 1024), v(16))); E(valu('v_add_u32', v(19), 2 * (8 * 1152 - 1024), v(17)))
    E(mul(s(6), sWAVE, XW))
    E(shl(s(7), sRB, 2)); E(add(s(7), s(7), sWAVE)); E(mul(s(7), s(7), 32 * 1152))
    E(raw(f"s_getpc_b64 {sPC}", wr=[sPC])); E(label("L_pc"))
    E(smov(s(4), "L_roleA-L_pc")); E(smov(s(5), "L_roleA_end-L_pc-4"))
    E(salu('s_cmp_ge_u32', None, sROLE, NA)); E(csel(s(4), "L_roleM-L_pc", s(4))); E(csel(s(5), "L_roleM_end-L_pc-4", s(5)))
    E(salu('s_cmp_ge_u32', None, sROLE, NA + NM)); E(csel(s(4), "L_roleF-L_pc", s(4))); E(csel(s(5), "L_roleF_end-L_pc-4", s(5)))
    def code_pf():
        NL = CFG.get('codelines', 24)
        E(salu('s_and_b32', s(3), sRB, 7)); E(shl(s(3), s(3), 2)); E(add(s(3), s(3), sWAVE))
        E(mul(s(3), s(3), NL * 128)); E(add(s(3), s(3), s(4)))
        E(valu('v_min_u32', v(2), NL - 1, v(0))); E(valu('v_lshlrev_b32', v(2), 7, v(2))); E(valu('v_add_u32', v(2), s(3), v(2)))
        E(valu('v_min_u32', v(3), s(5), v(2)))
        E(I(f"global_load_dword {vDUM}, v3, {sPC}", 'vload', wr=vDUM.regs(), rd=vr(3) + sPC.regs(), tag='pf'))
    if CFG.get('codepf', 3) >= 3:
        n0 = CFG.get('code0', 16)
        if n0:
            E(mul(s(3), sWAVE, n0 * 128)); E(add(s(3), s(3), s(4)))
            E(valu('v_min_u32', v(2), n0 - 1, v(0))); E(valu('v_lshlrev_b32', v(2), 7, v(2))); E(valu('v_add_u32', v(2), s(3), v(2)))
            E(I(f"global_load_dword {vDUM}, v2, {sPC}", 'vload', wr=vDUM.regs(), rd=vr(2) + sPC.regs(), tag='pf'))
        code_pf()
    E(raw("s_waitcnt lgkmcnt(0)"))
    srd(p, sX, 40, 2359296)
    if CFG.get('xt'):
        nch = CFG['xt']
        E(salu('s_bfe_u32', s(3), s(2), (2 << 16) | 3)); E(mul(s(3), s(3), 128 * nch)); E(add(s(3), s(3), 128 * (9 - 4 * nch))); E(add(s(3), s(3), s(7)))
        E(valu('v_and_b32', v(2), 31, v(0))); E(valu('v_mul_u32_u24', v(2), 1152, v(2)))
        if nch == 2:
            E(valu('v_lshrrev_b32', v(3), 5, v(0))); E(valu('v_lshl_add_u32', v(2), v(3), 7, v(2)))
        ld = bload('buffer_load_dword', vDUM, v(2), sX, s(3)); ld.tag = 'pf'; E(ld)
    nx0 = CFG.get('tx', 2) if CFG.get('touch') else 0
    for j in range(nx0): E(xdma(j))
    if CFG.get('touch'):
        E(salu('s_cmp_gt_u32', None, sROLE, 10))
        E(raw("s_cselect_b64 s[60:61], s[52:53], s[46:47]", 'salu', wr=[s(60, 2)], rd=[s(52, 2), s(46, 2)]))
        E(raw("s_cselect_b64 s[66:67], s[54:55], s[48:49]", 'salu', wr=[s(66, 2)], rd=[s(54, 2), s(48, 2)]))
        E(salu('s_cmp_eq_u32', None, sWAVE, 1)); E(raw("s_cselect_b64 s[60:61], s[66:67], s[60:61]", 'salu', wr=[s(60, 2)], rd=[s(66, 2), s(60, 2)]))
        E(salu('s_cmp_eq_u32', None, sWAVE, 2)); E(raw("s_cselect_b64 s[60:61], s[42:43], s[60:61]", 'salu', wr=[s(60, 2)], rd=[s(42, 2), s(60, 2)]))
        E(salu('s_cmp_eq_u32', None, sWAVE, 3)); E(raw("s_cselect_b64 s[60:61], s[44:45], s[60:61]", 'salu', wr=[s(60, 2)], rd=[s(44, 2), s(60, 2)]))
        E(smov(s(3), 73728)); E(salu('s_cmp_ge_u32', None, sWAVE, 2)); E(csel(s(3), 131072, s(3)))
        E(valu('v_mul_u32_u24', v(2), s(3), v(0)))
        E(I(f"global_load_dword {vDUM}, v2, s[60:61]", 'vload', wr=vDUM.regs(), rd=vr(2) + sr(60, 2), tag='pf'))
    for j in range(nx0, CFG['xe']): E(xdma(j))
    if CFG.get('codepf', 3) == 1: code_pf()
    if CFG.get('codepf', 3) == 2:
        E(valu('v_mov_b32', v(46), v(3))); E(raw(f"s_mov_b64 s[100:101], {sPC}", 'salu', wr=[s(100, 2)], rd=[sPC]))
    srd(p, sK, 42, 8388608); srd(p, sV, 44, 8388608); srd(p, sWQ, 46, 4718592); srd(p, sWO, 48, 4718592)
    srd(p, sW1, 52, 5308416); srd(p, sW2, 54, 5308416); srd(p, sWS, 50, 0x10000000 if (CFG['stamps'] or CFG['fused']) else WSP_BYTES)
    srd(p, sOUT, 56, 2359296); srd(p, sDBG, 58, 256)
    E(mul(sW8704, sWAVE, 8 * PP)); E(mul(sWC, sWAVE, PP)); E(add(sWC, sWC, 32 * PP))
    E(shl(sW8192, sWAVE, 13)); E(shl(sWCH, sWAVE, 10)); E(add(sWCH, sWCH, 32768))
    E(mul(sW2176, sWAVE, 2 * PP)); E(mul(sW4352, sWAVE, 4 * PP)); E(add(sWA2, sW2176, 16 * PP))
    return p

def dispatch_text():
    return f""" s_cmp_ge_u32 {sROLE}, {NA + NM}
 s_cbranch_scc1 L_roleF
 s_cmp_ge_u32 {sROLE}, {NA}
 s_getpc_b64 s[94:95]
L_pc2:
 s_cbranch_scc1 L_jM
 s_add_u32 s94, s94, L_roleA-L_pc2
 s_addc_u32 s95, s95, 0
 s_setpc_b64 s[94:95]
L_jM:
 s_add_u32 s94, s94, L_roleM-L_pc2
 s_addc_u32 s95, s95, 0
 s_setpc_b64 s[94:95]
"""

def pfload(srd_, base):
    ld = bload('buffer_load_dword', vDUM, vPF, srd_, base); ld.tag = 'pf'; return ld
def pf_lin(srd_, base_s, start, nbytes, nl=64):
    def f():
        return [valu('v_lshrrev_b32', vPF2, 16, vTID), valu('v_and_b32', vPF, 63, vTID), valu('v_min_u32', vPF, nl - 1, vPF),
                valu('v_mad_u32_u24', vPF, vPF2, nl, vPF), valu('v_lshlrev_b32', vPF, 7, vPF), valu('v_add_u32', vPF, start, vPF),
                valu('v_min_u32', vPF, nbytes - 128, vPF), pfload(srd_, base_s)]
    return f
def pf_run(srd_, base_s, nbytes, nl):
    def f():
        return [valu('v_min_u32', vPF, nbytes - 128, vPFR), valu('v_add_u32', vPFR, 64 * nl * 128, vPFR), pfload(srd_, base_s)]
    f.nl = nl
    return f
def vPFW(kind): return {'F': v(8), 'A': v(7), 'M': v(36)}[kind]
def pf_row(kind, srd_, step=128):
    def f():
        ld = bload('buffer_load_dword', vDUM, vPFW(kind), srd_, sPW); ld.tag = 'pf'
        return [add(sPW, sPW, step), ld]
    return f
def pf_row_setup(kind, pitch, nl, base, lit):
    r = vPFW(kind)
    return [valu('v_bfe_u32', vPF2, vTID, 16, 5), valu('v_and_b32', r, 63, vTID), valu('v_min_u32', r, nl - 1, r),
            valu('v_mad_u32_u24', r, vPF2, nl, r), smov(sT2, pitch), valu('v_mul_u32_u24', r, sT2, r), add(sPW, base, lit)]
def pf_code(la, lb, nl):
    def f():
        L = f"L_cp{pf_code.k}"; pf_code.k += 1
        ld = I(f"global_load_dword {vDUM}, {vPF}, {sPC}", 'vload', wr=vDUM.regs(), rd=vPF.regs() + sPC.regs(), units=3, tag='pf')
        return [raw(f"s_getpc_b64 {sPC}", 'salu', wr=[sPC]), label(L),
                salu('s_add_u32', sPC[0], sPC[0], f"{la}-{L}"), salu('s_addc_u32', sPC[1], sPC[1], 0, scc_r=True),
                valu('v_bfe_u32', vPF2, vTID, 16, 5), valu('v_and_b32', vPF, 63, vTID), valu('v_min_u32', vPF, nl - 1, vPF),
                valu('v_mad_u32_u24', vPF, vPF2, nl, vPF), valu('v_lshlrev_b32', vPF, 7, vPF), valu('v_min_u32', vPF, f"{lb}-{la}-4", vPF), ld]
    return f
pf_code.k = 0
def pf_sched(R, k0, srd_, base_s, nbytes, nl):
    per = 64 * nl * 128; k = k0
    for st in range(0, nbytes, per):
        R.pf.setdefault(k, []).append(pf_lin(srd_, base_s, st, nbytes, nl)); k += 1
    return k

def role_prologue(R, vm_before):
    p = R.p; E = p.emit; kind = R.kind
    p.vm = list(vm_before)
    MS = CFG['shape'] == 'M'
    def PS(k):
        if CFG['stamps'] == 1: R.stamp(k)
    if CFG.get('delayrole') is not None:
        for r_ in CFG['delayrole']:
            E(salu('s_cmp_eq_u32', None, sROLE, r_[0])); E(raw(f"s_cbranch_scc0 L_{kind}_nd{r_[0]}"))
            E(smov(sLC, r_[1])); E(label(f"L_{kind}_dl{r_[0]}")); E(raw("s_sleep 127")); E(salu('s_sub_u32', sLC, sLC, 1)); E(salu('s_cmp_lg_u32', None, sLC, 0)); E(raw(f"s_cbranch_scc1 L_{kind}_dl{r_[0]}"))
            E(label(f"L_{kind}_nd{r_[0]}"))
    PS(56)
    lane = v(0)
    ILV = CFG.get('ilv') and not MS
    setup = []
    if ILV:
        E(valu('v_lshrrev_b32', v(48), 4, lane)); E(valu('v_and_b32', v(49), 15, lane)); E(valu('v_bfe_u32', v(50), lane, 1, 3)); E(valu('v_xor_b32', v(50), v(50), v(48)))
        E(valu('v_lshlrev_b32', v(49), 7, v(49))); E(valu('v_add_u32', v(49), s(6), v(49)))
        E(valu('v_lshl_add_u32', v(20), v(50), 4, v(49))); E(valu('v_xor_b32', v(21), 64, v(20)))
        def E(i):
            if isinstance(i, (list, tuple)):
                for x in i: E(x)
            else: setup.append(i)
    E(shl(sT2, sRB, 2)); E(add(sT2, sT2, sWAVE)); E(shl(sT2, sT2, 16)); E(valu('v_or_b32', vTID, sT2, lane))
    if kind in 'AM' and CFG.get('pair'):
        sHP_, sHS_ = s(86), s(85)
        if CFG.get('l844'): E(shl(sHP_, sROLE, 1)); E(add(sHP_, sHP_, 8))
        else: E(mul(sHP_, sROLE, 3))
        if kind == 'A':
            sHP_, sHS_ = sFA, sFC
            E(mul(sHS_, sROLE, 3)); E(salu('s_and_b32', s(4), sROLE, 1)); E(add(sHP_, sHS_, s(4)))
            E(shl(s(4), s(4), 1)); E(add(sHS_, sHS_, 2)); E(salu('s_sub_u32', sHS_, sHS_, s(4)))
            E(salu('s_sub_u32', sJQ, sHS_, sHP_)); E(shl(sJQ, sJQ, 8)); E(salu('s_sub_u32', sJQ, sJQ, 3 * 128))
        E(shl(sQ0, sHP_, 8))
        E(mul(sQA, sWAVE, 64 * 8192)); E(add(sQA, sQA, sQ0))
        E(shl(sQC, sWAVE, 16)); E(add(sQC, sQC, sQ0)); E(add(sQC, sQC, 256 * 8192))
        E(shr(s(3), sWAVE, 1)); E(shl(s(3), s(3), 13)); E(salu('s_and_b32', s(4), sWAVE, 1)); E(shl(s(4), s(4), 11)); E(add(s(3), s(3), s(4)))
        E(salu('s_sub_u32', s(3), s(3), 64)); E(shl(s(4), sWAVE, 11))
        for e, (h_, pfr) in enumerate([(sHP_, sPFa), (sHS_, sPFb)][:2 if kind == 'A' else 1]):
            E(shr(pfr, h_, 1)); E(shl(pfr, pfr, 19)); E(add(pfr, pfr, 1536 * 256))
            E(add(sKb[e], pfr, s(4))); E(add(sVb[e], pfr, s(3)))
        E(mul(sPFc, sROLE, 384 * 1152) if kind == 'A' else mul(sPFc, sHP_, 128 * 1152))
        if kind == 'A':
            E(mul(sHP_, sHP_, 128 * 1152)); E(mul(sHS_, sHS_, 128 * 1152))
            E(mul(sOA, sWAVE, 32 * 1152)); E(add(sOA1, sOA, sHS_)); E(add(sOA, sOA, sHP_))
            E(salu('s_sub_u32', sOA1, sOA1, 64 * 1152)); E(add(sT3, sOA, 192 * 1152)); E(salu('s_cmp_lt_u32', None, sWAVE, 2)); E(csel(sOA1, sT3, sOA1))
            E(shr(s(3), sWAVE, 1)); E(shl(s(3), s(3), 2)); E(salu('s_and_b32', s(4), sWAVE, 1)); E(add(s(3), s(3), s(4)))
            E(mul(sOB, s(3), 8 * 1152)); E(add(sOB1, sOB, sHS_)); E(add(sOB1, sOB1, 64 * 1152)); E(add(sOB, sOB, sHP_)); E(add(sOB, sOB, 128 * 1152))
        else:
            E(mul(sOA, sWAVE, 64 * 1152)); E(add(sOA, sOA, sPFc))
    elif kind in 'AM':
        E(mul(sT3, sROLE, 3 * 256))
        E(mul(sQA, sWAVE, 64 * 8192)); E(add(sQA, sQA, sT3))
        E(shl(sQC, sWAVE, 16)); E(add(sQC, sQC, sT3)); E(add(sQC, sQC, 256 * 8192))
        E(shr(s(3), sWAVE, 1)); E(shl(s(3), s(3), 13)); E(salu('s_and_b32', s(4), sWAVE, 1)); E(shl(s(4), s(4), 11)); E(add(s(3), s(3), s(4)))
        E(salu('s_sub_u32', s(3), s(3), 64)); E(shl(s(4), sWAVE, 11))
        if MS: E(shl(s(3), sWAVE, 12))
        for e in range(3 if kind == 'A' else 2):
            E(mul(sT3, sROLE, 3)); E(add(sT3, sT3, e)); E(shr(sT3, sT3, 1)); E(shl(sT3, sT3, 19)); E(add(sT3, sT3, 1536 * 256))
            if e == 0: E(smov(sPFa, sT3))
            if e == (2 if kind == 'A' else 1): E(smov(sPFb, sT3))
            E(add(sKb[e], sT3, s(4))); E(add(sVb[e], sT3, s(3)))
        E(mul(sPFc, sROLE, 384 * 1152))
        if kind == 'A':
            E(mul(sOA, sWAVE, 32 * 1152)); E(add(sOA, sOA, sPFc))
            E(shr(s(3), sWAVE, 1)); E(shl(s(3), s(3), 2)); E(salu('s_and_b32', s(4), sWAVE, 1)); E(add(s(3), s(3), s(4)))
            E(mul(sOB, s(3), 8 * 1152)); E(add(sOB, sOB, sPFc)); E(add(sOB, sOB, 128 * 1152))
        else:
            E(mul(sOA, sWAVE, 64 * 1152)); E(add(sOA, sOA, sPFc))
    if kind in 'FM':
        if kind == 'F':
            E(salu('s_sub_u32', s(3), sROLE, NA + NM)); E(mul(sPF1, s(3), 13 * 128)); E(shl(sPF1h, s(3), 6)); E(add(sPF1h, sPF1h, 69 * 128))
        elif CFG.get('l844'):
            E(mul(sPF1, sROLE, 5 * 128)); E(add(sPF1, sPF1, (52 - 40) * 128)); E(smov(sPF1h, sPF1))
        else:
            E(smov(sPF1, f_fullcol(5) * 2)); E(smov(sPF1h, f_halfcol(5) * 2))
        E(mul(sHA, sWAVE, 64 * 9216)); E(add(sHA, sHA, sPF1))
        E(mul(sHC, sWAVE, 8 * 9216)); E(add(sHC, sHC, sPF1)); E(add(sHC, sHC, 256 * 9216))
        E(mul(sHH, sWAVE, 128 * 9216)); E(add(sHH, sHH, sPF1h))
        E(mul(sHHC, sWAVE, 16 * 9216)); E(add(sHHC, sHHC, sPF1h)); E(add(sHHC, sHHC, 512 * 9216))
        E(mul(sPF2, sPF1, 576)); E(mul(sPF2h, sPF1h, 576))
        E(mul(sFA, sWAVE, 64 * 1152)); E(add(sFA, sFA, sPF2))
        if MS:
            E(salu('s_and_b32', s(3), sWAVE, 1)); E(shl(s(3), s(3), 1)); E(shr(s(4), sWAVE, 1)); E(add(s(3), s(3), s(4))); E(mul(sFC, s(3), 8 * 1152))
        else: E(mul(sFC, sWAVE, 4 * 1152))
        E(add(sFS, sFC, sPF2h)); E(add(sFC, sFC, sPF2)); E(add(sFC, sFC, 256 * 1152))
    if CFG['pf'] >= 3:
        if kind in 'AM': E(mul(sT3, sROLE, 3 * 256) if not CFG.get('pair') else smov(sT3, sQ0))
        E(pf_row_setup(kind, 8192 if kind in 'AM' else 9216, 18, sT3 if kind in 'AM' else sPF1, 0))
        f_ = pf_row(kind, sWQ if kind in 'AM' else sW1)
        early_pf = [f_()[1]] + f_() + f_()
        if CFG.get('ez'): E(early_pf[0])
        if CFG.get('epf', 1) == 3:
            R.pf.setdefault(0, [])[:0] = [f_, f_]
    E(add(sT3, sROLE, NS - NA if kind == 'F' else 0))
    E(mul(sSt, sT3, PSTR())); E(shl(sT3, sRB, 2)); E(add(sT3, sT3, sWAVE)); E(mul(sT3, sT3, PWAVE)); E(add(sSt, sSt, sT3))
    if kind == 'M': E(add(sSt2, sSt, (NS - NA) * PSTR()))
    if CFG['fused']:
        E(shl(sT2, sRB, 14)); E(add(sT2, sT2, CTRL))
        E(add(sT3, sROLE, NS - NA if kind == 'F' else 0)); E(shl(sT3, sT3, 2)); E(add(sT3, sT3, sT2))
        E(salu('s_cmp_eq_u32', None, sWAVE, 0)); E(csel(sT3, sT3, OOB)); E(csel(sT2, sT2, OOB))
        E(valu('v_and_b32', v(24), 15, lane)); E(valu('v_lshlrev_b32', v(25), 7, v(24))); E(valu('v_add_u32', v(25), 128, v(25)))
        E(raw("v_cmp_eq_u32 vcc, 0, v24", 'valu', wr=['vcc'], rd=[v(24)])); E(valu('v_cndmask_b32', v(25), v(25), 0, 'vcc') if False else raw("v_cndmask_b32 v25, v25, v24, vcc", 'valu', wr=[v(25)], rd=[v(25), v(24), 'vcc']))
        E(valu('v_lshrrev_b32', v(26), 4, lane)); E(valu('v_lshl_add_u32', v(25), v(26), 2 + (NS - NA).bit_length() - 1, v(25))); E(valu('v_add_u32', v(25), sT3, v(25)))
        E(raw(f"s_mov_b64 vcc, {hex(((1 << (NA + 1 + CFG.get('mpriv', 0))) - 1) * (0x10001 if kind == 'M' else 1))}", 'salu', wr=['vcc'])); E(valu('v_mov_b32', vCT, OOB)); E(nop(1))
        E(raw(f"v_cndmask_b32 {vCT}, {vCT}, v25, vcc", 'valu', wr=[vCT], rd=[vCT, v(25), 'vcc']))
        E(valu('v_mov_b32', v(24), vCT))
        if CFG.get('abn'):
            E(valu('v_and_b32', v(26), 15, lane)); E(valu('v_lshlrev_b32', v(26), 8, v(26))); E(add(sT2, sT2, ABN)); E(valu('v_add_u32', v(26), sT2, v(26)))
            if kind == 'A' and CFG.get('bal') == 2:
                E(valu('v_mov_b32', v(27), sROLE))
                for lim, tab, base in ((15, BAL2, 10), (31, BAL3, 21), (47, [BALM[i] if BALM[i] < 36 else BAL3[i] for i in range(10)], 20)):
                    t_ = [x - base for x in tab]
                    E(smov(s(98), sum(t_[i] << (4 * i) for i in range(8)))); E(smov(s(99), t_[8] | (t_[9] << 4)))
                    E(shl(s(4), sROLE, 2)); E(salu('s_lshr_b64', s(98, 2), s(98, 2), s(4))); E(salu('s_and_b32', s(4), s(98), 15)); E(add(s(4), s(4), base))
                    E(valu('v_mov_b32', v(25), s(4)))
                    E(raw(f"v_cmp_lt_u32 vcc, {lim}, v0", 'valu', wr=['vcc'], rd=[lane])); E(raw("v_cndmask_b32 v27, v27, v25, vcc", 'valu', wr=[v(27)], rd=[v(27), v(25), 'vcc']))
            elif kind == 'F' and CFG.get('fi'):
                t_ = [min(x, 40) - 25 for x in CFG['fi']]
                E(smov(s(98), sum(t_[i] << (4 * i) for i in range(5)))); E(salu('s_sub_u32', s(4), sROLE, 11)); E(shl(s(4), s(4), 2))
                E(shr(s(4), s(98), s(4))); E(salu('s_and_b32', s(4), s(4), 15)); E(add(s(4), s(4), 25)); E(valu('v_mov_b32', v(27), s(4)))
            elif kind == 'M' and CFG.get('mi'):
                E(valu('v_mov_b32', v(27), CFG['mi'][0])); E(valu('v_mov_b32', v(25), CFG['mi'][1]))
                E(raw("v_cmp_lt_u32 vcc, 15, v0", 'valu', wr=['vcc'], rd=[lane])); E(raw("v_cndmask_b32 v27, v27, v25, vcc", 'valu', wr=[v(27)], rd=[v(27), v(25), 'vcc']))
            elif kind == 'F' and CFG.get('bal') == 2:
                E(valu('v_mov_b32', v(27), 40))
            elif kind == 'A':
                t_ = [x - 20 for x in ([28, 29, 23, 30, 31, 24, 32, 33, 34, 35] if CFG.get('m3') else [28, 29, 22, 30, 31, 21, 32, 33, 34, 35])]
                E(smov(s(98), sum(t_[i] << (4 * i) for i in range(8)))); E(smov(s(99), t_[8] | (t_[9] << 4)))
                E(shl(s(4), sROLE, 2)); E(salu('s_lshr_b64', s(98, 2), s(98, 2), s(4))); E(salu('s_and_b32', s(4), s(98), 15)); E(add(s(4), s(4), 20))
                E(valu('v_mov_b32', v(27), s(4))); E(add(s(4), sROLE, 10)); E(valu('v_mov_b32', v(25), s(4)))
                E(raw("v_cmp_gt_u32 vcc, 32, v0", 'valu', wr=['vcc'], rd=[lane])); E(raw("v_cndmask_b32 v27, v27, v25, vcc", 'valu', wr=[v(27)], rd=[v(27), v(25), 'vcc']))
                E(valu('v_mov_b32', v(25), sROLE))
                E(raw("v_cmp_gt_u32 vcc, 16, v0", 'valu', wr=['vcc'], rd=[lane])); E(raw("v_cndmask_b32 v27, v27, v25, vcc", 'valu', wr=[v(27)], rd=[v(27), v(25), 'vcc']))
            elif CFG.get('m3') and kind == 'M':
                E(valu('v_lshrrev_b32', v(27), 4, lane)); E(valu('v_min_u32', v(27), 2 if CFG['m3'] == 1 else 1, v(27))); E(valu('v_add_u32', v(27), CFG.get('mb', 20), v(27)))
            elif CFG.get('m3'):
                E(add(s(4), sROLE, 12)); E(salu('s_cmp_lt_u32', None, sROLE, 13)); E(csel(s(4), 40, s(4))); E(valu('v_mov_b32', v(27), s(4)))
            else:
                E(smov(s(4), 20) if kind == 'M' else add(s(4), sROLE, 12)); E(valu('v_mov_b32', v(27), s(4)))
            E(valu('v_lshl_add_u32', v(26), v(27), 2, v(26))); E(valu('v_mov_b32', v(25), 0))
            z = bstore('buffer_store_dword', v(25), v(26), sWS, 0, flags='sc1'); z.tag = 'zero'; E(z)
        else:
            assert not (CFG.get('l844') or CFG.get('four') or CFG.get('nof'))
            E(add(sT2, sT2, 4 * (NPART + 1)))
            def flag(lane_, item):
                E(raw(f"s_lshl2_add_u32 {sT3}, {item}, {sT2}", 'salu', wr=[sT3], rd=[item, sT2]))
                E(raw(f"v_writelane_b32 v24, {sT3}, {lane_}", 'valu', wr=[v(24)], rd=[sT3, v(24)]))
            def tflag(lane_, tab, base):
                t_ = [min(x - base, 15) for x in tab]
                E(smov(s(98), sum(t_[i] << (4 * i) for i in range(8)))); E(smov(s(99), t_[8] | (t_[9] << 4)))
                E(shl(s(4), sROLE, 2)); E(salu('s_lshr_b64', s(98, 2), s(98, 2), s(4))); E(salu('s_and_b32', s(4), s(98), 15)); E(add(s(4), s(4), base)); flag(lane_, s(4))
            if kind == 'A' and CFG.get('bal'):
                flag(32, sROLE); tflag(33, BAL2, 10); tflag(34, BAL3, 21)
                tflag(35, [x if x < 36 else i for i, x in enumerate(BALM)][:0] + [(BALM[i] if BALM[i] < 36 else BAL2[i]) for i in range(10)], 10)
            elif kind == 'A':
                flag(32, sROLE); E(add(s(4), sROLE, 10)); flag(33, s(4)); tflag(34, [28, 29, 22, 30, 31, 21, 32, 33, 34, 35], 20)
            elif kind == 'F' and CFG.get('bal'):
                E(add(s(4), sROLE, 12)); E(salu('s_cmp_lt_u32', None, sROLE, 13)); E(csel(s(4), 41, s(4))); flag(32, s(4))
            else:
                E(smov(s(4), 20) if kind == 'M' else add(s(4), sROLE, 12)); flag(32, s(4))
        E(valu('v_mov_b32', v(25), 0))
        z = bstore('buffer_store_dword', v(25), v(24), sWS, 0, flags='sc1'); z.tag = 'zero'; E(z)
        E(shl(sT2, sRB, 4)); E(salu('s_cmp_eq_u32', None, sWAVE, 0)); E(csel(sT2, sT2, 256))
        E(valu('v_mov_b32', v(23), 256)); E(raw(f"v_writelane_b32 v23, {sT2}, 0", 'valu', wr=[v(23)], rd=[sT2, v(23)]))
    T_ = [v(24), v(25), v(26), v(27), v(28), v(29)]
    q, r, c4, rb1 = T_[0], T_[1], T_[2], T_[3]
    E(valu('v_lshrrev_b32', q, 4, lane)); E(valu('v_bfe_u32', r, lane, 2, 2)); E(valu('v_and_b32', c4, 3, lane)); E(valu('v_bfe_u32', rb1, lane, 3, 1))
    E(valu('v_and_b32', T_[4], 7, lane)); E(valu('v_bfe_u32', T_[5], lane, 4, 1)); E(valu('v_lshlrev_b32', T_[5], 1, T_[5]))
    E(valu('v_xor_b32', T_[4], T_[4], T_[5])); E(valu('v_lshlrev_b32', vSWZ, 4, T_[4]))
    E(valu('v_lshrrev_b32', T_[4], 5, lane)); E(valu('v_and_b32', T_[5], 3, vROWN)); E(valu('v_lshl_add_u32', vROWP, T_[4], 4, T_[5]))
    E(smov(sT2, PP)); E(valu('v_mul_u32_u24', T_[4], sT2, q)); E(valu('v_lshl_add_u32', T_[4], r, 7, T_[4]))
    E(valu('v_lshl_add_u32', T_[4], c4, 3, T_[4])); E(valu('v_lshl_add_u32', vRW[0][0], rb1, 5, T_[4]))
    E(valu('v_mov_b32', vDP, vRW[0][0]))
    if MS:
        E(valu('v_and_b32', T_[4], 7, lane)); E(valu('v_bfe_u32', T_[5], lane, 4, 1)); E(valu('v_lshlrev_b32', T_[5], 2, T_[5]))
        E(valu('v_xor_b32', T_[4], T_[4], T_[5])); E(valu('v_lshlrev_b32', vSWZM, 4, T_[4]))
        E(valu('v_bfe_u32', q, lane, 4, 1)); E(valu('v_lshlrev_b32', q, 5, q))
        E(valu('v_and_b32', T_[4], 1, lane)); E(valu('v_lshl_add_u32', q, T_[4], 4, q))
        E(valu('v_bfe_u32', T_[4], lane, 1, 1)); E(valu('v_lshl_add_u32', q, T_[4], 3, q))
        E(valu('v_lshrrev_b32', T_[5], 5, lane))
        E(smov(sT2, PP)); E(valu('v_mad_u32_u24', T_[4], T_[5], sT2, q)); E(valu('v_lshl_add_u32', T_[4], r, 7, T_[4]))
        E(valu('v_lshl_add_u32', vRW[0][0], rb1, 6, T_[4])); E(valu('v_xor_b32', rb1, 1, rb1)); E(valu('v_lshl_add_u32', vRW[0][1], rb1, 6, T_[4]))
        if kind in 'FM':
            E(valu('v_lshl_add_u32', vRH[0], T_[5], 9, q)); E(valu('v_lshl_add_u32', vRH[0], r, 6, vRH[0]))
            E(valu('v_lshlrev_b32', T_[4], 4, c4)); E(valu('v_lshrrev_b32', T_[5], 2, lane)); E(smov(sT2, 9216))
            E(valu('v_mad_u32_u24', vOFFH, T_[5], sT2, T_[4]))
        E(valu('v_lshrrev_b32', q, 4, lane))
    else:
        E(valu('v_xor_b32', vRW[0][1], 32, vRW[0][0]))
    for b in (1, 2):
        for T in range(2): E(valu('v_add_u32', vRW[b][T], 65536 * b, vRW[0][T]))
    if kind in 'FM' and not MS:
        E(valu('v_lshlrev_b32', T_[4], 9, q)); E(valu('v_lshl_add_u32', T_[4], r, 6, T_[4])); E(valu('v_lshl_add_u32', T_[4], c4, 3, T_[4]))
        E(valu('v_and_b32', T_[5], 1, q)); E(valu('v_lshl_add_u32', vRH[0], T_[5], 5, T_[4])); E(valu('v_xor_b32', vRH[1], 32, vRH[0]))
        E(valu('v_lshrrev_b32', T_[4], 5, lane)); E(valu('v_lshlrev_b32', T_[4], 1, T_[4])); E(valu('v_xor_b32', T_[4], T_[4], c4))
        E(valu('v_lshlrev_b32', T_[4], 4, T_[4])); E(valu('v_lshrrev_b32', T_[5], 2, lane)); E(smov(sT2, 9216))
        E(valu('v_mad_u32_u24', vOFFH, T_[5], sT2, T_[4]))
    if kind in 'AM':
        E(valu('v_and_b32', T_[4], 15, lane)); E(valu('v_xor_b32', T_[4], T_[4], q)); E(valu('v_lshlrev_b32', T_[4], 4, T_[4]))
        E(valu('v_lshl_add_u32', vOFFK, q, 8, T_[4]))
    E(set_offw(8192 if kind in 'AM' else 9216, 'M' if MS else 'S'))
    if MS:
        XA = [v(20), v(21), v(22), v(39)]
        E(valu('v_and_b32', T_[4], 31, lane)); E(valu('v_bfe_u32', T_[5], lane, 1, 3)); E(valu('v_lshrrev_b32', q, 5, lane)); E(valu('v_xor_b32', T_[5], T_[5], q))
        E(valu('v_lshlrev_b32', T_[4], 7, T_[4])); E(valu('v_add_u32', T_[4], s(6), T_[4]))
        E(valu('v_lshl_add_u32', XA[0], T_[5], 4, T_[4]))
        for tt in range(1, 4): E(valu('v_xor_b32', XA[tt], 32 * tt, XA[0]))
    else:
        E(valu('v_and_b32', T_[4], 15, lane)); E(valu('v_bfe_u32', T_[5], lane, 1, 3)); E(valu('v_xor_b32', T_[5], T_[5], q))
        E(valu('v_lshlrev_b32', T_[4], 7, T_[4])); E(valu('v_add_u32', T_[4], s(6), T_[4]))
        E(valu('v_lshl_add_u32', v(20), T_[5], 4, T_[4])); E(valu('v_xor_b32', v(21), 64, v(20)))
        if kind in 'AM':
            E(smov(sT2, PP)); E(valu('v_mul_u32_u24', v(22), sT2, r)); E(valu('v_lshl_add_u32', v(22), c4, 8, v(22)))
            E(valu('v_xor_b32', T_[4], q, c4)); E(valu('v_lshl_add_u32', v(22), T_[4], 4, v(22)))
    E(valu('v_lshlrev_b32', vLANE16, 4, lane))
    if CFG['stamps'] == 2: E(valu('v_mov_b32', vSTAMP, 0))
    if CFG['fused'] and CFG.get('rep') and kind in 'FM':
        E(rep_addr(kind, v(24), v(25))); E(valu('v_mov_b32', v(25), 0))
        z = bstore('buffer_store_dword', v(25), v(24), sWS, 0, flags='sc1'); z.tag = 'zero'; E(z)
    E = p.emit
    sONE = s(97) if ILV else sT2
    SA = 56 if ILV else 28
    for i in range(8): E(valu('v_mov_b32', v(SA + i), 0))
    E(smov(sONE, 0x3f803f80))
    def stats(j):
        for tt in range(2):
            for g in range(2):
                for qd in range(4):
                    x = X(2 * j + tt, g)[qd]
                    E(valu('v_dot2c_f32_bf16', v(SA + 2 * g + (qd & 1)), sONE, x, rmw=True))
                    E(valu('v_dot2c_f32_bf16', v(SA + 4 + 2 * g + (qd & 1)), x, x, rmw=True))
    PS(57)
    for j in range(9):
        E(waitvm(p.vm_wait_for(lambda t: t == ('x', j))))
        if j == 0: PS(58)
        if MS:
            for tt in range(4): E(ds_b128(XM(4 * j + tt), XA[tt], j * 4096))
        else:
            for tt in range(2):
                for g in range(2): E(ds_b128(X(2 * j + tt, g), v(20 + tt), j * 4096 + g * 2048))
        if j + CFG['xe'] < 9: E(xdma(j + CFG['xe']))
        if CFG['pf'] >= 3 and CFG.get('epf', 1) == 1 and j == max(8 - CFG['xe'], 0): E(early_pf)
        if ILV:
            nper = -(-len(setup) // max(CFG['ilv'] - j, 1))
            while nper < len(setup) and (SCC in setup[nper].rd or setup[nper].txt.startswith('s_cselect') or VCC in setup[nper].rd): nper += 1
            E(setup[:nper]); del setup[:nper]
        if j >= 1:
            E(waitlg(4)); stats(j - 1)
    E(waitlg(0)); PS(59); E(barrier())
    if CFG.get('codepf', 3) == 2: E(I(f"global_load_dword {vDUM}, v46, s[100:101]", 'vload', wr=vDUM.regs(), rd=vr(46) + sr(100, 2), tag='pf'))
    if CFG['pf'] >= 3 and CFG.get('epf', 1) == 2: E(early_pf)
    pend = []
    for k in range(2 if CFG.get('pro2') else 3):
        st = R.stages[k]
        if st.pre_dma: pend.append(st.pre_dma())
        pend += st.dma(k, False)
    if CFG.get('epf', 1) == 4: pend[CFG.get('epos', 9):CFG.get('epos', 9)] = [early_pf[1:3], early_pf[3:5]]
    d0 = CFG.get('d0', 9)
    for it in pend[:d0]: E(it)
    pend = pend[d0:]
    PS(60)
    stats(8)
    acc4 = [v(SA), v(SA + 2), v(SA + 4), v(SA + 6)]
    for x in acc4: E(valu('v_add_f32', x, x, v(x.n + 1)))
    if MS:
        for b_ in (0, 2):
            E(valu('v_add_f32', acc4[b_], acc4[b_], acc4[b_ + 1]))
        for b_ in (0, 2): E(valu('v_mov_b32', acc4[b_ + 1], acc4[b_]))
    for op in (('v_permlane32_swap_b32',) if MS else ('v_permlane16_swap_b32', 'v_permlane32_swap_b32')):
        for x in acc4: E(valu('v_mov_b32', v(x.n + 1), x))
        for x in acc4: E(valu(op, x, v(x.n + 1), rmw=True, extra_wr=[v(x.n + 1)]))
        for x in acc4: E(valu('v_add_f32', x, x, v(x.n + 1)))
    for x in acc4: E(valu('v_mul_f32', x, f2u(1.0 / 576), x))
    for g in range(2): E(valu('v_fma_f32', acc4[2 + g], '-' + str(acc4[g]), acc4[g], acc4[2 + g]))
    for g in range(2): E(valu('v_max_f32', acc4[2 + g], 0, acc4[2 + g]))
    for g in range(2): E(valu('v_add_f32', acc4[2 + g], f2u(1e-5), acc4[2 + g]))
    for g in range(2): E(valu('v_rsq_f32', acc4[2 + g], acc4[2 + g]))
    for g in range(2): E(valu('v_mul_f32', acc4[2 + g], f2u(-LOG2E), acc4[2 + g]))
    for g in range(2): E(valu('v_mov_b32', v(20 + g), acc4[g]))
    for g in range(2): E(valu('v_mul_f32', acc4[g], '-' + str(acc4[g]), acc4[2 + g], extra_rd=[acc4[g]]))
    E(smov(sT2, 0xffff0000))
    if CFG.get('dotn'):
        cl = [v(SA + 1), v(SA + 3)]; ch = [v(SA + 5), v(SA + 7)]
        for g in range(2): E(valu('v_cvt_pk_bf16_f32', cl[g], acc4[2 + g], 0))
        for g in range(2): E(valu('v_lshlrev_b32', ch[g], 16, cl[g]))
        for g in range(2): E(valu('v_mul_f32', acc4[g], '-' + str(v(20 + g)), ch[g], extra_rd=[v(20 + g)]))
    PS(61)
    n = 0
    for t in range(18):
        for g in range(2):
            tps = [v(24, 2), v(26, 2), v(16, 2), v(18, 2)]
            x = X(t, g)
            if CFG.get('dotn'):
                for qd in range(4):
                    E(valu('v_dot2_f32_bf16', tps[qd][0], x[qd], cl[g], acc4[g])); E(valu('v_dot2_f32_bf16', tps[qd][1], x[qd], ch[g], acc4[g]))
            else:
                for qd in range(4):
                    E(valu('v_lshlrev_b32', tps[qd][0], 16, x[qd])); E(valu('v_and_b32', tps[qd][1], sT2, x[qd]))
                for qd in range(4): E(valu('v_pk_fma_f32', tps[qd], tps[qd], v(acc4[2 + g].n, 2), v(acc4[g].n, 2), mods='op_sel_hi:[1,0,0]'))
            for qd in range(4): E(valu('v_cvt_pk_bf16_f32', x[qd], tps[qd][0], tps[qd][1]))
            if pend and n % CFG.get('dn', 2) == 0: E(pend.pop(0))
            n += 1
    for it in pend: E(it)
    if CFG['fused']:
        E(valu('v_mov_b32', v(24), 1)); E(waitvm(p.vm_wait_for(lambda t: t == 'zero')))
        E(I(f"buffer_atomic_add v24, v23, {sDBG}, 0 offen sc1", 'vstore', rd=vr(23, 2) + sDBG.regs(), units=3, tag='init'))
    for _ in range(CFG.get('idle', 0)): E(raw("s_sleep 16"))
    PS(62)
    if kind in 'AM' and MS:
        ln, m_, key, t_ = v(16), v(17), v(18), v(19)
        E([valu('v_lshrrev_b32', ln, 4, vLANE16), valu('v_and_b32', key, 19, ln),
           valu('v_bfe_u32', t_, ln, 2, 1), valu('v_lshl_add_u32', key, t_, 3, key),
           valu('v_bfe_u32', t_, ln, 3, 1), valu('v_lshl_add_u32', key, t_, 2, key),
           valu('v_lshrrev_b32', m_, 2, key), smov(sT2, PP), valu('v_mul_u32_u24', m_, sT2, m_),
           valu('v_and_b32', key, 3, key), valu('v_lshl_add_u32', m_, key, 8, m_),
           valu('v_lshrrev_b32', t_, 5, ln), valu('v_xor_b32', t_, t_, key),
           valu('v_lshl_add_u32', vRKM[0], t_, 4, m_), valu('v_xor_b32', vRKM[1], 32, vRKM[0])])
    elif kind in 'AM':
        E(valu('v_mov_b32', vRK[0], v(22))); E(valu('v_add_u32', vRK[1], 65536, v(22))); E(valu('v_add_u32', vRK[2], 131072, v(22)))
    if CFG['stamps']: E(raw(f"v_writelane_b32 {vSTAMP}, s96, 55", 'valu', wr=[vSTAMP], rd=[s(96)])) if kind != 'A' else None
    if CFG['stamps']: E(smov(s(43), s(96)))
    nlr = {'F': 10, 'A': 11, 'M': 8}[kind]
    if kind != 'M': E([valu('v_lshrrev_b32', vPF2, 16, vTID), valu('v_and_b32', vPFR, 63, vTID), valu('v_min_u32', vPFR, nlr - 1, vPFR),
       valu('v_mad_u32_u24', vPFR, vPF2, nlr, vPFR), valu('v_lshlrev_b32', vPFR, 7, vPFR)])
    if CFG['stamps']: E(smov(s(97), 0))
    E(smov(sLN0, f2u(-1.0 / math.sqrt(128.0))))

def slow_check(R, heads, base2):
    def f():
        p = R.p; E = p.emit
        t = v(254); lo = v(255)
        E(valu('v_mov_b32', lo, f2u(2.0 ** -40))); E(smov(sT3, f2u(2.0 ** 40)))
        for (hd, Q, O) in heads:
            L = f"L_{R.kind}_slow{hd}"
            if CFG['shape'] == 'M':
                E(valu('v_med3_f32', t, Lsave[hd], sT3, lo))
                E(raw(f"v_cmp_neq_f32 vcc, {t}, {Lsave[hd]}", 'valu', wr=['vcc'], rd=[t, Lsave[hd]])); E(nop(4))
            else:
                E(valu('v_med3_f32', t, Lsave[2 * hd], sT3, lo))
                E(raw(f"v_cmp_neq_f32 s[98:99], {t}, {Lsave[2 * hd]}", 'valu', wr=[s(98, 2)], rd=[t, Lsave[2 * hd]]))
                E(valu('v_med3_f32', t, Lsave[2 * hd + 1], sT3, lo))
                E(raw(f"v_cmp_neq_f32 vcc, {t}, {Lsave[2 * hd + 1]}", 'valu', wr=['vcc'], rd=[t, Lsave[2 * hd + 1]])); E(nop(4))
                E(raw("s_or_b64 vcc, vcc, s[98:99]", 'salu', wr=['vcc'], rd=['vcc', s(98, 2)])); E(nop(1))
            if CFG.get('force_slow'): E(raw(f"s_mov_b64 vcc, -1", 'salu', wr=['vcc']))
            E(raw(f"s_cbranch_vccz {L}_ret"))
            E(raw(f"s_call_b64 {sRET}, {L}"))
            E(label(f"{L}_ret"))
            R.slow.append((slow_path if CFG['shape'] == 'M' else slow_pathS)(L, hd, Q, O, base2))
        E(nop(1))
    return f

def slow_path(L, hd, Q, Odst, b2):
    p = Prog(); E = p.emit
    O = v(48, 64); S = v(b2, 16); P = v(b2 + 16, 8); F = v(b2 + 24, 16)
    vK, vV, vM, vL, t0, t1 = [v(b2 + 40 + i) for i in range(6)]
    sB, sJ, sO = s(98), s(99), s(97)
    E(I(".p2align 2", 'label')); E(label(L))
    E(nop(7)); E(nop(7))
    E([valu('v_lshrrev_b32', t0, 4, vLANE16), valu('v_and_b32', vK, 19, t0), valu('v_bfe_u32', t1, t0, 2, 1), valu('v_lshl_add_u32', vK, t1, 3, vK),
       valu('v_bfe_u32', t1, t0, 3, 1), valu('v_lshl_add_u32', vK, t1, 2, vK), valu('v_lshrrev_b32', t1, 5, t0),
       valu('v_lshlrev_b32', vV, 1, vK), valu('v_lshl_add_u32', vV, t1, 11, vV),
       valu('v_lshlrev_b32', vK, 8, vK), valu('v_lshl_add_u32', vK, t1, 4, vK)])
    E([mul(sB, sROLE, 3), add(sB, sB, hd), shr(sB, sB, 1), shl(sB, sB, 19), add(sB, sB, 1536 * 256)])
    def qk():
        for half in range(2):
            for t in range(4): E(bload('buffer_load_dwordx4', F.sub(4 * t, 4), vK, sK, sO, (4 * half + t) * 32))
            E(waitvm(0))
            for t in range(4):
                tt = 4 * half + t
                E(mfma(S, F.sub(4 * t, 4), Q.sub(4 * tt, 4), 0 if tt == 0 else S))
            E(nop(7)); E(nop(7))
    E(valu('v_mov_b32', vM, 0xff800000)); E(smov(sJ, 0))
    E(label(L + "_a"))
    E(add(sO, sB, sJ)); qk()
    for i in range(0, 16, 2): E(valu('v_max3_f32', vM, vM, S[i], S[i + 1]))
    E(add(sJ, sJ, 8192)); E(salu('s_cmp_lt_u32', None, sJ, 16 * 8192)); E(raw(f"s_cbranch_scc1 {L}_a"))
    E(valu('v_mov_b32', t0, vM)); E(valu('v_permlane32_swap_b32', vM, t0, rmw=True, extra_wr=[t0])); E(valu('v_max_f32', vM, vM, t0))
    for i in range(64): E(valu('v_mov_b32', O[i], 0))
    E(valu('v_mov_b32', vL, 0)); E(smov(sJ, 0))
    E(label(L + "_b"))
    E(add(sO, sB, sJ)); qk()
    for i in range(16): E(valu('v_sub_f32', S[i], S[i], vM))
    for i in range(16): E(valu('v_exp_f32', S[i], S[i]))
    for i in range(16): E(valu('v_add_f32', vL, vL, S[i]))
    for q in range(8): E(valu('v_cvt_pk_bf16_f32', P[q], S[2 * q], S[2 * q + 1]))
    for u in range(2):
        for tp in range(2):
            for tq in range(2):
                for j in range(8):
                    E(bload('buffer_load_ushort', F[8 * (j & 1) + 4 * tq + j // 2], vV, sV, sO, j * 256 + (2 * tp + tq) * 64))
            E(waitvm(0))
            for i in range(8): E(valu('v_lshl_or_b32', F[i], F[8 + i], 16, F[i]))
            for tq in range(2):
                D_ = O.sub(16 * (2 * tp + tq), 16)
                E(mfma(D_, F.sub(4 * tq, 4), P.sub(4 * u, 4), D_))
            E(nop(7))
        if u == 0: E(add(sO, sO, 4096))
    E(add(sJ, sJ, 8192)); E(salu('s_cmp_lt_u32', None, sJ, 16 * 8192)); E(raw(f"s_cbranch_scc1 {L}_b"))
    E(nop(7)); E(nop(7))
    E(valu('v_mov_b32', t0, vL)); E(valu('v_permlane32_swap_b32', vL, t0, rmw=True, extra_wr=[t0])); E(valu('v_add_f32', vL, vL, t0))
    E(valu('v_rcp_f32', t0, vL))
    for tau in range(4):
        A_ = O.sub(16 * tau, 16)
        for e in range(16): E(valu('v_mul_f32', A_[e], A_[e], t0))
        for q in range(8): E(valu('v_cvt_pk_bf16_f32', A_[2 * q], A_[2 * q], A_[2 * q + 1]))
        for q in range(4): E(valu('v_permlane16_swap_b32', A_[2 * q], A_[2 * q + 8], rmw=True, extra_wr=[A_[2 * q + 8]]))
        for q in range(8): E(valu('v_accvgpr_write_b32', Odst[8 * tau + q], A_[2 * q]))
    E(nop(1)); E(raw(f"s_setpc_b64 {sRET}"))
    return p

def slow_pathS(L, hd, Q, Odst, b2):
    p = Prog(); E = p.emit
    ob = 48; kv = None
    if isinstance(b2, tuple): b2, ob = b2
    if isinstance(Odst, tuple):
        OFf, kv = Odst
        class _D:
            def __getitem__(s_, i): return OFf(i // 8)[i % 8]
        Odst = _D()
    O = v(ob, 64); S = v(b2, 16); P = v(b2 + 16, 8); F = v(b2 + 24, 16)
    vK, vV, t0, t1 = [v(b2 + 40 + i) for i in range(4)]
    vM = [v(b2 + 44), v(b2 + 45)]; vL = [v(b2 + 46), v(b2 + 47)]
    sB, sJ, sO = s(98), s(99), s(97)
    E(I(".p2align 2", 'label')); E(label(L))
    E(nop(7)); E(nop(7))
    E([valu('v_lshrrev_b32', t0, 4, vLANE16), valu('v_and_b32', t1, 15, t0), valu('v_lshrrev_b32', t0, 4, t0),
       valu('v_lshlrev_b32', vK, 8, t1), valu('v_lshl_add_u32', vK, t0, 4, vK),
       valu('v_lshlrev_b32', vV, 1, t1), valu('v_lshl_add_u32', vV, t0, 10, vV)])
    if kv is not None: E(smov(sB, kv))
    else: E([mul(sB, sROLE, 3), add(sB, sB, hd), shr(sB, sB, 1), shl(sB, sB, 19), add(sB, sB, 1536 * 256)])
    def qk():
        for T in range(2):
            E(add(sO, sB, sJ)) if T == 0 else E(add(sO, sO, 4096))
            for t in range(4): E(bload('buffer_load_dwordx4', F.sub(4 * t, 4), vK, sK, sO, t * 64))
            E(waitvm(0))
            for t in range(4):
                for g_ in range(2):
                    D_ = S.sub(8 * T + 4 * g_, 4)
                    E(mfma(D_, F.sub(4 * t, 4), Q.sub(8 * t + 4 * g_, 4), 0 if t == 0 else D_))
            E(nop(7)); E(nop(3))
    def allq(x, op):
        for sw in ('v_permlane16_swap_b32', 'v_permlane32_swap_b32'):
            E(valu('v_mov_b32', t0, x)); E(valu(sw, x, t0, rmw=True, extra_wr=[t0])); E(valu(op, x, x, t0))
    for g_ in range(2): E(valu('v_mov_b32', vM[g_], 0xff800000))
    E(smov(sJ, 0))
    E(label(L + "_a"))
    qk()
    for T in range(2):
        for g_ in range(2):
            for i in (0, 2): E(valu('v_max3_f32', vM[g_], vM[g_], S[8 * T + 4 * g_ + i], S[8 * T + 4 * g_ + i + 1]))
    E(add(sJ, sJ, 8192)); E(salu('s_cmp_lt_u32', None, sJ, 16 * 8192)); E(raw(f"s_cbranch_scc1 {L}_a"))
    for g_ in range(2): allq(vM[g_], 'v_max_f32')
    for i in range(64): E(valu('v_mov_b32', O[i], 0))
    for g_ in range(2): E(valu('v_mov_b32', vL[g_], 0))
    E(smov(sJ, 0))
    E(label(L + "_b"))
    qk()
    for i in range(16): E(valu('v_sub_f32', S[i], S[i], vM[(i >> 2) & 1]))
    for i in range(16): E(valu('v_exp_f32', S[i], S[i]))
    for i in range(16): E(valu('v_add_f32', vL[(i >> 2) & 1], vL[(i >> 2) & 1], S[i]))
    for g_ in range(2):
        for T in range(2):
            for k in range(2): E(valu('v_cvt_pk_bf16_f32', P[4 * g_ + 2 * T + k], S[8 * T + 4 * g_ + 2 * k], S[8 * T + 4 * g_ + 2 * k + 1]))
    for tp in range(4):
        for jh in range(2):
            E(add(sO, sB, sJ)) if jh == 0 else E(add(sO, sO, 4096))
            for tq in range(2):
                for jl in range(4):
                    j = 4 * jh + jl
                    E(bload('buffer_load_ushort', F[8 * (j & 1) + 4 * tq + j // 2], vV, sV, sO, jl * 256 + (2 * tp + tq) * 32))
        E(waitvm(0))
        for i in range(8): E(valu('v_lshl_or_b32', F[i], F[8 + i], 16, F[i]))
        for tq in range(2):
            for g_ in range(2):
                D_ = O.sub(8 * (2 * tp + tq) + 4 * g_, 4)
                E(mfma(D_, F.sub(4 * tq, 4), P.sub(4 * g_, 4), D_))
        E(nop(7))
    E(add(sJ, sJ, 8192)); E(salu('s_cmp_lt_u32', None, sJ, 16 * 8192)); E(raw(f"s_cbranch_scc1 {L}_b"))
    E(nop(7)); E(nop(3))
    for g_ in range(2): allq(vL[g_], 'v_add_f32')
    for g_ in range(2): E(valu('v_rcp_f32', vL[g_], vL[g_]))
    for i in range(64): E(valu('v_mul_f32', O[i], O[i], vL[(i >> 2) & 1]))
    for kk in range(4):
        for g_ in range(2):
            for T in range(2):
                for c in range(2):
                    r = 8 * (2 * kk + T) + 4 * g_ + 2 * c
                    E(valu('v_cvt_pk_bf16_f32', O[r], O[r], O[r + 1])); E(valu('v_accvgpr_write_b32', Odst[8 * kk + 4 * g_ + 2 * T + c], O[r]))
    E(nop(1)); E(raw(f"s_setpc_b64 {sRET}"))
    return p

NREP = 6
ABN = 4096
BAL2 = [10, 11, 22, 13, 14, 21, 12, 17, 15, 19]; BALM = [63, 63, 63, 63, 63, 63, 16, 63, 18, 63]; BAL3 = [28, 29, 23, 30, 31, 24, 32, 33, 34, 35]
sMD2 = s(84)
def BMB(): return 20 if CFG.get('bal') == 2 else 16
def rep_addr(kind, dst, t):
    return [shl(sT2, sRB, 14), add(sT2, sT2, CTRL + 2048), add(sT3, sROLE, NS - NA), shl(sT3, sT3, 2), add(sT2, sT2, sT3),
            salu('s_cmp_eq_u32', None, sWAVE, 0), csel(sT2, sT2, OOB),
            valu('v_lshlrev_b32', dst, 3, vLANE16), valu('v_add_u32', dst, sT2, dst), valu('v_mov_b32', t, OOB),
            raw(f"v_cmp_gt_u32 vcc, {hex(NA * NREP * 16)}, {vLANE16}", 'valu', wr=['vcc'], rd=[vLANE16]), valu('v_cndmask_b32', dst, t, dst, 'vcc')]
vCR = v(31)
def add_signals(R):
    P2 = [k for k, st in enumerate(R.stages) if st.name.startswith('P2')]
    def sig(first):
        def f():
            out = [valu('v_add_u32', vPRG, 1, vPRG)]
            return out + [bstore('buffer_store_dword', vPRG, vCT, sWS, 0, flags='sc1')]
        return f
    def sig7():
        return [valu('v_add_u32', vPRG, 1, vPRG), bstore('buffer_store_dword', vPRG, vCR, sWS, 0, flags='sc1'), bstore('buffer_store_dword', vPRG, vCT, sWS, 0, flags='sc1')]
    def chain(stages, base):
        firsts = [k for k in stages if R.stages[k].sub == 0]
        for c in range(8):
            k = firsts[c + 1] + CFG.get('siglag', {}).get(R.kind, 2)
            if k > stages[-1]: break
            R.stages[k].cover_st = base + c; R.stages[k].post_bar = sig(c == 0)
            if c == 7 and CFG.get('rep') and R.kind in 'FM': R.stages[k].post_bar = sig7
        if CFG.get('rep') and R.kind in 'FM': R.pf.setdefault(firsts[1], []).append(lambda: rep_addr(R.kind, vCR, vPF))
    chain(P2, 0)
    R.stages[P2[0]].post_bar = lambda: [valu('v_mov_b32', vPRG, 0)]

LDSC = 4 * SLOT
sAB = s(72, 2); sRM = s(74, 2); sCD = s(98, 2)
sRS, sRF, sSP, sC, sI, sPB, sPART, sOK, sPAR, sXW, sPWv, sTO = s(78), s(79), s(71), s(80), s(81), s(82), s(47), s(40), s(41), s(59), s(3), s(58)
sIT = [s(42), s(44), s(45)]; sXP = [s(46), s(60), s(61)]
sRET2 = s(66, 2)
vP, vD, vA, vO, vXO, vL4, vDO, vLA, vIT, vLD, vSC = [v(16 + i) for i in range(11)]
vX4 = v(28)
def s64(op, d, *src, scc_r=False): return salu(op, d, *src, scc_r=scc_r)
sPV = s(76)
def red_setup(kind):
    o = [shl(sPB, sRB, 14), add(sPB, sPB, CTRL), salu('s_cmp_eq_u32', None, sWAVE, 0), csel(sT3, 0, OOB),
         valu('v_lshrrev_b32', vL4, 2, vLANE16), valu('v_add_u32', vL4, sT3, vL4),
         valu('v_mov_b32', vSC, OOB), add(sT2, sT3, 4 * NPART), raw(f"v_writelane_b32 {vSC}, {sT2}, 0", 'valu', wr=[vSC], rd=[sT2, vSC]),
         valu('v_mov_b32', vS1, vSC), valu('v_min_u32', vL5, NPART * 16, vLANE16), valu('v_lshrrev_b32', vL5, 2, vL5), valu('v_add_u32', vL5, sT3, vL5),
         add(sT2, sT3, 252), raw(f"v_writelane_b32 {vSC}, {sT2}, 1", 'valu', wr=[vSC], rd=[sT2, vSC]),
         shl(sT2, sRB, 4), add(sT2, sT2, sT3), valu('v_mov_b32', vDO, 256), raw(f"v_writelane_b32 {vDO}, {sT2}, 0", 'valu', wr=[vDO], rd=[sT2, vDO])]
    if kind == 'A' or (kind == 'M' and CFG.get('mpriv')): o += [shl(sPV, sROLE, 7), add(sPV, sPV, 256), add(sPV, sPV, sPB)]
    if CFG.get('abn'): o += [shl(sAV_, sROLE, 8), add(sAV_, sAV_, ABN), add(sAV_, sAV_, sPB)]
    return o
vS1, vL5 = v(29), v(30)
sAV_ = s(76 + 1); vP2 = v(31)
def ab_load(): return bload('buffer_load_dword', vP2, vL4, sWS, sAV_, flags='sc1')
def ab_eval():
    return [raw(f"v_cmp_ne_u32 vcc, 0, {vP2}", 'valu', wr=['vcc'], rd=[vP2]), nop(1), raw(f"s_mov_b32 {sAB[0]}, vcc_lo", 'salu', wr=[sAB[0]], rd=['vcc']), raw(f"s_and_b32 {sAB[1]}, vcc_hi, 15", 'salu', wr=[sAB[1]], rd=['vcc'])]
PRIV = [False]
def red_poll(shared=False):
    cnt = [valu('v_mov_b32', vD, 0), I(f"buffer_atomic_add {vD}, {vDO}, {sDBG}, 0 offen sc0 sc1", 'vload', wr=vD.regs(), rd=vD.regs() + vDO.regs() + sDBG.regs(), units=3)]
    if PRIV[0] and not shared:
        return [cnt, [bstore('buffer_store_dword', vS1, vS1, sWS, sPV, flags='sc1'), bload('buffer_load_dword', vP, vL5, sWS, sPV, flags='sc1')]]
    return [cnt, [bstore('buffer_store_dword', vSC, vSC, sWS, sPB, flags='sc1'), bload('buffer_load_dword', vP, vL4, sWS, sPB, flags='sc1')]]
vG = [v(28), v(29), v(30)]; vGA = v(31); vGP = v(27)
def l2pf_setup():
    return [valu('v_lshrrev_b32', vGP, 7, vLANE16), smov(sT2, PSTR()), valu('v_mul_lo_u32', vGA, vGP, sT2),
            valu('v_bfe_u32', vA, vLANE16, 4, 3), valu('v_lshl_add_u32', vGA, vA, 7, vGA), shl(sT2, sWAVE, 10), valu('v_add_u32', vGA, sT2, vGA),
            valu('v_lshlrev_b32', vGP, 2, vGP), valu('v_mov_b32', vA, OOB), smov(sT2, 68), raw(f"v_writelane_b32 {vA}, {sT2}, 0", 'valu', wr=[vA], rd=[vA, sT2])]
def l2pf_poll():
    st = bstore('buffer_store_dword', vA, vA, sWS, sPB, flags='sc1')
    out = [[st]]
    for i in range(3):
        ld = bload('buffer_load_dword', vG[i], vGP, sWS, sPB, 32 * i, flags='sc1'); ld.tag = 'gp'
        out.append([ld])
    return out
def l2pf_issue(R, dlt):
    out = [[add(sI, sROLE, dlt), salu('s_and_b32', sT2, sI, 3), shr(sC, sI, 2), shl(sT3, sRB, 2), add(sT2, sT2, sT3), mul(sSP, sT2, PWAVE),
            shl(sT3, sC, 12), add(sSP, sSP, sT3), valu('v_mov_b32', vO, OOB)]]
    for i in range(3):
        ld = bload('buffer_load_dword', vDUM, vG[i], sWS, sT2); ld.tag = 'pf'
        cmp_ = raw(f"v_cmp_lt_u32 vcc, {sC}, {vG[i]}", 'valu', wr=['vcc'], rd=[sC, vG[i]])
        pre = [cmp_]
        if i == 2: pre += [raw("s_and_b64 vcc, vcc, 0xff", 'salu', wr=['vcc'], rd=['vcc'])]
        out.append(pre + [add(sT2, sSP, 8 * i * PSTR()), valu('v_cndmask_b32', vG[i], vO, vGA, 'vcc'), ld])
    return out
def red_eval():
    o = [raw(f"v_cmp_ne_u32 vcc, 0, {vP}", 'valu', wr=['vcc'], rd=[vP]), nop(1),
         raw(f"s_lshr_b64 {sAB}, vcc, {NPART + 1}", 'salu', wr=[sAB], rd=['vcc']), salu('s_and_b32', sAB[1], sAB[1], 15), smov(sRS, 0), smov(sRF, 0)]
    for c in range(9):
        o += [raw(f"v_cmp_ge_u32 vcc, {c}, {vP}", 'valu', wr=['vcc'], rd=[vP]), nop(1),
              raw(f"s_and_b32 {sT2}, vcc_lo, {hex((1 << NS) - 1)}", 'salu', wr=[sT2], rd=['vcc']), csel(sRS, sRS, 4 * (c + 1)),
              raw(f"s_and_b32 {sT2}, vcc_lo, {hex((1 << NPART) - (1 << NS))}", 'salu', wr=[sT2], rd=['vcc']), csel(sRF, sRF, 4 * (c + 1))]
    return o
def red_pub(par):
    return [shl(sT2, sRF, 8), salu('s_or_b32', sT2, sT2, sRS), shl(sT3, sTO, 16), salu('s_or_b32', sT2, sT2, sT3),
            valu('v_mov_b32', vIT, sT2), valu('v_mov_b32', vLA, par), raw(f"ds_write_b32 {vLA}, {vIT}", 'other', rd=[vLA, vIT]), waitlg(0)]
def red_get(par):
    return [valu('v_mov_b32', vLA, par), raw(f"ds_read_b32 {vIT}, {vLA}", 'ds', wr=[vIT], rd=[vLA]), waitlg(0),
            valu('v_readfirstlane_b32', sT2, vIT), salu('s_and_b32', sRS, sT2, 255), salu('s_bfe_u32', sRF, sT2, (8 << 16) | 8), shr(sTO, sT2, 16)]
def red_early(p, n):
    E = p.emit
    E([smov(sRS, 0), smov(sRF, 0), smov(sOK, 0), smov(sTO, 0), smov(sPAR, LDSC + 4), nop(1)])
    E(salu('s_cmp_eq_u32', None, sWAVE, 0)); E(raw(f"s_cbranch_scc0 L_{n}_e2"))
    E(waitvm(p.vm_wait_for(lambda t: t == 'poll')))
    E(valu('v_readfirstlane_b32', sOK, vD))
    E(salu('s_cmp_ge_u32', None, sOK, 16)); E(raw(f"s_cbranch_scc0 L_{n}_e1"))
    E(red_eval())
    E(label(f"L_{n}_e1"))
    E(red_pub(LDSC))
    E(label(f"L_{n}_e2"))

def ld_part(L, ks, flags):
    out = []
    for k in ks:
        out.append([add(sT2, sPART, k * PSTR()), bload('buffer_load_dwordx4', v(L + 4 * k, 4), vLD, sWS, sT2, flags=flags)])
    return out
def ld_x(L, sXO_):
    if CFG.get('nox'): return [[valu('v_mov_b32', vA, OOB), bload('buffer_load_dwordx2', v(L + 4 * NPART, 2), vA, sX, sXO_)], [bload('buffer_load_dwordx2', v(L + 4 * NPART + 2, 2), vA, sX, sXO_, 32)]]
    return [[bload('buffer_load_dwordx2', v(L + 4 * NPART, 2), vXO, sX, sXO_)], [bload('buffer_load_dwordx2', v(L + 4 * NPART + 2, 2), vXO, sX, sXO_, 32)]]
RB_ = 48
sD0, sD1 = s(68), s(69)
def proc_sum(E, L, ks, after, loads):
    SA, FA, T = RB_, RB_ + 8, RB_ + 16
    issued = 0; ks = list(ks)
    E(smov(sT3, 0xffff0000))
    for j, k in enumerate(ks):
        if loads: E(loads.pop(0)); issued += 1
        E(waitvm(len(ks) - 1 - j + after + issued))
        acc = SA if k < NS else FA
        for q in range(4):
            x = v(L + 4 * k + q)
            if k in (0, NS):
                E(valu('v_lshlrev_b32', v(acc + 2 * q), 16, x)); E(valu('v_and_b32', v(acc + 2 * q + 1), sT3, x))
            else:
                E(valu('v_dot2c_f32_bf16', v(acc + 2 * q), sD0, x, rmw=True)); E(valu('v_dot2c_f32_bf16', v(acc + 2 * q + 1), sD1, x, rmw=True))
    return issued
def proc_fin(E, L, sXO_, xwait, loads):
    SA, FA, T = RB_, RB_ + 8, RB_ + 16; XR = L + 4 * NPART; issued = 0
    for e in range(8): E(valu('v_exp_f32', v(T + e), v(FA + e)))
    for e in range(8): E(valu('v_add_f32', v(T + e), 1.0, v(T + e)))
    while len(loads) > 1: E(loads.pop(0)); issued += 1
    for e in range(8): E(valu('v_rcp_f32', v(T + e), v(T + e)))
    for e in range(8): E(valu('v_mul_f32', v(FA + e), f2u(-math.log(2.0)), v(FA + e)))
    for e in range(8): E(valu('v_mul_f32', v(FA + e), v(FA + e), v(T + e)))
    while loads: E(loads.pop(0)); issued += 1
    if xwait is not None: E(waitvm(xwait + issued))
    for q in range(4):
        E(valu('v_lshlrev_b32', v(T + 2 * q), 16, v(XR + q))); E(valu('v_and_b32', v(T + 2 * q + 1), sT3, v(XR + q)))
    for e in range(8): E(valu('v_fma_f32', v(T + e), v(SA + e), v(FA + e), v(T + e)))
    for q in range(4): E(valu('v_cvt_pk_bf16_f32', v(XR + q), v(T + 2 * q), v(T + 2 * q + 1)))
    if CFG.get('out4', True):
        def dpp(d, src, bank): return I(f"v_mov_b32_dpp {d}, {src} row_ror:8 row_mask:0xf bank_mask:{bank}", 'perm', wr=d.regs(), rd=src.regs() + d.regs())
        for i in range(2): E(valu('v_permlane16_swap_b32', v(XR + i), v(XR + 2 + i), rmw=True, extra_wr=[v(XR + 2 + i)]))
        for i in range(2): E(valu('v_mov_b32', v(T + i), v(XR + i)))
        for i in range(2): E(dpp(v(XR + i), v(XR + 2 + i), '0xc'))
        for i in range(2): E(dpp(v(XR + 2 + i), v(T + i), '0x3'))
        E(bstore('buffer_store_dwordx4', v(XR, 4), vX4, sOUT, sXO_, flags=CFG.get('oflags', 'sc1')))
        E(valu('v_mov_b32', vO, OOB)); E(bstore('buffer_store_dword', vO, vO, sOUT, 0))
        return
    E(bstore('buffer_store_dwordx2', v(XR, 2), vXO, sOUT, sXO_)); E(bstore('buffer_store_dwordx2', v(XR + 2, 2), vXO, sOUT, sXO_, 32))
def proc_all(E, L, sXO_, pre, loads):
    loads = list(loads)
    n = proc_sum(E, L, range(NPART), 2 + pre, loads)
    proc_fin(E, L, sXO_, pre + n, loads)

def acc_part(E, L, k):
    acc = RB_ if k < NS else RB_ + 8
    for q in range(4):
        x = v(L + 4 * k + q)
        if k in (0, NS):
            E(valu('v_lshlrev_b32', v(acc + 2 * q), 16, x)); E(valu('v_and_b32', v(acc + 2 * q + 1), sT3, x))
        else:
            E(valu('v_dot2c_f32_bf16', v(acc + 2 * q), sD0, x, rmw=True)); E(valu('v_dot2c_f32_bf16', v(acc + 2 * q + 1), sD1, x, rmw=True))
def stream(E, segs, hooks=None):
    W = CFG.get('rwin', 8); FL = CFG.get('fflags', 'sc1')
    seq = []
    for (L, sP, sX_, ks, wx, fin) in segs:
        if wx:
            for it in ld_x(L, sX_): seq.append((it, None))
        ks = list(ks)
        for j, k in enumerate(ks):
            it = [add(sT2, sP, k * PSTR()), bload('buffer_load_dwordx4', v(L + 4 * k, 4), vLD, sWS, sT2, flags=FL)]
            last = fin and j == len(ks) - 1
            seq.append((it, (lambda L=L, k=k, last=last, sX_=sX_: (acc_part(E, L, k), proc_fin(E, L, sX_, None, []) if last else None, last)[2])))
    E(smov(sT3, 0xffff0000))
    n = len(seq); issued = 0
    extra_at = []
    for c in range(n):
        while issued < min(n, c + W): E(seq[issued][0]); issued += 1
        if hooks and c in hooks:
            for _ in range(hooks[c](issued + sum(1 for e in extra_at))): extra_at.append(issued)
            E(smov(sT3, 0xffff0000))
        if seq[c][1] is None: continue
        E(waitvm(issued - 1 - c + sum(1 for e in extra_at if e > c)))
        if seq[c][1]():
            extra_at += [issued, issued]

def body_items(E, n, its, two, ni, ensure, refresh, done, ST, seg, final_flag, poll_hook, LATE, L0, L1, FOUR, sMID, offs, sPT):
    if n == 'M' and CFG.get('m3') == 1:
        ensure(its[2], 1, 1); ST(its[0])
        stream(E, [seg(0, L0), seg(1, L1), seg(2, L0)], {4: (lambda _: (E(ab_load()), 1)[1])})
        for i in range(3): done(its[i])
        return
    E(salu('s_min_u32', sT2, sRS, sRF)); E(salu('s_cmp_lt_u32', None, its[two - 1], sT2)); E(raw(f"s_cbranch_scc0 L_{n}_sl"))
    ST(its[0])
    AB = CFG.get('abn')
    def ab_hook(_): E(ab_load()); return 1
    hooks = {(NPART + 2) * two - CFG.get('pollat', 8): poll_hook}
    if AB:
        if ni < 3: hooks = {}
        hooks[14 if LATE else 4] = ab_hook
    if LATE: hooks[CFG.get('flagat', 3) if n == 'A' else 0] = final_flag
    stream(E, [seg(0, L0), seg(1, L1)][:two], hooks)
    ST(51)
    E(raw(f"s_branch L_{n}_j"))
    E(label(f"L_{n}_sl"))
    if LATE and two == 2 and CFG.get('mid1', 1):
        E(salu('s_min_u32', sT2, sRS, sRF)); E(salu('s_cmp_lt_u32', None, its[0], sT2)); E(raw(f"s_cbranch_scc0 L_{n}_s0"))
        ST(52)
        stream(E, [seg(0, L0)], {CFG.get('flagat', 3): final_flag, 12: poll_hook}); done(its[0])
        refresh(2); ensure(its[1], 1, 1)
        stream(E, [seg(1, L1)], {11: poll_hook, 3: ab_hook} if AB else {11: poll_hook})
        E(raw(f"s_branch L_{n}_j"))
        E(label(f"L_{n}_s0"))
    if LATE: final_flag(0)
    for i in range(two):
        ensure(its[i], 1, 1)
        hk = {11: poll_hook} if (i == two - 1 and not (AB and ni < 3)) else {}
        if AB and i == two - 1: hk[4] = ab_hook
        stream(E, [seg(i, L0)], hk); done(its[i])
    E(label(f"L_{n}_j"))
    for i in range(two): done(its[i])
    if FOUR or ((CFG.get('asg') == 3 or CFG.get('bal')) and n == 'A'):
        E(salu('s_cmp_gt_u32', None, sMID, 35)); E(raw(f"s_cbranch_scc1 L_{n}_nm"))
        refresh(2)
        ensure(sMID, 1, 1); ST(sMID)
        E(offs(sMID, sXP[0]))
        stream(E, [seg(0, L1)], {13: poll_hook}); done(sMID)
        E(label(f"L_{n}_nm"))
    def warm():
        if not CFG.get('warm', 1): return
        E(valu('v_mov_b32', v(240), vLD)); E(valu('v_mov_b32', v(241), vX4)); E(valu('v_mov_b32', vLD, OOB)); E(valu('v_mov_b32', vX4, OOB))
        E(raw(f"s_call_b64 {sRET2}, L_{n}_ft"))
        E(valu('v_mov_b32', vLD, v(240))); E(valu('v_mov_b32', vX4, v(241)))
    if ni == 3:
        if CFG.get('asg') == 3:
            E(salu('s_cmp_lt_u32', None, its[2], 36)); E(raw(f"s_cbranch_scc1 L_{n}_h3"))
            E(red_poll(True)[1]); E(waitvm(0)); E(raw(f"s_branch L_{n}_fin")); E(label(f"L_{n}_h3"))
        refresh(2, AB and CFG.get('abx', 1))
        if CFG.get('nof'):
            E(salu('s_cmp_gt_u32', None, sMD2, 35)); E(raw(f"s_cbranch_scc1 L_{n}_k1"))
            ensure(sMD2, 1, 1); E(offs(sMD2, sXP[0])); ST(sMD2)
            E(salu('s_cmp_lt_u32', None, its[2], sRS)); E(raw(f"s_cbranch_scc0 L_{n}_k0"))
            E(salu('s_cmp_lt_u32', None, its[2], sRF)); E(raw(f"s_cbranch_scc1 L_{n}_k0"))
            warm()
            stream(E, [seg(0, L1), seg(2, L0, range(NS), True, False)], {20: poll_hook.sh}); done(sMD2)
            E(raw(f"s_branch L_{n}_k2"))
            E(label(f"L_{n}_k0"))
            stream(E, [seg(0, L1)], {11: poll_hook}); done(sMD2)
            refresh(2)
            E(label(f"L_{n}_k1"))
        if CFG.get('pw') == 2 and n == 'A':
            E(salu('s_cmp_eq_u32', None, sMD2, 0)); E(raw(f"s_cbranch_scc0 L_{n}_old"))
            vQ, vZ = v(242), v(243); FM_ = (1 << NPART) - (1 << NS); SM_ = (1 << NS) - 1
            E(valu('v_min_u32', vQ, NPART * 16, vLANE16)); E(valu('v_lshrrev_b32', vQ, 2, vQ))
            E(valu('v_mov_b32', vZ, OOB)); E(smov(sT2, 4 * NPART)); E(raw(f"v_writelane_b32 {vZ}, {sT2}, 0", 'valu', wr=[vZ], rd=[sT2, vZ]))
            E(shr(sC, its[2], 2))
            def drop(): return bstore('buffer_store_dword', vZ, vZ, sWS, sPV, flags='sc1')
            def test(mask):
                E(raw(f"v_cmp_ge_u32 vcc, {sC}, {vP}", 'valu', wr=['vcc'], rd=[vP, sC])); E(nop(1))
                E(raw(f"s_and_b32 {sI}, vcc_lo, {hex(FM_)}", 'salu', wr=[sI], rd=['vcc']))
                E(raw(f"s_and_b32 {sT2}, vcc_lo, {hex(mask)}", 'salu', wr=[sT2], rd=['vcc']))
            def waitpw(tag, mask):
                L = f"L_{n}_{tag}"
                E(smov(sSP, 0))
                E(label(L + "0"))
                E(bload('buffer_load_dword', vP, vQ, sWS, sPV, flags='sc1'))
                E(salu('s_and_b32', sT2, sSP, 4 * CFG.get('pwk', 1) - 1)); E(mul(sT3, sWAVE, CFG.get('pwk', 1))); E(salu('s_cmp_eq_u32', None, sT2, sT3)); E(raw(f"s_cbranch_scc0 {L}1"))
                E(drop()); E(waitvm(1)); E(raw(f"s_branch {L}2"))
                E(label(L + "1")); E(waitvm(0))
                E(label(L + "2"))
                test(mask); E(raw(f"s_cbranch_scc0 {L}3"))
                E(add(sSP, sSP, 1)); E(salu('s_cmp_gt_u32', None, sSP, 4 * CFG.get('spin', 4000))); E(raw(f"s_cbranch_scc1 {L}4"))
                E(raw(f"s_sleep {CFG.get('pwsleep', 2)}")); E(raw(f"s_branch {L}0"))
                E(label(L + "4"))
                E(valu('v_lshlrev_b32', vO, 4, vLANE16)); E(valu('v_mov_b32', vIT, OOB)); E(valu('v_mov_b32', vA, 1))
                E(raw(f"v_cmp_gt_u32 vcc, 0x100, {vLANE16}", 'valu', wr=['vcc'], rd=[vLANE16])); E(valu('v_cndmask_b32', vO, vIT, vO, 'vcc'))
                E(raw(f"s_lshl2_add_u32 {sT2}, {its[2]}, {sPB}", 'salu', wr=[sT2], rd=[its[2], sPB])); E(add(sT2, sT2, ABN))
                E(bstore('buffer_store_dword', vA, vO, sWS, sT2, flags='sc1')); E(waitvm(0))
                E(drop()); E(waitvm(0))
                E(bload('buffer_load_dword', vP, vQ, sWS, sPV, flags='sc1')); E(waitvm(0))
                test(SM_ | FM_); E(raw(f"s_cbranch_scc1 L_{n}_exit"))
                E(label(L + "3"))
            E(salu('s_min_u32', sT2, sRS, sRF)); E(salu('s_cmp_lt_u32', None, its[2], sT2)); E(raw(f"s_cbranch_scc1 L_{n}_f3"))
            E(salu('s_cmp_lt_u32', None, its[2], sRS)); E(raw(f"s_cbranch_scc1 L_{n}_ps"))
            waitpw('ws', SM_)
            E(salu('s_cmp_eq_u32', None, sI, 0)); E(raw(f"s_cbranch_scc1 L_{n}_f3"))
            E(label(f"L_{n}_ps")); ST(its[2])
            warm()
            stream(E, [seg(2, L0, range(NS), True, False)], {5: (lambda _: (E(drop()), 1)[1])})
            waitpw('wf', FM_); ST(50)
            E(raw(f"s_call_b64 {sRET2}, L_{n}_ft")); E(raw(f"s_branch L_{n}_exit"))
            E(label(f"L_{n}_ft"))
            stream(E, [seg(2, L0, range(NS, NPART), False, True)])
            E(raw(f"s_setpc_b64 {sRET2}"))
            E(label(f"L_{n}_old"))
            ensure(its[2], 1, 1)
            E(label(f"L_{n}_f3"))
            stream(E, [seg(2, L0)])
            done(its[2])
            E(salu('s_cmp_eq_u32', None, sMD2, 0)); E(raw(f"s_cbranch_scc1 L_{n}_exit")); E(raw(f"s_branch L_{n}_fb"))
            return
        ensure(its[2], 1, 0); ST(its[2])
        E(salu('s_cmp_lt_u32', None, its[2], sRF)); E(raw(f"s_cbranch_scc1 L_{n}_f3"))
        if CFG.get('rep') and n == 'A':
            warm()
            stream(E, [seg(2, L0, range(NS), True, False)], {4: poll_hook.sh})
            E(label(f"L_{n}_k2"))
            E(salu('s_cmp_eq_u32', None, sWAVE, 0)); E(raw(f"s_cbranch_scc0 L_{n}_w2"))
            E(waitvm(0))
            E(raw(f"v_cmp_ne_u32 vcc, 0, {vP}", 'valu', wr=['vcc'], rd=[vP])); E(nop(1))
            E(raw(f"s_lshr_b64 {sAB}, vcc, {NPART + 1}", 'salu', wr=[sAB], rd=['vcc'])); E(salu('s_and_b32', sAB[1], sAB[1], 15))
            E(salu('s_or_b32', sT2, sAB[0], sAB[1])); E(csel(sRS, 1, 0))
            E(shr(sC, its[2], 2)); E(mul(sI, sROLE, NREP * 128)); E(add(sI, sI, sPB)); E(add(sI, sI, 2048)); E(add(sSP, sI, NREP * 128))
            E(label(f"L_{n}_w0"))
            E(bload('buffer_load_dword', vP, vL5, sWS, sI, flags='sc1')); E(waitvm(0))
            E(raw(f"v_cmp_ge_u32 vcc, {sC}, {vP}", 'valu', wr=['vcc'], rd=[vP, sC])); E(nop(1))
            E(raw(f"s_and_b32 {sT2}, vcc_lo, {hex((1 << NPART) - (1 << NS))}", 'salu', wr=[sT2], rd=['vcc'])); E(csel(sRF, 0, 36))
            E(raw(f"s_cbranch_scc0 L_{n}_w1"))
            E(add(sI, sI, 128)); E(salu('s_cmp_lt_u32', None, sI, sSP)); E(raw(f"s_cbranch_scc0 L_{n}_w1"))
            E(raw(f"s_sleep {CFG.get('rsleep', 6)}")); E(raw(f"s_branch L_{n}_w0"))
            E(label(f"L_{n}_w1")); E(red_pub(sPAR))
            E(label(f"L_{n}_w2")); E(barrier()); E(red_get(sPAR)); E(salu('s_xor_b32', sPAR, sPAR, 12))
            E(smov(sMID, sRS))
            ensure(its[2], 0, 1); ST(50)
            E(raw(f"s_call_b64 {sRET2}, L_{n}_ft")); done(its[2])
            E(salu('s_cmp_eq_u32', None, sMID, 0)); E(raw(f"s_cbranch_scc1 L_{n}_exit")); E(raw(f"s_branch L_{n}_fb"))
            E(label(f"L_{n}_ft"))
            stream(E, [seg(2, L0, range(NS, NPART), False, True)])
            E(raw(f"s_setpc_b64 {sRET2}"))
        elif CFG.get('pw') and n == 'A':
            E(salu('s_cmp_eq_u32', None, sMD2, 0)); E(raw(f"s_cbranch_scc0 L_{n}_old"))
            warm()
            vQ, vZ = v(242), v(243)
            E(valu('v_min_u32', vQ, NPART * 16, vLANE16)); E(valu('v_lshrrev_b32', vQ, 2, vQ))
            E(valu('v_mov_b32', vZ, OOB)); E(smov(sT2, 4 * NPART)); E(raw(f"v_writelane_b32 {vZ}, {sT2}, 0", 'valu', wr=[vZ], rd=[sT2, vZ]))
            def drop_hook(_): E(bstore('buffer_store_dword', vZ, vZ, sWS, sPV, flags='sc1')); return 1
            stream(E, [seg(2, L0, range(NS), True, False)], {5: drop_hook})
            E(shr(sC, its[2], 2)); E(smov(sSP, 0))
            E(label(f"L_{n}_pw0"))
            E(bload('buffer_load_dword', vP, vQ, sWS, sPV, flags='sc1'))
            E(salu('s_and_b32', sT2, sSP, 3)); E(salu('s_cmp_eq_u32', None, sT2, sWAVE)); E(raw(f"s_cbranch_scc0 L_{n}_pw1"))
            E(bstore('buffer_store_dword', vZ, vZ, sWS, sPV, flags='sc1')); E(waitvm(1)); E(raw(f"s_branch L_{n}_pw2"))
            E(label(f"L_{n}_pw1")); E(waitvm(0))
            E(label(f"L_{n}_pw2"))
            E(raw(f"v_cmp_ge_u32 vcc, {sC}, {vP}", 'valu', wr=['vcc'], rd=[vP, sC])); E(nop(1))
            E(raw(f"s_and_b32 {sT2}, vcc_lo, {hex((1 << NPART) - (1 << NS))}", 'salu', wr=[sT2], rd=['vcc'])); E(raw(f"s_cbranch_scc0 L_{n}_pw3"))
            E(add(sSP, sSP, 1)); E(salu('s_cmp_gt_u32', None, sSP, 4 * CFG.get('spin', 4000))); E(raw(f"s_cbranch_scc1 L_{n}_pw4"))
            E(raw(f"s_sleep {CFG.get('pwsleep', 2)}")); E(raw(f"s_branch L_{n}_pw0"))
            E(label(f"L_{n}_pw4"))
            E(valu('v_lshlrev_b32', vO, 4, vLANE16)); E(valu('v_mov_b32', vIT, OOB)); E(valu('v_mov_b32', vA, 1))
            E(raw(f"v_cmp_gt_u32 vcc, 0x100, {vLANE16}", 'valu', wr=['vcc'], rd=[vLANE16])); E(valu('v_cndmask_b32', vO, vIT, vO, 'vcc'))
            E(raw(f"s_lshl2_add_u32 {sT2}, {its[2]}, {sPB}", 'salu', wr=[sT2], rd=[its[2], sPB])); E(add(sT2, sT2, ABN))
            E(bstore('buffer_store_dword', vA, vO, sWS, sT2, flags='sc1')); E(waitvm(0))
            E(bstore('buffer_store_dword', vZ, vZ, sWS, sPV, flags='sc1')); E(waitvm(0))
            E(bload('buffer_load_dword', vP, vQ, sWS, sPV, flags='sc1')); E(waitvm(0))
            E(raw(f"v_cmp_ge_u32 vcc, {sC}, {vP}", 'valu', wr=['vcc'], rd=[vP, sC])); E(nop(1))
            E(raw(f"s_and_b32 {sT2}, vcc_lo, {hex((1 << NPART) - (1 << NS))}", 'salu', wr=[sT2], rd=['vcc'])); E(raw(f"s_cbranch_scc1 L_{n}_exit"))
            E(label(f"L_{n}_pw3")); ST(50)
            E(raw(f"s_call_b64 {sRET2}, L_{n}_ft")); E(raw(f"s_branch L_{n}_exit"))
            E(label(f"L_{n}_ft"))
            stream(E, [seg(2, L0, range(NS, NPART), False, True)])
            E(raw(f"s_setpc_b64 {sRET2}"))
            E(label(f"L_{n}_old"))
            stream(E, [seg(2, L0, range(NS), True, False)])
            ensure(its[2], 0, 1)
            E(raw(f"s_call_b64 {sRET2}, L_{n}_ft")); E(raw(f"s_branch L_{n}_f4"))
        else:
            stream(E, [seg(2, L0, range(NS), True, False)], {6: poll_hook})
            refresh(0)
            ensure(its[2], 0, 1); ST(50)
            stream(E, [seg(2, L0, range(NS, NPART), False, True)], {0: poll_hook.sh} if not AB else None)
            E(raw(f"s_branch L_{n}_f4"))
        E(label(f"L_{n}_f3"))
        stream(E, [seg(2, L0)], {11: poll_hook.sh} if not AB else None)
        E(label(f"L_{n}_f4"))
        done(its[2])
        if AB and CFG.get('abx', 1):
            E(salu('s_cmp_eq_u32', None, sMD2, 0)); E(raw(f"s_cbranch_scc1 L_{n}_exit")); E(raw(f"s_branch L_{n}_fb"))


def reducer(kind):
    p = Prog(); E = p.emit; n = kind; FL = CFG.get('fflags', 'sc1')
    PRIV[0] = (kind == 'A' or (kind == 'M' and bool(CFG.get('mpriv'))))
    def ST(code):
        if CFG['stamps'] != 2: return
        E(raw(f"s_memtime {sSTAMP}", wr=[sSTAMP])); E(raw("s_waitcnt lgkmcnt(0)")); E(salu('s_sub_u32', s(98), s(98), s(100)))
        E(shl(s(98), s(98), 6)); E(salu('s_or_b32', s(98), s(98), code))
        E(add(s(97), s(97), 16)); E(salu('s_min_u32', s(97), s(97), 11 * 16))
        E(raw(f"v_cmp_eq_u32 vcc, s97, {vLANE16}", 'valu', wr=['vcc'], rd=[s(97), vLANE16])); E(valu('v_mov_b32', v(27), s(98)))
        E(valu('v_cndmask_b32', vSTAMP, vSTAMP, v(27), 'vcc'))
    def offs(item, sX_):
        return [salu('s_and_b32', sT2, item, 3), shr(sC, item, 2), shl(sT3, sRB, 2), add(sT2, sT2, sT3), mul(sPART, sT2, PWAVE), add(sX_, sPART, sXW),
                shl(sT3, sC, 12), add(sT3, sT3, sPWv), add(sPART, sPART, sT3), shl(sT3, sC, 7), add(sX_, sX_, sT3)]
    k_ = [0]
    def ensure(item, s_, f_):
        L = f"L_{n}_en{k_[0]}"; k_[0] += 1
        if s_ and f_: E(salu('s_min_u32', sT2, sRS, sRF)); r = sT2
        else: r = sRS if s_ else sRF
        E(salu('s_cmp_lt_u32', None, item, r)); E(raw(f"s_cbranch_scc1 {L}"))
        E(smov(sI, item)); E(smov(sC, (1 if s_ else 0) | (2 if f_ else 0)))
        E(raw(f"s_call_b64 {sRET2}, L_{n}_sync"))
        E(salu('s_cmp_eq_u32', None, sTO, 0)); E(raw(f"s_cbranch_scc0 L_{n}_fb"))
        E(label(L))
    def done(item): E(raw(f"s_bitset0_b64 {sRM}, {item}", 'salu', wr=[sRM], rd=[sRM, item]))
    E(label(f"L_{n}_red"))
    if CFG.get('rdelay'):
        if n == 'A': (E(waitvm(0)), E(barrier()), E(valu('v_mov_b32', vPRG, 9)), E(bstore('buffer_store_dword', vPRG, vCT, sWS, 0, flags='sc1')))
        for _ in range({'A': 30, 'M': 24, 'F': 14}[n]): E(raw("s_sleep 16"))
    if not (n == 'F' and CFG.get('bal') == 2 and (CFG.get('fq', 1) and not CFG.get('fi'))): E(red_get(LDSC))
    if CFG.get('rdelay'): E(smov(sRS, 36)); E(smov(sRF, 36))
    E(valu('v_lshrrev_b32', vO, 4, vLANE16)); E(valu('v_and_b32', vXO, 7, vO)); E(valu('v_lshlrev_b32', vLD, 4, vXO))
    E(smov(sT2, 1152)); E(valu('v_mul_u32_u24', vXO, sT2, vXO))
    E(valu('v_lshrrev_b32', vA, 3, vO)); E(valu('v_lshl_add_u32', vX4, vA, 4, vXO))
    E(valu('v_bfe_u32', vA, vO, 3, 2)); E(valu('v_lshl_add_u32', vXO, vA, 3, vXO)); E(valu('v_lshl_add_u32', vLD, vA, 8, vLD))
    E(valu('v_lshrrev_b32', vA, 5, vO)); E(valu('v_lshl_add_u32', vXO, vA, 6, vXO)); E(valu('v_lshl_add_u32', vLD, vA, 11, vLD))
    E(mul(sXW, sWAVE, 8 * 1152)); E(shr(sPWv, sWAVE, 1)); E(shl(sPWv, sPWv, 10)); E(salu('s_and_b32', sT2, sWAVE, 1)); E(shl(sT2, sT2, 7)); E(add(sPWv, sPWv, sT2))
    if CFG.get('rcontig'): E(valu('v_mov_b32', vLD, vLANE16)); E(shl(sPWv, sWAVE, 10))
    L0, L1 = 72, 76 + 4 * NPART
    E(smov(sD0, 0x3f80)); E(smov(sD1, 0x3f800000))
    E(raw(f"s_mov_b64 {sRM}, 0", 'salu', wr=[sRM]))
    FOUR = CFG.get('four')
    sMID = s(48 + 0) if False else s(83)
    def nib(dst, tab, base):
        E(smov(sCD[0], sum(tab[i] << (4 * i) for i in range(8)))); E(smov(sCD[1], tab[8] | (tab[9] << 4)))
        E(shl(sT2, sROLE, 2)); E(s64('s_lshr_b64', sCD, sCD, sT2)); E(salu('s_and_b32', dst, sCD[0], 15))
        E(salu('s_cmp_eq_u32', None, dst, 15)); E(csel(dst, 63 - base, dst)); E(add(dst, dst, base))
    if n == 'A':
        E(smov(sIT[0], sROLE)); E(add(sIT[1], sROLE, NA))
        if CFG.get('bal'):
            nib(sIT[1], [x - 10 for x in BAL2], 10); nib(sIT[2], [x - 21 for x in BAL3], 21); nib(sMID, [min(x - BMB(), 15) for x in BALM], BMB())
            E(raw(f"s_bitset1_b64 {sRM}, {sMID}", 'salu', wr=[sRM], rd=[sRM, sMID]))
        elif CFG.get('asg') == 2: E(add(sIT[2], sROLE, 16))
        elif CFG.get('asg') == 3:
            E(add(sMID, sROLE, 16)); E(raw(f"s_bitset1_b64 {sRM}, {sMID}", 'salu', wr=[sRM], rd=[sRM, sMID]))
            E(salu('s_and_b32', sT2, sROLE, 1)); E(shr(sIT[2], sROLE, 1)); E(add(sIT[2], sIT[2], 24)); E(salu('s_cmp_eq_u32', None, sT2, 0)); E(csel(sIT[2], sIT[2], 63))
        elif CFG.get('l844'): E(add(sIT[2], sROLE, 28))
        elif FOUR:
            nib(sMID, [0, 15, 1, 2, 15, 3, 4, 5, 6, 7], 20); nib(sIT[2], [0, 1, 15, 2, 3, 15, 4, 5, 6, 7], 28)
            E(raw(f"s_bitset1_b64 {sRM}, {sMID}", 'salu', wr=[sRM], rd=[sRM, sMID]))
        else:
            nib(sIT[2], [0, 1, 15, 2, 3, 15, 4, 5, 6, 7], 28)
            E(salu('s_cmp_eq_u32', None, sROLE, 2)); E(csel(sIT[2], 23 if CFG.get('m3') else 22, sIT[2])); E(salu('s_cmp_eq_u32', None, sROLE, 5)); E(csel(sIT[2], 24 if CFG.get('m3') else 21, sIT[2]))
            if CFG.get('nof'):
                nib(sMD2, CFG['nof'], 23)
                E(raw(f"s_bitset1_b64 {sRM}, {sMD2}", 'salu', wr=[sRM], rd=[sRM, sMD2]))
        its = sIT
    elif CFG.get('asg') == 2:
        if n == 'M': E(add(sIT[0], sROLE, 16)); E(add(sIT[1], sROLE, 20)); its = sIT[:2]
        else: E(add(sIT[0], sROLE, 20)); its = sIT[:1]
    elif CFG.get('asg') == 3:
        E(add(sIT[0], sROLE, 20)); its = sIT[:1]
    elif CFG.get('l844'):
        if n == 'M': E(add(sIT[0], sROLE, 8)); E(add(sIT[1], sROLE, 12)); its = sIT[:2]
        else: E(add(sIT[0], sROLE, 12)); its = sIT[:1]
    elif n == 'M' and CFG.get('m3') == 2: E(smov(sIT[0], CFG.get('mi', (20, 21))[0])); E(smov(sIT[1], CFG.get('mi', (20, 21))[1])); its = sIT[:2]
    elif n == 'F' and CFG.get('fi'):
        t_ = [min(x, 40) - 25 for x in CFG['fi']]
        E(smov(sT2, sum(t_[i] << (4 * i) for i in range(5)))); E(salu('s_sub_u32', sT3, sROLE, 11)); E(shl(sT3, sT3, 2))
        E(shr(sT2, sT2, sT3)); E(salu('s_and_b32', sT2, sT2, 15)); E(add(sIT[0], sT2, 25)); its = sIT[:1]
    elif n == 'M' and CFG.get('m3'): E(smov(sIT[0], CFG.get('mb', 20))); E(smov(sIT[1], CFG.get('mb', 20) + 1)); E(smov(sIT[2], CFG.get('mb', 20) + 2)); its = sIT
    elif n == 'M': E(smov(sIT[0], 20)); its = sIT[:1]
    else:
        E(add(sIT[0], sROLE, 12)); its = sIT[:1]
    if (FOUR and n != 'A') or (CFG.get('nof') and n == 'F'):
        its = []
        E(waitvm(0)); E(red_poll()[1]); E(waitvm(0)); E(raw(f"s_branch L_{n}_fin"))
    if (CFG.get('bal') or CFG.get('m3')) and n == 'F':
        if CFG.get('fi'): E(salu('s_cmp_lt_u32', None, sIT[0], 36))
        else: E(salu('s_cmp_ge_u32', None, sROLE, 13 if CFG.get('bal') != 2 else 16))
        E(raw(f"s_cbranch_scc1 L_{n}_hi"))
        E(waitvm(0)); E(ab_load() if CFG.get('abn') else red_poll()[1]); E(waitvm(0)); E(raw(f"s_branch L_{n}_fin")); E(label(f"L_{n}_hi"))
    for it in its: E(raw(f"s_bitset1_b64 {sRM}, {it}", 'salu', wr=[sRM], rd=[sRM, it]))
    E(salu('s_and_b32', sRM[1], sRM[1], 15))
    def refresh(wait, ab=False):
        L = f"L_{n}_rf{k_[0]}"; k_[0] += 1
        E(salu('s_cmp_eq_u32', None, sWAVE, 0)); E(raw(f"s_cbranch_scc0 {L}"))
        E(waitvm(wait)); E(red_eval())
        if ab: E(ab_eval()); E(salu('s_or_b32', sT2, sAB[0], sAB[1])); E(csel(sTO, 1, 0))
        E(red_pub(sPAR))
        E(label(L)); E(barrier()); E(red_get(sPAR)); E(salu('s_xor_b32', sPAR, sPAR, 12))
        if ab: E(smov(sMD2, sTO)); E(smov(sTO, 0))
    ALLD = lambda L, sx: ld_part(L, range(NPART), FL) + ld_x(L, sx)
    LATE = n in CFG.get('lateflag', 'A') + CFG.get('pre', '')
    sPT = [s(47), s(67 - 2), s(70)]
    def offs2(i): return offs(its[i], sXP[i]) + ([smov(sPT[i], sPART)] if i else [])
    def final_flag(wait):
        E(waitvm(wait)); E(barrier())
        E(valu('v_mov_b32', vPRG, 9))
        if CFG.get('rep') and n in 'FM': E(bstore('buffer_store_dword', vPRG, vCR, sWS, 0, flags='sc1'))
        E(bstore('buffer_store_dword', vPRG, vCT, sWS, 0, flags='sc1'))
        return 2 if (CFG.get('rep') and n in 'FM') else 1
    def poll_hook(_): E(red_poll()[1]); return 2
    def poll_sh(_): E(red_poll(True)[1]); return 2
    poll_hook.sh = poll_sh
    seg = lambda i, L, ks=range(NPART), wx=True, fin=True: (L, sPT[i], sXP[i], ks, wx, fin)
    ni = len(its)
    for i in reversed(range(ni)): E(offs2(i))
    two = min(ni, 2)
    if ni: body_items(E, n, its, two, ni, ensure, refresh, done, ST, seg, final_flag, poll_hook, LATE, L0, L1, FOUR, sMID, offs, sPT)
    E(label(f"L_{n}_fin"))
    E(salu('s_cmp_eq_u32', None, sWAVE, 0)); E(raw(f"s_cbranch_scc0 L_{n}_b4"))
    if CFG.get('abn'): E(ab_eval())
    else:
        E(waitvm(2))
        E(raw(f"v_cmp_ne_u32 vcc, 0, {vP}", 'valu', wr=['vcc'], rd=[vP])); E(nop(1))
        E(raw(f"s_lshr_b64 {sAB}, vcc, {NPART + 1}", 'salu', wr=[sAB], rd=['vcc'])); E(salu('s_and_b32', sAB[1], sAB[1], 15))
    E(salu('s_or_b32', sT2, sAB[0], sAB[1])); E(csel(sTO, 1, 0))
    E(salu('s_cmp_ge_u32', None, sOK, 16)); E(csel(sTO, sTO, 1)); E(red_pub(sPAR))
    E(label(f"L_{n}_b4")); E(barrier()); E(red_get(sPAR)); E(salu('s_xor_b32', sPAR, sPAR, 12))
    E(salu('s_cmp_eq_u32', None, sTO, 0)); E(raw(f"s_cbranch_scc1 L_{n}_exit"))
    E(label(f"L_{n}_fb"))
    E(waitvm(0))
    E(salu('s_cmp_eq_u32', None, sWAVE, 0)); E(raw(f"s_cbranch_scc0 L_{n}_fb2"))
    if CFG.get('abn'):
        E(raw(f"s_mov_b64 {sCD}, {sRM}", 'salu', wr=[sCD], rd=[sRM])); E(valu('v_mov_b32', vA, 1))
        E(valu('v_lshlrev_b32', vO, 4, vLANE16)); E(valu('v_mov_b32', vIT, OOB))
        E(raw(f"v_cmp_gt_u32 vcc, 0x100, {vLANE16}", 'valu', wr=['vcc'], rd=[vLANE16])); E(valu('v_cndmask_b32', vO, vIT, vO, 'vcc'))
        E(label(f"L_{n}_mk"))
        E(raw(f"s_cmp_eq_u64 {sCD}, 0", 'salu', rd=[sCD])); E(raw(f"s_cbranch_scc1 L_{n}_mk1"))
        E(raw(f"s_ff1_i32_b64 {sT2}, {sCD}", 'salu', wr=[sT2], rd=[sCD])); E(raw(f"s_bitset0_b64 {sCD}, {sT2}", 'salu', wr=[sCD], rd=[sCD, sT2]))
        E(raw(f"s_lshl2_add_u32 {sT2}, {sT2}, {sPB}", 'salu', wr=[sT2], rd=[sT2, sPB])); E(add(sT2, sT2, ABN))
        E(bstore('buffer_store_dword', vA, vO, sWS, sT2, flags='sc1')); E(raw(f"s_branch L_{n}_mk"))
        E(label(f"L_{n}_mk1")); E(waitvm(0))
        E(red_poll()[0]); E(waitvm(0))
        E(valu('v_mov_b32', vO, OOB)); E(smov(sT2, 36 * 4)); E(raw(f"v_writelane_b32 {vO}, {sT2}, 1", 'valu', wr=[vO], rd=[sT2, vO]))
        E(bstore('buffer_store_dword', vA, vO, sWS, sAV_, flags='sc1'))
        E(valu('v_mov_b32', vIT, 0)); E(valu('v_mov_b32', vO, OOB)); E(raw(f"v_writelane_b32 {vO}, 0, 0", 'valu', wr=[vO], rd=[vO]))
        E(I(f"buffer_atomic_add {vIT}, {vO}, {sWS}, {sAV_} offen sc1", 'vstore', rd=vIT.regs() + vO.regs() + sWS.regs() + sAV_.regs(), units=3))
        E(waitvm(0)); E(ab_load()); E(red_poll(True)[1]); E(waitvm(0)); E(valu('v_readfirstlane_b32', sOK, vD)); E(red_eval()); E(ab_eval())
    else:
        E(s64('s_lshl_b64', sCD, sRM, NPART + 1)); E(valu('v_mov_b32', vO, OOB)); E(valu('v_mov_b32', vA, 1))
        E(valu('v_cndmask_b32', vO, vO, vL4, sCD)); E(bstore('buffer_store_dword', vA, vO, sWS, sPB, flags='sc1')); E(waitvm(0))
        E(red_poll()[0]); E(waitvm(0)); E(red_poll(True)[1]); E(waitvm(0)); E(valu('v_readfirstlane_b32', sOK, vD)); E(red_eval())
    E(salu('s_min_u32', sT2, sRS, sRF)); E(salu('s_cmp_ge_u32', None, sOK, 16)); E(csel(sT2, sT2, 0))
    E(salu('s_bfm_b64', sCD, sT2, 0, scc_w=False)); E(s64('s_or_b64', sAB, sAB, sRM)); E(s64('s_and_b64', sAB, sAB, sCD))
    E(label(f"L_{n}_fb1"))
    E(raw(f"s_ff1_i32_b64 {sRS}, {sAB}", 'salu', wr=[sRS], rd=[sAB])); E(salu('s_and_b32', sRS, sRS, 255))
    E(raw(f"s_bitset0_b64 {sAB}, {sRS}", 'salu', wr=[sAB], rd=[sAB, sRS])); E(red_pub(sPAR))
    E(label(f"L_{n}_fb2")); E(barrier()); E(red_get(sPAR)); E(salu('s_xor_b32', sPAR, sPAR, 12))
    E(salu('s_cmp_ge_u32', None, sRS, 36)); E(raw(f"s_cbranch_scc1 L_{n}_exit"))
    E(offs(sRS, sXP[0])); E(ld_part(L0, range(NPART), FL) + ld_x(L0, sXP[0])); E(waitvm(0)); proc_all(E, L0, sXP[0], 0, [])
    E(salu('s_cmp_eq_u32', None, sWAVE, 0)); E(raw(f"s_cbranch_scc1 L_{n}_fb1")); E(raw(f"s_branch L_{n}_fb2"))
    E(label(f"L_{n}_exit"))
    ST(60)
    if CFG['stamps']: E(raw(f"s_setpc_b64 {sRET}"))
    else: E(raw("s_endpgm"))
    E(label(f"L_{n}_sync"))
    E(salu('s_cmp_eq_u32', None, sWAVE, 0)); E(raw(f"s_cbranch_scc0 L_{n}_sy2"))
    E(smov(sSP, 0)); E(red_poll()[1][0])
    E(label(f"L_{n}_sy0"))
    E(salu('s_cmp_ge_u32', None, sOK, 16)); E(raw(f"s_cbranch_scc1 L_{n}_sy1"))
    E(red_poll()[0]); E(waitvm(0)); E(valu('v_readfirstlane_b32', sOK, vD))
    E(salu('s_cmp_ge_u32', None, sOK, 16)); E(raw(f"s_cbranch_scc0 L_{n}_syw"))
    E(label(f"L_{n}_sy1"))
    E(red_poll()[1][1]); E(red_poll()[1][0]); E(waitvm(1)); E(red_eval())
    E(salu('s_bitcmp1_b32', None, sC, 0)); E(csel(sT2, sRS, 36)); E(salu('s_bitcmp1_b32', None, sC, 1)); E(csel(sT3, sRF, 36))
    E(salu('s_min_u32', sT2, sT2, sT3)); E(salu('s_cmp_lt_u32', None, sI, sT2)); E(raw(f"s_cbranch_scc1 L_{n}_syp"))
    E(label(f"L_{n}_syw"))
    E(add(sSP, sSP, 1)); E(salu('s_cmp_gt_u32', None, sSP, CFG.get('spin', 4000))); E(csel(sTO, 1, 0)); E(raw(f"s_cbranch_scc1 L_{n}_syp"))
    E(raw(f"s_sleep {CFG.get('sleep', 1)}")); E(raw(f"s_branch L_{n}_sy0"))
    E(label(f"L_{n}_syp"))
    E(red_pub(sPAR))
    E(label(f"L_{n}_sy2")); E(barrier()); E(red_get(sPAR)); E(salu('s_xor_b32', sPAR, sPAR, 12))
    E(raw(f"s_setpc_b64 {sRET2}"))
    return p

def reduce_items(p, ni, sPART_, sXO_, srdP, srdX, srdO, vL16, vXO_, base, flags, mid=None):
    E = p.emit
    SA = base; FA = base + 8; T = base + 16
    Ls = [base + 24 + 72 * i for i in range(ni)]
    for k in range(NPART):
        if k: E(add(sPART_, sPART_, 16 * PART - (PWAVE if ni == 2 else 0)))
        for i in range(ni):
            if i: E(add(sPART_, sPART_, PWAVE))
            E(bload('buffer_load_dwordx4', v(Ls[i] + 4 * k, 4), vL16, srdP, sPART_, flags=flags))
    for i in range(ni):
        XR = Ls[i] + 68
        if i: E(add(sT2, sXO_, 32 * 1152))
        so = sT2 if i else sXO_
        E(bload('buffer_load_dwordx2', v(XR, 2), vXO_, srdX, so)); E(bload('buffer_load_dwordx2', v(XR + 2, 2), vXO_, srdX, so, 32))
    ex = 0
    if mid: mid(); ex = 1
    E(smov(sT3, 0xffff0000))
    for i in range(ni):
        L = Ls[i]; XR = L + 68
        for k in range(NPART):
            if i == 0: E(waitvm((NPART - 1 - k) * ni + (ni - 1) + 2 * ni + ex))
            acc = SA if k < 11 else FA
            for q in range(4):
                x = v(L + 4 * k + q)
                if k in (0, 11):
                    E(valu('v_lshlrev_b32', v(acc + 2 * q), 16, x)); E(valu('v_and_b32', v(acc + 2 * q + 1), sT3, x))
                else:
                    tp = v(T + 2 * q, 2)
                    E(valu('v_lshlrev_b32', tp[0], 16, x)); E(valu('v_and_b32', tp[1], sT3, x))
            if k not in (0, 11):
                for q in range(4): E(valu('v_pk_add_f32', v(acc + 2 * q, 2), v(acc + 2 * q, 2), v(T + 2 * q, 2)))
        for e in range(8): E(valu('v_exp_f32', v(T + e), v(FA + e)))
        for e in range(8): E(valu('v_add_f32', v(T + e), 1.0, v(T + e)))
        for e in range(8): E(valu('v_rcp_f32', v(T + e), v(T + e)))
        for e in range(8): E(valu('v_mul_f32', v(FA + e), f2u(-math.log(2.0)), v(FA + e)))
        for e in range(8): E(valu('v_mul_f32', v(FA + e), v(FA + e), v(T + e)))
        if i == 0: E(waitvm(ex if ni == 1 else 0))
        for q in range(4):
            E(valu('v_lshlrev_b32', v(T + 2 * q), 16, v(XR + q))); E(valu('v_and_b32', v(T + 2 * q + 1), sT3, v(XR + q)))
        for e in range(8): E(valu('v_fma_f32', v(T + e), v(SA + e), v(FA + e), v(T + e)))
        for q in range(4): E(valu('v_cvt_pk_bf16_f32', v(XR + q), v(T + 2 * q), v(T + 2 * q + 1)))
        if i: E(add(sXO_, sXO_, 32 * 1152))
        E(bstore('buffer_store_dwordx2', v(XR, 2), vXO_, srdO, sXO_)); E(bstore('buffer_store_dwordx2', v(XR + 2, 2), vXO_, srdO, sXO_, 32))

def build_role(kind, vm_before):
    R = Role(kind)
    CFG['shape'] = CFG.get('shapes', {}).get(kind, CFG['shape0'])
    R.ring = {'F': (216, 9), 'A': (192, 16), 'M': (200, 8)}[kind]
    if kind == 'M': R.depth = 7
    nl = CFG.get('pfl', 16)
    MS = CFG['shape'] == 'M'
    if MS:
        R.add_p1_unit, R.add_p1_half, R.epi_silu, R.epi_q = R.add_p1_unitM, R.add_p1_halfM, R.epi_siluM, R.epi_qM
    P2M = 'q16' if MS else 'pi'
    if kind == 'F' and CFG.get('l844'):
        R.ring = (208, 12); R.depth = 7
        for u in range(13): R.add_p1_unit(u, sW1, sHA, sHC, 9216, u == 0, a(16 * u, 16), R.epi_silu, last=(u == 12),
                                          inreg=[pf_run(sW2, sPF2, 832 * 1152, 10) if u >= 1 else None, pf_row('F', sW1)])
        needs = {t: [('reg', 8 * t)] for t in range(26)}
        dm = [dma_w(sW2, sFA, 0, 1152, sFC, 0), dma_w(sW2, sFA, 288 * 1152, 1152, sFC, 288 * 1152), dma_w(sW2, sFA, 576 * 1152, 1152)]
        R.add_p2([(a(0, 208), [288, 288, 256], dm, needs, sSt)], [add(x, x, 128) for x in (sFA, sFC)], pre0=lambda: set_offw(1152, P2M))
        for st in R.stages[-27:]: st.ring = (208, 12, 'restart')
    elif kind == 'M' and CFG.get('l844'):
        R.ring = (208, 8); R.depth = 7
        Q = [a(80, 32), a(112, 32)]; OA = a(144, 64)
        def mpf(u):
            if u == 0: return pf_row('M', sWQ)
            if u == 1: return lambda: pf_row_setup('M', 9216, 18, sPF1, 0) + [pf_row('M', sW1)()[1]]
            if u <= 5: return pf_row('M', sW1)
            return None
        for u in range(4): R.add_p1_unit(u, sWQ, sQA, sQC, 8192, u == 0, a(80 + 16 * u, 16), R.epi_q, key='Q', inreg=[None, mpf(u)])
        for u in range(5): R.add_p1_unit(4 + u, sW1, sHA, sHC, 9216, u == 0, a(16 * u, 16), R.epi_silu, pre=(lambda: set_offw(9216, 'S')) if u == 0 else None,
                                         last=(u == 4), key='H', inreg=[None, mpf(4 + u)])
        Ha = dict(i=0, Q=Q[0], S=Sreg, P=Preg, O=OA, LM=v(230, 8), OF=lambda kk: OA.sub(16 * kk, 8),
                  need_qk=[('acc', 80), ('acc', 96)], need_pv=[('acc', 48 + 16 * i) for i in range(4)])
        Hb = dict(i=1, Q=Q[1], S=[v(80, 16), v(96, 16)], P=[v(48, 8), v(56, 8)], O=v(160, 64), LM=v(64, 8), OF=lambda kk: OA.sub(16 * kk + 8, 8))
        R.add_pa_g([[Ha, Hb]])
        R.stages[-9].mf[-1].need.append(('acc', 48))
        R.heads = [(Ha, sPFa), (Hb, sPFa)]
        R.add_p2m(a(0, 80), [H['OF'](kk) for H in (Ha, Hb) for kk in range(4)],
                  [dma_w(sW2, sFA, 0, 1152, sFC, 0), dma_w(sWO, sOA, 0, 1152, sFC, 32 * 1152, srdC=sW2)],
                  [add(x, x, 128) for x in (sOA, sFA, sFC)], pre0=lambda: set_offw(1152, P2M))
        for st in R.stages[-18:]: st.ring = (208, 12, 'restart')
        k = pf_sched(R, 15, sK, sPFa, 131072, 16); k = pf_sched(R, k, sV, sPFa, 131072, 16)
        pf_sched(R, 17, sWO, sPFc, 256 * 1152, 36); pf_sched(R, 18, sW2, sPF2, 320 * 1152, 45)
    elif kind == 'F':
        for u in range(13): R.add_p1_unit(u, sW1, sHA, sHC, 9216, u == 0, a(16 * u, 16), R.epi_silu, last=(u == 12), inreg=[pf_run(sW2, sPF2, 832 * 1152, 10) if u >= 1 else None, pf_row('F', sW1) if CFG['pf'] >= 3 else None] if CFG['pf'] else None)
        R.add_p1_half(13, a(208, 8))
        needs = {t: [('reg', 8 * t)] for t in range(27)}
        dm = [dma_w(sW2, sFA, 0, 1152, sFC, 0), dma_w(sW2, sFA, 288 * 1152, 1152, sFC, 288 * 1152), dma_w(sW2, sFA, 576 * 1152, 1152, sFS, 0)]
        R.add_p2([(a(0, 216), [288, 288, 288], dm, needs, sSt)], [add(x, x, 128) for x in (sFA, sFC, sFS)], pre0=lambda: set_offw(1152, P2M))
        if CFG['pf']:
            pf_sched(R, 26, sW2, sPF2h, 32 * 1152, 8)
    elif kind == 'A' and CFG.get('pair'):
        OA = a(96, 64)
        Ha = dict(i=0, Q=a(0, 32), S=Sreg, P=Preg, O=OA, LM=v(230, 8), OF=lambda kk: OA.sub(16 * kk, 8),
                  need_qk=[('acc', 48), ('acc', 64)], need_pv=[('acc', 48 + 16 * i) for i in range(4)])
        Hb = dict(i=1, Q=a(32, 32), S=[v(48, 16), v(64, 16)], P=[v(80, 8), v(88, 8)], O=v(160, 64), LM=v(96, 8), OF=lambda kk: OA.sub(16 * kk + 8, 8))
        Hc = dict(i=2, Q=a(64, 32), S=Sreg, P=Preg, O=v(48, 64), LM=v(16, 8), OF=lambda kk: a(160 + 8 * kk, 8), need_pv=[('lm', 0)])
        Ha['need_qk'] += [('acc', 80)]
        pj = {1: sJQ}
        for u in range(6):
            R.add_p1_unit(u, sWQ, sQA, sQC, 8192, u == 0, a(16 * u, 16), R.epi_q, last=(u == 5), step=sJQ if u == 4 else 128,
                          inreg=[pf_run(sWO, sPFc, 384 * 1152, 11) if u >= 1 else None, pf_row('A', sWQ, pj.get(u, 128)) if CFG['pf'] >= 3 and u < 3 else None] if CFG['pf'] else None)
        R.add_pa_g([[Ha, Hb], [Hc]])
        Bf = [H['OF'](kk) for H in (Ha, Hb, Hc) for kk in range(4)]
        needs = {0: [('fin', 0), ('fin', 1)], 8: [('fin', 2)]}
        dm = [dma_w192(sWO, 0), dma_w192(sWO, 0, sOA1, sOB1)]
        R.add_p2([(Bf, [192, 192], dm, needs, sSt)], [add(x, x, 128) for x in (sOA, sOB, sOA1, sOB1)], pre0=lambda: set_offw(1152, P2M))
        R.heads = [(Ha, sPFa), (Hb, sPFa), (Hc, sPFb)]
        if CFG['pf'] >= 2:
            pf_sched(R, 10, sK, sPFa, 131072, 16); pf_sched(R, 10, sV, sPFa, 131072, 16)
            pf_sched(R, 12, sK, sPFb, 131072, 16); pf_sched(R, 12, sV, sPFb, 131072, 16)
    elif kind == 'A':
        Q = [a(32 * e, 32) for e in range(3)]; O = [a(96 + 32 * e, 32) for e in range(3)]
        for u in range(6): R.add_p1_unit(u, sWQ, sQA, sQC, 8192, u == 0, a(16 * u, 16), R.epi_q, last=(u == 5), inreg=[pf_run(sWO, sPFc, 384 * 1152, 11) if u >= 1 else None, pf_row('A', sWQ) if CFG['pf'] >= 3 and u < 5 else None] if CFG['pf'] else None)
        R.add_pa(Q, O)
        needs = {4 * e: [('fin', e)] for e in range(3)}; needs[0].append(('S', 2, 15))
        dm = [dma_w192(sWO, b * 192 * 1152) for b in range(2)]
        R.add_p2([(a(96, 96), [192, 192], dm, needs, sSt)], [add(sOA, sOA, 128), add(sOB, sOB, 128)], pre0=lambda: set_offw(1152, P2M))
        if CFG['pf']:
            if CFG['pf'] >= 2:
                pf_sched(R, 10, sK, sPFa, 131072, 16); pf_sched(R, 10, sV, sPFa, 131072, 16)
                pf_sched(R, 12, sK, sPFb, 131072, 16); pf_sched(R, 12, sV, sPFb, 131072, 16)
    else:
        Q = [a(136 + 32 * e, 32) for e in range(2)]; O = [a(72 + 32 * e, 32) for e in range(2)]
        def mpf(u):
            if u == 0: return pf_row('M', sWQ)
            if u == 1: return lambda: pf_row_setup('M', 9216, 18, sPF1, 0) + [pf_row('M', sW1)()[1]]
            if u <= 4: return pf_row('M', sW1)
            if u == 5: return lambda: [smov(sPW, sPF1h), pf_row('M', sW1)()[1]]
            return None
        for u in range(4): R.add_p1_unit(u, sWQ, sQA, sQC, 8192, u == 0, a(136 + 16 * u, 16), R.epi_q, key='Q', inreg=[None, mpf(u)] if CFG['pf'] >= 3 else None)
        for u in range(4): R.add_p1_unit(4 + u, sW1, sHA, sHC, 9216, u == 0, a(16 * u, 16), R.epi_silu, pre=(lambda: set_offw(9216, 'M' if MS else 'S')) if u == 0 else None, last=(u == 3), key='H', inreg=[None, mpf(4 + u)] if CFG['pf'] >= 3 else None)
        R.add_p1_half(8, a(64, 8))
        BO = a(72, 64)
        if CFG.get('pair'):
            Ha = dict(i=0, Q=Q[0], S=Sreg, P=Preg, O=BO, LM=v(230, 8), OF=lambda kk: BO_.sub(16 * kk, 8),
                      need_qk=[('acc', 48 + 16 * i) for i in range(3)], need_pv=[('acc', 48 + 16 * i) for i in range(4)])
            Hb = dict(i=1, Q=Q[1], S=[v(64, 16), v(48, 16)], P=[v(80, 8), v(88, 8)], O=v(160, 64), LM=v(96, 8), OF=lambda kk: BO_.sub(16 * kk + 8, 8))
            BO_ = BO
            if CFG.get('mfree', 0):
                Hb['S'] = [v(64, 16), v(238, 16)]; Ha['need_qk'] = [('acc', 64), ('acc', 80)]; Ha['need_pv'] = [('acc', 96)]
                R.ntmp = 12; R.ones = v(28, 4)
                for st_, idx in ((R.stages[-2], -1), (R.stages[-1], -1)):
                    m_ = st_.mf[idx]; f_ = m_.after
                    m_.after = (lambda G, f_=f_: (setattr(R, 'low', True), f_(G), setattr(R, 'low', False)))
            R.add_pa_g([[Ha, Hb]])
            BO = [H['OF'](kk) for H in (Ha, Hb) for kk in range(4)]
            R.heads = [(Ha, sPFa), (Hb, sPFa)]
        else: R.add_pa(Q, O)
        nf = {t: [('reg', 8 * t)] for t in range(9)}; nf[0].append(('S', 1, 15))
        R.add_p2([(a(0, 72), [288], [dma_w(sW2, sFA, 0, 1152, sFS, 0)], nf, sSt2),
                  (BO, [256], [dma_w(sWO, sOA, 0, 1152)], {0: [('fin', 0)], 4: [('fin', 1)]}, sSt)],
                 [add(x, x, 128) for x in (sOA, sFA, sFS)], pre0=lambda: set_offw(1152, P2M))
        for st in R.stages[-18:]: st.ring = (200, 14, 'restart')
        if CFG['pf']:
            if CFG['pf'] >= 2:
                k = pf_sched(R, 14, sK, sPFa, 131072, 16); k = pf_sched(R, k, sV, sPFa, 131072, 16)
            pf_sched(R, 16, sWO, sPFc, 256 * 1152, 36); pf_sched(R, 23 if not CFG.get('pair') else 17, sW2, sPF2, 256 * 1152, 36); pf_sched(R, 24 if not CFG.get('pair') else 17, sW2, sPF2h, 32 * 1152, 8)
    if CFG.get('msum') and not MS and kind in 'AM':
        st0 = [st for st in R.stages if st.name == 'PAh0s0'][0]
        m0_ = st0.mf[8]
        if not hasattr(R, 'ones'): m0_.need += [('acc', 48 + 16 * i) for i in range(4)]
        m0_.pre = lambda: R.p.emit([valu('v_mov_b32', getattr(R, 'ones', vONES)[i], 0x3f803f80) for i in range(4)])
    if CFG.get('recode') and CFG['fused']:
        names = [st.name for st in R.stages]
        nS = len(names)
        R.pf.setdefault(nS - 2, []).append(pf_code(f"L_{kind}_red", f"L_role{kind}_end", 4))
        p2 = names.index('P2c0b0')
        R.stages[p2].label = f"L_{kind}_p2"
        R.pf.setdefault(p2 - 2, []).append(pf_code(f"L_{kind}_p2", f"L_{kind}_p2+20480", 5))
        if kind in 'AM':
            pa = names.index('PAmini'); R.stages[pa].label = f"L_{kind}_pa"
            R.pf.setdefault(pa - 1, []).append(pf_code(f"L_{kind}_pa", f"L_{kind}_p2", 8))
    if CFG.get('hot') and CFG['fused'] and kind in CFG['hot']:
        names = [st.name for st in R.stages]
        last = names.index('P2c8b0'); R.stages[last].label = f"L_{kind}_c8"
        def setup():
            o = [raw(f"s_getpc_b64 {sPC}", 'salu', wr=[sPC]), label(f"L_{kind}_hp"),
                 salu('s_add_u32', sPC[0], sPC[0], f"L_{kind}_c8-L_{kind}_hp"), salu('s_addc_u32', sPC[1], sPC[1], 0, scc_r=True),
                 valu('v_bfe_u32', vPF2, vTID, 16, 5), valu('v_and_b32', vPF, 63, vTID), valu('v_min_u32', vPF, 1, vPF),
                 valu('v_lshl_add_u32', vPF, vPF2, 1, vPF), valu('v_lshlrev_b32', vPF, 7, vPF)]
            if kind == 'F': o += pf_row_setup(kind, 1152, 26, sPF2, 2 * 128)
            return o
        def rep_code():
            return [I(f"global_load_dword {vDUM}, {vPF}, {sPC}", 'vload', wr=vDUM.regs(), rd=vPF.regs() + sPC.regs(), units=3, tag='pf')]
        R.pf.setdefault(names.index('P2c1b0'), []).append(setup)
        for c in range(2, 8):
            k0 = names.index(f'P2c{c}b0')
            R.pf.setdefault(k0, []).append(rep_code)
            if kind == 'F': R.pf.setdefault(k0 + 1, []).append(pf_row(kind, sW2))
    R.slow = []
    if kind in 'AM' and CFG.get('slow', True) and CFG.get('pair'):
        P2s = [st for st in R.stages if st.name.startswith('P2c0')]
        hl = [(H['i'], H['Q'], (H['OF'], kv)) for (H, kv) in R.heads]
        if kind == 'A':
            P2s[0].mf[0].pre = slow_check(R, hl[:2], (112, 160))
            [m for m in P2s[1].mf if ('fin', 2) in m.need][0].pre = slow_check(R, hl[2:], (160, 48))
        else:
            m_ = P2s[1].mf[4 if CFG.get('l844') else 0]
            m_.need += [('fin', 0), ('fin', 1)]
            m_.pre = slow_check(R, hl, (160, 48))
    elif kind in 'AM' and CFG.get('slow', True):
        P2s = [st for st in R.stages if st.name.startswith('P2c0')]
        if kind == 'A':
            P2s[0].mf[0].need += [('fin', 1)]
            P2s[0].mf[0].pre = slow_check(R, [(0, Q[0], O[0]), (1, Q[1], O[1])], 112)
            m_ = [m for m in P2s[1].mf if ('fin', 2) in m.need][0]
            m_.pre = slow_check(R, [(2, Q[2], O[2])], 160)
        else:
            P2s[1].mf[0].need += [('fin', 1)]
            P2s[1].mf[0].pre = slow_check(R, [(0, Q[0], O[0]), (1, Q[1], O[1])], 160)
    if CFG['fused']:
        add_signals(R)
        def early0():
            it = red_setup(kind) + red_poll()[0]
            it[-1].tag = 'cnt'
            return it
        def early():
            assert R.cnt_covered()
            PRIV[0] = (kind == 'A' or (kind == 'M' and bool(CFG.get('mpriv'))))
            it = red_poll()[1]
            it[-1].tag = 'poll'
            return it
        def covered():
            idx = max(i for i, x in enumerate(R.p.ins) if x.tag == 'cnt'); n = 0
            for x in R.p.ins[idx + 1:]:
                if x.kind in VMEMK: n += 1
                if x.txt.startswith('s_waitcnt vmcnt(') and int(x.txt[16:-1]) <= n: return True
            return False
        R.cnt_covered = covered
        if kind == 'A' and CFG.get('l2pf'):
            nm = [st.name for st in R.stages]
            R.pf.setdefault(nm.index('P2c1b0'), []).append(l2pf_setup)
            for (cw, dlt) in CFG['l2pf']:
                kp = nm.index(f'P2c{cw}b0')
                for j in range(4): R.pf.setdefault(kp, []).append(lambda j=j: l2pf_poll()[j])
                R.stages[kp + 2].cover_tag = 'gp'
                def gate(j, dlt=dlt):
                    def f():
                        it = l2pf_issue(R, dlt)[j]
                        if j == 0:
                            it = it + [valu('v_readfirstlane_b32', sOK, vD), salu('s_cmp_ge_u32', None, sOK, 16), csel(sC, sC, 15)]
                        return it
                    return f
                for j in range(4): R.pf.setdefault(kp + 2, []).append(gate(j))
        R.pf.setdefault([st.name for st in R.stages].index('P2c1b0' if kind == 'F' else 'P2c0b1'), []).append(early0)
        if kind in CFG.get('pre', ''):
            R.pf.setdefault(len(R.stages) - 3, []).append(early)
            R.stages[-1].pre_bar = lambda: red_early(R.p, kind)
        elif not (kind == 'F' and CFG.get('bal') == 2 and (CFG.get('fq', 1) and not CFG.get('fi'))): R.pf.setdefault(len(R.stages) - CFG.get('pollw', 1), []).append(early)
    role_prologue(R, vm_before)
    R.run()
    if CFG['fused']:
        p = R.p
        if kind == 'F' and CFG.get('bal') == 2 and (CFG.get('fq', 1) and not CFG.get('fi')):
            p.emit([smov(sRS, 0), smov(sRF, 0), smov(sTO, 0), smov(sPAR, LDSC + 4), valu('v_readfirstlane_b32', sOK, vD)])
        elif kind not in CFG.get('pre', ''): red_early(p, kind)
        if kind in CFG.get('pre', ''): pass
        elif kind in CFG.get('lateflag', 'A'): p.emit(barrier())
        else:
            p.emit(waitvm(0)); p.emit(barrier())
            p.emit(valu('v_mov_b32', vPRG, 9))
            if CFG.get('rep'): p.emit(bstore('buffer_store_dword', vPRG, vCR, sWS, 0, flags='sc1'))
            p.emit(bstore('buffer_store_dword', vPRG, vCT, sWS, 0, flags='sc1'))
        if CFG['stamps']: R.stamp(len(R.stages) - 1)
        p.emit(raw(f"s_call_b64 {sRET}, L_{kind}_red"))
    if CFG['stamps']:
        p = R.p
        R.stamp(len(R.stages))
        p.emit(raw("s_memrealtime s[98:99]", wr=[s(98, 2)])); p.emit(raw("s_waitcnt lgkmcnt(0)"))
        p.emit(raw(f"v_writelane_b32 {vSTAMP}, s98, 63", 'valu', wr=[vSTAMP], rd=[s(98)]))
        if CFG.get('dbgstat'):
            n = len(R.stages)
            lanes = {'F': [0, 27, n - 1, n], 'A': [0, 37, n - 1, n], 'M': [0, 34, n - 1, n]}[kind]
            slots = {'F': [1, 2, 3, 5], 'A': [10, 11, 13, 14], 'M': [15, 15, 15, 15]}[kind]
            p.emit([valu('v_mov_b32', v(4), 256), valu('v_mov_b32', v(5), 0)])
            for i, (ln, sl) in enumerate(zip(lanes, slots)):
                p.emit(raw(f"v_readlane_b32 s92, {vSTAMP}, {ln}", 'rdl', wr=[sT2], rd=[vSTAMP])); p.emit(nop(3))
                p.emit(raw(f"v_writelane_b32 v5, s92, {i}", 'valu', wr=[v(5)], rd=[sT2])); p.emit(raw(f"v_writelane_b32 v4, {4 * sl}, {i}", 'valu', wr=[v(4)]))
            p.emit(raw(f"v_writelane_b32 v5, s98, 4", 'valu', wr=[v(5)], rd=[s(98)])); p.emit(raw(f"v_writelane_b32 v4, 28, 4", 'valu', wr=[v(4)]))
            p.emit(salu('s_not_b32', sT2, s(43))); p.emit(raw(f"v_writelane_b32 v5, s92, 5", 'valu', wr=[v(5)], rd=[sT2])); p.emit(raw(f"v_writelane_b32 v4, 36, 5", 'valu', wr=[v(4)]))
            p.emit(salu('s_sub_u32', sT2, s(98), s(43))); p.emit(raw(f"v_writelane_b32 v5, s92, 6", 'valu', wr=[v(5)], rd=[sT2])); p.emit(raw(f"v_writelane_b32 v4, 24, 6", 'valu', wr=[v(4)]))
            p.emit([salu('s_cmp_eq_u32', None, sRB, 9), csel(sT2, 0, sRB), salu('s_or_b32', sT2, sT2, sWAVE), salu('s_cmp_eq_u32', None, sT2, 0), csel(sT2, 0, 256),
                    valu('v_add_u32', v(4), sT2, v(4))])
            p.emit(I(f"buffer_atomic_umax v5, v4, {sDBG}, 0 offen sc1", 'vstore', rd=vr(4, 2) + sDBG.regs(), units=3))
        p.emit([shl(sT2, s(2), 2), add(sT2, sT2, sWAVE), shl(sT2, sT2, 8), add(sT2, sT2, STAMP_OFF),
                valu('v_lshrrev_b32', v(42), 2, vLANE16), bstore('buffer_store_dword', vSTAMP, v(42), sWS, sT2)])
    R.p.emit(raw("s_endpgm"))
    return R

def fold(ins, name):
    idx = [i for i, x in enumerate(ins) if x.tag == 'mark']
    def body(a_, b_): return [x.txt for x in ins[a_:b_] if x.kind != 'label']
    out = []; pos = 0; k = 0; nl = 0
    while k + 1 < len(idx):
        b0 = body(idx[k], idx[k + 1]); n = 1
        while k + n + 1 < len(idx) and body(idx[k + n], idx[k + n + 1]) == b0: n += 1
        if n >= 2:
            out += ins[pos:idx[k]]
            L = f"L_{name}_loop{nl}"; nl += 1
            out.append(smov(sLC, n)); out.append(I(".p2align 3", 'label')); out.append(label(L))
            out += ins[idx[k]:idx[k + 1]]
            out += [salu('s_sub_u32', sLC, sLC, 1), salu('s_cmp_lg_u32', None, sLC, 0), raw(f"s_cbranch_scc1 {L}")]
            pos = idx[k + n]; k += n
        else: k += 1
    out += ins[pos:]
    return out

def fold_regions(ins, name):
    regs = []; i = 0
    beg = None
    for i, x in enumerate(ins):
        if isinstance(x.tag, tuple) and x.tag and x.tag[0] == 'region':
            if x.tag[1] == 'begin': beg = (i, x.tag[2])
            elif beg: regs.append((beg[0], i, beg[1])); beg = None
    groups = {}
    for (a_, b_, key) in regs:
        groups.setdefault(tuple(x.txt for x in ins[a_:b_] if x.kind != 'label'), []).append((a_, b_))
    out = []; subs = []; repl = {}
    n = 0
    for body, lst in groups.items():
        if len(lst) >= 2:
            L = f"L_{name}_sub{n}"; n += 1
            a_, b_ = lst[0]
            subs += [I(".p2align 6", 'label'), label(L)] + ins[a_:b_] + [raw(f"s_setpc_b64 {sRET}")]
            for (a_, b_) in lst: repl[a_] = (b_, L)
    i = 0
    while i < len(ins):
        if i in repl:
            b_, L = repl[i]; out.append(raw(f"s_call_b64 {sRET}, {L}")); i = b_
        else:
            out.append(ins[i]); i += 1
    print(f"  regions: {[len(l) for l in groups.values()]}", file=sys.stderr)
    return out + subs

def reduce_body(p, sPART, sXO, srdP, srdX, srdO, vL16, vXO, base, flags, mid=None):
    E = p.emit
    L = base; XR = base + 68; SA = base + 72; FA = base + 80; T = base + 88
    for k in range(NPART):
        if k: E(add(sPART, sPART, 16 * PART))
        E(bload('buffer_load_dwordx4', v(L + 4 * k, 4), vL16, srdP, sPART, flags=flags))
    E(bload('buffer_load_dwordx2', v(XR, 2), vXO, srdX, sXO)); E(bload('buffer_load_dwordx2', v(XR + 2, 2), vXO, srdX, sXO, 32))
    ex = 0
    if mid: E(mid()); ex = 1
    E(smov(sT3, 0xffff0000))
    for k in range(NPART):
        E(waitvm(NPART + 1 - k + ex))
        acc = SA if k < 11 else FA
        for q in range(4):
            x = v(L + 4 * k + q)
            if k in (0, 11):
                E(valu('v_lshlrev_b32', v(acc + 2 * q), 16, x)); E(valu('v_and_b32', v(acc + 2 * q + 1), sT3, x))
            else:
                tp = v(T + 2 * q, 2)
                E(valu('v_lshlrev_b32', tp[0], 16, x)); E(valu('v_and_b32', tp[1], sT3, x))
        if k not in (0, 11):
            for q in range(4): E(valu('v_pk_add_f32', v(acc + 2 * q, 2), v(acc + 2 * q, 2), v(T + 2 * q, 2)))
    for e in range(8): E(valu('v_exp_f32', v(T + e), v(FA + e)))
    for e in range(8): E(valu('v_add_f32', v(T + e), 1.0, v(T + e)))
    for e in range(8): E(valu('v_rcp_f32', v(T + e), v(T + e)))
    for e in range(8): E(valu('v_mul_f32', v(FA + e), f2u(-math.log(2.0)), v(FA + e)))
    for e in range(8): E(valu('v_mul_f32', v(FA + e), v(FA + e), v(T + e)))
    E(waitvm(ex))
    for q in range(4):
        E(valu('v_lshlrev_b32', v(T + 2 * q), 16, v(XR + q))); E(valu('v_and_b32', v(T + 2 * q + 1), sT3, v(XR + q)))
    for e in range(8): E(valu('v_fma_f32', v(T + e), v(SA + e), v(FA + e), v(T + e)))
    for q in range(4): E(valu('v_cvt_pk_bf16_f32', v(XR + q), v(T + 2 * q), v(T + 2 * q + 1)))
    E(bstore('buffer_store_dwordx2', v(XR, 2), vXO, srdO, sXO)); E(bstore('buffer_store_dwordx2', v(XR + 2, 2), vXO, srdO, sXO, 32))

def reduce_kernel():
    p = Prog(); E = p.emit
    E(salu('s_cmp_ge_u32', None, s(2), 576)); E(raw("s_cbranch_scc0 L_rgo")); E(raw("s_endpgm")); E(label("L_rgo"))
    E(raw("s_load_dwordx2 s[4:5], s[0:1], 0", wr=[s(4, 2)])); E(raw("s_load_dwordx2 s[6:7], s[0:1], 64", wr=[s(6, 2)])); E(raw("s_load_dwordx2 s[8:9], s[0:1], 80", wr=[s(8, 2)]))
    E(valu('v_lshrrev_b32', v(1), 6, v(0))); E(valu('v_readfirstlane_b32', s(10), v(1)))
    E(shl(s(11), s(2), 2)); E(add(s(11), s(11), s(10)))
    E(salu('s_mul_hi_u32', s(24), s(11), -(-(1 << 32) // 36), scc_w=False))
    E(mul(s(25), s(24), 36)); E(salu('s_sub_u32', s(25), s(11), s(25)))
    E(shl(s(26), s(11), 10))
    E(valu('v_and_b32', v(0), 63, v(0))); E(valu('v_lshlrev_b32', v(1), 4, v(0)))
    E(valu('v_and_b32', v(2), 15, v(0))); E(smov(s(27), 1152)); E(valu('v_mul_u32_u24', v(2), s(27), v(2)))
    E(valu('v_lshrrev_b32', v(3), 4, v(0))); E(valu('v_lshl_add_u32', v(2), v(3), 3, v(2)))
    E(mul(s(28), s(24), 32 * 1152)); E(salu('s_and_b32', s(29), s(25), 1)); E(mul(s(29), s(29), 16 * 1152)); E(add(s(28), s(28), s(29)))
    E(shr(s(25), s(25), 1)); E(shl(s(25), s(25), 6)); E(add(s(28), s(28), s(25)))
    E(raw("s_waitcnt lgkmcnt(0)"))
    srd(p, s(12, 4), 8, WSP_BYTES); srd(p, s(16, 4), 4, 2359296); srd(p, s(20, 4), 6, 2359296)
    reduce_body(p, s(26), s(28), s(12, 4), s(16, 4), s(20, 4), v(1), v(2), 4, CFG.get('rflags', ''))
    E(raw("s_endpgm"))
    return p

def text(ins): return "\n".join((i.txt if i.kind == 'label' else " " + i.txt) for i in ins) + "\n"

def compress(t):
    t = re.sub(r" v_mfma_f32_16x16x32_bf16 v\[(\d+):\d+\], a\[(\d+):\d+\], v\[(\d+):\d+\], v\[\1:\d+\]", r" MV \1,\2,\3", t)
    t = re.sub(r" v_mfma_f32_16x16x32_bf16 v\[(\d+):\d+\], a\[(\d+):\d+\], a\[(\d+):\d+\], v\[\1:\d+\]", r" MA \1,\2,\3", t)
    t = re.sub(r" v_mfma_f32_32x32x16_bf16 v\[(\d+):\d+\], a\[(\d+):\d+\], v\[(\d+):\d+\], v\[\1:\d+\]", r" NV \1,\2,\3", t)
    t = re.sub(r" v_mfma_f32_32x32x16_bf16 v\[(\d+):\d+\], a\[(\d+):\d+\], a\[(\d+):\d+\], v\[\1:\d+\]", r" NA \1,\2,\3", t)
    t = re.sub(r" v_mfma_f32_16x16x32_bf16 a\[(\d+):\d+\], a\[(\d+):\d+\], v\[(\d+):\d+\], a\[\1:\d+\]", r" MC \1,\2,\3", t)
    t = re.sub(r" ds_read_b64_tr_b16 a\[(\d+):\d+\], v(\d+) offset:(\d+)", r" RT \1,\2,\3", t)
    t = re.sub(r" ds_read_b128 a\[(\d+):\d+\], v(\d+) offset:(\d+)", r" RB \1,\2,\3", t)
    t = re.sub(r" v_cvt_pk_bf16_f32 v(\d+), v(\d+), v(\d+)", r" CV \1,\2,\3", t)
    t = re.sub(r" v_accvgpr_write_b32 a(\d+), v(\d+)", r" AW \1,\2", t)
    t = re.sub(r" v_exp_f32 v(\d+), v(\d+)", r" EX \1,\2", t)
    t = re.sub(r" v_add_f32 v(\d+), v(\d+), v(\d+)", r" AD \1,\2,\3", t)
    t = re.sub(r" v_mul_f32 v(\d+), v(\d+), v(\d+)", r" ML \1,\2,\3", t)
    t = re.sub(r" s_waitcnt lgkmcnt\((\d+)\)", r" WL \1", t)
    mac = r""".macro MC d,a,b
 v_mfma_f32_16x16x32_bf16 a[\d:\d+3], a[\a:\a+3], v[\b:\b+3], a[\d:\d+3]
.endm
.macro NV d,a,b
 v_mfma_f32_32x32x16_bf16 v[\d:\d+15], a[\a:\a+3], v[\b:\b+3], v[\d:\d+15]
.endm
.macro NA d,a,b
 v_mfma_f32_32x32x16_bf16 v[\d:\d+15], a[\a:\a+3], a[\b:\b+3], v[\d:\d+15]
.endm
.macro MV d,a,b
 v_mfma_f32_16x16x32_bf16 v[\d:\d+3], a[\a:\a+3], v[\b:\b+3], v[\d:\d+3]
.endm
.macro MA d,a,b
 v_mfma_f32_16x16x32_bf16 v[\d:\d+3], a[\a:\a+3], a[\b:\b+3], v[\d:\d+3]
.endm
.macro RT d,a,o
 ds_read_b64_tr_b16 a[\d:\d+1], v\a offset:\o
.endm
.macro RB d,a,o
 ds_read_b128 a[\d:\d+3], v\a offset:\o
.endm
.macro CV d,a,b
 v_cvt_pk_bf16_f32 v\d, v\a, v\b
.endm
.macro AW d,a
 v_accvgpr_write_b32 a\d, v\a
.endm
.macro EX d,a
 v_exp_f32 v\d, v\a
.endm
.macro AD d,a,b
 v_add_f32 v\d, v\a, v\b
.endm
.macro ML d,a,b
 v_mul_f32 v\d, v\a, v\b
.endm
.macro WL n
 s_waitcnt lgkmcnt(\n)
.endm
"""
    return mac, t

HDR = open('recurrent_scan__sliding_block_cached__dense_activation_silu__prompt.s.ref').read().split('; Override launch')[0]
DOC = """; Generated by my own scheduler scripts (hand-designed instruction streams, hazards padded by the script).
; registers as MFMA B operands (transposed formulation), weights / K / V stream through a 4-slot LDS ring (LDS-DMA).
;   role A (10): layernorm, Q projection, attention for 3 heads (one GQA pair shares K/V fragments), partial of o@wo
; The bf16 partials go to d_ws with write-through stores; progress words (reset per launch, guarded by a counter in
"""
def kd(name, vgpr, acc, sgpr=102):
    return f""".amdhsa_kernel {name}
  .amdhsa_next_free_vgpr {vgpr}
  .amdhsa_next_free_sgpr {sgpr}
  .amdhsa_accum_offset {acc}
  .amdhsa_group_segment_fixed_size 0
  .amdhsa_kernarg_size 88
  .amdhsa_user_sgpr_count 2
  .amdhsa_user_sgpr_kernarg_segment_ptr 1
  .amdhsa_system_sgpr_workgroup_id_x 1
.end_amdhsa_kernel
"""
def est_cycles(ins):
    tot = 0; cur = None; n = 0
    for i in ins:
        if i.kind == 'label': continue
        if i.kind == 'mfma':
            if cur is not None: tot += max(cap, cur)
            cur = 2; n += 1; cap = 8 if len(i.wr) == 16 else 4
        elif cur is not None:
            if i.txt.startswith('s_waitcnt lgkm') and cap == 4: continue
            cur += i.units if not i.txt.startswith('s_nop') else (int(i.txt.split()[1]) + 1) * 0.5
    return tot * 4

def main(out, **kw):
    CFG.update(kw)
    set_layout(CFG.get('l844'))
    if CFG.get('tabs'):
        BAL2[:], BALM[:], BAL3[:] = CFG['tabs']
        CFG['bal'] = 2
    if CFG.get('tab'):
        global ROLE_TAB
        ROLE_TAB = CFG['tab']
    CFG['shape0'] = CFG['shape']
    cp = common_prologue()
    if CFG.get('entry', 0):
        if CFG.get('entry', 1) == 1:
            k = next(i for i, x in enumerate(cp.ins) if x.txt == 's_waitcnt lgkmcnt(0)')
            tail = cp.ins[k:]; vmx = list(cp.vm); cp.ins = cp.ins[:k]; cp.vm = []
            common_prologue2(cp); cp.ins += tail; cp.vm += vmx
        else: common_prologue2(cp)
        common_prologue3(cp)
    body = text(cp.ins) + dispatch_text()
    for kind in 'FAM':
        R = build_role(kind, cp.vm)
        ins = fold_regions(fold(R.p.ins, kind), kind) if CFG['fold'] else R.p.ins
        nm = sum(1 for i in R.p.ins if i.kind == 'mfma')
        print(f"role {kind}: stages {len(R.stages)} mfma {nm} instrs {len([i for i in ins if i.kind!='label'])} (unrolled {len([i for i in R.p.ins if i.kind!='label'])}) pad {R.p.npad} forced {R.forced} est {est_cycles(R.p.ins)} ideal {sum(32 if len(i.wr) == 16 else 16 for i in R.p.ins if i.kind == 'mfma')}", file=sys.stderr)
        if CFG.get('abl_pair') and kind in 'AM':
            out_ = []; on = False
            for x in ins:
                if x.kind == 'label' and x.txt.startswith('; PAh'): on = x.txt.startswith('; PAh1')
                if x.kind == 'label' and x.txt.startswith('; P2'): on = False
                if on and (x.kind in ('dma', 'ds') or (x.kind == 'salu' and ('m0' in x.txt or 's70' in x.txt))): continue
                out_.append(x)
            ins = out_
        if CFG.get('abl_half'):
            out_ = []; on = False; cnt = 0
            for x in ins:
                if x.kind == 'label' and x.txt.startswith('; P'): on = x.txt.startswith(('; P1', '; P2'))
                if x.kind == 'label' and x.txt.startswith('; REGION begin'): on = True
                if on and x.kind == 'ds':
                    cnt += 1
                    if (cnt >> 1) & 1: continue
                out_.append(x)
            ins = out_
        ab = CFG.get('ablate', '')
        if ab:
            st0 = next(i for i, x in enumerate(ins) if x.txt.startswith('; P1u1b0'))
            def keep(x):
                if 'd' in ab and x.kind == 'dma': return False
                if 'r' in ab and x.kind == 'ds': return False
                if 'v' in ab and x.kind in ('trans',): return False
                if 'V' in ab and x.kind in ('trans', 'valu', 'perm') and not x.txt.startswith(('v_add_u32', 'v_xor', 'v_writelane', 'v_cmp', 'v_cnd', 'v_mov', 'v_lsh', 'v_mad', 'v_min', 'v_and', 'v_bfe', 'v_mul_u32')): return False
                if 'm' in ab and x.kind == 'mfma': return False
                return True
            ins = ins[:st0] + [x for x in ins[st0:] if keep(x)]
        for sp in R.slow: ins = ins + sp.ins
        if CFG['fused']: ins = ins + reducer(kind).ins
        body += f".p2align 6\nL_role{kind}:\n" + text(ins) + f"L_role{kind}_end:\n"
    rk = reduce_kernel()
    mac, body = compress(body)
    if CFG['fused']:
        t = HDR + "; @launch grid=(256,1,1) block=(256,1,1) lds=163840\n" + DOC
        t += '.amdgcn_target "amdgcn-amd-amdhsa--gfx950"\n' + mac + f".text\n.globl {KN}\n.p2align 8\n.type {KN},@function\n{KN}:\n" + body
        t += '.section .rodata,"a"\n.p2align 6\n' + kd(KN, 512, 256)
        open(out, 'w').write(t); print("size", len(t), file=sys.stderr); return
    t = HDR + f"; @launch kernel={KN} grid=(256,1,1) block=(256,1,1) lds=163840\n; @launch kernel={RN} grid=(576,1,1) block=(256,1,1) lds=0\n"
    t += '.amdgcn_target "amdgcn-amd-amdhsa--gfx950"\n' + mac + f".text\n.globl {KN}\n.p2align 8\n.type {KN},@function\n{KN}:\n" + body
    t += f".globl {RN}\n.p2align 8\n.type {RN},@function\n{RN}:\n" + text(rk.ins)
    t += '.section .rodata,"a"\n.p2align 6\n' + kd(KN, 512, 256) + ".p2align 6\n" + kd(RN, 104, 104, 102)
    open(out, 'w').write(t)
    print("size", len(t), file=sys.stderr)

if __name__ == "__main__":
    kw = eval("dict(" + (sys.argv[2] if len(sys.argv) > 2 else "") + ")")
    main(sys.argv[1], **kw)
```

```python
import sys, re
from s1 import *

ROLE_TAB = [0, 1, 2, 11, 3, 4, 5, 12, 6, 7, 13, 14, 8, 9, 10, 15]
vPFR = v(36)
vPRG = v(36)
PART = 4 * PWAVE
NPART = 17
NA, NM, NS = 10, 1, 11
def set_layout(new):
    global NPART, NA, NM, NS, ROLE_TAB
    if new:
        NPART, NA, NM, NS = 20, 8, 4, 12
        ROLE_TAB = [0, 1, 8, 12, 2, 3, 9, 13, 4, 5, 10, 14, 6, 7, 11, 15]
WSP_BYTES = NPART * 16 * PART
def PSTR(): return 16 * PART + (CFG.get('pskew', 0) if CFG['fused'] else 0)
sJQ, sQ0, sOA1, sOB1 = s(73), s(59), s(74), s(75)
ABN = 4096
STAMP_OFF = 0x3000000
CTRL = 0x2F00000
OOB = 0x10000000

def srd(p, dst, lo, nbytes):
    p.emit([smov(dst[0], s(lo)), salu('s_and_b32', dst[1], s(lo + 1), 0xffff), smov(dst[2], nbytes), smov(dst[3], 0x20000)])
def xdma(j):
    return [salu('s_add_u32', 'm0', s(6), j * 4096), salu('s_add_u32', sT, s(7), j * 128)] + [dma(v(16 + q), sX, sT, q * 1024, tag=('x', j)) for q in range(4)]
def mul(d, a_, b_): return salu('s_mul_i32', d, a_, b_, scc_w=False)
def add(d, a_, b_): return salu('s_add_u32', d, a_, b_)
def shl(d, a_, b_): return salu('s_lshl_b32', d, a_, b_)
def shr(d, a_, b_): return salu('s_lshr_b32', d, a_, b_)
def csel(d, a_, b_): return salu('s_cselect_b32', d, a_, b_, scc_w=False, scc_r=True)

def common_prologue():
    if CFG.get('entry', 0) == 0: return common_prologue_old()
    assert CFG['xe'] == 9 and CFG.get('map', 4) == 4
    p = Prog(); E = p.emit
    E(raw("s_load_dwordx8 s[40:47], s[0:1], 0", wr=[s(40, 8)]))
    E(salu('s_cmp_ge_u32', None, s(2), 256))
    E(raw("s_cbranch_scc0 L_go")); E(raw("s_endpgm")); E(label("L_go"))
    if CFG['stamps']:
        E(raw(f"s_memtime {sT0}", wr=[sT0])); E(raw("s_memrealtime s[96:97]", wr=[s(96, 2)]))
    E(valu('v_lshrrev_b32', v(1), 6, v(0)))
    E(salu('s_and_b32', s(3), s(2), 1)); E(shl(s(3), s(3), 3))
    E(valu('v_readfirstlane_b32', sWAVE, v(1)))
    E(shr(sRB, s(2), 5)); E(salu('s_or_b32', sRB, sRB, s(3)))
    E(valu('v_and_b32', v(0), 63, v(0)))
    E(valu('v_lshrrev_b32', vROWN, 3, v(0)))
    E(valu('v_and_b32', v(20), 7, v(0))); E(valu('v_lshrrev_b32', v(21), 4, v(0)))
    E(valu('v_xor_b32', v(22), v(20), v(21))); E(valu('v_xor_b32', v(23), 4, v(22)))
    E(salu('s_movk_i32', s(3), 1152, scc_w=False)); E(valu('v_mul_u32_u24', v(24), s(3), vROWN))
    E(valu('v_lshl_add_u32', v(16), v(22), 4, v(24))); E(valu('v_lshl_add_u32', v(17), v(23), 4, v(24)))
    E(valu('v_add_u32', v(17), 8 * 1152 - 1024, v(17)))
    E(valu('v_add_u32', v(18), 2 * (8 * 1152 - 1024), v(16))); E(valu('v_add_u32', v(19), 2 * (8 * 1152 - 1024), v(17)))
    E(mul(s(6), sWAVE, XW)); E(raw("s_lshl2_add_u32 s7, s64, s62", 'salu', wr=[s(7)], rd=[sRB, sWAVE])); E(mul(sT, s(7), 32 * 1152))
    E(smov('m0', s(6))); E(add(s(7), sT, 9 * 128))
    E(smov(sX[2], 2359296)); E(smov(sX[3], 0x20000))
    E(raw("s_waitcnt lgkmcnt(0)"))
    E(smov(sX[0], s(40))); E(salu('s_and_b32', sX[1], s(41), 0xffff))
    E(label("L_xl"))
    n0 = len(p.vm)
    for q in range(4): E(dma(v(16 + q), sX, sT, q * 1024))
    del p.vm[n0:]
    for j in range(9): p.vm += [('x', j)] * 4
    E(add(sT, sT, 128)); E(add('m0', 'm0', 4096)); E(salu('s_cmp_lt_u32', None, sT, s(7))); E(raw("s_cbranch_scc1 L_xl"))
    return p
def common_prologue2(p):
    E = p.emit
    tab = ROLE_TAB
    lo = sum(tab[i] << (4 * i) for i in range(8)); hi = sum(tab[8 + i] << (4 * i) for i in range(8))
    E(salu('s_bfe_u32', s(3), s(2), (2 << 16) | 3)); E(salu('s_bfe_u32', s(4), s(2), (1 << 16) | 1))
    E(shl(s(4), s(4), 2)); E(salu('s_or_b32', s(3), s(3), s(4))); E(shl(s(3), s(3), 2))
    E(salu('s_bitcmp1_b32', None, s(2), 2))
    E(smov(s(4), lo)); E(csel(s(4), hi, s(4)))
    E(shr(s(4), s(4), s(3))); E(salu('s_and_b32', sROLE, s(4), 15))
    E(raw(f"s_getpc_b64 {sPC}", wr=[sPC])); E(label("L_pc"))
    E(smov(s(4), "L_roleA-L_pc")); E(smov(s(5), "L_roleA_end-L_pc-4"))
    E(salu('s_cmp_ge_u32', None, sROLE, NA)); E(csel(s(4), "L_roleM-L_pc", s(4))); E(csel(s(5), "L_roleM_end-L_pc-4", s(5)))
    E(salu('s_cmp_ge_u32', None, sROLE, NA + NM)); E(csel(s(4), "L_roleF-L_pc", s(4))); E(csel(s(5), "L_roleF_end-L_pc-4", s(5)))
    n0 = CFG.get('code0', 16); NL = CFG.get('codelines', 24)
    if n0:
        E(mul(s(3), sWAVE, n0 * 128)); E(add(s(3), s(3), s(4)))
        E(valu('v_min_u32', v(2), n0 - 1, v(0))); E(valu('v_lshlrev_b32', v(2), 7, v(2))); E(valu('v_add_u32', v(2), s(3), v(2)))
        E(I(f"global_load_dword {vDUM}, v2, {sPC}", 'vload', wr=vDUM.regs(), rd=vr(2) + sPC.regs(), tag='pf'))
    E(salu('s_and_b32', s(3), sRB, 7)); E(shl(s(3), s(3), 2)); E(add(s(3), s(3), sWAVE))
    E(mul(s(3), s(3), NL * 128)); E(add(s(3), s(3), s(4)))
    E(valu('v_min_u32', v(2), NL - 1, v(0))); E(valu('v_lshlrev_b32', v(2), 7, v(2))); E(valu('v_add_u32', v(2), s(3), v(2)))
    E(valu('v_min_u32', v(3), s(5), v(2)))
    E(I(f"global_load_dword {vDUM}, v3, {sPC}", 'vload', wr=vDUM.regs(), rd=vr(3) + sPC.regs(), tag='pf'))
def common_prologue3(p):
    E = p.emit
    E(raw("s_load_dwordx2 s[48:49], s[0:1], 32", wr=[s(48, 2)]))
    E(raw("s_load_dwordx8 s[52:59], s[0:1], 48", wr=[s(52, 8)]))
    E(raw("s_load_dwordx2 s[50:51], s[0:1], 80", wr=[s(50, 2)]))
    srd(p, sK, 42, 8388608); srd(p, sV, 44, 8388608); srd(p, sWQ, 46, 4718592)
    E(mul(sW8704, sWAVE, 8 * PP)); E(mul(sWC, sWAVE, PP)); E(add(sWC, sWC, 32 * PP))
    E(shl(sW8192, sWAVE, 13)); E(shl(sWCH, sWAVE, 10)); E(add(sWCH, sWCH, 32768))
    E(mul(sW2176, sWAVE, 2 * PP)); E(mul(sW4352, sWAVE, 4 * PP)); E(add(sWA2, sW2176, 16 * PP))
    E(raw("s_waitcnt lgkmcnt(0)"))
    srd(p, sWO, 48, 4718592)
    srd(p, sW1, 52, 5308416); srd(p, sW2, 54, 5308416); srd(p, sWS, 50, 0x10000000 if (CFG['stamps'] or CFG['fused']) else WSP_BYTES)
    srd(p, sOUT, 56, 2359296); srd(p, sDBG, 58, 256)

def common_prologue_old():
    p = Prog(); E = p.emit
    E(salu('s_cmp_ge_u32', None, s(2), 256))
    E(raw("s_cbranch_scc0 L_go")); E(raw("s_endpgm")); E(label("L_go"))
    E(raw("s_load_dwordx8 s[40:47], s[0:1], 0", wr=[s(40, 8)]))
    E(raw("s_load_dwordx2 s[48:49], s[0:1], 32", wr=[s(48, 2)]))
    E(raw("s_load_dwordx8 s[52:59], s[0:1], 48", wr=[s(52, 8)]))
    E(raw("s_load_dwordx2 s[50:51], s[0:1], 80", wr=[s(50, 2)]))
    if CFG['stamps']:
        E(raw(f"s_memtime {sT0}", wr=[sT0])); E(raw("s_memrealtime s[96:97]", wr=[s(96, 2)]))
    tab = ROLE_TAB
    if CFG.get('map', 4) == 41:
        t4 = CFG.get('t41', [11, 0, 1, 2, 12, 3, 4, 5, 13, 14, 6, 7, 15, 10, 8, 9])
        lo = sum(t4[i] << (4 * i) for i in range(8)); hi = sum(t4[8 + i] << (4 * i) for i in range(8))
        E(shr(s(3), s(2), 6)); E(salu('s_bfe_u32', s(4), s(2), (1 << 16) | 1))
        E(shl(s(4), s(4), 2)); E(salu('s_or_b32', s(3), s(3), s(4))); E(shl(s(3), s(3), 2))
        E(salu('s_bitcmp1_b32', None, s(2), 2)); E(smov(s(4), lo)); E(csel(s(4), hi, s(4)))
        E(shr(s(4), s(4), s(3))); E(salu('s_and_b32', sROLE, s(4), 15))
        E(salu('s_and_b32', s(3), s(2), 1)); E(shl(s(3), s(3), 3))
        E(salu('s_bfe_u32', sRB, s(2), (3 << 16) | 3)); E(salu('s_or_b32', sRB, sRB, s(3)))
    elif CFG.get('map', 4) == 8:
        t8 = [0, 1, 2, 3, 4, 10, 11, 12, 5, 6, 7, 8, 9, 13, 14, 15]
        lo = sum(t8[i] << (4 * i) for i in range(8)); hi = sum(t8[8 + i] << (4 * i) for i in range(8))
        E(salu('s_bfe_u32', s(3), s(2), (3 << 16) | 3)); E(shl(s(3), s(3), 2))
        E(salu('s_bitcmp1_b32', None, s(2), 2)); E(smov(s(4), lo)); E(csel(s(4), hi, s(4)))
        E(shr(s(4), s(4), s(3))); E(salu('s_and_b32', sROLE, s(4), 15))
        E(salu('s_and_b32', s(3), s(2), 1)); E(shl(s(3), s(3), 3)); E(salu('s_and_b32', s(4), s(2), 2)); E(shl(s(4), s(4), 1))
        E(shr(sRB, s(2), 6)); E(salu('s_or_b32', sRB, sRB, s(3))); E(salu('s_or_b32', sRB, sRB, s(4)))
    elif CFG.get('map', 4) == 2:
        t2 = [0, 1, 2, 3, 4, 11, 5, 12, 6, 13, 7, 14, 8, 15, 9, 10]
        lo = sum(t2[i] << (4 * i) for i in range(8)); hi = sum(t2[8 + i] << (4 * i) for i in range(8))
        E(salu('s_bfe_u32', s(3), s(2), (1 << 16) | 3)); E(salu('s_and_b32', s(4), s(2), 3)); E(shl(s(4), s(4), 1)); E(salu('s_or_b32', s(3), s(3), s(4))); E(shl(s(3), s(3), 2))
        E(salu('s_bitcmp1_b32', None, s(2), 2)); E(smov(s(4), lo)); E(csel(s(4), hi, s(4)))
        E(shr(s(4), s(4), s(3))); E(salu('s_and_b32', sROLE, s(4), 15)); E(shr(sRB, s(2), 4))
    else:
        lo = sum(tab[i] << (4 * i) for i in range(8)); hi = sum(tab[8 + i] << (4 * i) for i in range(8))
        E(salu('s_bfe_u32', s(3), s(2), (2 << 16) | 3)); E(salu('s_bfe_u32', s(4), s(2), (1 << 16) | 1))
        E(shl(s(4), s(4), 2)); E(salu('s_or_b32', s(3), s(3), s(4))); E(shl(s(3), s(3), 2))
        E(salu('s_bitcmp1_b32', None, s(2), 2))
        E(smov(s(4), lo)); E(csel(s(4), hi, s(4)))
        E(shr(s(4), s(4), s(3))); E(salu('s_and_b32', sROLE, s(4), 15))
        E(salu('s_and_b32', s(3), s(2), 1)); E(shl(s(3), s(3), 3))
        E(shr(sRB, s(2), 5)); E(salu('s_or_b32', sRB, sRB, s(3)))
    E(valu('v_lshrrev_b32', v(1), 6, v(0)))
    E(valu('v_readfirstlane_b32', sWAVE, v(1)))
    E(valu('v_and_b32', v(0), 63, v(0)))
    E(valu('v_lshrrev_b32', vROWN, 3, v(0)))
    E(valu('v_and_b32', v(20), 7, v(0))); E(valu('v_lshrrev_b32', v(21), 4, v(0)))
    E(valu('v_xor_b32', v(22), v(20), v(21))); E(valu('v_xor_b32', v(23), 4, v(22)))
    E(smov(s(3), 1152)); E(valu('v_mul_u32_u24', v(24), s(3), vROWN))
    E(valu('v_lshl_add_u32', v(16), v(22), 4, v(24))); E(valu('v_lshl_add_u32', v(17), v(23), 4, v(24)))
    E(valu('v_add_u32', v(17), 8 * 1152 - 1024, v(17)))
    E(valu('v_add_u32', v(18), 2 * (8 * 1152 - 1024), v(16))); E(valu('v_add_u32', v(19), 2 * (8 * 1152 - 1024), v(17)))
    E(mul(s(6), sWAVE, XW))
    E(shl(s(7), sRB, 2)); E(add(s(7), s(7), sWAVE)); E(mul(s(7), s(7), 32 * 1152))
    E(raw(f"s_getpc_b64 {sPC}", wr=[sPC])); E(label("L_pc"))
    E(smov(s(4), "L_roleA-L_pc")); E(smov(s(5), "L_roleA_end-L_pc-4"))
    E(salu('s_cmp_ge_u32', None, sROLE, NA)); E(csel(s(4), "L_roleM-L_pc", s(4))); E(csel(s(5), "L_roleM_end-L_pc-4", s(5)))
    E(salu('s_cmp_ge_u32', None, sROLE, NA + NM)); E(csel(s(4), "L_roleF-L_pc", s(4))); E(csel(s(5), "L_roleF_end-L_pc-4", s(5)))
    def code_pf():
        NL = CFG.get('codelines', 24)
        E(salu('s_and_b32', s(3), sRB, 7)); E(shl(s(3), s(3), 2)); E(add(s(3), s(3), sWAVE))
        E(mul(s(3), s(3), NL * 128)); E(add(s(3), s(3), s(4)))
        E(valu('v_min_u32', v(2), NL - 1, v(0))); E(valu('v_lshlrev_b32', v(2), 7, v(2))); E(valu('v_add_u32', v(2), s(3), v(2)))
        E(valu('v_min_u32', v(3), s(5), v(2)))
        E(I(f"global_load_dword {vDUM}, v3, {sPC}", 'vload', wr=vDUM.regs(), rd=vr(3) + sPC.regs(), tag='pf'))
    if CFG.get('codepf', 3) >= 3:
        n0 = CFG.get('code0', 16)
        if n0:
            E(mul(s(3), sWAVE, n0 * 128)); E(add(s(3), s(3), s(4)))
            E(valu('v_min_u32', v(2), n0 - 1, v(0))); E(valu('v_lshlrev_b32', v(2), 7, v(2))); E(valu('v_add_u32', v(2), s(3), v(2)))
            E(I(f"global_load_dword {vDUM}, v2, {sPC}", 'vload', wr=vDUM.regs(), rd=vr(2) + sPC.regs(), tag='pf'))
        code_pf()
    E(raw("s_waitcnt lgkmcnt(0)"))
    srd(p, sX, 40, 2359296)
    if CFG.get('xt'):
        nch = CFG['xt']
        E(salu('s_bfe_u32', s(3), s(2), (2 << 16) | 3)); E(mul(s(3), s(3), 128 * nch)); E(add(s(3), s(3), 128 * (9 - 4 * nch))); E(add(s(3), s(3), s(7)))
        E(valu('v_and_b32', v(2), 31, v(0))); E(valu('v_mul_u32_u24', v(2), 1152, v(2)))
        if nch == 2:
            E(valu('v_lshrrev_b32', v(3), 5, v(0))); E(valu('v_lshl_add_u32', v(2), v(3), 7, v(2)))
        ld = bload('buffer_load_dword', vDUM, v(2), sX, s(3)); ld.tag = 'pf'; E(ld)
    nx0 = CFG.get('tx', 2) if CFG.get('touch') else 0
    for j in range(nx0): E(xdma(j))
    if CFG.get('touch'):
        E(salu('s_cmp_gt_u32', None, sROLE, 10))
        E(raw("s_cselect_b64 s[60:61], s[52:53], s[46:47]", 'salu', wr=[s(60, 2)], rd=[s(52, 2), s(46, 2)]))
        E(raw("s_cselect_b64 s[66:67], s[54:55], s[48:49]", 'salu', wr=[s(66, 2)], rd=[s(54, 2), s(48, 2)]))
        E(salu('s_cmp_eq_u32', None, sWAVE, 1)); E(raw("s_cselect_b64 s[60:61], s[66:67], s[60:61]", 'salu', wr=[s(60, 2)], rd=[s(66, 2), s(60, 2)]))
        E(salu('s_cmp_eq_u32', None, sWAVE, 2)); E(raw("s_cselect_b64 s[60:61], s[42:43], s[60:61]", 'salu', wr=[s(60, 2)], rd=[s(42, 2), s(60, 2)]))
        E(salu('s_cmp_eq_u32', None, sWAVE, 3)); E(raw("s_cselect_b64 s[60:61], s[44:45], s[60:61]", 'salu', wr=[s(60, 2)], rd=[s(44, 2), s(60, 2)]))
        E(smov(s(3), 73728)); E(salu('s_cmp_ge_u32', None, sWAVE, 2)); E(csel(s(3), 131072, s(3)))
        E(valu('v_mul_u32_u24', v(2), s(3), v(0)))
        E(I(f"global_load_dword {vDUM}, v2, s[60:61]", 'vload', wr=vDUM.regs(), rd=vr(2) + sr(60, 2), tag='pf'))
    for j in range(nx0, CFG['xe']): E(xdma(j))
    if CFG.get('codepf', 3) == 1: code_pf()
    if CFG.get('codepf', 3) == 2:
        E(valu('v_mov_b32', v(46), v(3))); E(raw(f"s_mov_b64 s[100:101], {sPC}", 'salu', wr=[s(100, 2)], rd=[sPC]))
    srd(p, sK, 42, 8388608); srd(p, sV, 44, 8388608); srd(p, sWQ, 46, 4718592); srd(p, sWO, 48, 4718592)
    srd(p, sW1, 52, 5308416); srd(p, sW2, 54, 5308416); srd(p, sWS, 50, 0x10000000 if (CFG['stamps'] or CFG['fused']) else WSP_BYTES)
    srd(p, sOUT, 56, 2359296); srd(p, sDBG, 58, 256)
    E(mul(sW8704, sWAVE, 8 * PP)); E(mul(sWC, sWAVE, PP)); E(add(sWC, sWC, 32 * PP))
    E(shl(sW8192, sWAVE, 13)); E(shl(sWCH, sWAVE, 10)); E(add(sWCH, sWCH, 32768))
    E(mul(sW2176, sWAVE, 2 * PP)); E(mul(sW4352, sWAVE, 4 * PP)); E(add(sWA2, sW2176, 16 * PP))
    return p

def dispatch_text():
    return f""" s_cmp_ge_u32 {sROLE}, {NA + NM}
 s_cbranch_scc1 L_roleF
 s_cmp_ge_u32 {sROLE}, {NA}
 s_getpc_b64 s[94:95]
L_pc2:
 s_cbranch_scc1 L_jM
 s_add_u32 s94, s94, L_roleA-L_pc2
 s_addc_u32 s95, s95, 0
 s_setpc_b64 s[94:95]
L_jM:
 s_add_u32 s94, s94, L_roleM-L_pc2
 s_addc_u32 s95, s95, 0
 s_setpc_b64 s[94:95]
"""

def pfload(srd_, base):
    ld = bload('buffer_load_dword', vDUM, vPF, srd_, base); ld.tag = 'pf'; return ld
def pf_lin(srd_, base_s, start, nbytes, nl=64):
    def f():
        return [valu('v_lshrrev_b32', vPF2, 16, vTID), valu('v_and_b32', vPF, 63, vTID), valu('v_min_u32', vPF, nl - 1, vPF),
                valu('v_mad_u32_u24', vPF, vPF2, nl, vPF), valu('v_lshlrev_b32', vPF, 7, vPF), valu('v_add_u32', vPF, start, vPF),
                valu('v_min_u32', vPF, nbytes - 128, vPF), pfload(srd_, base_s)]
    return f
def pf_run(srd_, base_s, nbytes, nl):
    def f():
        return [valu('v_min_u32', vPF, nbytes - 128, vPFR), valu('v_add_u32', vPFR, 64 * nl * 128, vPFR), pfload(srd_, base_s)]
    f.nl = nl
    return f
def vPFW(kind): return {'F': v(8), 'A': v(7), 'M': v(36)}[kind]
def pf_row(kind, srd_, step=128):
    def f():
        ld = bload('buffer_load_dword', vDUM, vPFW(kind), srd_, sPW); ld.tag = 'pf'
        return [add(sPW, sPW, step), ld]
    return f
def pf_row_setup(kind, pitch, nl, base, lit):
    r = vPFW(kind)
    return [valu('v_bfe_u32', vPF2, vTID, 16, 5), valu('v_and_b32', r, 63, vTID), valu('v_min_u32', r, nl - 1, r),
            valu('v_mad_u32_u24', r, vPF2, nl, r), smov(sT2, pitch), valu('v_mul_u32_u24', r, sT2, r), add(sPW, base, lit)]
def pf_code(la, lb, nl):
    def f():
        L = f"L_cp{pf_code.k}"; pf_code.k += 1
        ld = I(f"global_load_dword {vDUM}, {vPF}, {sPC}", 'vload', wr=vDUM.regs(), rd=vPF.regs() + sPC.regs(), units=3, tag='pf')
        return [raw(f"s_getpc_b64 {sPC}", 'salu', wr=[sPC]), label(L),
                salu('s_add_u32', sPC[0], sPC[0], f"{la}-{L}"), salu('s_addc_u32', sPC[1], sPC[1], 0, scc_r=True),
                valu('v_bfe_u32', vPF2, vTID, 16, 5), valu('v_and_b32', vPF, 63, vTID), valu('v_min_u32', vPF, nl - 1, vPF),
                valu('v_mad_u32_u24', vPF, vPF2, nl, vPF), valu('v_lshlrev_b32', vPF, 7, vPF), valu('v_min_u32', vPF, f"{lb}-{la}-4", vPF), ld]
    return f
pf_code.k = 0
def pf_sched(R, k0, srd_, base_s, nbytes, nl):
    per = 64 * nl * 128; k = k0
    for st in range(0, nbytes, per):
        R.pf.setdefault(k, []).append(pf_lin(srd_, base_s, st, nbytes, nl)); k += 1
    return k

def role_prologue(R, vm_before):
    p = R.p; E = p.emit; kind = R.kind
    p.vm = list(vm_before)
    MS = CFG['shape'] == 'M'
    def PS(k):
        if CFG['stamps'] == 1: R.stamp(k)
    if CFG.get('delayrole') is not None:
        for r_ in CFG['delayrole']:
            E(salu('s_cmp_eq_u32', None, sROLE, r_[0])); E(raw(f"s_cbranch_scc0 L_{kind}_nd{r_[0]}"))
            E(smov(sLC, r_[1])); E(label(f"L_{kind}_dl{r_[0]}")); E(raw("s_sleep 127")); E(salu('s_sub_u32', sLC, sLC, 1)); E(salu('s_cmp_lg_u32', None, sLC, 0)); E(raw(f"s_cbranch_scc1 L_{kind}_dl{r_[0]}"))
            E(label(f"L_{kind}_nd{r_[0]}"))
    PS(56)
    lane = v(0)
    ILV = CFG.get('ilv') and not MS
    setup = []
    if ILV:
        E(valu('v_lshrrev_b32', v(48), 4, lane)); E(valu('v_and_b32', v(49), 15, lane)); E(valu('v_bfe_u32', v(50), lane, 1, 3)); E(valu('v_xor_b32', v(50), v(50), v(48)))
        E(valu('v_lshlrev_b32', v(49), 7, v(49))); E(valu('v_add_u32', v(49), s(6), v(49)))
        E(valu('v_lshl_add_u32', v(20), v(50), 4, v(49))); E(valu('v_xor_b32', v(21), 64, v(20)))
        def E(i):
            if isinstance(i, (list, tuple)):
                for x in i: E(x)
            else: setup.append(i)
    E(shl(sT2, sRB, 2)); E(add(sT2, sT2, sWAVE)); E(shl(sT2, sT2, 16)); E(valu('v_or_b32', vTID, sT2, lane))
    if kind in 'AM' and CFG.get('pair'):
        sHP_, sHS_ = s(86), s(85)
        if CFG.get('l844'): E(shl(sHP_, sROLE, 1)); E(add(sHP_, sHP_, 8))
        else: E(mul(sHP_, sROLE, 3))
        if kind == 'A':
            sHP_, sHS_ = sFA, sFC
            E(mul(sHS_, sROLE, 3)); E(salu('s_and_b32', s(4), sROLE, 1)); E(add(sHP_, sHS_, s(4)))
            E(shl(s(4), s(4), 1)); E(add(sHS_, sHS_, 2)); E(salu('s_sub_u32', sHS_, sHS_, s(4)))
            E(salu('s_sub_u32', sJQ, sHS_, sHP_)); E(shl(sJQ, sJQ, 8)); E(salu('s_sub_u32', sJQ, sJQ, 3 * 128))
        E(shl(sQ0, sHP_, 8))
        E(mul(sQA, sWAVE, 64 * 8192)); E(add(sQA, sQA, sQ0))
        E(shl(sQC, sWAVE, 16)); E(add(sQC, sQC, sQ0)); E(add(sQC, sQC, 256 * 8192))
        E(shr(s(3), sWAVE, 1)); E(shl(s(3), s(3), 13)); E(salu('s_and_b32', s(4), sWAVE, 1)); E(shl(s(4), s(4), 11)); E(add(s(3), s(3), s(4)))
        E(salu('s_sub_u32', s(3), s(3), 64)); E(shl(s(4), sWAVE, 11))
        for e, (h_, pfr) in enumerate([(sHP_, sPFa), (sHS_, sPFb)][:2 if kind == 'A' else 1]):
            E(shr(pfr, h_, 1)); E(shl(pfr, pfr, 19)); E(add(pfr, pfr, 1536 * 256))
            E(add(sKb[e], pfr, s(4))); E(add(sVb[e], pfr, s(3)))
        E(mul(sPFc, sROLE, 384 * 1152) if kind == 'A' else mul(sPFc, sHP_, 128 * 1152))
        if kind == 'A':
            E(mul(sHP_, sHP_, 128 * 1152)); E(mul(sHS_, sHS_, 128 * 1152))
            E(mul(sOA, sWAVE, 32 * 1152)); E(add(sOA1, sOA, sHS_)); E(add(sOA, sOA, sHP_))
            E(salu('s_sub_u32', sOA1, sOA1, 64 * 1152)); E(add(sT3, sOA, 192 * 1152)); E(salu('s_cmp_lt_u32', None, sWAVE, 2)); E(csel(sOA1, sT3, sOA1))
            E(shr(s(3), sWAVE, 1)); E(shl(s(3), s(3), 2)); E(salu('s_and_b32', s(4), sWAVE, 1)); E(add(s(3), s(3), s(4)))
            E(mul(sOB, s(3), 8 * 1152)); E(add(sOB1, sOB, sHS_)); E(add(sOB1, sOB1, 64 * 1152)); E(add(sOB, sOB, sHP_)); E(add(sOB, sOB, 128 * 1152))
        else:
            E(mul(sOA, sWAVE, 64 * 1152)); E(add(sOA, sOA, sPFc))
    elif kind in 'AM':
        E(mul(sT3, sROLE, 3 * 256))
        E(mul(sQA, sWAVE, 64 * 8192)); E(add(sQA, sQA, sT3))
        E(shl(sQC, sWAVE, 16)); E(add(sQC, sQC, sT3)); E(add(sQC, sQC, 256 * 8192))
        E(shr(s(3), sWAVE, 1)); E(shl(s(3), s(3), 13)); E(salu('s_and_b32', s(4), sWAVE, 1)); E(shl(s(4), s(4), 11)); E(add(s(3), s(3), s(4)))
        E(salu('s_sub_u32', s(3), s(3), 64)); E(shl(s(4), sWAVE, 11))
        if MS: E(shl(s(3), sWAVE, 12))
        for e in range(3 if kind == 'A' else 2):
            E(mul(sT3, sROLE, 3)); E(add(sT3, sT3, e)); E(shr(sT3, sT3, 1)); E(shl(sT3, sT3, 19)); E(add(sT3, sT3, 1536 * 256))
            if e == 0: E(smov(sPFa, sT3))
            if e == (2 if kind == 'A' else 1): E(smov(sPFb, sT3))
            E(add(sKb[e], sT3, s(4))); E(add(sVb[e], sT3, s(3)))
        E(mul(sPFc, sROLE, 384 * 1152))
        if kind == 'A':
            E(mul(sOA, sWAVE, 32 * 1152)); E(add(sOA, sOA, sPFc))
            E(shr(s(3), sWAVE, 1)); E(shl(s(3), s(3), 2)); E(salu('s_and_b32', s(4), sWAVE, 1)); E(add(s(3), s(3), s(4)))
            E(mul(sOB, s(3), 8 * 1152)); E(add(sOB, sOB, sPFc)); E(add(sOB, sOB, 128 * 1152))
        else:
            E(mul(sOA, sWAVE, 64 * 1152)); E(add(sOA, sOA, sPFc))
    if kind in 'FM':
        if kind == 'F':
            E(salu('s_sub_u32', s(3), sROLE, NA + NM)); E(mul(sPF1, s(3), 13 * 128)); E(shl(sPF1h, s(3), 6)); E(add(sPF1h, sPF1h, 69 * 128))
        elif CFG.get('l844'):
            E(mul(sPF1, sROLE, 5 * 128)); E(add(sPF1, sPF1, (52 - 40) * 128)); E(smov(sPF1h, sPF1))
        else:
            E(smov(sPF1, f_fullcol(5) * 2)); E(smov(sPF1h, f_halfcol(5) * 2))
        E(mul(sHA, sWAVE, 64 * 9216)); E(add(sHA, sHA, sPF1))
        E(mul(sHC, sWAVE, 8 * 9216)); E(add(sHC, sHC, sPF1)); E(add(sHC, sHC, 256 * 9216))
        E(mul(sHH, sWAVE, 128 * 9216)); E(add(sHH, sHH, sPF1h))
        E(mul(sHHC, sWAVE, 16 * 9216)); E(add(sHHC, sHHC, sPF1h)); E(add(sHHC, sHHC, 512 * 9216))
        E(mul(sPF2, sPF1, 576)); E(mul(sPF2h, sPF1h, 576))
        E(mul(sFA, sWAVE, 64 * 1152)); E(add(sFA, sFA, sPF2))
        if MS:
            E(salu('s_and_b32', s(3), sWAVE, 1)); E(shl(s(3), s(3), 1)); E(shr(s(4), sWAVE, 1)); E(add(s(3), s(3), s(4))); E(mul(sFC, s(3), 8 * 1152))
        else: E(mul(sFC, sWAVE, 4 * 1152))
        E(add(sFS, sFC, sPF2h)); E(add(sFC, sFC, sPF2)); E(add(sFC, sFC, 256 * 1152))
    if CFG['pf'] >= 3:
        if kind in 'AM': E(mul(sT3, sROLE, 3 * 256) if not CFG.get('pair') else smov(sT3, sQ0))
        E(pf_row_setup(kind, 8192 if kind in 'AM' else 9216, 18, sT3 if kind in 'AM' else sPF1, 0))
        f_ = pf_row(kind, sWQ if kind in 'AM' else sW1)
        early_pf = [f_()[1]] + f_() + f_()
        if CFG.get('ez'): E(early_pf[0])
        if CFG.get('epf', 1) == 3:
            R.pf.setdefault(0, [])[:0] = [f_, f_]
    E(add(sT3, sROLE, NS - NA if kind == 'F' else 0))
    E(mul(sSt, sT3, PSTR())); E(shl(sT3, sRB, 2)); E(add(sT3, sT3, sWAVE)); E(mul(sT3, sT3, PWAVE)); E(add(sSt, sSt, sT3))
    if kind == 'M': E(add(sSt2, sSt, (NS - NA) * PSTR()))
    if CFG['fused']:
        E(shl(sT2, sRB, 14)); E(add(sT2, sT2, CTRL))
        E(add(sT3, sROLE, NS - NA if kind == 'F' else 0)); E(shl(sT3, sT3, 2)); E(add(sT3, sT3, sT2))
        E(salu('s_cmp_eq_u32', None, sWAVE, 0)); E(csel(sT3, sT3, OOB)); E(csel(sT2, sT2, OOB))
        E(valu('v_and_b32', v(24), 15, lane)); E(valu('v_lshlrev_b32', v(25), 7, v(24))); E(valu('v_add_u32', v(25), 128, v(25)))
        E(raw("v_cmp_eq_u32 vcc, 0, v24", 'valu', wr=['vcc'], rd=[v(24)])); E(valu('v_cndmask_b32', v(25), v(25), 0, 'vcc') if False else raw("v_cndmask_b32 v25, v25, v24, vcc", 'valu', wr=[v(25)], rd=[v(25), v(24), 'vcc']))
        E(valu('v_lshrrev_b32', v(26), 4, lane)); E(valu('v_lshl_add_u32', v(25), v(26), 2 + (NS - NA).bit_length() - 1, v(25))); E(valu('v_add_u32', v(25), sT3, v(25)))
        E(raw(f"s_mov_b32 vcc_lo, {hex(((1 << (NA + 1 + CFG.get('mpriv', 0))) - 1) * (0x10001 if kind == 'M' else 1))}", 'salu', wr=['vcc'])); E(raw("s_mov_b32 vcc_hi, 0", 'salu', wr=['vcc'])); E(valu('v_mov_b32', vCT, OOB)); E(nop(1))
        E(raw(f"v_cndmask_b32 {vCT}, {vCT}, v25, vcc", 'valu', wr=[vCT], rd=[vCT, v(25), 'vcc']))
        E(valu('v_mov_b32', v(24), vCT))
        if CFG.get('abn'):
            E(valu('v_and_b32', v(26), 15, lane)); E(valu('v_lshlrev_b32', v(26), 8, v(26))); E(add(sT2, sT2, ABN)); E(valu('v_add_u32', v(26), sT2, v(26)))
            if kind == 'A' and CFG.get('bal') == 2:
                E(valu('v_mov_b32', v(27), sROLE))
                for lim, tab, base in ((15, BAL2, 10), (31, BAL3, 21), (47, [BALM[i] if BALM[i] < 36 else BAL3[i] for i in range(10)], 20)):
                    t_ = [x - base for x in tab]
                    E(smov(s(98), sum(t_[i] << (4 * i) for i in range(8)))); E(smov(s(99), t_[8] | (t_[9] << 4)))
                    E(shl(s(4), sROLE, 2)); E(salu('s_lshr_b64', s(98, 2), s(98, 2), s(4))); E(salu('s_and_b32', s(4), s(98), 15)); E(add(s(4), s(4), base))
                    E(valu('v_mov_b32', v(25), s(4)))
                    E(raw(f"v_cmp_lt_u32 vcc, {lim}, v0", 'valu', wr=['vcc'], rd=[lane])); E(raw("v_cndmask_b32 v27, v27, v25, vcc", 'valu', wr=[v(27)], rd=[v(27), v(25), 'vcc']))
            elif kind == 'F' and CFG.get('fi'):
                t_ = [min(x, 40) - 25 for x in CFG['fi']]
                E(smov(s(98), sum(t_[i] << (4 * i) for i in range(5)))); E(salu('s_sub_u32', s(4), sROLE, 11)); E(shl(s(4), s(4), 2))
                E(shr(s(4), s(98), s(4))); E(salu('s_and_b32', s(4), s(4), 15)); E(add(s(4), s(4), 25)); E(valu('v_mov_b32', v(27), s(4)))
            elif kind == 'M' and CFG.get('mi'):
                E(valu('v_mov_b32', v(27), CFG['mi'][0])); E(valu('v_mov_b32', v(25), CFG['mi'][1]))
                E(raw("v_cmp_lt_u32 vcc, 15, v0", 'valu', wr=['vcc'], rd=[lane])); E(raw("v_cndmask_b32 v27, v27, v25, vcc", 'valu', wr=[v(27)], rd=[v(27), v(25), 'vcc']))
            elif kind == 'F' and CFG.get('bal') == 2:
                E(valu('v_mov_b32', v(27), 40))
            elif kind == 'A':
                t_ = [x - 20 for x in ([28, 29, 23, 30, 31, 24, 32, 33, 34, 35] if CFG.get('m3') else [28, 29, 22, 30, 31, 21, 32, 33, 34, 35])]
                E(smov(s(98), sum(t_[i] << (4 * i) for i in range(8)))); E(smov(s(99), t_[8] | (t_[9] << 4)))
                E(shl(s(4), sROLE, 2)); E(salu('s_lshr_b64', s(98, 2), s(98, 2), s(4))); E(salu('s_and_b32', s(4), s(98), 15)); E(add(s(4), s(4), 20))
                E(valu('v_mov_b32', v(27), s(4))); E(add(s(4), sROLE, 10)); E(valu('v_mov_b32', v(25), s(4)))
                E(raw("v_cmp_gt_u32 vcc, 32, v0", 'valu', wr=['vcc'], rd=[lane])); E(raw("v_cndmask_b32 v27, v27, v25, vcc", 'valu', wr=[v(27)], rd=[v(27), v(25), 'vcc']))
                E(valu('v_mov_b32', v(25), sROLE))
                E(raw("v_cmp_gt_u32 vcc, 16, v0", 'valu', wr=['vcc'], rd=[lane])); E(raw("v_cndmask_b32 v27, v27, v25, vcc", 'valu', wr=[v(27)], rd=[v(27), v(25), 'vcc']))
            elif CFG.get('m3') and kind == 'M':
                E(valu('v_lshrrev_b32', v(27), 4, lane)); E(valu('v_min_u32', v(27), 2 if CFG['m3'] == 1 else 1, v(27))); E(valu('v_add_u32', v(27), CFG.get('mb', 20), v(27)))
            elif CFG.get('m3'):
                E(add(s(4), sROLE, 12)); E(salu('s_cmp_lt_u32', None, sROLE, 13)); E(csel(s(4), 40, s(4))); E(valu('v_mov_b32', v(27), s(4)))
            else:
                E(smov(s(4), 20) if kind == 'M' else add(s(4), sROLE, 12)); E(valu('v_mov_b32', v(27), s(4)))
            E(valu('v_lshl_add_u32', v(26), v(27), 2, v(26))); E(valu('v_mov_b32', v(25), 0))
            z = bstore('buffer_store_dword', v(25), v(26), sWS, 0, flags='sc1'); z.tag = 'zero'; E(z)
        else:
            assert not (CFG.get('l844') or CFG.get('four') or CFG.get('nof'))
            E(add(sT2, sT2, 4 * (NPART + 1)))
            def flag(lane_, item):
                E(raw(f"s_lshl2_add_u32 {sT3}, {item}, {sT2}", 'salu', wr=[sT3], rd=[item, sT2]))
                E(raw(f"v_writelane_b32 v24, {sT3}, {lane_}", 'valu', wr=[v(24)], rd=[sT3, v(24)]))
            def tflag(lane_, tab, base):
                t_ = [min(x - base, 15) for x in tab]
                E(smov(s(98), sum(t_[i] << (4 * i) for i in range(8)))); E(smov(s(99), t_[8] | (t_[9] << 4)))
                E(shl(s(4), sROLE, 2)); E(salu('s_lshr_b64', s(98, 2), s(98, 2), s(4))); E(salu('s_and_b32', s(4), s(98), 15)); E(add(s(4), s(4), base)); flag(lane_, s(4))
            if kind == 'A' and CFG.get('bal'):
                flag(32, sROLE); tflag(33, BAL2, 10); tflag(34, BAL3, 21)
                tflag(35, [x if x < 36 else i for i, x in enumerate(BALM)][:0] + [(BALM[i] if BALM[i] < 36 else BAL2[i]) for i in range(10)], 10)
            elif kind == 'A':
                flag(32, sROLE); E(add(s(4), sROLE, 10)); flag(33, s(4)); tflag(34, [28, 29, 22, 30, 31, 21, 32, 33, 34, 35], 20)
            elif kind == 'F' and CFG.get('bal'):
                E(add(s(4), sROLE, 12)); E(salu('s_cmp_lt_u32', None, sROLE, 13)); E(csel(s(4), 41, s(4))); flag(32, s(4))
            else:
                E(smov(s(4), 20) if kind == 'M' else add(s(4), sROLE, 12)); flag(32, s(4))
        E(valu('v_mov_b32', v(25), 0))
        z = bstore('buffer_store_dword', v(25), v(24), sWS, 0, flags='sc1'); z.tag = 'zero'; E(z)
        E(shl(sT2, sRB, 4)); E(salu('s_cmp_eq_u32', None, sWAVE, 0)); E(csel(sT2, sT2, 256))
        E(valu('v_mov_b32', v(23), 256)); E(raw(f"v_writelane_b32 v23, {sT2}, 0", 'valu', wr=[v(23)], rd=[sT2, v(23)]))
    T_ = [v(24), v(25), v(26), v(27), v(28), v(29)]
    q, r, c4, rb1 = T_[0], T_[1], T_[2], T_[3]
    E(valu('v_lshrrev_b32', q, 4, lane)); E(valu('v_bfe_u32', r, lane, 2, 2)); E(valu('v_and_b32', c4, 3, lane)); E(valu('v_bfe_u32', rb1, lane, 3, 1))
    E(valu('v_and_b32', T_[4], 7, lane)); E(valu('v_bfe_u32', T_[5], lane, 4, 1)); E(valu('v_lshlrev_b32', T_[5], 1, T_[5]))
    E(valu('v_xor_b32', T_[4], T_[4], T_[5])); E(valu('v_lshlrev_b32', vSWZ, 4, T_[4]))
    E(valu('v_lshrrev_b32', T_[4], 5, lane)); E(valu('v_and_b32', T_[5], 3, vROWN)); E(valu('v_lshl_add_u32', vROWP, T_[4], 4, T_[5]))
    E(smov(sT2, PP)); E(valu('v_mul_u32_u24', T_[4], sT2, q)); E(valu('v_lshl_add_u32', T_[4], r, 7, T_[4]))
    E(valu('v_lshl_add_u32', T_[4], c4, 3, T_[4])); E(valu('v_lshl_add_u32', vRW[0][0], rb1, 5, T_[4]))
    E(valu('v_mov_b32', vDP, vRW[0][0]))
    if MS:
        E(valu('v_and_b32', T_[4], 7, lane)); E(valu('v_bfe_u32', T_[5], lane, 4, 1)); E(valu('v_lshlrev_b32', T_[5], 2, T_[5]))
        E(valu('v_xor_b32', T_[4], T_[4], T_[5])); E(valu('v_lshlrev_b32', vSWZM, 4, T_[4]))
        E(valu('v_bfe_u32', q, lane, 4, 1)); E(valu('v_lshlrev_b32', q, 5, q))
        E(valu('v_and_b32', T_[4], 1, lane)); E(valu('v_lshl_add_u32', q, T_[4], 4, q))
        E(valu('v_bfe_u32', T_[4], lane, 1, 1)); E(valu('v_lshl_add_u32', q, T_[4], 3, q))
        E(valu('v_lshrrev_b32', T_[5], 5, lane))
        E(smov(sT2, PP)); E(valu('v_mad_u32_u24', T_[4], T_[5], sT2, q)); E(valu('v_lshl_add_u32', T_[4], r, 7, T_[4]))
        E(valu('v_lshl_add_u32', vRW[0][0], rb1, 6, T_[4])); E(valu('v_xor_b32', rb1, 1, rb1)); E(valu('v_lshl_add_u32', vRW[0][1], rb1, 6, T_[4]))
        if kind in 'FM':
            E(valu('v_lshl_add_u32', vRH[0], T_[5], 9, q)); E(valu('v_lshl_add_u32', vRH[0], r, 6, vRH[0]))
            E(valu('v_lshlrev_b32', T_[4], 4, c4)); E(valu('v_lshrrev_b32', T_[5], 2, lane)); E(smov(sT2, 9216))
            E(valu('v_mad_u32_u24', vOFFH, T_[5], sT2, T_[4]))
        E(valu('v_lshrrev_b32', q, 4, lane))
    else:
        E(valu('v_xor_b32', vRW[0][1], 32, vRW[0][0]))
    for b in (1, 2):
        for T in range(2): E(valu('v_add_u32', vRW[b][T], 65536 * b, vRW[0][T]))
    if kind in 'FM' and not MS:
        E(valu('v_lshlrev_b32', T_[4], 9, q)); E(valu('v_lshl_add_u32', T_[4], r, 6, T_[4])); E(valu('v_lshl_add_u32', T_[4], c4, 3, T_[4]))
        E(valu('v_and_b32', T_[5], 1, q)); E(valu('v_lshl_add_u32', vRH[0], T_[5], 5, T_[4])); E(valu('v_xor_b32', vRH[1], 32, vRH[0]))
        E(valu('v_lshrrev_b32', T_[4], 5, lane)); E(valu('v_lshlrev_b32', T_[4], 1, T_[4])); E(valu('v_xor_b32', T_[4], T_[4], c4))
        E(valu('v_lshlrev_b32', T_[4], 4, T_[4])); E(valu('v_lshrrev_b32', T_[5], 2, lane)); E(smov(sT2, 9216))
        E(valu('v_mad_u32_u24', vOFFH, T_[5], sT2, T_[4]))
    if kind in 'AM':
        E(valu('v_and_b32', T_[4], 15, lane)); E(valu('v_xor_b32', T_[4], T_[4], q)); E(valu('v_lshlrev_b32', T_[4], 4, T_[4]))
        E(valu('v_lshl_add_u32', vOFFK, q, 8, T_[4]))
    E(set_offw(8192 if kind in 'AM' else 9216, 'M' if MS else 'S'))
    if MS:
        XA = [v(20), v(21), v(22), v(39)]
        E(valu('v_and_b32', T_[4], 31, lane)); E(valu('v_bfe_u32', T_[5], lane, 1, 3)); E(valu('v_lshrrev_b32', q, 5, lane)); E(valu('v_xor_b32', T_[5], T_[5], q))
        E(valu('v_lshlrev_b32', T_[4], 7, T_[4])); E(valu('v_add_u32', T_[4], s(6), T_[4]))
        E(valu('v_lshl_add_u32', XA[0], T_[5], 4, T_[4]))
        for tt in range(1, 4): E(valu('v_xor_b32', XA[tt], 32 * tt, XA[0]))
    else:
        E(valu('v_and_b32', T_[4], 15, lane)); E(valu('v_bfe_u32', T_[5], lane, 1, 3)); E(valu('v_xor_b32', T_[5], T_[5], q))
        E(valu('v_lshlrev_b32', T_[4], 7, T_[4])); E(valu('v_add_u32', T_[4], s(6), T_[4]))
        E(valu('v_lshl_add_u32', v(20), T_[5], 4, T_[4])); E(valu('v_xor_b32', v(21), 64, v(20)))
        if kind in 'AM':
            E(smov(sT2, PP)); E(valu('v_mul_u32_u24', v(22), sT2, r)); E(valu('v_lshl_add_u32', v(22), c4, 8, v(22)))
            E(valu('v_xor_b32', T_[4], q, c4)); E(valu('v_lshl_add_u32', v(22), T_[4], 4, v(22)))
    E(valu('v_lshlrev_b32', vLANE16, 4, lane))
    if CFG['stamps'] == 2: E(valu('v_mov_b32', vSTAMP, 0))
    if CFG['fused'] and CFG.get('rep') and kind in 'FM':
        E(rep_addr(kind, v(24), v(25))); E(valu('v_mov_b32', v(25), 0))
        z = bstore('buffer_store_dword', v(25), v(24), sWS, 0, flags='sc1'); z.tag = 'zero'; E(z)
    E = p.emit
    sONE = s(97) if ILV else sT2
    SA = 56 if ILV else 28
    for i in range(8): E(valu('v_mov_b32', v(SA + i), 0))
    E(smov(sONE, 0x3f803f80))
    def stats(j):
        for tt in range(2):
            for g in range(2):
                for qd in range(4):
                    x = X(2 * j + tt, g)[qd]
                    E(valu('v_dot2c_f32_bf16', v(SA + 2 * g + (qd & 1)), sONE, x, rmw=True))
                    E(valu('v_dot2c_f32_bf16', v(SA + 4 + 2 * g + (qd & 1)), x, x, rmw=True))
    PS(57)
    for j in range(9):
        E(waitvm(p.vm_wait_for(lambda t: t == ('x', j))))
        if j == 0: PS(58)
        if MS:
            for tt in range(4): E(ds_b128(XM(4 * j + tt), XA[tt], j * 4096))
        else:
            for tt in range(2):
                for g in range(2): E(ds_b128(X(2 * j + tt, g), v(20 + tt), j * 4096 + g * 2048))
        if j + CFG['xe'] < 9: E(xdma(j + CFG['xe']))
        if CFG['pf'] >= 3 and CFG.get('epf', 1) == 1 and j == max(8 - CFG['xe'], 0): E(early_pf)
        if ILV:
            nper = -(-len(setup) // max(CFG['ilv'] - j, 1))
            while nper < len(setup) and (SCC in setup[nper].rd or setup[nper].txt.startswith('s_cselect') or VCC in setup[nper].rd): nper += 1
            E(setup[:nper]); del setup[:nper]
        if j >= 1:
            E(waitlg(4)); stats(j - 1)
    E(waitlg(0)); PS(59); E(barrier())
    if CFG.get('codepf', 3) == 2: E(I(f"global_load_dword {vDUM}, v46, s[100:101]", 'vload', wr=vDUM.regs(), rd=vr(46) + sr(100, 2), tag='pf'))
    if CFG['pf'] >= 3 and CFG.get('epf', 1) == 2: E(early_pf)
    pend = []
    for k in range(2 if CFG.get('pro2') else 3):
        st = R.stages[k]
        if st.pre_dma: pend.append(st.pre_dma())
        pend += st.dma(k, False)
    if CFG.get('epf', 1) == 4: pend[CFG.get('epos', 9):CFG.get('epos', 9)] = [early_pf[1:3], early_pf[3:5]]
    d0 = CFG.get('d0', 9)
    for it in pend[:d0]: E(it)
    pend = pend[d0:]
    PS(60)
    stats(8)
    acc4 = [v(SA), v(SA + 2), v(SA + 4), v(SA + 6)]
    for x in acc4: E(valu('v_add_f32', x, x, v(x.n + 1)))
    if MS:
        for b_ in (0, 2):
            E(valu('v_add_f32', acc4[b_], acc4[b_], acc4[b_ + 1]))
        for b_ in (0, 2): E(valu('v_mov_b32', acc4[b_ + 1], acc4[b_]))
    for op in (('v_permlane32_swap_b32',) if MS else ('v_permlane16_swap_b32', 'v_permlane32_swap_b32')):
        for x in acc4: E(valu('v_mov_b32', v(x.n + 1), x))
        for x in acc4: E(valu(op, x, v(x.n + 1), rmw=True, extra_wr=[v(x.n + 1)]))
        for x in acc4: E(valu('v_add_f32', x, x, v(x.n + 1)))
    for x in acc4: E(valu('v_mul_f32', x, f2u(1.0 / 576), x))
    for g in range(2): E(valu('v_fma_f32', acc4[2 + g], '-' + str(acc4[g]), acc4[g], acc4[2 + g]))
    for g in range(2): E(valu('v_max_f32', acc4[2 + g], 0, acc4[2 + g]))
    for g in range(2): E(valu('v_add_f32', acc4[2 + g], f2u(1e-5), acc4[2 + g]))
    for g in range(2): E(valu('v_rsq_f32', acc4[2 + g], acc4[2 + g]))
    for g in range(2): E(valu('v_mul_f32', acc4[2 + g], f2u(-LOG2E), acc4[2 + g]))
    for g in range(2): E(valu('v_mov_b32', v(20 + g), acc4[g]))
    for g in range(2): E(valu('v_mul_f32', acc4[g], '-' + str(acc4[g]), acc4[2 + g], extra_rd=[acc4[g]]))
    E(smov(sT2, 0xffff0000))
    if CFG.get('dotn'):
        cl = [v(SA + 1), v(SA + 3)]; ch = [v(SA + 5), v(SA + 7)]
        for g in range(2): E(valu('v_cvt_pk_bf16_f32', cl[g], acc4[2 + g], 0))
        for g in range(2): E(valu('v_lshlrev_b32', ch[g], 16, cl[g]))
        for g in range(2): E(valu('v_mul_f32', acc4[g], '-' + str(v(20 + g)), ch[g], extra_rd=[v(20 + g)]))
    PS(61)
    n = 0
    for t in range(18):
        for g in range(2):
            tps = [v(24, 2), v(26, 2), v(16, 2), v(18, 2)]
            x = X(t, g)
            if CFG.get('dotn'):
                for qd in range(4):
                    E(valu('v_dot2_f32_bf16', tps[qd][0], x[qd], cl[g], acc4[g])); E(valu('v_dot2_f32_bf16', tps[qd][1], x[qd], ch[g], acc4[g]))
            else:
                for qd in range(4):
                    E(valu('v_lshlrev_b32', tps[qd][0], 16, x[qd])); E(valu('v_and_b32', tps[qd][1], sT2, x[qd]))
                for qd in range(4): E(valu('v_pk_fma_f32', tps[qd], tps[qd], v(acc4[2 + g].n, 2), v(acc4[g].n, 2), mods='op_sel_hi:[1,0,0]'))
            for qd in range(4): E(valu('v_cvt_pk_bf16_f32', x[qd], tps[qd][0], tps[qd][1]))
            if pend and n % CFG.get('dn', 2) == 0: E(pend.pop(0))
            n += 1
    for it in pend: E(it)
    if CFG['fused']:
        E(valu('v_mov_b32', v(24), 1)); E(waitvm(p.vm_wait_for(lambda t: t == 'zero')))
        E(I(f"buffer_atomic_add v24, v23, {sDBG}, 0 offen sc1", 'vstore', rd=vr(23, 2) + sDBG.regs(), units=3, tag='init'))
    for _ in range(CFG.get('idle', 0)): E(raw("s_sleep 16"))
    PS(62)
    if kind in 'AM' and MS:
        ln, m_, key, t_ = v(16), v(17), v(18), v(19)
        E([valu('v_lshrrev_b32', ln, 4, vLANE16), valu('v_and_b32', key, 19, ln),
           valu('v_bfe_u32', t_, ln, 2, 1), valu('v_lshl_add_u32', key, t_, 3, key),
           valu('v_bfe_u32', t_, ln, 3, 1), valu('v_lshl_add_u32', key, t_, 2, key),
           valu('v_lshrrev_b32', m_, 2, key), smov(sT2, PP), valu('v_mul_u32_u24', m_, sT2, m_),
           valu('v_and_b32', key, 3, key), valu('v_lshl_add_u32', m_, key, 8, m_),
           valu('v_lshrrev_b32', t_, 5, ln), valu('v_xor_b32', t_, t_, key),
           valu('v_lshl_add_u32', vRKM[0], t_, 4, m_), valu('v_xor_b32', vRKM[1], 32, vRKM[0])])
    elif kind in 'AM':
        E(valu('v_mov_b32', vRK[0], v(22))); E(valu('v_add_u32', vRK[1], 65536, v(22))); E(valu('v_add_u32', vRK[2], 131072, v(22)))
    if CFG['stamps']: E(raw(f"v_writelane_b32 {vSTAMP}, s96, 55", 'valu', wr=[vSTAMP], rd=[s(96)])) if kind != 'A' else None
    if CFG['stamps']: E(smov(s(43), s(96)))
    nlr = {'F': 10, 'A': 11, 'M': 8}[kind]
    if kind != 'M': E([valu('v_lshrrev_b32', vPF2, 16, vTID), valu('v_and_b32', vPFR, 63, vTID), valu('v_min_u32', vPFR, nlr - 1, vPFR),
       valu('v_mad_u32_u24', vPFR, vPF2, nlr, vPFR), valu('v_lshlrev_b32', vPFR, 7, vPFR)])
    if CFG['stamps']: E(smov(s(97), 0))
    E(smov(sLN0, f2u(-1.0 / math.sqrt(128.0))))

def slow_check(R, heads, base2):
    def f():
        p = R.p; E = p.emit
        t = v(254); lo = v(255)
        E(valu('v_mov_b32', lo, f2u(2.0 ** -40))); E(smov(sT3, f2u(2.0 ** 40)))
        for (hd, Q, O) in heads:
            L = f"L_{R.kind}_slow{hd}"
            if CFG['shape'] == 'M':
                E(valu('v_med3_f32', t, Lsave[hd], sT3, lo))
                E(raw(f"v_cmp_neq_f32 vcc, {t}, {Lsave[hd]}", 'valu', wr=['vcc'], rd=[t, Lsave[hd]])); E(nop(4))
            else:
                E(valu('v_med3_f32', t, Lsave[2 * hd], sT3, lo))
                E(raw(f"v_cmp_neq_f32 s[98:99], {t}, {Lsave[2 * hd]}", 'valu', wr=[s(98, 2)], rd=[t, Lsave[2 * hd]]))
                E(valu('v_med3_f32', t, Lsave[2 * hd + 1], sT3, lo))
                E(raw(f"v_cmp_neq_f32 vcc, {t}, {Lsave[2 * hd + 1]}", 'valu', wr=['vcc'], rd=[t, Lsave[2 * hd + 1]])); E(nop(4))
                E(raw("s_or_b64 vcc, vcc, s[98:99]", 'salu', wr=['vcc'], rd=['vcc', s(98, 2)])); E(nop(1))
            if CFG.get('force_slow'): E(raw(f"s_mov_b64 vcc, -1", 'salu', wr=['vcc']))
            E(raw(f"s_cbranch_vccz {L}_ret"))
            E(raw(f"s_call_b64 {sRET}, {L}"))
            E(label(f"{L}_ret"))
            R.slow.append((slow_path if CFG['shape'] == 'M' else slow_pathS)(L, hd, Q, O, base2))
        E(nop(1))
    return f

def slow_path(L, hd, Q, Odst, b2):
    p = Prog(); E = p.emit
    O = v(48, 64); S = v(b2, 16); P = v(b2 + 16, 8); F = v(b2 + 24, 16)
    vK, vV, vM, vL, t0, t1 = [v(b2 + 40 + i) for i in range(6)]
    sB, sJ, sO = s(98), s(99), s(97)
    E(I(".p2align 2", 'label')); E(label(L))
    E(nop(7)); E(nop(7))
    E([valu('v_lshrrev_b32', t0, 4, vLANE16), valu('v_and_b32', vK, 19, t0), valu('v_bfe_u32', t1, t0, 2, 1), valu('v_lshl_add_u32', vK, t1, 3, vK),
       valu('v_bfe_u32', t1, t0, 3, 1), valu('v_lshl_add_u32', vK, t1, 2, vK), valu('v_lshrrev_b32', t1, 5, t0),
       valu('v_lshlrev_b32', vV, 1, vK), valu('v_lshl_add_u32', vV, t1, 11, vV),
       valu('v_lshlrev_b32', vK, 8, vK), valu('v_lshl_add_u32', vK, t1, 4, vK)])
    E([mul(sB, sROLE, 3), add(sB, sB, hd), shr(sB, sB, 1), shl(sB, sB, 19), add(sB, sB, 1536 * 256)])
    def qk():
        for half in range(2):
            for t in range(4): E(bload('buffer_load_dwordx4', F.sub(4 * t, 4), vK, sK, sO, (4 * half + t) * 32))
            E(waitvm(0))
            for t in range(4):
                tt = 4 * half + t
                E(mfma(S, F.sub(4 * t, 4), Q.sub(4 * tt, 4), 0 if tt == 0 else S))
            E(nop(7)); E(nop(7))
    E(valu('v_mov_b32', vM, 0xff800000)); E(smov(sJ, 0))
    E(label(L + "_a"))
    E(add(sO, sB, sJ)); qk()
    for i in range(0, 16, 2): E(valu('v_max3_f32', vM, vM, S[i], S[i + 1]))
    E(add(sJ, sJ, 8192)); E(salu('s_cmp_lt_u32', None, sJ, 16 * 8192)); E(raw(f"s_cbranch_scc1 {L}_a"))
    E(valu('v_mov_b32', t0, vM)); E(valu('v_permlane32_swap_b32', vM, t0, rmw=True, extra_wr=[t0])); E(valu('v_max_f32', vM, vM, t0))
    for i in range(64): E(valu('v_mov_b32', O[i], 0))
    E(valu('v_mov_b32', vL, 0)); E(smov(sJ, 0))
    E(label(L + "_b"))
    E(add(sO, sB, sJ)); qk()
    for i in range(16): E(valu('v_sub_f32', S[i], S[i], vM))
    for i in range(16): E(valu('v_exp_f32', S[i], S[i]))
    for i in range(16): E(valu('v_add_f32', vL, vL, S[i]))
    for q in range(8): E(valu('v_cvt_pk_bf16_f32', P[q], S[2 * q], S[2 * q + 1]))
    for u in range(2):
        for tp in range(2):
            for tq in range(2):
                for j in range(8):
                    E(bload('buffer_load_ushort', F[8 * (j & 1) + 4 * tq + j // 2], vV, sV, sO, j * 256 + (2 * tp + tq) * 64))
            E(waitvm(0))
            for i in range(8): E(valu('v_lshl_or_b32', F[i], F[8 + i], 16, F[i]))
            for tq in range(2):
                D_ = O.sub(16 * (2 * tp + tq), 16)
                E(mfma(D_, F.sub(4 * tq, 4), P.sub(4 * u, 4), D_))
            E(nop(7))
        if u == 0: E(add(sO, sO, 4096))
    E(add(sJ, sJ, 8192)); E(salu('s_cmp_lt_u32', None, sJ, 16 * 8192)); E(raw(f"s_cbranch_scc1 {L}_b"))
    E(nop(7)); E(nop(7))
    E(valu('v_mov_b32', t0, vL)); E(valu('v_permlane32_swap_b32', vL, t0, rmw=True, extra_wr=[t0])); E(valu('v_add_f32', vL, vL, t0))
    E(valu('v_rcp_f32', t0, vL))
    for tau in range(4):
        A_ = O.sub(16 * tau, 16)
        for e in range(16): E(valu('v_mul_f32', A_[e], A_[e], t0))
        for q in range(8): E(valu('v_cvt_pk_bf16_f32', A_[2 * q], A_[2 * q], A_[2 * q + 1]))
        for q in range(4): E(valu('v_permlane16_swap_b32', A_[2 * q], A_[2 * q + 8], rmw=True, extra_wr=[A_[2 * q + 8]]))
        for q in range(8): E(valu('v_accvgpr_write_b32', Odst[8 * tau + q], A_[2 * q]))
    E(nop(1)); E(raw(f"s_setpc_b64 {sRET}"))
    return p

def slow_pathS(L, hd, Q, Odst, b2):
    p = Prog(); E = p.emit
    ob = 48; kv = None
    if isinstance(b2, tuple): b2, ob = b2
    if isinstance(Odst, tuple):
        OFf, kv = Odst
        class _D:
            def __getitem__(s_, i): return OFf(i // 8)[i % 8]
        Odst = _D()
    O = v(ob, 64); S = v(b2, 16); P = v(b2 + 16, 8); F = v(b2 + 24, 16)
    vK, vV, t0, t1 = [v(b2 + 40 + i) for i in range(4)]
    vM = [v(b2 + 44), v(b2 + 45)]; vL = [v(b2 + 46), v(b2 + 47)]
    sB, sJ, sO = s(98), s(99), s(97)
    E(I(".p2align 2", 'label')); E(label(L))
    E(nop(7)); E(nop(7))
    E([valu('v_lshrrev_b32', t0, 4, vLANE16), valu('v_and_b32', t1, 15, t0), valu('v_lshrrev_b32', t0, 4, t0),
       valu('v_lshlrev_b32', vK, 8, t1), valu('v_lshl_add_u32', vK, t0, 4, vK),
       valu('v_lshlrev_b32', vV, 1, t1), valu('v_lshl_add_u32', vV, t0, 10, vV)])
    if kv is not None: E(smov(sB, kv))
    else: E([mul(sB, sROLE, 3), add(sB, sB, hd), shr(sB, sB, 1), shl(sB, sB, 19), add(sB, sB, 1536 * 256)])
    def qk():
        for T in range(2):
            E(add(sO, sB, sJ)) if T == 0 else E(add(sO, sO, 4096))
            for t in range(4): E(bload('buffer_load_dwordx4', F.sub(4 * t, 4), vK, sK, sO, t * 64))
            E(waitvm(0))
            for t in range(4):
                for g_ in range(2):
                    D_ = S.sub(8 * T + 4 * g_, 4)
                    E(mfma(D_, F.sub(4 * t, 4), Q.sub(8 * t + 4 * g_, 4), 0 if t == 0 else D_))
            E(nop(7)); E(nop(3))
    def allq(x, op):
        for sw in ('v_permlane16_swap_b32', 'v_permlane32_swap_b32'):
            E(valu('v_mov_b32', t0, x)); E(valu(sw, x, t0, rmw=True, extra_wr=[t0])); E(valu(op, x, x, t0))
    for g_ in range(2): E(valu('v_mov_b32', vM[g_], 0xff800000))
    E(smov(sJ, 0))
    E(label(L + "_a"))
    qk()
    for T in range(2):
        for g_ in range(2):
            for i in (0, 2): E(valu('v_max3_f32', vM[g_], vM[g_], S[8 * T + 4 * g_ + i], S[8 * T + 4 * g_ + i + 1]))
    E(add(sJ, sJ, 8192)); E(salu('s_cmp_lt_u32', None, sJ, 16 * 8192)); E(raw(f"s_cbranch_scc1 {L}_a"))
    for g_ in range(2): allq(vM[g_], 'v_max_f32')
    for i in range(64): E(valu('v_mov_b32', O[i], 0))
    for g_ in range(2): E(valu('v_mov_b32', vL[g_], 0))
    E(smov(sJ, 0))
    E(label(L + "_b"))
    qk()
    for i in range(16): E(valu('v_sub_f32', S[i], S[i], vM[(i >> 2) & 1]))
    for i in range(16): E(valu('v_exp_f32', S[i], S[i]))
    for i in range(16): E(valu('v_add_f32', vL[(i >> 2) & 1], vL[(i >> 2) & 1], S[i]))
    for g_ in range(2):
        for T in range(2):
            for k in range(2): E(valu('v_cvt_pk_bf16_f32', P[4 * g_ + 2 * T + k], S[8 * T + 4 * g_ + 2 * k], S[8 * T + 4 * g_ + 2 * k + 1]))
    for tp in range(4):
        for jh in range(2):
            E(add(sO, sB, sJ)) if jh == 0 else E(add(sO, sO, 4096))
            for tq in range(2):
                for jl in range(4):
                    j = 4 * jh + jl
                    E(bload('buffer_load_ushort', F[8 * (j & 1) + 4 * tq + j // 2], vV, sV, sO, jl * 256 + (2 * tp + tq) * 32))
        E(waitvm(0))
        for i in range(8): E(valu('v_lshl_or_b32', F[i], F[8 + i], 16, F[i]))
        for tq in range(2):
            for g_ in range(2):
                D_ = O.sub(8 * (2 * tp + tq) + 4 * g_, 4)
                E(mfma(D_, F.sub(4 * tq, 4), P.sub(4 * g_, 4), D_))
        E(nop(7))
    E(add(sJ, sJ, 8192)); E(salu('s_cmp_lt_u32', None, sJ, 16 * 8192)); E(raw(f"s_cbranch_scc1 {L}_b"))
    E(nop(7)); E(nop(3))
    for g_ in range(2): allq(vL[g_], 'v_add_f32')
    for g_ in range(2): E(valu('v_rcp_f32', vL[g_], vL[g_]))
    for i in range(64): E(valu('v_mul_f32', O[i], O[i], vL[(i >> 2) & 1]))
    for kk in range(4):
        for g_ in range(2):
            for T in range(2):
                for c in range(2):
                    r = 8 * (2 * kk + T) + 4 * g_ + 2 * c
                    E(valu('v_cvt_pk_bf16_f32', O[r], O[r], O[r + 1])); E(valu('v_accvgpr_write_b32', Odst[8 * kk + 4 * g_ + 2 * T + c], O[r]))
    E(nop(1)); E(raw(f"s_setpc_b64 {sRET}"))
    return p

NREP = 6
ABN = 4096
BAL2 = [10, 11, 22, 13, 14, 21, 12, 17, 15, 19]; BALM = [63, 63, 63, 63, 63, 63, 16, 63, 18, 63]; BAL3 = [28, 29, 23, 30, 31, 24, 32, 33, 34, 35]
sMD2 = s(84)
def BMB(): return 20 if CFG.get('bal') == 2 else 16
def rep_addr(kind, dst, t):
    return [shl(sT2, sRB, 14), add(sT2, sT2, CTRL + 2048), add(sT3, sROLE, NS - NA), shl(sT3, sT3, 2), add(sT2, sT2, sT3),
            salu('s_cmp_eq_u32', None, sWAVE, 0), csel(sT2, sT2, OOB),
            valu('v_lshlrev_b32', dst, 3, vLANE16), valu('v_add_u32', dst, sT2, dst), valu('v_mov_b32', t, OOB),
            raw(f"v_cmp_gt_u32 vcc, {hex(NA * NREP * 16)}, {vLANE16}", 'valu', wr=['vcc'], rd=[vLANE16]), valu('v_cndmask_b32', dst, t, dst, 'vcc')]
vCR = v(31)
def add_signals(R):
    P2 = [k for k, st in enumerate(R.stages) if st.name.startswith('P2')]
    def sig(first):
        def f():
            out = [valu('v_add_u32', vPRG, 1, vPRG)]
            return out + [bstore('buffer_store_dword', vPRG, vCT, sWS, 0, flags='sc1')]
        return f
    def sig7():
        return [valu('v_add_u32', vPRG, 1, vPRG), bstore('buffer_store_dword', vPRG, vCR, sWS, 0, flags='sc1'), bstore('buffer_store_dword', vPRG, vCT, sWS, 0, flags='sc1')]
    def chain(stages, base):
        firsts = [k for k in stages if R.stages[k].sub == 0]
        for c in range(8):
            k = firsts[c + 1] + CFG.get('siglag', {}).get(R.kind, 2)
            if k > stages[-1]: break
            R.stages[k].cover_st = base + c; R.stages[k].post_bar = sig(c == 0)
            if c == 7 and CFG.get('rep') and R.kind in 'FM': R.stages[k].post_bar = sig7
        if CFG.get('rep') and R.kind in 'FM': R.pf.setdefault(firsts[1], []).append(lambda: rep_addr(R.kind, vCR, vPF))
    chain(P2, 0)
    R.stages[P2[0]].post_bar = lambda: [valu('v_mov_b32', vPRG, 0)]

LDSC = 4 * SLOT
sAB = s(72, 2); sRM = s(74, 2); sCD = s(98, 2)
sRS, sRF, sSP, sC, sI, sPB, sPART, sOK, sPAR, sXW, sPWv, sTO = s(78), s(79), s(71), s(80), s(81), s(82), s(47), s(40), s(41), s(59), s(3), s(58)
sIT = [s(42), s(44), s(45)]; sXP = [s(46), s(60), s(61)]
sRET2 = s(66, 2)
vP, vD, vA, vO, vXO, vL4, vDO, vLA, vIT, vLD, vSC = [v(16 + i) for i in range(11)]
vX4 = v(28)
def s64(op, d, *src, scc_r=False): return salu(op, d, *src, scc_r=scc_r)
sPV = s(76)
def red_setup(kind):
    o = [shl(sPB, sRB, 14), add(sPB, sPB, CTRL), salu('s_cmp_eq_u32', None, sWAVE, 0), csel(sT3, 0, OOB),
         valu('v_lshrrev_b32', vL4, 2, vLANE16), valu('v_add_u32', vL4, sT3, vL4),
         valu('v_mov_b32', vSC, OOB), add(sT2, sT3, 4 * NPART), raw(f"v_writelane_b32 {vSC}, {sT2}, 0", 'valu', wr=[vSC], rd=[sT2, vSC]),
         valu('v_mov_b32', vS1, vSC), valu('v_min_u32', vL5, NPART * 16, vLANE16), valu('v_lshrrev_b32', vL5, 2, vL5), valu('v_add_u32', vL5, sT3, vL5),
         add(sT2, sT3, 252), raw(f"v_writelane_b32 {vSC}, {sT2}, 1", 'valu', wr=[vSC], rd=[sT2, vSC]),
         shl(sT2, sRB, 4), add(sT2, sT2, sT3), valu('v_mov_b32', vDO, 256), raw(f"v_writelane_b32 {vDO}, {sT2}, 0", 'valu', wr=[vDO], rd=[sT2, vDO])]
    if kind == 'A' or (kind == 'M' and CFG.get('mpriv')) or CFG.get('mpriv') == 5: o += [shl(sPV, sROLE, 7), add(sPV, sPV, 256), add(sPV, sPV, sPB)]
    if CFG.get('abn'): o += [shl(sAV_, sROLE, 8), add(sAV_, sAV_, ABN), add(sAV_, sAV_, sPB)]
    return o
vS1, vL5 = v(29), v(30)
sAV_ = s(76 + 1); vP2 = v(31)
def ab_load(): return bload('buffer_load_dword', vP2, vL4, sWS, sAV_, flags='sc1')
def ab_eval():
    return [raw(f"v_cmp_ne_u32 vcc, 0, {vP2}", 'valu', wr=['vcc'], rd=[vP2]), nop(1), raw(f"s_mov_b32 {sAB[0]}, vcc_lo", 'salu', wr=[sAB[0]], rd=['vcc']), raw(f"s_and_b32 {sAB[1]}, vcc_hi, 15", 'salu', wr=[sAB[1]], rd=['vcc'])]
PRIV = [False]
def red_poll(shared=False):
    cnt = [valu('v_mov_b32', vD, 0), I(f"buffer_atomic_add {vD}, {vDO}, {sDBG}, 0 offen sc0 sc1", 'vload', wr=vD.regs(), rd=vD.regs() + vDO.regs() + sDBG.regs(), units=3)]
    if PRIV[0] and not shared:
        return [cnt, [bstore('buffer_store_dword', vS1, vS1, sWS, sPV, flags='sc1'), bload('buffer_load_dword', vP, vL5, sWS, sPV, flags='sc1')]]
    return [cnt, [bstore('buffer_store_dword', vSC, vSC, sWS, sPB, flags='sc1'), bload('buffer_load_dword', vP, vL4, sWS, sPB, flags='sc1')]]
vG = [v(28), v(29), v(30)]; vGA = v(31); vGP = v(27)
def l2pf_setup():
    return [valu('v_lshrrev_b32', vGP, 7, vLANE16), smov(sT2, PSTR()), valu('v_mul_lo_u32', vGA, vGP, sT2),
            valu('v_bfe_u32', vA, vLANE16, 4, 3), valu('v_lshl_add_u32', vGA, vA, 7, vGA), shl(sT2, sWAVE, 10), valu('v_add_u32', vGA, sT2, vGA),
            valu('v_lshlrev_b32', vGP, 2, vGP), valu('v_mov_b32', vA, OOB), smov(sT2, 68), raw(f"v_writelane_b32 {vA}, {sT2}, 0", 'valu', wr=[vA], rd=[vA, sT2])]
def l2pf_poll():
    st = bstore('buffer_store_dword', vA, vA, sWS, sPB, flags='sc1')
    out = [[st]]
    for i in range(3):
        ld = bload('buffer_load_dword', vG[i], vGP, sWS, sPB, 32 * i, flags='sc1'); ld.tag = 'gp'
        out.append([ld])
    return out
def l2pf_issue(R, dlt):
    out = [[add(sI, sROLE, dlt), salu('s_and_b32', sT2, sI, 3), shr(sC, sI, 2), shl(sT3, sRB, 2), add(sT2, sT2, sT3), mul(sSP, sT2, PWAVE),
            shl(sT3, sC, 12), add(sSP, sSP, sT3), valu('v_mov_b32', vO, OOB)]]
    for i in range(3):
        ld = bload('buffer_load_dword', vDUM, vG[i], sWS, sT2); ld.tag = 'pf'
        cmp_ = raw(f"v_cmp_lt_u32 vcc, {sC}, {vG[i]}", 'valu', wr=['vcc'], rd=[sC, vG[i]])
        pre = [cmp_]
        if i == 2: pre += [raw("s_and_b64 vcc, vcc, 0xff", 'salu', wr=['vcc'], rd=['vcc'])]
        out.append(pre + [add(sT2, sSP, 8 * i * PSTR()), valu('v_cndmask_b32', vG[i], vO, vGA, 'vcc'), ld])
    return out
def red_eval():
    o = [raw(f"v_cmp_ne_u32 vcc, 0, {vP}", 'valu', wr=['vcc'], rd=[vP]), nop(1),
         raw(f"s_lshr_b64 {sAB}, vcc, {NPART + 1}", 'salu', wr=[sAB], rd=['vcc']), salu('s_and_b32', sAB[1], sAB[1], 15), smov(sRS, 0), smov(sRF, 0)]
    for c in range(9):
        o += [raw(f"v_cmp_ge_u32 vcc, {c}, {vP}", 'valu', wr=['vcc'], rd=[vP]), nop(1),
              raw(f"s_and_b32 {sT2}, vcc_lo, {hex((1 << NS) - 1)}", 'salu', wr=[sT2], rd=['vcc']), csel(sRS, sRS, 4 * (c + 1)),
              raw(f"s_and_b32 {sT2}, vcc_lo, {hex((1 << NPART) - (1 << NS))}", 'salu', wr=[sT2], rd=['vcc']), csel(sRF, sRF, 4 * (c + 1))]
    return o
def red_pub(par):
    return [shl(sT2, sRF, 8), salu('s_or_b32', sT2, sT2, sRS), shl(sT3, sTO, 16), salu('s_or_b32', sT2, sT2, sT3),
            valu('v_mov_b32', vIT, sT2), valu('v_mov_b32', vLA, par), raw(f"ds_write_b32 {vLA}, {vIT}", 'other', rd=[vLA, vIT]), waitlg(0)]
def red_get(par):
    return [valu('v_mov_b32', vLA, par), raw(f"ds_read_b32 {vIT}, {vLA}", 'ds', wr=[vIT], rd=[vLA]), waitlg(0),
            valu('v_readfirstlane_b32', sT2, vIT), salu('s_and_b32', sRS, sT2, 255), salu('s_bfe_u32', sRF, sT2, (8 << 16) | 8), shr(sTO, sT2, 16)]
def red_early(p, n):
    E = p.emit
    E([smov(sRS, 0), smov(sRF, 0), smov(sOK, 0), smov(sTO, 0), smov(sPAR, LDSC + 4), nop(1)])
    E(salu('s_cmp_eq_u32', None, sWAVE, 0)); E(raw(f"s_cbranch_scc0 L_{n}_e2"))
    E(waitvm(p.vm_wait_for(lambda t: t == 'poll')))
    E(valu('v_readfirstlane_b32', sOK, vD))
    E(salu('s_cmp_ge_u32', None, sOK, 16)); E(raw(f"s_cbranch_scc0 L_{n}_e1"))
    E(red_eval())
    E(label(f"L_{n}_e1"))
    E(red_pub(LDSC))
    E(label(f"L_{n}_e2"))

def ld_part(L, ks, flags):
    out = []
    for k in ks:
        out.append([add(sT2, sPART, k * PSTR()), bload('buffer_load_dwordx4', v(L + 4 * k, 4), vLD, sWS, sT2, flags=flags)])
    return out
def ld_x(L, sXO_):
    if CFG.get('nox'): return [[valu('v_mov_b32', vA, OOB), bload('buffer_load_dwordx2', v(L + 4 * NPART, 2), vA, sX, sXO_)], [bload('buffer_load_dwordx2', v(L + 4 * NPART + 2, 2), vA, sX, sXO_, 32)]]
    return [[bload('buffer_load_dwordx2', v(L + 4 * NPART, 2), vXO, sX, sXO_)], [bload('buffer_load_dwordx2', v(L + 4 * NPART + 2, 2), vXO, sX, sXO_, 32)]]
RB_ = 48
sD0, sD1 = s(68), s(69)
def proc_sum(E, L, ks, after, loads):
    SA, FA, T = RB_, RB_ + 8, RB_ + 16
    issued = 0; ks = list(ks)
    E(smov(sT3, 0xffff0000))
    for j, k in enumerate(ks):
        if loads: E(loads.pop(0)); issued += 1
        E(waitvm(len(ks) - 1 - j + after + issued))
        acc = SA if k < NS else FA
        for q in range(4):
            x = v(L + 4 * k + q)
            if k in (0, NS):
                E(valu('v_lshlrev_b32', v(acc + 2 * q), 16, x)); E(valu('v_and_b32', v(acc + 2 * q + 1), sT3, x))
            else:
                E(valu('v_dot2c_f32_bf16', v(acc + 2 * q), sD0, x, rmw=True)); E(valu('v_dot2c_f32_bf16', v(acc + 2 * q + 1), sD1, x, rmw=True))
    return issued
def proc_fin(E, L, sXO_, xwait, loads):
    SA, FA, T = RB_, RB_ + 8, RB_ + 16; XR = L + 4 * NPART; issued = 0
    for e in range(8): E(valu('v_exp_f32', v(T + e), v(FA + e)))
    for e in range(8): E(valu('v_add_f32', v(T + e), 1.0, v(T + e)))
    while len(loads) > 1: E(loads.pop(0)); issued += 1
    for e in range(8): E(valu('v_rcp_f32', v(T + e), v(T + e)))
    for e in range(8): E(valu('v_mul_f32', v(FA + e), f2u(-math.log(2.0)), v(FA + e)))
    for e in range(8): E(valu('v_mul_f32', v(FA + e), v(FA + e), v(T + e)))
    while loads: E(loads.pop(0)); issued += 1
    if xwait is not None: E(waitvm(xwait + issued))
    for q in range(4):
        E(valu('v_lshlrev_b32', v(T + 2 * q), 16, v(XR + q))); E(valu('v_and_b32', v(T + 2 * q + 1), sT3, v(XR + q)))
    for e in range(8): E(valu('v_fma_f32', v(T + e), v(SA + e), v(FA + e), v(T + e)))
    for q in range(4): E(valu('v_cvt_pk_bf16_f32', v(XR + q), v(T + 2 * q), v(T + 2 * q + 1)))
    if CFG.get('out4', True):
        def dpp(d, src, bank): return I(f"v_mov_b32_dpp {d}, {src} row_ror:8 row_mask:0xf bank_mask:{bank}", 'perm', wr=d.regs(), rd=src.regs() + d.regs())
        for i in range(2): E(valu('v_permlane16_swap_b32', v(XR + i), v(XR + 2 + i), rmw=True, extra_wr=[v(XR + 2 + i)]))
        for i in range(2): E(valu('v_mov_b32', v(T + i), v(XR + i)))
        for i in range(2): E(dpp(v(XR + i), v(XR + 2 + i), '0xc'))
        for i in range(2): E(dpp(v(XR + 2 + i), v(T + i), '0x3'))
        E(bstore('buffer_store_dwordx4', v(XR, 4), vX4, sOUT, sXO_, flags=CFG.get('oflags', 'sc1')))
        E(valu('v_mov_b32', vO, OOB)); E(bstore('buffer_store_dword', vO, vO, sOUT, 0))
        return
    E(bstore('buffer_store_dwordx2', v(XR, 2), vXO, sOUT, sXO_)); E(bstore('buffer_store_dwordx2', v(XR + 2, 2), vXO, sOUT, sXO_, 32))
def proc_all(E, L, sXO_, pre, loads):
    loads = list(loads)
    n = proc_sum(E, L, range(NPART), 2 + pre, loads)
    proc_fin(E, L, sXO_, pre + n, loads)

def acc_part(E, L, k):
    acc = RB_ if k < NS else RB_ + 8
    for q in range(4):
        x = v(L + 4 * k + q)
        if k in (0, NS):
            E(valu('v_lshlrev_b32', v(acc + 2 * q), 16, x)); E(valu('v_and_b32', v(acc + 2 * q + 1), sT3, x))
        else:
            E(valu('v_dot2c_f32_bf16', v(acc + 2 * q), sD0, x, rmw=True)); E(valu('v_dot2c_f32_bf16', v(acc + 2 * q + 1), sD1, x, rmw=True))
def stream(E, segs, hooks=None):
    W = CFG.get('rwin', 8); FL = CFG.get('fflags', 'sc1')
    seq = []
    for (L, sP, sX_, ks, wx, fin) in segs:
        if wx:
            for it in ld_x(L, sX_): seq.append((it, None))
        ks = list(ks)
        for j, k in enumerate(ks):
            it = [add(sT2, sP, k * PSTR()), bload('buffer_load_dwordx4', v(L + 4 * k, 4), vLD, sWS, sT2, flags=FL)]
            last = fin and j == len(ks) - 1
            seq.append((it, (lambda L=L, k=k, last=last, sX_=sX_: (acc_part(E, L, k), proc_fin(E, L, sX_, None, []) if last else None, last)[2])))
    E(smov(sT3, 0xffff0000))
    n = len(seq); issued = 0
    extra_at = []
    for c in range(n):
        while issued < min(n, c + W): E(seq[issued][0]); issued += 1
        if hooks and c in hooks:
            for _ in range(hooks[c](issued + sum(1 for e in extra_at))): extra_at.append(issued)
            E(smov(sT3, 0xffff0000))
        if seq[c][1] is None: continue
        E(waitvm(issued - 1 - c + sum(1 for e in extra_at if e > c)))
        if seq[c][1]():
            extra_at += [issued, issued]

def body_items(E, n, its, two, ni, ensure, refresh, done, ST, seg, final_flag, poll_hook, LATE, L0, L1, FOUR, sMID, offs, sPT):
    if n == 'M' and CFG.get('m3') == 1:
        ensure(its[2], 1, 1); ST(its[0])
        stream(E, [seg(0, L0), seg(1, L1), seg(2, L0)], {4: (lambda _: (E(ab_load()), 1)[1])})
        for i in range(3): done(its[i])
        return
    E(salu('s_min_u32', sT2, sRS, sRF)); E(salu('s_cmp_lt_u32', None, its[two - 1], sT2)); E(raw(f"s_cbranch_scc0 L_{n}_sl"))
    ST(its[0])
    AB = CFG.get('abn')
    def ab_hook(_): E(ab_load()); return 1
    hooks = {(NPART + 2) * two - CFG.get('pollat', 8): poll_hook}
    if AB:
        if ni < 3: hooks = {}
        hooks[14 if LATE else 4] = ab_hook
    if LATE: hooks[CFG.get('flagat', 3) if n == 'A' else 0] = final_flag
    stream(E, [seg(0, L0), seg(1, L1)][:two], hooks)
    ST(51)
    E(raw(f"s_branch L_{n}_j"))
    E(label(f"L_{n}_sl"))
    if LATE and two == 2 and CFG.get('mid1', 1):
        E(salu('s_min_u32', sT2, sRS, sRF)); E(salu('s_cmp_lt_u32', None, its[0], sT2)); E(raw(f"s_cbranch_scc0 L_{n}_s0"))
        ST(52)
        stream(E, [seg(0, L0)], {CFG.get('flagat', 3): final_flag, 12: poll_hook}); done(its[0])
        refresh(2); ensure(its[1], 1, 1)
        stream(E, [seg(1, L1)], {11: poll_hook, 3: ab_hook} if AB else {11: poll_hook})
        E(raw(f"s_branch L_{n}_j"))
        E(label(f"L_{n}_s0"))
    if LATE: final_flag(0)
    for i in range(two):
        ensure(its[i], 1, 1)
        hk = {11: poll_hook} if (i == two - 1 and not (AB and ni < 3)) else {}
        if AB and i == two - 1: hk[4] = ab_hook
        stream(E, [seg(i, L0)], hk); done(its[i])
    E(label(f"L_{n}_j"))
    for i in range(two): done(its[i])
    if FOUR or ((CFG.get('asg') == 3 or CFG.get('bal')) and n == 'A'):
        E(salu('s_cmp_gt_u32', None, sMID, 35)); E(raw(f"s_cbranch_scc1 L_{n}_nm"))
        refresh(2)
        ensure(sMID, 1, 1); ST(sMID)
        E(offs(sMID, sXP[0]))
        stream(E, [seg(0, L1)], {13: poll_hook}); done(sMID)
        E(label(f"L_{n}_nm"))
    def warm():
        if not CFG.get('warm', 1): return
        E(valu('v_mov_b32', v(240), vLD)); E(valu('v_mov_b32', v(241), vX4)); E(valu('v_mov_b32', vLD, OOB)); E(valu('v_mov_b32', vX4, OOB))
        E(raw(f"s_call_b64 {sRET2}, L_{n}_ft"))
        E(valu('v_mov_b32', vLD, v(240))); E(valu('v_mov_b32', vX4, v(241)))
    if ni == 3:
        if CFG.get('asg') == 3:
            E(salu('s_cmp_lt_u32', None, its[2], 36)); E(raw(f"s_cbranch_scc1 L_{n}_h3"))
            E(red_poll(True)[1]); E(waitvm(0)); E(raw(f"s_branch L_{n}_fin")); E(label(f"L_{n}_h3"))
        refresh(2, AB and CFG.get('abx', 1))
        if CFG.get('nof'):
            E(salu('s_cmp_gt_u32', None, sMD2, 35)); E(raw(f"s_cbranch_scc1 L_{n}_k1"))
            ensure(sMD2, 1, 1); E(offs(sMD2, sXP[0])); ST(sMD2)
            E(salu('s_cmp_lt_u32', None, its[2], sRS)); E(raw(f"s_cbranch_scc0 L_{n}_k0"))
            E(salu('s_cmp_lt_u32', None, its[2], sRF)); E(raw(f"s_cbranch_scc1 L_{n}_k0"))
            warm()
            stream(E, [seg(0, L1), seg(2, L0, range(NS), True, False)], {20: poll_hook.sh}); done(sMD2)
            E(raw(f"s_branch L_{n}_k2"))
            E(label(f"L_{n}_k0"))
            stream(E, [seg(0, L1)], {11: poll_hook}); done(sMD2)
            refresh(2)
            E(label(f"L_{n}_k1"))
        if CFG.get('pw') == 2 and n == 'A':
            E(salu('s_cmp_eq_u32', None, sMD2, 0)); E(raw(f"s_cbranch_scc0 L_{n}_old"))
            vQ, vZ = v(242), v(243); FM_ = (1 << NPART) - (1 << NS); SM_ = (1 << NS) - 1
            E(valu('v_min_u32', vQ, NPART * 16, vLANE16)); E(valu('v_lshrrev_b32', vQ, 2, vQ))
            E(valu('v_mov_b32', vZ, OOB)); E(smov(sT2, 4 * NPART)); E(raw(f"v_writelane_b32 {vZ}, {sT2}, 0", 'valu', wr=[vZ], rd=[sT2, vZ]))
            E(shr(sC, its[2], 2))
            def drop(): return bstore('buffer_store_dword', vZ, vZ, sWS, sPV, flags='sc1')
            def test(mask):
                E(raw(f"v_cmp_ge_u32 vcc, {sC}, {vP}", 'valu', wr=['vcc'], rd=[vP, sC])); E(nop(1))
                E(raw(f"s_and_b32 {sI}, vcc_lo, {hex(FM_)}", 'salu', wr=[sI], rd=['vcc']))
                E(raw(f"s_and_b32 {sT2}, vcc_lo, {hex(mask)}", 'salu', wr=[sT2], rd=['vcc']))
            def waitpw(tag, mask):
                L = f"L_{n}_{tag}"
                E(smov(sSP, 0))
                E(label(L + "0"))
                E(bload('buffer_load_dword', vP, vQ, sWS, sPV, flags='sc1'))
                if CFG.get('pwm') == 1:
                    E(salu('s_and_b32', sT2, sSP, 15)); E(salu('s_cmp_eq_u32', None, sT2, 15)); E(csel(sT2, 0, sWAVE)); E(salu('s_cmp_eq_u32', None, sT2, 0))
                else:
                    E(salu('s_and_b32', sT2, sSP, 4 * CFG.get('pwk', 1) - 1)); E(mul(sT3, sWAVE, CFG.get('pwk', 1))); E(salu('s_cmp_eq_u32', None, sT2, sT3))
                E(raw(f"s_cbranch_scc0 {L}1"))
                E(drop()); E(waitvm(1)); E(raw(f"s_branch {L}2"))
                E(label(L + "1")); E(waitvm(0))
                E(label(L + "2"))
                test(mask); E(raw(f"s_cbranch_scc0 {L}3"))
                E(add(sSP, sSP, 1)); E(salu('s_cmp_gt_u32', None, sSP, 4 * CFG.get('spin', 4000))); E(raw(f"s_cbranch_scc1 {L}4"))
                E(raw(f"s_sleep {CFG.get('pwsleep', 2)}")); E(raw(f"s_branch {L}0"))
                E(label(L + "4"))
                E(valu('v_lshlrev_b32', vO, 4, vLANE16)); E(valu('v_mov_b32', vIT, OOB)); E(valu('v_mov_b32', vA, 1))
                E(raw(f"v_cmp_gt_u32 vcc, 0x100, {vLANE16}", 'valu', wr=['vcc'], rd=[vLANE16])); E(valu('v_cndmask_b32', vO, vIT, vO, 'vcc'))
                E(raw(f"s_lshl2_add_u32 {sT2}, {its[2]}, {sPB}", 'salu', wr=[sT2], rd=[its[2], sPB])); E(add(sT2, sT2, ABN))
                E(bstore('buffer_store_dword', vA, vO, sWS, sT2, flags='sc1')); E(waitvm(0))
                E(drop()); E(waitvm(0))
                E(bload('buffer_load_dword', vP, vQ, sWS, sPV, flags='sc1')); E(waitvm(0))
                test(SM_ | FM_); E(raw(f"s_cbranch_scc1 L_{n}_exit"))
                E(label(L + "3"))
            E(salu('s_min_u32', sT2, sRS, sRF)); E(salu('s_cmp_lt_u32', None, its[2], sT2)); E(raw(f"s_cbranch_scc1 L_{n}_f3"))
            E(salu('s_cmp_lt_u32', None, its[2], sRS)); E(raw(f"s_cbranch_scc1 L_{n}_ps"))
            waitpw('ws', SM_)
            E(salu('s_cmp_eq_u32', None, sI, 0)); E(raw(f"s_cbranch_scc1 L_{n}_f3"))
            E(label(f"L_{n}_ps")); ST(its[2])
            warm()
            stream(E, [seg(2, L0, range(NS), True, False)], {5: (lambda _: (E(drop()), 1)[1])})
            waitpw('wf', FM_); ST(50)
            E(raw(f"s_call_b64 {sRET2}, L_{n}_ft")); E(raw(f"s_branch L_{n}_exit"))
            E(label(f"L_{n}_ft"))
            stream(E, [seg(2, L0, range(NS, NPART), False, True)])
            E(raw(f"s_setpc_b64 {sRET2}"))
            E(label(f"L_{n}_old"))
            ensure(its[2], 1, 1)
            E(label(f"L_{n}_f3"))
            stream(E, [seg(2, L0)])
            done(its[2])
            E(salu('s_cmp_eq_u32', None, sMD2, 0)); E(raw(f"s_cbranch_scc1 L_{n}_exit")); E(raw(f"s_branch L_{n}_fb"))
            return
        ensure(its[2], 1, 0); ST(its[2])
        E(salu('s_cmp_lt_u32', None, its[2], sRF)); E(raw(f"s_cbranch_scc1 L_{n}_f3"))
        if CFG.get('rep') and n == 'A':
            warm()
            stream(E, [seg(2, L0, range(NS), True, False)], {4: poll_hook.sh})
            E(label(f"L_{n}_k2"))
            E(salu('s_cmp_eq_u32', None, sWAVE, 0)); E(raw(f"s_cbranch_scc0 L_{n}_w2"))
            E(waitvm(0))
            E(raw(f"v_cmp_ne_u32 vcc, 0, {vP}", 'valu', wr=['vcc'], rd=[vP])); E(nop(1))
            E(raw(f"s_lshr_b64 {sAB}, vcc, {NPART + 1}", 'salu', wr=[sAB], rd=['vcc'])); E(salu('s_and_b32', sAB[1], sAB[1], 15))
            E(salu('s_or_b32', sT2, sAB[0], sAB[1])); E(csel(sRS, 1, 0))
            E(shr(sC, its[2], 2)); E(mul(sI, sROLE, NREP * 128)); E(add(sI, sI, sPB)); E(add(sI, sI, 2048)); E(add(sSP, sI, NREP * 128))
            E(label(f"L_{n}_w0"))
            E(bload('buffer_load_dword', vP, vL5, sWS, sI, flags='sc1')); E(waitvm(0))
            E(raw(f"v_cmp_ge_u32 vcc, {sC}, {vP}", 'valu', wr=['vcc'], rd=[vP, sC])); E(nop(1))
            E(raw(f"s_and_b32 {sT2}, vcc_lo, {hex((1 << NPART) - (1 << NS))}", 'salu', wr=[sT2], rd=['vcc'])); E(csel(sRF, 0, 36))
            E(raw(f"s_cbranch_scc0 L_{n}_w1"))
            E(add(sI, sI, 128)); E(salu('s_cmp_lt_u32', None, sI, sSP)); E(raw(f"s_cbranch_scc0 L_{n}_w1"))
            E(raw(f"s_sleep {CFG.get('rsleep', 6)}")); E(raw(f"s_branch L_{n}_w0"))
            E(label(f"L_{n}_w1")); E(red_pub(sPAR))
            E(label(f"L_{n}_w2")); E(barrier()); E(red_get(sPAR)); E(salu('s_xor_b32', sPAR, sPAR, 12))
            E(smov(sMID, sRS))
            ensure(its[2], 0, 1); ST(50)
            E(raw(f"s_call_b64 {sRET2}, L_{n}_ft")); done(its[2])
            E(salu('s_cmp_eq_u32', None, sMID, 0)); E(raw(f"s_cbranch_scc1 L_{n}_exit")); E(raw(f"s_branch L_{n}_fb"))
            E(label(f"L_{n}_ft"))
            stream(E, [seg(2, L0, range(NS, NPART), False, True)])
            E(raw(f"s_setpc_b64 {sRET2}"))
        elif CFG.get('pw') and n == 'A':
            E(salu('s_cmp_eq_u32', None, sMD2, 0)); E(raw(f"s_cbranch_scc0 L_{n}_old"))
            warm()
            vQ, vZ = v(242), v(243)
            E(valu('v_min_u32', vQ, NPART * 16, vLANE16)); E(valu('v_lshrrev_b32', vQ, 2, vQ))
            E(valu('v_mov_b32', vZ, OOB)); E(smov(sT2, 4 * NPART)); E(raw(f"v_writelane_b32 {vZ}, {sT2}, 0", 'valu', wr=[vZ], rd=[sT2, vZ]))
            def drop_hook(_): E(bstore('buffer_store_dword', vZ, vZ, sWS, sPV, flags='sc1')); return 1
            stream(E, [seg(2, L0, range(NS), True, False)], {5: drop_hook})
            E(shr(sC, its[2], 2)); E(smov(sSP, 0))
            E(label(f"L_{n}_pw0"))
            E(bload('buffer_load_dword', vP, vQ, sWS, sPV, flags='sc1'))
            E(salu('s_and_b32', sT2, sSP, 3)); E(salu('s_cmp_eq_u32', None, sT2, sWAVE)); E(raw(f"s_cbranch_scc0 L_{n}_pw1"))
            E(bstore('buffer_store_dword', vZ, vZ, sWS, sPV, flags='sc1')); E(waitvm(1)); E(raw(f"s_branch L_{n}_pw2"))
            E(label(f"L_{n}_pw1")); E(waitvm(0))
            E(label(f"L_{n}_pw2"))
            E(raw(f"v_cmp_ge_u32 vcc, {sC}, {vP}", 'valu', wr=['vcc'], rd=[vP, sC])); E(nop(1))
            E(raw(f"s_and_b32 {sT2}, vcc_lo, {hex((1 << NPART) - (1 << NS))}", 'salu', wr=[sT2], rd=['vcc'])); E(raw(f"s_cbranch_scc0 L_{n}_pw3"))
            E(add(sSP, sSP, 1)); E(salu('s_cmp_gt_u32', None, sSP, 4 * CFG.get('spin', 4000))); E(raw(f"s_cbranch_scc1 L_{n}_pw4"))
            E(raw(f"s_sleep {CFG.get('pwsleep', 2)}")); E(raw(f"s_branch L_{n}_pw0"))
            E(label(f"L_{n}_pw4"))
            E(valu('v_lshlrev_b32', vO, 4, vLANE16)); E(valu('v_mov_b32', vIT, OOB)); E(valu('v_mov_b32', vA, 1))
            E(raw(f"v_cmp_gt_u32 vcc, 0x100, {vLANE16}", 'valu', wr=['vcc'], rd=[vLANE16])); E(valu('v_cndmask_b32', vO, vIT, vO, 'vcc'))
            E(raw(f"s_lshl2_add_u32 {sT2}, {its[2]}, {sPB}", 'salu', wr=[sT2], rd=[its[2], sPB])); E(add(sT2, sT2, ABN))
            E(bstore('buffer_store_dword', vA, vO, sWS, sT2, flags='sc1')); E(waitvm(0))
            E(bstore('buffer_store_dword', vZ, vZ, sWS, sPV, flags='sc1')); E(waitvm(0))
            E(bload('buffer_load_dword', vP, vQ, sWS, sPV, flags='sc1')); E(waitvm(0))
            E(raw(f"v_cmp_ge_u32 vcc, {sC}, {vP}", 'valu', wr=['vcc'], rd=[vP, sC])); E(nop(1))
            E(raw(f"s_and_b32 {sT2}, vcc_lo, {hex((1 << NPART) - (1 << NS))}", 'salu', wr=[sT2], rd=['vcc'])); E(raw(f"s_cbranch_scc1 L_{n}_exit"))
            E(label(f"L_{n}_pw3")); ST(50)
            E(raw(f"s_call_b64 {sRET2}, L_{n}_ft")); E(raw(f"s_branch L_{n}_exit"))
            E(label(f"L_{n}_ft"))
            stream(E, [seg(2, L0, range(NS, NPART), False, True)])
            E(raw(f"s_setpc_b64 {sRET2}"))
            E(label(f"L_{n}_old"))
            stream(E, [seg(2, L0, range(NS), True, False)])
            ensure(its[2], 0, 1)
            E(raw(f"s_call_b64 {sRET2}, L_{n}_ft")); E(raw(f"s_branch L_{n}_f4"))
        else:
            stream(E, [seg(2, L0, range(NS), True, False)], {6: poll_hook})
            refresh(0)
            ensure(its[2], 0, 1); ST(50)
            stream(E, [seg(2, L0, range(NS, NPART), False, True)], {0: poll_hook.sh} if not AB else None)
            E(raw(f"s_branch L_{n}_f4"))
        E(label(f"L_{n}_f3"))
        stream(E, [seg(2, L0)], {11: poll_hook.sh} if not AB else None)
        E(label(f"L_{n}_f4"))
        done(its[2])
        if AB and CFG.get('abx', 1):
            E(salu('s_cmp_eq_u32', None, sMD2, 0)); E(raw(f"s_cbranch_scc1 L_{n}_exit")); E(raw(f"s_branch L_{n}_fb"))


def reducer(kind):
    p = Prog(); E = p.emit; n = kind; FL = CFG.get('fflags', 'sc1')
    PRIV[0] = (kind == 'A' or (kind == 'M' and bool(CFG.get('mpriv'))) or CFG.get('mpriv') == 5)
    def ST(code):
        if CFG['stamps'] != 2: return
        E(raw(f"s_memtime {sSTAMP}", wr=[sSTAMP])); E(raw("s_waitcnt lgkmcnt(0)")); E(salu('s_sub_u32', s(98), s(98), s(100)))
        E(shl(s(98), s(98), 6)); E(salu('s_or_b32', s(98), s(98), code))
        E(add(s(97), s(97), 16)); E(salu('s_min_u32', s(97), s(97), 11 * 16))
        E(raw(f"v_cmp_eq_u32 vcc, s97, {vLANE16}", 'valu', wr=['vcc'], rd=[s(97), vLANE16])); E(valu('v_mov_b32', v(27), s(98)))
        E(valu('v_cndmask_b32', vSTAMP, vSTAMP, v(27), 'vcc'))
    def offs(item, sX_):
        return [salu('s_and_b32', sT2, item, 3), shr(sC, item, 2), shl(sT3, sRB, 2), add(sT2, sT2, sT3), mul(sPART, sT2, PWAVE), add(sX_, sPART, sXW),
                shl(sT3, sC, 12), add(sT3, sT3, sPWv), add(sPART, sPART, sT3), shl(sT3, sC, 7), add(sX_, sX_, sT3)]
    k_ = [0]
    def ensure(item, s_, f_):
        L = f"L_{n}_en{k_[0]}"; k_[0] += 1
        if s_ and f_: E(salu('s_min_u32', sT2, sRS, sRF)); r = sT2
        else: r = sRS if s_ else sRF
        E(salu('s_cmp_lt_u32', None, item, r)); E(raw(f"s_cbranch_scc1 {L}"))
        E(smov(sI, item)); E(smov(sC, (1 if s_ else 0) | (2 if f_ else 0)))
        E(raw(f"s_call_b64 {sRET2}, L_{n}_sync"))
        E(salu('s_cmp_eq_u32', None, sTO, 0)); E(raw(f"s_cbranch_scc0 L_{n}_fb"))
        E(label(L))
    def done(item): E(raw(f"s_bitset0_b64 {sRM}, {item}", 'salu', wr=[sRM], rd=[sRM, item]))
    E(label(f"L_{n}_red"))
    if CFG.get('rdelay'):
        if n == 'A': (E(waitvm(0)), E(barrier()), E(valu('v_mov_b32', vPRG, 9)), E(bstore('buffer_store_dword', vPRG, vCT, sWS, 0, flags='sc1')))
        for _ in range({'A': 30, 'M': 24, 'F': 14}[n]): E(raw("s_sleep 16"))
    if not (n == 'F' and CFG.get('bal') == 2 and (CFG.get('fq', 1) and not CFG.get('fi'))): E(red_get(LDSC))
    if CFG.get('rdelay'): E(smov(sRS, 36)); E(smov(sRF, 36))
    E(valu('v_lshrrev_b32', vO, 4, vLANE16)); E(valu('v_and_b32', vXO, 7, vO)); E(valu('v_lshlrev_b32', vLD, 4, vXO))
    E(smov(sT2, 1152)); E(valu('v_mul_u32_u24', vXO, sT2, vXO))
    E(valu('v_lshrrev_b32', vA, 3, vO)); E(valu('v_lshl_add_u32', vX4, vA, 4, vXO))
    E(valu('v_bfe_u32', vA, vO, 3, 2)); E(valu('v_lshl_add_u32', vXO, vA, 3, vXO)); E(valu('v_lshl_add_u32', vLD, vA, 8, vLD))
    E(valu('v_lshrrev_b32', vA, 5, vO)); E(valu('v_lshl_add_u32', vXO, vA, 6, vXO)); E(valu('v_lshl_add_u32', vLD, vA, 11, vLD))
    E(mul(sXW, sWAVE, 8 * 1152)); E(shr(sPWv, sWAVE, 1)); E(shl(sPWv, sPWv, 10)); E(salu('s_and_b32', sT2, sWAVE, 1)); E(shl(sT2, sT2, 7)); E(add(sPWv, sPWv, sT2))
    if CFG.get('rcontig'): E(valu('v_mov_b32', vLD, vLANE16)); E(shl(sPWv, sWAVE, 10))
    L0, L1 = 72, 76 + 4 * NPART
    E(smov(sD0, 0x3f80)); E(smov(sD1, 0x3f800000))
    E(raw(f"s_mov_b64 {sRM}, 0", 'salu', wr=[sRM]))
    FOUR = CFG.get('four')
    sMID = s(48 + 0) if False else s(83)
    def nib(dst, tab, base):
        E(smov(sCD[0], sum(tab[i] << (4 * i) for i in range(8)))); E(smov(sCD[1], tab[8] | (tab[9] << 4)))
        E(shl(sT2, sROLE, 2)); E(s64('s_lshr_b64', sCD, sCD, sT2)); E(salu('s_and_b32', dst, sCD[0], 15))
        E(salu('s_cmp_eq_u32', None, dst, 15)); E(csel(dst, 63 - base, dst)); E(add(dst, dst, base))
    if n == 'A':
        E(smov(sIT[0], sROLE)); E(add(sIT[1], sROLE, NA))
        if CFG.get('bal'):
            nib(sIT[1], [x - 10 for x in BAL2], 10); nib(sIT[2], [x - 21 for x in BAL3], 21); nib(sMID, [min(x - BMB(), 15) for x in BALM], BMB())
            E(raw(f"s_bitset1_b64 {sRM}, {sMID}", 'salu', wr=[sRM], rd=[sRM, sMID]))
        elif CFG.get('asg') == 2: E(add(sIT[2], sROLE, 16))
        elif CFG.get('asg') == 3:
            E(add(sMID, sROLE, 16)); E(raw(f"s_bitset1_b64 {sRM}, {sMID}", 'salu', wr=[sRM], rd=[sRM, sMID]))
            E(salu('s_and_b32', sT2, sROLE, 1)); E(shr(sIT[2], sROLE, 1)); E(add(sIT[2], sIT[2], 24)); E(salu('s_cmp_eq_u32', None, sT2, 0)); E(csel(sIT[2], sIT[2], 63))
        elif CFG.get('l844'): E(add(sIT[2], sROLE, 28))
        elif FOUR:
            nib(sMID, [0, 15, 1, 2, 15, 3, 4, 5, 6, 7], 20); nib(sIT[2], [0, 1, 15, 2, 3, 15, 4, 5, 6, 7], 28)
            E(raw(f"s_bitset1_b64 {sRM}, {sMID}", 'salu', wr=[sRM], rd=[sRM, sMID]))
        else:
            nib(sIT[2], [0, 1, 15, 2, 3, 15, 4, 5, 6, 7], 28)
            E(salu('s_cmp_eq_u32', None, sROLE, 2)); E(csel(sIT[2], 23 if CFG.get('m3') else 22, sIT[2])); E(salu('s_cmp_eq_u32', None, sROLE, 5)); E(csel(sIT[2], 24 if CFG.get('m3') else 21, sIT[2]))
            if CFG.get('nof'):
                nib(sMD2, CFG['nof'], 23)
                E(raw(f"s_bitset1_b64 {sRM}, {sMD2}", 'salu', wr=[sRM], rd=[sRM, sMD2]))
        its = sIT
    elif CFG.get('asg') == 2:
        if n == 'M': E(add(sIT[0], sROLE, 16)); E(add(sIT[1], sROLE, 20)); its = sIT[:2]
        else: E(add(sIT[0], sROLE, 20)); its = sIT[:1]
    elif CFG.get('asg') == 3:
        E(add(sIT[0], sROLE, 20)); its = sIT[:1]
    elif CFG.get('l844'):
        if n == 'M': E(add(sIT[0], sROLE, 8)); E(add(sIT[1], sROLE, 12)); its = sIT[:2]
        else: E(add(sIT[0], sROLE, 12)); its = sIT[:1]
    elif n == 'M' and CFG.get('m3') == 2: E(smov(sIT[0], CFG.get('mi', (20, 21))[0])); E(smov(sIT[1], CFG.get('mi', (20, 21))[1])); its = sIT[:2]
    elif n == 'F' and CFG.get('fi'):
        t_ = [min(x, 40) - 25 for x in CFG['fi']]
        E(smov(sT2, sum(t_[i] << (4 * i) for i in range(5)))); E(salu('s_sub_u32', sT3, sROLE, 11)); E(shl(sT3, sT3, 2))
        E(shr(sT2, sT2, sT3)); E(salu('s_and_b32', sT2, sT2, 15)); E(add(sIT[0], sT2, 25)); its = sIT[:1]
    elif n == 'M' and CFG.get('m3'): E(smov(sIT[0], CFG.get('mb', 20))); E(smov(sIT[1], CFG.get('mb', 20) + 1)); E(smov(sIT[2], CFG.get('mb', 20) + 2)); its = sIT
    elif n == 'M': E(smov(sIT[0], 20)); its = sIT[:1]
    else:
        E(add(sIT[0], sROLE, 12)); its = sIT[:1]
    if (FOUR and n != 'A') or (CFG.get('nof') and n == 'F'):
        its = []
        E(waitvm(0)); E(red_poll()[1]); E(waitvm(0)); E(raw(f"s_branch L_{n}_fin"))
    if (CFG.get('bal') or CFG.get('m3')) and n == 'F':
        if CFG.get('fi'): E(salu('s_cmp_lt_u32', None, sIT[0], 36))
        else: E(salu('s_cmp_ge_u32', None, sROLE, 13 if CFG.get('bal') != 2 else 16))
        E(raw(f"s_cbranch_scc1 L_{n}_hi"))
        E(waitvm(0)); E(ab_load() if CFG.get('abn') else red_poll()[1]); E(waitvm(0)); E(raw(f"s_branch L_{n}_fin")); E(label(f"L_{n}_hi"))
    for it in its: E(raw(f"s_bitset1_b64 {sRM}, {it}", 'salu', wr=[sRM], rd=[sRM, it]))
    E(salu('s_and_b32', sRM[1], sRM[1], 15))
    def refresh(wait, ab=False):
        L = f"L_{n}_rf{k_[0]}"; k_[0] += 1
        E(salu('s_cmp_eq_u32', None, sWAVE, 0)); E(raw(f"s_cbranch_scc0 {L}"))
        E(waitvm(wait)); E(red_eval())
        if ab: E(ab_eval()); E(salu('s_or_b32', sT2, sAB[0], sAB[1])); E(csel(sTO, 1, 0))
        E(red_pub(sPAR))
        E(label(L)); E(barrier()); E(red_get(sPAR)); E(salu('s_xor_b32', sPAR, sPAR, 12))
        if ab: E(smov(sMD2, sTO)); E(smov(sTO, 0))
    ALLD = lambda L, sx: ld_part(L, range(NPART), FL) + ld_x(L, sx)
    LATE = n in CFG.get('lateflag', 'A') + CFG.get('pre', '')
    sPT = [s(47), s(67 - 2), s(70)]
    def offs2(i): return offs(its[i], sXP[i]) + ([smov(sPT[i], sPART)] if i else [])
    def final_flag(wait):
        E(waitvm(wait)); E(barrier())
        E(valu('v_mov_b32', vPRG, 9))
        if CFG.get('rep') and n in 'FM': E(bstore('buffer_store_dword', vPRG, vCR, sWS, 0, flags='sc1'))
        E(bstore('buffer_store_dword', vPRG, vCT, sWS, 0, flags='sc1'))
        return 2 if (CFG.get('rep') and n in 'FM') else 1
    def poll_hook(_): E(red_poll()[1]); return 2
    def poll_sh(_): E(red_poll(True)[1]); return 2
    poll_hook.sh = poll_sh
    seg = lambda i, L, ks=range(NPART), wx=True, fin=True: (L, sPT[i], sXP[i], ks, wx, fin)
    ni = len(its)
    for i in reversed(range(ni)): E(offs2(i))
    two = min(ni, 2)
    if ni: body_items(E, n, its, two, ni, ensure, refresh, done, ST, seg, final_flag, poll_hook, LATE, L0, L1, FOUR, sMID, offs, sPT)
    E(label(f"L_{n}_fin"))
    E(salu('s_cmp_eq_u32', None, sWAVE, 0)); E(raw(f"s_cbranch_scc0 L_{n}_b4"))
    if CFG.get('abn'): E(ab_eval())
    else:
        E(waitvm(2))
        E(raw(f"v_cmp_ne_u32 vcc, 0, {vP}", 'valu', wr=['vcc'], rd=[vP])); E(nop(1))
        E(raw(f"s_lshr_b64 {sAB}, vcc, {NPART + 1}", 'salu', wr=[sAB], rd=['vcc'])); E(salu('s_and_b32', sAB[1], sAB[1], 15))
    E(salu('s_or_b32', sT2, sAB[0], sAB[1])); E(csel(sTO, 1, 0))
    E(salu('s_cmp_ge_u32', None, sOK, 16)); E(csel(sTO, sTO, 1)); E(red_pub(sPAR))
    E(label(f"L_{n}_b4")); E(barrier()); E(red_get(sPAR)); E(salu('s_xor_b32', sPAR, sPAR, 12))
    E(salu('s_cmp_eq_u32', None, sTO, 0)); E(raw(f"s_cbranch_scc1 L_{n}_exit"))
    E(label(f"L_{n}_fb"))
    E(waitvm(0))
    E(salu('s_cmp_eq_u32', None, sWAVE, 0)); E(raw(f"s_cbranch_scc0 L_{n}_fb2"))
    if CFG.get('abn'):
        E(raw(f"s_mov_b64 {sCD}, {sRM}", 'salu', wr=[sCD], rd=[sRM])); E(valu('v_mov_b32', vA, 1))
        E(valu('v_lshlrev_b32', vO, 4, vLANE16)); E(valu('v_mov_b32', vIT, OOB))
        E(raw(f"v_cmp_gt_u32 vcc, 0x100, {vLANE16}", 'valu', wr=['vcc'], rd=[vLANE16])); E(valu('v_cndmask_b32', vO, vIT, vO, 'vcc'))
        E(label(f"L_{n}_mk"))
        E(raw(f"s_cmp_eq_u64 {sCD}, 0", 'salu', rd=[sCD])); E(raw(f"s_cbranch_scc1 L_{n}_mk1"))
        E(raw(f"s_ff1_i32_b64 {sT2}, {sCD}", 'salu', wr=[sT2], rd=[sCD])); E(raw(f"s_bitset0_b64 {sCD}, {sT2}", 'salu', wr=[sCD], rd=[sCD, sT2]))
        E(raw(f"s_lshl2_add_u32 {sT2}, {sT2}, {sPB}", 'salu', wr=[sT2], rd=[sT2, sPB])); E(add(sT2, sT2, ABN))
        E(bstore('buffer_store_dword', vA, vO, sWS, sT2, flags='sc1')); E(raw(f"s_branch L_{n}_mk"))
        E(label(f"L_{n}_mk1")); E(waitvm(0))
        E(red_poll()[0]); E(waitvm(0))
        E(valu('v_mov_b32', vO, OOB)); E(smov(sT2, 36 * 4)); E(raw(f"v_writelane_b32 {vO}, {sT2}, 1", 'valu', wr=[vO], rd=[sT2, vO]))
        E(bstore('buffer_store_dword', vA, vO, sWS, sAV_, flags='sc1'))
        E(valu('v_mov_b32', vIT, 0)); E(valu('v_mov_b32', vO, OOB)); E(raw(f"v_writelane_b32 {vO}, 0, 0", 'valu', wr=[vO], rd=[vO]))
        E(I(f"buffer_atomic_add {vIT}, {vO}, {sWS}, {sAV_} offen sc1", 'vstore', rd=vIT.regs() + vO.regs() + sWS.regs() + sAV_.regs(), units=3))
        E(waitvm(0)); E(ab_load()); E(red_poll(True)[1]); E(waitvm(0)); E(valu('v_readfirstlane_b32', sOK, vD)); E(red_eval()); E(ab_eval())
    else:
        E(s64('s_lshl_b64', sCD, sRM, NPART + 1)); E(valu('v_mov_b32', vO, OOB)); E(valu('v_mov_b32', vA, 1))
        E(valu('v_cndmask_b32', vO, vO, vL4, sCD)); E(bstore('buffer_store_dword', vA, vO, sWS, sPB, flags='sc1')); E(waitvm(0))
        E(red_poll()[0]); E(waitvm(0)); E(red_poll(True)[1]); E(waitvm(0)); E(valu('v_readfirstlane_b32', sOK, vD)); E(red_eval())
    E(salu('s_min_u32', sT2, sRS, sRF)); E(salu('s_cmp_ge_u32', None, sOK, 16)); E(csel(sT2, sT2, 0))
    E(salu('s_bfm_b64', sCD, sT2, 0, scc_w=False)); E(s64('s_or_b64', sAB, sAB, sRM)); E(s64('s_and_b64', sAB, sAB, sCD))
    E(label(f"L_{n}_fb1"))
    E(raw(f"s_ff1_i32_b64 {sRS}, {sAB}", 'salu', wr=[sRS], rd=[sAB])); E(salu('s_and_b32', sRS, sRS, 255))
    E(raw(f"s_bitset0_b64 {sAB}, {sRS}", 'salu', wr=[sAB], rd=[sAB, sRS])); E(red_pub(sPAR))
    E(label(f"L_{n}_fb2")); E(barrier()); E(red_get(sPAR)); E(salu('s_xor_b32', sPAR, sPAR, 12))
    E(salu('s_cmp_ge_u32', None, sRS, 36)); E(raw(f"s_cbranch_scc1 L_{n}_exit"))
    E(offs(sRS, sXP[0])); E(ld_part(L0, range(NPART), FL) + ld_x(L0, sXP[0])); E(waitvm(0)); proc_all(E, L0, sXP[0], 0, [])
    E(salu('s_cmp_eq_u32', None, sWAVE, 0)); E(raw(f"s_cbranch_scc1 L_{n}_fb1")); E(raw(f"s_branch L_{n}_fb2"))
    E(label(f"L_{n}_exit"))
    ST(60)
    if CFG['stamps']: E(raw(f"s_setpc_b64 {sRET}"))
    else: E(raw("s_endpgm"))
    E(label(f"L_{n}_sync"))
    E(salu('s_cmp_eq_u32', None, sWAVE, 0)); E(raw(f"s_cbranch_scc0 L_{n}_sy2"))
    E(smov(sSP, 0)); E(red_poll()[1][0])
    E(label(f"L_{n}_sy0"))
    E(salu('s_cmp_ge_u32', None, sOK, 16)); E(raw(f"s_cbranch_scc1 L_{n}_sy1"))
    E(red_poll()[0]); E(waitvm(0)); E(valu('v_readfirstlane_b32', sOK, vD))
    E(salu('s_cmp_ge_u32', None, sOK, 16)); E(raw(f"s_cbranch_scc0 L_{n}_syw"))
    E(label(f"L_{n}_sy1"))
    E(red_poll()[1][1]); E(red_poll()[1][0]); E(waitvm(1)); E(red_eval())
    E(salu('s_bitcmp1_b32', None, sC, 0)); E(csel(sT2, sRS, 36)); E(salu('s_bitcmp1_b32', None, sC, 1)); E(csel(sT3, sRF, 36))
    E(salu('s_min_u32', sT2, sT2, sT3)); E(salu('s_cmp_lt_u32', None, sI, sT2)); E(raw(f"s_cbranch_scc1 L_{n}_syp"))
    E(label(f"L_{n}_syw"))
    E(add(sSP, sSP, 1)); E(salu('s_cmp_gt_u32', None, sSP, CFG.get('spin', 4000))); E(csel(sTO, 1, 0)); E(raw(f"s_cbranch_scc1 L_{n}_syp"))
    E(raw(f"s_sleep {CFG.get('sleep', 1)}")); E(raw(f"s_branch L_{n}_sy0"))
    E(label(f"L_{n}_syp"))
    E(red_pub(sPAR))
    E(label(f"L_{n}_sy2")); E(barrier()); E(red_get(sPAR)); E(salu('s_xor_b32', sPAR, sPAR, 12))
    E(raw(f"s_setpc_b64 {sRET2}"))
    return p

def reduce_items(p, ni, sPART_, sXO_, srdP, srdX, srdO, vL16, vXO_, base, flags, mid=None):
    E = p.emit
    SA = base; FA = base + 8; T = base + 16
    Ls = [base + 24 + 72 * i for i in range(ni)]
    for k in range(NPART):
        if k: E(add(sPART_, sPART_, 16 * PART - (PWAVE if ni == 2 else 0)))
        for i in range(ni):
            if i: E(add(sPART_, sPART_, PWAVE))
            E(bload('buffer_load_dwordx4', v(Ls[i] + 4 * k, 4), vL16, srdP, sPART_, flags=flags))
    for i in range(ni):
        XR = Ls[i] + 68
        if i: E(add(sT2, sXO_, 32 * 1152))
        so = sT2 if i else sXO_
        E(bload('buffer_load_dwordx2', v(XR, 2), vXO_, srdX, so)); E(bload('buffer_load_dwordx2', v(XR + 2, 2), vXO_, srdX, so, 32))
    ex = 0
    if mid: mid(); ex = 1
    E(smov(sT3, 0xffff0000))
    for i in range(ni):
        L = Ls[i]; XR = L + 68
        for k in range(NPART):
            if i == 0: E(waitvm((NPART - 1 - k) * ni + (ni - 1) + 2 * ni + ex))
            acc = SA if k < 11 else FA
            for q in range(4):
                x = v(L + 4 * k + q)
                if k in (0, 11):
                    E(valu('v_lshlrev_b32', v(acc + 2 * q), 16, x)); E(valu('v_and_b32', v(acc + 2 * q + 1), sT3, x))
                else:
                    tp = v(T + 2 * q, 2)
                    E(valu('v_lshlrev_b32', tp[0], 16, x)); E(valu('v_and_b32', tp[1], sT3, x))
            if k not in (0, 11):
                for q in range(4): E(valu('v_pk_add_f32', v(acc + 2 * q, 2), v(acc + 2 * q, 2), v(T + 2 * q, 2)))
        for e in range(8): E(valu('v_exp_f32', v(T + e), v(FA + e)))
        for e in range(8): E(valu('v_add_f32', v(T + e), 1.0, v(T + e)))
        for e in range(8): E(valu('v_rcp_f32', v(T + e), v(T + e)))
        for e in range(8): E(valu('v_mul_f32', v(FA + e), f2u(-math.log(2.0)), v(FA + e)))
        for e in range(8): E(valu('v_mul_f32', v(FA + e), v(FA + e), v(T + e)))
        if i == 0: E(waitvm(ex if ni == 1 else 0))
        for q in range(4):
            E(valu('v_lshlrev_b32', v(T + 2 * q), 16, v(XR + q))); E(valu('v_and_b32', v(T + 2 * q + 1), sT3, v(XR + q)))
        for e in range(8): E(valu('v_fma_f32', v(T + e), v(SA + e), v(FA + e), v(T + e)))
        for q in range(4): E(valu('v_cvt_pk_bf16_f32', v(XR + q), v(T + 2 * q), v(T + 2 * q + 1)))
        if i: E(add(sXO_, sXO_, 32 * 1152))
        E(bstore('buffer_store_dwordx2', v(XR, 2), vXO_, srdO, sXO_)); E(bstore('buffer_store_dwordx2', v(XR + 2, 2), vXO_, srdO, sXO_, 32))

def build_role(kind, vm_before):
    R = Role(kind)
    CFG['shape'] = CFG.get('shapes', {}).get(kind, CFG['shape0'])
    R.ring = {'F': (216, 9), 'A': (192, 16), 'M': (200, 8)}[kind]
    if kind == 'M': R.depth = 7
    nl = CFG.get('pfl', 16)
    MS = CFG['shape'] == 'M'
    if MS:
        R.add_p1_unit, R.add_p1_half, R.epi_silu, R.epi_q = R.add_p1_unitM, R.add_p1_halfM, R.epi_siluM, R.epi_qM
    P2M = 'q16' if MS else 'pi'
    if kind == 'F' and CFG.get('l844'):
        R.ring = (208, 12); R.depth = 7
        for u in range(13): R.add_p1_unit(u, sW1, sHA, sHC, 9216, u == 0, a(16 * u, 16), R.epi_silu, last=(u == 12),
                                          inreg=[pf_run(sW2, sPF2, 832 * 1152, 10) if u >= 1 else None, pf_row('F', sW1)])
        needs = {t: [('reg', 8 * t)] for t in range(26)}
        dm = [dma_w(sW2, sFA, 0, 1152, sFC, 0), dma_w(sW2, sFA, 288 * 1152, 1152, sFC, 288 * 1152), dma_w(sW2, sFA, 576 * 1152, 1152)]
        R.add_p2([(a(0, 208), [288, 288, 256], dm, needs, sSt)], [add(x, x, 128) for x in (sFA, sFC)], pre0=lambda: set_offw(1152, P2M))
        for st in R.stages[-27:]: st.ring = (208, 12, 'restart')
    elif kind == 'M' and CFG.get('l844'):
        R.ring = (208, 8); R.depth = 7
        Q = [a(80, 32), a(112, 32)]; OA = a(144, 64)
        def mpf(u):
            if u == 0: return pf_row('M', sWQ)
            if u == 1: return lambda: pf_row_setup('M', 9216, 18, sPF1, 0) + [pf_row('M', sW1)()[1]]
            if u <= 5: return pf_row('M', sW1)
            return None
        for u in range(4): R.add_p1_unit(u, sWQ, sQA, sQC, 8192, u == 0, a(80 + 16 * u, 16), R.epi_q, key='Q', inreg=[None, mpf(u)])
        for u in range(5): R.add_p1_unit(4 + u, sW1, sHA, sHC, 9216, u == 0, a(16 * u, 16), R.epi_silu, pre=(lambda: set_offw(9216, 'S')) if u == 0 else None,
                                         last=(u == 4), key='H', inreg=[None, mpf(4 + u)])
        Ha = dict(i=0, Q=Q[0], S=Sreg, P=Preg, O=OA, LM=v(230, 8), OF=lambda kk: OA.sub(16 * kk, 8),
                  need_qk=[('acc', 80), ('acc', 96)], need_pv=[('acc', 48 + 16 * i) for i in range(4)])
        Hb = dict(i=1, Q=Q[1], S=[v(80, 16), v(96, 16)], P=[v(48, 8), v(56, 8)], O=v(160, 64), LM=v(64, 8), OF=lambda kk: OA.sub(16 * kk + 8, 8))
        R.add_pa_g([[Ha, Hb]])
        R.stages[-9].mf[-1].need.append(('acc', 48))
        R.heads = [(Ha, sPFa), (Hb, sPFa)]
        R.add_p2m(a(0, 80), [H['OF'](kk) for H in (Ha, Hb) for kk in range(4)],
                  [dma_w(sW2, sFA, 0, 1152, sFC, 0), dma_w(sWO, sOA, 0, 1152, sFC, 32 * 1152, srdC=sW2)],
                  [add(x, x, 128) for x in (sOA, sFA, sFC)], pre0=lambda: set_offw(1152, P2M))
        for st in R.stages[-18:]: st.ring = (208, 12, 'restart')
        k = pf_sched(R, 15, sK, sPFa, 131072, 16); k = pf_sched(R, k, sV, sPFa, 131072, 16)
        pf_sched(R, 17, sWO, sPFc, 256 * 1152, 36); pf_sched(R, 18, sW2, sPF2, 320 * 1152, 45)
    elif kind == 'F':
        for u in range(13): R.add_p1_unit(u, sW1, sHA, sHC, 9216, u == 0, a(16 * u, 16), R.epi_silu, last=(u == 12), inreg=[pf_run(sW2, sPF2, 832 * 1152, 10) if u >= 1 else None, pf_row('F', sW1) if CFG['pf'] >= 3 else None] if CFG['pf'] else None)
        R.add_p1_half(13, a(208, 8))
        needs = {t: [('reg', 8 * t)] for t in range(27)}
        dm = [dma_w(sW2, sFA, 0, 1152, sFC, 0), dma_w(sW2, sFA, 288 * 1152, 1152, sFC, 288 * 1152), dma_w(sW2, sFA, 576 * 1152, 1152, sFS, 0)]
        R.add_p2([(a(0, 216), [288, 288, 288], dm, needs, sSt)], [add(x, x, 128) for x in (sFA, sFC, sFS)], pre0=lambda: set_offw(1152, P2M))
        if CFG['pf']:
            pf_sched(R, 26, sW2, sPF2h, 32 * 1152, 8)
    elif kind == 'A' and CFG.get('pair'):
        OA = a(96, 64)
        Ha = dict(i=0, Q=a(0, 32), S=Sreg, P=Preg, O=OA, LM=v(230, 8), OF=lambda kk: OA.sub(16 * kk, 8),
                  need_qk=[('acc', 48), ('acc', 64)], need_pv=[('acc', 48 + 16 * i) for i in range(4)])
        Hb = dict(i=1, Q=a(32, 32), S=[v(48, 16), v(64, 16)], P=[v(80, 8), v(88, 8)], O=v(160, 64), LM=v(96, 8), OF=lambda kk: OA.sub(16 * kk + 8, 8))
        Hc = dict(i=2, Q=a(64, 32), S=Sreg, P=Preg, O=v(48, 64), LM=v(16, 8), OF=lambda kk: a(160 + 8 * kk, 8), need_pv=[('lm', 0)])
        Ha['need_qk'] += [('acc', 80)]
        pj = {1: sJQ}
        for u in range(6):
            R.add_p1_unit(u, sWQ, sQA, sQC, 8192, u == 0, a(16 * u, 16), R.epi_q, last=(u == 5), step=sJQ if u == 4 else 128,
                          inreg=[pf_run(sWO, sPFc, 384 * 1152, 11) if u >= 1 else None, pf_row('A', sWQ, pj.get(u, 128)) if CFG['pf'] >= 3 and u < 3 else None] if CFG['pf'] else None)
        R.add_pa_g([[Ha, Hb], [Hc]])
        Bf = [H['OF'](kk) for H in (Ha, Hb, Hc) for kk in range(4)]
        needs = {0: [('fin', 0), ('fin', 1)], 8: [('fin', 2)]}
        dm = [dma_w192(sWO, 0), dma_w192(sWO, 0, sOA1, sOB1)]
        R.add_p2([(Bf, [192, 192], dm, needs, sSt)], [add(x, x, 128) for x in (sOA, sOB, sOA1, sOB1)], pre0=lambda: set_offw(1152, P2M))
        R.heads = [(Ha, sPFa), (Hb, sPFa), (Hc, sPFb)]
        if CFG['pf'] >= 2:
            pf_sched(R, 10, sK, sPFa, 131072, 16); pf_sched(R, 10, sV, sPFa, 131072, 16)
            pf_sched(R, 12, sK, sPFb, 131072, 16); pf_sched(R, 12, sV, sPFb, 131072, 16)
    elif kind == 'A':
        Q = [a(32 * e, 32) for e in range(3)]; O = [a(96 + 32 * e, 32) for e in range(3)]
        for u in range(6): R.add_p1_unit(u, sWQ, sQA, sQC, 8192, u == 0, a(16 * u, 16), R.epi_q, last=(u == 5), inreg=[pf_run(sWO, sPFc, 384 * 1152, 11) if u >= 1 else None, pf_row('A', sWQ) if CFG['pf'] >= 3 and u < 5 else None] if CFG['pf'] else None)
        R.add_pa(Q, O)
        needs = {4 * e: [('fin', e)] for e in range(3)}; needs[0].append(('S', 2, 15))
        dm = [dma_w192(sWO, b * 192 * 1152) for b in range(2)]
        R.add_p2([(a(96, 96), [192, 192], dm, needs, sSt)], [add(sOA, sOA, 128), add(sOB, sOB, 128)], pre0=lambda: set_offw(1152, P2M))
        if CFG['pf']:
            if CFG['pf'] >= 2:
                pf_sched(R, 10, sK, sPFa, 131072, 16); pf_sched(R, 10, sV, sPFa, 131072, 16)
                pf_sched(R, 12, sK, sPFb, 131072, 16); pf_sched(R, 12, sV, sPFb, 131072, 16)
    else:
        Q = [a(136 + 32 * e, 32) for e in range(2)]; O = [a(72 + 32 * e, 32) for e in range(2)]
        def mpf(u):
            if u == 0: return pf_row('M', sWQ)
            if u == 1: return lambda: pf_row_setup('M', 9216, 18, sPF1, 0) + [pf_row('M', sW1)()[1]]
            if u <= 4: return pf_row('M', sW1)
            if u == 5: return lambda: [smov(sPW, sPF1h), pf_row('M', sW1)()[1]]
            return None
        for u in range(4): R.add_p1_unit(u, sWQ, sQA, sQC, 8192, u == 0, a(136 + 16 * u, 16), R.epi_q, key='Q', inreg=[None, mpf(u)] if CFG['pf'] >= 3 else None)
        for u in range(4): R.add_p1_unit(4 + u, sW1, sHA, sHC, 9216, u == 0, a(16 * u, 16), R.epi_silu, pre=(lambda: set_offw(9216, 'M' if MS else 'S')) if u == 0 else None, last=(u == 3), key='H', inreg=[None, mpf(4 + u)] if CFG['pf'] >= 3 else None)
        R.add_p1_half(8, a(64, 8))
        BO = a(72, 64)
        if CFG.get('pair'):
            Ha = dict(i=0, Q=Q[0], S=Sreg, P=Preg, O=BO, LM=v(230, 8), OF=lambda kk: BO_.sub(16 * kk, 8),
                      need_qk=[('acc', 48 + 16 * i) for i in range(3)], need_pv=[('acc', 48 + 16 * i) for i in range(4)])
            Hb = dict(i=1, Q=Q[1], S=[v(64, 16), v(48, 16)], P=[v(80, 8), v(88, 8)], O=v(160, 64), LM=v(96, 8), OF=lambda kk: BO_.sub(16 * kk + 8, 8))
            BO_ = BO
            if CFG.get('mfree', 0):
                Hb['S'] = [v(64, 16), v(238, 16)]; Ha['need_qk'] = [('acc', 64), ('acc', 80)]; Ha['need_pv'] = [('acc', 96)]
                R.ntmp = 12; R.ones = v(28, 4)
                for st_, idx in ((R.stages[-2], -1), (R.stages[-1], -1)):
                    m_ = st_.mf[idx]; f_ = m_.after
                    m_.after = (lambda G, f_=f_: (setattr(R, 'low', True), f_(G), setattr(R, 'low', False)))
            R.add_pa_g([[Ha, Hb]])
            BO = [H['OF'](kk) for H in (Ha, Hb) for kk in range(4)]
            R.heads = [(Ha, sPFa), (Hb, sPFa)]
        else: R.add_pa(Q, O)
        nf = {t: [('reg', 8 * t)] for t in range(9)}; nf[0].append(('S', 1, 15))
        R.add_p2([(a(0, 72), [288], [dma_w(sW2, sFA, 0, 1152, sFS, 0)], nf, sSt2),
                  (BO, [256], [dma_w(sWO, sOA, 0, 1152)], {0: [('fin', 0)], 4: [('fin', 1)]}, sSt)],
                 [add(x, x, 128) for x in (sOA, sFA, sFS)], pre0=lambda: set_offw(1152, P2M))
        for st in R.stages[-18:]: st.ring = (200, 14, 'restart')
        if CFG['pf']:
            if CFG['pf'] >= 2:
                k = pf_sched(R, 14, sK, sPFa, 131072, 16); k = pf_sched(R, k, sV, sPFa, 131072, 16)
            pf_sched(R, 16, sWO, sPFc, 256 * 1152, 36); pf_sched(R, 23 if not CFG.get('pair') else 17, sW2, sPF2, 256 * 1152, 36); pf_sched(R, 24 if not CFG.get('pair') else 17, sW2, sPF2h, 32 * 1152, 8)
    if CFG.get('msum') and not MS and kind in 'AM':
        st0 = [st for st in R.stages if st.name == 'PAh0s0'][0]
        m0_ = st0.mf[8]
        if not hasattr(R, 'ones'): m0_.need += [('acc', 48 + 16 * i) for i in range(4)]
        m0_.pre = lambda: R.p.emit([valu('v_mov_b32', getattr(R, 'ones', vONES)[i], 0x3f803f80) for i in range(4)])
    if CFG.get('recode') and CFG['fused']:
        names = [st.name for st in R.stages]
        nS = len(names)
        R.pf.setdefault(nS - 2, []).append(pf_code(f"L_{kind}_red", f"L_role{kind}_end", 4))
        p2 = names.index('P2c0b0')
        R.stages[p2].label = f"L_{kind}_p2"
        R.pf.setdefault(p2 - 2, []).append(pf_code(f"L_{kind}_p2", f"L_{kind}_p2+20480", 5))
        if kind in 'AM':
            pa = names.index('PAmini'); R.stages[pa].label = f"L_{kind}_pa"
            R.pf.setdefault(pa - 1, []).append(pf_code(f"L_{kind}_pa", f"L_{kind}_p2", 8))
    if CFG.get('hot') and CFG['fused'] and kind in CFG['hot']:
        names = [st.name for st in R.stages]
        last = names.index('P2c8b0'); R.stages[last].label = f"L_{kind}_c8"
        def setup():
            o = [raw(f"s_getpc_b64 {sPC}", 'salu', wr=[sPC]), label(f"L_{kind}_hp"),
                 salu('s_add_u32', sPC[0], sPC[0], f"L_{kind}_c8-L_{kind}_hp"), salu('s_addc_u32', sPC[1], sPC[1], 0, scc_r=True),
                 valu('v_bfe_u32', vPF2, vTID, 16, 5), valu('v_and_b32', vPF, 63, vTID), valu('v_min_u32', vPF, 1, vPF),
                 valu('v_lshl_add_u32', vPF, vPF2, 1, vPF), valu('v_lshlrev_b32', vPF, 7, vPF)]
            if kind == 'F': o += pf_row_setup(kind, 1152, 26, sPF2, 2 * 128)
            return o
        def rep_code():
            return [I(f"global_load_dword {vDUM}, {vPF}, {sPC}", 'vload', wr=vDUM.regs(), rd=vPF.regs() + sPC.regs(), units=3, tag='pf')]
        R.pf.setdefault(names.index('P2c1b0'), []).append(setup)
        for c in range(2, 8):
            k0 = names.index(f'P2c{c}b0')
            R.pf.setdefault(k0, []).append(rep_code)
            if kind == 'F': R.pf.setdefault(k0 + 1, []).append(pf_row(kind, sW2))
    R.slow = []
    if kind in 'AM' and CFG.get('slow', True) and CFG.get('pair'):
        P2s = [st for st in R.stages if st.name.startswith('P2c0')]
        hl = [(H['i'], H['Q'], (H['OF'], kv)) for (H, kv) in R.heads]
        if kind == 'A':
            P2s[0].mf[0].pre = slow_check(R, hl[:2], (112, 160))
            [m for m in P2s[1].mf if ('fin', 2) in m.need][0].pre = slow_check(R, hl[2:], (160, 48))
        else:
            m_ = P2s[1].mf[4 if CFG.get('l844') else 0]
            m_.need += [('fin', 0), ('fin', 1)]
            m_.pre = slow_check(R, hl, (160, 48))
    elif kind in 'AM' and CFG.get('slow', True):
        P2s = [st for st in R.stages if st.name.startswith('P2c0')]
        if kind == 'A':
            P2s[0].mf[0].need += [('fin', 1)]
            P2s[0].mf[0].pre = slow_check(R, [(0, Q[0], O[0]), (1, Q[1], O[1])], 112)
            m_ = [m for m in P2s[1].mf if ('fin', 2) in m.need][0]
            m_.pre = slow_check(R, [(2, Q[2], O[2])], 160)
        else:
            P2s[1].mf[0].need += [('fin', 1)]
            P2s[1].mf[0].pre = slow_check(R, [(0, Q[0], O[0]), (1, Q[1], O[1])], 160)
    if CFG['fused']:
        add_signals(R)
        def early0():
            it = red_setup(kind) + red_poll()[0]
            it[-1].tag = 'cnt'
            return it
        def early():
            assert R.cnt_covered()
            PRIV[0] = (kind == 'A' or (kind == 'M' and bool(CFG.get('mpriv'))) or CFG.get('mpriv') == 5)
            it = red_poll()[1]
            if PRIV[0] and CFG.get('mpriv') == 5: it = it[1:]
            it[-1].tag = 'poll'
            return it
        def covered():
            idx = max(i for i, x in enumerate(R.p.ins) if x.tag == 'cnt'); n = 0
            for x in R.p.ins[idx + 1:]:
                if x.kind in VMEMK: n += 1
                if x.txt.startswith('s_waitcnt vmcnt(') and int(x.txt[16:-1]) <= n: return True
            return False
        R.cnt_covered = covered
        if kind == 'A' and CFG.get('l2pf'):
            nm = [st.name for st in R.stages]
            R.pf.setdefault(nm.index('P2c1b0'), []).append(l2pf_setup)
            for (cw, dlt) in CFG['l2pf']:
                kp = nm.index(f'P2c{cw}b0')
                for j in range(4): R.pf.setdefault(kp, []).append(lambda j=j: l2pf_poll()[j])
                R.stages[kp + 2].cover_tag = 'gp'
                def gate(j, dlt=dlt):
                    def f():
                        it = l2pf_issue(R, dlt)[j]
                        if j == 0:
                            it = it + [valu('v_readfirstlane_b32', sOK, vD), salu('s_cmp_ge_u32', None, sOK, 16), csel(sC, sC, 15)]
                        return it
                    return f
                for j in range(4): R.pf.setdefault(kp + 2, []).append(gate(j))
        R.pf.setdefault([st.name for st in R.stages].index('P2c1b0' if kind == 'F' else 'P2c0b1'), []).append(early0)
        if kind in CFG.get('pre', ''):
            R.pf.setdefault(len(R.stages) - 3, []).append(early)
            R.stages[-1].pre_bar = lambda: red_early(R.p, kind)
        elif not (kind == 'F' and CFG.get('bal') == 2 and (CFG.get('fq', 1) and not CFG.get('fi'))): R.pf.setdefault(len(R.stages) - CFG.get('pollw', 1), []).append(early)
    role_prologue(R, vm_before)
    R.run()
    if CFG['fused']:
        p = R.p
        if kind == 'F' and CFG.get('bal') == 2 and (CFG.get('fq', 1) and not CFG.get('fi')):
            p.emit([smov(sRS, 0), smov(sRF, 0), smov(sTO, 0), smov(sPAR, LDSC + 4), valu('v_readfirstlane_b32', sOK, vD)])
        elif kind not in CFG.get('pre', ''): red_early(p, kind)
        if kind in CFG.get('pre', ''): pass
        elif kind in CFG.get('lateflag', 'A'): p.emit(barrier())
        else:
            p.emit(waitvm(0)); p.emit(barrier())
            p.emit(valu('v_mov_b32', vPRG, 9))
            if CFG.get('rep'): p.emit(bstore('buffer_store_dword', vPRG, vCR, sWS, 0, flags='sc1'))
            p.emit(bstore('buffer_store_dword', vPRG, vCT, sWS, 0, flags='sc1'))
        if CFG['stamps']: R.stamp(len(R.stages) - 1)
        p.emit(raw(f"s_call_b64 {sRET}, L_{kind}_red"))
    if CFG['stamps']:
        p = R.p
        R.stamp(len(R.stages))
        p.emit(raw("s_memrealtime s[98:99]", wr=[s(98, 2)])); p.emit(raw("s_waitcnt lgkmcnt(0)"))
        p.emit(raw(f"v_writelane_b32 {vSTAMP}, s98, 63", 'valu', wr=[vSTAMP], rd=[s(98)]))
        if CFG.get('dbgstat'):
            n = len(R.stages)
            lanes = {'F': [0, 27, n - 1, n], 'A': [0, 37, n - 1, n], 'M': [0, 34, n - 1, n]}[kind]
            slots = {'F': [1, 2, 3, 5], 'A': [10, 11, 13, 14], 'M': [15, 15, 15, 15]}[kind]
            p.emit([valu('v_mov_b32', v(4), 256), valu('v_mov_b32', v(5), 0)])
            for i, (ln, sl) in enumerate(zip(lanes, slots)):
                p.emit(raw(f"v_readlane_b32 s92, {vSTAMP}, {ln}", 'rdl', wr=[sT2], rd=[vSTAMP])); p.emit(nop(3))
                p.emit(raw(f"v_writelane_b32 v5, s92, {i}", 'valu', wr=[v(5)], rd=[sT2])); p.emit(raw(f"v_writelane_b32 v4, {4 * sl}, {i}", 'valu', wr=[v(4)]))
            p.emit(raw(f"v_writelane_b32 v5, s98, 4", 'valu', wr=[v(5)], rd=[s(98)])); p.emit(raw(f"v_writelane_b32 v4, 28, 4", 'valu', wr=[v(4)]))
            p.emit(salu('s_not_b32', sT2, s(43))); p.emit(raw(f"v_writelane_b32 v5, s92, 5", 'valu', wr=[v(5)], rd=[sT2])); p.emit(raw(f"v_writelane_b32 v4, 36, 5", 'valu', wr=[v(4)]))
            p.emit(salu('s_sub_u32', sT2, s(98), s(43))); p.emit(raw(f"v_writelane_b32 v5, s92, 6", 'valu', wr=[v(5)], rd=[sT2])); p.emit(raw(f"v_writelane_b32 v4, 24, 6", 'valu', wr=[v(4)]))
            p.emit([salu('s_cmp_eq_u32', None, sRB, 9), csel(sT2, 0, sRB), salu('s_or_b32', sT2, sT2, sWAVE), salu('s_cmp_eq_u32', None, sT2, 0), csel(sT2, 0, 256),
                    valu('v_add_u32', v(4), sT2, v(4))])
            p.emit(I(f"buffer_atomic_umax v5, v4, {sDBG}, 0 offen sc1", 'vstore', rd=vr(4, 2) + sDBG.regs(), units=3))
        p.emit([shl(sT2, s(2), 2), add(sT2, sT2, sWAVE), shl(sT2, sT2, 8), add(sT2, sT2, STAMP_OFF),
                valu('v_lshrrev_b32', v(42), 2, vLANE16), bstore('buffer_store_dword', vSTAMP, v(42), sWS, sT2)])
    R.p.emit(raw("s_endpgm"))
    return R

def fold(ins, name):
    idx = [i for i, x in enumerate(ins) if x.tag == 'mark']
    def body(a_, b_): return [x.txt for x in ins[a_:b_] if x.kind != 'label']
    out = []; pos = 0; k = 0; nl = 0
    while k + 1 < len(idx):
        b0 = body(idx[k], idx[k + 1]); n = 1
        while k + n + 1 < len(idx) and body(idx[k + n], idx[k + n + 1]) == b0: n += 1
        if n >= 2:
            out += ins[pos:idx[k]]
            L = f"L_{name}_loop{nl}"; nl += 1
            out.append(smov(sLC, n)); out.append(I(".p2align 3", 'label')); out.append(label(L))
            out += ins[idx[k]:idx[k + 1]]
            out += [salu('s_sub_u32', sLC, sLC, 1), salu('s_cmp_lg_u32', None, sLC, 0), raw(f"s_cbranch_scc1 {L}")]
            pos = idx[k + n]; k += n
        else: k += 1
    out += ins[pos:]
    return out

def fold_regions(ins, name):
    regs = []; i = 0
    beg = None
    for i, x in enumerate(ins):
        if isinstance(x.tag, tuple) and x.tag and x.tag[0] == 'region':
            if x.tag[1] == 'begin': beg = (i, x.tag[2])
            elif beg: regs.append((beg[0], i, beg[1])); beg = None
    groups = {}
    for (a_, b_, key) in regs:
        groups.setdefault(tuple(x.txt for x in ins[a_:b_] if x.kind != 'label'), []).append((a_, b_))
    out = []; subs = []; repl = {}
    n = 0
    for body, lst in groups.items():
        if len(lst) >= 2:
            L = f"L_{name}_sub{n}"; n += 1
            a_, b_ = lst[0]
            subs += [I(".p2align 6", 'label'), label(L)] + ins[a_:b_] + [raw(f"s_setpc_b64 {sRET}")]
            for (a_, b_) in lst: repl[a_] = (b_, L)
    i = 0
    while i < len(ins):
        if i in repl:
            b_, L = repl[i]; out.append(raw(f"s_call_b64 {sRET}, {L}")); i = b_
        else:
            out.append(ins[i]); i += 1
    print(f"  regions: {[len(l) for l in groups.values()]}", file=sys.stderr)
    return out + subs

def reduce_body(p, sPART, sXO, srdP, srdX, srdO, vL16, vXO, base, flags, mid=None):
    E = p.emit
    L = base; XR = base + 68; SA = base + 72; FA = base + 80; T = base + 88
    for k in range(NPART):
        if k: E(add(sPART, sPART, 16 * PART))
        E(bload('buffer_load_dwordx4', v(L + 4 * k, 4), vL16, srdP, sPART, flags=flags))
    E(bload('buffer_load_dwordx2', v(XR, 2), vXO, srdX, sXO)); E(bload('buffer_load_dwordx2', v(XR + 2, 2), vXO, srdX, sXO, 32))
    ex = 0
    if mid: E(mid()); ex = 1
    E(smov(sT3, 0xffff0000))
    for k in range(NPART):
        E(waitvm(NPART + 1 - k + ex))
        acc = SA if k < 11 else FA
        for q in range(4):
            x = v(L + 4 * k + q)
            if k in (0, 11):
                E(valu('v_lshlrev_b32', v(acc + 2 * q), 16, x)); E(valu('v_and_b32', v(acc + 2 * q + 1), sT3, x))
            else:
                tp = v(T + 2 * q, 2)
                E(valu('v_lshlrev_b32', tp[0], 16, x)); E(valu('v_and_b32', tp[1], sT3, x))
        if k not in (0, 11):
            for q in range(4): E(valu('v_pk_add_f32', v(acc + 2 * q, 2), v(acc + 2 * q, 2), v(T + 2 * q, 2)))
    for e in range(8): E(valu('v_exp_f32', v(T + e), v(FA + e)))
    for e in range(8): E(valu('v_add_f32', v(T + e), 1.0, v(T + e)))
    for e in range(8): E(valu('v_rcp_f32', v(T + e), v(T + e)))
    for e in range(8): E(valu('v_mul_f32', v(FA + e), f2u(-math.log(2.0)), v(FA + e)))
    for e in range(8): E(valu('v_mul_f32', v(FA + e), v(FA + e), v(T + e)))
    E(waitvm(ex))
    for q in range(4):
        E(valu('v_lshlrev_b32', v(T + 2 * q), 16, v(XR + q))); E(valu('v_and_b32', v(T + 2 * q + 1), sT3, v(XR + q)))
    for e in range(8): E(valu('v_fma_f32', v(T + e), v(SA + e), v(FA + e), v(T + e)))
    for q in range(4): E(valu('v_cvt_pk_bf16_f32', v(XR + q), v(T + 2 * q), v(T + 2 * q + 1)))
    E(bstore('buffer_store_dwordx2', v(XR, 2), vXO, srdO, sXO)); E(bstore('buffer_store_dwordx2', v(XR + 2, 2), vXO, srdO, sXO, 32))

def reduce_kernel():
    p = Prog(); E = p.emit
    E(salu('s_cmp_ge_u32', None, s(2), 576)); E(raw("s_cbranch_scc0 L_rgo")); E(raw("s_endpgm")); E(label("L_rgo"))
    E(raw("s_load_dwordx2 s[4:5], s[0:1], 0", wr=[s(4, 2)])); E(raw("s_load_dwordx2 s[6:7], s[0:1], 64", wr=[s(6, 2)])); E(raw("s_load_dwordx2 s[8:9], s[0:1], 80", wr=[s(8, 2)]))
    E(valu('v_lshrrev_b32', v(1), 6, v(0))); E(valu('v_readfirstlane_b32', s(10), v(1)))
    E(shl(s(11), s(2), 2)); E(add(s(11), s(11), s(10)))
    E(salu('s_mul_hi_u32', s(24), s(11), -(-(1 << 32) // 36), scc_w=False))
    E(mul(s(25), s(24), 36)); E(salu('s_sub_u32', s(25), s(11), s(25)))
    E(shl(s(26), s(11), 10))
    E(valu('v_and_b32', v(0), 63, v(0))); E(valu('v_lshlrev_b32', v(1), 4, v(0)))
    E(valu('v_and_b32', v(2), 15, v(0))); E(smov(s(27), 1152)); E(valu('v_mul_u32_u24', v(2), s(27), v(2)))
    E(valu('v_lshrrev_b32', v(3), 4, v(0))); E(valu('v_lshl_add_u32', v(2), v(3), 3, v(2)))
    E(mul(s(28), s(24), 32 * 1152)); E(salu('s_and_b32', s(29), s(25), 1)); E(mul(s(29), s(29), 16 * 1152)); E(add(s(28), s(28), s(29)))
    E(shr(s(25), s(25), 1)); E(shl(s(25), s(25), 6)); E(add(s(28), s(28), s(25)))
    E(raw("s_waitcnt lgkmcnt(0)"))
    srd(p, s(12, 4), 8, WSP_BYTES); srd(p, s(16, 4), 4, 2359296); srd(p, s(20, 4), 6, 2359296)
    reduce_body(p, s(26), s(28), s(12, 4), s(16, 4), s(20, 4), v(1), v(2), 4, CFG.get('rflags', ''))
    E(raw("s_endpgm"))
    return p

def text(ins): return "\n".join((i.txt if i.kind == 'label' else " " + i.txt) for i in ins) + "\n"

def compress(t):
    t = re.sub(r" v_mfma_f32_16x16x32_bf16 v\[(\d+):\d+\], a\[(\d+):\d+\], v\[(\d+):\d+\], v\[\1:\d+\]", r" MV \1,\2,\3", t)
    t = re.sub(r" v_mfma_f32_16x16x32_bf16 v\[(\d+):\d+\], a\[(\d+):\d+\], a\[(\d+):\d+\], v\[\1:\d+\]", r" MA \1,\2,\3", t)
    t = re.sub(r" v_mfma_f32_32x32x16_bf16 v\[(\d+):\d+\], a\[(\d+):\d+\], v\[(\d+):\d+\], v\[\1:\d+\]", r" NV \1,\2,\3", t)
    t = re.sub(r" v_mfma_f32_32x32x16_bf16 v\[(\d+):\d+\], a\[(\d+):\d+\], a\[(\d+):\d+\], v\[\1:\d+\]", r" NA \1,\2,\3", t)
    t = re.sub(r" v_mfma_f32_16x16x32_bf16 a\[(\d+):\d+\], a\[(\d+):\d+\], v\[(\d+):\d+\], a\[\1:\d+\]", r" MC \1,\2,\3", t)
    t = re.sub(r" ds_read_b64_tr_b16 a\[(\d+):\d+\], v(\d+) offset:(\d+)", r" RT \1,\2,\3", t)
    t = re.sub(r" ds_read_b128 a\[(\d+):\d+\], v(\d+) offset:(\d+)", r" RB \1,\2,\3", t)
    t = re.sub(r" v_cvt_pk_bf16_f32 v(\d+), v(\d+), v(\d+)", r" CV \1,\2,\3", t)
    t = re.sub(r" v_accvgpr_write_b32 a(\d+), v(\d+)", r" AW \1,\2", t)
    t = re.sub(r" v_exp_f32 v(\d+), v(\d+)", r" EX \1,\2", t)
    t = re.sub(r" v_add_f32 v(\d+), v(\d+), v(\d+)", r" AD \1,\2,\3", t)
    t = re.sub(r" v_mul_f32 v(\d+), v(\d+), v(\d+)", r" ML \1,\2,\3", t)
    t = re.sub(r" s_waitcnt lgkmcnt\((\d+)\)", r" WL \1", t)
    mac = r""".macro MC d,a,b
 v_mfma_f32_16x16x32_bf16 a[\d:\d+3], a[\a:\a+3], v[\b:\b+3], a[\d:\d+3]
.endm
.macro NV d,a,b
 v_mfma_f32_32x32x16_bf16 v[\d:\d+15], a[\a:\a+3], v[\b:\b+3], v[\d:\d+15]
.endm
.macro NA d,a,b
 v_mfma_f32_32x32x16_bf16 v[\d:\d+15], a[\a:\a+3], a[\b:\b+3], v[\d:\d+15]
.endm
.macro MV d,a,b
 v_mfma_f32_16x16x32_bf16 v[\d:\d+3], a[\a:\a+3], v[\b:\b+3], v[\d:\d+3]
.endm
.macro MA d,a,b
 v_mfma_f32_16x16x32_bf16 v[\d:\d+3], a[\a:\a+3], a[\b:\b+3], v[\d:\d+3]
.endm
.macro RT d,a,o
 ds_read_b64_tr_b16 a[\d:\d+1], v\a offset:\o
.endm
.macro RB d,a,o
 ds_read_b128 a[\d:\d+3], v\a offset:\o
.endm
.macro CV d,a,b
 v_cvt_pk_bf16_f32 v\d, v\a, v\b
.endm
.macro AW d,a
 v_accvgpr_write_b32 a\d, v\a
.endm
.macro EX d,a
 v_exp_f32 v\d, v\a
.endm
.macro AD d,a,b
 v_add_f32 v\d, v\a, v\b
.endm
.macro ML d,a,b
 v_mul_f32 v\d, v\a, v\b
.endm
.macro WL n
 s_waitcnt lgkmcnt(\n)
.endm
"""
    return mac, t

HDR = open('recurrent_scan__sliding_block_cached__dense_activation_silu__prompt.s.ref').read().split('; Override launch')[0]
DOC = """; Generated by my own scheduler scripts (hand-designed instruction streams, hazards padded by the script).
; registers as MFMA B operands (transposed formulation), weights / K / V stream through a 4-slot LDS ring (LDS-DMA).
;   role A (10): layernorm, Q projection, attention for 3 heads (one GQA pair shares K/V fragments), partial of o@wo
; The bf16 partials go to d_ws with write-through stores; progress words (reset per launch, guarded by a counter in
"""
def kd(name, vgpr, acc, sgpr=102):
    return f""".amdhsa_kernel {name}
  .amdhsa_next_free_vgpr {vgpr}
  .amdhsa_next_free_sgpr {sgpr}
  .amdhsa_accum_offset {acc}
  .amdhsa_group_segment_fixed_size 0
  .amdhsa_kernarg_size 88
  .amdhsa_user_sgpr_count 2
  .amdhsa_user_sgpr_kernarg_segment_ptr 1
  .amdhsa_system_sgpr_workgroup_id_x 1
.end_amdhsa_kernel
"""
def est_cycles(ins):
    tot = 0; cur = None; n = 0
    for i in ins:
        if i.kind == 'label': continue
        if i.kind == 'mfma':
            if cur is not None: tot += max(cap, cur)
            cur = 2; n += 1; cap = 8 if len(i.wr) == 16 else 4
        elif cur is not None:
            if i.txt.startswith('s_waitcnt lgkm') and cap == 4: continue
            cur += i.units if not i.txt.startswith('s_nop') else (int(i.txt.split()[1]) + 1) * 0.5
    return tot * 4

def main(out, **kw):
    CFG.update(kw)
    set_layout(CFG.get('l844'))
    if CFG.get('tabs'):
        BAL2[:], BALM[:], BAL3[:] = CFG['tabs']
        CFG['bal'] = 2
    if CFG.get('tab'):
        global ROLE_TAB
        ROLE_TAB = CFG['tab']
    CFG['shape0'] = CFG['shape']
    cp = common_prologue()
    if CFG.get('entry', 0):
        if CFG.get('entry', 1) == 1:
            k = next(i for i, x in enumerate(cp.ins) if x.txt == 's_waitcnt lgkmcnt(0)')
            tail = cp.ins[k:]; vmx = list(cp.vm); cp.ins = cp.ins[:k]; cp.vm = []
            common_prologue2(cp); cp.ins += tail; cp.vm += vmx
        else: common_prologue2(cp)
        common_prologue3(cp)
    body = text(cp.ins) + dispatch_text()
    for kind in 'FAM':
        R = build_role(kind, cp.vm)
        ins = fold_regions(fold(R.p.ins, kind), kind) if CFG['fold'] else R.p.ins
        nm = sum(1 for i in R.p.ins if i.kind == 'mfma')
        print(f"role {kind}: stages {len(R.stages)} mfma {nm} instrs {len([i for i in ins if i.kind!='label'])} (unrolled {len([i for i in R.p.ins if i.kind!='label'])}) pad {R.p.npad} forced {R.forced} est {est_cycles(R.p.ins)} ideal {sum(32 if len(i.wr) == 16 else 16 for i in R.p.ins if i.kind == 'mfma')}", file=sys.stderr)
        if CFG.get('abl_pair') and kind in 'AM':
            out_ = []; on = False
            for x in ins:
                if x.kind == 'label' and x.txt.startswith('; PAh'): on = x.txt.startswith('; PAh1')
                if x.kind == 'label' and x.txt.startswith('; P2'): on = False
                if on and (x.kind in ('dma', 'ds') or (x.kind == 'salu' and ('m0' in x.txt or 's70' in x.txt))): continue
                out_.append(x)
            ins = out_
        if CFG.get('abl_half'):
            out_ = []; on = False; cnt = 0
            for x in ins:
                if x.kind == 'label' and x.txt.startswith('; P'): on = x.txt.startswith(('; P1', '; P2'))
                if x.kind == 'label' and x.txt.startswith('; REGION begin'): on = True
                if on and x.kind == 'ds':
                    cnt += 1
                    if (cnt >> 1) & 1: continue
                out_.append(x)
            ins = out_
        ab = CFG.get('ablate', '')
        if ab:
            st0 = next(i for i, x in enumerate(ins) if x.txt.startswith('; P1u1b0'))
            def keep(x):
                if 'd' in ab and x.kind == 'dma': return False
                if 'r' in ab and x.kind == 'ds': return False
                if 'v' in ab and x.kind in ('trans',): return False
                if 'V' in ab and x.kind in ('trans', 'valu', 'perm') and not x.txt.startswith(('v_add_u32', 'v_xor', 'v_writelane', 'v_cmp', 'v_cnd', 'v_mov', 'v_lsh', 'v_mad', 'v_min', 'v_and', 'v_bfe', 'v_mul_u32')): return False
                if 'm' in ab and x.kind == 'mfma': return False
                return True
            ins = ins[:st0] + [x for x in ins[st0:] if keep(x)]
        for sp in R.slow: ins = ins + sp.ins
        if CFG['fused']: ins = ins + reducer(kind).ins
        body += f".p2align 6\nL_role{kind}:\n" + text(ins) + f"L_role{kind}_end:\n"
    rk = reduce_kernel()
    mac, body = compress(body)
    if CFG['fused']:
        t = HDR + "; @launch grid=(256,1,1) block=(256,1,1) lds=163840\n" + DOC
        t += '.amdgcn_target "amdgcn-amd-amdhsa--gfx950"\n' + mac + f".text\n.globl {KN}\n.p2align 8\n.type {KN},@function\n{KN}:\n" + body
        t += '.section .rodata,"a"\n.p2align 6\n' + kd(KN, 512, 256)
        open(out, 'w').write(t); print("size", len(t), file=sys.stderr); return
    t = HDR + f"; @launch kernel={KN} grid=(256,1,1) block=(256,1,1) lds=163840\n; @launch kernel={RN} grid=(576,1,1) block=(256,1,1) lds=0\n"
    t += '.amdgcn_target "amdgcn-amd-amdhsa--gfx950"\n' + mac + f".text\n.globl {KN}\n.p2align 8\n.type {KN},@function\n{KN}:\n" + body
    t += f".globl {RN}\n.p2align 8\n.type {RN},@function\n{RN}:\n" + text(rk.ins)
    t += '.section .rodata,"a"\n.p2align 6\n' + kd(KN, 512, 256) + ".p2align 6\n" + kd(RN, 104, 104, 102)
    open(out, 'w').write(t)
    print("size", len(t), file=sys.stderr)

if __name__ == "__main__":
    kw = eval("dict(" + (sys.argv[2] if len(sys.argv) > 2 else "") + ")")
    main(sys.argv[1], **kw)
```

```python
import sys, re
from s1 import *

ROLE_TAB = [0, 1, 2, 11, 3, 4, 5, 12, 6, 7, 13, 14, 8, 9, 10, 15]
vPFR = v(36)
vPRG = v(36)
PART = 4 * PWAVE
NPART = 17
NA, NM, NS = 10, 1, 11
def set_layout(new):
    global NPART, NA, NM, NS, ROLE_TAB
    if new:
        NPART, NA, NM, NS = 20, 8, 4, 12
        ROLE_TAB = [0, 1, 8, 12, 2, 3, 9, 13, 4, 5, 10, 14, 6, 7, 11, 15]
WSP_BYTES = NPART * 16 * PART
def PSTR(): return 16 * PART + (CFG.get('pskew', 0) if CFG['fused'] else 0)
sJQ, sQ0, sOA1, sOB1 = s(73), s(59), s(74), s(75)
ABN = 4096
STAMP_OFF = 0x3000000
CTRL = 0x2F00000
OOB = 0x10000000

def srd(p, dst, lo, nbytes):
    p.emit([smov(dst[0], s(lo)), salu('s_and_b32', dst[1], s(lo + 1), 0xffff), smov(dst[2], nbytes), smov(dst[3], 0x20000)])
def xdma(j):
    return [salu('s_add_u32', 'm0', s(6), j * 4096), salu('s_add_u32', sT, s(7), j * 128)] + [dma(v(16 + q), sX, sT, q * 1024, tag=('x', j)) for q in range(4)]
def mul(d, a_, b_): return salu('s_mul_i32', d, a_, b_, scc_w=False)
def add(d, a_, b_): return salu('s_add_u32', d, a_, b_)
def shl(d, a_, b_): return salu('s_lshl_b32', d, a_, b_)
def shr(d, a_, b_): return salu('s_lshr_b32', d, a_, b_)
def csel(d, a_, b_): return salu('s_cselect_b32', d, a_, b_, scc_w=False, scc_r=True)

def common_prologue():
    if CFG.get('entry', 0) == 0: return common_prologue_old()
    assert CFG['xe'] == 9 and CFG.get('map', 4) == 4
    p = Prog(); E = p.emit
    E(raw("s_load_dwordx8 s[40:47], s[0:1], 0", wr=[s(40, 8)]))
    E(salu('s_cmp_ge_u32', None, s(2), 256))
    E(raw("s_cbranch_scc0 L_go")); E(raw("s_endpgm")); E(label("L_go"))
    if CFG['stamps']:
        E(raw(f"s_memtime {sT0}", wr=[sT0])); E(raw("s_memrealtime s[96:97]", wr=[s(96, 2)]))
    E(valu('v_lshrrev_b32', v(1), 6, v(0)))
    E(salu('s_and_b32', s(3), s(2), 1)); E(shl(s(3), s(3), 3))
    E(valu('v_readfirstlane_b32', sWAVE, v(1)))
    E(shr(sRB, s(2), 5)); E(salu('s_or_b32', sRB, sRB, s(3)))
    E(valu('v_and_b32', v(0), 63, v(0)))
    E(valu('v_lshrrev_b32', vROWN, 3, v(0)))
    E(valu('v_and_b32', v(20), 7, v(0))); E(valu('v_lshrrev_b32', v(21), 4, v(0)))
    E(valu('v_xor_b32', v(22), v(20), v(21))); E(valu('v_xor_b32', v(23), 4, v(22)))
    E(salu('s_movk_i32', s(3), 1152, scc_w=False)); E(valu('v_mul_u32_u24', v(24), s(3), vROWN))
    E(valu('v_lshl_add_u32', v(16), v(22), 4, v(24))); E(valu('v_lshl_add_u32', v(17), v(23), 4, v(24)))
    E(valu('v_add_u32', v(17), 8 * 1152 - 1024, v(17)))
    E(valu('v_add_u32', v(18), 2 * (8 * 1152 - 1024), v(16))); E(valu('v_add_u32', v(19), 2 * (8 * 1152 - 1024), v(17)))
    E(mul(s(6), sWAVE, XW)); E(raw("s_lshl2_add_u32 s7, s64, s62", 'salu', wr=[s(7)], rd=[sRB, sWAVE])); E(mul(sT, s(7), 32 * 1152))
    E(smov('m0', s(6))); E(add(s(7), sT, 9 * 128))
    E(smov(sX[2], 2359296)); E(smov(sX[3], 0x20000))
    E(raw("s_waitcnt lgkmcnt(0)"))
    E(smov(sX[0], s(40))); E(salu('s_and_b32', sX[1], s(41), 0xffff))
    E(label("L_xl"))
    n0 = len(p.vm)
    for q in range(4): E(dma(v(16 + q), sX, sT, q * 1024))
    del p.vm[n0:]
    for j in range(9): p.vm += [('x', j)] * 4
    E(add(sT, sT, 128)); E(add('m0', 'm0', 4096)); E(salu('s_cmp_lt_u32', None, sT, s(7))); E(raw("s_cbranch_scc1 L_xl"))
    return p
def common_prologue2(p):
    E = p.emit
    tab = ROLE_TAB
    lo = sum(tab[i] << (4 * i) for i in range(8)); hi = sum(tab[8 + i] << (4 * i) for i in range(8))
    E(salu('s_bfe_u32', s(3), s(2), (2 << 16) | 3)); E(salu('s_bfe_u32', s(4), s(2), (1 << 16) | 1))
    E(shl(s(4), s(4), 2)); E(salu('s_or_b32', s(3), s(3), s(4))); E(shl(s(3), s(3), 2))
    E(salu('s_bitcmp1_b32', None, s(2), 2))
    E(smov(s(4), lo)); E(csel(s(4), hi, s(4)))
    E(shr(s(4), s(4), s(3))); E(salu('s_and_b32', sROLE, s(4), 15))
    E(raw(f"s_getpc_b64 {sPC}", wr=[sPC])); E(label("L_pc"))
    E(smov(s(4), "L_roleA-L_pc")); E(smov(s(5), "L_roleA_end-L_pc-4"))
    E(salu('s_cmp_ge_u32', None, sROLE, NA)); E(csel(s(4), "L_roleM-L_pc", s(4))); E(csel(s(5), "L_roleM_end-L_pc-4", s(5)))
    E(salu('s_cmp_ge_u32', None, sROLE, NA + NM)); E(csel(s(4), "L_roleF-L_pc", s(4))); E(csel(s(5), "L_roleF_end-L_pc-4", s(5)))
    n0 = CFG.get('code0', 16); NL = CFG.get('codelines', 24)
    if n0:
        E(mul(s(3), sWAVE, n0 * 128)); E(add(s(3), s(3), s(4)))
        E(valu('v_min_u32', v(2), n0 - 1, v(0))); E(valu('v_lshlrev_b32', v(2), 7, v(2))); E(valu('v_add_u32', v(2), s(3), v(2)))
        E(I(f"global_load_dword {vDUM}, v2, {sPC}", 'vload', wr=vDUM.regs(), rd=vr(2) + sPC.regs(), tag='pf'))
    E(salu('s_and_b32', s(3), sRB, 7)); E(shl(s(3), s(3), 2)); E(add(s(3), s(3), sWAVE))
    E(mul(s(3), s(3), NL * 128)); E(add(s(3), s(3), s(4)))
    E(valu('v_min_u32', v(2), NL - 1, v(0))); E(valu('v_lshlrev_b32', v(2), 7, v(2))); E(valu('v_add_u32', v(2), s(3), v(2)))
    E(valu('v_min_u32', v(3), s(5), v(2)))
    E(I(f"global_load_dword {vDUM}, v3, {sPC}", 'vload', wr=vDUM.regs(), rd=vr(3) + sPC.regs(), tag='pf'))
def common_prologue3(p):
    E = p.emit
    E(raw("s_load_dwordx2 s[48:49], s[0:1], 32", wr=[s(48, 2)]))
    E(raw("s_load_dwordx8 s[52:59], s[0:1], 48", wr=[s(52, 8)]))
    E(raw("s_load_dwordx2 s[50:51], s[0:1], 80", wr=[s(50, 2)]))
    srd(p, sK, 42, 8388608); srd(p, sV, 44, 8388608); srd(p, sWQ, 46, 4718592)
    E(mul(sW8704, sWAVE, 8 * PP)); E(mul(sWC, sWAVE, PP)); E(add(sWC, sWC, 32 * PP))
    E(shl(sW8192, sWAVE, 13)); E(shl(sWCH, sWAVE, 10)); E(add(sWCH, sWCH, 32768))
    E(mul(sW2176, sWAVE, 2 * PP)); E(mul(sW4352, sWAVE, 4 * PP)); E(add(sWA2, sW2176, 16 * PP))
    E(raw("s_waitcnt lgkmcnt(0)"))
    srd(p, sWO, 48, 4718592)
    srd(p, sW1, 52, 5308416); srd(p, sW2, 54, 5308416); srd(p, sWS, 50, 0x10000000 if (CFG['stamps'] or CFG['fused']) else WSP_BYTES)
    srd(p, sOUT, 56, 2359296); srd(p, sDBG, 58, 256)

def common_prologue_old():
    p = Prog(); E = p.emit
    E(salu('s_cmp_ge_u32', None, s(2), 256))
    E(raw("s_cbranch_scc0 L_go")); E(raw("s_endpgm")); E(label("L_go"))
    E(raw("s_load_dwordx8 s[40:47], s[0:1], 0", wr=[s(40, 8)]))
    E(raw("s_load_dwordx2 s[48:49], s[0:1], 32", wr=[s(48, 2)]))
    E(raw("s_load_dwordx8 s[52:59], s[0:1], 48", wr=[s(52, 8)]))
    E(raw("s_load_dwordx2 s[50:51], s[0:1], 80", wr=[s(50, 2)]))
    if CFG['stamps']:
        E(raw(f"s_memtime {sT0}", wr=[sT0])); E(raw("s_memrealtime s[96:97]", wr=[s(96, 2)]))
    tab = ROLE_TAB
    if CFG.get('map', 4) == 41:
        t4 = CFG.get('t41', [11, 0, 1, 2, 12, 3, 4, 5, 13, 14, 6, 7, 15, 10, 8, 9])
        lo = sum(t4[i] << (4 * i) for i in range(8)); hi = sum(t4[8 + i] << (4 * i) for i in range(8))
        E(shr(s(3), s(2), 6)); E(salu('s_bfe_u32', s(4), s(2), (1 << 16) | 1))
        E(shl(s(4), s(4), 2)); E(salu('s_or_b32', s(3), s(3), s(4))); E(shl(s(3), s(3), 2))
        E(salu('s_bitcmp1_b32', None, s(2), 2)); E(smov(s(4), lo)); E(csel(s(4), hi, s(4)))
        E(shr(s(4), s(4), s(3))); E(salu('s_and_b32', sROLE, s(4), 15))
        E(salu('s_and_b32', s(3), s(2), 1)); E(shl(s(3), s(3), 3))
        E(salu('s_bfe_u32', sRB, s(2), (3 << 16) | 3)); E(salu('s_or_b32', sRB, sRB, s(3)))
    elif CFG.get('map', 4) == 8:
        t8 = [0, 1, 2, 3, 4, 10, 11, 12, 5, 6, 7, 8, 9, 13, 14, 15]
        lo = sum(t8[i] << (4 * i) for i in range(8)); hi = sum(t8[8 + i] << (4 * i) for i in range(8))
        E(salu('s_bfe_u32', s(3), s(2), (3 << 16) | 3)); E(shl(s(3), s(3), 2))
        E(salu('s_bitcmp1_b32', None, s(2), 2)); E(smov(s(4), lo)); E(csel(s(4), hi, s(4)))
        E(shr(s(4), s(4), s(3))); E(salu('s_and_b32', sROLE, s(4), 15))
        E(salu('s_and_b32', s(3), s(2), 1)); E(shl(s(3), s(3), 3)); E(salu('s_and_b32', s(4), s(2), 2)); E(shl(s(4), s(4), 1))
        E(shr(sRB, s(2), 6)); E(salu('s_or_b32', sRB, sRB, s(3))); E(salu('s_or_b32', sRB, sRB, s(4)))
    elif CFG.get('map', 4) == 2:
        t2 = [0, 1, 2, 3, 4, 11, 5, 12, 6, 13, 7, 14, 8, 15, 9, 10]
        lo = sum(t2[i] << (4 * i) for i in range(8)); hi = sum(t2[8 + i] << (4 * i) for i in range(8))
        E(salu('s_bfe_u32', s(3), s(2), (1 << 16) | 3)); E(salu('s_and_b32', s(4), s(2), 3)); E(shl(s(4), s(4), 1)); E(salu('s_or_b32', s(3), s(3), s(4))); E(shl(s(3), s(3), 2))
        E(salu('s_bitcmp1_b32', None, s(2), 2)); E(smov(s(4), lo)); E(csel(s(4), hi, s(4)))
        E(shr(s(4), s(4), s(3))); E(salu('s_and_b32', sROLE, s(4), 15)); E(shr(sRB, s(2), 4))
    else:
        lo = sum(tab[i] << (4 * i) for i in range(8)); hi = sum(tab[8 + i] << (4 * i) for i in range(8))
        E(salu('s_bfe_u32', s(3), s(2), (2 << 16) | 3)); E(salu('s_bfe_u32', s(4), s(2), (1 << 16) | 1))
        E(shl(s(4), s(4), 2)); E(salu('s_or_b32', s(3), s(3), s(4))); E(shl(s(3), s(3), 2))
        E(salu('s_bitcmp1_b32', None, s(2), 2))
        E(smov(s(4), lo)); E(csel(s(4), hi, s(4)))
        E(shr(s(4), s(4), s(3))); E(salu('s_and_b32', sROLE, s(4), 15))
        E(salu('s_and_b32', s(3), s(2), 1)); E(shl(s(3), s(3), 3))
        E(shr(sRB, s(2), 5)); E(salu('s_or_b32', sRB, sRB, s(3)))
    E(valu('v_lshrrev_b32', v(1), 6, v(0)))
    E(valu('v_readfirstlane_b32', sWAVE, v(1)))
    E(valu('v_and_b32', v(0), 63, v(0)))
    E(valu('v_lshrrev_b32', vROWN, 3, v(0)))
    E(valu('v_and_b32', v(20), 7, v(0))); E(valu('v_lshrrev_b32', v(21), 4, v(0)))
    E(valu('v_xor_b32', v(22), v(20), v(21))); E(valu('v_xor_b32', v(23), 4, v(22)))
    E(smov(s(3), 1152)); E(valu('v_mul_u32_u24', v(24), s(3), vROWN))
    E(valu('v_lshl_add_u32', v(16), v(22), 4, v(24))); E(valu('v_lshl_add_u32', v(17), v(23), 4, v(24)))
    E(valu('v_add_u32', v(17), 8 * 1152 - 1024, v(17)))
    E(valu('v_add_u32', v(18), 2 * (8 * 1152 - 1024), v(16))); E(valu('v_add_u32', v(19), 2 * (8 * 1152 - 1024), v(17)))
    E(mul(s(6), sWAVE, XW))
    E(shl(s(7), sRB, 2)); E(add(s(7), s(7), sWAVE)); E(mul(s(7), s(7), 32 * 1152))
    E(raw(f"s_getpc_b64 {sPC}", wr=[sPC])); E(label("L_pc"))
    E(smov(s(4), "L_roleA-L_pc")); E(smov(s(5), "L_roleA_end-L_pc-4"))
    E(salu('s_cmp_ge_u32', None, sROLE, NA)); E(csel(s(4), "L_roleM-L_pc", s(4))); E(csel(s(5), "L_roleM_end-L_pc-4", s(5)))
    E(salu('s_cmp_ge_u32', None, sROLE, NA + NM)); E(csel(s(4), "L_roleF-L_pc", s(4))); E(csel(s(5), "L_roleF_end-L_pc-4", s(5)))
    def code_pf():
        NL = CFG.get('codelines', 24)
        E(salu('s_and_b32', s(3), sRB, 7)); E(shl(s(3), s(3), 2)); E(add(s(3), s(3), sWAVE))
        E(mul(s(3), s(3), NL * 128)); E(add(s(3), s(3), s(4)))
        E(valu('v_min_u32', v(2), NL - 1, v(0))); E(valu('v_lshlrev_b32', v(2), 7, v(2))); E(valu('v_add_u32', v(2), s(3), v(2)))
        E(valu('v_min_u32', v(3), s(5), v(2)))
        E(I(f"global_load_dword {vDUM}, v3, {sPC}", 'vload', wr=vDUM.regs(), rd=vr(3) + sPC.regs(), tag='pf'))
    if CFG.get('codepf', 3) >= 3:
        n0 = CFG.get('code0', 16)
        if n0:
            E(mul(s(3), sWAVE, n0 * 128)); E(add(s(3), s(3), s(4)))
            E(valu('v_min_u32', v(2), n0 - 1, v(0))); E(valu('v_lshlrev_b32', v(2), 7, v(2))); E(valu('v_add_u32', v(2), s(3), v(2)))
            E(I(f"global_load_dword {vDUM}, v2, {sPC}", 'vload', wr=vDUM.regs(), rd=vr(2) + sPC.regs(), tag='pf'))
        code_pf()
    E(raw("s_waitcnt lgkmcnt(0)"))
    srd(p, sX, 40, 2359296)
    if CFG.get('xt'):
        nch = CFG['xt']
        E(salu('s_bfe_u32', s(3), s(2), (2 << 16) | 3)); E(mul(s(3), s(3), 128 * nch)); E(add(s(3), s(3), 128 * (9 - 4 * nch))); E(add(s(3), s(3), s(7)))
        E(valu('v_and_b32', v(2), 31, v(0))); E(valu('v_mul_u32_u24', v(2), 1152, v(2)))
        if nch == 2:
            E(valu('v_lshrrev_b32', v(3), 5, v(0))); E(valu('v_lshl_add_u32', v(2), v(3), 7, v(2)))
        ld = bload('buffer_load_dword', vDUM, v(2), sX, s(3)); ld.tag = 'pf'; E(ld)
    nx0 = CFG.get('tx', 2) if CFG.get('touch') else 0
    for j in range(nx0): E(xdma(j))
    if CFG.get('touch'):
        E(salu('s_cmp_gt_u32', None, sROLE, 10))
        E(raw("s_cselect_b64 s[60:61], s[52:53], s[46:47]", 'salu', wr=[s(60, 2)], rd=[s(52, 2), s(46, 2)]))
        E(raw("s_cselect_b64 s[66:67], s[54:55], s[48:49]", 'salu', wr=[s(66, 2)], rd=[s(54, 2), s(48, 2)]))
        E(salu('s_cmp_eq_u32', None, sWAVE, 1)); E(raw("s_cselect_b64 s[60:61], s[66:67], s[60:61]", 'salu', wr=[s(60, 2)], rd=[s(66, 2), s(60, 2)]))
        E(salu('s_cmp_eq_u32', None, sWAVE, 2)); E(raw("s_cselect_b64 s[60:61], s[42:43], s[60:61]", 'salu', wr=[s(60, 2)], rd=[s(42, 2), s(60, 2)]))
        E(salu('s_cmp_eq_u32', None, sWAVE, 3)); E(raw("s_cselect_b64 s[60:61], s[44:45], s[60:61]", 'salu', wr=[s(60, 2)], rd=[s(44, 2), s(60, 2)]))
        E(smov(s(3), 73728)); E(salu('s_cmp_ge_u32', None, sWAVE, 2)); E(csel(s(3), 131072, s(3)))
        E(valu('v_mul_u32_u24', v(2), s(3), v(0)))
        E(I(f"global_load_dword {vDUM}, v2, s[60:61]", 'vload', wr=vDUM.regs(), rd=vr(2) + sr(60, 2), tag='pf'))
    for j in range(nx0, CFG['xe']): E(xdma(j))
    if CFG.get('codepf', 3) == 1: code_pf()
    if CFG.get('codepf', 3) == 2:
        E(valu('v_mov_b32', v(46), v(3))); E(raw(f"s_mov_b64 s[100:101], {sPC}", 'salu', wr=[s(100, 2)], rd=[sPC]))
    srd(p, sK, 42, 8388608); srd(p, sV, 44, 8388608); srd(p, sWQ, 46, 4718592); srd(p, sWO, 48, 4718592)
    srd(p, sW1, 52, 5308416); srd(p, sW2, 54, 5308416); srd(p, sWS, 50, 0x10000000 if (CFG['stamps'] or CFG['fused']) else WSP_BYTES)
    srd(p, sOUT, 56, 2359296); srd(p, sDBG, 58, 256)
    E(mul(sW8704, sWAVE, 8 * PP)); E(mul(sWC, sWAVE, PP)); E(add(sWC, sWC, 32 * PP))
    E(shl(sW8192, sWAVE, 13)); E(shl(sWCH, sWAVE, 10)); E(add(sWCH, sWCH, 32768))
    E(mul(sW2176, sWAVE, 2 * PP)); E(mul(sW4352, sWAVE, 4 * PP)); E(add(sWA2, sW2176, 16 * PP))
    return p

def dispatch_text():
    return f""" s_cmp_ge_u32 {sROLE}, {NA + NM}
 s_cbranch_scc1 L_roleF
 s_cmp_ge_u32 {sROLE}, {NA}
 s_getpc_b64 s[94:95]
L_pc2:
 s_cbranch_scc1 L_jM
 s_add_u32 s94, s94, L_roleA-L_pc2
 s_addc_u32 s95, s95, 0
 s_setpc_b64 s[94:95]
L_jM:
 s_add_u32 s94, s94, L_roleM-L_pc2
 s_addc_u32 s95, s95, 0
 s_setpc_b64 s[94:95]
"""

def pfload(srd_, base):
    ld = bload('buffer_load_dword', vDUM, vPF, srd_, base); ld.tag = 'pf'; return ld
def pf_lin(srd_, base_s, start, nbytes, nl=64):
    def f():
        return [valu('v_lshrrev_b32', vPF2, 16, vTID), valu('v_and_b32', vPF, 63, vTID), valu('v_min_u32', vPF, nl - 1, vPF),
                valu('v_mad_u32_u24', vPF, vPF2, nl, vPF), valu('v_lshlrev_b32', vPF, 7, vPF), valu('v_add_u32', vPF, start, vPF),
                valu('v_min_u32', vPF, nbytes - 128, vPF), pfload(srd_, base_s)]
    return f
def pf_run(srd_, base_s, nbytes, nl):
    def f():
        return [valu('v_min_u32', vPF, nbytes - 128, vPFR), valu('v_add_u32', vPFR, 64 * nl * 128, vPFR), pfload(srd_, base_s)]
    f.nl = nl
    return f
def vPFW(kind): return {'F': v(8), 'A': v(7), 'M': v(36)}[kind]
def pf_row(kind, srd_, step=128):
    def f():
        ld = bload('buffer_load_dword', vDUM, vPFW(kind), srd_, sPW); ld.tag = 'pf'
        return [add(sPW, sPW, step), ld]
    return f
def pf_row_setup(kind, pitch, nl, base, lit):
    r = vPFW(kind)
    return [valu('v_bfe_u32', vPF2, vTID, 16, 5), valu('v_and_b32', r, 63, vTID), valu('v_min_u32', r, nl - 1, r),
            valu('v_mad_u32_u24', r, vPF2, nl, r), smov(sT2, pitch), valu('v_mul_u32_u24', r, sT2, r), add(sPW, base, lit)]
def pf_code(la, lb, nl):
    def f():
        L = f"L_cp{pf_code.k}"; pf_code.k += 1
        ld = I(f"global_load_dword {vDUM}, {vPF}, {sPC}", 'vload', wr=vDUM.regs(), rd=vPF.regs() + sPC.regs(), units=3, tag='pf')
        return [raw(f"s_getpc_b64 {sPC}", 'salu', wr=[sPC]), label(L),
                salu('s_add_u32', sPC[0], sPC[0], f"{la}-{L}"), salu('s_addc_u32', sPC[1], sPC[1], 0, scc_r=True),
                valu('v_bfe_u32', vPF2, vTID, 16, 5), valu('v_and_b32', vPF, 63, vTID), valu('v_min_u32', vPF, nl - 1, vPF),
                valu('v_mad_u32_u24', vPF, vPF2, nl, vPF), valu('v_lshlrev_b32', vPF, 7, vPF), valu('v_min_u32', vPF, f"{lb}-{la}-4", vPF), ld]
    return f
pf_code.k = 0
def pf_sched(R, k0, srd_, base_s, nbytes, nl):
    per = 64 * nl * 128; k = k0
    for st in range(0, nbytes, per):
        R.pf.setdefault(k, []).append(pf_lin(srd_, base_s, st, nbytes, nl)); k += 1
    return k

def role_prologue(R, vm_before):
    p = R.p; E = p.emit; kind = R.kind
    p.vm = list(vm_before)
    MS = CFG['shape'] == 'M'
    def PS(k):
        if CFG['stamps'] == 1: R.stamp(k)
    if CFG.get('delayrole') is not None:
        for r_ in CFG['delayrole']:
            E(salu('s_cmp_eq_u32', None, sROLE, r_[0])); E(raw(f"s_cbranch_scc0 L_{kind}_nd{r_[0]}"))
            E(smov(sLC, r_[1])); E(label(f"L_{kind}_dl{r_[0]}")); E(raw("s_sleep 127")); E(salu('s_sub_u32', sLC, sLC, 1)); E(salu('s_cmp_lg_u32', None, sLC, 0)); E(raw(f"s_cbranch_scc1 L_{kind}_dl{r_[0]}"))
            E(label(f"L_{kind}_nd{r_[0]}"))
    PS(56)
    lane = v(0)
    ILV = CFG.get('ilv') and not MS
    setup = []
    if ILV:
        E(valu('v_lshrrev_b32', v(48), 4, lane)); E(valu('v_and_b32', v(49), 15, lane)); E(valu('v_bfe_u32', v(50), lane, 1, 3)); E(valu('v_xor_b32', v(50), v(50), v(48)))
        E(valu('v_lshlrev_b32', v(49), 7, v(49))); E(valu('v_add_u32', v(49), s(6), v(49)))
        E(valu('v_lshl_add_u32', v(20), v(50), 4, v(49))); E(valu('v_xor_b32', v(21), 64, v(20)))
        def E(i):
            if isinstance(i, (list, tuple)):
                for x in i: E(x)
            else: setup.append(i)
    E(shl(sT2, sRB, 2)); E(add(sT2, sT2, sWAVE)); E(shl(sT2, sT2, 16)); E(valu('v_or_b32', vTID, sT2, lane))
    if kind in 'AM' and CFG.get('pair'):
        sHP_, sHS_ = s(86), s(85)
        if CFG.get('l844'): E(shl(sHP_, sROLE, 1)); E(add(sHP_, sHP_, 8))
        else: E(mul(sHP_, sROLE, 3))
        if kind == 'A':
            sHP_, sHS_ = sFA, sFC
            E(mul(sHS_, sROLE, 3)); E(salu('s_and_b32', s(4), sROLE, 1)); E(add(sHP_, sHS_, s(4)))
            E(shl(s(4), s(4), 1)); E(add(sHS_, sHS_, 2)); E(salu('s_sub_u32', sHS_, sHS_, s(4)))
            E(salu('s_sub_u32', sJQ, sHS_, sHP_)); E(shl(sJQ, sJQ, 8)); E(salu('s_sub_u32', sJQ, sJQ, 3 * 128))
        E(shl(sQ0, sHP_, 8))
        E(mul(sQA, sWAVE, 64 * 8192)); E(add(sQA, sQA, sQ0))
        E(shl(sQC, sWAVE, 16)); E(add(sQC, sQC, sQ0)); E(add(sQC, sQC, 256 * 8192))
        E(shr(s(3), sWAVE, 1)); E(shl(s(3), s(3), 13)); E(salu('s_and_b32', s(4), sWAVE, 1)); E(shl(s(4), s(4), 11)); E(add(s(3), s(3), s(4)))
        E(salu('s_sub_u32', s(3), s(3), 64)); E(shl(s(4), sWAVE, 11))
        for e, (h_, pfr) in enumerate([(sHP_, sPFa), (sHS_, sPFb)][:2 if kind == 'A' else 1]):
            E(shr(pfr, h_, 1)); E(shl(pfr, pfr, 19)); E(add(pfr, pfr, 1536 * 256))
            E(add(sKb[e], pfr, s(4))); E(add(sVb[e], pfr, s(3)))
        E(mul(sPFc, sROLE, 384 * 1152) if kind == 'A' else mul(sPFc, sHP_, 128 * 1152))
        if kind == 'A':
            E(mul(sHP_, sHP_, 128 * 1152)); E(mul(sHS_, sHS_, 128 * 1152))
            E(mul(sOA, sWAVE, 32 * 1152)); E(add(sOA1, sOA, sHS_)); E(add(sOA, sOA, sHP_))
            E(salu('s_sub_u32', sOA1, sOA1, 64 * 1152)); E(add(sT3, sOA, 192 * 1152)); E(salu('s_cmp_lt_u32', None, sWAVE, 2)); E(csel(sOA1, sT3, sOA1))
            E(shr(s(3), sWAVE, 1)); E(shl(s(3), s(3), 2)); E(salu('s_and_b32', s(4), sWAVE, 1)); E(add(s(3), s(3), s(4)))
            E(mul(sOB, s(3), 8 * 1152)); E(add(sOB1, sOB, sHS_)); E(add(sOB1, sOB1, 64 * 1152)); E(add(sOB, sOB, sHP_)); E(add(sOB, sOB, 128 * 1152))
        else:
            E(mul(sOA, sWAVE, 64 * 1152)); E(add(sOA, sOA, sPFc))
    elif kind in 'AM':
        E(mul(sT3, sROLE, 3 * 256))
        E(mul(sQA, sWAVE, 64 * 8192)); E(add(sQA, sQA, sT3))
        E(shl(sQC, sWAVE, 16)); E(add(sQC, sQC, sT3)); E(add(sQC, sQC, 256 * 8192))
        E(shr(s(3), sWAVE, 1)); E(shl(s(3), s(3), 13)); E(salu('s_and_b32', s(4), sWAVE, 1)); E(shl(s(4), s(4), 11)); E(add(s(3), s(3), s(4)))
        E(salu('s_sub_u32', s(3), s(3), 64)); E(shl(s(4), sWAVE, 11))
        if MS: E(shl(s(3), sWAVE, 12))
        for e in range(3 if kind == 'A' else 2):
            E(mul(sT3, sROLE, 3)); E(add(sT3, sT3, e)); E(shr(sT3, sT3, 1)); E(shl(sT3, sT3, 19)); E(add(sT3, sT3, 1536 * 256))
            if e == 0: E(smov(sPFa, sT3))
            if e == (2 if kind == 'A' else 1): E(smov(sPFb, sT3))
            E(add(sKb[e], sT3, s(4))); E(add(sVb[e], sT3, s(3)))
        E(mul(sPFc, sROLE, 384 * 1152))
        if kind == 'A':
            E(mul(sOA, sWAVE, 32 * 1152)); E(add(sOA, sOA, sPFc))
            E(shr(s(3), sWAVE, 1)); E(shl(s(3), s(3), 2)); E(salu('s_and_b32', s(4), sWAVE, 1)); E(add(s(3), s(3), s(4)))
            E(mul(sOB, s(3), 8 * 1152)); E(add(sOB, sOB, sPFc)); E(add(sOB, sOB, 128 * 1152))
        else:
            E(mul(sOA, sWAVE, 64 * 1152)); E(add(sOA, sOA, sPFc))
    if kind in 'FM':
        if kind == 'F':
            E(salu('s_sub_u32', s(3), sROLE, NA + NM)); E(mul(sPF1, s(3), 13 * 128)); E(shl(sPF1h, s(3), 6)); E(add(sPF1h, sPF1h, 69 * 128))
        elif CFG.get('l844'):
            E(mul(sPF1, sROLE, 5 * 128)); E(add(sPF1, sPF1, (52 - 40) * 128)); E(smov(sPF1h, sPF1))
        else:
            E(smov(sPF1, f_fullcol(5) * 2)); E(smov(sPF1h, f_halfcol(5) * 2))
        E(mul(sHA, sWAVE, 64 * 9216)); E(add(sHA, sHA, sPF1))
        E(mul(sHC, sWAVE, 8 * 9216)); E(add(sHC, sHC, sPF1)); E(add(sHC, sHC, 256 * 9216))
        E(mul(sHH, sWAVE, 128 * 9216)); E(add(sHH, sHH, sPF1h))
        E(mul(sHHC, sWAVE, 16 * 9216)); E(add(sHHC, sHHC, sPF1h)); E(add(sHHC, sHHC, 512 * 9216))
        E(mul(sPF2, sPF1, 576)); E(mul(sPF2h, sPF1h, 576))
        E(mul(sFA, sWAVE, 64 * 1152)); E(add(sFA, sFA, sPF2))
        if MS:
            E(salu('s_and_b32', s(3), sWAVE, 1)); E(shl(s(3), s(3), 1)); E(shr(s(4), sWAVE, 1)); E(add(s(3), s(3), s(4))); E(mul(sFC, s(3), 8 * 1152))
        else: E(mul(sFC, sWAVE, 4 * 1152))
        E(add(sFS, sFC, sPF2h)); E(add(sFC, sFC, sPF2)); E(add(sFC, sFC, 256 * 1152))
    if CFG['pf'] >= 3:
        if kind in 'AM': E(mul(sT3, sROLE, 3 * 256) if not CFG.get('pair') else smov(sT3, sQ0))
        E(pf_row_setup(kind, 8192 if kind in 'AM' else 9216, 18, sT3 if kind in 'AM' else sPF1, 0))
        f_ = pf_row(kind, sWQ if kind in 'AM' else sW1)
        early_pf = [f_()[1]] + f_() + f_()
        if CFG.get('ez'): E(early_pf[0])
        if CFG.get('epf', 1) == 3:
            R.pf.setdefault(0, [])[:0] = [f_, f_]
    E(add(sT3, sROLE, NS - NA if kind == 'F' else 0))
    E(mul(sSt, sT3, PSTR())); E(shl(sT3, sRB, 2)); E(add(sT3, sT3, sWAVE)); E(mul(sT3, sT3, PWAVE)); E(add(sSt, sSt, sT3))
    if kind == 'M': E(add(sSt2, sSt, (NS - NA) * PSTR()))
    if CFG['fused']:
        E(shl(sT2, sRB, 14)); E(add(sT2, sT2, CTRL))
        E(add(sT3, sROLE, NS - NA if kind == 'F' else 0)); E(shl(sT3, sT3, 2)); E(add(sT3, sT3, sT2))
        E(salu('s_cmp_eq_u32', None, sWAVE, 0)); E(csel(sT3, sT3, OOB)); E(csel(sT2, sT2, OOB))
        E(valu('v_and_b32', v(24), 15, lane)); E(valu('v_lshlrev_b32', v(25), 7, v(24))); E(valu('v_add_u32', v(25), 128, v(25)))
        E(raw("v_cmp_eq_u32 vcc, 0, v24", 'valu', wr=['vcc'], rd=[v(24)])); E(valu('v_cndmask_b32', v(25), v(25), 0, 'vcc') if False else raw("v_cndmask_b32 v25, v25, v24, vcc", 'valu', wr=[v(25)], rd=[v(25), v(24), 'vcc']))
        E(valu('v_lshrrev_b32', v(26), 4, lane)); E(valu('v_lshl_add_u32', v(25), v(26), 2 + (NS - NA).bit_length() - 1, v(25))); E(valu('v_add_u32', v(25), sT3, v(25)))
        E(raw(f"s_mov_b32 vcc_lo, {hex(((1 << (NA + 1 + CFG.get('mpriv', 0))) - 1) * (0x10001 if kind == 'M' else 1))}", 'salu', wr=['vcc'])); E(raw("s_mov_b32 vcc_hi, 0", 'salu', wr=['vcc'])); E(valu('v_mov_b32', vCT, OOB)); E(nop(1))
        E(raw(f"v_cndmask_b32 {vCT}, {vCT}, v25, vcc", 'valu', wr=[vCT], rd=[vCT, v(25), 'vcc']))
        E(valu('v_mov_b32', v(24), vCT))
        if CFG.get('abn'):
            E(valu('v_and_b32', v(26), 15, lane)); E(valu('v_lshlrev_b32', v(26), 8, v(26))); E(add(sT2, sT2, ABN)); E(valu('v_add_u32', v(26), sT2, v(26)))
            if kind == 'A' and CFG.get('bal') == 2:
                E(valu('v_mov_b32', v(27), sROLE))
                for lim, tab, base in ((15, BAL2, 10), (31, BAL3, 21), (47, [BALM[i] if BALM[i] < 36 else BAL3[i] for i in range(10)], 20)):
                    t_ = [x - base for x in tab]
                    E(smov(s(98), sum(t_[i] << (4 * i) for i in range(8)))); E(smov(s(99), t_[8] | (t_[9] << 4)))
                    E(shl(s(4), sROLE, 2)); E(salu('s_lshr_b64', s(98, 2), s(98, 2), s(4))); E(salu('s_and_b32', s(4), s(98), 15)); E(add(s(4), s(4), base))
                    E(valu('v_mov_b32', v(25), s(4)))
                    E(raw(f"v_cmp_lt_u32 vcc, {lim}, v0", 'valu', wr=['vcc'], rd=[lane])); E(raw("v_cndmask_b32 v27, v27, v25, vcc", 'valu', wr=[v(27)], rd=[v(27), v(25), 'vcc']))
            elif kind == 'F' and CFG.get('fi'):
                t_ = [min(x, 40) - 25 for x in CFG['fi']]
                E(smov(s(98), sum(t_[i] << (4 * i) for i in range(5)))); E(salu('s_sub_u32', s(4), sROLE, 11)); E(shl(s(4), s(4), 2))
                E(shr(s(4), s(98), s(4))); E(salu('s_and_b32', s(4), s(4), 15)); E(add(s(4), s(4), 25)); E(valu('v_mov_b32', v(27), s(4)))
            elif kind == 'M' and CFG.get('mi'):
                E(valu('v_mov_b32', v(27), CFG['mi'][0])); E(valu('v_mov_b32', v(25), CFG['mi'][1]))
                E(raw("v_cmp_lt_u32 vcc, 15, v0", 'valu', wr=['vcc'], rd=[lane])); E(raw("v_cndmask_b32 v27, v27, v25, vcc", 'valu', wr=[v(27)], rd=[v(27), v(25), 'vcc']))
            elif kind == 'F' and CFG.get('bal') == 2:
                E(valu('v_mov_b32', v(27), 40))
            elif kind == 'A':
                t_ = [x - 20 for x in ([28, 29, 23, 30, 31, 24, 32, 33, 34, 35] if CFG.get('m3') else [28, 29, 22, 30, 31, 21, 32, 33, 34, 35])]
                E(smov(s(98), sum(t_[i] << (4 * i) for i in range(8)))); E(smov(s(99), t_[8] | (t_[9] << 4)))
                E(shl(s(4), sROLE, 2)); E(salu('s_lshr_b64', s(98, 2), s(98, 2), s(4))); E(salu('s_and_b32', s(4), s(98), 15)); E(add(s(4), s(4), 20))
                E(valu('v_mov_b32', v(27), s(4))); E(add(s(4), sROLE, 10)); E(valu('v_mov_b32', v(25), s(4)))
                E(raw("v_cmp_gt_u32 vcc, 32, v0", 'valu', wr=['vcc'], rd=[lane])); E(raw("v_cndmask_b32 v27, v27, v25, vcc", 'valu', wr=[v(27)], rd=[v(27), v(25), 'vcc']))
                E(valu('v_mov_b32', v(25), sROLE))
                E(raw("v_cmp_gt_u32 vcc, 16, v0", 'valu', wr=['vcc'], rd=[lane])); E(raw("v_cndmask_b32 v27, v27, v25, vcc", 'valu', wr=[v(27)], rd=[v(27), v(25), 'vcc']))
            elif CFG.get('m3') and kind == 'M':
                E(valu('v_lshrrev_b32', v(27), 4, lane)); E(valu('v_min_u32', v(27), 2 if CFG['m3'] == 1 else 1, v(27))); E(valu('v_add_u32', v(27), CFG.get('mb', 20), v(27)))
            elif CFG.get('m3'):
                E(add(s(4), sROLE, 12)); E(salu('s_cmp_lt_u32', None, sROLE, 13)); E(csel(s(4), 40, s(4))); E(valu('v_mov_b32', v(27), s(4)))
            else:
                E(smov(s(4), 20) if kind == 'M' else add(s(4), sROLE, 12)); E(valu('v_mov_b32', v(27), s(4)))
            E(valu('v_lshl_add_u32', v(26), v(27), 2, v(26))); E(valu('v_mov_b32', v(25), 0))
            z = bstore('buffer_store_dword', v(25), v(26), sWS, 0, flags='sc1'); z.tag = 'zero'; E(z)
        else:
            assert not (CFG.get('l844') or CFG.get('four') or CFG.get('nof'))
            E(add(sT2, sT2, 4 * (NPART + 1)))
            def flag(lane_, item):
                E(raw(f"s_lshl2_add_u32 {sT3}, {item}, {sT2}", 'salu', wr=[sT3], rd=[item, sT2]))
                E(raw(f"v_writelane_b32 v24, {sT3}, {lane_}", 'valu', wr=[v(24)], rd=[sT3, v(24)]))
            def tflag(lane_, tab, base):
                t_ = [min(x - base, 15) for x in tab]
                E(smov(s(98), sum(t_[i] << (4 * i) for i in range(8)))); E(smov(s(99), t_[8] | (t_[9] << 4)))
                E(shl(s(4), sROLE, 2)); E(salu('s_lshr_b64', s(98, 2), s(98, 2), s(4))); E(salu('s_and_b32', s(4), s(98), 15)); E(add(s(4), s(4), base)); flag(lane_, s(4))
            if kind == 'A' and CFG.get('bal'):
                flag(32, sROLE); tflag(33, BAL2, 10); tflag(34, BAL3, 21)
                tflag(35, [x if x < 36 else i for i, x in enumerate(BALM)][:0] + [(BALM[i] if BALM[i] < 36 else BAL2[i]) for i in range(10)], 10)
            elif kind == 'A':
                flag(32, sROLE); E(add(s(4), sROLE, 10)); flag(33, s(4)); tflag(34, [28, 29, 22, 30, 31, 21, 32, 33, 34, 35], 20)
            elif kind == 'F' and CFG.get('bal'):
                E(add(s(4), sROLE, 12)); E(salu('s_cmp_lt_u32', None, sROLE, 13)); E(csel(s(4), 41, s(4))); flag(32, s(4))
            else:
                E(smov(s(4), 20) if kind == 'M' else add(s(4), sROLE, 12)); flag(32, s(4))
        E(valu('v_mov_b32', v(25), 0))
        z = bstore('buffer_store_dword', v(25), v(24), sWS, 0, flags='sc1'); z.tag = 'zero'; E(z)
        E(shl(sT2, sRB, 4)); E(salu('s_cmp_eq_u32', None, sWAVE, 0)); E(csel(sT2, sT2, 256))
        E(valu('v_mov_b32', v(23), 256)); E(raw(f"v_writelane_b32 v23, {sT2}, 0", 'valu', wr=[v(23)], rd=[sT2, v(23)]))
    T_ = [v(24), v(25), v(26), v(27), v(28), v(29)]
    q, r, c4, rb1 = T_[0], T_[1], T_[2], T_[3]
    E(valu('v_lshrrev_b32', q, 4, lane)); E(valu('v_bfe_u32', r, lane, 2, 2)); E(valu('v_and_b32', c4, 3, lane)); E(valu('v_bfe_u32', rb1, lane, 3, 1))
    E(valu('v_and_b32', T_[4], 7, lane)); E(valu('v_bfe_u32', T_[5], lane, 4, 1)); E(valu('v_lshlrev_b32', T_[5], 1, T_[5]))
    E(valu('v_xor_b32', T_[4], T_[4], T_[5])); E(valu('v_lshlrev_b32', vSWZ, 4, T_[4]))
    E(valu('v_lshrrev_b32', T_[4], 5, lane)); E(valu('v_and_b32', T_[5], 3, vROWN)); E(valu('v_lshl_add_u32', vROWP, T_[4], 4, T_[5]))
    E(smov(sT2, PP)); E(valu('v_mul_u32_u24', T_[4], sT2, q)); E(valu('v_lshl_add_u32', T_[4], r, 7, T_[4]))
    E(valu('v_lshl_add_u32', T_[4], c4, 3, T_[4])); E(valu('v_lshl_add_u32', vRW[0][0], rb1, 5, T_[4]))
    E(valu('v_mov_b32', vDP, vRW[0][0]))
    if MS:
        E(valu('v_and_b32', T_[4], 7, lane)); E(valu('v_bfe_u32', T_[5], lane, 4, 1)); E(valu('v_lshlrev_b32', T_[5], 2, T_[5]))
        E(valu('v_xor_b32', T_[4], T_[4], T_[5])); E(valu('v_lshlrev_b32', vSWZM, 4, T_[4]))
        E(valu('v_bfe_u32', q, lane, 4, 1)); E(valu('v_lshlrev_b32', q, 5, q))
        E(valu('v_and_b32', T_[4], 1, lane)); E(valu('v_lshl_add_u32', q, T_[4], 4, q))
        E(valu('v_bfe_u32', T_[4], lane, 1, 1)); E(valu('v_lshl_add_u32', q, T_[4], 3, q))
        E(valu('v_lshrrev_b32', T_[5], 5, lane))
        E(smov(sT2, PP)); E(valu('v_mad_u32_u24', T_[4], T_[5], sT2, q)); E(valu('v_lshl_add_u32', T_[4], r, 7, T_[4]))
        E(valu('v_lshl_add_u32', vRW[0][0], rb1, 6, T_[4])); E(valu('v_xor_b32', rb1, 1, rb1)); E(valu('v_lshl_add_u32', vRW[0][1], rb1, 6, T_[4]))
        if kind in 'FM':
            E(valu('v_lshl_add_u32', vRH[0], T_[5], 9, q)); E(valu('v_lshl_add_u32', vRH[0], r, 6, vRH[0]))
            E(valu('v_lshlrev_b32', T_[4], 4, c4)); E(valu('v_lshrrev_b32', T_[5], 2, lane)); E(smov(sT2, 9216))
            E(valu('v_mad_u32_u24', vOFFH, T_[5], sT2, T_[4]))
        E(valu('v_lshrrev_b32', q, 4, lane))
    else:
        E(valu('v_xor_b32', vRW[0][1], 32, vRW[0][0]))
    for b in (1, 2):
        for T in range(2): E(valu('v_add_u32', vRW[b][T], 65536 * b, vRW[0][T]))
    if kind in 'FM' and not MS:
        E(valu('v_lshlrev_b32', T_[4], 9, q)); E(valu('v_lshl_add_u32', T_[4], r, 6, T_[4])); E(valu('v_lshl_add_u32', T_[4], c4, 3, T_[4]))
        E(valu('v_and_b32', T_[5], 1, q)); E(valu('v_lshl_add_u32', vRH[0], T_[5], 5, T_[4])); E(valu('v_xor_b32', vRH[1], 32, vRH[0]))
        E(valu('v_lshrrev_b32', T_[4], 5, lane)); E(valu('v_lshlrev_b32', T_[4], 1, T_[4])); E(valu('v_xor_b32', T_[4], T_[4], c4))
        E(valu('v_lshlrev_b32', T_[4], 4, T_[4])); E(valu('v_lshrrev_b32', T_[5], 2, lane)); E(smov(sT2, 9216))
        E(valu('v_mad_u32_u24', vOFFH, T_[5], sT2, T_[4]))
    if kind in 'AM':
        E(valu('v_and_b32', T_[4], 15, lane)); E(valu('v_xor_b32', T_[4], T_[4], q)); E(valu('v_lshlrev_b32', T_[4], 4, T_[4]))
        E(valu('v_lshl_add_u32', vOFFK, q, 8, T_[4]))
    E(set_offw(8192 if kind in 'AM' else 9216, 'M' if MS else 'S'))
    if MS:
        XA = [v(20), v(21), v(22), v(39)]
        E(valu('v_and_b32', T_[4], 31, lane)); E(valu('v_bfe_u32', T_[5], lane, 1, 3)); E(valu('v_lshrrev_b32', q, 5, lane)); E(valu('v_xor_b32', T_[5], T_[5], q))
        E(valu('v_lshlrev_b32', T_[4], 7, T_[4])); E(valu('v_add_u32', T_[4], s(6), T_[4]))
        E(valu('v_lshl_add_u32', XA[0], T_[5], 4, T_[4]))
        for tt in range(1, 4): E(valu('v_xor_b32', XA[tt], 32 * tt, XA[0]))
    else:
        E(valu('v_and_b32', T_[4], 15, lane)); E(valu('v_bfe_u32', T_[5], lane, 1, 3)); E(valu('v_xor_b32', T_[5], T_[5], q))
        E(valu('v_lshlrev_b32', T_[4], 7, T_[4])); E(valu('v_add_u32', T_[4], s(6), T_[4]))
        E(valu('v_lshl_add_u32', v(20), T_[5], 4, T_[4])); E(valu('v_xor_b32', v(21), 64, v(20)))
        if kind in 'AM':
            E(smov(sT2, PP)); E(valu('v_mul_u32_u24', v(22), sT2, r)); E(valu('v_lshl_add_u32', v(22), c4, 8, v(22)))
            E(valu('v_xor_b32', T_[4], q, c4)); E(valu('v_lshl_add_u32', v(22), T_[4], 4, v(22)))
    E(valu('v_lshlrev_b32', vLANE16, 4, lane))
    if CFG['stamps'] == 2: E(valu('v_mov_b32', vSTAMP, 0))
    if CFG['fused'] and CFG.get('rep') and kind in 'FM':
        E(rep_addr(kind, v(24), v(25))); E(valu('v_mov_b32', v(25), 0))
        z = bstore('buffer_store_dword', v(25), v(24), sWS, 0, flags='sc1'); z.tag = 'zero'; E(z)
    E = p.emit
    sONE = s(97) if ILV else sT2
    SA = 56 if ILV else 28
    for i in range(8): E(valu('v_mov_b32', v(SA + i), 0))
    E(smov(sONE, 0x3f803f80))
    def stats(j):
        for tt in range(2):
            for g in range(2):
                for qd in range(4):
                    x = X(2 * j + tt, g)[qd]
                    E(valu('v_dot2c_f32_bf16', v(SA + 2 * g + (qd & 1)), sONE, x, rmw=True))
                    E(valu('v_dot2c_f32_bf16', v(SA + 4 + 2 * g + (qd & 1)), x, x, rmw=True))
    PS(57)
    for j in range(9):
        E(waitvm(p.vm_wait_for(lambda t: t == ('x', j))))
        if j == 0: PS(58)
        if MS:
            for tt in range(4): E(ds_b128(XM(4 * j + tt), XA[tt], j * 4096))
        else:
            for tt in range(2):
                for g in range(2): E(ds_b128(X(2 * j + tt, g), v(20 + tt), j * 4096 + g * 2048))
        if j + CFG['xe'] < 9: E(xdma(j + CFG['xe']))
        if CFG['pf'] >= 3 and CFG.get('epf', 1) == 1 and j == max(8 - CFG['xe'], 0): E(early_pf)
        if ILV:
            nper = -(-len(setup) // max(CFG['ilv'] - j, 1))
            while nper < len(setup) and (SCC in setup[nper].rd or setup[nper].txt.startswith('s_cselect') or VCC in setup[nper].rd): nper += 1
            E(setup[:nper]); del setup[:nper]
        if j >= 1:
            E(waitlg(4)); stats(j - 1)
    E(waitlg(0)); PS(59); E(barrier())
    if CFG.get('codepf', 3) == 2: E(I(f"global_load_dword {vDUM}, v46, s[100:101]", 'vload', wr=vDUM.regs(), rd=vr(46) + sr(100, 2), tag='pf'))
    if CFG['pf'] >= 3 and CFG.get('epf', 1) == 2: E(early_pf)
    pend = []
    for k in range(2 if CFG.get('pro2') else 3):
        st = R.stages[k]
        if st.pre_dma: pend.append(st.pre_dma())
        pend += st.dma(k, False)
    if CFG.get('epf', 1) == 4: pend[CFG.get('epos', 9):CFG.get('epos', 9)] = [early_pf[1:3], early_pf[3:5]]
    d0 = CFG.get('d0', 9)
    for it in pend[:d0]: E(it)
    pend = pend[d0:]
    PS(60)
    stats(8)
    acc4 = [v(SA), v(SA + 2), v(SA + 4), v(SA + 6)]
    for x in acc4: E(valu('v_add_f32', x, x, v(x.n + 1)))
    if MS:
        for b_ in (0, 2):
            E(valu('v_add_f32', acc4[b_], acc4[b_], acc4[b_ + 1]))
        for b_ in (0, 2): E(valu('v_mov_b32', acc4[b_ + 1], acc4[b_]))
    for op in (('v_permlane32_swap_b32',) if MS else ('v_permlane16_swap_b32', 'v_permlane32_swap_b32')):
        for x in acc4: E(valu('v_mov_b32', v(x.n + 1), x))
        for x in acc4: E(valu(op, x, v(x.n + 1), rmw=True, extra_wr=[v(x.n + 1)]))
        for x in acc4: E(valu('v_add_f32', x, x, v(x.n + 1)))
    for x in acc4: E(valu('v_mul_f32', x, f2u(1.0 / 576), x))
    for g in range(2): E(valu('v_fma_f32', acc4[2 + g], '-' + str(acc4[g]), acc4[g], acc4[2 + g]))
    for g in range(2): E(valu('v_max_f32', acc4[2 + g], 0, acc4[2 + g]))
    for g in range(2): E(valu('v_add_f32', acc4[2 + g], f2u(1e-5), acc4[2 + g]))
    for g in range(2): E(valu('v_rsq_f32', acc4[2 + g], acc4[2 + g]))
    for g in range(2): E(valu('v_mul_f32', acc4[2 + g], f2u(-LOG2E), acc4[2 + g]))
    for g in range(2): E(valu('v_mov_b32', v(20 + g), acc4[g]))
    for g in range(2): E(valu('v_mul_f32', acc4[g], '-' + str(acc4[g]), acc4[2 + g], extra_rd=[acc4[g]]))
    E(smov(sT2, 0xffff0000))
    if CFG.get('dotn'):
        cl = [v(SA + 1), v(SA + 3)]; ch = [v(SA + 5), v(SA + 7)]
        for g in range(2): E(valu('v_cvt_pk_bf16_f32', cl[g], acc4[2 + g], 0))
        for g in range(2): E(valu('v_lshlrev_b32', ch[g], 16, cl[g]))
        for g in range(2): E(valu('v_mul_f32', acc4[g], '-' + str(v(20 + g)), ch[g], extra_rd=[v(20 + g)]))
    PS(61)
    n = 0
    for t in range(18):
        for g in range(2):
            tps = [v(24, 2), v(26, 2), v(16, 2), v(18, 2)]
            x = X(t, g)
            if CFG.get('dotn'):
                for qd in range(4):
                    E(valu('v_dot2_f32_bf16', tps[qd][0], x[qd], cl[g], acc4[g])); E(valu('v_dot2_f32_bf16', tps[qd][1], x[qd], ch[g], acc4[g]))
            else:
                for qd in range(4):
                    E(valu('v_lshlrev_b32', tps[qd][0], 16, x[qd])); E(valu('v_and_b32', tps[qd][1], sT2, x[qd]))
                for qd in range(4): E(valu('v_pk_fma_f32', tps[qd], tps[qd], v(acc4[2 + g].n, 2), v(acc4[g].n, 2), mods='op_sel_hi:[1,0,0]'))
            for qd in range(4): E(valu('v_cvt_pk_bf16_f32', x[qd], tps[qd][0], tps[qd][1]))
            if pend and n % CFG.get('dn', 2) == 0: E(pend.pop(0))
            n += 1
    for it in pend: E(it)
    if CFG['fused']:
        E(valu('v_mov_b32', v(24), 1)); E(waitvm(p.vm_wait_for(lambda t: t == 'zero')))
        E(I(f"buffer_atomic_add v24, v23, {sDBG}, 0 offen sc1", 'vstore', rd=vr(23, 2) + sDBG.regs(), units=3, tag='init'))
    for _ in range(CFG.get('idle', 0)): E(raw("s_sleep 16"))
    PS(62)
    if kind in 'AM' and MS:
        ln, m_, key, t_ = v(16), v(17), v(18), v(19)
        E([valu('v_lshrrev_b32', ln, 4, vLANE16), valu('v_and_b32', key, 19, ln),
           valu('v_bfe_u32', t_, ln, 2, 1), valu('v_lshl_add_u32', key, t_, 3, key),
           valu('v_bfe_u32', t_, ln, 3, 1), valu('v_lshl_add_u32', key, t_, 2, key),
           valu('v_lshrrev_b32', m_, 2, key), smov(sT2, PP), valu('v_mul_u32_u24', m_, sT2, m_),
           valu('v_and_b32', key, 3, key), valu('v_lshl_add_u32', m_, key, 8, m_),
           valu('v_lshrrev_b32', t_, 5, ln), valu('v_xor_b32', t_, t_, key),
           valu('v_lshl_add_u32', vRKM[0], t_, 4, m_), valu('v_xor_b32', vRKM[1], 32, vRKM[0])])
    elif kind in 'AM':
        E(valu('v_mov_b32', vRK[0], v(22))); E(valu('v_add_u32', vRK[1], 65536, v(22))); E(valu('v_add_u32', vRK[2], 131072, v(22)))
    if CFG['stamps']: E(raw(f"v_writelane_b32 {vSTAMP}, s96, 55", 'valu', wr=[vSTAMP], rd=[s(96)])) if kind != 'A' else None
    if CFG['stamps']: E(smov(s(43), s(96)))
    nlr = {'F': 10, 'A': 11, 'M': 8}[kind]
    if kind != 'M': E([valu('v_lshrrev_b32', vPF2, 16, vTID), valu('v_and_b32', vPFR, 63, vTID), valu('v_min_u32', vPFR, nlr - 1, vPFR),
       valu('v_mad_u32_u24', vPFR, vPF2, nlr, vPFR), valu('v_lshlrev_b32', vPFR, 7, vPFR)])
    if CFG['stamps']: E(smov(s(97), 0))
    E(smov(sLN0, f2u(-1.0 / math.sqrt(128.0))))

def slow_check(R, heads, base2):
    def f():
        p = R.p; E = p.emit
        t = v(254); lo = v(255)
        E(valu('v_mov_b32', lo, f2u(2.0 ** -40))); E(smov(sT3, f2u(2.0 ** 40)))
        for (hd, Q, O) in heads:
            L = f"L_{R.kind}_slow{hd}"
            if CFG['shape'] == 'M':
                E(valu('v_med3_f32', t, Lsave[hd], sT3, lo))
                E(raw(f"v_cmp_neq_f32 vcc, {t}, {Lsave[hd]}", 'valu', wr=['vcc'], rd=[t, Lsave[hd]])); E(nop(4))
            else:
                E(valu('v_med3_f32', t, Lsave[2 * hd], sT3, lo))
                E(raw(f"v_cmp_neq_f32 s[98:99], {t}, {Lsave[2 * hd]}", 'valu', wr=[s(98, 2)], rd=[t, Lsave[2 * hd]]))
                E(valu('v_med3_f32', t, Lsave[2 * hd + 1], sT3, lo))
                E(raw(f"v_cmp_neq_f32 vcc, {t}, {Lsave[2 * hd + 1]}", 'valu', wr=['vcc'], rd=[t, Lsave[2 * hd + 1]])); E(nop(4))
                E(raw("s_or_b64 vcc, vcc, s[98:99]", 'salu', wr=['vcc'], rd=['vcc', s(98, 2)])); E(nop(1))
            if CFG.get('force_slow'): E(raw(f"s_mov_b64 vcc, -1", 'salu', wr=['vcc']))
            E(raw(f"s_cbranch_vccz {L}_ret"))
            E(raw(f"s_call_b64 {sRET}, {L}"))
            E(label(f"{L}_ret"))
            R.slow.append((slow_path if CFG['shape'] == 'M' else slow_pathS)(L, hd, Q, O, base2))
        E(nop(1))
    return f

def slow_path(L, hd, Q, Odst, b2):
    p = Prog(); E = p.emit
    O = v(48, 64); S = v(b2, 16); P = v(b2 + 16, 8); F = v(b2 + 24, 16)
    vK, vV, vM, vL, t0, t1 = [v(b2 + 40 + i) for i in range(6)]
    sB, sJ, sO = s(98), s(99), s(97)
    E(I(".p2align 2", 'label')); E(label(L))
    E(nop(7)); E(nop(7))
    E([valu('v_lshrrev_b32', t0, 4, vLANE16), valu('v_and_b32', vK, 19, t0), valu('v_bfe_u32', t1, t0, 2, 1), valu('v_lshl_add_u32', vK, t1, 3, vK),
       valu('v_bfe_u32', t1, t0, 3, 1), valu('v_lshl_add_u32', vK, t1, 2, vK), valu('v_lshrrev_b32', t1, 5, t0),
       valu('v_lshlrev_b32', vV, 1, vK), valu('v_lshl_add_u32', vV, t1, 11, vV),
       valu('v_lshlrev_b32', vK, 8, vK), valu('v_lshl_add_u32', vK, t1, 4, vK)])
    E([mul(sB, sROLE, 3), add(sB, sB, hd), shr(sB, sB, 1), shl(sB, sB, 19), add(sB, sB, 1536 * 256)])
    def qk():
        for half in range(2):
            for t in range(4): E(bload('buffer_load_dwordx4', F.sub(4 * t, 4), vK, sK, sO, (4 * half + t) * 32))
            E(waitvm(0))
            for t in range(4):
                tt = 4 * half + t
                E(mfma(S, F.sub(4 * t, 4), Q.sub(4 * tt, 4), 0 if tt == 0 else S))
            E(nop(7)); E(nop(7))
    E(valu('v_mov_b32', vM, 0xff800000)); E(smov(sJ, 0))
    E(label(L + "_a"))
    E(add(sO, sB, sJ)); qk()
    for i in range(0, 16, 2): E(valu('v_max3_f32', vM, vM, S[i], S[i + 1]))
    E(add(sJ, sJ, 8192)); E(salu('s_cmp_lt_u32', None, sJ, 16 * 8192)); E(raw(f"s_cbranch_scc1 {L}_a"))
    E(valu('v_mov_b32', t0, vM)); E(valu('v_permlane32_swap_b32', vM, t0, rmw=True, extra_wr=[t0])); E(valu('v_max_f32', vM, vM, t0))
    for i in range(64): E(valu('v_mov_b32', O[i], 0))
    E(valu('v_mov_b32', vL, 0)); E(smov(sJ, 0))
    E(label(L + "_b"))
    E(add(sO, sB, sJ)); qk()
    for i in range(16): E(valu('v_sub_f32', S[i], S[i], vM))
    for i in range(16): E(valu('v_exp_f32', S[i], S[i]))
    for i in range(16): E(valu('v_add_f32', vL, vL, S[i]))
    for q in range(8): E(valu('v_cvt_pk_bf16_f32', P[q], S[2 * q], S[2 * q + 1]))
    for u in range(2):
        for tp in range(2):
            for tq in range(2):
                for j in range(8):
                    E(bload('buffer_load_ushort', F[8 * (j & 1) + 4 * tq + j // 2], vV, sV, sO, j * 256 + (2 * tp + tq) * 64))
            E(waitvm(0))
            for i in range(8): E(valu('v_lshl_or_b32', F[i], F[8 + i], 16, F[i]))
            for tq in range(2):
                D_ = O.sub(16 * (2 * tp + tq), 16)
                E(mfma(D_, F.sub(4 * tq, 4), P.sub(4 * u, 4), D_))
            E(nop(7))
        if u == 0: E(add(sO, sO, 4096))
    E(add(sJ, sJ, 8192)); E(salu('s_cmp_lt_u32', None, sJ, 16 * 8192)); E(raw(f"s_cbranch_scc1 {L}_b"))
    E(nop(7)); E(nop(7))
    E(valu('v_mov_b32', t0, vL)); E(valu('v_permlane32_swap_b32', vL, t0, rmw=True, extra_wr=[t0])); E(valu('v_add_f32', vL, vL, t0))
    E(valu('v_rcp_f32', t0, vL))
    for tau in range(4):
        A_ = O.sub(16 * tau, 16)
        for e in range(16): E(valu('v_mul_f32', A_[e], A_[e], t0))
        for q in range(8): E(valu('v_cvt_pk_bf16_f32', A_[2 * q], A_[2 * q], A_[2 * q + 1]))
        for q in range(4): E(valu('v_permlane16_swap_b32', A_[2 * q], A_[2 * q + 8], rmw=True, extra_wr=[A_[2 * q + 8]]))
        for q in range(8): E(valu('v_accvgpr_write_b32', Odst[8 * tau + q], A_[2 * q]))
    E(nop(1)); E(raw(f"s_setpc_b64 {sRET}"))
    return p

def slow_pathS(L, hd, Q, Odst, b2):
    p = Prog(); E = p.emit
    ob = 48; kv = None
    if isinstance(b2, tuple): b2, ob = b2
    if isinstance(Odst, tuple):
        OFf, kv = Odst
        class _D:
            def __getitem__(s_, i): return OFf(i // 8)[i % 8]
        Odst = _D()
    O = v(ob, 64); S = v(b2, 16); P = v(b2 + 16, 8); F = v(b2 + 24, 16)
    vK, vV, t0, t1 = [v(b2 + 40 + i) for i in range(4)]
    vM = [v(b2 + 44), v(b2 + 45)]; vL = [v(b2 + 46), v(b2 + 47)]
    sB, sJ, sO = s(98), s(99), s(97)
    E(I(".p2align 2", 'label')); E(label(L))
    E(nop(7)); E(nop(7))
    E([valu('v_lshrrev_b32', t0, 4, vLANE16), valu('v_and_b32', t1, 15, t0), valu('v_lshrrev_b32', t0, 4, t0),
       valu('v_lshlrev_b32', vK, 8, t1), valu('v_lshl_add_u32', vK, t0, 4, vK),
       valu('v_lshlrev_b32', vV, 1, t1), valu('v_lshl_add_u32', vV, t0, 10, vV)])
    if kv is not None: E(smov(sB, kv))
    else: E([mul(sB, sROLE, 3), add(sB, sB, hd), shr(sB, sB, 1), shl(sB, sB, 19), add(sB, sB, 1536 * 256)])
    def qk():
        for T in range(2):
            E(add(sO, sB, sJ)) if T == 0 else E(add(sO, sO, 4096))
            for t in range(4): E(bload('buffer_load_dwordx4', F.sub(4 * t, 4), vK, sK, sO, t * 64))
            E(waitvm(0))
            for t in range(4):
                for g_ in range(2):
                    D_ = S.sub(8 * T + 4 * g_, 4)
                    E(mfma(D_, F.sub(4 * t, 4), Q.sub(8 * t + 4 * g_, 4), 0 if t == 0 else D_))
            E(nop(7)); E(nop(3))
    def allq(x, op):
        for sw in ('v_permlane16_swap_b32', 'v_permlane32_swap_b32'):
            E(valu('v_mov_b32', t0, x)); E(valu(sw, x, t0, rmw=True, extra_wr=[t0])); E(valu(op, x, x, t0))
    for g_ in range(2): E(valu('v_mov_b32', vM[g_], 0xff800000))
    E(smov(sJ, 0))
    E(label(L + "_a"))
    qk()
    for T in range(2):
        for g_ in range(2):
            for i in (0, 2): E(valu('v_max3_f32', vM[g_], vM[g_], S[8 * T + 4 * g_ + i], S[8 * T + 4 * g_ + i + 1]))
    E(add(sJ, sJ, 8192)); E(salu('s_cmp_lt_u32', None, sJ, 16 * 8192)); E(raw(f"s_cbranch_scc1 {L}_a"))
    for g_ in range(2): allq(vM[g_], 'v_max_f32')
    for i in range(64): E(valu('v_mov_b32', O[i], 0))
    for g_ in range(2): E(valu('v_mov_b32', vL[g_], 0))
    E(smov(sJ, 0))
    E(label(L + "_b"))
    qk()
    for i in range(16): E(valu('v_sub_f32', S[i], S[i], vM[(i >> 2) & 1]))
    for i in range(16): E(valu('v_exp_f32', S[i], S[i]))
    for i in range(16): E(valu('v_add_f32', vL[(i >> 2) & 1], vL[(i >> 2) & 1], S[i]))
    for g_ in range(2):
        for T in range(2):
            for k in range(2): E(valu('v_cvt_pk_bf16_f32', P[4 * g_ + 2 * T + k], S[8 * T + 4 * g_ + 2 * k], S[8 * T + 4 * g_ + 2 * k + 1]))
    for tp in range(4):
        for jh in range(2):
            E(add(sO, sB, sJ)) if jh == 0 else E(add(sO, sO, 4096))
            for tq in range(2):
                for jl in range(4):
                    j = 4 * jh + jl
                    E(bload('buffer_load_ushort', F[8 * (j & 1) + 4 * tq + j // 2], vV, sV, sO, jl * 256 + (2 * tp + tq) * 32))
        E(waitvm(0))
        for i in range(8): E(valu('v_lshl_or_b32', F[i], F[8 + i], 16, F[i]))
        for tq in range(2):
            for g_ in range(2):
                D_ = O.sub(8 * (2 * tp + tq) + 4 * g_, 4)
                E(mfma(D_, F.sub(4 * tq, 4), P.sub(4 * g_, 4), D_))
        E(nop(7))
    E(add(sJ, sJ, 8192)); E(salu('s_cmp_lt_u32', None, sJ, 16 * 8192)); E(raw(f"s_cbranch_scc1 {L}_b"))
    E(nop(7)); E(nop(3))
    for g_ in range(2): allq(vL[g_], 'v_add_f32')
    for g_ in range(2): E(valu('v_rcp_f32', vL[g_], vL[g_]))
    for i in range(64): E(valu('v_mul_f32', O[i], O[i], vL[(i >> 2) & 1]))
    for kk in range(4):
        for g_ in range(2):
            for T in range(2):
                for c in range(2):
                    r = 8 * (2 * kk + T) + 4 * g_ + 2 * c
                    E(valu('v_cvt_pk_bf16_f32', O[r], O[r], O[r + 1])); E(valu('v_accvgpr_write_b32', Odst[8 * kk + 4 * g_ + 2 * T + c], O[r]))
    E(nop(1)); E(raw(f"s_setpc_b64 {sRET}"))
    return p

NREP = 6
ABN = 4096
BAL2 = [10, 11, 22, 13, 14, 21, 12, 17, 15, 19]; BALM = [63, 63, 63, 63, 63, 63, 16, 63, 18, 63]; BAL3 = [28, 29, 23, 30, 31, 24, 32, 33, 34, 35]
sMD2 = s(84)
def BMB(): return 20 if CFG.get('bal') == 2 else 16
def rep_addr(kind, dst, t):
    return [shl(sT2, sRB, 14), add(sT2, sT2, CTRL + 2048), add(sT3, sROLE, NS - NA), shl(sT3, sT3, 2), add(sT2, sT2, sT3),
            salu('s_cmp_eq_u32', None, sWAVE, 0), csel(sT2, sT2, OOB),
            valu('v_lshlrev_b32', dst, 3, vLANE16), valu('v_add_u32', dst, sT2, dst), valu('v_mov_b32', t, OOB),
            raw(f"v_cmp_gt_u32 vcc, {hex(NA * NREP * 16)}, {vLANE16}", 'valu', wr=['vcc'], rd=[vLANE16]), valu('v_cndmask_b32', dst, t, dst, 'vcc')]
vCR = v(31)
def add_signals(R):
    P2 = [k for k, st in enumerate(R.stages) if st.name.startswith('P2')]
    def sig(first):
        def f():
            out = [valu('v_add_u32', vPRG, 1, vPRG)]
            return out + [bstore('buffer_store_dword', vPRG, vCT, sWS, 0, flags='sc1')]
        return f
    def sig7():
        return [valu('v_add_u32', vPRG, 1, vPRG), bstore('buffer_store_dword', vPRG, vCR, sWS, 0, flags='sc1'), bstore('buffer_store_dword', vPRG, vCT, sWS, 0, flags='sc1')]
    def chain(stages, base):
        firsts = [k for k in stages if R.stages[k].sub == 0]
        for c in range(8):
            k = firsts[c + 1] + CFG.get('siglag', {}).get(R.kind, 2)
            if k > stages[-1]: break
            R.stages[k].cover_st = base + c; R.stages[k].post_bar = sig(c == 0)
            if c == 7 and CFG.get('rep') and R.kind in 'FM': R.stages[k].post_bar = sig7
        if CFG.get('rep') and R.kind in 'FM': R.pf.setdefault(firsts[1], []).append(lambda: rep_addr(R.kind, vCR, vPF))
    chain(P2, 0)
    R.stages[P2[0]].post_bar = lambda: [valu('v_mov_b32', vPRG, 0)]

LDSC = 4 * SLOT
sAB = s(72, 2); sRM = s(74, 2); sCD = s(98, 2)
sRS, sRF, sSP, sC, sI, sPB, sPART, sOK, sPAR, sXW, sPWv, sTO = s(78), s(79), s(71), s(80), s(81), s(82), s(47), s(40), s(41), s(59), s(3), s(58)
sIT = [s(42), s(44), s(45)]; sXP = [s(46), s(60), s(61)]
sRET2 = s(66, 2)
vP, vD, vA, vO, vXO, vL4, vDO, vLA, vIT, vLD, vSC = [v(16 + i) for i in range(11)]
vX4 = v(28)
def s64(op, d, *src, scc_r=False): return salu(op, d, *src, scc_r=scc_r)
sPV = s(76)
def red_setup(kind):
    o = [shl(sPB, sRB, 14), add(sPB, sPB, CTRL), salu('s_cmp_eq_u32', None, sWAVE, 0), csel(sT3, 0, OOB),
         valu('v_lshrrev_b32', vL4, 2, vLANE16), valu('v_add_u32', vL4, sT3, vL4),
         valu('v_mov_b32', vSC, OOB), add(sT2, sT3, 4 * NPART), raw(f"v_writelane_b32 {vSC}, {sT2}, 0", 'valu', wr=[vSC], rd=[sT2, vSC]),
         valu('v_mov_b32', vS1, vSC), valu('v_min_u32', vL5, NPART * 16, vLANE16), valu('v_lshrrev_b32', vL5, 2, vL5), valu('v_add_u32', vL5, sT3, vL5),
         add(sT2, sT3, 252), raw(f"v_writelane_b32 {vSC}, {sT2}, 1", 'valu', wr=[vSC], rd=[sT2, vSC]),
         shl(sT2, sRB, 4), add(sT2, sT2, sT3), valu('v_mov_b32', vDO, 256), raw(f"v_writelane_b32 {vDO}, {sT2}, 0", 'valu', wr=[vDO], rd=[sT2, vDO])]
    if kind == 'A' or (kind == 'M' and CFG.get('mpriv')) or CFG.get('mpriv') == 5: o += [shl(sPV, sROLE, 7), add(sPV, sPV, 256), add(sPV, sPV, sPB)]
    if CFG.get('abn'): o += [shl(sAV_, sROLE, 8), add(sAV_, sAV_, ABN), add(sAV_, sAV_, sPB)]
    return o
vS1, vL5 = v(29), v(30)
sAV_ = s(76 + 1); vP2 = v(31)
def ab_load(): return bload('buffer_load_dword', vP2, vL4, sWS, sAV_, flags='sc1')
def ab_eval():
    return [raw(f"v_cmp_ne_u32 vcc, 0, {vP2}", 'valu', wr=['vcc'], rd=[vP2]), nop(1), raw(f"s_mov_b32 {sAB[0]}, vcc_lo", 'salu', wr=[sAB[0]], rd=['vcc']), raw(f"s_and_b32 {sAB[1]}, vcc_hi, 15", 'salu', wr=[sAB[1]], rd=['vcc'])]
PRIV = [False]
def red_poll(shared=False):
    cnt = [valu('v_mov_b32', vD, 0), I(f"buffer_atomic_add {vD}, {vDO}, {sDBG}, 0 offen sc0 sc1", 'vload', wr=vD.regs(), rd=vD.regs() + vDO.regs() + sDBG.regs(), units=3)]
    if PRIV[0] and not shared:
        return [cnt, [bstore('buffer_store_dword', vS1, vS1, sWS, sPV, flags='sc1'), bload('buffer_load_dword', vP, vL5, sWS, sPV, flags='sc1')]]
    return [cnt, [bstore('buffer_store_dword', vSC, vSC, sWS, sPB, flags='sc1'), bload('buffer_load_dword', vP, vL4, sWS, sPB, flags='sc1')]]
vG = [v(28), v(29), v(30)]; vGA = v(31); vGP = v(27)
def l2pf_setup():
    return [valu('v_lshrrev_b32', vGP, 7, vLANE16), smov(sT2, PSTR()), valu('v_mul_lo_u32', vGA, vGP, sT2),
            valu('v_bfe_u32', vA, vLANE16, 4, 3), valu('v_lshl_add_u32', vGA, vA, 7, vGA), shl(sT2, sWAVE, 10), valu('v_add_u32', vGA, sT2, vGA),
            valu('v_lshlrev_b32', vGP, 2, vGP), valu('v_mov_b32', vA, OOB), smov(sT2, 68), raw(f"v_writelane_b32 {vA}, {sT2}, 0", 'valu', wr=[vA], rd=[vA, sT2])]
def l2pf_poll():
    st = bstore('buffer_store_dword', vA, vA, sWS, sPB, flags='sc1')
    out = [[st]]
    for i in range(3):
        ld = bload('buffer_load_dword', vG[i], vGP, sWS, sPB, 32 * i, flags='sc1'); ld.tag = 'gp'
        out.append([ld])
    return out
def l2pf_issue(R, dlt):
    out = [[add(sI, sROLE, dlt), salu('s_and_b32', sT2, sI, 3), shr(sC, sI, 2), shl(sT3, sRB, 2), add(sT2, sT2, sT3), mul(sSP, sT2, PWAVE),
            shl(sT3, sC, 12), add(sSP, sSP, sT3), valu('v_mov_b32', vO, OOB)]]
    for i in range(3):
        ld = bload('buffer_load_dword', vDUM, vG[i], sWS, sT2); ld.tag = 'pf'
        cmp_ = raw(f"v_cmp_lt_u32 vcc, {sC}, {vG[i]}", 'valu', wr=['vcc'], rd=[sC, vG[i]])
        pre = [cmp_]
        if i == 2: pre += [raw("s_and_b64 vcc, vcc, 0xff", 'salu', wr=['vcc'], rd=['vcc'])]
        out.append(pre + [add(sT2, sSP, 8 * i * PSTR()), valu('v_cndmask_b32', vG[i], vO, vGA, 'vcc'), ld])
    return out
def red_eval():
    o = [raw(f"v_cmp_ne_u32 vcc, 0, {vP}", 'valu', wr=['vcc'], rd=[vP]), nop(1),
         raw(f"s_lshr_b64 {sAB}, vcc, {NPART + 1}", 'salu', wr=[sAB], rd=['vcc']), salu('s_and_b32', sAB[1], sAB[1], 15), smov(sRS, 0), smov(sRF, 0)]
    for c in range(9):
        o += [raw(f"v_cmp_ge_u32 vcc, {c}, {vP}", 'valu', wr=['vcc'], rd=[vP]), nop(1),
              raw(f"s_and_b32 {sT2}, vcc_lo, {hex((1 << NS) - 1)}", 'salu', wr=[sT2], rd=['vcc']), csel(sRS, sRS, 4 * (c + 1)),
              raw(f"s_and_b32 {sT2}, vcc_lo, {hex((1 << NPART) - (1 << NS))}", 'salu', wr=[sT2], rd=['vcc']), csel(sRF, sRF, 4 * (c + 1))]
    return o
def red_pub(par):
    return [shl(sT2, sRF, 8), salu('s_or_b32', sT2, sT2, sRS), shl(sT3, sTO, 16), salu('s_or_b32', sT2, sT2, sT3),
            valu('v_mov_b32', vIT, sT2), valu('v_mov_b32', vLA, par), raw(f"ds_write_b32 {vLA}, {vIT}", 'other', rd=[vLA, vIT]), waitlg(0)]
def red_get(par):
    return [valu('v_mov_b32', vLA, par), raw(f"ds_read_b32 {vIT}, {vLA}", 'ds', wr=[vIT], rd=[vLA]), waitlg(0),
            valu('v_readfirstlane_b32', sT2, vIT), salu('s_and_b32', sRS, sT2, 255), salu('s_bfe_u32', sRF, sT2, (8 << 16) | 8), shr(sTO, sT2, 16)]
def red_early(p, n):
    E = p.emit
    E([smov(sRS, 0), smov(sRF, 0), smov(sOK, 0), smov(sTO, 0), smov(sPAR, LDSC + 4), nop(1)])
    E(salu('s_cmp_eq_u32', None, sWAVE, 0)); E(raw(f"s_cbranch_scc0 L_{n}_e2"))
    E(waitvm(p.vm_wait_for(lambda t: t == 'poll')))
    E(valu('v_readfirstlane_b32', sOK, vD))
    E(salu('s_cmp_ge_u32', None, sOK, 16)); E(raw(f"s_cbranch_scc0 L_{n}_e1"))
    E(red_eval())
    E(label(f"L_{n}_e1"))
    E(red_pub(LDSC))
    E(label(f"L_{n}_e2"))

def ld_part(L, ks, flags):
    out = []
    for k in ks:
        out.append([add(sT2, sPART, k * PSTR()), bload('buffer_load_dwordx4', v(L + 4 * k, 4), vLD, sWS, sT2, flags=flags)])
    return out
def ld_x(L, sXO_):
    if CFG.get('nox'): return [[valu('v_mov_b32', vA, OOB), bload('buffer_load_dwordx2', v(L + 4 * NPART, 2), vA, sX, sXO_)], [bload('buffer_load_dwordx2', v(L + 4 * NPART + 2, 2), vA, sX, sXO_, 32)]]
    return [[bload('buffer_load_dwordx2', v(L + 4 * NPART, 2), vXO, sX, sXO_)], [bload('buffer_load_dwordx2', v(L + 4 * NPART + 2, 2), vXO, sX, sXO_, 32)]]
RB_ = 48
sD0, sD1 = s(68), s(69)
def proc_sum(E, L, ks, after, loads):
    SA, FA, T = RB_, RB_ + 8, RB_ + 16
    issued = 0; ks = list(ks)
    E(smov(sT3, 0xffff0000))
    for j, k in enumerate(ks):
        if loads: E(loads.pop(0)); issued += 1
        E(waitvm(len(ks) - 1 - j + after + issued))
        acc = SA if k < NS else FA
        for q in range(4):
            x = v(L + 4 * k + q)
            if k in (0, NS):
                E(valu('v_lshlrev_b32', v(acc + 2 * q), 16, x)); E(valu('v_and_b32', v(acc + 2 * q + 1), sT3, x))
            else:
                E(valu('v_dot2c_f32_bf16', v(acc + 2 * q), sD0, x, rmw=True)); E(valu('v_dot2c_f32_bf16', v(acc + 2 * q + 1), sD1, x, rmw=True))
    return issued
def proc_fin(E, L, sXO_, xwait, loads):
    SA, FA, T = RB_, RB_ + 8, RB_ + 16; XR = L + 4 * NPART; issued = 0
    for e in range(8): E(valu('v_exp_f32', v(T + e), v(FA + e)))
    for e in range(8): E(valu('v_add_f32', v(T + e), 1.0, v(T + e)))
    while len(loads) > 1: E(loads.pop(0)); issued += 1
    for e in range(8): E(valu('v_rcp_f32', v(T + e), v(T + e)))
    for e in range(8): E(valu('v_mul_f32', v(FA + e), f2u(-math.log(2.0)), v(FA + e)))
    for e in range(8): E(valu('v_mul_f32', v(FA + e), v(FA + e), v(T + e)))
    while loads: E(loads.pop(0)); issued += 1
    if xwait is not None: E(waitvm(xwait + issued))
    for q in range(4):
        E(valu('v_lshlrev_b32', v(T + 2 * q), 16, v(XR + q))); E(valu('v_and_b32', v(T + 2 * q + 1), sT3, v(XR + q)))
    for e in range(8): E(valu('v_fma_f32', v(T + e), v(SA + e), v(FA + e), v(T + e)))
    for q in range(4): E(valu('v_cvt_pk_bf16_f32', v(XR + q), v(T + 2 * q), v(T + 2 * q + 1)))
    if CFG.get('out4', True):
        def dpp(d, src, bank): return I(f"v_mov_b32_dpp {d}, {src} row_ror:8 row_mask:0xf bank_mask:{bank}", 'perm', wr=d.regs(), rd=src.regs() + d.regs())
        for i in range(2): E(valu('v_permlane16_swap_b32', v(XR + i), v(XR + 2 + i), rmw=True, extra_wr=[v(XR + 2 + i)]))
        for i in range(2): E(valu('v_mov_b32', v(T + i), v(XR + i)))
        for i in range(2): E(dpp(v(XR + i), v(XR + 2 + i), '0xc'))
        for i in range(2): E(dpp(v(XR + 2 + i), v(T + i), '0x3'))
        E(bstore('buffer_store_dwordx4', v(XR, 4), vX4, sOUT, sXO_, flags=CFG.get('oflags', 'sc1')))
        E(valu('v_mov_b32', vO, OOB)); E(bstore('buffer_store_dword', vO, vO, sOUT, 0))
        return
    E(bstore('buffer_store_dwordx2', v(XR, 2), vXO, sOUT, sXO_)); E(bstore('buffer_store_dwordx2', v(XR + 2, 2), vXO, sOUT, sXO_, 32))
def proc_all(E, L, sXO_, pre, loads):
    loads = list(loads)
    n = proc_sum(E, L, range(NPART), 2 + pre, loads)
    proc_fin(E, L, sXO_, pre + n, loads)

def acc_part(E, L, k):
    acc = RB_ if k < NS else RB_ + 8
    for q in range(4):
        x = v(L + 4 * k + q)
        if k in (0, NS):
            E(valu('v_lshlrev_b32', v(acc + 2 * q), 16, x)); E(valu('v_and_b32', v(acc + 2 * q + 1), sT3, x))
        else:
            E(valu('v_dot2c_f32_bf16', v(acc + 2 * q), sD0, x, rmw=True)); E(valu('v_dot2c_f32_bf16', v(acc + 2 * q + 1), sD1, x, rmw=True))
def stream(E, segs, hooks=None):
    W = CFG.get('rwin', 8); FL = CFG.get('fflags', 'sc1')
    seq = []
    for (L, sP, sX_, ks, wx, fin) in segs:
        if wx:
            for it in ld_x(L, sX_): seq.append((it, None))
        ks = list(ks)
        for j, k in enumerate(ks):
            it = [add(sT2, sP, k * PSTR()), bload('buffer_load_dwordx4', v(L + 4 * k, 4), vLD, sWS, sT2, flags=FL)]
            last = fin and j == len(ks) - 1
            seq.append((it, (lambda L=L, k=k, last=last, sX_=sX_: (acc_part(E, L, k), proc_fin(E, L, sX_, None, []) if last else None, last)[2])))
    E(smov(sT3, 0xffff0000))
    n = len(seq); issued = 0
    extra_at = []
    for c in range(n):
        while issued < min(n, c + W): E(seq[issued][0]); issued += 1
        if hooks and c in hooks:
            for _ in range(hooks[c](issued + sum(1 for e in extra_at))): extra_at.append(issued)
            E(smov(sT3, 0xffff0000))
        if seq[c][1] is None: continue
        E(waitvm(issued - 1 - c + sum(1 for e in extra_at if e > c)))
        if seq[c][1]():
            extra_at += [issued, issued]

def body_items(E, n, its, two, ni, ensure, refresh, done, ST, seg, final_flag, poll_hook, LATE, L0, L1, FOUR, sMID, offs, sPT):
    if n == 'M' and CFG.get('m3') == 1:
        ensure(its[2], 1, 1); ST(its[0])
        stream(E, [seg(0, L0), seg(1, L1), seg(2, L0)], {4: (lambda _: (E(ab_load()), 1)[1])})
        for i in range(3): done(its[i])
        return
    E(salu('s_min_u32', sT2, sRS, sRF)); E(salu('s_cmp_lt_u32', None, its[two - 1], sT2)); E(raw(f"s_cbranch_scc0 L_{n}_sl"))
    ST(its[0])
    AB = CFG.get('abn')
    def ab_hook(_): E(ab_load()); return 1
    hooks = {(NPART + 2) * two - CFG.get('pollat', 8): poll_hook}
    if AB:
        if ni < 3: hooks = {}
        hooks[14 if LATE else 4] = ab_hook
    if LATE: hooks[CFG.get('flagat', 3) if n == 'A' else 0] = final_flag
    stream(E, [seg(0, L0), seg(1, L1)][:two], hooks)
    ST(51)
    E(raw(f"s_branch L_{n}_j"))
    E(label(f"L_{n}_sl"))
    if (LATE or CFG.get('mid1m')) and two == 2 and CFG.get('mid1', 1):
        E(salu('s_min_u32', sT2, sRS, sRF)); E(salu('s_cmp_lt_u32', None, its[0], sT2)); E(raw(f"s_cbranch_scc0 L_{n}_s0"))
        ST(52)
        stream(E, [seg(0, L0)], {CFG.get('flagat', 3): final_flag, 12: poll_hook} if LATE else {14: poll_hook}); done(its[0])
        refresh(2); ensure(its[1], 1, 1)
        stream(E, [seg(1, L1)], ({11: poll_hook, 3: ab_hook} if ni == 3 else {3: ab_hook}) if AB else {11: poll_hook})
        E(raw(f"s_branch L_{n}_j"))
        E(label(f"L_{n}_s0"))
    if LATE: final_flag(0)
    for i in range(two):
        ensure(its[i], 1, 1)
        hk = {11: poll_hook} if (i == two - 1 and not (AB and ni < 3)) else {}
        if AB and i == two - 1: hk[4] = ab_hook
        stream(E, [seg(i, L0)], hk); done(its[i])
    E(label(f"L_{n}_j"))
    for i in range(two): done(its[i])
    if FOUR or ((CFG.get('asg') == 3 or CFG.get('bal')) and n == 'A'):
        E(salu('s_cmp_gt_u32', None, sMID, 35)); E(raw(f"s_cbranch_scc1 L_{n}_nm"))
        refresh(2)
        ensure(sMID, 1, 1); ST(sMID)
        E(offs(sMID, sXP[0]))
        stream(E, [seg(0, L1)], {13: poll_hook}); done(sMID)
        E(label(f"L_{n}_nm"))
    def warm():
        if not CFG.get('warm', 1): return
        E(valu('v_mov_b32', v(240), vLD)); E(valu('v_mov_b32', v(241), vX4)); E(valu('v_mov_b32', vLD, OOB)); E(valu('v_mov_b32', vX4, OOB))
        E(raw(f"s_call_b64 {sRET2}, L_{n}_ft"))
        E(valu('v_mov_b32', vLD, v(240))); E(valu('v_mov_b32', vX4, v(241)))
    if ni == 3:
        if CFG.get('asg') == 3:
            E(salu('s_cmp_lt_u32', None, its[2], 36)); E(raw(f"s_cbranch_scc1 L_{n}_h3"))
            E(red_poll(True)[1]); E(waitvm(0)); E(raw(f"s_branch L_{n}_fin")); E(label(f"L_{n}_h3"))
        refresh(2, AB and CFG.get('abx', 1))
        if CFG.get('nof'):
            E(salu('s_cmp_gt_u32', None, sMD2, 35)); E(raw(f"s_cbranch_scc1 L_{n}_k1"))
            ensure(sMD2, 1, 1); E(offs(sMD2, sXP[0])); ST(sMD2)
            E(salu('s_cmp_lt_u32', None, its[2], sRS)); E(raw(f"s_cbranch_scc0 L_{n}_k0"))
            E(salu('s_cmp_lt_u32', None, its[2], sRF)); E(raw(f"s_cbranch_scc1 L_{n}_k0"))
            warm()
            stream(E, [seg(0, L1), seg(2, L0, range(NS), True, False)], {20: poll_hook.sh}); done(sMD2)
            E(raw(f"s_branch L_{n}_k2"))
            E(label(f"L_{n}_k0"))
            stream(E, [seg(0, L1)], {11: poll_hook}); done(sMD2)
            refresh(2)
            E(label(f"L_{n}_k1"))
        if CFG.get('pw') == 2 and n == 'A':
            E(salu('s_cmp_eq_u32', None, sMD2, 0)); E(raw(f"s_cbranch_scc0 L_{n}_old"))
            vQ, vZ = v(242), v(243); FM_ = (1 << NPART) - (1 << NS); SM_ = (1 << NS) - 1
            E(valu('v_min_u32', vQ, NPART * 16, vLANE16)); E(valu('v_lshrrev_b32', vQ, 2, vQ))
            E(valu('v_mov_b32', vZ, OOB)); E(smov(sT2, 4 * NPART)); E(raw(f"v_writelane_b32 {vZ}, {sT2}, 0", 'valu', wr=[vZ], rd=[sT2, vZ]))
            E(shr(sC, its[2], 2))
            def drop(): return bstore('buffer_store_dword', vZ, vZ, sWS, sPV, flags='sc1')
            def test(mask):
                E(raw(f"v_cmp_ge_u32 vcc, {sC}, {vP}", 'valu', wr=['vcc'], rd=[vP, sC])); E(nop(1))
                E(raw(f"s_and_b32 {sI}, vcc_lo, {hex(FM_)}", 'salu', wr=[sI], rd=['vcc']))
                E(raw(f"s_and_b32 {sT2}, vcc_lo, {hex(mask)}", 'salu', wr=[sT2], rd=['vcc']))
            def waitpw(tag, mask):
                L = f"L_{n}_{tag}"
                E(smov(sSP, 0))
                E(label(L + "0"))
                E(bload('buffer_load_dword', vP, vQ, sWS, sPV, flags='sc1'))
                if CFG.get('pwm') == 1:
                    E(salu('s_and_b32', sT2, sSP, 15)); E(salu('s_cmp_eq_u32', None, sT2, 15)); E(csel(sT2, 0, sWAVE)); E(salu('s_cmp_eq_u32', None, sT2, 0))
                else:
                    E(salu('s_and_b32', sT2, sSP, 4 * CFG.get('pwk', 1) - 1)); E(mul(sT3, sWAVE, CFG.get('pwk', 1))); E(salu('s_cmp_eq_u32', None, sT2, sT3))
                E(raw(f"s_cbranch_scc0 {L}1"))
                E(drop()); E(waitvm(1)); E(raw(f"s_branch {L}2"))
                E(label(L + "1")); E(waitvm(0))
                E(label(L + "2"))
                test(mask); E(raw(f"s_cbranch_scc0 {L}3"))
                E(add(sSP, sSP, 1)); E(salu('s_cmp_gt_u32', None, sSP, 4 * CFG.get('spin', 4000))); E(raw(f"s_cbranch_scc1 {L}4"))
                E(raw(f"s_sleep {CFG.get('pwsleep', 2)}")); E(raw(f"s_branch {L}0"))
                E(label(L + "4"))
                E(valu('v_lshlrev_b32', vO, 4, vLANE16)); E(valu('v_mov_b32', vIT, OOB)); E(valu('v_mov_b32', vA, 1))
                E(raw(f"v_cmp_gt_u32 vcc, 0x100, {vLANE16}", 'valu', wr=['vcc'], rd=[vLANE16])); E(valu('v_cndmask_b32', vO, vIT, vO, 'vcc'))
                E(raw(f"s_lshl2_add_u32 {sT2}, {its[2]}, {sPB}", 'salu', wr=[sT2], rd=[its[2], sPB])); E(add(sT2, sT2, ABN))
                E(bstore('buffer_store_dword', vA, vO, sWS, sT2, flags='sc1')); E(waitvm(0))
                E(drop()); E(waitvm(0))
                E(bload('buffer_load_dword', vP, vQ, sWS, sPV, flags='sc1')); E(waitvm(0))
                test(SM_ | FM_); E(raw(f"s_cbranch_scc1 L_{n}_exit"))
                E(label(L + "3"))
            E(salu('s_min_u32', sT2, sRS, sRF)); E(salu('s_cmp_lt_u32', None, its[2], sT2)); E(raw(f"s_cbranch_scc1 L_{n}_f3"))
            E(salu('s_cmp_lt_u32', None, its[2], sRS)); E(raw(f"s_cbranch_scc1 L_{n}_ps"))
            waitpw('ws', SM_)
            E(salu('s_cmp_eq_u32', None, sI, 0)); E(raw(f"s_cbranch_scc1 L_{n}_f3"))
            E(label(f"L_{n}_ps")); ST(its[2])
            warm()
            stream(E, [seg(2, L0, range(NS), True, False)], {5: (lambda _: (E(drop()), 1)[1])})
            waitpw('wf', FM_); ST(50)
            E(raw(f"s_call_b64 {sRET2}, L_{n}_ft")); E(raw(f"s_branch L_{n}_exit"))
            E(label(f"L_{n}_ft"))
            stream(E, [seg(2, L0, range(NS, NPART), False, True)])
            E(raw(f"s_setpc_b64 {sRET2}"))
            E(label(f"L_{n}_old"))
            ensure(its[2], 1, 1)
            E(label(f"L_{n}_f3"))
            stream(E, [seg(2, L0)])
            done(its[2])
            E(salu('s_cmp_eq_u32', None, sMD2, 0)); E(raw(f"s_cbranch_scc1 L_{n}_exit")); E(raw(f"s_branch L_{n}_fb"))
            return
        ensure(its[2], 1, 0); ST(its[2])
        E(salu('s_cmp_lt_u32', None, its[2], sRF)); E(raw(f"s_cbranch_scc1 L_{n}_f3"))
        if CFG.get('rep') and n == 'A':
            warm()
            stream(E, [seg(2, L0, range(NS), True, False)], {4: poll_hook.sh})
            E(label(f"L_{n}_k2"))
            E(salu('s_cmp_eq_u32', None, sWAVE, 0)); E(raw(f"s_cbranch_scc0 L_{n}_w2"))
            E(waitvm(0))
            E(raw(f"v_cmp_ne_u32 vcc, 0, {vP}", 'valu', wr=['vcc'], rd=[vP])); E(nop(1))
            E(raw(f"s_lshr_b64 {sAB}, vcc, {NPART + 1}", 'salu', wr=[sAB], rd=['vcc'])); E(salu('s_and_b32', sAB[1], sAB[1], 15))
            E(salu('s_or_b32', sT2, sAB[0], sAB[1])); E(csel(sRS, 1, 0))
            E(shr(sC, its[2], 2)); E(mul(sI, sROLE, NREP * 128)); E(add(sI, sI, sPB)); E(add(sI, sI, 2048)); E(add(sSP, sI, NREP * 128))
            E(label(f"L_{n}_w0"))
            E(bload('buffer_load_dword', vP, vL5, sWS, sI, flags='sc1')); E(waitvm(0))
            E(raw(f"v_cmp_ge_u32 vcc, {sC}, {vP}", 'valu', wr=['vcc'], rd=[vP, sC])); E(nop(1))
            E(raw(f"s_and_b32 {sT2}, vcc_lo, {hex((1 << NPART) - (1 << NS))}", 'salu', wr=[sT2], rd=['vcc'])); E(csel(sRF, 0, 36))
            E(raw(f"s_cbranch_scc0 L_{n}_w1"))
            E(add(sI, sI, 128)); E(salu('s_cmp_lt_u32', None, sI, sSP)); E(raw(f"s_cbranch_scc0 L_{n}_w1"))
            E(raw(f"s_sleep {CFG.get('rsleep', 6)}")); E(raw(f"s_branch L_{n}_w0"))
            E(label(f"L_{n}_w1")); E(red_pub(sPAR))
            E(label(f"L_{n}_w2")); E(barrier()); E(red_get(sPAR)); E(salu('s_xor_b32', sPAR, sPAR, 12))
            E(smov(sMID, sRS))
            ensure(its[2], 0, 1); ST(50)
            E(raw(f"s_call_b64 {sRET2}, L_{n}_ft")); done(its[2])
            E(salu('s_cmp_eq_u32', None, sMID, 0)); E(raw(f"s_cbranch_scc1 L_{n}_exit")); E(raw(f"s_branch L_{n}_fb"))
            E(label(f"L_{n}_ft"))
            stream(E, [seg(2, L0, range(NS, NPART), False, True)])
            E(raw(f"s_setpc_b64 {sRET2}"))
        elif CFG.get('pw') and n == 'A':
            E(salu('s_cmp_eq_u32', None, sMD2, 0)); E(raw(f"s_cbranch_scc0 L_{n}_old"))
            warm()
            vQ, vZ = v(242), v(243)
            E(valu('v_min_u32', vQ, NPART * 16, vLANE16)); E(valu('v_lshrrev_b32', vQ, 2, vQ))
            E(valu('v_mov_b32', vZ, OOB)); E(smov(sT2, 4 * NPART)); E(raw(f"v_writelane_b32 {vZ}, {sT2}, 0", 'valu', wr=[vZ], rd=[sT2, vZ]))
            def drop_hook(_): E(bstore('buffer_store_dword', vZ, vZ, sWS, sPV, flags='sc1')); return 1
            stream(E, [seg(2, L0, range(NS), True, False)], {5: drop_hook})
            E(shr(sC, its[2], 2)); E(smov(sSP, 0))
            E(label(f"L_{n}_pw0"))
            E(bload('buffer_load_dword', vP, vQ, sWS, sPV, flags='sc1'))
            E(salu('s_and_b32', sT2, sSP, 3)); E(salu('s_cmp_eq_u32', None, sT2, sWAVE)); E(raw(f"s_cbranch_scc0 L_{n}_pw1"))
            E(bstore('buffer_store_dword', vZ, vZ, sWS, sPV, flags='sc1')); E(waitvm(1)); E(raw(f"s_branch L_{n}_pw2"))
            E(label(f"L_{n}_pw1")); E(waitvm(0))
            E(label(f"L_{n}_pw2"))
            E(raw(f"v_cmp_ge_u32 vcc, {sC}, {vP}", 'valu', wr=['vcc'], rd=[vP, sC])); E(nop(1))
            E(raw(f"s_and_b32 {sT2}, vcc_lo, {hex((1 << NPART) - (1 << NS))}", 'salu', wr=[sT2], rd=['vcc'])); E(raw(f"s_cbranch_scc0 L_{n}_pw3"))
            E(add(sSP, sSP, 1)); E(salu('s_cmp_gt_u32', None, sSP, 4 * CFG.get('spin', 4000))); E(raw(f"s_cbranch_scc1 L_{n}_pw4"))
            E(raw(f"s_sleep {CFG.get('pwsleep', 2)}")); E(raw(f"s_branch L_{n}_pw0"))
            E(label(f"L_{n}_pw4"))
            E(valu('v_lshlrev_b32', vO, 4, vLANE16)); E(valu('v_mov_b32', vIT, OOB)); E(valu('v_mov_b32', vA, 1))
            E(raw(f"v_cmp_gt_u32 vcc, 0x100, {vLANE16}", 'valu', wr=['vcc'], rd=[vLANE16])); E(valu('v_cndmask_b32', vO, vIT, vO, 'vcc'))
            E(raw(f"s_lshl2_add_u32 {sT2}, {its[2]}, {sPB}", 'salu', wr=[sT2], rd=[its[2], sPB])); E(add(sT2, sT2, ABN))
            E(bstore('buffer_store_dword', vA, vO, sWS, sT2, flags='sc1')); E(waitvm(0))
            E(bstore('buffer_store_dword', vZ, vZ, sWS, sPV, flags='sc1')); E(waitvm(0))
            E(bload('buffer_load_dword', vP, vQ, sWS, sPV, flags='sc1')); E(waitvm(0))
            E(raw(f"v_cmp_ge_u32 vcc, {sC}, {vP}", 'valu', wr=['vcc'], rd=[vP, sC])); E(nop(1))
            E(raw(f"s_and_b32 {sT2}, vcc_lo, {hex((1 << NPART) - (1 << NS))}", 'salu', wr=[sT2], rd=['vcc'])); E(raw(f"s_cbranch_scc1 L_{n}_exit"))
            E(label(f"L_{n}_pw3")); ST(50)
            E(raw(f"s_call_b64 {sRET2}, L_{n}_ft")); E(raw(f"s_branch L_{n}_exit"))
            E(label(f"L_{n}_ft"))
            stream(E, [seg(2, L0, range(NS, NPART), False, True)])
            E(raw(f"s_setpc_b64 {sRET2}"))
            E(label(f"L_{n}_old"))
            stream(E, [seg(2, L0, range(NS), True, False)])
            ensure(its[2], 0, 1)
            E(raw(f"s_call_b64 {sRET2}, L_{n}_ft")); E(raw(f"s_branch L_{n}_f4"))
        else:
            stream(E, [seg(2, L0, range(NS), True, False)], {6: poll_hook})
            refresh(0)
            ensure(its[2], 0, 1); ST(50)
            stream(E, [seg(2, L0, range(NS, NPART), False, True)], {0: poll_hook.sh} if not AB else None)
            E(raw(f"s_branch L_{n}_f4"))
        E(label(f"L_{n}_f3"))
        stream(E, [seg(2, L0)], {11: poll_hook.sh} if not AB else None)
        E(label(f"L_{n}_f4"))
        done(its[2])
        if AB and CFG.get('abx', 1):
            E(salu('s_cmp_eq_u32', None, sMD2, 0)); E(raw(f"s_cbranch_scc1 L_{n}_exit")); E(raw(f"s_branch L_{n}_fb"))


def reducer(kind):
    p = Prog(); E = p.emit; n = kind; FL = CFG.get('fflags', 'sc1')
    PRIV[0] = (kind == 'A' or (kind == 'M' and bool(CFG.get('mpriv'))) or CFG.get('mpriv') == 5)
    def ST(code):
        if CFG['stamps'] != 2: return
        E(raw(f"s_memtime {sSTAMP}", wr=[sSTAMP])); E(raw("s_waitcnt lgkmcnt(0)")); E(salu('s_sub_u32', s(98), s(98), s(100)))
        E(shl(s(98), s(98), 6)); E(salu('s_or_b32', s(98), s(98), code))
        E(add(s(97), s(97), 16)); E(salu('s_min_u32', s(97), s(97), 11 * 16))
        E(raw(f"v_cmp_eq_u32 vcc, s97, {vLANE16}", 'valu', wr=['vcc'], rd=[s(97), vLANE16])); E(valu('v_mov_b32', v(27), s(98)))
        E(valu('v_cndmask_b32', vSTAMP, vSTAMP, v(27), 'vcc'))
    def offs(item, sX_):
        return [salu('s_and_b32', sT2, item, 3), shr(sC, item, 2), shl(sT3, sRB, 2), add(sT2, sT2, sT3), mul(sPART, sT2, PWAVE), add(sX_, sPART, sXW),
                shl(sT3, sC, 12), add(sT3, sT3, sPWv), add(sPART, sPART, sT3), shl(sT3, sC, 7), add(sX_, sX_, sT3)]
    k_ = [0]
    def ensure(item, s_, f_):
        L = f"L_{n}_en{k_[0]}"; k_[0] += 1
        if s_ and f_: E(salu('s_min_u32', sT2, sRS, sRF)); r = sT2
        else: r = sRS if s_ else sRF
        E(salu('s_cmp_lt_u32', None, item, r)); E(raw(f"s_cbranch_scc1 {L}"))
        E(smov(sI, item)); E(smov(sC, (1 if s_ else 0) | (2 if f_ else 0)))
        E(raw(f"s_call_b64 {sRET2}, L_{n}_sync"))
        E(salu('s_cmp_eq_u32', None, sTO, 0)); E(raw(f"s_cbranch_scc0 L_{n}_fb"))
        E(label(L))
    def done(item): E(raw(f"s_bitset0_b64 {sRM}, {item}", 'salu', wr=[sRM], rd=[sRM, item]))
    E(label(f"L_{n}_red"))
    if CFG.get('rdelay'):
        if n == 'A': (E(waitvm(0)), E(barrier()), E(valu('v_mov_b32', vPRG, 9)), E(bstore('buffer_store_dword', vPRG, vCT, sWS, 0, flags='sc1')))
        for _ in range({'A': 30, 'M': 24, 'F': 14}[n]): E(raw("s_sleep 16"))
    if not (n == 'F' and CFG.get('bal') == 2 and (CFG.get('fq', 1) and not CFG.get('fi'))): E(red_get(LDSC))
    if CFG.get('rdelay'): E(smov(sRS, 36)); E(smov(sRF, 36))
    E(valu('v_lshrrev_b32', vO, 4, vLANE16)); E(valu('v_and_b32', vXO, 7, vO)); E(valu('v_lshlrev_b32', vLD, 4, vXO))
    E(smov(sT2, 1152)); E(valu('v_mul_u32_u24', vXO, sT2, vXO))
    E(valu('v_lshrrev_b32', vA, 3, vO)); E(valu('v_lshl_add_u32', vX4, vA, 4, vXO))
    E(valu('v_bfe_u32', vA, vO, 3, 2)); E(valu('v_lshl_add_u32', vXO, vA, 3, vXO)); E(valu('v_lshl_add_u32', vLD, vA, 8, vLD))
    E(valu('v_lshrrev_b32', vA, 5, vO)); E(valu('v_lshl_add_u32', vXO, vA, 6, vXO)); E(valu('v_lshl_add_u32', vLD, vA, 11, vLD))
    E(mul(sXW, sWAVE, 8 * 1152)); E(shr(sPWv, sWAVE, 1)); E(shl(sPWv, sPWv, 10)); E(salu('s_and_b32', sT2, sWAVE, 1)); E(shl(sT2, sT2, 7)); E(add(sPWv, sPWv, sT2))
    if CFG.get('rcontig'): E(valu('v_mov_b32', vLD, vLANE16)); E(shl(sPWv, sWAVE, 10))
    L0, L1 = 72, 76 + 4 * NPART
    E(smov(sD0, 0x3f80)); E(smov(sD1, 0x3f800000))
    E(raw(f"s_mov_b64 {sRM}, 0", 'salu', wr=[sRM]))
    FOUR = CFG.get('four')
    sMID = s(48 + 0) if False else s(83)
    def nib(dst, tab, base):
        E(smov(sCD[0], sum(tab[i] << (4 * i) for i in range(8)))); E(smov(sCD[1], tab[8] | (tab[9] << 4)))
        E(shl(sT2, sROLE, 2)); E(s64('s_lshr_b64', sCD, sCD, sT2)); E(salu('s_and_b32', dst, sCD[0], 15))
        E(salu('s_cmp_eq_u32', None, dst, 15)); E(csel(dst, 63 - base, dst)); E(add(dst, dst, base))
    if n == 'A':
        E(smov(sIT[0], sROLE)); E(add(sIT[1], sROLE, NA))
        if CFG.get('bal'):
            nib(sIT[1], [x - 10 for x in BAL2], 10); nib(sIT[2], [x - 21 for x in BAL3], 21); nib(sMID, [min(x - BMB(), 15) for x in BALM], BMB())
            E(raw(f"s_bitset1_b64 {sRM}, {sMID}", 'salu', wr=[sRM], rd=[sRM, sMID]))
        elif CFG.get('asg') == 2: E(add(sIT[2], sROLE, 16))
        elif CFG.get('asg') == 3:
            E(add(sMID, sROLE, 16)); E(raw(f"s_bitset1_b64 {sRM}, {sMID}", 'salu', wr=[sRM], rd=[sRM, sMID]))
            E(salu('s_and_b32', sT2, sROLE, 1)); E(shr(sIT[2], sROLE, 1)); E(add(sIT[2], sIT[2], 24)); E(salu('s_cmp_eq_u32', None, sT2, 0)); E(csel(sIT[2], sIT[2], 63))
        elif CFG.get('l844'): E(add(sIT[2], sROLE, 28))
        elif FOUR:
            nib(sMID, [0, 15, 1, 2, 15, 3, 4, 5, 6, 7], 20); nib(sIT[2], [0, 1, 15, 2, 3, 15, 4, 5, 6, 7], 28)
            E(raw(f"s_bitset1_b64 {sRM}, {sMID}", 'salu', wr=[sRM], rd=[sRM, sMID]))
        else:
            nib(sIT[2], [0, 1, 15, 2, 3, 15, 4, 5, 6, 7], 28)
            E(salu('s_cmp_eq_u32', None, sROLE, 2)); E(csel(sIT[2], 23 if CFG.get('m3') else 22, sIT[2])); E(salu('s_cmp_eq_u32', None, sROLE, 5)); E(csel(sIT[2], 24 if CFG.get('m3') else 21, sIT[2]))
            if CFG.get('nof'):
                nib(sMD2, CFG['nof'], 23)
                E(raw(f"s_bitset1_b64 {sRM}, {sMD2}", 'salu', wr=[sRM], rd=[sRM, sMD2]))
        its = sIT
    elif CFG.get('asg') == 2:
        if n == 'M': E(add(sIT[0], sROLE, 16)); E(add(sIT[1], sROLE, 20)); its = sIT[:2]
        else: E(add(sIT[0], sROLE, 20)); its = sIT[:1]
    elif CFG.get('asg') == 3:
        E(add(sIT[0], sROLE, 20)); its = sIT[:1]
    elif CFG.get('l844'):
        if n == 'M': E(add(sIT[0], sROLE, 8)); E(add(sIT[1], sROLE, 12)); its = sIT[:2]
        else: E(add(sIT[0], sROLE, 12)); its = sIT[:1]
    elif n == 'M' and CFG.get('m3') == 2: E(smov(sIT[0], CFG.get('mi', (20, 21))[0])); E(smov(sIT[1], CFG.get('mi', (20, 21))[1])); its = sIT[:2]
    elif n == 'F' and CFG.get('fi'):
        t_ = [min(x, 40) - 25 for x in CFG['fi']]
        E(smov(sT2, sum(t_[i] << (4 * i) for i in range(5)))); E(salu('s_sub_u32', sT3, sROLE, 11)); E(shl(sT3, sT3, 2))
        E(shr(sT2, sT2, sT3)); E(salu('s_and_b32', sT2, sT2, 15)); E(add(sIT[0], sT2, 25)); its = sIT[:1]
    elif n == 'M' and CFG.get('m3'): E(smov(sIT[0], CFG.get('mb', 20))); E(smov(sIT[1], CFG.get('mb', 20) + 1)); E(smov(sIT[2], CFG.get('mb', 20) + 2)); its = sIT
    elif n == 'M': E(smov(sIT[0], 20)); its = sIT[:1]
    else:
        E(add(sIT[0], sROLE, 12)); its = sIT[:1]
    if (FOUR and n != 'A') or (CFG.get('nof') and n == 'F'):
        its = []
        E(waitvm(0)); E(red_poll()[1]); E(waitvm(0)); E(raw(f"s_branch L_{n}_fin"))
    if (CFG.get('bal') or CFG.get('m3')) and n == 'F':
        if CFG.get('fi'): E(salu('s_cmp_lt_u32', None, sIT[0], 36))
        else: E(salu('s_cmp_ge_u32', None, sROLE, 13 if CFG.get('bal') != 2 else 16))
        E(raw(f"s_cbranch_scc1 L_{n}_hi"))
        E(waitvm(0)); E(ab_load() if CFG.get('abn') else red_poll()[1]); E(waitvm(0)); E(raw(f"s_branch L_{n}_fin")); E(label(f"L_{n}_hi"))
    for it in its: E(raw(f"s_bitset1_b64 {sRM}, {it}", 'salu', wr=[sRM], rd=[sRM, it]))
    E(salu('s_and_b32', sRM[1], sRM[1], 15))
    def refresh(wait, ab=False):
        L = f"L_{n}_rf{k_[0]}"; k_[0] += 1
        E(salu('s_cmp_eq_u32', None, sWAVE, 0)); E(raw(f"s_cbranch_scc0 {L}"))
        E(waitvm(wait)); E(red_eval())
        if ab: E(ab_eval()); E(salu('s_or_b32', sT2, sAB[0], sAB[1])); E(csel(sTO, 1, 0))
        E(red_pub(sPAR))
        E(label(L)); E(barrier()); E(red_get(sPAR)); E(salu('s_xor_b32', sPAR, sPAR, 12))
        if ab: E(smov(sMD2, sTO)); E(smov(sTO, 0))
    ALLD = lambda L, sx: ld_part(L, range(NPART), FL) + ld_x(L, sx)
    LATE = n in CFG.get('lateflag', 'A') + CFG.get('pre', '')
    sPT = [s(47), s(67 - 2), s(70)]
    def offs2(i): return offs(its[i], sXP[i]) + ([smov(sPT[i], sPART)] if i else [])
    def final_flag(wait):
        E(waitvm(wait)); E(barrier())
        E(valu('v_mov_b32', vPRG, 9))
        if CFG.get('rep') and n in 'FM': E(bstore('buffer_store_dword', vPRG, vCR, sWS, 0, flags='sc1'))
        E(bstore('buffer_store_dword', vPRG, vCT, sWS, 0, flags='sc1'))
        return 2 if (CFG.get('rep') and n in 'FM') else 1
    def poll_hook(_): E(red_poll()[1]); return 2
    def poll_sh(_): E(red_poll(True)[1]); return 2
    poll_hook.sh = poll_sh
    seg = lambda i, L, ks=range(NPART), wx=True, fin=True: (L, sPT[i], sXP[i], ks, wx, fin)
    ni = len(its)
    for i in reversed(range(ni)): E(offs2(i))
    two = min(ni, 2)
    if ni: body_items(E, n, its, two, ni, ensure, refresh, done, ST, seg, final_flag, poll_hook, LATE, L0, L1, FOUR, sMID, offs, sPT)
    E(label(f"L_{n}_fin"))
    E(salu('s_cmp_eq_u32', None, sWAVE, 0)); E(raw(f"s_cbranch_scc0 L_{n}_b4"))
    if CFG.get('abn'): E(ab_eval())
    else:
        E(waitvm(2))
        E(raw(f"v_cmp_ne_u32 vcc, 0, {vP}", 'valu', wr=['vcc'], rd=[vP])); E(nop(1))
        E(raw(f"s_lshr_b64 {sAB}, vcc, {NPART + 1}", 'salu', wr=[sAB], rd=['vcc'])); E(salu('s_and_b32', sAB[1], sAB[1], 15))
    E(salu('s_or_b32', sT2, sAB[0], sAB[1])); E(csel(sTO, 1, 0))
    E(salu('s_cmp_ge_u32', None, sOK, 16)); E(csel(sTO, sTO, 1)); E(red_pub(sPAR))
    E(label(f"L_{n}_b4")); E(barrier()); E(red_get(sPAR)); E(salu('s_xor_b32', sPAR, sPAR, 12))
    E(salu('s_cmp_eq_u32', None, sTO, 0)); E(raw(f"s_cbranch_scc1 L_{n}_exit"))
    E(label(f"L_{n}_fb"))
    E(waitvm(0))
    E(salu('s_cmp_eq_u32', None, sWAVE, 0)); E(raw(f"s_cbranch_scc0 L_{n}_fb2"))
    if CFG.get('abn'):
        E(raw(f"s_mov_b64 {sCD}, {sRM}", 'salu', wr=[sCD], rd=[sRM])); E(valu('v_mov_b32', vA, 1))
        E(valu('v_lshlrev_b32', vO, 4, vLANE16)); E(valu('v_mov_b32', vIT, OOB))
        E(raw(f"v_cmp_gt_u32 vcc, 0x100, {vLANE16}", 'valu', wr=['vcc'], rd=[vLANE16])); E(valu('v_cndmask_b32', vO, vIT, vO, 'vcc'))
        E(label(f"L_{n}_mk"))
        E(raw(f"s_cmp_eq_u64 {sCD}, 0", 'salu', rd=[sCD])); E(raw(f"s_cbranch_scc1 L_{n}_mk1"))
        E(raw(f"s_ff1_i32_b64 {sT2}, {sCD}", 'salu', wr=[sT2], rd=[sCD])); E(raw(f"s_bitset0_b64 {sCD}, {sT2}", 'salu', wr=[sCD], rd=[sCD, sT2]))
        E(raw(f"s_lshl2_add_u32 {sT2}, {sT2}, {sPB}", 'salu', wr=[sT2], rd=[sT2, sPB])); E(add(sT2, sT2, ABN))
        E(bstore('buffer_store_dword', vA, vO, sWS, sT2, flags='sc1')); E(raw(f"s_branch L_{n}_mk"))
        E(label(f"L_{n}_mk1")); E(waitvm(0))
        E(red_poll()[0]); E(waitvm(0))
        E(valu('v_mov_b32', vO, OOB)); E(smov(sT2, 36 * 4)); E(raw(f"v_writelane_b32 {vO}, {sT2}, 1", 'valu', wr=[vO], rd=[sT2, vO]))
        E(bstore('buffer_store_dword', vA, vO, sWS, sAV_, flags='sc1'))
        E(valu('v_mov_b32', vIT, 0)); E(valu('v_mov_b32', vO, OOB)); E(raw(f"v_writelane_b32 {vO}, 0, 0", 'valu', wr=[vO], rd=[vO]))
        E(I(f"buffer_atomic_add {vIT}, {vO}, {sWS}, {sAV_} offen sc1", 'vstore', rd=vIT.regs() + vO.regs() + sWS.regs() + sAV_.regs(), units=3))
        E(waitvm(0)); E(ab_load()); E(red_poll(True)[1]); E(waitvm(0)); E(valu('v_readfirstlane_b32', sOK, vD)); E(red_eval()); E(ab_eval())
    else:
        E(s64('s_lshl_b64', sCD, sRM, NPART + 1)); E(valu('v_mov_b32', vO, OOB)); E(valu('v_mov_b32', vA, 1))
        E(valu('v_cndmask_b32', vO, vO, vL4, sCD)); E(bstore('buffer_store_dword', vA, vO, sWS, sPB, flags='sc1')); E(waitvm(0))
        E(red_poll()[0]); E(waitvm(0)); E(red_poll(True)[1]); E(waitvm(0)); E(valu('v_readfirstlane_b32', sOK, vD)); E(red_eval())
    E(salu('s_min_u32', sT2, sRS, sRF)); E(salu('s_cmp_ge_u32', None, sOK, 16)); E(csel(sT2, sT2, 0))
    E(salu('s_bfm_b64', sCD, sT2, 0, scc_w=False)); E(s64('s_or_b64', sAB, sAB, sRM)); E(s64('s_and_b64', sAB, sAB, sCD))
    E(label(f"L_{n}_fb1"))
    E(raw(f"s_ff1_i32_b64 {sRS}, {sAB}", 'salu', wr=[sRS], rd=[sAB])); E(salu('s_and_b32', sRS, sRS, 255))
    E(raw(f"s_bitset0_b64 {sAB}, {sRS}", 'salu', wr=[sAB], rd=[sAB, sRS])); E(red_pub(sPAR))
    E(label(f"L_{n}_fb2")); E(barrier()); E(red_get(sPAR)); E(salu('s_xor_b32', sPAR, sPAR, 12))
    E(salu('s_cmp_ge_u32', None, sRS, 36)); E(raw(f"s_cbranch_scc1 L_{n}_exit"))
    E(offs(sRS, sXP[0])); E(ld_part(L0, range(NPART), FL) + ld_x(L0, sXP[0])); E(waitvm(0)); proc_all(E, L0, sXP[0], 0, [])
    E(salu('s_cmp_eq_u32', None, sWAVE, 0)); E(raw(f"s_cbranch_scc1 L_{n}_fb1")); E(raw(f"s_branch L_{n}_fb2"))
    E(label(f"L_{n}_exit"))
    ST(60)
    if CFG['stamps']: E(raw(f"s_setpc_b64 {sRET}"))
    else: E(raw("s_endpgm"))
    E(label(f"L_{n}_sync"))
    E(salu('s_cmp_eq_u32', None, sWAVE, 0)); E(raw(f"s_cbranch_scc0 L_{n}_sy2"))
    E(smov(sSP, 0)); E(red_poll()[1][0])
    E(label(f"L_{n}_sy0"))
    E(salu('s_cmp_ge_u32', None, sOK, 16)); E(raw(f"s_cbranch_scc1 L_{n}_sy1"))
    E(red_poll()[0]); E(waitvm(0)); E(valu('v_readfirstlane_b32', sOK, vD))
    E(salu('s_cmp_ge_u32', None, sOK, 16)); E(raw(f"s_cbranch_scc0 L_{n}_syw"))
    E(label(f"L_{n}_sy1"))
    E(red_poll()[1][1]); E(red_poll()[1][0]); E(waitvm(1)); E(red_eval())
    E(salu('s_bitcmp1_b32', None, sC, 0)); E(csel(sT2, sRS, 36)); E(salu('s_bitcmp1_b32', None, sC, 1)); E(csel(sT3, sRF, 36))
    E(salu('s_min_u32', sT2, sT2, sT3)); E(salu('s_cmp_lt_u32', None, sI, sT2)); E(raw(f"s_cbranch_scc1 L_{n}_syp"))
    E(label(f"L_{n}_syw"))
    E(add(sSP, sSP, 1)); E(salu('s_cmp_gt_u32', None, sSP, CFG.get('spin', 4000))); E(csel(sTO, 1, 0)); E(raw(f"s_cbranch_scc1 L_{n}_syp"))
    E(raw(f"s_sleep {CFG.get('sleep', 1)}")); E(raw(f"s_branch L_{n}_sy0"))
    E(label(f"L_{n}_syp"))
    E(red_pub(sPAR))
    E(label(f"L_{n}_sy2")); E(barrier()); E(red_get(sPAR)); E(salu('s_xor_b32', sPAR, sPAR, 12))
    E(raw(f"s_setpc_b64 {sRET2}"))
    return p

def reduce_items(p, ni, sPART_, sXO_, srdP, srdX, srdO, vL16, vXO_, base, flags, mid=None):
    E = p.emit
    SA = base; FA = base + 8; T = base + 16
    Ls = [base + 24 + 72 * i for i in range(ni)]
    for k in range(NPART):
        if k: E(add(sPART_, sPART_, 16 * PART - (PWAVE if ni == 2 else 0)))
        for i in range(ni):
            if i: E(add(sPART_, sPART_, PWAVE))
            E(bload('buffer_load_dwordx4', v(Ls[i] + 4 * k, 4), vL16, srdP, sPART_, flags=flags))
    for i in range(ni):
        XR = Ls[i] + 68
        if i: E(add(sT2, sXO_, 32 * 1152))
        so = sT2 if i else sXO_
        E(bload('buffer_load_dwordx2', v(XR, 2), vXO_, srdX, so)); E(bload('buffer_load_dwordx2', v(XR + 2, 2), vXO_, srdX, so, 32))
    ex = 0
    if mid: mid(); ex = 1
    E(smov(sT3, 0xffff0000))
    for i in range(ni):
        L = Ls[i]; XR = L + 68
        for k in range(NPART):
            if i == 0: E(waitvm((NPART - 1 - k) * ni + (ni - 1) + 2 * ni + ex))
            acc = SA if k < 11 else FA
            for q in range(4):
                x = v(L + 4 * k + q)
                if k in (0, 11):
                    E(valu('v_lshlrev_b32', v(acc + 2 * q), 16, x)); E(valu('v_and_b32', v(acc + 2 * q + 1), sT3, x))
                else:
                    tp = v(T + 2 * q, 2)
                    E(valu('v_lshlrev_b32', tp[0], 16, x)); E(valu('v_and_b32', tp[1], sT3, x))
            if k not in (0, 11):
                for q in range(4): E(valu('v_pk_add_f32', v(acc + 2 * q, 2), v(acc + 2 * q, 2), v(T + 2 * q, 2)))
        for e in range(8): E(valu('v_exp_f32', v(T + e), v(FA + e)))
        for e in range(8): E(valu('v_add_f32', v(T + e), 1.0, v(T + e)))
        for e in range(8): E(valu('v_rcp_f32', v(T + e), v(T + e)))
        for e in range(8): E(valu('v_mul_f32', v(FA + e), f2u(-math.log(2.0)), v(FA + e)))
        for e in range(8): E(valu('v_mul_f32', v(FA + e), v(FA + e), v(T + e)))
        if i == 0: E(waitvm(ex if ni == 1 else 0))
        for q in range(4):
            E(valu('v_lshlrev_b32', v(T + 2 * q), 16, v(XR + q))); E(valu('v_and_b32', v(T + 2 * q + 1), sT3, v(XR + q)))
        for e in range(8): E(valu('v_fma_f32', v(T + e), v(SA + e), v(FA + e), v(T + e)))
        for q in range(4): E(valu('v_cvt_pk_bf16_f32', v(XR + q), v(T + 2 * q), v(T + 2 * q + 1)))
        if i: E(add(sXO_, sXO_, 32 * 1152))
        E(bstore('buffer_store_dwordx2', v(XR, 2), vXO_, srdO, sXO_)); E(bstore('buffer_store_dwordx2', v(XR + 2, 2), vXO_, srdO, sXO_, 32))

def build_role(kind, vm_before):
    R = Role(kind)
    CFG['shape'] = CFG.get('shapes', {}).get(kind, CFG['shape0'])
    R.ring = {'F': (216, 9), 'A': (192, 16), 'M': (200, 8)}[kind]
    if kind == 'M': R.depth = 7
    nl = CFG.get('pfl', 16)
    MS = CFG['shape'] == 'M'
    if MS:
        R.add_p1_unit, R.add_p1_half, R.epi_silu, R.epi_q = R.add_p1_unitM, R.add_p1_halfM, R.epi_siluM, R.epi_qM
    P2M = 'q16' if MS else 'pi'
    if kind == 'F' and CFG.get('l844'):
        R.ring = (208, 12); R.depth = 7
        for u in range(13): R.add_p1_unit(u, sW1, sHA, sHC, 9216, u == 0, a(16 * u, 16), R.epi_silu, last=(u == 12),
                                          inreg=[pf_run(sW2, sPF2, 832 * 1152, 10) if u >= 1 else None, pf_row('F', sW1)])
        needs = {t: [('reg', 8 * t)] for t in range(26)}
        dm = [dma_w(sW2, sFA, 0, 1152, sFC, 0), dma_w(sW2, sFA, 288 * 1152, 1152, sFC, 288 * 1152), dma_w(sW2, sFA, 576 * 1152, 1152)]
        R.add_p2([(a(0, 208), [288, 288, 256], dm, needs, sSt)], [add(x, x, 128) for x in (sFA, sFC)], pre0=lambda: set_offw(1152, P2M))
        for st in R.stages[-27:]: st.ring = (208, 12, 'restart')
    elif kind == 'M' and CFG.get('l844'):
        R.ring = (208, 8); R.depth = 7
        Q = [a(80, 32), a(112, 32)]; OA = a(144, 64)
        def mpf(u):
            if u == 0: return pf_row('M', sWQ)
            if u == 1: return lambda: pf_row_setup('M', 9216, 18, sPF1, 0) + [pf_row('M', sW1)()[1]]
            if u <= 5: return pf_row('M', sW1)
            return None
        for u in range(4): R.add_p1_unit(u, sWQ, sQA, sQC, 8192, u == 0, a(80 + 16 * u, 16), R.epi_q, key='Q', inreg=[None, mpf(u)])
        for u in range(5): R.add_p1_unit(4 + u, sW1, sHA, sHC, 9216, u == 0, a(16 * u, 16), R.epi_silu, pre=(lambda: set_offw(9216, 'S')) if u == 0 else None,
                                         last=(u == 4), key='H', inreg=[None, mpf(4 + u)])
        Ha = dict(i=0, Q=Q[0], S=Sreg, P=Preg, O=OA, LM=v(230, 8), OF=lambda kk: OA.sub(16 * kk, 8),
                  need_qk=[('acc', 80), ('acc', 96)], need_pv=[('acc', 48 + 16 * i) for i in range(4)])
        Hb = dict(i=1, Q=Q[1], S=[v(80, 16), v(96, 16)], P=[v(48, 8), v(56, 8)], O=v(160, 64), LM=v(64, 8), OF=lambda kk: OA.sub(16 * kk + 8, 8))
        R.add_pa_g([[Ha, Hb]])
        R.stages[-9].mf[-1].need.append(('acc', 48))
        R.heads = [(Ha, sPFa), (Hb, sPFa)]
        R.add_p2m(a(0, 80), [H['OF'](kk) for H in (Ha, Hb) for kk in range(4)],
                  [dma_w(sW2, sFA, 0, 1152, sFC, 0), dma_w(sWO, sOA, 0, 1152, sFC, 32 * 1152, srdC=sW2)],
                  [add(x, x, 128) for x in (sOA, sFA, sFC)], pre0=lambda: set_offw(1152, P2M))
        for st in R.stages[-18:]: st.ring = (208, 12, 'restart')
        k = pf_sched(R, 15, sK, sPFa, 131072, 16); k = pf_sched(R, k, sV, sPFa, 131072, 16)
        pf_sched(R, 17, sWO, sPFc, 256 * 1152, 36); pf_sched(R, 18, sW2, sPF2, 320 * 1152, 45)
    elif kind == 'F':
        for u in range(13): R.add_p1_unit(u, sW1, sHA, sHC, 9216, u == 0, a(16 * u, 16), R.epi_silu, last=(u == 12), inreg=[pf_run(sW2, sPF2, 832 * 1152, 10) if u >= 1 else None, pf_row('F', sW1) if CFG['pf'] >= 3 else None] if CFG['pf'] else None)
        R.add_p1_half(13, a(208, 8))
        needs = {t: [('reg', 8 * t)] for t in range(27)}
        dm = [dma_w(sW2, sFA, 0, 1152, sFC, 0), dma_w(sW2, sFA, 288 * 1152, 1152, sFC, 288 * 1152), dma_w(sW2, sFA, 576 * 1152, 1152, sFS, 0)]
        R.add_p2([(a(0, 216), [288, 288, 288], dm, needs, sSt)], [add(x, x, 128) for x in (sFA, sFC, sFS)], pre0=lambda: set_offw(1152, P2M))
        if CFG['pf']:
            pf_sched(R, 26, sW2, sPF2h, 32 * 1152, 8)
    elif kind == 'A' and CFG.get('pair'):
        OA = a(96, 64)
        Ha = dict(i=0, Q=a(0, 32), S=Sreg, P=Preg, O=OA, LM=v(230, 8), OF=lambda kk: OA.sub(16 * kk, 8),
                  need_qk=[('acc', 48), ('acc', 64)], need_pv=[('acc', 48 + 16 * i) for i in range(4)])
        Hb = dict(i=1, Q=a(32, 32), S=[v(48, 16), v(64, 16)], P=[v(80, 8), v(88, 8)], O=v(160, 64), LM=v(96, 8), OF=lambda kk: OA.sub(16 * kk + 8, 8))
        Hc = dict(i=2, Q=a(64, 32), S=Sreg, P=Preg, O=v(48, 64), LM=v(16, 8), OF=lambda kk: a(160 + 8 * kk, 8), need_pv=[('lm', 0)])
        Ha['need_qk'] += [('acc', 80)]
        pj = {1: sJQ}
        for u in range(6):
            R.add_p1_unit(u, sWQ, sQA, sQC, 8192, u == 0, a(16 * u, 16), R.epi_q, last=(u == 5), step=sJQ if u == 4 else 128,
                          inreg=[pf_run(sWO, sPFc, 384 * 1152, 11) if u >= 1 else None, pf_row('A', sWQ, pj.get(u, 128)) if CFG['pf'] >= 3 and u < 3 else None] if CFG['pf'] else None)
        R.add_pa_g([[Ha, Hb], [Hc]])
        Bf = [H['OF'](kk) for H in (Ha, Hb, Hc) for kk in range(4)]
        needs = {0: [('fin', 0), ('fin', 1)], 8: [('fin', 2)]}
        dm = [dma_w192(sWO, 0), dma_w192(sWO, 0, sOA1, sOB1)]
        R.add_p2([(Bf, [192, 192], dm, needs, sSt)], [add(x, x, 128) for x in (sOA, sOB, sOA1, sOB1)], pre0=lambda: set_offw(1152, P2M))
        R.heads = [(Ha, sPFa), (Hb, sPFa), (Hc, sPFb)]
        if CFG['pf'] >= 2:
            pf_sched(R, 10, sK, sPFa, 131072, 16); pf_sched(R, 10, sV, sPFa, 131072, 16)
            pf_sched(R, 12, sK, sPFb, 131072, 16); pf_sched(R, 12, sV, sPFb, 131072, 16)
    elif kind == 'A':
        Q = [a(32 * e, 32) for e in range(3)]; O = [a(96 + 32 * e, 32) for e in range(3)]
        for u in range(6): R.add_p1_unit(u, sWQ, sQA, sQC, 8192, u == 0, a(16 * u, 16), R.epi_q, last=(u == 5), inreg=[pf_run(sWO, sPFc, 384 * 1152, 11) if u >= 1 else None, pf_row('A', sWQ) if CFG['pf'] >= 3 and u < 5 else None] if CFG['pf'] else None)
        R.add_pa(Q, O)
        needs = {4 * e: [('fin', e)] for e in range(3)}; needs[0].append(('S', 2, 15))
        dm = [dma_w192(sWO, b * 192 * 1152) for b in range(2)]
        R.add_p2([(a(96, 96), [192, 192], dm, needs, sSt)], [add(sOA, sOA, 128), add(sOB, sOB, 128)], pre0=lambda: set_offw(1152, P2M))
        if CFG['pf']:
            if CFG['pf'] >= 2:
                pf_sched(R, 10, sK, sPFa, 131072, 16); pf_sched(R, 10, sV, sPFa, 131072, 16)
                pf_sched(R, 12, sK, sPFb, 131072, 16); pf_sched(R, 12, sV, sPFb, 131072, 16)
    else:
        Q = [a(136 + 32 * e, 32) for e in range(2)]; O = [a(72 + 32 * e, 32) for e in range(2)]
        def mpf(u):
            if u == 0: return pf_row('M', sWQ)
            if u == 1: return lambda: pf_row_setup('M', 9216, 18, sPF1, 0) + [pf_row('M', sW1)()[1]]
            if u <= 4: return pf_row('M', sW1)
            if u == 5: return lambda: [smov(sPW, sPF1h), pf_row('M', sW1)()[1]]
            return None
        for u in range(4): R.add_p1_unit(u, sWQ, sQA, sQC, 8192, u == 0, a(136 + 16 * u, 16), R.epi_q, key='Q', inreg=[None, mpf(u)] if CFG['pf'] >= 3 else None)
        for u in range(4): R.add_p1_unit(4 + u, sW1, sHA, sHC, 9216, u == 0, a(16 * u, 16), R.epi_silu, pre=(lambda: set_offw(9216, 'M' if MS else 'S')) if u == 0 else None, last=(u == 3), key='H', inreg=[None, mpf(4 + u)] if CFG['pf'] >= 3 else None)
        R.add_p1_half(8, a(64, 8))
        BO = a(72, 64)
        if CFG.get('pair'):
            Ha = dict(i=0, Q=Q[0], S=Sreg, P=Preg, O=BO, LM=v(230, 8), OF=lambda kk: BO_.sub(16 * kk, 8),
                      need_qk=[('acc', 48 + 16 * i) for i in range(3)], need_pv=[('acc', 48 + 16 * i) for i in range(4)])
            Hb = dict(i=1, Q=Q[1], S=[v(64, 16), v(48, 16)], P=[v(80, 8), v(88, 8)], O=v(160, 64), LM=v(96, 8), OF=lambda kk: BO_.sub(16 * kk + 8, 8))
            BO_ = BO
            if CFG.get('mfree', 0):
                Hb['S'] = [v(64, 16), v(238, 16)]; Ha['need_qk'] = [('acc', 64), ('acc', 80)]; Ha['need_pv'] = [('acc', 96)]
                R.ntmp = 12; R.ones = v(28, 4)
                for st_, idx in ((R.stages[-2], -1), (R.stages[-1], -1)):
                    m_ = st_.mf[idx]; f_ = m_.after
                    m_.after = (lambda G, f_=f_: (setattr(R, 'low', True), f_(G), setattr(R, 'low', False)))
            R.add_pa_g([[Ha, Hb]])
            BO = [H['OF'](kk) for H in (Ha, Hb) for kk in range(4)]
            R.heads = [(Ha, sPFa), (Hb, sPFa)]
        else: R.add_pa(Q, O)
        nf = {t: [('reg', 8 * t)] for t in range(9)}; nf[0].append(('S', 1, 15))
        R.add_p2([(a(0, 72), [288], [dma_w(sW2, sFA, 0, 1152, sFS, 0)], nf, sSt2),
                  (BO, [256], [dma_w(sWO, sOA, 0, 1152)], {0: [('fin', 0)], 4: [('fin', 1)]}, sSt)],
                 [add(x, x, 128) for x in (sOA, sFA, sFS)], pre0=lambda: set_offw(1152, P2M))
        for st in R.stages[-18:]: st.ring = (200, 14, 'restart')
        if CFG['pf']:
            if CFG['pf'] >= 2:
                k = pf_sched(R, 14, sK, sPFa, 131072, 16); k = pf_sched(R, k, sV, sPFa, 131072, 16)
            pf_sched(R, 16, sWO, sPFc, 256 * 1152, 36); pf_sched(R, 23 if not CFG.get('pair') else 17, sW2, sPF2, 256 * 1152, 36); pf_sched(R, 24 if not CFG.get('pair') else 17, sW2, sPF2h, 32 * 1152, 8)
    if CFG.get('msum') and not MS and kind in 'AM':
        st0 = [st for st in R.stages if st.name == 'PAh0s0'][0]
        m0_ = st0.mf[8]
        if not hasattr(R, 'ones'): m0_.need += [('acc', 48 + 16 * i) for i in range(4)]
        m0_.pre = lambda: R.p.emit([valu('v_mov_b32', getattr(R, 'ones', vONES)[i], 0x3f803f80) for i in range(4)])
    if CFG.get('recode') and CFG['fused']:
        names = [st.name for st in R.stages]
        nS = len(names)
        R.pf.setdefault(nS - 2, []).append(pf_code(f"L_{kind}_red", f"L_role{kind}_end", 4))
        p2 = names.index('P2c0b0')
        R.stages[p2].label = f"L_{kind}_p2"
        R.pf.setdefault(p2 - 2, []).append(pf_code(f"L_{kind}_p2", f"L_{kind}_p2+20480", 5))
        if kind in 'AM':
            pa = names.index('PAmini'); R.stages[pa].label = f"L_{kind}_pa"
            R.pf.setdefault(pa - 1, []).append(pf_code(f"L_{kind}_pa", f"L_{kind}_p2", 8))
    if CFG.get('hot') and CFG['fused'] and kind in CFG['hot']:
        names = [st.name for st in R.stages]
        last = names.index('P2c8b0'); R.stages[last].label = f"L_{kind}_c8"
        def setup():
            o = [raw(f"s_getpc_b64 {sPC}", 'salu', wr=[sPC]), label(f"L_{kind}_hp"),
                 salu('s_add_u32', sPC[0], sPC[0], f"L_{kind}_c8-L_{kind}_hp"), salu('s_addc_u32', sPC[1], sPC[1], 0, scc_r=True),
                 valu('v_bfe_u32', vPF2, vTID, 16, 5), valu('v_and_b32', vPF, 63, vTID), valu('v_min_u32', vPF, 1, vPF),
                 valu('v_lshl_add_u32', vPF, vPF2, 1, vPF), valu('v_lshlrev_b32', vPF, 7, vPF)]
            if kind == 'F': o += pf_row_setup(kind, 1152, 26, sPF2, 2 * 128)
            return o
        def rep_code():
            return [I(f"global_load_dword {vDUM}, {vPF}, {sPC}", 'vload', wr=vDUM.regs(), rd=vPF.regs() + sPC.regs(), units=3, tag='pf')]
        R.pf.setdefault(names.index('P2c1b0'), []).append(setup)
        for c in range(2, 8):
            k0 = names.index(f'P2c{c}b0')
            R.pf.setdefault(k0, []).append(rep_code)
            if kind == 'F': R.pf.setdefault(k0 + 1, []).append(pf_row(kind, sW2))
    R.slow = []
    if kind in 'AM' and CFG.get('slow', True) and CFG.get('pair'):
        P2s = [st for st in R.stages if st.name.startswith('P2c0')]
        hl = [(H['i'], H['Q'], (H['OF'], kv)) for (H, kv) in R.heads]
        if kind == 'A':
            P2s[0].mf[0].pre = slow_check(R, hl[:2], (112, 160))
            [m for m in P2s[1].mf if ('fin', 2) in m.need][0].pre = slow_check(R, hl[2:], (160, 48))
        else:
            m_ = P2s[1].mf[4 if CFG.get('l844') else 0]
            m_.need += [('fin', 0), ('fin', 1)]
            m_.pre = slow_check(R, hl, (160, 48))
    elif kind in 'AM' and CFG.get('slow', True):
        P2s = [st for st in R.stages if st.name.startswith('P2c0')]
        if kind == 'A':
            P2s[0].mf[0].need += [('fin', 1)]
            P2s[0].mf[0].pre = slow_check(R, [(0, Q[0], O[0]), (1, Q[1], O[1])], 112)
            m_ = [m for m in P2s[1].mf if ('fin', 2) in m.need][0]
            m_.pre = slow_check(R, [(2, Q[2], O[2])], 160)
        else:
            P2s[1].mf[0].need += [('fin', 1)]
            P2s[1].mf[0].pre = slow_check(R, [(0, Q[0], O[0]), (1, Q[1], O[1])], 160)
    if CFG['fused']:
        add_signals(R)
        def early0():
            it = red_setup(kind) + red_poll()[0]
            it[-1].tag = 'cnt'
            return it
        def early():
            assert R.cnt_covered()
            PRIV[0] = (kind == 'A' or (kind == 'M' and bool(CFG.get('mpriv'))) or CFG.get('mpriv') == 5)
            it = red_poll()[1]
            if PRIV[0] and CFG.get('mpriv') == 5: it = it[1:]
            it[-1].tag = 'poll'
            return it
        def covered():
            idx = max(i for i, x in enumerate(R.p.ins) if x.tag == 'cnt'); n = 0
            for x in R.p.ins[idx + 1:]:
                if x.kind in VMEMK: n += 1
                if x.txt.startswith('s_waitcnt vmcnt(') and int(x.txt[16:-1]) <= n: return True
            return False
        R.cnt_covered = covered
        if kind == 'A' and CFG.get('l2pf'):
            nm = [st.name for st in R.stages]
            R.pf.setdefault(nm.index('P2c1b0'), []).append(l2pf_setup)
            for (cw, dlt) in CFG['l2pf']:
                kp = nm.index(f'P2c{cw}b0')
                for j in range(4): R.pf.setdefault(kp, []).append(lambda j=j: l2pf_poll()[j])
                R.stages[kp + 2].cover_tag = 'gp'
                def gate(j, dlt=dlt):
                    def f():
                        it = l2pf_issue(R, dlt)[j]
                        if j == 0:
                            it = it + [valu('v_readfirstlane_b32', sOK, vD), salu('s_cmp_ge_u32', None, sOK, 16), csel(sC, sC, 15)]
                        return it
                    return f
                for j in range(4): R.pf.setdefault(kp + 2, []).append(gate(j))
        R.pf.setdefault([st.name for st in R.stages].index('P2c1b0' if kind == 'F' else 'P2c0b1'), []).append(early0)
        if kind in CFG.get('pre', ''):
            R.pf.setdefault(len(R.stages) - 3, []).append(early)
            R.stages[-1].pre_bar = lambda: red_early(R.p, kind)
        elif not (kind == 'F' and CFG.get('bal') == 2 and (CFG.get('fq', 1) and not CFG.get('fi'))): R.pf.setdefault(len(R.stages) - CFG.get('pollw', 1), []).append(early)
    role_prologue(R, vm_before)
    R.run()
    if CFG['fused']:
        p = R.p
        if kind == 'F' and CFG.get('bal') == 2 and (CFG.get('fq', 1) and not CFG.get('fi')):
            p.emit([smov(sRS, 0), smov(sRF, 0), smov(sTO, 0), smov(sPAR, LDSC + 4), valu('v_readfirstlane_b32', sOK, vD)])
        elif kind not in CFG.get('pre', ''): red_early(p, kind)
        if kind in CFG.get('pre', ''): pass
        elif kind in CFG.get('lateflag', 'A'): p.emit(barrier())
        else:
            p.emit(waitvm(0)); p.emit(barrier())
            p.emit(valu('v_mov_b32', vPRG, 9))
            if CFG.get('rep'): p.emit(bstore('buffer_store_dword', vPRG, vCR, sWS, 0, flags='sc1'))
            p.emit(bstore('buffer_store_dword', vPRG, vCT, sWS, 0, flags='sc1'))
        if CFG['stamps']: R.stamp(len(R.stages) - 1)
        p.emit(raw(f"s_call_b64 {sRET}, L_{kind}_red"))
    if CFG['stamps']:
        p = R.p
        R.stamp(len(R.stages))
        p.emit(raw("s_memrealtime s[98:99]", wr=[s(98, 2)])); p.emit(raw("s_waitcnt lgkmcnt(0)"))
        p.emit(raw(f"v_writelane_b32 {vSTAMP}, s98, 63", 'valu', wr=[vSTAMP], rd=[s(98)]))
        if CFG.get('dbgstat'):
            n = len(R.stages)
            lanes = {'F': [0, 27, n - 1, n], 'A': [0, 37, n - 1, n], 'M': [0, 34, n - 1, n]}[kind]
            slots = {'F': [1, 2, 3, 5], 'A': [10, 11, 13, 14], 'M': [15, 15, 15, 15]}[kind]
            p.emit([valu('v_mov_b32', v(4), 256), valu('v_mov_b32', v(5), 0)])
            for i, (ln, sl) in enumerate(zip(lanes, slots)):
                p.emit(raw(f"v_readlane_b32 s92, {vSTAMP}, {ln}", 'rdl', wr=[sT2], rd=[vSTAMP])); p.emit(nop(3))
                p.emit(raw(f"v_writelane_b32 v5, s92, {i}", 'valu', wr=[v(5)], rd=[sT2])); p.emit(raw(f"v_writelane_b32 v4, {4 * sl}, {i}", 'valu', wr=[v(4)]))
            p.emit(raw(f"v_writelane_b32 v5, s98, 4", 'valu', wr=[v(5)], rd=[s(98)])); p.emit(raw(f"v_writelane_b32 v4, 28, 4", 'valu', wr=[v(4)]))
            p.emit(salu('s_not_b32', sT2, s(43))); p.emit(raw(f"v_writelane_b32 v5, s92, 5", 'valu', wr=[v(5)], rd=[sT2])); p.emit(raw(f"v_writelane_b32 v4, 36, 5", 'valu', wr=[v(4)]))
            p.emit(salu('s_sub_u32', sT2, s(98), s(43))); p.emit(raw(f"v_writelane_b32 v5, s92, 6", 'valu', wr=[v(5)], rd=[sT2])); p.emit(raw(f"v_writelane_b32 v4, 24, 6", 'valu', wr=[v(4)]))
            p.emit([salu('s_cmp_eq_u32', None, sRB, 9), csel(sT2, 0, sRB), salu('s_or_b32', sT2, sT2, sWAVE), salu('s_cmp_eq_u32', None, sT2, 0), csel(sT2, 0, 256),
                    valu('v_add_u32', v(4), sT2, v(4))])
            p.emit(I(f"buffer_atomic_umax v5, v4, {sDBG}, 0 offen sc1", 'vstore', rd=vr(4, 2) + sDBG.regs(), units=3))
        p.emit([shl(sT2, s(2), 2), add(sT2, sT2, sWAVE), shl(sT2, sT2, 8), add(sT2, sT2, STAMP_OFF),
                valu('v_lshrrev_b32', v(42), 2, vLANE16), bstore('buffer_store_dword', vSTAMP, v(42), sWS, sT2)])
    R.p.emit(raw("s_endpgm"))
    return R

def fold(ins, name):
    idx = [i for i, x in enumerate(ins) if x.tag == 'mark']
    def body(a_, b_): return [x.txt for x in ins[a_:b_] if x.kind != 'label']
    out = []; pos = 0; k = 0; nl = 0
    while k + 1 < len(idx):
        b0 = body(idx[k], idx[k + 1]); n = 1
        while k + n + 1 < len(idx) and body(idx[k + n], idx[k + n + 1]) == b0: n += 1
        if n >= 2:
            out += ins[pos:idx[k]]
            L = f"L_{name}_loop{nl}"; nl += 1
            out.append(smov(sLC, n)); out.append(I(".p2align 3", 'label')); out.append(label(L))
            out += ins[idx[k]:idx[k + 1]]
            out += [salu('s_sub_u32', sLC, sLC, 1), salu('s_cmp_lg_u32', None, sLC, 0), raw(f"s_cbranch_scc1 {L}")]
            pos = idx[k + n]; k += n
        else: k += 1
    out += ins[pos:]
    return out

def fold_regions(ins, name):
    regs = []; i = 0
    beg = None
    for i, x in enumerate(ins):
        if isinstance(x.tag, tuple) and x.tag and x.tag[0] == 'region':
            if x.tag[1] == 'begin': beg = (i, x.tag[2])
            elif beg: regs.append((beg[0], i, beg[1])); beg = None
    groups = {}
    for (a_, b_, key) in regs:
        groups.setdefault(tuple(x.txt for x in ins[a_:b_] if x.kind != 'label'), []).append((a_, b_))
    out = []; subs = []; repl = {}
    n = 0
    for body, lst in groups.items():
        if len(lst) >= 2:
            L = f"L_{name}_sub{n}"; n += 1
            a_, b_ = lst[0]
            subs += [I(".p2align 6", 'label'), label(L)] + ins[a_:b_] + [raw(f"s_setpc_b64 {sRET}")]
            for (a_, b_) in lst: repl[a_] = (b_, L)
    i = 0
    while i < len(ins):
        if i in repl:
            b_, L = repl[i]; out.append(raw(f"s_call_b64 {sRET}, {L}")); i = b_
        else:
            out.append(ins[i]); i += 1
    print(f"  regions: {[len(l) for l in groups.values()]}", file=sys.stderr)
    return out + subs

def reduce_body(p, sPART, sXO, srdP, srdX, srdO, vL16, vXO, base, flags, mid=None):
    E = p.emit
    L = base; XR = base + 68; SA = base + 72; FA = base + 80; T = base + 88
    for k in range(NPART):
        if k: E(add(sPART, sPART, 16 * PART))
        E(bload('buffer_load_dwordx4', v(L + 4 * k, 4), vL16, srdP, sPART, flags=flags))
    E(bload('buffer_load_dwordx2', v(XR, 2), vXO, srdX, sXO)); E(bload('buffer_load_dwordx2', v(XR + 2, 2), vXO, srdX, sXO, 32))
    ex = 0
    if mid: E(mid()); ex = 1
    E(smov(sT3, 0xffff0000))
    for k in range(NPART):
        E(waitvm(NPART + 1 - k + ex))
        acc = SA if k < 11 else FA
        for q in range(4):
            x = v(L + 4 * k + q)
            if k in (0, 11):
                E(valu('v_lshlrev_b32', v(acc + 2 * q), 16, x)); E(valu('v_and_b32', v(acc + 2 * q + 1), sT3, x))
            else:
                tp = v(T + 2 * q, 2)
                E(valu('v_lshlrev_b32', tp[0], 16, x)); E(valu('v_and_b32', tp[1], sT3, x))
        if k not in (0, 11):
            for q in range(4): E(valu('v_pk_add_f32', v(acc + 2 * q, 2), v(acc + 2 * q, 2), v(T + 2 * q, 2)))
    for e in range(8): E(valu('v_exp_f32', v(T + e), v(FA + e)))
    for e in range(8): E(valu('v_add_f32', v(T + e), 1.0, v(T + e)))
    for e in range(8): E(valu('v_rcp_f32', v(T + e), v(T + e)))
    for e in range(8): E(valu('v_mul_f32', v(FA + e), f2u(-math.log(2.0)), v(FA + e)))
    for e in range(8): E(valu('v_mul_f32', v(FA + e), v(FA + e), v(T + e)))
    E(waitvm(ex))
    for q in range(4):
        E(valu('v_lshlrev_b32', v(T + 2 * q), 16, v(XR + q))); E(valu('v_and_b32', v(T + 2 * q + 1), sT3, v(XR + q)))
    for e in range(8): E(valu('v_fma_f32', v(T + e), v(SA + e), v(FA + e), v(T + e)))
    for q in range(4): E(valu('v_cvt_pk_bf16_f32', v(XR + q), v(T + 2 * q), v(T + 2 * q + 1)))
    E(bstore('buffer_store_dwordx2', v(XR, 2), vXO, srdO, sXO)); E(bstore('buffer_store_dwordx2', v(XR + 2, 2), vXO, srdO, sXO, 32))

def reduce_kernel():
    p = Prog(); E = p.emit
    E(salu('s_cmp_ge_u32', None, s(2), 576)); E(raw("s_cbranch_scc0 L_rgo")); E(raw("s_endpgm")); E(label("L_rgo"))
    E(raw("s_load_dwordx2 s[4:5], s[0:1], 0", wr=[s(4, 2)])); E(raw("s_load_dwordx2 s[6:7], s[0:1], 64", wr=[s(6, 2)])); E(raw("s_load_dwordx2 s[8:9], s[0:1], 80", wr=[s(8, 2)]))
    E(valu('v_lshrrev_b32', v(1), 6, v(0))); E(valu('v_readfirstlane_b32', s(10), v(1)))
    E(shl(s(11), s(2), 2)); E(add(s(11), s(11), s(10)))
    E(salu('s_mul_hi_u32', s(24), s(11), -(-(1 << 32) // 36), scc_w=False))
    E(mul(s(25), s(24), 36)); E(salu('s_sub_u32', s(25), s(11), s(25)))
    E(shl(s(26), s(11), 10))
    E(valu('v_and_b32', v(0), 63, v(0))); E(valu('v_lshlrev_b32', v(1), 4, v(0)))
    E(valu('v_and_b32', v(2), 15, v(0))); E(smov(s(27), 1152)); E(valu('v_mul_u32_u24', v(2), s(27), v(2)))
    E(valu('v_lshrrev_b32', v(3), 4, v(0))); E(valu('v_lshl_add_u32', v(2), v(3), 3, v(2)))
    E(mul(s(28), s(24), 32 * 1152)); E(salu('s_and_b32', s(29), s(25), 1)); E(mul(s(29), s(29), 16 * 1152)); E(add(s(28), s(28), s(29)))
    E(shr(s(25), s(25), 1)); E(shl(s(25), s(25), 6)); E(add(s(28), s(28), s(25)))
    E(raw("s_waitcnt lgkmcnt(0)"))
    srd(p, s(12, 4), 8, WSP_BYTES); srd(p, s(16, 4), 4, 2359296); srd(p, s(20, 4), 6, 2359296)
    reduce_body(p, s(26), s(28), s(12, 4), s(16, 4), s(20, 4), v(1), v(2), 4, CFG.get('rflags', ''))
    E(raw("s_endpgm"))
    return p

def text(ins): return "\n".join((i.txt if i.kind == 'label' else " " + i.txt) for i in ins) + "\n"

def compress(t):
    t = re.sub(r" v_mfma_f32_16x16x32_bf16 v\[(\d+):\d+\], a\[(\d+):\d+\], v\[(\d+):\d+\], v\[\1:\d+\]", r" MV \1,\2,\3", t)
    t = re.sub(r" v_mfma_f32_16x16x32_bf16 v\[(\d+):\d+\], a\[(\d+):\d+\], a\[(\d+):\d+\], v\[\1:\d+\]", r" MA \1,\2,\3", t)
    t = re.sub(r" v_mfma_f32_32x32x16_bf16 v\[(\d+):\d+\], a\[(\d+):\d+\], v\[(\d+):\d+\], v\[\1:\d+\]", r" NV \1,\2,\3", t)
    t = re.sub(r" v_mfma_f32_32x32x16_bf16 v\[(\d+):\d+\], a\[(\d+):\d+\], a\[(\d+):\d+\], v\[\1:\d+\]", r" NA \1,\2,\3", t)
    t = re.sub(r" v_mfma_f32_16x16x32_bf16 a\[(\d+):\d+\], a\[(\d+):\d+\], v\[(\d+):\d+\], a\[\1:\d+\]", r" MC \1,\2,\3", t)
    t = re.sub(r" ds_read_b64_tr_b16 a\[(\d+):\d+\], v(\d+) offset:(\d+)", r" RT \1,\2,\3", t)
    t = re.sub(r" ds_read_b128 a\[(\d+):\d+\], v(\d+) offset:(\d+)", r" RB \1,\2,\3", t)
    t = re.sub(r" v_cvt_pk_bf16_f32 v(\d+), v(\d+), v(\d+)", r" CV \1,\2,\3", t)
    t = re.sub(r" v_accvgpr_write_b32 a(\d+), v(\d+)", r" AW \1,\2", t)
    t = re.sub(r" v_exp_f32 v(\d+), v(\d+)", r" EX \1,\2", t)
    t = re.sub(r" v_add_f32 v(\d+), v(\d+), v(\d+)", r" AD \1,\2,\3", t)
    t = re.sub(r" v_mul_f32 v(\d+), v(\d+), v(\d+)", r" ML \1,\2,\3", t)
    t = re.sub(r" s_waitcnt lgkmcnt\((\d+)\)", r" WL \1", t)
    mac = r""".macro MC d,a,b
 v_mfma_f32_16x16x32_bf16 a[\d:\d+3], a[\a:\a+3], v[\b:\b+3], a[\d:\d+3]
.endm
.macro NV d,a,b
 v_mfma_f32_32x32x16_bf16 v[\d:\d+15], a[\a:\a+3], v[\b:\b+3], v[\d:\d+15]
.endm
.macro NA d,a,b
 v_mfma_f32_32x32x16_bf16 v[\d:\d+15], a[\a:\a+3], a[\b:\b+3], v[\d:\d+15]
.endm
.macro MV d,a,b
 v_mfma_f32_16x16x32_bf16 v[\d:\d+3], a[\a:\a+3], v[\b:\b+3], v[\d:\d+3]
.endm
.macro MA d,a,b
 v_mfma_f32_16x16x32_bf16 v[\d:\d+3], a[\a:\a+3], a[\b:\b+3], v[\d:\d+3]
.endm
.macro RT d,a,o
 ds_read_b64_tr_b16 a[\d:\d+1], v\a offset:\o
.endm
.macro RB d,a,o
 ds_read_b128 a[\d:\d+3], v\a offset:\o
.endm
.macro CV d,a,b
 v_cvt_pk_bf16_f32 v\d, v\a, v\b
.endm
.macro AW d,a
 v_accvgpr_write_b32 a\d, v\a
.endm
.macro EX d,a
 v_exp_f32 v\d, v\a
.endm
.macro AD d,a,b
 v_add_f32 v\d, v\a, v\b
.endm
.macro ML d,a,b
 v_mul_f32 v\d, v\a, v\b
.endm
.macro WL n
 s_waitcnt lgkmcnt(\n)
.endm
"""
    return mac, t

HDR = open('recurrent_scan__sliding_block_cached__dense_activation_silu__prompt.s.ref').read().split('; Override launch')[0]
DOC = """; Generated by my own scheduler scripts (hand-designed instruction streams, hazards padded by the script).
; registers as MFMA B operands (transposed formulation), weights / K / V stream through a 4-slot LDS ring (LDS-DMA).
;   role A (10): layernorm, Q projection, attention for 3 heads (one GQA pair shares K/V fragments), partial of o@wo
; The bf16 partials go to d_ws with write-through stores; progress words (reset per launch, guarded by a counter in
"""
def kd(name, vgpr, acc, sgpr=102):
    return f""".amdhsa_kernel {name}
  .amdhsa_next_free_vgpr {vgpr}
  .amdhsa_next_free_sgpr {sgpr}
  .amdhsa_accum_offset {acc}
  .amdhsa_group_segment_fixed_size 0
  .amdhsa_kernarg_size 88
  .amdhsa_user_sgpr_count 2
  .amdhsa_user_sgpr_kernarg_segment_ptr 1
  .amdhsa_system_sgpr_workgroup_id_x 1
.end_amdhsa_kernel
"""
def est_cycles(ins):
    tot = 0; cur = None; n = 0
    for i in ins:
        if i.kind == 'label': continue
        if i.kind == 'mfma':
            if cur is not None: tot += max(cap, cur)
            cur = 2; n += 1; cap = 8 if len(i.wr) == 16 else 4
        elif cur is not None:
            if i.txt.startswith('s_waitcnt lgkm') and cap == 4: continue
            cur += i.units if not i.txt.startswith('s_nop') else (int(i.txt.split()[1]) + 1) * 0.5
    return tot * 4

def main(out, **kw):
    CFG.update(kw)
    set_layout(CFG.get('l844'))
    if CFG.get('tabs'):
        BAL2[:], BALM[:], BAL3[:] = CFG['tabs']
        CFG['bal'] = 2
    if CFG.get('tab'):
        global ROLE_TAB
        ROLE_TAB = CFG['tab']
    CFG['shape0'] = CFG['shape']
    cp = common_prologue()
    if CFG.get('entry', 0):
        if CFG.get('entry', 1) == 1:
            k = next(i for i, x in enumerate(cp.ins) if x.txt == 's_waitcnt lgkmcnt(0)')
            tail = cp.ins[k:]; vmx = list(cp.vm); cp.ins = cp.ins[:k]; cp.vm = []
            common_prologue2(cp); cp.ins += tail; cp.vm += vmx
        else: common_prologue2(cp)
        common_prologue3(cp)
    body = text(cp.ins) + dispatch_text()
    for kind in 'FAM':
        R = build_role(kind, cp.vm)
        ins = fold_regions(fold(R.p.ins, kind), kind) if CFG['fold'] else R.p.ins
        nm = sum(1 for i in R.p.ins if i.kind == 'mfma')
        print(f"role {kind}: stages {len(R.stages)} mfma {nm} instrs {len([i for i in ins if i.kind!='label'])} (unrolled {len([i for i in R.p.ins if i.kind!='label'])}) pad {R.p.npad} forced {R.forced} est {est_cycles(R.p.ins)} ideal {sum(32 if len(i.wr) == 16 else 16 for i in R.p.ins if i.kind == 'mfma')}", file=sys.stderr)
        if CFG.get('abl_pair') and kind in 'AM':
            out_ = []; on = False
            for x in ins:
                if x.kind == 'label' and x.txt.startswith('; PAh'): on = x.txt.startswith('; PAh1')
                if x.kind == 'label' and x.txt.startswith('; P2'): on = False
                if on and (x.kind in ('dma', 'ds') or (x.kind == 'salu' and ('m0' in x.txt or 's70' in x.txt))): continue
                out_.append(x)
            ins = out_
        if CFG.get('abl_half'):
            out_ = []; on = False; cnt = 0
            for x in ins:
                if x.kind == 'label' and x.txt.startswith('; P'): on = x.txt.startswith(('; P1', '; P2'))
                if x.kind == 'label' and x.txt.startswith('; REGION begin'): on = True
                if on and x.kind == 'ds':
                    cnt += 1
                    if (cnt >> 1) & 1: continue
                out_.append(x)
            ins = out_
        ab = CFG.get('ablate', '')
        if ab:
            st0 = next(i for i, x in enumerate(ins) if x.txt.startswith('; P1u1b0'))
            def keep(x):
                if 'd' in ab and x.kind == 'dma': return False
                if 'r' in ab and x.kind == 'ds': return False
                if 'v' in ab and x.kind in ('trans',): return False
                if 'V' in ab and x.kind in ('trans', 'valu', 'perm') and not x.txt.startswith(('v_add_u32', 'v_xor', 'v_writelane', 'v_cmp', 'v_cnd', 'v_mov', 'v_lsh', 'v_mad', 'v_min', 'v_and', 'v_bfe', 'v_mul_u32')): return False
                if 'm' in ab and x.kind == 'mfma': return False
                return True
            ins = ins[:st0] + [x for x in ins[st0:] if keep(x)]
        for sp in R.slow: ins = ins + sp.ins
        if CFG['fused']: ins = ins + reducer(kind).ins
        body += f".p2align 6\nL_role{kind}:\n" + text(ins) + f"L_role{kind}_end:\n"
    rk = reduce_kernel()
    mac, body = compress(body)
    if CFG['fused']:
        t = HDR + "; @launch grid=(256,1,1) block=(256,1,1) lds=163840\n" + DOC
        t += '.amdgcn_target "amdgcn-amd-amdhsa--gfx950"\n' + mac + f".text\n.globl {KN}\n.p2align 8\n.type {KN},@function\n{KN}:\n" + body
        t += '.section .rodata,"a"\n.p2align 6\n' + kd(KN, 512, 256)
        open(out, 'w').write(t); print("size", len(t), file=sys.stderr); return
    t = HDR + f"; @launch kernel={KN} grid=(256,1,1) block=(256,1,1) lds=163840\n; @launch kernel={RN} grid=(576,1,1) block=(256,1,1) lds=0\n"
    t += '.amdgcn_target "amdgcn-amd-amdhsa--gfx950"\n' + mac + f".text\n.globl {KN}\n.p2align 8\n.type {KN},@function\n{KN}:\n" + body
    t += f".globl {RN}\n.p2align 8\n.type {RN},@function\n{RN}:\n" + text(rk.ins)
    t += '.section .rodata,"a"\n.p2align 6\n' + kd(KN, 512, 256) + ".p2align 6\n" + kd(RN, 104, 104, 102)
    open(out, 'w').write(t)
    print("size", len(t), file=sys.stderr)

if __name__ == "__main__":
    kw = eval("dict(" + (sys.argv[2] if len(sys.argv) > 2 else "") + ")")
    main(sys.argv[1], **kw)
```
